```python
import torch

def _softmax(x, axis=-1):
    return torch.softmax(x, dim=axis)
def _gelu(x):
    return torch.nn.functional.gelu(x, approximate="tanh")
def _silu(x):
    return torch.nn.functional.silu(x)
def _sigmoid(x):
    return torch.sigmoid(x)
def _layernorm(x, axis=-1, eps=1e-5):
    m = x.mean(dim=axis, keepdim=True)
    v = x.var(dim=axis, keepdim=True, unbiased=False)
    return (x - m) / torch.sqrt(v + eps)
def _scatter_add(tgt, idx, src, axis=0):
    return tgt.clone().index_add_(axis, idx, src)
def _segment_sum(src, seg, n):
    out = torch.zeros((n,) + src.shape[1:], dtype=src.dtype)
    return out.index_add_(0, seg, src)
def _pad(x, pw):
    flat = tuple(v for pair in reversed(pw) for v in pair)
    return torch.nn.functional.pad(x, flat)

kernel_name = 'recurrent_scan__ssm_conv_s5__glu_gated_reglu__prompt'

def setup_inputs():

    _w = (lambda a: (lambda t: t.to(torch.bfloat16) if t.is_floating_point() else t)(torch.as_tensor(a)))
    def _A_setup():
        B, S, D = 1, 2048, 448
        P = D
        Lambda_re = -0.5 * (lambda _x: torch.exp(torch.as_tensor(_x)))((lambda *s: torch.randn(*s, dtype=torch.bfloat16) * 0.8)(P))
        Lambda_im = (lambda *s: torch.randn(*s, dtype=torch.bfloat16) * 0.8)(P) * 1.0
        B_re = (lambda *s: torch.randn(*s, dtype=torch.bfloat16) * 0.8)(P, D) * (D ** -0.5)
        B_im = (lambda *s: torch.randn(*s, dtype=torch.bfloat16) * 0.8)(P, D) * (D ** -0.5)
        C_re = (lambda *s: torch.randn(*s, dtype=torch.bfloat16) * 0.8)(D, P) * (P ** -0.5)
        C_im = (lambda *s: torch.randn(*s, dtype=torch.bfloat16) * 0.8)(D, P) * (P ** -0.5)
        log_dt = (lambda *s: torch.randn(*s, dtype=torch.bfloat16) * 0.8)(P) * 0.3 - 2.0
        Dskip = (lambda *s: torch.randn(*s, dtype=torch.bfloat16) * 0.8)(D)
        return {
            "x": _w((lambda *s: torch.randn(*s, dtype=torch.bfloat16) * 0.05)(B, S, D)),
            "Lambda_re": _w(Lambda_re),
            "Lambda_im": _w(Lambda_im),
            "B_re": _w(B_re),
            "B_im": _w(B_im),
            "C_re": _w(C_re),
            "C_im": _w(C_im),
            "log_dt": _w(log_dt),
            "Dskip": _w(Dskip),
        }
    _A_in = _A_setup()

    def _B_setup():
        B, S, D, F = 1, 2048, 448, 1792
        return {
            "x": _w((lambda *s: torch.randn(*s, dtype=torch.bfloat16) * 0.05)(B, S, D)),
            "W_gate": _w((lambda *s: torch.randn(*s, dtype=torch.bfloat16) * 0.2)(D, F) * (2.0 / D) ** 0.5),
            "W_up": _w((lambda *s: torch.randn(*s, dtype=torch.bfloat16) * 0.2)(D, F) * (2.0 / D) ** 0.5),
            "W_down": _w((lambda *s: torch.randn(*s, dtype=torch.bfloat16) * 0.2)(F, D) * (1.0 / F) ** 0.5),
        }
    _B_in = _B_setup()

    return {
        "A_x": _A_in["x"],
        "A_Lambda_re": _A_in["Lambda_re"],
        "A_Lambda_im": _A_in["Lambda_im"],
        "A_B_re": _A_in["B_re"],
        "A_B_im": _A_in["B_im"],
        "A_C_re": _A_in["C_re"],
        "A_C_im": _A_in["C_im"],
        "A_log_dt": _A_in["log_dt"],
        "A_Dskip": _A_in["Dskip"],
        "B_x": _B_in["x"],
        "B_W_gate": _B_in["W_gate"],
        "B_W_up": _B_in["W_up"],
        "B_W_down": _B_in["W_down"],
    }

def reference(A_x, A_Lambda_re, A_Lambda_im, A_B_re, A_B_im, A_C_re, A_C_im, A_log_dt, A_Dskip, B_x, B_W_gate, B_W_up, B_W_down):
    def _A_ref(x, Lambda_re, Lambda_im, B_re, B_im, C_re, C_im, log_dt, Dskip):
        Bsz, L, H = x.shape
        Lam = Lambda_re + 1j * Lambda_im
        Bmat = B_re + 1j * B_im
        Cmat = C_re + 1j * C_im
        dt = torch.exp(log_dt)
        Lam_bar = torch.exp(dt * Lam)
        B_bar = ((Lam_bar - 1.0) / Lam)[:, None] * Bmat
        Bu = torch.einsum("bld,pd->blp", x + 0j, B_bar)
        h = torch.zeros_like(Bu[:, 0, :])
        hs = []
        for t in range(L):
            h = Lam_bar[None, :] * h + Bu[:, t, :]
            hs.append(h)
        hseq = torch.stack(hs, 1)
        y = 2.0 * torch.einsum("blp,dp->bld", hseq, Cmat).real + x * Dskip[None, None, :]
        return y

    def _B_ref(x, W_gate, W_up, W_down):
        gate = torch.einsum("bsd,df->bsf", x, W_gate)
        up = torch.einsum("bsd,df->bsf", x, W_up)
        gate = gate * (lambda x, dt: x.to(dt))(gate > 0, gate.dtype)
        h = gate * up
        return torch.einsum("bsf,fd->bsd", h, W_down)

    x = A_x
    xn = _layernorm(x, axis=-1)
    s = _A_ref(xn, A_Lambda_re, A_Lambda_im, A_B_re, A_B_im, A_C_re, A_C_im, A_log_dt, A_Dskip)
    g = _silu(_B_ref(xn, B_W_gate, B_W_up, B_W_down))
    return x + s * g
```

```python
import re

_REG = re.compile(r'^(-|abs\(|\|)?([vsa])(\d+|\[(\d+):(\d+)\])\)?\|?$')

def regs_of(op):
    op = op.strip()
    if op in ('vcc',): return [('s', 'vcc')]
    if op in ('vcc_lo', 'vcc_hi'): return [('s', 'vcc')]
    if op == 'exec': return [('s', 'exec')]
    if op == 'm0': return [('s', 'm0')]
    m = _REG.match(op)
    if not m: return []
    k = m.group(2)
    if m.group(4) is not None:
        return [(k, i) for i in range(int(m.group(4)), int(m.group(5)) + 1)]
    return [(k, int(m.group(3)))]

TRANS = ('v_exp_f32', 'v_log_f32', 'v_rcp_f32', 'v_rsq_f32', 'v_sqrt_f32', 'v_sin_f32', 'v_cos_f32')

class Ins:
    def __init__(self, text):
        self.text = text
        t = text.split(';')[0].strip()
        parts = t.split(None, 1)
        self.op = parts[0]
        rest = parts[1] if len(parts) > 1 else ''
        ops, cur, depth = [], '', 0
        for ch in rest:
            if ch == '[': depth += 1
            if ch == ']': depth -= 1
            if ch == ',' and depth == 0:
                ops.append(cur.strip()); cur = ''
            else: cur += ch
        if cur.strip(): ops.append(cur.strip())
        self.mods = ''
        if ops:
            sp = ops[-1].split(None, 1)
            ops[-1] = sp[0]
            if len(sp) > 1: self.mods = sp[1]
        self.ops = ops
        op = self.op
        self.is_mfma = op.startswith('v_mfma')
        self.is_valu = op.startswith('v_') and not self.is_mfma
        self.is_trans = any(op.startswith(x) for x in TRANS)
        self.is_dpp = '_dpp' in op or 'row_' in self.mods or 'quad_perm' in self.mods
        self.is_perm = op.startswith('v_permlane')
        self.is_vmem = op.startswith(('buffer_', 'global_', 'flat_'))
        self.is_ds = op.startswith('ds_')
        self.is_salu = op.startswith('s_')
        self.is_lds_dma = self.is_vmem and (' lds' in ' ' + self.mods or 'load_lds' in op)
        w, r = [], []
        R = [regs_of(o) for o in ops]
        if self.is_mfma:
            w = R[0]; r = R[1] + R[2] + R[3]
            self.srcc = R[3]; self.srcab = R[1] + R[2]
        elif self.is_valu:
            if op.startswith('v_cmp'):
                w = R[0]; r = sum(R[1:], [])
                if op.startswith('v_cmpx'): w = w + [('s', 'exec')]
            elif op.startswith(('v_readfirstlane', 'v_readlane')):
                w = R[0]; r = sum(R[1:], [])
            elif self.is_perm:
                w = R[0] + R[1]; r = R[0] + R[1]
            elif op.startswith(('v_add_co', 'v_sub_co', 'v_addc_co', 'v_subb_co', 'v_div_scale', 'v_mad_u64')):
                w = R[0] + R[1]; r = sum(R[2:], [])
            else:
                w = R[0]; r = sum(R[1:], [])
                if op.startswith(('v_fmac', 'v_dot2c', 'v_pk_fmac')) or self.is_dpp and False: r = r + R[0]
                if self.is_dpp: r = r + R[0]
        elif self.is_vmem:
            if 'store' in op or 'atomic' in op:
                r = sum(R, [])
                if 'atomic' in op and 'sc0' in self.mods: w = R[0]
            elif self.is_lds_dma:
                r = sum(R, []) + [('s', 'm0')]
            elif op in ('buffer_inv', 'buffer_wbl2'):
                pass
            else:
                w = R[0]; r = sum(R[1:], [])
        elif self.is_ds:
            if op.startswith(('ds_read', 'ds_bpermute', 'ds_permute', 'ds_swizzle')) or '_rtn' in op:
                w = R[0]; r = sum(R[1:], [])
            else:
                r = sum(R, [])
        elif self.is_salu:
            if op.startswith(('s_cmp', 's_cbranch', 's_branch', 's_waitcnt', 's_barrier', 's_nop', 's_endpgm', 's_sleep', 's_setprio', 's_bitcmp')):
                r = sum(R, [])
            else:
                w = R[0] if R else []; r = sum(R[1:], [])
                if 'saveexec' in op: w = w + [('s', 'exec')]
        self.w = set(w); self.r = set(r)
        self.wide_store = self.is_vmem and ('store' in op) and ('x4' in op or 'x3' in op)
        if self.wide_store:
            self.sdata = set(R[0]) if op.startswith('buffer_') else set(R[1])
        if op == 's_nop': self.states = int(ops[0], 0) + 1
        else: self.states = 1
        if self.is_mfma:
            self.passes = 8 if '32x32x16' in op else (4 if '16x16x32' in op else 16)

def need(prod, cons):
    n = 0
    vw = {x for x in prod.w if x[0] in 'va'}
    sw = {x for x in prod.w if x[0] == 's'}
    if prod.is_valu:
        if vw & cons.r:
            if cons.is_mfma: n = max(n, 2)
            if cons.is_perm: n = max(n, 2)
            if cons.is_dpp and cons.is_valu: n = max(n, 2)
            if cons.op.startswith(('v_readfirstlane', 'v_readlane')): n = max(n, 1)
            if prod.is_trans and cons.is_valu and not cons.is_trans: n = max(n, 1)
            if prod.is_trans and (cons.is_vmem or cons.is_ds): n = max(n, 1)
        if sw & cons.r:
            if cons.is_vmem: n = max(n, 5)
            if cons.is_valu: n = max(n, 2)
            if cons.op.startswith(('v_readlane', 'v_writelane')): n = max(n, 4)
            if cons.is_salu: n = max(n, 1)
        if ('s', 'vcc') in sw and cons.op.startswith(('v_cndmask', 'v_addc', 'v_subb', 'v_div_fmas')):
            n = max(n, 4 if cons.op.startswith('v_div_fmas') else 2)
        if ('s', 'vcc') in sw and cons.op.startswith('s_cbranch_vcc'): n = max(n, 5)
        if ('s', 'exec') in sw:
            if cons.is_dpp: n = max(n, 5)
            if cons.is_mfma or cons.is_perm or cons.op.startswith(('v_readfirstlane', 'v_readlane')): n = max(n, 4)
    if prod.is_salu and ('s', 'm0') in sw and cons.is_lds_dma: n = max(n, 1)
    if prod.is_mfma:
        p = prod.passes
        big = {2: 5, 4: 8, 8: 12, 16: 20}[p]
        if cons.is_mfma:
            if vw & set(cons.srcab): n = max(n, big)
            c = set(cons.srcc)
            if vw & c and not (c == vw and cons.passes == p): n = max(n, {2: 4, 4: 6, 8: 10, 16: 18}[p])
            if vw & cons.w and not (vw & c): n = max(n, big)
        else:
            if vw & (cons.r | cons.w): n = max(n, big)
        if cons.is_valu and (set(prod.srcc) & cons.w): n = max(n, {2: 1, 4: 3, 8: 7, 16: 15}[p])
    if prod.wide_store and (prod.sdata & cons.w): n = max(n, 2)
    return n

class Asm:
    def __init__(self):
        self.lines = []
        self.hist = []
        self.nlabel = 0
    def raw(self, s):
        self.lines.append(s)
    def comment(self, s):
        self.lines.append('    ; ' + s)
    def label(self, name, keep_hist=False):
        self.lines.append(name + ':')
    def newlabel(self, base='L'):
        self.nlabel += 1
        return f'{base}_{self.nlabel}'
    def __call__(self, text):
        for t in text.split('\n'):
            t = t.strip()
            if not t: continue
            self.ins(t)
    def ins(self, text):
        i = Ins(text)
        dist = 0
        req = 0
        for p in reversed(self.hist):
            n = need(p, i)
            if n > dist: req = max(req, n - dist)
            dist += p.states
            if dist >= 24: break
        while req > 0:
            k = min(req, 16)
            nop = Ins(f's_nop {k-1}')
            self.lines.append(f'    s_nop {k-1}')
            self.hist.append(nop)
            req -= k
        self.lines.append('    ' + text)
        self.hist.append(i)
        if len(self.hist) > 64: self.hist = self.hist[-40:]
        if i.op in ('s_branch', 's_endpgm', 's_setpc_b64'):
            self.hist = []
    def text(self):
        return '\n'.join(self.lines) + '\n'

class VM:
    def __init__(self, a):
        self.a = a
        self.q = []
    def issue(self, tag, text):
        self.a(text)
        self.q.append(tag)
    def wait(self, tag, extra=''):
        idx = max((i for i, t in enumerate(self.q) if t == tag), default=None)
        if idx is None:
            if extra: self.a(f's_waitcnt {extra}')
            return
        n = len(self.q) - 1 - idx
        n = min(n, 63)
        self.a(f's_waitcnt vmcnt({n}) {extra}'.strip())
        self.q = self.q[idx + 1:]
    def wait_all(self, extra=''):
        self.a(f's_waitcnt vmcnt(0) {extra}'.strip())
        self.q = []
```

```python
import sys, os
sys.path.insert(0, os.path.dirname(os.path.abspath(__file__)))
from asmlib import Asm, VM

KNAME = "recurrent_scan__ssm_conv_s5__glu_gated_reglu__prompt_kernel"

R = [0, 53248, 106496]
MISC = 159744
OFF_WG, OFF_WU, OFF_BB = 32768, 40960, 49152
CP_L = R[1] + 49152
AGG_L = R[2] + 49152
CIN_L = R[2] + 51200
HT_L = R[0] + 32768
STATS_L = MISC
C_L = MISC + 2048
PS = [R[1], R[1] + 16384, R[1] + 32768, R[2], R[2] + 16384, R[2] + 32768, R[0], R[0] + 16384]
XCH_L = R[0]

RT_BYTES = 172032
HALF_BYTES = 86016
WS_STATS = 0xB00000
WS_AGG = WS_STATS + 0x4000
WS_FLAG = WS_AGG + 0x8000
WS_TS = 0xC00000
WS_SIZE = 0x1000000
SPIN_MAX = 1 << 20

S_WAVE, S_XCD, S_SLOT, S_MT, S_NS, S_M64, S_NT, S_W4 = 3, 4, 5, 6, 7, 8, 9, 10
P_X, P_LRE, P_LIM, P_BRE, P_BIM, P_CRE, P_CIM, P_LDT, P_DSK, P_BX, P_WG, P_WU, P_WD, P_OUT, P_DBG, P_WS = [16 + 2 * i for i in range(16)]
SRD_X, SRD_A, SRD_B, SRD_C, SRD_WS, SRD_E = 48, 52, 56, 60, 64, 68
TS0 = 76

LOG2E = 0x3fb8aa3b
LOG2E_LO = 0x32a57060
LN2 = 0x3f317218
INV2PI = 0x3e22f983

class Cfg:
    ts = False
    pd = 16
    touch = True

def srd(a, d, ptr, nbytes):
    a(f"s_mov_b32 s{d}, s{ptr}")
    a(f"s_and_b32 s{d+1}, s{ptr+1}, 0xffff")
    a(f"s_mov_b32 s{d+2}, {nbytes:#x}")
    a(f"s_mov_b32 s{d+3}, 0x20000")

def srd_sel(a, d, ptr1, ptr0, nbytes):
    a(f"s_cselect_b32 s{d}, s{ptr1}, s{ptr0}")
    a(f"s_cselect_b32 s{d+1}, s{ptr1+1}, s{ptr0+1}")
    a(f"s_and_b32 s{d+1}, s{d+1}, 0xffff")
    a(f"s_mov_b32 s{d+2}, {nbytes:#x}")
    a(f"s_mov_b32 s{d+3}, 0x20000")

class TS:
    def __init__(self, a, cfg):
        self.a, self.on, self.n = a, cfg.ts, 0
    def __call__(self, i):
        if self.on:
            assert i < 13
            self.a(f"s_memrealtime s[{TS0+2*i}:{TS0+2*i+1}]")
    def init(self):
        if self.on:
            for i in range(1, 13): self.a(f"s_mov_b32 s{TS0+2*i}, 0")
    def dump(self, vt, vt2):
        if not self.on: return
        a = self.a
        a("s_waitcnt vmcnt(0) lgkmcnt(0)")
        a(f"s_lshl_b32 s11, s2, 9")
        a(f"s_lshl_b32 s12, s{S_WAVE}, 6")
        a("s_add_u32 s11, s11, s12")
        a(f"s_add_u32 s11, s11, {WS_TS:#x}")
        a(f"v_mov_b32 v{vt2}, s11")
        for i in range(13):
            a(f"v_mov_b32 v{vt}, s{TS0+2*i}")
            a(f"buffer_store_dword v{vt}, v{vt2}, s[{SRD_WS}:{SRD_WS+3}], 0 offen offset:{4*i}")
        a("s_waitcnt vmcnt(0)")

def round_bf16(a, dst, src):
    a(f"v_cvt_pk_bf16_f32 v{dst}, v{src}, v{src}")
    a(f"v_lshlrev_b32 v{dst}, 16, v{dst}")

def exp_acc(a, dst, x, t0, t1):
    a(f"s_mov_b32 s13, {LOG2E:#x}")
    a(f"s_mov_b32 s14, {LOG2E_LO:#x}")
    a(f"s_mov_b32 s15, {LN2:#x}")
    a(f"v_mul_f32 v{t0}, s13, v{x}")
    a(f"v_fma_f32 v{t1}, v{x}, s13, -v{t0}")
    a(f"v_fma_f32 v{t1}, v{x}, s14, v{t1}")
    a(f"v_mul_f32 v{t1}, s15, v{t1}")
    a(f"v_exp_f32 v{dst}, v{t0}")
    a(f"v_fma_f32 v{dst}, v{dst}, v{t1}, v{dst}")

def csq(a, dr, di, sr, si, t):
    a(f"v_mul_f32 v{t}, v{si}, v{si}")
    a(f"v_add_f32 v{di}, v{si}, v{si}")
    a(f"v_mul_f32 v{di}, v{di}, v{sr}")
    a(f"v_fma_f32 v{dr}, v{sr}, v{sr}, -v{t}")

def cmul(a, dr, di, ar, ai, br, bi):
    a(f"v_mul_f32 v{dr}, v{ar}, v{br}")
    a(f"v_mul_f32 v{di}, v{ar}, v{bi}")
    a(f"v_fma_f32 v{dr}, -v{ai}, v{bi}, v{dr}")
    a(f"v_fma_f32 v{di}, v{ai}, v{br}, v{di}")

def ssm_const_load(a, vm, t):
    a(f"v_and_b32 v{t+3}, 15, v0")
    a(f"s_lshl_b32 s11, s{S_NS}, 4")
    a(f"v_add_lshl_u32 v{t+3}, v{t+3}, s11, 1")
    vm.issue('sc', f"global_load_ushort v{t}, v{t+3}, s[{P_LRE}:{P_LRE+1}]")
    vm.issue('sc', f"global_load_ushort v{t+1}, v{t+3}, s[{P_LIM}:{P_LIM+1}]")
    vm.issue('sc', f"global_load_ushort v{t+2}, v{t+3}, s[{P_LDT}:{P_LDT+1}]")

def ssm_const_calc(a, t, lr, li, cr=None, ci=None):
    for k in range(3): a(f"v_lshlrev_b32 v{t+k}, 16, v{t+k}")
    exp_acc(a, t + 3, t + 2, t + 4, t + 5)
    round_bf16(a, t + 2, t + 3)
    a(f"v_mul_f32 v{t+3}, v{t+2}, v{t}")
    a(f"v_mul_f32 v{t+6}, v{t+2}, v{t+1}")
    exp_acc(a, t + 7, t + 3, t + 4, t + 5)
    a(f"v_mul_f32 v{t+6}, {INV2PI:#x}, v{t+6}")
    a(f"v_rndne_f32 v{t+4}, v{t+6}")
    a(f"v_sub_f32 v{t+6}, v{t+6}, v{t+4}")
    a(f"v_cos_f32 v{t+4}, v{t+6}")
    a(f"v_sin_f32 v{t+5}, v{t+6}")
    a(f"v_mul_f32 v{lr}, v{t+7}, v{t+4}")
    a(f"v_mul_f32 v{li}, v{t+7}, v{t+5}")
    if cr is not None:
        a(f"v_add_f32 v{t+3}, -1.0, v{lr}")
        a(f"v_mul_f32 v{t+4}, v{t}, v{t}")
        a(f"v_fma_f32 v{t+4}, v{t+1}, v{t+1}, v{t+4}")
        a(f"v_rcp_f32 v{t+4}, v{t+4}")
        a(f"v_mul_f32 v{cr}, v{t+3}, v{t}")
        a(f"v_fma_f32 v{cr}, v{li}, v{t+1}, v{cr}")
        a(f"v_mul_f32 v{ci}, v{li}, v{t}")
        a(f"v_fma_f32 v{ci}, -v{t+3}, v{t+1}, v{ci}")
        a(f"v_add_f32 v{t+4}, v{t+4}, v{t+4}")
        a(f"v_mul_f32 v{cr}, v{cr}, v{t+4}")
        a(f"v_mul_f32 v{ci}, v{ci}, v{t+4}")

def gen_entry(a, cfg, ts):
    a("s_cmp_ge_u32 s2, 256")
    a("s_cbranch_scc1 L_exit")
    ts(0)
    a("s_load_dwordx16 s[16:31], s[0:1], 0")
    a("s_load_dwordx16 s[32:47], s[0:1], 64")
    a("v_lshrrev_b32 v1, 6, v0")
    a("v_and_b32 v0, 63, v0")
    a(f"v_readfirstlane_b32 s{S_WAVE}, v1")
    a(f"s_and_b32 s{S_XCD}, s2, 7")
    a(f"s_lshr_b32 s{S_SLOT}, s2, 3")
    a(f"s_and_b32 s11, s{S_SLOT}, 3")
    a(f"s_lshr_b32 s{S_NT}, s{S_SLOT}, 2")
    a(f"s_and_b32 s12, s{S_XCD}, 1")
    a(f"s_lshl_b32 s12, s12, 2")
    a(f"s_add_u32 s{S_MT}, s12, s11")
    a(f"s_lshr_b32 s12, s{S_XCD}, 1")
    a(f"s_mul_i32 s12, s12, 7")
    a(f"s_add_u32 s{S_NS}, s12, s{S_NT}")
    a(f"s_lshl_b32 s12, s{S_XCD}, 2")
    a(f"s_add_u32 s{S_M64}, s12, s11")
    a(f"s_and_b32 s{S_W4}, s{S_WAVE}, 3")
    ts.init()
    a(f"s_cmp_ge_u32 s{S_SLOT}, 28")
    a("s_cbranch_scc1 L_helper")
    a(f"s_cmp_ge_u32 s{S_WAVE}, 4")
    a("s_cbranch_scc1 L_loader")

def gen_helper(a, cfg, ts):
    a.label("L_helper")
    vm = VM(a)
    a(f"s_sub_u32 s11, s{S_SLOT}, 28")
    a(f"s_lshl_b32 s11, s11, 3")
    a(f"s_add_u32 s72, s11, s{S_XCD}")
    a(f"s_lshl_b32 s11, s72, 6")
    a(f"s_lshl_b32 s12, s{S_WAVE}, 3")
    a(f"s_add_u32 s11, s11, s12")
    a("v_lshrrev_b32 v2, 3, v0")
    a("v_add_u32 v2, s11, v2")
    a("v_mul_u32_u24 v3, 896, v2")
    a("v_and_b32 v4, 7, v0")
    a("v_lshl_add_u32 v3, v4, 4, v3")
    a(f"s_lshl_b32 s11, s{S_MT}, 8")
    a("s_add_u32 s11, s11, 224")
    a("v_and_b32 v5, 31, v0")
    a("v_add_u32 v5, s11, v5")
    a("v_mul_u32_u24 v5, 896, v5")
    a("v_lshrrev_b32 v6, 5, v0")
    a(f"s_lshl_b32 s11, s{S_W4}, 1")
    a("v_add_u32 v6, s11, v6")
    a("v_min_u32 v6, 6, v6")
    a("v_lshl_add_u32 v5, v6, 7, v5")
    a("s_waitcnt lgkmcnt(0)")
    srd(a, SRD_X, P_X, 2048 * 896)
    srd(a, SRD_WS, P_WS, WS_SIZE)
    if cfg.touch:
        vm.issue('t', f"buffer_load_dword v7, v5, s[{SRD_X}:{SRD_X+3}], 0 offen")
    for j in range(7):
        vm.issue('x', f"buffer_load_dwordx4 v[{16+4*j}:{19+4*j}], v3, s[{SRD_X}:{SRD_X+3}], 0 offen offset:{128*j}")
    a(f"s_cmp_gt_u32 s{S_WAVE}, 1")
    a("s_cbranch_scc1 L_h_noreset")
    a(f"s_cmp_eq_u32 s{S_WAVE}, 0")
    a("s_cselect_b32 s11, -1, 0")
    a("s_mov_b32 s12, 256")
    a("s_cmov_b32 s12, 896")
    a(f"s_mov_b32 s13, {WS_FLAG:#x}")
    a(f"s_cmov_b32 s13, {WS_AGG:#x}")
    a("s_mul_i32 s14, s12, s72")
    a("s_add_u32 s13, s13, s14")
    for k in range(4): a(f"v_mov_b32 v{8+k}, s11")
    a("v_lshlrev_b32 v12, 4, v0")
    a("v_cmp_gt_u32 vcc, s12, v12")
    a("s_and_saveexec_b64 s[14:15], vcc")
    a(f"buffer_store_dwordx4 v[8:11], v12, s[{SRD_WS}:{SRD_WS+3}], s13 offen sc1")
    a("s_mov_b64 exec, s[14:15]")
    a.label("L_h_noreset")
    vm.wait_all()
    a("s_mov_b32 s11, 0xffff0000")
    for k in range(28):
        a(f"v_lshlrev_b32 v{48+2*k}, 16, v{16+k}")
        a(f"v_and_b32 v{49+2*k}, s11, v{16+k}")
    def red8(acc, getter):
        pass
    for k in range(4): a(f"v_add_f32 v{8+k}, v{48+k}, v{52+k}")
    for k in range(8, 56): a(f"v_add_f32 v{8+k%4}, v{8+k%4}, v{48+k}")
    def fin(dst):
        a("v_add_f32 v8, v8, v9")
        a("v_add_f32 v10, v10, v11")
        a(f"v_add_f32 v{dst}, v8, v10")
        a(f"v_add_f32_dpp v{dst}, v{dst}, v{dst} quad_perm:[1,0,3,2] row_mask:0xf bank_mask:0xf")
        a(f"v_add_f32_dpp v{dst}, v{dst}, v{dst} quad_perm:[2,3,0,1] row_mask:0xf bank_mask:0xf")
        a(f"v_add_f32_dpp v{dst}, v{dst}, v{dst} row_half_mirror row_mask:0xf bank_mask:0xf")
        a(f"v_mul_f32 v{dst}, 0x3b124925, v{dst}")
    fin(12)
    for k in range(56): a(f"v_sub_f32 v{48+k}, v{48+k}, v12")
    for k in range(4): a(f"v_mul_f32 v{8+k}, v{48+k}, v{48+k}")
    for k in range(4, 56): a(f"v_fmac_f32 v{8+k%4}, v{48+k}, v{48+k}")
    fin(13)
    round_bf16(a, 14, 12)
    round_bf16(a, 13, 13)
    a("v_add_f32 v13, 0x3727c5ac, v13")
    round_bf16(a, 13, 13)
    a("v_sqrt_f32 v13, v13")
    round_bf16(a, 13, 13)
    a("v_rcp_f32 v15, v13")
    a("v_lshlrev_b32 v2, 3, v2")
    a("v_cmp_eq_u32 vcc, 0, v4")
    a("s_and_saveexec_b64 s[14:15], vcc")
    a(f"s_mov_b32 s11, {WS_STATS:#x}")
    a(f"buffer_store_dwordx2 v[14:15], v2, s[{SRD_WS}:{SRD_WS+3}], s11 offen sc1")
    a("s_mov_b64 exec, s[14:15]")
    a("s_waitcnt vmcnt(0)")
    a("s_barrier")
    a(f"s_cmp_lg_u32 s{S_WAVE}, 0")
    a("s_cbranch_scc1 L_h_done")
    a("v_mov_b32 v8, 0")
    a("v_mov_b32 v9, 1")
    a("s_mov_b64 exec, 1")
    a(f"global_atomic_add v8, v9, s[{P_DBG}:{P_DBG+1}] sc1")
    a("s_mov_b64 exec, -1")
    a.label("L_h_done")
    ts(1)
    ts.dump(8, 9)
    a("s_endpgm")

def spin_check(a, name, load_text_list, cond_fn):
    lo, done = a.newlabel(name + "_spin"), a.newlabel(name + "_ok")
    a(f"s_mov_b32 s73, 0")
    a.label(lo)
    cond_fn()
    a(f"s_cbranch_scc1 {done}")
    a("s_add_u32 s73, s73, 1")
    a(f"s_cmp_ge_u32 s73, {SPIN_MAX}")
    a(f"s_cbranch_scc1 {done}")
    a("s_sleep 1")
    for t in load_text_list: a(t)
    a("s_waitcnt vmcnt(0)")
    a(f"s_branch {lo}")
    a.label(done)
    a("s_nop 4")

def gen_loader(a, cfg, ts):
    a.label("L_loader")
    vm = VM(a)
    vXe, vXo, vW, vB, vLW, vLB = 2, 3, 4, 5, 6, 7
    vA, vC = 8, 9
    vWd, vCe, vCo = 10, 11, 12
    vT = 13
    ACC = 24
    RD = 44
    K = 64
    sMX, sMW, sMB, sMP = 72, 74, 75, 70
    a(f"v_lshrrev_b32 v{vA}, 3, v0")
    a(f"v_and_b32 v{vC}, 7, v0")
    a(f"s_lshl_b32 s11, s{S_MT}, 8")
    a(f"s_lshl_b32 s12, s{S_W4}, 6")
    a("s_add_u32 s11, s11, s12")
    a(f"v_lshrrev_b32 v{vT}, 2, v{vA}")
    a(f"v_and_b32 v{vT+1}, 3, v{vA}")
    a(f"v_lshl_add_u32 v{vT}, v{vT}, 4, v{vT+1}")
    a(f"v_add_u32 v{vT}, s11, v{vT}")
    a(f"v_mul_u32_u24 v{vXe}, 896, v{vT}")
    a(f"v_lshrrev_b32 v{vT+2}, 1, v{vA}")
    a(f"v_xor_b32 v{vT+3}, v{vC}, v{vT+2}")
    a(f"v_lshl_add_u32 v{vXe}, v{vT+3}, 4, v{vXe}")
    a(f"v_xor_b32 v{vXo}, 64, v{vXe}")
    a(f"s_lshl_b32 s11, s{S_W4}, 4")
    a(f"v_add_u32 v{vT}, s11, v{vA}")
    a(f"v_mul_u32_u24 v{vW}, 3584, v{vT}")
    a(f"v_and_b32 v{vT+4}, 1, v{vT+2}")
    a(f"v_lshlrev_b32 v{vT+4}, 2, v{vT+4}")
    a(f"v_xor_b32 v{vT+4}, v{vC}, v{vT+4}")
    a(f"v_lshl_add_u32 v{vW}, v{vT+4}, 4, v{vW}")
    a(f"s_lshl_b32 s11, s{S_NS}, 7")
    a(f"v_add_u32 v{vW}, s11, v{vW}")
    a(f"s_and_b32 s12, s{S_W4}, 1")
    a(f"s_lshl_b32 s11, s{S_NS}, 4")
    a(f"s_lshl_b32 s13, s12, 3")
    a("s_add_u32 s11, s11, s13")
    a(f"v_add_u32 v{vT}, s11, v{vA}")
    a(f"v_mul_u32_u24 v{vB}, 896, v{vT}")
    a(f"v_lshl_add_u32 v{vB}, v{vT+3}, 4, v{vB}")
    a("s_lshl_b32 s13, s12, 6")
    a(f"v_xor_b32 v{vB}, s13, v{vB}")
    a(f"s_lshl_b32 s{sMX}, s{S_W4}, 13")
    a(f"s_lshl_b32 s{sMW}, s{S_W4}, 11")
    a(f"s_lshl_b32 s{sMB}, s{S_W4}, 10")
    a(f"s_lshl_b32 s{sMP}, s{S_W4}, 12")
    a("s_waitcnt lgkmcnt(0)")
    srd(a, SRD_X, P_X, 2048 * 896)
    srd(a, SRD_A, P_WG, 448 * 3584)
    srd(a, SRD_B, P_WU, 448 * 3584)
    a(f"s_cmp_ge_u32 s{S_W4}, 2")
    srd_sel(a, SRD_C, P_BIM, P_BRE, 448 * 896)

    def dma(tag, voff, srdn, soff, m0base, m0off):
        a(f"s_add_u32 m0, s{m0base}, {m0off}")
        a(f"s_mov_b32 s11, {soff}")
        vm.issue(tag, f"buffer_load_dwordx4 v{voff}, s[{srdn}:{srdn+3}], s11 offen lds")
    def issue(s):
        r = R[s % 3]
        for i in range(2): dma(('st', s), vW, SRD_A, s * 64 * 3584 + i * 8 * 3584, sMW, r + OFF_WG + i * 1024)
        for j in range(4): dma(('st', s), vXo if j & 1 else vXe, SRD_X, (32 * (j >> 2) + 4 * (j & 3)) * 896 + s * 128, sMX, r + j * 1024)
        for i in range(2): dma(('st', s), vW, SRD_B, s * 64 * 3584 + i * 8 * 3584, sMW, r + OFF_WU + i * 1024)
        for j in range(4, 8): dma(('st', s), vXo if j & 1 else vXe, SRD_X, (32 * (j >> 2) + 4 * (j & 3)) * 896 + s * 128, sMX, r + j * 1024)
        dma(('st', s), vB, SRD_C, s * 128, sMB, r + OFF_BB)
    issue(0)
    ts(1)
    srd(a, SRD_WS, P_WS, WS_SIZE)
    a(f"v_lshlrev_b32 v{vT}, 4, v0")
    a(f"v_add_u32 v{vLW}, s{sMW}, v{vT}")
    a(f"v_add_u32 v{vLB}, s{sMB}, v{vT}")
    for k in range(17): a(f"v_mov_b32 v{ACC+k}, 0")
    a(f"s_lshr_b32 s11, s{S_W4}, 1")
    a("s_mul_i32 s11, s11, 896")
    a("s_lshl_b32 s13, s12, 5")
    a("s_add_u32 s11, s11, s13")
    a(f"v_add_u32 v{vT}, s11, v{vA}")
    a(f"v_mul_u32_u24 v{vWd}, 896, v{vT}")
    a(f"v_lshl_add_u32 v{vWd}, v{vT+4}, 4, v{vWd}")
    a(f"s_lshl_b32 s11, s{S_NT}, 7")
    a(f"v_add_u32 v{vWd}, s11, v{vWd}")
    a(f"s_lshl_b32 s11, s{S_NT}, 6")
    a("s_add_u32 s11, s11, s13")
    a(f"v_add_u32 v{vT}, s11, v{vA}")
    a(f"v_mul_u32_u24 v{vCe}, 896, v{vT}")
    a(f"v_lshl_add_u32 v{vCe}, v{vT+3}, 4, v{vCe}")
    a(f"v_xor_b32 v{vCo}, 64, v{vCe}")
    ssm_const_load(a, vm, K)
    issue(1)
    issue(2)
    a("s_mov_b32 s71, 0xffff0000")

    def colsum(s):
        r = R[s % 3]
        a(f"v_add_u32 v{vT}, {r + OFF_WG}, v{vLW}")
        a(f"v_add_u32 v{vT+1}, {r + OFF_BB}, v{vLB}")
        a(f"ds_read_b128 v[{RD}:{RD+3}], v{vT}")
        a(f"ds_read_b128 v[{RD+4}:{RD+7}], v{vT} offset:1024")
        a(f"ds_read_b128 v[{RD+8}:{RD+11}], v{vT} offset:8192")
        a(f"ds_read_b128 v[{RD+12}:{RD+15}], v{vT} offset:9216")
        a(f"ds_read_b128 v[{RD+16}:{RD+19}], v{vT+1}")
        for n in range(4):
            a(f"s_waitcnt lgkmcnt({4-n})")
            for d in range(4):
                w = RD + 4 * n + d
                ac = ACC + (n >> 1) * 8 + 2 * d
                a(f"v_lshlrev_b32 v{vT+2}, 16, v{w}")
                a(f"v_and_b32 v{vT+3}, s71, v{w}")
                a(f"v_add_f32 v{ac}, v{ac}, v{vT+2}")
                a(f"v_add_f32 v{ac+1}, v{ac+1}, v{vT+3}")
        a("s_waitcnt lgkmcnt(0)")
        for d in range(4):
            w = RD + 16 + d
            a(f"v_lshlrev_b32 v{vT+2}, 16, v{w}")
            a(f"v_and_b32 v{vT+3}, s71, v{w}")
            a(f"v_add_f32 v{vT+2}, v{vT+2}, v{vT+3}")
            a(f"v_add_f32 v{ACC+16}, v{ACC+16}, v{vT+2}")

    def piece(j):
        base = PS[j % 8]
        for n in range(4):
            if j < 14:
                dma(('p', j), vWd, SRD_A, (64 * j + 8 * n) * 896, sMP, base + n * 1024)
            else:
                dma(('p', j), vCo if n & 1 else vCe, SRD_C, 8 * n * 896 + (j - 14) * 128, sMP, base + n * 1024)

    LR, LI = K + 8, K + 9
    W0R, W0I, W1R, W1I = K + 10, K + 11, K + 12, K + 13
    MSK0, MSK1 = 66, 68
    for s in range(7):
        vm.wait(('st', s))
        a("s_barrier")
        if s == 0: ts(2)
        if 1 <= s <= 4: issue(s + 2)
        if s == 4:
            srd(a, SRD_A, P_WD, 1792 * 896)
            a(f"s_cmp_ge_u32 s{S_W4}, 2")
            srd_sel(a, SRD_C, P_CIM, P_CRE, 448 * 896)
            a(f"v_mov_b32 v{K+20}, 0")
            vm.issue('init', f"global_load_dword v{K+21}, v{K+20}, s[{P_DBG}:{P_DBG+1}] sc1")
        if s == 5:
            vm.wait('init')
            def cond():
                a(f"v_readfirstlane_b32 s11, v{K+21}")
                a("s_cmp_ge_u32 s11, 32")
            spin_check(a, "L_init", [f"global_load_dword v{K+21}, v{K+20}, s[{P_DBG}:{P_DBG+1}] sc1"], cond)
            a(f"s_lshl_b32 s11, s{S_MT}, 8")
            a(f"s_lshl_b32 s12, s{S_W4}, 6")
            a("s_add_u32 s11, s11, s12")
            a(f"v_add_lshl_u32 v{K+20}, v0, s11, 3")
            a(f"s_mov_b32 s11, {WS_STATS:#x}")
            vm.issue('stats', f"buffer_load_dwordx2 v[{K+22}:{K+23}], v{K+20}, s[{SRD_WS}:{SRD_WS+3}], s11 offen sc1")
            for j in range(3): piece(j)
        if s == 6:
            for j in range(3, 6): piece(j)
            vm.wait('stats')
            a(f"s_lshl_b32 s11, s{S_W4}, 9")
            a(f"s_add_u32 s11, s11, {STATS_L}")
            a(f"v_lshl_add_u32 v{K+20}, v0, 3, s11")
            a(f"ds_write_b64 v{K+20}, v[{K+22}:{K+23}]")
        colsum(s)
        if s == 1:
            ssm_const_calc(a, K, LR, LI)
            for _ in range(4): csq(a, LR, LI, LR, LI, K)
            csq(a, K + 14, K + 15, LR, LI, K)
            for _ in range(3): csq(a, K + 14, K + 15, K + 14, K + 15, K)
        if s == 2:
            a(f"v_lshrrev_b32 v{K+16}, 4, v0")
            a(f"s_sub_u32 s11, s{S_MT}, 1")
            a(f"v_sub_u32 v{K+16}, s11, v{K+16}")
            a(f"v_add_u32 v{K+17}, -4, v{K+16}")
            a(f"v_mov_b32 v{W0R}, 1.0"); a(f"v_mov_b32 v{W0I}, 0")
            a(f"v_mov_b32 v{W1R}, 1.0"); a(f"v_mov_b32 v{W1I}, 0")
            for b in range(3):
                for (wr, wi, e) in ((W0R, W0I, K + 16), (W1R, W1I, K + 17)):
                    cmul(a, K + 1, K + 2, wr, wi, K + 14, K + 15)
                    a(f"v_and_b32 v{K}, {1 << b}, v{e}")
                    a(f"v_cmp_ne_u32 vcc, 0, v{K}")
                    a(f"v_cndmask_b32 v{wr}, v{wr}, v{K+1}, vcc")
                    a(f"v_cndmask_b32 v{wi}, v{wi}, v{K+2}, vcc")
                if b < 2: csq(a, K + 14, K + 15, K + 14, K + 15, K)
    for k in range(8):
        a(f"v_permlane32_swap_b32 v{ACC+k}, v{ACC+8+k}")
    for k in range(8):
        a(f"v_add_f32 v{ACC+k}, v{ACC+k}, v{ACC+8+k}")
    for k in range(8):
        a(f"v_add_f32_dpp v{ACC+k}, v{ACC+k}, v{ACC+k} row_ror:8 row_mask:0xf bank_mask:0xf")
    b = ACC + 16
    a(f"v_add_f32_dpp v{b}, v{b}, v{b} quad_perm:[1,0,3,2] row_mask:0xf bank_mask:0xf")
    a(f"v_add_f32_dpp v{b}, v{b}, v{b} quad_perm:[2,3,0,1] row_mask:0xf bank_mask:0xf")
    a(f"v_add_f32_dpp v{b}, v{b}, v{b} row_half_mirror row_mask:0xf bank_mask:0xf")
    a(f"v_bfe_u32 v{vT}, v0, 4, 1")
    a(f"v_lshlrev_b32 v{vT+1}, 2, v{vT}")
    a(f"v_xor_b32 v{vT+1}, v{vC}, v{vT+1}")
    a(f"v_lshlrev_b32 v{vT+1}, 5, v{vT+1}")
    a(f"v_lshl_add_u32 v{vT+1}, v{vT}, 9, v{vT+1}")
    a(f"v_lshrrev_b32 v{vT+2}, 5, v0")
    a(f"v_lshl_add_u32 v{vT+1}, v{vT+2}, 8, v{vT+1}")
    a(f"s_add_u32 s11, s{sMB}, {CP_L}")
    a(f"v_add_u32 v{vT+1}, s11, v{vT+1}")
    a(f"ds_write_b128 v{vT+1}, v[{ACC}:{ACC+3}]")
    a(f"ds_write_b128 v{vT+1}, v[{ACC+4}:{ACC+7}] offset:16")
    a(f"s_lshl_b32 s11, s{S_W4}, 5")
    a(f"s_add_u32 s11, s11, {C_L + 512}")
    a(f"v_lshl_add_u32 v{vT+2}, v{vA}, 2, s11")
    a(f"ds_write_b32 v{vT+2}, v{b}")
    a("s_waitcnt lgkmcnt(0)")
    a("s_barrier")
    ts(3)
    a(f"s_and_b32 s12, s{S_W4}, 1")
    a("s_lshl_b32 s12, s12, 8")
    a(f"v_lshl_add_u32 v{vT}, v0, 2, s12")
    a(f"v_add_u32 v{vT+1}, {CP_L}, v{vT}")
    for p in range(8): a(f"ds_read_b32 v{RD+p}, v{vT+1} offset:{512*p}")
    a(f"v_add_u32 v{vT}, {C_L}, v{vT}")
    a("s_waitcnt lgkmcnt(0)")
    for p in range(4): a(f"v_add_f32 v{RD+p}, v{RD+p}, v{RD+4+p}")
    a(f"v_add_f32 v{RD}, v{RD}, v{RD+2}")
    a(f"v_add_f32 v{RD+1}, v{RD+1}, v{RD+3}")
    a(f"v_add_f32 v{RD}, v{RD}, v{RD+1}")
    a(f"ds_write_b32 v{vT}, v{RD}")
    E = 96
    a(f"v_and_b32 v{vT+2}, 15, v0")
    a(f"v_lshlrev_b32 v{vT+2}, 3, v{vT+2}")
    a(f"v_add_u32 v{vT+3}, {AGG_L}, v{vT+2}")
    a("s_waitcnt lgkmcnt(0)")
    a("s_barrier")
    ts(4)
    a(f"s_cmp_lg_u32 s{S_W4}, 0")
    a("s_cbranch_scc1 L_l_nocomb")
    for i in range(16): a(f"ds_read_b64 v[{E+2*i}:{E+2*i+1}], v{vT+3} offset:{128*i}")
    a(f"v_lshrrev_b32 v{vT+4}, 4, v0")
    a(f"v_mul_u32_u24 v{vT+4}, 3584, v{vT+4}")
    a(f"s_lshl_b32 s11, s{S_NS}, 7")
    a(f"v_add3_u32 v{vT+4}, v{vT+4}, v{vT+2}, s11")
    a(f"s_mul_i32 s12, s{S_MT}, 3584")
    a("s_add_u32 s12, s12, s11")
    a(f"s_add_u32 s12, s12, {WS_AGG:#x}")
    a(f"s_mov_b32 s13, {WS_AGG:#x}")
    a(f"s_mov_b32 s14, {WS_AGG + 4*3584:#x}")
    SR, SI, T1, T2 = K + 24, K + 25, K + 26, K + 27
    def step(i, sr, si, dr, di):
        a(f"v_fma_f32 v{T1}, -v{LI}, v{si}, v{E+2*i}")
        a(f"v_fma_f32 v{T2}, v{LI}, v{sr}, v{E+2*i+1}")
        a(f"v_fma_f32 v{dr}, v{LR}, v{sr}, v{T1}")
        a(f"v_fma_f32 v{di}, v{LR}, v{si}, v{T2}")
    a("s_waitcnt lgkmcnt(14)")
    step(1, E, E + 1, SR, SI)
    for i in range(2, 16):
        if i in (2, 4, 8): a(f"s_waitcnt lgkmcnt({ {2:12, 4:8, 8:0}[i] })")
        step(i, SR, SI, SR, SI)
    a(f"v_cmp_eq_u32 vcc, -1, v{SR}")
    a(f"v_mov_b32 v{T1}, 0x7fc00000")
    a(f"v_cndmask_b32 v{SR}, v{SR}, v{T1}, vcc")
    a("s_mov_b64 exec, 0xffff")
    a(f"buffer_store_dwordx2 v[{SR}:{SI}], v{vT+2}, s[{SRD_WS}:{SRD_WS+3}], s12 offen sc1")
    a("s_mov_b64 exec, -1")
    ts(5)
    G0, G1 = K + 28, K + 30
    lds = [f"buffer_load_dwordx2 v[{G0}:{G0+1}], v{vT+4}, s[{SRD_WS}:{SRD_WS+3}], s13 offen sc1",
           f"buffer_load_dwordx2 v[{G1}:{G1+1}], v{vT+4}, s[{SRD_WS}:{SRD_WS+3}], s14 offen sc1"]
    for t in lds: a(t)
    a(f"v_cmp_le_i32 s[56:57], 0, v{K+16}")
    a(f"v_cmp_le_i32 s[58:59], 0, v{K+17}")
    a("s_waitcnt vmcnt(0)")
    def cond():
        a(f"v_cmp_eq_u32 vcc, -1, v{G0}")
        a("s_and_b64 s[14:15], vcc, s[56:57]") if False else None
        a("s_and_b64 s[48:49], vcc, s[56:57]")
        a(f"v_cmp_eq_u32 vcc, -1, v{G1}")
        a("s_and_b64 s[50:51], vcc, s[58:59]")
        a("s_or_b64 s[48:49], s[48:49], s[50:51]")
        a("s_cmp_eq_u64 s[48:49], 0")
    spin_check(a, "L_agg", lds, cond)
    ts(6)
    cmul(a, SR, SI, G0, G0 + 1, W0R, W0I)
    cmul(a, T1, T2, G1, G1 + 1, W1R, W1I)
    a(f"v_cndmask_b32 v{SR}, 0, v{SR}, s[56:57]")
    a(f"v_cndmask_b32 v{SI}, 0, v{SI}, s[56:57]")
    a(f"v_cndmask_b32 v{T1}, 0, v{T1}, s[58:59]")
    a(f"v_cndmask_b32 v{T2}, 0, v{T2}, s[58:59]")
    a(f"v_add_f32 v{SR}, v{SR}, v{T1}")
    a(f"v_add_f32 v{SI}, v{SI}, v{T2}")
    for sw in ("v_permlane32_swap_b32", "v_permlane16_swap_b32"):
        a(f"v_mov_b32 v{T1}, v{SR}")
        a(f"v_mov_b32 v{T2}, v{SI}")
        a(f"{sw} v{SR}, v{T1}")
        a(f"{sw} v{SI}, v{T2}")
        a(f"v_add_f32 v{SR}, v{SR}, v{T1}")
        a(f"v_add_f32 v{SI}, v{SI}, v{T2}")
    C0 = 128
    a(f"ds_write_b64 v{vT+3}, v[{SR}:{SI}] offset:{CIN_L - AGG_L}")
    pr, pi = SR, SI
    for i in range(15):
        step(i, pr, pi, C0 + 2 * i, C0 + 2 * i + 1)
        pr, pi = C0 + 2 * i, C0 + 2 * i + 1
        a(f"ds_write_b64 v{vT+3}, v[{pr}:{pi}] offset:{CIN_L - AGG_L + 128*(i+1)}")
    a("s_waitcnt lgkmcnt(0)")
    a.label("L_l_nocomb")
    a("s_barrier")
    ts(7)
    piece(6); piece(7)
    a(f"s_lshl_b32 s12, s{S_M64}, 8")
    a(f"s_add_u32 s12, s12, {WS_FLAG:#x}")
    a(f"v_min_u32 v{vT+5}, 27, v0")
    a(f"v_lshlrev_b32 v{vT+5}, 2, v{vT+5}")
    def poll(name, off):
        ld = f"buffer_load_dword v{vT+6}, v{vT+5}, s[{SRD_WS}:{SRD_WS+3}], s12 offen offset:{off} sc1"
        vm.issue(name, ld)
        vm.wait(name)
        def cond():
            a(f"v_cmp_ne_u32 vcc, 1, v{vT+6}")
            a("s_cmp_eq_u64 vcc, 0")
        spin_check(a, name, [ld], cond)
    g_ssm = ((56 - cfg.pd) // 4) // 2
    for g in range(11):
        if g == 0:
            poll("L_pf", 0)
            ts(8)
        if g == g_ssm:
            poll("L_ps", 128)
            ts(9)
        vm.wait(('p', min(2 * g + 1, 20)))
        a("s_barrier")
        if g >= 1:
            for j in (2 * g + 6, 2 * g + 7):
                if j <= 20: piece(j)
    a("s_barrier")
    ts(10)
    ts.dump(vT, vT + 1)
    a("s_endpgm")

def gen_consumer(a, cfg, ts):
    vm = VM(a)
    XA = [1, 2, 3, 4]; BA = [5, 6, 7, 8]; WA = [9, 10]
    LR, LI, CR, CI = 12, 13, 14, 15
    T = 16
    FS = [40, 68]
    ACC = 96
    def G(ft, q): return ACC + 16 * (2 * ft + q)
    def U(ft, q): return ACC + 64 + 16 * (2 * ft + q)
    def S(q): return ACC + 128 + 16 * q
    a("s_setprio 2")
    vI, vH = T, T + 1
    a(f"v_and_b32 v{vI}, 31, v0")
    a(f"v_lshrrev_b32 v{vH}, 5, v0")
    if cfg.touch:
        a(f"s_lshl_b32 s11, s{S_MT}, 8")
        a(f"s_lshl_b32 s12, s{S_NT}, 5")
        a("s_add_u32 s11, s11, s12")
        a(f"v_add_u32 v{T+2}, s11, v{vI}")
        a(f"v_mul_u32_u24 v{T+2}, 896, v{T+2}")
        a(f"s_and_b32 s11, s{S_SLOT}, 3")
        a("s_lshl_b32 s11, s11, 4")
        a(f"v_and_b32 v{T+3}, 15, v0")
        a(f"v_add_u32 v{T+3}, s11, v{T+3}")
        a(f"v_mul_u32_u24 v{T+3}, 3584, v{T+3}")
        a(f"s_lshl_b32 s11, s{S_NS}, 7")
        a(f"v_add_u32 v{T+3}, s11, v{T+3}")
        a(f"v_cmp_gt_u32 vcc, 32, v0")
        a(f"v_cndmask_b32 v{T+2}, v{T+3}, v{T+2}, vcc")
        a(f"v_mov_b32 v{T+4}, {64*3584}")
        a(f"v_mov_b32 v{T+5}, 128")
        a(f"v_cndmask_b32 v{T+4}, v{T+4}, v{T+5}, vcc")
        a(f"s_add_u32 s11, s{S_W4}, 1")
        a(f"v_mad_u32_u24 v{T+2}, v{T+4}, s11, v{T+2}")
    a("s_waitcnt lgkmcnt(0)")
    if cfg.touch:
        a(f"v_cmp_gt_u32 s[12:13], 48, v0")
        a(f"v_mov_b32 v{T+6}, s{P_WU}"); a(f"v_mov_b32 v{T+7}, s{P_WU+1}")
        a(f"v_mov_b32 v{T+8}, s{P_WG}"); a(f"v_mov_b32 v{T+9}, s{P_WG+1}")
        a(f"v_cndmask_b32 v{T+6}, v{T+6}, v{T+8}, s[12:13]")
        a(f"v_cndmask_b32 v{T+7}, v{T+7}, v{T+9}, s[12:13]")
        a(f"v_mov_b32 v{T+8}, s{P_X}"); a(f"v_mov_b32 v{T+9}, s{P_X+1}")
        a(f"v_cndmask_b32 v{T+6}, v{T+6}, v{T+8}, vcc")
        a(f"v_cndmask_b32 v{T+7}, v{T+7}, v{T+9}, vcc")
        a(f"v_add_co_u32 v{T+6}, vcc, v{T+6}, v{T+2}")
        a(f"v_addc_co_u32 v{T+7}, vcc, 0, v{T+7}, vcc")
        a(f"s_cmp_ge_u32 s{S_W4}, 2")
        a("s_cbranch_scc1 L_c_t1")
        a(f"global_load_dword v{T+10}, v[{T+6}:{T+7}], off")
        a.label("L_c_t1")
    ssm_const_load(a, vm, T + 12)
    srd(a, SRD_WS, P_WS, WS_SIZE)
    a(f"v_bfe_u32 v{T+2}, v0, 1, 3")
    a(f"v_xor_b32 v{T+2}, v{T+2}, v{vH}")
    a(f"v_lshlrev_b32 v{T+2}, 4, v{T+2}")
    a(f"v_lshl_add_u32 v{T+2}, v{vI}, 7, v{T+2}")
    a(f"s_lshl_b32 s11, s{S_W4}, 13")
    for ks in range(4):
        a(f"v_xor_b32 v{T+3}, {32*ks}, v{T+2}")
        a(f"v_add_u32 v{XA[ks]}, s11, v{T+3}")
        a(f"v_add_u32 v{BA[ks]}, {OFF_BB}, v{T+3}")
    a(f"v_bfe_u32 v{T+2}, v0, 2, 2")
    a(f"v_lshl_add_u32 v{T+3}, v{vH}, 3, v{T+2}")
    a(f"v_lshlrev_b32 v{T+3}, 7, v{T+3}")
    a(f"v_lshrrev_b32 v{T+2}, 1, v{T+2}")
    a(f"v_lshl_add_u32 v{T+3}, v{T+2}, 6, v{T+3}")
    a(f"v_bfe_u32 v{T+2}, v0, 4, 1")
    a(f"v_lshl_add_u32 v{T+3}, v{T+2}, 5, v{T+3}")
    a(f"v_and_b32 v{T+2}, 3, v0")
    a(f"v_lshl_add_u32 v{T+3}, v{T+2}, 3, v{T+3}")
    a(f"v_add_u32 v{WA[0]}, {OFF_WG}, v{T+3}")
    a(f"v_xor_b32 v{WA[1]}, 64, v{WA[0]}")
    for k in range(160): a(f"v_mov_b32 v{ACC+k}, 0")
    vm.wait_all()
    if cfg.touch:
        a(f"s_cmp_ge_u32 s{S_W4}, 2")
        a("s_cselect_b32 s11, 0, 4")
        a(f"v_mul_u32_u24 v{T+4}, s11, v{T+4}")
        a(f"v_add_co_u32 v{T+6}, vcc, v{T+6}, v{T+4}")
        a(f"v_addc_co_u32 v{T+7}, vcc, 0, v{T+7}, vcc")
        a(f"global_load_dword v{T+10}, v[{T+6}:{T+7}], off")
    ssm_const_calc(a, T + 12, LR, LI, CR, CI)
    ts(1)

    def reads(fs, ks):
        f = FS[fs]
        L = []
        L.append(f"ds_read_b128 v[{f}:{f+3}], v{XA[ks]}")
        L.append(f"ds_read_b128 v[{f+24}:{f+27}], v{BA[ks]}")
        L.append(f"ds_read_b128 v[{f+4}:{f+7}], v{XA[ks]} offset:4096")
        for gu in range(2):
            for ft in range(2):
                for j in range(2):
                    d = f + 8 + 8 * gu + 4 * ft + 2 * j
                    L.append(f"ds_read_b64_tr_b16 v[{d}:{d+1}], v{WA[ft]} offset:{gu*8192 + ks*2048 + j*512}")
        return L
    def mfmas(fs):
        f = FS[fs]
        X = [f, f + 4]; Bf = f + 24
        L = []
        for q in range(2):
            L.append(f"v_mfma_f32_32x32x16_bf16 v[{S(q)}:{S(q)+15}], v[{X[q]}:{X[q]+3}], v[{Bf}:{Bf+3}], v[{S(q)}:{S(q)+15}]")
        for gu in range(2):
            for ft in range(2):
                w = f + 8 + 8 * gu + 4 * ft
                for q in range(2):
                    d = (G, U)[gu](ft, q)
                    L.append(f"v_mfma_f32_32x32x16_bf16 v[{d}:{d+15}], v[{w}:{w+3}], v[{X[q]}:{X[q]+3}], v[{d}:{d+15}]")
        return L
    a("s_barrier")
    ts(2)
    for t in reads(0, 0): a(t)
    a("s_mov_b32 s72, 0")
    a("s_mov_b32 s74, 0")
    a.label("L_c_loop")
    for ks in range(4):
        fs = ks & 1
        a("s_waitcnt lgkmcnt(0)")
        M = mfmas(fs)
        if ks < 3:
            Rd = reads(1 - fs, ks + 1)
            for m in M:
                a(m)
                for _ in range(2):
                    if Rd: a(Rd.pop(0))
        else:
            Rd = reads(1 - fs, 0)
            a(M[0])
            a("s_add_u32 s74, s74, 1")
            a("s_cmp_eq_u32 s74, 3")
            a("s_mov_b32 s75, 53248")
            a(f"s_cmov_b32 s75, {(-106496) & 0xffffffff:#x}")
            a("s_cselect_b32 s74, 0, s74")
            for v in XA + BA[:1]: a(f"v_add_u32 v{v}, s75, v{v}")
            a(M[1])
            for v in BA[1:] + WA: a(f"v_add_u32 v{v}, s75, v{v}")
            a(M[2])
            a("s_barrier")
            for m in M[3:]:
                for _ in range(2):
                    if Rd: a(Rd.pop(0))
                a(m)
            a("s_add_u32 s72, s72, 1")
            a("s_cmp_lt_u32 s72, 7")
            a("s_cbranch_scc1 L_c_loop")
    ts(3)
    ST = FS[0]
    X, Y = S(0), S(1)
    vRun8 = T + 2
    CBR, CBI = T + 4, T + 5
    MM = T + 6
    HR, HI, T1, T2 = T + 8, T + 9, T + 10, T + 11
    a(f"v_bfe_u32 v{T+3}, v0, 4, 1")
    a(f"v_lshl_add_u32 v{T+3}, v{T+3}, 1, v{vH}")
    a(f"s_lshl_b32 s11, s{S_W4}, 2")
    a(f"v_add_u32 v{T+3}, s11, v{T+3}")
    a(f"v_lshlrev_b32 v{T+3}, 7, v{T+3}")
    a(f"v_add_u32 v{T+12}, {STATS_L}, v{T+3}")
    a(f"v_and_b32 v{T+13}, 15, v0")
    a(f"v_lshl_add_u32 v{vRun8}, v{T+13}, 3, v{T+3}")
    a(f"v_add_u32 v{vRun8}, {AGG_L}, v{vRun8}")
    a(f"v_lshlrev_b32 v{T+13}, 2, v{T+13}")
    a(f"v_add_u32 v{T+13}, {C_L + 512}, v{T+13}")
    a("s_waitcnt lgkmcnt(0)")
    a(f"ds_read_b32 v{CBR}, v{T+13}")
    a(f"ds_read_b32 v{CBI}, v{T+13} offset:64")
    for k in range(8): a(f"ds_read_b128 v[{ST+4*k}:{ST+4*k+3}], v{T+12} offset:{16*k}")
    a(f"v_bfe_u32 v{T+14}, v0, 2, 1")
    a(f"v_lshlrev_b32 v{T+14}, 4, v{T+14}")
    a(f"v_and_b32 v{T+15}, 3, v0")
    a(f"v_add_u32 v{T+14}, v{T+14}, v{T+15}")
    a(f"v_bfe_u32 v{T+15}, v0, 3, 2")
    a(f"v_lshl_add_u32 v{T+14}, v{T+15}, 2, v{T+14}")
    a(f"s_lshl_b32 s11, s{S_W4}, 9")
    a(f"s_add_u32 s11, s11, {STATS_L}")
    a(f"v_lshl_add_u32 v{T+14}, v{T+14}, 3, s11")
    a(f"ds_read_b32 v{MM}, v{T+14}")
    a(f"ds_read_b32 v{MM+1}, v{T+14} offset:256")
    for r in range(16): a(f"v_permlane16_swap_b32 v{X+r}, v{Y+r}")
    a("s_waitcnt lgkmcnt(0)")
    for r in range(16):
        m, rs = ST + 2 * r, ST + 2 * r + 1
        a(f"v_fma_f32 v{X+r}, -v{m}, v{CBR}, v{X+r}")
        a(f"v_fma_f32 v{Y+r}, -v{m}, v{CBI}, v{Y+r}")
        a(f"v_mul_f32 v{X+r}, v{X+r}, v{rs}")
        a(f"v_mul_f32 v{Y+r}, v{Y+r}, v{rs}")
        if r >= 1:
            pr, pi = (X, Y) if r == 1 else (HR, HI)
            a(f"v_fma_f32 v{T1}, -v{LI}, v{pi}, v{X+r}")
            a(f"v_fma_f32 v{T2}, v{LI}, v{pr}, v{Y+r}")
            a(f"v_fma_f32 v{HR}, v{LR}, v{pr}, v{T1}")
            a(f"v_fma_f32 v{HI}, v{LR}, v{pi}, v{T2}")
    a(f"ds_write_b64 v{vRun8}, v[{HR}:{HI}]")
    vL16 = T + 12
    a(f"v_lshlrev_b32 v{vL16}, 4, v0")
    a(f"s_lshl_b32 s11, s{S_MT}, 3")
    a(f"s_lshl_b32 s12, s{S_W4}, 1")
    a("s_add_u32 s11, s11, s12")
    a(f"s_mul_i32 s72, s11, {RT_BYTES}")
    a(f"s_cmp_ge_u32 s{S_NS}, 14")
    a(f"s_cselect_b32 s11, {HALF_BYTES - 56*1024}, 0")
    a(f"s_lshl_b32 s12, s{S_NS}, 12")
    a("s_add_u32 s11, s11, s12")
    a("s_add_u32 s74, s72, s11")
    a(f"s_add_u32 s75, s74, {RT_BYTES}")
    a(f"v_lshlrev_b32 v{T+13}, 4, v{vH}")
    a(f"v_add_u32 v{T+13}, {C_L}, v{T+13}")
    a("s_waitcnt lgkmcnt(0)")
    a("s_barrier")
    ts(4)
    CG = 40
    for ft in range(2):
        for k in range(4):
            a(f"ds_read_b128 v[{CG+4*k}:{CG+4*k+3}], v{T+13} offset:{128*ft + 32*k}")
        for k in range(4):
            a(f"ds_read_b128 v[{CG+16+4*k}:{CG+16+4*k+3}], v{T+13} offset:{256 + 128*ft + 32*k}")
        a("s_waitcnt lgkmcnt(0)")
        for q in range(2):
            g, u = G(ft, q), U(ft, q)
            sel = f"op_sel:[{q},0,0] op_sel_hi:[{q},1,1] neg_lo:[1,0,0] neg_hi:[1,0,0]"
            for k in range(8):
                a(f"v_pk_fma_f32 v[{g+2*k}:{g+2*k+1}], v[{MM}:{MM+1}], v[{CG+2*k}:{CG+2*k+1}], v[{g+2*k}:{g+2*k+1}] {sel}")
                a(f"v_pk_fma_f32 v[{u+2*k}:{u+2*k+1}], v[{MM}:{MM+1}], v[{CG+16+2*k}:{CG+16+2*k+1}], v[{u+2*k}:{u+2*k+1}] {sel}")
                a(f"v_max_f32 v{g+2*k}, 0, v{g+2*k}")
                a(f"v_max_f32 v{g+2*k+1}, 0, v{g+2*k+1}")
            for k in range(8):
                a(f"v_pk_mul_f32 v[{u+2*k}:{u+2*k+1}], v[{u+2*k}:{u+2*k+1}], v[{g+2*k}:{g+2*k+1}]")
            for k in range(8):
                a(f"v_cvt_pk_bf16_f32 v{g+k}, v{u+2*k}, v{u+2*k+1}")
            for p in range(2):
                vm.issue('h', f"buffer_store_dwordx4 v[{g+4*p}:{g+4*p+3}], v{vL16}, s[{SRD_WS}:{SRD_WS+3}], s{74+q} offen offset:{(2*ft+p)*1024} sc1")
    ts(5)
    for r in range(16):
        a(f"v_mul_f32 v{T1}, v{CI}, v{Y+r}")
        a(f"v_mul_f32 v{T2}, v{CI}, v{X+r}")
        a(f"v_fma_f32 v{X+r}, v{CR}, v{X+r}, -v{T1}")
        a(f"v_fma_f32 v{Y+r}, v{CR}, v{Y+r}, v{T2}")
    vF, vOne = T + 14, T + 15
    a(f"s_lshl_b32 s11, s{S_MT}, 2")
    a(f"s_add_u32 s11, s11, s{S_W4}")
    a("s_lshl_b32 s11, s11, 8")
    a(f"s_lshl_b32 s12, s{S_NS}, 2")
    a("s_add_u32 s11, s11, s12")
    a(f"s_add_u32 s11, s11, {WS_FLAG:#x}")
    a(f"v_mov_b32 v{vF}, s11")
    a(f"v_mov_b32 v{vOne}, 1")
    vm.wait_all()
    a("s_mov_b64 exec, 1")
    vm.issue('f', f"buffer_store_dword v{vOne}, v{vF}, s[{SRD_WS}:{SRD_WS+3}], 0 offen sc1")
    a("s_mov_b64 exec, -1")
    ts(6)
    XV, STT, DS = 96, 112, 144
    vO = T + 16
    srd(a, SRD_X, P_X, 2048 * 896)
    srd(a, SRD_E, P_OUT, 2048 * 1792)
    a(f"s_and_b32 s12, s{S_W4}, 1")
    a(f"s_lshr_b32 s13, s{S_W4}, 1")
    a(f"s_lshl_b32 s11, s{S_M64}, 1")
    a("s_add_u32 s14, s11, s12")
    a("s_lshl_b32 s11, s14, 5")
    a(f"v_lshl_add_u32 v{T+18}, v{vH}, 4, s11")
    a(f"s_lshl_b32 s11, s{S_NT}, 6")
    a("s_lshl_b32 s15, s13, 5")
    a("s_add_u32 s11, s11, s15")
    a(f"v_add_u32 v{T+19}, s11, v{vI}")
    a(f"v_mul_u32_u24 v{T+17}, 448, v{T+18}")
    a(f"v_add_u32 v{T+17}, v{T+17}, v{T+19}")
    a(f"v_lshlrev_b32 v{vO}, 2, v{T+17}")
    a(f"v_lshlrev_b32 v{T+17}, 1, v{T+17}")
    a(f"v_lshlrev_b32 v{T+18}, 3, v{T+18}")
    a(f"v_lshlrev_b32 v{T+19}, 1, v{T+19}")
    a(f"s_mul_i32 s52, s14, {RT_BYTES}")
    a(f"s_mul_i32 s53, s13, {HALF_BYTES}")
    a("s_add_u32 s52, s52, s53")
    a("s_lshl_b32 s53, s13, 13")
    for r in range(16):
        if r % 4 == 0: a(f"s_mov_b32 s11, {r*896}")
        vm.issue('e', f"buffer_load_ushort v{XV+r}, v{T+17}, s[{SRD_X}:{SRD_X+3}], s11 offen offset:{(r%4)*896}")
    a(f"s_mov_b32 s11, {WS_STATS:#x}")
    for k in range(8):
        vm.issue('e', f"buffer_load_dwordx4 v[{STT+4*k}:{STT+4*k+3}], v{T+18}, s[{SRD_WS}:{SRD_WS+3}], s11 offen offset:{16*k} sc1")
    vm.issue('e', f"global_load_ushort v{DS}, v{T+19}, s[{P_DSK}:{P_DSK+1}]")
    vTW, vTR = T + 20, T + 21
    a(f"s_mul_i32 s11, s{S_W4}, 4608")
    a(f"s_add_u32 s11, s11, {HT_L}")
    a(f"v_and_b32 v{T+22}, 15, v0")
    a(f"v_mul_u32_u24 v{vTW}, 144, v{T+22}")
    a(f"v_bfe_u32 v{T+22}, v0, 4, 1")
    a(f"v_lshl_add_u32 v{T+22}, v{T+22}, 1, v{vH}")
    a(f"v_lshl_add_u32 v{vTW}, v{T+22}, 5, v{vTW}")
    a(f"v_add_u32 v{vTW}, s11, v{vTW}")
    a(f"v_bfe_u32 v{T+22}, v0, 2, 2")
    a(f"v_lshl_add_u32 v{T+22}, v{vH}, 3, v{T+22}")
    a(f"v_mul_u32_u24 v{vTR}, 144, v{T+22}")
    a(f"v_and_b32 v{T+22}, 1, v0")
    a(f"v_lshl_add_u32 v{vTR}, v{T+22}, 5, v{vTR}")
    a(f"v_bfe_u32 v{T+22}, v0, 4, 1")
    a(f"v_lshl_add_u32 v{vTR}, v{T+22}, 4, v{vTR}")
    a(f"v_bfe_u32 v{T+22}, v0, 1, 1")
    a(f"v_lshl_add_u32 v{vTR}, v{T+22}, 3, v{vTR}")
    a(f"v_add_u32 v{vTR}, s11, v{vTR}")
    a(f"s_lshl_b32 s11, s{S_NS}, 10")
    a("s_add_u32 s74, s72, s11")
    a(f"s_add_u32 s74, s74, {56*1024}")
    a("s_barrier")
    ts(7)
    a(f"ds_read_b64 v[{T1}:{T2}], v{vRun8} offset:{CIN_L - AGG_L}")
    a("s_waitcnt lgkmcnt(0)")
    cmul(a, HR, HI, T1, T2, CR, CI)
    pr, pi = HR, HI
    for r in range(16):
        a(f"v_fma_f32 v{X+r}, -v{LI}, v{pi}, v{X+r}")
        a(f"v_fma_f32 v{Y+r}, v{LI}, v{pr}, v{Y+r}")
        a(f"v_fmac_f32 v{X+r}, v{LR}, v{pr}")
        a(f"v_fmac_f32 v{Y+r}, v{LR}, v{pi}")
        pr, pi = X + r, Y + r
    PK = 40
    for k in range(8):
        a(f"v_cvt_pk_bf16_f32 v{PK+k}, v{X+2*k}, v{X+2*k+1}")
    for k in range(8):
        a(f"v_cvt_pk_bf16_f32 v{PK+8+k}, -v{Y+2*k}, -v{Y+2*k+1}")
    a(f"ds_write_b128 v{vTW}, v[{PK}:{PK+3}]")
    a(f"ds_write_b128 v{vTW}, v[{PK+4}:{PK+7}] offset:16")
    a(f"ds_write_b128 v{vTW}, v[{PK+8}:{PK+11}] offset:{16*144}")
    a(f"ds_write_b128 v{vTW}, v[{PK+12}:{PK+15}] offset:{16*144+16}")
    a("s_waitcnt lgkmcnt(0)")
    HF = 56
    for q in range(2):
        for part in range(2):
            for j in range(2):
                d = HF + 8 * q + 4 * part + 2 * j
                a(f"ds_read_b64_tr_b16 v[{d}:{d+1}], v{vTR} offset:{(part*16 + 4*j)*144 + 64*q}")
    a("s_waitcnt lgkmcnt(0)")
    for q in range(2):
        for part in range(2):
            d = HF + 8 * q + 4 * part
            a(f"s_add_u32 s11, s74, {q*RT_BYTES + part*HALF_BYTES}")
            vm.issue('hs', f"buffer_store_dwordx4 v[{d}:{d+3}], v{vL16}, s[{SRD_WS}:{SRD_WS+3}], s11 offen sc1")
    TT, RS2 = 160, 176
    vm.wait('e')
    a(f"v_lshlrev_b32 v{DS}, 16, v{DS}")
    for r in range(16): a(f"v_lshlrev_b32 v{XV+r}, 16, v{XV+r}")
    a("s_mov_b32 s15, 0xffff0000")
    def rnd_pair(r0, r1):
        a(f"v_cvt_pk_bf16_f32 v{r1}, v{r0}, v{r1}")
        a(f"v_lshlrev_b32 v{r0}, 16, v{r1}")
        a(f"v_and_b32 v{r1}, s15, v{r1}")
    for r in range(16): a(f"v_sub_f32 v{TT+r}, v{XV+r}, v{STT+2*r}")
    for k in range(8): rnd_pair(TT + 2 * k, TT + 2 * k + 1)
    for r in range(16): a(f"v_mul_f32 v{TT+r}, v{TT+r}, v{STT+2*r+1}")
    for k in range(8): rnd_pair(TT + 2 * k, TT + 2 * k + 1)
    for r in range(16): a(f"v_mul_f32 v{TT+r}, v{TT+r}, v{DS}")
    for k in range(8): rnd_pair(TT + 2 * k, TT + 2 * k + 1)
    for r in range(16): a(f"v_mul_f32 v{RS2+r}, v{STT+2*r+1}, v{STT+2*r+1}")
    vm.wait_all()
    a("s_mov_b64 exec, 1")
    vm.issue('f', f"buffer_store_dword v{vOne}, v{vF}, s[{SRD_WS}:{SRD_WS+3}], 0 offen offset:128 sc1")
    a("s_mov_b64 exec, -1")
    ts(8)
    AF = [192, 208]; AS = [224, 240]
    BF = [40, 48]
    PD = cfg.pd
    AR = list(range(56, 96, 4)) + list(range(112, 160, 4))
    assert PD <= len(AR)
    AR = AR[:PD]
    WB = [1, 2]; CB = [3, 4, 5, 6]
    WC = [7, 8]; CC = [7, 8, 9, 10]
    a(f"v_bfe_u32 v{T+2}, v0, 2, 2")
    a(f"v_lshl_add_u32 v{T+3}, v{vH}, 2, v{T+2}")
    a(f"v_lshlrev_b32 v{T+3}, 7, v{T+3}")
    a(f"v_lshrrev_b32 v{T+2}, 1, v{T+2}")
    a(f"v_lshl_add_u32 v{T+3}, v{T+2}, 6, v{T+3}")
    a(f"v_bfe_u32 v{T+2}, v0, 4, 1")
    a(f"v_lshl_add_u32 v{T+3}, v{T+2}, 5, v{T+3}")
    a(f"v_and_b32 v{T+2}, 3, v0")
    a(f"v_lshl_add_u32 v{T+3}, v{T+2}, 3, v{T+3}")
    a(f"v_add_u32 v{WB[0]}, s53, v{T+3}")
    a(f"v_xor_b32 v{WB[1]}, 64, v{WB[0]}")
    a(f"v_bfe_u32 v{T+2}, v0, 1, 3")
    a(f"v_xor_b32 v{T+2}, v{T+2}, v{vH}")
    a(f"v_lshlrev_b32 v{T+2}, 4, v{T+2}")
    a(f"v_lshl_add_u32 v{T+2}, v{vI}, 7, v{T+2}")
    a(f"v_add_u32 v{T+2}, s53, v{T+2}")
    for ks in range(4): a(f"v_xor_b32 v{CB[ks]}, {32*ks}, v{T+2}")
    def aload(kk):
        if kk % 4 == 0: a(f"s_add_u32 s54, s52, {kk*1024}")
        d = AR[kk % PD]
        vm.issue(('a', kk), f"buffer_load_dwordx4 v[{d}:{d+3}], v{vL16}, s[{SRD_WS}:{SRD_WS+3}], s54 offen offset:{(kk%4)*1024} sc1")
    def breads(kk):
        j, ks = kk // 4, kk % 4
        f = BF[kk & 1]
        L = []
        if ks == 0:
            if j < 14:
                for ct in range(2): L.append(f"v_add_u32 v{WC[ct]}, {PS[j%8]}, v{WB[ct]}")
            else:
                for k2 in range(4): L.append(f"v_add_u32 v{CC[k2]}, {PS[j%8]}, v{CB[k2]}")
        for ct in range(2):
            if j < 14:
                for jj in range(2):
                    d = f + 4 * ct + 2 * jj
                    L.append(f"ds_read_b64_tr_b16 v[{d}:{d+1}], v{WC[ct]} offset:{ks*2048 + jj*1024}")
            else:
                d = f + 4 * ct
                L.append(f"ds_read_b128 v[{d}:{d+3}], v{CC[ks]} offset:{ct*4096}")
        return L
    a("s_barrier")
    ts(9)
    for kk in range(PD): aload(kk)
    for t in breads(0): a(t)
    for kk in range(84):
        vm.wait(('a', kk), "lgkmcnt(0)")
        f = BF[kk & 1]; d = AR[kk % PD]
        acc = AF if kk < 56 else AS
        first = kk in (0, 56)
        def mf(ct):
            c = "0" if first else f"v[{acc[ct]}:{acc[ct]+15}]"
            a(f"v_mfma_f32_32x32x16_bf16 v[{acc[ct]}:{acc[ct]+15}], v[{d}:{d+3}], v[{f+4*ct}:{f+4*ct+3}], {c}")
        mf(0)
        if kk + 1 < 84:
            if (kk + 1) % 8 == 0: a("s_barrier")
            for t in breads(kk + 1): a(t)
        mf(1)
        if kk + PD < 84: aload(kk + PD)
    ts(10)
    a(f"s_lshl_b32 s11, s{S_W4}, 13")
    a(f"s_xor_b32 s12, s11, {2 << 13}")
    a(f"v_add_u32 v{T+2}, s11, v{vL16}")
    a(f"v_add_u32 v{T+3}, s12, v{vL16}")
    a(f"s_cmp_ge_u32 s{S_W4}, 2")
    a("s_cbranch_scc1 L_c_kh1")
    a("s_nop 7")
    def send(ct):
        for k in range(4): a(f"ds_write_b128 v{T+2}, v[{AF[ct]+4*k}:{AF[ct]+4*k+3}] offset:{XCH_L + 1024*k}")
        for k in range(4): a(f"ds_write_b128 v{T+2}, v[{AS[ct]+4*k}:{AS[ct]+4*k+3}] offset:{XCH_L + 4096 + 1024*k}")
    send(1)
    a("s_branch L_c_x")
    a.label("L_c_kh1")
    a("s_nop 15")
    send(0)
    for r in range(16): a(f"v_mov_b32 v{AF[0]+r}, v{AF[1]+r}")
    for r in range(16): a(f"v_mov_b32 v{AS[0]+r}, v{AS[1]+r}")
    a.label("L_c_x")
    a("s_waitcnt lgkmcnt(0)")
    a("s_barrier")
    RX = 40
    for k in range(8): a(f"ds_read_b128 v[{RX+4*k}:{RX+4*k+3}], v{T+3} offset:{XCH_L + 1024*k}")
    a(f"s_mov_b32 s13, {LOG2E ^ 0x80000000:#x}")
    a("s_waitcnt lgkmcnt(4)")
    O, SS, EX = AF[0], AS[0], AF[1]
    for r in range(16): a(f"v_add_f32 v{O+r}, v{O+r}, v{RX+r}")
    for r in range(16): a(f"v_mul_f32 v{O+r}, v{O+r}, v{RS2+r}")
    for k in range(8): rnd_pair(O + 2 * k, O + 2 * k + 1)
    for r in range(16): a(f"v_mul_f32 v{EX+r}, s13, v{O+r}")
    for r in range(16): a(f"v_exp_f32 v{EX+r}, v{EX+r}")
    for r in range(16): a(f"v_add_f32 v{EX+r}, 1.0, v{EX+r}")
    for r in range(16): a(f"v_rcp_f32 v{EX+r}, v{EX+r}")
    a("s_waitcnt lgkmcnt(0)")
    for r in range(16): a(f"v_add_f32 v{SS+r}, v{SS+r}, v{RX+16+r}")
    for r in range(16): a(f"v_mul_f32 v{O+r}, v{O+r}, v{EX+r}")
    for k in range(8): rnd_pair(O + 2 * k, O + 2 * k + 1)
    for r in range(16): a(f"v_add_f32 v{SS+r}, v{SS+r}, v{TT+r}")
    for r in range(16):
        a(f"v_fma_f32 v{O+r}, v{SS+r}, v{O+r}, v{XV+r}")
        if r % 2 == 0: a(f"s_mov_b32 s11, {r*1792}")
        a(f"buffer_store_dword v{O+r}, v{vO}, s[{SRD_E}:{SRD_E+3}], s11 offen offset:{(r%2)*1792}")
    ts(11)
    if cfg.ts:
        a("s_waitcnt vmcnt(0)")
        ts(12)
    ts.dump(T, T + 1)
    a("s_endpgm")

HEADER = """; Fused S5-SSM + ReGLU block, one launch: 224 main workgroups (4 MFMA waves + 4 loader waves) + 32 helper workgroups.
; @launch grid=(256,1,1) block=(512,1,1) lds=163840
.amdgcn_target "amdgcn-amd-amdhsa--gfx950"
.text
.globl {k}
.p2align 8
.type {k},@function
{k}:
"""
FOOTER = """.section .rodata,"a"
.p2align 6
.amdhsa_kernel {k}
  .amdhsa_next_free_vgpr 256
  .amdhsa_next_free_sgpr 102
  .amdhsa_accum_offset 256
  .amdhsa_group_segment_fixed_size 0
  .amdhsa_kernarg_size 128
  .amdhsa_user_sgpr_count 2
  .amdhsa_user_sgpr_kernarg_segment_ptr 1
  .amdhsa_system_sgpr_workgroup_id_x 1
  .amdhsa_float_denorm_mode_32 3
.end_amdhsa_kernel
"""

def generate(cfg):
    a = Asm()
    ts = TS(a, cfg)
    gen_entry(a, cfg, ts)
    gen_consumer(a, cfg, ts)
    gen_loader(a, cfg, ts)
    gen_helper(a, cfg, ts)
    a.label("L_exit")
    a("s_endpgm")
    return HEADER.format(k=KNAME) + a.text() + FOOTER.format(k=KNAME)

if __name__ == "__main__":
    cfg = Cfg()
    out = sys.argv[1]
    for kv in sys.argv[2:]:
        k, v = kv.split("=")
        setattr(cfg, k, int(v))
    open(out, "w").write(generate(cfg))
```

```python
import sys, os
sys.path.insert(0, os.path.dirname(os.path.abspath(__file__)))
from asmlib import Asm, VM

KNAME = "recurrent_scan__ssm_conv_s5__glu_gated_reglu__prompt_kernel"

R = [0, 53248, 106496]
MISC = 159744
OFF_WG, OFF_WU, OFF_BB = 32768, 40960, 49152
CP_L = R[1] + 49152
AGG_L = R[2] + 49152
CIN_L = R[2] + 51200
HT_L = R[0] + 32768
STATS_L = MISC
C_L = MISC + 2048
PS = [R[1], R[1] + 16384, R[1] + 32768, R[2], R[2] + 16384, R[2] + 32768, R[0], R[0] + 16384]
XCH_L = R[0]

RT_BYTES = 172032
HALF_BYTES = 86016
WS_STATS = 0xB00000
WS_AGG = WS_STATS + 0x4000
WS_FLAG = WS_AGG + 0x8000
WS_TS = 0xC00000
WS_SIZE = 0x1000000
SPIN_MAX = 1 << 20

S_WAVE, S_XCD, S_SLOT, S_MT, S_NS, S_M64, S_NT, S_W4 = 3, 4, 5, 6, 7, 8, 9, 10
P_X, P_LRE, P_LIM, P_BRE, P_BIM, P_CRE, P_CIM, P_LDT, P_DSK, P_BX, P_WG, P_WU, P_WD, P_OUT, P_DBG, P_WS = [16 + 2 * i for i in range(16)]
SRD_X, SRD_A, SRD_B, SRD_C, SRD_WS, SRD_E = 48, 52, 56, 60, 64, 68
TS0 = 76

LOG2E = 0x3fb8aa3b
LOG2E_LO = 0x32a57060
LN2 = 0x3f317218
INV2PI = 0x3e22f983

class Cfg:
    ts = False
    pd = 16
    touch = True

def srd(a, d, ptr, nbytes):
    a(f"s_mov_b32 s{d}, s{ptr}")
    a(f"s_and_b32 s{d+1}, s{ptr+1}, 0xffff")
    a(f"s_mov_b32 s{d+2}, {nbytes:#x}")
    a(f"s_mov_b32 s{d+3}, 0x20000")

def srd_sel(a, d, ptr1, ptr0, nbytes):
    a(f"s_cselect_b32 s{d}, s{ptr1}, s{ptr0}")
    a(f"s_cselect_b32 s{d+1}, s{ptr1+1}, s{ptr0+1}")
    a(f"s_and_b32 s{d+1}, s{d+1}, 0xffff")
    a(f"s_mov_b32 s{d+2}, {nbytes:#x}")
    a(f"s_mov_b32 s{d+3}, 0x20000")

class TS:
    def __init__(self, a, cfg):
        self.a, self.on, self.n = a, cfg.ts, 0
    def __call__(self, i):
        if self.on:
            assert i < 13
            self.a(f"{'s_memrealtime' if self.on != 2 else 's_memtime'} s[{TS0+2*i}:{TS0+2*i+1}]")
    def init(self):
        if self.on:
            for i in range(1, 13): self.a(f"s_mov_b32 s{TS0+2*i}, 0")
    def dump(self, vt, vt2):
        if not self.on: return
        a = self.a
        if self.on == 3:
            a("s_waitcnt vmcnt(0) lgkmcnt(0)")
            lab = a.newlabel("L_nod")
            a(f"s_cmp_eq_u32 s{TS0+24}, 0")
            a(f"s_cbranch_scc1 {lab}")
            a(f"s_cmp_lg_u32 s{S_WAVE}, 0")
            a(f"s_cbranch_scc1 {lab}")
            a("s_mov_b64 exec, 1")
            a(f"v_mov_b32 v{vt2}, 0")
            a(f"s_not_b32 s11, s{TS0}")
            a(f"v_mov_b32 v{vt}, s11")
            a(f"global_atomic_umax v{vt2}, v{vt}, s[{P_DBG}:{P_DBG+1}] offset:4 sc1")
            for n, i in enumerate([0, 1, 2, 3, 4, 5, 6, 7, 8, 9, 10, 11, 12]):
                a("s_waitcnt vmcnt(0)")
                a(f"v_mov_b32 v{vt}, s{TS0+2*i}")
                a(f"global_atomic_umax v{vt2}, v{vt}, s[{P_DBG}:{P_DBG+1}] offset:{8+4*n} sc1")
            a("s_waitcnt vmcnt(0)")
            a.label(lab)
            return
        a("s_waitcnt vmcnt(0) lgkmcnt(0)")
        a(f"s_lshl_b32 s11, s2, 9")
        a(f"s_lshl_b32 s12, s{S_WAVE}, 6")
        a("s_add_u32 s11, s11, s12")
        a(f"s_add_u32 s11, s11, {WS_TS:#x}")
        a(f"v_mov_b32 v{vt2}, s11")
        for i in range(13):
            a(f"v_mov_b32 v{vt}, s{TS0+2*i}")
            a(f"buffer_store_dword v{vt}, v{vt2}, s[{SRD_WS}:{SRD_WS+3}], 0 offen offset:{4*i}")
        a("s_waitcnt vmcnt(0)")

def round_bf16(a, dst, src):
    a(f"v_cvt_pk_bf16_f32 v{dst}, v{src}, v{src}")
    a(f"v_lshlrev_b32 v{dst}, 16, v{dst}")

def exp_acc(a, dst, x, t0, t1):
    a(f"s_mov_b32 s13, {LOG2E:#x}")
    a(f"s_mov_b32 s14, {LOG2E_LO:#x}")
    a(f"s_mov_b32 s15, {LN2:#x}")
    a(f"v_mul_f32 v{t0}, s13, v{x}")
    a(f"v_fma_f32 v{t1}, v{x}, s13, -v{t0}")
    a(f"v_fma_f32 v{t1}, v{x}, s14, v{t1}")
    a(f"v_mul_f32 v{t1}, s15, v{t1}")
    a(f"v_exp_f32 v{dst}, v{t0}")
    a(f"v_fma_f32 v{dst}, v{dst}, v{t1}, v{dst}")

def csq(a, dr, di, sr, si, t):
    a(f"v_mul_f32 v{t}, v{si}, v{si}")
    a(f"v_add_f32 v{di}, v{si}, v{si}")
    a(f"v_mul_f32 v{di}, v{di}, v{sr}")
    a(f"v_fma_f32 v{dr}, v{sr}, v{sr}, -v{t}")

def cmul(a, dr, di, ar, ai, br, bi):
    a(f"v_mul_f32 v{dr}, v{ar}, v{br}")
    a(f"v_mul_f32 v{di}, v{ar}, v{bi}")
    a(f"v_fma_f32 v{dr}, -v{ai}, v{bi}, v{dr}")
    a(f"v_fma_f32 v{di}, v{ai}, v{br}, v{di}")

def ssm_const_load(a, vm, t):
    a(f"v_and_b32 v{t+3}, 15, v0")
    a(f"s_lshl_b32 s11, s{S_NS}, 4")
    a(f"v_add_lshl_u32 v{t+3}, v{t+3}, s11, 1")
    vm.issue('sc', f"global_load_ushort v{t}, v{t+3}, s[{P_LRE}:{P_LRE+1}]")
    vm.issue('sc', f"global_load_ushort v{t+1}, v{t+3}, s[{P_LIM}:{P_LIM+1}]")
    vm.issue('sc', f"global_load_ushort v{t+2}, v{t+3}, s[{P_LDT}:{P_LDT+1}]")

def ssm_const_calc(a, t, lr, li, cr=None, ci=None):
    for k in range(3): a(f"v_lshlrev_b32 v{t+k}, 16, v{t+k}")
    exp_acc(a, t + 3, t + 2, t + 4, t + 5)
    round_bf16(a, t + 2, t + 3)
    a(f"v_mul_f32 v{t+3}, v{t+2}, v{t}")
    a(f"v_mul_f32 v{t+6}, v{t+2}, v{t+1}")
    exp_acc(a, t + 7, t + 3, t + 4, t + 5)
    a(f"v_mul_f32 v{t+6}, {INV2PI:#x}, v{t+6}")
    a(f"v_rndne_f32 v{t+4}, v{t+6}")
    a(f"v_sub_f32 v{t+6}, v{t+6}, v{t+4}")
    a(f"v_cos_f32 v{t+4}, v{t+6}")
    a(f"v_sin_f32 v{t+5}, v{t+6}")
    a(f"v_mul_f32 v{lr}, v{t+7}, v{t+4}")
    a(f"v_mul_f32 v{li}, v{t+7}, v{t+5}")
    if cr is not None:
        a(f"v_add_f32 v{t+3}, -1.0, v{lr}")
        a(f"v_mul_f32 v{t+4}, v{t}, v{t}")
        a(f"v_fma_f32 v{t+4}, v{t+1}, v{t+1}, v{t+4}")
        a(f"v_rcp_f32 v{t+4}, v{t+4}")
        a(f"v_mul_f32 v{cr}, v{t+3}, v{t}")
        a(f"v_fma_f32 v{cr}, v{li}, v{t+1}, v{cr}")
        a(f"v_mul_f32 v{ci}, v{li}, v{t}")
        a(f"v_fma_f32 v{ci}, -v{t+3}, v{t+1}, v{ci}")
        a(f"v_add_f32 v{t+4}, v{t+4}, v{t+4}")
        a(f"v_mul_f32 v{cr}, v{cr}, v{t+4}")
        a(f"v_mul_f32 v{ci}, v{ci}, v{t+4}")

def gen_entry(a, cfg, ts):
    a("s_cmp_ge_u32 s2, 256")
    a("s_cbranch_scc1 L_exit")
    ts(0)
    a("s_load_dwordx16 s[16:31], s[0:1], 0")
    a("s_load_dwordx16 s[32:47], s[0:1], 64")
    a("v_lshrrev_b32 v1, 6, v0")
    a("v_and_b32 v0, 63, v0")
    a(f"v_readfirstlane_b32 s{S_WAVE}, v1")
    a(f"s_and_b32 s{S_XCD}, s2, 7")
    a(f"s_lshr_b32 s{S_SLOT}, s2, 3")
    a(f"s_and_b32 s11, s{S_SLOT}, 3")
    a(f"s_lshr_b32 s{S_NT}, s{S_SLOT}, 2")
    a(f"s_and_b32 s12, s{S_XCD}, 1")
    a(f"s_lshl_b32 s12, s12, 2")
    a(f"s_add_u32 s{S_MT}, s12, s11")
    a(f"s_lshr_b32 s12, s{S_XCD}, 1")
    a(f"s_mul_i32 s12, s12, 7")
    a(f"s_add_u32 s{S_NS}, s12, s{S_NT}")
    a(f"s_lshl_b32 s12, s{S_XCD}, 2")
    a(f"s_add_u32 s{S_M64}, s12, s11")
    a(f"s_and_b32 s{S_W4}, s{S_WAVE}, 3")
    ts.init()
    a(f"s_cmp_ge_u32 s{S_SLOT}, 28")
    a("s_cbranch_scc1 L_helper")
    a(f"s_cmp_ge_u32 s{S_WAVE}, 4")
    a("s_cbranch_scc1 L_loader")

def gen_helper(a, cfg, ts):
    a.label("L_helper")
    vm = VM(a)
    a(f"s_sub_u32 s11, s{S_SLOT}, 28")
    a(f"s_lshl_b32 s11, s11, 3")
    a(f"s_add_u32 s72, s11, s{S_XCD}")
    a(f"s_lshl_b32 s11, s72, 6")
    a(f"s_lshl_b32 s12, s{S_WAVE}, 3")
    a(f"s_add_u32 s11, s11, s12")
    a("v_lshrrev_b32 v2, 3, v0")
    a("v_add_u32 v2, s11, v2")
    a("v_mul_u32_u24 v3, 896, v2")
    a("v_and_b32 v4, 7, v0")
    a("v_lshl_add_u32 v3, v4, 4, v3")
    a(f"s_lshl_b32 s11, s{S_MT}, 8")
    a("s_add_u32 s11, s11, 224")
    a("v_and_b32 v5, 31, v0")
    a("v_add_u32 v5, s11, v5")
    a("v_mul_u32_u24 v5, 896, v5")
    a("v_lshrrev_b32 v6, 5, v0")
    a(f"s_lshl_b32 s11, s{S_W4}, 1")
    a("v_add_u32 v6, s11, v6")
    a("v_min_u32 v6, 6, v6")
    a("v_lshl_add_u32 v5, v6, 7, v5")
    a("s_waitcnt lgkmcnt(0)")
    srd(a, SRD_X, P_X, 2048 * 896)
    srd(a, SRD_WS, P_WS, WS_SIZE)
    if cfg.touch:
        vm.issue('t', f"buffer_load_dword v7, v5, s[{SRD_X}:{SRD_X+3}], 0 offen")
    for j in range(7):
        vm.issue('x', f"buffer_load_dwordx4 v[{16+4*j}:{19+4*j}], v3, s[{SRD_X}:{SRD_X+3}], 0 offen offset:{128*j}")
    a(f"s_cmp_gt_u32 s{S_WAVE}, 1")
    a("s_cbranch_scc1 L_h_noreset")
    a(f"s_cmp_eq_u32 s{S_WAVE}, 0")
    a("s_cselect_b32 s11, -1, 0")
    a("s_mov_b32 s12, 256")
    a("s_cmov_b32 s12, 896")
    a(f"s_mov_b32 s13, {WS_FLAG:#x}")
    a(f"s_cmov_b32 s13, {WS_AGG:#x}")
    a("s_mul_i32 s14, s12, s72")
    a("s_add_u32 s13, s13, s14")
    for k in range(4): a(f"v_mov_b32 v{8+k}, s11")
    a("v_lshlrev_b32 v12, 4, v0")
    a("v_cmp_gt_u32 vcc, s12, v12")
    a("s_and_saveexec_b64 s[14:15], vcc")
    a(f"buffer_store_dwordx4 v[8:11], v12, s[{SRD_WS}:{SRD_WS+3}], s13 offen sc1")
    a("s_mov_b64 exec, s[14:15]")
    a.label("L_h_noreset")
    vm.wait_all()
    a("s_mov_b32 s11, 0xffff0000")
    for k in range(28):
        a(f"v_lshlrev_b32 v{48+2*k}, 16, v{16+k}")
        a(f"v_and_b32 v{49+2*k}, s11, v{16+k}")
    def red8(acc, getter):
        pass
    for k in range(4): a(f"v_add_f32 v{8+k}, v{48+k}, v{52+k}")
    for k in range(8, 56): a(f"v_add_f32 v{8+k%4}, v{8+k%4}, v{48+k}")
    def fin(dst):
        a("v_add_f32 v8, v8, v9")
        a("v_add_f32 v10, v10, v11")
        a(f"v_add_f32 v{dst}, v8, v10")
        a(f"v_add_f32_dpp v{dst}, v{dst}, v{dst} quad_perm:[1,0,3,2] row_mask:0xf bank_mask:0xf")
        a(f"v_add_f32_dpp v{dst}, v{dst}, v{dst} quad_perm:[2,3,0,1] row_mask:0xf bank_mask:0xf")
        a(f"v_add_f32_dpp v{dst}, v{dst}, v{dst} row_half_mirror row_mask:0xf bank_mask:0xf")
        a(f"v_mul_f32 v{dst}, 0x3b124925, v{dst}")
    fin(12)
    for k in range(56): a(f"v_sub_f32 v{48+k}, v{48+k}, v12")
    for k in range(4): a(f"v_mul_f32 v{8+k}, v{48+k}, v{48+k}")
    for k in range(4, 56): a(f"v_fmac_f32 v{8+k%4}, v{48+k}, v{48+k}")
    fin(13)
    round_bf16(a, 14, 12)
    round_bf16(a, 13, 13)
    a("v_add_f32 v13, 0x3727c5ac, v13")
    round_bf16(a, 13, 13)
    a("v_sqrt_f32 v13, v13")
    round_bf16(a, 13, 13)
    a("v_rcp_f32 v15, v13")
    a("v_lshlrev_b32 v2, 3, v2")
    a("v_cmp_eq_u32 vcc, 0, v4")
    a("s_and_saveexec_b64 s[14:15], vcc")
    a(f"s_mov_b32 s11, {WS_STATS:#x}")
    a(f"buffer_store_dwordx2 v[14:15], v2, s[{SRD_WS}:{SRD_WS+3}], s11 offen sc1")
    a("s_mov_b64 exec, s[14:15]")
    a("s_waitcnt vmcnt(0)")
    a("s_barrier")
    a(f"s_cmp_lg_u32 s{S_WAVE}, 0")
    a("s_cbranch_scc1 L_h_done")
    a("v_mov_b32 v8, 0")
    a("v_mov_b32 v9, 1")
    a("s_mov_b64 exec, 1")
    a(f"global_atomic_add v8, v9, s[{P_DBG}:{P_DBG+1}] sc1")
    a("s_mov_b64 exec, -1")
    a.label("L_h_done")
    ts(1)
    ts.dump(8, 9)
    a("s_endpgm")

def spin_check(a, name, load_text_list, cond_fn):
    lo, done = a.newlabel(name + "_spin"), a.newlabel(name + "_ok")
    a(f"s_mov_b32 s73, 0")
    a.label(lo)
    cond_fn()
    a(f"s_cbranch_scc1 {done}")
    a("s_add_u32 s73, s73, 1")
    a(f"s_cmp_ge_u32 s73, {SPIN_MAX}")
    a(f"s_cbranch_scc1 {done}")
    a("s_sleep 1")
    for t in load_text_list: a(t)
    a("s_waitcnt vmcnt(0)")
    a(f"s_branch {lo}")
    a.label(done)
    a("s_nop 4")

def gen_loader(a, cfg, ts):
    a.label("L_loader")
    vm = VM(a)
    vXe, vXo, vW, vB, vLW, vLB = 2, 3, 4, 5, 6, 7
    vA, vC = 8, 9
    vWd, vCe, vCo = 10, 11, 12
    vT = 13
    ACC = 24
    RD = 44
    K = 64
    sMX, sMW, sMB, sMP = 72, 74, 75, 70
    a(f"v_lshrrev_b32 v{vA}, 3, v0")
    a(f"v_and_b32 v{vC}, 7, v0")
    a(f"s_lshl_b32 s11, s{S_MT}, 8")
    a(f"s_lshl_b32 s12, s{S_W4}, 6")
    a("s_add_u32 s11, s11, s12")
    a(f"v_lshrrev_b32 v{vT}, 2, v{vA}")
    a(f"v_and_b32 v{vT+1}, 3, v{vA}")
    a(f"v_lshl_add_u32 v{vT}, v{vT}, 4, v{vT+1}")
    a(f"v_add_u32 v{vT}, s11, v{vT}")
    a(f"v_mul_u32_u24 v{vXe}, 896, v{vT}")
    a(f"v_lshrrev_b32 v{vT+2}, 1, v{vA}")
    a(f"v_xor_b32 v{vT+3}, v{vC}, v{vT+2}")
    a(f"v_lshl_add_u32 v{vXe}, v{vT+3}, 4, v{vXe}")
    a(f"v_xor_b32 v{vXo}, 64, v{vXe}")
    a(f"s_lshl_b32 s11, s{S_W4}, 4")
    a(f"v_add_u32 v{vT}, s11, v{vA}")
    a(f"v_mul_u32_u24 v{vW}, 3584, v{vT}")
    a(f"v_and_b32 v{vT+4}, 1, v{vT+2}")
    a(f"v_lshlrev_b32 v{vT+4}, 2, v{vT+4}")
    a(f"v_xor_b32 v{vT+4}, v{vC}, v{vT+4}")
    a(f"v_lshl_add_u32 v{vW}, v{vT+4}, 4, v{vW}")
    a(f"s_lshl_b32 s11, s{S_NS}, 7")
    a(f"v_add_u32 v{vW}, s11, v{vW}")
    a(f"s_and_b32 s12, s{S_W4}, 1")
    a(f"s_lshl_b32 s11, s{S_NS}, 4")
    a(f"s_lshl_b32 s13, s12, 3")
    a("s_add_u32 s11, s11, s13")
    a(f"v_add_u32 v{vT}, s11, v{vA}")
    a(f"v_mul_u32_u24 v{vB}, 896, v{vT}")
    a(f"v_lshl_add_u32 v{vB}, v{vT+3}, 4, v{vB}")
    a("s_lshl_b32 s13, s12, 6")
    a(f"v_xor_b32 v{vB}, s13, v{vB}")
    a(f"s_lshl_b32 s{sMX}, s{S_W4}, 13")
    a(f"s_lshl_b32 s{sMW}, s{S_W4}, 11")
    a(f"s_lshl_b32 s{sMB}, s{S_W4}, 10")
    a(f"s_lshl_b32 s{sMP}, s{S_W4}, 12")
    a("s_waitcnt lgkmcnt(0)")
    srd(a, SRD_X, P_X, 2048 * 896)
    srd(a, SRD_A, P_WG, 448 * 3584)
    srd(a, SRD_B, P_WU, 448 * 3584)
    a(f"s_cmp_ge_u32 s{S_W4}, 2")
    srd_sel(a, SRD_C, P_BIM, P_BRE, 448 * 896)

    def dma(tag, voff, srdn, soff, m0base, m0off):
        a(f"s_add_u32 m0, s{m0base}, {m0off}")
        a(f"s_mov_b32 s11, {soff}")
        vm.issue(tag, f"buffer_load_dwordx4 v{voff}, s[{srdn}:{srdn+3}], s11 offen lds")
    def issue(s):
        r = R[s % 3]
        for i in range(2): dma(('st', s), vW, SRD_A, s * 64 * 3584 + i * 8 * 3584, sMW, r + OFF_WG + i * 1024)
        for j in range(4): dma(('st', s), vXo if j & 1 else vXe, SRD_X, (32 * (j >> 2) + 4 * (j & 3)) * 896 + s * 128, sMX, r + j * 1024)
        for i in range(2): dma(('st', s), vW, SRD_B, s * 64 * 3584 + i * 8 * 3584, sMW, r + OFF_WU + i * 1024)
        for j in range(4, 8): dma(('st', s), vXo if j & 1 else vXe, SRD_X, (32 * (j >> 2) + 4 * (j & 3)) * 896 + s * 128, sMX, r + j * 1024)
        dma(('st', s), vB, SRD_C, s * 128, sMB, r + OFF_BB)
    issue(0)
    ts(1)
    srd(a, SRD_WS, P_WS, WS_SIZE)
    a(f"v_lshlrev_b32 v{vT}, 4, v0")
    a(f"v_add_u32 v{vLW}, s{sMW}, v{vT}")
    a(f"v_add_u32 v{vLB}, s{sMB}, v{vT}")
    for k in range(17): a(f"v_mov_b32 v{ACC+k}, 0")
    a(f"s_lshr_b32 s11, s{S_W4}, 1")
    a("s_mul_i32 s11, s11, 896")
    a("s_lshl_b32 s13, s12, 5")
    a("s_add_u32 s11, s11, s13")
    a(f"v_add_u32 v{vT}, s11, v{vA}")
    a(f"v_mul_u32_u24 v{vWd}, 896, v{vT}")
    a(f"v_lshl_add_u32 v{vWd}, v{vT+4}, 4, v{vWd}")
    a(f"s_lshl_b32 s11, s{S_NT}, 7")
    a(f"v_add_u32 v{vWd}, s11, v{vWd}")
    a(f"s_lshl_b32 s11, s{S_NT}, 6")
    a("s_add_u32 s11, s11, s13")
    a(f"v_add_u32 v{vT}, s11, v{vA}")
    a(f"v_mul_u32_u24 v{vCe}, 896, v{vT}")
    a(f"v_lshl_add_u32 v{vCe}, v{vT+3}, 4, v{vCe}")
    a(f"v_xor_b32 v{vCo}, 64, v{vCe}")
    ssm_const_load(a, vm, K)
    issue(1)
    issue(2)
    a("s_mov_b32 s71, 0xffff0000")

    def colsum(s):
        r = R[s % 3]
        a(f"v_add_u32 v{vT}, {r + OFF_WG}, v{vLW}")
        a(f"v_add_u32 v{vT+1}, {r + OFF_BB}, v{vLB}")
        a(f"ds_read_b128 v[{RD}:{RD+3}], v{vT}")
        a(f"ds_read_b128 v[{RD+4}:{RD+7}], v{vT} offset:1024")
        a(f"ds_read_b128 v[{RD+8}:{RD+11}], v{vT} offset:8192")
        a(f"ds_read_b128 v[{RD+12}:{RD+15}], v{vT} offset:9216")
        a(f"ds_read_b128 v[{RD+16}:{RD+19}], v{vT+1}")
        for n in range(4):
            a(f"s_waitcnt lgkmcnt({4-n})")
            for d in range(4):
                w = RD + 4 * n + d
                ac = ACC + (n >> 1) * 8 + 2 * d
                a(f"v_lshlrev_b32 v{vT+2}, 16, v{w}")
                a(f"v_and_b32 v{vT+3}, s71, v{w}")
                a(f"v_add_f32 v{ac}, v{ac}, v{vT+2}")
                a(f"v_add_f32 v{ac+1}, v{ac+1}, v{vT+3}")
        a("s_waitcnt lgkmcnt(0)")
        for d in range(4):
            w = RD + 16 + d
            a(f"v_lshlrev_b32 v{vT+2}, 16, v{w}")
            a(f"v_and_b32 v{vT+3}, s71, v{w}")
            a(f"v_add_f32 v{vT+2}, v{vT+2}, v{vT+3}")
            a(f"v_add_f32 v{ACC+16}, v{ACC+16}, v{vT+2}")

    def piece(j):
        base = PS[j % 8]
        for n in range(4):
            if j < 14:
                dma(('p', j), vWd, SRD_A, (64 * j + 8 * n) * 896, sMP, base + n * 1024)
            else:
                dma(('p', j), vCo if n & 1 else vCe, SRD_C, 8 * n * 896 + (j - 14) * 128, sMP, base + n * 1024)

    LR, LI = K + 8, K + 9
    W0R, W0I, W1R, W1I = K + 10, K + 11, K + 12, K + 13
    MSK0, MSK1 = 66, 68
    for s in range(7):
        vm.wait(('st', s))
        a("s_barrier")
        if s == 0: ts(2)
        if 1 <= s <= 4: issue(s + 2)
        if s == 4:
            srd(a, SRD_A, P_WD, 1792 * 896)
            a(f"s_cmp_ge_u32 s{S_W4}, 2")
            srd_sel(a, SRD_C, P_CIM, P_CRE, 448 * 896)
            a(f"v_mov_b32 v{K+20}, 0")
            vm.issue('init', f"global_load_dword v{K+21}, v{K+20}, s[{P_DBG}:{P_DBG+1}] sc1")
        if s == 5:
            vm.wait('init')
            def cond():
                a(f"v_readfirstlane_b32 s11, v{K+21}")
                a("s_cmp_ge_u32 s11, 32")
            spin_check(a, "L_init", [f"global_load_dword v{K+21}, v{K+20}, s[{P_DBG}:{P_DBG+1}] sc1"], cond)
            a(f"s_lshl_b32 s11, s{S_MT}, 8")
            a(f"s_lshl_b32 s12, s{S_W4}, 6")
            a("s_add_u32 s11, s11, s12")
            a(f"v_add_lshl_u32 v{K+20}, v0, s11, 3")
            a(f"s_mov_b32 s11, {WS_STATS:#x}")
            vm.issue('stats', f"buffer_load_dwordx2 v[{K+22}:{K+23}], v{K+20}, s[{SRD_WS}:{SRD_WS+3}], s11 offen sc1")
            for j in range(3): piece(j)
        if s == 6:
            for j in range(3, 6): piece(j)
            vm.wait('stats')
            a(f"s_lshl_b32 s11, s{S_W4}, 9")
            a(f"s_add_u32 s11, s11, {STATS_L}")
            a(f"v_lshl_add_u32 v{K+20}, v0, 3, s11")
            a(f"ds_write_b64 v{K+20}, v[{K+22}:{K+23}]")
        colsum(s)
        if s == 1:
            ssm_const_calc(a, K, LR, LI)
            for _ in range(4): csq(a, LR, LI, LR, LI, K)
            csq(a, K + 14, K + 15, LR, LI, K)
            for _ in range(3): csq(a, K + 14, K + 15, K + 14, K + 15, K)
        if s == 2:
            a(f"v_lshrrev_b32 v{K+16}, 4, v0")
            a(f"s_sub_u32 s11, s{S_MT}, 1")
            a(f"v_sub_u32 v{K+16}, s11, v{K+16}")
            a(f"v_add_u32 v{K+17}, -4, v{K+16}")
            a(f"v_mov_b32 v{W0R}, 1.0"); a(f"v_mov_b32 v{W0I}, 0")
            a(f"v_mov_b32 v{W1R}, 1.0"); a(f"v_mov_b32 v{W1I}, 0")
            for b in range(3):
                for (wr, wi, e) in ((W0R, W0I, K + 16), (W1R, W1I, K + 17)):
                    cmul(a, K + 1, K + 2, wr, wi, K + 14, K + 15)
                    a(f"v_and_b32 v{K}, {1 << b}, v{e}")
                    a(f"v_cmp_ne_u32 vcc, 0, v{K}")
                    a(f"v_cndmask_b32 v{wr}, v{wr}, v{K+1}, vcc")
                    a(f"v_cndmask_b32 v{wi}, v{wi}, v{K+2}, vcc")
                if b < 2: csq(a, K + 14, K + 15, K + 14, K + 15, K)
    for k in range(8):
        a(f"v_permlane32_swap_b32 v{ACC+k}, v{ACC+8+k}")
    for k in range(8):
        a(f"v_add_f32 v{ACC+k}, v{ACC+k}, v{ACC+8+k}")
    for k in range(8):
        a(f"v_add_f32_dpp v{ACC+k}, v{ACC+k}, v{ACC+k} row_ror:8 row_mask:0xf bank_mask:0xf")
    b = ACC + 16
    a(f"v_add_f32_dpp v{b}, v{b}, v{b} quad_perm:[1,0,3,2] row_mask:0xf bank_mask:0xf")
    a(f"v_add_f32_dpp v{b}, v{b}, v{b} quad_perm:[2,3,0,1] row_mask:0xf bank_mask:0xf")
    a(f"v_add_f32_dpp v{b}, v{b}, v{b} row_half_mirror row_mask:0xf bank_mask:0xf")
    a(f"v_bfe_u32 v{vT}, v0, 4, 1")
    a(f"v_lshlrev_b32 v{vT+1}, 2, v{vT}")
    a(f"v_xor_b32 v{vT+1}, v{vC}, v{vT+1}")
    a(f"v_lshlrev_b32 v{vT+1}, 5, v{vT+1}")
    a(f"v_lshl_add_u32 v{vT+1}, v{vT}, 9, v{vT+1}")
    a(f"v_lshrrev_b32 v{vT+2}, 5, v0")
    a(f"v_lshl_add_u32 v{vT+1}, v{vT+2}, 8, v{vT+1}")
    a(f"s_add_u32 s11, s{sMB}, {CP_L}")
    a(f"v_add_u32 v{vT+1}, s11, v{vT+1}")
    a(f"ds_write_b128 v{vT+1}, v[{ACC}:{ACC+3}]")
    a(f"ds_write_b128 v{vT+1}, v[{ACC+4}:{ACC+7}] offset:16")
    a(f"s_lshl_b32 s11, s{S_W4}, 5")
    a(f"s_add_u32 s11, s11, {C_L + 512}")
    a(f"v_lshl_add_u32 v{vT+2}, v{vA}, 2, s11")
    a(f"ds_write_b32 v{vT+2}, v{b}")
    a("s_waitcnt lgkmcnt(0)")
    a("s_barrier")
    ts(3)
    a(f"s_and_b32 s12, s{S_W4}, 1")
    a("s_lshl_b32 s12, s12, 8")
    a(f"v_lshl_add_u32 v{vT}, v0, 2, s12")
    a(f"v_add_u32 v{vT+1}, {CP_L}, v{vT}")
    for p in range(8): a(f"ds_read_b32 v{RD+p}, v{vT+1} offset:{512*p}")
    a(f"v_add_u32 v{vT}, {C_L}, v{vT}")
    a("s_waitcnt lgkmcnt(0)")
    for p in range(4): a(f"v_add_f32 v{RD+p}, v{RD+p}, v{RD+4+p}")
    a(f"v_add_f32 v{RD}, v{RD}, v{RD+2}")
    a(f"v_add_f32 v{RD+1}, v{RD+1}, v{RD+3}")
    a(f"v_add_f32 v{RD}, v{RD}, v{RD+1}")
    a(f"ds_write_b32 v{vT}, v{RD}")
    E = 96
    a(f"v_and_b32 v{vT+2}, 15, v0")
    a(f"v_lshlrev_b32 v{vT+2}, 3, v{vT+2}")
    a(f"v_add_u32 v{vT+3}, {AGG_L}, v{vT+2}")
    a("s_waitcnt lgkmcnt(0)")
    a("s_barrier")
    ts(4)
    a(f"s_cmp_lg_u32 s{S_W4}, 0")
    a("s_cbranch_scc1 L_l_nocomb")
    for i in range(16): a(f"ds_read_b64 v[{E+2*i}:{E+2*i+1}], v{vT+3} offset:{128*i}")
    a(f"v_lshrrev_b32 v{vT+4}, 4, v0")
    a(f"v_mul_u32_u24 v{vT+4}, 3584, v{vT+4}")
    a(f"s_lshl_b32 s11, s{S_NS}, 7")
    a(f"v_add3_u32 v{vT+4}, v{vT+4}, v{vT+2}, s11")
    a(f"s_mul_i32 s12, s{S_MT}, 3584")
    a("s_add_u32 s12, s12, s11")
    a(f"s_add_u32 s12, s12, {WS_AGG:#x}")
    a(f"s_mov_b32 s13, {WS_AGG:#x}")
    a(f"s_mov_b32 s14, {WS_AGG + 4*3584:#x}")
    SR, SI, T1, T2 = K + 24, K + 25, K + 26, K + 27
    def step(i, sr, si, dr, di):
        a(f"v_fma_f32 v{T1}, -v{LI}, v{si}, v{E+2*i}")
        a(f"v_fma_f32 v{T2}, v{LI}, v{sr}, v{E+2*i+1}")
        a(f"v_fma_f32 v{dr}, v{LR}, v{sr}, v{T1}")
        a(f"v_fma_f32 v{di}, v{LR}, v{si}, v{T2}")
    a("s_waitcnt lgkmcnt(14)")
    step(1, E, E + 1, SR, SI)
    for i in range(2, 16):
        if i in (2, 4, 8): a(f"s_waitcnt lgkmcnt({ {2:12, 4:8, 8:0}[i] })")
        step(i, SR, SI, SR, SI)
    a(f"v_cmp_eq_u32 vcc, -1, v{SR}")
    a(f"v_mov_b32 v{T1}, 0x7fc00000")
    a(f"v_cndmask_b32 v{SR}, v{SR}, v{T1}, vcc")
    a("s_mov_b64 exec, 0xffff")
    a(f"buffer_store_dwordx2 v[{SR}:{SI}], v{vT+2}, s[{SRD_WS}:{SRD_WS+3}], s12 offen sc1")
    a("s_mov_b64 exec, -1")
    ts(5)
    G0, G1 = K + 28, K + 30
    lds = [f"buffer_load_dwordx2 v[{G0}:{G0+1}], v{vT+4}, s[{SRD_WS}:{SRD_WS+3}], s13 offen sc1",
           f"buffer_load_dwordx2 v[{G1}:{G1+1}], v{vT+4}, s[{SRD_WS}:{SRD_WS+3}], s14 offen sc1"]
    for t in lds: a(t)
    a(f"v_cmp_le_i32 s[56:57], 0, v{K+16}")
    a(f"v_cmp_le_i32 s[58:59], 0, v{K+17}")
    a("s_waitcnt vmcnt(0)")
    def cond():
        a(f"v_cmp_eq_u32 vcc, -1, v{G0}")
        a("s_and_b64 s[14:15], vcc, s[56:57]") if False else None
        a("s_and_b64 s[48:49], vcc, s[56:57]")
        a(f"v_cmp_eq_u32 vcc, -1, v{G1}")
        a("s_and_b64 s[50:51], vcc, s[58:59]")
        a("s_or_b64 s[48:49], s[48:49], s[50:51]")
        a("s_cmp_eq_u64 s[48:49], 0")
    spin_check(a, "L_agg", lds, cond)
    ts(6)
    cmul(a, SR, SI, G0, G0 + 1, W0R, W0I)
    cmul(a, T1, T2, G1, G1 + 1, W1R, W1I)
    a(f"v_cndmask_b32 v{SR}, 0, v{SR}, s[56:57]")
    a(f"v_cndmask_b32 v{SI}, 0, v{SI}, s[56:57]")
    a(f"v_cndmask_b32 v{T1}, 0, v{T1}, s[58:59]")
    a(f"v_cndmask_b32 v{T2}, 0, v{T2}, s[58:59]")
    a(f"v_add_f32 v{SR}, v{SR}, v{T1}")
    a(f"v_add_f32 v{SI}, v{SI}, v{T2}")
    for sw in ("v_permlane32_swap_b32", "v_permlane16_swap_b32"):
        a(f"v_mov_b32 v{T1}, v{SR}")
        a(f"v_mov_b32 v{T2}, v{SI}")
        a(f"{sw} v{SR}, v{T1}")
        a(f"{sw} v{SI}, v{T2}")
        a(f"v_add_f32 v{SR}, v{SR}, v{T1}")
        a(f"v_add_f32 v{SI}, v{SI}, v{T2}")
    C0 = 128
    a(f"ds_write_b64 v{vT+3}, v[{SR}:{SI}] offset:{CIN_L - AGG_L}")
    pr, pi = SR, SI
    for i in range(15):
        step(i, pr, pi, C0 + 2 * i, C0 + 2 * i + 1)
        pr, pi = C0 + 2 * i, C0 + 2 * i + 1
        a(f"ds_write_b64 v{vT+3}, v[{pr}:{pi}] offset:{CIN_L - AGG_L + 128*(i+1)}")
    a("s_waitcnt lgkmcnt(0)")
    a.label("L_l_nocomb")
    a("s_barrier")
    ts(7)
    piece(6); piece(7)
    a(f"s_lshl_b32 s12, s{S_M64}, 8")
    a(f"s_add_u32 s12, s12, {WS_FLAG:#x}")
    a(f"v_min_u32 v{vT+5}, 27, v0")
    a(f"v_lshlrev_b32 v{vT+5}, 2, v{vT+5}")
    def poll(name, off):
        ld = f"buffer_load_dword v{vT+6}, v{vT+5}, s[{SRD_WS}:{SRD_WS+3}], s12 offen offset:{off} sc1"
        vm.issue(name, ld)
        vm.wait(name)
        def cond():
            a(f"v_cmp_ne_u32 vcc, 1, v{vT+6}")
            a("s_cmp_eq_u64 vcc, 0")
        spin_check(a, name, [ld], cond)
    g_ssm = ((56 - cfg.pd) // 4) // 2
    for g in range(11):
        if g == 0:
            poll("L_pf", 0)
            ts(8)
        if g == g_ssm:
            poll("L_ps", 128)
            ts(9)
        vm.wait(('p', min(2 * g + 1, 20)))
        a("s_barrier")
        if g >= 1:
            for j in (2 * g + 6, 2 * g + 7):
                if j <= 20: piece(j)
    a("s_barrier")
    ts(10)
    ts.dump(vT, vT + 1)
    a("s_endpgm")

def gen_consumer(a, cfg, ts):
    vm = VM(a)
    XA = [1, 2, 3, 4]; BA = [5, 6, 7, 8]; WA = [9, 10]
    LR, LI, CR, CI = 12, 13, 14, 15
    T = 16
    FS = [40, 68]
    ACC = 96
    def G(ft, q): return ACC + 16 * (2 * ft + q)
    def U(ft, q): return ACC + 64 + 16 * (2 * ft + q)
    def S(q): return ACC + 128 + 16 * q
    a("s_setprio 2")
    vI, vH = T, T + 1
    a(f"v_and_b32 v{vI}, 31, v0")
    a(f"v_lshrrev_b32 v{vH}, 5, v0")
    if cfg.touch:
        a(f"s_lshl_b32 s11, s{S_MT}, 8")
        a(f"s_lshl_b32 s12, s{S_NT}, 5")
        a("s_add_u32 s11, s11, s12")
        a(f"v_add_u32 v{T+2}, s11, v{vI}")
        a(f"v_mul_u32_u24 v{T+2}, 896, v{T+2}")
        a(f"s_and_b32 s11, s{S_SLOT}, 3")
        a("s_lshl_b32 s11, s11, 4")
        a(f"v_and_b32 v{T+3}, 15, v0")
        a(f"v_add_u32 v{T+3}, s11, v{T+3}")
        a(f"v_mul_u32_u24 v{T+3}, 3584, v{T+3}")
        a(f"s_lshl_b32 s11, s{S_NS}, 7")
        a(f"v_add_u32 v{T+3}, s11, v{T+3}")
        a(f"v_cmp_gt_u32 vcc, 32, v0")
        a(f"v_cndmask_b32 v{T+2}, v{T+3}, v{T+2}, vcc")
        a(f"v_mov_b32 v{T+4}, {64*3584}")
        a(f"v_mov_b32 v{T+5}, 128")
        a(f"v_cndmask_b32 v{T+4}, v{T+4}, v{T+5}, vcc")
        a(f"s_add_u32 s11, s{S_W4}, 1")
        a(f"v_mad_u32_u24 v{T+2}, v{T+4}, s11, v{T+2}")
    a("s_waitcnt lgkmcnt(0)")
    if cfg.touch:
        a(f"v_cmp_gt_u32 s[12:13], 48, v0")
        a(f"v_mov_b32 v{T+6}, s{P_WU}"); a(f"v_mov_b32 v{T+7}, s{P_WU+1}")
        a(f"v_mov_b32 v{T+8}, s{P_WG}"); a(f"v_mov_b32 v{T+9}, s{P_WG+1}")
        a(f"v_cndmask_b32 v{T+6}, v{T+6}, v{T+8}, s[12:13]")
        a(f"v_cndmask_b32 v{T+7}, v{T+7}, v{T+9}, s[12:13]")
        a(f"v_mov_b32 v{T+8}, s{P_X}"); a(f"v_mov_b32 v{T+9}, s{P_X+1}")
        a(f"v_cndmask_b32 v{T+6}, v{T+6}, v{T+8}, vcc")
        a(f"v_cndmask_b32 v{T+7}, v{T+7}, v{T+9}, vcc")
        a(f"v_add_co_u32 v{T+6}, vcc, v{T+6}, v{T+2}")
        a(f"v_addc_co_u32 v{T+7}, vcc, 0, v{T+7}, vcc")
        a(f"s_cmp_ge_u32 s{S_W4}, 2")
        a("s_cbranch_scc1 L_c_t1")
        a(f"global_load_dword v{T+10}, v[{T+6}:{T+7}], off")
        a.label("L_c_t1")
    ssm_const_load(a, vm, T + 12)
    srd(a, SRD_WS, P_WS, WS_SIZE)
    a(f"v_bfe_u32 v{T+2}, v0, 1, 3")
    a(f"v_xor_b32 v{T+2}, v{T+2}, v{vH}")
    a(f"v_lshlrev_b32 v{T+2}, 4, v{T+2}")
    a(f"v_lshl_add_u32 v{T+2}, v{vI}, 7, v{T+2}")
    a(f"s_lshl_b32 s11, s{S_W4}, 13")
    for ks in range(4):
        a(f"v_xor_b32 v{T+3}, {32*ks}, v{T+2}")
        a(f"v_add_u32 v{XA[ks]}, s11, v{T+3}")
        a(f"v_add_u32 v{BA[ks]}, {OFF_BB}, v{T+3}")
    a(f"v_bfe_u32 v{T+2}, v0, 2, 2")
    a(f"v_lshl_add_u32 v{T+3}, v{vH}, 3, v{T+2}")
    a(f"v_lshlrev_b32 v{T+3}, 7, v{T+3}")
    a(f"v_lshrrev_b32 v{T+2}, 1, v{T+2}")
    a(f"v_lshl_add_u32 v{T+3}, v{T+2}, 6, v{T+3}")
    a(f"v_bfe_u32 v{T+2}, v0, 4, 1")
    a(f"v_lshl_add_u32 v{T+3}, v{T+2}, 5, v{T+3}")
    a(f"v_and_b32 v{T+2}, 3, v0")
    a(f"v_lshl_add_u32 v{T+3}, v{T+2}, 3, v{T+3}")
    a(f"v_add_u32 v{WA[0]}, {OFF_WG}, v{T+3}")
    a(f"v_xor_b32 v{WA[1]}, 64, v{WA[0]}")
    for k in range(160): a(f"v_mov_b32 v{ACC+k}, 0")
    vm.wait_all()
    if cfg.touch:
        a(f"s_cmp_ge_u32 s{S_W4}, 2")
        a("s_cselect_b32 s11, 0, 4")
        a(f"v_mul_u32_u24 v{T+4}, s11, v{T+4}")
        a(f"v_add_co_u32 v{T+6}, vcc, v{T+6}, v{T+4}")
        a(f"v_addc_co_u32 v{T+7}, vcc, 0, v{T+7}, vcc")
        a(f"global_load_dword v{T+10}, v[{T+6}:{T+7}], off")
    ssm_const_calc(a, T + 12, LR, LI, CR, CI)
    ts(1)

    def reads(fs, ks):
        f = FS[fs]
        L = []
        L.append(f"ds_read_b128 v[{f}:{f+3}], v{XA[ks]}")
        L.append(f"ds_read_b128 v[{f+24}:{f+27}], v{BA[ks]}")
        L.append(f"ds_read_b128 v[{f+4}:{f+7}], v{XA[ks]} offset:4096")
        for gu in range(2):
            for ft in range(2):
                for j in range(2):
                    d = f + 8 + 8 * gu + 4 * ft + 2 * j
                    L.append(f"ds_read_b64_tr_b16 v[{d}:{d+1}], v{WA[ft]} offset:{gu*8192 + ks*2048 + j*512}")
        return L
    def mfmas(fs):
        f = FS[fs]
        X = [f, f + 4]; Bf = f + 24
        L = []
        for q in range(2):
            L.append(f"v_mfma_f32_32x32x16_bf16 v[{S(q)}:{S(q)+15}], v[{X[q]}:{X[q]+3}], v[{Bf}:{Bf+3}], v[{S(q)}:{S(q)+15}]")
        for gu in range(2):
            for ft in range(2):
                w = f + 8 + 8 * gu + 4 * ft
                for q in range(2):
                    d = (G, U)[gu](ft, q)
                    L.append(f"v_mfma_f32_32x32x16_bf16 v[{d}:{d+15}], v[{w}:{w+3}], v[{X[q]}:{X[q]+3}], v[{d}:{d+15}]")
        return L
    a("s_barrier")
    ts(2)
    for t in reads(0, 0): a(t)
    a("s_mov_b32 s72, 0")
    a("s_mov_b32 s74, 0")
    a.label("L_c_loop")
    for ks in range(4):
        fs = ks & 1
        a("s_waitcnt lgkmcnt(0)")
        M = mfmas(fs)
        if ks < 3:
            Rd = reads(1 - fs, ks + 1)
            for m in M:
                a(m)
                for _ in range(2):
                    if Rd: a(Rd.pop(0))
        else:
            Rd = reads(1 - fs, 0)
            a(M[0])
            a("s_add_u32 s74, s74, 1")
            a("s_cmp_eq_u32 s74, 3")
            a("s_mov_b32 s75, 53248")
            a(f"s_cmov_b32 s75, {(-106496) & 0xffffffff:#x}")
            a("s_cselect_b32 s74, 0, s74")
            for v in XA + BA[:1]: a(f"v_add_u32 v{v}, s75, v{v}")
            a(M[1])
            for v in BA[1:] + WA: a(f"v_add_u32 v{v}, s75, v{v}")
            a(M[2])
            a("s_barrier")
            for m in M[3:]:
                for _ in range(2):
                    if Rd: a(Rd.pop(0))
                a(m)
            a("s_add_u32 s72, s72, 1")
            a("s_cmp_lt_u32 s72, 7")
            a("s_cbranch_scc1 L_c_loop")
    ts(3)
    ST = FS[0]
    X, Y = S(0), S(1)
    vRun8 = T + 2
    CBR, CBI = T + 4, T + 5
    MM = T + 6
    HR, HI, T1, T2 = T + 8, T + 9, T + 10, T + 11
    a(f"v_bfe_u32 v{T+3}, v0, 4, 1")
    a(f"v_lshl_add_u32 v{T+3}, v{T+3}, 1, v{vH}")
    a(f"s_lshl_b32 s11, s{S_W4}, 2")
    a(f"v_add_u32 v{T+3}, s11, v{T+3}")
    a(f"v_lshlrev_b32 v{T+3}, 7, v{T+3}")
    a(f"v_add_u32 v{T+12}, {STATS_L}, v{T+3}")
    a(f"v_and_b32 v{T+13}, 15, v0")
    a(f"v_lshl_add_u32 v{vRun8}, v{T+13}, 3, v{T+3}")
    a(f"v_add_u32 v{vRun8}, {AGG_L}, v{vRun8}")
    a(f"v_lshlrev_b32 v{T+13}, 2, v{T+13}")
    a(f"v_add_u32 v{T+13}, {C_L + 512}, v{T+13}")
    a("s_waitcnt lgkmcnt(0)")
    a(f"ds_read_b32 v{CBR}, v{T+13}")
    a(f"ds_read_b32 v{CBI}, v{T+13} offset:64")
    for k in range(8): a(f"ds_read_b128 v[{ST+4*k}:{ST+4*k+3}], v{T+12} offset:{16*k}")
    a(f"v_bfe_u32 v{T+14}, v0, 2, 1")
    a(f"v_lshlrev_b32 v{T+14}, 4, v{T+14}")
    a(f"v_and_b32 v{T+15}, 3, v0")
    a(f"v_add_u32 v{T+14}, v{T+14}, v{T+15}")
    a(f"v_bfe_u32 v{T+15}, v0, 3, 2")
    a(f"v_lshl_add_u32 v{T+14}, v{T+15}, 2, v{T+14}")
    a(f"s_lshl_b32 s11, s{S_W4}, 9")
    a(f"s_add_u32 s11, s11, {STATS_L}")
    a(f"v_lshl_add_u32 v{T+14}, v{T+14}, 3, s11")
    a(f"ds_read_b32 v{MM}, v{T+14}")
    a(f"ds_read_b32 v{MM+1}, v{T+14} offset:256")
    for r in range(16): a(f"v_permlane16_swap_b32 v{X+r}, v{Y+r}")
    a("s_waitcnt lgkmcnt(0)")
    for r in range(16):
        m, rs = ST + 2 * r, ST + 2 * r + 1
        a(f"v_fma_f32 v{X+r}, -v{m}, v{CBR}, v{X+r}")
        a(f"v_fma_f32 v{Y+r}, -v{m}, v{CBI}, v{Y+r}")
        a(f"v_mul_f32 v{X+r}, v{X+r}, v{rs}")
        a(f"v_mul_f32 v{Y+r}, v{Y+r}, v{rs}")
        if r >= 1:
            pr, pi = (X, Y) if r == 1 else (HR, HI)
            a(f"v_fma_f32 v{T1}, -v{LI}, v{pi}, v{X+r}")
            a(f"v_fma_f32 v{T2}, v{LI}, v{pr}, v{Y+r}")
            a(f"v_fma_f32 v{HR}, v{LR}, v{pr}, v{T1}")
            a(f"v_fma_f32 v{HI}, v{LR}, v{pi}, v{T2}")
    a(f"ds_write_b64 v{vRun8}, v[{HR}:{HI}]")
    vL16 = T + 12
    a(f"v_lshlrev_b32 v{vL16}, 4, v0")
    a(f"s_lshl_b32 s11, s{S_MT}, 3")
    a(f"s_lshl_b32 s12, s{S_W4}, 1")
    a("s_add_u32 s11, s11, s12")
    a(f"s_mul_i32 s72, s11, {RT_BYTES}")
    a(f"s_cmp_ge_u32 s{S_NS}, 14")
    a(f"s_cselect_b32 s11, {HALF_BYTES - 56*1024}, 0")
    a(f"s_lshl_b32 s12, s{S_NS}, 12")
    a("s_add_u32 s11, s11, s12")
    a("s_add_u32 s74, s72, s11")
    a(f"s_add_u32 s75, s74, {RT_BYTES}")
    a(f"v_lshlrev_b32 v{T+13}, 4, v{vH}")
    a(f"v_add_u32 v{T+13}, {C_L}, v{T+13}")
    a("s_waitcnt lgkmcnt(0)")
    a("s_barrier")
    ts(4)
    CG = 40
    for ft in range(2):
        for k in range(4):
            a(f"ds_read_b128 v[{CG+4*k}:{CG+4*k+3}], v{T+13} offset:{128*ft + 32*k}")
        for k in range(4):
            a(f"ds_read_b128 v[{CG+16+4*k}:{CG+16+4*k+3}], v{T+13} offset:{256 + 128*ft + 32*k}")
        a("s_waitcnt lgkmcnt(0)")
        for q in range(2):
            g, u = G(ft, q), U(ft, q)
            sel = f"op_sel:[{q},0,0] op_sel_hi:[{q},1,1] neg_lo:[1,0,0] neg_hi:[1,0,0]"
            for k in range(8):
                a(f"v_pk_fma_f32 v[{g+2*k}:{g+2*k+1}], v[{MM}:{MM+1}], v[{CG+2*k}:{CG+2*k+1}], v[{g+2*k}:{g+2*k+1}] {sel}")
                a(f"v_pk_fma_f32 v[{u+2*k}:{u+2*k+1}], v[{MM}:{MM+1}], v[{CG+16+2*k}:{CG+16+2*k+1}], v[{u+2*k}:{u+2*k+1}] {sel}")
                a(f"v_max_f32 v{g+2*k}, 0, v{g+2*k}")
                a(f"v_max_f32 v{g+2*k+1}, 0, v{g+2*k+1}")
            for k in range(8):
                a(f"v_pk_mul_f32 v[{u+2*k}:{u+2*k+1}], v[{u+2*k}:{u+2*k+1}], v[{g+2*k}:{g+2*k+1}]")
            for k in range(8):
                a(f"v_cvt_pk_bf16_f32 v{g+k}, v{u+2*k}, v{u+2*k+1}")
            for p in range(2):
                vm.issue('h', f"buffer_store_dwordx4 v[{g+4*p}:{g+4*p+3}], v{vL16}, s[{SRD_WS}:{SRD_WS+3}], s{74+q} offen offset:{(2*ft+p)*1024} sc1")
    ts(5)
    for r in range(16):
        a(f"v_mul_f32 v{T1}, v{CI}, v{Y+r}")
        a(f"v_mul_f32 v{T2}, v{CI}, v{X+r}")
        a(f"v_fma_f32 v{X+r}, v{CR}, v{X+r}, -v{T1}")
        a(f"v_fma_f32 v{Y+r}, v{CR}, v{Y+r}, v{T2}")
    vF, vOne = T + 14, T + 15
    a(f"s_lshl_b32 s11, s{S_MT}, 2")
    a(f"s_add_u32 s11, s11, s{S_W4}")
    a("s_lshl_b32 s11, s11, 8")
    a(f"s_lshl_b32 s12, s{S_NS}, 2")
    a("s_add_u32 s11, s11, s12")
    a(f"s_add_u32 s11, s11, {WS_FLAG:#x}")
    a(f"v_mov_b32 v{vF}, s11")
    a(f"v_mov_b32 v{vOne}, 1")
    vm.wait_all()
    a("s_mov_b64 exec, 1")
    vm.issue('f', f"buffer_store_dword v{vOne}, v{vF}, s[{SRD_WS}:{SRD_WS+3}], 0 offen sc1")
    a("s_mov_b64 exec, -1")
    ts(6)
    XV, STT, DS = 96, 112, 144
    vO = T + 16
    srd(a, SRD_X, P_X, 2048 * 896)
    srd(a, SRD_E, P_OUT, 2048 * 1792)
    a(f"s_and_b32 s12, s{S_W4}, 1")
    a(f"s_lshr_b32 s13, s{S_W4}, 1")
    a(f"s_lshl_b32 s11, s{S_M64}, 1")
    a("s_add_u32 s14, s11, s12")
    a("s_lshl_b32 s11, s14, 5")
    a(f"v_lshl_add_u32 v{T+18}, v{vH}, 4, s11")
    a(f"s_lshl_b32 s11, s{S_NT}, 6")
    a("s_lshl_b32 s15, s13, 5")
    a("s_add_u32 s11, s11, s15")
    a(f"v_add_u32 v{T+19}, s11, v{vI}")
    a(f"v_mul_u32_u24 v{T+17}, 448, v{T+18}")
    a(f"v_add_u32 v{T+17}, v{T+17}, v{T+19}")
    a(f"v_lshlrev_b32 v{vO}, 2, v{T+17}")
    a(f"v_lshlrev_b32 v{T+17}, 1, v{T+17}")
    a(f"v_lshlrev_b32 v{T+18}, 3, v{T+18}")
    a(f"v_lshlrev_b32 v{T+19}, 1, v{T+19}")
    a(f"s_mul_i32 s52, s14, {RT_BYTES}")
    a(f"s_mul_i32 s53, s13, {HALF_BYTES}")
    a("s_add_u32 s52, s52, s53")
    a("s_lshl_b32 s53, s13, 13")
    for r in range(16):
        if r % 4 == 0: a(f"s_mov_b32 s11, {r*896}")
        vm.issue('e', f"buffer_load_ushort v{XV+r}, v{T+17}, s[{SRD_X}:{SRD_X+3}], s11 offen offset:{(r%4)*896}")
    a(f"s_mov_b32 s11, {WS_STATS:#x}")
    for k in range(8):
        vm.issue('e', f"buffer_load_dwordx4 v[{STT+4*k}:{STT+4*k+3}], v{T+18}, s[{SRD_WS}:{SRD_WS+3}], s11 offen offset:{16*k} sc1")
    vm.issue('e', f"global_load_ushort v{DS}, v{T+19}, s[{P_DSK}:{P_DSK+1}]")
    vTW, vTR = T + 20, T + 21
    a(f"s_mul_i32 s11, s{S_W4}, 4608")
    a(f"s_add_u32 s11, s11, {HT_L}")
    a(f"v_and_b32 v{T+22}, 15, v0")
    a(f"v_mul_u32_u24 v{vTW}, 144, v{T+22}")
    a(f"v_bfe_u32 v{T+22}, v0, 4, 1")
    a(f"v_lshl_add_u32 v{T+22}, v{T+22}, 1, v{vH}")
    a(f"v_lshl_add_u32 v{vTW}, v{T+22}, 5, v{vTW}")
    a(f"v_add_u32 v{vTW}, s11, v{vTW}")
    a(f"v_bfe_u32 v{T+22}, v0, 2, 2")
    a(f"v_lshl_add_u32 v{T+22}, v{vH}, 3, v{T+22}")
    a(f"v_mul_u32_u24 v{vTR}, 144, v{T+22}")
    a(f"v_and_b32 v{T+22}, 1, v0")
    a(f"v_lshl_add_u32 v{vTR}, v{T+22}, 5, v{vTR}")
    a(f"v_bfe_u32 v{T+22}, v0, 4, 1")
    a(f"v_lshl_add_u32 v{vTR}, v{T+22}, 4, v{vTR}")
    a(f"v_bfe_u32 v{T+22}, v0, 1, 1")
    a(f"v_lshl_add_u32 v{vTR}, v{T+22}, 3, v{vTR}")
    a(f"v_add_u32 v{vTR}, s11, v{vTR}")
    a(f"s_lshl_b32 s11, s{S_NS}, 10")
    a("s_add_u32 s74, s72, s11")
    a(f"s_add_u32 s74, s74, {56*1024}")
    a("s_barrier")
    ts(7)
    a(f"ds_read_b64 v[{T1}:{T2}], v{vRun8} offset:{CIN_L - AGG_L}")
    a("s_waitcnt lgkmcnt(0)")
    cmul(a, HR, HI, T1, T2, CR, CI)
    pr, pi = HR, HI
    for r in range(16):
        a(f"v_fma_f32 v{X+r}, -v{LI}, v{pi}, v{X+r}")
        a(f"v_fma_f32 v{Y+r}, v{LI}, v{pr}, v{Y+r}")
        a(f"v_fmac_f32 v{X+r}, v{LR}, v{pr}")
        a(f"v_fmac_f32 v{Y+r}, v{LR}, v{pi}")
        pr, pi = X + r, Y + r
    PK = 40
    for k in range(8):
        a(f"v_cvt_pk_bf16_f32 v{PK+k}, v{X+2*k}, v{X+2*k+1}")
    for k in range(8):
        a(f"v_cvt_pk_bf16_f32 v{PK+8+k}, -v{Y+2*k}, -v{Y+2*k+1}")
    a(f"ds_write_b128 v{vTW}, v[{PK}:{PK+3}]")
    a(f"ds_write_b128 v{vTW}, v[{PK+4}:{PK+7}] offset:16")
    a(f"ds_write_b128 v{vTW}, v[{PK+8}:{PK+11}] offset:{16*144}")
    a(f"ds_write_b128 v{vTW}, v[{PK+12}:{PK+15}] offset:{16*144+16}")
    a("s_waitcnt lgkmcnt(0)")
    HF = 56
    for q in range(2):
        for part in range(2):
            for j in range(2):
                d = HF + 8 * q + 4 * part + 2 * j
                a(f"ds_read_b64_tr_b16 v[{d}:{d+1}], v{vTR} offset:{(part*16 + 4*j)*144 + 64*q}")
    a("s_waitcnt lgkmcnt(0)")
    for q in range(2):
        for part in range(2):
            d = HF + 8 * q + 4 * part
            a(f"s_add_u32 s11, s74, {q*RT_BYTES + part*HALF_BYTES}")
            vm.issue('hs', f"buffer_store_dwordx4 v[{d}:{d+3}], v{vL16}, s[{SRD_WS}:{SRD_WS+3}], s11 offen sc1")
    TT, RS2 = 160, 176
    vm.wait('e')
    a(f"v_lshlrev_b32 v{DS}, 16, v{DS}")
    for r in range(16): a(f"v_lshlrev_b32 v{XV+r}, 16, v{XV+r}")
    a("s_mov_b32 s15, 0xffff0000")
    def rnd_pair(r0, r1):
        a(f"v_cvt_pk_bf16_f32 v{r1}, v{r0}, v{r1}")
        a(f"v_lshlrev_b32 v{r0}, 16, v{r1}")
        a(f"v_and_b32 v{r1}, s15, v{r1}")
    for r in range(16): a(f"v_sub_f32 v{TT+r}, v{XV+r}, v{STT+2*r}")
    for k in range(8): rnd_pair(TT + 2 * k, TT + 2 * k + 1)
    for r in range(16): a(f"v_mul_f32 v{TT+r}, v{TT+r}, v{STT+2*r+1}")
    for k in range(8): rnd_pair(TT + 2 * k, TT + 2 * k + 1)
    for r in range(16): a(f"v_mul_f32 v{TT+r}, v{TT+r}, v{DS}")
    for k in range(8): rnd_pair(TT + 2 * k, TT + 2 * k + 1)
    for r in range(16): a(f"v_mul_f32 v{RS2+r}, v{STT+2*r+1}, v{STT+2*r+1}")
    vm.wait_all()
    a("s_mov_b64 exec, 1")
    vm.issue('f', f"buffer_store_dword v{vOne}, v{vF}, s[{SRD_WS}:{SRD_WS+3}], 0 offen offset:128 sc1")
    a("s_mov_b64 exec, -1")
    ts(8)
    AF = [192, 208]; AS = [224, 240]
    BF = [40, 48]
    PD = cfg.pd
    AR = list(range(56, 96, 4)) + list(range(112, 160, 4))
    assert PD <= len(AR)
    AR = AR[:PD]
    WB = [1, 2]; CB = [3, 4, 5, 6]
    WC = [7, 8]; CC = [7, 8, 9, 10]
    a(f"v_bfe_u32 v{T+2}, v0, 2, 2")
    a(f"v_lshl_add_u32 v{T+3}, v{vH}, 2, v{T+2}")
    a(f"v_lshlrev_b32 v{T+3}, 7, v{T+3}")
    a(f"v_lshrrev_b32 v{T+2}, 1, v{T+2}")
    a(f"v_lshl_add_u32 v{T+3}, v{T+2}, 6, v{T+3}")
    a(f"v_bfe_u32 v{T+2}, v0, 4, 1")
    a(f"v_lshl_add_u32 v{T+3}, v{T+2}, 5, v{T+3}")
    a(f"v_and_b32 v{T+2}, 3, v0")
    a(f"v_lshl_add_u32 v{T+3}, v{T+2}, 3, v{T+3}")
    a(f"v_add_u32 v{WB[0]}, s53, v{T+3}")
    a(f"v_xor_b32 v{WB[1]}, 64, v{WB[0]}")
    a(f"v_bfe_u32 v{T+2}, v0, 1, 3")
    a(f"v_xor_b32 v{T+2}, v{T+2}, v{vH}")
    a(f"v_lshlrev_b32 v{T+2}, 4, v{T+2}")
    a(f"v_lshl_add_u32 v{T+2}, v{vI}, 7, v{T+2}")
    a(f"v_add_u32 v{T+2}, s53, v{T+2}")
    for ks in range(4): a(f"v_xor_b32 v{CB[ks]}, {32*ks}, v{T+2}")
    def aload(kk):
        if kk % 4 == 0: a(f"s_add_u32 s54, s52, {kk*1024}")
        d = AR[kk % PD]
        vm.issue(('a', kk), f"buffer_load_dwordx4 v[{d}:{d+3}], v{vL16}, s[{SRD_WS}:{SRD_WS+3}], s54 offen offset:{(kk%4)*1024} sc1")
    def breads(kk):
        j, ks = kk // 4, kk % 4
        f = BF[kk & 1]
        L = []
        if ks == 0:
            if j < 14:
                for ct in range(2): L.append(f"v_add_u32 v{WC[ct]}, {PS[j%8]}, v{WB[ct]}")
            else:
                for k2 in range(4): L.append(f"v_add_u32 v{CC[k2]}, {PS[j%8]}, v{CB[k2]}")
        for ct in range(2):
            if j < 14:
                for jj in range(2):
                    d = f + 4 * ct + 2 * jj
                    L.append(f"ds_read_b64_tr_b16 v[{d}:{d+1}], v{WC[ct]} offset:{ks*2048 + jj*1024}")
            else:
                d = f + 4 * ct
                L.append(f"ds_read_b128 v[{d}:{d+3}], v{CC[ks]} offset:{ct*4096}")
        return L
    a("s_barrier")
    ts(9)
    for kk in range(PD): aload(kk)
    for t in breads(0): a(t)
    for kk in range(84):
        vm.wait(('a', kk), "lgkmcnt(0)")
        f = BF[kk & 1]; d = AR[kk % PD]
        acc = AF if kk < 56 else AS
        first = kk in (0, 56)
        def mf(ct):
            c = "0" if first else f"v[{acc[ct]}:{acc[ct]+15}]"
            a(f"v_mfma_f32_32x32x16_bf16 v[{acc[ct]}:{acc[ct]+15}], v[{d}:{d+3}], v[{f+4*ct}:{f+4*ct+3}], {c}")
        mf(0)
        if kk + 1 < 84:
            if (kk + 1) % 8 == 0: a("s_barrier")
            for t in breads(kk + 1): a(t)
        mf(1)
        if kk + PD < 84: aload(kk + PD)
    ts(10)
    a(f"s_lshl_b32 s11, s{S_W4}, 13")
    a(f"s_xor_b32 s12, s11, {2 << 13}")
    a(f"v_add_u32 v{T+2}, s11, v{vL16}")
    a(f"v_add_u32 v{T+3}, s12, v{vL16}")
    a(f"s_cmp_ge_u32 s{S_W4}, 2")
    a("s_cbranch_scc1 L_c_kh1")
    a("s_nop 7")
    def send(ct):
        for k in range(4): a(f"ds_write_b128 v{T+2}, v[{AF[ct]+4*k}:{AF[ct]+4*k+3}] offset:{XCH_L + 1024*k}")
        for k in range(4): a(f"ds_write_b128 v{T+2}, v[{AS[ct]+4*k}:{AS[ct]+4*k+3}] offset:{XCH_L + 4096 + 1024*k}")
    send(1)
    a("s_branch L_c_x")
    a.label("L_c_kh1")
    a("s_nop 15")
    send(0)
    for r in range(16): a(f"v_mov_b32 v{AF[0]+r}, v{AF[1]+r}")
    for r in range(16): a(f"v_mov_b32 v{AS[0]+r}, v{AS[1]+r}")
    a.label("L_c_x")
    a("s_waitcnt lgkmcnt(0)")
    a("s_barrier")
    RX = 40
    for k in range(8): a(f"ds_read_b128 v[{RX+4*k}:{RX+4*k+3}], v{T+3} offset:{XCH_L + 1024*k}")
    a(f"s_mov_b32 s13, {LOG2E ^ 0x80000000:#x}")
    a("s_waitcnt lgkmcnt(4)")
    O, SS, EX = AF[0], AS[0], AF[1]
    for r in range(16): a(f"v_add_f32 v{O+r}, v{O+r}, v{RX+r}")
    for r in range(16): a(f"v_mul_f32 v{O+r}, v{O+r}, v{RS2+r}")
    for k in range(8): rnd_pair(O + 2 * k, O + 2 * k + 1)
    for r in range(16): a(f"v_mul_f32 v{EX+r}, s13, v{O+r}")
    for r in range(16): a(f"v_exp_f32 v{EX+r}, v{EX+r}")
    for r in range(16): a(f"v_add_f32 v{EX+r}, 1.0, v{EX+r}")
    for r in range(16): a(f"v_rcp_f32 v{EX+r}, v{EX+r}")
    a("s_waitcnt lgkmcnt(0)")
    for r in range(16): a(f"v_add_f32 v{SS+r}, v{SS+r}, v{RX+16+r}")
    for r in range(16): a(f"v_mul_f32 v{O+r}, v{O+r}, v{EX+r}")
    for k in range(8): rnd_pair(O + 2 * k, O + 2 * k + 1)
    for r in range(16): a(f"v_add_f32 v{SS+r}, v{SS+r}, v{TT+r}")
    for r in range(16):
        a(f"v_fma_f32 v{O+r}, v{SS+r}, v{O+r}, v{XV+r}")
        if r % 2 == 0: a(f"s_mov_b32 s11, {r*1792}")
        a(f"buffer_store_dword v{O+r}, v{vO}, s[{SRD_E}:{SRD_E+3}], s11 offen offset:{(r%2)*1792}")
    ts(11)
    if cfg.ts:
        a("s_waitcnt vmcnt(0)")
        ts(12)
    ts.dump(T, T + 1)
    a("s_endpgm")

HEADER = """; Fused S5-SSM + ReGLU block, one launch: 224 main workgroups (4 MFMA waves + 4 loader waves) + 32 helper workgroups.
; @launch grid=(256,1,1) block=(512,1,1) lds=163840
.amdgcn_target "amdgcn-amd-amdhsa--gfx950"
.text
.globl {k}
.p2align 8
.type {k},@function
{k}:
"""
FOOTER = """.section .rodata,"a"
.p2align 6
.amdhsa_kernel {k}
  .amdhsa_next_free_vgpr 256
  .amdhsa_next_free_sgpr 102
  .amdhsa_accum_offset 256
  .amdhsa_group_segment_fixed_size 0
  .amdhsa_kernarg_size 128
  .amdhsa_user_sgpr_count 2
  .amdhsa_user_sgpr_kernarg_segment_ptr 1
  .amdhsa_system_sgpr_workgroup_id_x 1
  .amdhsa_float_denorm_mode_32 3
.end_amdhsa_kernel
"""

def generate(cfg):
    a = Asm()
    ts = TS(a, cfg)
    gen_entry(a, cfg, ts)
    gen_consumer(a, cfg, ts)
    gen_loader(a, cfg, ts)
    gen_helper(a, cfg, ts)
    a.label("L_exit")
    a("s_endpgm")
    return HEADER.format(k=KNAME) + a.text() + FOOTER.format(k=KNAME)

if __name__ == "__main__":
    cfg = Cfg()
    out = sys.argv[1]
    for kv in sys.argv[2:]:
        k, v = kv.split("=")
        setattr(cfg, k, int(v))
    open(out, "w").write(generate(cfg))
```

```python
import sys, os
sys.path.insert(0, os.path.dirname(os.path.abspath(__file__)))
from asmlib import Asm, VM

KNAME = "recurrent_scan__ssm_conv_s5__glu_gated_reglu__prompt_kernel"

R = [0, 53248, 106496]
MISC = 159744
OFF_WG, OFF_WU, OFF_BB = 32768, 40960, 49152
ST2_L = R[1] + 49152
CAR_L = ST2_L + 512
AGG_L = ST2_L + 1024
CP_L = R[2] + 49152
STATS_L = MISC
C_L = MISC + 2048
KC_L = MISC + 2688
CNT_L = MISC + 3840
Q = 12288

RT_BYTES = 172032
HALF_BYTES = 86016
WS_STATS = 0xB00000
WS_AGG = WS_STATS + 0x4000
WS_FLAG = WS_AGG + 0x8000
WS_CS = WS_FLAG + 0x2000
INIT_N = 128
WS_TS = 0xC00000
WS_SIZE = 0x1000000
SPIN_MAX = 1 << 20

S_WAVE, S_XCD, S_SLOT, S_MT, S_NS, S_M64, S_NT, S_W4 = 3, 4, 5, 6, 7, 8, 9, 10
P_X, P_LRE, P_LIM, P_BRE, P_BIM, P_CRE, P_CIM, P_LDT, P_DSK, P_BX, P_WG, P_WU, P_WD, P_OUT, P_DBG, P_WS = [16 + 2 * i for i in range(16)]
SRD_X, SRD_A, SRD_B, SRD_C, SRD_WS, SRD_E = 48, 52, 56, 60, 64, 68
TS0 = 76

LOG2E = 0x3fb8aa3b
LOG2E_LO = 0x32a57060
LN2 = 0x3f317218
INV2PI = 0x3e22f983

class Cfg:
    ts = 0
    tsset = 0
    pd = 16
    perm = 1
    rot = 2
    ssm_early = 0
    schedn = 0
    polx = 0
    apol = 1
    noa = 0
    nob = 0
    rdstart = 1
    polw = 0
    winn = 0
    r2pre = 1
    tlb = 0
    bd = 4
    pollw = 6
    @property
    def win(self):
        W = lambda a, b: [f"w{p}" for p in range(a, b)]
        return [
            {-1: ["s1:0-3"], 0: ["s1:3-13", "s2:0-8"], 1: ["s2:8-13", "s3"], 2: ["s4", "e"] + W(2, 4), 3: ["s5"] + W(4, 6), 4: ["init", "s6"] + W(6, 8),
             5: ["fetch", "c0", "ch"] + W(8, 11), 6: ["c1", "w0", "w1", "w11", "put"], 7: ["r0", "c2"]},
            {-1: ["s1:0-3"], 0: ["s1:3-13", "s2:0-8"], 1: ["s2:8-13", "s3"], 2: ["s4", "e"] + W(2, 4), 3: ["s5"] + W(4, 7), 4: ["init", "s6"] + W(7, 9),
             5: ["fetch", "c0", "ch"] + W(9, 12), 6: ["c1", "w0", "w1", "put", "r0"], 7: ["c2"]},
            {-1: ["s1"], 0: ["s2", "e"], 1: ["s3"], 2: ["s4"] + W(2, 4), 3: ["s5"] + W(4, 7), 4: ["init", "s6"] + W(7, 9),
             5: ["fetch", "c0", "ch"] + W(9, 12), 6: ["c1", "w0", "w1", "put", "r0"], 7: ["c2"]},
            {-1: ["s1:0-3"], 0: ["s1:3-13", "s2:0-6"], 1: ["s2:6-13", "s3:0-10"], 2: ["s3:10-13", "s4", "e"], 3: ["s5"] + W(2, 5), 4: ["init", "s6"] + W(5, 8),
             5: ["fetch", "c0", "ch"] + W(8, 12), 6: ["c1", "w0", "w1", "put", "r0"], 7: ["c2"]},
        ][self.winn]
    nw1 = 6
    flagr = -1
    xs = 1
    psleep = 4
    ttper = 2
    f2n = 9
    fpre = 1
    a0 = 10
    sprio = 0
    ksig = 12
    opol = 0
    lprio = 3
    w12early = 0
    slab = 0
    spol = 1
    fpol = 1
    pollr = 4
    nw2 = 16
    thr = 15
    hpf = 3
    ky = 2
    @property
    def perms(self):
        return {
            0: [[0, 1, 2, 3, 4, 5, 6]],
            1: [[0, 1, 2, 3, 4, 5, 6], [1, 2, 0, 4, 5, 3, 6], [2, 0, 1, 5, 3, 4, 6]],
            2: [[0, 1, 2, 3, 4, 5, 6], [1, 0, 3, 2, 5, 4, 6]],
            3: [[0, 1, 2, 3, 4, 5, 6], [1, 0, 4, 5, 6, 2, 3], [0, 1, 6, 2, 3, 4, 5]],
            4: [[0, 1, 2, 3, 4, 5, 6], [1, 2, 0, 4, 6, 3, 5], [2, 0, 1, 5, 6, 3, 4]],
            5: [[0, 1, 2, 3, 4, 5, 6], [1, 2, 3, 0, 5, 6, 4], [2, 3, 0, 1, 6, 4, 5], [3, 0, 1, 2, 4, 5, 6]],
        }[self.perm]

def srd(a, d, ptr, nbytes):
    a(f"s_mov_b32 s{d}, s{ptr}")
    a(f"s_and_b32 s{d+1}, s{ptr+1}, 0xffff")
    a(f"s_mov_b32 s{d+2}, {nbytes:#x}")
    a(f"s_mov_b32 s{d+3}, 0x20000")

def srd_sel(a, d, ptr1, ptr0, nbytes):
    a(f"s_cselect_b32 s{d}, s{ptr1}, s{ptr0}")
    a(f"s_cselect_b32 s{d+1}, s{ptr1+1}, s{ptr0+1}")
    a(f"s_and_b32 s{d+1}, s{d+1}, 0xffff")
    a(f"s_mov_b32 s{d+2}, {nbytes:#x}")
    a(f"s_mov_b32 s{d+3}, 0x20000")

class TS:
    def __init__(self, a, cfg):
        self.a, self.on, self.n, self.set = a, cfg.ts, 0, cfg.tsset
    def x(self, setno, i):
        if self.on and self.set == setno: self.emit(i)
    def __call__(self, i):
        if self.on and (self.set == 0 or i in (0, 12)): self.emit(i)
    def emit(self, i):
        if self.on:
            assert i < 13
            self.a(f"{'s_memrealtime' if self.on != 2 else 's_memtime'} s[{TS0+2*i}:{TS0+2*i+1}]")
    def init(self):
        if self.on:
            for i in range(1, 13): self.a(f"s_mov_b32 s{TS0+2*i}, 0")
    def dump(self, vt, vt2):
        if not self.on: return
        a = self.a
        if self.on == 3:
            a("s_waitcnt vmcnt(0) lgkmcnt(0)")
            lab = a.newlabel("L_nod")
            a(f"s_cmp_eq_u32 s{TS0+24}, 0")
            a(f"s_cbranch_scc1 {lab}")
            a(f"s_cmp_lg_u32 s{S_WAVE}, 0")
            a(f"s_cbranch_scc1 {lab}")
            a("s_mov_b64 exec, 1")
            a(f"v_mov_b32 v{vt2}, 0")
            a(f"s_not_b32 s11, s{TS0}")
            a(f"v_mov_b32 v{vt}, s11")
            a(f"global_atomic_umax v{vt2}, v{vt}, s[{P_DBG}:{P_DBG+1}] offset:4 sc1")
            for n, i in enumerate([0, 1, 2, 3, 4, 5, 6, 7, 8, 9, 10, 11, 12]):
                a("s_waitcnt vmcnt(0)")
                a(f"v_mov_b32 v{vt}, s{TS0+2*i}")
                a(f"global_atomic_umax v{vt2}, v{vt}, s[{P_DBG}:{P_DBG+1}] offset:{8+4*n} sc1")
            a("s_waitcnt vmcnt(0)")
            a.label(lab)
            return
        a("s_waitcnt vmcnt(0) lgkmcnt(0)")
        a(f"s_lshl_b32 s11, s2, 9")
        a(f"s_lshl_b32 s12, s{S_WAVE}, 6")
        a("s_add_u32 s11, s11, s12")
        a(f"s_add_u32 s11, s11, {WS_TS:#x}")
        a(f"v_mov_b32 v{vt2}, s11")
        for i in range(13):
            a(f"v_mov_b32 v{vt}, s{TS0+2*i}")
            a(f"buffer_store_dword v{vt}, v{vt2}, s[{SRD_WS}:{SRD_WS+3}], 0 offen offset:{4*i}")
        a("s_waitcnt vmcnt(0)")

def round_bf16(a, dst, src):
    a(f"v_cvt_pk_bf16_f32 v{dst}, v{src}, v{src}")
    a(f"v_lshlrev_b32 v{dst}, 16, v{dst}")

def exp_acc(a, dst, x, t0, t1):
    a(f"s_mov_b32 s13, {LOG2E:#x}")
    a(f"s_mov_b32 s14, {LOG2E_LO:#x}")
    a(f"s_mov_b32 s15, {LN2:#x}")
    a(f"v_mul_f32 v{t0}, s13, v{x}")
    a(f"v_fma_f32 v{t1}, v{x}, s13, -v{t0}")
    a(f"v_fma_f32 v{t1}, v{x}, s14, v{t1}")
    a(f"v_mul_f32 v{t1}, s15, v{t1}")
    a(f"v_exp_f32 v{dst}, v{t0}")
    a(f"v_fma_f32 v{dst}, v{dst}, v{t1}, v{dst}")

def csq(a, dr, di, sr, si, t):
    a(f"v_mul_f32 v{t}, v{si}, v{si}")
    a(f"v_add_f32 v{di}, v{si}, v{si}")
    a(f"v_mul_f32 v{di}, v{di}, v{sr}")
    a(f"v_fma_f32 v{dr}, v{sr}, v{sr}, -v{t}")

def cmul(a, dr, di, ar, ai, br, bi):
    a(f"v_mul_f32 v{dr}, v{ar}, v{br}")
    a(f"v_mul_f32 v{di}, v{ar}, v{bi}")
    a(f"v_fma_f32 v{dr}, -v{ai}, v{bi}, v{dr}")
    a(f"v_fma_f32 v{di}, v{ai}, v{br}, v{di}")

def ssm_const_load(a, vm, t):
    a(f"v_and_b32 v{t+3}, 15, v0")
    a(f"s_lshl_b32 s11, s{S_NS}, 4")
    a(f"v_add_lshl_u32 v{t+3}, v{t+3}, s11, 1")
    vm.issue('sc', f"global_load_ushort v{t}, v{t+3}, s[{P_LRE}:{P_LRE+1}]")
    vm.issue('sc', f"global_load_ushort v{t+1}, v{t+3}, s[{P_LIM}:{P_LIM+1}]")
    vm.issue('sc', f"global_load_ushort v{t+2}, v{t+3}, s[{P_LDT}:{P_LDT+1}]")

def ssm_const_calc(a, t, lr, li, cr=None, ci=None):
    for k in range(3): a(f"v_lshlrev_b32 v{t+k}, 16, v{t+k}")
    exp_acc(a, t + 3, t + 2, t + 4, t + 5)
    round_bf16(a, t + 2, t + 3)
    a(f"v_mul_f32 v{t+3}, v{t+2}, v{t}")
    a(f"v_mul_f32 v{t+6}, v{t+2}, v{t+1}")
    exp_acc(a, t + 7, t + 3, t + 4, t + 5)
    a(f"v_mul_f32 v{t+6}, {INV2PI:#x}, v{t+6}")
    a(f"v_rndne_f32 v{t+4}, v{t+6}")
    a(f"v_sub_f32 v{t+6}, v{t+6}, v{t+4}")
    a(f"v_cos_f32 v{t+4}, v{t+6}")
    a(f"v_sin_f32 v{t+5}, v{t+6}")
    a(f"v_mul_f32 v{lr}, v{t+7}, v{t+4}")
    a(f"v_mul_f32 v{li}, v{t+7}, v{t+5}")
    if cr is not None:
        a(f"v_add_f32 v{t+3}, -1.0, v{lr}")
        a(f"v_mul_f32 v{t+4}, v{t}, v{t}")
        a(f"v_fma_f32 v{t+4}, v{t+1}, v{t+1}, v{t+4}")
        a(f"v_rcp_f32 v{t+4}, v{t+4}")
        a(f"v_mul_f32 v{cr}, v{t+3}, v{t}")
        a(f"v_fma_f32 v{cr}, v{li}, v{t+1}, v{cr}")
        a(f"v_mul_f32 v{ci}, v{li}, v{t}")
        a(f"v_fma_f32 v{ci}, -v{t+3}, v{t+1}, v{ci}")
        a(f"v_add_f32 v{t+4}, v{t+4}, v{t+4}")
        a(f"v_mul_f32 v{cr}, v{cr}, v{t+4}")
        a(f"v_mul_f32 v{ci}, v{ci}, v{t+4}")

def gen_entry(a, cfg, ts):
    a("s_cmp_ge_u32 s2, 256")
    a("s_cbranch_scc1 L_exit")
    ts(0)
    a("s_load_dwordx16 s[16:31], s[0:1], 0")
    a("s_load_dwordx16 s[32:47], s[0:1], 64")
    a("v_lshrrev_b32 v1, 6, v0")
    a("v_and_b32 v0, 63, v0")
    a(f"v_readfirstlane_b32 s{S_WAVE}, v1")
    a(f"s_and_b32 s{S_XCD}, s2, 7")
    a(f"s_lshr_b32 s{S_SLOT}, s2, 3")
    a(f"s_and_b32 s11, s{S_SLOT}, 3")
    a(f"s_lshr_b32 s{S_NT}, s{S_SLOT}, 2")
    a(f"s_and_b32 s12, s{S_XCD}, 1")
    a(f"s_lshl_b32 s12, s12, 2")
    a(f"s_add_u32 s{S_MT}, s12, s11")
    a(f"s_lshr_b32 s12, s{S_XCD}, 1")
    a(f"s_mul_i32 s12, s12, 7")
    a(f"s_add_u32 s{S_NS}, s12, s{S_NT}")
    if cfg.slab:
        a(f"s_mov_b32 s{S_MT}, s{S_XCD}")
        a(f"s_mov_b32 s{S_NS}, s{S_SLOT}")
    a(f"s_lshl_b32 s12, s{S_XCD}, 2")
    a(f"s_add_u32 s{S_M64}, s12, s11")
    a(f"s_and_b32 s{S_W4}, s{S_WAVE}, 3")
    ts.init()
    a(f"s_cmp_ge_u32 s{S_SLOT}, 28")
    a("s_cbranch_scc1 L_helper")
    a(f"s_cmp_lt_u32 s{S_WAVE}, 4")
    a("s_cbranch_scc1 L_consumer")

def gen_helper(a, cfg, ts):
    a.label("L_helper")
    vm = VM(a)
    a(f"s_sub_u32 s73, s{S_SLOT}, 28")
    a(f"s_lshl_b32 s11, s73, 3")
    a(f"s_add_u32 s72, s11, s{S_XCD}")
    a(f"s_cmp_ge_u32 s{S_WAVE}, 4")
    a("s_cbranch_scc1 L_h_pf")
    a(f"s_lshl_b32 s11, s72, 6")
    a(f"s_lshl_b32 s12, s{S_WAVE}, 4")
    a(f"s_add_u32 s11, s11, s12")
    a("v_lshrrev_b32 v2, 3, v0")
    a("v_add_u32 v2, s11, v2")
    a("v_mul_u32_u24 v3, 896, v2")
    a("v_and_b32 v4, 7, v0")
    a("v_lshl_add_u32 v3, v4, 4, v3")
    a("s_waitcnt lgkmcnt(0)")
    srd(a, SRD_X, P_X, 2048 * 896)
    srd(a, SRD_WS, P_WS, WS_SIZE)
    a(f"s_mov_b32 s11, {8*896}")
    for ps in range(2):
        for j in range(7):
            so = "0" if ps == 0 else "s11"
            vm.issue(('x', ps), f"buffer_load_dwordx4 v[{112+28*ps+4*j}:{115+28*ps+4*j}], v3, s[{SRD_X}:{SRD_X+3}], {so} offen offset:{128*j}")
    a(f"s_cmp_gt_u32 s{S_WAVE}, 1")
    a("s_cbranch_scc1 L_h_noreset")
    a(f"s_cmp_eq_u32 s{S_WAVE}, 0")
    a("s_cselect_b32 s11, -1, 0")
    a("s_mov_b32 s12, 256")
    a("s_cmov_b32 s12, 896")
    a(f"s_mov_b32 s13, {WS_FLAG:#x}")
    a(f"s_cmov_b32 s13, {WS_AGG:#x}")
    a("s_mul_i32 s14, s12, s72")
    a("s_add_u32 s13, s13, s14")
    for k in range(4): a(f"v_mov_b32 v{8+k}, s11")
    a("v_lshlrev_b32 v12, 4, v0")
    a("v_cmp_gt_u32 vcc, s12, v12")
    a("s_and_saveexec_b64 s[14:15], vcc")
    a(f"buffer_store_dwordx4 v[8:11], v12, s[{SRD_WS}:{SRD_WS+3}], s13 offen sc1")
    a("s_mov_b64 exec, s[14:15]")
    a.label("L_h_noreset")
    a("s_nop 1")
    a("v_lshlrev_b32 v2, 3, v2")
    a("s_mov_b32 s12, 0xffff0000")
    def fin(dst):
        a("v_add_f32 v8, v8, v9")
        a("v_add_f32 v10, v10, v11")
        a(f"v_add_f32 v{dst}, v8, v10")
        a(f"v_add_f32_dpp v{dst}, v{dst}, v{dst} quad_perm:[1,0,3,2] row_mask:0xf bank_mask:0xf")
        a(f"v_add_f32_dpp v{dst}, v{dst}, v{dst} quad_perm:[2,3,0,1] row_mask:0xf bank_mask:0xf")
        a(f"v_add_f32_dpp v{dst}, v{dst}, v{dst} row_half_mirror row_mask:0xf bank_mask:0xf")
        a(f"v_mul_f32 v{dst}, 0x3b124925, v{dst}")
    for ps in range(2):
        vm.wait(('x', ps))
        src = 112 + 28 * ps
        for k in range(28):
            a(f"v_lshlrev_b32 v{48+2*k}, 16, v{src+k}")
            a(f"v_and_b32 v{49+2*k}, s12, v{src+k}")
        a("v_pk_add_f32 v[8:9], v[48:49], v[52:53]")
        a("v_pk_add_f32 v[10:11], v[50:51], v[54:55]")
        for k in range(4, 28): a(f"v_pk_add_f32 v[{8+2*(k%2)}:{9+2*(k%2)}], v[{8+2*(k%2)}:{9+2*(k%2)}], v[{48+2*k}:{49+2*k}]")
        fin(12)
        for k in range(28): a(f"v_pk_add_f32 v[{48+2*k}:{49+2*k}], v[{48+2*k}:{49+2*k}], v[12:13] op_sel_hi:[1,0] neg_lo:[0,1] neg_hi:[0,1]")
        for k in range(2): a(f"v_pk_mul_f32 v[{8+2*k}:{9+2*k}], v[{48+2*k}:{49+2*k}], v[{48+2*k}:{49+2*k}]")
        for k in range(2, 28): a(f"v_pk_fma_f32 v[{8+2*(k%2)}:{9+2*(k%2)}], v[{48+2*k}:{49+2*k}], v[{48+2*k}:{49+2*k}], v[{8+2*(k%2)}:{9+2*(k%2)}]")
        fin(13)
        o = 14 + 2 * ps
        round_bf16(a, o, 12)
        round_bf16(a, 13, 13)
        a("v_add_f32 v13, 0x3727c5ac, v13")
        round_bf16(a, 13, 13)
        a("v_sqrt_f32 v13, v13")
        round_bf16(a, 13, 13)
        a(f"v_rcp_f32 v{o+1}, v13")
        a("v_cmp_eq_u32 vcc, 0, v4")
        a("s_and_saveexec_b64 s[14:15], vcc")
        a(f"s_mov_b32 s11, {WS_STATS:#x}")
        vm.issue('st', f"buffer_store_dwordx2 v[{o}:{o+1}], v2, s[{SRD_WS}:{SRD_WS+3}], s11 offen offset:{64*ps} sc1")
        a("s_mov_b64 exec, s[14:15]")
    a("s_waitcnt vmcnt(0)")
    a("v_mov_b32 v8, 0")
    a("v_mov_b32 v9, 1")
    a("s_mov_b64 exec, 1")
    a(f"global_atomic_add v8, v9, s[{P_DBG}:{P_DBG+1}] sc1")
    a("s_mov_b64 exec, -1")
    ts(1)
    ts.dump(8, 9)
    a("s_endpgm")
    a.label("L_h_pf")
    a("v_lshlrev_b32 v2, 4, v0")
    a(f"s_lshl_b32 s11, s{S_W4}, 10")
    a("v_add_u32 v2, s11, v2")
    a("s_waitcnt lgkmcnt(0)")
    srd(a, SRD_WS, P_WS, WS_SIZE)
    if cfg.hpf:
        for (ptr, nbytes, srdn) in ((P_CRE, 448 * 896, 48), (P_CIM, 448 * 896, 52), (P_WD, 1792 * 896, 56)):
            srd(a, srdn, ptr, nbytes)
        def sweep(name, srds, qbytes, first, count):
            n8 = -(-qbytes // (8 * 4096))
            n = 8 * n8
            a(f"s_mul_i32 s12, s73, {qbytes}")
            a(f"s_add_u32 s13, s{S_XCD}, {first}")
            a("s_and_b32 s13, s13, 7")
            a(f"s_mul_i32 s13, s13, {n8}")
            a("s_mov_b32 s14, 0")
            a.label(name)
            a("s_lshl_b32 s11, s13, 12")
            a("s_add_u32 s11, s11, s12")
            for k, sr in enumerate(srds):
                a(f"buffer_load_dwordx4 v[{16+4*k}:{19+4*k}], v2, s[{sr}:{sr+3}], s11 offen")
            a("s_add_u32 s13, s13, 1")
            a(f"s_cmp_eq_u32 s13, {n}")
            a("s_cselect_b32 s13, 0, s13")
            a("s_add_u32 s14, s14, 1")
            a(f"s_cmp_lt_u32 s14, {n8 * count}")
            a(f"s_cbranch_scc1 {name}")
        sweep("L_h_p1", [48, 52], 448 * 896 // 4, 0, 1)
        sweep("L_h_p2", [56], 1792 * 896 // 4, 0, 1)
        ts(2)
        if cfg.hpf == 3:
            sweep("L_h_p3", [48, 52], 448 * 896 // 4, 1, 7)
            ts(3)
    ts.dump(8, 9)
    a("s_endpgm")

def spin_check(a, name, load_text_list, cond_fn, sleep=1):
    lo, done = a.newlabel(name + "_spin"), a.newlabel(name + "_ok")
    a(f"s_mov_b32 s73, 0")
    a.label(lo)
    cond_fn()
    a(f"s_cbranch_scc1 {done}")
    a("s_add_u32 s73, s73, 1")
    a(f"s_cmp_ge_u32 s73, {SPIN_MAX}")
    a(f"s_cbranch_scc1 {done}")
    a(f"s_sleep {sleep}")
    for t in load_text_list: a(t)
    a("s_waitcnt vmcnt(0)")
    a(f"s_branch {lo}")
    a.label(done)
    a("s_nop 4")

def interleave(a, prim, fill, per):
    fill = list(fill)
    for p in prim:
        p()
        for _ in range(per):
            if fill: a(fill.pop(0))
    for f in fill: a(f)

def p2_rot(a, cfg, d_ffn, d_blk, d_flip):
    if not cfg.rot:
        for d in (d_ffn, d_blk, d_flip): a(f"s_mov_b32 s{d}, 0")
        return
    if cfg.rot == 2:
        a(f"s_and_b32 s11, s{S_SLOT}, 3")
        a(f"s_lshl_b32 s{d_ffn}, s11, 1")
        for d in (d_blk, d_flip): a(f"s_mov_b32 s{d}, 0")
        return
    a(f"s_and_b32 s11, s{S_SLOT}, 3")
    a("s_lshl_b32 s11, s11, 1")
    a(f"s_add_u32 s11, s11, s{S_NT}")
    a("s_cmp_ge_u32 s11, 7")
    a("s_cselect_b32 s13, 7, 0")
    a(f"s_sub_u32 s{d_ffn}, s11, s13")
    a(f"s_lshr_b32 s11, s{S_NT}, 1")
    a(f"s_and_b32 s13, s{S_SLOT}, 3")
    a("s_add_u32 s11, s11, s13")
    a("s_mul_i32 s13, s11, 43")
    a("s_lshr_b32 s13, s13, 7")
    a("s_mul_i32 s13, s13, 3")
    a(f"s_sub_u32 s{d_blk}, s11, s13")
    a(f"s_and_b32 s{d_flip}, s{S_NT}, 1")

def slot(reg, n): return R[reg] + 2048 * n
SA = [slot(1, n) for n in range(6)]; SB = [slot(2, n) for n in range(6)]; SC = [slot(0, n) for n in range(6)]
WSLOT = {0: SB[4], 1: SB[5], 26: SA[4], 27: SA[5]}
for n in range(6): WSLOT[2 + n] = SC[n]
for n in range(4): WSLOT[8 + n] = SB[n]; WSLOT[12 + n] = SA[n]
for p, sl in zip(range(16, 26), [SB[4], SB[5]] + SC + [SB[0], SB[1]]): WSLOT[p] = sl
HTS = SA[4]
PH1, PH2, GA, FXA = SA[0], SB[2], SB[0], SC[0]

def gen_loader(a, cfg, ts):
    a.label("L_loader")
    a("s_setprio 3")
    vm = VM(a)
    vXe, vXo, vW, vB = 1, 2, 3, 4
    vFv, vP, vO, vPQ = 5, 6, 7, 8
    vWd, vCe, vCo, vCh = 9, 10, 11, 12
    vRf, vRh = 13, 14
    vA, vC = 24, 25
    vT = 15
    ACC, CA, RD = 27, 28, 44
    STG = 64
    CF = 144
    SACC = 80
    XRAW = CF + 64
    sMX, sMW, sMB, sMP = 72, 74, 75, 70
    sPerm, sSX, sSW = 68, 69, 15
    sRF = 14
    AP = ['', ' sc1', ' sc1 nt', ' sc0 sc1', ' sc0', ' nt'][cfg.apol]
    OP = ['', ' sc1', ' nt', ' sc1 nt'][cfg.opol]
    polx = " nt" if cfg.polx else ""
    polw = " nt" if cfg.polw else ""
    a(f"v_lshrrev_b32 v{vA}, 3, v0")
    a(f"v_and_b32 v{vC}, 7, v0")
    a(f"v_lshrrev_b32 v{vT+2}, 1, v{vA}")
    a(f"s_lshl_b32 s11, s{S_W4}, 4")
    a(f"v_add_u32 v{vT}, s11, v{vA}")
    a(f"v_mul_u32_u24 v{vW}, 3584, v{vT}")
    a(f"v_and_b32 v{vT+4}, 1, v{vT+2}")
    a(f"v_lshlrev_b32 v{vT+4}, 2, v{vT+4}")
    a(f"v_xor_b32 v{vT+4}, v{vC}, v{vT+4}")
    a(f"v_lshl_add_u32 v{vW}, v{vT+4}, 4, v{vW}")
    a(f"s_lshl_b32 s11, s{S_NS}, 7")
    a(f"v_add_u32 v{vW}, s11, v{vW}")
    a(f"s_lshl_b32 s11, s{S_MT}, 8")
    a(f"s_lshl_b32 s12, s{S_W4}, 6")
    a("s_add_u32 s11, s11, s12")
    a(f"v_lshrrev_b32 v{vT}, 2, v{vA}")
    a(f"v_and_b32 v{vT+1}, 3, v{vA}")
    a(f"v_lshl_add_u32 v{vT}, v{vT}, 4, v{vT+1}")
    a(f"v_add_u32 v{vT}, s11, v{vT}")
    a(f"v_mul_u32_u24 v{vXe}, 896, v{vT}")
    a(f"v_xor_b32 v{vT+3}, v{vC}, v{vT+2}")
    a(f"v_lshl_add_u32 v{vXe}, v{vT+3}, 4, v{vXe}")
    a(f"v_xor_b32 v{vXo}, 64, v{vXe}")
    a(f"s_and_b32 s12, s{S_W4}, 1")
    a(f"s_lshl_b32 s11, s{S_NS}, 4")
    a(f"s_lshl_b32 s13, s12, 3")
    a("s_add_u32 s11, s11, s13")
    a(f"v_add_u32 v{vT}, s11, v{vA}")
    a(f"v_mul_u32_u24 v{vB}, 896, v{vT}")
    a(f"v_lshl_add_u32 v{vB}, v{vT+3}, 4, v{vB}")
    a("s_lshl_b32 s13, s12, 6")
    a(f"v_xor_b32 v{vB}, s13, v{vB}")
    a(f"s_lshl_b32 s{sMX}, s{S_W4}, 13")
    a(f"s_lshl_b32 s{sMW}, s{S_W4}, 11")
    a(f"s_lshl_b32 s{sMB}, s{S_W4}, 10")
    a(f"s_mul_i32 s{sMP}, s{S_W4}, {Q}")
    perms = cfg.perms
    words = [sum(p[k] << (4 * k) for k in range(7)) for p in perms]
    ng = len(words)
    a(f"s_mov_b32 s{sPerm}, {words[0]:#x}")
    if ng > 1:
        if cfg.slab:
            a(f"s_add_u32 s11, s{S_SLOT}, s{S_XCD}")
        else:
            a(f"s_and_b32 s11, s{S_SLOT}, 3")
            a(f"s_add_u32 s11, s11, s{S_NT}")
        if ng == 3:
            a("s_mul_i32 s13, s11, 43")
            a("s_lshr_b32 s13, s13, 7")
            a("s_mul_i32 s13, s13, 3")
            a("s_sub_u32 s11, s11, s13")
        else:
            a(f"s_and_b32 s11, s11, {ng-1}")
        for g in range(1, ng):
            a(f"s_cmp_eq_u32 s11, {g}")
            a(f"s_cmov_b32 s{sPerm}, {words[g]:#x}")
    ts.x(1, 1)
    a("s_waitcnt lgkmcnt(0)")
    ts.x(1, 2)
    if cfg.tlb:
        a(f"v_mov_b32 v40, s{P_X}")
        a(f"v_mov_b32 v41, s{P_X+1}")
        for ln, p in enumerate([P_WG, P_WU, P_BRE, P_BIM, P_WD, P_CRE, P_CIM, P_WS][:cfg.tlb], 1):
            a(f"v_writelane_b32 v40, s{p}, {ln}")
            a(f"v_writelane_b32 v41, s{p+1}, {ln}")
        a(f"s_mov_b64 exec, {(1 << (cfg.tlb + 1)) - 1:#x}")
        a("global_load_dword v62, v[40:41], off")
        a("s_mov_b64 exec, -1")
    srd(a, SRD_A, P_WG, 448 * 3584)
    srd(a, SRD_X, P_X, 2048 * 896)
    srd(a, SRD_B, P_WU, 448 * 3584)
    a(f"s_cmp_ge_u32 s{S_W4}, 2")
    srd_sel(a, SRD_C, P_BIM, P_BRE, 448 * 896)

    thr = [None]
    def dma(vm, tag, voff, srdn, sbase, soff, m0base, m0off, pol=""):
        a(f"s_add_u32 m0, s{m0base}, {m0off}")
        a(f"s_add_u32 s11, s{sbase}, {soff}")
        if thr[0] is not None and len(vm.q) > thr[0]:
            a(f"s_waitcnt vmcnt({thr[0]})")
            vm.q = vm.q[-thr[0]:]
        vm.issue(tag, f"buffer_load_dwordx4 v{voff}, s[{srdn}:{srdn+3}], s11 offen{pol} lds")
    def issue_ops(s):
        r = R[s % 3]
        ops = []
        def pre():
            a(f"s_bfe_u32 s{sSX}, s{sPerm}, {(4 << 16) | (4 * s):#x}")
            a(f"s_mul_i32 s{sSW}, s{sSX}, {64*3584}")
            a(f"s_lshl_b32 s{sSX}, s{sSX}, 7")
        def mk(*args): return lambda: dma(vm, ('st', s), *args)
        L = []
        for i in range(2): L.append(mk(vW, SRD_A, sSW, i * 8 * 3584, sMW, r + OFF_WG + i * 1024, polw))
        for j in range(4): L.append(mk(vXo if j & 1 else vXe, SRD_X, sSX, (32 * (j >> 2) + 4 * (j & 3)) * 896, sMX, r + j * 1024, polx))
        for i in range(2): L.append(mk(vW, SRD_B, sSW, i * 8 * 3584, sMW, r + OFF_WU + i * 1024, polw))
        for j in range(4, 8): L.append(mk(vXo if j & 1 else vXe, SRD_X, sSX, (32 * (j >> 2) + 4 * (j & 3)) * 896, sMX, r + j * 1024, polx))
        L.append(mk(vB, SRD_C, sSX, 0, sMB, r + OFF_BB, polw))
        first = L[0]
        L[0] = lambda: (pre(), first())
        return L
    SRD_WD, SRD_CC, sBlk, sFlip, P_DSK2 = 32, 28, 20, 25, 18
    def w_ops(ps):
        L = []
        for p in ps:
            for n in range(2):
                def op(p=p, n=n):
                    if n == 0:
                        a(f"s_add_u32 s12, s{sRF}, {p // 4}")
                        a("s_cmp_ge_u32 s12, 7")
                        a("s_cselect_b32 s13, 7, 0")
                        a("s_sub_u32 s12, s12, s13")
                        a(f"s_mul_i32 s12, s12, {64*896}")
                    if 2 <= p < 12:
                        d = STG + (p - 2) * 8 + 4 * n
                        a(f"s_add_u32 s11, s12, {((p % 4) * 16 + 8 * n) * 896}")
                        vm.issue(('w', p), f"buffer_load_dwordx4 v[{d}:{d+3}], v{vWd}, s[{SRD_WD}:{SRD_WD+3}], s11 offen")
                    else:
                        dma(vm, ('w', p), vWd, SRD_WD, 12, ((p % 4) * 16 + 8 * n) * 896, sMP, WSLOT[p] + n * 1024)
                L.append(op)
        return L
    def cf_ops(b, base):
        L = []
        for n in range(8):
            def op(n=n):
                if n == 0: a(f"s_mov_b32 s12, {b*128}")
                dma(vm, ('c', b), vCo if n & 1 else vCe, SRD_CC, 12, 8 * n * 896, sMP, base + n * 1024)
            L.append(op)
        return L
    def ch_ops(base):
        L = []
        for n in range(4):
            def op(n=n):
                if n == 0: a("s_mov_b32 s12, 0")
                dma(vm, ('c', 3), vCh, SRD_CC, 12, 16 * n * 896, sMP, base + n * 1024)
            L.append(op)
        return L
    def cf_read(b, base):
        a(f"s_add_u32 s11, s{sMP}, {base}")
        vm.wait(('c', b))
        for ks in range(4):
            for lc in range(2):
                t = vT + lc
                a(f"v_xor_b32 v{t}, {32*ks + 4096*lc}, v{vRf}")
                a(f"v_add_u32 v{t}, s11, v{t}")
                d = CF + (4 * b + ks) * 8 + 4 * lc
                a(f"ds_read_b128 v[{d}:{d+3}], v{t}")
    def ch_read(base):
        a(f"s_add_u32 s11, s{sMP}, {base}")
        vm.wait(('c', 3))
        for lc in range(2):
            a(f"v_xor_b32 v{vT+lc}, {2048*lc}, v{vRh}")
            a(f"v_add_u32 v{vT+lc}, s11, v{vT+lc}")
            for ks in range(2):
                d = CF + (12 + ks) * 8 + 4 * lc
                a(f"ds_read_b128 v[{d}:{d+3}], v{vT+lc} offset:{ks*32}")
    def w_write(ps):
        vm.wait(('w', ps[-1]))
        base = WSLOT[ps[0]]
        a(f"v_add_u32 v{vT+4}, {base}, v{vPQ}")
        for p in ps:
            for n in range(2):
                d = STG + (p - 2) * 8 + 4 * n
                a(f"ds_write_b128 v{vT+4}, v[{d}:{d+3}] offset:{WSLOT[p] - base + 1024*n}")
    def colsum_reads(s):
        r = R[s % 3]
        a(f"s_add_u32 s11, s{sMW}, {r + OFF_WG}")
        a(f"v_add_u32 v{vT}, s11, v{vP}")
        a(f"s_add_u32 s11, s{sMB}, {r + OFF_BB}")
        a(f"v_add_u32 v{vT+1}, s11, v{vP}")
        a(f"ds_read_b128 v[{RD}:{RD+3}], v{vT}")
        a(f"ds_read_b128 v[{RD+4}:{RD+7}], v{vT} offset:1024")
        a(f"ds_read_b128 v[{RD+8}:{RD+11}], v{vT} offset:8192")
        a(f"ds_read_b128 v[{RD+12}:{RD+15}], v{vT} offset:9216")
        a(f"ds_read_b128 v[{RD+16}:{RD+19}], v{vT+1}")
    def colsum_ops():
        L = ["s_waitcnt lgkmcnt(0)"]
        for n in range(4):
            for d in range(4):
                w = RD + 4 * n + d
                ac = CA + (n >> 1) * 8 + 2 * d
                L.append(f"v_lshlrev_b32 v{vT+2}, 16, v{w}")
                L.append(f"v_and_b32 v{vT+3}, s71, v{w}")
                L.append(f"v_add_f32 v{ac}, v{ac}, v{vT+2}")
                L.append(f"v_add_f32 v{ac+1}, v{ac+1}, v{vT+3}")
        for d in range(4):
            w = RD + 16 + d
            L.append(f"v_lshlrev_b32 v{vT+2}, 16, v{w}")
            L.append(f"v_and_b32 v{vT+3}, s71, v{w}")
            L.append(f"v_add_f32 v{vT+2}, v{vT+2}, v{vT+3}")
            L.append(f"v_add_f32 v{ACC}, v{ACC}, v{vT+2}")
        return L

    stage_ops = {}
    def tok_ops(toks):
        L = []
        for t in toks:
            if t[0] == 's':
                st = int(t[1])
                if st not in stage_ops: stage_ops[st] = issue_ops(st)
                lo, hi = (0, 13) if ':' not in t else map(int, t.split(':')[1].split('-'))
                L += stage_ops[st][lo:hi]
            elif t[0] == 'w': L += w_ops([int(t[1:])])
            elif t == 'c0': L += cf_ops(0, SA[0])
            elif t == 'c1': L += cf_ops(1, SB[0])
            elif t == 'c2': L += [lambda: a("s_waitcnt lgkmcnt(0)")] + cf_ops(2, SA[0])
            elif t == 'ch': L += ch_ops(SA[4])
            else: L.append(lambda t=t: special(t))
        return L
    def run_tokens(toks):
        for o in tok_ops(toks): o()
    def special(t):
        if True:
            if t == 'r0':
                cf_read(0, SA[0]); ch_read(SA[4])
            elif t == 'put':
                vm.wait('stats')
                a(f"s_lshl_b32 s11, s{S_W4}, 9")
                a(f"s_add_u32 s11, s11, {STATS_L}")
                a(f"v_lshl_add_u32 v{vT+4}, v0, 3, s11")
                a(f"ds_write_b64 v{vT+4}, v[20:21]")
                a(f"v_lshlrev_b32 v{vT+4}, 3, v0")
                a(f"v_add_u32 v{vT+4}, {ST2_L}, v{vT+4}")
                a(f"ds_write_b64 v{vT+4}, v[22:23]")
            elif t == 'e':
                a(f"s_add_u32 s12, s27, {16*896}")
                vm.issue('e', f"buffer_load_dwordx4 v[{XRAW}:{XRAW+3}], v{XRAW+9}, s[{SRD_X}:{SRD_X+3}], s27 offen")
                vm.issue('e', f"buffer_load_dwordx4 v[{XRAW+4}:{XRAW+7}], v{XRAW+9}, s[{SRD_X}:{SRD_X+3}], s12 offen")
                vm.issue('e', f"global_load_ushort v{XRAW+8}, v{XRAW+10}, s[{P_DSK2}:{P_DSK2+1}]")
            elif t == 'init':
                a(f"v_mov_b32 v26, 0")
                vm.issue('init', f"global_load_dword v5, v26, s[{P_DBG}:{P_DBG+1}] sc1")
            elif t == 'fetch':
                vm.wait('init')
                def cond():
                    a(f"v_readfirstlane_b32 s11, v5")
                    a(f"s_cmp_ge_u32 s11, {INIT_N}")
                spin_check(a, "L_init", [f"global_load_dword v5, v26, s[{P_DBG}:{P_DBG+1}] sc1"], cond, 8)
                a(f"s_lshl_b32 s11, s{S_MT}, 8")
                a(f"s_lshl_b32 s12, s{S_W4}, 6")
                a("s_add_u32 s11, s11, s12")
                a(f"v_add_lshl_u32 v5, v0, s11, 3")
                a(f"s_lshl_b32 s12, s{S_M64}, 6")
                a(f"v_add_lshl_u32 v26, v0, s12, 3")
                a(f"s_mov_b32 s11, {WS_STATS:#x}")
                vm.issue('stats', f"buffer_load_dwordx2 v[20:21], v5, s[{SRD_WS}:{SRD_WS+3}], s11 offen sc1")
                vm.issue('stats', f"buffer_load_dwordx2 v[22:23], v26, s[{SRD_WS}:{SRD_WS+3}], s11 offen sc1")
            else: raise ValueError(t)
    win = cfg.win
    run_tokens(["s0"])
    ts(1)
    ts.x(1, 6)
    run_tokens(win.get(-1, []))
    a("s_setprio 0")
    a(f"s_and_b32 s12, s{S_W4}, 1")
    a(f"v_lshlrev_b32 v{vP}, 4, v0")
    a(f"v_add_u32 v{vPQ}, s{sMP}, v{vP}")
    a(f"s_mul_i32 s14, s{S_W4}, 448")
    a(f"v_add_u32 v{vT}, s14, v{vA}")
    a(f"v_mul_u32_u24 v{vWd}, 896, v{vT}")
    a(f"v_lshl_add_u32 v{vWd}, v{vT+4}, 4, v{vWd}")
    a(f"s_lshl_b32 s14, s{S_NT}, 7")
    a(f"v_add_u32 v{vWd}, s14, v{vWd}")
    a(f"s_lshl_b32 s14, s{S_NT}, 6")
    a(f"v_add_u32 v{vT}, s14, v{vA}")
    a(f"v_mul_u32_u24 v{vCe}, 896, v{vT}")
    a(f"v_lshl_add_u32 v{vCe}, v{vT+3}, 4, v{vCe}")
    a("s_lshl_b32 s13, s12, 9")
    a(f"v_add_u32 v{vCe}, s13, v{vCe}")
    a(f"v_xor_b32 v{vCo}, 64, v{vCe}")
    a(f"v_lshrrev_b32 v{vT}, 2, v0")
    a(f"v_add_u32 v{vT}, s14, v{vT}")
    a(f"v_mul_u32_u24 v{vCh}, 896, v{vT}")
    a(f"v_and_b32 v{vT+1}, 3, v0")
    a(f"v_lshl_add_u32 v{vCh}, v{vT+1}, 4, v{vCh}")
    a("s_lshl_b32 s13, s12, 6")
    a("s_add_u32 s13, s13, 384")
    a(f"v_add_u32 v{vCh}, s13, v{vCh}")
    a("s_mov_b32 s71, 0xffff0000")
    for k in range(17): a(f"v_mov_b32 v{ACC+k}, 0")
    srd(a, SRD_WS, P_WS, WS_SIZE)
    a(f"s_cmp_ge_u32 s{S_W4}, 2")
    srd_sel(a, SRD_CC, P_CIM, P_CRE, 448 * 896)
    a(f"s_mov_b64 s[{P_DSK2}:{P_DSK2+1}], s[{P_DSK}:{P_DSK+1}]")
    srd(a, SRD_WD, P_WD, 1792 * 896)
    p2_rot(a, cfg, sRF, sBlk, sFlip)
    a(f"s_lshl_b32 s11, s{S_M64}, 1")
    a("s_add_u32 s26, s11, s12")
    a("s_lshl_b32 s12, s26, 5")
    a(f"v_lshrrev_b32 v{vT}, 2, v0")
    a(f"v_add_u32 v{vT}, s12, v{vT}")
    a(f"v_mul_u32_u24 v{vT}, 896, v{vT}")
    a(f"v_lshl_add_u32 v{XRAW+9}, v{vT+1}, 4, v{vT}")
    a(f"v_lshrrev_b32 v{vT+2}, 5, v0")
    a(f"v_lshl_add_u32 v{vT}, v{vT+2}, 4, s12")
    a(f"s_lshr_b32 s13, s{S_W4}, 1")
    a("s_lshl_b32 s12, s13, 5")
    a(f"s_lshl_b32 s11, s{S_NT}, 6")
    a("s_add_u32 s11, s11, s12")
    a("s_lshl_b32 s27, s11, 1")
    a(f"v_and_b32 v{vT+3}, 31, v0")
    a(f"v_add_u32 v{vT+1}, s11, v{vT+3}")
    a(f"v_mul_u32_u24 v{vT}, 448, v{vT}")
    a(f"v_add_lshl_u32 v{vO}, v{vT}, v{vT+1}, 2")
    a(f"v_lshlrev_b32 v{XRAW+10}, 1, v{vT+1}")
    a(f"v_bfe_u32 v{vT}, v0, 1, 3")
    a(f"v_xor_b32 v{vT}, v{vT}, v{vT+2}")
    a(f"v_lshlrev_b32 v{vT}, 4, v{vT}")
    a(f"v_lshl_add_u32 v{vRf}, v{vT+3}, 7, v{vT}")
    a("s_lshl_b32 s12, s13, 12")
    a(f"v_add_u32 v{vRf}, s12, v{vRf}")
    a(f"v_lshlrev_b32 v{vT}, 4, v{vT+2}")
    a(f"v_lshl_add_u32 v{vRh}, v{vT+3}, 6, v{vT}")
    a("s_lshl_b32 s12, s13, 11")
    a(f"v_add_u32 v{vRh}, s12, v{vRh}")
    a(f"v_bfe_u32 v{vT}, v0, 4, 1")
    a(f"v_lshlrev_b32 v{vT+1}, 2, v{vT}")
    a(f"v_xor_b32 v{vC}, v{vC}, v{vT+1}")
    a(f"v_lshlrev_b32 v{vC}, 5, v{vC}")
    a(f"v_lshl_add_u32 v{vC}, v{vT}, 9, v{vC}")
    a(f"v_lshl_add_u32 v{vC}, v{vT+2}, 8, v{vC}")
    a(f"s_add_u32 s11, s{sMB}, {CP_L}")
    a(f"v_add_u32 v{vC}, s11, v{vC}")
    a(f"s_lshl_b32 s11, s{S_W4}, 5")
    a(f"s_add_u32 s11, s11, {C_L + 512}")
    a(f"v_lshl_add_u32 v{vA}, v{vA}, 2, s11")
    a(f"s_lshl_b32 s21, s{S_NS}, 7")
    a(f"s_mul_i32 s22, s{S_MT}, 3584")
    a("s_add_u32 s22, s22, s21")
    a(f"s_add_u32 s22, s22, {WS_AGG:#x}")
    a(f"s_mov_b32 s23, {WS_AGG:#x}")
    a(f"s_mov_b32 s24, {WS_AGG + 4*3584:#x}")
    ts.x(1, 8)
    for s in range(7):
        vm.wait(('st', s))
        ts.x(2, 1 + s)
        a("s_barrier")
        ts.x(3, 1 + s)
        if s == 0: ts(2)
        colsum_reads(s)
        ops = tok_ops(win.get(s, []))
        fl = colsum_ops()
        if s == 6:
            b = ACC
            for k in range(8): fl.append(f"v_permlane32_swap_b32 v{CA+k}, v{CA+8+k}")
            fl.append(f"v_add_f32_dpp v{b}, v{b}, v{b} quad_perm:[1,0,3,2] row_mask:0xf bank_mask:0xf")
            for k in range(8): fl.append(f"v_add_f32 v{CA+k}, v{CA+k}, v{CA+8+k}")
            fl.append(f"v_add_f32_dpp v{b}, v{b}, v{b} quad_perm:[2,3,0,1] row_mask:0xf bank_mask:0xf")
            for k in range(8): fl.append(f"v_add_f32_dpp v{CA+k}, v{CA+k}, v{CA+k} row_ror:8 row_mask:0xf bank_mask:0xf")
            fl.append(f"v_add_f32_dpp v{b}, v{b}, v{b} row_half_mirror row_mask:0xf bank_mask:0xf")
            fl.append(f"ds_write_b128 v{vC}, v[{CA}:{CA+3}]")
            fl.append(f"ds_write_b128 v{vC}, v[{CA+4}:{CA+7}] offset:16")
            fl.append(f"ds_write_b32 v{vA}, v{b}")
        per = max(1, -(-len(fl) // max(1, len(ops))))
        interleave(a, ops, fl, per)
    a(f"s_and_b32 s12, s{S_W4}, 1")
    a("s_lshl_b32 s12, s12, 8")
    a(f"v_lshl_add_u32 v{vT}, v0, 2, s12")
    a(f"v_add_u32 v{vT+1}, {CP_L}, v{vT}")
    a(f"v_add_u32 v{vT}, {C_L}, v{vT}")
    a("s_waitcnt lgkmcnt(0)")
    ts.x(2, 8)
    a("s_setprio 3")
    a("s_barrier")
    ts(3)
    ts.x(3, 8)
    QQ = 28
    for p in range(8): a(f"ds_read_b32 v{QQ+p}, v{vT+1} offset:{512*p}")
    a("s_waitcnt lgkmcnt(0)")
    for p in range(4): a(f"v_add_f32 v{QQ+p}, v{QQ+p}, v{QQ+4+p}")
    a(f"v_add_f32 v{QQ}, v{QQ}, v{QQ+2}")
    a(f"v_add_f32 v{QQ+1}, v{QQ+1}, v{QQ+3}")
    a(f"v_add_f32 v{QQ}, v{QQ}, v{QQ+1}")
    a(f"ds_write_b32 v{vT}, v{QQ}")
    a("s_waitcnt lgkmcnt(0)")
    a("s_barrier")
    run_tokens(win.get(7, []))
    a("s_setprio 0")
    vCh8, vAg, vPr, vFl = 1, 2, 3, 4
    vCar, vSt = 30, 31
    LR, LI, W0R = 20, 21, 24
    a(f"v_and_b32 v{vCh8}, 15, v0")
    a(f"v_lshlrev_b32 v{vCh8}, 3, v{vCh8}")
    a(f"v_add_u32 v{vT}, {KC_L}, v{vCh8}")
    a(f"ds_read_b64 v[{LR}:{LI}], v{vT}")
    a(f"v_add_u32 v{vT+1}, {KC_L + 128}, v{vP}")
    a(f"ds_read_b128 v[{W0R}:{W0R+3}], v{vT+1}")
    w_write([2, 3, 4, 5, 6, 7])
    cf_read(1, SB[0])
    w_write([8, 9, 10, 11])
    a(f"v_add_u32 v{vAg}, {AGG_L}, v{vCh8}")
    a(f"v_lshrrev_b32 v{vPr}, 4, v0")
    a(f"s_sub_u32 s11, s{S_MT}, 1")
    a(f"v_sub_u32 v{vT}, s11, v{vPr}")
    a(f"v_cmp_le_i32 s[56:57], 0, v{vT}")
    a(f"v_cmp_le_i32 s[58:59], 4, v{vT}")
    a(f"v_mul_u32_u24 v{vPr}, 3584, v{vPr}")
    a(f"v_add3_u32 v{vPr}, v{vPr}, v{vCh8}, s21")
    a(f"v_min_u32 v{vFl}, 27, v0")
    a(f"v_lshlrev_b32 v{vFl}, 2, v{vFl}")
    a(f"s_lshl_b32 s74, s{S_M64}, 8")
    a(f"s_add_u32 s74, s74, {WS_FLAG:#x}")
    a(f"v_lshlrev_b32 v{vCar}, 3, v0")
    a(f"v_add_u32 v{vCar}, {CAR_L}, v{vCar}")
    XV, STT, DS = 64, 80, 60
    TT = SACC + 32
    a(f"v_add_u32 v{vT+4}, {HTS}, v{vPQ}")
    a(f"ds_write_b128 v{vT+4}, v[{XRAW}:{XRAW+3}]")
    a(f"ds_write_b128 v{vT+4}, v[{XRAW+4}:{XRAW+7}] offset:1024")
    a(f"v_lshlrev_b32 v{DS}, 16, v{XRAW+8}")
    if cfg.r2pre: cf_read(2, SA[0])
    GR, GI = 22, 23
    a(f"v_mov_b32 v{GR}, 1.0")
    a(f"v_mov_b32 v{GI}, 0")
    a(f"v_and_b32 v{vT}, 16, v0")
    a(f"v_cmp_ne_u32 vcc, 0, v{vT}")
    a("s_waitcnt lgkmcnt(15)")
    a(f"v_cndmask_b32 v{GR}, v{GR}, v{LR}, vcc")
    a(f"v_cndmask_b32 v{GI}, v{GI}, v{LI}, vcc")
    csq(a, 28, 29, LR, LI, vT)
    cmul(a, vT, vT + 1, GR, GI, 28, 29)
    a(f"v_cmp_lt_u32 vcc, 31, v0")
    a(f"v_cndmask_b32 v{GR}, v{GR}, v{vT}, vcc")
    a(f"v_cndmask_b32 v{GI}, v{GI}, v{vT+1}, vcc")
    vm.wait(('w', 1))
    a("s_waitcnt lgkmcnt(0)")
    ts.x(2, 9)
    a(f"s_setprio {cfg.lprio}")
    a("s_barrier")
    ts(4)
    a(f"s_cmp_lg_u32 s{S_W4}, 0")
    a("s_cbranch_scc1 L_l_nocomb")
    E, SR, SI, T1, T2, G0, G1, QR, QI = 32, 40, 41, 42, 43, 44, 46, 48, 49
    for i in range(4): a(f"ds_read_b64 v[{E+2*i}:{E+2*i+1}], v{vAg} offset:{128*i}")
    a(f"v_mov_b32 v{QR}, 0")
    a(f"v_mov_b32 v{QI}, 0")
    for i in range(1, 4):
        e, p = E + 2 * i, E + 2 * (i - 1)
        a(f"s_waitcnt lgkmcnt({3 - i})")
        a(f"v_fma_f32 v{e}, -v{LI}, v{p+1}, v{e}")
        a(f"v_fma_f32 v{e+1}, v{LI}, v{p}, v{e+1}")
        a(f"v_fmac_f32 v{e}, v{LR}, v{p}")
        a(f"v_fmac_f32 v{e+1}, v{LR}, v{p+1}")
    e = E + 6
    a(f"v_cmp_eq_u32 vcc, -1, v{e}")
    a(f"v_mov_b32 v{T1}, 0x7fc00000")
    a(f"v_cndmask_b32 v{e}, v{e}, v{T1}, vcc")
    a("s_mov_b64 exec, 0xffff")
    a(f"buffer_store_dwordx2 v[{e}:{e+1}], v{vCh8}, s[{SRD_WS}:{SRD_WS+3}], s22 offen sc1")
    for g in range(1, 4):
        m = 0xffff << (16 * g)
        a(f"s_mov_b32 exec_lo, {m & 0xffffffff:#x}")
        a(f"s_mov_b32 exec_hi, {m >> 32:#x}")
        a(f"v_mov_b32 v{QR}, v{E+2*(g-1)}")
        a(f"v_mov_b32 v{QI}, v{E+2*(g-1)+1}")
    a("s_mov_b64 exec, -1")
    ts(5)
    a.label("L_l_nocomb")
    if cfg.r2pre:
        for o in w_ops(range(12, 14)): o()
    else:
        cf_read(2, SA[0])
    ts.x(2, 10)
    a("s_barrier")
    thr[0] = cfg.thr
    lds = [f"buffer_load_dwordx2 v[{G0}:{G0+1}], v{vPr}, s[{SRD_WS}:{SRD_WS+3}], s23 offen sc1",
           f"buffer_load_dwordx2 v[{G1}:{G1+1}], v{vPr}, s[{SRD_WS}:{SRD_WS+3}], s24 offen sc1"]
    for o in w_ops(range(16, 26)): o()
    a("s_waitcnt lgkmcnt(0)")
    for o in w_ops(range(14 if cfg.r2pre else 12, 16)): o()
    ts(8)
    a(f"s_cmp_lg_u32 s{S_W4}, 0")
    a("s_cbranch_scc1 L_l_np0")
    for t in lds: a(t)
    a.label("L_l_np0")
    a(f"v_lshrrev_b32 v{vSt}, 5, v0")
    a(f"v_lshlrev_b32 v{vT+4}, 10, v{vSt}")
    a(f"v_and_b32 v{vT}, 31, v0")
    a(f"v_lshl_add_u32 v{vT+4}, v{vT}, 1, v{vT+4}")
    a(f"s_add_u32 s11, s{sMP}, {HTS}")
    a(f"v_add_u32 v{vT+4}, s11, v{vT+4}")
    for r in range(16): a(f"ds_read_u16 v{XV+r}, v{vT+4} offset:{64*r}")
    a(f"s_cmp_lg_u32 s{S_W4}, 0")
    a("s_cbranch_scc1 L_l_nopoll")
    a("s_waitcnt vmcnt(0)")
    def cond():
        a(f"v_cmp_eq_u32 vcc, -1, v{G0}")
        a("s_and_b64 s[48:49], vcc, s[56:57]")
        a(f"v_cmp_eq_u32 vcc, -1, v{G1}")
        a("s_and_b64 s[50:51], vcc, s[58:59]")
        a("s_or_b64 s[48:49], s[48:49], s[50:51]")
        a("s_cmp_eq_u64 s[48:49], 0")
    spin_check(a, "L_agg", lds, cond)
    ts(6)
    cmul(a, SR, SI, G0, G0 + 1, W0R, W0R + 1)
    cmul(a, T1, T2, G1, G1 + 1, W0R + 2, W0R + 3)
    a(f"v_cndmask_b32 v{SR}, 0, v{SR}, s[56:57]")
    a(f"v_cndmask_b32 v{SI}, 0, v{SI}, s[56:57]")
    a(f"v_cndmask_b32 v{T1}, 0, v{T1}, s[58:59]")
    a(f"v_cndmask_b32 v{T2}, 0, v{T2}, s[58:59]")
    a(f"v_add_f32 v{SR}, v{SR}, v{T1}")
    a(f"v_add_f32 v{SI}, v{SI}, v{T2}")
    for sw in ("v_permlane32_swap_b32", "v_permlane16_swap_b32"):
        a(f"v_mov_b32 v{T1}, v{SR}")
        a(f"v_mov_b32 v{T2}, v{SI}")
        a(f"{sw} v{SR}, v{T1}")
        a(f"{sw} v{SI}, v{T2}")
        a(f"v_add_f32 v{SR}, v{SR}, v{T1}")
        a(f"v_add_f32 v{SI}, v{SI}, v{T2}")
    a(f"v_fmac_f32 v{QR}, v{GR}, v{SR}")
    a(f"v_fmac_f32 v{QI}, v{GR}, v{SI}")
    a(f"v_fma_f32 v{QR}, -v{GI}, v{SI}, v{QR}")
    a(f"v_fmac_f32 v{QI}, v{GI}, v{SR}")
    a(f"ds_write_b64 v{vCar}, v[{QR}:{QI}]")
    a.label("L_l_nopoll")
    a("s_setprio 0")
    a("s_waitcnt lgkmcnt(0)")
    a("s_barrier")
    ts(7)
    a(f"s_and_b32 s11, s{S_W4}, 1")
    a("s_lshl_b32 s11, s11, 8")
    a(f"s_add_u32 s11, s11, {ST2_L}")
    a(f"v_lshl_add_u32 v{vSt}, v{vSt}, 7, s11")
    for k in range(8): a(f"ds_read_b128 v[{STT+4*k}:{STT+4*k+3}], v{vSt} offset:{16*k}")
    vm.wait_all("lgkmcnt(0)")
    a("s_barrier")
    def rnd_pair(r0, r1):
        a(f"v_cvt_pk_bf16_f32 v{r1}, v{r0}, v{r1}"); a(f"v_lshlrev_b32 v{r0}, 16, v{r1}"); a(f"v_and_b32 v{r1}, s71, v{r1}")
    for r in range(16): a(f"v_lshlrev_b32 v{XV+r}, 16, v{XV+r}")
    for r in range(16): a(f"v_sub_f32 v{TT+r}, v{XV+r}, v{STT+2*r}")
    for k in range(8): rnd_pair(TT + 2 * k, TT + 2 * k + 1)
    for r in range(16): a(f"v_mul_f32 v{TT+r}, v{TT+r}, v{STT+2*r+1}")
    for k in range(8): rnd_pair(TT + 2 * k, TT + 2 * k + 1)
    for r in range(16): a(f"v_mul_f32 v{TT+r}, v{TT+r}, v{DS}")
    for k in range(8): rnd_pair(TT + 2 * k, TT + 2 * k + 1)
    def poll(name, off):
        ld = f"buffer_load_dword v{vFv}, v{vFl}, s[{SRD_WS}:{SRD_WS+3}], s74 offen offset:{off} sc1"
        vm.issue(name, ld)
        vm.wait(name)
        def cond():
            a(f"v_cmp_ne_u32 vcc, 1, v{vFv}")
            a("s_cmp_eq_u64 vcc, 0")
        spin_check(a, name, [ld], cond, cfg.psleep)
    a(f"s_mul_i32 s57, s26, {RT_BYTES}")
    a("s_xor_b32 s11, s26, 1")
    a(f"s_mul_i32 s56, s11, {RT_BYTES}")
    a(f"s_lshr_b32 s11, s{S_W4}, 1")
    a(f"s_mul_i32 s11, s11, {HALF_BYTES}")
    a(f"s_add_u32 s11, s11, {56*1024}")
    a("s_add_u32 s56, s56, s11")
    a("s_add_u32 s57, s57, s11")
    a(f"s_and_b32 s12, s{S_W4}, 1")
    a("s_lshl_b32 s13, s12, 14")
    for b in range(3):
        a(f"s_add_u32 s11, s{sBlk}, {b}")
        a("s_cmp_ge_u32 s11, 3")
        a("s_cselect_b32 s22, 3, 0")
        a("s_sub_u32 s11, s11, s22")
        a("s_lshl_b32 s11, s11, 12")
        a(f"s_add_u32 s{52+b}, s11, s13")
    a("s_lshl_b32 s12, s12, 11")
    a(f"s_add_u32 s55, s12, {12*1024}")
    srd(a, 60, P_OUT, 2048 * 1792)
    vW1, vW2, vCn, vCv = 1, 2, 9, 10
    vR = [11, 12, 13, 14]
    a(f"v_add_u32 v{vW1}, {PH1}, v{vPQ}")
    a(f"v_add_u32 v{vW2}, {PH2}, v{vPQ}")
    a(f"v_mov_b32 v{vCn}, {CNT_L}")
    for (reg, xr, base) in ((vR[0], 1, PH1), (vR[1], 3, PH1 + 4096), (vR[2], 2, PH2)):
        a(f"s_xor_b32 s11, s{S_W4}, {xr}")
        a(f"s_mul_i32 s11, s11, {Q}")
        a(f"s_add_u32 s11, s11, {base}")
        a(f"v_add_u32 v{reg}, s11, v{vP}")
    a(f"v_add_u32 v{vR[3]}, {GA}, v{vPQ}")
    ts.x(2, 11)
    AR = list(range(16, 64, 4))
    NA = len(AR)
    def aload(n):
        lr, p = n // 14, n % 14
        if p % 4 == 0: a(f"s_add_u32 s58, s{56+lr}, s{52 + p//4}")
        d = AR[n % NA]
        vm.issue(('a', n), f"buffer_load_dwordx4 v[{d}:{d+3}], v{vP}, s[{SRD_WS}:{SRD_WS+3}], s58 offen offset:{(p%4)*1024}{AP}")
    def cnt_wait(name, off):
        a("s_mov_b32 s73, 0")
        a.label(name)
        a("s_waitcnt lgkmcnt(0)")
        a(f"v_readfirstlane_b32 s11, v{vCv}")
        a("s_cmp_ge_u32 s11, 4")
        a(f"s_cbranch_scc1 {name}ok")
        a("s_add_u32 s73, s73, 1")
        a(f"s_cmp_ge_u32 s73, {SPIN_MAX}")
        a(f"s_cbranch_scc1 {name}ok")
        a("s_sleep 1")
        a(f"ds_read_b32 v{vCv}, v{vCn} offset:{off}")
        a(f"s_branch {name}")
        a.label(name + "ok")
        a("s_nop 7")
    a(f"ds_read_b32 v{vCv}, v{vCn} offset:4")
    cnt_wait("L_l_c0", 4)
    if cfg.sprio: a(f"s_setprio {cfg.sprio}")
    poll("L_ps", 128)
    ts(9)
    ts.x(7, 1)
    for n in range(NA): aload(n)
    a("s_setprio 0")
    ts.x(7, 2)
    for n in range(28):
        lr, p = n // 14, n % 14
        vm.wait(('a', n))
        if n in (0, 7, 14, 21): ts.x(7, 3 + n // 7)
        d = AR[n % NA]
        for lc in (1, 0):
            acc = SACC + 32 * lr + 16 * lc
            c = "0" if (p == 0 and not (lr == 1 and lc == 0)) else f"v[{acc}:{acc+15}]"
            f = CF + 8 * p + 4 * lc
            a(f"v_mfma_f32_32x32x16_bf16 v[{acc}:{acc+15}], v[{d}:{d+3}], v[{f}:{f+3}], {c}")
        if n + NA < 28: aload(n + NA)
        if 16 <= n < 24:
            k = n - 16
            a(f"ds_write_b128 v{vW1}, v[{SACC+4*k}:{SACC+4*k+3}] offset:{1024*k}")
    ts(10)
    ts.x(7, 7)
    ts.x(7, 8)
    for k in range(4):
        a(f"ds_write_b128 v{vW2}, v[{SACC+48+4*k}:{SACC+48+4*k+3}] offset:{1024*k}")
    a("s_waitcnt lgkmcnt(0)")
    ts.x(7, 9)
    a("s_barrier")
    ts(11)
    ts.x(7, 10)
    RX = CF
    for k in range(4):
        for w in range(4):
            a(f"ds_read_b128 v[{RX+16*w+4*k}:{RX+16*w+4*k+3}], v{vR[w]} offset:{1024*k}")
    for k in range(4):
        a(f"s_waitcnt lgkmcnt({12 - 4*k})")
        for r in range(4 * k, 4 * k + 4):
            a(f"v_add_f32 v{TT+r}, v{TT+r}, v{RX+r}")
            a(f"v_add_f32 v{RX+16+r}, v{RX+16+r}, v{RX+32+r}")
        for r in range(4 * k, 4 * k + 4):
            a(f"v_add_f32 v{TT+r}, v{TT+r}, v{RX+16+r}")
        for r in range(4 * k, 4 * k + 4):
            a(f"v_fma_f32 v{XV+r}, v{TT+r}, v{RX+48+r}, v{XV+r}")
            if r % 2 == 0: a(f"s_mov_b32 s11, {r*1792}")
            a(f"buffer_store_dword v{XV+r}, v{vO}, s[60:63], s11 offen offset:{(r%2)*1792}{OP}")
    if cfg.ts:
        a("s_waitcnt vmcnt(0)")
        ts(12)
    ts.dump(16, 17)
    a("s_endpgm")

def gen_consumer(a, cfg, ts):
    a.label("L_consumer")
    SP = ["", " sc1", " nt", " sc1 nt"][cfg.spol]
    FP = ["", " sc1"][cfg.fpol]
    AP = ['', ' sc1', ' sc1 nt', ' sc0 sc1', ' sc0', ' nt'][cfg.apol]
    vm = VM(a)
    XA = [1, 2, 3, 4]; BA = [5, 6, 7, 8]; WA = [9, 10]
    LR, LI, CR, CI = 12, 13, 14, 15
    T = 16
    FS = [40, 68]
    ACC = 96
    def G(ft, q): return ACC + 16 * (2 * ft + q)
    def U(ft, q): return ACC + 64 + 16 * (2 * ft + q)
    def S(q): return ACC + 128 + 16 * q
    vI, vH = T, T + 1
    a(f"v_and_b32 v{vI}, 31, v0")
    a(f"v_lshrrev_b32 v{vH}, 5, v0")
    ts.x(1, 1)
    a("s_waitcnt lgkmcnt(0)")
    ts.x(1, 2)
    K = 40
    a(f"s_lshl_b32 s11, s{S_NS}, 5")
    a(f"s_load_dwordx8 s[48:55], s[{P_LRE}:{P_LRE+1}], s11")
    a(f"s_load_dwordx8 s[56:63], s[{P_LIM}:{P_LIM+1}], s11")
    a(f"s_load_dwordx8 s[64:71], s[{P_LDT}:{P_LDT+1}], s11")
    for k in range(160): a(f"v_mov_b32 v{ACC+k}, 0")
    a("s_mov_b32 s12, 0x00030003")
    a("s_mov_b32 s13, 0x00030003")
    a("s_waitcnt lgkmcnt(0)")
    ts.x(1, 4)
    for k in range(8):
        a(f"s_lshl_b64 exec, s[12:13], {2*k}")
        for m in range(3): a(f"v_mov_b32 v{K+m}, s{48+8*m+k}")
    a("s_mov_b64 exec, -1")
    a(f"v_and_b32 v{K+3}, 1, v0")
    a(f"v_lshlrev_b32 v{K+3}, 4, v{K+3}")
    for m in range(3): a(f"v_lshrrev_b32 v{K+m}, v{K+3}, v{K+m}")
    srd(a, SRD_WS, P_WS, WS_SIZE)
    a(f"v_bfe_u32 v{T+2}, v0, 1, 3")
    a(f"v_xor_b32 v{T+2}, v{T+2}, v{vH}")
    a(f"v_lshlrev_b32 v{T+2}, 4, v{T+2}")
    a(f"v_lshl_add_u32 v{T+2}, v{vI}, 7, v{T+2}")
    a(f"s_lshl_b32 s11, s{S_W4}, 13")
    for ks in range(4):
        a(f"v_xor_b32 v{T+3}, {32*ks}, v{T+2}")
        a(f"v_add_u32 v{XA[ks]}, s11, v{T+3}")
        a(f"v_add_u32 v{BA[ks]}, {OFF_BB}, v{T+3}")
    a(f"v_bfe_u32 v{T+2}, v0, 2, 2")
    a(f"v_lshl_add_u32 v{T+3}, v{vH}, 3, v{T+2}")
    a(f"v_lshlrev_b32 v{T+3}, 7, v{T+3}")
    a(f"v_lshrrev_b32 v{T+2}, 1, v{T+2}")
    a(f"v_lshl_add_u32 v{T+3}, v{T+2}, 6, v{T+3}")
    a(f"v_bfe_u32 v{T+2}, v0, 4, 1")
    a(f"v_lshl_add_u32 v{T+3}, v{T+2}, 5, v{T+3}")
    a(f"v_and_b32 v{T+2}, 3, v0")
    a(f"v_lshl_add_u32 v{T+3}, v{T+2}, 3, v{T+3}")
    a(f"v_add_u32 v{WA[0]}, {OFF_WG}, v{T+3}")
    a(f"v_xor_b32 v{WA[1]}, 64, v{WA[0]}")
    vRun8, vStS, vCB, vStF, vL16, vCL = T + 2, T + 3, T + 4, T + 5, T + 6, T + 7
    vF, vO, vXo, vSo, vDo, vTW, vTR = T + 8, T + 9, T + 10, T + 11, T + 12, T + 13, T + 14
    MM = T + 16
    HR, HI, T1, T2 = T + 18, T + 19, T + 20, T + 21
    CBR, CBI = T + 22, T + 23
    t0, t1 = 60, 61
    a(f"v_bfe_u32 v{t0}, v0, 4, 1")
    a(f"v_lshl_add_u32 v{t0}, v{t0}, 1, v{vH}")
    a(f"s_mul_i32 s62, s{S_W4}, {Q}")
    a(f"s_add_u32 s12, s62, {HTS}")
    a(f"v_and_b32 v{t1}, 15, v0")
    a(f"v_and_b32 v{vTW}, 6, v{t1}")
    a(f"v_lshlrev_b32 v{vTW}, 4, v{vTW}")
    a(f"v_lshlrev_b32 v{vTR}, 5, v{t0}")
    a(f"v_xor_b32 v{vTW}, v{vTW}, v{vTR}")
    a(f"v_lshl_add_u32 v{vTW}, v{t1}, 7, v{vTW}")
    a(f"v_add_u32 v{vTW}, s12, v{vTW}")
    a(f"s_lshl_b32 s11, s{S_W4}, 2")
    a(f"v_add_u32 v{t0}, s11, v{t0}")
    a(f"v_lshlrev_b32 v{t0}, 7, v{t0}")
    a(f"v_add_u32 v{vStS}, {STATS_L}, v{t0}")
    a(f"s_lshl_b32 s11, s{S_W4}, 7")
    a(f"s_add_u32 s11, s11, {AGG_L}")
    a(f"v_lshl_add_u32 v{vRun8}, v{t1}, 3, s11")
    a(f"v_lshlrev_b32 v{vCB}, 2, v{t1}")
    a(f"v_add_u32 v{vCB}, {C_L + 512}, v{vCB}")
    a(f"v_bfe_u32 v{t0}, v0, 2, 1")
    a(f"v_lshlrev_b32 v{t0}, 4, v{t0}")
    a(f"v_and_b32 v{t1}, 3, v0")
    a(f"v_add_u32 v{t0}, v{t0}, v{t1}")
    a(f"v_bfe_u32 v{t1}, v0, 3, 2")
    a(f"v_lshl_add_u32 v{t0}, v{t1}, 2, v{t0}")
    a(f"s_lshl_b32 s11, s{S_W4}, 9")
    a(f"s_add_u32 s11, s11, {STATS_L}")
    a(f"v_lshl_add_u32 v{vStF}, v{t0}, 3, s11")
    a(f"v_lshlrev_b32 v{vL16}, 4, v0")
    a(f"v_lshlrev_b32 v{vCL}, 4, v{vH}")
    a(f"v_add_u32 v{vCL}, {C_L}, v{vCL}")
    a(f"v_bfe_u32 v{t0}, v0, 2, 2")
    a(f"v_lshl_add_u32 v{t1}, v{vH}, 3, v{t0}")
    a(f"v_lshlrev_b32 v{vTR}, 7, v{t1}")
    a(f"v_lshrrev_b32 v{t0}, 1, v{t0}")
    a(f"v_xor_b32 v{t0}, v{t0}, v0")
    a(f"v_and_b32 v{t0}, 1, v{t0}")
    a(f"v_lshl_add_u32 v{vTR}, v{t0}, 5, v{vTR}")
    a(f"v_bfe_u32 v{t0}, v0, 4, 1")
    a(f"v_lshl_add_u32 v{vTR}, v{t0}, 4, v{vTR}")
    a(f"v_bfe_u32 v{t0}, v0, 1, 1")
    a(f"v_lshl_add_u32 v{vTR}, v{t0}, 3, v{vTR}")
    a(f"v_add_u32 v{vTR}, s12, v{vTR}")
    a(f"s_lshl_b32 s11, s{S_MT}, 3")
    a(f"s_lshl_b32 s12, s{S_W4}, 1")
    a("s_add_u32 s11, s11, s12")
    a(f"s_mul_i32 s58, s11, {RT_BYTES}")
    a(f"s_cmp_ge_u32 s{S_NS}, 14")
    a(f"s_cselect_b32 s11, {HALF_BYTES - 56*1024}, 0")
    a(f"s_lshl_b32 s12, s{S_NS}, 12")
    a("s_add_u32 s11, s11, s12")
    a("s_add_u32 s56, s58, s11")
    a(f"s_add_u32 s57, s56, {RT_BYTES}")
    a(f"s_lshl_b32 s11, s{S_NS}, 10")
    a("s_add_u32 s58, s58, s11")
    a(f"s_add_u32 s58, s58, {56*1024}")
    a(f"s_lshl_b32 s11, s{S_MT}, 2")
    a(f"s_add_u32 s11, s11, s{S_W4}")
    a("s_lshl_b32 s11, s11, 8")
    a(f"s_lshl_b32 s12, s{S_NS}, 2")
    a("s_add_u32 s11, s11, s12")
    a(f"s_add_u32 s11, s11, {WS_FLAG:#x}")
    a(f"v_mov_b32 v{vF}, s11")
    a(f"s_and_b32 s12, s{S_W4}, 1")
    a(f"s_lshr_b32 s59, s{S_W4}, 1")
    a(f"s_lshl_b32 s11, s{S_M64}, 1")
    a("s_add_u32 s14, s11, s12")
    a("s_lshl_b32 s11, s14, 5")
    a(f"v_lshl_add_u32 v{vSo}, v{vH}, 4, s11")
    a(f"v_and_b32 v{vSo}, 63, v{vSo}")
    a(f"v_lshlrev_b32 v{vSo}, 3, v{vSo}")
    a(f"v_add_u32 v{vSo}, {ST2_L}, v{vSo}")
    a(f"s_lshl_b32 s11, s{S_M64}, 1")
    a(f"s_mul_i32 s52, s11, {RT_BYTES}")
    a(f"s_mul_i32 s53, s59, {HALF_BYTES}")
    a("s_add_u32 s52, s52, s53")
    a(f"s_mul_i32 s53, s12, {28*1024}")
    a("s_add_u32 s52, s52, s53")
    p2_rot(a, cfg, 60, 61, 63)
    vWd, vCn = vO, vXo
    a(f"v_lshrrev_b32 v{t0}, 3, v0")
    a(f"s_mul_i32 s11, s{S_W4}, 448")
    a(f"v_add_u32 v{t0}, s11, v{t0}")
    a(f"v_mul_u32_u24 v{vWd}, 896, v{t0}")
    a(f"v_bfe_u32 v{t0}, v0, 4, 1")
    a(f"v_lshlrev_b32 v{t0}, 2, v{t0}")
    a(f"v_and_b32 v{t1}, 7, v0")
    a(f"v_xor_b32 v{t0}, v{t0}, v{t1}")
    a(f"v_lshl_add_u32 v{vWd}, v{t0}, 4, v{vWd}")
    a(f"s_lshl_b32 s11, s{S_NT}, 7")
    a(f"v_add_u32 v{vWd}, s11, v{vWd}")
    a("s_add_u32 s61, s60, 6")
    a("s_cmp_ge_u32 s61, 7")
    a("s_cselect_b32 s11, 7, 0")
    a("s_sub_u32 s61, s61, s11")
    a(f"s_mul_i32 s61, s61, {64*896}")
    srd(a, 24, P_WD, 1792 * 896)
    a(f"v_mov_b32 v{vCn}, {CNT_L}")
    ts.x(1, 5)
    ssm_const_calc(a, K, LR, LI, CR, CI)
    csq(a, K + 8, K + 9, LR, LI, K)
    for _ in range(3): csq(a, K + 8, K + 9, K + 8, K + 9, K)
    PWR, PWI = 11, T + 15
    L16R, L16I = T + 12, T
    a(f"v_mov_b32 v{PWR}, v{CR}")
    a(f"v_mov_b32 v{PWI}, v{CI}")
    a(f"v_mov_b32 v{K+14}, v{K+8}")
    a(f"v_mov_b32 v{K+15}, v{K+9}")
    a(f"v_mov_b32 v{L16R}, v{K+8}")
    a(f"v_mov_b32 v{L16I}, v{K+9}")
    for b in range(2):
        cmul(a, K + 1, K + 2, PWR, PWI, K + 14, K + 15)
        a(f"v_and_b32 v{K}, {32 >> b}, v0")
        a(f"v_cmp_ne_u32 vcc, 0, v{K}")
        a(f"v_cndmask_b32 v{PWR}, v{PWR}, v{K+1}, vcc")
        a(f"v_cndmask_b32 v{PWI}, v{PWI}, v{K+2}, vcc")
        csq(a, K + 14, K + 15, K + 14, K + 15, K)
    a(f"s_cmp_lg_u32 s{S_W4}, 0")
    a("s_cbranch_scc1 L_c_nok")
    a(f"v_mov_b32 v{K+8}, v{K+14}")
    a(f"v_mov_b32 v{K+9}, v{K+15}")
    for _ in range(2): csq(a, K + 14, K + 15, K + 14, K + 15, K)
    W0 = K + 16
    a(f"v_lshrrev_b32 v{K+10}, 4, v0")
    a(f"s_sub_u32 s11, s{S_MT}, 1")
    a(f"v_sub_u32 v{K+10}, s11, v{K+10}")
    a(f"v_add_u32 v{K+11}, -4, v{K+10}")
    a(f"v_mov_b32 v{W0}, 1.0"); a(f"v_mov_b32 v{W0+1}, 0")
    a(f"v_mov_b32 v{W0+2}, 1.0"); a(f"v_mov_b32 v{W0+3}, 0")
    for b in range(3):
        for (wr, wi, e) in ((W0, W0 + 1, K + 10), (W0 + 2, W0 + 3, K + 11)):
            cmul(a, K + 1, K + 2, wr, wi, K + 14, K + 15)
            a(f"v_and_b32 v{K}, {1 << b}, v{e}")
            a(f"v_cmp_ne_u32 vcc, 0, v{K}")
            a(f"v_cndmask_b32 v{wr}, v{wr}, v{K+1}, vcc")
            a(f"v_cndmask_b32 v{wi}, v{wi}, v{K+2}, vcc")
        if b < 2: csq(a, K + 14, K + 15, K + 14, K + 15, K)
    a(f"v_and_b32 v{K}, 15, v0")
    a(f"v_lshlrev_b32 v{K}, 3, v{K}")
    a(f"v_add_u32 v{K}, {KC_L}, v{K}")
    a(f"ds_write_b64 v{K}, v[{K+8}:{K+9}]")
    a(f"v_add_u32 v{K+1}, {KC_L + 128}, v{vL16}")
    a(f"ds_write_b128 v{K+1}, v[{W0}:{W0+3}]")
    a(f"v_mov_b32 v{K+2}, {CNT_L}")
    a(f"v_mov_b32 v{K+3}, 0")
    a(f"ds_write_b32 v{K+2}, v{K+3}")
    a(f"ds_write_b32 v{K+2}, v{K+3} offset:4")
    a("s_waitcnt lgkmcnt(0)")
    a.label("L_c_nok")
    ts(1)
    ts.x(1, 8)

    def reads(fs, ks):
        f = FS[fs]
        L = []
        L.append(f"ds_read_b128 v[{f}:{f+3}], v{XA[ks]}")
        for j in range(2):
            L.append(f"ds_read_b64_tr_b16 v[{f+8+2*j}:{f+9+2*j}], v{WA[0]} offset:{ks*2048 + j*512}")
        L.append(f"ds_read_b128 v[{f+4}:{f+7}], v{XA[ks]} offset:4096")
        for gu in range(2):
            for ft in range(2):
                if gu == 0 and ft == 0: continue
                for j in range(2):
                    d = f + 8 + 8 * gu + 4 * ft + 2 * j
                    L.append(f"ds_read_b64_tr_b16 v[{d}:{d+1}], v{WA[ft]} offset:{gu*8192 + ks*2048 + j*512}")
        L.append(f"ds_read_b128 v[{f+24}:{f+27}], v{BA[ks]}")
        return L
    def mfmas(fs):
        f = FS[fs]
        X = [f, f + 4]; Bf = f + 24
        L = []
        for gu in range(2):
            for ft in range(2):
                w = f + 8 + 8 * gu + 4 * ft
                for q in range(2):
                    d = (G, U)[gu](ft, q)
                    L.append(f"v_mfma_f32_32x32x16_bf16 v[{d}:{d+15}], v[{w}:{w+3}], v[{X[q]}:{X[q]+3}], v[{d}:{d+15}]")
        for q in range(2):
            L.append(f"v_mfma_f32_32x32x16_bf16 v[{S(q)}:{S(q)+15}], v[{X[q]}:{X[q]+3}], v[{Bf}:{Bf+3}], v[{S(q)}:{S(q)+15}]")
        return L
    a("s_setprio 2")
    a("s_barrier")
    ts(2)
    for t in reads(0, 0): a(t)
    a("s_mov_b32 s72, 0")
    a("s_mov_b32 s74, 0")
    a.label("L_c_loop")
    for ks in range(4):
        fs = ks & 1
        M = mfmas(fs)
        need = {0: 8, 1: 7, 2: 5, 4: 3, 6: 1, 8: 0}
        if ks < 3:
            Rd = reads(1 - fs, ks + 1)
            issued = 0
            for i, m in enumerate(M):
                if i in need: a(f"s_waitcnt lgkmcnt({min(15, need[i] + issued)})")
                a(m)
                for _ in range(2 if i >= cfg.rdstart else 0):
                    if Rd: a(Rd.pop(0)); issued += 1
        else:
            Rd = reads(1 - fs, 0)
            a("s_waitcnt lgkmcnt(8)")
            a(M[0])
            a("s_add_u32 s74, s74, 1")
            a("s_cmp_eq_u32 s74, 3")
            a("s_mov_b32 s75, 53248")
            a(f"s_cmov_b32 s75, {(-106496) & 0xffffffff:#x}")
            a("s_cselect_b32 s74, 0, s74")
            for v in XA + BA[:1]: a(f"v_add_u32 v{v}, s75, v{v}")
            a("s_waitcnt lgkmcnt(7)")
            a(M[1])
            for v in BA[1:] + WA: a(f"v_add_u32 v{v}, s75, v{v}")
            a("s_waitcnt lgkmcnt(0)")
            a(M[2])
            a("s_barrier")
            for m in M[3:]:
                for _ in range(2):
                    if Rd: a(Rd.pop(0))
                a(m)
            a("s_add_u32 s72, s72, 1")
            a("s_cmp_lt_u32 s72, 7")
            a("s_cbranch_scc1 L_c_loop")
    ts(3)
    a(f"ds_read_b32 v{MM}, v{vStF}")
    a(f"ds_read_b32 v{MM+1}, v{vStF} offset:256")
    a("s_barrier")
    X, Y = S(0), S(1)
    CG = [40, 64]
    def cread(dst, off):
        for k in range(4): a(f"ds_read_b128 v[{dst+4*k}:{dst+4*k+3}], v{vCL} offset:{off + 32*k}")
    cread(40, 0); cread(56, 256); cread(72, 128)
    for ft in range(2):
        cg, cu = (40, 56) if ft == 0 else (72, 40)
        a(f"s_waitcnt lgkmcnt({4 if ft == 0 else 0})")
        for q in range(2):
            g, u = G(ft, q), U(ft, q)
            sel = f"op_sel:[{q},0,0] op_sel_hi:[{q},1,1] neg_lo:[1,0,0] neg_hi:[1,0,0]"
            for k in range(8):
                a(f"v_pk_fma_f32 v[{g+2*k}:{g+2*k+1}], v[{MM}:{MM+1}], v[{cg+2*k}:{cg+2*k+1}], v[{g+2*k}:{g+2*k+1}] {sel}")
            if ft == 0 and q == 1: cread(40, 256 + 128)
            for k in range(8):
                a(f"v_pk_fma_f32 v[{u+2*k}:{u+2*k+1}], v[{MM}:{MM+1}], v[{cu+2*k}:{cu+2*k+1}], v[{u+2*k}:{u+2*k+1}] {sel}")
                a(f"v_max_f32 v{g+2*k}, 0, v{g+2*k}")
                a(f"v_max_f32 v{g+2*k+1}, 0, v{g+2*k+1}")
            for p in range(2):
                for k in range(4 * p, 4 * p + 4):
                    a(f"v_pk_mul_f32 v[{u+2*k}:{u+2*k+1}], v[{u+2*k}:{u+2*k+1}], v[{g+2*k}:{g+2*k+1}]")
                for k in range(4 * p, 4 * p + 4):
                    a(f"v_cvt_pk_bf16_f32 v{u+k}, v{u+2*k}, v{u+2*k+1}")
                vm.issue('h', f"buffer_store_dwordx4 v[{u+4*p}:{u+4*p+3}], v{vL16}, s[{SRD_WS}:{SRD_WS+3}], s{56+q} offen offset:{(2*ft+p)*1024}{SP}")
    ts(4)
    WB = {0: [1, 2], 1: [3, 4], 2: [5, 6]}
    a(f"v_bfe_u32 v7, v0, 2, 2")
    a(f"v_lshl_add_u32 v8, v{vH}, 2, v7")
    a(f"v_lshlrev_b32 v8, 7, v8")
    a(f"v_lshrrev_b32 v7, 1, v7")
    a(f"v_lshl_add_u32 v8, v7, 6, v8")
    a(f"v_bfe_u32 v7, v0, 4, 1")
    a(f"v_lshl_add_u32 v8, v7, 5, v8")
    a(f"v_and_b32 v7, 3, v0")
    a(f"v_lshl_add_u32 v8, v7, 3, v8")
    a(f"v_add_u32 v8, s62, v8")
    for rg in range(3):
        a(f"v_add_u32 v{WB[rg][0]}, {R[rg]}, v8")
        a(f"v_xor_b32 v{WB[rg][1]}, 64, v{WB[rg][0]}")
    BR = 144
    def breads(p):
        sl = WSLOT[p]
        rg = max(k for k in range(3) if R[k] <= sl)
        L = []
        for ct in range(2):
            for jj in range(2):
                d = BR + 8 * (p % 10) + 4 * ct + 2 * jj
                L.append(f"ds_read_b64_tr_b16 v[{d}:{d+1}], v{WB[rg][ct]} offset:{sl - R[rg] + jj*1024}")
        return L
    X, Y = S(0), S(1)
    ST = 40
    a(f"ds_read_b32 v{CBR}, v{vCB}")
    a(f"ds_read_b32 v{CBI}, v{vCB} offset:64")
    for k in range(8): a(f"ds_read_b128 v[{ST+4*k}:{ST+4*k+3}], v{vStS} offset:{16*k}")
    for r in range(16): a(f"v_permlane16_swap_b32 v{X+r}, v{Y+r}")
    vOne = MM
    a(f"v_mov_b32 v{vOne}, 1")
    for r in range(16):
        if r % 2 == 0: a(f"s_waitcnt lgkmcnt({7 - r//2})")
        m, rs = ST + 2 * r, ST + 2 * r + 1
        a(f"v_fma_f32 v{X+r}, -v{m}, v{CBR}, v{X+r}")
        a(f"v_fma_f32 v{Y+r}, -v{m}, v{CBI}, v{Y+r}")
        a(f"v_mul_f32 v{X+r}, v{X+r}, v{rs}")
        a(f"v_mul_f32 v{Y+r}, v{Y+r}, v{rs}")
        if r >= 1:
            pr, pi = (X, Y) if r == 1 else (HR, HI)
            a(f"v_fma_f32 v{T1}, -v{LI}, v{pi}, v{X+r}")
            a(f"v_fma_f32 v{T2}, v{LI}, v{pr}, v{Y+r}")
            a(f"v_fma_f32 v{HR}, v{LR}, v{pr}, v{T1}")
            a(f"v_fma_f32 v{HI}, v{LR}, v{pi}, v{T2}")
    z = 72
    a(f"v_mov_b32 v{z}, v{HR}"); a(f"v_mov_b32 v{z+1}, v{HI}")
    csq(a, z + 8, z + 9, L16R, L16I, z + 10)
    a(f"v_permlane32_swap_b32 v{HR}, v{z}")
    a(f"v_permlane32_swap_b32 v{HI}, v{z+1}")
    a(f"v_fma_f32 v{z}, -v{L16I}, v{HI}, v{z}")
    a(f"v_fma_f32 v{z+1}, v{L16I}, v{HR}, v{z+1}")
    a(f"v_fmac_f32 v{z}, v{L16R}, v{HR}")
    a(f"v_fmac_f32 v{z+1}, v{L16R}, v{HI}")
    a(f"v_mov_b32 v{z+2}, v{z}"); a(f"v_mov_b32 v{z+3}, v{z+1}")
    a(f"v_cmp_lt_u32 vcc, 31, v0")
    a(f"v_permlane16_swap_b32 v{z}, v{z+2}")
    a(f"v_permlane16_swap_b32 v{z+1}, v{z+3}")
    a(f"v_fma_f32 v{z+2}, -v{z+9}, v{z+1}, v{z+2}")
    a(f"v_fma_f32 v{z+3}, v{z+9}, v{z}, v{z+3}")
    a(f"v_fmac_f32 v{z+2}, v{z+8}, v{z}")
    a(f"v_fmac_f32 v{z+3}, v{z+8}, v{z+1}")
    a(f"ds_write_b64 v{vRun8}, v[{z+2}:{z+3}]")
    a(f"v_and_b32 v{z+4}, 16, v0")
    a(f"v_cmp_ne_u32 s[12:13], 0, v{z+4}")
    a(f"v_cndmask_b32 v{z}, 0, v{z}, s[12:13]")
    a(f"v_cndmask_b32 v{z+1}, 0, v{z+1}, s[12:13]")
    a(f"v_fma_f32 v{HR}, -v{L16I}, v{z+1}, v{HR}")
    a(f"v_fma_f32 v{HI}, v{L16I}, v{z}, v{HI}")
    a(f"v_fmac_f32 v{HR}, v{L16R}, v{z}")
    a(f"v_fmac_f32 v{HI}, v{L16R}, v{z+1}")
    a(f"v_cndmask_b32 v{z}, v{z}, v{HR}, vcc")
    a(f"v_cndmask_b32 v{z+1}, v{z+1}, v{HI}, vcc")
    def flag1():
        vm.wait('h')
        a("s_mov_b64 exec, 1")
        vm.issue('f', f"buffer_store_dword v{vOne}, v{vF}, s[{SRD_WS}:{SRD_WS+3}], 0 offen{FP}")
        a("s_mov_b64 exec, -1")
        ts(6)
    if cfg.fpre: flag1()
    a("s_waitcnt lgkmcnt(0)")
    a("s_barrier")
    ts(5)
    if not cfg.fpre: flag1()
    cmul(a, HR, HI, z, z + 1, CR, CI)
    pl = sum([breads(p) for p in range(10)], [])
    for r in range(16):
        for _ in range(5):
            if pl: a(pl.pop(0))
        if r == 9:
            a("s_waitcnt lgkmcnt(0)")
            a("s_barrier")
        a(f"v_mul_f32 v{T1}, v{CI}, v{Y+r}")
        a(f"v_mul_f32 v{T2}, v{CI}, v{X+r}")
        a(f"v_fma_f32 v{X+r}, v{CR}, v{X+r}, -v{T1}")
        a(f"v_fma_f32 v{Y+r}, v{CR}, v{Y+r}, v{T2}")
    a("s_mov_b32 s15, 0xffff0000")
    vFl, vFv = vStF, vCL
    a(f"s_lshl_b32 s55, s{S_M64}, 8")
    a(f"s_add_u32 s55, s55, {WS_FLAG:#x}")
    a(f"s_mul_i32 s11, s{S_W4}, 28")
    a("s_add_u32 s55, s55, s11")
    a(f"v_min_u32 v{vFl}, 6, v0")
    a(f"v_lshlrev_b32 v{vFl}, 2, v{vFl}")
    a(f"v_add_u32 v{vRun8}, {(CAR_L - AGG_L) & 0xffffffff:#x}, v{vRun8}")
    AF = 80
    AR = list(range(40, 80, 4)) + list(range(224, 256, 4))
    NA = len(AR)
    def aload(n):
        p, rt = n // 2, n % 2
        if n % 8 == 0:
            a(f"s_lshl_b32 s54, s60, 12")
            a(f"s_add_u32 s54, s54, s52")
            a(f"s_add_u32 s53, s54, {RT_BYTES}")
            a(f"s_add_u32 s60, s60, 1")
            a(f"s_cmp_eq_u32 s60, 7")
            a(f"s_cselect_b32 s60, 0, s60")
        d = AR[n % NA]
        vm.issue(('a', n), f"buffer_load_dwordx4 v[{d}:{d+3}], v{vL16}, s[{SRD_WS}:{SRD_WS+3}], s{54 - rt} offen offset:{(p%4)*1024}{AP}")
    ld = f"buffer_load_dword v{vFv}, v{vFl}, s[{SRD_WS}:{SRD_WS+3}], s55 offen sc1"
    vm.issue('pf', ld)
    vm.wait('pf')
    def cond():
        a(f"v_cmp_ne_u32 vcc, 1, v{vFv}")
        a("s_cmp_eq_u64 vcc, 0")
    spin_check(a, "L_pf", [ld], cond, 2)
    ts(7)
    for n in range(10): aload(n)
    a("s_barrier")
    ts(8)
    a(f"ds_read_b64 v[{CBR}:{CBI}], v{vRun8}")
    a("s_waitcnt lgkmcnt(0)")
    a(f"v_fmac_f32 v{HR}, v{PWR}, v{CBR}")
    a(f"v_fmac_f32 v{HI}, v{PWR}, v{CBI}")
    a(f"v_fma_f32 v{HR}, -v{PWI}, v{CBI}, v{HR}")
    a(f"v_fmac_f32 v{HI}, v{PWI}, v{CBR}")
    pr, pi = HR, HI
    PK, HF = 80, 96
    for r in range(16):
        a(f"v_fma_f32 v{X+r}, -v{LI}, v{pi}, v{X+r}")
        a(f"v_fma_f32 v{Y+r}, v{LI}, v{pr}, v{Y+r}")
        a(f"v_fmac_f32 v{X+r}, v{LR}, v{pr}")
        a(f"v_fmac_f32 v{Y+r}, v{LR}, v{pi}")
        pr, pi = X + r, Y + r
    for k in range(8):
        a(f"v_cvt_pk_bf16_f32 v{PK+k}, v{X+2*k}, v{X+2*k+1}")
    a(f"ds_write_b128 v{vTW}, v[{PK}:{PK+3}]")
    a(f"ds_write_b128 v{vTW}, v[{PK+4}:{PK+7}] offset:16")
    for k in range(8):
        a(f"v_cvt_pk_bf16_f32 v{PK+8+k}, -v{Y+2*k}, -v{Y+2*k+1}")
    a(f"ds_write_b128 v{vTW}, v[{PK+8}:{PK+11}] offset:2048")
    a(f"ds_write_b128 v{vTW}, v[{PK+12}:{PK+15}] offset:2064")
    for q in range(2):
        for part in range(2):
            for j in range(2):
                d = HF + 8 * q + 4 * part + 2 * j
                a(f"ds_read_b64_tr_b16 v[{d}:{d+1}], v{vTR} offset:{(part*16 + 4*j)*128 + 64*(q ^ j)}")
    for n in range(10, cfg.a0): aload(n)
    a("s_waitcnt lgkmcnt(0)")
    for q in range(2):
        for part in range(2):
            d = HF + 8 * q + 4 * part
            a(f"s_add_u32 s11, s58, {q*RT_BYTES + part*HALF_BYTES}")
            vm.issue('hs', f"buffer_store_dwordx4 v[{d}:{d+3}], v{vL16}, s[{SRD_WS}:{SRD_WS+3}], s11 offen{SP}")
    ts(9)
    nxt = [cfg.a0]
    ts.x(6, 5)
    ts(10)
    lq = []
    def ds_issue(tag, t):
        a(t)
        if t.startswith("ds_"): lq.append(tag)
    def ds_wait(tag):
        idx = max((i for i, t in enumerate(lq) if t == tag), default=None)
        if idx is None: return None
        n = len(lq) - 1 - idx
        del lq[:idx + 1]
        return f"lgkmcnt({min(n, 15)})"
    flag2_done = False
    XV = 144; DS = vFv
    for p in range(28):
        f = BR + 8 * (p % 10)
        for rt in range(2):
            n = 2 * p + rt
            w = ds_wait(p) if rt == 0 else None
            vm.wait(('a', n), w or "")
            if n in (0, 7, 17, 25, 35): ts.x(6, {0: 7, 7: 8, 17: 9, 25: 10, 35: 11}[n])
            d = AR[n % NA]
            for ct in range(2):
                acc = AF + 32 * rt + 16 * ct
                c = "0" if p == 0 else f"v[{acc}:{acc+15}]"
                a(f"v_mfma_f32_32x32x16_bf16 v[{acc}:{acc+15}], v[{d}:{d+3}], v[{f+4*ct}:{f+4*ct+3}], {c}")
            if not flag2_done and n >= cfg.f2n:
                vm.wait('hs')
                a("s_mov_b64 exec, 1")
                vm.issue('f', f"buffer_store_dword v{vOne}, v{vF}, s[{SRD_WS}:{SRD_WS+3}], 0 offen offset:128{FP}")
                a("s_mov_b64 exec, -1")
                flag2_done = True
            for _ in range(2):
                if nxt[0] < 56 and nxt[0] <= n + NA:
                    aload(nxt[0]); nxt[0] += 1
        if p == 5:
            for pp in (26, 27):
                for n2 in range(2):
                    a(f"s_add_u32 m0, s62, {WSLOT[pp] + n2*1024}")
                    a(f"s_add_u32 s11, s61, {((pp % 4) * 16 + 8 * n2) * 896}")
                    vm.issue('wl', f"buffer_load_dwordx4 v{vWd}, s[24:27], s11 offen lds")
        pn = p + cfg.bd
        if p == cfg.ky:
            assert pn <= 12
            a("s_barrier")
        if p == cfg.ksig:
            assert pn > 15
            w = ds_wait(15)
            if w: a(f"s_waitcnt {w}")
            a("s_mov_b64 exec, 1")
            ds_issue('c', f"ds_add_u32 v{vCn}, v{vOne} offset:4")
            a("s_mov_b64 exec, -1")
        if pn in (26, 27): assert 'wl' not in vm.q
        if 10 <= pn < 28:
            for t in breads(pn): ds_issue(pn, t)
        if p % 4 == 3: ts.x(4, 1 + p // 4)
    ts(11)
    ts.x(7, 1)
    vXW = 1
    a(f"v_add_u32 v{vXW}, s62, v{vL16}")
    a(f"v_add_u32 v{vXW}, {FXA}, v{vXW}")
    STT = 160
    for k in range(8): a(f"ds_read_b128 v[{STT+4*k}:{STT+4*k+3}], v{vSo} offset:{16*k}")
    O = 40
    def acc_of(qd): return AF + 32 * (qd & 1) + 16 * (qd >> 1)
    for w in range(4):
        if w < 3:
            a(f"s_cmp_lg_u32 s{S_W4}, {w}")
            a(f"s_cbranch_scc1 L_c_w{w+1}")
        a("s_nop 7")
        for dq in range(1, 4):
            src = acc_of((w + dq) & 3)
            for k in range(4):
                a(f"ds_write_b128 v{vXW}, v[{src+4*k}:{src+4*k+3}] offset:{(dq-1)*4096 + 1024*k}")
        for r in range(16): a(f"v_mov_b32 v{O+r}, v{acc_of(w)+r}")
        if w < 3:
            a("s_branch L_c_wd")
            a.label(f"L_c_w{w+1}")
    a.label("L_c_wd")
    ts.x(7, 2)
    a("s_waitcnt lgkmcnt(0)")
    ts.x(7, 3)
    a("s_mov_b64 exec, 1")
    a(f"ds_add_u32 v{vCn}, v{vOne}")
    a("s_mov_b64 exec, -1")
    EX = 56
    a(f"ds_read_b32 v4, v{vCn}")
    for r in range(16): a(f"v_mul_f32 v{STT+2*r}, v{STT+2*r+1}, v{STT+2*r+1}")
    for dq in range(1, 4):
        a(f"s_sub_u32 s11, s{S_W4}, {dq}")
        a("s_and_b32 s11, s11, 3")
        a(f"s_mul_i32 s11, s11, {Q}")
        a(f"s_add_u32 s11, s11, {FXA + (dq-1)*4096}")
        a(f"v_add_u32 v{4+dq}, s11, v{vL16}")
    a("s_mov_b32 s73, 0")
    a.label("L_c_cnt")
    a("s_waitcnt lgkmcnt(0)")
    a("v_readfirstlane_b32 s11, v4")
    a("s_cmp_ge_u32 s11, 4")
    a("s_cbranch_scc1 L_c_cntok")
    a("s_add_u32 s73, s73, 1")
    a(f"s_cmp_ge_u32 s73, {SPIN_MAX}")
    a("s_cbranch_scc1 L_c_cntok")
    a("s_sleep 1")
    a(f"ds_read_b32 v4, v{vCn}")
    a("s_branch L_c_cnt")
    a.label("L_c_cntok")
    ts.x(7, 4)
    RX = 80
    for dq in range(1, 4):
        for k in range(4): a(f"ds_read_b128 v[{RX+16*(dq-1)+4*k}:{RX+16*(dq-1)+4*k+3}], v{4+dq} offset:{1024*k}")
    a(f"v_add_u32 v{vXW}, {GA - FXA}, v{vXW}")
    a(f"s_mov_b32 s13, {LOG2E ^ 0x80000000:#x}")
    for dq in range(3):
        a(f"s_waitcnt lgkmcnt({8 - 4*dq})")
        for r in range(16): a(f"v_add_f32 v{O+r}, v{O+r}, v{RX+16*dq+r}")
    ts.x(7, 5)
    for r in range(16): a(f"v_mul_f32 v{O+r}, v{O+r}, v{STT+2*r}")
    for r in range(16): a(f"v_mul_f32 v{EX+r}, s13, v{O+r}")
    for r in range(16): a(f"v_exp_f32 v{EX+r}, v{EX+r}")
    for r in range(16): a(f"v_add_f32 v{EX+r}, 1.0, v{EX+r}")
    for r in range(16): a(f"v_rcp_f32 v{EX+r}, v{EX+r}")
    for k in range(4):
        for r in range(4 * k, 4 * k + 4): a(f"v_mul_f32 v{O+r}, v{O+r}, v{EX+r}")
        a(f"ds_write_b128 v{vXW}, v[{O+4*k}:{O+4*k+3}] offset:{1024*k}")
    a("s_waitcnt lgkmcnt(0)")
    ts(12)
    a("s_barrier")
    ts.dump(T, T + 1)
    a("s_endpgm")

HEADER = """; Fused S5-SSM + ReGLU block, one launch: 224 main workgroups (4 MFMA waves + 4 loader waves) + 32 helper workgroups.
; @launch grid=(256,1,1) block=(512,1,1) lds=163840
.amdgcn_target "amdgcn-amd-amdhsa--gfx950"
.text
.globl {k}
.p2align 8
.type {k},@function
{k}:
"""
FOOTER = """.section .rodata,"a"
.p2align 6
.amdhsa_kernel {k}
  .amdhsa_next_free_vgpr 256
  .amdhsa_next_free_sgpr 102
  .amdhsa_accum_offset 256
  .amdhsa_group_segment_fixed_size 0
  .amdhsa_kernarg_size 128
  .amdhsa_user_sgpr_count 2
  .amdhsa_user_sgpr_kernarg_segment_ptr 1
  .amdhsa_system_sgpr_workgroup_id_x 1
  .amdhsa_float_denorm_mode_32 3
.end_amdhsa_kernel
"""

def generate(cfg):
    a = Asm()
    ts = TS(a, cfg)
    gen_entry(a, cfg, ts)
    gen_loader(a, cfg, ts)
    gen_consumer(a, cfg, ts)
    gen_helper(a, cfg, ts)
    a.label("L_exit")
    a("s_endpgm")
    return HEADER.format(k=KNAME) + a.text() + FOOTER.format(k=KNAME)

if __name__ == "__main__":
    cfg = Cfg()
    out = sys.argv[1]
    for kv in sys.argv[2:]:
        k, v = kv.split("=")
        setattr(cfg, k, int(v))
    open(out, "w").write(generate(cfg))
```

```python
import sys, os
sys.path.insert(0, os.path.dirname(os.path.abspath(__file__)))
from asmlib import Asm, VM

KNAME = "recurrent_scan__ssm_conv_s5__glu_gated_reglu__prompt_kernel"

R = [0, 53248, 106496]
MISC = 159744
OFF_WG, OFF_WU, OFF_BB = 32768, 40960, 49152
ST2_L = R[1] + 49152
CAR_L = ST2_L + 512
AGG_L = ST2_L + 1024
CP_L = R[2] + 49152
STATS_L = MISC
C_L = MISC + 2048
KC_L = MISC + 2688
CNT_L = MISC + 3840
Q = 12288

RT_BYTES = 172032
HALF_BYTES = 86016
WS_STATS = 0xB00000
WS_AGG = WS_STATS + 0x4000
WS_FLAG = WS_AGG + 0x8000
WS_CS = WS_FLAG + 0x2000
INIT_N = 128
WS_TS = 0xC00000
WS_SIZE = 0x1000000
SPIN_MAX = 1 << 20

S_WAVE, S_XCD, S_SLOT, S_MT, S_NS, S_M64, S_NT, S_W4 = 3, 4, 5, 6, 7, 8, 9, 10
P_X, P_LRE, P_LIM, P_BRE, P_BIM, P_CRE, P_CIM, P_LDT, P_DSK, P_BX, P_WG, P_WU, P_WD, P_OUT, P_DBG, P_WS = [16 + 2 * i for i in range(16)]
SRD_X, SRD_A, SRD_B, SRD_C, SRD_WS, SRD_E = 48, 52, 56, 60, 64, 68
TS0 = 76

LOG2E = 0x3fb8aa3b
LOG2E_LO = 0x32a57060
LN2 = 0x3f317218
INV2PI = 0x3e22f983

class Cfg:
    ts = 0
    tsset = 0
    pd = 16
    perm = 1
    rot = 2
    ssm_early = 0
    schedn = 0
    polx = 0
    apol = 1
    noa = 0
    nob = 0
    rdstart = 1
    polw = 0
    winn = 0
    nocs = 0
    r2pre = 1
    tlb = 0
    bd = 4
    pollw = 6
    @property
    def win(self):
        W = lambda a, b: [f"w{p}" for p in range(a, b)]
        return [
            {-1: ["s1:0-3"], 0: ["s1:3-13", "s2:0-8"], 1: ["s2:8-13", "s3"], 2: ["s4", "e"] + W(2, 4), 3: ["s5"] + W(4, 6), 4: ["init", "s6"] + W(6, 8),
             5: ["fetch", "c0", "ch"] + W(8, 11), 6: ["c1", "w0", "w1", "w11", "put"], 7: ["r0", "c2"]},
            {-1: ["s1:0-3"], 0: ["s1:3-13", "s2:0-8"], 1: ["s2:8-13", "s3"], 2: ["s4", "e"] + W(2, 4), 3: ["s5"] + W(4, 7), 4: ["init", "s6"] + W(7, 9),
             5: ["fetch", "c0", "ch"] + W(9, 12), 6: ["c1", "w0", "w1", "put", "r0"], 7: ["c2"]},
            {-1: ["s1"], 0: ["s2", "e"], 1: ["s3"], 2: ["s4"] + W(2, 4), 3: ["s5"] + W(4, 7), 4: ["init", "s6"] + W(7, 9),
             5: ["fetch", "c0", "ch"] + W(9, 12), 6: ["c1", "w0", "w1", "put", "r0"], 7: ["c2"]},
            {-1: ["s1:0-3"], 0: ["s1:3-13", "s2:0-6"], 1: ["s2:6-13", "s3:0-10"], 2: ["s3:10-13", "s4", "e"], 3: ["s5"] + W(2, 5), 4: ["init", "s6"] + W(5, 8),
             5: ["fetch", "c0", "ch"] + W(8, 12), 6: ["c1", "w0", "w1", "put", "r0"], 7: ["c2"]},
            {-1: ["s1"], 0: ["s2", "e"], 1: ["s3"], 2: ["s4"], 3: ["s5"], 4: ["init", "s6"],
             5: ["fetch"], 6: ["put"], 7: ["c0", "ch", "c1", "w0", "w1"] + W(2, 12) + ["r0", "c2"]},
            {-1: ["s1"], 0: ["s2", "e"], 1: ["s3"], 2: ["s4"], 3: ["s5"], 4: ["init", "s6"] + W(2, 4),
             5: ["fetch", "c0", "ch"] + W(4, 8), 6: ["c1", "w0", "w1"] + W(8, 10) + ["put"], 7: W(10, 12) + ["r0", "c2"]},
        ][self.winn]
    nw1 = 6
    flagr = -1
    xs = 1
    psleep = 4
    ttper = 2
    f2n = 9
    fpre = 1
    a0 = 10
    sprio = 0
    ksig = 12
    opol = 0
    lprio = 3
    w12early = 0
    slab = 0
    spol = 1
    fpol = 1
    pollr = 4
    nw2 = 16
    thr = 15
    hpf = 3
    ky = 2
    @property
    def perms(self):
        return {
            0: [[0, 1, 2, 3, 4, 5, 6]],
            1: [[0, 1, 2, 3, 4, 5, 6], [1, 2, 0, 4, 5, 3, 6], [2, 0, 1, 5, 3, 4, 6]],
            2: [[0, 1, 2, 3, 4, 5, 6], [1, 0, 3, 2, 5, 4, 6]],
            3: [[0, 1, 2, 3, 4, 5, 6], [1, 0, 4, 5, 6, 2, 3], [0, 1, 6, 2, 3, 4, 5]],
            4: [[0, 1, 2, 3, 4, 5, 6], [1, 2, 0, 4, 6, 3, 5], [2, 0, 1, 5, 6, 3, 4]],
            5: [[0, 1, 2, 3, 4, 5, 6], [1, 2, 3, 0, 5, 6, 4], [2, 3, 0, 1, 6, 4, 5], [3, 0, 1, 2, 4, 5, 6]],
        }[self.perm]

def srd(a, d, ptr, nbytes):
    a(f"s_mov_b32 s{d}, s{ptr}")
    a(f"s_and_b32 s{d+1}, s{ptr+1}, 0xffff")
    a(f"s_mov_b32 s{d+2}, {nbytes:#x}")
    a(f"s_mov_b32 s{d+3}, 0x20000")

def srd_sel(a, d, ptr1, ptr0, nbytes):
    a(f"s_cselect_b32 s{d}, s{ptr1}, s{ptr0}")
    a(f"s_cselect_b32 s{d+1}, s{ptr1+1}, s{ptr0+1}")
    a(f"s_and_b32 s{d+1}, s{d+1}, 0xffff")
    a(f"s_mov_b32 s{d+2}, {nbytes:#x}")
    a(f"s_mov_b32 s{d+3}, 0x20000")

class TS:
    def __init__(self, a, cfg):
        self.a, self.on, self.n, self.set = a, cfg.ts, 0, cfg.tsset
    def x(self, setno, i):
        if self.on and self.set == setno: self.emit(i)
    def __call__(self, i):
        if self.on and (self.set == 0 or i in (0, 12)): self.emit(i)
    def emit(self, i):
        if self.on:
            assert i < 13
            self.a(f"{'s_memrealtime' if self.on != 2 else 's_memtime'} s[{TS0+2*i}:{TS0+2*i+1}]")
    def init(self):
        if self.on:
            for i in range(1, 13): self.a(f"s_mov_b32 s{TS0+2*i}, 0")
    def dump(self, vt, vt2):
        if not self.on: return
        a = self.a
        if self.on == 3:
            a("s_waitcnt vmcnt(0) lgkmcnt(0)")
            lab = a.newlabel("L_nod")
            a(f"s_cmp_eq_u32 s{TS0+24}, 0")
            a(f"s_cbranch_scc1 {lab}")
            a(f"s_cmp_lg_u32 s{S_WAVE}, 0")
            a(f"s_cbranch_scc1 {lab}")
            a("s_mov_b64 exec, 1")
            a(f"v_mov_b32 v{vt2}, 0")
            a(f"s_not_b32 s11, s{TS0}")
            a(f"v_mov_b32 v{vt}, s11")
            a(f"global_atomic_umax v{vt2}, v{vt}, s[{P_DBG}:{P_DBG+1}] offset:4 sc1")
            for n, i in enumerate([0, 1, 2, 3, 4, 5, 6, 7, 8, 9, 10, 11, 12]):
                a("s_waitcnt vmcnt(0)")
                a(f"v_mov_b32 v{vt}, s{TS0+2*i}")
                a(f"global_atomic_umax v{vt2}, v{vt}, s[{P_DBG}:{P_DBG+1}] offset:{8+4*n} sc1")
            a("s_waitcnt vmcnt(0)")
            a.label(lab)
            return
        a("s_waitcnt vmcnt(0) lgkmcnt(0)")
        a(f"s_lshl_b32 s11, s2, 9")
        a(f"s_lshl_b32 s12, s{S_WAVE}, 6")
        a("s_add_u32 s11, s11, s12")
        a(f"s_add_u32 s11, s11, {WS_TS:#x}")
        a(f"v_mov_b32 v{vt2}, s11")
        for i in range(13):
            a(f"v_mov_b32 v{vt}, s{TS0+2*i}")
            a(f"buffer_store_dword v{vt}, v{vt2}, s[{SRD_WS}:{SRD_WS+3}], 0 offen offset:{4*i}")
        a("s_waitcnt vmcnt(0)")

def round_bf16(a, dst, src):
    a(f"v_cvt_pk_bf16_f32 v{dst}, v{src}, v{src}")
    a(f"v_lshlrev_b32 v{dst}, 16, v{dst}")

def exp_acc(a, dst, x, t0, t1):
    a(f"s_mov_b32 s13, {LOG2E:#x}")
    a(f"s_mov_b32 s14, {LOG2E_LO:#x}")
    a(f"s_mov_b32 s15, {LN2:#x}")
    a(f"v_mul_f32 v{t0}, s13, v{x}")
    a(f"v_fma_f32 v{t1}, v{x}, s13, -v{t0}")
    a(f"v_fma_f32 v{t1}, v{x}, s14, v{t1}")
    a(f"v_mul_f32 v{t1}, s15, v{t1}")
    a(f"v_exp_f32 v{dst}, v{t0}")
    a(f"v_fma_f32 v{dst}, v{dst}, v{t1}, v{dst}")

def csq(a, dr, di, sr, si, t):
    a(f"v_mul_f32 v{t}, v{si}, v{si}")
    a(f"v_add_f32 v{di}, v{si}, v{si}")
    a(f"v_mul_f32 v{di}, v{di}, v{sr}")
    a(f"v_fma_f32 v{dr}, v{sr}, v{sr}, -v{t}")

def cmul(a, dr, di, ar, ai, br, bi):
    a(f"v_mul_f32 v{dr}, v{ar}, v{br}")
    a(f"v_mul_f32 v{di}, v{ar}, v{bi}")
    a(f"v_fma_f32 v{dr}, -v{ai}, v{bi}, v{dr}")
    a(f"v_fma_f32 v{di}, v{ai}, v{br}, v{di}")

def ssm_const_load(a, vm, t):
    a(f"v_and_b32 v{t+3}, 15, v0")
    a(f"s_lshl_b32 s11, s{S_NS}, 4")
    a(f"v_add_lshl_u32 v{t+3}, v{t+3}, s11, 1")
    vm.issue('sc', f"global_load_ushort v{t}, v{t+3}, s[{P_LRE}:{P_LRE+1}]")
    vm.issue('sc', f"global_load_ushort v{t+1}, v{t+3}, s[{P_LIM}:{P_LIM+1}]")
    vm.issue('sc', f"global_load_ushort v{t+2}, v{t+3}, s[{P_LDT}:{P_LDT+1}]")

def ssm_const_calc(a, t, lr, li, cr=None, ci=None):
    for k in range(3): a(f"v_lshlrev_b32 v{t+k}, 16, v{t+k}")
    exp_acc(a, t + 3, t + 2, t + 4, t + 5)
    round_bf16(a, t + 2, t + 3)
    a(f"v_mul_f32 v{t+3}, v{t+2}, v{t}")
    a(f"v_mul_f32 v{t+6}, v{t+2}, v{t+1}")
    exp_acc(a, t + 7, t + 3, t + 4, t + 5)
    a(f"v_mul_f32 v{t+6}, {INV2PI:#x}, v{t+6}")
    a(f"v_rndne_f32 v{t+4}, v{t+6}")
    a(f"v_sub_f32 v{t+6}, v{t+6}, v{t+4}")
    a(f"v_cos_f32 v{t+4}, v{t+6}")
    a(f"v_sin_f32 v{t+5}, v{t+6}")
    a(f"v_mul_f32 v{lr}, v{t+7}, v{t+4}")
    a(f"v_mul_f32 v{li}, v{t+7}, v{t+5}")
    if cr is not None:
        a(f"v_add_f32 v{t+3}, -1.0, v{lr}")
        a(f"v_mul_f32 v{t+4}, v{t}, v{t}")
        a(f"v_fma_f32 v{t+4}, v{t+1}, v{t+1}, v{t+4}")
        a(f"v_rcp_f32 v{t+4}, v{t+4}")
        a(f"v_mul_f32 v{cr}, v{t+3}, v{t}")
        a(f"v_fma_f32 v{cr}, v{li}, v{t+1}, v{cr}")
        a(f"v_mul_f32 v{ci}, v{li}, v{t}")
        a(f"v_fma_f32 v{ci}, -v{t+3}, v{t+1}, v{ci}")
        a(f"v_add_f32 v{t+4}, v{t+4}, v{t+4}")
        a(f"v_mul_f32 v{cr}, v{cr}, v{t+4}")
        a(f"v_mul_f32 v{ci}, v{ci}, v{t+4}")

def gen_entry(a, cfg, ts):
    a("s_cmp_ge_u32 s2, 256")
    a("s_cbranch_scc1 L_exit")
    ts(0)
    a("s_load_dwordx16 s[16:31], s[0:1], 0")
    a("s_load_dwordx16 s[32:47], s[0:1], 64")
    a("v_lshrrev_b32 v1, 6, v0")
    a("v_and_b32 v0, 63, v0")
    a(f"v_readfirstlane_b32 s{S_WAVE}, v1")
    a(f"s_and_b32 s{S_XCD}, s2, 7")
    a(f"s_lshr_b32 s{S_SLOT}, s2, 3")
    a(f"s_and_b32 s11, s{S_SLOT}, 3")
    a(f"s_lshr_b32 s{S_NT}, s{S_SLOT}, 2")
    a(f"s_and_b32 s12, s{S_XCD}, 1")
    a(f"s_lshl_b32 s12, s12, 2")
    a(f"s_add_u32 s{S_MT}, s12, s11")
    a(f"s_lshr_b32 s12, s{S_XCD}, 1")
    a(f"s_mul_i32 s12, s12, 7")
    a(f"s_add_u32 s{S_NS}, s12, s{S_NT}")
    if cfg.slab:
        a(f"s_mov_b32 s{S_MT}, s{S_XCD}")
        a(f"s_mov_b32 s{S_NS}, s{S_SLOT}")
    a(f"s_lshl_b32 s12, s{S_XCD}, 2")
    a(f"s_add_u32 s{S_M64}, s12, s11")
    a(f"s_and_b32 s{S_W4}, s{S_WAVE}, 3")
    ts.init()
    a(f"s_cmp_ge_u32 s{S_SLOT}, 28")
    a("s_cbranch_scc1 L_helper")
    a(f"s_cmp_lt_u32 s{S_WAVE}, 4")
    a("s_cbranch_scc1 L_consumer")

def gen_helper(a, cfg, ts):
    a.label("L_helper")
    vm = VM(a)
    a(f"s_sub_u32 s73, s{S_SLOT}, 28")
    a(f"s_lshl_b32 s11, s73, 3")
    a(f"s_add_u32 s72, s11, s{S_XCD}")
    a(f"s_cmp_ge_u32 s{S_WAVE}, 4")
    a("s_cbranch_scc1 L_h_pf")
    a(f"s_lshl_b32 s11, s72, 6")
    a(f"s_lshl_b32 s12, s{S_WAVE}, 4")
    a(f"s_add_u32 s11, s11, s12")
    a("v_lshrrev_b32 v2, 3, v0")
    a("v_add_u32 v2, s11, v2")
    a("v_mul_u32_u24 v3, 896, v2")
    a("v_and_b32 v4, 7, v0")
    a("v_lshl_add_u32 v3, v4, 4, v3")
    a("s_waitcnt lgkmcnt(0)")
    srd(a, SRD_X, P_X, 2048 * 896)
    srd(a, SRD_WS, P_WS, WS_SIZE)
    a(f"s_mov_b32 s11, {8*896}")
    for ps in range(2):
        for j in range(7):
            so = "0" if ps == 0 else "s11"
            vm.issue(('x', ps), f"buffer_load_dwordx4 v[{112+28*ps+4*j}:{115+28*ps+4*j}], v3, s[{SRD_X}:{SRD_X+3}], {so} offen offset:{128*j}")
    a(f"s_cmp_gt_u32 s{S_WAVE}, 1")
    a("s_cbranch_scc1 L_h_noreset")
    a(f"s_cmp_eq_u32 s{S_WAVE}, 0")
    a("s_cselect_b32 s11, -1, 0")
    a("s_mov_b32 s12, 256")
    a("s_cmov_b32 s12, 896")
    a(f"s_mov_b32 s13, {WS_FLAG:#x}")
    a(f"s_cmov_b32 s13, {WS_AGG:#x}")
    a("s_mul_i32 s14, s12, s72")
    a("s_add_u32 s13, s13, s14")
    for k in range(4): a(f"v_mov_b32 v{8+k}, s11")
    a("v_lshlrev_b32 v12, 4, v0")
    a("v_cmp_gt_u32 vcc, s12, v12")
    a("s_and_saveexec_b64 s[14:15], vcc")
    a(f"buffer_store_dwordx4 v[8:11], v12, s[{SRD_WS}:{SRD_WS+3}], s13 offen sc1")
    a("s_mov_b64 exec, s[14:15]")
    a.label("L_h_noreset")
    a("s_nop 1")
    a("v_lshlrev_b32 v2, 3, v2")
    a("s_mov_b32 s12, 0xffff0000")
    def fin(dst):
        a("v_add_f32 v8, v8, v9")
        a("v_add_f32 v10, v10, v11")
        a(f"v_add_f32 v{dst}, v8, v10")
        a(f"v_add_f32_dpp v{dst}, v{dst}, v{dst} quad_perm:[1,0,3,2] row_mask:0xf bank_mask:0xf")
        a(f"v_add_f32_dpp v{dst}, v{dst}, v{dst} quad_perm:[2,3,0,1] row_mask:0xf bank_mask:0xf")
        a(f"v_add_f32_dpp v{dst}, v{dst}, v{dst} row_half_mirror row_mask:0xf bank_mask:0xf")
        a(f"v_mul_f32 v{dst}, 0x3b124925, v{dst}")
    for ps in range(2):
        vm.wait(('x', ps))
        src = 112 + 28 * ps
        for k in range(28):
            a(f"v_lshlrev_b32 v{48+2*k}, 16, v{src+k}")
            a(f"v_and_b32 v{49+2*k}, s12, v{src+k}")
        a("v_pk_add_f32 v[8:9], v[48:49], v[52:53]")
        a("v_pk_add_f32 v[10:11], v[50:51], v[54:55]")
        for k in range(4, 28): a(f"v_pk_add_f32 v[{8+2*(k%2)}:{9+2*(k%2)}], v[{8+2*(k%2)}:{9+2*(k%2)}], v[{48+2*k}:{49+2*k}]")
        fin(12)
        for k in range(28): a(f"v_pk_add_f32 v[{48+2*k}:{49+2*k}], v[{48+2*k}:{49+2*k}], v[12:13] op_sel_hi:[1,0] neg_lo:[0,1] neg_hi:[0,1]")
        for k in range(2): a(f"v_pk_mul_f32 v[{8+2*k}:{9+2*k}], v[{48+2*k}:{49+2*k}], v[{48+2*k}:{49+2*k}]")
        for k in range(2, 28): a(f"v_pk_fma_f32 v[{8+2*(k%2)}:{9+2*(k%2)}], v[{48+2*k}:{49+2*k}], v[{48+2*k}:{49+2*k}], v[{8+2*(k%2)}:{9+2*(k%2)}]")
        fin(13)
        o = 14 + 2 * ps
        round_bf16(a, o, 12)
        round_bf16(a, 13, 13)
        a("v_add_f32 v13, 0x3727c5ac, v13")
        round_bf16(a, 13, 13)
        a("v_sqrt_f32 v13, v13")
        round_bf16(a, 13, 13)
        a(f"v_rcp_f32 v{o+1}, v13")
        a("v_cmp_eq_u32 vcc, 0, v4")
        a("s_and_saveexec_b64 s[14:15], vcc")
        a(f"s_mov_b32 s11, {WS_STATS:#x}")
        vm.issue('st', f"buffer_store_dwordx2 v[{o}:{o+1}], v2, s[{SRD_WS}:{SRD_WS+3}], s11 offen offset:{64*ps} sc1")
        a("s_mov_b64 exec, s[14:15]")
    a("s_waitcnt vmcnt(0)")
    a("v_mov_b32 v8, 0")
    a("v_mov_b32 v9, 1")
    a("s_mov_b64 exec, 1")
    a(f"global_atomic_add v8, v9, s[{P_DBG}:{P_DBG+1}] sc1")
    a("s_mov_b64 exec, -1")
    ts(1)
    ts.dump(8, 9)
    a("s_endpgm")
    a.label("L_h_pf")
    a("v_lshlrev_b32 v2, 4, v0")
    a(f"s_lshl_b32 s11, s{S_W4}, 10")
    a("v_add_u32 v2, s11, v2")
    a("s_waitcnt lgkmcnt(0)")
    srd(a, SRD_WS, P_WS, WS_SIZE)
    if cfg.hpf:
        for (ptr, nbytes, srdn) in ((P_CRE, 448 * 896, 48), (P_CIM, 448 * 896, 52), (P_WD, 1792 * 896, 56)):
            srd(a, srdn, ptr, nbytes)
        def sweep(name, srds, qbytes, first, count):
            n8 = -(-qbytes // (8 * 4096))
            n = 8 * n8
            a(f"s_mul_i32 s12, s73, {qbytes}")
            a(f"s_add_u32 s13, s{S_XCD}, {first}")
            a("s_and_b32 s13, s13, 7")
            a(f"s_mul_i32 s13, s13, {n8}")
            a("s_mov_b32 s14, 0")
            a.label(name)
            a("s_lshl_b32 s11, s13, 12")
            a("s_add_u32 s11, s11, s12")
            for k, sr in enumerate(srds):
                a(f"buffer_load_dwordx4 v[{16+4*k}:{19+4*k}], v2, s[{sr}:{sr+3}], s11 offen")
            a("s_add_u32 s13, s13, 1")
            a(f"s_cmp_eq_u32 s13, {n}")
            a("s_cselect_b32 s13, 0, s13")
            a("s_add_u32 s14, s14, 1")
            a(f"s_cmp_lt_u32 s14, {n8 * count}")
            a(f"s_cbranch_scc1 {name}")
        sweep("L_h_p1", [48, 52], 448 * 896 // 4, 0, 1)
        sweep("L_h_p2", [56], 1792 * 896 // 4, 0, 1)
        ts(2)
        if cfg.hpf == 3:
            sweep("L_h_p3", [48, 52], 448 * 896 // 4, 1, 7)
            ts(3)
    ts.dump(8, 9)
    a("s_endpgm")

def spin_check(a, name, load_text_list, cond_fn, sleep=1):
    lo, done = a.newlabel(name + "_spin"), a.newlabel(name + "_ok")
    a(f"s_mov_b32 s73, 0")
    a.label(lo)
    cond_fn()
    a(f"s_cbranch_scc1 {done}")
    a("s_add_u32 s73, s73, 1")
    a(f"s_cmp_ge_u32 s73, {SPIN_MAX}")
    a(f"s_cbranch_scc1 {done}")
    a(f"s_sleep {sleep}")
    for t in load_text_list: a(t)
    a("s_waitcnt vmcnt(0)")
    a(f"s_branch {lo}")
    a.label(done)
    a("s_nop 4")

def interleave(a, prim, fill, per):
    fill = list(fill)
    for p in prim:
        p()
        for _ in range(per):
            if fill: a(fill.pop(0))
    for f in fill: a(f)

def p2_rot(a, cfg, d_ffn, d_blk, d_flip):
    if not cfg.rot:
        for d in (d_ffn, d_blk, d_flip): a(f"s_mov_b32 s{d}, 0")
        return
    if cfg.rot == 2:
        a(f"s_and_b32 s11, s{S_SLOT}, 3")
        a(f"s_lshl_b32 s{d_ffn}, s11, 1")
        for d in (d_blk, d_flip): a(f"s_mov_b32 s{d}, 0")
        return
    a(f"s_and_b32 s11, s{S_SLOT}, 3")
    a("s_lshl_b32 s11, s11, 1")
    a(f"s_add_u32 s11, s11, s{S_NT}")
    a("s_cmp_ge_u32 s11, 7")
    a("s_cselect_b32 s13, 7, 0")
    a(f"s_sub_u32 s{d_ffn}, s11, s13")
    a(f"s_lshr_b32 s11, s{S_NT}, 1")
    a(f"s_and_b32 s13, s{S_SLOT}, 3")
    a("s_add_u32 s11, s11, s13")
    a("s_mul_i32 s13, s11, 43")
    a("s_lshr_b32 s13, s13, 7")
    a("s_mul_i32 s13, s13, 3")
    a(f"s_sub_u32 s{d_blk}, s11, s13")
    a(f"s_and_b32 s{d_flip}, s{S_NT}, 1")

def slot(reg, n): return R[reg] + 2048 * n
SA = [slot(1, n) for n in range(6)]; SB = [slot(2, n) for n in range(6)]; SC = [slot(0, n) for n in range(6)]
WSLOT = {0: SB[4], 1: SB[5], 26: SA[4], 27: SA[5]}
for n in range(6): WSLOT[2 + n] = SC[n]
for n in range(4): WSLOT[8 + n] = SB[n]; WSLOT[12 + n] = SA[n]
for p, sl in zip(range(16, 26), [SB[4], SB[5]] + SC + [SB[0], SB[1]]): WSLOT[p] = sl
HTS = SA[4]
PH1, PH2, GA, FXA = SA[0], SB[2], SB[0], SC[0]

def gen_loader(a, cfg, ts):
    a.label("L_loader")
    a("s_setprio 3")
    vm = VM(a)
    vXe, vXo, vW, vB = 1, 2, 3, 4
    vFv, vP, vO, vPQ = 5, 6, 7, 8
    vWd, vCe, vCo, vCh = 9, 10, 11, 12
    vRf, vRh = 13, 14
    vA, vC = 24, 25
    vT = 15
    ACC, CA, RD = 27, 28, 44
    STG = 64
    CF = 144
    SACC = 80
    XRAW = CF + 64
    sMX, sMW, sMB, sMP = 72, 74, 75, 70
    sPerm, sSX, sSW = 68, 69, 15
    sRF = 14
    AP = ['', ' sc1', ' sc1 nt', ' sc0 sc1', ' sc0', ' nt'][cfg.apol]
    OP = ['', ' sc1', ' nt', ' sc1 nt'][cfg.opol]
    polx = " nt" if cfg.polx else ""
    polw = " nt" if cfg.polw else ""
    a(f"v_lshrrev_b32 v{vA}, 3, v0")
    a(f"v_and_b32 v{vC}, 7, v0")
    a(f"v_lshrrev_b32 v{vT+2}, 1, v{vA}")
    a(f"s_lshl_b32 s11, s{S_W4}, 4")
    a(f"v_add_u32 v{vT}, s11, v{vA}")
    a(f"v_mul_u32_u24 v{vW}, 3584, v{vT}")
    a(f"v_and_b32 v{vT+4}, 1, v{vT+2}")
    a(f"v_lshlrev_b32 v{vT+4}, 2, v{vT+4}")
    a(f"v_xor_b32 v{vT+4}, v{vC}, v{vT+4}")
    a(f"v_lshl_add_u32 v{vW}, v{vT+4}, 4, v{vW}")
    a(f"s_lshl_b32 s11, s{S_NS}, 7")
    a(f"v_add_u32 v{vW}, s11, v{vW}")
    a(f"s_lshl_b32 s11, s{S_MT}, 8")
    a(f"s_lshl_b32 s12, s{S_W4}, 6")
    a("s_add_u32 s11, s11, s12")
    a(f"v_lshrrev_b32 v{vT}, 2, v{vA}")
    a(f"v_and_b32 v{vT+1}, 3, v{vA}")
    a(f"v_lshl_add_u32 v{vT}, v{vT}, 4, v{vT+1}")
    a(f"v_add_u32 v{vT}, s11, v{vT}")
    a(f"v_mul_u32_u24 v{vXe}, 896, v{vT}")
    a(f"v_xor_b32 v{vT+3}, v{vC}, v{vT+2}")
    a(f"v_lshl_add_u32 v{vXe}, v{vT+3}, 4, v{vXe}")
    a(f"v_xor_b32 v{vXo}, 64, v{vXe}")
    a(f"s_and_b32 s12, s{S_W4}, 1")
    a(f"s_lshl_b32 s11, s{S_NS}, 4")
    a(f"s_lshl_b32 s13, s12, 3")
    a("s_add_u32 s11, s11, s13")
    a(f"v_add_u32 v{vT}, s11, v{vA}")
    a(f"v_mul_u32_u24 v{vB}, 896, v{vT}")
    a(f"v_lshl_add_u32 v{vB}, v{vT+3}, 4, v{vB}")
    a("s_lshl_b32 s13, s12, 6")
    a(f"v_xor_b32 v{vB}, s13, v{vB}")
    a(f"s_lshl_b32 s{sMX}, s{S_W4}, 13")
    a(f"s_lshl_b32 s{sMW}, s{S_W4}, 11")
    a(f"s_lshl_b32 s{sMB}, s{S_W4}, 10")
    a(f"s_mul_i32 s{sMP}, s{S_W4}, {Q}")
    perms = cfg.perms
    words = [sum(p[k] << (4 * k) for k in range(7)) for p in perms]
    ng = len(words)
    a(f"s_mov_b32 s{sPerm}, {words[0]:#x}")
    if ng > 1:
        if cfg.slab:
            a(f"s_add_u32 s11, s{S_SLOT}, s{S_XCD}")
        else:
            a(f"s_and_b32 s11, s{S_SLOT}, 3")
            a(f"s_add_u32 s11, s11, s{S_NT}")
        if ng == 3:
            a("s_mul_i32 s13, s11, 43")
            a("s_lshr_b32 s13, s13, 7")
            a("s_mul_i32 s13, s13, 3")
            a("s_sub_u32 s11, s11, s13")
        else:
            a(f"s_and_b32 s11, s11, {ng-1}")
        for g in range(1, ng):
            a(f"s_cmp_eq_u32 s11, {g}")
            a(f"s_cmov_b32 s{sPerm}, {words[g]:#x}")
    ts.x(1, 1)
    a("s_waitcnt lgkmcnt(0)")
    ts.x(1, 2)
    if cfg.tlb:
        a(f"v_mov_b32 v40, s{P_X}")
        a(f"v_mov_b32 v41, s{P_X+1}")
        for ln, p in enumerate([P_WG, P_WU, P_BRE, P_BIM, P_WD, P_CRE, P_CIM, P_WS][:cfg.tlb], 1):
            a(f"v_writelane_b32 v40, s{p}, {ln}")
            a(f"v_writelane_b32 v41, s{p+1}, {ln}")
        a(f"s_mov_b64 exec, {(1 << (cfg.tlb + 1)) - 1:#x}")
        a("global_load_dword v62, v[40:41], off")
        a("s_mov_b64 exec, -1")
    srd(a, SRD_A, P_WG, 448 * 3584)
    srd(a, SRD_X, P_X, 2048 * 896)
    srd(a, SRD_B, P_WU, 448 * 3584)
    a(f"s_cmp_ge_u32 s{S_W4}, 2")
    srd_sel(a, SRD_C, P_BIM, P_BRE, 448 * 896)

    thr = [None]
    def dma(vm, tag, voff, srdn, sbase, soff, m0base, m0off, pol=""):
        a(f"s_add_u32 m0, s{m0base}, {m0off}")
        a(f"s_add_u32 s11, s{sbase}, {soff}")
        if thr[0] is not None and len(vm.q) > thr[0]:
            a(f"s_waitcnt vmcnt({thr[0]})")
            vm.q = vm.q[-thr[0]:]
        vm.issue(tag, f"buffer_load_dwordx4 v{voff}, s[{srdn}:{srdn+3}], s11 offen{pol} lds")
    def issue_ops(s):
        r = R[s % 3]
        ops = []
        def pre():
            a(f"s_bfe_u32 s{sSX}, s{sPerm}, {(4 << 16) | (4 * s):#x}")
            a(f"s_mul_i32 s{sSW}, s{sSX}, {64*3584}")
            a(f"s_lshl_b32 s{sSX}, s{sSX}, 7")
        def mk(*args): return lambda: dma(vm, ('st', s), *args)
        L = []
        for i in range(2): L.append(mk(vW, SRD_A, sSW, i * 8 * 3584, sMW, r + OFF_WG + i * 1024, polw))
        for j in range(4): L.append(mk(vXo if j & 1 else vXe, SRD_X, sSX, (32 * (j >> 2) + 4 * (j & 3)) * 896, sMX, r + j * 1024, polx))
        for i in range(2): L.append(mk(vW, SRD_B, sSW, i * 8 * 3584, sMW, r + OFF_WU + i * 1024, polw))
        for j in range(4, 8): L.append(mk(vXo if j & 1 else vXe, SRD_X, sSX, (32 * (j >> 2) + 4 * (j & 3)) * 896, sMX, r + j * 1024, polx))
        L.append(mk(vB, SRD_C, sSX, 0, sMB, r + OFF_BB, polw))
        first = L[0]
        L[0] = lambda: (pre(), first())
        return L
    SRD_WD, SRD_CC, sBlk, sFlip, P_DSK2 = 32, 28, 20, 25, 18
    def w_ops(ps):
        L = []
        for p in ps:
            for n in range(2):
                def op(p=p, n=n):
                    if n == 0:
                        a(f"s_add_u32 s12, s{sRF}, {p // 4}")
                        a("s_cmp_ge_u32 s12, 7")
                        a("s_cselect_b32 s13, 7, 0")
                        a("s_sub_u32 s12, s12, s13")
                        a(f"s_mul_i32 s12, s12, {64*896}")
                    if 2 <= p < 12:
                        d = STG + (p - 2) * 8 + 4 * n
                        a(f"s_add_u32 s11, s12, {((p % 4) * 16 + 8 * n) * 896}")
                        vm.issue(('w', p), f"buffer_load_dwordx4 v[{d}:{d+3}], v{vWd}, s[{SRD_WD}:{SRD_WD+3}], s11 offen")
                    else:
                        dma(vm, ('w', p), vWd, SRD_WD, 12, ((p % 4) * 16 + 8 * n) * 896, sMP, WSLOT[p] + n * 1024)
                L.append(op)
        return L
    def cf_ops(b, base):
        L = []
        for n in range(8):
            def op(n=n):
                if n == 0: a(f"s_mov_b32 s12, {b*128}")
                dma(vm, ('c', b), vCo if n & 1 else vCe, SRD_CC, 12, 8 * n * 896, sMP, base + n * 1024)
            L.append(op)
        return L
    def ch_ops(base):
        L = []
        for n in range(4):
            def op(n=n):
                if n == 0: a("s_mov_b32 s12, 0")
                dma(vm, ('c', 3), vCh, SRD_CC, 12, 16 * n * 896, sMP, base + n * 1024)
            L.append(op)
        return L
    def cf_read(b, base):
        a(f"s_add_u32 s11, s{sMP}, {base}")
        vm.wait(('c', b))
        for ks in range(4):
            for lc in range(2):
                t = vT + lc
                a(f"v_xor_b32 v{t}, {32*ks + 4096*lc}, v{vRf}")
                a(f"v_add_u32 v{t}, s11, v{t}")
                d = CF + (4 * b + ks) * 8 + 4 * lc
                a(f"ds_read_b128 v[{d}:{d+3}], v{t}")
    def ch_read(base):
        a(f"s_add_u32 s11, s{sMP}, {base}")
        vm.wait(('c', 3))
        for lc in range(2):
            a(f"v_xor_b32 v{vT+lc}, {2048*lc}, v{vRh}")
            a(f"v_add_u32 v{vT+lc}, s11, v{vT+lc}")
            for ks in range(2):
                d = CF + (12 + ks) * 8 + 4 * lc
                a(f"ds_read_b128 v[{d}:{d+3}], v{vT+lc} offset:{ks*32}")
    def w_write(ps):
        vm.wait(('w', ps[-1]))
        base = WSLOT[ps[0]]
        a(f"v_add_u32 v{vT+4}, {base}, v{vPQ}")
        for p in ps:
            for n in range(2):
                d = STG + (p - 2) * 8 + 4 * n
                a(f"ds_write_b128 v{vT+4}, v[{d}:{d+3}] offset:{WSLOT[p] - base + 1024*n}")
    def colsum_reads(s):
        r = R[s % 3]
        a(f"s_add_u32 s11, s{sMW}, {r + OFF_WG}")
        a(f"v_add_u32 v{vT}, s11, v{vP}")
        a(f"s_add_u32 s11, s{sMB}, {r + OFF_BB}")
        a(f"v_add_u32 v{vT+1}, s11, v{vP}")
        a(f"ds_read_b128 v[{RD}:{RD+3}], v{vT}")
        a(f"ds_read_b128 v[{RD+4}:{RD+7}], v{vT} offset:1024")
        a(f"ds_read_b128 v[{RD+8}:{RD+11}], v{vT} offset:8192")
        a(f"ds_read_b128 v[{RD+12}:{RD+15}], v{vT} offset:9216")
        a(f"ds_read_b128 v[{RD+16}:{RD+19}], v{vT+1}")
    def colsum_ops():
        L = ["s_waitcnt lgkmcnt(0)"]
        for n in range(4):
            for d in range(4):
                w = RD + 4 * n + d
                ac = CA + (n >> 1) * 8 + 2 * d
                L.append(f"v_lshlrev_b32 v{vT+2}, 16, v{w}")
                L.append(f"v_and_b32 v{vT+3}, s71, v{w}")
                L.append(f"v_add_f32 v{ac}, v{ac}, v{vT+2}")
                L.append(f"v_add_f32 v{ac+1}, v{ac+1}, v{vT+3}")
        for d in range(4):
            w = RD + 16 + d
            L.append(f"v_lshlrev_b32 v{vT+2}, 16, v{w}")
            L.append(f"v_and_b32 v{vT+3}, s71, v{w}")
            L.append(f"v_add_f32 v{vT+2}, v{vT+2}, v{vT+3}")
            L.append(f"v_add_f32 v{ACC}, v{ACC}, v{vT+2}")
        return L

    stage_ops = {}
    def tok_ops(toks):
        L = []
        for t in toks:
            if t[0] == 's':
                st = int(t[1])
                if st not in stage_ops: stage_ops[st] = issue_ops(st)
                lo, hi = (0, 13) if ':' not in t else map(int, t.split(':')[1].split('-'))
                L += stage_ops[st][lo:hi]
            elif t[0] == 'w': L += w_ops([int(t[1:])])
            elif t == 'c0': L += cf_ops(0, SA[0])
            elif t == 'c1': L += cf_ops(1, SB[0])
            elif t == 'c2': L += [lambda: a("s_waitcnt lgkmcnt(0)")] + cf_ops(2, SA[0])
            elif t == 'ch': L += ch_ops(SA[4])
            else: L.append(lambda t=t: special(t))
        return L
    def run_tokens(toks):
        for o in tok_ops(toks): o()
    def special(t):
        if True:
            if t == 'r0':
                cf_read(0, SA[0]); ch_read(SA[4])
            elif t == 'put':
                vm.wait('stats')
                a(f"s_lshl_b32 s11, s{S_W4}, 9")
                a(f"s_add_u32 s11, s11, {STATS_L}")
                a(f"v_lshl_add_u32 v{vT+4}, v0, 3, s11")
                a(f"ds_write_b64 v{vT+4}, v[20:21]")
                a(f"v_lshlrev_b32 v{vT+4}, 3, v0")
                a(f"v_add_u32 v{vT+4}, {ST2_L}, v{vT+4}")
                a(f"ds_write_b64 v{vT+4}, v[22:23]")
            elif t == 'e':
                a(f"s_add_u32 s12, s27, {16*896}")
                vm.issue('e', f"buffer_load_dwordx4 v[{XRAW}:{XRAW+3}], v{XRAW+9}, s[{SRD_X}:{SRD_X+3}], s27 offen")
                vm.issue('e', f"buffer_load_dwordx4 v[{XRAW+4}:{XRAW+7}], v{XRAW+9}, s[{SRD_X}:{SRD_X+3}], s12 offen")
                vm.issue('e', f"global_load_ushort v{XRAW+8}, v{XRAW+10}, s[{P_DSK2}:{P_DSK2+1}]")
            elif t == 'init':
                a(f"v_mov_b32 v26, 0")
                vm.issue('init', f"global_load_dword v5, v26, s[{P_DBG}:{P_DBG+1}] sc1")
            elif t == 'fetch':
                vm.wait('init')
                def cond():
                    a(f"v_readfirstlane_b32 s11, v5")
                    a(f"s_cmp_ge_u32 s11, {INIT_N}")
                spin_check(a, "L_init", [f"global_load_dword v5, v26, s[{P_DBG}:{P_DBG+1}] sc1"], cond, 8)
                a(f"s_lshl_b32 s11, s{S_MT}, 8")
                a(f"s_lshl_b32 s12, s{S_W4}, 6")
                a("s_add_u32 s11, s11, s12")
                a(f"v_add_lshl_u32 v5, v0, s11, 3")
                a(f"s_lshl_b32 s12, s{S_M64}, 6")
                a(f"v_add_lshl_u32 v26, v0, s12, 3")
                a(f"s_mov_b32 s11, {WS_STATS:#x}")
                vm.issue('stats', f"buffer_load_dwordx2 v[20:21], v5, s[{SRD_WS}:{SRD_WS+3}], s11 offen sc1")
                vm.issue('stats', f"buffer_load_dwordx2 v[22:23], v26, s[{SRD_WS}:{SRD_WS+3}], s11 offen sc1")
            else: raise ValueError(t)
    win = cfg.win
    run_tokens(["s0"])
    ts(1)
    ts.x(1, 6)
    run_tokens(win.get(-1, []))
    a("s_setprio 0")
    a(f"s_and_b32 s12, s{S_W4}, 1")
    a(f"v_lshlrev_b32 v{vP}, 4, v0")
    a(f"v_add_u32 v{vPQ}, s{sMP}, v{vP}")
    a(f"s_mul_i32 s14, s{S_W4}, 448")
    a(f"v_add_u32 v{vT}, s14, v{vA}")
    a(f"v_mul_u32_u24 v{vWd}, 896, v{vT}")
    a(f"v_lshl_add_u32 v{vWd}, v{vT+4}, 4, v{vWd}")
    a(f"s_lshl_b32 s14, s{S_NT}, 7")
    a(f"v_add_u32 v{vWd}, s14, v{vWd}")
    a(f"s_lshl_b32 s14, s{S_NT}, 6")
    a(f"v_add_u32 v{vT}, s14, v{vA}")
    a(f"v_mul_u32_u24 v{vCe}, 896, v{vT}")
    a(f"v_lshl_add_u32 v{vCe}, v{vT+3}, 4, v{vCe}")
    a("s_lshl_b32 s13, s12, 9")
    a(f"v_add_u32 v{vCe}, s13, v{vCe}")
    a(f"v_xor_b32 v{vCo}, 64, v{vCe}")
    a(f"v_lshrrev_b32 v{vT}, 2, v0")
    a(f"v_add_u32 v{vT}, s14, v{vT}")
    a(f"v_mul_u32_u24 v{vCh}, 896, v{vT}")
    a(f"v_and_b32 v{vT+1}, 3, v0")
    a(f"v_lshl_add_u32 v{vCh}, v{vT+1}, 4, v{vCh}")
    a("s_lshl_b32 s13, s12, 6")
    a("s_add_u32 s13, s13, 384")
    a(f"v_add_u32 v{vCh}, s13, v{vCh}")
    a("s_mov_b32 s71, 0xffff0000")
    for k in range(17): a(f"v_mov_b32 v{ACC+k}, 0")
    srd(a, SRD_WS, P_WS, WS_SIZE)
    a(f"s_cmp_ge_u32 s{S_W4}, 2")
    srd_sel(a, SRD_CC, P_CIM, P_CRE, 448 * 896)
    a(f"s_mov_b64 s[{P_DSK2}:{P_DSK2+1}], s[{P_DSK}:{P_DSK+1}]")
    srd(a, SRD_WD, P_WD, 1792 * 896)
    p2_rot(a, cfg, sRF, sBlk, sFlip)
    a(f"s_lshl_b32 s11, s{S_M64}, 1")
    a("s_add_u32 s26, s11, s12")
    a("s_lshl_b32 s12, s26, 5")
    a(f"v_lshrrev_b32 v{vT}, 2, v0")
    a(f"v_add_u32 v{vT}, s12, v{vT}")
    a(f"v_mul_u32_u24 v{vT}, 896, v{vT}")
    a(f"v_lshl_add_u32 v{XRAW+9}, v{vT+1}, 4, v{vT}")
    a(f"v_lshrrev_b32 v{vT+2}, 5, v0")
    a(f"v_lshl_add_u32 v{vT}, v{vT+2}, 4, s12")
    a(f"s_lshr_b32 s13, s{S_W4}, 1")
    a("s_lshl_b32 s12, s13, 5")
    a(f"s_lshl_b32 s11, s{S_NT}, 6")
    a("s_add_u32 s11, s11, s12")
    a("s_lshl_b32 s27, s11, 1")
    a(f"v_and_b32 v{vT+3}, 31, v0")
    a(f"v_add_u32 v{vT+1}, s11, v{vT+3}")
    a(f"v_mul_u32_u24 v{vT}, 448, v{vT}")
    a(f"v_add_lshl_u32 v{vO}, v{vT}, v{vT+1}, 2")
    a(f"v_lshlrev_b32 v{XRAW+10}, 1, v{vT+1}")
    a(f"v_bfe_u32 v{vT}, v0, 1, 3")
    a(f"v_xor_b32 v{vT}, v{vT}, v{vT+2}")
    a(f"v_lshlrev_b32 v{vT}, 4, v{vT}")
    a(f"v_lshl_add_u32 v{vRf}, v{vT+3}, 7, v{vT}")
    a("s_lshl_b32 s12, s13, 12")
    a(f"v_add_u32 v{vRf}, s12, v{vRf}")
    a(f"v_lshlrev_b32 v{vT}, 4, v{vT+2}")
    a(f"v_lshl_add_u32 v{vRh}, v{vT+3}, 6, v{vT}")
    a("s_lshl_b32 s12, s13, 11")
    a(f"v_add_u32 v{vRh}, s12, v{vRh}")
    a(f"v_bfe_u32 v{vT}, v0, 4, 1")
    a(f"v_lshlrev_b32 v{vT+1}, 2, v{vT}")
    a(f"v_xor_b32 v{vC}, v{vC}, v{vT+1}")
    a(f"v_lshlrev_b32 v{vC}, 5, v{vC}")
    a(f"v_lshl_add_u32 v{vC}, v{vT}, 9, v{vC}")
    a(f"v_lshl_add_u32 v{vC}, v{vT+2}, 8, v{vC}")
    a(f"s_add_u32 s11, s{sMB}, {CP_L}")
    a(f"v_add_u32 v{vC}, s11, v{vC}")
    a(f"s_lshl_b32 s11, s{S_W4}, 5")
    a(f"s_add_u32 s11, s11, {C_L + 512}")
    a(f"v_lshl_add_u32 v{vA}, v{vA}, 2, s11")
    a(f"s_lshl_b32 s21, s{S_NS}, 7")
    a(f"s_mul_i32 s22, s{S_MT}, 3584")
    a("s_add_u32 s22, s22, s21")
    a(f"s_add_u32 s22, s22, {WS_AGG:#x}")
    a(f"s_mov_b32 s23, {WS_AGG:#x}")
    a(f"s_mov_b32 s24, {WS_AGG + 4*3584:#x}")
    ts.x(1, 8)
    for s in range(7):
        vm.wait(('st', s))
        ts.x(2, 1 + s)
        a("s_barrier")
        ts.x(3, 1 + s)
        if s == 0: ts(2)
        colsum_reads(s)
        ops = tok_ops(win.get(s, []))
        fl = colsum_ops() if not cfg.nocs else ['s_waitcnt lgkmcnt(0)']
        if s == 6:
            b = ACC
            for k in range(8): fl.append(f"v_permlane32_swap_b32 v{CA+k}, v{CA+8+k}")
            fl.append(f"v_add_f32_dpp v{b}, v{b}, v{b} quad_perm:[1,0,3,2] row_mask:0xf bank_mask:0xf")
            for k in range(8): fl.append(f"v_add_f32 v{CA+k}, v{CA+k}, v{CA+8+k}")
            fl.append(f"v_add_f32_dpp v{b}, v{b}, v{b} quad_perm:[2,3,0,1] row_mask:0xf bank_mask:0xf")
            for k in range(8): fl.append(f"v_add_f32_dpp v{CA+k}, v{CA+k}, v{CA+k} row_ror:8 row_mask:0xf bank_mask:0xf")
            fl.append(f"v_add_f32_dpp v{b}, v{b}, v{b} row_half_mirror row_mask:0xf bank_mask:0xf")
            fl.append(f"ds_write_b128 v{vC}, v[{CA}:{CA+3}]")
            fl.append(f"ds_write_b128 v{vC}, v[{CA+4}:{CA+7}] offset:16")
            fl.append(f"ds_write_b32 v{vA}, v{b}")
        per = max(1, -(-len(fl) // max(1, len(ops))))
        interleave(a, ops, fl, per)
    a(f"s_and_b32 s12, s{S_W4}, 1")
    a("s_lshl_b32 s12, s12, 8")
    a(f"v_lshl_add_u32 v{vT}, v0, 2, s12")
    a(f"v_add_u32 v{vT+1}, {CP_L}, v{vT}")
    a(f"v_add_u32 v{vT}, {C_L}, v{vT}")
    a("s_waitcnt lgkmcnt(0)")
    ts.x(2, 8)
    a("s_setprio 3")
    a("s_barrier")
    ts(3)
    ts.x(3, 8)
    QQ = 28
    for p in range(8): a(f"ds_read_b32 v{QQ+p}, v{vT+1} offset:{512*p}")
    a("s_waitcnt lgkmcnt(0)")
    for p in range(4): a(f"v_add_f32 v{QQ+p}, v{QQ+p}, v{QQ+4+p}")
    a(f"v_add_f32 v{QQ}, v{QQ}, v{QQ+2}")
    a(f"v_add_f32 v{QQ+1}, v{QQ+1}, v{QQ+3}")
    a(f"v_add_f32 v{QQ}, v{QQ}, v{QQ+1}")
    a(f"ds_write_b32 v{vT}, v{QQ}")
    a("s_waitcnt lgkmcnt(0)")
    a("s_barrier")
    run_tokens(win.get(7, []))
    a("s_setprio 0")
    vCh8, vAg, vPr, vFl = 1, 2, 3, 4
    vCar, vSt = 30, 31
    LR, LI, W0R = 20, 21, 24
    a(f"v_and_b32 v{vCh8}, 15, v0")
    a(f"v_lshlrev_b32 v{vCh8}, 3, v{vCh8}")
    a(f"v_add_u32 v{vT}, {KC_L}, v{vCh8}")
    a(f"ds_read_b64 v[{LR}:{LI}], v{vT}")
    a(f"v_add_u32 v{vT+1}, {KC_L + 128}, v{vP}")
    a(f"ds_read_b128 v[{W0R}:{W0R+3}], v{vT+1}")
    w_write([2, 3, 4, 5, 6, 7])
    cf_read(1, SB[0])
    w_write([8, 9, 10, 11])
    a(f"v_add_u32 v{vAg}, {AGG_L}, v{vCh8}")
    a(f"v_lshrrev_b32 v{vPr}, 4, v0")
    a(f"s_sub_u32 s11, s{S_MT}, 1")
    a(f"v_sub_u32 v{vT}, s11, v{vPr}")
    a(f"v_cmp_le_i32 s[56:57], 0, v{vT}")
    a(f"v_cmp_le_i32 s[58:59], 4, v{vT}")
    a(f"v_mul_u32_u24 v{vPr}, 3584, v{vPr}")
    a(f"v_add3_u32 v{vPr}, v{vPr}, v{vCh8}, s21")
    a(f"v_min_u32 v{vFl}, 27, v0")
    a(f"v_lshlrev_b32 v{vFl}, 2, v{vFl}")
    a(f"s_lshl_b32 s74, s{S_M64}, 8")
    a(f"s_add_u32 s74, s74, {WS_FLAG:#x}")
    a(f"v_lshlrev_b32 v{vCar}, 3, v0")
    a(f"v_add_u32 v{vCar}, {CAR_L}, v{vCar}")
    XV, STT, DS = 64, 80, 60
    TT = SACC + 32
    a(f"v_add_u32 v{vT+4}, {HTS}, v{vPQ}")
    a(f"ds_write_b128 v{vT+4}, v[{XRAW}:{XRAW+3}]")
    a(f"ds_write_b128 v{vT+4}, v[{XRAW+4}:{XRAW+7}] offset:1024")
    a(f"v_lshlrev_b32 v{DS}, 16, v{XRAW+8}")
    if cfg.r2pre: cf_read(2, SA[0])
    GR, GI = 22, 23
    a(f"v_mov_b32 v{GR}, 1.0")
    a(f"v_mov_b32 v{GI}, 0")
    a(f"v_and_b32 v{vT}, 16, v0")
    a(f"v_cmp_ne_u32 vcc, 0, v{vT}")
    a("s_waitcnt lgkmcnt(15)")
    a(f"v_cndmask_b32 v{GR}, v{GR}, v{LR}, vcc")
    a(f"v_cndmask_b32 v{GI}, v{GI}, v{LI}, vcc")
    csq(a, 28, 29, LR, LI, vT)
    cmul(a, vT, vT + 1, GR, GI, 28, 29)
    a(f"v_cmp_lt_u32 vcc, 31, v0")
    a(f"v_cndmask_b32 v{GR}, v{GR}, v{vT}, vcc")
    a(f"v_cndmask_b32 v{GI}, v{GI}, v{vT+1}, vcc")
    vm.wait(('w', 1))
    a("s_waitcnt lgkmcnt(0)")
    ts.x(2, 9)
    a(f"s_setprio {cfg.lprio}")
    a("s_barrier")
    ts(4)
    a(f"s_cmp_lg_u32 s{S_W4}, 0")
    a("s_cbranch_scc1 L_l_nocomb")
    E, SR, SI, T1, T2, G0, G1, QR, QI = 32, 40, 41, 42, 43, 44, 46, 48, 49
    for i in range(4): a(f"ds_read_b64 v[{E+2*i}:{E+2*i+1}], v{vAg} offset:{128*i}")
    a(f"v_mov_b32 v{QR}, 0")
    a(f"v_mov_b32 v{QI}, 0")
    for i in range(1, 4):
        e, p = E + 2 * i, E + 2 * (i - 1)
        a(f"s_waitcnt lgkmcnt({3 - i})")
        a(f"v_fma_f32 v{e}, -v{LI}, v{p+1}, v{e}")
        a(f"v_fma_f32 v{e+1}, v{LI}, v{p}, v{e+1}")
        a(f"v_fmac_f32 v{e}, v{LR}, v{p}")
        a(f"v_fmac_f32 v{e+1}, v{LR}, v{p+1}")
    e = E + 6
    a(f"v_cmp_eq_u32 vcc, -1, v{e}")
    a(f"v_mov_b32 v{T1}, 0x7fc00000")
    a(f"v_cndmask_b32 v{e}, v{e}, v{T1}, vcc")
    a("s_mov_b64 exec, 0xffff")
    a(f"buffer_store_dwordx2 v[{e}:{e+1}], v{vCh8}, s[{SRD_WS}:{SRD_WS+3}], s22 offen sc1")
    for g in range(1, 4):
        m = 0xffff << (16 * g)
        a(f"s_mov_b32 exec_lo, {m & 0xffffffff:#x}")
        a(f"s_mov_b32 exec_hi, {m >> 32:#x}")
        a(f"v_mov_b32 v{QR}, v{E+2*(g-1)}")
        a(f"v_mov_b32 v{QI}, v{E+2*(g-1)+1}")
    a("s_mov_b64 exec, -1")
    ts(5)
    a.label("L_l_nocomb")
    if cfg.r2pre:
        for o in w_ops(range(12, 14)): o()
    else:
        cf_read(2, SA[0])
    ts.x(2, 10)
    a("s_barrier")
    thr[0] = cfg.thr
    lds = [f"buffer_load_dwordx2 v[{G0}:{G0+1}], v{vPr}, s[{SRD_WS}:{SRD_WS+3}], s23 offen sc1",
           f"buffer_load_dwordx2 v[{G1}:{G1+1}], v{vPr}, s[{SRD_WS}:{SRD_WS+3}], s24 offen sc1"]
    for o in w_ops(range(16, 26)): o()
    a("s_waitcnt lgkmcnt(0)")
    for o in w_ops(range(14 if cfg.r2pre else 12, 16)): o()
    ts(8)
    a(f"s_cmp_lg_u32 s{S_W4}, 0")
    a("s_cbranch_scc1 L_l_np0")
    for t in lds: a(t)
    a.label("L_l_np0")
    a(f"v_lshrrev_b32 v{vSt}, 5, v0")
    a(f"v_lshlrev_b32 v{vT+4}, 10, v{vSt}")
    a(f"v_and_b32 v{vT}, 31, v0")
    a(f"v_lshl_add_u32 v{vT+4}, v{vT}, 1, v{vT+4}")
    a(f"s_add_u32 s11, s{sMP}, {HTS}")
    a(f"v_add_u32 v{vT+4}, s11, v{vT+4}")
    for r in range(16): a(f"ds_read_u16 v{XV+r}, v{vT+4} offset:{64*r}")
    a(f"s_cmp_lg_u32 s{S_W4}, 0")
    a("s_cbranch_scc1 L_l_nopoll")
    a("s_waitcnt vmcnt(0)")
    def cond():
        a(f"v_cmp_eq_u32 vcc, -1, v{G0}")
        a("s_and_b64 s[48:49], vcc, s[56:57]")
        a(f"v_cmp_eq_u32 vcc, -1, v{G1}")
        a("s_and_b64 s[50:51], vcc, s[58:59]")
        a("s_or_b64 s[48:49], s[48:49], s[50:51]")
        a("s_cmp_eq_u64 s[48:49], 0")
    spin_check(a, "L_agg", lds, cond)
    ts(6)
    cmul(a, SR, SI, G0, G0 + 1, W0R, W0R + 1)
    cmul(a, T1, T2, G1, G1 + 1, W0R + 2, W0R + 3)
    a(f"v_cndmask_b32 v{SR}, 0, v{SR}, s[56:57]")
    a(f"v_cndmask_b32 v{SI}, 0, v{SI}, s[56:57]")
    a(f"v_cndmask_b32 v{T1}, 0, v{T1}, s[58:59]")
    a(f"v_cndmask_b32 v{T2}, 0, v{T2}, s[58:59]")
    a(f"v_add_f32 v{SR}, v{SR}, v{T1}")
    a(f"v_add_f32 v{SI}, v{SI}, v{T2}")
    for sw in ("v_permlane32_swap_b32", "v_permlane16_swap_b32"):
        a(f"v_mov_b32 v{T1}, v{SR}")
        a(f"v_mov_b32 v{T2}, v{SI}")
        a(f"{sw} v{SR}, v{T1}")
        a(f"{sw} v{SI}, v{T2}")
        a(f"v_add_f32 v{SR}, v{SR}, v{T1}")
        a(f"v_add_f32 v{SI}, v{SI}, v{T2}")
    a(f"v_fmac_f32 v{QR}, v{GR}, v{SR}")
    a(f"v_fmac_f32 v{QI}, v{GR}, v{SI}")
    a(f"v_fma_f32 v{QR}, -v{GI}, v{SI}, v{QR}")
    a(f"v_fmac_f32 v{QI}, v{GI}, v{SR}")
    a(f"ds_write_b64 v{vCar}, v[{QR}:{QI}]")
    a.label("L_l_nopoll")
    a("s_setprio 0")
    a("s_waitcnt lgkmcnt(0)")
    a("s_barrier")
    ts(7)
    a(f"s_and_b32 s11, s{S_W4}, 1")
    a("s_lshl_b32 s11, s11, 8")
    a(f"s_add_u32 s11, s11, {ST2_L}")
    a(f"v_lshl_add_u32 v{vSt}, v{vSt}, 7, s11")
    for k in range(8): a(f"ds_read_b128 v[{STT+4*k}:{STT+4*k+3}], v{vSt} offset:{16*k}")
    vm.wait_all("lgkmcnt(0)")
    a("s_barrier")
    def rnd_pair(r0, r1):
        a(f"v_cvt_pk_bf16_f32 v{r1}, v{r0}, v{r1}"); a(f"v_lshlrev_b32 v{r0}, 16, v{r1}"); a(f"v_and_b32 v{r1}, s71, v{r1}")
    for r in range(16): a(f"v_lshlrev_b32 v{XV+r}, 16, v{XV+r}")
    for r in range(16): a(f"v_sub_f32 v{TT+r}, v{XV+r}, v{STT+2*r}")
    for k in range(8): rnd_pair(TT + 2 * k, TT + 2 * k + 1)
    for r in range(16): a(f"v_mul_f32 v{TT+r}, v{TT+r}, v{STT+2*r+1}")
    for k in range(8): rnd_pair(TT + 2 * k, TT + 2 * k + 1)
    for r in range(16): a(f"v_mul_f32 v{TT+r}, v{TT+r}, v{DS}")
    for k in range(8): rnd_pair(TT + 2 * k, TT + 2 * k + 1)
    def poll(name, off):
        ld = f"buffer_load_dword v{vFv}, v{vFl}, s[{SRD_WS}:{SRD_WS+3}], s74 offen offset:{off} sc1"
        vm.issue(name, ld)
        vm.wait(name)
        def cond():
            a(f"v_cmp_ne_u32 vcc, 1, v{vFv}")
            a("s_cmp_eq_u64 vcc, 0")
        spin_check(a, name, [ld], cond, cfg.psleep)
    a(f"s_mul_i32 s57, s26, {RT_BYTES}")
    a("s_xor_b32 s11, s26, 1")
    a(f"s_mul_i32 s56, s11, {RT_BYTES}")
    a(f"s_lshr_b32 s11, s{S_W4}, 1")
    a(f"s_mul_i32 s11, s11, {HALF_BYTES}")
    a(f"s_add_u32 s11, s11, {56*1024}")
    a("s_add_u32 s56, s56, s11")
    a("s_add_u32 s57, s57, s11")
    a(f"s_and_b32 s12, s{S_W4}, 1")
    a("s_lshl_b32 s13, s12, 14")
    for b in range(3):
        a(f"s_add_u32 s11, s{sBlk}, {b}")
        a("s_cmp_ge_u32 s11, 3")
        a("s_cselect_b32 s22, 3, 0")
        a("s_sub_u32 s11, s11, s22")
        a("s_lshl_b32 s11, s11, 12")
        a(f"s_add_u32 s{52+b}, s11, s13")
    a("s_lshl_b32 s12, s12, 11")
    a(f"s_add_u32 s55, s12, {12*1024}")
    srd(a, 60, P_OUT, 2048 * 1792)
    vW1, vW2, vCn, vCv = 1, 2, 9, 10
    vR = [11, 12, 13, 14]
    a(f"v_add_u32 v{vW1}, {PH1}, v{vPQ}")
    a(f"v_add_u32 v{vW2}, {PH2}, v{vPQ}")
    a(f"v_mov_b32 v{vCn}, {CNT_L}")
    for (reg, xr, base) in ((vR[0], 1, PH1), (vR[1], 3, PH1 + 4096), (vR[2], 2, PH2)):
        a(f"s_xor_b32 s11, s{S_W4}, {xr}")
        a(f"s_mul_i32 s11, s11, {Q}")
        a(f"s_add_u32 s11, s11, {base}")
        a(f"v_add_u32 v{reg}, s11, v{vP}")
    a(f"v_add_u32 v{vR[3]}, {GA}, v{vPQ}")
    ts.x(2, 11)
    AR = list(range(16, 64, 4))
    NA = len(AR)
    def aload(n):
        lr, p = n // 14, n % 14
        if p % 4 == 0: a(f"s_add_u32 s58, s{56+lr}, s{52 + p//4}")
        d = AR[n % NA]
        vm.issue(('a', n), f"buffer_load_dwordx4 v[{d}:{d+3}], v{vP}, s[{SRD_WS}:{SRD_WS+3}], s58 offen offset:{(p%4)*1024}{AP}")
    def cnt_wait(name, off):
        a("s_mov_b32 s73, 0")
        a.label(name)
        a("s_waitcnt lgkmcnt(0)")
        a(f"v_readfirstlane_b32 s11, v{vCv}")
        a("s_cmp_ge_u32 s11, 4")
        a(f"s_cbranch_scc1 {name}ok")
        a("s_add_u32 s73, s73, 1")
        a(f"s_cmp_ge_u32 s73, {SPIN_MAX}")
        a(f"s_cbranch_scc1 {name}ok")
        a("s_sleep 1")
        a(f"ds_read_b32 v{vCv}, v{vCn} offset:{off}")
        a(f"s_branch {name}")
        a.label(name + "ok")
        a("s_nop 7")
    a(f"ds_read_b32 v{vCv}, v{vCn} offset:4")
    cnt_wait("L_l_c0", 4)
    if cfg.sprio: a(f"s_setprio {cfg.sprio}")
    poll("L_ps", 128)
    ts(9)
    ts.x(7, 1)
    for n in range(NA): aload(n)
    a("s_setprio 0")
    ts.x(7, 2)
    for n in range(28):
        lr, p = n // 14, n % 14
        vm.wait(('a', n))
        if n in (0, 7, 14, 21): ts.x(7, 3 + n // 7)
        d = AR[n % NA]
        for lc in (1, 0):
            acc = SACC + 32 * lr + 16 * lc
            c = "0" if (p == 0 and not (lr == 1 and lc == 0)) else f"v[{acc}:{acc+15}]"
            f = CF + 8 * p + 4 * lc
            a(f"v_mfma_f32_32x32x16_bf16 v[{acc}:{acc+15}], v[{d}:{d+3}], v[{f}:{f+3}], {c}")
        if n + NA < 28: aload(n + NA)
        if 16 <= n < 24:
            k = n - 16
            a(f"ds_write_b128 v{vW1}, v[{SACC+4*k}:{SACC+4*k+3}] offset:{1024*k}")
    ts(10)
    ts.x(7, 7)
    ts.x(7, 8)
    for k in range(4):
        a(f"ds_write_b128 v{vW2}, v[{SACC+48+4*k}:{SACC+48+4*k+3}] offset:{1024*k}")
    a("s_waitcnt lgkmcnt(0)")
    ts.x(7, 9)
    a("s_barrier")
    ts(11)
    ts.x(7, 10)
    RX = CF
    for k in range(4):
        for w in range(4):
            a(f"ds_read_b128 v[{RX+16*w+4*k}:{RX+16*w+4*k+3}], v{vR[w]} offset:{1024*k}")
    for k in range(4):
        a(f"s_waitcnt lgkmcnt({12 - 4*k})")
        for r in range(4 * k, 4 * k + 4):
            a(f"v_add_f32 v{TT+r}, v{TT+r}, v{RX+r}")
            a(f"v_add_f32 v{RX+16+r}, v{RX+16+r}, v{RX+32+r}")
        for r in range(4 * k, 4 * k + 4):
            a(f"v_add_f32 v{TT+r}, v{TT+r}, v{RX+16+r}")
        for r in range(4 * k, 4 * k + 4):
            a(f"v_fma_f32 v{XV+r}, v{TT+r}, v{RX+48+r}, v{XV+r}")
            if r % 2 == 0: a(f"s_mov_b32 s11, {r*1792}")
            a(f"buffer_store_dword v{XV+r}, v{vO}, s[60:63], s11 offen offset:{(r%2)*1792}{OP}")
    if cfg.ts:
        a("s_waitcnt vmcnt(0)")
        ts(12)
    ts.dump(16, 17)
    a("s_endpgm")

def gen_consumer(a, cfg, ts):
    a.label("L_consumer")
    SP = ["", " sc1", " nt", " sc1 nt"][cfg.spol]
    FP = ["", " sc1"][cfg.fpol]
    AP = ['', ' sc1', ' sc1 nt', ' sc0 sc1', ' sc0', ' nt'][cfg.apol]
    vm = VM(a)
    XA = [1, 2, 3, 4]; BA = [5, 6, 7, 8]; WA = [9, 10]
    LR, LI, CR, CI = 12, 13, 14, 15
    T = 16
    FS = [40, 68]
    ACC = 96
    def G(ft, q): return ACC + 16 * (2 * ft + q)
    def U(ft, q): return ACC + 64 + 16 * (2 * ft + q)
    def S(q): return ACC + 128 + 16 * q
    vI, vH = T, T + 1
    a(f"v_and_b32 v{vI}, 31, v0")
    a(f"v_lshrrev_b32 v{vH}, 5, v0")
    ts.x(1, 1)
    a("s_waitcnt lgkmcnt(0)")
    ts.x(1, 2)
    K = 40
    a(f"s_lshl_b32 s11, s{S_NS}, 5")
    a(f"s_load_dwordx8 s[48:55], s[{P_LRE}:{P_LRE+1}], s11")
    a(f"s_load_dwordx8 s[56:63], s[{P_LIM}:{P_LIM+1}], s11")
    a(f"s_load_dwordx8 s[64:71], s[{P_LDT}:{P_LDT+1}], s11")
    for k in range(160): a(f"v_mov_b32 v{ACC+k}, 0")
    a("s_mov_b32 s12, 0x00030003")
    a("s_mov_b32 s13, 0x00030003")
    a("s_waitcnt lgkmcnt(0)")
    ts.x(1, 4)
    for k in range(8):
        a(f"s_lshl_b64 exec, s[12:13], {2*k}")
        for m in range(3): a(f"v_mov_b32 v{K+m}, s{48+8*m+k}")
    a("s_mov_b64 exec, -1")
    a(f"v_and_b32 v{K+3}, 1, v0")
    a(f"v_lshlrev_b32 v{K+3}, 4, v{K+3}")
    for m in range(3): a(f"v_lshrrev_b32 v{K+m}, v{K+3}, v{K+m}")
    srd(a, SRD_WS, P_WS, WS_SIZE)
    a(f"v_bfe_u32 v{T+2}, v0, 1, 3")
    a(f"v_xor_b32 v{T+2}, v{T+2}, v{vH}")
    a(f"v_lshlrev_b32 v{T+2}, 4, v{T+2}")
    a(f"v_lshl_add_u32 v{T+2}, v{vI}, 7, v{T+2}")
    a(f"s_lshl_b32 s11, s{S_W4}, 13")
    for ks in range(4):
        a(f"v_xor_b32 v{T+3}, {32*ks}, v{T+2}")
        a(f"v_add_u32 v{XA[ks]}, s11, v{T+3}")
        a(f"v_add_u32 v{BA[ks]}, {OFF_BB}, v{T+3}")
    a(f"v_bfe_u32 v{T+2}, v0, 2, 2")
    a(f"v_lshl_add_u32 v{T+3}, v{vH}, 3, v{T+2}")
    a(f"v_lshlrev_b32 v{T+3}, 7, v{T+3}")
    a(f"v_lshrrev_b32 v{T+2}, 1, v{T+2}")
    a(f"v_lshl_add_u32 v{T+3}, v{T+2}, 6, v{T+3}")
    a(f"v_bfe_u32 v{T+2}, v0, 4, 1")
    a(f"v_lshl_add_u32 v{T+3}, v{T+2}, 5, v{T+3}")
    a(f"v_and_b32 v{T+2}, 3, v0")
    a(f"v_lshl_add_u32 v{T+3}, v{T+2}, 3, v{T+3}")
    a(f"v_add_u32 v{WA[0]}, {OFF_WG}, v{T+3}")
    a(f"v_xor_b32 v{WA[1]}, 64, v{WA[0]}")
    vRun8, vStS, vCB, vStF, vL16, vCL = T + 2, T + 3, T + 4, T + 5, T + 6, T + 7
    vF, vO, vXo, vSo, vDo, vTW, vTR = T + 8, T + 9, T + 10, T + 11, T + 12, T + 13, T + 14
    MM = T + 16
    HR, HI, T1, T2 = T + 18, T + 19, T + 20, T + 21
    CBR, CBI = T + 22, T + 23
    t0, t1 = 60, 61
    a(f"v_bfe_u32 v{t0}, v0, 4, 1")
    a(f"v_lshl_add_u32 v{t0}, v{t0}, 1, v{vH}")
    a(f"s_mul_i32 s62, s{S_W4}, {Q}")
    a(f"s_add_u32 s12, s62, {HTS}")
    a(f"v_and_b32 v{t1}, 15, v0")
    a(f"v_and_b32 v{vTW}, 6, v{t1}")
    a(f"v_lshlrev_b32 v{vTW}, 4, v{vTW}")
    a(f"v_lshlrev_b32 v{vTR}, 5, v{t0}")
    a(f"v_xor_b32 v{vTW}, v{vTW}, v{vTR}")
    a(f"v_lshl_add_u32 v{vTW}, v{t1}, 7, v{vTW}")
    a(f"v_add_u32 v{vTW}, s12, v{vTW}")
    a(f"s_lshl_b32 s11, s{S_W4}, 2")
    a(f"v_add_u32 v{t0}, s11, v{t0}")
    a(f"v_lshlrev_b32 v{t0}, 7, v{t0}")
    a(f"v_add_u32 v{vStS}, {STATS_L}, v{t0}")
    a(f"s_lshl_b32 s11, s{S_W4}, 7")
    a(f"s_add_u32 s11, s11, {AGG_L}")
    a(f"v_lshl_add_u32 v{vRun8}, v{t1}, 3, s11")
    a(f"v_lshlrev_b32 v{vCB}, 2, v{t1}")
    a(f"v_add_u32 v{vCB}, {C_L + 512}, v{vCB}")
    a(f"v_bfe_u32 v{t0}, v0, 2, 1")
    a(f"v_lshlrev_b32 v{t0}, 4, v{t0}")
    a(f"v_and_b32 v{t1}, 3, v0")
    a(f"v_add_u32 v{t0}, v{t0}, v{t1}")
    a(f"v_bfe_u32 v{t1}, v0, 3, 2")
    a(f"v_lshl_add_u32 v{t0}, v{t1}, 2, v{t0}")
    a(f"s_lshl_b32 s11, s{S_W4}, 9")
    a(f"s_add_u32 s11, s11, {STATS_L}")
    a(f"v_lshl_add_u32 v{vStF}, v{t0}, 3, s11")
    a(f"v_lshlrev_b32 v{vL16}, 4, v0")
    a(f"v_lshlrev_b32 v{vCL}, 4, v{vH}")
    a(f"v_add_u32 v{vCL}, {C_L}, v{vCL}")
    a(f"v_bfe_u32 v{t0}, v0, 2, 2")
    a(f"v_lshl_add_u32 v{t1}, v{vH}, 3, v{t0}")
    a(f"v_lshlrev_b32 v{vTR}, 7, v{t1}")
    a(f"v_lshrrev_b32 v{t0}, 1, v{t0}")
    a(f"v_xor_b32 v{t0}, v{t0}, v0")
    a(f"v_and_b32 v{t0}, 1, v{t0}")
    a(f"v_lshl_add_u32 v{vTR}, v{t0}, 5, v{vTR}")
    a(f"v_bfe_u32 v{t0}, v0, 4, 1")
    a(f"v_lshl_add_u32 v{vTR}, v{t0}, 4, v{vTR}")
    a(f"v_bfe_u32 v{t0}, v0, 1, 1")
    a(f"v_lshl_add_u32 v{vTR}, v{t0}, 3, v{vTR}")
    a(f"v_add_u32 v{vTR}, s12, v{vTR}")
    a(f"s_lshl_b32 s11, s{S_MT}, 3")
    a(f"s_lshl_b32 s12, s{S_W4}, 1")
    a("s_add_u32 s11, s11, s12")
    a(f"s_mul_i32 s58, s11, {RT_BYTES}")
    a(f"s_cmp_ge_u32 s{S_NS}, 14")
    a(f"s_cselect_b32 s11, {HALF_BYTES - 56*1024}, 0")
    a(f"s_lshl_b32 s12, s{S_NS}, 12")
    a("s_add_u32 s11, s11, s12")
    a("s_add_u32 s56, s58, s11")
    a(f"s_add_u32 s57, s56, {RT_BYTES}")
    a(f"s_lshl_b32 s11, s{S_NS}, 10")
    a("s_add_u32 s58, s58, s11")
    a(f"s_add_u32 s58, s58, {56*1024}")
    a(f"s_lshl_b32 s11, s{S_MT}, 2")
    a(f"s_add_u32 s11, s11, s{S_W4}")
    a("s_lshl_b32 s11, s11, 8")
    a(f"s_lshl_b32 s12, s{S_NS}, 2")
    a("s_add_u32 s11, s11, s12")
    a(f"s_add_u32 s11, s11, {WS_FLAG:#x}")
    a(f"v_mov_b32 v{vF}, s11")
    a(f"s_and_b32 s12, s{S_W4}, 1")
    a(f"s_lshr_b32 s59, s{S_W4}, 1")
    a(f"s_lshl_b32 s11, s{S_M64}, 1")
    a("s_add_u32 s14, s11, s12")
    a("s_lshl_b32 s11, s14, 5")
    a(f"v_lshl_add_u32 v{vSo}, v{vH}, 4, s11")
    a(f"v_and_b32 v{vSo}, 63, v{vSo}")
    a(f"v_lshlrev_b32 v{vSo}, 3, v{vSo}")
    a(f"v_add_u32 v{vSo}, {ST2_L}, v{vSo}")
    a(f"s_lshl_b32 s11, s{S_M64}, 1")
    a(f"s_mul_i32 s52, s11, {RT_BYTES}")
    a(f"s_mul_i32 s53, s59, {HALF_BYTES}")
    a("s_add_u32 s52, s52, s53")
    a(f"s_mul_i32 s53, s12, {28*1024}")
    a("s_add_u32 s52, s52, s53")
    p2_rot(a, cfg, 60, 61, 63)
    vWd, vCn = vO, vXo
    a(f"v_lshrrev_b32 v{t0}, 3, v0")
    a(f"s_mul_i32 s11, s{S_W4}, 448")
    a(f"v_add_u32 v{t0}, s11, v{t0}")
    a(f"v_mul_u32_u24 v{vWd}, 896, v{t0}")
    a(f"v_bfe_u32 v{t0}, v0, 4, 1")
    a(f"v_lshlrev_b32 v{t0}, 2, v{t0}")
    a(f"v_and_b32 v{t1}, 7, v0")
    a(f"v_xor_b32 v{t0}, v{t0}, v{t1}")
    a(f"v_lshl_add_u32 v{vWd}, v{t0}, 4, v{vWd}")
    a(f"s_lshl_b32 s11, s{S_NT}, 7")
    a(f"v_add_u32 v{vWd}, s11, v{vWd}")
    a("s_add_u32 s61, s60, 6")
    a("s_cmp_ge_u32 s61, 7")
    a("s_cselect_b32 s11, 7, 0")
    a("s_sub_u32 s61, s61, s11")
    a(f"s_mul_i32 s61, s61, {64*896}")
    srd(a, 24, P_WD, 1792 * 896)
    a(f"v_mov_b32 v{vCn}, {CNT_L}")
    ts.x(1, 5)
    ssm_const_calc(a, K, LR, LI, CR, CI)
    csq(a, K + 8, K + 9, LR, LI, K)
    for _ in range(3): csq(a, K + 8, K + 9, K + 8, K + 9, K)
    PWR, PWI = 11, T + 15
    L16R, L16I = T + 12, T
    a(f"v_mov_b32 v{PWR}, v{CR}")
    a(f"v_mov_b32 v{PWI}, v{CI}")
    a(f"v_mov_b32 v{K+14}, v{K+8}")
    a(f"v_mov_b32 v{K+15}, v{K+9}")
    a(f"v_mov_b32 v{L16R}, v{K+8}")
    a(f"v_mov_b32 v{L16I}, v{K+9}")
    for b in range(2):
        cmul(a, K + 1, K + 2, PWR, PWI, K + 14, K + 15)
        a(f"v_and_b32 v{K}, {32 >> b}, v0")
        a(f"v_cmp_ne_u32 vcc, 0, v{K}")
        a(f"v_cndmask_b32 v{PWR}, v{PWR}, v{K+1}, vcc")
        a(f"v_cndmask_b32 v{PWI}, v{PWI}, v{K+2}, vcc")
        csq(a, K + 14, K + 15, K + 14, K + 15, K)
    a(f"s_cmp_lg_u32 s{S_W4}, 0")
    a("s_cbranch_scc1 L_c_nok")
    a(f"v_mov_b32 v{K+8}, v{K+14}")
    a(f"v_mov_b32 v{K+9}, v{K+15}")
    for _ in range(2): csq(a, K + 14, K + 15, K + 14, K + 15, K)
    W0 = K + 16
    a(f"v_lshrrev_b32 v{K+10}, 4, v0")
    a(f"s_sub_u32 s11, s{S_MT}, 1")
    a(f"v_sub_u32 v{K+10}, s11, v{K+10}")
    a(f"v_add_u32 v{K+11}, -4, v{K+10}")
    a(f"v_mov_b32 v{W0}, 1.0"); a(f"v_mov_b32 v{W0+1}, 0")
    a(f"v_mov_b32 v{W0+2}, 1.0"); a(f"v_mov_b32 v{W0+3}, 0")
    for b in range(3):
        for (wr, wi, e) in ((W0, W0 + 1, K + 10), (W0 + 2, W0 + 3, K + 11)):
            cmul(a, K + 1, K + 2, wr, wi, K + 14, K + 15)
            a(f"v_and_b32 v{K}, {1 << b}, v{e}")
            a(f"v_cmp_ne_u32 vcc, 0, v{K}")
            a(f"v_cndmask_b32 v{wr}, v{wr}, v{K+1}, vcc")
            a(f"v_cndmask_b32 v{wi}, v{wi}, v{K+2}, vcc")
        if b < 2: csq(a, K + 14, K + 15, K + 14, K + 15, K)
    a(f"v_and_b32 v{K}, 15, v0")
    a(f"v_lshlrev_b32 v{K}, 3, v{K}")
    a(f"v_add_u32 v{K}, {KC_L}, v{K}")
    a(f"ds_write_b64 v{K}, v[{K+8}:{K+9}]")
    a(f"v_add_u32 v{K+1}, {KC_L + 128}, v{vL16}")
    a(f"ds_write_b128 v{K+1}, v[{W0}:{W0+3}]")
    a(f"v_mov_b32 v{K+2}, {CNT_L}")
    a(f"v_mov_b32 v{K+3}, 0")
    a(f"ds_write_b32 v{K+2}, v{K+3}")
    a(f"ds_write_b32 v{K+2}, v{K+3} offset:4")
    a("s_waitcnt lgkmcnt(0)")
    a.label("L_c_nok")
    ts(1)
    ts.x(1, 8)

    def reads(fs, ks):
        f = FS[fs]
        L = []
        L.append(f"ds_read_b128 v[{f}:{f+3}], v{XA[ks]}")
        for j in range(2):
            L.append(f"ds_read_b64_tr_b16 v[{f+8+2*j}:{f+9+2*j}], v{WA[0]} offset:{ks*2048 + j*512}")
        L.append(f"ds_read_b128 v[{f+4}:{f+7}], v{XA[ks]} offset:4096")
        for gu in range(2):
            for ft in range(2):
                if gu == 0 and ft == 0: continue
                for j in range(2):
                    d = f + 8 + 8 * gu + 4 * ft + 2 * j
                    L.append(f"ds_read_b64_tr_b16 v[{d}:{d+1}], v{WA[ft]} offset:{gu*8192 + ks*2048 + j*512}")
        L.append(f"ds_read_b128 v[{f+24}:{f+27}], v{BA[ks]}")
        return L
    def mfmas(fs):
        f = FS[fs]
        X = [f, f + 4]; Bf = f + 24
        L = []
        for gu in range(2):
            for ft in range(2):
                w = f + 8 + 8 * gu + 4 * ft
                for q in range(2):
                    d = (G, U)[gu](ft, q)
                    L.append(f"v_mfma_f32_32x32x16_bf16 v[{d}:{d+15}], v[{w}:{w+3}], v[{X[q]}:{X[q]+3}], v[{d}:{d+15}]")
        for q in range(2):
            L.append(f"v_mfma_f32_32x32x16_bf16 v[{S(q)}:{S(q)+15}], v[{X[q]}:{X[q]+3}], v[{Bf}:{Bf+3}], v[{S(q)}:{S(q)+15}]")
        return L
    a("s_setprio 2")
    a("s_barrier")
    ts(2)
    for t in reads(0, 0): a(t)
    a("s_mov_b32 s72, 0")
    a("s_mov_b32 s74, 0")
    a.label("L_c_loop")
    for ks in range(4):
        fs = ks & 1
        M = mfmas(fs)
        need = {0: 8, 1: 7, 2: 5, 4: 3, 6: 1, 8: 0}
        if ks < 3:
            Rd = reads(1 - fs, ks + 1)
            issued = 0
            for i, m in enumerate(M):
                if i in need: a(f"s_waitcnt lgkmcnt({min(15, need[i] + issued)})")
                a(m)
                for _ in range(2 if i >= cfg.rdstart else 0):
                    if Rd: a(Rd.pop(0)); issued += 1
        else:
            Rd = reads(1 - fs, 0)
            a("s_waitcnt lgkmcnt(8)")
            a(M[0])
            a("s_add_u32 s74, s74, 1")
            a("s_cmp_eq_u32 s74, 3")
            a("s_mov_b32 s75, 53248")
            a(f"s_cmov_b32 s75, {(-106496) & 0xffffffff:#x}")
            a("s_cselect_b32 s74, 0, s74")
            for v in XA + BA[:1]: a(f"v_add_u32 v{v}, s75, v{v}")
            a("s_waitcnt lgkmcnt(7)")
            a(M[1])
            for v in BA[1:] + WA: a(f"v_add_u32 v{v}, s75, v{v}")
            a("s_waitcnt lgkmcnt(0)")
            a(M[2])
            a("s_barrier")
            for m in M[3:]:
                for _ in range(2):
                    if Rd: a(Rd.pop(0))
                a(m)
            a("s_add_u32 s72, s72, 1")
            a("s_cmp_lt_u32 s72, 7")
            a("s_cbranch_scc1 L_c_loop")
    ts(3)
    a(f"ds_read_b32 v{MM}, v{vStF}")
    a(f"ds_read_b32 v{MM+1}, v{vStF} offset:256")
    a("s_barrier")
    X, Y = S(0), S(1)
    CG = [40, 64]
    def cread(dst, off):
        for k in range(4): a(f"ds_read_b128 v[{dst+4*k}:{dst+4*k+3}], v{vCL} offset:{off + 32*k}")
    cread(40, 0); cread(56, 256); cread(72, 128)
    for ft in range(2):
        cg, cu = (40, 56) if ft == 0 else (72, 40)
        a(f"s_waitcnt lgkmcnt({4 if ft == 0 else 0})")
        for q in range(2):
            g, u = G(ft, q), U(ft, q)
            sel = f"op_sel:[{q},0,0] op_sel_hi:[{q},1,1] neg_lo:[1,0,0] neg_hi:[1,0,0]"
            for k in range(8):
                a(f"v_pk_fma_f32 v[{g+2*k}:{g+2*k+1}], v[{MM}:{MM+1}], v[{cg+2*k}:{cg+2*k+1}], v[{g+2*k}:{g+2*k+1}] {sel}")
            if ft == 0 and q == 1: cread(40, 256 + 128)
            for k in range(8):
                a(f"v_pk_fma_f32 v[{u+2*k}:{u+2*k+1}], v[{MM}:{MM+1}], v[{cu+2*k}:{cu+2*k+1}], v[{u+2*k}:{u+2*k+1}] {sel}")
                a(f"v_max_f32 v{g+2*k}, 0, v{g+2*k}")
                a(f"v_max_f32 v{g+2*k+1}, 0, v{g+2*k+1}")
            for p in range(2):
                for k in range(4 * p, 4 * p + 4):
                    a(f"v_pk_mul_f32 v[{u+2*k}:{u+2*k+1}], v[{u+2*k}:{u+2*k+1}], v[{g+2*k}:{g+2*k+1}]")
                for k in range(4 * p, 4 * p + 4):
                    a(f"v_cvt_pk_bf16_f32 v{u+k}, v{u+2*k}, v{u+2*k+1}")
                vm.issue('h', f"buffer_store_dwordx4 v[{u+4*p}:{u+4*p+3}], v{vL16}, s[{SRD_WS}:{SRD_WS+3}], s{56+q} offen offset:{(2*ft+p)*1024}{SP}")
    ts(4)
    WB = {0: [1, 2], 1: [3, 4], 2: [5, 6]}
    a(f"v_bfe_u32 v7, v0, 2, 2")
    a(f"v_lshl_add_u32 v8, v{vH}, 2, v7")
    a(f"v_lshlrev_b32 v8, 7, v8")
    a(f"v_lshrrev_b32 v7, 1, v7")
    a(f"v_lshl_add_u32 v8, v7, 6, v8")
    a(f"v_bfe_u32 v7, v0, 4, 1")
    a(f"v_lshl_add_u32 v8, v7, 5, v8")
    a(f"v_and_b32 v7, 3, v0")
    a(f"v_lshl_add_u32 v8, v7, 3, v8")
    a(f"v_add_u32 v8, s62, v8")
    for rg in range(3):
        a(f"v_add_u32 v{WB[rg][0]}, {R[rg]}, v8")
        a(f"v_xor_b32 v{WB[rg][1]}, 64, v{WB[rg][0]}")
    BR = 144
    def breads(p):
        sl = WSLOT[p]
        rg = max(k for k in range(3) if R[k] <= sl)
        L = []
        for ct in range(2):
            for jj in range(2):
                d = BR + 8 * (p % 10) + 4 * ct + 2 * jj
                L.append(f"ds_read_b64_tr_b16 v[{d}:{d+1}], v{WB[rg][ct]} offset:{sl - R[rg] + jj*1024}")
        return L
    X, Y = S(0), S(1)
    ST = 40
    a(f"ds_read_b32 v{CBR}, v{vCB}")
    a(f"ds_read_b32 v{CBI}, v{vCB} offset:64")
    for k in range(8): a(f"ds_read_b128 v[{ST+4*k}:{ST+4*k+3}], v{vStS} offset:{16*k}")
    for r in range(16): a(f"v_permlane16_swap_b32 v{X+r}, v{Y+r}")
    vOne = MM
    a(f"v_mov_b32 v{vOne}, 1")
    for r in range(16):
        if r % 2 == 0: a(f"s_waitcnt lgkmcnt({7 - r//2})")
        m, rs = ST + 2 * r, ST + 2 * r + 1
        a(f"v_fma_f32 v{X+r}, -v{m}, v{CBR}, v{X+r}")
        a(f"v_fma_f32 v{Y+r}, -v{m}, v{CBI}, v{Y+r}")
        a(f"v_mul_f32 v{X+r}, v{X+r}, v{rs}")
        a(f"v_mul_f32 v{Y+r}, v{Y+r}, v{rs}")
        if r >= 1:
            pr, pi = (X, Y) if r == 1 else (HR, HI)
            a(f"v_fma_f32 v{T1}, -v{LI}, v{pi}, v{X+r}")
            a(f"v_fma_f32 v{T2}, v{LI}, v{pr}, v{Y+r}")
            a(f"v_fma_f32 v{HR}, v{LR}, v{pr}, v{T1}")
            a(f"v_fma_f32 v{HI}, v{LR}, v{pi}, v{T2}")
    z = 72
    a(f"v_mov_b32 v{z}, v{HR}"); a(f"v_mov_b32 v{z+1}, v{HI}")
    csq(a, z + 8, z + 9, L16R, L16I, z + 10)
    a(f"v_permlane32_swap_b32 v{HR}, v{z}")
    a(f"v_permlane32_swap_b32 v{HI}, v{z+1}")
    a(f"v_fma_f32 v{z}, -v{L16I}, v{HI}, v{z}")
    a(f"v_fma_f32 v{z+1}, v{L16I}, v{HR}, v{z+1}")
    a(f"v_fmac_f32 v{z}, v{L16R}, v{HR}")
    a(f"v_fmac_f32 v{z+1}, v{L16R}, v{HI}")
    a(f"v_mov_b32 v{z+2}, v{z}"); a(f"v_mov_b32 v{z+3}, v{z+1}")
    a(f"v_cmp_lt_u32 vcc, 31, v0")
    a(f"v_permlane16_swap_b32 v{z}, v{z+2}")
    a(f"v_permlane16_swap_b32 v{z+1}, v{z+3}")
    a(f"v_fma_f32 v{z+2}, -v{z+9}, v{z+1}, v{z+2}")
    a(f"v_fma_f32 v{z+3}, v{z+9}, v{z}, v{z+3}")
    a(f"v_fmac_f32 v{z+2}, v{z+8}, v{z}")
    a(f"v_fmac_f32 v{z+3}, v{z+8}, v{z+1}")
    a(f"ds_write_b64 v{vRun8}, v[{z+2}:{z+3}]")
    a(f"v_and_b32 v{z+4}, 16, v0")
    a(f"v_cmp_ne_u32 s[12:13], 0, v{z+4}")
    a(f"v_cndmask_b32 v{z}, 0, v{z}, s[12:13]")
    a(f"v_cndmask_b32 v{z+1}, 0, v{z+1}, s[12:13]")
    a(f"v_fma_f32 v{HR}, -v{L16I}, v{z+1}, v{HR}")
    a(f"v_fma_f32 v{HI}, v{L16I}, v{z}, v{HI}")
    a(f"v_fmac_f32 v{HR}, v{L16R}, v{z}")
    a(f"v_fmac_f32 v{HI}, v{L16R}, v{z+1}")
    a(f"v_cndmask_b32 v{z}, v{z}, v{HR}, vcc")
    a(f"v_cndmask_b32 v{z+1}, v{z+1}, v{HI}, vcc")
    def flag1():
        vm.wait('h')
        a("s_mov_b64 exec, 1")
        vm.issue('f', f"buffer_store_dword v{vOne}, v{vF}, s[{SRD_WS}:{SRD_WS+3}], 0 offen{FP}")
        a("s_mov_b64 exec, -1")
        ts(6)
    if cfg.fpre: flag1()
    a("s_waitcnt lgkmcnt(0)")
    a("s_barrier")
    ts(5)
    if not cfg.fpre: flag1()
    cmul(a, HR, HI, z, z + 1, CR, CI)
    pl = sum([breads(p) for p in range(10)], [])
    for r in range(16):
        for _ in range(5):
            if pl: a(pl.pop(0))
        if r == 9:
            a("s_waitcnt lgkmcnt(0)")
            a("s_barrier")
        a(f"v_mul_f32 v{T1}, v{CI}, v{Y+r}")
        a(f"v_mul_f32 v{T2}, v{CI}, v{X+r}")
        a(f"v_fma_f32 v{X+r}, v{CR}, v{X+r}, -v{T1}")
        a(f"v_fma_f32 v{Y+r}, v{CR}, v{Y+r}, v{T2}")
    a("s_mov_b32 s15, 0xffff0000")
    vFl, vFv = vStF, vCL
    a(f"s_lshl_b32 s55, s{S_M64}, 8")
    a(f"s_add_u32 s55, s55, {WS_FLAG:#x}")
    a(f"s_mul_i32 s11, s{S_W4}, 28")
    a("s_add_u32 s55, s55, s11")
    a(f"v_min_u32 v{vFl}, 6, v0")
    a(f"v_lshlrev_b32 v{vFl}, 2, v{vFl}")
    a(f"v_add_u32 v{vRun8}, {(CAR_L - AGG_L) & 0xffffffff:#x}, v{vRun8}")
    AF = 80
    AR = list(range(40, 80, 4)) + list(range(224, 256, 4))
    NA = len(AR)
    def aload(n):
        p, rt = n // 2, n % 2
        if n % 8 == 0:
            a(f"s_lshl_b32 s54, s60, 12")
            a(f"s_add_u32 s54, s54, s52")
            a(f"s_add_u32 s53, s54, {RT_BYTES}")
            a(f"s_add_u32 s60, s60, 1")
            a(f"s_cmp_eq_u32 s60, 7")
            a(f"s_cselect_b32 s60, 0, s60")
        d = AR[n % NA]
        vm.issue(('a', n), f"buffer_load_dwordx4 v[{d}:{d+3}], v{vL16}, s[{SRD_WS}:{SRD_WS+3}], s{54 - rt} offen offset:{(p%4)*1024}{AP}")
    ld = f"buffer_load_dword v{vFv}, v{vFl}, s[{SRD_WS}:{SRD_WS+3}], s55 offen sc1"
    vm.issue('pf', ld)
    vm.wait('pf')
    def cond():
        a(f"v_cmp_ne_u32 vcc, 1, v{vFv}")
        a("s_cmp_eq_u64 vcc, 0")
    spin_check(a, "L_pf", [ld], cond, 2)
    ts(7)
    for n in range(10): aload(n)
    a("s_barrier")
    ts(8)
    a(f"ds_read_b64 v[{CBR}:{CBI}], v{vRun8}")
    a("s_waitcnt lgkmcnt(0)")
    a(f"v_fmac_f32 v{HR}, v{PWR}, v{CBR}")
    a(f"v_fmac_f32 v{HI}, v{PWR}, v{CBI}")
    a(f"v_fma_f32 v{HR}, -v{PWI}, v{CBI}, v{HR}")
    a(f"v_fmac_f32 v{HI}, v{PWI}, v{CBR}")
    pr, pi = HR, HI
    PK, HF = 80, 96
    for r in range(16):
        a(f"v_fma_f32 v{X+r}, -v{LI}, v{pi}, v{X+r}")
        a(f"v_fma_f32 v{Y+r}, v{LI}, v{pr}, v{Y+r}")
        a(f"v_fmac_f32 v{X+r}, v{LR}, v{pr}")
        a(f"v_fmac_f32 v{Y+r}, v{LR}, v{pi}")
        pr, pi = X + r, Y + r
    for k in range(8):
        a(f"v_cvt_pk_bf16_f32 v{PK+k}, v{X+2*k}, v{X+2*k+1}")
    a(f"ds_write_b128 v{vTW}, v[{PK}:{PK+3}]")
    a(f"ds_write_b128 v{vTW}, v[{PK+4}:{PK+7}] offset:16")
    for k in range(8):
        a(f"v_cvt_pk_bf16_f32 v{PK+8+k}, -v{Y+2*k}, -v{Y+2*k+1}")
    a(f"ds_write_b128 v{vTW}, v[{PK+8}:{PK+11}] offset:2048")
    a(f"ds_write_b128 v{vTW}, v[{PK+12}:{PK+15}] offset:2064")
    for q in range(2):
        for part in range(2):
            for j in range(2):
                d = HF + 8 * q + 4 * part + 2 * j
                a(f"ds_read_b64_tr_b16 v[{d}:{d+1}], v{vTR} offset:{(part*16 + 4*j)*128 + 64*(q ^ j)}")
    for n in range(10, cfg.a0): aload(n)
    a("s_waitcnt lgkmcnt(0)")
    for q in range(2):
        for part in range(2):
            d = HF + 8 * q + 4 * part
            a(f"s_add_u32 s11, s58, {q*RT_BYTES + part*HALF_BYTES}")
            vm.issue('hs', f"buffer_store_dwordx4 v[{d}:{d+3}], v{vL16}, s[{SRD_WS}:{SRD_WS+3}], s11 offen{SP}")
    ts(9)
    nxt = [cfg.a0]
    ts.x(6, 5)
    ts(10)
    lq = []
    def ds_issue(tag, t):
        a(t)
        if t.startswith("ds_"): lq.append(tag)
    def ds_wait(tag):
        idx = max((i for i, t in enumerate(lq) if t == tag), default=None)
        if idx is None: return None
        n = len(lq) - 1 - idx
        del lq[:idx + 1]
        return f"lgkmcnt({min(n, 15)})"
    flag2_done = False
    XV = 144; DS = vFv
    for p in range(28):
        f = BR + 8 * (p % 10)
        for rt in range(2):
            n = 2 * p + rt
            w = ds_wait(p) if rt == 0 else None
            vm.wait(('a', n), w or "")
            if n in (0, 7, 17, 25, 35): ts.x(6, {0: 7, 7: 8, 17: 9, 25: 10, 35: 11}[n])
            d = AR[n % NA]
            for ct in range(2):
                acc = AF + 32 * rt + 16 * ct
                c = "0" if p == 0 else f"v[{acc}:{acc+15}]"
                a(f"v_mfma_f32_32x32x16_bf16 v[{acc}:{acc+15}], v[{d}:{d+3}], v[{f+4*ct}:{f+4*ct+3}], {c}")
            if not flag2_done and n >= cfg.f2n:
                vm.wait('hs')
                a("s_mov_b64 exec, 1")
                vm.issue('f', f"buffer_store_dword v{vOne}, v{vF}, s[{SRD_WS}:{SRD_WS+3}], 0 offen offset:128{FP}")
                a("s_mov_b64 exec, -1")
                flag2_done = True
            for _ in range(2):
                if nxt[0] < 56 and nxt[0] <= n + NA:
                    aload(nxt[0]); nxt[0] += 1
        if p == 5:
            for pp in (26, 27):
                for n2 in range(2):
                    a(f"s_add_u32 m0, s62, {WSLOT[pp] + n2*1024}")
                    a(f"s_add_u32 s11, s61, {((pp % 4) * 16 + 8 * n2) * 896}")
                    vm.issue('wl', f"buffer_load_dwordx4 v{vWd}, s[24:27], s11 offen lds")
        pn = p + cfg.bd
        if p == cfg.ky:
            assert pn <= 12
            a("s_barrier")
        if p == cfg.ksig:
            assert pn > 15
            w = ds_wait(15)
            if w: a(f"s_waitcnt {w}")
            a("s_mov_b64 exec, 1")
            ds_issue('c', f"ds_add_u32 v{vCn}, v{vOne} offset:4")
            a("s_mov_b64 exec, -1")
        if pn in (26, 27): assert 'wl' not in vm.q
        if 10 <= pn < 28:
            for t in breads(pn): ds_issue(pn, t)
        if p % 4 == 3: ts.x(4, 1 + p // 4)
    ts(11)
    ts.x(7, 1)
    vXW = 1
    a(f"v_add_u32 v{vXW}, s62, v{vL16}")
    a(f"v_add_u32 v{vXW}, {FXA}, v{vXW}")
    STT = 160
    for k in range(8): a(f"ds_read_b128 v[{STT+4*k}:{STT+4*k+3}], v{vSo} offset:{16*k}")
    O = 40
    def acc_of(qd): return AF + 32 * (qd & 1) + 16 * (qd >> 1)
    for w in range(4):
        if w < 3:
            a(f"s_cmp_lg_u32 s{S_W4}, {w}")
            a(f"s_cbranch_scc1 L_c_w{w+1}")
        a("s_nop 7")
        for dq in range(1, 4):
            src = acc_of((w + dq) & 3)
            for k in range(4):
                a(f"ds_write_b128 v{vXW}, v[{src+4*k}:{src+4*k+3}] offset:{(dq-1)*4096 + 1024*k}")
        for r in range(16): a(f"v_mov_b32 v{O+r}, v{acc_of(w)+r}")
        if w < 3:
            a("s_branch L_c_wd")
            a.label(f"L_c_w{w+1}")
    a.label("L_c_wd")
    ts.x(7, 2)
    a("s_waitcnt lgkmcnt(0)")
    ts.x(7, 3)
    a("s_mov_b64 exec, 1")
    a(f"ds_add_u32 v{vCn}, v{vOne}")
    a("s_mov_b64 exec, -1")
    EX = 56
    a(f"ds_read_b32 v4, v{vCn}")
    for r in range(16): a(f"v_mul_f32 v{STT+2*r}, v{STT+2*r+1}, v{STT+2*r+1}")
    for dq in range(1, 4):
        a(f"s_sub_u32 s11, s{S_W4}, {dq}")
        a("s_and_b32 s11, s11, 3")
        a(f"s_mul_i32 s11, s11, {Q}")
        a(f"s_add_u32 s11, s11, {FXA + (dq-1)*4096}")
        a(f"v_add_u32 v{4+dq}, s11, v{vL16}")
    a("s_mov_b32 s73, 0")
    a.label("L_c_cnt")
    a("s_waitcnt lgkmcnt(0)")
    a("v_readfirstlane_b32 s11, v4")
    a("s_cmp_ge_u32 s11, 4")
    a("s_cbranch_scc1 L_c_cntok")
    a("s_add_u32 s73, s73, 1")
    a(f"s_cmp_ge_u32 s73, {SPIN_MAX}")
    a("s_cbranch_scc1 L_c_cntok")
    a("s_sleep 1")
    a(f"ds_read_b32 v4, v{vCn}")
    a("s_branch L_c_cnt")
    a.label("L_c_cntok")
    ts.x(7, 4)
    RX = 80
    for dq in range(1, 4):
        for k in range(4): a(f"ds_read_b128 v[{RX+16*(dq-1)+4*k}:{RX+16*(dq-1)+4*k+3}], v{4+dq} offset:{1024*k}")
    a(f"v_add_u32 v{vXW}, {GA - FXA}, v{vXW}")
    a(f"s_mov_b32 s13, {LOG2E ^ 0x80000000:#x}")
    for dq in range(3):
        a(f"s_waitcnt lgkmcnt({8 - 4*dq})")
        for r in range(16): a(f"v_add_f32 v{O+r}, v{O+r}, v{RX+16*dq+r}")
    ts.x(7, 5)
    for r in range(16): a(f"v_mul_f32 v{O+r}, v{O+r}, v{STT+2*r}")
    for r in range(16): a(f"v_mul_f32 v{EX+r}, s13, v{O+r}")
    for r in range(16): a(f"v_exp_f32 v{EX+r}, v{EX+r}")
    for r in range(16): a(f"v_add_f32 v{EX+r}, 1.0, v{EX+r}")
    for r in range(16): a(f"v_rcp_f32 v{EX+r}, v{EX+r}")
    for k in range(4):
        for r in range(4 * k, 4 * k + 4): a(f"v_mul_f32 v{O+r}, v{O+r}, v{EX+r}")
        a(f"ds_write_b128 v{vXW}, v[{O+4*k}:{O+4*k+3}] offset:{1024*k}")
    a("s_waitcnt lgkmcnt(0)")
    ts(12)
    a("s_barrier")
    ts.dump(T, T + 1)
    a("s_endpgm")

HEADER = """; Fused S5-SSM + ReGLU block, one launch: 224 main workgroups (4 MFMA waves + 4 loader waves) + 32 helper workgroups.
; @launch grid=(256,1,1) block=(512,1,1) lds=163840
.amdgcn_target "amdgcn-amd-amdhsa--gfx950"
.text
.globl {k}
.p2align 8
.type {k},@function
{k}:
"""
FOOTER = """.section .rodata,"a"
.p2align 6
.amdhsa_kernel {k}
  .amdhsa_next_free_vgpr 256
  .amdhsa_next_free_sgpr 102
  .amdhsa_accum_offset 256
  .amdhsa_group_segment_fixed_size 0
  .amdhsa_kernarg_size 128
  .amdhsa_user_sgpr_count 2
  .amdhsa_user_sgpr_kernarg_segment_ptr 1
  .amdhsa_system_sgpr_workgroup_id_x 1
  .amdhsa_float_denorm_mode_32 3
.end_amdhsa_kernel
"""

def generate(cfg):
    a = Asm()
    ts = TS(a, cfg)
    gen_entry(a, cfg, ts)
    gen_loader(a, cfg, ts)
    gen_consumer(a, cfg, ts)
    gen_helper(a, cfg, ts)
    a.label("L_exit")
    a("s_endpgm")
    return HEADER.format(k=KNAME) + a.text() + FOOTER.format(k=KNAME)

if __name__ == "__main__":
    cfg = Cfg()
    out = sys.argv[1]
    for kv in sys.argv[2:]:
        k, v = kv.split("=")
        setattr(cfg, k, int(v))
    open(out, "w").write(generate(cfg))
```

```python
import sys, os
sys.path.insert(0, os.path.dirname(os.path.abspath(__file__)))
from asmlib import Asm, VM

KNAME = "recurrent_scan__ssm_conv_s5__glu_gated_reglu__prompt_kernel"

R = [0, 53248, 106496]
MISC = 159744
OFF_WG, OFF_WU, OFF_BB = 32768, 40960, 49152
ST2_L = R[1] + 49152
CAR_L = ST2_L + 512
AGG_L = ST2_L + 1024
CP_L = R[2] + 49152
STATS_L = MISC
C_L = MISC + 2048
KC_L = MISC + 2688
CNT_L = MISC + 3840
Q = 12288

RT_BYTES = 172032
HALF_BYTES = 86016
WS_STATS = 0xB00000
WS_AGG = WS_STATS + 0x4000
WS_FLAG = WS_AGG + 0x8000
WS_CS = WS_FLAG + 0x2000
INIT_N = 128
WS_TS = 0xC00000
WS_SIZE = 0x1000000
SPIN_MAX = 1 << 20

S_WAVE, S_XCD, S_SLOT, S_MT, S_NS, S_M64, S_NT, S_W4 = 3, 4, 5, 6, 7, 8, 9, 10
P_X, P_LRE, P_LIM, P_BRE, P_BIM, P_CRE, P_CIM, P_LDT, P_DSK, P_BX, P_WG, P_WU, P_WD, P_OUT, P_DBG, P_WS = [16 + 2 * i for i in range(16)]
SRD_X, SRD_A, SRD_B, SRD_C, SRD_WS, SRD_E = 48, 52, 56, 60, 64, 68
TS0 = 76

LOG2E = 0x3fb8aa3b
LOG2E_LO = 0x32a57060
LN2 = 0x3f317218
INV2PI = 0x3e22f983

class Cfg:
    ts = 0
    tsset = 0
    pd = 16
    perm = 1
    rot = 2
    ssm_early = 0
    schedn = 0
    polx = 0
    apol = 1
    noa = 0
    nob = 0
    rdstart = 1
    polw = 0
    winn = 0
    padto = 0
    nocs = 0
    r2pre = 1
    tlb = 0
    bd = 4
    pollw = 6
    @property
    def win(self):
        W = lambda a, b: [f"w{p}" for p in range(a, b)]
        return [
            {-1: ["s1:0-3"], 0: ["s1:3-13", "s2:0-8"], 1: ["s2:8-13", "s3"], 2: ["s4", "e"] + W(2, 4), 3: ["s5"] + W(4, 6), 4: ["init", "s6"] + W(6, 8),
             5: ["fetch", "c0", "ch"] + W(8, 11), 6: ["c1", "w0", "w1", "w11", "put"], 7: ["r0", "c2"]},
            {-1: ["s1:0-3"], 0: ["s1:3-13", "s2:0-8"], 1: ["s2:8-13", "s3"], 2: ["s4", "e"] + W(2, 4), 3: ["s5"] + W(4, 7), 4: ["init", "s6"] + W(7, 9),
             5: ["fetch", "c0", "ch"] + W(9, 12), 6: ["c1", "w0", "w1", "put", "r0"], 7: ["c2"]},
            {-1: ["s1"], 0: ["s2", "e"], 1: ["s3"], 2: ["s4"] + W(2, 4), 3: ["s5"] + W(4, 7), 4: ["init", "s6"] + W(7, 9),
             5: ["fetch", "c0", "ch"] + W(9, 12), 6: ["c1", "w0", "w1", "put", "r0"], 7: ["c2"]},
            {-1: ["s1:0-3"], 0: ["s1:3-13", "s2:0-6"], 1: ["s2:6-13", "s3:0-10"], 2: ["s3:10-13", "s4", "e"], 3: ["s5"] + W(2, 5), 4: ["init", "s6"] + W(5, 8),
             5: ["fetch", "c0", "ch"] + W(8, 12), 6: ["c1", "w0", "w1", "put", "r0"], 7: ["c2"]},
            {-1: ["s1"], 0: ["s2", "e"], 1: ["s3"], 2: ["s4"], 3: ["s5"], 4: ["init", "s6"],
             5: ["fetch"], 6: ["put"], 7: ["c0", "ch", "c1", "w0", "w1"] + W(2, 12) + ["r0", "c2"]},
            {-1: ["s1"], 0: ["s2", "e"], 1: ["s3"], 2: ["s4"], 3: ["s5"], 4: ["init", "s6"] + W(2, 4),
             5: ["fetch", "c0", "ch"] + W(4, 8), 6: ["c1", "w0", "w1"] + W(8, 10) + ["put"], 7: W(10, 12) + ["r0", "c2"]},
        ][self.winn]
    nw1 = 6
    flagr = -1
    xs = 1
    psleep = 4
    ttper = 2
    f2n = 9
    fpre = 1
    a0 = 10
    sprio = 0
    ksig = 12
    opol = 0
    lprio = 3
    w12early = 0
    slab = 0
    spol = 1
    fpol = 1
    pollr = 4
    nw2 = 16
    thr = 15
    hpf = 3
    ky = 2
    @property
    def perms(self):
        return {
            0: [[0, 1, 2, 3, 4, 5, 6]],
            1: [[0, 1, 2, 3, 4, 5, 6], [1, 2, 0, 4, 5, 3, 6], [2, 0, 1, 5, 3, 4, 6]],
            2: [[0, 1, 2, 3, 4, 5, 6], [1, 0, 3, 2, 5, 4, 6]],
            3: [[0, 1, 2, 3, 4, 5, 6], [1, 0, 4, 5, 6, 2, 3], [0, 1, 6, 2, 3, 4, 5]],
            4: [[0, 1, 2, 3, 4, 5, 6], [1, 2, 0, 4, 6, 3, 5], [2, 0, 1, 5, 6, 3, 4]],
            5: [[0, 1, 2, 3, 4, 5, 6], [1, 2, 3, 0, 5, 6, 4], [2, 3, 0, 1, 6, 4, 5], [3, 0, 1, 2, 4, 5, 6]],
        }[self.perm]

def srd(a, d, ptr, nbytes):
    a(f"s_mov_b32 s{d}, s{ptr}")
    a(f"s_and_b32 s{d+1}, s{ptr+1}, 0xffff")
    a(f"s_mov_b32 s{d+2}, {nbytes:#x}")
    a(f"s_mov_b32 s{d+3}, 0x20000")

def srd_sel(a, d, ptr1, ptr0, nbytes):
    a(f"s_cselect_b32 s{d}, s{ptr1}, s{ptr0}")
    a(f"s_cselect_b32 s{d+1}, s{ptr1+1}, s{ptr0+1}")
    a(f"s_and_b32 s{d+1}, s{d+1}, 0xffff")
    a(f"s_mov_b32 s{d+2}, {nbytes:#x}")
    a(f"s_mov_b32 s{d+3}, 0x20000")

class TS:
    def __init__(self, a, cfg):
        self.a, self.on, self.n, self.set = a, cfg.ts, 0, cfg.tsset
    def x(self, setno, i):
        if self.on and self.set == setno: self.emit(i)
    def __call__(self, i):
        if self.on and (self.set == 0 or i in (0, 12)): self.emit(i)
    def emit(self, i):
        if self.on:
            assert i < 13
            self.a(f"{'s_memrealtime' if self.on != 2 else 's_memtime'} s[{TS0+2*i}:{TS0+2*i+1}]")
    def init(self):
        if self.on:
            for i in range(1, 13): self.a(f"s_mov_b32 s{TS0+2*i}, 0")
    def dump(self, vt, vt2):
        if not self.on: return
        a = self.a
        if self.on == 3:
            a("s_waitcnt vmcnt(0) lgkmcnt(0)")
            lab = a.newlabel("L_nod")
            a(f"s_cmp_eq_u32 s{TS0+24}, 0")
            a(f"s_cbranch_scc1 {lab}")
            a(f"s_cmp_lg_u32 s{S_WAVE}, 0")
            a(f"s_cbranch_scc1 {lab}")
            a("s_mov_b64 exec, 1")
            a(f"v_mov_b32 v{vt2}, 0")
            a(f"s_not_b32 s11, s{TS0}")
            a(f"v_mov_b32 v{vt}, s11")
            a(f"global_atomic_umax v{vt2}, v{vt}, s[{P_DBG}:{P_DBG+1}] offset:4 sc1")
            for n, i in enumerate([0, 1, 2, 3, 4, 5, 6, 7, 8, 9, 10, 11, 12]):
                a("s_waitcnt vmcnt(0)")
                a(f"v_mov_b32 v{vt}, s{TS0+2*i}")
                a(f"global_atomic_umax v{vt2}, v{vt}, s[{P_DBG}:{P_DBG+1}] offset:{8+4*n} sc1")
            a("s_waitcnt vmcnt(0)")
            a.label(lab)
            return
        a("s_waitcnt vmcnt(0) lgkmcnt(0)")
        a(f"s_lshl_b32 s11, s2, 9")
        a(f"s_lshl_b32 s12, s{S_WAVE}, 6")
        a("s_add_u32 s11, s11, s12")
        a(f"s_add_u32 s11, s11, {WS_TS:#x}")
        a(f"v_mov_b32 v{vt2}, s11")
        for i in range(13):
            a(f"v_mov_b32 v{vt}, s{TS0+2*i}")
            a(f"buffer_store_dword v{vt}, v{vt2}, s[{SRD_WS}:{SRD_WS+3}], 0 offen offset:{4*i}")
        a("s_waitcnt vmcnt(0)")

def round_bf16(a, dst, src):
    a(f"v_cvt_pk_bf16_f32 v{dst}, v{src}, v{src}")
    a(f"v_lshlrev_b32 v{dst}, 16, v{dst}")

def exp_acc(a, dst, x, t0, t1):
    a(f"s_mov_b32 s13, {LOG2E:#x}")
    a(f"s_mov_b32 s14, {LOG2E_LO:#x}")
    a(f"s_mov_b32 s15, {LN2:#x}")
    a(f"v_mul_f32 v{t0}, s13, v{x}")
    a(f"v_fma_f32 v{t1}, v{x}, s13, -v{t0}")
    a(f"v_fma_f32 v{t1}, v{x}, s14, v{t1}")
    a(f"v_mul_f32 v{t1}, s15, v{t1}")
    a(f"v_exp_f32 v{dst}, v{t0}")
    a(f"v_fma_f32 v{dst}, v{dst}, v{t1}, v{dst}")

def csq(a, dr, di, sr, si, t):
    a(f"v_mul_f32 v{t}, v{si}, v{si}")
    a(f"v_add_f32 v{di}, v{si}, v{si}")
    a(f"v_mul_f32 v{di}, v{di}, v{sr}")
    a(f"v_fma_f32 v{dr}, v{sr}, v{sr}, -v{t}")

def cmul(a, dr, di, ar, ai, br, bi):
    a(f"v_mul_f32 v{dr}, v{ar}, v{br}")
    a(f"v_mul_f32 v{di}, v{ar}, v{bi}")
    a(f"v_fma_f32 v{dr}, -v{ai}, v{bi}, v{dr}")
    a(f"v_fma_f32 v{di}, v{ai}, v{br}, v{di}")

def ssm_const_load(a, vm, t):
    a(f"v_and_b32 v{t+3}, 15, v0")
    a(f"s_lshl_b32 s11, s{S_NS}, 4")
    a(f"v_add_lshl_u32 v{t+3}, v{t+3}, s11, 1")
    vm.issue('sc', f"global_load_ushort v{t}, v{t+3}, s[{P_LRE}:{P_LRE+1}]")
    vm.issue('sc', f"global_load_ushort v{t+1}, v{t+3}, s[{P_LIM}:{P_LIM+1}]")
    vm.issue('sc', f"global_load_ushort v{t+2}, v{t+3}, s[{P_LDT}:{P_LDT+1}]")

def ssm_const_calc(a, t, lr, li, cr=None, ci=None):
    for k in range(3): a(f"v_lshlrev_b32 v{t+k}, 16, v{t+k}")
    exp_acc(a, t + 3, t + 2, t + 4, t + 5)
    round_bf16(a, t + 2, t + 3)
    a(f"v_mul_f32 v{t+3}, v{t+2}, v{t}")
    a(f"v_mul_f32 v{t+6}, v{t+2}, v{t+1}")
    exp_acc(a, t + 7, t + 3, t + 4, t + 5)
    a(f"v_mul_f32 v{t+6}, {INV2PI:#x}, v{t+6}")
    a(f"v_rndne_f32 v{t+4}, v{t+6}")
    a(f"v_sub_f32 v{t+6}, v{t+6}, v{t+4}")
    a(f"v_cos_f32 v{t+4}, v{t+6}")
    a(f"v_sin_f32 v{t+5}, v{t+6}")
    a(f"v_mul_f32 v{lr}, v{t+7}, v{t+4}")
    a(f"v_mul_f32 v{li}, v{t+7}, v{t+5}")
    if cr is not None:
        a(f"v_add_f32 v{t+3}, -1.0, v{lr}")
        a(f"v_mul_f32 v{t+4}, v{t}, v{t}")
        a(f"v_fma_f32 v{t+4}, v{t+1}, v{t+1}, v{t+4}")
        a(f"v_rcp_f32 v{t+4}, v{t+4}")
        a(f"v_mul_f32 v{cr}, v{t+3}, v{t}")
        a(f"v_fma_f32 v{cr}, v{li}, v{t+1}, v{cr}")
        a(f"v_mul_f32 v{ci}, v{li}, v{t}")
        a(f"v_fma_f32 v{ci}, -v{t+3}, v{t+1}, v{ci}")
        a(f"v_add_f32 v{t+4}, v{t+4}, v{t+4}")
        a(f"v_mul_f32 v{cr}, v{cr}, v{t+4}")
        a(f"v_mul_f32 v{ci}, v{ci}, v{t+4}")

def gen_entry(a, cfg, ts):
    a("s_cmp_ge_u32 s2, 256")
    a("s_cbranch_scc1 L_exit")
    if cfg.padto: a("s_memrealtime s[100:101]")
    ts(0)
    a("s_load_dwordx16 s[16:31], s[0:1], 0")
    a("s_load_dwordx16 s[32:47], s[0:1], 64")
    a("v_lshrrev_b32 v1, 6, v0")
    a("v_and_b32 v0, 63, v0")
    a(f"v_readfirstlane_b32 s{S_WAVE}, v1")
    a(f"s_and_b32 s{S_XCD}, s2, 7")
    a(f"s_lshr_b32 s{S_SLOT}, s2, 3")
    a(f"s_and_b32 s11, s{S_SLOT}, 3")
    a(f"s_lshr_b32 s{S_NT}, s{S_SLOT}, 2")
    a(f"s_and_b32 s12, s{S_XCD}, 1")
    a(f"s_lshl_b32 s12, s12, 2")
    a(f"s_add_u32 s{S_MT}, s12, s11")
    a(f"s_lshr_b32 s12, s{S_XCD}, 1")
    a(f"s_mul_i32 s12, s12, 7")
    a(f"s_add_u32 s{S_NS}, s12, s{S_NT}")
    if cfg.slab:
        a(f"s_mov_b32 s{S_MT}, s{S_XCD}")
        a(f"s_mov_b32 s{S_NS}, s{S_SLOT}")
    a(f"s_lshl_b32 s12, s{S_XCD}, 2")
    a(f"s_add_u32 s{S_M64}, s12, s11")
    a(f"s_and_b32 s{S_W4}, s{S_WAVE}, 3")
    ts.init()
    a(f"s_cmp_ge_u32 s{S_SLOT}, 28")
    a("s_cbranch_scc1 L_helper")
    a(f"s_cmp_lt_u32 s{S_WAVE}, 4")
    a("s_cbranch_scc1 L_consumer")

def gen_helper(a, cfg, ts):
    a.label("L_helper")
    vm = VM(a)
    a(f"s_sub_u32 s73, s{S_SLOT}, 28")
    a(f"s_lshl_b32 s11, s73, 3")
    a(f"s_add_u32 s72, s11, s{S_XCD}")
    a(f"s_cmp_ge_u32 s{S_WAVE}, 4")
    a("s_cbranch_scc1 L_h_pf")
    a(f"s_lshl_b32 s11, s72, 6")
    a(f"s_lshl_b32 s12, s{S_WAVE}, 4")
    a(f"s_add_u32 s11, s11, s12")
    a("v_lshrrev_b32 v2, 3, v0")
    a("v_add_u32 v2, s11, v2")
    a("v_mul_u32_u24 v3, 896, v2")
    a("v_and_b32 v4, 7, v0")
    a("v_lshl_add_u32 v3, v4, 4, v3")
    a("s_waitcnt lgkmcnt(0)")
    srd(a, SRD_X, P_X, 2048 * 896)
    srd(a, SRD_WS, P_WS, WS_SIZE)
    a(f"s_mov_b32 s11, {8*896}")
    for ps in range(2):
        for j in range(7):
            so = "0" if ps == 0 else "s11"
            vm.issue(('x', ps), f"buffer_load_dwordx4 v[{112+28*ps+4*j}:{115+28*ps+4*j}], v3, s[{SRD_X}:{SRD_X+3}], {so} offen offset:{128*j}")
    a(f"s_cmp_gt_u32 s{S_WAVE}, 1")
    a("s_cbranch_scc1 L_h_noreset")
    a(f"s_cmp_eq_u32 s{S_WAVE}, 0")
    a("s_cselect_b32 s11, -1, 0")
    a("s_mov_b32 s12, 256")
    a("s_cmov_b32 s12, 896")
    a(f"s_mov_b32 s13, {WS_FLAG:#x}")
    a(f"s_cmov_b32 s13, {WS_AGG:#x}")
    a("s_mul_i32 s14, s12, s72")
    a("s_add_u32 s13, s13, s14")
    for k in range(4): a(f"v_mov_b32 v{8+k}, s11")
    a("v_lshlrev_b32 v12, 4, v0")
    a("v_cmp_gt_u32 vcc, s12, v12")
    a("s_and_saveexec_b64 s[14:15], vcc")
    a(f"buffer_store_dwordx4 v[8:11], v12, s[{SRD_WS}:{SRD_WS+3}], s13 offen sc1")
    a("s_mov_b64 exec, s[14:15]")
    a.label("L_h_noreset")
    a("s_nop 1")
    a("v_lshlrev_b32 v2, 3, v2")
    a("s_mov_b32 s12, 0xffff0000")
    def fin(dst):
        a("v_add_f32 v8, v8, v9")
        a("v_add_f32 v10, v10, v11")
        a(f"v_add_f32 v{dst}, v8, v10")
        a(f"v_add_f32_dpp v{dst}, v{dst}, v{dst} quad_perm:[1,0,3,2] row_mask:0xf bank_mask:0xf")
        a(f"v_add_f32_dpp v{dst}, v{dst}, v{dst} quad_perm:[2,3,0,1] row_mask:0xf bank_mask:0xf")
        a(f"v_add_f32_dpp v{dst}, v{dst}, v{dst} row_half_mirror row_mask:0xf bank_mask:0xf")
        a(f"v_mul_f32 v{dst}, 0x3b124925, v{dst}")
    for ps in range(2):
        vm.wait(('x', ps))
        src = 112 + 28 * ps
        for k in range(28):
            a(f"v_lshlrev_b32 v{48+2*k}, 16, v{src+k}")
            a(f"v_and_b32 v{49+2*k}, s12, v{src+k}")
        a("v_pk_add_f32 v[8:9], v[48:49], v[52:53]")
        a("v_pk_add_f32 v[10:11], v[50:51], v[54:55]")
        for k in range(4, 28): a(f"v_pk_add_f32 v[{8+2*(k%2)}:{9+2*(k%2)}], v[{8+2*(k%2)}:{9+2*(k%2)}], v[{48+2*k}:{49+2*k}]")
        fin(12)
        for k in range(28): a(f"v_pk_add_f32 v[{48+2*k}:{49+2*k}], v[{48+2*k}:{49+2*k}], v[12:13] op_sel_hi:[1,0] neg_lo:[0,1] neg_hi:[0,1]")
        for k in range(2): a(f"v_pk_mul_f32 v[{8+2*k}:{9+2*k}], v[{48+2*k}:{49+2*k}], v[{48+2*k}:{49+2*k}]")
        for k in range(2, 28): a(f"v_pk_fma_f32 v[{8+2*(k%2)}:{9+2*(k%2)}], v[{48+2*k}:{49+2*k}], v[{48+2*k}:{49+2*k}], v[{8+2*(k%2)}:{9+2*(k%2)}]")
        fin(13)
        o = 14 + 2 * ps
        round_bf16(a, o, 12)
        round_bf16(a, 13, 13)
        a("v_add_f32 v13, 0x3727c5ac, v13")
        round_bf16(a, 13, 13)
        a("v_sqrt_f32 v13, v13")
        round_bf16(a, 13, 13)
        a(f"v_rcp_f32 v{o+1}, v13")
        a("v_cmp_eq_u32 vcc, 0, v4")
        a("s_and_saveexec_b64 s[14:15], vcc")
        a(f"s_mov_b32 s11, {WS_STATS:#x}")
        vm.issue('st', f"buffer_store_dwordx2 v[{o}:{o+1}], v2, s[{SRD_WS}:{SRD_WS+3}], s11 offen offset:{64*ps} sc1")
        a("s_mov_b64 exec, s[14:15]")
    a("s_waitcnt vmcnt(0)")
    a("v_mov_b32 v8, 0")
    a("v_mov_b32 v9, 1")
    a("s_mov_b64 exec, 1")
    a(f"global_atomic_add v8, v9, s[{P_DBG}:{P_DBG+1}] sc1")
    a("s_mov_b64 exec, -1")
    ts(1)
    ts.dump(8, 9)
    a("s_endpgm")
    a.label("L_h_pf")
    a("v_lshlrev_b32 v2, 4, v0")
    a(f"s_lshl_b32 s11, s{S_W4}, 10")
    a("v_add_u32 v2, s11, v2")
    a("s_waitcnt lgkmcnt(0)")
    srd(a, SRD_WS, P_WS, WS_SIZE)
    if cfg.hpf:
        for (ptr, nbytes, srdn) in ((P_CRE, 448 * 896, 48), (P_CIM, 448 * 896, 52), (P_WD, 1792 * 896, 56)):
            srd(a, srdn, ptr, nbytes)
        def sweep(name, srds, qbytes, first, count):
            n8 = -(-qbytes // (8 * 4096))
            n = 8 * n8
            a(f"s_mul_i32 s12, s73, {qbytes}")
            a(f"s_add_u32 s13, s{S_XCD}, {first}")
            a("s_and_b32 s13, s13, 7")
            a(f"s_mul_i32 s13, s13, {n8}")
            a("s_mov_b32 s14, 0")
            a.label(name)
            a("s_lshl_b32 s11, s13, 12")
            a("s_add_u32 s11, s11, s12")
            for k, sr in enumerate(srds):
                a(f"buffer_load_dwordx4 v[{16+4*k}:{19+4*k}], v2, s[{sr}:{sr+3}], s11 offen")
            a("s_add_u32 s13, s13, 1")
            a(f"s_cmp_eq_u32 s13, {n}")
            a("s_cselect_b32 s13, 0, s13")
            a("s_add_u32 s14, s14, 1")
            a(f"s_cmp_lt_u32 s14, {n8 * count}")
            a(f"s_cbranch_scc1 {name}")
        sweep("L_h_p1", [48, 52], 448 * 896 // 4, 0, 1)
        sweep("L_h_p2", [56], 1792 * 896 // 4, 0, 1)
        ts(2)
        if cfg.hpf == 3:
            sweep("L_h_p3", [48, 52], 448 * 896 // 4, 1, 7)
            ts(3)
    ts.dump(8, 9)
    a("s_endpgm")

def spin_check(a, name, load_text_list, cond_fn, sleep=1):
    lo, done = a.newlabel(name + "_spin"), a.newlabel(name + "_ok")
    a(f"s_mov_b32 s73, 0")
    a.label(lo)
    cond_fn()
    a(f"s_cbranch_scc1 {done}")
    a("s_add_u32 s73, s73, 1")
    a(f"s_cmp_ge_u32 s73, {SPIN_MAX}")
    a(f"s_cbranch_scc1 {done}")
    a(f"s_sleep {sleep}")
    for t in load_text_list: a(t)
    a("s_waitcnt vmcnt(0)")
    a(f"s_branch {lo}")
    a.label(done)
    a("s_nop 4")

def interleave(a, prim, fill, per):
    fill = list(fill)
    for p in prim:
        p()
        for _ in range(per):
            if fill: a(fill.pop(0))
    for f in fill: a(f)

def p2_rot(a, cfg, d_ffn, d_blk, d_flip):
    if not cfg.rot:
        for d in (d_ffn, d_blk, d_flip): a(f"s_mov_b32 s{d}, 0")
        return
    if cfg.rot == 2:
        a(f"s_and_b32 s11, s{S_SLOT}, 3")
        a(f"s_lshl_b32 s{d_ffn}, s11, 1")
        for d in (d_blk, d_flip): a(f"s_mov_b32 s{d}, 0")
        return
    a(f"s_and_b32 s11, s{S_SLOT}, 3")
    a("s_lshl_b32 s11, s11, 1")
    a(f"s_add_u32 s11, s11, s{S_NT}")
    a("s_cmp_ge_u32 s11, 7")
    a("s_cselect_b32 s13, 7, 0")
    a(f"s_sub_u32 s{d_ffn}, s11, s13")
    a(f"s_lshr_b32 s11, s{S_NT}, 1")
    a(f"s_and_b32 s13, s{S_SLOT}, 3")
    a("s_add_u32 s11, s11, s13")
    a("s_mul_i32 s13, s11, 43")
    a("s_lshr_b32 s13, s13, 7")
    a("s_mul_i32 s13, s13, 3")
    a(f"s_sub_u32 s{d_blk}, s11, s13")
    a(f"s_and_b32 s{d_flip}, s{S_NT}, 1")

def slot(reg, n): return R[reg] + 2048 * n
SA = [slot(1, n) for n in range(6)]; SB = [slot(2, n) for n in range(6)]; SC = [slot(0, n) for n in range(6)]
WSLOT = {0: SB[4], 1: SB[5], 26: SA[4], 27: SA[5]}
for n in range(6): WSLOT[2 + n] = SC[n]
for n in range(4): WSLOT[8 + n] = SB[n]; WSLOT[12 + n] = SA[n]
for p, sl in zip(range(16, 26), [SB[4], SB[5]] + SC + [SB[0], SB[1]]): WSLOT[p] = sl
HTS = SA[4]
PH1, PH2, GA, FXA = SA[0], SB[2], SB[0], SC[0]

def gen_loader(a, cfg, ts):
    a.label("L_loader")
    a("s_setprio 3")
    vm = VM(a)
    vXe, vXo, vW, vB = 1, 2, 3, 4
    vFv, vP, vO, vPQ = 5, 6, 7, 8
    vWd, vCe, vCo, vCh = 9, 10, 11, 12
    vRf, vRh = 13, 14
    vA, vC = 24, 25
    vT = 15
    ACC, CA, RD = 27, 28, 44
    STG = 64
    CF = 144
    SACC = 80
    XRAW = CF + 64
    sMX, sMW, sMB, sMP = 72, 74, 75, 70
    sPerm, sSX, sSW = 68, 69, 15
    sRF = 14
    AP = ['', ' sc1', ' sc1 nt', ' sc0 sc1', ' sc0', ' nt'][cfg.apol]
    OP = ['', ' sc1', ' nt', ' sc1 nt'][cfg.opol]
    polx = " nt" if cfg.polx else ""
    polw = " nt" if cfg.polw else ""
    a(f"v_lshrrev_b32 v{vA}, 3, v0")
    a(f"v_and_b32 v{vC}, 7, v0")
    a(f"v_lshrrev_b32 v{vT+2}, 1, v{vA}")
    a(f"s_lshl_b32 s11, s{S_W4}, 4")
    a(f"v_add_u32 v{vT}, s11, v{vA}")
    a(f"v_mul_u32_u24 v{vW}, 3584, v{vT}")
    a(f"v_and_b32 v{vT+4}, 1, v{vT+2}")
    a(f"v_lshlrev_b32 v{vT+4}, 2, v{vT+4}")
    a(f"v_xor_b32 v{vT+4}, v{vC}, v{vT+4}")
    a(f"v_lshl_add_u32 v{vW}, v{vT+4}, 4, v{vW}")
    a(f"s_lshl_b32 s11, s{S_NS}, 7")
    a(f"v_add_u32 v{vW}, s11, v{vW}")
    a(f"s_lshl_b32 s11, s{S_MT}, 8")
    a(f"s_lshl_b32 s12, s{S_W4}, 6")
    a("s_add_u32 s11, s11, s12")
    a(f"v_lshrrev_b32 v{vT}, 2, v{vA}")
    a(f"v_and_b32 v{vT+1}, 3, v{vA}")
    a(f"v_lshl_add_u32 v{vT}, v{vT}, 4, v{vT+1}")
    a(f"v_add_u32 v{vT}, s11, v{vT}")
    a(f"v_mul_u32_u24 v{vXe}, 896, v{vT}")
    a(f"v_xor_b32 v{vT+3}, v{vC}, v{vT+2}")
    a(f"v_lshl_add_u32 v{vXe}, v{vT+3}, 4, v{vXe}")
    a(f"v_xor_b32 v{vXo}, 64, v{vXe}")
    a(f"s_and_b32 s12, s{S_W4}, 1")
    a(f"s_lshl_b32 s11, s{S_NS}, 4")
    a(f"s_lshl_b32 s13, s12, 3")
    a("s_add_u32 s11, s11, s13")
    a(f"v_add_u32 v{vT}, s11, v{vA}")
    a(f"v_mul_u32_u24 v{vB}, 896, v{vT}")
    a(f"v_lshl_add_u32 v{vB}, v{vT+3}, 4, v{vB}")
    a("s_lshl_b32 s13, s12, 6")
    a(f"v_xor_b32 v{vB}, s13, v{vB}")
    a(f"s_lshl_b32 s{sMX}, s{S_W4}, 13")
    a(f"s_lshl_b32 s{sMW}, s{S_W4}, 11")
    a(f"s_lshl_b32 s{sMB}, s{S_W4}, 10")
    a(f"s_mul_i32 s{sMP}, s{S_W4}, {Q}")
    perms = cfg.perms
    words = [sum(p[k] << (4 * k) for k in range(7)) for p in perms]
    ng = len(words)
    a(f"s_mov_b32 s{sPerm}, {words[0]:#x}")
    if ng > 1:
        if cfg.slab:
            a(f"s_add_u32 s11, s{S_SLOT}, s{S_XCD}")
        else:
            a(f"s_and_b32 s11, s{S_SLOT}, 3")
            a(f"s_add_u32 s11, s11, s{S_NT}")
        if ng == 3:
            a("s_mul_i32 s13, s11, 43")
            a("s_lshr_b32 s13, s13, 7")
            a("s_mul_i32 s13, s13, 3")
            a("s_sub_u32 s11, s11, s13")
        else:
            a(f"s_and_b32 s11, s11, {ng-1}")
        for g in range(1, ng):
            a(f"s_cmp_eq_u32 s11, {g}")
            a(f"s_cmov_b32 s{sPerm}, {words[g]:#x}")
    ts.x(1, 1)
    a("s_waitcnt lgkmcnt(0)")
    ts.x(1, 2)
    if cfg.tlb:
        a(f"v_mov_b32 v40, s{P_X}")
        a(f"v_mov_b32 v41, s{P_X+1}")
        for ln, p in enumerate([P_WG, P_WU, P_BRE, P_BIM, P_WD, P_CRE, P_CIM, P_WS][:cfg.tlb], 1):
            a(f"v_writelane_b32 v40, s{p}, {ln}")
            a(f"v_writelane_b32 v41, s{p+1}, {ln}")
        a(f"s_mov_b64 exec, {(1 << (cfg.tlb + 1)) - 1:#x}")
        a("global_load_dword v62, v[40:41], off")
        a("s_mov_b64 exec, -1")
    srd(a, SRD_A, P_WG, 448 * 3584)
    srd(a, SRD_X, P_X, 2048 * 896)
    srd(a, SRD_B, P_WU, 448 * 3584)
    a(f"s_cmp_ge_u32 s{S_W4}, 2")
    srd_sel(a, SRD_C, P_BIM, P_BRE, 448 * 896)

    thr = [None]
    def dma(vm, tag, voff, srdn, sbase, soff, m0base, m0off, pol=""):
        a(f"s_add_u32 m0, s{m0base}, {m0off}")
        a(f"s_add_u32 s11, s{sbase}, {soff}")
        if thr[0] is not None and len(vm.q) > thr[0]:
            a(f"s_waitcnt vmcnt({thr[0]})")
            vm.q = vm.q[-thr[0]:]
        vm.issue(tag, f"buffer_load_dwordx4 v{voff}, s[{srdn}:{srdn+3}], s11 offen{pol} lds")
    def issue_ops(s):
        r = R[s % 3]
        ops = []
        def pre():
            a(f"s_bfe_u32 s{sSX}, s{sPerm}, {(4 << 16) | (4 * s):#x}")
            a(f"s_mul_i32 s{sSW}, s{sSX}, {64*3584}")
            a(f"s_lshl_b32 s{sSX}, s{sSX}, 7")
        def mk(*args): return lambda: dma(vm, ('st', s), *args)
        L = []
        for i in range(2): L.append(mk(vW, SRD_A, sSW, i * 8 * 3584, sMW, r + OFF_WG + i * 1024, polw))
        for j in range(4): L.append(mk(vXo if j & 1 else vXe, SRD_X, sSX, (32 * (j >> 2) + 4 * (j & 3)) * 896, sMX, r + j * 1024, polx))
        for i in range(2): L.append(mk(vW, SRD_B, sSW, i * 8 * 3584, sMW, r + OFF_WU + i * 1024, polw))
        for j in range(4, 8): L.append(mk(vXo if j & 1 else vXe, SRD_X, sSX, (32 * (j >> 2) + 4 * (j & 3)) * 896, sMX, r + j * 1024, polx))
        L.append(mk(vB, SRD_C, sSX, 0, sMB, r + OFF_BB, polw))
        first = L[0]
        L[0] = lambda: (pre(), first())
        return L
    SRD_WD, SRD_CC, sBlk, sFlip, P_DSK2 = 32, 28, 20, 25, 18
    def w_ops(ps):
        L = []
        for p in ps:
            for n in range(2):
                def op(p=p, n=n):
                    if n == 0:
                        a(f"s_add_u32 s12, s{sRF}, {p // 4}")
                        a("s_cmp_ge_u32 s12, 7")
                        a("s_cselect_b32 s13, 7, 0")
                        a("s_sub_u32 s12, s12, s13")
                        a(f"s_mul_i32 s12, s12, {64*896}")
                    if 2 <= p < 12:
                        d = STG + (p - 2) * 8 + 4 * n
                        a(f"s_add_u32 s11, s12, {((p % 4) * 16 + 8 * n) * 896}")
                        vm.issue(('w', p), f"buffer_load_dwordx4 v[{d}:{d+3}], v{vWd}, s[{SRD_WD}:{SRD_WD+3}], s11 offen")
                    else:
                        dma(vm, ('w', p), vWd, SRD_WD, 12, ((p % 4) * 16 + 8 * n) * 896, sMP, WSLOT[p] + n * 1024)
                L.append(op)
        return L
    def cf_ops(b, base):
        L = []
        for n in range(8):
            def op(n=n):
                if n == 0: a(f"s_mov_b32 s12, {b*128}")
                dma(vm, ('c', b), vCo if n & 1 else vCe, SRD_CC, 12, 8 * n * 896, sMP, base + n * 1024)
            L.append(op)
        return L
    def ch_ops(base):
        L = []
        for n in range(4):
            def op(n=n):
                if n == 0: a("s_mov_b32 s12, 0")
                dma(vm, ('c', 3), vCh, SRD_CC, 12, 16 * n * 896, sMP, base + n * 1024)
            L.append(op)
        return L
    def cf_read(b, base):
        a(f"s_add_u32 s11, s{sMP}, {base}")
        vm.wait(('c', b))
        for ks in range(4):
            for lc in range(2):
                t = vT + lc
                a(f"v_xor_b32 v{t}, {32*ks + 4096*lc}, v{vRf}")
                a(f"v_add_u32 v{t}, s11, v{t}")
                d = CF + (4 * b + ks) * 8 + 4 * lc
                a(f"ds_read_b128 v[{d}:{d+3}], v{t}")
    def ch_read(base):
        a(f"s_add_u32 s11, s{sMP}, {base}")
        vm.wait(('c', 3))
        for lc in range(2):
            a(f"v_xor_b32 v{vT+lc}, {2048*lc}, v{vRh}")
            a(f"v_add_u32 v{vT+lc}, s11, v{vT+lc}")
            for ks in range(2):
                d = CF + (12 + ks) * 8 + 4 * lc
                a(f"ds_read_b128 v[{d}:{d+3}], v{vT+lc} offset:{ks*32}")
    def w_write(ps):
        vm.wait(('w', ps[-1]))
        base = WSLOT[ps[0]]
        a(f"v_add_u32 v{vT+4}, {base}, v{vPQ}")
        for p in ps:
            for n in range(2):
                d = STG + (p - 2) * 8 + 4 * n
                a(f"ds_write_b128 v{vT+4}, v[{d}:{d+3}] offset:{WSLOT[p] - base + 1024*n}")
    def colsum_reads(s):
        r = R[s % 3]
        a(f"s_add_u32 s11, s{sMW}, {r + OFF_WG}")
        a(f"v_add_u32 v{vT}, s11, v{vP}")
        a(f"s_add_u32 s11, s{sMB}, {r + OFF_BB}")
        a(f"v_add_u32 v{vT+1}, s11, v{vP}")
        a(f"ds_read_b128 v[{RD}:{RD+3}], v{vT}")
        a(f"ds_read_b128 v[{RD+4}:{RD+7}], v{vT} offset:1024")
        a(f"ds_read_b128 v[{RD+8}:{RD+11}], v{vT} offset:8192")
        a(f"ds_read_b128 v[{RD+12}:{RD+15}], v{vT} offset:9216")
        a(f"ds_read_b128 v[{RD+16}:{RD+19}], v{vT+1}")
    def colsum_ops():
        L = ["s_waitcnt lgkmcnt(0)"]
        for n in range(4):
            for d in range(4):
                w = RD + 4 * n + d
                ac = CA + (n >> 1) * 8 + 2 * d
                L.append(f"v_lshlrev_b32 v{vT+2}, 16, v{w}")
                L.append(f"v_and_b32 v{vT+3}, s71, v{w}")
                L.append(f"v_add_f32 v{ac}, v{ac}, v{vT+2}")
                L.append(f"v_add_f32 v{ac+1}, v{ac+1}, v{vT+3}")
        for d in range(4):
            w = RD + 16 + d
            L.append(f"v_lshlrev_b32 v{vT+2}, 16, v{w}")
            L.append(f"v_and_b32 v{vT+3}, s71, v{w}")
            L.append(f"v_add_f32 v{vT+2}, v{vT+2}, v{vT+3}")
            L.append(f"v_add_f32 v{ACC}, v{ACC}, v{vT+2}")
        return L

    stage_ops = {}
    def tok_ops(toks):
        L = []
        for t in toks:
            if t[0] == 's':
                st = int(t[1])
                if st not in stage_ops: stage_ops[st] = issue_ops(st)
                lo, hi = (0, 13) if ':' not in t else map(int, t.split(':')[1].split('-'))
                L += stage_ops[st][lo:hi]
            elif t[0] == 'w': L += w_ops([int(t[1:])])
            elif t == 'c0': L += cf_ops(0, SA[0])
            elif t == 'c1': L += cf_ops(1, SB[0])
            elif t == 'c2': L += [lambda: a("s_waitcnt lgkmcnt(0)")] + cf_ops(2, SA[0])
            elif t == 'ch': L += ch_ops(SA[4])
            else: L.append(lambda t=t: special(t))
        return L
    def run_tokens(toks):
        for o in tok_ops(toks): o()
    def special(t):
        if True:
            if t == 'r0':
                cf_read(0, SA[0]); ch_read(SA[4])
            elif t == 'put':
                vm.wait('stats')
                a(f"s_lshl_b32 s11, s{S_W4}, 9")
                a(f"s_add_u32 s11, s11, {STATS_L}")
                a(f"v_lshl_add_u32 v{vT+4}, v0, 3, s11")
                a(f"ds_write_b64 v{vT+4}, v[20:21]")
                a(f"v_lshlrev_b32 v{vT+4}, 3, v0")
                a(f"v_add_u32 v{vT+4}, {ST2_L}, v{vT+4}")
                a(f"ds_write_b64 v{vT+4}, v[22:23]")
            elif t == 'e':
                a(f"s_add_u32 s12, s27, {16*896}")
                vm.issue('e', f"buffer_load_dwordx4 v[{XRAW}:{XRAW+3}], v{XRAW+9}, s[{SRD_X}:{SRD_X+3}], s27 offen")
                vm.issue('e', f"buffer_load_dwordx4 v[{XRAW+4}:{XRAW+7}], v{XRAW+9}, s[{SRD_X}:{SRD_X+3}], s12 offen")
                vm.issue('e', f"global_load_ushort v{XRAW+8}, v{XRAW+10}, s[{P_DSK2}:{P_DSK2+1}]")
            elif t == 'init':
                a(f"v_mov_b32 v26, 0")
                vm.issue('init', f"global_load_dword v5, v26, s[{P_DBG}:{P_DBG+1}] sc1")
            elif t == 'fetch':
                vm.wait('init')
                def cond():
                    a(f"v_readfirstlane_b32 s11, v5")
                    a(f"s_cmp_ge_u32 s11, {INIT_N}")
                spin_check(a, "L_init", [f"global_load_dword v5, v26, s[{P_DBG}:{P_DBG+1}] sc1"], cond, 8)
                a(f"s_lshl_b32 s11, s{S_MT}, 8")
                a(f"s_lshl_b32 s12, s{S_W4}, 6")
                a("s_add_u32 s11, s11, s12")
                a(f"v_add_lshl_u32 v5, v0, s11, 3")
                a(f"s_lshl_b32 s12, s{S_M64}, 6")
                a(f"v_add_lshl_u32 v26, v0, s12, 3")
                a(f"s_mov_b32 s11, {WS_STATS:#x}")
                vm.issue('stats', f"buffer_load_dwordx2 v[20:21], v5, s[{SRD_WS}:{SRD_WS+3}], s11 offen sc1")
                vm.issue('stats', f"buffer_load_dwordx2 v[22:23], v26, s[{SRD_WS}:{SRD_WS+3}], s11 offen sc1")
            else: raise ValueError(t)
    win = cfg.win
    run_tokens(["s0"])
    ts(1)
    ts.x(1, 6)
    run_tokens(win.get(-1, []))
    a("s_setprio 0")
    a(f"s_and_b32 s12, s{S_W4}, 1")
    a(f"v_lshlrev_b32 v{vP}, 4, v0")
    a(f"v_add_u32 v{vPQ}, s{sMP}, v{vP}")
    a(f"s_mul_i32 s14, s{S_W4}, 448")
    a(f"v_add_u32 v{vT}, s14, v{vA}")
    a(f"v_mul_u32_u24 v{vWd}, 896, v{vT}")
    a(f"v_lshl_add_u32 v{vWd}, v{vT+4}, 4, v{vWd}")
    a(f"s_lshl_b32 s14, s{S_NT}, 7")
    a(f"v_add_u32 v{vWd}, s14, v{vWd}")
    a(f"s_lshl_b32 s14, s{S_NT}, 6")
    a(f"v_add_u32 v{vT}, s14, v{vA}")
    a(f"v_mul_u32_u24 v{vCe}, 896, v{vT}")
    a(f"v_lshl_add_u32 v{vCe}, v{vT+3}, 4, v{vCe}")
    a("s_lshl_b32 s13, s12, 9")
    a(f"v_add_u32 v{vCe}, s13, v{vCe}")
    a(f"v_xor_b32 v{vCo}, 64, v{vCe}")
    a(f"v_lshrrev_b32 v{vT}, 2, v0")
    a(f"v_add_u32 v{vT}, s14, v{vT}")
    a(f"v_mul_u32_u24 v{vCh}, 896, v{vT}")
    a(f"v_and_b32 v{vT+1}, 3, v0")
    a(f"v_lshl_add_u32 v{vCh}, v{vT+1}, 4, v{vCh}")
    a("s_lshl_b32 s13, s12, 6")
    a("s_add_u32 s13, s13, 384")
    a(f"v_add_u32 v{vCh}, s13, v{vCh}")
    a("s_mov_b32 s71, 0xffff0000")
    for k in range(17): a(f"v_mov_b32 v{ACC+k}, 0")
    srd(a, SRD_WS, P_WS, WS_SIZE)
    a(f"s_cmp_ge_u32 s{S_W4}, 2")
    srd_sel(a, SRD_CC, P_CIM, P_CRE, 448 * 896)
    a(f"s_mov_b64 s[{P_DSK2}:{P_DSK2+1}], s[{P_DSK}:{P_DSK+1}]")
    srd(a, SRD_WD, P_WD, 1792 * 896)
    p2_rot(a, cfg, sRF, sBlk, sFlip)
    a(f"s_lshl_b32 s11, s{S_M64}, 1")
    a("s_add_u32 s26, s11, s12")
    a("s_lshl_b32 s12, s26, 5")
    a(f"v_lshrrev_b32 v{vT}, 2, v0")
    a(f"v_add_u32 v{vT}, s12, v{vT}")
    a(f"v_mul_u32_u24 v{vT}, 896, v{vT}")
    a(f"v_lshl_add_u32 v{XRAW+9}, v{vT+1}, 4, v{vT}")
    a(f"v_lshrrev_b32 v{vT+2}, 5, v0")
    a(f"v_lshl_add_u32 v{vT}, v{vT+2}, 4, s12")
    a(f"s_lshr_b32 s13, s{S_W4}, 1")
    a("s_lshl_b32 s12, s13, 5")
    a(f"s_lshl_b32 s11, s{S_NT}, 6")
    a("s_add_u32 s11, s11, s12")
    a("s_lshl_b32 s27, s11, 1")
    a(f"v_and_b32 v{vT+3}, 31, v0")
    a(f"v_add_u32 v{vT+1}, s11, v{vT+3}")
    a(f"v_mul_u32_u24 v{vT}, 448, v{vT}")
    a(f"v_add_lshl_u32 v{vO}, v{vT}, v{vT+1}, 2")
    a(f"v_lshlrev_b32 v{XRAW+10}, 1, v{vT+1}")
    a(f"v_bfe_u32 v{vT}, v0, 1, 3")
    a(f"v_xor_b32 v{vT}, v{vT}, v{vT+2}")
    a(f"v_lshlrev_b32 v{vT}, 4, v{vT}")
    a(f"v_lshl_add_u32 v{vRf}, v{vT+3}, 7, v{vT}")
    a("s_lshl_b32 s12, s13, 12")
    a(f"v_add_u32 v{vRf}, s12, v{vRf}")
    a(f"v_lshlrev_b32 v{vT}, 4, v{vT+2}")
    a(f"v_lshl_add_u32 v{vRh}, v{vT+3}, 6, v{vT}")
    a("s_lshl_b32 s12, s13, 11")
    a(f"v_add_u32 v{vRh}, s12, v{vRh}")
    a(f"v_bfe_u32 v{vT}, v0, 4, 1")
    a(f"v_lshlrev_b32 v{vT+1}, 2, v{vT}")
    a(f"v_xor_b32 v{vC}, v{vC}, v{vT+1}")
    a(f"v_lshlrev_b32 v{vC}, 5, v{vC}")
    a(f"v_lshl_add_u32 v{vC}, v{vT}, 9, v{vC}")
    a(f"v_lshl_add_u32 v{vC}, v{vT+2}, 8, v{vC}")
    a(f"s_add_u32 s11, s{sMB}, {CP_L}")
    a(f"v_add_u32 v{vC}, s11, v{vC}")
    a(f"s_lshl_b32 s11, s{S_W4}, 5")
    a(f"s_add_u32 s11, s11, {C_L + 512}")
    a(f"v_lshl_add_u32 v{vA}, v{vA}, 2, s11")
    a(f"s_lshl_b32 s21, s{S_NS}, 7")
    a(f"s_mul_i32 s22, s{S_MT}, 3584")
    a("s_add_u32 s22, s22, s21")
    a(f"s_add_u32 s22, s22, {WS_AGG:#x}")
    a(f"s_mov_b32 s23, {WS_AGG:#x}")
    a(f"s_mov_b32 s24, {WS_AGG + 4*3584:#x}")
    ts.x(1, 8)
    for s in range(7):
        vm.wait(('st', s))
        ts.x(2, 1 + s)
        a("s_barrier")
        ts.x(3, 1 + s)
        if s == 0: ts(2)
        colsum_reads(s)
        ops = tok_ops(win.get(s, []))
        fl = colsum_ops() if not cfg.nocs else ['s_waitcnt lgkmcnt(0)']
        if s == 6:
            b = ACC
            for k in range(8): fl.append(f"v_permlane32_swap_b32 v{CA+k}, v{CA+8+k}")
            fl.append(f"v_add_f32_dpp v{b}, v{b}, v{b} quad_perm:[1,0,3,2] row_mask:0xf bank_mask:0xf")
            for k in range(8): fl.append(f"v_add_f32 v{CA+k}, v{CA+k}, v{CA+8+k}")
            fl.append(f"v_add_f32_dpp v{b}, v{b}, v{b} quad_perm:[2,3,0,1] row_mask:0xf bank_mask:0xf")
            for k in range(8): fl.append(f"v_add_f32_dpp v{CA+k}, v{CA+k}, v{CA+k} row_ror:8 row_mask:0xf bank_mask:0xf")
            fl.append(f"v_add_f32_dpp v{b}, v{b}, v{b} row_half_mirror row_mask:0xf bank_mask:0xf")
            fl.append(f"ds_write_b128 v{vC}, v[{CA}:{CA+3}]")
            fl.append(f"ds_write_b128 v{vC}, v[{CA+4}:{CA+7}] offset:16")
            fl.append(f"ds_write_b32 v{vA}, v{b}")
        per = max(1, -(-len(fl) // max(1, len(ops))))
        interleave(a, ops, fl, per)
    a(f"s_and_b32 s12, s{S_W4}, 1")
    a("s_lshl_b32 s12, s12, 8")
    a(f"v_lshl_add_u32 v{vT}, v0, 2, s12")
    a(f"v_add_u32 v{vT+1}, {CP_L}, v{vT}")
    a(f"v_add_u32 v{vT}, {C_L}, v{vT}")
    a("s_waitcnt lgkmcnt(0)")
    ts.x(2, 8)
    a("s_setprio 3")
    a("s_barrier")
    ts(3)
    ts.x(3, 8)
    QQ = 28
    for p in range(8): a(f"ds_read_b32 v{QQ+p}, v{vT+1} offset:{512*p}")
    a("s_waitcnt lgkmcnt(0)")
    for p in range(4): a(f"v_add_f32 v{QQ+p}, v{QQ+p}, v{QQ+4+p}")
    a(f"v_add_f32 v{QQ}, v{QQ}, v{QQ+2}")
    a(f"v_add_f32 v{QQ+1}, v{QQ+1}, v{QQ+3}")
    a(f"v_add_f32 v{QQ}, v{QQ}, v{QQ+1}")
    a(f"ds_write_b32 v{vT}, v{QQ}")
    a("s_waitcnt lgkmcnt(0)")
    a("s_barrier")
    run_tokens(win.get(7, []))
    a("s_setprio 0")
    vCh8, vAg, vPr, vFl = 1, 2, 3, 4
    vCar, vSt = 30, 31
    LR, LI, W0R = 20, 21, 24
    a(f"v_and_b32 v{vCh8}, 15, v0")
    a(f"v_lshlrev_b32 v{vCh8}, 3, v{vCh8}")
    a(f"v_add_u32 v{vT}, {KC_L}, v{vCh8}")
    a(f"ds_read_b64 v[{LR}:{LI}], v{vT}")
    a(f"v_add_u32 v{vT+1}, {KC_L + 128}, v{vP}")
    a(f"ds_read_b128 v[{W0R}:{W0R+3}], v{vT+1}")
    w_write([2, 3, 4, 5, 6, 7])
    cf_read(1, SB[0])
    w_write([8, 9, 10, 11])
    a(f"v_add_u32 v{vAg}, {AGG_L}, v{vCh8}")
    a(f"v_lshrrev_b32 v{vPr}, 4, v0")
    a(f"s_sub_u32 s11, s{S_MT}, 1")
    a(f"v_sub_u32 v{vT}, s11, v{vPr}")
    a(f"v_cmp_le_i32 s[56:57], 0, v{vT}")
    a(f"v_cmp_le_i32 s[58:59], 4, v{vT}")
    a(f"v_mul_u32_u24 v{vPr}, 3584, v{vPr}")
    a(f"v_add3_u32 v{vPr}, v{vPr}, v{vCh8}, s21")
    a(f"v_min_u32 v{vFl}, 27, v0")
    a(f"v_lshlrev_b32 v{vFl}, 2, v{vFl}")
    a(f"s_lshl_b32 s74, s{S_M64}, 8")
    a(f"s_add_u32 s74, s74, {WS_FLAG:#x}")
    a(f"v_lshlrev_b32 v{vCar}, 3, v0")
    a(f"v_add_u32 v{vCar}, {CAR_L}, v{vCar}")
    XV, STT, DS = 64, 80, 60
    TT = SACC + 32
    a(f"v_add_u32 v{vT+4}, {HTS}, v{vPQ}")
    a(f"ds_write_b128 v{vT+4}, v[{XRAW}:{XRAW+3}]")
    a(f"ds_write_b128 v{vT+4}, v[{XRAW+4}:{XRAW+7}] offset:1024")
    a(f"v_lshlrev_b32 v{DS}, 16, v{XRAW+8}")
    if cfg.r2pre: cf_read(2, SA[0])
    GR, GI = 22, 23
    a(f"v_mov_b32 v{GR}, 1.0")
    a(f"v_mov_b32 v{GI}, 0")
    a(f"v_and_b32 v{vT}, 16, v0")
    a(f"v_cmp_ne_u32 vcc, 0, v{vT}")
    a("s_waitcnt lgkmcnt(15)")
    a(f"v_cndmask_b32 v{GR}, v{GR}, v{LR}, vcc")
    a(f"v_cndmask_b32 v{GI}, v{GI}, v{LI}, vcc")
    csq(a, 28, 29, LR, LI, vT)
    cmul(a, vT, vT + 1, GR, GI, 28, 29)
    a(f"v_cmp_lt_u32 vcc, 31, v0")
    a(f"v_cndmask_b32 v{GR}, v{GR}, v{vT}, vcc")
    a(f"v_cndmask_b32 v{GI}, v{GI}, v{vT+1}, vcc")
    vm.wait(('w', 1))
    a("s_waitcnt lgkmcnt(0)")
    ts.x(2, 9)
    a(f"s_setprio {cfg.lprio}")
    a("s_barrier")
    ts(4)
    a(f"s_cmp_lg_u32 s{S_W4}, 0")
    a("s_cbranch_scc1 L_l_nocomb")
    E, SR, SI, T1, T2, G0, G1, QR, QI = 32, 40, 41, 42, 43, 44, 46, 48, 49
    for i in range(4): a(f"ds_read_b64 v[{E+2*i}:{E+2*i+1}], v{vAg} offset:{128*i}")
    a(f"v_mov_b32 v{QR}, 0")
    a(f"v_mov_b32 v{QI}, 0")
    for i in range(1, 4):
        e, p = E + 2 * i, E + 2 * (i - 1)
        a(f"s_waitcnt lgkmcnt({3 - i})")
        a(f"v_fma_f32 v{e}, -v{LI}, v{p+1}, v{e}")
        a(f"v_fma_f32 v{e+1}, v{LI}, v{p}, v{e+1}")
        a(f"v_fmac_f32 v{e}, v{LR}, v{p}")
        a(f"v_fmac_f32 v{e+1}, v{LR}, v{p+1}")
    e = E + 6
    a(f"v_cmp_eq_u32 vcc, -1, v{e}")
    a(f"v_mov_b32 v{T1}, 0x7fc00000")
    a(f"v_cndmask_b32 v{e}, v{e}, v{T1}, vcc")
    a("s_mov_b64 exec, 0xffff")
    a(f"buffer_store_dwordx2 v[{e}:{e+1}], v{vCh8}, s[{SRD_WS}:{SRD_WS+3}], s22 offen sc1")
    for g in range(1, 4):
        m = 0xffff << (16 * g)
        a(f"s_mov_b32 exec_lo, {m & 0xffffffff:#x}")
        a(f"s_mov_b32 exec_hi, {m >> 32:#x}")
        a(f"v_mov_b32 v{QR}, v{E+2*(g-1)}")
        a(f"v_mov_b32 v{QI}, v{E+2*(g-1)+1}")
    a("s_mov_b64 exec, -1")
    ts(5)
    a.label("L_l_nocomb")
    if cfg.r2pre:
        for o in w_ops(range(12, 14)): o()
    else:
        cf_read(2, SA[0])
    ts.x(2, 10)
    a("s_barrier")
    thr[0] = cfg.thr
    lds = [f"buffer_load_dwordx2 v[{G0}:{G0+1}], v{vPr}, s[{SRD_WS}:{SRD_WS+3}], s23 offen sc1",
           f"buffer_load_dwordx2 v[{G1}:{G1+1}], v{vPr}, s[{SRD_WS}:{SRD_WS+3}], s24 offen sc1"]
    for o in w_ops(range(16, 26)): o()
    a("s_waitcnt lgkmcnt(0)")
    for o in w_ops(range(14 if cfg.r2pre else 12, 16)): o()
    ts(8)
    a(f"s_cmp_lg_u32 s{S_W4}, 0")
    a("s_cbranch_scc1 L_l_np0")
    for t in lds: a(t)
    a.label("L_l_np0")
    a(f"v_lshrrev_b32 v{vSt}, 5, v0")
    a(f"v_lshlrev_b32 v{vT+4}, 10, v{vSt}")
    a(f"v_and_b32 v{vT}, 31, v0")
    a(f"v_lshl_add_u32 v{vT+4}, v{vT}, 1, v{vT+4}")
    a(f"s_add_u32 s11, s{sMP}, {HTS}")
    a(f"v_add_u32 v{vT+4}, s11, v{vT+4}")
    for r in range(16): a(f"ds_read_u16 v{XV+r}, v{vT+4} offset:{64*r}")
    a(f"s_cmp_lg_u32 s{S_W4}, 0")
    a("s_cbranch_scc1 L_l_nopoll")
    a("s_waitcnt vmcnt(0)")
    def cond():
        a(f"v_cmp_eq_u32 vcc, -1, v{G0}")
        a("s_and_b64 s[48:49], vcc, s[56:57]")
        a(f"v_cmp_eq_u32 vcc, -1, v{G1}")
        a("s_and_b64 s[50:51], vcc, s[58:59]")
        a("s_or_b64 s[48:49], s[48:49], s[50:51]")
        a("s_cmp_eq_u64 s[48:49], 0")
    spin_check(a, "L_agg", lds, cond)
    ts(6)
    cmul(a, SR, SI, G0, G0 + 1, W0R, W0R + 1)
    cmul(a, T1, T2, G1, G1 + 1, W0R + 2, W0R + 3)
    a(f"v_cndmask_b32 v{SR}, 0, v{SR}, s[56:57]")
    a(f"v_cndmask_b32 v{SI}, 0, v{SI}, s[56:57]")
    a(f"v_cndmask_b32 v{T1}, 0, v{T1}, s[58:59]")
    a(f"v_cndmask_b32 v{T2}, 0, v{T2}, s[58:59]")
    a(f"v_add_f32 v{SR}, v{SR}, v{T1}")
    a(f"v_add_f32 v{SI}, v{SI}, v{T2}")
    for sw in ("v_permlane32_swap_b32", "v_permlane16_swap_b32"):
        a(f"v_mov_b32 v{T1}, v{SR}")
        a(f"v_mov_b32 v{T2}, v{SI}")
        a(f"{sw} v{SR}, v{T1}")
        a(f"{sw} v{SI}, v{T2}")
        a(f"v_add_f32 v{SR}, v{SR}, v{T1}")
        a(f"v_add_f32 v{SI}, v{SI}, v{T2}")
    a(f"v_fmac_f32 v{QR}, v{GR}, v{SR}")
    a(f"v_fmac_f32 v{QI}, v{GR}, v{SI}")
    a(f"v_fma_f32 v{QR}, -v{GI}, v{SI}, v{QR}")
    a(f"v_fmac_f32 v{QI}, v{GI}, v{SR}")
    a(f"ds_write_b64 v{vCar}, v[{QR}:{QI}]")
    a.label("L_l_nopoll")
    a("s_setprio 0")
    a("s_waitcnt lgkmcnt(0)")
    a("s_barrier")
    ts(7)
    a(f"s_and_b32 s11, s{S_W4}, 1")
    a("s_lshl_b32 s11, s11, 8")
    a(f"s_add_u32 s11, s11, {ST2_L}")
    a(f"v_lshl_add_u32 v{vSt}, v{vSt}, 7, s11")
    for k in range(8): a(f"ds_read_b128 v[{STT+4*k}:{STT+4*k+3}], v{vSt} offset:{16*k}")
    vm.wait_all("lgkmcnt(0)")
    a("s_barrier")
    def rnd_pair(r0, r1):
        a(f"v_cvt_pk_bf16_f32 v{r1}, v{r0}, v{r1}"); a(f"v_lshlrev_b32 v{r0}, 16, v{r1}"); a(f"v_and_b32 v{r1}, s71, v{r1}")
    for r in range(16): a(f"v_lshlrev_b32 v{XV+r}, 16, v{XV+r}")
    for r in range(16): a(f"v_sub_f32 v{TT+r}, v{XV+r}, v{STT+2*r}")
    for k in range(8): rnd_pair(TT + 2 * k, TT + 2 * k + 1)
    for r in range(16): a(f"v_mul_f32 v{TT+r}, v{TT+r}, v{STT+2*r+1}")
    for k in range(8): rnd_pair(TT + 2 * k, TT + 2 * k + 1)
    for r in range(16): a(f"v_mul_f32 v{TT+r}, v{TT+r}, v{DS}")
    for k in range(8): rnd_pair(TT + 2 * k, TT + 2 * k + 1)
    def poll(name, off):
        ld = f"buffer_load_dword v{vFv}, v{vFl}, s[{SRD_WS}:{SRD_WS+3}], s74 offen offset:{off} sc1"
        vm.issue(name, ld)
        vm.wait(name)
        def cond():
            a(f"v_cmp_ne_u32 vcc, 1, v{vFv}")
            a("s_cmp_eq_u64 vcc, 0")
        spin_check(a, name, [ld], cond, cfg.psleep)
    a(f"s_mul_i32 s57, s26, {RT_BYTES}")
    a("s_xor_b32 s11, s26, 1")
    a(f"s_mul_i32 s56, s11, {RT_BYTES}")
    a(f"s_lshr_b32 s11, s{S_W4}, 1")
    a(f"s_mul_i32 s11, s11, {HALF_BYTES}")
    a(f"s_add_u32 s11, s11, {56*1024}")
    a("s_add_u32 s56, s56, s11")
    a("s_add_u32 s57, s57, s11")
    a(f"s_and_b32 s12, s{S_W4}, 1")
    a("s_lshl_b32 s13, s12, 14")
    for b in range(3):
        a(f"s_add_u32 s11, s{sBlk}, {b}")
        a("s_cmp_ge_u32 s11, 3")
        a("s_cselect_b32 s22, 3, 0")
        a("s_sub_u32 s11, s11, s22")
        a("s_lshl_b32 s11, s11, 12")
        a(f"s_add_u32 s{52+b}, s11, s13")
    a("s_lshl_b32 s12, s12, 11")
    a(f"s_add_u32 s55, s12, {12*1024}")
    srd(a, 60, P_OUT, 2048 * 1792)
    vW1, vW2, vCn, vCv = 1, 2, 9, 10
    vR = [11, 12, 13, 14]
    a(f"v_add_u32 v{vW1}, {PH1}, v{vPQ}")
    a(f"v_add_u32 v{vW2}, {PH2}, v{vPQ}")
    a(f"v_mov_b32 v{vCn}, {CNT_L}")
    for (reg, xr, base) in ((vR[0], 1, PH1), (vR[1], 3, PH1 + 4096), (vR[2], 2, PH2)):
        a(f"s_xor_b32 s11, s{S_W4}, {xr}")
        a(f"s_mul_i32 s11, s11, {Q}")
        a(f"s_add_u32 s11, s11, {base}")
        a(f"v_add_u32 v{reg}, s11, v{vP}")
    a(f"v_add_u32 v{vR[3]}, {GA}, v{vPQ}")
    ts.x(2, 11)
    AR = list(range(16, 64, 4))
    NA = len(AR)
    def aload(n):
        lr, p = n // 14, n % 14
        if p % 4 == 0: a(f"s_add_u32 s58, s{56+lr}, s{52 + p//4}")
        d = AR[n % NA]
        vm.issue(('a', n), f"buffer_load_dwordx4 v[{d}:{d+3}], v{vP}, s[{SRD_WS}:{SRD_WS+3}], s58 offen offset:{(p%4)*1024}{AP}")
    def cnt_wait(name, off):
        a("s_mov_b32 s73, 0")
        a.label(name)
        a("s_waitcnt lgkmcnt(0)")
        a(f"v_readfirstlane_b32 s11, v{vCv}")
        a("s_cmp_ge_u32 s11, 4")
        a(f"s_cbranch_scc1 {name}ok")
        a("s_add_u32 s73, s73, 1")
        a(f"s_cmp_ge_u32 s73, {SPIN_MAX}")
        a(f"s_cbranch_scc1 {name}ok")
        a("s_sleep 1")
        a(f"ds_read_b32 v{vCv}, v{vCn} offset:{off}")
        a(f"s_branch {name}")
        a.label(name + "ok")
        a("s_nop 7")
    a(f"ds_read_b32 v{vCv}, v{vCn} offset:4")
    cnt_wait("L_l_c0", 4)
    if cfg.sprio: a(f"s_setprio {cfg.sprio}")
    poll("L_ps", 128)
    ts(9)
    ts.x(7, 1)
    for n in range(NA): aload(n)
    a("s_setprio 0")
    ts.x(7, 2)
    for n in range(28):
        lr, p = n // 14, n % 14
        vm.wait(('a', n))
        if n in (0, 7, 14, 21): ts.x(7, 3 + n // 7)
        d = AR[n % NA]
        for lc in (1, 0):
            acc = SACC + 32 * lr + 16 * lc
            c = "0" if (p == 0 and not (lr == 1 and lc == 0)) else f"v[{acc}:{acc+15}]"
            f = CF + 8 * p + 4 * lc
            a(f"v_mfma_f32_32x32x16_bf16 v[{acc}:{acc+15}], v[{d}:{d+3}], v[{f}:{f+3}], {c}")
        if n + NA < 28: aload(n + NA)
        if 16 <= n < 24:
            k = n - 16
            a(f"ds_write_b128 v{vW1}, v[{SACC+4*k}:{SACC+4*k+3}] offset:{1024*k}")
    ts(10)
    ts.x(7, 7)
    ts.x(7, 8)
    for k in range(4):
        a(f"ds_write_b128 v{vW2}, v[{SACC+48+4*k}:{SACC+48+4*k+3}] offset:{1024*k}")
    a("s_waitcnt lgkmcnt(0)")
    ts.x(7, 9)
    a("s_barrier")
    ts(11)
    ts.x(7, 10)
    RX = CF
    for k in range(4):
        for w in range(4):
            a(f"ds_read_b128 v[{RX+16*w+4*k}:{RX+16*w+4*k+3}], v{vR[w]} offset:{1024*k}")
    for k in range(4):
        a(f"s_waitcnt lgkmcnt({12 - 4*k})")
        for r in range(4 * k, 4 * k + 4):
            a(f"v_add_f32 v{TT+r}, v{TT+r}, v{RX+r}")
            a(f"v_add_f32 v{RX+16+r}, v{RX+16+r}, v{RX+32+r}")
        for r in range(4 * k, 4 * k + 4):
            a(f"v_add_f32 v{TT+r}, v{TT+r}, v{RX+16+r}")
        for r in range(4 * k, 4 * k + 4):
            a(f"v_fma_f32 v{XV+r}, v{TT+r}, v{RX+48+r}, v{XV+r}")
            if r % 2 == 0: a(f"s_mov_b32 s11, {r*1792}")
            a(f"buffer_store_dword v{XV+r}, v{vO}, s[60:63], s11 offen offset:{(r%2)*1792}{OP}")
    if cfg.ts:
        a("s_waitcnt vmcnt(0)")
        ts(12)
    if cfg.padto:
        a.label("L_pad")
        a("s_memrealtime s[98:99]")
        a("s_waitcnt lgkmcnt(0)")
        a("s_sub_u32 s98, s98, s100")
        a(f"s_cmp_lt_u32 s98, {cfg.padto}")
        a("s_cbranch_scc1 L_pad")
    ts.dump(16, 17)
    a("s_endpgm")

def gen_consumer(a, cfg, ts):
    a.label("L_consumer")
    SP = ["", " sc1", " nt", " sc1 nt"][cfg.spol]
    FP = ["", " sc1"][cfg.fpol]
    AP = ['', ' sc1', ' sc1 nt', ' sc0 sc1', ' sc0', ' nt'][cfg.apol]
    vm = VM(a)
    XA = [1, 2, 3, 4]; BA = [5, 6, 7, 8]; WA = [9, 10]
    LR, LI, CR, CI = 12, 13, 14, 15
    T = 16
    FS = [40, 68]
    ACC = 96
    def G(ft, q): return ACC + 16 * (2 * ft + q)
    def U(ft, q): return ACC + 64 + 16 * (2 * ft + q)
    def S(q): return ACC + 128 + 16 * q
    vI, vH = T, T + 1
    a(f"v_and_b32 v{vI}, 31, v0")
    a(f"v_lshrrev_b32 v{vH}, 5, v0")
    ts.x(1, 1)
    a("s_waitcnt lgkmcnt(0)")
    ts.x(1, 2)
    K = 40
    a(f"s_lshl_b32 s11, s{S_NS}, 5")
    a(f"s_load_dwordx8 s[48:55], s[{P_LRE}:{P_LRE+1}], s11")
    a(f"s_load_dwordx8 s[56:63], s[{P_LIM}:{P_LIM+1}], s11")
    a(f"s_load_dwordx8 s[64:71], s[{P_LDT}:{P_LDT+1}], s11")
    for k in range(160): a(f"v_mov_b32 v{ACC+k}, 0")
    a("s_mov_b32 s12, 0x00030003")
    a("s_mov_b32 s13, 0x00030003")
    a("s_waitcnt lgkmcnt(0)")
    ts.x(1, 4)
    for k in range(8):
        a(f"s_lshl_b64 exec, s[12:13], {2*k}")
        for m in range(3): a(f"v_mov_b32 v{K+m}, s{48+8*m+k}")
    a("s_mov_b64 exec, -1")
    a(f"v_and_b32 v{K+3}, 1, v0")
    a(f"v_lshlrev_b32 v{K+3}, 4, v{K+3}")
    for m in range(3): a(f"v_lshrrev_b32 v{K+m}, v{K+3}, v{K+m}")
    srd(a, SRD_WS, P_WS, WS_SIZE)
    a(f"v_bfe_u32 v{T+2}, v0, 1, 3")
    a(f"v_xor_b32 v{T+2}, v{T+2}, v{vH}")
    a(f"v_lshlrev_b32 v{T+2}, 4, v{T+2}")
    a(f"v_lshl_add_u32 v{T+2}, v{vI}, 7, v{T+2}")
    a(f"s_lshl_b32 s11, s{S_W4}, 13")
    for ks in range(4):
        a(f"v_xor_b32 v{T+3}, {32*ks}, v{T+2}")
        a(f"v_add_u32 v{XA[ks]}, s11, v{T+3}")
        a(f"v_add_u32 v{BA[ks]}, {OFF_BB}, v{T+3}")
    a(f"v_bfe_u32 v{T+2}, v0, 2, 2")
    a(f"v_lshl_add_u32 v{T+3}, v{vH}, 3, v{T+2}")
    a(f"v_lshlrev_b32 v{T+3}, 7, v{T+3}")
    a(f"v_lshrrev_b32 v{T+2}, 1, v{T+2}")
    a(f"v_lshl_add_u32 v{T+3}, v{T+2}, 6, v{T+3}")
    a(f"v_bfe_u32 v{T+2}, v0, 4, 1")
    a(f"v_lshl_add_u32 v{T+3}, v{T+2}, 5, v{T+3}")
    a(f"v_and_b32 v{T+2}, 3, v0")
    a(f"v_lshl_add_u32 v{T+3}, v{T+2}, 3, v{T+3}")
    a(f"v_add_u32 v{WA[0]}, {OFF_WG}, v{T+3}")
    a(f"v_xor_b32 v{WA[1]}, 64, v{WA[0]}")
    vRun8, vStS, vCB, vStF, vL16, vCL = T + 2, T + 3, T + 4, T + 5, T + 6, T + 7
    vF, vO, vXo, vSo, vDo, vTW, vTR = T + 8, T + 9, T + 10, T + 11, T + 12, T + 13, T + 14
    MM = T + 16
    HR, HI, T1, T2 = T + 18, T + 19, T + 20, T + 21
    CBR, CBI = T + 22, T + 23
    t0, t1 = 60, 61
    a(f"v_bfe_u32 v{t0}, v0, 4, 1")
    a(f"v_lshl_add_u32 v{t0}, v{t0}, 1, v{vH}")
    a(f"s_mul_i32 s62, s{S_W4}, {Q}")
    a(f"s_add_u32 s12, s62, {HTS}")
    a(f"v_and_b32 v{t1}, 15, v0")
    a(f"v_and_b32 v{vTW}, 6, v{t1}")
    a(f"v_lshlrev_b32 v{vTW}, 4, v{vTW}")
    a(f"v_lshlrev_b32 v{vTR}, 5, v{t0}")
    a(f"v_xor_b32 v{vTW}, v{vTW}, v{vTR}")
    a(f"v_lshl_add_u32 v{vTW}, v{t1}, 7, v{vTW}")
    a(f"v_add_u32 v{vTW}, s12, v{vTW}")
    a(f"s_lshl_b32 s11, s{S_W4}, 2")
    a(f"v_add_u32 v{t0}, s11, v{t0}")
    a(f"v_lshlrev_b32 v{t0}, 7, v{t0}")
    a(f"v_add_u32 v{vStS}, {STATS_L}, v{t0}")
    a(f"s_lshl_b32 s11, s{S_W4}, 7")
    a(f"s_add_u32 s11, s11, {AGG_L}")
    a(f"v_lshl_add_u32 v{vRun8}, v{t1}, 3, s11")
    a(f"v_lshlrev_b32 v{vCB}, 2, v{t1}")
    a(f"v_add_u32 v{vCB}, {C_L + 512}, v{vCB}")
    a(f"v_bfe_u32 v{t0}, v0, 2, 1")
    a(f"v_lshlrev_b32 v{t0}, 4, v{t0}")
    a(f"v_and_b32 v{t1}, 3, v0")
    a(f"v_add_u32 v{t0}, v{t0}, v{t1}")
    a(f"v_bfe_u32 v{t1}, v0, 3, 2")
    a(f"v_lshl_add_u32 v{t0}, v{t1}, 2, v{t0}")
    a(f"s_lshl_b32 s11, s{S_W4}, 9")
    a(f"s_add_u32 s11, s11, {STATS_L}")
    a(f"v_lshl_add_u32 v{vStF}, v{t0}, 3, s11")
    a(f"v_lshlrev_b32 v{vL16}, 4, v0")
    a(f"v_lshlrev_b32 v{vCL}, 4, v{vH}")
    a(f"v_add_u32 v{vCL}, {C_L}, v{vCL}")
    a(f"v_bfe_u32 v{t0}, v0, 2, 2")
    a(f"v_lshl_add_u32 v{t1}, v{vH}, 3, v{t0}")
    a(f"v_lshlrev_b32 v{vTR}, 7, v{t1}")
    a(f"v_lshrrev_b32 v{t0}, 1, v{t0}")
    a(f"v_xor_b32 v{t0}, v{t0}, v0")
    a(f"v_and_b32 v{t0}, 1, v{t0}")
    a(f"v_lshl_add_u32 v{vTR}, v{t0}, 5, v{vTR}")
    a(f"v_bfe_u32 v{t0}, v0, 4, 1")
    a(f"v_lshl_add_u32 v{vTR}, v{t0}, 4, v{vTR}")
    a(f"v_bfe_u32 v{t0}, v0, 1, 1")
    a(f"v_lshl_add_u32 v{vTR}, v{t0}, 3, v{vTR}")
    a(f"v_add_u32 v{vTR}, s12, v{vTR}")
    a(f"s_lshl_b32 s11, s{S_MT}, 3")
    a(f"s_lshl_b32 s12, s{S_W4}, 1")
    a("s_add_u32 s11, s11, s12")
    a(f"s_mul_i32 s58, s11, {RT_BYTES}")
    a(f"s_cmp_ge_u32 s{S_NS}, 14")
    a(f"s_cselect_b32 s11, {HALF_BYTES - 56*1024}, 0")
    a(f"s_lshl_b32 s12, s{S_NS}, 12")
    a("s_add_u32 s11, s11, s12")
    a("s_add_u32 s56, s58, s11")
    a(f"s_add_u32 s57, s56, {RT_BYTES}")
    a(f"s_lshl_b32 s11, s{S_NS}, 10")
    a("s_add_u32 s58, s58, s11")
    a(f"s_add_u32 s58, s58, {56*1024}")
    a(f"s_lshl_b32 s11, s{S_MT}, 2")
    a(f"s_add_u32 s11, s11, s{S_W4}")
    a("s_lshl_b32 s11, s11, 8")
    a(f"s_lshl_b32 s12, s{S_NS}, 2")
    a("s_add_u32 s11, s11, s12")
    a(f"s_add_u32 s11, s11, {WS_FLAG:#x}")
    a(f"v_mov_b32 v{vF}, s11")
    a(f"s_and_b32 s12, s{S_W4}, 1")
    a(f"s_lshr_b32 s59, s{S_W4}, 1")
    a(f"s_lshl_b32 s11, s{S_M64}, 1")
    a("s_add_u32 s14, s11, s12")
    a("s_lshl_b32 s11, s14, 5")
    a(f"v_lshl_add_u32 v{vSo}, v{vH}, 4, s11")
    a(f"v_and_b32 v{vSo}, 63, v{vSo}")
    a(f"v_lshlrev_b32 v{vSo}, 3, v{vSo}")
    a(f"v_add_u32 v{vSo}, {ST2_L}, v{vSo}")
    a(f"s_lshl_b32 s11, s{S_M64}, 1")
    a(f"s_mul_i32 s52, s11, {RT_BYTES}")
    a(f"s_mul_i32 s53, s59, {HALF_BYTES}")
    a("s_add_u32 s52, s52, s53")
    a(f"s_mul_i32 s53, s12, {28*1024}")
    a("s_add_u32 s52, s52, s53")
    p2_rot(a, cfg, 60, 61, 63)
    vWd, vCn = vO, vXo
    a(f"v_lshrrev_b32 v{t0}, 3, v0")
    a(f"s_mul_i32 s11, s{S_W4}, 448")
    a(f"v_add_u32 v{t0}, s11, v{t0}")
    a(f"v_mul_u32_u24 v{vWd}, 896, v{t0}")
    a(f"v_bfe_u32 v{t0}, v0, 4, 1")
    a(f"v_lshlrev_b32 v{t0}, 2, v{t0}")
    a(f"v_and_b32 v{t1}, 7, v0")
    a(f"v_xor_b32 v{t0}, v{t0}, v{t1}")
    a(f"v_lshl_add_u32 v{vWd}, v{t0}, 4, v{vWd}")
    a(f"s_lshl_b32 s11, s{S_NT}, 7")
    a(f"v_add_u32 v{vWd}, s11, v{vWd}")
    a("s_add_u32 s61, s60, 6")
    a("s_cmp_ge_u32 s61, 7")
    a("s_cselect_b32 s11, 7, 0")
    a("s_sub_u32 s61, s61, s11")
    a(f"s_mul_i32 s61, s61, {64*896}")
    srd(a, 24, P_WD, 1792 * 896)
    a(f"v_mov_b32 v{vCn}, {CNT_L}")
    ts.x(1, 5)
    ssm_const_calc(a, K, LR, LI, CR, CI)
    csq(a, K + 8, K + 9, LR, LI, K)
    for _ in range(3): csq(a, K + 8, K + 9, K + 8, K + 9, K)
    PWR, PWI = 11, T + 15
    L16R, L16I = T + 12, T
    a(f"v_mov_b32 v{PWR}, v{CR}")
    a(f"v_mov_b32 v{PWI}, v{CI}")
    a(f"v_mov_b32 v{K+14}, v{K+8}")
    a(f"v_mov_b32 v{K+15}, v{K+9}")
    a(f"v_mov_b32 v{L16R}, v{K+8}")
    a(f"v_mov_b32 v{L16I}, v{K+9}")
    for b in range(2):
        cmul(a, K + 1, K + 2, PWR, PWI, K + 14, K + 15)
        a(f"v_and_b32 v{K}, {32 >> b}, v0")
        a(f"v_cmp_ne_u32 vcc, 0, v{K}")
        a(f"v_cndmask_b32 v{PWR}, v{PWR}, v{K+1}, vcc")
        a(f"v_cndmask_b32 v{PWI}, v{PWI}, v{K+2}, vcc")
        csq(a, K + 14, K + 15, K + 14, K + 15, K)
    a(f"s_cmp_lg_u32 s{S_W4}, 0")
    a("s_cbranch_scc1 L_c_nok")
    a(f"v_mov_b32 v{K+8}, v{K+14}")
    a(f"v_mov_b32 v{K+9}, v{K+15}")
    for _ in range(2): csq(a, K + 14, K + 15, K + 14, K + 15, K)
    W0 = K + 16
    a(f"v_lshrrev_b32 v{K+10}, 4, v0")
    a(f"s_sub_u32 s11, s{S_MT}, 1")
    a(f"v_sub_u32 v{K+10}, s11, v{K+10}")
    a(f"v_add_u32 v{K+11}, -4, v{K+10}")
    a(f"v_mov_b32 v{W0}, 1.0"); a(f"v_mov_b32 v{W0+1}, 0")
    a(f"v_mov_b32 v{W0+2}, 1.0"); a(f"v_mov_b32 v{W0+3}, 0")
    for b in range(3):
        for (wr, wi, e) in ((W0, W0 + 1, K + 10), (W0 + 2, W0 + 3, K + 11)):
            cmul(a, K + 1, K + 2, wr, wi, K + 14, K + 15)
            a(f"v_and_b32 v{K}, {1 << b}, v{e}")
            a(f"v_cmp_ne_u32 vcc, 0, v{K}")
            a(f"v_cndmask_b32 v{wr}, v{wr}, v{K+1}, vcc")
            a(f"v_cndmask_b32 v{wi}, v{wi}, v{K+2}, vcc")
        if b < 2: csq(a, K + 14, K + 15, K + 14, K + 15, K)
    a(f"v_and_b32 v{K}, 15, v0")
    a(f"v_lshlrev_b32 v{K}, 3, v{K}")
    a(f"v_add_u32 v{K}, {KC_L}, v{K}")
    a(f"ds_write_b64 v{K}, v[{K+8}:{K+9}]")
    a(f"v_add_u32 v{K+1}, {KC_L + 128}, v{vL16}")
    a(f"ds_write_b128 v{K+1}, v[{W0}:{W0+3}]")
    a(f"v_mov_b32 v{K+2}, {CNT_L}")
    a(f"v_mov_b32 v{K+3}, 0")
    a(f"ds_write_b32 v{K+2}, v{K+3}")
    a(f"ds_write_b32 v{K+2}, v{K+3} offset:4")
    a("s_waitcnt lgkmcnt(0)")
    a.label("L_c_nok")
    ts(1)
    ts.x(1, 8)

    def reads(fs, ks):
        f = FS[fs]
        L = []
        L.append(f"ds_read_b128 v[{f}:{f+3}], v{XA[ks]}")
        for j in range(2):
            L.append(f"ds_read_b64_tr_b16 v[{f+8+2*j}:{f+9+2*j}], v{WA[0]} offset:{ks*2048 + j*512}")
        L.append(f"ds_read_b128 v[{f+4}:{f+7}], v{XA[ks]} offset:4096")
        for gu in range(2):
            for ft in range(2):
                if gu == 0 and ft == 0: continue
                for j in range(2):
                    d = f + 8 + 8 * gu + 4 * ft + 2 * j
                    L.append(f"ds_read_b64_tr_b16 v[{d}:{d+1}], v{WA[ft]} offset:{gu*8192 + ks*2048 + j*512}")
        L.append(f"ds_read_b128 v[{f+24}:{f+27}], v{BA[ks]}")
        return L
    def mfmas(fs):
        f = FS[fs]
        X = [f, f + 4]; Bf = f + 24
        L = []
        for gu in range(2):
            for ft in range(2):
                w = f + 8 + 8 * gu + 4 * ft
                for q in range(2):
                    d = (G, U)[gu](ft, q)
                    L.append(f"v_mfma_f32_32x32x16_bf16 v[{d}:{d+15}], v[{w}:{w+3}], v[{X[q]}:{X[q]+3}], v[{d}:{d+15}]")
        for q in range(2):
            L.append(f"v_mfma_f32_32x32x16_bf16 v[{S(q)}:{S(q)+15}], v[{X[q]}:{X[q]+3}], v[{Bf}:{Bf+3}], v[{S(q)}:{S(q)+15}]")
        return L
    a("s_setprio 2")
    a("s_barrier")
    ts(2)
    for t in reads(0, 0): a(t)
    a("s_mov_b32 s72, 0")
    a("s_mov_b32 s74, 0")
    a.label("L_c_loop")
    for ks in range(4):
        fs = ks & 1
        M = mfmas(fs)
        need = {0: 8, 1: 7, 2: 5, 4: 3, 6: 1, 8: 0}
        if ks < 3:
            Rd = reads(1 - fs, ks + 1)
            issued = 0
            for i, m in enumerate(M):
                if i in need: a(f"s_waitcnt lgkmcnt({min(15, need[i] + issued)})")
                a(m)
                for _ in range(2 if i >= cfg.rdstart else 0):
                    if Rd: a(Rd.pop(0)); issued += 1
        else:
            Rd = reads(1 - fs, 0)
            a("s_waitcnt lgkmcnt(8)")
            a(M[0])
            a("s_add_u32 s74, s74, 1")
            a("s_cmp_eq_u32 s74, 3")
            a("s_mov_b32 s75, 53248")
            a(f"s_cmov_b32 s75, {(-106496) & 0xffffffff:#x}")
            a("s_cselect_b32 s74, 0, s74")
            for v in XA + BA[:1]: a(f"v_add_u32 v{v}, s75, v{v}")
            a("s_waitcnt lgkmcnt(7)")
            a(M[1])
            for v in BA[1:] + WA: a(f"v_add_u32 v{v}, s75, v{v}")
            a("s_waitcnt lgkmcnt(0)")
            a(M[2])
            a("s_barrier")
            for m in M[3:]:
                for _ in range(2):
                    if Rd: a(Rd.pop(0))
                a(m)
            a("s_add_u32 s72, s72, 1")
            a("s_cmp_lt_u32 s72, 7")
            a("s_cbranch_scc1 L_c_loop")
    ts(3)
    a(f"ds_read_b32 v{MM}, v{vStF}")
    a(f"ds_read_b32 v{MM+1}, v{vStF} offset:256")
    a("s_barrier")
    X, Y = S(0), S(1)
    CG = [40, 64]
    def cread(dst, off):
        for k in range(4): a(f"ds_read_b128 v[{dst+4*k}:{dst+4*k+3}], v{vCL} offset:{off + 32*k}")
    cread(40, 0); cread(56, 256); cread(72, 128)
    for ft in range(2):
        cg, cu = (40, 56) if ft == 0 else (72, 40)
        a(f"s_waitcnt lgkmcnt({4 if ft == 0 else 0})")
        for q in range(2):
            g, u = G(ft, q), U(ft, q)
            sel = f"op_sel:[{q},0,0] op_sel_hi:[{q},1,1] neg_lo:[1,0,0] neg_hi:[1,0,0]"
            for k in range(8):
                a(f"v_pk_fma_f32 v[{g+2*k}:{g+2*k+1}], v[{MM}:{MM+1}], v[{cg+2*k}:{cg+2*k+1}], v[{g+2*k}:{g+2*k+1}] {sel}")
            if ft == 0 and q == 1: cread(40, 256 + 128)
            for k in range(8):
                a(f"v_pk_fma_f32 v[{u+2*k}:{u+2*k+1}], v[{MM}:{MM+1}], v[{cu+2*k}:{cu+2*k+1}], v[{u+2*k}:{u+2*k+1}] {sel}")
                a(f"v_max_f32 v{g+2*k}, 0, v{g+2*k}")
                a(f"v_max_f32 v{g+2*k+1}, 0, v{g+2*k+1}")
            for p in range(2):
                for k in range(4 * p, 4 * p + 4):
                    a(f"v_pk_mul_f32 v[{u+2*k}:{u+2*k+1}], v[{u+2*k}:{u+2*k+1}], v[{g+2*k}:{g+2*k+1}]")
                for k in range(4 * p, 4 * p + 4):
                    a(f"v_cvt_pk_bf16_f32 v{u+k}, v{u+2*k}, v{u+2*k+1}")
                vm.issue('h', f"buffer_store_dwordx4 v[{u+4*p}:{u+4*p+3}], v{vL16}, s[{SRD_WS}:{SRD_WS+3}], s{56+q} offen offset:{(2*ft+p)*1024}{SP}")
    ts(4)
    WB = {0: [1, 2], 1: [3, 4], 2: [5, 6]}
    a(f"v_bfe_u32 v7, v0, 2, 2")
    a(f"v_lshl_add_u32 v8, v{vH}, 2, v7")
    a(f"v_lshlrev_b32 v8, 7, v8")
    a(f"v_lshrrev_b32 v7, 1, v7")
    a(f"v_lshl_add_u32 v8, v7, 6, v8")
    a(f"v_bfe_u32 v7, v0, 4, 1")
    a(f"v_lshl_add_u32 v8, v7, 5, v8")
    a(f"v_and_b32 v7, 3, v0")
    a(f"v_lshl_add_u32 v8, v7, 3, v8")
    a(f"v_add_u32 v8, s62, v8")
    for rg in range(3):
        a(f"v_add_u32 v{WB[rg][0]}, {R[rg]}, v8")
        a(f"v_xor_b32 v{WB[rg][1]}, 64, v{WB[rg][0]}")
    BR = 144
    def breads(p):
        sl = WSLOT[p]
        rg = max(k for k in range(3) if R[k] <= sl)
        L = []
        for ct in range(2):
            for jj in range(2):
                d = BR + 8 * (p % 10) + 4 * ct + 2 * jj
                L.append(f"ds_read_b64_tr_b16 v[{d}:{d+1}], v{WB[rg][ct]} offset:{sl - R[rg] + jj*1024}")
        return L
    X, Y = S(0), S(1)
    ST = 40
    a(f"ds_read_b32 v{CBR}, v{vCB}")
    a(f"ds_read_b32 v{CBI}, v{vCB} offset:64")
    for k in range(8): a(f"ds_read_b128 v[{ST+4*k}:{ST+4*k+3}], v{vStS} offset:{16*k}")
    for r in range(16): a(f"v_permlane16_swap_b32 v{X+r}, v{Y+r}")
    vOne = MM
    a(f"v_mov_b32 v{vOne}, 1")
    for r in range(16):
        if r % 2 == 0: a(f"s_waitcnt lgkmcnt({7 - r//2})")
        m, rs = ST + 2 * r, ST + 2 * r + 1
        a(f"v_fma_f32 v{X+r}, -v{m}, v{CBR}, v{X+r}")
        a(f"v_fma_f32 v{Y+r}, -v{m}, v{CBI}, v{Y+r}")
        a(f"v_mul_f32 v{X+r}, v{X+r}, v{rs}")
        a(f"v_mul_f32 v{Y+r}, v{Y+r}, v{rs}")
        if r >= 1:
            pr, pi = (X, Y) if r == 1 else (HR, HI)
            a(f"v_fma_f32 v{T1}, -v{LI}, v{pi}, v{X+r}")
            a(f"v_fma_f32 v{T2}, v{LI}, v{pr}, v{Y+r}")
            a(f"v_fma_f32 v{HR}, v{LR}, v{pr}, v{T1}")
            a(f"v_fma_f32 v{HI}, v{LR}, v{pi}, v{T2}")
    z = 72
    a(f"v_mov_b32 v{z}, v{HR}"); a(f"v_mov_b32 v{z+1}, v{HI}")
    csq(a, z + 8, z + 9, L16R, L16I, z + 10)
    a(f"v_permlane32_swap_b32 v{HR}, v{z}")
    a(f"v_permlane32_swap_b32 v{HI}, v{z+1}")
    a(f"v_fma_f32 v{z}, -v{L16I}, v{HI}, v{z}")
    a(f"v_fma_f32 v{z+1}, v{L16I}, v{HR}, v{z+1}")
    a(f"v_fmac_f32 v{z}, v{L16R}, v{HR}")
    a(f"v_fmac_f32 v{z+1}, v{L16R}, v{HI}")
    a(f"v_mov_b32 v{z+2}, v{z}"); a(f"v_mov_b32 v{z+3}, v{z+1}")
    a(f"v_cmp_lt_u32 vcc, 31, v0")
    a(f"v_permlane16_swap_b32 v{z}, v{z+2}")
    a(f"v_permlane16_swap_b32 v{z+1}, v{z+3}")
    a(f"v_fma_f32 v{z+2}, -v{z+9}, v{z+1}, v{z+2}")
    a(f"v_fma_f32 v{z+3}, v{z+9}, v{z}, v{z+3}")
    a(f"v_fmac_f32 v{z+2}, v{z+8}, v{z}")
    a(f"v_fmac_f32 v{z+3}, v{z+8}, v{z+1}")
    a(f"ds_write_b64 v{vRun8}, v[{z+2}:{z+3}]")
    a(f"v_and_b32 v{z+4}, 16, v0")
    a(f"v_cmp_ne_u32 s[12:13], 0, v{z+4}")
    a(f"v_cndmask_b32 v{z}, 0, v{z}, s[12:13]")
    a(f"v_cndmask_b32 v{z+1}, 0, v{z+1}, s[12:13]")
    a(f"v_fma_f32 v{HR}, -v{L16I}, v{z+1}, v{HR}")
    a(f"v_fma_f32 v{HI}, v{L16I}, v{z}, v{HI}")
    a(f"v_fmac_f32 v{HR}, v{L16R}, v{z}")
    a(f"v_fmac_f32 v{HI}, v{L16R}, v{z+1}")
    a(f"v_cndmask_b32 v{z}, v{z}, v{HR}, vcc")
    a(f"v_cndmask_b32 v{z+1}, v{z+1}, v{HI}, vcc")
    def flag1():
        vm.wait('h')
        a("s_mov_b64 exec, 1")
        vm.issue('f', f"buffer_store_dword v{vOne}, v{vF}, s[{SRD_WS}:{SRD_WS+3}], 0 offen{FP}")
        a("s_mov_b64 exec, -1")
        ts(6)
    if cfg.fpre: flag1()
    a("s_waitcnt lgkmcnt(0)")
    a("s_barrier")
    ts(5)
    if not cfg.fpre: flag1()
    cmul(a, HR, HI, z, z + 1, CR, CI)
    pl = sum([breads(p) for p in range(10)], [])
    for r in range(16):
        for _ in range(5):
            if pl: a(pl.pop(0))
        if r == 9:
            a("s_waitcnt lgkmcnt(0)")
            a("s_barrier")
        a(f"v_mul_f32 v{T1}, v{CI}, v{Y+r}")
        a(f"v_mul_f32 v{T2}, v{CI}, v{X+r}")
        a(f"v_fma_f32 v{X+r}, v{CR}, v{X+r}, -v{T1}")
        a(f"v_fma_f32 v{Y+r}, v{CR}, v{Y+r}, v{T2}")
    a("s_mov_b32 s15, 0xffff0000")
    vFl, vFv = vStF, vCL
    a(f"s_lshl_b32 s55, s{S_M64}, 8")
    a(f"s_add_u32 s55, s55, {WS_FLAG:#x}")
    a(f"s_mul_i32 s11, s{S_W4}, 28")
    a("s_add_u32 s55, s55, s11")
    a(f"v_min_u32 v{vFl}, 6, v0")
    a(f"v_lshlrev_b32 v{vFl}, 2, v{vFl}")
    a(f"v_add_u32 v{vRun8}, {(CAR_L - AGG_L) & 0xffffffff:#x}, v{vRun8}")
    AF = 80
    AR = list(range(40, 80, 4)) + list(range(224, 256, 4))
    NA = len(AR)
    def aload(n):
        p, rt = n // 2, n % 2
        if n % 8 == 0:
            a(f"s_lshl_b32 s54, s60, 12")
            a(f"s_add_u32 s54, s54, s52")
            a(f"s_add_u32 s53, s54, {RT_BYTES}")
            a(f"s_add_u32 s60, s60, 1")
            a(f"s_cmp_eq_u32 s60, 7")
            a(f"s_cselect_b32 s60, 0, s60")
        d = AR[n % NA]
        vm.issue(('a', n), f"buffer_load_dwordx4 v[{d}:{d+3}], v{vL16}, s[{SRD_WS}:{SRD_WS+3}], s{54 - rt} offen offset:{(p%4)*1024}{AP}")
    ld = f"buffer_load_dword v{vFv}, v{vFl}, s[{SRD_WS}:{SRD_WS+3}], s55 offen sc1"
    vm.issue('pf', ld)
    vm.wait('pf')
    def cond():
        a(f"v_cmp_ne_u32 vcc, 1, v{vFv}")
        a("s_cmp_eq_u64 vcc, 0")
    spin_check(a, "L_pf", [ld], cond, 2)
    ts(7)
    for n in range(10): aload(n)
    a("s_barrier")
    ts(8)
    a(f"ds_read_b64 v[{CBR}:{CBI}], v{vRun8}")
    a("s_waitcnt lgkmcnt(0)")
    a(f"v_fmac_f32 v{HR}, v{PWR}, v{CBR}")
    a(f"v_fmac_f32 v{HI}, v{PWR}, v{CBI}")
    a(f"v_fma_f32 v{HR}, -v{PWI}, v{CBI}, v{HR}")
    a(f"v_fmac_f32 v{HI}, v{PWI}, v{CBR}")
    pr, pi = HR, HI
    PK, HF = 80, 96
    for r in range(16):
        a(f"v_fma_f32 v{X+r}, -v{LI}, v{pi}, v{X+r}")
        a(f"v_fma_f32 v{Y+r}, v{LI}, v{pr}, v{Y+r}")
        a(f"v_fmac_f32 v{X+r}, v{LR}, v{pr}")
        a(f"v_fmac_f32 v{Y+r}, v{LR}, v{pi}")
        pr, pi = X + r, Y + r
    for k in range(8):
        a(f"v_cvt_pk_bf16_f32 v{PK+k}, v{X+2*k}, v{X+2*k+1}")
    a(f"ds_write_b128 v{vTW}, v[{PK}:{PK+3}]")
    a(f"ds_write_b128 v{vTW}, v[{PK+4}:{PK+7}] offset:16")
    for k in range(8):
        a(f"v_cvt_pk_bf16_f32 v{PK+8+k}, -v{Y+2*k}, -v{Y+2*k+1}")
    a(f"ds_write_b128 v{vTW}, v[{PK+8}:{PK+11}] offset:2048")
    a(f"ds_write_b128 v{vTW}, v[{PK+12}:{PK+15}] offset:2064")
    for q in range(2):
        for part in range(2):
            for j in range(2):
                d = HF + 8 * q + 4 * part + 2 * j
                a(f"ds_read_b64_tr_b16 v[{d}:{d+1}], v{vTR} offset:{(part*16 + 4*j)*128 + 64*(q ^ j)}")
    for n in range(10, cfg.a0): aload(n)
    a("s_waitcnt lgkmcnt(0)")
    for q in range(2):
        for part in range(2):
            d = HF + 8 * q + 4 * part
            a(f"s_add_u32 s11, s58, {q*RT_BYTES + part*HALF_BYTES}")
            vm.issue('hs', f"buffer_store_dwordx4 v[{d}:{d+3}], v{vL16}, s[{SRD_WS}:{SRD_WS+3}], s11 offen{SP}")
    ts(9)
    nxt = [cfg.a0]
    ts.x(6, 5)
    ts(10)
    lq = []
    def ds_issue(tag, t):
        a(t)
        if t.startswith("ds_"): lq.append(tag)
    def ds_wait(tag):
        idx = max((i for i, t in enumerate(lq) if t == tag), default=None)
        if idx is None: return None
        n = len(lq) - 1 - idx
        del lq[:idx + 1]
        return f"lgkmcnt({min(n, 15)})"
    flag2_done = False
    XV = 144; DS = vFv
    for p in range(28):
        f = BR + 8 * (p % 10)
        for rt in range(2):
            n = 2 * p + rt
            w = ds_wait(p) if rt == 0 else None
            vm.wait(('a', n), w or "")
            if n in (0, 7, 17, 25, 35): ts.x(6, {0: 7, 7: 8, 17: 9, 25: 10, 35: 11}[n])
            d = AR[n % NA]
            for ct in range(2):
                acc = AF + 32 * rt + 16 * ct
                c = "0" if p == 0 else f"v[{acc}:{acc+15}]"
                a(f"v_mfma_f32_32x32x16_bf16 v[{acc}:{acc+15}], v[{d}:{d+3}], v[{f+4*ct}:{f+4*ct+3}], {c}")
            if not flag2_done and n >= cfg.f2n:
                vm.wait('hs')
                a("s_mov_b64 exec, 1")
                vm.issue('f', f"buffer_store_dword v{vOne}, v{vF}, s[{SRD_WS}:{SRD_WS+3}], 0 offen offset:128{FP}")
                a("s_mov_b64 exec, -1")
                flag2_done = True
            for _ in range(2):
                if nxt[0] < 56 and nxt[0] <= n + NA:
                    aload(nxt[0]); nxt[0] += 1
        if p == 5:
            for pp in (26, 27):
                for n2 in range(2):
                    a(f"s_add_u32 m0, s62, {WSLOT[pp] + n2*1024}")
                    a(f"s_add_u32 s11, s61, {((pp % 4) * 16 + 8 * n2) * 896}")
                    vm.issue('wl', f"buffer_load_dwordx4 v{vWd}, s[24:27], s11 offen lds")
        pn = p + cfg.bd
        if p == cfg.ky:
            assert pn <= 12
            a("s_barrier")
        if p == cfg.ksig:
            assert pn > 15
            w = ds_wait(15)
            if w: a(f"s_waitcnt {w}")
            a("s_mov_b64 exec, 1")
            ds_issue('c', f"ds_add_u32 v{vCn}, v{vOne} offset:4")
            a("s_mov_b64 exec, -1")
        if pn in (26, 27): assert 'wl' not in vm.q
        if 10 <= pn < 28:
            for t in breads(pn): ds_issue(pn, t)
        if p % 4 == 3: ts.x(4, 1 + p // 4)
    ts(11)
    ts.x(7, 1)
    vXW = 1
    a(f"v_add_u32 v{vXW}, s62, v{vL16}")
    a(f"v_add_u32 v{vXW}, {FXA}, v{vXW}")
    STT = 160
    for k in range(8): a(f"ds_read_b128 v[{STT+4*k}:{STT+4*k+3}], v{vSo} offset:{16*k}")
    O = 40
    def acc_of(qd): return AF + 32 * (qd & 1) + 16 * (qd >> 1)
    for w in range(4):
        if w < 3:
            a(f"s_cmp_lg_u32 s{S_W4}, {w}")
            a(f"s_cbranch_scc1 L_c_w{w+1}")
        a("s_nop 7")
        for dq in range(1, 4):
            src = acc_of((w + dq) & 3)
            for k in range(4):
                a(f"ds_write_b128 v{vXW}, v[{src+4*k}:{src+4*k+3}] offset:{(dq-1)*4096 + 1024*k}")
        for r in range(16): a(f"v_mov_b32 v{O+r}, v{acc_of(w)+r}")
        if w < 3:
            a("s_branch L_c_wd")
            a.label(f"L_c_w{w+1}")
    a.label("L_c_wd")
    ts.x(7, 2)
    a("s_waitcnt lgkmcnt(0)")
    ts.x(7, 3)
    a("s_mov_b64 exec, 1")
    a(f"ds_add_u32 v{vCn}, v{vOne}")
    a("s_mov_b64 exec, -1")
    EX = 56
    a(f"ds_read_b32 v4, v{vCn}")
    for r in range(16): a(f"v_mul_f32 v{STT+2*r}, v{STT+2*r+1}, v{STT+2*r+1}")
    for dq in range(1, 4):
        a(f"s_sub_u32 s11, s{S_W4}, {dq}")
        a("s_and_b32 s11, s11, 3")
        a(f"s_mul_i32 s11, s11, {Q}")
        a(f"s_add_u32 s11, s11, {FXA + (dq-1)*4096}")
        a(f"v_add_u32 v{4+dq}, s11, v{vL16}")
    a("s_mov_b32 s73, 0")
    a.label("L_c_cnt")
    a("s_waitcnt lgkmcnt(0)")
    a("v_readfirstlane_b32 s11, v4")
    a("s_cmp_ge_u32 s11, 4")
    a("s_cbranch_scc1 L_c_cntok")
    a("s_add_u32 s73, s73, 1")
    a(f"s_cmp_ge_u32 s73, {SPIN_MAX}")
    a("s_cbranch_scc1 L_c_cntok")
    a("s_sleep 1")
    a(f"ds_read_b32 v4, v{vCn}")
    a("s_branch L_c_cnt")
    a.label("L_c_cntok")
    ts.x(7, 4)
    RX = 80
    for dq in range(1, 4):
        for k in range(4): a(f"ds_read_b128 v[{RX+16*(dq-1)+4*k}:{RX+16*(dq-1)+4*k+3}], v{4+dq} offset:{1024*k}")
    a(f"v_add_u32 v{vXW}, {GA - FXA}, v{vXW}")
    a(f"s_mov_b32 s13, {LOG2E ^ 0x80000000:#x}")
    for dq in range(3):
        a(f"s_waitcnt lgkmcnt({8 - 4*dq})")
        for r in range(16): a(f"v_add_f32 v{O+r}, v{O+r}, v{RX+16*dq+r}")
    ts.x(7, 5)
    for r in range(16): a(f"v_mul_f32 v{O+r}, v{O+r}, v{STT+2*r}")
    for r in range(16): a(f"v_mul_f32 v{EX+r}, s13, v{O+r}")
    for r in range(16): a(f"v_exp_f32 v{EX+r}, v{EX+r}")
    for r in range(16): a(f"v_add_f32 v{EX+r}, 1.0, v{EX+r}")
    for r in range(16): a(f"v_rcp_f32 v{EX+r}, v{EX+r}")
    for k in range(4):
        for r in range(4 * k, 4 * k + 4): a(f"v_mul_f32 v{O+r}, v{O+r}, v{EX+r}")
        a(f"ds_write_b128 v{vXW}, v[{O+4*k}:{O+4*k+3}] offset:{1024*k}")
    a("s_waitcnt lgkmcnt(0)")
    ts(12)
    a("s_barrier")
    ts.dump(T, T + 1)
    a("s_endpgm")

HEADER = """; Fused S5-SSM + ReGLU block, one launch: 224 main workgroups (4 MFMA waves + 4 loader waves) + 32 helper workgroups.
; @launch grid=(256,1,1) block=(512,1,1) lds=163840
.amdgcn_target "amdgcn-amd-amdhsa--gfx950"
.text
.globl {k}
.p2align 8
.type {k},@function
{k}:
"""
FOOTER = """.section .rodata,"a"
.p2align 6
.amdhsa_kernel {k}
  .amdhsa_next_free_vgpr 256
  .amdhsa_next_free_sgpr 102
  .amdhsa_accum_offset 256
  .amdhsa_group_segment_fixed_size 0
  .amdhsa_kernarg_size 128
  .amdhsa_user_sgpr_count 2
  .amdhsa_user_sgpr_kernarg_segment_ptr 1
  .amdhsa_system_sgpr_workgroup_id_x 1
  .amdhsa_float_denorm_mode_32 3
.end_amdhsa_kernel
"""

def generate(cfg):
    a = Asm()
    ts = TS(a, cfg)
    gen_entry(a, cfg, ts)
    gen_loader(a, cfg, ts)
    gen_consumer(a, cfg, ts)
    gen_helper(a, cfg, ts)
    a.label("L_exit")
    a("s_endpgm")
    return HEADER.format(k=KNAME) + a.text() + FOOTER.format(k=KNAME)

if __name__ == "__main__":
    cfg = Cfg()
    out = sys.argv[1]
    for kv in sys.argv[2:]:
        k, v = kv.split("=")
        setattr(cfg, k, int(v))
    open(out, "w").write(generate(cfg))
```

```python
import sys, os
sys.path.insert(0, os.path.dirname(os.path.abspath(__file__)))
from asmlib import Asm, VM

KNAME = "recurrent_scan__ssm_conv_s5__glu_gated_reglu__prompt_kernel"

R = [0, 53248, 106496]
MISC = 159744
OFF_WG, OFF_WU, OFF_BB = 32768, 40960, 49152
CP_L = R[2] + 49152
STATS_L = MISC
C_L = MISC + 2048
CNT_L = MISC + 2688
ST2_L = MISC + 2720
AGG_L = MISC + 3232
Q = 12288

RT_BYTES = 172032
HALF_BYTES = 86016
WS_STATS = 0xB00000
WS_AGG = WS_STATS + 0x4000
WS_FLAG = WS_AGG + 0x8000
INIT_N = 128
WS_TS = 0xC00000
WS_SIZE = 0x1000000
SPIN_MAX = 1 << 20

S_WAVE, S_XCD, S_SLOT, S_MT, S_NS, S_M64, S_NT, S_W4 = 3, 4, 5, 6, 7, 8, 9, 10
P_X, P_LRE, P_LIM, P_BRE, P_BIM, P_CRE, P_CIM, P_LDT, P_DSK, P_BX, P_WG, P_WU, P_WD, P_OUT, P_DBG, P_WS = [16 + 2 * i for i in range(16)]
SRD_X, SRD_A, SRD_B, SRD_C, SRD_WS, SRD_E = 48, 52, 56, 60, 64, 68
TS0 = 76

LOG2E = 0x3fb8aa3b
LOG2E_LO = 0x32a57060
LN2 = 0x3f317218
INV2PI = 0x3e22f983

class Cfg:
    ts = 0
    tsset = 0
    pd = 16
    perm = 0
    rot = 2
    ssm_early = 0
    schedn = 0
    polx = 0
    apol = 1
    noa = 0
    nob = 0
    rdstart = 1
    polw = 0
    winn = 0
    wsoff = 0
    kwin = 2
    eprio = 0
    c2late = 0
    cpf = 1
    padto = 0
    nocs = 0
    r2pre = 1
    tlb = 0
    bd = 4
    pollw = 24
    wfirst = 1
    @property
    def win(self):
        W = lambda a, b: [f"w{p}" for p in range(a, b)]
        return [
            {-1: ["s1"], 0: ["k", "s2", "e"], 1: ["s3"] + W(12, 14), 2: ["s4"] + W(14, 16), 3: ["s5"] + W(16, 18), 4: ["init", "s6"] + W(18, 20),
             5: ["fetch"] + W(0, 6) + W(20, 22), 6: W(6, 12) + ["put"]},
            {-1: ["s1:0-3"], 0: ["s1:3-13", "k", "s2:0-6"], 1: ["s2:6-13", "s3:0-10"], 2: ["s3:10-13", "s4", "e"], 3: ["s5"] + W(12, 15), 4: ["init", "s6"] + W(15, 18),
             5: ["fetch"] + W(0, 6) + W(18, 21), 6: W(6, 12) + ["w21", "put"]},
            {-1: ["s1:0-6"], 0: ["s1:6-13", "k", "s2:0-9"], 1: ["s2:9-13", "s3", "e"], 2: ["s4"] + W(12, 14), 3: ["s5"] + W(14, 17), 4: ["init", "s6"] + W(17, 19),
             5: ["fetch"] + W(0, 6) + W(19, 22), 6: W(6, 12) + ["put"]},
        ][self.winn]
    nw1 = 6
    flagr = -1
    xs = 1
    psleep = 2
    fsleep = 2
    ttper = 2
    f2n = 9
    fpre = 1
    a0 = 18
    sprio = 0
    ksig = 12
    opol = 0
    lprio = 3
    w12early = 0
    slab = 0
    spol = 1
    fpol = 1
    pollr = 4
    nw2 = 16
    thr = 15
    hpf = 4
    ky = 2
    @property
    def perms(self):
        return {
            0: [[0, 1, 2, 3, 4, 5, 6]],
            1: [[0, 1, 2, 3, 4, 5, 6], [1, 2, 0, 4, 5, 3, 6], [2, 0, 1, 5, 3, 4, 6]],
            2: [[0, 1, 2, 3, 4, 5, 6], [1, 0, 3, 2, 5, 4, 6]],
            3: [[0, 1, 2, 3, 4, 5, 6], [1, 0, 4, 5, 6, 2, 3], [0, 1, 6, 2, 3, 4, 5]],
            4: [[0, 1, 2, 3, 4, 5, 6], [1, 2, 0, 4, 6, 3, 5], [2, 0, 1, 5, 6, 3, 4]],
            5: [[0, 1, 2, 3, 4, 5, 6], [1, 2, 3, 0, 5, 6, 4], [2, 3, 0, 1, 6, 4, 5], [3, 0, 1, 2, 4, 5, 6]],
        }[self.perm]

WSOFF = [0]
def srd(a, d, ptr, nbytes):
    if ptr == P_WS and WSOFF[0]:
        a(f"s_add_u32 s{ptr}, s{ptr}, {WSOFF[0]:#x}")
        a(f"s_addc_u32 s{ptr+1}, s{ptr+1}, 0")
    a(f"s_mov_b32 s{d}, s{ptr}")
    a(f"s_and_b32 s{d+1}, s{ptr+1}, 0xffff")
    a(f"s_mov_b32 s{d+2}, {nbytes:#x}")
    a(f"s_mov_b32 s{d+3}, 0x20000")

def srd_sel(a, d, ptr1, ptr0, nbytes):
    a(f"s_cselect_b32 s{d}, s{ptr1}, s{ptr0}")
    a(f"s_cselect_b32 s{d+1}, s{ptr1+1}, s{ptr0+1}")
    a(f"s_and_b32 s{d+1}, s{d+1}, 0xffff")
    a(f"s_mov_b32 s{d+2}, {nbytes:#x}")
    a(f"s_mov_b32 s{d+3}, 0x20000")

class TS:
    def __init__(self, a, cfg):
        self.a, self.on, self.n, self.set = a, cfg.ts, 0, cfg.tsset
    def x(self, setno, i):
        if self.on and self.set == setno: self.emit(i)
    def __call__(self, i):
        if self.on and (self.set == 0 or i in (0, 12)): self.emit(i)
    def emit(self, i):
        if self.on:
            assert i < 13
            self.a(f"{'s_memrealtime' if self.on != 2 else 's_memtime'} s[{TS0+2*i}:{TS0+2*i+1}]")
    def init(self):
        if self.on:
            for i in range(1, 13): self.a(f"s_mov_b32 s{TS0+2*i}, 0")
    def dump(self, vt, vt2):
        if not self.on: return
        a = self.a
        if self.on == 3:
            a("s_waitcnt vmcnt(0) lgkmcnt(0)")
            lab = a.newlabel("L_nod")
            a(f"s_cmp_eq_u32 s{TS0+24}, 0")
            a(f"s_cbranch_scc1 {lab}")
            a(f"s_cmp_lg_u32 s{S_WAVE}, 0")
            a(f"s_cbranch_scc1 {lab}")
            a("s_mov_b64 exec, 1")
            a(f"v_mov_b32 v{vt2}, 0")
            a(f"s_not_b32 s11, s{TS0}")
            a(f"v_mov_b32 v{vt}, s11")
            a(f"global_atomic_umax v{vt2}, v{vt}, s[{P_DBG}:{P_DBG+1}] offset:4 sc1")
            for n, i in enumerate([0, 1, 2, 3, 4, 5, 6, 7, 8, 9, 10, 11, 12]):
                a("s_waitcnt vmcnt(0)")
                a(f"v_mov_b32 v{vt}, s{TS0+2*i}")
                a(f"global_atomic_umax v{vt2}, v{vt}, s[{P_DBG}:{P_DBG+1}] offset:{8+4*n} sc1")
            a("s_waitcnt vmcnt(0)")
            a.label(lab)
            return
        a("s_waitcnt vmcnt(0) lgkmcnt(0)")
        a(f"s_lshl_b32 s11, s2, 9")
        a(f"s_lshl_b32 s12, s{S_WAVE}, 6")
        a("s_add_u32 s11, s11, s12")
        a(f"s_add_u32 s11, s11, {WS_TS:#x}")
        a(f"v_mov_b32 v{vt2}, s11")
        for i in range(13):
            a(f"v_mov_b32 v{vt}, s{TS0+2*i}")
            a(f"buffer_store_dword v{vt}, v{vt2}, s[{SRD_WS}:{SRD_WS+3}], 0 offen offset:{4*i}")
        a("s_waitcnt vmcnt(0)")

def round_bf16(a, dst, src):
    a(f"v_cvt_pk_bf16_f32 v{dst}, v{src}, v{src}")
    a(f"v_lshlrev_b32 v{dst}, 16, v{dst}")

def exp_acc(a, dst, x, t0, t1):
    a(f"s_mov_b32 s36, {LOG2E:#x}")
    a(f"s_mov_b32 s37, {LOG2E_LO:#x}")
    a(f"v_mul_f32 v{t0}, s36, v{x}")
    a(f"v_fma_f32 v{t1}, v{x}, s36, -v{t0}")
    a(f"v_fma_f32 v{t1}, v{x}, s37, v{t1}")
    a(f"v_mul_f32 v{t1}, {LN2:#x}, v{t1}")
    a(f"v_exp_f32 v{dst}, v{t0}")
    a(f"v_fma_f32 v{dst}, v{dst}, v{t1}, v{dst}")

def csq(a, dr, di, sr, si, t):
    a(f"v_mul_f32 v{t}, v{si}, v{si}")
    a(f"v_add_f32 v{di}, v{si}, v{si}")
    a(f"v_mul_f32 v{di}, v{di}, v{sr}")
    a(f"v_fma_f32 v{dr}, v{sr}, v{sr}, -v{t}")

def cmul(a, dr, di, ar, ai, br, bi):
    a(f"v_mul_f32 v{dr}, v{ar}, v{br}")
    a(f"v_mul_f32 v{di}, v{ar}, v{bi}")
    a(f"v_fma_f32 v{dr}, -v{ai}, v{bi}, v{dr}")
    a(f"v_fma_f32 v{di}, v{ai}, v{br}, v{di}")

def ssm_const_load(a, vm, t):
    a(f"v_and_b32 v{t+3}, 15, v0")
    a(f"s_lshl_b32 s11, s{S_NS}, 4")
    a(f"v_add_lshl_u32 v{t+3}, v{t+3}, s11, 1")
    vm.issue('sc', f"global_load_ushort v{t}, v{t+3}, s[{P_LRE}:{P_LRE+1}]")
    vm.issue('sc', f"global_load_ushort v{t+1}, v{t+3}, s[{P_LIM}:{P_LIM+1}]")
    vm.issue('sc', f"global_load_ushort v{t+2}, v{t+3}, s[{P_LDT}:{P_LDT+1}]")

def ssm_const_calc(a, t, lr, li, cr=None, ci=None):
    for k in range(3): a(f"v_lshlrev_b32 v{t+k}, 16, v{t+k}")
    exp_acc(a, t + 3, t + 2, t + 4, t + 5)
    round_bf16(a, t + 2, t + 3)
    a(f"v_mul_f32 v{t+3}, v{t+2}, v{t}")
    a(f"v_mul_f32 v{t+6}, v{t+2}, v{t+1}")
    exp_acc(a, t + 7, t + 3, t + 4, t + 5)
    a(f"v_mul_f32 v{t+6}, {INV2PI:#x}, v{t+6}")
    a(f"v_rndne_f32 v{t+4}, v{t+6}")
    a(f"v_sub_f32 v{t+6}, v{t+6}, v{t+4}")
    a(f"v_cos_f32 v{t+4}, v{t+6}")
    a(f"v_sin_f32 v{t+5}, v{t+6}")
    a(f"v_mul_f32 v{lr}, v{t+7}, v{t+4}")
    a(f"v_mul_f32 v{li}, v{t+7}, v{t+5}")
    if cr is not None:
        a(f"v_add_f32 v{t+3}, -1.0, v{lr}")
        a(f"v_mul_f32 v{t+4}, v{t}, v{t}")
        a(f"v_fma_f32 v{t+4}, v{t+1}, v{t+1}, v{t+4}")
        a(f"v_rcp_f32 v{t+4}, v{t+4}")
        a(f"v_mul_f32 v{cr}, v{t+3}, v{t}")
        a(f"v_fma_f32 v{cr}, v{li}, v{t+1}, v{cr}")
        a(f"v_mul_f32 v{ci}, v{li}, v{t}")
        a(f"v_fma_f32 v{ci}, -v{t+3}, v{t+1}, v{ci}")
        a(f"v_add_f32 v{t+4}, v{t+4}, v{t+4}")
        a(f"v_mul_f32 v{cr}, v{cr}, v{t+4}")
        a(f"v_mul_f32 v{ci}, v{ci}, v{t+4}")

def gen_entry(a, cfg, ts):
    a("s_cmp_ge_u32 s2, 256")
    a("s_cbranch_scc1 L_exit")
    if cfg.padto: a("s_memrealtime s[100:101]")
    ts(0)
    a("s_load_dwordx16 s[16:31], s[0:1], 0")
    a("s_load_dwordx16 s[32:47], s[0:1], 64")
    a("v_lshrrev_b32 v1, 6, v0")
    a("v_and_b32 v0, 63, v0")
    a(f"v_readfirstlane_b32 s{S_WAVE}, v1")
    a(f"s_and_b32 s{S_XCD}, s2, 7")
    a(f"s_lshr_b32 s{S_SLOT}, s2, 3")
    a(f"s_and_b32 s11, s{S_SLOT}, 3")
    a(f"s_lshr_b32 s{S_NT}, s{S_SLOT}, 2")
    a(f"s_and_b32 s12, s{S_XCD}, 1")
    a(f"s_lshl_b32 s12, s12, 2")
    a(f"s_add_u32 s{S_MT}, s12, s11")
    a(f"s_lshr_b32 s12, s{S_XCD}, 1")
    a(f"s_mul_i32 s12, s12, 7")
    a(f"s_add_u32 s{S_NS}, s12, s{S_NT}")
    if cfg.slab:
        a(f"s_mov_b32 s{S_MT}, s{S_XCD}")
        a(f"s_mov_b32 s{S_NS}, s{S_SLOT}")
    a(f"s_lshl_b32 s12, s{S_XCD}, 2")
    a(f"s_add_u32 s{S_M64}, s12, s11")
    a(f"s_and_b32 s{S_W4}, s{S_WAVE}, 3")
    ts.init()
    a(f"s_cmp_ge_u32 s{S_SLOT}, 28")
    a("s_cbranch_scc1 L_helper")
    a(f"s_cmp_lt_u32 s{S_WAVE}, 4")
    a("s_cbranch_scc1 L_consumer")

def gen_helper(a, cfg, ts):
    a.label("L_helper")
    vm = VM(a)
    a(f"s_sub_u32 s73, s{S_SLOT}, 28")
    a(f"s_lshl_b32 s11, s73, 3")
    a(f"s_add_u32 s72, s11, s{S_XCD}")
    a(f"s_cmp_ge_u32 s{S_WAVE}, 4")
    a("s_cbranch_scc1 L_h_pf")
    a(f"s_lshl_b32 s11, s72, 6")
    a(f"s_lshl_b32 s12, s{S_WAVE}, 4")
    a(f"s_add_u32 s11, s11, s12")
    a("v_lshrrev_b32 v2, 3, v0")
    a("v_add_u32 v2, s11, v2")
    a("v_mul_u32_u24 v3, 896, v2")
    a("v_and_b32 v4, 7, v0")
    a("v_lshl_add_u32 v3, v4, 4, v3")
    a("s_waitcnt lgkmcnt(0)")
    srd(a, SRD_X, P_X, 2048 * 896)
    srd(a, SRD_WS, P_WS, WS_SIZE)
    a(f"s_mov_b32 s11, {8*896}")
    for ps in range(2):
        for j in range(7):
            so = "0" if ps == 0 else "s11"
            vm.issue(('x', ps), f"buffer_load_dwordx4 v[{112+28*ps+4*j}:{115+28*ps+4*j}], v3, s[{SRD_X}:{SRD_X+3}], {so} offen offset:{128*j}")
    a(f"s_cmp_gt_u32 s{S_WAVE}, 1")
    a("s_cbranch_scc1 L_h_noreset")
    a(f"s_cmp_eq_u32 s{S_WAVE}, 0")
    a("s_cselect_b32 s11, -1, 0")
    a("s_mov_b32 s12, 1024")
    a("s_cmov_b32 s12, 896")
    a(f"s_mov_b32 s13, {WS_FLAG:#x}")
    a(f"s_cmov_b32 s13, {WS_AGG:#x}")
    a("s_mul_i32 s14, s12, s72")
    a("s_add_u32 s13, s13, s14")
    for k in range(4): a(f"v_mov_b32 v{8+k}, s11")
    a("v_lshlrev_b32 v12, 4, v0")
    a("v_cmp_gt_u32 vcc, s12, v12")
    a("s_and_saveexec_b64 s[14:15], vcc")
    a(f"buffer_store_dwordx4 v[8:11], v12, s[{SRD_WS}:{SRD_WS+3}], s13 offen sc1")
    a("s_mov_b64 exec, s[14:15]")
    a.label("L_h_noreset")
    a("s_nop 1")
    a("v_lshlrev_b32 v2, 3, v2")
    a("s_mov_b32 s12, 0xffff0000")
    def fin(dst):
        a("v_add_f32 v8, v8, v9")
        a("v_add_f32 v10, v10, v11")
        a(f"v_add_f32 v{dst}, v8, v10")
        a(f"v_add_f32_dpp v{dst}, v{dst}, v{dst} quad_perm:[1,0,3,2] row_mask:0xf bank_mask:0xf")
        a(f"v_add_f32_dpp v{dst}, v{dst}, v{dst} quad_perm:[2,3,0,1] row_mask:0xf bank_mask:0xf")
        a(f"v_add_f32_dpp v{dst}, v{dst}, v{dst} row_half_mirror row_mask:0xf bank_mask:0xf")
        a(f"v_mul_f32 v{dst}, 0x3b124925, v{dst}")
    for ps in range(2):
        vm.wait(('x', ps))
        src = 112 + 28 * ps
        for k in range(28):
            a(f"v_lshlrev_b32 v{48+2*k}, 16, v{src+k}")
            a(f"v_and_b32 v{49+2*k}, s12, v{src+k}")
        a("v_pk_add_f32 v[8:9], v[48:49], v[52:53]")
        a("v_pk_add_f32 v[10:11], v[50:51], v[54:55]")
        for k in range(4, 28): a(f"v_pk_add_f32 v[{8+2*(k%2)}:{9+2*(k%2)}], v[{8+2*(k%2)}:{9+2*(k%2)}], v[{48+2*k}:{49+2*k}]")
        fin(12)
        for k in range(28): a(f"v_pk_add_f32 v[{48+2*k}:{49+2*k}], v[{48+2*k}:{49+2*k}], v[12:13] op_sel_hi:[1,0] neg_lo:[0,1] neg_hi:[0,1]")
        for k in range(2): a(f"v_pk_mul_f32 v[{8+2*k}:{9+2*k}], v[{48+2*k}:{49+2*k}], v[{48+2*k}:{49+2*k}]")
        for k in range(2, 28): a(f"v_pk_fma_f32 v[{8+2*(k%2)}:{9+2*(k%2)}], v[{48+2*k}:{49+2*k}], v[{48+2*k}:{49+2*k}], v[{8+2*(k%2)}:{9+2*(k%2)}]")
        fin(13)
        o = 14 + 2 * ps
        round_bf16(a, o, 12)
        round_bf16(a, 13, 13)
        a("v_add_f32 v13, 0x3727c5ac, v13")
        round_bf16(a, 13, 13)
        a("v_sqrt_f32 v13, v13")
        round_bf16(a, 13, 13)
        a(f"v_rcp_f32 v{o+1}, v13")
        a("v_cmp_eq_u32 vcc, 0, v4")
        a("s_and_saveexec_b64 s[14:15], vcc")
        a(f"s_mov_b32 s11, {WS_STATS:#x}")
        vm.issue('st', f"buffer_store_dwordx2 v[{o}:{o+1}], v2, s[{SRD_WS}:{SRD_WS+3}], s11 offen offset:{64*ps} sc1")
        a("s_mov_b64 exec, s[14:15]")
    a("s_waitcnt vmcnt(0)")
    a("v_mov_b32 v8, 0")
    a("v_mov_b32 v9, 1")
    a("s_mov_b64 exec, 1")
    a(f"global_atomic_add v8, v9, s[{P_DBG}:{P_DBG+1}] sc1")
    a("s_mov_b64 exec, -1")
    ts(1)
    ts.dump(8, 9)
    a("s_endpgm")
    a.label("L_h_pf")
    a("v_lshlrev_b32 v2, 4, v0")
    a(f"s_lshl_b32 s11, s{S_W4}, 10")
    a("v_add_u32 v2, s11, v2")
    if cfg.cpf:
        a("s_getpc_b64 s[60:61]")
        a.label("L_pc")
        a(f"s_sub_u32 s60, s60, L_pc-{KNAME}")
        a("s_subb_u32 s61, s61, 0")
        a("s_lshl_b32 s11, s73, 12")
        a("v_add_u32 v3, s11, v2")
        for k in range(2):
            a(f"v_min_u32 v4, L_exit-{KNAME}-12, v3")
            a(f"global_load_dwordx4 v[24:27], v4, s[60:61]")
            a(f"v_add_u32 v3, 16384, v3")
    a("s_waitcnt lgkmcnt(0)")
    srd(a, SRD_WS, P_WS, WS_SIZE)
    if cfg.hpf:
        for (ptr, nbytes, srdn) in ((P_CRE, 448 * 896, 48), (P_CIM, 448 * 896, 52), (P_WD, 1792 * 896, 56)):
            srd(a, srdn, ptr, nbytes)
        def sweep(name, srds, qbytes, first, count):
            n8 = -(-qbytes // (8 * 4096))
            n = 8 * n8
            a(f"s_mul_i32 s12, s73, {qbytes}")
            a(f"s_add_u32 s13, s{S_XCD}, {first}")
            a("s_and_b32 s13, s13, 7")
            a(f"s_mul_i32 s13, s13, {n8}")
            a("s_mov_b32 s14, 0")
            a.label(name)
            a("s_lshl_b32 s11, s13, 12")
            a("s_add_u32 s11, s11, s12")
            for k, sr in enumerate(srds):
                a(f"buffer_load_dwordx4 v[{16+4*k}:{19+4*k}], v2, s[{sr}:{sr+3}], s11 offen")
            a("s_add_u32 s13, s13, 1")
            a(f"s_cmp_eq_u32 s13, {n}")
            a("s_cselect_b32 s13, 0, s13")
            a("s_add_u32 s14, s14, 1")
            a(f"s_cmp_lt_u32 s14, {n8 * count}")
            a(f"s_cbranch_scc1 {name}")
        if cfg.hpf == 4:
            sweep("L_h_p0", [48, 52], 448 * 896 // 4, 0, 8)
        else:
            sweep("L_h_p1", [48, 52], 448 * 896 // 4, 0, 1)
            sweep("L_h_p2", [56], 1792 * 896 // 4, 0, 1)
        ts(2)
        if cfg.hpf == 3:
            sweep("L_h_p3", [48, 52], 448 * 896 // 4, 1, 7)
            ts(3)
    ts.dump(8, 9)
    a("s_endpgm")

def spin_check(a, name, load_text_list, cond_fn, sleep=1):
    lo, done = a.newlabel(name + "_spin"), a.newlabel(name + "_ok")
    a(f"s_mov_b32 s73, 0")
    a.label(lo)
    cond_fn()
    a(f"s_cbranch_scc1 {done}")
    a("s_add_u32 s73, s73, 1")
    a(f"s_cmp_ge_u32 s73, {SPIN_MAX}")
    a(f"s_cbranch_scc1 {done}")
    a(f"s_sleep {sleep}")
    for t in load_text_list: a(t)
    a("s_waitcnt vmcnt(0)")
    a(f"s_branch {lo}")
    a.label(done)
    a("s_nop 4")

def sspin(a, name, loads, cond_fn, sleep=1):
    lo, done = a.newlabel(name + "_spin"), a.newlabel(name + "_ok")
    a("s_mov_b32 s73, 0")
    a.label(lo)
    for t in loads: a(t)
    a("s_waitcnt lgkmcnt(0)")
    cond_fn()
    a(f"s_cbranch_scc1 {done}")
    a("s_add_u32 s73, s73, 1")
    a(f"s_cmp_lt_u32 s73, {SPIN_MAX}")
    if sleep: a(f"s_sleep {sleep}")
    a(f"s_cbranch_scc1 {lo}")
    a.label(done)

def flag_index(a, d, t, grp):
    a(f"s_mul_i32 s{t}, s{S_NS}, 37")
    a(f"s_lshr_b32 s{t}, s{t}, {8 if grp == 7 else 9}")
    a(f"s_mul_i32 s{t}, s{t}, {32 - grp}")
    a(f"s_add_u32 s{d}, s{t}, s{S_NS}")
    a(f"s_lshl_b32 s{d}, s{d}, 2")

def interleave(a, prim, fill, per):
    fill = list(fill)
    for p in prim:
        p()
        for _ in range(per):
            if fill: a(fill.pop(0))
    for f in fill: a(f)

def p2_rot(a, cfg, d_ffn, d_blk, d_flip):
    if not cfg.rot:
        for d in (d_ffn, d_blk, d_flip): a(f"s_mov_b32 s{d}, 0")
        return
    if cfg.rot == 2:
        a(f"s_and_b32 s11, s{S_SLOT}, 3")
        a(f"s_lshl_b32 s{d_ffn}, s11, 1")
        for d in (d_blk, d_flip): a(f"s_mov_b32 s{d}, 0")
        return
    a(f"s_and_b32 s11, s{S_SLOT}, 3")
    a("s_lshl_b32 s11, s11, 1")
    a(f"s_add_u32 s11, s11, s{S_NT}")
    a("s_cmp_ge_u32 s11, 7")
    a("s_cselect_b32 s13, 7, 0")
    a(f"s_sub_u32 s{d_ffn}, s11, s13")
    a(f"s_lshr_b32 s11, s{S_NT}, 1")
    a(f"s_and_b32 s13, s{S_SLOT}, 3")
    a("s_add_u32 s11, s11, s13")
    a("s_mul_i32 s13, s11, 43")
    a("s_lshr_b32 s13, s13, 7")
    a("s_mul_i32 s13, s13, 3")
    a(f"s_sub_u32 s{d_blk}, s11, s13")
    a(f"s_and_b32 s{d_flip}, s{S_NT}, 1")

def slot(reg, n): return R[reg] + 2048 * n
SA = [slot(1, n) for n in range(6)]; SB = [slot(2, n) for n in range(6)]; SC = [slot(0, n) for n in range(6)]
WSLOT = {}
for n in range(6): WSLOT[n] = SA[n]; WSLOT[6 + n] = SB[n]
for n in range(4): WSLOT[12 + n] = SC[n]; WSLOT[16 + n] = SA[n]; WSLOT[20 + n] = SB[n]
WSLOT.update({24: SA[4], 25: SA[5], 26: SB[4], 27: SB[5]})
HTS = SC[4]
PH1, PH2, GA, FXA, SD = SC[0], SC[4], SB[0], SA[0], SC[0]

class Rec:
    def __init__(self): self.L = []
    def __call__(self, t): self.L.append(t)

def gen_loader(a, cfg, ts):
    a.label("L_loader")
    a("s_setprio 3")
    vm = VM(a)
    vXe, vXo, vW, vB = 1, 2, 3, 4
    vFv, vP, vO, vPQ = 5, 6, 7, 8
    vWd, vCe, vCo, vCh = 9, 10, 11, 12
    vRf, vRh = 13, 14
    vA, vC = 24, 25
    vT = 15
    ACC, CA, RD = 27, 28, 44
    STG = 64
    CF = 144
    SACC = 80
    XRAW = CF + 64
    KT = 128
    KP = XRAW + 12
    SP = ['', ' sc1'][cfg.spol]
    sMX, sMW, sMB, sMP = 72, 74, 75, 70
    sPerm, sSX, sSW = 68, 69, 15
    sRF = 14
    AP = ['', ' sc1', ' sc1 nt', ' sc0 sc1', ' sc0', ' nt'][cfg.apol]
    OP = ['', ' sc1', ' nt', ' sc1 nt'][cfg.opol]
    polx = " nt" if cfg.polx else ""
    polw = " nt" if cfg.polw else ""
    a(f"v_lshrrev_b32 v{vA}, 3, v0")
    a(f"v_and_b32 v{vC}, 7, v0")
    a(f"v_lshrrev_b32 v{vT+2}, 1, v{vA}")
    a(f"s_lshl_b32 s11, s{S_W4}, 4")
    a(f"v_add_u32 v{vT}, s11, v{vA}")
    a(f"v_mul_u32_u24 v{vW}, 3584, v{vT}")
    a(f"v_and_b32 v{vT+4}, 1, v{vT+2}")
    a(f"v_lshlrev_b32 v{vT+4}, 2, v{vT+4}")
    a(f"v_xor_b32 v{vT+4}, v{vC}, v{vT+4}")
    a(f"v_lshl_add_u32 v{vW}, v{vT+4}, 4, v{vW}")
    a(f"s_lshl_b32 s11, s{S_NS}, 7")
    a(f"v_add_u32 v{vW}, s11, v{vW}")
    a(f"s_lshl_b32 s11, s{S_MT}, 8")
    a(f"s_lshl_b32 s12, s{S_W4}, 6")
    a("s_add_u32 s11, s11, s12")
    a(f"v_lshrrev_b32 v{vT}, 2, v{vA}")
    a(f"v_and_b32 v{vT+1}, 3, v{vA}")
    a(f"v_lshl_add_u32 v{vT}, v{vT}, 4, v{vT+1}")
    a(f"v_add_u32 v{vT}, s11, v{vT}")
    a(f"v_mul_u32_u24 v{vXe}, 896, v{vT}")
    a(f"v_xor_b32 v{vT+3}, v{vC}, v{vT+2}")
    a(f"v_lshl_add_u32 v{vXe}, v{vT+3}, 4, v{vXe}")
    a(f"v_xor_b32 v{vXo}, 64, v{vXe}")
    a(f"s_and_b32 s12, s{S_W4}, 1")
    a(f"s_lshl_b32 s11, s{S_NS}, 4")
    a(f"s_lshl_b32 s13, s12, 3")
    a("s_add_u32 s11, s11, s13")
    a(f"v_add_u32 v{vT}, s11, v{vA}")
    a(f"v_mul_u32_u24 v{vB}, 896, v{vT}")
    a(f"v_lshl_add_u32 v{vB}, v{vT+3}, 4, v{vB}")
    a("s_lshl_b32 s13, s12, 6")
    a(f"v_xor_b32 v{vB}, s13, v{vB}")
    a(f"s_lshl_b32 s{sMX}, s{S_W4}, 13")
    a(f"s_lshl_b32 s{sMW}, s{S_W4}, 11")
    a(f"s_lshl_b32 s{sMB}, s{S_W4}, 10")
    a(f"s_mul_i32 s{sMP}, s{S_W4}, {Q}")
    perms = cfg.perms
    words = [sum(p[k] << (4 * k) for k in range(7)) for p in perms]
    ng = len(words)
    a(f"s_mov_b32 s{sPerm}, {words[0]:#x}")
    if ng > 1:
        if cfg.slab:
            a(f"s_add_u32 s11, s{S_SLOT}, s{S_XCD}")
        else:
            a(f"s_and_b32 s11, s{S_SLOT}, 3")
            a(f"s_add_u32 s11, s11, s{S_NT}")
        if ng == 3:
            a("s_mul_i32 s13, s11, 43")
            a("s_lshr_b32 s13, s13, 7")
            a("s_mul_i32 s13, s13, 3")
            a("s_sub_u32 s11, s11, s13")
        else:
            a(f"s_and_b32 s11, s11, {ng-1}")
        for g in range(1, ng):
            a(f"s_cmp_eq_u32 s11, {g}")
            a(f"s_cmov_b32 s{sPerm}, {words[g]:#x}")
    ts.x(1, 1)
    a("s_waitcnt lgkmcnt(0)")
    ts.x(1, 2)
    if cfg.tlb:
        a(f"v_mov_b32 v40, s{P_X}")
        a(f"v_mov_b32 v41, s{P_X+1}")
        for ln, p in enumerate([P_WG, P_WU, P_BRE, P_BIM, P_WD, P_CRE, P_CIM, P_WS][:cfg.tlb], 1):
            a(f"v_writelane_b32 v40, s{p}, {ln}")
            a(f"v_writelane_b32 v41, s{p+1}, {ln}")
        a(f"s_mov_b64 exec, {(1 << (cfg.tlb + 1)) - 1:#x}")
        a("global_load_dword v62, v[40:41], off")
        a("s_mov_b64 exec, -1")
    srd(a, SRD_A, P_WG, 448 * 3584)
    srd(a, SRD_X, P_X, 2048 * 896)
    srd(a, SRD_B, P_WU, 448 * 3584)
    a(f"s_cmp_ge_u32 s{S_W4}, 2")
    srd_sel(a, SRD_C, P_BIM, P_BRE, 448 * 896)

    thr = [None]
    def dma(vm, tag, voff, srdn, sbase, soff, m0base, m0off, pol=""):
        a(f"s_add_u32 m0, s{m0base}, {m0off}")
        a(f"s_add_u32 s11, s{sbase}, {soff}")
        if thr[0] is not None and len(vm.q) > thr[0]:
            a(f"s_waitcnt vmcnt({thr[0]})")
            vm.q = vm.q[-thr[0]:]
        vm.issue(tag, f"buffer_load_dwordx4 v{voff}, s[{srdn}:{srdn+3}], s11 offen{pol} lds")
    def issue_ops(s):
        r = R[s % 3]
        ops = []
        def pre():
            a(f"s_bfe_u32 s{sSX}, s{sPerm}, {(4 << 16) | (4 * s):#x}")
            a(f"s_mul_i32 s{sSW}, s{sSX}, {64*3584}")
            a(f"s_lshl_b32 s{sSX}, s{sSX}, 7")
        def mk(*args): return lambda: dma(vm, ('st', s), *args)
        L = []
        for i in range(2): L.append(mk(vW, SRD_A, sSW, i * 8 * 3584, sMW, r + OFF_WG + i * 1024, polw))
        for j in range(4): L.append(mk(vXo if j & 1 else vXe, SRD_X, sSX, (32 * (j >> 2) + 4 * (j & 3)) * 896, sMX, r + j * 1024, polx))
        for i in range(2): L.append(mk(vW, SRD_B, sSW, i * 8 * 3584, sMW, r + OFF_WU + i * 1024, polw))
        for j in range(4, 8): L.append(mk(vXo if j & 1 else vXe, SRD_X, sSX, (32 * (j >> 2) + 4 * (j & 3)) * 896, sMX, r + j * 1024, polx))
        L.append(mk(vB, SRD_C, sSX, 0, sMB, r + OFF_BB, polw))
        first = L[0]
        L[0] = lambda: (pre(), first())
        return L
    SRD_WD, SRD_CC, sBlk, sFlip, P_DSK2 = 32, 24, 16, 17, 38
    def w_ops(ps):
        L = []
        for p in ps:
            for n in range(2):
                def op(p=p, n=n):
                    if n == 0:
                        a(f"s_add_u32 s12, s{sRF}, {p // 4}")
                        a("s_cmp_ge_u32 s12, 7")
                        a("s_cselect_b32 s13, 7, 0")
                        a("s_sub_u32 s12, s12, s13")
                        a(f"s_mul_i32 s12, s12, {64*896}")
                    if 12 <= p < 22:
                        d = STG + (p - 12) * 8 + 4 * n
                        a(f"s_add_u32 s11, s12, {((p % 4) * 16 + 8 * n) * 896}")
                        vm.issue(('w', p), f"buffer_load_dwordx4 v[{d}:{d+3}], v{vWd}, s[{SRD_WD}:{SRD_WD+3}], s11 offen")
                    else:
                        dma(vm, ('w', p), vWd, SRD_WD, 12, ((p % 4) * 16 + 8 * n) * 896, sMP, WSLOT[p] + n * 1024)
                L.append(op)
        return L
    def cf_ops(b, base):
        L = []
        for n in range(8):
            def op(n=n):
                if n == 0: a(f"s_mov_b32 s12, {b*128}")
                dst = base + n * 1024 if b < 2 else (SA[4], SB[4])[n >> 2] + (n & 3) * 1024
                dma(vm, ('c', b), vCo if n & 1 else vCe, SRD_CC, 12, 8 * n * 896, sMP, dst)
            L.append(op)
        return L
    def ch_ops(base):
        L = []
        for n in range(4):
            def op(n=n):
                if n == 0: a("s_mov_b32 s12, 0")
                dma(vm, ('c', 3), vCh, SRD_CC, 12, 16 * n * 896, sMP, base + n * 1024)
            L.append(op)
        return L
    def cf_read(b, base):
        if b < 2:
            a(f"s_add_u32 s11, s{sMP}, {base}")
            a("s_mov_b32 s12, s11")
        else:
            a(f"s_add_u32 s12, s{sMP}, {SA[4]}")
            a(f"s_add_u32 s13, s{sMP}, {SB[4] - 4096}")
            a(f"s_cmp_ge_u32 s{S_W4}, 2")
            a("s_cselect_b32 s11, s13, s12")
            a("s_cselect_b32 s12, s12, s13")
        vm.wait(('c', b))
        for ks in range(4):
            for lc in range(2):
                t = vT + lc
                a(f"v_xor_b32 v{t}, {32*ks + 4096*lc}, v{vRf}")
                a(f"v_add_u32 v{t}, s{11+lc}, v{t}")
                d = CF + (4 * b + ks) * 8 + 4 * lc
                a(f"ds_read_b128 v[{d}:{d+3}], v{t}")
    def ch_read(base):
        a(f"s_add_u32 s11, s{sMP}, {base}")
        vm.wait(('c', 3))
        for lc in range(2):
            a(f"v_xor_b32 v{vT+lc}, {2048*lc}, v{vRh}")
            a(f"v_add_u32 v{vT+lc}, s11, v{vT+lc}")
            for ks in range(2):
                d = CF + (12 + ks) * 8 + 4 * lc
                a(f"ds_read_b128 v[{d}:{d+3}], v{vT+lc} offset:{ks*32}")
    def w_write(ps):
        vm.wait(('w', ps[-1]))
        base = WSLOT[ps[0]]
        a(f"v_add_u32 v{vT+4}, {base}, v{vPQ}")
        for p in ps:
            for n in range(2):
                d = STG + (p - 12) * 8 + 4 * n
                a(f"ds_write_b128 v{vT+4}, v[{d}:{d+3}] offset:{WSLOT[p] - base + 1024*n}")
    def colsum_reads(s):
        r = R[s % 3]
        a(f"s_add_u32 s11, s{sMW}, {r + OFF_WG}")
        a(f"v_add_u32 v{vT}, s11, v{vP}")
        a(f"s_add_u32 s11, s{sMB}, {r + OFF_BB}")
        a(f"v_add_u32 v{vT+1}, s11, v{vP}")
        a(f"ds_read_b128 v[{RD}:{RD+3}], v{vT}")
        a(f"ds_read_b128 v[{RD+4}:{RD+7}], v{vT} offset:1024")
        a(f"ds_read_b128 v[{RD+8}:{RD+11}], v{vT} offset:8192")
        a(f"ds_read_b128 v[{RD+12}:{RD+15}], v{vT} offset:9216")
        a(f"ds_read_b128 v[{RD+16}:{RD+19}], v{vT+1}")
    def colsum_ops():
        L = ["s_waitcnt lgkmcnt(0)"]
        for n in range(4):
            for d in range(4):
                w = RD + 4 * n + d
                ac = CA + (n >> 1) * 8 + 2 * d
                L.append(f"v_lshlrev_b32 v{vT+2}, 16, v{w}")
                L.append(f"v_and_b32 v{vT+3}, s71, v{w}")
                L.append(f"v_add_f32 v{ac}, v{ac}, v{vT+2}")
                L.append(f"v_add_f32 v{ac+1}, v{ac+1}, v{vT+3}")
        for d in range(4):
            w = RD + 16 + d
            L.append(f"v_lshlrev_b32 v{vT+2}, 16, v{w}")
            L.append(f"v_and_b32 v{vT+3}, s71, v{w}")
            L.append(f"v_add_f32 v{vT+2}, v{vT+2}, v{vT+3}")
            L.append(f"v_add_f32 v{ACC}, v{ACC}, v{vT+2}")
        return L

    stage_ops = {}
    def tok_ops(toks):
        L = []
        for t in toks:
            if t[0] == 's':
                st = int(t[1])
                if st not in stage_ops: stage_ops[st] = issue_ops(st)
                lo, hi = (0, 13) if ':' not in t else map(int, t.split(':')[1].split('-'))
                L += stage_ops[st][lo:hi]
            elif t[0] == 'w': L += w_ops([int(t[1:])])
            elif t == 'c0': L += cf_ops(0, SA[0])
            elif t == 'c1': L += cf_ops(1, SB[0])
            elif t == 'c2': L += [lambda: a("s_waitcnt lgkmcnt(0)")] + cf_ops(2, SA[0])
            elif t == 'ch': L += ch_ops(SA[4])
            else: L.append(lambda t=t: special(t))
        return L
    def run_tokens(toks):
        for o in tok_ops(toks): o()
    def special(t):
        if True:
            if t == 'r0':
                cf_read(0, SA[0]); ch_read(SA[4])
            elif t == 'put':
                vm.wait('stats')
                a(f"s_lshl_b32 s11, s{S_W4}, 9")
                a(f"s_add_u32 s11, s11, {STATS_L}")
                a(f"v_lshl_add_u32 v{vT+4}, v0, 3, s11")
                a(f"ds_write_b64 v{vT+4}, v[20:21]")
                a(f"v_lshlrev_b32 v{vT+4}, 3, v0")
                a(f"v_add_u32 v{vT+4}, {ST2_L}, v{vT+4}")
                a(f"ds_write_b64 v{vT+4}, v[22:23]")
            elif t == 'e':
                a(f"s_add_u32 s12, s41, {16*896}")
                vm.issue('e', f"buffer_load_dwordx4 v[{XRAW}:{XRAW+3}], v{XRAW+9}, s[{SRD_X}:{SRD_X+3}], s41 offen")
                vm.issue('e', f"buffer_load_dwordx4 v[{XRAW+4}:{XRAW+7}], v{XRAW+9}, s[{SRD_X}:{SRD_X+3}], s12 offen")
                vm.issue('e', f"global_load_ushort v{XRAW+8}, v{XRAW+10}, s[{P_DSK2}:{P_DSK2+1}]")
            elif t == 'k':
                ssm_const_load(a, vm, KT)
            elif t == 'init':
                a(f"v_mov_b32 v26, 0")
                vm.issue('init', f"global_load_dword v5, v26, s[{P_DBG}:{P_DBG+1}] sc1")
            elif t == 'fetch':
                vm.wait('init')
                def cond():
                    a(f"v_readfirstlane_b32 s11, v5")
                    a(f"s_cmp_ge_u32 s11, {INIT_N}")
                spin_check(a, "L_init", [f"global_load_dword v5, v26, s[{P_DBG}:{P_DBG+1}] sc1"], cond, 8)
                a(f"s_lshl_b32 s11, s{S_MT}, 8")
                a(f"s_lshl_b32 s12, s{S_W4}, 6")
                a("s_add_u32 s11, s11, s12")
                a(f"v_add_lshl_u32 v5, v0, s11, 3")
                a(f"s_lshl_b32 s12, s{S_M64}, 6")
                a(f"v_add_lshl_u32 v26, v0, s12, 3")
                a(f"s_mov_b32 s11, {WS_STATS:#x}")
                vm.issue('stats', f"buffer_load_dwordx2 v[20:21], v5, s[{SRD_WS}:{SRD_WS+3}], s11 offen sc1")
                vm.issue('stats', f"buffer_load_dwordx2 v[22:23], v26, s[{SRD_WS}:{SRD_WS+3}], s11 offen sc1")
            else: raise ValueError(t)
    win = cfg.win
    run_tokens(["s0"])
    ts(1)
    ts.x(1, 6)
    run_tokens(win.get(-1, []))
    a("s_setprio 0")
    a(f"s_and_b32 s12, s{S_W4}, 1")
    a(f"v_lshlrev_b32 v{vP}, 4, v0")
    a(f"v_add_u32 v{vPQ}, s{sMP}, v{vP}")
    a(f"s_mul_i32 s14, s{S_W4}, 448")
    a(f"v_add_u32 v{vT}, s14, v{vA}")
    a(f"v_mul_u32_u24 v{vWd}, 896, v{vT}")
    a(f"v_lshl_add_u32 v{vWd}, v{vT+4}, 4, v{vWd}")
    a(f"s_lshl_b32 s14, s{S_NT}, 7")
    a(f"v_add_u32 v{vWd}, s14, v{vWd}")
    a(f"s_lshl_b32 s14, s{S_NT}, 6")
    a(f"v_add_u32 v{vT}, s14, v{vA}")
    a(f"v_mul_u32_u24 v{vCe}, 896, v{vT}")
    a(f"v_lshl_add_u32 v{vCe}, v{vT+3}, 4, v{vCe}")
    a("s_lshl_b32 s13, s12, 9")
    a(f"v_add_u32 v{vCe}, s13, v{vCe}")
    a(f"v_xor_b32 v{vCo}, 64, v{vCe}")
    a(f"v_lshrrev_b32 v{vT}, 2, v0")
    a(f"v_add_u32 v{vT}, s14, v{vT}")
    a(f"v_mul_u32_u24 v{vCh}, 896, v{vT}")
    a(f"v_and_b32 v{vT+1}, 3, v0")
    a(f"v_lshl_add_u32 v{vCh}, v{vT+1}, 4, v{vCh}")
    a("s_lshl_b32 s13, s12, 6")
    a("s_add_u32 s13, s13, 384")
    a(f"v_add_u32 v{vCh}, s13, v{vCh}")
    a("s_mov_b32 s71, 0xffff0000")
    for k in range(17): a(f"v_mov_b32 v{ACC+k}, 0")
    srd(a, SRD_WS, P_WS, WS_SIZE)
    a(f"s_cmp_ge_u32 s{S_W4}, 2")
    srd_sel(a, SRD_CC, P_CIM, P_CRE, 448 * 896)
    a(f"s_mov_b64 s[{P_DSK2}:{P_DSK2+1}], s[{P_DSK}:{P_DSK+1}]")
    srd(a, SRD_WD, P_WD, 1792 * 896)
    p2_rot(a, cfg, sRF, sBlk, sFlip)
    a(f"s_lshl_b32 s11, s{S_M64}, 1")
    a("s_add_u32 s40, s11, s12")
    a("s_lshl_b32 s12, s40, 5")
    a(f"v_lshrrev_b32 v{vT}, 2, v0")
    a(f"v_add_u32 v{vT}, s12, v{vT}")
    a(f"v_mul_u32_u24 v{vT}, 896, v{vT}")
    a(f"v_lshl_add_u32 v{XRAW+9}, v{vT+1}, 4, v{vT}")
    a(f"v_lshrrev_b32 v{vT+2}, 5, v0")
    a(f"v_lshl_add_u32 v{vT}, v{vT+2}, 4, s12")
    a(f"s_lshr_b32 s13, s{S_W4}, 1")
    a("s_lshl_b32 s12, s13, 5")
    a(f"s_lshl_b32 s11, s{S_NT}, 6")
    a("s_add_u32 s11, s11, s12")
    a("s_lshl_b32 s41, s11, 1")
    a(f"v_and_b32 v{vT+3}, 31, v0")
    a(f"v_add_u32 v{vT+1}, s11, v{vT+3}")
    a(f"v_mul_u32_u24 v{vT}, 448, v{vT}")
    a(f"v_add_lshl_u32 v{vO}, v{vT}, v{vT+1}, 2")
    a(f"v_lshlrev_b32 v{XRAW+10}, 1, v{vT+1}")
    a(f"v_bfe_u32 v{vT}, v0, 1, 3")
    a(f"v_xor_b32 v{vT}, v{vT}, v{vT+2}")
    a(f"v_lshlrev_b32 v{vT}, 4, v{vT}")
    a(f"v_lshl_add_u32 v{vRf}, v{vT+3}, 7, v{vT}")
    a("s_lshl_b32 s12, s13, 12")
    a(f"v_add_u32 v{vRf}, s12, v{vRf}")
    a(f"v_lshlrev_b32 v{vT}, 4, v{vT+2}")
    a(f"v_lshl_add_u32 v{vRh}, v{vT+3}, 6, v{vT}")
    a("s_lshl_b32 s12, s13, 11")
    a(f"v_add_u32 v{vRh}, s12, v{vRh}")
    a(f"v_bfe_u32 v{vT}, v0, 4, 1")
    a(f"v_lshlrev_b32 v{vT+1}, 2, v{vT}")
    a(f"v_xor_b32 v{vC}, v{vC}, v{vT+1}")
    a(f"v_lshlrev_b32 v{vC}, 5, v{vC}")
    a(f"v_lshl_add_u32 v{vC}, v{vT}, 9, v{vC}")
    a(f"v_lshl_add_u32 v{vC}, v{vT+2}, 8, v{vC}")
    a(f"s_add_u32 s11, s{sMB}, {CP_L}")
    a(f"v_add_u32 v{vC}, s11, v{vC}")
    a(f"s_lshl_b32 s11, s{S_W4}, 5")
    a(f"s_add_u32 s11, s11, {C_L + 512}")
    a(f"v_lshl_add_u32 v{vA}, v{vA}, 2, s11")
    ts.x(1, 8)
    LR, LI, CR, CI, L16R, L16I, PWR, PWI, L64R, L64I, LWR, LWI, W0R = [KP + k for k in range(13)]
    vTW, vTR, vCB = KP + 16, KP + 17, KP + 18
    kc = Rec()
    K = KT
    ssm_const_calc(kc, K, LR, LI, CR, CI)
    csq(kc, L16R, L16I, LR, LI, K)
    for _ in range(3): csq(kc, L16R, L16I, L16R, L16I, K)
    def powsel(dr, di, br, bi, bit, src):
        cmul(kc, K + 1, K + 2, dr, di, br, bi)
        kc(f"v_and_b32 v{K}, {bit}, v{src}")
        kc(f"v_cmp_ne_u32 vcc, 0, v{K}")
        kc(f"v_cndmask_b32 v{dr}, v{dr}, v{K+1}, vcc")
        kc(f"v_cndmask_b32 v{di}, v{di}, v{K+2}, vcc")
    kc(f"v_mov_b32 v{PWR}, v{CR}"); kc(f"v_mov_b32 v{PWI}, v{CI}")
    powsel(PWR, PWI, L16R, L16I, 32, 0)
    csq(kc, K + 14, K + 15, L16R, L16I, K)
    powsel(PWR, PWI, K + 14, K + 15, 16, 0)
    csq(kc, L64R, L64I, K + 14, K + 15, K)
    kc(f"v_mov_b32 v{K+10}, s{S_W4}")
    kc(f"v_mov_b32 v{LWR}, 1.0"); kc(f"v_mov_b32 v{LWI}, 0")
    powsel(LWR, LWI, L64R, L64I, 1, K + 10)
    csq(kc, K + 14, K + 15, L64R, L64I, K)
    powsel(LWR, LWI, K + 14, K + 15, 2, K + 10)
    csq(kc, K + 14, K + 15, K + 14, K + 15, K)
    kc(f"v_lshrrev_b32 v{K+10}, 4, v0")
    kc(f"v_sub_u32 v{K+10}, s{S_MT}, v{K+10}")
    kc(f"v_add_u32 v{K+11}, -5, v{K+10}")
    kc(f"v_add_u32 v{K+10}, -1, v{K+10}")
    kc(f"v_mov_b32 v{W0R}, 1.0"); kc(f"v_mov_b32 v{W0R+1}, 0")
    kc(f"v_mov_b32 v{W0R+2}, 1.0"); kc(f"v_mov_b32 v{W0R+3}, 0")
    for b in range(3):
        powsel(W0R, W0R + 1, K + 14, K + 15, 1 << b, K + 10)
        if b < 2: powsel(W0R + 2, W0R + 3, K + 14, K + 15, 1 << b, K + 11)
        if b < 2: csq(kc, K + 14, K + 15, K + 14, K + 15, K)
    kc(f"s_add_u32 s36, s{sMP}, {HTS}")
    kc(f"v_bfe_u32 v{K}, v0, 4, 1")
    kc(f"v_lshrrev_b32 v{K+1}, 5, v0")
    kc(f"v_lshl_add_u32 v{K+2}, v{K}, 1, v{K+1}")
    kc(f"v_and_b32 v{K+3}, 15, v0")
    kc(f"v_and_b32 v{vTW}, 6, v{K+3}")
    kc(f"v_lshlrev_b32 v{vTW}, 4, v{vTW}")
    kc(f"v_lshlrev_b32 v{K+4}, 5, v{K+2}")
    kc(f"v_xor_b32 v{vTW}, v{vTW}, v{K+4}")
    kc(f"v_lshl_add_u32 v{vTW}, v{K+3}, 7, v{vTW}")
    kc(f"v_add_u32 v{vTW}, s36, v{vTW}")
    kc(f"v_lshlrev_b32 v{vCB}, 2, v{K+3}")
    kc(f"v_add_u32 v{vCB}, {C_L + 512}, v{vCB}")
    kc(f"v_bfe_u32 v{K+4}, v0, 2, 2")
    kc(f"v_lshl_add_u32 v{K+5}, v{K+1}, 3, v{K+4}")
    kc(f"v_lshlrev_b32 v{vTR}, 7, v{K+5}")
    kc(f"v_lshrrev_b32 v{K+4}, 1, v{K+4}")
    kc(f"v_xor_b32 v{K+4}, v{K+4}, v0")
    kc(f"v_and_b32 v{K+4}, 1, v{K+4}")
    kc(f"v_lshl_add_u32 v{vTR}, v{K+4}, 5, v{vTR}")
    kc(f"v_lshl_add_u32 v{vTR}, v{K}, 4, v{vTR}")
    kc(f"v_bfe_u32 v{K+4}, v0, 1, 1")
    kc(f"v_lshl_add_u32 v{vTR}, v{K+4}, 3, v{vTR}")
    kc(f"v_add_u32 v{vTR}, s36, v{vTR}")
    kc(f"s_lshl_b32 s36, s{S_W4}, 9")
    kc(f"s_add_u32 s36, s36, {STATS_L}")
    kc(f"v_lshl_add_u32 v{KP+19}, v{K+2}, 7, s36")
    vStS = KP + 19
    kparts = {}
    nk = len(kc.L)
    for n, w in enumerate(range(cfg.kwin, 5)):
        np_ = 5 - cfg.kwin
        kparts[w] = kc.L[nk * n // np_: nk * (n + 1) // np_]
    vAg, vPr, vF, vFl = 1, 2, 3, 4
    k5 = Rec()
    k5(f"v_and_b32 v{vAg}, 15, v0")
    k5(f"v_lshlrev_b32 v{vAg}, 3, v{vAg}")
    k5(f"v_lshrrev_b32 v{vPr}, 4, v0")
    k5(f"v_sub_u32 v{vF}, s{S_MT}, v{vPr}")
    k5(f"v_cmp_le_i32 s[56:57], 1, v{vF}")
    k5(f"v_cmp_le_i32 s[58:59], 5, v{vF}")
    k5(f"v_mul_u32_u24 v{vPr}, 3584, v{vPr}")
    k5(f"s_lshl_b32 s21, s{S_NS}, 7")
    k5(f"v_add3_u32 v{vPr}, v{vPr}, v{vAg}, s21")
    k5(f"v_add_u32 v{vAg}, {AGG_L}, v{vAg}")
    k5(f"s_mul_i32 s22, s{S_MT}, 3584")
    k5("s_add_u32 s22, s22, s21")
    k5(f"s_add_u32 s22, s22, {WS_AGG - AGG_L:#x}")
    k5(f"s_mov_b32 s23, {WS_AGG:#x}")
    k5(f"s_mov_b32 s20, {WS_AGG + 4*3584:#x}")
    k5(f"s_lshl_b32 s18, s{S_M64}, 10")
    k5(f"s_and_b32 s36, s{S_W4}, 1")
    k5("s_lshl_b32 s36, s36, 7")
    k5("s_add_u32 s18, s18, s36")
    k5(f"s_add_u32 s18, s18, {WS_FLAG + 512:#x}")
    k5(f"s_lshl_b32 s36, s{S_MT}, 2")
    k5(f"s_add_u32 s36, s36, s{S_W4}")
    k5(f"s_mul_i32 s19, s36, {2*RT_BYTES}")
    k5(f"s_lshl_b32 s37, s{S_NS}, 10")
    k5("s_add_u32 s19, s19, s37")
    k5(f"s_add_u32 s19, s19, {56*1024}")
    k5("s_lshl_b32 s36, s36, 10")
    flag_index(k5, 37, 30, 14)
    k5("s_add_u32 s36, s36, s37")
    k5(f"s_add_u32 s36, s36, {WS_FLAG + 512:#x}")
    k5(f"v_mov_b32 v{vF}, s36")
    kparts[5] = k5.L
    for s in range(7):
        vm.wait(('st', s))
        ts.x(2, 1 + s)
        a("s_barrier")
        ts.x(3, 1 + s)
        if s == 0: ts(2)
        colsum_reads(s)
        if s == cfg.kwin: vm.wait('sc')
        toks = win.get(s, [])
        if s < 5: assert "w20" not in toks and "w21" not in toks
        ops = tok_ops(toks)
        fl = colsum_ops() + kparts.get(s, [])
        if s == 6:
            b = ACC
            for k in range(8): fl.append(f"v_permlane32_swap_b32 v{CA+k}, v{CA+8+k}")
            fl.append(f"v_add_f32_dpp v{b}, v{b}, v{b} quad_perm:[1,0,3,2] row_mask:0xf bank_mask:0xf")
            for k in range(8): fl.append(f"v_add_f32 v{CA+k}, v{CA+k}, v{CA+8+k}")
            fl.append(f"v_add_f32_dpp v{b}, v{b}, v{b} quad_perm:[2,3,0,1] row_mask:0xf bank_mask:0xf")
            for k in range(8): fl.append(f"v_add_f32_dpp v{CA+k}, v{CA+k}, v{CA+k} row_ror:8 row_mask:0xf bank_mask:0xf")
            fl.append(f"v_add_f32_dpp v{b}, v{b}, v{b} row_half_mirror row_mask:0xf bank_mask:0xf")
            fl.append(f"ds_write_b128 v{vC}, v[{CA}:{CA+3}]")
            fl.append(f"ds_write_b128 v{vC}, v[{CA+4}:{CA+7}] offset:16")
            fl.append(f"ds_write_b32 v{vA}, v{b}")
        per = max(1, -(-len(fl) // max(1, len(ops))))
        interleave(a, ops, fl, per)
    a(f"s_and_b32 s12, s{S_W4}, 1")
    a("s_lshl_b32 s12, s12, 8")
    a(f"v_lshl_add_u32 v{vT}, v0, 2, s12")
    a(f"v_add_u32 v{vT+1}, {CP_L}, v{vT}")
    a(f"v_add_u32 v{vT}, {C_L}, v{vT}")
    a("s_waitcnt lgkmcnt(0)")
    ts.x(2, 8)
    a("s_setprio 3")
    a("s_barrier")
    ts(3)
    ts.x(3, 8)
    QQ = 28
    for p in range(8): a(f"ds_read_b32 v{QQ+p}, v{vT+1} offset:{512*p}")
    a("s_waitcnt lgkmcnt(0)")
    for p in range(4): a(f"v_add_f32 v{QQ+p}, v{QQ+p}, v{QQ+4+p}")
    a(f"v_add_f32 v{QQ}, v{QQ}, v{QQ+2}")
    a(f"v_add_f32 v{QQ+1}, v{QQ+1}, v{QQ+3}")
    a(f"v_add_f32 v{QQ}, v{QQ}, v{QQ+1}")
    a(f"ds_write_b32 v{vT}, v{QQ}")
    a(f"v_add_u32 v{vT+2}, {SD}, v{vPQ}")
    for o in ch_ops(HTS): o()
    vm.wait(('w', 11), "lgkmcnt(0)")
    a("s_barrier")
    X, Y, ST = 32, 48, CF
    HR, HI, T1, T2, CBR, CBI, G0, G1, QR, QI = 20, 21, 22, 23, 24, 25, 26, 28, 30, 31
    for k in range(8): a(f"ds_read_b128 v[{X+4*k}:{X+4*k+3}], v{vT+2} offset:{1024*k}")
    a(f"ds_read_b32 v{CBR}, v{vCB}")
    a(f"ds_read_b32 v{CBI}, v{vCB} offset:64")
    for k in range(8): a(f"ds_read_b128 v[{ST+4*k}:{ST+4*k+3}], v{vStS} offset:{16*k}")
    a(f"s_setprio {cfg.eprio}")
    a("s_waitcnt lgkmcnt(10)")
    for r in range(16): a(f"v_permlane16_swap_b32 v{X+r}, v{Y+r}")
    a("s_waitcnt lgkmcnt(0)")
    side = {}
    for r in range(16):
        if r in side: side[r]()
        m, rs = ST + 2 * r, ST + 2 * r + 1
        a(f"v_fma_f32 v{X+r}, -v{m}, v{CBR}, v{X+r}")
        a(f"v_fma_f32 v{Y+r}, -v{m}, v{CBI}, v{Y+r}")
        a(f"v_mul_f32 v{X+r}, v{X+r}, v{rs}")
        a(f"v_mul_f32 v{Y+r}, v{Y+r}, v{rs}")
        if r >= 1:
            pr, pi = (X, Y) if r == 1 else (HR, HI)
            a(f"v_fma_f32 v{T1}, -v{LI}, v{pi}, v{X+r}")
            a(f"v_fma_f32 v{T2}, v{LI}, v{pr}, v{Y+r}")
            a(f"v_fma_f32 v{HR}, v{LR}, v{pr}, v{T1}")
            a(f"v_fma_f32 v{HI}, v{LR}, v{pi}, v{T2}")
    z = CF
    a(f"v_mov_b32 v{z}, v{HR}"); a(f"v_mov_b32 v{z+1}, v{HI}")
    csq(a, z + 8, z + 9, L16R, L16I, z + 10)
    a(f"v_permlane32_swap_b32 v{HR}, v{z}")
    a(f"v_permlane32_swap_b32 v{HI}, v{z+1}")
    a(f"v_fma_f32 v{z}, -v{L16I}, v{HI}, v{z}")
    a(f"v_fma_f32 v{z+1}, v{L16I}, v{HR}, v{z+1}")
    a(f"v_fmac_f32 v{z}, v{L16R}, v{HR}")
    a(f"v_fmac_f32 v{z+1}, v{L16R}, v{HI}")
    a(f"v_mov_b32 v{z+2}, v{z}"); a(f"v_mov_b32 v{z+3}, v{z+1}")
    a(f"s_lshl_b32 s11, s{S_W4}, 7")
    a(f"v_add_u32 v{z+5}, s11, v{vAg}")
    a(f"v_permlane16_swap_b32 v{z}, v{z+2}")
    a(f"v_permlane16_swap_b32 v{z+1}, v{z+3}")
    a(f"v_fma_f32 v{z+2}, -v{z+9}, v{z+1}, v{z+2}")
    a(f"v_fma_f32 v{z+3}, v{z+9}, v{z}, v{z+3}")
    a(f"v_fmac_f32 v{z+2}, v{z+8}, v{z}")
    a(f"v_fmac_f32 v{z+3}, v{z+8}, v{z+1}")
    a(f"ds_write_b64 v{z+5}, v[{z+2}:{z+3}]")
    a("s_waitcnt lgkmcnt(0)")
    ts.x(2, 9)
    a(f"s_setprio {cfg.lprio}")
    a("s_barrier")
    ts(4)
    E = CF + 16
    for i in range(4): a(f"ds_read_b64 v[{E+2+2*i}:{E+3+2*i}], v{vAg} offset:{128*i}")
    a(f"v_mov_b32 v{E}, 0")
    a(f"v_mov_b32 v{E+1}, 0")
    a(f"v_and_b32 v{z+4}, 16, v0")
    a(f"v_cmp_ne_u32 s[12:13], 0, v{z+4}")
    for i in range(1, 4):
        e, p = E + 2 + 2 * i, E + 2 * i
        a(f"s_waitcnt lgkmcnt({3 - i})")
        a(f"v_fma_f32 v{e}, -v{L64I}, v{p+1}, v{e}")
        a(f"v_fma_f32 v{e+1}, v{L64I}, v{p}, v{e+1}")
        a(f"v_fmac_f32 v{e}, v{L64R}, v{p}")
        a(f"v_fmac_f32 v{e+1}, v{L64R}, v{p+1}")
    a(f"s_cmp_lg_u32 s{S_W4}, 0")
    a("s_cbranch_scc1 L_l_nopub")
    e = E + 8
    a(f"v_cmp_eq_u32 vcc, -1, v{e}")
    a(f"v_mov_b32 v{T1}, 0x7fc00000")
    a(f"v_cndmask_b32 v{e}, v{e}, v{T1}, vcc")
    a("s_mov_b64 exec, 0xffff")
    a(f"buffer_store_dwordx2 v[{e}:{e+1}], v{vAg}, s[{SRD_WS}:{SRD_WS+3}], s22 offen sc1")
    a("s_mov_b64 exec, -1")
    ts(5)
    a.label("L_l_nopub")
    a(f"v_cmp_lt_u32 vcc, 31, v0")
    a(f"v_cndmask_b32 v{z}, 0, v{z}, s[12:13]")
    a(f"v_cndmask_b32 v{z+1}, 0, v{z+1}, s[12:13]")
    a(f"v_fma_f32 v{HR}, -v{L16I}, v{z+1}, v{HR}")
    a(f"v_fma_f32 v{HI}, v{L16I}, v{z}, v{HI}")
    a(f"v_fmac_f32 v{HR}, v{L16R}, v{z}")
    a(f"v_fmac_f32 v{HI}, v{L16R}, v{z+1}")
    a(f"v_cndmask_b32 v{z}, v{z}, v{HR}, vcc")
    a(f"v_cndmask_b32 v{z+1}, v{z+1}, v{HI}, vcc")
    cmul(a, HR, HI, z, z + 1, CR, CI)
    a(f"s_bitcmp1_b32 s{S_W4}, 0")
    a("s_cselect_b64 vcc, -1, 0")
    a(f"v_cndmask_b32 v{QR}, v{E}, v{E+2}, vcc")
    a(f"v_cndmask_b32 v{QI}, v{E+1}, v{E+3}, vcc")
    a(f"v_cndmask_b32 v{T1}, v{E+4}, v{E+6}, vcc")
    a(f"v_cndmask_b32 v{T2}, v{E+5}, v{E+7}, vcc")
    a(f"s_bitcmp1_b32 s{S_W4}, 1")
    a("s_cselect_b64 vcc, -1, 0")
    a(f"v_cndmask_b32 v{QR}, v{QR}, v{T1}, vcc")
    a(f"v_cndmask_b32 v{QI}, v{QI}, v{T2}, vcc")
    ts.x(2, 10)
    thr[0] = cfg.thr
    lds = [f"buffer_load_dwordx2 v[{G0}:{G0+1}], v{vPr}, s[{SRD_WS}:{SRD_WS+3}], s23 offen sc1",
           f"buffer_load_dwordx2 v[{G1}:{G1+1}], v{vPr}, s[{SRD_WS}:{SRD_WS+3}], s20 offen sc1"]
    up = Rec()
    for r in range(16):
        up(f"v_mul_f32 v{T1}, v{CI}, v{Y+r}")
        up(f"v_mul_f32 v{T2}, v{CI}, v{X+r}")
        up(f"v_fma_f32 v{X+r}, v{CR}, v{X+r}, -v{T1}")
        up(f"v_fma_f32 v{Y+r}, v{CR}, v{Y+r}, v{T2}")
    vRd, vOne = 4, 12
    a(f"s_lshl_b32 s11, s{S_W4}, 2")
    a(f"s_add_u32 s11, s11, {CNT_L + 16}")
    a(f"v_mov_b32 v{vRd}, s11")
    a(f"v_mov_b32 v{vOne}, 1")
    ch_read(HTS)
    if cfg.wfirst:
        w_write([12, 13, 14, 15])
        a(f"ds_write_b32 v{vRd}, v{vOne}")
    co = cf_ops(0, SA[0]) + cf_ops(1, SB[0]) + cf_ops(2, None)
    interleave(a, co[:cfg.pollw], up.L, 3)
    for t in lds: vm.issue('ag', t)
    for o in co[cfg.pollw:]: o()
    ts(8)
    if not cfg.wfirst:
        w_write([12, 13, 14, 15])
        a(f"ds_write_b32 v{vRd}, v{vOne}")
    XV, STT, DS = 64, 80, 5
    TT = SACC + 32
    a(f"v_add_u32 v{vT+4}, {HTS}, v{vPQ}")
    a(f"ds_write_b128 v{vT+4}, v[{XRAW}:{XRAW+3}]")
    a(f"ds_write_b128 v{vT+4}, v[{XRAW+4}:{XRAW+7}] offset:1024")
    a(f"v_lshlrev_b32 v{DS}, 16, v{XRAW+8}")
    a(f"v_lshrrev_b32 v{vT+3}, 5, v0")
    a(f"v_lshlrev_b32 v{vT+4}, 10, v{vT+3}")
    a(f"v_and_b32 v{vT}, 31, v0")
    a(f"v_lshl_add_u32 v{vT+4}, v{vT}, 1, v{vT+4}")
    a(f"s_add_u32 s11, s{sMP}, {HTS}")
    a(f"v_add_u32 v{vT+4}, s11, v{vT+4}")
    for r in range(16): a(f"ds_read_u16 v{XV+r}, v{vT+4} offset:{64*r}")
    vm.wait('ag')
    def cond():
        a(f"v_cmp_eq_u32 vcc, -1, v{G0}")
        a("s_and_b64 s[48:49], vcc, s[56:57]")
        a(f"v_cmp_eq_u32 vcc, -1, v{G1}")
        a("s_and_b64 s[50:51], vcc, s[58:59]")
        a("s_or_b64 s[48:49], s[48:49], s[50:51]")
        a("s_cmp_eq_u64 s[48:49], 0")
    spin_check(a, "L_agg", lds, cond, 2)
    ts(6)
    SR, SI = CBR, CBI
    cmul(a, SR, SI, G0, G0 + 1, W0R, W0R + 1)
    cmul(a, T1, T2, G1, G1 + 1, W0R + 2, W0R + 3)
    a(f"v_cndmask_b32 v{SR}, 0, v{SR}, s[56:57]")
    a(f"v_cndmask_b32 v{SI}, 0, v{SI}, s[56:57]")
    a(f"v_cndmask_b32 v{T1}, 0, v{T1}, s[58:59]")
    a(f"v_cndmask_b32 v{T2}, 0, v{T2}, s[58:59]")
    a(f"v_add_f32 v{SR}, v{SR}, v{T1}")
    a(f"v_add_f32 v{SI}, v{SI}, v{T2}")
    for sw in ("v_permlane32_swap_b32", "v_permlane16_swap_b32"):
        a(f"v_mov_b32 v{T1}, v{SR}")
        a(f"v_mov_b32 v{T2}, v{SI}")
        a(f"{sw} v{SR}, v{T1}")
        a(f"{sw} v{SI}, v{T2}")
        a(f"v_add_f32 v{SR}, v{SR}, v{T1}")
        a(f"v_add_f32 v{SI}, v{SI}, v{T2}")
    a(f"v_fmac_f32 v{QR}, v{LWR}, v{SR}")
    a(f"v_fmac_f32 v{QI}, v{LWR}, v{SI}")
    a(f"v_fma_f32 v{QR}, -v{LWI}, v{SI}, v{QR}")
    a(f"v_fmac_f32 v{QI}, v{LWI}, v{SR}")
    a(f"v_fmac_f32 v{HR}, v{PWR}, v{QR}")
    a(f"v_fmac_f32 v{HI}, v{PWR}, v{QI}")
    a(f"v_fma_f32 v{HR}, -v{PWI}, v{QI}, v{HR}")
    a(f"v_fmac_f32 v{HI}, v{PWI}, v{QR}")
    pr, pi = HR, HI
    PK, HF = CF, 80
    for r in range(16):
        a(f"v_fma_f32 v{X+r}, -v{LI}, v{pi}, v{X+r}")
        a(f"v_fma_f32 v{Y+r}, v{LI}, v{pr}, v{Y+r}")
        a(f"v_fmac_f32 v{X+r}, v{LR}, v{pr}")
        a(f"v_fmac_f32 v{Y+r}, v{LR}, v{pi}")
        pr, pi = X + r, Y + r
    for k in range(8):
        a(f"v_cvt_pk_bf16_f32 v{PK+k}, v{X+2*k}, v{X+2*k+1}")
    a(f"ds_write_b128 v{vTW}, v[{PK}:{PK+3}]")
    a(f"ds_write_b128 v{vTW}, v[{PK+4}:{PK+7}] offset:16")
    for k in range(8):
        a(f"v_cvt_pk_bf16_f32 v{PK+8+k}, -v{Y+2*k}, -v{Y+2*k+1}")
    a(f"ds_write_b128 v{vTW}, v[{PK+8}:{PK+11}] offset:2048")
    a(f"ds_write_b128 v{vTW}, v[{PK+12}:{PK+15}] offset:2064")
    for q in range(2):
        for part in range(2):
            for j in range(2):
                d = HF + 8 * q + 4 * part + 2 * j
                a(f"ds_read_b64_tr_b16 v[{d}:{d+1}], v{vTR} offset:{(part*16 + 4*j)*128 + 64*(q ^ j)}")
    cf_read(0, SA[0])
    a("s_waitcnt lgkmcnt(8)")
    for q in range(2):
        for part in range(2):
            d = HF + 8 * q + 4 * part
            a(f"s_add_u32 s11, s19, {q*RT_BYTES + part*HALF_BYTES}")
            vm.issue('hs', f"buffer_store_dwordx4 v[{d}:{d+3}], v{vP}, s[{SRD_WS}:{SRD_WS+3}], s11 offen{SP}")
    cf_read(1, SB[0])
    cf_read(2, None)
    w_write([16, 17, 18, 19])
    w_write([20, 21])
    a(f"v_mov_b32 v{T1}, 2")
    a(f"ds_write_b32 v{vRd}, v{T1}")
    vm.wait('hs', "lgkmcnt(13)")
    a("s_mov_b64 exec, 1")
    vm.issue('f', f"buffer_store_dword v{vOne}, v{vF}, s[{SRD_WS}:{SRD_WS+3}], 0 offen sc1")
    a("s_mov_b64 exec, -1")
    ts(7)
    for o in w_ops(range(22, 28)): o()
    a(f"s_and_b32 s11, s{S_W4}, 1")
    a("s_lshl_b32 s11, s11, 8")
    a(f"s_add_u32 s11, s11, {ST2_L}")
    a(f"v_lshl_add_u32 v{vT+3}, v{vT+3}, 7, s11")
    STT = 32
    for k in range(8): a(f"ds_read_b128 v[{STT+4*k}:{STT+4*k+3}], v{vT+3} offset:{16*k}")
    for r in range(16): a(f"v_lshlrev_b32 v{XV+r}, 16, v{XV+r}")
    a("s_waitcnt lgkmcnt(0)")
    a("s_setprio 0")
    def rnd_pair(r0, r1):
        a(f"v_cvt_pk_bf16_f32 v{r1}, v{r0}, v{r1}"); a(f"v_lshlrev_b32 v{r0}, 16, v{r1}"); a(f"v_and_b32 v{r1}, s71, v{r1}")
    for r in range(16): a(f"v_sub_f32 v{TT+r}, v{XV+r}, v{STT+2*r}")
    for k in range(8): rnd_pair(TT + 2 * k, TT + 2 * k + 1)
    a(f"v_mov_b32 v{T2}, 3")
    vm.wait(('w', 27))
    a(f"ds_write_b32 v{vRd}, v{T2}")
    for r in range(16): a(f"v_mul_f32 v{TT+r}, v{TT+r}, v{STT+2*r+1}")
    for k in range(8): rnd_pair(TT + 2 * k, TT + 2 * k + 1)
    for r in range(16): a(f"v_mul_f32 v{TT+r}, v{TT+r}, v{DS}")
    for k in range(8): rnd_pair(TT + 2 * k, TT + 2 * k + 1)
    def poll(name, off):
        def cond():
            for k in range(0, 12, 4): a(f"s_and_b64 s[{20+k}:{21+k}], s[{20+k}:{21+k}], s[{22+k}:{23+k}]")
            a("s_and_b64 s[20:21], s[20:21], s[24:25]")
            a("s_and_b64 s[28:29], s[28:29], s[32:33]")
            a("s_and_b64 s[20:21], s[20:21], s[28:29]")
            a("s_and_b32 s20, s20, s21")
            a("s_cmp_eq_u32 s20, 1")
        sspin(a, name, [f"s_load_dwordx16 s[20:35], s[{P_WS}:{P_WS+1}], s18 glc"], cond, cfg.psleep)
    a(f"s_mul_i32 s57, s40, {RT_BYTES}")
    a("s_xor_b32 s11, s40, 1")
    a(f"s_mul_i32 s56, s11, {RT_BYTES}")
    a(f"s_lshr_b32 s11, s{S_W4}, 1")
    a(f"s_mul_i32 s11, s11, {HALF_BYTES}")
    a(f"s_add_u32 s11, s11, {56*1024}")
    a("s_add_u32 s56, s56, s11")
    a("s_add_u32 s57, s57, s11")
    a(f"s_and_b32 s12, s{S_W4}, 1")
    a("s_lshl_b32 s13, s12, 14")
    for b in range(3):
        a(f"s_add_u32 s11, s{sBlk}, {b}")
        a("s_cmp_ge_u32 s11, 3")
        a("s_cselect_b32 s22, 3, 0")
        a("s_sub_u32 s11, s11, s22")
        a("s_lshl_b32 s11, s11, 12")
        a(f"s_add_u32 s{52+b}, s11, s13")
    a("s_lshl_b32 s12, s12, 11")
    a(f"s_add_u32 s55, s12, {12*1024}")
    srd(a, 60, P_OUT, 2048 * 1792)
    vW1, vW2, vCn, vCv = 1, 2, 9, 10
    vR = [11, 12, 13, 14]
    a(f"v_add_u32 v{vW1}, {PH1}, v{vPQ}")
    a(f"v_add_u32 v{vW2}, {PH2}, v{vPQ}")
    a(f"v_mov_b32 v{vCn}, {CNT_L}")
    for (reg, xr, base) in ((vR[0], 1, PH1), (vR[1], 3, PH1 + 4096), (vR[2], 2, PH2)):
        a(f"s_xor_b32 s11, s{S_W4}, {xr}")
        a(f"s_mul_i32 s11, s11, {Q}")
        a(f"s_add_u32 s11, s11, {base}")
        a(f"v_add_u32 v{reg}, s11, v{vP}")
    a(f"v_add_u32 v{vR[3]}, {GA}, v{vPQ}")
    ts.x(2, 11)
    AR = list(range(16, 64, 4))
    NA = len(AR)
    def aload(n):
        lr, p = n // 14, n % 14
        if p % 4 == 0: a(f"s_add_u32 s58, s{56+lr}, s{52 + p//4}")
        d = AR[n % NA]
        vm.issue(('a', n), f"buffer_load_dwordx4 v[{d}:{d+3}], v{vP}, s[{SRD_WS}:{SRD_WS+3}], s58 offen offset:{(p%4)*1024}{AP}")
    def cnt_wait(name, off):
        a("s_mov_b32 s73, 0")
        a.label(name)
        a("s_waitcnt lgkmcnt(0)")
        a(f"v_readfirstlane_b32 s11, v{vCv}")
        a("s_cmp_ge_u32 s11, 4")
        a(f"s_cbranch_scc1 {name}ok")
        a("s_add_u32 s73, s73, 1")
        a(f"s_cmp_ge_u32 s73, {SPIN_MAX}")
        a(f"s_cbranch_scc1 {name}ok")
        a("s_sleep 1")
        a(f"ds_read_b32 v{vCv}, v{vCn} offset:{off}")
        a(f"s_branch {name}")
        a.label(name + "ok")
        a("s_nop 7")
    a(f"ds_read_b32 v{vCv}, v{vCn} offset:4")
    cnt_wait("L_l_c0", 4)
    poll("L_ps", 128)
    ts(9)
    if cfg.sprio: a(f"s_setprio {cfg.sprio}")
    ts.x(7, 1)
    for n in range(NA): aload(n)
    a("s_setprio 0")
    ts.x(7, 2)
    for n in range(28):
        lr, p = n // 14, n % 14
        vm.wait(('a', n))
        if n in (0, 7, 14, 21): ts.x(7, 3 + n // 7)
        d = AR[n % NA]
        for lc in (1, 0):
            acc = SACC + 32 * lr + 16 * lc
            c = "0" if (p == 0 and not (lr == 1 and lc == 0)) else f"v[{acc}:{acc+15}]"
            f = CF + 8 * p + 4 * lc
            a(f"v_mfma_f32_32x32x16_bf16 v[{acc}:{acc+15}], v[{d}:{d+3}], v[{f}:{f+3}], {c}")
        if n + NA < 28: aload(n + NA)
        if 16 <= n < 24:
            k = n - 16
            a(f"ds_write_b128 v{vW1}, v[{SACC+4*k}:{SACC+4*k+3}] offset:{1024*k}")
    ts(10)
    ts.x(7, 7)
    ts.x(7, 8)
    for k in range(4):
        a(f"ds_write_b128 v{vW2}, v[{SACC+48+4*k}:{SACC+48+4*k+3}] offset:{1024*k}")
    a("s_waitcnt lgkmcnt(0)")
    ts.x(7, 9)
    a("s_barrier")
    ts(11)
    ts.x(7, 10)
    RX = CF
    for k in range(4):
        for w in range(4):
            a(f"ds_read_b128 v[{RX+16*w+4*k}:{RX+16*w+4*k+3}], v{vR[w]} offset:{1024*k}")
    for k in range(4):
        a(f"s_waitcnt lgkmcnt({12 - 4*k})")
        for r in range(4 * k, 4 * k + 4):
            a(f"v_add_f32 v{TT+r}, v{TT+r}, v{RX+r}")
            a(f"v_add_f32 v{RX+16+r}, v{RX+16+r}, v{RX+32+r}")
        for r in range(4 * k, 4 * k + 4):
            a(f"v_add_f32 v{TT+r}, v{TT+r}, v{RX+16+r}")
        for r in range(4 * k, 4 * k + 4):
            a(f"v_fma_f32 v{XV+r}, v{TT+r}, v{RX+48+r}, v{XV+r}")
            if r % 2 == 0: a(f"s_mov_b32 s11, {r*1792}")
            a(f"buffer_store_dword v{XV+r}, v{vO}, s[60:63], s11 offen offset:{(r%2)*1792}{OP}")
    if cfg.ts:
        a("s_waitcnt vmcnt(0)")
        ts(12)
    if cfg.padto:
        a.label("L_pad")
        a("s_memrealtime s[98:99]")
        a("s_waitcnt lgkmcnt(0)")
        a("s_sub_u32 s98, s98, s100")
        a(f"s_cmp_lt_u32 s98, {cfg.padto}")
        a("s_cbranch_scc1 L_pad")
    ts.dump(16, 17)
    a("s_endpgm")

def gen_consumer(a, cfg, ts):
    a.label("L_consumer")
    SP = ["", " sc1"][cfg.spol]
    AP = ['', ' sc1', ' sc1 nt', ' sc0 sc1', ' sc0', ' nt'][cfg.apol]
    vm = VM(a)
    XA = [1, 2, 3, 4]; BA = [5, 6, 7, 8]; WA = [9, 10]
    vL16, vStF, vCL, vF, vFl, vSo, vCn, vRd, vWB, vPQ, vOne, MM = 11, 12, 13, 14, 15, 16, 17, 18, 19, 20, 21, 22
    FS = [40, 68]
    ACC = 96
    def G(ft, q): return ACC + 16 * (2 * ft + q)
    def U(ft, q): return ACC + 64 + 16 * (2 * ft + q)
    def S(q): return ACC + 128 + 16 * q
    vI, vH, t0, t1, t2 = 24, 25, 26, 27, 28
    a(f"v_and_b32 v{vI}, 31, v0")
    a(f"v_lshrrev_b32 v{vH}, 5, v0")
    a(f"v_bfe_u32 v{t0}, v0, 1, 3")
    a(f"v_xor_b32 v{t0}, v{t0}, v{vH}")
    a(f"v_lshlrev_b32 v{t0}, 4, v{t0}")
    a(f"v_lshl_add_u32 v{t0}, v{vI}, 7, v{t0}")
    a(f"s_lshl_b32 s11, s{S_W4}, 13")
    for ks in range(4):
        a(f"v_xor_b32 v{t1}, {32*ks}, v{t0}")
        a(f"v_add_u32 v{XA[ks]}, s11, v{t1}")
        a(f"v_add_u32 v{BA[ks]}, {OFF_BB}, v{t1}")
    a(f"v_bfe_u32 v{t0}, v0, 2, 2")
    a(f"v_lshlrev_b32 v{t1}, 7, v{t0}")
    a(f"v_lshrrev_b32 v{t0}, 1, v{t0}")
    a(f"v_lshl_add_u32 v{t1}, v{t0}, 6, v{t1}")
    a(f"v_bfe_u32 v{t0}, v0, 4, 1")
    a(f"v_lshl_add_u32 v{t1}, v{t0}, 5, v{t1}")
    a(f"v_and_b32 v{t2}, 3, v0")
    a(f"v_lshl_add_u32 v{t1}, v{t2}, 3, v{t1}")
    a(f"v_lshl_add_u32 v{WA[0]}, v{vH}, 10, v{t1}")
    a(f"v_add_u32 v{WA[0]}, {OFF_WG}, v{WA[0]}")
    a(f"v_xor_b32 v{WA[1]}, 64, v{WA[0]}")
    a(f"s_mul_i32 s62, s{S_W4}, {Q}")
    a(f"s_lshr_b32 s59, s{S_W4}, 1")
    a(f"s_and_b32 s63, s{S_W4}, 1")
    a("s_lshl_b32 s11, s59, 6")
    a(f"v_lshl_add_u32 v{vWB}, v{vH}, 9, v{t1}")
    a(f"v_xor_b32 v{vWB}, s11, v{vWB}")
    a(f"v_add_u32 v{vWB}, s62, v{vWB}")
    for k in range(160): a(f"v_mov_b32 v{ACC+k}, 0")
    a(f"v_mov_b32 v{vCn}, {CNT_L}")
    a(f"ds_write_b128 v{vCn}, v[{ACC}:{ACC+3}]")
    a(f"ds_write_b128 v{vCn}, v[{ACC}:{ACC+3}] offset:16")
    a(f"v_bfe_u32 v{t0}, v0, 2, 1")
    a(f"v_lshl_add_u32 v{t0}, v{t0}, 4, v{t2}")
    a(f"v_bfe_u32 v{t1}, v0, 3, 2")
    a(f"v_lshl_add_u32 v{t0}, v{t1}, 2, v{t0}")
    a(f"s_lshl_b32 s11, s{S_W4}, 9")
    a(f"s_add_u32 s11, s11, {STATS_L}")
    a(f"v_lshl_add_u32 v{vStF}, v{t0}, 3, s11")
    a(f"v_lshlrev_b32 v{vL16}, 4, v0")
    a(f"v_add_u32 v{vPQ}, s62, v{vL16}")
    a(f"v_lshlrev_b32 v{vCL}, 4, v{vH}")
    a(f"v_add_u32 v{vCL}, {C_L}, v{vCL}")
    a(f"v_mov_b32 v{vOne}, 1")
    a(f"s_lshl_b32 s11, s{S_W4}, 2")
    a(f"s_add_u32 s11, s11, {CNT_L + 16}")
    a(f"v_mov_b32 v{vRd}, s11")
    a("s_lshl_b32 s11, s63, 8")
    a(f"s_add_u32 s11, s11, {ST2_L}")
    a(f"v_lshl_add_u32 v{vSo}, v{vH}, 7, s11")
    a(f"s_lshl_b32 s13, s{S_MT}, 2")
    a(f"s_add_u32 s13, s13, s{S_W4}")
    a(f"s_mul_i32 s56, s13, {2*RT_BYTES}")
    a(f"s_cmp_ge_u32 s{S_NS}, 14")
    a(f"s_cselect_b32 s11, {HALF_BYTES - 56*1024}, 0")
    a(f"s_lshl_b32 s12, s{S_NS}, 12")
    a("s_add_u32 s11, s11, s12")
    a("s_add_u32 s56, s56, s11")
    a(f"s_add_u32 s57, s56, {RT_BYTES}")
    a("s_lshl_b32 s11, s13, 10")
    flag_index(a, 12, 14, 7)
    a("s_add_u32 s11, s11, s12")
    a(f"s_add_u32 s11, s11, {WS_FLAG:#x}")
    a(f"v_mov_b32 v{vF}, s11")
    a(f"s_lshl_b32 s55, s{S_M64}, 10")
    a(f"s_add_u32 s55, s55, {WS_FLAG:#x}")
    a(f"s_lshl_b32 s11, s{S_W4}, 7")
    a("s_add_u32 s55, s55, s11")
    a(f"s_mul_i32 s12, s59, {HALF_BYTES}")
    a(f"s_mul_i32 s13, s63, {28*1024}")
    a("s_add_u32 s12, s12, s13")
    a(f"s_lshl_b32 s11, s{S_M64}, 1")
    a("s_add_u32 s11, s11, s63")
    a(f"s_mul_i32 s52, s11, {RT_BYTES}")
    a("s_add_u32 s52, s52, s12")
    a("s_xor_b32 s11, s11, 1")
    a(f"s_mul_i32 s51, s11, {RT_BYTES}")
    a("s_add_u32 s51, s51, s12")
    p2_rot(a, cfg, 60, 61, 58)
    a("s_waitcnt lgkmcnt(0)")
    srd(a, SRD_WS, P_WS, WS_SIZE)
    ts(1)

    def reads(fs, ks):
        f = FS[fs]
        L = []
        L.append(f"ds_read_b128 v[{f}:{f+3}], v{XA[ks]}")
        L.append(f"ds_read_b128 v[{f+24}:{f+27}], v{BA[ks]}")
        L.append(f"ds_read_b128 v[{f+4}:{f+7}], v{XA[ks]} offset:4096")
        for gu in range(2):
            for ft in range(2):
                for j in range(2):
                    d = f + 8 + 8 * gu + 4 * ft + 2 * j
                    L.append(f"ds_read_b64_tr_b16 v[{d}:{d+1}], v{WA[ft]} offset:{gu*8192 + ks*2048 + j*512}")
        return L
    def mfmas(fs):
        f = FS[fs]
        X = [f, f + 4]; Bf = f + 24
        L = []
        for q in range(2):
            L.append(f"v_mfma_f32_32x32x16_bf16 v[{S(q)}:{S(q)+15}], v[{X[q]}:{X[q]+3}], v[{Bf}:{Bf+3}], v[{S(q)}:{S(q)+15}]")
        for gu in range(2):
            for ft in range(2):
                w = f + 8 + 8 * gu + 4 * ft
                for q in range(2):
                    d = (G, U)[gu](ft, q)
                    L.append(f"v_mfma_f32_32x32x16_bf16 v[{d}:{d+15}], v[{w}:{w+3}], v[{X[q]}:{X[q]+3}], v[{d}:{d+15}]")
        return L
    a("s_setprio 2")
    a("s_mov_b32 s72, 0")
    a("s_mov_b32 s74, 0")
    a("s_barrier")
    ts(2)
    for t in reads(0, 0): a(t)
    a.label("L_c_loop")
    need = {0: 9, 1: 8, 2: 6, 4: 4, 6: 2, 8: 0}
    for ks in range(4):
        fs = ks & 1
        M = mfmas(fs)
        if ks < 3:
            Rd = reads(1 - fs, ks + 1)
            issued = 0
            for i, m in enumerate(M):
                if i in need: a(f"s_waitcnt lgkmcnt({min(15, need[i] + issued)})")
                a(m)
                for _ in range(2 if i >= cfg.rdstart else 0):
                    if Rd: a(Rd.pop(0)); issued += 1
        else:
            Rd = reads(1 - fs, 0)
            a("s_waitcnt lgkmcnt(9)")
            a(M[0])
            a("s_add_u32 s74, s74, 1")
            a("s_cmp_eq_u32 s74, 3")
            a("s_mov_b32 s75, 53248")
            a(f"s_cmov_b32 s75, {(-106496) & 0xffffffff:#x}")
            a("s_cselect_b32 s74, 0, s74")
            for v in XA + BA[:1]: a(f"v_add_u32 v{v}, s75, v{v}")
            a("s_waitcnt lgkmcnt(8)")
            a(M[1])
            for v in BA[1:] + WA: a(f"v_add_u32 v{v}, s75, v{v}")
            a("s_add_u32 s72, s72, 1")
            a("s_cmp_eq_u32 s72, 7")
            a("s_waitcnt lgkmcnt(0)")
            a(M[2])
            a("s_barrier")
            hist = list(a.hist)
            a("s_cbranch_scc1 L_c_last")
            for m in M[3:]:
                for _ in range(2):
                    if Rd: a(Rd.pop(0))
                a(m)
            a("s_branch L_c_loop")
            a.label("L_c_last")
            a.hist = hist
            dump = [f"ds_write_b128 v{vPQ}, v[{S(0)+4*k}:{S(0)+4*k+3}] offset:{SD + 1024*k}" for k in range(8)]
            dump = dump[:4] + [f"ds_read_b32 v{MM}, v{vStF}", f"ds_read_b32 v{MM+1}, v{vStF} offset:256"] + dump[4:]
            for m in M[3:]:
                a(m)
                for _ in range(2):
                    if dump: a(dump.pop(0))
    ts(3)
    a("s_waitcnt lgkmcnt(0)")
    a("s_barrier")
    def cread(dst, off):
        for k in range(4): a(f"ds_read_b128 v[{dst+4*k}:{dst+4*k+3}], v{vCL} offset:{off + 32*k}")
    cread(32, 0); cread(48, 256); cread(64, 128); cread(80, 384)
    WB = {0: [1, 2], 1: [3, 4], 2: [5, 6]}
    for rg in range(3):
        a(f"v_add_u32 v{WB[rg][0]}, {R[rg]}, v{vWB}")
        a(f"v_xor_b32 v{WB[rg][1]}, 64, v{WB[rg][0]}")
    for ft in range(2):
        cg, cu = (32, 48) if ft == 0 else (64, 80)
        for q in range(2):
            g, u = G(ft, q), U(ft, q)
            sel = f"op_sel:[{q},0,0] op_sel_hi:[{q},1,1] neg_lo:[1,0,0] neg_hi:[1,0,0]"
            if q == 0: a(f"s_waitcnt lgkmcnt({12 - 8*ft})")
            for k in range(8):
                a(f"v_pk_fma_f32 v[{g+2*k}:{g+2*k+1}], v[{MM}:{MM+1}], v[{cg+2*k}:{cg+2*k+1}], v[{g+2*k}:{g+2*k+1}] {sel}")
            if q == 0: a(f"s_waitcnt lgkmcnt({8 - 8*ft})")
            for p in range(2):
                kr = range(4 * p, 4 * p + 4)
                for k in kr:
                    a(f"v_pk_fma_f32 v[{u+2*k}:{u+2*k+1}], v[{MM}:{MM+1}], v[{cu+2*k}:{cu+2*k+1}], v[{u+2*k}:{u+2*k+1}] {sel}")
                    a(f"v_max_f32 v{g+2*k}, 0, v{g+2*k}")
                    a(f"v_max_f32 v{g+2*k+1}, 0, v{g+2*k+1}")
                for k in kr:
                    a(f"v_pk_mul_f32 v[{u+2*k}:{u+2*k+1}], v[{u+2*k}:{u+2*k+1}], v[{g+2*k}:{g+2*k+1}]")
                for k in kr:
                    a(f"v_cvt_pk_bf16_f32 v{g+k}, v{u+2*k}, v{u+2*k+1}")
                vm.issue('h', f"buffer_store_dwordx4 v[{g+4*p}:{g+4*p+3}], v{vL16}, s[{SRD_WS}:{SRD_WS+3}], s{56+q} offen offset:{(2*ft+p)*1024}{SP}")
    ts(4)
    BR, NB = 160, 12
    def breads(p):
        sl = WSLOT[p]
        rg = max(k for k in range(3) if R[k] <= sl)
        L = []
        for lc in range(2):
            for jj in range(2):
                d = BR + 8 * (p % NB) + 4 * lc + 2 * jj
                L.append(f"ds_read_b64_tr_b16 v[{d}:{d+1}], v{WB[rg][lc]} offset:{sl - R[rg] + jj*1024}")
        return L
    for p in range(NB):
        for t in breads(p): a(t)
    a("s_waitcnt lgkmcnt(0)")
    a("s_barrier")
    ts(5)
    vm.wait('h')
    a("s_setprio 3")
    a("s_mov_b64 exec, 1")
    vm.issue('f', f"buffer_store_dword v{vOne}, v{vF}, s[{SRD_WS}:{SRD_WS+3}], 0 offen sc1")
    a("s_mov_b64 exec, -1")
    ts(6)
    AF = 96
    AR = list(range(24, 96, 4))
    NA = len(AR)
    def aload(n):
        p, lr = n // 2, n % 2
        if n % 8 == 0:
            a(f"s_lshl_b32 s11, s60, 12")
            a(f"s_add_u32 s54, s11, s52")
            a(f"s_add_u32 s53, s11, s51")
            a(f"s_add_u32 s60, s60, 1")
            a(f"s_cmp_eq_u32 s60, 7")
            a(f"s_cselect_b32 s60, 0, s60")
        d = AR[n % NA]
        vm.issue(('a', n), f"buffer_load_dwordx4 v[{d}:{d+3}], v{vL16}, s[{SRD_WS}:{SRD_WS+3}], s{54 - lr} offen offset:{(p%4)*1024}{AP}")
    def cond():
        a("s_and_b64 s[16:17], s[16:17], s[18:19]")
        a("s_and_b64 s[16:17], s[16:17], s[20:21]")
        a("s_and_b32 s16, s16, s17")
        a("s_and_b32 s16, s16, s22")
        a("s_cmp_eq_u32 s16, 1")
    sspin(a, "L_pf", [f"s_load_dwordx8 s[16:23], s[{P_WS}:{P_WS+1}], s55 glc"], cond, cfg.fsleep)
    a("s_setprio 2")
    ts(7)
    for n in range(cfg.a0): aload(n)
    nxt = [cfg.a0]
    ts(8)
    lq = []
    def ds_issue(tag, t):
        a(t)
        if t.startswith("ds_"): lq.append(tag)
    def ds_wait(tag):
        idx = max((i for i, t in enumerate(lq) if t == tag), default=None)
        if idx is None: return None
        n = len(lq) - 1 - idx
        del lq[:idx + 1]
        return f"lgkmcnt({min(n, 15)})"
    def lds_spin(name, vaddr, off, val):
        a("s_mov_b32 s73, 0")
        a.label(name)
        a("s_waitcnt lgkmcnt(0)")
        a("v_readfirstlane_b32 s11, v8")
        a(f"s_cmp_ge_u32 s11, {val}")
        a(f"s_cbranch_scc1 {name}ok")
        a("s_add_u32 s73, s73, 1")
        a(f"s_cmp_ge_u32 s73, {SPIN_MAX}")
        a(f"s_cbranch_scc1 {name}ok")
        a("s_sleep 1")
        a(f"ds_read_b32 v8, v{vaddr} offset:{off}")
        a(f"s_branch {name}")
        a.label(name + "ok")
        del lq[:]
    for p in range(28):
        f = BR + 8 * (p % NB)
        pn = p + cfg.bd
        for lr in range(2):
            n = 2 * p + lr
            w = ds_wait(p) if lr == 0 else None
            vm.wait(('a', n), w or "")
            if n == 0: ts(9)
            if n in (0, 7, 17, 25, 35): ts.x(6, {0: 7, 7: 8, 17: 9, 25: 10, 35: 11}[n])
            if lr == 0 and pn in (12, 16, 22): ds_issue('r', f"ds_read_b32 v8, v{vRd}")
            d = AR[n % NA]
            for lc in range(2):
                acc = AF + 32 * lr + 16 * lc
                c = "0" if p == 0 else f"v[{acc}:{acc+15}]"
                a(f"v_mfma_f32_32x32x16_bf16 v[{acc}:{acc+15}], v[{d}:{d+3}], v[{f+4*lc}:{f+4*lc+3}], {c}")
            for _ in range(2):
                if nxt[0] < 56 and nxt[0] <= n + NA:
                    aload(nxt[0]); nxt[0] += 1
        if pn in (12, 16, 22): lds_spin(f"L_c_r{pn}", vRd, 0, {12: 1, 16: 2, 22: 3}[pn])
        if p == cfg.ksig:
            assert pn > 15
            w = ds_wait(15)
            if w: a(f"s_waitcnt {w}")
            a("s_mov_b64 exec, 1")
            ds_issue('c', f"ds_add_u32 v{vCn}, v{vOne} offset:4")
            a("s_mov_b64 exec, -1")
        if NB <= pn < 28:
            for t in breads(pn): ds_issue(pn, t)
        if p == 24:
            STT = BR + 32
            for k in range(8): ds_issue('st', f"ds_read_b128 v[{STT+4*k}:{STT+4*k+3}], v{vSo} offset:{16*k}")
        if p == 26:
            for x in range(1, 4):
                a(f"s_xor_b32 s11, s{S_W4}, {x}")
                a(f"s_mul_i32 s11, s11, {Q}")
                a(f"s_add_u32 s11, s11, {FXA + (x-1)*4096}")
                a(f"v_add_u32 v{x}, s11, v{vL16}")
            a(f"v_add_u32 v4, {GA}, v{vPQ}")
            a(f"v_add_u32 v5, {FXA}, v{vPQ}")
        if p % 4 == 3: ts.x(4, 1 + p // 4)
    ts(11)
    ts.x(7, 1)
    for x in (2, 1, 3):
        src = AF + 32 * (x & 1) + 16 * (x >> 1)
        for k in range(4):
            a(f"ds_write_b128 v5, v[{src+4*k}:{src+4*k+3}] offset:{(x-1)*4096 + 1024*k}")
    a("s_waitcnt lgkmcnt(12)")
    for r in range(16): a(f"v_mul_f32 v{STT+2*r}, v{STT+2*r+1}, v{STT+2*r+1}")
    a(f"s_mov_b32 s13, {LOG2E ^ 0x80000000:#x}")
    ts.x(7, 2)
    a("s_waitcnt lgkmcnt(0)")
    ts.x(7, 3)
    a("s_mov_b64 exec, 1")
    a(f"ds_add_u32 v{vCn}, v{vOne}")
    a("s_mov_b64 exec, -1")
    a(f"ds_read_b32 v8, v{vCn}")
    lds_spin("L_c_cnt", vCn, 0, 4)
    ts.x(7, 4)
    O, RX, EX = AF, 24, 72
    for k in range(4):
        for x in range(1, 4):
            a(f"ds_read_b128 v[{RX+16*(x-1)+4*k}:{RX+16*(x-1)+4*k+3}], v{x} offset:{1024*k}")
    for k in range(4):
        rr = range(4 * k, 4 * k + 4)
        a(f"s_waitcnt lgkmcnt({9 - 3*k})")
        for r in rr: a(f"v_add_f32 v{O+r}, v{O+r}, v{RX+r}")
        for r in rr: a(f"v_add_f32 v{RX+16+r}, v{RX+16+r}, v{RX+32+r}")
        for r in rr: a(f"v_add_f32 v{O+r}, v{O+r}, v{RX+16+r}")
        for r in rr: a(f"v_mul_f32 v{O+r}, v{O+r}, v{STT+2*r}")
        for r in rr: a(f"v_mul_f32 v{EX+r}, s13, v{O+r}")
        for r in rr: a(f"v_exp_f32 v{EX+r}, v{EX+r}")
    ts.x(7, 5)
    for k in range(4):
        rr = range(4 * k, 4 * k + 4)
        for r in rr: a(f"v_add_f32 v{EX+r}, 1.0, v{EX+r}")
        for r in rr: a(f"v_rcp_f32 v{EX+r}, v{EX+r}")
        for r in rr: a(f"v_mul_f32 v{O+r}, v{O+r}, v{EX+r}")
        a(f"ds_write_b128 v4, v[{O+4*k}:{O+4*k+3}] offset:{1024*k}")
    a("s_waitcnt lgkmcnt(0)")
    ts(12)
    a("s_barrier")
    ts.dump(24, 25)
    a("s_endpgm")

HEADER = """; Fused S5-SSM + ReGLU block, one launch: 224 main workgroups (4 MFMA waves + 4 loader waves) + 32 helper workgroups.
; @launch grid=(256,1,1) block=(512,1,1) lds=163840
.amdgcn_target "amdgcn-amd-amdhsa--gfx950"
.text
.globl {k}
.p2align 8
.type {k},@function
{k}:
"""
FOOTER = """.section .rodata,"a"
.p2align 6
.amdhsa_kernel {k}
  .amdhsa_next_free_vgpr 256
  .amdhsa_next_free_sgpr 102
  .amdhsa_accum_offset 256
  .amdhsa_group_segment_fixed_size 0
  .amdhsa_kernarg_size 128
  .amdhsa_user_sgpr_count 2
  .amdhsa_user_sgpr_kernarg_segment_ptr 1
  .amdhsa_system_sgpr_workgroup_id_x 1
  .amdhsa_float_denorm_mode_32 3
.end_amdhsa_kernel
"""

def generate(cfg):
    WSOFF[0] = cfg.wsoff << 20
    a = Asm()
    ts = TS(a, cfg)
    gen_entry(a, cfg, ts)
    gen_loader(a, cfg, ts)
    gen_consumer(a, cfg, ts)
    gen_helper(a, cfg, ts)
    a.label("L_exit")
    a("s_endpgm")
    return HEADER.format(k=KNAME) + f"; wsoff={cfg.wsoff}\n" + a.text() + FOOTER.format(k=KNAME)

if __name__ == "__main__":
    cfg = Cfg()
    out = sys.argv[1]
    for kv in sys.argv[2:]:
        k, v = kv.split("=")
        setattr(cfg, k, int(v))
    open(out, "w").write(generate(cfg))
```

```python
import sys, os
sys.path.insert(0, os.path.dirname(os.path.abspath(__file__)))
from asmlib import Asm, VM

KNAME = "recurrent_scan__ssm_conv_s5__glu_gated_reglu__prompt_kernel"

R = [0, 53248, 106496]
MISC = 159744
OFF_WG, OFF_WU, OFF_BB = 32768, 40960, 49152
CP_L = R[2] + 49152
STATS_L = MISC
C_L = MISC + 2048
CNT_L = MISC + 2688
ST2_L = MISC + 2720
AGG_L = MISC + 3232
Q = 12288

RT_BYTES = 172032
HALF_BYTES = 86016
WS_STATS = 0xB00000
WS_AGG = WS_STATS + 0x4000
WS_FLAG = WS_AGG + 0x8000
INIT_N = 128
WS_TS = 0xC00000
WS_SIZE = 0x1000000
SPIN_MAX = 1 << 20

S_WAVE, S_XCD, S_SLOT, S_MT, S_NS, S_M64, S_NT, S_W4 = 3, 4, 5, 6, 7, 8, 9, 10
P_X, P_LRE, P_LIM, P_BRE, P_BIM, P_CRE, P_CIM, P_LDT, P_DSK, P_BX, P_WG, P_WU, P_WD, P_OUT, P_DBG, P_WS = [16 + 2 * i for i in range(16)]
SRD_X, SRD_A, SRD_B, SRD_C, SRD_WS, SRD_E = 48, 52, 56, 60, 64, 68
TS0 = 76

LOG2E = 0x3fb8aa3b
LOG2E_LO = 0x32a57060
LN2 = 0x3f317218
INV2PI = 0x3e22f983

class Cfg:
    ts = 0
    tsset = 0
    pd = 16
    perm = 1
    rot = 2
    ssm_early = 0
    schedn = 0
    polx = 0
    apol = 1
    noa = 0
    nob = 0
    rdstart = 1
    polw = 0
    winn = 0
    probe = 0
    pwho = 0
    wsoff = 0
    kwin = 2
    eprio = 0
    c2late = 0
    cpf = 1
    padto = 0
    nocs = 0
    r2pre = 1
    tlb = 0
    bd = 4
    pollw = 24
    wfirst = 1
    @property
    def win(self):
        W = lambda a, b: [f"w{p}" for p in range(a, b)]
        return [
            {-1: ["s1"], 0: ["k", "s2", "e"], 1: ["s3"] + W(12, 14), 2: ["s4"] + W(14, 16), 3: ["s5"] + W(16, 18), 4: ["init", "s6"] + W(18, 20),
             5: ["fetch"] + W(0, 6) + W(20, 22), 6: W(6, 12) + ["put"]},
            {-1: ["s1:0-3"], 0: ["s1:3-13", "k", "s2:0-6"], 1: ["s2:6-13", "s3:0-10"], 2: ["s3:10-13", "s4", "e"], 3: ["s5"] + W(12, 15), 4: ["init", "s6"] + W(15, 18),
             5: ["fetch"] + W(0, 6) + W(18, 21), 6: W(6, 12) + ["w21", "put"]},
            {-1: ["s1:0-6"], 0: ["s1:6-13", "k", "s2:0-9"], 1: ["s2:9-13", "s3", "e"], 2: ["s4"] + W(12, 14), 3: ["s5"] + W(14, 17), 4: ["init", "s6"] + W(17, 19),
             5: ["fetch"] + W(0, 6) + W(19, 22), 6: W(6, 12) + ["put"]},
        ][self.winn]
    nw1 = 6
    flagr = -1
    xs = 1
    psleep = 2
    fsleep = 2
    ttper = 2
    f2n = 9
    fpre = 1
    a0 = 18
    sprio = 0
    ksig = 12
    opol = 0
    lprio = 3
    w12early = 0
    slab = 0
    spol = 1
    fpol = 1
    pollr = 4
    nw2 = 16
    thr = 15
    hpf = 3
    ky = 2
    @property
    def perms(self):
        return {
            0: [[0, 1, 2, 3, 4, 5, 6]],
            1: [[0, 1, 2, 3, 4, 5, 6], [1, 2, 0, 4, 5, 3, 6], [2, 0, 1, 5, 3, 4, 6]],
            2: [[0, 1, 2, 3, 4, 5, 6], [1, 0, 3, 2, 5, 4, 6]],
            3: [[0, 1, 2, 3, 4, 5, 6], [1, 0, 4, 5, 6, 2, 3], [0, 1, 6, 2, 3, 4, 5]],
            4: [[0, 1, 2, 3, 4, 5, 6], [1, 2, 0, 4, 6, 3, 5], [2, 0, 1, 5, 6, 3, 4]],
            5: [[0, 1, 2, 3, 4, 5, 6], [1, 2, 3, 0, 5, 6, 4], [2, 3, 0, 1, 6, 4, 5], [3, 0, 1, 2, 4, 5, 6]],
        }[self.perm]

WSOFF = [0]
def srd(a, d, ptr, nbytes):
    if ptr == P_WS and WSOFF[0]:
        a(f"s_add_u32 s{ptr}, s{ptr}, {WSOFF[0]:#x}")
        a(f"s_addc_u32 s{ptr+1}, s{ptr+1}, 0")
    a(f"s_mov_b32 s{d}, s{ptr}")
    a(f"s_and_b32 s{d+1}, s{ptr+1}, 0xffff")
    a(f"s_mov_b32 s{d+2}, {nbytes:#x}")
    a(f"s_mov_b32 s{d+3}, 0x20000")

def srd_sel(a, d, ptr1, ptr0, nbytes):
    a(f"s_cselect_b32 s{d}, s{ptr1}, s{ptr0}")
    a(f"s_cselect_b32 s{d+1}, s{ptr1+1}, s{ptr0+1}")
    a(f"s_and_b32 s{d+1}, s{d+1}, 0xffff")
    a(f"s_mov_b32 s{d+2}, {nbytes:#x}")
    a(f"s_mov_b32 s{d+3}, 0x20000")

class TS:
    def __init__(self, a, cfg):
        self.a, self.on, self.n, self.set = a, cfg.ts, 0, cfg.tsset
        self.cfg = cfg
    def x(self, setno, i):
        if self.on and self.set == setno: self.emit(i)
    def __call__(self, i):
        if self.on and (self.set == 0 or i in (0, 12)): self.emit(i)
    def emit(self, i):
        if self.on == 5 and i not in (0, self.cfg.probe): return
        if self.on:
            assert i < 13
            self.a(f"{'s_memrealtime' if self.on != 2 else 's_memtime'} s[{TS0+2*i}:{TS0+2*i+1}]")
    def init(self):
        if self.on:
            for i in range(1, 13): self.a(f"s_mov_b32 s{TS0+2*i}, 0")
    def dump(self, vt, vt2, who=2):
        if not self.on: return
        a = self.a
        if self.on == 5:
            if who != self.cfg.pwho: return
            lab = a.newlabel("L_probe")
            p = TS0 + 2 * self.cfg.probe
            a("s_waitcnt lgkmcnt(0)")
            a(f"s_sub_u32 s11, s{p}, s{TS0}")
            a(f"s_cmp_eq_u32 s{p}, 0")
            a("s_cselect_b32 s11, 0, s11")
            a("s_lshl_b32 s11, s11, 2")
            a("s_add_u32 s11, s11, 3000")
            a.label(lab)
            a("s_memrealtime s[12:13]")
            a("s_waitcnt lgkmcnt(0)")
            a(f"s_sub_u32 s12, s12, s{TS0}")
            a("s_cmp_lt_u32 s12, s11")
            a(f"s_cbranch_scc1 {lab}")
            return
        if self.on == 3:
            a("s_waitcnt vmcnt(0) lgkmcnt(0)")
            lab = a.newlabel("L_nod")
            a(f"s_cmp_eq_u32 s{TS0+24}, 0")
            a(f"s_cbranch_scc1 {lab}")
            a(f"s_cmp_lg_u32 s{S_WAVE}, 0")
            a(f"s_cbranch_scc1 {lab}")
            a("s_mov_b64 exec, 1")
            a(f"v_mov_b32 v{vt2}, 0")
            a(f"s_not_b32 s11, s{TS0}")
            a(f"v_mov_b32 v{vt}, s11")
            a(f"global_atomic_umax v{vt2}, v{vt}, s[{P_DBG}:{P_DBG+1}] offset:4 sc1")
            for n, i in enumerate([0, 1, 2, 3, 4, 5, 6, 7, 8, 9, 10, 11, 12]):
                a("s_waitcnt vmcnt(0)")
                a(f"v_mov_b32 v{vt}, s{TS0+2*i}")
                a(f"global_atomic_umax v{vt2}, v{vt}, s[{P_DBG}:{P_DBG+1}] offset:{8+4*n} sc1")
            a("s_waitcnt vmcnt(0)")
            a.label(lab)
            return
        a("s_waitcnt vmcnt(0) lgkmcnt(0)")
        a(f"s_lshl_b32 s11, s2, 9")
        a(f"s_lshl_b32 s12, s{S_WAVE}, 6")
        a("s_add_u32 s11, s11, s12")
        a(f"s_add_u32 s11, s11, {WS_TS:#x}")
        a(f"v_mov_b32 v{vt2}, s11")
        for i in range(13):
            a(f"v_mov_b32 v{vt}, s{TS0+2*i}")
            a(f"buffer_store_dword v{vt}, v{vt2}, s[{SRD_WS}:{SRD_WS+3}], 0 offen offset:{4*i}")
        a("s_waitcnt vmcnt(0)")

def round_bf16(a, dst, src):
    a(f"v_cvt_pk_bf16_f32 v{dst}, v{src}, v{src}")
    a(f"v_lshlrev_b32 v{dst}, 16, v{dst}")

def exp_acc(a, dst, x, t0, t1):
    a(f"s_mov_b32 s36, {LOG2E:#x}")
    a(f"s_mov_b32 s37, {LOG2E_LO:#x}")
    a(f"v_mul_f32 v{t0}, s36, v{x}")
    a(f"v_fma_f32 v{t1}, v{x}, s36, -v{t0}")
    a(f"v_fma_f32 v{t1}, v{x}, s37, v{t1}")
    a(f"v_mul_f32 v{t1}, {LN2:#x}, v{t1}")
    a(f"v_exp_f32 v{dst}, v{t0}")
    a(f"v_fma_f32 v{dst}, v{dst}, v{t1}, v{dst}")

def csq(a, dr, di, sr, si, t):
    a(f"v_mul_f32 v{t}, v{si}, v{si}")
    a(f"v_add_f32 v{di}, v{si}, v{si}")
    a(f"v_mul_f32 v{di}, v{di}, v{sr}")
    a(f"v_fma_f32 v{dr}, v{sr}, v{sr}, -v{t}")

def cmul(a, dr, di, ar, ai, br, bi):
    a(f"v_mul_f32 v{dr}, v{ar}, v{br}")
    a(f"v_mul_f32 v{di}, v{ar}, v{bi}")
    a(f"v_fma_f32 v{dr}, -v{ai}, v{bi}, v{dr}")
    a(f"v_fma_f32 v{di}, v{ai}, v{br}, v{di}")

def ssm_const_load(a, vm, t):
    a(f"v_and_b32 v{t+3}, 15, v0")
    a(f"s_lshl_b32 s11, s{S_NS}, 4")
    a(f"v_add_lshl_u32 v{t+3}, v{t+3}, s11, 1")
    vm.issue('sc', f"global_load_ushort v{t}, v{t+3}, s[{P_LRE}:{P_LRE+1}]")
    vm.issue('sc', f"global_load_ushort v{t+1}, v{t+3}, s[{P_LIM}:{P_LIM+1}]")
    vm.issue('sc', f"global_load_ushort v{t+2}, v{t+3}, s[{P_LDT}:{P_LDT+1}]")

def ssm_const_calc(a, t, lr, li, cr=None, ci=None):
    for k in range(3): a(f"v_lshlrev_b32 v{t+k}, 16, v{t+k}")
    exp_acc(a, t + 3, t + 2, t + 4, t + 5)
    round_bf16(a, t + 2, t + 3)
    a(f"v_mul_f32 v{t+3}, v{t+2}, v{t}")
    a(f"v_mul_f32 v{t+6}, v{t+2}, v{t+1}")
    exp_acc(a, t + 7, t + 3, t + 4, t + 5)
    a(f"v_mul_f32 v{t+6}, {INV2PI:#x}, v{t+6}")
    a(f"v_rndne_f32 v{t+4}, v{t+6}")
    a(f"v_sub_f32 v{t+6}, v{t+6}, v{t+4}")
    a(f"v_cos_f32 v{t+4}, v{t+6}")
    a(f"v_sin_f32 v{t+5}, v{t+6}")
    a(f"v_mul_f32 v{lr}, v{t+7}, v{t+4}")
    a(f"v_mul_f32 v{li}, v{t+7}, v{t+5}")
    if cr is not None:
        a(f"v_add_f32 v{t+3}, -1.0, v{lr}")
        a(f"v_mul_f32 v{t+4}, v{t}, v{t}")
        a(f"v_fma_f32 v{t+4}, v{t+1}, v{t+1}, v{t+4}")
        a(f"v_rcp_f32 v{t+4}, v{t+4}")
        a(f"v_mul_f32 v{cr}, v{t+3}, v{t}")
        a(f"v_fma_f32 v{cr}, v{li}, v{t+1}, v{cr}")
        a(f"v_mul_f32 v{ci}, v{li}, v{t}")
        a(f"v_fma_f32 v{ci}, -v{t+3}, v{t+1}, v{ci}")
        a(f"v_add_f32 v{t+4}, v{t+4}, v{t+4}")
        a(f"v_mul_f32 v{cr}, v{cr}, v{t+4}")
        a(f"v_mul_f32 v{ci}, v{ci}, v{t+4}")

def gen_entry(a, cfg, ts):
    a("s_cmp_ge_u32 s2, 256")
    a("s_cbranch_scc1 L_exit")
    if cfg.padto: a("s_memrealtime s[100:101]")
    ts(0)
    a("s_load_dwordx16 s[16:31], s[0:1], 0")
    a("s_load_dwordx16 s[32:47], s[0:1], 64")
    a("v_lshrrev_b32 v1, 6, v0")
    a("v_and_b32 v0, 63, v0")
    a(f"v_readfirstlane_b32 s{S_WAVE}, v1")
    a(f"s_and_b32 s{S_XCD}, s2, 7")
    a(f"s_lshr_b32 s{S_SLOT}, s2, 3")
    a(f"s_and_b32 s11, s{S_SLOT}, 3")
    a(f"s_lshr_b32 s{S_NT}, s{S_SLOT}, 2")
    a(f"s_and_b32 s12, s{S_XCD}, 1")
    a(f"s_lshl_b32 s12, s12, 2")
    a(f"s_add_u32 s{S_MT}, s12, s11")
    a(f"s_lshr_b32 s12, s{S_XCD}, 1")
    a(f"s_mul_i32 s12, s12, 7")
    a(f"s_add_u32 s{S_NS}, s12, s{S_NT}")
    if cfg.slab:
        a(f"s_mov_b32 s{S_MT}, s{S_XCD}")
        a(f"s_mov_b32 s{S_NS}, s{S_SLOT}")
    a(f"s_lshl_b32 s12, s{S_XCD}, 2")
    a(f"s_add_u32 s{S_M64}, s12, s11")
    a(f"s_and_b32 s{S_W4}, s{S_WAVE}, 3")
    ts.init()
    a(f"s_cmp_ge_u32 s{S_SLOT}, 28")
    a("s_cbranch_scc1 L_helper")
    a(f"s_cmp_lt_u32 s{S_WAVE}, 4")
    a("s_cbranch_scc1 L_consumer")

def gen_helper(a, cfg, ts):
    a.label("L_helper")
    vm = VM(a)
    a(f"s_sub_u32 s73, s{S_SLOT}, 28")
    a(f"s_lshl_b32 s11, s73, 3")
    a(f"s_add_u32 s72, s11, s{S_XCD}")
    a(f"s_cmp_ge_u32 s{S_WAVE}, 4")
    a("s_cbranch_scc1 L_h_pf")
    a(f"s_lshl_b32 s11, s72, 6")
    a(f"s_lshl_b32 s12, s{S_WAVE}, 4")
    a(f"s_add_u32 s11, s11, s12")
    a("v_lshrrev_b32 v2, 3, v0")
    a("v_add_u32 v2, s11, v2")
    a("v_mul_u32_u24 v3, 896, v2")
    a("v_and_b32 v4, 7, v0")
    a("v_lshl_add_u32 v3, v4, 4, v3")
    a("s_waitcnt lgkmcnt(0)")
    srd(a, SRD_X, P_X, 2048 * 896)
    srd(a, SRD_WS, P_WS, WS_SIZE)
    a(f"s_mov_b32 s11, {8*896}")
    for ps in range(2):
        for j in range(7):
            so = "0" if ps == 0 else "s11"
            vm.issue(('x', ps), f"buffer_load_dwordx4 v[{112+28*ps+4*j}:{115+28*ps+4*j}], v3, s[{SRD_X}:{SRD_X+3}], {so} offen offset:{128*j}")
    a(f"s_cmp_gt_u32 s{S_WAVE}, 1")
    a("s_cbranch_scc1 L_h_noreset")
    a(f"s_cmp_eq_u32 s{S_WAVE}, 0")
    a("s_cselect_b32 s11, -1, 0")
    a("s_mov_b32 s12, 1024")
    a("s_cmov_b32 s12, 896")
    a(f"s_mov_b32 s13, {WS_FLAG:#x}")
    a(f"s_cmov_b32 s13, {WS_AGG:#x}")
    a("s_mul_i32 s14, s12, s72")
    a("s_add_u32 s13, s13, s14")
    for k in range(4): a(f"v_mov_b32 v{8+k}, s11")
    a("v_lshlrev_b32 v12, 4, v0")
    a("v_cmp_gt_u32 vcc, s12, v12")
    a("s_and_saveexec_b64 s[14:15], vcc")
    a(f"buffer_store_dwordx4 v[8:11], v12, s[{SRD_WS}:{SRD_WS+3}], s13 offen sc1")
    a("s_mov_b64 exec, s[14:15]")
    a.label("L_h_noreset")
    a("s_nop 1")
    a("v_lshlrev_b32 v2, 3, v2")
    a("s_mov_b32 s12, 0xffff0000")
    def fin(dst):
        a("v_add_f32 v8, v8, v9")
        a("v_add_f32 v10, v10, v11")
        a(f"v_add_f32 v{dst}, v8, v10")
        a(f"v_add_f32_dpp v{dst}, v{dst}, v{dst} quad_perm:[1,0,3,2] row_mask:0xf bank_mask:0xf")
        a(f"v_add_f32_dpp v{dst}, v{dst}, v{dst} quad_perm:[2,3,0,1] row_mask:0xf bank_mask:0xf")
        a(f"v_add_f32_dpp v{dst}, v{dst}, v{dst} row_half_mirror row_mask:0xf bank_mask:0xf")
        a(f"v_mul_f32 v{dst}, 0x3b124925, v{dst}")
    for ps in range(2):
        vm.wait(('x', ps))
        src = 112 + 28 * ps
        for k in range(28):
            a(f"v_lshlrev_b32 v{48+2*k}, 16, v{src+k}")
            a(f"v_and_b32 v{49+2*k}, s12, v{src+k}")
        a("v_pk_add_f32 v[8:9], v[48:49], v[52:53]")
        a("v_pk_add_f32 v[10:11], v[50:51], v[54:55]")
        for k in range(4, 28): a(f"v_pk_add_f32 v[{8+2*(k%2)}:{9+2*(k%2)}], v[{8+2*(k%2)}:{9+2*(k%2)}], v[{48+2*k}:{49+2*k}]")
        fin(12)
        for k in range(28): a(f"v_pk_add_f32 v[{48+2*k}:{49+2*k}], v[{48+2*k}:{49+2*k}], v[12:13] op_sel_hi:[1,0] neg_lo:[0,1] neg_hi:[0,1]")
        for k in range(2): a(f"v_pk_mul_f32 v[{8+2*k}:{9+2*k}], v[{48+2*k}:{49+2*k}], v[{48+2*k}:{49+2*k}]")
        for k in range(2, 28): a(f"v_pk_fma_f32 v[{8+2*(k%2)}:{9+2*(k%2)}], v[{48+2*k}:{49+2*k}], v[{48+2*k}:{49+2*k}], v[{8+2*(k%2)}:{9+2*(k%2)}]")
        fin(13)
        o = 14 + 2 * ps
        round_bf16(a, o, 12)
        round_bf16(a, 13, 13)
        a("v_add_f32 v13, 0x3727c5ac, v13")
        round_bf16(a, 13, 13)
        a("v_sqrt_f32 v13, v13")
        round_bf16(a, 13, 13)
        a(f"v_rcp_f32 v{o+1}, v13")
        a("v_cmp_eq_u32 vcc, 0, v4")
        a("s_and_saveexec_b64 s[14:15], vcc")
        a(f"s_mov_b32 s11, {WS_STATS:#x}")
        vm.issue('st', f"buffer_store_dwordx2 v[{o}:{o+1}], v2, s[{SRD_WS}:{SRD_WS+3}], s11 offen offset:{64*ps} sc1")
        a("s_mov_b64 exec, s[14:15]")
    a("s_waitcnt vmcnt(0)")
    a("v_mov_b32 v8, 0")
    a("v_mov_b32 v9, 1")
    a("s_mov_b64 exec, 1")
    a(f"global_atomic_add v8, v9, s[{P_DBG}:{P_DBG+1}] sc1")
    a("s_mov_b64 exec, -1")
    ts(1)
    ts.dump(8, 9)
    a("s_endpgm")
    a.label("L_h_pf")
    a("v_lshlrev_b32 v2, 4, v0")
    a(f"s_lshl_b32 s11, s{S_W4}, 10")
    a("v_add_u32 v2, s11, v2")
    if cfg.cpf:
        a("s_getpc_b64 s[60:61]")
        a.label("L_pc")
        a(f"s_sub_u32 s60, s60, L_pc-{KNAME}")
        a("s_subb_u32 s61, s61, 0")
        a("s_lshl_b32 s11, s73, 12")
        a("v_add_u32 v3, s11, v2")
        for k in range(2):
            a(f"v_min_u32 v4, L_exit-{KNAME}-12, v3")
            a(f"global_load_dwordx4 v[24:27], v4, s[60:61]")
            a(f"v_add_u32 v3, 16384, v3")
    a("s_waitcnt lgkmcnt(0)")
    srd(a, SRD_WS, P_WS, WS_SIZE)
    if cfg.hpf:
        for (ptr, nbytes, srdn) in ((P_CRE, 448 * 896, 48), (P_CIM, 448 * 896, 52), (P_WD, 1792 * 896, 56)):
            srd(a, srdn, ptr, nbytes)
        def sweep(name, srds, qbytes, first, count):
            n8 = -(-qbytes // (8 * 4096))
            n = 8 * n8
            a(f"s_mul_i32 s12, s73, {qbytes}")
            a(f"s_add_u32 s13, s{S_XCD}, {first}")
            a("s_and_b32 s13, s13, 7")
            a(f"s_mul_i32 s13, s13, {n8}")
            a("s_mov_b32 s14, 0")
            a.label(name)
            a("s_lshl_b32 s11, s13, 12")
            a("s_add_u32 s11, s11, s12")
            for k, sr in enumerate(srds):
                a(f"buffer_load_dwordx4 v[{16+4*k}:{19+4*k}], v2, s[{sr}:{sr+3}], s11 offen")
            a("s_add_u32 s13, s13, 1")
            a(f"s_cmp_eq_u32 s13, {n}")
            a("s_cselect_b32 s13, 0, s13")
            a("s_add_u32 s14, s14, 1")
            a(f"s_cmp_lt_u32 s14, {n8 * count}")
            a(f"s_cbranch_scc1 {name}")
        if cfg.hpf == 4:
            sweep("L_h_p0", [48, 52], 448 * 896 // 4, 0, 8)
        else:
            sweep("L_h_p1", [48, 52], 448 * 896 // 4, 0, 1)
            sweep("L_h_p2", [56], 1792 * 896 // 4, 0, 1)
        ts(2)
        if cfg.hpf == 3:
            sweep("L_h_p3", [48, 52], 448 * 896 // 4, 1, 7)
            ts(3)
    ts.dump(8, 9)
    a("s_endpgm")

def spin_check(a, name, load_text_list, cond_fn, sleep=1):
    lo, done = a.newlabel(name + "_spin"), a.newlabel(name + "_ok")
    a(f"s_mov_b32 s73, 0")
    a.label(lo)
    cond_fn()
    a(f"s_cbranch_scc1 {done}")
    a("s_add_u32 s73, s73, 1")
    a(f"s_cmp_ge_u32 s73, {SPIN_MAX}")
    a(f"s_cbranch_scc1 {done}")
    a(f"s_sleep {sleep}")
    for t in load_text_list: a(t)
    a("s_waitcnt vmcnt(0)")
    a(f"s_branch {lo}")
    a.label(done)
    a("s_nop 4")

def sspin(a, name, loads, cond_fn, sleep=1):
    lo, done = a.newlabel(name + "_spin"), a.newlabel(name + "_ok")
    a("s_mov_b32 s73, 0")
    a.label(lo)
    for t in loads: a(t)
    a("s_waitcnt lgkmcnt(0)")
    cond_fn()
    a(f"s_cbranch_scc1 {done}")
    a("s_add_u32 s73, s73, 1")
    a(f"s_cmp_lt_u32 s73, {SPIN_MAX}")
    if sleep: a(f"s_sleep {sleep}")
    a(f"s_cbranch_scc1 {lo}")
    a.label(done)

def flag_index(a, d, t, grp):
    a(f"s_mul_i32 s{t}, s{S_NS}, 37")
    a(f"s_lshr_b32 s{t}, s{t}, {8 if grp == 7 else 9}")
    a(f"s_mul_i32 s{t}, s{t}, {32 - grp}")
    a(f"s_add_u32 s{d}, s{t}, s{S_NS}")
    a(f"s_lshl_b32 s{d}, s{d}, 2")

def interleave(a, prim, fill, per):
    fill = list(fill)
    for p in prim:
        p()
        for _ in range(per):
            if fill: a(fill.pop(0))
    for f in fill: a(f)

def p2_rot(a, cfg, d_ffn, d_blk, d_flip):
    if not cfg.rot:
        for d in (d_ffn, d_blk, d_flip): a(f"s_mov_b32 s{d}, 0")
        return
    if cfg.rot == 2:
        a(f"s_and_b32 s11, s{S_SLOT}, 3")
        a(f"s_lshl_b32 s{d_ffn}, s11, 1")
        for d in (d_blk, d_flip): a(f"s_mov_b32 s{d}, 0")
        return
    a(f"s_and_b32 s11, s{S_SLOT}, 3")
    a("s_lshl_b32 s11, s11, 1")
    a(f"s_add_u32 s11, s11, s{S_NT}")
    a("s_cmp_ge_u32 s11, 7")
    a("s_cselect_b32 s13, 7, 0")
    a(f"s_sub_u32 s{d_ffn}, s11, s13")
    a(f"s_lshr_b32 s11, s{S_NT}, 1")
    a(f"s_and_b32 s13, s{S_SLOT}, 3")
    a("s_add_u32 s11, s11, s13")
    a("s_mul_i32 s13, s11, 43")
    a("s_lshr_b32 s13, s13, 7")
    a("s_mul_i32 s13, s13, 3")
    a(f"s_sub_u32 s{d_blk}, s11, s13")
    a(f"s_and_b32 s{d_flip}, s{S_NT}, 1")

def slot(reg, n): return R[reg] + 2048 * n
SA = [slot(1, n) for n in range(6)]; SB = [slot(2, n) for n in range(6)]; SC = [slot(0, n) for n in range(6)]
WSLOT = {}
for n in range(6): WSLOT[n] = SA[n]; WSLOT[6 + n] = SB[n]
for n in range(4): WSLOT[12 + n] = SC[n]; WSLOT[16 + n] = SA[n]; WSLOT[20 + n] = SB[n]
WSLOT.update({24: SA[4], 25: SA[5], 26: SB[4], 27: SB[5]})
HTS = SC[4]
PH1, PH2, GA, FXA, SD = SC[0], SC[4], SB[0], SA[0], SC[0]

class Rec:
    def __init__(self): self.L = []
    def __call__(self, t): self.L.append(t)

def gen_loader(a, cfg, ts):
    a.label("L_loader")
    a("s_setprio 3")
    vm = VM(a)
    vXe, vXo, vW, vB = 1, 2, 3, 4
    vFv, vP, vO, vPQ = 5, 6, 7, 8
    vWd, vCe, vCo, vCh = 9, 10, 11, 12
    vRf, vRh = 13, 14
    vA, vC = 24, 25
    vT = 15
    ACC, CA, RD = 27, 28, 44
    STG = 64
    CF = 144
    SACC = 80
    XRAW = CF + 64
    KT = 128
    KP = XRAW + 12
    SP = ['', ' sc1'][cfg.spol]
    sMX, sMW, sMB, sMP = 72, 74, 75, 70
    sPerm, sSX, sSW = 68, 69, 15
    sRF = 14
    AP = ['', ' sc1', ' sc1 nt', ' sc0 sc1', ' sc0', ' nt'][cfg.apol]
    OP = ['', ' sc1', ' nt', ' sc1 nt'][cfg.opol]
    polx = " nt" if cfg.polx else ""
    polw = " nt" if cfg.polw else ""
    a(f"v_lshrrev_b32 v{vA}, 3, v0")
    a(f"v_and_b32 v{vC}, 7, v0")
    a(f"v_lshrrev_b32 v{vT+2}, 1, v{vA}")
    a(f"s_lshl_b32 s11, s{S_W4}, 4")
    a(f"v_add_u32 v{vT}, s11, v{vA}")
    a(f"v_mul_u32_u24 v{vW}, 3584, v{vT}")
    a(f"v_and_b32 v{vT+4}, 1, v{vT+2}")
    a(f"v_lshlrev_b32 v{vT+4}, 2, v{vT+4}")
    a(f"v_xor_b32 v{vT+4}, v{vC}, v{vT+4}")
    a(f"v_lshl_add_u32 v{vW}, v{vT+4}, 4, v{vW}")
    a(f"s_lshl_b32 s11, s{S_NS}, 7")
    a(f"v_add_u32 v{vW}, s11, v{vW}")
    a(f"s_lshl_b32 s11, s{S_MT}, 8")
    a(f"s_lshl_b32 s12, s{S_W4}, 6")
    a("s_add_u32 s11, s11, s12")
    a(f"v_lshrrev_b32 v{vT}, 2, v{vA}")
    a(f"v_and_b32 v{vT+1}, 3, v{vA}")
    a(f"v_lshl_add_u32 v{vT}, v{vT}, 4, v{vT+1}")
    a(f"v_add_u32 v{vT}, s11, v{vT}")
    a(f"v_mul_u32_u24 v{vXe}, 896, v{vT}")
    a(f"v_xor_b32 v{vT+3}, v{vC}, v{vT+2}")
    a(f"v_lshl_add_u32 v{vXe}, v{vT+3}, 4, v{vXe}")
    a(f"v_xor_b32 v{vXo}, 64, v{vXe}")
    a(f"s_and_b32 s12, s{S_W4}, 1")
    a(f"s_lshl_b32 s11, s{S_NS}, 4")
    a(f"s_lshl_b32 s13, s12, 3")
    a("s_add_u32 s11, s11, s13")
    a(f"v_add_u32 v{vT}, s11, v{vA}")
    a(f"v_mul_u32_u24 v{vB}, 896, v{vT}")
    a(f"v_lshl_add_u32 v{vB}, v{vT+3}, 4, v{vB}")
    a("s_lshl_b32 s13, s12, 6")
    a(f"v_xor_b32 v{vB}, s13, v{vB}")
    a(f"s_lshl_b32 s{sMX}, s{S_W4}, 13")
    a(f"s_lshl_b32 s{sMW}, s{S_W4}, 11")
    a(f"s_lshl_b32 s{sMB}, s{S_W4}, 10")
    a(f"s_mul_i32 s{sMP}, s{S_W4}, {Q}")
    perms = cfg.perms
    words = [sum(p[k] << (4 * k) for k in range(7)) for p in perms]
    ng = len(words)
    a(f"s_mov_b32 s{sPerm}, {words[0]:#x}")
    if ng > 1:
        if cfg.slab:
            a(f"s_add_u32 s11, s{S_SLOT}, s{S_XCD}")
        else:
            a(f"s_and_b32 s11, s{S_SLOT}, 3")
            a(f"s_add_u32 s11, s11, s{S_NT}")
        if ng == 3:
            a("s_mul_i32 s13, s11, 43")
            a("s_lshr_b32 s13, s13, 7")
            a("s_mul_i32 s13, s13, 3")
            a("s_sub_u32 s11, s11, s13")
        else:
            a(f"s_and_b32 s11, s11, {ng-1}")
        for g in range(1, ng):
            a(f"s_cmp_eq_u32 s11, {g}")
            a(f"s_cmov_b32 s{sPerm}, {words[g]:#x}")
    ts.x(1, 1)
    a("s_waitcnt lgkmcnt(0)")
    ts.x(1, 2)
    if cfg.tlb:
        a(f"v_mov_b32 v40, s{P_X}")
        a(f"v_mov_b32 v41, s{P_X+1}")
        for ln, p in enumerate([P_WG, P_WU, P_BRE, P_BIM, P_WD, P_CRE, P_CIM, P_WS][:cfg.tlb], 1):
            a(f"v_writelane_b32 v40, s{p}, {ln}")
            a(f"v_writelane_b32 v41, s{p+1}, {ln}")
        a(f"s_mov_b64 exec, {(1 << (cfg.tlb + 1)) - 1:#x}")
        a("global_load_dword v62, v[40:41], off")
        a("s_mov_b64 exec, -1")
    srd(a, SRD_A, P_WG, 448 * 3584)
    srd(a, SRD_X, P_X, 2048 * 896)
    srd(a, SRD_B, P_WU, 448 * 3584)
    a(f"s_cmp_ge_u32 s{S_W4}, 2")
    srd_sel(a, SRD_C, P_BIM, P_BRE, 448 * 896)

    thr = [None]
    def dma(vm, tag, voff, srdn, sbase, soff, m0base, m0off, pol=""):
        a(f"s_add_u32 m0, s{m0base}, {m0off}")
        a(f"s_add_u32 s11, s{sbase}, {soff}")
        if thr[0] is not None and len(vm.q) > thr[0]:
            a(f"s_waitcnt vmcnt({thr[0]})")
            vm.q = vm.q[-thr[0]:]
        vm.issue(tag, f"buffer_load_dwordx4 v{voff}, s[{srdn}:{srdn+3}], s11 offen{pol} lds")
    def issue_ops(s):
        r = R[s % 3]
        ops = []
        def pre():
            a(f"s_bfe_u32 s{sSX}, s{sPerm}, {(4 << 16) | (4 * s):#x}")
            a(f"s_mul_i32 s{sSW}, s{sSX}, {64*3584}")
            a(f"s_lshl_b32 s{sSX}, s{sSX}, 7")
        def mk(*args): return lambda: dma(vm, ('st', s), *args)
        L = []
        for i in range(2): L.append(mk(vW, SRD_A, sSW, i * 8 * 3584, sMW, r + OFF_WG + i * 1024, polw))
        for j in range(4): L.append(mk(vXo if j & 1 else vXe, SRD_X, sSX, (32 * (j >> 2) + 4 * (j & 3)) * 896, sMX, r + j * 1024, polx))
        for i in range(2): L.append(mk(vW, SRD_B, sSW, i * 8 * 3584, sMW, r + OFF_WU + i * 1024, polw))
        for j in range(4, 8): L.append(mk(vXo if j & 1 else vXe, SRD_X, sSX, (32 * (j >> 2) + 4 * (j & 3)) * 896, sMX, r + j * 1024, polx))
        L.append(mk(vB, SRD_C, sSX, 0, sMB, r + OFF_BB, polw))
        first = L[0]
        L[0] = lambda: (pre(), first())
        return L
    SRD_WD, SRD_CC, sBlk, sFlip, P_DSK2 = 32, 24, 16, 17, 38
    def w_ops(ps):
        L = []
        for p in ps:
            for n in range(2):
                def op(p=p, n=n):
                    if n == 0:
                        a(f"s_add_u32 s12, s{sRF}, {p // 4}")
                        a("s_cmp_ge_u32 s12, 7")
                        a("s_cselect_b32 s13, 7, 0")
                        a("s_sub_u32 s12, s12, s13")
                        a(f"s_mul_i32 s12, s12, {64*896}")
                    if 12 <= p < 22:
                        d = STG + (p - 12) * 8 + 4 * n
                        a(f"s_add_u32 s11, s12, {((p % 4) * 16 + 8 * n) * 896}")
                        vm.issue(('w', p), f"buffer_load_dwordx4 v[{d}:{d+3}], v{vWd}, s[{SRD_WD}:{SRD_WD+3}], s11 offen")
                    else:
                        dma(vm, ('w', p), vWd, SRD_WD, 12, ((p % 4) * 16 + 8 * n) * 896, sMP, WSLOT[p] + n * 1024)
                L.append(op)
        return L
    def cf_ops(b, base):
        L = []
        for n in range(8):
            def op(n=n):
                if n == 0: a(f"s_mov_b32 s12, {b*128}")
                dst = base + n * 1024 if b < 2 else (SA[4], SB[4])[n >> 2] + (n & 3) * 1024
                dma(vm, ('c', b), vCo if n & 1 else vCe, SRD_CC, 12, 8 * n * 896, sMP, dst)
            L.append(op)
        return L
    def ch_ops(base):
        L = []
        for n in range(4):
            def op(n=n):
                if n == 0: a("s_mov_b32 s12, 0")
                dma(vm, ('c', 3), vCh, SRD_CC, 12, 16 * n * 896, sMP, base + n * 1024)
            L.append(op)
        return L
    def cf_read(b, base):
        if b < 2:
            a(f"s_add_u32 s11, s{sMP}, {base}")
            a("s_mov_b32 s12, s11")
        else:
            a(f"s_add_u32 s12, s{sMP}, {SA[4]}")
            a(f"s_add_u32 s13, s{sMP}, {SB[4] - 4096}")
            a(f"s_cmp_ge_u32 s{S_W4}, 2")
            a("s_cselect_b32 s11, s13, s12")
            a("s_cselect_b32 s12, s12, s13")
        vm.wait(('c', b))
        for ks in range(4):
            for lc in range(2):
                t = vT + lc
                a(f"v_xor_b32 v{t}, {32*ks + 4096*lc}, v{vRf}")
                a(f"v_add_u32 v{t}, s{11+lc}, v{t}")
                d = CF + (4 * b + ks) * 8 + 4 * lc
                a(f"ds_read_b128 v[{d}:{d+3}], v{t}")
    def ch_read(base):
        a(f"s_add_u32 s11, s{sMP}, {base}")
        vm.wait(('c', 3))
        for lc in range(2):
            a(f"v_xor_b32 v{vT+lc}, {2048*lc}, v{vRh}")
            a(f"v_add_u32 v{vT+lc}, s11, v{vT+lc}")
            for ks in range(2):
                d = CF + (12 + ks) * 8 + 4 * lc
                a(f"ds_read_b128 v[{d}:{d+3}], v{vT+lc} offset:{ks*32}")
    def w_write(ps):
        vm.wait(('w', ps[-1]))
        base = WSLOT[ps[0]]
        a(f"v_add_u32 v{vT+4}, {base}, v{vPQ}")
        for p in ps:
            for n in range(2):
                d = STG + (p - 12) * 8 + 4 * n
                a(f"ds_write_b128 v{vT+4}, v[{d}:{d+3}] offset:{WSLOT[p] - base + 1024*n}")
    def colsum_reads(s):
        r = R[s % 3]
        a(f"s_add_u32 s11, s{sMW}, {r + OFF_WG}")
        a(f"v_add_u32 v{vT}, s11, v{vP}")
        a(f"s_add_u32 s11, s{sMB}, {r + OFF_BB}")
        a(f"v_add_u32 v{vT+1}, s11, v{vP}")
        a(f"ds_read_b128 v[{RD}:{RD+3}], v{vT}")
        a(f"ds_read_b128 v[{RD+4}:{RD+7}], v{vT} offset:1024")
        a(f"ds_read_b128 v[{RD+8}:{RD+11}], v{vT} offset:8192")
        a(f"ds_read_b128 v[{RD+12}:{RD+15}], v{vT} offset:9216")
        a(f"ds_read_b128 v[{RD+16}:{RD+19}], v{vT+1}")
    def colsum_ops():
        L = ["s_waitcnt lgkmcnt(0)"]
        for n in range(4):
            for d in range(4):
                w = RD + 4 * n + d
                ac = CA + (n >> 1) * 8 + 2 * d
                L.append(f"v_lshlrev_b32 v{vT+2}, 16, v{w}")
                L.append(f"v_and_b32 v{vT+3}, s71, v{w}")
                L.append(f"v_add_f32 v{ac}, v{ac}, v{vT+2}")
                L.append(f"v_add_f32 v{ac+1}, v{ac+1}, v{vT+3}")
        for d in range(4):
            w = RD + 16 + d
            L.append(f"v_lshlrev_b32 v{vT+2}, 16, v{w}")
            L.append(f"v_and_b32 v{vT+3}, s71, v{w}")
            L.append(f"v_add_f32 v{vT+2}, v{vT+2}, v{vT+3}")
            L.append(f"v_add_f32 v{ACC}, v{ACC}, v{vT+2}")
        return L

    stage_ops = {}
    def tok_ops(toks):
        L = []
        for t in toks:
            if t[0] == 's':
                st = int(t[1])
                if st not in stage_ops: stage_ops[st] = issue_ops(st)
                lo, hi = (0, 13) if ':' not in t else map(int, t.split(':')[1].split('-'))
                L += stage_ops[st][lo:hi]
            elif t[0] == 'w': L += w_ops([int(t[1:])])
            elif t == 'c0': L += cf_ops(0, SA[0])
            elif t == 'c1': L += cf_ops(1, SB[0])
            elif t == 'c2': L += [lambda: a("s_waitcnt lgkmcnt(0)")] + cf_ops(2, SA[0])
            elif t == 'ch': L += ch_ops(SA[4])
            else: L.append(lambda t=t: special(t))
        return L
    def run_tokens(toks):
        for o in tok_ops(toks): o()
    def special(t):
        if True:
            if t == 'r0':
                cf_read(0, SA[0]); ch_read(SA[4])
            elif t == 'put':
                vm.wait('stats')
                a(f"s_lshl_b32 s11, s{S_W4}, 9")
                a(f"s_add_u32 s11, s11, {STATS_L}")
                a(f"v_lshl_add_u32 v{vT+4}, v0, 3, s11")
                a(f"ds_write_b64 v{vT+4}, v[20:21]")
                a(f"v_lshlrev_b32 v{vT+4}, 3, v0")
                a(f"v_add_u32 v{vT+4}, {ST2_L}, v{vT+4}")
                a(f"ds_write_b64 v{vT+4}, v[22:23]")
            elif t == 'e':
                a(f"s_add_u32 s12, s41, {16*896}")
                vm.issue('e', f"buffer_load_dwordx4 v[{XRAW}:{XRAW+3}], v{XRAW+9}, s[{SRD_X}:{SRD_X+3}], s41 offen")
                vm.issue('e', f"buffer_load_dwordx4 v[{XRAW+4}:{XRAW+7}], v{XRAW+9}, s[{SRD_X}:{SRD_X+3}], s12 offen")
                vm.issue('e', f"global_load_ushort v{XRAW+8}, v{XRAW+10}, s[{P_DSK2}:{P_DSK2+1}]")
            elif t == 'k':
                ssm_const_load(a, vm, KT)
            elif t == 'init':
                a(f"v_mov_b32 v26, 0")
                vm.issue('init', f"global_load_dword v5, v26, s[{P_DBG}:{P_DBG+1}] sc1")
            elif t == 'fetch':
                vm.wait('init')
                def cond():
                    a(f"v_readfirstlane_b32 s11, v5")
                    a(f"s_cmp_ge_u32 s11, {INIT_N}")
                spin_check(a, "L_init", [f"global_load_dword v5, v26, s[{P_DBG}:{P_DBG+1}] sc1"], cond, 8)
                a(f"s_lshl_b32 s11, s{S_MT}, 8")
                a(f"s_lshl_b32 s12, s{S_W4}, 6")
                a("s_add_u32 s11, s11, s12")
                a(f"v_add_lshl_u32 v5, v0, s11, 3")
                a(f"s_lshl_b32 s12, s{S_M64}, 6")
                a(f"v_add_lshl_u32 v26, v0, s12, 3")
                a(f"s_mov_b32 s11, {WS_STATS:#x}")
                vm.issue('stats', f"buffer_load_dwordx2 v[20:21], v5, s[{SRD_WS}:{SRD_WS+3}], s11 offen sc1")
                vm.issue('stats', f"buffer_load_dwordx2 v[22:23], v26, s[{SRD_WS}:{SRD_WS+3}], s11 offen sc1")
            else: raise ValueError(t)
    win = cfg.win
    run_tokens(["s0"])
    ts(1)
    ts.x(1, 6)
    run_tokens(win.get(-1, []))
    a("s_setprio 0")
    a(f"s_and_b32 s12, s{S_W4}, 1")
    a(f"v_lshlrev_b32 v{vP}, 4, v0")
    a(f"v_add_u32 v{vPQ}, s{sMP}, v{vP}")
    a(f"s_mul_i32 s14, s{S_W4}, 448")
    a(f"v_add_u32 v{vT}, s14, v{vA}")
    a(f"v_mul_u32_u24 v{vWd}, 896, v{vT}")
    a(f"v_lshl_add_u32 v{vWd}, v{vT+4}, 4, v{vWd}")
    a(f"s_lshl_b32 s14, s{S_NT}, 7")
    a(f"v_add_u32 v{vWd}, s14, v{vWd}")
    a(f"s_lshl_b32 s14, s{S_NT}, 6")
    a(f"v_add_u32 v{vT}, s14, v{vA}")
    a(f"v_mul_u32_u24 v{vCe}, 896, v{vT}")
    a(f"v_lshl_add_u32 v{vCe}, v{vT+3}, 4, v{vCe}")
    a("s_lshl_b32 s13, s12, 9")
    a(f"v_add_u32 v{vCe}, s13, v{vCe}")
    a(f"v_xor_b32 v{vCo}, 64, v{vCe}")
    a(f"v_lshrrev_b32 v{vT}, 2, v0")
    a(f"v_add_u32 v{vT}, s14, v{vT}")
    a(f"v_mul_u32_u24 v{vCh}, 896, v{vT}")
    a(f"v_and_b32 v{vT+1}, 3, v0")
    a(f"v_lshl_add_u32 v{vCh}, v{vT+1}, 4, v{vCh}")
    a("s_lshl_b32 s13, s12, 6")
    a("s_add_u32 s13, s13, 384")
    a(f"v_add_u32 v{vCh}, s13, v{vCh}")
    a("s_mov_b32 s71, 0xffff0000")
    for k in range(17): a(f"v_mov_b32 v{ACC+k}, 0")
    srd(a, SRD_WS, P_WS, WS_SIZE)
    a(f"s_cmp_ge_u32 s{S_W4}, 2")
    srd_sel(a, SRD_CC, P_CIM, P_CRE, 448 * 896)
    a(f"s_mov_b64 s[{P_DSK2}:{P_DSK2+1}], s[{P_DSK}:{P_DSK+1}]")
    srd(a, SRD_WD, P_WD, 1792 * 896)
    p2_rot(a, cfg, sRF, sBlk, sFlip)
    a(f"s_lshl_b32 s11, s{S_M64}, 1")
    a("s_add_u32 s40, s11, s12")
    a("s_lshl_b32 s12, s40, 5")
    a(f"v_lshrrev_b32 v{vT}, 2, v0")
    a(f"v_add_u32 v{vT}, s12, v{vT}")
    a(f"v_mul_u32_u24 v{vT}, 896, v{vT}")
    a(f"v_lshl_add_u32 v{XRAW+9}, v{vT+1}, 4, v{vT}")
    a(f"v_lshrrev_b32 v{vT+2}, 5, v0")
    a(f"v_lshl_add_u32 v{vT}, v{vT+2}, 4, s12")
    a(f"s_lshr_b32 s13, s{S_W4}, 1")
    a("s_lshl_b32 s12, s13, 5")
    a(f"s_lshl_b32 s11, s{S_NT}, 6")
    a("s_add_u32 s11, s11, s12")
    a("s_lshl_b32 s41, s11, 1")
    a(f"v_and_b32 v{vT+3}, 31, v0")
    a(f"v_add_u32 v{vT+1}, s11, v{vT+3}")
    a(f"v_mul_u32_u24 v{vT}, 448, v{vT}")
    a(f"v_add_lshl_u32 v{vO}, v{vT}, v{vT+1}, 2")
    a(f"v_lshlrev_b32 v{XRAW+10}, 1, v{vT+1}")
    a(f"v_bfe_u32 v{vT}, v0, 1, 3")
    a(f"v_xor_b32 v{vT}, v{vT}, v{vT+2}")
    a(f"v_lshlrev_b32 v{vT}, 4, v{vT}")
    a(f"v_lshl_add_u32 v{vRf}, v{vT+3}, 7, v{vT}")
    a("s_lshl_b32 s12, s13, 12")
    a(f"v_add_u32 v{vRf}, s12, v{vRf}")
    a(f"v_lshlrev_b32 v{vT}, 4, v{vT+2}")
    a(f"v_lshl_add_u32 v{vRh}, v{vT+3}, 6, v{vT}")
    a("s_lshl_b32 s12, s13, 11")
    a(f"v_add_u32 v{vRh}, s12, v{vRh}")
    a(f"v_bfe_u32 v{vT}, v0, 4, 1")
    a(f"v_lshlrev_b32 v{vT+1}, 2, v{vT}")
    a(f"v_xor_b32 v{vC}, v{vC}, v{vT+1}")
    a(f"v_lshlrev_b32 v{vC}, 5, v{vC}")
    a(f"v_lshl_add_u32 v{vC}, v{vT}, 9, v{vC}")
    a(f"v_lshl_add_u32 v{vC}, v{vT+2}, 8, v{vC}")
    a(f"s_add_u32 s11, s{sMB}, {CP_L}")
    a(f"v_add_u32 v{vC}, s11, v{vC}")
    a(f"s_lshl_b32 s11, s{S_W4}, 5")
    a(f"s_add_u32 s11, s11, {C_L + 512}")
    a(f"v_lshl_add_u32 v{vA}, v{vA}, 2, s11")
    ts.x(1, 8)
    LR, LI, CR, CI, L16R, L16I, PWR, PWI, L64R, L64I, LWR, LWI, W0R = [KP + k for k in range(13)]
    vTW, vTR, vCB = KP + 16, KP + 17, KP + 18
    kc = Rec()
    K = KT
    ssm_const_calc(kc, K, LR, LI, CR, CI)
    csq(kc, L16R, L16I, LR, LI, K)
    for _ in range(3): csq(kc, L16R, L16I, L16R, L16I, K)
    def powsel(dr, di, br, bi, bit, src):
        cmul(kc, K + 1, K + 2, dr, di, br, bi)
        kc(f"v_and_b32 v{K}, {bit}, v{src}")
        kc(f"v_cmp_ne_u32 vcc, 0, v{K}")
        kc(f"v_cndmask_b32 v{dr}, v{dr}, v{K+1}, vcc")
        kc(f"v_cndmask_b32 v{di}, v{di}, v{K+2}, vcc")
    kc(f"v_mov_b32 v{PWR}, v{CR}"); kc(f"v_mov_b32 v{PWI}, v{CI}")
    powsel(PWR, PWI, L16R, L16I, 32, 0)
    csq(kc, K + 14, K + 15, L16R, L16I, K)
    powsel(PWR, PWI, K + 14, K + 15, 16, 0)
    csq(kc, L64R, L64I, K + 14, K + 15, K)
    kc(f"v_mov_b32 v{K+10}, s{S_W4}")
    kc(f"v_mov_b32 v{LWR}, 1.0"); kc(f"v_mov_b32 v{LWI}, 0")
    powsel(LWR, LWI, L64R, L64I, 1, K + 10)
    csq(kc, K + 14, K + 15, L64R, L64I, K)
    powsel(LWR, LWI, K + 14, K + 15, 2, K + 10)
    csq(kc, K + 14, K + 15, K + 14, K + 15, K)
    kc(f"v_lshrrev_b32 v{K+10}, 4, v0")
    kc(f"v_sub_u32 v{K+10}, s{S_MT}, v{K+10}")
    kc(f"v_add_u32 v{K+11}, -5, v{K+10}")
    kc(f"v_add_u32 v{K+10}, -1, v{K+10}")
    kc(f"v_mov_b32 v{W0R}, 1.0"); kc(f"v_mov_b32 v{W0R+1}, 0")
    kc(f"v_mov_b32 v{W0R+2}, 1.0"); kc(f"v_mov_b32 v{W0R+3}, 0")
    for b in range(3):
        powsel(W0R, W0R + 1, K + 14, K + 15, 1 << b, K + 10)
        if b < 2: powsel(W0R + 2, W0R + 3, K + 14, K + 15, 1 << b, K + 11)
        if b < 2: csq(kc, K + 14, K + 15, K + 14, K + 15, K)
    kc(f"s_add_u32 s36, s{sMP}, {HTS}")
    kc(f"v_bfe_u32 v{K}, v0, 4, 1")
    kc(f"v_lshrrev_b32 v{K+1}, 5, v0")
    kc(f"v_lshl_add_u32 v{K+2}, v{K}, 1, v{K+1}")
    kc(f"v_and_b32 v{K+3}, 15, v0")
    kc(f"v_and_b32 v{vTW}, 6, v{K+3}")
    kc(f"v_lshlrev_b32 v{vTW}, 4, v{vTW}")
    kc(f"v_lshlrev_b32 v{K+4}, 5, v{K+2}")
    kc(f"v_xor_b32 v{vTW}, v{vTW}, v{K+4}")
    kc(f"v_lshl_add_u32 v{vTW}, v{K+3}, 7, v{vTW}")
    kc(f"v_add_u32 v{vTW}, s36, v{vTW}")
    kc(f"v_lshlrev_b32 v{vCB}, 2, v{K+3}")
    kc(f"v_add_u32 v{vCB}, {C_L + 512}, v{vCB}")
    kc(f"v_bfe_u32 v{K+4}, v0, 2, 2")
    kc(f"v_lshl_add_u32 v{K+5}, v{K+1}, 3, v{K+4}")
    kc(f"v_lshlrev_b32 v{vTR}, 7, v{K+5}")
    kc(f"v_lshrrev_b32 v{K+4}, 1, v{K+4}")
    kc(f"v_xor_b32 v{K+4}, v{K+4}, v0")
    kc(f"v_and_b32 v{K+4}, 1, v{K+4}")
    kc(f"v_lshl_add_u32 v{vTR}, v{K+4}, 5, v{vTR}")
    kc(f"v_lshl_add_u32 v{vTR}, v{K}, 4, v{vTR}")
    kc(f"v_bfe_u32 v{K+4}, v0, 1, 1")
    kc(f"v_lshl_add_u32 v{vTR}, v{K+4}, 3, v{vTR}")
    kc(f"v_add_u32 v{vTR}, s36, v{vTR}")
    kc(f"s_lshl_b32 s36, s{S_W4}, 9")
    kc(f"s_add_u32 s36, s36, {STATS_L}")
    kc(f"v_lshl_add_u32 v{KP+19}, v{K+2}, 7, s36")
    vStS = KP + 19
    kparts = {}
    nk = len(kc.L)
    for n, w in enumerate(range(cfg.kwin, 5)):
        np_ = 5 - cfg.kwin
        kparts[w] = kc.L[nk * n // np_: nk * (n + 1) // np_]
    vAg, vPr, vF, vFl = 1, 2, 3, 4
    k5 = Rec()
    k5(f"v_and_b32 v{vAg}, 15, v0")
    k5(f"v_lshlrev_b32 v{vAg}, 3, v{vAg}")
    k5(f"v_lshrrev_b32 v{vPr}, 4, v0")
    k5(f"v_sub_u32 v{vF}, s{S_MT}, v{vPr}")
    k5(f"v_cmp_le_i32 s[56:57], 1, v{vF}")
    k5(f"v_cmp_le_i32 s[58:59], 5, v{vF}")
    k5(f"v_mul_u32_u24 v{vPr}, 3584, v{vPr}")
    k5(f"s_lshl_b32 s21, s{S_NS}, 7")
    k5(f"v_add3_u32 v{vPr}, v{vPr}, v{vAg}, s21")
    k5(f"v_add_u32 v{vAg}, {AGG_L}, v{vAg}")
    k5(f"s_mul_i32 s22, s{S_MT}, 3584")
    k5("s_add_u32 s22, s22, s21")
    k5(f"s_add_u32 s22, s22, {WS_AGG - AGG_L:#x}")
    k5(f"s_mov_b32 s23, {WS_AGG:#x}")
    k5(f"s_mov_b32 s20, {WS_AGG + 4*3584:#x}")
    k5(f"s_lshl_b32 s18, s{S_M64}, 10")
    k5(f"s_and_b32 s36, s{S_W4}, 1")
    k5("s_lshl_b32 s36, s36, 7")
    k5("s_add_u32 s18, s18, s36")
    k5(f"s_add_u32 s18, s18, {WS_FLAG + 512:#x}")
    k5(f"s_lshl_b32 s36, s{S_MT}, 2")
    k5(f"s_add_u32 s36, s36, s{S_W4}")
    k5(f"s_mul_i32 s19, s36, {2*RT_BYTES}")
    k5(f"s_lshl_b32 s37, s{S_NS}, 10")
    k5("s_add_u32 s19, s19, s37")
    k5(f"s_add_u32 s19, s19, {56*1024}")
    k5("s_lshl_b32 s36, s36, 10")
    flag_index(k5, 37, 30, 14)
    k5("s_add_u32 s36, s36, s37")
    k5(f"s_add_u32 s36, s36, {WS_FLAG + 512:#x}")
    k5(f"v_mov_b32 v{vF}, s36")
    kparts[5] = k5.L
    for s in range(7):
        vm.wait(('st', s))
        ts.x(2, 1 + s)
        a("s_barrier")
        ts.x(3, 1 + s)
        if s == 0: ts(2)
        colsum_reads(s)
        if s == cfg.kwin: vm.wait('sc')
        toks = win.get(s, [])
        if s < 5: assert "w20" not in toks and "w21" not in toks
        ops = tok_ops(toks)
        fl = colsum_ops() + kparts.get(s, [])
        if s == 6:
            b = ACC
            for k in range(8): fl.append(f"v_permlane32_swap_b32 v{CA+k}, v{CA+8+k}")
            fl.append(f"v_add_f32_dpp v{b}, v{b}, v{b} quad_perm:[1,0,3,2] row_mask:0xf bank_mask:0xf")
            for k in range(8): fl.append(f"v_add_f32 v{CA+k}, v{CA+k}, v{CA+8+k}")
            fl.append(f"v_add_f32_dpp v{b}, v{b}, v{b} quad_perm:[2,3,0,1] row_mask:0xf bank_mask:0xf")
            for k in range(8): fl.append(f"v_add_f32_dpp v{CA+k}, v{CA+k}, v{CA+k} row_ror:8 row_mask:0xf bank_mask:0xf")
            fl.append(f"v_add_f32_dpp v{b}, v{b}, v{b} row_half_mirror row_mask:0xf bank_mask:0xf")
            fl.append(f"ds_write_b128 v{vC}, v[{CA}:{CA+3}]")
            fl.append(f"ds_write_b128 v{vC}, v[{CA+4}:{CA+7}] offset:16")
            fl.append(f"ds_write_b32 v{vA}, v{b}")
        per = max(1, -(-len(fl) // max(1, len(ops))))
        interleave(a, ops, fl, per)
    a(f"s_and_b32 s12, s{S_W4}, 1")
    a("s_lshl_b32 s12, s12, 8")
    a(f"v_lshl_add_u32 v{vT}, v0, 2, s12")
    a(f"v_add_u32 v{vT+1}, {CP_L}, v{vT}")
    a(f"v_add_u32 v{vT}, {C_L}, v{vT}")
    a("s_waitcnt lgkmcnt(0)")
    ts.x(2, 8)
    a("s_setprio 3")
    a("s_barrier")
    ts(3)
    ts.x(3, 8)
    QQ = 28
    for p in range(8): a(f"ds_read_b32 v{QQ+p}, v{vT+1} offset:{512*p}")
    a("s_waitcnt lgkmcnt(0)")
    for p in range(4): a(f"v_add_f32 v{QQ+p}, v{QQ+p}, v{QQ+4+p}")
    a(f"v_add_f32 v{QQ}, v{QQ}, v{QQ+2}")
    a(f"v_add_f32 v{QQ+1}, v{QQ+1}, v{QQ+3}")
    a(f"v_add_f32 v{QQ}, v{QQ}, v{QQ+1}")
    a(f"ds_write_b32 v{vT}, v{QQ}")
    a(f"v_add_u32 v{vT+2}, {SD}, v{vPQ}")
    for o in ch_ops(HTS): o()
    vm.wait(('w', 11), "lgkmcnt(0)")
    a("s_barrier")
    X, Y, ST = 32, 48, CF
    HR, HI, T1, T2, CBR, CBI, G0, G1, QR, QI = 20, 21, 22, 23, 24, 25, 26, 28, 30, 31
    for k in range(8): a(f"ds_read_b128 v[{X+4*k}:{X+4*k+3}], v{vT+2} offset:{1024*k}")
    a(f"ds_read_b32 v{CBR}, v{vCB}")
    a(f"ds_read_b32 v{CBI}, v{vCB} offset:64")
    for k in range(8): a(f"ds_read_b128 v[{ST+4*k}:{ST+4*k+3}], v{vStS} offset:{16*k}")
    a(f"s_setprio {cfg.eprio}")
    a("s_waitcnt lgkmcnt(10)")
    for r in range(16): a(f"v_permlane16_swap_b32 v{X+r}, v{Y+r}")
    a("s_waitcnt lgkmcnt(0)")
    side = {}
    for r in range(16):
        if r in side: side[r]()
        m, rs = ST + 2 * r, ST + 2 * r + 1
        a(f"v_fma_f32 v{X+r}, -v{m}, v{CBR}, v{X+r}")
        a(f"v_fma_f32 v{Y+r}, -v{m}, v{CBI}, v{Y+r}")
        a(f"v_mul_f32 v{X+r}, v{X+r}, v{rs}")
        a(f"v_mul_f32 v{Y+r}, v{Y+r}, v{rs}")
        if r >= 1:
            pr, pi = (X, Y) if r == 1 else (HR, HI)
            a(f"v_fma_f32 v{T1}, -v{LI}, v{pi}, v{X+r}")
            a(f"v_fma_f32 v{T2}, v{LI}, v{pr}, v{Y+r}")
            a(f"v_fma_f32 v{HR}, v{LR}, v{pr}, v{T1}")
            a(f"v_fma_f32 v{HI}, v{LR}, v{pi}, v{T2}")
    z = CF
    a(f"v_mov_b32 v{z}, v{HR}"); a(f"v_mov_b32 v{z+1}, v{HI}")
    csq(a, z + 8, z + 9, L16R, L16I, z + 10)
    a(f"v_permlane32_swap_b32 v{HR}, v{z}")
    a(f"v_permlane32_swap_b32 v{HI}, v{z+1}")
    a(f"v_fma_f32 v{z}, -v{L16I}, v{HI}, v{z}")
    a(f"v_fma_f32 v{z+1}, v{L16I}, v{HR}, v{z+1}")
    a(f"v_fmac_f32 v{z}, v{L16R}, v{HR}")
    a(f"v_fmac_f32 v{z+1}, v{L16R}, v{HI}")
    a(f"v_mov_b32 v{z+2}, v{z}"); a(f"v_mov_b32 v{z+3}, v{z+1}")
    a(f"s_lshl_b32 s11, s{S_W4}, 7")
    a(f"v_add_u32 v{z+5}, s11, v{vAg}")
    a(f"v_permlane16_swap_b32 v{z}, v{z+2}")
    a(f"v_permlane16_swap_b32 v{z+1}, v{z+3}")
    a(f"v_fma_f32 v{z+2}, -v{z+9}, v{z+1}, v{z+2}")
    a(f"v_fma_f32 v{z+3}, v{z+9}, v{z}, v{z+3}")
    a(f"v_fmac_f32 v{z+2}, v{z+8}, v{z}")
    a(f"v_fmac_f32 v{z+3}, v{z+8}, v{z+1}")
    a(f"ds_write_b64 v{z+5}, v[{z+2}:{z+3}]")
    a("s_waitcnt lgkmcnt(0)")
    ts.x(2, 9)
    a(f"s_setprio {cfg.lprio}")
    a("s_barrier")
    ts(4)
    E = CF + 16
    for i in range(4): a(f"ds_read_b64 v[{E+2+2*i}:{E+3+2*i}], v{vAg} offset:{128*i}")
    a(f"v_mov_b32 v{E}, 0")
    a(f"v_mov_b32 v{E+1}, 0")
    a(f"v_and_b32 v{z+4}, 16, v0")
    a(f"v_cmp_ne_u32 s[12:13], 0, v{z+4}")
    for i in range(1, 4):
        e, p = E + 2 + 2 * i, E + 2 * i
        a(f"s_waitcnt lgkmcnt({3 - i})")
        a(f"v_fma_f32 v{e}, -v{L64I}, v{p+1}, v{e}")
        a(f"v_fma_f32 v{e+1}, v{L64I}, v{p}, v{e+1}")
        a(f"v_fmac_f32 v{e}, v{L64R}, v{p}")
        a(f"v_fmac_f32 v{e+1}, v{L64R}, v{p+1}")
    a(f"s_cmp_lg_u32 s{S_W4}, 0")
    a("s_cbranch_scc1 L_l_nopub")
    e = E + 8
    a(f"v_cmp_eq_u32 vcc, -1, v{e}")
    a(f"v_mov_b32 v{T1}, 0x7fc00000")
    a(f"v_cndmask_b32 v{e}, v{e}, v{T1}, vcc")
    a("s_mov_b64 exec, 0xffff")
    a(f"buffer_store_dwordx2 v[{e}:{e+1}], v{vAg}, s[{SRD_WS}:{SRD_WS+3}], s22 offen sc1")
    a("s_mov_b64 exec, -1")
    ts(5)
    a.label("L_l_nopub")
    a(f"v_cmp_lt_u32 vcc, 31, v0")
    a(f"v_cndmask_b32 v{z}, 0, v{z}, s[12:13]")
    a(f"v_cndmask_b32 v{z+1}, 0, v{z+1}, s[12:13]")
    a(f"v_fma_f32 v{HR}, -v{L16I}, v{z+1}, v{HR}")
    a(f"v_fma_f32 v{HI}, v{L16I}, v{z}, v{HI}")
    a(f"v_fmac_f32 v{HR}, v{L16R}, v{z}")
    a(f"v_fmac_f32 v{HI}, v{L16R}, v{z+1}")
    a(f"v_cndmask_b32 v{z}, v{z}, v{HR}, vcc")
    a(f"v_cndmask_b32 v{z+1}, v{z+1}, v{HI}, vcc")
    cmul(a, HR, HI, z, z + 1, CR, CI)
    a(f"s_bitcmp1_b32 s{S_W4}, 0")
    a("s_cselect_b64 vcc, -1, 0")
    a(f"v_cndmask_b32 v{QR}, v{E}, v{E+2}, vcc")
    a(f"v_cndmask_b32 v{QI}, v{E+1}, v{E+3}, vcc")
    a(f"v_cndmask_b32 v{T1}, v{E+4}, v{E+6}, vcc")
    a(f"v_cndmask_b32 v{T2}, v{E+5}, v{E+7}, vcc")
    a(f"s_bitcmp1_b32 s{S_W4}, 1")
    a("s_cselect_b64 vcc, -1, 0")
    a(f"v_cndmask_b32 v{QR}, v{QR}, v{T1}, vcc")
    a(f"v_cndmask_b32 v{QI}, v{QI}, v{T2}, vcc")
    ts.x(2, 10)
    thr[0] = cfg.thr
    lds = [f"buffer_load_dwordx2 v[{G0}:{G0+1}], v{vPr}, s[{SRD_WS}:{SRD_WS+3}], s23 offen sc1",
           f"buffer_load_dwordx2 v[{G1}:{G1+1}], v{vPr}, s[{SRD_WS}:{SRD_WS+3}], s20 offen sc1"]
    up = Rec()
    for r in range(16):
        up(f"v_mul_f32 v{T1}, v{CI}, v{Y+r}")
        up(f"v_mul_f32 v{T2}, v{CI}, v{X+r}")
        up(f"v_fma_f32 v{X+r}, v{CR}, v{X+r}, -v{T1}")
        up(f"v_fma_f32 v{Y+r}, v{CR}, v{Y+r}, v{T2}")
    vRd, vOne = 4, 12
    a(f"s_lshl_b32 s11, s{S_W4}, 2")
    a(f"s_add_u32 s11, s11, {CNT_L + 16}")
    a(f"v_mov_b32 v{vRd}, s11")
    a(f"v_mov_b32 v{vOne}, 1")
    ch_read(HTS)
    if cfg.wfirst:
        w_write([12, 13, 14, 15])
        a(f"ds_write_b32 v{vRd}, v{vOne}")
    co = cf_ops(0, SA[0]) + cf_ops(1, SB[0]) + cf_ops(2, None)
    interleave(a, co[:cfg.pollw], up.L, 3)
    for t in lds: vm.issue('ag', t)
    for o in co[cfg.pollw:]: o()
    ts(8)
    if not cfg.wfirst:
        w_write([12, 13, 14, 15])
        a(f"ds_write_b32 v{vRd}, v{vOne}")
    XV, STT, DS = 64, 80, 5
    TT = SACC + 32
    a(f"v_add_u32 v{vT+4}, {HTS}, v{vPQ}")
    a(f"ds_write_b128 v{vT+4}, v[{XRAW}:{XRAW+3}]")
    a(f"ds_write_b128 v{vT+4}, v[{XRAW+4}:{XRAW+7}] offset:1024")
    a(f"v_lshlrev_b32 v{DS}, 16, v{XRAW+8}")
    a(f"v_lshrrev_b32 v{vT+3}, 5, v0")
    a(f"v_lshlrev_b32 v{vT+4}, 10, v{vT+3}")
    a(f"v_and_b32 v{vT}, 31, v0")
    a(f"v_lshl_add_u32 v{vT+4}, v{vT}, 1, v{vT+4}")
    a(f"s_add_u32 s11, s{sMP}, {HTS}")
    a(f"v_add_u32 v{vT+4}, s11, v{vT+4}")
    for r in range(16): a(f"ds_read_u16 v{XV+r}, v{vT+4} offset:{64*r}")
    vm.wait('ag')
    def cond():
        a(f"v_cmp_eq_u32 vcc, -1, v{G0}")
        a("s_and_b64 s[48:49], vcc, s[56:57]")
        a(f"v_cmp_eq_u32 vcc, -1, v{G1}")
        a("s_and_b64 s[50:51], vcc, s[58:59]")
        a("s_or_b64 s[48:49], s[48:49], s[50:51]")
        a("s_cmp_eq_u64 s[48:49], 0")
    spin_check(a, "L_agg", lds, cond, 2)
    ts(6)
    SR, SI = CBR, CBI
    cmul(a, SR, SI, G0, G0 + 1, W0R, W0R + 1)
    cmul(a, T1, T2, G1, G1 + 1, W0R + 2, W0R + 3)
    a(f"v_cndmask_b32 v{SR}, 0, v{SR}, s[56:57]")
    a(f"v_cndmask_b32 v{SI}, 0, v{SI}, s[56:57]")
    a(f"v_cndmask_b32 v{T1}, 0, v{T1}, s[58:59]")
    a(f"v_cndmask_b32 v{T2}, 0, v{T2}, s[58:59]")
    a(f"v_add_f32 v{SR}, v{SR}, v{T1}")
    a(f"v_add_f32 v{SI}, v{SI}, v{T2}")
    for sw in ("v_permlane32_swap_b32", "v_permlane16_swap_b32"):
        a(f"v_mov_b32 v{T1}, v{SR}")
        a(f"v_mov_b32 v{T2}, v{SI}")
        a(f"{sw} v{SR}, v{T1}")
        a(f"{sw} v{SI}, v{T2}")
        a(f"v_add_f32 v{SR}, v{SR}, v{T1}")
        a(f"v_add_f32 v{SI}, v{SI}, v{T2}")
    a(f"v_fmac_f32 v{QR}, v{LWR}, v{SR}")
    a(f"v_fmac_f32 v{QI}, v{LWR}, v{SI}")
    a(f"v_fma_f32 v{QR}, -v{LWI}, v{SI}, v{QR}")
    a(f"v_fmac_f32 v{QI}, v{LWI}, v{SR}")
    a(f"v_fmac_f32 v{HR}, v{PWR}, v{QR}")
    a(f"v_fmac_f32 v{HI}, v{PWR}, v{QI}")
    a(f"v_fma_f32 v{HR}, -v{PWI}, v{QI}, v{HR}")
    a(f"v_fmac_f32 v{HI}, v{PWI}, v{QR}")
    pr, pi = HR, HI
    PK, HF = CF, 80
    for r in range(16):
        a(f"v_fma_f32 v{X+r}, -v{LI}, v{pi}, v{X+r}")
        a(f"v_fma_f32 v{Y+r}, v{LI}, v{pr}, v{Y+r}")
        a(f"v_fmac_f32 v{X+r}, v{LR}, v{pr}")
        a(f"v_fmac_f32 v{Y+r}, v{LR}, v{pi}")
        pr, pi = X + r, Y + r
    for k in range(8):
        a(f"v_cvt_pk_bf16_f32 v{PK+k}, v{X+2*k}, v{X+2*k+1}")
    a(f"ds_write_b128 v{vTW}, v[{PK}:{PK+3}]")
    a(f"ds_write_b128 v{vTW}, v[{PK+4}:{PK+7}] offset:16")
    for k in range(8):
        a(f"v_cvt_pk_bf16_f32 v{PK+8+k}, -v{Y+2*k}, -v{Y+2*k+1}")
    a(f"ds_write_b128 v{vTW}, v[{PK+8}:{PK+11}] offset:2048")
    a(f"ds_write_b128 v{vTW}, v[{PK+12}:{PK+15}] offset:2064")
    for q in range(2):
        for part in range(2):
            for j in range(2):
                d = HF + 8 * q + 4 * part + 2 * j
                a(f"ds_read_b64_tr_b16 v[{d}:{d+1}], v{vTR} offset:{(part*16 + 4*j)*128 + 64*(q ^ j)}")
    cf_read(0, SA[0])
    a("s_waitcnt lgkmcnt(8)")
    for q in range(2):
        for part in range(2):
            d = HF + 8 * q + 4 * part
            a(f"s_add_u32 s11, s19, {q*RT_BYTES + part*HALF_BYTES}")
            vm.issue('hs', f"buffer_store_dwordx4 v[{d}:{d+3}], v{vP}, s[{SRD_WS}:{SRD_WS+3}], s11 offen{SP}")
    cf_read(1, SB[0])
    cf_read(2, None)
    w_write([16, 17, 18, 19])
    w_write([20, 21])
    a(f"v_mov_b32 v{T1}, 2")
    a(f"ds_write_b32 v{vRd}, v{T1}")
    vm.wait('hs', "lgkmcnt(13)")
    a("s_mov_b64 exec, 1")
    vm.issue('f', f"buffer_store_dword v{vOne}, v{vF}, s[{SRD_WS}:{SRD_WS+3}], 0 offen sc1")
    a("s_mov_b64 exec, -1")
    ts(7)
    for o in w_ops(range(22, 28)): o()
    a(f"s_and_b32 s11, s{S_W4}, 1")
    a("s_lshl_b32 s11, s11, 8")
    a(f"s_add_u32 s11, s11, {ST2_L}")
    a(f"v_lshl_add_u32 v{vT+3}, v{vT+3}, 7, s11")
    STT = 32
    for k in range(8): a(f"ds_read_b128 v[{STT+4*k}:{STT+4*k+3}], v{vT+3} offset:{16*k}")
    for r in range(16): a(f"v_lshlrev_b32 v{XV+r}, 16, v{XV+r}")
    a("s_waitcnt lgkmcnt(0)")
    a("s_setprio 0")
    def rnd_pair(r0, r1):
        a(f"v_cvt_pk_bf16_f32 v{r1}, v{r0}, v{r1}"); a(f"v_lshlrev_b32 v{r0}, 16, v{r1}"); a(f"v_and_b32 v{r1}, s71, v{r1}")
    for r in range(16): a(f"v_sub_f32 v{TT+r}, v{XV+r}, v{STT+2*r}")
    for k in range(8): rnd_pair(TT + 2 * k, TT + 2 * k + 1)
    a(f"v_mov_b32 v{T2}, 3")
    vm.wait(('w', 27))
    a(f"ds_write_b32 v{vRd}, v{T2}")
    for r in range(16): a(f"v_mul_f32 v{TT+r}, v{TT+r}, v{STT+2*r+1}")
    for k in range(8): rnd_pair(TT + 2 * k, TT + 2 * k + 1)
    for r in range(16): a(f"v_mul_f32 v{TT+r}, v{TT+r}, v{DS}")
    for k in range(8): rnd_pair(TT + 2 * k, TT + 2 * k + 1)
    def poll(name, off):
        def cond():
            for k in range(0, 12, 4): a(f"s_and_b64 s[{20+k}:{21+k}], s[{20+k}:{21+k}], s[{22+k}:{23+k}]")
            a("s_and_b64 s[20:21], s[20:21], s[24:25]")
            a("s_and_b64 s[28:29], s[28:29], s[32:33]")
            a("s_and_b64 s[20:21], s[20:21], s[28:29]")
            a("s_and_b32 s20, s20, s21")
            a("s_cmp_eq_u32 s20, 1")
        sspin(a, name, [f"s_load_dwordx16 s[20:35], s[{P_WS}:{P_WS+1}], s18 glc"], cond, cfg.psleep)
    a(f"s_mul_i32 s57, s40, {RT_BYTES}")
    a("s_xor_b32 s11, s40, 1")
    a(f"s_mul_i32 s56, s11, {RT_BYTES}")
    a(f"s_lshr_b32 s11, s{S_W4}, 1")
    a(f"s_mul_i32 s11, s11, {HALF_BYTES}")
    a(f"s_add_u32 s11, s11, {56*1024}")
    a("s_add_u32 s56, s56, s11")
    a("s_add_u32 s57, s57, s11")
    a(f"s_and_b32 s12, s{S_W4}, 1")
    a("s_lshl_b32 s13, s12, 14")
    for b in range(3):
        a(f"s_add_u32 s11, s{sBlk}, {b}")
        a("s_cmp_ge_u32 s11, 3")
        a("s_cselect_b32 s22, 3, 0")
        a("s_sub_u32 s11, s11, s22")
        a("s_lshl_b32 s11, s11, 12")
        a(f"s_add_u32 s{52+b}, s11, s13")
    a("s_lshl_b32 s12, s12, 11")
    a(f"s_add_u32 s55, s12, {12*1024}")
    srd(a, 60, P_OUT, 2048 * 1792)
    vW1, vW2, vCn, vCv = 1, 2, 9, 10
    vR = [11, 12, 13, 14]
    a(f"v_add_u32 v{vW1}, {PH1}, v{vPQ}")
    a(f"v_add_u32 v{vW2}, {PH2}, v{vPQ}")
    a(f"v_mov_b32 v{vCn}, {CNT_L}")
    for (reg, xr, base) in ((vR[0], 1, PH1), (vR[1], 3, PH1 + 4096), (vR[2], 2, PH2)):
        a(f"s_xor_b32 s11, s{S_W4}, {xr}")
        a(f"s_mul_i32 s11, s11, {Q}")
        a(f"s_add_u32 s11, s11, {base}")
        a(f"v_add_u32 v{reg}, s11, v{vP}")
    a(f"v_add_u32 v{vR[3]}, {GA}, v{vPQ}")
    ts.x(2, 11)
    AR = list(range(16, 64, 4))
    NA = len(AR)
    def aload(n):
        lr, p = n // 14, n % 14
        if p % 4 == 0: a(f"s_add_u32 s58, s{56+lr}, s{52 + p//4}")
        d = AR[n % NA]
        vm.issue(('a', n), f"buffer_load_dwordx4 v[{d}:{d+3}], v{vP}, s[{SRD_WS}:{SRD_WS+3}], s58 offen offset:{(p%4)*1024}{AP}")
    def cnt_wait(name, off):
        a("s_mov_b32 s73, 0")
        a.label(name)
        a("s_waitcnt lgkmcnt(0)")
        a(f"v_readfirstlane_b32 s11, v{vCv}")
        a("s_cmp_ge_u32 s11, 4")
        a(f"s_cbranch_scc1 {name}ok")
        a("s_add_u32 s73, s73, 1")
        a(f"s_cmp_ge_u32 s73, {SPIN_MAX}")
        a(f"s_cbranch_scc1 {name}ok")
        a("s_sleep 1")
        a(f"ds_read_b32 v{vCv}, v{vCn} offset:{off}")
        a(f"s_branch {name}")
        a.label(name + "ok")
        a("s_nop 7")
    a(f"ds_read_b32 v{vCv}, v{vCn} offset:4")
    cnt_wait("L_l_c0", 4)
    poll("L_ps", 128)
    ts(9)
    if cfg.sprio: a(f"s_setprio {cfg.sprio}")
    ts.x(7, 1)
    for n in range(NA): aload(n)
    a("s_setprio 0")
    ts.x(7, 2)
    for n in range(28):
        lr, p = n // 14, n % 14
        vm.wait(('a', n))
        if n in (0, 7, 14, 21): ts.x(7, 3 + n // 7)
        d = AR[n % NA]
        for lc in (1, 0):
            acc = SACC + 32 * lr + 16 * lc
            c = "0" if (p == 0 and not (lr == 1 and lc == 0)) else f"v[{acc}:{acc+15}]"
            f = CF + 8 * p + 4 * lc
            a(f"v_mfma_f32_32x32x16_bf16 v[{acc}:{acc+15}], v[{d}:{d+3}], v[{f}:{f+3}], {c}")
        if n + NA < 28: aload(n + NA)
        if 16 <= n < 24:
            k = n - 16
            a(f"ds_write_b128 v{vW1}, v[{SACC+4*k}:{SACC+4*k+3}] offset:{1024*k}")
    ts(10)
    ts.x(7, 7)
    ts.x(7, 8)
    for k in range(4):
        a(f"ds_write_b128 v{vW2}, v[{SACC+48+4*k}:{SACC+48+4*k+3}] offset:{1024*k}")
    a("s_waitcnt lgkmcnt(0)")
    ts.x(7, 9)
    a("s_barrier")
    ts(11)
    ts.x(7, 10)
    RX = CF
    for k in range(4):
        for w in range(4):
            a(f"ds_read_b128 v[{RX+16*w+4*k}:{RX+16*w+4*k+3}], v{vR[w]} offset:{1024*k}")
    for k in range(4):
        a(f"s_waitcnt lgkmcnt({12 - 4*k})")
        for r in range(4 * k, 4 * k + 4):
            a(f"v_add_f32 v{TT+r}, v{TT+r}, v{RX+r}")
            a(f"v_add_f32 v{RX+16+r}, v{RX+16+r}, v{RX+32+r}")
        for r in range(4 * k, 4 * k + 4):
            a(f"v_add_f32 v{TT+r}, v{TT+r}, v{RX+16+r}")
        for r in range(4 * k, 4 * k + 4):
            a(f"v_fma_f32 v{XV+r}, v{TT+r}, v{RX+48+r}, v{XV+r}")
            if r % 2 == 0: a(f"s_mov_b32 s11, {r*1792}")
            a(f"buffer_store_dword v{XV+r}, v{vO}, s[60:63], s11 offen offset:{(r%2)*1792}{OP}")
    if cfg.ts:
        a("s_waitcnt vmcnt(0)")
        ts(12)
    if cfg.padto:
        a.label("L_pad")
        a("s_memrealtime s[98:99]")
        a("s_waitcnt lgkmcnt(0)")
        a("s_sub_u32 s98, s98, s100")
        a(f"s_cmp_lt_u32 s98, {cfg.padto}")
        a("s_cbranch_scc1 L_pad")
    ts.dump(16, 17, 1)
    a("s_endpgm")

def gen_consumer(a, cfg, ts):
    a.label("L_consumer")
    SP = ["", " sc1"][cfg.spol]
    AP = ['', ' sc1', ' sc1 nt', ' sc0 sc1', ' sc0', ' nt'][cfg.apol]
    vm = VM(a)
    XA = [1, 2, 3, 4]; BA = [5, 6, 7, 8]; WA = [9, 10]
    vL16, vStF, vCL, vF, vFl, vSo, vCn, vRd, vWB, vPQ, vOne, MM = 11, 12, 13, 14, 15, 16, 17, 18, 19, 20, 21, 22
    FS = [40, 68]
    ACC = 96
    def G(ft, q): return ACC + 16 * (2 * ft + q)
    def U(ft, q): return ACC + 64 + 16 * (2 * ft + q)
    def S(q): return ACC + 128 + 16 * q
    vI, vH, t0, t1, t2 = 24, 25, 26, 27, 28
    a(f"v_and_b32 v{vI}, 31, v0")
    a(f"v_lshrrev_b32 v{vH}, 5, v0")
    a(f"v_bfe_u32 v{t0}, v0, 1, 3")
    a(f"v_xor_b32 v{t0}, v{t0}, v{vH}")
    a(f"v_lshlrev_b32 v{t0}, 4, v{t0}")
    a(f"v_lshl_add_u32 v{t0}, v{vI}, 7, v{t0}")
    a(f"s_lshl_b32 s11, s{S_W4}, 13")
    for ks in range(4):
        a(f"v_xor_b32 v{t1}, {32*ks}, v{t0}")
        a(f"v_add_u32 v{XA[ks]}, s11, v{t1}")
        a(f"v_add_u32 v{BA[ks]}, {OFF_BB}, v{t1}")
    a(f"v_bfe_u32 v{t0}, v0, 2, 2")
    a(f"v_lshlrev_b32 v{t1}, 7, v{t0}")
    a(f"v_lshrrev_b32 v{t0}, 1, v{t0}")
    a(f"v_lshl_add_u32 v{t1}, v{t0}, 6, v{t1}")
    a(f"v_bfe_u32 v{t0}, v0, 4, 1")
    a(f"v_lshl_add_u32 v{t1}, v{t0}, 5, v{t1}")
    a(f"v_and_b32 v{t2}, 3, v0")
    a(f"v_lshl_add_u32 v{t1}, v{t2}, 3, v{t1}")
    a(f"v_lshl_add_u32 v{WA[0]}, v{vH}, 10, v{t1}")
    a(f"v_add_u32 v{WA[0]}, {OFF_WG}, v{WA[0]}")
    a(f"v_xor_b32 v{WA[1]}, 64, v{WA[0]}")
    a(f"s_mul_i32 s62, s{S_W4}, {Q}")
    a(f"s_lshr_b32 s59, s{S_W4}, 1")
    a(f"s_and_b32 s63, s{S_W4}, 1")
    a("s_lshl_b32 s11, s59, 6")
    a(f"v_lshl_add_u32 v{vWB}, v{vH}, 9, v{t1}")
    a(f"v_xor_b32 v{vWB}, s11, v{vWB}")
    a(f"v_add_u32 v{vWB}, s62, v{vWB}")
    for k in range(160): a(f"v_mov_b32 v{ACC+k}, 0")
    a(f"v_mov_b32 v{vCn}, {CNT_L}")
    a(f"ds_write_b128 v{vCn}, v[{ACC}:{ACC+3}]")
    a(f"ds_write_b128 v{vCn}, v[{ACC}:{ACC+3}] offset:16")
    a(f"v_bfe_u32 v{t0}, v0, 2, 1")
    a(f"v_lshl_add_u32 v{t0}, v{t0}, 4, v{t2}")
    a(f"v_bfe_u32 v{t1}, v0, 3, 2")
    a(f"v_lshl_add_u32 v{t0}, v{t1}, 2, v{t0}")
    a(f"s_lshl_b32 s11, s{S_W4}, 9")
    a(f"s_add_u32 s11, s11, {STATS_L}")
    a(f"v_lshl_add_u32 v{vStF}, v{t0}, 3, s11")
    a(f"v_lshlrev_b32 v{vL16}, 4, v0")
    a(f"v_add_u32 v{vPQ}, s62, v{vL16}")
    a(f"v_lshlrev_b32 v{vCL}, 4, v{vH}")
    a(f"v_add_u32 v{vCL}, {C_L}, v{vCL}")
    a(f"v_mov_b32 v{vOne}, 1")
    a(f"s_lshl_b32 s11, s{S_W4}, 2")
    a(f"s_add_u32 s11, s11, {CNT_L + 16}")
    a(f"v_mov_b32 v{vRd}, s11")
    a("s_lshl_b32 s11, s63, 8")
    a(f"s_add_u32 s11, s11, {ST2_L}")
    a(f"v_lshl_add_u32 v{vSo}, v{vH}, 7, s11")
    a(f"s_lshl_b32 s13, s{S_MT}, 2")
    a(f"s_add_u32 s13, s13, s{S_W4}")
    a(f"s_mul_i32 s56, s13, {2*RT_BYTES}")
    a(f"s_cmp_ge_u32 s{S_NS}, 14")
    a(f"s_cselect_b32 s11, {HALF_BYTES - 56*1024}, 0")
    a(f"s_lshl_b32 s12, s{S_NS}, 12")
    a("s_add_u32 s11, s11, s12")
    a("s_add_u32 s56, s56, s11")
    a(f"s_add_u32 s57, s56, {RT_BYTES}")
    a("s_lshl_b32 s11, s13, 10")
    flag_index(a, 12, 14, 7)
    a("s_add_u32 s11, s11, s12")
    a(f"s_add_u32 s11, s11, {WS_FLAG:#x}")
    a(f"v_mov_b32 v{vF}, s11")
    a(f"s_lshl_b32 s55, s{S_M64}, 10")
    a(f"s_add_u32 s55, s55, {WS_FLAG:#x}")
    a(f"s_lshl_b32 s11, s{S_W4}, 7")
    a("s_add_u32 s55, s55, s11")
    a(f"s_mul_i32 s12, s59, {HALF_BYTES}")
    a(f"s_mul_i32 s13, s63, {28*1024}")
    a("s_add_u32 s12, s12, s13")
    a(f"s_lshl_b32 s11, s{S_M64}, 1")
    a("s_add_u32 s11, s11, s63")
    a(f"s_mul_i32 s52, s11, {RT_BYTES}")
    a("s_add_u32 s52, s52, s12")
    a("s_xor_b32 s11, s11, 1")
    a(f"s_mul_i32 s51, s11, {RT_BYTES}")
    a("s_add_u32 s51, s51, s12")
    p2_rot(a, cfg, 60, 61, 58)
    a("s_waitcnt lgkmcnt(0)")
    srd(a, SRD_WS, P_WS, WS_SIZE)
    ts(1)

    def reads(fs, ks):
        f = FS[fs]
        L = []
        L.append(f"ds_read_b128 v[{f}:{f+3}], v{XA[ks]}")
        L.append(f"ds_read_b128 v[{f+24}:{f+27}], v{BA[ks]}")
        L.append(f"ds_read_b128 v[{f+4}:{f+7}], v{XA[ks]} offset:4096")
        for gu in range(2):
            for ft in range(2):
                for j in range(2):
                    d = f + 8 + 8 * gu + 4 * ft + 2 * j
                    L.append(f"ds_read_b64_tr_b16 v[{d}:{d+1}], v{WA[ft]} offset:{gu*8192 + ks*2048 + j*512}")
        return L
    def mfmas(fs):
        f = FS[fs]
        X = [f, f + 4]; Bf = f + 24
        L = []
        for q in range(2):
            L.append(f"v_mfma_f32_32x32x16_bf16 v[{S(q)}:{S(q)+15}], v[{X[q]}:{X[q]+3}], v[{Bf}:{Bf+3}], v[{S(q)}:{S(q)+15}]")
        for gu in range(2):
            for ft in range(2):
                w = f + 8 + 8 * gu + 4 * ft
                for q in range(2):
                    d = (G, U)[gu](ft, q)
                    L.append(f"v_mfma_f32_32x32x16_bf16 v[{d}:{d+15}], v[{w}:{w+3}], v[{X[q]}:{X[q]+3}], v[{d}:{d+15}]")
        return L
    a("s_setprio 2")
    a("s_mov_b32 s72, 0")
    a("s_mov_b32 s74, 0")
    a("s_barrier")
    ts(2)
    for t in reads(0, 0): a(t)
    a.label("L_c_loop")
    need = {0: 9, 1: 8, 2: 6, 4: 4, 6: 2, 8: 0}
    for ks in range(4):
        fs = ks & 1
        M = mfmas(fs)
        if ks < 3:
            Rd = reads(1 - fs, ks + 1)
            issued = 0
            for i, m in enumerate(M):
                if i in need: a(f"s_waitcnt lgkmcnt({min(15, need[i] + issued)})")
                a(m)
                for _ in range(2 if i >= cfg.rdstart else 0):
                    if Rd: a(Rd.pop(0)); issued += 1
        else:
            Rd = reads(1 - fs, 0)
            a("s_waitcnt lgkmcnt(9)")
            a(M[0])
            a("s_add_u32 s74, s74, 1")
            a("s_cmp_eq_u32 s74, 3")
            a("s_mov_b32 s75, 53248")
            a(f"s_cmov_b32 s75, {(-106496) & 0xffffffff:#x}")
            a("s_cselect_b32 s74, 0, s74")
            for v in XA + BA[:1]: a(f"v_add_u32 v{v}, s75, v{v}")
            a("s_waitcnt lgkmcnt(8)")
            a(M[1])
            for v in BA[1:] + WA: a(f"v_add_u32 v{v}, s75, v{v}")
            a("s_add_u32 s72, s72, 1")
            a("s_cmp_eq_u32 s72, 7")
            a("s_waitcnt lgkmcnt(0)")
            a(M[2])
            a("s_barrier")
            hist = list(a.hist)
            a("s_cbranch_scc1 L_c_last")
            for m in M[3:]:
                for _ in range(2):
                    if Rd: a(Rd.pop(0))
                a(m)
            a("s_branch L_c_loop")
            a.label("L_c_last")
            a.hist = hist
            dump = [f"ds_write_b128 v{vPQ}, v[{S(0)+4*k}:{S(0)+4*k+3}] offset:{SD + 1024*k}" for k in range(8)]
            dump = dump[:4] + [f"ds_read_b32 v{MM}, v{vStF}", f"ds_read_b32 v{MM+1}, v{vStF} offset:256"] + dump[4:]
            for m in M[3:]:
                a(m)
                for _ in range(2):
                    if dump: a(dump.pop(0))
    ts(3)
    a("s_waitcnt lgkmcnt(0)")
    a("s_barrier")
    def cread(dst, off):
        for k in range(4): a(f"ds_read_b128 v[{dst+4*k}:{dst+4*k+3}], v{vCL} offset:{off + 32*k}")
    cread(32, 0); cread(48, 256); cread(64, 128); cread(80, 384)
    WB = {0: [1, 2], 1: [3, 4], 2: [5, 6]}
    for rg in range(3):
        a(f"v_add_u32 v{WB[rg][0]}, {R[rg]}, v{vWB}")
        a(f"v_xor_b32 v{WB[rg][1]}, 64, v{WB[rg][0]}")
    for ft in range(2):
        cg, cu = (32, 48) if ft == 0 else (64, 80)
        for q in range(2):
            g, u = G(ft, q), U(ft, q)
            sel = f"op_sel:[{q},0,0] op_sel_hi:[{q},1,1] neg_lo:[1,0,0] neg_hi:[1,0,0]"
            if q == 0: a(f"s_waitcnt lgkmcnt({12 - 8*ft})")
            for k in range(8):
                a(f"v_pk_fma_f32 v[{g+2*k}:{g+2*k+1}], v[{MM}:{MM+1}], v[{cg+2*k}:{cg+2*k+1}], v[{g+2*k}:{g+2*k+1}] {sel}")
            if q == 0: a(f"s_waitcnt lgkmcnt({8 - 8*ft})")
            for p in range(2):
                kr = range(4 * p, 4 * p + 4)
                for k in kr:
                    a(f"v_pk_fma_f32 v[{u+2*k}:{u+2*k+1}], v[{MM}:{MM+1}], v[{cu+2*k}:{cu+2*k+1}], v[{u+2*k}:{u+2*k+1}] {sel}")
                    a(f"v_max_f32 v{g+2*k}, 0, v{g+2*k}")
                    a(f"v_max_f32 v{g+2*k+1}, 0, v{g+2*k+1}")
                for k in kr:
                    a(f"v_pk_mul_f32 v[{u+2*k}:{u+2*k+1}], v[{u+2*k}:{u+2*k+1}], v[{g+2*k}:{g+2*k+1}]")
                for k in kr:
                    a(f"v_cvt_pk_bf16_f32 v{g+k}, v{u+2*k}, v{u+2*k+1}")
                vm.issue('h', f"buffer_store_dwordx4 v[{g+4*p}:{g+4*p+3}], v{vL16}, s[{SRD_WS}:{SRD_WS+3}], s{56+q} offen offset:{(2*ft+p)*1024}{SP}")
    ts(4)
    BR, NB = 160, 12
    def breads(p):
        sl = WSLOT[p]
        rg = max(k for k in range(3) if R[k] <= sl)
        L = []
        for lc in range(2):
            for jj in range(2):
                d = BR + 8 * (p % NB) + 4 * lc + 2 * jj
                L.append(f"ds_read_b64_tr_b16 v[{d}:{d+1}], v{WB[rg][lc]} offset:{sl - R[rg] + jj*1024}")
        return L
    for p in range(NB):
        for t in breads(p): a(t)
    a("s_waitcnt lgkmcnt(0)")
    a("s_barrier")
    ts(5)
    vm.wait('h')
    a("s_setprio 3")
    a("s_mov_b64 exec, 1")
    vm.issue('f', f"buffer_store_dword v{vOne}, v{vF}, s[{SRD_WS}:{SRD_WS+3}], 0 offen sc1")
    a("s_mov_b64 exec, -1")
    ts(6)
    AF = 96
    AR = list(range(24, 96, 4))
    NA = len(AR)
    def aload(n):
        p, lr = n // 2, n % 2
        if n % 8 == 0:
            a(f"s_lshl_b32 s11, s60, 12")
            a(f"s_add_u32 s54, s11, s52")
            a(f"s_add_u32 s53, s11, s51")
            a(f"s_add_u32 s60, s60, 1")
            a(f"s_cmp_eq_u32 s60, 7")
            a(f"s_cselect_b32 s60, 0, s60")
        d = AR[n % NA]
        vm.issue(('a', n), f"buffer_load_dwordx4 v[{d}:{d+3}], v{vL16}, s[{SRD_WS}:{SRD_WS+3}], s{54 - lr} offen offset:{(p%4)*1024}{AP}")
    def cond():
        a("s_and_b64 s[16:17], s[16:17], s[18:19]")
        a("s_and_b64 s[16:17], s[16:17], s[20:21]")
        a("s_and_b32 s16, s16, s17")
        a("s_and_b32 s16, s16, s22")
        a("s_cmp_eq_u32 s16, 1")
    sspin(a, "L_pf", [f"s_load_dwordx8 s[16:23], s[{P_WS}:{P_WS+1}], s55 glc"], cond, cfg.fsleep)
    a("s_setprio 2")
    ts(7)
    for n in range(cfg.a0): aload(n)
    nxt = [cfg.a0]
    ts(8)
    lq = []
    def ds_issue(tag, t):
        a(t)
        if t.startswith("ds_"): lq.append(tag)
    def ds_wait(tag):
        idx = max((i for i, t in enumerate(lq) if t == tag), default=None)
        if idx is None: return None
        n = len(lq) - 1 - idx
        del lq[:idx + 1]
        return f"lgkmcnt({min(n, 15)})"
    def lds_spin(name, vaddr, off, val):
        a("s_mov_b32 s73, 0")
        a.label(name)
        a("s_waitcnt lgkmcnt(0)")
        a("v_readfirstlane_b32 s11, v8")
        a(f"s_cmp_ge_u32 s11, {val}")
        a(f"s_cbranch_scc1 {name}ok")
        a("s_add_u32 s73, s73, 1")
        a(f"s_cmp_ge_u32 s73, {SPIN_MAX}")
        a(f"s_cbranch_scc1 {name}ok")
        a("s_sleep 1")
        a(f"ds_read_b32 v8, v{vaddr} offset:{off}")
        a(f"s_branch {name}")
        a.label(name + "ok")
        del lq[:]
    for p in range(28):
        f = BR + 8 * (p % NB)
        pn = p + cfg.bd
        for lr in range(2):
            n = 2 * p + lr
            w = ds_wait(p) if lr == 0 else None
            vm.wait(('a', n), w or "")
            if n == 0: ts(9)
            if n in (0, 7, 17, 25, 35): ts.x(6, {0: 7, 7: 8, 17: 9, 25: 10, 35: 11}[n])
            if lr == 0 and pn in (12, 16, 22): ds_issue('r', f"ds_read_b32 v8, v{vRd}")
            d = AR[n % NA]
            for lc in range(2):
                acc = AF + 32 * lr + 16 * lc
                c = "0" if p == 0 else f"v[{acc}:{acc+15}]"
                a(f"v_mfma_f32_32x32x16_bf16 v[{acc}:{acc+15}], v[{d}:{d+3}], v[{f+4*lc}:{f+4*lc+3}], {c}")
            for _ in range(2):
                if nxt[0] < 56 and nxt[0] <= n + NA:
                    aload(nxt[0]); nxt[0] += 1
        if pn in (12, 16, 22): lds_spin(f"L_c_r{pn}", vRd, 0, {12: 1, 16: 2, 22: 3}[pn])
        if p == cfg.ksig:
            assert pn > 15
            w = ds_wait(15)
            if w: a(f"s_waitcnt {w}")
            a("s_mov_b64 exec, 1")
            ds_issue('c', f"ds_add_u32 v{vCn}, v{vOne} offset:4")
            a("s_mov_b64 exec, -1")
        if NB <= pn < 28:
            for t in breads(pn): ds_issue(pn, t)
        if p == 24:
            STT = BR + 32
            for k in range(8): ds_issue('st', f"ds_read_b128 v[{STT+4*k}:{STT+4*k+3}], v{vSo} offset:{16*k}")
        if p == 26:
            for x in range(1, 4):
                a(f"s_xor_b32 s11, s{S_W4}, {x}")
                a(f"s_mul_i32 s11, s11, {Q}")
                a(f"s_add_u32 s11, s11, {FXA + (x-1)*4096}")
                a(f"v_add_u32 v{x}, s11, v{vL16}")
            a(f"v_add_u32 v4, {GA}, v{vPQ}")
            a(f"v_add_u32 v5, {FXA}, v{vPQ}")
        if p % 4 == 3: ts.x(4, 1 + p // 4)
    ts(11)
    ts.x(7, 1)
    for x in (2, 1, 3):
        src = AF + 32 * (x & 1) + 16 * (x >> 1)
        for k in range(4):
            a(f"ds_write_b128 v5, v[{src+4*k}:{src+4*k+3}] offset:{(x-1)*4096 + 1024*k}")
    a("s_waitcnt lgkmcnt(12)")
    for r in range(16): a(f"v_mul_f32 v{STT+2*r}, v{STT+2*r+1}, v{STT+2*r+1}")
    a(f"s_mov_b32 s13, {LOG2E ^ 0x80000000:#x}")
    ts.x(7, 2)
    a("s_waitcnt lgkmcnt(0)")
    ts.x(7, 3)
    a("s_mov_b64 exec, 1")
    a(f"ds_add_u32 v{vCn}, v{vOne}")
    a("s_mov_b64 exec, -1")
    a(f"ds_read_b32 v8, v{vCn}")
    lds_spin("L_c_cnt", vCn, 0, 4)
    ts.x(7, 4)
    O, RX, EX = AF, 24, 72
    for k in range(4):
        for x in range(1, 4):
            a(f"ds_read_b128 v[{RX+16*(x-1)+4*k}:{RX+16*(x-1)+4*k+3}], v{x} offset:{1024*k}")
    for k in range(4):
        rr = range(4 * k, 4 * k + 4)
        a(f"s_waitcnt lgkmcnt({9 - 3*k})")
        for r in rr: a(f"v_add_f32 v{O+r}, v{O+r}, v{RX+r}")
        for r in rr: a(f"v_add_f32 v{RX+16+r}, v{RX+16+r}, v{RX+32+r}")
        for r in rr: a(f"v_add_f32 v{O+r}, v{O+r}, v{RX+16+r}")
        for r in rr: a(f"v_mul_f32 v{O+r}, v{O+r}, v{STT+2*r}")
        for r in rr: a(f"v_mul_f32 v{EX+r}, s13, v{O+r}")
        for r in rr: a(f"v_exp_f32 v{EX+r}, v{EX+r}")
    ts.x(7, 5)
    for k in range(4):
        rr = range(4 * k, 4 * k + 4)
        for r in rr: a(f"v_add_f32 v{EX+r}, 1.0, v{EX+r}")
        for r in rr: a(f"v_rcp_f32 v{EX+r}, v{EX+r}")
        for r in rr: a(f"v_mul_f32 v{O+r}, v{O+r}, v{EX+r}")
        a(f"ds_write_b128 v4, v[{O+4*k}:{O+4*k+3}] offset:{1024*k}")
    a("s_waitcnt lgkmcnt(0)")
    ts(12)
    a("s_barrier")
    ts.dump(24, 25, 0)
    a("s_endpgm")

HEADER = """; Fused S5-SSM + ReGLU block, one launch: 224 main workgroups (4 MFMA waves + 4 loader waves) + 32 helper workgroups.
; @launch grid=(256,1,1) block=(512,1,1) lds=163840
.amdgcn_target "amdgcn-amd-amdhsa--gfx950"
.text
.globl {k}
.p2align 8
.type {k},@function
{k}:
"""
FOOTER = """.section .rodata,"a"
.p2align 6
.amdhsa_kernel {k}
  .amdhsa_next_free_vgpr 256
  .amdhsa_next_free_sgpr 102
  .amdhsa_accum_offset 256
  .amdhsa_group_segment_fixed_size 0
  .amdhsa_kernarg_size 128
  .amdhsa_user_sgpr_count 2
  .amdhsa_user_sgpr_kernarg_segment_ptr 1
  .amdhsa_system_sgpr_workgroup_id_x 1
  .amdhsa_float_denorm_mode_32 3
.end_amdhsa_kernel
"""

def generate(cfg):
    WSOFF[0] = cfg.wsoff << 20
    a = Asm()
    ts = TS(a, cfg)
    gen_entry(a, cfg, ts)
    gen_loader(a, cfg, ts)
    gen_consumer(a, cfg, ts)
    gen_helper(a, cfg, ts)
    a.label("L_exit")
    a("s_endpgm")
    return HEADER.format(k=KNAME) + f"; wsoff={cfg.wsoff}\n" + a.text() + FOOTER.format(k=KNAME)

if __name__ == "__main__":
    cfg = Cfg()
    out = sys.argv[1]
    for kv in sys.argv[2:]:
        k, v = kv.split("=")
        setattr(cfg, k, int(v))
    open(out, "w").write(generate(cfg))
```

```python
import sys, os
sys.path.insert(0, os.path.dirname(os.path.abspath(__file__)))
from asmlib import Asm, VM

KNAME = "recurrent_scan__ssm_conv_s5__glu_gated_reglu__prompt_kernel"

R = [0, 53248, 106496]
MISC = 159744
OFF_WG, OFF_WU, OFF_BB = 32768, 40960, 49152
CP_L = R[2] + 49152
STATS_L = MISC
C_L = MISC + 2048
CNT_L = MISC + 2688
ST2_L = MISC + 2720
AGG_L = MISC + 3232
Q = 12288

RT_BYTES = 172032
HALF_BYTES = 86016
WS_STATS = 0xB00000
WS_AGG = WS_STATS + 0x4000
WS_FLAG = WS_AGG + 0x8000
INIT_N = 128
WS_TS = 0xC00000
WS_SIZE = 0x1000000
SPIN_MAX = 1 << 20

S_WAVE, S_XCD, S_SLOT, S_MT, S_NS, S_M64, S_NT, S_W4 = 3, 4, 5, 6, 7, 8, 9, 10
P_X, P_LRE, P_LIM, P_BRE, P_BIM, P_CRE, P_CIM, P_LDT, P_DSK, P_BX, P_WG, P_WU, P_WD, P_OUT, P_DBG, P_WS = [16 + 2 * i for i in range(16)]
SRD_X, SRD_A, SRD_B, SRD_C, SRD_WS, SRD_E = 48, 52, 56, 60, 64, 68
TS0 = 76

LOG2E = 0x3fb8aa3b
LOG2E_LO = 0x32a57060
LN2 = 0x3f317218
INV2PI = 0x3e22f983

class Cfg:
    ts = 0
    tsset = 0
    pd = 16
    perm = 1
    rot = 2
    ssm_early = 0
    schedn = 0
    polx = 0
    apol = 1
    noa = 0
    nob = 0
    rdstart = 1
    polw = 0
    winn = 2
    probe = 0
    pwho = 0
    ponly = -1
    pmask = 0xffff
    wsoff = 0
    kwin = 2
    wprio = 0
    hdelay = 0
    eprio = 0
    c2late = 0
    cpf = 1
    padto = 0
    nocs = 0
    r2pre = 1
    tlb = 0
    bd = 4
    pollw = 24
    c1 = 4
    c2 = 16
    wfirst = 1
    @property
    def win(self):
        W = lambda a, b: [f"w{p}" for p in range(a, b)]
        return [
            {-1: ["s1"], 0: ["k", "s2", "e"], 1: ["s3"] + W(12, 14), 2: ["s4"] + W(14, 16), 3: ["s5"] + W(16, 18), 4: ["init", "s6"] + W(18, 20),
             5: ["fetch"] + W(0, 6) + W(20, 22), 6: W(6, 12) + ["put"]},
            {-1: ["s1:0-3"], 0: ["s1:3-13", "k", "s2:0-6"], 1: ["s2:6-13", "s3:0-10"], 2: ["s3:10-13", "s4", "e"], 3: ["s5"] + W(12, 15), 4: ["init", "s6"] + W(15, 18),
             5: ["fetch"] + W(0, 6) + W(18, 21), 6: W(6, 12) + ["w21", "put"]},
            {-1: ["s1:0-6"], 0: ["s1:6-13", "k", "s2:0-9"], 1: ["s2:9-13", "s3", "e"], 2: ["s4"] + W(12, 14), 3: ["s5"] + W(14, 17), 4: ["init", "s6"] + W(17, 19),
             5: ["fetch"] + W(0, 6) + W(19, 22), 6: W(6, 12) + ["put"]},
            {-1: ["s1:0-6"], 0: ["s1:6-13", "k", "s2:0-9"], 1: ["s2:9-13", "s3", "e"], 2: ["s4"], 3: ["s5"] + W(12, 15), 4: ["init", "s6"] + W(15, 18),
             5: ["fetch"] + W(0, 6) + W(18, 20), 6: W(6, 12) + W(20, 22) + ["put"]},
            {-1: ["s1:0-6"], 0: ["s1:6-13", "k", "s2"], 1: ["s3", "e"], 2: ["s4"] + W(12, 13), 3: ["s5"] + W(13, 16), 4: ["init", "s6"] + W(16, 19),
             5: ["fetch"] + W(0, 6) + W(19, 22), 6: W(6, 12) + ["put"]},
            {-1: ["s1:0-6"], 0: ["s1:6-13", "k", "s2"], 1: ["s3", "e"], 2: ["s4"] + W(12, 15), 3: ["init", "s5"] + W(15, 18), 4: ["fetch", "s6"] + W(18, 20),
             5: ["put"] + W(0, 6) + W(20, 22), 6: W(6, 12)},
        ][self.winn]
    nw1 = 6
    flagr = -1
    xs = 1
    psleep = 2
    fsleep = 2
    ttper = 2
    f2n = 9
    fpre = 1
    a0 = 18
    sprio = 0
    ksig = 12
    opol = 1
    lprio = 3
    w12early = 0
    slab = 0
    spol = 1
    fpol = 1
    pollr = 4
    nw2 = 16
    thr = 15
    hpf = 3
    ky = 2
    @property
    def perms(self):
        return {
            0: [[0, 1, 2, 3, 4, 5, 6]],
            1: [[0, 1, 2, 3, 4, 5, 6], [1, 2, 0, 4, 5, 3, 6], [2, 0, 1, 5, 3, 4, 6]],
            2: [[0, 1, 2, 3, 4, 5, 6], [1, 0, 3, 2, 5, 4, 6]],
            3: [[0, 1, 2, 3, 4, 5, 6], [1, 0, 4, 5, 6, 2, 3], [0, 1, 6, 2, 3, 4, 5]],
            4: [[0, 1, 2, 3, 4, 5, 6], [1, 2, 0, 4, 6, 3, 5], [2, 0, 1, 5, 6, 3, 4]],
            5: [[0, 1, 2, 3, 4, 5, 6], [1, 2, 3, 0, 5, 6, 4], [2, 3, 0, 1, 6, 4, 5], [3, 0, 1, 2, 4, 5, 6]],
        }[self.perm]

WSOFF = [0]
def srd(a, d, ptr, nbytes):
    if ptr == P_WS and WSOFF[0]:
        a(f"s_add_u32 s{ptr}, s{ptr}, {WSOFF[0]:#x}")
        a(f"s_addc_u32 s{ptr+1}, s{ptr+1}, 0")
    a(f"s_mov_b32 s{d}, s{ptr}")
    a(f"s_and_b32 s{d+1}, s{ptr+1}, 0xffff")
    a(f"s_mov_b32 s{d+2}, {nbytes:#x}")
    a(f"s_mov_b32 s{d+3}, 0x20000")

def srd_sel(a, d, ptr1, ptr0, nbytes):
    a(f"s_cselect_b32 s{d}, s{ptr1}, s{ptr0}")
    a(f"s_cselect_b32 s{d+1}, s{ptr1+1}, s{ptr0+1}")
    a(f"s_and_b32 s{d+1}, s{d+1}, 0xffff")
    a(f"s_mov_b32 s{d+2}, {nbytes:#x}")
    a(f"s_mov_b32 s{d+3}, 0x20000")

class TS:
    def __init__(self, a, cfg):
        self.a, self.on, self.n, self.set = a, cfg.ts, 0, cfg.tsset
        self.cfg = cfg
    def x(self, setno, i):
        if self.on and self.set == setno: self.emit(i)
    def __call__(self, i):
        if self.on and (self.set == 0 or i in (0, 12)): self.emit(i)
    def emit(self, i):
        if self.on == 5 and i not in (0, self.cfg.probe): return
        if self.on:
            assert i < 13
            self.a(f"{'s_memrealtime' if self.on != 2 else 's_memtime'} s[{TS0+2*i}:{TS0+2*i+1}]")
    def init(self):
        if self.on:
            for i in range(1, 13): self.a(f"s_mov_b32 s{TS0+2*i}, 0")
    def dump(self, vt, vt2, who=2):
        if not self.on: return
        a = self.a
        if self.on == 5:
            if who != self.cfg.pwho: return
            lab = a.newlabel("L_probe")
            if self.cfg.ponly >= 0:
                a(f"s_and_b32 s11, s2, {self.cfg.pmask}")
                a(f"s_cmp_lg_u32 s11, {self.cfg.ponly}")
                a(f"s_cbranch_scc1 {lab}_x")
            p = TS0 + 2 * self.cfg.probe
            a("s_waitcnt lgkmcnt(0)")
            a(f"s_sub_u32 s11, s{p}, s{TS0}")
            a(f"s_cmp_eq_u32 s{p}, 0")
            a("s_cselect_b32 s11, 0, s11")
            a("s_lshl_b32 s11, s11, 2")
            a("s_add_u32 s11, s11, 3000")
            a.label(lab)
            a("s_memrealtime s[12:13]")
            a("s_waitcnt lgkmcnt(0)")
            a(f"s_sub_u32 s12, s12, s{TS0}")
            a("s_cmp_lt_u32 s12, s11")
            a(f"s_cbranch_scc1 {lab}")
            a.label(lab + "_x")
            return
        if self.on == 3:
            a("s_waitcnt vmcnt(0) lgkmcnt(0)")
            lab = a.newlabel("L_nod")
            a(f"s_cmp_eq_u32 s{TS0+24}, 0")
            a(f"s_cbranch_scc1 {lab}")
            a(f"s_cmp_lg_u32 s{S_WAVE}, 0")
            a(f"s_cbranch_scc1 {lab}")
            a("s_mov_b64 exec, 1")
            a(f"v_mov_b32 v{vt2}, 0")
            a(f"s_not_b32 s11, s{TS0}")
            a(f"v_mov_b32 v{vt}, s11")
            a(f"global_atomic_umax v{vt2}, v{vt}, s[{P_DBG}:{P_DBG+1}] offset:4 sc1")
            for n, i in enumerate([0, 1, 2, 3, 4, 5, 6, 7, 8, 9, 10, 11, 12]):
                a("s_waitcnt vmcnt(0)")
                a(f"v_mov_b32 v{vt}, s{TS0+2*i}")
                a(f"global_atomic_umax v{vt2}, v{vt}, s[{P_DBG}:{P_DBG+1}] offset:{8+4*n} sc1")
            a("s_waitcnt vmcnt(0)")
            a.label(lab)
            return
        a("s_waitcnt vmcnt(0) lgkmcnt(0)")
        a(f"s_lshl_b32 s11, s2, 9")
        a(f"s_lshl_b32 s12, s{S_WAVE}, 6")
        a("s_add_u32 s11, s11, s12")
        a(f"s_add_u32 s11, s11, {WS_TS:#x}")
        a(f"v_mov_b32 v{vt2}, s11")
        for i in range(13):
            a(f"v_mov_b32 v{vt}, s{TS0+2*i}")
            a(f"buffer_store_dword v{vt}, v{vt2}, s[{SRD_WS}:{SRD_WS+3}], 0 offen offset:{4*i}")
        a("s_waitcnt vmcnt(0)")

def round_bf16(a, dst, src):
    a(f"v_cvt_pk_bf16_f32 v{dst}, v{src}, v{src}")
    a(f"v_lshlrev_b32 v{dst}, 16, v{dst}")

def exp_acc(a, dst, x, t0, t1):
    a(f"s_mov_b32 s36, {LOG2E:#x}")
    a(f"s_mov_b32 s37, {LOG2E_LO:#x}")
    a(f"v_mul_f32 v{t0}, s36, v{x}")
    a(f"v_fma_f32 v{t1}, v{x}, s36, -v{t0}")
    a(f"v_fma_f32 v{t1}, v{x}, s37, v{t1}")
    a(f"v_mul_f32 v{t1}, {LN2:#x}, v{t1}")
    a(f"v_exp_f32 v{dst}, v{t0}")
    a(f"v_fma_f32 v{dst}, v{dst}, v{t1}, v{dst}")

def csq(a, dr, di, sr, si, t):
    a(f"v_mul_f32 v{t}, v{si}, v{si}")
    a(f"v_add_f32 v{di}, v{si}, v{si}")
    a(f"v_mul_f32 v{di}, v{di}, v{sr}")
    a(f"v_fma_f32 v{dr}, v{sr}, v{sr}, -v{t}")

def cmul(a, dr, di, ar, ai, br, bi):
    a(f"v_mul_f32 v{dr}, v{ar}, v{br}")
    a(f"v_mul_f32 v{di}, v{ar}, v{bi}")
    a(f"v_fma_f32 v{dr}, -v{ai}, v{bi}, v{dr}")
    a(f"v_fma_f32 v{di}, v{ai}, v{br}, v{di}")

def ssm_const_load(a, vm, t):
    a(f"v_and_b32 v{t+3}, 15, v0")
    a(f"s_lshl_b32 s11, s{S_NS}, 4")
    a(f"v_add_lshl_u32 v{t+3}, v{t+3}, s11, 1")
    vm.issue('sc', f"global_load_ushort v{t}, v{t+3}, s[{P_LRE}:{P_LRE+1}]")
    vm.issue('sc', f"global_load_ushort v{t+1}, v{t+3}, s[{P_LIM}:{P_LIM+1}]")
    vm.issue('sc', f"global_load_ushort v{t+2}, v{t+3}, s[{P_LDT}:{P_LDT+1}]")

def ssm_const_calc(a, t, lr, li, cr=None, ci=None):
    for k in range(3): a(f"v_lshlrev_b32 v{t+k}, 16, v{t+k}")
    exp_acc(a, t + 3, t + 2, t + 4, t + 5)
    round_bf16(a, t + 2, t + 3)
    a(f"v_mul_f32 v{t+3}, v{t+2}, v{t}")
    a(f"v_mul_f32 v{t+6}, v{t+2}, v{t+1}")
    exp_acc(a, t + 7, t + 3, t + 4, t + 5)
    a(f"v_mul_f32 v{t+6}, {INV2PI:#x}, v{t+6}")
    a(f"v_rndne_f32 v{t+4}, v{t+6}")
    a(f"v_sub_f32 v{t+6}, v{t+6}, v{t+4}")
    a(f"v_cos_f32 v{t+4}, v{t+6}")
    a(f"v_sin_f32 v{t+5}, v{t+6}")
    a(f"v_mul_f32 v{lr}, v{t+7}, v{t+4}")
    a(f"v_mul_f32 v{li}, v{t+7}, v{t+5}")
    if cr is not None:
        a(f"v_add_f32 v{t+3}, -1.0, v{lr}")
        a(f"v_mul_f32 v{t+4}, v{t}, v{t}")
        a(f"v_fma_f32 v{t+4}, v{t+1}, v{t+1}, v{t+4}")
        a(f"v_rcp_f32 v{t+4}, v{t+4}")
        a(f"v_mul_f32 v{cr}, v{t+3}, v{t}")
        a(f"v_fma_f32 v{cr}, v{li}, v{t+1}, v{cr}")
        a(f"v_mul_f32 v{ci}, v{li}, v{t}")
        a(f"v_fma_f32 v{ci}, -v{t+3}, v{t+1}, v{ci}")
        a(f"v_add_f32 v{t+4}, v{t+4}, v{t+4}")
        a(f"v_mul_f32 v{cr}, v{cr}, v{t+4}")
        a(f"v_mul_f32 v{ci}, v{ci}, v{t+4}")

def gen_entry(a, cfg, ts):
    a("s_cmp_ge_u32 s2, 256")
    a("s_cbranch_scc1 L_exit")
    if cfg.padto: a("s_memrealtime s[100:101]")
    ts(0)
    a("s_load_dwordx16 s[16:31], s[0:1], 0")
    a("s_load_dwordx16 s[32:47], s[0:1], 64")
    a("v_lshrrev_b32 v1, 6, v0")
    a("v_and_b32 v0, 63, v0")
    a(f"v_readfirstlane_b32 s{S_WAVE}, v1")
    a(f"s_and_b32 s{S_XCD}, s2, 7")
    a(f"s_lshr_b32 s{S_SLOT}, s2, 3")
    a(f"s_and_b32 s11, s{S_SLOT}, 3")
    a(f"s_lshr_b32 s{S_NT}, s{S_SLOT}, 2")
    a(f"s_and_b32 s12, s{S_XCD}, 1")
    a(f"s_lshl_b32 s12, s12, 2")
    a(f"s_add_u32 s{S_MT}, s12, s11")
    a(f"s_lshr_b32 s12, s{S_XCD}, 1")
    a(f"s_mul_i32 s12, s12, 7")
    a(f"s_add_u32 s{S_NS}, s12, s{S_NT}")
    if cfg.slab:
        a(f"s_mov_b32 s{S_MT}, s{S_XCD}")
        a(f"s_mov_b32 s{S_NS}, s{S_SLOT}")
    a(f"s_lshl_b32 s12, s{S_XCD}, 2")
    a(f"s_add_u32 s{S_M64}, s12, s11")
    a(f"s_and_b32 s{S_W4}, s{S_WAVE}, 3")
    ts.init()
    a(f"s_cmp_ge_u32 s{S_SLOT}, 28")
    a("s_cbranch_scc1 L_helper")
    a(f"s_cmp_lt_u32 s{S_WAVE}, 4")
    a("s_cbranch_scc1 L_consumer")

def gen_helper(a, cfg, ts):
    a.label("L_helper")
    vm = VM(a)
    a(f"s_sub_u32 s73, s{S_SLOT}, 28")
    a(f"s_lshl_b32 s11, s73, 3")
    a(f"s_add_u32 s72, s11, s{S_XCD}")
    a(f"s_cmp_ge_u32 s{S_WAVE}, 4")
    a("s_cbranch_scc1 L_h_pf")
    a(f"s_lshl_b32 s11, s72, 6")
    a(f"s_lshl_b32 s12, s{S_WAVE}, 4")
    a(f"s_add_u32 s11, s11, s12")
    a("v_lshrrev_b32 v2, 3, v0")
    a("v_add_u32 v2, s11, v2")
    a("v_mul_u32_u24 v3, 896, v2")
    a("v_and_b32 v4, 7, v0")
    a("v_lshl_add_u32 v3, v4, 4, v3")
    a("s_waitcnt lgkmcnt(0)")
    srd(a, SRD_X, P_X, 2048 * 896)
    srd(a, SRD_WS, P_WS, WS_SIZE)
    a(f"s_mov_b32 s11, {8*896}")
    for ps in range(2):
        for j in range(7):
            so = "0" if ps == 0 else "s11"
            vm.issue(('x', ps), f"buffer_load_dwordx4 v[{112+28*ps+4*j}:{115+28*ps+4*j}], v3, s[{SRD_X}:{SRD_X+3}], {so} offen offset:{128*j}")
    a(f"s_cmp_gt_u32 s{S_WAVE}, 1")
    a("s_cbranch_scc1 L_h_noreset")
    a(f"s_cmp_eq_u32 s{S_WAVE}, 0")
    a("s_cselect_b32 s11, -1, 0")
    a("s_mov_b32 s12, 1024")
    a("s_cmov_b32 s12, 896")
    a(f"s_mov_b32 s13, {WS_FLAG:#x}")
    a(f"s_cmov_b32 s13, {WS_AGG:#x}")
    a("s_mul_i32 s14, s12, s72")
    a("s_add_u32 s13, s13, s14")
    for k in range(4): a(f"v_mov_b32 v{8+k}, s11")
    a("v_lshlrev_b32 v12, 4, v0")
    a("v_cmp_gt_u32 vcc, s12, v12")
    a("s_and_saveexec_b64 s[14:15], vcc")
    a(f"buffer_store_dwordx4 v[8:11], v12, s[{SRD_WS}:{SRD_WS+3}], s13 offen sc1")
    a("s_mov_b64 exec, s[14:15]")
    a.label("L_h_noreset")
    a("s_nop 1")
    a("v_lshlrev_b32 v2, 3, v2")
    a("s_mov_b32 s12, 0xffff0000")
    def fin(dst):
        a("v_add_f32 v8, v8, v9")
        a("v_add_f32 v10, v10, v11")
        a(f"v_add_f32 v{dst}, v8, v10")
        a(f"v_add_f32_dpp v{dst}, v{dst}, v{dst} quad_perm:[1,0,3,2] row_mask:0xf bank_mask:0xf")
        a(f"v_add_f32_dpp v{dst}, v{dst}, v{dst} quad_perm:[2,3,0,1] row_mask:0xf bank_mask:0xf")
        a(f"v_add_f32_dpp v{dst}, v{dst}, v{dst} row_half_mirror row_mask:0xf bank_mask:0xf")
        a(f"v_mul_f32 v{dst}, 0x3b124925, v{dst}")
    for ps in range(2):
        vm.wait(('x', ps))
        if cfg.hdelay == 2 + ps: a("s_barrier")
        src = 112 + 28 * ps
        for k in range(28):
            a(f"v_lshlrev_b32 v{48+2*k}, 16, v{src+k}")
            a(f"v_and_b32 v{49+2*k}, s12, v{src+k}")
        a("v_pk_add_f32 v[8:9], v[48:49], v[52:53]")
        a("v_pk_add_f32 v[10:11], v[50:51], v[54:55]")
        for k in range(4, 28): a(f"v_pk_add_f32 v[{8+2*(k%2)}:{9+2*(k%2)}], v[{8+2*(k%2)}:{9+2*(k%2)}], v[{48+2*k}:{49+2*k}]")
        fin(12)
        for k in range(28): a(f"v_pk_add_f32 v[{48+2*k}:{49+2*k}], v[{48+2*k}:{49+2*k}], v[12:13] op_sel_hi:[1,0] neg_lo:[0,1] neg_hi:[0,1]")
        for k in range(2): a(f"v_pk_mul_f32 v[{8+2*k}:{9+2*k}], v[{48+2*k}:{49+2*k}], v[{48+2*k}:{49+2*k}]")
        for k in range(2, 28): a(f"v_pk_fma_f32 v[{8+2*(k%2)}:{9+2*(k%2)}], v[{48+2*k}:{49+2*k}], v[{48+2*k}:{49+2*k}], v[{8+2*(k%2)}:{9+2*(k%2)}]")
        fin(13)
        o = 14 + 2 * ps
        round_bf16(a, o, 12)
        round_bf16(a, 13, 13)
        a("v_add_f32 v13, 0x3727c5ac, v13")
        round_bf16(a, 13, 13)
        a("v_sqrt_f32 v13, v13")
        round_bf16(a, 13, 13)
        a(f"v_rcp_f32 v{o+1}, v13")
        a("v_cmp_eq_u32 vcc, 0, v4")
        a("s_and_saveexec_b64 s[14:15], vcc")
        a(f"s_mov_b32 s11, {WS_STATS:#x}")
        vm.issue('st', f"buffer_store_dwordx2 v[{o}:{o+1}], v2, s[{SRD_WS}:{SRD_WS+3}], s11 offen offset:{64*ps} sc1")
        a("s_mov_b64 exec, s[14:15]")
    a("s_waitcnt vmcnt(0)")
    a("v_mov_b32 v8, 0")
    a("v_mov_b32 v9, 1")
    a("s_mov_b64 exec, 1")
    a(f"global_atomic_add v8, v9, s[{P_DBG}:{P_DBG+1}] sc1")
    a("s_mov_b64 exec, -1")
    ts(1)
    ts.dump(8, 9)
    a("s_endpgm")
    a.label("L_h_pf")
    a("v_lshlrev_b32 v2, 4, v0")
    a(f"s_lshl_b32 s11, s{S_W4}, 10")
    a("v_add_u32 v2, s11, v2")
    if cfg.cpf:
        a("s_getpc_b64 s[60:61]")
        a.label("L_pc")
        a(f"s_sub_u32 s60, s60, L_pc-{KNAME}")
        a("s_subb_u32 s61, s61, 0")
        a("s_lshl_b32 s11, s73, 12")
        a("v_add_u32 v3, s11, v2")
        for k in range(2):
            a(f"v_min_u32 v4, L_exit-{KNAME}-12, v3")
            a(f"global_load_dwordx4 v[24:27], v4, s[60:61]")
            a(f"v_add_u32 v3, 16384, v3")
    a("s_waitcnt lgkmcnt(0)")
    if cfg.hdelay == 1: a("s_waitcnt vmcnt(0)")
    if cfg.hdelay >= 2: a("s_barrier")
    srd(a, SRD_WS, P_WS, WS_SIZE)
    if cfg.hpf:
        for (ptr, nbytes, srdn) in ((P_CRE, 448 * 896, 48), (P_CIM, 448 * 896, 52), (P_WD, 1792 * 896, 56)):
            srd(a, srdn, ptr, nbytes)
        def sweep(name, srds, qbytes, first, count):
            n8 = -(-qbytes // (8 * 4096))
            n = 8 * n8
            a(f"s_mul_i32 s12, s73, {qbytes}")
            a(f"s_add_u32 s13, s{S_XCD}, {first}")
            a("s_and_b32 s13, s13, 7")
            a(f"s_mul_i32 s13, s13, {n8}")
            a("s_mov_b32 s14, 0")
            a.label(name)
            a("s_lshl_b32 s11, s13, 12")
            a("s_add_u32 s11, s11, s12")
            for k, sr in enumerate(srds):
                a(f"buffer_load_dwordx4 v[{16+4*k}:{19+4*k}], v2, s[{sr}:{sr+3}], s11 offen")
            a("s_add_u32 s13, s13, 1")
            a(f"s_cmp_eq_u32 s13, {n}")
            a("s_cselect_b32 s13, 0, s13")
            a("s_add_u32 s14, s14, 1")
            a(f"s_cmp_lt_u32 s14, {n8 * count}")
            a(f"s_cbranch_scc1 {name}")
        if cfg.hpf == 4:
            sweep("L_h_p0", [48, 52], 448 * 896 // 4, 0, 8)
        else:
            sweep("L_h_p1", [48, 52], 448 * 896 // 4, 0, 1)
            sweep("L_h_p2", [56], 1792 * 896 // 4, 0, 1)
        ts(2)
        if cfg.hpf == 3:
            sweep("L_h_p3", [48, 52], 448 * 896 // 4, 1, 7)
            ts(3)
    ts.dump(8, 9)
    a("s_endpgm")

def spin_check(a, name, load_text_list, cond_fn, sleep=1):
    lo, done = a.newlabel(name + "_spin"), a.newlabel(name + "_ok")
    a(f"s_mov_b32 s73, 0")
    a.label(lo)
    cond_fn()
    a(f"s_cbranch_scc1 {done}")
    a("s_add_u32 s73, s73, 1")
    a(f"s_cmp_ge_u32 s73, {SPIN_MAX}")
    a(f"s_cbranch_scc1 {done}")
    a(f"s_sleep {sleep}")
    for t in load_text_list: a(t)
    a("s_waitcnt vmcnt(0)")
    a(f"s_branch {lo}")
    a.label(done)
    a("s_nop 4")

def sspin(a, name, loads, cond_fn, sleep=1):
    lo, done = a.newlabel(name + "_spin"), a.newlabel(name + "_ok")
    a("s_mov_b32 s73, 0")
    a.label(lo)
    for t in loads: a(t)
    a("s_waitcnt lgkmcnt(0)")
    cond_fn()
    a(f"s_cbranch_scc1 {done}")
    a("s_add_u32 s73, s73, 1")
    a(f"s_cmp_lt_u32 s73, {SPIN_MAX}")
    if sleep: a(f"s_sleep {sleep}")
    a(f"s_cbranch_scc1 {lo}")
    a.label(done)

def flag_index(a, d, t, grp):
    a(f"s_mul_i32 s{t}, s{S_NS}, 37")
    a(f"s_lshr_b32 s{t}, s{t}, {8 if grp == 7 else 9}")
    a(f"s_mul_i32 s{t}, s{t}, {32 - grp}")
    a(f"s_add_u32 s{d}, s{t}, s{S_NS}")
    a(f"s_lshl_b32 s{d}, s{d}, 2")

def interleave(a, prim, fill, per):
    fill = list(fill)
    for p in prim:
        p()
        for _ in range(per):
            if fill: a(fill.pop(0))
    for f in fill: a(f)

def p2_rot(a, cfg, d_ffn, d_blk, d_flip):
    if not cfg.rot:
        for d in (d_ffn, d_blk, d_flip): a(f"s_mov_b32 s{d}, 0")
        return
    if cfg.rot == 2:
        a(f"s_and_b32 s11, s{S_SLOT}, 3")
        a(f"s_lshl_b32 s{d_ffn}, s11, 1")
        for d in (d_blk, d_flip): a(f"s_mov_b32 s{d}, 0")
        return
    a(f"s_and_b32 s11, s{S_SLOT}, 3")
    a("s_lshl_b32 s11, s11, 1")
    a(f"s_add_u32 s11, s11, s{S_NT}")
    a("s_cmp_ge_u32 s11, 7")
    a("s_cselect_b32 s13, 7, 0")
    a(f"s_sub_u32 s{d_ffn}, s11, s13")
    a(f"s_lshr_b32 s11, s{S_NT}, 1")
    a(f"s_and_b32 s13, s{S_SLOT}, 3")
    a("s_add_u32 s11, s11, s13")
    a("s_mul_i32 s13, s11, 43")
    a("s_lshr_b32 s13, s13, 7")
    a("s_mul_i32 s13, s13, 3")
    a(f"s_sub_u32 s{d_blk}, s11, s13")
    a(f"s_and_b32 s{d_flip}, s{S_NT}, 1")

def slot(reg, n): return R[reg] + 2048 * n
SA = [slot(1, n) for n in range(6)]; SB = [slot(2, n) for n in range(6)]; SC = [slot(0, n) for n in range(6)]
WSLOT = {}
for n in range(6): WSLOT[n] = SA[n]; WSLOT[6 + n] = SB[n]
for n in range(4): WSLOT[12 + n] = SC[n]; WSLOT[16 + n] = SA[n]; WSLOT[20 + n] = SB[n]
WSLOT.update({24: SA[4], 25: SA[5], 26: SB[4], 27: SB[5]})
HTS = SC[4]
PH1, PH2, GA, FXA, SD = SC[0], SC[4], SB[0], SA[0], SC[0]

class Rec:
    def __init__(self): self.L = []
    def __call__(self, t): self.L.append(t)

def ssm_park(kc, K, KP, sQ):
    LR, LI, CR, CI, L16R, L16I, PWR, PWI, L64R, L64I, LWR, LWI, W0R = [KP + k for k in range(13)]
    vTW, vTR, vCB = KP + 16, KP + 17, KP + 18
    ssm_const_calc(kc, K, LR, LI, CR, CI)
    csq(kc, L16R, L16I, LR, LI, K)
    for _ in range(3): csq(kc, L16R, L16I, L16R, L16I, K)
    def powsel(dr, di, br, bi, bit, src):
        cmul(kc, K + 1, K + 2, dr, di, br, bi)
        kc(f"v_and_b32 v{K}, {bit}, v{src}")
        kc(f"v_cmp_ne_u32 vcc, 0, v{K}")
        kc(f"v_cndmask_b32 v{dr}, v{dr}, v{K+1}, vcc")
        kc(f"v_cndmask_b32 v{di}, v{di}, v{K+2}, vcc")
    kc(f"v_mov_b32 v{PWR}, v{CR}"); kc(f"v_mov_b32 v{PWI}, v{CI}")
    powsel(PWR, PWI, L16R, L16I, 32, 0)
    csq(kc, K + 14, K + 15, L16R, L16I, K)
    powsel(PWR, PWI, K + 14, K + 15, 16, 0)
    csq(kc, L64R, L64I, K + 14, K + 15, K)
    kc(f"v_mov_b32 v{K+10}, s{S_W4}")
    kc(f"v_mov_b32 v{LWR}, 1.0"); kc(f"v_mov_b32 v{LWI}, 0")
    powsel(LWR, LWI, L64R, L64I, 1, K + 10)
    csq(kc, K + 14, K + 15, L64R, L64I, K)
    powsel(LWR, LWI, K + 14, K + 15, 2, K + 10)
    csq(kc, K + 14, K + 15, K + 14, K + 15, K)
    kc(f"v_lshrrev_b32 v{K+10}, 4, v0")
    kc(f"v_sub_u32 v{K+10}, s{S_MT}, v{K+10}")
    kc(f"v_add_u32 v{K+11}, -5, v{K+10}")
    kc(f"v_add_u32 v{K+10}, -1, v{K+10}")
    kc(f"v_mov_b32 v{W0R}, 1.0"); kc(f"v_mov_b32 v{W0R+1}, 0")
    kc(f"v_mov_b32 v{W0R+2}, 1.0"); kc(f"v_mov_b32 v{W0R+3}, 0")
    for b in range(3):
        powsel(W0R, W0R + 1, K + 14, K + 15, 1 << b, K + 10)
        if b < 2: powsel(W0R + 2, W0R + 3, K + 14, K + 15, 1 << b, K + 11)
        if b < 2: csq(kc, K + 14, K + 15, K + 14, K + 15, K)
    kc(f"s_add_u32 s36, s{sQ}, {HTS}")
    kc(f"v_bfe_u32 v{K}, v0, 4, 1")
    kc(f"v_lshrrev_b32 v{K+1}, 5, v0")
    kc(f"v_lshl_add_u32 v{K+2}, v{K}, 1, v{K+1}")
    kc(f"v_and_b32 v{K+3}, 15, v0")
    kc(f"v_and_b32 v{vTW}, 6, v{K+3}")
    kc(f"v_lshlrev_b32 v{vTW}, 4, v{vTW}")
    kc(f"v_lshlrev_b32 v{K+4}, 5, v{K+2}")
    kc(f"v_xor_b32 v{vTW}, v{vTW}, v{K+4}")
    kc(f"v_lshl_add_u32 v{vTW}, v{K+3}, 7, v{vTW}")
    kc(f"v_add_u32 v{vTW}, s36, v{vTW}")
    kc(f"v_lshlrev_b32 v{vCB}, 2, v{K+3}")
    kc(f"v_add_u32 v{vCB}, {C_L + 512}, v{vCB}")
    kc(f"v_bfe_u32 v{K+4}, v0, 2, 2")
    kc(f"v_lshl_add_u32 v{K+5}, v{K+1}, 3, v{K+4}")
    kc(f"v_lshlrev_b32 v{vTR}, 7, v{K+5}")
    kc(f"v_lshrrev_b32 v{K+4}, 1, v{K+4}")
    kc(f"v_xor_b32 v{K+4}, v{K+4}, v0")
    kc(f"v_and_b32 v{K+4}, 1, v{K+4}")
    kc(f"v_lshl_add_u32 v{vTR}, v{K+4}, 5, v{vTR}")
    kc(f"v_lshl_add_u32 v{vTR}, v{K}, 4, v{vTR}")
    kc(f"v_bfe_u32 v{K+4}, v0, 1, 1")
    kc(f"v_lshl_add_u32 v{vTR}, v{K+4}, 3, v{vTR}")
    kc(f"v_add_u32 v{vTR}, s36, v{vTR}")
    kc(f"s_lshl_b32 s36, s{S_W4}, 9")
    kc(f"s_add_u32 s36, s36, {STATS_L}")
    kc(f"v_lshl_add_u32 v{KP+19}, v{K+2}, 7, s36")
    vStS = KP + 19
    vAg, vPr, vF = KP + 20, KP + 21, KP + 22
    kc(f"v_lshlrev_b32 v{vAg}, 3, v{K+3}")
    kc(f"v_lshrrev_b32 v{vPr}, 4, v0")
    kc(f"v_mul_u32_u24 v{vPr}, 3584, v{vPr}")
    kc(f"s_lshl_b32 s36, s{S_NS}, 7")
    kc(f"v_add3_u32 v{vPr}, v{vPr}, v{vAg}, s36")
    kc(f"v_add_u32 v{vAg}, {AGG_L}, v{vAg}")
    kc(f"s_lshl_b32 s36, s{S_MT}, 2")
    kc(f"s_add_u32 s36, s36, s{S_W4}")
    kc("s_lshl_b32 s36, s36, 10")
    flag_index(kc, 37, 38, 14)
    kc("s_add_u32 s36, s36, s37")
    kc(f"s_add_u32 s36, s36, {WS_FLAG + 512:#x}")
    kc(f"v_mov_b32 v{vF}, s36")

def gen_loader(a, cfg, ts):
    a.label("L_loader")
    a("s_setprio 3")
    vm = VM(a)
    vXe, vXo, vW, vB = 1, 2, 3, 4
    vFv, vP, vO, vPQ = 5, 6, 7, 8
    vWd, vCe, vCo, vCh = 9, 10, 11, 12
    vRf, vRh = 13, 14
    vA, vC = 24, 25
    vT = 15
    ACC, CA, RD = 27, 28, 44
    STG = 64
    CF = 144
    SACC = 80
    XRAW = CF + 64
    KP = XRAW + 8
    sGrp = [28, 29, 30, 31, 36, 37, 21]
    SP = ['', ' sc1'][cfg.spol]
    sMX, sMW, sMB, sMP = 72, 74, 75, 70
    sPerm, sSX, sSW = 68, 69, 15
    sRF = 14
    AP = ['', ' sc1', ' sc1 nt', ' sc0 sc1', ' sc0', ' nt'][cfg.apol]
    OP = ['', ' sc1', ' nt', ' sc1 nt'][cfg.opol]
    polx = " nt" if cfg.polx else ""
    polw = " nt" if cfg.polw else ""
    a(f"v_lshrrev_b32 v{vA}, 3, v0")
    a(f"v_and_b32 v{vC}, 7, v0")
    a(f"v_lshrrev_b32 v{vT+2}, 1, v{vA}")
    a(f"s_lshl_b32 s11, s{S_W4}, 4")
    a(f"v_add_u32 v{vT}, s11, v{vA}")
    a(f"v_mul_u32_u24 v{vW}, 3584, v{vT}")
    a(f"v_and_b32 v{vT+4}, 1, v{vT+2}")
    a(f"v_lshlrev_b32 v{vT+4}, 2, v{vT+4}")
    a(f"v_xor_b32 v{vT+4}, v{vC}, v{vT+4}")
    a(f"v_lshl_add_u32 v{vW}, v{vT+4}, 4, v{vW}")
    a(f"s_lshl_b32 s11, s{S_NS}, 7")
    a(f"v_add_u32 v{vW}, s11, v{vW}")
    a(f"s_lshl_b32 s11, s{S_MT}, 8")
    a(f"s_lshl_b32 s12, s{S_W4}, 6")
    a("s_add_u32 s11, s11, s12")
    a(f"v_lshrrev_b32 v{vT}, 2, v{vA}")
    a(f"v_and_b32 v{vT+1}, 3, v{vA}")
    a(f"v_lshl_add_u32 v{vT}, v{vT}, 4, v{vT+1}")
    a(f"v_add_u32 v{vT}, s11, v{vT}")
    a(f"v_mul_u32_u24 v{vXe}, 896, v{vT}")
    a(f"v_xor_b32 v{vT+3}, v{vC}, v{vT+2}")
    a(f"v_lshl_add_u32 v{vXe}, v{vT+3}, 4, v{vXe}")
    a(f"v_xor_b32 v{vXo}, 64, v{vXe}")
    a(f"s_and_b32 s12, s{S_W4}, 1")
    a(f"s_lshl_b32 s11, s{S_NS}, 4")
    a(f"s_lshl_b32 s13, s12, 3")
    a("s_add_u32 s11, s11, s13")
    a(f"v_add_u32 v{vT}, s11, v{vA}")
    a(f"v_mul_u32_u24 v{vB}, 896, v{vT}")
    a(f"v_lshl_add_u32 v{vB}, v{vT+3}, 4, v{vB}")
    a("s_lshl_b32 s13, s12, 6")
    a(f"v_xor_b32 v{vB}, s13, v{vB}")
    a(f"s_lshl_b32 s{sMX}, s{S_W4}, 13")
    a(f"s_lshl_b32 s{sMW}, s{S_W4}, 11")
    a(f"s_lshl_b32 s{sMB}, s{S_W4}, 10")
    a(f"s_mul_i32 s{sMP}, s{S_W4}, {Q}")
    perms = cfg.perms
    words = [sum(p[k] << (4 * k) for k in range(7)) for p in perms]
    ng = len(words)
    a(f"s_mov_b32 s{sPerm}, {words[0]:#x}")
    if ng > 1:
        if cfg.slab:
            a(f"s_add_u32 s11, s{S_SLOT}, s{S_XCD}")
        else:
            a(f"s_and_b32 s11, s{S_SLOT}, 3")
            a(f"s_add_u32 s11, s11, s{S_NT}")
        if ng == 3:
            a("s_mul_i32 s13, s11, 43")
            a("s_lshr_b32 s13, s13, 7")
            a("s_mul_i32 s13, s13, 3")
            a("s_sub_u32 s11, s11, s13")
        else:
            a(f"s_and_b32 s11, s11, {ng-1}")
        for g in range(1, ng):
            a(f"s_cmp_eq_u32 s11, {g}")
            a(f"s_cmov_b32 s{sPerm}, {words[g]:#x}")
    ts.x(1, 1)
    a("s_waitcnt lgkmcnt(0)")
    ts.x(1, 2)
    if cfg.tlb:
        a(f"v_mov_b32 v40, s{P_X}")
        a(f"v_mov_b32 v41, s{P_X+1}")
        for ln, p in enumerate([P_WG, P_WU, P_BRE, P_BIM, P_WD, P_CRE, P_CIM, P_WS][:cfg.tlb], 1):
            a(f"v_writelane_b32 v40, s{p}, {ln}")
            a(f"v_writelane_b32 v41, s{p+1}, {ln}")
        a(f"s_mov_b64 exec, {(1 << (cfg.tlb + 1)) - 1:#x}")
        a("global_load_dword v62, v[40:41], off")
        a("s_mov_b64 exec, -1")
    srd(a, SRD_A, P_WG, 448 * 3584)
    srd(a, SRD_X, P_X, 2048 * 896)
    srd(a, SRD_B, P_WU, 448 * 3584)
    a(f"s_cmp_ge_u32 s{S_W4}, 2")
    srd_sel(a, SRD_C, P_BIM, P_BRE, 448 * 896)

    thr = [None]
    def dma(vm, tag, voff, srdn, sbase, soff, m0base, m0off, pol=""):
        a(f"s_add_u32 m0, s{m0base}, {m0off}")
        a(f"s_add_u32 s11, s{sbase}, {soff}")
        if thr[0] is not None and len(vm.q) > thr[0]:
            a(f"s_waitcnt vmcnt({thr[0]})")
            vm.q = vm.q[-thr[0]:]
        vm.issue(tag, f"buffer_load_dwordx4 v{voff}, s[{srdn}:{srdn+3}], s11 offen{pol} lds")
    def issue_ops(s):
        r = R[s % 3]
        ops = []
        def pre():
            a(f"s_bfe_u32 s{sSX}, s{sPerm}, {(4 << 16) | (4 * s):#x}")
            a(f"s_mul_i32 s{sSW}, s{sSX}, {64*3584}")
            a(f"s_lshl_b32 s{sSX}, s{sSX}, 7")
        def mk(*args): return lambda: dma(vm, ('st', s), *args)
        L = []
        for i in range(2): L.append(mk(vW, SRD_A, sSW, i * 8 * 3584, sMW, r + OFF_WG + i * 1024, polw))
        for j in range(4): L.append(mk(vXo if j & 1 else vXe, SRD_X, sSX, (32 * (j >> 2) + 4 * (j & 3)) * 896, sMX, r + j * 1024, polx))
        for i in range(2): L.append(mk(vW, SRD_B, sSW, i * 8 * 3584, sMW, r + OFF_WU + i * 1024, polw))
        for j in range(4, 8): L.append(mk(vXo if j & 1 else vXe, SRD_X, sSX, (32 * (j >> 2) + 4 * (j & 3)) * 896, sMX, r + j * 1024, polx))
        L.append(mk(vB, SRD_C, sSX, 0, sMB, r + OFF_BB, polw))
        first = L[0]
        L[0] = lambda: (pre(), first())
        return L
    SRD_WD, SRD_CC, sBlk, sFlip, P_DSK2 = 32, 24, 16, 17, 38
    def w_ops(ps):
        L = []
        for p in ps:
            for n in range(2):
                def op(p=p, n=n):
                    if 12 <= p < 22:
                        d = STG + (p - 12) * 8 + 4 * n
                        a(f"s_add_u32 s11, s{sGrp[p//4]}, {((p % 4) * 16 + 8 * n) * 896}")
                        vm.issue(('w', p), f"buffer_load_dwordx4 v[{d}:{d+3}], v{vWd}, s[{SRD_WD}:{SRD_WD+3}], s11 offen")
                    else:
                        dma(vm, ('w', p), vWd, SRD_WD, sGrp[p//4], ((p % 4) * 16 + 8 * n) * 896, sMP, WSLOT[p] + n * 1024)
                L.append(op)
        return L
    def cf_ops(b, base):
        L = []
        for n in range(8):
            def op(n=n):
                if n == 0: a(f"s_mov_b32 s12, {b*128}")
                dst = base + n * 1024 if b < 2 else (SA[4], SB[4])[n >> 2] + (n & 3) * 1024
                dma(vm, ('c', b), vCo if n & 1 else vCe, SRD_CC, 12, 8 * n * 896, sMP, dst)
            L.append(op)
        return L
    def ch_ops(base):
        L = []
        for n in range(4):
            def op(n=n):
                if n == 0: a("s_mov_b32 s12, 0")
                dma(vm, ('c', 3), vCh, SRD_CC, 12, 16 * n * 896, sMP, base + n * 1024)
            L.append(op)
        return L
    def cf_read(b, base):
        if b < 2:
            a(f"s_add_u32 s11, s{sMP}, {base}")
            a("s_mov_b32 s12, s11")
        else:
            a(f"s_add_u32 s12, s{sMP}, {SA[4]}")
            a(f"s_add_u32 s13, s{sMP}, {SB[4] - 4096}")
            a(f"s_cmp_ge_u32 s{S_W4}, 2")
            a("s_cselect_b32 s11, s13, s12")
            a("s_cselect_b32 s12, s12, s13")
        vm.wait(('c', b))
        for ks in range(4):
            for lc in range(2):
                t = vT + lc
                a(f"v_xor_b32 v{t}, {32*ks + 4096*lc}, v{vRf}")
                a(f"v_add_u32 v{t}, s{11+lc}, v{t}")
                d = CF + (4 * b + ks) * 8 + 4 * lc
                a(f"ds_read_b128 v[{d}:{d+3}], v{t}")
    def ch_read(base):
        a(f"s_add_u32 s11, s{sMP}, {base}")
        vm.wait(('c', 3))
        for lc in range(2):
            a(f"v_xor_b32 v{vT+lc}, {2048*lc}, v{vRh}")
            a(f"v_add_u32 v{vT+lc}, s11, v{vT+lc}")
            for ks in range(2):
                d = CF + (12 + ks) * 8 + 4 * lc
                a(f"ds_read_b128 v[{d}:{d+3}], v{vT+lc} offset:{ks*32}")
    def w_write(ps):
        vm.wait(('w', ps[-1]))
        base = WSLOT[ps[0]]
        a(f"v_add_u32 v{vT+4}, {base}, v{vPQ}")
        for p in ps:
            for n in range(2):
                d = STG + (p - 12) * 8 + 4 * n
                a(f"ds_write_b128 v{vT+4}, v[{d}:{d+3}] offset:{WSLOT[p] - base + 1024*n}")
    def colsum_reads(s):
        r = R[s % 3]
        a(f"s_add_u32 s11, s{sMW}, {r + OFF_WG}")
        a(f"v_add_u32 v{vT}, s11, v{vP}")
        a(f"s_add_u32 s11, s{sMB}, {r + OFF_BB}")
        a(f"v_add_u32 v{vT+1}, s11, v{vP}")
        a(f"ds_read_b128 v[{RD}:{RD+3}], v{vT}")
        a(f"ds_read_b128 v[{RD+4}:{RD+7}], v{vT} offset:1024")
        a(f"ds_read_b128 v[{RD+8}:{RD+11}], v{vT} offset:8192")
        a(f"ds_read_b128 v[{RD+12}:{RD+15}], v{vT} offset:9216")
        a(f"ds_read_b128 v[{RD+16}:{RD+19}], v{vT+1}")
    def colsum_ops():
        L = ["s_waitcnt lgkmcnt(0)"]
        for n in range(4):
            for d in range(4):
                w = RD + 4 * n + d
                ac = CA + (n >> 1) * 8 + 2 * d
                L.append(f"v_lshlrev_b32 v{vT+2}, 16, v{w}")
                L.append(f"v_and_b32 v{vT+3}, s71, v{w}")
                L.append(f"v_add_f32 v{ac}, v{ac}, v{vT+2}")
                L.append(f"v_add_f32 v{ac+1}, v{ac+1}, v{vT+3}")
        for d in range(4):
            w = RD + 16 + d
            L.append(f"v_lshlrev_b32 v{vT+2}, 16, v{w}")
            L.append(f"v_and_b32 v{vT+3}, s71, v{w}")
            L.append(f"v_add_f32 v{vT+2}, v{vT+2}, v{vT+3}")
            L.append(f"v_add_f32 v{ACC}, v{ACC}, v{vT+2}")
        return L

    stage_ops = {}
    def tok_ops(toks):
        L = []
        for t in toks:
            if t[0] == 's':
                st = int(t[1])
                if st not in stage_ops: stage_ops[st] = issue_ops(st)
                lo, hi = (0, 13) if ':' not in t else map(int, t.split(':')[1].split('-'))
                L += stage_ops[st][lo:hi]
            elif t[0] == 'w': L += w_ops([int(t[1:])])
            elif t == 'c0': L += cf_ops(0, SA[0])
            elif t == 'c1': L += cf_ops(1, SB[0])
            elif t == 'c2': L += [lambda: a("s_waitcnt lgkmcnt(0)")] + cf_ops(2, SA[0])
            elif t == 'ch': L += ch_ops(SA[4])
            else: L.append(lambda t=t: special(t))
        return L
    def run_tokens(toks):
        for o in tok_ops(toks): o()
    def special(t):
        if True:
            if t == 'r0':
                cf_read(0, SA[0]); ch_read(SA[4])
            elif t == 'put':
                vm.wait('stats')
                a(f"s_lshl_b32 s11, s{S_W4}, 9")
                a(f"s_add_u32 s11, s11, {STATS_L}")
                a(f"v_lshl_add_u32 v{vT+4}, v0, 3, s11")
                a(f"ds_write_b64 v{vT+4}, v[20:21]")
                a(f"v_lshlrev_b32 v{vT+4}, 3, v0")
                a(f"v_add_u32 v{vT+4}, {ST2_L}, v{vT+4}")
                a(f"ds_write_b64 v{vT+4}, v[22:23]")
            elif t == 'e':
                a(f"s_add_u32 s12, s41, {16*896}")
                vm.issue('e', f"buffer_load_dwordx4 v[{XRAW}:{XRAW+3}], v20, s[{SRD_X}:{SRD_X+3}], s41 offen")
                vm.issue('e', f"buffer_load_dwordx4 v[{XRAW+4}:{XRAW+7}], v20, s[{SRD_X}:{SRD_X+3}], s12 offen")
                vm.issue('e', f"global_load_ushort v{CF+96}, v21, s[{P_DSK2}:{P_DSK2+1}]")
            elif t == 'k':
                a("s_waitcnt lgkmcnt(0)")
            elif t == 'init':
                a(f"v_mov_b32 v26, 0")
                vm.issue('init', f"global_load_dword v5, v26, s[{P_DBG}:{P_DBG+1}] sc1")
            elif t == 'fetch':
                vm.wait('init')
                def cond():
                    a(f"v_readfirstlane_b32 s11, v5")
                    a(f"s_cmp_ge_u32 s11, {INIT_N}")
                spin_check(a, "L_init", [f"global_load_dword v5, v26, s[{P_DBG}:{P_DBG+1}] sc1"], cond, 8)
                a(f"s_lshl_b32 s11, s{S_MT}, 8")
                a(f"s_lshl_b32 s12, s{S_W4}, 6")
                a("s_add_u32 s11, s11, s12")
                a(f"v_add_lshl_u32 v5, v0, s11, 3")
                a(f"s_lshl_b32 s12, s{S_M64}, 6")
                a(f"v_add_lshl_u32 v26, v0, s12, 3")
                a(f"s_mov_b32 s11, {WS_STATS:#x}")
                vm.issue('stats', f"buffer_load_dwordx2 v[20:21], v5, s[{SRD_WS}:{SRD_WS+3}], s11 offen sc1")
                vm.issue('stats', f"buffer_load_dwordx2 v[22:23], v26, s[{SRD_WS}:{SRD_WS+3}], s11 offen sc1")
            else: raise ValueError(t)
    win = cfg.win
    run_tokens(["s0"])
    ts(1)
    ts.x(1, 6)
    run_tokens(win.get(-1, []))
    a("s_setprio 0")
    a(f"s_and_b32 s12, s{S_W4}, 1")
    a(f"v_lshlrev_b32 v{vP}, 4, v0")
    a(f"v_add_u32 v{vPQ}, s{sMP}, v{vP}")
    a(f"s_mul_i32 s14, s{S_W4}, 448")
    a(f"v_add_u32 v{vT}, s14, v{vA}")
    a(f"v_mul_u32_u24 v{vWd}, 896, v{vT}")
    a(f"v_lshl_add_u32 v{vWd}, v{vT+4}, 4, v{vWd}")
    a(f"s_lshl_b32 s14, s{S_NT}, 7")
    a(f"v_add_u32 v{vWd}, s14, v{vWd}")
    a(f"s_lshl_b32 s14, s{S_NT}, 6")
    a(f"v_add_u32 v{vT}, s14, v{vA}")
    a(f"v_mul_u32_u24 v{vCe}, 896, v{vT}")
    a(f"v_lshl_add_u32 v{vCe}, v{vT+3}, 4, v{vCe}")
    a("s_lshl_b32 s13, s12, 9")
    a(f"v_add_u32 v{vCe}, s13, v{vCe}")
    a(f"v_xor_b32 v{vCo}, 64, v{vCe}")
    a(f"v_lshrrev_b32 v{vT}, 2, v0")
    a(f"v_add_u32 v{vT}, s14, v{vT}")
    a(f"v_mul_u32_u24 v{vCh}, 896, v{vT}")
    a(f"v_and_b32 v{vT+1}, 3, v0")
    a(f"v_lshl_add_u32 v{vCh}, v{vT+1}, 4, v{vCh}")
    a("s_lshl_b32 s13, s12, 6")
    a("s_add_u32 s13, s13, 384")
    a(f"v_add_u32 v{vCh}, s13, v{vCh}")
    a("s_mov_b32 s71, 0xffff0000")
    for k in range(17): a(f"v_mov_b32 v{ACC+k}, 0")
    srd(a, SRD_WS, P_WS, WS_SIZE)
    a(f"s_cmp_ge_u32 s{S_W4}, 2")
    srd_sel(a, SRD_CC, P_CIM, P_CRE, 448 * 896)
    a(f"s_mov_b64 s[{P_DSK2}:{P_DSK2+1}], s[{P_DSK}:{P_DSK+1}]")
    srd(a, SRD_WD, P_WD, 1792 * 896)
    p2_rot(a, cfg, sRF, sBlk, sFlip)
    a(f"s_lshl_b32 s11, s{S_M64}, 1")
    a("s_add_u32 s40, s11, s12")
    a("s_lshl_b32 s12, s40, 5")
    a(f"v_lshrrev_b32 v{vT}, 2, v0")
    a(f"v_add_u32 v{vT}, s12, v{vT}")
    a(f"v_mul_u32_u24 v{vT}, 896, v{vT}")
    a(f"v_lshl_add_u32 v20, v{vT+1}, 4, v{vT}")
    a(f"v_lshrrev_b32 v{vT+2}, 5, v0")
    a(f"v_lshl_add_u32 v{vT}, v{vT+2}, 4, s12")
    a(f"s_lshr_b32 s13, s{S_W4}, 1")
    a("s_lshl_b32 s12, s13, 5")
    a(f"s_lshl_b32 s11, s{S_NT}, 6")
    a("s_add_u32 s11, s11, s12")
    a("s_lshl_b32 s41, s11, 1")
    a(f"v_and_b32 v{vT+3}, 31, v0")
    a(f"v_add_u32 v{vT+1}, s11, v{vT+3}")
    a(f"v_mul_u32_u24 v{vT}, 448, v{vT}")
    a(f"v_add_lshl_u32 v{vO}, v{vT}, v{vT+1}, 2")
    a(f"v_lshlrev_b32 v21, 1, v{vT+1}")
    a(f"v_bfe_u32 v{vT}, v0, 1, 3")
    a(f"v_xor_b32 v{vT}, v{vT}, v{vT+2}")
    a(f"v_lshlrev_b32 v{vT}, 4, v{vT}")
    a(f"v_lshl_add_u32 v{vRf}, v{vT+3}, 7, v{vT}")
    a("s_lshl_b32 s12, s13, 12")
    a(f"v_add_u32 v{vRf}, s12, v{vRf}")
    a(f"v_lshlrev_b32 v{vT}, 4, v{vT+2}")
    a(f"v_lshl_add_u32 v{vRh}, v{vT+3}, 6, v{vT}")
    a("s_lshl_b32 s12, s13, 11")
    a(f"v_add_u32 v{vRh}, s12, v{vRh}")
    a(f"v_bfe_u32 v{vT}, v0, 4, 1")
    a(f"v_lshlrev_b32 v{vT+1}, 2, v{vT}")
    a(f"v_xor_b32 v{vC}, v{vC}, v{vT+1}")
    a(f"v_lshlrev_b32 v{vC}, 5, v{vC}")
    a(f"v_lshl_add_u32 v{vC}, v{vT}, 9, v{vC}")
    a(f"v_lshl_add_u32 v{vC}, v{vT+2}, 8, v{vC}")
    a(f"s_add_u32 s11, s{sMB}, {CP_L}")
    a(f"v_add_u32 v{vC}, s11, v{vC}")
    a(f"s_lshl_b32 s11, s{S_W4}, 5")
    a(f"s_add_u32 s11, s11, {C_L + 512}")
    a(f"v_lshl_add_u32 v{vA}, v{vA}, 2, s11")
    ts.x(1, 8)
    LR, LI, CR, CI, L16R, L16I, PWR, PWI, L64R, L64I, LWR, LWI, W0R = [KP + k for k in range(13)]
    vTW, vTR, vCB, vStS, vAg, vPr, vF = [KP + k for k in range(16, 23)]
    a(f"s_lshl_b32 s21, s{S_NS}, 7")
    a(f"s_mul_i32 s22, s{S_MT}, 3584")
    a("s_add_u32 s22, s22, s21")
    a(f"s_add_u32 s22, s22, {WS_AGG - AGG_L:#x}")
    a(f"s_mov_b32 s23, {WS_AGG:#x}")
    a(f"s_mov_b32 s20, {WS_AGG + 4*3584:#x}")
    a(f"s_lshl_b32 s18, s{S_M64}, 10")
    a(f"s_and_b32 s11, s{S_W4}, 1")
    a("s_lshl_b32 s11, s11, 7")
    a("s_add_u32 s18, s18, s11")
    a(f"s_add_u32 s18, s18, {WS_FLAG + 512:#x}")
    a(f"s_lshl_b32 s11, s{S_MT}, 2")
    a(f"s_add_u32 s11, s11, s{S_W4}")
    a(f"s_mul_i32 s19, s11, {2*RT_BYTES}")
    a(f"s_lshl_b32 s11, s{S_NS}, 10")
    a("s_add_u32 s19, s19, s11")
    a(f"s_add_u32 s19, s19, {56*1024}")
    for g in range(7):
        a(f"s_add_u32 s12, s{sRF}, {g}")
        a("s_cmp_ge_u32 s12, 7")
        a("s_cselect_b32 s13, 7, 0")
        a("s_sub_u32 s12, s12, s13")
        a(f"s_mul_i32 s{sGrp[g]}, s12, {64*896}")
    a(f"s_add_u32 s11, s{sMX}, {R[2]}")
    a(f"v_add_u32 v{vT+4}, s11, v{vP}")
    kparts = {}
    if cfg.wprio: a(f"s_setprio {cfg.wprio}")
    for s in range(7):
        vm.wait(('st', s))
        ts.x(2, 1 + s)
        a("s_barrier")
        ts.x(3, 1 + s)
        if s == 0: ts(2)
        if s == 0:
            for k in range(6): a(f"ds_read_b128 v[{KP+4*k}:{KP+4*k+3}], v{vT+4} offset:{1024*k}")
        colsum_reads(s)
        toks = win.get(s, [])
        ops = tok_ops(toks)
        fl = colsum_ops() + kparts.get(s, [])
        if s == 6:
            b = ACC
            for k in range(8): fl.append(f"v_permlane32_swap_b32 v{CA+k}, v{CA+8+k}")
            fl.append(f"v_add_f32_dpp v{b}, v{b}, v{b} quad_perm:[1,0,3,2] row_mask:0xf bank_mask:0xf")
            for k in range(8): fl.append(f"v_add_f32 v{CA+k}, v{CA+k}, v{CA+8+k}")
            fl.append(f"v_add_f32_dpp v{b}, v{b}, v{b} quad_perm:[2,3,0,1] row_mask:0xf bank_mask:0xf")
            for k in range(8): fl.append(f"v_add_f32_dpp v{CA+k}, v{CA+k}, v{CA+k} row_ror:8 row_mask:0xf bank_mask:0xf")
            fl.append(f"v_add_f32_dpp v{b}, v{b}, v{b} row_half_mirror row_mask:0xf bank_mask:0xf")
            fl.append(f"ds_write_b128 v{vC}, v[{CA}:{CA+3}]")
            fl.append(f"ds_write_b128 v{vC}, v[{CA+4}:{CA+7}] offset:16")
            fl.append(f"ds_write_b32 v{vA}, v{b}")
        per = max(1, -(-len(fl) // max(1, len(ops))))
        interleave(a, ops, fl, per)
    a(f"s_and_b32 s12, s{S_W4}, 1")
    a("s_lshl_b32 s12, s12, 8")
    a(f"v_lshl_add_u32 v{vT}, v0, 2, s12")
    a(f"v_add_u32 v{vT+1}, {CP_L}, v{vT}")
    a(f"v_add_u32 v{vT}, {C_L}, v{vT}")
    a("s_waitcnt lgkmcnt(0)")
    ts.x(2, 8)
    a("s_setprio 3")
    a("s_barrier")
    ts(3)
    ts.x(3, 8)
    QQ = 28
    for p in range(8): a(f"ds_read_b32 v{QQ+p}, v{vT+1} offset:{512*p}")
    a("s_waitcnt lgkmcnt(0)")
    for p in range(4): a(f"v_add_f32 v{QQ+p}, v{QQ+p}, v{QQ+4+p}")
    a(f"v_add_f32 v{QQ}, v{QQ}, v{QQ+2}")
    a(f"v_add_f32 v{QQ+1}, v{QQ+1}, v{QQ+3}")
    a(f"v_add_f32 v{QQ}, v{QQ}, v{QQ+1}")
    a(f"ds_write_b32 v{vT}, v{QQ}")
    a(f"v_add_u32 v{vT+2}, {SD}, v{vPQ}")
    for o in ch_ops(HTS): o()
    vm.wait(('w', 11), "lgkmcnt(0)")
    a("s_barrier")
    X, Y, ST = 32, 48, CF
    HR, HI, T1, T2, CBR, CBI, G0, G1, QR, QI = 20, 21, 22, 23, 24, 25, 26, 28, 30, 31
    for k in range(8): a(f"ds_read_b128 v[{X+4*k}:{X+4*k+3}], v{vT+2} offset:{1024*k}")
    a(f"ds_read_b32 v{CBR}, v{vCB}")
    a(f"ds_read_b32 v{CBI}, v{vCB} offset:64")
    for k in range(8): a(f"ds_read_b128 v[{ST+4*k}:{ST+4*k+3}], v{vStS} offset:{16*k}")
    a(f"s_setprio {cfg.eprio}")
    a(f"v_lshrrev_b32 v1, 4, v0")
    a(f"v_sub_u32 v1, s{S_MT}, v1")
    a(f"v_cmp_le_i32 s[56:57], 1, v1")
    a(f"v_cmp_le_i32 s[58:59], 5, v1")
    a(f"v_lshlrev_b32 v5, 16, v{CF+96}")
    a(f"v_mov_b32 v3, v{vF}")
    vF = 3
    a("s_waitcnt lgkmcnt(10)")
    for r in range(16): a(f"v_permlane16_swap_b32 v{X+r}, v{Y+r}")
    a("s_waitcnt lgkmcnt(0)")
    side = {}
    for r in range(16):
        if r in side: side[r]()
        m, rs = ST + 2 * r, ST + 2 * r + 1
        a(f"v_fma_f32 v{X+r}, -v{m}, v{CBR}, v{X+r}")
        a(f"v_fma_f32 v{Y+r}, -v{m}, v{CBI}, v{Y+r}")
        a(f"v_mul_f32 v{X+r}, v{X+r}, v{rs}")
        a(f"v_mul_f32 v{Y+r}, v{Y+r}, v{rs}")
        if r >= 1:
            pr, pi = (X, Y) if r == 1 else (HR, HI)
            a(f"v_fma_f32 v{T1}, -v{LI}, v{pi}, v{X+r}")
            a(f"v_fma_f32 v{T2}, v{LI}, v{pr}, v{Y+r}")
            a(f"v_fma_f32 v{HR}, v{LR}, v{pr}, v{T1}")
            a(f"v_fma_f32 v{HI}, v{LR}, v{pi}, v{T2}")
    z = CF
    a(f"v_mov_b32 v{z}, v{HR}"); a(f"v_mov_b32 v{z+1}, v{HI}")
    csq(a, z + 8, z + 9, L16R, L16I, z + 10)
    a(f"v_permlane32_swap_b32 v{HR}, v{z}")
    a(f"v_permlane32_swap_b32 v{HI}, v{z+1}")
    a(f"v_fma_f32 v{z}, -v{L16I}, v{HI}, v{z}")
    a(f"v_fma_f32 v{z+1}, v{L16I}, v{HR}, v{z+1}")
    a(f"v_fmac_f32 v{z}, v{L16R}, v{HR}")
    a(f"v_fmac_f32 v{z+1}, v{L16R}, v{HI}")
    a(f"v_mov_b32 v{z+2}, v{z}"); a(f"v_mov_b32 v{z+3}, v{z+1}")
    a(f"s_lshl_b32 s11, s{S_W4}, 7")
    a(f"v_add_u32 v{z+5}, s11, v{vAg}")
    a(f"v_permlane16_swap_b32 v{z}, v{z+2}")
    a(f"v_permlane16_swap_b32 v{z+1}, v{z+3}")
    a(f"v_fma_f32 v{z+2}, -v{z+9}, v{z+1}, v{z+2}")
    a(f"v_fma_f32 v{z+3}, v{z+9}, v{z}, v{z+3}")
    a(f"v_fmac_f32 v{z+2}, v{z+8}, v{z}")
    a(f"v_fmac_f32 v{z+3}, v{z+8}, v{z+1}")
    a(f"ds_write_b64 v{z+5}, v[{z+2}:{z+3}]")
    a("s_waitcnt lgkmcnt(0)")
    ts.x(2, 9)
    a(f"s_setprio {cfg.lprio}")
    a("s_barrier")
    ts(4)
    E = CF + 16
    for i in range(4): a(f"ds_read_b64 v[{E+2+2*i}:{E+3+2*i}], v{vAg} offset:{128*i}")
    a(f"v_mov_b32 v{E}, 0")
    a(f"v_mov_b32 v{E+1}, 0")
    a(f"v_and_b32 v{z+4}, 16, v0")
    a(f"v_cmp_ne_u32 s[12:13], 0, v{z+4}")
    for i in range(1, 4):
        e, p = E + 2 + 2 * i, E + 2 * i
        a(f"s_waitcnt lgkmcnt({3 - i})")
        a(f"v_fma_f32 v{e}, -v{L64I}, v{p+1}, v{e}")
        a(f"v_fma_f32 v{e+1}, v{L64I}, v{p}, v{e+1}")
        a(f"v_fmac_f32 v{e}, v{L64R}, v{p}")
        a(f"v_fmac_f32 v{e+1}, v{L64R}, v{p+1}")
    a(f"s_cmp_lg_u32 s{S_W4}, 0")
    a("s_cbranch_scc1 L_l_nopub")
    e = E + 8
    a(f"v_cmp_eq_u32 vcc, -1, v{e}")
    a(f"v_mov_b32 v{T1}, 0x7fc00000")
    a(f"v_cndmask_b32 v{e}, v{e}, v{T1}, vcc")
    a("s_mov_b64 exec, 0xffff")
    a(f"buffer_store_dwordx2 v[{e}:{e+1}], v{vAg}, s[{SRD_WS}:{SRD_WS+3}], s22 offen sc1")
    a("s_mov_b64 exec, -1")
    ts(5)
    a.label("L_l_nopub")
    a(f"v_cmp_lt_u32 vcc, 31, v0")
    a(f"v_cndmask_b32 v{z}, 0, v{z}, s[12:13]")
    a(f"v_cndmask_b32 v{z+1}, 0, v{z+1}, s[12:13]")
    a(f"v_fma_f32 v{HR}, -v{L16I}, v{z+1}, v{HR}")
    a(f"v_fma_f32 v{HI}, v{L16I}, v{z}, v{HI}")
    a(f"v_fmac_f32 v{HR}, v{L16R}, v{z}")
    a(f"v_fmac_f32 v{HI}, v{L16R}, v{z+1}")
    a(f"v_cndmask_b32 v{z}, v{z}, v{HR}, vcc")
    a(f"v_cndmask_b32 v{z+1}, v{z+1}, v{HI}, vcc")
    cmul(a, HR, HI, z, z + 1, CR, CI)
    a(f"s_bitcmp1_b32 s{S_W4}, 0")
    a("s_cselect_b64 vcc, -1, 0")
    a(f"v_cndmask_b32 v{QR}, v{E}, v{E+2}, vcc")
    a(f"v_cndmask_b32 v{QI}, v{E+1}, v{E+3}, vcc")
    a(f"v_cndmask_b32 v{T1}, v{E+4}, v{E+6}, vcc")
    a(f"v_cndmask_b32 v{T2}, v{E+5}, v{E+7}, vcc")
    a(f"s_bitcmp1_b32 s{S_W4}, 1")
    a("s_cselect_b64 vcc, -1, 0")
    a(f"v_cndmask_b32 v{QR}, v{QR}, v{T1}, vcc")
    a(f"v_cndmask_b32 v{QI}, v{QI}, v{T2}, vcc")
    ts.x(2, 10)
    thr[0] = cfg.thr
    lds = [f"buffer_load_dwordx2 v[{G0}:{G0+1}], v{vPr}, s[{SRD_WS}:{SRD_WS+3}], s23 offen sc1",
           f"buffer_load_dwordx2 v[{G1}:{G1+1}], v{vPr}, s[{SRD_WS}:{SRD_WS+3}], s20 offen sc1"]
    up = Rec()
    for r in range(16):
        up(f"v_mul_f32 v{T1}, v{CI}, v{Y+r}")
        up(f"v_mul_f32 v{T2}, v{CI}, v{X+r}")
        up(f"v_fma_f32 v{X+r}, v{CR}, v{X+r}, -v{T1}")
        up(f"v_fma_f32 v{Y+r}, v{CR}, v{Y+r}, v{T2}")
    vRd, vOne = 4, 12
    a(f"s_lshl_b32 s11, s{S_W4}, 2")
    a(f"s_add_u32 s11, s11, {CNT_L + 16}")
    a(f"v_mov_b32 v{vRd}, s11")
    a(f"v_mov_b32 v{vOne}, 1")
    ch_read(HTS)
    for t in up.L: a(t)
    w_write([12, 13])
    XV, STT, DS = 64, 80, 5
    TT = SACC + 32
    a(f"v_add_u32 v{vT+4}, {HTS}, v{vPQ}")
    a(f"ds_write_b128 v{vT+4}, v[{XRAW}:{XRAW+3}]")
    a(f"ds_write_b128 v{vT+4}, v[{XRAW+4}:{XRAW+7}] offset:1024")
    a(f"v_lshrrev_b32 v{vT+3}, 5, v0")
    a(f"v_lshlrev_b32 v{vT+4}, 10, v{vT+3}")
    a(f"v_and_b32 v{vT}, 31, v0")
    a(f"v_lshl_add_u32 v{vT+4}, v{vT}, 1, v{vT+4}")
    a(f"s_add_u32 s11, s{sMP}, {HTS}")
    a(f"v_add_u32 v{vT+4}, s11, v{vT+4}")
    for r in range(16): a(f"ds_read_u16 v{XV+r}, v{vT+4} offset:{64*r}")
    co = cf_ops(0, SA[0]) + cf_ops(1, SB[0]) + cf_ops(2, None)
    for t in lds: vm.issue('ag', t)
    for o in co[:cfg.c1]: o()
    w_write([14, 15])
    a(f"ds_write_b32 v{vRd}, v{vOne}")
    ts(8)
    vm.wait('ag')
    def cond():
        a(f"v_cmp_eq_u32 vcc, -1, v{G0}")
        a("s_and_b64 s[48:49], vcc, s[56:57]")
        a(f"v_cmp_eq_u32 vcc, -1, v{G1}")
        a("s_and_b64 s[50:51], vcc, s[58:59]")
        a("s_or_b64 s[48:49], s[48:49], s[50:51]")
        a("s_cmp_eq_u64 s[48:49], 0")
    spin_check(a, "L_agg", lds, cond, 2)
    ts(6)
    SR, SI = CBR, CBI
    cmul(a, SR, SI, G0, G0 + 1, W0R, W0R + 1)
    cmul(a, T1, T2, G1, G1 + 1, W0R + 2, W0R + 3)
    a(f"v_cndmask_b32 v{SR}, 0, v{SR}, s[56:57]")
    a(f"v_cndmask_b32 v{SI}, 0, v{SI}, s[56:57]")
    a(f"v_cndmask_b32 v{T1}, 0, v{T1}, s[58:59]")
    a(f"v_cndmask_b32 v{T2}, 0, v{T2}, s[58:59]")
    a(f"v_add_f32 v{SR}, v{SR}, v{T1}")
    a(f"v_add_f32 v{SI}, v{SI}, v{T2}")
    for sw in ("v_permlane32_swap_b32", "v_permlane16_swap_b32"):
        a(f"v_mov_b32 v{T1}, v{SR}")
        a(f"v_mov_b32 v{T2}, v{SI}")
        a(f"{sw} v{SR}, v{T1}")
        a(f"{sw} v{SI}, v{T2}")
        a(f"v_add_f32 v{SR}, v{SR}, v{T1}")
        a(f"v_add_f32 v{SI}, v{SI}, v{T2}")
    a(f"v_fmac_f32 v{QR}, v{LWR}, v{SR}")
    a(f"v_fmac_f32 v{QI}, v{LWR}, v{SI}")
    a(f"v_fma_f32 v{QR}, -v{LWI}, v{SI}, v{QR}")
    a(f"v_fmac_f32 v{QI}, v{LWI}, v{SR}")
    a(f"v_fmac_f32 v{HR}, v{PWR}, v{QR}")
    a(f"v_fmac_f32 v{HI}, v{PWR}, v{QI}")
    a(f"v_fma_f32 v{HR}, -v{PWI}, v{QI}, v{HR}")
    a(f"v_fmac_f32 v{HI}, v{PWI}, v{QR}")
    pr, pi = HR, HI
    PK, HF = CF, 80
    rest = co[cfg.c1:cfg.c2]
    for r in range(16):
        if rest: rest.pop(0)()
        a(f"v_fma_f32 v{X+r}, -v{LI}, v{pi}, v{X+r}")
        a(f"v_fma_f32 v{Y+r}, v{LI}, v{pr}, v{Y+r}")
        a(f"v_fmac_f32 v{X+r}, v{LR}, v{pr}")
        a(f"v_fmac_f32 v{Y+r}, v{LR}, v{pi}")
        pr, pi = X + r, Y + r
    for k in range(8):
        a(f"v_cvt_pk_bf16_f32 v{PK+k}, v{X+2*k}, v{X+2*k+1}")
    a(f"ds_write_b128 v{vTW}, v[{PK}:{PK+3}]")
    a(f"ds_write_b128 v{vTW}, v[{PK+4}:{PK+7}] offset:16")
    for k in range(8):
        a(f"v_cvt_pk_bf16_f32 v{PK+8+k}, -v{Y+2*k}, -v{Y+2*k+1}")
    a(f"ds_write_b128 v{vTW}, v[{PK+8}:{PK+11}] offset:2048")
    a(f"ds_write_b128 v{vTW}, v[{PK+12}:{PK+15}] offset:2064")
    for q in range(2):
        for part in range(2):
            for j in range(2):
                d = HF + 8 * q + 4 * part + 2 * j
                a(f"ds_read_b64_tr_b16 v[{d}:{d+1}], v{vTR} offset:{(part*16 + 4*j)*128 + 64*(q ^ j)}")
    assert not rest
    a("s_waitcnt lgkmcnt(0)")
    for q in range(2):
        for part in range(2):
            d = HF + 8 * q + 4 * part
            a(f"s_add_u32 s11, s19, {q*RT_BYTES + part*HALF_BYTES}")
            vm.issue('hs', f"buffer_store_dwordx4 v[{d}:{d+3}], v{vP}, s[{SRD_WS}:{SRD_WS+3}], s11 offen{SP}")
    thr[0] = None
    for o in co[cfg.c2:]: o()
    def flag2():
        vm.wait('hs')
        a("s_mov_b64 exec, 1")
        vm.issue('f', f"buffer_store_dword v{vOne}, v{vF}, s[{SRD_WS}:{SRD_WS+3}], 0 offen sc1")
        a("s_mov_b64 exec, -1")
        ts(7)
    done = False
    for b, base, ws_ in ((0, SA[0], [16, 17, 18, 19]), (1, SB[0], [20, 21]), (2, None, [])):
        if not done and 8 * (b + 1) > cfg.c2:
            flag2(); done = True
        cf_read(b, base)
        if ws_: w_write(ws_)
        if b == 1:
            a(f"v_mov_b32 v{T1}, 2")
            a(f"ds_write_b32 v{vRd}, v{T1}")
    if not done: flag2()
    a("s_waitcnt lgkmcnt(0)")
    for o in w_ops(range(22, 28)): o()
    a(f"s_and_b32 s11, s{S_W4}, 1")
    a("s_lshl_b32 s11, s11, 8")
    a(f"s_add_u32 s11, s11, {ST2_L}")
    a(f"v_lshl_add_u32 v{vT+3}, v{vT+3}, 7, s11")
    STT = 32
    for k in range(8): a(f"ds_read_b128 v[{STT+4*k}:{STT+4*k+3}], v{vT+3} offset:{16*k}")
    for r in range(16): a(f"v_lshlrev_b32 v{XV+r}, 16, v{XV+r}")
    a("s_waitcnt lgkmcnt(0)")
    a("s_setprio 0")
    def rnd_pair(r0, r1):
        a(f"v_cvt_pk_bf16_f32 v{r1}, v{r0}, v{r1}"); a(f"v_lshlrev_b32 v{r0}, 16, v{r1}"); a(f"v_and_b32 v{r1}, s71, v{r1}")
    for r in range(16): a(f"v_sub_f32 v{TT+r}, v{XV+r}, v{STT+2*r}")
    for k in range(8): rnd_pair(TT + 2 * k, TT + 2 * k + 1)
    a(f"v_mov_b32 v{T2}, 3")
    vm.wait(('w', 27))
    a(f"ds_write_b32 v{vRd}, v{T2}")
    for r in range(16): a(f"v_mul_f32 v{TT+r}, v{TT+r}, v{STT+2*r+1}")
    for k in range(8): rnd_pair(TT + 2 * k, TT + 2 * k + 1)
    for r in range(16): a(f"v_mul_f32 v{TT+r}, v{TT+r}, v{DS}")
    for k in range(8): rnd_pair(TT + 2 * k, TT + 2 * k + 1)
    def poll(name, off):
        def cond():
            for k in range(0, 12, 4): a(f"s_and_b64 s[{20+k}:{21+k}], s[{20+k}:{21+k}], s[{22+k}:{23+k}]")
            a("s_and_b64 s[20:21], s[20:21], s[24:25]")
            a("s_and_b64 s[28:29], s[28:29], s[32:33]")
            a("s_and_b64 s[20:21], s[20:21], s[28:29]")
            a("s_and_b32 s20, s20, s21")
            a("s_cmp_eq_u32 s20, 1")
        sspin(a, name, [f"s_load_dwordx16 s[20:35], s[{P_WS}:{P_WS+1}], s18 glc"], cond, cfg.psleep)
    a(f"s_mul_i32 s57, s40, {RT_BYTES}")
    a("s_xor_b32 s11, s40, 1")
    a(f"s_mul_i32 s56, s11, {RT_BYTES}")
    a(f"s_lshr_b32 s11, s{S_W4}, 1")
    a(f"s_mul_i32 s11, s11, {HALF_BYTES}")
    a(f"s_add_u32 s11, s11, {56*1024}")
    a("s_add_u32 s56, s56, s11")
    a("s_add_u32 s57, s57, s11")
    a(f"s_and_b32 s12, s{S_W4}, 1")
    a("s_lshl_b32 s13, s12, 14")
    for b in range(3):
        a(f"s_add_u32 s11, s{sBlk}, {b}")
        a("s_cmp_ge_u32 s11, 3")
        a("s_cselect_b32 s22, 3, 0")
        a("s_sub_u32 s11, s11, s22")
        a("s_lshl_b32 s11, s11, 12")
        a(f"s_add_u32 s{52+b}, s11, s13")
    a("s_lshl_b32 s12, s12, 11")
    a(f"s_add_u32 s55, s12, {12*1024}")
    srd(a, 60, P_OUT, 2048 * 1792)
    vW1, vW2, vCn, vCv = 1, 2, 9, 10
    vR = [11, 12, 13, 14]
    a(f"v_add_u32 v{vW1}, {PH1}, v{vPQ}")
    a(f"v_add_u32 v{vW2}, {PH2}, v{vPQ}")
    a(f"v_mov_b32 v{vCn}, {CNT_L}")
    for (reg, xr, base) in ((vR[0], 1, PH1), (vR[1], 3, PH1 + 4096), (vR[2], 2, PH2)):
        a(f"s_xor_b32 s11, s{S_W4}, {xr}")
        a(f"s_mul_i32 s11, s11, {Q}")
        a(f"s_add_u32 s11, s11, {base}")
        a(f"v_add_u32 v{reg}, s11, v{vP}")
    a(f"v_add_u32 v{vR[3]}, {GA}, v{vPQ}")
    ts.x(2, 11)
    AR = list(range(16, 64, 4))
    NA = len(AR)
    def aload(n):
        lr, p = n // 14, n % 14
        if p % 4 == 0: a(f"s_add_u32 s58, s{56+lr}, s{52 + p//4}")
        d = AR[n % NA]
        vm.issue(('a', n), f"buffer_load_dwordx4 v[{d}:{d+3}], v{vP}, s[{SRD_WS}:{SRD_WS+3}], s58 offen offset:{(p%4)*1024}{AP}")
    def cnt_wait(name, off):
        a("s_mov_b32 s73, 0")
        a.label(name)
        a("s_waitcnt lgkmcnt(0)")
        a(f"v_readfirstlane_b32 s11, v{vCv}")
        a("s_cmp_ge_u32 s11, 4")
        a(f"s_cbranch_scc1 {name}ok")
        a("s_add_u32 s73, s73, 1")
        a(f"s_cmp_ge_u32 s73, {SPIN_MAX}")
        a(f"s_cbranch_scc1 {name}ok")
        a("s_sleep 1")
        a(f"ds_read_b32 v{vCv}, v{vCn} offset:{off}")
        a(f"s_branch {name}")
        a.label(name + "ok")
        a("s_nop 7")
    a(f"ds_read_b32 v{vCv}, v{vCn} offset:4")
    cnt_wait("L_l_c0", 4)
    poll("L_ps", 128)
    ts(9)
    if cfg.sprio: a(f"s_setprio {cfg.sprio}")
    ts.x(7, 1)
    for n in range(NA): aload(n)
    a("s_setprio 0")
    ts.x(7, 2)
    for n in range(28):
        lr, p = n // 14, n % 14
        vm.wait(('a', n))
        if n in (0, 7, 14, 21): ts.x(7, 3 + n // 7)
        d = AR[n % NA]
        for lc in (1, 0):
            acc = SACC + 32 * lr + 16 * lc
            c = "0" if (p == 0 and not (lr == 1 and lc == 0)) else f"v[{acc}:{acc+15}]"
            f = CF + 8 * p + 4 * lc
            a(f"v_mfma_f32_32x32x16_bf16 v[{acc}:{acc+15}], v[{d}:{d+3}], v[{f}:{f+3}], {c}")
        if n + NA < 28: aload(n + NA)
        if 16 <= n < 24:
            k = n - 16
            a(f"ds_write_b128 v{vW1}, v[{SACC+4*k}:{SACC+4*k+3}] offset:{1024*k}")
    ts(10)
    ts.x(7, 7)
    ts.x(7, 8)
    for k in range(4):
        a(f"ds_write_b128 v{vW2}, v[{SACC+48+4*k}:{SACC+48+4*k+3}] offset:{1024*k}")
    a("s_waitcnt lgkmcnt(0)")
    ts.x(7, 9)
    a("s_barrier")
    ts(11)
    ts.x(7, 10)
    RX = CF
    for k in range(4):
        for w in range(4):
            a(f"ds_read_b128 v[{RX+16*w+4*k}:{RX+16*w+4*k+3}], v{vR[w]} offset:{1024*k}")
    for k in range(4):
        a(f"s_waitcnt lgkmcnt({12 - 4*k})")
        for r in range(4 * k, 4 * k + 4):
            a(f"v_add_f32 v{TT+r}, v{TT+r}, v{RX+r}")
            a(f"v_add_f32 v{RX+16+r}, v{RX+16+r}, v{RX+32+r}")
        for r in range(4 * k, 4 * k + 4):
            a(f"v_add_f32 v{TT+r}, v{TT+r}, v{RX+16+r}")
        for r in range(4 * k, 4 * k + 4):
            a(f"v_fma_f32 v{XV+r}, v{TT+r}, v{RX+48+r}, v{XV+r}")
            if r % 2 == 0: a(f"s_mov_b32 s11, {r*1792}")
            a(f"buffer_store_dword v{XV+r}, v{vO}, s[60:63], s11 offen offset:{(r%2)*1792}{OP}")
    if cfg.ts:
        a("s_waitcnt vmcnt(0)")
        ts(12)
    if cfg.padto:
        a.label("L_pad")
        a("s_memrealtime s[98:99]")
        a("s_waitcnt lgkmcnt(0)")
        a("s_sub_u32 s98, s98, s100")
        a(f"s_cmp_lt_u32 s98, {cfg.padto}")
        a("s_cbranch_scc1 L_pad")
    ts.dump(16, 17, 1)
    a("s_endpgm")

def gen_consumer(a, cfg, ts):
    a.label("L_consumer")
    SP = ["", " sc1"][cfg.spol]
    AP = ['', ' sc1', ' sc1 nt', ' sc0 sc1', ' sc0', ' nt'][cfg.apol]
    vm = VM(a)
    XA = [1, 2, 3, 4]; BA = [5, 6, 7, 8]; WA = [9, 10]
    vL16, vStF, vCL, vF, vFl, vSo, vCn, vRd, vWB, vPQ, vOne, MM = 11, 12, 13, 14, 15, 16, 17, 18, 19, 20, 21, 22
    FS = [40, 68]
    ACC = 96
    def G(ft, q): return ACC + 16 * (2 * ft + q)
    def U(ft, q): return ACC + 64 + 16 * (2 * ft + q)
    def S(q): return ACC + 128 + 16 * q
    vI, vH, t0, t1, t2 = 24, 25, 26, 27, 28
    a(f"v_and_b32 v{vI}, 31, v0")
    a(f"v_lshrrev_b32 v{vH}, 5, v0")
    a(f"v_bfe_u32 v{t0}, v0, 1, 3")
    a(f"v_xor_b32 v{t0}, v{t0}, v{vH}")
    a(f"v_lshlrev_b32 v{t0}, 4, v{t0}")
    a(f"v_lshl_add_u32 v{t0}, v{vI}, 7, v{t0}")
    a(f"s_lshl_b32 s11, s{S_W4}, 13")
    for ks in range(4):
        a(f"v_xor_b32 v{t1}, {32*ks}, v{t0}")
        a(f"v_add_u32 v{XA[ks]}, s11, v{t1}")
        a(f"v_add_u32 v{BA[ks]}, {OFF_BB}, v{t1}")
    a(f"v_bfe_u32 v{t0}, v0, 2, 2")
    a(f"v_lshlrev_b32 v{t1}, 7, v{t0}")
    a(f"v_lshrrev_b32 v{t0}, 1, v{t0}")
    a(f"v_lshl_add_u32 v{t1}, v{t0}, 6, v{t1}")
    a(f"v_bfe_u32 v{t0}, v0, 4, 1")
    a(f"v_lshl_add_u32 v{t1}, v{t0}, 5, v{t1}")
    a(f"v_and_b32 v{t2}, 3, v0")
    a(f"v_lshl_add_u32 v{t1}, v{t2}, 3, v{t1}")
    a(f"v_lshl_add_u32 v{WA[0]}, v{vH}, 10, v{t1}")
    a(f"v_add_u32 v{WA[0]}, {OFF_WG}, v{WA[0]}")
    a(f"v_xor_b32 v{WA[1]}, 64, v{WA[0]}")
    a(f"s_mul_i32 s62, s{S_W4}, {Q}")
    a(f"s_lshr_b32 s59, s{S_W4}, 1")
    a(f"s_and_b32 s63, s{S_W4}, 1")
    a("s_lshl_b32 s11, s59, 6")
    a(f"v_lshl_add_u32 v{vWB}, v{vH}, 9, v{t1}")
    a(f"v_xor_b32 v{vWB}, s11, v{vWB}")
    a(f"v_add_u32 v{vWB}, s62, v{vWB}")
    a("s_waitcnt lgkmcnt(0)")
    a(f"s_lshl_b32 s11, s{S_NS}, 5")
    a(f"s_load_dwordx8 s[32:39], s[{P_LRE}:{P_LRE+1}], s11")
    a(f"s_load_dwordx8 s[64:71], s[{P_LDT}:{P_LDT+1}], s11")
    a(f"s_load_dwordx8 s[24:31], s[{P_LIM}:{P_LIM+1}], s11")
    for k in range(160): a(f"v_mov_b32 v{ACC+k}, 0")
    a(f"v_mov_b32 v{vCn}, {CNT_L}")
    a(f"ds_write_b128 v{vCn}, v[{ACC}:{ACC+3}]")
    a(f"ds_write_b128 v{vCn}, v[{ACC}:{ACC+3}] offset:16")
    a(f"v_bfe_u32 v{t0}, v0, 2, 1")
    a(f"v_lshl_add_u32 v{t0}, v{t0}, 4, v{t2}")
    a(f"v_bfe_u32 v{t1}, v0, 3, 2")
    a(f"v_lshl_add_u32 v{t0}, v{t1}, 2, v{t0}")
    a(f"s_lshl_b32 s11, s{S_W4}, 9")
    a(f"s_add_u32 s11, s11, {STATS_L}")
    a(f"v_lshl_add_u32 v{vStF}, v{t0}, 3, s11")
    a(f"v_lshlrev_b32 v{vL16}, 4, v0")
    a(f"v_add_u32 v{vPQ}, s62, v{vL16}")
    a(f"v_lshlrev_b32 v{vCL}, 4, v{vH}")
    a(f"v_add_u32 v{vCL}, {C_L}, v{vCL}")
    a(f"v_mov_b32 v{vOne}, 1")
    a(f"s_lshl_b32 s11, s{S_W4}, 2")
    a(f"s_add_u32 s11, s11, {CNT_L + 16}")
    a(f"v_mov_b32 v{vRd}, s11")
    a("s_lshl_b32 s11, s63, 8")
    a(f"s_add_u32 s11, s11, {ST2_L}")
    a(f"v_lshl_add_u32 v{vSo}, v{vH}, 7, s11")
    a(f"s_lshl_b32 s13, s{S_MT}, 2")
    a(f"s_add_u32 s13, s13, s{S_W4}")
    a(f"s_mul_i32 s56, s13, {2*RT_BYTES}")
    a(f"s_cmp_ge_u32 s{S_NS}, 14")
    a(f"s_cselect_b32 s11, {HALF_BYTES - 56*1024}, 0")
    a(f"s_lshl_b32 s12, s{S_NS}, 12")
    a("s_add_u32 s11, s11, s12")
    a("s_add_u32 s56, s56, s11")
    a(f"s_add_u32 s57, s56, {RT_BYTES}")
    a("s_lshl_b32 s11, s13, 10")
    flag_index(a, 12, 14, 7)
    a("s_add_u32 s11, s11, s12")
    a(f"s_add_u32 s11, s11, {WS_FLAG:#x}")
    a(f"v_mov_b32 v{vF}, s11")
    a(f"s_lshl_b32 s55, s{S_M64}, 10")
    a(f"s_add_u32 s55, s55, {WS_FLAG:#x}")
    a(f"s_lshl_b32 s11, s{S_W4}, 7")
    a("s_add_u32 s55, s55, s11")
    a(f"s_mul_i32 s12, s59, {HALF_BYTES}")
    a(f"s_mul_i32 s13, s63, {28*1024}")
    a("s_add_u32 s12, s12, s13")
    a(f"s_lshl_b32 s11, s{S_M64}, 1")
    a("s_add_u32 s11, s11, s63")
    a(f"s_mul_i32 s52, s11, {RT_BYTES}")
    a("s_add_u32 s52, s52, s12")
    a("s_xor_b32 s11, s11, 1")
    a(f"s_mul_i32 s51, s11, {RT_BYTES}")
    a("s_add_u32 s51, s51, s12")
    p2_rot(a, cfg, 60, 61, 58)
    a("s_mov_b32 s12, 0x00030003")
    a("s_mov_b32 s13, 0x00030003")
    a("s_waitcnt lgkmcnt(0)")
    K, KP = 40, 64
    for k in range(8):
        a(f"s_lshl_b64 exec, s[12:13], {2*k}")
        for m, sb in enumerate((32, 24, 64)): a(f"v_mov_b32 v{K+m}, s{sb+k}")
    a("s_mov_b64 exec, -1")
    a(f"v_and_b32 v{K+3}, 1, v0")
    a(f"v_lshlrev_b32 v{K+3}, 4, v{K+3}")
    for m in range(3): a(f"v_lshrrev_b32 v{K+m}, v{K+3}, v{K+m}")
    srd(a, SRD_WS, P_WS, WS_SIZE)
    ssm_park(a, K, KP, 62)
    a(f"v_mov_b32 v{KP+23}, 0")
    a(f"s_lshl_b32 s11, s{S_W4}, 13")
    a(f"s_add_u32 s11, s11, {R[2]}")
    a(f"v_add_u32 v{K}, s11, v{vL16}")
    for k in range(6): a(f"ds_write_b128 v{K}, v[{KP+4*k}:{KP+4*k+3}] offset:{1024*k}")
    a("s_waitcnt lgkmcnt(0)")
    ts(1)

    def reads(fs, ks):
        f = FS[fs]
        L = []
        L.append(f"ds_read_b128 v[{f}:{f+3}], v{XA[ks]}")
        L.append(f"ds_read_b128 v[{f+24}:{f+27}], v{BA[ks]}")
        L.append(f"ds_read_b128 v[{f+4}:{f+7}], v{XA[ks]} offset:4096")
        for gu in range(2):
            for ft in range(2):
                for j in range(2):
                    d = f + 8 + 8 * gu + 4 * ft + 2 * j
                    L.append(f"ds_read_b64_tr_b16 v[{d}:{d+1}], v{WA[ft]} offset:{gu*8192 + ks*2048 + j*512}")
        return L
    def mfmas(fs):
        f = FS[fs]
        X = [f, f + 4]; Bf = f + 24
        L = []
        for q in range(2):
            L.append(f"v_mfma_f32_32x32x16_bf16 v[{S(q)}:{S(q)+15}], v[{X[q]}:{X[q]+3}], v[{Bf}:{Bf+3}], v[{S(q)}:{S(q)+15}]")
        for gu in range(2):
            for ft in range(2):
                w = f + 8 + 8 * gu + 4 * ft
                for q in range(2):
                    d = (G, U)[gu](ft, q)
                    L.append(f"v_mfma_f32_32x32x16_bf16 v[{d}:{d+15}], v[{w}:{w+3}], v[{X[q]}:{X[q]+3}], v[{d}:{d+15}]")
        return L
    a("s_setprio 2")
    a("s_mov_b32 s72, 0")
    a("s_mov_b32 s74, 0")
    a("s_barrier")
    ts(2)
    for t in reads(0, 0): a(t)
    a.label("L_c_loop")
    need = {0: 9, 1: 8, 2: 6, 4: 4, 6: 2, 8: 0}
    for ks in range(4):
        fs = ks & 1
        M = mfmas(fs)
        if ks < 3:
            Rd = reads(1 - fs, ks + 1)
            issued = 0
            for i, m in enumerate(M):
                if i in need: a(f"s_waitcnt lgkmcnt({min(15, need[i] + issued)})")
                a(m)
                for _ in range(2 if i >= cfg.rdstart else 0):
                    if Rd: a(Rd.pop(0)); issued += 1
        else:
            Rd = reads(1 - fs, 0)
            a("s_waitcnt lgkmcnt(9)")
            a(M[0])
            a("s_add_u32 s74, s74, 1")
            a("s_cmp_eq_u32 s74, 3")
            a("s_mov_b32 s75, 53248")
            a(f"s_cmov_b32 s75, {(-106496) & 0xffffffff:#x}")
            a("s_cselect_b32 s74, 0, s74")
            for v in XA + BA[:1]: a(f"v_add_u32 v{v}, s75, v{v}")
            a("s_waitcnt lgkmcnt(8)")
            a(M[1])
            for v in BA[1:] + WA: a(f"v_add_u32 v{v}, s75, v{v}")
            a("s_add_u32 s72, s72, 1")
            a("s_cmp_eq_u32 s72, 7")
            a("s_waitcnt lgkmcnt(0)")
            a(M[2])
            a("s_barrier")
            hist = list(a.hist)
            a("s_cbranch_scc1 L_c_last")
            for m in M[3:]:
                for _ in range(2):
                    if Rd: a(Rd.pop(0))
                a(m)
            a("s_branch L_c_loop")
            a.label("L_c_last")
            a.hist = hist
            dump = [f"ds_write_b128 v{vPQ}, v[{S(0)+4*k}:{S(0)+4*k+3}] offset:{SD + 1024*k}" for k in range(8)]
            dump = dump[:4] + [f"ds_read_b32 v{MM}, v{vStF}", f"ds_read_b32 v{MM+1}, v{vStF} offset:256"] + dump[4:]
            for m in M[3:]:
                a(m)
                for _ in range(2):
                    if dump: a(dump.pop(0))
    ts(3)
    a("s_waitcnt lgkmcnt(0)")
    a("s_barrier")
    def cread(dst, off):
        for k in range(4): a(f"ds_read_b128 v[{dst+4*k}:{dst+4*k+3}], v{vCL} offset:{off + 32*k}")
    cread(32, 0); cread(48, 256); cread(64, 128); cread(80, 384)
    WB = {0: [1, 2], 1: [3, 4], 2: [5, 6]}
    for rg in range(3):
        a(f"v_add_u32 v{WB[rg][0]}, {R[rg]}, v{vWB}")
        a(f"v_xor_b32 v{WB[rg][1]}, 64, v{WB[rg][0]}")
    for ft in range(2):
        cg, cu = (32, 48) if ft == 0 else (64, 80)
        for q in range(2):
            g, u = G(ft, q), U(ft, q)
            sel = f"op_sel:[{q},0,0] op_sel_hi:[{q},1,1] neg_lo:[1,0,0] neg_hi:[1,0,0]"
            if q == 0: a(f"s_waitcnt lgkmcnt({12 - 8*ft})")
            for k in range(8):
                a(f"v_pk_fma_f32 v[{g+2*k}:{g+2*k+1}], v[{MM}:{MM+1}], v[{cg+2*k}:{cg+2*k+1}], v[{g+2*k}:{g+2*k+1}] {sel}")
            if q == 0: a(f"s_waitcnt lgkmcnt({8 - 8*ft})")
            for p in range(2):
                kr = range(4 * p, 4 * p + 4)
                for k in kr:
                    a(f"v_pk_fma_f32 v[{u+2*k}:{u+2*k+1}], v[{MM}:{MM+1}], v[{cu+2*k}:{cu+2*k+1}], v[{u+2*k}:{u+2*k+1}] {sel}")
                    a(f"v_max_f32 v{g+2*k}, 0, v{g+2*k}")
                    a(f"v_max_f32 v{g+2*k+1}, 0, v{g+2*k+1}")
                for k in kr:
                    a(f"v_pk_mul_f32 v[{u+2*k}:{u+2*k+1}], v[{u+2*k}:{u+2*k+1}], v[{g+2*k}:{g+2*k+1}]")
                for k in kr:
                    a(f"v_cvt_pk_bf16_f32 v{g+k}, v{u+2*k}, v{u+2*k+1}")
                vm.issue('h', f"buffer_store_dwordx4 v[{g+4*p}:{g+4*p+3}], v{vL16}, s[{SRD_WS}:{SRD_WS+3}], s{56+q} offen offset:{(2*ft+p)*1024}{SP}")
    ts(4)
    BR, NB = 160, 12
    def breads(p):
        sl = WSLOT[p]
        rg = max(k for k in range(3) if R[k] <= sl)
        L = []
        for lc in range(2):
            for jj in range(2):
                d = BR + 8 * (p % NB) + 4 * lc + 2 * jj
                L.append(f"ds_read_b64_tr_b16 v[{d}:{d+1}], v{WB[rg][lc]} offset:{sl - R[rg] + jj*1024}")
        return L
    for p in range(NB):
        for t in breads(p): a(t)
    a("s_waitcnt lgkmcnt(0)")
    a("s_barrier")
    ts(5)
    vm.wait('h')
    a("s_setprio 3")
    a("s_mov_b64 exec, 1")
    vm.issue('f', f"buffer_store_dword v{vOne}, v{vF}, s[{SRD_WS}:{SRD_WS+3}], 0 offen sc1")
    a("s_mov_b64 exec, -1")
    ts(6)
    AF = 96
    AR = list(range(24, 96, 4))
    NA = len(AR)
    def aload(n):
        p, lr = n // 2, n % 2
        if n % 8 == 0:
            a(f"s_lshl_b32 s11, s60, 12")
            a(f"s_add_u32 s54, s11, s52")
            a(f"s_add_u32 s53, s11, s51")
            a(f"s_add_u32 s60, s60, 1")
            a(f"s_cmp_eq_u32 s60, 7")
            a(f"s_cselect_b32 s60, 0, s60")
        d = AR[n % NA]
        vm.issue(('a', n), f"buffer_load_dwordx4 v[{d}:{d+3}], v{vL16}, s[{SRD_WS}:{SRD_WS+3}], s{54 - lr} offen offset:{(p%4)*1024}{AP}")
    def cond():
        a("s_and_b64 s[16:17], s[16:17], s[18:19]")
        a("s_and_b64 s[16:17], s[16:17], s[20:21]")
        a("s_and_b32 s16, s16, s17")
        a("s_and_b32 s16, s16, s22")
        a("s_cmp_eq_u32 s16, 1")
    sspin(a, "L_pf", [f"s_load_dwordx8 s[16:23], s[{P_WS}:{P_WS+1}], s55 glc"], cond, cfg.fsleep)
    a("s_setprio 2")
    ts(7)
    for n in range(cfg.a0): aload(n)
    nxt = [cfg.a0]
    ts(8)
    lq = []
    def ds_issue(tag, t):
        a(t)
        if t.startswith("ds_"): lq.append(tag)
    def ds_wait(tag):
        idx = max((i for i, t in enumerate(lq) if t == tag), default=None)
        if idx is None: return None
        n = len(lq) - 1 - idx
        del lq[:idx + 1]
        return f"lgkmcnt({min(n, 15)})"
    def lds_spin(name, vaddr, off, val):
        a("s_mov_b32 s73, 0")
        a.label(name)
        a("s_waitcnt lgkmcnt(0)")
        a("v_readfirstlane_b32 s11, v8")
        a(f"s_cmp_ge_u32 s11, {val}")
        a(f"s_cbranch_scc1 {name}ok")
        a("s_add_u32 s73, s73, 1")
        a(f"s_cmp_ge_u32 s73, {SPIN_MAX}")
        a(f"s_cbranch_scc1 {name}ok")
        a("s_sleep 1")
        a(f"ds_read_b32 v8, v{vaddr} offset:{off}")
        a(f"s_branch {name}")
        a.label(name + "ok")
        del lq[:]
    for p in range(28):
        f = BR + 8 * (p % NB)
        pn = p + cfg.bd
        for lr in range(2):
            n = 2 * p + lr
            w = ds_wait(p) if lr == 0 else None
            vm.wait(('a', n), w or "")
            if n == 0: ts(9)
            if n in (0, 7, 17, 25, 35): ts.x(6, {0: 7, 7: 8, 17: 9, 25: 10, 35: 11}[n])
            if lr == 0 and pn in (12, 16, 22): ds_issue('r', f"ds_read_b32 v8, v{vRd}")
            d = AR[n % NA]
            for lc in range(2):
                acc = AF + 32 * lr + 16 * lc
                c = "0" if p == 0 else f"v[{acc}:{acc+15}]"
                a(f"v_mfma_f32_32x32x16_bf16 v[{acc}:{acc+15}], v[{d}:{d+3}], v[{f+4*lc}:{f+4*lc+3}], {c}")
            for _ in range(2):
                if nxt[0] < 56 and nxt[0] <= n + NA:
                    aload(nxt[0]); nxt[0] += 1
        if pn in (12, 16, 22): lds_spin(f"L_c_r{pn}", vRd, 0, {12: 1, 16: 2, 22: 3}[pn])
        if p == cfg.ksig:
            assert pn > 15
            w = ds_wait(15)
            if w: a(f"s_waitcnt {w}")
            a("s_mov_b64 exec, 1")
            ds_issue('c', f"ds_add_u32 v{vCn}, v{vOne} offset:4")
            a("s_mov_b64 exec, -1")
        if NB <= pn < 28:
            for t in breads(pn): ds_issue(pn, t)
        if p == 24:
            STT = BR + 32
            for k in range(8): ds_issue('st', f"ds_read_b128 v[{STT+4*k}:{STT+4*k+3}], v{vSo} offset:{16*k}")
        if p == 26:
            for x in range(1, 4):
                a(f"s_xor_b32 s11, s{S_W4}, {x}")
                a(f"s_mul_i32 s11, s11, {Q}")
                a(f"s_add_u32 s11, s11, {FXA + (x-1)*4096}")
                a(f"v_add_u32 v{x}, s11, v{vL16}")
            a(f"v_add_u32 v4, {GA}, v{vPQ}")
            a(f"v_add_u32 v5, {FXA}, v{vPQ}")
        if p % 4 == 3: ts.x(4, 1 + p // 4)
    ts(11)
    ts.x(7, 1)
    for x in (2, 1, 3):
        src = AF + 32 * (x & 1) + 16 * (x >> 1)
        for k in range(4):
            a(f"ds_write_b128 v5, v[{src+4*k}:{src+4*k+3}] offset:{(x-1)*4096 + 1024*k}")
    a("s_waitcnt lgkmcnt(12)")
    for r in range(16): a(f"v_mul_f32 v{STT+2*r}, v{STT+2*r+1}, v{STT+2*r+1}")
    a(f"s_mov_b32 s13, {LOG2E ^ 0x80000000:#x}")
    ts.x(7, 2)
    a("s_waitcnt lgkmcnt(0)")
    ts.x(7, 3)
    a("s_mov_b64 exec, 1")
    a(f"ds_add_u32 v{vCn}, v{vOne}")
    a("s_mov_b64 exec, -1")
    a(f"ds_read_b32 v8, v{vCn}")
    lds_spin("L_c_cnt", vCn, 0, 4)
    ts.x(7, 4)
    O, RX, EX = AF, 24, 72
    for k in range(4):
        for x in range(1, 4):
            a(f"ds_read_b128 v[{RX+16*(x-1)+4*k}:{RX+16*(x-1)+4*k+3}], v{x} offset:{1024*k}")
    for k in range(4):
        rr = range(4 * k, 4 * k + 4)
        a(f"s_waitcnt lgkmcnt({9 - 3*k})")
        for r in rr: a(f"v_add_f32 v{O+r}, v{O+r}, v{RX+r}")
        for r in rr: a(f"v_add_f32 v{RX+16+r}, v{RX+16+r}, v{RX+32+r}")
        for r in rr: a(f"v_add_f32 v{O+r}, v{O+r}, v{RX+16+r}")
        for r in rr: a(f"v_mul_f32 v{O+r}, v{O+r}, v{STT+2*r}")
        for r in rr: a(f"v_mul_f32 v{EX+r}, s13, v{O+r}")
        for r in rr: a(f"v_exp_f32 v{EX+r}, v{EX+r}")
    ts.x(7, 5)
    for k in range(4):
        rr = range(4 * k, 4 * k + 4)
        for r in rr: a(f"v_add_f32 v{EX+r}, 1.0, v{EX+r}")
        for r in rr: a(f"v_rcp_f32 v{EX+r}, v{EX+r}")
        for r in rr: a(f"v_mul_f32 v{O+r}, v{O+r}, v{EX+r}")
        a(f"ds_write_b128 v4, v[{O+4*k}:{O+4*k+3}] offset:{1024*k}")
    a("s_waitcnt lgkmcnt(0)")
    ts(12)
    a("s_barrier")
    ts.dump(24, 25, 0)
    a("s_endpgm")

HEADER = """; Fused S5-SSM + ReGLU block, one launch: 224 main workgroups (4 MFMA waves + 4 loader waves) + 32 helper workgroups.
; @launch grid=(256,1,1) block=(512,1,1) lds=163840
.amdgcn_target "amdgcn-amd-amdhsa--gfx950"
.text
.globl {k}
.p2align 8
.type {k},@function
{k}:
"""
FOOTER = """.section .rodata,"a"
.p2align 6
.amdhsa_kernel {k}
  .amdhsa_next_free_vgpr 256
  .amdhsa_next_free_sgpr 102
  .amdhsa_accum_offset 256
  .amdhsa_group_segment_fixed_size 0
  .amdhsa_kernarg_size 128
  .amdhsa_user_sgpr_count 2
  .amdhsa_user_sgpr_kernarg_segment_ptr 1
  .amdhsa_system_sgpr_workgroup_id_x 1
  .amdhsa_float_denorm_mode_32 3
.end_amdhsa_kernel
"""

def generate(cfg):
    WSOFF[0] = cfg.wsoff << 20
    a = Asm()
    ts = TS(a, cfg)
    gen_entry(a, cfg, ts)
    gen_loader(a, cfg, ts)
    gen_consumer(a, cfg, ts)
    gen_helper(a, cfg, ts)
    a.label("L_exit")
    a("s_endpgm")
    return HEADER.format(k=KNAME) + f"; wsoff={cfg.wsoff}\n" + a.text() + FOOTER.format(k=KNAME)

if __name__ == "__main__":
    cfg = Cfg()
    out = sys.argv[1]
    for kv in sys.argv[2:]:
        k, v = kv.split("=")
        setattr(cfg, k, int(v))
    open(out, "w").write(generate(cfg))
```

```python
import sys, os
sys.path.insert(0, os.path.dirname(os.path.abspath(__file__)))
from asmlib import Asm, VM

KNAME = "recurrent_scan__ssm_conv_s5__glu_gated_reglu__prompt_kernel"

R = [0, 53248, 106496]
MISC = 159744
OFF_WG, OFF_WU, OFF_BB = 32768, 40960, 49152
CP_L = R[2] + 49152
STATS_L = MISC
C_L = MISC + 2048
CNT_L = MISC + 2688
ST2_L = MISC + 2720
AGG_L = MISC + 3232
Q = 12288

RT_BYTES = 172032
HALF_BYTES = 86016
WS_STATS = 0xB00000
WS_AGG = WS_STATS + 0x4000
WS_FLAG = WS_AGG + 0x8000
INIT_N = 128
WS_TS = 0xC00000
WS_SIZE = 0x1000000
SPIN_MAX = 1 << 20

S_WAVE, S_XCD, S_SLOT, S_MT, S_NS, S_M64, S_NT, S_W4 = 3, 4, 5, 6, 7, 8, 9, 10
P_X, P_LRE, P_LIM, P_BRE, P_BIM, P_CRE, P_CIM, P_LDT, P_DSK, P_BX, P_WG, P_WU, P_WD, P_OUT, P_DBG, P_WS = [16 + 2 * i for i in range(16)]
SRD_X, SRD_A, SRD_B, SRD_C, SRD_WS, SRD_E = 48, 52, 56, 60, 64, 68
TS0 = 76

LOG2E = 0x3fb8aa3b
LOG2E_LO = 0x32a57060
LN2 = 0x3f317218
INV2PI = 0x3e22f983

class Cfg:
    ts = 0
    tsset = 0
    pd = 16
    perm = 1
    rot = 2
    ssm_early = 0
    schedn = 0
    polx = 0
    apol = 1
    noa = 0
    nob = 0
    rdstart = 1
    polw = 0
    winn = 2
    probe = 0
    pwho = 0
    ponly = -1
    pmask = 0xffff
    wsoff = 0
    kwin = 2
    wprio = 0
    hdelay = 0
    eprio = 0
    c2late = 0
    cpf = 2
    padto = 0
    nocs = 0
    r2pre = 1
    tlb = 0
    bd = 4
    pollw = 24
    c1 = 4
    c2 = 16
    wfirst = 1
    @property
    def win(self):
        W = lambda a, b: [f"w{p}" for p in range(a, b)]
        return [
            {-1: ["s1"], 0: ["k", "s2", "e"], 1: ["s3"] + W(12, 14), 2: ["s4"] + W(14, 16), 3: ["s5"] + W(16, 18), 4: ["init", "s6"] + W(18, 20),
             5: ["fetch"] + W(0, 6) + W(20, 22), 6: W(6, 12) + ["put"]},
            {-1: ["s1:0-3"], 0: ["s1:3-13", "k", "s2:0-6"], 1: ["s2:6-13", "s3:0-10"], 2: ["s3:10-13", "s4", "e"], 3: ["s5"] + W(12, 15), 4: ["init", "s6"] + W(15, 18),
             5: ["fetch"] + W(0, 6) + W(18, 21), 6: W(6, 12) + ["w21", "put"]},
            {-1: ["s1:0-6"], 0: ["s1:6-13", "k", "s2:0-9"], 1: ["s2:9-13", "s3", "e"], 2: ["s4"] + W(12, 14), 3: ["s5"] + W(14, 17), 4: ["init", "s6"] + W(17, 19),
             5: ["fetch"] + W(0, 6) + W(19, 22), 6: W(6, 12) + ["put"]},
            {-1: ["s1:0-6"], 0: ["s1:6-13", "k", "s2:0-9"], 1: ["s2:9-13", "s3", "e"], 2: ["s4"], 3: ["s5"] + W(12, 15), 4: ["init", "s6"] + W(15, 18),
             5: ["fetch"] + W(0, 6) + W(18, 20), 6: W(6, 12) + W(20, 22) + ["put"]},
            {-1: ["s1:0-6"], 0: ["s1:6-13", "k", "s2"], 1: ["s3", "e"], 2: ["s4"] + W(12, 13), 3: ["s5"] + W(13, 16), 4: ["init", "s6"] + W(16, 19),
             5: ["fetch"] + W(0, 6) + W(19, 22), 6: W(6, 12) + ["put"]},
            {-1: ["s1:0-6"], 0: ["s1:6-13", "k", "s2"], 1: ["s3", "e"], 2: ["s4"] + W(12, 15), 3: ["init", "s5"] + W(15, 18), 4: ["fetch", "s6"] + W(18, 20),
             5: ["put"] + W(0, 6) + W(20, 22), 6: W(6, 12)},
        ][self.winn]
    nw1 = 6
    flagr = -1
    xs = 1
    psleep = 2
    fsleep = 2
    ttper = 2
    f2n = 9
    fpre = 1
    a0 = 18
    sprio = 0
    ksig = 12
    opol = 1
    lprio = 3
    w12early = 0
    slab = 0
    spol = 1
    fpol = 1
    pollr = 4
    nw2 = 16
    thr = 15
    hpf = 3
    ky = 2
    @property
    def perms(self):
        return {
            0: [[0, 1, 2, 3, 4, 5, 6]],
            1: [[0, 1, 2, 3, 4, 5, 6], [1, 2, 0, 4, 5, 3, 6], [2, 0, 1, 5, 3, 4, 6]],
            2: [[0, 1, 2, 3, 4, 5, 6], [1, 0, 3, 2, 5, 4, 6]],
            3: [[0, 1, 2, 3, 4, 5, 6], [1, 0, 4, 5, 6, 2, 3], [0, 1, 6, 2, 3, 4, 5]],
            4: [[0, 1, 2, 3, 4, 5, 6], [1, 2, 0, 4, 6, 3, 5], [2, 0, 1, 5, 6, 3, 4]],
            5: [[0, 1, 2, 3, 4, 5, 6], [1, 2, 3, 0, 5, 6, 4], [2, 3, 0, 1, 6, 4, 5], [3, 0, 1, 2, 4, 5, 6]],
        }[self.perm]

WSOFF = [0]
def srd(a, d, ptr, nbytes):
    if ptr == P_WS and WSOFF[0]:
        a(f"s_add_u32 s{ptr}, s{ptr}, {WSOFF[0]:#x}")
        a(f"s_addc_u32 s{ptr+1}, s{ptr+1}, 0")
    a(f"s_mov_b32 s{d}, s{ptr}")
    a(f"s_and_b32 s{d+1}, s{ptr+1}, 0xffff")
    a(f"s_mov_b32 s{d+2}, {nbytes:#x}")
    a(f"s_mov_b32 s{d+3}, 0x20000")

def srd_sel(a, d, ptr1, ptr0, nbytes):
    a(f"s_cselect_b32 s{d}, s{ptr1}, s{ptr0}")
    a(f"s_cselect_b32 s{d+1}, s{ptr1+1}, s{ptr0+1}")
    a(f"s_and_b32 s{d+1}, s{d+1}, 0xffff")
    a(f"s_mov_b32 s{d+2}, {nbytes:#x}")
    a(f"s_mov_b32 s{d+3}, 0x20000")

class TS:
    def __init__(self, a, cfg):
        self.a, self.on, self.n, self.set = a, cfg.ts, 0, cfg.tsset
        self.cfg = cfg
    def x(self, setno, i):
        if self.on and self.set == setno: self.emit(i)
    def __call__(self, i):
        if self.on and (self.set == 0 or i in (0, 12)): self.emit(i)
    def emit(self, i):
        if self.on == 5 and i not in (0, self.cfg.probe): return
        if self.on:
            assert i < 13
            self.a(f"{'s_memrealtime' if self.on != 2 else 's_memtime'} s[{TS0+2*i}:{TS0+2*i+1}]")
    def init(self):
        if self.on:
            for i in range(1, 13): self.a(f"s_mov_b32 s{TS0+2*i}, 0")
    def dump(self, vt, vt2, who=2):
        if not self.on: return
        a = self.a
        if self.on == 5:
            if who != self.cfg.pwho: return
            lab = a.newlabel("L_probe")
            if self.cfg.ponly >= 0:
                a(f"s_and_b32 s11, s2, {self.cfg.pmask}")
                a(f"s_cmp_lg_u32 s11, {self.cfg.ponly}")
                a(f"s_cbranch_scc1 {lab}_x")
            p = TS0 + 2 * self.cfg.probe
            a("s_waitcnt lgkmcnt(0)")
            a(f"s_sub_u32 s11, s{p}, s{TS0}")
            a(f"s_cmp_eq_u32 s{p}, 0")
            a("s_cselect_b32 s11, 0, s11")
            a("s_lshl_b32 s11, s11, 2")
            a("s_add_u32 s11, s11, 3000")
            a.label(lab)
            a("s_memrealtime s[12:13]")
            a("s_waitcnt lgkmcnt(0)")
            a(f"s_sub_u32 s12, s12, s{TS0}")
            a("s_cmp_lt_u32 s12, s11")
            a(f"s_cbranch_scc1 {lab}")
            a.label(lab + "_x")
            return
        if self.on == 3:
            a("s_waitcnt vmcnt(0) lgkmcnt(0)")
            lab = a.newlabel("L_nod")
            a(f"s_cmp_eq_u32 s{TS0+24}, 0")
            a(f"s_cbranch_scc1 {lab}")
            a(f"s_cmp_lg_u32 s{S_WAVE}, 0")
            a(f"s_cbranch_scc1 {lab}")
            a("s_mov_b64 exec, 1")
            a(f"v_mov_b32 v{vt2}, 0")
            a(f"s_not_b32 s11, s{TS0}")
            a(f"v_mov_b32 v{vt}, s11")
            a(f"global_atomic_umax v{vt2}, v{vt}, s[{P_DBG}:{P_DBG+1}] offset:4 sc1")
            for n, i in enumerate([0, 1, 2, 3, 4, 5, 6, 7, 8, 9, 10, 11, 12]):
                a("s_waitcnt vmcnt(0)")
                a(f"v_mov_b32 v{vt}, s{TS0+2*i}")
                a(f"global_atomic_umax v{vt2}, v{vt}, s[{P_DBG}:{P_DBG+1}] offset:{8+4*n} sc1")
            a("s_waitcnt vmcnt(0)")
            a.label(lab)
            return
        a("s_waitcnt vmcnt(0) lgkmcnt(0)")
        a(f"s_lshl_b32 s11, s2, 9")
        a(f"s_lshl_b32 s12, s{S_WAVE}, 6")
        a("s_add_u32 s11, s11, s12")
        a(f"s_add_u32 s11, s11, {WS_TS:#x}")
        a(f"v_mov_b32 v{vt2}, s11")
        for i in range(13):
            a(f"v_mov_b32 v{vt}, s{TS0+2*i}")
            a(f"buffer_store_dword v{vt}, v{vt2}, s[{SRD_WS}:{SRD_WS+3}], 0 offen offset:{4*i}")
        a("s_waitcnt vmcnt(0)")

def round_bf16(a, dst, src):
    a(f"v_cvt_pk_bf16_f32 v{dst}, v{src}, v{src}")
    a(f"v_lshlrev_b32 v{dst}, 16, v{dst}")

def exp_acc(a, dst, x, t0, t1):
    a(f"s_mov_b32 s36, {LOG2E:#x}")
    a(f"s_mov_b32 s37, {LOG2E_LO:#x}")
    a(f"v_mul_f32 v{t0}, s36, v{x}")
    a(f"v_fma_f32 v{t1}, v{x}, s36, -v{t0}")
    a(f"v_fma_f32 v{t1}, v{x}, s37, v{t1}")
    a(f"v_mul_f32 v{t1}, {LN2:#x}, v{t1}")
    a(f"v_exp_f32 v{dst}, v{t0}")
    a(f"v_fma_f32 v{dst}, v{dst}, v{t1}, v{dst}")

def csq(a, dr, di, sr, si, t):
    a(f"v_mul_f32 v{t}, v{si}, v{si}")
    a(f"v_add_f32 v{di}, v{si}, v{si}")
    a(f"v_mul_f32 v{di}, v{di}, v{sr}")
    a(f"v_fma_f32 v{dr}, v{sr}, v{sr}, -v{t}")

def cmul(a, dr, di, ar, ai, br, bi):
    a(f"v_mul_f32 v{dr}, v{ar}, v{br}")
    a(f"v_mul_f32 v{di}, v{ar}, v{bi}")
    a(f"v_fma_f32 v{dr}, -v{ai}, v{bi}, v{dr}")
    a(f"v_fma_f32 v{di}, v{ai}, v{br}, v{di}")

def ssm_const_load(a, vm, t):
    a(f"v_and_b32 v{t+3}, 15, v0")
    a(f"s_lshl_b32 s11, s{S_NS}, 4")
    a(f"v_add_lshl_u32 v{t+3}, v{t+3}, s11, 1")
    vm.issue('sc', f"global_load_ushort v{t}, v{t+3}, s[{P_LRE}:{P_LRE+1}]")
    vm.issue('sc', f"global_load_ushort v{t+1}, v{t+3}, s[{P_LIM}:{P_LIM+1}]")
    vm.issue('sc', f"global_load_ushort v{t+2}, v{t+3}, s[{P_LDT}:{P_LDT+1}]")

def ssm_const_calc(a, t, lr, li, cr=None, ci=None):
    for k in range(3): a(f"v_lshlrev_b32 v{t+k}, 16, v{t+k}")
    exp_acc(a, t + 3, t + 2, t + 4, t + 5)
    round_bf16(a, t + 2, t + 3)
    a(f"v_mul_f32 v{t+3}, v{t+2}, v{t}")
    a(f"v_mul_f32 v{t+6}, v{t+2}, v{t+1}")
    exp_acc(a, t + 7, t + 3, t + 4, t + 5)
    a(f"v_mul_f32 v{t+6}, {INV2PI:#x}, v{t+6}")
    a(f"v_rndne_f32 v{t+4}, v{t+6}")
    a(f"v_sub_f32 v{t+6}, v{t+6}, v{t+4}")
    a(f"v_cos_f32 v{t+4}, v{t+6}")
    a(f"v_sin_f32 v{t+5}, v{t+6}")
    a(f"v_mul_f32 v{lr}, v{t+7}, v{t+4}")
    a(f"v_mul_f32 v{li}, v{t+7}, v{t+5}")
    if cr is not None:
        a(f"v_add_f32 v{t+3}, -1.0, v{lr}")
        a(f"v_mul_f32 v{t+4}, v{t}, v{t}")
        a(f"v_fma_f32 v{t+4}, v{t+1}, v{t+1}, v{t+4}")
        a(f"v_rcp_f32 v{t+4}, v{t+4}")
        a(f"v_mul_f32 v{cr}, v{t+3}, v{t}")
        a(f"v_fma_f32 v{cr}, v{li}, v{t+1}, v{cr}")
        a(f"v_mul_f32 v{ci}, v{li}, v{t}")
        a(f"v_fma_f32 v{ci}, -v{t+3}, v{t+1}, v{ci}")
        a(f"v_add_f32 v{t+4}, v{t+4}, v{t+4}")
        a(f"v_mul_f32 v{cr}, v{cr}, v{t+4}")
        a(f"v_mul_f32 v{ci}, v{ci}, v{t+4}")

def gen_entry(a, cfg, ts):
    a("s_cmp_ge_u32 s2, 256")
    a("s_cbranch_scc1 L_exit")
    if cfg.padto: a("s_memrealtime s[100:101]")
    ts(0)
    a("s_load_dwordx16 s[16:31], s[0:1], 0")
    a("s_load_dwordx16 s[32:47], s[0:1], 64")
    a("v_lshrrev_b32 v1, 6, v0")
    a("v_and_b32 v0, 63, v0")
    a(f"v_readfirstlane_b32 s{S_WAVE}, v1")
    a(f"s_and_b32 s{S_XCD}, s2, 7")
    a(f"s_lshr_b32 s{S_SLOT}, s2, 3")
    if cfg.cpf == 2:
        a(f"s_cmp_lg_u32 s{S_WAVE}, 0")
        a("s_cbranch_scc1 L_nocpf")
        a("s_getpc_b64 s[12:13]")
        a.label("L_pc0")
        a(f"s_sub_u32 s12, s12, L_pc0-{KNAME}")
        a("s_subb_u32 s13, s13, 0")
        a(f"s_lshl_b32 s11, s{S_SLOT}, 10")
        a("v_lshl_add_u32 v38, v0, 4, s11")
        a(f"v_min_u32 v38, L_exit-{KNAME}, v38")
        a("global_load_dword v39, v38, s[12:13]")
        a.label("L_nocpf")
    a(f"s_and_b32 s11, s{S_SLOT}, 3")
    a(f"s_lshr_b32 s{S_NT}, s{S_SLOT}, 2")
    a(f"s_and_b32 s12, s{S_XCD}, 1")
    a(f"s_lshl_b32 s12, s12, 2")
    a(f"s_add_u32 s{S_MT}, s12, s11")
    a(f"s_lshr_b32 s12, s{S_XCD}, 1")
    a(f"s_mul_i32 s12, s12, 7")
    a(f"s_add_u32 s{S_NS}, s12, s{S_NT}")
    if cfg.slab:
        a(f"s_mov_b32 s{S_MT}, s{S_XCD}")
        a(f"s_mov_b32 s{S_NS}, s{S_SLOT}")
    a(f"s_lshl_b32 s12, s{S_XCD}, 2")
    a(f"s_add_u32 s{S_M64}, s12, s11")
    a(f"s_and_b32 s{S_W4}, s{S_WAVE}, 3")
    ts.init()
    a(f"s_cmp_ge_u32 s{S_SLOT}, 28")
    a("s_cbranch_scc1 L_helper")
    a(f"s_cmp_lt_u32 s{S_WAVE}, 4")
    a("s_cbranch_scc1 L_consumer")

def gen_helper(a, cfg, ts):
    a.label("L_helper")
    vm = VM(a)
    a(f"s_sub_u32 s73, s{S_SLOT}, 28")
    a(f"s_lshl_b32 s11, s73, 3")
    a(f"s_add_u32 s72, s11, s{S_XCD}")
    a(f"s_cmp_ge_u32 s{S_WAVE}, 4")
    a("s_cbranch_scc1 L_h_pf")
    a(f"s_lshl_b32 s11, s72, 6")
    a(f"s_lshl_b32 s12, s{S_WAVE}, 4")
    a(f"s_add_u32 s11, s11, s12")
    a("v_lshrrev_b32 v2, 3, v0")
    a("v_add_u32 v2, s11, v2")
    a("v_mul_u32_u24 v3, 896, v2")
    a("v_and_b32 v4, 7, v0")
    a("v_lshl_add_u32 v3, v4, 4, v3")
    a("s_waitcnt lgkmcnt(0)")
    srd(a, SRD_X, P_X, 2048 * 896)
    srd(a, SRD_WS, P_WS, WS_SIZE)
    a(f"s_mov_b32 s11, {8*896}")
    for ps in range(2):
        for j in range(7):
            so = "0" if ps == 0 else "s11"
            vm.issue(('x', ps), f"buffer_load_dwordx4 v[{112+28*ps+4*j}:{115+28*ps+4*j}], v3, s[{SRD_X}:{SRD_X+3}], {so} offen offset:{128*j}")
    a(f"s_cmp_gt_u32 s{S_WAVE}, 1")
    a("s_cbranch_scc1 L_h_noreset")
    a(f"s_cmp_eq_u32 s{S_WAVE}, 0")
    a("s_cselect_b32 s11, -1, 0")
    a("s_mov_b32 s12, 1024")
    a("s_cmov_b32 s12, 896")
    a(f"s_mov_b32 s13, {WS_FLAG:#x}")
    a(f"s_cmov_b32 s13, {WS_AGG:#x}")
    a("s_mul_i32 s14, s12, s72")
    a("s_add_u32 s13, s13, s14")
    for k in range(4): a(f"v_mov_b32 v{8+k}, s11")
    a("v_lshlrev_b32 v12, 4, v0")
    a("v_cmp_gt_u32 vcc, s12, v12")
    a("s_and_saveexec_b64 s[14:15], vcc")
    a(f"buffer_store_dwordx4 v[8:11], v12, s[{SRD_WS}:{SRD_WS+3}], s13 offen sc1")
    a("s_mov_b64 exec, s[14:15]")
    a.label("L_h_noreset")
    a("s_nop 1")
    a("v_lshlrev_b32 v2, 3, v2")
    a("s_mov_b32 s12, 0xffff0000")
    def fin(dst):
        a("v_add_f32 v8, v8, v9")
        a("v_add_f32 v10, v10, v11")
        a(f"v_add_f32 v{dst}, v8, v10")
        a(f"v_add_f32_dpp v{dst}, v{dst}, v{dst} quad_perm:[1,0,3,2] row_mask:0xf bank_mask:0xf")
        a(f"v_add_f32_dpp v{dst}, v{dst}, v{dst} quad_perm:[2,3,0,1] row_mask:0xf bank_mask:0xf")
        a(f"v_add_f32_dpp v{dst}, v{dst}, v{dst} row_half_mirror row_mask:0xf bank_mask:0xf")
        a(f"v_mul_f32 v{dst}, 0x3b124925, v{dst}")
    for ps in range(2):
        vm.wait(('x', ps))
        if cfg.hdelay == 2 + ps: a("s_barrier")
        src = 112 + 28 * ps
        for k in range(28):
            a(f"v_lshlrev_b32 v{48+2*k}, 16, v{src+k}")
            a(f"v_and_b32 v{49+2*k}, s12, v{src+k}")
        a("v_pk_add_f32 v[8:9], v[48:49], v[52:53]")
        a("v_pk_add_f32 v[10:11], v[50:51], v[54:55]")
        for k in range(4, 28): a(f"v_pk_add_f32 v[{8+2*(k%2)}:{9+2*(k%2)}], v[{8+2*(k%2)}:{9+2*(k%2)}], v[{48+2*k}:{49+2*k}]")
        fin(12)
        for k in range(28): a(f"v_pk_add_f32 v[{48+2*k}:{49+2*k}], v[{48+2*k}:{49+2*k}], v[12:13] op_sel_hi:[1,0] neg_lo:[0,1] neg_hi:[0,1]")
        for k in range(2): a(f"v_pk_mul_f32 v[{8+2*k}:{9+2*k}], v[{48+2*k}:{49+2*k}], v[{48+2*k}:{49+2*k}]")
        for k in range(2, 28): a(f"v_pk_fma_f32 v[{8+2*(k%2)}:{9+2*(k%2)}], v[{48+2*k}:{49+2*k}], v[{48+2*k}:{49+2*k}], v[{8+2*(k%2)}:{9+2*(k%2)}]")
        fin(13)
        o = 14 + 2 * ps
        round_bf16(a, o, 12)
        round_bf16(a, 13, 13)
        a("v_add_f32 v13, 0x3727c5ac, v13")
        round_bf16(a, 13, 13)
        a("v_sqrt_f32 v13, v13")
        round_bf16(a, 13, 13)
        a(f"v_rcp_f32 v{o+1}, v13")
        a("v_cmp_eq_u32 vcc, 0, v4")
        a("s_and_saveexec_b64 s[14:15], vcc")
        a(f"s_mov_b32 s11, {WS_STATS:#x}")
        vm.issue('st', f"buffer_store_dwordx2 v[{o}:{o+1}], v2, s[{SRD_WS}:{SRD_WS+3}], s11 offen offset:{64*ps} sc1")
        a("s_mov_b64 exec, s[14:15]")
    a("s_waitcnt vmcnt(0)")
    a("v_mov_b32 v8, 0")
    a("v_mov_b32 v9, 1")
    a("s_mov_b64 exec, 1")
    a(f"global_atomic_add v8, v9, s[{P_DBG}:{P_DBG+1}] sc1")
    a("s_mov_b64 exec, -1")
    ts(1)
    ts.dump(8, 9)
    a("s_endpgm")
    a.label("L_h_pf")
    a("v_lshlrev_b32 v2, 4, v0")
    a(f"s_lshl_b32 s11, s{S_W4}, 10")
    a("v_add_u32 v2, s11, v2")
    if cfg.cpf == 1:
        a("s_getpc_b64 s[60:61]")
        a.label("L_pc")
        a(f"s_sub_u32 s60, s60, L_pc-{KNAME}")
        a("s_subb_u32 s61, s61, 0")
        a("s_lshl_b32 s11, s73, 12")
        a("v_add_u32 v3, s11, v2")
        for k in range(2):
            a(f"v_min_u32 v4, L_exit-{KNAME}-12, v3")
            a(f"global_load_dwordx4 v[24:27], v4, s[60:61]")
            a(f"v_add_u32 v3, 16384, v3")
    a("s_waitcnt lgkmcnt(0)")
    if cfg.hdelay == 1: a("s_waitcnt vmcnt(0)")
    if cfg.hdelay >= 2: a("s_barrier")
    srd(a, SRD_WS, P_WS, WS_SIZE)
    if cfg.hpf:
        for (ptr, nbytes, srdn) in ((P_CRE, 448 * 896, 48), (P_CIM, 448 * 896, 52), (P_WD, 1792 * 896, 56)):
            srd(a, srdn, ptr, nbytes)
        def sweep(name, srds, qbytes, first, count):
            n8 = -(-qbytes // (8 * 4096))
            n = 8 * n8
            a(f"s_mul_i32 s12, s73, {qbytes}")
            a(f"s_add_u32 s13, s{S_XCD}, {first}")
            a("s_and_b32 s13, s13, 7")
            a(f"s_mul_i32 s13, s13, {n8}")
            a("s_mov_b32 s14, 0")
            a.label(name)
            a("s_lshl_b32 s11, s13, 12")
            a("s_add_u32 s11, s11, s12")
            for k, sr in enumerate(srds):
                a(f"buffer_load_dwordx4 v[{16+4*k}:{19+4*k}], v2, s[{sr}:{sr+3}], s11 offen")
            a("s_add_u32 s13, s13, 1")
            a(f"s_cmp_eq_u32 s13, {n}")
            a("s_cselect_b32 s13, 0, s13")
            a("s_add_u32 s14, s14, 1")
            a(f"s_cmp_lt_u32 s14, {n8 * count}")
            a(f"s_cbranch_scc1 {name}")
        if cfg.hpf == 4:
            sweep("L_h_p0", [48, 52], 448 * 896 // 4, 0, 8)
        else:
            sweep("L_h_p1", [48, 52], 448 * 896 // 4, 0, 1)
            sweep("L_h_p2", [56], 1792 * 896 // 4, 0, 1)
        ts(2)
        if cfg.hpf == 3:
            sweep("L_h_p3", [48, 52], 448 * 896 // 4, 1, 7)
            ts(3)
    ts.dump(8, 9)
    a("s_endpgm")

def spin_check(a, name, load_text_list, cond_fn, sleep=1):
    lo, done = a.newlabel(name + "_spin"), a.newlabel(name + "_ok")
    a(f"s_mov_b32 s73, 0")
    a.label(lo)
    cond_fn()
    a(f"s_cbranch_scc1 {done}")
    a("s_add_u32 s73, s73, 1")
    a(f"s_cmp_ge_u32 s73, {SPIN_MAX}")
    a(f"s_cbranch_scc1 {done}")
    a(f"s_sleep {sleep}")
    for t in load_text_list: a(t)
    a("s_waitcnt vmcnt(0)")
    a(f"s_branch {lo}")
    a.label(done)
    a("s_nop 4")

def sspin(a, name, loads, cond_fn, sleep=1):
    lo, done = a.newlabel(name + "_spin"), a.newlabel(name + "_ok")
    a("s_mov_b32 s73, 0")
    a.label(lo)
    for t in loads: a(t)
    a("s_waitcnt lgkmcnt(0)")
    cond_fn()
    a(f"s_cbranch_scc1 {done}")
    a("s_add_u32 s73, s73, 1")
    a(f"s_cmp_lt_u32 s73, {SPIN_MAX}")
    if sleep: a(f"s_sleep {sleep}")
    a(f"s_cbranch_scc1 {lo}")
    a.label(done)

def flag_index(a, d, t, grp):
    a(f"s_mul_i32 s{t}, s{S_NS}, 37")
    a(f"s_lshr_b32 s{t}, s{t}, {8 if grp == 7 else 9}")
    a(f"s_mul_i32 s{t}, s{t}, {32 - grp}")
    a(f"s_add_u32 s{d}, s{t}, s{S_NS}")
    a(f"s_lshl_b32 s{d}, s{d}, 2")

def interleave(a, prim, fill, per):
    fill = list(fill)
    for p in prim:
        p()
        for _ in range(per):
            if fill: a(fill.pop(0))
    for f in fill: a(f)

def p2_rot(a, cfg, d_ffn, d_blk, d_flip):
    if not cfg.rot:
        for d in (d_ffn, d_blk, d_flip): a(f"s_mov_b32 s{d}, 0")
        return
    if cfg.rot == 2:
        a(f"s_and_b32 s11, s{S_SLOT}, 3")
        a(f"s_lshl_b32 s{d_ffn}, s11, 1")
        for d in (d_blk, d_flip): a(f"s_mov_b32 s{d}, 0")
        return
    a(f"s_and_b32 s11, s{S_SLOT}, 3")
    a("s_lshl_b32 s11, s11, 1")
    a(f"s_add_u32 s11, s11, s{S_NT}")
    a("s_cmp_ge_u32 s11, 7")
    a("s_cselect_b32 s13, 7, 0")
    a(f"s_sub_u32 s{d_ffn}, s11, s13")
    a(f"s_lshr_b32 s11, s{S_NT}, 1")
    a(f"s_and_b32 s13, s{S_SLOT}, 3")
    a("s_add_u32 s11, s11, s13")
    a("s_mul_i32 s13, s11, 43")
    a("s_lshr_b32 s13, s13, 7")
    a("s_mul_i32 s13, s13, 3")
    a(f"s_sub_u32 s{d_blk}, s11, s13")
    a(f"s_and_b32 s{d_flip}, s{S_NT}, 1")

def slot(reg, n): return R[reg] + 2048 * n
SA = [slot(1, n) for n in range(6)]; SB = [slot(2, n) for n in range(6)]; SC = [slot(0, n) for n in range(6)]
WSLOT = {}
for n in range(6): WSLOT[n] = SA[n]; WSLOT[6 + n] = SB[n]
for n in range(4): WSLOT[12 + n] = SC[n]; WSLOT[16 + n] = SA[n]; WSLOT[20 + n] = SB[n]
WSLOT.update({24: SA[4], 25: SA[5], 26: SB[4], 27: SB[5]})
HTS = SC[4]
PH1, PH2, GA, FXA, SD = SC[0], SC[4], SB[0], SA[0], SC[0]

class Rec:
    def __init__(self): self.L = []
    def __call__(self, t): self.L.append(t)

def ssm_park(kc, K, KP, sQ):
    LR, LI, CR, CI, L16R, L16I, PWR, PWI, L64R, L64I, LWR, LWI, W0R = [KP + k for k in range(13)]
    vTW, vTR, vCB = KP + 16, KP + 17, KP + 18
    ssm_const_calc(kc, K, LR, LI, CR, CI)
    csq(kc, L16R, L16I, LR, LI, K)
    for _ in range(3): csq(kc, L16R, L16I, L16R, L16I, K)
    def powsel(dr, di, br, bi, bit, src):
        cmul(kc, K + 1, K + 2, dr, di, br, bi)
        kc(f"v_and_b32 v{K}, {bit}, v{src}")
        kc(f"v_cmp_ne_u32 vcc, 0, v{K}")
        kc(f"v_cndmask_b32 v{dr}, v{dr}, v{K+1}, vcc")
        kc(f"v_cndmask_b32 v{di}, v{di}, v{K+2}, vcc")
    kc(f"v_mov_b32 v{PWR}, v{CR}"); kc(f"v_mov_b32 v{PWI}, v{CI}")
    powsel(PWR, PWI, L16R, L16I, 32, 0)
    csq(kc, K + 14, K + 15, L16R, L16I, K)
    powsel(PWR, PWI, K + 14, K + 15, 16, 0)
    csq(kc, L64R, L64I, K + 14, K + 15, K)
    kc(f"v_mov_b32 v{K+10}, s{S_W4}")
    kc(f"v_mov_b32 v{LWR}, 1.0"); kc(f"v_mov_b32 v{LWI}, 0")
    powsel(LWR, LWI, L64R, L64I, 1, K + 10)
    csq(kc, K + 14, K + 15, L64R, L64I, K)
    powsel(LWR, LWI, K + 14, K + 15, 2, K + 10)
    csq(kc, K + 14, K + 15, K + 14, K + 15, K)
    kc(f"v_lshrrev_b32 v{K+10}, 4, v0")
    kc(f"v_sub_u32 v{K+10}, s{S_MT}, v{K+10}")
    kc(f"v_add_u32 v{K+11}, -5, v{K+10}")
    kc(f"v_add_u32 v{K+10}, -1, v{K+10}")
    kc(f"v_mov_b32 v{W0R}, 1.0"); kc(f"v_mov_b32 v{W0R+1}, 0")
    kc(f"v_mov_b32 v{W0R+2}, 1.0"); kc(f"v_mov_b32 v{W0R+3}, 0")
    for b in range(3):
        powsel(W0R, W0R + 1, K + 14, K + 15, 1 << b, K + 10)
        if b < 2: powsel(W0R + 2, W0R + 3, K + 14, K + 15, 1 << b, K + 11)
        if b < 2: csq(kc, K + 14, K + 15, K + 14, K + 15, K)
    kc(f"s_add_u32 s36, s{sQ}, {HTS}")
    kc(f"v_bfe_u32 v{K}, v0, 4, 1")
    kc(f"v_lshrrev_b32 v{K+1}, 5, v0")
    kc(f"v_lshl_add_u32 v{K+2}, v{K}, 1, v{K+1}")
    kc(f"v_and_b32 v{K+3}, 15, v0")
    kc(f"v_and_b32 v{vTW}, 6, v{K+3}")
    kc(f"v_lshlrev_b32 v{vTW}, 4, v{vTW}")
    kc(f"v_lshlrev_b32 v{K+4}, 5, v{K+2}")
    kc(f"v_xor_b32 v{vTW}, v{vTW}, v{K+4}")
    kc(f"v_lshl_add_u32 v{vTW}, v{K+3}, 7, v{vTW}")
    kc(f"v_add_u32 v{vTW}, s36, v{vTW}")
    kc(f"v_lshlrev_b32 v{vCB}, 2, v{K+3}")
    kc(f"v_add_u32 v{vCB}, {C_L + 512}, v{vCB}")
    kc(f"v_bfe_u32 v{K+4}, v0, 2, 2")
    kc(f"v_lshl_add_u32 v{K+5}, v{K+1}, 3, v{K+4}")
    kc(f"v_lshlrev_b32 v{vTR}, 7, v{K+5}")
    kc(f"v_lshrrev_b32 v{K+4}, 1, v{K+4}")
    kc(f"v_xor_b32 v{K+4}, v{K+4}, v0")
    kc(f"v_and_b32 v{K+4}, 1, v{K+4}")
    kc(f"v_lshl_add_u32 v{vTR}, v{K+4}, 5, v{vTR}")
    kc(f"v_lshl_add_u32 v{vTR}, v{K}, 4, v{vTR}")
    kc(f"v_bfe_u32 v{K+4}, v0, 1, 1")
    kc(f"v_lshl_add_u32 v{vTR}, v{K+4}, 3, v{vTR}")
    kc(f"v_add_u32 v{vTR}, s36, v{vTR}")
    kc(f"s_lshl_b32 s36, s{S_W4}, 9")
    kc(f"s_add_u32 s36, s36, {STATS_L}")
    kc(f"v_lshl_add_u32 v{KP+19}, v{K+2}, 7, s36")
    vStS = KP + 19
    vAg, vPr, vF = KP + 20, KP + 21, KP + 22
    kc(f"v_lshlrev_b32 v{vAg}, 3, v{K+3}")
    kc(f"v_lshrrev_b32 v{vPr}, 4, v0")
    kc(f"v_mul_u32_u24 v{vPr}, 3584, v{vPr}")
    kc(f"s_lshl_b32 s36, s{S_NS}, 7")
    kc(f"v_add3_u32 v{vPr}, v{vPr}, v{vAg}, s36")
    kc(f"v_add_u32 v{vAg}, {AGG_L}, v{vAg}")
    kc(f"s_lshl_b32 s36, s{S_MT}, 2")
    kc(f"s_add_u32 s36, s36, s{S_W4}")
    kc("s_lshl_b32 s36, s36, 10")
    flag_index(kc, 37, 38, 14)
    kc("s_add_u32 s36, s36, s37")
    kc(f"s_add_u32 s36, s36, {WS_FLAG + 512:#x}")
    kc(f"v_mov_b32 v{vF}, s36")

def gen_loader(a, cfg, ts):
    a.label("L_loader")
    a("s_setprio 3")
    vm = VM(a)
    vXe, vXo, vW, vB = 1, 2, 3, 4
    vFv, vP, vO, vPQ = 5, 6, 7, 8
    vWd, vCe, vCo, vCh = 9, 10, 11, 12
    vRf, vRh = 13, 14
    vA, vC = 24, 25
    vT = 15
    ACC, CA, RD = 27, 28, 44
    STG = 64
    CF = 144
    SACC = 80
    XRAW = CF + 64
    KP = XRAW + 8
    sGrp = [28, 29, 30, 31, 36, 37, 21]
    SP = ['', ' sc1'][cfg.spol]
    sMX, sMW, sMB, sMP = 72, 74, 75, 70
    sPerm, sSX, sSW = 68, 69, 15
    sRF = 14
    AP = ['', ' sc1', ' sc1 nt', ' sc0 sc1', ' sc0', ' nt'][cfg.apol]
    OP = ['', ' sc1', ' nt', ' sc1 nt'][cfg.opol]
    polx = " nt" if cfg.polx else ""
    polw = " nt" if cfg.polw else ""
    a(f"v_lshrrev_b32 v{vA}, 3, v0")
    a(f"v_and_b32 v{vC}, 7, v0")
    a(f"v_lshrrev_b32 v{vT+2}, 1, v{vA}")
    a(f"s_lshl_b32 s11, s{S_W4}, 4")
    a(f"v_add_u32 v{vT}, s11, v{vA}")
    a(f"v_mul_u32_u24 v{vW}, 3584, v{vT}")
    a(f"v_and_b32 v{vT+4}, 1, v{vT+2}")
    a(f"v_lshlrev_b32 v{vT+4}, 2, v{vT+4}")
    a(f"v_xor_b32 v{vT+4}, v{vC}, v{vT+4}")
    a(f"v_lshl_add_u32 v{vW}, v{vT+4}, 4, v{vW}")
    a(f"s_lshl_b32 s11, s{S_NS}, 7")
    a(f"v_add_u32 v{vW}, s11, v{vW}")
    a(f"s_lshl_b32 s11, s{S_MT}, 8")
    a(f"s_lshl_b32 s12, s{S_W4}, 6")
    a("s_add_u32 s11, s11, s12")
    a(f"v_lshrrev_b32 v{vT}, 2, v{vA}")
    a(f"v_and_b32 v{vT+1}, 3, v{vA}")
    a(f"v_lshl_add_u32 v{vT}, v{vT}, 4, v{vT+1}")
    a(f"v_add_u32 v{vT}, s11, v{vT}")
    a(f"v_mul_u32_u24 v{vXe}, 896, v{vT}")
    a(f"v_xor_b32 v{vT+3}, v{vC}, v{vT+2}")
    a(f"v_lshl_add_u32 v{vXe}, v{vT+3}, 4, v{vXe}")
    a(f"v_xor_b32 v{vXo}, 64, v{vXe}")
    a(f"s_and_b32 s12, s{S_W4}, 1")
    a(f"s_lshl_b32 s11, s{S_NS}, 4")
    a(f"s_lshl_b32 s13, s12, 3")
    a("s_add_u32 s11, s11, s13")
    a(f"v_add_u32 v{vT}, s11, v{vA}")
    a(f"v_mul_u32_u24 v{vB}, 896, v{vT}")
    a(f"v_lshl_add_u32 v{vB}, v{vT+3}, 4, v{vB}")
    a("s_lshl_b32 s13, s12, 6")
    a(f"v_xor_b32 v{vB}, s13, v{vB}")
    a(f"s_lshl_b32 s{sMX}, s{S_W4}, 13")
    a(f"s_lshl_b32 s{sMW}, s{S_W4}, 11")
    a(f"s_lshl_b32 s{sMB}, s{S_W4}, 10")
    a(f"s_mul_i32 s{sMP}, s{S_W4}, {Q}")
    perms = cfg.perms
    words = [sum(p[k] << (4 * k) for k in range(7)) for p in perms]
    ng = len(words)
    a(f"s_mov_b32 s{sPerm}, {words[0]:#x}")
    if ng > 1:
        if cfg.slab:
            a(f"s_add_u32 s11, s{S_SLOT}, s{S_XCD}")
        else:
            a(f"s_and_b32 s11, s{S_SLOT}, 3")
            a(f"s_add_u32 s11, s11, s{S_NT}")
        if ng == 3:
            a("s_mul_i32 s13, s11, 43")
            a("s_lshr_b32 s13, s13, 7")
            a("s_mul_i32 s13, s13, 3")
            a("s_sub_u32 s11, s11, s13")
        else:
            a(f"s_and_b32 s11, s11, {ng-1}")
        for g in range(1, ng):
            a(f"s_cmp_eq_u32 s11, {g}")
            a(f"s_cmov_b32 s{sPerm}, {words[g]:#x}")
    ts.x(1, 1)
    a("s_waitcnt lgkmcnt(0)")
    ts.x(1, 2)
    if cfg.tlb:
        a(f"v_mov_b32 v40, s{P_X}")
        a(f"v_mov_b32 v41, s{P_X+1}")
        for ln, p in enumerate([P_WG, P_WU, P_BRE, P_BIM, P_WD, P_CRE, P_CIM, P_WS][:cfg.tlb], 1):
            a(f"v_writelane_b32 v40, s{p}, {ln}")
            a(f"v_writelane_b32 v41, s{p+1}, {ln}")
        a(f"s_mov_b64 exec, {(1 << (cfg.tlb + 1)) - 1:#x}")
        a("global_load_dword v62, v[40:41], off")
        a("s_mov_b64 exec, -1")
    srd(a, SRD_A, P_WG, 448 * 3584)
    srd(a, SRD_X, P_X, 2048 * 896)
    srd(a, SRD_B, P_WU, 448 * 3584)
    a(f"s_cmp_ge_u32 s{S_W4}, 2")
    srd_sel(a, SRD_C, P_BIM, P_BRE, 448 * 896)

    thr = [None]
    def dma(vm, tag, voff, srdn, sbase, soff, m0base, m0off, pol=""):
        a(f"s_add_u32 m0, s{m0base}, {m0off}")
        a(f"s_add_u32 s11, s{sbase}, {soff}")
        if thr[0] is not None and len(vm.q) > thr[0]:
            a(f"s_waitcnt vmcnt({thr[0]})")
            vm.q = vm.q[-thr[0]:]
        vm.issue(tag, f"buffer_load_dwordx4 v{voff}, s[{srdn}:{srdn+3}], s11 offen{pol} lds")
    def issue_ops(s):
        r = R[s % 3]
        ops = []
        def pre():
            a(f"s_bfe_u32 s{sSX}, s{sPerm}, {(4 << 16) | (4 * s):#x}")
            a(f"s_mul_i32 s{sSW}, s{sSX}, {64*3584}")
            a(f"s_lshl_b32 s{sSX}, s{sSX}, 7")
        def mk(*args): return lambda: dma(vm, ('st', s), *args)
        L = []
        for i in range(2): L.append(mk(vW, SRD_A, sSW, i * 8 * 3584, sMW, r + OFF_WG + i * 1024, polw))
        for j in range(4): L.append(mk(vXo if j & 1 else vXe, SRD_X, sSX, (32 * (j >> 2) + 4 * (j & 3)) * 896, sMX, r + j * 1024, polx))
        for i in range(2): L.append(mk(vW, SRD_B, sSW, i * 8 * 3584, sMW, r + OFF_WU + i * 1024, polw))
        for j in range(4, 8): L.append(mk(vXo if j & 1 else vXe, SRD_X, sSX, (32 * (j >> 2) + 4 * (j & 3)) * 896, sMX, r + j * 1024, polx))
        L.append(mk(vB, SRD_C, sSX, 0, sMB, r + OFF_BB, polw))
        first = L[0]
        L[0] = lambda: (pre(), first())
        return L
    SRD_WD, SRD_CC, sBlk, sFlip, P_DSK2 = 32, 24, 16, 17, 38
    def w_ops(ps):
        L = []
        for p in ps:
            for n in range(2):
                def op(p=p, n=n):
                    if 12 <= p < 22:
                        d = STG + (p - 12) * 8 + 4 * n
                        a(f"s_add_u32 s11, s{sGrp[p//4]}, {((p % 4) * 16 + 8 * n) * 896}")
                        vm.issue(('w', p), f"buffer_load_dwordx4 v[{d}:{d+3}], v{vWd}, s[{SRD_WD}:{SRD_WD+3}], s11 offen")
                    else:
                        dma(vm, ('w', p), vWd, SRD_WD, sGrp[p//4], ((p % 4) * 16 + 8 * n) * 896, sMP, WSLOT[p] + n * 1024)
                L.append(op)
        return L
    def cf_ops(b, base):
        L = []
        for n in range(8):
            def op(n=n):
                if n == 0: a(f"s_mov_b32 s12, {b*128}")
                dst = base + n * 1024 if b < 2 else (SA[4], SB[4])[n >> 2] + (n & 3) * 1024
                dma(vm, ('c', b), vCo if n & 1 else vCe, SRD_CC, 12, 8 * n * 896, sMP, dst)
            L.append(op)
        return L
    def ch_ops(base):
        L = []
        for n in range(4):
            def op(n=n):
                if n == 0: a("s_mov_b32 s12, 0")
                dma(vm, ('c', 3), vCh, SRD_CC, 12, 16 * n * 896, sMP, base + n * 1024)
            L.append(op)
        return L
    def cf_read(b, base):
        if b < 2:
            a(f"s_add_u32 s11, s{sMP}, {base}")
            a("s_mov_b32 s12, s11")
        else:
            a(f"s_add_u32 s12, s{sMP}, {SA[4]}")
            a(f"s_add_u32 s13, s{sMP}, {SB[4] - 4096}")
            a(f"s_cmp_ge_u32 s{S_W4}, 2")
            a("s_cselect_b32 s11, s13, s12")
            a("s_cselect_b32 s12, s12, s13")
        vm.wait(('c', b))
        for ks in range(4):
            for lc in range(2):
                t = vT + lc
                a(f"v_xor_b32 v{t}, {32*ks + 4096*lc}, v{vRf}")
                a(f"v_add_u32 v{t}, s{11+lc}, v{t}")
                d = CF + (4 * b + ks) * 8 + 4 * lc
                a(f"ds_read_b128 v[{d}:{d+3}], v{t}")
    def ch_read(base):
        a(f"s_add_u32 s11, s{sMP}, {base}")
        vm.wait(('c', 3))
        for lc in range(2):
            a(f"v_xor_b32 v{vT+lc}, {2048*lc}, v{vRh}")
            a(f"v_add_u32 v{vT+lc}, s11, v{vT+lc}")
            for ks in range(2):
                d = CF + (12 + ks) * 8 + 4 * lc
                a(f"ds_read_b128 v[{d}:{d+3}], v{vT+lc} offset:{ks*32}")
    def w_write(ps):
        vm.wait(('w', ps[-1]))
        base = WSLOT[ps[0]]
        a(f"v_add_u32 v{vT+4}, {base}, v{vPQ}")
        for p in ps:
            for n in range(2):
                d = STG + (p - 12) * 8 + 4 * n
                a(f"ds_write_b128 v{vT+4}, v[{d}:{d+3}] offset:{WSLOT[p] - base + 1024*n}")
    def colsum_reads(s):
        r = R[s % 3]
        a(f"s_add_u32 s11, s{sMW}, {r + OFF_WG}")
        a(f"v_add_u32 v{vT}, s11, v{vP}")
        a(f"s_add_u32 s11, s{sMB}, {r + OFF_BB}")
        a(f"v_add_u32 v{vT+1}, s11, v{vP}")
        a(f"ds_read_b128 v[{RD}:{RD+3}], v{vT}")
        a(f"ds_read_b128 v[{RD+4}:{RD+7}], v{vT} offset:1024")
        a(f"ds_read_b128 v[{RD+8}:{RD+11}], v{vT} offset:8192")
        a(f"ds_read_b128 v[{RD+12}:{RD+15}], v{vT} offset:9216")
        a(f"ds_read_b128 v[{RD+16}:{RD+19}], v{vT+1}")
    def colsum_ops():
        L = ["s_waitcnt lgkmcnt(0)"]
        for n in range(4):
            for d in range(4):
                w = RD + 4 * n + d
                ac = CA + (n >> 1) * 8 + 2 * d
                L.append(f"v_lshlrev_b32 v{vT+2}, 16, v{w}")
                L.append(f"v_and_b32 v{vT+3}, s71, v{w}")
                L.append(f"v_add_f32 v{ac}, v{ac}, v{vT+2}")
                L.append(f"v_add_f32 v{ac+1}, v{ac+1}, v{vT+3}")
        for d in range(4):
            w = RD + 16 + d
            L.append(f"v_lshlrev_b32 v{vT+2}, 16, v{w}")
            L.append(f"v_and_b32 v{vT+3}, s71, v{w}")
            L.append(f"v_add_f32 v{vT+2}, v{vT+2}, v{vT+3}")
            L.append(f"v_add_f32 v{ACC}, v{ACC}, v{vT+2}")
        return L

    stage_ops = {}
    def tok_ops(toks):
        L = []
        for t in toks:
            if t[0] == 's':
                st = int(t[1])
                if st not in stage_ops: stage_ops[st] = issue_ops(st)
                lo, hi = (0, 13) if ':' not in t else map(int, t.split(':')[1].split('-'))
                L += stage_ops[st][lo:hi]
            elif t[0] == 'w': L += w_ops([int(t[1:])])
            elif t == 'c0': L += cf_ops(0, SA[0])
            elif t == 'c1': L += cf_ops(1, SB[0])
            elif t == 'c2': L += [lambda: a("s_waitcnt lgkmcnt(0)")] + cf_ops(2, SA[0])
            elif t == 'ch': L += ch_ops(SA[4])
            else: L.append(lambda t=t: special(t))
        return L
    def run_tokens(toks):
        for o in tok_ops(toks): o()
    def special(t):
        if True:
            if t == 'r0':
                cf_read(0, SA[0]); ch_read(SA[4])
            elif t == 'put':
                vm.wait('stats')
                a(f"s_lshl_b32 s11, s{S_W4}, 9")
                a(f"s_add_u32 s11, s11, {STATS_L}")
                a(f"v_lshl_add_u32 v{vT+4}, v0, 3, s11")
                a(f"ds_write_b64 v{vT+4}, v[20:21]")
                a(f"v_lshlrev_b32 v{vT+4}, 3, v0")
                a(f"v_add_u32 v{vT+4}, {ST2_L}, v{vT+4}")
                a(f"ds_write_b64 v{vT+4}, v[22:23]")
            elif t == 'e':
                a(f"s_add_u32 s12, s41, {16*896}")
                vm.issue('e', f"buffer_load_dwordx4 v[{XRAW}:{XRAW+3}], v20, s[{SRD_X}:{SRD_X+3}], s41 offen")
                vm.issue('e', f"buffer_load_dwordx4 v[{XRAW+4}:{XRAW+7}], v20, s[{SRD_X}:{SRD_X+3}], s12 offen")
                vm.issue('e', f"global_load_ushort v{CF+96}, v21, s[{P_DSK2}:{P_DSK2+1}]")
            elif t == 'k':
                a("s_waitcnt lgkmcnt(0)")
            elif t == 'init':
                a(f"v_mov_b32 v26, 0")
                vm.issue('init', f"global_load_dword v5, v26, s[{P_DBG}:{P_DBG+1}] sc1")
            elif t == 'fetch':
                vm.wait('init')
                def cond():
                    a(f"v_readfirstlane_b32 s11, v5")
                    a(f"s_cmp_ge_u32 s11, {INIT_N}")
                spin_check(a, "L_init", [f"global_load_dword v5, v26, s[{P_DBG}:{P_DBG+1}] sc1"], cond, 8)
                a(f"s_lshl_b32 s11, s{S_MT}, 8")
                a(f"s_lshl_b32 s12, s{S_W4}, 6")
                a("s_add_u32 s11, s11, s12")
                a(f"v_add_lshl_u32 v5, v0, s11, 3")
                a(f"s_lshl_b32 s12, s{S_M64}, 6")
                a(f"v_add_lshl_u32 v26, v0, s12, 3")
                a(f"s_mov_b32 s11, {WS_STATS:#x}")
                vm.issue('stats', f"buffer_load_dwordx2 v[20:21], v5, s[{SRD_WS}:{SRD_WS+3}], s11 offen sc1")
                vm.issue('stats', f"buffer_load_dwordx2 v[22:23], v26, s[{SRD_WS}:{SRD_WS+3}], s11 offen sc1")
            else: raise ValueError(t)
    win = cfg.win
    run_tokens(["s0"])
    ts(1)
    ts.x(1, 6)
    run_tokens(win.get(-1, []))
    a("s_setprio 0")
    a(f"s_and_b32 s12, s{S_W4}, 1")
    a(f"v_lshlrev_b32 v{vP}, 4, v0")
    a(f"v_add_u32 v{vPQ}, s{sMP}, v{vP}")
    a(f"s_mul_i32 s14, s{S_W4}, 448")
    a(f"v_add_u32 v{vT}, s14, v{vA}")
    a(f"v_mul_u32_u24 v{vWd}, 896, v{vT}")
    a(f"v_lshl_add_u32 v{vWd}, v{vT+4}, 4, v{vWd}")
    a(f"s_lshl_b32 s14, s{S_NT}, 7")
    a(f"v_add_u32 v{vWd}, s14, v{vWd}")
    a(f"s_lshl_b32 s14, s{S_NT}, 6")
    a(f"v_add_u32 v{vT}, s14, v{vA}")
    a(f"v_mul_u32_u24 v{vCe}, 896, v{vT}")
    a(f"v_lshl_add_u32 v{vCe}, v{vT+3}, 4, v{vCe}")
    a("s_lshl_b32 s13, s12, 9")
    a(f"v_add_u32 v{vCe}, s13, v{vCe}")
    a(f"v_xor_b32 v{vCo}, 64, v{vCe}")
    a(f"v_lshrrev_b32 v{vT}, 2, v0")
    a(f"v_add_u32 v{vT}, s14, v{vT}")
    a(f"v_mul_u32_u24 v{vCh}, 896, v{vT}")
    a(f"v_and_b32 v{vT+1}, 3, v0")
    a(f"v_lshl_add_u32 v{vCh}, v{vT+1}, 4, v{vCh}")
    a("s_lshl_b32 s13, s12, 6")
    a("s_add_u32 s13, s13, 384")
    a(f"v_add_u32 v{vCh}, s13, v{vCh}")
    a("s_mov_b32 s71, 0xffff0000")
    for k in range(17): a(f"v_mov_b32 v{ACC+k}, 0")
    srd(a, SRD_WS, P_WS, WS_SIZE)
    a(f"s_cmp_ge_u32 s{S_W4}, 2")
    srd_sel(a, SRD_CC, P_CIM, P_CRE, 448 * 896)
    a(f"s_mov_b64 s[{P_DSK2}:{P_DSK2+1}], s[{P_DSK}:{P_DSK+1}]")
    srd(a, SRD_WD, P_WD, 1792 * 896)
    p2_rot(a, cfg, sRF, sBlk, sFlip)
    a(f"s_lshl_b32 s11, s{S_M64}, 1")
    a("s_add_u32 s40, s11, s12")
    a("s_lshl_b32 s12, s40, 5")
    a(f"v_lshrrev_b32 v{vT}, 2, v0")
    a(f"v_add_u32 v{vT}, s12, v{vT}")
    a(f"v_mul_u32_u24 v{vT}, 896, v{vT}")
    a(f"v_lshl_add_u32 v20, v{vT+1}, 4, v{vT}")
    a(f"v_lshrrev_b32 v{vT+2}, 5, v0")
    a(f"v_lshl_add_u32 v{vT}, v{vT+2}, 4, s12")
    a(f"s_lshr_b32 s13, s{S_W4}, 1")
    a("s_lshl_b32 s12, s13, 5")
    a(f"s_lshl_b32 s11, s{S_NT}, 6")
    a("s_add_u32 s11, s11, s12")
    a("s_lshl_b32 s41, s11, 1")
    a(f"v_and_b32 v{vT+3}, 31, v0")
    a(f"v_add_u32 v{vT+1}, s11, v{vT+3}")
    a(f"v_mul_u32_u24 v{vT}, 448, v{vT}")
    a(f"v_add_lshl_u32 v{vO}, v{vT}, v{vT+1}, 2")
    a(f"v_lshlrev_b32 v21, 1, v{vT+1}")
    a(f"v_bfe_u32 v{vT}, v0, 1, 3")
    a(f"v_xor_b32 v{vT}, v{vT}, v{vT+2}")
    a(f"v_lshlrev_b32 v{vT}, 4, v{vT}")
    a(f"v_lshl_add_u32 v{vRf}, v{vT+3}, 7, v{vT}")
    a("s_lshl_b32 s12, s13, 12")
    a(f"v_add_u32 v{vRf}, s12, v{vRf}")
    a(f"v_lshlrev_b32 v{vT}, 4, v{vT+2}")
    a(f"v_lshl_add_u32 v{vRh}, v{vT+3}, 6, v{vT}")
    a("s_lshl_b32 s12, s13, 11")
    a(f"v_add_u32 v{vRh}, s12, v{vRh}")
    a(f"v_bfe_u32 v{vT}, v0, 4, 1")
    a(f"v_lshlrev_b32 v{vT+1}, 2, v{vT}")
    a(f"v_xor_b32 v{vC}, v{vC}, v{vT+1}")
    a(f"v_lshlrev_b32 v{vC}, 5, v{vC}")
    a(f"v_lshl_add_u32 v{vC}, v{vT}, 9, v{vC}")
    a(f"v_lshl_add_u32 v{vC}, v{vT+2}, 8, v{vC}")
    a(f"s_add_u32 s11, s{sMB}, {CP_L}")
    a(f"v_add_u32 v{vC}, s11, v{vC}")
    a(f"s_lshl_b32 s11, s{S_W4}, 5")
    a(f"s_add_u32 s11, s11, {C_L + 512}")
    a(f"v_lshl_add_u32 v{vA}, v{vA}, 2, s11")
    ts.x(1, 8)
    LR, LI, CR, CI, L16R, L16I, PWR, PWI, L64R, L64I, LWR, LWI, W0R = [KP + k for k in range(13)]
    vTW, vTR, vCB, vStS, vAg, vPr, vF = [KP + k for k in range(16, 23)]
    a(f"s_lshl_b32 s21, s{S_NS}, 7")
    a(f"s_mul_i32 s22, s{S_MT}, 3584")
    a("s_add_u32 s22, s22, s21")
    a(f"s_add_u32 s22, s22, {WS_AGG - AGG_L:#x}")
    a(f"s_mov_b32 s23, {WS_AGG:#x}")
    a(f"s_mov_b32 s20, {WS_AGG + 4*3584:#x}")
    a(f"s_lshl_b32 s18, s{S_M64}, 10")
    a(f"s_and_b32 s11, s{S_W4}, 1")
    a("s_lshl_b32 s11, s11, 7")
    a("s_add_u32 s18, s18, s11")
    a(f"s_add_u32 s18, s18, {WS_FLAG + 512:#x}")
    a(f"s_lshl_b32 s11, s{S_MT}, 2")
    a(f"s_add_u32 s11, s11, s{S_W4}")
    a(f"s_mul_i32 s19, s11, {2*RT_BYTES}")
    a(f"s_lshl_b32 s11, s{S_NS}, 10")
    a("s_add_u32 s19, s19, s11")
    a(f"s_add_u32 s19, s19, {56*1024}")
    for g in range(7):
        a(f"s_add_u32 s12, s{sRF}, {g}")
        a("s_cmp_ge_u32 s12, 7")
        a("s_cselect_b32 s13, 7, 0")
        a("s_sub_u32 s12, s12, s13")
        a(f"s_mul_i32 s{sGrp[g]}, s12, {64*896}")
    a(f"s_add_u32 s11, s{sMX}, {R[2]}")
    a(f"v_add_u32 v{vT+4}, s11, v{vP}")
    kparts = {}
    if cfg.wprio: a(f"s_setprio {cfg.wprio}")
    for s in range(7):
        vm.wait(('st', s))
        ts.x(2, 1 + s)
        a("s_barrier")
        ts.x(3, 1 + s)
        if s == 0: ts(2)
        if s == 0:
            for k in range(6): a(f"ds_read_b128 v[{KP+4*k}:{KP+4*k+3}], v{vT+4} offset:{1024*k}")
        colsum_reads(s)
        toks = win.get(s, [])
        ops = tok_ops(toks)
        fl = colsum_ops() + kparts.get(s, [])
        if s == 6:
            b = ACC
            for k in range(8): fl.append(f"v_permlane32_swap_b32 v{CA+k}, v{CA+8+k}")
            fl.append(f"v_add_f32_dpp v{b}, v{b}, v{b} quad_perm:[1,0,3,2] row_mask:0xf bank_mask:0xf")
            for k in range(8): fl.append(f"v_add_f32 v{CA+k}, v{CA+k}, v{CA+8+k}")
            fl.append(f"v_add_f32_dpp v{b}, v{b}, v{b} quad_perm:[2,3,0,1] row_mask:0xf bank_mask:0xf")
            for k in range(8): fl.append(f"v_add_f32_dpp v{CA+k}, v{CA+k}, v{CA+k} row_ror:8 row_mask:0xf bank_mask:0xf")
            fl.append(f"v_add_f32_dpp v{b}, v{b}, v{b} row_half_mirror row_mask:0xf bank_mask:0xf")
            fl.append(f"ds_write_b128 v{vC}, v[{CA}:{CA+3}]")
            fl.append(f"ds_write_b128 v{vC}, v[{CA+4}:{CA+7}] offset:16")
            fl.append(f"ds_write_b32 v{vA}, v{b}")
        per = max(1, -(-len(fl) // max(1, len(ops))))
        interleave(a, ops, fl, per)
    a(f"s_and_b32 s12, s{S_W4}, 1")
    a("s_lshl_b32 s12, s12, 8")
    a(f"v_lshl_add_u32 v{vT}, v0, 2, s12")
    a(f"v_add_u32 v{vT+1}, {CP_L}, v{vT}")
    a(f"v_add_u32 v{vT}, {C_L}, v{vT}")
    a("s_waitcnt lgkmcnt(0)")
    ts.x(2, 8)
    a("s_setprio 3")
    a("s_barrier")
    ts(3)
    ts.x(3, 8)
    QQ = 28
    for p in range(8): a(f"ds_read_b32 v{QQ+p}, v{vT+1} offset:{512*p}")
    a("s_waitcnt lgkmcnt(0)")
    for p in range(4): a(f"v_add_f32 v{QQ+p}, v{QQ+p}, v{QQ+4+p}")
    a(f"v_add_f32 v{QQ}, v{QQ}, v{QQ+2}")
    a(f"v_add_f32 v{QQ+1}, v{QQ+1}, v{QQ+3}")
    a(f"v_add_f32 v{QQ}, v{QQ}, v{QQ+1}")
    a(f"ds_write_b32 v{vT}, v{QQ}")
    a(f"v_add_u32 v{vT+2}, {SD}, v{vPQ}")
    for o in ch_ops(HTS): o()
    vm.wait(('w', 11), "lgkmcnt(0)")
    a("s_barrier")
    X, Y, ST = 32, 48, CF
    HR, HI, T1, T2, CBR, CBI, G0, G1, QR, QI = 20, 21, 22, 23, 24, 25, 26, 28, 30, 31
    for k in range(8): a(f"ds_read_b128 v[{X+4*k}:{X+4*k+3}], v{vT+2} offset:{1024*k}")
    a(f"ds_read_b32 v{CBR}, v{vCB}")
    a(f"ds_read_b32 v{CBI}, v{vCB} offset:64")
    for k in range(8): a(f"ds_read_b128 v[{ST+4*k}:{ST+4*k+3}], v{vStS} offset:{16*k}")
    a(f"s_setprio {cfg.eprio}")
    a(f"v_lshrrev_b32 v1, 4, v0")
    a(f"v_sub_u32 v1, s{S_MT}, v1")
    a(f"v_cmp_le_i32 s[56:57], 1, v1")
    a(f"v_cmp_le_i32 s[58:59], 5, v1")
    a(f"v_lshlrev_b32 v5, 16, v{CF+96}")
    a(f"v_mov_b32 v3, v{vF}")
    vF = 3
    a("s_waitcnt lgkmcnt(10)")
    for r in range(16): a(f"v_permlane16_swap_b32 v{X+r}, v{Y+r}")
    a("s_waitcnt lgkmcnt(0)")
    side = {}
    for r in range(16):
        if r in side: side[r]()
        m, rs = ST + 2 * r, ST + 2 * r + 1
        a(f"v_fma_f32 v{X+r}, -v{m}, v{CBR}, v{X+r}")
        a(f"v_fma_f32 v{Y+r}, -v{m}, v{CBI}, v{Y+r}")
        a(f"v_mul_f32 v{X+r}, v{X+r}, v{rs}")
        a(f"v_mul_f32 v{Y+r}, v{Y+r}, v{rs}")
        if r >= 1:
            pr, pi = (X, Y) if r == 1 else (HR, HI)
            a(f"v_fma_f32 v{T1}, -v{LI}, v{pi}, v{X+r}")
            a(f"v_fma_f32 v{T2}, v{LI}, v{pr}, v{Y+r}")
            a(f"v_fma_f32 v{HR}, v{LR}, v{pr}, v{T1}")
            a(f"v_fma_f32 v{HI}, v{LR}, v{pi}, v{T2}")
    z = CF
    a(f"v_mov_b32 v{z}, v{HR}"); a(f"v_mov_b32 v{z+1}, v{HI}")
    csq(a, z + 8, z + 9, L16R, L16I, z + 10)
    a(f"v_permlane32_swap_b32 v{HR}, v{z}")
    a(f"v_permlane32_swap_b32 v{HI}, v{z+1}")
    a(f"v_fma_f32 v{z}, -v{L16I}, v{HI}, v{z}")
    a(f"v_fma_f32 v{z+1}, v{L16I}, v{HR}, v{z+1}")
    a(f"v_fmac_f32 v{z}, v{L16R}, v{HR}")
    a(f"v_fmac_f32 v{z+1}, v{L16R}, v{HI}")
    a(f"v_mov_b32 v{z+2}, v{z}"); a(f"v_mov_b32 v{z+3}, v{z+1}")
    a(f"s_lshl_b32 s11, s{S_W4}, 7")
    a(f"v_add_u32 v{z+5}, s11, v{vAg}")
    a(f"v_permlane16_swap_b32 v{z}, v{z+2}")
    a(f"v_permlane16_swap_b32 v{z+1}, v{z+3}")
    a(f"v_fma_f32 v{z+2}, -v{z+9}, v{z+1}, v{z+2}")
    a(f"v_fma_f32 v{z+3}, v{z+9}, v{z}, v{z+3}")
    a(f"v_fmac_f32 v{z+2}, v{z+8}, v{z}")
    a(f"v_fmac_f32 v{z+3}, v{z+8}, v{z+1}")
    a(f"ds_write_b64 v{z+5}, v[{z+2}:{z+3}]")
    a("s_waitcnt lgkmcnt(0)")
    ts.x(2, 9)
    a(f"s_setprio {cfg.lprio}")
    a("s_barrier")
    ts(4)
    E = CF + 16
    for i in range(4): a(f"ds_read_b64 v[{E+2+2*i}:{E+3+2*i}], v{vAg} offset:{128*i}")
    a(f"v_mov_b32 v{E}, 0")
    a(f"v_mov_b32 v{E+1}, 0")
    a(f"v_and_b32 v{z+4}, 16, v0")
    a(f"v_cmp_ne_u32 s[12:13], 0, v{z+4}")
    for i in range(1, 4):
        e, p = E + 2 + 2 * i, E + 2 * i
        a(f"s_waitcnt lgkmcnt({3 - i})")
        a(f"v_fma_f32 v{e}, -v{L64I}, v{p+1}, v{e}")
        a(f"v_fma_f32 v{e+1}, v{L64I}, v{p}, v{e+1}")
        a(f"v_fmac_f32 v{e}, v{L64R}, v{p}")
        a(f"v_fmac_f32 v{e+1}, v{L64R}, v{p+1}")
    a(f"s_cmp_lg_u32 s{S_W4}, 0")
    a("s_cbranch_scc1 L_l_nopub")
    e = E + 8
    a(f"v_cmp_eq_u32 vcc, -1, v{e}")
    a(f"v_mov_b32 v{T1}, 0x7fc00000")
    a(f"v_cndmask_b32 v{e}, v{e}, v{T1}, vcc")
    a("s_mov_b64 exec, 0xffff")
    a(f"buffer_store_dwordx2 v[{e}:{e+1}], v{vAg}, s[{SRD_WS}:{SRD_WS+3}], s22 offen sc1")
    a("s_mov_b64 exec, -1")
    ts(5)
    a.label("L_l_nopub")
    a(f"v_cmp_lt_u32 vcc, 31, v0")
    a(f"v_cndmask_b32 v{z}, 0, v{z}, s[12:13]")
    a(f"v_cndmask_b32 v{z+1}, 0, v{z+1}, s[12:13]")
    a(f"v_fma_f32 v{HR}, -v{L16I}, v{z+1}, v{HR}")
    a(f"v_fma_f32 v{HI}, v{L16I}, v{z}, v{HI}")
    a(f"v_fmac_f32 v{HR}, v{L16R}, v{z}")
    a(f"v_fmac_f32 v{HI}, v{L16R}, v{z+1}")
    a(f"v_cndmask_b32 v{z}, v{z}, v{HR}, vcc")
    a(f"v_cndmask_b32 v{z+1}, v{z+1}, v{HI}, vcc")
    cmul(a, HR, HI, z, z + 1, CR, CI)
    a(f"s_bitcmp1_b32 s{S_W4}, 0")
    a("s_cselect_b64 vcc, -1, 0")
    a(f"v_cndmask_b32 v{QR}, v{E}, v{E+2}, vcc")
    a(f"v_cndmask_b32 v{QI}, v{E+1}, v{E+3}, vcc")
    a(f"v_cndmask_b32 v{T1}, v{E+4}, v{E+6}, vcc")
    a(f"v_cndmask_b32 v{T2}, v{E+5}, v{E+7}, vcc")
    a(f"s_bitcmp1_b32 s{S_W4}, 1")
    a("s_cselect_b64 vcc, -1, 0")
    a(f"v_cndmask_b32 v{QR}, v{QR}, v{T1}, vcc")
    a(f"v_cndmask_b32 v{QI}, v{QI}, v{T2}, vcc")
    ts.x(2, 10)
    thr[0] = cfg.thr
    lds = [f"buffer_load_dwordx2 v[{G0}:{G0+1}], v{vPr}, s[{SRD_WS}:{SRD_WS+3}], s23 offen sc1",
           f"buffer_load_dwordx2 v[{G1}:{G1+1}], v{vPr}, s[{SRD_WS}:{SRD_WS+3}], s20 offen sc1"]
    up = Rec()
    for r in range(16):
        up(f"v_mul_f32 v{T1}, v{CI}, v{Y+r}")
        up(f"v_mul_f32 v{T2}, v{CI}, v{X+r}")
        up(f"v_fma_f32 v{X+r}, v{CR}, v{X+r}, -v{T1}")
        up(f"v_fma_f32 v{Y+r}, v{CR}, v{Y+r}, v{T2}")
    vRd, vOne = 4, 12
    a(f"s_lshl_b32 s11, s{S_W4}, 2")
    a(f"s_add_u32 s11, s11, {CNT_L + 16}")
    a(f"v_mov_b32 v{vRd}, s11")
    a(f"v_mov_b32 v{vOne}, 1")
    ch_read(HTS)
    for t in up.L: a(t)
    w_write([12, 13])
    XV, STT, DS = 64, 80, 5
    TT = SACC + 32
    a(f"v_add_u32 v{vT+4}, {HTS}, v{vPQ}")
    a(f"ds_write_b128 v{vT+4}, v[{XRAW}:{XRAW+3}]")
    a(f"ds_write_b128 v{vT+4}, v[{XRAW+4}:{XRAW+7}] offset:1024")
    a(f"v_lshrrev_b32 v{vT+3}, 5, v0")
    a(f"v_lshlrev_b32 v{vT+4}, 10, v{vT+3}")
    a(f"v_and_b32 v{vT}, 31, v0")
    a(f"v_lshl_add_u32 v{vT+4}, v{vT}, 1, v{vT+4}")
    a(f"s_add_u32 s11, s{sMP}, {HTS}")
    a(f"v_add_u32 v{vT+4}, s11, v{vT+4}")
    for r in range(16): a(f"ds_read_u16 v{XV+r}, v{vT+4} offset:{64*r}")
    co = cf_ops(0, SA[0]) + cf_ops(1, SB[0]) + cf_ops(2, None)
    for t in lds: vm.issue('ag', t)
    for o in co[:cfg.c1]: o()
    w_write([14, 15])
    a(f"ds_write_b32 v{vRd}, v{vOne}")
    ts(8)
    vm.wait('ag')
    def cond():
        a(f"v_cmp_eq_u32 vcc, -1, v{G0}")
        a("s_and_b64 s[48:49], vcc, s[56:57]")
        a(f"v_cmp_eq_u32 vcc, -1, v{G1}")
        a("s_and_b64 s[50:51], vcc, s[58:59]")
        a("s_or_b64 s[48:49], s[48:49], s[50:51]")
        a("s_cmp_eq_u64 s[48:49], 0")
    spin_check(a, "L_agg", lds, cond, 2)
    ts(6)
    SR, SI = CBR, CBI
    cmul(a, SR, SI, G0, G0 + 1, W0R, W0R + 1)
    cmul(a, T1, T2, G1, G1 + 1, W0R + 2, W0R + 3)
    a(f"v_cndmask_b32 v{SR}, 0, v{SR}, s[56:57]")
    a(f"v_cndmask_b32 v{SI}, 0, v{SI}, s[56:57]")
    a(f"v_cndmask_b32 v{T1}, 0, v{T1}, s[58:59]")
    a(f"v_cndmask_b32 v{T2}, 0, v{T2}, s[58:59]")
    a(f"v_add_f32 v{SR}, v{SR}, v{T1}")
    a(f"v_add_f32 v{SI}, v{SI}, v{T2}")
    for sw in ("v_permlane32_swap_b32", "v_permlane16_swap_b32"):
        a(f"v_mov_b32 v{T1}, v{SR}")
        a(f"v_mov_b32 v{T2}, v{SI}")
        a(f"{sw} v{SR}, v{T1}")
        a(f"{sw} v{SI}, v{T2}")
        a(f"v_add_f32 v{SR}, v{SR}, v{T1}")
        a(f"v_add_f32 v{SI}, v{SI}, v{T2}")
    a(f"v_fmac_f32 v{QR}, v{LWR}, v{SR}")
    a(f"v_fmac_f32 v{QI}, v{LWR}, v{SI}")
    a(f"v_fma_f32 v{QR}, -v{LWI}, v{SI}, v{QR}")
    a(f"v_fmac_f32 v{QI}, v{LWI}, v{SR}")
    a(f"v_fmac_f32 v{HR}, v{PWR}, v{QR}")
    a(f"v_fmac_f32 v{HI}, v{PWR}, v{QI}")
    a(f"v_fma_f32 v{HR}, -v{PWI}, v{QI}, v{HR}")
    a(f"v_fmac_f32 v{HI}, v{PWI}, v{QR}")
    pr, pi = HR, HI
    PK, HF = CF, 80
    rest = co[cfg.c1:cfg.c2]
    for r in range(16):
        if rest: rest.pop(0)()
        a(f"v_fma_f32 v{X+r}, -v{LI}, v{pi}, v{X+r}")
        a(f"v_fma_f32 v{Y+r}, v{LI}, v{pr}, v{Y+r}")
        a(f"v_fmac_f32 v{X+r}, v{LR}, v{pr}")
        a(f"v_fmac_f32 v{Y+r}, v{LR}, v{pi}")
        pr, pi = X + r, Y + r
    for k in range(8):
        a(f"v_cvt_pk_bf16_f32 v{PK+k}, v{X+2*k}, v{X+2*k+1}")
    a(f"ds_write_b128 v{vTW}, v[{PK}:{PK+3}]")
    a(f"ds_write_b128 v{vTW}, v[{PK+4}:{PK+7}] offset:16")
    for k in range(8):
        a(f"v_cvt_pk_bf16_f32 v{PK+8+k}, -v{Y+2*k}, -v{Y+2*k+1}")
    a(f"ds_write_b128 v{vTW}, v[{PK+8}:{PK+11}] offset:2048")
    a(f"ds_write_b128 v{vTW}, v[{PK+12}:{PK+15}] offset:2064")
    for q in range(2):
        for part in range(2):
            for j in range(2):
                d = HF + 8 * q + 4 * part + 2 * j
                a(f"ds_read_b64_tr_b16 v[{d}:{d+1}], v{vTR} offset:{(part*16 + 4*j)*128 + 64*(q ^ j)}")
    assert not rest
    a("s_waitcnt lgkmcnt(0)")
    for q in range(2):
        for part in range(2):
            d = HF + 8 * q + 4 * part
            a(f"s_add_u32 s11, s19, {q*RT_BYTES + part*HALF_BYTES}")
            vm.issue('hs', f"buffer_store_dwordx4 v[{d}:{d+3}], v{vP}, s[{SRD_WS}:{SRD_WS+3}], s11 offen{SP}")
    thr[0] = None
    for o in co[cfg.c2:]: o()
    def flag2():
        vm.wait('hs')
        a("s_mov_b64 exec, 1")
        vm.issue('f', f"buffer_store_dword v{vOne}, v{vF}, s[{SRD_WS}:{SRD_WS+3}], 0 offen sc1")
        a("s_mov_b64 exec, -1")
        ts(7)
    done = False
    for b, base, ws_ in ((0, SA[0], [16, 17, 18, 19]), (1, SB[0], [20, 21]), (2, None, [])):
        if not done and 8 * (b + 1) > cfg.c2:
            flag2(); done = True
        cf_read(b, base)
        if ws_: w_write(ws_)
        if b == 1:
            a(f"v_mov_b32 v{T1}, 2")
            a(f"ds_write_b32 v{vRd}, v{T1}")
    if not done: flag2()
    a("s_waitcnt lgkmcnt(0)")
    for o in w_ops(range(22, 28)): o()
    a(f"s_and_b32 s11, s{S_W4}, 1")
    a("s_lshl_b32 s11, s11, 8")
    a(f"s_add_u32 s11, s11, {ST2_L}")
    a(f"v_lshl_add_u32 v{vT+3}, v{vT+3}, 7, s11")
    STT = 32
    for k in range(8): a(f"ds_read_b128 v[{STT+4*k}:{STT+4*k+3}], v{vT+3} offset:{16*k}")
    for r in range(16): a(f"v_lshlrev_b32 v{XV+r}, 16, v{XV+r}")
    a("s_waitcnt lgkmcnt(0)")
    a("s_setprio 0")
    def rnd_pair(r0, r1):
        a(f"v_cvt_pk_bf16_f32 v{r1}, v{r0}, v{r1}"); a(f"v_lshlrev_b32 v{r0}, 16, v{r1}"); a(f"v_and_b32 v{r1}, s71, v{r1}")
    for r in range(16): a(f"v_sub_f32 v{TT+r}, v{XV+r}, v{STT+2*r}")
    for k in range(8): rnd_pair(TT + 2 * k, TT + 2 * k + 1)
    a(f"v_mov_b32 v{T2}, 3")
    vm.wait(('w', 27))
    a(f"ds_write_b32 v{vRd}, v{T2}")
    for r in range(16): a(f"v_mul_f32 v{TT+r}, v{TT+r}, v{STT+2*r+1}")
    for k in range(8): rnd_pair(TT + 2 * k, TT + 2 * k + 1)
    for r in range(16): a(f"v_mul_f32 v{TT+r}, v{TT+r}, v{DS}")
    for k in range(8): rnd_pair(TT + 2 * k, TT + 2 * k + 1)
    def poll(name, off):
        def cond():
            for k in range(0, 12, 4): a(f"s_and_b64 s[{20+k}:{21+k}], s[{20+k}:{21+k}], s[{22+k}:{23+k}]")
            a("s_and_b64 s[20:21], s[20:21], s[24:25]")
            a("s_and_b64 s[28:29], s[28:29], s[32:33]")
            a("s_and_b64 s[20:21], s[20:21], s[28:29]")
            a("s_and_b32 s20, s20, s21")
            a("s_cmp_eq_u32 s20, 1")
        sspin(a, name, [f"s_load_dwordx16 s[20:35], s[{P_WS}:{P_WS+1}], s18 glc"], cond, cfg.psleep)
    a(f"s_mul_i32 s57, s40, {RT_BYTES}")
    a("s_xor_b32 s11, s40, 1")
    a(f"s_mul_i32 s56, s11, {RT_BYTES}")
    a(f"s_lshr_b32 s11, s{S_W4}, 1")
    a(f"s_mul_i32 s11, s11, {HALF_BYTES}")
    a(f"s_add_u32 s11, s11, {56*1024}")
    a("s_add_u32 s56, s56, s11")
    a("s_add_u32 s57, s57, s11")
    a(f"s_and_b32 s12, s{S_W4}, 1")
    a("s_lshl_b32 s13, s12, 14")
    for b in range(3):
        a(f"s_add_u32 s11, s{sBlk}, {b}")
        a("s_cmp_ge_u32 s11, 3")
        a("s_cselect_b32 s22, 3, 0")
        a("s_sub_u32 s11, s11, s22")
        a("s_lshl_b32 s11, s11, 12")
        a(f"s_add_u32 s{52+b}, s11, s13")
    a("s_lshl_b32 s12, s12, 11")
    a(f"s_add_u32 s55, s12, {12*1024}")
    srd(a, 60, P_OUT, 2048 * 1792)
    vW1, vW2, vCn, vCv = 1, 2, 9, 10
    vR = [11, 12, 13, 14]
    a(f"v_add_u32 v{vW1}, {PH1}, v{vPQ}")
    a(f"v_add_u32 v{vW2}, {PH2}, v{vPQ}")
    a(f"v_mov_b32 v{vCn}, {CNT_L}")
    for (reg, xr, base) in ((vR[0], 1, PH1), (vR[1], 3, PH1 + 4096), (vR[2], 2, PH2)):
        a(f"s_xor_b32 s11, s{S_W4}, {xr}")
        a(f"s_mul_i32 s11, s11, {Q}")
        a(f"s_add_u32 s11, s11, {base}")
        a(f"v_add_u32 v{reg}, s11, v{vP}")
    a(f"v_add_u32 v{vR[3]}, {GA}, v{vPQ}")
    ts.x(2, 11)
    AR = list(range(16, 64, 4))
    NA = len(AR)
    def aload(n):
        lr, p = n // 14, n % 14
        if p % 4 == 0: a(f"s_add_u32 s58, s{56+lr}, s{52 + p//4}")
        d = AR[n % NA]
        vm.issue(('a', n), f"buffer_load_dwordx4 v[{d}:{d+3}], v{vP}, s[{SRD_WS}:{SRD_WS+3}], s58 offen offset:{(p%4)*1024}{AP}")
    def cnt_wait(name, off):
        a("s_mov_b32 s73, 0")
        a.label(name)
        a("s_waitcnt lgkmcnt(0)")
        a(f"v_readfirstlane_b32 s11, v{vCv}")
        a("s_cmp_ge_u32 s11, 4")
        a(f"s_cbranch_scc1 {name}ok")
        a("s_add_u32 s73, s73, 1")
        a(f"s_cmp_ge_u32 s73, {SPIN_MAX}")
        a(f"s_cbranch_scc1 {name}ok")
        a("s_sleep 1")
        a(f"ds_read_b32 v{vCv}, v{vCn} offset:{off}")
        a(f"s_branch {name}")
        a.label(name + "ok")
        a("s_nop 7")
    a(f"ds_read_b32 v{vCv}, v{vCn} offset:4")
    cnt_wait("L_l_c0", 4)
    poll("L_ps", 128)
    ts(9)
    if cfg.sprio: a(f"s_setprio {cfg.sprio}")
    ts.x(7, 1)
    for n in range(NA): aload(n)
    a("s_setprio 0")
    ts.x(7, 2)
    for n in range(28):
        lr, p = n // 14, n % 14
        vm.wait(('a', n))
        if n in (0, 7, 14, 21): ts.x(7, 3 + n // 7)
        d = AR[n % NA]
        for lc in (1, 0):
            acc = SACC + 32 * lr + 16 * lc
            c = "0" if (p == 0 and not (lr == 1 and lc == 0)) else f"v[{acc}:{acc+15}]"
            f = CF + 8 * p + 4 * lc
            a(f"v_mfma_f32_32x32x16_bf16 v[{acc}:{acc+15}], v[{d}:{d+3}], v[{f}:{f+3}], {c}")
        if n + NA < 28: aload(n + NA)
        if 16 <= n < 24:
            k = n - 16
            a(f"ds_write_b128 v{vW1}, v[{SACC+4*k}:{SACC+4*k+3}] offset:{1024*k}")
    ts(10)
    ts.x(7, 7)
    ts.x(7, 8)
    for k in range(4):
        a(f"ds_write_b128 v{vW2}, v[{SACC+48+4*k}:{SACC+48+4*k+3}] offset:{1024*k}")
    a("s_waitcnt lgkmcnt(0)")
    ts.x(7, 9)
    a("s_barrier")
    ts(11)
    ts.x(7, 10)
    RX = CF
    for k in range(4):
        for w in range(4):
            a(f"ds_read_b128 v[{RX+16*w+4*k}:{RX+16*w+4*k+3}], v{vR[w]} offset:{1024*k}")
    for k in range(4):
        a(f"s_waitcnt lgkmcnt({12 - 4*k})")
        for r in range(4 * k, 4 * k + 4):
            a(f"v_add_f32 v{TT+r}, v{TT+r}, v{RX+r}")
            a(f"v_add_f32 v{RX+16+r}, v{RX+16+r}, v{RX+32+r}")
        for r in range(4 * k, 4 * k + 4):
            a(f"v_add_f32 v{TT+r}, v{TT+r}, v{RX+16+r}")
        for r in range(4 * k, 4 * k + 4):
            a(f"v_fma_f32 v{XV+r}, v{TT+r}, v{RX+48+r}, v{XV+r}")
            if r % 2 == 0: a(f"s_mov_b32 s11, {r*1792}")
            a(f"buffer_store_dword v{XV+r}, v{vO}, s[60:63], s11 offen offset:{(r%2)*1792}{OP}")
    if cfg.ts:
        a("s_waitcnt vmcnt(0)")
        ts(12)
    if cfg.padto:
        a.label("L_pad")
        a("s_memrealtime s[98:99]")
        a("s_waitcnt lgkmcnt(0)")
        a("s_sub_u32 s98, s98, s100")
        a(f"s_cmp_lt_u32 s98, {cfg.padto}")
        a("s_cbranch_scc1 L_pad")
    ts.dump(16, 17, 1)
    a("s_endpgm")

def gen_consumer(a, cfg, ts):
    a.label("L_consumer")
    SP = ["", " sc1"][cfg.spol]
    AP = ['', ' sc1', ' sc1 nt', ' sc0 sc1', ' sc0', ' nt'][cfg.apol]
    vm = VM(a)
    XA = [1, 2, 3, 4]; BA = [5, 6, 7, 8]; WA = [9, 10]
    vL16, vStF, vCL, vF, vFl, vSo, vCn, vRd, vWB, vPQ, vOne, MM = 11, 12, 13, 14, 15, 16, 17, 18, 19, 20, 21, 22
    FS = [40, 68]
    ACC = 96
    def G(ft, q): return ACC + 16 * (2 * ft + q)
    def U(ft, q): return ACC + 64 + 16 * (2 * ft + q)
    def S(q): return ACC + 128 + 16 * q
    vI, vH, t0, t1, t2 = 24, 25, 26, 27, 28
    a(f"v_and_b32 v{vI}, 31, v0")
    a(f"v_lshrrev_b32 v{vH}, 5, v0")
    a(f"v_bfe_u32 v{t0}, v0, 1, 3")
    a(f"v_xor_b32 v{t0}, v{t0}, v{vH}")
    a(f"v_lshlrev_b32 v{t0}, 4, v{t0}")
    a(f"v_lshl_add_u32 v{t0}, v{vI}, 7, v{t0}")
    a(f"s_lshl_b32 s11, s{S_W4}, 13")
    for ks in range(4):
        a(f"v_xor_b32 v{t1}, {32*ks}, v{t0}")
        a(f"v_add_u32 v{XA[ks]}, s11, v{t1}")
        a(f"v_add_u32 v{BA[ks]}, {OFF_BB}, v{t1}")
    a(f"v_bfe_u32 v{t0}, v0, 2, 2")
    a(f"v_lshlrev_b32 v{t1}, 7, v{t0}")
    a(f"v_lshrrev_b32 v{t0}, 1, v{t0}")
    a(f"v_lshl_add_u32 v{t1}, v{t0}, 6, v{t1}")
    a(f"v_bfe_u32 v{t0}, v0, 4, 1")
    a(f"v_lshl_add_u32 v{t1}, v{t0}, 5, v{t1}")
    a(f"v_and_b32 v{t2}, 3, v0")
    a(f"v_lshl_add_u32 v{t1}, v{t2}, 3, v{t1}")
    a(f"v_lshl_add_u32 v{WA[0]}, v{vH}, 10, v{t1}")
    a(f"v_add_u32 v{WA[0]}, {OFF_WG}, v{WA[0]}")
    a(f"v_xor_b32 v{WA[1]}, 64, v{WA[0]}")
    a(f"s_mul_i32 s62, s{S_W4}, {Q}")
    a(f"s_lshr_b32 s59, s{S_W4}, 1")
    a(f"s_and_b32 s63, s{S_W4}, 1")
    a("s_lshl_b32 s11, s59, 6")
    a(f"v_lshl_add_u32 v{vWB}, v{vH}, 9, v{t1}")
    a(f"v_xor_b32 v{vWB}, s11, v{vWB}")
    a(f"v_add_u32 v{vWB}, s62, v{vWB}")
    a("s_waitcnt lgkmcnt(0)")
    a(f"s_lshl_b32 s11, s{S_NS}, 5")
    a(f"s_load_dwordx8 s[32:39], s[{P_LRE}:{P_LRE+1}], s11")
    a(f"s_load_dwordx8 s[64:71], s[{P_LDT}:{P_LDT+1}], s11")
    a(f"s_load_dwordx8 s[24:31], s[{P_LIM}:{P_LIM+1}], s11")
    for k in range(160): a(f"v_mov_b32 v{ACC+k}, 0")
    a(f"v_mov_b32 v{vCn}, {CNT_L}")
    a(f"ds_write_b128 v{vCn}, v[{ACC}:{ACC+3}]")
    a(f"ds_write_b128 v{vCn}, v[{ACC}:{ACC+3}] offset:16")
    a(f"v_bfe_u32 v{t0}, v0, 2, 1")
    a(f"v_lshl_add_u32 v{t0}, v{t0}, 4, v{t2}")
    a(f"v_bfe_u32 v{t1}, v0, 3, 2")
    a(f"v_lshl_add_u32 v{t0}, v{t1}, 2, v{t0}")
    a(f"s_lshl_b32 s11, s{S_W4}, 9")
    a(f"s_add_u32 s11, s11, {STATS_L}")
    a(f"v_lshl_add_u32 v{vStF}, v{t0}, 3, s11")
    a(f"v_lshlrev_b32 v{vL16}, 4, v0")
    a(f"v_add_u32 v{vPQ}, s62, v{vL16}")
    a(f"v_lshlrev_b32 v{vCL}, 4, v{vH}")
    a(f"v_add_u32 v{vCL}, {C_L}, v{vCL}")
    a(f"v_mov_b32 v{vOne}, 1")
    a(f"s_lshl_b32 s11, s{S_W4}, 2")
    a(f"s_add_u32 s11, s11, {CNT_L + 16}")
    a(f"v_mov_b32 v{vRd}, s11")
    a("s_lshl_b32 s11, s63, 8")
    a(f"s_add_u32 s11, s11, {ST2_L}")
    a(f"v_lshl_add_u32 v{vSo}, v{vH}, 7, s11")
    a(f"s_lshl_b32 s13, s{S_MT}, 2")
    a(f"s_add_u32 s13, s13, s{S_W4}")
    a(f"s_mul_i32 s56, s13, {2*RT_BYTES}")
    a(f"s_cmp_ge_u32 s{S_NS}, 14")
    a(f"s_cselect_b32 s11, {HALF_BYTES - 56*1024}, 0")
    a(f"s_lshl_b32 s12, s{S_NS}, 12")
    a("s_add_u32 s11, s11, s12")
    a("s_add_u32 s56, s56, s11")
    a(f"s_add_u32 s57, s56, {RT_BYTES}")
    a("s_lshl_b32 s11, s13, 10")
    flag_index(a, 12, 14, 7)
    a("s_add_u32 s11, s11, s12")
    a(f"s_add_u32 s11, s11, {WS_FLAG:#x}")
    a(f"v_mov_b32 v{vF}, s11")
    a(f"s_lshl_b32 s55, s{S_M64}, 10")
    a(f"s_add_u32 s55, s55, {WS_FLAG:#x}")
    a(f"s_lshl_b32 s11, s{S_W4}, 7")
    a("s_add_u32 s55, s55, s11")
    a(f"s_mul_i32 s12, s59, {HALF_BYTES}")
    a(f"s_mul_i32 s13, s63, {28*1024}")
    a("s_add_u32 s12, s12, s13")
    a(f"s_lshl_b32 s11, s{S_M64}, 1")
    a("s_add_u32 s11, s11, s63")
    a(f"s_mul_i32 s52, s11, {RT_BYTES}")
    a("s_add_u32 s52, s52, s12")
    a("s_xor_b32 s11, s11, 1")
    a(f"s_mul_i32 s51, s11, {RT_BYTES}")
    a("s_add_u32 s51, s51, s12")
    p2_rot(a, cfg, 60, 61, 58)
    a("s_mov_b32 s12, 0x00030003")
    a("s_mov_b32 s13, 0x00030003")
    a("s_waitcnt lgkmcnt(0)")
    K, KP = 40, 64
    for k in range(8):
        a(f"s_lshl_b64 exec, s[12:13], {2*k}")
        for m, sb in enumerate((32, 24, 64)): a(f"v_mov_b32 v{K+m}, s{sb+k}")
    a("s_mov_b64 exec, -1")
    a(f"v_and_b32 v{K+3}, 1, v0")
    a(f"v_lshlrev_b32 v{K+3}, 4, v{K+3}")
    for m in range(3): a(f"v_lshrrev_b32 v{K+m}, v{K+3}, v{K+m}")
    srd(a, SRD_WS, P_WS, WS_SIZE)
    ssm_park(a, K, KP, 62)
    a(f"v_mov_b32 v{KP+23}, 0")
    a(f"s_lshl_b32 s11, s{S_W4}, 13")
    a(f"s_add_u32 s11, s11, {R[2]}")
    a(f"v_add_u32 v{K}, s11, v{vL16}")
    for k in range(6): a(f"ds_write_b128 v{K}, v[{KP+4*k}:{KP+4*k+3}] offset:{1024*k}")
    a("s_waitcnt lgkmcnt(0)")
    ts(1)

    def reads(fs, ks):
        f = FS[fs]
        L = []
        L.append(f"ds_read_b128 v[{f}:{f+3}], v{XA[ks]}")
        L.append(f"ds_read_b128 v[{f+24}:{f+27}], v{BA[ks]}")
        L.append(f"ds_read_b128 v[{f+4}:{f+7}], v{XA[ks]} offset:4096")
        for gu in range(2):
            for ft in range(2):
                for j in range(2):
                    d = f + 8 + 8 * gu + 4 * ft + 2 * j
                    L.append(f"ds_read_b64_tr_b16 v[{d}:{d+1}], v{WA[ft]} offset:{gu*8192 + ks*2048 + j*512}")
        return L
    def mfmas(fs):
        f = FS[fs]
        X = [f, f + 4]; Bf = f + 24
        L = []
        for q in range(2):
            L.append(f"v_mfma_f32_32x32x16_bf16 v[{S(q)}:{S(q)+15}], v[{X[q]}:{X[q]+3}], v[{Bf}:{Bf+3}], v[{S(q)}:{S(q)+15}]")
        for gu in range(2):
            for ft in range(2):
                w = f + 8 + 8 * gu + 4 * ft
                for q in range(2):
                    d = (G, U)[gu](ft, q)
                    L.append(f"v_mfma_f32_32x32x16_bf16 v[{d}:{d+15}], v[{w}:{w+3}], v[{X[q]}:{X[q]+3}], v[{d}:{d+15}]")
        return L
    a("s_setprio 2")
    a("s_mov_b32 s72, 0")
    a("s_mov_b32 s74, 0")
    a("s_barrier")
    ts(2)
    for t in reads(0, 0): a(t)
    a.label("L_c_loop")
    need = {0: 9, 1: 8, 2: 6, 4: 4, 6: 2, 8: 0}
    for ks in range(4):
        fs = ks & 1
        M = mfmas(fs)
        if ks < 3:
            Rd = reads(1 - fs, ks + 1)
            issued = 0
            for i, m in enumerate(M):
                if i in need: a(f"s_waitcnt lgkmcnt({min(15, need[i] + issued)})")
                a(m)
                for _ in range(2 if i >= cfg.rdstart else 0):
                    if Rd: a(Rd.pop(0)); issued += 1
        else:
            Rd = reads(1 - fs, 0)
            a("s_waitcnt lgkmcnt(9)")
            a(M[0])
            a("s_add_u32 s74, s74, 1")
            a("s_cmp_eq_u32 s74, 3")
            a("s_mov_b32 s75, 53248")
            a(f"s_cmov_b32 s75, {(-106496) & 0xffffffff:#x}")
            a("s_cselect_b32 s74, 0, s74")
            for v in XA + BA[:1]: a(f"v_add_u32 v{v}, s75, v{v}")
            a("s_waitcnt lgkmcnt(8)")
            a(M[1])
            for v in BA[1:] + WA: a(f"v_add_u32 v{v}, s75, v{v}")
            a("s_add_u32 s72, s72, 1")
            a("s_cmp_eq_u32 s72, 7")
            a("s_waitcnt lgkmcnt(0)")
            a(M[2])
            a("s_barrier")
            hist = list(a.hist)
            a("s_cbranch_scc1 L_c_last")
            for m in M[3:]:
                for _ in range(2):
                    if Rd: a(Rd.pop(0))
                a(m)
            a("s_branch L_c_loop")
            a.label("L_c_last")
            a.hist = hist
            dump = [f"ds_write_b128 v{vPQ}, v[{S(0)+4*k}:{S(0)+4*k+3}] offset:{SD + 1024*k}" for k in range(8)]
            dump = dump[:4] + [f"ds_read_b32 v{MM}, v{vStF}", f"ds_read_b32 v{MM+1}, v{vStF} offset:256"] + dump[4:]
            for m in M[3:]:
                a(m)
                for _ in range(2):
                    if dump: a(dump.pop(0))
    ts(3)
    a("s_waitcnt lgkmcnt(0)")
    a("s_barrier")
    def cread(dst, off):
        for k in range(4): a(f"ds_read_b128 v[{dst+4*k}:{dst+4*k+3}], v{vCL} offset:{off + 32*k}")
    cread(32, 0); cread(48, 256); cread(64, 128); cread(80, 384)
    WB = {0: [1, 2], 1: [3, 4], 2: [5, 6]}
    for rg in range(3):
        a(f"v_add_u32 v{WB[rg][0]}, {R[rg]}, v{vWB}")
        a(f"v_xor_b32 v{WB[rg][1]}, 64, v{WB[rg][0]}")
    for ft in range(2):
        cg, cu = (32, 48) if ft == 0 else (64, 80)
        for q in range(2):
            g, u = G(ft, q), U(ft, q)
            sel = f"op_sel:[{q},0,0] op_sel_hi:[{q},1,1] neg_lo:[1,0,0] neg_hi:[1,0,0]"
            if q == 0: a(f"s_waitcnt lgkmcnt({12 - 8*ft})")
            for k in range(8):
                a(f"v_pk_fma_f32 v[{g+2*k}:{g+2*k+1}], v[{MM}:{MM+1}], v[{cg+2*k}:{cg+2*k+1}], v[{g+2*k}:{g+2*k+1}] {sel}")
            if q == 0: a(f"s_waitcnt lgkmcnt({8 - 8*ft})")
            for p in range(2):
                kr = range(4 * p, 4 * p + 4)
                for k in kr:
                    a(f"v_pk_fma_f32 v[{u+2*k}:{u+2*k+1}], v[{MM}:{MM+1}], v[{cu+2*k}:{cu+2*k+1}], v[{u+2*k}:{u+2*k+1}] {sel}")
                    a(f"v_max_f32 v{g+2*k}, 0, v{g+2*k}")
                    a(f"v_max_f32 v{g+2*k+1}, 0, v{g+2*k+1}")
                for k in kr:
                    a(f"v_pk_mul_f32 v[{u+2*k}:{u+2*k+1}], v[{u+2*k}:{u+2*k+1}], v[{g+2*k}:{g+2*k+1}]")
                for k in kr:
                    a(f"v_cvt_pk_bf16_f32 v{g+k}, v{u+2*k}, v{u+2*k+1}")
                vm.issue('h', f"buffer_store_dwordx4 v[{g+4*p}:{g+4*p+3}], v{vL16}, s[{SRD_WS}:{SRD_WS+3}], s{56+q} offen offset:{(2*ft+p)*1024}{SP}")
    ts(4)
    BR, NB = 160, 12
    def breads(p):
        sl = WSLOT[p]
        rg = max(k for k in range(3) if R[k] <= sl)
        L = []
        for lc in range(2):
            for jj in range(2):
                d = BR + 8 * (p % NB) + 4 * lc + 2 * jj
                L.append(f"ds_read_b64_tr_b16 v[{d}:{d+1}], v{WB[rg][lc]} offset:{sl - R[rg] + jj*1024}")
        return L
    for p in range(NB):
        for t in breads(p): a(t)
    a("s_waitcnt lgkmcnt(0)")
    a("s_barrier")
    ts(5)
    vm.wait('h')
    a("s_setprio 3")
    a("s_mov_b64 exec, 1")
    vm.issue('f', f"buffer_store_dword v{vOne}, v{vF}, s[{SRD_WS}:{SRD_WS+3}], 0 offen sc1")
    a("s_mov_b64 exec, -1")
    ts(6)
    AF = 96
    AR = list(range(24, 96, 4))
    NA = len(AR)
    def aload(n):
        p, lr = n // 2, n % 2
        if n % 8 == 0:
            a(f"s_lshl_b32 s11, s60, 12")
            a(f"s_add_u32 s54, s11, s52")
            a(f"s_add_u32 s53, s11, s51")
            a(f"s_add_u32 s60, s60, 1")
            a(f"s_cmp_eq_u32 s60, 7")
            a(f"s_cselect_b32 s60, 0, s60")
        d = AR[n % NA]
        vm.issue(('a', n), f"buffer_load_dwordx4 v[{d}:{d+3}], v{vL16}, s[{SRD_WS}:{SRD_WS+3}], s{54 - lr} offen offset:{(p%4)*1024}{AP}")
    def cond():
        a("s_and_b64 s[16:17], s[16:17], s[18:19]")
        a("s_and_b64 s[16:17], s[16:17], s[20:21]")
        a("s_and_b32 s16, s16, s17")
        a("s_and_b32 s16, s16, s22")
        a("s_cmp_eq_u32 s16, 1")
    sspin(a, "L_pf", [f"s_load_dwordx8 s[16:23], s[{P_WS}:{P_WS+1}], s55 glc"], cond, cfg.fsleep)
    a("s_setprio 2")
    ts(7)
    for n in range(cfg.a0): aload(n)
    nxt = [cfg.a0]
    ts(8)
    lq = []
    def ds_issue(tag, t):
        a(t)
        if t.startswith("ds_"): lq.append(tag)
    def ds_wait(tag):
        idx = max((i for i, t in enumerate(lq) if t == tag), default=None)
        if idx is None: return None
        n = len(lq) - 1 - idx
        del lq[:idx + 1]
        return f"lgkmcnt({min(n, 15)})"
    def lds_spin(name, vaddr, off, val):
        a("s_mov_b32 s73, 0")
        a.label(name)
        a("s_waitcnt lgkmcnt(0)")
        a("v_readfirstlane_b32 s11, v8")
        a(f"s_cmp_ge_u32 s11, {val}")
        a(f"s_cbranch_scc1 {name}ok")
        a("s_add_u32 s73, s73, 1")
        a(f"s_cmp_ge_u32 s73, {SPIN_MAX}")
        a(f"s_cbranch_scc1 {name}ok")
        a("s_sleep 1")
        a(f"ds_read_b32 v8, v{vaddr} offset:{off}")
        a(f"s_branch {name}")
        a.label(name + "ok")
        del lq[:]
    for p in range(28):
        f = BR + 8 * (p % NB)
        pn = p + cfg.bd
        for lr in range(2):
            n = 2 * p + lr
            w = ds_wait(p) if lr == 0 else None
            vm.wait(('a', n), w or "")
            if n == 0: ts(9)
            if n in (0, 7, 17, 25, 35): ts.x(6, {0: 7, 7: 8, 17: 9, 25: 10, 35: 11}[n])
            if lr == 0 and pn in (12, 16, 22): ds_issue('r', f"ds_read_b32 v8, v{vRd}")
            d = AR[n % NA]
            for lc in range(2):
                acc = AF + 32 * lr + 16 * lc
                c = "0" if p == 0 else f"v[{acc}:{acc+15}]"
                a(f"v_mfma_f32_32x32x16_bf16 v[{acc}:{acc+15}], v[{d}:{d+3}], v[{f+4*lc}:{f+4*lc+3}], {c}")
            for _ in range(2):
                if nxt[0] < 56 and nxt[0] <= n + NA:
                    aload(nxt[0]); nxt[0] += 1
        if pn in (12, 16, 22): lds_spin(f"L_c_r{pn}", vRd, 0, {12: 1, 16: 2, 22: 3}[pn])
        if p == cfg.ksig:
            assert pn > 15
            w = ds_wait(15)
            if w: a(f"s_waitcnt {w}")
            a("s_mov_b64 exec, 1")
            ds_issue('c', f"ds_add_u32 v{vCn}, v{vOne} offset:4")
            a("s_mov_b64 exec, -1")
        if NB <= pn < 28:
            for t in breads(pn): ds_issue(pn, t)
        if p == 24:
            STT = BR + 32
            for k in range(8): ds_issue('st', f"ds_read_b128 v[{STT+4*k}:{STT+4*k+3}], v{vSo} offset:{16*k}")
        if p == 26:
            for x in range(1, 4):
                a(f"s_xor_b32 s11, s{S_W4}, {x}")
                a(f"s_mul_i32 s11, s11, {Q}")
                a(f"s_add_u32 s11, s11, {FXA + (x-1)*4096}")
                a(f"v_add_u32 v{x}, s11, v{vL16}")
            a(f"v_add_u32 v4, {GA}, v{vPQ}")
            a(f"v_add_u32 v5, {FXA}, v{vPQ}")
        if p % 4 == 3: ts.x(4, 1 + p // 4)
    ts(11)
    ts.x(7, 1)
    for x in (2, 1, 3):
        src = AF + 32 * (x & 1) + 16 * (x >> 1)
        for k in range(4):
            a(f"ds_write_b128 v5, v[{src+4*k}:{src+4*k+3}] offset:{(x-1)*4096 + 1024*k}")
    a("s_waitcnt lgkmcnt(12)")
    for r in range(16): a(f"v_mul_f32 v{STT+2*r}, v{STT+2*r+1}, v{STT+2*r+1}")
    a(f"s_mov_b32 s13, {LOG2E ^ 0x80000000:#x}")
    ts.x(7, 2)
    a("s_waitcnt lgkmcnt(0)")
    ts.x(7, 3)
    a("s_mov_b64 exec, 1")
    a(f"ds_add_u32 v{vCn}, v{vOne}")
    a("s_mov_b64 exec, -1")
    a(f"ds_read_b32 v8, v{vCn}")
    lds_spin("L_c_cnt", vCn, 0, 4)
    ts.x(7, 4)
    O, RX, EX = AF, 24, 72
    for k in range(4):
        for x in range(1, 4):
            a(f"ds_read_b128 v[{RX+16*(x-1)+4*k}:{RX+16*(x-1)+4*k+3}], v{x} offset:{1024*k}")
    for k in range(4):
        rr = range(4 * k, 4 * k + 4)
        a(f"s_waitcnt lgkmcnt({9 - 3*k})")
        for r in rr: a(f"v_add_f32 v{O+r}, v{O+r}, v{RX+r}")
        for r in rr: a(f"v_add_f32 v{RX+16+r}, v{RX+16+r}, v{RX+32+r}")
        for r in rr: a(f"v_add_f32 v{O+r}, v{O+r}, v{RX+16+r}")
        for r in rr: a(f"v_mul_f32 v{O+r}, v{O+r}, v{STT+2*r}")
        for r in rr: a(f"v_mul_f32 v{EX+r}, s13, v{O+r}")
        for r in rr: a(f"v_exp_f32 v{EX+r}, v{EX+r}")
    ts.x(7, 5)
    for k in range(4):
        rr = range(4 * k, 4 * k + 4)
        for r in rr: a(f"v_add_f32 v{EX+r}, 1.0, v{EX+r}")
        for r in rr: a(f"v_rcp_f32 v{EX+r}, v{EX+r}")
        for r in rr: a(f"v_mul_f32 v{O+r}, v{O+r}, v{EX+r}")
        a(f"ds_write_b128 v4, v[{O+4*k}:{O+4*k+3}] offset:{1024*k}")
    a("s_waitcnt lgkmcnt(0)")
    ts(12)
    a("s_barrier")
    ts.dump(24, 25, 0)
    a("s_endpgm")

HEADER = """; Fused S5-SSM + ReGLU block, one launch: 224 main workgroups (4 MFMA waves + 4 loader waves) + 32 helper workgroups.
; @launch grid=(256,1,1) block=(512,1,1) lds=163840
.amdgcn_target "amdgcn-amd-amdhsa--gfx950"
.text
.globl {k}
.p2align 8
.type {k},@function
{k}:
"""
FOOTER = """.section .rodata,"a"
.p2align 6
.amdhsa_kernel {k}
  .amdhsa_next_free_vgpr 256
  .amdhsa_next_free_sgpr 102
  .amdhsa_accum_offset 256
  .amdhsa_group_segment_fixed_size 0
  .amdhsa_kernarg_size 128
  .amdhsa_user_sgpr_count 2
  .amdhsa_user_sgpr_kernarg_segment_ptr 1
  .amdhsa_system_sgpr_workgroup_id_x 1
  .amdhsa_float_denorm_mode_32 3
.end_amdhsa_kernel
"""

def generate(cfg):
    WSOFF[0] = cfg.wsoff << 20
    a = Asm()
    ts = TS(a, cfg)
    gen_entry(a, cfg, ts)
    gen_loader(a, cfg, ts)
    gen_consumer(a, cfg, ts)
    gen_helper(a, cfg, ts)
    a.label("L_exit")
    a("s_endpgm")
    return HEADER.format(k=KNAME) + f"; wsoff={cfg.wsoff}\n" + a.text() + FOOTER.format(k=KNAME)

if __name__ == "__main__":
    cfg = Cfg()
    out = sys.argv[1]
    for kv in sys.argv[2:]:
        k, v = kv.split("=")
        setattr(cfg, k, int(v))
    open(out, "w").write(generate(cfg))
```

```python
import sys, os
sys.path.insert(0, os.path.dirname(os.path.abspath(__file__)))
from asmlib import Asm, VM

KNAME = "recurrent_scan__ssm_conv_s5__glu_gated_reglu__prompt_kernel"

R = [0, 53248, 106496]
MISC = 159744
OFF_WG, OFF_WU, OFF_BB = 32768, 40960, 49152
CP_L = R[1] + 49152
STATS_L = MISC
C_L = MISC + 2048
CNT_L = MISC + 2688
ST2_L = MISC + 2720
AGG_L = MISC + 3232
Q = 12288

RT_BYTES = 172032
HALF_BYTES = 86016
WS_STATS = 0xB00000
WS_AGG = WS_STATS + 0x4000
WS_FLAG = WS_AGG + 0x8000
INIT_N = 128
WS_TS = 0xC00000
WS_SIZE = 0x1000000
SPIN_MAX = 1 << 20

S_WAVE, S_XCD, S_SLOT, S_MT, S_NS, S_M64, S_NT, S_W4 = 3, 4, 5, 6, 7, 8, 9, 10
P_X, P_LRE, P_LIM, P_BRE, P_BIM, P_CRE, P_CIM, P_LDT, P_DSK, P_BX, P_WG, P_WU, P_WD, P_OUT, P_DBG, P_WS = [16 + 2 * i for i in range(16)]
SRD_X, SRD_A, SRD_B, SRD_C, SRD_WS, SRD_E = 48, 52, 56, 60, 64, 68
TS0 = 76

LOG2E = 0x3fb8aa3b
LOG2E_LO = 0x32a57060
LN2 = 0x3f317218
INV2PI = 0x3e22f983

class Cfg:
    ts = 0
    tsset = 0
    pd = 16
    perm = 1
    rot = 2
    ssm_early = 0
    schedn = 0
    polx = 0
    apol = 1
    noa = 0
    nob = 0
    rdstart = 1
    polw = 0
    winn = 3
    loc = 1
    wl = 0
    fper = 5
    c2u = 2
    probe = 0
    pwho = 0
    ponly = -1
    pmask = 0xffff
    wsoff = 0
    kwin = 2
    wprio = 0
    hdelay = 0
    eprio = 0
    c2late = 0
    cpf = 2
    padto = 0
    nocs = 0
    r2pre = 1
    tlb = 0
    bd = 4
    pollw = 24
    c1 = 8
    c2 = 9
    f2b = 2
    wfirst = 1
    @property
    def win(self):
        W = lambda a, b: [f"w{p}" for p in range(a, b)]
        return [
            {-1: ["s1:0-6"], 0: ["cs0", "s1:6-13", "k", "s2:0-9"], 1: ["cs1", "s2:9-13", "s3", "e"], 2: ["cs2", "s4"] + W(12, 14), 3: ["cs3", "s5"] + W(14, 17),
             4: ["cs4", "init", "s6:0-7", "cs5", "s6:7-13", "w17"], 5: ["fetch"] + W(0, 4) + ["cs6"] + W(4, 6) + W(18, 20) + ["put"], 6: W(6, 12) + W(20, 22)},
            {-1: ["s1:0-6"], 0: ["cs0", "s1:6-13", "k", "s2:0-9"], 1: ["cs1", "s2:9-13", "s3", "e"], 2: ["cs2", "s4"] + W(12, 15), 3: ["cs3", "s5"] + W(15, 18),
             4: ["cs4", "init", "s6"] + W(18, 20), 5: ["cs5", "fetch"] + W(0, 3) + ["cs6"] + W(3, 6) + ["put"], 6: W(6, 12) + W(20, 22)},
            {-1: ["s1:0-6"], 0: ["cs0", "s1:6-13", "k", "s2:0-9"], 1: ["cs1", "s2:9-13", "s3", "e"], 2: ["cs2", "s4"] + W(12, 15), 3: ["cs3", "s5:0-7", "cs4", "s5:7-13", "w15"],
             4: ["init", "s6:0-4", "cs5", "s6:4-13"] + W(16, 19), 5: ["fetch"] + W(0, 4) + ["cs6"] + W(4, 6) + W(19, 22) + ["put"], 6: W(6, 12)},
            {-1: ["s1:0-6"], 0: ["cs0", "s1:6-13", "k", "s2:0-9"], 1: ["cs1", "s2:9-13", "s3", "e"], 2: ["cs2", "s4"] + W(12, 15), 3: ["cs3", "s5"] + W(15, 18),
             4: ["cs4", "init", "s6:0-7", "cs5", "s6:7-13", "w18", "w19"], 5: ["fetch"] + W(0, 4) + ["cs6"] + W(4, 6) + W(20, 22) + ["c3", "put"], 6: W(6, 12) + ["c1"]},
            {-1: ["s1:0-6"], 0: ["cs0", "s1:6-13", "k", "s2:0-9"], 1: ["cs1", "s2:9-13", "s3", "e"], 2: ["cs2", "s4"] + W(12, 14), 3: ["cs3", "s5"] + W(14, 17),
             4: ["cs4", "init", "s6:0-7", "cs5", "s6:7-13", "w17"], 5: ["fetch"] + W(0, 4) + ["cs6"] + W(4, 6) + W(18, 20) + ["put"], 6: W(6, 12) + W(20, 22) + ["c3"]},
            {-1: ["s1:0-6"], 0: ["cs0", "s1:6-13", "k", "s2:0-9"], 1: ["cs1", "s2:9-13", "s3", "e"], 2: ["cs2", "s4"] + W(12, 15), 3: ["cs3", "s5"] + W(15, 19),
             4: ["cs4", "init", "s6:0-7", "cs5", "s6:7-13"] + W(19, 22), 5: ["fetch"] + W(0, 4) + ["cs6"] + W(4, 6) + ["c1", "put"], 6: W(6, 12) + ["c3"]},
            {-1: ["s1:0-6"], 0: ["cs0", "s1:6-13", "k", "s2"], 1: ["cs1", "s3", "e"] + W(12, 14), 2: ["cs2", "s4"] + W(14, 17), 3: ["cs3", "s5"] + W(17, 20),
             4: ["cs4", "init", "s6:0-7", "cs5", "s6:7-13"] + W(20, 22), 5: ["fetch"] + W(0, 4) + ["cs6"] + W(4, 6) + ["c1", "put"], 6: W(6, 12) + ["c3"]},
            {-1: ["s1:0-6"], 0: ["cs0", "s1:6-13", "k", "s2:0-9"], 1: ["cs1", "s2:9-13", "s3", "e"], 2: ["cs2", "s4"] + W(12, 15), 3: ["cs3", "s5:0-7", "cs4", "s5:7-13"] + W(15, 18),
             4: ["init", "s6:0-4", "cs5", "s6:4-13"] + W(18, 22), 5: ["fetch"] + W(0, 4) + ["cs6"] + W(4, 6) + ["c1", "put"], 6: W(6, 12) + ["c3"]},
        ][self.winn]
    nw1 = 6
    flagr = -1
    xs = 1
    psleep = 2
    fsleep = 2
    ttper = 2
    f2n = 9
    fpre = 1
    a0 = 18
    sprio = 0
    ksig = 12
    opol = 1
    lprio = 3
    w12early = 0
    slab = 0
    spol = 1
    fpol = 1
    pollr = 4
    nw2 = 16
    thr = 15
    hpf = 3
    ky = 2
    @property
    def perms(self):
        return {
            0: [[0, 1, 2, 3, 4, 5, 6]],
            1: [[0, 1, 2, 3, 4, 5, 6], [1, 2, 0, 4, 5, 3, 6], [2, 0, 1, 5, 3, 4, 6]],
            2: [[0, 1, 2, 3, 4, 5, 6], [1, 0, 3, 2, 5, 4, 6]],
            3: [[0, 1, 2, 3, 4, 5, 6], [1, 0, 4, 5, 6, 2, 3], [0, 1, 6, 2, 3, 4, 5]],
            4: [[0, 1, 2, 3, 4, 5, 6], [1, 2, 0, 4, 6, 3, 5], [2, 0, 1, 5, 6, 3, 4]],
            5: [[0, 1, 2, 3, 4, 5, 6], [1, 2, 3, 0, 5, 6, 4], [2, 3, 0, 1, 6, 4, 5], [3, 0, 1, 2, 4, 5, 6]],
        }[self.perm]

WSOFF = [0]
def srd(a, d, ptr, nbytes):
    if ptr == P_WS and WSOFF[0]:
        a(f"s_add_u32 s{ptr}, s{ptr}, {WSOFF[0]:#x}")
        a(f"s_addc_u32 s{ptr+1}, s{ptr+1}, 0")
    a(f"s_mov_b32 s{d}, s{ptr}")
    a(f"s_and_b32 s{d+1}, s{ptr+1}, 0xffff")
    a(f"s_mov_b32 s{d+2}, {nbytes:#x}")
    a(f"s_mov_b32 s{d+3}, 0x20000")

def srd_sel(a, d, ptr1, ptr0, nbytes):
    a(f"s_cselect_b32 s{d}, s{ptr1}, s{ptr0}")
    a(f"s_cselect_b32 s{d+1}, s{ptr1+1}, s{ptr0+1}")
    a(f"s_and_b32 s{d+1}, s{d+1}, 0xffff")
    a(f"s_mov_b32 s{d+2}, {nbytes:#x}")
    a(f"s_mov_b32 s{d+3}, 0x20000")

class TS:
    def __init__(self, a, cfg):
        self.a, self.on, self.n, self.set = a, cfg.ts, 0, cfg.tsset
        self.cfg = cfg
    def x(self, setno, i):
        if self.on and self.set == setno: self.emit(i)
    def __call__(self, i):
        if self.on and (self.set == 0 or i in (0, 12)): self.emit(i)
    def emit(self, i):
        if self.on == 5 and i not in (0, self.cfg.probe): return
        if self.on:
            assert i < 13
            self.a(f"{'s_memrealtime' if self.on != 2 else 's_memtime'} s[{TS0+2*i}:{TS0+2*i+1}]")
    def init(self):
        if self.on:
            for i in range(1, 13): self.a(f"s_mov_b32 s{TS0+2*i}, 0")
    def dump(self, vt, vt2, who=2):
        if not self.on: return
        a = self.a
        if self.on == 5:
            if who != self.cfg.pwho: return
            lab = a.newlabel("L_probe")
            if self.cfg.ponly >= 0:
                a(f"s_and_b32 s11, s2, {self.cfg.pmask}")
                a(f"s_cmp_lg_u32 s11, {self.cfg.ponly}")
                a(f"s_cbranch_scc1 {lab}_x")
            p = TS0 + 2 * self.cfg.probe
            a("s_waitcnt lgkmcnt(0)")
            a(f"s_sub_u32 s11, s{p}, s{TS0}")
            a(f"s_cmp_eq_u32 s{p}, 0")
            a("s_cselect_b32 s11, 0, s11")
            a("s_lshl_b32 s11, s11, 2")
            a("s_add_u32 s11, s11, 3000")
            a.label(lab)
            a("s_memrealtime s[12:13]")
            a("s_waitcnt lgkmcnt(0)")
            a(f"s_sub_u32 s12, s12, s{TS0}")
            a("s_cmp_lt_u32 s12, s11")
            a(f"s_cbranch_scc1 {lab}")
            a.label(lab + "_x")
            return
        if self.on == 3:
            a("s_waitcnt vmcnt(0) lgkmcnt(0)")
            lab = a.newlabel("L_nod")
            a(f"s_cmp_eq_u32 s{TS0+24}, 0")
            a(f"s_cbranch_scc1 {lab}")
            a(f"s_cmp_lg_u32 s{S_WAVE}, 0")
            a(f"s_cbranch_scc1 {lab}")
            a("s_mov_b64 exec, 1")
            a(f"v_mov_b32 v{vt2}, 0")
            a(f"s_not_b32 s11, s{TS0}")
            a(f"v_mov_b32 v{vt}, s11")
            a(f"global_atomic_umax v{vt2}, v{vt}, s[{P_DBG}:{P_DBG+1}] offset:4 sc1")
            for n, i in enumerate([0, 1, 2, 3, 4, 5, 6, 7, 8, 9, 10, 11, 12]):
                a("s_waitcnt vmcnt(0)")
                a(f"v_mov_b32 v{vt}, s{TS0+2*i}")
                a(f"global_atomic_umax v{vt2}, v{vt}, s[{P_DBG}:{P_DBG+1}] offset:{8+4*n} sc1")
            a("s_waitcnt vmcnt(0)")
            a.label(lab)
            return
        a("s_waitcnt vmcnt(0) lgkmcnt(0)")
        a(f"s_lshl_b32 s11, s2, 9")
        a(f"s_lshl_b32 s12, s{S_WAVE}, 6")
        a("s_add_u32 s11, s11, s12")
        a(f"s_add_u32 s11, s11, {WS_TS:#x}")
        a(f"v_mov_b32 v{vt2}, s11")
        for i in range(13):
            a(f"v_mov_b32 v{vt}, s{TS0+2*i}")
            a(f"buffer_store_dword v{vt}, v{vt2}, s[{SRD_WS}:{SRD_WS+3}], 0 offen offset:{4*i}")
        a("s_waitcnt vmcnt(0)")

def round_bf16(a, dst, src):
    a(f"v_cvt_pk_bf16_f32 v{dst}, v{src}, v{src}")
    a(f"v_lshlrev_b32 v{dst}, 16, v{dst}")

def exp_acc(a, dst, x, t0, t1):
    a(f"s_mov_b32 s36, {LOG2E:#x}")
    a(f"s_mov_b32 s37, {LOG2E_LO:#x}")
    a(f"v_mul_f32 v{t0}, s36, v{x}")
    a(f"v_fma_f32 v{t1}, v{x}, s36, -v{t0}")
    a(f"v_fma_f32 v{t1}, v{x}, s37, v{t1}")
    a(f"v_mul_f32 v{t1}, {LN2:#x}, v{t1}")
    a(f"v_exp_f32 v{dst}, v{t0}")
    a(f"v_fma_f32 v{dst}, v{dst}, v{t1}, v{dst}")

def csq(a, dr, di, sr, si, t):
    a(f"v_mul_f32 v{t}, v{si}, v{si}")
    a(f"v_add_f32 v{di}, v{si}, v{si}")
    a(f"v_mul_f32 v{di}, v{di}, v{sr}")
    a(f"v_fma_f32 v{dr}, v{sr}, v{sr}, -v{t}")

def cmul(a, dr, di, ar, ai, br, bi):
    a(f"v_mul_f32 v{dr}, v{ar}, v{br}")
    a(f"v_mul_f32 v{di}, v{ar}, v{bi}")
    a(f"v_fma_f32 v{dr}, -v{ai}, v{bi}, v{dr}")
    a(f"v_fma_f32 v{di}, v{ai}, v{br}, v{di}")

def ssm_const_load(a, vm, t):
    a(f"v_and_b32 v{t+3}, 15, v0")
    a(f"s_lshl_b32 s11, s{S_NS}, 4")
    a(f"v_add_lshl_u32 v{t+3}, v{t+3}, s11, 1")
    vm.issue('sc', f"global_load_ushort v{t}, v{t+3}, s[{P_LRE}:{P_LRE+1}]")
    vm.issue('sc', f"global_load_ushort v{t+1}, v{t+3}, s[{P_LIM}:{P_LIM+1}]")
    vm.issue('sc', f"global_load_ushort v{t+2}, v{t+3}, s[{P_LDT}:{P_LDT+1}]")

def ssm_const_calc(a, t, lr, li, cr=None, ci=None):
    for k in range(3): a(f"v_lshlrev_b32 v{t+k}, 16, v{t+k}")
    exp_acc(a, t + 3, t + 2, t + 4, t + 5)
    round_bf16(a, t + 2, t + 3)
    a(f"v_mul_f32 v{t+3}, v{t+2}, v{t}")
    a(f"v_mul_f32 v{t+6}, v{t+2}, v{t+1}")
    exp_acc(a, t + 7, t + 3, t + 4, t + 5)
    a(f"v_mul_f32 v{t+6}, {INV2PI:#x}, v{t+6}")
    a(f"v_rndne_f32 v{t+4}, v{t+6}")
    a(f"v_sub_f32 v{t+6}, v{t+6}, v{t+4}")
    a(f"v_cos_f32 v{t+4}, v{t+6}")
    a(f"v_sin_f32 v{t+5}, v{t+6}")
    a(f"v_mul_f32 v{lr}, v{t+7}, v{t+4}")
    a(f"v_mul_f32 v{li}, v{t+7}, v{t+5}")
    if cr is not None:
        a(f"v_add_f32 v{t+3}, -1.0, v{lr}")
        a(f"v_mul_f32 v{t+4}, v{t}, v{t}")
        a(f"v_fma_f32 v{t+4}, v{t+1}, v{t+1}, v{t+4}")
        a(f"v_rcp_f32 v{t+4}, v{t+4}")
        a(f"v_mul_f32 v{cr}, v{t+3}, v{t}")
        a(f"v_fma_f32 v{cr}, v{li}, v{t+1}, v{cr}")
        a(f"v_mul_f32 v{ci}, v{li}, v{t}")
        a(f"v_fma_f32 v{ci}, -v{t+3}, v{t+1}, v{ci}")
        a(f"v_add_f32 v{t+4}, v{t+4}, v{t+4}")
        a(f"v_mul_f32 v{cr}, v{cr}, v{t+4}")
        a(f"v_mul_f32 v{ci}, v{ci}, v{t+4}")

def gen_entry(a, cfg, ts):
    a("s_cmp_ge_u32 s2, 256")
    a("s_cbranch_scc1 L_exit")
    if cfg.padto: a("s_memrealtime s[100:101]")
    ts(0)
    a("s_load_dwordx16 s[16:31], s[0:1], 0")
    a("s_load_dwordx16 s[32:47], s[0:1], 64")
    a("v_lshrrev_b32 v1, 6, v0")
    a("v_and_b32 v0, 63, v0")
    a(f"v_readfirstlane_b32 s{S_WAVE}, v1")
    a(f"s_and_b32 s{S_XCD}, s2, 7")
    a(f"s_lshr_b32 s{S_SLOT}, s2, 3")
    if cfg.cpf == 2:
        a(f"s_cmp_lg_u32 s{S_WAVE}, 0")
        a("s_cbranch_scc1 L_nocpf")
        a("s_getpc_b64 s[12:13]")
        a.label("L_pc0")
        a(f"s_sub_u32 s12, s12, L_pc0-{KNAME}")
        a("s_subb_u32 s13, s13, 0")
        a(f"s_lshl_b32 s11, s{S_SLOT}, 10")
        a("v_lshl_add_u32 v38, v0, 4, s11")
        a(f"v_min_u32 v38, L_exit-{KNAME}, v38")
        a("global_load_dword v39, v38, s[12:13]")
        a.label("L_nocpf")
    a(f"s_and_b32 s11, s{S_SLOT}, 3")
    a(f"s_lshr_b32 s{S_NT}, s{S_SLOT}, 2")
    a(f"s_and_b32 s12, s{S_XCD}, 1")
    a(f"s_lshl_b32 s12, s12, 2")
    a(f"s_add_u32 s{S_MT}, s12, s11")
    a(f"s_lshr_b32 s12, s{S_XCD}, 1")
    a(f"s_mul_i32 s12, s12, 7")
    a(f"s_add_u32 s{S_NS}, s12, s{S_NT}")
    if cfg.slab:
        a(f"s_mov_b32 s{S_MT}, s{S_XCD}")
        a(f"s_mov_b32 s{S_NS}, s{S_SLOT}")
    if cfg.loc:
        a(f"s_and_b32 s12, s{S_XCD}, 1")
        a("s_lshl_b32 s12, s12, 2")
        a(f"s_lshr_b32 s13, s{S_XCD}, 1")
        a("s_add_u32 s12, s12, s13")
        a("s_lshl_b32 s12, s12, 2")
    else:
        a(f"s_lshl_b32 s12, s{S_XCD}, 2")
    a(f"s_add_u32 s{S_M64}, s12, s11")
    a(f"s_and_b32 s{S_W4}, s{S_WAVE}, 3")
    ts.init()
    a(f"s_cmp_ge_u32 s{S_SLOT}, 28")
    a("s_cbranch_scc1 L_helper")
    a(f"s_cmp_lt_u32 s{S_WAVE}, 4")
    a("s_cbranch_scc1 L_consumer")

def gen_helper(a, cfg, ts):
    a.label("L_helper")
    vm = VM(a)
    a(f"s_sub_u32 s73, s{S_SLOT}, 28")
    a(f"s_lshl_b32 s11, s73, 3")
    a(f"s_add_u32 s72, s11, s{S_XCD}")
    if cfg.loc: a(f"s_mov_b32 s72, s{S_M64}")
    a(f"s_cmp_ge_u32 s{S_WAVE}, 4")
    a("s_cbranch_scc1 L_h_pf")
    a(f"s_lshl_b32 s11, s72, 6")
    a(f"s_lshl_b32 s12, s{S_WAVE}, 4")
    a(f"s_add_u32 s11, s11, s12")
    a("v_lshrrev_b32 v2, 3, v0")
    a("v_add_u32 v2, s11, v2")
    a("v_mul_u32_u24 v3, 896, v2")
    a("v_and_b32 v4, 7, v0")
    a("v_lshl_add_u32 v3, v4, 4, v3")
    a("s_waitcnt lgkmcnt(0)")
    srd(a, SRD_X, P_X, 2048 * 896)
    srd(a, SRD_WS, P_WS, WS_SIZE)
    a(f"s_mov_b32 s11, {8*896}")
    for ps in range(2):
        for j in range(7):
            so = "0" if ps == 0 else "s11"
            vm.issue(('x', ps), f"buffer_load_dwordx4 v[{112+28*ps+4*j}:{115+28*ps+4*j}], v3, s[{SRD_X}:{SRD_X+3}], {so} offen offset:{128*j}")
    a(f"s_cmp_gt_u32 s{S_WAVE}, 1")
    a("s_cbranch_scc1 L_h_noreset")
    a(f"s_cmp_eq_u32 s{S_WAVE}, 0")
    a("s_cselect_b32 s11, -1, 0")
    a("s_mov_b32 s12, 1024")
    a("s_cmov_b32 s12, 896")
    a(f"s_mov_b32 s13, {WS_FLAG:#x}")
    a(f"s_cmov_b32 s13, {WS_AGG:#x}")
    a("s_mul_i32 s14, s12, s72")
    a("s_add_u32 s13, s13, s14")
    for k in range(4): a(f"v_mov_b32 v{8+k}, s11")
    a("v_lshlrev_b32 v12, 4, v0")
    a("v_cmp_gt_u32 vcc, s12, v12")
    a("s_and_saveexec_b64 s[14:15], vcc")
    a(f"buffer_store_dwordx4 v[8:11], v12, s[{SRD_WS}:{SRD_WS+3}], s13 offen sc1")
    a("s_mov_b64 exec, s[14:15]")
    a.label("L_h_noreset")
    a("s_nop 1")
    a("v_lshlrev_b32 v2, 3, v2")
    a("s_mov_b32 s12, 0xffff0000")
    def fin(dst):
        a("v_add_f32 v8, v8, v9")
        a("v_add_f32 v10, v10, v11")
        a(f"v_add_f32 v{dst}, v8, v10")
        a(f"v_add_f32_dpp v{dst}, v{dst}, v{dst} quad_perm:[1,0,3,2] row_mask:0xf bank_mask:0xf")
        a(f"v_add_f32_dpp v{dst}, v{dst}, v{dst} quad_perm:[2,3,0,1] row_mask:0xf bank_mask:0xf")
        a(f"v_add_f32_dpp v{dst}, v{dst}, v{dst} row_half_mirror row_mask:0xf bank_mask:0xf")
        a(f"v_mul_f32 v{dst}, 0x3b124925, v{dst}")
    for ps in range(2):
        vm.wait(('x', ps))
        if cfg.hdelay == 2 + ps: a("s_barrier")
        src = 112 + 28 * ps
        for k in range(28):
            a(f"v_lshlrev_b32 v{48+2*k}, 16, v{src+k}")
            a(f"v_and_b32 v{49+2*k}, s12, v{src+k}")
        a("v_pk_add_f32 v[8:9], v[48:49], v[52:53]")
        a("v_pk_add_f32 v[10:11], v[50:51], v[54:55]")
        for k in range(4, 28): a(f"v_pk_add_f32 v[{8+2*(k%2)}:{9+2*(k%2)}], v[{8+2*(k%2)}:{9+2*(k%2)}], v[{48+2*k}:{49+2*k}]")
        fin(12)
        for k in range(28): a(f"v_pk_add_f32 v[{48+2*k}:{49+2*k}], v[{48+2*k}:{49+2*k}], v[12:13] op_sel_hi:[1,0] neg_lo:[0,1] neg_hi:[0,1]")
        for k in range(2): a(f"v_pk_mul_f32 v[{8+2*k}:{9+2*k}], v[{48+2*k}:{49+2*k}], v[{48+2*k}:{49+2*k}]")
        for k in range(2, 28): a(f"v_pk_fma_f32 v[{8+2*(k%2)}:{9+2*(k%2)}], v[{48+2*k}:{49+2*k}], v[{48+2*k}:{49+2*k}], v[{8+2*(k%2)}:{9+2*(k%2)}]")
        fin(13)
        o = 14 + 2 * ps
        round_bf16(a, o, 12)
        round_bf16(a, 13, 13)
        a("v_add_f32 v13, 0x3727c5ac, v13")
        round_bf16(a, 13, 13)
        a("v_sqrt_f32 v13, v13")
        round_bf16(a, 13, 13)
        a(f"v_rcp_f32 v{o+1}, v13")
        a("v_cmp_eq_u32 vcc, 0, v4")
        a("s_and_saveexec_b64 s[14:15], vcc")
        a(f"s_mov_b32 s11, {WS_STATS:#x}")
        vm.issue('st', f"buffer_store_dwordx2 v[{o}:{o+1}], v2, s[{SRD_WS}:{SRD_WS+3}], s11 offen offset:{64*ps} sc1")
        a("s_mov_b64 exec, s[14:15]")
    a("s_waitcnt vmcnt(0)")
    a("v_mov_b32 v8, 0")
    a("v_mov_b32 v9, 1")
    a("s_mov_b64 exec, 1")
    a(f"global_atomic_add v8, v9, s[{P_DBG}:{P_DBG+1}] sc1")
    a("s_mov_b64 exec, -1")
    ts(1)
    ts.dump(8, 9)
    a("s_endpgm")
    a.label("L_h_pf")
    a("v_lshlrev_b32 v2, 4, v0")
    a(f"s_lshl_b32 s11, s{S_W4}, 10")
    a("v_add_u32 v2, s11, v2")
    if cfg.cpf == 1:
        a("s_getpc_b64 s[60:61]")
        a.label("L_pc")
        a(f"s_sub_u32 s60, s60, L_pc-{KNAME}")
        a("s_subb_u32 s61, s61, 0")
        a("s_lshl_b32 s11, s73, 12")
        a("v_add_u32 v3, s11, v2")
        for k in range(2):
            a(f"v_min_u32 v4, L_exit-{KNAME}-12, v3")
            a(f"global_load_dwordx4 v[24:27], v4, s[60:61]")
            a(f"v_add_u32 v3, 16384, v3")
    a("s_waitcnt lgkmcnt(0)")
    if cfg.hdelay == 1: a("s_waitcnt vmcnt(0)")
    if cfg.hdelay >= 2: a("s_barrier")
    srd(a, SRD_WS, P_WS, WS_SIZE)
    if cfg.hpf:
        for (ptr, nbytes, srdn) in ((P_CRE, 448 * 896, 48), (P_CIM, 448 * 896, 52), (P_WD, 1792 * 896, 56)):
            srd(a, srdn, ptr, nbytes)
        def sweep(name, srds, qbytes, first, count):
            n8 = -(-qbytes // (8 * 4096))
            n = 8 * n8
            a(f"s_mul_i32 s12, s73, {qbytes}")
            a(f"s_add_u32 s13, s{S_XCD}, {first}")
            a("s_and_b32 s13, s13, 7")
            a(f"s_mul_i32 s13, s13, {n8}")
            a("s_mov_b32 s14, 0")
            a.label(name)
            a("s_lshl_b32 s11, s13, 12")
            a("s_add_u32 s11, s11, s12")
            for k, sr in enumerate(srds):
                a(f"buffer_load_dwordx4 v[{16+4*k}:{19+4*k}], v2, s[{sr}:{sr+3}], s11 offen")
            a("s_add_u32 s13, s13, 1")
            a(f"s_cmp_eq_u32 s13, {n}")
            a("s_cselect_b32 s13, 0, s13")
            a("s_add_u32 s14, s14, 1")
            a(f"s_cmp_lt_u32 s14, {n8 * count}")
            a(f"s_cbranch_scc1 {name}")
        if cfg.hpf == 4:
            sweep("L_h_p0", [48, 52], 448 * 896 // 4, 0, 8)
        else:
            sweep("L_h_p1", [48, 52], 448 * 896 // 4, 0, 1)
            sweep("L_h_p2", [56], 1792 * 896 // 4, 0, 1)
        ts(2)
        if cfg.hpf == 3:
            sweep("L_h_p3", [48, 52], 448 * 896 // 4, 1, 7)
            ts(3)
    ts.dump(8, 9)
    a("s_endpgm")

def spin_check(a, name, load_text_list, cond_fn, sleep=1):
    lo, done = a.newlabel(name + "_spin"), a.newlabel(name + "_ok")
    a(f"s_mov_b32 s73, 0")
    a.label(lo)
    cond_fn()
    a(f"s_cbranch_scc1 {done}")
    a("s_add_u32 s73, s73, 1")
    a(f"s_cmp_ge_u32 s73, {SPIN_MAX}")
    a(f"s_cbranch_scc1 {done}")
    a(f"s_sleep {sleep}")
    for t in load_text_list: a(t)
    a("s_waitcnt vmcnt(0)")
    a(f"s_branch {lo}")
    a.label(done)
    a("s_nop 4")

def sspin(a, name, loads, cond_fn, sleep=1):
    lo, done = a.newlabel(name + "_spin"), a.newlabel(name + "_ok")
    a("s_mov_b32 s73, 0")
    a.label(lo)
    for t in loads: a(t)
    a("s_waitcnt lgkmcnt(0)")
    cond_fn()
    a(f"s_cbranch_scc1 {done}")
    a("s_add_u32 s73, s73, 1")
    a(f"s_cmp_lt_u32 s73, {SPIN_MAX}")
    if sleep: a(f"s_sleep {sleep}")
    a(f"s_cbranch_scc1 {lo}")
    a.label(done)

def flag_index(a, d, t, grp):
    a(f"s_mul_i32 s{t}, s{S_NS}, 37")
    a(f"s_lshr_b32 s{t}, s{t}, {8 if grp == 7 else 9}")
    a(f"s_mul_i32 s{t}, s{t}, {32 - grp}")
    a(f"s_add_u32 s{d}, s{t}, s{S_NS}")
    a(f"s_lshl_b32 s{d}, s{d}, 2")

def interleave(a, prim, fill, per):
    fill = list(fill)
    for p in prim:
        p()
        for _ in range(per):
            if fill: a(fill.pop(0))
    for f in fill: a(f)

def p2_rot(a, cfg, d_ffn, d_blk, d_flip):
    if not cfg.rot:
        for d in (d_ffn, d_blk, d_flip): a(f"s_mov_b32 s{d}, 0")
        return
    tab = {2: [0] * 7, 1: list(range(7)), 3: [0, 3, 0, 3, 0, 3, 0], 4: [0, 2, 5, 0, 2, 5, 0], 5: [0, 4, 2, 5, 0, 4, 2], 6: [0, 1, 0, 1, 0, 1, 0], 7: [0, 2, 0, 2, 0, 2, 0]}[cfg.rot]
    word = sum(v << (4 * k) for k, v in enumerate(tab))
    a(f"s_lshl_b32 s11, s{S_NT}, 2")
    a(f"s_lshr_b32 s13, {word:#x}, s11")
    a("s_and_b32 s13, s13, 15")
    a(f"s_and_b32 s11, s{S_SLOT}, 3")
    a("s_lshl_b32 s11, s11, 1")
    a("s_add_u32 s11, s11, s13")
    a("s_cmp_ge_u32 s11, 7")
    a("s_cselect_b32 s13, 7, 0")
    a(f"s_sub_u32 s{d_ffn}, s11, s13")
    for d in (d_blk, d_flip): a(f"s_mov_b32 s{d}, 0")

def slot(reg, n): return R[reg] + 2048 * n
SA = [slot(1, n) for n in range(6)]; SB = [slot(2, n) for n in range(6)]; SC = [slot(0, n) for n in range(6)]
WSLOT = {}
for n in range(6): WSLOT[n] = SA[n]; WSLOT[6 + n] = SB[n]
for n in range(4): WSLOT[12 + n] = SC[n]; WSLOT[16 + n] = SA[n]; WSLOT[20 + n] = SB[n]
WSLOT.update({24: SA[4], 25: SA[5], 26: SB[4], 27: SB[5]})
HTS = SC[4]
PH1, PH2, GA, FXA, SD = SC[0], SC[4], SB[0], SA[0], SC[0]

class Rec:
    def __init__(self): self.L = []
    def __call__(self, t): self.L.append(t)

def ssm_park(kc, K, KP, sQ):
    LR, LI, CR, CI, L16R, L16I, PWR, PWI, L64R, L64I, LWR, LWI, W0R = [KP + k for k in range(13)]
    vTW, vTR, vCB = KP + 16, KP + 17, KP + 18
    ssm_const_calc(kc, K, LR, LI, CR, CI)
    csq(kc, L16R, L16I, LR, LI, K)
    for _ in range(3): csq(kc, L16R, L16I, L16R, L16I, K)
    def powsel(dr, di, br, bi, bit, src):
        cmul(kc, K + 1, K + 2, dr, di, br, bi)
        kc(f"v_and_b32 v{K}, {bit}, v{src}")
        kc(f"v_cmp_ne_u32 vcc, 0, v{K}")
        kc(f"v_cndmask_b32 v{dr}, v{dr}, v{K+1}, vcc")
        kc(f"v_cndmask_b32 v{di}, v{di}, v{K+2}, vcc")
    kc(f"v_mov_b32 v{PWR}, v{CR}"); kc(f"v_mov_b32 v{PWI}, v{CI}")
    powsel(PWR, PWI, L16R, L16I, 32, 0)
    csq(kc, K + 14, K + 15, L16R, L16I, K)
    powsel(PWR, PWI, K + 14, K + 15, 16, 0)
    csq(kc, L64R, L64I, K + 14, K + 15, K)
    kc(f"v_mov_b32 v{K+10}, s{S_W4}")
    kc(f"v_mov_b32 v{LWR}, 1.0"); kc(f"v_mov_b32 v{LWI}, 0")
    powsel(LWR, LWI, L64R, L64I, 1, K + 10)
    csq(kc, K + 14, K + 15, L64R, L64I, K)
    powsel(LWR, LWI, K + 14, K + 15, 2, K + 10)
    csq(kc, K + 14, K + 15, K + 14, K + 15, K)
    kc(f"v_lshrrev_b32 v{K+10}, 4, v0")
    kc(f"v_sub_u32 v{K+10}, s{S_MT}, v{K+10}")
    kc(f"v_add_u32 v{K+11}, -5, v{K+10}")
    kc(f"v_add_u32 v{K+10}, -1, v{K+10}")
    kc(f"v_mov_b32 v{W0R}, 1.0"); kc(f"v_mov_b32 v{W0R+1}, 0")
    kc(f"v_mov_b32 v{W0R+2}, 1.0"); kc(f"v_mov_b32 v{W0R+3}, 0")
    for b in range(3):
        powsel(W0R, W0R + 1, K + 14, K + 15, 1 << b, K + 10)
        if b < 2: powsel(W0R + 2, W0R + 3, K + 14, K + 15, 1 << b, K + 11)
        if b < 2: csq(kc, K + 14, K + 15, K + 14, K + 15, K)
    kc(f"s_add_u32 s36, s{sQ}, {HTS}")
    kc(f"v_bfe_u32 v{K}, v0, 4, 1")
    kc(f"v_lshrrev_b32 v{K+1}, 5, v0")
    kc(f"v_lshl_add_u32 v{K+2}, v{K}, 1, v{K+1}")
    kc(f"v_and_b32 v{K+3}, 15, v0")
    kc(f"v_and_b32 v{vTW}, 6, v{K+3}")
    kc(f"v_lshlrev_b32 v{vTW}, 4, v{vTW}")
    kc(f"v_lshlrev_b32 v{K+4}, 5, v{K+2}")
    kc(f"v_xor_b32 v{vTW}, v{vTW}, v{K+4}")
    kc(f"v_lshl_add_u32 v{vTW}, v{K+3}, 7, v{vTW}")
    kc(f"v_add_u32 v{vTW}, s36, v{vTW}")
    kc(f"v_lshlrev_b32 v{vCB}, 2, v{K+3}")
    kc(f"v_add_u32 v{vCB}, {C_L + 512}, v{vCB}")
    kc(f"v_bfe_u32 v{K+4}, v0, 2, 2")
    kc(f"v_lshl_add_u32 v{K+5}, v{K+1}, 3, v{K+4}")
    kc(f"v_lshlrev_b32 v{vTR}, 7, v{K+5}")
    kc(f"v_lshrrev_b32 v{K+4}, 1, v{K+4}")
    kc(f"v_xor_b32 v{K+4}, v{K+4}, v0")
    kc(f"v_and_b32 v{K+4}, 1, v{K+4}")
    kc(f"v_lshl_add_u32 v{vTR}, v{K+4}, 5, v{vTR}")
    kc(f"v_lshl_add_u32 v{vTR}, v{K}, 4, v{vTR}")
    kc(f"v_bfe_u32 v{K+4}, v0, 1, 1")
    kc(f"v_lshl_add_u32 v{vTR}, v{K+4}, 3, v{vTR}")
    kc(f"v_add_u32 v{vTR}, s36, v{vTR}")
    kc(f"s_lshl_b32 s36, s{S_W4}, 9")
    kc(f"s_add_u32 s36, s36, {STATS_L}")
    kc(f"v_lshl_add_u32 v{KP+19}, v{K+2}, 7, s36")
    vStS = KP + 19
    vAg, vPr, vF = KP + 20, KP + 21, KP + 22
    kc(f"v_lshlrev_b32 v{vAg}, 3, v{K+3}")
    kc(f"v_lshrrev_b32 v{vPr}, 4, v0")
    kc(f"v_mul_u32_u24 v{vPr}, 3584, v{vPr}")
    kc(f"s_lshl_b32 s36, s{S_NS}, 7")
    kc(f"v_add3_u32 v{vPr}, v{vPr}, v{vAg}, s36")
    kc(f"v_add_u32 v{vAg}, {AGG_L}, v{vAg}")
    kc(f"s_lshl_b32 s36, s{S_MT}, 2")
    kc(f"s_add_u32 s36, s36, s{S_W4}")
    kc("s_lshl_b32 s36, s36, 10")
    flag_index(kc, 37, 38, 14)
    kc("s_add_u32 s36, s36, s37")
    kc(f"s_add_u32 s36, s36, {WS_FLAG + 512:#x}")
    kc(f"v_mov_b32 v{vF}, s36")

def gen_loader(a, cfg, ts):
    a.label("L_loader")
    a("s_setprio 3")
    vm = VM(a)
    vXe, vXo, vW, vB = 1, 2, 3, 4
    vFv, vP, vO, vPQ = 5, 6, 7, 8
    vWd, vCe, vCo, vCh = 9, 10, 11, 12
    vRf, vRh = 13, 14
    vA, vC = 24, 25
    vT = 15
    ACC, CA, RD = 27, 28, 44
    STG = 64
    CF = 144
    SACC = 80
    XRAW = CF + 64
    KP = XRAW + 8
    sGrp = [28, 29, 30, 31, 36, 37, 21]
    SP = ['', ' sc1'][cfg.spol]
    sMX, sMW, sMB, sMP = 72, 74, 75, 70
    sPerm, sSX, sSW = 68, 69, 15
    sRF = 14
    AP = ['', ' sc1', ' sc1 nt', ' sc0 sc1', ' sc0', ' nt'][cfg.apol]
    OP = ['', ' sc1', ' nt', ' sc1 nt'][cfg.opol]
    polx = " nt" if cfg.polx else ""
    polw = " nt" if cfg.polw else ""
    a(f"v_lshrrev_b32 v{vA}, 3, v0")
    a(f"v_and_b32 v{vC}, 7, v0")
    a(f"v_lshrrev_b32 v{vT+2}, 1, v{vA}")
    a(f"s_lshl_b32 s11, s{S_W4}, 4")
    a(f"v_add_u32 v{vT}, s11, v{vA}")
    a(f"v_mul_u32_u24 v{vW}, 3584, v{vT}")
    a(f"v_and_b32 v{vT+4}, 1, v{vT+2}")
    a(f"v_lshlrev_b32 v{vT+4}, 2, v{vT+4}")
    a(f"v_xor_b32 v{vT+4}, v{vC}, v{vT+4}")
    a(f"v_lshl_add_u32 v{vW}, v{vT+4}, 4, v{vW}")
    a(f"s_lshl_b32 s11, s{S_NS}, 7")
    a(f"v_add_u32 v{vW}, s11, v{vW}")
    a(f"s_lshl_b32 s11, s{S_MT}, 8")
    a(f"s_lshl_b32 s12, s{S_W4}, 6")
    a("s_add_u32 s11, s11, s12")
    a(f"v_lshrrev_b32 v{vT}, 2, v{vA}")
    a(f"v_and_b32 v{vT+1}, 3, v{vA}")
    a(f"v_lshl_add_u32 v{vT}, v{vT}, 4, v{vT+1}")
    a(f"v_add_u32 v{vT}, s11, v{vT}")
    a(f"v_mul_u32_u24 v{vXe}, 896, v{vT}")
    a(f"v_xor_b32 v{vT+3}, v{vC}, v{vT+2}")
    a(f"v_lshl_add_u32 v{vXe}, v{vT+3}, 4, v{vXe}")
    a(f"v_xor_b32 v{vXo}, 64, v{vXe}")
    a(f"s_and_b32 s12, s{S_W4}, 1")
    a(f"s_lshl_b32 s11, s{S_NS}, 4")
    a(f"s_lshl_b32 s13, s12, 3")
    a("s_add_u32 s11, s11, s13")
    a(f"v_add_u32 v{vT}, s11, v{vA}")
    a(f"v_mul_u32_u24 v{vB}, 896, v{vT}")
    a(f"v_lshl_add_u32 v{vB}, v{vT+3}, 4, v{vB}")
    a("s_lshl_b32 s13, s12, 6")
    a(f"v_xor_b32 v{vB}, s13, v{vB}")
    a(f"s_lshl_b32 s{sMX}, s{S_W4}, 13")
    a(f"s_lshl_b32 s{sMW}, s{S_W4}, 11")
    a(f"s_lshl_b32 s{sMB}, s{S_W4}, 10")
    a(f"s_mul_i32 s{sMP}, s{S_W4}, {Q}")
    perms = cfg.perms
    words = [sum(p[k] << (4 * k) for k in range(7)) for p in perms]
    ng = len(words)
    a(f"s_mov_b32 s{sPerm}, {words[0]:#x}")
    if ng > 1:
        if cfg.slab:
            a(f"s_add_u32 s11, s{S_SLOT}, s{S_XCD}")
        else:
            a(f"s_and_b32 s11, s{S_SLOT}, 3")
            a(f"s_add_u32 s11, s11, s{S_NT}")
        if ng == 3:
            a("s_mul_i32 s13, s11, 43")
            a("s_lshr_b32 s13, s13, 7")
            a("s_mul_i32 s13, s13, 3")
            a("s_sub_u32 s11, s11, s13")
        else:
            a(f"s_and_b32 s11, s11, {ng-1}")
        for g in range(1, ng):
            a(f"s_cmp_eq_u32 s11, {g}")
            a(f"s_cmov_b32 s{sPerm}, {words[g]:#x}")
    ts.x(1, 1)
    a("s_waitcnt lgkmcnt(0)")
    ts.x(1, 2)
    if cfg.tlb:
        a(f"v_mov_b32 v40, s{P_X}")
        a(f"v_mov_b32 v41, s{P_X+1}")
        for ln, p in enumerate([P_WG, P_WU, P_BRE, P_BIM, P_WD, P_CRE, P_CIM, P_WS][:cfg.tlb], 1):
            a(f"v_writelane_b32 v40, s{p}, {ln}")
            a(f"v_writelane_b32 v41, s{p+1}, {ln}")
        a(f"s_mov_b64 exec, {(1 << (cfg.tlb + 1)) - 1:#x}")
        a("global_load_dword v62, v[40:41], off")
        a("s_mov_b64 exec, -1")
    srd(a, SRD_A, P_WG, 448 * 3584)
    srd(a, SRD_X, P_X, 2048 * 896)
    srd(a, SRD_B, P_WU, 448 * 3584)
    a(f"s_cmp_ge_u32 s{S_W4}, 2")
    srd_sel(a, SRD_C, P_BIM, P_BRE, 448 * 896)

    thr = [None]
    def dma(vm, tag, voff, srdn, sbase, soff, m0base, m0off, pol=""):
        a(f"s_add_u32 m0, s{m0base}, {m0off}")
        a(f"s_add_u32 s11, s{sbase}, {soff}")
        if thr[0] is not None and len(vm.q) > thr[0]:
            a(f"s_waitcnt vmcnt({thr[0]})")
            vm.q = vm.q[-thr[0]:]
        vm.issue(tag, f"buffer_load_dwordx4 v{voff}, s[{srdn}:{srdn+3}], s11 offen{pol} lds")
    def issue_ops(s):
        r = R[s % 3]
        ops = []
        def pre():
            a(f"s_bfe_u32 s{sSX}, s{sPerm}, {(4 << 16) | (4 * s):#x}")
            a(f"s_mul_i32 s{sSW}, s{sSX}, {64*3584}")
            a(f"s_lshl_b32 s{sSX}, s{sSX}, 7")
        def mk(*args): return lambda: dma(vm, ('st', s), *args)
        L = []
        for i in range(2): L.append(mk(vW, SRD_A, sSW, i * 8 * 3584, sMW, r + OFF_WG + i * 1024, polw))
        for j in range(4): L.append(mk(vXo if j & 1 else vXe, SRD_X, sSX, (32 * (j >> 2) + 4 * (j & 3)) * 896, sMX, r + j * 1024, polx))
        for i in range(2): L.append(mk(vW, SRD_B, sSW, i * 8 * 3584, sMW, r + OFF_WU + i * 1024, polw))
        for j in range(4, 8): L.append(mk(vXo if j & 1 else vXe, SRD_X, sSX, (32 * (j >> 2) + 4 * (j & 3)) * 896, sMX, r + j * 1024, polx))
        L.append(mk(vB, SRD_C, sSX, 0, sMB, r + OFF_BB, polw))
        first = L[0]
        L[0] = lambda: (pre(), first())
        return L
    SRD_WD, SRD_CC, sBlk, sFlip, P_DSK2 = 32, 24, 16, 17, 38
    def w_ops(ps):
        L = []
        for p in ps:
            for n in range(2):
                def op(p=p, n=n):
                    if 12 <= p < 22:
                        d = STG + (p - 12) * 8 + 4 * n
                        a(f"s_add_u32 s11, s{sGrp[p//4]}, {((p % 4) * 16 + 8 * n) * 896}")
                        vm.issue(('w', p), f"buffer_load_dwordx4 v[{d}:{d+3}], v{vWd}, s[{SRD_WD}:{SRD_WD+3}], s11 offen")
                    else:
                        dma(vm, ('w', p), vWd, SRD_WD, sGrp[p//4], ((p % 4) * 16 + 8 * n) * 896, sMP, WSLOT[p] + n * 1024)
                L.append(op)
        return L
    sCL = [16, 17]
    def craw(b): return CF + 32 * b if b != 2 else 112
    def c_ops(b):
        L = []
        nn = 4 if b < 3 else 2
        for lc in range(2):
            for n in range(nn):
                def op(lc=lc, n=n):
                    d = craw(b) + 4 * nn * lc + 4 * n
                    if b < 3: voff, so = (vCo if n & 1 else vCe), 8 * n * 896 + 128 * b
                    else: voff, so = vCh, 16 * n * 896
                    a(f"s_add_u32 s11, s{sCL[lc]}, {so}")
                    vm.issue(('c', b), f"buffer_load_dwordx4 v[{d}:{d+3}], v{voff}, s[{SRD_CC}:{SRD_CC+3}], s11 offen")
                L.append(op)
        return L
    def cfrag(p, lc):
        return CF + 32 * (p // 4) + 16 * lc + 4 * (p % 4) if p < 12 else CF + 96 + 8 * lc + 4 * (p - 12)
    def c_bounce(b, vW_, vR4):
        vm.wait(('c', b))
        nn = 4 if b < 3 else 2
        for lc in range(2):
            for n in range(nn):
                d = craw(b) + 4 * nn * lc + 4 * n
                a(f"ds_write_b128 v{vW_}, v[{d}:{d+3}] offset:{1024*n}")
            for ks in range(nn):
                d = cfrag(4 * b + ks, lc)
                if b < 3: a(f"ds_read_b128 v[{d}:{d+3}], v{vR4[ks]}")
                else: a(f"ds_read_b128 v[{d}:{d+3}], v{vRh} offset:{32*ks}")
    def w_write(ps):
        vm.wait(('w', ps[-1]))
        base = WSLOT[ps[0]]
        a(f"v_add_u32 v{vT+4}, {base}, v{vPQ}")
        for p in ps:
            for n in range(2):
                d = STG + (p - 12) * 8 + 4 * n
                a(f"ds_write_b128 v{vT+4}, v[{d}:{d+3}] offset:{WSLOT[p] - base + 1024*n}")
    def colsum_reads(s):
        r = R[s % 3]
        a(f"s_add_u32 s11, s{sMW}, {r + OFF_WG}")
        a(f"v_add_u32 v{vT}, s11, v{vP}")
        a(f"s_add_u32 s11, s{sMB}, {r + OFF_BB}")
        a(f"v_add_u32 v{vT+1}, s11, v{vP}")
        a(f"ds_read_b128 v[{RD}:{RD+3}], v{vT}")
        a(f"ds_read_b128 v[{RD+4}:{RD+7}], v{vT} offset:1024")
        a(f"ds_read_b128 v[{RD+8}:{RD+11}], v{vT} offset:8192")
        a(f"ds_read_b128 v[{RD+12}:{RD+15}], v{vT} offset:9216")
        a(f"ds_read_b128 v[{RD+16}:{RD+19}], v{vT+1}")
    def colsum_ops():
        L = ["s_waitcnt lgkmcnt(0)"]
        for n in range(4):
            for d in range(4):
                w = RD + 4 * n + d
                ac = CA + (n >> 1) * 8 + 2 * d
                L.append(f"v_lshlrev_b32 v{vT+2}, 16, v{w}")
                L.append(f"v_and_b32 v{vT+3}, s71, v{w}")
                L.append(f"v_add_f32 v{ac}, v{ac}, v{vT+2}")
                L.append(f"v_add_f32 v{ac+1}, v{ac+1}, v{vT+3}")
        for d in range(4):
            w = RD + 16 + d
            L.append(f"v_lshlrev_b32 v{vT+2}, 16, v{w}")
            L.append(f"v_and_b32 v{vT+3}, s71, v{w}")
            L.append(f"v_add_f32 v{vT+2}, v{vT+2}, v{vT+3}")
            L.append(f"v_add_f32 v{ACC}, v{ACC}, v{vT+2}")
        return L

    stage_ops = {}
    cdone = set()
    def tok_ops(toks):
        L = []
        for t in toks:
            if t[0] == 's':
                st = int(t[1])
                if st not in stage_ops: stage_ops[st] = issue_ops(st)
                lo, hi = (0, 13) if ':' not in t else map(int, t.split(':')[1].split('-'))
                L += stage_ops[st][lo:hi]
            elif t[0] == 'w': L += w_ops([int(t[1:])])
            elif t[0] == 'c':
                lo, hi = (0, 8) if ':' not in t else map(int, t.split(':')[1].split('-'))
                L += c_ops(int(t[1]))[lo:hi]
                cdone.add(int(t[1]))
            else: L.append(lambda t=t: special(t))
        return L
    def run_tokens(toks):
        for o in tok_ops(toks): o()
    def special(t):
        if True:
            if t == 'put':
                vm.wait('stats')
                a(f"s_lshl_b32 s11, s{S_W4}, 9")
                a(f"s_add_u32 s11, s11, {STATS_L}")
                a(f"v_lshl_add_u32 v{vT+4}, v0, 3, s11")
                a(f"ds_write_b64 v{vT+4}, v[20:21]")
                a(f"v_lshlrev_b32 v{vT+4}, 3, v0")
                a(f"v_add_u32 v{vT+4}, {ST2_L}, v{vT+4}")
                a(f"ds_write_b64 v{vT+4}, v[22:23]")
            elif t == 'e':
                a(f"s_add_u32 s12, s41, {16*896}")
                vm.issue('e', f"buffer_load_dwordx4 v[{XRAW}:{XRAW+3}], v20, s[{SRD_X}:{SRD_X+3}], s41 offen")
                vm.issue('e', f"buffer_load_dwordx4 v[{XRAW+4}:{XRAW+7}], v20, s[{SRD_X}:{SRD_X+3}], s12 offen")
                vm.issue('e', f"global_load_ushort v{KP+23}, v21, s[{P_DSK2}:{P_DSK2+1}]")
            elif t == 'k':
                a("s_waitcnt lgkmcnt(0)")
            elif t == 'init':
                a(f"v_mov_b32 v26, 0")
                vm.issue('init', f"global_load_dword v5, v26, s[{P_DBG}:{P_DBG+1}] sc1")
            elif t == 'fetch':
                vm.wait('init')
                def cond():
                    a(f"v_readfirstlane_b32 s11, v5")
                    a(f"s_cmp_ge_u32 s11, {INIT_N}")
                spin_check(a, "L_init", [f"global_load_dword v5, v26, s[{P_DBG}:{P_DBG+1}] sc1"], cond, 8)
                a(f"s_lshl_b32 s11, s{S_MT}, 8")
                a(f"s_lshl_b32 s12, s{S_W4}, 6")
                a("s_add_u32 s11, s11, s12")
                a(f"v_add_lshl_u32 v5, v0, s11, 3")
                a(f"s_lshl_b32 s12, s{S_M64}, 6")
                a(f"v_add_lshl_u32 v26, v0, s12, 3")
                a(f"s_mov_b32 s11, {WS_STATS:#x}")
                vm.issue('stats', f"buffer_load_dwordx2 v[20:21], v5, s[{SRD_WS}:{SRD_WS+3}], s11 offen sc1")
                vm.issue('stats', f"buffer_load_dwordx2 v[22:23], v26, s[{SRD_WS}:{SRD_WS+3}], s11 offen sc1")
            else: raise ValueError(t)
    win = cfg.win
    run_tokens(["s0"])
    ts(1)
    ts.x(1, 6)
    run_tokens(win.get(-1, []))
    a("s_setprio 0")
    a(f"s_and_b32 s12, s{S_W4}, 1")
    a(f"v_lshlrev_b32 v{vP}, 4, v0")
    a(f"v_add_u32 v{vPQ}, s{sMP}, v{vP}")
    a(f"s_mul_i32 s14, s{S_W4}, 448")
    a(f"v_add_u32 v{vT}, s14, v{vA}")
    a(f"v_mul_u32_u24 v{vWd}, 896, v{vT}")
    a(f"v_lshl_add_u32 v{vWd}, v{vT+4}, 4, v{vWd}")
    a(f"s_lshl_b32 s14, s{S_NT}, 7")
    a(f"v_add_u32 v{vWd}, s14, v{vWd}")
    a(f"s_lshl_b32 s14, s{S_NT}, 6")
    a(f"v_add_u32 v{vT}, s14, v{vA}")
    a(f"v_mul_u32_u24 v{vCe}, 896, v{vT}")
    a(f"v_lshl_add_u32 v{vCe}, v{vT+3}, 4, v{vCe}")
    a("s_lshl_b32 s13, s12, 9")
    a(f"v_add_u32 v{vCe}, s13, v{vCe}")
    a(f"v_xor_b32 v{vCo}, 64, v{vCe}")
    a(f"v_lshrrev_b32 v{vT}, 2, v0")
    a(f"v_add_u32 v{vT}, s14, v{vT}")
    a(f"v_mul_u32_u24 v{vCh}, 896, v{vT}")
    a(f"v_and_b32 v{vT+1}, 3, v0")
    a(f"v_lshl_add_u32 v{vCh}, v{vT+1}, 4, v{vCh}")
    a("s_lshl_b32 s13, s12, 6")
    a("s_add_u32 s13, s13, 384")
    a(f"v_add_u32 v{vCh}, s13, v{vCh}")
    a("s_mov_b32 s71, 0xffff0000")
    for k in range(17): a(f"v_mov_b32 v{ACC+k}, 0")
    srd(a, SRD_WS, P_WS, WS_SIZE)
    a(f"s_cmp_ge_u32 s{S_W4}, 2")
    srd_sel(a, SRD_CC, P_CIM, P_CRE, 448 * 896)
    a(f"s_mov_b64 s[{P_DSK2}:{P_DSK2+1}], s[{P_DSK}:{P_DSK+1}]")
    srd(a, SRD_WD, P_WD, 1792 * 896)
    p2_rot(a, cfg, sRF, sBlk, sFlip)
    a(f"s_lshl_b32 s11, s{S_M64}, 1")
    a("s_add_u32 s40, s11, s12")
    a("s_lshl_b32 s12, s40, 5")
    a(f"v_lshrrev_b32 v{vT}, 2, v0")
    a(f"v_add_u32 v{vT}, s12, v{vT}")
    a(f"v_mul_u32_u24 v{vT}, 896, v{vT}")
    a(f"v_lshl_add_u32 v20, v{vT+1}, 4, v{vT}")
    a(f"v_lshrrev_b32 v{vT+2}, 5, v0")
    a(f"v_lshl_add_u32 v{vT}, v{vT+2}, 4, s12")
    a(f"s_lshr_b32 s13, s{S_W4}, 1")
    a("s_lshl_b32 s12, s13, 5")
    a(f"s_lshl_b32 s11, s{S_NT}, 6")
    a("s_add_u32 s11, s11, s12")
    a("s_lshl_b32 s41, s11, 1")
    a(f"v_and_b32 v{vT+3}, 31, v0")
    a(f"v_add_u32 v{vT+1}, s11, v{vT+3}")
    a(f"v_mul_u32_u24 v{vT}, 448, v{vT}")
    a(f"v_add_lshl_u32 v{vO}, v{vT}, v{vT+1}, 2")
    a(f"v_lshlrev_b32 v21, 1, v{vT+1}")
    a(f"v_bfe_u32 v{vT}, v0, 1, 3")
    a(f"v_xor_b32 v{vT}, v{vT}, v{vT+2}")
    a(f"v_lshlrev_b32 v{vT}, 4, v{vT}")
    a(f"v_lshl_add_u32 v{vRf}, v{vT+3}, 7, v{vT}")
    a(f"s_add_u32 s12, s{sMP}, {HTS}")
    a(f"v_add_u32 v{vRf}, s12, v{vRf}")
    a(f"v_lshlrev_b32 v{vT}, 4, v{vT+2}")
    a(f"v_lshl_add_u32 v{vRh}, v{vT+3}, 6, v{vT}")
    a(f"v_add_u32 v{vRh}, s12, v{vRh}")
    a(f"s_mul_i32 s{sCL[0]}, s13, {32*896}")
    a(f"s_sub_u32 s{sCL[1]}, {32*896}, s{sCL[0]}")
    a(f"v_bfe_u32 v{vT}, v0, 4, 1")
    a(f"v_lshlrev_b32 v{vT+1}, 2, v{vT}")
    a(f"v_xor_b32 v{vC}, v{vC}, v{vT+1}")
    a(f"v_lshlrev_b32 v{vC}, 5, v{vC}")
    a(f"v_lshl_add_u32 v{vC}, v{vT}, 9, v{vC}")
    a(f"v_lshl_add_u32 v{vC}, v{vT+2}, 8, v{vC}")
    a(f"s_add_u32 s11, s{sMB}, {CP_L}")
    a(f"v_add_u32 v{vC}, s11, v{vC}")
    a(f"s_lshl_b32 s11, s{S_W4}, 5")
    a(f"s_add_u32 s11, s11, {C_L + 512}")
    a(f"v_lshl_add_u32 v{vA}, v{vA}, 2, s11")
    ts.x(1, 8)
    LR, LI, CR, CI, L16R, L16I, PWR, PWI, L64R, L64I, LWR, LWI, W0R = [KP + k for k in range(13)]
    vTW, vTR, vCB, vStS, vAg, vPr, vF = [KP + k for k in range(16, 23)]
    a(f"s_lshl_b32 s21, s{S_NS}, 7")
    a(f"s_mul_i32 s22, s{S_MT}, 3584")
    a("s_add_u32 s22, s22, s21")
    a(f"s_add_u32 s22, s22, {WS_AGG - AGG_L:#x}")
    a(f"s_mov_b32 s23, {WS_AGG:#x}")
    a(f"s_mov_b32 s20, {WS_AGG + 4*3584:#x}")
    a(f"s_lshl_b32 s18, s{S_M64}, 10")
    a(f"s_and_b32 s11, s{S_W4}, 1")
    a("s_lshl_b32 s11, s11, 7")
    a("s_add_u32 s18, s18, s11")
    a(f"s_add_u32 s18, s18, {WS_FLAG + 512:#x}")
    a(f"s_lshl_b32 s11, s{S_MT}, 2")
    a(f"s_add_u32 s11, s11, s{S_W4}")
    a(f"s_mul_i32 s19, s11, {2*RT_BYTES}")
    a(f"s_lshl_b32 s11, s{S_NS}, 10")
    a("s_add_u32 s19, s19, s11")
    a(f"s_add_u32 s19, s19, {56*1024}")
    for g in range(7):
        a(f"s_add_u32 s12, s{sRF}, {g}")
        a("s_cmp_ge_u32 s12, 7")
        a("s_cselect_b32 s13, 7, 0")
        a("s_sub_u32 s12, s12, s13")
        a(f"s_mul_i32 s{sGrp[g]}, s12, {64*896}")
    a(f"s_add_u32 s11, s{sMX}, {R[2]}")
    a(f"v_add_u32 v{vT+4}, s11, v{vP}")
    kparts = {}
    if cfg.wprio: a(f"s_setprio {cfg.wprio}")
    for s in range(7):
        vm.wait(('st', s))
        ts.x(2, 1 + s)
        a("s_barrier")
        ts.x(3, 1 + s)
        if s == 0: ts(2)
        if s == 0:
            for k in range(6): a(f"ds_read_b128 v[{KP+4*k}:{KP+4*k+3}], v{vT+4} offset:{1024*k}")
        if s == 6:
            QQ = 28
            for p in range(8): a(f"ds_read_b32 v{QQ+p}, v{vT+1} offset:{512*p}")
            a("s_waitcnt lgkmcnt(0)")
            for p in range(4): a(f"v_add_f32 v{QQ+p}, v{QQ+p}, v{QQ+4+p}")
            a(f"v_add_f32 v{QQ}, v{QQ}, v{QQ+2}")
            a(f"v_add_f32 v{QQ+1}, v{QQ+1}, v{QQ+3}")
            a(f"v_add_f32 v{QQ}, v{QQ}, v{QQ+1}")
            a(f"ds_write_b32 v{vT}, v{QQ}")
            pre = tok_ops(win[6][:2])
            for o in pre: o()
            a("s_waitcnt lgkmcnt(0)")
            a("s_barrier")
            a("s_setprio 0")
            run_tokens(win[6][2:])
            continue
        segs = [[None, []]]
        for t in win.get(s, []):
            if t.startswith("cs"): segs.append([int(t[2:]), []])
            else: segs[-1][1].append(t)
        for cs, toks in segs:
            fl = []
            if cs is not None:
                vm.wait(('st', cs))
                colsum_reads(cs)
                fl = colsum_ops()
            if cs == 6:
                b = ACC
                for k in range(8): fl.append(f"v_permlane32_swap_b32 v{CA+k}, v{CA+8+k}")
                fl.append(f"v_add_f32_dpp v{b}, v{b}, v{b} quad_perm:[1,0,3,2] row_mask:0xf bank_mask:0xf")
                for k in range(8): fl.append(f"v_add_f32 v{CA+k}, v{CA+k}, v{CA+8+k}")
                fl.append(f"v_add_f32_dpp v{b}, v{b}, v{b} quad_perm:[2,3,0,1] row_mask:0xf bank_mask:0xf")
                for k in range(8): fl.append(f"v_add_f32_dpp v{CA+k}, v{CA+k}, v{CA+k} row_ror:8 row_mask:0xf bank_mask:0xf")
                fl.append(f"v_add_f32_dpp v{b}, v{b}, v{b} row_half_mirror row_mask:0xf bank_mask:0xf")
                fl.append(f"ds_write_b128 v{vC}, v[{CA}:{CA+3}]")
                fl.append(f"ds_write_b128 v{vC}, v[{CA+4}:{CA+7}] offset:16")
                fl.append(f"ds_write_b32 v{vA}, v{b}")
            ops = tok_ops(toks)
            per = max(1, -(-len(fl) // max(1, len(ops))))
            interleave(a, ops, fl, per)
        if s == 5:
            a(f"s_and_b32 s12, s{S_W4}, 1")
            a("s_lshl_b32 s12, s12, 8")
            a(f"v_lshl_add_u32 v{vT}, v0, 2, s12")
            a(f"v_add_u32 v{vT+1}, {CP_L}, v{vT}")
            a(f"v_add_u32 v{vT}, {C_L}, v{vT}")
            a("s_waitcnt lgkmcnt(0)")
            a("s_setprio 3")
    ts.x(2, 8)
    a("s_barrier")
    ts(3)
    ts.x(3, 8)
    a(f"v_add_u32 v{vT+2}, {SD}, v{vPQ}")
    vm.wait(('w', 11), "lgkmcnt(0)")
    a("s_barrier")
    X, Y, ST = 32, 48, CF
    HR, HI, T1, T2, CBR, CBI, G0, G1, QR, QI = 20, 21, 22, 23, 24, 25, 26, 28, 30, 31
    for k in range(8): a(f"ds_read_b128 v[{X+4*k}:{X+4*k+3}], v{vT+2} offset:{1024*k}")
    a(f"ds_read_b32 v{CBR}, v{vCB}")
    a(f"ds_read_b32 v{CBI}, v{vCB} offset:64")
    for k in range(8): a(f"ds_read_b128 v[{ST+4*k}:{ST+4*k+3}], v{vStS} offset:{16*k}")
    a(f"s_setprio {cfg.eprio}")
    a(f"v_lshrrev_b32 v1, 4, v0")
    a(f"v_sub_u32 v1, s{S_MT}, v1")
    a(f"v_cmp_le_i32 s[56:57], 1, v1")
    a(f"v_cmp_le_i32 s[58:59], 5, v1")
    a(f"v_lshlrev_b32 v5, 16, v{KP+23}")
    a(f"v_mov_b32 v3, v{vF}")
    vF = 3
    a("s_waitcnt lgkmcnt(10)")
    for r in range(16): a(f"v_permlane16_swap_b32 v{X+r}, v{Y+r}")
    a("s_waitcnt lgkmcnt(0)")
    side = {}
    for r in range(16):
        if r in side: side[r]()
        m, rs = ST + 2 * r, ST + 2 * r + 1
        a(f"v_fma_f32 v{X+r}, -v{m}, v{CBR}, v{X+r}")
        a(f"v_fma_f32 v{Y+r}, -v{m}, v{CBI}, v{Y+r}")
        a(f"v_mul_f32 v{X+r}, v{X+r}, v{rs}")
        a(f"v_mul_f32 v{Y+r}, v{Y+r}, v{rs}")
        if r >= 1:
            pr, pi = (X, Y) if r == 1 else (HR, HI)
            a(f"v_fma_f32 v{T1}, -v{LI}, v{pi}, v{X+r}")
            a(f"v_fma_f32 v{T2}, v{LI}, v{pr}, v{Y+r}")
            a(f"v_fma_f32 v{HR}, v{LR}, v{pr}, v{T1}")
            a(f"v_fma_f32 v{HI}, v{LR}, v{pi}, v{T2}")
    z = CF
    a(f"v_mov_b32 v{z}, v{HR}"); a(f"v_mov_b32 v{z+1}, v{HI}")
    csq(a, z + 8, z + 9, L16R, L16I, z + 10)
    a(f"v_permlane32_swap_b32 v{HR}, v{z}")
    a(f"v_permlane32_swap_b32 v{HI}, v{z+1}")
    a(f"v_fma_f32 v{z}, -v{L16I}, v{HI}, v{z}")
    a(f"v_fma_f32 v{z+1}, v{L16I}, v{HR}, v{z+1}")
    a(f"v_fmac_f32 v{z}, v{L16R}, v{HR}")
    a(f"v_fmac_f32 v{z+1}, v{L16R}, v{HI}")
    a(f"v_mov_b32 v{z+2}, v{z}"); a(f"v_mov_b32 v{z+3}, v{z+1}")
    a(f"s_lshl_b32 s11, s{S_W4}, 7")
    a(f"v_add_u32 v{z+5}, s11, v{vAg}")
    a(f"v_permlane16_swap_b32 v{z}, v{z+2}")
    a(f"v_permlane16_swap_b32 v{z+1}, v{z+3}")
    a(f"v_fma_f32 v{z+2}, -v{z+9}, v{z+1}, v{z+2}")
    a(f"v_fma_f32 v{z+3}, v{z+9}, v{z}, v{z+3}")
    a(f"v_fmac_f32 v{z+2}, v{z+8}, v{z}")
    a(f"v_fmac_f32 v{z+3}, v{z+8}, v{z+1}")
    a(f"ds_write_b64 v{z+5}, v[{z+2}:{z+3}]")
    a("s_waitcnt lgkmcnt(0)")
    ts.x(2, 9)
    a(f"s_setprio {cfg.lprio}")
    a("s_barrier")
    ts(4)
    E = CF + 16
    for i in range(4): a(f"ds_read_b64 v[{E+2+2*i}:{E+3+2*i}], v{vAg} offset:{128*i}")
    a(f"v_mov_b32 v{E}, 0")
    a(f"v_mov_b32 v{E+1}, 0")
    a(f"v_and_b32 v{z+4}, 16, v0")
    a(f"v_cmp_ne_u32 s[12:13], 0, v{z+4}")
    for i in range(1, 4):
        e, p = E + 2 + 2 * i, E + 2 * i
        a(f"s_waitcnt lgkmcnt({3 - i})")
        a(f"v_fma_f32 v{e}, -v{L64I}, v{p+1}, v{e}")
        a(f"v_fma_f32 v{e+1}, v{L64I}, v{p}, v{e+1}")
        a(f"v_fmac_f32 v{e}, v{L64R}, v{p}")
        a(f"v_fmac_f32 v{e+1}, v{L64R}, v{p+1}")
    a(f"s_cmp_lg_u32 s{S_W4}, 0")
    a("s_cbranch_scc1 L_l_nopub")
    e = E + 8
    a(f"v_cmp_eq_u32 vcc, -1, v{e}")
    a(f"v_mov_b32 v{T1}, 0x7fc00000")
    a(f"v_cndmask_b32 v{e}, v{e}, v{T1}, vcc")
    a("s_mov_b64 exec, 0xffff")
    a(f"buffer_store_dwordx2 v[{e}:{e+1}], v{vAg}, s[{SRD_WS}:{SRD_WS+3}], s22 offen sc1")
    a("s_mov_b64 exec, -1")
    ts(5)
    a.label("L_l_nopub")
    a(f"v_cmp_lt_u32 vcc, 31, v0")
    a(f"v_cndmask_b32 v{z}, 0, v{z}, s[12:13]")
    a(f"v_cndmask_b32 v{z+1}, 0, v{z+1}, s[12:13]")
    a(f"v_fma_f32 v{HR}, -v{L16I}, v{z+1}, v{HR}")
    a(f"v_fma_f32 v{HI}, v{L16I}, v{z}, v{HI}")
    a(f"v_fmac_f32 v{HR}, v{L16R}, v{z}")
    a(f"v_fmac_f32 v{HI}, v{L16R}, v{z+1}")
    a(f"v_cndmask_b32 v{z}, v{z}, v{HR}, vcc")
    a(f"v_cndmask_b32 v{z+1}, v{z+1}, v{HI}, vcc")
    cmul(a, HR, HI, z, z + 1, CR, CI)
    a(f"s_bitcmp1_b32 s{S_W4}, 0")
    a("s_cselect_b64 vcc, -1, 0")
    a(f"v_cndmask_b32 v{QR}, v{E}, v{E+2}, vcc")
    a(f"v_cndmask_b32 v{QI}, v{E+1}, v{E+3}, vcc")
    a(f"v_cndmask_b32 v{T1}, v{E+4}, v{E+6}, vcc")
    a(f"v_cndmask_b32 v{T2}, v{E+5}, v{E+7}, vcc")
    a(f"s_bitcmp1_b32 s{S_W4}, 1")
    a("s_cselect_b64 vcc, -1, 0")
    a(f"v_cndmask_b32 v{QR}, v{QR}, v{T1}, vcc")
    a(f"v_cndmask_b32 v{QI}, v{QI}, v{T2}, vcc")
    ts.x(2, 10)
    thr[0] = cfg.thr
    lds = [f"buffer_load_dwordx2 v[{G0}:{G0+1}], v{vPr}, s[{SRD_WS}:{SRD_WS+3}], s23 offen sc1",
           f"buffer_load_dwordx2 v[{G1}:{G1+1}], v{vPr}, s[{SRD_WS}:{SRD_WS+3}], s20 offen sc1"]
    up = Rec()
    for r in range(16):
        up(f"v_mul_f32 v{T1}, v{CI}, v{Y+r}")
        up(f"v_mul_f32 v{T2}, v{CI}, v{X+r}")
        up(f"v_fma_f32 v{X+r}, v{CR}, v{X+r}, -v{T1}")
        up(f"v_fma_f32 v{Y+r}, v{CR}, v{Y+r}, v{T2}")
    vRd, vOne = 4, 2
    a(f"s_lshl_b32 s11, s{S_W4}, 2")
    a(f"s_add_u32 s11, s11, {CNT_L + 16}")
    a(f"v_mov_b32 v{vRd}, s11")
    a(f"v_mov_b32 v{vOne}, 1")
    thr[0] = None
    co = sum([c_ops(b) for b in (0, 1, 3) if b not in cdone], [])
    interleave(a, w_ops(range(22, 28)) + co[:cfg.c1], up.L, 4)
    w_write([12, 13, 14, 15])
    a(f"ds_write_b32 v{vRd}, v{vOne}")
    XV, STT, DS = 64, 80, 5
    TT = SACC + 32
    vHW = 1
    a(f"v_add_u32 v{vHW}, {HTS}, v{vPQ}")
    a(f"ds_write_b128 v{vHW}, v[{XRAW}:{XRAW+3}]")
    a(f"ds_write_b128 v{vHW}, v[{XRAW+4}:{XRAW+7}] offset:1024")
    a(f"v_lshrrev_b32 v{vT+3}, 5, v0")
    a(f"v_lshlrev_b32 v{vT+2}, 10, v{vT+3}")
    a(f"v_and_b32 v{vT}, 31, v0")
    a(f"v_lshl_add_u32 v{vT+2}, v{vT}, 1, v{vT+2}")
    a(f"s_add_u32 s11, s{sMP}, {HTS}")
    a(f"v_add_u32 v{vT+2}, s11, v{vT+2}")
    for r in range(16): a(f"ds_read_u16 v{XV+r}, v{vT+2} offset:{64*r}")
    for t in lds: vm.issue('ag', t)
    w_write([16, 17])
    def wrest():
        w_write([18, 19])
        w_write([20, 21])
        a(f"v_mov_b32 v{T1}, 3")
        vm.wait(('w', 27))
        a(f"ds_write_b32 v{vRd}, v{T1}")
    if not cfg.wl: wrest()
    co = co[cfg.c1:]
    c2o = [lambda: a("s_waitcnt lgkmcnt(0)")] + c_ops(2)
    if not cfg.wl: co = co + c2o
    ts(8)
    vm.wait('ag')
    def cond():
        a(f"v_cmp_eq_u32 vcc, -1, v{G0}")
        a("s_and_b64 s[48:49], vcc, s[56:57]")
        a(f"v_cmp_eq_u32 vcc, -1, v{G1}")
        a("s_and_b64 s[50:51], vcc, s[58:59]")
        a("s_or_b64 s[48:49], s[48:49], s[50:51]")
        a("s_cmp_eq_u64 s[48:49], 0")
    spin_check(a, "L_agg", lds, cond, 2)
    ts(6)
    SR, SI = CBR, CBI
    cmul(a, SR, SI, G0, G0 + 1, W0R, W0R + 1)
    cmul(a, T1, T2, G1, G1 + 1, W0R + 2, W0R + 3)
    a(f"v_cndmask_b32 v{SR}, 0, v{SR}, s[56:57]")
    a(f"v_cndmask_b32 v{SI}, 0, v{SI}, s[56:57]")
    a(f"v_cndmask_b32 v{T1}, 0, v{T1}, s[58:59]")
    a(f"v_cndmask_b32 v{T2}, 0, v{T2}, s[58:59]")
    a(f"v_add_f32 v{SR}, v{SR}, v{T1}")
    a(f"v_add_f32 v{SI}, v{SI}, v{T2}")
    for sw in ("v_permlane32_swap_b32", "v_permlane16_swap_b32"):
        a(f"v_mov_b32 v{T1}, v{SR}")
        a(f"v_mov_b32 v{T2}, v{SI}")
        a(f"{sw} v{SR}, v{T1}")
        a(f"{sw} v{SI}, v{T2}")
        a(f"v_add_f32 v{SR}, v{SR}, v{T1}")
        a(f"v_add_f32 v{SI}, v{SI}, v{T2}")
    a(f"v_fmac_f32 v{QR}, v{LWR}, v{SR}")
    a(f"v_fmac_f32 v{QI}, v{LWR}, v{SI}")
    a(f"v_fma_f32 v{QR}, -v{LWI}, v{SI}, v{QR}")
    a(f"v_fmac_f32 v{QI}, v{LWI}, v{SR}")
    a(f"v_fmac_f32 v{HR}, v{PWR}, v{QR}")
    a(f"v_fmac_f32 v{HI}, v{PWR}, v{QI}")
    a(f"v_fma_f32 v{HR}, -v{PWI}, v{QI}, v{HR}")
    a(f"v_fmac_f32 v{HI}, v{PWI}, v{QR}")
    pr, pi = HR, HI
    PK, HF = 96, 80
    rest = co[:cfg.c2]
    for r in range(16):
        if rest: rest.pop(0)()
        a(f"v_fma_f32 v{X+r}, -v{LI}, v{pi}, v{X+r}")
        a(f"v_fma_f32 v{Y+r}, v{LI}, v{pr}, v{Y+r}")
        a(f"v_fmac_f32 v{X+r}, v{LR}, v{pr}")
        a(f"v_fmac_f32 v{Y+r}, v{LR}, v{pi}")
        pr, pi = X + r, Y + r
    for k in range(8):
        a(f"v_cvt_pk_bf16_f32 v{PK+k}, v{X+2*k}, v{X+2*k+1}")
    a(f"ds_write_b128 v{vTW}, v[{PK}:{PK+3}]")
    a(f"ds_write_b128 v{vTW}, v[{PK+4}:{PK+7}] offset:16")
    for k in range(8):
        a(f"v_cvt_pk_bf16_f32 v{PK+8+k}, -v{Y+2*k}, -v{Y+2*k+1}")
    a(f"ds_write_b128 v{vTW}, v[{PK+8}:{PK+11}] offset:2048")
    a(f"ds_write_b128 v{vTW}, v[{PK+12}:{PK+15}] offset:2064")
    for q in range(2):
        for part in range(2):
            for j in range(2):
                d = HF + 8 * q + 4 * part + 2 * j
                a(f"ds_read_b64_tr_b16 v[{d}:{d+1}], v{vTR} offset:{(part*16 + 4*j)*128 + 64*(q ^ j)}")
    assert not rest
    a("s_waitcnt lgkmcnt(0)")
    for q in range(2):
        for part in range(2):
            d = HF + 8 * q + 4 * part
            a(f"s_add_u32 s11, s19, {q*RT_BYTES + part*HALF_BYTES}")
            vm.issue('hs', f"buffer_store_dwordx4 v[{d}:{d+3}], v{vP}, s[{SRD_WS}:{SRD_WS+3}], s11 offen{SP}")
    for o in co[cfg.c2:]: o()
    if cfg.wl:
        wrest()
        for o in c2o: o()
    vR4 = [vRf, vT, vT + 1, vT + 2]
    for ks in range(1, 4): a(f"v_xor_b32 v{vR4[ks]}, {32*ks}, v{vRf}")
    done = False
    for n, b in enumerate((1, 3, 0, 2)):
        late = ('c', b) in vm.q and 'hs' in vm.q and max(i for i, t in enumerate(vm.q) if t == ('c', b)) > vm.q.index('hs')
        if not done and (late or n >= cfg.f2b):
            vm.wait('hs')
            a("s_mov_b64 exec, 1")
            vm.issue('f', f"buffer_store_dword v{vOne}, v{vF}, s[{SRD_WS}:{SRD_WS+3}], 0 offen sc1")
            a("s_mov_b64 exec, -1")
            ts(7)
            a("s_setprio 0")
            done = True
        c_bounce(b, vHW, vR4)
    assert done
    a(f"s_and_b32 s11, s{S_W4}, 1")
    a("s_lshl_b32 s11, s11, 8")
    a(f"s_add_u32 s11, s11, {ST2_L}")
    a(f"v_lshl_add_u32 v{vT+3}, v{vT+3}, 7, s11")
    STT = 32
    for k in range(8): a(f"ds_read_b128 v[{STT+4*k}:{STT+4*k+3}], v{vT+3} offset:{16*k}")
    for r in range(16): a(f"v_lshlrev_b32 v{XV+r}, 16, v{XV+r}")
    a("s_waitcnt lgkmcnt(0)")
    a("s_setprio 0")
    def rnd_pair(r0, r1):
        a(f"v_cvt_pk_bf16_f32 v{r1}, v{r0}, v{r1}"); a(f"v_lshlrev_b32 v{r0}, 16, v{r1}"); a(f"v_and_b32 v{r1}, s71, v{r1}")
    for r in range(16): a(f"v_sub_f32 v{TT+r}, v{XV+r}, v{STT+2*r}")
    for k in range(8): rnd_pair(TT + 2 * k, TT + 2 * k + 1)
    for r in range(16): a(f"v_mul_f32 v{TT+r}, v{TT+r}, v{STT+2*r+1}")
    for k in range(8): rnd_pair(TT + 2 * k, TT + 2 * k + 1)
    for r in range(16): a(f"v_mul_f32 v{TT+r}, v{TT+r}, v{DS}")
    for k in range(8): rnd_pair(TT + 2 * k, TT + 2 * k + 1)
    def poll(name, off):
        def cond():
            for k in range(0, 12, 4): a(f"s_and_b64 s[{20+k}:{21+k}], s[{20+k}:{21+k}], s[{22+k}:{23+k}]")
            a("s_and_b64 s[20:21], s[20:21], s[24:25]")
            a("s_and_b64 s[28:29], s[28:29], s[32:33]")
            a("s_and_b64 s[20:21], s[20:21], s[28:29]")
            a("s_and_b32 s20, s20, s21")
            a("s_cmp_eq_u32 s20, 1")
        sspin(a, name, [f"s_load_dwordx16 s[20:35], s[{P_WS}:{P_WS+1}], s18 glc"], cond, cfg.psleep)
    a(f"s_mul_i32 s57, s40, {RT_BYTES}")
    a("s_xor_b32 s11, s40, 1")
    a(f"s_mul_i32 s56, s11, {RT_BYTES}")
    a(f"s_lshr_b32 s11, s{S_W4}, 1")
    a(f"s_mul_i32 s11, s11, {HALF_BYTES}")
    a(f"s_add_u32 s11, s11, {56*1024}")
    a("s_add_u32 s56, s56, s11")
    a("s_add_u32 s57, s57, s11")
    a(f"s_and_b32 s12, s{S_W4}, 1")
    a("s_lshl_b32 s13, s12, 14")
    for b in range(3): a(f"s_add_u32 s{52+b}, s13, {b*4096}")
    a("s_lshl_b32 s12, s12, 11")
    a(f"s_add_u32 s55, s12, {12*1024}")
    srd(a, 60, P_OUT, 2048 * 1792)
    vW1, vW2, vCn, vCv = 1, 2, 9, 10
    vR = [11, 12, 13, 14]
    a(f"v_add_u32 v{vW1}, {PH1}, v{vPQ}")
    a(f"v_add_u32 v{vW2}, {PH2}, v{vPQ}")
    a(f"v_mov_b32 v{vCn}, {CNT_L}")
    for (reg, xr, base) in ((vR[0], 1, PH1), (vR[1], 3, PH1 + 4096), (vR[2], 2, PH2)):
        a(f"s_xor_b32 s11, s{S_W4}, {xr}")
        a(f"s_mul_i32 s11, s11, {Q}")
        a(f"s_add_u32 s11, s11, {base}")
        a(f"v_add_u32 v{reg}, s11, v{vP}")
    a(f"v_add_u32 v{vR[3]}, {GA}, v{vPQ}")
    ts.x(2, 11)
    ts.x(7, 11)
    AR = list(range(16, 64, 4))
    NA = len(AR)
    def aload(n):
        lr, p = n // 14, n % 14
        if p % 4 == 0: a(f"s_add_u32 s58, s{56+lr}, s{52 + p//4}")
        d = AR[n % NA]
        vm.issue(('a', n), f"buffer_load_dwordx4 v[{d}:{d+3}], v{vP}, s[{SRD_WS}:{SRD_WS+3}], s58 offen offset:{(p%4)*1024}{AP}")
    def cnt_wait(name, off):
        a("s_mov_b32 s73, 0")
        a.label(name)
        a("s_waitcnt lgkmcnt(0)")
        a(f"v_readfirstlane_b32 s11, v{vCv}")
        a("s_cmp_ge_u32 s11, 4")
        a(f"s_cbranch_scc1 {name}ok")
        a("s_add_u32 s73, s73, 1")
        a(f"s_cmp_ge_u32 s73, {SPIN_MAX}")
        a(f"s_cbranch_scc1 {name}ok")
        a("s_sleep 1")
        a(f"ds_read_b32 v{vCv}, v{vCn} offset:{off}")
        a(f"s_branch {name}")
        a.label(name + "ok")
        a("s_nop 7")
    a(f"ds_read_b32 v{vCv}, v{vCn} offset:4")
    cnt_wait("L_l_c0", 4)
    poll("L_ps", 128)
    ts(9)
    if cfg.sprio: a(f"s_setprio {cfg.sprio}")
    ts.x(7, 1)
    for n in range(NA): aload(n)
    a("s_setprio 0")
    ts.x(7, 2)
    for n in range(28):
        lr, p = n // 14, n % 14
        vm.wait(('a', n))
        if n in (0, 7, 14, 21): ts.x(7, 3 + n // 7)
        d = AR[n % NA]
        for lc in (1, 0):
            acc = SACC + 32 * lr + 16 * lc
            c = "0" if (p == 0 and not (lr == 1 and lc == 0)) else f"v[{acc}:{acc+15}]"
            f = cfrag(p, lc)
            a(f"v_mfma_f32_32x32x16_bf16 v[{acc}:{acc+15}], v[{d}:{d+3}], v[{f}:{f+3}], {c}")
        if n + NA < 28: aload(n + NA)
        if 16 <= n < 24:
            k = n - 16
            a(f"ds_write_b128 v{vW1}, v[{SACC+4*k}:{SACC+4*k+3}] offset:{1024*k}")
    ts(10)
    ts.x(7, 7)
    ts.x(7, 8)
    for k in range(4):
        a(f"ds_write_b128 v{vW2}, v[{SACC+48+4*k}:{SACC+48+4*k+3}] offset:{1024*k}")
    a("s_waitcnt lgkmcnt(0)")
    ts.x(7, 9)
    a("s_barrier")
    ts(11)
    ts.x(7, 10)
    RX = CF
    for k in range(4):
        for w in range(4):
            a(f"ds_read_b128 v[{RX+16*w+4*k}:{RX+16*w+4*k+3}], v{vR[w]} offset:{1024*k}")
    for k in range(4):
        a(f"s_waitcnt lgkmcnt({12 - 4*k})")
        for r in range(4 * k, 4 * k + 4):
            a(f"v_add_f32 v{TT+r}, v{TT+r}, v{RX+r}")
            a(f"v_add_f32 v{RX+16+r}, v{RX+16+r}, v{RX+32+r}")
        for r in range(4 * k, 4 * k + 4):
            a(f"v_add_f32 v{TT+r}, v{TT+r}, v{RX+16+r}")
        for r in range(4 * k, 4 * k + 4):
            a(f"v_fma_f32 v{XV+r}, v{TT+r}, v{RX+48+r}, v{XV+r}")
            if r % 2 == 0: a(f"s_mov_b32 s11, {r*1792}")
            a(f"buffer_store_dword v{XV+r}, v{vO}, s[60:63], s11 offen offset:{(r%2)*1792}{OP}")
    if cfg.ts:
        a("s_waitcnt vmcnt(0)")
        ts(12)
    if cfg.padto:
        a.label("L_pad")
        a("s_memrealtime s[98:99]")
        a("s_waitcnt lgkmcnt(0)")
        a("s_sub_u32 s98, s98, s100")
        a(f"s_cmp_lt_u32 s98, {cfg.padto}")
        a("s_cbranch_scc1 L_pad")
    ts.dump(16, 17, 1)
    a("s_endpgm")

def gen_consumer(a, cfg, ts):
    a.label("L_consumer")
    SP = ["", " sc1"][cfg.spol]
    AP = ['', ' sc1', ' sc1 nt', ' sc0 sc1', ' sc0', ' nt'][cfg.apol]
    vm = VM(a)
    XA = [1, 2, 3, 4]; BA = [5, 6, 7, 8]; WA = [9, 10]
    vL16, vStF, vCL, vF, vFl, vSo, vCn, vRd, vWB, vPQ, vOne, MM = 11, 12, 13, 14, 15, 16, 17, 18, 19, 20, 21, 22
    FS = [40, 68]
    ACC = 96
    def G(ft, q): return ACC + 16 * (2 * ft + q)
    def U(ft, q): return ACC + 64 + 16 * (2 * ft + q)
    def S(q): return ACC + 128 + 16 * q
    vI, vH, t0, t1, t2 = 24, 25, 26, 27, 28
    a(f"v_and_b32 v{vI}, 31, v0")
    a(f"v_lshrrev_b32 v{vH}, 5, v0")
    a(f"v_bfe_u32 v{t0}, v0, 1, 3")
    a(f"v_xor_b32 v{t0}, v{t0}, v{vH}")
    a(f"v_lshlrev_b32 v{t0}, 4, v{t0}")
    a(f"v_lshl_add_u32 v{t0}, v{vI}, 7, v{t0}")
    a(f"s_lshl_b32 s11, s{S_W4}, 13")
    for ks in range(4):
        a(f"v_xor_b32 v{t1}, {32*ks}, v{t0}")
        a(f"v_add_u32 v{XA[ks]}, s11, v{t1}")
        a(f"v_add_u32 v{BA[ks]}, {OFF_BB}, v{t1}")
    a(f"v_bfe_u32 v{t0}, v0, 2, 2")
    a(f"v_lshlrev_b32 v{t1}, 7, v{t0}")
    a(f"v_lshrrev_b32 v{t0}, 1, v{t0}")
    a(f"v_lshl_add_u32 v{t1}, v{t0}, 6, v{t1}")
    a(f"v_bfe_u32 v{t0}, v0, 4, 1")
    a(f"v_lshl_add_u32 v{t1}, v{t0}, 5, v{t1}")
    a(f"v_and_b32 v{t2}, 3, v0")
    a(f"v_lshl_add_u32 v{t1}, v{t2}, 3, v{t1}")
    a(f"v_lshl_add_u32 v{WA[0]}, v{vH}, 10, v{t1}")
    a(f"v_add_u32 v{WA[0]}, {OFF_WG}, v{WA[0]}")
    a(f"v_xor_b32 v{WA[1]}, 64, v{WA[0]}")
    a(f"s_mul_i32 s62, s{S_W4}, {Q}")
    a(f"s_lshr_b32 s59, s{S_W4}, 1")
    a(f"s_and_b32 s63, s{S_W4}, 1")
    a("s_lshl_b32 s11, s59, 6")
    a(f"v_lshl_add_u32 v{vWB}, v{vH}, 9, v{t1}")
    a(f"v_xor_b32 v{vWB}, s11, v{vWB}")
    a(f"v_add_u32 v{vWB}, s62, v{vWB}")
    a("s_waitcnt lgkmcnt(0)")
    a(f"s_lshl_b32 s11, s{S_NS}, 5")
    a(f"s_load_dwordx8 s[32:39], s[{P_LRE}:{P_LRE+1}], s11")
    a(f"s_load_dwordx8 s[64:71], s[{P_LDT}:{P_LDT+1}], s11")
    a(f"s_load_dwordx8 s[24:31], s[{P_LIM}:{P_LIM+1}], s11")
    for k in range(160): a(f"v_mov_b32 v{ACC+k}, 0")
    a(f"v_mov_b32 v{vCn}, {CNT_L}")
    a(f"ds_write_b128 v{vCn}, v[{ACC}:{ACC+3}]")
    a(f"ds_write_b128 v{vCn}, v[{ACC}:{ACC+3}] offset:16")
    a(f"v_bfe_u32 v{t0}, v0, 2, 1")
    a(f"v_lshl_add_u32 v{t0}, v{t0}, 4, v{t2}")
    a(f"v_bfe_u32 v{t1}, v0, 3, 2")
    a(f"v_lshl_add_u32 v{t0}, v{t1}, 2, v{t0}")
    a(f"s_lshl_b32 s11, s{S_W4}, 9")
    a(f"s_add_u32 s11, s11, {STATS_L}")
    a(f"v_lshl_add_u32 v{vStF}, v{t0}, 3, s11")
    a(f"v_lshlrev_b32 v{vL16}, 4, v0")
    a(f"v_add_u32 v{vPQ}, s62, v{vL16}")
    a(f"v_lshlrev_b32 v{vCL}, 4, v{vH}")
    a(f"v_add_u32 v{vCL}, {C_L}, v{vCL}")
    a(f"v_mov_b32 v{vOne}, 1")
    a(f"s_lshl_b32 s11, s{S_W4}, 2")
    a(f"s_add_u32 s11, s11, {CNT_L + 16}")
    a(f"v_mov_b32 v{vRd}, s11")
    a("s_lshl_b32 s11, s63, 8")
    a(f"s_add_u32 s11, s11, {ST2_L}")
    a(f"v_lshl_add_u32 v{vSo}, v{vH}, 7, s11")
    a(f"s_lshl_b32 s13, s{S_MT}, 2")
    a(f"s_add_u32 s13, s13, s{S_W4}")
    a(f"s_mul_i32 s56, s13, {2*RT_BYTES}")
    a(f"s_cmp_ge_u32 s{S_NS}, 14")
    a(f"s_cselect_b32 s11, {HALF_BYTES - 56*1024}, 0")
    a(f"s_lshl_b32 s12, s{S_NS}, 12")
    a("s_add_u32 s11, s11, s12")
    a("s_add_u32 s56, s56, s11")
    a(f"s_add_u32 s57, s56, {RT_BYTES}")
    a("s_lshl_b32 s11, s13, 10")
    flag_index(a, 12, 14, 7)
    a("s_add_u32 s11, s11, s12")
    a(f"s_add_u32 s11, s11, {WS_FLAG:#x}")
    a(f"v_mov_b32 v{vF}, s11")
    a(f"s_lshl_b32 s55, s{S_M64}, 10")
    a(f"s_add_u32 s55, s55, {WS_FLAG:#x}")
    a(f"s_lshl_b32 s11, s{S_W4}, 7")
    a("s_add_u32 s55, s55, s11")
    a(f"s_mul_i32 s12, s59, {HALF_BYTES}")
    a(f"s_mul_i32 s13, s63, {28*1024}")
    a("s_add_u32 s12, s12, s13")
    a(f"s_lshl_b32 s11, s{S_M64}, 1")
    a("s_add_u32 s11, s11, s63")
    a(f"s_mul_i32 s52, s11, {RT_BYTES}")
    a("s_add_u32 s52, s52, s12")
    a("s_xor_b32 s11, s11, 1")
    a(f"s_mul_i32 s51, s11, {RT_BYTES}")
    a("s_add_u32 s51, s51, s12")
    p2_rot(a, cfg, 60, 61, 58)
    a("s_mov_b32 s12, 0x00030003")
    a("s_mov_b32 s13, 0x00030003")
    a("s_waitcnt lgkmcnt(0)")
    K, KP = 40, 64
    for k in range(8):
        a(f"s_lshl_b64 exec, s[12:13], {2*k}")
        for m, sb in enumerate((32, 24, 64)): a(f"v_mov_b32 v{K+m}, s{sb+k}")
    a("s_mov_b64 exec, -1")
    a(f"v_and_b32 v{K+3}, 1, v0")
    a(f"v_lshlrev_b32 v{K+3}, 4, v{K+3}")
    for m in range(3): a(f"v_lshrrev_b32 v{K+m}, v{K+3}, v{K+m}")
    srd(a, SRD_WS, P_WS, WS_SIZE)
    ssm_park(a, K, KP, 62)
    a(f"v_mov_b32 v{KP+23}, 0")
    a(f"s_lshl_b32 s11, s{S_W4}, 13")
    a(f"s_add_u32 s11, s11, {R[2]}")
    a(f"v_add_u32 v{K}, s11, v{vL16}")
    for k in range(6): a(f"ds_write_b128 v{K}, v[{KP+4*k}:{KP+4*k+3}] offset:{1024*k}")
    a("s_waitcnt lgkmcnt(0)")
    ts(1)

    def reads(fs, ks):
        f = FS[fs]
        L = []
        L.append(f"ds_read_b128 v[{f}:{f+3}], v{XA[ks]}")
        L.append(f"ds_read_b128 v[{f+24}:{f+27}], v{BA[ks]}")
        L.append(f"ds_read_b128 v[{f+4}:{f+7}], v{XA[ks]} offset:4096")
        for gu in range(2):
            for ft in range(2):
                for j in range(2):
                    d = f + 8 + 8 * gu + 4 * ft + 2 * j
                    L.append(f"ds_read_b64_tr_b16 v[{d}:{d+1}], v{WA[ft]} offset:{gu*8192 + ks*2048 + j*512}")
        return L
    def mfmas(fs):
        f = FS[fs]
        X = [f, f + 4]; Bf = f + 24
        L = []
        for q in range(2):
            L.append(f"v_mfma_f32_32x32x16_bf16 v[{S(q)}:{S(q)+15}], v[{X[q]}:{X[q]+3}], v[{Bf}:{Bf+3}], v[{S(q)}:{S(q)+15}]")
        for gu in range(2):
            for ft in range(2):
                w = f + 8 + 8 * gu + 4 * ft
                for q in range(2):
                    d = (G, U)[gu](ft, q)
                    L.append(f"v_mfma_f32_32x32x16_bf16 v[{d}:{d+15}], v[{w}:{w+3}], v[{X[q]}:{X[q]+3}], v[{d}:{d+15}]")
        return L
    a("s_setprio 2")
    a("s_mov_b32 s72, 0")
    a("s_mov_b32 s74, 0")
    a("s_barrier")
    ts(2)
    for t in reads(0, 0): a(t)
    a.label("L_c_loop")
    need = {0: 9, 1: 8, 2: 6, 4: 4, 6: 2, 8: 0}
    for ks in range(4):
        fs = ks & 1
        M = mfmas(fs)
        if ks < 3:
            Rd = reads(1 - fs, ks + 1)
            issued = 0
            for i, m in enumerate(M):
                if i in need: a(f"s_waitcnt lgkmcnt({min(15, need[i] + issued)})")
                a(m)
                for _ in range(2 if i >= cfg.rdstart else 0):
                    if Rd: a(Rd.pop(0)); issued += 1
        else:
            Rd = reads(1 - fs, 0)
            a("s_waitcnt lgkmcnt(9)")
            a(M[0])
            a("s_add_u32 s74, s74, 1")
            a("s_cmp_eq_u32 s74, 3")
            a("s_mov_b32 s75, 53248")
            a(f"s_cmov_b32 s75, {(-106496) & 0xffffffff:#x}")
            a("s_cselect_b32 s74, 0, s74")
            for v in XA + BA[:1]: a(f"v_add_u32 v{v}, s75, v{v}")
            a("s_waitcnt lgkmcnt(8)")
            a(M[1])
            for v in BA[1:] + WA: a(f"v_add_u32 v{v}, s75, v{v}")
            a("s_add_u32 s72, s72, 1")
            a("s_cmp_eq_u32 s72, 6")
            a("s_waitcnt lgkmcnt(0)")
            a(M[2])
            a("s_barrier")
            hist = list(a.hist)
            a("s_cbranch_scc1 L_c_last")
            for m in M[3:]:
                for _ in range(2):
                    if Rd: a(Rd.pop(0))
                a(m)
            a("s_branch L_c_loop")
            a.label("L_c_last")
            a.hist = hist
            Mtail = M[3:]
    lq = []
    def ds_issue(tag, t):
        a(t)
        if t.startswith("ds_"): lq.append(tag)
    def ds_wait(tag):
        idx = max((i for i, t in enumerate(lq) if t == tag), default=None)
        if idx is None: return None
        n = len(lq) - 1 - idx
        del lq[:idx + 1]
        return f"lgkmcnt({min(n, 15)})"
    def dwait(tag):
        w = ds_wait(tag)
        if w: a(f"s_waitcnt {w}")
    UB = [24, 40, 56]
    def ureads(u):
        b, ks = UB[u % 3], u % 4
        L = [f"ds_read_b128 v[{b}:{b+3}], v{XA[ks]}"]
        if u < 8:
            ft = u // 4
            for gu in range(2):
                for j in range(2):
                    d = b + 8 + 4 * gu + 2 * j
                    L.append(f"ds_read_b64_tr_b16 v[{d}:{d+1}], v{WA[ft]} offset:{gu*8192 + ks*2048 + j*512}")
        else:
            L.append(f"ds_read_b128 v[{b+8}:{b+11}], v{BA[ks]}")
        L.append(f"ds_read_b128 v[{b+4}:{b+7}], v{XA[ks]} offset:4096")
        return [(u, t) for t in L]
    def umfma(u):
        b = UB[u % 3]
        L = []
        for q in range(2):
            x = b + 4 * q
            if u < 8:
                for gu in range(2):
                    d = (G, U)[gu](u // 4, q); w = b + 8 + 4 * gu
                    L.append(f"v_mfma_f32_32x32x16_bf16 v[{d}:{d+15}], v[{w}:{w+3}], v[{x}:{x+3}], v[{d}:{d+15}]")
            else:
                L.append(f"v_mfma_f32_32x32x16_bf16 v[{S(q)}:{S(q)+15}], v[{x}:{x+3}], v[{b+8}:{b+11}], v[{S(q)}:{S(q)+15}]")
        return L
    Rd = ureads(0) + ureads(1)
    for m in Mtail:
        for _ in range(2):
            if Rd: ds_issue(*Rd.pop(0))
        a(m)
    CH = 72
    def chalf(p):
        for gu in range(2):
            for k in range(2):
                ds_issue(('c', p), f"ds_read_b128 v[{CH+8*gu+4*k}:{CH+8*gu+4*k+3}], v{vCL} offset:{256*gu + 32*(2*p+k)}")
    def hstore(ft, q, p):
        g = G(ft, q)
        vm.issue('h', f"buffer_store_dwordx4 v[{g+4*p}:{g+4*p+3}], v{vL16}, s[{SRD_WS}:{SRD_WS+3}], s{56+q} offen offset:{(2*ft+p)*1024}{SP}")
    ep = [lambda: dwait(('c', 0)), f"v_xor_b32 v{MM}, 0x80000000, v{MM}", f"v_xor_b32 v{MM+1}, 0x80000000, v{MM+1}"]
    for p in range(2):
        if p: ep.append(lambda: dwait(('c', 1)))
        for q in range(2):
            g, u = G(0, q) + 8 * p, U(0, q) + 8 * p
            for k in range(8): ep.append(f"v_fmac_f32 v{g+k}, v{MM+q}, v{CH+k}")
            for k in range(8): ep.append(f"v_fmac_f32 v{u+k}, v{MM+q}, v{CH+8+k}")
            if q == 1 and p == 0: ep.append(lambda: chalf(1))
            for k in range(8): ep.append(f"v_max_f32 v{g+k}, 0, v{g+k}")
            for k in range(8): ep.append(f"v_mul_f32 v{u+k}, v{u+k}, v{g+k}")
            for k in range(4): ep.append(f"v_cvt_pk_bf16_f32 v{G(0,q)+4*p+k}, v{u+2*k}, v{u+2*k+1}")
            ep.append(lambda q=q, p=p: hstore(0, q, p))
    def fill(n):
        while n > 0 and ep:
            t = ep.pop(0)
            if callable(t): t()
            else: a(t)
            n -= 1
    def cread(tag, dst, off):
        for k in range(4): ds_issue(tag, f"ds_read_b128 v[{dst+4*k}:{dst+4*k+3}], v{vCL} offset:{off + 32*k}")
    for u in range(12):
        dwait(u)
        if u == 11:
            a("s_barrier")
        Rd = ureads(u + 2) if u + 2 < 12 else []
        for i, m in enumerate(umfma(u)):
            a(m)
            for _ in range(2):
                if Rd: ds_issue(*Rd.pop(0))
            if u > 4 or (u == 4 and i >= 1): fill(cfg.fper - 1 if u < 10 else cfg.fper)
        if u == cfg.c2u:
            a("s_barrier")
            ds_issue(('c', 0), f"ds_read_b32 v{MM}, v{vStF}")
            ds_issue(('c', 0), f"ds_read_b32 v{MM+1}, v{vStF} offset:256")
            chalf(0)
        if u == 9: cread('cg', UB[0], 128)
        if u == 10: cread('cu', UB[1], 384)
    ts(3)
    fill(1000)
    dump = [f"ds_write_b128 v{vPQ}, v[{S(0)+4*k}:{S(0)+4*k+3}] offset:{SD + 1024*k}" for k in range(8)]
    WB = {0: [1, 2], 1: [3, 4], 2: [5, 6]}
    for rg in range(3):
        a(f"v_add_u32 v{WB[rg][0]}, {R[rg]}, v{vWB}")
        a(f"v_xor_b32 v{WB[rg][1]}, 64, v{WB[rg][0]}")
    dwait('cu')
    cg, cu = UB[0], UB[1]
    for q in range(2):
        g, u = G(1, q), U(1, q)
        sel = f"op_sel:[{q},0,0] op_sel_hi:[{q},1,1]"
        for p in range(2):
            kr = range(4 * p, 4 * p + 4)
            for k in kr:
                a(f"v_pk_fma_f32 v[{g+2*k}:{g+2*k+1}], v[{MM}:{MM+1}], v[{cg+2*k}:{cg+2*k+1}], v[{g+2*k}:{g+2*k+1}] {sel}")
                if dump: a(dump.pop(0))
            for k in kr:
                a(f"v_pk_fma_f32 v[{u+2*k}:{u+2*k+1}], v[{MM}:{MM+1}], v[{cu+2*k}:{cu+2*k+1}], v[{u+2*k}:{u+2*k+1}] {sel}")
                a(f"v_max_f32 v{g+2*k}, 0, v{g+2*k}")
                a(f"v_max_f32 v{g+2*k+1}, 0, v{g+2*k+1}")
            for k in kr:
                a(f"v_pk_mul_f32 v[{u+2*k}:{u+2*k+1}], v[{u+2*k}:{u+2*k+1}], v[{g+2*k}:{g+2*k+1}]")
            for k in kr:
                a(f"v_cvt_pk_bf16_f32 v{g+k}, v{u+2*k}, v{u+2*k+1}")
            if q == 0 and p == 1:
                a("s_waitcnt lgkmcnt(0)")
                a("s_barrier")
            hstore(1, q, p)
    del lq[:]
    ts(4)
    BR, NB = 160, 12
    def breads(p):
        sl = WSLOT[p]
        rg = max(k for k in range(3) if R[k] <= sl)
        L = []
        for lc in range(2):
            for jj in range(2):
                d = BR + 8 * (p % NB) + 4 * lc + 2 * jj
                L.append(f"ds_read_b64_tr_b16 v[{d}:{d+1}], v{WB[rg][lc]} offset:{sl - R[rg] + jj*1024}")
        return L
    for p in range(NB):
        for t in breads(p): a(t)
    def flag1():
        vm.wait('h')
        a("s_setprio 3")
        a("s_mov_b64 exec, 1")
        vm.issue('f', f"buffer_store_dword v{vOne}, v{vF}, s[{SRD_WS}:{SRD_WS+3}], 0 offen sc1")
        a("s_mov_b64 exec, -1")
        ts(6)
    if cfg.fpre: flag1()
    a("s_waitcnt lgkmcnt(0)")
    a("s_barrier")
    ts(5)
    if not cfg.fpre: flag1()
    AF = 96
    AR = list(range(24, 96, 4))
    NA = len(AR)
    def aload(n):
        p, lr = n // 2, n % 2
        if n % 8 == 0:
            a(f"s_lshl_b32 s11, s60, 12")
            a(f"s_add_u32 s54, s11, s52")
            a(f"s_add_u32 s53, s11, s51")
            a(f"s_add_u32 s60, s60, 1")
            a(f"s_cmp_eq_u32 s60, 7")
            a(f"s_cselect_b32 s60, 0, s60")
        d = AR[n % NA]
        vm.issue(('a', n), f"buffer_load_dwordx4 v[{d}:{d+3}], v{vL16}, s[{SRD_WS}:{SRD_WS+3}], s{54 - lr} offen offset:{(p%4)*1024}{AP}")
    def cond():
        a("s_and_b64 s[16:17], s[16:17], s[18:19]")
        a("s_and_b64 s[16:17], s[16:17], s[20:21]")
        a("s_and_b32 s16, s16, s17")
        a("s_and_b32 s16, s16, s22")
        a("s_cmp_eq_u32 s16, 1")
    sspin(a, "L_pf", [f"s_load_dwordx8 s[16:23], s[{P_WS}:{P_WS+1}], s55 glc"], cond, cfg.fsleep)
    a("s_setprio 2")
    ts(7)
    for n in range(cfg.a0): aload(n)
    nxt = [cfg.a0]
    ts(8)
    def lds_spin(name, vaddr, off, val):
        a("s_mov_b32 s73, 0")
        a.label(name)
        a("s_waitcnt lgkmcnt(0)")
        a("v_readfirstlane_b32 s11, v8")
        a(f"s_cmp_ge_u32 s11, {val}")
        a(f"s_cbranch_scc1 {name}ok")
        a("s_add_u32 s73, s73, 1")
        a(f"s_cmp_ge_u32 s73, {SPIN_MAX}")
        a(f"s_cbranch_scc1 {name}ok")
        a("s_sleep 1")
        a(f"ds_read_b32 v8, v{vaddr} offset:{off}")
        a(f"s_branch {name}")
        a.label(name + "ok")
        del lq[:]
    for p in range(28):
        f = BR + 8 * (p % NB)
        pn = p + cfg.bd
        for lr in range(2):
            n = 2 * p + lr
            w = ds_wait(p) if lr == 0 else None
            vm.wait(('a', n), w or "")
            if n == 0: ts(9)
            if n in (0, 7, 17, 25, 35): ts.x(6, {0: 7, 7: 8, 17: 9, 25: 10, 35: 11}[n])
            if lr == 0 and pn in (12, 16): ds_issue('r', f"ds_read_b32 v8, v{vRd}")
            d = AR[n % NA]
            for lc in range(2):
                acc = AF + 32 * lr + 16 * lc
                c = "0" if p == 0 else f"v[{acc}:{acc+15}]"
                a(f"v_mfma_f32_32x32x16_bf16 v[{acc}:{acc+15}], v[{d}:{d+3}], v[{f+4*lc}:{f+4*lc+3}], {c}")
            for _ in range(2):
                if nxt[0] < 56 and nxt[0] <= n + NA:
                    aload(nxt[0]); nxt[0] += 1
        if pn in (12, 16): lds_spin(f"L_c_r{pn}", vRd, 0, {12: 1, 16: 3}[pn])
        if p == cfg.ksig:
            assert pn > 15
            w = ds_wait(15)
            if w: a(f"s_waitcnt {w}")
            a("s_mov_b64 exec, 1")
            ds_issue('c', f"ds_add_u32 v{vCn}, v{vOne} offset:4")
            a("s_mov_b64 exec, -1")
        if NB <= pn < 28:
            for t in breads(pn): ds_issue(pn, t)
        if p == 24:
            STT = BR + 32
            for k in range(8): ds_issue('st', f"ds_read_b128 v[{STT+4*k}:{STT+4*k+3}], v{vSo} offset:{16*k}")
        if p == 26:
            for x in range(1, 4):
                a(f"s_xor_b32 s11, s{S_W4}, {x}")
                a(f"s_mul_i32 s11, s11, {Q}")
                a(f"s_add_u32 s11, s11, {FXA + (x-1)*4096}")
                a(f"v_add_u32 v{x}, s11, v{vL16}")
            a(f"v_add_u32 v4, {GA}, v{vPQ}")
            a(f"v_add_u32 v5, {FXA}, v{vPQ}")
        if p % 4 == 3: ts.x(4, 1 + p // 4)
    ts(11)
    ts.x(7, 1)
    for x in (2, 1, 3):
        src = AF + 32 * (x & 1) + 16 * (x >> 1)
        for k in range(4):
            a(f"ds_write_b128 v5, v[{src+4*k}:{src+4*k+3}] offset:{(x-1)*4096 + 1024*k}")
    a("s_waitcnt lgkmcnt(12)")
    for r in range(16): a(f"v_mul_f32 v{STT+2*r}, v{STT+2*r+1}, v{STT+2*r+1}")
    a(f"s_mov_b32 s13, {LOG2E ^ 0x80000000:#x}")
    ts.x(7, 2)
    a("s_waitcnt lgkmcnt(0)")
    ts.x(7, 3)
    a("s_mov_b64 exec, 1")
    a(f"ds_add_u32 v{vCn}, v{vOne}")
    a("s_mov_b64 exec, -1")
    a(f"ds_read_b32 v8, v{vCn}")
    lds_spin("L_c_cnt", vCn, 0, 4)
    ts.x(7, 4)
    O, RX, EX = AF, 24, 72
    for k in range(4):
        for x in range(1, 4):
            a(f"ds_read_b128 v[{RX+16*(x-1)+4*k}:{RX+16*(x-1)+4*k+3}], v{x} offset:{1024*k}")
    for k in range(4):
        rr = range(4 * k, 4 * k + 4)
        a(f"s_waitcnt lgkmcnt({9 - 3*k})")
        for r in rr: a(f"v_add_f32 v{O+r}, v{O+r}, v{RX+r}")
        for r in rr: a(f"v_add_f32 v{RX+16+r}, v{RX+16+r}, v{RX+32+r}")
        for r in rr: a(f"v_add_f32 v{O+r}, v{O+r}, v{RX+16+r}")
        for r in rr: a(f"v_mul_f32 v{O+r}, v{O+r}, v{STT+2*r}")
        for r in rr: a(f"v_mul_f32 v{EX+r}, s13, v{O+r}")
        for r in rr: a(f"v_exp_f32 v{EX+r}, v{EX+r}")
    ts.x(7, 5)
    for k in range(4):
        rr = range(4 * k, 4 * k + 4)
        for r in rr: a(f"v_add_f32 v{EX+r}, 1.0, v{EX+r}")
        for r in rr: a(f"v_rcp_f32 v{EX+r}, v{EX+r}")
        for r in rr: a(f"v_mul_f32 v{O+r}, v{O+r}, v{EX+r}")
        a(f"ds_write_b128 v4, v[{O+4*k}:{O+4*k+3}] offset:{1024*k}")
    a("s_waitcnt lgkmcnt(0)")
    ts(12)
    a("s_barrier")
    ts.dump(24, 25, 0)
    a("s_endpgm")

HEADER = """; Fused S5-SSM + ReGLU block, one launch: 224 main workgroups (4 MFMA waves + 4 loader waves) + 32 helper workgroups.
; @launch grid=(256,1,1) block=(512,1,1) lds=163840
.amdgcn_target "amdgcn-amd-amdhsa--gfx950"
.text
.globl {k}
.p2align 8
.type {k},@function
{k}:
"""
FOOTER = """.section .rodata,"a"
.p2align 6
.amdhsa_kernel {k}
  .amdhsa_next_free_vgpr 256
  .amdhsa_next_free_sgpr 102
  .amdhsa_accum_offset 256
  .amdhsa_group_segment_fixed_size 0
  .amdhsa_kernarg_size 128
  .amdhsa_user_sgpr_count 2
  .amdhsa_user_sgpr_kernarg_segment_ptr 1
  .amdhsa_system_sgpr_workgroup_id_x 1
  .amdhsa_float_denorm_mode_32 3
.end_amdhsa_kernel
"""

def generate(cfg):
    WSOFF[0] = cfg.wsoff << 20
    a = Asm()
    ts = TS(a, cfg)
    gen_entry(a, cfg, ts)
    gen_loader(a, cfg, ts)
    gen_consumer(a, cfg, ts)
    gen_helper(a, cfg, ts)
    a.label("L_exit")
    a("s_endpgm")
    return HEADER.format(k=KNAME) + f"; wsoff={cfg.wsoff}\n" + a.text() + FOOTER.format(k=KNAME)

if __name__ == "__main__":
    cfg = Cfg()
    out = sys.argv[1]
    for kv in sys.argv[2:]:
        k, v = kv.split("=")
        setattr(cfg, k, int(v))
    open(out, "w").write(generate(cfg))
```

```python
import sys, os
sys.path.insert(0, os.path.dirname(os.path.abspath(__file__)))
from asmlib import Asm, VM

KNAME = "recurrent_scan__ssm_conv_s5__glu_gated_reglu__prompt_kernel"

R = [0, 53248, 106496]
MISC = 159744
OFF_WG, OFF_WU, OFF_BB = 32768, 40960, 49152
CP_L = R[1] + 49152
STATS_L = MISC
C_L = MISC + 2048
CNT_L = MISC + 2688
ST2_L = MISC + 2720
AGG_L = MISC + 3232
Q = 12288

RT_BYTES = 172032
HALF_BYTES = 86016
WS_STATS = 0xB00000
WS_AGG = WS_STATS + 0x4000
WS_FLAG = WS_AGG + 0x8000
INIT_N = 128 + 98
WS_CP = 0xB20000
WS_TS = 0xC00000
WS_SIZE = 0x1000000
SPIN_MAX = 1 << 20

S_WAVE, S_XCD, S_SLOT, S_MT, S_NS, S_M64, S_NT, S_W4 = 3, 4, 5, 6, 7, 8, 9, 10
P_X, P_LRE, P_LIM, P_BRE, P_BIM, P_CRE, P_CIM, P_LDT, P_DSK, P_BX, P_WG, P_WU, P_WD, P_OUT, P_DBG, P_WS = [16 + 2 * i for i in range(16)]
SRD_X, SRD_A, SRD_B, SRD_C, SRD_WS, SRD_E = 48, 52, 56, 60, 64, 68
TS0 = 76

LOG2E = 0x3fb8aa3b
LOG2E_LO = 0x32a57060
LN2 = 0x3f317218
INV2PI = 0x3e22f983

class Cfg:
    ts = 0
    tsset = 0
    pd = 16
    perm = 1
    rot = 2
    ssm_early = 0
    schedn = 0
    polx = 0
    apol = 1
    noa = 0
    nob = 0
    rdstart = 1
    polw = 0
    winn = 3
    loc = 1
    hord = 1
    clate = 2
    wl = 1
    fper = 6
    c2u = 2
    probe = 0
    pwho = 0
    ponly = -1
    pmask = 0xffff
    wsoff = 0
    kwin = 2
    wprio = 0
    hdelay = 0
    eprio = 0
    c2late = 0
    cpf = 2
    padto = 0
    nocs = 0
    r2pre = 1
    tlb = 0
    bd = 4
    pollw = 24
    c1 = 12
    c2 = 16
    f2b = 1
    wfirst = 1
    @property
    def win(self):
        W = lambda a, b: [f"w{p}" for p in range(a, b)]
        return [
            {-1: ["s1:0-6"], 0: ["cs0", "s1:6-13", "k", "s2:0-9"], 1: ["cs1", "s2:9-13", "s3", "e"], 2: ["cs2", "s4"] + W(12, 14), 3: ["cs3", "s5"] + W(14, 17),
             4: ["cs4", "init", "s6:0-7", "cs5", "s6:7-13", "w17"], 5: ["fetch"] + W(0, 4) + ["cs6"] + W(4, 6) + W(18, 20) + ["put"], 6: W(6, 12) + W(20, 22)},
            {-1: ["s1:0-6"], 0: ["cs0", "s1:6-13", "k", "s2:0-9"], 1: ["cs1", "s2:9-13", "s3", "e"], 2: ["cs2", "s4"] + W(12, 15), 3: ["cs3", "s5"] + W(15, 18),
             4: ["cs4", "init", "s6"] + W(18, 20), 5: ["cs5", "fetch"] + W(0, 3) + ["cs6"] + W(3, 6) + ["put"], 6: W(6, 12) + W(20, 22)},
            {-1: ["s1:0-6"], 0: ["cs0", "s1:6-13", "k", "s2:0-9"], 1: ["cs1", "s2:9-13", "s3", "e"], 2: ["cs2", "s4"] + W(12, 15), 3: ["cs3", "s5:0-7", "cs4", "s5:7-13", "w15"],
             4: ["init", "s6:0-4", "cs5", "s6:4-13"] + W(16, 19), 5: ["fetch"] + W(0, 4) + ["cs6"] + W(4, 6) + W(19, 22) + ["put"], 6: W(6, 12)},
            {-1: ["s1:0-6"], 0: ["cs0", "s1:6-13", "k", "s2:0-9"], 1: ["cs1", "s2:9-13", "s3", "e"], 2: ["cs2", "s4"] + W(12, 15), 3: ["cs3", "s5"] + W(15, 18),
             4: ["cs4", "init", "s6:0-7", "cs5", "s6:7-13", "w18", "w19"], 5: ["fetch"] + W(0, 4) + ["cs6"] + W(4, 6) + W(20, 22) + ["c3", "put"], 6: W(6, 12) + ["c1"]},
            {-1: ["s1:0-6"], 0: ["cs0", "s1:6-13", "k", "s2:0-9"], 1: ["cs1", "s2:9-13", "s3", "e"], 2: ["cs2", "s4"] + W(12, 14), 3: ["cs3", "s5"] + W(14, 17),
             4: ["cs4", "init", "s6:0-7", "cs5", "s6:7-13", "w17"], 5: ["fetch"] + W(0, 4) + ["cs6"] + W(4, 6) + W(18, 20) + ["put"], 6: W(6, 12) + W(20, 22) + ["c3"]},
            {-1: ["s1:0-6"], 0: ["cs0", "s1:6-13", "k", "s2:0-9"], 1: ["cs1", "s2:9-13", "s3", "e"], 2: ["cs2", "s4"] + W(12, 15), 3: ["cs3", "s5"] + W(15, 19),
             4: ["cs4", "init", "s6:0-7", "cs5", "s6:7-13"] + W(19, 22), 5: ["fetch"] + W(0, 4) + ["cs6"] + W(4, 6) + ["c1", "put"], 6: W(6, 12) + ["c3"]},
            {-1: ["s1:0-6"], 0: ["cs0", "s1:6-13", "k", "s2"], 1: ["cs1", "s3", "e"] + W(12, 14), 2: ["cs2", "s4"] + W(14, 17), 3: ["cs3", "s5"] + W(17, 20),
             4: ["cs4", "init", "s6:0-7", "cs5", "s6:7-13"] + W(20, 22), 5: ["fetch"] + W(0, 4) + ["cs6"] + W(4, 6) + ["c1", "put"], 6: W(6, 12) + ["c3"]},
            {-1: ["s1:0-6"], 0: ["cs0", "s1:6-13", "k", "s2:0-9"], 1: ["cs1", "s2:9-13", "s3", "e"], 2: ["cs2", "s4"] + W(12, 15), 3: ["cs3", "s5:0-7", "cs4", "s5:7-13"] + W(15, 18),
             4: ["init", "s6:0-4", "cs5", "s6:4-13"] + W(18, 22), 5: ["fetch"] + W(0, 4) + ["cs6"] + W(4, 6) + ["c1", "put"], 6: W(6, 12) + ["c3"]},
        ][self.winn]
    nw1 = 6
    flagr = -1
    xs = 1
    psleep = 2
    fsleep = 2
    ttper = 2
    f2n = 9
    fpre = 1
    a0 = 18
    sprio = 0
    ksig = 12
    opol = 1
    lprio = 3
    w12early = 0
    slab = 0
    spol = 1
    fpol = 1
    pollr = 4
    nw2 = 16
    thr = 15
    hpf = 2
    ky = 2
    @property
    def perms(self):
        return {
            0: [[0, 1, 2, 3, 4, 5, 6]],
            1: [[0, 1, 2, 3, 4, 5, 6], [1, 2, 0, 4, 5, 3, 6], [2, 0, 1, 5, 3, 4, 6]],
            2: [[0, 1, 2, 3, 4, 5, 6], [1, 0, 3, 2, 5, 4, 6]],
            3: [[0, 1, 2, 3, 4, 5, 6], [1, 0, 4, 5, 6, 2, 3], [0, 1, 6, 2, 3, 4, 5]],
            4: [[0, 1, 2, 3, 4, 5, 6], [1, 2, 0, 4, 6, 3, 5], [2, 0, 1, 5, 6, 3, 4]],
            5: [[0, 1, 2, 3, 4, 5, 6], [1, 2, 3, 0, 5, 6, 4], [2, 3, 0, 1, 6, 4, 5], [3, 0, 1, 2, 4, 5, 6]],
        }[self.perm]

WSOFF = [0]
def srd(a, d, ptr, nbytes):
    if ptr == P_WS and WSOFF[0]:
        a(f"s_add_u32 s{ptr}, s{ptr}, {WSOFF[0]:#x}")
        a(f"s_addc_u32 s{ptr+1}, s{ptr+1}, 0")
    a(f"s_mov_b32 s{d}, s{ptr}")
    a(f"s_and_b32 s{d+1}, s{ptr+1}, 0xffff")
    a(f"s_mov_b32 s{d+2}, {nbytes:#x}")
    a(f"s_mov_b32 s{d+3}, 0x20000")

def srd_sel(a, d, ptr1, ptr0, nbytes):
    a(f"s_cselect_b32 s{d}, s{ptr1}, s{ptr0}")
    a(f"s_cselect_b32 s{d+1}, s{ptr1+1}, s{ptr0+1}")
    a(f"s_and_b32 s{d+1}, s{d+1}, 0xffff")
    a(f"s_mov_b32 s{d+2}, {nbytes:#x}")
    a(f"s_mov_b32 s{d+3}, 0x20000")

class TS:
    def __init__(self, a, cfg):
        self.a, self.on, self.n, self.set = a, cfg.ts, 0, cfg.tsset
        self.cfg = cfg
    def x(self, setno, i):
        if self.on and self.set == setno: self.emit(i)
    def __call__(self, i):
        if self.on and (self.set == 0 or i in (0, 12)): self.emit(i)
    def emit(self, i):
        if self.on == 5 and i not in (0, self.cfg.probe): return
        if self.on:
            assert i < 13
            self.a(f"{'s_memrealtime' if self.on != 2 else 's_memtime'} s[{TS0+2*i}:{TS0+2*i+1}]")
    def init(self):
        if self.on:
            for i in range(1, 13): self.a(f"s_mov_b32 s{TS0+2*i}, 0")
    def dump(self, vt, vt2, who=2):
        if not self.on: return
        a = self.a
        if self.on == 5:
            if who != self.cfg.pwho: return
            lab = a.newlabel("L_probe")
            if self.cfg.ponly >= 0:
                a(f"s_and_b32 s11, s2, {self.cfg.pmask}")
                a(f"s_cmp_lg_u32 s11, {self.cfg.ponly}")
                a(f"s_cbranch_scc1 {lab}_x")
            p = TS0 + 2 * self.cfg.probe
            a("s_waitcnt lgkmcnt(0)")
            a(f"s_sub_u32 s11, s{p}, s{TS0}")
            a(f"s_cmp_eq_u32 s{p}, 0")
            a("s_cselect_b32 s11, 0, s11")
            a("s_lshl_b32 s11, s11, 2")
            a("s_add_u32 s11, s11, 3000")
            a.label(lab)
            a("s_memrealtime s[12:13]")
            a("s_waitcnt lgkmcnt(0)")
            a(f"s_sub_u32 s12, s12, s{TS0}")
            a("s_cmp_lt_u32 s12, s11")
            a(f"s_cbranch_scc1 {lab}")
            a.label(lab + "_x")
            return
        if self.on == 3:
            a("s_waitcnt vmcnt(0) lgkmcnt(0)")
            lab = a.newlabel("L_nod")
            a(f"s_cmp_eq_u32 s{TS0+24}, 0")
            a(f"s_cbranch_scc1 {lab}")
            a(f"s_cmp_lg_u32 s{S_WAVE}, 0")
            a(f"s_cbranch_scc1 {lab}")
            a("s_mov_b64 exec, 1")
            a(f"v_mov_b32 v{vt2}, 0")
            a(f"s_not_b32 s11, s{TS0}")
            a(f"v_mov_b32 v{vt}, s11")
            a(f"global_atomic_umax v{vt2}, v{vt}, s[{P_DBG}:{P_DBG+1}] offset:4 sc1")
            for n, i in enumerate([0, 1, 2, 3, 4, 5, 6, 7, 8, 9, 10, 11, 12]):
                a("s_waitcnt vmcnt(0)")
                a(f"v_mov_b32 v{vt}, s{TS0+2*i}")
                a(f"global_atomic_umax v{vt2}, v{vt}, s[{P_DBG}:{P_DBG+1}] offset:{8+4*n} sc1")
            a("s_waitcnt vmcnt(0)")
            a.label(lab)
            return
        a("s_waitcnt vmcnt(0) lgkmcnt(0)")
        a(f"s_lshl_b32 s11, s2, 9")
        a(f"s_lshl_b32 s12, s{S_WAVE}, 6")
        a("s_add_u32 s11, s11, s12")
        a(f"s_add_u32 s11, s11, {WS_TS:#x}")
        a(f"v_mov_b32 v{vt2}, s11")
        for i in range(13):
            a(f"v_mov_b32 v{vt}, s{TS0+2*i}")
            a(f"buffer_store_dword v{vt}, v{vt2}, s[{SRD_WS}:{SRD_WS+3}], 0 offen offset:{4*i}")
        a("s_waitcnt vmcnt(0)")

def round_bf16(a, dst, src):
    a(f"v_cvt_pk_bf16_f32 v{dst}, v{src}, v{src}")
    a(f"v_lshlrev_b32 v{dst}, 16, v{dst}")

def exp_acc(a, dst, x, t0, t1):
    a(f"s_mov_b32 s36, {LOG2E:#x}")
    a(f"s_mov_b32 s37, {LOG2E_LO:#x}")
    a(f"v_mul_f32 v{t0}, s36, v{x}")
    a(f"v_fma_f32 v{t1}, v{x}, s36, -v{t0}")
    a(f"v_fma_f32 v{t1}, v{x}, s37, v{t1}")
    a(f"v_mul_f32 v{t1}, {LN2:#x}, v{t1}")
    a(f"v_exp_f32 v{dst}, v{t0}")
    a(f"v_fma_f32 v{dst}, v{dst}, v{t1}, v{dst}")

def csq(a, dr, di, sr, si, t):
    a(f"v_mul_f32 v{t}, v{si}, v{si}")
    a(f"v_add_f32 v{di}, v{si}, v{si}")
    a(f"v_mul_f32 v{di}, v{di}, v{sr}")
    a(f"v_fma_f32 v{dr}, v{sr}, v{sr}, -v{t}")

def cmul(a, dr, di, ar, ai, br, bi):
    a(f"v_mul_f32 v{dr}, v{ar}, v{br}")
    a(f"v_mul_f32 v{di}, v{ar}, v{bi}")
    a(f"v_fma_f32 v{dr}, -v{ai}, v{bi}, v{dr}")
    a(f"v_fma_f32 v{di}, v{ai}, v{br}, v{di}")

def ssm_const_load(a, vm, t):
    a(f"v_and_b32 v{t+3}, 15, v0")
    a(f"s_lshl_b32 s11, s{S_NS}, 4")
    a(f"v_add_lshl_u32 v{t+3}, v{t+3}, s11, 1")
    vm.issue('sc', f"global_load_ushort v{t}, v{t+3}, s[{P_LRE}:{P_LRE+1}]")
    vm.issue('sc', f"global_load_ushort v{t+1}, v{t+3}, s[{P_LIM}:{P_LIM+1}]")
    vm.issue('sc', f"global_load_ushort v{t+2}, v{t+3}, s[{P_LDT}:{P_LDT+1}]")

def ssm_const_calc(a, t, lr, li, cr=None, ci=None):
    for k in range(3): a(f"v_lshlrev_b32 v{t+k}, 16, v{t+k}")
    exp_acc(a, t + 3, t + 2, t + 4, t + 5)
    round_bf16(a, t + 2, t + 3)
    a(f"v_mul_f32 v{t+3}, v{t+2}, v{t}")
    a(f"v_mul_f32 v{t+6}, v{t+2}, v{t+1}")
    exp_acc(a, t + 7, t + 3, t + 4, t + 5)
    a(f"v_mul_f32 v{t+6}, {INV2PI:#x}, v{t+6}")
    a(f"v_rndne_f32 v{t+4}, v{t+6}")
    a(f"v_sub_f32 v{t+6}, v{t+6}, v{t+4}")
    a(f"v_cos_f32 v{t+4}, v{t+6}")
    a(f"v_sin_f32 v{t+5}, v{t+6}")
    a(f"v_mul_f32 v{lr}, v{t+7}, v{t+4}")
    a(f"v_mul_f32 v{li}, v{t+7}, v{t+5}")
    if cr is not None:
        a(f"v_add_f32 v{t+3}, -1.0, v{lr}")
        a(f"v_mul_f32 v{t+4}, v{t}, v{t}")
        a(f"v_fma_f32 v{t+4}, v{t+1}, v{t+1}, v{t+4}")
        a(f"v_rcp_f32 v{t+4}, v{t+4}")
        a(f"v_mul_f32 v{cr}, v{t+3}, v{t}")
        a(f"v_fma_f32 v{cr}, v{li}, v{t+1}, v{cr}")
        a(f"v_mul_f32 v{ci}, v{li}, v{t}")
        a(f"v_fma_f32 v{ci}, -v{t+3}, v{t+1}, v{ci}")
        a(f"v_add_f32 v{t+4}, v{t+4}, v{t+4}")
        a(f"v_mul_f32 v{cr}, v{cr}, v{t+4}")
        a(f"v_mul_f32 v{ci}, v{ci}, v{t+4}")

def gen_entry(a, cfg, ts):
    a("s_cmp_ge_u32 s2, 256")
    a("s_cbranch_scc1 L_exit")
    if cfg.padto: a("s_memrealtime s[100:101]")
    ts(0)
    a("s_load_dwordx16 s[16:31], s[0:1], 0")
    a("s_load_dwordx16 s[32:47], s[0:1], 64")
    a("v_lshrrev_b32 v1, 6, v0")
    a("v_and_b32 v0, 63, v0")
    a(f"v_readfirstlane_b32 s{S_WAVE}, v1")
    a(f"s_and_b32 s{S_XCD}, s2, 7")
    a(f"s_lshr_b32 s{S_SLOT}, s2, 3")
    if cfg.cpf == 2:
        a(f"s_cmp_lg_u32 s{S_WAVE}, 0")
        a("s_cbranch_scc1 L_nocpf")
        a("s_getpc_b64 s[12:13]")
        a.label("L_pc0")
        a(f"s_sub_u32 s12, s12, L_pc0-{KNAME}")
        a("s_subb_u32 s13, s13, 0")
        a(f"s_lshl_b32 s11, s{S_SLOT}, 10")
        a("v_lshl_add_u32 v38, v0, 4, s11")
        a(f"v_min_u32 v38, L_exit-{KNAME}, v38")
        a("global_load_dword v39, v38, s[12:13]")
        a.label("L_nocpf")
    a(f"s_and_b32 s11, s{S_SLOT}, 3")
    a(f"s_lshr_b32 s{S_NT}, s{S_SLOT}, 2")
    a(f"s_and_b32 s12, s{S_XCD}, 1")
    a(f"s_lshl_b32 s12, s12, 2")
    a(f"s_add_u32 s{S_MT}, s12, s11")
    a(f"s_lshr_b32 s12, s{S_XCD}, 1")
    a(f"s_mul_i32 s12, s12, 7")
    a(f"s_add_u32 s{S_NS}, s12, s{S_NT}")
    if cfg.slab:
        a(f"s_mov_b32 s{S_MT}, s{S_XCD}")
        a(f"s_mov_b32 s{S_NS}, s{S_SLOT}")
    if cfg.loc:
        a(f"s_and_b32 s12, s{S_XCD}, 1")
        a("s_lshl_b32 s12, s12, 2")
        a(f"s_lshr_b32 s13, s{S_XCD}, 1")
        a("s_add_u32 s12, s12, s13")
        a("s_lshl_b32 s12, s12, 2")
    else:
        a(f"s_lshl_b32 s12, s{S_XCD}, 2")
    a(f"s_add_u32 s{S_M64}, s12, s11")
    a(f"s_and_b32 s{S_W4}, s{S_WAVE}, 3")
    ts.init()
    a(f"s_cmp_ge_u32 s{S_SLOT}, 28")
    a("s_cbranch_scc1 L_helper")
    a(f"s_cmp_lt_u32 s{S_WAVE}, 4")
    a("s_cbranch_scc1 L_consumer")

def gen_helper(a, cfg, ts):
    a.label("L_helper")
    vm = VM(a)
    a(f"s_sub_u32 s73, s{S_SLOT}, 28")
    a(f"s_lshl_b32 s11, s73, 3")
    a(f"s_add_u32 s72, s11, s{S_XCD}")
    if cfg.loc: a(f"s_mov_b32 s72, s{S_M64}")
    a(f"s_cmp_ge_u32 s{S_WAVE}, 4")
    a("s_cbranch_scc1 L_h_pf")
    a(f"s_lshl_b32 s11, s72, 6")
    a(f"s_lshl_b32 s12, s{S_WAVE}, 4")
    a(f"s_add_u32 s11, s11, s12")
    a("v_lshrrev_b32 v2, 3, v0")
    a("v_add_u32 v2, s11, v2")
    a("v_mul_u32_u24 v3, 896, v2")
    a("v_and_b32 v4, 7, v0")
    a("v_lshl_add_u32 v3, v4, 4, v3")
    a("s_waitcnt lgkmcnt(0)")
    srd(a, SRD_X, P_X, 2048 * 896)
    srd(a, SRD_WS, P_WS, WS_SIZE)
    a(f"s_mov_b32 s11, {8*896}")
    for ps in range(2):
        for j in range(7):
            so = "0" if ps == 0 else "s11"
            vm.issue(('x', ps), f"buffer_load_dwordx4 v[{112+28*ps+4*j}:{115+28*ps+4*j}], v3, s[{SRD_X}:{SRD_X+3}], {so} offen offset:{128*j}")
    a(f"s_cmp_gt_u32 s{S_WAVE}, 1")
    a("s_cbranch_scc1 L_h_noreset")
    a(f"s_cmp_eq_u32 s{S_WAVE}, 0")
    a("s_cselect_b32 s11, -1, 0")
    a("s_mov_b32 s12, 1024")
    a("s_cmov_b32 s12, 896")
    a(f"s_mov_b32 s13, {WS_FLAG:#x}")
    a(f"s_cmov_b32 s13, {WS_AGG:#x}")
    a("s_mul_i32 s14, s12, s72")
    a("s_add_u32 s13, s13, s14")
    for k in range(4): a(f"v_mov_b32 v{8+k}, s11")
    a("v_lshlrev_b32 v12, 4, v0")
    a("v_cmp_gt_u32 vcc, s12, v12")
    a("s_and_saveexec_b64 s[14:15], vcc")
    a(f"buffer_store_dwordx4 v[8:11], v12, s[{SRD_WS}:{SRD_WS+3}], s13 offen sc1")
    a("s_mov_b64 exec, s[14:15]")
    a.label("L_h_noreset")
    a("s_nop 1")
    a("v_lshlrev_b32 v2, 3, v2")
    a("s_mov_b32 s12, 0xffff0000")
    def fin(dst):
        a("v_add_f32 v8, v8, v9")
        a("v_add_f32 v10, v10, v11")
        a(f"v_add_f32 v{dst}, v8, v10")
        a(f"v_add_f32_dpp v{dst}, v{dst}, v{dst} quad_perm:[1,0,3,2] row_mask:0xf bank_mask:0xf")
        a(f"v_add_f32_dpp v{dst}, v{dst}, v{dst} quad_perm:[2,3,0,1] row_mask:0xf bank_mask:0xf")
        a(f"v_add_f32_dpp v{dst}, v{dst}, v{dst} row_half_mirror row_mask:0xf bank_mask:0xf")
        a(f"v_mul_f32 v{dst}, 0x3b124925, v{dst}")
    for ps in range(2):
        vm.wait(('x', ps))
        if cfg.hdelay == 2 + ps: a("s_barrier")
        src = 112 + 28 * ps
        for k in range(28):
            a(f"v_lshlrev_b32 v{48+2*k}, 16, v{src+k}")
            a(f"v_and_b32 v{49+2*k}, s12, v{src+k}")
        a("v_pk_add_f32 v[8:9], v[48:49], v[52:53]")
        a("v_pk_add_f32 v[10:11], v[50:51], v[54:55]")
        for k in range(4, 28): a(f"v_pk_add_f32 v[{8+2*(k%2)}:{9+2*(k%2)}], v[{8+2*(k%2)}:{9+2*(k%2)}], v[{48+2*k}:{49+2*k}]")
        fin(12)
        for k in range(28): a(f"v_pk_add_f32 v[{48+2*k}:{49+2*k}], v[{48+2*k}:{49+2*k}], v[12:13] op_sel_hi:[1,0] neg_lo:[0,1] neg_hi:[0,1]")
        for k in range(2): a(f"v_pk_mul_f32 v[{8+2*k}:{9+2*k}], v[{48+2*k}:{49+2*k}], v[{48+2*k}:{49+2*k}]")
        for k in range(2, 28): a(f"v_pk_fma_f32 v[{8+2*(k%2)}:{9+2*(k%2)}], v[{48+2*k}:{49+2*k}], v[{48+2*k}:{49+2*k}], v[{8+2*(k%2)}:{9+2*(k%2)}]")
        fin(13)
        o = 14 + 2 * ps
        round_bf16(a, o, 12)
        round_bf16(a, 13, 13)
        a("v_add_f32 v13, 0x3727c5ac, v13")
        round_bf16(a, 13, 13)
        a("v_sqrt_f32 v13, v13")
        round_bf16(a, 13, 13)
        a(f"v_rcp_f32 v{o+1}, v13")
        a("v_cmp_eq_u32 vcc, 0, v4")
        a("s_and_saveexec_b64 s[14:15], vcc")
        a(f"s_mov_b32 s11, {WS_STATS:#x}")
        vm.issue('st', f"buffer_store_dwordx2 v[{o}:{o+1}], v2, s[{SRD_WS}:{SRD_WS+3}], s11 offen offset:{64*ps} sc1")
        a("s_mov_b64 exec, s[14:15]")
    a("s_waitcnt vmcnt(0)")
    a("v_mov_b32 v8, 0")
    a("v_mov_b32 v9, 1")
    a("s_mov_b64 exec, 1")
    a(f"global_atomic_add v8, v9, s[{P_DBG}:{P_DBG+1}] sc1")
    a("s_mov_b64 exec, -1")
    ts(1)
    ts.dump(8, 9)
    a("s_endpgm")
    a.label("L_h_pf")
    a("v_lshlrev_b32 v2, 4, v0")
    a(f"s_lshl_b32 s11, s{S_W4}, 10")
    a("v_add_u32 v2, s11, v2")
    if cfg.cpf == 1:
        a("s_getpc_b64 s[60:61]")
        a.label("L_pc")
        a(f"s_sub_u32 s60, s60, L_pc-{KNAME}")
        a("s_subb_u32 s61, s61, 0")
        a("s_lshl_b32 s11, s73, 12")
        a("v_add_u32 v3, s11, v2")
        for k in range(2):
            a(f"v_min_u32 v4, L_exit-{KNAME}-12, v3")
            a(f"global_load_dwordx4 v[24:27], v4, s[60:61]")
            a(f"v_add_u32 v3, 16384, v3")
    a("s_waitcnt lgkmcnt(0)")
    if cfg.hdelay == 1: a("s_waitcnt vmcnt(0)")
    if cfg.hdelay >= 2: a("s_barrier")
    srd(a, SRD_WS, P_WS, WS_SIZE)
    a("s_lshl_b32 s60, s72, 2")
    a(f"s_add_u32 s60, s60, s{S_W4}")
    a("s_cmp_ge_u32 s60, 98")
    a("s_cbranch_scc1 L_h_nopack1")
    a("s_mul_i32 s61, s60, 37")
    a("s_lshr_b32 s61, s61, 8")
    a("s_mul_i32 s62, s61, 7")
    a("s_sub_u32 s62, s60, s62")
    a("s_cmp_lt_i32 s62, 0")
    a("s_cselect_b32 s11, 1, 0")
    a("s_sub_u32 s61, s61, s11")
    a("s_mul_i32 s62, s61, 7")
    a("s_sub_u32 s62, s60, s62")
    a("s_bitcmp1_b32 s61, 0")
    srd_sel(a, 68, P_CIM, P_CRE, 448 * 896)
    a("v_lshrrev_b32 v3, 3, v0")
    a("v_and_b32 v4, 7, v0")
    a("v_lshrrev_b32 v5, 1, v3")
    a("v_xor_b32 v4, v4, v5")
    a("s_lshr_b32 s11, s61, 1")
    a("s_lshl_b32 s11, s11, 6")
    a("v_add_u32 v3, s11, v3")
    a("v_mul_u32_u24 v3, 896, v3")
    a("v_lshl_add_u32 v3, v4, 4, v3")
    a("v_xor_b32 v4, 64, v3")
    a(f"s_lshl_b32 s63, s{S_W4}, 13")
    a("s_lshl_b32 s12, s62, 7")
    for n in range(8):
        a(f"s_add_u32 m0, s63, {n*1024}")
        a(f"s_add_u32 s11, s12, {8*n*896}")
        a(f"buffer_load_dwordx4 v{3 + (n & 1)}, s[68:71], s11 offen lds")
    a.label("L_h_nopack1")
    def h_sweep():
        if cfg.hpf:
            for (ptr, nbytes, srdn) in ((P_WD, 1792 * 896, 56),):
                srd(a, srdn, ptr, nbytes)
            def sweep(name, srds, qbytes, first, count):
                n8 = -(-qbytes // (8 * 4096))
                n = 8 * n8
                a(f"s_mul_i32 s12, s73, {qbytes}")
                a(f"s_add_u32 s13, s{S_XCD}, {first}")
                a("s_and_b32 s13, s13, 7")
                a(f"s_mul_i32 s13, s13, {n8}")
                a("s_mov_b32 s14, 0")
                a.label(name)
                a("s_lshl_b32 s11, s13, 12")
                a("s_add_u32 s11, s11, s12")
                for k, sr in enumerate(srds):
                    a(f"buffer_load_dwordx4 v[{16+4*k}:{19+4*k}], v2, s[{sr}:{sr+3}], s11 offen")
                a("s_add_u32 s13, s13, 1")
                a(f"s_cmp_eq_u32 s13, {n}")
                a("s_cselect_b32 s13, 0, s13")
                a("s_add_u32 s14, s14, 1")
                a(f"s_cmp_lt_u32 s14, {n8 * count}")
                a(f"s_cbranch_scc1 {name}")
            sweep("L_h_p2", [56], 1792 * 896 // 4, 0, 1)
            ts(2)
    def h_pack():
        a("s_cmp_ge_u32 s60, 98")
        a("s_cbranch_scc1 L_h_nopack2")
        a("v_and_b32 v5, 31, v0")
        a("v_lshrrev_b32 v6, 5, v0")
        a("v_bfe_u32 v7, v0, 1, 3")
        a("v_xor_b32 v7, v7, v6")
        a("v_lshlrev_b32 v7, 4, v7")
        a("v_lshl_add_u32 v5, v5, 7, v7")
        a("v_add_u32 v5, s63, v5")
        a("v_lshlrev_b32 v6, 4, v0")
        a("s_mul_i32 s12, s61, 28")
        a("s_lshl_b32 s11, s62, 2")
        a("s_add_u32 s12, s12, s11")
        a("s_lshl_b32 s12, s12, 11")
        a(f"s_add_u32 s12, s12, {WS_CP:#x}")
        a(f"s_waitcnt vmcnt({13 if (cfg.hpf and not cfg.hord) else 0})")
        for ks in range(4):
            a(f"v_xor_b32 v7, {32*ks}, v5")
            for ct in range(2):
                d = 32 + 8 * ks + 4 * ct
                a(f"ds_read_b128 v[{d}:{d+3}], v7 offset:{4096*ct}")
        for ks in range(4):
            a(f"s_waitcnt lgkmcnt({6 - 2*ks})")
            a(f"s_add_u32 s11, s12, {2048*ks}")
            for ct in range(2):
                d = 32 + 8 * ks + 4 * ct
                a(f"buffer_store_dwordx4 v[{d}:{d+3}], v6, s[{SRD_WS}:{SRD_WS+3}], s11 offen offset:{1024*ct} sc1")
        a("s_waitcnt vmcnt(0)")
        a("v_mov_b32 v8, 0")
        a("v_mov_b32 v9, 1")
        a("s_mov_b64 exec, 1")
        a(f"global_atomic_add v8, v9, s[{P_DBG}:{P_DBG+1}] sc1")
        a("s_mov_b64 exec, -1")
        ts(3)
        a.label("L_h_nopack2")
    if cfg.hord: h_pack(); h_sweep()
    else: h_sweep(); h_pack()
    ts.dump(8, 9)
    a("s_endpgm")

def spin_check(a, name, load_text_list, cond_fn, sleep=1):
    lo, done = a.newlabel(name + "_spin"), a.newlabel(name + "_ok")
    a(f"s_mov_b32 s73, 0")
    a.label(lo)
    cond_fn()
    a(f"s_cbranch_scc1 {done}")
    a("s_add_u32 s73, s73, 1")
    a(f"s_cmp_ge_u32 s73, {SPIN_MAX}")
    a(f"s_cbranch_scc1 {done}")
    a(f"s_sleep {sleep}")
    for t in load_text_list: a(t)
    a("s_waitcnt vmcnt(0)")
    a(f"s_branch {lo}")
    a.label(done)
    a("s_nop 4")

def sspin(a, name, loads, cond_fn, sleep=1):
    lo, done = a.newlabel(name + "_spin"), a.newlabel(name + "_ok")
    a("s_mov_b32 s73, 0")
    a.label(lo)
    for t in loads: a(t)
    a("s_waitcnt lgkmcnt(0)")
    cond_fn()
    a(f"s_cbranch_scc1 {done}")
    a("s_add_u32 s73, s73, 1")
    a(f"s_cmp_lt_u32 s73, {SPIN_MAX}")
    if sleep: a(f"s_sleep {sleep}")
    a(f"s_cbranch_scc1 {lo}")
    a.label(done)

def flag_index(a, d, t, grp):
    a(f"s_mul_i32 s{t}, s{S_NS}, 37")
    a(f"s_lshr_b32 s{t}, s{t}, {8 if grp == 7 else 9}")
    a(f"s_mul_i32 s{t}, s{t}, {32 - grp}")
    a(f"s_add_u32 s{d}, s{t}, s{S_NS}")
    a(f"s_lshl_b32 s{d}, s{d}, 2")

def interleave(a, prim, fill, per):
    fill = list(fill)
    for p in prim:
        p()
        for _ in range(per):
            if fill: a(fill.pop(0))
    for f in fill: a(f)

def p2_rot(a, cfg, d_ffn, d_blk, d_flip):
    if not cfg.rot:
        for d in (d_ffn, d_blk, d_flip): a(f"s_mov_b32 s{d}, 0")
        return
    tab = {2: [0] * 7, 1: list(range(7)), 3: [0, 3, 0, 3, 0, 3, 0], 4: [0, 2, 5, 0, 2, 5, 0], 5: [0, 4, 2, 5, 0, 4, 2], 6: [0, 1, 0, 1, 0, 1, 0], 7: [0, 2, 0, 2, 0, 2, 0]}[cfg.rot]
    word = sum(v << (4 * k) for k, v in enumerate(tab))
    a(f"s_lshl_b32 s11, s{S_NT}, 2")
    a(f"s_lshr_b32 s13, {word:#x}, s11")
    a("s_and_b32 s13, s13, 15")
    a(f"s_and_b32 s11, s{S_SLOT}, 3")
    a("s_lshl_b32 s11, s11, 1")
    a("s_add_u32 s11, s11, s13")
    a("s_cmp_ge_u32 s11, 7")
    a("s_cselect_b32 s13, 7, 0")
    a(f"s_sub_u32 s{d_ffn}, s11, s13")
    for d in (d_blk, d_flip): a(f"s_mov_b32 s{d}, 0")

def slot(reg, n): return R[reg] + 2048 * n
SA = [slot(1, n) for n in range(6)]; SB = [slot(2, n) for n in range(6)]; SC = [slot(0, n) for n in range(6)]
WSLOT = {}
for n in range(6): WSLOT[n] = SA[n]; WSLOT[6 + n] = SB[n]
for n in range(4): WSLOT[12 + n] = SC[n]; WSLOT[16 + n] = SA[n]; WSLOT[20 + n] = SB[n]
WSLOT.update({24: SA[4], 25: SA[5], 26: SB[4], 27: SB[5]})
HTS = SC[4]
PH1, PH2, GA, FXA, SD = SC[0], SC[4], SB[0], SA[0], SC[0]

class Rec:
    def __init__(self): self.L = []
    def __call__(self, t): self.L.append(t)

def ssm_park(kc, K, KP, sQ):
    LR, LI, CR, CI, L16R, L16I, PWR, PWI, L64R, L64I, LWR, LWI, W0R = [KP + k for k in range(13)]
    vTW, vTR, vCB = KP + 16, KP + 17, KP + 18
    ssm_const_calc(kc, K, LR, LI, CR, CI)
    csq(kc, L16R, L16I, LR, LI, K)
    for _ in range(3): csq(kc, L16R, L16I, L16R, L16I, K)
    def powsel(dr, di, br, bi, bit, src):
        cmul(kc, K + 1, K + 2, dr, di, br, bi)
        kc(f"v_and_b32 v{K}, {bit}, v{src}")
        kc(f"v_cmp_ne_u32 vcc, 0, v{K}")
        kc(f"v_cndmask_b32 v{dr}, v{dr}, v{K+1}, vcc")
        kc(f"v_cndmask_b32 v{di}, v{di}, v{K+2}, vcc")
    kc(f"v_mov_b32 v{PWR}, v{CR}"); kc(f"v_mov_b32 v{PWI}, v{CI}")
    powsel(PWR, PWI, L16R, L16I, 32, 0)
    csq(kc, K + 14, K + 15, L16R, L16I, K)
    powsel(PWR, PWI, K + 14, K + 15, 16, 0)
    csq(kc, L64R, L64I, K + 14, K + 15, K)
    kc(f"v_mov_b32 v{K+10}, s{S_W4}")
    kc(f"v_mov_b32 v{LWR}, 1.0"); kc(f"v_mov_b32 v{LWI}, 0")
    powsel(LWR, LWI, L64R, L64I, 1, K + 10)
    csq(kc, K + 14, K + 15, L64R, L64I, K)
    powsel(LWR, LWI, K + 14, K + 15, 2, K + 10)
    csq(kc, K + 14, K + 15, K + 14, K + 15, K)
    kc(f"v_lshrrev_b32 v{K+10}, 4, v0")
    kc(f"v_sub_u32 v{K+10}, s{S_MT}, v{K+10}")
    kc(f"v_add_u32 v{K+11}, -5, v{K+10}")
    kc(f"v_add_u32 v{K+10}, -1, v{K+10}")
    kc(f"v_mov_b32 v{W0R}, 1.0"); kc(f"v_mov_b32 v{W0R+1}, 0")
    kc(f"v_mov_b32 v{W0R+2}, 1.0"); kc(f"v_mov_b32 v{W0R+3}, 0")
    for b in range(3):
        powsel(W0R, W0R + 1, K + 14, K + 15, 1 << b, K + 10)
        if b < 2: powsel(W0R + 2, W0R + 3, K + 14, K + 15, 1 << b, K + 11)
        if b < 2: csq(kc, K + 14, K + 15, K + 14, K + 15, K)
    kc(f"s_add_u32 s36, s{sQ}, {HTS}")
    kc(f"v_bfe_u32 v{K}, v0, 4, 1")
    kc(f"v_lshrrev_b32 v{K+1}, 5, v0")
    kc(f"v_lshl_add_u32 v{K+2}, v{K}, 1, v{K+1}")
    kc(f"v_and_b32 v{K+3}, 15, v0")
    kc(f"v_and_b32 v{vTW}, 6, v{K+3}")
    kc(f"v_lshlrev_b32 v{vTW}, 4, v{vTW}")
    kc(f"v_lshlrev_b32 v{K+4}, 5, v{K+2}")
    kc(f"v_xor_b32 v{vTW}, v{vTW}, v{K+4}")
    kc(f"v_lshl_add_u32 v{vTW}, v{K+3}, 7, v{vTW}")
    kc(f"v_add_u32 v{vTW}, s36, v{vTW}")
    kc(f"v_lshlrev_b32 v{vCB}, 2, v{K+3}")
    kc(f"v_add_u32 v{vCB}, {C_L + 512}, v{vCB}")
    kc(f"v_bfe_u32 v{K+4}, v0, 2, 2")
    kc(f"v_lshl_add_u32 v{K+5}, v{K+1}, 3, v{K+4}")
    kc(f"v_lshlrev_b32 v{vTR}, 7, v{K+5}")
    kc(f"v_lshrrev_b32 v{K+4}, 1, v{K+4}")
    kc(f"v_xor_b32 v{K+4}, v{K+4}, v0")
    kc(f"v_and_b32 v{K+4}, 1, v{K+4}")
    kc(f"v_lshl_add_u32 v{vTR}, v{K+4}, 5, v{vTR}")
    kc(f"v_lshl_add_u32 v{vTR}, v{K}, 4, v{vTR}")
    kc(f"v_bfe_u32 v{K+4}, v0, 1, 1")
    kc(f"v_lshl_add_u32 v{vTR}, v{K+4}, 3, v{vTR}")
    kc(f"v_add_u32 v{vTR}, s36, v{vTR}")
    kc(f"s_lshl_b32 s36, s{S_W4}, 9")
    kc(f"s_add_u32 s36, s36, {STATS_L}")
    kc(f"v_lshl_add_u32 v{KP+19}, v{K+2}, 7, s36")
    vStS = KP + 19
    vAg, vPr, vF = KP + 20, KP + 21, KP + 22
    kc(f"v_lshlrev_b32 v{vAg}, 3, v{K+3}")
    kc(f"v_lshrrev_b32 v{vPr}, 4, v0")
    kc(f"v_mul_u32_u24 v{vPr}, 3584, v{vPr}")
    kc(f"s_lshl_b32 s36, s{S_NS}, 7")
    kc(f"v_add3_u32 v{vPr}, v{vPr}, v{vAg}, s36")
    kc(f"v_add_u32 v{vAg}, {AGG_L}, v{vAg}")
    kc(f"s_lshl_b32 s36, s{S_MT}, 2")
    kc(f"s_add_u32 s36, s36, s{S_W4}")
    kc("s_lshl_b32 s36, s36, 10")
    flag_index(kc, 37, 38, 14)
    kc("s_add_u32 s36, s36, s37")
    kc(f"s_add_u32 s36, s36, {WS_FLAG + 512:#x}")
    kc(f"v_mov_b32 v{vF}, s36")

def gen_loader(a, cfg, ts):
    a.label("L_loader")
    a("s_setprio 3")
    vm = VM(a)
    vXe, vXo, vW, vB = 1, 2, 3, 4
    vFv, vP, vO, vPQ = 5, 6, 7, 8
    vWd, vCe, vCo, vCh = 9, 10, 11, 12
    vRf, vRh = 13, 14
    vA, vC = 24, 25
    vT = 15
    ACC, CA, RD = 27, 28, 44
    STG = 64
    CF = 144
    SACC = 80
    XRAW = CF + 64
    KP = XRAW + 8
    sGrp = [28, 29, 30, 31, 36, 37, 21]
    SP = ['', ' sc1'][cfg.spol]
    sMX, sMW, sMB, sMP = 72, 74, 75, 70
    sPerm, sSX, sSW = 68, 69, 15
    sRF = 14
    AP = ['', ' sc1', ' sc1 nt', ' sc0 sc1', ' sc0', ' nt'][cfg.apol]
    OP = ['', ' sc1', ' nt', ' sc1 nt'][cfg.opol]
    polx = " nt" if cfg.polx else ""
    polw = " nt" if cfg.polw else ""
    a(f"v_lshrrev_b32 v{vA}, 3, v0")
    a(f"v_and_b32 v{vC}, 7, v0")
    a(f"v_lshrrev_b32 v{vT+2}, 1, v{vA}")
    a(f"s_lshl_b32 s11, s{S_W4}, 4")
    a(f"v_add_u32 v{vT}, s11, v{vA}")
    a(f"v_mul_u32_u24 v{vW}, 3584, v{vT}")
    a(f"v_and_b32 v{vT+4}, 1, v{vT+2}")
    a(f"v_lshlrev_b32 v{vT+4}, 2, v{vT+4}")
    a(f"v_xor_b32 v{vT+4}, v{vC}, v{vT+4}")
    a(f"v_lshl_add_u32 v{vW}, v{vT+4}, 4, v{vW}")
    a(f"s_lshl_b32 s11, s{S_NS}, 7")
    a(f"v_add_u32 v{vW}, s11, v{vW}")
    a(f"s_lshl_b32 s11, s{S_MT}, 8")
    a(f"s_lshl_b32 s12, s{S_W4}, 6")
    a("s_add_u32 s11, s11, s12")
    a(f"v_lshrrev_b32 v{vT}, 2, v{vA}")
    a(f"v_and_b32 v{vT+1}, 3, v{vA}")
    a(f"v_lshl_add_u32 v{vT}, v{vT}, 4, v{vT+1}")
    a(f"v_add_u32 v{vT}, s11, v{vT}")
    a(f"v_mul_u32_u24 v{vXe}, 896, v{vT}")
    a(f"v_xor_b32 v{vT+3}, v{vC}, v{vT+2}")
    a(f"v_lshl_add_u32 v{vXe}, v{vT+3}, 4, v{vXe}")
    a(f"v_xor_b32 v{vXo}, 64, v{vXe}")
    a(f"s_and_b32 s12, s{S_W4}, 1")
    a(f"s_lshl_b32 s11, s{S_NS}, 4")
    a(f"s_lshl_b32 s13, s12, 3")
    a("s_add_u32 s11, s11, s13")
    a(f"v_add_u32 v{vT}, s11, v{vA}")
    a(f"v_mul_u32_u24 v{vB}, 896, v{vT}")
    a(f"v_lshl_add_u32 v{vB}, v{vT+3}, 4, v{vB}")
    a("s_lshl_b32 s13, s12, 6")
    a(f"v_xor_b32 v{vB}, s13, v{vB}")
    a(f"s_lshl_b32 s{sMX}, s{S_W4}, 13")
    a(f"s_lshl_b32 s{sMW}, s{S_W4}, 11")
    a(f"s_lshl_b32 s{sMB}, s{S_W4}, 10")
    a(f"s_mul_i32 s{sMP}, s{S_W4}, {Q}")
    perms = cfg.perms
    words = [sum(p[k] << (4 * k) for k in range(7)) for p in perms]
    ng = len(words)
    a(f"s_mov_b32 s{sPerm}, {words[0]:#x}")
    if ng > 1:
        if cfg.slab:
            a(f"s_add_u32 s11, s{S_SLOT}, s{S_XCD}")
        else:
            a(f"s_and_b32 s11, s{S_SLOT}, 3")
            a(f"s_add_u32 s11, s11, s{S_NT}")
        if ng == 3:
            a("s_mul_i32 s13, s11, 43")
            a("s_lshr_b32 s13, s13, 7")
            a("s_mul_i32 s13, s13, 3")
            a("s_sub_u32 s11, s11, s13")
        else:
            a(f"s_and_b32 s11, s11, {ng-1}")
        for g in range(1, ng):
            a(f"s_cmp_eq_u32 s11, {g}")
            a(f"s_cmov_b32 s{sPerm}, {words[g]:#x}")
    ts.x(1, 1)
    a("s_waitcnt lgkmcnt(0)")
    ts.x(1, 2)
    if cfg.tlb:
        a(f"v_mov_b32 v40, s{P_X}")
        a(f"v_mov_b32 v41, s{P_X+1}")
        for ln, p in enumerate([P_WG, P_WU, P_BRE, P_BIM, P_WD, P_CRE, P_CIM, P_WS][:cfg.tlb], 1):
            a(f"v_writelane_b32 v40, s{p}, {ln}")
            a(f"v_writelane_b32 v41, s{p+1}, {ln}")
        a(f"s_mov_b64 exec, {(1 << (cfg.tlb + 1)) - 1:#x}")
        a("global_load_dword v62, v[40:41], off")
        a("s_mov_b64 exec, -1")
    srd(a, SRD_A, P_WG, 448 * 3584)
    srd(a, SRD_X, P_X, 2048 * 896)
    srd(a, SRD_B, P_WU, 448 * 3584)
    a(f"s_cmp_ge_u32 s{S_W4}, 2")
    srd_sel(a, SRD_C, P_BIM, P_BRE, 448 * 896)

    thr = [None]
    def dma(vm, tag, voff, srdn, sbase, soff, m0base, m0off, pol=""):
        a(f"s_add_u32 m0, s{m0base}, {m0off}")
        a(f"s_add_u32 s11, s{sbase}, {soff}")
        if thr[0] is not None and len(vm.q) > thr[0]:
            a(f"s_waitcnt vmcnt({thr[0]})")
            vm.q = vm.q[-thr[0]:]
        vm.issue(tag, f"buffer_load_dwordx4 v{voff}, s[{srdn}:{srdn+3}], s11 offen{pol} lds")
    def issue_ops(s):
        r = R[s % 3]
        ops = []
        def pre():
            a(f"s_bfe_u32 s{sSX}, s{sPerm}, {(4 << 16) | (4 * s):#x}")
            a(f"s_mul_i32 s{sSW}, s{sSX}, {64*3584}")
            a(f"s_lshl_b32 s{sSX}, s{sSX}, 7")
        def mk(*args): return lambda: dma(vm, ('st', s), *args)
        L = []
        for i in range(2): L.append(mk(vW, SRD_A, sSW, i * 8 * 3584, sMW, r + OFF_WG + i * 1024, polw))
        for j in range(4): L.append(mk(vXo if j & 1 else vXe, SRD_X, sSX, (32 * (j >> 2) + 4 * (j & 3)) * 896, sMX, r + j * 1024, polx))
        for i in range(2): L.append(mk(vW, SRD_B, sSW, i * 8 * 3584, sMW, r + OFF_WU + i * 1024, polw))
        for j in range(4, 8): L.append(mk(vXo if j & 1 else vXe, SRD_X, sSX, (32 * (j >> 2) + 4 * (j & 3)) * 896, sMX, r + j * 1024, polx))
        L.append(mk(vB, SRD_C, sSX, 0, sMB, r + OFF_BB, polw))
        first = L[0]
        L[0] = lambda: (pre(), first())
        return L
    SRD_WD, SRD_CC, sBlk, sFlip, P_DSK2 = 32, 24, 16, 17, 38
    def w_ops(ps):
        L = []
        for p in ps:
            for n in range(2):
                def op(p=p, n=n):
                    if 12 <= p < 22:
                        d = STG + (p - 12) * 8 + 4 * n
                        a(f"s_add_u32 s11, s{sGrp[p//4]}, {((p % 4) * 16 + 8 * n) * 896}")
                        vm.issue(('w', p), f"buffer_load_dwordx4 v[{d}:{d+3}], v{vWd}, s[{SRD_WD}:{SRD_WD+3}], s11 offen")
                    else:
                        dma(vm, ('w', p), vWd, SRD_WD, sGrp[p//4], ((p % 4) * 16 + 8 * n) * 896, sMP, WSLOT[p] + n * 1024)
                L.append(op)
        return L
    sCF, sCH = 16, 17
    def cfrag(p, lc): return CF + 8 * p + 4 * lc
    def c_ops(b):
        L = []
        for p in (range(4 * b, 4 * b + 4) if b < 3 else (12, 13)):
            for lc in range(2):
                def op(p=p, lc=lc):
                    d = cfrag(p, lc)
                    sb, so = (sCF, 2048 * p) if p < 12 else (sCH, 2048 * (p - 12))
                    a(f"s_add_u32 s11, s{sb}, {so}")
                    vm.issue(('c', b), f"buffer_load_dwordx4 v[{d}:{d+3}], v{(vCe, vCo)[lc]}, s[{SRD_WS}:{SRD_WS+3}], s11 offen sc1")
                L.append(op)
        return L
    def w_write(ps):
        vm.wait(('w', ps[-1]))
        base = WSLOT[ps[0]]
        a(f"v_add_u32 v{vT+4}, {base}, v{vPQ}")
        for p in ps:
            for n in range(2):
                d = STG + (p - 12) * 8 + 4 * n
                a(f"ds_write_b128 v{vT+4}, v[{d}:{d+3}] offset:{WSLOT[p] - base + 1024*n}")
    def colsum_reads(s):
        r = R[s % 3]
        a(f"s_add_u32 s11, s{sMW}, {r + OFF_WG}")
        a(f"v_add_u32 v{vT}, s11, v{vP}")
        a(f"s_add_u32 s11, s{sMB}, {r + OFF_BB}")
        a(f"v_add_u32 v{vT+1}, s11, v{vP}")
        a(f"ds_read_b128 v[{RD}:{RD+3}], v{vT}")
        a(f"ds_read_b128 v[{RD+4}:{RD+7}], v{vT} offset:1024")
        a(f"ds_read_b128 v[{RD+8}:{RD+11}], v{vT} offset:8192")
        a(f"ds_read_b128 v[{RD+12}:{RD+15}], v{vT} offset:9216")
        a(f"ds_read_b128 v[{RD+16}:{RD+19}], v{vT+1}")
    def colsum_ops():
        L = ["s_waitcnt lgkmcnt(0)"]
        for n in range(4):
            for d in range(4):
                w = RD + 4 * n + d
                ac = CA + (n >> 1) * 8 + 2 * d
                L.append(f"v_lshlrev_b32 v{vT+2}, 16, v{w}")
                L.append(f"v_and_b32 v{vT+3}, s71, v{w}")
                L.append(f"v_add_f32 v{ac}, v{ac}, v{vT+2}")
                L.append(f"v_add_f32 v{ac+1}, v{ac+1}, v{vT+3}")
        for d in range(4):
            w = RD + 16 + d
            L.append(f"v_lshlrev_b32 v{vT+2}, 16, v{w}")
            L.append(f"v_and_b32 v{vT+3}, s71, v{w}")
            L.append(f"v_add_f32 v{vT+2}, v{vT+2}, v{vT+3}")
            L.append(f"v_add_f32 v{ACC}, v{ACC}, v{vT+2}")
        return L

    stage_ops = {}
    cdone = set()
    def tok_ops(toks):
        L = []
        for t in toks:
            if t[0] == 's':
                st = int(t[1])
                if st not in stage_ops: stage_ops[st] = issue_ops(st)
                lo, hi = (0, 13) if ':' not in t else map(int, t.split(':')[1].split('-'))
                L += stage_ops[st][lo:hi]
            elif t[0] == 'w': L += w_ops([int(t[1:])])
            elif t[0] == 'c':
                lo, hi = (0, 8) if ':' not in t else map(int, t.split(':')[1].split('-'))
                L += c_ops(int(t[1]))[lo:hi]
                cdone.add(int(t[1]))
            else: L.append(lambda t=t: special(t))
        return L
    def run_tokens(toks):
        for o in tok_ops(toks): o()
    def special(t):
        if True:
            if t == 'put':
                vm.wait('stats')
                a(f"s_lshl_b32 s11, s{S_W4}, 9")
                a(f"s_add_u32 s11, s11, {STATS_L}")
                a(f"v_lshl_add_u32 v{vT+4}, v0, 3, s11")
                a(f"ds_write_b64 v{vT+4}, v[20:21]")
                a(f"v_lshlrev_b32 v{vT+4}, 3, v0")
                a(f"v_add_u32 v{vT+4}, {ST2_L}, v{vT+4}")
                a(f"ds_write_b64 v{vT+4}, v[22:23]")
            elif t == 'e':
                a(f"s_add_u32 s12, s41, {16*896}")
                vm.issue('e', f"buffer_load_dwordx4 v[{XRAW}:{XRAW+3}], v20, s[{SRD_X}:{SRD_X+3}], s41 offen")
                vm.issue('e', f"buffer_load_dwordx4 v[{XRAW+4}:{XRAW+7}], v20, s[{SRD_X}:{SRD_X+3}], s12 offen")
                vm.issue('e', f"global_load_ushort v{KP+23}, v21, s[{P_DSK2}:{P_DSK2+1}]")
            elif t == 'k':
                a("s_waitcnt lgkmcnt(0)")
            elif t == 'init':
                a(f"v_mov_b32 v26, 0")
                vm.issue('init', f"global_load_dword v5, v26, s[{P_DBG}:{P_DBG+1}] sc1")
            elif t == 'fetch':
                vm.wait('init')
                def cond():
                    a(f"v_readfirstlane_b32 s11, v5")
                    a(f"s_cmp_ge_u32 s11, {INIT_N}")
                spin_check(a, "L_init", [f"global_load_dword v5, v26, s[{P_DBG}:{P_DBG+1}] sc1"], cond, 8)
                a(f"s_lshl_b32 s11, s{S_MT}, 8")
                a(f"s_lshl_b32 s12, s{S_W4}, 6")
                a("s_add_u32 s11, s11, s12")
                a(f"v_add_lshl_u32 v5, v0, s11, 3")
                a(f"s_lshl_b32 s12, s{S_M64}, 6")
                a(f"v_add_lshl_u32 v26, v0, s12, 3")
                a(f"s_mov_b32 s11, {WS_STATS:#x}")
                vm.issue('stats', f"buffer_load_dwordx2 v[20:21], v5, s[{SRD_WS}:{SRD_WS+3}], s11 offen sc1")
                vm.issue('stats', f"buffer_load_dwordx2 v[22:23], v26, s[{SRD_WS}:{SRD_WS+3}], s11 offen sc1")
            else: raise ValueError(t)
    win = cfg.win
    run_tokens(["s0"])
    ts(1)
    ts.x(1, 6)
    run_tokens(win.get(-1, []))
    a("s_setprio 0")
    a(f"s_and_b32 s12, s{S_W4}, 1")
    a(f"v_lshlrev_b32 v{vP}, 4, v0")
    a(f"v_add_u32 v{vPQ}, s{sMP}, v{vP}")
    a(f"s_mul_i32 s14, s{S_W4}, 448")
    a(f"v_add_u32 v{vT}, s14, v{vA}")
    a(f"v_mul_u32_u24 v{vWd}, 896, v{vT}")
    a(f"v_lshl_add_u32 v{vWd}, v{vT+4}, 4, v{vWd}")
    a(f"s_lshl_b32 s14, s{S_NT}, 7")
    a(f"v_add_u32 v{vWd}, s14, v{vWd}")
    a(f"v_and_b32 v{vT+1}, 3, v0")
    a("s_mov_b32 s71, 0xffff0000")
    for k in range(17): a(f"v_mov_b32 v{ACC+k}, 0")
    srd(a, SRD_WS, P_WS, WS_SIZE)
    a(f"s_mov_b64 s[{P_DSK2}:{P_DSK2+1}], s[{P_DSK}:{P_DSK+1}]")
    srd(a, SRD_WD, P_WD, 1792 * 896)
    p2_rot(a, cfg, sRF, sBlk, sFlip)
    a(f"s_lshl_b32 s11, s{S_M64}, 1")
    a("s_add_u32 s40, s11, s12")
    a("s_lshl_b32 s12, s40, 5")
    a(f"v_lshrrev_b32 v{vT}, 2, v0")
    a(f"v_add_u32 v{vT}, s12, v{vT}")
    a(f"v_mul_u32_u24 v{vT}, 896, v{vT}")
    a(f"v_lshl_add_u32 v20, v{vT+1}, 4, v{vT}")
    a(f"v_lshrrev_b32 v{vT+2}, 5, v0")
    a(f"v_lshl_add_u32 v{vT}, v{vT+2}, 4, s12")
    a(f"s_lshr_b32 s13, s{S_W4}, 1")
    a("s_lshl_b32 s12, s13, 5")
    a(f"s_lshl_b32 s11, s{S_NT}, 6")
    a("s_add_u32 s11, s11, s12")
    a("s_lshl_b32 s41, s11, 1")
    a(f"v_and_b32 v{vT+3}, 31, v0")
    a(f"v_add_u32 v{vT+1}, s11, v{vT+3}")
    a(f"v_mul_u32_u24 v{vT}, 448, v{vT}")
    a(f"v_add_lshl_u32 v{vO}, v{vT}, v{vT+1}, 2")
    a(f"v_lshlrev_b32 v21, 1, v{vT+1}")
    a("s_lshl_b32 s12, s13, 10")
    a(f"v_add_u32 v{vCe}, s12, v{vP}")
    a(f"v_xor_b32 v{vCo}, 1024, v{vCe}")
    a(f"s_lshl_b32 s11, s{S_NT}, 1")
    a("s_add_u32 s11, s11, s13")
    a(f"s_mul_i32 s11, s11, {28*2048}")
    a(f"s_add_u32 s11, s11, {WS_CP:#x}")
    a(f"s_and_b32 s12, s{S_W4}, 1")
    a(f"s_lshl_b32 s{sCF}, s12, 15")
    a(f"s_add_u32 s{sCF}, s{sCF}, s11")
    a(f"s_lshl_b32 s{sCH}, s12, 12")
    a(f"s_add_u32 s{sCH}, s{sCH}, s11")
    a(f"s_add_u32 s{sCH}, s{sCH}, {12*2048}")
    a(f"v_bfe_u32 v{vT}, v0, 4, 1")
    a(f"v_lshlrev_b32 v{vT+1}, 2, v{vT}")
    a(f"v_xor_b32 v{vC}, v{vC}, v{vT+1}")
    a(f"v_lshlrev_b32 v{vC}, 5, v{vC}")
    a(f"v_lshl_add_u32 v{vC}, v{vT}, 9, v{vC}")
    a(f"v_lshl_add_u32 v{vC}, v{vT+2}, 8, v{vC}")
    a(f"s_add_u32 s11, s{sMB}, {CP_L}")
    a(f"v_add_u32 v{vC}, s11, v{vC}")
    a(f"s_lshl_b32 s11, s{S_W4}, 5")
    a(f"s_add_u32 s11, s11, {C_L + 512}")
    a(f"v_lshl_add_u32 v{vA}, v{vA}, 2, s11")
    ts.x(1, 8)
    LR, LI, CR, CI, L16R, L16I, PWR, PWI, L64R, L64I, LWR, LWI, W0R = [KP + k for k in range(13)]
    vTW, vTR, vCB, vStS, vAg, vPr, vF = [KP + k for k in range(16, 23)]
    a(f"s_lshl_b32 s21, s{S_NS}, 7")
    a(f"s_mul_i32 s22, s{S_MT}, 3584")
    a("s_add_u32 s22, s22, s21")
    a(f"s_add_u32 s22, s22, {WS_AGG - AGG_L:#x}")
    a(f"s_mov_b32 s23, {WS_AGG:#x}")
    a(f"s_mov_b32 s20, {WS_AGG + 4*3584:#x}")
    a(f"s_lshl_b32 s18, s{S_M64}, 10")
    a(f"s_and_b32 s11, s{S_W4}, 1")
    a("s_lshl_b32 s11, s11, 7")
    a("s_add_u32 s18, s18, s11")
    a(f"s_add_u32 s18, s18, {WS_FLAG + 512:#x}")
    a(f"s_lshl_b32 s11, s{S_MT}, 2")
    a(f"s_add_u32 s11, s11, s{S_W4}")
    a(f"s_mul_i32 s19, s11, {2*RT_BYTES}")
    a(f"s_lshl_b32 s11, s{S_NS}, 10")
    a("s_add_u32 s19, s19, s11")
    a(f"s_add_u32 s19, s19, {56*1024}")
    for g in range(7):
        a(f"s_add_u32 s12, s{sRF}, {g}")
        a("s_cmp_ge_u32 s12, 7")
        a("s_cselect_b32 s13, 7, 0")
        a("s_sub_u32 s12, s12, s13")
        a(f"s_mul_i32 s{sGrp[g]}, s12, {64*896}")
    a(f"s_add_u32 s11, s{sMX}, {R[2]}")
    a(f"v_add_u32 v{vT+4}, s11, v{vP}")
    kparts = {}
    if cfg.wprio: a(f"s_setprio {cfg.wprio}")
    for s in range(7):
        vm.wait(('st', s))
        ts.x(2, 1 + s)
        a("s_barrier")
        ts.x(3, 1 + s)
        if s == 0: ts(2)
        if s == 0:
            for k in range(6): a(f"ds_read_b128 v[{KP+4*k}:{KP+4*k+3}], v{vT+4} offset:{1024*k}")
        if s == 6:
            QQ = 28
            for p in range(8): a(f"ds_read_b32 v{QQ+p}, v{vT+1} offset:{512*p}")
            a("s_waitcnt lgkmcnt(0)")
            for p in range(4): a(f"v_add_f32 v{QQ+p}, v{QQ+p}, v{QQ+4+p}")
            a(f"v_add_f32 v{QQ}, v{QQ}, v{QQ+2}")
            a(f"v_add_f32 v{QQ+1}, v{QQ+1}, v{QQ+3}")
            a(f"v_add_f32 v{QQ}, v{QQ}, v{QQ+1}")
            a(f"ds_write_b32 v{vT}, v{QQ}")
            pre = tok_ops(win[6][:2])
            for o in pre: o()
            a("s_waitcnt lgkmcnt(0)")
            a("s_barrier")
            a("s_setprio 0")
            run_tokens(win[6][2:])
            continue
        segs = [[None, []]]
        for t in win.get(s, []):
            if t.startswith("cs"): segs.append([int(t[2:]), []])
            else: segs[-1][1].append(t)
        for cs, toks in segs:
            fl = []
            if cs is not None:
                vm.wait(('st', cs))
                colsum_reads(cs)
                fl = colsum_ops()
            if cs == 6:
                b = ACC
                for k in range(8): fl.append(f"v_permlane32_swap_b32 v{CA+k}, v{CA+8+k}")
                fl.append(f"v_add_f32_dpp v{b}, v{b}, v{b} quad_perm:[1,0,3,2] row_mask:0xf bank_mask:0xf")
                for k in range(8): fl.append(f"v_add_f32 v{CA+k}, v{CA+k}, v{CA+8+k}")
                fl.append(f"v_add_f32_dpp v{b}, v{b}, v{b} quad_perm:[2,3,0,1] row_mask:0xf bank_mask:0xf")
                for k in range(8): fl.append(f"v_add_f32_dpp v{CA+k}, v{CA+k}, v{CA+k} row_ror:8 row_mask:0xf bank_mask:0xf")
                fl.append(f"v_add_f32_dpp v{b}, v{b}, v{b} row_half_mirror row_mask:0xf bank_mask:0xf")
                fl.append(f"ds_write_b128 v{vC}, v[{CA}:{CA+3}]")
                fl.append(f"ds_write_b128 v{vC}, v[{CA+4}:{CA+7}] offset:16")
                fl.append(f"ds_write_b32 v{vA}, v{b}")
            ops = tok_ops(toks)
            per = max(1, -(-len(fl) // max(1, len(ops))))
            interleave(a, ops, fl, per)
        if s == 5:
            a(f"s_and_b32 s12, s{S_W4}, 1")
            a("s_lshl_b32 s12, s12, 8")
            a(f"v_lshl_add_u32 v{vT}, v0, 2, s12")
            a(f"v_add_u32 v{vT+1}, {CP_L}, v{vT}")
            a(f"v_add_u32 v{vT}, {C_L}, v{vT}")
            a("s_waitcnt lgkmcnt(0)")
            a("s_setprio 3")
    ts.x(2, 8)
    a("s_barrier")
    ts(3)
    ts.x(3, 8)
    a(f"v_add_u32 v{vT+2}, {SD}, v{vPQ}")
    vm.wait(('w', 11), "lgkmcnt(0)")
    a("s_barrier")
    X, Y, ST = 32, 48, CF
    HR, HI, T1, T2, CBR, CBI, G0, G1, QR, QI = 20, 21, 22, 23, 24, 25, 26, 28, 30, 31
    for k in range(8): a(f"ds_read_b128 v[{X+4*k}:{X+4*k+3}], v{vT+2} offset:{1024*k}")
    a(f"ds_read_b32 v{CBR}, v{vCB}")
    a(f"ds_read_b32 v{CBI}, v{vCB} offset:64")
    for k in range(8): a(f"ds_read_b128 v[{ST+4*k}:{ST+4*k+3}], v{vStS} offset:{16*k}")
    a(f"s_setprio {cfg.eprio}")
    a(f"v_lshrrev_b32 v1, 4, v0")
    a(f"v_sub_u32 v1, s{S_MT}, v1")
    a(f"v_cmp_le_i32 s[56:57], 1, v1")
    a(f"v_cmp_le_i32 s[58:59], 5, v1")
    a(f"v_lshlrev_b32 v5, 16, v{KP+23}")
    a(f"v_mov_b32 v3, v{vF}")
    vF = 3
    a("s_waitcnt lgkmcnt(10)")
    for r in range(16): a(f"v_permlane16_swap_b32 v{X+r}, v{Y+r}")
    a("s_waitcnt lgkmcnt(0)")
    side = {}
    for r in range(16):
        if r in side: side[r]()
        m, rs = ST + 2 * r, ST + 2 * r + 1
        a(f"v_fma_f32 v{X+r}, -v{m}, v{CBR}, v{X+r}")
        a(f"v_fma_f32 v{Y+r}, -v{m}, v{CBI}, v{Y+r}")
        a(f"v_mul_f32 v{X+r}, v{X+r}, v{rs}")
        a(f"v_mul_f32 v{Y+r}, v{Y+r}, v{rs}")
        if r >= 1:
            pr, pi = (X, Y) if r == 1 else (HR, HI)
            a(f"v_fma_f32 v{T1}, -v{LI}, v{pi}, v{X+r}")
            a(f"v_fma_f32 v{T2}, v{LI}, v{pr}, v{Y+r}")
            a(f"v_fma_f32 v{HR}, v{LR}, v{pr}, v{T1}")
            a(f"v_fma_f32 v{HI}, v{LR}, v{pi}, v{T2}")
    z = CF
    a(f"v_mov_b32 v{z}, v{HR}"); a(f"v_mov_b32 v{z+1}, v{HI}")
    csq(a, z + 8, z + 9, L16R, L16I, z + 10)
    a(f"v_permlane32_swap_b32 v{HR}, v{z}")
    a(f"v_permlane32_swap_b32 v{HI}, v{z+1}")
    a(f"v_fma_f32 v{z}, -v{L16I}, v{HI}, v{z}")
    a(f"v_fma_f32 v{z+1}, v{L16I}, v{HR}, v{z+1}")
    a(f"v_fmac_f32 v{z}, v{L16R}, v{HR}")
    a(f"v_fmac_f32 v{z+1}, v{L16R}, v{HI}")
    a(f"v_mov_b32 v{z+2}, v{z}"); a(f"v_mov_b32 v{z+3}, v{z+1}")
    a(f"s_lshl_b32 s11, s{S_W4}, 7")
    a(f"v_add_u32 v{z+5}, s11, v{vAg}")
    a(f"v_permlane16_swap_b32 v{z}, v{z+2}")
    a(f"v_permlane16_swap_b32 v{z+1}, v{z+3}")
    a(f"v_fma_f32 v{z+2}, -v{z+9}, v{z+1}, v{z+2}")
    a(f"v_fma_f32 v{z+3}, v{z+9}, v{z}, v{z+3}")
    a(f"v_fmac_f32 v{z+2}, v{z+8}, v{z}")
    a(f"v_fmac_f32 v{z+3}, v{z+8}, v{z+1}")
    a(f"ds_write_b64 v{z+5}, v[{z+2}:{z+3}]")
    a("s_waitcnt lgkmcnt(0)")
    ts.x(2, 9)
    a(f"s_setprio {cfg.lprio}")
    a("s_barrier")
    ts(4)
    E = CF + 16
    for i in range(4): a(f"ds_read_b64 v[{E+2+2*i}:{E+3+2*i}], v{vAg} offset:{128*i}")
    a(f"v_mov_b32 v{E}, 0")
    a(f"v_mov_b32 v{E+1}, 0")
    a(f"v_and_b32 v{z+4}, 16, v0")
    a(f"v_cmp_ne_u32 s[12:13], 0, v{z+4}")
    for i in range(1, 4):
        e, p = E + 2 + 2 * i, E + 2 * i
        a(f"s_waitcnt lgkmcnt({3 - i})")
        a(f"v_fma_f32 v{e}, -v{L64I}, v{p+1}, v{e}")
        a(f"v_fma_f32 v{e+1}, v{L64I}, v{p}, v{e+1}")
        a(f"v_fmac_f32 v{e}, v{L64R}, v{p}")
        a(f"v_fmac_f32 v{e+1}, v{L64R}, v{p+1}")
    a(f"s_cmp_lg_u32 s{S_W4}, 0")
    a("s_cbranch_scc1 L_l_nopub")
    e = E + 8
    a(f"v_cmp_eq_u32 vcc, -1, v{e}")
    a(f"v_mov_b32 v{T1}, 0x7fc00000")
    a(f"v_cndmask_b32 v{e}, v{e}, v{T1}, vcc")
    a("s_mov_b64 exec, 0xffff")
    a(f"buffer_store_dwordx2 v[{e}:{e+1}], v{vAg}, s[{SRD_WS}:{SRD_WS+3}], s22 offen sc1")
    a("s_mov_b64 exec, -1")
    ts(5)
    a.label("L_l_nopub")
    a(f"v_cmp_lt_u32 vcc, 31, v0")
    a(f"v_cndmask_b32 v{z}, 0, v{z}, s[12:13]")
    a(f"v_cndmask_b32 v{z+1}, 0, v{z+1}, s[12:13]")
    a(f"v_fma_f32 v{HR}, -v{L16I}, v{z+1}, v{HR}")
    a(f"v_fma_f32 v{HI}, v{L16I}, v{z}, v{HI}")
    a(f"v_fmac_f32 v{HR}, v{L16R}, v{z}")
    a(f"v_fmac_f32 v{HI}, v{L16R}, v{z+1}")
    a(f"v_cndmask_b32 v{z}, v{z}, v{HR}, vcc")
    a(f"v_cndmask_b32 v{z+1}, v{z+1}, v{HI}, vcc")
    cmul(a, HR, HI, z, z + 1, CR, CI)
    a(f"s_bitcmp1_b32 s{S_W4}, 0")
    a("s_cselect_b64 vcc, -1, 0")
    a(f"v_cndmask_b32 v{QR}, v{E}, v{E+2}, vcc")
    a(f"v_cndmask_b32 v{QI}, v{E+1}, v{E+3}, vcc")
    a(f"v_cndmask_b32 v{T1}, v{E+4}, v{E+6}, vcc")
    a(f"v_cndmask_b32 v{T2}, v{E+5}, v{E+7}, vcc")
    a(f"s_bitcmp1_b32 s{S_W4}, 1")
    a("s_cselect_b64 vcc, -1, 0")
    a(f"v_cndmask_b32 v{QR}, v{QR}, v{T1}, vcc")
    a(f"v_cndmask_b32 v{QI}, v{QI}, v{T2}, vcc")
    ts.x(2, 10)
    thr[0] = cfg.thr
    lds = [f"buffer_load_dwordx2 v[{G0}:{G0+1}], v{vPr}, s[{SRD_WS}:{SRD_WS+3}], s23 offen sc1",
           f"buffer_load_dwordx2 v[{G1}:{G1+1}], v{vPr}, s[{SRD_WS}:{SRD_WS+3}], s20 offen sc1"]
    up = Rec()
    for r in range(16):
        up(f"v_mul_f32 v{T1}, v{CI}, v{Y+r}")
        up(f"v_mul_f32 v{T2}, v{CI}, v{X+r}")
        up(f"v_fma_f32 v{X+r}, v{CR}, v{X+r}, -v{T1}")
        up(f"v_fma_f32 v{Y+r}, v{CR}, v{Y+r}, v{T2}")
    vRd, vOne = 4, 2
    a(f"s_lshl_b32 s11, s{S_W4}, 2")
    a(f"s_add_u32 s11, s11, {CNT_L + 16}")
    a(f"v_mov_b32 v{vRd}, s11")
    a(f"v_mov_b32 v{vOne}, 1")
    thr[0] = None
    co = w_ops(range(22, 28)) + (sum([c_ops(b) for b in (0, 1, 3) if b not in cdone], []) if cfg.clate < 2 else [])
    interleave(a, co[:cfg.c1], up.L, 4)
    w_write([12, 13, 14, 15])
    a(f"ds_write_b32 v{vRd}, v{vOne}")
    XV, STT, DS = 64, 80, 5
    TT = SACC + 32
    vHW = 1
    a(f"v_add_u32 v{vHW}, {HTS}, v{vPQ}")
    a(f"ds_write_b128 v{vHW}, v[{XRAW}:{XRAW+3}]")
    a(f"ds_write_b128 v{vHW}, v[{XRAW+4}:{XRAW+7}] offset:1024")
    a(f"v_lshrrev_b32 v{vT+3}, 5, v0")
    a(f"v_lshlrev_b32 v{vT+2}, 10, v{vT+3}")
    a(f"v_and_b32 v{vT}, 31, v0")
    a(f"v_lshl_add_u32 v{vT+2}, v{vT}, 1, v{vT+2}")
    a(f"s_add_u32 s11, s{sMP}, {HTS}")
    a(f"v_add_u32 v{vT+2}, s11, v{vT+2}")
    for r in range(16): a(f"ds_read_u16 v{XV+r}, v{vT+2} offset:{64*r}")
    for t in lds: vm.issue('ag', t)
    w_write([16, 17])
    def wrest():
        w_write([18, 19])
        w_write([20, 21])
        a(f"v_mov_b32 v{T1}, 2")
        a(f"ds_write_b32 v{vRd}, v{T1}")
    if not cfg.wl: wrest()
    co = co[cfg.c1:]
    ts(8)
    vm.wait('ag')
    def cond():
        a(f"v_cmp_eq_u32 vcc, -1, v{G0}")
        a("s_and_b64 s[48:49], vcc, s[56:57]")
        a(f"v_cmp_eq_u32 vcc, -1, v{G1}")
        a("s_and_b64 s[50:51], vcc, s[58:59]")
        a("s_or_b64 s[48:49], s[48:49], s[50:51]")
        a("s_cmp_eq_u64 s[48:49], 0")
    spin_check(a, "L_agg", lds, cond, 2)
    ts(6)
    SR, SI = CBR, CBI
    cmul(a, SR, SI, G0, G0 + 1, W0R, W0R + 1)
    cmul(a, T1, T2, G1, G1 + 1, W0R + 2, W0R + 3)
    a(f"v_cndmask_b32 v{SR}, 0, v{SR}, s[56:57]")
    a(f"v_cndmask_b32 v{SI}, 0, v{SI}, s[56:57]")
    a(f"v_cndmask_b32 v{T1}, 0, v{T1}, s[58:59]")
    a(f"v_cndmask_b32 v{T2}, 0, v{T2}, s[58:59]")
    a(f"v_add_f32 v{SR}, v{SR}, v{T1}")
    a(f"v_add_f32 v{SI}, v{SI}, v{T2}")
    for sw in ("v_permlane32_swap_b32", "v_permlane16_swap_b32"):
        a(f"v_mov_b32 v{T1}, v{SR}")
        a(f"v_mov_b32 v{T2}, v{SI}")
        a(f"{sw} v{SR}, v{T1}")
        a(f"{sw} v{SI}, v{T2}")
        a(f"v_add_f32 v{SR}, v{SR}, v{T1}")
        a(f"v_add_f32 v{SI}, v{SI}, v{T2}")
    a(f"v_fmac_f32 v{QR}, v{LWR}, v{SR}")
    a(f"v_fmac_f32 v{QI}, v{LWR}, v{SI}")
    a(f"v_fma_f32 v{QR}, -v{LWI}, v{SI}, v{QR}")
    a(f"v_fmac_f32 v{QI}, v{LWI}, v{SR}")
    a(f"v_fmac_f32 v{HR}, v{PWR}, v{QR}")
    a(f"v_fmac_f32 v{HI}, v{PWR}, v{QI}")
    a(f"v_fma_f32 v{HR}, -v{PWI}, v{QI}, v{HR}")
    a(f"v_fmac_f32 v{HI}, v{PWI}, v{QR}")
    pr, pi = HR, HI
    PK, HF = 96, 80
    rest = co[:cfg.c2]
    for r in range(16):
        if rest: rest.pop(0)()
        a(f"v_fma_f32 v{X+r}, -v{LI}, v{pi}, v{X+r}")
        a(f"v_fma_f32 v{Y+r}, v{LI}, v{pr}, v{Y+r}")
        a(f"v_fmac_f32 v{X+r}, v{LR}, v{pr}")
        a(f"v_fmac_f32 v{Y+r}, v{LR}, v{pi}")
        pr, pi = X + r, Y + r
    for k in range(8):
        a(f"v_cvt_pk_bf16_f32 v{PK+k}, v{X+2*k}, v{X+2*k+1}")
    a(f"ds_write_b128 v{vTW}, v[{PK}:{PK+3}]")
    a(f"ds_write_b128 v{vTW}, v[{PK+4}:{PK+7}] offset:16")
    for k in range(8):
        a(f"v_cvt_pk_bf16_f32 v{PK+8+k}, -v{Y+2*k}, -v{Y+2*k+1}")
    a(f"ds_write_b128 v{vTW}, v[{PK+8}:{PK+11}] offset:2048")
    a(f"ds_write_b128 v{vTW}, v[{PK+12}:{PK+15}] offset:2064")
    for q in range(2):
        for part in range(2):
            for j in range(2):
                d = HF + 8 * q + 4 * part + 2 * j
                a(f"ds_read_b64_tr_b16 v[{d}:{d+1}], v{vTR} offset:{(part*16 + 4*j)*128 + 64*(q ^ j)}")
    assert not rest
    a("s_waitcnt lgkmcnt(0)")
    for q in range(2):
        for part in range(2):
            d = HF + 8 * q + 4 * part
            a(f"s_add_u32 s11, s19, {q*RT_BYTES + part*HALF_BYTES}")
            vm.issue('hs', f"buffer_store_dwordx4 v[{d}:{d+3}], v{vP}, s[{SRD_WS}:{SRD_WS+3}], s11 offen{SP}")
    if cfg.wl: wrest()
    def flag2():
        vm.wait('hs')
        a("s_mov_b64 exec, 1")
        vm.issue('f', f"buffer_store_dword v{vOne}, v{vF}, s[{SRD_WS}:{SRD_WS+3}], 0 offen sc1")
        a("s_mov_b64 exec, -1")
        ts(7)
    if cfg.f2b == 0: flag2()
    for o in co[cfg.c2:] + (c_ops(2) if not cfg.clate else []): o()
    if cfg.f2b == 1: flag2()
    a(f"s_and_b32 s11, s{S_W4}, 1")
    a("s_lshl_b32 s11, s11, 8")
    a(f"s_add_u32 s11, s11, {ST2_L}")
    a(f"v_lshl_add_u32 v{vT+3}, v{vT+3}, 7, s11")
    STT = 32
    for k in range(8): a(f"ds_read_b128 v[{STT+4*k}:{STT+4*k+3}], v{vT+3} offset:{16*k}")
    for r in range(16): a(f"v_lshlrev_b32 v{XV+r}, 16, v{XV+r}")
    a("s_waitcnt lgkmcnt(0)")
    a("s_setprio 0")
    def rnd_pair(r0, r1):
        a(f"v_cvt_pk_bf16_f32 v{r1}, v{r0}, v{r1}"); a(f"v_lshlrev_b32 v{r0}, 16, v{r1}"); a(f"v_and_b32 v{r1}, s71, v{r1}")
    for r in range(16): a(f"v_sub_f32 v{TT+r}, v{XV+r}, v{STT+2*r}")
    for k in range(8): rnd_pair(TT + 2 * k, TT + 2 * k + 1)
    a(f"v_mov_b32 v{T2}, 3")
    vm.wait(('w', 27))
    a(f"ds_write_b32 v{vRd}, v{T2}")
    for r in range(16): a(f"v_mul_f32 v{TT+r}, v{TT+r}, v{STT+2*r+1}")
    for k in range(8): rnd_pair(TT + 2 * k, TT + 2 * k + 1)
    for r in range(16): a(f"v_mul_f32 v{TT+r}, v{TT+r}, v{DS}")
    for k in range(8): rnd_pair(TT + 2 * k, TT + 2 * k + 1)
    def poll(name, off):
        def cond():
            for k in range(0, 12, 4): a(f"s_and_b64 s[{20+k}:{21+k}], s[{20+k}:{21+k}], s[{22+k}:{23+k}]")
            a("s_and_b64 s[20:21], s[20:21], s[24:25]")
            a("s_and_b64 s[28:29], s[28:29], s[32:33]")
            a("s_and_b64 s[20:21], s[20:21], s[28:29]")
            a("s_and_b32 s20, s20, s21")
            a("s_cmp_eq_u32 s20, 1")
        sspin(a, name, [f"s_load_dwordx16 s[20:35], s[{P_WS}:{P_WS+1}], s18 glc"], cond, cfg.psleep)
    a(f"s_mul_i32 s57, s40, {RT_BYTES}")
    a("s_xor_b32 s11, s40, 1")
    a(f"s_mul_i32 s56, s11, {RT_BYTES}")
    a(f"s_lshr_b32 s11, s{S_W4}, 1")
    a(f"s_mul_i32 s11, s11, {HALF_BYTES}")
    a(f"s_add_u32 s11, s11, {56*1024}")
    a("s_add_u32 s56, s56, s11")
    a("s_add_u32 s57, s57, s11")
    a(f"s_and_b32 s12, s{S_W4}, 1")
    a("s_lshl_b32 s13, s12, 14")
    for b in range(3): a(f"s_add_u32 s{52+b}, s13, {b*4096}")
    a("s_lshl_b32 s12, s12, 11")
    a(f"s_add_u32 s55, s12, {12*1024}")
    srd(a, 60, P_OUT, 2048 * 1792)
    vW1, vW2, vCn, vCv = 1, 2, 9, 4
    vR = [3, 12, 13, 14]
    a(f"v_add_u32 v{vW1}, {PH1}, v{vPQ}")
    a(f"v_add_u32 v{vW2}, {PH2}, v{vPQ}")
    a(f"v_mov_b32 v{vCn}, {CNT_L}")
    for (reg, xr, base) in ((vR[0], 1, PH1), (vR[1], 3, PH1 + 4096), (vR[2], 2, PH2)):
        a(f"s_xor_b32 s11, s{S_W4}, {xr}")
        a(f"s_mul_i32 s11, s11, {Q}")
        a(f"s_add_u32 s11, s11, {base}")
        a(f"v_add_u32 v{reg}, s11, v{vP}")
    a(f"v_add_u32 v{vR[3]}, {GA}, v{vPQ}")
    ts.x(2, 11)
    ts.x(7, 11)
    AR = list(range(16, 64, 4))
    NA = len(AR)
    def aload(n):
        lr, p = n // 14, n % 14
        if p % 4 == 0: a(f"s_add_u32 s58, s{56+lr}, s{52 + p//4}")
        d = AR[n % NA]
        vm.issue(('a', n), f"buffer_load_dwordx4 v[{d}:{d+3}], v{vP}, s[{SRD_WS}:{SRD_WS+3}], s58 offen offset:{(p%4)*1024}{AP}")
    def cnt_wait(name, off):
        a("s_mov_b32 s73, 0")
        a.label(name)
        a("s_waitcnt lgkmcnt(0)")
        a(f"v_readfirstlane_b32 s11, v{vCv}")
        a("s_cmp_ge_u32 s11, 4")
        a(f"s_cbranch_scc1 {name}ok")
        a("s_add_u32 s73, s73, 1")
        a(f"s_cmp_ge_u32 s73, {SPIN_MAX}")
        a(f"s_cbranch_scc1 {name}ok")
        a("s_sleep 1")
        a(f"ds_read_b32 v{vCv}, v{vCn} offset:{off}")
        a(f"s_branch {name}")
        a.label(name + "ok")
        a("s_nop 7")
    a(f"ds_read_b32 v{vCv}, v{vCn} offset:4")
    cnt_wait("L_l_c0", 4)
    if cfg.clate:
        if cfg.sprio: a(f"s_setprio {cfg.sprio}")
        for b in ((0, 1, 3, 2) if cfg.clate == 2 else (2,)):
            if b not in cdone:
                for o in c_ops(b): o()
    poll("L_ps", 128)
    ts(9)
    if cfg.sprio: a(f"s_setprio {cfg.sprio}")
    ts.x(7, 1)
    for n in range(NA): aload(n)
    a("s_setprio 0")
    ts.x(7, 2)
    for n in range(28):
        lr, p = n // 14, n % 14
        vm.wait(('a', n))
        if n in (0, 7, 14, 21): ts.x(7, 3 + n // 7)
        d = AR[n % NA]
        for lc in (1, 0):
            acc = SACC + 32 * lr + 16 * lc
            c = "0" if (p == 0 and not (lr == 1 and lc == 0)) else f"v[{acc}:{acc+15}]"
            f = cfrag(p, lc)
            a(f"v_mfma_f32_32x32x16_bf16 v[{acc}:{acc+15}], v[{d}:{d+3}], v[{f}:{f+3}], {c}")
        if n + NA < 28: aload(n + NA)
        if 16 <= n < 24:
            k = n - 16
            a(f"ds_write_b128 v{vW1}, v[{SACC+4*k}:{SACC+4*k+3}] offset:{1024*k}")
    ts(10)
    ts.x(7, 7)
    ts.x(7, 8)
    for k in range(4):
        a(f"ds_write_b128 v{vW2}, v[{SACC+48+4*k}:{SACC+48+4*k+3}] offset:{1024*k}")
    a("s_waitcnt lgkmcnt(0)")
    ts.x(7, 9)
    a("s_barrier")
    ts(11)
    ts.x(7, 10)
    RX = CF
    for k in range(4):
        for w in range(4):
            a(f"ds_read_b128 v[{RX+16*w+4*k}:{RX+16*w+4*k+3}], v{vR[w]} offset:{1024*k}")
    for k in range(4):
        a(f"s_waitcnt lgkmcnt({12 - 4*k})")
        for r in range(4 * k, 4 * k + 4):
            a(f"v_add_f32 v{TT+r}, v{TT+r}, v{RX+r}")
            a(f"v_add_f32 v{RX+16+r}, v{RX+16+r}, v{RX+32+r}")
        for r in range(4 * k, 4 * k + 4):
            a(f"v_add_f32 v{TT+r}, v{TT+r}, v{RX+16+r}")
        for r in range(4 * k, 4 * k + 4):
            a(f"v_fma_f32 v{XV+r}, v{TT+r}, v{RX+48+r}, v{XV+r}")
            if r % 2 == 0: a(f"s_mov_b32 s11, {r*1792}")
            a(f"buffer_store_dword v{XV+r}, v{vO}, s[60:63], s11 offen offset:{(r%2)*1792}{OP}")
    if cfg.ts:
        a("s_waitcnt vmcnt(0)")
        ts(12)
    if cfg.padto:
        a.label("L_pad")
        a("s_memrealtime s[98:99]")
        a("s_waitcnt lgkmcnt(0)")
        a("s_sub_u32 s98, s98, s100")
        a(f"s_cmp_lt_u32 s98, {cfg.padto}")
        a("s_cbranch_scc1 L_pad")
    ts.dump(16, 17, 1)
    a("s_endpgm")

def gen_consumer(a, cfg, ts):
    a.label("L_consumer")
    SP = ["", " sc1"][cfg.spol]
    AP = ['', ' sc1', ' sc1 nt', ' sc0 sc1', ' sc0', ' nt'][cfg.apol]
    vm = VM(a)
    XA = [1, 2, 3, 4]; BA = [5, 6, 7, 8]; WA = [9, 10]
    vL16, vStF, vCL, vF, vFl, vSo, vCn, vRd, vWB, vPQ, vOne, MM = 11, 12, 13, 14, 15, 16, 17, 18, 19, 20, 21, 22
    FS = [40, 68]
    ACC = 96
    def G(ft, q): return ACC + 16 * (2 * ft + q)
    def U(ft, q): return ACC + 64 + 16 * (2 * ft + q)
    def S(q): return ACC + 128 + 16 * q
    vI, vH, t0, t1, t2 = 24, 25, 26, 27, 28
    a(f"v_and_b32 v{vI}, 31, v0")
    a(f"v_lshrrev_b32 v{vH}, 5, v0")
    a(f"v_bfe_u32 v{t0}, v0, 1, 3")
    a(f"v_xor_b32 v{t0}, v{t0}, v{vH}")
    a(f"v_lshlrev_b32 v{t0}, 4, v{t0}")
    a(f"v_lshl_add_u32 v{t0}, v{vI}, 7, v{t0}")
    a(f"s_lshl_b32 s11, s{S_W4}, 13")
    for ks in range(4):
        a(f"v_xor_b32 v{t1}, {32*ks}, v{t0}")
        a(f"v_add_u32 v{XA[ks]}, s11, v{t1}")
        a(f"v_add_u32 v{BA[ks]}, {OFF_BB}, v{t1}")
    a(f"v_bfe_u32 v{t0}, v0, 2, 2")
    a(f"v_lshlrev_b32 v{t1}, 7, v{t0}")
    a(f"v_lshrrev_b32 v{t0}, 1, v{t0}")
    a(f"v_lshl_add_u32 v{t1}, v{t0}, 6, v{t1}")
    a(f"v_bfe_u32 v{t0}, v0, 4, 1")
    a(f"v_lshl_add_u32 v{t1}, v{t0}, 5, v{t1}")
    a(f"v_and_b32 v{t2}, 3, v0")
    a(f"v_lshl_add_u32 v{t1}, v{t2}, 3, v{t1}")
    a(f"v_lshl_add_u32 v{WA[0]}, v{vH}, 10, v{t1}")
    a(f"v_add_u32 v{WA[0]}, {OFF_WG}, v{WA[0]}")
    a(f"v_xor_b32 v{WA[1]}, 64, v{WA[0]}")
    a(f"s_mul_i32 s62, s{S_W4}, {Q}")
    a(f"s_lshr_b32 s59, s{S_W4}, 1")
    a(f"s_and_b32 s63, s{S_W4}, 1")
    a("s_lshl_b32 s11, s59, 6")
    a(f"v_lshl_add_u32 v{vWB}, v{vH}, 9, v{t1}")
    a(f"v_xor_b32 v{vWB}, s11, v{vWB}")
    a(f"v_add_u32 v{vWB}, s62, v{vWB}")
    a("s_waitcnt lgkmcnt(0)")
    a(f"s_lshl_b32 s11, s{S_NS}, 5")
    a(f"s_load_dwordx8 s[32:39], s[{P_LRE}:{P_LRE+1}], s11")
    a(f"s_load_dwordx8 s[64:71], s[{P_LDT}:{P_LDT+1}], s11")
    a(f"s_load_dwordx8 s[24:31], s[{P_LIM}:{P_LIM+1}], s11")
    for k in range(160): a(f"v_mov_b32 v{ACC+k}, 0")
    a(f"v_mov_b32 v{vCn}, {CNT_L}")
    a(f"ds_write_b128 v{vCn}, v[{ACC}:{ACC+3}]")
    a(f"ds_write_b128 v{vCn}, v[{ACC}:{ACC+3}] offset:16")
    a(f"v_bfe_u32 v{t0}, v0, 2, 1")
    a(f"v_lshl_add_u32 v{t0}, v{t0}, 4, v{t2}")
    a(f"v_bfe_u32 v{t1}, v0, 3, 2")
    a(f"v_lshl_add_u32 v{t0}, v{t1}, 2, v{t0}")
    a(f"s_lshl_b32 s11, s{S_W4}, 9")
    a(f"s_add_u32 s11, s11, {STATS_L}")
    a(f"v_lshl_add_u32 v{vStF}, v{t0}, 3, s11")
    a(f"v_lshlrev_b32 v{vL16}, 4, v0")
    a(f"v_add_u32 v{vPQ}, s62, v{vL16}")
    a(f"v_lshlrev_b32 v{vCL}, 4, v{vH}")
    a(f"v_add_u32 v{vCL}, {C_L}, v{vCL}")
    a(f"v_mov_b32 v{vOne}, 1")
    a(f"s_lshl_b32 s11, s{S_W4}, 2")
    a(f"s_add_u32 s11, s11, {CNT_L + 16}")
    a(f"v_mov_b32 v{vRd}, s11")
    a("s_lshl_b32 s11, s63, 8")
    a(f"s_add_u32 s11, s11, {ST2_L}")
    a(f"v_lshl_add_u32 v{vSo}, v{vH}, 7, s11")
    a(f"s_lshl_b32 s13, s{S_MT}, 2")
    a(f"s_add_u32 s13, s13, s{S_W4}")
    a(f"s_mul_i32 s56, s13, {2*RT_BYTES}")
    a(f"s_cmp_ge_u32 s{S_NS}, 14")
    a(f"s_cselect_b32 s11, {HALF_BYTES - 56*1024}, 0")
    a(f"s_lshl_b32 s12, s{S_NS}, 12")
    a("s_add_u32 s11, s11, s12")
    a("s_add_u32 s56, s56, s11")
    a(f"s_add_u32 s57, s56, {RT_BYTES}")
    a("s_lshl_b32 s11, s13, 10")
    flag_index(a, 12, 14, 7)
    a("s_add_u32 s11, s11, s12")
    a(f"s_add_u32 s11, s11, {WS_FLAG:#x}")
    a(f"v_mov_b32 v{vF}, s11")
    a(f"s_lshl_b32 s55, s{S_M64}, 10")
    a(f"s_add_u32 s55, s55, {WS_FLAG:#x}")
    a(f"s_lshl_b32 s11, s{S_W4}, 7")
    a("s_add_u32 s55, s55, s11")
    a(f"s_mul_i32 s12, s59, {HALF_BYTES}")
    a(f"s_mul_i32 s13, s63, {28*1024}")
    a("s_add_u32 s12, s12, s13")
    a(f"s_lshl_b32 s11, s{S_M64}, 1")
    a("s_add_u32 s11, s11, s63")
    a(f"s_mul_i32 s52, s11, {RT_BYTES}")
    a("s_add_u32 s52, s52, s12")
    a("s_xor_b32 s11, s11, 1")
    a(f"s_mul_i32 s51, s11, {RT_BYTES}")
    a("s_add_u32 s51, s51, s12")
    p2_rot(a, cfg, 60, 61, 58)
    a("s_mov_b32 s12, 0x00030003")
    a("s_mov_b32 s13, 0x00030003")
    a("s_waitcnt lgkmcnt(0)")
    K, KP = 40, 64
    for k in range(8):
        a(f"s_lshl_b64 exec, s[12:13], {2*k}")
        for m, sb in enumerate((32, 24, 64)): a(f"v_mov_b32 v{K+m}, s{sb+k}")
    a("s_mov_b64 exec, -1")
    a(f"v_and_b32 v{K+3}, 1, v0")
    a(f"v_lshlrev_b32 v{K+3}, 4, v{K+3}")
    for m in range(3): a(f"v_lshrrev_b32 v{K+m}, v{K+3}, v{K+m}")
    srd(a, SRD_WS, P_WS, WS_SIZE)
    ssm_park(a, K, KP, 62)
    a(f"v_mov_b32 v{KP+23}, 0")
    a(f"s_lshl_b32 s11, s{S_W4}, 13")
    a(f"s_add_u32 s11, s11, {R[2]}")
    a(f"v_add_u32 v{K}, s11, v{vL16}")
    for k in range(6): a(f"ds_write_b128 v{K}, v[{KP+4*k}:{KP+4*k+3}] offset:{1024*k}")
    a("s_waitcnt lgkmcnt(0)")
    ts(1)

    def reads(fs, ks):
        f = FS[fs]
        L = []
        L.append(f"ds_read_b128 v[{f}:{f+3}], v{XA[ks]}")
        L.append(f"ds_read_b128 v[{f+24}:{f+27}], v{BA[ks]}")
        L.append(f"ds_read_b128 v[{f+4}:{f+7}], v{XA[ks]} offset:4096")
        for gu in range(2):
            for ft in range(2):
                for j in range(2):
                    d = f + 8 + 8 * gu + 4 * ft + 2 * j
                    L.append(f"ds_read_b64_tr_b16 v[{d}:{d+1}], v{WA[ft]} offset:{gu*8192 + ks*2048 + j*512}")
        return L
    def mfmas(fs):
        f = FS[fs]
        X = [f, f + 4]; Bf = f + 24
        L = []
        for q in range(2):
            L.append(f"v_mfma_f32_32x32x16_bf16 v[{S(q)}:{S(q)+15}], v[{X[q]}:{X[q]+3}], v[{Bf}:{Bf+3}], v[{S(q)}:{S(q)+15}]")
        for gu in range(2):
            for ft in range(2):
                w = f + 8 + 8 * gu + 4 * ft
                for q in range(2):
                    d = (G, U)[gu](ft, q)
                    L.append(f"v_mfma_f32_32x32x16_bf16 v[{d}:{d+15}], v[{w}:{w+3}], v[{X[q]}:{X[q]+3}], v[{d}:{d+15}]")
        return L
    a("s_setprio 2")
    a("s_mov_b32 s72, 0")
    a("s_mov_b32 s74, 0")
    a("s_barrier")
    ts(2)
    for t in reads(0, 0): a(t)
    a.label("L_c_loop")
    need = {0: 9, 1: 8, 2: 6, 4: 4, 6: 2, 8: 0}
    for ks in range(4):
        fs = ks & 1
        M = mfmas(fs)
        if ks < 3:
            Rd = reads(1 - fs, ks + 1)
            issued = 0
            for i, m in enumerate(M):
                if i in need: a(f"s_waitcnt lgkmcnt({min(15, need[i] + issued)})")
                a(m)
                for _ in range(2 if i >= cfg.rdstart else 0):
                    if Rd: a(Rd.pop(0)); issued += 1
        else:
            Rd = reads(1 - fs, 0)
            a("s_waitcnt lgkmcnt(9)")
            a(M[0])
            a("s_add_u32 s74, s74, 1")
            a("s_cmp_eq_u32 s74, 3")
            a("s_mov_b32 s75, 53248")
            a(f"s_cmov_b32 s75, {(-106496) & 0xffffffff:#x}")
            a("s_cselect_b32 s74, 0, s74")
            for v in XA + BA[:1]: a(f"v_add_u32 v{v}, s75, v{v}")
            a("s_waitcnt lgkmcnt(8)")
            a(M[1])
            for v in BA[1:] + WA: a(f"v_add_u32 v{v}, s75, v{v}")
            a("s_add_u32 s72, s72, 1")
            a("s_cmp_eq_u32 s72, 6")
            a("s_waitcnt lgkmcnt(0)")
            a(M[2])
            a("s_barrier")
            hist = list(a.hist)
            a("s_cbranch_scc1 L_c_last")
            for m in M[3:]:
                for _ in range(2):
                    if Rd: a(Rd.pop(0))
                a(m)
            a("s_branch L_c_loop")
            a.label("L_c_last")
            a.hist = hist
            Mtail = M[3:]
    lq = []
    def ds_issue(tag, t):
        a(t)
        if t.startswith("ds_"): lq.append(tag)
    def ds_wait(tag):
        idx = max((i for i, t in enumerate(lq) if t == tag), default=None)
        if idx is None: return None
        n = len(lq) - 1 - idx
        del lq[:idx + 1]
        return f"lgkmcnt({min(n, 15)})"
    def dwait(tag):
        w = ds_wait(tag)
        if w: a(f"s_waitcnt {w}")
    UB = [24, 40, 56]
    def ureads(u):
        b, ks = UB[u % 3], u % 4
        L = [f"ds_read_b128 v[{b}:{b+3}], v{XA[ks]}"]
        if u < 8:
            ft = u // 4
            for gu in range(2):
                for j in range(2):
                    d = b + 8 + 4 * gu + 2 * j
                    L.append(f"ds_read_b64_tr_b16 v[{d}:{d+1}], v{WA[ft]} offset:{gu*8192 + ks*2048 + j*512}")
        else:
            L.append(f"ds_read_b128 v[{b+8}:{b+11}], v{BA[ks]}")
        L.append(f"ds_read_b128 v[{b+4}:{b+7}], v{XA[ks]} offset:4096")
        return [(u, t) for t in L]
    def umfma(u):
        b = UB[u % 3]
        L = []
        for q in range(2):
            x = b + 4 * q
            if u < 8:
                for gu in range(2):
                    d = (G, U)[gu](u // 4, q); w = b + 8 + 4 * gu
                    L.append(f"v_mfma_f32_32x32x16_bf16 v[{d}:{d+15}], v[{w}:{w+3}], v[{x}:{x+3}], v[{d}:{d+15}]")
            else:
                L.append(f"v_mfma_f32_32x32x16_bf16 v[{S(q)}:{S(q)+15}], v[{x}:{x+3}], v[{b+8}:{b+11}], v[{S(q)}:{S(q)+15}]")
        return L
    Rd = ureads(0) + ureads(1)
    for m in Mtail:
        for _ in range(2):
            if Rd: ds_issue(*Rd.pop(0))
        a(m)
    CH = 72
    def chalf(p):
        for gu in range(2):
            for k in range(2):
                ds_issue(('c', p), f"ds_read_b128 v[{CH+8*gu+4*k}:{CH+8*gu+4*k+3}], v{vCL} offset:{256*gu + 32*(2*p+k)}")
    def hstore(ft, q, p):
        g = G(ft, q)
        vm.issue('h', f"buffer_store_dwordx4 v[{g+4*p}:{g+4*p+3}], v{vL16}, s[{SRD_WS}:{SRD_WS+3}], s{56+q} offen offset:{(2*ft+p)*1024}{SP}")
    ep = [lambda: dwait(('c', 0)), f"v_xor_b32 v{MM}, 0x80000000, v{MM}", f"v_xor_b32 v{MM+1}, 0x80000000, v{MM+1}"]
    for p in range(2):
        if p: ep.append(lambda: dwait(('c', 1)))
        for q in range(2):
            g, u = G(0, q) + 8 * p, U(0, q) + 8 * p
            for k in range(8): ep.append(f"v_fmac_f32 v{g+k}, v{MM+q}, v{CH+k}")
            for k in range(8): ep.append(f"v_fmac_f32 v{u+k}, v{MM+q}, v{CH+8+k}")
            if q == 1 and p == 0: ep.append(lambda: chalf(1))
            for k in range(8): ep.append(f"v_max_f32 v{g+k}, 0, v{g+k}")
            for k in range(8): ep.append(f"v_mul_f32 v{u+k}, v{u+k}, v{g+k}")
            for k in range(4): ep.append(f"v_cvt_pk_bf16_f32 v{G(0,q)+4*p+k}, v{u+2*k}, v{u+2*k+1}")
            ep.append(lambda q=q, p=p: hstore(0, q, p))
    def fill(n):
        while n > 0 and ep:
            t = ep.pop(0)
            if callable(t): t()
            else: a(t)
            n -= 1
    def cread(tag, dst, off):
        for k in range(4): ds_issue(tag, f"ds_read_b128 v[{dst+4*k}:{dst+4*k+3}], v{vCL} offset:{off + 32*k}")
    for u in range(12):
        dwait(u)
        if u == 11:
            a("s_barrier")
        Rd = ureads(u + 2) if u + 2 < 12 else []
        for i, m in enumerate(umfma(u)):
            a(m)
            for _ in range(2):
                if Rd: ds_issue(*Rd.pop(0))
            if u > 4 or (u == 4 and i >= 1): fill(cfg.fper - 1 if u < 10 else cfg.fper)
        if u == cfg.c2u:
            a("s_barrier")
            ds_issue(('c', 0), f"ds_read_b32 v{MM}, v{vStF}")
            ds_issue(('c', 0), f"ds_read_b32 v{MM+1}, v{vStF} offset:256")
            chalf(0)
        if u == 9: cread('cg', UB[0], 128)
        if u == 10: cread('cu', UB[1], 384)
    ts(3)
    fill(1000)
    dump = [f"ds_write_b128 v{vPQ}, v[{S(0)+4*k}:{S(0)+4*k+3}] offset:{SD + 1024*k}" for k in range(8)]
    WB = {0: [1, 2], 1: [3, 4], 2: [5, 6]}
    for rg in range(3):
        a(f"v_add_u32 v{WB[rg][0]}, {R[rg]}, v{vWB}")
        a(f"v_xor_b32 v{WB[rg][1]}, 64, v{WB[rg][0]}")
    dwait('cu')
    cg, cu = UB[0], UB[1]
    for q in range(2):
        g, u = G(1, q), U(1, q)
        sel = f"op_sel:[{q},0,0] op_sel_hi:[{q},1,1]"
        for p in range(2):
            kr = range(4 * p, 4 * p + 4)
            for k in kr:
                a(f"v_pk_fma_f32 v[{g+2*k}:{g+2*k+1}], v[{MM}:{MM+1}], v[{cg+2*k}:{cg+2*k+1}], v[{g+2*k}:{g+2*k+1}] {sel}")
                if dump: a(dump.pop(0))
            for k in kr:
                a(f"v_pk_fma_f32 v[{u+2*k}:{u+2*k+1}], v[{MM}:{MM+1}], v[{cu+2*k}:{cu+2*k+1}], v[{u+2*k}:{u+2*k+1}] {sel}")
                a(f"v_max_f32 v{g+2*k}, 0, v{g+2*k}")
                a(f"v_max_f32 v{g+2*k+1}, 0, v{g+2*k+1}")
            for k in kr:
                a(f"v_pk_mul_f32 v[{u+2*k}:{u+2*k+1}], v[{u+2*k}:{u+2*k+1}], v[{g+2*k}:{g+2*k+1}]")
            for k in kr:
                a(f"v_cvt_pk_bf16_f32 v{g+k}, v{u+2*k}, v{u+2*k+1}")
            if q == 0 and p == 1:
                a("s_waitcnt lgkmcnt(0)")
                a("s_barrier")
            hstore(1, q, p)
    del lq[:]
    ts(4)
    BR, NB = 160, 12
    def breads(p):
        sl = WSLOT[p]
        rg = max(k for k in range(3) if R[k] <= sl)
        L = []
        for lc in range(2):
            for jj in range(2):
                d = BR + 8 * (p % NB) + 4 * lc + 2 * jj
                L.append(f"ds_read_b64_tr_b16 v[{d}:{d+1}], v{WB[rg][lc]} offset:{sl - R[rg] + jj*1024}")
        return L
    for p in range(NB):
        for t in breads(p): a(t)
    def flag1():
        vm.wait('h')
        a("s_setprio 3")
        a("s_mov_b64 exec, 1")
        vm.issue('f', f"buffer_store_dword v{vOne}, v{vF}, s[{SRD_WS}:{SRD_WS+3}], 0 offen sc1")
        a("s_mov_b64 exec, -1")
        ts(6)
    if cfg.fpre: flag1()
    a("s_waitcnt lgkmcnt(0)")
    a("s_barrier")
    ts(5)
    if not cfg.fpre: flag1()
    AF = 96
    AR = list(range(24, 96, 4))
    NA = len(AR)
    def aload(n):
        p, lr = n // 2, n % 2
        if n % 8 == 0:
            a(f"s_lshl_b32 s11, s60, 12")
            a(f"s_add_u32 s54, s11, s52")
            a(f"s_add_u32 s53, s11, s51")
            a(f"s_add_u32 s60, s60, 1")
            a(f"s_cmp_eq_u32 s60, 7")
            a(f"s_cselect_b32 s60, 0, s60")
        d = AR[n % NA]
        vm.issue(('a', n), f"buffer_load_dwordx4 v[{d}:{d+3}], v{vL16}, s[{SRD_WS}:{SRD_WS+3}], s{54 - lr} offen offset:{(p%4)*1024}{AP}")
    def cond():
        a("s_and_b64 s[16:17], s[16:17], s[18:19]")
        a("s_and_b64 s[16:17], s[16:17], s[20:21]")
        a("s_and_b32 s16, s16, s17")
        a("s_and_b32 s16, s16, s22")
        a("s_cmp_eq_u32 s16, 1")
    sspin(a, "L_pf", [f"s_load_dwordx8 s[16:23], s[{P_WS}:{P_WS+1}], s55 glc"], cond, cfg.fsleep)
    a("s_setprio 2")
    ts(7)
    for n in range(cfg.a0): aload(n)
    nxt = [cfg.a0]
    ts(8)
    def lds_spin(name, vaddr, off, val):
        a("s_mov_b32 s73, 0")
        a.label(name)
        a("s_waitcnt lgkmcnt(0)")
        a("v_readfirstlane_b32 s11, v8")
        a(f"s_cmp_ge_u32 s11, {val}")
        a(f"s_cbranch_scc1 {name}ok")
        a("s_add_u32 s73, s73, 1")
        a(f"s_cmp_ge_u32 s73, {SPIN_MAX}")
        a(f"s_cbranch_scc1 {name}ok")
        a("s_sleep 1")
        a(f"ds_read_b32 v8, v{vaddr} offset:{off}")
        a(f"s_branch {name}")
        a.label(name + "ok")
        del lq[:]
    for p in range(28):
        f = BR + 8 * (p % NB)
        pn = p + cfg.bd
        for lr in range(2):
            n = 2 * p + lr
            w = ds_wait(p) if lr == 0 else None
            vm.wait(('a', n), w or "")
            if n == 0: ts(9)
            if n in (0, 7, 17, 25, 35): ts.x(6, {0: 7, 7: 8, 17: 9, 25: 10, 35: 11}[n])
            if lr == 0 and pn in (12, 16, 22): ds_issue('r', f"ds_read_b32 v8, v{vRd}")
            d = AR[n % NA]
            for lc in range(2):
                acc = AF + 32 * lr + 16 * lc
                c = "0" if p == 0 else f"v[{acc}:{acc+15}]"
                a(f"v_mfma_f32_32x32x16_bf16 v[{acc}:{acc+15}], v[{d}:{d+3}], v[{f+4*lc}:{f+4*lc+3}], {c}")
            for _ in range(2):
                if nxt[0] < 56 and nxt[0] <= n + NA:
                    aload(nxt[0]); nxt[0] += 1
        if pn in (12, 16, 22): lds_spin(f"L_c_r{pn}", vRd, 0, {12: 1, 16: 2, 22: 3}[pn])
        if p == cfg.ksig:
            assert pn > 15
            w = ds_wait(15)
            if w: a(f"s_waitcnt {w}")
            a("s_mov_b64 exec, 1")
            ds_issue('c', f"ds_add_u32 v{vCn}, v{vOne} offset:4")
            a("s_mov_b64 exec, -1")
        if NB <= pn < 28:
            for t in breads(pn): ds_issue(pn, t)
        if p == 24:
            STT = BR + 32
            for k in range(8): ds_issue('st', f"ds_read_b128 v[{STT+4*k}:{STT+4*k+3}], v{vSo} offset:{16*k}")
        if p == 26:
            for x in range(1, 4):
                a(f"s_xor_b32 s11, s{S_W4}, {x}")
                a(f"s_mul_i32 s11, s11, {Q}")
                a(f"s_add_u32 s11, s11, {FXA + (x-1)*4096}")
                a(f"v_add_u32 v{x}, s11, v{vL16}")
            a(f"v_add_u32 v4, {GA}, v{vPQ}")
            a(f"v_add_u32 v5, {FXA}, v{vPQ}")
        if p % 4 == 3: ts.x(4, 1 + p // 4)
    ts(11)
    ts.x(7, 1)
    for x in (2, 1, 3):
        src = AF + 32 * (x & 1) + 16 * (x >> 1)
        for k in range(4):
            a(f"ds_write_b128 v5, v[{src+4*k}:{src+4*k+3}] offset:{(x-1)*4096 + 1024*k}")
    a("s_waitcnt lgkmcnt(12)")
    for r in range(16): a(f"v_mul_f32 v{STT+2*r}, v{STT+2*r+1}, v{STT+2*r+1}")
    a(f"s_mov_b32 s13, {LOG2E ^ 0x80000000:#x}")
    ts.x(7, 2)
    a("s_waitcnt lgkmcnt(0)")
    ts.x(7, 3)
    a("s_mov_b64 exec, 1")
    a(f"ds_add_u32 v{vCn}, v{vOne}")
    a("s_mov_b64 exec, -1")
    a(f"ds_read_b32 v8, v{vCn}")
    lds_spin("L_c_cnt", vCn, 0, 4)
    ts.x(7, 4)
    O, RX, EX = AF, 24, 72
    for k in range(4):
        for x in range(1, 4):
            a(f"ds_read_b128 v[{RX+16*(x-1)+4*k}:{RX+16*(x-1)+4*k+3}], v{x} offset:{1024*k}")
    for k in range(4):
        rr = range(4 * k, 4 * k + 4)
        a(f"s_waitcnt lgkmcnt({9 - 3*k})")
        for r in rr: a(f"v_add_f32 v{O+r}, v{O+r}, v{RX+r}")
        for r in rr: a(f"v_add_f32 v{RX+16+r}, v{RX+16+r}, v{RX+32+r}")
        for r in rr: a(f"v_add_f32 v{O+r}, v{O+r}, v{RX+16+r}")
        for r in rr: a(f"v_mul_f32 v{O+r}, v{O+r}, v{STT+2*r}")
        for r in rr: a(f"v_mul_f32 v{EX+r}, s13, v{O+r}")
        for r in rr: a(f"v_exp_f32 v{EX+r}, v{EX+r}")
    ts.x(7, 5)
    for k in range(4):
        rr = range(4 * k, 4 * k + 4)
        for r in rr: a(f"v_add_f32 v{EX+r}, 1.0, v{EX+r}")
        for r in rr: a(f"v_rcp_f32 v{EX+r}, v{EX+r}")
        for r in rr: a(f"v_mul_f32 v{O+r}, v{O+r}, v{EX+r}")
        a(f"ds_write_b128 v4, v[{O+4*k}:{O+4*k+3}] offset:{1024*k}")
    a("s_waitcnt lgkmcnt(0)")
    ts(12)
    a("s_barrier")
    ts.dump(24, 25, 0)
    a("s_endpgm")

HEADER = """; Fused S5-SSM + ReGLU block, one launch: 224 main workgroups (4 MFMA waves + 4 loader waves) + 32 helper workgroups.
; @launch grid=(256,1,1) block=(512,1,1) lds=163840
.amdgcn_target "amdgcn-amd-amdhsa--gfx950"
.text
.globl {k}
.p2align 8
.type {k},@function
{k}:
"""
FOOTER = """.section .rodata,"a"
.p2align 6
.amdhsa_kernel {k}
  .amdhsa_next_free_vgpr 256
  .amdhsa_next_free_sgpr 102
  .amdhsa_accum_offset 256
  .amdhsa_group_segment_fixed_size 0
  .amdhsa_kernarg_size 128
  .amdhsa_user_sgpr_count 2
  .amdhsa_user_sgpr_kernarg_segment_ptr 1
  .amdhsa_system_sgpr_workgroup_id_x 1
  .amdhsa_float_denorm_mode_32 3
.end_amdhsa_kernel
"""

def generate(cfg):
    WSOFF[0] = cfg.wsoff << 20
    a = Asm()
    ts = TS(a, cfg)
    gen_entry(a, cfg, ts)
    gen_loader(a, cfg, ts)
    gen_consumer(a, cfg, ts)
    gen_helper(a, cfg, ts)
    a.label("L_exit")
    a("s_endpgm")
    return HEADER.format(k=KNAME) + f"; wsoff={cfg.wsoff}\n" + a.text() + FOOTER.format(k=KNAME)

if __name__ == "__main__":
    cfg = Cfg()
    out = sys.argv[1]
    for kv in sys.argv[2:]:
        k, v = kv.split("=")
        setattr(cfg, k, int(v))
    open(out, "w").write(generate(cfg))
```

```python
import sys, os
sys.path.insert(0, os.path.dirname(os.path.abspath(__file__)))
from asmlib import Asm, VM

KNAME = "recurrent_scan__ssm_conv_s5__glu_gated_reglu__prompt_kernel"

R = [0, 53248, 106496]
MISC = 159744
OFF_WG, OFF_WU, OFF_BB = 32768, 40960, 49152
CP_L = R[1] + 49152
STATS_L = MISC
C_L = MISC + 2048
CNT_L = MISC + 2688
ST2_L = MISC + 2720
AGG_L = MISC + 3232
Q = 12288

RT_BYTES = 172032
HALF_BYTES = 86016
WS_STATS = 0xB00000
WS_AGG = WS_STATS + 0x4000
WS_FLAG = WS_AGG + 0x8000
INIT_N = 128 + 98
WS_CP = 0xB20000
WS_TS = 0xC00000
WS_SIZE = 0x1000000
SPIN_MAX = 1 << 20

S_WAVE, S_XCD, S_SLOT, S_MT, S_NS, S_M64, S_NT, S_W4 = 3, 4, 5, 6, 7, 8, 9, 10
P_X, P_LRE, P_LIM, P_BRE, P_BIM, P_CRE, P_CIM, P_LDT, P_DSK, P_BX, P_WG, P_WU, P_WD, P_OUT, P_DBG, P_WS = [16 + 2 * i for i in range(16)]
SRD_X, SRD_A, SRD_B, SRD_C, SRD_WS, SRD_E = 48, 52, 56, 60, 64, 68
TS0 = 76

LOG2E = 0x3fb8aa3b
LOG2E_LO = 0x32a57060
LN2 = 0x3f317218
INV2PI = 0x3e22f983

class Cfg:
    ts = 0
    tsset = 0
    pd = 16
    perm = 1
    rot = 2
    ssm_early = 0
    schedn = 0
    polx = 0
    apol = 1
    noa = 0
    nob = 0
    rdstart = 1
    polw = 0
    winn = 3
    loc = 1
    agpos = 1
    c0n = 8
    c0early = 0
    hord = 1
    clate = 2
    wl = 1
    fper = 6
    c2u = 2
    probe = 0
    pwho = 0
    ponly = -1
    pmask = 0xffff
    wsoff = 0
    kwin = 2
    wprio = 0
    hdelay = 0
    eprio = 0
    c2late = 0
    cpf = 2
    padto = 0
    nocs = 0
    r2pre = 1
    tlb = 0
    bd = 4
    pollw = 24
    c1 = 12
    c2 = 16
    f2b = 1
    wfirst = 1
    @property
    def win(self):
        W = lambda a, b: [f"w{p}" for p in range(a, b)]
        return [
            {-1: ["s1:0-6"], 0: ["cs0", "s1:6-13", "k", "s2:0-9"], 1: ["cs1", "s2:9-13", "s3", "e"], 2: ["cs2", "s4"] + W(12, 14), 3: ["cs3", "s5"] + W(14, 17),
             4: ["cs4", "init", "s6:0-7", "cs5", "s6:7-13", "w17"], 5: ["fetch"] + W(0, 4) + ["cs6"] + W(4, 6) + W(18, 20) + ["put"], 6: W(6, 12) + W(20, 22)},
            {-1: ["s1:0-6"], 0: ["cs0", "s1:6-13", "k", "s2:0-9"], 1: ["cs1", "s2:9-13", "s3", "e"], 2: ["cs2", "s4"] + W(12, 15), 3: ["cs3", "s5"] + W(15, 18),
             4: ["cs4", "init", "s6"] + W(18, 20), 5: ["cs5", "fetch"] + W(0, 3) + ["cs6"] + W(3, 6) + ["put"], 6: W(6, 12) + W(20, 22)},
            {-1: ["s1:0-6"], 0: ["cs0", "s1:6-13", "k", "s2:0-9"], 1: ["cs1", "s2:9-13", "s3", "e"], 2: ["cs2", "s4"] + W(12, 15), 3: ["cs3", "s5:0-7", "cs4", "s5:7-13", "w15"],
             4: ["init", "s6:0-4", "cs5", "s6:4-13"] + W(16, 19), 5: ["fetch"] + W(0, 4) + ["cs6"] + W(4, 6) + W(19, 22) + ["put"], 6: W(6, 12)},
            {-1: ["s1:0-6"], 0: ["cs0", "s1:6-13", "k", "s2:0-9"], 1: ["cs1", "s2:9-13", "s3", "e"], 2: ["cs2", "s4"] + W(12, 15), 3: ["cs3", "s5"] + W(15, 18),
             4: ["cs4", "init", "s6:0-7", "cs5", "s6:7-13", "w18", "w19"], 5: ["fetch"] + W(0, 4) + ["cs6"] + W(4, 6) + W(20, 22) + ["c3", "put"], 6: W(6, 12) + ["c1"]},
            {-1: ["s1:0-6"], 0: ["cs0", "s1:6-13", "k", "s2:0-9"], 1: ["cs1", "s2:9-13", "s3", "e"], 2: ["cs2", "s4"] + W(12, 14), 3: ["cs3", "s5"] + W(14, 17),
             4: ["cs4", "init", "s6:0-7", "cs5", "s6:7-13", "w17"], 5: ["fetch"] + W(0, 4) + ["cs6"] + W(4, 6) + W(18, 20) + ["put"], 6: W(6, 12) + W(20, 22) + ["c3"]},
            {-1: ["s1:0-6"], 0: ["cs0", "s1:6-13", "k", "s2:0-9"], 1: ["cs1", "s2:9-13", "s3", "e"], 2: ["cs2", "s4"] + W(12, 15), 3: ["cs3", "s5"] + W(15, 19),
             4: ["cs4", "init", "s6:0-7", "cs5", "s6:7-13"] + W(19, 22), 5: ["fetch"] + W(0, 4) + ["cs6"] + W(4, 6) + ["c1", "put"], 6: W(6, 12) + ["c3"]},
            {-1: ["s1:0-6"], 0: ["cs0", "s1:6-13", "k", "s2"], 1: ["cs1", "s3", "e"] + W(12, 14), 2: ["cs2", "s4"] + W(14, 17), 3: ["cs3", "s5"] + W(17, 20),
             4: ["cs4", "init", "s6:0-7", "cs5", "s6:7-13"] + W(20, 22), 5: ["fetch"] + W(0, 4) + ["cs6"] + W(4, 6) + ["c1", "put"], 6: W(6, 12) + ["c3"]},
            {-1: ["s1:0-6"], 0: ["cs0", "s1:6-13", "k", "s2:0-9"], 1: ["cs1", "s2:9-13", "s3", "e"], 2: ["cs2", "s4"] + W(12, 15), 3: ["cs3", "s5:0-7", "cs4", "s5:7-13"] + W(15, 18),
             4: ["init", "s6:0-4", "cs5", "s6:4-13"] + W(18, 22), 5: ["fetch"] + W(0, 4) + ["cs6"] + W(4, 6) + ["c1", "put"], 6: W(6, 12) + ["c3"]},
        ][self.winn]
    nw1 = 6
    flagr = -1
    xs = 1
    psleep = 2
    fsleep = 2
    ttper = 2
    f2n = 9
    fpre = 1
    a0 = 18
    sprio = 0
    ksig = 12
    opol = 1
    lprio = 3
    w12early = 0
    slab = 0
    spol = 1
    fpol = 1
    pollr = 4
    nw2 = 16
    thr = 15
    hpf = 2
    ky = 2
    @property
    def perms(self):
        return {
            0: [[0, 1, 2, 3, 4, 5, 6]],
            1: [[0, 1, 2, 3, 4, 5, 6], [1, 2, 0, 4, 5, 3, 6], [2, 0, 1, 5, 3, 4, 6]],
            2: [[0, 1, 2, 3, 4, 5, 6], [1, 0, 3, 2, 5, 4, 6]],
            3: [[0, 1, 2, 3, 4, 5, 6], [1, 0, 4, 5, 6, 2, 3], [0, 1, 6, 2, 3, 4, 5]],
            4: [[0, 1, 2, 3, 4, 5, 6], [1, 2, 0, 4, 6, 3, 5], [2, 0, 1, 5, 6, 3, 4]],
            5: [[0, 1, 2, 3, 4, 5, 6], [1, 2, 3, 0, 5, 6, 4], [2, 3, 0, 1, 6, 4, 5], [3, 0, 1, 2, 4, 5, 6]],
        }[self.perm]

WSOFF = [0]
def srd(a, d, ptr, nbytes):
    if ptr == P_WS and WSOFF[0]:
        a(f"s_add_u32 s{ptr}, s{ptr}, {WSOFF[0]:#x}")
        a(f"s_addc_u32 s{ptr+1}, s{ptr+1}, 0")
    a(f"s_mov_b32 s{d}, s{ptr}")
    a(f"s_and_b32 s{d+1}, s{ptr+1}, 0xffff")
    a(f"s_mov_b32 s{d+2}, {nbytes:#x}")
    a(f"s_mov_b32 s{d+3}, 0x20000")

def srd_sel(a, d, ptr1, ptr0, nbytes):
    a(f"s_cselect_b32 s{d}, s{ptr1}, s{ptr0}")
    a(f"s_cselect_b32 s{d+1}, s{ptr1+1}, s{ptr0+1}")
    a(f"s_and_b32 s{d+1}, s{d+1}, 0xffff")
    a(f"s_mov_b32 s{d+2}, {nbytes:#x}")
    a(f"s_mov_b32 s{d+3}, 0x20000")

class TS:
    def __init__(self, a, cfg):
        self.a, self.on, self.n, self.set = a, cfg.ts, 0, cfg.tsset
        self.cfg = cfg
    def x(self, setno, i):
        if self.on and self.set == setno: self.emit(i)
    def __call__(self, i):
        if self.on and (self.set == 0 or i in (0, 12)): self.emit(i)
    def emit(self, i):
        if self.on == 5 and i not in (0, self.cfg.probe): return
        if self.on:
            assert i < 13
            self.a(f"{'s_memrealtime' if self.on != 2 else 's_memtime'} s[{TS0+2*i}:{TS0+2*i+1}]")
    def init(self):
        if self.on:
            for i in range(1, 13): self.a(f"s_mov_b32 s{TS0+2*i}, 0")
    def dump(self, vt, vt2, who=2):
        if not self.on: return
        a = self.a
        if self.on == 5:
            if who != self.cfg.pwho: return
            lab = a.newlabel("L_probe")
            if self.cfg.ponly >= 0:
                a(f"s_and_b32 s11, s2, {self.cfg.pmask}")
                a(f"s_cmp_lg_u32 s11, {self.cfg.ponly}")
                a(f"s_cbranch_scc1 {lab}_x")
            p = TS0 + 2 * self.cfg.probe
            a("s_waitcnt lgkmcnt(0)")
            a(f"s_sub_u32 s11, s{p}, s{TS0}")
            a(f"s_cmp_eq_u32 s{p}, 0")
            a("s_cselect_b32 s11, 0, s11")
            a("s_lshl_b32 s11, s11, 2")
            a("s_add_u32 s11, s11, 3000")
            a.label(lab)
            a("s_memrealtime s[12:13]")
            a("s_waitcnt lgkmcnt(0)")
            a(f"s_sub_u32 s12, s12, s{TS0}")
            a("s_cmp_lt_u32 s12, s11")
            a(f"s_cbranch_scc1 {lab}")
            a.label(lab + "_x")
            return
        if self.on == 3:
            a("s_waitcnt vmcnt(0) lgkmcnt(0)")
            lab = a.newlabel("L_nod")
            a(f"s_cmp_eq_u32 s{TS0+24}, 0")
            a(f"s_cbranch_scc1 {lab}")
            a(f"s_cmp_lg_u32 s{S_WAVE}, 0")
            a(f"s_cbranch_scc1 {lab}")
            a("s_mov_b64 exec, 1")
            a(f"v_mov_b32 v{vt2}, 0")
            a(f"s_not_b32 s11, s{TS0}")
            a(f"v_mov_b32 v{vt}, s11")
            a(f"global_atomic_umax v{vt2}, v{vt}, s[{P_DBG}:{P_DBG+1}] offset:4 sc1")
            for n, i in enumerate([0, 1, 2, 3, 4, 5, 6, 7, 8, 9, 10, 11, 12]):
                a("s_waitcnt vmcnt(0)")
                a(f"v_mov_b32 v{vt}, s{TS0+2*i}")
                a(f"global_atomic_umax v{vt2}, v{vt}, s[{P_DBG}:{P_DBG+1}] offset:{8+4*n} sc1")
            a("s_waitcnt vmcnt(0)")
            a.label(lab)
            return
        a("s_waitcnt vmcnt(0) lgkmcnt(0)")
        a(f"s_lshl_b32 s11, s2, 9")
        a(f"s_lshl_b32 s12, s{S_WAVE}, 6")
        a("s_add_u32 s11, s11, s12")
        a(f"s_add_u32 s11, s11, {WS_TS:#x}")
        a(f"v_mov_b32 v{vt2}, s11")
        for i in range(13):
            a(f"v_mov_b32 v{vt}, s{TS0+2*i}")
            a(f"buffer_store_dword v{vt}, v{vt2}, s[{SRD_WS}:{SRD_WS+3}], 0 offen offset:{4*i}")
        a("s_waitcnt vmcnt(0)")

def round_bf16(a, dst, src):
    a(f"v_cvt_pk_bf16_f32 v{dst}, v{src}, v{src}")
    a(f"v_lshlrev_b32 v{dst}, 16, v{dst}")

def exp_acc(a, dst, x, t0, t1):
    a(f"s_mov_b32 s36, {LOG2E:#x}")
    a(f"s_mov_b32 s37, {LOG2E_LO:#x}")
    a(f"v_mul_f32 v{t0}, s36, v{x}")
    a(f"v_fma_f32 v{t1}, v{x}, s36, -v{t0}")
    a(f"v_fma_f32 v{t1}, v{x}, s37, v{t1}")
    a(f"v_mul_f32 v{t1}, {LN2:#x}, v{t1}")
    a(f"v_exp_f32 v{dst}, v{t0}")
    a(f"v_fma_f32 v{dst}, v{dst}, v{t1}, v{dst}")

def csq(a, dr, di, sr, si, t):
    a(f"v_mul_f32 v{t}, v{si}, v{si}")
    a(f"v_add_f32 v{di}, v{si}, v{si}")
    a(f"v_mul_f32 v{di}, v{di}, v{sr}")
    a(f"v_fma_f32 v{dr}, v{sr}, v{sr}, -v{t}")

def cmul(a, dr, di, ar, ai, br, bi):
    a(f"v_mul_f32 v{dr}, v{ar}, v{br}")
    a(f"v_mul_f32 v{di}, v{ar}, v{bi}")
    a(f"v_fma_f32 v{dr}, -v{ai}, v{bi}, v{dr}")
    a(f"v_fma_f32 v{di}, v{ai}, v{br}, v{di}")

def ssm_const_load(a, vm, t):
    a(f"v_and_b32 v{t+3}, 15, v0")
    a(f"s_lshl_b32 s11, s{S_NS}, 4")
    a(f"v_add_lshl_u32 v{t+3}, v{t+3}, s11, 1")
    vm.issue('sc', f"global_load_ushort v{t}, v{t+3}, s[{P_LRE}:{P_LRE+1}]")
    vm.issue('sc', f"global_load_ushort v{t+1}, v{t+3}, s[{P_LIM}:{P_LIM+1}]")
    vm.issue('sc', f"global_load_ushort v{t+2}, v{t+3}, s[{P_LDT}:{P_LDT+1}]")

def ssm_const_calc(a, t, lr, li, cr=None, ci=None):
    for k in range(3): a(f"v_lshlrev_b32 v{t+k}, 16, v{t+k}")
    exp_acc(a, t + 3, t + 2, t + 4, t + 5)
    round_bf16(a, t + 2, t + 3)
    a(f"v_mul_f32 v{t+3}, v{t+2}, v{t}")
    a(f"v_mul_f32 v{t+6}, v{t+2}, v{t+1}")
    exp_acc(a, t + 7, t + 3, t + 4, t + 5)
    a(f"v_mul_f32 v{t+6}, {INV2PI:#x}, v{t+6}")
    a(f"v_rndne_f32 v{t+4}, v{t+6}")
    a(f"v_sub_f32 v{t+6}, v{t+6}, v{t+4}")
    a(f"v_cos_f32 v{t+4}, v{t+6}")
    a(f"v_sin_f32 v{t+5}, v{t+6}")
    a(f"v_mul_f32 v{lr}, v{t+7}, v{t+4}")
    a(f"v_mul_f32 v{li}, v{t+7}, v{t+5}")
    if cr is not None:
        a(f"v_add_f32 v{t+3}, -1.0, v{lr}")
        a(f"v_mul_f32 v{t+4}, v{t}, v{t}")
        a(f"v_fma_f32 v{t+4}, v{t+1}, v{t+1}, v{t+4}")
        a(f"v_rcp_f32 v{t+4}, v{t+4}")
        a(f"v_mul_f32 v{cr}, v{t+3}, v{t}")
        a(f"v_fma_f32 v{cr}, v{li}, v{t+1}, v{cr}")
        a(f"v_mul_f32 v{ci}, v{li}, v{t}")
        a(f"v_fma_f32 v{ci}, -v{t+3}, v{t+1}, v{ci}")
        a(f"v_add_f32 v{t+4}, v{t+4}, v{t+4}")
        a(f"v_mul_f32 v{cr}, v{cr}, v{t+4}")
        a(f"v_mul_f32 v{ci}, v{ci}, v{t+4}")

def gen_entry(a, cfg, ts):
    a("s_cmp_ge_u32 s2, 256")
    a("s_cbranch_scc1 L_exit")
    if cfg.padto: a("s_memrealtime s[100:101]")
    ts(0)
    a("s_load_dwordx16 s[16:31], s[0:1], 0")
    a("s_load_dwordx16 s[32:47], s[0:1], 64")
    a("v_lshrrev_b32 v1, 6, v0")
    a("v_and_b32 v0, 63, v0")
    a(f"v_readfirstlane_b32 s{S_WAVE}, v1")
    a(f"s_and_b32 s{S_XCD}, s2, 7")
    a(f"s_lshr_b32 s{S_SLOT}, s2, 3")
    if cfg.cpf == 2:
        a(f"s_cmp_lg_u32 s{S_WAVE}, 0")
        a("s_cbranch_scc1 L_nocpf")
        a("s_getpc_b64 s[12:13]")
        a.label("L_pc0")
        a(f"s_sub_u32 s12, s12, L_pc0-{KNAME}")
        a("s_subb_u32 s13, s13, 0")
        a(f"s_lshl_b32 s11, s{S_SLOT}, 10")
        a("v_lshl_add_u32 v38, v0, 4, s11")
        a(f"v_min_u32 v38, L_exit-{KNAME}, v38")
        a("global_load_dword v39, v38, s[12:13]")
        a.label("L_nocpf")
    a(f"s_and_b32 s11, s{S_SLOT}, 3")
    a(f"s_lshr_b32 s{S_NT}, s{S_SLOT}, 2")
    a(f"s_and_b32 s12, s{S_XCD}, 1")
    a(f"s_lshl_b32 s12, s12, 2")
    a(f"s_add_u32 s{S_MT}, s12, s11")
    a(f"s_lshr_b32 s12, s{S_XCD}, 1")
    a(f"s_mul_i32 s12, s12, 7")
    a(f"s_add_u32 s{S_NS}, s12, s{S_NT}")
    if cfg.slab:
        a(f"s_mov_b32 s{S_MT}, s{S_XCD}")
        a(f"s_mov_b32 s{S_NS}, s{S_SLOT}")
    if cfg.loc:
        a(f"s_and_b32 s12, s{S_XCD}, 1")
        a("s_lshl_b32 s12, s12, 2")
        a(f"s_lshr_b32 s13, s{S_XCD}, 1")
        a("s_add_u32 s12, s12, s13")
        a("s_lshl_b32 s12, s12, 2")
    else:
        a(f"s_lshl_b32 s12, s{S_XCD}, 2")
    a(f"s_add_u32 s{S_M64}, s12, s11")
    a(f"s_and_b32 s{S_W4}, s{S_WAVE}, 3")
    ts.init()
    a(f"s_cmp_ge_u32 s{S_SLOT}, 28")
    a("s_cbranch_scc1 L_helper")
    a(f"s_cmp_lt_u32 s{S_WAVE}, 4")
    a("s_cbranch_scc1 L_consumer")

def gen_helper(a, cfg, ts):
    a.label("L_helper")
    vm = VM(a)
    a(f"s_sub_u32 s73, s{S_SLOT}, 28")
    a(f"s_lshl_b32 s11, s73, 3")
    a(f"s_add_u32 s72, s11, s{S_XCD}")
    if cfg.loc: a(f"s_mov_b32 s72, s{S_M64}")
    a(f"s_cmp_ge_u32 s{S_WAVE}, 4")
    a("s_cbranch_scc1 L_h_pf")
    a(f"s_lshl_b32 s11, s72, 6")
    a(f"s_lshl_b32 s12, s{S_WAVE}, 4")
    a(f"s_add_u32 s11, s11, s12")
    a("v_lshrrev_b32 v2, 3, v0")
    a("v_add_u32 v2, s11, v2")
    a("v_mul_u32_u24 v3, 896, v2")
    a("v_and_b32 v4, 7, v0")
    a("v_lshl_add_u32 v3, v4, 4, v3")
    a("s_waitcnt lgkmcnt(0)")
    srd(a, SRD_X, P_X, 2048 * 896)
    srd(a, SRD_WS, P_WS, WS_SIZE)
    a(f"s_mov_b32 s11, {8*896}")
    for ps in range(2):
        for j in range(7):
            so = "0" if ps == 0 else "s11"
            vm.issue(('x', ps), f"buffer_load_dwordx4 v[{112+28*ps+4*j}:{115+28*ps+4*j}], v3, s[{SRD_X}:{SRD_X+3}], {so} offen offset:{128*j}")
    a(f"s_cmp_gt_u32 s{S_WAVE}, 1")
    a("s_cbranch_scc1 L_h_noreset")
    a(f"s_cmp_eq_u32 s{S_WAVE}, 0")
    a("s_cselect_b32 s11, -1, 0")
    a("s_mov_b32 s12, 1024")
    a("s_cmov_b32 s12, 896")
    a(f"s_mov_b32 s13, {WS_FLAG:#x}")
    a(f"s_cmov_b32 s13, {WS_AGG:#x}")
    a("s_mul_i32 s14, s12, s72")
    a("s_add_u32 s13, s13, s14")
    for k in range(4): a(f"v_mov_b32 v{8+k}, s11")
    a("v_lshlrev_b32 v12, 4, v0")
    a("v_cmp_gt_u32 vcc, s12, v12")
    a("s_and_saveexec_b64 s[14:15], vcc")
    a(f"buffer_store_dwordx4 v[8:11], v12, s[{SRD_WS}:{SRD_WS+3}], s13 offen sc1")
    a("s_mov_b64 exec, s[14:15]")
    a.label("L_h_noreset")
    a("s_nop 1")
    a("v_lshlrev_b32 v2, 3, v2")
    a("s_mov_b32 s12, 0xffff0000")
    def fin(dst):
        a("v_add_f32 v8, v8, v9")
        a("v_add_f32 v10, v10, v11")
        a(f"v_add_f32 v{dst}, v8, v10")
        a(f"v_add_f32_dpp v{dst}, v{dst}, v{dst} quad_perm:[1,0,3,2] row_mask:0xf bank_mask:0xf")
        a(f"v_add_f32_dpp v{dst}, v{dst}, v{dst} quad_perm:[2,3,0,1] row_mask:0xf bank_mask:0xf")
        a(f"v_add_f32_dpp v{dst}, v{dst}, v{dst} row_half_mirror row_mask:0xf bank_mask:0xf")
        a(f"v_mul_f32 v{dst}, 0x3b124925, v{dst}")
    for ps in range(2):
        vm.wait(('x', ps))
        if cfg.hdelay == 2 + ps: a("s_barrier")
        src = 112 + 28 * ps
        for k in range(28):
            a(f"v_lshlrev_b32 v{48+2*k}, 16, v{src+k}")
            a(f"v_and_b32 v{49+2*k}, s12, v{src+k}")
        a("v_pk_add_f32 v[8:9], v[48:49], v[52:53]")
        a("v_pk_add_f32 v[10:11], v[50:51], v[54:55]")
        for k in range(4, 28): a(f"v_pk_add_f32 v[{8+2*(k%2)}:{9+2*(k%2)}], v[{8+2*(k%2)}:{9+2*(k%2)}], v[{48+2*k}:{49+2*k}]")
        fin(12)
        for k in range(28): a(f"v_pk_add_f32 v[{48+2*k}:{49+2*k}], v[{48+2*k}:{49+2*k}], v[12:13] op_sel_hi:[1,0] neg_lo:[0,1] neg_hi:[0,1]")
        for k in range(2): a(f"v_pk_mul_f32 v[{8+2*k}:{9+2*k}], v[{48+2*k}:{49+2*k}], v[{48+2*k}:{49+2*k}]")
        for k in range(2, 28): a(f"v_pk_fma_f32 v[{8+2*(k%2)}:{9+2*(k%2)}], v[{48+2*k}:{49+2*k}], v[{48+2*k}:{49+2*k}], v[{8+2*(k%2)}:{9+2*(k%2)}]")
        fin(13)
        o = 14 + 2 * ps
        round_bf16(a, o, 12)
        round_bf16(a, 13, 13)
        a("v_add_f32 v13, 0x3727c5ac, v13")
        round_bf16(a, 13, 13)
        a("v_sqrt_f32 v13, v13")
        round_bf16(a, 13, 13)
        a(f"v_rcp_f32 v{o+1}, v13")
        a("v_cmp_eq_u32 vcc, 0, v4")
        a("s_and_saveexec_b64 s[14:15], vcc")
        a(f"s_mov_b32 s11, {WS_STATS:#x}")
        vm.issue('st', f"buffer_store_dwordx2 v[{o}:{o+1}], v2, s[{SRD_WS}:{SRD_WS+3}], s11 offen offset:{64*ps} sc1")
        a("s_mov_b64 exec, s[14:15]")
    a("s_waitcnt vmcnt(0)")
    a("v_mov_b32 v8, 0")
    a("v_mov_b32 v9, 1")
    a("s_mov_b64 exec, 1")
    a(f"global_atomic_add v8, v9, s[{P_DBG}:{P_DBG+1}] sc1")
    a("s_mov_b64 exec, -1")
    ts(1)
    ts.dump(8, 9)
    a("s_endpgm")
    a.label("L_h_pf")
    a("v_lshlrev_b32 v2, 4, v0")
    a(f"s_lshl_b32 s11, s{S_W4}, 10")
    a("v_add_u32 v2, s11, v2")
    if cfg.cpf == 1:
        a("s_getpc_b64 s[60:61]")
        a.label("L_pc")
        a(f"s_sub_u32 s60, s60, L_pc-{KNAME}")
        a("s_subb_u32 s61, s61, 0")
        a("s_lshl_b32 s11, s73, 12")
        a("v_add_u32 v3, s11, v2")
        for k in range(2):
            a(f"v_min_u32 v4, L_exit-{KNAME}-12, v3")
            a(f"global_load_dwordx4 v[24:27], v4, s[60:61]")
            a(f"v_add_u32 v3, 16384, v3")
    a("s_waitcnt lgkmcnt(0)")
    if cfg.hdelay == 1: a("s_waitcnt vmcnt(0)")
    if cfg.hdelay >= 2: a("s_barrier")
    srd(a, SRD_WS, P_WS, WS_SIZE)
    a("s_lshl_b32 s60, s72, 2")
    a(f"s_add_u32 s60, s60, s{S_W4}")
    a("s_cmp_ge_u32 s60, 98")
    a("s_cbranch_scc1 L_h_nopack1")
    a("s_mul_i32 s61, s60, 37")
    a("s_lshr_b32 s61, s61, 8")
    a("s_mul_i32 s62, s61, 7")
    a("s_sub_u32 s62, s60, s62")
    a("s_cmp_lt_i32 s62, 0")
    a("s_cselect_b32 s11, 1, 0")
    a("s_sub_u32 s61, s61, s11")
    a("s_mul_i32 s62, s61, 7")
    a("s_sub_u32 s62, s60, s62")
    a("s_bitcmp1_b32 s61, 0")
    srd_sel(a, 68, P_CIM, P_CRE, 448 * 896)
    a("v_lshrrev_b32 v3, 3, v0")
    a("v_and_b32 v4, 7, v0")
    a("v_lshrrev_b32 v5, 1, v3")
    a("v_xor_b32 v4, v4, v5")
    a("s_lshr_b32 s11, s61, 1")
    a("s_lshl_b32 s11, s11, 6")
    a("v_add_u32 v3, s11, v3")
    a("v_mul_u32_u24 v3, 896, v3")
    a("v_lshl_add_u32 v3, v4, 4, v3")
    a("v_xor_b32 v4, 64, v3")
    a(f"s_lshl_b32 s63, s{S_W4}, 13")
    a("s_lshl_b32 s12, s62, 7")
    for n in range(8):
        a(f"s_add_u32 m0, s63, {n*1024}")
        a(f"s_add_u32 s11, s12, {8*n*896}")
        a(f"buffer_load_dwordx4 v{3 + (n & 1)}, s[68:71], s11 offen lds")
    a.label("L_h_nopack1")
    def h_sweep():
        if cfg.hpf:
            for (ptr, nbytes, srdn) in ((P_WD, 1792 * 896, 56),):
                srd(a, srdn, ptr, nbytes)
            def sweep(name, srds, qbytes, first, count):
                n8 = -(-qbytes // (8 * 4096))
                n = 8 * n8
                a(f"s_mul_i32 s12, s73, {qbytes}")
                a(f"s_add_u32 s13, s{S_XCD}, {first}")
                a("s_and_b32 s13, s13, 7")
                a(f"s_mul_i32 s13, s13, {n8}")
                a("s_mov_b32 s14, 0")
                a.label(name)
                a("s_lshl_b32 s11, s13, 12")
                a("s_add_u32 s11, s11, s12")
                for k, sr in enumerate(srds):
                    a(f"buffer_load_dwordx4 v[{16+4*k}:{19+4*k}], v2, s[{sr}:{sr+3}], s11 offen")
                a("s_add_u32 s13, s13, 1")
                a(f"s_cmp_eq_u32 s13, {n}")
                a("s_cselect_b32 s13, 0, s13")
                a("s_add_u32 s14, s14, 1")
                a(f"s_cmp_lt_u32 s14, {n8 * count}")
                a(f"s_cbranch_scc1 {name}")
            sweep("L_h_p2", [56], 1792 * 896 // 4, 0, 1)
            ts(2)
    def h_pack():
        a("s_cmp_ge_u32 s60, 98")
        a("s_cbranch_scc1 L_h_nopack2")
        a("v_and_b32 v5, 31, v0")
        a("v_lshrrev_b32 v6, 5, v0")
        a("v_bfe_u32 v7, v0, 1, 3")
        a("v_xor_b32 v7, v7, v6")
        a("v_lshlrev_b32 v7, 4, v7")
        a("v_lshl_add_u32 v5, v5, 7, v7")
        a("v_add_u32 v5, s63, v5")
        a("v_lshlrev_b32 v6, 4, v0")
        a("s_mul_i32 s12, s61, 28")
        a("s_lshl_b32 s11, s62, 2")
        a("s_add_u32 s12, s12, s11")
        a("s_lshl_b32 s12, s12, 11")
        a(f"s_add_u32 s12, s12, {WS_CP:#x}")
        a(f"s_waitcnt vmcnt({13 if (cfg.hpf and not cfg.hord) else 0})")
        for ks in range(4):
            a(f"v_xor_b32 v7, {32*ks}, v5")
            for ct in range(2):
                d = 32 + 8 * ks + 4 * ct
                a(f"ds_read_b128 v[{d}:{d+3}], v7 offset:{4096*ct}")
        for ks in range(4):
            a(f"s_waitcnt lgkmcnt({6 - 2*ks})")
            a(f"s_add_u32 s11, s12, {2048*ks}")
            for ct in range(2):
                d = 32 + 8 * ks + 4 * ct
                a(f"buffer_store_dwordx4 v[{d}:{d+3}], v6, s[{SRD_WS}:{SRD_WS+3}], s11 offen offset:{1024*ct} sc1")
        a("s_waitcnt vmcnt(0)")
        a("v_mov_b32 v8, 0")
        a("v_mov_b32 v9, 1")
        a("s_mov_b64 exec, 1")
        a(f"global_atomic_add v8, v9, s[{P_DBG}:{P_DBG+1}] sc1")
        a("s_mov_b64 exec, -1")
        ts(3)
        a.label("L_h_nopack2")
    if cfg.hord: h_pack(); h_sweep()
    else: h_sweep(); h_pack()
    ts.dump(8, 9)
    a("s_endpgm")

def spin_check(a, name, load_text_list, cond_fn, sleep=1):
    lo, done = a.newlabel(name + "_spin"), a.newlabel(name + "_ok")
    a(f"s_mov_b32 s73, 0")
    a.label(lo)
    cond_fn()
    a(f"s_cbranch_scc1 {done}")
    a("s_add_u32 s73, s73, 1")
    a(f"s_cmp_ge_u32 s73, {SPIN_MAX}")
    a(f"s_cbranch_scc1 {done}")
    a(f"s_sleep {sleep}")
    for t in load_text_list: a(t)
    a("s_waitcnt vmcnt(0)")
    a(f"s_branch {lo}")
    a.label(done)
    a("s_nop 4")

def sspin(a, name, loads, cond_fn, sleep=1):
    lo, done = a.newlabel(name + "_spin"), a.newlabel(name + "_ok")
    a("s_mov_b32 s73, 0")
    a.label(lo)
    for t in loads: a(t)
    a("s_waitcnt lgkmcnt(0)")
    cond_fn()
    a(f"s_cbranch_scc1 {done}")
    a("s_add_u32 s73, s73, 1")
    a(f"s_cmp_lt_u32 s73, {SPIN_MAX}")
    if sleep: a(f"s_sleep {sleep}")
    a(f"s_cbranch_scc1 {lo}")
    a.label(done)

def flag_index(a, d, t, grp):
    a(f"s_mul_i32 s{t}, s{S_NS}, 37")
    a(f"s_lshr_b32 s{t}, s{t}, {8 if grp == 7 else 9}")
    a(f"s_mul_i32 s{t}, s{t}, {32 - grp}")
    a(f"s_add_u32 s{d}, s{t}, s{S_NS}")
    a(f"s_lshl_b32 s{d}, s{d}, 2")

def interleave(a, prim, fill, per):
    fill = list(fill)
    for p in prim:
        p()
        for _ in range(per):
            if fill: a(fill.pop(0))
    for f in fill: a(f)

def p2_rot(a, cfg, d_ffn, d_blk, d_flip):
    if not cfg.rot:
        for d in (d_ffn, d_blk, d_flip): a(f"s_mov_b32 s{d}, 0")
        return
    tab = {2: [0] * 7, 1: list(range(7)), 3: [0, 3, 0, 3, 0, 3, 0], 4: [0, 2, 5, 0, 2, 5, 0], 5: [0, 4, 2, 5, 0, 4, 2], 6: [0, 1, 0, 1, 0, 1, 0], 7: [0, 2, 0, 2, 0, 2, 0]}[cfg.rot]
    word = sum(v << (4 * k) for k, v in enumerate(tab))
    a(f"s_lshl_b32 s11, s{S_NT}, 2")
    a(f"s_lshr_b32 s13, {word:#x}, s11")
    a("s_and_b32 s13, s13, 15")
    a(f"s_and_b32 s11, s{S_SLOT}, 3")
    a("s_lshl_b32 s11, s11, 1")
    a("s_add_u32 s11, s11, s13")
    a("s_cmp_ge_u32 s11, 7")
    a("s_cselect_b32 s13, 7, 0")
    a(f"s_sub_u32 s{d_ffn}, s11, s13")
    for d in (d_blk, d_flip): a(f"s_mov_b32 s{d}, 0")

def slot(reg, n): return R[reg] + 2048 * n
SA = [slot(1, n) for n in range(6)]; SB = [slot(2, n) for n in range(6)]; SC = [slot(0, n) for n in range(6)]
WSLOT = {}
for n in range(6): WSLOT[n] = SA[n]; WSLOT[6 + n] = SB[n]
for n in range(4): WSLOT[12 + n] = SC[n]; WSLOT[16 + n] = SA[n]; WSLOT[20 + n] = SB[n]
WSLOT.update({24: SA[4], 25: SA[5], 26: SB[4], 27: SB[5]})
HTS = SC[4]
PH1, PH2, GA, FXA, SD = SC[0], SC[4], SB[0], SA[0], SC[0]

class Rec:
    def __init__(self): self.L = []
    def __call__(self, t): self.L.append(t)

def ssm_park(kc, K, KP, sQ):
    LR, LI, CR, CI, L16R, L16I, PWR, PWI, L64R, L64I, LWR, LWI, W0R = [KP + k for k in range(13)]
    vTW, vTR, vCB = KP + 16, KP + 17, KP + 18
    ssm_const_calc(kc, K, LR, LI, CR, CI)
    csq(kc, L16R, L16I, LR, LI, K)
    for _ in range(3): csq(kc, L16R, L16I, L16R, L16I, K)
    def powsel(dr, di, br, bi, bit, src):
        cmul(kc, K + 1, K + 2, dr, di, br, bi)
        kc(f"v_and_b32 v{K}, {bit}, v{src}")
        kc(f"v_cmp_ne_u32 vcc, 0, v{K}")
        kc(f"v_cndmask_b32 v{dr}, v{dr}, v{K+1}, vcc")
        kc(f"v_cndmask_b32 v{di}, v{di}, v{K+2}, vcc")
    kc(f"v_mov_b32 v{PWR}, v{CR}"); kc(f"v_mov_b32 v{PWI}, v{CI}")
    powsel(PWR, PWI, L16R, L16I, 32, 0)
    csq(kc, K + 14, K + 15, L16R, L16I, K)
    powsel(PWR, PWI, K + 14, K + 15, 16, 0)
    csq(kc, L64R, L64I, K + 14, K + 15, K)
    kc(f"v_mov_b32 v{K+10}, s{S_W4}")
    kc(f"v_mov_b32 v{LWR}, 1.0"); kc(f"v_mov_b32 v{LWI}, 0")
    powsel(LWR, LWI, L64R, L64I, 1, K + 10)
    csq(kc, K + 14, K + 15, L64R, L64I, K)
    powsel(LWR, LWI, K + 14, K + 15, 2, K + 10)
    csq(kc, K + 14, K + 15, K + 14, K + 15, K)
    kc(f"v_lshrrev_b32 v{K+10}, 4, v0")
    kc(f"v_sub_u32 v{K+10}, s{S_MT}, v{K+10}")
    kc(f"v_add_u32 v{K+11}, -5, v{K+10}")
    kc(f"v_add_u32 v{K+10}, -1, v{K+10}")
    kc(f"v_mov_b32 v{W0R}, 1.0"); kc(f"v_mov_b32 v{W0R+1}, 0")
    kc(f"v_mov_b32 v{W0R+2}, 1.0"); kc(f"v_mov_b32 v{W0R+3}, 0")
    for b in range(3):
        powsel(W0R, W0R + 1, K + 14, K + 15, 1 << b, K + 10)
        if b < 2: powsel(W0R + 2, W0R + 3, K + 14, K + 15, 1 << b, K + 11)
        if b < 2: csq(kc, K + 14, K + 15, K + 14, K + 15, K)
    kc(f"s_add_u32 s36, s{sQ}, {HTS}")
    kc(f"v_bfe_u32 v{K}, v0, 4, 1")
    kc(f"v_lshrrev_b32 v{K+1}, 5, v0")
    kc(f"v_lshl_add_u32 v{K+2}, v{K}, 1, v{K+1}")
    kc(f"v_and_b32 v{K+3}, 15, v0")
    kc(f"v_and_b32 v{vTW}, 6, v{K+3}")
    kc(f"v_lshlrev_b32 v{vTW}, 4, v{vTW}")
    kc(f"v_lshlrev_b32 v{K+4}, 5, v{K+2}")
    kc(f"v_xor_b32 v{vTW}, v{vTW}, v{K+4}")
    kc(f"v_lshl_add_u32 v{vTW}, v{K+3}, 7, v{vTW}")
    kc(f"v_add_u32 v{vTW}, s36, v{vTW}")
    kc(f"v_lshlrev_b32 v{vCB}, 2, v{K+3}")
    kc(f"v_add_u32 v{vCB}, {C_L + 512}, v{vCB}")
    kc(f"v_bfe_u32 v{K+4}, v0, 2, 2")
    kc(f"v_lshl_add_u32 v{K+5}, v{K+1}, 3, v{K+4}")
    kc(f"v_lshlrev_b32 v{vTR}, 7, v{K+5}")
    kc(f"v_lshrrev_b32 v{K+4}, 1, v{K+4}")
    kc(f"v_xor_b32 v{K+4}, v{K+4}, v0")
    kc(f"v_and_b32 v{K+4}, 1, v{K+4}")
    kc(f"v_lshl_add_u32 v{vTR}, v{K+4}, 5, v{vTR}")
    kc(f"v_lshl_add_u32 v{vTR}, v{K}, 4, v{vTR}")
    kc(f"v_bfe_u32 v{K+4}, v0, 1, 1")
    kc(f"v_lshl_add_u32 v{vTR}, v{K+4}, 3, v{vTR}")
    kc(f"v_add_u32 v{vTR}, s36, v{vTR}")
    kc(f"s_lshl_b32 s36, s{S_W4}, 9")
    kc(f"s_add_u32 s36, s36, {STATS_L}")
    kc(f"v_lshl_add_u32 v{KP+19}, v{K+2}, 7, s36")
    vStS = KP + 19
    vAg, vPr, vF = KP + 20, KP + 21, KP + 22
    kc(f"v_lshlrev_b32 v{vAg}, 3, v{K+3}")
    kc(f"v_lshrrev_b32 v{vPr}, 4, v0")
    kc(f"v_mul_u32_u24 v{vPr}, 3584, v{vPr}")
    kc(f"s_lshl_b32 s36, s{S_NS}, 7")
    kc(f"v_add3_u32 v{vPr}, v{vPr}, v{vAg}, s36")
    kc(f"v_add_u32 v{vAg}, {AGG_L}, v{vAg}")
    kc(f"s_lshl_b32 s36, s{S_MT}, 2")
    kc(f"s_add_u32 s36, s36, s{S_W4}")
    kc("s_lshl_b32 s36, s36, 10")
    flag_index(kc, 37, 38, 14)
    kc("s_add_u32 s36, s36, s37")
    kc(f"s_add_u32 s36, s36, {WS_FLAG + 512:#x}")
    kc(f"v_mov_b32 v{vF}, s36")

def gen_loader(a, cfg, ts):
    a.label("L_loader")
    a("s_setprio 3")
    vm = VM(a)
    vXe, vXo, vW, vB = 1, 2, 3, 4
    vFv, vP, vO, vPQ = 5, 6, 7, 8
    vWd, vCe, vCo, vCh = 9, 10, 11, 12
    vRf, vRh = 13, 14
    vA, vC = 24, 25
    vT = 15
    ACC, CA, RD = 27, 28, 44
    STG = 64
    CF = 144
    SACC = 80
    XRAW = CF + 64
    KP = XRAW + 8
    sGrp = [28, 29, 30, 31, 36, 37, 21]
    SP = ['', ' sc1'][cfg.spol]
    sMX, sMW, sMB, sMP = 72, 74, 75, 70
    sPerm, sSX, sSW = 68, 69, 15
    sRF = 14
    AP = ['', ' sc1', ' sc1 nt', ' sc0 sc1', ' sc0', ' nt'][cfg.apol]
    OP = ['', ' sc1', ' nt', ' sc1 nt'][cfg.opol]
    polx = " nt" if cfg.polx else ""
    polw = " nt" if cfg.polw else ""
    a(f"v_lshrrev_b32 v{vA}, 3, v0")
    a(f"v_and_b32 v{vC}, 7, v0")
    a(f"v_lshrrev_b32 v{vT+2}, 1, v{vA}")
    a(f"s_lshl_b32 s11, s{S_W4}, 4")
    a(f"v_add_u32 v{vT}, s11, v{vA}")
    a(f"v_mul_u32_u24 v{vW}, 3584, v{vT}")
    a(f"v_and_b32 v{vT+4}, 1, v{vT+2}")
    a(f"v_lshlrev_b32 v{vT+4}, 2, v{vT+4}")
    a(f"v_xor_b32 v{vT+4}, v{vC}, v{vT+4}")
    a(f"v_lshl_add_u32 v{vW}, v{vT+4}, 4, v{vW}")
    a(f"s_lshl_b32 s11, s{S_NS}, 7")
    a(f"v_add_u32 v{vW}, s11, v{vW}")
    a(f"s_lshl_b32 s11, s{S_MT}, 8")
    a(f"s_lshl_b32 s12, s{S_W4}, 6")
    a("s_add_u32 s11, s11, s12")
    a(f"v_lshrrev_b32 v{vT}, 2, v{vA}")
    a(f"v_and_b32 v{vT+1}, 3, v{vA}")
    a(f"v_lshl_add_u32 v{vT}, v{vT}, 4, v{vT+1}")
    a(f"v_add_u32 v{vT}, s11, v{vT}")
    a(f"v_mul_u32_u24 v{vXe}, 896, v{vT}")
    a(f"v_xor_b32 v{vT+3}, v{vC}, v{vT+2}")
    a(f"v_lshl_add_u32 v{vXe}, v{vT+3}, 4, v{vXe}")
    a(f"v_xor_b32 v{vXo}, 64, v{vXe}")
    a(f"s_and_b32 s12, s{S_W4}, 1")
    a(f"s_lshl_b32 s11, s{S_NS}, 4")
    a(f"s_lshl_b32 s13, s12, 3")
    a("s_add_u32 s11, s11, s13")
    a(f"v_add_u32 v{vT}, s11, v{vA}")
    a(f"v_mul_u32_u24 v{vB}, 896, v{vT}")
    a(f"v_lshl_add_u32 v{vB}, v{vT+3}, 4, v{vB}")
    a("s_lshl_b32 s13, s12, 6")
    a(f"v_xor_b32 v{vB}, s13, v{vB}")
    a(f"s_lshl_b32 s{sMX}, s{S_W4}, 13")
    a(f"s_lshl_b32 s{sMW}, s{S_W4}, 11")
    a(f"s_lshl_b32 s{sMB}, s{S_W4}, 10")
    a(f"s_mul_i32 s{sMP}, s{S_W4}, {Q}")
    perms = cfg.perms
    words = [sum(p[k] << (4 * k) for k in range(7)) for p in perms]
    ng = len(words)
    a(f"s_mov_b32 s{sPerm}, {words[0]:#x}")
    if ng > 1:
        if cfg.slab:
            a(f"s_add_u32 s11, s{S_SLOT}, s{S_XCD}")
        else:
            a(f"s_and_b32 s11, s{S_SLOT}, 3")
            a(f"s_add_u32 s11, s11, s{S_NT}")
        if ng == 3:
            a("s_mul_i32 s13, s11, 43")
            a("s_lshr_b32 s13, s13, 7")
            a("s_mul_i32 s13, s13, 3")
            a("s_sub_u32 s11, s11, s13")
        else:
            a(f"s_and_b32 s11, s11, {ng-1}")
        for g in range(1, ng):
            a(f"s_cmp_eq_u32 s11, {g}")
            a(f"s_cmov_b32 s{sPerm}, {words[g]:#x}")
    ts.x(1, 1)
    a("s_waitcnt lgkmcnt(0)")
    ts.x(1, 2)
    if cfg.tlb:
        a(f"v_mov_b32 v40, s{P_X}")
        a(f"v_mov_b32 v41, s{P_X+1}")
        for ln, p in enumerate([P_WG, P_WU, P_BRE, P_BIM, P_WD, P_CRE, P_CIM, P_WS][:cfg.tlb], 1):
            a(f"v_writelane_b32 v40, s{p}, {ln}")
            a(f"v_writelane_b32 v41, s{p+1}, {ln}")
        a(f"s_mov_b64 exec, {(1 << (cfg.tlb + 1)) - 1:#x}")
        a("global_load_dword v62, v[40:41], off")
        a("s_mov_b64 exec, -1")
    srd(a, SRD_A, P_WG, 448 * 3584)
    srd(a, SRD_X, P_X, 2048 * 896)
    srd(a, SRD_B, P_WU, 448 * 3584)
    a(f"s_cmp_ge_u32 s{S_W4}, 2")
    srd_sel(a, SRD_C, P_BIM, P_BRE, 448 * 896)

    thr = [None]
    def dma(vm, tag, voff, srdn, sbase, soff, m0base, m0off, pol=""):
        a(f"s_add_u32 m0, s{m0base}, {m0off}")
        a(f"s_add_u32 s11, s{sbase}, {soff}")
        if thr[0] is not None and len(vm.q) > thr[0]:
            a(f"s_waitcnt vmcnt({thr[0]})")
            vm.q = vm.q[-thr[0]:]
        vm.issue(tag, f"buffer_load_dwordx4 v{voff}, s[{srdn}:{srdn+3}], s11 offen{pol} lds")
    def issue_ops(s):
        r = R[s % 3]
        ops = []
        def pre():
            a(f"s_bfe_u32 s{sSX}, s{sPerm}, {(4 << 16) | (4 * s):#x}")
            a(f"s_mul_i32 s{sSW}, s{sSX}, {64*3584}")
            a(f"s_lshl_b32 s{sSX}, s{sSX}, 7")
        def mk(*args): return lambda: dma(vm, ('st', s), *args)
        L = []
        for i in range(2): L.append(mk(vW, SRD_A, sSW, i * 8 * 3584, sMW, r + OFF_WG + i * 1024, polw))
        for j in range(4): L.append(mk(vXo if j & 1 else vXe, SRD_X, sSX, (32 * (j >> 2) + 4 * (j & 3)) * 896, sMX, r + j * 1024, polx))
        for i in range(2): L.append(mk(vW, SRD_B, sSW, i * 8 * 3584, sMW, r + OFF_WU + i * 1024, polw))
        for j in range(4, 8): L.append(mk(vXo if j & 1 else vXe, SRD_X, sSX, (32 * (j >> 2) + 4 * (j & 3)) * 896, sMX, r + j * 1024, polx))
        L.append(mk(vB, SRD_C, sSX, 0, sMB, r + OFF_BB, polw))
        first = L[0]
        L[0] = lambda: (pre(), first())
        return L
    SRD_WD, SRD_CC, sBlk, sFlip, P_DSK2 = 32, 24, 16, 17, 38
    def w_ops(ps):
        L = []
        for p in ps:
            for n in range(2):
                def op(p=p, n=n):
                    if 12 <= p < 22:
                        d = STG + (p - 12) * 8 + 4 * n
                        a(f"s_add_u32 s11, s{sGrp[p//4]}, {((p % 4) * 16 + 8 * n) * 896}")
                        vm.issue(('w', p), f"buffer_load_dwordx4 v[{d}:{d+3}], v{vWd}, s[{SRD_WD}:{SRD_WD+3}], s11 offen")
                    else:
                        dma(vm, ('w', p), vWd, SRD_WD, sGrp[p//4], ((p % 4) * 16 + 8 * n) * 896, sMP, WSLOT[p] + n * 1024)
                L.append(op)
        return L
    sCF, sCH = 16, 17
    def cfrag(p, lc): return CF + 8 * p + 4 * lc
    def c_ops(b):
        L = []
        for p in (range(4 * b, 4 * b + 4) if b < 3 else (12, 13)):
            for lc in range(2):
                def op(p=p, lc=lc):
                    d = cfrag(p, lc)
                    sb, so = (sCF, 2048 * p) if p < 12 else (sCH, 2048 * (p - 12))
                    a(f"s_add_u32 s11, s{sb}, {so}")
                    vm.issue(('c', b), f"buffer_load_dwordx4 v[{d}:{d+3}], v{(vCe, vCo)[lc]}, s[{SRD_WS}:{SRD_WS+3}], s11 offen sc1")
                L.append(op)
        return L
    def w_write(ps):
        vm.wait(('w', ps[-1]))
        base = WSLOT[ps[0]]
        a(f"v_add_u32 v{vT+4}, {base}, v{vPQ}")
        for p in ps:
            for n in range(2):
                d = STG + (p - 12) * 8 + 4 * n
                a(f"ds_write_b128 v{vT+4}, v[{d}:{d+3}] offset:{WSLOT[p] - base + 1024*n}")
    def colsum_reads(s):
        r = R[s % 3]
        a(f"s_add_u32 s11, s{sMW}, {r + OFF_WG}")
        a(f"v_add_u32 v{vT}, s11, v{vP}")
        a(f"s_add_u32 s11, s{sMB}, {r + OFF_BB}")
        a(f"v_add_u32 v{vT+1}, s11, v{vP}")
        a(f"ds_read_b128 v[{RD}:{RD+3}], v{vT}")
        a(f"ds_read_b128 v[{RD+4}:{RD+7}], v{vT} offset:1024")
        a(f"ds_read_b128 v[{RD+8}:{RD+11}], v{vT} offset:8192")
        a(f"ds_read_b128 v[{RD+12}:{RD+15}], v{vT} offset:9216")
        a(f"ds_read_b128 v[{RD+16}:{RD+19}], v{vT+1}")
    def colsum_ops():
        L = ["s_waitcnt lgkmcnt(0)"]
        for n in range(4):
            for d in range(4):
                w = RD + 4 * n + d
                ac = CA + (n >> 1) * 8 + 2 * d
                L.append(f"v_lshlrev_b32 v{vT+2}, 16, v{w}")
                L.append(f"v_and_b32 v{vT+3}, s71, v{w}")
                L.append(f"v_add_f32 v{ac}, v{ac}, v{vT+2}")
                L.append(f"v_add_f32 v{ac+1}, v{ac+1}, v{vT+3}")
        for d in range(4):
            w = RD + 16 + d
            L.append(f"v_lshlrev_b32 v{vT+2}, 16, v{w}")
            L.append(f"v_and_b32 v{vT+3}, s71, v{w}")
            L.append(f"v_add_f32 v{vT+2}, v{vT+2}, v{vT+3}")
            L.append(f"v_add_f32 v{ACC}, v{ACC}, v{vT+2}")
        return L

    stage_ops = {}
    cdone = set()
    def tok_ops(toks):
        L = []
        for t in toks:
            if t[0] == 's':
                st = int(t[1])
                if st not in stage_ops: stage_ops[st] = issue_ops(st)
                lo, hi = (0, 13) if ':' not in t else map(int, t.split(':')[1].split('-'))
                L += stage_ops[st][lo:hi]
            elif t[0] == 'w': L += w_ops([int(t[1:])])
            elif t[0] == 'c':
                lo, hi = (0, 8) if ':' not in t else map(int, t.split(':')[1].split('-'))
                L += c_ops(int(t[1]))[lo:hi]
                cdone.add(int(t[1]))
            else: L.append(lambda t=t: special(t))
        return L
    def run_tokens(toks):
        for o in tok_ops(toks): o()
    def special(t):
        if True:
            if t == 'put':
                vm.wait('stats')
                a(f"s_lshl_b32 s11, s{S_W4}, 9")
                a(f"s_add_u32 s11, s11, {STATS_L}")
                a(f"v_lshl_add_u32 v{vT+4}, v0, 3, s11")
                a(f"ds_write_b64 v{vT+4}, v[20:21]")
                a(f"v_lshlrev_b32 v{vT+4}, 3, v0")
                a(f"v_add_u32 v{vT+4}, {ST2_L}, v{vT+4}")
                a(f"ds_write_b64 v{vT+4}, v[22:23]")
            elif t == 'e':
                a(f"s_add_u32 s12, s41, {16*896}")
                vm.issue('e', f"buffer_load_dwordx4 v[{XRAW}:{XRAW+3}], v20, s[{SRD_X}:{SRD_X+3}], s41 offen")
                vm.issue('e', f"buffer_load_dwordx4 v[{XRAW+4}:{XRAW+7}], v20, s[{SRD_X}:{SRD_X+3}], s12 offen")
                vm.issue('e', f"global_load_ushort v{KP+23}, v21, s[{P_DSK2}:{P_DSK2+1}]")
            elif t == 'k':
                a("s_waitcnt lgkmcnt(0)")
            elif t == 'init':
                a(f"v_mov_b32 v26, 0")
                vm.issue('init', f"global_load_dword v5, v26, s[{P_DBG}:{P_DBG+1}] sc1")
            elif t == 'fetch':
                vm.wait('init')
                def cond():
                    a(f"v_readfirstlane_b32 s11, v5")
                    a(f"s_cmp_ge_u32 s11, {INIT_N}")
                spin_check(a, "L_init", [f"global_load_dword v5, v26, s[{P_DBG}:{P_DBG+1}] sc1"], cond, 8)
                a(f"s_lshl_b32 s11, s{S_MT}, 8")
                a(f"s_lshl_b32 s12, s{S_W4}, 6")
                a("s_add_u32 s11, s11, s12")
                a(f"v_add_lshl_u32 v5, v0, s11, 3")
                a(f"s_lshl_b32 s12, s{S_M64}, 6")
                a(f"v_add_lshl_u32 v26, v0, s12, 3")
                a(f"s_mov_b32 s11, {WS_STATS:#x}")
                vm.issue('stats', f"buffer_load_dwordx2 v[20:21], v5, s[{SRD_WS}:{SRD_WS+3}], s11 offen sc1")
                vm.issue('stats', f"buffer_load_dwordx2 v[22:23], v26, s[{SRD_WS}:{SRD_WS+3}], s11 offen sc1")
            else: raise ValueError(t)
    win = cfg.win
    run_tokens(["s0"])
    ts(1)
    ts.x(1, 6)
    run_tokens(win.get(-1, []))
    a("s_setprio 0")
    a(f"s_and_b32 s12, s{S_W4}, 1")
    a(f"v_lshlrev_b32 v{vP}, 4, v0")
    a(f"v_add_u32 v{vPQ}, s{sMP}, v{vP}")
    a(f"s_mul_i32 s14, s{S_W4}, 448")
    a(f"v_add_u32 v{vT}, s14, v{vA}")
    a(f"v_mul_u32_u24 v{vWd}, 896, v{vT}")
    a(f"v_lshl_add_u32 v{vWd}, v{vT+4}, 4, v{vWd}")
    a(f"s_lshl_b32 s14, s{S_NT}, 7")
    a(f"v_add_u32 v{vWd}, s14, v{vWd}")
    a(f"v_and_b32 v{vT+1}, 3, v0")
    a("s_mov_b32 s71, 0xffff0000")
    for k in range(17): a(f"v_mov_b32 v{ACC+k}, 0")
    srd(a, SRD_WS, P_WS, WS_SIZE)
    a(f"s_mov_b64 s[{P_DSK2}:{P_DSK2+1}], s[{P_DSK}:{P_DSK+1}]")
    srd(a, SRD_WD, P_WD, 1792 * 896)
    p2_rot(a, cfg, sRF, sBlk, sFlip)
    a(f"s_lshl_b32 s11, s{S_M64}, 1")
    a("s_add_u32 s40, s11, s12")
    a("s_lshl_b32 s12, s40, 5")
    a(f"v_lshrrev_b32 v{vT}, 2, v0")
    a(f"v_add_u32 v{vT}, s12, v{vT}")
    a(f"v_mul_u32_u24 v{vT}, 896, v{vT}")
    a(f"v_lshl_add_u32 v20, v{vT+1}, 4, v{vT}")
    a(f"v_lshrrev_b32 v{vT+2}, 5, v0")
    a(f"v_lshl_add_u32 v{vT}, v{vT+2}, 4, s12")
    a(f"s_lshr_b32 s13, s{S_W4}, 1")
    a("s_lshl_b32 s12, s13, 5")
    a(f"s_lshl_b32 s11, s{S_NT}, 6")
    a("s_add_u32 s11, s11, s12")
    a("s_lshl_b32 s41, s11, 1")
    a(f"v_and_b32 v{vT+3}, 31, v0")
    a(f"v_add_u32 v{vT+1}, s11, v{vT+3}")
    a(f"v_mul_u32_u24 v{vT}, 448, v{vT}")
    a(f"v_add_lshl_u32 v{vO}, v{vT}, v{vT+1}, 2")
    a(f"v_lshlrev_b32 v21, 1, v{vT+1}")
    a("s_lshl_b32 s12, s13, 10")
    a(f"v_add_u32 v{vCe}, s12, v{vP}")
    a(f"v_xor_b32 v{vCo}, 1024, v{vCe}")
    a(f"s_lshl_b32 s11, s{S_NT}, 1")
    a("s_add_u32 s11, s11, s13")
    a(f"s_mul_i32 s11, s11, {28*2048}")
    a(f"s_add_u32 s11, s11, {WS_CP:#x}")
    a(f"s_and_b32 s12, s{S_W4}, 1")
    a(f"s_lshl_b32 s{sCF}, s12, 15")
    a(f"s_add_u32 s{sCF}, s{sCF}, s11")
    a(f"s_lshl_b32 s{sCH}, s12, 12")
    a(f"s_add_u32 s{sCH}, s{sCH}, s11")
    a(f"s_add_u32 s{sCH}, s{sCH}, {12*2048}")
    a(f"v_bfe_u32 v{vT}, v0, 4, 1")
    a(f"v_lshlrev_b32 v{vT+1}, 2, v{vT}")
    a(f"v_xor_b32 v{vC}, v{vC}, v{vT+1}")
    a(f"v_lshlrev_b32 v{vC}, 5, v{vC}")
    a(f"v_lshl_add_u32 v{vC}, v{vT}, 9, v{vC}")
    a(f"v_lshl_add_u32 v{vC}, v{vT+2}, 8, v{vC}")
    a(f"s_add_u32 s11, s{sMB}, {CP_L}")
    a(f"v_add_u32 v{vC}, s11, v{vC}")
    a(f"s_lshl_b32 s11, s{S_W4}, 5")
    a(f"s_add_u32 s11, s11, {C_L + 512}")
    a(f"v_lshl_add_u32 v{vA}, v{vA}, 2, s11")
    ts.x(1, 8)
    LR, LI, CR, CI, L16R, L16I, PWR, PWI, L64R, L64I, LWR, LWI, W0R = [KP + k for k in range(13)]
    vTW, vTR, vCB, vStS, vAg, vPr, vF = [KP + k for k in range(16, 23)]
    a(f"s_lshl_b32 s21, s{S_NS}, 7")
    a(f"s_mul_i32 s22, s{S_MT}, 3584")
    a("s_add_u32 s22, s22, s21")
    a(f"s_add_u32 s22, s22, {WS_AGG - AGG_L:#x}")
    a(f"s_mov_b32 s23, {WS_AGG:#x}")
    a(f"s_mov_b32 s20, {WS_AGG + 4*3584:#x}")
    a(f"s_lshl_b32 s18, s{S_M64}, 10")
    a(f"s_and_b32 s11, s{S_W4}, 1")
    a("s_lshl_b32 s11, s11, 7")
    a("s_add_u32 s18, s18, s11")
    a(f"s_add_u32 s18, s18, {WS_FLAG + 512:#x}")
    a(f"s_lshl_b32 s11, s{S_MT}, 2")
    a(f"s_add_u32 s11, s11, s{S_W4}")
    a(f"s_mul_i32 s19, s11, {2*RT_BYTES}")
    a(f"s_lshl_b32 s11, s{S_NS}, 10")
    a("s_add_u32 s19, s19, s11")
    a(f"s_add_u32 s19, s19, {56*1024}")
    for g in range(7):
        a(f"s_add_u32 s12, s{sRF}, {g}")
        a("s_cmp_ge_u32 s12, 7")
        a("s_cselect_b32 s13, 7, 0")
        a("s_sub_u32 s12, s12, s13")
        a(f"s_mul_i32 s{sGrp[g]}, s12, {64*896}")
    a(f"s_add_u32 s11, s{sMX}, {R[2]}")
    a(f"v_add_u32 v{vT+4}, s11, v{vP}")
    kparts = {}
    if cfg.wprio: a(f"s_setprio {cfg.wprio}")
    for s in range(7):
        vm.wait(('st', s))
        ts.x(2, 1 + s)
        a("s_barrier")
        ts.x(3, 1 + s)
        if s == 0: ts(2)
        if s == 0:
            for k in range(6): a(f"ds_read_b128 v[{KP+4*k}:{KP+4*k+3}], v{vT+4} offset:{1024*k}")
        if s == 6:
            QQ = 28
            for p in range(8): a(f"ds_read_b32 v{QQ+p}, v{vT+1} offset:{512*p}")
            a("s_waitcnt lgkmcnt(0)")
            for p in range(4): a(f"v_add_f32 v{QQ+p}, v{QQ+p}, v{QQ+4+p}")
            a(f"v_add_f32 v{QQ}, v{QQ}, v{QQ+2}")
            a(f"v_add_f32 v{QQ+1}, v{QQ+1}, v{QQ+3}")
            a(f"v_add_f32 v{QQ}, v{QQ}, v{QQ+1}")
            a(f"ds_write_b32 v{vT}, v{QQ}")
            pre = tok_ops(win[6][:2])
            for o in pre: o()
            a("s_waitcnt lgkmcnt(0)")
            a("s_barrier")
            a("s_setprio 0")
            run_tokens(win[6][2:])
            continue
        segs = [[None, []]]
        for t in win.get(s, []):
            if t.startswith("cs"): segs.append([int(t[2:]), []])
            else: segs[-1][1].append(t)
        for cs, toks in segs:
            fl = []
            if cs is not None:
                vm.wait(('st', cs))
                colsum_reads(cs)
                fl = colsum_ops()
            if cs == 6:
                b = ACC
                for k in range(8): fl.append(f"v_permlane32_swap_b32 v{CA+k}, v{CA+8+k}")
                fl.append(f"v_add_f32_dpp v{b}, v{b}, v{b} quad_perm:[1,0,3,2] row_mask:0xf bank_mask:0xf")
                for k in range(8): fl.append(f"v_add_f32 v{CA+k}, v{CA+k}, v{CA+8+k}")
                fl.append(f"v_add_f32_dpp v{b}, v{b}, v{b} quad_perm:[2,3,0,1] row_mask:0xf bank_mask:0xf")
                for k in range(8): fl.append(f"v_add_f32_dpp v{CA+k}, v{CA+k}, v{CA+k} row_ror:8 row_mask:0xf bank_mask:0xf")
                fl.append(f"v_add_f32_dpp v{b}, v{b}, v{b} row_half_mirror row_mask:0xf bank_mask:0xf")
                fl.append(f"ds_write_b128 v{vC}, v[{CA}:{CA+3}]")
                fl.append(f"ds_write_b128 v{vC}, v[{CA+4}:{CA+7}] offset:16")
                fl.append(f"ds_write_b32 v{vA}, v{b}")
            ops = tok_ops(toks)
            per = max(1, -(-len(fl) // max(1, len(ops))))
            interleave(a, ops, fl, per)
        if s == 5:
            a(f"s_and_b32 s12, s{S_W4}, 1")
            a("s_lshl_b32 s12, s12, 8")
            a(f"v_lshl_add_u32 v{vT}, v0, 2, s12")
            a(f"v_add_u32 v{vT+1}, {CP_L}, v{vT}")
            a(f"v_add_u32 v{vT}, {C_L}, v{vT}")
            a("s_waitcnt lgkmcnt(0)")
            a("s_setprio 3")
    ts.x(2, 8)
    a("s_barrier")
    ts(3)
    ts.x(3, 8)
    a(f"v_add_u32 v{vT+2}, {SD}, v{vPQ}")
    vm.wait(('w', 11), "lgkmcnt(0)")
    a("s_barrier")
    X, Y, ST = 32, 48, CF
    HR, HI, T1, T2, CBR, CBI, G0, G1, QR, QI = 20, 21, 22, 23, 24, 25, 26, 28, 30, 31
    for k in range(8): a(f"ds_read_b128 v[{X+4*k}:{X+4*k+3}], v{vT+2} offset:{1024*k}")
    a(f"ds_read_b32 v{CBR}, v{vCB}")
    a(f"ds_read_b32 v{CBI}, v{vCB} offset:64")
    for k in range(8): a(f"ds_read_b128 v[{ST+4*k}:{ST+4*k+3}], v{vStS} offset:{16*k}")
    a(f"s_setprio {cfg.eprio}")
    a(f"v_lshrrev_b32 v1, 4, v0")
    a(f"v_sub_u32 v1, s{S_MT}, v1")
    a(f"v_cmp_le_i32 s[56:57], 1, v1")
    a(f"v_cmp_le_i32 s[58:59], 5, v1")
    a(f"v_lshlrev_b32 v5, 16, v{KP+23}")
    a(f"v_mov_b32 v3, v{vF}")
    vF = 3
    a("s_waitcnt lgkmcnt(10)")
    for r in range(16): a(f"v_permlane16_swap_b32 v{X+r}, v{Y+r}")
    a("s_waitcnt lgkmcnt(0)")
    side = {}
    for r in range(16):
        if r in side: side[r]()
        m, rs = ST + 2 * r, ST + 2 * r + 1
        a(f"v_fma_f32 v{X+r}, -v{m}, v{CBR}, v{X+r}")
        a(f"v_fma_f32 v{Y+r}, -v{m}, v{CBI}, v{Y+r}")
        a(f"v_mul_f32 v{X+r}, v{X+r}, v{rs}")
        a(f"v_mul_f32 v{Y+r}, v{Y+r}, v{rs}")
        if r >= 1:
            pr, pi = (X, Y) if r == 1 else (HR, HI)
            a(f"v_fma_f32 v{T1}, -v{LI}, v{pi}, v{X+r}")
            a(f"v_fma_f32 v{T2}, v{LI}, v{pr}, v{Y+r}")
            a(f"v_fma_f32 v{HR}, v{LR}, v{pr}, v{T1}")
            a(f"v_fma_f32 v{HI}, v{LR}, v{pi}, v{T2}")
    z = CF
    a(f"v_mov_b32 v{z}, v{HR}"); a(f"v_mov_b32 v{z+1}, v{HI}")
    csq(a, z + 8, z + 9, L16R, L16I, z + 10)
    a(f"v_permlane32_swap_b32 v{HR}, v{z}")
    a(f"v_permlane32_swap_b32 v{HI}, v{z+1}")
    a(f"v_fma_f32 v{z}, -v{L16I}, v{HI}, v{z}")
    a(f"v_fma_f32 v{z+1}, v{L16I}, v{HR}, v{z+1}")
    a(f"v_fmac_f32 v{z}, v{L16R}, v{HR}")
    a(f"v_fmac_f32 v{z+1}, v{L16R}, v{HI}")
    a(f"v_mov_b32 v{z+2}, v{z}"); a(f"v_mov_b32 v{z+3}, v{z+1}")
    a(f"s_lshl_b32 s11, s{S_W4}, 7")
    a(f"v_add_u32 v{z+5}, s11, v{vAg}")
    a(f"v_permlane16_swap_b32 v{z}, v{z+2}")
    a(f"v_permlane16_swap_b32 v{z+1}, v{z+3}")
    a(f"v_fma_f32 v{z+2}, -v{z+9}, v{z+1}, v{z+2}")
    a(f"v_fma_f32 v{z+3}, v{z+9}, v{z}, v{z+3}")
    a(f"v_fmac_f32 v{z+2}, v{z+8}, v{z}")
    a(f"v_fmac_f32 v{z+3}, v{z+8}, v{z+1}")
    a(f"ds_write_b64 v{z+5}, v[{z+2}:{z+3}]")
    a("s_waitcnt lgkmcnt(0)")
    ts.x(2, 9)
    a(f"s_setprio {cfg.lprio}")
    a("s_barrier")
    ts(4)
    E = CF + 16
    for i in range(4): a(f"ds_read_b64 v[{E+2+2*i}:{E+3+2*i}], v{vAg} offset:{128*i}")
    a(f"v_mov_b32 v{E}, 0")
    a(f"v_mov_b32 v{E+1}, 0")
    a(f"v_and_b32 v{z+4}, 16, v0")
    a(f"v_cmp_ne_u32 s[12:13], 0, v{z+4}")
    for i in range(1, 4):
        e, p = E + 2 + 2 * i, E + 2 * i
        a(f"s_waitcnt lgkmcnt({3 - i})")
        a(f"v_fma_f32 v{e}, -v{L64I}, v{p+1}, v{e}")
        a(f"v_fma_f32 v{e+1}, v{L64I}, v{p}, v{e+1}")
        a(f"v_fmac_f32 v{e}, v{L64R}, v{p}")
        a(f"v_fmac_f32 v{e+1}, v{L64R}, v{p+1}")
    a(f"s_cmp_lg_u32 s{S_W4}, 0")
    a("s_cbranch_scc1 L_l_nopub")
    e = E + 8
    a(f"v_cmp_eq_u32 vcc, -1, v{e}")
    a(f"v_mov_b32 v{T1}, 0x7fc00000")
    a(f"v_cndmask_b32 v{e}, v{e}, v{T1}, vcc")
    a("s_mov_b64 exec, 0xffff")
    a(f"buffer_store_dwordx2 v[{e}:{e+1}], v{vAg}, s[{SRD_WS}:{SRD_WS+3}], s22 offen sc1")
    a("s_mov_b64 exec, -1")
    ts(5)
    a.label("L_l_nopub")
    a(f"v_cmp_lt_u32 vcc, 31, v0")
    a(f"v_cndmask_b32 v{z}, 0, v{z}, s[12:13]")
    a(f"v_cndmask_b32 v{z+1}, 0, v{z+1}, s[12:13]")
    a(f"v_fma_f32 v{HR}, -v{L16I}, v{z+1}, v{HR}")
    a(f"v_fma_f32 v{HI}, v{L16I}, v{z}, v{HI}")
    a(f"v_fmac_f32 v{HR}, v{L16R}, v{z}")
    a(f"v_fmac_f32 v{HI}, v{L16R}, v{z+1}")
    a(f"v_cndmask_b32 v{z}, v{z}, v{HR}, vcc")
    a(f"v_cndmask_b32 v{z+1}, v{z+1}, v{HI}, vcc")
    cmul(a, HR, HI, z, z + 1, CR, CI)
    a(f"s_bitcmp1_b32 s{S_W4}, 0")
    a("s_cselect_b64 vcc, -1, 0")
    a(f"v_cndmask_b32 v{QR}, v{E}, v{E+2}, vcc")
    a(f"v_cndmask_b32 v{QI}, v{E+1}, v{E+3}, vcc")
    a(f"v_cndmask_b32 v{T1}, v{E+4}, v{E+6}, vcc")
    a(f"v_cndmask_b32 v{T2}, v{E+5}, v{E+7}, vcc")
    a(f"s_bitcmp1_b32 s{S_W4}, 1")
    a("s_cselect_b64 vcc, -1, 0")
    a(f"v_cndmask_b32 v{QR}, v{QR}, v{T1}, vcc")
    a(f"v_cndmask_b32 v{QI}, v{QI}, v{T2}, vcc")
    ts.x(2, 10)
    thr[0] = cfg.thr
    lds = [f"buffer_load_dwordx2 v[{G0}:{G0+1}], v{vPr}, s[{SRD_WS}:{SRD_WS+3}], s23 offen sc1",
           f"buffer_load_dwordx2 v[{G1}:{G1+1}], v{vPr}, s[{SRD_WS}:{SRD_WS+3}], s20 offen sc1"]
    up = Rec()
    for r in range(16):
        up(f"v_mul_f32 v{T1}, v{CI}, v{Y+r}")
        up(f"v_mul_f32 v{T2}, v{CI}, v{X+r}")
        up(f"v_fma_f32 v{X+r}, v{CR}, v{X+r}, -v{T1}")
        up(f"v_fma_f32 v{Y+r}, v{CR}, v{Y+r}, v{T2}")
    vRd, vOne = 4, 2
    a(f"s_lshl_b32 s11, s{S_W4}, 2")
    a(f"s_add_u32 s11, s11, {CNT_L + 16}")
    a(f"v_mov_b32 v{vRd}, s11")
    a(f"v_mov_b32 v{vOne}, 1")
    thr[0] = None
    co = w_ops(range(22, 28)) + (c_ops(0) if cfg.c0early else [])
    interleave(a, co[:cfg.c1], up.L, 4)
    if cfg.agpos == 0:
        for t in lds: vm.issue('ag', t)
    w_write([12, 13, 14, 15])
    a(f"ds_write_b32 v{vRd}, v{vOne}")
    XV, STT, DS = 64, 80, 5
    TT = SACC + 32
    vHW = 1
    a(f"v_add_u32 v{vHW}, {HTS}, v{vPQ}")
    a(f"ds_write_b128 v{vHW}, v[{XRAW}:{XRAW+3}]")
    a(f"ds_write_b128 v{vHW}, v[{XRAW+4}:{XRAW+7}] offset:1024")
    a(f"v_lshrrev_b32 v{vT+3}, 5, v0")
    a(f"v_lshlrev_b32 v{vT+2}, 10, v{vT+3}")
    a(f"v_and_b32 v{vT}, 31, v0")
    a(f"v_lshl_add_u32 v{vT+2}, v{vT}, 1, v{vT+2}")
    a(f"s_add_u32 s11, s{sMP}, {HTS}")
    a(f"v_add_u32 v{vT+2}, s11, v{vT+2}")
    for r in range(16): a(f"ds_read_u16 v{XV+r}, v{vT+2} offset:{64*r}")
    if cfg.agpos == 1:
        for t in lds: vm.issue('ag', t)
    w_write([16, 17])
    def wrest():
        w_write([18, 19])
        w_write([20, 21])
        a(f"v_mov_b32 v{T1}, 2")
        a(f"ds_write_b32 v{vRd}, v{T1}")
    if not cfg.wl: wrest()
    co = co[cfg.c1:]
    ts(8)
    vm.wait('ag')
    def cond():
        a(f"v_cmp_eq_u32 vcc, -1, v{G0}")
        a("s_and_b64 s[48:49], vcc, s[56:57]")
        a(f"v_cmp_eq_u32 vcc, -1, v{G1}")
        a("s_and_b64 s[50:51], vcc, s[58:59]")
        a("s_or_b64 s[48:49], s[48:49], s[50:51]")
        a("s_cmp_eq_u64 s[48:49], 0")
    spin_check(a, "L_agg", lds, cond, 2)
    ts(6)
    SR, SI = CBR, CBI
    cmul(a, SR, SI, G0, G0 + 1, W0R, W0R + 1)
    cmul(a, T1, T2, G1, G1 + 1, W0R + 2, W0R + 3)
    a(f"v_cndmask_b32 v{SR}, 0, v{SR}, s[56:57]")
    a(f"v_cndmask_b32 v{SI}, 0, v{SI}, s[56:57]")
    a(f"v_cndmask_b32 v{T1}, 0, v{T1}, s[58:59]")
    a(f"v_cndmask_b32 v{T2}, 0, v{T2}, s[58:59]")
    a(f"v_add_f32 v{SR}, v{SR}, v{T1}")
    a(f"v_add_f32 v{SI}, v{SI}, v{T2}")
    for sw in ("v_permlane32_swap_b32", "v_permlane16_swap_b32"):
        a(f"v_mov_b32 v{T1}, v{SR}")
        a(f"v_mov_b32 v{T2}, v{SI}")
        a(f"{sw} v{SR}, v{T1}")
        a(f"{sw} v{SI}, v{T2}")
        a(f"v_add_f32 v{SR}, v{SR}, v{T1}")
        a(f"v_add_f32 v{SI}, v{SI}, v{T2}")
    a(f"v_fmac_f32 v{QR}, v{LWR}, v{SR}")
    a(f"v_fmac_f32 v{QI}, v{LWR}, v{SI}")
    a(f"v_fma_f32 v{QR}, -v{LWI}, v{SI}, v{QR}")
    a(f"v_fmac_f32 v{QI}, v{LWI}, v{SR}")
    a(f"v_fmac_f32 v{HR}, v{PWR}, v{QR}")
    a(f"v_fmac_f32 v{HI}, v{PWR}, v{QI}")
    a(f"v_fma_f32 v{HR}, -v{PWI}, v{QI}, v{HR}")
    a(f"v_fmac_f32 v{HI}, v{PWI}, v{QR}")
    pr, pi = HR, HI
    PK, HF = 96, 80
    rest = co[:cfg.c2]
    for r in range(16):
        if rest: rest.pop(0)()
        a(f"v_fma_f32 v{X+r}, -v{LI}, v{pi}, v{X+r}")
        a(f"v_fma_f32 v{Y+r}, v{LI}, v{pr}, v{Y+r}")
        a(f"v_fmac_f32 v{X+r}, v{LR}, v{pr}")
        a(f"v_fmac_f32 v{Y+r}, v{LR}, v{pi}")
        pr, pi = X + r, Y + r
    for k in range(8):
        a(f"v_cvt_pk_bf16_f32 v{PK+k}, v{X+2*k}, v{X+2*k+1}")
    a(f"ds_write_b128 v{vTW}, v[{PK}:{PK+3}]")
    a(f"ds_write_b128 v{vTW}, v[{PK+4}:{PK+7}] offset:16")
    for k in range(8):
        a(f"v_cvt_pk_bf16_f32 v{PK+8+k}, -v{Y+2*k}, -v{Y+2*k+1}")
    a(f"ds_write_b128 v{vTW}, v[{PK+8}:{PK+11}] offset:2048")
    a(f"ds_write_b128 v{vTW}, v[{PK+12}:{PK+15}] offset:2064")
    for q in range(2):
        for part in range(2):
            for j in range(2):
                d = HF + 8 * q + 4 * part + 2 * j
                a(f"ds_read_b64_tr_b16 v[{d}:{d+1}], v{vTR} offset:{(part*16 + 4*j)*128 + 64*(q ^ j)}")
    assert not rest
    a("s_waitcnt lgkmcnt(0)")
    for q in range(2):
        for part in range(2):
            d = HF + 8 * q + 4 * part
            a(f"s_add_u32 s11, s19, {q*RT_BYTES + part*HALF_BYTES}")
            vm.issue('hs', f"buffer_store_dwordx4 v[{d}:{d+3}], v{vP}, s[{SRD_WS}:{SRD_WS+3}], s11 offen{SP}")
    if cfg.wl: wrest()
    def flag2():
        vm.wait('hs')
        a("s_mov_b64 exec, 1")
        vm.issue('f', f"buffer_store_dword v{vOne}, v{vF}, s[{SRD_WS}:{SRD_WS+3}], 0 offen sc1")
        a("s_mov_b64 exec, -1")
        ts(7)
    if cfg.f2b == 0: flag2()
    for o in co[cfg.c2:] + (c_ops(2) if not cfg.clate else []): o()
    if cfg.f2b == 1: flag2()
    a(f"s_and_b32 s11, s{S_W4}, 1")
    a("s_lshl_b32 s11, s11, 8")
    a(f"s_add_u32 s11, s11, {ST2_L}")
    a(f"v_lshl_add_u32 v{vT+3}, v{vT+3}, 7, s11")
    STT = 32
    for k in range(8): a(f"ds_read_b128 v[{STT+4*k}:{STT+4*k+3}], v{vT+3} offset:{16*k}")
    for r in range(16): a(f"v_lshlrev_b32 v{XV+r}, 16, v{XV+r}")
    a("s_waitcnt lgkmcnt(0)")
    a("s_setprio 0")
    def rnd_pair(r0, r1):
        a(f"v_cvt_pk_bf16_f32 v{r1}, v{r0}, v{r1}"); a(f"v_lshlrev_b32 v{r0}, 16, v{r1}"); a(f"v_and_b32 v{r1}, s71, v{r1}")
    for r in range(16): a(f"v_sub_f32 v{TT+r}, v{XV+r}, v{STT+2*r}")
    for k in range(8): rnd_pair(TT + 2 * k, TT + 2 * k + 1)
    a(f"v_mov_b32 v{T2}, 3")
    vm.wait(('w', 27))
    a(f"ds_write_b32 v{vRd}, v{T2}")
    for r in range(16): a(f"v_mul_f32 v{TT+r}, v{TT+r}, v{STT+2*r+1}")
    for k in range(8): rnd_pair(TT + 2 * k, TT + 2 * k + 1)
    for r in range(16): a(f"v_mul_f32 v{TT+r}, v{TT+r}, v{DS}")
    for k in range(8): rnd_pair(TT + 2 * k, TT + 2 * k + 1)
    def poll(name, off):
        sspin(a, name, [f"s_load_dwordx16 s[20:35], s[{P_WS}:{P_WS+1}], s18 glc"], pcond, cfg.psleep)
    if True:
        def pcond():
            for k in range(0, 12, 4): a(f"s_and_b64 s[{20+k}:{21+k}], s[{20+k}:{21+k}], s[{22+k}:{23+k}]")
            a("s_and_b64 s[20:21], s[20:21], s[24:25]")
            a("s_and_b64 s[28:29], s[28:29], s[32:33]")
            a("s_and_b64 s[20:21], s[20:21], s[28:29]")
            a("s_and_b32 s20, s20, s21")
            a("s_cmp_eq_u32 s20, 1")
    a(f"s_mul_i32 s57, s40, {RT_BYTES}")
    a("s_xor_b32 s11, s40, 1")
    a(f"s_mul_i32 s56, s11, {RT_BYTES}")
    a(f"s_lshr_b32 s11, s{S_W4}, 1")
    a(f"s_mul_i32 s11, s11, {HALF_BYTES}")
    a(f"s_add_u32 s11, s11, {56*1024}")
    a("s_add_u32 s56, s56, s11")
    a("s_add_u32 s57, s57, s11")
    a(f"s_and_b32 s12, s{S_W4}, 1")
    a("s_lshl_b32 s13, s12, 14")
    for b in range(3): a(f"s_add_u32 s{52+b}, s13, {b*4096}")
    a("s_lshl_b32 s12, s12, 11")
    a(f"s_add_u32 s55, s12, {12*1024}")
    srd(a, 60, P_OUT, 2048 * 1792)
    vW1, vW2, vCn, vCv = 1, 2, 9, 4
    vR = [3, 12, 13, 14]
    a(f"v_add_u32 v{vW1}, {PH1}, v{vPQ}")
    a(f"v_add_u32 v{vW2}, {PH2}, v{vPQ}")
    a(f"v_mov_b32 v{vCn}, {CNT_L}")
    for (reg, xr, base) in ((vR[0], 1, PH1), (vR[1], 3, PH1 + 4096), (vR[2], 2, PH2)):
        a(f"s_xor_b32 s11, s{S_W4}, {xr}")
        a(f"s_mul_i32 s11, s11, {Q}")
        a(f"s_add_u32 s11, s11, {base}")
        a(f"v_add_u32 v{reg}, s11, v{vP}")
    a(f"v_add_u32 v{vR[3]}, {GA}, v{vPQ}")
    ts.x(2, 11)
    ts.x(7, 11)
    AR = list(range(16, 64, 4))
    NA = len(AR)
    PO = [4, 5, 6, 7, 12, 13, 0, 1, 2, 3, 8, 9, 10, 11]
    def aload(n):
        lr, p = n // 14, PO[n % 14]
        if p % 4 == 0: a(f"s_add_u32 s58, s{56+lr}, s{52 + p//4}")
        d = AR[n % NA]
        vm.issue(('a', n), f"buffer_load_dwordx4 v[{d}:{d+3}], v{vP}, s[{SRD_WS}:{SRD_WS+3}], s58 offen offset:{(p%4)*1024}{AP}")
    def cnt_wait(name, off):
        a("s_mov_b32 s73, 0")
        a.label(name)
        a("s_waitcnt lgkmcnt(0)")
        a(f"v_readfirstlane_b32 s11, v{vCv}")
        a("s_cmp_ge_u32 s11, 4")
        a(f"s_cbranch_scc1 {name}ok")
        a("s_add_u32 s73, s73, 1")
        a(f"s_cmp_ge_u32 s73, {SPIN_MAX}")
        a(f"s_cbranch_scc1 {name}ok")
        a("s_sleep 1")
        a(f"ds_read_b32 v{vCv}, v{vCn} offset:{off}")
        a(f"s_branch {name}")
        a.label(name + "ok")
        a("s_nop 7")
    a(f"ds_read_b32 v{vCv}, v{vCn} offset:4")
    cnt_wait("L_l_c0", 4)
    assert cfg.clate == 2 and cdone == {1, 3}
    if cfg.sprio: a(f"s_setprio {cfg.sprio}")
    a(f"s_load_dwordx16 s[20:35], s[{P_WS}:{P_WS+1}], s18 glc")
    if not cfg.c0early:
        for o in c_ops(0)[:cfg.c0n]: o()
    a("s_waitcnt lgkmcnt(0)")
    pcond()
    a("s_cbranch_scc1 L_ps_first")
    poll("L_ps", 128)
    a.label("L_ps_first")
    ts(9)
    ts.x(7, 1)
    for n in range(6): aload(n)
    if not cfg.c0early:
        for o in c_ops(0)[cfg.c0n:]: o()
    for n in range(6, 10): aload(n)
    for o in c_ops(2): o()
    for n in range(10, NA): aload(n)
    a("s_setprio 0")
    ts.x(7, 2)
    for n in range(28):
        lr, p = n // 14, PO[n % 14]
        vm.wait(('a', n))
        assert ('c', min(p // 4, 3)) not in vm.q
        if n in (0, 7, 14, 21): ts.x(7, 3 + n // 7)
        d = AR[n % NA]
        for lc in (1, 0):
            acc = SACC + 32 * lr + 16 * lc
            c = "0" if (n % 14 == 0 and not (lr == 1 and lc == 0)) else f"v[{acc}:{acc+15}]"
            f = cfrag(p, lc)
            a(f"v_mfma_f32_32x32x16_bf16 v[{acc}:{acc+15}], v[{d}:{d+3}], v[{f}:{f+3}], {c}")
        if n + NA < 28: aload(n + NA)
        if 16 <= n < 24:
            k = n - 16
            a(f"ds_write_b128 v{vW1}, v[{SACC+4*k}:{SACC+4*k+3}] offset:{1024*k}")
    ts(10)
    ts.x(7, 7)
    ts.x(7, 8)
    for k in range(4):
        a(f"ds_write_b128 v{vW2}, v[{SACC+48+4*k}:{SACC+48+4*k+3}] offset:{1024*k}")
    a("s_waitcnt lgkmcnt(0)")
    ts.x(7, 9)
    a("s_barrier")
    ts(11)
    ts.x(7, 10)
    RX = CF
    for k in range(4):
        for w in range(4):
            a(f"ds_read_b128 v[{RX+16*w+4*k}:{RX+16*w+4*k+3}], v{vR[w]} offset:{1024*k}")
    for k in range(4):
        a(f"s_waitcnt lgkmcnt({12 - 4*k})")
        for r in range(4 * k, 4 * k + 4):
            a(f"v_add_f32 v{TT+r}, v{TT+r}, v{RX+r}")
            a(f"v_add_f32 v{RX+16+r}, v{RX+16+r}, v{RX+32+r}")
        for r in range(4 * k, 4 * k + 4):
            a(f"v_add_f32 v{TT+r}, v{TT+r}, v{RX+16+r}")
        for r in range(4 * k, 4 * k + 4):
            a(f"v_fma_f32 v{XV+r}, v{TT+r}, v{RX+48+r}, v{XV+r}")
            if r % 2 == 0: a(f"s_mov_b32 s11, {r*1792}")
            a(f"buffer_store_dword v{XV+r}, v{vO}, s[60:63], s11 offen offset:{(r%2)*1792}{OP}")
    if cfg.ts:
        a("s_waitcnt vmcnt(0)")
        ts(12)
    if cfg.padto:
        a.label("L_pad")
        a("s_memrealtime s[98:99]")
        a("s_waitcnt lgkmcnt(0)")
        a("s_sub_u32 s98, s98, s100")
        a(f"s_cmp_lt_u32 s98, {cfg.padto}")
        a("s_cbranch_scc1 L_pad")
    ts.dump(16, 17, 1)
    a("s_endpgm")

def gen_consumer(a, cfg, ts):
    a.label("L_consumer")
    SP = ["", " sc1"][cfg.spol]
    AP = ['', ' sc1', ' sc1 nt', ' sc0 sc1', ' sc0', ' nt'][cfg.apol]
    vm = VM(a)
    XA = [1, 2, 3, 4]; BA = [5, 6, 7, 8]; WA = [9, 10]
    vL16, vStF, vCL, vF, vFl, vSo, vCn, vRd, vWB, vPQ, vOne, MM = 11, 12, 13, 14, 15, 16, 17, 18, 19, 20, 21, 22
    FS = [40, 68]
    ACC = 96
    def G(ft, q): return ACC + 16 * (2 * ft + q)
    def U(ft, q): return ACC + 64 + 16 * (2 * ft + q)
    def S(q): return ACC + 128 + 16 * q
    vI, vH, t0, t1, t2 = 24, 25, 26, 27, 28
    a(f"v_and_b32 v{vI}, 31, v0")
    a(f"v_lshrrev_b32 v{vH}, 5, v0")
    a(f"v_bfe_u32 v{t0}, v0, 1, 3")
    a(f"v_xor_b32 v{t0}, v{t0}, v{vH}")
    a(f"v_lshlrev_b32 v{t0}, 4, v{t0}")
    a(f"v_lshl_add_u32 v{t0}, v{vI}, 7, v{t0}")
    a(f"s_lshl_b32 s11, s{S_W4}, 13")
    for ks in range(4):
        a(f"v_xor_b32 v{t1}, {32*ks}, v{t0}")
        a(f"v_add_u32 v{XA[ks]}, s11, v{t1}")
        a(f"v_add_u32 v{BA[ks]}, {OFF_BB}, v{t1}")
    a(f"v_bfe_u32 v{t0}, v0, 2, 2")
    a(f"v_lshlrev_b32 v{t1}, 7, v{t0}")
    a(f"v_lshrrev_b32 v{t0}, 1, v{t0}")
    a(f"v_lshl_add_u32 v{t1}, v{t0}, 6, v{t1}")
    a(f"v_bfe_u32 v{t0}, v0, 4, 1")
    a(f"v_lshl_add_u32 v{t1}, v{t0}, 5, v{t1}")
    a(f"v_and_b32 v{t2}, 3, v0")
    a(f"v_lshl_add_u32 v{t1}, v{t2}, 3, v{t1}")
    a(f"v_lshl_add_u32 v{WA[0]}, v{vH}, 10, v{t1}")
    a(f"v_add_u32 v{WA[0]}, {OFF_WG}, v{WA[0]}")
    a(f"v_xor_b32 v{WA[1]}, 64, v{WA[0]}")
    a(f"s_mul_i32 s62, s{S_W4}, {Q}")
    a(f"s_lshr_b32 s59, s{S_W4}, 1")
    a(f"s_and_b32 s63, s{S_W4}, 1")
    a("s_lshl_b32 s11, s59, 6")
    a(f"v_lshl_add_u32 v{vWB}, v{vH}, 9, v{t1}")
    a(f"v_xor_b32 v{vWB}, s11, v{vWB}")
    a(f"v_add_u32 v{vWB}, s62, v{vWB}")
    a("s_waitcnt lgkmcnt(0)")
    a(f"s_lshl_b32 s11, s{S_NS}, 5")
    a(f"s_load_dwordx8 s[32:39], s[{P_LRE}:{P_LRE+1}], s11")
    a(f"s_load_dwordx8 s[64:71], s[{P_LDT}:{P_LDT+1}], s11")
    a(f"s_load_dwordx8 s[24:31], s[{P_LIM}:{P_LIM+1}], s11")
    for k in range(160): a(f"v_mov_b32 v{ACC+k}, 0")
    a(f"v_mov_b32 v{vCn}, {CNT_L}")
    a(f"ds_write_b128 v{vCn}, v[{ACC}:{ACC+3}]")
    a(f"ds_write_b128 v{vCn}, v[{ACC}:{ACC+3}] offset:16")
    a(f"v_bfe_u32 v{t0}, v0, 2, 1")
    a(f"v_lshl_add_u32 v{t0}, v{t0}, 4, v{t2}")
    a(f"v_bfe_u32 v{t1}, v0, 3, 2")
    a(f"v_lshl_add_u32 v{t0}, v{t1}, 2, v{t0}")
    a(f"s_lshl_b32 s11, s{S_W4}, 9")
    a(f"s_add_u32 s11, s11, {STATS_L}")
    a(f"v_lshl_add_u32 v{vStF}, v{t0}, 3, s11")
    a(f"v_lshlrev_b32 v{vL16}, 4, v0")
    a(f"v_add_u32 v{vPQ}, s62, v{vL16}")
    a(f"v_lshlrev_b32 v{vCL}, 4, v{vH}")
    a(f"v_add_u32 v{vCL}, {C_L}, v{vCL}")
    a(f"v_mov_b32 v{vOne}, 1")
    a(f"s_lshl_b32 s11, s{S_W4}, 2")
    a(f"s_add_u32 s11, s11, {CNT_L + 16}")
    a(f"v_mov_b32 v{vRd}, s11")
    a("s_lshl_b32 s11, s63, 8")
    a(f"s_add_u32 s11, s11, {ST2_L}")
    a(f"v_lshl_add_u32 v{vSo}, v{vH}, 7, s11")
    a(f"s_lshl_b32 s13, s{S_MT}, 2")
    a(f"s_add_u32 s13, s13, s{S_W4}")
    a(f"s_mul_i32 s56, s13, {2*RT_BYTES}")
    a(f"s_cmp_ge_u32 s{S_NS}, 14")
    a(f"s_cselect_b32 s11, {HALF_BYTES - 56*1024}, 0")
    a(f"s_lshl_b32 s12, s{S_NS}, 12")
    a("s_add_u32 s11, s11, s12")
    a("s_add_u32 s56, s56, s11")
    a(f"s_add_u32 s57, s56, {RT_BYTES}")
    a("s_lshl_b32 s11, s13, 10")
    flag_index(a, 12, 14, 7)
    a("s_add_u32 s11, s11, s12")
    a(f"s_add_u32 s11, s11, {WS_FLAG:#x}")
    a(f"v_mov_b32 v{vF}, s11")
    a(f"s_lshl_b32 s55, s{S_M64}, 10")
    a(f"s_add_u32 s55, s55, {WS_FLAG:#x}")
    a(f"s_lshl_b32 s11, s{S_W4}, 7")
    a("s_add_u32 s55, s55, s11")
    a(f"s_mul_i32 s12, s59, {HALF_BYTES}")
    a(f"s_mul_i32 s13, s63, {28*1024}")
    a("s_add_u32 s12, s12, s13")
    a(f"s_lshl_b32 s11, s{S_M64}, 1")
    a("s_add_u32 s11, s11, s63")
    a(f"s_mul_i32 s52, s11, {RT_BYTES}")
    a("s_add_u32 s52, s52, s12")
    a("s_xor_b32 s11, s11, 1")
    a(f"s_mul_i32 s51, s11, {RT_BYTES}")
    a("s_add_u32 s51, s51, s12")
    p2_rot(a, cfg, 60, 61, 58)
    a("s_mov_b32 s12, 0x00030003")
    a("s_mov_b32 s13, 0x00030003")
    a("s_waitcnt lgkmcnt(0)")
    K, KP = 40, 64
    for k in range(8):
        a(f"s_lshl_b64 exec, s[12:13], {2*k}")
        for m, sb in enumerate((32, 24, 64)): a(f"v_mov_b32 v{K+m}, s{sb+k}")
    a("s_mov_b64 exec, -1")
    a(f"v_and_b32 v{K+3}, 1, v0")
    a(f"v_lshlrev_b32 v{K+3}, 4, v{K+3}")
    for m in range(3): a(f"v_lshrrev_b32 v{K+m}, v{K+3}, v{K+m}")
    srd(a, SRD_WS, P_WS, WS_SIZE)
    ssm_park(a, K, KP, 62)
    a(f"v_mov_b32 v{KP+23}, 0")
    a(f"s_lshl_b32 s11, s{S_W4}, 13")
    a(f"s_add_u32 s11, s11, {R[2]}")
    a(f"v_add_u32 v{K}, s11, v{vL16}")
    for k in range(6): a(f"ds_write_b128 v{K}, v[{KP+4*k}:{KP+4*k+3}] offset:{1024*k}")
    a("s_waitcnt lgkmcnt(0)")
    ts(1)

    def reads(fs, ks):
        f = FS[fs]
        L = []
        L.append(f"ds_read_b128 v[{f}:{f+3}], v{XA[ks]}")
        L.append(f"ds_read_b128 v[{f+24}:{f+27}], v{BA[ks]}")
        L.append(f"ds_read_b128 v[{f+4}:{f+7}], v{XA[ks]} offset:4096")
        for gu in range(2):
            for ft in range(2):
                for j in range(2):
                    d = f + 8 + 8 * gu + 4 * ft + 2 * j
                    L.append(f"ds_read_b64_tr_b16 v[{d}:{d+1}], v{WA[ft]} offset:{gu*8192 + ks*2048 + j*512}")
        return L
    def mfmas(fs):
        f = FS[fs]
        X = [f, f + 4]; Bf = f + 24
        L = []
        for q in range(2):
            L.append(f"v_mfma_f32_32x32x16_bf16 v[{S(q)}:{S(q)+15}], v[{X[q]}:{X[q]+3}], v[{Bf}:{Bf+3}], v[{S(q)}:{S(q)+15}]")
        for gu in range(2):
            for ft in range(2):
                w = f + 8 + 8 * gu + 4 * ft
                for q in range(2):
                    d = (G, U)[gu](ft, q)
                    L.append(f"v_mfma_f32_32x32x16_bf16 v[{d}:{d+15}], v[{w}:{w+3}], v[{X[q]}:{X[q]+3}], v[{d}:{d+15}]")
        return L
    a("s_setprio 2")
    a("s_mov_b32 s72, 0")
    a("s_mov_b32 s74, 0")
    a("s_barrier")
    ts(2)
    for t in reads(0, 0): a(t)
    a.label("L_c_loop")
    need = {0: 9, 1: 8, 2: 6, 4: 4, 6: 2, 8: 0}
    for ks in range(4):
        fs = ks & 1
        M = mfmas(fs)
        if ks < 3:
            Rd = reads(1 - fs, ks + 1)
            issued = 0
            for i, m in enumerate(M):
                if i in need: a(f"s_waitcnt lgkmcnt({min(15, need[i] + issued)})")
                a(m)
                for _ in range(2 if i >= cfg.rdstart else 0):
                    if Rd: a(Rd.pop(0)); issued += 1
        else:
            Rd = reads(1 - fs, 0)
            a("s_waitcnt lgkmcnt(9)")
            a(M[0])
            a("s_add_u32 s74, s74, 1")
            a("s_cmp_eq_u32 s74, 3")
            a("s_mov_b32 s75, 53248")
            a(f"s_cmov_b32 s75, {(-106496) & 0xffffffff:#x}")
            a("s_cselect_b32 s74, 0, s74")
            for v in XA + BA[:1]: a(f"v_add_u32 v{v}, s75, v{v}")
            a("s_waitcnt lgkmcnt(8)")
            a(M[1])
            for v in BA[1:] + WA: a(f"v_add_u32 v{v}, s75, v{v}")
            a("s_add_u32 s72, s72, 1")
            a("s_cmp_eq_u32 s72, 6")
            a("s_waitcnt lgkmcnt(0)")
            a(M[2])
            a("s_barrier")
            hist = list(a.hist)
            a("s_cbranch_scc1 L_c_last")
            for m in M[3:]:
                for _ in range(2):
                    if Rd: a(Rd.pop(0))
                a(m)
            a("s_branch L_c_loop")
            a.label("L_c_last")
            a.hist = hist
            Mtail = M[3:]
    lq = []
    def ds_issue(tag, t):
        a(t)
        if t.startswith("ds_"): lq.append(tag)
    def ds_wait(tag):
        idx = max((i for i, t in enumerate(lq) if t == tag), default=None)
        if idx is None: return None
        n = len(lq) - 1 - idx
        del lq[:idx + 1]
        return f"lgkmcnt({min(n, 15)})"
    def dwait(tag):
        w = ds_wait(tag)
        if w: a(f"s_waitcnt {w}")
    UB = [24, 40, 56]
    def ureads(u):
        b, ks = UB[u % 3], u % 4
        L = [f"ds_read_b128 v[{b}:{b+3}], v{XA[ks]}"]
        if u < 8:
            ft = u // 4
            for gu in range(2):
                for j in range(2):
                    d = b + 8 + 4 * gu + 2 * j
                    L.append(f"ds_read_b64_tr_b16 v[{d}:{d+1}], v{WA[ft]} offset:{gu*8192 + ks*2048 + j*512}")
        else:
            L.append(f"ds_read_b128 v[{b+8}:{b+11}], v{BA[ks]}")
        L.append(f"ds_read_b128 v[{b+4}:{b+7}], v{XA[ks]} offset:4096")
        return [(u, t) for t in L]
    def umfma(u):
        b = UB[u % 3]
        L = []
        for q in range(2):
            x = b + 4 * q
            if u < 8:
                for gu in range(2):
                    d = (G, U)[gu](u // 4, q); w = b + 8 + 4 * gu
                    L.append(f"v_mfma_f32_32x32x16_bf16 v[{d}:{d+15}], v[{w}:{w+3}], v[{x}:{x+3}], v[{d}:{d+15}]")
            else:
                L.append(f"v_mfma_f32_32x32x16_bf16 v[{S(q)}:{S(q)+15}], v[{x}:{x+3}], v[{b+8}:{b+11}], v[{S(q)}:{S(q)+15}]")
        return L
    Rd = ureads(0) + ureads(1)
    for m in Mtail:
        for _ in range(2):
            if Rd: ds_issue(*Rd.pop(0))
        a(m)
    CH = 72
    def chalf(p):
        for gu in range(2):
            for k in range(2):
                ds_issue(('c', p), f"ds_read_b128 v[{CH+8*gu+4*k}:{CH+8*gu+4*k+3}], v{vCL} offset:{256*gu + 32*(2*p+k)}")
    def hstore(ft, q, p):
        g = G(ft, q)
        vm.issue('h', f"buffer_store_dwordx4 v[{g+4*p}:{g+4*p+3}], v{vL16}, s[{SRD_WS}:{SRD_WS+3}], s{56+q} offen offset:{(2*ft+p)*1024}{SP}")
    ep = [lambda: dwait(('c', 0)), f"v_xor_b32 v{MM}, 0x80000000, v{MM}", f"v_xor_b32 v{MM+1}, 0x80000000, v{MM+1}"]
    for p in range(2):
        if p: ep.append(lambda: dwait(('c', 1)))
        for q in range(2):
            g, u = G(0, q) + 8 * p, U(0, q) + 8 * p
            for k in range(8): ep.append(f"v_fmac_f32 v{g+k}, v{MM+q}, v{CH+k}")
            for k in range(8): ep.append(f"v_fmac_f32 v{u+k}, v{MM+q}, v{CH+8+k}")
            if q == 1 and p == 0: ep.append(lambda: chalf(1))
            for k in range(8): ep.append(f"v_max_f32 v{g+k}, 0, v{g+k}")
            for k in range(8): ep.append(f"v_mul_f32 v{u+k}, v{u+k}, v{g+k}")
            for k in range(4): ep.append(f"v_cvt_pk_bf16_f32 v{G(0,q)+4*p+k}, v{u+2*k}, v{u+2*k+1}")
            ep.append(lambda q=q, p=p: hstore(0, q, p))
    def fill(n):
        while n > 0 and ep:
            t = ep.pop(0)
            if callable(t): t()
            else: a(t)
            n -= 1
    def cread(tag, dst, off):
        for k in range(4): ds_issue(tag, f"ds_read_b128 v[{dst+4*k}:{dst+4*k+3}], v{vCL} offset:{off + 32*k}")
    for u in range(12):
        dwait(u)
        if u == 11:
            a("s_barrier")
        Rd = ureads(u + 2) if u + 2 < 12 else []
        for i, m in enumerate(umfma(u)):
            a(m)
            for _ in range(2):
                if Rd: ds_issue(*Rd.pop(0))
            if u > 4 or (u == 4 and i >= 1): fill(cfg.fper - 1 if u < 10 else cfg.fper)
        if u == cfg.c2u:
            a("s_barrier")
            ds_issue(('c', 0), f"ds_read_b32 v{MM}, v{vStF}")
            ds_issue(('c', 0), f"ds_read_b32 v{MM+1}, v{vStF} offset:256")
            chalf(0)
        if u == 9: cread('cg', UB[0], 128)
        if u == 10: cread('cu', UB[1], 384)
    ts(3)
    fill(1000)
    dump = [f"ds_write_b128 v{vPQ}, v[{S(0)+4*k}:{S(0)+4*k+3}] offset:{SD + 1024*k}" for k in range(8)]
    WB = {0: [1, 2], 1: [3, 4], 2: [5, 6]}
    for rg in range(3):
        a(f"v_add_u32 v{WB[rg][0]}, {R[rg]}, v{vWB}")
        a(f"v_xor_b32 v{WB[rg][1]}, 64, v{WB[rg][0]}")
    dwait('cu')
    cg, cu = UB[0], UB[1]
    for q in range(2):
        g, u = G(1, q), U(1, q)
        sel = f"op_sel:[{q},0,0] op_sel_hi:[{q},1,1]"
        for p in range(2):
            kr = range(4 * p, 4 * p + 4)
            for k in kr:
                a(f"v_pk_fma_f32 v[{g+2*k}:{g+2*k+1}], v[{MM}:{MM+1}], v[{cg+2*k}:{cg+2*k+1}], v[{g+2*k}:{g+2*k+1}] {sel}")
                if dump: a(dump.pop(0))
            for k in kr:
                a(f"v_pk_fma_f32 v[{u+2*k}:{u+2*k+1}], v[{MM}:{MM+1}], v[{cu+2*k}:{cu+2*k+1}], v[{u+2*k}:{u+2*k+1}] {sel}")
                a(f"v_max_f32 v{g+2*k}, 0, v{g+2*k}")
                a(f"v_max_f32 v{g+2*k+1}, 0, v{g+2*k+1}")
            for k in kr:
                a(f"v_pk_mul_f32 v[{u+2*k}:{u+2*k+1}], v[{u+2*k}:{u+2*k+1}], v[{g+2*k}:{g+2*k+1}]")
            for k in kr:
                a(f"v_cvt_pk_bf16_f32 v{g+k}, v{u+2*k}, v{u+2*k+1}")
            if q == 0 and p == 1:
                a("s_waitcnt lgkmcnt(0)")
                a("s_barrier")
            hstore(1, q, p)
    del lq[:]
    ts(4)
    BR, NB = 160, 12
    def breads(p):
        sl = WSLOT[p]
        rg = max(k for k in range(3) if R[k] <= sl)
        L = []
        for lc in range(2):
            for jj in range(2):
                d = BR + 8 * (p % NB) + 4 * lc + 2 * jj
                L.append(f"ds_read_b64_tr_b16 v[{d}:{d+1}], v{WB[rg][lc]} offset:{sl - R[rg] + jj*1024}")
        return L
    for p in range(NB):
        for t in breads(p): a(t)
    def flag1():
        vm.wait('h')
        a("s_setprio 3")
        a("s_mov_b64 exec, 1")
        vm.issue('f', f"buffer_store_dword v{vOne}, v{vF}, s[{SRD_WS}:{SRD_WS+3}], 0 offen sc1")
        a("s_mov_b64 exec, -1")
        ts(6)
    if cfg.fpre: flag1()
    a("s_waitcnt lgkmcnt(0)")
    a("s_barrier")
    ts(5)
    if not cfg.fpre: flag1()
    AF = 96
    AR = list(range(24, 96, 4))
    NA = len(AR)
    def aload(n):
        p, lr = n // 2, n % 2
        if n % 8 == 0:
            a(f"s_lshl_b32 s11, s60, 12")
            a(f"s_add_u32 s54, s11, s52")
            a(f"s_add_u32 s53, s11, s51")
            a(f"s_add_u32 s60, s60, 1")
            a(f"s_cmp_eq_u32 s60, 7")
            a(f"s_cselect_b32 s60, 0, s60")
        d = AR[n % NA]
        vm.issue(('a', n), f"buffer_load_dwordx4 v[{d}:{d+3}], v{vL16}, s[{SRD_WS}:{SRD_WS+3}], s{54 - lr} offen offset:{(p%4)*1024}{AP}")
    def cond():
        a("s_and_b64 s[16:17], s[16:17], s[18:19]")
        a("s_and_b64 s[16:17], s[16:17], s[20:21]")
        a("s_and_b32 s16, s16, s17")
        a("s_and_b32 s16, s16, s22")
        a("s_cmp_eq_u32 s16, 1")
    sspin(a, "L_pf", [f"s_load_dwordx8 s[16:23], s[{P_WS}:{P_WS+1}], s55 glc"], cond, cfg.fsleep)
    a("s_setprio 2")
    ts(7)
    for n in range(cfg.a0): aload(n)
    nxt = [cfg.a0]
    ts(8)
    def lds_spin(name, vaddr, off, val):
        a("s_mov_b32 s73, 0")
        a.label(name)
        a("s_waitcnt lgkmcnt(0)")
        a("v_readfirstlane_b32 s11, v8")
        a(f"s_cmp_ge_u32 s11, {val}")
        a(f"s_cbranch_scc1 {name}ok")
        a("s_add_u32 s73, s73, 1")
        a(f"s_cmp_ge_u32 s73, {SPIN_MAX}")
        a(f"s_cbranch_scc1 {name}ok")
        a("s_sleep 1")
        a(f"ds_read_b32 v8, v{vaddr} offset:{off}")
        a(f"s_branch {name}")
        a.label(name + "ok")
        del lq[:]
    for p in range(28):
        f = BR + 8 * (p % NB)
        pn = p + cfg.bd
        for lr in range(2):
            n = 2 * p + lr
            w = ds_wait(p) if lr == 0 else None
            vm.wait(('a', n), w or "")
            if n == 0: ts(9)
            if n in (0, 7, 17, 25, 35): ts.x(6, {0: 7, 7: 8, 17: 9, 25: 10, 35: 11}[n])
            if lr == 0 and pn in (12, 16, 22): ds_issue('r', f"ds_read_b32 v8, v{vRd}")
            d = AR[n % NA]
            for lc in range(2):
                acc = AF + 32 * lr + 16 * lc
                c = "0" if p == 0 else f"v[{acc}:{acc+15}]"
                a(f"v_mfma_f32_32x32x16_bf16 v[{acc}:{acc+15}], v[{d}:{d+3}], v[{f+4*lc}:{f+4*lc+3}], {c}")
            for _ in range(2):
                if nxt[0] < 56 and nxt[0] <= n + NA:
                    aload(nxt[0]); nxt[0] += 1
        if pn in (12, 16, 22): lds_spin(f"L_c_r{pn}", vRd, 0, {12: 1, 16: 2, 22: 3}[pn])
        if p == cfg.ksig:
            assert pn > 15
            w = ds_wait(15)
            if w: a(f"s_waitcnt {w}")
            a("s_mov_b64 exec, 1")
            ds_issue('c', f"ds_add_u32 v{vCn}, v{vOne} offset:4")
            a("s_mov_b64 exec, -1")
        if NB <= pn < 28:
            for t in breads(pn): ds_issue(pn, t)
        if p == 24:
            STT = BR + 32
            for k in range(8): ds_issue('st', f"ds_read_b128 v[{STT+4*k}:{STT+4*k+3}], v{vSo} offset:{16*k}")
        if p == 26:
            for x in range(1, 4):
                a(f"s_xor_b32 s11, s{S_W4}, {x}")
                a(f"s_mul_i32 s11, s11, {Q}")
                a(f"s_add_u32 s11, s11, {FXA + (x-1)*4096}")
                a(f"v_add_u32 v{x}, s11, v{vL16}")
            a(f"v_add_u32 v4, {GA}, v{vPQ}")
            a(f"v_add_u32 v5, {FXA}, v{vPQ}")
        if p % 4 == 3: ts.x(4, 1 + p // 4)
    ts(11)
    ts.x(7, 1)
    for x in (2, 1, 3):
        src = AF + 32 * (x & 1) + 16 * (x >> 1)
        for k in range(4):
            a(f"ds_write_b128 v5, v[{src+4*k}:{src+4*k+3}] offset:{(x-1)*4096 + 1024*k}")
    a("s_waitcnt lgkmcnt(12)")
    for r in range(16): a(f"v_mul_f32 v{STT+2*r}, v{STT+2*r+1}, v{STT+2*r+1}")
    a(f"s_mov_b32 s13, {LOG2E ^ 0x80000000:#x}")
    ts.x(7, 2)
    a("s_waitcnt lgkmcnt(0)")
    ts.x(7, 3)
    a("s_mov_b64 exec, 1")
    a(f"ds_add_u32 v{vCn}, v{vOne}")
    a("s_mov_b64 exec, -1")
    a(f"ds_read_b32 v8, v{vCn}")
    lds_spin("L_c_cnt", vCn, 0, 4)
    ts.x(7, 4)
    O, RX, EX = AF, 24, 72
    for k in range(4):
        for x in range(1, 4):
            a(f"ds_read_b128 v[{RX+16*(x-1)+4*k}:{RX+16*(x-1)+4*k+3}], v{x} offset:{1024*k}")
    for k in range(4):
        rr = range(4 * k, 4 * k + 4)
        a(f"s_waitcnt lgkmcnt({9 - 3*k})")
        for r in rr: a(f"v_add_f32 v{O+r}, v{O+r}, v{RX+r}")
        for r in rr: a(f"v_add_f32 v{RX+16+r}, v{RX+16+r}, v{RX+32+r}")
        for r in rr: a(f"v_add_f32 v{O+r}, v{O+r}, v{RX+16+r}")
        for r in rr: a(f"v_mul_f32 v{O+r}, v{O+r}, v{STT+2*r}")
        for r in rr: a(f"v_mul_f32 v{EX+r}, s13, v{O+r}")
        for r in rr: a(f"v_exp_f32 v{EX+r}, v{EX+r}")
    ts.x(7, 5)
    for k in range(4):
        rr = range(4 * k, 4 * k + 4)
        for r in rr: a(f"v_add_f32 v{EX+r}, 1.0, v{EX+r}")
        for r in rr: a(f"v_rcp_f32 v{EX+r}, v{EX+r}")
        for r in rr: a(f"v_mul_f32 v{O+r}, v{O+r}, v{EX+r}")
        a(f"ds_write_b128 v4, v[{O+4*k}:{O+4*k+3}] offset:{1024*k}")
    a("s_waitcnt lgkmcnt(0)")
    ts(12)
    a("s_barrier")
    ts.dump(24, 25, 0)
    a("s_endpgm")

HEADER = """; Fused S5-SSM + ReGLU block, one launch: 224 main workgroups (4 MFMA waves + 4 loader waves) + 32 helper workgroups.
; @launch grid=(256,1,1) block=(512,1,1) lds=163840
.amdgcn_target "amdgcn-amd-amdhsa--gfx950"
.text
.globl {k}
.p2align 8
.type {k},@function
{k}:
"""
FOOTER = """.section .rodata,"a"
.p2align 6
.amdhsa_kernel {k}
  .amdhsa_next_free_vgpr 256
  .amdhsa_next_free_sgpr 102
  .amdhsa_accum_offset 256
  .amdhsa_group_segment_fixed_size 0
  .amdhsa_kernarg_size 128
  .amdhsa_user_sgpr_count 2
  .amdhsa_user_sgpr_kernarg_segment_ptr 1
  .amdhsa_system_sgpr_workgroup_id_x 1
  .amdhsa_float_denorm_mode_32 3
.end_amdhsa_kernel
"""

def generate(cfg):
    WSOFF[0] = cfg.wsoff << 20
    a = Asm()
    ts = TS(a, cfg)
    gen_entry(a, cfg, ts)
    gen_loader(a, cfg, ts)
    gen_consumer(a, cfg, ts)
    gen_helper(a, cfg, ts)
    a.label("L_exit")
    a("s_endpgm")
    return HEADER.format(k=KNAME) + f"; wsoff={cfg.wsoff}\n" + a.text() + FOOTER.format(k=KNAME)

if __name__ == "__main__":
    cfg = Cfg()
    out = sys.argv[1]
    for kv in sys.argv[2:]:
        k, v = kv.split("=")
        setattr(cfg, k, int(v))
    open(out, "w").write(generate(cfg))
```

```python
import sys, os
sys.path.insert(0, os.path.dirname(os.path.abspath(__file__)))
from asmlib import Asm, VM

KNAME = "recurrent_scan__ssm_conv_s5__glu_gated_reglu__prompt_kernel"

R = [0, 53248, 106496]
MISC = 159744
OFF_WG, OFF_WU, OFF_BB = 32768, 40960, 49152
CP_L = R[1] + 49152
STATS_L = MISC
C_L = MISC + 2048
CNT_L = MISC + 2688
ST2_L = MISC + 2720
AGG_L = MISC + 3232
Q = 12288

RT_BYTES = 172032
HALF_BYTES = 86016
WS_STATS = 0xB00000
WS_AGG = WS_STATS + 0x4000
WS_FLAG = WS_AGG + 0x8000
INIT_N = 128 + 98
WS_CP = 0xB20000
WS_TS = 0xC00000
WS_SIZE = 0x1000000
SPIN_MAX = 1 << 20

S_WAVE, S_XCD, S_SLOT, S_MT, S_NS, S_M64, S_NT, S_W4 = 3, 4, 5, 6, 7, 8, 9, 10
P_X, P_LRE, P_LIM, P_BRE, P_BIM, P_CRE, P_CIM, P_LDT, P_DSK, P_BX, P_WG, P_WU, P_WD, P_OUT, P_DBG, P_WS = [16 + 2 * i for i in range(16)]
SRD_X, SRD_A, SRD_B, SRD_C, SRD_WS, SRD_E = 48, 52, 56, 60, 64, 68
TS0 = 76

LOG2E = 0x3fb8aa3b
LOG2E_LO = 0x32a57060
LN2 = 0x3f317218
INV2PI = 0x3e22f983

class Cfg:
    ts = 0
    tsset = 0
    pd = 16
    perm = 1
    rot = 2
    ssm_early = 0
    schedn = 0
    polx = 0
    apol = 1
    noa = 0
    nob = 0
    rdstart = 1
    polw = 0
    winn = 3
    loc = 1
    gate = 0
    c0n = 0
    agpos = 1
    c0early = 0
    hord = 1
    clate = 2
    wl = 1
    fper = 6
    c2u = 2
    probe = 0
    pwho = 0
    ponly = -1
    pmask = 0xffff
    wsoff = 0
    kwin = 2
    wprio = 0
    hdelay = 0
    eprio = 0
    c2late = 0
    cpf = 2
    padto = 0
    nocs = 0
    r2pre = 1
    tlb = 0
    bd = 4
    pollw = 24
    c1 = 12
    c2 = 16
    f2b = 1
    wfirst = 1
    @property
    def win(self):
        W = lambda a, b: [f"w{p}" for p in range(a, b)]
        return [
            {-1: ["s1:0-6"], 0: ["cs0", "s1:6-13", "k", "s2:0-9"], 1: ["cs1", "s2:9-13", "s3", "e"], 2: ["cs2", "s4"] + W(12, 14), 3: ["cs3", "s5"] + W(14, 17),
             4: ["cs4", "init", "s6:0-7", "cs5", "s6:7-13", "w17"], 5: ["fetch"] + W(0, 4) + ["cs6"] + W(4, 6) + W(18, 20) + ["put"], 6: W(6, 12) + W(20, 22)},
            {-1: ["s1:0-6"], 0: ["cs0", "s1:6-13", "k", "s2:0-9"], 1: ["cs1", "s2:9-13", "s3", "e"], 2: ["cs2", "s4"] + W(12, 15), 3: ["cs3", "s5"] + W(15, 18),
             4: ["cs4", "init", "s6"] + W(18, 20), 5: ["cs5", "fetch"] + W(0, 3) + ["cs6"] + W(3, 6) + ["put"], 6: W(6, 12) + W(20, 22)},
            {-1: ["s1:0-6"], 0: ["cs0", "s1:6-13", "k", "s2:0-9"], 1: ["cs1", "s2:9-13", "s3", "e"], 2: ["cs2", "s4"] + W(12, 15), 3: ["cs3", "s5:0-7", "cs4", "s5:7-13", "w15"],
             4: ["init", "s6:0-4", "cs5", "s6:4-13"] + W(16, 19), 5: ["fetch"] + W(0, 4) + ["cs6"] + W(4, 6) + W(19, 22) + ["put"], 6: W(6, 12)},
            {-1: ["s1:0-6"], 0: ["cs0", "s1:6-13", "k", "s2:0-9"], 1: ["cs1", "s2:9-13", "s3", "e"], 2: ["cs2", "s4"] + W(12, 15), 3: ["cs3", "s5"] + W(15, 18),
             4: ["cs4", "init", "s6:0-7", "cs5", "s6:7-13", "w18", "w19"], 5: ["fetch"] + W(0, 4) + ["cs6"] + W(4, 6) + W(20, 22) + ["c3", "put"], 6: W(6, 12) + ["c1"]},
            {-1: ["s1:0-6"], 0: ["cs0", "s1:6-13", "k", "s2:0-9"], 1: ["cs1", "s2:9-13", "s3", "e"], 2: ["cs2", "s4"] + W(12, 14), 3: ["cs3", "s5"] + W(14, 17),
             4: ["cs4", "init", "s6:0-7", "cs5", "s6:7-13", "w17"], 5: ["fetch"] + W(0, 4) + ["cs6"] + W(4, 6) + W(18, 20) + ["put"], 6: W(6, 12) + W(20, 22) + ["c3"]},
            {-1: ["s1:0-6"], 0: ["cs0", "s1:6-13", "k", "s2:0-9"], 1: ["cs1", "s2:9-13", "s3", "e"], 2: ["cs2", "s4"] + W(12, 15), 3: ["cs3", "s5"] + W(15, 19),
             4: ["cs4", "init", "s6:0-7", "cs5", "s6:7-13"] + W(19, 22), 5: ["fetch"] + W(0, 4) + ["cs6"] + W(4, 6) + ["c1", "put"], 6: W(6, 12) + ["c3"]},
            {-1: ["s1:0-6"], 0: ["cs0", "s1:6-13", "k", "s2"], 1: ["cs1", "s3", "e"] + W(12, 14), 2: ["cs2", "s4"] + W(14, 17), 3: ["cs3", "s5"] + W(17, 20),
             4: ["cs4", "init", "s6:0-7", "cs5", "s6:7-13"] + W(20, 22), 5: ["fetch"] + W(0, 4) + ["cs6"] + W(4, 6) + ["c1", "put"], 6: W(6, 12) + ["c3"]},
            {-1: ["s1:0-6"], 0: ["cs0", "s1:6-13", "k", "s2:0-9"], 1: ["cs1", "s2:9-13", "s3", "e"], 2: ["cs2", "s4"] + W(12, 15), 3: ["cs3", "s5:0-7", "cs4", "s5:7-13"] + W(15, 18),
             4: ["init", "s6:0-4", "cs5", "s6:4-13"] + W(18, 22), 5: ["fetch"] + W(0, 4) + ["cs6"] + W(4, 6) + ["c1", "put"], 6: W(6, 12) + ["c3"]},
        ][self.winn]
    nw1 = 6
    flagr = -1
    xs = 1
    psleep = 2
    fsleep = 2
    ttper = 2
    f2n = 9
    fpre = 1
    a0 = 18
    sprio = 0
    ksig = 12
    opol = 1
    lprio = 3
    w12early = 0
    slab = 0
    spol = 1
    fpol = 1
    pollr = 4
    nw2 = 16
    thr = 15
    hpf = 2
    ky = 2
    @property
    def perms(self):
        return {
            0: [[0, 1, 2, 3, 4, 5, 6]],
            1: [[0, 1, 2, 3, 4, 5, 6], [1, 2, 0, 4, 5, 3, 6], [2, 0, 1, 5, 3, 4, 6]],
            2: [[0, 1, 2, 3, 4, 5, 6], [1, 0, 3, 2, 5, 4, 6]],
            3: [[0, 1, 2, 3, 4, 5, 6], [1, 0, 4, 5, 6, 2, 3], [0, 1, 6, 2, 3, 4, 5]],
            4: [[0, 1, 2, 3, 4, 5, 6], [1, 2, 0, 4, 6, 3, 5], [2, 0, 1, 5, 6, 3, 4]],
            5: [[0, 1, 2, 3, 4, 5, 6], [1, 2, 3, 0, 5, 6, 4], [2, 3, 0, 1, 6, 4, 5], [3, 0, 1, 2, 4, 5, 6]],
        }[self.perm]

WSOFF = [0]
def srd(a, d, ptr, nbytes):
    if ptr == P_WS and WSOFF[0]:
        a(f"s_add_u32 s{ptr}, s{ptr}, {WSOFF[0]:#x}")
        a(f"s_addc_u32 s{ptr+1}, s{ptr+1}, 0")
    a(f"s_mov_b32 s{d}, s{ptr}")
    a(f"s_and_b32 s{d+1}, s{ptr+1}, 0xffff")
    a(f"s_mov_b32 s{d+2}, {nbytes:#x}")
    a(f"s_mov_b32 s{d+3}, 0x20000")

def srd_sel(a, d, ptr1, ptr0, nbytes):
    a(f"s_cselect_b32 s{d}, s{ptr1}, s{ptr0}")
    a(f"s_cselect_b32 s{d+1}, s{ptr1+1}, s{ptr0+1}")
    a(f"s_and_b32 s{d+1}, s{d+1}, 0xffff")
    a(f"s_mov_b32 s{d+2}, {nbytes:#x}")
    a(f"s_mov_b32 s{d+3}, 0x20000")

class TS:
    def __init__(self, a, cfg):
        self.a, self.on, self.n, self.set = a, cfg.ts, 0, cfg.tsset
        self.cfg = cfg
    def x(self, setno, i):
        if self.on and self.set == setno: self.emit(i)
    def __call__(self, i):
        if self.on and (self.set == 0 or i in (0, 12)): self.emit(i)
    def emit(self, i):
        if self.on == 5 and i not in (0, self.cfg.probe): return
        if self.on:
            assert i < 13
            self.a(f"{'s_memrealtime' if self.on != 2 else 's_memtime'} s[{TS0+2*i}:{TS0+2*i+1}]")
    def init(self):
        if self.on:
            for i in range(1, 13): self.a(f"s_mov_b32 s{TS0+2*i}, 0")
    def dump(self, vt, vt2, who=2):
        if not self.on: return
        a = self.a
        if self.on == 5:
            if who != self.cfg.pwho: return
            lab = a.newlabel("L_probe")
            if self.cfg.ponly >= 0:
                a(f"s_and_b32 s11, s2, {self.cfg.pmask}")
                a(f"s_cmp_lg_u32 s11, {self.cfg.ponly}")
                a(f"s_cbranch_scc1 {lab}_x")
            p = TS0 + 2 * self.cfg.probe
            a("s_waitcnt lgkmcnt(0)")
            a(f"s_sub_u32 s11, s{p}, s{TS0}")
            a(f"s_cmp_eq_u32 s{p}, 0")
            a("s_cselect_b32 s11, 0, s11")
            a("s_lshl_b32 s11, s11, 2")
            a("s_add_u32 s11, s11, 3000")
            a.label(lab)
            a("s_memrealtime s[12:13]")
            a("s_waitcnt lgkmcnt(0)")
            a(f"s_sub_u32 s12, s12, s{TS0}")
            a("s_cmp_lt_u32 s12, s11")
            a(f"s_cbranch_scc1 {lab}")
            a.label(lab + "_x")
            return
        if self.on == 3:
            a("s_waitcnt vmcnt(0) lgkmcnt(0)")
            lab = a.newlabel("L_nod")
            a(f"s_cmp_eq_u32 s{TS0+24}, 0")
            a(f"s_cbranch_scc1 {lab}")
            a(f"s_cmp_lg_u32 s{S_WAVE}, 0")
            a(f"s_cbranch_scc1 {lab}")
            a("s_mov_b64 exec, 1")
            a(f"v_mov_b32 v{vt2}, 0")
            a(f"s_not_b32 s11, s{TS0}")
            a(f"v_mov_b32 v{vt}, s11")
            a(f"global_atomic_umax v{vt2}, v{vt}, s[{P_DBG}:{P_DBG+1}] offset:4 sc1")
            for n, i in enumerate([0, 1, 2, 3, 4, 5, 6, 7, 8, 9, 10, 11, 12]):
                a("s_waitcnt vmcnt(0)")
                a(f"v_mov_b32 v{vt}, s{TS0+2*i}")
                a(f"global_atomic_umax v{vt2}, v{vt}, s[{P_DBG}:{P_DBG+1}] offset:{8+4*n} sc1")
            a("s_waitcnt vmcnt(0)")
            a.label(lab)
            return
        a("s_waitcnt vmcnt(0) lgkmcnt(0)")
        a(f"s_lshl_b32 s11, s2, 9")
        a(f"s_lshl_b32 s12, s{S_WAVE}, 6")
        a("s_add_u32 s11, s11, s12")
        a(f"s_add_u32 s11, s11, {WS_TS:#x}")
        a(f"v_mov_b32 v{vt2}, s11")
        for i in range(13):
            a(f"v_mov_b32 v{vt}, s{TS0+2*i}")
            a(f"buffer_store_dword v{vt}, v{vt2}, s[{SRD_WS}:{SRD_WS+3}], 0 offen offset:{4*i}")
        a("s_waitcnt vmcnt(0)")

def round_bf16(a, dst, src):
    a(f"v_cvt_pk_bf16_f32 v{dst}, v{src}, v{src}")
    a(f"v_lshlrev_b32 v{dst}, 16, v{dst}")

def exp_acc(a, dst, x, t0, t1):
    a(f"s_mov_b32 s36, {LOG2E:#x}")
    a(f"s_mov_b32 s37, {LOG2E_LO:#x}")
    a(f"v_mul_f32 v{t0}, s36, v{x}")
    a(f"v_fma_f32 v{t1}, v{x}, s36, -v{t0}")
    a(f"v_fma_f32 v{t1}, v{x}, s37, v{t1}")
    a(f"v_mul_f32 v{t1}, {LN2:#x}, v{t1}")
    a(f"v_exp_f32 v{dst}, v{t0}")
    a(f"v_fma_f32 v{dst}, v{dst}, v{t1}, v{dst}")

def csq(a, dr, di, sr, si, t):
    a(f"v_mul_f32 v{t}, v{si}, v{si}")
    a(f"v_add_f32 v{di}, v{si}, v{si}")
    a(f"v_mul_f32 v{di}, v{di}, v{sr}")
    a(f"v_fma_f32 v{dr}, v{sr}, v{sr}, -v{t}")

def cmul(a, dr, di, ar, ai, br, bi):
    a(f"v_mul_f32 v{dr}, v{ar}, v{br}")
    a(f"v_mul_f32 v{di}, v{ar}, v{bi}")
    a(f"v_fma_f32 v{dr}, -v{ai}, v{bi}, v{dr}")
    a(f"v_fma_f32 v{di}, v{ai}, v{br}, v{di}")

def ssm_const_load(a, vm, t):
    a(f"v_and_b32 v{t+3}, 15, v0")
    a(f"s_lshl_b32 s11, s{S_NS}, 4")
    a(f"v_add_lshl_u32 v{t+3}, v{t+3}, s11, 1")
    vm.issue('sc', f"global_load_ushort v{t}, v{t+3}, s[{P_LRE}:{P_LRE+1}]")
    vm.issue('sc', f"global_load_ushort v{t+1}, v{t+3}, s[{P_LIM}:{P_LIM+1}]")
    vm.issue('sc', f"global_load_ushort v{t+2}, v{t+3}, s[{P_LDT}:{P_LDT+1}]")

def ssm_const_calc(a, t, lr, li, cr=None, ci=None):
    for k in range(3): a(f"v_lshlrev_b32 v{t+k}, 16, v{t+k}")
    exp_acc(a, t + 3, t + 2, t + 4, t + 5)
    round_bf16(a, t + 2, t + 3)
    a(f"v_mul_f32 v{t+3}, v{t+2}, v{t}")
    a(f"v_mul_f32 v{t+6}, v{t+2}, v{t+1}")
    exp_acc(a, t + 7, t + 3, t + 4, t + 5)
    a(f"v_mul_f32 v{t+6}, {INV2PI:#x}, v{t+6}")
    a(f"v_rndne_f32 v{t+4}, v{t+6}")
    a(f"v_sub_f32 v{t+6}, v{t+6}, v{t+4}")
    a(f"v_cos_f32 v{t+4}, v{t+6}")
    a(f"v_sin_f32 v{t+5}, v{t+6}")
    a(f"v_mul_f32 v{lr}, v{t+7}, v{t+4}")
    a(f"v_mul_f32 v{li}, v{t+7}, v{t+5}")
    if cr is not None:
        a(f"v_add_f32 v{t+3}, -1.0, v{lr}")
        a(f"v_mul_f32 v{t+4}, v{t}, v{t}")
        a(f"v_fma_f32 v{t+4}, v{t+1}, v{t+1}, v{t+4}")
        a(f"v_rcp_f32 v{t+4}, v{t+4}")
        a(f"v_mul_f32 v{cr}, v{t+3}, v{t}")
        a(f"v_fma_f32 v{cr}, v{li}, v{t+1}, v{cr}")
        a(f"v_mul_f32 v{ci}, v{li}, v{t}")
        a(f"v_fma_f32 v{ci}, -v{t+3}, v{t+1}, v{ci}")
        a(f"v_add_f32 v{t+4}, v{t+4}, v{t+4}")
        a(f"v_mul_f32 v{cr}, v{cr}, v{t+4}")
        a(f"v_mul_f32 v{ci}, v{ci}, v{t+4}")

def gen_entry(a, cfg, ts):
    a("s_cmp_ge_u32 s2, 256")
    a("s_cbranch_scc1 L_exit")
    if cfg.padto: a("s_memrealtime s[100:101]")
    ts(0)
    a("s_load_dwordx16 s[16:31], s[0:1], 0")
    a("s_load_dwordx16 s[32:47], s[0:1], 64")
    a("v_lshrrev_b32 v1, 6, v0")
    a("v_and_b32 v0, 63, v0")
    a(f"v_readfirstlane_b32 s{S_WAVE}, v1")
    a(f"s_and_b32 s{S_XCD}, s2, 7")
    a(f"s_lshr_b32 s{S_SLOT}, s2, 3")
    if cfg.cpf == 2:
        a(f"s_cmp_lg_u32 s{S_WAVE}, 0")
        a("s_cbranch_scc1 L_nocpf")
        a("s_getpc_b64 s[12:13]")
        a.label("L_pc0")
        a(f"s_sub_u32 s12, s12, L_pc0-{KNAME}")
        a("s_subb_u32 s13, s13, 0")
        a(f"s_lshl_b32 s11, s{S_SLOT}, 10")
        a("v_lshl_add_u32 v38, v0, 4, s11")
        a(f"v_min_u32 v38, L_exit-{KNAME}, v38")
        a("global_load_dword v39, v38, s[12:13]")
        a.label("L_nocpf")
    a(f"s_and_b32 s11, s{S_SLOT}, 3")
    a(f"s_lshr_b32 s{S_NT}, s{S_SLOT}, 2")
    a(f"s_and_b32 s12, s{S_XCD}, 1")
    a(f"s_lshl_b32 s12, s12, 2")
    a(f"s_add_u32 s{S_MT}, s12, s11")
    a(f"s_lshr_b32 s12, s{S_XCD}, 1")
    a(f"s_mul_i32 s12, s12, 7")
    a(f"s_add_u32 s{S_NS}, s12, s{S_NT}")
    if cfg.slab:
        a(f"s_mov_b32 s{S_MT}, s{S_XCD}")
        a(f"s_mov_b32 s{S_NS}, s{S_SLOT}")
    if cfg.loc:
        a(f"s_and_b32 s12, s{S_XCD}, 1")
        a("s_lshl_b32 s12, s12, 2")
        a(f"s_lshr_b32 s13, s{S_XCD}, 1")
        a("s_add_u32 s12, s12, s13")
        a("s_lshl_b32 s12, s12, 2")
    else:
        a(f"s_lshl_b32 s12, s{S_XCD}, 2")
    a(f"s_add_u32 s{S_M64}, s12, s11")
    a(f"s_and_b32 s{S_W4}, s{S_WAVE}, 3")
    ts.init()
    a(f"s_cmp_ge_u32 s{S_SLOT}, 28")
    a("s_cbranch_scc1 L_helper")
    a(f"s_cmp_lt_u32 s{S_WAVE}, 4")
    a("s_cbranch_scc1 L_consumer")

def gen_helper(a, cfg, ts):
    a.label("L_helper")
    vm = VM(a)
    a(f"s_sub_u32 s73, s{S_SLOT}, 28")
    a(f"s_lshl_b32 s11, s73, 3")
    a(f"s_add_u32 s72, s11, s{S_XCD}")
    if cfg.loc: a(f"s_mov_b32 s72, s{S_M64}")
    a(f"s_cmp_ge_u32 s{S_WAVE}, 4")
    a("s_cbranch_scc1 L_h_pf")
    a(f"s_lshl_b32 s11, s72, 6")
    a(f"s_lshl_b32 s12, s{S_WAVE}, 4")
    a(f"s_add_u32 s11, s11, s12")
    a("v_lshrrev_b32 v2, 3, v0")
    a("v_add_u32 v2, s11, v2")
    a("v_mul_u32_u24 v3, 896, v2")
    a("v_and_b32 v4, 7, v0")
    a("v_lshl_add_u32 v3, v4, 4, v3")
    a("s_waitcnt lgkmcnt(0)")
    srd(a, SRD_X, P_X, 2048 * 896)
    srd(a, SRD_WS, P_WS, WS_SIZE)
    a(f"s_mov_b32 s11, {8*896}")
    for ps in range(2):
        for j in range(7):
            so = "0" if ps == 0 else "s11"
            vm.issue(('x', ps), f"buffer_load_dwordx4 v[{112+28*ps+4*j}:{115+28*ps+4*j}], v3, s[{SRD_X}:{SRD_X+3}], {so} offen offset:{128*j}")
    a(f"s_cmp_gt_u32 s{S_WAVE}, 1")
    a("s_cbranch_scc1 L_h_noreset")
    a(f"s_cmp_eq_u32 s{S_WAVE}, 0")
    a("s_cselect_b32 s11, -1, 0")
    a("s_mov_b32 s12, 1024")
    a("s_cmov_b32 s12, 896")
    a(f"s_mov_b32 s13, {WS_FLAG:#x}")
    a(f"s_cmov_b32 s13, {WS_AGG:#x}")
    a("s_mul_i32 s14, s12, s72")
    a("s_add_u32 s13, s13, s14")
    for k in range(4): a(f"v_mov_b32 v{8+k}, s11")
    a("v_lshlrev_b32 v12, 4, v0")
    a("v_cmp_gt_u32 vcc, s12, v12")
    a("s_and_saveexec_b64 s[14:15], vcc")
    a(f"buffer_store_dwordx4 v[8:11], v12, s[{SRD_WS}:{SRD_WS+3}], s13 offen sc1")
    a("s_mov_b64 exec, s[14:15]")
    a.label("L_h_noreset")
    a("s_nop 1")
    a("v_lshlrev_b32 v2, 3, v2")
    a("s_mov_b32 s12, 0xffff0000")
    def fin(dst):
        a("v_add_f32 v8, v8, v9")
        a("v_add_f32 v10, v10, v11")
        a(f"v_add_f32 v{dst}, v8, v10")
        a(f"v_add_f32_dpp v{dst}, v{dst}, v{dst} quad_perm:[1,0,3,2] row_mask:0xf bank_mask:0xf")
        a(f"v_add_f32_dpp v{dst}, v{dst}, v{dst} quad_perm:[2,3,0,1] row_mask:0xf bank_mask:0xf")
        a(f"v_add_f32_dpp v{dst}, v{dst}, v{dst} row_half_mirror row_mask:0xf bank_mask:0xf")
        a(f"v_mul_f32 v{dst}, 0x3b124925, v{dst}")
    for ps in range(2):
        vm.wait(('x', ps))
        if cfg.hdelay == 2 + ps: a("s_barrier")
        src = 112 + 28 * ps
        for k in range(28):
            a(f"v_lshlrev_b32 v{48+2*k}, 16, v{src+k}")
            a(f"v_and_b32 v{49+2*k}, s12, v{src+k}")
        a("v_pk_add_f32 v[8:9], v[48:49], v[52:53]")
        a("v_pk_add_f32 v[10:11], v[50:51], v[54:55]")
        for k in range(4, 28): a(f"v_pk_add_f32 v[{8+2*(k%2)}:{9+2*(k%2)}], v[{8+2*(k%2)}:{9+2*(k%2)}], v[{48+2*k}:{49+2*k}]")
        fin(12)
        for k in range(28): a(f"v_pk_add_f32 v[{48+2*k}:{49+2*k}], v[{48+2*k}:{49+2*k}], v[12:13] op_sel_hi:[1,0] neg_lo:[0,1] neg_hi:[0,1]")
        for k in range(2): a(f"v_pk_mul_f32 v[{8+2*k}:{9+2*k}], v[{48+2*k}:{49+2*k}], v[{48+2*k}:{49+2*k}]")
        for k in range(2, 28): a(f"v_pk_fma_f32 v[{8+2*(k%2)}:{9+2*(k%2)}], v[{48+2*k}:{49+2*k}], v[{48+2*k}:{49+2*k}], v[{8+2*(k%2)}:{9+2*(k%2)}]")
        fin(13)
        o = 14 + 2 * ps
        round_bf16(a, o, 12)
        round_bf16(a, 13, 13)
        a("v_add_f32 v13, 0x3727c5ac, v13")
        round_bf16(a, 13, 13)
        a("v_sqrt_f32 v13, v13")
        round_bf16(a, 13, 13)
        a(f"v_rcp_f32 v{o+1}, v13")
        a("v_cmp_eq_u32 vcc, 0, v4")
        a("s_and_saveexec_b64 s[14:15], vcc")
        a(f"s_mov_b32 s11, {WS_STATS:#x}")
        vm.issue('st', f"buffer_store_dwordx2 v[{o}:{o+1}], v2, s[{SRD_WS}:{SRD_WS+3}], s11 offen offset:{64*ps} sc1")
        a("s_mov_b64 exec, s[14:15]")
    a("s_waitcnt vmcnt(0)")
    a("v_mov_b32 v8, 0")
    a("v_mov_b32 v9, 1")
    a("s_mov_b64 exec, 1")
    a(f"global_atomic_add v8, v9, s[{P_DBG}:{P_DBG+1}] sc1")
    a("s_mov_b64 exec, -1")
    ts(1)
    ts.dump(8, 9)
    a("s_endpgm")
    a.label("L_h_pf")
    a("v_lshlrev_b32 v2, 4, v0")
    a(f"s_lshl_b32 s11, s{S_W4}, 10")
    a("v_add_u32 v2, s11, v2")
    if cfg.cpf == 1:
        a("s_getpc_b64 s[60:61]")
        a.label("L_pc")
        a(f"s_sub_u32 s60, s60, L_pc-{KNAME}")
        a("s_subb_u32 s61, s61, 0")
        a("s_lshl_b32 s11, s73, 12")
        a("v_add_u32 v3, s11, v2")
        for k in range(2):
            a(f"v_min_u32 v4, L_exit-{KNAME}-12, v3")
            a(f"global_load_dwordx4 v[24:27], v4, s[60:61]")
            a(f"v_add_u32 v3, 16384, v3")
    a("s_waitcnt lgkmcnt(0)")
    if cfg.hdelay == 1: a("s_waitcnt vmcnt(0)")
    if cfg.hdelay >= 2: a("s_barrier")
    srd(a, SRD_WS, P_WS, WS_SIZE)
    a("s_lshl_b32 s60, s72, 2")
    a(f"s_add_u32 s60, s60, s{S_W4}")
    a("s_cmp_ge_u32 s60, 98")
    a("s_cbranch_scc1 L_h_nopack1")
    a("s_mul_i32 s61, s60, 37")
    a("s_lshr_b32 s61, s61, 8")
    a("s_mul_i32 s62, s61, 7")
    a("s_sub_u32 s62, s60, s62")
    a("s_cmp_lt_i32 s62, 0")
    a("s_cselect_b32 s11, 1, 0")
    a("s_sub_u32 s61, s61, s11")
    a("s_mul_i32 s62, s61, 7")
    a("s_sub_u32 s62, s60, s62")
    a("s_bitcmp1_b32 s61, 0")
    srd_sel(a, 68, P_CIM, P_CRE, 448 * 896)
    a("v_lshrrev_b32 v3, 3, v0")
    a("v_and_b32 v4, 7, v0")
    a("v_lshrrev_b32 v5, 1, v3")
    a("v_xor_b32 v4, v4, v5")
    a("s_lshr_b32 s11, s61, 1")
    a("s_lshl_b32 s11, s11, 6")
    a("v_add_u32 v3, s11, v3")
    a("v_mul_u32_u24 v3, 896, v3")
    a("v_lshl_add_u32 v3, v4, 4, v3")
    a("v_xor_b32 v4, 64, v3")
    a(f"s_lshl_b32 s63, s{S_W4}, 13")
    a("s_lshl_b32 s12, s62, 7")
    for n in range(8):
        a(f"s_add_u32 m0, s63, {n*1024}")
        a(f"s_add_u32 s11, s12, {8*n*896}")
        a(f"buffer_load_dwordx4 v{3 + (n & 1)}, s[68:71], s11 offen lds")
    a.label("L_h_nopack1")
    def h_sweep():
        if cfg.hpf:
            for (ptr, nbytes, srdn) in ((P_WD, 1792 * 896, 56),):
                srd(a, srdn, ptr, nbytes)
            def sweep(name, srds, qbytes, first, count):
                n8 = -(-qbytes // (8 * 4096))
                n = 8 * n8
                a(f"s_mul_i32 s12, s73, {qbytes}")
                a(f"s_add_u32 s13, s{S_XCD}, {first}")
                a("s_and_b32 s13, s13, 7")
                a(f"s_mul_i32 s13, s13, {n8}")
                a("s_mov_b32 s14, 0")
                a.label(name)
                a("s_lshl_b32 s11, s13, 12")
                a("s_add_u32 s11, s11, s12")
                for k, sr in enumerate(srds):
                    a(f"buffer_load_dwordx4 v[{16+4*k}:{19+4*k}], v2, s[{sr}:{sr+3}], s11 offen")
                a("s_add_u32 s13, s13, 1")
                a(f"s_cmp_eq_u32 s13, {n}")
                a("s_cselect_b32 s13, 0, s13")
                a("s_add_u32 s14, s14, 1")
                a(f"s_cmp_lt_u32 s14, {n8 * count}")
                a(f"s_cbranch_scc1 {name}")
            sweep("L_h_p2", [56], 1792 * 896 // 4, 0, 1)
            ts(2)
    def h_pack():
        a("s_cmp_ge_u32 s60, 98")
        a("s_cbranch_scc1 L_h_nopack2")
        a("v_and_b32 v5, 31, v0")
        a("v_lshrrev_b32 v6, 5, v0")
        a("v_bfe_u32 v7, v0, 1, 3")
        a("v_xor_b32 v7, v7, v6")
        a("v_lshlrev_b32 v7, 4, v7")
        a("v_lshl_add_u32 v5, v5, 7, v7")
        a("v_add_u32 v5, s63, v5")
        a("v_lshlrev_b32 v6, 4, v0")
        a("s_mul_i32 s12, s61, 28")
        a("s_lshl_b32 s11, s62, 2")
        a("s_add_u32 s12, s12, s11")
        a("s_lshl_b32 s12, s12, 11")
        a(f"s_add_u32 s12, s12, {WS_CP:#x}")
        a(f"s_waitcnt vmcnt({13 if (cfg.hpf and not cfg.hord) else 0})")
        for ks in range(4):
            a(f"v_xor_b32 v7, {32*ks}, v5")
            for ct in range(2):
                d = 32 + 8 * ks + 4 * ct
                a(f"ds_read_b128 v[{d}:{d+3}], v7 offset:{4096*ct}")
        for ks in range(4):
            a(f"s_waitcnt lgkmcnt({6 - 2*ks})")
            a(f"s_add_u32 s11, s12, {2048*ks}")
            for ct in range(2):
                d = 32 + 8 * ks + 4 * ct
                a(f"buffer_store_dwordx4 v[{d}:{d+3}], v6, s[{SRD_WS}:{SRD_WS+3}], s11 offen offset:{1024*ct} sc1")
        a("s_waitcnt vmcnt(0)")
        a("v_mov_b32 v8, 0")
        a("v_mov_b32 v9, 1")
        a("s_mov_b64 exec, 1")
        a(f"global_atomic_add v8, v9, s[{P_DBG}:{P_DBG+1}] sc1")
        a("s_mov_b64 exec, -1")
        ts(3)
        a.label("L_h_nopack2")
    if cfg.hord: h_pack(); h_sweep()
    else: h_sweep(); h_pack()
    ts.dump(8, 9)
    a("s_endpgm")

def spin_check(a, name, load_text_list, cond_fn, sleep=1):
    lo, done = a.newlabel(name + "_spin"), a.newlabel(name + "_ok")
    a(f"s_mov_b32 s73, 0")
    a.label(lo)
    cond_fn()
    a(f"s_cbranch_scc1 {done}")
    a("s_add_u32 s73, s73, 1")
    a(f"s_cmp_ge_u32 s73, {SPIN_MAX}")
    a(f"s_cbranch_scc1 {done}")
    a(f"s_sleep {sleep}")
    for t in load_text_list: a(t)
    a("s_waitcnt vmcnt(0)")
    a(f"s_branch {lo}")
    a.label(done)
    a("s_nop 4")

def sspin(a, name, loads, cond_fn, sleep=1):
    lo, done = a.newlabel(name + "_spin"), a.newlabel(name + "_ok")
    a("s_mov_b32 s73, 0")
    a.label(lo)
    for t in loads: a(t)
    a("s_waitcnt lgkmcnt(0)")
    cond_fn()
    a(f"s_cbranch_scc1 {done}")
    a("s_add_u32 s73, s73, 1")
    a(f"s_cmp_lt_u32 s73, {SPIN_MAX}")
    if sleep: a(f"s_sleep {sleep}")
    a(f"s_cbranch_scc1 {lo}")
    a.label(done)

def flag_index(a, d, t, grp):
    a(f"s_mul_i32 s{t}, s{S_NS}, 37")
    a(f"s_lshr_b32 s{t}, s{t}, {8 if grp == 7 else 9}")
    a(f"s_mul_i32 s{t}, s{t}, {32 - grp}")
    a(f"s_add_u32 s{d}, s{t}, s{S_NS}")
    a(f"s_lshl_b32 s{d}, s{d}, 2")

def interleave(a, prim, fill, per):
    fill = list(fill)
    for p in prim:
        p()
        for _ in range(per):
            if fill: a(fill.pop(0))
    for f in fill: a(f)

def p2_rot(a, cfg, d_ffn, d_blk, d_flip):
    if not cfg.rot:
        for d in (d_ffn, d_blk, d_flip): a(f"s_mov_b32 s{d}, 0")
        return
    tab = {2: [0] * 7, 1: list(range(7)), 3: [0, 3, 0, 3, 0, 3, 0], 4: [0, 2, 5, 0, 2, 5, 0], 5: [0, 4, 2, 5, 0, 4, 2], 6: [0, 1, 0, 1, 0, 1, 0], 7: [0, 2, 0, 2, 0, 2, 0]}[cfg.rot]
    word = sum(v << (4 * k) for k, v in enumerate(tab))
    a(f"s_lshl_b32 s11, s{S_NT}, 2")
    a(f"s_lshr_b32 s13, {word:#x}, s11")
    a("s_and_b32 s13, s13, 15")
    a(f"s_and_b32 s11, s{S_SLOT}, 3")
    a("s_lshl_b32 s11, s11, 1")
    a("s_add_u32 s11, s11, s13")
    a("s_cmp_ge_u32 s11, 7")
    a("s_cselect_b32 s13, 7, 0")
    a(f"s_sub_u32 s{d_ffn}, s11, s13")
    for d in (d_blk, d_flip): a(f"s_mov_b32 s{d}, 0")

def slot(reg, n): return R[reg] + 2048 * n
SA = [slot(1, n) for n in range(6)]; SB = [slot(2, n) for n in range(6)]; SC = [slot(0, n) for n in range(6)]
WSLOT = {}
for n in range(6): WSLOT[n] = SA[n]; WSLOT[6 + n] = SB[n]
for n in range(4): WSLOT[12 + n] = SC[n]; WSLOT[16 + n] = SA[n]; WSLOT[20 + n] = SB[n]
WSLOT.update({24: SA[4], 25: SA[5], 26: SB[4], 27: SB[5]})
HTS = SC[4]
PH1, PH2, GA, FXA, SD = SC[0], SC[4], SB[0], SA[0], SC[0]

class Rec:
    def __init__(self): self.L = []
    def __call__(self, t): self.L.append(t)

def ssm_park(kc, K, KP, sQ):
    LR, LI, CR, CI, L16R, L16I, PWR, PWI, L64R, L64I, LWR, LWI, W0R = [KP + k for k in range(13)]
    vTW, vTR, vCB = KP + 16, KP + 17, KP + 18
    ssm_const_calc(kc, K, LR, LI, CR, CI)
    csq(kc, L16R, L16I, LR, LI, K)
    for _ in range(3): csq(kc, L16R, L16I, L16R, L16I, K)
    def powsel(dr, di, br, bi, bit, src):
        cmul(kc, K + 1, K + 2, dr, di, br, bi)
        kc(f"v_and_b32 v{K}, {bit}, v{src}")
        kc(f"v_cmp_ne_u32 vcc, 0, v{K}")
        kc(f"v_cndmask_b32 v{dr}, v{dr}, v{K+1}, vcc")
        kc(f"v_cndmask_b32 v{di}, v{di}, v{K+2}, vcc")
    kc(f"v_mov_b32 v{PWR}, v{CR}"); kc(f"v_mov_b32 v{PWI}, v{CI}")
    powsel(PWR, PWI, L16R, L16I, 32, 0)
    csq(kc, K + 14, K + 15, L16R, L16I, K)
    powsel(PWR, PWI, K + 14, K + 15, 16, 0)
    csq(kc, L64R, L64I, K + 14, K + 15, K)
    kc(f"v_mov_b32 v{K+10}, s{S_W4}")
    kc(f"v_mov_b32 v{LWR}, 1.0"); kc(f"v_mov_b32 v{LWI}, 0")
    powsel(LWR, LWI, L64R, L64I, 1, K + 10)
    csq(kc, K + 14, K + 15, L64R, L64I, K)
    powsel(LWR, LWI, K + 14, K + 15, 2, K + 10)
    csq(kc, K + 14, K + 15, K + 14, K + 15, K)
    kc(f"v_lshrrev_b32 v{K+10}, 4, v0")
    kc(f"v_sub_u32 v{K+10}, s{S_MT}, v{K+10}")
    kc(f"v_add_u32 v{K+11}, -5, v{K+10}")
    kc(f"v_add_u32 v{K+10}, -1, v{K+10}")
    kc(f"v_mov_b32 v{W0R}, 1.0"); kc(f"v_mov_b32 v{W0R+1}, 0")
    kc(f"v_mov_b32 v{W0R+2}, 1.0"); kc(f"v_mov_b32 v{W0R+3}, 0")
    for b in range(3):
        powsel(W0R, W0R + 1, K + 14, K + 15, 1 << b, K + 10)
        if b < 2: powsel(W0R + 2, W0R + 3, K + 14, K + 15, 1 << b, K + 11)
        if b < 2: csq(kc, K + 14, K + 15, K + 14, K + 15, K)
    kc(f"s_add_u32 s36, s{sQ}, {HTS}")
    kc(f"v_bfe_u32 v{K}, v0, 4, 1")
    kc(f"v_lshrrev_b32 v{K+1}, 5, v0")
    kc(f"v_lshl_add_u32 v{K+2}, v{K}, 1, v{K+1}")
    kc(f"v_and_b32 v{K+3}, 15, v0")
    kc(f"v_and_b32 v{vTW}, 6, v{K+3}")
    kc(f"v_lshlrev_b32 v{vTW}, 4, v{vTW}")
    kc(f"v_lshlrev_b32 v{K+4}, 5, v{K+2}")
    kc(f"v_xor_b32 v{vTW}, v{vTW}, v{K+4}")
    kc(f"v_lshl_add_u32 v{vTW}, v{K+3}, 7, v{vTW}")
    kc(f"v_add_u32 v{vTW}, s36, v{vTW}")
    kc(f"v_lshlrev_b32 v{vCB}, 2, v{K+3}")
    kc(f"v_add_u32 v{vCB}, {C_L + 512}, v{vCB}")
    kc(f"v_bfe_u32 v{K+4}, v0, 2, 2")
    kc(f"v_lshl_add_u32 v{K+5}, v{K+1}, 3, v{K+4}")
    kc(f"v_lshlrev_b32 v{vTR}, 7, v{K+5}")
    kc(f"v_lshrrev_b32 v{K+4}, 1, v{K+4}")
    kc(f"v_xor_b32 v{K+4}, v{K+4}, v0")
    kc(f"v_and_b32 v{K+4}, 1, v{K+4}")
    kc(f"v_lshl_add_u32 v{vTR}, v{K+4}, 5, v{vTR}")
    kc(f"v_lshl_add_u32 v{vTR}, v{K}, 4, v{vTR}")
    kc(f"v_bfe_u32 v{K+4}, v0, 1, 1")
    kc(f"v_lshl_add_u32 v{vTR}, v{K+4}, 3, v{vTR}")
    kc(f"v_add_u32 v{vTR}, s36, v{vTR}")
    kc(f"s_lshl_b32 s36, s{S_W4}, 9")
    kc(f"s_add_u32 s36, s36, {STATS_L}")
    kc(f"v_lshl_add_u32 v{KP+19}, v{K+2}, 7, s36")
    vStS = KP + 19
    vAg, vPr, vF = KP + 20, KP + 21, KP + 22
    kc(f"v_lshlrev_b32 v{vAg}, 3, v{K+3}")
    kc(f"v_lshrrev_b32 v{vPr}, 4, v0")
    kc(f"v_mul_u32_u24 v{vPr}, 3584, v{vPr}")
    kc(f"s_lshl_b32 s36, s{S_NS}, 7")
    kc(f"v_add3_u32 v{vPr}, v{vPr}, v{vAg}, s36")
    kc(f"v_add_u32 v{vAg}, {AGG_L}, v{vAg}")
    kc(f"s_lshl_b32 s36, s{S_MT}, 2")
    kc(f"s_add_u32 s36, s36, s{S_W4}")
    kc("s_lshl_b32 s36, s36, 10")
    flag_index(kc, 37, 38, 14)
    kc("s_add_u32 s36, s36, s37")
    kc(f"s_add_u32 s36, s36, {WS_FLAG + 512:#x}")
    kc(f"v_mov_b32 v{vF}, s36")

def gen_loader(a, cfg, ts):
    a.label("L_loader")
    a("s_setprio 3")
    vm = VM(a)
    vXe, vXo, vW, vB = 1, 2, 3, 4
    vFv, vP, vO, vPQ = 5, 6, 7, 8
    vWd, vCe, vCo, vCh = 9, 10, 11, 12
    vRf, vRh = 13, 14
    vA, vC = 24, 25
    vT = 15
    ACC, CA, RD = 27, 28, 44
    STG = 64
    CF = 144
    SACC = 80
    XRAW = CF + 64
    KP = XRAW + 8
    sGrp = [28, 29, 30, 31, 36, 37, 21]
    SP = ['', ' sc1'][cfg.spol]
    sMX, sMW, sMB, sMP = 72, 74, 75, 70
    sPerm, sSX, sSW = 68, 69, 15
    sRF = 14
    AP = ['', ' sc1', ' sc1 nt', ' sc0 sc1', ' sc0', ' nt'][cfg.apol]
    OP = ['', ' sc1', ' nt', ' sc1 nt'][cfg.opol]
    polx = " nt" if cfg.polx else ""
    polw = " nt" if cfg.polw else ""
    a(f"v_lshrrev_b32 v{vA}, 3, v0")
    a(f"v_and_b32 v{vC}, 7, v0")
    a(f"v_lshrrev_b32 v{vT+2}, 1, v{vA}")
    a(f"s_lshl_b32 s11, s{S_W4}, 4")
    a(f"v_add_u32 v{vT}, s11, v{vA}")
    a(f"v_mul_u32_u24 v{vW}, 3584, v{vT}")
    a(f"v_and_b32 v{vT+4}, 1, v{vT+2}")
    a(f"v_lshlrev_b32 v{vT+4}, 2, v{vT+4}")
    a(f"v_xor_b32 v{vT+4}, v{vC}, v{vT+4}")
    a(f"v_lshl_add_u32 v{vW}, v{vT+4}, 4, v{vW}")
    a(f"s_lshl_b32 s11, s{S_NS}, 7")
    a(f"v_add_u32 v{vW}, s11, v{vW}")
    a(f"s_lshl_b32 s11, s{S_MT}, 8")
    a(f"s_lshl_b32 s12, s{S_W4}, 6")
    a("s_add_u32 s11, s11, s12")
    a(f"v_lshrrev_b32 v{vT}, 2, v{vA}")
    a(f"v_and_b32 v{vT+1}, 3, v{vA}")
    a(f"v_lshl_add_u32 v{vT}, v{vT}, 4, v{vT+1}")
    a(f"v_add_u32 v{vT}, s11, v{vT}")
    a(f"v_mul_u32_u24 v{vXe}, 896, v{vT}")
    a(f"v_xor_b32 v{vT+3}, v{vC}, v{vT+2}")
    a(f"v_lshl_add_u32 v{vXe}, v{vT+3}, 4, v{vXe}")
    a(f"v_xor_b32 v{vXo}, 64, v{vXe}")
    a(f"s_and_b32 s12, s{S_W4}, 1")
    a(f"s_lshl_b32 s11, s{S_NS}, 4")
    a(f"s_lshl_b32 s13, s12, 3")
    a("s_add_u32 s11, s11, s13")
    a(f"v_add_u32 v{vT}, s11, v{vA}")
    a(f"v_mul_u32_u24 v{vB}, 896, v{vT}")
    a(f"v_lshl_add_u32 v{vB}, v{vT+3}, 4, v{vB}")
    a("s_lshl_b32 s13, s12, 6")
    a(f"v_xor_b32 v{vB}, s13, v{vB}")
    a(f"s_lshl_b32 s{sMX}, s{S_W4}, 13")
    a(f"s_lshl_b32 s{sMW}, s{S_W4}, 11")
    a(f"s_lshl_b32 s{sMB}, s{S_W4}, 10")
    a(f"s_mul_i32 s{sMP}, s{S_W4}, {Q}")
    perms = cfg.perms
    words = [sum(p[k] << (4 * k) for k in range(7)) for p in perms]
    ng = len(words)
    a(f"s_mov_b32 s{sPerm}, {words[0]:#x}")
    if ng > 1:
        if cfg.slab:
            a(f"s_add_u32 s11, s{S_SLOT}, s{S_XCD}")
        else:
            a(f"s_and_b32 s11, s{S_SLOT}, 3")
            a(f"s_add_u32 s11, s11, s{S_NT}")
        if ng == 3:
            a("s_mul_i32 s13, s11, 43")
            a("s_lshr_b32 s13, s13, 7")
            a("s_mul_i32 s13, s13, 3")
            a("s_sub_u32 s11, s11, s13")
        else:
            a(f"s_and_b32 s11, s11, {ng-1}")
        for g in range(1, ng):
            a(f"s_cmp_eq_u32 s11, {g}")
            a(f"s_cmov_b32 s{sPerm}, {words[g]:#x}")
    ts.x(1, 1)
    a("s_waitcnt lgkmcnt(0)")
    ts.x(1, 2)
    if cfg.tlb:
        a(f"v_mov_b32 v40, s{P_X}")
        a(f"v_mov_b32 v41, s{P_X+1}")
        for ln, p in enumerate([P_WG, P_WU, P_BRE, P_BIM, P_WD, P_CRE, P_CIM, P_WS][:cfg.tlb], 1):
            a(f"v_writelane_b32 v40, s{p}, {ln}")
            a(f"v_writelane_b32 v41, s{p+1}, {ln}")
        a(f"s_mov_b64 exec, {(1 << (cfg.tlb + 1)) - 1:#x}")
        a("global_load_dword v62, v[40:41], off")
        a("s_mov_b64 exec, -1")
    srd(a, SRD_A, P_WG, 448 * 3584)
    srd(a, SRD_X, P_X, 2048 * 896)
    srd(a, SRD_B, P_WU, 448 * 3584)
    a(f"s_cmp_ge_u32 s{S_W4}, 2")
    srd_sel(a, SRD_C, P_BIM, P_BRE, 448 * 896)

    thr = [None]
    def dma(vm, tag, voff, srdn, sbase, soff, m0base, m0off, pol=""):
        a(f"s_add_u32 m0, s{m0base}, {m0off}")
        a(f"s_add_u32 s11, s{sbase}, {soff}")
        if thr[0] is not None and len(vm.q) > thr[0]:
            a(f"s_waitcnt vmcnt({thr[0]})")
            vm.q = vm.q[-thr[0]:]
        vm.issue(tag, f"buffer_load_dwordx4 v{voff}, s[{srdn}:{srdn+3}], s11 offen{pol} lds")
    def issue_ops(s):
        r = R[s % 3]
        ops = []
        def pre():
            a(f"s_bfe_u32 s{sSX}, s{sPerm}, {(4 << 16) | (4 * s):#x}")
            a(f"s_mul_i32 s{sSW}, s{sSX}, {64*3584}")
            a(f"s_lshl_b32 s{sSX}, s{sSX}, 7")
        def mk(*args): return lambda: dma(vm, ('st', s), *args)
        L = []
        for i in range(2): L.append(mk(vW, SRD_A, sSW, i * 8 * 3584, sMW, r + OFF_WG + i * 1024, polw))
        for j in range(4): L.append(mk(vXo if j & 1 else vXe, SRD_X, sSX, (32 * (j >> 2) + 4 * (j & 3)) * 896, sMX, r + j * 1024, polx))
        for i in range(2): L.append(mk(vW, SRD_B, sSW, i * 8 * 3584, sMW, r + OFF_WU + i * 1024, polw))
        for j in range(4, 8): L.append(mk(vXo if j & 1 else vXe, SRD_X, sSX, (32 * (j >> 2) + 4 * (j & 3)) * 896, sMX, r + j * 1024, polx))
        L.append(mk(vB, SRD_C, sSX, 0, sMB, r + OFF_BB, polw))
        first = L[0]
        L[0] = lambda: (pre(), first())
        return L
    SRD_WD, SRD_CC, sBlk, sFlip, P_DSK2 = 32, 24, 16, 17, 38
    def w_ops(ps):
        L = []
        for p in ps:
            for n in range(2):
                def op(p=p, n=n):
                    if 12 <= p < 22:
                        d = STG + (p - 12) * 8 + 4 * n
                        a(f"s_add_u32 s11, s{sGrp[p//4]}, {((p % 4) * 16 + 8 * n) * 896}")
                        vm.issue(('w', p), f"buffer_load_dwordx4 v[{d}:{d+3}], v{vWd}, s[{SRD_WD}:{SRD_WD+3}], s11 offen")
                    else:
                        dma(vm, ('w', p), vWd, SRD_WD, sGrp[p//4], ((p % 4) * 16 + 8 * n) * 896, sMP, WSLOT[p] + n * 1024)
                L.append(op)
        return L
    sCF, sCH = 16, 17
    def cfrag(p, lc): return CF + 8 * p + 4 * lc
    def c_ops(b):
        L = []
        for p in (range(4 * b, 4 * b + 4) if b < 3 else (12, 13)):
            for lc in range(2):
                def op(p=p, lc=lc):
                    d = cfrag(p, lc)
                    sb, so = (sCF, 2048 * p) if p < 12 else (sCH, 2048 * (p - 12))
                    a(f"s_add_u32 s11, s{sb}, {so}")
                    vm.issue(('c', b), f"buffer_load_dwordx4 v[{d}:{d+3}], v{(vCe, vCo)[lc]}, s[{SRD_WS}:{SRD_WS+3}], s11 offen sc1")
                L.append(op)
        return L
    def w_write(ps):
        vm.wait(('w', ps[-1]))
        base = WSLOT[ps[0]]
        a(f"v_add_u32 v{vT+4}, {base}, v{vPQ}")
        for p in ps:
            for n in range(2):
                d = STG + (p - 12) * 8 + 4 * n
                a(f"ds_write_b128 v{vT+4}, v[{d}:{d+3}] offset:{WSLOT[p] - base + 1024*n}")
    def colsum_reads(s):
        r = R[s % 3]
        a(f"s_add_u32 s11, s{sMW}, {r + OFF_WG}")
        a(f"v_add_u32 v{vT}, s11, v{vP}")
        a(f"s_add_u32 s11, s{sMB}, {r + OFF_BB}")
        a(f"v_add_u32 v{vT+1}, s11, v{vP}")
        a(f"ds_read_b128 v[{RD}:{RD+3}], v{vT}")
        a(f"ds_read_b128 v[{RD+4}:{RD+7}], v{vT} offset:1024")
        a(f"ds_read_b128 v[{RD+8}:{RD+11}], v{vT} offset:8192")
        a(f"ds_read_b128 v[{RD+12}:{RD+15}], v{vT} offset:9216")
        a(f"ds_read_b128 v[{RD+16}:{RD+19}], v{vT+1}")
    def colsum_ops():
        L = ["s_waitcnt lgkmcnt(0)"]
        for n in range(4):
            for d in range(4):
                w = RD + 4 * n + d
                ac = CA + (n >> 1) * 8 + 2 * d
                L.append(f"v_lshlrev_b32 v{vT+2}, 16, v{w}")
                L.append(f"v_and_b32 v{vT+3}, s71, v{w}")
                L.append(f"v_add_f32 v{ac}, v{ac}, v{vT+2}")
                L.append(f"v_add_f32 v{ac+1}, v{ac+1}, v{vT+3}")
        for d in range(4):
            w = RD + 16 + d
            L.append(f"v_lshlrev_b32 v{vT+2}, 16, v{w}")
            L.append(f"v_and_b32 v{vT+3}, s71, v{w}")
            L.append(f"v_add_f32 v{vT+2}, v{vT+2}, v{vT+3}")
            L.append(f"v_add_f32 v{ACC}, v{ACC}, v{vT+2}")
        return L

    stage_ops = {}
    cdone = set()
    def tok_ops(toks):
        L = []
        for t in toks:
            if t[0] == 's':
                st = int(t[1])
                if st not in stage_ops: stage_ops[st] = issue_ops(st)
                lo, hi = (0, 13) if ':' not in t else map(int, t.split(':')[1].split('-'))
                L += stage_ops[st][lo:hi]
            elif t[0] == 'w': L += w_ops([int(t[1:])])
            elif t[0] == 'c':
                lo, hi = (0, 8) if ':' not in t else map(int, t.split(':')[1].split('-'))
                L += c_ops(int(t[1]))[lo:hi]
                cdone.add(int(t[1]))
            else: L.append(lambda t=t: special(t))
        return L
    def run_tokens(toks):
        for o in tok_ops(toks): o()
    def special(t):
        if True:
            if t == 'put':
                vm.wait('stats')
                a(f"s_lshl_b32 s11, s{S_W4}, 9")
                a(f"s_add_u32 s11, s11, {STATS_L}")
                a(f"v_lshl_add_u32 v{vT+4}, v0, 3, s11")
                a(f"ds_write_b64 v{vT+4}, v[20:21]")
                a(f"v_lshlrev_b32 v{vT+4}, 3, v0")
                a(f"v_add_u32 v{vT+4}, {ST2_L}, v{vT+4}")
                a(f"ds_write_b64 v{vT+4}, v[22:23]")
            elif t == 'e':
                a(f"s_add_u32 s12, s41, {16*896}")
                vm.issue('e', f"buffer_load_dwordx4 v[{XRAW}:{XRAW+3}], v20, s[{SRD_X}:{SRD_X+3}], s41 offen")
                vm.issue('e', f"buffer_load_dwordx4 v[{XRAW+4}:{XRAW+7}], v20, s[{SRD_X}:{SRD_X+3}], s12 offen")
                vm.issue('e', f"global_load_ushort v{KP+23}, v21, s[{P_DSK2}:{P_DSK2+1}]")
            elif t == 'k':
                a("s_waitcnt lgkmcnt(0)")
            elif t == 'init':
                a(f"v_mov_b32 v26, 0")
                vm.issue('init', f"global_load_dword v5, v26, s[{P_DBG}:{P_DBG+1}] sc1")
            elif t == 'fetch':
                vm.wait('init')
                def cond():
                    a(f"v_readfirstlane_b32 s11, v5")
                    a(f"s_cmp_ge_u32 s11, {INIT_N}")
                spin_check(a, "L_init", [f"global_load_dword v5, v26, s[{P_DBG}:{P_DBG+1}] sc1"], cond, 8)
                a(f"s_lshl_b32 s11, s{S_MT}, 8")
                a(f"s_lshl_b32 s12, s{S_W4}, 6")
                a("s_add_u32 s11, s11, s12")
                a(f"v_add_lshl_u32 v5, v0, s11, 3")
                a(f"s_lshl_b32 s12, s{S_M64}, 6")
                a(f"v_add_lshl_u32 v26, v0, s12, 3")
                a(f"s_mov_b32 s11, {WS_STATS:#x}")
                vm.issue('stats', f"buffer_load_dwordx2 v[20:21], v5, s[{SRD_WS}:{SRD_WS+3}], s11 offen sc1")
                vm.issue('stats', f"buffer_load_dwordx2 v[22:23], v26, s[{SRD_WS}:{SRD_WS+3}], s11 offen sc1")
            else: raise ValueError(t)
    win = cfg.win
    run_tokens(["s0"])
    ts(1)
    ts.x(1, 6)
    run_tokens(win.get(-1, []))
    a("s_setprio 0")
    a(f"s_and_b32 s12, s{S_W4}, 1")
    a(f"v_lshlrev_b32 v{vP}, 4, v0")
    a(f"v_add_u32 v{vPQ}, s{sMP}, v{vP}")
    a(f"s_mul_i32 s14, s{S_W4}, 448")
    a(f"v_add_u32 v{vT}, s14, v{vA}")
    a(f"v_mul_u32_u24 v{vWd}, 896, v{vT}")
    a(f"v_lshl_add_u32 v{vWd}, v{vT+4}, 4, v{vWd}")
    a(f"s_lshl_b32 s14, s{S_NT}, 7")
    a(f"v_add_u32 v{vWd}, s14, v{vWd}")
    a(f"v_and_b32 v{vT+1}, 3, v0")
    a("s_mov_b32 s71, 0xffff0000")
    for k in range(17): a(f"v_mov_b32 v{ACC+k}, 0")
    srd(a, SRD_WS, P_WS, WS_SIZE)
    a(f"s_mov_b64 s[{P_DSK2}:{P_DSK2+1}], s[{P_DSK}:{P_DSK+1}]")
    srd(a, SRD_WD, P_WD, 1792 * 896)
    p2_rot(a, cfg, sRF, sBlk, sFlip)
    a(f"s_lshl_b32 s11, s{S_M64}, 1")
    a("s_add_u32 s40, s11, s12")
    a("s_lshl_b32 s12, s40, 5")
    a(f"v_lshrrev_b32 v{vT}, 2, v0")
    a(f"v_add_u32 v{vT}, s12, v{vT}")
    a(f"v_mul_u32_u24 v{vT}, 896, v{vT}")
    a(f"v_lshl_add_u32 v20, v{vT+1}, 4, v{vT}")
    a(f"v_lshrrev_b32 v{vT+2}, 5, v0")
    a(f"v_lshl_add_u32 v{vT}, v{vT+2}, 4, s12")
    a(f"s_lshr_b32 s13, s{S_W4}, 1")
    a("s_lshl_b32 s12, s13, 5")
    a(f"s_lshl_b32 s11, s{S_NT}, 6")
    a("s_add_u32 s11, s11, s12")
    a("s_lshl_b32 s41, s11, 1")
    a(f"v_and_b32 v{vT+3}, 31, v0")
    a(f"v_add_u32 v{vT+1}, s11, v{vT+3}")
    a(f"v_mul_u32_u24 v{vT}, 448, v{vT}")
    a(f"v_add_lshl_u32 v{vO}, v{vT}, v{vT+1}, 2")
    a(f"v_lshlrev_b32 v21, 1, v{vT+1}")
    a("s_lshl_b32 s12, s13, 10")
    a(f"v_add_u32 v{vCe}, s12, v{vP}")
    a(f"v_xor_b32 v{vCo}, 1024, v{vCe}")
    a(f"s_lshl_b32 s11, s{S_NT}, 1")
    a("s_add_u32 s11, s11, s13")
    a(f"s_mul_i32 s11, s11, {28*2048}")
    a(f"s_add_u32 s11, s11, {WS_CP:#x}")
    a(f"s_and_b32 s12, s{S_W4}, 1")
    a(f"s_lshl_b32 s{sCF}, s12, 15")
    a(f"s_add_u32 s{sCF}, s{sCF}, s11")
    a(f"s_lshl_b32 s{sCH}, s12, 12")
    a(f"s_add_u32 s{sCH}, s{sCH}, s11")
    a(f"s_add_u32 s{sCH}, s{sCH}, {12*2048}")
    a(f"v_bfe_u32 v{vT}, v0, 4, 1")
    a(f"v_lshlrev_b32 v{vT+1}, 2, v{vT}")
    a(f"v_xor_b32 v{vC}, v{vC}, v{vT+1}")
    a(f"v_lshlrev_b32 v{vC}, 5, v{vC}")
    a(f"v_lshl_add_u32 v{vC}, v{vT}, 9, v{vC}")
    a(f"v_lshl_add_u32 v{vC}, v{vT+2}, 8, v{vC}")
    a(f"s_add_u32 s11, s{sMB}, {CP_L}")
    a(f"v_add_u32 v{vC}, s11, v{vC}")
    a(f"s_lshl_b32 s11, s{S_W4}, 5")
    a(f"s_add_u32 s11, s11, {C_L + 512}")
    a(f"v_lshl_add_u32 v{vA}, v{vA}, 2, s11")
    ts.x(1, 8)
    LR, LI, CR, CI, L16R, L16I, PWR, PWI, L64R, L64I, LWR, LWI, W0R = [KP + k for k in range(13)]
    vTW, vTR, vCB, vStS, vAg, vPr, vF = [KP + k for k in range(16, 23)]
    a(f"s_lshl_b32 s21, s{S_NS}, 7")
    a(f"s_mul_i32 s22, s{S_MT}, 3584")
    a("s_add_u32 s22, s22, s21")
    a(f"s_add_u32 s22, s22, {WS_AGG - AGG_L:#x}")
    a(f"s_mov_b32 s23, {WS_AGG:#x}")
    a(f"s_mov_b32 s20, {WS_AGG + 4*3584:#x}")
    a(f"s_lshl_b32 s18, s{S_M64}, 10")
    a(f"s_and_b32 s11, s{S_W4}, 1")
    a("s_lshl_b32 s11, s11, 7")
    a("s_add_u32 s18, s18, s11")
    a(f"s_add_u32 s18, s18, {WS_FLAG + 512:#x}")
    a(f"s_lshl_b32 s11, s{S_MT}, 2")
    a(f"s_add_u32 s11, s11, s{S_W4}")
    a(f"s_mul_i32 s19, s11, {2*RT_BYTES}")
    a(f"s_lshl_b32 s11, s{S_NS}, 10")
    a("s_add_u32 s19, s19, s11")
    a(f"s_add_u32 s19, s19, {56*1024}")
    for g in range(7):
        a(f"s_add_u32 s12, s{sRF}, {g}")
        a("s_cmp_ge_u32 s12, 7")
        a("s_cselect_b32 s13, 7, 0")
        a("s_sub_u32 s12, s12, s13")
        a(f"s_mul_i32 s{sGrp[g]}, s12, {64*896}")
    a(f"s_add_u32 s11, s{sMX}, {R[2]}")
    a(f"v_add_u32 v{vT+4}, s11, v{vP}")
    kparts = {}
    if cfg.wprio: a(f"s_setprio {cfg.wprio}")
    for s in range(7):
        vm.wait(('st', s))
        ts.x(2, 1 + s)
        a("s_barrier")
        ts.x(3, 1 + s)
        if s == 0: ts(2)
        if s == 0:
            for k in range(6): a(f"ds_read_b128 v[{KP+4*k}:{KP+4*k+3}], v{vT+4} offset:{1024*k}")
        if s == 6:
            QQ = 28
            for p in range(8): a(f"ds_read_b32 v{QQ+p}, v{vT+1} offset:{512*p}")
            a("s_waitcnt lgkmcnt(0)")
            for p in range(4): a(f"v_add_f32 v{QQ+p}, v{QQ+p}, v{QQ+4+p}")
            a(f"v_add_f32 v{QQ}, v{QQ}, v{QQ+2}")
            a(f"v_add_f32 v{QQ+1}, v{QQ+1}, v{QQ+3}")
            a(f"v_add_f32 v{QQ}, v{QQ}, v{QQ+1}")
            a(f"ds_write_b32 v{vT}, v{QQ}")
            pre = tok_ops(win[6][:2])
            for o in pre: o()
            a("s_waitcnt lgkmcnt(0)")
            a("s_barrier")
            a("s_setprio 0")
            run_tokens(win[6][2:])
            continue
        segs = [[None, []]]
        for t in win.get(s, []):
            if t.startswith("cs"): segs.append([int(t[2:]), []])
            else: segs[-1][1].append(t)
        for cs, toks in segs:
            fl = []
            if cs is not None:
                vm.wait(('st', cs))
                colsum_reads(cs)
                fl = colsum_ops()
            if cs == 6:
                b = ACC
                for k in range(8): fl.append(f"v_permlane32_swap_b32 v{CA+k}, v{CA+8+k}")
                fl.append(f"v_add_f32_dpp v{b}, v{b}, v{b} quad_perm:[1,0,3,2] row_mask:0xf bank_mask:0xf")
                for k in range(8): fl.append(f"v_add_f32 v{CA+k}, v{CA+k}, v{CA+8+k}")
                fl.append(f"v_add_f32_dpp v{b}, v{b}, v{b} quad_perm:[2,3,0,1] row_mask:0xf bank_mask:0xf")
                for k in range(8): fl.append(f"v_add_f32_dpp v{CA+k}, v{CA+k}, v{CA+k} row_ror:8 row_mask:0xf bank_mask:0xf")
                fl.append(f"v_add_f32_dpp v{b}, v{b}, v{b} row_half_mirror row_mask:0xf bank_mask:0xf")
                fl.append(f"ds_write_b128 v{vC}, v[{CA}:{CA+3}]")
                fl.append(f"ds_write_b128 v{vC}, v[{CA+4}:{CA+7}] offset:16")
                fl.append(f"ds_write_b32 v{vA}, v{b}")
            ops = tok_ops(toks)
            per = max(1, -(-len(fl) // max(1, len(ops))))
            interleave(a, ops, fl, per)
        if s == 5:
            a(f"s_and_b32 s12, s{S_W4}, 1")
            a("s_lshl_b32 s12, s12, 8")
            a(f"v_lshl_add_u32 v{vT}, v0, 2, s12")
            a(f"v_add_u32 v{vT+1}, {CP_L}, v{vT}")
            a(f"v_add_u32 v{vT}, {C_L}, v{vT}")
            a("s_waitcnt lgkmcnt(0)")
            a("s_setprio 3")
    ts.x(2, 8)
    a("s_barrier")
    ts(3)
    ts.x(3, 8)
    a(f"v_add_u32 v{vT+2}, {SD}, v{vPQ}")
    vm.wait(('w', 11), "lgkmcnt(0)")
    a("s_barrier")
    X, Y, ST = 32, 48, CF
    HR, HI, T1, T2, CBR, CBI, G0, G1, QR, QI = 20, 21, 22, 23, 24, 25, 26, 28, 30, 31
    for k in range(8): a(f"ds_read_b128 v[{X+4*k}:{X+4*k+3}], v{vT+2} offset:{1024*k}")
    a(f"ds_read_b32 v{CBR}, v{vCB}")
    a(f"ds_read_b32 v{CBI}, v{vCB} offset:64")
    for k in range(8): a(f"ds_read_b128 v[{ST+4*k}:{ST+4*k+3}], v{vStS} offset:{16*k}")
    a(f"s_setprio {cfg.eprio}")
    a(f"v_lshrrev_b32 v1, 4, v0")
    a(f"v_sub_u32 v1, s{S_MT}, v1")
    a(f"v_cmp_le_i32 s[56:57], 1, v1")
    a(f"v_cmp_le_i32 s[58:59], 5, v1")
    a(f"v_lshlrev_b32 v5, 16, v{KP+23}")
    a(f"v_mov_b32 v3, v{vF}")
    vF = 3
    a("s_waitcnt lgkmcnt(10)")
    for r in range(16): a(f"v_permlane16_swap_b32 v{X+r}, v{Y+r}")
    a("s_waitcnt lgkmcnt(0)")
    side = {}
    for r in range(16):
        if r in side: side[r]()
        m, rs = ST + 2 * r, ST + 2 * r + 1
        a(f"v_fma_f32 v{X+r}, -v{m}, v{CBR}, v{X+r}")
        a(f"v_fma_f32 v{Y+r}, -v{m}, v{CBI}, v{Y+r}")
        a(f"v_mul_f32 v{X+r}, v{X+r}, v{rs}")
        a(f"v_mul_f32 v{Y+r}, v{Y+r}, v{rs}")
        if r >= 1:
            pr, pi = (X, Y) if r == 1 else (HR, HI)
            a(f"v_fma_f32 v{T1}, -v{LI}, v{pi}, v{X+r}")
            a(f"v_fma_f32 v{T2}, v{LI}, v{pr}, v{Y+r}")
            a(f"v_fma_f32 v{HR}, v{LR}, v{pr}, v{T1}")
            a(f"v_fma_f32 v{HI}, v{LR}, v{pi}, v{T2}")
    z = CF
    a(f"v_mov_b32 v{z}, v{HR}"); a(f"v_mov_b32 v{z+1}, v{HI}")
    csq(a, z + 8, z + 9, L16R, L16I, z + 10)
    a(f"v_permlane32_swap_b32 v{HR}, v{z}")
    a(f"v_permlane32_swap_b32 v{HI}, v{z+1}")
    a(f"v_fma_f32 v{z}, -v{L16I}, v{HI}, v{z}")
    a(f"v_fma_f32 v{z+1}, v{L16I}, v{HR}, v{z+1}")
    a(f"v_fmac_f32 v{z}, v{L16R}, v{HR}")
    a(f"v_fmac_f32 v{z+1}, v{L16R}, v{HI}")
    a(f"v_mov_b32 v{z+2}, v{z}"); a(f"v_mov_b32 v{z+3}, v{z+1}")
    a(f"s_lshl_b32 s11, s{S_W4}, 7")
    a(f"v_add_u32 v{z+5}, s11, v{vAg}")
    a(f"v_permlane16_swap_b32 v{z}, v{z+2}")
    a(f"v_permlane16_swap_b32 v{z+1}, v{z+3}")
    a(f"v_fma_f32 v{z+2}, -v{z+9}, v{z+1}, v{z+2}")
    a(f"v_fma_f32 v{z+3}, v{z+9}, v{z}, v{z+3}")
    a(f"v_fmac_f32 v{z+2}, v{z+8}, v{z}")
    a(f"v_fmac_f32 v{z+3}, v{z+8}, v{z+1}")
    a(f"ds_write_b64 v{z+5}, v[{z+2}:{z+3}]")
    a("s_waitcnt lgkmcnt(0)")
    ts.x(2, 9)
    a(f"s_setprio {cfg.lprio}")
    a("s_barrier")
    ts(4)
    E = CF + 16
    for i in range(4): a(f"ds_read_b64 v[{E+2+2*i}:{E+3+2*i}], v{vAg} offset:{128*i}")
    a(f"v_mov_b32 v{E}, 0")
    a(f"v_mov_b32 v{E+1}, 0")
    a(f"v_and_b32 v{z+4}, 16, v0")
    a(f"v_cmp_ne_u32 s[12:13], 0, v{z+4}")
    for i in range(1, 4):
        e, p = E + 2 + 2 * i, E + 2 * i
        a(f"s_waitcnt lgkmcnt({3 - i})")
        a(f"v_fma_f32 v{e}, -v{L64I}, v{p+1}, v{e}")
        a(f"v_fma_f32 v{e+1}, v{L64I}, v{p}, v{e+1}")
        a(f"v_fmac_f32 v{e}, v{L64R}, v{p}")
        a(f"v_fmac_f32 v{e+1}, v{L64R}, v{p+1}")
    a(f"s_cmp_lg_u32 s{S_W4}, 0")
    a("s_cbranch_scc1 L_l_nopub")
    e = E + 8
    a(f"v_cmp_eq_u32 vcc, -1, v{e}")
    a(f"v_mov_b32 v{T1}, 0x7fc00000")
    a(f"v_cndmask_b32 v{e}, v{e}, v{T1}, vcc")
    a("s_mov_b64 exec, 0xffff")
    a(f"buffer_store_dwordx2 v[{e}:{e+1}], v{vAg}, s[{SRD_WS}:{SRD_WS+3}], s22 offen sc1")
    a("s_mov_b64 exec, -1")
    ts(5)
    a.label("L_l_nopub")
    a(f"v_cmp_lt_u32 vcc, 31, v0")
    a(f"v_cndmask_b32 v{z}, 0, v{z}, s[12:13]")
    a(f"v_cndmask_b32 v{z+1}, 0, v{z+1}, s[12:13]")
    a(f"v_fma_f32 v{HR}, -v{L16I}, v{z+1}, v{HR}")
    a(f"v_fma_f32 v{HI}, v{L16I}, v{z}, v{HI}")
    a(f"v_fmac_f32 v{HR}, v{L16R}, v{z}")
    a(f"v_fmac_f32 v{HI}, v{L16R}, v{z+1}")
    a(f"v_cndmask_b32 v{z}, v{z}, v{HR}, vcc")
    a(f"v_cndmask_b32 v{z+1}, v{z+1}, v{HI}, vcc")
    cmul(a, HR, HI, z, z + 1, CR, CI)
    a(f"s_bitcmp1_b32 s{S_W4}, 0")
    a("s_cselect_b64 vcc, -1, 0")
    a(f"v_cndmask_b32 v{QR}, v{E}, v{E+2}, vcc")
    a(f"v_cndmask_b32 v{QI}, v{E+1}, v{E+3}, vcc")
    a(f"v_cndmask_b32 v{T1}, v{E+4}, v{E+6}, vcc")
    a(f"v_cndmask_b32 v{T2}, v{E+5}, v{E+7}, vcc")
    a(f"s_bitcmp1_b32 s{S_W4}, 1")
    a("s_cselect_b64 vcc, -1, 0")
    a(f"v_cndmask_b32 v{QR}, v{QR}, v{T1}, vcc")
    a(f"v_cndmask_b32 v{QI}, v{QI}, v{T2}, vcc")
    ts.x(2, 10)
    thr[0] = cfg.thr
    lds = [f"buffer_load_dwordx2 v[{G0}:{G0+1}], v{vPr}, s[{SRD_WS}:{SRD_WS+3}], s23 offen sc1",
           f"buffer_load_dwordx2 v[{G1}:{G1+1}], v{vPr}, s[{SRD_WS}:{SRD_WS+3}], s20 offen sc1"]
    up = Rec()
    for r in range(16):
        up(f"v_mul_f32 v{T1}, v{CI}, v{Y+r}")
        up(f"v_mul_f32 v{T2}, v{CI}, v{X+r}")
        up(f"v_fma_f32 v{X+r}, v{CR}, v{X+r}, -v{T1}")
        up(f"v_fma_f32 v{Y+r}, v{CR}, v{Y+r}, v{T2}")
    vRd, vOne = 4, 2
    a(f"s_lshl_b32 s11, s{S_W4}, 2")
    a(f"s_add_u32 s11, s11, {CNT_L + 16}")
    a(f"v_mov_b32 v{vRd}, s11")
    a(f"v_mov_b32 v{vOne}, 1")
    thr[0] = None
    co = w_ops(range(22, 28)) + (c_ops(0) if cfg.c0early else [])
    interleave(a, co[:cfg.c1], up.L, 4)
    if cfg.agpos == 0:
        for t in lds: vm.issue('ag', t)
    w_write([12, 13, 14, 15])
    a(f"ds_write_b32 v{vRd}, v{vOne}")
    XV, STT, DS = 64, 80, 5
    TT = SACC + 32
    vHW = 1
    a(f"v_add_u32 v{vHW}, {HTS}, v{vPQ}")
    a(f"ds_write_b128 v{vHW}, v[{XRAW}:{XRAW+3}]")
    a(f"ds_write_b128 v{vHW}, v[{XRAW+4}:{XRAW+7}] offset:1024")
    a(f"v_lshrrev_b32 v{vT+3}, 5, v0")
    a(f"v_lshlrev_b32 v{vT+2}, 10, v{vT+3}")
    a(f"v_and_b32 v{vT}, 31, v0")
    a(f"v_lshl_add_u32 v{vT+2}, v{vT}, 1, v{vT+2}")
    a(f"s_add_u32 s11, s{sMP}, {HTS}")
    a(f"v_add_u32 v{vT+2}, s11, v{vT+2}")
    for r in range(16): a(f"ds_read_u16 v{XV+r}, v{vT+2} offset:{64*r}")
    if cfg.agpos == 1:
        for t in lds: vm.issue('ag', t)
    w_write([16, 17])
    def wrest():
        w_write([18, 19])
        w_write([20, 21])
        a(f"v_mov_b32 v{T1}, 2")
        a(f"ds_write_b32 v{vRd}, v{T1}")
    if not cfg.wl: wrest()
    co = co[cfg.c1:]
    ts(8)
    vm.wait('ag')
    def cond():
        a(f"v_cmp_eq_u32 vcc, -1, v{G0}")
        a("s_and_b64 s[48:49], vcc, s[56:57]")
        a(f"v_cmp_eq_u32 vcc, -1, v{G1}")
        a("s_and_b64 s[50:51], vcc, s[58:59]")
        a("s_or_b64 s[48:49], s[48:49], s[50:51]")
        a("s_cmp_eq_u64 s[48:49], 0")
    spin_check(a, "L_agg", lds, cond, 2)
    ts(6)
    SR, SI = CBR, CBI
    cmul(a, SR, SI, G0, G0 + 1, W0R, W0R + 1)
    cmul(a, T1, T2, G1, G1 + 1, W0R + 2, W0R + 3)
    a(f"v_cndmask_b32 v{SR}, 0, v{SR}, s[56:57]")
    a(f"v_cndmask_b32 v{SI}, 0, v{SI}, s[56:57]")
    a(f"v_cndmask_b32 v{T1}, 0, v{T1}, s[58:59]")
    a(f"v_cndmask_b32 v{T2}, 0, v{T2}, s[58:59]")
    a(f"v_add_f32 v{SR}, v{SR}, v{T1}")
    a(f"v_add_f32 v{SI}, v{SI}, v{T2}")
    for sw in ("v_permlane32_swap_b32", "v_permlane16_swap_b32"):
        a(f"v_mov_b32 v{T1}, v{SR}")
        a(f"v_mov_b32 v{T2}, v{SI}")
        a(f"{sw} v{SR}, v{T1}")
        a(f"{sw} v{SI}, v{T2}")
        a(f"v_add_f32 v{SR}, v{SR}, v{T1}")
        a(f"v_add_f32 v{SI}, v{SI}, v{T2}")
    a(f"v_fmac_f32 v{QR}, v{LWR}, v{SR}")
    a(f"v_fmac_f32 v{QI}, v{LWR}, v{SI}")
    a(f"v_fma_f32 v{QR}, -v{LWI}, v{SI}, v{QR}")
    a(f"v_fmac_f32 v{QI}, v{LWI}, v{SR}")
    a(f"v_fmac_f32 v{HR}, v{PWR}, v{QR}")
    a(f"v_fmac_f32 v{HI}, v{PWR}, v{QI}")
    a(f"v_fma_f32 v{HR}, -v{PWI}, v{QI}, v{HR}")
    a(f"v_fmac_f32 v{HI}, v{PWI}, v{QR}")
    pr, pi = HR, HI
    PK, HF = 96, 80
    rest = co[:cfg.c2]
    for r in range(16):
        if rest: rest.pop(0)()
        a(f"v_fma_f32 v{X+r}, -v{LI}, v{pi}, v{X+r}")
        a(f"v_fma_f32 v{Y+r}, v{LI}, v{pr}, v{Y+r}")
        a(f"v_fmac_f32 v{X+r}, v{LR}, v{pr}")
        a(f"v_fmac_f32 v{Y+r}, v{LR}, v{pi}")
        pr, pi = X + r, Y + r
    for k in range(8):
        a(f"v_cvt_pk_bf16_f32 v{PK+k}, v{X+2*k}, v{X+2*k+1}")
    a(f"ds_write_b128 v{vTW}, v[{PK}:{PK+3}]")
    a(f"ds_write_b128 v{vTW}, v[{PK+4}:{PK+7}] offset:16")
    for k in range(8):
        a(f"v_cvt_pk_bf16_f32 v{PK+8+k}, -v{Y+2*k}, -v{Y+2*k+1}")
    a(f"ds_write_b128 v{vTW}, v[{PK+8}:{PK+11}] offset:2048")
    a(f"ds_write_b128 v{vTW}, v[{PK+12}:{PK+15}] offset:2064")
    for q in range(2):
        for part in range(2):
            for j in range(2):
                d = HF + 8 * q + 4 * part + 2 * j
                a(f"ds_read_b64_tr_b16 v[{d}:{d+1}], v{vTR} offset:{(part*16 + 4*j)*128 + 64*(q ^ j)}")
    assert not rest
    a("s_waitcnt lgkmcnt(0)")
    for q in range(2):
        for part in range(2):
            d = HF + 8 * q + 4 * part
            a(f"s_add_u32 s11, s19, {q*RT_BYTES + part*HALF_BYTES}")
            vm.issue('hs', f"buffer_store_dwordx4 v[{d}:{d+3}], v{vP}, s[{SRD_WS}:{SRD_WS+3}], s11 offen{SP}")
    if cfg.wl: wrest()
    def flag2():
        vm.wait('hs')
        a("s_mov_b64 exec, 1")
        vm.issue('f', f"buffer_store_dword v{vOne}, v{vF}, s[{SRD_WS}:{SRD_WS+3}], 0 offen sc1")
        a("s_mov_b64 exec, -1")
        ts(7)
    if cfg.f2b == 0: flag2()
    for o in co[cfg.c2:] + (c_ops(2) if not cfg.clate else []): o()
    if cfg.f2b == 1: flag2()
    a(f"s_and_b32 s11, s{S_W4}, 1")
    a("s_lshl_b32 s11, s11, 8")
    a(f"s_add_u32 s11, s11, {ST2_L}")
    a(f"v_lshl_add_u32 v{vT+3}, v{vT+3}, 7, s11")
    STT = 32
    for k in range(8): a(f"ds_read_b128 v[{STT+4*k}:{STT+4*k+3}], v{vT+3} offset:{16*k}")
    for r in range(16): a(f"v_lshlrev_b32 v{XV+r}, 16, v{XV+r}")
    a("s_waitcnt lgkmcnt(0)")
    a("s_setprio 0")
    def rnd_pair(r0, r1):
        a(f"v_cvt_pk_bf16_f32 v{r1}, v{r0}, v{r1}"); a(f"v_lshlrev_b32 v{r0}, 16, v{r1}"); a(f"v_and_b32 v{r1}, s71, v{r1}")
    for r in range(16): a(f"v_sub_f32 v{TT+r}, v{XV+r}, v{STT+2*r}")
    for k in range(8): rnd_pair(TT + 2 * k, TT + 2 * k + 1)
    a(f"v_mov_b32 v{T2}, 3")
    vm.wait(('w', 27))
    a(f"ds_write_b32 v{vRd}, v{T2}")
    for r in range(16): a(f"v_mul_f32 v{TT+r}, v{TT+r}, v{STT+2*r+1}")
    for k in range(8): rnd_pair(TT + 2 * k, TT + 2 * k + 1)
    for r in range(16): a(f"v_mul_f32 v{TT+r}, v{TT+r}, v{DS}")
    for k in range(8): rnd_pair(TT + 2 * k, TT + 2 * k + 1)
    def poll(name, off):
        sspin(a, name, [f"s_load_dwordx16 s[20:35], s[{P_WS}:{P_WS+1}], s18 glc"], pcond, cfg.psleep)
    if True:
        def pcond():
            for k in range(0, 12, 4): a(f"s_and_b64 s[{20+k}:{21+k}], s[{20+k}:{21+k}], s[{22+k}:{23+k}]")
            a("s_and_b64 s[20:21], s[20:21], s[24:25]")
            a("s_and_b64 s[28:29], s[28:29], s[32:33]")
            a("s_and_b64 s[20:21], s[20:21], s[28:29]")
            a("s_and_b32 s20, s20, s21")
            a("s_cmp_eq_u32 s20, 1")
    a(f"s_mul_i32 s57, s40, {RT_BYTES}")
    a("s_xor_b32 s11, s40, 1")
    a(f"s_mul_i32 s56, s11, {RT_BYTES}")
    a(f"s_lshr_b32 s11, s{S_W4}, 1")
    a(f"s_mul_i32 s11, s11, {HALF_BYTES}")
    a(f"s_add_u32 s11, s11, {56*1024}")
    a("s_add_u32 s56, s56, s11")
    a("s_add_u32 s57, s57, s11")
    a(f"s_and_b32 s12, s{S_W4}, 1")
    a("s_lshl_b32 s13, s12, 14")
    for b in range(3): a(f"s_add_u32 s{52+b}, s13, {b*4096}")
    a("s_lshl_b32 s12, s12, 11")
    a(f"s_add_u32 s55, s12, {12*1024}")
    srd(a, 60, P_OUT, 2048 * 1792)
    vW1, vW2, vCn, vCv = 1, 2, 9, 4
    vR = [3, 12, 13, 14]
    a(f"v_add_u32 v{vW1}, {PH1}, v{vPQ}")
    a(f"v_add_u32 v{vW2}, {PH2}, v{vPQ}")
    a(f"v_mov_b32 v{vCn}, {CNT_L}")
    for (reg, xr, base) in ((vR[0], 1, PH1), (vR[1], 3, PH1 + 4096), (vR[2], 2, PH2)):
        a(f"s_xor_b32 s11, s{S_W4}, {xr}")
        a(f"s_mul_i32 s11, s11, {Q}")
        a(f"s_add_u32 s11, s11, {base}")
        a(f"v_add_u32 v{reg}, s11, v{vP}")
    a(f"v_add_u32 v{vR[3]}, {GA}, v{vPQ}")
    ts.x(2, 11)
    ts.x(7, 11)
    AR = list(range(16, 64, 4))
    NA = len(AR)
    PO = [4, 5, 6, 7, 12, 13, 0, 1, 2, 3, 8, 9, 10, 11]
    def aload(n):
        lr, p = n // 14, PO[n % 14]
        if p % 4 == 0: a(f"s_add_u32 s58, s{56+lr}, s{52 + p//4}")
        d = AR[n % NA]
        vm.issue(('a', n), f"buffer_load_dwordx4 v[{d}:{d+3}], v{vP}, s[{SRD_WS}:{SRD_WS+3}], s58 offen offset:{(p%4)*1024}{AP}")
    def cnt_wait(name, off):
        a("s_mov_b32 s73, 0")
        a.label(name)
        a("s_waitcnt lgkmcnt(0)")
        a(f"v_readfirstlane_b32 s11, v{vCv}")
        a("s_cmp_ge_u32 s11, 4")
        a(f"s_cbranch_scc1 {name}ok")
        a("s_add_u32 s73, s73, 1")
        a(f"s_cmp_ge_u32 s73, {SPIN_MAX}")
        a(f"s_cbranch_scc1 {name}ok")
        a("s_sleep 1")
        a(f"ds_read_b32 v{vCv}, v{vCn} offset:{off}")
        a(f"s_branch {name}")
        a.label(name + "ok")
        a("s_nop 7")
    assert cfg.clate == 2 and cdone == {1, 3}
    if cfg.gate == 0: poll("L_ps", 128)
    if cfg.gate < 2:
        a(f"ds_read_b32 v{vCv}, v{vCn} offset:4")
        cnt_wait("L_l_c0", 4)
    if cfg.sprio: a(f"s_setprio {cfg.sprio}")
    cc = c_ops(0) + c_ops(2)
    for o in cc[:cfg.c0n]: o()
    if cfg.gate != 0: poll("L_ps", 128)
    ts(9)
    ts.x(7, 1)
    for n in range(6): aload(n)
    for o in cc[cfg.c0n:8]: o()
    for n in range(6, 10): aload(n)
    for o in cc[max(8, cfg.c0n):]: o()
    for n in range(10, NA): aload(n)
    a("s_setprio 0")
    ts.x(7, 2)
    for n in range(28):
        lr, p = n // 14, PO[n % 14]
        vm.wait(('a', n))
        assert ('c', min(p // 4, 3)) not in vm.q
        if n in (0, 7, 14, 21): ts.x(7, 3 + n // 7)
        d = AR[n % NA]
        for lc in (1, 0):
            acc = SACC + 32 * lr + 16 * lc
            c = "0" if (n % 14 == 0 and not (lr == 1 and lc == 0)) else f"v[{acc}:{acc+15}]"
            f = cfrag(p, lc)
            a(f"v_mfma_f32_32x32x16_bf16 v[{acc}:{acc+15}], v[{d}:{d+3}], v[{f}:{f+3}], {c}")
        if n + NA < 28: aload(n + NA)
        if cfg.gate == 2 and n == 14: a(f"ds_read_b32 v{vCv}, v{vCn} offset:4")
        if cfg.gate == 2 and n == 15: cnt_wait("L_l_c0", 4)
        if 16 <= n < 24:
            k = n - 16
            a(f"ds_write_b128 v{vW1}, v[{SACC+4*k}:{SACC+4*k+3}] offset:{1024*k}")
    ts(10)
    ts.x(7, 7)
    ts.x(7, 8)
    for k in range(4):
        a(f"ds_write_b128 v{vW2}, v[{SACC+48+4*k}:{SACC+48+4*k+3}] offset:{1024*k}")
    a("s_waitcnt lgkmcnt(0)")
    ts.x(7, 9)
    a("s_barrier")
    ts(11)
    ts.x(7, 10)
    RX = CF
    for k in range(4):
        for w in range(4):
            a(f"ds_read_b128 v[{RX+16*w+4*k}:{RX+16*w+4*k+3}], v{vR[w]} offset:{1024*k}")
    for k in range(4):
        a(f"s_waitcnt lgkmcnt({12 - 4*k})")
        for r in range(4 * k, 4 * k + 4):
            a(f"v_add_f32 v{TT+r}, v{TT+r}, v{RX+r}")
            a(f"v_add_f32 v{RX+16+r}, v{RX+16+r}, v{RX+32+r}")
        for r in range(4 * k, 4 * k + 4):
            a(f"v_add_f32 v{TT+r}, v{TT+r}, v{RX+16+r}")
        for r in range(4 * k, 4 * k + 4):
            a(f"v_fma_f32 v{XV+r}, v{TT+r}, v{RX+48+r}, v{XV+r}")
            if r % 2 == 0: a(f"s_mov_b32 s11, {r*1792}")
            a(f"buffer_store_dword v{XV+r}, v{vO}, s[60:63], s11 offen offset:{(r%2)*1792}{OP}")
    if cfg.ts:
        a("s_waitcnt vmcnt(0)")
        ts(12)
    if cfg.padto:
        a.label("L_pad")
        a("s_memrealtime s[98:99]")
        a("s_waitcnt lgkmcnt(0)")
        a("s_sub_u32 s98, s98, s100")
        a(f"s_cmp_lt_u32 s98, {cfg.padto}")
        a("s_cbranch_scc1 L_pad")
    ts.dump(16, 17, 1)
    a("s_endpgm")

def gen_consumer(a, cfg, ts):
    a.label("L_consumer")
    SP = ["", " sc1"][cfg.spol]
    AP = ['', ' sc1', ' sc1 nt', ' sc0 sc1', ' sc0', ' nt'][cfg.apol]
    vm = VM(a)
    XA = [1, 2, 3, 4]; BA = [5, 6, 7, 8]; WA = [9, 10]
    vL16, vStF, vCL, vF, vFl, vSo, vCn, vRd, vWB, vPQ, vOne, MM = 11, 12, 13, 14, 15, 16, 17, 18, 19, 20, 21, 22
    FS = [40, 68]
    ACC = 96
    def G(ft, q): return ACC + 16 * (2 * ft + q)
    def U(ft, q): return ACC + 64 + 16 * (2 * ft + q)
    def S(q): return ACC + 128 + 16 * q
    vI, vH, t0, t1, t2 = 24, 25, 26, 27, 28
    a(f"v_and_b32 v{vI}, 31, v0")
    a(f"v_lshrrev_b32 v{vH}, 5, v0")
    a(f"v_bfe_u32 v{t0}, v0, 1, 3")
    a(f"v_xor_b32 v{t0}, v{t0}, v{vH}")
    a(f"v_lshlrev_b32 v{t0}, 4, v{t0}")
    a(f"v_lshl_add_u32 v{t0}, v{vI}, 7, v{t0}")
    a(f"s_lshl_b32 s11, s{S_W4}, 13")
    for ks in range(4):
        a(f"v_xor_b32 v{t1}, {32*ks}, v{t0}")
        a(f"v_add_u32 v{XA[ks]}, s11, v{t1}")
        a(f"v_add_u32 v{BA[ks]}, {OFF_BB}, v{t1}")
    a(f"v_bfe_u32 v{t0}, v0, 2, 2")
    a(f"v_lshlrev_b32 v{t1}, 7, v{t0}")
    a(f"v_lshrrev_b32 v{t0}, 1, v{t0}")
    a(f"v_lshl_add_u32 v{t1}, v{t0}, 6, v{t1}")
    a(f"v_bfe_u32 v{t0}, v0, 4, 1")
    a(f"v_lshl_add_u32 v{t1}, v{t0}, 5, v{t1}")
    a(f"v_and_b32 v{t2}, 3, v0")
    a(f"v_lshl_add_u32 v{t1}, v{t2}, 3, v{t1}")
    a(f"v_lshl_add_u32 v{WA[0]}, v{vH}, 10, v{t1}")
    a(f"v_add_u32 v{WA[0]}, {OFF_WG}, v{WA[0]}")
    a(f"v_xor_b32 v{WA[1]}, 64, v{WA[0]}")
    a(f"s_mul_i32 s62, s{S_W4}, {Q}")
    a(f"s_lshr_b32 s59, s{S_W4}, 1")
    a(f"s_and_b32 s63, s{S_W4}, 1")
    a("s_lshl_b32 s11, s59, 6")
    a(f"v_lshl_add_u32 v{vWB}, v{vH}, 9, v{t1}")
    a(f"v_xor_b32 v{vWB}, s11, v{vWB}")
    a(f"v_add_u32 v{vWB}, s62, v{vWB}")
    a("s_waitcnt lgkmcnt(0)")
    a(f"s_lshl_b32 s11, s{S_NS}, 5")
    a(f"s_load_dwordx8 s[32:39], s[{P_LRE}:{P_LRE+1}], s11")
    a(f"s_load_dwordx8 s[64:71], s[{P_LDT}:{P_LDT+1}], s11")
    a(f"s_load_dwordx8 s[24:31], s[{P_LIM}:{P_LIM+1}], s11")
    for k in range(160): a(f"v_mov_b32 v{ACC+k}, 0")
    a(f"v_mov_b32 v{vCn}, {CNT_L}")
    a(f"ds_write_b128 v{vCn}, v[{ACC}:{ACC+3}]")
    a(f"ds_write_b128 v{vCn}, v[{ACC}:{ACC+3}] offset:16")
    a(f"v_bfe_u32 v{t0}, v0, 2, 1")
    a(f"v_lshl_add_u32 v{t0}, v{t0}, 4, v{t2}")
    a(f"v_bfe_u32 v{t1}, v0, 3, 2")
    a(f"v_lshl_add_u32 v{t0}, v{t1}, 2, v{t0}")
    a(f"s_lshl_b32 s11, s{S_W4}, 9")
    a(f"s_add_u32 s11, s11, {STATS_L}")
    a(f"v_lshl_add_u32 v{vStF}, v{t0}, 3, s11")
    a(f"v_lshlrev_b32 v{vL16}, 4, v0")
    a(f"v_add_u32 v{vPQ}, s62, v{vL16}")
    a(f"v_lshlrev_b32 v{vCL}, 4, v{vH}")
    a(f"v_add_u32 v{vCL}, {C_L}, v{vCL}")
    a(f"v_mov_b32 v{vOne}, 1")
    a(f"s_lshl_b32 s11, s{S_W4}, 2")
    a(f"s_add_u32 s11, s11, {CNT_L + 16}")
    a(f"v_mov_b32 v{vRd}, s11")
    a("s_lshl_b32 s11, s63, 8")
    a(f"s_add_u32 s11, s11, {ST2_L}")
    a(f"v_lshl_add_u32 v{vSo}, v{vH}, 7, s11")
    a(f"s_lshl_b32 s13, s{S_MT}, 2")
    a(f"s_add_u32 s13, s13, s{S_W4}")
    a(f"s_mul_i32 s56, s13, {2*RT_BYTES}")
    a(f"s_cmp_ge_u32 s{S_NS}, 14")
    a(f"s_cselect_b32 s11, {HALF_BYTES - 56*1024}, 0")
    a(f"s_lshl_b32 s12, s{S_NS}, 12")
    a("s_add_u32 s11, s11, s12")
    a("s_add_u32 s56, s56, s11")
    a(f"s_add_u32 s57, s56, {RT_BYTES}")
    a("s_lshl_b32 s11, s13, 10")
    flag_index(a, 12, 14, 7)
    a("s_add_u32 s11, s11, s12")
    a(f"s_add_u32 s11, s11, {WS_FLAG:#x}")
    a(f"v_mov_b32 v{vF}, s11")
    a(f"s_lshl_b32 s55, s{S_M64}, 10")
    a(f"s_add_u32 s55, s55, {WS_FLAG:#x}")
    a(f"s_lshl_b32 s11, s{S_W4}, 7")
    a("s_add_u32 s55, s55, s11")
    a(f"s_mul_i32 s12, s59, {HALF_BYTES}")
    a(f"s_mul_i32 s13, s63, {28*1024}")
    a("s_add_u32 s12, s12, s13")
    a(f"s_lshl_b32 s11, s{S_M64}, 1")
    a("s_add_u32 s11, s11, s63")
    a(f"s_mul_i32 s52, s11, {RT_BYTES}")
    a("s_add_u32 s52, s52, s12")
    a("s_xor_b32 s11, s11, 1")
    a(f"s_mul_i32 s51, s11, {RT_BYTES}")
    a("s_add_u32 s51, s51, s12")
    p2_rot(a, cfg, 60, 61, 58)
    a("s_mov_b32 s12, 0x00030003")
    a("s_mov_b32 s13, 0x00030003")
    a("s_waitcnt lgkmcnt(0)")
    K, KP = 40, 64
    for k in range(8):
        a(f"s_lshl_b64 exec, s[12:13], {2*k}")
        for m, sb in enumerate((32, 24, 64)): a(f"v_mov_b32 v{K+m}, s{sb+k}")
    a("s_mov_b64 exec, -1")
    a(f"v_and_b32 v{K+3}, 1, v0")
    a(f"v_lshlrev_b32 v{K+3}, 4, v{K+3}")
    for m in range(3): a(f"v_lshrrev_b32 v{K+m}, v{K+3}, v{K+m}")
    srd(a, SRD_WS, P_WS, WS_SIZE)
    ssm_park(a, K, KP, 62)
    a(f"v_mov_b32 v{KP+23}, 0")
    a(f"s_lshl_b32 s11, s{S_W4}, 13")
    a(f"s_add_u32 s11, s11, {R[2]}")
    a(f"v_add_u32 v{K}, s11, v{vL16}")
    for k in range(6): a(f"ds_write_b128 v{K}, v[{KP+4*k}:{KP+4*k+3}] offset:{1024*k}")
    a("s_waitcnt lgkmcnt(0)")
    ts(1)

    def reads(fs, ks):
        f = FS[fs]
        L = []
        L.append(f"ds_read_b128 v[{f}:{f+3}], v{XA[ks]}")
        L.append(f"ds_read_b128 v[{f+24}:{f+27}], v{BA[ks]}")
        L.append(f"ds_read_b128 v[{f+4}:{f+7}], v{XA[ks]} offset:4096")
        for gu in range(2):
            for ft in range(2):
                for j in range(2):
                    d = f + 8 + 8 * gu + 4 * ft + 2 * j
                    L.append(f"ds_read_b64_tr_b16 v[{d}:{d+1}], v{WA[ft]} offset:{gu*8192 + ks*2048 + j*512}")
        return L
    def mfmas(fs):
        f = FS[fs]
        X = [f, f + 4]; Bf = f + 24
        L = []
        for q in range(2):
            L.append(f"v_mfma_f32_32x32x16_bf16 v[{S(q)}:{S(q)+15}], v[{X[q]}:{X[q]+3}], v[{Bf}:{Bf+3}], v[{S(q)}:{S(q)+15}]")
        for gu in range(2):
            for ft in range(2):
                w = f + 8 + 8 * gu + 4 * ft
                for q in range(2):
                    d = (G, U)[gu](ft, q)
                    L.append(f"v_mfma_f32_32x32x16_bf16 v[{d}:{d+15}], v[{w}:{w+3}], v[{X[q]}:{X[q]+3}], v[{d}:{d+15}]")
        return L
    a("s_setprio 2")
    a("s_mov_b32 s72, 0")
    a("s_mov_b32 s74, 0")
    a("s_barrier")
    ts(2)
    for t in reads(0, 0): a(t)
    a.label("L_c_loop")
    need = {0: 9, 1: 8, 2: 6, 4: 4, 6: 2, 8: 0}
    for ks in range(4):
        fs = ks & 1
        M = mfmas(fs)
        if ks < 3:
            Rd = reads(1 - fs, ks + 1)
            issued = 0
            for i, m in enumerate(M):
                if i in need: a(f"s_waitcnt lgkmcnt({min(15, need[i] + issued)})")
                a(m)
                for _ in range(2 if i >= cfg.rdstart else 0):
                    if Rd: a(Rd.pop(0)); issued += 1
        else:
            Rd = reads(1 - fs, 0)
            a("s_waitcnt lgkmcnt(9)")
            a(M[0])
            a("s_add_u32 s74, s74, 1")
            a("s_cmp_eq_u32 s74, 3")
            a("s_mov_b32 s75, 53248")
            a(f"s_cmov_b32 s75, {(-106496) & 0xffffffff:#x}")
            a("s_cselect_b32 s74, 0, s74")
            for v in XA + BA[:1]: a(f"v_add_u32 v{v}, s75, v{v}")
            a("s_waitcnt lgkmcnt(8)")
            a(M[1])
            for v in BA[1:] + WA: a(f"v_add_u32 v{v}, s75, v{v}")
            a("s_add_u32 s72, s72, 1")
            a("s_cmp_eq_u32 s72, 6")
            a("s_waitcnt lgkmcnt(0)")
            a(M[2])
            a("s_barrier")
            hist = list(a.hist)
            a("s_cbranch_scc1 L_c_last")
            for m in M[3:]:
                for _ in range(2):
                    if Rd: a(Rd.pop(0))
                a(m)
            a("s_branch L_c_loop")
            a.label("L_c_last")
            a.hist = hist
            Mtail = M[3:]
    lq = []
    def ds_issue(tag, t):
        a(t)
        if t.startswith("ds_"): lq.append(tag)
    def ds_wait(tag):
        idx = max((i for i, t in enumerate(lq) if t == tag), default=None)
        if idx is None: return None
        n = len(lq) - 1 - idx
        del lq[:idx + 1]
        return f"lgkmcnt({min(n, 15)})"
    def dwait(tag):
        w = ds_wait(tag)
        if w: a(f"s_waitcnt {w}")
    UB = [24, 40, 56]
    def ureads(u):
        b, ks = UB[u % 3], u % 4
        L = [f"ds_read_b128 v[{b}:{b+3}], v{XA[ks]}"]
        if u < 8:
            ft = u // 4
            for gu in range(2):
                for j in range(2):
                    d = b + 8 + 4 * gu + 2 * j
                    L.append(f"ds_read_b64_tr_b16 v[{d}:{d+1}], v{WA[ft]} offset:{gu*8192 + ks*2048 + j*512}")
        else:
            L.append(f"ds_read_b128 v[{b+8}:{b+11}], v{BA[ks]}")
        L.append(f"ds_read_b128 v[{b+4}:{b+7}], v{XA[ks]} offset:4096")
        return [(u, t) for t in L]
    def umfma(u):
        b = UB[u % 3]
        L = []
        for q in range(2):
            x = b + 4 * q
            if u < 8:
                for gu in range(2):
                    d = (G, U)[gu](u // 4, q); w = b + 8 + 4 * gu
                    L.append(f"v_mfma_f32_32x32x16_bf16 v[{d}:{d+15}], v[{w}:{w+3}], v[{x}:{x+3}], v[{d}:{d+15}]")
            else:
                L.append(f"v_mfma_f32_32x32x16_bf16 v[{S(q)}:{S(q)+15}], v[{x}:{x+3}], v[{b+8}:{b+11}], v[{S(q)}:{S(q)+15}]")
        return L
    Rd = ureads(0) + ureads(1)
    for m in Mtail:
        for _ in range(2):
            if Rd: ds_issue(*Rd.pop(0))
        a(m)
    CH = 72
    def chalf(p):
        for gu in range(2):
            for k in range(2):
                ds_issue(('c', p), f"ds_read_b128 v[{CH+8*gu+4*k}:{CH+8*gu+4*k+3}], v{vCL} offset:{256*gu + 32*(2*p+k)}")
    def hstore(ft, q, p):
        g = G(ft, q)
        vm.issue('h', f"buffer_store_dwordx4 v[{g+4*p}:{g+4*p+3}], v{vL16}, s[{SRD_WS}:{SRD_WS+3}], s{56+q} offen offset:{(2*ft+p)*1024}{SP}")
    ep = [lambda: dwait(('c', 0)), f"v_xor_b32 v{MM}, 0x80000000, v{MM}", f"v_xor_b32 v{MM+1}, 0x80000000, v{MM+1}"]
    for p in range(2):
        if p: ep.append(lambda: dwait(('c', 1)))
        for q in range(2):
            g, u = G(0, q) + 8 * p, U(0, q) + 8 * p
            for k in range(8): ep.append(f"v_fmac_f32 v{g+k}, v{MM+q}, v{CH+k}")
            for k in range(8): ep.append(f"v_fmac_f32 v{u+k}, v{MM+q}, v{CH+8+k}")
            if q == 1 and p == 0: ep.append(lambda: chalf(1))
            for k in range(8): ep.append(f"v_max_f32 v{g+k}, 0, v{g+k}")
            for k in range(8): ep.append(f"v_mul_f32 v{u+k}, v{u+k}, v{g+k}")
            for k in range(4): ep.append(f"v_cvt_pk_bf16_f32 v{G(0,q)+4*p+k}, v{u+2*k}, v{u+2*k+1}")
            ep.append(lambda q=q, p=p: hstore(0, q, p))
    def fill(n):
        while n > 0 and ep:
            t = ep.pop(0)
            if callable(t): t()
            else: a(t)
            n -= 1
    def cread(tag, dst, off):
        for k in range(4): ds_issue(tag, f"ds_read_b128 v[{dst+4*k}:{dst+4*k+3}], v{vCL} offset:{off + 32*k}")
    for u in range(12):
        dwait(u)
        if u == 11:
            a("s_barrier")
        Rd = ureads(u + 2) if u + 2 < 12 else []
        for i, m in enumerate(umfma(u)):
            a(m)
            for _ in range(2):
                if Rd: ds_issue(*Rd.pop(0))
            if u > 4 or (u == 4 and i >= 1): fill(cfg.fper - 1 if u < 10 else cfg.fper)
        if u == cfg.c2u:
            a("s_barrier")
            ds_issue(('c', 0), f"ds_read_b32 v{MM}, v{vStF}")
            ds_issue(('c', 0), f"ds_read_b32 v{MM+1}, v{vStF} offset:256")
            chalf(0)
        if u == 9: cread('cg', UB[0], 128)
        if u == 10: cread('cu', UB[1], 384)
    ts(3)
    fill(1000)
    dump = [f"ds_write_b128 v{vPQ}, v[{S(0)+4*k}:{S(0)+4*k+3}] offset:{SD + 1024*k}" for k in range(8)]
    WB = {0: [1, 2], 1: [3, 4], 2: [5, 6]}
    for rg in range(3):
        a(f"v_add_u32 v{WB[rg][0]}, {R[rg]}, v{vWB}")
        a(f"v_xor_b32 v{WB[rg][1]}, 64, v{WB[rg][0]}")
    dwait('cu')
    cg, cu = UB[0], UB[1]
    for q in range(2):
        g, u = G(1, q), U(1, q)
        sel = f"op_sel:[{q},0,0] op_sel_hi:[{q},1,1]"
        for p in range(2):
            kr = range(4 * p, 4 * p + 4)
            for k in kr:
                a(f"v_pk_fma_f32 v[{g+2*k}:{g+2*k+1}], v[{MM}:{MM+1}], v[{cg+2*k}:{cg+2*k+1}], v[{g+2*k}:{g+2*k+1}] {sel}")
                if dump: a(dump.pop(0))
            for k in kr:
                a(f"v_pk_fma_f32 v[{u+2*k}:{u+2*k+1}], v[{MM}:{MM+1}], v[{cu+2*k}:{cu+2*k+1}], v[{u+2*k}:{u+2*k+1}] {sel}")
                a(f"v_max_f32 v{g+2*k}, 0, v{g+2*k}")
                a(f"v_max_f32 v{g+2*k+1}, 0, v{g+2*k+1}")
            for k in kr:
                a(f"v_pk_mul_f32 v[{u+2*k}:{u+2*k+1}], v[{u+2*k}:{u+2*k+1}], v[{g+2*k}:{g+2*k+1}]")
            for k in kr:
                a(f"v_cvt_pk_bf16_f32 v{g+k}, v{u+2*k}, v{u+2*k+1}")
            if q == 0 and p == 1:
                a("s_waitcnt lgkmcnt(0)")
                a("s_barrier")
            hstore(1, q, p)
    del lq[:]
    ts(4)
    BR, NB = 160, 12
    def breads(p):
        sl = WSLOT[p]
        rg = max(k for k in range(3) if R[k] <= sl)
        L = []
        for lc in range(2):
            for jj in range(2):
                d = BR + 8 * (p % NB) + 4 * lc + 2 * jj
                L.append(f"ds_read_b64_tr_b16 v[{d}:{d+1}], v{WB[rg][lc]} offset:{sl - R[rg] + jj*1024}")
        return L
    for p in range(NB):
        for t in breads(p): a(t)
    def flag1():
        vm.wait('h')
        a("s_setprio 3")
        a("s_mov_b64 exec, 1")
        vm.issue('f', f"buffer_store_dword v{vOne}, v{vF}, s[{SRD_WS}:{SRD_WS+3}], 0 offen sc1")
        a("s_mov_b64 exec, -1")
        ts(6)
    if cfg.fpre: flag1()
    a("s_waitcnt lgkmcnt(0)")
    a("s_barrier")
    ts(5)
    if not cfg.fpre: flag1()
    AF = 96
    AR = list(range(24, 96, 4))
    NA = len(AR)
    def aload(n):
        p, lr = n // 2, n % 2
        if n % 8 == 0:
            a(f"s_lshl_b32 s11, s60, 12")
            a(f"s_add_u32 s54, s11, s52")
            a(f"s_add_u32 s53, s11, s51")
            a(f"s_add_u32 s60, s60, 1")
            a(f"s_cmp_eq_u32 s60, 7")
            a(f"s_cselect_b32 s60, 0, s60")
        d = AR[n % NA]
        vm.issue(('a', n), f"buffer_load_dwordx4 v[{d}:{d+3}], v{vL16}, s[{SRD_WS}:{SRD_WS+3}], s{54 - lr} offen offset:{(p%4)*1024}{AP}")
    def cond():
        a("s_and_b64 s[16:17], s[16:17], s[18:19]")
        a("s_and_b64 s[16:17], s[16:17], s[20:21]")
        a("s_and_b32 s16, s16, s17")
        a("s_and_b32 s16, s16, s22")
        a("s_cmp_eq_u32 s16, 1")
    sspin(a, "L_pf", [f"s_load_dwordx8 s[16:23], s[{P_WS}:{P_WS+1}], s55 glc"], cond, cfg.fsleep)
    a("s_setprio 2")
    ts(7)
    for n in range(cfg.a0): aload(n)
    nxt = [cfg.a0]
    ts(8)
    def lds_spin(name, vaddr, off, val):
        a("s_mov_b32 s73, 0")
        a.label(name)
        a("s_waitcnt lgkmcnt(0)")
        a("v_readfirstlane_b32 s11, v8")
        a(f"s_cmp_ge_u32 s11, {val}")
        a(f"s_cbranch_scc1 {name}ok")
        a("s_add_u32 s73, s73, 1")
        a(f"s_cmp_ge_u32 s73, {SPIN_MAX}")
        a(f"s_cbranch_scc1 {name}ok")
        a("s_sleep 1")
        a(f"ds_read_b32 v8, v{vaddr} offset:{off}")
        a(f"s_branch {name}")
        a.label(name + "ok")
        del lq[:]
    for p in range(28):
        f = BR + 8 * (p % NB)
        pn = p + cfg.bd
        for lr in range(2):
            n = 2 * p + lr
            w = ds_wait(p) if lr == 0 else None
            vm.wait(('a', n), w or "")
            if n == 0: ts(9)
            if n in (0, 7, 17, 25, 35): ts.x(6, {0: 7, 7: 8, 17: 9, 25: 10, 35: 11}[n])
            if lr == 0 and pn in (12, 16, 22): ds_issue('r', f"ds_read_b32 v8, v{vRd}")
            d = AR[n % NA]
            for lc in range(2):
                acc = AF + 32 * lr + 16 * lc
                c = "0" if p == 0 else f"v[{acc}:{acc+15}]"
                a(f"v_mfma_f32_32x32x16_bf16 v[{acc}:{acc+15}], v[{d}:{d+3}], v[{f+4*lc}:{f+4*lc+3}], {c}")
            for _ in range(2):
                if nxt[0] < 56 and nxt[0] <= n + NA:
                    aload(nxt[0]); nxt[0] += 1
        if pn in (12, 16, 22): lds_spin(f"L_c_r{pn}", vRd, 0, {12: 1, 16: 2, 22: 3}[pn])
        if p == cfg.ksig:
            assert pn > 15
            w = ds_wait(15)
            if w: a(f"s_waitcnt {w}")
            a("s_mov_b64 exec, 1")
            ds_issue('c', f"ds_add_u32 v{vCn}, v{vOne} offset:4")
            a("s_mov_b64 exec, -1")
        if NB <= pn < 28:
            for t in breads(pn): ds_issue(pn, t)
        if p == 24:
            STT = BR + 32
            for k in range(8): ds_issue('st', f"ds_read_b128 v[{STT+4*k}:{STT+4*k+3}], v{vSo} offset:{16*k}")
        if p == 26:
            for x in range(1, 4):
                a(f"s_xor_b32 s11, s{S_W4}, {x}")
                a(f"s_mul_i32 s11, s11, {Q}")
                a(f"s_add_u32 s11, s11, {FXA + (x-1)*4096}")
                a(f"v_add_u32 v{x}, s11, v{vL16}")
            a(f"v_add_u32 v4, {GA}, v{vPQ}")
            a(f"v_add_u32 v5, {FXA}, v{vPQ}")
        if p % 4 == 3: ts.x(4, 1 + p // 4)
    ts(11)
    ts.x(7, 1)
    for x in (2, 1, 3):
        src = AF + 32 * (x & 1) + 16 * (x >> 1)
        for k in range(4):
            a(f"ds_write_b128 v5, v[{src+4*k}:{src+4*k+3}] offset:{(x-1)*4096 + 1024*k}")
    a("s_waitcnt lgkmcnt(12)")
    for r in range(16): a(f"v_mul_f32 v{STT+2*r}, v{STT+2*r+1}, v{STT+2*r+1}")
    a(f"s_mov_b32 s13, {LOG2E ^ 0x80000000:#x}")
    ts.x(7, 2)
    a("s_waitcnt lgkmcnt(0)")
    ts.x(7, 3)
    a("s_mov_b64 exec, 1")
    a(f"ds_add_u32 v{vCn}, v{vOne}")
    a("s_mov_b64 exec, -1")
    a(f"ds_read_b32 v8, v{vCn}")
    lds_spin("L_c_cnt", vCn, 0, 4)
    ts.x(7, 4)
    O, RX, EX = AF, 24, 72
    for k in range(4):
        for x in range(1, 4):
            a(f"ds_read_b128 v[{RX+16*(x-1)+4*k}:{RX+16*(x-1)+4*k+3}], v{x} offset:{1024*k}")
    for k in range(4):
        rr = range(4 * k, 4 * k + 4)
        a(f"s_waitcnt lgkmcnt({9 - 3*k})")
        for r in rr: a(f"v_add_f32 v{O+r}, v{O+r}, v{RX+r}")
        for r in rr: a(f"v_add_f32 v{RX+16+r}, v{RX+16+r}, v{RX+32+r}")
        for r in rr: a(f"v_add_f32 v{O+r}, v{O+r}, v{RX+16+r}")
        for r in rr: a(f"v_mul_f32 v{O+r}, v{O+r}, v{STT+2*r}")
        for r in rr: a(f"v_mul_f32 v{EX+r}, s13, v{O+r}")
        for r in rr: a(f"v_exp_f32 v{EX+r}, v{EX+r}")
    ts.x(7, 5)
    for k in range(4):
        rr = range(4 * k, 4 * k + 4)
        for r in rr: a(f"v_add_f32 v{EX+r}, 1.0, v{EX+r}")
        for r in rr: a(f"v_rcp_f32 v{EX+r}, v{EX+r}")
        for r in rr: a(f"v_mul_f32 v{O+r}, v{O+r}, v{EX+r}")
        a(f"ds_write_b128 v4, v[{O+4*k}:{O+4*k+3}] offset:{1024*k}")
    a("s_waitcnt lgkmcnt(0)")
    ts(12)
    a("s_barrier")
    ts.dump(24, 25, 0)
    a("s_endpgm")

HEADER = """; Fused S5-SSM + ReGLU block, one launch: 224 main workgroups (4 MFMA waves + 4 loader waves) + 32 helper workgroups.
; @launch grid=(256,1,1) block=(512,1,1) lds=163840
.amdgcn_target "amdgcn-amd-amdhsa--gfx950"
.text
.globl {k}
.p2align 8
.type {k},@function
{k}:
"""
FOOTER = """.section .rodata,"a"
.p2align 6
.amdhsa_kernel {k}
  .amdhsa_next_free_vgpr 256
  .amdhsa_next_free_sgpr 102
  .amdhsa_accum_offset 256
  .amdhsa_group_segment_fixed_size 0
  .amdhsa_kernarg_size 128
  .amdhsa_user_sgpr_count 2
  .amdhsa_user_sgpr_kernarg_segment_ptr 1
  .amdhsa_system_sgpr_workgroup_id_x 1
  .amdhsa_float_denorm_mode_32 3
.end_amdhsa_kernel
"""

def generate(cfg):
    WSOFF[0] = cfg.wsoff << 20
    a = Asm()
    ts = TS(a, cfg)
    gen_entry(a, cfg, ts)
    gen_loader(a, cfg, ts)
    gen_consumer(a, cfg, ts)
    gen_helper(a, cfg, ts)
    a.label("L_exit")
    a("s_endpgm")
    return HEADER.format(k=KNAME) + f"; wsoff={cfg.wsoff}\n" + a.text() + FOOTER.format(k=KNAME)

if __name__ == "__main__":
    cfg = Cfg()
    out = sys.argv[1]
    for kv in sys.argv[2:]:
        k, v = kv.split("=")
        setattr(cfg, k, int(v))
    open(out, "w").write(generate(cfg))
```

```python
import sys, os
sys.path.insert(0, os.path.dirname(os.path.abspath(__file__)))
from asmlib import Asm, VM

KNAME = "recurrent_scan__ssm_conv_s5__glu_gated_reglu__prompt_kernel"

R = [0, 53248, 106496]
MISC = 159744
OFF_WG, OFF_WU, OFF_BB = 32768, 40960, 49152
CP_L = R[1] + 49152
STATS_L = MISC
C_L = MISC + 2048
CNT_L = MISC + 2688
ST2_L = MISC + 2720
AGG_L = MISC + 3232
Q = 12288

RT_BYTES = 172032
HALF_BYTES = 86016
WS_STATS = 0xB00000
WS_AGG = WS_STATS + 0x4000
WS_FLAG = WS_AGG + 0x8000
INIT_N = 128 + 98
WS_CP = 0xB20000
WS_TS = 0xC00000
WS_SIZE = 0x1000000
SPIN_MAX = 1 << 20

S_WAVE, S_XCD, S_SLOT, S_MT, S_NS, S_M64, S_NT, S_W4 = 3, 4, 5, 6, 7, 8, 9, 10
P_X, P_LRE, P_LIM, P_BRE, P_BIM, P_CRE, P_CIM, P_LDT, P_DSK, P_BX, P_WG, P_WU, P_WD, P_OUT, P_DBG, P_WS = [16 + 2 * i for i in range(16)]
SRD_X, SRD_A, SRD_B, SRD_C, SRD_WS, SRD_E = 48, 52, 56, 60, 64, 68
TS0 = 76

LOG2E = 0x3fb8aa3b
LOG2E_LO = 0x32a57060
LN2 = 0x3f317218
INV2PI = 0x3e22f983

class Cfg:
    ts = 0
    tsset = 0
    pd = 16
    perm = 1
    rot = 2
    ssm_early = 0
    schedn = 0
    polx = 0
    apol = 1
    noa = 0
    nob = 0
    rdstart = 1
    polw = 0
    winn = 3
    loc = 1
    gate = 2
    c0n = 8
    agpos = 0
    c0early = 0
    hord = 1
    clate = 2
    wl = 1
    fper = 6
    c2u = 2
    probe = 0
    pwho = 0
    ponly = -1
    pmask = 0xffff
    wsoff = 0
    kwin = 2
    wprio = 0
    hdelay = 0
    eprio = 0
    c2late = 0
    cpf = 2
    padto = 0
    nocs = 0
    r2pre = 1
    tlb = 0
    bd = 4
    pollw = 24
    c1 = 12
    c2 = 16
    f2b = 1
    wfirst = 1
    @property
    def win(self):
        W = lambda a, b: [f"w{p}" for p in range(a, b)]
        return [
            {-1: ["s1:0-6"], 0: ["cs0", "s1:6-13", "k", "s2:0-9"], 1: ["cs1", "s2:9-13", "s3", "e"], 2: ["cs2", "s4"] + W(12, 14), 3: ["cs3", "s5"] + W(14, 17),
             4: ["cs4", "init", "s6:0-7", "cs5", "s6:7-13", "w17"], 5: ["fetch"] + W(0, 4) + ["cs6"] + W(4, 6) + W(18, 20) + ["put"], 6: W(6, 12) + W(20, 22)},
            {-1: ["s1:0-6"], 0: ["cs0", "s1:6-13", "k", "s2:0-9"], 1: ["cs1", "s2:9-13", "s3", "e"], 2: ["cs2", "s4"] + W(12, 15), 3: ["cs3", "s5"] + W(15, 18),
             4: ["cs4", "init", "s6"] + W(18, 20), 5: ["cs5", "fetch"] + W(0, 3) + ["cs6"] + W(3, 6) + ["put"], 6: W(6, 12) + W(20, 22)},
            {-1: ["s1:0-6"], 0: ["cs0", "s1:6-13", "k", "s2:0-9"], 1: ["cs1", "s2:9-13", "s3", "e"], 2: ["cs2", "s4"] + W(12, 15), 3: ["cs3", "s5:0-7", "cs4", "s5:7-13", "w15"],
             4: ["init", "s6:0-4", "cs5", "s6:4-13"] + W(16, 19), 5: ["fetch"] + W(0, 4) + ["cs6"] + W(4, 6) + W(19, 22) + ["put"], 6: W(6, 12)},
            {-1: ["s1:0-6"], 0: ["cs0", "s1:6-13", "k", "s2:0-9"], 1: ["cs1", "s2:9-13", "s3", "e"], 2: ["cs2", "s4"] + W(12, 15), 3: ["cs3", "s5"] + W(15, 18),
             4: ["cs4", "init", "s6:0-7", "cs5", "s6:7-13", "w18", "w19"], 5: ["fetch"] + W(0, 4) + ["cs6"] + W(4, 6) + W(20, 22) + ["c3", "put"], 6: W(6, 12) + ["c1"]},
            {-1: ["s1:0-6"], 0: ["cs0", "s1:6-13", "k", "s2:0-9"], 1: ["cs1", "s2:9-13", "s3", "e"], 2: ["cs2", "s4"] + W(12, 14), 3: ["cs3", "s5"] + W(14, 17),
             4: ["cs4", "init", "s6:0-7", "cs5", "s6:7-13", "w17"], 5: ["fetch"] + W(0, 4) + ["cs6"] + W(4, 6) + W(18, 20) + ["put"], 6: W(6, 12) + W(20, 22) + ["c3"]},
            {-1: ["s1:0-6"], 0: ["cs0", "s1:6-13", "k", "s2:0-9"], 1: ["cs1", "s2:9-13", "s3", "e"], 2: ["cs2", "s4"] + W(12, 15), 3: ["cs3", "s5"] + W(15, 19),
             4: ["cs4", "init", "s6:0-7", "cs5", "s6:7-13"] + W(19, 22), 5: ["fetch"] + W(0, 4) + ["cs6"] + W(4, 6) + ["c1", "put"], 6: W(6, 12) + ["c3"]},
            {-1: ["s1:0-6"], 0: ["cs0", "s1:6-13", "k", "s2"], 1: ["cs1", "s3", "e"] + W(12, 14), 2: ["cs2", "s4"] + W(14, 17), 3: ["cs3", "s5"] + W(17, 20),
             4: ["cs4", "init", "s6:0-7", "cs5", "s6:7-13"] + W(20, 22), 5: ["fetch"] + W(0, 4) + ["cs6"] + W(4, 6) + ["c1", "put"], 6: W(6, 12) + ["c3"]},
            {-1: ["s1:0-6"], 0: ["cs0", "s1:6-13", "k", "s2:0-9"], 1: ["cs1", "s2:9-13", "s3", "e"], 2: ["cs2", "s4"] + W(12, 15), 3: ["cs3", "s5:0-7", "cs4", "s5:7-13"] + W(15, 18),
             4: ["init", "s6:0-4", "cs5", "s6:4-13"] + W(18, 22), 5: ["fetch"] + W(0, 4) + ["cs6"] + W(4, 6) + ["c1", "put"], 6: W(6, 12) + ["c3"]},
            {-1: ["s1:0-6"], 0: ["cs0", "s1:6-13", "k", "s2:0-9"], 1: ["cs1", "s2:9-13", "s3", "e"], 2: ["cs2", "s4"], 3: ["cs3", "s5"] + W(12, 16),
             4: ["cs4", "init", "s6:0-7", "cs5", "s6:7-13"] + W(16, 19), 5: ["fetch"] + W(0, 4) + ["cs6"] + W(4, 6) + W(19, 22) + ["c3", "put"], 6: W(6, 12) + ["c1"]},
            {-1: ["s1:0-6"], 0: ["cs0", "s1:6-13", "k", "s2"], 1: ["cs1", "s3", "e"], 2: ["cs2", "s4"] + W(12, 14), 3: ["cs3", "s5"] + W(14, 18),
             4: ["cs4", "init", "s6:0-7", "cs5", "s6:7-13", "w18", "w19"], 5: ["fetch"] + W(0, 4) + ["cs6"] + W(4, 6) + W(20, 22) + ["c3", "put"], 6: W(6, 12) + ["c1"]},
            {-1: ["s1:0-3"], 0: ["cs0", "s1:3-13", "k", "s2:0-8"], 1: ["cs1", "s2:8-13", "s3"], 2: ["cs2", "s4", "e"] + W(12, 14), 3: ["cs3", "s5"] + W(14, 18),
             4: ["cs4", "init", "s6:0-7", "cs5", "s6:7-13", "w18", "w19"], 5: ["fetch"] + W(0, 4) + ["cs6"] + W(4, 6) + W(20, 22) + ["c3", "put"], 6: W(6, 12) + ["c1"]},
            {-1: ["s1:0-6"], 0: ["cs0", "s1:6-13", "k", "s2:0-9"], 1: ["cs1", "s2:9-13", "s3", "e"], 2: ["cs2", "s4"] + W(12, 15), 3: ["cs3", "init", "s5"] + W(15, 18),
             4: ["cs4", "fetch", "s6:0-7", "cs5", "s6:7-13", "w18", "w19"], 5: ["put"] + W(0, 4) + ["cs6"] + W(4, 6) + W(20, 22) + ["c3"], 6: W(6, 12) + ["c1"]},
        ][self.winn]
    nw1 = 6
    flagr = -1
    xs = 1
    psleep = 2
    fsleep = 2
    ttper = 2
    f2n = 9
    fpre = 1
    a0 = 18
    sprio = 0
    ksig = 12
    opol = 1
    lprio = 3
    w12early = 0
    slab = 0
    spol = 1
    fpol = 1
    pollr = 4
    nw2 = 16
    thr = 15
    hpf = 2
    ky = 2
    @property
    def perms(self):
        return {
            0: [[0, 1, 2, 3, 4, 5, 6]],
            1: [[0, 1, 2, 3, 4, 5, 6], [1, 2, 0, 4, 5, 3, 6], [2, 0, 1, 5, 3, 4, 6]],
            2: [[0, 1, 2, 3, 4, 5, 6], [1, 0, 3, 2, 5, 4, 6]],
            3: [[0, 1, 2, 3, 4, 5, 6], [1, 0, 4, 5, 6, 2, 3], [0, 1, 6, 2, 3, 4, 5]],
            4: [[0, 1, 2, 3, 4, 5, 6], [1, 2, 0, 4, 6, 3, 5], [2, 0, 1, 5, 6, 3, 4]],
            5: [[0, 1, 2, 3, 4, 5, 6], [1, 2, 3, 0, 5, 6, 4], [2, 3, 0, 1, 6, 4, 5], [3, 0, 1, 2, 4, 5, 6]],
        }[self.perm]

WSOFF = [0]
def srd(a, d, ptr, nbytes):
    if ptr == P_WS and WSOFF[0]:
        a(f"s_add_u32 s{ptr}, s{ptr}, {WSOFF[0]:#x}")
        a(f"s_addc_u32 s{ptr+1}, s{ptr+1}, 0")
    a(f"s_mov_b32 s{d}, s{ptr}")
    a(f"s_and_b32 s{d+1}, s{ptr+1}, 0xffff")
    a(f"s_mov_b32 s{d+2}, {nbytes:#x}")
    a(f"s_mov_b32 s{d+3}, 0x20000")

def srd_sel(a, d, ptr1, ptr0, nbytes):
    a(f"s_cselect_b32 s{d}, s{ptr1}, s{ptr0}")
    a(f"s_cselect_b32 s{d+1}, s{ptr1+1}, s{ptr0+1}")
    a(f"s_and_b32 s{d+1}, s{d+1}, 0xffff")
    a(f"s_mov_b32 s{d+2}, {nbytes:#x}")
    a(f"s_mov_b32 s{d+3}, 0x20000")

class TS:
    def __init__(self, a, cfg):
        self.a, self.on, self.n, self.set = a, cfg.ts, 0, cfg.tsset
        self.cfg = cfg
    def x(self, setno, i):
        if self.on and self.set == setno: self.emit(i)
    def __call__(self, i):
        if self.on and (self.set == 0 or i in (0, 12)): self.emit(i)
    def emit(self, i):
        if self.on == 5 and i not in (0, self.cfg.probe): return
        if self.on:
            assert i < 13
            self.a(f"{'s_memrealtime' if self.on != 2 else 's_memtime'} s[{TS0+2*i}:{TS0+2*i+1}]")
    def init(self):
        if self.on:
            for i in range(1, 13): self.a(f"s_mov_b32 s{TS0+2*i}, 0")
    def dump(self, vt, vt2, who=2):
        if not self.on: return
        a = self.a
        if self.on == 5:
            if who != self.cfg.pwho: return
            lab = a.newlabel("L_probe")
            if self.cfg.ponly >= 0:
                a(f"s_and_b32 s11, s2, {self.cfg.pmask}")
                a(f"s_cmp_lg_u32 s11, {self.cfg.ponly}")
                a(f"s_cbranch_scc1 {lab}_x")
            p = TS0 + 2 * self.cfg.probe
            a("s_waitcnt lgkmcnt(0)")
            a(f"s_sub_u32 s11, s{p}, s{TS0}")
            a(f"s_cmp_eq_u32 s{p}, 0")
            a("s_cselect_b32 s11, 0, s11")
            a("s_lshl_b32 s11, s11, 2")
            a("s_add_u32 s11, s11, 3000")
            a.label(lab)
            a("s_memrealtime s[12:13]")
            a("s_waitcnt lgkmcnt(0)")
            a(f"s_sub_u32 s12, s12, s{TS0}")
            a("s_cmp_lt_u32 s12, s11")
            a(f"s_cbranch_scc1 {lab}")
            a.label(lab + "_x")
            return
        if self.on == 3:
            a("s_waitcnt vmcnt(0) lgkmcnt(0)")
            lab = a.newlabel("L_nod")
            a(f"s_cmp_eq_u32 s{TS0+24}, 0")
            a(f"s_cbranch_scc1 {lab}")
            a(f"s_cmp_lg_u32 s{S_WAVE}, 0")
            a(f"s_cbranch_scc1 {lab}")
            a("s_mov_b64 exec, 1")
            a(f"v_mov_b32 v{vt2}, 0")
            a(f"s_not_b32 s11, s{TS0}")
            a(f"v_mov_b32 v{vt}, s11")
            a(f"global_atomic_umax v{vt2}, v{vt}, s[{P_DBG}:{P_DBG+1}] offset:4 sc1")
            for n, i in enumerate([0, 1, 2, 3, 4, 5, 6, 7, 8, 9, 10, 11, 12]):
                a("s_waitcnt vmcnt(0)")
                a(f"v_mov_b32 v{vt}, s{TS0+2*i}")
                a(f"global_atomic_umax v{vt2}, v{vt}, s[{P_DBG}:{P_DBG+1}] offset:{8+4*n} sc1")
            a("s_waitcnt vmcnt(0)")
            a.label(lab)
            return
        a("s_waitcnt vmcnt(0) lgkmcnt(0)")
        a(f"s_lshl_b32 s11, s2, 9")
        a(f"s_lshl_b32 s12, s{S_WAVE}, 6")
        a("s_add_u32 s11, s11, s12")
        a(f"s_add_u32 s11, s11, {WS_TS:#x}")
        a(f"v_mov_b32 v{vt2}, s11")
        for i in range(13):
            a(f"v_mov_b32 v{vt}, s{TS0+2*i}")
            a(f"buffer_store_dword v{vt}, v{vt2}, s[{SRD_WS}:{SRD_WS+3}], 0 offen offset:{4*i}")
        a("s_waitcnt vmcnt(0)")

def round_bf16(a, dst, src):
    a(f"v_cvt_pk_bf16_f32 v{dst}, v{src}, v{src}")
    a(f"v_lshlrev_b32 v{dst}, 16, v{dst}")

def exp_acc(a, dst, x, t0, t1):
    a(f"s_mov_b32 s36, {LOG2E:#x}")
    a(f"s_mov_b32 s37, {LOG2E_LO:#x}")
    a(f"v_mul_f32 v{t0}, s36, v{x}")
    a(f"v_fma_f32 v{t1}, v{x}, s36, -v{t0}")
    a(f"v_fma_f32 v{t1}, v{x}, s37, v{t1}")
    a(f"v_mul_f32 v{t1}, {LN2:#x}, v{t1}")
    a(f"v_exp_f32 v{dst}, v{t0}")
    a(f"v_fma_f32 v{dst}, v{dst}, v{t1}, v{dst}")

def csq(a, dr, di, sr, si, t):
    a(f"v_mul_f32 v{t}, v{si}, v{si}")
    a(f"v_add_f32 v{di}, v{si}, v{si}")
    a(f"v_mul_f32 v{di}, v{di}, v{sr}")
    a(f"v_fma_f32 v{dr}, v{sr}, v{sr}, -v{t}")

def cmul(a, dr, di, ar, ai, br, bi):
    a(f"v_mul_f32 v{dr}, v{ar}, v{br}")
    a(f"v_mul_f32 v{di}, v{ar}, v{bi}")
    a(f"v_fma_f32 v{dr}, -v{ai}, v{bi}, v{dr}")
    a(f"v_fma_f32 v{di}, v{ai}, v{br}, v{di}")

def ssm_const_load(a, vm, t):
    a(f"v_and_b32 v{t+3}, 15, v0")
    a(f"s_lshl_b32 s11, s{S_NS}, 4")
    a(f"v_add_lshl_u32 v{t+3}, v{t+3}, s11, 1")
    vm.issue('sc', f"global_load_ushort v{t}, v{t+3}, s[{P_LRE}:{P_LRE+1}]")
    vm.issue('sc', f"global_load_ushort v{t+1}, v{t+3}, s[{P_LIM}:{P_LIM+1}]")
    vm.issue('sc', f"global_load_ushort v{t+2}, v{t+3}, s[{P_LDT}:{P_LDT+1}]")

def ssm_const_calc(a, t, lr, li, cr=None, ci=None):
    for k in range(3): a(f"v_lshlrev_b32 v{t+k}, 16, v{t+k}")
    exp_acc(a, t + 3, t + 2, t + 4, t + 5)
    round_bf16(a, t + 2, t + 3)
    a(f"v_mul_f32 v{t+3}, v{t+2}, v{t}")
    a(f"v_mul_f32 v{t+6}, v{t+2}, v{t+1}")
    exp_acc(a, t + 7, t + 3, t + 4, t + 5)
    a(f"v_mul_f32 v{t+6}, {INV2PI:#x}, v{t+6}")
    a(f"v_rndne_f32 v{t+4}, v{t+6}")
    a(f"v_sub_f32 v{t+6}, v{t+6}, v{t+4}")
    a(f"v_cos_f32 v{t+4}, v{t+6}")
    a(f"v_sin_f32 v{t+5}, v{t+6}")
    a(f"v_mul_f32 v{lr}, v{t+7}, v{t+4}")
    a(f"v_mul_f32 v{li}, v{t+7}, v{t+5}")
    if cr is not None:
        a(f"v_add_f32 v{t+3}, -1.0, v{lr}")
        a(f"v_mul_f32 v{t+4}, v{t}, v{t}")
        a(f"v_fma_f32 v{t+4}, v{t+1}, v{t+1}, v{t+4}")
        a(f"v_rcp_f32 v{t+4}, v{t+4}")
        a(f"v_mul_f32 v{cr}, v{t+3}, v{t}")
        a(f"v_fma_f32 v{cr}, v{li}, v{t+1}, v{cr}")
        a(f"v_mul_f32 v{ci}, v{li}, v{t}")
        a(f"v_fma_f32 v{ci}, -v{t+3}, v{t+1}, v{ci}")
        a(f"v_add_f32 v{t+4}, v{t+4}, v{t+4}")
        a(f"v_mul_f32 v{cr}, v{cr}, v{t+4}")
        a(f"v_mul_f32 v{ci}, v{ci}, v{t+4}")

def gen_entry(a, cfg, ts):
    a("s_cmp_ge_u32 s2, 256")
    a("s_cbranch_scc1 L_exit")
    if cfg.padto: a("s_memrealtime s[100:101]")
    ts(0)
    a("s_load_dwordx16 s[16:31], s[0:1], 0")
    a("s_load_dwordx16 s[32:47], s[0:1], 64")
    a("v_lshrrev_b32 v1, 6, v0")
    a("v_and_b32 v0, 63, v0")
    a(f"v_readfirstlane_b32 s{S_WAVE}, v1")
    a(f"s_and_b32 s{S_XCD}, s2, 7")
    a(f"s_lshr_b32 s{S_SLOT}, s2, 3")
    if cfg.cpf == 2:
        a(f"s_cmp_lg_u32 s{S_WAVE}, 0")
        a("s_cbranch_scc1 L_nocpf")
        a("s_getpc_b64 s[12:13]")
        a.label("L_pc0")
        a(f"s_sub_u32 s12, s12, L_pc0-{KNAME}")
        a("s_subb_u32 s13, s13, 0")
        a(f"s_lshl_b32 s11, s{S_SLOT}, 10")
        a("v_lshl_add_u32 v38, v0, 4, s11")
        a(f"v_min_u32 v38, L_exit-{KNAME}, v38")
        a("global_load_dword v39, v38, s[12:13]")
        a.label("L_nocpf")
    a(f"s_and_b32 s11, s{S_SLOT}, 3")
    a(f"s_lshr_b32 s{S_NT}, s{S_SLOT}, 2")
    a(f"s_and_b32 s12, s{S_XCD}, 1")
    a(f"s_lshl_b32 s12, s12, 2")
    a(f"s_add_u32 s{S_MT}, s12, s11")
    a(f"s_lshr_b32 s12, s{S_XCD}, 1")
    a(f"s_mul_i32 s12, s12, 7")
    a(f"s_add_u32 s{S_NS}, s12, s{S_NT}")
    if cfg.slab:
        a(f"s_mov_b32 s{S_MT}, s{S_XCD}")
        a(f"s_mov_b32 s{S_NS}, s{S_SLOT}")
    if cfg.loc:
        a(f"s_and_b32 s12, s{S_XCD}, 1")
        a("s_lshl_b32 s12, s12, 2")
        a(f"s_lshr_b32 s13, s{S_XCD}, 1")
        a("s_add_u32 s12, s12, s13")
        a("s_lshl_b32 s12, s12, 2")
    else:
        a(f"s_lshl_b32 s12, s{S_XCD}, 2")
    a(f"s_add_u32 s{S_M64}, s12, s11")
    a(f"s_and_b32 s{S_W4}, s{S_WAVE}, 3")
    ts.init()
    a(f"s_cmp_ge_u32 s{S_SLOT}, 28")
    a("s_cbranch_scc1 L_helper")
    a(f"s_cmp_lt_u32 s{S_WAVE}, 4")
    a("s_cbranch_scc1 L_consumer")

def gen_helper(a, cfg, ts):
    a.label("L_helper")
    vm = VM(a)
    a(f"s_sub_u32 s73, s{S_SLOT}, 28")
    a(f"s_lshl_b32 s11, s73, 3")
    a(f"s_add_u32 s72, s11, s{S_XCD}")
    if cfg.loc: a(f"s_mov_b32 s72, s{S_M64}")
    a(f"s_cmp_ge_u32 s{S_WAVE}, 4")
    a("s_cbranch_scc1 L_h_pf")
    a(f"s_lshl_b32 s11, s72, 6")
    a(f"s_lshl_b32 s12, s{S_WAVE}, 4")
    a(f"s_add_u32 s11, s11, s12")
    a("v_lshrrev_b32 v2, 3, v0")
    a("v_add_u32 v2, s11, v2")
    a("v_mul_u32_u24 v3, 896, v2")
    a("v_and_b32 v4, 7, v0")
    a("v_lshl_add_u32 v3, v4, 4, v3")
    a("s_waitcnt lgkmcnt(0)")
    srd(a, SRD_X, P_X, 2048 * 896)
    srd(a, SRD_WS, P_WS, WS_SIZE)
    a(f"s_mov_b32 s11, {8*896}")
    for ps in range(2):
        for j in range(7):
            so = "0" if ps == 0 else "s11"
            vm.issue(('x', ps), f"buffer_load_dwordx4 v[{112+28*ps+4*j}:{115+28*ps+4*j}], v3, s[{SRD_X}:{SRD_X+3}], {so} offen offset:{128*j}")
    a(f"s_cmp_gt_u32 s{S_WAVE}, 1")
    a("s_cbranch_scc1 L_h_noreset")
    a(f"s_cmp_eq_u32 s{S_WAVE}, 0")
    a("s_cselect_b32 s11, -1, 0")
    a("s_mov_b32 s12, 1024")
    a("s_cmov_b32 s12, 896")
    a(f"s_mov_b32 s13, {WS_FLAG:#x}")
    a(f"s_cmov_b32 s13, {WS_AGG:#x}")
    a("s_mul_i32 s14, s12, s72")
    a("s_add_u32 s13, s13, s14")
    for k in range(4): a(f"v_mov_b32 v{8+k}, s11")
    a("v_lshlrev_b32 v12, 4, v0")
    a("v_cmp_gt_u32 vcc, s12, v12")
    a("s_and_saveexec_b64 s[14:15], vcc")
    a(f"buffer_store_dwordx4 v[8:11], v12, s[{SRD_WS}:{SRD_WS+3}], s13 offen sc1")
    a("s_mov_b64 exec, s[14:15]")
    a.label("L_h_noreset")
    a("s_nop 1")
    a("v_lshlrev_b32 v2, 3, v2")
    a("s_mov_b32 s12, 0xffff0000")
    def fin(dst):
        a("v_add_f32 v8, v8, v9")
        a("v_add_f32 v10, v10, v11")
        a(f"v_add_f32 v{dst}, v8, v10")
        a(f"v_add_f32_dpp v{dst}, v{dst}, v{dst} quad_perm:[1,0,3,2] row_mask:0xf bank_mask:0xf")
        a(f"v_add_f32_dpp v{dst}, v{dst}, v{dst} quad_perm:[2,3,0,1] row_mask:0xf bank_mask:0xf")
        a(f"v_add_f32_dpp v{dst}, v{dst}, v{dst} row_half_mirror row_mask:0xf bank_mask:0xf")
        a(f"v_mul_f32 v{dst}, 0x3b124925, v{dst}")
    for ps in range(2):
        vm.wait(('x', ps))
        if cfg.hdelay == 2 + ps: a("s_barrier")
        src = 112 + 28 * ps
        for k in range(28):
            a(f"v_lshlrev_b32 v{48+2*k}, 16, v{src+k}")
            a(f"v_and_b32 v{49+2*k}, s12, v{src+k}")
        a("v_pk_add_f32 v[8:9], v[48:49], v[52:53]")
        a("v_pk_add_f32 v[10:11], v[50:51], v[54:55]")
        for k in range(4, 28): a(f"v_pk_add_f32 v[{8+2*(k%2)}:{9+2*(k%2)}], v[{8+2*(k%2)}:{9+2*(k%2)}], v[{48+2*k}:{49+2*k}]")
        fin(12)
        for k in range(28): a(f"v_pk_add_f32 v[{48+2*k}:{49+2*k}], v[{48+2*k}:{49+2*k}], v[12:13] op_sel_hi:[1,0] neg_lo:[0,1] neg_hi:[0,1]")
        for k in range(2): a(f"v_pk_mul_f32 v[{8+2*k}:{9+2*k}], v[{48+2*k}:{49+2*k}], v[{48+2*k}:{49+2*k}]")
        for k in range(2, 28): a(f"v_pk_fma_f32 v[{8+2*(k%2)}:{9+2*(k%2)}], v[{48+2*k}:{49+2*k}], v[{48+2*k}:{49+2*k}], v[{8+2*(k%2)}:{9+2*(k%2)}]")
        fin(13)
        o = 14 + 2 * ps
        round_bf16(a, o, 12)
        round_bf16(a, 13, 13)
        a("v_add_f32 v13, 0x3727c5ac, v13")
        round_bf16(a, 13, 13)
        a("v_sqrt_f32 v13, v13")
        round_bf16(a, 13, 13)
        a(f"v_rcp_f32 v{o+1}, v13")
        a("v_cmp_eq_u32 vcc, 0, v4")
        a("s_and_saveexec_b64 s[14:15], vcc")
        a(f"s_mov_b32 s11, {WS_STATS:#x}")
        vm.issue('st', f"buffer_store_dwordx2 v[{o}:{o+1}], v2, s[{SRD_WS}:{SRD_WS+3}], s11 offen offset:{64*ps} sc1")
        a("s_mov_b64 exec, s[14:15]")
    a("s_waitcnt vmcnt(0)")
    a("v_mov_b32 v8, 0")
    a("v_mov_b32 v9, 1")
    a("s_mov_b64 exec, 1")
    a(f"global_atomic_add v8, v9, s[{P_DBG}:{P_DBG+1}] sc1")
    a("s_mov_b64 exec, -1")
    ts(1)
    ts.dump(8, 9)
    a("s_endpgm")
    a.label("L_h_pf")
    a("v_lshlrev_b32 v2, 4, v0")
    a(f"s_lshl_b32 s11, s{S_W4}, 10")
    a("v_add_u32 v2, s11, v2")
    if cfg.cpf == 1:
        a("s_getpc_b64 s[60:61]")
        a.label("L_pc")
        a(f"s_sub_u32 s60, s60, L_pc-{KNAME}")
        a("s_subb_u32 s61, s61, 0")
        a("s_lshl_b32 s11, s73, 12")
        a("v_add_u32 v3, s11, v2")
        for k in range(2):
            a(f"v_min_u32 v4, L_exit-{KNAME}-12, v3")
            a(f"global_load_dwordx4 v[24:27], v4, s[60:61]")
            a(f"v_add_u32 v3, 16384, v3")
    a("s_waitcnt lgkmcnt(0)")
    if cfg.hdelay == 1: a("s_waitcnt vmcnt(0)")
    if cfg.hdelay >= 2: a("s_barrier")
    srd(a, SRD_WS, P_WS, WS_SIZE)
    a("s_lshl_b32 s60, s72, 2")
    a(f"s_add_u32 s60, s60, s{S_W4}")
    a("s_cmp_ge_u32 s60, 98")
    a("s_cbranch_scc1 L_h_nopack1")
    a("s_mul_i32 s61, s60, 37")
    a("s_lshr_b32 s61, s61, 8")
    a("s_mul_i32 s62, s61, 7")
    a("s_sub_u32 s62, s60, s62")
    a("s_cmp_lt_i32 s62, 0")
    a("s_cselect_b32 s11, 1, 0")
    a("s_sub_u32 s61, s61, s11")
    a("s_mul_i32 s62, s61, 7")
    a("s_sub_u32 s62, s60, s62")
    a("s_bitcmp1_b32 s61, 0")
    srd_sel(a, 68, P_CIM, P_CRE, 448 * 896)
    a("v_lshrrev_b32 v3, 3, v0")
    a("v_and_b32 v4, 7, v0")
    a("v_lshrrev_b32 v5, 1, v3")
    a("v_xor_b32 v4, v4, v5")
    a("s_lshr_b32 s11, s61, 1")
    a("s_lshl_b32 s11, s11, 6")
    a("v_add_u32 v3, s11, v3")
    a("v_mul_u32_u24 v3, 896, v3")
    a("v_lshl_add_u32 v3, v4, 4, v3")
    a("v_xor_b32 v4, 64, v3")
    a(f"s_lshl_b32 s63, s{S_W4}, 13")
    a("s_lshl_b32 s12, s62, 7")
    for n in range(8):
        a(f"s_add_u32 m0, s63, {n*1024}")
        a(f"s_add_u32 s11, s12, {8*n*896}")
        a(f"buffer_load_dwordx4 v{3 + (n & 1)}, s[68:71], s11 offen lds")
    a.label("L_h_nopack1")
    def h_sweep():
        if cfg.hpf:
            for (ptr, nbytes, srdn) in ((P_WD, 1792 * 896, 56),):
                srd(a, srdn, ptr, nbytes)
            def sweep(name, srds, qbytes, first, count):
                n8 = -(-qbytes // (8 * 4096))
                n = 8 * n8
                a(f"s_mul_i32 s12, s73, {qbytes}")
                a(f"s_add_u32 s13, s{S_XCD}, {first}")
                a("s_and_b32 s13, s13, 7")
                a(f"s_mul_i32 s13, s13, {n8}")
                a("s_mov_b32 s14, 0")
                a.label(name)
                a("s_lshl_b32 s11, s13, 12")
                a("s_add_u32 s11, s11, s12")
                for k, sr in enumerate(srds):
                    a(f"buffer_load_dwordx4 v[{16+4*k}:{19+4*k}], v2, s[{sr}:{sr+3}], s11 offen")
                a("s_add_u32 s13, s13, 1")
                a(f"s_cmp_eq_u32 s13, {n}")
                a("s_cselect_b32 s13, 0, s13")
                a("s_add_u32 s14, s14, 1")
                a(f"s_cmp_lt_u32 s14, {n8 * count}")
                a(f"s_cbranch_scc1 {name}")
            sweep("L_h_p2", [56], 1792 * 896 // 4, 0, 1)
            ts(2)
    def h_pack():
        a("s_cmp_ge_u32 s60, 98")
        a("s_cbranch_scc1 L_h_nopack2")
        a("v_and_b32 v5, 31, v0")
        a("v_lshrrev_b32 v6, 5, v0")
        a("v_bfe_u32 v7, v0, 1, 3")
        a("v_xor_b32 v7, v7, v6")
        a("v_lshlrev_b32 v7, 4, v7")
        a("v_lshl_add_u32 v5, v5, 7, v7")
        a("v_add_u32 v5, s63, v5")
        a("v_lshlrev_b32 v6, 4, v0")
        a("s_mul_i32 s12, s61, 28")
        a("s_lshl_b32 s11, s62, 2")
        a("s_add_u32 s12, s12, s11")
        a("s_lshl_b32 s12, s12, 11")
        a(f"s_add_u32 s12, s12, {WS_CP:#x}")
        a(f"s_waitcnt vmcnt({13 if (cfg.hpf and not cfg.hord) else 0})")
        for ks in range(4):
            a(f"v_xor_b32 v7, {32*ks}, v5")
            for ct in range(2):
                d = 32 + 8 * ks + 4 * ct
                a(f"ds_read_b128 v[{d}:{d+3}], v7 offset:{4096*ct}")
        for ks in range(4):
            a(f"s_waitcnt lgkmcnt({6 - 2*ks})")
            a(f"s_add_u32 s11, s12, {2048*ks}")
            for ct in range(2):
                d = 32 + 8 * ks + 4 * ct
                a(f"buffer_store_dwordx4 v[{d}:{d+3}], v6, s[{SRD_WS}:{SRD_WS+3}], s11 offen offset:{1024*ct} sc1")
        a("s_waitcnt vmcnt(0)")
        a("v_mov_b32 v8, 0")
        a("v_mov_b32 v9, 1")
        a("s_mov_b64 exec, 1")
        a(f"global_atomic_add v8, v9, s[{P_DBG}:{P_DBG+1}] sc1")
        a("s_mov_b64 exec, -1")
        ts(3)
        a.label("L_h_nopack2")
    if cfg.hord: h_pack(); h_sweep()
    else: h_sweep(); h_pack()
    ts.dump(8, 9)
    a("s_endpgm")

def spin_check(a, name, load_text_list, cond_fn, sleep=1):
    lo, done = a.newlabel(name + "_spin"), a.newlabel(name + "_ok")
    a(f"s_mov_b32 s73, 0")
    a.label(lo)
    cond_fn()
    a(f"s_cbranch_scc1 {done}")
    a("s_add_u32 s73, s73, 1")
    a(f"s_cmp_ge_u32 s73, {SPIN_MAX}")
    a(f"s_cbranch_scc1 {done}")
    a(f"s_sleep {sleep}")
    for t in load_text_list: a(t)
    a("s_waitcnt vmcnt(0)")
    a(f"s_branch {lo}")
    a.label(done)
    a("s_nop 4")

def sspin(a, name, loads, cond_fn, sleep=1):
    lo, done = a.newlabel(name + "_spin"), a.newlabel(name + "_ok")
    a("s_mov_b32 s73, 0")
    a.label(lo)
    for t in loads: a(t)
    a("s_waitcnt lgkmcnt(0)")
    cond_fn()
    a(f"s_cbranch_scc1 {done}")
    a("s_add_u32 s73, s73, 1")
    a(f"s_cmp_lt_u32 s73, {SPIN_MAX}")
    if sleep: a(f"s_sleep {sleep}")
    a(f"s_cbranch_scc1 {lo}")
    a.label(done)

def flag_index(a, d, t, grp):
    a(f"s_mul_i32 s{t}, s{S_NS}, 37")
    a(f"s_lshr_b32 s{t}, s{t}, {8 if grp == 7 else 9}")
    a(f"s_mul_i32 s{t}, s{t}, {32 - grp}")
    a(f"s_add_u32 s{d}, s{t}, s{S_NS}")
    a(f"s_lshl_b32 s{d}, s{d}, 2")

def interleave(a, prim, fill, per):
    fill = list(fill)
    for p in prim:
        p()
        for _ in range(per):
            if fill: a(fill.pop(0))
    for f in fill: a(f)

def p2_rot(a, cfg, d_ffn, d_blk, d_flip):
    if not cfg.rot:
        for d in (d_ffn, d_blk, d_flip): a(f"s_mov_b32 s{d}, 0")
        return
    tab = {2: [0] * 7, 1: list(range(7)), 3: [0, 3, 0, 3, 0, 3, 0], 4: [0, 2, 5, 0, 2, 5, 0], 5: [0, 4, 2, 5, 0, 4, 2], 6: [0, 1, 0, 1, 0, 1, 0], 7: [0, 2, 0, 2, 0, 2, 0]}[cfg.rot]
    word = sum(v << (4 * k) for k, v in enumerate(tab))
    a(f"s_lshl_b32 s11, s{S_NT}, 2")
    a(f"s_lshr_b32 s13, {word:#x}, s11")
    a("s_and_b32 s13, s13, 15")
    a(f"s_and_b32 s11, s{S_SLOT}, 3")
    a("s_lshl_b32 s11, s11, 1")
    a("s_add_u32 s11, s11, s13")
    a("s_cmp_ge_u32 s11, 7")
    a("s_cselect_b32 s13, 7, 0")
    a(f"s_sub_u32 s{d_ffn}, s11, s13")
    for d in (d_blk, d_flip): a(f"s_mov_b32 s{d}, 0")

def slot(reg, n): return R[reg] + 2048 * n
SA = [slot(1, n) for n in range(6)]; SB = [slot(2, n) for n in range(6)]; SC = [slot(0, n) for n in range(6)]
WSLOT = {}
for n in range(6): WSLOT[n] = SA[n]; WSLOT[6 + n] = SB[n]
for n in range(4): WSLOT[12 + n] = SC[n]; WSLOT[16 + n] = SA[n]; WSLOT[20 + n] = SB[n]
WSLOT.update({24: SA[4], 25: SA[5], 26: SB[4], 27: SB[5]})
HTS = SC[4]
PH1, PH2, GA, FXA, SD = SC[0], SC[4], SB[0], SA[0], SC[0]

class Rec:
    def __init__(self): self.L = []
    def __call__(self, t): self.L.append(t)

def ssm_park(kc, K, KP, sQ):
    LR, LI, CR, CI, L16R, L16I, PWR, PWI, L64R, L64I, LWR, LWI, W0R = [KP + k for k in range(13)]
    vTW, vTR, vCB = KP + 16, KP + 17, KP + 18
    ssm_const_calc(kc, K, LR, LI, CR, CI)
    csq(kc, L16R, L16I, LR, LI, K)
    for _ in range(3): csq(kc, L16R, L16I, L16R, L16I, K)
    def powsel(dr, di, br, bi, bit, src):
        cmul(kc, K + 1, K + 2, dr, di, br, bi)
        kc(f"v_and_b32 v{K}, {bit}, v{src}")
        kc(f"v_cmp_ne_u32 vcc, 0, v{K}")
        kc(f"v_cndmask_b32 v{dr}, v{dr}, v{K+1}, vcc")
        kc(f"v_cndmask_b32 v{di}, v{di}, v{K+2}, vcc")
    kc(f"v_mov_b32 v{PWR}, v{CR}"); kc(f"v_mov_b32 v{PWI}, v{CI}")
    powsel(PWR, PWI, L16R, L16I, 32, 0)
    csq(kc, K + 14, K + 15, L16R, L16I, K)
    powsel(PWR, PWI, K + 14, K + 15, 16, 0)
    csq(kc, L64R, L64I, K + 14, K + 15, K)
    kc(f"v_mov_b32 v{K+10}, s{S_W4}")
    kc(f"v_mov_b32 v{LWR}, 1.0"); kc(f"v_mov_b32 v{LWI}, 0")
    powsel(LWR, LWI, L64R, L64I, 1, K + 10)
    csq(kc, K + 14, K + 15, L64R, L64I, K)
    powsel(LWR, LWI, K + 14, K + 15, 2, K + 10)
    csq(kc, K + 14, K + 15, K + 14, K + 15, K)
    kc(f"v_lshrrev_b32 v{K+10}, 4, v0")
    kc(f"v_sub_u32 v{K+10}, s{S_MT}, v{K+10}")
    kc(f"v_add_u32 v{K+11}, -5, v{K+10}")
    kc(f"v_add_u32 v{K+10}, -1, v{K+10}")
    kc(f"v_mov_b32 v{W0R}, 1.0"); kc(f"v_mov_b32 v{W0R+1}, 0")
    kc(f"v_mov_b32 v{W0R+2}, 1.0"); kc(f"v_mov_b32 v{W0R+3}, 0")
    for b in range(3):
        powsel(W0R, W0R + 1, K + 14, K + 15, 1 << b, K + 10)
        if b < 2: powsel(W0R + 2, W0R + 3, K + 14, K + 15, 1 << b, K + 11)
        if b < 2: csq(kc, K + 14, K + 15, K + 14, K + 15, K)
    kc(f"s_add_u32 s36, s{sQ}, {HTS}")
    kc(f"v_bfe_u32 v{K}, v0, 4, 1")
    kc(f"v_lshrrev_b32 v{K+1}, 5, v0")
    kc(f"v_lshl_add_u32 v{K+2}, v{K}, 1, v{K+1}")
    kc(f"v_and_b32 v{K+3}, 15, v0")
    kc(f"v_and_b32 v{vTW}, 6, v{K+3}")
    kc(f"v_lshlrev_b32 v{vTW}, 4, v{vTW}")
    kc(f"v_lshlrev_b32 v{K+4}, 5, v{K+2}")
    kc(f"v_xor_b32 v{vTW}, v{vTW}, v{K+4}")
    kc(f"v_lshl_add_u32 v{vTW}, v{K+3}, 7, v{vTW}")
    kc(f"v_add_u32 v{vTW}, s36, v{vTW}")
    kc(f"v_lshlrev_b32 v{vCB}, 2, v{K+3}")
    kc(f"v_add_u32 v{vCB}, {C_L + 512}, v{vCB}")
    kc(f"v_bfe_u32 v{K+4}, v0, 2, 2")
    kc(f"v_lshl_add_u32 v{K+5}, v{K+1}, 3, v{K+4}")
    kc(f"v_lshlrev_b32 v{vTR}, 7, v{K+5}")
    kc(f"v_lshrrev_b32 v{K+4}, 1, v{K+4}")
    kc(f"v_xor_b32 v{K+4}, v{K+4}, v0")
    kc(f"v_and_b32 v{K+4}, 1, v{K+4}")
    kc(f"v_lshl_add_u32 v{vTR}, v{K+4}, 5, v{vTR}")
    kc(f"v_lshl_add_u32 v{vTR}, v{K}, 4, v{vTR}")
    kc(f"v_bfe_u32 v{K+4}, v0, 1, 1")
    kc(f"v_lshl_add_u32 v{vTR}, v{K+4}, 3, v{vTR}")
    kc(f"v_add_u32 v{vTR}, s36, v{vTR}")
    kc(f"s_lshl_b32 s36, s{S_W4}, 9")
    kc(f"s_add_u32 s36, s36, {STATS_L}")
    kc(f"v_lshl_add_u32 v{KP+19}, v{K+2}, 7, s36")
    vStS = KP + 19
    vAg, vPr, vF = KP + 20, KP + 21, KP + 22
    kc(f"v_lshlrev_b32 v{vAg}, 3, v{K+3}")
    kc(f"v_lshrrev_b32 v{vPr}, 4, v0")
    kc(f"v_mul_u32_u24 v{vPr}, 3584, v{vPr}")
    kc(f"s_lshl_b32 s36, s{S_NS}, 7")
    kc(f"v_add3_u32 v{vPr}, v{vPr}, v{vAg}, s36")
    kc(f"v_add_u32 v{vAg}, {AGG_L}, v{vAg}")
    kc(f"s_lshl_b32 s36, s{S_MT}, 2")
    kc(f"s_add_u32 s36, s36, s{S_W4}")
    kc("s_lshl_b32 s36, s36, 10")
    flag_index(kc, 37, 38, 14)
    kc("s_add_u32 s36, s36, s37")
    kc(f"s_add_u32 s36, s36, {WS_FLAG + 512:#x}")
    kc(f"v_mov_b32 v{vF}, s36")

def gen_loader(a, cfg, ts):
    a.label("L_loader")
    a("s_setprio 3")
    vm = VM(a)
    vXe, vXo, vW, vB = 1, 2, 3, 4
    vFv, vP, vO, vPQ = 5, 6, 7, 8
    vWd, vCe, vCo, vCh = 9, 10, 11, 12
    vRf, vRh = 13, 14
    vA, vC = 24, 25
    vT = 15
    ACC, CA, RD = 27, 28, 44
    STG = 64
    CF = 144
    SACC = 80
    XRAW = CF + 64
    KP = XRAW + 8
    sGrp = [28, 29, 30, 31, 36, 37, 21]
    SP = ['', ' sc1'][cfg.spol]
    sMX, sMW, sMB, sMP = 72, 74, 75, 70
    sPerm, sSX, sSW = 68, 69, 15
    sRF = 14
    AP = ['', ' sc1', ' sc1 nt', ' sc0 sc1', ' sc0', ' nt'][cfg.apol]
    OP = ['', ' sc1', ' nt', ' sc1 nt'][cfg.opol]
    polx = " nt" if cfg.polx else ""
    polw = " nt" if cfg.polw else ""
    a(f"v_lshrrev_b32 v{vA}, 3, v0")
    a(f"v_and_b32 v{vC}, 7, v0")
    a(f"v_lshrrev_b32 v{vT+2}, 1, v{vA}")
    a(f"s_lshl_b32 s11, s{S_W4}, 4")
    a(f"v_add_u32 v{vT}, s11, v{vA}")
    a(f"v_mul_u32_u24 v{vW}, 3584, v{vT}")
    a(f"v_and_b32 v{vT+4}, 1, v{vT+2}")
    a(f"v_lshlrev_b32 v{vT+4}, 2, v{vT+4}")
    a(f"v_xor_b32 v{vT+4}, v{vC}, v{vT+4}")
    a(f"v_lshl_add_u32 v{vW}, v{vT+4}, 4, v{vW}")
    a(f"s_lshl_b32 s11, s{S_NS}, 7")
    a(f"v_add_u32 v{vW}, s11, v{vW}")
    a(f"s_lshl_b32 s11, s{S_MT}, 8")
    a(f"s_lshl_b32 s12, s{S_W4}, 6")
    a("s_add_u32 s11, s11, s12")
    a(f"v_lshrrev_b32 v{vT}, 2, v{vA}")
    a(f"v_and_b32 v{vT+1}, 3, v{vA}")
    a(f"v_lshl_add_u32 v{vT}, v{vT}, 4, v{vT+1}")
    a(f"v_add_u32 v{vT}, s11, v{vT}")
    a(f"v_mul_u32_u24 v{vXe}, 896, v{vT}")
    a(f"v_xor_b32 v{vT+3}, v{vC}, v{vT+2}")
    a(f"v_lshl_add_u32 v{vXe}, v{vT+3}, 4, v{vXe}")
    a(f"v_xor_b32 v{vXo}, 64, v{vXe}")
    a(f"s_and_b32 s12, s{S_W4}, 1")
    a(f"s_lshl_b32 s11, s{S_NS}, 4")
    a(f"s_lshl_b32 s13, s12, 3")
    a("s_add_u32 s11, s11, s13")
    a(f"v_add_u32 v{vT}, s11, v{vA}")
    a(f"v_mul_u32_u24 v{vB}, 896, v{vT}")
    a(f"v_lshl_add_u32 v{vB}, v{vT+3}, 4, v{vB}")
    a("s_lshl_b32 s13, s12, 6")
    a(f"v_xor_b32 v{vB}, s13, v{vB}")
    a(f"s_lshl_b32 s{sMX}, s{S_W4}, 13")
    a(f"s_lshl_b32 s{sMW}, s{S_W4}, 11")
    a(f"s_lshl_b32 s{sMB}, s{S_W4}, 10")
    a(f"s_mul_i32 s{sMP}, s{S_W4}, {Q}")
    perms = cfg.perms
    words = [sum(p[k] << (4 * k) for k in range(7)) for p in perms]
    ng = len(words)
    a(f"s_mov_b32 s{sPerm}, {words[0]:#x}")
    if ng > 1:
        if cfg.slab:
            a(f"s_add_u32 s11, s{S_SLOT}, s{S_XCD}")
        else:
            a(f"s_and_b32 s11, s{S_SLOT}, 3")
            a(f"s_add_u32 s11, s11, s{S_NT}")
        if ng == 3:
            a("s_mul_i32 s13, s11, 43")
            a("s_lshr_b32 s13, s13, 7")
            a("s_mul_i32 s13, s13, 3")
            a("s_sub_u32 s11, s11, s13")
        else:
            a(f"s_and_b32 s11, s11, {ng-1}")
        for g in range(1, ng):
            a(f"s_cmp_eq_u32 s11, {g}")
            a(f"s_cmov_b32 s{sPerm}, {words[g]:#x}")
    ts.x(1, 1)
    a("s_waitcnt lgkmcnt(0)")
    ts.x(1, 2)
    if cfg.tlb:
        a(f"v_mov_b32 v40, s{P_X}")
        a(f"v_mov_b32 v41, s{P_X+1}")
        for ln, p in enumerate([P_WG, P_WU, P_BRE, P_BIM, P_WD, P_CRE, P_CIM, P_WS][:cfg.tlb], 1):
            a(f"v_writelane_b32 v40, s{p}, {ln}")
            a(f"v_writelane_b32 v41, s{p+1}, {ln}")
        a(f"s_mov_b64 exec, {(1 << (cfg.tlb + 1)) - 1:#x}")
        a("global_load_dword v62, v[40:41], off")
        a("s_mov_b64 exec, -1")
    srd(a, SRD_A, P_WG, 448 * 3584)
    srd(a, SRD_X, P_X, 2048 * 896)
    srd(a, SRD_B, P_WU, 448 * 3584)
    a(f"s_cmp_ge_u32 s{S_W4}, 2")
    srd_sel(a, SRD_C, P_BIM, P_BRE, 448 * 896)

    thr = [None]
    def dma(vm, tag, voff, srdn, sbase, soff, m0base, m0off, pol=""):
        a(f"s_add_u32 m0, s{m0base}, {m0off}")
        a(f"s_add_u32 s11, s{sbase}, {soff}")
        if thr[0] is not None and len(vm.q) > thr[0]:
            a(f"s_waitcnt vmcnt({thr[0]})")
            vm.q = vm.q[-thr[0]:]
        vm.issue(tag, f"buffer_load_dwordx4 v{voff}, s[{srdn}:{srdn+3}], s11 offen{pol} lds")
    def issue_ops(s):
        r = R[s % 3]
        ops = []
        def pre():
            a(f"s_bfe_u32 s{sSX}, s{sPerm}, {(4 << 16) | (4 * s):#x}")
            a(f"s_mul_i32 s{sSW}, s{sSX}, {64*3584}")
            a(f"s_lshl_b32 s{sSX}, s{sSX}, 7")
        def mk(*args): return lambda: dma(vm, ('st', s), *args)
        L = []
        for i in range(2): L.append(mk(vW, SRD_A, sSW, i * 8 * 3584, sMW, r + OFF_WG + i * 1024, polw))
        for j in range(4): L.append(mk(vXo if j & 1 else vXe, SRD_X, sSX, (32 * (j >> 2) + 4 * (j & 3)) * 896, sMX, r + j * 1024, polx))
        for i in range(2): L.append(mk(vW, SRD_B, sSW, i * 8 * 3584, sMW, r + OFF_WU + i * 1024, polw))
        for j in range(4, 8): L.append(mk(vXo if j & 1 else vXe, SRD_X, sSX, (32 * (j >> 2) + 4 * (j & 3)) * 896, sMX, r + j * 1024, polx))
        L.append(mk(vB, SRD_C, sSX, 0, sMB, r + OFF_BB, polw))
        first = L[0]
        L[0] = lambda: (pre(), first())
        return L
    SRD_WD, SRD_CC, sBlk, sFlip, P_DSK2 = 32, 24, 16, 17, 38
    def w_ops(ps):
        L = []
        for p in ps:
            for n in range(2):
                def op(p=p, n=n):
                    if 12 <= p < 22:
                        d = STG + (p - 12) * 8 + 4 * n
                        a(f"s_add_u32 s11, s{sGrp[p//4]}, {((p % 4) * 16 + 8 * n) * 896}")
                        vm.issue(('w', p), f"buffer_load_dwordx4 v[{d}:{d+3}], v{vWd}, s[{SRD_WD}:{SRD_WD+3}], s11 offen")
                    else:
                        dma(vm, ('w', p), vWd, SRD_WD, sGrp[p//4], ((p % 4) * 16 + 8 * n) * 896, sMP, WSLOT[p] + n * 1024)
                L.append(op)
        return L
    sCF, sCH = 16, 17
    def cfrag(p, lc): return CF + 8 * p + 4 * lc
    def c_ops(b):
        L = []
        for p in (range(4 * b, 4 * b + 4) if b < 3 else (12, 13)):
            for lc in range(2):
                def op(p=p, lc=lc):
                    d = cfrag(p, lc)
                    sb, so = (sCF, 2048 * p) if p < 12 else (sCH, 2048 * (p - 12))
                    a(f"s_add_u32 s11, s{sb}, {so}")
                    vm.issue(('c', b), f"buffer_load_dwordx4 v[{d}:{d+3}], v{(vCe, vCo)[lc]}, s[{SRD_WS}:{SRD_WS+3}], s11 offen sc1")
                L.append(op)
        return L
    def w_write(ps):
        vm.wait(('w', ps[-1]))
        base = WSLOT[ps[0]]
        a(f"v_add_u32 v{vT+4}, {base}, v{vPQ}")
        for p in ps:
            for n in range(2):
                d = STG + (p - 12) * 8 + 4 * n
                a(f"ds_write_b128 v{vT+4}, v[{d}:{d+3}] offset:{WSLOT[p] - base + 1024*n}")
    def colsum_reads(s):
        r = R[s % 3]
        a(f"s_add_u32 s11, s{sMW}, {r + OFF_WG}")
        a(f"v_add_u32 v{vT}, s11, v{vP}")
        a(f"s_add_u32 s11, s{sMB}, {r + OFF_BB}")
        a(f"v_add_u32 v{vT+1}, s11, v{vP}")
        a(f"ds_read_b128 v[{RD}:{RD+3}], v{vT}")
        a(f"ds_read_b128 v[{RD+4}:{RD+7}], v{vT} offset:1024")
        a(f"ds_read_b128 v[{RD+8}:{RD+11}], v{vT} offset:8192")
        a(f"ds_read_b128 v[{RD+12}:{RD+15}], v{vT} offset:9216")
        a(f"ds_read_b128 v[{RD+16}:{RD+19}], v{vT+1}")
    def colsum_ops():
        L = ["s_waitcnt lgkmcnt(0)"]
        for n in range(4):
            for d in range(4):
                w = RD + 4 * n + d
                ac = CA + (n >> 1) * 8 + 2 * d
                L.append(f"v_lshlrev_b32 v{vT+2}, 16, v{w}")
                L.append(f"v_and_b32 v{vT+3}, s71, v{w}")
                L.append(f"v_add_f32 v{ac}, v{ac}, v{vT+2}")
                L.append(f"v_add_f32 v{ac+1}, v{ac+1}, v{vT+3}")
        for d in range(4):
            w = RD + 16 + d
            L.append(f"v_lshlrev_b32 v{vT+2}, 16, v{w}")
            L.append(f"v_and_b32 v{vT+3}, s71, v{w}")
            L.append(f"v_add_f32 v{vT+2}, v{vT+2}, v{vT+3}")
            L.append(f"v_add_f32 v{ACC}, v{ACC}, v{vT+2}")
        return L

    stage_ops = {}
    cdone = set()
    def tok_ops(toks):
        L = []
        for t in toks:
            if t[0] == 's':
                st = int(t[1])
                if st not in stage_ops: stage_ops[st] = issue_ops(st)
                lo, hi = (0, 13) if ':' not in t else map(int, t.split(':')[1].split('-'))
                L += stage_ops[st][lo:hi]
            elif t[0] == 'w': L += w_ops([int(t[1:])])
            elif t[0] == 'c':
                lo, hi = (0, 8) if ':' not in t else map(int, t.split(':')[1].split('-'))
                L += c_ops(int(t[1]))[lo:hi]
                cdone.add(int(t[1]))
            else: L.append(lambda t=t: special(t))
        return L
    def run_tokens(toks):
        for o in tok_ops(toks): o()
    def special(t):
        if True:
            if t == 'put':
                vm.wait('stats')
                a(f"s_lshl_b32 s11, s{S_W4}, 9")
                a(f"s_add_u32 s11, s11, {STATS_L}")
                a(f"v_lshl_add_u32 v{vT+4}, v0, 3, s11")
                a(f"ds_write_b64 v{vT+4}, v[20:21]")
                a(f"v_lshlrev_b32 v{vT+4}, 3, v0")
                a(f"v_add_u32 v{vT+4}, {ST2_L}, v{vT+4}")
                a(f"ds_write_b64 v{vT+4}, v[22:23]")
            elif t == 'e':
                a(f"s_add_u32 s12, s41, {16*896}")
                vm.issue('e', f"buffer_load_dwordx4 v[{XRAW}:{XRAW+3}], v20, s[{SRD_X}:{SRD_X+3}], s41 offen")
                vm.issue('e', f"buffer_load_dwordx4 v[{XRAW+4}:{XRAW+7}], v20, s[{SRD_X}:{SRD_X+3}], s12 offen")
                vm.issue('e', f"global_load_ushort v{KP+23}, v21, s[{P_DSK2}:{P_DSK2+1}]")
            elif t == 'k':
                a("s_waitcnt lgkmcnt(0)")
            elif t == 'init':
                a(f"v_mov_b32 v26, 0")
                vm.issue('init', f"global_load_dword v5, v26, s[{P_DBG}:{P_DBG+1}] sc1")
            elif t == 'fetch':
                vm.wait('init')
                def cond():
                    a(f"v_readfirstlane_b32 s11, v5")
                    a(f"s_cmp_ge_u32 s11, {INIT_N}")
                spin_check(a, "L_init", [f"global_load_dword v5, v26, s[{P_DBG}:{P_DBG+1}] sc1"], cond, 8)
                a(f"s_lshl_b32 s11, s{S_MT}, 8")
                a(f"s_lshl_b32 s12, s{S_W4}, 6")
                a("s_add_u32 s11, s11, s12")
                a(f"v_add_lshl_u32 v5, v0, s11, 3")
                a(f"s_lshl_b32 s12, s{S_M64}, 6")
                a(f"v_add_lshl_u32 v26, v0, s12, 3")
                a(f"s_mov_b32 s11, {WS_STATS:#x}")
                vm.issue('stats', f"buffer_load_dwordx2 v[20:21], v5, s[{SRD_WS}:{SRD_WS+3}], s11 offen sc1")
                vm.issue('stats', f"buffer_load_dwordx2 v[22:23], v26, s[{SRD_WS}:{SRD_WS+3}], s11 offen sc1")
            else: raise ValueError(t)
    win = cfg.win
    run_tokens(["s0"])
    ts(1)
    ts.x(1, 6)
    run_tokens(win.get(-1, []))
    a("s_setprio 0")
    a(f"s_and_b32 s12, s{S_W4}, 1")
    a(f"v_lshlrev_b32 v{vP}, 4, v0")
    a(f"v_add_u32 v{vPQ}, s{sMP}, v{vP}")
    a(f"s_mul_i32 s14, s{S_W4}, 448")
    a(f"v_add_u32 v{vT}, s14, v{vA}")
    a(f"v_mul_u32_u24 v{vWd}, 896, v{vT}")
    a(f"v_lshl_add_u32 v{vWd}, v{vT+4}, 4, v{vWd}")
    a(f"s_lshl_b32 s14, s{S_NT}, 7")
    a(f"v_add_u32 v{vWd}, s14, v{vWd}")
    a(f"v_and_b32 v{vT+1}, 3, v0")
    a("s_mov_b32 s71, 0xffff0000")
    for k in range(17): a(f"v_mov_b32 v{ACC+k}, 0")
    srd(a, SRD_WS, P_WS, WS_SIZE)
    a(f"s_mov_b64 s[{P_DSK2}:{P_DSK2+1}], s[{P_DSK}:{P_DSK+1}]")
    srd(a, SRD_WD, P_WD, 1792 * 896)
    p2_rot(a, cfg, sRF, sBlk, sFlip)
    a(f"s_lshl_b32 s11, s{S_M64}, 1")
    a("s_add_u32 s40, s11, s12")
    a("s_lshl_b32 s12, s40, 5")
    a(f"v_lshrrev_b32 v{vT}, 2, v0")
    a(f"v_add_u32 v{vT}, s12, v{vT}")
    a(f"v_mul_u32_u24 v{vT}, 896, v{vT}")
    a(f"v_lshl_add_u32 v20, v{vT+1}, 4, v{vT}")
    a(f"v_lshrrev_b32 v{vT+2}, 5, v0")
    a(f"v_lshl_add_u32 v{vT}, v{vT+2}, 4, s12")
    a(f"s_lshr_b32 s13, s{S_W4}, 1")
    a("s_lshl_b32 s12, s13, 5")
    a(f"s_lshl_b32 s11, s{S_NT}, 6")
    a("s_add_u32 s11, s11, s12")
    a("s_lshl_b32 s41, s11, 1")
    a(f"v_and_b32 v{vT+3}, 31, v0")
    a(f"v_add_u32 v{vT+1}, s11, v{vT+3}")
    a(f"v_mul_u32_u24 v{vT}, 448, v{vT}")
    a(f"v_add_lshl_u32 v{vO}, v{vT}, v{vT+1}, 2")
    a(f"v_lshlrev_b32 v21, 1, v{vT+1}")
    a("s_lshl_b32 s12, s13, 10")
    a(f"v_add_u32 v{vCe}, s12, v{vP}")
    a(f"v_xor_b32 v{vCo}, 1024, v{vCe}")
    a(f"s_lshl_b32 s11, s{S_NT}, 1")
    a("s_add_u32 s11, s11, s13")
    a(f"s_mul_i32 s11, s11, {28*2048}")
    a(f"s_add_u32 s11, s11, {WS_CP:#x}")
    a(f"s_and_b32 s12, s{S_W4}, 1")
    a(f"s_lshl_b32 s{sCF}, s12, 15")
    a(f"s_add_u32 s{sCF}, s{sCF}, s11")
    a(f"s_lshl_b32 s{sCH}, s12, 12")
    a(f"s_add_u32 s{sCH}, s{sCH}, s11")
    a(f"s_add_u32 s{sCH}, s{sCH}, {12*2048}")
    a(f"v_bfe_u32 v{vT}, v0, 4, 1")
    a(f"v_lshlrev_b32 v{vT+1}, 2, v{vT}")
    a(f"v_xor_b32 v{vC}, v{vC}, v{vT+1}")
    a(f"v_lshlrev_b32 v{vC}, 5, v{vC}")
    a(f"v_lshl_add_u32 v{vC}, v{vT}, 9, v{vC}")
    a(f"v_lshl_add_u32 v{vC}, v{vT+2}, 8, v{vC}")
    a(f"s_add_u32 s11, s{sMB}, {CP_L}")
    a(f"v_add_u32 v{vC}, s11, v{vC}")
    a(f"s_lshl_b32 s11, s{S_W4}, 5")
    a(f"s_add_u32 s11, s11, {C_L + 512}")
    a(f"v_lshl_add_u32 v{vA}, v{vA}, 2, s11")
    ts.x(1, 8)
    LR, LI, CR, CI, L16R, L16I, PWR, PWI, L64R, L64I, LWR, LWI, W0R = [KP + k for k in range(13)]
    vTW, vTR, vCB, vStS, vAg, vPr, vF = [KP + k for k in range(16, 23)]
    a(f"s_lshl_b32 s21, s{S_NS}, 7")
    a(f"s_mul_i32 s22, s{S_MT}, 3584")
    a("s_add_u32 s22, s22, s21")
    a(f"s_add_u32 s22, s22, {WS_AGG - AGG_L:#x}")
    a(f"s_mov_b32 s23, {WS_AGG:#x}")
    a(f"s_mov_b32 s20, {WS_AGG + 4*3584:#x}")
    a(f"s_lshl_b32 s18, s{S_M64}, 10")
    a(f"s_and_b32 s11, s{S_W4}, 1")
    a("s_lshl_b32 s11, s11, 7")
    a("s_add_u32 s18, s18, s11")
    a(f"s_add_u32 s18, s18, {WS_FLAG + 512:#x}")
    a(f"s_lshl_b32 s11, s{S_MT}, 2")
    a(f"s_add_u32 s11, s11, s{S_W4}")
    a(f"s_mul_i32 s19, s11, {2*RT_BYTES}")
    a(f"s_lshl_b32 s11, s{S_NS}, 10")
    a("s_add_u32 s19, s19, s11")
    a(f"s_add_u32 s19, s19, {56*1024}")
    for g in range(7):
        a(f"s_add_u32 s12, s{sRF}, {g}")
        a("s_cmp_ge_u32 s12, 7")
        a("s_cselect_b32 s13, 7, 0")
        a("s_sub_u32 s12, s12, s13")
        a(f"s_mul_i32 s{sGrp[g]}, s12, {64*896}")
    a(f"s_add_u32 s11, s{sMX}, {R[2]}")
    a(f"v_add_u32 v{vT+4}, s11, v{vP}")
    kparts = {}
    if cfg.wprio: a(f"s_setprio {cfg.wprio}")
    for s in range(7):
        vm.wait(('st', s))
        ts.x(2, 1 + s)
        a("s_barrier")
        ts.x(3, 1 + s)
        if s == 0: ts(2)
        if s == 0:
            for k in range(6): a(f"ds_read_b128 v[{KP+4*k}:{KP+4*k+3}], v{vT+4} offset:{1024*k}")
        if s == 6:
            QQ = 28
            for p in range(8): a(f"ds_read_b32 v{QQ+p}, v{vT+1} offset:{512*p}")
            a("s_waitcnt lgkmcnt(0)")
            for p in range(4): a(f"v_add_f32 v{QQ+p}, v{QQ+p}, v{QQ+4+p}")
            a(f"v_add_f32 v{QQ}, v{QQ}, v{QQ+2}")
            a(f"v_add_f32 v{QQ+1}, v{QQ+1}, v{QQ+3}")
            a(f"v_add_f32 v{QQ}, v{QQ}, v{QQ+1}")
            a(f"ds_write_b32 v{vT}, v{QQ}")
            pre = tok_ops(win[6][:2])
            for o in pre: o()
            a("s_waitcnt lgkmcnt(0)")
            a("s_barrier")
            a("s_setprio 0")
            run_tokens(win[6][2:])
            continue
        segs = [[None, []]]
        for t in win.get(s, []):
            if t.startswith("cs"): segs.append([int(t[2:]), []])
            else: segs[-1][1].append(t)
        for cs, toks in segs:
            fl = []
            if cs is not None:
                vm.wait(('st', cs))
                colsum_reads(cs)
                fl = colsum_ops()
            if cs == 6:
                b = ACC
                for k in range(8): fl.append(f"v_permlane32_swap_b32 v{CA+k}, v{CA+8+k}")
                fl.append(f"v_add_f32_dpp v{b}, v{b}, v{b} quad_perm:[1,0,3,2] row_mask:0xf bank_mask:0xf")
                for k in range(8): fl.append(f"v_add_f32 v{CA+k}, v{CA+k}, v{CA+8+k}")
                fl.append(f"v_add_f32_dpp v{b}, v{b}, v{b} quad_perm:[2,3,0,1] row_mask:0xf bank_mask:0xf")
                for k in range(8): fl.append(f"v_add_f32_dpp v{CA+k}, v{CA+k}, v{CA+k} row_ror:8 row_mask:0xf bank_mask:0xf")
                fl.append(f"v_add_f32_dpp v{b}, v{b}, v{b} row_half_mirror row_mask:0xf bank_mask:0xf")
                fl.append(f"ds_write_b128 v{vC}, v[{CA}:{CA+3}]")
                fl.append(f"ds_write_b128 v{vC}, v[{CA+4}:{CA+7}] offset:16")
                fl.append(f"ds_write_b32 v{vA}, v{b}")
            ops = tok_ops(toks)
            per = max(1, -(-len(fl) // max(1, len(ops))))
            interleave(a, ops, fl, per)
        if s == 5:
            a(f"s_and_b32 s12, s{S_W4}, 1")
            a("s_lshl_b32 s12, s12, 8")
            a(f"v_lshl_add_u32 v{vT}, v0, 2, s12")
            a(f"v_add_u32 v{vT+1}, {CP_L}, v{vT}")
            a(f"v_add_u32 v{vT}, {C_L}, v{vT}")
            a("s_waitcnt lgkmcnt(0)")
            a("s_setprio 3")
    ts.x(2, 8)
    a("s_barrier")
    ts(3)
    ts.x(3, 8)
    a(f"v_add_u32 v{vT+2}, {SD}, v{vPQ}")
    vm.wait(('w', 11), "lgkmcnt(0)")
    a("s_barrier")
    X, Y, ST = 32, 48, CF
    HR, HI, T1, T2, CBR, CBI, G0, G1, QR, QI = 20, 21, 22, 23, 24, 25, 26, 28, 30, 31
    for k in range(8): a(f"ds_read_b128 v[{X+4*k}:{X+4*k+3}], v{vT+2} offset:{1024*k}")
    a(f"ds_read_b32 v{CBR}, v{vCB}")
    a(f"ds_read_b32 v{CBI}, v{vCB} offset:64")
    for k in range(8): a(f"ds_read_b128 v[{ST+4*k}:{ST+4*k+3}], v{vStS} offset:{16*k}")
    a(f"s_setprio {cfg.eprio}")
    a(f"v_lshrrev_b32 v1, 4, v0")
    a(f"v_sub_u32 v1, s{S_MT}, v1")
    a(f"v_cmp_le_i32 s[56:57], 1, v1")
    a(f"v_cmp_le_i32 s[58:59], 5, v1")
    a(f"v_lshlrev_b32 v5, 16, v{KP+23}")
    a(f"v_mov_b32 v3, v{vF}")
    vF = 3
    a("s_waitcnt lgkmcnt(10)")
    for r in range(16): a(f"v_permlane16_swap_b32 v{X+r}, v{Y+r}")
    a("s_waitcnt lgkmcnt(0)")
    side = {}
    for r in range(16):
        if r in side: side[r]()
        m, rs = ST + 2 * r, ST + 2 * r + 1
        a(f"v_fma_f32 v{X+r}, -v{m}, v{CBR}, v{X+r}")
        a(f"v_fma_f32 v{Y+r}, -v{m}, v{CBI}, v{Y+r}")
        a(f"v_mul_f32 v{X+r}, v{X+r}, v{rs}")
        a(f"v_mul_f32 v{Y+r}, v{Y+r}, v{rs}")
        if r >= 1:
            pr, pi = (X, Y) if r == 1 else (HR, HI)
            a(f"v_fma_f32 v{T1}, -v{LI}, v{pi}, v{X+r}")
            a(f"v_fma_f32 v{T2}, v{LI}, v{pr}, v{Y+r}")
            a(f"v_fma_f32 v{HR}, v{LR}, v{pr}, v{T1}")
            a(f"v_fma_f32 v{HI}, v{LR}, v{pi}, v{T2}")
    z = CF
    a(f"v_mov_b32 v{z}, v{HR}"); a(f"v_mov_b32 v{z+1}, v{HI}")
    csq(a, z + 8, z + 9, L16R, L16I, z + 10)
    a(f"v_permlane32_swap_b32 v{HR}, v{z}")
    a(f"v_permlane32_swap_b32 v{HI}, v{z+1}")
    a(f"v_fma_f32 v{z}, -v{L16I}, v{HI}, v{z}")
    a(f"v_fma_f32 v{z+1}, v{L16I}, v{HR}, v{z+1}")
    a(f"v_fmac_f32 v{z}, v{L16R}, v{HR}")
    a(f"v_fmac_f32 v{z+1}, v{L16R}, v{HI}")
    a(f"v_mov_b32 v{z+2}, v{z}"); a(f"v_mov_b32 v{z+3}, v{z+1}")
    a(f"s_lshl_b32 s11, s{S_W4}, 7")
    a(f"v_add_u32 v{z+5}, s11, v{vAg}")
    a(f"v_permlane16_swap_b32 v{z}, v{z+2}")
    a(f"v_permlane16_swap_b32 v{z+1}, v{z+3}")
    a(f"v_fma_f32 v{z+2}, -v{z+9}, v{z+1}, v{z+2}")
    a(f"v_fma_f32 v{z+3}, v{z+9}, v{z}, v{z+3}")
    a(f"v_fmac_f32 v{z+2}, v{z+8}, v{z}")
    a(f"v_fmac_f32 v{z+3}, v{z+8}, v{z+1}")
    a(f"ds_write_b64 v{z+5}, v[{z+2}:{z+3}]")
    a("s_waitcnt lgkmcnt(0)")
    ts.x(2, 9)
    a(f"s_setprio {cfg.lprio}")
    a("s_barrier")
    ts(4)
    E = CF + 16
    for i in range(4): a(f"ds_read_b64 v[{E+2+2*i}:{E+3+2*i}], v{vAg} offset:{128*i}")
    a(f"v_mov_b32 v{E}, 0")
    a(f"v_mov_b32 v{E+1}, 0")
    a(f"v_and_b32 v{z+4}, 16, v0")
    a(f"v_cmp_ne_u32 s[12:13], 0, v{z+4}")
    for i in range(1, 4):
        e, p = E + 2 + 2 * i, E + 2 * i
        a(f"s_waitcnt lgkmcnt({3 - i})")
        a(f"v_fma_f32 v{e}, -v{L64I}, v{p+1}, v{e}")
        a(f"v_fma_f32 v{e+1}, v{L64I}, v{p}, v{e+1}")
        a(f"v_fmac_f32 v{e}, v{L64R}, v{p}")
        a(f"v_fmac_f32 v{e+1}, v{L64R}, v{p+1}")
    a(f"s_cmp_lg_u32 s{S_W4}, 0")
    a("s_cbranch_scc1 L_l_nopub")
    e = E + 8
    a(f"v_cmp_eq_u32 vcc, -1, v{e}")
    a(f"v_mov_b32 v{T1}, 0x7fc00000")
    a(f"v_cndmask_b32 v{e}, v{e}, v{T1}, vcc")
    a("s_mov_b64 exec, 0xffff")
    a(f"buffer_store_dwordx2 v[{e}:{e+1}], v{vAg}, s[{SRD_WS}:{SRD_WS+3}], s22 offen sc1")
    a("s_mov_b64 exec, -1")
    ts(5)
    a.label("L_l_nopub")
    a(f"v_cmp_lt_u32 vcc, 31, v0")
    a(f"v_cndmask_b32 v{z}, 0, v{z}, s[12:13]")
    a(f"v_cndmask_b32 v{z+1}, 0, v{z+1}, s[12:13]")
    a(f"v_fma_f32 v{HR}, -v{L16I}, v{z+1}, v{HR}")
    a(f"v_fma_f32 v{HI}, v{L16I}, v{z}, v{HI}")
    a(f"v_fmac_f32 v{HR}, v{L16R}, v{z}")
    a(f"v_fmac_f32 v{HI}, v{L16R}, v{z+1}")
    a(f"v_cndmask_b32 v{z}, v{z}, v{HR}, vcc")
    a(f"v_cndmask_b32 v{z+1}, v{z+1}, v{HI}, vcc")
    cmul(a, HR, HI, z, z + 1, CR, CI)
    a(f"s_bitcmp1_b32 s{S_W4}, 0")
    a("s_cselect_b64 vcc, -1, 0")
    a(f"v_cndmask_b32 v{QR}, v{E}, v{E+2}, vcc")
    a(f"v_cndmask_b32 v{QI}, v{E+1}, v{E+3}, vcc")
    a(f"v_cndmask_b32 v{T1}, v{E+4}, v{E+6}, vcc")
    a(f"v_cndmask_b32 v{T2}, v{E+5}, v{E+7}, vcc")
    a(f"s_bitcmp1_b32 s{S_W4}, 1")
    a("s_cselect_b64 vcc, -1, 0")
    a(f"v_cndmask_b32 v{QR}, v{QR}, v{T1}, vcc")
    a(f"v_cndmask_b32 v{QI}, v{QI}, v{T2}, vcc")
    ts.x(2, 10)
    thr[0] = cfg.thr
    lds = [f"buffer_load_dwordx2 v[{G0}:{G0+1}], v{vPr}, s[{SRD_WS}:{SRD_WS+3}], s23 offen sc1",
           f"buffer_load_dwordx2 v[{G1}:{G1+1}], v{vPr}, s[{SRD_WS}:{SRD_WS+3}], s20 offen sc1"]
    up = Rec()
    for r in range(16):
        up(f"v_mul_f32 v{T1}, v{CI}, v{Y+r}")
        up(f"v_mul_f32 v{T2}, v{CI}, v{X+r}")
        up(f"v_fma_f32 v{X+r}, v{CR}, v{X+r}, -v{T1}")
        up(f"v_fma_f32 v{Y+r}, v{CR}, v{Y+r}, v{T2}")
    vRd, vOne = 4, 2
    a(f"s_lshl_b32 s11, s{S_W4}, 2")
    a(f"s_add_u32 s11, s11, {CNT_L + 16}")
    a(f"v_mov_b32 v{vRd}, s11")
    a(f"v_mov_b32 v{vOne}, 1")
    thr[0] = None
    co = w_ops(range(22, 28)) + (c_ops(0) if cfg.c0early else [])
    interleave(a, co[:cfg.c1], up.L, 4)
    if cfg.agpos == 0:
        for t in lds: vm.issue('ag', t)
    w_write([12, 13, 14, 15])
    a(f"ds_write_b32 v{vRd}, v{vOne}")
    XV, STT, DS = 64, 80, 5
    TT = SACC + 32
    vHW = 1
    a(f"v_add_u32 v{vHW}, {HTS}, v{vPQ}")
    a(f"ds_write_b128 v{vHW}, v[{XRAW}:{XRAW+3}]")
    a(f"ds_write_b128 v{vHW}, v[{XRAW+4}:{XRAW+7}] offset:1024")
    a(f"v_lshrrev_b32 v{vT+3}, 5, v0")
    a(f"v_lshlrev_b32 v{vT+2}, 10, v{vT+3}")
    a(f"v_and_b32 v{vT}, 31, v0")
    a(f"v_lshl_add_u32 v{vT+2}, v{vT}, 1, v{vT+2}")
    a(f"s_add_u32 s11, s{sMP}, {HTS}")
    a(f"v_add_u32 v{vT+2}, s11, v{vT+2}")
    for r in range(16): a(f"ds_read_u16 v{XV+r}, v{vT+2} offset:{64*r}")
    if cfg.agpos == 1:
        for t in lds: vm.issue('ag', t)
    w_write([16, 17])
    def wrest():
        w_write([18, 19])
        w_write([20, 21])
        a(f"v_mov_b32 v{T1}, 2")
        a(f"ds_write_b32 v{vRd}, v{T1}")
    if not cfg.wl: wrest()
    co = co[cfg.c1:]
    ts(8)
    vm.wait('ag')
    def cond():
        a(f"v_cmp_eq_u32 vcc, -1, v{G0}")
        a("s_and_b64 s[48:49], vcc, s[56:57]")
        a(f"v_cmp_eq_u32 vcc, -1, v{G1}")
        a("s_and_b64 s[50:51], vcc, s[58:59]")
        a("s_or_b64 s[48:49], s[48:49], s[50:51]")
        a("s_cmp_eq_u64 s[48:49], 0")
    spin_check(a, "L_agg", lds, cond, 2)
    ts(6)
    SR, SI = CBR, CBI
    cmul(a, SR, SI, G0, G0 + 1, W0R, W0R + 1)
    cmul(a, T1, T2, G1, G1 + 1, W0R + 2, W0R + 3)
    a(f"v_cndmask_b32 v{SR}, 0, v{SR}, s[56:57]")
    a(f"v_cndmask_b32 v{SI}, 0, v{SI}, s[56:57]")
    a(f"v_cndmask_b32 v{T1}, 0, v{T1}, s[58:59]")
    a(f"v_cndmask_b32 v{T2}, 0, v{T2}, s[58:59]")
    a(f"v_add_f32 v{SR}, v{SR}, v{T1}")
    a(f"v_add_f32 v{SI}, v{SI}, v{T2}")
    for sw in ("v_permlane32_swap_b32", "v_permlane16_swap_b32"):
        a(f"v_mov_b32 v{T1}, v{SR}")
        a(f"v_mov_b32 v{T2}, v{SI}")
        a(f"{sw} v{SR}, v{T1}")
        a(f"{sw} v{SI}, v{T2}")
        a(f"v_add_f32 v{SR}, v{SR}, v{T1}")
        a(f"v_add_f32 v{SI}, v{SI}, v{T2}")
    a(f"v_fmac_f32 v{QR}, v{LWR}, v{SR}")
    a(f"v_fmac_f32 v{QI}, v{LWR}, v{SI}")
    a(f"v_fma_f32 v{QR}, -v{LWI}, v{SI}, v{QR}")
    a(f"v_fmac_f32 v{QI}, v{LWI}, v{SR}")
    a(f"v_fmac_f32 v{HR}, v{PWR}, v{QR}")
    a(f"v_fmac_f32 v{HI}, v{PWR}, v{QI}")
    a(f"v_fma_f32 v{HR}, -v{PWI}, v{QI}, v{HR}")
    a(f"v_fmac_f32 v{HI}, v{PWI}, v{QR}")
    pr, pi = HR, HI
    PK, HF = 96, 80
    rest = co[:cfg.c2]
    for r in range(16):
        if rest: rest.pop(0)()
        a(f"v_fma_f32 v{X+r}, -v{LI}, v{pi}, v{X+r}")
        a(f"v_fma_f32 v{Y+r}, v{LI}, v{pr}, v{Y+r}")
        a(f"v_fmac_f32 v{X+r}, v{LR}, v{pr}")
        a(f"v_fmac_f32 v{Y+r}, v{LR}, v{pi}")
        pr, pi = X + r, Y + r
    for k in range(8):
        a(f"v_cvt_pk_bf16_f32 v{PK+k}, v{X+2*k}, v{X+2*k+1}")
    a(f"ds_write_b128 v{vTW}, v[{PK}:{PK+3}]")
    a(f"ds_write_b128 v{vTW}, v[{PK+4}:{PK+7}] offset:16")
    for k in range(8):
        a(f"v_cvt_pk_bf16_f32 v{PK+8+k}, -v{Y+2*k}, -v{Y+2*k+1}")
    a(f"ds_write_b128 v{vTW}, v[{PK+8}:{PK+11}] offset:2048")
    a(f"ds_write_b128 v{vTW}, v[{PK+12}:{PK+15}] offset:2064")
    for q in range(2):
        for part in range(2):
            for j in range(2):
                d = HF + 8 * q + 4 * part + 2 * j
                a(f"ds_read_b64_tr_b16 v[{d}:{d+1}], v{vTR} offset:{(part*16 + 4*j)*128 + 64*(q ^ j)}")
    assert not rest
    a("s_waitcnt lgkmcnt(0)")
    for q in range(2):
        for part in range(2):
            d = HF + 8 * q + 4 * part
            a(f"s_add_u32 s11, s19, {q*RT_BYTES + part*HALF_BYTES}")
            vm.issue('hs', f"buffer_store_dwordx4 v[{d}:{d+3}], v{vP}, s[{SRD_WS}:{SRD_WS+3}], s11 offen{SP}")
    if cfg.wl: wrest()
    def flag2():
        vm.wait('hs')
        a("s_mov_b64 exec, 1")
        vm.issue('f', f"buffer_store_dword v{vOne}, v{vF}, s[{SRD_WS}:{SRD_WS+3}], 0 offen sc1")
        a("s_mov_b64 exec, -1")
        ts(7)
    if cfg.f2b == 0: flag2()
    for o in co[cfg.c2:] + (c_ops(2) if not cfg.clate else []): o()
    if cfg.f2b == 1: flag2()
    a(f"s_and_b32 s11, s{S_W4}, 1")
    a("s_lshl_b32 s11, s11, 8")
    a(f"s_add_u32 s11, s11, {ST2_L}")
    a(f"v_lshl_add_u32 v{vT+3}, v{vT+3}, 7, s11")
    STT = 32
    for k in range(8): a(f"ds_read_b128 v[{STT+4*k}:{STT+4*k+3}], v{vT+3} offset:{16*k}")
    for r in range(16): a(f"v_lshlrev_b32 v{XV+r}, 16, v{XV+r}")
    a("s_waitcnt lgkmcnt(0)")
    a("s_setprio 0")
    def rnd_pair(r0, r1):
        a(f"v_cvt_pk_bf16_f32 v{r1}, v{r0}, v{r1}"); a(f"v_lshlrev_b32 v{r0}, 16, v{r1}"); a(f"v_and_b32 v{r1}, s71, v{r1}")
    for r in range(16): a(f"v_sub_f32 v{TT+r}, v{XV+r}, v{STT+2*r}")
    for k in range(8): rnd_pair(TT + 2 * k, TT + 2 * k + 1)
    a(f"v_mov_b32 v{T2}, 3")
    vm.wait(('w', 27))
    a(f"ds_write_b32 v{vRd}, v{T2}")
    for r in range(16): a(f"v_mul_f32 v{TT+r}, v{TT+r}, v{STT+2*r+1}")
    for k in range(8): rnd_pair(TT + 2 * k, TT + 2 * k + 1)
    for r in range(16): a(f"v_mul_f32 v{TT+r}, v{TT+r}, v{DS}")
    for k in range(8): rnd_pair(TT + 2 * k, TT + 2 * k + 1)
    def poll(name, off):
        sspin(a, name, [f"s_load_dwordx16 s[20:35], s[{P_WS}:{P_WS+1}], s18 glc"], pcond, cfg.psleep)
    if True:
        def pcond():
            for k in range(0, 12, 4): a(f"s_and_b64 s[{20+k}:{21+k}], s[{20+k}:{21+k}], s[{22+k}:{23+k}]")
            a("s_and_b64 s[20:21], s[20:21], s[24:25]")
            a("s_and_b64 s[28:29], s[28:29], s[32:33]")
            a("s_and_b64 s[20:21], s[20:21], s[28:29]")
            a("s_and_b32 s20, s20, s21")
            a("s_cmp_eq_u32 s20, 1")
    a(f"s_mul_i32 s57, s40, {RT_BYTES}")
    a("s_xor_b32 s11, s40, 1")
    a(f"s_mul_i32 s56, s11, {RT_BYTES}")
    a(f"s_lshr_b32 s11, s{S_W4}, 1")
    a(f"s_mul_i32 s11, s11, {HALF_BYTES}")
    a(f"s_add_u32 s11, s11, {56*1024}")
    a("s_add_u32 s56, s56, s11")
    a("s_add_u32 s57, s57, s11")
    a(f"s_and_b32 s12, s{S_W4}, 1")
    a("s_lshl_b32 s13, s12, 14")
    for b in range(3): a(f"s_add_u32 s{52+b}, s13, {b*4096}")
    a("s_lshl_b32 s12, s12, 11")
    a(f"s_add_u32 s55, s12, {12*1024}")
    srd(a, 60, P_OUT, 2048 * 1792)
    vW1, vW2, vCn, vCv = 1, 2, 9, 4
    vR = [3, 12, 13, 14]
    a(f"v_add_u32 v{vW1}, {PH1}, v{vPQ}")
    a(f"v_add_u32 v{vW2}, {PH2}, v{vPQ}")
    a(f"v_mov_b32 v{vCn}, {CNT_L}")
    for (reg, xr, base) in ((vR[0], 1, PH1), (vR[1], 3, PH1 + 4096), (vR[2], 2, PH2)):
        a(f"s_xor_b32 s11, s{S_W4}, {xr}")
        a(f"s_mul_i32 s11, s11, {Q}")
        a(f"s_add_u32 s11, s11, {base}")
        a(f"v_add_u32 v{reg}, s11, v{vP}")
    a(f"v_add_u32 v{vR[3]}, {GA}, v{vPQ}")
    ts.x(2, 11)
    ts.x(7, 11)
    AR = list(range(16, 64, 4))
    NA = len(AR)
    PO = [4, 5, 6, 7, 12, 13, 0, 1, 2, 3, 8, 9, 10, 11]
    def aload(n):
        lr, p = n // 14, PO[n % 14]
        if p % 4 == 0: a(f"s_add_u32 s58, s{56+lr}, s{52 + p//4}")
        d = AR[n % NA]
        vm.issue(('a', n), f"buffer_load_dwordx4 v[{d}:{d+3}], v{vP}, s[{SRD_WS}:{SRD_WS+3}], s58 offen offset:{(p%4)*1024}{AP}")
    def cnt_wait(name, off):
        a("s_mov_b32 s73, 0")
        a.label(name)
        a("s_waitcnt lgkmcnt(0)")
        a(f"v_readfirstlane_b32 s11, v{vCv}")
        a("s_cmp_ge_u32 s11, 4")
        a(f"s_cbranch_scc1 {name}ok")
        a("s_add_u32 s73, s73, 1")
        a(f"s_cmp_ge_u32 s73, {SPIN_MAX}")
        a(f"s_cbranch_scc1 {name}ok")
        a("s_sleep 1")
        a(f"ds_read_b32 v{vCv}, v{vCn} offset:{off}")
        a(f"s_branch {name}")
        a.label(name + "ok")
        a("s_nop 7")
    assert cfg.clate == 2 and cdone == {1, 3}
    if cfg.gate == 0: poll("L_ps", 128)
    if cfg.gate < 2:
        a(f"ds_read_b32 v{vCv}, v{vCn} offset:4")
        cnt_wait("L_l_c0", 4)
    if cfg.sprio: a(f"s_setprio {cfg.sprio}")
    cc = c_ops(0) + c_ops(2)
    for o in cc[:cfg.c0n]: o()
    if cfg.gate != 0: poll("L_ps", 128)
    ts(9)
    ts.x(7, 1)
    for n in range(6): aload(n)
    for o in cc[cfg.c0n:8]: o()
    for n in range(6, 10): aload(n)
    for o in cc[max(8, cfg.c0n):]: o()
    for n in range(10, NA): aload(n)
    a("s_setprio 0")
    ts.x(7, 2)
    for n in range(28):
        lr, p = n // 14, PO[n % 14]
        vm.wait(('a', n))
        assert ('c', min(p // 4, 3)) not in vm.q
        if n in (0, 7, 14, 21): ts.x(7, 3 + n // 7)
        d = AR[n % NA]
        for lc in (1, 0):
            acc = SACC + 32 * lr + 16 * lc
            c = "0" if (n % 14 == 0 and not (lr == 1 and lc == 0)) else f"v[{acc}:{acc+15}]"
            f = cfrag(p, lc)
            a(f"v_mfma_f32_32x32x16_bf16 v[{acc}:{acc+15}], v[{d}:{d+3}], v[{f}:{f+3}], {c}")
        if n + NA < 28: aload(n + NA)
        if cfg.gate == 2 and n == 14: a(f"ds_read_b32 v{vCv}, v{vCn} offset:4")
        if cfg.gate == 2 and n == 15: cnt_wait("L_l_c0", 4)
        if 16 <= n < 24:
            k = n - 16
            a(f"ds_write_b128 v{vW1}, v[{SACC+4*k}:{SACC+4*k+3}] offset:{1024*k}")
    ts(10)
    ts.x(7, 7)
    ts.x(7, 8)
    for k in range(4):
        a(f"ds_write_b128 v{vW2}, v[{SACC+48+4*k}:{SACC+48+4*k+3}] offset:{1024*k}")
    a("s_waitcnt lgkmcnt(0)")
    ts.x(7, 9)
    a("s_barrier")
    ts(11)
    ts.x(7, 10)
    RX = CF
    for k in range(4):
        for w in range(4):
            a(f"ds_read_b128 v[{RX+16*w+4*k}:{RX+16*w+4*k+3}], v{vR[w]} offset:{1024*k}")
    for k in range(4):
        a(f"s_waitcnt lgkmcnt({12 - 4*k})")
        for r in range(4 * k, 4 * k + 4):
            a(f"v_add_f32 v{TT+r}, v{TT+r}, v{RX+r}")
            a(f"v_add_f32 v{RX+16+r}, v{RX+16+r}, v{RX+32+r}")
        for r in range(4 * k, 4 * k + 4):
            a(f"v_add_f32 v{TT+r}, v{TT+r}, v{RX+16+r}")
        for r in range(4 * k, 4 * k + 4):
            a(f"v_fma_f32 v{XV+r}, v{TT+r}, v{RX+48+r}, v{XV+r}")
            if r % 2 == 0: a(f"s_mov_b32 s11, {r*1792}")
            a(f"buffer_store_dword v{XV+r}, v{vO}, s[60:63], s11 offen offset:{(r%2)*1792}{OP}")
    if cfg.ts:
        a("s_waitcnt vmcnt(0)")
        ts(12)
    if cfg.padto:
        a.label("L_pad")
        a("s_memrealtime s[98:99]")
        a("s_waitcnt lgkmcnt(0)")
        a("s_sub_u32 s98, s98, s100")
        a(f"s_cmp_lt_u32 s98, {cfg.padto}")
        a("s_cbranch_scc1 L_pad")
    ts.dump(16, 17, 1)
    a("s_endpgm")

def gen_consumer(a, cfg, ts):
    a.label("L_consumer")
    SP = ["", " sc1"][cfg.spol]
    AP = ['', ' sc1', ' sc1 nt', ' sc0 sc1', ' sc0', ' nt'][cfg.apol]
    vm = VM(a)
    XA = [1, 2, 3, 4]; BA = [5, 6, 7, 8]; WA = [9, 10]
    vL16, vStF, vCL, vF, vFl, vSo, vCn, vRd, vWB, vPQ, vOne, MM = 11, 12, 13, 14, 15, 16, 17, 18, 19, 20, 21, 22
    FS = [40, 68]
    ACC = 96
    def G(ft, q): return ACC + 16 * (2 * ft + q)
    def U(ft, q): return ACC + 64 + 16 * (2 * ft + q)
    def S(q): return ACC + 128 + 16 * q
    vI, vH, t0, t1, t2 = 24, 25, 26, 27, 28
    a(f"v_and_b32 v{vI}, 31, v0")
    a(f"v_lshrrev_b32 v{vH}, 5, v0")
    a(f"v_bfe_u32 v{t0}, v0, 1, 3")
    a(f"v_xor_b32 v{t0}, v{t0}, v{vH}")
    a(f"v_lshlrev_b32 v{t0}, 4, v{t0}")
    a(f"v_lshl_add_u32 v{t0}, v{vI}, 7, v{t0}")
    a(f"s_lshl_b32 s11, s{S_W4}, 13")
    for ks in range(4):
        a(f"v_xor_b32 v{t1}, {32*ks}, v{t0}")
        a(f"v_add_u32 v{XA[ks]}, s11, v{t1}")
        a(f"v_add_u32 v{BA[ks]}, {OFF_BB}, v{t1}")
    a(f"v_bfe_u32 v{t0}, v0, 2, 2")
    a(f"v_lshlrev_b32 v{t1}, 7, v{t0}")
    a(f"v_lshrrev_b32 v{t0}, 1, v{t0}")
    a(f"v_lshl_add_u32 v{t1}, v{t0}, 6, v{t1}")
    a(f"v_bfe_u32 v{t0}, v0, 4, 1")
    a(f"v_lshl_add_u32 v{t1}, v{t0}, 5, v{t1}")
    a(f"v_and_b32 v{t2}, 3, v0")
    a(f"v_lshl_add_u32 v{t1}, v{t2}, 3, v{t1}")
    a(f"v_lshl_add_u32 v{WA[0]}, v{vH}, 10, v{t1}")
    a(f"v_add_u32 v{WA[0]}, {OFF_WG}, v{WA[0]}")
    a(f"v_xor_b32 v{WA[1]}, 64, v{WA[0]}")
    a(f"s_mul_i32 s62, s{S_W4}, {Q}")
    a(f"s_lshr_b32 s59, s{S_W4}, 1")
    a(f"s_and_b32 s63, s{S_W4}, 1")
    a("s_lshl_b32 s11, s59, 6")
    a(f"v_lshl_add_u32 v{vWB}, v{vH}, 9, v{t1}")
    a(f"v_xor_b32 v{vWB}, s11, v{vWB}")
    a(f"v_add_u32 v{vWB}, s62, v{vWB}")
    a("s_waitcnt lgkmcnt(0)")
    a(f"s_lshl_b32 s11, s{S_NS}, 5")
    a(f"s_load_dwordx8 s[32:39], s[{P_LRE}:{P_LRE+1}], s11")
    a(f"s_load_dwordx8 s[64:71], s[{P_LDT}:{P_LDT+1}], s11")
    a(f"s_load_dwordx8 s[24:31], s[{P_LIM}:{P_LIM+1}], s11")
    for k in range(160): a(f"v_mov_b32 v{ACC+k}, 0")
    a(f"v_mov_b32 v{vCn}, {CNT_L}")
    a(f"ds_write_b128 v{vCn}, v[{ACC}:{ACC+3}]")
    a(f"ds_write_b128 v{vCn}, v[{ACC}:{ACC+3}] offset:16")
    a(f"v_bfe_u32 v{t0}, v0, 2, 1")
    a(f"v_lshl_add_u32 v{t0}, v{t0}, 4, v{t2}")
    a(f"v_bfe_u32 v{t1}, v0, 3, 2")
    a(f"v_lshl_add_u32 v{t0}, v{t1}, 2, v{t0}")
    a(f"s_lshl_b32 s11, s{S_W4}, 9")
    a(f"s_add_u32 s11, s11, {STATS_L}")
    a(f"v_lshl_add_u32 v{vStF}, v{t0}, 3, s11")
    a(f"v_lshlrev_b32 v{vL16}, 4, v0")
    a(f"v_add_u32 v{vPQ}, s62, v{vL16}")
    a(f"v_lshlrev_b32 v{vCL}, 4, v{vH}")
    a(f"v_add_u32 v{vCL}, {C_L}, v{vCL}")
    a(f"v_mov_b32 v{vOne}, 1")
    a(f"s_lshl_b32 s11, s{S_W4}, 2")
    a(f"s_add_u32 s11, s11, {CNT_L + 16}")
    a(f"v_mov_b32 v{vRd}, s11")
    a("s_lshl_b32 s11, s63, 8")
    a(f"s_add_u32 s11, s11, {ST2_L}")
    a(f"v_lshl_add_u32 v{vSo}, v{vH}, 7, s11")
    a(f"s_lshl_b32 s13, s{S_MT}, 2")
    a(f"s_add_u32 s13, s13, s{S_W4}")
    a(f"s_mul_i32 s56, s13, {2*RT_BYTES}")
    a(f"s_cmp_ge_u32 s{S_NS}, 14")
    a(f"s_cselect_b32 s11, {HALF_BYTES - 56*1024}, 0")
    a(f"s_lshl_b32 s12, s{S_NS}, 12")
    a("s_add_u32 s11, s11, s12")
    a("s_add_u32 s56, s56, s11")
    a(f"s_add_u32 s57, s56, {RT_BYTES}")
    a("s_lshl_b32 s11, s13, 10")
    flag_index(a, 12, 14, 7)
    a("s_add_u32 s11, s11, s12")
    a(f"s_add_u32 s11, s11, {WS_FLAG:#x}")
    a(f"v_mov_b32 v{vF}, s11")
    a(f"s_lshl_b32 s55, s{S_M64}, 10")
    a(f"s_add_u32 s55, s55, {WS_FLAG:#x}")
    a(f"s_lshl_b32 s11, s{S_W4}, 7")
    a("s_add_u32 s55, s55, s11")
    a(f"s_mul_i32 s12, s59, {HALF_BYTES}")
    a(f"s_mul_i32 s13, s63, {28*1024}")
    a("s_add_u32 s12, s12, s13")
    a(f"s_lshl_b32 s11, s{S_M64}, 1")
    a("s_add_u32 s11, s11, s63")
    a(f"s_mul_i32 s52, s11, {RT_BYTES}")
    a("s_add_u32 s52, s52, s12")
    a("s_xor_b32 s11, s11, 1")
    a(f"s_mul_i32 s51, s11, {RT_BYTES}")
    a("s_add_u32 s51, s51, s12")
    p2_rot(a, cfg, 60, 61, 58)
    a("s_mov_b32 s12, 0x00030003")
    a("s_mov_b32 s13, 0x00030003")
    a("s_waitcnt lgkmcnt(0)")
    K, KP = 40, 64
    for k in range(8):
        a(f"s_lshl_b64 exec, s[12:13], {2*k}")
        for m, sb in enumerate((32, 24, 64)): a(f"v_mov_b32 v{K+m}, s{sb+k}")
    a("s_mov_b64 exec, -1")
    a(f"v_and_b32 v{K+3}, 1, v0")
    a(f"v_lshlrev_b32 v{K+3}, 4, v{K+3}")
    for m in range(3): a(f"v_lshrrev_b32 v{K+m}, v{K+3}, v{K+m}")
    srd(a, SRD_WS, P_WS, WS_SIZE)
    ssm_park(a, K, KP, 62)
    a(f"v_mov_b32 v{KP+23}, 0")
    a(f"s_lshl_b32 s11, s{S_W4}, 13")
    a(f"s_add_u32 s11, s11, {R[2]}")
    a(f"v_add_u32 v{K}, s11, v{vL16}")
    for k in range(6): a(f"ds_write_b128 v{K}, v[{KP+4*k}:{KP+4*k+3}] offset:{1024*k}")
    a("s_waitcnt lgkmcnt(0)")
    ts(1)

    def reads(fs, ks):
        f = FS[fs]
        L = []
        L.append(f"ds_read_b128 v[{f}:{f+3}], v{XA[ks]}")
        L.append(f"ds_read_b128 v[{f+24}:{f+27}], v{BA[ks]}")
        L.append(f"ds_read_b128 v[{f+4}:{f+7}], v{XA[ks]} offset:4096")
        for gu in range(2):
            for ft in range(2):
                for j in range(2):
                    d = f + 8 + 8 * gu + 4 * ft + 2 * j
                    L.append(f"ds_read_b64_tr_b16 v[{d}:{d+1}], v{WA[ft]} offset:{gu*8192 + ks*2048 + j*512}")
        return L
    def mfmas(fs):
        f = FS[fs]
        X = [f, f + 4]; Bf = f + 24
        L = []
        for q in range(2):
            L.append(f"v_mfma_f32_32x32x16_bf16 v[{S(q)}:{S(q)+15}], v[{X[q]}:{X[q]+3}], v[{Bf}:{Bf+3}], v[{S(q)}:{S(q)+15}]")
        for gu in range(2):
            for ft in range(2):
                w = f + 8 + 8 * gu + 4 * ft
                for q in range(2):
                    d = (G, U)[gu](ft, q)
                    L.append(f"v_mfma_f32_32x32x16_bf16 v[{d}:{d+15}], v[{w}:{w+3}], v[{X[q]}:{X[q]+3}], v[{d}:{d+15}]")
        return L
    a("s_setprio 2")
    a("s_mov_b32 s72, 0")
    a("s_mov_b32 s74, 0")
    a("s_barrier")
    ts(2)
    for t in reads(0, 0): a(t)
    a.label("L_c_loop")
    need = {0: 9, 1: 8, 2: 6, 4: 4, 6: 2, 8: 0}
    for ks in range(4):
        fs = ks & 1
        M = mfmas(fs)
        if ks < 3:
            Rd = reads(1 - fs, ks + 1)
            issued = 0
            for i, m in enumerate(M):
                if i in need: a(f"s_waitcnt lgkmcnt({min(15, need[i] + issued)})")
                a(m)
                for _ in range(2 if i >= cfg.rdstart else 0):
                    if Rd: a(Rd.pop(0)); issued += 1
        else:
            Rd = reads(1 - fs, 0)
            a("s_waitcnt lgkmcnt(9)")
            a(M[0])
            a("s_add_u32 s74, s74, 1")
            a("s_cmp_eq_u32 s74, 3")
            a("s_mov_b32 s75, 53248")
            a(f"s_cmov_b32 s75, {(-106496) & 0xffffffff:#x}")
            a("s_cselect_b32 s74, 0, s74")
            for v in XA + BA[:1]: a(f"v_add_u32 v{v}, s75, v{v}")
            a("s_waitcnt lgkmcnt(8)")
            a(M[1])
            for v in BA[1:] + WA: a(f"v_add_u32 v{v}, s75, v{v}")
            a("s_add_u32 s72, s72, 1")
            a("s_cmp_eq_u32 s72, 6")
            a("s_waitcnt lgkmcnt(0)")
            a(M[2])
            a("s_barrier")
            hist = list(a.hist)
            a("s_cbranch_scc1 L_c_last")
            for m in M[3:]:
                for _ in range(2):
                    if Rd: a(Rd.pop(0))
                a(m)
            a("s_branch L_c_loop")
            a.label("L_c_last")
            a.hist = hist
            Mtail = M[3:]
    lq = []
    def ds_issue(tag, t):
        a(t)
        if t.startswith("ds_"): lq.append(tag)
    def ds_wait(tag):
        idx = max((i for i, t in enumerate(lq) if t == tag), default=None)
        if idx is None: return None
        n = len(lq) - 1 - idx
        del lq[:idx + 1]
        return f"lgkmcnt({min(n, 15)})"
    def dwait(tag):
        w = ds_wait(tag)
        if w: a(f"s_waitcnt {w}")
    UB = [24, 40, 56]
    def ureads(u):
        b, ks = UB[u % 3], u % 4
        L = [f"ds_read_b128 v[{b}:{b+3}], v{XA[ks]}"]
        if u < 8:
            ft = u // 4
            for gu in range(2):
                for j in range(2):
                    d = b + 8 + 4 * gu + 2 * j
                    L.append(f"ds_read_b64_tr_b16 v[{d}:{d+1}], v{WA[ft]} offset:{gu*8192 + ks*2048 + j*512}")
        else:
            L.append(f"ds_read_b128 v[{b+8}:{b+11}], v{BA[ks]}")
        L.append(f"ds_read_b128 v[{b+4}:{b+7}], v{XA[ks]} offset:4096")
        return [(u, t) for t in L]
    def umfma(u):
        b = UB[u % 3]
        L = []
        for q in range(2):
            x = b + 4 * q
            if u < 8:
                for gu in range(2):
                    d = (G, U)[gu](u // 4, q); w = b + 8 + 4 * gu
                    L.append(f"v_mfma_f32_32x32x16_bf16 v[{d}:{d+15}], v[{w}:{w+3}], v[{x}:{x+3}], v[{d}:{d+15}]")
            else:
                L.append(f"v_mfma_f32_32x32x16_bf16 v[{S(q)}:{S(q)+15}], v[{x}:{x+3}], v[{b+8}:{b+11}], v[{S(q)}:{S(q)+15}]")
        return L
    Rd = ureads(0) + ureads(1)
    for m in Mtail:
        for _ in range(2):
            if Rd: ds_issue(*Rd.pop(0))
        a(m)
    CH = 72
    def chalf(p):
        for gu in range(2):
            for k in range(2):
                ds_issue(('c', p), f"ds_read_b128 v[{CH+8*gu+4*k}:{CH+8*gu+4*k+3}], v{vCL} offset:{256*gu + 32*(2*p+k)}")
    def hstore(ft, q, p):
        g = G(ft, q)
        vm.issue('h', f"buffer_store_dwordx4 v[{g+4*p}:{g+4*p+3}], v{vL16}, s[{SRD_WS}:{SRD_WS+3}], s{56+q} offen offset:{(2*ft+p)*1024}{SP}")
    ep = [lambda: dwait(('c', 0)), f"v_xor_b32 v{MM}, 0x80000000, v{MM}", f"v_xor_b32 v{MM+1}, 0x80000000, v{MM+1}"]
    for p in range(2):
        if p: ep.append(lambda: dwait(('c', 1)))
        for q in range(2):
            g, u = G(0, q) + 8 * p, U(0, q) + 8 * p
            for k in range(8): ep.append(f"v_fmac_f32 v{g+k}, v{MM+q}, v{CH+k}")
            for k in range(8): ep.append(f"v_fmac_f32 v{u+k}, v{MM+q}, v{CH+8+k}")
            if q == 1 and p == 0: ep.append(lambda: chalf(1))
            for k in range(8): ep.append(f"v_max_f32 v{g+k}, 0, v{g+k}")
            for k in range(8): ep.append(f"v_mul_f32 v{u+k}, v{u+k}, v{g+k}")
            for k in range(4): ep.append(f"v_cvt_pk_bf16_f32 v{G(0,q)+4*p+k}, v{u+2*k}, v{u+2*k+1}")
            ep.append(lambda q=q, p=p: hstore(0, q, p))
    def fill(n):
        while n > 0 and ep:
            t = ep.pop(0)
            if callable(t): t()
            else: a(t)
            n -= 1
    def cread(tag, dst, off):
        for k in range(4): ds_issue(tag, f"ds_read_b128 v[{dst+4*k}:{dst+4*k+3}], v{vCL} offset:{off + 32*k}")
    for u in range(12):
        dwait(u)
        if u == 11:
            a("s_barrier")
        Rd = ureads(u + 2) if u + 2 < 12 else []
        for i, m in enumerate(umfma(u)):
            a(m)
            for _ in range(2):
                if Rd: ds_issue(*Rd.pop(0))
            if u > 4 or (u == 4 and i >= 1): fill(cfg.fper - 1 if u < 10 else cfg.fper)
        if u == cfg.c2u:
            a("s_barrier")
            ds_issue(('c', 0), f"ds_read_b32 v{MM}, v{vStF}")
            ds_issue(('c', 0), f"ds_read_b32 v{MM+1}, v{vStF} offset:256")
            chalf(0)
        if u == 9: cread('cg', UB[0], 128)
        if u == 10: cread('cu', UB[1], 384)
    ts(3)
    fill(1000)
    dump = [f"ds_write_b128 v{vPQ}, v[{S(0)+4*k}:{S(0)+4*k+3}] offset:{SD + 1024*k}" for k in range(8)]
    WB = {0: [1, 2], 1: [3, 4], 2: [5, 6]}
    for rg in range(3):
        a(f"v_add_u32 v{WB[rg][0]}, {R[rg]}, v{vWB}")
        a(f"v_xor_b32 v{WB[rg][1]}, 64, v{WB[rg][0]}")
    dwait('cu')
    cg, cu = UB[0], UB[1]
    for q in range(2):
        g, u = G(1, q), U(1, q)
        sel = f"op_sel:[{q},0,0] op_sel_hi:[{q},1,1]"
        for p in range(2):
            kr = range(4 * p, 4 * p + 4)
            for k in kr:
                a(f"v_pk_fma_f32 v[{g+2*k}:{g+2*k+1}], v[{MM}:{MM+1}], v[{cg+2*k}:{cg+2*k+1}], v[{g+2*k}:{g+2*k+1}] {sel}")
                if dump: a(dump.pop(0))
            for k in kr:
                a(f"v_pk_fma_f32 v[{u+2*k}:{u+2*k+1}], v[{MM}:{MM+1}], v[{cu+2*k}:{cu+2*k+1}], v[{u+2*k}:{u+2*k+1}] {sel}")
                a(f"v_max_f32 v{g+2*k}, 0, v{g+2*k}")
                a(f"v_max_f32 v{g+2*k+1}, 0, v{g+2*k+1}")
            for k in kr:
                a(f"v_pk_mul_f32 v[{u+2*k}:{u+2*k+1}], v[{u+2*k}:{u+2*k+1}], v[{g+2*k}:{g+2*k+1}]")
            for k in kr:
                a(f"v_cvt_pk_bf16_f32 v{g+k}, v{u+2*k}, v{u+2*k+1}")
            if q == 0 and p == 1:
                a("s_waitcnt lgkmcnt(0)")
                a("s_barrier")
            hstore(1, q, p)
    del lq[:]
    ts(4)
    BR, NB = 160, 12
    def breads(p):
        sl = WSLOT[p]
        rg = max(k for k in range(3) if R[k] <= sl)
        L = []
        for lc in range(2):
            for jj in range(2):
                d = BR + 8 * (p % NB) + 4 * lc + 2 * jj
                L.append(f"ds_read_b64_tr_b16 v[{d}:{d+1}], v{WB[rg][lc]} offset:{sl - R[rg] + jj*1024}")
        return L
    for p in range(NB):
        for t in breads(p): a(t)
    def flag1():
        vm.wait('h')
        a("s_setprio 3")
        a("s_mov_b64 exec, 1")
        vm.issue('f', f"buffer_store_dword v{vOne}, v{vF}, s[{SRD_WS}:{SRD_WS+3}], 0 offen sc1")
        a("s_mov_b64 exec, -1")
        ts(6)
    if cfg.fpre: flag1()
    a("s_waitcnt lgkmcnt(0)")
    a("s_barrier")
    ts(5)
    if not cfg.fpre: flag1()
    AF = 96
    AR = list(range(24, 96, 4))
    NA = len(AR)
    def aload(n):
        p, lr = n // 2, n % 2
        if n % 8 == 0:
            a(f"s_lshl_b32 s11, s60, 12")
            a(f"s_add_u32 s54, s11, s52")
            a(f"s_add_u32 s53, s11, s51")
            a(f"s_add_u32 s60, s60, 1")
            a(f"s_cmp_eq_u32 s60, 7")
            a(f"s_cselect_b32 s60, 0, s60")
        d = AR[n % NA]
        vm.issue(('a', n), f"buffer_load_dwordx4 v[{d}:{d+3}], v{vL16}, s[{SRD_WS}:{SRD_WS+3}], s{54 - lr} offen offset:{(p%4)*1024}{AP}")
    def cond():
        a("s_and_b64 s[16:17], s[16:17], s[18:19]")
        a("s_and_b64 s[16:17], s[16:17], s[20:21]")
        a("s_and_b32 s16, s16, s17")
        a("s_and_b32 s16, s16, s22")
        a("s_cmp_eq_u32 s16, 1")
    sspin(a, "L_pf", [f"s_load_dwordx8 s[16:23], s[{P_WS}:{P_WS+1}], s55 glc"], cond, cfg.fsleep)
    a("s_setprio 2")
    ts(7)
    for n in range(cfg.a0): aload(n)
    nxt = [cfg.a0]
    ts(8)
    def lds_spin(name, vaddr, off, val):
        a("s_mov_b32 s73, 0")
        a.label(name)
        a("s_waitcnt lgkmcnt(0)")
        a("v_readfirstlane_b32 s11, v8")
        a(f"s_cmp_ge_u32 s11, {val}")
        a(f"s_cbranch_scc1 {name}ok")
        a("s_add_u32 s73, s73, 1")
        a(f"s_cmp_ge_u32 s73, {SPIN_MAX}")
        a(f"s_cbranch_scc1 {name}ok")
        a("s_sleep 1")
        a(f"ds_read_b32 v8, v{vaddr} offset:{off}")
        a(f"s_branch {name}")
        a.label(name + "ok")
        del lq[:]
    for p in range(28):
        f = BR + 8 * (p % NB)
        pn = p + cfg.bd
        for lr in range(2):
            n = 2 * p + lr
            w = ds_wait(p) if lr == 0 else None
            vm.wait(('a', n), w or "")
            if n == 0: ts(9)
            if n in (0, 7, 17, 25, 35): ts.x(6, {0: 7, 7: 8, 17: 9, 25: 10, 35: 11}[n])
            if lr == 0 and pn in (12, 16, 22): ds_issue('r', f"ds_read_b32 v8, v{vRd}")
            d = AR[n % NA]
            for lc in range(2):
                acc = AF + 32 * lr + 16 * lc
                c = "0" if p == 0 else f"v[{acc}:{acc+15}]"
                a(f"v_mfma_f32_32x32x16_bf16 v[{acc}:{acc+15}], v[{d}:{d+3}], v[{f+4*lc}:{f+4*lc+3}], {c}")
            for _ in range(2):
                if nxt[0] < 56 and nxt[0] <= n + NA:
                    aload(nxt[0]); nxt[0] += 1
        if pn in (12, 16, 22): lds_spin(f"L_c_r{pn}", vRd, 0, {12: 1, 16: 2, 22: 3}[pn])
        if p == cfg.ksig:
            assert pn > 15
            w = ds_wait(15)
            if w: a(f"s_waitcnt {w}")
            a("s_mov_b64 exec, 1")
            ds_issue('c', f"ds_add_u32 v{vCn}, v{vOne} offset:4")
            a("s_mov_b64 exec, -1")
        if NB <= pn < 28:
            for t in breads(pn): ds_issue(pn, t)
        if p == 24:
            STT = BR + 32
            for k in range(8): ds_issue('st', f"ds_read_b128 v[{STT+4*k}:{STT+4*k+3}], v{vSo} offset:{16*k}")
        if p == 26:
            for x in range(1, 4):
                a(f"s_xor_b32 s11, s{S_W4}, {x}")
                a(f"s_mul_i32 s11, s11, {Q}")
                a(f"s_add_u32 s11, s11, {FXA + (x-1)*4096}")
                a(f"v_add_u32 v{x}, s11, v{vL16}")
            a(f"v_add_u32 v4, {GA}, v{vPQ}")
            a(f"v_add_u32 v5, {FXA}, v{vPQ}")
        if p % 4 == 3: ts.x(4, 1 + p // 4)
    ts(11)
    ts.x(7, 1)
    for x in (2, 1, 3):
        src = AF + 32 * (x & 1) + 16 * (x >> 1)
        for k in range(4):
            a(f"ds_write_b128 v5, v[{src+4*k}:{src+4*k+3}] offset:{(x-1)*4096 + 1024*k}")
    a("s_waitcnt lgkmcnt(12)")
    for r in range(16): a(f"v_mul_f32 v{STT+2*r}, v{STT+2*r+1}, v{STT+2*r+1}")
    a(f"s_mov_b32 s13, {LOG2E ^ 0x80000000:#x}")
    ts.x(7, 2)
    a("s_waitcnt lgkmcnt(0)")
    ts.x(7, 3)
    a("s_mov_b64 exec, 1")
    a(f"ds_add_u32 v{vCn}, v{vOne}")
    a("s_mov_b64 exec, -1")
    a(f"ds_read_b32 v8, v{vCn}")
    lds_spin("L_c_cnt", vCn, 0, 4)
    ts.x(7, 4)
    O, RX, EX = AF, 24, 72
    for k in range(4):
        for x in range(1, 4):
            a(f"ds_read_b128 v[{RX+16*(x-1)+4*k}:{RX+16*(x-1)+4*k+3}], v{x} offset:{1024*k}")
    for k in range(4):
        rr = range(4 * k, 4 * k + 4)
        a(f"s_waitcnt lgkmcnt({9 - 3*k})")
        for r in rr: a(f"v_add_f32 v{O+r}, v{O+r}, v{RX+r}")
        for r in rr: a(f"v_add_f32 v{RX+16+r}, v{RX+16+r}, v{RX+32+r}")
        for r in rr: a(f"v_add_f32 v{O+r}, v{O+r}, v{RX+16+r}")
        for r in rr: a(f"v_mul_f32 v{O+r}, v{O+r}, v{STT+2*r}")
        for r in rr: a(f"v_mul_f32 v{EX+r}, s13, v{O+r}")
        for r in rr: a(f"v_exp_f32 v{EX+r}, v{EX+r}")
    ts.x(7, 5)
    for k in range(4):
        rr = range(4 * k, 4 * k + 4)
        for r in rr: a(f"v_add_f32 v{EX+r}, 1.0, v{EX+r}")
        for r in rr: a(f"v_rcp_f32 v{EX+r}, v{EX+r}")
        for r in rr: a(f"v_mul_f32 v{O+r}, v{O+r}, v{EX+r}")
        a(f"ds_write_b128 v4, v[{O+4*k}:{O+4*k+3}] offset:{1024*k}")
    a("s_waitcnt lgkmcnt(0)")
    ts(12)
    a("s_barrier")
    ts.dump(24, 25, 0)
    a("s_endpgm")

HEADER = """; Fused S5-SSM + ReGLU block, one launch: 224 main workgroups (4 MFMA waves + 4 loader waves) + 32 helper workgroups.
; @launch grid=(256,1,1) block=(512,1,1) lds=163840
.amdgcn_target "amdgcn-amd-amdhsa--gfx950"
.text
.globl {k}
.p2align 8
.type {k},@function
{k}:
"""
FOOTER = """.section .rodata,"a"
.p2align 6
.amdhsa_kernel {k}
  .amdhsa_next_free_vgpr 256
  .amdhsa_next_free_sgpr 102
  .amdhsa_accum_offset 256
  .amdhsa_group_segment_fixed_size 0
  .amdhsa_kernarg_size 128
  .amdhsa_user_sgpr_count 2
  .amdhsa_user_sgpr_kernarg_segment_ptr 1
  .amdhsa_system_sgpr_workgroup_id_x 1
  .amdhsa_float_denorm_mode_32 3
.end_amdhsa_kernel
"""

def generate(cfg):
    WSOFF[0] = cfg.wsoff << 20
    a = Asm()
    ts = TS(a, cfg)
    gen_entry(a, cfg, ts)
    gen_loader(a, cfg, ts)
    gen_consumer(a, cfg, ts)
    gen_helper(a, cfg, ts)
    a.label("L_exit")
    a("s_endpgm")
    return HEADER.format(k=KNAME) + f"; wsoff={cfg.wsoff}\n" + a.text() + FOOTER.format(k=KNAME)

if __name__ == "__main__":
    cfg = Cfg()
    out = sys.argv[1]
    for kv in sys.argv[2:]:
        k, v = kv.split("=")
        setattr(cfg, k, int(v))
    open(out, "w").write(generate(cfg))
```

```python
import sys, os
sys.path.insert(0, os.path.dirname(os.path.abspath(__file__)))
from asmlib import Asm, VM

KNAME = "recurrent_scan__ssm_conv_s5__glu_gated_reglu__prompt_kernel"

R = [0, 53248, 106496]
MISC = 159744
OFF_WG, OFF_WU, OFF_BB = 32768, 40960, 49152
CP_L = R[1] + 49152
STATS_L = MISC
C_L = MISC + 2048
CNT_L = MISC + 2688
ST2_L = MISC + 2720
AGG_L = MISC + 3232
Q = 12288

RT_BYTES = 172032
HALF_BYTES = 86016
WS_STATS = 0xB00000
WS_AGG = WS_STATS + 0x4000
WS_FLAG = WS_AGG + 0x8000
INIT_N = 32
WS_CP = 0xB20000
WS_TS = 0xC00000
WS_SIZE = 0x1000000
SPIN_MAX = 1 << 20

S_WAVE, S_XCD, S_SLOT, S_MT, S_NS, S_M64, S_NT, S_W4 = 3, 4, 5, 6, 7, 8, 9, 10
P_X, P_LRE, P_LIM, P_BRE, P_BIM, P_CRE, P_CIM, P_LDT, P_DSK, P_BX, P_WG, P_WU, P_WD, P_OUT, P_DBG, P_WS = [16 + 2 * i for i in range(16)]
SRD_X, SRD_A, SRD_B, SRD_C, SRD_WS, SRD_E = 48, 52, 56, 60, 64, 68
TS0 = 76

LOG2E = 0x3fb8aa3b
LOG2E_LO = 0x32a57060
LN2 = 0x3f317218
INV2PI = 0x3e22f983

class Cfg:
    ts = 0
    tsset = 0
    pd = 16
    perm = 4
    rot = 2
    ssm_early = 0
    schedn = 0
    polx = 0
    apol = 1
    noa = 0
    nob = 0
    rdstart = 1
    polw = 0
    winn = 3
    loc = 1
    gate = 2
    c0n = 8
    agpos = 0
    c0early = 0
    hord = 1
    clate = 2
    wl = 1
    fper = 6
    c2u = 2
    probe = 0
    pwho = 0
    ponly = -1
    pmask = 0xffff
    wsoff = 0
    kwin = 2
    wprio = 0
    hdelay = 0
    eprio = 0
    c2late = 0
    cpf = 2
    padto = 0
    nocs = 0
    r2pre = 1
    tlb = 0
    bd = 4
    pollw = 24
    c1 = 12
    c2 = 16
    f2b = 1
    wfirst = 1
    @property
    def win(self):
        W = lambda a, b: [f"w{p}" for p in range(a, b)]
        return [
            {-1: ["s1:0-6"], 0: ["cs0", "s1:6-13", "k", "s2:0-9"], 1: ["cs1", "s2:9-13", "s3", "e"], 2: ["cs2", "s4"] + W(12, 14), 3: ["cs3", "s5"] + W(14, 17),
             4: ["cs4", "init", "s6:0-7", "cs5", "s6:7-13", "w17"], 5: ["fetch"] + W(0, 4) + ["cs6"] + W(4, 6) + W(18, 20) + ["put"], 6: W(6, 12) + W(20, 22)},
            {-1: ["s1:0-6"], 0: ["cs0", "s1:6-13", "k", "s2:0-9"], 1: ["cs1", "s2:9-13", "s3", "e"], 2: ["cs2", "s4"] + W(12, 15), 3: ["cs3", "s5"] + W(15, 18),
             4: ["cs4", "init", "s6"] + W(18, 20), 5: ["cs5", "fetch"] + W(0, 3) + ["cs6"] + W(3, 6) + ["put"], 6: W(6, 12) + W(20, 22)},
            {-1: ["s1:0-6"], 0: ["cs0", "s1:6-13", "k", "s2:0-9"], 1: ["cs1", "s2:9-13", "s3", "e"], 2: ["cs2", "s4"] + W(12, 15), 3: ["cs3", "s5:0-7", "cs4", "s5:7-13", "w15"],
             4: ["init", "s6:0-4", "cs5", "s6:4-13"] + W(16, 19), 5: ["fetch"] + W(0, 4) + ["cs6"] + W(4, 6) + W(19, 22) + ["put"], 6: W(6, 12)},
            {-1: ["s1:0-6"], 0: ["cs0", "s1:6-13", "k", "s2:0-9"], 1: ["cs1", "s2:9-13", "s3", "e"], 2: ["cs2", "s4"] + W(12, 15), 3: ["cs3", "s5"] + W(15, 18),
             4: ["cs4", "init", "s6:0-7", "cs5", "s6:7-13", "w18", "w19"], 5: ["fetch"] + W(0, 4) + ["cs6"] + W(4, 6) + W(20, 22) + ["c3", "put"], 6: W(6, 12) + ["c1"]},
            {-1: ["s1:0-6"], 0: ["cs0", "s1:6-13", "k", "s2:0-9"], 1: ["cs1", "s2:9-13", "s3", "e"], 2: ["cs2", "s4"] + W(12, 14), 3: ["cs3", "s5"] + W(14, 17),
             4: ["cs4", "init", "s6:0-7", "cs5", "s6:7-13", "w17"], 5: ["fetch"] + W(0, 4) + ["cs6"] + W(4, 6) + W(18, 20) + ["put"], 6: W(6, 12) + W(20, 22) + ["c3"]},
            {-1: ["s1:0-6"], 0: ["cs0", "s1:6-13", "k", "s2:0-9"], 1: ["cs1", "s2:9-13", "s3", "e"], 2: ["cs2", "s4"] + W(12, 15), 3: ["cs3", "s5"] + W(15, 19),
             4: ["cs4", "init", "s6:0-7", "cs5", "s6:7-13"] + W(19, 22), 5: ["fetch"] + W(0, 4) + ["cs6"] + W(4, 6) + ["c1", "put"], 6: W(6, 12) + ["c3"]},
            {-1: ["s1:0-6"], 0: ["cs0", "s1:6-13", "k", "s2"], 1: ["cs1", "s3", "e"] + W(12, 14), 2: ["cs2", "s4"] + W(14, 17), 3: ["cs3", "s5"] + W(17, 20),
             4: ["cs4", "init", "s6:0-7", "cs5", "s6:7-13"] + W(20, 22), 5: ["fetch"] + W(0, 4) + ["cs6"] + W(4, 6) + ["c1", "put"], 6: W(6, 12) + ["c3"]},
            {-1: ["s1:0-6"], 0: ["cs0", "s1:6-13", "k", "s2:0-9"], 1: ["cs1", "s2:9-13", "s3", "e"], 2: ["cs2", "s4"] + W(12, 15), 3: ["cs3", "s5:0-7", "cs4", "s5:7-13"] + W(15, 18),
             4: ["init", "s6:0-4", "cs5", "s6:4-13"] + W(18, 22), 5: ["fetch"] + W(0, 4) + ["cs6"] + W(4, 6) + ["c1", "put"], 6: W(6, 12) + ["c3"]},
            {-1: ["s1:0-6"], 0: ["cs0", "s1:6-13", "k", "s2:0-9"], 1: ["cs1", "s2:9-13", "s3", "e"], 2: ["cs2", "s4"], 3: ["cs3", "s5"] + W(12, 16),
             4: ["cs4", "init", "s6:0-7", "cs5", "s6:7-13"] + W(16, 19), 5: ["fetch"] + W(0, 4) + ["cs6"] + W(4, 6) + W(19, 22) + ["c3", "put"], 6: W(6, 12) + ["c1"]},
            {-1: ["s1:0-6"], 0: ["cs0", "s1:6-13", "k", "s2"], 1: ["cs1", "s3", "e"], 2: ["cs2", "s4"] + W(12, 14), 3: ["cs3", "s5"] + W(14, 18),
             4: ["cs4", "init", "s6:0-7", "cs5", "s6:7-13", "w18", "w19"], 5: ["fetch"] + W(0, 4) + ["cs6"] + W(4, 6) + W(20, 22) + ["c3", "put"], 6: W(6, 12) + ["c1"]},
            {-1: ["s1:0-3"], 0: ["cs0", "s1:3-13", "k", "s2:0-8"], 1: ["cs1", "s2:8-13", "s3"], 2: ["cs2", "s4", "e"] + W(12, 14), 3: ["cs3", "s5"] + W(14, 18),
             4: ["cs4", "init", "s6:0-7", "cs5", "s6:7-13", "w18", "w19"], 5: ["fetch"] + W(0, 4) + ["cs6"] + W(4, 6) + W(20, 22) + ["c3", "put"], 6: W(6, 12) + ["c1"]},
            {-1: ["s1:0-6"], 0: ["cs0", "s1:6-13", "k", "s2:0-9"], 1: ["cs1", "s2:9-13", "s3", "e"], 2: ["cs2", "s4"] + W(12, 15), 3: ["cs3", "init", "s5"] + W(15, 18),
             4: ["cs4", "fetch", "s6:0-7", "cs5", "s6:7-13", "w18", "w19"], 5: ["put"] + W(0, 4) + ["cs6"] + W(4, 6) + W(20, 22) + ["c3"], 6: W(6, 12) + ["c1"]},
        ][self.winn]
    nw1 = 6
    flagr = -1
    xs = 1
    psleep = 2
    fsleep = 2
    ttper = 2
    f2n = 9
    fpre = 1
    a0 = 18
    sprio = 0
    ksig = 12
    opol = 1
    lprio = 3
    w12early = 0
    slab = 0
    spol = 1
    fpol = 1
    pollr = 4
    nw2 = 16
    thr = 15
    hpf = 2
    ky = 2
    @property
    def perms(self):
        return {
            0: [[0, 1, 2, 3, 4, 5, 6]],
            1: [[0, 1, 2, 3, 4, 5, 6], [1, 2, 0, 4, 5, 3, 6], [2, 0, 1, 5, 3, 4, 6]],
            2: [[0, 1, 2, 3, 4, 5, 6], [1, 0, 3, 2, 5, 4, 6]],
            3: [[0, 1, 2, 3, 4, 5, 6], [1, 0, 4, 5, 6, 2, 3], [0, 1, 6, 2, 3, 4, 5]],
            4: [[0, 1, 2, 3, 4, 5, 6], [1, 2, 0, 4, 6, 3, 5], [2, 0, 1, 5, 6, 3, 4]],
            5: [[0, 1, 2, 3, 4, 5, 6], [1, 2, 3, 0, 5, 6, 4], [2, 3, 0, 1, 6, 4, 5], [3, 0, 1, 2, 4, 5, 6]],
        }[self.perm]

WSOFF = [0]
def srd(a, d, ptr, nbytes):
    if ptr == P_WS and WSOFF[0]:
        a(f"s_add_u32 s{ptr}, s{ptr}, {WSOFF[0]:#x}")
        a(f"s_addc_u32 s{ptr+1}, s{ptr+1}, 0")
    a(f"s_mov_b32 s{d}, s{ptr}")
    a(f"s_and_b32 s{d+1}, s{ptr+1}, 0xffff")
    a(f"s_mov_b32 s{d+2}, {nbytes:#x}")
    a(f"s_mov_b32 s{d+3}, 0x20000")

def srd_sel(a, d, ptr1, ptr0, nbytes):
    a(f"s_cselect_b32 s{d}, s{ptr1}, s{ptr0}")
    a(f"s_cselect_b32 s{d+1}, s{ptr1+1}, s{ptr0+1}")
    a(f"s_and_b32 s{d+1}, s{d+1}, 0xffff")
    a(f"s_mov_b32 s{d+2}, {nbytes:#x}")
    a(f"s_mov_b32 s{d+3}, 0x20000")

class TS:
    def __init__(self, a, cfg):
        self.a, self.on, self.n, self.set = a, cfg.ts, 0, cfg.tsset
        self.cfg = cfg
    def x(self, setno, i):
        if self.on and self.set == setno: self.emit(i)
    def __call__(self, i):
        if self.on and (self.set == 0 or i in (0, 12)): self.emit(i)
    def emit(self, i):
        if self.on == 5 and i not in (0, self.cfg.probe): return
        if self.on:
            assert i < 13
            self.a(f"{'s_memrealtime' if self.on != 2 else 's_memtime'} s[{TS0+2*i}:{TS0+2*i+1}]")
    def init(self):
        if self.on:
            for i in range(1, 13): self.a(f"s_mov_b32 s{TS0+2*i}, 0")
    def dump(self, vt, vt2, who=2):
        if not self.on: return
        a = self.a
        if self.on == 5:
            if who != self.cfg.pwho: return
            lab = a.newlabel("L_probe")
            if self.cfg.ponly >= 0:
                a(f"s_and_b32 s11, s2, {self.cfg.pmask}")
                a(f"s_cmp_lg_u32 s11, {self.cfg.ponly}")
                a(f"s_cbranch_scc1 {lab}_x")
            p = TS0 + 2 * self.cfg.probe
            a("s_waitcnt lgkmcnt(0)")
            a(f"s_sub_u32 s11, s{p}, s{TS0}")
            a(f"s_cmp_eq_u32 s{p}, 0")
            a("s_cselect_b32 s11, 0, s11")
            a("s_lshl_b32 s11, s11, 2")
            a("s_add_u32 s11, s11, 3000")
            a.label(lab)
            a("s_memrealtime s[12:13]")
            a("s_waitcnt lgkmcnt(0)")
            a(f"s_sub_u32 s12, s12, s{TS0}")
            a("s_cmp_lt_u32 s12, s11")
            a(f"s_cbranch_scc1 {lab}")
            a.label(lab + "_x")
            return
        if self.on == 3:
            a("s_waitcnt vmcnt(0) lgkmcnt(0)")
            lab = a.newlabel("L_nod")
            a(f"s_cmp_eq_u32 s{TS0+24}, 0")
            a(f"s_cbranch_scc1 {lab}")
            a(f"s_cmp_lg_u32 s{S_WAVE}, 0")
            a(f"s_cbranch_scc1 {lab}")
            a("s_mov_b64 exec, 1")
            a(f"v_mov_b32 v{vt2}, 0")
            a(f"s_not_b32 s11, s{TS0}")
            a(f"v_mov_b32 v{vt}, s11")
            a(f"global_atomic_umax v{vt2}, v{vt}, s[{P_DBG}:{P_DBG+1}] offset:4 sc1")
            for n, i in enumerate([0, 1, 2, 3, 4, 5, 6, 7, 8, 9, 10, 11, 12]):
                a("s_waitcnt vmcnt(0)")
                a(f"v_mov_b32 v{vt}, s{TS0+2*i}")
                a(f"global_atomic_umax v{vt2}, v{vt}, s[{P_DBG}:{P_DBG+1}] offset:{8+4*n} sc1")
            a("s_waitcnt vmcnt(0)")
            a.label(lab)
            return
        a("s_waitcnt vmcnt(0) lgkmcnt(0)")
        a(f"s_lshl_b32 s11, s2, 9")
        a(f"s_lshl_b32 s12, s{S_WAVE}, 6")
        a("s_add_u32 s11, s11, s12")
        a(f"s_add_u32 s11, s11, {WS_TS:#x}")
        a(f"v_mov_b32 v{vt2}, s11")
        for i in range(13):
            a(f"v_mov_b32 v{vt}, s{TS0+2*i}")
            a(f"buffer_store_dword v{vt}, v{vt2}, s[{SRD_WS}:{SRD_WS+3}], 0 offen offset:{4*i}")
        a("s_waitcnt vmcnt(0)")

def round_bf16(a, dst, src):
    a(f"v_cvt_pk_bf16_f32 v{dst}, v{src}, v{src}")
    a(f"v_lshlrev_b32 v{dst}, 16, v{dst}")

def exp_acc(a, dst, x, t0, t1):
    a(f"s_mov_b32 s36, {LOG2E:#x}")
    a(f"s_mov_b32 s37, {LOG2E_LO:#x}")
    a(f"v_mul_f32 v{t0}, s36, v{x}")
    a(f"v_fma_f32 v{t1}, v{x}, s36, -v{t0}")
    a(f"v_fma_f32 v{t1}, v{x}, s37, v{t1}")
    a(f"v_mul_f32 v{t1}, {LN2:#x}, v{t1}")
    a(f"v_exp_f32 v{dst}, v{t0}")
    a(f"v_fma_f32 v{dst}, v{dst}, v{t1}, v{dst}")

def csq(a, dr, di, sr, si, t):
    a(f"v_mul_f32 v{t}, v{si}, v{si}")
    a(f"v_add_f32 v{di}, v{si}, v{si}")
    a(f"v_mul_f32 v{di}, v{di}, v{sr}")
    a(f"v_fma_f32 v{dr}, v{sr}, v{sr}, -v{t}")

def cmul(a, dr, di, ar, ai, br, bi):
    a(f"v_mul_f32 v{dr}, v{ar}, v{br}")
    a(f"v_mul_f32 v{di}, v{ar}, v{bi}")
    a(f"v_fma_f32 v{dr}, -v{ai}, v{bi}, v{dr}")
    a(f"v_fma_f32 v{di}, v{ai}, v{br}, v{di}")

def ssm_const_load(a, vm, t):
    a(f"v_and_b32 v{t+3}, 15, v0")
    a(f"s_lshl_b32 s11, s{S_NS}, 4")
    a(f"v_add_lshl_u32 v{t+3}, v{t+3}, s11, 1")
    vm.issue('sc', f"global_load_ushort v{t}, v{t+3}, s[{P_LRE}:{P_LRE+1}]")
    vm.issue('sc', f"global_load_ushort v{t+1}, v{t+3}, s[{P_LIM}:{P_LIM+1}]")
    vm.issue('sc', f"global_load_ushort v{t+2}, v{t+3}, s[{P_LDT}:{P_LDT+1}]")

def ssm_const_calc(a, t, lr, li, cr=None, ci=None):
    for k in range(3): a(f"v_lshlrev_b32 v{t+k}, 16, v{t+k}")
    exp_acc(a, t + 3, t + 2, t + 4, t + 5)
    round_bf16(a, t + 2, t + 3)
    a(f"v_mul_f32 v{t+3}, v{t+2}, v{t}")
    a(f"v_mul_f32 v{t+6}, v{t+2}, v{t+1}")
    exp_acc(a, t + 7, t + 3, t + 4, t + 5)
    a(f"v_mul_f32 v{t+6}, {INV2PI:#x}, v{t+6}")
    a(f"v_rndne_f32 v{t+4}, v{t+6}")
    a(f"v_sub_f32 v{t+6}, v{t+6}, v{t+4}")
    a(f"v_cos_f32 v{t+4}, v{t+6}")
    a(f"v_sin_f32 v{t+5}, v{t+6}")
    a(f"v_mul_f32 v{lr}, v{t+7}, v{t+4}")
    a(f"v_mul_f32 v{li}, v{t+7}, v{t+5}")
    if cr is not None:
        a(f"v_add_f32 v{t+3}, -1.0, v{lr}")
        a(f"v_mul_f32 v{t+4}, v{t}, v{t}")
        a(f"v_fma_f32 v{t+4}, v{t+1}, v{t+1}, v{t+4}")
        a(f"v_rcp_f32 v{t+4}, v{t+4}")
        a(f"v_mul_f32 v{cr}, v{t+3}, v{t}")
        a(f"v_fma_f32 v{cr}, v{li}, v{t+1}, v{cr}")
        a(f"v_mul_f32 v{ci}, v{li}, v{t}")
        a(f"v_fma_f32 v{ci}, -v{t+3}, v{t+1}, v{ci}")
        a(f"v_add_f32 v{t+4}, v{t+4}, v{t+4}")
        a(f"v_mul_f32 v{cr}, v{cr}, v{t+4}")
        a(f"v_mul_f32 v{ci}, v{ci}, v{t+4}")

def gen_entry(a, cfg, ts):
    a("s_cmp_ge_u32 s2, 256")
    a("s_cbranch_scc1 L_exit")
    if cfg.padto: a("s_memrealtime s[100:101]")
    ts(0)
    a("s_load_dwordx16 s[16:31], s[0:1], 0")
    a("s_load_dwordx16 s[32:47], s[0:1], 64")
    a("v_lshrrev_b32 v1, 6, v0")
    a("v_and_b32 v0, 63, v0")
    a(f"v_readfirstlane_b32 s{S_WAVE}, v1")
    a(f"s_and_b32 s{S_XCD}, s2, 7")
    a(f"s_lshr_b32 s{S_SLOT}, s2, 3")
    if cfg.cpf == 2:
        a(f"s_cmp_lg_u32 s{S_WAVE}, 0")
        a("s_cbranch_scc1 L_nocpf")
        a("s_getpc_b64 s[12:13]")
        a.label("L_pc0")
        a(f"s_sub_u32 s12, s12, L_pc0-{KNAME}")
        a("s_subb_u32 s13, s13, 0")
        a(f"s_lshl_b32 s11, s{S_SLOT}, 10")
        a("v_lshl_add_u32 v38, v0, 4, s11")
        a(f"v_min_u32 v38, L_exit-{KNAME}, v38")
        a("global_load_dword v39, v38, s[12:13]")
        a.label("L_nocpf")
    a(f"s_and_b32 s11, s{S_SLOT}, 3")
    a(f"s_lshr_b32 s{S_NT}, s{S_SLOT}, 2")
    a(f"s_and_b32 s12, s{S_XCD}, 1")
    a(f"s_lshl_b32 s12, s12, 2")
    a(f"s_add_u32 s{S_MT}, s12, s11")
    a(f"s_lshr_b32 s12, s{S_XCD}, 1")
    a(f"s_mul_i32 s12, s12, 7")
    a(f"s_add_u32 s{S_NS}, s12, s{S_NT}")
    if cfg.slab:
        a(f"s_mov_b32 s{S_MT}, s{S_XCD}")
        a(f"s_mov_b32 s{S_NS}, s{S_SLOT}")
    if cfg.loc:
        a(f"s_and_b32 s12, s{S_XCD}, 1")
        a("s_lshl_b32 s12, s12, 2")
        a(f"s_lshr_b32 s13, s{S_XCD}, 1")
        a("s_add_u32 s12, s12, s13")
        a("s_lshl_b32 s12, s12, 2")
    else:
        a(f"s_lshl_b32 s12, s{S_XCD}, 2")
    a(f"s_add_u32 s{S_M64}, s12, s11")
    a(f"s_and_b32 s{S_W4}, s{S_WAVE}, 3")
    ts.init()
    a(f"s_cmp_ge_u32 s{S_SLOT}, 28")
    a("s_cbranch_scc1 L_helper")
    a(f"s_cmp_lt_u32 s{S_WAVE}, 4")
    a("s_cbranch_scc1 L_consumer")

def gen_helper(a, cfg, ts):
    a.label("L_helper")
    vm = VM(a)
    a(f"s_sub_u32 s73, s{S_SLOT}, 28")
    a(f"s_lshl_b32 s11, s73, 3")
    a(f"s_add_u32 s72, s11, s{S_XCD}")
    if cfg.loc: a(f"s_mov_b32 s72, s{S_M64}")
    HC = 65536
    a(f"v_mov_b32 v200, {HC}")
    a("v_mov_b32 v201, 0")
    a("ds_write_b32 v200, v201")
    def h_open():
        a("s_waitcnt lgkmcnt(0)")
        a("s_barrier")
    def h_signal(tag):
        a("v_mov_b32 v202, 1")
        a("s_mov_b64 exec, 1")
        a("ds_add_rtn_u32 v203, v200, v202")
        a("s_waitcnt lgkmcnt(0)")
        a("v_readfirstlane_b32 s11, v203")
        a("s_cmp_lg_u32 s11, 7")
        a(f"s_cbranch_scc1 L_h_ns{tag}")
        a(f"global_atomic_add v201, v202, s[{P_DBG}:{P_DBG+1}] sc1")
        a.label(f"L_h_ns{tag}")
        a("s_mov_b64 exec, -1")
    a(f"s_cmp_ge_u32 s{S_WAVE}, 4")
    a("s_cbranch_scc1 L_h_pf")
    a(f"s_lshl_b32 s11, s72, 6")
    a(f"s_lshl_b32 s12, s{S_WAVE}, 4")
    a(f"s_add_u32 s11, s11, s12")
    a("v_lshrrev_b32 v2, 3, v0")
    a("v_add_u32 v2, s11, v2")
    a("v_mul_u32_u24 v3, 896, v2")
    a("v_and_b32 v4, 7, v0")
    a("v_lshl_add_u32 v3, v4, 4, v3")
    a("s_waitcnt lgkmcnt(0)")
    srd(a, SRD_X, P_X, 2048 * 896)
    srd(a, SRD_WS, P_WS, WS_SIZE)
    a(f"s_mov_b32 s11, {8*896}")
    for ps in range(2):
        for j in range(7):
            so = "0" if ps == 0 else "s11"
            vm.issue(('x', ps), f"buffer_load_dwordx4 v[{112+28*ps+4*j}:{115+28*ps+4*j}], v3, s[{SRD_X}:{SRD_X+3}], {so} offen offset:{128*j}")
    a(f"s_cmp_gt_u32 s{S_WAVE}, 1")
    a("s_cbranch_scc1 L_h_noreset")
    a(f"s_cmp_eq_u32 s{S_WAVE}, 0")
    a("s_cselect_b32 s11, -1, 0")
    a("s_mov_b32 s12, 1024")
    a("s_cmov_b32 s12, 896")
    a(f"s_mov_b32 s13, {WS_FLAG:#x}")
    a(f"s_cmov_b32 s13, {WS_AGG:#x}")
    a("s_mul_i32 s14, s12, s72")
    a("s_add_u32 s13, s13, s14")
    for k in range(4): a(f"v_mov_b32 v{8+k}, s11")
    a("v_lshlrev_b32 v12, 4, v0")
    a("v_cmp_gt_u32 vcc, s12, v12")
    a("s_and_saveexec_b64 s[14:15], vcc")
    a(f"buffer_store_dwordx4 v[8:11], v12, s[{SRD_WS}:{SRD_WS+3}], s13 offen sc1")
    a("s_mov_b64 exec, s[14:15]")
    a.label("L_h_noreset")
    h_open()
    a("v_lshlrev_b32 v2, 3, v2")
    a("s_mov_b32 s12, 0xffff0000")
    def fin(dst):
        a("v_add_f32 v8, v8, v9")
        a("v_add_f32 v10, v10, v11")
        a(f"v_add_f32 v{dst}, v8, v10")
        a(f"v_add_f32_dpp v{dst}, v{dst}, v{dst} quad_perm:[1,0,3,2] row_mask:0xf bank_mask:0xf")
        a(f"v_add_f32_dpp v{dst}, v{dst}, v{dst} quad_perm:[2,3,0,1] row_mask:0xf bank_mask:0xf")
        a(f"v_add_f32_dpp v{dst}, v{dst}, v{dst} row_half_mirror row_mask:0xf bank_mask:0xf")
        a(f"v_mul_f32 v{dst}, 0x3b124925, v{dst}")
    for ps in range(2):
        vm.wait(('x', ps))
        if cfg.hdelay == 2 + ps: a("s_barrier")
        src = 112 + 28 * ps
        for k in range(28):
            a(f"v_lshlrev_b32 v{48+2*k}, 16, v{src+k}")
            a(f"v_and_b32 v{49+2*k}, s12, v{src+k}")
        a("v_pk_add_f32 v[8:9], v[48:49], v[52:53]")
        a("v_pk_add_f32 v[10:11], v[50:51], v[54:55]")
        for k in range(4, 28): a(f"v_pk_add_f32 v[{8+2*(k%2)}:{9+2*(k%2)}], v[{8+2*(k%2)}:{9+2*(k%2)}], v[{48+2*k}:{49+2*k}]")
        fin(12)
        for k in range(28): a(f"v_pk_add_f32 v[{48+2*k}:{49+2*k}], v[{48+2*k}:{49+2*k}], v[12:13] op_sel_hi:[1,0] neg_lo:[0,1] neg_hi:[0,1]")
        for k in range(2): a(f"v_pk_mul_f32 v[{8+2*k}:{9+2*k}], v[{48+2*k}:{49+2*k}], v[{48+2*k}:{49+2*k}]")
        for k in range(2, 28): a(f"v_pk_fma_f32 v[{8+2*(k%2)}:{9+2*(k%2)}], v[{48+2*k}:{49+2*k}], v[{48+2*k}:{49+2*k}], v[{8+2*(k%2)}:{9+2*(k%2)}]")
        fin(13)
        o = 14 + 2 * ps
        round_bf16(a, o, 12)
        round_bf16(a, 13, 13)
        a("v_add_f32 v13, 0x3727c5ac, v13")
        round_bf16(a, 13, 13)
        a("v_sqrt_f32 v13, v13")
        round_bf16(a, 13, 13)
        a(f"v_rcp_f32 v{o+1}, v13")
        a("v_cmp_eq_u32 vcc, 0, v4")
        a("s_and_saveexec_b64 s[14:15], vcc")
        a(f"s_mov_b32 s11, {WS_STATS:#x}")
        vm.issue('st', f"buffer_store_dwordx2 v[{o}:{o+1}], v2, s[{SRD_WS}:{SRD_WS+3}], s11 offen offset:{64*ps} sc1")
        a("s_mov_b64 exec, s[14:15]")
    a("s_waitcnt vmcnt(0)")
    h_signal("a")
    ts(1)
    ts.dump(8, 9)
    a("s_endpgm")
    a.label("L_h_pf")
    a("v_lshlrev_b32 v2, 4, v0")
    a(f"s_lshl_b32 s11, s{S_W4}, 10")
    a("v_add_u32 v2, s11, v2")
    if cfg.cpf == 1:
        a("s_getpc_b64 s[60:61]")
        a.label("L_pc")
        a(f"s_sub_u32 s60, s60, L_pc-{KNAME}")
        a("s_subb_u32 s61, s61, 0")
        a("s_lshl_b32 s11, s73, 12")
        a("v_add_u32 v3, s11, v2")
        for k in range(2):
            a(f"v_min_u32 v4, L_exit-{KNAME}-12, v3")
            a(f"global_load_dwordx4 v[24:27], v4, s[60:61]")
            a(f"v_add_u32 v3, 16384, v3")
    a("s_waitcnt lgkmcnt(0)")
    if cfg.hdelay == 1: a("s_waitcnt vmcnt(0)")
    if cfg.hdelay >= 2: a("s_barrier")
    srd(a, SRD_WS, P_WS, WS_SIZE)
    a("s_lshl_b32 s60, s72, 2")
    a(f"s_add_u32 s60, s60, s{S_W4}")
    a("s_cmp_ge_u32 s60, 98")
    a("s_cbranch_scc1 L_h_nopack1")
    a("s_mul_i32 s61, s60, 37")
    a("s_lshr_b32 s61, s61, 8")
    a("s_mul_i32 s62, s61, 7")
    a("s_sub_u32 s62, s60, s62")
    a("s_cmp_lt_i32 s62, 0")
    a("s_cselect_b32 s11, 1, 0")
    a("s_sub_u32 s61, s61, s11")
    a("s_mul_i32 s62, s61, 7")
    a("s_sub_u32 s62, s60, s62")
    a("s_bitcmp1_b32 s61, 0")
    srd_sel(a, 68, P_CIM, P_CRE, 448 * 896)
    a("v_lshrrev_b32 v3, 3, v0")
    a("v_and_b32 v4, 7, v0")
    a("v_lshrrev_b32 v5, 1, v3")
    a("v_xor_b32 v4, v4, v5")
    a("s_lshr_b32 s11, s61, 1")
    a("s_lshl_b32 s11, s11, 6")
    a("v_add_u32 v3, s11, v3")
    a("v_mul_u32_u24 v3, 896, v3")
    a("v_lshl_add_u32 v3, v4, 4, v3")
    a("v_xor_b32 v4, 64, v3")
    a(f"s_lshl_b32 s63, s{S_W4}, 13")
    a("s_lshl_b32 s12, s62, 7")
    for n in range(8):
        a(f"s_add_u32 m0, s63, {n*1024}")
        a(f"s_add_u32 s11, s12, {8*n*896}")
        a(f"buffer_load_dwordx4 v{3 + (n & 1)}, s[68:71], s11 offen lds")
    a.label("L_h_nopack1")
    h_open()
    def h_sweep():
        if cfg.hpf:
            for (ptr, nbytes, srdn) in ((P_WD, 1792 * 896, 56),):
                srd(a, srdn, ptr, nbytes)
            def sweep(name, srds, qbytes, first, count):
                n8 = -(-qbytes // (8 * 4096))
                n = 8 * n8
                a(f"s_mul_i32 s12, s73, {qbytes}")
                a(f"s_add_u32 s13, s{S_XCD}, {first}")
                a("s_and_b32 s13, s13, 7")
                a(f"s_mul_i32 s13, s13, {n8}")
                a("s_mov_b32 s14, 0")
                a.label(name)
                a("s_lshl_b32 s11, s13, 12")
                a("s_add_u32 s11, s11, s12")
                for k, sr in enumerate(srds):
                    a(f"buffer_load_dwordx4 v[{16+4*k}:{19+4*k}], v2, s[{sr}:{sr+3}], s11 offen")
                a("s_add_u32 s13, s13, 1")
                a(f"s_cmp_eq_u32 s13, {n}")
                a("s_cselect_b32 s13, 0, s13")
                a("s_add_u32 s14, s14, 1")
                a(f"s_cmp_lt_u32 s14, {n8 * count}")
                a(f"s_cbranch_scc1 {name}")
            sweep("L_h_p2", [56], 1792 * 896 // 4, 0, 1)
            ts(2)
    def h_pack():
        a("s_cmp_ge_u32 s60, 98")
        a("s_cbranch_scc1 L_h_nopack2")
        a("v_and_b32 v5, 31, v0")
        a("v_lshrrev_b32 v6, 5, v0")
        a("v_bfe_u32 v7, v0, 1, 3")
        a("v_xor_b32 v7, v7, v6")
        a("v_lshlrev_b32 v7, 4, v7")
        a("v_lshl_add_u32 v5, v5, 7, v7")
        a("v_add_u32 v5, s63, v5")
        a("v_lshlrev_b32 v6, 4, v0")
        a("s_mul_i32 s12, s61, 28")
        a("s_lshl_b32 s11, s62, 2")
        a("s_add_u32 s12, s12, s11")
        a("s_lshl_b32 s12, s12, 11")
        a(f"s_add_u32 s12, s12, {WS_CP:#x}")
        a(f"s_waitcnt vmcnt({13 if (cfg.hpf and not cfg.hord) else 0})")
        for ks in range(4):
            a(f"v_xor_b32 v7, {32*ks}, v5")
            for ct in range(2):
                d = 32 + 8 * ks + 4 * ct
                a(f"ds_read_b128 v[{d}:{d+3}], v7 offset:{4096*ct}")
        for ks in range(4):
            a(f"s_waitcnt lgkmcnt({6 - 2*ks})")
            a(f"s_add_u32 s11, s12, {2048*ks}")
            for ct in range(2):
                d = 32 + 8 * ks + 4 * ct
                a(f"buffer_store_dwordx4 v[{d}:{d+3}], v6, s[{SRD_WS}:{SRD_WS+3}], s11 offen offset:{1024*ct} sc1")
        a("s_waitcnt vmcnt(0)")
        a.label("L_h_nopack2")
        h_signal("b")
        ts(3)
    if cfg.hord: h_pack(); h_sweep()
    else: h_sweep(); h_pack()
    ts.dump(8, 9)
    a("s_endpgm")

def spin_check(a, name, load_text_list, cond_fn, sleep=1):
    lo, done = a.newlabel(name + "_spin"), a.newlabel(name + "_ok")
    a(f"s_mov_b32 s73, 0")
    a.label(lo)
    cond_fn()
    a(f"s_cbranch_scc1 {done}")
    a("s_add_u32 s73, s73, 1")
    a(f"s_cmp_ge_u32 s73, {SPIN_MAX}")
    a(f"s_cbranch_scc1 {done}")
    a(f"s_sleep {sleep}")
    for t in load_text_list: a(t)
    a("s_waitcnt vmcnt(0)")
    a(f"s_branch {lo}")
    a.label(done)
    a("s_nop 4")

def sspin(a, name, loads, cond_fn, sleep=1):
    lo, done = a.newlabel(name + "_spin"), a.newlabel(name + "_ok")
    a("s_mov_b32 s73, 0")
    a.label(lo)
    for t in loads: a(t)
    a("s_waitcnt lgkmcnt(0)")
    cond_fn()
    a(f"s_cbranch_scc1 {done}")
    a("s_add_u32 s73, s73, 1")
    a(f"s_cmp_lt_u32 s73, {SPIN_MAX}")
    if sleep: a(f"s_sleep {sleep}")
    a(f"s_cbranch_scc1 {lo}")
    a.label(done)

def flag_index(a, d, t, grp):
    a(f"s_mul_i32 s{t}, s{S_NS}, 37")
    a(f"s_lshr_b32 s{t}, s{t}, {8 if grp == 7 else 9}")
    a(f"s_mul_i32 s{t}, s{t}, {32 - grp}")
    a(f"s_add_u32 s{d}, s{t}, s{S_NS}")
    a(f"s_lshl_b32 s{d}, s{d}, 2")

def interleave(a, prim, fill, per):
    fill = list(fill)
    for p in prim:
        p()
        for _ in range(per):
            if fill: a(fill.pop(0))
    for f in fill: a(f)

def p2_rot(a, cfg, d_ffn, d_blk, d_flip):
    if not cfg.rot:
        for d in (d_ffn, d_blk, d_flip): a(f"s_mov_b32 s{d}, 0")
        return
    tab = {2: [0] * 7, 1: list(range(7)), 3: [0, 3, 0, 3, 0, 3, 0], 4: [0, 2, 5, 0, 2, 5, 0], 5: [0, 4, 2, 5, 0, 4, 2], 6: [0, 1, 0, 1, 0, 1, 0], 7: [0, 2, 0, 2, 0, 2, 0]}[cfg.rot]
    word = sum(v << (4 * k) for k, v in enumerate(tab))
    a(f"s_lshl_b32 s11, s{S_NT}, 2")
    a(f"s_lshr_b32 s13, {word:#x}, s11")
    a("s_and_b32 s13, s13, 15")
    a(f"s_and_b32 s11, s{S_SLOT}, 3")
    a("s_lshl_b32 s11, s11, 1")
    a("s_add_u32 s11, s11, s13")
    a("s_cmp_ge_u32 s11, 7")
    a("s_cselect_b32 s13, 7, 0")
    a(f"s_sub_u32 s{d_ffn}, s11, s13")
    for d in (d_blk, d_flip): a(f"s_mov_b32 s{d}, 0")

def slot(reg, n): return R[reg] + 2048 * n
SA = [slot(1, n) for n in range(6)]; SB = [slot(2, n) for n in range(6)]; SC = [slot(0, n) for n in range(6)]
WSLOT = {}
for n in range(6): WSLOT[n] = SA[n]; WSLOT[6 + n] = SB[n]
for n in range(4): WSLOT[12 + n] = SC[n]; WSLOT[16 + n] = SA[n]; WSLOT[20 + n] = SB[n]
WSLOT.update({24: SA[4], 25: SA[5], 26: SB[4], 27: SB[5]})
HTS = SC[4]
PH1, PH2, GA, FXA, SD = SC[0], SC[4], SB[0], SA[0], SC[0]

class Rec:
    def __init__(self): self.L = []
    def __call__(self, t): self.L.append(t)

def ssm_park(kc, K, KP, sQ):
    LR, LI, CR, CI, L16R, L16I, PWR, PWI, L64R, L64I, LWR, LWI, W0R = [KP + k for k in range(13)]
    vTW, vTR, vCB = KP + 16, KP + 17, KP + 18
    ssm_const_calc(kc, K, LR, LI, CR, CI)
    csq(kc, L16R, L16I, LR, LI, K)
    for _ in range(3): csq(kc, L16R, L16I, L16R, L16I, K)
    def powsel(dr, di, br, bi, bit, src):
        cmul(kc, K + 1, K + 2, dr, di, br, bi)
        kc(f"v_and_b32 v{K}, {bit}, v{src}")
        kc(f"v_cmp_ne_u32 vcc, 0, v{K}")
        kc(f"v_cndmask_b32 v{dr}, v{dr}, v{K+1}, vcc")
        kc(f"v_cndmask_b32 v{di}, v{di}, v{K+2}, vcc")
    kc(f"v_mov_b32 v{PWR}, v{CR}"); kc(f"v_mov_b32 v{PWI}, v{CI}")
    powsel(PWR, PWI, L16R, L16I, 32, 0)
    csq(kc, K + 14, K + 15, L16R, L16I, K)
    powsel(PWR, PWI, K + 14, K + 15, 16, 0)
    csq(kc, L64R, L64I, K + 14, K + 15, K)
    kc(f"v_mov_b32 v{K+10}, s{S_W4}")
    kc(f"v_mov_b32 v{LWR}, 1.0"); kc(f"v_mov_b32 v{LWI}, 0")
    powsel(LWR, LWI, L64R, L64I, 1, K + 10)
    csq(kc, K + 14, K + 15, L64R, L64I, K)
    powsel(LWR, LWI, K + 14, K + 15, 2, K + 10)
    csq(kc, K + 14, K + 15, K + 14, K + 15, K)
    kc(f"v_lshrrev_b32 v{K+10}, 4, v0")
    kc(f"v_sub_u32 v{K+10}, s{S_MT}, v{K+10}")
    kc(f"v_add_u32 v{K+11}, -5, v{K+10}")
    kc(f"v_add_u32 v{K+10}, -1, v{K+10}")
    kc(f"v_mov_b32 v{W0R}, 1.0"); kc(f"v_mov_b32 v{W0R+1}, 0")
    kc(f"v_mov_b32 v{W0R+2}, 1.0"); kc(f"v_mov_b32 v{W0R+3}, 0")
    for b in range(3):
        powsel(W0R, W0R + 1, K + 14, K + 15, 1 << b, K + 10)
        if b < 2: powsel(W0R + 2, W0R + 3, K + 14, K + 15, 1 << b, K + 11)
        if b < 2: csq(kc, K + 14, K + 15, K + 14, K + 15, K)
    kc(f"s_add_u32 s36, s{sQ}, {HTS}")
    kc(f"v_bfe_u32 v{K}, v0, 4, 1")
    kc(f"v_lshrrev_b32 v{K+1}, 5, v0")
    kc(f"v_lshl_add_u32 v{K+2}, v{K}, 1, v{K+1}")
    kc(f"v_and_b32 v{K+3}, 15, v0")
    kc(f"v_and_b32 v{vTW}, 6, v{K+3}")
    kc(f"v_lshlrev_b32 v{vTW}, 4, v{vTW}")
    kc(f"v_lshlrev_b32 v{K+4}, 5, v{K+2}")
    kc(f"v_xor_b32 v{vTW}, v{vTW}, v{K+4}")
    kc(f"v_lshl_add_u32 v{vTW}, v{K+3}, 7, v{vTW}")
    kc(f"v_add_u32 v{vTW}, s36, v{vTW}")
    kc(f"v_lshlrev_b32 v{vCB}, 2, v{K+3}")
    kc(f"v_add_u32 v{vCB}, {C_L + 512}, v{vCB}")
    kc(f"v_bfe_u32 v{K+4}, v0, 2, 2")
    kc(f"v_lshl_add_u32 v{K+5}, v{K+1}, 3, v{K+4}")
    kc(f"v_lshlrev_b32 v{vTR}, 7, v{K+5}")
    kc(f"v_lshrrev_b32 v{K+4}, 1, v{K+4}")
    kc(f"v_xor_b32 v{K+4}, v{K+4}, v0")
    kc(f"v_and_b32 v{K+4}, 1, v{K+4}")
    kc(f"v_lshl_add_u32 v{vTR}, v{K+4}, 5, v{vTR}")
    kc(f"v_lshl_add_u32 v{vTR}, v{K}, 4, v{vTR}")
    kc(f"v_bfe_u32 v{K+4}, v0, 1, 1")
    kc(f"v_lshl_add_u32 v{vTR}, v{K+4}, 3, v{vTR}")
    kc(f"v_add_u32 v{vTR}, s36, v{vTR}")
    kc(f"s_lshl_b32 s36, s{S_W4}, 9")
    kc(f"s_add_u32 s36, s36, {STATS_L}")
    kc(f"v_lshl_add_u32 v{KP+19}, v{K+2}, 7, s36")
    vStS = KP + 19
    vAg, vPr, vF = KP + 20, KP + 21, KP + 22
    kc(f"v_lshlrev_b32 v{vAg}, 3, v{K+3}")
    kc(f"v_lshrrev_b32 v{vPr}, 4, v0")
    kc(f"v_mul_u32_u24 v{vPr}, 3584, v{vPr}")
    kc(f"s_lshl_b32 s36, s{S_NS}, 7")
    kc(f"v_add3_u32 v{vPr}, v{vPr}, v{vAg}, s36")
    kc(f"v_add_u32 v{vAg}, {AGG_L}, v{vAg}")
    kc(f"s_lshl_b32 s36, s{S_MT}, 2")
    kc(f"s_add_u32 s36, s36, s{S_W4}")
    kc("s_lshl_b32 s36, s36, 10")
    flag_index(kc, 37, 38, 14)
    kc("s_add_u32 s36, s36, s37")
    kc(f"s_add_u32 s36, s36, {WS_FLAG + 512:#x}")
    kc(f"v_mov_b32 v{vF}, s36")

def gen_loader(a, cfg, ts):
    a.label("L_loader")
    a("s_setprio 3")
    vm = VM(a)
    vXe, vXo, vW, vB = 1, 2, 3, 4
    vFv, vP, vO, vPQ = 5, 6, 7, 8
    vWd, vCe, vCo, vCh = 9, 10, 11, 12
    vRf, vRh = 13, 14
    vA, vC = 24, 25
    vT = 15
    ACC, CA, RD = 27, 28, 44
    STG = 64
    CF = 144
    SACC = 80
    XRAW = CF + 64
    KP = XRAW + 8
    sGrp = [28, 29, 30, 31, 36, 37, 21]
    SP = ['', ' sc1'][cfg.spol]
    sMX, sMW, sMB, sMP = 72, 74, 75, 70
    sPerm, sSX, sSW = 68, 69, 15
    sRF = 14
    AP = ['', ' sc1', ' sc1 nt', ' sc0 sc1', ' sc0', ' nt'][cfg.apol]
    OP = ['', ' sc1', ' nt', ' sc1 nt'][cfg.opol]
    polx = " nt" if cfg.polx else ""
    polw = " nt" if cfg.polw else ""
    a(f"v_lshrrev_b32 v{vA}, 3, v0")
    a(f"v_and_b32 v{vC}, 7, v0")
    a(f"v_lshrrev_b32 v{vT+2}, 1, v{vA}")
    a(f"s_lshl_b32 s11, s{S_W4}, 4")
    a(f"v_add_u32 v{vT}, s11, v{vA}")
    a(f"v_mul_u32_u24 v{vW}, 3584, v{vT}")
    a(f"v_and_b32 v{vT+4}, 1, v{vT+2}")
    a(f"v_lshlrev_b32 v{vT+4}, 2, v{vT+4}")
    a(f"v_xor_b32 v{vT+4}, v{vC}, v{vT+4}")
    a(f"v_lshl_add_u32 v{vW}, v{vT+4}, 4, v{vW}")
    a(f"s_lshl_b32 s11, s{S_NS}, 7")
    a(f"v_add_u32 v{vW}, s11, v{vW}")
    a(f"s_lshl_b32 s11, s{S_MT}, 8")
    a(f"s_lshl_b32 s12, s{S_W4}, 6")
    a("s_add_u32 s11, s11, s12")
    a(f"v_lshrrev_b32 v{vT}, 2, v{vA}")
    a(f"v_and_b32 v{vT+1}, 3, v{vA}")
    a(f"v_lshl_add_u32 v{vT}, v{vT}, 4, v{vT+1}")
    a(f"v_add_u32 v{vT}, s11, v{vT}")
    a(f"v_mul_u32_u24 v{vXe}, 896, v{vT}")
    a(f"v_xor_b32 v{vT+3}, v{vC}, v{vT+2}")
    a(f"v_lshl_add_u32 v{vXe}, v{vT+3}, 4, v{vXe}")
    a(f"v_xor_b32 v{vXo}, 64, v{vXe}")
    a(f"s_and_b32 s12, s{S_W4}, 1")
    a(f"s_lshl_b32 s11, s{S_NS}, 4")
    a(f"s_lshl_b32 s13, s12, 3")
    a("s_add_u32 s11, s11, s13")
    a(f"v_add_u32 v{vT}, s11, v{vA}")
    a(f"v_mul_u32_u24 v{vB}, 896, v{vT}")
    a(f"v_lshl_add_u32 v{vB}, v{vT+3}, 4, v{vB}")
    a("s_lshl_b32 s13, s12, 6")
    a(f"v_xor_b32 v{vB}, s13, v{vB}")
    a(f"s_lshl_b32 s{sMX}, s{S_W4}, 13")
    a(f"s_lshl_b32 s{sMW}, s{S_W4}, 11")
    a(f"s_lshl_b32 s{sMB}, s{S_W4}, 10")
    a(f"s_mul_i32 s{sMP}, s{S_W4}, {Q}")
    perms = cfg.perms
    words = [sum(p[k] << (4 * k) for k in range(7)) for p in perms]
    ng = len(words)
    a(f"s_mov_b32 s{sPerm}, {words[0]:#x}")
    if ng > 1:
        if cfg.slab:
            a(f"s_add_u32 s11, s{S_SLOT}, s{S_XCD}")
        else:
            a(f"s_and_b32 s11, s{S_SLOT}, 3")
            a(f"s_add_u32 s11, s11, s{S_NT}")
        if ng == 3:
            a("s_mul_i32 s13, s11, 43")
            a("s_lshr_b32 s13, s13, 7")
            a("s_mul_i32 s13, s13, 3")
            a("s_sub_u32 s11, s11, s13")
        else:
            a(f"s_and_b32 s11, s11, {ng-1}")
        for g in range(1, ng):
            a(f"s_cmp_eq_u32 s11, {g}")
            a(f"s_cmov_b32 s{sPerm}, {words[g]:#x}")
    ts.x(1, 1)
    a("s_waitcnt lgkmcnt(0)")
    ts.x(1, 2)
    if cfg.tlb:
        a(f"v_mov_b32 v40, s{P_X}")
        a(f"v_mov_b32 v41, s{P_X+1}")
        for ln, p in enumerate([P_WG, P_WU, P_BRE, P_BIM, P_WD, P_CRE, P_CIM, P_WS][:cfg.tlb], 1):
            a(f"v_writelane_b32 v40, s{p}, {ln}")
            a(f"v_writelane_b32 v41, s{p+1}, {ln}")
        a(f"s_mov_b64 exec, {(1 << (cfg.tlb + 1)) - 1:#x}")
        a("global_load_dword v62, v[40:41], off")
        a("s_mov_b64 exec, -1")
    srd(a, SRD_A, P_WG, 448 * 3584)
    srd(a, SRD_X, P_X, 2048 * 896)
    srd(a, SRD_B, P_WU, 448 * 3584)
    a(f"s_cmp_ge_u32 s{S_W4}, 2")
    srd_sel(a, SRD_C, P_BIM, P_BRE, 448 * 896)

    thr = [None]
    def dma(vm, tag, voff, srdn, sbase, soff, m0base, m0off, pol=""):
        a(f"s_add_u32 m0, s{m0base}, {m0off}")
        a(f"s_add_u32 s11, s{sbase}, {soff}")
        if thr[0] is not None and len(vm.q) > thr[0]:
            a(f"s_waitcnt vmcnt({thr[0]})")
            vm.q = vm.q[-thr[0]:]
        vm.issue(tag, f"buffer_load_dwordx4 v{voff}, s[{srdn}:{srdn+3}], s11 offen{pol} lds")
    def issue_ops(s):
        r = R[s % 3]
        ops = []
        def pre():
            a(f"s_bfe_u32 s{sSX}, s{sPerm}, {(4 << 16) | (4 * s):#x}")
            a(f"s_mul_i32 s{sSW}, s{sSX}, {64*3584}")
            a(f"s_lshl_b32 s{sSX}, s{sSX}, 7")
        def mk(*args): return lambda: dma(vm, ('st', s), *args)
        L = []
        for i in range(2): L.append(mk(vW, SRD_A, sSW, i * 8 * 3584, sMW, r + OFF_WG + i * 1024, polw))
        for j in range(4): L.append(mk(vXo if j & 1 else vXe, SRD_X, sSX, (32 * (j >> 2) + 4 * (j & 3)) * 896, sMX, r + j * 1024, polx))
        for i in range(2): L.append(mk(vW, SRD_B, sSW, i * 8 * 3584, sMW, r + OFF_WU + i * 1024, polw))
        for j in range(4, 8): L.append(mk(vXo if j & 1 else vXe, SRD_X, sSX, (32 * (j >> 2) + 4 * (j & 3)) * 896, sMX, r + j * 1024, polx))
        L.append(mk(vB, SRD_C, sSX, 0, sMB, r + OFF_BB, polw))
        first = L[0]
        L[0] = lambda: (pre(), first())
        return L
    SRD_WD, SRD_CC, sBlk, sFlip, P_DSK2 = 32, 24, 16, 17, 38
    def w_ops(ps):
        L = []
        for p in ps:
            for n in range(2):
                def op(p=p, n=n):
                    if 12 <= p < 22:
                        d = STG + (p - 12) * 8 + 4 * n
                        a(f"s_add_u32 s11, s{sGrp[p//4]}, {((p % 4) * 16 + 8 * n) * 896}")
                        vm.issue(('w', p), f"buffer_load_dwordx4 v[{d}:{d+3}], v{vWd}, s[{SRD_WD}:{SRD_WD+3}], s11 offen")
                    else:
                        dma(vm, ('w', p), vWd, SRD_WD, sGrp[p//4], ((p % 4) * 16 + 8 * n) * 896, sMP, WSLOT[p] + n * 1024)
                L.append(op)
        return L
    sCF, sCH = 16, 17
    def cfrag(p, lc): return CF + 8 * p + 4 * lc
    def c_ops(b):
        L = []
        for p in (range(4 * b, 4 * b + 4) if b < 3 else (12, 13)):
            for lc in range(2):
                def op(p=p, lc=lc):
                    d = cfrag(p, lc)
                    sb, so = (sCF, 2048 * p) if p < 12 else (sCH, 2048 * (p - 12))
                    a(f"s_add_u32 s11, s{sb}, {so}")
                    vm.issue(('c', b), f"buffer_load_dwordx4 v[{d}:{d+3}], v{(vCe, vCo)[lc]}, s[{SRD_WS}:{SRD_WS+3}], s11 offen sc1")
                L.append(op)
        return L
    def w_write(ps):
        vm.wait(('w', ps[-1]))
        base = WSLOT[ps[0]]
        a(f"v_add_u32 v{vT+4}, {base}, v{vPQ}")
        for p in ps:
            for n in range(2):
                d = STG + (p - 12) * 8 + 4 * n
                a(f"ds_write_b128 v{vT+4}, v[{d}:{d+3}] offset:{WSLOT[p] - base + 1024*n}")
    def colsum_reads(s):
        r = R[s % 3]
        a(f"s_add_u32 s11, s{sMW}, {r + OFF_WG}")
        a(f"v_add_u32 v{vT}, s11, v{vP}")
        a(f"s_add_u32 s11, s{sMB}, {r + OFF_BB}")
        a(f"v_add_u32 v{vT+1}, s11, v{vP}")
        a(f"ds_read_b128 v[{RD}:{RD+3}], v{vT}")
        a(f"ds_read_b128 v[{RD+4}:{RD+7}], v{vT} offset:1024")
        a(f"ds_read_b128 v[{RD+8}:{RD+11}], v{vT} offset:8192")
        a(f"ds_read_b128 v[{RD+12}:{RD+15}], v{vT} offset:9216")
        a(f"ds_read_b128 v[{RD+16}:{RD+19}], v{vT+1}")
    def colsum_ops():
        L = ["s_waitcnt lgkmcnt(0)"]
        for n in range(4):
            for d in range(4):
                w = RD + 4 * n + d
                ac = CA + (n >> 1) * 8 + 2 * d
                L.append(f"v_lshlrev_b32 v{vT+2}, 16, v{w}")
                L.append(f"v_and_b32 v{vT+3}, s71, v{w}")
                L.append(f"v_add_f32 v{ac}, v{ac}, v{vT+2}")
                L.append(f"v_add_f32 v{ac+1}, v{ac+1}, v{vT+3}")
        for d in range(4):
            w = RD + 16 + d
            L.append(f"v_lshlrev_b32 v{vT+2}, 16, v{w}")
            L.append(f"v_and_b32 v{vT+3}, s71, v{w}")
            L.append(f"v_add_f32 v{vT+2}, v{vT+2}, v{vT+3}")
            L.append(f"v_add_f32 v{ACC}, v{ACC}, v{vT+2}")
        return L

    stage_ops = {}
    cdone = set()
    def tok_ops(toks):
        L = []
        for t in toks:
            if t[0] == 's':
                st = int(t[1])
                if st not in stage_ops: stage_ops[st] = issue_ops(st)
                lo, hi = (0, 13) if ':' not in t else map(int, t.split(':')[1].split('-'))
                L += stage_ops[st][lo:hi]
            elif t[0] == 'w': L += w_ops([int(t[1:])])
            elif t[0] == 'c':
                lo, hi = (0, 8) if ':' not in t else map(int, t.split(':')[1].split('-'))
                L += c_ops(int(t[1]))[lo:hi]
                cdone.add(int(t[1]))
            else: L.append(lambda t=t: special(t))
        return L
    def run_tokens(toks):
        for o in tok_ops(toks): o()
    def special(t):
        if True:
            if t == 'put':
                vm.wait('stats')
                a(f"s_lshl_b32 s11, s{S_W4}, 9")
                a(f"s_add_u32 s11, s11, {STATS_L}")
                a(f"v_lshl_add_u32 v{vT+4}, v0, 3, s11")
                a(f"ds_write_b64 v{vT+4}, v[20:21]")
                a(f"v_lshlrev_b32 v{vT+4}, 3, v0")
                a(f"v_add_u32 v{vT+4}, {ST2_L}, v{vT+4}")
                a(f"ds_write_b64 v{vT+4}, v[22:23]")
            elif t == 'e':
                a(f"s_add_u32 s12, s41, {16*896}")
                vm.issue('e', f"buffer_load_dwordx4 v[{XRAW}:{XRAW+3}], v20, s[{SRD_X}:{SRD_X+3}], s41 offen")
                vm.issue('e', f"buffer_load_dwordx4 v[{XRAW+4}:{XRAW+7}], v20, s[{SRD_X}:{SRD_X+3}], s12 offen")
                vm.issue('e', f"global_load_ushort v{KP+23}, v21, s[{P_DSK2}:{P_DSK2+1}]")
            elif t == 'k':
                a("s_waitcnt lgkmcnt(0)")
            elif t == 'init':
                a(f"v_mov_b32 v26, 0")
                vm.issue('init', f"global_load_dword v5, v26, s[{P_DBG}:{P_DBG+1}] sc1")
            elif t == 'fetch':
                vm.wait('init')
                def cond():
                    a(f"v_readfirstlane_b32 s11, v5")
                    a(f"s_cmp_ge_u32 s11, {INIT_N}")
                spin_check(a, "L_init", [f"global_load_dword v5, v26, s[{P_DBG}:{P_DBG+1}] sc1"], cond, 8)
                a(f"s_lshl_b32 s11, s{S_MT}, 8")
                a(f"s_lshl_b32 s12, s{S_W4}, 6")
                a("s_add_u32 s11, s11, s12")
                a(f"v_add_lshl_u32 v5, v0, s11, 3")
                a(f"s_lshl_b32 s12, s{S_M64}, 6")
                a(f"v_add_lshl_u32 v26, v0, s12, 3")
                a(f"s_mov_b32 s11, {WS_STATS:#x}")
                vm.issue('stats', f"buffer_load_dwordx2 v[20:21], v5, s[{SRD_WS}:{SRD_WS+3}], s11 offen sc1")
                vm.issue('stats', f"buffer_load_dwordx2 v[22:23], v26, s[{SRD_WS}:{SRD_WS+3}], s11 offen sc1")
            else: raise ValueError(t)
    win = cfg.win
    run_tokens(["s0"])
    ts(1)
    ts.x(1, 6)
    run_tokens(win.get(-1, []))
    a("s_setprio 0")
    a(f"s_and_b32 s12, s{S_W4}, 1")
    a(f"v_lshlrev_b32 v{vP}, 4, v0")
    a(f"v_add_u32 v{vPQ}, s{sMP}, v{vP}")
    a(f"s_mul_i32 s14, s{S_W4}, 448")
    a(f"v_add_u32 v{vT}, s14, v{vA}")
    a(f"v_mul_u32_u24 v{vWd}, 896, v{vT}")
    a(f"v_lshl_add_u32 v{vWd}, v{vT+4}, 4, v{vWd}")
    a(f"s_lshl_b32 s14, s{S_NT}, 7")
    a(f"v_add_u32 v{vWd}, s14, v{vWd}")
    a(f"v_and_b32 v{vT+1}, 3, v0")
    a("s_mov_b32 s71, 0xffff0000")
    for k in range(17): a(f"v_mov_b32 v{ACC+k}, 0")
    srd(a, SRD_WS, P_WS, WS_SIZE)
    a(f"s_mov_b64 s[{P_DSK2}:{P_DSK2+1}], s[{P_DSK}:{P_DSK+1}]")
    srd(a, SRD_WD, P_WD, 1792 * 896)
    p2_rot(a, cfg, sRF, sBlk, sFlip)
    a(f"s_lshl_b32 s11, s{S_M64}, 1")
    a("s_add_u32 s40, s11, s12")
    a("s_lshl_b32 s12, s40, 5")
    a(f"v_lshrrev_b32 v{vT}, 2, v0")
    a(f"v_add_u32 v{vT}, s12, v{vT}")
    a(f"v_mul_u32_u24 v{vT}, 896, v{vT}")
    a(f"v_lshl_add_u32 v20, v{vT+1}, 4, v{vT}")
    a(f"v_lshrrev_b32 v{vT+2}, 5, v0")
    a(f"v_lshl_add_u32 v{vT}, v{vT+2}, 4, s12")
    a(f"s_lshr_b32 s13, s{S_W4}, 1")
    a("s_lshl_b32 s12, s13, 5")
    a(f"s_lshl_b32 s11, s{S_NT}, 6")
    a("s_add_u32 s11, s11, s12")
    a("s_lshl_b32 s41, s11, 1")
    a(f"v_and_b32 v{vT+3}, 31, v0")
    a(f"v_add_u32 v{vT+1}, s11, v{vT+3}")
    a(f"v_mul_u32_u24 v{vT}, 448, v{vT}")
    a(f"v_add_lshl_u32 v{vO}, v{vT}, v{vT+1}, 2")
    a(f"v_lshlrev_b32 v21, 1, v{vT+1}")
    a("s_lshl_b32 s12, s13, 10")
    a(f"v_add_u32 v{vCe}, s12, v{vP}")
    a(f"v_xor_b32 v{vCo}, 1024, v{vCe}")
    a(f"s_lshl_b32 s11, s{S_NT}, 1")
    a("s_add_u32 s11, s11, s13")
    a(f"s_mul_i32 s11, s11, {28*2048}")
    a(f"s_add_u32 s11, s11, {WS_CP:#x}")
    a(f"s_and_b32 s12, s{S_W4}, 1")
    a(f"s_lshl_b32 s{sCF}, s12, 15")
    a(f"s_add_u32 s{sCF}, s{sCF}, s11")
    a(f"s_lshl_b32 s{sCH}, s12, 12")
    a(f"s_add_u32 s{sCH}, s{sCH}, s11")
    a(f"s_add_u32 s{sCH}, s{sCH}, {12*2048}")
    a(f"v_bfe_u32 v{vT}, v0, 4, 1")
    a(f"v_lshlrev_b32 v{vT+1}, 2, v{vT}")
    a(f"v_xor_b32 v{vC}, v{vC}, v{vT+1}")
    a(f"v_lshlrev_b32 v{vC}, 5, v{vC}")
    a(f"v_lshl_add_u32 v{vC}, v{vT}, 9, v{vC}")
    a(f"v_lshl_add_u32 v{vC}, v{vT+2}, 8, v{vC}")
    a(f"s_add_u32 s11, s{sMB}, {CP_L}")
    a(f"v_add_u32 v{vC}, s11, v{vC}")
    a(f"s_lshl_b32 s11, s{S_W4}, 5")
    a(f"s_add_u32 s11, s11, {C_L + 512}")
    a(f"v_lshl_add_u32 v{vA}, v{vA}, 2, s11")
    ts.x(1, 8)
    LR, LI, CR, CI, L16R, L16I, PWR, PWI, L64R, L64I, LWR, LWI, W0R = [KP + k for k in range(13)]
    vTW, vTR, vCB, vStS, vAg, vPr, vF = [KP + k for k in range(16, 23)]
    a(f"s_lshl_b32 s21, s{S_NS}, 7")
    a(f"s_mul_i32 s22, s{S_MT}, 3584")
    a("s_add_u32 s22, s22, s21")
    a(f"s_add_u32 s22, s22, {WS_AGG - AGG_L:#x}")
    a(f"s_mov_b32 s23, {WS_AGG:#x}")
    a(f"s_mov_b32 s20, {WS_AGG + 4*3584:#x}")
    a(f"s_lshl_b32 s18, s{S_M64}, 10")
    a(f"s_and_b32 s11, s{S_W4}, 1")
    a("s_lshl_b32 s11, s11, 7")
    a("s_add_u32 s18, s18, s11")
    a(f"s_add_u32 s18, s18, {WS_FLAG + 512:#x}")
    a(f"s_lshl_b32 s11, s{S_MT}, 2")
    a(f"s_add_u32 s11, s11, s{S_W4}")
    a(f"s_mul_i32 s19, s11, {2*RT_BYTES}")
    a(f"s_lshl_b32 s11, s{S_NS}, 10")
    a("s_add_u32 s19, s19, s11")
    a(f"s_add_u32 s19, s19, {56*1024}")
    for g in range(7):
        a(f"s_add_u32 s12, s{sRF}, {g}")
        a("s_cmp_ge_u32 s12, 7")
        a("s_cselect_b32 s13, 7, 0")
        a("s_sub_u32 s12, s12, s13")
        a(f"s_mul_i32 s{sGrp[g]}, s12, {64*896}")
    a(f"s_add_u32 s11, s{sMX}, {R[2]}")
    a(f"v_add_u32 v{vT+4}, s11, v{vP}")
    kparts = {}
    if cfg.wprio: a(f"s_setprio {cfg.wprio}")
    for s in range(7):
        vm.wait(('st', s))
        ts.x(2, 1 + s)
        a("s_barrier")
        ts.x(3, 1 + s)
        if s == 0: ts(2)
        if s == 0:
            for k in range(6): a(f"ds_read_b128 v[{KP+4*k}:{KP+4*k+3}], v{vT+4} offset:{1024*k}")
        if s == 6:
            QQ = 28
            for p in range(8): a(f"ds_read_b32 v{QQ+p}, v{vT+1} offset:{512*p}")
            a("s_waitcnt lgkmcnt(0)")
            for p in range(4): a(f"v_add_f32 v{QQ+p}, v{QQ+p}, v{QQ+4+p}")
            a(f"v_add_f32 v{QQ}, v{QQ}, v{QQ+2}")
            a(f"v_add_f32 v{QQ+1}, v{QQ+1}, v{QQ+3}")
            a(f"v_add_f32 v{QQ}, v{QQ}, v{QQ+1}")
            a(f"ds_write_b32 v{vT}, v{QQ}")
            pre = tok_ops(win[6][:2])
            for o in pre: o()
            a("s_waitcnt lgkmcnt(0)")
            a("s_barrier")
            a("s_setprio 0")
            run_tokens(win[6][2:])
            continue
        segs = [[None, []]]
        for t in win.get(s, []):
            if t.startswith("cs"): segs.append([int(t[2:]), []])
            else: segs[-1][1].append(t)
        for cs, toks in segs:
            fl = []
            if cs is not None:
                vm.wait(('st', cs))
                colsum_reads(cs)
                fl = colsum_ops()
            if cs == 6:
                b = ACC
                for k in range(8): fl.append(f"v_permlane32_swap_b32 v{CA+k}, v{CA+8+k}")
                fl.append(f"v_add_f32_dpp v{b}, v{b}, v{b} quad_perm:[1,0,3,2] row_mask:0xf bank_mask:0xf")
                for k in range(8): fl.append(f"v_add_f32 v{CA+k}, v{CA+k}, v{CA+8+k}")
                fl.append(f"v_add_f32_dpp v{b}, v{b}, v{b} quad_perm:[2,3,0,1] row_mask:0xf bank_mask:0xf")
                for k in range(8): fl.append(f"v_add_f32_dpp v{CA+k}, v{CA+k}, v{CA+k} row_ror:8 row_mask:0xf bank_mask:0xf")
                fl.append(f"v_add_f32_dpp v{b}, v{b}, v{b} row_half_mirror row_mask:0xf bank_mask:0xf")
                fl.append(f"ds_write_b128 v{vC}, v[{CA}:{CA+3}]")
                fl.append(f"ds_write_b128 v{vC}, v[{CA+4}:{CA+7}] offset:16")
                fl.append(f"ds_write_b32 v{vA}, v{b}")
            ops = tok_ops(toks)
            per = max(1, -(-len(fl) // max(1, len(ops))))
            interleave(a, ops, fl, per)
        if s == 5:
            a(f"s_and_b32 s12, s{S_W4}, 1")
            a("s_lshl_b32 s12, s12, 8")
            a(f"v_lshl_add_u32 v{vT}, v0, 2, s12")
            a(f"v_add_u32 v{vT+1}, {CP_L}, v{vT}")
            a(f"v_add_u32 v{vT}, {C_L}, v{vT}")
            a("s_waitcnt lgkmcnt(0)")
            a("s_setprio 3")
    ts.x(2, 8)
    a("s_barrier")
    ts(3)
    ts.x(3, 8)
    a(f"v_add_u32 v{vT+2}, {SD}, v{vPQ}")
    vm.wait(('w', 11), "lgkmcnt(0)")
    a("s_barrier")
    X, Y, ST = 32, 48, CF
    HR, HI, T1, T2, CBR, CBI, G0, G1, QR, QI = 20, 21, 22, 23, 24, 25, 26, 28, 30, 31
    for k in range(8): a(f"ds_read_b128 v[{X+4*k}:{X+4*k+3}], v{vT+2} offset:{1024*k}")
    a(f"ds_read_b32 v{CBR}, v{vCB}")
    a(f"ds_read_b32 v{CBI}, v{vCB} offset:64")
    for k in range(8): a(f"ds_read_b128 v[{ST+4*k}:{ST+4*k+3}], v{vStS} offset:{16*k}")
    a(f"s_setprio {cfg.eprio}")
    a(f"v_lshrrev_b32 v1, 4, v0")
    a(f"v_sub_u32 v1, s{S_MT}, v1")
    a(f"v_cmp_le_i32 s[56:57], 1, v1")
    a(f"v_cmp_le_i32 s[58:59], 5, v1")
    a(f"v_lshlrev_b32 v5, 16, v{KP+23}")
    a(f"v_mov_b32 v3, v{vF}")
    vF = 3
    a("s_waitcnt lgkmcnt(10)")
    for r in range(16): a(f"v_permlane16_swap_b32 v{X+r}, v{Y+r}")
    a("s_waitcnt lgkmcnt(0)")
    side = {}
    for r in range(16):
        if r in side: side[r]()
        m, rs = ST + 2 * r, ST + 2 * r + 1
        a(f"v_fma_f32 v{X+r}, -v{m}, v{CBR}, v{X+r}")
        a(f"v_fma_f32 v{Y+r}, -v{m}, v{CBI}, v{Y+r}")
        a(f"v_mul_f32 v{X+r}, v{X+r}, v{rs}")
        a(f"v_mul_f32 v{Y+r}, v{Y+r}, v{rs}")
        if r >= 1:
            pr, pi = (X, Y) if r == 1 else (HR, HI)
            a(f"v_fma_f32 v{T1}, -v{LI}, v{pi}, v{X+r}")
            a(f"v_fma_f32 v{T2}, v{LI}, v{pr}, v{Y+r}")
            a(f"v_fma_f32 v{HR}, v{LR}, v{pr}, v{T1}")
            a(f"v_fma_f32 v{HI}, v{LR}, v{pi}, v{T2}")
    z = CF
    a(f"v_mov_b32 v{z}, v{HR}"); a(f"v_mov_b32 v{z+1}, v{HI}")
    csq(a, z + 8, z + 9, L16R, L16I, z + 10)
    a(f"v_permlane32_swap_b32 v{HR}, v{z}")
    a(f"v_permlane32_swap_b32 v{HI}, v{z+1}")
    a(f"v_fma_f32 v{z}, -v{L16I}, v{HI}, v{z}")
    a(f"v_fma_f32 v{z+1}, v{L16I}, v{HR}, v{z+1}")
    a(f"v_fmac_f32 v{z}, v{L16R}, v{HR}")
    a(f"v_fmac_f32 v{z+1}, v{L16R}, v{HI}")
    a(f"v_mov_b32 v{z+2}, v{z}"); a(f"v_mov_b32 v{z+3}, v{z+1}")
    a(f"s_lshl_b32 s11, s{S_W4}, 7")
    a(f"v_add_u32 v{z+5}, s11, v{vAg}")
    a(f"v_permlane16_swap_b32 v{z}, v{z+2}")
    a(f"v_permlane16_swap_b32 v{z+1}, v{z+3}")
    a(f"v_fma_f32 v{z+2}, -v{z+9}, v{z+1}, v{z+2}")
    a(f"v_fma_f32 v{z+3}, v{z+9}, v{z}, v{z+3}")
    a(f"v_fmac_f32 v{z+2}, v{z+8}, v{z}")
    a(f"v_fmac_f32 v{z+3}, v{z+8}, v{z+1}")
    a(f"ds_write_b64 v{z+5}, v[{z+2}:{z+3}]")
    a("s_waitcnt lgkmcnt(0)")
    ts.x(2, 9)
    a(f"s_setprio {cfg.lprio}")
    a("s_barrier")
    ts(4)
    E = CF + 16
    for i in range(4): a(f"ds_read_b64 v[{E+2+2*i}:{E+3+2*i}], v{vAg} offset:{128*i}")
    a(f"v_mov_b32 v{E}, 0")
    a(f"v_mov_b32 v{E+1}, 0")
    a(f"v_and_b32 v{z+4}, 16, v0")
    a(f"v_cmp_ne_u32 s[12:13], 0, v{z+4}")
    for i in range(1, 4):
        e, p = E + 2 + 2 * i, E + 2 * i
        a(f"s_waitcnt lgkmcnt({3 - i})")
        a(f"v_fma_f32 v{e}, -v{L64I}, v{p+1}, v{e}")
        a(f"v_fma_f32 v{e+1}, v{L64I}, v{p}, v{e+1}")
        a(f"v_fmac_f32 v{e}, v{L64R}, v{p}")
        a(f"v_fmac_f32 v{e+1}, v{L64R}, v{p+1}")
    a(f"s_cmp_lg_u32 s{S_W4}, 0")
    a("s_cbranch_scc1 L_l_nopub")
    e = E + 8
    a(f"v_cmp_eq_u32 vcc, -1, v{e}")
    a(f"v_mov_b32 v{T1}, 0x7fc00000")
    a(f"v_cndmask_b32 v{e}, v{e}, v{T1}, vcc")
    a("s_mov_b64 exec, 0xffff")
    a(f"buffer_store_dwordx2 v[{e}:{e+1}], v{vAg}, s[{SRD_WS}:{SRD_WS+3}], s22 offen sc1")
    a("s_mov_b64 exec, -1")
    ts(5)
    a.label("L_l_nopub")
    a(f"v_cmp_lt_u32 vcc, 31, v0")
    a(f"v_cndmask_b32 v{z}, 0, v{z}, s[12:13]")
    a(f"v_cndmask_b32 v{z+1}, 0, v{z+1}, s[12:13]")
    a(f"v_fma_f32 v{HR}, -v{L16I}, v{z+1}, v{HR}")
    a(f"v_fma_f32 v{HI}, v{L16I}, v{z}, v{HI}")
    a(f"v_fmac_f32 v{HR}, v{L16R}, v{z}")
    a(f"v_fmac_f32 v{HI}, v{L16R}, v{z+1}")
    a(f"v_cndmask_b32 v{z}, v{z}, v{HR}, vcc")
    a(f"v_cndmask_b32 v{z+1}, v{z+1}, v{HI}, vcc")
    cmul(a, HR, HI, z, z + 1, CR, CI)
    a(f"s_bitcmp1_b32 s{S_W4}, 0")
    a("s_cselect_b64 vcc, -1, 0")
    a(f"v_cndmask_b32 v{QR}, v{E}, v{E+2}, vcc")
    a(f"v_cndmask_b32 v{QI}, v{E+1}, v{E+3}, vcc")
    a(f"v_cndmask_b32 v{T1}, v{E+4}, v{E+6}, vcc")
    a(f"v_cndmask_b32 v{T2}, v{E+5}, v{E+7}, vcc")
    a(f"s_bitcmp1_b32 s{S_W4}, 1")
    a("s_cselect_b64 vcc, -1, 0")
    a(f"v_cndmask_b32 v{QR}, v{QR}, v{T1}, vcc")
    a(f"v_cndmask_b32 v{QI}, v{QI}, v{T2}, vcc")
    ts.x(2, 10)
    thr[0] = cfg.thr
    lds = [f"buffer_load_dwordx2 v[{G0}:{G0+1}], v{vPr}, s[{SRD_WS}:{SRD_WS+3}], s23 offen sc1",
           f"buffer_load_dwordx2 v[{G1}:{G1+1}], v{vPr}, s[{SRD_WS}:{SRD_WS+3}], s20 offen sc1"]
    up = Rec()
    for r in range(16):
        up(f"v_mul_f32 v{T1}, v{CI}, v{Y+r}")
        up(f"v_mul_f32 v{T2}, v{CI}, v{X+r}")
        up(f"v_fma_f32 v{X+r}, v{CR}, v{X+r}, -v{T1}")
        up(f"v_fma_f32 v{Y+r}, v{CR}, v{Y+r}, v{T2}")
    vRd, vOne = 4, 2
    a(f"s_lshl_b32 s11, s{S_W4}, 2")
    a(f"s_add_u32 s11, s11, {CNT_L + 16}")
    a(f"v_mov_b32 v{vRd}, s11")
    a(f"v_mov_b32 v{vOne}, 1")
    thr[0] = None
    co = w_ops(range(22, 28)) + (c_ops(0) if cfg.c0early else [])
    interleave(a, co[:cfg.c1], up.L, 4)
    if cfg.agpos == 0:
        for t in lds: vm.issue('ag', t)
    w_write([12, 13, 14, 15])
    a(f"ds_write_b32 v{vRd}, v{vOne}")
    XV, STT, DS = 64, 80, 5
    TT = SACC + 32
    vHW = 1
    a(f"v_add_u32 v{vHW}, {HTS}, v{vPQ}")
    a(f"ds_write_b128 v{vHW}, v[{XRAW}:{XRAW+3}]")
    a(f"ds_write_b128 v{vHW}, v[{XRAW+4}:{XRAW+7}] offset:1024")
    a(f"v_lshrrev_b32 v{vT+3}, 5, v0")
    a(f"v_lshlrev_b32 v{vT+2}, 10, v{vT+3}")
    a(f"v_and_b32 v{vT}, 31, v0")
    a(f"v_lshl_add_u32 v{vT+2}, v{vT}, 1, v{vT+2}")
    a(f"s_add_u32 s11, s{sMP}, {HTS}")
    a(f"v_add_u32 v{vT+2}, s11, v{vT+2}")
    for r in range(16): a(f"ds_read_u16 v{XV+r}, v{vT+2} offset:{64*r}")
    if cfg.agpos == 1:
        for t in lds: vm.issue('ag', t)
    w_write([16, 17])
    def wrest():
        w_write([18, 19])
        w_write([20, 21])
        a(f"v_mov_b32 v{T1}, 2")
        a(f"ds_write_b32 v{vRd}, v{T1}")
    if not cfg.wl: wrest()
    co = co[cfg.c1:]
    ts(8)
    vm.wait('ag')
    def cond():
        a(f"v_cmp_eq_u32 vcc, -1, v{G0}")
        a("s_and_b64 s[48:49], vcc, s[56:57]")
        a(f"v_cmp_eq_u32 vcc, -1, v{G1}")
        a("s_and_b64 s[50:51], vcc, s[58:59]")
        a("s_or_b64 s[48:49], s[48:49], s[50:51]")
        a("s_cmp_eq_u64 s[48:49], 0")
    spin_check(a, "L_agg", lds, cond, 2)
    ts(6)
    SR, SI = CBR, CBI
    cmul(a, SR, SI, G0, G0 + 1, W0R, W0R + 1)
    cmul(a, T1, T2, G1, G1 + 1, W0R + 2, W0R + 3)
    a(f"v_cndmask_b32 v{SR}, 0, v{SR}, s[56:57]")
    a(f"v_cndmask_b32 v{SI}, 0, v{SI}, s[56:57]")
    a(f"v_cndmask_b32 v{T1}, 0, v{T1}, s[58:59]")
    a(f"v_cndmask_b32 v{T2}, 0, v{T2}, s[58:59]")
    a(f"v_add_f32 v{SR}, v{SR}, v{T1}")
    a(f"v_add_f32 v{SI}, v{SI}, v{T2}")
    for sw in ("v_permlane32_swap_b32", "v_permlane16_swap_b32"):
        a(f"v_mov_b32 v{T1}, v{SR}")
        a(f"v_mov_b32 v{T2}, v{SI}")
        a(f"{sw} v{SR}, v{T1}")
        a(f"{sw} v{SI}, v{T2}")
        a(f"v_add_f32 v{SR}, v{SR}, v{T1}")
        a(f"v_add_f32 v{SI}, v{SI}, v{T2}")
    a(f"v_fmac_f32 v{QR}, v{LWR}, v{SR}")
    a(f"v_fmac_f32 v{QI}, v{LWR}, v{SI}")
    a(f"v_fma_f32 v{QR}, -v{LWI}, v{SI}, v{QR}")
    a(f"v_fmac_f32 v{QI}, v{LWI}, v{SR}")
    a(f"v_fmac_f32 v{HR}, v{PWR}, v{QR}")
    a(f"v_fmac_f32 v{HI}, v{PWR}, v{QI}")
    a(f"v_fma_f32 v{HR}, -v{PWI}, v{QI}, v{HR}")
    a(f"v_fmac_f32 v{HI}, v{PWI}, v{QR}")
    pr, pi = HR, HI
    PK, HF = 96, 80
    rest = co[:cfg.c2]
    for r in range(16):
        if rest: rest.pop(0)()
        a(f"v_fma_f32 v{X+r}, -v{LI}, v{pi}, v{X+r}")
        a(f"v_fma_f32 v{Y+r}, v{LI}, v{pr}, v{Y+r}")
        a(f"v_fmac_f32 v{X+r}, v{LR}, v{pr}")
        a(f"v_fmac_f32 v{Y+r}, v{LR}, v{pi}")
        pr, pi = X + r, Y + r
    for k in range(8):
        a(f"v_cvt_pk_bf16_f32 v{PK+k}, v{X+2*k}, v{X+2*k+1}")
    a(f"ds_write_b128 v{vTW}, v[{PK}:{PK+3}]")
    a(f"ds_write_b128 v{vTW}, v[{PK+4}:{PK+7}] offset:16")
    for k in range(8):
        a(f"v_cvt_pk_bf16_f32 v{PK+8+k}, -v{Y+2*k}, -v{Y+2*k+1}")
    a(f"ds_write_b128 v{vTW}, v[{PK+8}:{PK+11}] offset:2048")
    a(f"ds_write_b128 v{vTW}, v[{PK+12}:{PK+15}] offset:2064")
    for q in range(2):
        for part in range(2):
            for j in range(2):
                d = HF + 8 * q + 4 * part + 2 * j
                a(f"ds_read_b64_tr_b16 v[{d}:{d+1}], v{vTR} offset:{(part*16 + 4*j)*128 + 64*(q ^ j)}")
    assert not rest
    a("s_waitcnt lgkmcnt(0)")
    for q in range(2):
        for part in range(2):
            d = HF + 8 * q + 4 * part
            a(f"s_add_u32 s11, s19, {q*RT_BYTES + part*HALF_BYTES}")
            vm.issue('hs', f"buffer_store_dwordx4 v[{d}:{d+3}], v{vP}, s[{SRD_WS}:{SRD_WS+3}], s11 offen{SP}")
    if cfg.wl: wrest()
    def flag2():
        vm.wait('hs')
        a("s_mov_b64 exec, 1")
        vm.issue('f', f"buffer_store_dword v{vOne}, v{vF}, s[{SRD_WS}:{SRD_WS+3}], 0 offen sc1")
        a("s_mov_b64 exec, -1")
        ts(7)
    if cfg.f2b == 0: flag2()
    for o in co[cfg.c2:] + (c_ops(2) if not cfg.clate else []): o()
    if cfg.f2b == 1: flag2()
    a(f"s_and_b32 s11, s{S_W4}, 1")
    a("s_lshl_b32 s11, s11, 8")
    a(f"s_add_u32 s11, s11, {ST2_L}")
    a(f"v_lshl_add_u32 v{vT+3}, v{vT+3}, 7, s11")
    STT = 32
    for k in range(8): a(f"ds_read_b128 v[{STT+4*k}:{STT+4*k+3}], v{vT+3} offset:{16*k}")
    for r in range(16): a(f"v_lshlrev_b32 v{XV+r}, 16, v{XV+r}")
    a("s_waitcnt lgkmcnt(0)")
    a("s_setprio 0")
    def rnd_pair(r0, r1):
        a(f"v_cvt_pk_bf16_f32 v{r1}, v{r0}, v{r1}"); a(f"v_lshlrev_b32 v{r0}, 16, v{r1}"); a(f"v_and_b32 v{r1}, s71, v{r1}")
    for r in range(16): a(f"v_sub_f32 v{TT+r}, v{XV+r}, v{STT+2*r}")
    for k in range(8): rnd_pair(TT + 2 * k, TT + 2 * k + 1)
    a(f"v_mov_b32 v{T2}, 3")
    vm.wait(('w', 27))
    a(f"ds_write_b32 v{vRd}, v{T2}")
    for r in range(16): a(f"v_mul_f32 v{TT+r}, v{TT+r}, v{STT+2*r+1}")
    for k in range(8): rnd_pair(TT + 2 * k, TT + 2 * k + 1)
    for r in range(16): a(f"v_mul_f32 v{TT+r}, v{TT+r}, v{DS}")
    for k in range(8): rnd_pair(TT + 2 * k, TT + 2 * k + 1)
    def poll(name, off):
        sspin(a, name, [f"s_load_dwordx16 s[20:35], s[{P_WS}:{P_WS+1}], s18 glc"], pcond, cfg.psleep)
    if True:
        def pcond():
            for k in range(0, 12, 4): a(f"s_and_b64 s[{20+k}:{21+k}], s[{20+k}:{21+k}], s[{22+k}:{23+k}]")
            a("s_and_b64 s[20:21], s[20:21], s[24:25]")
            a("s_and_b64 s[28:29], s[28:29], s[32:33]")
            a("s_and_b64 s[20:21], s[20:21], s[28:29]")
            a("s_and_b32 s20, s20, s21")
            a("s_cmp_eq_u32 s20, 1")
    a(f"s_mul_i32 s57, s40, {RT_BYTES}")
    a("s_xor_b32 s11, s40, 1")
    a(f"s_mul_i32 s56, s11, {RT_BYTES}")
    a(f"s_lshr_b32 s11, s{S_W4}, 1")
    a(f"s_mul_i32 s11, s11, {HALF_BYTES}")
    a(f"s_add_u32 s11, s11, {56*1024}")
    a("s_add_u32 s56, s56, s11")
    a("s_add_u32 s57, s57, s11")
    a(f"s_and_b32 s12, s{S_W4}, 1")
    a("s_lshl_b32 s13, s12, 14")
    for b in range(3): a(f"s_add_u32 s{52+b}, s13, {b*4096}")
    a("s_lshl_b32 s12, s12, 11")
    a(f"s_add_u32 s55, s12, {12*1024}")
    srd(a, 60, P_OUT, 2048 * 1792)
    vW1, vW2, vCn, vCv = 1, 2, 9, 4
    vR = [3, 12, 13, 14]
    a(f"v_add_u32 v{vW1}, {PH1}, v{vPQ}")
    a(f"v_add_u32 v{vW2}, {PH2}, v{vPQ}")
    a(f"v_mov_b32 v{vCn}, {CNT_L}")
    for (reg, xr, base) in ((vR[0], 1, PH1), (vR[1], 3, PH1 + 4096), (vR[2], 2, PH2)):
        a(f"s_xor_b32 s11, s{S_W4}, {xr}")
        a(f"s_mul_i32 s11, s11, {Q}")
        a(f"s_add_u32 s11, s11, {base}")
        a(f"v_add_u32 v{reg}, s11, v{vP}")
    a(f"v_add_u32 v{vR[3]}, {GA}, v{vPQ}")
    ts.x(2, 11)
    ts.x(7, 11)
    AR = list(range(16, 64, 4))
    NA = len(AR)
    PO = [4, 5, 6, 7, 12, 13, 0, 1, 2, 3, 8, 9, 10, 11]
    def aload(n):
        lr, p = n // 14, PO[n % 14]
        if p % 4 == 0: a(f"s_add_u32 s58, s{56+lr}, s{52 + p//4}")
        d = AR[n % NA]
        vm.issue(('a', n), f"buffer_load_dwordx4 v[{d}:{d+3}], v{vP}, s[{SRD_WS}:{SRD_WS+3}], s58 offen offset:{(p%4)*1024}{AP}")
    def cnt_wait(name, off):
        a("s_mov_b32 s73, 0")
        a.label(name)
        a("s_waitcnt lgkmcnt(0)")
        a(f"v_readfirstlane_b32 s11, v{vCv}")
        a("s_cmp_ge_u32 s11, 4")
        a(f"s_cbranch_scc1 {name}ok")
        a("s_add_u32 s73, s73, 1")
        a(f"s_cmp_ge_u32 s73, {SPIN_MAX}")
        a(f"s_cbranch_scc1 {name}ok")
        a("s_sleep 1")
        a(f"ds_read_b32 v{vCv}, v{vCn} offset:{off}")
        a(f"s_branch {name}")
        a.label(name + "ok")
        a("s_nop 7")
    assert cfg.clate == 2 and cdone == {1, 3}
    if cfg.gate == 0: poll("L_ps", 128)
    if cfg.gate < 2:
        a(f"ds_read_b32 v{vCv}, v{vCn} offset:4")
        cnt_wait("L_l_c0", 4)
    if cfg.sprio: a(f"s_setprio {cfg.sprio}")
    cc = c_ops(0) + c_ops(2)
    for o in cc[:cfg.c0n]: o()
    if cfg.gate != 0: poll("L_ps", 128)
    ts(9)
    ts.x(7, 1)
    for n in range(6): aload(n)
    for o in cc[cfg.c0n:8]: o()
    for n in range(6, 10): aload(n)
    for o in cc[max(8, cfg.c0n):]: o()
    for n in range(10, NA): aload(n)
    a("s_setprio 0")
    ts.x(7, 2)
    for n in range(28):
        lr, p = n // 14, PO[n % 14]
        vm.wait(('a', n))
        assert ('c', min(p // 4, 3)) not in vm.q
        if n in (0, 7, 14, 21): ts.x(7, 3 + n // 7)
        d = AR[n % NA]
        for lc in (1, 0):
            acc = SACC + 32 * lr + 16 * lc
            c = "0" if (n % 14 == 0 and not (lr == 1 and lc == 0)) else f"v[{acc}:{acc+15}]"
            f = cfrag(p, lc)
            a(f"v_mfma_f32_32x32x16_bf16 v[{acc}:{acc+15}], v[{d}:{d+3}], v[{f}:{f+3}], {c}")
        if n + NA < 28: aload(n + NA)
        if cfg.gate == 2 and n == 14: a(f"ds_read_b32 v{vCv}, v{vCn} offset:4")
        if cfg.gate == 2 and n == 15: cnt_wait("L_l_c0", 4)
        if 16 <= n < 24:
            k = n - 16
            a(f"ds_write_b128 v{vW1}, v[{SACC+4*k}:{SACC+4*k+3}] offset:{1024*k}")
    ts(10)
    ts.x(7, 7)
    ts.x(7, 8)
    for k in range(4):
        a(f"ds_write_b128 v{vW2}, v[{SACC+48+4*k}:{SACC+48+4*k+3}] offset:{1024*k}")
    a("s_waitcnt lgkmcnt(0)")
    ts.x(7, 9)
    a("s_barrier")
    ts(11)
    ts.x(7, 10)
    RX = CF
    for k in range(4):
        for w in range(4):
            a(f"ds_read_b128 v[{RX+16*w+4*k}:{RX+16*w+4*k+3}], v{vR[w]} offset:{1024*k}")
    for k in range(4):
        a(f"s_waitcnt lgkmcnt({12 - 4*k})")
        for r in range(4 * k, 4 * k + 4):
            a(f"v_add_f32 v{TT+r}, v{TT+r}, v{RX+r}")
            a(f"v_add_f32 v{RX+16+r}, v{RX+16+r}, v{RX+32+r}")
        for r in range(4 * k, 4 * k + 4):
            a(f"v_add_f32 v{TT+r}, v{TT+r}, v{RX+16+r}")
        for r in range(4 * k, 4 * k + 4):
            a(f"v_fma_f32 v{XV+r}, v{TT+r}, v{RX+48+r}, v{XV+r}")
            if r % 2 == 0: a(f"s_mov_b32 s11, {r*1792}")
            a(f"buffer_store_dword v{XV+r}, v{vO}, s[60:63], s11 offen offset:{(r%2)*1792}{OP}")
    if cfg.ts:
        a("s_waitcnt vmcnt(0)")
        ts(12)
    if cfg.padto:
        a.label("L_pad")
        a("s_memrealtime s[98:99]")
        a("s_waitcnt lgkmcnt(0)")
        a("s_sub_u32 s98, s98, s100")
        a(f"s_cmp_lt_u32 s98, {cfg.padto}")
        a("s_cbranch_scc1 L_pad")
    ts.dump(16, 17, 1)
    a("s_endpgm")

def gen_consumer(a, cfg, ts):
    a.label("L_consumer")
    SP = ["", " sc1"][cfg.spol]
    AP = ['', ' sc1', ' sc1 nt', ' sc0 sc1', ' sc0', ' nt'][cfg.apol]
    vm = VM(a)
    XA = [1, 2, 3, 4]; BA = [5, 6, 7, 8]; WA = [9, 10]
    vL16, vStF, vCL, vF, vFl, vSo, vCn, vRd, vWB, vPQ, vOne, MM = 11, 12, 13, 14, 15, 16, 17, 18, 19, 20, 21, 22
    FS = [40, 68]
    ACC = 96
    def G(ft, q): return ACC + 16 * (2 * ft + q)
    def U(ft, q): return ACC + 64 + 16 * (2 * ft + q)
    def S(q): return ACC + 128 + 16 * q
    vI, vH, t0, t1, t2 = 24, 25, 26, 27, 28
    a(f"v_and_b32 v{vI}, 31, v0")
    a(f"v_lshrrev_b32 v{vH}, 5, v0")
    a(f"v_bfe_u32 v{t0}, v0, 1, 3")
    a(f"v_xor_b32 v{t0}, v{t0}, v{vH}")
    a(f"v_lshlrev_b32 v{t0}, 4, v{t0}")
    a(f"v_lshl_add_u32 v{t0}, v{vI}, 7, v{t0}")
    a(f"s_lshl_b32 s11, s{S_W4}, 13")
    for ks in range(4):
        a(f"v_xor_b32 v{t1}, {32*ks}, v{t0}")
        a(f"v_add_u32 v{XA[ks]}, s11, v{t1}")
        a(f"v_add_u32 v{BA[ks]}, {OFF_BB}, v{t1}")
    a(f"v_bfe_u32 v{t0}, v0, 2, 2")
    a(f"v_lshlrev_b32 v{t1}, 7, v{t0}")
    a(f"v_lshrrev_b32 v{t0}, 1, v{t0}")
    a(f"v_lshl_add_u32 v{t1}, v{t0}, 6, v{t1}")
    a(f"v_bfe_u32 v{t0}, v0, 4, 1")
    a(f"v_lshl_add_u32 v{t1}, v{t0}, 5, v{t1}")
    a(f"v_and_b32 v{t2}, 3, v0")
    a(f"v_lshl_add_u32 v{t1}, v{t2}, 3, v{t1}")
    a(f"v_lshl_add_u32 v{WA[0]}, v{vH}, 10, v{t1}")
    a(f"v_add_u32 v{WA[0]}, {OFF_WG}, v{WA[0]}")
    a(f"v_xor_b32 v{WA[1]}, 64, v{WA[0]}")
    a(f"s_mul_i32 s62, s{S_W4}, {Q}")
    a(f"s_lshr_b32 s59, s{S_W4}, 1")
    a(f"s_and_b32 s63, s{S_W4}, 1")
    a("s_lshl_b32 s11, s59, 6")
    a(f"v_lshl_add_u32 v{vWB}, v{vH}, 9, v{t1}")
    a(f"v_xor_b32 v{vWB}, s11, v{vWB}")
    a(f"v_add_u32 v{vWB}, s62, v{vWB}")
    a("s_waitcnt lgkmcnt(0)")
    a(f"s_lshl_b32 s11, s{S_NS}, 5")
    a(f"s_load_dwordx8 s[32:39], s[{P_LRE}:{P_LRE+1}], s11")
    a(f"s_load_dwordx8 s[64:71], s[{P_LDT}:{P_LDT+1}], s11")
    a(f"s_load_dwordx8 s[24:31], s[{P_LIM}:{P_LIM+1}], s11")
    for k in range(160): a(f"v_mov_b32 v{ACC+k}, 0")
    a(f"v_mov_b32 v{vCn}, {CNT_L}")
    a(f"ds_write_b128 v{vCn}, v[{ACC}:{ACC+3}]")
    a(f"ds_write_b128 v{vCn}, v[{ACC}:{ACC+3}] offset:16")
    a(f"v_bfe_u32 v{t0}, v0, 2, 1")
    a(f"v_lshl_add_u32 v{t0}, v{t0}, 4, v{t2}")
    a(f"v_bfe_u32 v{t1}, v0, 3, 2")
    a(f"v_lshl_add_u32 v{t0}, v{t1}, 2, v{t0}")
    a(f"s_lshl_b32 s11, s{S_W4}, 9")
    a(f"s_add_u32 s11, s11, {STATS_L}")
    a(f"v_lshl_add_u32 v{vStF}, v{t0}, 3, s11")
    a(f"v_lshlrev_b32 v{vL16}, 4, v0")
    a(f"v_add_u32 v{vPQ}, s62, v{vL16}")
    a(f"v_lshlrev_b32 v{vCL}, 4, v{vH}")
    a(f"v_add_u32 v{vCL}, {C_L}, v{vCL}")
    a(f"v_mov_b32 v{vOne}, 1")
    a(f"s_lshl_b32 s11, s{S_W4}, 2")
    a(f"s_add_u32 s11, s11, {CNT_L + 16}")
    a(f"v_mov_b32 v{vRd}, s11")
    a("s_lshl_b32 s11, s63, 8")
    a(f"s_add_u32 s11, s11, {ST2_L}")
    a(f"v_lshl_add_u32 v{vSo}, v{vH}, 7, s11")
    a(f"s_lshl_b32 s13, s{S_MT}, 2")
    a(f"s_add_u32 s13, s13, s{S_W4}")
    a(f"s_mul_i32 s56, s13, {2*RT_BYTES}")
    a(f"s_cmp_ge_u32 s{S_NS}, 14")
    a(f"s_cselect_b32 s11, {HALF_BYTES - 56*1024}, 0")
    a(f"s_lshl_b32 s12, s{S_NS}, 12")
    a("s_add_u32 s11, s11, s12")
    a("s_add_u32 s56, s56, s11")
    a(f"s_add_u32 s57, s56, {RT_BYTES}")
    a("s_lshl_b32 s11, s13, 10")
    flag_index(a, 12, 14, 7)
    a("s_add_u32 s11, s11, s12")
    a(f"s_add_u32 s11, s11, {WS_FLAG:#x}")
    a(f"v_mov_b32 v{vF}, s11")
    a(f"s_lshl_b32 s55, s{S_M64}, 10")
    a(f"s_add_u32 s55, s55, {WS_FLAG:#x}")
    a(f"s_lshl_b32 s11, s{S_W4}, 7")
    a("s_add_u32 s55, s55, s11")
    a(f"s_mul_i32 s12, s59, {HALF_BYTES}")
    a(f"s_mul_i32 s13, s63, {28*1024}")
    a("s_add_u32 s12, s12, s13")
    a(f"s_lshl_b32 s11, s{S_M64}, 1")
    a("s_add_u32 s11, s11, s63")
    a(f"s_mul_i32 s52, s11, {RT_BYTES}")
    a("s_add_u32 s52, s52, s12")
    a("s_xor_b32 s11, s11, 1")
    a(f"s_mul_i32 s51, s11, {RT_BYTES}")
    a("s_add_u32 s51, s51, s12")
    p2_rot(a, cfg, 60, 61, 58)
    a("s_mov_b32 s12, 0x00030003")
    a("s_mov_b32 s13, 0x00030003")
    a("s_waitcnt lgkmcnt(0)")
    K, KP = 40, 64
    for k in range(8):
        a(f"s_lshl_b64 exec, s[12:13], {2*k}")
        for m, sb in enumerate((32, 24, 64)): a(f"v_mov_b32 v{K+m}, s{sb+k}")
    a("s_mov_b64 exec, -1")
    a(f"v_and_b32 v{K+3}, 1, v0")
    a(f"v_lshlrev_b32 v{K+3}, 4, v{K+3}")
    for m in range(3): a(f"v_lshrrev_b32 v{K+m}, v{K+3}, v{K+m}")
    srd(a, SRD_WS, P_WS, WS_SIZE)
    ssm_park(a, K, KP, 62)
    a(f"v_mov_b32 v{KP+23}, 0")
    a(f"s_lshl_b32 s11, s{S_W4}, 13")
    a(f"s_add_u32 s11, s11, {R[2]}")
    a(f"v_add_u32 v{K}, s11, v{vL16}")
    for k in range(6): a(f"ds_write_b128 v{K}, v[{KP+4*k}:{KP+4*k+3}] offset:{1024*k}")
    a("s_waitcnt lgkmcnt(0)")
    ts(1)

    def reads(fs, ks):
        f = FS[fs]
        L = []
        L.append(f"ds_read_b128 v[{f}:{f+3}], v{XA[ks]}")
        L.append(f"ds_read_b128 v[{f+24}:{f+27}], v{BA[ks]}")
        L.append(f"ds_read_b128 v[{f+4}:{f+7}], v{XA[ks]} offset:4096")
        for gu in range(2):
            for ft in range(2):
                for j in range(2):
                    d = f + 8 + 8 * gu + 4 * ft + 2 * j
                    L.append(f"ds_read_b64_tr_b16 v[{d}:{d+1}], v{WA[ft]} offset:{gu*8192 + ks*2048 + j*512}")
        return L
    def mfmas(fs):
        f = FS[fs]
        X = [f, f + 4]; Bf = f + 24
        L = []
        for q in range(2):
            L.append(f"v_mfma_f32_32x32x16_bf16 v[{S(q)}:{S(q)+15}], v[{X[q]}:{X[q]+3}], v[{Bf}:{Bf+3}], v[{S(q)}:{S(q)+15}]")
        for gu in range(2):
            for ft in range(2):
                w = f + 8 + 8 * gu + 4 * ft
                for q in range(2):
                    d = (G, U)[gu](ft, q)
                    L.append(f"v_mfma_f32_32x32x16_bf16 v[{d}:{d+15}], v[{w}:{w+3}], v[{X[q]}:{X[q]+3}], v[{d}:{d+15}]")
        return L
    a("s_setprio 2")
    a("s_mov_b32 s72, 0")
    a("s_mov_b32 s74, 0")
    a("s_barrier")
    ts(2)
    for t in reads(0, 0): a(t)
    a.label("L_c_loop")
    need = {0: 9, 1: 8, 2: 6, 4: 4, 6: 2, 8: 0}
    for ks in range(4):
        fs = ks & 1
        M = mfmas(fs)
        if ks < 3:
            Rd = reads(1 - fs, ks + 1)
            issued = 0
            for i, m in enumerate(M):
                if i in need: a(f"s_waitcnt lgkmcnt({min(15, need[i] + issued)})")
                a(m)
                for _ in range(2 if i >= cfg.rdstart else 0):
                    if Rd: a(Rd.pop(0)); issued += 1
        else:
            Rd = reads(1 - fs, 0)
            a("s_waitcnt lgkmcnt(9)")
            a(M[0])
            a("s_add_u32 s74, s74, 1")
            a("s_cmp_eq_u32 s74, 3")
            a("s_mov_b32 s75, 53248")
            a(f"s_cmov_b32 s75, {(-106496) & 0xffffffff:#x}")
            a("s_cselect_b32 s74, 0, s74")
            for v in XA + BA[:1]: a(f"v_add_u32 v{v}, s75, v{v}")
            a("s_waitcnt lgkmcnt(8)")
            a(M[1])
            for v in BA[1:] + WA: a(f"v_add_u32 v{v}, s75, v{v}")
            a("s_add_u32 s72, s72, 1")
            a("s_cmp_eq_u32 s72, 6")
            a("s_waitcnt lgkmcnt(0)")
            a(M[2])
            a("s_barrier")
            hist = list(a.hist)
            a("s_cbranch_scc1 L_c_last")
            for m in M[3:]:
                for _ in range(2):
                    if Rd: a(Rd.pop(0))
                a(m)
            a("s_branch L_c_loop")
            a.label("L_c_last")
            a.hist = hist
            Mtail = M[3:]
    lq = []
    def ds_issue(tag, t):
        a(t)
        if t.startswith("ds_"): lq.append(tag)
    def ds_wait(tag):
        idx = max((i for i, t in enumerate(lq) if t == tag), default=None)
        if idx is None: return None
        n = len(lq) - 1 - idx
        del lq[:idx + 1]
        return f"lgkmcnt({min(n, 15)})"
    def dwait(tag):
        w = ds_wait(tag)
        if w: a(f"s_waitcnt {w}")
    UB = [24, 40, 56]
    def ureads(u):
        b, ks = UB[u % 3], u % 4
        L = [f"ds_read_b128 v[{b}:{b+3}], v{XA[ks]}"]
        if u < 8:
            ft = u // 4
            for gu in range(2):
                for j in range(2):
                    d = b + 8 + 4 * gu + 2 * j
                    L.append(f"ds_read_b64_tr_b16 v[{d}:{d+1}], v{WA[ft]} offset:{gu*8192 + ks*2048 + j*512}")
        else:
            L.append(f"ds_read_b128 v[{b+8}:{b+11}], v{BA[ks]}")
        L.append(f"ds_read_b128 v[{b+4}:{b+7}], v{XA[ks]} offset:4096")
        return [(u, t) for t in L]
    def umfma(u):
        b = UB[u % 3]
        L = []
        for q in range(2):
            x = b + 4 * q
            if u < 8:
                for gu in range(2):
                    d = (G, U)[gu](u // 4, q); w = b + 8 + 4 * gu
                    L.append(f"v_mfma_f32_32x32x16_bf16 v[{d}:{d+15}], v[{w}:{w+3}], v[{x}:{x+3}], v[{d}:{d+15}]")
            else:
                L.append(f"v_mfma_f32_32x32x16_bf16 v[{S(q)}:{S(q)+15}], v[{x}:{x+3}], v[{b+8}:{b+11}], v[{S(q)}:{S(q)+15}]")
        return L
    Rd = ureads(0) + ureads(1)
    for m in Mtail:
        for _ in range(2):
            if Rd: ds_issue(*Rd.pop(0))
        a(m)
    CH = 72
    def chalf(p):
        for gu in range(2):
            for k in range(2):
                ds_issue(('c', p), f"ds_read_b128 v[{CH+8*gu+4*k}:{CH+8*gu+4*k+3}], v{vCL} offset:{256*gu + 32*(2*p+k)}")
    def hstore(ft, q, p):
        g = G(ft, q)
        vm.issue('h', f"buffer_store_dwordx4 v[{g+4*p}:{g+4*p+3}], v{vL16}, s[{SRD_WS}:{SRD_WS+3}], s{56+q} offen offset:{(2*ft+p)*1024}{SP}")
    ep = [lambda: dwait(('c', 0)), f"v_xor_b32 v{MM}, 0x80000000, v{MM}", f"v_xor_b32 v{MM+1}, 0x80000000, v{MM+1}"]
    for p in range(2):
        if p: ep.append(lambda: dwait(('c', 1)))
        for q in range(2):
            g, u = G(0, q) + 8 * p, U(0, q) + 8 * p
            for k in range(8): ep.append(f"v_fmac_f32 v{g+k}, v{MM+q}, v{CH+k}")
            for k in range(8): ep.append(f"v_fmac_f32 v{u+k}, v{MM+q}, v{CH+8+k}")
            if q == 1 and p == 0: ep.append(lambda: chalf(1))
            for k in range(8): ep.append(f"v_max_f32 v{g+k}, 0, v{g+k}")
            for k in range(8): ep.append(f"v_mul_f32 v{u+k}, v{u+k}, v{g+k}")
            for k in range(4): ep.append(f"v_cvt_pk_bf16_f32 v{G(0,q)+4*p+k}, v{u+2*k}, v{u+2*k+1}")
            ep.append(lambda q=q, p=p: hstore(0, q, p))
    def fill(n):
        while n > 0 and ep:
            t = ep.pop(0)
            if callable(t): t()
            else: a(t)
            n -= 1
    def cread(tag, dst, off):
        for k in range(4): ds_issue(tag, f"ds_read_b128 v[{dst+4*k}:{dst+4*k+3}], v{vCL} offset:{off + 32*k}")
    for u in range(12):
        dwait(u)
        if u == 11:
            a("s_barrier")
        Rd = ureads(u + 2) if u + 2 < 12 else []
        for i, m in enumerate(umfma(u)):
            a(m)
            for _ in range(2):
                if Rd: ds_issue(*Rd.pop(0))
            if u > 4 or (u == 4 and i >= 1): fill(cfg.fper - 1 if u < 10 else cfg.fper)
        if u == cfg.c2u:
            a("s_barrier")
            ds_issue(('c', 0), f"ds_read_b32 v{MM}, v{vStF}")
            ds_issue(('c', 0), f"ds_read_b32 v{MM+1}, v{vStF} offset:256")
            chalf(0)
        if u == 9: cread('cg', UB[0], 128)
        if u == 10: cread('cu', UB[1], 384)
    ts(3)
    fill(1000)
    dump = [f"ds_write_b128 v{vPQ}, v[{S(0)+4*k}:{S(0)+4*k+3}] offset:{SD + 1024*k}" for k in range(8)]
    WB = {0: [1, 2], 1: [3, 4], 2: [5, 6]}
    for rg in range(3):
        a(f"v_add_u32 v{WB[rg][0]}, {R[rg]}, v{vWB}")
        a(f"v_xor_b32 v{WB[rg][1]}, 64, v{WB[rg][0]}")
    dwait('cu')
    cg, cu = UB[0], UB[1]
    for q in range(2):
        g, u = G(1, q), U(1, q)
        sel = f"op_sel:[{q},0,0] op_sel_hi:[{q},1,1]"
        for p in range(2):
            kr = range(4 * p, 4 * p + 4)
            for k in kr:
                a(f"v_pk_fma_f32 v[{g+2*k}:{g+2*k+1}], v[{MM}:{MM+1}], v[{cg+2*k}:{cg+2*k+1}], v[{g+2*k}:{g+2*k+1}] {sel}")
                if dump: a(dump.pop(0))
            for k in kr:
                a(f"v_pk_fma_f32 v[{u+2*k}:{u+2*k+1}], v[{MM}:{MM+1}], v[{cu+2*k}:{cu+2*k+1}], v[{u+2*k}:{u+2*k+1}] {sel}")
                a(f"v_max_f32 v{g+2*k}, 0, v{g+2*k}")
                a(f"v_max_f32 v{g+2*k+1}, 0, v{g+2*k+1}")
            for k in kr:
                a(f"v_pk_mul_f32 v[{u+2*k}:{u+2*k+1}], v[{u+2*k}:{u+2*k+1}], v[{g+2*k}:{g+2*k+1}]")
            for k in kr:
                a(f"v_cvt_pk_bf16_f32 v{g+k}, v{u+2*k}, v{u+2*k+1}")
            if q == 0 and p == 1:
                a("s_waitcnt lgkmcnt(0)")
                a("s_barrier")
            hstore(1, q, p)
    del lq[:]
    ts(4)
    BR, NB = 160, 12
    def breads(p):
        sl = WSLOT[p]
        rg = max(k for k in range(3) if R[k] <= sl)
        L = []
        for lc in range(2):
            for jj in range(2):
                d = BR + 8 * (p % NB) + 4 * lc + 2 * jj
                L.append(f"ds_read_b64_tr_b16 v[{d}:{d+1}], v{WB[rg][lc]} offset:{sl - R[rg] + jj*1024}")
        return L
    for p in range(NB):
        for t in breads(p): a(t)
    def flag1():
        vm.wait('h')
        a("s_setprio 3")
        a("s_mov_b64 exec, 1")
        vm.issue('f', f"buffer_store_dword v{vOne}, v{vF}, s[{SRD_WS}:{SRD_WS+3}], 0 offen sc1")
        a("s_mov_b64 exec, -1")
        ts(6)
    if cfg.fpre: flag1()
    a("s_waitcnt lgkmcnt(0)")
    a("s_barrier")
    ts(5)
    if not cfg.fpre: flag1()
    AF = 96
    AR = list(range(24, 96, 4))
    NA = len(AR)
    def aload(n):
        p, lr = n // 2, n % 2
        if n % 8 == 0:
            a(f"s_lshl_b32 s11, s60, 12")
            a(f"s_add_u32 s54, s11, s52")
            a(f"s_add_u32 s53, s11, s51")
            a(f"s_add_u32 s60, s60, 1")
            a(f"s_cmp_eq_u32 s60, 7")
            a(f"s_cselect_b32 s60, 0, s60")
        d = AR[n % NA]
        vm.issue(('a', n), f"buffer_load_dwordx4 v[{d}:{d+3}], v{vL16}, s[{SRD_WS}:{SRD_WS+3}], s{54 - lr} offen offset:{(p%4)*1024}{AP}")
    def cond():
        a("s_and_b64 s[16:17], s[16:17], s[18:19]")
        a("s_and_b64 s[16:17], s[16:17], s[20:21]")
        a("s_and_b32 s16, s16, s17")
        a("s_and_b32 s16, s16, s22")
        a("s_cmp_eq_u32 s16, 1")
    sspin(a, "L_pf", [f"s_load_dwordx8 s[16:23], s[{P_WS}:{P_WS+1}], s55 glc"], cond, cfg.fsleep)
    a("s_setprio 2")
    ts(7)
    for n in range(cfg.a0): aload(n)
    nxt = [cfg.a0]
    ts(8)
    def lds_spin(name, vaddr, off, val):
        a("s_mov_b32 s73, 0")
        a.label(name)
        a("s_waitcnt lgkmcnt(0)")
        a("v_readfirstlane_b32 s11, v8")
        a(f"s_cmp_ge_u32 s11, {val}")
        a(f"s_cbranch_scc1 {name}ok")
        a("s_add_u32 s73, s73, 1")
        a(f"s_cmp_ge_u32 s73, {SPIN_MAX}")
        a(f"s_cbranch_scc1 {name}ok")
        a("s_sleep 1")
        a(f"ds_read_b32 v8, v{vaddr} offset:{off}")
        a(f"s_branch {name}")
        a.label(name + "ok")
        del lq[:]
    for p in range(28):
        f = BR + 8 * (p % NB)
        pn = p + cfg.bd
        for lr in range(2):
            n = 2 * p + lr
            w = ds_wait(p) if lr == 0 else None
            vm.wait(('a', n), w or "")
            if n == 0: ts(9)
            if n in (0, 7, 17, 25, 35): ts.x(6, {0: 7, 7: 8, 17: 9, 25: 10, 35: 11}[n])
            if lr == 0 and pn in (12, 16, 22): ds_issue('r', f"ds_read_b32 v8, v{vRd}")
            d = AR[n % NA]
            for lc in range(2):
                acc = AF + 32 * lr + 16 * lc
                c = "0" if p == 0 else f"v[{acc}:{acc+15}]"
                a(f"v_mfma_f32_32x32x16_bf16 v[{acc}:{acc+15}], v[{d}:{d+3}], v[{f+4*lc}:{f+4*lc+3}], {c}")
            for _ in range(2):
                if nxt[0] < 56 and nxt[0] <= n + NA:
                    aload(nxt[0]); nxt[0] += 1
        if pn in (12, 16, 22): lds_spin(f"L_c_r{pn}", vRd, 0, {12: 1, 16: 2, 22: 3}[pn])
        if p == cfg.ksig:
            assert pn > 15
            w = ds_wait(15)
            if w: a(f"s_waitcnt {w}")
            a("s_mov_b64 exec, 1")
            ds_issue('c', f"ds_add_u32 v{vCn}, v{vOne} offset:4")
            a("s_mov_b64 exec, -1")
        if NB <= pn < 28:
            for t in breads(pn): ds_issue(pn, t)
        if p == 24:
            STT = BR + 32
            for k in range(8): ds_issue('st', f"ds_read_b128 v[{STT+4*k}:{STT+4*k+3}], v{vSo} offset:{16*k}")
        if p == 26:
            for x in range(1, 4):
                a(f"s_xor_b32 s11, s{S_W4}, {x}")
                a(f"s_mul_i32 s11, s11, {Q}")
                a(f"s_add_u32 s11, s11, {FXA + (x-1)*4096}")
                a(f"v_add_u32 v{x}, s11, v{vL16}")
            a(f"v_add_u32 v4, {GA}, v{vPQ}")
            a(f"v_add_u32 v5, {FXA}, v{vPQ}")
        if p % 4 == 3: ts.x(4, 1 + p // 4)
    ts(11)
    ts.x(7, 1)
    for x in (2, 1, 3):
        src = AF + 32 * (x & 1) + 16 * (x >> 1)
        for k in range(4):
            a(f"ds_write_b128 v5, v[{src+4*k}:{src+4*k+3}] offset:{(x-1)*4096 + 1024*k}")
    a("s_waitcnt lgkmcnt(12)")
    for r in range(16): a(f"v_mul_f32 v{STT+2*r}, v{STT+2*r+1}, v{STT+2*r+1}")
    a(f"s_mov_b32 s13, {LOG2E ^ 0x80000000:#x}")
    ts.x(7, 2)
    a("s_waitcnt lgkmcnt(0)")
    ts.x(7, 3)
    a("s_mov_b64 exec, 1")
    a(f"ds_add_u32 v{vCn}, v{vOne}")
    a("s_mov_b64 exec, -1")
    a(f"ds_read_b32 v8, v{vCn}")
    lds_spin("L_c_cnt", vCn, 0, 4)
    ts.x(7, 4)
    O, RX, EX = AF, 24, 72
    for k in range(4):
        for x in range(1, 4):
            a(f"ds_read_b128 v[{RX+16*(x-1)+4*k}:{RX+16*(x-1)+4*k+3}], v{x} offset:{1024*k}")
    for k in range(4):
        rr = range(4 * k, 4 * k + 4)
        a(f"s_waitcnt lgkmcnt({9 - 3*k})")
        for r in rr: a(f"v_add_f32 v{O+r}, v{O+r}, v{RX+r}")
        for r in rr: a(f"v_add_f32 v{RX+16+r}, v{RX+16+r}, v{RX+32+r}")
        for r in rr: a(f"v_add_f32 v{O+r}, v{O+r}, v{RX+16+r}")
        for r in rr: a(f"v_mul_f32 v{O+r}, v{O+r}, v{STT+2*r}")
        for r in rr: a(f"v_mul_f32 v{EX+r}, s13, v{O+r}")
        for r in rr: a(f"v_exp_f32 v{EX+r}, v{EX+r}")
    ts.x(7, 5)
    for k in range(4):
        rr = range(4 * k, 4 * k + 4)
        for r in rr: a(f"v_add_f32 v{EX+r}, 1.0, v{EX+r}")
        for r in rr: a(f"v_rcp_f32 v{EX+r}, v{EX+r}")
        for r in rr: a(f"v_mul_f32 v{O+r}, v{O+r}, v{EX+r}")
        a(f"ds_write_b128 v4, v[{O+4*k}:{O+4*k+3}] offset:{1024*k}")
    a("s_waitcnt lgkmcnt(0)")
    ts(12)
    a("s_barrier")
    ts.dump(24, 25, 0)
    a("s_endpgm")

HEADER = """; Fused S5-SSM + ReGLU block, one launch: 224 main workgroups (4 MFMA waves + 4 loader waves) + 32 helper workgroups.
; @launch grid=(256,1,1) block=(512,1,1) lds=163840
.amdgcn_target "amdgcn-amd-amdhsa--gfx950"
.text
.globl {k}
.p2align 8
.type {k},@function
{k}:
"""
FOOTER = """.section .rodata,"a"
.p2align 6
.amdhsa_kernel {k}
  .amdhsa_next_free_vgpr 256
  .amdhsa_next_free_sgpr 102
  .amdhsa_accum_offset 256
  .amdhsa_group_segment_fixed_size 0
  .amdhsa_kernarg_size 128
  .amdhsa_user_sgpr_count 2
  .amdhsa_user_sgpr_kernarg_segment_ptr 1
  .amdhsa_system_sgpr_workgroup_id_x 1
  .amdhsa_float_denorm_mode_32 3
.end_amdhsa_kernel
"""

def generate(cfg):
    WSOFF[0] = cfg.wsoff << 20
    a = Asm()
    ts = TS(a, cfg)
    gen_entry(a, cfg, ts)
    gen_loader(a, cfg, ts)
    gen_consumer(a, cfg, ts)
    gen_helper(a, cfg, ts)
    a.label("L_exit")
    a("s_endpgm")
    return HEADER.format(k=KNAME) + f"; wsoff={cfg.wsoff}\n" + a.text() + FOOTER.format(k=KNAME)

if __name__ == "__main__":
    cfg = Cfg()
    out = sys.argv[1]
    for kv in sys.argv[2:]:
        k, v = kv.split("=")
        setattr(cfg, k, int(v))
    open(out, "w").write(generate(cfg))
```

```python
import sys, os
sys.path.insert(0, os.path.dirname(os.path.abspath(__file__)))
from asmlib import Asm, VM

KNAME = "recurrent_scan__ssm_conv_s5__glu_gated_reglu__prompt_kernel"

R = [0, 53248, 106496]
MISC = 159744
OFF_WG, OFF_WU, OFF_BB = 32768, 40960, 49152
CP_L = R[1] + 49152
STATS_L = MISC
C_L = MISC + 2048
CNT_L = MISC + 2688
ST2_L = MISC + 2720
AGG_L = MISC + 3232
Q = 12288

RT_BYTES = 172032
HALF_BYTES = 86016
WS_STATS = 0xB00000
WS_AGG = WS_STATS + 0x4000
WS_FLAG = WS_AGG + 0x8000
INIT_N = 32
WS_CP = 0xB20000
WS_TS = 0xC00000
WS_SIZE = 0x1000000
SPIN_MAX = 1 << 20

S_WAVE, S_XCD, S_SLOT, S_MT, S_NS, S_M64, S_NT, S_W4 = 3, 4, 5, 6, 7, 8, 9, 10
P_X, P_LRE, P_LIM, P_BRE, P_BIM, P_CRE, P_CIM, P_LDT, P_DSK, P_BX, P_WG, P_WU, P_WD, P_OUT, P_DBG, P_WS = [16 + 2 * i for i in range(16)]
SRD_X, SRD_A, SRD_B, SRD_C, SRD_WS, SRD_E = 48, 52, 56, 60, 64, 68
TS0 = 76

LOG2E = 0x3fb8aa3b
LOG2E_LO = 0x32a57060
LN2 = 0x3f317218
INV2PI = 0x3e22f983

class Cfg:
    ts = 0
    tsset = 0
    pd = 16
    perm = 4
    rot = 2
    ssm_early = 0
    schedn = 0
    polx = 0
    apol = 1
    noa = 0
    nob = 0
    rdstart = 1
    polw = 0
    winn = 3
    loc = 1
    gate = 2
    c0n = 8
    agpos = 0
    c0early = 0
    hord = 1
    clate = 2
    wl = 1
    fper = 6
    c2u = 2
    probe = 0
    pwho = 0
    ponly = -1
    pmask = 0xffff
    wsoff = 0
    kwin = 2
    wprio = 0
    hdelay = 0
    eprio = 0
    c2late = 0
    cpf = 2
    padto = 0
    nocs = 0
    r2pre = 1
    tlb = 0
    bd = 4
    pollw = 24
    c1 = 12
    c2 = 16
    f2b = 1
    wfirst = 1
    @property
    def win(self):
        W = lambda a, b: [f"w{p}" for p in range(a, b)]
        return [
            {-1: ["s1:0-6"], 0: ["cs0", "s1:6-13", "k", "s2:0-9"], 1: ["cs1", "s2:9-13", "s3", "e"], 2: ["cs2", "s4"] + W(12, 14), 3: ["cs3", "s5"] + W(14, 17),
             4: ["cs4", "init", "s6:0-7", "cs5", "s6:7-13", "w17"], 5: ["fetch"] + W(0, 4) + ["cs6"] + W(4, 6) + W(18, 20) + ["put"], 6: W(6, 12) + W(20, 22)},
            {-1: ["s1:0-6"], 0: ["cs0", "s1:6-13", "k", "s2:0-9"], 1: ["cs1", "s2:9-13", "s3", "e"], 2: ["cs2", "s4"] + W(12, 15), 3: ["cs3", "s5"] + W(15, 18),
             4: ["cs4", "init", "s6"] + W(18, 20), 5: ["cs5", "fetch"] + W(0, 3) + ["cs6"] + W(3, 6) + ["put"], 6: W(6, 12) + W(20, 22)},
            {-1: ["s1:0-6"], 0: ["cs0", "s1:6-13", "k", "s2:0-9"], 1: ["cs1", "s2:9-13", "s3", "e"], 2: ["cs2", "s4"] + W(12, 15), 3: ["cs3", "s5:0-7", "cs4", "s5:7-13", "w15"],
             4: ["init", "s6:0-4", "cs5", "s6:4-13"] + W(16, 19), 5: ["fetch"] + W(0, 4) + ["cs6"] + W(4, 6) + W(19, 22) + ["put"], 6: W(6, 12)},
            {-1: ["s1:0-6"], 0: ["cs0", "s1:6-13", "k", "s2:0-9"], 1: ["cs1", "s2:9-13", "s3", "e"], 2: ["cs2", "s4"] + W(12, 15), 3: ["cs3", "s5"] + W(15, 18),
             4: ["cs4", "init", "s6:0-7", "cs5", "s6:7-13", "w18", "w19"], 5: ["fetch"] + W(0, 4) + ["cs6"] + W(4, 6) + W(20, 22) + ["c3", "put"], 6: W(6, 12) + ["c1"]},
            {-1: ["s1:0-6"], 0: ["cs0", "s1:6-13", "k", "s2:0-9"], 1: ["cs1", "s2:9-13", "s3", "e"], 2: ["cs2", "s4"] + W(12, 14), 3: ["cs3", "s5"] + W(14, 17),
             4: ["cs4", "init", "s6:0-7", "cs5", "s6:7-13", "w17"], 5: ["fetch"] + W(0, 4) + ["cs6"] + W(4, 6) + W(18, 20) + ["put"], 6: W(6, 12) + W(20, 22) + ["c3"]},
            {-1: ["s1:0-6"], 0: ["cs0", "s1:6-13", "k", "s2:0-9"], 1: ["cs1", "s2:9-13", "s3", "e"], 2: ["cs2", "s4"] + W(12, 15), 3: ["cs3", "s5"] + W(15, 19),
             4: ["cs4", "init", "s6:0-7", "cs5", "s6:7-13"] + W(19, 22), 5: ["fetch"] + W(0, 4) + ["cs6"] + W(4, 6) + ["c1", "put"], 6: W(6, 12) + ["c3"]},
            {-1: ["s1:0-6"], 0: ["cs0", "s1:6-13", "k", "s2"], 1: ["cs1", "s3", "e"] + W(12, 14), 2: ["cs2", "s4"] + W(14, 17), 3: ["cs3", "s5"] + W(17, 20),
             4: ["cs4", "init", "s6:0-7", "cs5", "s6:7-13"] + W(20, 22), 5: ["fetch"] + W(0, 4) + ["cs6"] + W(4, 6) + ["c1", "put"], 6: W(6, 12) + ["c3"]},
            {-1: ["s1:0-6"], 0: ["cs0", "s1:6-13", "k", "s2:0-9"], 1: ["cs1", "s2:9-13", "s3", "e"], 2: ["cs2", "s4"] + W(12, 15), 3: ["cs3", "s5:0-7", "cs4", "s5:7-13"] + W(15, 18),
             4: ["init", "s6:0-4", "cs5", "s6:4-13"] + W(18, 22), 5: ["fetch"] + W(0, 4) + ["cs6"] + W(4, 6) + ["c1", "put"], 6: W(6, 12) + ["c3"]},
            {-1: ["s1:0-6"], 0: ["cs0", "s1:6-13", "k", "s2:0-9"], 1: ["cs1", "s2:9-13", "s3", "e"], 2: ["cs2", "s4"], 3: ["cs3", "s5"] + W(12, 16),
             4: ["cs4", "init", "s6:0-7", "cs5", "s6:7-13"] + W(16, 19), 5: ["fetch"] + W(0, 4) + ["cs6"] + W(4, 6) + W(19, 22) + ["c3", "put"], 6: W(6, 12) + ["c1"]},
            {-1: ["s1:0-6"], 0: ["cs0", "s1:6-13", "k", "s2"], 1: ["cs1", "s3", "e"], 2: ["cs2", "s4"] + W(12, 14), 3: ["cs3", "s5"] + W(14, 18),
             4: ["cs4", "init", "s6:0-7", "cs5", "s6:7-13", "w18", "w19"], 5: ["fetch"] + W(0, 4) + ["cs6"] + W(4, 6) + W(20, 22) + ["c3", "put"], 6: W(6, 12) + ["c1"]},
            {-1: ["s1:0-3"], 0: ["cs0", "s1:3-13", "k", "s2:0-8"], 1: ["cs1", "s2:8-13", "s3"], 2: ["cs2", "s4", "e"] + W(12, 14), 3: ["cs3", "s5"] + W(14, 18),
             4: ["cs4", "init", "s6:0-7", "cs5", "s6:7-13", "w18", "w19"], 5: ["fetch"] + W(0, 4) + ["cs6"] + W(4, 6) + W(20, 22) + ["c3", "put"], 6: W(6, 12) + ["c1"]},
            {-1: ["s1:0-6"], 0: ["cs0", "s1:6-13", "k", "s2:0-9"], 1: ["cs1", "s2:9-13", "s3", "e"], 2: ["cs2", "s4"] + W(12, 15), 3: ["cs3", "init", "s5"] + W(15, 18),
             4: ["cs4", "fetch", "s6:0-7", "cs5", "s6:7-13", "w18", "w19"], 5: ["put"] + W(0, 4) + ["cs6"] + W(4, 6) + W(20, 22) + ["c3"], 6: W(6, 12) + ["c1"]},
            {-1: ["m", "s1:0-3"], 0: ["cs0", "s1:3-13", "k", "s2:0-8"], 1: ["cs1", "s2:8-13", "s3", "e"], 2: ["cs2", "s4"] + W(12, 15), 3: ["cs3", "s5"] + W(15, 18),
             4: ["cs4", "init", "s6:0-7", "cs5", "s6:7-13", "w18", "w19"], 5: ["fetch"] + W(0, 4) + ["cs6"] + W(4, 6) + W(20, 22) + ["c3", "put"], 6: W(6, 12) + ["c1"]},
            {-1: ["s1:0-6"], 0: ["cs0", "s1:6-13", "m", "k", "s2:0-9"], 1: ["cs1", "s2:9-13", "s3", "e"], 2: ["cs2", "s4"] + W(12, 15), 3: ["cs3", "s5"] + W(15, 18),
             4: ["cs4", "init", "s6:0-7", "cs5", "s6:7-13", "w18", "w19"], 5: ["fetch"] + W(0, 4) + ["cs6"] + W(4, 6) + W(20, 22) + ["c3", "put"], 6: W(6, 12) + ["c1"]},
            {-1: ["m"], 0: ["cs0", "s1", "k", "s2:0-6"], 1: ["cs1", "s2:6-13", "s3"], 2: ["cs2", "s4", "e"] + W(12, 14), 3: ["cs3", "s5"] + W(14, 18),
             4: ["cs4", "init", "s6:0-7", "cs5", "s6:7-13", "w18", "w19"], 5: ["fetch"] + W(0, 4) + ["cs6"] + W(4, 6) + W(20, 22) + ["c3", "put"], 6: W(6, 12) + ["c1"]},
        ][self.winn]
    nw1 = 6
    flagr = -1
    xs = 1
    psleep = 2
    fsleep = 2
    ttper = 2
    f2n = 9
    fpre = 1
    a0 = 18
    sprio = 0
    ksig = 12
    opol = 1
    lprio = 3
    w12early = 0
    slab = 0
    spol = 1
    fpol = 1
    pollr = 4
    nw2 = 16
    thr = 15
    hpf = 2
    ky = 2
    @property
    def perms(self):
        return {
            0: [[0, 1, 2, 3, 4, 5, 6]],
            1: [[0, 1, 2, 3, 4, 5, 6], [1, 2, 0, 4, 5, 3, 6], [2, 0, 1, 5, 3, 4, 6]],
            2: [[0, 1, 2, 3, 4, 5, 6], [1, 0, 3, 2, 5, 4, 6]],
            3: [[0, 1, 2, 3, 4, 5, 6], [1, 0, 4, 5, 6, 2, 3], [0, 1, 6, 2, 3, 4, 5]],
            4: [[0, 1, 2, 3, 4, 5, 6], [1, 2, 0, 4, 6, 3, 5], [2, 0, 1, 5, 6, 3, 4]],
            6: [[0, 1, 2, 3, 4, 5, 6], [1, 2, 0, 3, 4, 5, 6], [2, 0, 1, 3, 4, 5, 6]],
            5: [[0, 1, 2, 3, 4, 5, 6], [1, 2, 3, 0, 5, 6, 4], [2, 3, 0, 1, 6, 4, 5], [3, 0, 1, 2, 4, 5, 6]],
        }[self.perm]

WSOFF = [0]
def srd(a, d, ptr, nbytes):
    if ptr == P_WS and WSOFF[0]:
        a(f"s_add_u32 s{ptr}, s{ptr}, {WSOFF[0]:#x}")
        a(f"s_addc_u32 s{ptr+1}, s{ptr+1}, 0")
    a(f"s_mov_b32 s{d}, s{ptr}")
    a(f"s_and_b32 s{d+1}, s{ptr+1}, 0xffff")
    a(f"s_mov_b32 s{d+2}, {nbytes:#x}")
    a(f"s_mov_b32 s{d+3}, 0x20000")

def srd_sel(a, d, ptr1, ptr0, nbytes):
    a(f"s_cselect_b32 s{d}, s{ptr1}, s{ptr0}")
    a(f"s_cselect_b32 s{d+1}, s{ptr1+1}, s{ptr0+1}")
    a(f"s_and_b32 s{d+1}, s{d+1}, 0xffff")
    a(f"s_mov_b32 s{d+2}, {nbytes:#x}")
    a(f"s_mov_b32 s{d+3}, 0x20000")

class TS:
    def __init__(self, a, cfg):
        self.a, self.on, self.n, self.set = a, cfg.ts, 0, cfg.tsset
        self.cfg = cfg
    def x(self, setno, i):
        if self.on and self.set == setno: self.emit(i)
    def __call__(self, i):
        if self.on and (self.set == 0 or i in (0, 12)): self.emit(i)
    def emit(self, i):
        if self.on == 5 and i not in (0, self.cfg.probe): return
        if self.on:
            assert i < 13
            self.a(f"{'s_memrealtime' if self.on != 2 else 's_memtime'} s[{TS0+2*i}:{TS0+2*i+1}]")
    def init(self):
        if self.on:
            for i in range(1, 13): self.a(f"s_mov_b32 s{TS0+2*i}, 0")
    def dump(self, vt, vt2, who=2):
        if not self.on: return
        a = self.a
        if self.on == 5:
            if who != self.cfg.pwho: return
            lab = a.newlabel("L_probe")
            if self.cfg.ponly >= 0:
                a(f"s_and_b32 s11, s2, {self.cfg.pmask}")
                a(f"s_cmp_lg_u32 s11, {self.cfg.ponly}")
                a(f"s_cbranch_scc1 {lab}_x")
            p = TS0 + 2 * self.cfg.probe
            a("s_waitcnt lgkmcnt(0)")
            a(f"s_sub_u32 s11, s{p}, s{TS0}")
            a(f"s_cmp_eq_u32 s{p}, 0")
            a("s_cselect_b32 s11, 0, s11")
            a("s_lshl_b32 s11, s11, 2")
            a("s_add_u32 s11, s11, 3000")
            a.label(lab)
            a("s_memrealtime s[12:13]")
            a("s_waitcnt lgkmcnt(0)")
            a(f"s_sub_u32 s12, s12, s{TS0}")
            a("s_cmp_lt_u32 s12, s11")
            a(f"s_cbranch_scc1 {lab}")
            a.label(lab + "_x")
            return
        if self.on == 3:
            a("s_waitcnt vmcnt(0) lgkmcnt(0)")
            lab = a.newlabel("L_nod")
            a(f"s_cmp_eq_u32 s{TS0+24}, 0")
            a(f"s_cbranch_scc1 {lab}")
            a(f"s_cmp_lg_u32 s{S_WAVE}, 0")
            a(f"s_cbranch_scc1 {lab}")
            a("s_mov_b64 exec, 1")
            a(f"v_mov_b32 v{vt2}, 0")
            a(f"s_not_b32 s11, s{TS0}")
            a(f"v_mov_b32 v{vt}, s11")
            a(f"global_atomic_umax v{vt2}, v{vt}, s[{P_DBG}:{P_DBG+1}] offset:4 sc1")
            for n, i in enumerate([0, 1, 2, 3, 4, 5, 6, 7, 8, 9, 10, 11, 12]):
                a("s_waitcnt vmcnt(0)")
                a(f"v_mov_b32 v{vt}, s{TS0+2*i}")
                a(f"global_atomic_umax v{vt2}, v{vt}, s[{P_DBG}:{P_DBG+1}] offset:{8+4*n} sc1")
            a("s_waitcnt vmcnt(0)")
            a.label(lab)
            return
        a("s_waitcnt vmcnt(0) lgkmcnt(0)")
        a(f"s_lshl_b32 s11, s2, 9")
        a(f"s_lshl_b32 s12, s{S_WAVE}, 6")
        a("s_add_u32 s11, s11, s12")
        a(f"s_add_u32 s11, s11, {WS_TS:#x}")
        a(f"v_mov_b32 v{vt2}, s11")
        for i in range(13):
            a(f"v_mov_b32 v{vt}, s{TS0+2*i}")
            a(f"buffer_store_dword v{vt}, v{vt2}, s[{SRD_WS}:{SRD_WS+3}], 0 offen offset:{4*i}")
        a("s_waitcnt vmcnt(0)")

def round_bf16(a, dst, src):
    a(f"v_cvt_pk_bf16_f32 v{dst}, v{src}, v{src}")
    a(f"v_lshlrev_b32 v{dst}, 16, v{dst}")

def exp_acc(a, dst, x, t0, t1):
    a(f"s_mov_b32 s36, {LOG2E:#x}")
    a(f"s_mov_b32 s37, {LOG2E_LO:#x}")
    a(f"v_mul_f32 v{t0}, s36, v{x}")
    a(f"v_fma_f32 v{t1}, v{x}, s36, -v{t0}")
    a(f"v_fma_f32 v{t1}, v{x}, s37, v{t1}")
    a(f"v_mul_f32 v{t1}, {LN2:#x}, v{t1}")
    a(f"v_exp_f32 v{dst}, v{t0}")
    a(f"v_fma_f32 v{dst}, v{dst}, v{t1}, v{dst}")

def csq(a, dr, di, sr, si, t):
    a(f"v_mul_f32 v{t}, v{si}, v{si}")
    a(f"v_add_f32 v{di}, v{si}, v{si}")
    a(f"v_mul_f32 v{di}, v{di}, v{sr}")
    a(f"v_fma_f32 v{dr}, v{sr}, v{sr}, -v{t}")

def cmul(a, dr, di, ar, ai, br, bi):
    a(f"v_mul_f32 v{dr}, v{ar}, v{br}")
    a(f"v_mul_f32 v{di}, v{ar}, v{bi}")
    a(f"v_fma_f32 v{dr}, -v{ai}, v{bi}, v{dr}")
    a(f"v_fma_f32 v{di}, v{ai}, v{br}, v{di}")

def ssm_const_load(a, vm, t):
    a(f"v_and_b32 v{t+3}, 15, v0")
    a(f"s_lshl_b32 s11, s{S_NS}, 4")
    a(f"v_add_lshl_u32 v{t+3}, v{t+3}, s11, 1")
    vm.issue('sc', f"global_load_ushort v{t}, v{t+3}, s[{P_LRE}:{P_LRE+1}]")
    vm.issue('sc', f"global_load_ushort v{t+1}, v{t+3}, s[{P_LIM}:{P_LIM+1}]")
    vm.issue('sc', f"global_load_ushort v{t+2}, v{t+3}, s[{P_LDT}:{P_LDT+1}]")

def ssm_const_calc(a, t, lr, li, cr=None, ci=None):
    for k in range(3): a(f"v_lshlrev_b32 v{t+k}, 16, v{t+k}")
    exp_acc(a, t + 3, t + 2, t + 4, t + 5)
    round_bf16(a, t + 2, t + 3)
    a(f"v_mul_f32 v{t+3}, v{t+2}, v{t}")
    a(f"v_mul_f32 v{t+6}, v{t+2}, v{t+1}")
    exp_acc(a, t + 7, t + 3, t + 4, t + 5)
    a(f"v_mul_f32 v{t+6}, {INV2PI:#x}, v{t+6}")
    a(f"v_rndne_f32 v{t+4}, v{t+6}")
    a(f"v_sub_f32 v{t+6}, v{t+6}, v{t+4}")
    a(f"v_cos_f32 v{t+4}, v{t+6}")
    a(f"v_sin_f32 v{t+5}, v{t+6}")
    a(f"v_mul_f32 v{lr}, v{t+7}, v{t+4}")
    a(f"v_mul_f32 v{li}, v{t+7}, v{t+5}")
    if cr is not None:
        a(f"v_add_f32 v{t+3}, -1.0, v{lr}")
        a(f"v_mul_f32 v{t+4}, v{t}, v{t}")
        a(f"v_fma_f32 v{t+4}, v{t+1}, v{t+1}, v{t+4}")
        a(f"v_rcp_f32 v{t+4}, v{t+4}")
        a(f"v_mul_f32 v{cr}, v{t+3}, v{t}")
        a(f"v_fma_f32 v{cr}, v{li}, v{t+1}, v{cr}")
        a(f"v_mul_f32 v{ci}, v{li}, v{t}")
        a(f"v_fma_f32 v{ci}, -v{t+3}, v{t+1}, v{ci}")
        a(f"v_add_f32 v{t+4}, v{t+4}, v{t+4}")
        a(f"v_mul_f32 v{cr}, v{cr}, v{t+4}")
        a(f"v_mul_f32 v{ci}, v{ci}, v{t+4}")

def gen_entry(a, cfg, ts):
    a("s_cmp_ge_u32 s2, 256")
    a("s_cbranch_scc1 L_exit")
    if cfg.padto: a("s_memrealtime s[100:101]")
    ts(0)
    a("s_load_dwordx16 s[16:31], s[0:1], 0")
    a("s_load_dwordx16 s[32:47], s[0:1], 64")
    a("v_lshrrev_b32 v1, 6, v0")
    a("v_and_b32 v0, 63, v0")
    a(f"v_readfirstlane_b32 s{S_WAVE}, v1")
    a(f"s_and_b32 s{S_XCD}, s2, 7")
    a(f"s_lshr_b32 s{S_SLOT}, s2, 3")
    if cfg.cpf == 2:
        a(f"s_cmp_lg_u32 s{S_WAVE}, 0")
        a("s_cbranch_scc1 L_nocpf")
        a("s_getpc_b64 s[12:13]")
        a.label("L_pc0")
        a(f"s_sub_u32 s12, s12, L_pc0-{KNAME}")
        a("s_subb_u32 s13, s13, 0")
        a(f"s_lshl_b32 s11, s{S_SLOT}, 10")
        a("v_lshl_add_u32 v38, v0, 4, s11")
        a(f"v_min_u32 v38, L_exit-{KNAME}, v38")
        a("global_load_dword v39, v38, s[12:13]")
        a.label("L_nocpf")
    a(f"s_and_b32 s11, s{S_SLOT}, 3")
    a(f"s_lshr_b32 s{S_NT}, s{S_SLOT}, 2")
    a(f"s_and_b32 s12, s{S_XCD}, 1")
    a(f"s_lshl_b32 s12, s12, 2")
    a(f"s_add_u32 s{S_MT}, s12, s11")
    a(f"s_lshr_b32 s12, s{S_XCD}, 1")
    a(f"s_mul_i32 s12, s12, 7")
    a(f"s_add_u32 s{S_NS}, s12, s{S_NT}")
    if cfg.slab:
        a(f"s_mov_b32 s{S_MT}, s{S_XCD}")
        a(f"s_mov_b32 s{S_NS}, s{S_SLOT}")
    if cfg.loc:
        a(f"s_and_b32 s12, s{S_XCD}, 1")
        a("s_lshl_b32 s12, s12, 2")
        a(f"s_lshr_b32 s13, s{S_XCD}, 1")
        a("s_add_u32 s12, s12, s13")
        a("s_lshl_b32 s12, s12, 2")
    else:
        a(f"s_lshl_b32 s12, s{S_XCD}, 2")
    a(f"s_add_u32 s{S_M64}, s12, s11")
    a(f"s_and_b32 s{S_W4}, s{S_WAVE}, 3")
    ts.init()
    a(f"s_cmp_ge_u32 s{S_SLOT}, 28")
    a("s_cbranch_scc1 L_helper")
    a(f"s_cmp_lt_u32 s{S_WAVE}, 4")
    a("s_cbranch_scc1 L_consumer")

def gen_helper(a, cfg, ts):
    a.label("L_helper")
    vm = VM(a)
    a(f"s_sub_u32 s73, s{S_SLOT}, 28")
    a(f"s_lshl_b32 s11, s73, 3")
    a(f"s_add_u32 s72, s11, s{S_XCD}")
    if cfg.loc: a(f"s_mov_b32 s72, s{S_M64}")
    HC = 65536
    a(f"v_mov_b32 v200, {HC}")
    a("v_mov_b32 v201, 0")
    a("ds_write_b32 v200, v201")
    def h_open():
        a("s_waitcnt lgkmcnt(0)")
        a("s_barrier")
    def h_signal(tag):
        a("v_mov_b32 v202, 1")
        a("s_mov_b64 exec, 1")
        a("ds_add_rtn_u32 v203, v200, v202")
        a("s_waitcnt lgkmcnt(0)")
        a("v_readfirstlane_b32 s11, v203")
        a("s_cmp_lg_u32 s11, 7")
        a(f"s_cbranch_scc1 L_h_ns{tag}")
        a(f"global_atomic_add v201, v202, s[{P_DBG}:{P_DBG+1}] sc1")
        a.label(f"L_h_ns{tag}")
        a("s_mov_b64 exec, -1")
    a(f"s_cmp_ge_u32 s{S_WAVE}, 4")
    a("s_cbranch_scc1 L_h_pf")
    a(f"s_lshl_b32 s11, s72, 6")
    a(f"s_lshl_b32 s12, s{S_WAVE}, 4")
    a(f"s_add_u32 s11, s11, s12")
    a("v_lshrrev_b32 v2, 3, v0")
    a("v_add_u32 v2, s11, v2")
    a("v_mul_u32_u24 v3, 896, v2")
    a("v_and_b32 v4, 7, v0")
    a("v_lshl_add_u32 v3, v4, 4, v3")
    a("s_waitcnt lgkmcnt(0)")
    srd(a, SRD_X, P_X, 2048 * 896)
    srd(a, SRD_WS, P_WS, WS_SIZE)
    a(f"s_mov_b32 s11, {8*896}")
    for ps in range(2):
        for j in range(7):
            so = "0" if ps == 0 else "s11"
            vm.issue(('x', ps), f"buffer_load_dwordx4 v[{112+28*ps+4*j}:{115+28*ps+4*j}], v3, s[{SRD_X}:{SRD_X+3}], {so} offen offset:{128*j}")
    a(f"s_cmp_gt_u32 s{S_WAVE}, 1")
    a("s_cbranch_scc1 L_h_noreset")
    a(f"s_cmp_eq_u32 s{S_WAVE}, 0")
    a("s_cselect_b32 s11, -1, 0")
    a("s_mov_b32 s12, 1024")
    a("s_cmov_b32 s12, 896")
    a(f"s_mov_b32 s13, {WS_FLAG:#x}")
    a(f"s_cmov_b32 s13, {WS_AGG:#x}")
    a("s_mul_i32 s14, s12, s72")
    a("s_add_u32 s13, s13, s14")
    for k in range(4): a(f"v_mov_b32 v{8+k}, s11")
    a("v_lshlrev_b32 v12, 4, v0")
    a("v_cmp_gt_u32 vcc, s12, v12")
    a("s_and_saveexec_b64 s[14:15], vcc")
    a(f"buffer_store_dwordx4 v[8:11], v12, s[{SRD_WS}:{SRD_WS+3}], s13 offen sc1")
    a("s_mov_b64 exec, s[14:15]")
    a.label("L_h_noreset")
    h_open()
    a("v_lshlrev_b32 v2, 3, v2")
    a("s_mov_b32 s12, 0xffff0000")
    def fin(dst):
        a("v_add_f32 v8, v8, v9")
        a("v_add_f32 v10, v10, v11")
        a(f"v_add_f32 v{dst}, v8, v10")
        a(f"v_add_f32_dpp v{dst}, v{dst}, v{dst} quad_perm:[1,0,3,2] row_mask:0xf bank_mask:0xf")
        a(f"v_add_f32_dpp v{dst}, v{dst}, v{dst} quad_perm:[2,3,0,1] row_mask:0xf bank_mask:0xf")
        a(f"v_add_f32_dpp v{dst}, v{dst}, v{dst} row_half_mirror row_mask:0xf bank_mask:0xf")
        a(f"v_mul_f32 v{dst}, 0x3b124925, v{dst}")
    for ps in range(2):
        vm.wait(('x', ps))
        if cfg.hdelay == 2 + ps: a("s_barrier")
        src = 112 + 28 * ps
        for k in range(28):
            a(f"v_lshlrev_b32 v{48+2*k}, 16, v{src+k}")
            a(f"v_and_b32 v{49+2*k}, s12, v{src+k}")
        a("v_pk_add_f32 v[8:9], v[48:49], v[52:53]")
        a("v_pk_add_f32 v[10:11], v[50:51], v[54:55]")
        for k in range(4, 28): a(f"v_pk_add_f32 v[{8+2*(k%2)}:{9+2*(k%2)}], v[{8+2*(k%2)}:{9+2*(k%2)}], v[{48+2*k}:{49+2*k}]")
        fin(12)
        for k in range(28): a(f"v_pk_add_f32 v[{48+2*k}:{49+2*k}], v[{48+2*k}:{49+2*k}], v[12:13] op_sel_hi:[1,0] neg_lo:[0,1] neg_hi:[0,1]")
        for k in range(2): a(f"v_pk_mul_f32 v[{8+2*k}:{9+2*k}], v[{48+2*k}:{49+2*k}], v[{48+2*k}:{49+2*k}]")
        for k in range(2, 28): a(f"v_pk_fma_f32 v[{8+2*(k%2)}:{9+2*(k%2)}], v[{48+2*k}:{49+2*k}], v[{48+2*k}:{49+2*k}], v[{8+2*(k%2)}:{9+2*(k%2)}]")
        fin(13)
        o = 14 + 2 * ps
        round_bf16(a, o, 12)
        round_bf16(a, 13, 13)
        a("v_add_f32 v13, 0x3727c5ac, v13")
        round_bf16(a, 13, 13)
        a("v_sqrt_f32 v13, v13")
        round_bf16(a, 13, 13)
        a(f"v_rcp_f32 v{o+1}, v13")
        a("v_cmp_eq_u32 vcc, 0, v4")
        a("s_and_saveexec_b64 s[14:15], vcc")
        a(f"s_mov_b32 s11, {WS_STATS:#x}")
        vm.issue('st', f"buffer_store_dwordx2 v[{o}:{o+1}], v2, s[{SRD_WS}:{SRD_WS+3}], s11 offen offset:{64*ps} sc1")
        a("s_mov_b64 exec, s[14:15]")
    a("s_waitcnt vmcnt(0)")
    h_signal("a")
    ts(1)
    ts.dump(8, 9)
    a("s_endpgm")
    a.label("L_h_pf")
    a("v_lshlrev_b32 v2, 4, v0")
    a(f"s_lshl_b32 s11, s{S_W4}, 10")
    a("v_add_u32 v2, s11, v2")
    if cfg.cpf == 1:
        a("s_getpc_b64 s[60:61]")
        a.label("L_pc")
        a(f"s_sub_u32 s60, s60, L_pc-{KNAME}")
        a("s_subb_u32 s61, s61, 0")
        a("s_lshl_b32 s11, s73, 12")
        a("v_add_u32 v3, s11, v2")
        for k in range(2):
            a(f"v_min_u32 v4, L_exit-{KNAME}-12, v3")
            a(f"global_load_dwordx4 v[24:27], v4, s[60:61]")
            a(f"v_add_u32 v3, 16384, v3")
    a("s_waitcnt lgkmcnt(0)")
    if cfg.hdelay == 1: a("s_waitcnt vmcnt(0)")
    if cfg.hdelay >= 2: a("s_barrier")
    srd(a, SRD_WS, P_WS, WS_SIZE)
    a("s_lshl_b32 s60, s72, 2")
    a(f"s_add_u32 s60, s60, s{S_W4}")
    a("s_cmp_ge_u32 s60, 98")
    a("s_cbranch_scc1 L_h_nopack1")
    a("s_mul_i32 s61, s60, 37")
    a("s_lshr_b32 s61, s61, 8")
    a("s_mul_i32 s62, s61, 7")
    a("s_sub_u32 s62, s60, s62")
    a("s_cmp_lt_i32 s62, 0")
    a("s_cselect_b32 s11, 1, 0")
    a("s_sub_u32 s61, s61, s11")
    a("s_mul_i32 s62, s61, 7")
    a("s_sub_u32 s62, s60, s62")
    a("s_bitcmp1_b32 s61, 0")
    srd_sel(a, 68, P_CIM, P_CRE, 448 * 896)
    a("v_lshrrev_b32 v3, 3, v0")
    a("v_and_b32 v4, 7, v0")
    a("v_lshrrev_b32 v5, 1, v3")
    a("v_xor_b32 v4, v4, v5")
    a("s_lshr_b32 s11, s61, 1")
    a("s_lshl_b32 s11, s11, 6")
    a("v_add_u32 v3, s11, v3")
    a("v_mul_u32_u24 v3, 896, v3")
    a("v_lshl_add_u32 v3, v4, 4, v3")
    a("v_xor_b32 v4, 64, v3")
    a(f"s_lshl_b32 s63, s{S_W4}, 13")
    a("s_lshl_b32 s12, s62, 7")
    for n in range(8):
        a(f"s_add_u32 m0, s63, {n*1024}")
        a(f"s_add_u32 s11, s12, {8*n*896}")
        a(f"buffer_load_dwordx4 v{3 + (n & 1)}, s[68:71], s11 offen lds")
    a.label("L_h_nopack1")
    h_open()
    def h_sweep():
        if cfg.hpf:
            for (ptr, nbytes, srdn) in ((P_WD, 1792 * 896, 56),):
                srd(a, srdn, ptr, nbytes)
            def sweep(name, srds, qbytes, first, count):
                n8 = -(-qbytes // (8 * 4096))
                n = 8 * n8
                a(f"s_mul_i32 s12, s73, {qbytes}")
                a(f"s_add_u32 s13, s{S_XCD}, {first}")
                a("s_and_b32 s13, s13, 7")
                a(f"s_mul_i32 s13, s13, {n8}")
                a("s_mov_b32 s14, 0")
                a.label(name)
                a("s_lshl_b32 s11, s13, 12")
                a("s_add_u32 s11, s11, s12")
                for k, sr in enumerate(srds):
                    a(f"buffer_load_dwordx4 v[{16+4*k}:{19+4*k}], v2, s[{sr}:{sr+3}], s11 offen")
                a("s_add_u32 s13, s13, 1")
                a(f"s_cmp_eq_u32 s13, {n}")
                a("s_cselect_b32 s13, 0, s13")
                a("s_add_u32 s14, s14, 1")
                a(f"s_cmp_lt_u32 s14, {n8 * count}")
                a(f"s_cbranch_scc1 {name}")
            sweep("L_h_p2", [56], 1792 * 896 // 4, 0, 1)
            ts(2)
    def h_pack():
        a("s_cmp_ge_u32 s60, 98")
        a("s_cbranch_scc1 L_h_nopack2")
        a("v_and_b32 v5, 31, v0")
        a("v_lshrrev_b32 v6, 5, v0")
        a("v_bfe_u32 v7, v0, 1, 3")
        a("v_xor_b32 v7, v7, v6")
        a("v_lshlrev_b32 v7, 4, v7")
        a("v_lshl_add_u32 v5, v5, 7, v7")
        a("v_add_u32 v5, s63, v5")
        a("v_lshlrev_b32 v6, 4, v0")
        a("s_mul_i32 s12, s61, 28")
        a("s_lshl_b32 s11, s62, 2")
        a("s_add_u32 s12, s12, s11")
        a("s_lshl_b32 s12, s12, 11")
        a(f"s_add_u32 s12, s12, {WS_CP:#x}")
        a(f"s_waitcnt vmcnt({13 if (cfg.hpf and not cfg.hord) else 0})")
        for ks in range(4):
            a(f"v_xor_b32 v7, {32*ks}, v5")
            for ct in range(2):
                d = 32 + 8 * ks + 4 * ct
                a(f"ds_read_b128 v[{d}:{d+3}], v7 offset:{4096*ct}")
        for ks in range(4):
            a(f"s_waitcnt lgkmcnt({6 - 2*ks})")
            a(f"s_add_u32 s11, s12, {2048*ks}")
            for ct in range(2):
                d = 32 + 8 * ks + 4 * ct
                a(f"buffer_store_dwordx4 v[{d}:{d+3}], v6, s[{SRD_WS}:{SRD_WS+3}], s11 offen offset:{1024*ct} sc1")
        a("s_waitcnt vmcnt(0)")
        a.label("L_h_nopack2")
        h_signal("b")
        ts(3)
    if cfg.hord: h_pack(); h_sweep()
    else: h_sweep(); h_pack()
    ts.dump(8, 9)
    a("s_endpgm")

def spin_check(a, name, load_text_list, cond_fn, sleep=1):
    lo, done = a.newlabel(name + "_spin"), a.newlabel(name + "_ok")
    a(f"s_mov_b32 s73, 0")
    a.label(lo)
    cond_fn()
    a(f"s_cbranch_scc1 {done}")
    a("s_add_u32 s73, s73, 1")
    a(f"s_cmp_ge_u32 s73, {SPIN_MAX}")
    a(f"s_cbranch_scc1 {done}")
    a(f"s_sleep {sleep}")
    for t in load_text_list: a(t)
    a("s_waitcnt vmcnt(0)")
    a(f"s_branch {lo}")
    a.label(done)
    a("s_nop 4")

def sspin(a, name, loads, cond_fn, sleep=1):
    lo, done = a.newlabel(name + "_spin"), a.newlabel(name + "_ok")
    a("s_mov_b32 s73, 0")
    a.label(lo)
    for t in loads: a(t)
    a("s_waitcnt lgkmcnt(0)")
    cond_fn()
    a(f"s_cbranch_scc1 {done}")
    a("s_add_u32 s73, s73, 1")
    a(f"s_cmp_lt_u32 s73, {SPIN_MAX}")
    if sleep: a(f"s_sleep {sleep}")
    a(f"s_cbranch_scc1 {lo}")
    a.label(done)

def flag_index(a, d, t, grp):
    a(f"s_mul_i32 s{t}, s{S_NS}, 37")
    a(f"s_lshr_b32 s{t}, s{t}, {8 if grp == 7 else 9}")
    a(f"s_mul_i32 s{t}, s{t}, {32 - grp}")
    a(f"s_add_u32 s{d}, s{t}, s{S_NS}")
    a(f"s_lshl_b32 s{d}, s{d}, 2")

def interleave(a, prim, fill, per):
    fill = list(fill)
    for p in prim:
        p()
        for _ in range(per):
            if fill: a(fill.pop(0))
    for f in fill: a(f)

def p2_rot(a, cfg, d_ffn, d_blk, d_flip):
    if not cfg.rot:
        for d in (d_ffn, d_blk, d_flip): a(f"s_mov_b32 s{d}, 0")
        return
    tab = {2: [0] * 7, 1: list(range(7)), 3: [0, 3, 0, 3, 0, 3, 0], 4: [0, 2, 5, 0, 2, 5, 0], 5: [0, 4, 2, 5, 0, 4, 2], 6: [0, 1, 0, 1, 0, 1, 0], 7: [0, 2, 0, 2, 0, 2, 0]}[cfg.rot]
    word = sum(v << (4 * k) for k, v in enumerate(tab))
    a(f"s_lshl_b32 s11, s{S_NT}, 2")
    a(f"s_lshr_b32 s13, {word:#x}, s11")
    a("s_and_b32 s13, s13, 15")
    a(f"s_and_b32 s11, s{S_SLOT}, 3")
    a("s_lshl_b32 s11, s11, 1")
    a("s_add_u32 s11, s11, s13")
    a("s_cmp_ge_u32 s11, 7")
    a("s_cselect_b32 s13, 7, 0")
    a(f"s_sub_u32 s{d_ffn}, s11, s13")
    for d in (d_blk, d_flip): a(f"s_mov_b32 s{d}, 0")

def slot(reg, n): return R[reg] + 2048 * n
SA = [slot(1, n) for n in range(6)]; SB = [slot(2, n) for n in range(6)]; SC = [slot(0, n) for n in range(6)]
WSLOT = {}
for n in range(6): WSLOT[n] = SA[n]; WSLOT[6 + n] = SB[n]
for n in range(4): WSLOT[12 + n] = SC[n]; WSLOT[16 + n] = SA[n]; WSLOT[20 + n] = SB[n]
WSLOT.update({24: SA[4], 25: SA[5], 26: SB[4], 27: SB[5]})
HTS = SC[4]
PH1, PH2, GA, FXA, SD = SC[0], SC[4], SB[0], SA[0], SC[0]

class Rec:
    def __init__(self): self.L = []
    def __call__(self, t): self.L.append(t)

def ssm_park(kc, K, KP, sQ):
    LR, LI, CR, CI, L16R, L16I, PWR, PWI, L64R, L64I, LWR, LWI, W0R = [KP + k for k in range(13)]
    vTW, vTR, vCB = KP + 16, KP + 17, KP + 18
    ssm_const_calc(kc, K, LR, LI, CR, CI)
    csq(kc, L16R, L16I, LR, LI, K)
    for _ in range(3): csq(kc, L16R, L16I, L16R, L16I, K)
    def powsel(dr, di, br, bi, bit, src):
        cmul(kc, K + 1, K + 2, dr, di, br, bi)
        kc(f"v_and_b32 v{K}, {bit}, v{src}")
        kc(f"v_cmp_ne_u32 vcc, 0, v{K}")
        kc(f"v_cndmask_b32 v{dr}, v{dr}, v{K+1}, vcc")
        kc(f"v_cndmask_b32 v{di}, v{di}, v{K+2}, vcc")
    kc(f"v_mov_b32 v{PWR}, v{CR}"); kc(f"v_mov_b32 v{PWI}, v{CI}")
    powsel(PWR, PWI, L16R, L16I, 32, 0)
    csq(kc, K + 14, K + 15, L16R, L16I, K)
    powsel(PWR, PWI, K + 14, K + 15, 16, 0)
    csq(kc, L64R, L64I, K + 14, K + 15, K)
    kc(f"v_mov_b32 v{K+10}, s{S_W4}")
    kc(f"v_mov_b32 v{LWR}, 1.0"); kc(f"v_mov_b32 v{LWI}, 0")
    powsel(LWR, LWI, L64R, L64I, 1, K + 10)
    csq(kc, K + 14, K + 15, L64R, L64I, K)
    powsel(LWR, LWI, K + 14, K + 15, 2, K + 10)
    csq(kc, K + 14, K + 15, K + 14, K + 15, K)
    kc(f"v_lshrrev_b32 v{K+10}, 4, v0")
    kc(f"v_sub_u32 v{K+10}, s{S_MT}, v{K+10}")
    kc(f"v_add_u32 v{K+11}, -5, v{K+10}")
    kc(f"v_add_u32 v{K+10}, -1, v{K+10}")
    kc(f"v_mov_b32 v{W0R}, 1.0"); kc(f"v_mov_b32 v{W0R+1}, 0")
    kc(f"v_mov_b32 v{W0R+2}, 1.0"); kc(f"v_mov_b32 v{W0R+3}, 0")
    for b in range(3):
        powsel(W0R, W0R + 1, K + 14, K + 15, 1 << b, K + 10)
        if b < 2: powsel(W0R + 2, W0R + 3, K + 14, K + 15, 1 << b, K + 11)
        if b < 2: csq(kc, K + 14, K + 15, K + 14, K + 15, K)
    kc(f"s_add_u32 s36, s{sQ}, {HTS}")
    kc(f"v_bfe_u32 v{K}, v0, 4, 1")
    kc(f"v_lshrrev_b32 v{K+1}, 5, v0")
    kc(f"v_lshl_add_u32 v{K+2}, v{K}, 1, v{K+1}")
    kc(f"v_and_b32 v{K+3}, 15, v0")
    kc(f"v_and_b32 v{vTW}, 6, v{K+3}")
    kc(f"v_lshlrev_b32 v{vTW}, 4, v{vTW}")
    kc(f"v_lshlrev_b32 v{K+4}, 5, v{K+2}")
    kc(f"v_xor_b32 v{vTW}, v{vTW}, v{K+4}")
    kc(f"v_lshl_add_u32 v{vTW}, v{K+3}, 7, v{vTW}")
    kc(f"v_add_u32 v{vTW}, s36, v{vTW}")
    kc(f"v_lshlrev_b32 v{vCB}, 2, v{K+3}")
    kc(f"v_add_u32 v{vCB}, {C_L + 512}, v{vCB}")
    kc(f"v_bfe_u32 v{K+4}, v0, 2, 2")
    kc(f"v_lshl_add_u32 v{K+5}, v{K+1}, 3, v{K+4}")
    kc(f"v_lshlrev_b32 v{vTR}, 7, v{K+5}")
    kc(f"v_lshrrev_b32 v{K+4}, 1, v{K+4}")
    kc(f"v_xor_b32 v{K+4}, v{K+4}, v0")
    kc(f"v_and_b32 v{K+4}, 1, v{K+4}")
    kc(f"v_lshl_add_u32 v{vTR}, v{K+4}, 5, v{vTR}")
    kc(f"v_lshl_add_u32 v{vTR}, v{K}, 4, v{vTR}")
    kc(f"v_bfe_u32 v{K+4}, v0, 1, 1")
    kc(f"v_lshl_add_u32 v{vTR}, v{K+4}, 3, v{vTR}")
    kc(f"v_add_u32 v{vTR}, s36, v{vTR}")
    kc(f"s_lshl_b32 s36, s{S_W4}, 9")
    kc(f"s_add_u32 s36, s36, {STATS_L}")
    kc(f"v_lshl_add_u32 v{KP+19}, v{K+2}, 7, s36")
    vStS = KP + 19
    vAg, vPr, vF = KP + 20, KP + 21, KP + 22
    kc(f"v_lshlrev_b32 v{vAg}, 3, v{K+3}")
    kc(f"v_lshrrev_b32 v{vPr}, 4, v0")
    kc(f"v_mul_u32_u24 v{vPr}, 3584, v{vPr}")
    kc(f"s_lshl_b32 s36, s{S_NS}, 7")
    kc(f"v_add3_u32 v{vPr}, v{vPr}, v{vAg}, s36")
    kc(f"v_add_u32 v{vAg}, {AGG_L}, v{vAg}")
    kc(f"s_lshl_b32 s36, s{S_MT}, 2")
    kc(f"s_add_u32 s36, s36, s{S_W4}")
    kc("s_lshl_b32 s36, s36, 10")
    flag_index(kc, 37, 38, 14)
    kc("s_add_u32 s36, s36, s37")
    kc(f"s_add_u32 s36, s36, {WS_FLAG + 512:#x}")
    kc(f"v_mov_b32 v{vF}, s36")

def gen_loader(a, cfg, ts):
    a.label("L_loader")
    a("s_setprio 3")
    vm = VM(a)
    vXe, vXo, vW, vB = 1, 2, 3, 4
    vFv, vP, vO, vPQ = 5, 6, 7, 8
    vWd, vCe, vCo, vCh = 9, 10, 11, 12
    vRf, vRh = 13, 14
    vA, vC = 24, 25
    vT = 15
    ACC, CA, RD = 27, 28, 44
    STG = 64
    CF = 144
    SACC = 80
    XRAW = CF + 64
    KP = XRAW + 8
    sGrp = [28, 29, 30, 31, 36, 37, 21]
    SP = ['', ' sc1'][cfg.spol]
    sMX, sMW, sMB, sMP = 72, 74, 75, 70
    sPerm, sSX, sSW = 68, 69, 15
    sRF = 14
    AP = ['', ' sc1', ' sc1 nt', ' sc0 sc1', ' sc0', ' nt'][cfg.apol]
    OP = ['', ' sc1', ' nt', ' sc1 nt'][cfg.opol]
    polx = " nt" if cfg.polx else ""
    polw = " nt" if cfg.polw else ""
    a(f"v_lshrrev_b32 v{vA}, 3, v0")
    a(f"v_and_b32 v{vC}, 7, v0")
    a(f"v_lshrrev_b32 v{vT+2}, 1, v{vA}")
    a(f"s_lshl_b32 s11, s{S_W4}, 4")
    a(f"v_add_u32 v{vT}, s11, v{vA}")
    a(f"v_mul_u32_u24 v{vW}, 3584, v{vT}")
    a(f"v_and_b32 v{vT+4}, 1, v{vT+2}")
    a(f"v_lshlrev_b32 v{vT+4}, 2, v{vT+4}")
    a(f"v_xor_b32 v{vT+4}, v{vC}, v{vT+4}")
    a(f"v_lshl_add_u32 v{vW}, v{vT+4}, 4, v{vW}")
    a(f"s_lshl_b32 s11, s{S_NS}, 7")
    a(f"v_add_u32 v{vW}, s11, v{vW}")
    a(f"s_lshl_b32 s11, s{S_MT}, 8")
    a(f"s_lshl_b32 s12, s{S_W4}, 6")
    a("s_add_u32 s11, s11, s12")
    a(f"v_lshrrev_b32 v{vT}, 2, v{vA}")
    a(f"v_and_b32 v{vT+1}, 3, v{vA}")
    a(f"v_lshl_add_u32 v{vT}, v{vT}, 4, v{vT+1}")
    a(f"v_add_u32 v{vT}, s11, v{vT}")
    a(f"v_mul_u32_u24 v{vXe}, 896, v{vT}")
    a(f"v_xor_b32 v{vT+3}, v{vC}, v{vT+2}")
    a(f"v_lshl_add_u32 v{vXe}, v{vT+3}, 4, v{vXe}")
    a(f"v_xor_b32 v{vXo}, 64, v{vXe}")
    a(f"s_and_b32 s12, s{S_W4}, 1")
    a(f"s_lshl_b32 s11, s{S_NS}, 4")
    a(f"s_lshl_b32 s13, s12, 3")
    a("s_add_u32 s11, s11, s13")
    a(f"v_add_u32 v{vT}, s11, v{vA}")
    a(f"v_mul_u32_u24 v{vB}, 896, v{vT}")
    a(f"v_lshl_add_u32 v{vB}, v{vT+3}, 4, v{vB}")
    a("s_lshl_b32 s13, s12, 6")
    a(f"v_xor_b32 v{vB}, s13, v{vB}")
    a(f"s_lshl_b32 s{sMX}, s{S_W4}, 13")
    a(f"s_lshl_b32 s{sMW}, s{S_W4}, 11")
    a(f"s_lshl_b32 s{sMB}, s{S_W4}, 10")
    a(f"s_mul_i32 s{sMP}, s{S_W4}, {Q}")
    perms = cfg.perms
    words = [sum(p[k] << (4 * k) for k in range(7)) for p in perms]
    ng = len(words)
    a(f"s_mov_b32 s{sPerm}, {words[0]:#x}")
    if ng > 1:
        if cfg.slab:
            a(f"s_add_u32 s11, s{S_SLOT}, s{S_XCD}")
        else:
            a(f"s_and_b32 s11, s{S_SLOT}, 3")
            a(f"s_add_u32 s11, s11, s{S_NT}")
        if ng == 3:
            a("s_mul_i32 s13, s11, 43")
            a("s_lshr_b32 s13, s13, 7")
            a("s_mul_i32 s13, s13, 3")
            a("s_sub_u32 s11, s11, s13")
        else:
            a(f"s_and_b32 s11, s11, {ng-1}")
        for g in range(1, ng):
            a(f"s_cmp_eq_u32 s11, {g}")
            a(f"s_cmov_b32 s{sPerm}, {words[g]:#x}")
    ts.x(1, 1)
    a("s_waitcnt lgkmcnt(0)")
    ts.x(1, 2)
    if cfg.tlb:
        a(f"v_mov_b32 v40, s{P_X}")
        a(f"v_mov_b32 v41, s{P_X+1}")
        for ln, p in enumerate([P_WG, P_WU, P_BRE, P_BIM, P_WD, P_CRE, P_CIM, P_WS][:cfg.tlb], 1):
            a(f"v_writelane_b32 v40, s{p}, {ln}")
            a(f"v_writelane_b32 v41, s{p+1}, {ln}")
        a(f"s_mov_b64 exec, {(1 << (cfg.tlb + 1)) - 1:#x}")
        a("global_load_dword v62, v[40:41], off")
        a("s_mov_b64 exec, -1")
    srd(a, SRD_A, P_WG, 448 * 3584)
    srd(a, SRD_X, P_X, 2048 * 896)
    srd(a, SRD_B, P_WU, 448 * 3584)
    a(f"s_cmp_ge_u32 s{S_W4}, 2")
    srd_sel(a, SRD_C, P_BIM, P_BRE, 448 * 896)

    thr = [None]
    def dma(vm, tag, voff, srdn, sbase, soff, m0base, m0off, pol=""):
        a(f"s_add_u32 m0, s{m0base}, {m0off}")
        a(f"s_add_u32 s11, s{sbase}, {soff}")
        if thr[0] is not None and len(vm.q) > thr[0]:
            a(f"s_waitcnt vmcnt({thr[0]})")
            vm.q = vm.q[-thr[0]:]
        vm.issue(tag, f"buffer_load_dwordx4 v{voff}, s[{srdn}:{srdn+3}], s11 offen{pol} lds")
    def issue_ops(s):
        r = R[s % 3]
        ops = []
        def pre():
            a(f"s_bfe_u32 s{sSX}, s{sPerm}, {(4 << 16) | (4 * s):#x}")
            a(f"s_mul_i32 s{sSW}, s{sSX}, {64*3584}")
            a(f"s_lshl_b32 s{sSX}, s{sSX}, 7")
        def mk(*args): return lambda: dma(vm, ('st', s), *args)
        L = []
        for i in range(2): L.append(mk(vW, SRD_A, sSW, i * 8 * 3584, sMW, r + OFF_WG + i * 1024, polw))
        for j in range(4): L.append(mk(vXo if j & 1 else vXe, SRD_X, sSX, (32 * (j >> 2) + 4 * (j & 3)) * 896, sMX, r + j * 1024, polx))
        for i in range(2): L.append(mk(vW, SRD_B, sSW, i * 8 * 3584, sMW, r + OFF_WU + i * 1024, polw))
        for j in range(4, 8): L.append(mk(vXo if j & 1 else vXe, SRD_X, sSX, (32 * (j >> 2) + 4 * (j & 3)) * 896, sMX, r + j * 1024, polx))
        L.append(mk(vB, SRD_C, sSX, 0, sMB, r + OFF_BB, polw))
        first = L[0]
        L[0] = lambda: (pre(), first())
        return L
    SRD_WD, SRD_CC, sBlk, sFlip, P_DSK2 = 32, 24, 16, 17, 38
    def w_ops(ps):
        L = []
        for p in ps:
            for n in range(2):
                def op(p=p, n=n):
                    if 12 <= p < 22:
                        d = STG + (p - 12) * 8 + 4 * n
                        a(f"s_add_u32 s11, s{sGrp[p//4]}, {((p % 4) * 16 + 8 * n) * 896}")
                        vm.issue(('w', p), f"buffer_load_dwordx4 v[{d}:{d+3}], v{vWd}, s[{SRD_WD}:{SRD_WD+3}], s11 offen")
                    else:
                        dma(vm, ('w', p), vWd, SRD_WD, sGrp[p//4], ((p % 4) * 16 + 8 * n) * 896, sMP, WSLOT[p] + n * 1024)
                L.append(op)
        return L
    sCF, sCH = 16, 17
    def cfrag(p, lc): return CF + 8 * p + 4 * lc
    def c_ops(b):
        L = []
        for p in (range(4 * b, 4 * b + 4) if b < 3 else (12, 13)):
            for lc in range(2):
                def op(p=p, lc=lc):
                    d = cfrag(p, lc)
                    sb, so = (sCF, 2048 * p) if p < 12 else (sCH, 2048 * (p - 12))
                    a(f"s_add_u32 s11, s{sb}, {so}")
                    vm.issue(('c', b), f"buffer_load_dwordx4 v[{d}:{d+3}], v{(vCe, vCo)[lc]}, s[{SRD_WS}:{SRD_WS+3}], s11 offen sc1")
                L.append(op)
        return L
    def w_write(ps):
        vm.wait(('w', ps[-1]))
        base = WSLOT[ps[0]]
        a(f"v_add_u32 v{vT+4}, {base}, v{vPQ}")
        for p in ps:
            for n in range(2):
                d = STG + (p - 12) * 8 + 4 * n
                a(f"ds_write_b128 v{vT+4}, v[{d}:{d+3}] offset:{WSLOT[p] - base + 1024*n}")
    def colsum_reads(s):
        r = R[s % 3]
        a(f"s_add_u32 s11, s{sMW}, {r + OFF_WG}")
        a(f"v_add_u32 v{vT}, s11, v{vP}")
        a(f"s_add_u32 s11, s{sMB}, {r + OFF_BB}")
        a(f"v_add_u32 v{vT+1}, s11, v{vP}")
        a(f"ds_read_b128 v[{RD}:{RD+3}], v{vT}")
        a(f"ds_read_b128 v[{RD+4}:{RD+7}], v{vT} offset:1024")
        a(f"ds_read_b128 v[{RD+8}:{RD+11}], v{vT} offset:8192")
        a(f"ds_read_b128 v[{RD+12}:{RD+15}], v{vT} offset:9216")
        a(f"ds_read_b128 v[{RD+16}:{RD+19}], v{vT+1}")
    def colsum_ops():
        L = ["s_waitcnt lgkmcnt(0)"]
        for n in range(4):
            for d in range(4):
                w = RD + 4 * n + d
                ac = CA + (n >> 1) * 8 + 2 * d
                L.append(f"v_lshlrev_b32 v{vT+2}, 16, v{w}")
                L.append(f"v_and_b32 v{vT+3}, s71, v{w}")
                L.append(f"v_add_f32 v{ac}, v{ac}, v{vT+2}")
                L.append(f"v_add_f32 v{ac+1}, v{ac+1}, v{vT+3}")
        for d in range(4):
            w = RD + 16 + d
            L.append(f"v_lshlrev_b32 v{vT+2}, 16, v{w}")
            L.append(f"v_and_b32 v{vT+3}, s71, v{w}")
            L.append(f"v_add_f32 v{vT+2}, v{vT+2}, v{vT+3}")
            L.append(f"v_add_f32 v{ACC}, v{ACC}, v{vT+2}")
        return L

    stage_ops = {}
    cdone = set()
    def tok_ops(toks):
        L = []
        for t in toks:
            if t[0] == 's':
                st = int(t[1])
                if st not in stage_ops: stage_ops[st] = issue_ops(st)
                lo, hi = (0, 13) if ':' not in t else map(int, t.split(':')[1].split('-'))
                L += stage_ops[st][lo:hi]
            elif t[0] == 'w': L += w_ops([int(t[1:])])
            elif t[0] == 'c':
                lo, hi = (0, 8) if ':' not in t else map(int, t.split(':')[1].split('-'))
                L += c_ops(int(t[1]))[lo:hi]
                cdone.add(int(t[1]))
            else: L.append(lambda t=t: special(t))
        return L
    def run_tokens(toks):
        for o in tok_ops(toks): o()
    def special(t):
        if True:
            if t == 'put':
                vm.wait('stats')
                a(f"s_lshl_b32 s11, s{S_W4}, 9")
                a(f"s_add_u32 s11, s11, {STATS_L}")
                a(f"v_lshl_add_u32 v{vT+4}, v0, 3, s11")
                a(f"ds_write_b64 v{vT+4}, v[20:21]")
                a(f"v_lshlrev_b32 v{vT+4}, 3, v0")
                a(f"v_add_u32 v{vT+4}, {ST2_L}, v{vT+4}")
                a(f"ds_write_b64 v{vT+4}, v[22:23]")
            elif t == 'e':
                a(f"s_add_u32 s12, s41, {16*896}")
                vm.issue('e', f"buffer_load_dwordx4 v[{XRAW}:{XRAW+3}], v20, s[{SRD_X}:{SRD_X+3}], s41 offen")
                vm.issue('e', f"buffer_load_dwordx4 v[{XRAW+4}:{XRAW+7}], v20, s[{SRD_X}:{SRD_X+3}], s12 offen")
                vm.issue('e', f"global_load_ushort v{KP+23}, v21, s[{P_DSK2}:{P_DSK2+1}]")
            elif t == 'm':
                a(f"v_lshlrev_b32 v{vP}, 4, v0")
                a("s_lshl_b32 s12, s2, 2")
                a(f"s_add_u32 s12, s12, s{S_W4}")
                a("s_lshl_b32 s12, s12, 10")
                a(f"s_add_u32 s12, s12, {192*3584}")
                vm.issue('m', f"buffer_load_dwordx4 v[140:143], v{vP}, s[{SRD_A}:{SRD_A+3}], s12 offen")
                vm.issue('m', f"buffer_load_dwordx4 v[140:143], v{vP}, s[{SRD_B}:{SRD_B+3}], s12 offen")
                a(f"s_and_b32 s12, s{S_W4}, 1")
                a("s_lshl_b32 s11, s2, 1")
                a("s_add_u32 s12, s12, s11")
                a("s_lshl_b32 s12, s12, 10")
                vm.issue('m', f"buffer_load_dwordx4 v[140:143], v{vP}, s[{SRD_C}:{SRD_C+3}], s12 offen")
            elif t == 'k':
                a("s_waitcnt lgkmcnt(0)")
            elif t == 'init':
                a(f"v_mov_b32 v26, 0")
                vm.issue('init', f"global_load_dword v5, v26, s[{P_DBG}:{P_DBG+1}] sc1")
            elif t == 'fetch':
                vm.wait('init')
                def cond():
                    a(f"v_readfirstlane_b32 s11, v5")
                    a(f"s_cmp_ge_u32 s11, {INIT_N}")
                spin_check(a, "L_init", [f"global_load_dword v5, v26, s[{P_DBG}:{P_DBG+1}] sc1"], cond, 8)
                a(f"s_lshl_b32 s11, s{S_MT}, 8")
                a(f"s_lshl_b32 s12, s{S_W4}, 6")
                a("s_add_u32 s11, s11, s12")
                a(f"v_add_lshl_u32 v5, v0, s11, 3")
                a(f"s_lshl_b32 s12, s{S_M64}, 6")
                a(f"v_add_lshl_u32 v26, v0, s12, 3")
                a(f"s_mov_b32 s11, {WS_STATS:#x}")
                vm.issue('stats', f"buffer_load_dwordx2 v[20:21], v5, s[{SRD_WS}:{SRD_WS+3}], s11 offen sc1")
                vm.issue('stats', f"buffer_load_dwordx2 v[22:23], v26, s[{SRD_WS}:{SRD_WS+3}], s11 offen sc1")
            else: raise ValueError(t)
    win = cfg.win
    run_tokens(["s0"])
    ts(1)
    ts.x(1, 6)
    run_tokens(win.get(-1, []))
    a("s_setprio 0")
    a(f"s_and_b32 s12, s{S_W4}, 1")
    a(f"v_lshlrev_b32 v{vP}, 4, v0")
    a(f"v_add_u32 v{vPQ}, s{sMP}, v{vP}")
    a(f"s_mul_i32 s14, s{S_W4}, 448")
    a(f"v_add_u32 v{vT}, s14, v{vA}")
    a(f"v_mul_u32_u24 v{vWd}, 896, v{vT}")
    a(f"v_lshl_add_u32 v{vWd}, v{vT+4}, 4, v{vWd}")
    a(f"s_lshl_b32 s14, s{S_NT}, 7")
    a(f"v_add_u32 v{vWd}, s14, v{vWd}")
    a(f"v_and_b32 v{vT+1}, 3, v0")
    a("s_mov_b32 s71, 0xffff0000")
    for k in range(17): a(f"v_mov_b32 v{ACC+k}, 0")
    srd(a, SRD_WS, P_WS, WS_SIZE)
    a(f"s_mov_b64 s[{P_DSK2}:{P_DSK2+1}], s[{P_DSK}:{P_DSK+1}]")
    srd(a, SRD_WD, P_WD, 1792 * 896)
    p2_rot(a, cfg, sRF, sBlk, sFlip)
    a(f"s_lshl_b32 s11, s{S_M64}, 1")
    a("s_add_u32 s40, s11, s12")
    a("s_lshl_b32 s12, s40, 5")
    a(f"v_lshrrev_b32 v{vT}, 2, v0")
    a(f"v_add_u32 v{vT}, s12, v{vT}")
    a(f"v_mul_u32_u24 v{vT}, 896, v{vT}")
    a(f"v_lshl_add_u32 v20, v{vT+1}, 4, v{vT}")
    a(f"v_lshrrev_b32 v{vT+2}, 5, v0")
    a(f"v_lshl_add_u32 v{vT}, v{vT+2}, 4, s12")
    a(f"s_lshr_b32 s13, s{S_W4}, 1")
    a("s_lshl_b32 s12, s13, 5")
    a(f"s_lshl_b32 s11, s{S_NT}, 6")
    a("s_add_u32 s11, s11, s12")
    a("s_lshl_b32 s41, s11, 1")
    a(f"v_and_b32 v{vT+3}, 31, v0")
    a(f"v_add_u32 v{vT+1}, s11, v{vT+3}")
    a(f"v_mul_u32_u24 v{vT}, 448, v{vT}")
    a(f"v_add_lshl_u32 v{vO}, v{vT}, v{vT+1}, 2")
    a(f"v_lshlrev_b32 v21, 1, v{vT+1}")
    a("s_lshl_b32 s12, s13, 10")
    a(f"v_add_u32 v{vCe}, s12, v{vP}")
    a(f"v_xor_b32 v{vCo}, 1024, v{vCe}")
    a(f"s_lshl_b32 s11, s{S_NT}, 1")
    a("s_add_u32 s11, s11, s13")
    a(f"s_mul_i32 s11, s11, {28*2048}")
    a(f"s_add_u32 s11, s11, {WS_CP:#x}")
    a(f"s_and_b32 s12, s{S_W4}, 1")
    a(f"s_lshl_b32 s{sCF}, s12, 15")
    a(f"s_add_u32 s{sCF}, s{sCF}, s11")
    a(f"s_lshl_b32 s{sCH}, s12, 12")
    a(f"s_add_u32 s{sCH}, s{sCH}, s11")
    a(f"s_add_u32 s{sCH}, s{sCH}, {12*2048}")
    a(f"v_bfe_u32 v{vT}, v0, 4, 1")
    a(f"v_lshlrev_b32 v{vT+1}, 2, v{vT}")
    a(f"v_xor_b32 v{vC}, v{vC}, v{vT+1}")
    a(f"v_lshlrev_b32 v{vC}, 5, v{vC}")
    a(f"v_lshl_add_u32 v{vC}, v{vT}, 9, v{vC}")
    a(f"v_lshl_add_u32 v{vC}, v{vT+2}, 8, v{vC}")
    a(f"s_add_u32 s11, s{sMB}, {CP_L}")
    a(f"v_add_u32 v{vC}, s11, v{vC}")
    a(f"s_lshl_b32 s11, s{S_W4}, 5")
    a(f"s_add_u32 s11, s11, {C_L + 512}")
    a(f"v_lshl_add_u32 v{vA}, v{vA}, 2, s11")
    ts.x(1, 8)
    LR, LI, CR, CI, L16R, L16I, PWR, PWI, L64R, L64I, LWR, LWI, W0R = [KP + k for k in range(13)]
    vTW, vTR, vCB, vStS, vAg, vPr, vF = [KP + k for k in range(16, 23)]
    a(f"s_lshl_b32 s21, s{S_NS}, 7")
    a(f"s_mul_i32 s22, s{S_MT}, 3584")
    a("s_add_u32 s22, s22, s21")
    a(f"s_add_u32 s22, s22, {WS_AGG - AGG_L:#x}")
    a(f"s_mov_b32 s23, {WS_AGG:#x}")
    a(f"s_mov_b32 s20, {WS_AGG + 4*3584:#x}")
    a(f"s_lshl_b32 s18, s{S_M64}, 10")
    a(f"s_and_b32 s11, s{S_W4}, 1")
    a("s_lshl_b32 s11, s11, 7")
    a("s_add_u32 s18, s18, s11")
    a(f"s_add_u32 s18, s18, {WS_FLAG + 512:#x}")
    a(f"s_lshl_b32 s11, s{S_MT}, 2")
    a(f"s_add_u32 s11, s11, s{S_W4}")
    a(f"s_mul_i32 s19, s11, {2*RT_BYTES}")
    a(f"s_lshl_b32 s11, s{S_NS}, 10")
    a("s_add_u32 s19, s19, s11")
    a(f"s_add_u32 s19, s19, {56*1024}")
    for g in range(7):
        a(f"s_add_u32 s12, s{sRF}, {g}")
        a("s_cmp_ge_u32 s12, 7")
        a("s_cselect_b32 s13, 7, 0")
        a("s_sub_u32 s12, s12, s13")
        a(f"s_mul_i32 s{sGrp[g]}, s12, {64*896}")
    a(f"s_add_u32 s11, s{sMX}, {R[2]}")
    a(f"v_add_u32 v{vT+4}, s11, v{vP}")
    kparts = {}
    if cfg.wprio: a(f"s_setprio {cfg.wprio}")
    for s in range(7):
        vm.wait(('st', s))
        ts.x(2, 1 + s)
        a("s_barrier")
        ts.x(3, 1 + s)
        if s == 0: ts(2)
        if s == 0:
            for k in range(6): a(f"ds_read_b128 v[{KP+4*k}:{KP+4*k+3}], v{vT+4} offset:{1024*k}")
        if s == 6:
            QQ = 28
            for p in range(8): a(f"ds_read_b32 v{QQ+p}, v{vT+1} offset:{512*p}")
            a("s_waitcnt lgkmcnt(0)")
            for p in range(4): a(f"v_add_f32 v{QQ+p}, v{QQ+p}, v{QQ+4+p}")
            a(f"v_add_f32 v{QQ}, v{QQ}, v{QQ+2}")
            a(f"v_add_f32 v{QQ+1}, v{QQ+1}, v{QQ+3}")
            a(f"v_add_f32 v{QQ}, v{QQ}, v{QQ+1}")
            a(f"ds_write_b32 v{vT}, v{QQ}")
            pre = tok_ops(win[6][:2])
            for o in pre: o()
            a("s_waitcnt lgkmcnt(0)")
            a("s_barrier")
            a("s_setprio 0")
            run_tokens(win[6][2:])
            continue
        segs = [[None, []]]
        for t in win.get(s, []):
            if t.startswith("cs"): segs.append([int(t[2:]), []])
            else: segs[-1][1].append(t)
        for cs, toks in segs:
            fl = []
            if cs is not None:
                vm.wait(('st', cs))
                colsum_reads(cs)
                fl = colsum_ops()
            if cs == 6:
                b = ACC
                for k in range(8): fl.append(f"v_permlane32_swap_b32 v{CA+k}, v{CA+8+k}")
                fl.append(f"v_add_f32_dpp v{b}, v{b}, v{b} quad_perm:[1,0,3,2] row_mask:0xf bank_mask:0xf")
                for k in range(8): fl.append(f"v_add_f32 v{CA+k}, v{CA+k}, v{CA+8+k}")
                fl.append(f"v_add_f32_dpp v{b}, v{b}, v{b} quad_perm:[2,3,0,1] row_mask:0xf bank_mask:0xf")
                for k in range(8): fl.append(f"v_add_f32_dpp v{CA+k}, v{CA+k}, v{CA+k} row_ror:8 row_mask:0xf bank_mask:0xf")
                fl.append(f"v_add_f32_dpp v{b}, v{b}, v{b} row_half_mirror row_mask:0xf bank_mask:0xf")
                fl.append(f"ds_write_b128 v{vC}, v[{CA}:{CA+3}]")
                fl.append(f"ds_write_b128 v{vC}, v[{CA+4}:{CA+7}] offset:16")
                fl.append(f"ds_write_b32 v{vA}, v{b}")
            ops = tok_ops(toks)
            per = max(1, -(-len(fl) // max(1, len(ops))))
            interleave(a, ops, fl, per)
        if s == 5:
            a(f"s_and_b32 s12, s{S_W4}, 1")
            a("s_lshl_b32 s12, s12, 8")
            a(f"v_lshl_add_u32 v{vT}, v0, 2, s12")
            a(f"v_add_u32 v{vT+1}, {CP_L}, v{vT}")
            a(f"v_add_u32 v{vT}, {C_L}, v{vT}")
            a("s_waitcnt lgkmcnt(0)")
            a("s_setprio 3")
    ts.x(2, 8)
    a("s_barrier")
    ts(3)
    ts.x(3, 8)
    a(f"v_add_u32 v{vT+2}, {SD}, v{vPQ}")
    vm.wait(('w', 11), "lgkmcnt(0)")
    a("s_barrier")
    X, Y, ST = 32, 48, CF
    HR, HI, T1, T2, CBR, CBI, G0, G1, QR, QI = 20, 21, 22, 23, 24, 25, 26, 28, 30, 31
    for k in range(8): a(f"ds_read_b128 v[{X+4*k}:{X+4*k+3}], v{vT+2} offset:{1024*k}")
    a(f"ds_read_b32 v{CBR}, v{vCB}")
    a(f"ds_read_b32 v{CBI}, v{vCB} offset:64")
    for k in range(8): a(f"ds_read_b128 v[{ST+4*k}:{ST+4*k+3}], v{vStS} offset:{16*k}")
    a(f"s_setprio {cfg.eprio}")
    a(f"v_lshrrev_b32 v1, 4, v0")
    a(f"v_sub_u32 v1, s{S_MT}, v1")
    a(f"v_cmp_le_i32 s[56:57], 1, v1")
    a(f"v_cmp_le_i32 s[58:59], 5, v1")
    a(f"v_lshlrev_b32 v5, 16, v{KP+23}")
    a(f"v_mov_b32 v3, v{vF}")
    vF = 3
    a("s_waitcnt lgkmcnt(10)")
    for r in range(16): a(f"v_permlane16_swap_b32 v{X+r}, v{Y+r}")
    a("s_waitcnt lgkmcnt(0)")
    side = {}
    for r in range(16):
        if r in side: side[r]()
        m, rs = ST + 2 * r, ST + 2 * r + 1
        a(f"v_fma_f32 v{X+r}, -v{m}, v{CBR}, v{X+r}")
        a(f"v_fma_f32 v{Y+r}, -v{m}, v{CBI}, v{Y+r}")
        a(f"v_mul_f32 v{X+r}, v{X+r}, v{rs}")
        a(f"v_mul_f32 v{Y+r}, v{Y+r}, v{rs}")
        if r >= 1:
            pr, pi = (X, Y) if r == 1 else (HR, HI)
            a(f"v_fma_f32 v{T1}, -v{LI}, v{pi}, v{X+r}")
            a(f"v_fma_f32 v{T2}, v{LI}, v{pr}, v{Y+r}")
            a(f"v_fma_f32 v{HR}, v{LR}, v{pr}, v{T1}")
            a(f"v_fma_f32 v{HI}, v{LR}, v{pi}, v{T2}")
    z = CF
    a(f"v_mov_b32 v{z}, v{HR}"); a(f"v_mov_b32 v{z+1}, v{HI}")
    csq(a, z + 8, z + 9, L16R, L16I, z + 10)
    a(f"v_permlane32_swap_b32 v{HR}, v{z}")
    a(f"v_permlane32_swap_b32 v{HI}, v{z+1}")
    a(f"v_fma_f32 v{z}, -v{L16I}, v{HI}, v{z}")
    a(f"v_fma_f32 v{z+1}, v{L16I}, v{HR}, v{z+1}")
    a(f"v_fmac_f32 v{z}, v{L16R}, v{HR}")
    a(f"v_fmac_f32 v{z+1}, v{L16R}, v{HI}")
    a(f"v_mov_b32 v{z+2}, v{z}"); a(f"v_mov_b32 v{z+3}, v{z+1}")
    a(f"s_lshl_b32 s11, s{S_W4}, 7")
    a(f"v_add_u32 v{z+5}, s11, v{vAg}")
    a(f"v_permlane16_swap_b32 v{z}, v{z+2}")
    a(f"v_permlane16_swap_b32 v{z+1}, v{z+3}")
    a(f"v_fma_f32 v{z+2}, -v{z+9}, v{z+1}, v{z+2}")
    a(f"v_fma_f32 v{z+3}, v{z+9}, v{z}, v{z+3}")
    a(f"v_fmac_f32 v{z+2}, v{z+8}, v{z}")
    a(f"v_fmac_f32 v{z+3}, v{z+8}, v{z+1}")
    a(f"ds_write_b64 v{z+5}, v[{z+2}:{z+3}]")
    a("s_waitcnt lgkmcnt(0)")
    ts.x(2, 9)
    a(f"s_setprio {cfg.lprio}")
    a("s_barrier")
    ts(4)
    E = CF + 16
    for i in range(4): a(f"ds_read_b64 v[{E+2+2*i}:{E+3+2*i}], v{vAg} offset:{128*i}")
    a(f"v_mov_b32 v{E}, 0")
    a(f"v_mov_b32 v{E+1}, 0")
    a(f"v_and_b32 v{z+4}, 16, v0")
    a(f"v_cmp_ne_u32 s[12:13], 0, v{z+4}")
    for i in range(1, 4):
        e, p = E + 2 + 2 * i, E + 2 * i
        a(f"s_waitcnt lgkmcnt({3 - i})")
        a(f"v_fma_f32 v{e}, -v{L64I}, v{p+1}, v{e}")
        a(f"v_fma_f32 v{e+1}, v{L64I}, v{p}, v{e+1}")
        a(f"v_fmac_f32 v{e}, v{L64R}, v{p}")
        a(f"v_fmac_f32 v{e+1}, v{L64R}, v{p+1}")
    a(f"s_cmp_lg_u32 s{S_W4}, 0")
    a("s_cbranch_scc1 L_l_nopub")
    e = E + 8
    a(f"v_cmp_eq_u32 vcc, -1, v{e}")
    a(f"v_mov_b32 v{T1}, 0x7fc00000")
    a(f"v_cndmask_b32 v{e}, v{e}, v{T1}, vcc")
    a("s_mov_b64 exec, 0xffff")
    a(f"buffer_store_dwordx2 v[{e}:{e+1}], v{vAg}, s[{SRD_WS}:{SRD_WS+3}], s22 offen sc1")
    a("s_mov_b64 exec, -1")
    ts(5)
    a.label("L_l_nopub")
    a(f"v_cmp_lt_u32 vcc, 31, v0")
    a(f"v_cndmask_b32 v{z}, 0, v{z}, s[12:13]")
    a(f"v_cndmask_b32 v{z+1}, 0, v{z+1}, s[12:13]")
    a(f"v_fma_f32 v{HR}, -v{L16I}, v{z+1}, v{HR}")
    a(f"v_fma_f32 v{HI}, v{L16I}, v{z}, v{HI}")
    a(f"v_fmac_f32 v{HR}, v{L16R}, v{z}")
    a(f"v_fmac_f32 v{HI}, v{L16R}, v{z+1}")
    a(f"v_cndmask_b32 v{z}, v{z}, v{HR}, vcc")
    a(f"v_cndmask_b32 v{z+1}, v{z+1}, v{HI}, vcc")
    cmul(a, HR, HI, z, z + 1, CR, CI)
    a(f"s_bitcmp1_b32 s{S_W4}, 0")
    a("s_cselect_b64 vcc, -1, 0")
    a(f"v_cndmask_b32 v{QR}, v{E}, v{E+2}, vcc")
    a(f"v_cndmask_b32 v{QI}, v{E+1}, v{E+3}, vcc")
    a(f"v_cndmask_b32 v{T1}, v{E+4}, v{E+6}, vcc")
    a(f"v_cndmask_b32 v{T2}, v{E+5}, v{E+7}, vcc")
    a(f"s_bitcmp1_b32 s{S_W4}, 1")
    a("s_cselect_b64 vcc, -1, 0")
    a(f"v_cndmask_b32 v{QR}, v{QR}, v{T1}, vcc")
    a(f"v_cndmask_b32 v{QI}, v{QI}, v{T2}, vcc")
    ts.x(2, 10)
    thr[0] = cfg.thr
    lds = [f"buffer_load_dwordx2 v[{G0}:{G0+1}], v{vPr}, s[{SRD_WS}:{SRD_WS+3}], s23 offen sc1",
           f"buffer_load_dwordx2 v[{G1}:{G1+1}], v{vPr}, s[{SRD_WS}:{SRD_WS+3}], s20 offen sc1"]
    up = Rec()
    for r in range(16):
        up(f"v_mul_f32 v{T1}, v{CI}, v{Y+r}")
        up(f"v_mul_f32 v{T2}, v{CI}, v{X+r}")
        up(f"v_fma_f32 v{X+r}, v{CR}, v{X+r}, -v{T1}")
        up(f"v_fma_f32 v{Y+r}, v{CR}, v{Y+r}, v{T2}")
    vRd, vOne = 4, 2
    a(f"s_lshl_b32 s11, s{S_W4}, 2")
    a(f"s_add_u32 s11, s11, {CNT_L + 16}")
    a(f"v_mov_b32 v{vRd}, s11")
    a(f"v_mov_b32 v{vOne}, 1")
    thr[0] = None
    co = w_ops(range(22, 28)) + (c_ops(0) if cfg.c0early else [])
    interleave(a, co[:cfg.c1], up.L, 4)
    if cfg.agpos == 0:
        for t in lds: vm.issue('ag', t)
    w_write([12, 13, 14, 15])
    a(f"ds_write_b32 v{vRd}, v{vOne}")
    XV, STT, DS = 64, 80, 5
    TT = SACC + 32
    vHW = 1
    a(f"v_add_u32 v{vHW}, {HTS}, v{vPQ}")
    a(f"ds_write_b128 v{vHW}, v[{XRAW}:{XRAW+3}]")
    a(f"ds_write_b128 v{vHW}, v[{XRAW+4}:{XRAW+7}] offset:1024")
    a(f"v_lshrrev_b32 v{vT+3}, 5, v0")
    a(f"v_lshlrev_b32 v{vT+2}, 10, v{vT+3}")
    a(f"v_and_b32 v{vT}, 31, v0")
    a(f"v_lshl_add_u32 v{vT+2}, v{vT}, 1, v{vT+2}")
    a(f"s_add_u32 s11, s{sMP}, {HTS}")
    a(f"v_add_u32 v{vT+2}, s11, v{vT+2}")
    for r in range(16): a(f"ds_read_u16 v{XV+r}, v{vT+2} offset:{64*r}")
    if cfg.agpos == 1:
        for t in lds: vm.issue('ag', t)
    w_write([16, 17])
    def wrest():
        w_write([18, 19])
        w_write([20, 21])
        a(f"v_mov_b32 v{T1}, 2")
        a(f"ds_write_b32 v{vRd}, v{T1}")
    if not cfg.wl: wrest()
    co = co[cfg.c1:]
    ts(8)
    vm.wait('ag')
    def cond():
        a(f"v_cmp_eq_u32 vcc, -1, v{G0}")
        a("s_and_b64 s[48:49], vcc, s[56:57]")
        a(f"v_cmp_eq_u32 vcc, -1, v{G1}")
        a("s_and_b64 s[50:51], vcc, s[58:59]")
        a("s_or_b64 s[48:49], s[48:49], s[50:51]")
        a("s_cmp_eq_u64 s[48:49], 0")
    spin_check(a, "L_agg", lds, cond, 2)
    ts(6)
    SR, SI = CBR, CBI
    cmul(a, SR, SI, G0, G0 + 1, W0R, W0R + 1)
    cmul(a, T1, T2, G1, G1 + 1, W0R + 2, W0R + 3)
    a(f"v_cndmask_b32 v{SR}, 0, v{SR}, s[56:57]")
    a(f"v_cndmask_b32 v{SI}, 0, v{SI}, s[56:57]")
    a(f"v_cndmask_b32 v{T1}, 0, v{T1}, s[58:59]")
    a(f"v_cndmask_b32 v{T2}, 0, v{T2}, s[58:59]")
    a(f"v_add_f32 v{SR}, v{SR}, v{T1}")
    a(f"v_add_f32 v{SI}, v{SI}, v{T2}")
    for sw in ("v_permlane32_swap_b32", "v_permlane16_swap_b32"):
        a(f"v_mov_b32 v{T1}, v{SR}")
        a(f"v_mov_b32 v{T2}, v{SI}")
        a(f"{sw} v{SR}, v{T1}")
        a(f"{sw} v{SI}, v{T2}")
        a(f"v_add_f32 v{SR}, v{SR}, v{T1}")
        a(f"v_add_f32 v{SI}, v{SI}, v{T2}")
    a(f"v_fmac_f32 v{QR}, v{LWR}, v{SR}")
    a(f"v_fmac_f32 v{QI}, v{LWR}, v{SI}")
    a(f"v_fma_f32 v{QR}, -v{LWI}, v{SI}, v{QR}")
    a(f"v_fmac_f32 v{QI}, v{LWI}, v{SR}")
    a(f"v_fmac_f32 v{HR}, v{PWR}, v{QR}")
    a(f"v_fmac_f32 v{HI}, v{PWR}, v{QI}")
    a(f"v_fma_f32 v{HR}, -v{PWI}, v{QI}, v{HR}")
    a(f"v_fmac_f32 v{HI}, v{PWI}, v{QR}")
    pr, pi = HR, HI
    PK, HF = 96, 80
    rest = co[:cfg.c2]
    for r in range(16):
        if rest: rest.pop(0)()
        a(f"v_fma_f32 v{X+r}, -v{LI}, v{pi}, v{X+r}")
        a(f"v_fma_f32 v{Y+r}, v{LI}, v{pr}, v{Y+r}")
        a(f"v_fmac_f32 v{X+r}, v{LR}, v{pr}")
        a(f"v_fmac_f32 v{Y+r}, v{LR}, v{pi}")
        pr, pi = X + r, Y + r
    for k in range(8):
        a(f"v_cvt_pk_bf16_f32 v{PK+k}, v{X+2*k}, v{X+2*k+1}")
    a(f"ds_write_b128 v{vTW}, v[{PK}:{PK+3}]")
    a(f"ds_write_b128 v{vTW}, v[{PK+4}:{PK+7}] offset:16")
    for k in range(8):
        a(f"v_cvt_pk_bf16_f32 v{PK+8+k}, -v{Y+2*k}, -v{Y+2*k+1}")
    a(f"ds_write_b128 v{vTW}, v[{PK+8}:{PK+11}] offset:2048")
    a(f"ds_write_b128 v{vTW}, v[{PK+12}:{PK+15}] offset:2064")
    for q in range(2):
        for part in range(2):
            for j in range(2):
                d = HF + 8 * q + 4 * part + 2 * j
                a(f"ds_read_b64_tr_b16 v[{d}:{d+1}], v{vTR} offset:{(part*16 + 4*j)*128 + 64*(q ^ j)}")
    assert not rest
    a("s_waitcnt lgkmcnt(0)")
    for q in range(2):
        for part in range(2):
            d = HF + 8 * q + 4 * part
            a(f"s_add_u32 s11, s19, {q*RT_BYTES + part*HALF_BYTES}")
            vm.issue('hs', f"buffer_store_dwordx4 v[{d}:{d+3}], v{vP}, s[{SRD_WS}:{SRD_WS+3}], s11 offen{SP}")
    if cfg.wl: wrest()
    def flag2():
        vm.wait('hs')
        a("s_mov_b64 exec, 1")
        vm.issue('f', f"buffer_store_dword v{vOne}, v{vF}, s[{SRD_WS}:{SRD_WS+3}], 0 offen sc1")
        a("s_mov_b64 exec, -1")
        ts(7)
    if cfg.f2b == 0: flag2()
    for o in co[cfg.c2:] + (c_ops(2) if not cfg.clate else []): o()
    if cfg.f2b == 1: flag2()
    a(f"s_and_b32 s11, s{S_W4}, 1")
    a("s_lshl_b32 s11, s11, 8")
    a(f"s_add_u32 s11, s11, {ST2_L}")
    a(f"v_lshl_add_u32 v{vT+3}, v{vT+3}, 7, s11")
    STT = 32
    for k in range(8): a(f"ds_read_b128 v[{STT+4*k}:{STT+4*k+3}], v{vT+3} offset:{16*k}")
    for r in range(16): a(f"v_lshlrev_b32 v{XV+r}, 16, v{XV+r}")
    a("s_waitcnt lgkmcnt(0)")
    a("s_setprio 0")
    def rnd_pair(r0, r1):
        a(f"v_cvt_pk_bf16_f32 v{r1}, v{r0}, v{r1}"); a(f"v_lshlrev_b32 v{r0}, 16, v{r1}"); a(f"v_and_b32 v{r1}, s71, v{r1}")
    for r in range(16): a(f"v_sub_f32 v{TT+r}, v{XV+r}, v{STT+2*r}")
    for k in range(8): rnd_pair(TT + 2 * k, TT + 2 * k + 1)
    a(f"v_mov_b32 v{T2}, 3")
    vm.wait(('w', 27))
    a(f"ds_write_b32 v{vRd}, v{T2}")
    for r in range(16): a(f"v_mul_f32 v{TT+r}, v{TT+r}, v{STT+2*r+1}")
    for k in range(8): rnd_pair(TT + 2 * k, TT + 2 * k + 1)
    for r in range(16): a(f"v_mul_f32 v{TT+r}, v{TT+r}, v{DS}")
    for k in range(8): rnd_pair(TT + 2 * k, TT + 2 * k + 1)
    def poll(name, off):
        sspin(a, name, [f"s_load_dwordx16 s[20:35], s[{P_WS}:{P_WS+1}], s18 glc"], pcond, cfg.psleep)
    if True:
        def pcond():
            for k in range(0, 12, 4): a(f"s_and_b64 s[{20+k}:{21+k}], s[{20+k}:{21+k}], s[{22+k}:{23+k}]")
            a("s_and_b64 s[20:21], s[20:21], s[24:25]")
            a("s_and_b64 s[28:29], s[28:29], s[32:33]")
            a("s_and_b64 s[20:21], s[20:21], s[28:29]")
            a("s_and_b32 s20, s20, s21")
            a("s_cmp_eq_u32 s20, 1")
    a(f"s_mul_i32 s57, s40, {RT_BYTES}")
    a("s_xor_b32 s11, s40, 1")
    a(f"s_mul_i32 s56, s11, {RT_BYTES}")
    a(f"s_lshr_b32 s11, s{S_W4}, 1")
    a(f"s_mul_i32 s11, s11, {HALF_BYTES}")
    a(f"s_add_u32 s11, s11, {56*1024}")
    a("s_add_u32 s56, s56, s11")
    a("s_add_u32 s57, s57, s11")
    a(f"s_and_b32 s12, s{S_W4}, 1")
    a("s_lshl_b32 s13, s12, 14")
    for b in range(3): a(f"s_add_u32 s{52+b}, s13, {b*4096}")
    a("s_lshl_b32 s12, s12, 11")
    a(f"s_add_u32 s55, s12, {12*1024}")
    srd(a, 60, P_OUT, 2048 * 1792)
    vW1, vW2, vCn, vCv = 1, 2, 9, 4
    vR = [3, 12, 13, 14]
    a(f"v_add_u32 v{vW1}, {PH1}, v{vPQ}")
    a(f"v_add_u32 v{vW2}, {PH2}, v{vPQ}")
    a(f"v_mov_b32 v{vCn}, {CNT_L}")
    for (reg, xr, base) in ((vR[0], 1, PH1), (vR[1], 3, PH1 + 4096), (vR[2], 2, PH2)):
        a(f"s_xor_b32 s11, s{S_W4}, {xr}")
        a(f"s_mul_i32 s11, s11, {Q}")
        a(f"s_add_u32 s11, s11, {base}")
        a(f"v_add_u32 v{reg}, s11, v{vP}")
    a(f"v_add_u32 v{vR[3]}, {GA}, v{vPQ}")
    ts.x(2, 11)
    ts.x(7, 11)
    AR = list(range(16, 64, 4))
    NA = len(AR)
    PO = [4, 5, 6, 7, 12, 13, 0, 1, 2, 3, 8, 9, 10, 11]
    def aload(n):
        lr, p = n // 14, PO[n % 14]
        if p % 4 == 0: a(f"s_add_u32 s58, s{56+lr}, s{52 + p//4}")
        d = AR[n % NA]
        vm.issue(('a', n), f"buffer_load_dwordx4 v[{d}:{d+3}], v{vP}, s[{SRD_WS}:{SRD_WS+3}], s58 offen offset:{(p%4)*1024}{AP}")
    def cnt_wait(name, off):
        a("s_mov_b32 s73, 0")
        a.label(name)
        a("s_waitcnt lgkmcnt(0)")
        a(f"v_readfirstlane_b32 s11, v{vCv}")
        a("s_cmp_ge_u32 s11, 4")
        a(f"s_cbranch_scc1 {name}ok")
        a("s_add_u32 s73, s73, 1")
        a(f"s_cmp_ge_u32 s73, {SPIN_MAX}")
        a(f"s_cbranch_scc1 {name}ok")
        a("s_sleep 1")
        a(f"ds_read_b32 v{vCv}, v{vCn} offset:{off}")
        a(f"s_branch {name}")
        a.label(name + "ok")
        a("s_nop 7")
    assert cfg.clate == 2 and cdone == {1, 3}
    if cfg.gate == 0: poll("L_ps", 128)
    if cfg.gate < 2:
        a(f"ds_read_b32 v{vCv}, v{vCn} offset:4")
        cnt_wait("L_l_c0", 4)
    if cfg.sprio: a(f"s_setprio {cfg.sprio}")
    cc = c_ops(0) + c_ops(2)
    for o in cc[:cfg.c0n]: o()
    if cfg.gate != 0: poll("L_ps", 128)
    ts(9)
    ts.x(7, 1)
    for n in range(6): aload(n)
    for o in cc[cfg.c0n:8]: o()
    for n in range(6, 10): aload(n)
    for o in cc[max(8, cfg.c0n):]: o()
    for n in range(10, NA): aload(n)
    a("s_setprio 0")
    ts.x(7, 2)
    for n in range(28):
        lr, p = n // 14, PO[n % 14]
        vm.wait(('a', n))
        assert ('c', min(p // 4, 3)) not in vm.q
        if n in (0, 7, 14, 21): ts.x(7, 3 + n // 7)
        d = AR[n % NA]
        for lc in (1, 0):
            acc = SACC + 32 * lr + 16 * lc
            c = "0" if (n % 14 == 0 and not (lr == 1 and lc == 0)) else f"v[{acc}:{acc+15}]"
            f = cfrag(p, lc)
            a(f"v_mfma_f32_32x32x16_bf16 v[{acc}:{acc+15}], v[{d}:{d+3}], v[{f}:{f+3}], {c}")
        if n + NA < 28: aload(n + NA)
        if cfg.gate == 2 and n == 14: a(f"ds_read_b32 v{vCv}, v{vCn} offset:4")
        if cfg.gate == 2 and n == 15: cnt_wait("L_l_c0", 4)
        if 16 <= n < 24:
            k = n - 16
            a(f"ds_write_b128 v{vW1}, v[{SACC+4*k}:{SACC+4*k+3}] offset:{1024*k}")
    ts(10)
    ts.x(7, 7)
    ts.x(7, 8)
    for k in range(4):
        a(f"ds_write_b128 v{vW2}, v[{SACC+48+4*k}:{SACC+48+4*k+3}] offset:{1024*k}")
    a("s_waitcnt lgkmcnt(0)")
    ts.x(7, 9)
    a("s_barrier")
    ts(11)
    ts.x(7, 10)
    RX = CF
    for k in range(4):
        for w in range(4):
            a(f"ds_read_b128 v[{RX+16*w+4*k}:{RX+16*w+4*k+3}], v{vR[w]} offset:{1024*k}")
    for k in range(4):
        a(f"s_waitcnt lgkmcnt({12 - 4*k})")
        for r in range(4 * k, 4 * k + 4):
            a(f"v_add_f32 v{TT+r}, v{TT+r}, v{RX+r}")
            a(f"v_add_f32 v{RX+16+r}, v{RX+16+r}, v{RX+32+r}")
        for r in range(4 * k, 4 * k + 4):
            a(f"v_add_f32 v{TT+r}, v{TT+r}, v{RX+16+r}")
        for r in range(4 * k, 4 * k + 4):
            a(f"v_fma_f32 v{XV+r}, v{TT+r}, v{RX+48+r}, v{XV+r}")
            if r % 2 == 0: a(f"s_mov_b32 s11, {r*1792}")
            a(f"buffer_store_dword v{XV+r}, v{vO}, s[60:63], s11 offen offset:{(r%2)*1792}{OP}")
    if cfg.ts:
        a("s_waitcnt vmcnt(0)")
        ts(12)
    if cfg.padto:
        a.label("L_pad")
        a("s_memrealtime s[98:99]")
        a("s_waitcnt lgkmcnt(0)")
        a("s_sub_u32 s98, s98, s100")
        a(f"s_cmp_lt_u32 s98, {cfg.padto}")
        a("s_cbranch_scc1 L_pad")
    ts.dump(16, 17, 1)
    a("s_endpgm")

def gen_consumer(a, cfg, ts):
    a.label("L_consumer")
    SP = ["", " sc1"][cfg.spol]
    AP = ['', ' sc1', ' sc1 nt', ' sc0 sc1', ' sc0', ' nt'][cfg.apol]
    vm = VM(a)
    XA = [1, 2, 3, 4]; BA = [5, 6, 7, 8]; WA = [9, 10]
    vL16, vStF, vCL, vF, vFl, vSo, vCn, vRd, vWB, vPQ, vOne, MM = 11, 12, 13, 14, 15, 16, 17, 18, 19, 20, 21, 22
    FS = [40, 68]
    ACC = 96
    def G(ft, q): return ACC + 16 * (2 * ft + q)
    def U(ft, q): return ACC + 64 + 16 * (2 * ft + q)
    def S(q): return ACC + 128 + 16 * q
    vI, vH, t0, t1, t2 = 24, 25, 26, 27, 28
    a(f"v_and_b32 v{vI}, 31, v0")
    a(f"v_lshrrev_b32 v{vH}, 5, v0")
    a(f"v_bfe_u32 v{t0}, v0, 1, 3")
    a(f"v_xor_b32 v{t0}, v{t0}, v{vH}")
    a(f"v_lshlrev_b32 v{t0}, 4, v{t0}")
    a(f"v_lshl_add_u32 v{t0}, v{vI}, 7, v{t0}")
    a(f"s_lshl_b32 s11, s{S_W4}, 13")
    for ks in range(4):
        a(f"v_xor_b32 v{t1}, {32*ks}, v{t0}")
        a(f"v_add_u32 v{XA[ks]}, s11, v{t1}")
        a(f"v_add_u32 v{BA[ks]}, {OFF_BB}, v{t1}")
    a(f"v_bfe_u32 v{t0}, v0, 2, 2")
    a(f"v_lshlrev_b32 v{t1}, 7, v{t0}")
    a(f"v_lshrrev_b32 v{t0}, 1, v{t0}")
    a(f"v_lshl_add_u32 v{t1}, v{t0}, 6, v{t1}")
    a(f"v_bfe_u32 v{t0}, v0, 4, 1")
    a(f"v_lshl_add_u32 v{t1}, v{t0}, 5, v{t1}")
    a(f"v_and_b32 v{t2}, 3, v0")
    a(f"v_lshl_add_u32 v{t1}, v{t2}, 3, v{t1}")
    a(f"v_lshl_add_u32 v{WA[0]}, v{vH}, 10, v{t1}")
    a(f"v_add_u32 v{WA[0]}, {OFF_WG}, v{WA[0]}")
    a(f"v_xor_b32 v{WA[1]}, 64, v{WA[0]}")
    a(f"s_mul_i32 s62, s{S_W4}, {Q}")
    a(f"s_lshr_b32 s59, s{S_W4}, 1")
    a(f"s_and_b32 s63, s{S_W4}, 1")
    a("s_lshl_b32 s11, s59, 6")
    a(f"v_lshl_add_u32 v{vWB}, v{vH}, 9, v{t1}")
    a(f"v_xor_b32 v{vWB}, s11, v{vWB}")
    a(f"v_add_u32 v{vWB}, s62, v{vWB}")
    a("s_waitcnt lgkmcnt(0)")
    a(f"s_lshl_b32 s11, s{S_NS}, 5")
    a(f"s_load_dwordx8 s[32:39], s[{P_LRE}:{P_LRE+1}], s11")
    a(f"s_load_dwordx8 s[64:71], s[{P_LDT}:{P_LDT+1}], s11")
    a(f"s_load_dwordx8 s[24:31], s[{P_LIM}:{P_LIM+1}], s11")
    for k in range(160): a(f"v_mov_b32 v{ACC+k}, 0")
    a(f"v_mov_b32 v{vCn}, {CNT_L}")
    a(f"ds_write_b128 v{vCn}, v[{ACC}:{ACC+3}]")
    a(f"ds_write_b128 v{vCn}, v[{ACC}:{ACC+3}] offset:16")
    a(f"v_bfe_u32 v{t0}, v0, 2, 1")
    a(f"v_lshl_add_u32 v{t0}, v{t0}, 4, v{t2}")
    a(f"v_bfe_u32 v{t1}, v0, 3, 2")
    a(f"v_lshl_add_u32 v{t0}, v{t1}, 2, v{t0}")
    a(f"s_lshl_b32 s11, s{S_W4}, 9")
    a(f"s_add_u32 s11, s11, {STATS_L}")
    a(f"v_lshl_add_u32 v{vStF}, v{t0}, 3, s11")
    a(f"v_lshlrev_b32 v{vL16}, 4, v0")
    a(f"v_add_u32 v{vPQ}, s62, v{vL16}")
    a(f"v_lshlrev_b32 v{vCL}, 4, v{vH}")
    a(f"v_add_u32 v{vCL}, {C_L}, v{vCL}")
    a(f"v_mov_b32 v{vOne}, 1")
    a(f"s_lshl_b32 s11, s{S_W4}, 2")
    a(f"s_add_u32 s11, s11, {CNT_L + 16}")
    a(f"v_mov_b32 v{vRd}, s11")
    a("s_lshl_b32 s11, s63, 8")
    a(f"s_add_u32 s11, s11, {ST2_L}")
    a(f"v_lshl_add_u32 v{vSo}, v{vH}, 7, s11")
    a(f"s_lshl_b32 s13, s{S_MT}, 2")
    a(f"s_add_u32 s13, s13, s{S_W4}")
    a(f"s_mul_i32 s56, s13, {2*RT_BYTES}")
    a(f"s_cmp_ge_u32 s{S_NS}, 14")
    a(f"s_cselect_b32 s11, {HALF_BYTES - 56*1024}, 0")
    a(f"s_lshl_b32 s12, s{S_NS}, 12")
    a("s_add_u32 s11, s11, s12")
    a("s_add_u32 s56, s56, s11")
    a(f"s_add_u32 s57, s56, {RT_BYTES}")
    a("s_lshl_b32 s11, s13, 10")
    flag_index(a, 12, 14, 7)
    a("s_add_u32 s11, s11, s12")
    a(f"s_add_u32 s11, s11, {WS_FLAG:#x}")
    a(f"v_mov_b32 v{vF}, s11")
    a(f"s_lshl_b32 s55, s{S_M64}, 10")
    a(f"s_add_u32 s55, s55, {WS_FLAG:#x}")
    a(f"s_lshl_b32 s11, s{S_W4}, 7")
    a("s_add_u32 s55, s55, s11")
    a(f"s_mul_i32 s12, s59, {HALF_BYTES}")
    a(f"s_mul_i32 s13, s63, {28*1024}")
    a("s_add_u32 s12, s12, s13")
    a(f"s_lshl_b32 s11, s{S_M64}, 1")
    a("s_add_u32 s11, s11, s63")
    a(f"s_mul_i32 s52, s11, {RT_BYTES}")
    a("s_add_u32 s52, s52, s12")
    a("s_xor_b32 s11, s11, 1")
    a(f"s_mul_i32 s51, s11, {RT_BYTES}")
    a("s_add_u32 s51, s51, s12")
    p2_rot(a, cfg, 60, 61, 58)
    a("s_mov_b32 s12, 0x00030003")
    a("s_mov_b32 s13, 0x00030003")
    a("s_waitcnt lgkmcnt(0)")
    K, KP = 40, 64
    for k in range(8):
        a(f"s_lshl_b64 exec, s[12:13], {2*k}")
        for m, sb in enumerate((32, 24, 64)): a(f"v_mov_b32 v{K+m}, s{sb+k}")
    a("s_mov_b64 exec, -1")
    a(f"v_and_b32 v{K+3}, 1, v0")
    a(f"v_lshlrev_b32 v{K+3}, 4, v{K+3}")
    for m in range(3): a(f"v_lshrrev_b32 v{K+m}, v{K+3}, v{K+m}")
    srd(a, SRD_WS, P_WS, WS_SIZE)
    ssm_park(a, K, KP, 62)
    a(f"v_mov_b32 v{KP+23}, 0")
    a(f"s_lshl_b32 s11, s{S_W4}, 13")
    a(f"s_add_u32 s11, s11, {R[2]}")
    a(f"v_add_u32 v{K}, s11, v{vL16}")
    for k in range(6): a(f"ds_write_b128 v{K}, v[{KP+4*k}:{KP+4*k+3}] offset:{1024*k}")
    a("s_waitcnt lgkmcnt(0)")
    ts(1)

    def reads(fs, ks):
        f = FS[fs]
        L = []
        L.append(f"ds_read_b128 v[{f}:{f+3}], v{XA[ks]}")
        L.append(f"ds_read_b128 v[{f+24}:{f+27}], v{BA[ks]}")
        L.append(f"ds_read_b128 v[{f+4}:{f+7}], v{XA[ks]} offset:4096")
        for gu in range(2):
            for ft in range(2):
                for j in range(2):
                    d = f + 8 + 8 * gu + 4 * ft + 2 * j
                    L.append(f"ds_read_b64_tr_b16 v[{d}:{d+1}], v{WA[ft]} offset:{gu*8192 + ks*2048 + j*512}")
        return L
    def mfmas(fs):
        f = FS[fs]
        X = [f, f + 4]; Bf = f + 24
        L = []
        for q in range(2):
            L.append(f"v_mfma_f32_32x32x16_bf16 v[{S(q)}:{S(q)+15}], v[{X[q]}:{X[q]+3}], v[{Bf}:{Bf+3}], v[{S(q)}:{S(q)+15}]")
        for gu in range(2):
            for ft in range(2):
                w = f + 8 + 8 * gu + 4 * ft
                for q in range(2):
                    d = (G, U)[gu](ft, q)
                    L.append(f"v_mfma_f32_32x32x16_bf16 v[{d}:{d+15}], v[{w}:{w+3}], v[{X[q]}:{X[q]+3}], v[{d}:{d+15}]")
        return L
    a("s_setprio 2")
    a("s_mov_b32 s72, 0")
    a("s_mov_b32 s74, 0")
    a("s_barrier")
    ts(2)
    for t in reads(0, 0): a(t)
    a.label("L_c_loop")
    need = {0: 9, 1: 8, 2: 6, 4: 4, 6: 2, 8: 0}
    for ks in range(4):
        fs = ks & 1
        M = mfmas(fs)
        if ks < 3:
            Rd = reads(1 - fs, ks + 1)
            issued = 0
            for i, m in enumerate(M):
                if i in need: a(f"s_waitcnt lgkmcnt({min(15, need[i] + issued)})")
                a(m)
                for _ in range(2 if i >= cfg.rdstart else 0):
                    if Rd: a(Rd.pop(0)); issued += 1
        else:
            Rd = reads(1 - fs, 0)
            a("s_waitcnt lgkmcnt(9)")
            a(M[0])
            a("s_add_u32 s74, s74, 1")
            a("s_cmp_eq_u32 s74, 3")
            a("s_mov_b32 s75, 53248")
            a(f"s_cmov_b32 s75, {(-106496) & 0xffffffff:#x}")
            a("s_cselect_b32 s74, 0, s74")
            for v in XA + BA[:1]: a(f"v_add_u32 v{v}, s75, v{v}")
            a("s_waitcnt lgkmcnt(8)")
            a(M[1])
            for v in BA[1:] + WA: a(f"v_add_u32 v{v}, s75, v{v}")
            a("s_add_u32 s72, s72, 1")
            a("s_cmp_eq_u32 s72, 6")
            a("s_waitcnt lgkmcnt(0)")
            a(M[2])
            a("s_barrier")
            hist = list(a.hist)
            a("s_cbranch_scc1 L_c_last")
            for m in M[3:]:
                for _ in range(2):
                    if Rd: a(Rd.pop(0))
                a(m)
            a("s_branch L_c_loop")
            a.label("L_c_last")
            a.hist = hist
            Mtail = M[3:]
    lq = []
    def ds_issue(tag, t):
        a(t)
        if t.startswith("ds_"): lq.append(tag)
    def ds_wait(tag):
        idx = max((i for i, t in enumerate(lq) if t == tag), default=None)
        if idx is None: return None
        n = len(lq) - 1 - idx
        del lq[:idx + 1]
        return f"lgkmcnt({min(n, 15)})"
    def dwait(tag):
        w = ds_wait(tag)
        if w: a(f"s_waitcnt {w}")
    UB = [24, 40, 56]
    def ureads(u):
        b, ks = UB[u % 3], u % 4
        L = [f"ds_read_b128 v[{b}:{b+3}], v{XA[ks]}"]
        if u < 8:
            ft = u // 4
            for gu in range(2):
                for j in range(2):
                    d = b + 8 + 4 * gu + 2 * j
                    L.append(f"ds_read_b64_tr_b16 v[{d}:{d+1}], v{WA[ft]} offset:{gu*8192 + ks*2048 + j*512}")
        else:
            L.append(f"ds_read_b128 v[{b+8}:{b+11}], v{BA[ks]}")
        L.append(f"ds_read_b128 v[{b+4}:{b+7}], v{XA[ks]} offset:4096")
        return [(u, t) for t in L]
    def umfma(u):
        b = UB[u % 3]
        L = []
        for q in range(2):
            x = b + 4 * q
            if u < 8:
                for gu in range(2):
                    d = (G, U)[gu](u // 4, q); w = b + 8 + 4 * gu
                    L.append(f"v_mfma_f32_32x32x16_bf16 v[{d}:{d+15}], v[{w}:{w+3}], v[{x}:{x+3}], v[{d}:{d+15}]")
            else:
                L.append(f"v_mfma_f32_32x32x16_bf16 v[{S(q)}:{S(q)+15}], v[{x}:{x+3}], v[{b+8}:{b+11}], v[{S(q)}:{S(q)+15}]")
        return L
    Rd = ureads(0) + ureads(1)
    for m in Mtail:
        for _ in range(2):
            if Rd: ds_issue(*Rd.pop(0))
        a(m)
    CH = 72
    def chalf(p):
        for gu in range(2):
            for k in range(2):
                ds_issue(('c', p), f"ds_read_b128 v[{CH+8*gu+4*k}:{CH+8*gu+4*k+3}], v{vCL} offset:{256*gu + 32*(2*p+k)}")
    def hstore(ft, q, p):
        g = G(ft, q)
        vm.issue('h', f"buffer_store_dwordx4 v[{g+4*p}:{g+4*p+3}], v{vL16}, s[{SRD_WS}:{SRD_WS+3}], s{56+q} offen offset:{(2*ft+p)*1024}{SP}")
    ep = [lambda: dwait(('c', 0)), f"v_xor_b32 v{MM}, 0x80000000, v{MM}", f"v_xor_b32 v{MM+1}, 0x80000000, v{MM+1}"]
    for p in range(2):
        if p: ep.append(lambda: dwait(('c', 1)))
        for q in range(2):
            g, u = G(0, q) + 8 * p, U(0, q) + 8 * p
            for k in range(8): ep.append(f"v_fmac_f32 v{g+k}, v{MM+q}, v{CH+k}")
            for k in range(8): ep.append(f"v_fmac_f32 v{u+k}, v{MM+q}, v{CH+8+k}")
            if q == 1 and p == 0: ep.append(lambda: chalf(1))
            for k in range(8): ep.append(f"v_max_f32 v{g+k}, 0, v{g+k}")
            for k in range(8): ep.append(f"v_mul_f32 v{u+k}, v{u+k}, v{g+k}")
            for k in range(4): ep.append(f"v_cvt_pk_bf16_f32 v{G(0,q)+4*p+k}, v{u+2*k}, v{u+2*k+1}")
            ep.append(lambda q=q, p=p: hstore(0, q, p))
    def fill(n):
        while n > 0 and ep:
            t = ep.pop(0)
            if callable(t): t()
            else: a(t)
            n -= 1
    def cread(tag, dst, off):
        for k in range(4): ds_issue(tag, f"ds_read_b128 v[{dst+4*k}:{dst+4*k+3}], v{vCL} offset:{off + 32*k}")
    for u in range(12):
        dwait(u)
        if u == 11:
            a("s_barrier")
        Rd = ureads(u + 2) if u + 2 < 12 else []
        for i, m in enumerate(umfma(u)):
            a(m)
            for _ in range(2):
                if Rd: ds_issue(*Rd.pop(0))
            if u > 4 or (u == 4 and i >= 1): fill(cfg.fper - 1 if u < 10 else cfg.fper)
        if u == cfg.c2u:
            a("s_barrier")
            ds_issue(('c', 0), f"ds_read_b32 v{MM}, v{vStF}")
            ds_issue(('c', 0), f"ds_read_b32 v{MM+1}, v{vStF} offset:256")
            chalf(0)
        if u == 9: cread('cg', UB[0], 128)
        if u == 10: cread('cu', UB[1], 384)
    ts(3)
    fill(1000)
    dump = [f"ds_write_b128 v{vPQ}, v[{S(0)+4*k}:{S(0)+4*k+3}] offset:{SD + 1024*k}" for k in range(8)]
    WB = {0: [1, 2], 1: [3, 4], 2: [5, 6]}
    for rg in range(3):
        a(f"v_add_u32 v{WB[rg][0]}, {R[rg]}, v{vWB}")
        a(f"v_xor_b32 v{WB[rg][1]}, 64, v{WB[rg][0]}")
    dwait('cu')
    cg, cu = UB[0], UB[1]
    for q in range(2):
        g, u = G(1, q), U(1, q)
        sel = f"op_sel:[{q},0,0] op_sel_hi:[{q},1,1]"
        for p in range(2):
            kr = range(4 * p, 4 * p + 4)
            for k in kr:
                a(f"v_pk_fma_f32 v[{g+2*k}:{g+2*k+1}], v[{MM}:{MM+1}], v[{cg+2*k}:{cg+2*k+1}], v[{g+2*k}:{g+2*k+1}] {sel}")
                if dump: a(dump.pop(0))
            for k in kr:
                a(f"v_pk_fma_f32 v[{u+2*k}:{u+2*k+1}], v[{MM}:{MM+1}], v[{cu+2*k}:{cu+2*k+1}], v[{u+2*k}:{u+2*k+1}] {sel}")
                a(f"v_max_f32 v{g+2*k}, 0, v{g+2*k}")
                a(f"v_max_f32 v{g+2*k+1}, 0, v{g+2*k+1}")
            for k in kr:
                a(f"v_pk_mul_f32 v[{u+2*k}:{u+2*k+1}], v[{u+2*k}:{u+2*k+1}], v[{g+2*k}:{g+2*k+1}]")
            for k in kr:
                a(f"v_cvt_pk_bf16_f32 v{g+k}, v{u+2*k}, v{u+2*k+1}")
            if q == 0 and p == 1:
                a("s_waitcnt lgkmcnt(0)")
                a("s_barrier")
            hstore(1, q, p)
    del lq[:]
    ts(4)
    BR, NB = 160, 12
    def breads(p):
        sl = WSLOT[p]
        rg = max(k for k in range(3) if R[k] <= sl)
        L = []
        for lc in range(2):
            for jj in range(2):
                d = BR + 8 * (p % NB) + 4 * lc + 2 * jj
                L.append(f"ds_read_b64_tr_b16 v[{d}:{d+1}], v{WB[rg][lc]} offset:{sl - R[rg] + jj*1024}")
        return L
    for p in range(NB):
        for t in breads(p): a(t)
    def flag1():
        vm.wait('h')
        a("s_setprio 3")
        a("s_mov_b64 exec, 1")
        vm.issue('f', f"buffer_store_dword v{vOne}, v{vF}, s[{SRD_WS}:{SRD_WS+3}], 0 offen sc1")
        a("s_mov_b64 exec, -1")
        ts(6)
    if cfg.fpre: flag1()
    a("s_waitcnt lgkmcnt(0)")
    a("s_barrier")
    ts(5)
    if not cfg.fpre: flag1()
    AF = 96
    AR = list(range(24, 96, 4))
    NA = len(AR)
    def aload(n):
        p, lr = n // 2, n % 2
        if n % 8 == 0:
            a(f"s_lshl_b32 s11, s60, 12")
            a(f"s_add_u32 s54, s11, s52")
            a(f"s_add_u32 s53, s11, s51")
            a(f"s_add_u32 s60, s60, 1")
            a(f"s_cmp_eq_u32 s60, 7")
            a(f"s_cselect_b32 s60, 0, s60")
        d = AR[n % NA]
        vm.issue(('a', n), f"buffer_load_dwordx4 v[{d}:{d+3}], v{vL16}, s[{SRD_WS}:{SRD_WS+3}], s{54 - lr} offen offset:{(p%4)*1024}{AP}")
    def cond():
        a("s_and_b64 s[16:17], s[16:17], s[18:19]")
        a("s_and_b64 s[16:17], s[16:17], s[20:21]")
        a("s_and_b32 s16, s16, s17")
        a("s_and_b32 s16, s16, s22")
        a("s_cmp_eq_u32 s16, 1")
    sspin(a, "L_pf", [f"s_load_dwordx8 s[16:23], s[{P_WS}:{P_WS+1}], s55 glc"], cond, cfg.fsleep)
    a("s_setprio 2")
    ts(7)
    for n in range(cfg.a0): aload(n)
    nxt = [cfg.a0]
    ts(8)
    def lds_spin(name, vaddr, off, val):
        a("s_mov_b32 s73, 0")
        a.label(name)
        a("s_waitcnt lgkmcnt(0)")
        a("v_readfirstlane_b32 s11, v8")
        a(f"s_cmp_ge_u32 s11, {val}")
        a(f"s_cbranch_scc1 {name}ok")
        a("s_add_u32 s73, s73, 1")
        a(f"s_cmp_ge_u32 s73, {SPIN_MAX}")
        a(f"s_cbranch_scc1 {name}ok")
        a("s_sleep 1")
        a(f"ds_read_b32 v8, v{vaddr} offset:{off}")
        a(f"s_branch {name}")
        a.label(name + "ok")
        del lq[:]
    for p in range(28):
        f = BR + 8 * (p % NB)
        pn = p + cfg.bd
        for lr in range(2):
            n = 2 * p + lr
            w = ds_wait(p) if lr == 0 else None
            vm.wait(('a', n), w or "")
            if n == 0: ts(9)
            if n in (0, 7, 17, 25, 35): ts.x(6, {0: 7, 7: 8, 17: 9, 25: 10, 35: 11}[n])
            if lr == 0 and pn in (12, 16, 22): ds_issue('r', f"ds_read_b32 v8, v{vRd}")
            d = AR[n % NA]
            for lc in range(2):
                acc = AF + 32 * lr + 16 * lc
                c = "0" if p == 0 else f"v[{acc}:{acc+15}]"
                a(f"v_mfma_f32_32x32x16_bf16 v[{acc}:{acc+15}], v[{d}:{d+3}], v[{f+4*lc}:{f+4*lc+3}], {c}")
            for _ in range(2):
                if nxt[0] < 56 and nxt[0] <= n + NA:
                    aload(nxt[0]); nxt[0] += 1
        if pn in (12, 16, 22): lds_spin(f"L_c_r{pn}", vRd, 0, {12: 1, 16: 2, 22: 3}[pn])
        if p == cfg.ksig:
            assert pn > 15
            w = ds_wait(15)
            if w: a(f"s_waitcnt {w}")
            a("s_mov_b64 exec, 1")
            ds_issue('c', f"ds_add_u32 v{vCn}, v{vOne} offset:4")
            a("s_mov_b64 exec, -1")
        if NB <= pn < 28:
            for t in breads(pn): ds_issue(pn, t)
        if p == 24:
            STT = BR + 32
            for k in range(8): ds_issue('st', f"ds_read_b128 v[{STT+4*k}:{STT+4*k+3}], v{vSo} offset:{16*k}")
        if p == 26:
            for x in range(1, 4):
                a(f"s_xor_b32 s11, s{S_W4}, {x}")
                a(f"s_mul_i32 s11, s11, {Q}")
                a(f"s_add_u32 s11, s11, {FXA + (x-1)*4096}")
                a(f"v_add_u32 v{x}, s11, v{vL16}")
            a(f"v_add_u32 v4, {GA}, v{vPQ}")
            a(f"v_add_u32 v5, {FXA}, v{vPQ}")
        if p % 4 == 3: ts.x(4, 1 + p // 4)
    ts(11)
    ts.x(7, 1)
    for x in (2, 1, 3):
        src = AF + 32 * (x & 1) + 16 * (x >> 1)
        for k in range(4):
            a(f"ds_write_b128 v5, v[{src+4*k}:{src+4*k+3}] offset:{(x-1)*4096 + 1024*k}")
    a("s_waitcnt lgkmcnt(12)")
    for r in range(16): a(f"v_mul_f32 v{STT+2*r}, v{STT+2*r+1}, v{STT+2*r+1}")
    a(f"s_mov_b32 s13, {LOG2E ^ 0x80000000:#x}")
    ts.x(7, 2)
    a("s_waitcnt lgkmcnt(0)")
    ts.x(7, 3)
    a("s_mov_b64 exec, 1")
    a(f"ds_add_u32 v{vCn}, v{vOne}")
    a("s_mov_b64 exec, -1")
    a(f"ds_read_b32 v8, v{vCn}")
    lds_spin("L_c_cnt", vCn, 0, 4)
    ts.x(7, 4)
    O, RX, EX = AF, 24, 72
    for k in range(4):
        for x in range(1, 4):
            a(f"ds_read_b128 v[{RX+16*(x-1)+4*k}:{RX+16*(x-1)+4*k+3}], v{x} offset:{1024*k}")
    for k in range(4):
        rr = range(4 * k, 4 * k + 4)
        a(f"s_waitcnt lgkmcnt({9 - 3*k})")
        for r in rr: a(f"v_add_f32 v{O+r}, v{O+r}, v{RX+r}")
        for r in rr: a(f"v_add_f32 v{RX+16+r}, v{RX+16+r}, v{RX+32+r}")
        for r in rr: a(f"v_add_f32 v{O+r}, v{O+r}, v{RX+16+r}")
        for r in rr: a(f"v_mul_f32 v{O+r}, v{O+r}, v{STT+2*r}")
        for r in rr: a(f"v_mul_f32 v{EX+r}, s13, v{O+r}")
        for r in rr: a(f"v_exp_f32 v{EX+r}, v{EX+r}")
    ts.x(7, 5)
    for k in range(4):
        rr = range(4 * k, 4 * k + 4)
        for r in rr: a(f"v_add_f32 v{EX+r}, 1.0, v{EX+r}")
        for r in rr: a(f"v_rcp_f32 v{EX+r}, v{EX+r}")
        for r in rr: a(f"v_mul_f32 v{O+r}, v{O+r}, v{EX+r}")
        a(f"ds_write_b128 v4, v[{O+4*k}:{O+4*k+3}] offset:{1024*k}")
    a("s_waitcnt lgkmcnt(0)")
    ts(12)
    a("s_barrier")
    ts.dump(24, 25, 0)
    a("s_endpgm")

HEADER = """; Fused S5-SSM + ReGLU block, one launch: 224 main workgroups (4 MFMA waves + 4 loader waves) + 32 helper workgroups.
; @launch grid=(256,1,1) block=(512,1,1) lds=163840
.amdgcn_target "amdgcn-amd-amdhsa--gfx950"
.text
.globl {k}
.p2align 8
.type {k},@function
{k}:
"""
FOOTER = """.section .rodata,"a"
.p2align 6
.amdhsa_kernel {k}
  .amdhsa_next_free_vgpr 256
  .amdhsa_next_free_sgpr 102
  .amdhsa_accum_offset 256
  .amdhsa_group_segment_fixed_size 0
  .amdhsa_kernarg_size 128
  .amdhsa_user_sgpr_count 2
  .amdhsa_user_sgpr_kernarg_segment_ptr 1
  .amdhsa_system_sgpr_workgroup_id_x 1
  .amdhsa_float_denorm_mode_32 3
.end_amdhsa_kernel
"""

def generate(cfg):
    WSOFF[0] = cfg.wsoff << 20
    a = Asm()
    ts = TS(a, cfg)
    gen_entry(a, cfg, ts)
    gen_loader(a, cfg, ts)
    gen_consumer(a, cfg, ts)
    gen_helper(a, cfg, ts)
    a.label("L_exit")
    a("s_endpgm")
    return HEADER.format(k=KNAME) + f"; wsoff={cfg.wsoff}\n" + a.text() + FOOTER.format(k=KNAME)

if __name__ == "__main__":
    cfg = Cfg()
    out = sys.argv[1]
    for kv in sys.argv[2:]:
        k, v = kv.split("=")
        setattr(cfg, k, int(v))
    open(out, "w").write(generate(cfg))
```

```python
import sys, os
sys.path.insert(0, os.path.dirname(os.path.abspath(__file__)))
from asmlib import Asm, VM

KNAME = "recurrent_scan__ssm_conv_s5__glu_gated_reglu__prompt_kernel"

R = [0, 53248, 106496]
MISC = 159744
OFF_WG, OFF_WU, OFF_BB = 32768, 40960, 49152
CP_L = R[1] + 49152
STATS_L = MISC
C_L = MISC + 2048
CNT_L = MISC + 2688
ST2_L = MISC + 2720
AGG_L = MISC + 3232
Q = 12288

RT_BYTES = 172032
HALF_BYTES = 86016
WS_STATS = 0xB00000
WS_AGG = WS_STATS + 0x4000
WS_FLAG = WS_AGG + 0x8000
INIT_N = 32
WS_CP = 0xB20000
WS_TS = 0xC00000
WS_SIZE = 0x1000000
SPIN_MAX = 1 << 20

S_WAVE, S_XCD, S_SLOT, S_MT, S_NS, S_M64, S_NT, S_W4 = 3, 4, 5, 6, 7, 8, 9, 10
P_X, P_LRE, P_LIM, P_BRE, P_BIM, P_CRE, P_CIM, P_LDT, P_DSK, P_BX, P_WG, P_WU, P_WD, P_OUT, P_DBG, P_WS = [16 + 2 * i for i in range(16)]
SRD_X, SRD_A, SRD_B, SRD_C, SRD_WS, SRD_E = 48, 52, 56, 60, 64, 68
TS0 = 76

LOG2E = 0x3fb8aa3b
LOG2E_LO = 0x32a57060
LN2 = 0x3f317218
INV2PI = 0x3e22f983

class Cfg:
    ts = 0
    tsset = 0
    pd = 16
    perm = 1
    rot = 2
    ssm_early = 0
    schedn = 0
    polx = 0
    apol = 1
    noa = 0
    nob = 0
    rdstart = 1
    polw = 0
    winn = 3
    loc = 1
    ws = 11004330002
    ipos = 0
    gate = 2
    c0n = 8
    agpos = 0
    c0early = 0
    hord = 1
    clate = 2
    wl = 1
    fper = 6
    c2u = 2
    probe = 0
    pwho = 0
    ponly = -1
    pmask = 0xffff
    wsoff = 0
    kwin = 2
    wprio = 0
    hdelay = 0
    eprio = 0
    c2late = 0
    cpf = 2
    padto = 0
    nocs = 0
    r2pre = 1
    tlb = 0
    bd = 4
    pollw = 24
    c1 = 12
    c2 = 16
    f2b = 1
    wfirst = 1
    @property
    def win(self):
        W = lambda a, b: [f"w{p}" for p in range(a, b)]
        if self.ws:
            m, n1, n2, n3, n4, n5, n6, cp, cs, ep = [int(c) for c in str(self.ws)[1:]]
            assert n1 + n2 + n3 + n4 + n5 + n6 == 10
            pos = [12]
            def take(n):
                r = W(pos[0], pos[0] + n); pos[0] += n; return r
            w = {}
            if m == 2: w[-1] = ["m", "s1:0-3"]; w[0] = ["cs0", "s1:3-13", "k", "s2:0-10"]; w[1] = ["cs1", "s2:10-13", "s3"]
            else: w[-1] = ["s1:0-6"]; w[0] = ["cs0", "s1:6-13", "k", "s2"] + (["m"] if m == 1 else []); w[1] = ["cs1"] + (["m"] if m == 3 else []) + ["s3"]
            w[1] += take(n1)
            w[2] = ["cs2", "s4"] + take(n2)
            w[3] = (["cs3", "s5:0-7", "cs4", "s5:7-13"] if cs == 1 else ["cs3", "s5"]) + take(n3)
            w[4] = {0: ["cs4", "init", "s6:0-7", "cs5", "s6:7-13"], 1: ["init", "s6:0-4", "cs5", "s6:4-13"], 2: ["cs4", "init", "s6"]}[cs] + take(n4)
            w[5] = (["cs5"] if cs == 2 else []) + ["fetch"] + W(0, 4) + ["cs6"] + W(4, 6) + take(n5) + {0: ["c3"], 1: [], 2: ["c3", "c1"], 3: ["c1"]}[cp] + ["put"]
            w[6] = W(6, 12) + take(n6) + {0: ["c1"], 1: ["c3", "c1"], 2: [], 3: ["c3"]}[cp]
            w[ep].append("e")
            if self.ipos:
                w[4].remove("init"); w[4].append("init")
                w[5].remove("fetch"); w[5].remove("put")
                w[5].insert(w[5].index("cs6") + 1, "fetch")
                w[6].insert(2, "put")
            return w
        return [
            {-1: ["s1:0-6"], 0: ["cs0", "s1:6-13", "k", "s2:0-9"], 1: ["cs1", "s2:9-13", "s3", "e"], 2: ["cs2", "s4"] + W(12, 14), 3: ["cs3", "s5"] + W(14, 17),
             4: ["cs4", "init", "s6:0-7", "cs5", "s6:7-13", "w17"], 5: ["fetch"] + W(0, 4) + ["cs6"] + W(4, 6) + W(18, 20) + ["put"], 6: W(6, 12) + W(20, 22)},
            {-1: ["s1:0-6"], 0: ["cs0", "s1:6-13", "k", "s2:0-9"], 1: ["cs1", "s2:9-13", "s3", "e"], 2: ["cs2", "s4"] + W(12, 15), 3: ["cs3", "s5"] + W(15, 18),
             4: ["cs4", "init", "s6"] + W(18, 20), 5: ["cs5", "fetch"] + W(0, 3) + ["cs6"] + W(3, 6) + ["put"], 6: W(6, 12) + W(20, 22)},
            {-1: ["s1:0-6"], 0: ["cs0", "s1:6-13", "k", "s2:0-9"], 1: ["cs1", "s2:9-13", "s3", "e"], 2: ["cs2", "s4"] + W(12, 15), 3: ["cs3", "s5:0-7", "cs4", "s5:7-13", "w15"],
             4: ["init", "s6:0-4", "cs5", "s6:4-13"] + W(16, 19), 5: ["fetch"] + W(0, 4) + ["cs6"] + W(4, 6) + W(19, 22) + ["put"], 6: W(6, 12)},
            {-1: ["s1:0-6"], 0: ["cs0", "s1:6-13", "k", "s2:0-9"], 1: ["cs1", "s2:9-13", "s3", "e"], 2: ["cs2", "s4"] + W(12, 15), 3: ["cs3", "s5"] + W(15, 18),
             4: ["cs4", "init", "s6:0-7", "cs5", "s6:7-13", "w18", "w19"], 5: ["fetch"] + W(0, 4) + ["cs6"] + W(4, 6) + W(20, 22) + ["c3", "put"], 6: W(6, 12) + ["c1"]},
            {-1: ["s1:0-6"], 0: ["cs0", "s1:6-13", "k", "s2:0-9"], 1: ["cs1", "s2:9-13", "s3", "e"], 2: ["cs2", "s4"] + W(12, 14), 3: ["cs3", "s5"] + W(14, 17),
             4: ["cs4", "init", "s6:0-7", "cs5", "s6:7-13", "w17"], 5: ["fetch"] + W(0, 4) + ["cs6"] + W(4, 6) + W(18, 20) + ["put"], 6: W(6, 12) + W(20, 22) + ["c3"]},
            {-1: ["s1:0-6"], 0: ["cs0", "s1:6-13", "k", "s2:0-9"], 1: ["cs1", "s2:9-13", "s3", "e"], 2: ["cs2", "s4"] + W(12, 15), 3: ["cs3", "s5"] + W(15, 19),
             4: ["cs4", "init", "s6:0-7", "cs5", "s6:7-13"] + W(19, 22), 5: ["fetch"] + W(0, 4) + ["cs6"] + W(4, 6) + ["c1", "put"], 6: W(6, 12) + ["c3"]},
            {-1: ["s1:0-6"], 0: ["cs0", "s1:6-13", "k", "s2"], 1: ["cs1", "s3", "e"] + W(12, 14), 2: ["cs2", "s4"] + W(14, 17), 3: ["cs3", "s5"] + W(17, 20),
             4: ["cs4", "init", "s6:0-7", "cs5", "s6:7-13"] + W(20, 22), 5: ["fetch"] + W(0, 4) + ["cs6"] + W(4, 6) + ["c1", "put"], 6: W(6, 12) + ["c3"]},
            {-1: ["s1:0-6"], 0: ["cs0", "s1:6-13", "k", "s2:0-9"], 1: ["cs1", "s2:9-13", "s3", "e"], 2: ["cs2", "s4"] + W(12, 15), 3: ["cs3", "s5:0-7", "cs4", "s5:7-13"] + W(15, 18),
             4: ["init", "s6:0-4", "cs5", "s6:4-13"] + W(18, 22), 5: ["fetch"] + W(0, 4) + ["cs6"] + W(4, 6) + ["c1", "put"], 6: W(6, 12) + ["c3"]},
            {-1: ["s1:0-6"], 0: ["cs0", "s1:6-13", "k", "s2:0-9"], 1: ["cs1", "s2:9-13", "s3", "e"], 2: ["cs2", "s4"], 3: ["cs3", "s5"] + W(12, 16),
             4: ["cs4", "init", "s6:0-7", "cs5", "s6:7-13"] + W(16, 19), 5: ["fetch"] + W(0, 4) + ["cs6"] + W(4, 6) + W(19, 22) + ["c3", "put"], 6: W(6, 12) + ["c1"]},
            {-1: ["s1:0-6"], 0: ["cs0", "s1:6-13", "k", "s2"], 1: ["cs1", "s3", "e"], 2: ["cs2", "s4"] + W(12, 14), 3: ["cs3", "s5"] + W(14, 18),
             4: ["cs4", "init", "s6:0-7", "cs5", "s6:7-13", "w18", "w19"], 5: ["fetch"] + W(0, 4) + ["cs6"] + W(4, 6) + W(20, 22) + ["c3", "put"], 6: W(6, 12) + ["c1"]},
            {-1: ["s1:0-3"], 0: ["cs0", "s1:3-13", "k", "s2:0-8"], 1: ["cs1", "s2:8-13", "s3"], 2: ["cs2", "s4", "e"] + W(12, 14), 3: ["cs3", "s5"] + W(14, 18),
             4: ["cs4", "init", "s6:0-7", "cs5", "s6:7-13", "w18", "w19"], 5: ["fetch"] + W(0, 4) + ["cs6"] + W(4, 6) + W(20, 22) + ["c3", "put"], 6: W(6, 12) + ["c1"]},
            {-1: ["s1:0-6"], 0: ["cs0", "s1:6-13", "k", "s2:0-9"], 1: ["cs1", "s2:9-13", "s3", "e"], 2: ["cs2", "s4"] + W(12, 15), 3: ["cs3", "init", "s5"] + W(15, 18),
             4: ["cs4", "fetch", "s6:0-7", "cs5", "s6:7-13", "w18", "w19"], 5: ["put"] + W(0, 4) + ["cs6"] + W(4, 6) + W(20, 22) + ["c3"], 6: W(6, 12) + ["c1"]},
            {-1: ["m", "s1:0-3"], 0: ["cs0", "s1:3-13", "k", "s2:0-8"], 1: ["cs1", "s2:8-13", "s3", "e"], 2: ["cs2", "s4"] + W(12, 15), 3: ["cs3", "s5"] + W(15, 18),
             4: ["cs4", "init", "s6:0-7", "cs5", "s6:7-13", "w18", "w19"], 5: ["fetch"] + W(0, 4) + ["cs6"] + W(4, 6) + W(20, 22) + ["c3", "put"], 6: W(6, 12) + ["c1"]},
            {-1: ["s1:0-6"], 0: ["cs0", "s1:6-13", "m", "k", "s2:0-9"], 1: ["cs1", "s2:9-13", "s3", "e"], 2: ["cs2", "s4"] + W(12, 15), 3: ["cs3", "s5"] + W(15, 18),
             4: ["cs4", "init", "s6:0-7", "cs5", "s6:7-13", "w18", "w19"], 5: ["fetch"] + W(0, 4) + ["cs6"] + W(4, 6) + W(20, 22) + ["c3", "put"], 6: W(6, 12) + ["c1"]},
            {-1: ["m"], 0: ["cs0", "s1", "k", "s2:0-6"], 1: ["cs1", "s2:6-13", "s3"], 2: ["cs2", "s4", "e"] + W(12, 14), 3: ["cs3", "s5"] + W(14, 18),
             4: ["cs4", "init", "s6:0-7", "cs5", "s6:7-13", "w18", "w19"], 5: ["fetch"] + W(0, 4) + ["cs6"] + W(4, 6) + W(20, 22) + ["c3", "put"], 6: W(6, 12) + ["c1"]},
            {-1: ["s1:0-6"], 0: ["cs0", "s1:6-13", "k", "s2"], 1: ["cs1", "s3"], 2: ["cs2", "s4", "e"], 3: ["cs3", "s5"] + W(12, 16),
             4: ["cs4", "init", "s6:0-7", "cs5", "s6:7-13"] + W(16, 19), 5: ["fetch"] + W(0, 4) + ["cs6"] + W(4, 6) + W(19, 22) + ["c3", "put"], 6: W(6, 12) + ["c1"]},
            {-1: ["s1:0-6"], 0: ["cs0", "s1:6-13", "k", "s2", "m"], 1: ["cs1", "s3"], 2: ["cs2", "s4", "e"], 3: ["cs3", "s5"] + W(12, 16),
             4: ["cs4", "init", "s6:0-7", "cs5", "s6:7-13"] + W(16, 19), 5: ["fetch"] + W(0, 4) + ["cs6"] + W(4, 6) + W(19, 22) + ["c3", "put"], 6: W(6, 12) + ["c1"]},
            {-1: ["m", "s1:0-3"], 0: ["cs0", "s1:3-13", "k", "s2:0-10"], 1: ["cs1", "s2:10-13", "s3"], 2: ["cs2", "s4", "e"], 3: ["cs3", "s5"] + W(12, 16),
             4: ["cs4", "init", "s6:0-7", "cs5", "s6:7-13"] + W(16, 19), 5: ["fetch"] + W(0, 4) + ["cs6"] + W(4, 6) + W(19, 22) + ["c3", "put"], 6: W(6, 12) + ["c1"]},
            {-1: ["s1:0-6"], 0: ["cs0", "s1:6-13", "k", "s2"], 1: ["cs1", "s3"], 2: ["cs2", "s4:0-6"], 3: ["cs3", "s4:6-13", "s5", "e"],
             4: ["cs4", "init", "s6"] + W(12, 16), 5: ["cs5", "fetch"] + W(16, 20) + ["cs6"] + W(0, 6) + ["put"], 6: W(6, 12) + W(20, 22) + ["c3", "c1"]},
            {-1: ["s1"], 0: ["cs0", "k", "s2", "e"], 1: ["cs1", "s3"], 2: ["cs2", "s4", "w12"], 3: ["cs3", "s5"] + W(13, 16),
             4: ["cs4", "init", "s6:0-7", "cs5", "s6:7-13"] + W(16, 19), 5: ["fetch"] + W(0, 4) + ["cs6"] + W(4, 6) + W(19, 22) + ["c3", "put"], 6: W(6, 12) + ["c1"]},
        ][self.winn]
    nw1 = 6
    flagr = -1
    xs = 1
    psleep = 2
    fsleep = 2
    ttper = 2
    f2n = 9
    fpre = 1
    a0 = 18
    sprio = 0
    ksig = 12
    opol = 1
    lprio = 3
    w12early = 0
    slab = 0
    spol = 1
    fpol = 1
    pollr = 4
    nw2 = 16
    thr = 15
    hpf = 2
    ky = 2
    @property
    def perms(self):
        return {
            0: [[0, 1, 2, 3, 4, 5, 6]],
            1: [[0, 1, 2, 3, 4, 5, 6], [1, 2, 0, 4, 5, 3, 6], [2, 0, 1, 5, 3, 4, 6]],
            2: [[0, 1, 2, 3, 4, 5, 6], [1, 0, 3, 2, 5, 4, 6]],
            3: [[0, 1, 2, 3, 4, 5, 6], [1, 0, 4, 5, 6, 2, 3], [0, 1, 6, 2, 3, 4, 5]],
            4: [[0, 1, 2, 3, 4, 5, 6], [1, 2, 0, 4, 6, 3, 5], [2, 0, 1, 5, 6, 3, 4]],
            6: [[0, 1, 2, 3, 4, 5, 6], [1, 2, 0, 3, 4, 5, 6], [2, 0, 1, 3, 4, 5, 6]],
            5: [[0, 1, 2, 3, 4, 5, 6], [1, 2, 3, 0, 5, 6, 4], [2, 3, 0, 1, 6, 4, 5], [3, 0, 1, 2, 4, 5, 6]],
        }[self.perm]

WSOFF = [0]
def srd(a, d, ptr, nbytes):
    if ptr == P_WS and WSOFF[0]:
        a(f"s_add_u32 s{ptr}, s{ptr}, {WSOFF[0]:#x}")
        a(f"s_addc_u32 s{ptr+1}, s{ptr+1}, 0")
    a(f"s_mov_b32 s{d}, s{ptr}")
    a(f"s_and_b32 s{d+1}, s{ptr+1}, 0xffff")
    a(f"s_mov_b32 s{d+2}, {nbytes:#x}")
    a(f"s_mov_b32 s{d+3}, 0x20000")

def srd_sel(a, d, ptr1, ptr0, nbytes):
    a(f"s_cselect_b32 s{d}, s{ptr1}, s{ptr0}")
    a(f"s_cselect_b32 s{d+1}, s{ptr1+1}, s{ptr0+1}")
    a(f"s_and_b32 s{d+1}, s{d+1}, 0xffff")
    a(f"s_mov_b32 s{d+2}, {nbytes:#x}")
    a(f"s_mov_b32 s{d+3}, 0x20000")

class TS:
    def __init__(self, a, cfg):
        self.a, self.on, self.n, self.set = a, cfg.ts, 0, cfg.tsset
        self.cfg = cfg
    def x(self, setno, i):
        if self.on and self.set == setno: self.emit(i)
    def __call__(self, i):
        if self.on and (self.set == 0 or i in (0, 12)): self.emit(i)
    def emit(self, i):
        if self.on == 5 and i not in (0, self.cfg.probe): return
        if self.on:
            assert i < 13
            self.a(f"{'s_memrealtime' if self.on != 2 else 's_memtime'} s[{TS0+2*i}:{TS0+2*i+1}]")
    def init(self):
        if self.on:
            for i in range(1, 13): self.a(f"s_mov_b32 s{TS0+2*i}, 0")
    def dump(self, vt, vt2, who=2):
        if not self.on: return
        a = self.a
        if self.on == 5:
            if who != self.cfg.pwho: return
            lab = a.newlabel("L_probe")
            if self.cfg.ponly >= 0:
                a(f"s_and_b32 s11, s2, {self.cfg.pmask}")
                a(f"s_cmp_lg_u32 s11, {self.cfg.ponly}")
                a(f"s_cbranch_scc1 {lab}_x")
            p = TS0 + 2 * self.cfg.probe
            a("s_waitcnt lgkmcnt(0)")
            a(f"s_sub_u32 s11, s{p}, s{TS0}")
            a(f"s_cmp_eq_u32 s{p}, 0")
            a("s_cselect_b32 s11, 0, s11")
            a("s_lshl_b32 s11, s11, 2")
            a("s_add_u32 s11, s11, 3000")
            a.label(lab)
            a("s_memrealtime s[12:13]")
            a("s_waitcnt lgkmcnt(0)")
            a(f"s_sub_u32 s12, s12, s{TS0}")
            a("s_cmp_lt_u32 s12, s11")
            a(f"s_cbranch_scc1 {lab}")
            a.label(lab + "_x")
            return
        if self.on == 3:
            a("s_waitcnt vmcnt(0) lgkmcnt(0)")
            lab = a.newlabel("L_nod")
            a(f"s_cmp_eq_u32 s{TS0+24}, 0")
            a(f"s_cbranch_scc1 {lab}")
            a(f"s_cmp_lg_u32 s{S_WAVE}, 0")
            a(f"s_cbranch_scc1 {lab}")
            a("s_mov_b64 exec, 1")
            a(f"v_mov_b32 v{vt2}, 0")
            a(f"s_not_b32 s11, s{TS0}")
            a(f"v_mov_b32 v{vt}, s11")
            a(f"global_atomic_umax v{vt2}, v{vt}, s[{P_DBG}:{P_DBG+1}] offset:4 sc1")
            for n, i in enumerate([0, 1, 2, 3, 4, 5, 6, 7, 8, 9, 10, 11, 12]):
                a("s_waitcnt vmcnt(0)")
                a(f"v_mov_b32 v{vt}, s{TS0+2*i}")
                a(f"global_atomic_umax v{vt2}, v{vt}, s[{P_DBG}:{P_DBG+1}] offset:{8+4*n} sc1")
            a("s_waitcnt vmcnt(0)")
            a.label(lab)
            return
        a("s_waitcnt vmcnt(0) lgkmcnt(0)")
        a(f"s_lshl_b32 s11, s2, 9")
        a(f"s_lshl_b32 s12, s{S_WAVE}, 6")
        a("s_add_u32 s11, s11, s12")
        a(f"s_add_u32 s11, s11, {WS_TS:#x}")
        a(f"v_mov_b32 v{vt2}, s11")
        for i in range(13):
            a(f"v_mov_b32 v{vt}, s{TS0+2*i}")
            a(f"buffer_store_dword v{vt}, v{vt2}, s[{SRD_WS}:{SRD_WS+3}], 0 offen offset:{4*i}")
        a("s_waitcnt vmcnt(0)")

def round_bf16(a, dst, src):
    a(f"v_cvt_pk_bf16_f32 v{dst}, v{src}, v{src}")
    a(f"v_lshlrev_b32 v{dst}, 16, v{dst}")

def exp_acc(a, dst, x, t0, t1):
    a(f"s_mov_b32 s36, {LOG2E:#x}")
    a(f"s_mov_b32 s37, {LOG2E_LO:#x}")
    a(f"v_mul_f32 v{t0}, s36, v{x}")
    a(f"v_fma_f32 v{t1}, v{x}, s36, -v{t0}")
    a(f"v_fma_f32 v{t1}, v{x}, s37, v{t1}")
    a(f"v_mul_f32 v{t1}, {LN2:#x}, v{t1}")
    a(f"v_exp_f32 v{dst}, v{t0}")
    a(f"v_fma_f32 v{dst}, v{dst}, v{t1}, v{dst}")

def csq(a, dr, di, sr, si, t):
    a(f"v_mul_f32 v{t}, v{si}, v{si}")
    a(f"v_add_f32 v{di}, v{si}, v{si}")
    a(f"v_mul_f32 v{di}, v{di}, v{sr}")
    a(f"v_fma_f32 v{dr}, v{sr}, v{sr}, -v{t}")

def cmul(a, dr, di, ar, ai, br, bi):
    a(f"v_mul_f32 v{dr}, v{ar}, v{br}")
    a(f"v_mul_f32 v{di}, v{ar}, v{bi}")
    a(f"v_fma_f32 v{dr}, -v{ai}, v{bi}, v{dr}")
    a(f"v_fma_f32 v{di}, v{ai}, v{br}, v{di}")

def ssm_const_load(a, vm, t):
    a(f"v_and_b32 v{t+3}, 15, v0")
    a(f"s_lshl_b32 s11, s{S_NS}, 4")
    a(f"v_add_lshl_u32 v{t+3}, v{t+3}, s11, 1")
    vm.issue('sc', f"global_load_ushort v{t}, v{t+3}, s[{P_LRE}:{P_LRE+1}]")
    vm.issue('sc', f"global_load_ushort v{t+1}, v{t+3}, s[{P_LIM}:{P_LIM+1}]")
    vm.issue('sc', f"global_load_ushort v{t+2}, v{t+3}, s[{P_LDT}:{P_LDT+1}]")

def ssm_const_calc(a, t, lr, li, cr=None, ci=None):
    for k in range(3): a(f"v_lshlrev_b32 v{t+k}, 16, v{t+k}")
    exp_acc(a, t + 3, t + 2, t + 4, t + 5)
    round_bf16(a, t + 2, t + 3)
    a(f"v_mul_f32 v{t+3}, v{t+2}, v{t}")
    a(f"v_mul_f32 v{t+6}, v{t+2}, v{t+1}")
    exp_acc(a, t + 7, t + 3, t + 4, t + 5)
    a(f"v_mul_f32 v{t+6}, {INV2PI:#x}, v{t+6}")
    a(f"v_rndne_f32 v{t+4}, v{t+6}")
    a(f"v_sub_f32 v{t+6}, v{t+6}, v{t+4}")
    a(f"v_cos_f32 v{t+4}, v{t+6}")
    a(f"v_sin_f32 v{t+5}, v{t+6}")
    a(f"v_mul_f32 v{lr}, v{t+7}, v{t+4}")
    a(f"v_mul_f32 v{li}, v{t+7}, v{t+5}")
    if cr is not None:
        a(f"v_add_f32 v{t+3}, -1.0, v{lr}")
        a(f"v_mul_f32 v{t+4}, v{t}, v{t}")
        a(f"v_fma_f32 v{t+4}, v{t+1}, v{t+1}, v{t+4}")
        a(f"v_rcp_f32 v{t+4}, v{t+4}")
        a(f"v_mul_f32 v{cr}, v{t+3}, v{t}")
        a(f"v_fma_f32 v{cr}, v{li}, v{t+1}, v{cr}")
        a(f"v_mul_f32 v{ci}, v{li}, v{t}")
        a(f"v_fma_f32 v{ci}, -v{t+3}, v{t+1}, v{ci}")
        a(f"v_add_f32 v{t+4}, v{t+4}, v{t+4}")
        a(f"v_mul_f32 v{cr}, v{cr}, v{t+4}")
        a(f"v_mul_f32 v{ci}, v{ci}, v{t+4}")

def gen_entry(a, cfg, ts):
    a("s_cmp_ge_u32 s2, 256")
    a("s_cbranch_scc1 L_exit")
    if cfg.padto: a("s_memrealtime s[100:101]")
    ts(0)
    a("s_load_dwordx16 s[16:31], s[0:1], 0")
    a("s_load_dwordx16 s[32:47], s[0:1], 64")
    a("v_lshrrev_b32 v1, 6, v0")
    a("v_and_b32 v0, 63, v0")
    a(f"v_readfirstlane_b32 s{S_WAVE}, v1")
    a(f"s_and_b32 s{S_XCD}, s2, 7")
    a(f"s_lshr_b32 s{S_SLOT}, s2, 3")
    if cfg.cpf == 2:
        a(f"s_cmp_lg_u32 s{S_WAVE}, 0")
        a("s_cbranch_scc1 L_nocpf")
        a("s_getpc_b64 s[12:13]")
        a.label("L_pc0")
        a(f"s_sub_u32 s12, s12, L_pc0-{KNAME}")
        a("s_subb_u32 s13, s13, 0")
        a(f"s_lshl_b32 s11, s{S_SLOT}, 10")
        a("v_lshl_add_u32 v38, v0, 4, s11")
        a(f"v_min_u32 v38, L_exit-{KNAME}, v38")
        a("global_load_dword v39, v38, s[12:13]")
        a.label("L_nocpf")
    a(f"s_and_b32 s11, s{S_SLOT}, 3")
    a(f"s_lshr_b32 s{S_NT}, s{S_SLOT}, 2")
    a(f"s_and_b32 s12, s{S_XCD}, 1")
    a(f"s_lshl_b32 s12, s12, 2")
    a(f"s_add_u32 s{S_MT}, s12, s11")
    a(f"s_lshr_b32 s12, s{S_XCD}, 1")
    a(f"s_mul_i32 s12, s12, 7")
    a(f"s_add_u32 s{S_NS}, s12, s{S_NT}")
    if cfg.slab:
        a(f"s_mov_b32 s{S_MT}, s{S_XCD}")
        a(f"s_mov_b32 s{S_NS}, s{S_SLOT}")
    if cfg.loc:
        a(f"s_and_b32 s12, s{S_XCD}, 1")
        a("s_lshl_b32 s12, s12, 2")
        a(f"s_lshr_b32 s13, s{S_XCD}, 1")
        a("s_add_u32 s12, s12, s13")
        a("s_lshl_b32 s12, s12, 2")
    else:
        a(f"s_lshl_b32 s12, s{S_XCD}, 2")
    a(f"s_add_u32 s{S_M64}, s12, s11")
    a(f"s_and_b32 s{S_W4}, s{S_WAVE}, 3")
    ts.init()
    a(f"s_cmp_ge_u32 s{S_SLOT}, 28")
    a("s_cbranch_scc1 L_helper")
    a(f"s_cmp_lt_u32 s{S_WAVE}, 4")
    a("s_cbranch_scc1 L_consumer")

def gen_helper(a, cfg, ts):
    a.label("L_helper")
    vm = VM(a)
    a(f"s_sub_u32 s73, s{S_SLOT}, 28")
    a(f"s_lshl_b32 s11, s73, 3")
    a(f"s_add_u32 s72, s11, s{S_XCD}")
    if cfg.loc: a(f"s_mov_b32 s72, s{S_M64}")
    HC = 65536
    a(f"v_mov_b32 v200, {HC}")
    a("v_mov_b32 v201, 0")
    a("ds_write_b32 v200, v201")
    def h_open():
        a("s_waitcnt lgkmcnt(0)")
        a("s_barrier")
    def h_signal(tag):
        a("v_mov_b32 v202, 1")
        a("s_mov_b64 exec, 1")
        a("ds_add_rtn_u32 v203, v200, v202")
        a("s_waitcnt lgkmcnt(0)")
        a("v_readfirstlane_b32 s11, v203")
        a("s_cmp_lg_u32 s11, 7")
        a(f"s_cbranch_scc1 L_h_ns{tag}")
        a(f"global_atomic_add v201, v202, s[{P_DBG}:{P_DBG+1}] sc1")
        a.label(f"L_h_ns{tag}")
        a("s_mov_b64 exec, -1")
    a(f"s_cmp_ge_u32 s{S_WAVE}, 4")
    a("s_cbranch_scc1 L_h_pf")
    a(f"s_lshl_b32 s11, s72, 6")
    a(f"s_lshl_b32 s12, s{S_WAVE}, 4")
    a(f"s_add_u32 s11, s11, s12")
    a("v_lshrrev_b32 v2, 3, v0")
    a("v_add_u32 v2, s11, v2")
    a("v_mul_u32_u24 v3, 896, v2")
    a("v_and_b32 v4, 7, v0")
    a("v_lshl_add_u32 v3, v4, 4, v3")
    a("s_waitcnt lgkmcnt(0)")
    srd(a, SRD_X, P_X, 2048 * 896)
    srd(a, SRD_WS, P_WS, WS_SIZE)
    a(f"s_mov_b32 s11, {8*896}")
    for ps in range(2):
        for j in range(7):
            so = "0" if ps == 0 else "s11"
            vm.issue(('x', ps), f"buffer_load_dwordx4 v[{112+28*ps+4*j}:{115+28*ps+4*j}], v3, s[{SRD_X}:{SRD_X+3}], {so} offen offset:{128*j}")
    a(f"s_cmp_gt_u32 s{S_WAVE}, 1")
    a("s_cbranch_scc1 L_h_noreset")
    a(f"s_cmp_eq_u32 s{S_WAVE}, 0")
    a("s_cselect_b32 s11, -1, 0")
    a("s_mov_b32 s12, 1024")
    a("s_cmov_b32 s12, 896")
    a(f"s_mov_b32 s13, {WS_FLAG:#x}")
    a(f"s_cmov_b32 s13, {WS_AGG:#x}")
    a("s_mul_i32 s14, s12, s72")
    a("s_add_u32 s13, s13, s14")
    for k in range(4): a(f"v_mov_b32 v{8+k}, s11")
    a("v_lshlrev_b32 v12, 4, v0")
    a("v_cmp_gt_u32 vcc, s12, v12")
    a("s_and_saveexec_b64 s[14:15], vcc")
    a(f"buffer_store_dwordx4 v[8:11], v12, s[{SRD_WS}:{SRD_WS+3}], s13 offen sc1")
    a("s_mov_b64 exec, s[14:15]")
    a.label("L_h_noreset")
    h_open()
    a("v_lshlrev_b32 v2, 3, v2")
    a("s_mov_b32 s12, 0xffff0000")
    def fin(dst):
        a("v_add_f32 v8, v8, v9")
        a("v_add_f32 v10, v10, v11")
        a(f"v_add_f32 v{dst}, v8, v10")
        a(f"v_add_f32_dpp v{dst}, v{dst}, v{dst} quad_perm:[1,0,3,2] row_mask:0xf bank_mask:0xf")
        a(f"v_add_f32_dpp v{dst}, v{dst}, v{dst} quad_perm:[2,3,0,1] row_mask:0xf bank_mask:0xf")
        a(f"v_add_f32_dpp v{dst}, v{dst}, v{dst} row_half_mirror row_mask:0xf bank_mask:0xf")
        a(f"v_mul_f32 v{dst}, 0x3b124925, v{dst}")
    for ps in range(2):
        vm.wait(('x', ps))
        if cfg.hdelay == 2 + ps: a("s_barrier")
        src = 112 + 28 * ps
        for k in range(28):
            a(f"v_lshlrev_b32 v{48+2*k}, 16, v{src+k}")
            a(f"v_and_b32 v{49+2*k}, s12, v{src+k}")
        a("v_pk_add_f32 v[8:9], v[48:49], v[52:53]")
        a("v_pk_add_f32 v[10:11], v[50:51], v[54:55]")
        for k in range(4, 28): a(f"v_pk_add_f32 v[{8+2*(k%2)}:{9+2*(k%2)}], v[{8+2*(k%2)}:{9+2*(k%2)}], v[{48+2*k}:{49+2*k}]")
        fin(12)
        for k in range(28): a(f"v_pk_add_f32 v[{48+2*k}:{49+2*k}], v[{48+2*k}:{49+2*k}], v[12:13] op_sel_hi:[1,0] neg_lo:[0,1] neg_hi:[0,1]")
        for k in range(2): a(f"v_pk_mul_f32 v[{8+2*k}:{9+2*k}], v[{48+2*k}:{49+2*k}], v[{48+2*k}:{49+2*k}]")
        for k in range(2, 28): a(f"v_pk_fma_f32 v[{8+2*(k%2)}:{9+2*(k%2)}], v[{48+2*k}:{49+2*k}], v[{48+2*k}:{49+2*k}], v[{8+2*(k%2)}:{9+2*(k%2)}]")
        fin(13)
        o = 14 + 2 * ps
        round_bf16(a, o, 12)
        round_bf16(a, 13, 13)
        a("v_add_f32 v13, 0x3727c5ac, v13")
        round_bf16(a, 13, 13)
        a("v_sqrt_f32 v13, v13")
        round_bf16(a, 13, 13)
        a(f"v_rcp_f32 v{o+1}, v13")
        a("v_cmp_eq_u32 vcc, 0, v4")
        a("s_and_saveexec_b64 s[14:15], vcc")
        a(f"s_mov_b32 s11, {WS_STATS:#x}")
        vm.issue('st', f"buffer_store_dwordx2 v[{o}:{o+1}], v2, s[{SRD_WS}:{SRD_WS+3}], s11 offen offset:{64*ps} sc1")
        a("s_mov_b64 exec, s[14:15]")
    a("s_waitcnt vmcnt(0)")
    h_signal("a")
    ts(1)
    ts.x(3, 1)
    ts.dump(8, 9)
    a("s_endpgm")
    a.label("L_h_pf")
    a("v_lshlrev_b32 v2, 4, v0")
    a(f"s_lshl_b32 s11, s{S_W4}, 10")
    a("v_add_u32 v2, s11, v2")
    if cfg.cpf == 1:
        a("s_getpc_b64 s[60:61]")
        a.label("L_pc")
        a(f"s_sub_u32 s60, s60, L_pc-{KNAME}")
        a("s_subb_u32 s61, s61, 0")
        a("s_lshl_b32 s11, s73, 12")
        a("v_add_u32 v3, s11, v2")
        for k in range(2):
            a(f"v_min_u32 v4, L_exit-{KNAME}-12, v3")
            a(f"global_load_dwordx4 v[24:27], v4, s[60:61]")
            a(f"v_add_u32 v3, 16384, v3")
    a("s_waitcnt lgkmcnt(0)")
    if cfg.hdelay == 1: a("s_waitcnt vmcnt(0)")
    if cfg.hdelay >= 2: a("s_barrier")
    srd(a, SRD_WS, P_WS, WS_SIZE)
    a("s_lshl_b32 s60, s72, 2")
    a(f"s_add_u32 s60, s60, s{S_W4}")
    a("s_cmp_ge_u32 s60, 98")
    a("s_cbranch_scc1 L_h_nopack1")
    a("s_mul_i32 s61, s60, 37")
    a("s_lshr_b32 s61, s61, 8")
    a("s_mul_i32 s62, s61, 7")
    a("s_sub_u32 s62, s60, s62")
    a("s_cmp_lt_i32 s62, 0")
    a("s_cselect_b32 s11, 1, 0")
    a("s_sub_u32 s61, s61, s11")
    a("s_mul_i32 s62, s61, 7")
    a("s_sub_u32 s62, s60, s62")
    a("s_bitcmp1_b32 s61, 0")
    srd_sel(a, 68, P_CIM, P_CRE, 448 * 896)
    a("v_lshrrev_b32 v3, 3, v0")
    a("v_and_b32 v4, 7, v0")
    a("v_lshrrev_b32 v5, 1, v3")
    a("v_xor_b32 v4, v4, v5")
    a("s_lshr_b32 s11, s61, 1")
    a("s_lshl_b32 s11, s11, 6")
    a("v_add_u32 v3, s11, v3")
    a("v_mul_u32_u24 v3, 896, v3")
    a("v_lshl_add_u32 v3, v4, 4, v3")
    a("v_xor_b32 v4, 64, v3")
    a(f"s_lshl_b32 s63, s{S_W4}, 13")
    a("s_lshl_b32 s12, s62, 7")
    for n in range(8):
        a(f"s_add_u32 m0, s63, {n*1024}")
        a(f"s_add_u32 s11, s12, {8*n*896}")
        a(f"buffer_load_dwordx4 v{3 + (n & 1)}, s[68:71], s11 offen lds")
    a.label("L_h_nopack1")
    h_open()
    def h_sweep():
        if cfg.hpf:
            for (ptr, nbytes, srdn) in ((P_WD, 1792 * 896, 56),):
                srd(a, srdn, ptr, nbytes)
            def sweep(name, srds, qbytes, first, count):
                n8 = -(-qbytes // (8 * 4096))
                n = 8 * n8
                a(f"s_mul_i32 s12, s73, {qbytes}")
                a(f"s_add_u32 s13, s{S_XCD}, {first}")
                a("s_and_b32 s13, s13, 7")
                a(f"s_mul_i32 s13, s13, {n8}")
                a("s_mov_b32 s14, 0")
                a.label(name)
                a("s_lshl_b32 s11, s13, 12")
                a("s_add_u32 s11, s11, s12")
                for k, sr in enumerate(srds):
                    a(f"buffer_load_dwordx4 v[{16+4*k}:{19+4*k}], v2, s[{sr}:{sr+3}], s11 offen")
                a("s_add_u32 s13, s13, 1")
                a(f"s_cmp_eq_u32 s13, {n}")
                a("s_cselect_b32 s13, 0, s13")
                a("s_add_u32 s14, s14, 1")
                a(f"s_cmp_lt_u32 s14, {n8 * count}")
                a(f"s_cbranch_scc1 {name}")
            sweep("L_h_p2", [56], 1792 * 896 // 4, 0, 1)
            ts(2)
    def h_pack():
        a("s_cmp_ge_u32 s60, 98")
        a("s_cbranch_scc1 L_h_nopack2")
        a("v_and_b32 v5, 31, v0")
        a("v_lshrrev_b32 v6, 5, v0")
        a("v_bfe_u32 v7, v0, 1, 3")
        a("v_xor_b32 v7, v7, v6")
        a("v_lshlrev_b32 v7, 4, v7")
        a("v_lshl_add_u32 v5, v5, 7, v7")
        a("v_add_u32 v5, s63, v5")
        a("v_lshlrev_b32 v6, 4, v0")
        a("s_mul_i32 s12, s61, 28")
        a("s_lshl_b32 s11, s62, 2")
        a("s_add_u32 s12, s12, s11")
        a("s_lshl_b32 s12, s12, 11")
        a(f"s_add_u32 s12, s12, {WS_CP:#x}")
        a(f"s_waitcnt vmcnt({13 if (cfg.hpf and not cfg.hord) else 0})")
        for ks in range(4):
            a(f"v_xor_b32 v7, {32*ks}, v5")
            for ct in range(2):
                d = 32 + 8 * ks + 4 * ct
                a(f"ds_read_b128 v[{d}:{d+3}], v7 offset:{4096*ct}")
        for ks in range(4):
            a(f"s_waitcnt lgkmcnt({6 - 2*ks})")
            a(f"s_add_u32 s11, s12, {2048*ks}")
            for ct in range(2):
                d = 32 + 8 * ks + 4 * ct
                a(f"buffer_store_dwordx4 v[{d}:{d+3}], v6, s[{SRD_WS}:{SRD_WS+3}], s11 offen offset:{1024*ct} sc1")
        a("s_waitcnt vmcnt(0)")
        a.label("L_h_nopack2")
        h_signal("b")
        ts(3)
        ts.x(3, 1)
    if cfg.hord: h_pack(); h_sweep()
    else: h_sweep(); h_pack()
    ts.dump(8, 9)
    a("s_endpgm")

def spin_check(a, name, load_text_list, cond_fn, sleep=1):
    lo, done = a.newlabel(name + "_spin"), a.newlabel(name + "_ok")
    a(f"s_mov_b32 s73, 0")
    a.label(lo)
    cond_fn()
    a(f"s_cbranch_scc1 {done}")
    a("s_add_u32 s73, s73, 1")
    a(f"s_cmp_ge_u32 s73, {SPIN_MAX}")
    a(f"s_cbranch_scc1 {done}")
    a(f"s_sleep {sleep}")
    for t in load_text_list: a(t)
    a("s_waitcnt vmcnt(0)")
    a(f"s_branch {lo}")
    a.label(done)
    a("s_nop 4")

def sspin(a, name, loads, cond_fn, sleep=1):
    lo, done = a.newlabel(name + "_spin"), a.newlabel(name + "_ok")
    a("s_mov_b32 s73, 0")
    a.label(lo)
    for t in loads: a(t)
    a("s_waitcnt lgkmcnt(0)")
    cond_fn()
    a(f"s_cbranch_scc1 {done}")
    a("s_add_u32 s73, s73, 1")
    a(f"s_cmp_lt_u32 s73, {SPIN_MAX}")
    if sleep: a(f"s_sleep {sleep}")
    a(f"s_cbranch_scc1 {lo}")
    a.label(done)

def flag_index(a, d, t, grp):
    a(f"s_mul_i32 s{t}, s{S_NS}, 37")
    a(f"s_lshr_b32 s{t}, s{t}, {8 if grp == 7 else 9}")
    a(f"s_mul_i32 s{t}, s{t}, {32 - grp}")
    a(f"s_add_u32 s{d}, s{t}, s{S_NS}")
    a(f"s_lshl_b32 s{d}, s{d}, 2")

def interleave(a, prim, fill, per):
    fill = list(fill)
    for p in prim:
        p()
        for _ in range(per):
            if fill: a(fill.pop(0))
    for f in fill: a(f)

def p2_rot(a, cfg, d_ffn, d_blk, d_flip):
    if not cfg.rot:
        for d in (d_ffn, d_blk, d_flip): a(f"s_mov_b32 s{d}, 0")
        return
    tab = {2: [0] * 7, 1: list(range(7)), 3: [0, 3, 0, 3, 0, 3, 0], 4: [0, 2, 5, 0, 2, 5, 0], 5: [0, 4, 2, 5, 0, 4, 2], 6: [0, 1, 0, 1, 0, 1, 0], 7: [0, 2, 0, 2, 0, 2, 0]}[cfg.rot]
    word = sum(v << (4 * k) for k, v in enumerate(tab))
    a(f"s_lshl_b32 s11, s{S_NT}, 2")
    a(f"s_lshr_b32 s13, {word:#x}, s11")
    a("s_and_b32 s13, s13, 15")
    a(f"s_and_b32 s11, s{S_SLOT}, 3")
    a("s_lshl_b32 s11, s11, 1")
    a("s_add_u32 s11, s11, s13")
    a("s_cmp_ge_u32 s11, 7")
    a("s_cselect_b32 s13, 7, 0")
    a(f"s_sub_u32 s{d_ffn}, s11, s13")
    for d in (d_blk, d_flip): a(f"s_mov_b32 s{d}, 0")

def slot(reg, n): return R[reg] + 2048 * n
SA = [slot(1, n) for n in range(6)]; SB = [slot(2, n) for n in range(6)]; SC = [slot(0, n) for n in range(6)]
WSLOT = {}
for n in range(6): WSLOT[n] = SA[n]; WSLOT[6 + n] = SB[n]
for n in range(4): WSLOT[12 + n] = SC[n]; WSLOT[16 + n] = SA[n]; WSLOT[20 + n] = SB[n]
WSLOT.update({24: SA[4], 25: SA[5], 26: SB[4], 27: SB[5]})
HTS = SC[4]
PH1, PH2, GA, FXA, SD = SC[0], SC[4], SB[0], SA[0], SC[0]

class Rec:
    def __init__(self): self.L = []
    def __call__(self, t): self.L.append(t)

def ssm_park(kc, K, KP, sQ):
    LR, LI, CR, CI, L16R, L16I, PWR, PWI, L64R, L64I, LWR, LWI, W0R = [KP + k for k in range(13)]
    vTW, vTR, vCB = KP + 16, KP + 17, KP + 18
    ssm_const_calc(kc, K, LR, LI, CR, CI)
    csq(kc, L16R, L16I, LR, LI, K)
    for _ in range(3): csq(kc, L16R, L16I, L16R, L16I, K)
    def powsel(dr, di, br, bi, bit, src):
        cmul(kc, K + 1, K + 2, dr, di, br, bi)
        kc(f"v_and_b32 v{K}, {bit}, v{src}")
        kc(f"v_cmp_ne_u32 vcc, 0, v{K}")
        kc(f"v_cndmask_b32 v{dr}, v{dr}, v{K+1}, vcc")
        kc(f"v_cndmask_b32 v{di}, v{di}, v{K+2}, vcc")
    kc(f"v_mov_b32 v{PWR}, v{CR}"); kc(f"v_mov_b32 v{PWI}, v{CI}")
    powsel(PWR, PWI, L16R, L16I, 32, 0)
    csq(kc, K + 14, K + 15, L16R, L16I, K)
    powsel(PWR, PWI, K + 14, K + 15, 16, 0)
    csq(kc, L64R, L64I, K + 14, K + 15, K)
    kc(f"v_mov_b32 v{K+10}, s{S_W4}")
    kc(f"v_mov_b32 v{LWR}, 1.0"); kc(f"v_mov_b32 v{LWI}, 0")
    powsel(LWR, LWI, L64R, L64I, 1, K + 10)
    csq(kc, K + 14, K + 15, L64R, L64I, K)
    powsel(LWR, LWI, K + 14, K + 15, 2, K + 10)
    csq(kc, K + 14, K + 15, K + 14, K + 15, K)
    kc(f"v_lshrrev_b32 v{K+10}, 4, v0")
    kc(f"v_sub_u32 v{K+10}, s{S_MT}, v{K+10}")
    kc(f"v_add_u32 v{K+11}, -5, v{K+10}")
    kc(f"v_add_u32 v{K+10}, -1, v{K+10}")
    kc(f"v_mov_b32 v{W0R}, 1.0"); kc(f"v_mov_b32 v{W0R+1}, 0")
    kc(f"v_mov_b32 v{W0R+2}, 1.0"); kc(f"v_mov_b32 v{W0R+3}, 0")
    for b in range(3):
        powsel(W0R, W0R + 1, K + 14, K + 15, 1 << b, K + 10)
        if b < 2: powsel(W0R + 2, W0R + 3, K + 14, K + 15, 1 << b, K + 11)
        if b < 2: csq(kc, K + 14, K + 15, K + 14, K + 15, K)
    kc(f"s_add_u32 s36, s{sQ}, {HTS}")
    kc(f"v_bfe_u32 v{K}, v0, 4, 1")
    kc(f"v_lshrrev_b32 v{K+1}, 5, v0")
    kc(f"v_lshl_add_u32 v{K+2}, v{K}, 1, v{K+1}")
    kc(f"v_and_b32 v{K+3}, 15, v0")
    kc(f"v_and_b32 v{vTW}, 6, v{K+3}")
    kc(f"v_lshlrev_b32 v{vTW}, 4, v{vTW}")
    kc(f"v_lshlrev_b32 v{K+4}, 5, v{K+2}")
    kc(f"v_xor_b32 v{vTW}, v{vTW}, v{K+4}")
    kc(f"v_lshl_add_u32 v{vTW}, v{K+3}, 7, v{vTW}")
    kc(f"v_add_u32 v{vTW}, s36, v{vTW}")
    kc(f"v_lshlrev_b32 v{vCB}, 2, v{K+3}")
    kc(f"v_add_u32 v{vCB}, {C_L + 512}, v{vCB}")
    kc(f"v_bfe_u32 v{K+4}, v0, 2, 2")
    kc(f"v_lshl_add_u32 v{K+5}, v{K+1}, 3, v{K+4}")
    kc(f"v_lshlrev_b32 v{vTR}, 7, v{K+5}")
    kc(f"v_lshrrev_b32 v{K+4}, 1, v{K+4}")
    kc(f"v_xor_b32 v{K+4}, v{K+4}, v0")
    kc(f"v_and_b32 v{K+4}, 1, v{K+4}")
    kc(f"v_lshl_add_u32 v{vTR}, v{K+4}, 5, v{vTR}")
    kc(f"v_lshl_add_u32 v{vTR}, v{K}, 4, v{vTR}")
    kc(f"v_bfe_u32 v{K+4}, v0, 1, 1")
    kc(f"v_lshl_add_u32 v{vTR}, v{K+4}, 3, v{vTR}")
    kc(f"v_add_u32 v{vTR}, s36, v{vTR}")
    kc(f"s_lshl_b32 s36, s{S_W4}, 9")
    kc(f"s_add_u32 s36, s36, {STATS_L}")
    kc(f"v_lshl_add_u32 v{KP+19}, v{K+2}, 7, s36")
    vStS = KP + 19
    vAg, vPr, vF = KP + 20, KP + 21, KP + 22
    kc(f"v_lshlrev_b32 v{vAg}, 3, v{K+3}")
    kc(f"v_lshrrev_b32 v{vPr}, 4, v0")
    kc(f"v_mul_u32_u24 v{vPr}, 3584, v{vPr}")
    kc(f"s_lshl_b32 s36, s{S_NS}, 7")
    kc(f"v_add3_u32 v{vPr}, v{vPr}, v{vAg}, s36")
    kc(f"v_add_u32 v{vAg}, {AGG_L}, v{vAg}")
    kc(f"s_lshl_b32 s36, s{S_MT}, 2")
    kc(f"s_add_u32 s36, s36, s{S_W4}")
    kc("s_lshl_b32 s36, s36, 10")
    flag_index(kc, 37, 38, 14)
    kc("s_add_u32 s36, s36, s37")
    kc(f"s_add_u32 s36, s36, {WS_FLAG + 512:#x}")
    kc(f"v_mov_b32 v{vF}, s36")

def gen_loader(a, cfg, ts):
    a.label("L_loader")
    a("s_setprio 3")
    vm = VM(a)
    vXe, vXo, vW, vB = 1, 2, 3, 4
    vFv, vP, vO, vPQ = 5, 6, 7, 8
    vWd, vCe, vCo, vCh = 9, 10, 11, 12
    vRf, vRh = 13, 14
    vA, vC = 24, 25
    vT = 15
    ACC, CA, RD = 27, 28, 44
    STG = 64
    CF = 144
    SACC = 80
    XRAW = CF + 64
    KP = XRAW + 8
    sGrp = [28, 29, 30, 31, 36, 37, 21]
    SP = ['', ' sc1'][cfg.spol]
    sMX, sMW, sMB, sMP = 72, 74, 75, 70
    sPerm, sSX, sSW = 68, 69, 15
    sRF = 14
    AP = ['', ' sc1', ' sc1 nt', ' sc0 sc1', ' sc0', ' nt'][cfg.apol]
    OP = ['', ' sc1', ' nt', ' sc1 nt'][cfg.opol]
    polx = " nt" if cfg.polx else ""
    polw = " nt" if cfg.polw else ""
    a(f"v_lshrrev_b32 v{vA}, 3, v0")
    a(f"v_and_b32 v{vC}, 7, v0")
    a(f"v_lshrrev_b32 v{vT+2}, 1, v{vA}")
    a(f"s_lshl_b32 s11, s{S_W4}, 4")
    a(f"v_add_u32 v{vT}, s11, v{vA}")
    a(f"v_mul_u32_u24 v{vW}, 3584, v{vT}")
    a(f"v_and_b32 v{vT+4}, 1, v{vT+2}")
    a(f"v_lshlrev_b32 v{vT+4}, 2, v{vT+4}")
    a(f"v_xor_b32 v{vT+4}, v{vC}, v{vT+4}")
    a(f"v_lshl_add_u32 v{vW}, v{vT+4}, 4, v{vW}")
    a(f"s_lshl_b32 s11, s{S_NS}, 7")
    a(f"v_add_u32 v{vW}, s11, v{vW}")
    a(f"s_lshl_b32 s11, s{S_MT}, 8")
    a(f"s_lshl_b32 s12, s{S_W4}, 6")
    a("s_add_u32 s11, s11, s12")
    a(f"v_lshrrev_b32 v{vT}, 2, v{vA}")
    a(f"v_and_b32 v{vT+1}, 3, v{vA}")
    a(f"v_lshl_add_u32 v{vT}, v{vT}, 4, v{vT+1}")
    a(f"v_add_u32 v{vT}, s11, v{vT}")
    a(f"v_mul_u32_u24 v{vXe}, 896, v{vT}")
    a(f"v_xor_b32 v{vT+3}, v{vC}, v{vT+2}")
    a(f"v_lshl_add_u32 v{vXe}, v{vT+3}, 4, v{vXe}")
    a(f"v_xor_b32 v{vXo}, 64, v{vXe}")
    a(f"s_and_b32 s12, s{S_W4}, 1")
    a(f"s_lshl_b32 s11, s{S_NS}, 4")
    a(f"s_lshl_b32 s13, s12, 3")
    a("s_add_u32 s11, s11, s13")
    a(f"v_add_u32 v{vT}, s11, v{vA}")
    a(f"v_mul_u32_u24 v{vB}, 896, v{vT}")
    a(f"v_lshl_add_u32 v{vB}, v{vT+3}, 4, v{vB}")
    a("s_lshl_b32 s13, s12, 6")
    a(f"v_xor_b32 v{vB}, s13, v{vB}")
    a(f"s_lshl_b32 s{sMX}, s{S_W4}, 13")
    a(f"s_lshl_b32 s{sMW}, s{S_W4}, 11")
    a(f"s_lshl_b32 s{sMB}, s{S_W4}, 10")
    a(f"s_mul_i32 s{sMP}, s{S_W4}, {Q}")
    perms = cfg.perms
    words = [sum(p[k] << (4 * k) for k in range(7)) for p in perms]
    ng = len(words)
    a(f"s_mov_b32 s{sPerm}, {words[0]:#x}")
    if ng > 1:
        if cfg.slab:
            a(f"s_add_u32 s11, s{S_SLOT}, s{S_XCD}")
        else:
            a(f"s_and_b32 s11, s{S_SLOT}, 3")
            a(f"s_add_u32 s11, s11, s{S_NT}")
        if ng == 3:
            a("s_mul_i32 s13, s11, 43")
            a("s_lshr_b32 s13, s13, 7")
            a("s_mul_i32 s13, s13, 3")
            a("s_sub_u32 s11, s11, s13")
        else:
            a(f"s_and_b32 s11, s11, {ng-1}")
        for g in range(1, ng):
            a(f"s_cmp_eq_u32 s11, {g}")
            a(f"s_cmov_b32 s{sPerm}, {words[g]:#x}")
    ts.x(1, 1)
    a("s_waitcnt lgkmcnt(0)")
    ts.x(1, 2)
    if cfg.tlb:
        a(f"v_mov_b32 v40, s{P_X}")
        a(f"v_mov_b32 v41, s{P_X+1}")
        for ln, p in enumerate([P_WG, P_WU, P_BRE, P_BIM, P_WD, P_CRE, P_CIM, P_WS][:cfg.tlb], 1):
            a(f"v_writelane_b32 v40, s{p}, {ln}")
            a(f"v_writelane_b32 v41, s{p+1}, {ln}")
        a(f"s_mov_b64 exec, {(1 << (cfg.tlb + 1)) - 1:#x}")
        a("global_load_dword v62, v[40:41], off")
        a("s_mov_b64 exec, -1")
    srd(a, SRD_A, P_WG, 448 * 3584)
    srd(a, SRD_X, P_X, 2048 * 896)
    srd(a, SRD_B, P_WU, 448 * 3584)
    a(f"s_cmp_ge_u32 s{S_W4}, 2")
    srd_sel(a, SRD_C, P_BIM, P_BRE, 448 * 896)

    thr = [None]
    def dma(vm, tag, voff, srdn, sbase, soff, m0base, m0off, pol=""):
        a(f"s_add_u32 m0, s{m0base}, {m0off}")
        a(f"s_add_u32 s11, s{sbase}, {soff}")
        if thr[0] is not None and len(vm.q) > thr[0]:
            a(f"s_waitcnt vmcnt({thr[0]})")
            vm.q = vm.q[-thr[0]:]
        vm.issue(tag, f"buffer_load_dwordx4 v{voff}, s[{srdn}:{srdn+3}], s11 offen{pol} lds")
    def issue_ops(s):
        r = R[s % 3]
        ops = []
        def pre():
            a(f"s_bfe_u32 s{sSX}, s{sPerm}, {(4 << 16) | (4 * s):#x}")
            a(f"s_mul_i32 s{sSW}, s{sSX}, {64*3584}")
            a(f"s_lshl_b32 s{sSX}, s{sSX}, 7")
        def mk(*args): return lambda: dma(vm, ('st', s), *args)
        L = []
        for i in range(2): L.append(mk(vW, SRD_A, sSW, i * 8 * 3584, sMW, r + OFF_WG + i * 1024, polw))
        for j in range(4): L.append(mk(vXo if j & 1 else vXe, SRD_X, sSX, (32 * (j >> 2) + 4 * (j & 3)) * 896, sMX, r + j * 1024, polx))
        for i in range(2): L.append(mk(vW, SRD_B, sSW, i * 8 * 3584, sMW, r + OFF_WU + i * 1024, polw))
        for j in range(4, 8): L.append(mk(vXo if j & 1 else vXe, SRD_X, sSX, (32 * (j >> 2) + 4 * (j & 3)) * 896, sMX, r + j * 1024, polx))
        L.append(mk(vB, SRD_C, sSX, 0, sMB, r + OFF_BB, polw))
        first = L[0]
        L[0] = lambda: (pre(), first())
        return L
    SRD_WD, SRD_CC, sBlk, sFlip, P_DSK2 = 32, 24, 16, 17, 38
    def w_ops(ps):
        L = []
        for p in ps:
            for n in range(2):
                def op(p=p, n=n):
                    if 12 <= p < 22:
                        d = STG + (p - 12) * 8 + 4 * n
                        a(f"s_add_u32 s11, s{sGrp[p//4]}, {((p % 4) * 16 + 8 * n) * 896}")
                        vm.issue(('w', p), f"buffer_load_dwordx4 v[{d}:{d+3}], v{vWd}, s[{SRD_WD}:{SRD_WD+3}], s11 offen")
                    else:
                        dma(vm, ('w', p), vWd, SRD_WD, sGrp[p//4], ((p % 4) * 16 + 8 * n) * 896, sMP, WSLOT[p] + n * 1024)
                L.append(op)
        return L
    sCF, sCH = 16, 17
    def cfrag(p, lc): return CF + 8 * p + 4 * lc
    def c_ops(b):
        L = []
        for p in (range(4 * b, 4 * b + 4) if b < 3 else (12, 13)):
            for lc in range(2):
                def op(p=p, lc=lc):
                    d = cfrag(p, lc)
                    sb, so = (sCF, 2048 * p) if p < 12 else (sCH, 2048 * (p - 12))
                    a(f"s_add_u32 s11, s{sb}, {so}")
                    vm.issue(('c', b), f"buffer_load_dwordx4 v[{d}:{d+3}], v{(vCe, vCo)[lc]}, s[{SRD_WS}:{SRD_WS+3}], s11 offen sc1")
                L.append(op)
        return L
    def w_write(ps):
        vm.wait(('w', ps[-1]))
        base = WSLOT[ps[0]]
        a(f"v_add_u32 v{vT+4}, {base}, v{vPQ}")
        for p in ps:
            for n in range(2):
                d = STG + (p - 12) * 8 + 4 * n
                a(f"ds_write_b128 v{vT+4}, v[{d}:{d+3}] offset:{WSLOT[p] - base + 1024*n}")
    def colsum_reads(s):
        r = R[s % 3]
        a(f"s_add_u32 s11, s{sMW}, {r + OFF_WG}")
        a(f"v_add_u32 v{vT}, s11, v{vP}")
        a(f"s_add_u32 s11, s{sMB}, {r + OFF_BB}")
        a(f"v_add_u32 v{vT+1}, s11, v{vP}")
        a(f"ds_read_b128 v[{RD}:{RD+3}], v{vT}")
        a(f"ds_read_b128 v[{RD+4}:{RD+7}], v{vT} offset:1024")
        a(f"ds_read_b128 v[{RD+8}:{RD+11}], v{vT} offset:8192")
        a(f"ds_read_b128 v[{RD+12}:{RD+15}], v{vT} offset:9216")
        a(f"ds_read_b128 v[{RD+16}:{RD+19}], v{vT+1}")
    def colsum_ops():
        L = ["s_waitcnt lgkmcnt(0)"]
        for n in range(4):
            for d in range(4):
                w = RD + 4 * n + d
                ac = CA + (n >> 1) * 8 + 2 * d
                L.append(f"v_lshlrev_b32 v{vT+2}, 16, v{w}")
                L.append(f"v_and_b32 v{vT+3}, s71, v{w}")
                L.append(f"v_add_f32 v{ac}, v{ac}, v{vT+2}")
                L.append(f"v_add_f32 v{ac+1}, v{ac+1}, v{vT+3}")
        for d in range(4):
            w = RD + 16 + d
            L.append(f"v_lshlrev_b32 v{vT+2}, 16, v{w}")
            L.append(f"v_and_b32 v{vT+3}, s71, v{w}")
            L.append(f"v_add_f32 v{vT+2}, v{vT+2}, v{vT+3}")
            L.append(f"v_add_f32 v{ACC}, v{ACC}, v{vT+2}")
        return L

    stage_ops = {}
    cdone = set()
    def tok_ops(toks):
        L = []
        for t in toks:
            if t[0] == 's':
                st = int(t[1])
                if st not in stage_ops: stage_ops[st] = issue_ops(st)
                lo, hi = (0, 13) if ':' not in t else map(int, t.split(':')[1].split('-'))
                L += stage_ops[st][lo:hi]
            elif t[0] == 'w': L += w_ops([int(t[1:])])
            elif t[0] == 'c':
                lo, hi = (0, 8) if ':' not in t else map(int, t.split(':')[1].split('-'))
                L += c_ops(int(t[1]))[lo:hi]
                cdone.add(int(t[1]))
            else: L.append(lambda t=t: special(t))
        return L
    def run_tokens(toks):
        for o in tok_ops(toks): o()
    def special(t):
        if True:
            if t == 'put':
                vm.wait('stats')
                a(f"s_lshl_b32 s11, s{S_W4}, 9")
                a(f"s_add_u32 s11, s11, {STATS_L}")
                a(f"v_lshl_add_u32 v{vT+4}, v0, 3, s11")
                a(f"ds_write_b64 v{vT+4}, v[20:21]")
                a(f"v_lshlrev_b32 v{vT+4}, 3, v0")
                a(f"v_add_u32 v{vT+4}, {ST2_L}, v{vT+4}")
                a(f"ds_write_b64 v{vT+4}, v[22:23]")
            elif t == 'e':
                a(f"s_add_u32 s12, s41, {16*896}")
                vm.issue('e', f"buffer_load_dwordx4 v[{XRAW}:{XRAW+3}], v20, s[{SRD_X}:{SRD_X+3}], s41 offen")
                vm.issue('e', f"buffer_load_dwordx4 v[{XRAW+4}:{XRAW+7}], v20, s[{SRD_X}:{SRD_X+3}], s12 offen")
                vm.issue('e', f"global_load_ushort v{KP+23}, v21, s[{P_DSK2}:{P_DSK2+1}]")
            elif t == 'm':
                a(f"v_lshlrev_b32 v{vP}, 4, v0")
                a("s_lshl_b32 s12, s2, 2")
                a(f"s_add_u32 s12, s12, s{S_W4}")
                a("s_lshl_b32 s12, s12, 10")
                a(f"s_add_u32 s12, s12, {192*3584}")
                vm.issue('m', f"buffer_load_dwordx4 v[140:143], v{vP}, s[{SRD_A}:{SRD_A+3}], s12 offen")
                vm.issue('m', f"buffer_load_dwordx4 v[140:143], v{vP}, s[{SRD_B}:{SRD_B+3}], s12 offen")
                a(f"s_and_b32 s12, s{S_W4}, 1")
                a("s_lshl_b32 s11, s2, 1")
                a("s_add_u32 s12, s12, s11")
                a("s_lshl_b32 s12, s12, 10")
                vm.issue('m', f"buffer_load_dwordx4 v[140:143], v{vP}, s[{SRD_C}:{SRD_C+3}], s12 offen")
            elif t == 'k':
                a("s_waitcnt lgkmcnt(0)")
            elif t == 'init':
                a(f"v_mov_b32 v26, 0")
                vm.issue('init', f"global_load_dword v5, v26, s[{P_DBG}:{P_DBG+1}] sc1")
            elif t == 'fetch':
                vm.wait('init')
                def cond():
                    a(f"v_readfirstlane_b32 s11, v5")
                    a(f"s_cmp_ge_u32 s11, {INIT_N}")
                spin_check(a, "L_init", [f"global_load_dword v5, v26, s[{P_DBG}:{P_DBG+1}] sc1"], cond, 8)
                if cfg.ts == 1 and cfg.tsset == 3: a(f"s_add_u32 s{TS0+18}, s73, 1")
                a(f"s_lshl_b32 s11, s{S_MT}, 8")
                a(f"s_lshl_b32 s12, s{S_W4}, 6")
                a("s_add_u32 s11, s11, s12")
                a(f"v_add_lshl_u32 v5, v0, s11, 3")
                a(f"s_lshl_b32 s12, s{S_M64}, 6")
                a(f"v_add_lshl_u32 v26, v0, s12, 3")
                a(f"s_mov_b32 s11, {WS_STATS:#x}")
                vm.issue('stats', f"buffer_load_dwordx2 v[20:21], v5, s[{SRD_WS}:{SRD_WS+3}], s11 offen sc1")
                vm.issue('stats', f"buffer_load_dwordx2 v[22:23], v26, s[{SRD_WS}:{SRD_WS+3}], s11 offen sc1")
            else: raise ValueError(t)
    win = cfg.win
    run_tokens(["s0"])
    ts(1)
    ts.x(1, 6)
    run_tokens(win.get(-1, []))
    a("s_setprio 0")
    a(f"s_and_b32 s12, s{S_W4}, 1")
    a(f"v_lshlrev_b32 v{vP}, 4, v0")
    a(f"v_add_u32 v{vPQ}, s{sMP}, v{vP}")
    a(f"s_mul_i32 s14, s{S_W4}, 448")
    a(f"v_add_u32 v{vT}, s14, v{vA}")
    a(f"v_mul_u32_u24 v{vWd}, 896, v{vT}")
    a(f"v_lshl_add_u32 v{vWd}, v{vT+4}, 4, v{vWd}")
    a(f"s_lshl_b32 s14, s{S_NT}, 7")
    a(f"v_add_u32 v{vWd}, s14, v{vWd}")
    a(f"v_and_b32 v{vT+1}, 3, v0")
    a("s_mov_b32 s71, 0xffff0000")
    for k in range(17): a(f"v_mov_b32 v{ACC+k}, 0")
    srd(a, SRD_WS, P_WS, WS_SIZE)
    a(f"s_mov_b64 s[{P_DSK2}:{P_DSK2+1}], s[{P_DSK}:{P_DSK+1}]")
    srd(a, SRD_WD, P_WD, 1792 * 896)
    p2_rot(a, cfg, sRF, sBlk, sFlip)
    a(f"s_lshl_b32 s11, s{S_M64}, 1")
    a("s_add_u32 s40, s11, s12")
    a("s_lshl_b32 s12, s40, 5")
    a(f"v_lshrrev_b32 v{vT}, 2, v0")
    a(f"v_add_u32 v{vT}, s12, v{vT}")
    a(f"v_mul_u32_u24 v{vT}, 896, v{vT}")
    a(f"v_lshl_add_u32 v20, v{vT+1}, 4, v{vT}")
    a(f"v_lshrrev_b32 v{vT+2}, 5, v0")
    a(f"v_lshl_add_u32 v{vT}, v{vT+2}, 4, s12")
    a(f"s_lshr_b32 s13, s{S_W4}, 1")
    a("s_lshl_b32 s12, s13, 5")
    a(f"s_lshl_b32 s11, s{S_NT}, 6")
    a("s_add_u32 s11, s11, s12")
    a("s_lshl_b32 s41, s11, 1")
    a(f"v_and_b32 v{vT+3}, 31, v0")
    a(f"v_add_u32 v{vT+1}, s11, v{vT+3}")
    a(f"v_mul_u32_u24 v{vT}, 448, v{vT}")
    a(f"v_add_lshl_u32 v{vO}, v{vT}, v{vT+1}, 2")
    a(f"v_lshlrev_b32 v21, 1, v{vT+1}")
    a("s_lshl_b32 s12, s13, 10")
    a(f"v_add_u32 v{vCe}, s12, v{vP}")
    a(f"v_xor_b32 v{vCo}, 1024, v{vCe}")
    a(f"s_lshl_b32 s11, s{S_NT}, 1")
    a("s_add_u32 s11, s11, s13")
    a(f"s_mul_i32 s11, s11, {28*2048}")
    a(f"s_add_u32 s11, s11, {WS_CP:#x}")
    a(f"s_and_b32 s12, s{S_W4}, 1")
    a(f"s_lshl_b32 s{sCF}, s12, 15")
    a(f"s_add_u32 s{sCF}, s{sCF}, s11")
    a(f"s_lshl_b32 s{sCH}, s12, 12")
    a(f"s_add_u32 s{sCH}, s{sCH}, s11")
    a(f"s_add_u32 s{sCH}, s{sCH}, {12*2048}")
    a(f"v_bfe_u32 v{vT}, v0, 4, 1")
    a(f"v_lshlrev_b32 v{vT+1}, 2, v{vT}")
    a(f"v_xor_b32 v{vC}, v{vC}, v{vT+1}")
    a(f"v_lshlrev_b32 v{vC}, 5, v{vC}")
    a(f"v_lshl_add_u32 v{vC}, v{vT}, 9, v{vC}")
    a(f"v_lshl_add_u32 v{vC}, v{vT+2}, 8, v{vC}")
    a(f"s_add_u32 s11, s{sMB}, {CP_L}")
    a(f"v_add_u32 v{vC}, s11, v{vC}")
    a(f"s_lshl_b32 s11, s{S_W4}, 5")
    a(f"s_add_u32 s11, s11, {C_L + 512}")
    a(f"v_lshl_add_u32 v{vA}, v{vA}, 2, s11")
    ts.x(1, 8)
    LR, LI, CR, CI, L16R, L16I, PWR, PWI, L64R, L64I, LWR, LWI, W0R = [KP + k for k in range(13)]
    vTW, vTR, vCB, vStS, vAg, vPr, vF = [KP + k for k in range(16, 23)]
    a(f"s_lshl_b32 s21, s{S_NS}, 7")
    a(f"s_mul_i32 s22, s{S_MT}, 3584")
    a("s_add_u32 s22, s22, s21")
    a(f"s_add_u32 s22, s22, {WS_AGG - AGG_L:#x}")
    a(f"s_mov_b32 s23, {WS_AGG:#x}")
    a(f"s_mov_b32 s20, {WS_AGG + 4*3584:#x}")
    a(f"s_lshl_b32 s18, s{S_M64}, 10")
    a(f"s_and_b32 s11, s{S_W4}, 1")
    a("s_lshl_b32 s11, s11, 7")
    a("s_add_u32 s18, s18, s11")
    a(f"s_add_u32 s18, s18, {WS_FLAG + 512:#x}")
    a(f"s_lshl_b32 s11, s{S_MT}, 2")
    a(f"s_add_u32 s11, s11, s{S_W4}")
    a(f"s_mul_i32 s19, s11, {2*RT_BYTES}")
    a(f"s_lshl_b32 s11, s{S_NS}, 10")
    a("s_add_u32 s19, s19, s11")
    a(f"s_add_u32 s19, s19, {56*1024}")
    for g in range(7):
        a(f"s_add_u32 s12, s{sRF}, {g}")
        a("s_cmp_ge_u32 s12, 7")
        a("s_cselect_b32 s13, 7, 0")
        a("s_sub_u32 s12, s12, s13")
        a(f"s_mul_i32 s{sGrp[g]}, s12, {64*896}")
    a(f"s_add_u32 s11, s{sMX}, {R[2]}")
    a(f"v_add_u32 v{vT+4}, s11, v{vP}")
    kparts = {}
    if cfg.wprio: a(f"s_setprio {cfg.wprio}")
    for s in range(7):
        vm.wait(('st', s))
        ts.x(2, 1 + s)
        a("s_barrier")
        ts.x(3, 1 + s)
        if s == 0: ts(2)
        if s == 0:
            for k in range(6): a(f"ds_read_b128 v[{KP+4*k}:{KP+4*k+3}], v{vT+4} offset:{1024*k}")
        if s == 6:
            QQ = 28
            for p in range(8): a(f"ds_read_b32 v{QQ+p}, v{vT+1} offset:{512*p}")
            a("s_waitcnt lgkmcnt(0)")
            for p in range(4): a(f"v_add_f32 v{QQ+p}, v{QQ+p}, v{QQ+4+p}")
            a(f"v_add_f32 v{QQ}, v{QQ}, v{QQ+2}")
            a(f"v_add_f32 v{QQ+1}, v{QQ+1}, v{QQ+3}")
            a(f"v_add_f32 v{QQ}, v{QQ}, v{QQ+1}")
            a(f"ds_write_b32 v{vT}, v{QQ}")
            npre = win[6].index("put") + 1 if "put" in win[6] else 2
            pre = tok_ops(win[6][:npre])
            for o in pre: o()
            a("s_waitcnt lgkmcnt(0)")
            a("s_barrier")
            a("s_setprio 0")
            run_tokens(win[6][npre:])
            continue
        segs = [[None, []]]
        for t in win.get(s, []):
            if t.startswith("cs"): segs.append([int(t[2:]), []])
            else: segs[-1][1].append(t)
        for cs, toks in segs:
            fl = []
            if cs is not None:
                vm.wait(('st', cs))
                colsum_reads(cs)
                fl = colsum_ops()
            if cs == 6:
                b = ACC
                for k in range(8): fl.append(f"v_permlane32_swap_b32 v{CA+k}, v{CA+8+k}")
                fl.append(f"v_add_f32_dpp v{b}, v{b}, v{b} quad_perm:[1,0,3,2] row_mask:0xf bank_mask:0xf")
                for k in range(8): fl.append(f"v_add_f32 v{CA+k}, v{CA+k}, v{CA+8+k}")
                fl.append(f"v_add_f32_dpp v{b}, v{b}, v{b} quad_perm:[2,3,0,1] row_mask:0xf bank_mask:0xf")
                for k in range(8): fl.append(f"v_add_f32_dpp v{CA+k}, v{CA+k}, v{CA+k} row_ror:8 row_mask:0xf bank_mask:0xf")
                fl.append(f"v_add_f32_dpp v{b}, v{b}, v{b} row_half_mirror row_mask:0xf bank_mask:0xf")
                fl.append(f"ds_write_b128 v{vC}, v[{CA}:{CA+3}]")
                fl.append(f"ds_write_b128 v{vC}, v[{CA+4}:{CA+7}] offset:16")
                fl.append(f"ds_write_b32 v{vA}, v{b}")
            ops = tok_ops(toks)
            per = max(1, -(-len(fl) // max(1, len(ops))))
            interleave(a, ops, fl, per)
        if s == 5:
            a(f"s_and_b32 s12, s{S_W4}, 1")
            a("s_lshl_b32 s12, s12, 8")
            a(f"v_lshl_add_u32 v{vT}, v0, 2, s12")
            a(f"v_add_u32 v{vT+1}, {CP_L}, v{vT}")
            a(f"v_add_u32 v{vT}, {C_L}, v{vT}")
            a("s_waitcnt lgkmcnt(0)")
            a("s_setprio 3")
    ts.x(2, 8)
    a("s_barrier")
    ts(3)
    ts.x(3, 8)
    a(f"v_add_u32 v{vT+2}, {SD}, v{vPQ}")
    vm.wait(('w', 11), "lgkmcnt(0)")
    a("s_barrier")
    X, Y, ST = 32, 48, CF
    HR, HI, T1, T2, CBR, CBI, G0, G1, QR, QI = 20, 21, 22, 23, 24, 25, 26, 28, 30, 31
    for k in range(8): a(f"ds_read_b128 v[{X+4*k}:{X+4*k+3}], v{vT+2} offset:{1024*k}")
    a(f"ds_read_b32 v{CBR}, v{vCB}")
    a(f"ds_read_b32 v{CBI}, v{vCB} offset:64")
    for k in range(8): a(f"ds_read_b128 v[{ST+4*k}:{ST+4*k+3}], v{vStS} offset:{16*k}")
    a(f"s_setprio {cfg.eprio}")
    a(f"v_lshrrev_b32 v1, 4, v0")
    a(f"v_sub_u32 v1, s{S_MT}, v1")
    a(f"v_cmp_le_i32 s[56:57], 1, v1")
    a(f"v_cmp_le_i32 s[58:59], 5, v1")
    a(f"v_lshlrev_b32 v5, 16, v{KP+23}")
    a(f"v_mov_b32 v3, v{vF}")
    vF = 3
    a("s_waitcnt lgkmcnt(10)")
    for r in range(16): a(f"v_permlane16_swap_b32 v{X+r}, v{Y+r}")
    a("s_waitcnt lgkmcnt(0)")
    side = {}
    for r in range(16):
        if r in side: side[r]()
        m, rs = ST + 2 * r, ST + 2 * r + 1
        a(f"v_fma_f32 v{X+r}, -v{m}, v{CBR}, v{X+r}")
        a(f"v_fma_f32 v{Y+r}, -v{m}, v{CBI}, v{Y+r}")
        a(f"v_mul_f32 v{X+r}, v{X+r}, v{rs}")
        a(f"v_mul_f32 v{Y+r}, v{Y+r}, v{rs}")
        if r >= 1:
            pr, pi = (X, Y) if r == 1 else (HR, HI)
            a(f"v_fma_f32 v{T1}, -v{LI}, v{pi}, v{X+r}")
            a(f"v_fma_f32 v{T2}, v{LI}, v{pr}, v{Y+r}")
            a(f"v_fma_f32 v{HR}, v{LR}, v{pr}, v{T1}")
            a(f"v_fma_f32 v{HI}, v{LR}, v{pi}, v{T2}")
    z = CF
    a(f"v_mov_b32 v{z}, v{HR}"); a(f"v_mov_b32 v{z+1}, v{HI}")
    csq(a, z + 8, z + 9, L16R, L16I, z + 10)
    a(f"v_permlane32_swap_b32 v{HR}, v{z}")
    a(f"v_permlane32_swap_b32 v{HI}, v{z+1}")
    a(f"v_fma_f32 v{z}, -v{L16I}, v{HI}, v{z}")
    a(f"v_fma_f32 v{z+1}, v{L16I}, v{HR}, v{z+1}")
    a(f"v_fmac_f32 v{z}, v{L16R}, v{HR}")
    a(f"v_fmac_f32 v{z+1}, v{L16R}, v{HI}")
    a(f"v_mov_b32 v{z+2}, v{z}"); a(f"v_mov_b32 v{z+3}, v{z+1}")
    a(f"s_lshl_b32 s11, s{S_W4}, 7")
    a(f"v_add_u32 v{z+5}, s11, v{vAg}")
    a(f"v_permlane16_swap_b32 v{z}, v{z+2}")
    a(f"v_permlane16_swap_b32 v{z+1}, v{z+3}")
    a(f"v_fma_f32 v{z+2}, -v{z+9}, v{z+1}, v{z+2}")
    a(f"v_fma_f32 v{z+3}, v{z+9}, v{z}, v{z+3}")
    a(f"v_fmac_f32 v{z+2}, v{z+8}, v{z}")
    a(f"v_fmac_f32 v{z+3}, v{z+8}, v{z+1}")
    a(f"ds_write_b64 v{z+5}, v[{z+2}:{z+3}]")
    a("s_waitcnt lgkmcnt(0)")
    ts.x(2, 9)
    a(f"s_setprio {cfg.lprio}")
    a("s_barrier")
    ts(4)
    E = CF + 16
    for i in range(4): a(f"ds_read_b64 v[{E+2+2*i}:{E+3+2*i}], v{vAg} offset:{128*i}")
    a(f"v_mov_b32 v{E}, 0")
    a(f"v_mov_b32 v{E+1}, 0")
    a(f"v_and_b32 v{z+4}, 16, v0")
    a(f"v_cmp_ne_u32 s[12:13], 0, v{z+4}")
    for i in range(1, 4):
        e, p = E + 2 + 2 * i, E + 2 * i
        a(f"s_waitcnt lgkmcnt({3 - i})")
        a(f"v_fma_f32 v{e}, -v{L64I}, v{p+1}, v{e}")
        a(f"v_fma_f32 v{e+1}, v{L64I}, v{p}, v{e+1}")
        a(f"v_fmac_f32 v{e}, v{L64R}, v{p}")
        a(f"v_fmac_f32 v{e+1}, v{L64R}, v{p+1}")
    a(f"s_cmp_lg_u32 s{S_W4}, 0")
    a("s_cbranch_scc1 L_l_nopub")
    e = E + 8
    a(f"v_cmp_eq_u32 vcc, -1, v{e}")
    a(f"v_mov_b32 v{T1}, 0x7fc00000")
    a(f"v_cndmask_b32 v{e}, v{e}, v{T1}, vcc")
    a("s_mov_b64 exec, 0xffff")
    a(f"buffer_store_dwordx2 v[{e}:{e+1}], v{vAg}, s[{SRD_WS}:{SRD_WS+3}], s22 offen sc1")
    a("s_mov_b64 exec, -1")
    ts(5)
    a.label("L_l_nopub")
    a(f"v_cmp_lt_u32 vcc, 31, v0")
    a(f"v_cndmask_b32 v{z}, 0, v{z}, s[12:13]")
    a(f"v_cndmask_b32 v{z+1}, 0, v{z+1}, s[12:13]")
    a(f"v_fma_f32 v{HR}, -v{L16I}, v{z+1}, v{HR}")
    a(f"v_fma_f32 v{HI}, v{L16I}, v{z}, v{HI}")
    a(f"v_fmac_f32 v{HR}, v{L16R}, v{z}")
    a(f"v_fmac_f32 v{HI}, v{L16R}, v{z+1}")
    a(f"v_cndmask_b32 v{z}, v{z}, v{HR}, vcc")
    a(f"v_cndmask_b32 v{z+1}, v{z+1}, v{HI}, vcc")
    cmul(a, HR, HI, z, z + 1, CR, CI)
    a(f"s_bitcmp1_b32 s{S_W4}, 0")
    a("s_cselect_b64 vcc, -1, 0")
    a(f"v_cndmask_b32 v{QR}, v{E}, v{E+2}, vcc")
    a(f"v_cndmask_b32 v{QI}, v{E+1}, v{E+3}, vcc")
    a(f"v_cndmask_b32 v{T1}, v{E+4}, v{E+6}, vcc")
    a(f"v_cndmask_b32 v{T2}, v{E+5}, v{E+7}, vcc")
    a(f"s_bitcmp1_b32 s{S_W4}, 1")
    a("s_cselect_b64 vcc, -1, 0")
    a(f"v_cndmask_b32 v{QR}, v{QR}, v{T1}, vcc")
    a(f"v_cndmask_b32 v{QI}, v{QI}, v{T2}, vcc")
    ts.x(2, 10)
    thr[0] = cfg.thr
    lds = [f"buffer_load_dwordx2 v[{G0}:{G0+1}], v{vPr}, s[{SRD_WS}:{SRD_WS+3}], s23 offen sc1",
           f"buffer_load_dwordx2 v[{G1}:{G1+1}], v{vPr}, s[{SRD_WS}:{SRD_WS+3}], s20 offen sc1"]
    up = Rec()
    for r in range(16):
        up(f"v_mul_f32 v{T1}, v{CI}, v{Y+r}")
        up(f"v_mul_f32 v{T2}, v{CI}, v{X+r}")
        up(f"v_fma_f32 v{X+r}, v{CR}, v{X+r}, -v{T1}")
        up(f"v_fma_f32 v{Y+r}, v{CR}, v{Y+r}, v{T2}")
    vRd, vOne = 4, 2
    a(f"s_lshl_b32 s11, s{S_W4}, 2")
    a(f"s_add_u32 s11, s11, {CNT_L + 16}")
    a(f"v_mov_b32 v{vRd}, s11")
    a(f"v_mov_b32 v{vOne}, 1")
    thr[0] = None
    co = w_ops(range(22, 28)) + (c_ops(0) if cfg.c0early else [])
    interleave(a, co[:cfg.c1], up.L, 4)
    if cfg.agpos == 0:
        for t in lds: vm.issue('ag', t)
    w_write([12, 13, 14, 15])
    a(f"ds_write_b32 v{vRd}, v{vOne}")
    XV, STT, DS = 64, 80, 5
    TT = SACC + 32
    vHW = 1
    a(f"v_add_u32 v{vHW}, {HTS}, v{vPQ}")
    a(f"ds_write_b128 v{vHW}, v[{XRAW}:{XRAW+3}]")
    a(f"ds_write_b128 v{vHW}, v[{XRAW+4}:{XRAW+7}] offset:1024")
    a(f"v_lshrrev_b32 v{vT+3}, 5, v0")
    a(f"v_lshlrev_b32 v{vT+2}, 10, v{vT+3}")
    a(f"v_and_b32 v{vT}, 31, v0")
    a(f"v_lshl_add_u32 v{vT+2}, v{vT}, 1, v{vT+2}")
    a(f"s_add_u32 s11, s{sMP}, {HTS}")
    a(f"v_add_u32 v{vT+2}, s11, v{vT+2}")
    for r in range(16): a(f"ds_read_u16 v{XV+r}, v{vT+2} offset:{64*r}")
    if cfg.agpos == 1:
        for t in lds: vm.issue('ag', t)
    w_write([16, 17])
    def wrest():
        w_write([18, 19])
        w_write([20, 21])
        a(f"v_mov_b32 v{T1}, 2")
        a(f"ds_write_b32 v{vRd}, v{T1}")
    if not cfg.wl: wrest()
    co = co[cfg.c1:]
    ts(8)
    vm.wait('ag')
    def cond():
        a(f"v_cmp_eq_u32 vcc, -1, v{G0}")
        a("s_and_b64 s[48:49], vcc, s[56:57]")
        a(f"v_cmp_eq_u32 vcc, -1, v{G1}")
        a("s_and_b64 s[50:51], vcc, s[58:59]")
        a("s_or_b64 s[48:49], s[48:49], s[50:51]")
        a("s_cmp_eq_u64 s[48:49], 0")
    spin_check(a, "L_agg", lds, cond, 2)
    ts(6)
    SR, SI = CBR, CBI
    cmul(a, SR, SI, G0, G0 + 1, W0R, W0R + 1)
    cmul(a, T1, T2, G1, G1 + 1, W0R + 2, W0R + 3)
    a(f"v_cndmask_b32 v{SR}, 0, v{SR}, s[56:57]")
    a(f"v_cndmask_b32 v{SI}, 0, v{SI}, s[56:57]")
    a(f"v_cndmask_b32 v{T1}, 0, v{T1}, s[58:59]")
    a(f"v_cndmask_b32 v{T2}, 0, v{T2}, s[58:59]")
    a(f"v_add_f32 v{SR}, v{SR}, v{T1}")
    a(f"v_add_f32 v{SI}, v{SI}, v{T2}")
    for sw in ("v_permlane32_swap_b32", "v_permlane16_swap_b32"):
        a(f"v_mov_b32 v{T1}, v{SR}")
        a(f"v_mov_b32 v{T2}, v{SI}")
        a(f"{sw} v{SR}, v{T1}")
        a(f"{sw} v{SI}, v{T2}")
        a(f"v_add_f32 v{SR}, v{SR}, v{T1}")
        a(f"v_add_f32 v{SI}, v{SI}, v{T2}")
    a(f"v_fmac_f32 v{QR}, v{LWR}, v{SR}")
    a(f"v_fmac_f32 v{QI}, v{LWR}, v{SI}")
    a(f"v_fma_f32 v{QR}, -v{LWI}, v{SI}, v{QR}")
    a(f"v_fmac_f32 v{QI}, v{LWI}, v{SR}")
    a(f"v_fmac_f32 v{HR}, v{PWR}, v{QR}")
    a(f"v_fmac_f32 v{HI}, v{PWR}, v{QI}")
    a(f"v_fma_f32 v{HR}, -v{PWI}, v{QI}, v{HR}")
    a(f"v_fmac_f32 v{HI}, v{PWI}, v{QR}")
    pr, pi = HR, HI
    PK, HF = 96, 80
    rest = co[:cfg.c2]
    for r in range(16):
        if rest: rest.pop(0)()
        a(f"v_fma_f32 v{X+r}, -v{LI}, v{pi}, v{X+r}")
        a(f"v_fma_f32 v{Y+r}, v{LI}, v{pr}, v{Y+r}")
        a(f"v_fmac_f32 v{X+r}, v{LR}, v{pr}")
        a(f"v_fmac_f32 v{Y+r}, v{LR}, v{pi}")
        pr, pi = X + r, Y + r
    for k in range(8):
        a(f"v_cvt_pk_bf16_f32 v{PK+k}, v{X+2*k}, v{X+2*k+1}")
    a(f"ds_write_b128 v{vTW}, v[{PK}:{PK+3}]")
    a(f"ds_write_b128 v{vTW}, v[{PK+4}:{PK+7}] offset:16")
    for k in range(8):
        a(f"v_cvt_pk_bf16_f32 v{PK+8+k}, -v{Y+2*k}, -v{Y+2*k+1}")
    a(f"ds_write_b128 v{vTW}, v[{PK+8}:{PK+11}] offset:2048")
    a(f"ds_write_b128 v{vTW}, v[{PK+12}:{PK+15}] offset:2064")
    for q in range(2):
        for part in range(2):
            for j in range(2):
                d = HF + 8 * q + 4 * part + 2 * j
                a(f"ds_read_b64_tr_b16 v[{d}:{d+1}], v{vTR} offset:{(part*16 + 4*j)*128 + 64*(q ^ j)}")
    assert not rest
    a("s_waitcnt lgkmcnt(0)")
    for q in range(2):
        for part in range(2):
            d = HF + 8 * q + 4 * part
            a(f"s_add_u32 s11, s19, {q*RT_BYTES + part*HALF_BYTES}")
            vm.issue('hs', f"buffer_store_dwordx4 v[{d}:{d+3}], v{vP}, s[{SRD_WS}:{SRD_WS+3}], s11 offen{SP}")
    if cfg.wl: wrest()
    def flag2():
        vm.wait('hs')
        a("s_mov_b64 exec, 1")
        vm.issue('f', f"buffer_store_dword v{vOne}, v{vF}, s[{SRD_WS}:{SRD_WS+3}], 0 offen sc1")
        a("s_mov_b64 exec, -1")
        ts(7)
    if cfg.f2b == 0: flag2()
    for o in co[cfg.c2:] + (c_ops(2) if not cfg.clate else []): o()
    if cfg.f2b == 1: flag2()
    a(f"s_and_b32 s11, s{S_W4}, 1")
    a("s_lshl_b32 s11, s11, 8")
    a(f"s_add_u32 s11, s11, {ST2_L}")
    a(f"v_lshl_add_u32 v{vT+3}, v{vT+3}, 7, s11")
    STT = 32
    for k in range(8): a(f"ds_read_b128 v[{STT+4*k}:{STT+4*k+3}], v{vT+3} offset:{16*k}")
    for r in range(16): a(f"v_lshlrev_b32 v{XV+r}, 16, v{XV+r}")
    a("s_waitcnt lgkmcnt(0)")
    a("s_setprio 0")
    def rnd_pair(r0, r1):
        a(f"v_cvt_pk_bf16_f32 v{r1}, v{r0}, v{r1}"); a(f"v_lshlrev_b32 v{r0}, 16, v{r1}"); a(f"v_and_b32 v{r1}, s71, v{r1}")
    for r in range(16): a(f"v_sub_f32 v{TT+r}, v{XV+r}, v{STT+2*r}")
    for k in range(8): rnd_pair(TT + 2 * k, TT + 2 * k + 1)
    a(f"v_mov_b32 v{T2}, 3")
    vm.wait(('w', 27))
    a(f"ds_write_b32 v{vRd}, v{T2}")
    for r in range(16): a(f"v_mul_f32 v{TT+r}, v{TT+r}, v{STT+2*r+1}")
    for k in range(8): rnd_pair(TT + 2 * k, TT + 2 * k + 1)
    for r in range(16): a(f"v_mul_f32 v{TT+r}, v{TT+r}, v{DS}")
    for k in range(8): rnd_pair(TT + 2 * k, TT + 2 * k + 1)
    def poll(name, off):
        sspin(a, name, [f"s_load_dwordx16 s[20:35], s[{P_WS}:{P_WS+1}], s18 glc"], pcond, cfg.psleep)
    if True:
        def pcond():
            for k in range(0, 12, 4): a(f"s_and_b64 s[{20+k}:{21+k}], s[{20+k}:{21+k}], s[{22+k}:{23+k}]")
            a("s_and_b64 s[20:21], s[20:21], s[24:25]")
            a("s_and_b64 s[28:29], s[28:29], s[32:33]")
            a("s_and_b64 s[20:21], s[20:21], s[28:29]")
            a("s_and_b32 s20, s20, s21")
            a("s_cmp_eq_u32 s20, 1")
    a(f"s_mul_i32 s57, s40, {RT_BYTES}")
    a("s_xor_b32 s11, s40, 1")
    a(f"s_mul_i32 s56, s11, {RT_BYTES}")
    a(f"s_lshr_b32 s11, s{S_W4}, 1")
    a(f"s_mul_i32 s11, s11, {HALF_BYTES}")
    a(f"s_add_u32 s11, s11, {56*1024}")
    a("s_add_u32 s56, s56, s11")
    a("s_add_u32 s57, s57, s11")
    a(f"s_and_b32 s12, s{S_W4}, 1")
    a("s_lshl_b32 s13, s12, 14")
    for b in range(3): a(f"s_add_u32 s{52+b}, s13, {b*4096}")
    a("s_lshl_b32 s12, s12, 11")
    a(f"s_add_u32 s55, s12, {12*1024}")
    srd(a, 60, P_OUT, 2048 * 1792)
    vW1, vW2, vCn, vCv = 1, 2, 9, 4
    vR = [3, 12, 13, 14]
    a(f"v_add_u32 v{vW1}, {PH1}, v{vPQ}")
    a(f"v_add_u32 v{vW2}, {PH2}, v{vPQ}")
    a(f"v_mov_b32 v{vCn}, {CNT_L}")
    for (reg, xr, base) in ((vR[0], 1, PH1), (vR[1], 3, PH1 + 4096), (vR[2], 2, PH2)):
        a(f"s_xor_b32 s11, s{S_W4}, {xr}")
        a(f"s_mul_i32 s11, s11, {Q}")
        a(f"s_add_u32 s11, s11, {base}")
        a(f"v_add_u32 v{reg}, s11, v{vP}")
    a(f"v_add_u32 v{vR[3]}, {GA}, v{vPQ}")
    ts.x(2, 11)
    ts.x(7, 11)
    AR = list(range(16, 64, 4))
    NA = len(AR)
    PO = [4, 5, 6, 7, 12, 13, 0, 1, 2, 3, 8, 9, 10, 11]
    def aload(n):
        lr, p = n // 14, PO[n % 14]
        if p % 4 == 0: a(f"s_add_u32 s58, s{56+lr}, s{52 + p//4}")
        d = AR[n % NA]
        vm.issue(('a', n), f"buffer_load_dwordx4 v[{d}:{d+3}], v{vP}, s[{SRD_WS}:{SRD_WS+3}], s58 offen offset:{(p%4)*1024}{AP}")
    def cnt_wait(name, off):
        a("s_mov_b32 s73, 0")
        a.label(name)
        a("s_waitcnt lgkmcnt(0)")
        a(f"v_readfirstlane_b32 s11, v{vCv}")
        a("s_cmp_ge_u32 s11, 4")
        a(f"s_cbranch_scc1 {name}ok")
        a("s_add_u32 s73, s73, 1")
        a(f"s_cmp_ge_u32 s73, {SPIN_MAX}")
        a(f"s_cbranch_scc1 {name}ok")
        a("s_sleep 1")
        a(f"ds_read_b32 v{vCv}, v{vCn} offset:{off}")
        a(f"s_branch {name}")
        a.label(name + "ok")
        a("s_nop 7")
    assert cfg.clate == 2 and cdone == {1, 3}
    if cfg.gate == 0: poll("L_ps", 128)
    if cfg.gate < 2:
        a(f"ds_read_b32 v{vCv}, v{vCn} offset:4")
        cnt_wait("L_l_c0", 4)
    if cfg.sprio: a(f"s_setprio {cfg.sprio}")
    cc = c_ops(0) + c_ops(2)
    for o in cc[:cfg.c0n]: o()
    if cfg.gate != 0: poll("L_ps", 128)
    ts(9)
    ts.x(7, 1)
    for n in range(6): aload(n)
    for o in cc[cfg.c0n:8]: o()
    for n in range(6, 10): aload(n)
    for o in cc[max(8, cfg.c0n):]: o()
    for n in range(10, NA): aload(n)
    a("s_setprio 0")
    ts.x(7, 2)
    for n in range(28):
        lr, p = n // 14, PO[n % 14]
        vm.wait(('a', n))
        assert ('c', min(p // 4, 3)) not in vm.q
        if n in (0, 7, 14, 21): ts.x(7, 3 + n // 7)
        d = AR[n % NA]
        for lc in (1, 0):
            acc = SACC + 32 * lr + 16 * lc
            c = "0" if (n % 14 == 0 and not (lr == 1 and lc == 0)) else f"v[{acc}:{acc+15}]"
            f = cfrag(p, lc)
            a(f"v_mfma_f32_32x32x16_bf16 v[{acc}:{acc+15}], v[{d}:{d+3}], v[{f}:{f+3}], {c}")
        if n + NA < 28: aload(n + NA)
        if cfg.gate == 2 and n == 14: a(f"ds_read_b32 v{vCv}, v{vCn} offset:4")
        if cfg.gate == 2 and n == 15: cnt_wait("L_l_c0", 4)
        if 16 <= n < 24:
            k = n - 16
            a(f"ds_write_b128 v{vW1}, v[{SACC+4*k}:{SACC+4*k+3}] offset:{1024*k}")
    ts(10)
    ts.x(7, 7)
    ts.x(7, 8)
    for k in range(4):
        a(f"ds_write_b128 v{vW2}, v[{SACC+48+4*k}:{SACC+48+4*k+3}] offset:{1024*k}")
    a("s_waitcnt lgkmcnt(0)")
    ts.x(7, 9)
    a("s_barrier")
    ts(11)
    ts.x(7, 10)
    RX = CF
    for k in range(4):
        for w in range(4):
            a(f"ds_read_b128 v[{RX+16*w+4*k}:{RX+16*w+4*k+3}], v{vR[w]} offset:{1024*k}")
    for k in range(4):
        a(f"s_waitcnt lgkmcnt({12 - 4*k})")
        for r in range(4 * k, 4 * k + 4):
            a(f"v_add_f32 v{TT+r}, v{TT+r}, v{RX+r}")
            a(f"v_add_f32 v{RX+16+r}, v{RX+16+r}, v{RX+32+r}")
        for r in range(4 * k, 4 * k + 4):
            a(f"v_add_f32 v{TT+r}, v{TT+r}, v{RX+16+r}")
        for r in range(4 * k, 4 * k + 4):
            a(f"v_fma_f32 v{XV+r}, v{TT+r}, v{RX+48+r}, v{XV+r}")
            if r % 2 == 0: a(f"s_mov_b32 s11, {r*1792}")
            a(f"buffer_store_dword v{XV+r}, v{vO}, s[60:63], s11 offen offset:{(r%2)*1792}{OP}")
    if cfg.ts:
        a("s_waitcnt vmcnt(0)")
        ts(12)
    if cfg.padto:
        a.label("L_pad")
        a("s_memrealtime s[98:99]")
        a("s_waitcnt lgkmcnt(0)")
        a("s_sub_u32 s98, s98, s100")
        a(f"s_cmp_lt_u32 s98, {cfg.padto}")
        a("s_cbranch_scc1 L_pad")
    ts.dump(16, 17, 1)
    a("s_endpgm")

def gen_consumer(a, cfg, ts):
    a.label("L_consumer")
    SP = ["", " sc1"][cfg.spol]
    AP = ['', ' sc1', ' sc1 nt', ' sc0 sc1', ' sc0', ' nt'][cfg.apol]
    vm = VM(a)
    XA = [1, 2, 3, 4]; BA = [5, 6, 7, 8]; WA = [9, 10]
    vL16, vStF, vCL, vF, vFl, vSo, vCn, vRd, vWB, vPQ, vOne, MM = 11, 12, 13, 14, 15, 16, 17, 18, 19, 20, 21, 22
    FS = [40, 68]
    ACC = 96
    def G(ft, q): return ACC + 16 * (2 * ft + q)
    def U(ft, q): return ACC + 64 + 16 * (2 * ft + q)
    def S(q): return ACC + 128 + 16 * q
    vI, vH, t0, t1, t2 = 24, 25, 26, 27, 28
    a(f"v_and_b32 v{vI}, 31, v0")
    a(f"v_lshrrev_b32 v{vH}, 5, v0")
    a(f"v_bfe_u32 v{t0}, v0, 1, 3")
    a(f"v_xor_b32 v{t0}, v{t0}, v{vH}")
    a(f"v_lshlrev_b32 v{t0}, 4, v{t0}")
    a(f"v_lshl_add_u32 v{t0}, v{vI}, 7, v{t0}")
    a(f"s_lshl_b32 s11, s{S_W4}, 13")
    for ks in range(4):
        a(f"v_xor_b32 v{t1}, {32*ks}, v{t0}")
        a(f"v_add_u32 v{XA[ks]}, s11, v{t1}")
        a(f"v_add_u32 v{BA[ks]}, {OFF_BB}, v{t1}")
    a(f"v_bfe_u32 v{t0}, v0, 2, 2")
    a(f"v_lshlrev_b32 v{t1}, 7, v{t0}")
    a(f"v_lshrrev_b32 v{t0}, 1, v{t0}")
    a(f"v_lshl_add_u32 v{t1}, v{t0}, 6, v{t1}")
    a(f"v_bfe_u32 v{t0}, v0, 4, 1")
    a(f"v_lshl_add_u32 v{t1}, v{t0}, 5, v{t1}")
    a(f"v_and_b32 v{t2}, 3, v0")
    a(f"v_lshl_add_u32 v{t1}, v{t2}, 3, v{t1}")
    a(f"v_lshl_add_u32 v{WA[0]}, v{vH}, 10, v{t1}")
    a(f"v_add_u32 v{WA[0]}, {OFF_WG}, v{WA[0]}")
    a(f"v_xor_b32 v{WA[1]}, 64, v{WA[0]}")
    a(f"s_mul_i32 s62, s{S_W4}, {Q}")
    a(f"s_lshr_b32 s59, s{S_W4}, 1")
    a(f"s_and_b32 s63, s{S_W4}, 1")
    a("s_lshl_b32 s11, s59, 6")
    a(f"v_lshl_add_u32 v{vWB}, v{vH}, 9, v{t1}")
    a(f"v_xor_b32 v{vWB}, s11, v{vWB}")
    a(f"v_add_u32 v{vWB}, s62, v{vWB}")
    a("s_waitcnt lgkmcnt(0)")
    a(f"s_lshl_b32 s11, s{S_NS}, 5")
    a(f"s_load_dwordx8 s[32:39], s[{P_LRE}:{P_LRE+1}], s11")
    a(f"s_load_dwordx8 s[64:71], s[{P_LDT}:{P_LDT+1}], s11")
    a(f"s_load_dwordx8 s[24:31], s[{P_LIM}:{P_LIM+1}], s11")
    for k in range(160): a(f"v_mov_b32 v{ACC+k}, 0")
    a(f"v_mov_b32 v{vCn}, {CNT_L}")
    a(f"ds_write_b128 v{vCn}, v[{ACC}:{ACC+3}]")
    a(f"ds_write_b128 v{vCn}, v[{ACC}:{ACC+3}] offset:16")
    a(f"v_bfe_u32 v{t0}, v0, 2, 1")
    a(f"v_lshl_add_u32 v{t0}, v{t0}, 4, v{t2}")
    a(f"v_bfe_u32 v{t1}, v0, 3, 2")
    a(f"v_lshl_add_u32 v{t0}, v{t1}, 2, v{t0}")
    a(f"s_lshl_b32 s11, s{S_W4}, 9")
    a(f"s_add_u32 s11, s11, {STATS_L}")
    a(f"v_lshl_add_u32 v{vStF}, v{t0}, 3, s11")
    a(f"v_lshlrev_b32 v{vL16}, 4, v0")
    a(f"v_add_u32 v{vPQ}, s62, v{vL16}")
    a(f"v_lshlrev_b32 v{vCL}, 4, v{vH}")
    a(f"v_add_u32 v{vCL}, {C_L}, v{vCL}")
    a(f"v_mov_b32 v{vOne}, 1")
    a(f"s_lshl_b32 s11, s{S_W4}, 2")
    a(f"s_add_u32 s11, s11, {CNT_L + 16}")
    a(f"v_mov_b32 v{vRd}, s11")
    a("s_lshl_b32 s11, s63, 8")
    a(f"s_add_u32 s11, s11, {ST2_L}")
    a(f"v_lshl_add_u32 v{vSo}, v{vH}, 7, s11")
    a(f"s_lshl_b32 s13, s{S_MT}, 2")
    a(f"s_add_u32 s13, s13, s{S_W4}")
    a(f"s_mul_i32 s56, s13, {2*RT_BYTES}")
    a(f"s_cmp_ge_u32 s{S_NS}, 14")
    a(f"s_cselect_b32 s11, {HALF_BYTES - 56*1024}, 0")
    a(f"s_lshl_b32 s12, s{S_NS}, 12")
    a("s_add_u32 s11, s11, s12")
    a("s_add_u32 s56, s56, s11")
    a(f"s_add_u32 s57, s56, {RT_BYTES}")
    a("s_lshl_b32 s11, s13, 10")
    flag_index(a, 12, 14, 7)
    a("s_add_u32 s11, s11, s12")
    a(f"s_add_u32 s11, s11, {WS_FLAG:#x}")
    a(f"v_mov_b32 v{vF}, s11")
    a(f"s_lshl_b32 s55, s{S_M64}, 10")
    a(f"s_add_u32 s55, s55, {WS_FLAG:#x}")
    a(f"s_lshl_b32 s11, s{S_W4}, 7")
    a("s_add_u32 s55, s55, s11")
    a(f"s_mul_i32 s12, s59, {HALF_BYTES}")
    a(f"s_mul_i32 s13, s63, {28*1024}")
    a("s_add_u32 s12, s12, s13")
    a(f"s_lshl_b32 s11, s{S_M64}, 1")
    a("s_add_u32 s11, s11, s63")
    a(f"s_mul_i32 s52, s11, {RT_BYTES}")
    a("s_add_u32 s52, s52, s12")
    a("s_xor_b32 s11, s11, 1")
    a(f"s_mul_i32 s51, s11, {RT_BYTES}")
    a("s_add_u32 s51, s51, s12")
    p2_rot(a, cfg, 60, 61, 58)
    a("s_mov_b32 s12, 0x00030003")
    a("s_mov_b32 s13, 0x00030003")
    a("s_waitcnt lgkmcnt(0)")
    K, KP = 40, 64
    for k in range(8):
        a(f"s_lshl_b64 exec, s[12:13], {2*k}")
        for m, sb in enumerate((32, 24, 64)): a(f"v_mov_b32 v{K+m}, s{sb+k}")
    a("s_mov_b64 exec, -1")
    a(f"v_and_b32 v{K+3}, 1, v0")
    a(f"v_lshlrev_b32 v{K+3}, 4, v{K+3}")
    for m in range(3): a(f"v_lshrrev_b32 v{K+m}, v{K+3}, v{K+m}")
    srd(a, SRD_WS, P_WS, WS_SIZE)
    ssm_park(a, K, KP, 62)
    a(f"v_mov_b32 v{KP+23}, 0")
    a(f"s_lshl_b32 s11, s{S_W4}, 13")
    a(f"s_add_u32 s11, s11, {R[2]}")
    a(f"v_add_u32 v{K}, s11, v{vL16}")
    for k in range(6): a(f"ds_write_b128 v{K}, v[{KP+4*k}:{KP+4*k+3}] offset:{1024*k}")
    a("s_waitcnt lgkmcnt(0)")
    ts(1)

    def reads(fs, ks):
        f = FS[fs]
        L = []
        L.append(f"ds_read_b128 v[{f}:{f+3}], v{XA[ks]}")
        L.append(f"ds_read_b128 v[{f+24}:{f+27}], v{BA[ks]}")
        L.append(f"ds_read_b128 v[{f+4}:{f+7}], v{XA[ks]} offset:4096")
        for gu in range(2):
            for ft in range(2):
                for j in range(2):
                    d = f + 8 + 8 * gu + 4 * ft + 2 * j
                    L.append(f"ds_read_b64_tr_b16 v[{d}:{d+1}], v{WA[ft]} offset:{gu*8192 + ks*2048 + j*512}")
        return L
    def mfmas(fs):
        f = FS[fs]
        X = [f, f + 4]; Bf = f + 24
        L = []
        for q in range(2):
            L.append(f"v_mfma_f32_32x32x16_bf16 v[{S(q)}:{S(q)+15}], v[{X[q]}:{X[q]+3}], v[{Bf}:{Bf+3}], v[{S(q)}:{S(q)+15}]")
        for gu in range(2):
            for ft in range(2):
                w = f + 8 + 8 * gu + 4 * ft
                for q in range(2):
                    d = (G, U)[gu](ft, q)
                    L.append(f"v_mfma_f32_32x32x16_bf16 v[{d}:{d+15}], v[{w}:{w+3}], v[{X[q]}:{X[q]+3}], v[{d}:{d+15}]")
        return L
    a("s_setprio 2")
    a("s_mov_b32 s72, 0")
    a("s_mov_b32 s74, 0")
    a("s_barrier")
    ts(2)
    for t in reads(0, 0): a(t)
    a.label("L_c_loop")
    need = {0: 9, 1: 8, 2: 6, 4: 4, 6: 2, 8: 0}
    for ks in range(4):
        fs = ks & 1
        M = mfmas(fs)
        if ks < 3:
            Rd = reads(1 - fs, ks + 1)
            issued = 0
            for i, m in enumerate(M):
                if i in need: a(f"s_waitcnt lgkmcnt({min(15, need[i] + issued)})")
                a(m)
                for _ in range(2 if i >= cfg.rdstart else 0):
                    if Rd: a(Rd.pop(0)); issued += 1
        else:
            Rd = reads(1 - fs, 0)
            a("s_waitcnt lgkmcnt(9)")
            a(M[0])
            a("s_add_u32 s74, s74, 1")
            a("s_cmp_eq_u32 s74, 3")
            a("s_mov_b32 s75, 53248")
            a(f"s_cmov_b32 s75, {(-106496) & 0xffffffff:#x}")
            a("s_cselect_b32 s74, 0, s74")
            for v in XA + BA[:1]: a(f"v_add_u32 v{v}, s75, v{v}")
            a("s_waitcnt lgkmcnt(8)")
            a(M[1])
            for v in BA[1:] + WA: a(f"v_add_u32 v{v}, s75, v{v}")
            a("s_add_u32 s72, s72, 1")
            a("s_cmp_eq_u32 s72, 6")
            a("s_waitcnt lgkmcnt(0)")
            a(M[2])
            a("s_barrier")
            hist = list(a.hist)
            a("s_cbranch_scc1 L_c_last")
            for m in M[3:]:
                for _ in range(2):
                    if Rd: a(Rd.pop(0))
                a(m)
            a("s_branch L_c_loop")
            a.label("L_c_last")
            a.hist = hist
            Mtail = M[3:]
    lq = []
    def ds_issue(tag, t):
        a(t)
        if t.startswith("ds_"): lq.append(tag)
    def ds_wait(tag):
        idx = max((i for i, t in enumerate(lq) if t == tag), default=None)
        if idx is None: return None
        n = len(lq) - 1 - idx
        del lq[:idx + 1]
        return f"lgkmcnt({min(n, 15)})"
    def dwait(tag):
        w = ds_wait(tag)
        if w: a(f"s_waitcnt {w}")
    UB = [24, 40, 56]
    def ureads(u):
        b, ks = UB[u % 3], u % 4
        L = [f"ds_read_b128 v[{b}:{b+3}], v{XA[ks]}"]
        if u < 8:
            ft = u // 4
            for gu in range(2):
                for j in range(2):
                    d = b + 8 + 4 * gu + 2 * j
                    L.append(f"ds_read_b64_tr_b16 v[{d}:{d+1}], v{WA[ft]} offset:{gu*8192 + ks*2048 + j*512}")
        else:
            L.append(f"ds_read_b128 v[{b+8}:{b+11}], v{BA[ks]}")
        L.append(f"ds_read_b128 v[{b+4}:{b+7}], v{XA[ks]} offset:4096")
        return [(u, t) for t in L]
    def umfma(u):
        b = UB[u % 3]
        L = []
        for q in range(2):
            x = b + 4 * q
            if u < 8:
                for gu in range(2):
                    d = (G, U)[gu](u // 4, q); w = b + 8 + 4 * gu
                    L.append(f"v_mfma_f32_32x32x16_bf16 v[{d}:{d+15}], v[{w}:{w+3}], v[{x}:{x+3}], v[{d}:{d+15}]")
            else:
                L.append(f"v_mfma_f32_32x32x16_bf16 v[{S(q)}:{S(q)+15}], v[{x}:{x+3}], v[{b+8}:{b+11}], v[{S(q)}:{S(q)+15}]")
        return L
    Rd = ureads(0) + ureads(1)
    for m in Mtail:
        for _ in range(2):
            if Rd: ds_issue(*Rd.pop(0))
        a(m)
    CH = 72
    def chalf(p):
        for gu in range(2):
            for k in range(2):
                ds_issue(('c', p), f"ds_read_b128 v[{CH+8*gu+4*k}:{CH+8*gu+4*k+3}], v{vCL} offset:{256*gu + 32*(2*p+k)}")
    def hstore(ft, q, p):
        g = G(ft, q)
        vm.issue('h', f"buffer_store_dwordx4 v[{g+4*p}:{g+4*p+3}], v{vL16}, s[{SRD_WS}:{SRD_WS+3}], s{56+q} offen offset:{(2*ft+p)*1024}{SP}")
    ep = [lambda: dwait(('c', 0)), f"v_xor_b32 v{MM}, 0x80000000, v{MM}", f"v_xor_b32 v{MM+1}, 0x80000000, v{MM+1}"]
    for p in range(2):
        if p: ep.append(lambda: dwait(('c', 1)))
        for q in range(2):
            g, u = G(0, q) + 8 * p, U(0, q) + 8 * p
            for k in range(8): ep.append(f"v_fmac_f32 v{g+k}, v{MM+q}, v{CH+k}")
            for k in range(8): ep.append(f"v_fmac_f32 v{u+k}, v{MM+q}, v{CH+8+k}")
            if q == 1 and p == 0: ep.append(lambda: chalf(1))
            for k in range(8): ep.append(f"v_max_f32 v{g+k}, 0, v{g+k}")
            for k in range(8): ep.append(f"v_mul_f32 v{u+k}, v{u+k}, v{g+k}")
            for k in range(4): ep.append(f"v_cvt_pk_bf16_f32 v{G(0,q)+4*p+k}, v{u+2*k}, v{u+2*k+1}")
            ep.append(lambda q=q, p=p: hstore(0, q, p))
    def fill(n):
        while n > 0 and ep:
            t = ep.pop(0)
            if callable(t): t()
            else: a(t)
            n -= 1
    def cread(tag, dst, off):
        for k in range(4): ds_issue(tag, f"ds_read_b128 v[{dst+4*k}:{dst+4*k+3}], v{vCL} offset:{off + 32*k}")
    for u in range(12):
        dwait(u)
        if u == 11:
            a("s_barrier")
        Rd = ureads(u + 2) if u + 2 < 12 else []
        for i, m in enumerate(umfma(u)):
            a(m)
            for _ in range(2):
                if Rd: ds_issue(*Rd.pop(0))
            if u > 4 or (u == 4 and i >= 1): fill(cfg.fper - 1 if u < 10 else cfg.fper)
        if u == cfg.c2u:
            a("s_barrier")
            ds_issue(('c', 0), f"ds_read_b32 v{MM}, v{vStF}")
            ds_issue(('c', 0), f"ds_read_b32 v{MM+1}, v{vStF} offset:256")
            chalf(0)
        if u == 9: cread('cg', UB[0], 128)
        if u == 10: cread('cu', UB[1], 384)
    ts(3)
    fill(1000)
    dump = [f"ds_write_b128 v{vPQ}, v[{S(0)+4*k}:{S(0)+4*k+3}] offset:{SD + 1024*k}" for k in range(8)]
    WB = {0: [1, 2], 1: [3, 4], 2: [5, 6]}
    for rg in range(3):
        a(f"v_add_u32 v{WB[rg][0]}, {R[rg]}, v{vWB}")
        a(f"v_xor_b32 v{WB[rg][1]}, 64, v{WB[rg][0]}")
    dwait('cu')
    cg, cu = UB[0], UB[1]
    for q in range(2):
        g, u = G(1, q), U(1, q)
        sel = f"op_sel:[{q},0,0] op_sel_hi:[{q},1,1]"
        for p in range(2):
            kr = range(4 * p, 4 * p + 4)
            for k in kr:
                a(f"v_pk_fma_f32 v[{g+2*k}:{g+2*k+1}], v[{MM}:{MM+1}], v[{cg+2*k}:{cg+2*k+1}], v[{g+2*k}:{g+2*k+1}] {sel}")
                if dump: a(dump.pop(0))
            for k in kr:
                a(f"v_pk_fma_f32 v[{u+2*k}:{u+2*k+1}], v[{MM}:{MM+1}], v[{cu+2*k}:{cu+2*k+1}], v[{u+2*k}:{u+2*k+1}] {sel}")
                a(f"v_max_f32 v{g+2*k}, 0, v{g+2*k}")
                a(f"v_max_f32 v{g+2*k+1}, 0, v{g+2*k+1}")
            for k in kr:
                a(f"v_pk_mul_f32 v[{u+2*k}:{u+2*k+1}], v[{u+2*k}:{u+2*k+1}], v[{g+2*k}:{g+2*k+1}]")
            for k in kr:
                a(f"v_cvt_pk_bf16_f32 v{g+k}, v{u+2*k}, v{u+2*k+1}")
            if q == 0 and p == 1:
                a("s_waitcnt lgkmcnt(0)")
                a("s_barrier")
            hstore(1, q, p)
    del lq[:]
    ts(4)
    BR, NB = 160, 12
    def breads(p):
        sl = WSLOT[p]
        rg = max(k for k in range(3) if R[k] <= sl)
        L = []
        for lc in range(2):
            for jj in range(2):
                d = BR + 8 * (p % NB) + 4 * lc + 2 * jj
                L.append(f"ds_read_b64_tr_b16 v[{d}:{d+1}], v{WB[rg][lc]} offset:{sl - R[rg] + jj*1024}")
        return L
    for p in range(NB):
        for t in breads(p): a(t)
    def flag1():
        vm.wait('h')
        a("s_setprio 3")
        a("s_mov_b64 exec, 1")
        vm.issue('f', f"buffer_store_dword v{vOne}, v{vF}, s[{SRD_WS}:{SRD_WS+3}], 0 offen sc1")
        a("s_mov_b64 exec, -1")
        ts(6)
    if cfg.fpre: flag1()
    a("s_waitcnt lgkmcnt(0)")
    a("s_barrier")
    ts(5)
    if not cfg.fpre: flag1()
    AF = 96
    AR = list(range(24, 96, 4))
    NA = len(AR)
    def aload(n):
        p, lr = n // 2, n % 2
        if n % 8 == 0:
            a(f"s_lshl_b32 s11, s60, 12")
            a(f"s_add_u32 s54, s11, s52")
            a(f"s_add_u32 s53, s11, s51")
            a(f"s_add_u32 s60, s60, 1")
            a(f"s_cmp_eq_u32 s60, 7")
            a(f"s_cselect_b32 s60, 0, s60")
        d = AR[n % NA]
        vm.issue(('a', n), f"buffer_load_dwordx4 v[{d}:{d+3}], v{vL16}, s[{SRD_WS}:{SRD_WS+3}], s{54 - lr} offen offset:{(p%4)*1024}{AP}")
    def cond():
        a("s_and_b64 s[16:17], s[16:17], s[18:19]")
        a("s_and_b64 s[16:17], s[16:17], s[20:21]")
        a("s_and_b32 s16, s16, s17")
        a("s_and_b32 s16, s16, s22")
        a("s_cmp_eq_u32 s16, 1")
    sspin(a, "L_pf", [f"s_load_dwordx8 s[16:23], s[{P_WS}:{P_WS+1}], s55 glc"], cond, cfg.fsleep)
    a("s_setprio 2")
    ts(7)
    for n in range(cfg.a0): aload(n)
    nxt = [cfg.a0]
    ts(8)
    def lds_spin(name, vaddr, off, val):
        a("s_mov_b32 s73, 0")
        a.label(name)
        a("s_waitcnt lgkmcnt(0)")
        a("v_readfirstlane_b32 s11, v8")
        a(f"s_cmp_ge_u32 s11, {val}")
        a(f"s_cbranch_scc1 {name}ok")
        a("s_add_u32 s73, s73, 1")
        a(f"s_cmp_ge_u32 s73, {SPIN_MAX}")
        a(f"s_cbranch_scc1 {name}ok")
        a("s_sleep 1")
        a(f"ds_read_b32 v8, v{vaddr} offset:{off}")
        a(f"s_branch {name}")
        a.label(name + "ok")
        del lq[:]
    for p in range(28):
        f = BR + 8 * (p % NB)
        pn = p + cfg.bd
        for lr in range(2):
            n = 2 * p + lr
            w = ds_wait(p) if lr == 0 else None
            vm.wait(('a', n), w or "")
            if n == 0: ts(9)
            if n in (0, 7, 17, 25, 35): ts.x(6, {0: 7, 7: 8, 17: 9, 25: 10, 35: 11}[n])
            if lr == 0 and pn in (12, 16, 22): ds_issue('r', f"ds_read_b32 v8, v{vRd}")
            d = AR[n % NA]
            for lc in range(2):
                acc = AF + 32 * lr + 16 * lc
                c = "0" if p == 0 else f"v[{acc}:{acc+15}]"
                a(f"v_mfma_f32_32x32x16_bf16 v[{acc}:{acc+15}], v[{d}:{d+3}], v[{f+4*lc}:{f+4*lc+3}], {c}")
            for _ in range(2):
                if nxt[0] < 56 and nxt[0] <= n + NA:
                    aload(nxt[0]); nxt[0] += 1
        if pn in (12, 16, 22): lds_spin(f"L_c_r{pn}", vRd, 0, {12: 1, 16: 2, 22: 3}[pn])
        if p == cfg.ksig:
            assert pn > 15
            w = ds_wait(15)
            if w: a(f"s_waitcnt {w}")
            a("s_mov_b64 exec, 1")
            ds_issue('c', f"ds_add_u32 v{vCn}, v{vOne} offset:4")
            a("s_mov_b64 exec, -1")
        if NB <= pn < 28:
            for t in breads(pn): ds_issue(pn, t)
        if p == 24:
            STT = BR + 32
            for k in range(8): ds_issue('st', f"ds_read_b128 v[{STT+4*k}:{STT+4*k+3}], v{vSo} offset:{16*k}")
        if p == 26:
            for x in range(1, 4):
                a(f"s_xor_b32 s11, s{S_W4}, {x}")
                a(f"s_mul_i32 s11, s11, {Q}")
                a(f"s_add_u32 s11, s11, {FXA + (x-1)*4096}")
                a(f"v_add_u32 v{x}, s11, v{vL16}")
            a(f"v_add_u32 v4, {GA}, v{vPQ}")
            a(f"v_add_u32 v5, {FXA}, v{vPQ}")
        if p % 4 == 3: ts.x(4, 1 + p // 4)
    ts(11)
    ts.x(7, 1)
    for x in (2, 1, 3):
        src = AF + 32 * (x & 1) + 16 * (x >> 1)
        for k in range(4):
            a(f"ds_write_b128 v5, v[{src+4*k}:{src+4*k+3}] offset:{(x-1)*4096 + 1024*k}")
    a("s_waitcnt lgkmcnt(12)")
    for r in range(16): a(f"v_mul_f32 v{STT+2*r}, v{STT+2*r+1}, v{STT+2*r+1}")
    a(f"s_mov_b32 s13, {LOG2E ^ 0x80000000:#x}")
    ts.x(7, 2)
    a("s_waitcnt lgkmcnt(0)")
    ts.x(7, 3)
    a("s_mov_b64 exec, 1")
    a(f"ds_add_u32 v{vCn}, v{vOne}")
    a("s_mov_b64 exec, -1")
    a(f"ds_read_b32 v8, v{vCn}")
    lds_spin("L_c_cnt", vCn, 0, 4)
    ts.x(7, 4)
    O, RX, EX = AF, 24, 72
    for k in range(4):
        for x in range(1, 4):
            a(f"ds_read_b128 v[{RX+16*(x-1)+4*k}:{RX+16*(x-1)+4*k+3}], v{x} offset:{1024*k}")
    for k in range(4):
        rr = range(4 * k, 4 * k + 4)
        a(f"s_waitcnt lgkmcnt({9 - 3*k})")
        for r in rr: a(f"v_add_f32 v{O+r}, v{O+r}, v{RX+r}")
        for r in rr: a(f"v_add_f32 v{RX+16+r}, v{RX+16+r}, v{RX+32+r}")
        for r in rr: a(f"v_add_f32 v{O+r}, v{O+r}, v{RX+16+r}")
        for r in rr: a(f"v_mul_f32 v{O+r}, v{O+r}, v{STT+2*r}")
        for r in rr: a(f"v_mul_f32 v{EX+r}, s13, v{O+r}")
        for r in rr: a(f"v_exp_f32 v{EX+r}, v{EX+r}")
    ts.x(7, 5)
    for k in range(4):
        rr = range(4 * k, 4 * k + 4)
        for r in rr: a(f"v_add_f32 v{EX+r}, 1.0, v{EX+r}")
        for r in rr: a(f"v_rcp_f32 v{EX+r}, v{EX+r}")
        for r in rr: a(f"v_mul_f32 v{O+r}, v{O+r}, v{EX+r}")
        a(f"ds_write_b128 v4, v[{O+4*k}:{O+4*k+3}] offset:{1024*k}")
    a("s_waitcnt lgkmcnt(0)")
    ts(12)
    a("s_barrier")
    ts.dump(24, 25, 0)
    a("s_endpgm")

HEADER = """; Fused S5-SSM + ReGLU block, one launch: 224 main workgroups (4 MFMA waves + 4 loader waves) + 32 helper workgroups.
; @launch grid=(256,1,1) block=(512,1,1) lds=163840
.amdgcn_target "amdgcn-amd-amdhsa--gfx950"
.text
.globl {k}
.p2align 8
.type {k},@function
{k}:
"""
FOOTER = """.section .rodata,"a"
.p2align 6
.amdhsa_kernel {k}
  .amdhsa_next_free_vgpr 256
  .amdhsa_next_free_sgpr 102
  .amdhsa_accum_offset 256
  .amdhsa_group_segment_fixed_size 0
  .amdhsa_kernarg_size 128
  .amdhsa_user_sgpr_count 2
  .amdhsa_user_sgpr_kernarg_segment_ptr 1
  .amdhsa_system_sgpr_workgroup_id_x 1
  .amdhsa_float_denorm_mode_32 3
.end_amdhsa_kernel
"""

def generate(cfg):
    WSOFF[0] = cfg.wsoff << 20
    a = Asm()
    ts = TS(a, cfg)
    gen_entry(a, cfg, ts)
    gen_loader(a, cfg, ts)
    gen_consumer(a, cfg, ts)
    gen_helper(a, cfg, ts)
    a.label("L_exit")
    a("s_endpgm")
    return HEADER.format(k=KNAME) + f"; wsoff={cfg.wsoff}\n" + a.text() + FOOTER.format(k=KNAME)

if __name__ == "__main__":
    cfg = Cfg()
    out = sys.argv[1]
    for kv in sys.argv[2:]:
        k, v = kv.split("=")
        setattr(cfg, k, int(v))
    open(out, "w").write(generate(cfg))
```

```python
import sys, os
sys.path.insert(0, os.path.dirname(os.path.abspath(__file__)))
from asmlib import Asm, VM

KNAME = "recurrent_scan__ssm_conv_s5__glu_gated_reglu__prompt_kernel"

R = [0, 53248, 106496]
MISC = 159744
OFF_WG, OFF_WU, OFF_BB = 32768, 40960, 49152
CP_L = R[1] + 49152
STATS_L = MISC
C_L = MISC + 2048
CNT_L = MISC + 2688
ST2_L = MISC + 2720
AGG_L = MISC + 3232
Q = 12288

RT_BYTES = 172032
HALF_BYTES = 86016
WS_STATS = 0xB00000
WS_AGG = WS_STATS + 0x4000
WS_FLAG = WS_AGG + 0x8000
INIT_N = 32
WS_CP = 0xB20000
WS_TS = 0xC00000
WS_SIZE = 0x1000000
SPIN_MAX = 1 << 20

S_WAVE, S_XCD, S_SLOT, S_MT, S_NS, S_M64, S_NT, S_W4 = 3, 4, 5, 6, 7, 8, 9, 10
P_X, P_LRE, P_LIM, P_BRE, P_BIM, P_CRE, P_CIM, P_LDT, P_DSK, P_BX, P_WG, P_WU, P_WD, P_OUT, P_DBG, P_WS = [16 + 2 * i for i in range(16)]
SRD_X, SRD_A, SRD_B, SRD_C, SRD_WS, SRD_E = 48, 52, 56, 60, 64, 68
TS0 = 76

LOG2E = 0x3fb8aa3b
LOG2E_LO = 0x32a57060
LN2 = 0x3f317218
INV2PI = 0x3e22f983

class Cfg:
    ts = 0
    tsset = 0
    pd = 16
    perm = 4
    rot = 2
    ssm_early = 0
    schedn = 0
    polx = 0
    apol = 1
    noa = 0
    nob = 0
    rdstart = 1
    polw = 0
    winn = 3
    loc = 1
    ws = 0
    crot = 0
    ipos = 0
    gate = 2
    c0n = 8
    agpos = 0
    c0early = 0
    hord = 1
    clate = 2
    wl = 1
    fper = 6
    c2u = 2
    probe = 0
    pwho = 0
    ponly = -1
    pmask = 0xffff
    wsoff = 0
    kwin = 2
    wprio = 0
    hdelay = 0
    eprio = 0
    c2late = 0
    cpf = 2
    padto = 0
    nocs = 0
    r2pre = 1
    tlb = 0
    bd = 4
    pollw = 24
    c1 = 12
    c2 = 16
    f2b = 1
    wfirst = 1
    @property
    def win(self):
        W = lambda a, b: [f"w{p}" for p in range(a, b)]
        if self.ws:
            m, n1, n2, n3, n4, n5, n6, cp, cs, ep = [int(c) for c in str(self.ws)[1:]]
            assert n1 + n2 + n3 + n4 + n5 + n6 == 10
            pos = [12]
            def take(n):
                r = W(pos[0], pos[0] + n); pos[0] += n; return r
            w = {}
            if m == 2: w[-1] = ["m", "s1:0-3"]; w[0] = ["cs0", "s1:3-13", "k", "s2:0-10"]; w[1] = ["cs1", "s2:10-13", "s3"]
            else: w[-1] = ["s1:0-6"]; w[0] = ["cs0", "s1:6-13", "k", "s2"] + (["m"] if m == 1 else []); w[1] = ["cs1"] + (["m"] if m == 3 else []) + ["s3"]
            w[1] += take(n1)
            w[2] = ["cs2", "s4"] + take(n2)
            w[3] = (["cs3", "s5:0-7", "cs4", "s5:7-13"] if cs == 1 else ["cs3", "s5"]) + take(n3)
            w[4] = {0: ["cs4", "init", "s6:0-7", "cs5", "s6:7-13"], 1: ["init", "s6:0-4", "cs5", "s6:4-13"], 2: ["cs4", "init", "s6"]}[cs] + take(n4)
            w[5] = (["cs5"] if cs == 2 else []) + ["fetch"] + W(0, 4) + ["cs6"] + W(4, 6) + take(n5) + {0: ["c3"], 1: [], 2: ["c3", "c1"], 3: ["c1"]}[cp] + ["put"]
            w[6] = W(6, 12) + take(n6) + {0: ["c1"], 1: ["c3", "c1"], 2: [], 3: ["c3"]}[cp]
            w[ep].append("e")
            if self.ipos:
                w[4].remove("init"); w[4].append("init")
                w[5].remove("fetch"); w[5].remove("put")
                w[5].insert(w[5].index("cs6") + 1, "fetch")
                w[6].insert(2, "put")
            return w
        return [
            {-1: ["s1:0-6"], 0: ["cs0", "s1:6-13", "k", "s2:0-9"], 1: ["cs1", "s2:9-13", "s3", "e"], 2: ["cs2", "s4"] + W(12, 14), 3: ["cs3", "s5"] + W(14, 17),
             4: ["cs4", "init", "s6:0-7", "cs5", "s6:7-13", "w17"], 5: ["fetch"] + W(0, 4) + ["cs6"] + W(4, 6) + W(18, 20) + ["put"], 6: W(6, 12) + W(20, 22)},
            {-1: ["s1:0-6"], 0: ["cs0", "s1:6-13", "k", "s2:0-9"], 1: ["cs1", "s2:9-13", "s3", "e"], 2: ["cs2", "s4"] + W(12, 15), 3: ["cs3", "s5"] + W(15, 18),
             4: ["cs4", "init", "s6"] + W(18, 20), 5: ["cs5", "fetch"] + W(0, 3) + ["cs6"] + W(3, 6) + ["put"], 6: W(6, 12) + W(20, 22)},
            {-1: ["s1:0-6"], 0: ["cs0", "s1:6-13", "k", "s2:0-9"], 1: ["cs1", "s2:9-13", "s3", "e"], 2: ["cs2", "s4"] + W(12, 15), 3: ["cs3", "s5:0-7", "cs4", "s5:7-13", "w15"],
             4: ["init", "s6:0-4", "cs5", "s6:4-13"] + W(16, 19), 5: ["fetch"] + W(0, 4) + ["cs6"] + W(4, 6) + W(19, 22) + ["put"], 6: W(6, 12)},
            {-1: ["s1:0-6"], 0: ["cs0", "s1:6-13", "k", "s2:0-9"], 1: ["cs1", "s2:9-13", "s3", "e"], 2: ["cs2", "s4"] + W(12, 15), 3: ["cs3", "s5"] + W(15, 18),
             4: ["cs4", "init", "s6:0-7", "cs5", "s6:7-13", "w18", "w19"], 5: ["fetch"] + W(0, 4) + ["cs6"] + W(4, 6) + W(20, 22) + ["c3", "put"], 6: W(6, 12) + ["c1"]},
            {-1: ["s1:0-6"], 0: ["cs0", "s1:6-13", "k", "s2:0-9"], 1: ["cs1", "s2:9-13", "s3", "e"], 2: ["cs2", "s4"] + W(12, 14), 3: ["cs3", "s5"] + W(14, 17),
             4: ["cs4", "init", "s6:0-7", "cs5", "s6:7-13", "w17"], 5: ["fetch"] + W(0, 4) + ["cs6"] + W(4, 6) + W(18, 20) + ["put"], 6: W(6, 12) + W(20, 22) + ["c3"]},
            {-1: ["s1:0-6"], 0: ["cs0", "s1:6-13", "k", "s2:0-9"], 1: ["cs1", "s2:9-13", "s3", "e"], 2: ["cs2", "s4"] + W(12, 15), 3: ["cs3", "s5"] + W(15, 19),
             4: ["cs4", "init", "s6:0-7", "cs5", "s6:7-13"] + W(19, 22), 5: ["fetch"] + W(0, 4) + ["cs6"] + W(4, 6) + ["c1", "put"], 6: W(6, 12) + ["c3"]},
            {-1: ["s1:0-6"], 0: ["cs0", "s1:6-13", "k", "s2"], 1: ["cs1", "s3", "e"] + W(12, 14), 2: ["cs2", "s4"] + W(14, 17), 3: ["cs3", "s5"] + W(17, 20),
             4: ["cs4", "init", "s6:0-7", "cs5", "s6:7-13"] + W(20, 22), 5: ["fetch"] + W(0, 4) + ["cs6"] + W(4, 6) + ["c1", "put"], 6: W(6, 12) + ["c3"]},
            {-1: ["s1:0-6"], 0: ["cs0", "s1:6-13", "k", "s2:0-9"], 1: ["cs1", "s2:9-13", "s3", "e"], 2: ["cs2", "s4"] + W(12, 15), 3: ["cs3", "s5:0-7", "cs4", "s5:7-13"] + W(15, 18),
             4: ["init", "s6:0-4", "cs5", "s6:4-13"] + W(18, 22), 5: ["fetch"] + W(0, 4) + ["cs6"] + W(4, 6) + ["c1", "put"], 6: W(6, 12) + ["c3"]},
            {-1: ["s1:0-6"], 0: ["cs0", "s1:6-13", "k", "s2:0-9"], 1: ["cs1", "s2:9-13", "s3", "e"], 2: ["cs2", "s4"], 3: ["cs3", "s5"] + W(12, 16),
             4: ["cs4", "init", "s6:0-7", "cs5", "s6:7-13"] + W(16, 19), 5: ["fetch"] + W(0, 4) + ["cs6"] + W(4, 6) + W(19, 22) + ["c3", "put"], 6: W(6, 12) + ["c1"]},
            {-1: ["s1:0-6"], 0: ["cs0", "s1:6-13", "k", "s2"], 1: ["cs1", "s3", "e"], 2: ["cs2", "s4"] + W(12, 14), 3: ["cs3", "s5"] + W(14, 18),
             4: ["cs4", "init", "s6:0-7", "cs5", "s6:7-13", "w18", "w19"], 5: ["fetch"] + W(0, 4) + ["cs6"] + W(4, 6) + W(20, 22) + ["c3", "put"], 6: W(6, 12) + ["c1"]},
            {-1: ["s1:0-3"], 0: ["cs0", "s1:3-13", "k", "s2:0-8"], 1: ["cs1", "s2:8-13", "s3"], 2: ["cs2", "s4", "e"] + W(12, 14), 3: ["cs3", "s5"] + W(14, 18),
             4: ["cs4", "init", "s6:0-7", "cs5", "s6:7-13", "w18", "w19"], 5: ["fetch"] + W(0, 4) + ["cs6"] + W(4, 6) + W(20, 22) + ["c3", "put"], 6: W(6, 12) + ["c1"]},
            {-1: ["s1:0-6"], 0: ["cs0", "s1:6-13", "k", "s2:0-9"], 1: ["cs1", "s2:9-13", "s3", "e"], 2: ["cs2", "s4"] + W(12, 15), 3: ["cs3", "init", "s5"] + W(15, 18),
             4: ["cs4", "fetch", "s6:0-7", "cs5", "s6:7-13", "w18", "w19"], 5: ["put"] + W(0, 4) + ["cs6"] + W(4, 6) + W(20, 22) + ["c3"], 6: W(6, 12) + ["c1"]},
            {-1: ["m", "s1:0-3"], 0: ["cs0", "s1:3-13", "k", "s2:0-8"], 1: ["cs1", "s2:8-13", "s3", "e"], 2: ["cs2", "s4"] + W(12, 15), 3: ["cs3", "s5"] + W(15, 18),
             4: ["cs4", "init", "s6:0-7", "cs5", "s6:7-13", "w18", "w19"], 5: ["fetch"] + W(0, 4) + ["cs6"] + W(4, 6) + W(20, 22) + ["c3", "put"], 6: W(6, 12) + ["c1"]},
            {-1: ["s1:0-6"], 0: ["cs0", "s1:6-13", "m", "k", "s2:0-9"], 1: ["cs1", "s2:9-13", "s3", "e"], 2: ["cs2", "s4"] + W(12, 15), 3: ["cs3", "s5"] + W(15, 18),
             4: ["cs4", "init", "s6:0-7", "cs5", "s6:7-13", "w18", "w19"], 5: ["fetch"] + W(0, 4) + ["cs6"] + W(4, 6) + W(20, 22) + ["c3", "put"], 6: W(6, 12) + ["c1"]},
            {-1: ["m"], 0: ["cs0", "s1", "k", "s2:0-6"], 1: ["cs1", "s2:6-13", "s3"], 2: ["cs2", "s4", "e"] + W(12, 14), 3: ["cs3", "s5"] + W(14, 18),
             4: ["cs4", "init", "s6:0-7", "cs5", "s6:7-13", "w18", "w19"], 5: ["fetch"] + W(0, 4) + ["cs6"] + W(4, 6) + W(20, 22) + ["c3", "put"], 6: W(6, 12) + ["c1"]},
            {-1: ["s1:0-6"], 0: ["cs0", "s1:6-13", "k", "s2"], 1: ["cs1", "s3"], 2: ["cs2", "s4", "e"], 3: ["cs3", "s5"] + W(12, 16),
             4: ["cs4", "init", "s6:0-7", "cs5", "s6:7-13"] + W(16, 19), 5: ["fetch"] + W(0, 4) + ["cs6"] + W(4, 6) + W(19, 22) + ["c3", "put"], 6: W(6, 12) + ["c1"]},
            {-1: ["s1:0-6"], 0: ["cs0", "s1:6-13", "k", "s2", "m"], 1: ["cs1", "s3"], 2: ["cs2", "s4", "e"], 3: ["cs3", "s5"] + W(12, 16),
             4: ["cs4", "init", "s6:0-7", "cs5", "s6:7-13"] + W(16, 19), 5: ["fetch"] + W(0, 4) + ["cs6"] + W(4, 6) + W(19, 22) + ["c3", "put"], 6: W(6, 12) + ["c1"]},
            {-1: ["m", "s1:0-3"], 0: ["cs0", "s1:3-13", "k", "s2:0-10"], 1: ["cs1", "s2:10-13", "s3"], 2: ["cs2", "s4", "e"], 3: ["cs3", "s5"] + W(12, 16),
             4: ["cs4", "init", "s6:0-7", "cs5", "s6:7-13"] + W(16, 19), 5: ["fetch"] + W(0, 4) + ["cs6"] + W(4, 6) + W(19, 22) + ["c3", "put"], 6: W(6, 12) + ["c1"]},
            {-1: ["s1:0-6"], 0: ["cs0", "s1:6-13", "k", "s2"], 1: ["cs1", "s3"], 2: ["cs2", "s4:0-6"], 3: ["cs3", "s4:6-13", "s5", "e"],
             4: ["cs4", "init", "s6"] + W(12, 16), 5: ["cs5", "fetch"] + W(16, 20) + ["cs6"] + W(0, 6) + ["put"], 6: W(6, 12) + W(20, 22) + ["c3", "c1"]},
            {-1: ["s1"], 0: ["cs0", "k", "s2", "e"], 1: ["cs1", "s3"], 2: ["cs2", "s4", "w12"], 3: ["cs3", "s5"] + W(13, 16),
             4: ["cs4", "init", "s6:0-7", "cs5", "s6:7-13"] + W(16, 19), 5: ["fetch"] + W(0, 4) + ["cs6"] + W(4, 6) + W(19, 22) + ["c3", "put"], 6: W(6, 12) + ["c1"]},
        ][self.winn]
    nw1 = 6
    flagr = -1
    xs = 1
    psleep = 2
    fsleep = 2
    ttper = 2
    f2n = 9
    fpre = 1
    a0 = 18
    sprio = 0
    ksig = 12
    opol = 1
    lprio = 3
    w12early = 0
    slab = 0
    spol = 1
    fpol = 1
    pollr = 4
    nw2 = 16
    thr = 15
    hpf = 2
    ky = 2
    @property
    def perms(self):
        return {
            0: [[0, 1, 2, 3, 4, 5, 6]],
            1: [[0, 1, 2, 3, 4, 5, 6], [1, 2, 0, 4, 5, 3, 6], [2, 0, 1, 5, 3, 4, 6]],
            2: [[0, 1, 2, 3, 4, 5, 6], [1, 0, 3, 2, 5, 4, 6]],
            3: [[0, 1, 2, 3, 4, 5, 6], [1, 0, 4, 5, 6, 2, 3], [0, 1, 6, 2, 3, 4, 5]],
            4: [[0, 1, 2, 3, 4, 5, 6], [1, 2, 0, 4, 6, 3, 5], [2, 0, 1, 5, 6, 3, 4]],
            6: [[0, 1, 2, 3, 4, 5, 6], [1, 2, 0, 3, 4, 5, 6], [2, 0, 1, 3, 4, 5, 6]],
            5: [[0, 1, 2, 3, 4, 5, 6], [1, 2, 3, 0, 5, 6, 4], [2, 3, 0, 1, 6, 4, 5], [3, 0, 1, 2, 4, 5, 6]],
        }[self.perm]

WSOFF = [0]
def srd(a, d, ptr, nbytes):
    if ptr == P_WS and WSOFF[0]:
        a(f"s_add_u32 s{ptr}, s{ptr}, {WSOFF[0]:#x}")
        a(f"s_addc_u32 s{ptr+1}, s{ptr+1}, 0")
    a(f"s_mov_b32 s{d}, s{ptr}")
    a(f"s_and_b32 s{d+1}, s{ptr+1}, 0xffff")
    a(f"s_mov_b32 s{d+2}, {nbytes:#x}")
    a(f"s_mov_b32 s{d+3}, 0x20000")

def srd_sel(a, d, ptr1, ptr0, nbytes):
    a(f"s_cselect_b32 s{d}, s{ptr1}, s{ptr0}")
    a(f"s_cselect_b32 s{d+1}, s{ptr1+1}, s{ptr0+1}")
    a(f"s_and_b32 s{d+1}, s{d+1}, 0xffff")
    a(f"s_mov_b32 s{d+2}, {nbytes:#x}")
    a(f"s_mov_b32 s{d+3}, 0x20000")

class TS:
    def __init__(self, a, cfg):
        self.a, self.on, self.n, self.set = a, cfg.ts, 0, cfg.tsset
        self.cfg = cfg
    def x(self, setno, i):
        if self.on and self.set == setno: self.emit(i)
    def __call__(self, i):
        if self.on and (self.set == 0 or i in (0, 12)): self.emit(i)
    def emit(self, i):
        if self.on == 5 and i not in (0, self.cfg.probe): return
        if self.on:
            assert i < 13
            self.a(f"{'s_memrealtime' if self.on != 2 else 's_memtime'} s[{TS0+2*i}:{TS0+2*i+1}]")
    def init(self):
        if self.on:
            for i in range(1, 13): self.a(f"s_mov_b32 s{TS0+2*i}, 0")
    def dump(self, vt, vt2, who=2):
        if not self.on: return
        a = self.a
        if self.on == 5:
            if who != self.cfg.pwho: return
            lab = a.newlabel("L_probe")
            if self.cfg.ponly >= 0:
                a(f"s_and_b32 s11, s2, {self.cfg.pmask}")
                a(f"s_cmp_lg_u32 s11, {self.cfg.ponly}")
                a(f"s_cbranch_scc1 {lab}_x")
            p = TS0 + 2 * self.cfg.probe
            a("s_waitcnt lgkmcnt(0)")
            a(f"s_sub_u32 s11, s{p}, s{TS0}")
            a(f"s_cmp_eq_u32 s{p}, 0")
            a("s_cselect_b32 s11, 0, s11")
            a("s_lshl_b32 s11, s11, 2")
            a("s_add_u32 s11, s11, 3000")
            a.label(lab)
            a("s_memrealtime s[12:13]")
            a("s_waitcnt lgkmcnt(0)")
            a(f"s_sub_u32 s12, s12, s{TS0}")
            a("s_cmp_lt_u32 s12, s11")
            a(f"s_cbranch_scc1 {lab}")
            a.label(lab + "_x")
            return
        if self.on == 3:
            a("s_waitcnt vmcnt(0) lgkmcnt(0)")
            lab = a.newlabel("L_nod")
            a(f"s_cmp_eq_u32 s{TS0+24}, 0")
            a(f"s_cbranch_scc1 {lab}")
            a(f"s_cmp_lg_u32 s{S_WAVE}, 0")
            a(f"s_cbranch_scc1 {lab}")
            a("s_mov_b64 exec, 1")
            a(f"v_mov_b32 v{vt2}, 0")
            a(f"s_not_b32 s11, s{TS0}")
            a(f"v_mov_b32 v{vt}, s11")
            a(f"global_atomic_umax v{vt2}, v{vt}, s[{P_DBG}:{P_DBG+1}] offset:4 sc1")
            for n, i in enumerate([0, 1, 2, 3, 4, 5, 6, 7, 8, 9, 10, 11, 12]):
                a("s_waitcnt vmcnt(0)")
                a(f"v_mov_b32 v{vt}, s{TS0+2*i}")
                a(f"global_atomic_umax v{vt2}, v{vt}, s[{P_DBG}:{P_DBG+1}] offset:{8+4*n} sc1")
            a("s_waitcnt vmcnt(0)")
            a.label(lab)
            return
        a("s_waitcnt vmcnt(0) lgkmcnt(0)")
        a(f"s_lshl_b32 s11, s2, 9")
        a(f"s_lshl_b32 s12, s{S_WAVE}, 6")
        a("s_add_u32 s11, s11, s12")
        a(f"s_add_u32 s11, s11, {WS_TS:#x}")
        a(f"v_mov_b32 v{vt2}, s11")
        for i in range(13):
            a(f"v_mov_b32 v{vt}, s{TS0+2*i}")
            a(f"buffer_store_dword v{vt}, v{vt2}, s[{SRD_WS}:{SRD_WS+3}], 0 offen offset:{4*i}")
        a("s_waitcnt vmcnt(0)")

def round_bf16(a, dst, src):
    a(f"v_cvt_pk_bf16_f32 v{dst}, v{src}, v{src}")
    a(f"v_lshlrev_b32 v{dst}, 16, v{dst}")

def exp_acc(a, dst, x, t0, t1):
    a(f"s_mov_b32 s36, {LOG2E:#x}")
    a(f"s_mov_b32 s37, {LOG2E_LO:#x}")
    a(f"v_mul_f32 v{t0}, s36, v{x}")
    a(f"v_fma_f32 v{t1}, v{x}, s36, -v{t0}")
    a(f"v_fma_f32 v{t1}, v{x}, s37, v{t1}")
    a(f"v_mul_f32 v{t1}, {LN2:#x}, v{t1}")
    a(f"v_exp_f32 v{dst}, v{t0}")
    a(f"v_fma_f32 v{dst}, v{dst}, v{t1}, v{dst}")

def csq(a, dr, di, sr, si, t):
    a(f"v_mul_f32 v{t}, v{si}, v{si}")
    a(f"v_add_f32 v{di}, v{si}, v{si}")
    a(f"v_mul_f32 v{di}, v{di}, v{sr}")
    a(f"v_fma_f32 v{dr}, v{sr}, v{sr}, -v{t}")

def cmul(a, dr, di, ar, ai, br, bi):
    a(f"v_mul_f32 v{dr}, v{ar}, v{br}")
    a(f"v_mul_f32 v{di}, v{ar}, v{bi}")
    a(f"v_fma_f32 v{dr}, -v{ai}, v{bi}, v{dr}")
    a(f"v_fma_f32 v{di}, v{ai}, v{br}, v{di}")

def ssm_const_load(a, vm, t):
    a(f"v_and_b32 v{t+3}, 15, v0")
    a(f"s_lshl_b32 s11, s{S_NS}, 4")
    a(f"v_add_lshl_u32 v{t+3}, v{t+3}, s11, 1")
    vm.issue('sc', f"global_load_ushort v{t}, v{t+3}, s[{P_LRE}:{P_LRE+1}]")
    vm.issue('sc', f"global_load_ushort v{t+1}, v{t+3}, s[{P_LIM}:{P_LIM+1}]")
    vm.issue('sc', f"global_load_ushort v{t+2}, v{t+3}, s[{P_LDT}:{P_LDT+1}]")

def ssm_const_calc(a, t, lr, li, cr=None, ci=None):
    for k in range(3): a(f"v_lshlrev_b32 v{t+k}, 16, v{t+k}")
    exp_acc(a, t + 3, t + 2, t + 4, t + 5)
    round_bf16(a, t + 2, t + 3)
    a(f"v_mul_f32 v{t+3}, v{t+2}, v{t}")
    a(f"v_mul_f32 v{t+6}, v{t+2}, v{t+1}")
    exp_acc(a, t + 7, t + 3, t + 4, t + 5)
    a(f"v_mul_f32 v{t+6}, {INV2PI:#x}, v{t+6}")
    a(f"v_rndne_f32 v{t+4}, v{t+6}")
    a(f"v_sub_f32 v{t+6}, v{t+6}, v{t+4}")
    a(f"v_cos_f32 v{t+4}, v{t+6}")
    a(f"v_sin_f32 v{t+5}, v{t+6}")
    a(f"v_mul_f32 v{lr}, v{t+7}, v{t+4}")
    a(f"v_mul_f32 v{li}, v{t+7}, v{t+5}")
    if cr is not None:
        a(f"v_add_f32 v{t+3}, -1.0, v{lr}")
        a(f"v_mul_f32 v{t+4}, v{t}, v{t}")
        a(f"v_fma_f32 v{t+4}, v{t+1}, v{t+1}, v{t+4}")
        a(f"v_rcp_f32 v{t+4}, v{t+4}")
        a(f"v_mul_f32 v{cr}, v{t+3}, v{t}")
        a(f"v_fma_f32 v{cr}, v{li}, v{t+1}, v{cr}")
        a(f"v_mul_f32 v{ci}, v{li}, v{t}")
        a(f"v_fma_f32 v{ci}, -v{t+3}, v{t+1}, v{ci}")
        a(f"v_add_f32 v{t+4}, v{t+4}, v{t+4}")
        a(f"v_mul_f32 v{cr}, v{cr}, v{t+4}")
        a(f"v_mul_f32 v{ci}, v{ci}, v{t+4}")

def gen_entry(a, cfg, ts):
    a("s_cmp_ge_u32 s2, 256")
    a("s_cbranch_scc1 L_exit")
    if cfg.padto: a("s_memrealtime s[100:101]")
    ts(0)
    a("s_load_dwordx16 s[16:31], s[0:1], 0")
    a("s_load_dwordx16 s[32:47], s[0:1], 64")
    a("v_lshrrev_b32 v1, 6, v0")
    a("v_and_b32 v0, 63, v0")
    a(f"v_readfirstlane_b32 s{S_WAVE}, v1")
    a(f"s_and_b32 s{S_XCD}, s2, 7")
    a(f"s_lshr_b32 s{S_SLOT}, s2, 3")
    if cfg.cpf == 2:
        a(f"s_cmp_lg_u32 s{S_WAVE}, 0")
        a("s_cbranch_scc1 L_nocpf")
        a("s_getpc_b64 s[12:13]")
        a.label("L_pc0")
        a(f"s_sub_u32 s12, s12, L_pc0-{KNAME}")
        a("s_subb_u32 s13, s13, 0")
        a(f"s_lshl_b32 s11, s{S_SLOT}, 10")
        a("v_lshl_add_u32 v38, v0, 4, s11")
        a(f"v_min_u32 v38, L_exit-{KNAME}, v38")
        a("global_load_dword v39, v38, s[12:13]")
        a.label("L_nocpf")
    a(f"s_and_b32 s11, s{S_SLOT}, 3")
    a(f"s_lshr_b32 s{S_NT}, s{S_SLOT}, 2")
    a(f"s_and_b32 s12, s{S_XCD}, 1")
    a(f"s_lshl_b32 s12, s12, 2")
    a(f"s_add_u32 s{S_MT}, s12, s11")
    a(f"s_lshr_b32 s12, s{S_XCD}, 1")
    a(f"s_mul_i32 s12, s12, 7")
    a(f"s_add_u32 s{S_NS}, s12, s{S_NT}")
    if cfg.slab:
        a(f"s_mov_b32 s{S_MT}, s{S_XCD}")
        a(f"s_mov_b32 s{S_NS}, s{S_SLOT}")
    if cfg.loc:
        a(f"s_and_b32 s12, s{S_XCD}, 1")
        a("s_lshl_b32 s12, s12, 2")
        a(f"s_lshr_b32 s13, s{S_XCD}, 1")
        a("s_add_u32 s12, s12, s13")
        a("s_lshl_b32 s12, s12, 2")
    else:
        a(f"s_lshl_b32 s12, s{S_XCD}, 2")
    a(f"s_add_u32 s{S_M64}, s12, s11")
    a(f"s_and_b32 s{S_W4}, s{S_WAVE}, 3")
    ts.init()
    a(f"s_cmp_ge_u32 s{S_SLOT}, 28")
    a("s_cbranch_scc1 L_helper")
    a(f"s_cmp_lt_u32 s{S_WAVE}, 4")
    a("s_cbranch_scc1 L_consumer")

def gen_helper(a, cfg, ts):
    a.label("L_helper")
    vm = VM(a)
    a(f"s_sub_u32 s73, s{S_SLOT}, 28")
    a(f"s_lshl_b32 s11, s73, 3")
    a(f"s_add_u32 s72, s11, s{S_XCD}")
    if cfg.loc: a(f"s_mov_b32 s72, s{S_M64}")
    HC = 65536
    a(f"v_mov_b32 v200, {HC}")
    a("v_mov_b32 v201, 0")
    a("ds_write_b32 v200, v201")
    def h_open():
        a("s_waitcnt lgkmcnt(0)")
        a("s_barrier")
    def h_signal(tag):
        a("v_mov_b32 v202, 1")
        a("s_mov_b64 exec, 1")
        a("ds_add_rtn_u32 v203, v200, v202")
        a("s_waitcnt lgkmcnt(0)")
        a("v_readfirstlane_b32 s11, v203")
        a("s_cmp_lg_u32 s11, 7")
        a(f"s_cbranch_scc1 L_h_ns{tag}")
        a(f"global_atomic_add v201, v202, s[{P_DBG}:{P_DBG+1}] sc1")
        a.label(f"L_h_ns{tag}")
        a("s_mov_b64 exec, -1")
    a(f"s_cmp_ge_u32 s{S_WAVE}, 4")
    a("s_cbranch_scc1 L_h_pf")
    a(f"s_lshl_b32 s11, s72, 6")
    a(f"s_lshl_b32 s12, s{S_WAVE}, 4")
    a(f"s_add_u32 s11, s11, s12")
    a("v_lshrrev_b32 v2, 3, v0")
    a("v_add_u32 v2, s11, v2")
    a("v_mul_u32_u24 v3, 896, v2")
    a("v_and_b32 v4, 7, v0")
    a("v_lshl_add_u32 v3, v4, 4, v3")
    a("s_waitcnt lgkmcnt(0)")
    srd(a, SRD_X, P_X, 2048 * 896)
    srd(a, SRD_WS, P_WS, WS_SIZE)
    a(f"s_mov_b32 s11, {8*896}")
    for ps in range(2):
        for j in range(7):
            so = "0" if ps == 0 else "s11"
            vm.issue(('x', ps), f"buffer_load_dwordx4 v[{112+28*ps+4*j}:{115+28*ps+4*j}], v3, s[{SRD_X}:{SRD_X+3}], {so} offen offset:{128*j}")
    a(f"s_cmp_gt_u32 s{S_WAVE}, 1")
    a("s_cbranch_scc1 L_h_noreset")
    a(f"s_cmp_eq_u32 s{S_WAVE}, 0")
    a("s_cselect_b32 s11, -1, 0")
    a("s_mov_b32 s12, 1024")
    a("s_cmov_b32 s12, 896")
    a(f"s_mov_b32 s13, {WS_FLAG:#x}")
    a(f"s_cmov_b32 s13, {WS_AGG:#x}")
    a("s_mul_i32 s14, s12, s72")
    a("s_add_u32 s13, s13, s14")
    for k in range(4): a(f"v_mov_b32 v{8+k}, s11")
    a("v_lshlrev_b32 v12, 4, v0")
    a("v_cmp_gt_u32 vcc, s12, v12")
    a("s_and_saveexec_b64 s[14:15], vcc")
    a(f"buffer_store_dwordx4 v[8:11], v12, s[{SRD_WS}:{SRD_WS+3}], s13 offen sc1")
    a("s_mov_b64 exec, s[14:15]")
    a.label("L_h_noreset")
    h_open()
    a("v_lshlrev_b32 v2, 3, v2")
    a("s_mov_b32 s12, 0xffff0000")
    def fin(dst):
        a("v_add_f32 v8, v8, v9")
        a("v_add_f32 v10, v10, v11")
        a(f"v_add_f32 v{dst}, v8, v10")
        a(f"v_add_f32_dpp v{dst}, v{dst}, v{dst} quad_perm:[1,0,3,2] row_mask:0xf bank_mask:0xf")
        a(f"v_add_f32_dpp v{dst}, v{dst}, v{dst} quad_perm:[2,3,0,1] row_mask:0xf bank_mask:0xf")
        a(f"v_add_f32_dpp v{dst}, v{dst}, v{dst} row_half_mirror row_mask:0xf bank_mask:0xf")
        a(f"v_mul_f32 v{dst}, 0x3b124925, v{dst}")
    for ps in range(2):
        vm.wait(('x', ps))
        if cfg.hdelay == 2 + ps: a("s_barrier")
        src = 112 + 28 * ps
        for k in range(28):
            a(f"v_lshlrev_b32 v{48+2*k}, 16, v{src+k}")
            a(f"v_and_b32 v{49+2*k}, s12, v{src+k}")
        a("v_pk_add_f32 v[8:9], v[48:49], v[52:53]")
        a("v_pk_add_f32 v[10:11], v[50:51], v[54:55]")
        for k in range(4, 28): a(f"v_pk_add_f32 v[{8+2*(k%2)}:{9+2*(k%2)}], v[{8+2*(k%2)}:{9+2*(k%2)}], v[{48+2*k}:{49+2*k}]")
        fin(12)
        for k in range(28): a(f"v_pk_add_f32 v[{48+2*k}:{49+2*k}], v[{48+2*k}:{49+2*k}], v[12:13] op_sel_hi:[1,0] neg_lo:[0,1] neg_hi:[0,1]")
        for k in range(2): a(f"v_pk_mul_f32 v[{8+2*k}:{9+2*k}], v[{48+2*k}:{49+2*k}], v[{48+2*k}:{49+2*k}]")
        for k in range(2, 28): a(f"v_pk_fma_f32 v[{8+2*(k%2)}:{9+2*(k%2)}], v[{48+2*k}:{49+2*k}], v[{48+2*k}:{49+2*k}], v[{8+2*(k%2)}:{9+2*(k%2)}]")
        fin(13)
        o = 14 + 2 * ps
        round_bf16(a, o, 12)
        round_bf16(a, 13, 13)
        a("v_add_f32 v13, 0x3727c5ac, v13")
        round_bf16(a, 13, 13)
        a("v_sqrt_f32 v13, v13")
        round_bf16(a, 13, 13)
        a(f"v_rcp_f32 v{o+1}, v13")
        a("v_cmp_eq_u32 vcc, 0, v4")
        a("s_and_saveexec_b64 s[14:15], vcc")
        a(f"s_mov_b32 s11, {WS_STATS:#x}")
        vm.issue('st', f"buffer_store_dwordx2 v[{o}:{o+1}], v2, s[{SRD_WS}:{SRD_WS+3}], s11 offen offset:{64*ps} sc1")
        a("s_mov_b64 exec, s[14:15]")
    a("s_waitcnt vmcnt(0)")
    h_signal("a")
    ts(1)
    ts.x(3, 1)
    ts.dump(8, 9)
    a("s_endpgm")
    a.label("L_h_pf")
    a("v_lshlrev_b32 v2, 4, v0")
    a(f"s_lshl_b32 s11, s{S_W4}, 10")
    a("v_add_u32 v2, s11, v2")
    if cfg.cpf == 1:
        a("s_getpc_b64 s[60:61]")
        a.label("L_pc")
        a(f"s_sub_u32 s60, s60, L_pc-{KNAME}")
        a("s_subb_u32 s61, s61, 0")
        a("s_lshl_b32 s11, s73, 12")
        a("v_add_u32 v3, s11, v2")
        for k in range(2):
            a(f"v_min_u32 v4, L_exit-{KNAME}-12, v3")
            a(f"global_load_dwordx4 v[24:27], v4, s[60:61]")
            a(f"v_add_u32 v3, 16384, v3")
    a("s_waitcnt lgkmcnt(0)")
    if cfg.hdelay == 1: a("s_waitcnt vmcnt(0)")
    if cfg.hdelay >= 2: a("s_barrier")
    srd(a, SRD_WS, P_WS, WS_SIZE)
    a("s_lshl_b32 s60, s72, 2")
    a(f"s_add_u32 s60, s60, s{S_W4}")
    a("s_cmp_ge_u32 s60, 98")
    a("s_cbranch_scc1 L_h_nopack1")
    a("s_mul_i32 s61, s60, 37")
    a("s_lshr_b32 s61, s61, 8")
    a("s_mul_i32 s62, s61, 7")
    a("s_sub_u32 s62, s60, s62")
    a("s_cmp_lt_i32 s62, 0")
    a("s_cselect_b32 s11, 1, 0")
    a("s_sub_u32 s61, s61, s11")
    a("s_mul_i32 s62, s61, 7")
    a("s_sub_u32 s62, s60, s62")
    a("s_bitcmp1_b32 s61, 0")
    srd_sel(a, 68, P_CIM, P_CRE, 448 * 896)
    a("v_lshrrev_b32 v3, 3, v0")
    a("v_and_b32 v4, 7, v0")
    a("v_lshrrev_b32 v5, 1, v3")
    a("v_xor_b32 v4, v4, v5")
    a("s_lshr_b32 s11, s61, 1")
    a("s_lshl_b32 s11, s11, 6")
    a("v_add_u32 v3, s11, v3")
    a("v_mul_u32_u24 v3, 896, v3")
    a("v_lshl_add_u32 v3, v4, 4, v3")
    a("v_xor_b32 v4, 64, v3")
    a(f"s_lshl_b32 s63, s{S_W4}, 13")
    a("s_lshl_b32 s12, s62, 7")
    for n in range(8):
        a(f"s_add_u32 m0, s63, {n*1024}")
        a(f"s_add_u32 s11, s12, {8*n*896}")
        a(f"buffer_load_dwordx4 v{3 + (n & 1)}, s[68:71], s11 offen lds")
    a.label("L_h_nopack1")
    h_open()
    def h_sweep():
        if cfg.hpf:
            for (ptr, nbytes, srdn) in ((P_WD, 1792 * 896, 56),):
                srd(a, srdn, ptr, nbytes)
            def sweep(name, srds, qbytes, first, count):
                n8 = -(-qbytes // (8 * 4096))
                n = 8 * n8
                a(f"s_mul_i32 s12, s73, {qbytes}")
                a(f"s_add_u32 s13, s{S_XCD}, {first}")
                a("s_and_b32 s13, s13, 7")
                a(f"s_mul_i32 s13, s13, {n8}")
                a("s_mov_b32 s14, 0")
                a.label(name)
                a("s_lshl_b32 s11, s13, 12")
                a("s_add_u32 s11, s11, s12")
                for k, sr in enumerate(srds):
                    a(f"buffer_load_dwordx4 v[{16+4*k}:{19+4*k}], v2, s[{sr}:{sr+3}], s11 offen")
                a("s_add_u32 s13, s13, 1")
                a(f"s_cmp_eq_u32 s13, {n}")
                a("s_cselect_b32 s13, 0, s13")
                a("s_add_u32 s14, s14, 1")
                a(f"s_cmp_lt_u32 s14, {n8 * count}")
                a(f"s_cbranch_scc1 {name}")
            sweep("L_h_p2", [56], 1792 * 896 // 4, 0, 1)
            ts(2)
    def h_pack():
        a("s_cmp_ge_u32 s60, 98")
        a("s_cbranch_scc1 L_h_nopack2")
        a("v_and_b32 v5, 31, v0")
        a("v_lshrrev_b32 v6, 5, v0")
        a("v_bfe_u32 v7, v0, 1, 3")
        a("v_xor_b32 v7, v7, v6")
        a("v_lshlrev_b32 v7, 4, v7")
        a("v_lshl_add_u32 v5, v5, 7, v7")
        a("v_add_u32 v5, s63, v5")
        a("v_lshlrev_b32 v6, 4, v0")
        a("s_mul_i32 s12, s61, 28")
        a("s_lshl_b32 s11, s62, 2")
        a("s_add_u32 s12, s12, s11")
        a("s_lshl_b32 s12, s12, 11")
        a(f"s_add_u32 s12, s12, {WS_CP:#x}")
        a(f"s_waitcnt vmcnt({13 if (cfg.hpf and not cfg.hord) else 0})")
        for ks in range(4):
            a(f"v_xor_b32 v7, {32*ks}, v5")
            for ct in range(2):
                d = 32 + 8 * ks + 4 * ct
                a(f"ds_read_b128 v[{d}:{d+3}], v7 offset:{4096*ct}")
        for ks in range(4):
            a(f"s_waitcnt lgkmcnt({6 - 2*ks})")
            a(f"s_add_u32 s11, s12, {2048*ks}")
            for ct in range(2):
                d = 32 + 8 * ks + 4 * ct
                a(f"buffer_store_dwordx4 v[{d}:{d+3}], v6, s[{SRD_WS}:{SRD_WS+3}], s11 offen offset:{1024*ct} sc1")
        a("s_waitcnt vmcnt(0)")
        a.label("L_h_nopack2")
        h_signal("b")
        ts(3)
        ts.x(3, 1)
    if cfg.hord: h_pack(); h_sweep()
    else: h_sweep(); h_pack()
    ts.dump(8, 9)
    a("s_endpgm")

def spin_check(a, name, load_text_list, cond_fn, sleep=1):
    lo, done = a.newlabel(name + "_spin"), a.newlabel(name + "_ok")
    a(f"s_mov_b32 s73, 0")
    a.label(lo)
    cond_fn()
    a(f"s_cbranch_scc1 {done}")
    a("s_add_u32 s73, s73, 1")
    a(f"s_cmp_ge_u32 s73, {SPIN_MAX}")
    a(f"s_cbranch_scc1 {done}")
    a(f"s_sleep {sleep}")
    for t in load_text_list: a(t)
    a("s_waitcnt vmcnt(0)")
    a(f"s_branch {lo}")
    a.label(done)
    a("s_nop 4")

def sspin(a, name, loads, cond_fn, sleep=1):
    lo, done = a.newlabel(name + "_spin"), a.newlabel(name + "_ok")
    a("s_mov_b32 s73, 0")
    a.label(lo)
    for t in loads: a(t)
    a("s_waitcnt lgkmcnt(0)")
    cond_fn()
    a(f"s_cbranch_scc1 {done}")
    a("s_add_u32 s73, s73, 1")
    a(f"s_cmp_lt_u32 s73, {SPIN_MAX}")
    if sleep: a(f"s_sleep {sleep}")
    a(f"s_cbranch_scc1 {lo}")
    a.label(done)

def flag_index(a, d, t, grp):
    a(f"s_mul_i32 s{t}, s{S_NS}, 37")
    a(f"s_lshr_b32 s{t}, s{t}, {8 if grp == 7 else 9}")
    a(f"s_mul_i32 s{t}, s{t}, {32 - grp}")
    a(f"s_add_u32 s{d}, s{t}, s{S_NS}")
    a(f"s_lshl_b32 s{d}, s{d}, 2")

def interleave(a, prim, fill, per):
    fill = list(fill)
    for p in prim:
        p()
        for _ in range(per):
            if fill: a(fill.pop(0))
    for f in fill: a(f)

def p2_rot(a, cfg, d_ffn, d_blk, d_flip):
    if not cfg.rot:
        for d in (d_ffn, d_blk, d_flip): a(f"s_mov_b32 s{d}, 0")
        return
    tab = {2: [0] * 7, 1: list(range(7)), 3: [0, 3, 0, 3, 0, 3, 0], 4: [0, 2, 5, 0, 2, 5, 0], 5: [0, 4, 2, 5, 0, 4, 2], 6: [0, 1, 0, 1, 0, 1, 0], 7: [0, 2, 0, 2, 0, 2, 0]}[cfg.rot]
    word = sum(v << (4 * k) for k, v in enumerate(tab))
    a(f"s_lshl_b32 s11, s{S_NT}, 2")
    a(f"s_lshr_b32 s13, {word:#x}, s11")
    a("s_and_b32 s13, s13, 15")
    a(f"s_and_b32 s11, s{S_SLOT}, 3")
    a("s_lshl_b32 s11, s11, 1")
    a("s_add_u32 s11, s11, s13")
    a("s_cmp_ge_u32 s11, 7")
    a("s_cselect_b32 s13, 7, 0")
    a(f"s_sub_u32 s{d_ffn}, s11, s13")
    for d in (d_blk, d_flip): a(f"s_mov_b32 s{d}, 0")

def slot(reg, n): return R[reg] + 2048 * n
SA = [slot(1, n) for n in range(6)]; SB = [slot(2, n) for n in range(6)]; SC = [slot(0, n) for n in range(6)]
WSLOT = {}
for n in range(6): WSLOT[n] = SA[n]; WSLOT[6 + n] = SB[n]
for n in range(4): WSLOT[12 + n] = SC[n]; WSLOT[16 + n] = SA[n]; WSLOT[20 + n] = SB[n]
WSLOT.update({24: SA[4], 25: SA[5], 26: SB[4], 27: SB[5]})
HTS = SC[4]
PH1, PH2, GA, FXA, SD = SC[0], SC[4], SB[0], SA[0], SC[0]

class Rec:
    def __init__(self): self.L = []
    def __call__(self, t): self.L.append(t)

def ssm_park(kc, K, KP, sQ):
    LR, LI, CR, CI, L16R, L16I, PWR, PWI, L64R, L64I, LWR, LWI, W0R = [KP + k for k in range(13)]
    vTW, vTR, vCB = KP + 16, KP + 17, KP + 18
    ssm_const_calc(kc, K, LR, LI, CR, CI)
    csq(kc, L16R, L16I, LR, LI, K)
    for _ in range(3): csq(kc, L16R, L16I, L16R, L16I, K)
    def powsel(dr, di, br, bi, bit, src):
        cmul(kc, K + 1, K + 2, dr, di, br, bi)
        kc(f"v_and_b32 v{K}, {bit}, v{src}")
        kc(f"v_cmp_ne_u32 vcc, 0, v{K}")
        kc(f"v_cndmask_b32 v{dr}, v{dr}, v{K+1}, vcc")
        kc(f"v_cndmask_b32 v{di}, v{di}, v{K+2}, vcc")
    kc(f"v_mov_b32 v{PWR}, v{CR}"); kc(f"v_mov_b32 v{PWI}, v{CI}")
    powsel(PWR, PWI, L16R, L16I, 32, 0)
    csq(kc, K + 14, K + 15, L16R, L16I, K)
    powsel(PWR, PWI, K + 14, K + 15, 16, 0)
    csq(kc, L64R, L64I, K + 14, K + 15, K)
    kc(f"v_mov_b32 v{K+10}, s{S_W4}")
    kc(f"v_mov_b32 v{LWR}, 1.0"); kc(f"v_mov_b32 v{LWI}, 0")
    powsel(LWR, LWI, L64R, L64I, 1, K + 10)
    csq(kc, K + 14, K + 15, L64R, L64I, K)
    powsel(LWR, LWI, K + 14, K + 15, 2, K + 10)
    csq(kc, K + 14, K + 15, K + 14, K + 15, K)
    kc(f"v_lshrrev_b32 v{K+10}, 4, v0")
    kc(f"v_sub_u32 v{K+10}, s{S_MT}, v{K+10}")
    kc(f"v_add_u32 v{K+11}, -5, v{K+10}")
    kc(f"v_add_u32 v{K+10}, -1, v{K+10}")
    kc(f"v_mov_b32 v{W0R}, 1.0"); kc(f"v_mov_b32 v{W0R+1}, 0")
    kc(f"v_mov_b32 v{W0R+2}, 1.0"); kc(f"v_mov_b32 v{W0R+3}, 0")
    for b in range(3):
        powsel(W0R, W0R + 1, K + 14, K + 15, 1 << b, K + 10)
        if b < 2: powsel(W0R + 2, W0R + 3, K + 14, K + 15, 1 << b, K + 11)
        if b < 2: csq(kc, K + 14, K + 15, K + 14, K + 15, K)
    kc(f"s_add_u32 s36, s{sQ}, {HTS}")
    kc(f"v_bfe_u32 v{K}, v0, 4, 1")
    kc(f"v_lshrrev_b32 v{K+1}, 5, v0")
    kc(f"v_lshl_add_u32 v{K+2}, v{K}, 1, v{K+1}")
    kc(f"v_and_b32 v{K+3}, 15, v0")
    kc(f"v_and_b32 v{vTW}, 6, v{K+3}")
    kc(f"v_lshlrev_b32 v{vTW}, 4, v{vTW}")
    kc(f"v_lshlrev_b32 v{K+4}, 5, v{K+2}")
    kc(f"v_xor_b32 v{vTW}, v{vTW}, v{K+4}")
    kc(f"v_lshl_add_u32 v{vTW}, v{K+3}, 7, v{vTW}")
    kc(f"v_add_u32 v{vTW}, s36, v{vTW}")
    kc(f"v_lshlrev_b32 v{vCB}, 2, v{K+3}")
    kc(f"v_add_u32 v{vCB}, {C_L + 512}, v{vCB}")
    kc(f"v_bfe_u32 v{K+4}, v0, 2, 2")
    kc(f"v_lshl_add_u32 v{K+5}, v{K+1}, 3, v{K+4}")
    kc(f"v_lshlrev_b32 v{vTR}, 7, v{K+5}")
    kc(f"v_lshrrev_b32 v{K+4}, 1, v{K+4}")
    kc(f"v_xor_b32 v{K+4}, v{K+4}, v0")
    kc(f"v_and_b32 v{K+4}, 1, v{K+4}")
    kc(f"v_lshl_add_u32 v{vTR}, v{K+4}, 5, v{vTR}")
    kc(f"v_lshl_add_u32 v{vTR}, v{K}, 4, v{vTR}")
    kc(f"v_bfe_u32 v{K+4}, v0, 1, 1")
    kc(f"v_lshl_add_u32 v{vTR}, v{K+4}, 3, v{vTR}")
    kc(f"v_add_u32 v{vTR}, s36, v{vTR}")
    kc(f"s_lshl_b32 s36, s{S_W4}, 9")
    kc(f"s_add_u32 s36, s36, {STATS_L}")
    kc(f"v_lshl_add_u32 v{KP+19}, v{K+2}, 7, s36")
    vStS = KP + 19
    vAg, vPr, vF = KP + 20, KP + 21, KP + 22
    kc(f"v_lshlrev_b32 v{vAg}, 3, v{K+3}")
    kc(f"v_lshrrev_b32 v{vPr}, 4, v0")
    kc(f"v_mul_u32_u24 v{vPr}, 3584, v{vPr}")
    kc(f"s_lshl_b32 s36, s{S_NS}, 7")
    kc(f"v_add3_u32 v{vPr}, v{vPr}, v{vAg}, s36")
    kc(f"v_add_u32 v{vAg}, {AGG_L}, v{vAg}")
    kc(f"s_lshl_b32 s36, s{S_MT}, 2")
    kc(f"s_add_u32 s36, s36, s{S_W4}")
    kc("s_lshl_b32 s36, s36, 10")
    flag_index(kc, 37, 38, 14)
    kc("s_add_u32 s36, s36, s37")
    kc(f"s_add_u32 s36, s36, {WS_FLAG + 512:#x}")
    kc(f"v_mov_b32 v{vF}, s36")

def gen_loader(a, cfg, ts):
    a.label("L_loader")
    a("s_setprio 3")
    vm = VM(a)
    vXe, vXo, vW, vB = 1, 2, 3, 4
    vFv, vP, vO, vPQ = 5, 6, 7, 8
    vWd, vCe, vCo, vCh = 9, 10, 11, 12
    vRf, vRh = 13, 14
    vA, vC = 24, 25
    vT = 15
    ACC, CA, RD = 27, 28, 44
    STG = 64
    CF = 144
    SACC = 80
    XRAW = CF + 64
    KP = XRAW + 8
    sGrp = [28, 29, 30, 31, 36, 37, 21]
    SP = ['', ' sc1'][cfg.spol]
    sMX, sMW, sMB, sMP = 72, 74, 75, 70
    sPerm, sSX, sSW = 68, 69, 15
    sRF = 14
    AP = ['', ' sc1', ' sc1 nt', ' sc0 sc1', ' sc0', ' nt'][cfg.apol]
    OP = ['', ' sc1', ' nt', ' sc1 nt'][cfg.opol]
    polx = " nt" if cfg.polx else ""
    polw = " nt" if cfg.polw else ""
    a(f"v_lshrrev_b32 v{vA}, 3, v0")
    a(f"v_and_b32 v{vC}, 7, v0")
    a(f"v_lshrrev_b32 v{vT+2}, 1, v{vA}")
    a(f"s_lshl_b32 s11, s{S_W4}, 4")
    a(f"v_add_u32 v{vT}, s11, v{vA}")
    a(f"v_mul_u32_u24 v{vW}, 3584, v{vT}")
    a(f"v_and_b32 v{vT+4}, 1, v{vT+2}")
    a(f"v_lshlrev_b32 v{vT+4}, 2, v{vT+4}")
    a(f"v_xor_b32 v{vT+4}, v{vC}, v{vT+4}")
    a(f"v_lshl_add_u32 v{vW}, v{vT+4}, 4, v{vW}")
    a(f"s_lshl_b32 s11, s{S_NS}, 7")
    a(f"v_add_u32 v{vW}, s11, v{vW}")
    a(f"s_lshl_b32 s11, s{S_MT}, 8")
    a(f"s_lshl_b32 s12, s{S_W4}, 6")
    a("s_add_u32 s11, s11, s12")
    a(f"v_lshrrev_b32 v{vT}, 2, v{vA}")
    a(f"v_and_b32 v{vT+1}, 3, v{vA}")
    a(f"v_lshl_add_u32 v{vT}, v{vT}, 4, v{vT+1}")
    a(f"v_add_u32 v{vT}, s11, v{vT}")
    a(f"v_mul_u32_u24 v{vXe}, 896, v{vT}")
    a(f"v_xor_b32 v{vT+3}, v{vC}, v{vT+2}")
    a(f"v_lshl_add_u32 v{vXe}, v{vT+3}, 4, v{vXe}")
    a(f"v_xor_b32 v{vXo}, 64, v{vXe}")
    a(f"s_and_b32 s12, s{S_W4}, 1")
    a(f"s_lshl_b32 s11, s{S_NS}, 4")
    a(f"s_lshl_b32 s13, s12, 3")
    a("s_add_u32 s11, s11, s13")
    a(f"v_add_u32 v{vT}, s11, v{vA}")
    a(f"v_mul_u32_u24 v{vB}, 896, v{vT}")
    a(f"v_lshl_add_u32 v{vB}, v{vT+3}, 4, v{vB}")
    a("s_lshl_b32 s13, s12, 6")
    a(f"v_xor_b32 v{vB}, s13, v{vB}")
    a(f"s_lshl_b32 s{sMX}, s{S_W4}, 13")
    a(f"s_lshl_b32 s{sMW}, s{S_W4}, 11")
    a(f"s_lshl_b32 s{sMB}, s{S_W4}, 10")
    a(f"s_mul_i32 s{sMP}, s{S_W4}, {Q}")
    perms = cfg.perms
    words = [sum(p[k] << (4 * k) for k in range(7)) for p in perms]
    ng = len(words)
    a(f"s_mov_b32 s{sPerm}, {words[0]:#x}")
    if ng > 1:
        if cfg.slab:
            a(f"s_add_u32 s11, s{S_SLOT}, s{S_XCD}")
        else:
            a(f"s_and_b32 s11, s{S_SLOT}, 3")
            a(f"s_add_u32 s11, s11, s{S_NT}")
        if ng == 3:
            a("s_mul_i32 s13, s11, 43")
            a("s_lshr_b32 s13, s13, 7")
            a("s_mul_i32 s13, s13, 3")
            a("s_sub_u32 s11, s11, s13")
        else:
            a(f"s_and_b32 s11, s11, {ng-1}")
        for g in range(1, ng):
            a(f"s_cmp_eq_u32 s11, {g}")
            a(f"s_cmov_b32 s{sPerm}, {words[g]:#x}")
    ts.x(1, 1)
    a("s_waitcnt lgkmcnt(0)")
    ts.x(1, 2)
    if cfg.tlb:
        a(f"v_mov_b32 v40, s{P_X}")
        a(f"v_mov_b32 v41, s{P_X+1}")
        for ln, p in enumerate([P_WG, P_WU, P_BRE, P_BIM, P_WD, P_CRE, P_CIM, P_WS][:cfg.tlb], 1):
            a(f"v_writelane_b32 v40, s{p}, {ln}")
            a(f"v_writelane_b32 v41, s{p+1}, {ln}")
        a(f"s_mov_b64 exec, {(1 << (cfg.tlb + 1)) - 1:#x}")
        a("global_load_dword v62, v[40:41], off")
        a("s_mov_b64 exec, -1")
    srd(a, SRD_A, P_WG, 448 * 3584)
    srd(a, SRD_X, P_X, 2048 * 896)
    srd(a, SRD_B, P_WU, 448 * 3584)
    a(f"s_cmp_ge_u32 s{S_W4}, 2")
    srd_sel(a, SRD_C, P_BIM, P_BRE, 448 * 896)

    thr = [None]
    def dma(vm, tag, voff, srdn, sbase, soff, m0base, m0off, pol=""):
        a(f"s_add_u32 m0, s{m0base}, {m0off}")
        a(f"s_add_u32 s11, s{sbase}, {soff}")
        if thr[0] is not None and len(vm.q) > thr[0]:
            a(f"s_waitcnt vmcnt({thr[0]})")
            vm.q = vm.q[-thr[0]:]
        vm.issue(tag, f"buffer_load_dwordx4 v{voff}, s[{srdn}:{srdn+3}], s11 offen{pol} lds")
    def issue_ops(s):
        r = R[s % 3]
        ops = []
        def pre():
            a(f"s_bfe_u32 s{sSX}, s{sPerm}, {(4 << 16) | (4 * s):#x}")
            a(f"s_mul_i32 s{sSW}, s{sSX}, {64*3584}")
            a(f"s_lshl_b32 s{sSX}, s{sSX}, 7")
        def mk(*args): return lambda: dma(vm, ('st', s), *args)
        L = []
        for i in range(2): L.append(mk(vW, SRD_A, sSW, i * 8 * 3584, sMW, r + OFF_WG + i * 1024, polw))
        for j in range(4): L.append(mk(vXo if j & 1 else vXe, SRD_X, sSX, (32 * (j >> 2) + 4 * (j & 3)) * 896, sMX, r + j * 1024, polx))
        for i in range(2): L.append(mk(vW, SRD_B, sSW, i * 8 * 3584, sMW, r + OFF_WU + i * 1024, polw))
        for j in range(4, 8): L.append(mk(vXo if j & 1 else vXe, SRD_X, sSX, (32 * (j >> 2) + 4 * (j & 3)) * 896, sMX, r + j * 1024, polx))
        L.append(mk(vB, SRD_C, sSX, 0, sMB, r + OFF_BB, polw))
        first = L[0]
        L[0] = lambda: (pre(), first())
        return L
    SRD_WD, SRD_CC, sBlk, sFlip, P_DSK2 = 32, 24, 16, 17, 38
    def w_ops(ps):
        L = []
        for p in ps:
            for n in range(2):
                def op(p=p, n=n):
                    if 12 <= p < 22:
                        d = STG + (p - 12) * 8 + 4 * n
                        a(f"s_add_u32 s11, s{sGrp[p//4]}, {((p % 4) * 16 + 8 * n) * 896}")
                        vm.issue(('w', p), f"buffer_load_dwordx4 v[{d}:{d+3}], v{vWd}, s[{SRD_WD}:{SRD_WD+3}], s11 offen")
                    else:
                        dma(vm, ('w', p), vWd, SRD_WD, sGrp[p//4], ((p % 4) * 16 + 8 * n) * 896, sMP, WSLOT[p] + n * 1024)
                L.append(op)
        return L
    sCB = [68, 69, 15]
    sCF, sCH = 16, 17
    def cfrag(p, lc): return CF + 8 * p + 4 * lc
    def c_ops(b):
        L = []
        for p in (range(4 * b, 4 * b + 4) if b < 3 else (12, 13)):
            for lc in range(2):
                def op(p=p, lc=lc):
                    d = cfrag(p, lc)
                    sb, so = (sCF, 2048 * p) if p < 12 else (sCH, 2048 * (p - 12))
                    if cfg.crot and p < 12: sb, so = sCB[p // 4], 2048 * (p % 4)
                    a(f"s_add_u32 s11, s{sb}, {so}")
                    vm.issue(('c', b), f"buffer_load_dwordx4 v[{d}:{d+3}], v{(vCe, vCo)[lc]}, s[{SRD_WS}:{SRD_WS+3}], s11 offen sc1")
                L.append(op)
        return L
    def w_write(ps):
        vm.wait(('w', ps[-1]))
        base = WSLOT[ps[0]]
        a(f"v_add_u32 v{vT+4}, {base}, v{vPQ}")
        for p in ps:
            for n in range(2):
                d = STG + (p - 12) * 8 + 4 * n
                a(f"ds_write_b128 v{vT+4}, v[{d}:{d+3}] offset:{WSLOT[p] - base + 1024*n}")
    def colsum_reads(s):
        r = R[s % 3]
        a(f"s_add_u32 s11, s{sMW}, {r + OFF_WG}")
        a(f"v_add_u32 v{vT}, s11, v{vP}")
        a(f"s_add_u32 s11, s{sMB}, {r + OFF_BB}")
        a(f"v_add_u32 v{vT+1}, s11, v{vP}")
        a(f"ds_read_b128 v[{RD}:{RD+3}], v{vT}")
        a(f"ds_read_b128 v[{RD+4}:{RD+7}], v{vT} offset:1024")
        a(f"ds_read_b128 v[{RD+8}:{RD+11}], v{vT} offset:8192")
        a(f"ds_read_b128 v[{RD+12}:{RD+15}], v{vT} offset:9216")
        a(f"ds_read_b128 v[{RD+16}:{RD+19}], v{vT+1}")
    def colsum_ops():
        L = ["s_waitcnt lgkmcnt(0)"]
        for n in range(4):
            for d in range(4):
                w = RD + 4 * n + d
                ac = CA + (n >> 1) * 8 + 2 * d
                L.append(f"v_lshlrev_b32 v{vT+2}, 16, v{w}")
                L.append(f"v_and_b32 v{vT+3}, s71, v{w}")
                L.append(f"v_add_f32 v{ac}, v{ac}, v{vT+2}")
                L.append(f"v_add_f32 v{ac+1}, v{ac+1}, v{vT+3}")
        for d in range(4):
            w = RD + 16 + d
            L.append(f"v_lshlrev_b32 v{vT+2}, 16, v{w}")
            L.append(f"v_and_b32 v{vT+3}, s71, v{w}")
            L.append(f"v_add_f32 v{vT+2}, v{vT+2}, v{vT+3}")
            L.append(f"v_add_f32 v{ACC}, v{ACC}, v{vT+2}")
        return L

    stage_ops = {}
    cdone = set()
    def tok_ops(toks):
        L = []
        for t in toks:
            if t[0] == 's':
                st = int(t[1])
                if st not in stage_ops: stage_ops[st] = issue_ops(st)
                lo, hi = (0, 13) if ':' not in t else map(int, t.split(':')[1].split('-'))
                L += stage_ops[st][lo:hi]
            elif t[0] == 'w': L += w_ops([int(t[1:])])
            elif t[0] == 'c':
                lo, hi = (0, 8) if ':' not in t else map(int, t.split(':')[1].split('-'))
                L += c_ops(int(t[1]))[lo:hi]
                cdone.add(int(t[1]))
            else: L.append(lambda t=t: special(t))
        return L
    def run_tokens(toks):
        for o in tok_ops(toks): o()
    def special(t):
        if True:
            if t == 'put':
                vm.wait('stats')
                a(f"s_lshl_b32 s11, s{S_W4}, 9")
                a(f"s_add_u32 s11, s11, {STATS_L}")
                a(f"v_lshl_add_u32 v{vT+4}, v0, 3, s11")
                a(f"ds_write_b64 v{vT+4}, v[20:21]")
                a(f"v_lshlrev_b32 v{vT+4}, 3, v0")
                a(f"v_add_u32 v{vT+4}, {ST2_L}, v{vT+4}")
                a(f"ds_write_b64 v{vT+4}, v[22:23]")
            elif t == 'e':
                a(f"s_add_u32 s12, s41, {16*896}")
                vm.issue('e', f"buffer_load_dwordx4 v[{XRAW}:{XRAW+3}], v20, s[{SRD_X}:{SRD_X+3}], s41 offen")
                vm.issue('e', f"buffer_load_dwordx4 v[{XRAW+4}:{XRAW+7}], v20, s[{SRD_X}:{SRD_X+3}], s12 offen")
                vm.issue('e', f"global_load_ushort v{KP+23}, v21, s[{P_DSK2}:{P_DSK2+1}]")
            elif t == 'm':
                a(f"v_lshlrev_b32 v{vP}, 4, v0")
                a("s_lshl_b32 s12, s2, 2")
                a(f"s_add_u32 s12, s12, s{S_W4}")
                a("s_lshl_b32 s12, s12, 10")
                a(f"s_add_u32 s12, s12, {192*3584}")
                vm.issue('m', f"buffer_load_dwordx4 v[140:143], v{vP}, s[{SRD_A}:{SRD_A+3}], s12 offen")
                vm.issue('m', f"buffer_load_dwordx4 v[140:143], v{vP}, s[{SRD_B}:{SRD_B+3}], s12 offen")
                a(f"s_and_b32 s12, s{S_W4}, 1")
                a("s_lshl_b32 s11, s2, 1")
                a("s_add_u32 s12, s12, s11")
                a("s_lshl_b32 s12, s12, 10")
                vm.issue('m', f"buffer_load_dwordx4 v[140:143], v{vP}, s[{SRD_C}:{SRD_C+3}], s12 offen")
            elif t == 'k':
                a("s_waitcnt lgkmcnt(0)")
            elif t == 'init':
                a(f"v_mov_b32 v26, 0")
                vm.issue('init', f"global_load_dword v5, v26, s[{P_DBG}:{P_DBG+1}] sc1")
            elif t == 'fetch':
                vm.wait('init')
                def cond():
                    a(f"v_readfirstlane_b32 s11, v5")
                    a(f"s_cmp_ge_u32 s11, {INIT_N}")
                spin_check(a, "L_init", [f"global_load_dword v5, v26, s[{P_DBG}:{P_DBG+1}] sc1"], cond, 8)
                if cfg.ts == 1 and cfg.tsset == 3: a(f"s_add_u32 s{TS0+18}, s73, 1")
                if cfg.crot:
                    a(f"s_and_b32 s11, s{S_SLOT}, 3")
                    a("s_lshl_b32 s11, s11, 1")
                    a("s_lshr_b32 s12, 0x924, s11")
                    for b in range(3):
                        a(f"s_bfe_u32 s11, s12, {(2 << 16) | (2 * b):#x}")
                        a("s_lshl_b32 s11, s11, 13")
                        a(f"s_add_u32 s{sCB[b]}, s11, s{sCF}")
                a(f"s_lshl_b32 s11, s{S_MT}, 8")
                a(f"s_lshl_b32 s12, s{S_W4}, 6")
                a("s_add_u32 s11, s11, s12")
                a(f"v_add_lshl_u32 v5, v0, s11, 3")
                a(f"s_lshl_b32 s12, s{S_M64}, 6")
                a(f"v_add_lshl_u32 v26, v0, s12, 3")
                a(f"s_mov_b32 s11, {WS_STATS:#x}")
                vm.issue('stats', f"buffer_load_dwordx2 v[20:21], v5, s[{SRD_WS}:{SRD_WS+3}], s11 offen sc1")
                vm.issue('stats', f"buffer_load_dwordx2 v[22:23], v26, s[{SRD_WS}:{SRD_WS+3}], s11 offen sc1")
            else: raise ValueError(t)
    win = cfg.win
    run_tokens(["s0"])
    ts(1)
    ts.x(1, 6)
    run_tokens(win.get(-1, []))
    a("s_setprio 0")
    a(f"s_and_b32 s12, s{S_W4}, 1")
    a(f"v_lshlrev_b32 v{vP}, 4, v0")
    a(f"v_add_u32 v{vPQ}, s{sMP}, v{vP}")
    a(f"s_mul_i32 s14, s{S_W4}, 448")
    a(f"v_add_u32 v{vT}, s14, v{vA}")
    a(f"v_mul_u32_u24 v{vWd}, 896, v{vT}")
    a(f"v_lshl_add_u32 v{vWd}, v{vT+4}, 4, v{vWd}")
    a(f"s_lshl_b32 s14, s{S_NT}, 7")
    a(f"v_add_u32 v{vWd}, s14, v{vWd}")
    a(f"v_and_b32 v{vT+1}, 3, v0")
    a("s_mov_b32 s71, 0xffff0000")
    for k in range(17): a(f"v_mov_b32 v{ACC+k}, 0")
    srd(a, SRD_WS, P_WS, WS_SIZE)
    a(f"s_mov_b64 s[{P_DSK2}:{P_DSK2+1}], s[{P_DSK}:{P_DSK+1}]")
    srd(a, SRD_WD, P_WD, 1792 * 896)
    p2_rot(a, cfg, sRF, sBlk, sFlip)
    a(f"s_lshl_b32 s11, s{S_M64}, 1")
    a("s_add_u32 s40, s11, s12")
    a("s_lshl_b32 s12, s40, 5")
    a(f"v_lshrrev_b32 v{vT}, 2, v0")
    a(f"v_add_u32 v{vT}, s12, v{vT}")
    a(f"v_mul_u32_u24 v{vT}, 896, v{vT}")
    a(f"v_lshl_add_u32 v20, v{vT+1}, 4, v{vT}")
    a(f"v_lshrrev_b32 v{vT+2}, 5, v0")
    a(f"v_lshl_add_u32 v{vT}, v{vT+2}, 4, s12")
    a(f"s_lshr_b32 s13, s{S_W4}, 1")
    a("s_lshl_b32 s12, s13, 5")
    a(f"s_lshl_b32 s11, s{S_NT}, 6")
    a("s_add_u32 s11, s11, s12")
    a("s_lshl_b32 s41, s11, 1")
    a(f"v_and_b32 v{vT+3}, 31, v0")
    a(f"v_add_u32 v{vT+1}, s11, v{vT+3}")
    a(f"v_mul_u32_u24 v{vT}, 448, v{vT}")
    a(f"v_add_lshl_u32 v{vO}, v{vT}, v{vT+1}, 2")
    a(f"v_lshlrev_b32 v21, 1, v{vT+1}")
    a("s_lshl_b32 s12, s13, 10")
    a(f"v_add_u32 v{vCe}, s12, v{vP}")
    a(f"v_xor_b32 v{vCo}, 1024, v{vCe}")
    a(f"s_lshl_b32 s11, s{S_NT}, 1")
    a("s_add_u32 s11, s11, s13")
    a(f"s_mul_i32 s11, s11, {28*2048}")
    a(f"s_add_u32 s11, s11, {WS_CP:#x}")
    a(f"s_and_b32 s12, s{S_W4}, 1")
    a(f"s_lshl_b32 s{sCF}, s12, 15")
    a(f"s_add_u32 s{sCF}, s{sCF}, s11")
    a(f"s_lshl_b32 s{sCH}, s12, 12")
    a(f"s_add_u32 s{sCH}, s{sCH}, s11")
    a(f"s_add_u32 s{sCH}, s{sCH}, {12*2048}")
    a(f"v_bfe_u32 v{vT}, v0, 4, 1")
    a(f"v_lshlrev_b32 v{vT+1}, 2, v{vT}")
    a(f"v_xor_b32 v{vC}, v{vC}, v{vT+1}")
    a(f"v_lshlrev_b32 v{vC}, 5, v{vC}")
    a(f"v_lshl_add_u32 v{vC}, v{vT}, 9, v{vC}")
    a(f"v_lshl_add_u32 v{vC}, v{vT+2}, 8, v{vC}")
    a(f"s_add_u32 s11, s{sMB}, {CP_L}")
    a(f"v_add_u32 v{vC}, s11, v{vC}")
    a(f"s_lshl_b32 s11, s{S_W4}, 5")
    a(f"s_add_u32 s11, s11, {C_L + 512}")
    a(f"v_lshl_add_u32 v{vA}, v{vA}, 2, s11")
    ts.x(1, 8)
    LR, LI, CR, CI, L16R, L16I, PWR, PWI, L64R, L64I, LWR, LWI, W0R = [KP + k for k in range(13)]
    vTW, vTR, vCB, vStS, vAg, vPr, vF = [KP + k for k in range(16, 23)]
    a(f"s_lshl_b32 s21, s{S_NS}, 7")
    a(f"s_mul_i32 s22, s{S_MT}, 3584")
    a("s_add_u32 s22, s22, s21")
    a(f"s_add_u32 s22, s22, {WS_AGG - AGG_L:#x}")
    a(f"s_mov_b32 s23, {WS_AGG:#x}")
    a(f"s_mov_b32 s20, {WS_AGG + 4*3584:#x}")
    a(f"s_lshl_b32 s18, s{S_M64}, 10")
    a(f"s_and_b32 s11, s{S_W4}, 1")
    a("s_lshl_b32 s11, s11, 7")
    a("s_add_u32 s18, s18, s11")
    a(f"s_add_u32 s18, s18, {WS_FLAG + 512:#x}")
    a(f"s_lshl_b32 s11, s{S_MT}, 2")
    a(f"s_add_u32 s11, s11, s{S_W4}")
    a(f"s_mul_i32 s19, s11, {2*RT_BYTES}")
    a(f"s_lshl_b32 s11, s{S_NS}, 10")
    a("s_add_u32 s19, s19, s11")
    a(f"s_add_u32 s19, s19, {56*1024}")
    for g in range(7):
        a(f"s_add_u32 s12, s{sRF}, {g}")
        a("s_cmp_ge_u32 s12, 7")
        a("s_cselect_b32 s13, 7, 0")
        a("s_sub_u32 s12, s12, s13")
        a(f"s_mul_i32 s{sGrp[g]}, s12, {64*896}")
    a(f"s_add_u32 s11, s{sMX}, {R[2]}")
    a(f"v_add_u32 v{vT+4}, s11, v{vP}")
    kparts = {}
    if cfg.wprio: a(f"s_setprio {cfg.wprio}")
    for s in range(7):
        vm.wait(('st', s))
        ts.x(2, 1 + s)
        a("s_barrier")
        ts.x(3, 1 + s)
        if s == 0: ts(2)
        if s == 0:
            for k in range(6): a(f"ds_read_b128 v[{KP+4*k}:{KP+4*k+3}], v{vT+4} offset:{1024*k}")
        if s == 6:
            QQ = 28
            for p in range(8): a(f"ds_read_b32 v{QQ+p}, v{vT+1} offset:{512*p}")
            a("s_waitcnt lgkmcnt(0)")
            for p in range(4): a(f"v_add_f32 v{QQ+p}, v{QQ+p}, v{QQ+4+p}")
            a(f"v_add_f32 v{QQ}, v{QQ}, v{QQ+2}")
            a(f"v_add_f32 v{QQ+1}, v{QQ+1}, v{QQ+3}")
            a(f"v_add_f32 v{QQ}, v{QQ}, v{QQ+1}")
            a(f"ds_write_b32 v{vT}, v{QQ}")
            npre = win[6].index("put") + 1 if "put" in win[6] else 2
            pre = tok_ops(win[6][:npre])
            for o in pre: o()
            a("s_waitcnt lgkmcnt(0)")
            a("s_barrier")
            a("s_setprio 0")
            run_tokens(win[6][npre:])
            continue
        segs = [[None, []]]
        for t in win.get(s, []):
            if t.startswith("cs"): segs.append([int(t[2:]), []])
            else: segs[-1][1].append(t)
        for cs, toks in segs:
            fl = []
            if cs is not None:
                vm.wait(('st', cs))
                colsum_reads(cs)
                fl = colsum_ops()
            if cs == 6:
                b = ACC
                for k in range(8): fl.append(f"v_permlane32_swap_b32 v{CA+k}, v{CA+8+k}")
                fl.append(f"v_add_f32_dpp v{b}, v{b}, v{b} quad_perm:[1,0,3,2] row_mask:0xf bank_mask:0xf")
                for k in range(8): fl.append(f"v_add_f32 v{CA+k}, v{CA+k}, v{CA+8+k}")
                fl.append(f"v_add_f32_dpp v{b}, v{b}, v{b} quad_perm:[2,3,0,1] row_mask:0xf bank_mask:0xf")
                for k in range(8): fl.append(f"v_add_f32_dpp v{CA+k}, v{CA+k}, v{CA+k} row_ror:8 row_mask:0xf bank_mask:0xf")
                fl.append(f"v_add_f32_dpp v{b}, v{b}, v{b} row_half_mirror row_mask:0xf bank_mask:0xf")
                fl.append(f"ds_write_b128 v{vC}, v[{CA}:{CA+3}]")
                fl.append(f"ds_write_b128 v{vC}, v[{CA+4}:{CA+7}] offset:16")
                fl.append(f"ds_write_b32 v{vA}, v{b}")
            ops = tok_ops(toks)
            per = max(1, -(-len(fl) // max(1, len(ops))))
            interleave(a, ops, fl, per)
        if s == 5:
            a(f"s_and_b32 s12, s{S_W4}, 1")
            a("s_lshl_b32 s12, s12, 8")
            a(f"v_lshl_add_u32 v{vT}, v0, 2, s12")
            a(f"v_add_u32 v{vT+1}, {CP_L}, v{vT}")
            a(f"v_add_u32 v{vT}, {C_L}, v{vT}")
            a("s_waitcnt lgkmcnt(0)")
            a("s_setprio 3")
    ts.x(2, 8)
    a("s_barrier")
    ts(3)
    ts.x(3, 8)
    a(f"v_add_u32 v{vT+2}, {SD}, v{vPQ}")
    vm.wait(('w', 11), "lgkmcnt(0)")
    a("s_barrier")
    X, Y, ST = 32, 48, CF
    HR, HI, T1, T2, CBR, CBI, G0, G1, QR, QI = 20, 21, 22, 23, 24, 25, 26, 28, 30, 31
    for k in range(8): a(f"ds_read_b128 v[{X+4*k}:{X+4*k+3}], v{vT+2} offset:{1024*k}")
    a(f"ds_read_b32 v{CBR}, v{vCB}")
    a(f"ds_read_b32 v{CBI}, v{vCB} offset:64")
    for k in range(8): a(f"ds_read_b128 v[{ST+4*k}:{ST+4*k+3}], v{vStS} offset:{16*k}")
    a(f"s_setprio {cfg.eprio}")
    a(f"v_lshrrev_b32 v1, 4, v0")
    a(f"v_sub_u32 v1, s{S_MT}, v1")
    a(f"v_cmp_le_i32 s[56:57], 1, v1")
    a(f"v_cmp_le_i32 s[58:59], 5, v1")
    a(f"v_lshlrev_b32 v5, 16, v{KP+23}")
    a(f"v_mov_b32 v3, v{vF}")
    vF = 3
    a("s_waitcnt lgkmcnt(10)")
    for r in range(16): a(f"v_permlane16_swap_b32 v{X+r}, v{Y+r}")
    a("s_waitcnt lgkmcnt(0)")
    side = {}
    for r in range(16):
        if r in side: side[r]()
        m, rs = ST + 2 * r, ST + 2 * r + 1
        a(f"v_fma_f32 v{X+r}, -v{m}, v{CBR}, v{X+r}")
        a(f"v_fma_f32 v{Y+r}, -v{m}, v{CBI}, v{Y+r}")
        a(f"v_mul_f32 v{X+r}, v{X+r}, v{rs}")
        a(f"v_mul_f32 v{Y+r}, v{Y+r}, v{rs}")
        if r >= 1:
            pr, pi = (X, Y) if r == 1 else (HR, HI)
            a(f"v_fma_f32 v{T1}, -v{LI}, v{pi}, v{X+r}")
            a(f"v_fma_f32 v{T2}, v{LI}, v{pr}, v{Y+r}")
            a(f"v_fma_f32 v{HR}, v{LR}, v{pr}, v{T1}")
            a(f"v_fma_f32 v{HI}, v{LR}, v{pi}, v{T2}")
    z = CF
    a(f"v_mov_b32 v{z}, v{HR}"); a(f"v_mov_b32 v{z+1}, v{HI}")
    csq(a, z + 8, z + 9, L16R, L16I, z + 10)
    a(f"v_permlane32_swap_b32 v{HR}, v{z}")
    a(f"v_permlane32_swap_b32 v{HI}, v{z+1}")
    a(f"v_fma_f32 v{z}, -v{L16I}, v{HI}, v{z}")
    a(f"v_fma_f32 v{z+1}, v{L16I}, v{HR}, v{z+1}")
    a(f"v_fmac_f32 v{z}, v{L16R}, v{HR}")
    a(f"v_fmac_f32 v{z+1}, v{L16R}, v{HI}")
    a(f"v_mov_b32 v{z+2}, v{z}"); a(f"v_mov_b32 v{z+3}, v{z+1}")
    a(f"s_lshl_b32 s11, s{S_W4}, 7")
    a(f"v_add_u32 v{z+5}, s11, v{vAg}")
    a(f"v_permlane16_swap_b32 v{z}, v{z+2}")
    a(f"v_permlane16_swap_b32 v{z+1}, v{z+3}")
    a(f"v_fma_f32 v{z+2}, -v{z+9}, v{z+1}, v{z+2}")
    a(f"v_fma_f32 v{z+3}, v{z+9}, v{z}, v{z+3}")
    a(f"v_fmac_f32 v{z+2}, v{z+8}, v{z}")
    a(f"v_fmac_f32 v{z+3}, v{z+8}, v{z+1}")
    a(f"ds_write_b64 v{z+5}, v[{z+2}:{z+3}]")
    a("s_waitcnt lgkmcnt(0)")
    ts.x(2, 9)
    a(f"s_setprio {cfg.lprio}")
    a("s_barrier")
    ts(4)
    E = CF + 16
    for i in range(4): a(f"ds_read_b64 v[{E+2+2*i}:{E+3+2*i}], v{vAg} offset:{128*i}")
    a(f"v_mov_b32 v{E}, 0")
    a(f"v_mov_b32 v{E+1}, 0")
    a(f"v_and_b32 v{z+4}, 16, v0")
    a(f"v_cmp_ne_u32 s[12:13], 0, v{z+4}")
    for i in range(1, 4):
        e, p = E + 2 + 2 * i, E + 2 * i
        a(f"s_waitcnt lgkmcnt({3 - i})")
        a(f"v_fma_f32 v{e}, -v{L64I}, v{p+1}, v{e}")
        a(f"v_fma_f32 v{e+1}, v{L64I}, v{p}, v{e+1}")
        a(f"v_fmac_f32 v{e}, v{L64R}, v{p}")
        a(f"v_fmac_f32 v{e+1}, v{L64R}, v{p+1}")
    a(f"s_cmp_lg_u32 s{S_W4}, 0")
    a("s_cbranch_scc1 L_l_nopub")
    e = E + 8
    a(f"v_cmp_eq_u32 vcc, -1, v{e}")
    a(f"v_mov_b32 v{T1}, 0x7fc00000")
    a(f"v_cndmask_b32 v{e}, v{e}, v{T1}, vcc")
    a("s_mov_b64 exec, 0xffff")
    a(f"buffer_store_dwordx2 v[{e}:{e+1}], v{vAg}, s[{SRD_WS}:{SRD_WS+3}], s22 offen sc1")
    a("s_mov_b64 exec, -1")
    ts(5)
    a.label("L_l_nopub")
    a(f"v_cmp_lt_u32 vcc, 31, v0")
    a(f"v_cndmask_b32 v{z}, 0, v{z}, s[12:13]")
    a(f"v_cndmask_b32 v{z+1}, 0, v{z+1}, s[12:13]")
    a(f"v_fma_f32 v{HR}, -v{L16I}, v{z+1}, v{HR}")
    a(f"v_fma_f32 v{HI}, v{L16I}, v{z}, v{HI}")
    a(f"v_fmac_f32 v{HR}, v{L16R}, v{z}")
    a(f"v_fmac_f32 v{HI}, v{L16R}, v{z+1}")
    a(f"v_cndmask_b32 v{z}, v{z}, v{HR}, vcc")
    a(f"v_cndmask_b32 v{z+1}, v{z+1}, v{HI}, vcc")
    cmul(a, HR, HI, z, z + 1, CR, CI)
    a(f"s_bitcmp1_b32 s{S_W4}, 0")
    a("s_cselect_b64 vcc, -1, 0")
    a(f"v_cndmask_b32 v{QR}, v{E}, v{E+2}, vcc")
    a(f"v_cndmask_b32 v{QI}, v{E+1}, v{E+3}, vcc")
    a(f"v_cndmask_b32 v{T1}, v{E+4}, v{E+6}, vcc")
    a(f"v_cndmask_b32 v{T2}, v{E+5}, v{E+7}, vcc")
    a(f"s_bitcmp1_b32 s{S_W4}, 1")
    a("s_cselect_b64 vcc, -1, 0")
    a(f"v_cndmask_b32 v{QR}, v{QR}, v{T1}, vcc")
    a(f"v_cndmask_b32 v{QI}, v{QI}, v{T2}, vcc")
    ts.x(2, 10)
    thr[0] = cfg.thr
    lds = [f"buffer_load_dwordx2 v[{G0}:{G0+1}], v{vPr}, s[{SRD_WS}:{SRD_WS+3}], s23 offen sc1",
           f"buffer_load_dwordx2 v[{G1}:{G1+1}], v{vPr}, s[{SRD_WS}:{SRD_WS+3}], s20 offen sc1"]
    up = Rec()
    for r in range(16):
        up(f"v_mul_f32 v{T1}, v{CI}, v{Y+r}")
        up(f"v_mul_f32 v{T2}, v{CI}, v{X+r}")
        up(f"v_fma_f32 v{X+r}, v{CR}, v{X+r}, -v{T1}")
        up(f"v_fma_f32 v{Y+r}, v{CR}, v{Y+r}, v{T2}")
    vRd, vOne = 4, 2
    a(f"s_lshl_b32 s11, s{S_W4}, 2")
    a(f"s_add_u32 s11, s11, {CNT_L + 16}")
    a(f"v_mov_b32 v{vRd}, s11")
    a(f"v_mov_b32 v{vOne}, 1")
    thr[0] = None
    co = w_ops(range(22, 28)) + (c_ops(0) if cfg.c0early else [])
    interleave(a, co[:cfg.c1], up.L, 4)
    if cfg.agpos == 0:
        for t in lds: vm.issue('ag', t)
    w_write([12, 13, 14, 15])
    a(f"ds_write_b32 v{vRd}, v{vOne}")
    XV, STT, DS = 64, 80, 5
    TT = SACC + 32
    vHW = 1
    a(f"v_add_u32 v{vHW}, {HTS}, v{vPQ}")
    a(f"ds_write_b128 v{vHW}, v[{XRAW}:{XRAW+3}]")
    a(f"ds_write_b128 v{vHW}, v[{XRAW+4}:{XRAW+7}] offset:1024")
    a(f"v_lshrrev_b32 v{vT+3}, 5, v0")
    a(f"v_lshlrev_b32 v{vT+2}, 10, v{vT+3}")
    a(f"v_and_b32 v{vT}, 31, v0")
    a(f"v_lshl_add_u32 v{vT+2}, v{vT}, 1, v{vT+2}")
    a(f"s_add_u32 s11, s{sMP}, {HTS}")
    a(f"v_add_u32 v{vT+2}, s11, v{vT+2}")
    for r in range(16): a(f"ds_read_u16 v{XV+r}, v{vT+2} offset:{64*r}")
    if cfg.agpos == 1:
        for t in lds: vm.issue('ag', t)
    w_write([16, 17])
    def wrest():
        w_write([18, 19])
        w_write([20, 21])
        a(f"v_mov_b32 v{T1}, 2")
        a(f"ds_write_b32 v{vRd}, v{T1}")
    if not cfg.wl: wrest()
    co = co[cfg.c1:]
    ts(8)
    vm.wait('ag')
    def cond():
        a(f"v_cmp_eq_u32 vcc, -1, v{G0}")
        a("s_and_b64 s[48:49], vcc, s[56:57]")
        a(f"v_cmp_eq_u32 vcc, -1, v{G1}")
        a("s_and_b64 s[50:51], vcc, s[58:59]")
        a("s_or_b64 s[48:49], s[48:49], s[50:51]")
        a("s_cmp_eq_u64 s[48:49], 0")
    spin_check(a, "L_agg", lds, cond, 2)
    ts(6)
    SR, SI = CBR, CBI
    cmul(a, SR, SI, G0, G0 + 1, W0R, W0R + 1)
    cmul(a, T1, T2, G1, G1 + 1, W0R + 2, W0R + 3)
    a(f"v_cndmask_b32 v{SR}, 0, v{SR}, s[56:57]")
    a(f"v_cndmask_b32 v{SI}, 0, v{SI}, s[56:57]")
    a(f"v_cndmask_b32 v{T1}, 0, v{T1}, s[58:59]")
    a(f"v_cndmask_b32 v{T2}, 0, v{T2}, s[58:59]")
    a(f"v_add_f32 v{SR}, v{SR}, v{T1}")
    a(f"v_add_f32 v{SI}, v{SI}, v{T2}")
    for sw in ("v_permlane32_swap_b32", "v_permlane16_swap_b32"):
        a(f"v_mov_b32 v{T1}, v{SR}")
        a(f"v_mov_b32 v{T2}, v{SI}")
        a(f"{sw} v{SR}, v{T1}")
        a(f"{sw} v{SI}, v{T2}")
        a(f"v_add_f32 v{SR}, v{SR}, v{T1}")
        a(f"v_add_f32 v{SI}, v{SI}, v{T2}")
    a(f"v_fmac_f32 v{QR}, v{LWR}, v{SR}")
    a(f"v_fmac_f32 v{QI}, v{LWR}, v{SI}")
    a(f"v_fma_f32 v{QR}, -v{LWI}, v{SI}, v{QR}")
    a(f"v_fmac_f32 v{QI}, v{LWI}, v{SR}")
    a(f"v_fmac_f32 v{HR}, v{PWR}, v{QR}")
    a(f"v_fmac_f32 v{HI}, v{PWR}, v{QI}")
    a(f"v_fma_f32 v{HR}, -v{PWI}, v{QI}, v{HR}")
    a(f"v_fmac_f32 v{HI}, v{PWI}, v{QR}")
    pr, pi = HR, HI
    PK, HF = 96, 80
    rest = co[:cfg.c2]
    for r in range(16):
        if rest: rest.pop(0)()
        a(f"v_fma_f32 v{X+r}, -v{LI}, v{pi}, v{X+r}")
        a(f"v_fma_f32 v{Y+r}, v{LI}, v{pr}, v{Y+r}")
        a(f"v_fmac_f32 v{X+r}, v{LR}, v{pr}")
        a(f"v_fmac_f32 v{Y+r}, v{LR}, v{pi}")
        pr, pi = X + r, Y + r
    for k in range(8):
        a(f"v_cvt_pk_bf16_f32 v{PK+k}, v{X+2*k}, v{X+2*k+1}")
    a(f"ds_write_b128 v{vTW}, v[{PK}:{PK+3}]")
    a(f"ds_write_b128 v{vTW}, v[{PK+4}:{PK+7}] offset:16")
    for k in range(8):
        a(f"v_cvt_pk_bf16_f32 v{PK+8+k}, -v{Y+2*k}, -v{Y+2*k+1}")
    a(f"ds_write_b128 v{vTW}, v[{PK+8}:{PK+11}] offset:2048")
    a(f"ds_write_b128 v{vTW}, v[{PK+12}:{PK+15}] offset:2064")
    for q in range(2):
        for part in range(2):
            for j in range(2):
                d = HF + 8 * q + 4 * part + 2 * j
                a(f"ds_read_b64_tr_b16 v[{d}:{d+1}], v{vTR} offset:{(part*16 + 4*j)*128 + 64*(q ^ j)}")
    assert not rest
    a("s_waitcnt lgkmcnt(0)")
    for q in range(2):
        for part in range(2):
            d = HF + 8 * q + 4 * part
            a(f"s_add_u32 s11, s19, {q*RT_BYTES + part*HALF_BYTES}")
            vm.issue('hs', f"buffer_store_dwordx4 v[{d}:{d+3}], v{vP}, s[{SRD_WS}:{SRD_WS+3}], s11 offen{SP}")
    if cfg.wl: wrest()
    def flag2():
        vm.wait('hs')
        a("s_mov_b64 exec, 1")
        vm.issue('f', f"buffer_store_dword v{vOne}, v{vF}, s[{SRD_WS}:{SRD_WS+3}], 0 offen sc1")
        a("s_mov_b64 exec, -1")
        ts(7)
    if cfg.f2b == 0: flag2()
    for o in co[cfg.c2:] + (c_ops(2) if not cfg.clate else []): o()
    if cfg.f2b == 1: flag2()
    a(f"s_and_b32 s11, s{S_W4}, 1")
    a("s_lshl_b32 s11, s11, 8")
    a(f"s_add_u32 s11, s11, {ST2_L}")
    a(f"v_lshl_add_u32 v{vT+3}, v{vT+3}, 7, s11")
    STT = 32
    for k in range(8): a(f"ds_read_b128 v[{STT+4*k}:{STT+4*k+3}], v{vT+3} offset:{16*k}")
    for r in range(16): a(f"v_lshlrev_b32 v{XV+r}, 16, v{XV+r}")
    a("s_waitcnt lgkmcnt(0)")
    a("s_setprio 0")
    def rnd_pair(r0, r1):
        a(f"v_cvt_pk_bf16_f32 v{r1}, v{r0}, v{r1}"); a(f"v_lshlrev_b32 v{r0}, 16, v{r1}"); a(f"v_and_b32 v{r1}, s71, v{r1}")
    for r in range(16): a(f"v_sub_f32 v{TT+r}, v{XV+r}, v{STT+2*r}")
    for k in range(8): rnd_pair(TT + 2 * k, TT + 2 * k + 1)
    a(f"v_mov_b32 v{T2}, 3")
    vm.wait(('w', 27))
    a(f"ds_write_b32 v{vRd}, v{T2}")
    for r in range(16): a(f"v_mul_f32 v{TT+r}, v{TT+r}, v{STT+2*r+1}")
    for k in range(8): rnd_pair(TT + 2 * k, TT + 2 * k + 1)
    for r in range(16): a(f"v_mul_f32 v{TT+r}, v{TT+r}, v{DS}")
    for k in range(8): rnd_pair(TT + 2 * k, TT + 2 * k + 1)
    def poll(name, off):
        sspin(a, name, [f"s_load_dwordx16 s[20:35], s[{P_WS}:{P_WS+1}], s18 glc"], pcond, cfg.psleep)
    if True:
        def pcond():
            for k in range(0, 12, 4): a(f"s_and_b64 s[{20+k}:{21+k}], s[{20+k}:{21+k}], s[{22+k}:{23+k}]")
            a("s_and_b64 s[20:21], s[20:21], s[24:25]")
            a("s_and_b64 s[28:29], s[28:29], s[32:33]")
            a("s_and_b64 s[20:21], s[20:21], s[28:29]")
            a("s_and_b32 s20, s20, s21")
            a("s_cmp_eq_u32 s20, 1")
    a(f"s_mul_i32 s57, s40, {RT_BYTES}")
    a("s_xor_b32 s11, s40, 1")
    a(f"s_mul_i32 s56, s11, {RT_BYTES}")
    a(f"s_lshr_b32 s11, s{S_W4}, 1")
    a(f"s_mul_i32 s11, s11, {HALF_BYTES}")
    a(f"s_add_u32 s11, s11, {56*1024}")
    a("s_add_u32 s56, s56, s11")
    a("s_add_u32 s57, s57, s11")
    a(f"s_and_b32 s12, s{S_W4}, 1")
    a("s_lshl_b32 s13, s12, 14")
    for b in range(3):
        if cfg.crot:
            a(f"s_sub_u32 s11, s{sCB[b]}, s{sCF}")
            a("s_lshr_b32 s11, s11, 1")
            a(f"s_add_u32 s{52+b}, s13, s11")
        else: a(f"s_add_u32 s{52+b}, s13, {b*4096}")
    a("s_lshl_b32 s12, s12, 11")
    a(f"s_add_u32 s55, s12, {12*1024}")
    srd(a, 60, P_OUT, 2048 * 1792)
    vW1, vW2, vCn, vCv = 1, 2, 9, 4
    vR = [3, 12, 13, 14]
    a(f"v_add_u32 v{vW1}, {PH1}, v{vPQ}")
    a(f"v_add_u32 v{vW2}, {PH2}, v{vPQ}")
    a(f"v_mov_b32 v{vCn}, {CNT_L}")
    for (reg, xr, base) in ((vR[0], 1, PH1), (vR[1], 3, PH1 + 4096), (vR[2], 2, PH2)):
        a(f"s_xor_b32 s11, s{S_W4}, {xr}")
        a(f"s_mul_i32 s11, s11, {Q}")
        a(f"s_add_u32 s11, s11, {base}")
        a(f"v_add_u32 v{reg}, s11, v{vP}")
    a(f"v_add_u32 v{vR[3]}, {GA}, v{vPQ}")
    ts.x(2, 11)
    ts.x(7, 11)
    AR = list(range(16, 64, 4))
    NA = len(AR)
    PO = [4, 5, 6, 7, 12, 13, 0, 1, 2, 3, 8, 9, 10, 11]
    def aload(n):
        lr, p = n // 14, PO[n % 14]
        if p % 4 == 0: a(f"s_add_u32 s58, s{56+lr}, s{52 + p//4}")
        d = AR[n % NA]
        vm.issue(('a', n), f"buffer_load_dwordx4 v[{d}:{d+3}], v{vP}, s[{SRD_WS}:{SRD_WS+3}], s58 offen offset:{(p%4)*1024}{AP}")
    def cnt_wait(name, off):
        a("s_mov_b32 s73, 0")
        a.label(name)
        a("s_waitcnt lgkmcnt(0)")
        a(f"v_readfirstlane_b32 s11, v{vCv}")
        a("s_cmp_ge_u32 s11, 4")
        a(f"s_cbranch_scc1 {name}ok")
        a("s_add_u32 s73, s73, 1")
        a(f"s_cmp_ge_u32 s73, {SPIN_MAX}")
        a(f"s_cbranch_scc1 {name}ok")
        a("s_sleep 1")
        a(f"ds_read_b32 v{vCv}, v{vCn} offset:{off}")
        a(f"s_branch {name}")
        a.label(name + "ok")
        a("s_nop 7")
    assert cfg.clate == 2 and cdone == {1, 3}
    if cfg.gate == 0: poll("L_ps", 128)
    if cfg.gate < 2:
        a(f"ds_read_b32 v{vCv}, v{vCn} offset:4")
        cnt_wait("L_l_c0", 4)
    if cfg.sprio: a(f"s_setprio {cfg.sprio}")
    cc = c_ops(0) + c_ops(2)
    for o in cc[:cfg.c0n]: o()
    if cfg.gate != 0: poll("L_ps", 128)
    ts(9)
    ts.x(7, 1)
    for n in range(6): aload(n)
    for o in cc[cfg.c0n:8]: o()
    for n in range(6, 10): aload(n)
    for o in cc[max(8, cfg.c0n):]: o()
    for n in range(10, NA): aload(n)
    a("s_setprio 0")
    ts.x(7, 2)
    for n in range(28):
        lr, p = n // 14, PO[n % 14]
        vm.wait(('a', n))
        assert ('c', min(p // 4, 3)) not in vm.q
        if n in (0, 7, 14, 21): ts.x(7, 3 + n // 7)
        d = AR[n % NA]
        for lc in (1, 0):
            acc = SACC + 32 * lr + 16 * lc
            c = "0" if (n % 14 == 0 and not (lr == 1 and lc == 0)) else f"v[{acc}:{acc+15}]"
            f = cfrag(p, lc)
            a(f"v_mfma_f32_32x32x16_bf16 v[{acc}:{acc+15}], v[{d}:{d+3}], v[{f}:{f+3}], {c}")
        if n + NA < 28: aload(n + NA)
        if cfg.gate == 2 and n == 14: a(f"ds_read_b32 v{vCv}, v{vCn} offset:4")
        if cfg.gate == 2 and n == 15: cnt_wait("L_l_c0", 4)
        if 16 <= n < 24:
            k = n - 16
            a(f"ds_write_b128 v{vW1}, v[{SACC+4*k}:{SACC+4*k+3}] offset:{1024*k}")
    ts(10)
    ts.x(7, 7)
    ts.x(7, 8)
    for k in range(4):
        a(f"ds_write_b128 v{vW2}, v[{SACC+48+4*k}:{SACC+48+4*k+3}] offset:{1024*k}")
    a("s_waitcnt lgkmcnt(0)")
    ts.x(7, 9)
    a("s_barrier")
    ts(11)
    ts.x(7, 10)
    RX = CF
    for k in range(4):
        for w in range(4):
            a(f"ds_read_b128 v[{RX+16*w+4*k}:{RX+16*w+4*k+3}], v{vR[w]} offset:{1024*k}")
    for k in range(4):
        a(f"s_waitcnt lgkmcnt({12 - 4*k})")
        for r in range(4 * k, 4 * k + 4):
            a(f"v_add_f32 v{TT+r}, v{TT+r}, v{RX+r}")
            a(f"v_add_f32 v{RX+16+r}, v{RX+16+r}, v{RX+32+r}")
        for r in range(4 * k, 4 * k + 4):
            a(f"v_add_f32 v{TT+r}, v{TT+r}, v{RX+16+r}")
        for r in range(4 * k, 4 * k + 4):
            a(f"v_fma_f32 v{XV+r}, v{TT+r}, v{RX+48+r}, v{XV+r}")
            if r % 2 == 0: a(f"s_mov_b32 s11, {r*1792}")
            a(f"buffer_store_dword v{XV+r}, v{vO}, s[60:63], s11 offen offset:{(r%2)*1792}{OP}")
    if cfg.ts:
        a("s_waitcnt vmcnt(0)")
        ts(12)
    if cfg.padto:
        a.label("L_pad")
        a("s_memrealtime s[98:99]")
        a("s_waitcnt lgkmcnt(0)")
        a("s_sub_u32 s98, s98, s100")
        a(f"s_cmp_lt_u32 s98, {cfg.padto}")
        a("s_cbranch_scc1 L_pad")
    ts.dump(16, 17, 1)
    a("s_endpgm")

def gen_consumer(a, cfg, ts):
    a.label("L_consumer")
    SP = ["", " sc1"][cfg.spol]
    AP = ['', ' sc1', ' sc1 nt', ' sc0 sc1', ' sc0', ' nt'][cfg.apol]
    vm = VM(a)
    XA = [1, 2, 3, 4]; BA = [5, 6, 7, 8]; WA = [9, 10]
    vL16, vStF, vCL, vF, vFl, vSo, vCn, vRd, vWB, vPQ, vOne, MM = 11, 12, 13, 14, 15, 16, 17, 18, 19, 20, 21, 22
    FS = [40, 68]
    ACC = 96
    def G(ft, q): return ACC + 16 * (2 * ft + q)
    def U(ft, q): return ACC + 64 + 16 * (2 * ft + q)
    def S(q): return ACC + 128 + 16 * q
    vI, vH, t0, t1, t2 = 24, 25, 26, 27, 28
    a(f"v_and_b32 v{vI}, 31, v0")
    a(f"v_lshrrev_b32 v{vH}, 5, v0")
    a(f"v_bfe_u32 v{t0}, v0, 1, 3")
    a(f"v_xor_b32 v{t0}, v{t0}, v{vH}")
    a(f"v_lshlrev_b32 v{t0}, 4, v{t0}")
    a(f"v_lshl_add_u32 v{t0}, v{vI}, 7, v{t0}")
    a(f"s_lshl_b32 s11, s{S_W4}, 13")
    for ks in range(4):
        a(f"v_xor_b32 v{t1}, {32*ks}, v{t0}")
        a(f"v_add_u32 v{XA[ks]}, s11, v{t1}")
        a(f"v_add_u32 v{BA[ks]}, {OFF_BB}, v{t1}")
    a(f"v_bfe_u32 v{t0}, v0, 2, 2")
    a(f"v_lshlrev_b32 v{t1}, 7, v{t0}")
    a(f"v_lshrrev_b32 v{t0}, 1, v{t0}")
    a(f"v_lshl_add_u32 v{t1}, v{t0}, 6, v{t1}")
    a(f"v_bfe_u32 v{t0}, v0, 4, 1")
    a(f"v_lshl_add_u32 v{t1}, v{t0}, 5, v{t1}")
    a(f"v_and_b32 v{t2}, 3, v0")
    a(f"v_lshl_add_u32 v{t1}, v{t2}, 3, v{t1}")
    a(f"v_lshl_add_u32 v{WA[0]}, v{vH}, 10, v{t1}")
    a(f"v_add_u32 v{WA[0]}, {OFF_WG}, v{WA[0]}")
    a(f"v_xor_b32 v{WA[1]}, 64, v{WA[0]}")
    a(f"s_mul_i32 s62, s{S_W4}, {Q}")
    a(f"s_lshr_b32 s59, s{S_W4}, 1")
    a(f"s_and_b32 s63, s{S_W4}, 1")
    a("s_lshl_b32 s11, s59, 6")
    a(f"v_lshl_add_u32 v{vWB}, v{vH}, 9, v{t1}")
    a(f"v_xor_b32 v{vWB}, s11, v{vWB}")
    a(f"v_add_u32 v{vWB}, s62, v{vWB}")
    a("s_waitcnt lgkmcnt(0)")
    a(f"s_lshl_b32 s11, s{S_NS}, 5")
    a(f"s_load_dwordx8 s[32:39], s[{P_LRE}:{P_LRE+1}], s11")
    a(f"s_load_dwordx8 s[64:71], s[{P_LDT}:{P_LDT+1}], s11")
    a(f"s_load_dwordx8 s[24:31], s[{P_LIM}:{P_LIM+1}], s11")
    for k in range(160): a(f"v_mov_b32 v{ACC+k}, 0")
    a(f"v_mov_b32 v{vCn}, {CNT_L}")
    a(f"ds_write_b128 v{vCn}, v[{ACC}:{ACC+3}]")
    a(f"ds_write_b128 v{vCn}, v[{ACC}:{ACC+3}] offset:16")
    a(f"v_bfe_u32 v{t0}, v0, 2, 1")
    a(f"v_lshl_add_u32 v{t0}, v{t0}, 4, v{t2}")
    a(f"v_bfe_u32 v{t1}, v0, 3, 2")
    a(f"v_lshl_add_u32 v{t0}, v{t1}, 2, v{t0}")
    a(f"s_lshl_b32 s11, s{S_W4}, 9")
    a(f"s_add_u32 s11, s11, {STATS_L}")
    a(f"v_lshl_add_u32 v{vStF}, v{t0}, 3, s11")
    a(f"v_lshlrev_b32 v{vL16}, 4, v0")
    a(f"v_add_u32 v{vPQ}, s62, v{vL16}")
    a(f"v_lshlrev_b32 v{vCL}, 4, v{vH}")
    a(f"v_add_u32 v{vCL}, {C_L}, v{vCL}")
    a(f"v_mov_b32 v{vOne}, 1")
    a(f"s_lshl_b32 s11, s{S_W4}, 2")
    a(f"s_add_u32 s11, s11, {CNT_L + 16}")
    a(f"v_mov_b32 v{vRd}, s11")
    a("s_lshl_b32 s11, s63, 8")
    a(f"s_add_u32 s11, s11, {ST2_L}")
    a(f"v_lshl_add_u32 v{vSo}, v{vH}, 7, s11")
    a(f"s_lshl_b32 s13, s{S_MT}, 2")
    a(f"s_add_u32 s13, s13, s{S_W4}")
    a(f"s_mul_i32 s56, s13, {2*RT_BYTES}")
    a(f"s_cmp_ge_u32 s{S_NS}, 14")
    a(f"s_cselect_b32 s11, {HALF_BYTES - 56*1024}, 0")
    a(f"s_lshl_b32 s12, s{S_NS}, 12")
    a("s_add_u32 s11, s11, s12")
    a("s_add_u32 s56, s56, s11")
    a(f"s_add_u32 s57, s56, {RT_BYTES}")
    a("s_lshl_b32 s11, s13, 10")
    flag_index(a, 12, 14, 7)
    a("s_add_u32 s11, s11, s12")
    a(f"s_add_u32 s11, s11, {WS_FLAG:#x}")
    a(f"v_mov_b32 v{vF}, s11")
    a(f"s_lshl_b32 s55, s{S_M64}, 10")
    a(f"s_add_u32 s55, s55, {WS_FLAG:#x}")
    a(f"s_lshl_b32 s11, s{S_W4}, 7")
    a("s_add_u32 s55, s55, s11")
    a(f"s_mul_i32 s12, s59, {HALF_BYTES}")
    a(f"s_mul_i32 s13, s63, {28*1024}")
    a("s_add_u32 s12, s12, s13")
    a(f"s_lshl_b32 s11, s{S_M64}, 1")
    a("s_add_u32 s11, s11, s63")
    a(f"s_mul_i32 s52, s11, {RT_BYTES}")
    a("s_add_u32 s52, s52, s12")
    a("s_xor_b32 s11, s11, 1")
    a(f"s_mul_i32 s51, s11, {RT_BYTES}")
    a("s_add_u32 s51, s51, s12")
    p2_rot(a, cfg, 60, 61, 58)
    a("s_mov_b32 s12, 0x00030003")
    a("s_mov_b32 s13, 0x00030003")
    a("s_waitcnt lgkmcnt(0)")
    K, KP = 40, 64
    for k in range(8):
        a(f"s_lshl_b64 exec, s[12:13], {2*k}")
        for m, sb in enumerate((32, 24, 64)): a(f"v_mov_b32 v{K+m}, s{sb+k}")
    a("s_mov_b64 exec, -1")
    a(f"v_and_b32 v{K+3}, 1, v0")
    a(f"v_lshlrev_b32 v{K+3}, 4, v{K+3}")
    for m in range(3): a(f"v_lshrrev_b32 v{K+m}, v{K+3}, v{K+m}")
    srd(a, SRD_WS, P_WS, WS_SIZE)
    ssm_park(a, K, KP, 62)
    a(f"v_mov_b32 v{KP+23}, 0")
    a(f"s_lshl_b32 s11, s{S_W4}, 13")
    a(f"s_add_u32 s11, s11, {R[2]}")
    a(f"v_add_u32 v{K}, s11, v{vL16}")
    for k in range(6): a(f"ds_write_b128 v{K}, v[{KP+4*k}:{KP+4*k+3}] offset:{1024*k}")
    a("s_waitcnt lgkmcnt(0)")
    ts(1)

    def reads(fs, ks):
        f = FS[fs]
        L = []
        L.append(f"ds_read_b128 v[{f}:{f+3}], v{XA[ks]}")
        L.append(f"ds_read_b128 v[{f+24}:{f+27}], v{BA[ks]}")
        L.append(f"ds_read_b128 v[{f+4}:{f+7}], v{XA[ks]} offset:4096")
        for gu in range(2):
            for ft in range(2):
                for j in range(2):
                    d = f + 8 + 8 * gu + 4 * ft + 2 * j
                    L.append(f"ds_read_b64_tr_b16 v[{d}:{d+1}], v{WA[ft]} offset:{gu*8192 + ks*2048 + j*512}")
        return L
    def mfmas(fs):
        f = FS[fs]
        X = [f, f + 4]; Bf = f + 24
        L = []
        for q in range(2):
            L.append(f"v_mfma_f32_32x32x16_bf16 v[{S(q)}:{S(q)+15}], v[{X[q]}:{X[q]+3}], v[{Bf}:{Bf+3}], v[{S(q)}:{S(q)+15}]")
        for gu in range(2):
            for ft in range(2):
                w = f + 8 + 8 * gu + 4 * ft
                for q in range(2):
                    d = (G, U)[gu](ft, q)
                    L.append(f"v_mfma_f32_32x32x16_bf16 v[{d}:{d+15}], v[{w}:{w+3}], v[{X[q]}:{X[q]+3}], v[{d}:{d+15}]")
        return L
    a("s_setprio 2")
    a("s_mov_b32 s72, 0")
    a("s_mov_b32 s74, 0")
    a("s_barrier")
    ts(2)
    for t in reads(0, 0): a(t)
    a.label("L_c_loop")
    need = {0: 9, 1: 8, 2: 6, 4: 4, 6: 2, 8: 0}
    for ks in range(4):
        fs = ks & 1
        M = mfmas(fs)
        if ks < 3:
            Rd = reads(1 - fs, ks + 1)
            issued = 0
            for i, m in enumerate(M):
                if i in need: a(f"s_waitcnt lgkmcnt({min(15, need[i] + issued)})")
                a(m)
                for _ in range(2 if i >= cfg.rdstart else 0):
                    if Rd: a(Rd.pop(0)); issued += 1
        else:
            Rd = reads(1 - fs, 0)
            a("s_waitcnt lgkmcnt(9)")
            a(M[0])
            a("s_add_u32 s74, s74, 1")
            a("s_cmp_eq_u32 s74, 3")
            a("s_mov_b32 s75, 53248")
            a(f"s_cmov_b32 s75, {(-106496) & 0xffffffff:#x}")
            a("s_cselect_b32 s74, 0, s74")
            for v in XA + BA[:1]: a(f"v_add_u32 v{v}, s75, v{v}")
            a("s_waitcnt lgkmcnt(8)")
            a(M[1])
            for v in BA[1:] + WA: a(f"v_add_u32 v{v}, s75, v{v}")
            a("s_add_u32 s72, s72, 1")
            a("s_cmp_eq_u32 s72, 6")
            a("s_waitcnt lgkmcnt(0)")
            a(M[2])
            a("s_barrier")
            hist = list(a.hist)
            a("s_cbranch_scc1 L_c_last")
            for m in M[3:]:
                for _ in range(2):
                    if Rd: a(Rd.pop(0))
                a(m)
            a("s_branch L_c_loop")
            a.label("L_c_last")
            a.hist = hist
            Mtail = M[3:]
    lq = []
    def ds_issue(tag, t):
        a(t)
        if t.startswith("ds_"): lq.append(tag)
    def ds_wait(tag):
        idx = max((i for i, t in enumerate(lq) if t == tag), default=None)
        if idx is None: return None
        n = len(lq) - 1 - idx
        del lq[:idx + 1]
        return f"lgkmcnt({min(n, 15)})"
    def dwait(tag):
        w = ds_wait(tag)
        if w: a(f"s_waitcnt {w}")
    UB = [24, 40, 56]
    def ureads(u):
        b, ks = UB[u % 3], u % 4
        L = [f"ds_read_b128 v[{b}:{b+3}], v{XA[ks]}"]
        if u < 8:
            ft = u // 4
            for gu in range(2):
                for j in range(2):
                    d = b + 8 + 4 * gu + 2 * j
                    L.append(f"ds_read_b64_tr_b16 v[{d}:{d+1}], v{WA[ft]} offset:{gu*8192 + ks*2048 + j*512}")
        else:
            L.append(f"ds_read_b128 v[{b+8}:{b+11}], v{BA[ks]}")
        L.append(f"ds_read_b128 v[{b+4}:{b+7}], v{XA[ks]} offset:4096")
        return [(u, t) for t in L]
    def umfma(u):
        b = UB[u % 3]
        L = []
        for q in range(2):
            x = b + 4 * q
            if u < 8:
                for gu in range(2):
                    d = (G, U)[gu](u // 4, q); w = b + 8 + 4 * gu
                    L.append(f"v_mfma_f32_32x32x16_bf16 v[{d}:{d+15}], v[{w}:{w+3}], v[{x}:{x+3}], v[{d}:{d+15}]")
            else:
                L.append(f"v_mfma_f32_32x32x16_bf16 v[{S(q)}:{S(q)+15}], v[{x}:{x+3}], v[{b+8}:{b+11}], v[{S(q)}:{S(q)+15}]")
        return L
    Rd = ureads(0) + ureads(1)
    for m in Mtail:
        for _ in range(2):
            if Rd: ds_issue(*Rd.pop(0))
        a(m)
    CH = 72
    def chalf(p):
        for gu in range(2):
            for k in range(2):
                ds_issue(('c', p), f"ds_read_b128 v[{CH+8*gu+4*k}:{CH+8*gu+4*k+3}], v{vCL} offset:{256*gu + 32*(2*p+k)}")
    def hstore(ft, q, p):
        g = G(ft, q)
        vm.issue('h', f"buffer_store_dwordx4 v[{g+4*p}:{g+4*p+3}], v{vL16}, s[{SRD_WS}:{SRD_WS+3}], s{56+q} offen offset:{(2*ft+p)*1024}{SP}")
    ep = [lambda: dwait(('c', 0)), f"v_xor_b32 v{MM}, 0x80000000, v{MM}", f"v_xor_b32 v{MM+1}, 0x80000000, v{MM+1}"]
    for p in range(2):
        if p: ep.append(lambda: dwait(('c', 1)))
        for q in range(2):
            g, u = G(0, q) + 8 * p, U(0, q) + 8 * p
            for k in range(8): ep.append(f"v_fmac_f32 v{g+k}, v{MM+q}, v{CH+k}")
            for k in range(8): ep.append(f"v_fmac_f32 v{u+k}, v{MM+q}, v{CH+8+k}")
            if q == 1 and p == 0: ep.append(lambda: chalf(1))
            for k in range(8): ep.append(f"v_max_f32 v{g+k}, 0, v{g+k}")
            for k in range(8): ep.append(f"v_mul_f32 v{u+k}, v{u+k}, v{g+k}")
            for k in range(4): ep.append(f"v_cvt_pk_bf16_f32 v{G(0,q)+4*p+k}, v{u+2*k}, v{u+2*k+1}")
            ep.append(lambda q=q, p=p: hstore(0, q, p))
    def fill(n):
        while n > 0 and ep:
            t = ep.pop(0)
            if callable(t): t()
            else: a(t)
            n -= 1
    def cread(tag, dst, off):
        for k in range(4): ds_issue(tag, f"ds_read_b128 v[{dst+4*k}:{dst+4*k+3}], v{vCL} offset:{off + 32*k}")
    for u in range(12):
        dwait(u)
        if u == 11:
            a("s_barrier")
        Rd = ureads(u + 2) if u + 2 < 12 else []
        for i, m in enumerate(umfma(u)):
            a(m)
            for _ in range(2):
                if Rd: ds_issue(*Rd.pop(0))
            if u > 4 or (u == 4 and i >= 1): fill(cfg.fper - 1 if u < 10 else cfg.fper)
        if u == cfg.c2u:
            a("s_barrier")
            ds_issue(('c', 0), f"ds_read_b32 v{MM}, v{vStF}")
            ds_issue(('c', 0), f"ds_read_b32 v{MM+1}, v{vStF} offset:256")
            chalf(0)
        if u == 9: cread('cg', UB[0], 128)
        if u == 10: cread('cu', UB[1], 384)
    ts(3)
    fill(1000)
    dump = [f"ds_write_b128 v{vPQ}, v[{S(0)+4*k}:{S(0)+4*k+3}] offset:{SD + 1024*k}" for k in range(8)]
    WB = {0: [1, 2], 1: [3, 4], 2: [5, 6]}
    for rg in range(3):
        a(f"v_add_u32 v{WB[rg][0]}, {R[rg]}, v{vWB}")
        a(f"v_xor_b32 v{WB[rg][1]}, 64, v{WB[rg][0]}")
    dwait('cu')
    cg, cu = UB[0], UB[1]
    for q in range(2):
        g, u = G(1, q), U(1, q)
        sel = f"op_sel:[{q},0,0] op_sel_hi:[{q},1,1]"
        for p in range(2):
            kr = range(4 * p, 4 * p + 4)
            for k in kr:
                a(f"v_pk_fma_f32 v[{g+2*k}:{g+2*k+1}], v[{MM}:{MM+1}], v[{cg+2*k}:{cg+2*k+1}], v[{g+2*k}:{g+2*k+1}] {sel}")
                if dump: a(dump.pop(0))
            for k in kr:
                a(f"v_pk_fma_f32 v[{u+2*k}:{u+2*k+1}], v[{MM}:{MM+1}], v[{cu+2*k}:{cu+2*k+1}], v[{u+2*k}:{u+2*k+1}] {sel}")
                a(f"v_max_f32 v{g+2*k}, 0, v{g+2*k}")
                a(f"v_max_f32 v{g+2*k+1}, 0, v{g+2*k+1}")
            for k in kr:
                a(f"v_pk_mul_f32 v[{u+2*k}:{u+2*k+1}], v[{u+2*k}:{u+2*k+1}], v[{g+2*k}:{g+2*k+1}]")
            for k in kr:
                a(f"v_cvt_pk_bf16_f32 v{g+k}, v{u+2*k}, v{u+2*k+1}")
            if q == 0 and p == 1:
                a("s_waitcnt lgkmcnt(0)")
                a("s_barrier")
            hstore(1, q, p)
    del lq[:]
    ts(4)
    BR, NB = 160, 12
    def breads(p):
        sl = WSLOT[p]
        rg = max(k for k in range(3) if R[k] <= sl)
        L = []
        for lc in range(2):
            for jj in range(2):
                d = BR + 8 * (p % NB) + 4 * lc + 2 * jj
                L.append(f"ds_read_b64_tr_b16 v[{d}:{d+1}], v{WB[rg][lc]} offset:{sl - R[rg] + jj*1024}")
        return L
    for p in range(NB):
        for t in breads(p): a(t)
    def flag1():
        vm.wait('h')
        a("s_setprio 3")
        a("s_mov_b64 exec, 1")
        vm.issue('f', f"buffer_store_dword v{vOne}, v{vF}, s[{SRD_WS}:{SRD_WS+3}], 0 offen sc1")
        a("s_mov_b64 exec, -1")
        ts(6)
    if cfg.fpre: flag1()
    a("s_waitcnt lgkmcnt(0)")
    a("s_barrier")
    ts(5)
    if not cfg.fpre: flag1()
    AF = 96
    AR = list(range(24, 96, 4))
    NA = len(AR)
    def aload(n):
        p, lr = n // 2, n % 2
        if n % 8 == 0:
            a(f"s_lshl_b32 s11, s60, 12")
            a(f"s_add_u32 s54, s11, s52")
            a(f"s_add_u32 s53, s11, s51")
            a(f"s_add_u32 s60, s60, 1")
            a(f"s_cmp_eq_u32 s60, 7")
            a(f"s_cselect_b32 s60, 0, s60")
        d = AR[n % NA]
        vm.issue(('a', n), f"buffer_load_dwordx4 v[{d}:{d+3}], v{vL16}, s[{SRD_WS}:{SRD_WS+3}], s{54 - lr} offen offset:{(p%4)*1024}{AP}")
    def cond():
        a("s_and_b64 s[16:17], s[16:17], s[18:19]")
        a("s_and_b64 s[16:17], s[16:17], s[20:21]")
        a("s_and_b32 s16, s16, s17")
        a("s_and_b32 s16, s16, s22")
        a("s_cmp_eq_u32 s16, 1")
    sspin(a, "L_pf", [f"s_load_dwordx8 s[16:23], s[{P_WS}:{P_WS+1}], s55 glc"], cond, cfg.fsleep)
    a("s_setprio 2")
    ts(7)
    for n in range(cfg.a0): aload(n)
    nxt = [cfg.a0]
    ts(8)
    def lds_spin(name, vaddr, off, val):
        a("s_mov_b32 s73, 0")
        a.label(name)
        a("s_waitcnt lgkmcnt(0)")
        a("v_readfirstlane_b32 s11, v8")
        a(f"s_cmp_ge_u32 s11, {val}")
        a(f"s_cbranch_scc1 {name}ok")
        a("s_add_u32 s73, s73, 1")
        a(f"s_cmp_ge_u32 s73, {SPIN_MAX}")
        a(f"s_cbranch_scc1 {name}ok")
        a("s_sleep 1")
        a(f"ds_read_b32 v8, v{vaddr} offset:{off}")
        a(f"s_branch {name}")
        a.label(name + "ok")
        del lq[:]
    for p in range(28):
        f = BR + 8 * (p % NB)
        pn = p + cfg.bd
        for lr in range(2):
            n = 2 * p + lr
            w = ds_wait(p) if lr == 0 else None
            vm.wait(('a', n), w or "")
            if n == 0: ts(9)
            if n in (0, 7, 17, 25, 35): ts.x(6, {0: 7, 7: 8, 17: 9, 25: 10, 35: 11}[n])
            if lr == 0 and pn in (12, 16, 22): ds_issue('r', f"ds_read_b32 v8, v{vRd}")
            d = AR[n % NA]
            for lc in range(2):
                acc = AF + 32 * lr + 16 * lc
                c = "0" if p == 0 else f"v[{acc}:{acc+15}]"
                a(f"v_mfma_f32_32x32x16_bf16 v[{acc}:{acc+15}], v[{d}:{d+3}], v[{f+4*lc}:{f+4*lc+3}], {c}")
            for _ in range(2):
                if nxt[0] < 56 and nxt[0] <= n + NA:
                    aload(nxt[0]); nxt[0] += 1
        if pn in (12, 16, 22): lds_spin(f"L_c_r{pn}", vRd, 0, {12: 1, 16: 2, 22: 3}[pn])
        if p == cfg.ksig:
            assert pn > 15
            w = ds_wait(15)
            if w: a(f"s_waitcnt {w}")
            a("s_mov_b64 exec, 1")
            ds_issue('c', f"ds_add_u32 v{vCn}, v{vOne} offset:4")
            a("s_mov_b64 exec, -1")
        if NB <= pn < 28:
            for t in breads(pn): ds_issue(pn, t)
        if p == 24:
            STT = BR + 32
            for k in range(8): ds_issue('st', f"ds_read_b128 v[{STT+4*k}:{STT+4*k+3}], v{vSo} offset:{16*k}")
        if p == 26:
            for x in range(1, 4):
                a(f"s_xor_b32 s11, s{S_W4}, {x}")
                a(f"s_mul_i32 s11, s11, {Q}")
                a(f"s_add_u32 s11, s11, {FXA + (x-1)*4096}")
                a(f"v_add_u32 v{x}, s11, v{vL16}")
            a(f"v_add_u32 v4, {GA}, v{vPQ}")
            a(f"v_add_u32 v5, {FXA}, v{vPQ}")
        if p % 4 == 3: ts.x(4, 1 + p // 4)
    ts(11)
    ts.x(7, 1)
    for x in (2, 1, 3):
        src = AF + 32 * (x & 1) + 16 * (x >> 1)
        for k in range(4):
            a(f"ds_write_b128 v5, v[{src+4*k}:{src+4*k+3}] offset:{(x-1)*4096 + 1024*k}")
    a("s_waitcnt lgkmcnt(12)")
    for r in range(16): a(f"v_mul_f32 v{STT+2*r}, v{STT+2*r+1}, v{STT+2*r+1}")
    a(f"s_mov_b32 s13, {LOG2E ^ 0x80000000:#x}")
    ts.x(7, 2)
    a("s_waitcnt lgkmcnt(0)")
    ts.x(7, 3)
    a("s_mov_b64 exec, 1")
    a(f"ds_add_u32 v{vCn}, v{vOne}")
    a("s_mov_b64 exec, -1")
    a(f"ds_read_b32 v8, v{vCn}")
    lds_spin("L_c_cnt", vCn, 0, 4)
    ts.x(7, 4)
    O, RX, EX = AF, 24, 72
    for k in range(4):
        for x in range(1, 4):
            a(f"ds_read_b128 v[{RX+16*(x-1)+4*k}:{RX+16*(x-1)+4*k+3}], v{x} offset:{1024*k}")
    for k in range(4):
        rr = range(4 * k, 4 * k + 4)
        a(f"s_waitcnt lgkmcnt({9 - 3*k})")
        for r in rr: a(f"v_add_f32 v{O+r}, v{O+r}, v{RX+r}")
        for r in rr: a(f"v_add_f32 v{RX+16+r}, v{RX+16+r}, v{RX+32+r}")
        for r in rr: a(f"v_add_f32 v{O+r}, v{O+r}, v{RX+16+r}")
        for r in rr: a(f"v_mul_f32 v{O+r}, v{O+r}, v{STT+2*r}")
        for r in rr: a(f"v_mul_f32 v{EX+r}, s13, v{O+r}")
        for r in rr: a(f"v_exp_f32 v{EX+r}, v{EX+r}")
    ts.x(7, 5)
    for k in range(4):
        rr = range(4 * k, 4 * k + 4)
        for r in rr: a(f"v_add_f32 v{EX+r}, 1.0, v{EX+r}")
        for r in rr: a(f"v_rcp_f32 v{EX+r}, v{EX+r}")
        for r in rr: a(f"v_mul_f32 v{O+r}, v{O+r}, v{EX+r}")
        a(f"ds_write_b128 v4, v[{O+4*k}:{O+4*k+3}] offset:{1024*k}")
    a("s_waitcnt lgkmcnt(0)")
    ts(12)
    a("s_barrier")
    ts.dump(24, 25, 0)
    a("s_endpgm")

HEADER = """; Fused S5-SSM + ReGLU block, one launch: 224 main workgroups (4 MFMA waves + 4 loader waves) + 32 helper workgroups.
; @launch grid=(256,1,1) block=(512,1,1) lds=163840
.amdgcn_target "amdgcn-amd-amdhsa--gfx950"
.text
.globl {k}
.p2align 8
.type {k},@function
{k}:
"""
FOOTER = """.section .rodata,"a"
.p2align 6
.amdhsa_kernel {k}
  .amdhsa_next_free_vgpr 256
  .amdhsa_next_free_sgpr 102
  .amdhsa_accum_offset 256
  .amdhsa_group_segment_fixed_size 0
  .amdhsa_kernarg_size 128
  .amdhsa_user_sgpr_count 2
  .amdhsa_user_sgpr_kernarg_segment_ptr 1
  .amdhsa_system_sgpr_workgroup_id_x 1
  .amdhsa_float_denorm_mode_32 3
.end_amdhsa_kernel
"""

def generate(cfg):
    WSOFF[0] = cfg.wsoff << 20
    a = Asm()
    ts = TS(a, cfg)
    gen_entry(a, cfg, ts)
    gen_loader(a, cfg, ts)
    gen_consumer(a, cfg, ts)
    gen_helper(a, cfg, ts)
    a.label("L_exit")
    a("s_endpgm")
    return HEADER.format(k=KNAME) + f"; wsoff={cfg.wsoff}\n" + a.text() + FOOTER.format(k=KNAME)

if __name__ == "__main__":
    cfg = Cfg()
    out = sys.argv[1]
    for kv in sys.argv[2:]:
        k, v = kv.split("=")
        setattr(cfg, k, int(v))
    open(out, "w").write(generate(cfg))
```

```python
import sys, os
sys.path.insert(0, os.path.dirname(os.path.abspath(__file__)))
from asmlib import Asm, VM

KNAME = "recurrent_scan__ssm_conv_s5__glu_gated_reglu__prompt_kernel"

R = [0, 53248, 106496]
MISC = 159744
OFF_WG, OFF_WU, OFF_BB = 32768, 40960, 49152
CP_L = R[1] + 49152
STATS_L = MISC
C_L = MISC + 2048
CNT_L = MISC + 2688
ST2_L = MISC + 2720
AGG_L = MISC + 3232
Q = 12288

RT_BYTES = 172032
HALF_BYTES = 86016
WS_STATS = 0xB00000
WS_AGG = WS_STATS + 0x4000
WS_FLAG = WS_AGG + 0x8000
INIT_N = 32
WS_CP = 0xB20000
WS_TS = 0xC00000
WS_SIZE = 0x1000000
SPIN_MAX = 1 << 20

S_WAVE, S_XCD, S_SLOT, S_MT, S_NS, S_M64, S_NT, S_W4 = 3, 4, 5, 6, 7, 8, 9, 10
P_X, P_LRE, P_LIM, P_BRE, P_BIM, P_CRE, P_CIM, P_LDT, P_DSK, P_BX, P_WG, P_WU, P_WD, P_OUT, P_DBG, P_WS = [16 + 2 * i for i in range(16)]
SRD_X, SRD_A, SRD_B, SRD_C, SRD_WS, SRD_E = 48, 52, 56, 60, 64, 68
TS0 = 76

LOG2E = 0x3fb8aa3b
LOG2E_LO = 0x32a57060
LN2 = 0x3f317218
INV2PI = 0x3e22f983

class Cfg:
    ts = 0
    tsset = 0
    pd = 16
    perm = 4
    rot = 2
    ssm_early = 0
    schedn = 0
    polx = 0
    apol = 1
    noa = 0
    nob = 0
    rdstart = 1
    polw = 0
    winn = 3
    loc = 1
    zpeel = 1
    ws = 0
    crot = 0
    ipos = 0
    gate = 2
    c0n = 8
    agpos = 0
    c0early = 0
    hord = 1
    clate = 2
    wl = 1
    fper = 6
    c2u = 2
    probe = 0
    pwho = 0
    ponly = -1
    pmask = 0xffff
    wsoff = 0
    kwin = 2
    wprio = 0
    hdelay = 0
    eprio = 0
    c2late = 0
    cpf = 2
    padto = 0
    nocs = 0
    r2pre = 1
    tlb = 0
    bd = 4
    pollw = 24
    c1 = 12
    c2 = 16
    f2b = 1
    wfirst = 1
    @property
    def win(self):
        W = lambda a, b: [f"w{p}" for p in range(a, b)]
        if self.ws:
            m, n1, n2, n3, n4, n5, n6, cp, cs, ep = [int(c) for c in str(self.ws)[1:]]
            assert n1 + n2 + n3 + n4 + n5 + n6 == 10
            pos = [12]
            def take(n):
                r = W(pos[0], pos[0] + n); pos[0] += n; return r
            w = {}
            if m == 2: w[-1] = ["m", "s1:0-3"]; w[0] = ["cs0", "s1:3-13", "k", "s2:0-10"]; w[1] = ["cs1", "s2:10-13", "s3"]
            else: w[-1] = ["s1:0-6"]; w[0] = ["cs0", "s1:6-13", "k", "s2"] + (["m"] if m == 1 else []); w[1] = ["cs1"] + (["m"] if m == 3 else []) + ["s3"]
            w[1] += take(n1)
            w[2] = ["cs2", "s4"] + take(n2)
            w[3] = (["cs3", "s5:0-7", "cs4", "s5:7-13"] if cs == 1 else ["cs3", "s5"]) + take(n3)
            w[4] = {0: ["cs4", "init", "s6:0-7", "cs5", "s6:7-13"], 1: ["init", "s6:0-4", "cs5", "s6:4-13"], 2: ["cs4", "init", "s6"]}[cs] + take(n4)
            w[5] = (["cs5"] if cs == 2 else []) + ["fetch"] + W(0, 4) + ["cs6"] + W(4, 6) + take(n5) + {0: ["c3"], 1: [], 2: ["c3", "c1"], 3: ["c1"]}[cp] + ["put"]
            w[6] = W(6, 12) + take(n6) + {0: ["c1"], 1: ["c3", "c1"], 2: [], 3: ["c3"]}[cp]
            w[ep].append("e")
            if self.ipos:
                w[4].remove("init"); w[4].append("init")
                w[5].remove("fetch"); w[5].remove("put")
                w[5].insert(w[5].index("cs6") + 1, "fetch")
                w[6].insert(2, "put")
            return w
        return [
            {-1: ["s1:0-6"], 0: ["cs0", "s1:6-13", "k", "s2:0-9"], 1: ["cs1", "s2:9-13", "s3", "e"], 2: ["cs2", "s4"] + W(12, 14), 3: ["cs3", "s5"] + W(14, 17),
             4: ["cs4", "init", "s6:0-7", "cs5", "s6:7-13", "w17"], 5: ["fetch"] + W(0, 4) + ["cs6"] + W(4, 6) + W(18, 20) + ["put"], 6: W(6, 12) + W(20, 22)},
            {-1: ["s1:0-6"], 0: ["cs0", "s1:6-13", "k", "s2:0-9"], 1: ["cs1", "s2:9-13", "s3", "e"], 2: ["cs2", "s4"] + W(12, 15), 3: ["cs3", "s5"] + W(15, 18),
             4: ["cs4", "init", "s6"] + W(18, 20), 5: ["cs5", "fetch"] + W(0, 3) + ["cs6"] + W(3, 6) + ["put"], 6: W(6, 12) + W(20, 22)},
            {-1: ["s1:0-6"], 0: ["cs0", "s1:6-13", "k", "s2:0-9"], 1: ["cs1", "s2:9-13", "s3", "e"], 2: ["cs2", "s4"] + W(12, 15), 3: ["cs3", "s5:0-7", "cs4", "s5:7-13", "w15"],
             4: ["init", "s6:0-4", "cs5", "s6:4-13"] + W(16, 19), 5: ["fetch"] + W(0, 4) + ["cs6"] + W(4, 6) + W(19, 22) + ["put"], 6: W(6, 12)},
            {-1: ["s1:0-6"], 0: ["cs0", "s1:6-13", "k", "s2:0-9"], 1: ["cs1", "s2:9-13", "s3", "e"], 2: ["cs2", "s4"] + W(12, 15), 3: ["cs3", "s5"] + W(15, 18),
             4: ["cs4", "init", "s6:0-7", "cs5", "s6:7-13", "w18", "w19"], 5: ["fetch"] + W(0, 4) + ["cs6"] + W(4, 6) + W(20, 22) + ["c3", "put"], 6: W(6, 12) + ["c1"]},
            {-1: ["s1:0-6"], 0: ["cs0", "s1:6-13", "k", "s2:0-9"], 1: ["cs1", "s2:9-13", "s3", "e"], 2: ["cs2", "s4"] + W(12, 14), 3: ["cs3", "s5"] + W(14, 17),
             4: ["cs4", "init", "s6:0-7", "cs5", "s6:7-13", "w17"], 5: ["fetch"] + W(0, 4) + ["cs6"] + W(4, 6) + W(18, 20) + ["put"], 6: W(6, 12) + W(20, 22) + ["c3"]},
            {-1: ["s1:0-6"], 0: ["cs0", "s1:6-13", "k", "s2:0-9"], 1: ["cs1", "s2:9-13", "s3", "e"], 2: ["cs2", "s4"] + W(12, 15), 3: ["cs3", "s5"] + W(15, 19),
             4: ["cs4", "init", "s6:0-7", "cs5", "s6:7-13"] + W(19, 22), 5: ["fetch"] + W(0, 4) + ["cs6"] + W(4, 6) + ["c1", "put"], 6: W(6, 12) + ["c3"]},
            {-1: ["s1:0-6"], 0: ["cs0", "s1:6-13", "k", "s2"], 1: ["cs1", "s3", "e"] + W(12, 14), 2: ["cs2", "s4"] + W(14, 17), 3: ["cs3", "s5"] + W(17, 20),
             4: ["cs4", "init", "s6:0-7", "cs5", "s6:7-13"] + W(20, 22), 5: ["fetch"] + W(0, 4) + ["cs6"] + W(4, 6) + ["c1", "put"], 6: W(6, 12) + ["c3"]},
            {-1: ["s1:0-6"], 0: ["cs0", "s1:6-13", "k", "s2:0-9"], 1: ["cs1", "s2:9-13", "s3", "e"], 2: ["cs2", "s4"] + W(12, 15), 3: ["cs3", "s5:0-7", "cs4", "s5:7-13"] + W(15, 18),
             4: ["init", "s6:0-4", "cs5", "s6:4-13"] + W(18, 22), 5: ["fetch"] + W(0, 4) + ["cs6"] + W(4, 6) + ["c1", "put"], 6: W(6, 12) + ["c3"]},
            {-1: ["s1:0-6"], 0: ["cs0", "s1:6-13", "k", "s2:0-9"], 1: ["cs1", "s2:9-13", "s3", "e"], 2: ["cs2", "s4"], 3: ["cs3", "s5"] + W(12, 16),
             4: ["cs4", "init", "s6:0-7", "cs5", "s6:7-13"] + W(16, 19), 5: ["fetch"] + W(0, 4) + ["cs6"] + W(4, 6) + W(19, 22) + ["c3", "put"], 6: W(6, 12) + ["c1"]},
            {-1: ["s1:0-6"], 0: ["cs0", "s1:6-13", "k", "s2"], 1: ["cs1", "s3", "e"], 2: ["cs2", "s4"] + W(12, 14), 3: ["cs3", "s5"] + W(14, 18),
             4: ["cs4", "init", "s6:0-7", "cs5", "s6:7-13", "w18", "w19"], 5: ["fetch"] + W(0, 4) + ["cs6"] + W(4, 6) + W(20, 22) + ["c3", "put"], 6: W(6, 12) + ["c1"]},
            {-1: ["s1:0-3"], 0: ["cs0", "s1:3-13", "k", "s2:0-8"], 1: ["cs1", "s2:8-13", "s3"], 2: ["cs2", "s4", "e"] + W(12, 14), 3: ["cs3", "s5"] + W(14, 18),
             4: ["cs4", "init", "s6:0-7", "cs5", "s6:7-13", "w18", "w19"], 5: ["fetch"] + W(0, 4) + ["cs6"] + W(4, 6) + W(20, 22) + ["c3", "put"], 6: W(6, 12) + ["c1"]},
            {-1: ["s1:0-6"], 0: ["cs0", "s1:6-13", "k", "s2:0-9"], 1: ["cs1", "s2:9-13", "s3", "e"], 2: ["cs2", "s4"] + W(12, 15), 3: ["cs3", "init", "s5"] + W(15, 18),
             4: ["cs4", "fetch", "s6:0-7", "cs5", "s6:7-13", "w18", "w19"], 5: ["put"] + W(0, 4) + ["cs6"] + W(4, 6) + W(20, 22) + ["c3"], 6: W(6, 12) + ["c1"]},
            {-1: ["m", "s1:0-3"], 0: ["cs0", "s1:3-13", "k", "s2:0-8"], 1: ["cs1", "s2:8-13", "s3", "e"], 2: ["cs2", "s4"] + W(12, 15), 3: ["cs3", "s5"] + W(15, 18),
             4: ["cs4", "init", "s6:0-7", "cs5", "s6:7-13", "w18", "w19"], 5: ["fetch"] + W(0, 4) + ["cs6"] + W(4, 6) + W(20, 22) + ["c3", "put"], 6: W(6, 12) + ["c1"]},
            {-1: ["s1:0-6"], 0: ["cs0", "s1:6-13", "m", "k", "s2:0-9"], 1: ["cs1", "s2:9-13", "s3", "e"], 2: ["cs2", "s4"] + W(12, 15), 3: ["cs3", "s5"] + W(15, 18),
             4: ["cs4", "init", "s6:0-7", "cs5", "s6:7-13", "w18", "w19"], 5: ["fetch"] + W(0, 4) + ["cs6"] + W(4, 6) + W(20, 22) + ["c3", "put"], 6: W(6, 12) + ["c1"]},
            {-1: ["m"], 0: ["cs0", "s1", "k", "s2:0-6"], 1: ["cs1", "s2:6-13", "s3"], 2: ["cs2", "s4", "e"] + W(12, 14), 3: ["cs3", "s5"] + W(14, 18),
             4: ["cs4", "init", "s6:0-7", "cs5", "s6:7-13", "w18", "w19"], 5: ["fetch"] + W(0, 4) + ["cs6"] + W(4, 6) + W(20, 22) + ["c3", "put"], 6: W(6, 12) + ["c1"]},
            {-1: ["s1:0-6"], 0: ["cs0", "s1:6-13", "k", "s2"], 1: ["cs1", "s3"], 2: ["cs2", "s4", "e"], 3: ["cs3", "s5"] + W(12, 16),
             4: ["cs4", "init", "s6:0-7", "cs5", "s6:7-13"] + W(16, 19), 5: ["fetch"] + W(0, 4) + ["cs6"] + W(4, 6) + W(19, 22) + ["c3", "put"], 6: W(6, 12) + ["c1"]},
            {-1: ["s1:0-6"], 0: ["cs0", "s1:6-13", "k", "s2", "m"], 1: ["cs1", "s3"], 2: ["cs2", "s4", "e"], 3: ["cs3", "s5"] + W(12, 16),
             4: ["cs4", "init", "s6:0-7", "cs5", "s6:7-13"] + W(16, 19), 5: ["fetch"] + W(0, 4) + ["cs6"] + W(4, 6) + W(19, 22) + ["c3", "put"], 6: W(6, 12) + ["c1"]},
            {-1: ["m", "s1:0-3"], 0: ["cs0", "s1:3-13", "k", "s2:0-10"], 1: ["cs1", "s2:10-13", "s3"], 2: ["cs2", "s4", "e"], 3: ["cs3", "s5"] + W(12, 16),
             4: ["cs4", "init", "s6:0-7", "cs5", "s6:7-13"] + W(16, 19), 5: ["fetch"] + W(0, 4) + ["cs6"] + W(4, 6) + W(19, 22) + ["c3", "put"], 6: W(6, 12) + ["c1"]},
            {-1: ["s1:0-6"], 0: ["cs0", "s1:6-13", "k", "s2"], 1: ["cs1", "s3"], 2: ["cs2", "s4:0-6"], 3: ["cs3", "s4:6-13", "s5", "e"],
             4: ["cs4", "init", "s6"] + W(12, 16), 5: ["cs5", "fetch"] + W(16, 20) + ["cs6"] + W(0, 6) + ["put"], 6: W(6, 12) + W(20, 22) + ["c3", "c1"]},
            {-1: ["s1"], 0: ["cs0", "k", "s2", "e"], 1: ["cs1", "s3"], 2: ["cs2", "s4", "w12"], 3: ["cs3", "s5"] + W(13, 16),
             4: ["cs4", "init", "s6:0-7", "cs5", "s6:7-13"] + W(16, 19), 5: ["fetch"] + W(0, 4) + ["cs6"] + W(4, 6) + W(19, 22) + ["c3", "put"], 6: W(6, 12) + ["c1"]},
        ][self.winn]
    nw1 = 6
    flagr = -1
    xs = 1
    psleep = 2
    fsleep = 2
    ttper = 2
    f2n = 9
    fpre = 1
    a0 = 18
    sprio = 0
    ksig = 12
    opol = 1
    lprio = 3
    w12early = 0
    slab = 0
    spol = 1
    fpol = 1
    pollr = 4
    nw2 = 16
    thr = 15
    hpf = 2
    ky = 2
    @property
    def perms(self):
        return {
            0: [[0, 1, 2, 3, 4, 5, 6]],
            1: [[0, 1, 2, 3, 4, 5, 6], [1, 2, 0, 4, 5, 3, 6], [2, 0, 1, 5, 3, 4, 6]],
            2: [[0, 1, 2, 3, 4, 5, 6], [1, 0, 3, 2, 5, 4, 6]],
            3: [[0, 1, 2, 3, 4, 5, 6], [1, 0, 4, 5, 6, 2, 3], [0, 1, 6, 2, 3, 4, 5]],
            4: [[0, 1, 2, 3, 4, 5, 6], [1, 2, 0, 4, 6, 3, 5], [2, 0, 1, 5, 6, 3, 4]],
            6: [[0, 1, 2, 3, 4, 5, 6], [1, 2, 0, 3, 4, 5, 6], [2, 0, 1, 3, 4, 5, 6]],
            5: [[0, 1, 2, 3, 4, 5, 6], [1, 2, 3, 0, 5, 6, 4], [2, 3, 0, 1, 6, 4, 5], [3, 0, 1, 2, 4, 5, 6]],
        }[self.perm]

WSOFF = [0]
def srd(a, d, ptr, nbytes):
    if ptr == P_WS and WSOFF[0]:
        a(f"s_add_u32 s{ptr}, s{ptr}, {WSOFF[0]:#x}")
        a(f"s_addc_u32 s{ptr+1}, s{ptr+1}, 0")
    a(f"s_mov_b32 s{d}, s{ptr}")
    a(f"s_and_b32 s{d+1}, s{ptr+1}, 0xffff")
    a(f"s_mov_b32 s{d+2}, {nbytes:#x}")
    a(f"s_mov_b32 s{d+3}, 0x20000")

def srd_sel(a, d, ptr1, ptr0, nbytes):
    a(f"s_cselect_b32 s{d}, s{ptr1}, s{ptr0}")
    a(f"s_cselect_b32 s{d+1}, s{ptr1+1}, s{ptr0+1}")
    a(f"s_and_b32 s{d+1}, s{d+1}, 0xffff")
    a(f"s_mov_b32 s{d+2}, {nbytes:#x}")
    a(f"s_mov_b32 s{d+3}, 0x20000")

class TS:
    def __init__(self, a, cfg):
        self.a, self.on, self.n, self.set = a, cfg.ts, 0, cfg.tsset
        self.cfg = cfg
    def x(self, setno, i):
        if self.on and self.set == setno: self.emit(i)
    def __call__(self, i):
        if self.on and (self.set == 0 or i in (0, 12)): self.emit(i)
    def emit(self, i):
        if self.on == 5 and i not in (0, self.cfg.probe): return
        if self.on:
            assert i < 13
            self.a(f"{'s_memrealtime' if self.on != 2 else 's_memtime'} s[{TS0+2*i}:{TS0+2*i+1}]")
    def init(self):
        if self.on:
            for i in range(1, 13): self.a(f"s_mov_b32 s{TS0+2*i}, 0")
    def dump(self, vt, vt2, who=2):
        if not self.on: return
        a = self.a
        if self.on == 5:
            if who != self.cfg.pwho: return
            lab = a.newlabel("L_probe")
            if self.cfg.ponly >= 0:
                a(f"s_and_b32 s11, s2, {self.cfg.pmask}")
                a(f"s_cmp_lg_u32 s11, {self.cfg.ponly}")
                a(f"s_cbranch_scc1 {lab}_x")
            p = TS0 + 2 * self.cfg.probe
            a("s_waitcnt lgkmcnt(0)")
            a(f"s_sub_u32 s11, s{p}, s{TS0}")
            a(f"s_cmp_eq_u32 s{p}, 0")
            a("s_cselect_b32 s11, 0, s11")
            a("s_lshl_b32 s11, s11, 2")
            a("s_add_u32 s11, s11, 3000")
            a.label(lab)
            a("s_memrealtime s[12:13]")
            a("s_waitcnt lgkmcnt(0)")
            a(f"s_sub_u32 s12, s12, s{TS0}")
            a("s_cmp_lt_u32 s12, s11")
            a(f"s_cbranch_scc1 {lab}")
            a.label(lab + "_x")
            return
        if self.on == 3:
            a("s_waitcnt vmcnt(0) lgkmcnt(0)")
            lab = a.newlabel("L_nod")
            a(f"s_cmp_eq_u32 s{TS0+24}, 0")
            a(f"s_cbranch_scc1 {lab}")
            a(f"s_cmp_lg_u32 s{S_WAVE}, 0")
            a(f"s_cbranch_scc1 {lab}")
            a("s_mov_b64 exec, 1")
            a(f"v_mov_b32 v{vt2}, 0")
            a(f"s_not_b32 s11, s{TS0}")
            a(f"v_mov_b32 v{vt}, s11")
            a(f"global_atomic_umax v{vt2}, v{vt}, s[{P_DBG}:{P_DBG+1}] offset:4 sc1")
            for n, i in enumerate([0, 1, 2, 3, 4, 5, 6, 7, 8, 9, 10, 11, 12]):
                a("s_waitcnt vmcnt(0)")
                a(f"v_mov_b32 v{vt}, s{TS0+2*i}")
                a(f"global_atomic_umax v{vt2}, v{vt}, s[{P_DBG}:{P_DBG+1}] offset:{8+4*n} sc1")
            a("s_waitcnt vmcnt(0)")
            a.label(lab)
            return
        a("s_waitcnt vmcnt(0) lgkmcnt(0)")
        a(f"s_lshl_b32 s11, s2, 9")
        a(f"s_lshl_b32 s12, s{S_WAVE}, 6")
        a("s_add_u32 s11, s11, s12")
        a(f"s_add_u32 s11, s11, {WS_TS:#x}")
        a(f"v_mov_b32 v{vt2}, s11")
        for i in range(13):
            a(f"v_mov_b32 v{vt}, s{TS0+2*i}")
            a(f"buffer_store_dword v{vt}, v{vt2}, s[{SRD_WS}:{SRD_WS+3}], 0 offen offset:{4*i}")
        a("s_waitcnt vmcnt(0)")

def round_bf16(a, dst, src):
    a(f"v_cvt_pk_bf16_f32 v{dst}, v{src}, v{src}")
    a(f"v_lshlrev_b32 v{dst}, 16, v{dst}")

def exp_acc(a, dst, x, t0, t1):
    a(f"s_mov_b32 s36, {LOG2E:#x}")
    a(f"s_mov_b32 s37, {LOG2E_LO:#x}")
    a(f"v_mul_f32 v{t0}, s36, v{x}")
    a(f"v_fma_f32 v{t1}, v{x}, s36, -v{t0}")
    a(f"v_fma_f32 v{t1}, v{x}, s37, v{t1}")
    a(f"v_mul_f32 v{t1}, {LN2:#x}, v{t1}")
    a(f"v_exp_f32 v{dst}, v{t0}")
    a(f"v_fma_f32 v{dst}, v{dst}, v{t1}, v{dst}")

def csq(a, dr, di, sr, si, t):
    a(f"v_mul_f32 v{t}, v{si}, v{si}")
    a(f"v_add_f32 v{di}, v{si}, v{si}")
    a(f"v_mul_f32 v{di}, v{di}, v{sr}")
    a(f"v_fma_f32 v{dr}, v{sr}, v{sr}, -v{t}")

def cmul(a, dr, di, ar, ai, br, bi):
    a(f"v_mul_f32 v{dr}, v{ar}, v{br}")
    a(f"v_mul_f32 v{di}, v{ar}, v{bi}")
    a(f"v_fma_f32 v{dr}, -v{ai}, v{bi}, v{dr}")
    a(f"v_fma_f32 v{di}, v{ai}, v{br}, v{di}")

def ssm_const_load(a, vm, t):
    a(f"v_and_b32 v{t+3}, 15, v0")
    a(f"s_lshl_b32 s11, s{S_NS}, 4")
    a(f"v_add_lshl_u32 v{t+3}, v{t+3}, s11, 1")
    vm.issue('sc', f"global_load_ushort v{t}, v{t+3}, s[{P_LRE}:{P_LRE+1}]")
    vm.issue('sc', f"global_load_ushort v{t+1}, v{t+3}, s[{P_LIM}:{P_LIM+1}]")
    vm.issue('sc', f"global_load_ushort v{t+2}, v{t+3}, s[{P_LDT}:{P_LDT+1}]")

def ssm_const_calc(a, t, lr, li, cr=None, ci=None):
    for k in range(3): a(f"v_lshlrev_b32 v{t+k}, 16, v{t+k}")
    exp_acc(a, t + 3, t + 2, t + 4, t + 5)
    round_bf16(a, t + 2, t + 3)
    a(f"v_mul_f32 v{t+3}, v{t+2}, v{t}")
    a(f"v_mul_f32 v{t+6}, v{t+2}, v{t+1}")
    exp_acc(a, t + 7, t + 3, t + 4, t + 5)
    a(f"v_mul_f32 v{t+6}, {INV2PI:#x}, v{t+6}")
    a(f"v_rndne_f32 v{t+4}, v{t+6}")
    a(f"v_sub_f32 v{t+6}, v{t+6}, v{t+4}")
    a(f"v_cos_f32 v{t+4}, v{t+6}")
    a(f"v_sin_f32 v{t+5}, v{t+6}")
    a(f"v_mul_f32 v{lr}, v{t+7}, v{t+4}")
    a(f"v_mul_f32 v{li}, v{t+7}, v{t+5}")
    if cr is not None:
        a(f"v_add_f32 v{t+3}, -1.0, v{lr}")
        a(f"v_mul_f32 v{t+4}, v{t}, v{t}")
        a(f"v_fma_f32 v{t+4}, v{t+1}, v{t+1}, v{t+4}")
        a(f"v_rcp_f32 v{t+4}, v{t+4}")
        a(f"v_mul_f32 v{cr}, v{t+3}, v{t}")
        a(f"v_fma_f32 v{cr}, v{li}, v{t+1}, v{cr}")
        a(f"v_mul_f32 v{ci}, v{li}, v{t}")
        a(f"v_fma_f32 v{ci}, -v{t+3}, v{t+1}, v{ci}")
        a(f"v_add_f32 v{t+4}, v{t+4}, v{t+4}")
        a(f"v_mul_f32 v{cr}, v{cr}, v{t+4}")
        a(f"v_mul_f32 v{ci}, v{ci}, v{t+4}")

def gen_entry(a, cfg, ts):
    a("s_cmp_ge_u32 s2, 256")
    a("s_cbranch_scc1 L_exit")
    if cfg.padto: a("s_memrealtime s[100:101]")
    ts(0)
    a("s_load_dwordx16 s[16:31], s[0:1], 0")
    a("s_load_dwordx16 s[32:47], s[0:1], 64")
    a("v_lshrrev_b32 v1, 6, v0")
    a("v_and_b32 v0, 63, v0")
    a(f"v_readfirstlane_b32 s{S_WAVE}, v1")
    a(f"s_and_b32 s{S_XCD}, s2, 7")
    a(f"s_lshr_b32 s{S_SLOT}, s2, 3")
    if cfg.cpf == 2:
        a(f"s_cmp_lg_u32 s{S_WAVE}, 0")
        a("s_cbranch_scc1 L_nocpf")
        a("s_getpc_b64 s[12:13]")
        a.label("L_pc0")
        a(f"s_sub_u32 s12, s12, L_pc0-{KNAME}")
        a("s_subb_u32 s13, s13, 0")
        a(f"s_lshl_b32 s11, s{S_SLOT}, 10")
        a("v_lshl_add_u32 v38, v0, 4, s11")
        a(f"v_min_u32 v38, L_exit-{KNAME}, v38")
        a("global_load_dword v39, v38, s[12:13]")
        a.label("L_nocpf")
    a(f"s_and_b32 s11, s{S_SLOT}, 3")
    a(f"s_lshr_b32 s{S_NT}, s{S_SLOT}, 2")
    a(f"s_and_b32 s12, s{S_XCD}, 1")
    a(f"s_lshl_b32 s12, s12, 2")
    a(f"s_add_u32 s{S_MT}, s12, s11")
    a(f"s_lshr_b32 s12, s{S_XCD}, 1")
    a(f"s_mul_i32 s12, s12, 7")
    a(f"s_add_u32 s{S_NS}, s12, s{S_NT}")
    if cfg.slab:
        a(f"s_mov_b32 s{S_MT}, s{S_XCD}")
        a(f"s_mov_b32 s{S_NS}, s{S_SLOT}")
    if cfg.loc:
        a(f"s_and_b32 s12, s{S_XCD}, 1")
        a("s_lshl_b32 s12, s12, 2")
        a(f"s_lshr_b32 s13, s{S_XCD}, 1")
        a("s_add_u32 s12, s12, s13")
        a("s_lshl_b32 s12, s12, 2")
    else:
        a(f"s_lshl_b32 s12, s{S_XCD}, 2")
    a(f"s_add_u32 s{S_M64}, s12, s11")
    a(f"s_and_b32 s{S_W4}, s{S_WAVE}, 3")
    ts.init()
    a(f"s_cmp_ge_u32 s{S_SLOT}, 28")
    a("s_cbranch_scc1 L_helper")
    a(f"s_cmp_lt_u32 s{S_WAVE}, 4")
    a("s_cbranch_scc1 L_consumer")

def gen_helper(a, cfg, ts):
    a.label("L_helper")
    vm = VM(a)
    a(f"s_sub_u32 s73, s{S_SLOT}, 28")
    a(f"s_lshl_b32 s11, s73, 3")
    a(f"s_add_u32 s72, s11, s{S_XCD}")
    if cfg.loc: a(f"s_mov_b32 s72, s{S_M64}")
    HC = 65536
    a(f"v_mov_b32 v200, {HC}")
    a("v_mov_b32 v201, 0")
    a("ds_write_b32 v200, v201")
    def h_open():
        a("s_waitcnt lgkmcnt(0)")
        a("s_barrier")
    def h_signal(tag):
        a("v_mov_b32 v202, 1")
        a("s_mov_b64 exec, 1")
        a("ds_add_rtn_u32 v203, v200, v202")
        a("s_waitcnt lgkmcnt(0)")
        a("v_readfirstlane_b32 s11, v203")
        a("s_cmp_lg_u32 s11, 7")
        a(f"s_cbranch_scc1 L_h_ns{tag}")
        a(f"global_atomic_add v201, v202, s[{P_DBG}:{P_DBG+1}] sc1")
        a.label(f"L_h_ns{tag}")
        a("s_mov_b64 exec, -1")
    a(f"s_cmp_ge_u32 s{S_WAVE}, 4")
    a("s_cbranch_scc1 L_h_pf")
    a(f"s_lshl_b32 s11, s72, 6")
    a(f"s_lshl_b32 s12, s{S_WAVE}, 4")
    a(f"s_add_u32 s11, s11, s12")
    a("v_lshrrev_b32 v2, 3, v0")
    a("v_add_u32 v2, s11, v2")
    a("v_mul_u32_u24 v3, 896, v2")
    a("v_and_b32 v4, 7, v0")
    a("v_lshl_add_u32 v3, v4, 4, v3")
    a("s_waitcnt lgkmcnt(0)")
    srd(a, SRD_X, P_X, 2048 * 896)
    srd(a, SRD_WS, P_WS, WS_SIZE)
    a(f"s_mov_b32 s11, {8*896}")
    for ps in range(2):
        for j in range(7):
            so = "0" if ps == 0 else "s11"
            vm.issue(('x', ps), f"buffer_load_dwordx4 v[{112+28*ps+4*j}:{115+28*ps+4*j}], v3, s[{SRD_X}:{SRD_X+3}], {so} offen offset:{128*j}")
    a(f"s_cmp_gt_u32 s{S_WAVE}, 1")
    a("s_cbranch_scc1 L_h_noreset")
    a(f"s_cmp_eq_u32 s{S_WAVE}, 0")
    a("s_cselect_b32 s11, -1, 0")
    a("s_mov_b32 s12, 1024")
    a("s_cmov_b32 s12, 896")
    a(f"s_mov_b32 s13, {WS_FLAG:#x}")
    a(f"s_cmov_b32 s13, {WS_AGG:#x}")
    a("s_mul_i32 s14, s12, s72")
    a("s_add_u32 s13, s13, s14")
    for k in range(4): a(f"v_mov_b32 v{8+k}, s11")
    a("v_lshlrev_b32 v12, 4, v0")
    a("v_cmp_gt_u32 vcc, s12, v12")
    a("s_and_saveexec_b64 s[14:15], vcc")
    a(f"buffer_store_dwordx4 v[8:11], v12, s[{SRD_WS}:{SRD_WS+3}], s13 offen sc1")
    a("s_mov_b64 exec, s[14:15]")
    a.label("L_h_noreset")
    h_open()
    a("v_lshlrev_b32 v2, 3, v2")
    a("s_mov_b32 s12, 0xffff0000")
    def fin(dst):
        a("v_add_f32 v8, v8, v9")
        a("v_add_f32 v10, v10, v11")
        a(f"v_add_f32 v{dst}, v8, v10")
        a(f"v_add_f32_dpp v{dst}, v{dst}, v{dst} quad_perm:[1,0,3,2] row_mask:0xf bank_mask:0xf")
        a(f"v_add_f32_dpp v{dst}, v{dst}, v{dst} quad_perm:[2,3,0,1] row_mask:0xf bank_mask:0xf")
        a(f"v_add_f32_dpp v{dst}, v{dst}, v{dst} row_half_mirror row_mask:0xf bank_mask:0xf")
        a(f"v_mul_f32 v{dst}, 0x3b124925, v{dst}")
    for ps in range(2):
        vm.wait(('x', ps))
        if cfg.hdelay == 2 + ps: a("s_barrier")
        src = 112 + 28 * ps
        for k in range(28):
            a(f"v_lshlrev_b32 v{48+2*k}, 16, v{src+k}")
            a(f"v_and_b32 v{49+2*k}, s12, v{src+k}")
        a("v_pk_add_f32 v[8:9], v[48:49], v[52:53]")
        a("v_pk_add_f32 v[10:11], v[50:51], v[54:55]")
        for k in range(4, 28): a(f"v_pk_add_f32 v[{8+2*(k%2)}:{9+2*(k%2)}], v[{8+2*(k%2)}:{9+2*(k%2)}], v[{48+2*k}:{49+2*k}]")
        fin(12)
        for k in range(28): a(f"v_pk_add_f32 v[{48+2*k}:{49+2*k}], v[{48+2*k}:{49+2*k}], v[12:13] op_sel_hi:[1,0] neg_lo:[0,1] neg_hi:[0,1]")
        for k in range(2): a(f"v_pk_mul_f32 v[{8+2*k}:{9+2*k}], v[{48+2*k}:{49+2*k}], v[{48+2*k}:{49+2*k}]")
        for k in range(2, 28): a(f"v_pk_fma_f32 v[{8+2*(k%2)}:{9+2*(k%2)}], v[{48+2*k}:{49+2*k}], v[{48+2*k}:{49+2*k}], v[{8+2*(k%2)}:{9+2*(k%2)}]")
        fin(13)
        o = 14 + 2 * ps
        round_bf16(a, o, 12)
        round_bf16(a, 13, 13)
        a("v_add_f32 v13, 0x3727c5ac, v13")
        round_bf16(a, 13, 13)
        a("v_sqrt_f32 v13, v13")
        round_bf16(a, 13, 13)
        a(f"v_rcp_f32 v{o+1}, v13")
        a("v_cmp_eq_u32 vcc, 0, v4")
        a("s_and_saveexec_b64 s[14:15], vcc")
        a(f"s_mov_b32 s11, {WS_STATS:#x}")
        vm.issue('st', f"buffer_store_dwordx2 v[{o}:{o+1}], v2, s[{SRD_WS}:{SRD_WS+3}], s11 offen offset:{64*ps} sc1")
        a("s_mov_b64 exec, s[14:15]")
    a("s_waitcnt vmcnt(0)")
    h_signal("a")
    ts(1)
    ts.x(3, 1)
    ts.dump(8, 9)
    a("s_endpgm")
    a.label("L_h_pf")
    a("v_lshlrev_b32 v2, 4, v0")
    a(f"s_lshl_b32 s11, s{S_W4}, 10")
    a("v_add_u32 v2, s11, v2")
    if cfg.cpf == 1:
        a("s_getpc_b64 s[60:61]")
        a.label("L_pc")
        a(f"s_sub_u32 s60, s60, L_pc-{KNAME}")
        a("s_subb_u32 s61, s61, 0")
        a("s_lshl_b32 s11, s73, 12")
        a("v_add_u32 v3, s11, v2")
        for k in range(2):
            a(f"v_min_u32 v4, L_exit-{KNAME}-12, v3")
            a(f"global_load_dwordx4 v[24:27], v4, s[60:61]")
            a(f"v_add_u32 v3, 16384, v3")
    a("s_waitcnt lgkmcnt(0)")
    if cfg.hdelay == 1: a("s_waitcnt vmcnt(0)")
    if cfg.hdelay >= 2: a("s_barrier")
    srd(a, SRD_WS, P_WS, WS_SIZE)
    a("s_lshl_b32 s60, s72, 2")
    a(f"s_add_u32 s60, s60, s{S_W4}")
    a("s_cmp_ge_u32 s60, 98")
    a("s_cbranch_scc1 L_h_nopack1")
    a("s_mul_i32 s61, s60, 37")
    a("s_lshr_b32 s61, s61, 8")
    a("s_mul_i32 s62, s61, 7")
    a("s_sub_u32 s62, s60, s62")
    a("s_cmp_lt_i32 s62, 0")
    a("s_cselect_b32 s11, 1, 0")
    a("s_sub_u32 s61, s61, s11")
    a("s_mul_i32 s62, s61, 7")
    a("s_sub_u32 s62, s60, s62")
    a("s_bitcmp1_b32 s61, 0")
    srd_sel(a, 68, P_CIM, P_CRE, 448 * 896)
    a("v_lshrrev_b32 v3, 3, v0")
    a("v_and_b32 v4, 7, v0")
    a("v_lshrrev_b32 v5, 1, v3")
    a("v_xor_b32 v4, v4, v5")
    a("s_lshr_b32 s11, s61, 1")
    a("s_lshl_b32 s11, s11, 6")
    a("v_add_u32 v3, s11, v3")
    a("v_mul_u32_u24 v3, 896, v3")
    a("v_lshl_add_u32 v3, v4, 4, v3")
    a("v_xor_b32 v4, 64, v3")
    a(f"s_lshl_b32 s63, s{S_W4}, 13")
    a("s_lshl_b32 s12, s62, 7")
    for n in range(8):
        a(f"s_add_u32 m0, s63, {n*1024}")
        a(f"s_add_u32 s11, s12, {8*n*896}")
        a(f"buffer_load_dwordx4 v{3 + (n & 1)}, s[68:71], s11 offen lds")
    a.label("L_h_nopack1")
    h_open()
    def h_sweep():
        if cfg.hpf:
            for (ptr, nbytes, srdn) in ((P_WD, 1792 * 896, 56),):
                srd(a, srdn, ptr, nbytes)
            def sweep(name, srds, qbytes, first, count):
                n8 = -(-qbytes // (8 * 4096))
                n = 8 * n8
                a(f"s_mul_i32 s12, s73, {qbytes}")
                a(f"s_add_u32 s13, s{S_XCD}, {first}")
                a("s_and_b32 s13, s13, 7")
                a(f"s_mul_i32 s13, s13, {n8}")
                a("s_mov_b32 s14, 0")
                a.label(name)
                a("s_lshl_b32 s11, s13, 12")
                a("s_add_u32 s11, s11, s12")
                for k, sr in enumerate(srds):
                    a(f"buffer_load_dwordx4 v[{16+4*k}:{19+4*k}], v2, s[{sr}:{sr+3}], s11 offen")
                a("s_add_u32 s13, s13, 1")
                a(f"s_cmp_eq_u32 s13, {n}")
                a("s_cselect_b32 s13, 0, s13")
                a("s_add_u32 s14, s14, 1")
                a(f"s_cmp_lt_u32 s14, {n8 * count}")
                a(f"s_cbranch_scc1 {name}")
            sweep("L_h_p2", [56], 1792 * 896 // 4, 0, 1)
            ts(2)
    def h_pack():
        a("s_cmp_ge_u32 s60, 98")
        a("s_cbranch_scc1 L_h_nopack2")
        a("v_and_b32 v5, 31, v0")
        a("v_lshrrev_b32 v6, 5, v0")
        a("v_bfe_u32 v7, v0, 1, 3")
        a("v_xor_b32 v7, v7, v6")
        a("v_lshlrev_b32 v7, 4, v7")
        a("v_lshl_add_u32 v5, v5, 7, v7")
        a("v_add_u32 v5, s63, v5")
        a("v_lshlrev_b32 v6, 4, v0")
        a("s_mul_i32 s12, s61, 28")
        a("s_lshl_b32 s11, s62, 2")
        a("s_add_u32 s12, s12, s11")
        a("s_lshl_b32 s12, s12, 11")
        a(f"s_add_u32 s12, s12, {WS_CP:#x}")
        a(f"s_waitcnt vmcnt({13 if (cfg.hpf and not cfg.hord) else 0})")
        for ks in range(4):
            a(f"v_xor_b32 v7, {32*ks}, v5")
            for ct in range(2):
                d = 32 + 8 * ks + 4 * ct
                a(f"ds_read_b128 v[{d}:{d+3}], v7 offset:{4096*ct}")
        for ks in range(4):
            a(f"s_waitcnt lgkmcnt({6 - 2*ks})")
            a(f"s_add_u32 s11, s12, {2048*ks}")
            for ct in range(2):
                d = 32 + 8 * ks + 4 * ct
                a(f"buffer_store_dwordx4 v[{d}:{d+3}], v6, s[{SRD_WS}:{SRD_WS+3}], s11 offen offset:{1024*ct} sc1")
        a("s_waitcnt vmcnt(0)")
        a.label("L_h_nopack2")
        h_signal("b")
        ts(3)
        ts.x(3, 1)
    if cfg.hord: h_pack(); h_sweep()
    else: h_sweep(); h_pack()
    ts.dump(8, 9)
    a("s_endpgm")

def spin_check(a, name, load_text_list, cond_fn, sleep=1):
    lo, done = a.newlabel(name + "_spin"), a.newlabel(name + "_ok")
    a(f"s_mov_b32 s73, 0")
    a.label(lo)
    cond_fn()
    a(f"s_cbranch_scc1 {done}")
    a("s_add_u32 s73, s73, 1")
    a(f"s_cmp_ge_u32 s73, {SPIN_MAX}")
    a(f"s_cbranch_scc1 {done}")
    a(f"s_sleep {sleep}")
    for t in load_text_list: a(t)
    a("s_waitcnt vmcnt(0)")
    a(f"s_branch {lo}")
    a.label(done)
    a("s_nop 4")

def sspin(a, name, loads, cond_fn, sleep=1):
    lo, done = a.newlabel(name + "_spin"), a.newlabel(name + "_ok")
    a("s_mov_b32 s73, 0")
    a.label(lo)
    for t in loads: a(t)
    a("s_waitcnt lgkmcnt(0)")
    cond_fn()
    a(f"s_cbranch_scc1 {done}")
    a("s_add_u32 s73, s73, 1")
    a(f"s_cmp_lt_u32 s73, {SPIN_MAX}")
    if sleep: a(f"s_sleep {sleep}")
    a(f"s_cbranch_scc1 {lo}")
    a.label(done)

def flag_index(a, d, t, grp):
    a(f"s_mul_i32 s{t}, s{S_NS}, 37")
    a(f"s_lshr_b32 s{t}, s{t}, {8 if grp == 7 else 9}")
    a(f"s_mul_i32 s{t}, s{t}, {32 - grp}")
    a(f"s_add_u32 s{d}, s{t}, s{S_NS}")
    a(f"s_lshl_b32 s{d}, s{d}, 2")

def interleave(a, prim, fill, per):
    fill = list(fill)
    for p in prim:
        p()
        for _ in range(per):
            if fill: a(fill.pop(0))
    for f in fill: a(f)

def p2_rot(a, cfg, d_ffn, d_blk, d_flip):
    if not cfg.rot:
        for d in (d_ffn, d_blk, d_flip): a(f"s_mov_b32 s{d}, 0")
        return
    tab = {2: [0] * 7, 1: list(range(7)), 3: [0, 3, 0, 3, 0, 3, 0], 4: [0, 2, 5, 0, 2, 5, 0], 5: [0, 4, 2, 5, 0, 4, 2], 6: [0, 1, 0, 1, 0, 1, 0], 7: [0, 2, 0, 2, 0, 2, 0]}[cfg.rot]
    word = sum(v << (4 * k) for k, v in enumerate(tab))
    a(f"s_lshl_b32 s11, s{S_NT}, 2")
    a(f"s_lshr_b32 s13, {word:#x}, s11")
    a("s_and_b32 s13, s13, 15")
    a(f"s_and_b32 s11, s{S_SLOT}, 3")
    a("s_lshl_b32 s11, s11, 1")
    a("s_add_u32 s11, s11, s13")
    a("s_cmp_ge_u32 s11, 7")
    a("s_cselect_b32 s13, 7, 0")
    a(f"s_sub_u32 s{d_ffn}, s11, s13")
    for d in (d_blk, d_flip): a(f"s_mov_b32 s{d}, 0")

def slot(reg, n): return R[reg] + 2048 * n
SA = [slot(1, n) for n in range(6)]; SB = [slot(2, n) for n in range(6)]; SC = [slot(0, n) for n in range(6)]
WSLOT = {}
for n in range(6): WSLOT[n] = SA[n]; WSLOT[6 + n] = SB[n]
for n in range(4): WSLOT[12 + n] = SC[n]; WSLOT[16 + n] = SA[n]; WSLOT[20 + n] = SB[n]
WSLOT.update({24: SA[4], 25: SA[5], 26: SB[4], 27: SB[5]})
HTS = SC[4]
PH1, PH2, GA, FXA, SD = SC[0], SC[4], SB[0], SA[0], SC[0]

class Rec:
    def __init__(self): self.L = []
    def __call__(self, t): self.L.append(t)

def ssm_park(kc, K, KP, sQ):
    LR, LI, CR, CI, L16R, L16I, PWR, PWI, L64R, L64I, LWR, LWI, W0R = [KP + k for k in range(13)]
    vTW, vTR, vCB = KP + 16, KP + 17, KP + 18
    ssm_const_calc(kc, K, LR, LI, CR, CI)
    csq(kc, L16R, L16I, LR, LI, K)
    for _ in range(3): csq(kc, L16R, L16I, L16R, L16I, K)
    def powsel(dr, di, br, bi, bit, src):
        cmul(kc, K + 1, K + 2, dr, di, br, bi)
        kc(f"v_and_b32 v{K}, {bit}, v{src}")
        kc(f"v_cmp_ne_u32 vcc, 0, v{K}")
        kc(f"v_cndmask_b32 v{dr}, v{dr}, v{K+1}, vcc")
        kc(f"v_cndmask_b32 v{di}, v{di}, v{K+2}, vcc")
    kc(f"v_mov_b32 v{PWR}, v{CR}"); kc(f"v_mov_b32 v{PWI}, v{CI}")
    powsel(PWR, PWI, L16R, L16I, 32, 0)
    csq(kc, K + 14, K + 15, L16R, L16I, K)
    powsel(PWR, PWI, K + 14, K + 15, 16, 0)
    csq(kc, L64R, L64I, K + 14, K + 15, K)
    kc(f"v_mov_b32 v{K+10}, s{S_W4}")
    kc(f"v_mov_b32 v{LWR}, 1.0"); kc(f"v_mov_b32 v{LWI}, 0")
    powsel(LWR, LWI, L64R, L64I, 1, K + 10)
    csq(kc, K + 14, K + 15, L64R, L64I, K)
    powsel(LWR, LWI, K + 14, K + 15, 2, K + 10)
    csq(kc, K + 14, K + 15, K + 14, K + 15, K)
    kc(f"v_lshrrev_b32 v{K+10}, 4, v0")
    kc(f"v_sub_u32 v{K+10}, s{S_MT}, v{K+10}")
    kc(f"v_add_u32 v{K+11}, -5, v{K+10}")
    kc(f"v_add_u32 v{K+10}, -1, v{K+10}")
    kc(f"v_mov_b32 v{W0R}, 1.0"); kc(f"v_mov_b32 v{W0R+1}, 0")
    kc(f"v_mov_b32 v{W0R+2}, 1.0"); kc(f"v_mov_b32 v{W0R+3}, 0")
    for b in range(3):
        powsel(W0R, W0R + 1, K + 14, K + 15, 1 << b, K + 10)
        if b < 2: powsel(W0R + 2, W0R + 3, K + 14, K + 15, 1 << b, K + 11)
        if b < 2: csq(kc, K + 14, K + 15, K + 14, K + 15, K)
    kc(f"s_add_u32 s36, s{sQ}, {HTS}")
    kc(f"v_bfe_u32 v{K}, v0, 4, 1")
    kc(f"v_lshrrev_b32 v{K+1}, 5, v0")
    kc(f"v_lshl_add_u32 v{K+2}, v{K}, 1, v{K+1}")
    kc(f"v_and_b32 v{K+3}, 15, v0")
    kc(f"v_and_b32 v{vTW}, 6, v{K+3}")
    kc(f"v_lshlrev_b32 v{vTW}, 4, v{vTW}")
    kc(f"v_lshlrev_b32 v{K+4}, 5, v{K+2}")
    kc(f"v_xor_b32 v{vTW}, v{vTW}, v{K+4}")
    kc(f"v_lshl_add_u32 v{vTW}, v{K+3}, 7, v{vTW}")
    kc(f"v_add_u32 v{vTW}, s36, v{vTW}")
    kc(f"v_lshlrev_b32 v{vCB}, 2, v{K+3}")
    kc(f"v_add_u32 v{vCB}, {C_L + 512}, v{vCB}")
    kc(f"v_bfe_u32 v{K+4}, v0, 2, 2")
    kc(f"v_lshl_add_u32 v{K+5}, v{K+1}, 3, v{K+4}")
    kc(f"v_lshlrev_b32 v{vTR}, 7, v{K+5}")
    kc(f"v_lshrrev_b32 v{K+4}, 1, v{K+4}")
    kc(f"v_xor_b32 v{K+4}, v{K+4}, v0")
    kc(f"v_and_b32 v{K+4}, 1, v{K+4}")
    kc(f"v_lshl_add_u32 v{vTR}, v{K+4}, 5, v{vTR}")
    kc(f"v_lshl_add_u32 v{vTR}, v{K}, 4, v{vTR}")
    kc(f"v_bfe_u32 v{K+4}, v0, 1, 1")
    kc(f"v_lshl_add_u32 v{vTR}, v{K+4}, 3, v{vTR}")
    kc(f"v_add_u32 v{vTR}, s36, v{vTR}")
    kc(f"s_lshl_b32 s36, s{S_W4}, 9")
    kc(f"s_add_u32 s36, s36, {STATS_L}")
    kc(f"v_lshl_add_u32 v{KP+19}, v{K+2}, 7, s36")
    vStS = KP + 19
    vAg, vPr, vF = KP + 20, KP + 21, KP + 22
    kc(f"v_lshlrev_b32 v{vAg}, 3, v{K+3}")
    kc(f"v_lshrrev_b32 v{vPr}, 4, v0")
    kc(f"v_mul_u32_u24 v{vPr}, 3584, v{vPr}")
    kc(f"s_lshl_b32 s36, s{S_NS}, 7")
    kc(f"v_add3_u32 v{vPr}, v{vPr}, v{vAg}, s36")
    kc(f"v_add_u32 v{vAg}, {AGG_L}, v{vAg}")
    kc(f"s_lshl_b32 s36, s{S_MT}, 2")
    kc(f"s_add_u32 s36, s36, s{S_W4}")
    kc("s_lshl_b32 s36, s36, 10")
    flag_index(kc, 37, 38, 14)
    kc("s_add_u32 s36, s36, s37")
    kc(f"s_add_u32 s36, s36, {WS_FLAG + 512:#x}")
    kc(f"v_mov_b32 v{vF}, s36")

def gen_loader(a, cfg, ts):
    a.label("L_loader")
    a("s_setprio 3")
    vm = VM(a)
    vXe, vXo, vW, vB = 1, 2, 3, 4
    vFv, vP, vO, vPQ = 5, 6, 7, 8
    vWd, vCe, vCo, vCh = 9, 10, 11, 12
    vRf, vRh = 13, 14
    vA, vC = 24, 25
    vT = 15
    ACC, CA, RD = 27, 28, 44
    STG = 64
    CF = 144
    SACC = 80
    XRAW = CF + 64
    KP = XRAW + 8
    sGrp = [28, 29, 30, 31, 36, 37, 21]
    SP = ['', ' sc1'][cfg.spol]
    sMX, sMW, sMB, sMP = 72, 74, 75, 70
    sPerm, sSX, sSW = 68, 69, 15
    sRF = 14
    AP = ['', ' sc1', ' sc1 nt', ' sc0 sc1', ' sc0', ' nt'][cfg.apol]
    OP = ['', ' sc1', ' nt', ' sc1 nt'][cfg.opol]
    polx = " nt" if cfg.polx else ""
    polw = " nt" if cfg.polw else ""
    a(f"v_lshrrev_b32 v{vA}, 3, v0")
    a(f"v_and_b32 v{vC}, 7, v0")
    a(f"v_lshrrev_b32 v{vT+2}, 1, v{vA}")
    a(f"s_lshl_b32 s11, s{S_W4}, 4")
    a(f"v_add_u32 v{vT}, s11, v{vA}")
    a(f"v_mul_u32_u24 v{vW}, 3584, v{vT}")
    a(f"v_and_b32 v{vT+4}, 1, v{vT+2}")
    a(f"v_lshlrev_b32 v{vT+4}, 2, v{vT+4}")
    a(f"v_xor_b32 v{vT+4}, v{vC}, v{vT+4}")
    a(f"v_lshl_add_u32 v{vW}, v{vT+4}, 4, v{vW}")
    a(f"s_lshl_b32 s11, s{S_NS}, 7")
    a(f"v_add_u32 v{vW}, s11, v{vW}")
    a(f"s_lshl_b32 s11, s{S_MT}, 8")
    a(f"s_lshl_b32 s12, s{S_W4}, 6")
    a("s_add_u32 s11, s11, s12")
    a(f"v_lshrrev_b32 v{vT}, 2, v{vA}")
    a(f"v_and_b32 v{vT+1}, 3, v{vA}")
    a(f"v_lshl_add_u32 v{vT}, v{vT}, 4, v{vT+1}")
    a(f"v_add_u32 v{vT}, s11, v{vT}")
    a(f"v_mul_u32_u24 v{vXe}, 896, v{vT}")
    a(f"v_xor_b32 v{vT+3}, v{vC}, v{vT+2}")
    a(f"v_lshl_add_u32 v{vXe}, v{vT+3}, 4, v{vXe}")
    a(f"v_xor_b32 v{vXo}, 64, v{vXe}")
    a(f"s_and_b32 s12, s{S_W4}, 1")
    a(f"s_lshl_b32 s11, s{S_NS}, 4")
    a(f"s_lshl_b32 s13, s12, 3")
    a("s_add_u32 s11, s11, s13")
    a(f"v_add_u32 v{vT}, s11, v{vA}")
    a(f"v_mul_u32_u24 v{vB}, 896, v{vT}")
    a(f"v_lshl_add_u32 v{vB}, v{vT+3}, 4, v{vB}")
    a("s_lshl_b32 s13, s12, 6")
    a(f"v_xor_b32 v{vB}, s13, v{vB}")
    a(f"s_lshl_b32 s{sMX}, s{S_W4}, 13")
    a(f"s_lshl_b32 s{sMW}, s{S_W4}, 11")
    a(f"s_lshl_b32 s{sMB}, s{S_W4}, 10")
    a(f"s_mul_i32 s{sMP}, s{S_W4}, {Q}")
    perms = cfg.perms
    words = [sum(p[k] << (4 * k) for k in range(7)) for p in perms]
    ng = len(words)
    a(f"s_mov_b32 s{sPerm}, {words[0]:#x}")
    if ng > 1:
        if cfg.slab:
            a(f"s_add_u32 s11, s{S_SLOT}, s{S_XCD}")
        else:
            a(f"s_and_b32 s11, s{S_SLOT}, 3")
            a(f"s_add_u32 s11, s11, s{S_NT}")
        if ng == 3:
            a("s_mul_i32 s13, s11, 43")
            a("s_lshr_b32 s13, s13, 7")
            a("s_mul_i32 s13, s13, 3")
            a("s_sub_u32 s11, s11, s13")
        else:
            a(f"s_and_b32 s11, s11, {ng-1}")
        for g in range(1, ng):
            a(f"s_cmp_eq_u32 s11, {g}")
            a(f"s_cmov_b32 s{sPerm}, {words[g]:#x}")
    ts.x(1, 1)
    a("s_waitcnt lgkmcnt(0)")
    ts.x(1, 2)
    if cfg.tlb:
        a(f"v_mov_b32 v40, s{P_X}")
        a(f"v_mov_b32 v41, s{P_X+1}")
        for ln, p in enumerate([P_WG, P_WU, P_BRE, P_BIM, P_WD, P_CRE, P_CIM, P_WS][:cfg.tlb], 1):
            a(f"v_writelane_b32 v40, s{p}, {ln}")
            a(f"v_writelane_b32 v41, s{p+1}, {ln}")
        a(f"s_mov_b64 exec, {(1 << (cfg.tlb + 1)) - 1:#x}")
        a("global_load_dword v62, v[40:41], off")
        a("s_mov_b64 exec, -1")
    srd(a, SRD_A, P_WG, 448 * 3584)
    srd(a, SRD_X, P_X, 2048 * 896)
    srd(a, SRD_B, P_WU, 448 * 3584)
    a(f"s_cmp_ge_u32 s{S_W4}, 2")
    srd_sel(a, SRD_C, P_BIM, P_BRE, 448 * 896)

    thr = [None]
    def dma(vm, tag, voff, srdn, sbase, soff, m0base, m0off, pol=""):
        a(f"s_add_u32 m0, s{m0base}, {m0off}")
        a(f"s_add_u32 s11, s{sbase}, {soff}")
        if thr[0] is not None and len(vm.q) > thr[0]:
            a(f"s_waitcnt vmcnt({thr[0]})")
            vm.q = vm.q[-thr[0]:]
        vm.issue(tag, f"buffer_load_dwordx4 v{voff}, s[{srdn}:{srdn+3}], s11 offen{pol} lds")
    def issue_ops(s):
        r = R[s % 3]
        ops = []
        def pre():
            a(f"s_bfe_u32 s{sSX}, s{sPerm}, {(4 << 16) | (4 * s):#x}")
            a(f"s_mul_i32 s{sSW}, s{sSX}, {64*3584}")
            a(f"s_lshl_b32 s{sSX}, s{sSX}, 7")
        def mk(*args): return lambda: dma(vm, ('st', s), *args)
        L = []
        for i in range(2): L.append(mk(vW, SRD_A, sSW, i * 8 * 3584, sMW, r + OFF_WG + i * 1024, polw))
        for j in range(4): L.append(mk(vXo if j & 1 else vXe, SRD_X, sSX, (32 * (j >> 2) + 4 * (j & 3)) * 896, sMX, r + j * 1024, polx))
        for i in range(2): L.append(mk(vW, SRD_B, sSW, i * 8 * 3584, sMW, r + OFF_WU + i * 1024, polw))
        for j in range(4, 8): L.append(mk(vXo if j & 1 else vXe, SRD_X, sSX, (32 * (j >> 2) + 4 * (j & 3)) * 896, sMX, r + j * 1024, polx))
        L.append(mk(vB, SRD_C, sSX, 0, sMB, r + OFF_BB, polw))
        first = L[0]
        L[0] = lambda: (pre(), first())
        return L
    SRD_WD, SRD_CC, sBlk, sFlip, P_DSK2 = 32, 24, 16, 17, 38
    def w_ops(ps):
        L = []
        for p in ps:
            for n in range(2):
                def op(p=p, n=n):
                    if 12 <= p < 22:
                        d = STG + (p - 12) * 8 + 4 * n
                        a(f"s_add_u32 s11, s{sGrp[p//4]}, {((p % 4) * 16 + 8 * n) * 896}")
                        vm.issue(('w', p), f"buffer_load_dwordx4 v[{d}:{d+3}], v{vWd}, s[{SRD_WD}:{SRD_WD+3}], s11 offen")
                    else:
                        dma(vm, ('w', p), vWd, SRD_WD, sGrp[p//4], ((p % 4) * 16 + 8 * n) * 896, sMP, WSLOT[p] + n * 1024)
                L.append(op)
        return L
    sCB = [68, 69, 15]
    sCF, sCH = 16, 17
    def cfrag(p, lc): return CF + 8 * p + 4 * lc
    def c_ops(b):
        L = []
        for p in (range(4 * b, 4 * b + 4) if b < 3 else (12, 13)):
            for lc in range(2):
                def op(p=p, lc=lc):
                    d = cfrag(p, lc)
                    sb, so = (sCF, 2048 * p) if p < 12 else (sCH, 2048 * (p - 12))
                    if cfg.crot and p < 12: sb, so = sCB[p // 4], 2048 * (p % 4)
                    a(f"s_add_u32 s11, s{sb}, {so}")
                    vm.issue(('c', b), f"buffer_load_dwordx4 v[{d}:{d+3}], v{(vCe, vCo)[lc]}, s[{SRD_WS}:{SRD_WS+3}], s11 offen sc1")
                L.append(op)
        return L
    def w_write(ps):
        vm.wait(('w', ps[-1]))
        base = WSLOT[ps[0]]
        a(f"v_add_u32 v{vT+4}, {base}, v{vPQ}")
        for p in ps:
            for n in range(2):
                d = STG + (p - 12) * 8 + 4 * n
                a(f"ds_write_b128 v{vT+4}, v[{d}:{d+3}] offset:{WSLOT[p] - base + 1024*n}")
    def colsum_reads(s):
        r = R[s % 3]
        a(f"s_add_u32 s11, s{sMW}, {r + OFF_WG}")
        a(f"v_add_u32 v{vT}, s11, v{vP}")
        a(f"s_add_u32 s11, s{sMB}, {r + OFF_BB}")
        a(f"v_add_u32 v{vT+1}, s11, v{vP}")
        a(f"ds_read_b128 v[{RD}:{RD+3}], v{vT}")
        a(f"ds_read_b128 v[{RD+4}:{RD+7}], v{vT} offset:1024")
        a(f"ds_read_b128 v[{RD+8}:{RD+11}], v{vT} offset:8192")
        a(f"ds_read_b128 v[{RD+12}:{RD+15}], v{vT} offset:9216")
        a(f"ds_read_b128 v[{RD+16}:{RD+19}], v{vT+1}")
    def colsum_ops():
        L = ["s_waitcnt lgkmcnt(0)"]
        for n in range(4):
            for d in range(4):
                w = RD + 4 * n + d
                ac = CA + (n >> 1) * 8 + 2 * d
                L.append(f"v_lshlrev_b32 v{vT+2}, 16, v{w}")
                L.append(f"v_and_b32 v{vT+3}, s71, v{w}")
                L.append(f"v_add_f32 v{ac}, v{ac}, v{vT+2}")
                L.append(f"v_add_f32 v{ac+1}, v{ac+1}, v{vT+3}")
        for d in range(4):
            w = RD + 16 + d
            L.append(f"v_lshlrev_b32 v{vT+2}, 16, v{w}")
            L.append(f"v_and_b32 v{vT+3}, s71, v{w}")
            L.append(f"v_add_f32 v{vT+2}, v{vT+2}, v{vT+3}")
            L.append(f"v_add_f32 v{ACC}, v{ACC}, v{vT+2}")
        return L

    stage_ops = {}
    cdone = set()
    def tok_ops(toks):
        L = []
        for t in toks:
            if t[0] == 's':
                st = int(t[1])
                if st not in stage_ops: stage_ops[st] = issue_ops(st)
                lo, hi = (0, 13) if ':' not in t else map(int, t.split(':')[1].split('-'))
                L += stage_ops[st][lo:hi]
            elif t[0] == 'w': L += w_ops([int(t[1:])])
            elif t[0] == 'c':
                lo, hi = (0, 8) if ':' not in t else map(int, t.split(':')[1].split('-'))
                L += c_ops(int(t[1]))[lo:hi]
                cdone.add(int(t[1]))
            else: L.append(lambda t=t: special(t))
        return L
    def run_tokens(toks):
        for o in tok_ops(toks): o()
    def special(t):
        if True:
            if t == 'put':
                vm.wait('stats')
                a(f"s_lshl_b32 s11, s{S_W4}, 9")
                a(f"s_add_u32 s11, s11, {STATS_L}")
                a(f"v_lshl_add_u32 v{vT+4}, v0, 3, s11")
                a(f"ds_write_b64 v{vT+4}, v[20:21]")
                a(f"v_lshlrev_b32 v{vT+4}, 3, v0")
                a(f"v_add_u32 v{vT+4}, {ST2_L}, v{vT+4}")
                a(f"ds_write_b64 v{vT+4}, v[22:23]")
            elif t == 'e':
                a(f"s_add_u32 s12, s41, {16*896}")
                vm.issue('e', f"buffer_load_dwordx4 v[{XRAW}:{XRAW+3}], v20, s[{SRD_X}:{SRD_X+3}], s41 offen")
                vm.issue('e', f"buffer_load_dwordx4 v[{XRAW+4}:{XRAW+7}], v20, s[{SRD_X}:{SRD_X+3}], s12 offen")
                vm.issue('e', f"global_load_ushort v{KP+23}, v21, s[{P_DSK2}:{P_DSK2+1}]")
            elif t == 'm':
                a(f"v_lshlrev_b32 v{vP}, 4, v0")
                a("s_lshl_b32 s12, s2, 2")
                a(f"s_add_u32 s12, s12, s{S_W4}")
                a("s_lshl_b32 s12, s12, 10")
                a(f"s_add_u32 s12, s12, {192*3584}")
                vm.issue('m', f"buffer_load_dwordx4 v[140:143], v{vP}, s[{SRD_A}:{SRD_A+3}], s12 offen")
                vm.issue('m', f"buffer_load_dwordx4 v[140:143], v{vP}, s[{SRD_B}:{SRD_B+3}], s12 offen")
                a(f"s_and_b32 s12, s{S_W4}, 1")
                a("s_lshl_b32 s11, s2, 1")
                a("s_add_u32 s12, s12, s11")
                a("s_lshl_b32 s12, s12, 10")
                vm.issue('m', f"buffer_load_dwordx4 v[140:143], v{vP}, s[{SRD_C}:{SRD_C+3}], s12 offen")
            elif t == 'k':
                a("s_waitcnt lgkmcnt(0)")
            elif t == 'init':
                a(f"v_mov_b32 v26, 0")
                vm.issue('init', f"global_load_dword v5, v26, s[{P_DBG}:{P_DBG+1}] sc1")
            elif t == 'fetch':
                vm.wait('init')
                def cond():
                    a(f"v_readfirstlane_b32 s11, v5")
                    a(f"s_cmp_ge_u32 s11, {INIT_N}")
                spin_check(a, "L_init", [f"global_load_dword v5, v26, s[{P_DBG}:{P_DBG+1}] sc1"], cond, 8)
                if cfg.ts == 1 and cfg.tsset == 3: a(f"s_add_u32 s{TS0+18}, s73, 1")
                if cfg.crot:
                    a(f"s_and_b32 s11, s{S_SLOT}, 3")
                    a("s_lshl_b32 s11, s11, 1")
                    a("s_lshr_b32 s12, 0x924, s11")
                    for b in range(3):
                        a(f"s_bfe_u32 s11, s12, {(2 << 16) | (2 * b):#x}")
                        a("s_lshl_b32 s11, s11, 13")
                        a(f"s_add_u32 s{sCB[b]}, s11, s{sCF}")
                a(f"s_lshl_b32 s11, s{S_MT}, 8")
                a(f"s_lshl_b32 s12, s{S_W4}, 6")
                a("s_add_u32 s11, s11, s12")
                a(f"v_add_lshl_u32 v5, v0, s11, 3")
                a(f"s_lshl_b32 s12, s{S_M64}, 6")
                a(f"v_add_lshl_u32 v26, v0, s12, 3")
                a(f"s_mov_b32 s11, {WS_STATS:#x}")
                vm.issue('stats', f"buffer_load_dwordx2 v[20:21], v5, s[{SRD_WS}:{SRD_WS+3}], s11 offen sc1")
                vm.issue('stats', f"buffer_load_dwordx2 v[22:23], v26, s[{SRD_WS}:{SRD_WS+3}], s11 offen sc1")
            else: raise ValueError(t)
    win = cfg.win
    run_tokens(["s0"])
    ts(1)
    ts.x(1, 6)
    run_tokens(win.get(-1, []))
    a("s_setprio 0")
    a(f"s_and_b32 s12, s{S_W4}, 1")
    a(f"v_lshlrev_b32 v{vP}, 4, v0")
    a(f"v_add_u32 v{vPQ}, s{sMP}, v{vP}")
    a(f"s_mul_i32 s14, s{S_W4}, 448")
    a(f"v_add_u32 v{vT}, s14, v{vA}")
    a(f"v_mul_u32_u24 v{vWd}, 896, v{vT}")
    a(f"v_lshl_add_u32 v{vWd}, v{vT+4}, 4, v{vWd}")
    a(f"s_lshl_b32 s14, s{S_NT}, 7")
    a(f"v_add_u32 v{vWd}, s14, v{vWd}")
    a(f"v_and_b32 v{vT+1}, 3, v0")
    a("s_mov_b32 s71, 0xffff0000")
    for k in range(17): a(f"v_mov_b32 v{ACC+k}, 0")
    srd(a, SRD_WS, P_WS, WS_SIZE)
    a(f"s_mov_b64 s[{P_DSK2}:{P_DSK2+1}], s[{P_DSK}:{P_DSK+1}]")
    srd(a, SRD_WD, P_WD, 1792 * 896)
    p2_rot(a, cfg, sRF, sBlk, sFlip)
    a(f"s_lshl_b32 s11, s{S_M64}, 1")
    a("s_add_u32 s40, s11, s12")
    a("s_lshl_b32 s12, s40, 5")
    a(f"v_lshrrev_b32 v{vT}, 2, v0")
    a(f"v_add_u32 v{vT}, s12, v{vT}")
    a(f"v_mul_u32_u24 v{vT}, 896, v{vT}")
    a(f"v_lshl_add_u32 v20, v{vT+1}, 4, v{vT}")
    a(f"v_lshrrev_b32 v{vT+2}, 5, v0")
    a(f"v_lshl_add_u32 v{vT}, v{vT+2}, 4, s12")
    a(f"s_lshr_b32 s13, s{S_W4}, 1")
    a("s_lshl_b32 s12, s13, 5")
    a(f"s_lshl_b32 s11, s{S_NT}, 6")
    a("s_add_u32 s11, s11, s12")
    a("s_lshl_b32 s41, s11, 1")
    a(f"v_and_b32 v{vT+3}, 31, v0")
    a(f"v_add_u32 v{vT+1}, s11, v{vT+3}")
    a(f"v_mul_u32_u24 v{vT}, 448, v{vT}")
    a(f"v_add_lshl_u32 v{vO}, v{vT}, v{vT+1}, 2")
    a(f"v_lshlrev_b32 v21, 1, v{vT+1}")
    a("s_lshl_b32 s12, s13, 10")
    a(f"v_add_u32 v{vCe}, s12, v{vP}")
    a(f"v_xor_b32 v{vCo}, 1024, v{vCe}")
    a(f"s_lshl_b32 s11, s{S_NT}, 1")
    a("s_add_u32 s11, s11, s13")
    a(f"s_mul_i32 s11, s11, {28*2048}")
    a(f"s_add_u32 s11, s11, {WS_CP:#x}")
    a(f"s_and_b32 s12, s{S_W4}, 1")
    a(f"s_lshl_b32 s{sCF}, s12, 15")
    a(f"s_add_u32 s{sCF}, s{sCF}, s11")
    a(f"s_lshl_b32 s{sCH}, s12, 12")
    a(f"s_add_u32 s{sCH}, s{sCH}, s11")
    a(f"s_add_u32 s{sCH}, s{sCH}, {12*2048}")
    a(f"v_bfe_u32 v{vT}, v0, 4, 1")
    a(f"v_lshlrev_b32 v{vT+1}, 2, v{vT}")
    a(f"v_xor_b32 v{vC}, v{vC}, v{vT+1}")
    a(f"v_lshlrev_b32 v{vC}, 5, v{vC}")
    a(f"v_lshl_add_u32 v{vC}, v{vT}, 9, v{vC}")
    a(f"v_lshl_add_u32 v{vC}, v{vT+2}, 8, v{vC}")
    a(f"s_add_u32 s11, s{sMB}, {CP_L}")
    a(f"v_add_u32 v{vC}, s11, v{vC}")
    a(f"s_lshl_b32 s11, s{S_W4}, 5")
    a(f"s_add_u32 s11, s11, {C_L + 512}")
    a(f"v_lshl_add_u32 v{vA}, v{vA}, 2, s11")
    ts.x(1, 8)
    LR, LI, CR, CI, L16R, L16I, PWR, PWI, L64R, L64I, LWR, LWI, W0R = [KP + k for k in range(13)]
    vTW, vTR, vCB, vStS, vAg, vPr, vF = [KP + k for k in range(16, 23)]
    a(f"s_lshl_b32 s21, s{S_NS}, 7")
    a(f"s_mul_i32 s22, s{S_MT}, 3584")
    a("s_add_u32 s22, s22, s21")
    a(f"s_add_u32 s22, s22, {WS_AGG - AGG_L:#x}")
    a(f"s_mov_b32 s23, {WS_AGG:#x}")
    a(f"s_mov_b32 s20, {WS_AGG + 4*3584:#x}")
    a(f"s_lshl_b32 s18, s{S_M64}, 10")
    a(f"s_and_b32 s11, s{S_W4}, 1")
    a("s_lshl_b32 s11, s11, 7")
    a("s_add_u32 s18, s18, s11")
    a(f"s_add_u32 s18, s18, {WS_FLAG + 512:#x}")
    a(f"s_lshl_b32 s11, s{S_MT}, 2")
    a(f"s_add_u32 s11, s11, s{S_W4}")
    a(f"s_mul_i32 s19, s11, {2*RT_BYTES}")
    a(f"s_lshl_b32 s11, s{S_NS}, 10")
    a("s_add_u32 s19, s19, s11")
    a(f"s_add_u32 s19, s19, {56*1024}")
    for g in range(7):
        a(f"s_add_u32 s12, s{sRF}, {g}")
        a("s_cmp_ge_u32 s12, 7")
        a("s_cselect_b32 s13, 7, 0")
        a("s_sub_u32 s12, s12, s13")
        a(f"s_mul_i32 s{sGrp[g]}, s12, {64*896}")
    a(f"s_add_u32 s11, s{sMX}, {R[2]}")
    a(f"v_add_u32 v{vT+4}, s11, v{vP}")
    kparts = {}
    if cfg.wprio: a(f"s_setprio {cfg.wprio}")
    for s in range(7):
        vm.wait(('st', s))
        ts.x(2, 1 + s)
        a("s_barrier")
        ts.x(3, 1 + s)
        if s == 0: ts(2)
        if s == 0:
            for k in range(6): a(f"ds_read_b128 v[{KP+4*k}:{KP+4*k+3}], v{vT+4} offset:{1024*k}")
        if s == 6:
            QQ = 28
            for p in range(8): a(f"ds_read_b32 v{QQ+p}, v{vT+1} offset:{512*p}")
            a("s_waitcnt lgkmcnt(0)")
            for p in range(4): a(f"v_add_f32 v{QQ+p}, v{QQ+p}, v{QQ+4+p}")
            a(f"v_add_f32 v{QQ}, v{QQ}, v{QQ+2}")
            a(f"v_add_f32 v{QQ+1}, v{QQ+1}, v{QQ+3}")
            a(f"v_add_f32 v{QQ}, v{QQ}, v{QQ+1}")
            a(f"ds_write_b32 v{vT}, v{QQ}")
            npre = win[6].index("put") + 1 if "put" in win[6] else 2
            pre = tok_ops(win[6][:npre])
            for o in pre: o()
            a("s_waitcnt lgkmcnt(0)")
            a("s_barrier")
            a("s_setprio 0")
            run_tokens(win[6][npre:])
            continue
        segs = [[None, []]]
        for t in win.get(s, []):
            if t.startswith("cs"): segs.append([int(t[2:]), []])
            else: segs[-1][1].append(t)
        for cs, toks in segs:
            fl = []
            if cs is not None:
                vm.wait(('st', cs))
                colsum_reads(cs)
                fl = colsum_ops()
            if cs == 6:
                b = ACC
                for k in range(8): fl.append(f"v_permlane32_swap_b32 v{CA+k}, v{CA+8+k}")
                fl.append(f"v_add_f32_dpp v{b}, v{b}, v{b} quad_perm:[1,0,3,2] row_mask:0xf bank_mask:0xf")
                for k in range(8): fl.append(f"v_add_f32 v{CA+k}, v{CA+k}, v{CA+8+k}")
                fl.append(f"v_add_f32_dpp v{b}, v{b}, v{b} quad_perm:[2,3,0,1] row_mask:0xf bank_mask:0xf")
                for k in range(8): fl.append(f"v_add_f32_dpp v{CA+k}, v{CA+k}, v{CA+k} row_ror:8 row_mask:0xf bank_mask:0xf")
                fl.append(f"v_add_f32_dpp v{b}, v{b}, v{b} row_half_mirror row_mask:0xf bank_mask:0xf")
                fl.append(f"ds_write_b128 v{vC}, v[{CA}:{CA+3}]")
                fl.append(f"ds_write_b128 v{vC}, v[{CA+4}:{CA+7}] offset:16")
                fl.append(f"ds_write_b32 v{vA}, v{b}")
            ops = tok_ops(toks)
            per = max(1, -(-len(fl) // max(1, len(ops))))
            interleave(a, ops, fl, per)
        if s == 5:
            a(f"s_and_b32 s12, s{S_W4}, 1")
            a("s_lshl_b32 s12, s12, 8")
            a(f"v_lshl_add_u32 v{vT}, v0, 2, s12")
            a(f"v_add_u32 v{vT+1}, {CP_L}, v{vT}")
            a(f"v_add_u32 v{vT}, {C_L}, v{vT}")
            a("s_waitcnt lgkmcnt(0)")
            a("s_setprio 3")
    ts.x(2, 8)
    a("s_barrier")
    ts(3)
    ts.x(3, 8)
    a(f"v_add_u32 v{vT+2}, {SD}, v{vPQ}")
    vm.wait(('w', 11), "lgkmcnt(0)")
    a("s_barrier")
    X, Y, ST = 32, 48, CF
    HR, HI, T1, T2, CBR, CBI, G0, G1, QR, QI = 20, 21, 22, 23, 24, 25, 26, 28, 30, 31
    for k in range(8): a(f"ds_read_b128 v[{X+4*k}:{X+4*k+3}], v{vT+2} offset:{1024*k}")
    a(f"ds_read_b32 v{CBR}, v{vCB}")
    a(f"ds_read_b32 v{CBI}, v{vCB} offset:64")
    for k in range(8): a(f"ds_read_b128 v[{ST+4*k}:{ST+4*k+3}], v{vStS} offset:{16*k}")
    a(f"s_setprio {cfg.eprio}")
    a(f"v_lshrrev_b32 v1, 4, v0")
    a(f"v_sub_u32 v1, s{S_MT}, v1")
    a(f"v_cmp_le_i32 s[56:57], 1, v1")
    a(f"v_cmp_le_i32 s[58:59], 5, v1")
    a(f"v_lshlrev_b32 v5, 16, v{KP+23}")
    a(f"v_mov_b32 v3, v{vF}")
    vF = 3
    a("s_waitcnt lgkmcnt(10)")
    for r in range(16): a(f"v_permlane16_swap_b32 v{X+r}, v{Y+r}")
    a("s_waitcnt lgkmcnt(0)")
    side = {}
    for r in range(16):
        if r in side: side[r]()
        m, rs = ST + 2 * r, ST + 2 * r + 1
        a(f"v_fma_f32 v{X+r}, -v{m}, v{CBR}, v{X+r}")
        a(f"v_fma_f32 v{Y+r}, -v{m}, v{CBI}, v{Y+r}")
        a(f"v_mul_f32 v{X+r}, v{X+r}, v{rs}")
        a(f"v_mul_f32 v{Y+r}, v{Y+r}, v{rs}")
        if r >= 1:
            pr, pi = (X, Y) if r == 1 else (HR, HI)
            a(f"v_fma_f32 v{T1}, -v{LI}, v{pi}, v{X+r}")
            a(f"v_fma_f32 v{T2}, v{LI}, v{pr}, v{Y+r}")
            a(f"v_fma_f32 v{HR}, v{LR}, v{pr}, v{T1}")
            a(f"v_fma_f32 v{HI}, v{LR}, v{pi}, v{T2}")
    z = CF
    a(f"v_mov_b32 v{z}, v{HR}"); a(f"v_mov_b32 v{z+1}, v{HI}")
    csq(a, z + 8, z + 9, L16R, L16I, z + 10)
    a(f"v_permlane32_swap_b32 v{HR}, v{z}")
    a(f"v_permlane32_swap_b32 v{HI}, v{z+1}")
    a(f"v_fma_f32 v{z}, -v{L16I}, v{HI}, v{z}")
    a(f"v_fma_f32 v{z+1}, v{L16I}, v{HR}, v{z+1}")
    a(f"v_fmac_f32 v{z}, v{L16R}, v{HR}")
    a(f"v_fmac_f32 v{z+1}, v{L16R}, v{HI}")
    a(f"v_mov_b32 v{z+2}, v{z}"); a(f"v_mov_b32 v{z+3}, v{z+1}")
    a(f"s_lshl_b32 s11, s{S_W4}, 7")
    a(f"v_add_u32 v{z+5}, s11, v{vAg}")
    a(f"v_permlane16_swap_b32 v{z}, v{z+2}")
    a(f"v_permlane16_swap_b32 v{z+1}, v{z+3}")
    a(f"v_fma_f32 v{z+2}, -v{z+9}, v{z+1}, v{z+2}")
    a(f"v_fma_f32 v{z+3}, v{z+9}, v{z}, v{z+3}")
    a(f"v_fmac_f32 v{z+2}, v{z+8}, v{z}")
    a(f"v_fmac_f32 v{z+3}, v{z+8}, v{z+1}")
    a(f"ds_write_b64 v{z+5}, v[{z+2}:{z+3}]")
    a("s_waitcnt lgkmcnt(0)")
    ts.x(2, 9)
    a(f"s_setprio {cfg.lprio}")
    a("s_barrier")
    ts(4)
    E = CF + 16
    for i in range(4): a(f"ds_read_b64 v[{E+2+2*i}:{E+3+2*i}], v{vAg} offset:{128*i}")
    a(f"v_mov_b32 v{E}, 0")
    a(f"v_mov_b32 v{E+1}, 0")
    a(f"v_and_b32 v{z+4}, 16, v0")
    a(f"v_cmp_ne_u32 s[12:13], 0, v{z+4}")
    for i in range(1, 4):
        e, p = E + 2 + 2 * i, E + 2 * i
        a(f"s_waitcnt lgkmcnt({3 - i})")
        a(f"v_fma_f32 v{e}, -v{L64I}, v{p+1}, v{e}")
        a(f"v_fma_f32 v{e+1}, v{L64I}, v{p}, v{e+1}")
        a(f"v_fmac_f32 v{e}, v{L64R}, v{p}")
        a(f"v_fmac_f32 v{e+1}, v{L64R}, v{p+1}")
    a(f"s_cmp_lg_u32 s{S_W4}, 0")
    a("s_cbranch_scc1 L_l_nopub")
    e = E + 8
    a(f"v_cmp_eq_u32 vcc, -1, v{e}")
    a(f"v_mov_b32 v{T1}, 0x7fc00000")
    a(f"v_cndmask_b32 v{e}, v{e}, v{T1}, vcc")
    a("s_mov_b64 exec, 0xffff")
    a(f"buffer_store_dwordx2 v[{e}:{e+1}], v{vAg}, s[{SRD_WS}:{SRD_WS+3}], s22 offen sc1")
    a("s_mov_b64 exec, -1")
    ts(5)
    a.label("L_l_nopub")
    a(f"v_cmp_lt_u32 vcc, 31, v0")
    a(f"v_cndmask_b32 v{z}, 0, v{z}, s[12:13]")
    a(f"v_cndmask_b32 v{z+1}, 0, v{z+1}, s[12:13]")
    a(f"v_fma_f32 v{HR}, -v{L16I}, v{z+1}, v{HR}")
    a(f"v_fma_f32 v{HI}, v{L16I}, v{z}, v{HI}")
    a(f"v_fmac_f32 v{HR}, v{L16R}, v{z}")
    a(f"v_fmac_f32 v{HI}, v{L16R}, v{z+1}")
    a(f"v_cndmask_b32 v{z}, v{z}, v{HR}, vcc")
    a(f"v_cndmask_b32 v{z+1}, v{z+1}, v{HI}, vcc")
    cmul(a, HR, HI, z, z + 1, CR, CI)
    a(f"s_bitcmp1_b32 s{S_W4}, 0")
    a("s_cselect_b64 vcc, -1, 0")
    a(f"v_cndmask_b32 v{QR}, v{E}, v{E+2}, vcc")
    a(f"v_cndmask_b32 v{QI}, v{E+1}, v{E+3}, vcc")
    a(f"v_cndmask_b32 v{T1}, v{E+4}, v{E+6}, vcc")
    a(f"v_cndmask_b32 v{T2}, v{E+5}, v{E+7}, vcc")
    a(f"s_bitcmp1_b32 s{S_W4}, 1")
    a("s_cselect_b64 vcc, -1, 0")
    a(f"v_cndmask_b32 v{QR}, v{QR}, v{T1}, vcc")
    a(f"v_cndmask_b32 v{QI}, v{QI}, v{T2}, vcc")
    ts.x(2, 10)
    thr[0] = cfg.thr
    lds = [f"buffer_load_dwordx2 v[{G0}:{G0+1}], v{vPr}, s[{SRD_WS}:{SRD_WS+3}], s23 offen sc1",
           f"buffer_load_dwordx2 v[{G1}:{G1+1}], v{vPr}, s[{SRD_WS}:{SRD_WS+3}], s20 offen sc1"]
    up = Rec()
    for r in range(16):
        up(f"v_mul_f32 v{T1}, v{CI}, v{Y+r}")
        up(f"v_mul_f32 v{T2}, v{CI}, v{X+r}")
        up(f"v_fma_f32 v{X+r}, v{CR}, v{X+r}, -v{T1}")
        up(f"v_fma_f32 v{Y+r}, v{CR}, v{Y+r}, v{T2}")
    vRd, vOne = 4, 2
    a(f"s_lshl_b32 s11, s{S_W4}, 2")
    a(f"s_add_u32 s11, s11, {CNT_L + 16}")
    a(f"v_mov_b32 v{vRd}, s11")
    a(f"v_mov_b32 v{vOne}, 1")
    thr[0] = None
    co = w_ops(range(22, 28)) + (c_ops(0) if cfg.c0early else [])
    interleave(a, co[:cfg.c1], up.L, 4)
    if cfg.agpos == 0:
        for t in lds: vm.issue('ag', t)
    w_write([12, 13, 14, 15])
    a(f"ds_write_b32 v{vRd}, v{vOne}")
    XV, STT, DS = 64, 80, 5
    TT = SACC + 32
    vHW = 1
    a(f"v_add_u32 v{vHW}, {HTS}, v{vPQ}")
    a(f"ds_write_b128 v{vHW}, v[{XRAW}:{XRAW+3}]")
    a(f"ds_write_b128 v{vHW}, v[{XRAW+4}:{XRAW+7}] offset:1024")
    a(f"v_lshrrev_b32 v{vT+3}, 5, v0")
    a(f"v_lshlrev_b32 v{vT+2}, 10, v{vT+3}")
    a(f"v_and_b32 v{vT}, 31, v0")
    a(f"v_lshl_add_u32 v{vT+2}, v{vT}, 1, v{vT+2}")
    a(f"s_add_u32 s11, s{sMP}, {HTS}")
    a(f"v_add_u32 v{vT+2}, s11, v{vT+2}")
    for r in range(16): a(f"ds_read_u16 v{XV+r}, v{vT+2} offset:{64*r}")
    if cfg.agpos == 1:
        for t in lds: vm.issue('ag', t)
    w_write([16, 17])
    def wrest():
        w_write([18, 19])
        w_write([20, 21])
        a(f"v_mov_b32 v{T1}, 2")
        a(f"ds_write_b32 v{vRd}, v{T1}")
    if not cfg.wl: wrest()
    co = co[cfg.c1:]
    ts(8)
    vm.wait('ag')
    def cond():
        a(f"v_cmp_eq_u32 vcc, -1, v{G0}")
        a("s_and_b64 s[48:49], vcc, s[56:57]")
        a(f"v_cmp_eq_u32 vcc, -1, v{G1}")
        a("s_and_b64 s[50:51], vcc, s[58:59]")
        a("s_or_b64 s[48:49], s[48:49], s[50:51]")
        a("s_cmp_eq_u64 s[48:49], 0")
    spin_check(a, "L_agg", lds, cond, 2)
    ts(6)
    SR, SI = CBR, CBI
    cmul(a, SR, SI, G0, G0 + 1, W0R, W0R + 1)
    cmul(a, T1, T2, G1, G1 + 1, W0R + 2, W0R + 3)
    a(f"v_cndmask_b32 v{SR}, 0, v{SR}, s[56:57]")
    a(f"v_cndmask_b32 v{SI}, 0, v{SI}, s[56:57]")
    a(f"v_cndmask_b32 v{T1}, 0, v{T1}, s[58:59]")
    a(f"v_cndmask_b32 v{T2}, 0, v{T2}, s[58:59]")
    a(f"v_add_f32 v{SR}, v{SR}, v{T1}")
    a(f"v_add_f32 v{SI}, v{SI}, v{T2}")
    for sw in ("v_permlane32_swap_b32", "v_permlane16_swap_b32"):
        a(f"v_mov_b32 v{T1}, v{SR}")
        a(f"v_mov_b32 v{T2}, v{SI}")
        a(f"{sw} v{SR}, v{T1}")
        a(f"{sw} v{SI}, v{T2}")
        a(f"v_add_f32 v{SR}, v{SR}, v{T1}")
        a(f"v_add_f32 v{SI}, v{SI}, v{T2}")
    a(f"v_fmac_f32 v{QR}, v{LWR}, v{SR}")
    a(f"v_fmac_f32 v{QI}, v{LWR}, v{SI}")
    a(f"v_fma_f32 v{QR}, -v{LWI}, v{SI}, v{QR}")
    a(f"v_fmac_f32 v{QI}, v{LWI}, v{SR}")
    a(f"v_fmac_f32 v{HR}, v{PWR}, v{QR}")
    a(f"v_fmac_f32 v{HI}, v{PWR}, v{QI}")
    a(f"v_fma_f32 v{HR}, -v{PWI}, v{QI}, v{HR}")
    a(f"v_fmac_f32 v{HI}, v{PWI}, v{QR}")
    pr, pi = HR, HI
    PK, HF = 96, 80
    rest = co[:cfg.c2]
    for r in range(16):
        if rest: rest.pop(0)()
        a(f"v_fma_f32 v{X+r}, -v{LI}, v{pi}, v{X+r}")
        a(f"v_fma_f32 v{Y+r}, v{LI}, v{pr}, v{Y+r}")
        a(f"v_fmac_f32 v{X+r}, v{LR}, v{pr}")
        a(f"v_fmac_f32 v{Y+r}, v{LR}, v{pi}")
        pr, pi = X + r, Y + r
    for k in range(8):
        a(f"v_cvt_pk_bf16_f32 v{PK+k}, v{X+2*k}, v{X+2*k+1}")
    a(f"ds_write_b128 v{vTW}, v[{PK}:{PK+3}]")
    a(f"ds_write_b128 v{vTW}, v[{PK+4}:{PK+7}] offset:16")
    for k in range(8):
        a(f"v_cvt_pk_bf16_f32 v{PK+8+k}, -v{Y+2*k}, -v{Y+2*k+1}")
    a(f"ds_write_b128 v{vTW}, v[{PK+8}:{PK+11}] offset:2048")
    a(f"ds_write_b128 v{vTW}, v[{PK+12}:{PK+15}] offset:2064")
    for q in range(2):
        for part in range(2):
            for j in range(2):
                d = HF + 8 * q + 4 * part + 2 * j
                a(f"ds_read_b64_tr_b16 v[{d}:{d+1}], v{vTR} offset:{(part*16 + 4*j)*128 + 64*(q ^ j)}")
    assert not rest
    a("s_waitcnt lgkmcnt(0)")
    for q in range(2):
        for part in range(2):
            d = HF + 8 * q + 4 * part
            a(f"s_add_u32 s11, s19, {q*RT_BYTES + part*HALF_BYTES}")
            vm.issue('hs', f"buffer_store_dwordx4 v[{d}:{d+3}], v{vP}, s[{SRD_WS}:{SRD_WS+3}], s11 offen{SP}")
    if cfg.wl: wrest()
    def flag2():
        vm.wait('hs')
        a("s_mov_b64 exec, 1")
        vm.issue('f', f"buffer_store_dword v{vOne}, v{vF}, s[{SRD_WS}:{SRD_WS+3}], 0 offen sc1")
        a("s_mov_b64 exec, -1")
        ts(7)
    if cfg.f2b == 0: flag2()
    for o in co[cfg.c2:] + (c_ops(2) if not cfg.clate else []): o()
    if cfg.f2b == 1: flag2()
    a(f"s_and_b32 s11, s{S_W4}, 1")
    a("s_lshl_b32 s11, s11, 8")
    a(f"s_add_u32 s11, s11, {ST2_L}")
    a(f"v_lshl_add_u32 v{vT+3}, v{vT+3}, 7, s11")
    STT = 32
    for k in range(8): a(f"ds_read_b128 v[{STT+4*k}:{STT+4*k+3}], v{vT+3} offset:{16*k}")
    for r in range(16): a(f"v_lshlrev_b32 v{XV+r}, 16, v{XV+r}")
    a("s_waitcnt lgkmcnt(0)")
    a("s_setprio 0")
    def rnd_pair(r0, r1):
        a(f"v_cvt_pk_bf16_f32 v{r1}, v{r0}, v{r1}"); a(f"v_lshlrev_b32 v{r0}, 16, v{r1}"); a(f"v_and_b32 v{r1}, s71, v{r1}")
    for r in range(16): a(f"v_sub_f32 v{TT+r}, v{XV+r}, v{STT+2*r}")
    for k in range(8): rnd_pair(TT + 2 * k, TT + 2 * k + 1)
    a(f"v_mov_b32 v{T2}, 3")
    vm.wait(('w', 27))
    a(f"ds_write_b32 v{vRd}, v{T2}")
    for r in range(16): a(f"v_mul_f32 v{TT+r}, v{TT+r}, v{STT+2*r+1}")
    for k in range(8): rnd_pair(TT + 2 * k, TT + 2 * k + 1)
    for r in range(16): a(f"v_mul_f32 v{TT+r}, v{TT+r}, v{DS}")
    for k in range(8): rnd_pair(TT + 2 * k, TT + 2 * k + 1)
    def poll(name, off):
        sspin(a, name, [f"s_load_dwordx16 s[20:35], s[{P_WS}:{P_WS+1}], s18 glc"], pcond, cfg.psleep)
    if True:
        def pcond():
            for k in range(0, 12, 4): a(f"s_and_b64 s[{20+k}:{21+k}], s[{20+k}:{21+k}], s[{22+k}:{23+k}]")
            a("s_and_b64 s[20:21], s[20:21], s[24:25]")
            a("s_and_b64 s[28:29], s[28:29], s[32:33]")
            a("s_and_b64 s[20:21], s[20:21], s[28:29]")
            a("s_and_b32 s20, s20, s21")
            a("s_cmp_eq_u32 s20, 1")
    a(f"s_mul_i32 s57, s40, {RT_BYTES}")
    a("s_xor_b32 s11, s40, 1")
    a(f"s_mul_i32 s56, s11, {RT_BYTES}")
    a(f"s_lshr_b32 s11, s{S_W4}, 1")
    a(f"s_mul_i32 s11, s11, {HALF_BYTES}")
    a(f"s_add_u32 s11, s11, {56*1024}")
    a("s_add_u32 s56, s56, s11")
    a("s_add_u32 s57, s57, s11")
    a(f"s_and_b32 s12, s{S_W4}, 1")
    a("s_lshl_b32 s13, s12, 14")
    for b in range(3):
        if cfg.crot:
            a(f"s_sub_u32 s11, s{sCB[b]}, s{sCF}")
            a("s_lshr_b32 s11, s11, 1")
            a(f"s_add_u32 s{52+b}, s13, s11")
        else: a(f"s_add_u32 s{52+b}, s13, {b*4096}")
    a("s_lshl_b32 s12, s12, 11")
    a(f"s_add_u32 s55, s12, {12*1024}")
    srd(a, 60, P_OUT, 2048 * 1792)
    vW1, vW2, vCn, vCv = 1, 2, 9, 4
    vR = [3, 12, 13, 14]
    a(f"v_add_u32 v{vW1}, {PH1}, v{vPQ}")
    a(f"v_add_u32 v{vW2}, {PH2}, v{vPQ}")
    a(f"v_mov_b32 v{vCn}, {CNT_L}")
    for (reg, xr, base) in ((vR[0], 1, PH1), (vR[1], 3, PH1 + 4096), (vR[2], 2, PH2)):
        a(f"s_xor_b32 s11, s{S_W4}, {xr}")
        a(f"s_mul_i32 s11, s11, {Q}")
        a(f"s_add_u32 s11, s11, {base}")
        a(f"v_add_u32 v{reg}, s11, v{vP}")
    a(f"v_add_u32 v{vR[3]}, {GA}, v{vPQ}")
    ts.x(2, 11)
    ts.x(7, 11)
    AR = list(range(16, 64, 4))
    NA = len(AR)
    PO = [4, 5, 6, 7, 12, 13, 0, 1, 2, 3, 8, 9, 10, 11]
    def aload(n):
        lr, p = n // 14, PO[n % 14]
        if p % 4 == 0: a(f"s_add_u32 s58, s{56+lr}, s{52 + p//4}")
        d = AR[n % NA]
        vm.issue(('a', n), f"buffer_load_dwordx4 v[{d}:{d+3}], v{vP}, s[{SRD_WS}:{SRD_WS+3}], s58 offen offset:{(p%4)*1024}{AP}")
    def cnt_wait(name, off):
        a("s_mov_b32 s73, 0")
        a.label(name)
        a("s_waitcnt lgkmcnt(0)")
        a(f"v_readfirstlane_b32 s11, v{vCv}")
        a("s_cmp_ge_u32 s11, 4")
        a(f"s_cbranch_scc1 {name}ok")
        a("s_add_u32 s73, s73, 1")
        a(f"s_cmp_ge_u32 s73, {SPIN_MAX}")
        a(f"s_cbranch_scc1 {name}ok")
        a("s_sleep 1")
        a(f"ds_read_b32 v{vCv}, v{vCn} offset:{off}")
        a(f"s_branch {name}")
        a.label(name + "ok")
        a("s_nop 7")
    assert cfg.clate == 2 and cdone == {1, 3}
    if cfg.gate == 0: poll("L_ps", 128)
    if cfg.gate < 2:
        a(f"ds_read_b32 v{vCv}, v{vCn} offset:4")
        cnt_wait("L_l_c0", 4)
    if cfg.sprio: a(f"s_setprio {cfg.sprio}")
    cc = c_ops(0) + c_ops(2)
    for o in cc[:cfg.c0n]: o()
    if cfg.gate != 0: poll("L_ps", 128)
    ts(9)
    ts.x(7, 1)
    for n in range(6): aload(n)
    for o in cc[cfg.c0n:8]: o()
    for n in range(6, 10): aload(n)
    for o in cc[max(8, cfg.c0n):]: o()
    for n in range(10, NA): aload(n)
    a("s_setprio 0")
    ts.x(7, 2)
    for n in range(28):
        lr, p = n // 14, PO[n % 14]
        vm.wait(('a', n))
        assert ('c', min(p // 4, 3)) not in vm.q
        if n in (0, 7, 14, 21): ts.x(7, 3 + n // 7)
        d = AR[n % NA]
        for lc in (1, 0):
            acc = SACC + 32 * lr + 16 * lc
            c = "0" if (n % 14 == 0 and not (lr == 1 and lc == 0)) else f"v[{acc}:{acc+15}]"
            f = cfrag(p, lc)
            a(f"v_mfma_f32_32x32x16_bf16 v[{acc}:{acc+15}], v[{d}:{d+3}], v[{f}:{f+3}], {c}")
        if n + NA < 28: aload(n + NA)
        if cfg.gate == 2 and n == 14: a(f"ds_read_b32 v{vCv}, v{vCn} offset:4")
        if cfg.gate == 2 and n == 15: cnt_wait("L_l_c0", 4)
        if 16 <= n < 24:
            k = n - 16
            a(f"ds_write_b128 v{vW1}, v[{SACC+4*k}:{SACC+4*k+3}] offset:{1024*k}")
    ts(10)
    ts.x(7, 7)
    ts.x(7, 8)
    for k in range(4):
        a(f"ds_write_b128 v{vW2}, v[{SACC+48+4*k}:{SACC+48+4*k+3}] offset:{1024*k}")
    a("s_waitcnt lgkmcnt(0)")
    ts.x(7, 9)
    a("s_barrier")
    ts(11)
    ts.x(7, 10)
    RX = CF
    for k in range(4):
        for w in range(4):
            a(f"ds_read_b128 v[{RX+16*w+4*k}:{RX+16*w+4*k+3}], v{vR[w]} offset:{1024*k}")
    for k in range(4):
        a(f"s_waitcnt lgkmcnt({12 - 4*k})")
        for r in range(4 * k, 4 * k + 4):
            a(f"v_add_f32 v{TT+r}, v{TT+r}, v{RX+r}")
            a(f"v_add_f32 v{RX+16+r}, v{RX+16+r}, v{RX+32+r}")
        for r in range(4 * k, 4 * k + 4):
            a(f"v_add_f32 v{TT+r}, v{TT+r}, v{RX+16+r}")
        for r in range(4 * k, 4 * k + 4):
            a(f"v_fma_f32 v{XV+r}, v{TT+r}, v{RX+48+r}, v{XV+r}")
            if r % 2 == 0: a(f"s_mov_b32 s11, {r*1792}")
            a(f"buffer_store_dword v{XV+r}, v{vO}, s[60:63], s11 offen offset:{(r%2)*1792}{OP}")
    if cfg.ts:
        a("s_waitcnt vmcnt(0)")
        ts(12)
    if cfg.padto:
        a.label("L_pad")
        a("s_memrealtime s[98:99]")
        a("s_waitcnt lgkmcnt(0)")
        a("s_sub_u32 s98, s98, s100")
        a(f"s_cmp_lt_u32 s98, {cfg.padto}")
        a("s_cbranch_scc1 L_pad")
    ts.dump(16, 17, 1)
    a("s_endpgm")

def gen_consumer(a, cfg, ts):
    a.label("L_consumer")
    SP = ["", " sc1"][cfg.spol]
    AP = ['', ' sc1', ' sc1 nt', ' sc0 sc1', ' sc0', ' nt'][cfg.apol]
    vm = VM(a)
    XA = [1, 2, 3, 4]; BA = [5, 6, 7, 8]; WA = [9, 10]
    vL16, vStF, vCL, vF, vFl, vSo, vCn, vRd, vWB, vPQ, vOne, MM = 11, 12, 13, 14, 15, 16, 17, 18, 19, 20, 21, 22
    FS = [40, 68]
    ACC = 96
    def G(ft, q): return ACC + 16 * (2 * ft + q)
    def U(ft, q): return ACC + 64 + 16 * (2 * ft + q)
    def S(q): return ACC + 128 + 16 * q
    vI, vH, t0, t1, t2 = 24, 25, 26, 27, 28
    a(f"v_and_b32 v{vI}, 31, v0")
    a(f"v_lshrrev_b32 v{vH}, 5, v0")
    a(f"v_bfe_u32 v{t0}, v0, 1, 3")
    a(f"v_xor_b32 v{t0}, v{t0}, v{vH}")
    a(f"v_lshlrev_b32 v{t0}, 4, v{t0}")
    a(f"v_lshl_add_u32 v{t0}, v{vI}, 7, v{t0}")
    a(f"s_lshl_b32 s11, s{S_W4}, 13")
    for ks in range(4):
        a(f"v_xor_b32 v{t1}, {32*ks}, v{t0}")
        a(f"v_add_u32 v{XA[ks]}, s11, v{t1}")
        a(f"v_add_u32 v{BA[ks]}, {OFF_BB}, v{t1}")
    a(f"v_bfe_u32 v{t0}, v0, 2, 2")
    a(f"v_lshlrev_b32 v{t1}, 7, v{t0}")
    a(f"v_lshrrev_b32 v{t0}, 1, v{t0}")
    a(f"v_lshl_add_u32 v{t1}, v{t0}, 6, v{t1}")
    a(f"v_bfe_u32 v{t0}, v0, 4, 1")
    a(f"v_lshl_add_u32 v{t1}, v{t0}, 5, v{t1}")
    a(f"v_and_b32 v{t2}, 3, v0")
    a(f"v_lshl_add_u32 v{t1}, v{t2}, 3, v{t1}")
    a(f"v_lshl_add_u32 v{WA[0]}, v{vH}, 10, v{t1}")
    a(f"v_add_u32 v{WA[0]}, {OFF_WG}, v{WA[0]}")
    a(f"v_xor_b32 v{WA[1]}, 64, v{WA[0]}")
    a(f"s_mul_i32 s62, s{S_W4}, {Q}")
    a(f"s_lshr_b32 s59, s{S_W4}, 1")
    a(f"s_and_b32 s63, s{S_W4}, 1")
    a("s_lshl_b32 s11, s59, 6")
    a(f"v_lshl_add_u32 v{vWB}, v{vH}, 9, v{t1}")
    a(f"v_xor_b32 v{vWB}, s11, v{vWB}")
    a(f"v_add_u32 v{vWB}, s62, v{vWB}")
    a("s_waitcnt lgkmcnt(0)")
    a(f"s_lshl_b32 s11, s{S_NS}, 5")
    a(f"s_load_dwordx8 s[32:39], s[{P_LRE}:{P_LRE+1}], s11")
    a(f"s_load_dwordx8 s[64:71], s[{P_LDT}:{P_LDT+1}], s11")
    a(f"s_load_dwordx8 s[24:31], s[{P_LIM}:{P_LIM+1}], s11")
    for k in range(4 if cfg.zpeel else 160): a(f"v_mov_b32 v{ACC+k}, 0")
    a(f"v_mov_b32 v{vCn}, {CNT_L}")
    a(f"ds_write_b128 v{vCn}, v[{ACC}:{ACC+3}]")
    a(f"ds_write_b128 v{vCn}, v[{ACC}:{ACC+3}] offset:16")
    a(f"v_bfe_u32 v{t0}, v0, 2, 1")
    a(f"v_lshl_add_u32 v{t0}, v{t0}, 4, v{t2}")
    a(f"v_bfe_u32 v{t1}, v0, 3, 2")
    a(f"v_lshl_add_u32 v{t0}, v{t1}, 2, v{t0}")
    a(f"s_lshl_b32 s11, s{S_W4}, 9")
    a(f"s_add_u32 s11, s11, {STATS_L}")
    a(f"v_lshl_add_u32 v{vStF}, v{t0}, 3, s11")
    a(f"v_lshlrev_b32 v{vL16}, 4, v0")
    a(f"v_add_u32 v{vPQ}, s62, v{vL16}")
    a(f"v_lshlrev_b32 v{vCL}, 4, v{vH}")
    a(f"v_add_u32 v{vCL}, {C_L}, v{vCL}")
    a(f"v_mov_b32 v{vOne}, 1")
    a(f"s_lshl_b32 s11, s{S_W4}, 2")
    a(f"s_add_u32 s11, s11, {CNT_L + 16}")
    a(f"v_mov_b32 v{vRd}, s11")
    a("s_lshl_b32 s11, s63, 8")
    a(f"s_add_u32 s11, s11, {ST2_L}")
    a(f"v_lshl_add_u32 v{vSo}, v{vH}, 7, s11")
    a(f"s_lshl_b32 s13, s{S_MT}, 2")
    a(f"s_add_u32 s13, s13, s{S_W4}")
    a(f"s_mul_i32 s56, s13, {2*RT_BYTES}")
    a(f"s_cmp_ge_u32 s{S_NS}, 14")
    a(f"s_cselect_b32 s11, {HALF_BYTES - 56*1024}, 0")
    a(f"s_lshl_b32 s12, s{S_NS}, 12")
    a("s_add_u32 s11, s11, s12")
    a("s_add_u32 s56, s56, s11")
    a(f"s_add_u32 s57, s56, {RT_BYTES}")
    a("s_lshl_b32 s11, s13, 10")
    flag_index(a, 12, 14, 7)
    a("s_add_u32 s11, s11, s12")
    a(f"s_add_u32 s11, s11, {WS_FLAG:#x}")
    a(f"v_mov_b32 v{vF}, s11")
    a(f"s_lshl_b32 s55, s{S_M64}, 10")
    a(f"s_add_u32 s55, s55, {WS_FLAG:#x}")
    a(f"s_lshl_b32 s11, s{S_W4}, 7")
    a("s_add_u32 s55, s55, s11")
    a(f"s_mul_i32 s12, s59, {HALF_BYTES}")
    a(f"s_mul_i32 s13, s63, {28*1024}")
    a("s_add_u32 s12, s12, s13")
    a(f"s_lshl_b32 s11, s{S_M64}, 1")
    a("s_add_u32 s11, s11, s63")
    a(f"s_mul_i32 s52, s11, {RT_BYTES}")
    a("s_add_u32 s52, s52, s12")
    a("s_xor_b32 s11, s11, 1")
    a(f"s_mul_i32 s51, s11, {RT_BYTES}")
    a("s_add_u32 s51, s51, s12")
    p2_rot(a, cfg, 60, 61, 58)
    a("s_mov_b32 s12, 0x00030003")
    a("s_mov_b32 s13, 0x00030003")
    a("s_waitcnt lgkmcnt(0)")
    K, KP = 40, 64
    for k in range(8):
        a(f"s_lshl_b64 exec, s[12:13], {2*k}")
        for m, sb in enumerate((32, 24, 64)): a(f"v_mov_b32 v{K+m}, s{sb+k}")
    a("s_mov_b64 exec, -1")
    a(f"v_and_b32 v{K+3}, 1, v0")
    a(f"v_lshlrev_b32 v{K+3}, 4, v{K+3}")
    for m in range(3): a(f"v_lshrrev_b32 v{K+m}, v{K+3}, v{K+m}")
    srd(a, SRD_WS, P_WS, WS_SIZE)
    ssm_park(a, K, KP, 62)
    a(f"v_mov_b32 v{KP+23}, 0")
    a(f"s_lshl_b32 s11, s{S_W4}, 13")
    a(f"s_add_u32 s11, s11, {R[2]}")
    a(f"v_add_u32 v{K}, s11, v{vL16}")
    for k in range(6): a(f"ds_write_b128 v{K}, v[{KP+4*k}:{KP+4*k+3}] offset:{1024*k}")
    a("s_waitcnt lgkmcnt(0)")
    ts(1)

    def reads(fs, ks):
        f = FS[fs]
        L = []
        L.append(f"ds_read_b128 v[{f}:{f+3}], v{XA[ks]}")
        L.append(f"ds_read_b128 v[{f+24}:{f+27}], v{BA[ks]}")
        L.append(f"ds_read_b128 v[{f+4}:{f+7}], v{XA[ks]} offset:4096")
        for gu in range(2):
            for ft in range(2):
                for j in range(2):
                    d = f + 8 + 8 * gu + 4 * ft + 2 * j
                    L.append(f"ds_read_b64_tr_b16 v[{d}:{d+1}], v{WA[ft]} offset:{gu*8192 + ks*2048 + j*512}")
        return L
    def mfmas(fs):
        f = FS[fs]
        X = [f, f + 4]; Bf = f + 24
        L = []
        for q in range(2):
            L.append(f"v_mfma_f32_32x32x16_bf16 v[{S(q)}:{S(q)+15}], v[{X[q]}:{X[q]+3}], v[{Bf}:{Bf+3}], v[{S(q)}:{S(q)+15}]")
        for gu in range(2):
            for ft in range(2):
                w = f + 8 + 8 * gu + 4 * ft
                for q in range(2):
                    d = (G, U)[gu](ft, q)
                    L.append(f"v_mfma_f32_32x32x16_bf16 v[{d}:{d+15}], v[{w}:{w+3}], v[{X[q]}:{X[q]+3}], v[{d}:{d+15}]")
        return L
    a("s_setprio 2")
    a("s_mov_b32 s72, 0")
    a("s_mov_b32 s74, 0")
    a("s_barrier")
    ts(2)
    for t in reads(0, 0): a(t)
    need = {0: 9, 1: 8, 2: 6, 4: 4, 6: 2, 8: 0}
    if cfg.zpeel:
        Rd = reads(1, 1)
        issued = 0
        for i, m in enumerate(mfmas(0)):
            if i in need: a(f"s_waitcnt lgkmcnt({min(15, need[i] + issued)})")
            a(m[:m.rindex(", v[")] + ", 0")
            for _ in range(2 if i >= cfg.rdstart else 0):
                if Rd: a(Rd.pop(0)); issued += 1
        a("s_branch L_c_k1")
    a.label("L_c_loop")
    for ks in range(4):
        if ks == 1: a.label("L_c_k1")
        fs = ks & 1
        M = mfmas(fs)
        if ks < 3:
            Rd = reads(1 - fs, ks + 1)
            issued = 0
            for i, m in enumerate(M):
                if i in need: a(f"s_waitcnt lgkmcnt({min(15, need[i] + issued)})")
                a(m)
                for _ in range(2 if i >= cfg.rdstart else 0):
                    if Rd: a(Rd.pop(0)); issued += 1
        else:
            Rd = reads(1 - fs, 0)
            a("s_waitcnt lgkmcnt(9)")
            a(M[0])
            a("s_add_u32 s74, s74, 1")
            a("s_cmp_eq_u32 s74, 3")
            a("s_mov_b32 s75, 53248")
            a(f"s_cmov_b32 s75, {(-106496) & 0xffffffff:#x}")
            a("s_cselect_b32 s74, 0, s74")
            for v in XA + BA[:1]: a(f"v_add_u32 v{v}, s75, v{v}")
            a("s_waitcnt lgkmcnt(8)")
            a(M[1])
            for v in BA[1:] + WA: a(f"v_add_u32 v{v}, s75, v{v}")
            a("s_add_u32 s72, s72, 1")
            a("s_cmp_eq_u32 s72, 6")
            a("s_waitcnt lgkmcnt(0)")
            a(M[2])
            a("s_barrier")
            hist = list(a.hist)
            a("s_cbranch_scc1 L_c_last")
            for m in M[3:]:
                for _ in range(2):
                    if Rd: a(Rd.pop(0))
                a(m)
            a("s_branch L_c_loop")
            a.label("L_c_last")
            a.hist = hist
            Mtail = M[3:]
    lq = []
    def ds_issue(tag, t):
        a(t)
        if t.startswith("ds_"): lq.append(tag)
    def ds_wait(tag):
        idx = max((i for i, t in enumerate(lq) if t == tag), default=None)
        if idx is None: return None
        n = len(lq) - 1 - idx
        del lq[:idx + 1]
        return f"lgkmcnt({min(n, 15)})"
    def dwait(tag):
        w = ds_wait(tag)
        if w: a(f"s_waitcnt {w}")
    UB = [24, 40, 56]
    def ureads(u):
        b, ks = UB[u % 3], u % 4
        L = [f"ds_read_b128 v[{b}:{b+3}], v{XA[ks]}"]
        if u < 8:
            ft = u // 4
            for gu in range(2):
                for j in range(2):
                    d = b + 8 + 4 * gu + 2 * j
                    L.append(f"ds_read_b64_tr_b16 v[{d}:{d+1}], v{WA[ft]} offset:{gu*8192 + ks*2048 + j*512}")
        else:
            L.append(f"ds_read_b128 v[{b+8}:{b+11}], v{BA[ks]}")
        L.append(f"ds_read_b128 v[{b+4}:{b+7}], v{XA[ks]} offset:4096")
        return [(u, t) for t in L]
    def umfma(u):
        b = UB[u % 3]
        L = []
        for q in range(2):
            x = b + 4 * q
            if u < 8:
                for gu in range(2):
                    d = (G, U)[gu](u // 4, q); w = b + 8 + 4 * gu
                    L.append(f"v_mfma_f32_32x32x16_bf16 v[{d}:{d+15}], v[{w}:{w+3}], v[{x}:{x+3}], v[{d}:{d+15}]")
            else:
                L.append(f"v_mfma_f32_32x32x16_bf16 v[{S(q)}:{S(q)+15}], v[{x}:{x+3}], v[{b+8}:{b+11}], v[{S(q)}:{S(q)+15}]")
        return L
    Rd = ureads(0) + ureads(1)
    for m in Mtail:
        for _ in range(2):
            if Rd: ds_issue(*Rd.pop(0))
        a(m)
    CH = 72
    def chalf(p):
        for gu in range(2):
            for k in range(2):
                ds_issue(('c', p), f"ds_read_b128 v[{CH+8*gu+4*k}:{CH+8*gu+4*k+3}], v{vCL} offset:{256*gu + 32*(2*p+k)}")
    def hstore(ft, q, p):
        g = G(ft, q)
        vm.issue('h', f"buffer_store_dwordx4 v[{g+4*p}:{g+4*p+3}], v{vL16}, s[{SRD_WS}:{SRD_WS+3}], s{56+q} offen offset:{(2*ft+p)*1024}{SP}")
    ep = [lambda: dwait(('c', 0)), f"v_xor_b32 v{MM}, 0x80000000, v{MM}", f"v_xor_b32 v{MM+1}, 0x80000000, v{MM+1}"]
    for p in range(2):
        if p: ep.append(lambda: dwait(('c', 1)))
        for q in range(2):
            g, u = G(0, q) + 8 * p, U(0, q) + 8 * p
            for k in range(8): ep.append(f"v_fmac_f32 v{g+k}, v{MM+q}, v{CH+k}")
            for k in range(8): ep.append(f"v_fmac_f32 v{u+k}, v{MM+q}, v{CH+8+k}")
            if q == 1 and p == 0: ep.append(lambda: chalf(1))
            for k in range(8): ep.append(f"v_max_f32 v{g+k}, 0, v{g+k}")
            for k in range(8): ep.append(f"v_mul_f32 v{u+k}, v{u+k}, v{g+k}")
            for k in range(4): ep.append(f"v_cvt_pk_bf16_f32 v{G(0,q)+4*p+k}, v{u+2*k}, v{u+2*k+1}")
            ep.append(lambda q=q, p=p: hstore(0, q, p))
    def fill(n):
        while n > 0 and ep:
            t = ep.pop(0)
            if callable(t): t()
            else: a(t)
            n -= 1
    def cread(tag, dst, off):
        for k in range(4): ds_issue(tag, f"ds_read_b128 v[{dst+4*k}:{dst+4*k+3}], v{vCL} offset:{off + 32*k}")
    for u in range(12):
        dwait(u)
        if u == 11:
            a("s_barrier")
        Rd = ureads(u + 2) if u + 2 < 12 else []
        for i, m in enumerate(umfma(u)):
            a(m)
            for _ in range(2):
                if Rd: ds_issue(*Rd.pop(0))
            if u > 4 or (u == 4 and i >= 1): fill(cfg.fper - 1 if u < 10 else cfg.fper)
        if u == cfg.c2u:
            a("s_barrier")
            ds_issue(('c', 0), f"ds_read_b32 v{MM}, v{vStF}")
            ds_issue(('c', 0), f"ds_read_b32 v{MM+1}, v{vStF} offset:256")
            chalf(0)
        if u == 9: cread('cg', UB[0], 128)
        if u == 10: cread('cu', UB[1], 384)
    ts(3)
    fill(1000)
    dump = [f"ds_write_b128 v{vPQ}, v[{S(0)+4*k}:{S(0)+4*k+3}] offset:{SD + 1024*k}" for k in range(8)]
    WB = {0: [1, 2], 1: [3, 4], 2: [5, 6]}
    for rg in range(3):
        a(f"v_add_u32 v{WB[rg][0]}, {R[rg]}, v{vWB}")
        a(f"v_xor_b32 v{WB[rg][1]}, 64, v{WB[rg][0]}")
    dwait('cu')
    cg, cu = UB[0], UB[1]
    for q in range(2):
        g, u = G(1, q), U(1, q)
        sel = f"op_sel:[{q},0,0] op_sel_hi:[{q},1,1]"
        for p in range(2):
            kr = range(4 * p, 4 * p + 4)
            for k in kr:
                a(f"v_pk_fma_f32 v[{g+2*k}:{g+2*k+1}], v[{MM}:{MM+1}], v[{cg+2*k}:{cg+2*k+1}], v[{g+2*k}:{g+2*k+1}] {sel}")
                if dump: a(dump.pop(0))
            for k in kr:
                a(f"v_pk_fma_f32 v[{u+2*k}:{u+2*k+1}], v[{MM}:{MM+1}], v[{cu+2*k}:{cu+2*k+1}], v[{u+2*k}:{u+2*k+1}] {sel}")
                a(f"v_max_f32 v{g+2*k}, 0, v{g+2*k}")
                a(f"v_max_f32 v{g+2*k+1}, 0, v{g+2*k+1}")
            for k in kr:
                a(f"v_pk_mul_f32 v[{u+2*k}:{u+2*k+1}], v[{u+2*k}:{u+2*k+1}], v[{g+2*k}:{g+2*k+1}]")
            for k in kr:
                a(f"v_cvt_pk_bf16_f32 v{g+k}, v{u+2*k}, v{u+2*k+1}")
            if q == 0 and p == 1:
                a("s_waitcnt lgkmcnt(0)")
                a("s_barrier")
            hstore(1, q, p)
    del lq[:]
    ts(4)
    BR, NB = 160, 12
    def breads(p):
        sl = WSLOT[p]
        rg = max(k for k in range(3) if R[k] <= sl)
        L = []
        for lc in range(2):
            for jj in range(2):
                d = BR + 8 * (p % NB) + 4 * lc + 2 * jj
                L.append(f"ds_read_b64_tr_b16 v[{d}:{d+1}], v{WB[rg][lc]} offset:{sl - R[rg] + jj*1024}")
        return L
    for p in range(NB):
        for t in breads(p): a(t)
    def flag1():
        vm.wait('h')
        a("s_setprio 3")
        a("s_mov_b64 exec, 1")
        vm.issue('f', f"buffer_store_dword v{vOne}, v{vF}, s[{SRD_WS}:{SRD_WS+3}], 0 offen sc1")
        a("s_mov_b64 exec, -1")
        ts(6)
    if cfg.fpre: flag1()
    a("s_waitcnt lgkmcnt(0)")
    a("s_barrier")
    ts(5)
    if not cfg.fpre: flag1()
    AF = 96
    AR = list(range(24, 96, 4))
    NA = len(AR)
    def aload(n):
        p, lr = n // 2, n % 2
        if n % 8 == 0:
            a(f"s_lshl_b32 s11, s60, 12")
            a(f"s_add_u32 s54, s11, s52")
            a(f"s_add_u32 s53, s11, s51")
            a(f"s_add_u32 s60, s60, 1")
            a(f"s_cmp_eq_u32 s60, 7")
            a(f"s_cselect_b32 s60, 0, s60")
        d = AR[n % NA]
        vm.issue(('a', n), f"buffer_load_dwordx4 v[{d}:{d+3}], v{vL16}, s[{SRD_WS}:{SRD_WS+3}], s{54 - lr} offen offset:{(p%4)*1024}{AP}")
    def cond():
        a("s_and_b64 s[16:17], s[16:17], s[18:19]")
        a("s_and_b64 s[16:17], s[16:17], s[20:21]")
        a("s_and_b32 s16, s16, s17")
        a("s_and_b32 s16, s16, s22")
        a("s_cmp_eq_u32 s16, 1")
    sspin(a, "L_pf", [f"s_load_dwordx8 s[16:23], s[{P_WS}:{P_WS+1}], s55 glc"], cond, cfg.fsleep)
    a("s_setprio 2")
    ts(7)
    for n in range(cfg.a0): aload(n)
    nxt = [cfg.a0]
    ts(8)
    def lds_spin(name, vaddr, off, val):
        a("s_mov_b32 s73, 0")
        a.label(name)
        a("s_waitcnt lgkmcnt(0)")
        a("v_readfirstlane_b32 s11, v8")
        a(f"s_cmp_ge_u32 s11, {val}")
        a(f"s_cbranch_scc1 {name}ok")
        a("s_add_u32 s73, s73, 1")
        a(f"s_cmp_ge_u32 s73, {SPIN_MAX}")
        a(f"s_cbranch_scc1 {name}ok")
        a("s_sleep 1")
        a(f"ds_read_b32 v8, v{vaddr} offset:{off}")
        a(f"s_branch {name}")
        a.label(name + "ok")
        del lq[:]
    for p in range(28):
        f = BR + 8 * (p % NB)
        pn = p + cfg.bd
        for lr in range(2):
            n = 2 * p + lr
            w = ds_wait(p) if lr == 0 else None
            vm.wait(('a', n), w or "")
            if n == 0: ts(9)
            if n in (0, 7, 17, 25, 35): ts.x(6, {0: 7, 7: 8, 17: 9, 25: 10, 35: 11}[n])
            if lr == 0 and pn in (12, 16, 22): ds_issue('r', f"ds_read_b32 v8, v{vRd}")
            d = AR[n % NA]
            for lc in range(2):
                acc = AF + 32 * lr + 16 * lc
                c = "0" if p == 0 else f"v[{acc}:{acc+15}]"
                a(f"v_mfma_f32_32x32x16_bf16 v[{acc}:{acc+15}], v[{d}:{d+3}], v[{f+4*lc}:{f+4*lc+3}], {c}")
            for _ in range(2):
                if nxt[0] < 56 and nxt[0] <= n + NA:
                    aload(nxt[0]); nxt[0] += 1
        if pn in (12, 16, 22): lds_spin(f"L_c_r{pn}", vRd, 0, {12: 1, 16: 2, 22: 3}[pn])
        if p == cfg.ksig:
            assert pn > 15
            w = ds_wait(15)
            if w: a(f"s_waitcnt {w}")
            a("s_mov_b64 exec, 1")
            ds_issue('c', f"ds_add_u32 v{vCn}, v{vOne} offset:4")
            a("s_mov_b64 exec, -1")
        if NB <= pn < 28:
            for t in breads(pn): ds_issue(pn, t)
        if p == 24:
            STT = BR + 32
            for k in range(8): ds_issue('st', f"ds_read_b128 v[{STT+4*k}:{STT+4*k+3}], v{vSo} offset:{16*k}")
        if p == 26:
            for x in range(1, 4):
                a(f"s_xor_b32 s11, s{S_W4}, {x}")
                a(f"s_mul_i32 s11, s11, {Q}")
                a(f"s_add_u32 s11, s11, {FXA + (x-1)*4096}")
                a(f"v_add_u32 v{x}, s11, v{vL16}")
            a(f"v_add_u32 v4, {GA}, v{vPQ}")
            a(f"v_add_u32 v5, {FXA}, v{vPQ}")
        if p % 4 == 3: ts.x(4, 1 + p // 4)
    ts(11)
    ts.x(7, 1)
    for x in (2, 1, 3):
        src = AF + 32 * (x & 1) + 16 * (x >> 1)
        for k in range(4):
            a(f"ds_write_b128 v5, v[{src+4*k}:{src+4*k+3}] offset:{(x-1)*4096 + 1024*k}")
    a("s_waitcnt lgkmcnt(12)")
    for r in range(16): a(f"v_mul_f32 v{STT+2*r}, v{STT+2*r+1}, v{STT+2*r+1}")
    a(f"s_mov_b32 s13, {LOG2E ^ 0x80000000:#x}")
    ts.x(7, 2)
    a("s_waitcnt lgkmcnt(0)")
    ts.x(7, 3)
    a("s_mov_b64 exec, 1")
    a(f"ds_add_u32 v{vCn}, v{vOne}")
    a("s_mov_b64 exec, -1")
    a(f"ds_read_b32 v8, v{vCn}")
    lds_spin("L_c_cnt", vCn, 0, 4)
    ts.x(7, 4)
    O, RX, EX = AF, 24, 72
    for k in range(4):
        for x in range(1, 4):
            a(f"ds_read_b128 v[{RX+16*(x-1)+4*k}:{RX+16*(x-1)+4*k+3}], v{x} offset:{1024*k}")
    for k in range(4):
        rr = range(4 * k, 4 * k + 4)
        a(f"s_waitcnt lgkmcnt({9 - 3*k})")
        for r in rr: a(f"v_add_f32 v{O+r}, v{O+r}, v{RX+r}")
        for r in rr: a(f"v_add_f32 v{RX+16+r}, v{RX+16+r}, v{RX+32+r}")
        for r in rr: a(f"v_add_f32 v{O+r}, v{O+r}, v{RX+16+r}")
        for r in rr: a(f"v_mul_f32 v{O+r}, v{O+r}, v{STT+2*r}")
        for r in rr: a(f"v_mul_f32 v{EX+r}, s13, v{O+r}")
        for r in rr: a(f"v_exp_f32 v{EX+r}, v{EX+r}")
    ts.x(7, 5)
    for k in range(4):
        rr = range(4 * k, 4 * k + 4)
        for r in rr: a(f"v_add_f32 v{EX+r}, 1.0, v{EX+r}")
        for r in rr: a(f"v_rcp_f32 v{EX+r}, v{EX+r}")
        for r in rr: a(f"v_mul_f32 v{O+r}, v{O+r}, v{EX+r}")
        a(f"ds_write_b128 v4, v[{O+4*k}:{O+4*k+3}] offset:{1024*k}")
    a("s_waitcnt lgkmcnt(0)")
    ts(12)
    a("s_barrier")
    ts.dump(24, 25, 0)
    a("s_endpgm")

HEADER = """; Fused S5-SSM + ReGLU block, one launch: 224 main workgroups (4 MFMA waves + 4 loader waves) + 32 helper workgroups.
; @launch grid=(256,1,1) block=(512,1,1) lds=163840
.amdgcn_target "amdgcn-amd-amdhsa--gfx950"
.text
.globl {k}
.p2align 8
.type {k},@function
{k}:
"""
FOOTER = """.section .rodata,"a"
.p2align 6
.amdhsa_kernel {k}
  .amdhsa_next_free_vgpr 256
  .amdhsa_next_free_sgpr 102
  .amdhsa_accum_offset 256
  .amdhsa_group_segment_fixed_size 0
  .amdhsa_kernarg_size 128
  .amdhsa_user_sgpr_count 2
  .amdhsa_user_sgpr_kernarg_segment_ptr 1
  .amdhsa_system_sgpr_workgroup_id_x 1
  .amdhsa_float_denorm_mode_32 3
.end_amdhsa_kernel
"""

def generate(cfg):
    WSOFF[0] = cfg.wsoff << 20
    a = Asm()
    ts = TS(a, cfg)
    gen_entry(a, cfg, ts)
    gen_loader(a, cfg, ts)
    gen_consumer(a, cfg, ts)
    gen_helper(a, cfg, ts)
    a.label("L_exit")
    a("s_endpgm")
    return HEADER.format(k=KNAME) + f"; wsoff={cfg.wsoff}\n" + a.text() + FOOTER.format(k=KNAME)

if __name__ == "__main__":
    cfg = Cfg()
    out = sys.argv[1]
    for kv in sys.argv[2:]:
        k, v = kv.split("=")
        setattr(cfg, k, int(v))
    open(out, "w").write(generate(cfg))
```

```python
import sys, os
sys.path.insert(0, os.path.dirname(os.path.abspath(__file__)))
from asmlib import Asm, VM

KNAME = "recurrent_scan__ssm_conv_s5__glu_gated_reglu__prompt_kernel"

R = [0, 53248, 106496]
MISC = 159744
OFF_WG, OFF_WU, OFF_BB = 32768, 40960, 49152
CP_L = R[1] + 49152
STATS_L = MISC
C_L = MISC + 2048
CNT_L = MISC + 2688
ST2_L = MISC + 2720
AGG_L = MISC + 3232
Q = 12288

RT_BYTES = 172032
HALF_BYTES = 86016
WS_STATS = 0xB00000
WS_AGG = WS_STATS + 0x4000
WS_FLAG = WS_AGG + 0x8000
INIT_N = 32
WS_CP = 0xB20000
WS_TS = 0xC00000
WS_SIZE = 0x1000000
SPIN_MAX = 1 << 20

S_WAVE, S_XCD, S_SLOT, S_MT, S_NS, S_M64, S_NT, S_W4 = 3, 4, 5, 6, 7, 8, 9, 10
P_X, P_LRE, P_LIM, P_BRE, P_BIM, P_CRE, P_CIM, P_LDT, P_DSK, P_BX, P_WG, P_WU, P_WD, P_OUT, P_DBG, P_WS = [16 + 2 * i for i in range(16)]
SRD_X, SRD_A, SRD_B, SRD_C, SRD_WS, SRD_E = 48, 52, 56, 60, 64, 68
TS0 = 76

LOG2E = 0x3fb8aa3b
LOG2E_LO = 0x32a57060
LN2 = 0x3f317218
INV2PI = 0x3e22f983

class Cfg:
    ts = 0
    tsset = 0
    pd = 16
    perm = 4
    rot = 2
    ssm_early = 0
    schedn = 0
    polx = 0
    apol = 1
    noa = 0
    nob = 0
    rdstart = 1
    polw = 0
    winn = 3
    loc = 1
    s0a = 8
    zpeel = 1
    ws = 0
    crot = 0
    ipos = 0
    gate = 2
    c0n = 8
    agpos = 0
    c0early = 0
    hord = 1
    clate = 2
    wl = 1
    fper = 6
    c2u = 2
    probe = 0
    pwho = 0
    ponly = -1
    pmask = 0xffff
    wsoff = 0
    kwin = 2
    wprio = 0
    hdelay = 0
    eprio = 0
    c2late = 0
    cpf = 2
    padto = 0
    nocs = 0
    r2pre = 1
    tlb = 0
    bd = 4
    pollw = 24
    c1 = 12
    c2 = 16
    f2b = 1
    wfirst = 1
    @property
    def win(self):
        W = lambda a, b: [f"w{p}" for p in range(a, b)]
        if self.ws:
            m, n1, n2, n3, n4, n5, n6, cp, cs, ep = [int(c) for c in str(self.ws)[1:]]
            assert n1 + n2 + n3 + n4 + n5 + n6 == 10
            pos = [12]
            def take(n):
                r = W(pos[0], pos[0] + n); pos[0] += n; return r
            w = {}
            if m == 2: w[-1] = ["m", "s1:0-3"]; w[0] = ["cs0", "s1:3-13", "k", "s2:0-10"]; w[1] = ["cs1", "s2:10-13", "s3"]
            else: w[-1] = ["s1:0-6"]; w[0] = ["cs0", "s1:6-13", "k", "s2"] + (["m"] if m == 1 else []); w[1] = ["cs1"] + (["m"] if m == 3 else []) + ["s3"]
            w[1] += take(n1)
            w[2] = ["cs2", "s4"] + take(n2)
            w[3] = (["cs3", "s5:0-7", "cs4", "s5:7-13"] if cs == 1 else ["cs3", "s5"]) + take(n3)
            w[4] = {0: ["cs4", "init", "s6:0-7", "cs5", "s6:7-13"], 1: ["init", "s6:0-4", "cs5", "s6:4-13"], 2: ["cs4", "init", "s6"]}[cs] + take(n4)
            w[5] = (["cs5"] if cs == 2 else []) + ["fetch"] + W(0, 4) + ["cs6"] + W(4, 6) + take(n5) + {0: ["c3"], 1: [], 2: ["c3", "c1"], 3: ["c1"]}[cp] + ["put"]
            w[6] = W(6, 12) + take(n6) + {0: ["c1"], 1: ["c3", "c1"], 2: [], 3: ["c3"]}[cp]
            w[ep].append("e")
            if self.ipos:
                w[4].remove("init"); w[4].append("init")
                w[5].remove("fetch"); w[5].remove("put")
                w[5].insert(w[5].index("cs6") + 1, "fetch")
                w[6].insert(2, "put")
            return w
        return [
            {-1: ["s1:0-6"], 0: ["cs0", "s1:6-13", "k", "s2:0-9"], 1: ["cs1", "s2:9-13", "s3", "e"], 2: ["cs2", "s4"] + W(12, 14), 3: ["cs3", "s5"] + W(14, 17),
             4: ["cs4", "init", "s6:0-7", "cs5", "s6:7-13", "w17"], 5: ["fetch"] + W(0, 4) + ["cs6"] + W(4, 6) + W(18, 20) + ["put"], 6: W(6, 12) + W(20, 22)},
            {-1: ["s1:0-6"], 0: ["cs0", "s1:6-13", "k", "s2:0-9"], 1: ["cs1", "s2:9-13", "s3", "e"], 2: ["cs2", "s4"] + W(12, 15), 3: ["cs3", "s5"] + W(15, 18),
             4: ["cs4", "init", "s6"] + W(18, 20), 5: ["cs5", "fetch"] + W(0, 3) + ["cs6"] + W(3, 6) + ["put"], 6: W(6, 12) + W(20, 22)},
            {-1: ["s1:0-6"], 0: ["cs0", "s1:6-13", "k", "s2:0-9"], 1: ["cs1", "s2:9-13", "s3", "e"], 2: ["cs2", "s4"] + W(12, 15), 3: ["cs3", "s5:0-7", "cs4", "s5:7-13", "w15"],
             4: ["init", "s6:0-4", "cs5", "s6:4-13"] + W(16, 19), 5: ["fetch"] + W(0, 4) + ["cs6"] + W(4, 6) + W(19, 22) + ["put"], 6: W(6, 12)},
            {-1: ["s1:0-6"], 0: ["cs0", "s1:6-13", "k", "s2:0-9"], 1: ["cs1", "s2:9-13", "s3", "e"], 2: ["cs2", "s4"] + W(12, 15), 3: ["cs3", "s5"] + W(15, 18),
             4: ["cs4", "init", "s6:0-7", "cs5", "s6:7-13", "w18", "w19"], 5: ["fetch"] + W(0, 4) + ["cs6"] + W(4, 6) + W(20, 22) + ["c3", "put"], 6: W(6, 12) + ["c1"]},
            {-1: ["s1:0-6"], 0: ["cs0", "s1:6-13", "k", "s2:0-9"], 1: ["cs1", "s2:9-13", "s3", "e"], 2: ["cs2", "s4"] + W(12, 14), 3: ["cs3", "s5"] + W(14, 17),
             4: ["cs4", "init", "s6:0-7", "cs5", "s6:7-13", "w17"], 5: ["fetch"] + W(0, 4) + ["cs6"] + W(4, 6) + W(18, 20) + ["put"], 6: W(6, 12) + W(20, 22) + ["c3"]},
            {-1: ["s1:0-6"], 0: ["cs0", "s1:6-13", "k", "s2:0-9"], 1: ["cs1", "s2:9-13", "s3", "e"], 2: ["cs2", "s4"] + W(12, 15), 3: ["cs3", "s5"] + W(15, 19),
             4: ["cs4", "init", "s6:0-7", "cs5", "s6:7-13"] + W(19, 22), 5: ["fetch"] + W(0, 4) + ["cs6"] + W(4, 6) + ["c1", "put"], 6: W(6, 12) + ["c3"]},
            {-1: ["s1:0-6"], 0: ["cs0", "s1:6-13", "k", "s2"], 1: ["cs1", "s3", "e"] + W(12, 14), 2: ["cs2", "s4"] + W(14, 17), 3: ["cs3", "s5"] + W(17, 20),
             4: ["cs4", "init", "s6:0-7", "cs5", "s6:7-13"] + W(20, 22), 5: ["fetch"] + W(0, 4) + ["cs6"] + W(4, 6) + ["c1", "put"], 6: W(6, 12) + ["c3"]},
            {-1: ["s1:0-6"], 0: ["cs0", "s1:6-13", "k", "s2:0-9"], 1: ["cs1", "s2:9-13", "s3", "e"], 2: ["cs2", "s4"] + W(12, 15), 3: ["cs3", "s5:0-7", "cs4", "s5:7-13"] + W(15, 18),
             4: ["init", "s6:0-4", "cs5", "s6:4-13"] + W(18, 22), 5: ["fetch"] + W(0, 4) + ["cs6"] + W(4, 6) + ["c1", "put"], 6: W(6, 12) + ["c3"]},
            {-1: ["s1:0-6"], 0: ["cs0", "s1:6-13", "k", "s2:0-9"], 1: ["cs1", "s2:9-13", "s3", "e"], 2: ["cs2", "s4"], 3: ["cs3", "s5"] + W(12, 16),
             4: ["cs4", "init", "s6:0-7", "cs5", "s6:7-13"] + W(16, 19), 5: ["fetch"] + W(0, 4) + ["cs6"] + W(4, 6) + W(19, 22) + ["c3", "put"], 6: W(6, 12) + ["c1"]},
            {-1: ["s1:0-6"], 0: ["cs0", "s1:6-13", "k", "s2"], 1: ["cs1", "s3", "e"], 2: ["cs2", "s4"] + W(12, 14), 3: ["cs3", "s5"] + W(14, 18),
             4: ["cs4", "init", "s6:0-7", "cs5", "s6:7-13", "w18", "w19"], 5: ["fetch"] + W(0, 4) + ["cs6"] + W(4, 6) + W(20, 22) + ["c3", "put"], 6: W(6, 12) + ["c1"]},
            {-1: ["s1:0-3"], 0: ["cs0", "s1:3-13", "k", "s2:0-8"], 1: ["cs1", "s2:8-13", "s3"], 2: ["cs2", "s4", "e"] + W(12, 14), 3: ["cs3", "s5"] + W(14, 18),
             4: ["cs4", "init", "s6:0-7", "cs5", "s6:7-13", "w18", "w19"], 5: ["fetch"] + W(0, 4) + ["cs6"] + W(4, 6) + W(20, 22) + ["c3", "put"], 6: W(6, 12) + ["c1"]},
            {-1: ["s1:0-6"], 0: ["cs0", "s1:6-13", "k", "s2:0-9"], 1: ["cs1", "s2:9-13", "s3", "e"], 2: ["cs2", "s4"] + W(12, 15), 3: ["cs3", "init", "s5"] + W(15, 18),
             4: ["cs4", "fetch", "s6:0-7", "cs5", "s6:7-13", "w18", "w19"], 5: ["put"] + W(0, 4) + ["cs6"] + W(4, 6) + W(20, 22) + ["c3"], 6: W(6, 12) + ["c1"]},
            {-1: ["m", "s1:0-3"], 0: ["cs0", "s1:3-13", "k", "s2:0-8"], 1: ["cs1", "s2:8-13", "s3", "e"], 2: ["cs2", "s4"] + W(12, 15), 3: ["cs3", "s5"] + W(15, 18),
             4: ["cs4", "init", "s6:0-7", "cs5", "s6:7-13", "w18", "w19"], 5: ["fetch"] + W(0, 4) + ["cs6"] + W(4, 6) + W(20, 22) + ["c3", "put"], 6: W(6, 12) + ["c1"]},
            {-1: ["s1:0-6"], 0: ["cs0", "s1:6-13", "m", "k", "s2:0-9"], 1: ["cs1", "s2:9-13", "s3", "e"], 2: ["cs2", "s4"] + W(12, 15), 3: ["cs3", "s5"] + W(15, 18),
             4: ["cs4", "init", "s6:0-7", "cs5", "s6:7-13", "w18", "w19"], 5: ["fetch"] + W(0, 4) + ["cs6"] + W(4, 6) + W(20, 22) + ["c3", "put"], 6: W(6, 12) + ["c1"]},
            {-1: ["m"], 0: ["cs0", "s1", "k", "s2:0-6"], 1: ["cs1", "s2:6-13", "s3"], 2: ["cs2", "s4", "e"] + W(12, 14), 3: ["cs3", "s5"] + W(14, 18),
             4: ["cs4", "init", "s6:0-7", "cs5", "s6:7-13", "w18", "w19"], 5: ["fetch"] + W(0, 4) + ["cs6"] + W(4, 6) + W(20, 22) + ["c3", "put"], 6: W(6, 12) + ["c1"]},
            {-1: ["s1:0-6"], 0: ["cs0", "s1:6-13", "k", "s2"], 1: ["cs1", "s3"], 2: ["cs2", "s4", "e"], 3: ["cs3", "s5"] + W(12, 16),
             4: ["cs4", "init", "s6:0-7", "cs5", "s6:7-13"] + W(16, 19), 5: ["fetch"] + W(0, 4) + ["cs6"] + W(4, 6) + W(19, 22) + ["c3", "put"], 6: W(6, 12) + ["c1"]},
            {-1: ["s1:0-6"], 0: ["cs0", "s1:6-13", "k", "s2", "m"], 1: ["cs1", "s3"], 2: ["cs2", "s4", "e"], 3: ["cs3", "s5"] + W(12, 16),
             4: ["cs4", "init", "s6:0-7", "cs5", "s6:7-13"] + W(16, 19), 5: ["fetch"] + W(0, 4) + ["cs6"] + W(4, 6) + W(19, 22) + ["c3", "put"], 6: W(6, 12) + ["c1"]},
            {-1: ["m", "s1:0-3"], 0: ["cs0", "s1:3-13", "k", "s2:0-10"], 1: ["cs1", "s2:10-13", "s3"], 2: ["cs2", "s4", "e"], 3: ["cs3", "s5"] + W(12, 16),
             4: ["cs4", "init", "s6:0-7", "cs5", "s6:7-13"] + W(16, 19), 5: ["fetch"] + W(0, 4) + ["cs6"] + W(4, 6) + W(19, 22) + ["c3", "put"], 6: W(6, 12) + ["c1"]},
            {-1: ["s1:0-6"], 0: ["cs0", "s1:6-13", "k", "s2"], 1: ["cs1", "s3"], 2: ["cs2", "s4:0-6"], 3: ["cs3", "s4:6-13", "s5", "e"],
             4: ["cs4", "init", "s6"] + W(12, 16), 5: ["cs5", "fetch"] + W(16, 20) + ["cs6"] + W(0, 6) + ["put"], 6: W(6, 12) + W(20, 22) + ["c3", "c1"]},
            {-1: ["s1"], 0: ["cs0", "k", "s2", "e"], 1: ["cs1", "s3"], 2: ["cs2", "s4", "w12"], 3: ["cs3", "s5"] + W(13, 16),
             4: ["cs4", "init", "s6:0-7", "cs5", "s6:7-13"] + W(16, 19), 5: ["fetch"] + W(0, 4) + ["cs6"] + W(4, 6) + W(19, 22) + ["c3", "put"], 6: W(6, 12) + ["c1"]},
        ][self.winn]
    nw1 = 6
    flagr = -1
    xs = 1
    psleep = 2
    fsleep = 2
    ttper = 2
    f2n = 9
    fpre = 1
    a0 = 18
    sprio = 0
    ksig = 12
    opol = 1
    lprio = 3
    w12early = 0
    slab = 0
    spol = 1
    fpol = 1
    pollr = 4
    nw2 = 16
    thr = 15
    hpf = 2
    ky = 2
    @property
    def perms(self):
        return {
            0: [[0, 1, 2, 3, 4, 5, 6]],
            1: [[0, 1, 2, 3, 4, 5, 6], [1, 2, 0, 4, 5, 3, 6], [2, 0, 1, 5, 3, 4, 6]],
            2: [[0, 1, 2, 3, 4, 5, 6], [1, 0, 3, 2, 5, 4, 6]],
            3: [[0, 1, 2, 3, 4, 5, 6], [1, 0, 4, 5, 6, 2, 3], [0, 1, 6, 2, 3, 4, 5]],
            4: [[0, 1, 2, 3, 4, 5, 6], [1, 2, 0, 4, 6, 3, 5], [2, 0, 1, 5, 6, 3, 4]],
            6: [[0, 1, 2, 3, 4, 5, 6], [1, 2, 0, 3, 4, 5, 6], [2, 0, 1, 3, 4, 5, 6]],
            5: [[0, 1, 2, 3, 4, 5, 6], [1, 2, 3, 0, 5, 6, 4], [2, 3, 0, 1, 6, 4, 5], [3, 0, 1, 2, 4, 5, 6]],
        }[self.perm]

WSOFF = [0]
def srd(a, d, ptr, nbytes):
    if ptr == P_WS and WSOFF[0]:
        a(f"s_add_u32 s{ptr}, s{ptr}, {WSOFF[0]:#x}")
        a(f"s_addc_u32 s{ptr+1}, s{ptr+1}, 0")
    a(f"s_mov_b32 s{d}, s{ptr}")
    a(f"s_and_b32 s{d+1}, s{ptr+1}, 0xffff")
    a(f"s_mov_b32 s{d+2}, {nbytes:#x}")
    a(f"s_mov_b32 s{d+3}, 0x20000")

def srd_sel(a, d, ptr1, ptr0, nbytes):
    a(f"s_cselect_b32 s{d}, s{ptr1}, s{ptr0}")
    a(f"s_cselect_b32 s{d+1}, s{ptr1+1}, s{ptr0+1}")
    a(f"s_and_b32 s{d+1}, s{d+1}, 0xffff")
    a(f"s_mov_b32 s{d+2}, {nbytes:#x}")
    a(f"s_mov_b32 s{d+3}, 0x20000")

class TS:
    def __init__(self, a, cfg):
        self.a, self.on, self.n, self.set = a, cfg.ts, 0, cfg.tsset
        self.cfg = cfg
    def x(self, setno, i):
        if self.on and self.set == setno: self.emit(i)
    def __call__(self, i):
        if self.on and (self.set == 0 or i in (0, 12)): self.emit(i)
    def emit(self, i):
        if self.on == 5 and i not in (0, self.cfg.probe): return
        if self.on:
            assert i < 13
            self.a(f"{'s_memrealtime' if self.on != 2 else 's_memtime'} s[{TS0+2*i}:{TS0+2*i+1}]")
    def init(self):
        if self.on:
            for i in range(1, 13): self.a(f"s_mov_b32 s{TS0+2*i}, 0")
    def dump(self, vt, vt2, who=2):
        if not self.on: return
        a = self.a
        if self.on == 5:
            if who != self.cfg.pwho: return
            lab = a.newlabel("L_probe")
            if self.cfg.ponly >= 0:
                a(f"s_and_b32 s11, s2, {self.cfg.pmask}")
                a(f"s_cmp_lg_u32 s11, {self.cfg.ponly}")
                a(f"s_cbranch_scc1 {lab}_x")
            p = TS0 + 2 * self.cfg.probe
            a("s_waitcnt lgkmcnt(0)")
            a(f"s_sub_u32 s11, s{p}, s{TS0}")
            a(f"s_cmp_eq_u32 s{p}, 0")
            a("s_cselect_b32 s11, 0, s11")
            a("s_lshl_b32 s11, s11, 2")
            a("s_add_u32 s11, s11, 3000")
            a.label(lab)
            a("s_memrealtime s[12:13]")
            a("s_waitcnt lgkmcnt(0)")
            a(f"s_sub_u32 s12, s12, s{TS0}")
            a("s_cmp_lt_u32 s12, s11")
            a(f"s_cbranch_scc1 {lab}")
            a.label(lab + "_x")
            return
        if self.on == 3:
            a("s_waitcnt vmcnt(0) lgkmcnt(0)")
            lab = a.newlabel("L_nod")
            a(f"s_cmp_eq_u32 s{TS0+24}, 0")
            a(f"s_cbranch_scc1 {lab}")
            a(f"s_cmp_lg_u32 s{S_WAVE}, 0")
            a(f"s_cbranch_scc1 {lab}")
            a("s_mov_b64 exec, 1")
            a(f"v_mov_b32 v{vt2}, 0")
            a(f"s_not_b32 s11, s{TS0}")
            a(f"v_mov_b32 v{vt}, s11")
            a(f"global_atomic_umax v{vt2}, v{vt}, s[{P_DBG}:{P_DBG+1}] offset:4 sc1")
            for n, i in enumerate([0, 1, 2, 3, 4, 5, 6, 7, 8, 9, 10, 11, 12]):
                a("s_waitcnt vmcnt(0)")
                a(f"v_mov_b32 v{vt}, s{TS0+2*i}")
                a(f"global_atomic_umax v{vt2}, v{vt}, s[{P_DBG}:{P_DBG+1}] offset:{8+4*n} sc1")
            a("s_waitcnt vmcnt(0)")
            a.label(lab)
            return
        a("s_waitcnt vmcnt(0) lgkmcnt(0)")
        a(f"s_lshl_b32 s11, s2, 9")
        a(f"s_lshl_b32 s12, s{S_WAVE}, 6")
        a("s_add_u32 s11, s11, s12")
        a(f"s_add_u32 s11, s11, {WS_TS:#x}")
        a(f"v_mov_b32 v{vt2}, s11")
        for i in range(13):
            a(f"v_mov_b32 v{vt}, s{TS0+2*i}")
            a(f"buffer_store_dword v{vt}, v{vt2}, s[{SRD_WS}:{SRD_WS+3}], 0 offen offset:{4*i}")
        a("s_waitcnt vmcnt(0)")

def round_bf16(a, dst, src):
    a(f"v_cvt_pk_bf16_f32 v{dst}, v{src}, v{src}")
    a(f"v_lshlrev_b32 v{dst}, 16, v{dst}")

def exp_acc(a, dst, x, t0, t1):
    a(f"s_mov_b32 s36, {LOG2E:#x}")
    a(f"s_mov_b32 s37, {LOG2E_LO:#x}")
    a(f"v_mul_f32 v{t0}, s36, v{x}")
    a(f"v_fma_f32 v{t1}, v{x}, s36, -v{t0}")
    a(f"v_fma_f32 v{t1}, v{x}, s37, v{t1}")
    a(f"v_mul_f32 v{t1}, {LN2:#x}, v{t1}")
    a(f"v_exp_f32 v{dst}, v{t0}")
    a(f"v_fma_f32 v{dst}, v{dst}, v{t1}, v{dst}")

def csq(a, dr, di, sr, si, t):
    a(f"v_mul_f32 v{t}, v{si}, v{si}")
    a(f"v_add_f32 v{di}, v{si}, v{si}")
    a(f"v_mul_f32 v{di}, v{di}, v{sr}")
    a(f"v_fma_f32 v{dr}, v{sr}, v{sr}, -v{t}")

def cmul(a, dr, di, ar, ai, br, bi):
    a(f"v_mul_f32 v{dr}, v{ar}, v{br}")
    a(f"v_mul_f32 v{di}, v{ar}, v{bi}")
    a(f"v_fma_f32 v{dr}, -v{ai}, v{bi}, v{dr}")
    a(f"v_fma_f32 v{di}, v{ai}, v{br}, v{di}")

def ssm_const_load(a, vm, t):
    a(f"v_and_b32 v{t+3}, 15, v0")
    a(f"s_lshl_b32 s11, s{S_NS}, 4")
    a(f"v_add_lshl_u32 v{t+3}, v{t+3}, s11, 1")
    vm.issue('sc', f"global_load_ushort v{t}, v{t+3}, s[{P_LRE}:{P_LRE+1}]")
    vm.issue('sc', f"global_load_ushort v{t+1}, v{t+3}, s[{P_LIM}:{P_LIM+1}]")
    vm.issue('sc', f"global_load_ushort v{t+2}, v{t+3}, s[{P_LDT}:{P_LDT+1}]")

def ssm_const_calc(a, t, lr, li, cr=None, ci=None):
    for k in range(3): a(f"v_lshlrev_b32 v{t+k}, 16, v{t+k}")
    exp_acc(a, t + 3, t + 2, t + 4, t + 5)
    round_bf16(a, t + 2, t + 3)
    a(f"v_mul_f32 v{t+3}, v{t+2}, v{t}")
    a(f"v_mul_f32 v{t+6}, v{t+2}, v{t+1}")
    exp_acc(a, t + 7, t + 3, t + 4, t + 5)
    a(f"v_mul_f32 v{t+6}, {INV2PI:#x}, v{t+6}")
    a(f"v_rndne_f32 v{t+4}, v{t+6}")
    a(f"v_sub_f32 v{t+6}, v{t+6}, v{t+4}")
    a(f"v_cos_f32 v{t+4}, v{t+6}")
    a(f"v_sin_f32 v{t+5}, v{t+6}")
    a(f"v_mul_f32 v{lr}, v{t+7}, v{t+4}")
    a(f"v_mul_f32 v{li}, v{t+7}, v{t+5}")
    if cr is not None:
        a(f"v_add_f32 v{t+3}, -1.0, v{lr}")
        a(f"v_mul_f32 v{t+4}, v{t}, v{t}")
        a(f"v_fma_f32 v{t+4}, v{t+1}, v{t+1}, v{t+4}")
        a(f"v_rcp_f32 v{t+4}, v{t+4}")
        a(f"v_mul_f32 v{cr}, v{t+3}, v{t}")
        a(f"v_fma_f32 v{cr}, v{li}, v{t+1}, v{cr}")
        a(f"v_mul_f32 v{ci}, v{li}, v{t}")
        a(f"v_fma_f32 v{ci}, -v{t+3}, v{t+1}, v{ci}")
        a(f"v_add_f32 v{t+4}, v{t+4}, v{t+4}")
        a(f"v_mul_f32 v{cr}, v{cr}, v{t+4}")
        a(f"v_mul_f32 v{ci}, v{ci}, v{t+4}")

def gen_entry(a, cfg, ts):
    a("s_cmp_ge_u32 s2, 256")
    a("s_cbranch_scc1 L_exit")
    if cfg.padto: a("s_memrealtime s[100:101]")
    ts(0)
    a("s_load_dwordx16 s[16:31], s[0:1], 0")
    a("s_load_dwordx16 s[32:47], s[0:1], 64")
    a("v_lshrrev_b32 v1, 6, v0")
    a("v_and_b32 v0, 63, v0")
    a(f"v_readfirstlane_b32 s{S_WAVE}, v1")
    a(f"s_and_b32 s{S_XCD}, s2, 7")
    a(f"s_lshr_b32 s{S_SLOT}, s2, 3")
    if cfg.cpf == 2:
        a(f"s_cmp_lg_u32 s{S_WAVE}, 0")
        a("s_cbranch_scc1 L_nocpf")
        a("s_getpc_b64 s[12:13]")
        a.label("L_pc0")
        a(f"s_sub_u32 s12, s12, L_pc0-{KNAME}")
        a("s_subb_u32 s13, s13, 0")
        a(f"s_lshl_b32 s11, s{S_SLOT}, 10")
        a("v_lshl_add_u32 v38, v0, 4, s11")
        a(f"v_min_u32 v38, L_exit-{KNAME}, v38")
        a("global_load_dword v39, v38, s[12:13]")
        a.label("L_nocpf")
    a(f"s_and_b32 s11, s{S_SLOT}, 3")
    a(f"s_lshr_b32 s{S_NT}, s{S_SLOT}, 2")
    a(f"s_and_b32 s12, s{S_XCD}, 1")
    a(f"s_lshl_b32 s12, s12, 2")
    a(f"s_add_u32 s{S_MT}, s12, s11")
    a(f"s_lshr_b32 s12, s{S_XCD}, 1")
    a(f"s_mul_i32 s12, s12, 7")
    a(f"s_add_u32 s{S_NS}, s12, s{S_NT}")
    if cfg.slab:
        a(f"s_mov_b32 s{S_MT}, s{S_XCD}")
        a(f"s_mov_b32 s{S_NS}, s{S_SLOT}")
    if cfg.loc:
        a(f"s_and_b32 s12, s{S_XCD}, 1")
        a("s_lshl_b32 s12, s12, 2")
        a(f"s_lshr_b32 s13, s{S_XCD}, 1")
        a("s_add_u32 s12, s12, s13")
        a("s_lshl_b32 s12, s12, 2")
    else:
        a(f"s_lshl_b32 s12, s{S_XCD}, 2")
    a(f"s_add_u32 s{S_M64}, s12, s11")
    a(f"s_and_b32 s{S_W4}, s{S_WAVE}, 3")
    ts.init()
    a(f"s_cmp_ge_u32 s{S_SLOT}, 28")
    a("s_cbranch_scc1 L_helper")
    a(f"s_cmp_lt_u32 s{S_WAVE}, 4")
    a("s_cbranch_scc1 L_consumer")

def gen_helper(a, cfg, ts):
    a.label("L_helper")
    vm = VM(a)
    a(f"s_sub_u32 s73, s{S_SLOT}, 28")
    a(f"s_lshl_b32 s11, s73, 3")
    a(f"s_add_u32 s72, s11, s{S_XCD}")
    if cfg.loc: a(f"s_mov_b32 s72, s{S_M64}")
    HC = 65536
    a(f"v_mov_b32 v200, {HC}")
    a("v_mov_b32 v201, 0")
    a("ds_write_b32 v200, v201")
    def h_open():
        a("s_waitcnt lgkmcnt(0)")
        a("s_barrier")
    def h_signal(tag):
        a("v_mov_b32 v202, 1")
        a("s_mov_b64 exec, 1")
        a("ds_add_rtn_u32 v203, v200, v202")
        a("s_waitcnt lgkmcnt(0)")
        a("v_readfirstlane_b32 s11, v203")
        a("s_cmp_lg_u32 s11, 7")
        a(f"s_cbranch_scc1 L_h_ns{tag}")
        a(f"global_atomic_add v201, v202, s[{P_DBG}:{P_DBG+1}] sc1")
        a.label(f"L_h_ns{tag}")
        a("s_mov_b64 exec, -1")
    a(f"s_cmp_ge_u32 s{S_WAVE}, 4")
    a("s_cbranch_scc1 L_h_pf")
    a(f"s_lshl_b32 s11, s72, 6")
    a(f"s_lshl_b32 s12, s{S_WAVE}, 4")
    a(f"s_add_u32 s11, s11, s12")
    a("v_lshrrev_b32 v2, 3, v0")
    a("v_add_u32 v2, s11, v2")
    a("v_mul_u32_u24 v3, 896, v2")
    a("v_and_b32 v4, 7, v0")
    a("v_lshl_add_u32 v3, v4, 4, v3")
    a("s_waitcnt lgkmcnt(0)")
    srd(a, SRD_X, P_X, 2048 * 896)
    srd(a, SRD_WS, P_WS, WS_SIZE)
    a(f"s_mov_b32 s11, {8*896}")
    for ps in range(2):
        for j in range(7):
            so = "0" if ps == 0 else "s11"
            vm.issue(('x', ps), f"buffer_load_dwordx4 v[{112+28*ps+4*j}:{115+28*ps+4*j}], v3, s[{SRD_X}:{SRD_X+3}], {so} offen offset:{128*j}")
    a(f"s_cmp_gt_u32 s{S_WAVE}, 1")
    a("s_cbranch_scc1 L_h_noreset")
    a(f"s_cmp_eq_u32 s{S_WAVE}, 0")
    a("s_cselect_b32 s11, -1, 0")
    a("s_mov_b32 s12, 1024")
    a("s_cmov_b32 s12, 896")
    a(f"s_mov_b32 s13, {WS_FLAG:#x}")
    a(f"s_cmov_b32 s13, {WS_AGG:#x}")
    a("s_mul_i32 s14, s12, s72")
    a("s_add_u32 s13, s13, s14")
    for k in range(4): a(f"v_mov_b32 v{8+k}, s11")
    a("v_lshlrev_b32 v12, 4, v0")
    a("v_cmp_gt_u32 vcc, s12, v12")
    a("s_and_saveexec_b64 s[14:15], vcc")
    a(f"buffer_store_dwordx4 v[8:11], v12, s[{SRD_WS}:{SRD_WS+3}], s13 offen sc1")
    a("s_mov_b64 exec, s[14:15]")
    a.label("L_h_noreset")
    h_open()
    a("v_lshlrev_b32 v2, 3, v2")
    a("s_mov_b32 s12, 0xffff0000")
    def fin(dst):
        a("v_add_f32 v8, v8, v9")
        a("v_add_f32 v10, v10, v11")
        a(f"v_add_f32 v{dst}, v8, v10")
        a(f"v_add_f32_dpp v{dst}, v{dst}, v{dst} quad_perm:[1,0,3,2] row_mask:0xf bank_mask:0xf")
        a(f"v_add_f32_dpp v{dst}, v{dst}, v{dst} quad_perm:[2,3,0,1] row_mask:0xf bank_mask:0xf")
        a(f"v_add_f32_dpp v{dst}, v{dst}, v{dst} row_half_mirror row_mask:0xf bank_mask:0xf")
        a(f"v_mul_f32 v{dst}, 0x3b124925, v{dst}")
    for ps in range(2):
        vm.wait(('x', ps))
        if cfg.hdelay == 2 + ps: a("s_barrier")
        src = 112 + 28 * ps
        for k in range(28):
            a(f"v_lshlrev_b32 v{48+2*k}, 16, v{src+k}")
            a(f"v_and_b32 v{49+2*k}, s12, v{src+k}")
        a("v_pk_add_f32 v[8:9], v[48:49], v[52:53]")
        a("v_pk_add_f32 v[10:11], v[50:51], v[54:55]")
        for k in range(4, 28): a(f"v_pk_add_f32 v[{8+2*(k%2)}:{9+2*(k%2)}], v[{8+2*(k%2)}:{9+2*(k%2)}], v[{48+2*k}:{49+2*k}]")
        fin(12)
        for k in range(28): a(f"v_pk_add_f32 v[{48+2*k}:{49+2*k}], v[{48+2*k}:{49+2*k}], v[12:13] op_sel_hi:[1,0] neg_lo:[0,1] neg_hi:[0,1]")
        for k in range(2): a(f"v_pk_mul_f32 v[{8+2*k}:{9+2*k}], v[{48+2*k}:{49+2*k}], v[{48+2*k}:{49+2*k}]")
        for k in range(2, 28): a(f"v_pk_fma_f32 v[{8+2*(k%2)}:{9+2*(k%2)}], v[{48+2*k}:{49+2*k}], v[{48+2*k}:{49+2*k}], v[{8+2*(k%2)}:{9+2*(k%2)}]")
        fin(13)
        o = 14 + 2 * ps
        round_bf16(a, o, 12)
        round_bf16(a, 13, 13)
        a("v_add_f32 v13, 0x3727c5ac, v13")
        round_bf16(a, 13, 13)
        a("v_sqrt_f32 v13, v13")
        round_bf16(a, 13, 13)
        a(f"v_rcp_f32 v{o+1}, v13")
        a("v_cmp_eq_u32 vcc, 0, v4")
        a("s_and_saveexec_b64 s[14:15], vcc")
        a(f"s_mov_b32 s11, {WS_STATS:#x}")
        vm.issue('st', f"buffer_store_dwordx2 v[{o}:{o+1}], v2, s[{SRD_WS}:{SRD_WS+3}], s11 offen offset:{64*ps} sc1")
        a("s_mov_b64 exec, s[14:15]")
    a("s_waitcnt vmcnt(0)")
    h_signal("a")
    ts(1)
    ts.x(3, 1)
    ts.dump(8, 9)
    a("s_endpgm")
    a.label("L_h_pf")
    a("v_lshlrev_b32 v2, 4, v0")
    a(f"s_lshl_b32 s11, s{S_W4}, 10")
    a("v_add_u32 v2, s11, v2")
    if cfg.cpf == 1:
        a("s_getpc_b64 s[60:61]")
        a.label("L_pc")
        a(f"s_sub_u32 s60, s60, L_pc-{KNAME}")
        a("s_subb_u32 s61, s61, 0")
        a("s_lshl_b32 s11, s73, 12")
        a("v_add_u32 v3, s11, v2")
        for k in range(2):
            a(f"v_min_u32 v4, L_exit-{KNAME}-12, v3")
            a(f"global_load_dwordx4 v[24:27], v4, s[60:61]")
            a(f"v_add_u32 v3, 16384, v3")
    a("s_waitcnt lgkmcnt(0)")
    if cfg.hdelay == 1: a("s_waitcnt vmcnt(0)")
    if cfg.hdelay >= 2: a("s_barrier")
    srd(a, SRD_WS, P_WS, WS_SIZE)
    a("s_lshl_b32 s60, s72, 2")
    a(f"s_add_u32 s60, s60, s{S_W4}")
    a("s_cmp_ge_u32 s60, 98")
    a("s_cbranch_scc1 L_h_nopack1")
    a("s_mul_i32 s61, s60, 37")
    a("s_lshr_b32 s61, s61, 8")
    a("s_mul_i32 s62, s61, 7")
    a("s_sub_u32 s62, s60, s62")
    a("s_cmp_lt_i32 s62, 0")
    a("s_cselect_b32 s11, 1, 0")
    a("s_sub_u32 s61, s61, s11")
    a("s_mul_i32 s62, s61, 7")
    a("s_sub_u32 s62, s60, s62")
    a("s_bitcmp1_b32 s61, 0")
    srd_sel(a, 68, P_CIM, P_CRE, 448 * 896)
    a("v_lshrrev_b32 v3, 3, v0")
    a("v_and_b32 v4, 7, v0")
    a("v_lshrrev_b32 v5, 1, v3")
    a("v_xor_b32 v4, v4, v5")
    a("s_lshr_b32 s11, s61, 1")
    a("s_lshl_b32 s11, s11, 6")
    a("v_add_u32 v3, s11, v3")
    a("v_mul_u32_u24 v3, 896, v3")
    a("v_lshl_add_u32 v3, v4, 4, v3")
    a("v_xor_b32 v4, 64, v3")
    a(f"s_lshl_b32 s63, s{S_W4}, 13")
    a("s_lshl_b32 s12, s62, 7")
    for n in range(8):
        a(f"s_add_u32 m0, s63, {n*1024}")
        a(f"s_add_u32 s11, s12, {8*n*896}")
        a(f"buffer_load_dwordx4 v{3 + (n & 1)}, s[68:71], s11 offen lds")
    a.label("L_h_nopack1")
    h_open()
    def h_sweep():
        if cfg.hpf:
            for (ptr, nbytes, srdn) in ((P_WD, 1792 * 896, 56),):
                srd(a, srdn, ptr, nbytes)
            def sweep(name, srds, qbytes, first, count):
                n8 = -(-qbytes // (8 * 4096))
                n = 8 * n8
                a(f"s_mul_i32 s12, s73, {qbytes}")
                a(f"s_add_u32 s13, s{S_XCD}, {first}")
                a("s_and_b32 s13, s13, 7")
                a(f"s_mul_i32 s13, s13, {n8}")
                a("s_mov_b32 s14, 0")
                a.label(name)
                a("s_lshl_b32 s11, s13, 12")
                a("s_add_u32 s11, s11, s12")
                for k, sr in enumerate(srds):
                    a(f"buffer_load_dwordx4 v[{16+4*k}:{19+4*k}], v2, s[{sr}:{sr+3}], s11 offen")
                a("s_add_u32 s13, s13, 1")
                a(f"s_cmp_eq_u32 s13, {n}")
                a("s_cselect_b32 s13, 0, s13")
                a("s_add_u32 s14, s14, 1")
                a(f"s_cmp_lt_u32 s14, {n8 * count}")
                a(f"s_cbranch_scc1 {name}")
            sweep("L_h_p2", [56], 1792 * 896 // 4, 0, 1)
            ts(2)
    def h_pack():
        a("s_cmp_ge_u32 s60, 98")
        a("s_cbranch_scc1 L_h_nopack2")
        a("v_and_b32 v5, 31, v0")
        a("v_lshrrev_b32 v6, 5, v0")
        a("v_bfe_u32 v7, v0, 1, 3")
        a("v_xor_b32 v7, v7, v6")
        a("v_lshlrev_b32 v7, 4, v7")
        a("v_lshl_add_u32 v5, v5, 7, v7")
        a("v_add_u32 v5, s63, v5")
        a("v_lshlrev_b32 v6, 4, v0")
        a("s_mul_i32 s12, s61, 28")
        a("s_lshl_b32 s11, s62, 2")
        a("s_add_u32 s12, s12, s11")
        a("s_lshl_b32 s12, s12, 11")
        a(f"s_add_u32 s12, s12, {WS_CP:#x}")
        a(f"s_waitcnt vmcnt({13 if (cfg.hpf and not cfg.hord) else 0})")
        for ks in range(4):
            a(f"v_xor_b32 v7, {32*ks}, v5")
            for ct in range(2):
                d = 32 + 8 * ks + 4 * ct
                a(f"ds_read_b128 v[{d}:{d+3}], v7 offset:{4096*ct}")
        for ks in range(4):
            a(f"s_waitcnt lgkmcnt({6 - 2*ks})")
            a(f"s_add_u32 s11, s12, {2048*ks}")
            for ct in range(2):
                d = 32 + 8 * ks + 4 * ct
                a(f"buffer_store_dwordx4 v[{d}:{d+3}], v6, s[{SRD_WS}:{SRD_WS+3}], s11 offen offset:{1024*ct} sc1")
        a("s_waitcnt vmcnt(0)")
        a.label("L_h_nopack2")
        h_signal("b")
        ts(3)
        ts.x(3, 1)
    if cfg.hord: h_pack(); h_sweep()
    else: h_sweep(); h_pack()
    ts.dump(8, 9)
    a("s_endpgm")

def spin_check(a, name, load_text_list, cond_fn, sleep=1):
    lo, done = a.newlabel(name + "_spin"), a.newlabel(name + "_ok")
    a(f"s_mov_b32 s73, 0")
    a.label(lo)
    cond_fn()
    a(f"s_cbranch_scc1 {done}")
    a("s_add_u32 s73, s73, 1")
    a(f"s_cmp_ge_u32 s73, {SPIN_MAX}")
    a(f"s_cbranch_scc1 {done}")
    a(f"s_sleep {sleep}")
    for t in load_text_list: a(t)
    a("s_waitcnt vmcnt(0)")
    a(f"s_branch {lo}")
    a.label(done)
    a("s_nop 4")

def sspin(a, name, loads, cond_fn, sleep=1):
    lo, done = a.newlabel(name + "_spin"), a.newlabel(name + "_ok")
    a("s_mov_b32 s73, 0")
    a.label(lo)
    for t in loads: a(t)
    a("s_waitcnt lgkmcnt(0)")
    cond_fn()
    a(f"s_cbranch_scc1 {done}")
    a("s_add_u32 s73, s73, 1")
    a(f"s_cmp_lt_u32 s73, {SPIN_MAX}")
    if sleep: a(f"s_sleep {sleep}")
    a(f"s_cbranch_scc1 {lo}")
    a.label(done)

def flag_index(a, d, t, grp):
    a(f"s_mul_i32 s{t}, s{S_NS}, 37")
    a(f"s_lshr_b32 s{t}, s{t}, {8 if grp == 7 else 9}")
    a(f"s_mul_i32 s{t}, s{t}, {32 - grp}")
    a(f"s_add_u32 s{d}, s{t}, s{S_NS}")
    a(f"s_lshl_b32 s{d}, s{d}, 2")

def interleave(a, prim, fill, per):
    fill = list(fill)
    for p in prim:
        p()
        for _ in range(per):
            if fill: a(fill.pop(0))
    for f in fill: a(f)

def p2_rot(a, cfg, d_ffn, d_blk, d_flip):
    if not cfg.rot:
        for d in (d_ffn, d_blk, d_flip): a(f"s_mov_b32 s{d}, 0")
        return
    tab = {2: [0] * 7, 1: list(range(7)), 3: [0, 3, 0, 3, 0, 3, 0], 4: [0, 2, 5, 0, 2, 5, 0], 5: [0, 4, 2, 5, 0, 4, 2], 6: [0, 1, 0, 1, 0, 1, 0], 7: [0, 2, 0, 2, 0, 2, 0]}[cfg.rot]
    word = sum(v << (4 * k) for k, v in enumerate(tab))
    a(f"s_lshl_b32 s11, s{S_NT}, 2")
    a(f"s_lshr_b32 s13, {word:#x}, s11")
    a("s_and_b32 s13, s13, 15")
    a(f"s_and_b32 s11, s{S_SLOT}, 3")
    a("s_lshl_b32 s11, s11, 1")
    a("s_add_u32 s11, s11, s13")
    a("s_cmp_ge_u32 s11, 7")
    a("s_cselect_b32 s13, 7, 0")
    a(f"s_sub_u32 s{d_ffn}, s11, s13")
    for d in (d_blk, d_flip): a(f"s_mov_b32 s{d}, 0")

def slot(reg, n): return R[reg] + 2048 * n
SA = [slot(1, n) for n in range(6)]; SB = [slot(2, n) for n in range(6)]; SC = [slot(0, n) for n in range(6)]
WSLOT = {}
for n in range(6): WSLOT[n] = SA[n]; WSLOT[6 + n] = SB[n]
for n in range(4): WSLOT[12 + n] = SC[n]; WSLOT[16 + n] = SA[n]; WSLOT[20 + n] = SB[n]
WSLOT.update({24: SA[4], 25: SA[5], 26: SB[4], 27: SB[5]})
HTS = SC[4]
PH1, PH2, GA, FXA, SD = SC[0], SC[4], SB[0], SA[0], SC[0]

class Rec:
    def __init__(self): self.L = []
    def __call__(self, t): self.L.append(t)

def ssm_park(kc, K, KP, sQ):
    LR, LI, CR, CI, L16R, L16I, PWR, PWI, L64R, L64I, LWR, LWI, W0R = [KP + k for k in range(13)]
    vTW, vTR, vCB = KP + 16, KP + 17, KP + 18
    ssm_const_calc(kc, K, LR, LI, CR, CI)
    csq(kc, L16R, L16I, LR, LI, K)
    for _ in range(3): csq(kc, L16R, L16I, L16R, L16I, K)
    def powsel(dr, di, br, bi, bit, src):
        cmul(kc, K + 1, K + 2, dr, di, br, bi)
        kc(f"v_and_b32 v{K}, {bit}, v{src}")
        kc(f"v_cmp_ne_u32 vcc, 0, v{K}")
        kc(f"v_cndmask_b32 v{dr}, v{dr}, v{K+1}, vcc")
        kc(f"v_cndmask_b32 v{di}, v{di}, v{K+2}, vcc")
    kc(f"v_mov_b32 v{PWR}, v{CR}"); kc(f"v_mov_b32 v{PWI}, v{CI}")
    powsel(PWR, PWI, L16R, L16I, 32, 0)
    csq(kc, K + 14, K + 15, L16R, L16I, K)
    powsel(PWR, PWI, K + 14, K + 15, 16, 0)
    csq(kc, L64R, L64I, K + 14, K + 15, K)
    kc(f"v_mov_b32 v{K+10}, s{S_W4}")
    kc(f"v_mov_b32 v{LWR}, 1.0"); kc(f"v_mov_b32 v{LWI}, 0")
    powsel(LWR, LWI, L64R, L64I, 1, K + 10)
    csq(kc, K + 14, K + 15, L64R, L64I, K)
    powsel(LWR, LWI, K + 14, K + 15, 2, K + 10)
    csq(kc, K + 14, K + 15, K + 14, K + 15, K)
    kc(f"v_lshrrev_b32 v{K+10}, 4, v0")
    kc(f"v_sub_u32 v{K+10}, s{S_MT}, v{K+10}")
    kc(f"v_add_u32 v{K+11}, -5, v{K+10}")
    kc(f"v_add_u32 v{K+10}, -1, v{K+10}")
    kc(f"v_mov_b32 v{W0R}, 1.0"); kc(f"v_mov_b32 v{W0R+1}, 0")
    kc(f"v_mov_b32 v{W0R+2}, 1.0"); kc(f"v_mov_b32 v{W0R+3}, 0")
    for b in range(3):
        powsel(W0R, W0R + 1, K + 14, K + 15, 1 << b, K + 10)
        if b < 2: powsel(W0R + 2, W0R + 3, K + 14, K + 15, 1 << b, K + 11)
        if b < 2: csq(kc, K + 14, K + 15, K + 14, K + 15, K)
    kc(f"s_add_u32 s36, s{sQ}, {HTS}")
    kc(f"v_bfe_u32 v{K}, v0, 4, 1")
    kc(f"v_lshrrev_b32 v{K+1}, 5, v0")
    kc(f"v_lshl_add_u32 v{K+2}, v{K}, 1, v{K+1}")
    kc(f"v_and_b32 v{K+3}, 15, v0")
    kc(f"v_and_b32 v{vTW}, 6, v{K+3}")
    kc(f"v_lshlrev_b32 v{vTW}, 4, v{vTW}")
    kc(f"v_lshlrev_b32 v{K+4}, 5, v{K+2}")
    kc(f"v_xor_b32 v{vTW}, v{vTW}, v{K+4}")
    kc(f"v_lshl_add_u32 v{vTW}, v{K+3}, 7, v{vTW}")
    kc(f"v_add_u32 v{vTW}, s36, v{vTW}")
    kc(f"v_lshlrev_b32 v{vCB}, 2, v{K+3}")
    kc(f"v_add_u32 v{vCB}, {C_L + 512}, v{vCB}")
    kc(f"v_bfe_u32 v{K+4}, v0, 2, 2")
    kc(f"v_lshl_add_u32 v{K+5}, v{K+1}, 3, v{K+4}")
    kc(f"v_lshlrev_b32 v{vTR}, 7, v{K+5}")
    kc(f"v_lshrrev_b32 v{K+4}, 1, v{K+4}")
    kc(f"v_xor_b32 v{K+4}, v{K+4}, v0")
    kc(f"v_and_b32 v{K+4}, 1, v{K+4}")
    kc(f"v_lshl_add_u32 v{vTR}, v{K+4}, 5, v{vTR}")
    kc(f"v_lshl_add_u32 v{vTR}, v{K}, 4, v{vTR}")
    kc(f"v_bfe_u32 v{K+4}, v0, 1, 1")
    kc(f"v_lshl_add_u32 v{vTR}, v{K+4}, 3, v{vTR}")
    kc(f"v_add_u32 v{vTR}, s36, v{vTR}")
    kc(f"s_lshl_b32 s36, s{S_W4}, 9")
    kc(f"s_add_u32 s36, s36, {STATS_L}")
    kc(f"v_lshl_add_u32 v{KP+19}, v{K+2}, 7, s36")
    vStS = KP + 19
    vAg, vPr, vF = KP + 20, KP + 21, KP + 22
    kc(f"v_lshlrev_b32 v{vAg}, 3, v{K+3}")
    kc(f"v_lshrrev_b32 v{vPr}, 4, v0")
    kc(f"v_mul_u32_u24 v{vPr}, 3584, v{vPr}")
    kc(f"s_lshl_b32 s36, s{S_NS}, 7")
    kc(f"v_add3_u32 v{vPr}, v{vPr}, v{vAg}, s36")
    kc(f"v_add_u32 v{vAg}, {AGG_L}, v{vAg}")
    kc(f"s_lshl_b32 s36, s{S_MT}, 2")
    kc(f"s_add_u32 s36, s36, s{S_W4}")
    kc("s_lshl_b32 s36, s36, 10")
    flag_index(kc, 37, 38, 14)
    kc("s_add_u32 s36, s36, s37")
    kc(f"s_add_u32 s36, s36, {WS_FLAG + 512:#x}")
    kc(f"v_mov_b32 v{vF}, s36")

def gen_loader(a, cfg, ts):
    a.label("L_loader")
    a("s_setprio 3")
    vm = VM(a)
    vXe, vXo, vW, vB = 1, 2, 3, 4
    vFv, vP, vO, vPQ = 5, 6, 7, 8
    vWd, vCe, vCo, vCh = 9, 10, 11, 12
    vRf, vRh = 13, 14
    vA, vC = 24, 25
    vT = 15
    ACC, CA, RD = 27, 28, 44
    STG = 64
    CF = 144
    SACC = 80
    XRAW = CF + 64
    KP = XRAW + 8
    sGrp = [28, 29, 30, 31, 36, 37, 21]
    SP = ['', ' sc1'][cfg.spol]
    sMX, sMW, sMB, sMP = 72, 74, 75, 70
    sPerm, sSX, sSW = 68, 69, 15
    sRF = 14
    AP = ['', ' sc1', ' sc1 nt', ' sc0 sc1', ' sc0', ' nt'][cfg.apol]
    OP = ['', ' sc1', ' nt', ' sc1 nt'][cfg.opol]
    polx = " nt" if cfg.polx else ""
    polw = " nt" if cfg.polw else ""
    a(f"v_lshrrev_b32 v{vA}, 3, v0")
    a(f"v_and_b32 v{vC}, 7, v0")
    a(f"v_lshrrev_b32 v{vT+2}, 1, v{vA}")
    a(f"s_lshl_b32 s11, s{S_W4}, 4")
    a(f"v_add_u32 v{vT}, s11, v{vA}")
    a(f"v_mul_u32_u24 v{vW}, 3584, v{vT}")
    a(f"v_and_b32 v{vT+4}, 1, v{vT+2}")
    a(f"v_lshlrev_b32 v{vT+4}, 2, v{vT+4}")
    a(f"v_xor_b32 v{vT+4}, v{vC}, v{vT+4}")
    a(f"v_lshl_add_u32 v{vW}, v{vT+4}, 4, v{vW}")
    a(f"s_lshl_b32 s11, s{S_NS}, 7")
    a(f"v_add_u32 v{vW}, s11, v{vW}")
    a(f"s_lshl_b32 s11, s{S_MT}, 8")
    a(f"s_lshl_b32 s12, s{S_W4}, 6")
    a("s_add_u32 s11, s11, s12")
    a(f"v_lshrrev_b32 v{vT}, 2, v{vA}")
    a(f"v_and_b32 v{vT+1}, 3, v{vA}")
    a(f"v_lshl_add_u32 v{vT}, v{vT}, 4, v{vT+1}")
    a(f"v_add_u32 v{vT}, s11, v{vT}")
    a(f"v_mul_u32_u24 v{vXe}, 896, v{vT}")
    a(f"v_xor_b32 v{vT+3}, v{vC}, v{vT+2}")
    a(f"v_lshl_add_u32 v{vXe}, v{vT+3}, 4, v{vXe}")
    a(f"v_xor_b32 v{vXo}, 64, v{vXe}")
    a(f"s_and_b32 s12, s{S_W4}, 1")
    a(f"s_lshl_b32 s11, s{S_NS}, 4")
    a(f"s_lshl_b32 s13, s12, 3")
    a("s_add_u32 s11, s11, s13")
    a(f"v_add_u32 v{vT}, s11, v{vA}")
    a(f"v_mul_u32_u24 v{vB}, 896, v{vT}")
    a(f"v_lshl_add_u32 v{vB}, v{vT+3}, 4, v{vB}")
    a("s_lshl_b32 s13, s12, 6")
    a(f"v_xor_b32 v{vB}, s13, v{vB}")
    a(f"s_lshl_b32 s{sMX}, s{S_W4}, 13")
    a(f"s_lshl_b32 s{sMW}, s{S_W4}, 11")
    a(f"s_lshl_b32 s{sMB}, s{S_W4}, 10")
    a(f"s_mul_i32 s{sMP}, s{S_W4}, {Q}")
    perms = cfg.perms
    words = [sum(p[k] << (4 * k) for k in range(7)) for p in perms]
    ng = len(words)
    a(f"s_mov_b32 s{sPerm}, {words[0]:#x}")
    if ng > 1:
        if cfg.slab:
            a(f"s_add_u32 s11, s{S_SLOT}, s{S_XCD}")
        else:
            a(f"s_and_b32 s11, s{S_SLOT}, 3")
            a(f"s_add_u32 s11, s11, s{S_NT}")
        if ng == 3:
            a("s_mul_i32 s13, s11, 43")
            a("s_lshr_b32 s13, s13, 7")
            a("s_mul_i32 s13, s13, 3")
            a("s_sub_u32 s11, s11, s13")
        else:
            a(f"s_and_b32 s11, s11, {ng-1}")
        for g in range(1, ng):
            a(f"s_cmp_eq_u32 s11, {g}")
            a(f"s_cmov_b32 s{sPerm}, {words[g]:#x}")
    ts.x(1, 1)
    a("s_waitcnt lgkmcnt(0)")
    ts.x(1, 2)
    if cfg.tlb:
        a(f"v_mov_b32 v40, s{P_X}")
        a(f"v_mov_b32 v41, s{P_X+1}")
        for ln, p in enumerate([P_WG, P_WU, P_BRE, P_BIM, P_WD, P_CRE, P_CIM, P_WS][:cfg.tlb], 1):
            a(f"v_writelane_b32 v40, s{p}, {ln}")
            a(f"v_writelane_b32 v41, s{p+1}, {ln}")
        a(f"s_mov_b64 exec, {(1 << (cfg.tlb + 1)) - 1:#x}")
        a("global_load_dword v62, v[40:41], off")
        a("s_mov_b64 exec, -1")
    srd(a, SRD_A, P_WG, 448 * 3584)
    srd(a, SRD_X, P_X, 2048 * 896)
    srd(a, SRD_B, P_WU, 448 * 3584)
    a(f"s_cmp_ge_u32 s{S_W4}, 2")
    srd_sel(a, SRD_C, P_BIM, P_BRE, 448 * 896)

    thr = [None]
    def dma(vm, tag, voff, srdn, sbase, soff, m0base, m0off, pol=""):
        a(f"s_add_u32 m0, s{m0base}, {m0off}")
        a(f"s_add_u32 s11, s{sbase}, {soff}")
        if thr[0] is not None and len(vm.q) > thr[0]:
            a(f"s_waitcnt vmcnt({thr[0]})")
            vm.q = vm.q[-thr[0]:]
        vm.issue(tag, f"buffer_load_dwordx4 v{voff}, s[{srdn}:{srdn+3}], s11 offen{pol} lds")
    def issue_ops(s):
        r = R[s % 3]
        ops = []
        def pre():
            a(f"s_bfe_u32 s{sSX}, s{sPerm}, {(4 << 16) | (4 * s):#x}")
            a(f"s_mul_i32 s{sSW}, s{sSX}, {64*3584}")
            a(f"s_lshl_b32 s{sSX}, s{sSX}, 7")
        def mk(*args): return lambda: dma(vm, ('st', s), *args)
        L = []
        for i in range(2): L.append(mk(vW, SRD_A, sSW, i * 8 * 3584, sMW, r + OFF_WG + i * 1024, polw))
        for j in range(4): L.append(mk(vXo if j & 1 else vXe, SRD_X, sSX, (32 * (j >> 2) + 4 * (j & 3)) * 896, sMX, r + j * 1024, polx))
        for i in range(2): L.append(mk(vW, SRD_B, sSW, i * 8 * 3584, sMW, r + OFF_WU + i * 1024, polw))
        for j in range(4, 8): L.append(mk(vXo if j & 1 else vXe, SRD_X, sSX, (32 * (j >> 2) + 4 * (j & 3)) * 896, sMX, r + j * 1024, polx))
        L.append(mk(vB, SRD_C, sSX, 0, sMB, r + OFF_BB, polw))
        first = L[0]
        L[0] = lambda: (pre(), first())
        return L
    SRD_WD, SRD_CC, sBlk, sFlip, P_DSK2 = 32, 24, 16, 17, 38
    def w_ops(ps):
        L = []
        for p in ps:
            for n in range(2):
                def op(p=p, n=n):
                    if 12 <= p < 22:
                        d = STG + (p - 12) * 8 + 4 * n
                        a(f"s_add_u32 s11, s{sGrp[p//4]}, {((p % 4) * 16 + 8 * n) * 896}")
                        vm.issue(('w', p), f"buffer_load_dwordx4 v[{d}:{d+3}], v{vWd}, s[{SRD_WD}:{SRD_WD+3}], s11 offen")
                    else:
                        dma(vm, ('w', p), vWd, SRD_WD, sGrp[p//4], ((p % 4) * 16 + 8 * n) * 896, sMP, WSLOT[p] + n * 1024)
                L.append(op)
        return L
    sCB = [68, 69, 15]
    sCF, sCH = 16, 17
    def cfrag(p, lc): return CF + 8 * p + 4 * lc
    def c_ops(b):
        L = []
        for p in (range(4 * b, 4 * b + 4) if b < 3 else (12, 13)):
            for lc in range(2):
                def op(p=p, lc=lc):
                    d = cfrag(p, lc)
                    sb, so = (sCF, 2048 * p) if p < 12 else (sCH, 2048 * (p - 12))
                    if cfg.crot and p < 12: sb, so = sCB[p // 4], 2048 * (p % 4)
                    a(f"s_add_u32 s11, s{sb}, {so}")
                    vm.issue(('c', b), f"buffer_load_dwordx4 v[{d}:{d+3}], v{(vCe, vCo)[lc]}, s[{SRD_WS}:{SRD_WS+3}], s11 offen sc1")
                L.append(op)
        return L
    def w_write(ps):
        vm.wait(('w', ps[-1]))
        base = WSLOT[ps[0]]
        a(f"v_add_u32 v{vT+4}, {base}, v{vPQ}")
        for p in ps:
            for n in range(2):
                d = STG + (p - 12) * 8 + 4 * n
                a(f"ds_write_b128 v{vT+4}, v[{d}:{d+3}] offset:{WSLOT[p] - base + 1024*n}")
    def colsum_reads(s):
        r = R[s % 3]
        a(f"s_add_u32 s11, s{sMW}, {r + OFF_WG}")
        a(f"v_add_u32 v{vT}, s11, v{vP}")
        a(f"s_add_u32 s11, s{sMB}, {r + OFF_BB}")
        a(f"v_add_u32 v{vT+1}, s11, v{vP}")
        a(f"ds_read_b128 v[{RD}:{RD+3}], v{vT}")
        a(f"ds_read_b128 v[{RD+4}:{RD+7}], v{vT} offset:1024")
        a(f"ds_read_b128 v[{RD+8}:{RD+11}], v{vT} offset:8192")
        a(f"ds_read_b128 v[{RD+12}:{RD+15}], v{vT} offset:9216")
        a(f"ds_read_b128 v[{RD+16}:{RD+19}], v{vT+1}")
    def colsum_ops():
        L = ["s_waitcnt lgkmcnt(0)"]
        for n in range(4):
            for d in range(4):
                w = RD + 4 * n + d
                ac = CA + (n >> 1) * 8 + 2 * d
                L.append(f"v_lshlrev_b32 v{vT+2}, 16, v{w}")
                L.append(f"v_and_b32 v{vT+3}, s71, v{w}")
                L.append(f"v_add_f32 v{ac}, v{ac}, v{vT+2}")
                L.append(f"v_add_f32 v{ac+1}, v{ac+1}, v{vT+3}")
        for d in range(4):
            w = RD + 16 + d
            L.append(f"v_lshlrev_b32 v{vT+2}, 16, v{w}")
            L.append(f"v_and_b32 v{vT+3}, s71, v{w}")
            L.append(f"v_add_f32 v{vT+2}, v{vT+2}, v{vT+3}")
            L.append(f"v_add_f32 v{ACC}, v{ACC}, v{vT+2}")
        return L

    stage_ops = {}
    cdone = set()
    def tok_ops(toks):
        L = []
        for t in toks:
            if t[0] == 's':
                st = int(t[1])
                if st not in stage_ops: stage_ops[st] = issue_ops(st)
                lo, hi = (0, 13) if ':' not in t else map(int, t.split(':')[1].split('-'))
                L += stage_ops[st][lo:hi]
            elif t[0] == 'w': L += w_ops([int(t[1:])])
            elif t[0] == 'c':
                lo, hi = (0, 8) if ':' not in t else map(int, t.split(':')[1].split('-'))
                L += c_ops(int(t[1]))[lo:hi]
                cdone.add(int(t[1]))
            else: L.append(lambda t=t: special(t))
        return L
    def run_tokens(toks):
        for o in tok_ops(toks): o()
    def special(t):
        if True:
            if t == 'put':
                vm.wait('stats')
                a(f"s_lshl_b32 s11, s{S_W4}, 9")
                a(f"s_add_u32 s11, s11, {STATS_L}")
                a(f"v_lshl_add_u32 v{vT+4}, v0, 3, s11")
                a(f"ds_write_b64 v{vT+4}, v[20:21]")
                a(f"v_lshlrev_b32 v{vT+4}, 3, v0")
                a(f"v_add_u32 v{vT+4}, {ST2_L}, v{vT+4}")
                a(f"ds_write_b64 v{vT+4}, v[22:23]")
            elif t == 'e':
                a(f"s_add_u32 s12, s41, {16*896}")
                vm.issue('e', f"buffer_load_dwordx4 v[{XRAW}:{XRAW+3}], v20, s[{SRD_X}:{SRD_X+3}], s41 offen")
                vm.issue('e', f"buffer_load_dwordx4 v[{XRAW+4}:{XRAW+7}], v20, s[{SRD_X}:{SRD_X+3}], s12 offen")
                vm.issue('e', f"global_load_ushort v{KP+23}, v21, s[{P_DSK2}:{P_DSK2+1}]")
            elif t == 'm':
                a(f"v_lshlrev_b32 v{vP}, 4, v0")
                a("s_lshl_b32 s12, s2, 2")
                a(f"s_add_u32 s12, s12, s{S_W4}")
                a("s_lshl_b32 s12, s12, 10")
                a(f"s_add_u32 s12, s12, {192*3584}")
                vm.issue('m', f"buffer_load_dwordx4 v[140:143], v{vP}, s[{SRD_A}:{SRD_A+3}], s12 offen")
                vm.issue('m', f"buffer_load_dwordx4 v[140:143], v{vP}, s[{SRD_B}:{SRD_B+3}], s12 offen")
                a(f"s_and_b32 s12, s{S_W4}, 1")
                a("s_lshl_b32 s11, s2, 1")
                a("s_add_u32 s12, s12, s11")
                a("s_lshl_b32 s12, s12, 10")
                vm.issue('m', f"buffer_load_dwordx4 v[140:143], v{vP}, s[{SRD_C}:{SRD_C+3}], s12 offen")
            elif t == 'k':
                a("s_waitcnt lgkmcnt(0)")
            elif t == 'init':
                a(f"v_mov_b32 v26, 0")
                vm.issue('init', f"global_load_dword v5, v26, s[{P_DBG}:{P_DBG+1}] sc1")
            elif t == 'fetch':
                vm.wait('init')
                def cond():
                    a(f"v_readfirstlane_b32 s11, v5")
                    a(f"s_cmp_ge_u32 s11, {INIT_N}")
                spin_check(a, "L_init", [f"global_load_dword v5, v26, s[{P_DBG}:{P_DBG+1}] sc1"], cond, 8)
                if cfg.ts == 1 and cfg.tsset == 3: a(f"s_add_u32 s{TS0+18}, s73, 1")
                if cfg.crot:
                    a(f"s_and_b32 s11, s{S_SLOT}, 3")
                    a("s_lshl_b32 s11, s11, 1")
                    a("s_lshr_b32 s12, 0x924, s11")
                    for b in range(3):
                        a(f"s_bfe_u32 s11, s12, {(2 << 16) | (2 * b):#x}")
                        a("s_lshl_b32 s11, s11, 13")
                        a(f"s_add_u32 s{sCB[b]}, s11, s{sCF}")
                a(f"s_lshl_b32 s11, s{S_MT}, 8")
                a(f"s_lshl_b32 s12, s{S_W4}, 6")
                a("s_add_u32 s11, s11, s12")
                a(f"v_add_lshl_u32 v5, v0, s11, 3")
                a(f"s_lshl_b32 s12, s{S_M64}, 6")
                a(f"v_add_lshl_u32 v26, v0, s12, 3")
                a(f"s_mov_b32 s11, {WS_STATS:#x}")
                vm.issue('stats', f"buffer_load_dwordx2 v[20:21], v5, s[{SRD_WS}:{SRD_WS+3}], s11 offen sc1")
                vm.issue('stats', f"buffer_load_dwordx2 v[22:23], v26, s[{SRD_WS}:{SRD_WS+3}], s11 offen sc1")
            else: raise ValueError(t)
    win = cfg.win
    run_tokens([f"s0:0-{cfg.s0a}"])
    if cfg.s0a == 13:
        ts(1)
        ts.x(1, 6)
        run_tokens(win.get(-1, []))
        a("s_setprio 0")
    a(f"s_and_b32 s12, s{S_W4}, 1")
    a(f"v_lshlrev_b32 v{vP}, 4, v0")
    a(f"v_add_u32 v{vPQ}, s{sMP}, v{vP}")
    a(f"s_mul_i32 s14, s{S_W4}, 448")
    a(f"v_add_u32 v{vT}, s14, v{vA}")
    a(f"v_mul_u32_u24 v{vWd}, 896, v{vT}")
    a(f"v_lshl_add_u32 v{vWd}, v{vT+4}, 4, v{vWd}")
    a(f"s_lshl_b32 s14, s{S_NT}, 7")
    a(f"v_add_u32 v{vWd}, s14, v{vWd}")
    a(f"v_and_b32 v{vT+1}, 3, v0")
    a("s_mov_b32 s71, 0xffff0000")
    for k in range(17): a(f"v_mov_b32 v{ACC+k}, 0")
    srd(a, SRD_WS, P_WS, WS_SIZE)
    a(f"s_mov_b64 s[{P_DSK2}:{P_DSK2+1}], s[{P_DSK}:{P_DSK+1}]")
    srd(a, SRD_WD, P_WD, 1792 * 896)
    p2_rot(a, cfg, sRF, sBlk, sFlip)
    a(f"s_lshl_b32 s11, s{S_M64}, 1")
    a("s_add_u32 s40, s11, s12")
    a("s_lshl_b32 s12, s40, 5")
    a(f"v_lshrrev_b32 v{vT}, 2, v0")
    a(f"v_add_u32 v{vT}, s12, v{vT}")
    a(f"v_mul_u32_u24 v{vT}, 896, v{vT}")
    a(f"v_lshl_add_u32 v20, v{vT+1}, 4, v{vT}")
    a(f"v_lshrrev_b32 v{vT+2}, 5, v0")
    a(f"v_lshl_add_u32 v{vT}, v{vT+2}, 4, s12")
    a(f"s_lshr_b32 s13, s{S_W4}, 1")
    a("s_lshl_b32 s12, s13, 5")
    a(f"s_lshl_b32 s11, s{S_NT}, 6")
    a("s_add_u32 s11, s11, s12")
    a("s_lshl_b32 s41, s11, 1")
    a(f"v_and_b32 v{vT+3}, 31, v0")
    a(f"v_add_u32 v{vT+1}, s11, v{vT+3}")
    a(f"v_mul_u32_u24 v{vT}, 448, v{vT}")
    a(f"v_add_lshl_u32 v{vO}, v{vT}, v{vT+1}, 2")
    a(f"v_lshlrev_b32 v21, 1, v{vT+1}")
    a("s_lshl_b32 s12, s13, 10")
    a(f"v_add_u32 v{vCe}, s12, v{vP}")
    a(f"v_xor_b32 v{vCo}, 1024, v{vCe}")
    a(f"s_lshl_b32 s11, s{S_NT}, 1")
    a("s_add_u32 s11, s11, s13")
    a(f"s_mul_i32 s11, s11, {28*2048}")
    a(f"s_add_u32 s11, s11, {WS_CP:#x}")
    a(f"s_and_b32 s12, s{S_W4}, 1")
    a(f"s_lshl_b32 s{sCF}, s12, 15")
    a(f"s_add_u32 s{sCF}, s{sCF}, s11")
    a(f"s_lshl_b32 s{sCH}, s12, 12")
    a(f"s_add_u32 s{sCH}, s{sCH}, s11")
    a(f"s_add_u32 s{sCH}, s{sCH}, {12*2048}")
    a(f"v_bfe_u32 v{vT}, v0, 4, 1")
    a(f"v_lshlrev_b32 v{vT+1}, 2, v{vT}")
    a(f"v_xor_b32 v{vC}, v{vC}, v{vT+1}")
    a(f"v_lshlrev_b32 v{vC}, 5, v{vC}")
    a(f"v_lshl_add_u32 v{vC}, v{vT}, 9, v{vC}")
    a(f"v_lshl_add_u32 v{vC}, v{vT+2}, 8, v{vC}")
    a(f"s_add_u32 s11, s{sMB}, {CP_L}")
    a(f"v_add_u32 v{vC}, s11, v{vC}")
    a(f"s_lshl_b32 s11, s{S_W4}, 5")
    a(f"s_add_u32 s11, s11, {C_L + 512}")
    a(f"v_lshl_add_u32 v{vA}, v{vA}, 2, s11")
    ts.x(1, 8)
    LR, LI, CR, CI, L16R, L16I, PWR, PWI, L64R, L64I, LWR, LWI, W0R = [KP + k for k in range(13)]
    vTW, vTR, vCB, vStS, vAg, vPr, vF = [KP + k for k in range(16, 23)]
    a(f"s_lshl_b32 s21, s{S_NS}, 7")
    a(f"s_mul_i32 s22, s{S_MT}, 3584")
    a("s_add_u32 s22, s22, s21")
    a(f"s_add_u32 s22, s22, {WS_AGG - AGG_L:#x}")
    a(f"s_mov_b32 s23, {WS_AGG:#x}")
    a(f"s_mov_b32 s20, {WS_AGG + 4*3584:#x}")
    a(f"s_lshl_b32 s18, s{S_M64}, 10")
    a(f"s_and_b32 s11, s{S_W4}, 1")
    a("s_lshl_b32 s11, s11, 7")
    a("s_add_u32 s18, s18, s11")
    a(f"s_add_u32 s18, s18, {WS_FLAG + 512:#x}")
    a(f"s_lshl_b32 s11, s{S_MT}, 2")
    a(f"s_add_u32 s11, s11, s{S_W4}")
    a(f"s_mul_i32 s19, s11, {2*RT_BYTES}")
    a(f"s_lshl_b32 s11, s{S_NS}, 10")
    a("s_add_u32 s19, s19, s11")
    a(f"s_add_u32 s19, s19, {56*1024}")
    for g in range(7):
        a(f"s_add_u32 s12, s{sRF}, {g}")
        a("s_cmp_ge_u32 s12, 7")
        a("s_cselect_b32 s13, 7, 0")
        a("s_sub_u32 s12, s12, s13")
        a(f"s_mul_i32 s{sGrp[g]}, s12, {64*896}")
    a(f"s_add_u32 s11, s{sMX}, {R[2]}")
    a(f"v_add_u32 v{vT+4}, s11, v{vP}")
    kparts = {}
    if cfg.s0a < 13:
        run_tokens([f"s0:{cfg.s0a}-13"])
        ts(1)
        ts.x(1, 6)
        run_tokens(win.get(-1, []))
    a(f"s_setprio {cfg.wprio}")
    for s in range(7):
        vm.wait(('st', s))
        ts.x(2, 1 + s)
        a("s_barrier")
        ts.x(3, 1 + s)
        if s == 0: ts(2)
        if s == 0:
            for k in range(6): a(f"ds_read_b128 v[{KP+4*k}:{KP+4*k+3}], v{vT+4} offset:{1024*k}")
        if s == 6:
            QQ = 28
            for p in range(8): a(f"ds_read_b32 v{QQ+p}, v{vT+1} offset:{512*p}")
            a("s_waitcnt lgkmcnt(0)")
            for p in range(4): a(f"v_add_f32 v{QQ+p}, v{QQ+p}, v{QQ+4+p}")
            a(f"v_add_f32 v{QQ}, v{QQ}, v{QQ+2}")
            a(f"v_add_f32 v{QQ+1}, v{QQ+1}, v{QQ+3}")
            a(f"v_add_f32 v{QQ}, v{QQ}, v{QQ+1}")
            a(f"ds_write_b32 v{vT}, v{QQ}")
            npre = win[6].index("put") + 1 if "put" in win[6] else 2
            pre = tok_ops(win[6][:npre])
            for o in pre: o()
            a("s_waitcnt lgkmcnt(0)")
            a("s_barrier")
            a("s_setprio 0")
            run_tokens(win[6][npre:])
            continue
        segs = [[None, []]]
        for t in win.get(s, []):
            if t.startswith("cs"): segs.append([int(t[2:]), []])
            else: segs[-1][1].append(t)
        for cs, toks in segs:
            fl = []
            if cs is not None:
                vm.wait(('st', cs))
                colsum_reads(cs)
                fl = colsum_ops()
            if cs == 6:
                b = ACC
                for k in range(8): fl.append(f"v_permlane32_swap_b32 v{CA+k}, v{CA+8+k}")
                fl.append(f"v_add_f32_dpp v{b}, v{b}, v{b} quad_perm:[1,0,3,2] row_mask:0xf bank_mask:0xf")
                for k in range(8): fl.append(f"v_add_f32 v{CA+k}, v{CA+k}, v{CA+8+k}")
                fl.append(f"v_add_f32_dpp v{b}, v{b}, v{b} quad_perm:[2,3,0,1] row_mask:0xf bank_mask:0xf")
                for k in range(8): fl.append(f"v_add_f32_dpp v{CA+k}, v{CA+k}, v{CA+k} row_ror:8 row_mask:0xf bank_mask:0xf")
                fl.append(f"v_add_f32_dpp v{b}, v{b}, v{b} row_half_mirror row_mask:0xf bank_mask:0xf")
                fl.append(f"ds_write_b128 v{vC}, v[{CA}:{CA+3}]")
                fl.append(f"ds_write_b128 v{vC}, v[{CA+4}:{CA+7}] offset:16")
                fl.append(f"ds_write_b32 v{vA}, v{b}")
            ops = tok_ops(toks)
            per = max(1, -(-len(fl) // max(1, len(ops))))
            interleave(a, ops, fl, per)
        if s == 5:
            a(f"s_and_b32 s12, s{S_W4}, 1")
            a("s_lshl_b32 s12, s12, 8")
            a(f"v_lshl_add_u32 v{vT}, v0, 2, s12")
            a(f"v_add_u32 v{vT+1}, {CP_L}, v{vT}")
            a(f"v_add_u32 v{vT}, {C_L}, v{vT}")
            a("s_waitcnt lgkmcnt(0)")
            a("s_setprio 3")
    ts.x(2, 8)
    a("s_barrier")
    ts(3)
    ts.x(3, 8)
    a(f"v_add_u32 v{vT+2}, {SD}, v{vPQ}")
    vm.wait(('w', 11), "lgkmcnt(0)")
    a("s_barrier")
    X, Y, ST = 32, 48, CF
    HR, HI, T1, T2, CBR, CBI, G0, G1, QR, QI = 20, 21, 22, 23, 24, 25, 26, 28, 30, 31
    for k in range(8): a(f"ds_read_b128 v[{X+4*k}:{X+4*k+3}], v{vT+2} offset:{1024*k}")
    a(f"ds_read_b32 v{CBR}, v{vCB}")
    a(f"ds_read_b32 v{CBI}, v{vCB} offset:64")
    for k in range(8): a(f"ds_read_b128 v[{ST+4*k}:{ST+4*k+3}], v{vStS} offset:{16*k}")
    a(f"s_setprio {cfg.eprio}")
    a(f"v_lshrrev_b32 v1, 4, v0")
    a(f"v_sub_u32 v1, s{S_MT}, v1")
    a(f"v_cmp_le_i32 s[56:57], 1, v1")
    a(f"v_cmp_le_i32 s[58:59], 5, v1")
    a(f"v_lshlrev_b32 v5, 16, v{KP+23}")
    a(f"v_mov_b32 v3, v{vF}")
    vF = 3
    a("s_waitcnt lgkmcnt(10)")
    for r in range(16): a(f"v_permlane16_swap_b32 v{X+r}, v{Y+r}")
    a("s_waitcnt lgkmcnt(0)")
    side = {}
    for r in range(16):
        if r in side: side[r]()
        m, rs = ST + 2 * r, ST + 2 * r + 1
        a(f"v_fma_f32 v{X+r}, -v{m}, v{CBR}, v{X+r}")
        a(f"v_fma_f32 v{Y+r}, -v{m}, v{CBI}, v{Y+r}")
        a(f"v_mul_f32 v{X+r}, v{X+r}, v{rs}")
        a(f"v_mul_f32 v{Y+r}, v{Y+r}, v{rs}")
        if r >= 1:
            pr, pi = (X, Y) if r == 1 else (HR, HI)
            a(f"v_fma_f32 v{T1}, -v{LI}, v{pi}, v{X+r}")
            a(f"v_fma_f32 v{T2}, v{LI}, v{pr}, v{Y+r}")
            a(f"v_fma_f32 v{HR}, v{LR}, v{pr}, v{T1}")
            a(f"v_fma_f32 v{HI}, v{LR}, v{pi}, v{T2}")
    z = CF
    a(f"v_mov_b32 v{z}, v{HR}"); a(f"v_mov_b32 v{z+1}, v{HI}")
    csq(a, z + 8, z + 9, L16R, L16I, z + 10)
    a(f"v_permlane32_swap_b32 v{HR}, v{z}")
    a(f"v_permlane32_swap_b32 v{HI}, v{z+1}")
    a(f"v_fma_f32 v{z}, -v{L16I}, v{HI}, v{z}")
    a(f"v_fma_f32 v{z+1}, v{L16I}, v{HR}, v{z+1}")
    a(f"v_fmac_f32 v{z}, v{L16R}, v{HR}")
    a(f"v_fmac_f32 v{z+1}, v{L16R}, v{HI}")
    a(f"v_mov_b32 v{z+2}, v{z}"); a(f"v_mov_b32 v{z+3}, v{z+1}")
    a(f"s_lshl_b32 s11, s{S_W4}, 7")
    a(f"v_add_u32 v{z+5}, s11, v{vAg}")
    a(f"v_permlane16_swap_b32 v{z}, v{z+2}")
    a(f"v_permlane16_swap_b32 v{z+1}, v{z+3}")
    a(f"v_fma_f32 v{z+2}, -v{z+9}, v{z+1}, v{z+2}")
    a(f"v_fma_f32 v{z+3}, v{z+9}, v{z}, v{z+3}")
    a(f"v_fmac_f32 v{z+2}, v{z+8}, v{z}")
    a(f"v_fmac_f32 v{z+3}, v{z+8}, v{z+1}")
    a(f"ds_write_b64 v{z+5}, v[{z+2}:{z+3}]")
    a("s_waitcnt lgkmcnt(0)")
    ts.x(2, 9)
    a(f"s_setprio {cfg.lprio}")
    a("s_barrier")
    ts(4)
    E = CF + 16
    for i in range(4): a(f"ds_read_b64 v[{E+2+2*i}:{E+3+2*i}], v{vAg} offset:{128*i}")
    a(f"v_mov_b32 v{E}, 0")
    a(f"v_mov_b32 v{E+1}, 0")
    a(f"v_and_b32 v{z+4}, 16, v0")
    a(f"v_cmp_ne_u32 s[12:13], 0, v{z+4}")
    for i in range(1, 4):
        e, p = E + 2 + 2 * i, E + 2 * i
        a(f"s_waitcnt lgkmcnt({3 - i})")
        a(f"v_fma_f32 v{e}, -v{L64I}, v{p+1}, v{e}")
        a(f"v_fma_f32 v{e+1}, v{L64I}, v{p}, v{e+1}")
        a(f"v_fmac_f32 v{e}, v{L64R}, v{p}")
        a(f"v_fmac_f32 v{e+1}, v{L64R}, v{p+1}")
    a(f"s_cmp_lg_u32 s{S_W4}, 0")
    a("s_cbranch_scc1 L_l_nopub")
    e = E + 8
    a(f"v_cmp_eq_u32 vcc, -1, v{e}")
    a(f"v_mov_b32 v{T1}, 0x7fc00000")
    a(f"v_cndmask_b32 v{e}, v{e}, v{T1}, vcc")
    a("s_mov_b64 exec, 0xffff")
    a(f"buffer_store_dwordx2 v[{e}:{e+1}], v{vAg}, s[{SRD_WS}:{SRD_WS+3}], s22 offen sc1")
    a("s_mov_b64 exec, -1")
    ts(5)
    a.label("L_l_nopub")
    a(f"v_cmp_lt_u32 vcc, 31, v0")
    a(f"v_cndmask_b32 v{z}, 0, v{z}, s[12:13]")
    a(f"v_cndmask_b32 v{z+1}, 0, v{z+1}, s[12:13]")
    a(f"v_fma_f32 v{HR}, -v{L16I}, v{z+1}, v{HR}")
    a(f"v_fma_f32 v{HI}, v{L16I}, v{z}, v{HI}")
    a(f"v_fmac_f32 v{HR}, v{L16R}, v{z}")
    a(f"v_fmac_f32 v{HI}, v{L16R}, v{z+1}")
    a(f"v_cndmask_b32 v{z}, v{z}, v{HR}, vcc")
    a(f"v_cndmask_b32 v{z+1}, v{z+1}, v{HI}, vcc")
    cmul(a, HR, HI, z, z + 1, CR, CI)
    a(f"s_bitcmp1_b32 s{S_W4}, 0")
    a("s_cselect_b64 vcc, -1, 0")
    a(f"v_cndmask_b32 v{QR}, v{E}, v{E+2}, vcc")
    a(f"v_cndmask_b32 v{QI}, v{E+1}, v{E+3}, vcc")
    a(f"v_cndmask_b32 v{T1}, v{E+4}, v{E+6}, vcc")
    a(f"v_cndmask_b32 v{T2}, v{E+5}, v{E+7}, vcc")
    a(f"s_bitcmp1_b32 s{S_W4}, 1")
    a("s_cselect_b64 vcc, -1, 0")
    a(f"v_cndmask_b32 v{QR}, v{QR}, v{T1}, vcc")
    a(f"v_cndmask_b32 v{QI}, v{QI}, v{T2}, vcc")
    ts.x(2, 10)
    thr[0] = cfg.thr
    lds = [f"buffer_load_dwordx2 v[{G0}:{G0+1}], v{vPr}, s[{SRD_WS}:{SRD_WS+3}], s23 offen sc1",
           f"buffer_load_dwordx2 v[{G1}:{G1+1}], v{vPr}, s[{SRD_WS}:{SRD_WS+3}], s20 offen sc1"]
    up = Rec()
    for r in range(16):
        up(f"v_mul_f32 v{T1}, v{CI}, v{Y+r}")
        up(f"v_mul_f32 v{T2}, v{CI}, v{X+r}")
        up(f"v_fma_f32 v{X+r}, v{CR}, v{X+r}, -v{T1}")
        up(f"v_fma_f32 v{Y+r}, v{CR}, v{Y+r}, v{T2}")
    vRd, vOne = 4, 2
    a(f"s_lshl_b32 s11, s{S_W4}, 2")
    a(f"s_add_u32 s11, s11, {CNT_L + 16}")
    a(f"v_mov_b32 v{vRd}, s11")
    a(f"v_mov_b32 v{vOne}, 1")
    thr[0] = None
    co = w_ops(range(22, 28)) + (c_ops(0) if cfg.c0early else [])
    interleave(a, co[:cfg.c1], up.L, 4)
    if cfg.agpos == 0:
        for t in lds: vm.issue('ag', t)
    w_write([12, 13, 14, 15])
    a(f"ds_write_b32 v{vRd}, v{vOne}")
    XV, STT, DS = 64, 80, 5
    TT = SACC + 32
    vHW = 1
    a(f"v_add_u32 v{vHW}, {HTS}, v{vPQ}")
    a(f"ds_write_b128 v{vHW}, v[{XRAW}:{XRAW+3}]")
    a(f"ds_write_b128 v{vHW}, v[{XRAW+4}:{XRAW+7}] offset:1024")
    a(f"v_lshrrev_b32 v{vT+3}, 5, v0")
    a(f"v_lshlrev_b32 v{vT+2}, 10, v{vT+3}")
    a(f"v_and_b32 v{vT}, 31, v0")
    a(f"v_lshl_add_u32 v{vT+2}, v{vT}, 1, v{vT+2}")
    a(f"s_add_u32 s11, s{sMP}, {HTS}")
    a(f"v_add_u32 v{vT+2}, s11, v{vT+2}")
    for r in range(16): a(f"ds_read_u16 v{XV+r}, v{vT+2} offset:{64*r}")
    if cfg.agpos == 1:
        for t in lds: vm.issue('ag', t)
    w_write([16, 17])
    def wrest():
        w_write([18, 19])
        w_write([20, 21])
        a(f"v_mov_b32 v{T1}, 2")
        a(f"ds_write_b32 v{vRd}, v{T1}")
    if not cfg.wl: wrest()
    co = co[cfg.c1:]
    ts(8)
    vm.wait('ag')
    def cond():
        a(f"v_cmp_eq_u32 vcc, -1, v{G0}")
        a("s_and_b64 s[48:49], vcc, s[56:57]")
        a(f"v_cmp_eq_u32 vcc, -1, v{G1}")
        a("s_and_b64 s[50:51], vcc, s[58:59]")
        a("s_or_b64 s[48:49], s[48:49], s[50:51]")
        a("s_cmp_eq_u64 s[48:49], 0")
    spin_check(a, "L_agg", lds, cond, 2)
    ts(6)
    SR, SI = CBR, CBI
    cmul(a, SR, SI, G0, G0 + 1, W0R, W0R + 1)
    cmul(a, T1, T2, G1, G1 + 1, W0R + 2, W0R + 3)
    a(f"v_cndmask_b32 v{SR}, 0, v{SR}, s[56:57]")
    a(f"v_cndmask_b32 v{SI}, 0, v{SI}, s[56:57]")
    a(f"v_cndmask_b32 v{T1}, 0, v{T1}, s[58:59]")
    a(f"v_cndmask_b32 v{T2}, 0, v{T2}, s[58:59]")
    a(f"v_add_f32 v{SR}, v{SR}, v{T1}")
    a(f"v_add_f32 v{SI}, v{SI}, v{T2}")
    for sw in ("v_permlane32_swap_b32", "v_permlane16_swap_b32"):
        a(f"v_mov_b32 v{T1}, v{SR}")
        a(f"v_mov_b32 v{T2}, v{SI}")
        a(f"{sw} v{SR}, v{T1}")
        a(f"{sw} v{SI}, v{T2}")
        a(f"v_add_f32 v{SR}, v{SR}, v{T1}")
        a(f"v_add_f32 v{SI}, v{SI}, v{T2}")
    a(f"v_fmac_f32 v{QR}, v{LWR}, v{SR}")
    a(f"v_fmac_f32 v{QI}, v{LWR}, v{SI}")
    a(f"v_fma_f32 v{QR}, -v{LWI}, v{SI}, v{QR}")
    a(f"v_fmac_f32 v{QI}, v{LWI}, v{SR}")
    a(f"v_fmac_f32 v{HR}, v{PWR}, v{QR}")
    a(f"v_fmac_f32 v{HI}, v{PWR}, v{QI}")
    a(f"v_fma_f32 v{HR}, -v{PWI}, v{QI}, v{HR}")
    a(f"v_fmac_f32 v{HI}, v{PWI}, v{QR}")
    pr, pi = HR, HI
    PK, HF = 96, 80
    rest = co[:cfg.c2]
    for r in range(16):
        if rest: rest.pop(0)()
        a(f"v_fma_f32 v{X+r}, -v{LI}, v{pi}, v{X+r}")
        a(f"v_fma_f32 v{Y+r}, v{LI}, v{pr}, v{Y+r}")
        a(f"v_fmac_f32 v{X+r}, v{LR}, v{pr}")
        a(f"v_fmac_f32 v{Y+r}, v{LR}, v{pi}")
        pr, pi = X + r, Y + r
    for k in range(8):
        a(f"v_cvt_pk_bf16_f32 v{PK+k}, v{X+2*k}, v{X+2*k+1}")
    a(f"ds_write_b128 v{vTW}, v[{PK}:{PK+3}]")
    a(f"ds_write_b128 v{vTW}, v[{PK+4}:{PK+7}] offset:16")
    for k in range(8):
        a(f"v_cvt_pk_bf16_f32 v{PK+8+k}, -v{Y+2*k}, -v{Y+2*k+1}")
    a(f"ds_write_b128 v{vTW}, v[{PK+8}:{PK+11}] offset:2048")
    a(f"ds_write_b128 v{vTW}, v[{PK+12}:{PK+15}] offset:2064")
    for q in range(2):
        for part in range(2):
            for j in range(2):
                d = HF + 8 * q + 4 * part + 2 * j
                a(f"ds_read_b64_tr_b16 v[{d}:{d+1}], v{vTR} offset:{(part*16 + 4*j)*128 + 64*(q ^ j)}")
    assert not rest
    a("s_waitcnt lgkmcnt(0)")
    for q in range(2):
        for part in range(2):
            d = HF + 8 * q + 4 * part
            a(f"s_add_u32 s11, s19, {q*RT_BYTES + part*HALF_BYTES}")
            vm.issue('hs', f"buffer_store_dwordx4 v[{d}:{d+3}], v{vP}, s[{SRD_WS}:{SRD_WS+3}], s11 offen{SP}")
    if cfg.wl: wrest()
    def flag2():
        vm.wait('hs')
        a("s_mov_b64 exec, 1")
        vm.issue('f', f"buffer_store_dword v{vOne}, v{vF}, s[{SRD_WS}:{SRD_WS+3}], 0 offen sc1")
        a("s_mov_b64 exec, -1")
        ts(7)
    if cfg.f2b == 0: flag2()
    for o in co[cfg.c2:] + (c_ops(2) if not cfg.clate else []): o()
    if cfg.f2b == 1: flag2()
    a(f"s_and_b32 s11, s{S_W4}, 1")
    a("s_lshl_b32 s11, s11, 8")
    a(f"s_add_u32 s11, s11, {ST2_L}")
    a(f"v_lshl_add_u32 v{vT+3}, v{vT+3}, 7, s11")
    STT = 32
    for k in range(8): a(f"ds_read_b128 v[{STT+4*k}:{STT+4*k+3}], v{vT+3} offset:{16*k}")
    for r in range(16): a(f"v_lshlrev_b32 v{XV+r}, 16, v{XV+r}")
    a("s_waitcnt lgkmcnt(0)")
    a("s_setprio 0")
    def rnd_pair(r0, r1):
        a(f"v_cvt_pk_bf16_f32 v{r1}, v{r0}, v{r1}"); a(f"v_lshlrev_b32 v{r0}, 16, v{r1}"); a(f"v_and_b32 v{r1}, s71, v{r1}")
    for r in range(16): a(f"v_sub_f32 v{TT+r}, v{XV+r}, v{STT+2*r}")
    for k in range(8): rnd_pair(TT + 2 * k, TT + 2 * k + 1)
    a(f"v_mov_b32 v{T2}, 3")
    vm.wait(('w', 27))
    a(f"ds_write_b32 v{vRd}, v{T2}")
    for r in range(16): a(f"v_mul_f32 v{TT+r}, v{TT+r}, v{STT+2*r+1}")
    for k in range(8): rnd_pair(TT + 2 * k, TT + 2 * k + 1)
    for r in range(16): a(f"v_mul_f32 v{TT+r}, v{TT+r}, v{DS}")
    for k in range(8): rnd_pair(TT + 2 * k, TT + 2 * k + 1)
    def poll(name, off):
        sspin(a, name, [f"s_load_dwordx16 s[20:35], s[{P_WS}:{P_WS+1}], s18 glc"], pcond, cfg.psleep)
    if True:
        def pcond():
            for k in range(0, 12, 4): a(f"s_and_b64 s[{20+k}:{21+k}], s[{20+k}:{21+k}], s[{22+k}:{23+k}]")
            a("s_and_b64 s[20:21], s[20:21], s[24:25]")
            a("s_and_b64 s[28:29], s[28:29], s[32:33]")
            a("s_and_b64 s[20:21], s[20:21], s[28:29]")
            a("s_and_b32 s20, s20, s21")
            a("s_cmp_eq_u32 s20, 1")
    a(f"s_mul_i32 s57, s40, {RT_BYTES}")
    a("s_xor_b32 s11, s40, 1")
    a(f"s_mul_i32 s56, s11, {RT_BYTES}")
    a(f"s_lshr_b32 s11, s{S_W4}, 1")
    a(f"s_mul_i32 s11, s11, {HALF_BYTES}")
    a(f"s_add_u32 s11, s11, {56*1024}")
    a("s_add_u32 s56, s56, s11")
    a("s_add_u32 s57, s57, s11")
    a(f"s_and_b32 s12, s{S_W4}, 1")
    a("s_lshl_b32 s13, s12, 14")
    for b in range(3):
        if cfg.crot:
            a(f"s_sub_u32 s11, s{sCB[b]}, s{sCF}")
            a("s_lshr_b32 s11, s11, 1")
            a(f"s_add_u32 s{52+b}, s13, s11")
        else: a(f"s_add_u32 s{52+b}, s13, {b*4096}")
    a("s_lshl_b32 s12, s12, 11")
    a(f"s_add_u32 s55, s12, {12*1024}")
    srd(a, 60, P_OUT, 2048 * 1792)
    vW1, vW2, vCn, vCv = 1, 2, 9, 4
    vR = [3, 12, 13, 14]
    a(f"v_add_u32 v{vW1}, {PH1}, v{vPQ}")
    a(f"v_add_u32 v{vW2}, {PH2}, v{vPQ}")
    a(f"v_mov_b32 v{vCn}, {CNT_L}")
    for (reg, xr, base) in ((vR[0], 1, PH1), (vR[1], 3, PH1 + 4096), (vR[2], 2, PH2)):
        a(f"s_xor_b32 s11, s{S_W4}, {xr}")
        a(f"s_mul_i32 s11, s11, {Q}")
        a(f"s_add_u32 s11, s11, {base}")
        a(f"v_add_u32 v{reg}, s11, v{vP}")
    a(f"v_add_u32 v{vR[3]}, {GA}, v{vPQ}")
    ts.x(2, 11)
    ts.x(7, 11)
    AR = list(range(16, 64, 4))
    NA = len(AR)
    PO = [4, 5, 6, 7, 12, 13, 0, 1, 2, 3, 8, 9, 10, 11]
    def aload(n):
        lr, p = n // 14, PO[n % 14]
        if p % 4 == 0: a(f"s_add_u32 s58, s{56+lr}, s{52 + p//4}")
        d = AR[n % NA]
        vm.issue(('a', n), f"buffer_load_dwordx4 v[{d}:{d+3}], v{vP}, s[{SRD_WS}:{SRD_WS+3}], s58 offen offset:{(p%4)*1024}{AP}")
    def cnt_wait(name, off):
        a("s_mov_b32 s73, 0")
        a.label(name)
        a("s_waitcnt lgkmcnt(0)")
        a(f"v_readfirstlane_b32 s11, v{vCv}")
        a("s_cmp_ge_u32 s11, 4")
        a(f"s_cbranch_scc1 {name}ok")
        a("s_add_u32 s73, s73, 1")
        a(f"s_cmp_ge_u32 s73, {SPIN_MAX}")
        a(f"s_cbranch_scc1 {name}ok")
        a("s_sleep 1")
        a(f"ds_read_b32 v{vCv}, v{vCn} offset:{off}")
        a(f"s_branch {name}")
        a.label(name + "ok")
        a("s_nop 7")
    assert cfg.clate == 2 and cdone == {1, 3}
    if cfg.gate == 0: poll("L_ps", 128)
    if cfg.gate < 2:
        a(f"ds_read_b32 v{vCv}, v{vCn} offset:4")
        cnt_wait("L_l_c0", 4)
    if cfg.sprio: a(f"s_setprio {cfg.sprio}")
    cc = c_ops(0) + c_ops(2)
    for o in cc[:cfg.c0n]: o()
    if cfg.gate != 0: poll("L_ps", 128)
    ts(9)
    ts.x(7, 1)
    for n in range(6): aload(n)
    for o in cc[cfg.c0n:8]: o()
    for n in range(6, 10): aload(n)
    for o in cc[max(8, cfg.c0n):]: o()
    for n in range(10, NA): aload(n)
    a("s_setprio 0")
    ts.x(7, 2)
    for n in range(28):
        lr, p = n // 14, PO[n % 14]
        vm.wait(('a', n))
        assert ('c', min(p // 4, 3)) not in vm.q
        if n in (0, 7, 14, 21): ts.x(7, 3 + n // 7)
        d = AR[n % NA]
        for lc in (1, 0):
            acc = SACC + 32 * lr + 16 * lc
            c = "0" if (n % 14 == 0 and not (lr == 1 and lc == 0)) else f"v[{acc}:{acc+15}]"
            f = cfrag(p, lc)
            a(f"v_mfma_f32_32x32x16_bf16 v[{acc}:{acc+15}], v[{d}:{d+3}], v[{f}:{f+3}], {c}")
        if n + NA < 28: aload(n + NA)
        if cfg.gate == 2 and n == 14: a(f"ds_read_b32 v{vCv}, v{vCn} offset:4")
        if cfg.gate == 2 and n == 15: cnt_wait("L_l_c0", 4)
        if 16 <= n < 24:
            k = n - 16
            a(f"ds_write_b128 v{vW1}, v[{SACC+4*k}:{SACC+4*k+3}] offset:{1024*k}")
    ts(10)
    ts.x(7, 7)
    ts.x(7, 8)
    for k in range(4):
        a(f"ds_write_b128 v{vW2}, v[{SACC+48+4*k}:{SACC+48+4*k+3}] offset:{1024*k}")
    a("s_waitcnt lgkmcnt(0)")
    ts.x(7, 9)
    a("s_barrier")
    ts(11)
    ts.x(7, 10)
    RX = CF
    for k in range(4):
        for w in range(4):
            a(f"ds_read_b128 v[{RX+16*w+4*k}:{RX+16*w+4*k+3}], v{vR[w]} offset:{1024*k}")
    for k in range(4):
        a(f"s_waitcnt lgkmcnt({12 - 4*k})")
        for r in range(4 * k, 4 * k + 4):
            a(f"v_add_f32 v{TT+r}, v{TT+r}, v{RX+r}")
            a(f"v_add_f32 v{RX+16+r}, v{RX+16+r}, v{RX+32+r}")
        for r in range(4 * k, 4 * k + 4):
            a(f"v_add_f32 v{TT+r}, v{TT+r}, v{RX+16+r}")
        for r in range(4 * k, 4 * k + 4):
            a(f"v_fma_f32 v{XV+r}, v{TT+r}, v{RX+48+r}, v{XV+r}")
            if r % 2 == 0: a(f"s_mov_b32 s11, {r*1792}")
            a(f"buffer_store_dword v{XV+r}, v{vO}, s[60:63], s11 offen offset:{(r%2)*1792}{OP}")
    if cfg.ts:
        a("s_waitcnt vmcnt(0)")
        ts(12)
    if cfg.padto:
        a.label("L_pad")
        a("s_memrealtime s[98:99]")
        a("s_waitcnt lgkmcnt(0)")
        a("s_sub_u32 s98, s98, s100")
        a(f"s_cmp_lt_u32 s98, {cfg.padto}")
        a("s_cbranch_scc1 L_pad")
    ts.dump(16, 17, 1)
    a("s_endpgm")

def gen_consumer(a, cfg, ts):
    a.label("L_consumer")
    SP = ["", " sc1"][cfg.spol]
    AP = ['', ' sc1', ' sc1 nt', ' sc0 sc1', ' sc0', ' nt'][cfg.apol]
    vm = VM(a)
    XA = [1, 2, 3, 4]; BA = [5, 6, 7, 8]; WA = [9, 10]
    vL16, vStF, vCL, vF, vFl, vSo, vCn, vRd, vWB, vPQ, vOne, MM = 11, 12, 13, 14, 15, 16, 17, 18, 19, 20, 21, 22
    FS = [40, 68]
    ACC = 96
    def G(ft, q): return ACC + 16 * (2 * ft + q)
    def U(ft, q): return ACC + 64 + 16 * (2 * ft + q)
    def S(q): return ACC + 128 + 16 * q
    vI, vH, t0, t1, t2 = 24, 25, 26, 27, 28
    a(f"v_and_b32 v{vI}, 31, v0")
    a(f"v_lshrrev_b32 v{vH}, 5, v0")
    a(f"v_bfe_u32 v{t0}, v0, 1, 3")
    a(f"v_xor_b32 v{t0}, v{t0}, v{vH}")
    a(f"v_lshlrev_b32 v{t0}, 4, v{t0}")
    a(f"v_lshl_add_u32 v{t0}, v{vI}, 7, v{t0}")
    a(f"s_lshl_b32 s11, s{S_W4}, 13")
    for ks in range(4):
        a(f"v_xor_b32 v{t1}, {32*ks}, v{t0}")
        a(f"v_add_u32 v{XA[ks]}, s11, v{t1}")
        a(f"v_add_u32 v{BA[ks]}, {OFF_BB}, v{t1}")
    a(f"v_bfe_u32 v{t0}, v0, 2, 2")
    a(f"v_lshlrev_b32 v{t1}, 7, v{t0}")
    a(f"v_lshrrev_b32 v{t0}, 1, v{t0}")
    a(f"v_lshl_add_u32 v{t1}, v{t0}, 6, v{t1}")
    a(f"v_bfe_u32 v{t0}, v0, 4, 1")
    a(f"v_lshl_add_u32 v{t1}, v{t0}, 5, v{t1}")
    a(f"v_and_b32 v{t2}, 3, v0")
    a(f"v_lshl_add_u32 v{t1}, v{t2}, 3, v{t1}")
    a(f"v_lshl_add_u32 v{WA[0]}, v{vH}, 10, v{t1}")
    a(f"v_add_u32 v{WA[0]}, {OFF_WG}, v{WA[0]}")
    a(f"v_xor_b32 v{WA[1]}, 64, v{WA[0]}")
    a(f"s_mul_i32 s62, s{S_W4}, {Q}")
    a(f"s_lshr_b32 s59, s{S_W4}, 1")
    a(f"s_and_b32 s63, s{S_W4}, 1")
    a("s_lshl_b32 s11, s59, 6")
    a(f"v_lshl_add_u32 v{vWB}, v{vH}, 9, v{t1}")
    a(f"v_xor_b32 v{vWB}, s11, v{vWB}")
    a(f"v_add_u32 v{vWB}, s62, v{vWB}")
    a("s_waitcnt lgkmcnt(0)")
    a(f"s_lshl_b32 s11, s{S_NS}, 5")
    a(f"s_load_dwordx8 s[32:39], s[{P_LRE}:{P_LRE+1}], s11")
    a(f"s_load_dwordx8 s[64:71], s[{P_LDT}:{P_LDT+1}], s11")
    a(f"s_load_dwordx8 s[24:31], s[{P_LIM}:{P_LIM+1}], s11")
    for k in range(4 if cfg.zpeel else 160): a(f"v_mov_b32 v{ACC+k}, 0")
    a(f"v_mov_b32 v{vCn}, {CNT_L}")
    a(f"ds_write_b128 v{vCn}, v[{ACC}:{ACC+3}]")
    a(f"ds_write_b128 v{vCn}, v[{ACC}:{ACC+3}] offset:16")
    a(f"v_bfe_u32 v{t0}, v0, 2, 1")
    a(f"v_lshl_add_u32 v{t0}, v{t0}, 4, v{t2}")
    a(f"v_bfe_u32 v{t1}, v0, 3, 2")
    a(f"v_lshl_add_u32 v{t0}, v{t1}, 2, v{t0}")
    a(f"s_lshl_b32 s11, s{S_W4}, 9")
    a(f"s_add_u32 s11, s11, {STATS_L}")
    a(f"v_lshl_add_u32 v{vStF}, v{t0}, 3, s11")
    a(f"v_lshlrev_b32 v{vL16}, 4, v0")
    a(f"v_add_u32 v{vPQ}, s62, v{vL16}")
    a(f"v_lshlrev_b32 v{vCL}, 4, v{vH}")
    a(f"v_add_u32 v{vCL}, {C_L}, v{vCL}")
    a(f"v_mov_b32 v{vOne}, 1")
    a(f"s_lshl_b32 s11, s{S_W4}, 2")
    a(f"s_add_u32 s11, s11, {CNT_L + 16}")
    a(f"v_mov_b32 v{vRd}, s11")
    a("s_lshl_b32 s11, s63, 8")
    a(f"s_add_u32 s11, s11, {ST2_L}")
    a(f"v_lshl_add_u32 v{vSo}, v{vH}, 7, s11")
    a(f"s_lshl_b32 s13, s{S_MT}, 2")
    a(f"s_add_u32 s13, s13, s{S_W4}")
    a(f"s_mul_i32 s56, s13, {2*RT_BYTES}")
    a(f"s_cmp_ge_u32 s{S_NS}, 14")
    a(f"s_cselect_b32 s11, {HALF_BYTES - 56*1024}, 0")
    a(f"s_lshl_b32 s12, s{S_NS}, 12")
    a("s_add_u32 s11, s11, s12")
    a("s_add_u32 s56, s56, s11")
    a(f"s_add_u32 s57, s56, {RT_BYTES}")
    a("s_lshl_b32 s11, s13, 10")
    flag_index(a, 12, 14, 7)
    a("s_add_u32 s11, s11, s12")
    a(f"s_add_u32 s11, s11, {WS_FLAG:#x}")
    a(f"v_mov_b32 v{vF}, s11")
    a(f"s_lshl_b32 s55, s{S_M64}, 10")
    a(f"s_add_u32 s55, s55, {WS_FLAG:#x}")
    a(f"s_lshl_b32 s11, s{S_W4}, 7")
    a("s_add_u32 s55, s55, s11")
    a(f"s_mul_i32 s12, s59, {HALF_BYTES}")
    a(f"s_mul_i32 s13, s63, {28*1024}")
    a("s_add_u32 s12, s12, s13")
    a(f"s_lshl_b32 s11, s{S_M64}, 1")
    a("s_add_u32 s11, s11, s63")
    a(f"s_mul_i32 s52, s11, {RT_BYTES}")
    a("s_add_u32 s52, s52, s12")
    a("s_xor_b32 s11, s11, 1")
    a(f"s_mul_i32 s51, s11, {RT_BYTES}")
    a("s_add_u32 s51, s51, s12")
    p2_rot(a, cfg, 60, 61, 58)
    a("s_mov_b32 s12, 0x00030003")
    a("s_mov_b32 s13, 0x00030003")
    a("s_waitcnt lgkmcnt(0)")
    K, KP = 40, 64
    for k in range(8):
        a(f"s_lshl_b64 exec, s[12:13], {2*k}")
        for m, sb in enumerate((32, 24, 64)): a(f"v_mov_b32 v{K+m}, s{sb+k}")
    a("s_mov_b64 exec, -1")
    a(f"v_and_b32 v{K+3}, 1, v0")
    a(f"v_lshlrev_b32 v{K+3}, 4, v{K+3}")
    for m in range(3): a(f"v_lshrrev_b32 v{K+m}, v{K+3}, v{K+m}")
    srd(a, SRD_WS, P_WS, WS_SIZE)
    ssm_park(a, K, KP, 62)
    a(f"v_mov_b32 v{KP+23}, 0")
    a(f"s_lshl_b32 s11, s{S_W4}, 13")
    a(f"s_add_u32 s11, s11, {R[2]}")
    a(f"v_add_u32 v{K}, s11, v{vL16}")
    for k in range(6): a(f"ds_write_b128 v{K}, v[{KP+4*k}:{KP+4*k+3}] offset:{1024*k}")
    a("s_waitcnt lgkmcnt(0)")
    ts(1)

    def reads(fs, ks):
        f = FS[fs]
        L = []
        L.append(f"ds_read_b128 v[{f}:{f+3}], v{XA[ks]}")
        L.append(f"ds_read_b128 v[{f+24}:{f+27}], v{BA[ks]}")
        L.append(f"ds_read_b128 v[{f+4}:{f+7}], v{XA[ks]} offset:4096")
        for gu in range(2):
            for ft in range(2):
                for j in range(2):
                    d = f + 8 + 8 * gu + 4 * ft + 2 * j
                    L.append(f"ds_read_b64_tr_b16 v[{d}:{d+1}], v{WA[ft]} offset:{gu*8192 + ks*2048 + j*512}")
        return L
    def mfmas(fs):
        f = FS[fs]
        X = [f, f + 4]; Bf = f + 24
        L = []
        for q in range(2):
            L.append(f"v_mfma_f32_32x32x16_bf16 v[{S(q)}:{S(q)+15}], v[{X[q]}:{X[q]+3}], v[{Bf}:{Bf+3}], v[{S(q)}:{S(q)+15}]")
        for gu in range(2):
            for ft in range(2):
                w = f + 8 + 8 * gu + 4 * ft
                for q in range(2):
                    d = (G, U)[gu](ft, q)
                    L.append(f"v_mfma_f32_32x32x16_bf16 v[{d}:{d+15}], v[{w}:{w+3}], v[{X[q]}:{X[q]+3}], v[{d}:{d+15}]")
        return L
    a("s_setprio 2")
    a("s_mov_b32 s72, 0")
    a("s_mov_b32 s74, 0")
    a("s_barrier")
    ts(2)
    for t in reads(0, 0): a(t)
    need = {0: 9, 1: 8, 2: 6, 4: 4, 6: 2, 8: 0}
    if cfg.zpeel:
        Rd = reads(1, 1)
        issued = 0
        for i, m in enumerate(mfmas(0)):
            if i in need: a(f"s_waitcnt lgkmcnt({min(15, need[i] + issued)})")
            a(m[:m.rindex(", v[")] + ", 0")
            for _ in range(2 if i >= cfg.rdstart else 0):
                if Rd: a(Rd.pop(0)); issued += 1
        a("s_branch L_c_k1")
    a.label("L_c_loop")
    for ks in range(4):
        if ks == 1: a.label("L_c_k1")
        fs = ks & 1
        M = mfmas(fs)
        if ks < 3:
            Rd = reads(1 - fs, ks + 1)
            issued = 0
            for i, m in enumerate(M):
                if i in need: a(f"s_waitcnt lgkmcnt({min(15, need[i] + issued)})")
                a(m)
                for _ in range(2 if i >= cfg.rdstart else 0):
                    if Rd: a(Rd.pop(0)); issued += 1
        else:
            Rd = reads(1 - fs, 0)
            a("s_waitcnt lgkmcnt(9)")
            a(M[0])
            a("s_add_u32 s74, s74, 1")
            a("s_cmp_eq_u32 s74, 3")
            a("s_mov_b32 s75, 53248")
            a(f"s_cmov_b32 s75, {(-106496) & 0xffffffff:#x}")
            a("s_cselect_b32 s74, 0, s74")
            for v in XA + BA[:1]: a(f"v_add_u32 v{v}, s75, v{v}")
            a("s_waitcnt lgkmcnt(8)")
            a(M[1])
            for v in BA[1:] + WA: a(f"v_add_u32 v{v}, s75, v{v}")
            a("s_add_u32 s72, s72, 1")
            a("s_cmp_eq_u32 s72, 6")
            a("s_waitcnt lgkmcnt(0)")
            a(M[2])
            a("s_barrier")
            hist = list(a.hist)
            a("s_cbranch_scc1 L_c_last")
            for m in M[3:]:
                for _ in range(2):
                    if Rd: a(Rd.pop(0))
                a(m)
            a("s_branch L_c_loop")
            a.label("L_c_last")
            a.hist = hist
            Mtail = M[3:]
    lq = []
    def ds_issue(tag, t):
        a(t)
        if t.startswith("ds_"): lq.append(tag)
    def ds_wait(tag):
        idx = max((i for i, t in enumerate(lq) if t == tag), default=None)
        if idx is None: return None
        n = len(lq) - 1 - idx
        del lq[:idx + 1]
        return f"lgkmcnt({min(n, 15)})"
    def dwait(tag):
        w = ds_wait(tag)
        if w: a(f"s_waitcnt {w}")
    UB = [24, 40, 56]
    def ureads(u):
        b, ks = UB[u % 3], u % 4
        L = [f"ds_read_b128 v[{b}:{b+3}], v{XA[ks]}"]
        if u < 8:
            ft = u // 4
            for gu in range(2):
                for j in range(2):
                    d = b + 8 + 4 * gu + 2 * j
                    L.append(f"ds_read_b64_tr_b16 v[{d}:{d+1}], v{WA[ft]} offset:{gu*8192 + ks*2048 + j*512}")
        else:
            L.append(f"ds_read_b128 v[{b+8}:{b+11}], v{BA[ks]}")
        L.append(f"ds_read_b128 v[{b+4}:{b+7}], v{XA[ks]} offset:4096")
        return [(u, t) for t in L]
    def umfma(u):
        b = UB[u % 3]
        L = []
        for q in range(2):
            x = b + 4 * q
            if u < 8:
                for gu in range(2):
                    d = (G, U)[gu](u // 4, q); w = b + 8 + 4 * gu
                    L.append(f"v_mfma_f32_32x32x16_bf16 v[{d}:{d+15}], v[{w}:{w+3}], v[{x}:{x+3}], v[{d}:{d+15}]")
            else:
                L.append(f"v_mfma_f32_32x32x16_bf16 v[{S(q)}:{S(q)+15}], v[{x}:{x+3}], v[{b+8}:{b+11}], v[{S(q)}:{S(q)+15}]")
        return L
    Rd = ureads(0) + ureads(1)
    for m in Mtail:
        for _ in range(2):
            if Rd: ds_issue(*Rd.pop(0))
        a(m)
    CH = 72
    def chalf(p):
        for gu in range(2):
            for k in range(2):
                ds_issue(('c', p), f"ds_read_b128 v[{CH+8*gu+4*k}:{CH+8*gu+4*k+3}], v{vCL} offset:{256*gu + 32*(2*p+k)}")
    def hstore(ft, q, p):
        g = G(ft, q)
        vm.issue('h', f"buffer_store_dwordx4 v[{g+4*p}:{g+4*p+3}], v{vL16}, s[{SRD_WS}:{SRD_WS+3}], s{56+q} offen offset:{(2*ft+p)*1024}{SP}")
    ep = [lambda: dwait(('c', 0)), f"v_xor_b32 v{MM}, 0x80000000, v{MM}", f"v_xor_b32 v{MM+1}, 0x80000000, v{MM+1}"]
    for p in range(2):
        if p: ep.append(lambda: dwait(('c', 1)))
        for q in range(2):
            g, u = G(0, q) + 8 * p, U(0, q) + 8 * p
            for k in range(8): ep.append(f"v_fmac_f32 v{g+k}, v{MM+q}, v{CH+k}")
            for k in range(8): ep.append(f"v_fmac_f32 v{u+k}, v{MM+q}, v{CH+8+k}")
            if q == 1 and p == 0: ep.append(lambda: chalf(1))
            for k in range(8): ep.append(f"v_max_f32 v{g+k}, 0, v{g+k}")
            for k in range(8): ep.append(f"v_mul_f32 v{u+k}, v{u+k}, v{g+k}")
            for k in range(4): ep.append(f"v_cvt_pk_bf16_f32 v{G(0,q)+4*p+k}, v{u+2*k}, v{u+2*k+1}")
            ep.append(lambda q=q, p=p: hstore(0, q, p))
    def fill(n):
        while n > 0 and ep:
            t = ep.pop(0)
            if callable(t): t()
            else: a(t)
            n -= 1
    def cread(tag, dst, off):
        for k in range(4): ds_issue(tag, f"ds_read_b128 v[{dst+4*k}:{dst+4*k+3}], v{vCL} offset:{off + 32*k}")
    for u in range(12):
        dwait(u)
        if u == 11:
            a("s_barrier")
        Rd = ureads(u + 2) if u + 2 < 12 else []
        for i, m in enumerate(umfma(u)):
            a(m)
            for _ in range(2):
                if Rd: ds_issue(*Rd.pop(0))
            if u > 4 or (u == 4 and i >= 1): fill(cfg.fper - 1 if u < 10 else cfg.fper)
        if u == cfg.c2u:
            a("s_barrier")
            ds_issue(('c', 0), f"ds_read_b32 v{MM}, v{vStF}")
            ds_issue(('c', 0), f"ds_read_b32 v{MM+1}, v{vStF} offset:256")
            chalf(0)
        if u == 9: cread('cg', UB[0], 128)
        if u == 10: cread('cu', UB[1], 384)
    ts(3)
    fill(1000)
    dump = [f"ds_write_b128 v{vPQ}, v[{S(0)+4*k}:{S(0)+4*k+3}] offset:{SD + 1024*k}" for k in range(8)]
    WB = {0: [1, 2], 1: [3, 4], 2: [5, 6]}
    for rg in range(3):
        a(f"v_add_u32 v{WB[rg][0]}, {R[rg]}, v{vWB}")
        a(f"v_xor_b32 v{WB[rg][1]}, 64, v{WB[rg][0]}")
    dwait('cu')
    cg, cu = UB[0], UB[1]
    for q in range(2):
        g, u = G(1, q), U(1, q)
        sel = f"op_sel:[{q},0,0] op_sel_hi:[{q},1,1]"
        for p in range(2):
            kr = range(4 * p, 4 * p + 4)
            for k in kr:
                a(f"v_pk_fma_f32 v[{g+2*k}:{g+2*k+1}], v[{MM}:{MM+1}], v[{cg+2*k}:{cg+2*k+1}], v[{g+2*k}:{g+2*k+1}] {sel}")
                if dump: a(dump.pop(0))
            for k in kr:
                a(f"v_pk_fma_f32 v[{u+2*k}:{u+2*k+1}], v[{MM}:{MM+1}], v[{cu+2*k}:{cu+2*k+1}], v[{u+2*k}:{u+2*k+1}] {sel}")
                a(f"v_max_f32 v{g+2*k}, 0, v{g+2*k}")
                a(f"v_max_f32 v{g+2*k+1}, 0, v{g+2*k+1}")
            for k in kr:
                a(f"v_pk_mul_f32 v[{u+2*k}:{u+2*k+1}], v[{u+2*k}:{u+2*k+1}], v[{g+2*k}:{g+2*k+1}]")
            for k in kr:
                a(f"v_cvt_pk_bf16_f32 v{g+k}, v{u+2*k}, v{u+2*k+1}")
            if q == 0 and p == 1:
                a("s_waitcnt lgkmcnt(0)")
                a("s_barrier")
            hstore(1, q, p)
    del lq[:]
    ts(4)
    BR, NB = 160, 12
    def breads(p):
        sl = WSLOT[p]
        rg = max(k for k in range(3) if R[k] <= sl)
        L = []
        for lc in range(2):
            for jj in range(2):
                d = BR + 8 * (p % NB) + 4 * lc + 2 * jj
                L.append(f"ds_read_b64_tr_b16 v[{d}:{d+1}], v{WB[rg][lc]} offset:{sl - R[rg] + jj*1024}")
        return L
    for p in range(NB):
        for t in breads(p): a(t)
    def flag1():
        vm.wait('h')
        a("s_setprio 3")
        a("s_mov_b64 exec, 1")
        vm.issue('f', f"buffer_store_dword v{vOne}, v{vF}, s[{SRD_WS}:{SRD_WS+3}], 0 offen sc1")
        a("s_mov_b64 exec, -1")
        ts(6)
    if cfg.fpre: flag1()
    a("s_waitcnt lgkmcnt(0)")
    a("s_barrier")
    ts(5)
    if not cfg.fpre: flag1()
    AF = 96
    AR = list(range(24, 96, 4))
    NA = len(AR)
    def aload(n):
        p, lr = n // 2, n % 2
        if n % 8 == 0:
            a(f"s_lshl_b32 s11, s60, 12")
            a(f"s_add_u32 s54, s11, s52")
            a(f"s_add_u32 s53, s11, s51")
            a(f"s_add_u32 s60, s60, 1")
            a(f"s_cmp_eq_u32 s60, 7")
            a(f"s_cselect_b32 s60, 0, s60")
        d = AR[n % NA]
        vm.issue(('a', n), f"buffer_load_dwordx4 v[{d}:{d+3}], v{vL16}, s[{SRD_WS}:{SRD_WS+3}], s{54 - lr} offen offset:{(p%4)*1024}{AP}")
    def cond():
        a("s_and_b64 s[16:17], s[16:17], s[18:19]")
        a("s_and_b64 s[16:17], s[16:17], s[20:21]")
        a("s_and_b32 s16, s16, s17")
        a("s_and_b32 s16, s16, s22")
        a("s_cmp_eq_u32 s16, 1")
    sspin(a, "L_pf", [f"s_load_dwordx8 s[16:23], s[{P_WS}:{P_WS+1}], s55 glc"], cond, cfg.fsleep)
    a("s_setprio 2")
    ts(7)
    for n in range(cfg.a0): aload(n)
    nxt = [cfg.a0]
    ts(8)
    def lds_spin(name, vaddr, off, val):
        a("s_mov_b32 s73, 0")
        a.label(name)
        a("s_waitcnt lgkmcnt(0)")
        a("v_readfirstlane_b32 s11, v8")
        a(f"s_cmp_ge_u32 s11, {val}")
        a(f"s_cbranch_scc1 {name}ok")
        a("s_add_u32 s73, s73, 1")
        a(f"s_cmp_ge_u32 s73, {SPIN_MAX}")
        a(f"s_cbranch_scc1 {name}ok")
        a("s_sleep 1")
        a(f"ds_read_b32 v8, v{vaddr} offset:{off}")
        a(f"s_branch {name}")
        a.label(name + "ok")
        del lq[:]
    for p in range(28):
        f = BR + 8 * (p % NB)
        pn = p + cfg.bd
        for lr in range(2):
            n = 2 * p + lr
            w = ds_wait(p) if lr == 0 else None
            vm.wait(('a', n), w or "")
            if n == 0: ts(9)
            if n in (0, 7, 17, 25, 35): ts.x(6, {0: 7, 7: 8, 17: 9, 25: 10, 35: 11}[n])
            if lr == 0 and pn in (12, 16, 22): ds_issue('r', f"ds_read_b32 v8, v{vRd}")
            d = AR[n % NA]
            for lc in range(2):
                acc = AF + 32 * lr + 16 * lc
                c = "0" if p == 0 else f"v[{acc}:{acc+15}]"
                a(f"v_mfma_f32_32x32x16_bf16 v[{acc}:{acc+15}], v[{d}:{d+3}], v[{f+4*lc}:{f+4*lc+3}], {c}")
            for _ in range(2):
                if nxt[0] < 56 and nxt[0] <= n + NA:
                    aload(nxt[0]); nxt[0] += 1
        if pn in (12, 16, 22): lds_spin(f"L_c_r{pn}", vRd, 0, {12: 1, 16: 2, 22: 3}[pn])
        if p == cfg.ksig:
            assert pn > 15
            w = ds_wait(15)
            if w: a(f"s_waitcnt {w}")
            a("s_mov_b64 exec, 1")
            ds_issue('c', f"ds_add_u32 v{vCn}, v{vOne} offset:4")
            a("s_mov_b64 exec, -1")
        if NB <= pn < 28:
            for t in breads(pn): ds_issue(pn, t)
        if p == 24:
            STT = BR + 32
            for k in range(8): ds_issue('st', f"ds_read_b128 v[{STT+4*k}:{STT+4*k+3}], v{vSo} offset:{16*k}")
        if p == 26:
            for x in range(1, 4):
                a(f"s_xor_b32 s11, s{S_W4}, {x}")
                a(f"s_mul_i32 s11, s11, {Q}")
                a(f"s_add_u32 s11, s11, {FXA + (x-1)*4096}")
                a(f"v_add_u32 v{x}, s11, v{vL16}")
            a(f"v_add_u32 v4, {GA}, v{vPQ}")
            a(f"v_add_u32 v5, {FXA}, v{vPQ}")
        if p % 4 == 3: ts.x(4, 1 + p // 4)
    ts(11)
    ts.x(7, 1)
    for x in (2, 1, 3):
        src = AF + 32 * (x & 1) + 16 * (x >> 1)
        for k in range(4):
            a(f"ds_write_b128 v5, v[{src+4*k}:{src+4*k+3}] offset:{(x-1)*4096 + 1024*k}")
    a("s_waitcnt lgkmcnt(12)")
    for r in range(16): a(f"v_mul_f32 v{STT+2*r}, v{STT+2*r+1}, v{STT+2*r+1}")
    a(f"s_mov_b32 s13, {LOG2E ^ 0x80000000:#x}")
    ts.x(7, 2)
    a("s_waitcnt lgkmcnt(0)")
    ts.x(7, 3)
    a("s_mov_b64 exec, 1")
    a(f"ds_add_u32 v{vCn}, v{vOne}")
    a("s_mov_b64 exec, -1")
    a(f"ds_read_b32 v8, v{vCn}")
    lds_spin("L_c_cnt", vCn, 0, 4)
    ts.x(7, 4)
    O, RX, EX = AF, 24, 72
    for k in range(4):
        for x in range(1, 4):
            a(f"ds_read_b128 v[{RX+16*(x-1)+4*k}:{RX+16*(x-1)+4*k+3}], v{x} offset:{1024*k}")
    for k in range(4):
        rr = range(4 * k, 4 * k + 4)
        a(f"s_waitcnt lgkmcnt({9 - 3*k})")
        for r in rr: a(f"v_add_f32 v{O+r}, v{O+r}, v{RX+r}")
        for r in rr: a(f"v_add_f32 v{RX+16+r}, v{RX+16+r}, v{RX+32+r}")
        for r in rr: a(f"v_add_f32 v{O+r}, v{O+r}, v{RX+16+r}")
        for r in rr: a(f"v_mul_f32 v{O+r}, v{O+r}, v{STT+2*r}")
        for r in rr: a(f"v_mul_f32 v{EX+r}, s13, v{O+r}")
        for r in rr: a(f"v_exp_f32 v{EX+r}, v{EX+r}")
    ts.x(7, 5)
    for k in range(4):
        rr = range(4 * k, 4 * k + 4)
        for r in rr: a(f"v_add_f32 v{EX+r}, 1.0, v{EX+r}")
        for r in rr: a(f"v_rcp_f32 v{EX+r}, v{EX+r}")
        for r in rr: a(f"v_mul_f32 v{O+r}, v{O+r}, v{EX+r}")
        a(f"ds_write_b128 v4, v[{O+4*k}:{O+4*k+3}] offset:{1024*k}")
    a("s_waitcnt lgkmcnt(0)")
    ts(12)
    a("s_barrier")
    ts.dump(24, 25, 0)
    a("s_endpgm")

HEADER = """; Fused S5-SSM + ReGLU block, one launch: 224 main workgroups (4 MFMA waves + 4 loader waves) + 32 helper workgroups.
; @launch grid=(256,1,1) block=(512,1,1) lds=163840
.amdgcn_target "amdgcn-amd-amdhsa--gfx950"
.text
.globl {k}
.p2align 8
.type {k},@function
{k}:
"""
FOOTER = """.section .rodata,"a"
.p2align 6
.amdhsa_kernel {k}
  .amdhsa_next_free_vgpr 256
  .amdhsa_next_free_sgpr 102
  .amdhsa_accum_offset 256
  .amdhsa_group_segment_fixed_size 0
  .amdhsa_kernarg_size 128
  .amdhsa_user_sgpr_count 2
  .amdhsa_user_sgpr_kernarg_segment_ptr 1
  .amdhsa_system_sgpr_workgroup_id_x 1
  .amdhsa_float_denorm_mode_32 3
.end_amdhsa_kernel
"""

def generate(cfg):
    WSOFF[0] = cfg.wsoff << 20
    a = Asm()
    ts = TS(a, cfg)
    gen_entry(a, cfg, ts)
    gen_loader(a, cfg, ts)
    gen_consumer(a, cfg, ts)
    gen_helper(a, cfg, ts)
    a.label("L_exit")
    a("s_endpgm")
    return HEADER.format(k=KNAME) + f"; wsoff={cfg.wsoff}\n" + a.text() + FOOTER.format(k=KNAME)

if __name__ == "__main__":
    cfg = Cfg()
    out = sys.argv[1]
    for kv in sys.argv[2:]:
        k, v = kv.split("=")
        setattr(cfg, k, int(v))
    open(out, "w").write(generate(cfg))
```

```python
import sys, os
sys.path.insert(0, os.path.dirname(os.path.abspath(__file__)))
from asmlib import Asm, VM

KNAME = "recurrent_scan__ssm_conv_s5__glu_gated_reglu__prompt_kernel"

R = [0, 53248, 106496]
MISC = 159744
OFF_WG, OFF_WU, OFF_BB = 32768, 40960, 49152
CP_L = R[1] + 49152
STATS_L = MISC
C_L = MISC + 2048
CNT_L = MISC + 2688
ST2_L = MISC + 2720
AGG_L = MISC + 3232
Q = 12288

RT_BYTES = 172032
HALF_BYTES = 86016
WS_STATS = 0xB00000
WS_AGG = WS_STATS + 0x4000
WS_FLAG = WS_AGG + 0x8000
INIT_N = 32
WS_CP = 0xB20000
WS_TS = 0xC00000
WS_SIZE = 0x1000000
SPIN_MAX = 1 << 20

S_WAVE, S_XCD, S_SLOT, S_MT, S_NS, S_M64, S_NT, S_W4 = 3, 4, 5, 6, 7, 8, 9, 10
P_X, P_LRE, P_LIM, P_BRE, P_BIM, P_CRE, P_CIM, P_LDT, P_DSK, P_BX, P_WG, P_WU, P_WD, P_OUT, P_DBG, P_WS = [16 + 2 * i for i in range(16)]
SRD_X, SRD_A, SRD_B, SRD_C, SRD_WS, SRD_E = 48, 52, 56, 60, 64, 68
TS0 = 76

LOG2E = 0x3fb8aa3b
LOG2E_LO = 0x32a57060
LN2 = 0x3f317218
INV2PI = 0x3e22f983

class Cfg:
    ts = 0
    tsset = 0
    pd = 16
    perm = 4
    rot = 2
    ssm_early = 0
    schedn = 0
    polx = 0
    apol = 1
    noa = 0
    nob = 0
    rdstart = 1
    polw = 0
    winn = 3
    loc = 1
    al = 1
    cpw = 1
    s0a = 8
    zpeel = 1
    ws = 0
    crot = 0
    ipos = 0
    gate = 2
    c0n = 8
    agpos = 0
    c0early = 0
    hord = 1
    clate = 2
    wl = 1
    fper = 6
    c2u = 2
    probe = 0
    pwho = 0
    ponly = -1
    pmask = 0xffff
    wsoff = 0
    kwin = 2
    wprio = 0
    hdelay = 0
    eprio = 0
    c2late = 0
    cpf = 2
    padto = 0
    nocs = 0
    r2pre = 1
    tlb = 0
    bd = 4
    pollw = 24
    c1 = 12
    c2 = 16
    f2b = 1
    wfirst = 1
    @property
    def win(self):
        W = lambda a, b: [f"w{p}" for p in range(a, b)]
        if self.ws:
            m, n1, n2, n3, n4, n5, n6, cp, cs, ep = [int(c) for c in str(self.ws)[1:]]
            assert n1 + n2 + n3 + n4 + n5 + n6 == 10
            pos = [12]
            def take(n):
                r = W(pos[0], pos[0] + n); pos[0] += n; return r
            w = {}
            if m == 2: w[-1] = ["m", "s1:0-3"]; w[0] = ["cs0", "s1:3-13", "k", "s2:0-10"]; w[1] = ["cs1", "s2:10-13", "s3"]
            else: w[-1] = ["s1:0-6"]; w[0] = ["cs0", "s1:6-13", "k", "s2"] + (["m"] if m == 1 else []); w[1] = ["cs1"] + (["m"] if m == 3 else []) + ["s3"]
            w[1] += take(n1)
            w[2] = ["cs2", "s4"] + take(n2)
            w[3] = (["cs3", "s5:0-7", "cs4", "s5:7-13"] if cs == 1 else ["cs3", "s5"]) + take(n3)
            w[4] = {0: ["cs4", "init", "s6:0-7", "cs5", "s6:7-13"], 1: ["init", "s6:0-4", "cs5", "s6:4-13"], 2: ["cs4", "init", "s6"]}[cs] + take(n4)
            w[5] = (["cs5"] if cs == 2 else []) + ["fetch"] + W(0, 4) + ["cs6"] + W(4, 6) + take(n5) + {0: ["c3"], 1: [], 2: ["c3", "c1"], 3: ["c1"]}[cp] + ["put"]
            w[6] = W(6, 12) + take(n6) + {0: ["c1"], 1: ["c3", "c1"], 2: [], 3: ["c3"]}[cp]
            w[ep].append("e")
            if self.ipos:
                w[4].remove("init"); w[4].append("init")
                w[5].remove("fetch"); w[5].remove("put")
                w[5].insert(w[5].index("cs6") + 1, "fetch")
                w[6].insert(2, "put")
            return w
        return [
            {-1: ["s1:0-6"], 0: ["cs0", "s1:6-13", "k", "s2:0-9"], 1: ["cs1", "s2:9-13", "s3", "e"], 2: ["cs2", "s4"] + W(12, 14), 3: ["cs3", "s5"] + W(14, 17),
             4: ["cs4", "init", "s6:0-7", "cs5", "s6:7-13", "w17"], 5: ["fetch"] + W(0, 4) + ["cs6"] + W(4, 6) + W(18, 20) + ["put"], 6: W(6, 12) + W(20, 22)},
            {-1: ["s1:0-6"], 0: ["cs0", "s1:6-13", "k", "s2:0-9"], 1: ["cs1", "s2:9-13", "s3", "e"], 2: ["cs2", "s4"] + W(12, 15), 3: ["cs3", "s5"] + W(15, 18),
             4: ["cs4", "init", "s6"] + W(18, 20), 5: ["cs5", "fetch"] + W(0, 3) + ["cs6"] + W(3, 6) + ["put"], 6: W(6, 12) + W(20, 22)},
            {-1: ["s1:0-6"], 0: ["cs0", "s1:6-13", "k", "s2:0-9"], 1: ["cs1", "s2:9-13", "s3", "e"], 2: ["cs2", "s4"] + W(12, 15), 3: ["cs3", "s5:0-7", "cs4", "s5:7-13", "w15"],
             4: ["init", "s6:0-4", "cs5", "s6:4-13"] + W(16, 19), 5: ["fetch"] + W(0, 4) + ["cs6"] + W(4, 6) + W(19, 22) + ["put"], 6: W(6, 12)},
            {-1: ["s1:0-6"], 0: ["cs0", "s1:6-13", "k", "s2:0-9"], 1: ["cs1", "s2:9-13", "s3", "e"], 2: ["cs2", "s4"] + W(12, 15), 3: ["cs3", "s5"] + W(15, 18),
             4: ["cs4", "init", "s6:0-7", "cs5", "s6:7-13", "w18", "w19"], 5: ["fetch"] + W(0, 4) + ["cs6"] + W(4, 6) + W(20, 22) + ["c3", "put"], 6: W(6, 12) + ["c1"]},
            {-1: ["s1:0-6"], 0: ["cs0", "s1:6-13", "k", "s2:0-9"], 1: ["cs1", "s2:9-13", "s3", "e"], 2: ["cs2", "s4"] + W(12, 14), 3: ["cs3", "s5"] + W(14, 17),
             4: ["cs4", "init", "s6:0-7", "cs5", "s6:7-13", "w17"], 5: ["fetch"] + W(0, 4) + ["cs6"] + W(4, 6) + W(18, 20) + ["put"], 6: W(6, 12) + W(20, 22) + ["c3"]},
            {-1: ["s1:0-6"], 0: ["cs0", "s1:6-13", "k", "s2:0-9"], 1: ["cs1", "s2:9-13", "s3", "e"], 2: ["cs2", "s4"] + W(12, 15), 3: ["cs3", "s5"] + W(15, 19),
             4: ["cs4", "init", "s6:0-7", "cs5", "s6:7-13"] + W(19, 22), 5: ["fetch"] + W(0, 4) + ["cs6"] + W(4, 6) + ["c1", "put"], 6: W(6, 12) + ["c3"]},
            {-1: ["s1:0-6"], 0: ["cs0", "s1:6-13", "k", "s2"], 1: ["cs1", "s3", "e"] + W(12, 14), 2: ["cs2", "s4"] + W(14, 17), 3: ["cs3", "s5"] + W(17, 20),
             4: ["cs4", "init", "s6:0-7", "cs5", "s6:7-13"] + W(20, 22), 5: ["fetch"] + W(0, 4) + ["cs6"] + W(4, 6) + ["c1", "put"], 6: W(6, 12) + ["c3"]},
            {-1: ["s1:0-6"], 0: ["cs0", "s1:6-13", "k", "s2:0-9"], 1: ["cs1", "s2:9-13", "s3", "e"], 2: ["cs2", "s4"] + W(12, 15), 3: ["cs3", "s5:0-7", "cs4", "s5:7-13"] + W(15, 18),
             4: ["init", "s6:0-4", "cs5", "s6:4-13"] + W(18, 22), 5: ["fetch"] + W(0, 4) + ["cs6"] + W(4, 6) + ["c1", "put"], 6: W(6, 12) + ["c3"]},
            {-1: ["s1:0-6"], 0: ["cs0", "s1:6-13", "k", "s2:0-9"], 1: ["cs1", "s2:9-13", "s3", "e"], 2: ["cs2", "s4"], 3: ["cs3", "s5"] + W(12, 16),
             4: ["cs4", "init", "s6:0-7", "cs5", "s6:7-13"] + W(16, 19), 5: ["fetch"] + W(0, 4) + ["cs6"] + W(4, 6) + W(19, 22) + ["c3", "put"], 6: W(6, 12) + ["c1"]},
            {-1: ["s1:0-6"], 0: ["cs0", "s1:6-13", "k", "s2"], 1: ["cs1", "s3", "e"], 2: ["cs2", "s4"] + W(12, 14), 3: ["cs3", "s5"] + W(14, 18),
             4: ["cs4", "init", "s6:0-7", "cs5", "s6:7-13", "w18", "w19"], 5: ["fetch"] + W(0, 4) + ["cs6"] + W(4, 6) + W(20, 22) + ["c3", "put"], 6: W(6, 12) + ["c1"]},
            {-1: ["s1:0-3"], 0: ["cs0", "s1:3-13", "k", "s2:0-8"], 1: ["cs1", "s2:8-13", "s3"], 2: ["cs2", "s4", "e"] + W(12, 14), 3: ["cs3", "s5"] + W(14, 18),
             4: ["cs4", "init", "s6:0-7", "cs5", "s6:7-13", "w18", "w19"], 5: ["fetch"] + W(0, 4) + ["cs6"] + W(4, 6) + W(20, 22) + ["c3", "put"], 6: W(6, 12) + ["c1"]},
            {-1: ["s1:0-6"], 0: ["cs0", "s1:6-13", "k", "s2:0-9"], 1: ["cs1", "s2:9-13", "s3", "e"], 2: ["cs2", "s4"] + W(12, 15), 3: ["cs3", "init", "s5"] + W(15, 18),
             4: ["cs4", "fetch", "s6:0-7", "cs5", "s6:7-13", "w18", "w19"], 5: ["put"] + W(0, 4) + ["cs6"] + W(4, 6) + W(20, 22) + ["c3"], 6: W(6, 12) + ["c1"]},
            {-1: ["m", "s1:0-3"], 0: ["cs0", "s1:3-13", "k", "s2:0-8"], 1: ["cs1", "s2:8-13", "s3", "e"], 2: ["cs2", "s4"] + W(12, 15), 3: ["cs3", "s5"] + W(15, 18),
             4: ["cs4", "init", "s6:0-7", "cs5", "s6:7-13", "w18", "w19"], 5: ["fetch"] + W(0, 4) + ["cs6"] + W(4, 6) + W(20, 22) + ["c3", "put"], 6: W(6, 12) + ["c1"]},
            {-1: ["s1:0-6"], 0: ["cs0", "s1:6-13", "m", "k", "s2:0-9"], 1: ["cs1", "s2:9-13", "s3", "e"], 2: ["cs2", "s4"] + W(12, 15), 3: ["cs3", "s5"] + W(15, 18),
             4: ["cs4", "init", "s6:0-7", "cs5", "s6:7-13", "w18", "w19"], 5: ["fetch"] + W(0, 4) + ["cs6"] + W(4, 6) + W(20, 22) + ["c3", "put"], 6: W(6, 12) + ["c1"]},
            {-1: ["m"], 0: ["cs0", "s1", "k", "s2:0-6"], 1: ["cs1", "s2:6-13", "s3"], 2: ["cs2", "s4", "e"] + W(12, 14), 3: ["cs3", "s5"] + W(14, 18),
             4: ["cs4", "init", "s6:0-7", "cs5", "s6:7-13", "w18", "w19"], 5: ["fetch"] + W(0, 4) + ["cs6"] + W(4, 6) + W(20, 22) + ["c3", "put"], 6: W(6, 12) + ["c1"]},
            {-1: ["s1:0-6"], 0: ["cs0", "s1:6-13", "k", "s2"], 1: ["cs1", "s3"], 2: ["cs2", "s4", "e"], 3: ["cs3", "s5"] + W(12, 16),
             4: ["cs4", "init", "s6:0-7", "cs5", "s6:7-13"] + W(16, 19), 5: ["fetch"] + W(0, 4) + ["cs6"] + W(4, 6) + W(19, 22) + ["c3", "put"], 6: W(6, 12) + ["c1"]},
            {-1: ["s1:0-6"], 0: ["cs0", "s1:6-13", "k", "s2", "m"], 1: ["cs1", "s3"], 2: ["cs2", "s4", "e"], 3: ["cs3", "s5"] + W(12, 16),
             4: ["cs4", "init", "s6:0-7", "cs5", "s6:7-13"] + W(16, 19), 5: ["fetch"] + W(0, 4) + ["cs6"] + W(4, 6) + W(19, 22) + ["c3", "put"], 6: W(6, 12) + ["c1"]},
            {-1: ["m", "s1:0-3"], 0: ["cs0", "s1:3-13", "k", "s2:0-10"], 1: ["cs1", "s2:10-13", "s3"], 2: ["cs2", "s4", "e"], 3: ["cs3", "s5"] + W(12, 16),
             4: ["cs4", "init", "s6:0-7", "cs5", "s6:7-13"] + W(16, 19), 5: ["fetch"] + W(0, 4) + ["cs6"] + W(4, 6) + W(19, 22) + ["c3", "put"], 6: W(6, 12) + ["c1"]},
            {-1: ["s1:0-6"], 0: ["cs0", "s1:6-13", "k", "s2"], 1: ["cs1", "s3"], 2: ["cs2", "s4:0-6"], 3: ["cs3", "s4:6-13", "s5", "e"],
             4: ["cs4", "init", "s6"] + W(12, 16), 5: ["cs5", "fetch"] + W(16, 20) + ["cs6"] + W(0, 6) + ["put"], 6: W(6, 12) + W(20, 22) + ["c3", "c1"]},
            {-1: ["s1"], 0: ["cs0", "k", "s2", "e"], 1: ["cs1", "s3"], 2: ["cs2", "s4", "w12"], 3: ["cs3", "s5"] + W(13, 16),
             4: ["cs4", "init", "s6:0-7", "cs5", "s6:7-13"] + W(16, 19), 5: ["fetch"] + W(0, 4) + ["cs6"] + W(4, 6) + W(19, 22) + ["c3", "put"], 6: W(6, 12) + ["c1"]},
        ][self.winn]
    nw1 = 6
    flagr = -1
    xs = 1
    psleep = 2
    fsleep = 2
    ttper = 2
    f2n = 9
    fpre = 1
    a0 = 18
    sprio = 0
    ksig = 12
    opol = 1
    lprio = 3
    w12early = 0
    slab = 0
    spol = 1
    fpol = 1
    pollr = 4
    nw2 = 16
    thr = 15
    hpf = 2
    ky = 2
    @property
    def perms(self):
        return {
            0: [[0, 1, 2, 3, 4, 5, 6]],
            1: [[0, 1, 2, 3, 4, 5, 6], [1, 2, 0, 4, 5, 3, 6], [2, 0, 1, 5, 3, 4, 6]],
            2: [[0, 1, 2, 3, 4, 5, 6], [1, 0, 3, 2, 5, 4, 6]],
            3: [[0, 1, 2, 3, 4, 5, 6], [1, 0, 4, 5, 6, 2, 3], [0, 1, 6, 2, 3, 4, 5]],
            4: [[0, 1, 2, 3, 4, 5, 6], [1, 2, 0, 4, 6, 3, 5], [2, 0, 1, 5, 6, 3, 4]],
            6: [[0, 1, 2, 3, 4, 5, 6], [1, 2, 0, 3, 4, 5, 6], [2, 0, 1, 3, 4, 5, 6]],
            5: [[0, 1, 2, 3, 4, 5, 6], [1, 2, 3, 0, 5, 6, 4], [2, 3, 0, 1, 6, 4, 5], [3, 0, 1, 2, 4, 5, 6]],
        }[self.perm]

WSOFF = [0]
def srd(a, d, ptr, nbytes):
    if ptr == P_WS and WSOFF[0]:
        a(f"s_add_u32 s{ptr}, s{ptr}, {WSOFF[0]:#x}")
        a(f"s_addc_u32 s{ptr+1}, s{ptr+1}, 0")
    a(f"s_mov_b32 s{d}, s{ptr}")
    a(f"s_and_b32 s{d+1}, s{ptr+1}, 0xffff")
    a(f"s_mov_b32 s{d+2}, {nbytes:#x}")
    a(f"s_mov_b32 s{d+3}, 0x20000")

def srd_sel(a, d, ptr1, ptr0, nbytes):
    a(f"s_cselect_b32 s{d}, s{ptr1}, s{ptr0}")
    a(f"s_cselect_b32 s{d+1}, s{ptr1+1}, s{ptr0+1}")
    a(f"s_and_b32 s{d+1}, s{d+1}, 0xffff")
    a(f"s_mov_b32 s{d+2}, {nbytes:#x}")
    a(f"s_mov_b32 s{d+3}, 0x20000")

class TS:
    def __init__(self, a, cfg):
        self.a, self.on, self.n, self.set = a, cfg.ts, 0, cfg.tsset
        self.cfg = cfg
    def x(self, setno, i):
        if self.on and self.set == setno: self.emit(i)
    def __call__(self, i):
        if self.on and (self.set == 0 or i in (0, 12)): self.emit(i)
    def emit(self, i):
        if self.on == 5 and i not in (0, self.cfg.probe): return
        if self.on:
            assert i < 13
            self.a(f"{'s_memrealtime' if self.on != 2 else 's_memtime'} s[{TS0+2*i}:{TS0+2*i+1}]")
    def init(self):
        if self.on:
            for i in range(1, 13): self.a(f"s_mov_b32 s{TS0+2*i}, 0")
    def dump(self, vt, vt2, who=2):
        if not self.on: return
        a = self.a
        if self.on == 5:
            if who != self.cfg.pwho: return
            lab = a.newlabel("L_probe")
            if self.cfg.ponly >= 0:
                a(f"s_and_b32 s11, s2, {self.cfg.pmask}")
                a(f"s_cmp_lg_u32 s11, {self.cfg.ponly}")
                a(f"s_cbranch_scc1 {lab}_x")
            p = TS0 + 2 * self.cfg.probe
            a("s_waitcnt lgkmcnt(0)")
            a(f"s_sub_u32 s11, s{p}, s{TS0}")
            a(f"s_cmp_eq_u32 s{p}, 0")
            a("s_cselect_b32 s11, 0, s11")
            a("s_lshl_b32 s11, s11, 2")
            a("s_add_u32 s11, s11, 3000")
            a.label(lab)
            a("s_memrealtime s[12:13]")
            a("s_waitcnt lgkmcnt(0)")
            a(f"s_sub_u32 s12, s12, s{TS0}")
            a("s_cmp_lt_u32 s12, s11")
            a(f"s_cbranch_scc1 {lab}")
            a.label(lab + "_x")
            return
        if self.on == 3:
            a("s_waitcnt vmcnt(0) lgkmcnt(0)")
            lab = a.newlabel("L_nod")
            a(f"s_cmp_eq_u32 s{TS0+24}, 0")
            a(f"s_cbranch_scc1 {lab}")
            a(f"s_cmp_lg_u32 s{S_WAVE}, 0")
            a(f"s_cbranch_scc1 {lab}")
            a("s_mov_b64 exec, 1")
            a(f"v_mov_b32 v{vt2}, 0")
            a(f"s_not_b32 s11, s{TS0}")
            a(f"v_mov_b32 v{vt}, s11")
            a(f"global_atomic_umax v{vt2}, v{vt}, s[{P_DBG}:{P_DBG+1}] offset:4 sc1")
            for n, i in enumerate([0, 1, 2, 3, 4, 5, 6, 7, 8, 9, 10, 11, 12]):
                a("s_waitcnt vmcnt(0)")
                a(f"v_mov_b32 v{vt}, s{TS0+2*i}")
                a(f"global_atomic_umax v{vt2}, v{vt}, s[{P_DBG}:{P_DBG+1}] offset:{8+4*n} sc1")
            a("s_waitcnt vmcnt(0)")
            a.label(lab)
            return
        a("s_waitcnt vmcnt(0) lgkmcnt(0)")
        a(f"s_lshl_b32 s11, s2, 9")
        a(f"s_lshl_b32 s12, s{S_WAVE}, 6")
        a("s_add_u32 s11, s11, s12")
        a(f"s_add_u32 s11, s11, {WS_TS:#x}")
        a(f"v_mov_b32 v{vt2}, s11")
        for i in range(13):
            a(f"v_mov_b32 v{vt}, s{TS0+2*i}")
            a(f"buffer_store_dword v{vt}, v{vt2}, s[{SRD_WS}:{SRD_WS+3}], 0 offen offset:{4*i}")
        a("s_waitcnt vmcnt(0)")

def round_bf16(a, dst, src):
    a(f"v_cvt_pk_bf16_f32 v{dst}, v{src}, v{src}")
    a(f"v_lshlrev_b32 v{dst}, 16, v{dst}")

def exp_acc(a, dst, x, t0, t1):
    a(f"s_mov_b32 s36, {LOG2E:#x}")
    a(f"s_mov_b32 s37, {LOG2E_LO:#x}")
    a(f"v_mul_f32 v{t0}, s36, v{x}")
    a(f"v_fma_f32 v{t1}, v{x}, s36, -v{t0}")
    a(f"v_fma_f32 v{t1}, v{x}, s37, v{t1}")
    a(f"v_mul_f32 v{t1}, {LN2:#x}, v{t1}")
    a(f"v_exp_f32 v{dst}, v{t0}")
    a(f"v_fma_f32 v{dst}, v{dst}, v{t1}, v{dst}")

def csq(a, dr, di, sr, si, t):
    a(f"v_mul_f32 v{t}, v{si}, v{si}")
    a(f"v_add_f32 v{di}, v{si}, v{si}")
    a(f"v_mul_f32 v{di}, v{di}, v{sr}")
    a(f"v_fma_f32 v{dr}, v{sr}, v{sr}, -v{t}")

def cmul(a, dr, di, ar, ai, br, bi):
    a(f"v_mul_f32 v{dr}, v{ar}, v{br}")
    a(f"v_mul_f32 v{di}, v{ar}, v{bi}")
    a(f"v_fma_f32 v{dr}, -v{ai}, v{bi}, v{dr}")
    a(f"v_fma_f32 v{di}, v{ai}, v{br}, v{di}")

def ssm_const_load(a, vm, t):
    a(f"v_and_b32 v{t+3}, 15, v0")
    a(f"s_lshl_b32 s11, s{S_NS}, 4")
    a(f"v_add_lshl_u32 v{t+3}, v{t+3}, s11, 1")
    vm.issue('sc', f"global_load_ushort v{t}, v{t+3}, s[{P_LRE}:{P_LRE+1}]")
    vm.issue('sc', f"global_load_ushort v{t+1}, v{t+3}, s[{P_LIM}:{P_LIM+1}]")
    vm.issue('sc', f"global_load_ushort v{t+2}, v{t+3}, s[{P_LDT}:{P_LDT+1}]")

def ssm_const_calc(a, t, lr, li, cr=None, ci=None):
    for k in range(3): a(f"v_lshlrev_b32 v{t+k}, 16, v{t+k}")
    exp_acc(a, t + 3, t + 2, t + 4, t + 5)
    round_bf16(a, t + 2, t + 3)
    a(f"v_mul_f32 v{t+3}, v{t+2}, v{t}")
    a(f"v_mul_f32 v{t+6}, v{t+2}, v{t+1}")
    exp_acc(a, t + 7, t + 3, t + 4, t + 5)
    a(f"v_mul_f32 v{t+6}, {INV2PI:#x}, v{t+6}")
    a(f"v_rndne_f32 v{t+4}, v{t+6}")
    a(f"v_sub_f32 v{t+6}, v{t+6}, v{t+4}")
    a(f"v_cos_f32 v{t+4}, v{t+6}")
    a(f"v_sin_f32 v{t+5}, v{t+6}")
    a(f"v_mul_f32 v{lr}, v{t+7}, v{t+4}")
    a(f"v_mul_f32 v{li}, v{t+7}, v{t+5}")
    if cr is not None:
        a(f"v_add_f32 v{t+3}, -1.0, v{lr}")
        a(f"v_mul_f32 v{t+4}, v{t}, v{t}")
        a(f"v_fma_f32 v{t+4}, v{t+1}, v{t+1}, v{t+4}")
        a(f"v_rcp_f32 v{t+4}, v{t+4}")
        a(f"v_mul_f32 v{cr}, v{t+3}, v{t}")
        a(f"v_fma_f32 v{cr}, v{li}, v{t+1}, v{cr}")
        a(f"v_mul_f32 v{ci}, v{li}, v{t}")
        a(f"v_fma_f32 v{ci}, -v{t+3}, v{t+1}, v{ci}")
        a(f"v_add_f32 v{t+4}, v{t+4}, v{t+4}")
        a(f"v_mul_f32 v{cr}, v{cr}, v{t+4}")
        a(f"v_mul_f32 v{ci}, v{ci}, v{t+4}")

def gen_entry(a, cfg, ts):
    a("s_cmp_ge_u32 s2, 256")
    a("s_cbranch_scc1 L_exit")
    if cfg.padto: a("s_memrealtime s[100:101]")
    ts(0)
    a("s_load_dwordx16 s[16:31], s[0:1], 0")
    a("s_load_dwordx16 s[32:47], s[0:1], 64")
    a("v_lshrrev_b32 v1, 6, v0")
    a("v_and_b32 v0, 63, v0")
    a(f"v_readfirstlane_b32 s{S_WAVE}, v1")
    a(f"s_and_b32 s{S_XCD}, s2, 7")
    a(f"s_lshr_b32 s{S_SLOT}, s2, 3")
    if cfg.cpf == 2:
        a(f"s_cmp_gt_u32 s{S_WAVE}, {cfg.cpw - 1}")
        a("s_cbranch_scc1 L_nocpf")
        a("s_getpc_b64 s[12:13]")
        a.label("L_pc0")
        a(f"s_sub_u32 s12, s12, L_pc0-{KNAME}")
        a("s_subb_u32 s13, s13, 0")
        a(f"s_lshl_b32 s11, s{S_WAVE}, 5")
        a(f"s_add_u32 s11, s11, s{S_SLOT}")
        a("s_lshl_b32 s11, s11, 10")
        a("v_lshl_add_u32 v38, v0, 4, s11")
        a(f"v_min_u32 v38, L_exit-{KNAME}, v38")
        a("global_load_dword v39, v38, s[12:13]")
        a.label("L_nocpf")
    a(f"s_and_b32 s11, s{S_SLOT}, 3")
    a(f"s_lshr_b32 s{S_NT}, s{S_SLOT}, 2")
    a(f"s_and_b32 s12, s{S_XCD}, 1")
    a(f"s_lshl_b32 s12, s12, 2")
    a(f"s_add_u32 s{S_MT}, s12, s11")
    a(f"s_lshr_b32 s12, s{S_XCD}, 1")
    a(f"s_mul_i32 s12, s12, 7")
    a(f"s_add_u32 s{S_NS}, s12, s{S_NT}")
    if cfg.slab:
        a(f"s_mov_b32 s{S_MT}, s{S_XCD}")
        a(f"s_mov_b32 s{S_NS}, s{S_SLOT}")
    if cfg.loc:
        a(f"s_and_b32 s12, s{S_XCD}, 1")
        a("s_lshl_b32 s12, s12, 2")
        a(f"s_lshr_b32 s13, s{S_XCD}, 1")
        a("s_add_u32 s12, s12, s13")
        a("s_lshl_b32 s12, s12, 2")
    else:
        a(f"s_lshl_b32 s12, s{S_XCD}, 2")
    a(f"s_add_u32 s{S_M64}, s12, s11")
    a(f"s_and_b32 s{S_W4}, s{S_WAVE}, 3")
    ts.init()
    a(f"s_cmp_ge_u32 s{S_SLOT}, 28")
    a("s_cbranch_scc1 L_helper")
    a(f"s_cmp_lt_u32 s{S_WAVE}, 4")
    a("s_cbranch_scc1 L_consumer")

def gen_helper(a, cfg, ts):
    if cfg.al >= 3: a.raw(".p2align 12")
    a.label("L_helper")
    vm = VM(a)
    a(f"s_sub_u32 s73, s{S_SLOT}, 28")
    a(f"s_lshl_b32 s11, s73, 3")
    a(f"s_add_u32 s72, s11, s{S_XCD}")
    if cfg.loc: a(f"s_mov_b32 s72, s{S_M64}")
    HC = 65536
    a(f"v_mov_b32 v200, {HC}")
    a("v_mov_b32 v201, 0")
    a("ds_write_b32 v200, v201")
    def h_open():
        a("s_waitcnt lgkmcnt(0)")
        a("s_barrier")
    def h_signal(tag):
        a("v_mov_b32 v202, 1")
        a("s_mov_b64 exec, 1")
        a("ds_add_rtn_u32 v203, v200, v202")
        a("s_waitcnt lgkmcnt(0)")
        a("v_readfirstlane_b32 s11, v203")
        a("s_cmp_lg_u32 s11, 7")
        a(f"s_cbranch_scc1 L_h_ns{tag}")
        a(f"global_atomic_add v201, v202, s[{P_DBG}:{P_DBG+1}] sc1")
        a.label(f"L_h_ns{tag}")
        a("s_mov_b64 exec, -1")
    a(f"s_cmp_ge_u32 s{S_WAVE}, 4")
    a("s_cbranch_scc1 L_h_pf")
    a(f"s_lshl_b32 s11, s72, 6")
    a(f"s_lshl_b32 s12, s{S_WAVE}, 4")
    a(f"s_add_u32 s11, s11, s12")
    a("v_lshrrev_b32 v2, 3, v0")
    a("v_add_u32 v2, s11, v2")
    a("v_mul_u32_u24 v3, 896, v2")
    a("v_and_b32 v4, 7, v0")
    a("v_lshl_add_u32 v3, v4, 4, v3")
    a("s_waitcnt lgkmcnt(0)")
    srd(a, SRD_X, P_X, 2048 * 896)
    srd(a, SRD_WS, P_WS, WS_SIZE)
    a(f"s_mov_b32 s11, {8*896}")
    for ps in range(2):
        for j in range(7):
            so = "0" if ps == 0 else "s11"
            vm.issue(('x', ps), f"buffer_load_dwordx4 v[{112+28*ps+4*j}:{115+28*ps+4*j}], v3, s[{SRD_X}:{SRD_X+3}], {so} offen offset:{128*j}")
    a(f"s_cmp_gt_u32 s{S_WAVE}, 1")
    a("s_cbranch_scc1 L_h_noreset")
    a(f"s_cmp_eq_u32 s{S_WAVE}, 0")
    a("s_cselect_b32 s11, -1, 0")
    a("s_mov_b32 s12, 1024")
    a("s_cmov_b32 s12, 896")
    a(f"s_mov_b32 s13, {WS_FLAG:#x}")
    a(f"s_cmov_b32 s13, {WS_AGG:#x}")
    a("s_mul_i32 s14, s12, s72")
    a("s_add_u32 s13, s13, s14")
    for k in range(4): a(f"v_mov_b32 v{8+k}, s11")
    a("v_lshlrev_b32 v12, 4, v0")
    a("v_cmp_gt_u32 vcc, s12, v12")
    a("s_and_saveexec_b64 s[14:15], vcc")
    a(f"buffer_store_dwordx4 v[8:11], v12, s[{SRD_WS}:{SRD_WS+3}], s13 offen sc1")
    a("s_mov_b64 exec, s[14:15]")
    a.label("L_h_noreset")
    h_open()
    a("v_lshlrev_b32 v2, 3, v2")
    a("s_mov_b32 s12, 0xffff0000")
    def fin(dst):
        a("v_add_f32 v8, v8, v9")
        a("v_add_f32 v10, v10, v11")
        a(f"v_add_f32 v{dst}, v8, v10")
        a(f"v_add_f32_dpp v{dst}, v{dst}, v{dst} quad_perm:[1,0,3,2] row_mask:0xf bank_mask:0xf")
        a(f"v_add_f32_dpp v{dst}, v{dst}, v{dst} quad_perm:[2,3,0,1] row_mask:0xf bank_mask:0xf")
        a(f"v_add_f32_dpp v{dst}, v{dst}, v{dst} row_half_mirror row_mask:0xf bank_mask:0xf")
        a(f"v_mul_f32 v{dst}, 0x3b124925, v{dst}")
    for ps in range(2):
        vm.wait(('x', ps))
        if cfg.hdelay == 2 + ps: a("s_barrier")
        src = 112 + 28 * ps
        for k in range(28):
            a(f"v_lshlrev_b32 v{48+2*k}, 16, v{src+k}")
            a(f"v_and_b32 v{49+2*k}, s12, v{src+k}")
        a("v_pk_add_f32 v[8:9], v[48:49], v[52:53]")
        a("v_pk_add_f32 v[10:11], v[50:51], v[54:55]")
        for k in range(4, 28): a(f"v_pk_add_f32 v[{8+2*(k%2)}:{9+2*(k%2)}], v[{8+2*(k%2)}:{9+2*(k%2)}], v[{48+2*k}:{49+2*k}]")
        fin(12)
        for k in range(28): a(f"v_pk_add_f32 v[{48+2*k}:{49+2*k}], v[{48+2*k}:{49+2*k}], v[12:13] op_sel_hi:[1,0] neg_lo:[0,1] neg_hi:[0,1]")
        for k in range(2): a(f"v_pk_mul_f32 v[{8+2*k}:{9+2*k}], v[{48+2*k}:{49+2*k}], v[{48+2*k}:{49+2*k}]")
        for k in range(2, 28): a(f"v_pk_fma_f32 v[{8+2*(k%2)}:{9+2*(k%2)}], v[{48+2*k}:{49+2*k}], v[{48+2*k}:{49+2*k}], v[{8+2*(k%2)}:{9+2*(k%2)}]")
        fin(13)
        o = 14 + 2 * ps
        round_bf16(a, o, 12)
        round_bf16(a, 13, 13)
        a("v_add_f32 v13, 0x3727c5ac, v13")
        round_bf16(a, 13, 13)
        a("v_sqrt_f32 v13, v13")
        round_bf16(a, 13, 13)
        a(f"v_rcp_f32 v{o+1}, v13")
        a("v_cmp_eq_u32 vcc, 0, v4")
        a("s_and_saveexec_b64 s[14:15], vcc")
        a(f"s_mov_b32 s11, {WS_STATS:#x}")
        vm.issue('st', f"buffer_store_dwordx2 v[{o}:{o+1}], v2, s[{SRD_WS}:{SRD_WS+3}], s11 offen offset:{64*ps} sc1")
        a("s_mov_b64 exec, s[14:15]")
    a("s_waitcnt vmcnt(0)")
    h_signal("a")
    ts(1)
    ts.x(3, 1)
    ts.dump(8, 9)
    a("s_endpgm")
    a.label("L_h_pf")
    a("v_lshlrev_b32 v2, 4, v0")
    a(f"s_lshl_b32 s11, s{S_W4}, 10")
    a("v_add_u32 v2, s11, v2")
    if cfg.cpf == 1:
        a("s_getpc_b64 s[60:61]")
        a.label("L_pc")
        a(f"s_sub_u32 s60, s60, L_pc-{KNAME}")
        a("s_subb_u32 s61, s61, 0")
        a("s_lshl_b32 s11, s73, 12")
        a("v_add_u32 v3, s11, v2")
        for k in range(2):
            a(f"v_min_u32 v4, L_exit-{KNAME}-12, v3")
            a(f"global_load_dwordx4 v[24:27], v4, s[60:61]")
            a(f"v_add_u32 v3, 16384, v3")
    a("s_waitcnt lgkmcnt(0)")
    if cfg.hdelay == 1: a("s_waitcnt vmcnt(0)")
    if cfg.hdelay >= 2: a("s_barrier")
    srd(a, SRD_WS, P_WS, WS_SIZE)
    a("s_lshl_b32 s60, s72, 2")
    a(f"s_add_u32 s60, s60, s{S_W4}")
    a("s_cmp_ge_u32 s60, 98")
    a("s_cbranch_scc1 L_h_nopack1")
    a("s_mul_i32 s61, s60, 37")
    a("s_lshr_b32 s61, s61, 8")
    a("s_mul_i32 s62, s61, 7")
    a("s_sub_u32 s62, s60, s62")
    a("s_cmp_lt_i32 s62, 0")
    a("s_cselect_b32 s11, 1, 0")
    a("s_sub_u32 s61, s61, s11")
    a("s_mul_i32 s62, s61, 7")
    a("s_sub_u32 s62, s60, s62")
    a("s_bitcmp1_b32 s61, 0")
    srd_sel(a, 68, P_CIM, P_CRE, 448 * 896)
    a("v_lshrrev_b32 v3, 3, v0")
    a("v_and_b32 v4, 7, v0")
    a("v_lshrrev_b32 v5, 1, v3")
    a("v_xor_b32 v4, v4, v5")
    a("s_lshr_b32 s11, s61, 1")
    a("s_lshl_b32 s11, s11, 6")
    a("v_add_u32 v3, s11, v3")
    a("v_mul_u32_u24 v3, 896, v3")
    a("v_lshl_add_u32 v3, v4, 4, v3")
    a("v_xor_b32 v4, 64, v3")
    a(f"s_lshl_b32 s63, s{S_W4}, 13")
    a("s_lshl_b32 s12, s62, 7")
    for n in range(8):
        a(f"s_add_u32 m0, s63, {n*1024}")
        a(f"s_add_u32 s11, s12, {8*n*896}")
        a(f"buffer_load_dwordx4 v{3 + (n & 1)}, s[68:71], s11 offen lds")
    a.label("L_h_nopack1")
    h_open()
    def h_sweep():
        if cfg.hpf:
            for (ptr, nbytes, srdn) in ((P_WD, 1792 * 896, 56),):
                srd(a, srdn, ptr, nbytes)
            def sweep(name, srds, qbytes, first, count):
                n8 = -(-qbytes // (8 * 4096))
                n = 8 * n8
                a(f"s_mul_i32 s12, s73, {qbytes}")
                a(f"s_add_u32 s13, s{S_XCD}, {first}")
                a("s_and_b32 s13, s13, 7")
                a(f"s_mul_i32 s13, s13, {n8}")
                a("s_mov_b32 s14, 0")
                a.label(name)
                a("s_lshl_b32 s11, s13, 12")
                a("s_add_u32 s11, s11, s12")
                for k, sr in enumerate(srds):
                    a(f"buffer_load_dwordx4 v[{16+4*k}:{19+4*k}], v2, s[{sr}:{sr+3}], s11 offen")
                a("s_add_u32 s13, s13, 1")
                a(f"s_cmp_eq_u32 s13, {n}")
                a("s_cselect_b32 s13, 0, s13")
                a("s_add_u32 s14, s14, 1")
                a(f"s_cmp_lt_u32 s14, {n8 * count}")
                a(f"s_cbranch_scc1 {name}")
            sweep("L_h_p2", [56], 1792 * 896 // 4, 0, 1)
            ts(2)
    def h_pack():
        a("s_cmp_ge_u32 s60, 98")
        a("s_cbranch_scc1 L_h_nopack2")
        a("v_and_b32 v5, 31, v0")
        a("v_lshrrev_b32 v6, 5, v0")
        a("v_bfe_u32 v7, v0, 1, 3")
        a("v_xor_b32 v7, v7, v6")
        a("v_lshlrev_b32 v7, 4, v7")
        a("v_lshl_add_u32 v5, v5, 7, v7")
        a("v_add_u32 v5, s63, v5")
        a("v_lshlrev_b32 v6, 4, v0")
        a("s_mul_i32 s12, s61, 28")
        a("s_lshl_b32 s11, s62, 2")
        a("s_add_u32 s12, s12, s11")
        a("s_lshl_b32 s12, s12, 11")
        a(f"s_add_u32 s12, s12, {WS_CP:#x}")
        a(f"s_waitcnt vmcnt({13 if (cfg.hpf and not cfg.hord) else 0})")
        for ks in range(4):
            a(f"v_xor_b32 v7, {32*ks}, v5")
            for ct in range(2):
                d = 32 + 8 * ks + 4 * ct
                a(f"ds_read_b128 v[{d}:{d+3}], v7 offset:{4096*ct}")
        for ks in range(4):
            a(f"s_waitcnt lgkmcnt({6 - 2*ks})")
            a(f"s_add_u32 s11, s12, {2048*ks}")
            for ct in range(2):
                d = 32 + 8 * ks + 4 * ct
                a(f"buffer_store_dwordx4 v[{d}:{d+3}], v6, s[{SRD_WS}:{SRD_WS+3}], s11 offen offset:{1024*ct} sc1")
        a("s_waitcnt vmcnt(0)")
        a.label("L_h_nopack2")
        h_signal("b")
        ts(3)
        ts.x(3, 1)
    if cfg.hord: h_pack(); h_sweep()
    else: h_sweep(); h_pack()
    ts.dump(8, 9)
    a("s_endpgm")

def spin_check(a, name, load_text_list, cond_fn, sleep=1):
    lo, done = a.newlabel(name + "_spin"), a.newlabel(name + "_ok")
    a(f"s_mov_b32 s73, 0")
    a.label(lo)
    cond_fn()
    a(f"s_cbranch_scc1 {done}")
    a("s_add_u32 s73, s73, 1")
    a(f"s_cmp_ge_u32 s73, {SPIN_MAX}")
    a(f"s_cbranch_scc1 {done}")
    a(f"s_sleep {sleep}")
    for t in load_text_list: a(t)
    a("s_waitcnt vmcnt(0)")
    a(f"s_branch {lo}")
    a.label(done)
    a("s_nop 4")

def sspin(a, name, loads, cond_fn, sleep=1):
    lo, done = a.newlabel(name + "_spin"), a.newlabel(name + "_ok")
    a("s_mov_b32 s73, 0")
    a.label(lo)
    for t in loads: a(t)
    a("s_waitcnt lgkmcnt(0)")
    cond_fn()
    a(f"s_cbranch_scc1 {done}")
    a("s_add_u32 s73, s73, 1")
    a(f"s_cmp_lt_u32 s73, {SPIN_MAX}")
    if sleep: a(f"s_sleep {sleep}")
    a(f"s_cbranch_scc1 {lo}")
    a.label(done)

def flag_index(a, d, t, grp):
    a(f"s_mul_i32 s{t}, s{S_NS}, 37")
    a(f"s_lshr_b32 s{t}, s{t}, {8 if grp == 7 else 9}")
    a(f"s_mul_i32 s{t}, s{t}, {32 - grp}")
    a(f"s_add_u32 s{d}, s{t}, s{S_NS}")
    a(f"s_lshl_b32 s{d}, s{d}, 2")

def interleave(a, prim, fill, per):
    fill = list(fill)
    for p in prim:
        p()
        for _ in range(per):
            if fill: a(fill.pop(0))
    for f in fill: a(f)

def p2_rot(a, cfg, d_ffn, d_blk, d_flip):
    if not cfg.rot:
        for d in (d_ffn, d_blk, d_flip): a(f"s_mov_b32 s{d}, 0")
        return
    tab = {2: [0] * 7, 1: list(range(7)), 3: [0, 3, 0, 3, 0, 3, 0], 4: [0, 2, 5, 0, 2, 5, 0], 5: [0, 4, 2, 5, 0, 4, 2], 6: [0, 1, 0, 1, 0, 1, 0], 7: [0, 2, 0, 2, 0, 2, 0]}[cfg.rot]
    word = sum(v << (4 * k) for k, v in enumerate(tab))
    a(f"s_lshl_b32 s11, s{S_NT}, 2")
    a(f"s_lshr_b32 s13, {word:#x}, s11")
    a("s_and_b32 s13, s13, 15")
    a(f"s_and_b32 s11, s{S_SLOT}, 3")
    a("s_lshl_b32 s11, s11, 1")
    a("s_add_u32 s11, s11, s13")
    a("s_cmp_ge_u32 s11, 7")
    a("s_cselect_b32 s13, 7, 0")
    a(f"s_sub_u32 s{d_ffn}, s11, s13")
    for d in (d_blk, d_flip): a(f"s_mov_b32 s{d}, 0")

def slot(reg, n): return R[reg] + 2048 * n
SA = [slot(1, n) for n in range(6)]; SB = [slot(2, n) for n in range(6)]; SC = [slot(0, n) for n in range(6)]
WSLOT = {}
for n in range(6): WSLOT[n] = SA[n]; WSLOT[6 + n] = SB[n]
for n in range(4): WSLOT[12 + n] = SC[n]; WSLOT[16 + n] = SA[n]; WSLOT[20 + n] = SB[n]
WSLOT.update({24: SA[4], 25: SA[5], 26: SB[4], 27: SB[5]})
HTS = SC[4]
PH1, PH2, GA, FXA, SD = SC[0], SC[4], SB[0], SA[0], SC[0]

class Rec:
    def __init__(self): self.L = []
    def __call__(self, t): self.L.append(t)

def ssm_park(kc, K, KP, sQ):
    LR, LI, CR, CI, L16R, L16I, PWR, PWI, L64R, L64I, LWR, LWI, W0R = [KP + k for k in range(13)]
    vTW, vTR, vCB = KP + 16, KP + 17, KP + 18
    ssm_const_calc(kc, K, LR, LI, CR, CI)
    csq(kc, L16R, L16I, LR, LI, K)
    for _ in range(3): csq(kc, L16R, L16I, L16R, L16I, K)
    def powsel(dr, di, br, bi, bit, src):
        cmul(kc, K + 1, K + 2, dr, di, br, bi)
        kc(f"v_and_b32 v{K}, {bit}, v{src}")
        kc(f"v_cmp_ne_u32 vcc, 0, v{K}")
        kc(f"v_cndmask_b32 v{dr}, v{dr}, v{K+1}, vcc")
        kc(f"v_cndmask_b32 v{di}, v{di}, v{K+2}, vcc")
    kc(f"v_mov_b32 v{PWR}, v{CR}"); kc(f"v_mov_b32 v{PWI}, v{CI}")
    powsel(PWR, PWI, L16R, L16I, 32, 0)
    csq(kc, K + 14, K + 15, L16R, L16I, K)
    powsel(PWR, PWI, K + 14, K + 15, 16, 0)
    csq(kc, L64R, L64I, K + 14, K + 15, K)
    kc(f"v_mov_b32 v{K+10}, s{S_W4}")
    kc(f"v_mov_b32 v{LWR}, 1.0"); kc(f"v_mov_b32 v{LWI}, 0")
    powsel(LWR, LWI, L64R, L64I, 1, K + 10)
    csq(kc, K + 14, K + 15, L64R, L64I, K)
    powsel(LWR, LWI, K + 14, K + 15, 2, K + 10)
    csq(kc, K + 14, K + 15, K + 14, K + 15, K)
    kc(f"v_lshrrev_b32 v{K+10}, 4, v0")
    kc(f"v_sub_u32 v{K+10}, s{S_MT}, v{K+10}")
    kc(f"v_add_u32 v{K+11}, -5, v{K+10}")
    kc(f"v_add_u32 v{K+10}, -1, v{K+10}")
    kc(f"v_mov_b32 v{W0R}, 1.0"); kc(f"v_mov_b32 v{W0R+1}, 0")
    kc(f"v_mov_b32 v{W0R+2}, 1.0"); kc(f"v_mov_b32 v{W0R+3}, 0")
    for b in range(3):
        powsel(W0R, W0R + 1, K + 14, K + 15, 1 << b, K + 10)
        if b < 2: powsel(W0R + 2, W0R + 3, K + 14, K + 15, 1 << b, K + 11)
        if b < 2: csq(kc, K + 14, K + 15, K + 14, K + 15, K)
    kc(f"s_add_u32 s36, s{sQ}, {HTS}")
    kc(f"v_bfe_u32 v{K}, v0, 4, 1")
    kc(f"v_lshrrev_b32 v{K+1}, 5, v0")
    kc(f"v_lshl_add_u32 v{K+2}, v{K}, 1, v{K+1}")
    kc(f"v_and_b32 v{K+3}, 15, v0")
    kc(f"v_and_b32 v{vTW}, 6, v{K+3}")
    kc(f"v_lshlrev_b32 v{vTW}, 4, v{vTW}")
    kc(f"v_lshlrev_b32 v{K+4}, 5, v{K+2}")
    kc(f"v_xor_b32 v{vTW}, v{vTW}, v{K+4}")
    kc(f"v_lshl_add_u32 v{vTW}, v{K+3}, 7, v{vTW}")
    kc(f"v_add_u32 v{vTW}, s36, v{vTW}")
    kc(f"v_lshlrev_b32 v{vCB}, 2, v{K+3}")
    kc(f"v_add_u32 v{vCB}, {C_L + 512}, v{vCB}")
    kc(f"v_bfe_u32 v{K+4}, v0, 2, 2")
    kc(f"v_lshl_add_u32 v{K+5}, v{K+1}, 3, v{K+4}")
    kc(f"v_lshlrev_b32 v{vTR}, 7, v{K+5}")
    kc(f"v_lshrrev_b32 v{K+4}, 1, v{K+4}")
    kc(f"v_xor_b32 v{K+4}, v{K+4}, v0")
    kc(f"v_and_b32 v{K+4}, 1, v{K+4}")
    kc(f"v_lshl_add_u32 v{vTR}, v{K+4}, 5, v{vTR}")
    kc(f"v_lshl_add_u32 v{vTR}, v{K}, 4, v{vTR}")
    kc(f"v_bfe_u32 v{K+4}, v0, 1, 1")
    kc(f"v_lshl_add_u32 v{vTR}, v{K+4}, 3, v{vTR}")
    kc(f"v_add_u32 v{vTR}, s36, v{vTR}")
    kc(f"s_lshl_b32 s36, s{S_W4}, 9")
    kc(f"s_add_u32 s36, s36, {STATS_L}")
    kc(f"v_lshl_add_u32 v{KP+19}, v{K+2}, 7, s36")
    vStS = KP + 19
    vAg, vPr, vF = KP + 20, KP + 21, KP + 22
    kc(f"v_lshlrev_b32 v{vAg}, 3, v{K+3}")
    kc(f"v_lshrrev_b32 v{vPr}, 4, v0")
    kc(f"v_mul_u32_u24 v{vPr}, 3584, v{vPr}")
    kc(f"s_lshl_b32 s36, s{S_NS}, 7")
    kc(f"v_add3_u32 v{vPr}, v{vPr}, v{vAg}, s36")
    kc(f"v_add_u32 v{vAg}, {AGG_L}, v{vAg}")
    kc(f"s_lshl_b32 s36, s{S_MT}, 2")
    kc(f"s_add_u32 s36, s36, s{S_W4}")
    kc("s_lshl_b32 s36, s36, 10")
    flag_index(kc, 37, 38, 14)
    kc("s_add_u32 s36, s36, s37")
    kc(f"s_add_u32 s36, s36, {WS_FLAG + 512:#x}")
    kc(f"v_mov_b32 v{vF}, s36")

def gen_loader(a, cfg, ts):
    a.label("L_loader")
    a("s_setprio 3")
    vm = VM(a)
    vXe, vXo, vW, vB = 1, 2, 3, 4
    vFv, vP, vO, vPQ = 5, 6, 7, 8
    vWd, vCe, vCo, vCh = 9, 10, 11, 12
    vRf, vRh = 13, 14
    vA, vC = 24, 25
    vT = 15
    ACC, CA, RD = 27, 28, 44
    STG = 64
    CF = 144
    SACC = 80
    XRAW = CF + 64
    KP = XRAW + 8
    sGrp = [28, 29, 30, 31, 36, 37, 21]
    SP = ['', ' sc1'][cfg.spol]
    sMX, sMW, sMB, sMP = 72, 74, 75, 70
    sPerm, sSX, sSW = 68, 69, 15
    sRF = 14
    AP = ['', ' sc1', ' sc1 nt', ' sc0 sc1', ' sc0', ' nt'][cfg.apol]
    OP = ['', ' sc1', ' nt', ' sc1 nt'][cfg.opol]
    polx = " nt" if cfg.polx else ""
    polw = " nt" if cfg.polw else ""
    a(f"v_lshrrev_b32 v{vA}, 3, v0")
    a(f"v_and_b32 v{vC}, 7, v0")
    a(f"v_lshrrev_b32 v{vT+2}, 1, v{vA}")
    a(f"s_lshl_b32 s11, s{S_W4}, 4")
    a(f"v_add_u32 v{vT}, s11, v{vA}")
    a(f"v_mul_u32_u24 v{vW}, 3584, v{vT}")
    a(f"v_and_b32 v{vT+4}, 1, v{vT+2}")
    a(f"v_lshlrev_b32 v{vT+4}, 2, v{vT+4}")
    a(f"v_xor_b32 v{vT+4}, v{vC}, v{vT+4}")
    a(f"v_lshl_add_u32 v{vW}, v{vT+4}, 4, v{vW}")
    a(f"s_lshl_b32 s11, s{S_NS}, 7")
    a(f"v_add_u32 v{vW}, s11, v{vW}")
    a(f"s_lshl_b32 s11, s{S_MT}, 8")
    a(f"s_lshl_b32 s12, s{S_W4}, 6")
    a("s_add_u32 s11, s11, s12")
    a(f"v_lshrrev_b32 v{vT}, 2, v{vA}")
    a(f"v_and_b32 v{vT+1}, 3, v{vA}")
    a(f"v_lshl_add_u32 v{vT}, v{vT}, 4, v{vT+1}")
    a(f"v_add_u32 v{vT}, s11, v{vT}")
    a(f"v_mul_u32_u24 v{vXe}, 896, v{vT}")
    a(f"v_xor_b32 v{vT+3}, v{vC}, v{vT+2}")
    a(f"v_lshl_add_u32 v{vXe}, v{vT+3}, 4, v{vXe}")
    a(f"v_xor_b32 v{vXo}, 64, v{vXe}")
    a(f"s_and_b32 s12, s{S_W4}, 1")
    a(f"s_lshl_b32 s11, s{S_NS}, 4")
    a(f"s_lshl_b32 s13, s12, 3")
    a("s_add_u32 s11, s11, s13")
    a(f"v_add_u32 v{vT}, s11, v{vA}")
    a(f"v_mul_u32_u24 v{vB}, 896, v{vT}")
    a(f"v_lshl_add_u32 v{vB}, v{vT+3}, 4, v{vB}")
    a("s_lshl_b32 s13, s12, 6")
    a(f"v_xor_b32 v{vB}, s13, v{vB}")
    a(f"s_lshl_b32 s{sMX}, s{S_W4}, 13")
    a(f"s_lshl_b32 s{sMW}, s{S_W4}, 11")
    a(f"s_lshl_b32 s{sMB}, s{S_W4}, 10")
    a(f"s_mul_i32 s{sMP}, s{S_W4}, {Q}")
    perms = cfg.perms
    words = [sum(p[k] << (4 * k) for k in range(7)) for p in perms]
    ng = len(words)
    a(f"s_mov_b32 s{sPerm}, {words[0]:#x}")
    if ng > 1:
        if cfg.slab:
            a(f"s_add_u32 s11, s{S_SLOT}, s{S_XCD}")
        else:
            a(f"s_and_b32 s11, s{S_SLOT}, 3")
            a(f"s_add_u32 s11, s11, s{S_NT}")
        if ng == 3:
            a("s_mul_i32 s13, s11, 43")
            a("s_lshr_b32 s13, s13, 7")
            a("s_mul_i32 s13, s13, 3")
            a("s_sub_u32 s11, s11, s13")
        else:
            a(f"s_and_b32 s11, s11, {ng-1}")
        for g in range(1, ng):
            a(f"s_cmp_eq_u32 s11, {g}")
            a(f"s_cmov_b32 s{sPerm}, {words[g]:#x}")
    ts.x(1, 1)
    a("s_waitcnt lgkmcnt(0)")
    ts.x(1, 2)
    if cfg.tlb:
        a(f"v_mov_b32 v40, s{P_X}")
        a(f"v_mov_b32 v41, s{P_X+1}")
        for ln, p in enumerate([P_WG, P_WU, P_BRE, P_BIM, P_WD, P_CRE, P_CIM, P_WS][:cfg.tlb], 1):
            a(f"v_writelane_b32 v40, s{p}, {ln}")
            a(f"v_writelane_b32 v41, s{p+1}, {ln}")
        a(f"s_mov_b64 exec, {(1 << (cfg.tlb + 1)) - 1:#x}")
        a("global_load_dword v62, v[40:41], off")
        a("s_mov_b64 exec, -1")
    srd(a, SRD_A, P_WG, 448 * 3584)
    srd(a, SRD_X, P_X, 2048 * 896)
    srd(a, SRD_B, P_WU, 448 * 3584)
    a(f"s_cmp_ge_u32 s{S_W4}, 2")
    srd_sel(a, SRD_C, P_BIM, P_BRE, 448 * 896)

    thr = [None]
    def dma(vm, tag, voff, srdn, sbase, soff, m0base, m0off, pol=""):
        a(f"s_add_u32 m0, s{m0base}, {m0off}")
        a(f"s_add_u32 s11, s{sbase}, {soff}")
        if thr[0] is not None and len(vm.q) > thr[0]:
            a(f"s_waitcnt vmcnt({thr[0]})")
            vm.q = vm.q[-thr[0]:]
        vm.issue(tag, f"buffer_load_dwordx4 v{voff}, s[{srdn}:{srdn+3}], s11 offen{pol} lds")
    def issue_ops(s):
        r = R[s % 3]
        ops = []
        def pre():
            a(f"s_bfe_u32 s{sSX}, s{sPerm}, {(4 << 16) | (4 * s):#x}")
            a(f"s_mul_i32 s{sSW}, s{sSX}, {64*3584}")
            a(f"s_lshl_b32 s{sSX}, s{sSX}, 7")
        def mk(*args): return lambda: dma(vm, ('st', s), *args)
        L = []
        for i in range(2): L.append(mk(vW, SRD_A, sSW, i * 8 * 3584, sMW, r + OFF_WG + i * 1024, polw))
        for j in range(4): L.append(mk(vXo if j & 1 else vXe, SRD_X, sSX, (32 * (j >> 2) + 4 * (j & 3)) * 896, sMX, r + j * 1024, polx))
        for i in range(2): L.append(mk(vW, SRD_B, sSW, i * 8 * 3584, sMW, r + OFF_WU + i * 1024, polw))
        for j in range(4, 8): L.append(mk(vXo if j & 1 else vXe, SRD_X, sSX, (32 * (j >> 2) + 4 * (j & 3)) * 896, sMX, r + j * 1024, polx))
        L.append(mk(vB, SRD_C, sSX, 0, sMB, r + OFF_BB, polw))
        first = L[0]
        L[0] = lambda: (pre(), first())
        return L
    SRD_WD, SRD_CC, sBlk, sFlip, P_DSK2 = 32, 24, 16, 17, 38
    def w_ops(ps):
        L = []
        for p in ps:
            for n in range(2):
                def op(p=p, n=n):
                    if 12 <= p < 22:
                        d = STG + (p - 12) * 8 + 4 * n
                        a(f"s_add_u32 s11, s{sGrp[p//4]}, {((p % 4) * 16 + 8 * n) * 896}")
                        vm.issue(('w', p), f"buffer_load_dwordx4 v[{d}:{d+3}], v{vWd}, s[{SRD_WD}:{SRD_WD+3}], s11 offen")
                    else:
                        dma(vm, ('w', p), vWd, SRD_WD, sGrp[p//4], ((p % 4) * 16 + 8 * n) * 896, sMP, WSLOT[p] + n * 1024)
                L.append(op)
        return L
    sCB = [68, 69, 15]
    sCF, sCH = 16, 17
    def cfrag(p, lc): return CF + 8 * p + 4 * lc
    def c_ops(b):
        L = []
        for p in (range(4 * b, 4 * b + 4) if b < 3 else (12, 13)):
            for lc in range(2):
                def op(p=p, lc=lc):
                    d = cfrag(p, lc)
                    sb, so = (sCF, 2048 * p) if p < 12 else (sCH, 2048 * (p - 12))
                    if cfg.crot and p < 12: sb, so = sCB[p // 4], 2048 * (p % 4)
                    a(f"s_add_u32 s11, s{sb}, {so}")
                    vm.issue(('c', b), f"buffer_load_dwordx4 v[{d}:{d+3}], v{(vCe, vCo)[lc]}, s[{SRD_WS}:{SRD_WS+3}], s11 offen sc1")
                L.append(op)
        return L
    def w_write(ps):
        vm.wait(('w', ps[-1]))
        base = WSLOT[ps[0]]
        a(f"v_add_u32 v{vT+4}, {base}, v{vPQ}")
        for p in ps:
            for n in range(2):
                d = STG + (p - 12) * 8 + 4 * n
                a(f"ds_write_b128 v{vT+4}, v[{d}:{d+3}] offset:{WSLOT[p] - base + 1024*n}")
    def colsum_reads(s):
        r = R[s % 3]
        a(f"s_add_u32 s11, s{sMW}, {r + OFF_WG}")
        a(f"v_add_u32 v{vT}, s11, v{vP}")
        a(f"s_add_u32 s11, s{sMB}, {r + OFF_BB}")
        a(f"v_add_u32 v{vT+1}, s11, v{vP}")
        a(f"ds_read_b128 v[{RD}:{RD+3}], v{vT}")
        a(f"ds_read_b128 v[{RD+4}:{RD+7}], v{vT} offset:1024")
        a(f"ds_read_b128 v[{RD+8}:{RD+11}], v{vT} offset:8192")
        a(f"ds_read_b128 v[{RD+12}:{RD+15}], v{vT} offset:9216")
        a(f"ds_read_b128 v[{RD+16}:{RD+19}], v{vT+1}")
    def colsum_ops():
        L = ["s_waitcnt lgkmcnt(0)"]
        for n in range(4):
            for d in range(4):
                w = RD + 4 * n + d
                ac = CA + (n >> 1) * 8 + 2 * d
                L.append(f"v_lshlrev_b32 v{vT+2}, 16, v{w}")
                L.append(f"v_and_b32 v{vT+3}, s71, v{w}")
                L.append(f"v_add_f32 v{ac}, v{ac}, v{vT+2}")
                L.append(f"v_add_f32 v{ac+1}, v{ac+1}, v{vT+3}")
        for d in range(4):
            w = RD + 16 + d
            L.append(f"v_lshlrev_b32 v{vT+2}, 16, v{w}")
            L.append(f"v_and_b32 v{vT+3}, s71, v{w}")
            L.append(f"v_add_f32 v{vT+2}, v{vT+2}, v{vT+3}")
            L.append(f"v_add_f32 v{ACC}, v{ACC}, v{vT+2}")
        return L

    stage_ops = {}
    cdone = set()
    def tok_ops(toks):
        L = []
        for t in toks:
            if t[0] == 's':
                st = int(t[1])
                if st not in stage_ops: stage_ops[st] = issue_ops(st)
                lo, hi = (0, 13) if ':' not in t else map(int, t.split(':')[1].split('-'))
                L += stage_ops[st][lo:hi]
            elif t[0] == 'w': L += w_ops([int(t[1:])])
            elif t[0] == 'c':
                lo, hi = (0, 8) if ':' not in t else map(int, t.split(':')[1].split('-'))
                L += c_ops(int(t[1]))[lo:hi]
                cdone.add(int(t[1]))
            else: L.append(lambda t=t: special(t))
        return L
    def run_tokens(toks):
        for o in tok_ops(toks): o()
    def special(t):
        if True:
            if t == 'put':
                vm.wait('stats')
                a(f"s_lshl_b32 s11, s{S_W4}, 9")
                a(f"s_add_u32 s11, s11, {STATS_L}")
                a(f"v_lshl_add_u32 v{vT+4}, v0, 3, s11")
                a(f"ds_write_b64 v{vT+4}, v[20:21]")
                a(f"v_lshlrev_b32 v{vT+4}, 3, v0")
                a(f"v_add_u32 v{vT+4}, {ST2_L}, v{vT+4}")
                a(f"ds_write_b64 v{vT+4}, v[22:23]")
            elif t == 'e':
                a(f"s_add_u32 s12, s41, {16*896}")
                vm.issue('e', f"buffer_load_dwordx4 v[{XRAW}:{XRAW+3}], v20, s[{SRD_X}:{SRD_X+3}], s41 offen")
                vm.issue('e', f"buffer_load_dwordx4 v[{XRAW+4}:{XRAW+7}], v20, s[{SRD_X}:{SRD_X+3}], s12 offen")
                vm.issue('e', f"global_load_ushort v{KP+23}, v21, s[{P_DSK2}:{P_DSK2+1}]")
            elif t == 'm':
                a(f"v_lshlrev_b32 v{vP}, 4, v0")
                a("s_lshl_b32 s12, s2, 2")
                a(f"s_add_u32 s12, s12, s{S_W4}")
                a("s_lshl_b32 s12, s12, 10")
                a(f"s_add_u32 s12, s12, {192*3584}")
                vm.issue('m', f"buffer_load_dwordx4 v[140:143], v{vP}, s[{SRD_A}:{SRD_A+3}], s12 offen")
                vm.issue('m', f"buffer_load_dwordx4 v[140:143], v{vP}, s[{SRD_B}:{SRD_B+3}], s12 offen")
                a(f"s_and_b32 s12, s{S_W4}, 1")
                a("s_lshl_b32 s11, s2, 1")
                a("s_add_u32 s12, s12, s11")
                a("s_lshl_b32 s12, s12, 10")
                vm.issue('m', f"buffer_load_dwordx4 v[140:143], v{vP}, s[{SRD_C}:{SRD_C+3}], s12 offen")
            elif t == 'k':
                a("s_waitcnt lgkmcnt(0)")
            elif t == 'init':
                a(f"v_mov_b32 v26, 0")
                vm.issue('init', f"global_load_dword v5, v26, s[{P_DBG}:{P_DBG+1}] sc1")
            elif t == 'fetch':
                vm.wait('init')
                def cond():
                    a(f"v_readfirstlane_b32 s11, v5")
                    a(f"s_cmp_ge_u32 s11, {INIT_N}")
                spin_check(a, "L_init", [f"global_load_dword v5, v26, s[{P_DBG}:{P_DBG+1}] sc1"], cond, 8)
                if cfg.ts == 1 and cfg.tsset == 3: a(f"s_add_u32 s{TS0+18}, s73, 1")
                if cfg.crot:
                    a(f"s_and_b32 s11, s{S_SLOT}, 3")
                    a("s_lshl_b32 s11, s11, 1")
                    a("s_lshr_b32 s12, 0x924, s11")
                    for b in range(3):
                        a(f"s_bfe_u32 s11, s12, {(2 << 16) | (2 * b):#x}")
                        a("s_lshl_b32 s11, s11, 13")
                        a(f"s_add_u32 s{sCB[b]}, s11, s{sCF}")
                a(f"s_lshl_b32 s11, s{S_MT}, 8")
                a(f"s_lshl_b32 s12, s{S_W4}, 6")
                a("s_add_u32 s11, s11, s12")
                a(f"v_add_lshl_u32 v5, v0, s11, 3")
                a(f"s_lshl_b32 s12, s{S_M64}, 6")
                a(f"v_add_lshl_u32 v26, v0, s12, 3")
                a(f"s_mov_b32 s11, {WS_STATS:#x}")
                vm.issue('stats', f"buffer_load_dwordx2 v[20:21], v5, s[{SRD_WS}:{SRD_WS+3}], s11 offen sc1")
                vm.issue('stats', f"buffer_load_dwordx2 v[22:23], v26, s[{SRD_WS}:{SRD_WS+3}], s11 offen sc1")
            else: raise ValueError(t)
    win = cfg.win
    run_tokens([f"s0:0-{cfg.s0a}"])
    if cfg.s0a == 13:
        ts(1)
        ts.x(1, 6)
        run_tokens(win.get(-1, []))
        a("s_setprio 0")
    a(f"s_and_b32 s12, s{S_W4}, 1")
    a(f"v_lshlrev_b32 v{vP}, 4, v0")
    a(f"v_add_u32 v{vPQ}, s{sMP}, v{vP}")
    a(f"s_mul_i32 s14, s{S_W4}, 448")
    a(f"v_add_u32 v{vT}, s14, v{vA}")
    a(f"v_mul_u32_u24 v{vWd}, 896, v{vT}")
    a(f"v_lshl_add_u32 v{vWd}, v{vT+4}, 4, v{vWd}")
    a(f"s_lshl_b32 s14, s{S_NT}, 7")
    a(f"v_add_u32 v{vWd}, s14, v{vWd}")
    a(f"v_and_b32 v{vT+1}, 3, v0")
    a("s_mov_b32 s71, 0xffff0000")
    for k in range(17): a(f"v_mov_b32 v{ACC+k}, 0")
    srd(a, SRD_WS, P_WS, WS_SIZE)
    a(f"s_mov_b64 s[{P_DSK2}:{P_DSK2+1}], s[{P_DSK}:{P_DSK+1}]")
    srd(a, SRD_WD, P_WD, 1792 * 896)
    p2_rot(a, cfg, sRF, sBlk, sFlip)
    a(f"s_lshl_b32 s11, s{S_M64}, 1")
    a("s_add_u32 s40, s11, s12")
    a("s_lshl_b32 s12, s40, 5")
    a(f"v_lshrrev_b32 v{vT}, 2, v0")
    a(f"v_add_u32 v{vT}, s12, v{vT}")
    a(f"v_mul_u32_u24 v{vT}, 896, v{vT}")
    a(f"v_lshl_add_u32 v20, v{vT+1}, 4, v{vT}")
    a(f"v_lshrrev_b32 v{vT+2}, 5, v0")
    a(f"v_lshl_add_u32 v{vT}, v{vT+2}, 4, s12")
    a(f"s_lshr_b32 s13, s{S_W4}, 1")
    a("s_lshl_b32 s12, s13, 5")
    a(f"s_lshl_b32 s11, s{S_NT}, 6")
    a("s_add_u32 s11, s11, s12")
    a("s_lshl_b32 s41, s11, 1")
    a(f"v_and_b32 v{vT+3}, 31, v0")
    a(f"v_add_u32 v{vT+1}, s11, v{vT+3}")
    a(f"v_mul_u32_u24 v{vT}, 448, v{vT}")
    a(f"v_add_lshl_u32 v{vO}, v{vT}, v{vT+1}, 2")
    a(f"v_lshlrev_b32 v21, 1, v{vT+1}")
    a("s_lshl_b32 s12, s13, 10")
    a(f"v_add_u32 v{vCe}, s12, v{vP}")
    a(f"v_xor_b32 v{vCo}, 1024, v{vCe}")
    a(f"s_lshl_b32 s11, s{S_NT}, 1")
    a("s_add_u32 s11, s11, s13")
    a(f"s_mul_i32 s11, s11, {28*2048}")
    a(f"s_add_u32 s11, s11, {WS_CP:#x}")
    a(f"s_and_b32 s12, s{S_W4}, 1")
    a(f"s_lshl_b32 s{sCF}, s12, 15")
    a(f"s_add_u32 s{sCF}, s{sCF}, s11")
    a(f"s_lshl_b32 s{sCH}, s12, 12")
    a(f"s_add_u32 s{sCH}, s{sCH}, s11")
    a(f"s_add_u32 s{sCH}, s{sCH}, {12*2048}")
    a(f"v_bfe_u32 v{vT}, v0, 4, 1")
    a(f"v_lshlrev_b32 v{vT+1}, 2, v{vT}")
    a(f"v_xor_b32 v{vC}, v{vC}, v{vT+1}")
    a(f"v_lshlrev_b32 v{vC}, 5, v{vC}")
    a(f"v_lshl_add_u32 v{vC}, v{vT}, 9, v{vC}")
    a(f"v_lshl_add_u32 v{vC}, v{vT+2}, 8, v{vC}")
    a(f"s_add_u32 s11, s{sMB}, {CP_L}")
    a(f"v_add_u32 v{vC}, s11, v{vC}")
    a(f"s_lshl_b32 s11, s{S_W4}, 5")
    a(f"s_add_u32 s11, s11, {C_L + 512}")
    a(f"v_lshl_add_u32 v{vA}, v{vA}, 2, s11")
    ts.x(1, 8)
    LR, LI, CR, CI, L16R, L16I, PWR, PWI, L64R, L64I, LWR, LWI, W0R = [KP + k for k in range(13)]
    vTW, vTR, vCB, vStS, vAg, vPr, vF = [KP + k for k in range(16, 23)]
    a(f"s_lshl_b32 s21, s{S_NS}, 7")
    a(f"s_mul_i32 s22, s{S_MT}, 3584")
    a("s_add_u32 s22, s22, s21")
    a(f"s_add_u32 s22, s22, {WS_AGG - AGG_L:#x}")
    a(f"s_mov_b32 s23, {WS_AGG:#x}")
    a(f"s_mov_b32 s20, {WS_AGG + 4*3584:#x}")
    a(f"s_lshl_b32 s18, s{S_M64}, 10")
    a(f"s_and_b32 s11, s{S_W4}, 1")
    a("s_lshl_b32 s11, s11, 7")
    a("s_add_u32 s18, s18, s11")
    a(f"s_add_u32 s18, s18, {WS_FLAG + 512:#x}")
    a(f"s_lshl_b32 s11, s{S_MT}, 2")
    a(f"s_add_u32 s11, s11, s{S_W4}")
    a(f"s_mul_i32 s19, s11, {2*RT_BYTES}")
    a(f"s_lshl_b32 s11, s{S_NS}, 10")
    a("s_add_u32 s19, s19, s11")
    a(f"s_add_u32 s19, s19, {56*1024}")
    for g in range(7):
        a(f"s_add_u32 s12, s{sRF}, {g}")
        a("s_cmp_ge_u32 s12, 7")
        a("s_cselect_b32 s13, 7, 0")
        a("s_sub_u32 s12, s12, s13")
        a(f"s_mul_i32 s{sGrp[g]}, s12, {64*896}")
    a(f"s_add_u32 s11, s{sMX}, {R[2]}")
    a(f"v_add_u32 v{vT+4}, s11, v{vP}")
    kparts = {}
    if cfg.s0a < 13:
        run_tokens([f"s0:{cfg.s0a}-13"])
        ts(1)
        ts.x(1, 6)
        run_tokens(win.get(-1, []))
    a(f"s_setprio {cfg.wprio}")
    for s in range(7):
        vm.wait(('st', s))
        ts.x(2, 1 + s)
        a("s_barrier")
        ts.x(3, 1 + s)
        if s == 0: ts(2)
        if s == 0:
            for k in range(6): a(f"ds_read_b128 v[{KP+4*k}:{KP+4*k+3}], v{vT+4} offset:{1024*k}")
        if s == 6:
            QQ = 28
            for p in range(8): a(f"ds_read_b32 v{QQ+p}, v{vT+1} offset:{512*p}")
            a("s_waitcnt lgkmcnt(0)")
            for p in range(4): a(f"v_add_f32 v{QQ+p}, v{QQ+p}, v{QQ+4+p}")
            a(f"v_add_f32 v{QQ}, v{QQ}, v{QQ+2}")
            a(f"v_add_f32 v{QQ+1}, v{QQ+1}, v{QQ+3}")
            a(f"v_add_f32 v{QQ}, v{QQ}, v{QQ+1}")
            a(f"ds_write_b32 v{vT}, v{QQ}")
            npre = win[6].index("put") + 1 if "put" in win[6] else 2
            pre = tok_ops(win[6][:npre])
            for o in pre: o()
            a("s_waitcnt lgkmcnt(0)")
            a("s_barrier")
            a("s_setprio 0")
            run_tokens(win[6][npre:])
            continue
        segs = [[None, []]]
        for t in win.get(s, []):
            if t.startswith("cs"): segs.append([int(t[2:]), []])
            else: segs[-1][1].append(t)
        for cs, toks in segs:
            fl = []
            if cs is not None:
                vm.wait(('st', cs))
                colsum_reads(cs)
                fl = colsum_ops()
            if cs == 6:
                b = ACC
                for k in range(8): fl.append(f"v_permlane32_swap_b32 v{CA+k}, v{CA+8+k}")
                fl.append(f"v_add_f32_dpp v{b}, v{b}, v{b} quad_perm:[1,0,3,2] row_mask:0xf bank_mask:0xf")
                for k in range(8): fl.append(f"v_add_f32 v{CA+k}, v{CA+k}, v{CA+8+k}")
                fl.append(f"v_add_f32_dpp v{b}, v{b}, v{b} quad_perm:[2,3,0,1] row_mask:0xf bank_mask:0xf")
                for k in range(8): fl.append(f"v_add_f32_dpp v{CA+k}, v{CA+k}, v{CA+k} row_ror:8 row_mask:0xf bank_mask:0xf")
                fl.append(f"v_add_f32_dpp v{b}, v{b}, v{b} row_half_mirror row_mask:0xf bank_mask:0xf")
                fl.append(f"ds_write_b128 v{vC}, v[{CA}:{CA+3}]")
                fl.append(f"ds_write_b128 v{vC}, v[{CA+4}:{CA+7}] offset:16")
                fl.append(f"ds_write_b32 v{vA}, v{b}")
            ops = tok_ops(toks)
            per = max(1, -(-len(fl) // max(1, len(ops))))
            interleave(a, ops, fl, per)
        if s == 5:
            a(f"s_and_b32 s12, s{S_W4}, 1")
            a("s_lshl_b32 s12, s12, 8")
            a(f"v_lshl_add_u32 v{vT}, v0, 2, s12")
            a(f"v_add_u32 v{vT+1}, {CP_L}, v{vT}")
            a(f"v_add_u32 v{vT}, {C_L}, v{vT}")
            a("s_waitcnt lgkmcnt(0)")
            a("s_setprio 3")
    ts.x(2, 8)
    a("s_barrier")
    ts(3)
    ts.x(3, 8)
    a(f"v_add_u32 v{vT+2}, {SD}, v{vPQ}")
    vm.wait(('w', 11), "lgkmcnt(0)")
    a("s_barrier")
    X, Y, ST = 32, 48, CF
    HR, HI, T1, T2, CBR, CBI, G0, G1, QR, QI = 20, 21, 22, 23, 24, 25, 26, 28, 30, 31
    for k in range(8): a(f"ds_read_b128 v[{X+4*k}:{X+4*k+3}], v{vT+2} offset:{1024*k}")
    a(f"ds_read_b32 v{CBR}, v{vCB}")
    a(f"ds_read_b32 v{CBI}, v{vCB} offset:64")
    for k in range(8): a(f"ds_read_b128 v[{ST+4*k}:{ST+4*k+3}], v{vStS} offset:{16*k}")
    a(f"s_setprio {cfg.eprio}")
    a(f"v_lshrrev_b32 v1, 4, v0")
    a(f"v_sub_u32 v1, s{S_MT}, v1")
    a(f"v_cmp_le_i32 s[56:57], 1, v1")
    a(f"v_cmp_le_i32 s[58:59], 5, v1")
    a(f"v_lshlrev_b32 v5, 16, v{KP+23}")
    a(f"v_mov_b32 v3, v{vF}")
    vF = 3
    a("s_waitcnt lgkmcnt(10)")
    for r in range(16): a(f"v_permlane16_swap_b32 v{X+r}, v{Y+r}")
    a("s_waitcnt lgkmcnt(0)")
    side = {}
    for r in range(16):
        if r in side: side[r]()
        m, rs = ST + 2 * r, ST + 2 * r + 1
        a(f"v_fma_f32 v{X+r}, -v{m}, v{CBR}, v{X+r}")
        a(f"v_fma_f32 v{Y+r}, -v{m}, v{CBI}, v{Y+r}")
        a(f"v_mul_f32 v{X+r}, v{X+r}, v{rs}")
        a(f"v_mul_f32 v{Y+r}, v{Y+r}, v{rs}")
        if r >= 1:
            pr, pi = (X, Y) if r == 1 else (HR, HI)
            a(f"v_fma_f32 v{T1}, -v{LI}, v{pi}, v{X+r}")
            a(f"v_fma_f32 v{T2}, v{LI}, v{pr}, v{Y+r}")
            a(f"v_fma_f32 v{HR}, v{LR}, v{pr}, v{T1}")
            a(f"v_fma_f32 v{HI}, v{LR}, v{pi}, v{T2}")
    z = CF
    a(f"v_mov_b32 v{z}, v{HR}"); a(f"v_mov_b32 v{z+1}, v{HI}")
    csq(a, z + 8, z + 9, L16R, L16I, z + 10)
    a(f"v_permlane32_swap_b32 v{HR}, v{z}")
    a(f"v_permlane32_swap_b32 v{HI}, v{z+1}")
    a(f"v_fma_f32 v{z}, -v{L16I}, v{HI}, v{z}")
    a(f"v_fma_f32 v{z+1}, v{L16I}, v{HR}, v{z+1}")
    a(f"v_fmac_f32 v{z}, v{L16R}, v{HR}")
    a(f"v_fmac_f32 v{z+1}, v{L16R}, v{HI}")
    a(f"v_mov_b32 v{z+2}, v{z}"); a(f"v_mov_b32 v{z+3}, v{z+1}")
    a(f"s_lshl_b32 s11, s{S_W4}, 7")
    a(f"v_add_u32 v{z+5}, s11, v{vAg}")
    a(f"v_permlane16_swap_b32 v{z}, v{z+2}")
    a(f"v_permlane16_swap_b32 v{z+1}, v{z+3}")
    a(f"v_fma_f32 v{z+2}, -v{z+9}, v{z+1}, v{z+2}")
    a(f"v_fma_f32 v{z+3}, v{z+9}, v{z}, v{z+3}")
    a(f"v_fmac_f32 v{z+2}, v{z+8}, v{z}")
    a(f"v_fmac_f32 v{z+3}, v{z+8}, v{z+1}")
    a(f"ds_write_b64 v{z+5}, v[{z+2}:{z+3}]")
    a("s_waitcnt lgkmcnt(0)")
    ts.x(2, 9)
    a(f"s_setprio {cfg.lprio}")
    a("s_barrier")
    ts(4)
    E = CF + 16
    for i in range(4): a(f"ds_read_b64 v[{E+2+2*i}:{E+3+2*i}], v{vAg} offset:{128*i}")
    a(f"v_mov_b32 v{E}, 0")
    a(f"v_mov_b32 v{E+1}, 0")
    a(f"v_and_b32 v{z+4}, 16, v0")
    a(f"v_cmp_ne_u32 s[12:13], 0, v{z+4}")
    for i in range(1, 4):
        e, p = E + 2 + 2 * i, E + 2 * i
        a(f"s_waitcnt lgkmcnt({3 - i})")
        a(f"v_fma_f32 v{e}, -v{L64I}, v{p+1}, v{e}")
        a(f"v_fma_f32 v{e+1}, v{L64I}, v{p}, v{e+1}")
        a(f"v_fmac_f32 v{e}, v{L64R}, v{p}")
        a(f"v_fmac_f32 v{e+1}, v{L64R}, v{p+1}")
    a(f"s_cmp_lg_u32 s{S_W4}, 0")
    a("s_cbranch_scc1 L_l_nopub")
    e = E + 8
    a(f"v_cmp_eq_u32 vcc, -1, v{e}")
    a(f"v_mov_b32 v{T1}, 0x7fc00000")
    a(f"v_cndmask_b32 v{e}, v{e}, v{T1}, vcc")
    a("s_mov_b64 exec, 0xffff")
    a(f"buffer_store_dwordx2 v[{e}:{e+1}], v{vAg}, s[{SRD_WS}:{SRD_WS+3}], s22 offen sc1")
    a("s_mov_b64 exec, -1")
    ts(5)
    a.label("L_l_nopub")
    a(f"v_cmp_lt_u32 vcc, 31, v0")
    a(f"v_cndmask_b32 v{z}, 0, v{z}, s[12:13]")
    a(f"v_cndmask_b32 v{z+1}, 0, v{z+1}, s[12:13]")
    a(f"v_fma_f32 v{HR}, -v{L16I}, v{z+1}, v{HR}")
    a(f"v_fma_f32 v{HI}, v{L16I}, v{z}, v{HI}")
    a(f"v_fmac_f32 v{HR}, v{L16R}, v{z}")
    a(f"v_fmac_f32 v{HI}, v{L16R}, v{z+1}")
    a(f"v_cndmask_b32 v{z}, v{z}, v{HR}, vcc")
    a(f"v_cndmask_b32 v{z+1}, v{z+1}, v{HI}, vcc")
    cmul(a, HR, HI, z, z + 1, CR, CI)
    a(f"s_bitcmp1_b32 s{S_W4}, 0")
    a("s_cselect_b64 vcc, -1, 0")
    a(f"v_cndmask_b32 v{QR}, v{E}, v{E+2}, vcc")
    a(f"v_cndmask_b32 v{QI}, v{E+1}, v{E+3}, vcc")
    a(f"v_cndmask_b32 v{T1}, v{E+4}, v{E+6}, vcc")
    a(f"v_cndmask_b32 v{T2}, v{E+5}, v{E+7}, vcc")
    a(f"s_bitcmp1_b32 s{S_W4}, 1")
    a("s_cselect_b64 vcc, -1, 0")
    a(f"v_cndmask_b32 v{QR}, v{QR}, v{T1}, vcc")
    a(f"v_cndmask_b32 v{QI}, v{QI}, v{T2}, vcc")
    ts.x(2, 10)
    thr[0] = cfg.thr
    lds = [f"buffer_load_dwordx2 v[{G0}:{G0+1}], v{vPr}, s[{SRD_WS}:{SRD_WS+3}], s23 offen sc1",
           f"buffer_load_dwordx2 v[{G1}:{G1+1}], v{vPr}, s[{SRD_WS}:{SRD_WS+3}], s20 offen sc1"]
    up = Rec()
    for r in range(16):
        up(f"v_mul_f32 v{T1}, v{CI}, v{Y+r}")
        up(f"v_mul_f32 v{T2}, v{CI}, v{X+r}")
        up(f"v_fma_f32 v{X+r}, v{CR}, v{X+r}, -v{T1}")
        up(f"v_fma_f32 v{Y+r}, v{CR}, v{Y+r}, v{T2}")
    vRd, vOne = 4, 2
    a(f"s_lshl_b32 s11, s{S_W4}, 2")
    a(f"s_add_u32 s11, s11, {CNT_L + 16}")
    a(f"v_mov_b32 v{vRd}, s11")
    a(f"v_mov_b32 v{vOne}, 1")
    thr[0] = None
    co = w_ops(range(22, 28)) + (c_ops(0) if cfg.c0early else [])
    interleave(a, co[:cfg.c1], up.L, 4)
    if cfg.agpos == 0:
        for t in lds: vm.issue('ag', t)
    w_write([12, 13, 14, 15])
    a(f"ds_write_b32 v{vRd}, v{vOne}")
    XV, STT, DS = 64, 80, 5
    TT = SACC + 32
    vHW = 1
    a(f"v_add_u32 v{vHW}, {HTS}, v{vPQ}")
    a(f"ds_write_b128 v{vHW}, v[{XRAW}:{XRAW+3}]")
    a(f"ds_write_b128 v{vHW}, v[{XRAW+4}:{XRAW+7}] offset:1024")
    a(f"v_lshrrev_b32 v{vT+3}, 5, v0")
    a(f"v_lshlrev_b32 v{vT+2}, 10, v{vT+3}")
    a(f"v_and_b32 v{vT}, 31, v0")
    a(f"v_lshl_add_u32 v{vT+2}, v{vT}, 1, v{vT+2}")
    a(f"s_add_u32 s11, s{sMP}, {HTS}")
    a(f"v_add_u32 v{vT+2}, s11, v{vT+2}")
    for r in range(16): a(f"ds_read_u16 v{XV+r}, v{vT+2} offset:{64*r}")
    if cfg.agpos == 1:
        for t in lds: vm.issue('ag', t)
    w_write([16, 17])
    def wrest():
        w_write([18, 19])
        w_write([20, 21])
        a(f"v_mov_b32 v{T1}, 2")
        a(f"ds_write_b32 v{vRd}, v{T1}")
    if not cfg.wl: wrest()
    co = co[cfg.c1:]
    ts(8)
    vm.wait('ag')
    def cond():
        a(f"v_cmp_eq_u32 vcc, -1, v{G0}")
        a("s_and_b64 s[48:49], vcc, s[56:57]")
        a(f"v_cmp_eq_u32 vcc, -1, v{G1}")
        a("s_and_b64 s[50:51], vcc, s[58:59]")
        a("s_or_b64 s[48:49], s[48:49], s[50:51]")
        a("s_cmp_eq_u64 s[48:49], 0")
    spin_check(a, "L_agg", lds, cond, 2)
    ts(6)
    SR, SI = CBR, CBI
    cmul(a, SR, SI, G0, G0 + 1, W0R, W0R + 1)
    cmul(a, T1, T2, G1, G1 + 1, W0R + 2, W0R + 3)
    a(f"v_cndmask_b32 v{SR}, 0, v{SR}, s[56:57]")
    a(f"v_cndmask_b32 v{SI}, 0, v{SI}, s[56:57]")
    a(f"v_cndmask_b32 v{T1}, 0, v{T1}, s[58:59]")
    a(f"v_cndmask_b32 v{T2}, 0, v{T2}, s[58:59]")
    a(f"v_add_f32 v{SR}, v{SR}, v{T1}")
    a(f"v_add_f32 v{SI}, v{SI}, v{T2}")
    for sw in ("v_permlane32_swap_b32", "v_permlane16_swap_b32"):
        a(f"v_mov_b32 v{T1}, v{SR}")
        a(f"v_mov_b32 v{T2}, v{SI}")
        a(f"{sw} v{SR}, v{T1}")
        a(f"{sw} v{SI}, v{T2}")
        a(f"v_add_f32 v{SR}, v{SR}, v{T1}")
        a(f"v_add_f32 v{SI}, v{SI}, v{T2}")
    a(f"v_fmac_f32 v{QR}, v{LWR}, v{SR}")
    a(f"v_fmac_f32 v{QI}, v{LWR}, v{SI}")
    a(f"v_fma_f32 v{QR}, -v{LWI}, v{SI}, v{QR}")
    a(f"v_fmac_f32 v{QI}, v{LWI}, v{SR}")
    a(f"v_fmac_f32 v{HR}, v{PWR}, v{QR}")
    a(f"v_fmac_f32 v{HI}, v{PWR}, v{QI}")
    a(f"v_fma_f32 v{HR}, -v{PWI}, v{QI}, v{HR}")
    a(f"v_fmac_f32 v{HI}, v{PWI}, v{QR}")
    pr, pi = HR, HI
    PK, HF = 96, 80
    rest = co[:cfg.c2]
    for r in range(16):
        if rest: rest.pop(0)()
        a(f"v_fma_f32 v{X+r}, -v{LI}, v{pi}, v{X+r}")
        a(f"v_fma_f32 v{Y+r}, v{LI}, v{pr}, v{Y+r}")
        a(f"v_fmac_f32 v{X+r}, v{LR}, v{pr}")
        a(f"v_fmac_f32 v{Y+r}, v{LR}, v{pi}")
        pr, pi = X + r, Y + r
    for k in range(8):
        a(f"v_cvt_pk_bf16_f32 v{PK+k}, v{X+2*k}, v{X+2*k+1}")
    a(f"ds_write_b128 v{vTW}, v[{PK}:{PK+3}]")
    a(f"ds_write_b128 v{vTW}, v[{PK+4}:{PK+7}] offset:16")
    for k in range(8):
        a(f"v_cvt_pk_bf16_f32 v{PK+8+k}, -v{Y+2*k}, -v{Y+2*k+1}")
    a(f"ds_write_b128 v{vTW}, v[{PK+8}:{PK+11}] offset:2048")
    a(f"ds_write_b128 v{vTW}, v[{PK+12}:{PK+15}] offset:2064")
    for q in range(2):
        for part in range(2):
            for j in range(2):
                d = HF + 8 * q + 4 * part + 2 * j
                a(f"ds_read_b64_tr_b16 v[{d}:{d+1}], v{vTR} offset:{(part*16 + 4*j)*128 + 64*(q ^ j)}")
    assert not rest
    a("s_waitcnt lgkmcnt(0)")
    for q in range(2):
        for part in range(2):
            d = HF + 8 * q + 4 * part
            a(f"s_add_u32 s11, s19, {q*RT_BYTES + part*HALF_BYTES}")
            vm.issue('hs', f"buffer_store_dwordx4 v[{d}:{d+3}], v{vP}, s[{SRD_WS}:{SRD_WS+3}], s11 offen{SP}")
    if cfg.wl: wrest()
    def flag2():
        vm.wait('hs')
        a("s_mov_b64 exec, 1")
        vm.issue('f', f"buffer_store_dword v{vOne}, v{vF}, s[{SRD_WS}:{SRD_WS+3}], 0 offen sc1")
        a("s_mov_b64 exec, -1")
        ts(7)
    if cfg.f2b == 0: flag2()
    for o in co[cfg.c2:] + (c_ops(2) if not cfg.clate else []): o()
    if cfg.f2b == 1: flag2()
    a(f"s_and_b32 s11, s{S_W4}, 1")
    a("s_lshl_b32 s11, s11, 8")
    a(f"s_add_u32 s11, s11, {ST2_L}")
    a(f"v_lshl_add_u32 v{vT+3}, v{vT+3}, 7, s11")
    STT = 32
    for k in range(8): a(f"ds_read_b128 v[{STT+4*k}:{STT+4*k+3}], v{vT+3} offset:{16*k}")
    for r in range(16): a(f"v_lshlrev_b32 v{XV+r}, 16, v{XV+r}")
    a("s_waitcnt lgkmcnt(0)")
    a("s_setprio 0")
    def rnd_pair(r0, r1):
        a(f"v_cvt_pk_bf16_f32 v{r1}, v{r0}, v{r1}"); a(f"v_lshlrev_b32 v{r0}, 16, v{r1}"); a(f"v_and_b32 v{r1}, s71, v{r1}")
    for r in range(16): a(f"v_sub_f32 v{TT+r}, v{XV+r}, v{STT+2*r}")
    for k in range(8): rnd_pair(TT + 2 * k, TT + 2 * k + 1)
    a(f"v_mov_b32 v{T2}, 3")
    vm.wait(('w', 27))
    a(f"ds_write_b32 v{vRd}, v{T2}")
    for r in range(16): a(f"v_mul_f32 v{TT+r}, v{TT+r}, v{STT+2*r+1}")
    for k in range(8): rnd_pair(TT + 2 * k, TT + 2 * k + 1)
    for r in range(16): a(f"v_mul_f32 v{TT+r}, v{TT+r}, v{DS}")
    for k in range(8): rnd_pair(TT + 2 * k, TT + 2 * k + 1)
    def poll(name, off):
        sspin(a, name, [f"s_load_dwordx16 s[20:35], s[{P_WS}:{P_WS+1}], s18 glc"], pcond, cfg.psleep)
    if True:
        def pcond():
            for k in range(0, 12, 4): a(f"s_and_b64 s[{20+k}:{21+k}], s[{20+k}:{21+k}], s[{22+k}:{23+k}]")
            a("s_and_b64 s[20:21], s[20:21], s[24:25]")
            a("s_and_b64 s[28:29], s[28:29], s[32:33]")
            a("s_and_b64 s[20:21], s[20:21], s[28:29]")
            a("s_and_b32 s20, s20, s21")
            a("s_cmp_eq_u32 s20, 1")
    a(f"s_mul_i32 s57, s40, {RT_BYTES}")
    a("s_xor_b32 s11, s40, 1")
    a(f"s_mul_i32 s56, s11, {RT_BYTES}")
    a(f"s_lshr_b32 s11, s{S_W4}, 1")
    a(f"s_mul_i32 s11, s11, {HALF_BYTES}")
    a(f"s_add_u32 s11, s11, {56*1024}")
    a("s_add_u32 s56, s56, s11")
    a("s_add_u32 s57, s57, s11")
    a(f"s_and_b32 s12, s{S_W4}, 1")
    a("s_lshl_b32 s13, s12, 14")
    for b in range(3):
        if cfg.crot:
            a(f"s_sub_u32 s11, s{sCB[b]}, s{sCF}")
            a("s_lshr_b32 s11, s11, 1")
            a(f"s_add_u32 s{52+b}, s13, s11")
        else: a(f"s_add_u32 s{52+b}, s13, {b*4096}")
    a("s_lshl_b32 s12, s12, 11")
    a(f"s_add_u32 s55, s12, {12*1024}")
    srd(a, 60, P_OUT, 2048 * 1792)
    vW1, vW2, vCn, vCv = 1, 2, 9, 4
    vR = [3, 12, 13, 14]
    a(f"v_add_u32 v{vW1}, {PH1}, v{vPQ}")
    a(f"v_add_u32 v{vW2}, {PH2}, v{vPQ}")
    a(f"v_mov_b32 v{vCn}, {CNT_L}")
    for (reg, xr, base) in ((vR[0], 1, PH1), (vR[1], 3, PH1 + 4096), (vR[2], 2, PH2)):
        a(f"s_xor_b32 s11, s{S_W4}, {xr}")
        a(f"s_mul_i32 s11, s11, {Q}")
        a(f"s_add_u32 s11, s11, {base}")
        a(f"v_add_u32 v{reg}, s11, v{vP}")
    a(f"v_add_u32 v{vR[3]}, {GA}, v{vPQ}")
    ts.x(2, 11)
    ts.x(7, 11)
    AR = list(range(16, 64, 4))
    NA = len(AR)
    PO = [4, 5, 6, 7, 12, 13, 0, 1, 2, 3, 8, 9, 10, 11]
    def aload(n):
        lr, p = n // 14, PO[n % 14]
        if p % 4 == 0: a(f"s_add_u32 s58, s{56+lr}, s{52 + p//4}")
        d = AR[n % NA]
        vm.issue(('a', n), f"buffer_load_dwordx4 v[{d}:{d+3}], v{vP}, s[{SRD_WS}:{SRD_WS+3}], s58 offen offset:{(p%4)*1024}{AP}")
    def cnt_wait(name, off):
        a("s_mov_b32 s73, 0")
        a.label(name)
        a("s_waitcnt lgkmcnt(0)")
        a(f"v_readfirstlane_b32 s11, v{vCv}")
        a("s_cmp_ge_u32 s11, 4")
        a(f"s_cbranch_scc1 {name}ok")
        a("s_add_u32 s73, s73, 1")
        a(f"s_cmp_ge_u32 s73, {SPIN_MAX}")
        a(f"s_cbranch_scc1 {name}ok")
        a("s_sleep 1")
        a(f"ds_read_b32 v{vCv}, v{vCn} offset:{off}")
        a(f"s_branch {name}")
        a.label(name + "ok")
        a("s_nop 7")
    assert cfg.clate == 2 and cdone == {1, 3}
    if cfg.gate == 0: poll("L_ps", 128)
    if cfg.gate < 2:
        a(f"ds_read_b32 v{vCv}, v{vCn} offset:4")
        cnt_wait("L_l_c0", 4)
    if cfg.sprio: a(f"s_setprio {cfg.sprio}")
    cc = c_ops(0) + c_ops(2)
    for o in cc[:cfg.c0n]: o()
    if cfg.gate != 0: poll("L_ps", 128)
    ts(9)
    ts.x(7, 1)
    for n in range(6): aload(n)
    for o in cc[cfg.c0n:8]: o()
    for n in range(6, 10): aload(n)
    for o in cc[max(8, cfg.c0n):]: o()
    for n in range(10, NA): aload(n)
    a("s_setprio 0")
    ts.x(7, 2)
    for n in range(28):
        lr, p = n // 14, PO[n % 14]
        vm.wait(('a', n))
        assert ('c', min(p // 4, 3)) not in vm.q
        if n in (0, 7, 14, 21): ts.x(7, 3 + n // 7)
        d = AR[n % NA]
        for lc in (1, 0):
            acc = SACC + 32 * lr + 16 * lc
            c = "0" if (n % 14 == 0 and not (lr == 1 and lc == 0)) else f"v[{acc}:{acc+15}]"
            f = cfrag(p, lc)
            a(f"v_mfma_f32_32x32x16_bf16 v[{acc}:{acc+15}], v[{d}:{d+3}], v[{f}:{f+3}], {c}")
        if n + NA < 28: aload(n + NA)
        if cfg.gate == 2 and n == 14: a(f"ds_read_b32 v{vCv}, v{vCn} offset:4")
        if cfg.gate == 2 and n == 15: cnt_wait("L_l_c0", 4)
        if 16 <= n < 24:
            k = n - 16
            a(f"ds_write_b128 v{vW1}, v[{SACC+4*k}:{SACC+4*k+3}] offset:{1024*k}")
    ts(10)
    ts.x(7, 7)
    ts.x(7, 8)
    for k in range(4):
        a(f"ds_write_b128 v{vW2}, v[{SACC+48+4*k}:{SACC+48+4*k+3}] offset:{1024*k}")
    a("s_waitcnt lgkmcnt(0)")
    ts.x(7, 9)
    a("s_barrier")
    ts(11)
    ts.x(7, 10)
    RX = CF
    for k in range(4):
        for w in range(4):
            a(f"ds_read_b128 v[{RX+16*w+4*k}:{RX+16*w+4*k+3}], v{vR[w]} offset:{1024*k}")
    for k in range(4):
        a(f"s_waitcnt lgkmcnt({12 - 4*k})")
        for r in range(4 * k, 4 * k + 4):
            a(f"v_add_f32 v{TT+r}, v{TT+r}, v{RX+r}")
            a(f"v_add_f32 v{RX+16+r}, v{RX+16+r}, v{RX+32+r}")
        for r in range(4 * k, 4 * k + 4):
            a(f"v_add_f32 v{TT+r}, v{TT+r}, v{RX+16+r}")
        for r in range(4 * k, 4 * k + 4):
            a(f"v_fma_f32 v{XV+r}, v{TT+r}, v{RX+48+r}, v{XV+r}")
            if r % 2 == 0: a(f"s_mov_b32 s11, {r*1792}")
            a(f"buffer_store_dword v{XV+r}, v{vO}, s[60:63], s11 offen offset:{(r%2)*1792}{OP}")
    if cfg.ts:
        a("s_waitcnt vmcnt(0)")
        ts(12)
    if cfg.padto:
        a.label("L_pad")
        a("s_memrealtime s[98:99]")
        a("s_waitcnt lgkmcnt(0)")
        a("s_sub_u32 s98, s98, s100")
        a(f"s_cmp_lt_u32 s98, {cfg.padto}")
        a("s_cbranch_scc1 L_pad")
    ts.dump(16, 17, 1)
    a("s_endpgm")

def gen_consumer(a, cfg, ts):
    if cfg.al >= 2: a.raw(".p2align 12")
    a.label("L_consumer")
    SP = ["", " sc1"][cfg.spol]
    AP = ['', ' sc1', ' sc1 nt', ' sc0 sc1', ' sc0', ' nt'][cfg.apol]
    vm = VM(a)
    XA = [1, 2, 3, 4]; BA = [5, 6, 7, 8]; WA = [9, 10]
    vL16, vStF, vCL, vF, vFl, vSo, vCn, vRd, vWB, vPQ, vOne, MM = 11, 12, 13, 14, 15, 16, 17, 18, 19, 20, 21, 22
    FS = [40, 68]
    ACC = 96
    def G(ft, q): return ACC + 16 * (2 * ft + q)
    def U(ft, q): return ACC + 64 + 16 * (2 * ft + q)
    def S(q): return ACC + 128 + 16 * q
    vI, vH, t0, t1, t2 = 24, 25, 26, 27, 28
    a(f"v_and_b32 v{vI}, 31, v0")
    a(f"v_lshrrev_b32 v{vH}, 5, v0")
    a(f"v_bfe_u32 v{t0}, v0, 1, 3")
    a(f"v_xor_b32 v{t0}, v{t0}, v{vH}")
    a(f"v_lshlrev_b32 v{t0}, 4, v{t0}")
    a(f"v_lshl_add_u32 v{t0}, v{vI}, 7, v{t0}")
    a(f"s_lshl_b32 s11, s{S_W4}, 13")
    for ks in range(4):
        a(f"v_xor_b32 v{t1}, {32*ks}, v{t0}")
        a(f"v_add_u32 v{XA[ks]}, s11, v{t1}")
        a(f"v_add_u32 v{BA[ks]}, {OFF_BB}, v{t1}")
    a(f"v_bfe_u32 v{t0}, v0, 2, 2")
    a(f"v_lshlrev_b32 v{t1}, 7, v{t0}")
    a(f"v_lshrrev_b32 v{t0}, 1, v{t0}")
    a(f"v_lshl_add_u32 v{t1}, v{t0}, 6, v{t1}")
    a(f"v_bfe_u32 v{t0}, v0, 4, 1")
    a(f"v_lshl_add_u32 v{t1}, v{t0}, 5, v{t1}")
    a(f"v_and_b32 v{t2}, 3, v0")
    a(f"v_lshl_add_u32 v{t1}, v{t2}, 3, v{t1}")
    a(f"v_lshl_add_u32 v{WA[0]}, v{vH}, 10, v{t1}")
    a(f"v_add_u32 v{WA[0]}, {OFF_WG}, v{WA[0]}")
    a(f"v_xor_b32 v{WA[1]}, 64, v{WA[0]}")
    a(f"s_mul_i32 s62, s{S_W4}, {Q}")
    a(f"s_lshr_b32 s59, s{S_W4}, 1")
    a(f"s_and_b32 s63, s{S_W4}, 1")
    a("s_lshl_b32 s11, s59, 6")
    a(f"v_lshl_add_u32 v{vWB}, v{vH}, 9, v{t1}")
    a(f"v_xor_b32 v{vWB}, s11, v{vWB}")
    a(f"v_add_u32 v{vWB}, s62, v{vWB}")
    a("s_waitcnt lgkmcnt(0)")
    a(f"s_lshl_b32 s11, s{S_NS}, 5")
    a(f"s_load_dwordx8 s[32:39], s[{P_LRE}:{P_LRE+1}], s11")
    a(f"s_load_dwordx8 s[64:71], s[{P_LDT}:{P_LDT+1}], s11")
    a(f"s_load_dwordx8 s[24:31], s[{P_LIM}:{P_LIM+1}], s11")
    for k in range(4 if cfg.zpeel else 160): a(f"v_mov_b32 v{ACC+k}, 0")
    a(f"v_mov_b32 v{vCn}, {CNT_L}")
    a(f"ds_write_b128 v{vCn}, v[{ACC}:{ACC+3}]")
    a(f"ds_write_b128 v{vCn}, v[{ACC}:{ACC+3}] offset:16")
    a(f"v_bfe_u32 v{t0}, v0, 2, 1")
    a(f"v_lshl_add_u32 v{t0}, v{t0}, 4, v{t2}")
    a(f"v_bfe_u32 v{t1}, v0, 3, 2")
    a(f"v_lshl_add_u32 v{t0}, v{t1}, 2, v{t0}")
    a(f"s_lshl_b32 s11, s{S_W4}, 9")
    a(f"s_add_u32 s11, s11, {STATS_L}")
    a(f"v_lshl_add_u32 v{vStF}, v{t0}, 3, s11")
    a(f"v_lshlrev_b32 v{vL16}, 4, v0")
    a(f"v_add_u32 v{vPQ}, s62, v{vL16}")
    a(f"v_lshlrev_b32 v{vCL}, 4, v{vH}")
    a(f"v_add_u32 v{vCL}, {C_L}, v{vCL}")
    a(f"v_mov_b32 v{vOne}, 1")
    a(f"s_lshl_b32 s11, s{S_W4}, 2")
    a(f"s_add_u32 s11, s11, {CNT_L + 16}")
    a(f"v_mov_b32 v{vRd}, s11")
    a("s_lshl_b32 s11, s63, 8")
    a(f"s_add_u32 s11, s11, {ST2_L}")
    a(f"v_lshl_add_u32 v{vSo}, v{vH}, 7, s11")
    a(f"s_lshl_b32 s13, s{S_MT}, 2")
    a(f"s_add_u32 s13, s13, s{S_W4}")
    a(f"s_mul_i32 s56, s13, {2*RT_BYTES}")
    a(f"s_cmp_ge_u32 s{S_NS}, 14")
    a(f"s_cselect_b32 s11, {HALF_BYTES - 56*1024}, 0")
    a(f"s_lshl_b32 s12, s{S_NS}, 12")
    a("s_add_u32 s11, s11, s12")
    a("s_add_u32 s56, s56, s11")
    a(f"s_add_u32 s57, s56, {RT_BYTES}")
    a("s_lshl_b32 s11, s13, 10")
    flag_index(a, 12, 14, 7)
    a("s_add_u32 s11, s11, s12")
    a(f"s_add_u32 s11, s11, {WS_FLAG:#x}")
    a(f"v_mov_b32 v{vF}, s11")
    a(f"s_lshl_b32 s55, s{S_M64}, 10")
    a(f"s_add_u32 s55, s55, {WS_FLAG:#x}")
    a(f"s_lshl_b32 s11, s{S_W4}, 7")
    a("s_add_u32 s55, s55, s11")
    a(f"s_mul_i32 s12, s59, {HALF_BYTES}")
    a(f"s_mul_i32 s13, s63, {28*1024}")
    a("s_add_u32 s12, s12, s13")
    a(f"s_lshl_b32 s11, s{S_M64}, 1")
    a("s_add_u32 s11, s11, s63")
    a(f"s_mul_i32 s52, s11, {RT_BYTES}")
    a("s_add_u32 s52, s52, s12")
    a("s_xor_b32 s11, s11, 1")
    a(f"s_mul_i32 s51, s11, {RT_BYTES}")
    a("s_add_u32 s51, s51, s12")
    p2_rot(a, cfg, 60, 61, 58)
    a("s_mov_b32 s12, 0x00030003")
    a("s_mov_b32 s13, 0x00030003")
    a("s_waitcnt lgkmcnt(0)")
    K, KP = 40, 64
    for k in range(8):
        a(f"s_lshl_b64 exec, s[12:13], {2*k}")
        for m, sb in enumerate((32, 24, 64)): a(f"v_mov_b32 v{K+m}, s{sb+k}")
    a("s_mov_b64 exec, -1")
    a(f"v_and_b32 v{K+3}, 1, v0")
    a(f"v_lshlrev_b32 v{K+3}, 4, v{K+3}")
    for m in range(3): a(f"v_lshrrev_b32 v{K+m}, v{K+3}, v{K+m}")
    srd(a, SRD_WS, P_WS, WS_SIZE)
    ssm_park(a, K, KP, 62)
    a(f"v_mov_b32 v{KP+23}, 0")
    a(f"s_lshl_b32 s11, s{S_W4}, 13")
    a(f"s_add_u32 s11, s11, {R[2]}")
    a(f"v_add_u32 v{K}, s11, v{vL16}")
    for k in range(6): a(f"ds_write_b128 v{K}, v[{KP+4*k}:{KP+4*k+3}] offset:{1024*k}")
    a("s_waitcnt lgkmcnt(0)")
    ts(1)

    def reads(fs, ks):
        f = FS[fs]
        L = []
        L.append(f"ds_read_b128 v[{f}:{f+3}], v{XA[ks]}")
        L.append(f"ds_read_b128 v[{f+24}:{f+27}], v{BA[ks]}")
        L.append(f"ds_read_b128 v[{f+4}:{f+7}], v{XA[ks]} offset:4096")
        for gu in range(2):
            for ft in range(2):
                for j in range(2):
                    d = f + 8 + 8 * gu + 4 * ft + 2 * j
                    L.append(f"ds_read_b64_tr_b16 v[{d}:{d+1}], v{WA[ft]} offset:{gu*8192 + ks*2048 + j*512}")
        return L
    def mfmas(fs):
        f = FS[fs]
        X = [f, f + 4]; Bf = f + 24
        L = []
        for q in range(2):
            L.append(f"v_mfma_f32_32x32x16_bf16 v[{S(q)}:{S(q)+15}], v[{X[q]}:{X[q]+3}], v[{Bf}:{Bf+3}], v[{S(q)}:{S(q)+15}]")
        for gu in range(2):
            for ft in range(2):
                w = f + 8 + 8 * gu + 4 * ft
                for q in range(2):
                    d = (G, U)[gu](ft, q)
                    L.append(f"v_mfma_f32_32x32x16_bf16 v[{d}:{d+15}], v[{w}:{w+3}], v[{X[q]}:{X[q]+3}], v[{d}:{d+15}]")
        return L
    a("s_setprio 2")
    a("s_mov_b32 s72, 0")
    a("s_mov_b32 s74, 0")
    a("s_barrier")
    ts(2)
    for t in reads(0, 0): a(t)
    need = {0: 9, 1: 8, 2: 6, 4: 4, 6: 2, 8: 0}
    if cfg.zpeel:
        Rd = reads(1, 1)
        issued = 0
        for i, m in enumerate(mfmas(0)):
            if i in need: a(f"s_waitcnt lgkmcnt({min(15, need[i] + issued)})")
            a(m[:m.rindex(", v[")] + ", 0")
            for _ in range(2 if i >= cfg.rdstart else 0):
                if Rd: a(Rd.pop(0)); issued += 1
        a("s_branch L_c_k1")
    a.label("L_c_loop")
    for ks in range(4):
        if ks == 1: a.label("L_c_k1")
        fs = ks & 1
        M = mfmas(fs)
        if ks < 3:
            Rd = reads(1 - fs, ks + 1)
            issued = 0
            for i, m in enumerate(M):
                if i in need: a(f"s_waitcnt lgkmcnt({min(15, need[i] + issued)})")
                a(m)
                for _ in range(2 if i >= cfg.rdstart else 0):
                    if Rd: a(Rd.pop(0)); issued += 1
        else:
            Rd = reads(1 - fs, 0)
            a("s_waitcnt lgkmcnt(9)")
            a(M[0])
            a("s_add_u32 s74, s74, 1")
            a("s_cmp_eq_u32 s74, 3")
            a("s_mov_b32 s75, 53248")
            a(f"s_cmov_b32 s75, {(-106496) & 0xffffffff:#x}")
            a("s_cselect_b32 s74, 0, s74")
            for v in XA + BA[:1]: a(f"v_add_u32 v{v}, s75, v{v}")
            a("s_waitcnt lgkmcnt(8)")
            a(M[1])
            for v in BA[1:] + WA: a(f"v_add_u32 v{v}, s75, v{v}")
            a("s_add_u32 s72, s72, 1")
            a("s_cmp_eq_u32 s72, 6")
            a("s_waitcnt lgkmcnt(0)")
            a(M[2])
            a("s_barrier")
            hist = list(a.hist)
            a("s_cbranch_scc1 L_c_last")
            for m in M[3:]:
                for _ in range(2):
                    if Rd: a(Rd.pop(0))
                a(m)
            a("s_branch L_c_loop")
            a.label("L_c_last")
            a.hist = hist
            Mtail = M[3:]
    lq = []
    def ds_issue(tag, t):
        a(t)
        if t.startswith("ds_"): lq.append(tag)
    def ds_wait(tag):
        idx = max((i for i, t in enumerate(lq) if t == tag), default=None)
        if idx is None: return None
        n = len(lq) - 1 - idx
        del lq[:idx + 1]
        return f"lgkmcnt({min(n, 15)})"
    def dwait(tag):
        w = ds_wait(tag)
        if w: a(f"s_waitcnt {w}")
    UB = [24, 40, 56]
    def ureads(u):
        b, ks = UB[u % 3], u % 4
        L = [f"ds_read_b128 v[{b}:{b+3}], v{XA[ks]}"]
        if u < 8:
            ft = u // 4
            for gu in range(2):
                for j in range(2):
                    d = b + 8 + 4 * gu + 2 * j
                    L.append(f"ds_read_b64_tr_b16 v[{d}:{d+1}], v{WA[ft]} offset:{gu*8192 + ks*2048 + j*512}")
        else:
            L.append(f"ds_read_b128 v[{b+8}:{b+11}], v{BA[ks]}")
        L.append(f"ds_read_b128 v[{b+4}:{b+7}], v{XA[ks]} offset:4096")
        return [(u, t) for t in L]
    def umfma(u):
        b = UB[u % 3]
        L = []
        for q in range(2):
            x = b + 4 * q
            if u < 8:
                for gu in range(2):
                    d = (G, U)[gu](u // 4, q); w = b + 8 + 4 * gu
                    L.append(f"v_mfma_f32_32x32x16_bf16 v[{d}:{d+15}], v[{w}:{w+3}], v[{x}:{x+3}], v[{d}:{d+15}]")
            else:
                L.append(f"v_mfma_f32_32x32x16_bf16 v[{S(q)}:{S(q)+15}], v[{x}:{x+3}], v[{b+8}:{b+11}], v[{S(q)}:{S(q)+15}]")
        return L
    Rd = ureads(0) + ureads(1)
    for m in Mtail:
        for _ in range(2):
            if Rd: ds_issue(*Rd.pop(0))
        a(m)
    CH = 72
    def chalf(p):
        for gu in range(2):
            for k in range(2):
                ds_issue(('c', p), f"ds_read_b128 v[{CH+8*gu+4*k}:{CH+8*gu+4*k+3}], v{vCL} offset:{256*gu + 32*(2*p+k)}")
    def hstore(ft, q, p):
        g = G(ft, q)
        vm.issue('h', f"buffer_store_dwordx4 v[{g+4*p}:{g+4*p+3}], v{vL16}, s[{SRD_WS}:{SRD_WS+3}], s{56+q} offen offset:{(2*ft+p)*1024}{SP}")
    ep = [lambda: dwait(('c', 0)), f"v_xor_b32 v{MM}, 0x80000000, v{MM}", f"v_xor_b32 v{MM+1}, 0x80000000, v{MM+1}"]
    for p in range(2):
        if p: ep.append(lambda: dwait(('c', 1)))
        for q in range(2):
            g, u = G(0, q) + 8 * p, U(0, q) + 8 * p
            for k in range(8): ep.append(f"v_fmac_f32 v{g+k}, v{MM+q}, v{CH+k}")
            for k in range(8): ep.append(f"v_fmac_f32 v{u+k}, v{MM+q}, v{CH+8+k}")
            if q == 1 and p == 0: ep.append(lambda: chalf(1))
            for k in range(8): ep.append(f"v_max_f32 v{g+k}, 0, v{g+k}")
            for k in range(8): ep.append(f"v_mul_f32 v{u+k}, v{u+k}, v{g+k}")
            for k in range(4): ep.append(f"v_cvt_pk_bf16_f32 v{G(0,q)+4*p+k}, v{u+2*k}, v{u+2*k+1}")
            ep.append(lambda q=q, p=p: hstore(0, q, p))
    def fill(n):
        while n > 0 and ep:
            t = ep.pop(0)
            if callable(t): t()
            else: a(t)
            n -= 1
    def cread(tag, dst, off):
        for k in range(4): ds_issue(tag, f"ds_read_b128 v[{dst+4*k}:{dst+4*k+3}], v{vCL} offset:{off + 32*k}")
    for u in range(12):
        dwait(u)
        if u == 11:
            a("s_barrier")
        Rd = ureads(u + 2) if u + 2 < 12 else []
        for i, m in enumerate(umfma(u)):
            a(m)
            for _ in range(2):
                if Rd: ds_issue(*Rd.pop(0))
            if u > 4 or (u == 4 and i >= 1): fill(cfg.fper - 1 if u < 10 else cfg.fper)
        if u == cfg.c2u:
            a("s_barrier")
            ds_issue(('c', 0), f"ds_read_b32 v{MM}, v{vStF}")
            ds_issue(('c', 0), f"ds_read_b32 v{MM+1}, v{vStF} offset:256")
            chalf(0)
        if u == 9: cread('cg', UB[0], 128)
        if u == 10: cread('cu', UB[1], 384)
    ts(3)
    fill(1000)
    dump = [f"ds_write_b128 v{vPQ}, v[{S(0)+4*k}:{S(0)+4*k+3}] offset:{SD + 1024*k}" for k in range(8)]
    WB = {0: [1, 2], 1: [3, 4], 2: [5, 6]}
    for rg in range(3):
        a(f"v_add_u32 v{WB[rg][0]}, {R[rg]}, v{vWB}")
        a(f"v_xor_b32 v{WB[rg][1]}, 64, v{WB[rg][0]}")
    dwait('cu')
    cg, cu = UB[0], UB[1]
    for q in range(2):
        g, u = G(1, q), U(1, q)
        sel = f"op_sel:[{q},0,0] op_sel_hi:[{q},1,1]"
        for p in range(2):
            kr = range(4 * p, 4 * p + 4)
            for k in kr:
                a(f"v_pk_fma_f32 v[{g+2*k}:{g+2*k+1}], v[{MM}:{MM+1}], v[{cg+2*k}:{cg+2*k+1}], v[{g+2*k}:{g+2*k+1}] {sel}")
                if dump: a(dump.pop(0))
            for k in kr:
                a(f"v_pk_fma_f32 v[{u+2*k}:{u+2*k+1}], v[{MM}:{MM+1}], v[{cu+2*k}:{cu+2*k+1}], v[{u+2*k}:{u+2*k+1}] {sel}")
                a(f"v_max_f32 v{g+2*k}, 0, v{g+2*k}")
                a(f"v_max_f32 v{g+2*k+1}, 0, v{g+2*k+1}")
            for k in kr:
                a(f"v_pk_mul_f32 v[{u+2*k}:{u+2*k+1}], v[{u+2*k}:{u+2*k+1}], v[{g+2*k}:{g+2*k+1}]")
            for k in kr:
                a(f"v_cvt_pk_bf16_f32 v{g+k}, v{u+2*k}, v{u+2*k+1}")
            if q == 0 and p == 1:
                a("s_waitcnt lgkmcnt(0)")
                a("s_barrier")
            hstore(1, q, p)
    del lq[:]
    ts(4)
    BR, NB = 160, 12
    def breads(p):
        sl = WSLOT[p]
        rg = max(k for k in range(3) if R[k] <= sl)
        L = []
        for lc in range(2):
            for jj in range(2):
                d = BR + 8 * (p % NB) + 4 * lc + 2 * jj
                L.append(f"ds_read_b64_tr_b16 v[{d}:{d+1}], v{WB[rg][lc]} offset:{sl - R[rg] + jj*1024}")
        return L
    for p in range(NB):
        for t in breads(p): a(t)
    def flag1():
        vm.wait('h')
        a("s_setprio 3")
        a("s_mov_b64 exec, 1")
        vm.issue('f', f"buffer_store_dword v{vOne}, v{vF}, s[{SRD_WS}:{SRD_WS+3}], 0 offen sc1")
        a("s_mov_b64 exec, -1")
        ts(6)
    if cfg.fpre: flag1()
    a("s_waitcnt lgkmcnt(0)")
    a("s_barrier")
    ts(5)
    if not cfg.fpre: flag1()
    AF = 96
    AR = list(range(24, 96, 4))
    NA = len(AR)
    def aload(n):
        p, lr = n // 2, n % 2
        if n % 8 == 0:
            a(f"s_lshl_b32 s11, s60, 12")
            a(f"s_add_u32 s54, s11, s52")
            a(f"s_add_u32 s53, s11, s51")
            a(f"s_add_u32 s60, s60, 1")
            a(f"s_cmp_eq_u32 s60, 7")
            a(f"s_cselect_b32 s60, 0, s60")
        d = AR[n % NA]
        vm.issue(('a', n), f"buffer_load_dwordx4 v[{d}:{d+3}], v{vL16}, s[{SRD_WS}:{SRD_WS+3}], s{54 - lr} offen offset:{(p%4)*1024}{AP}")
    def cond():
        a("s_and_b64 s[16:17], s[16:17], s[18:19]")
        a("s_and_b64 s[16:17], s[16:17], s[20:21]")
        a("s_and_b32 s16, s16, s17")
        a("s_and_b32 s16, s16, s22")
        a("s_cmp_eq_u32 s16, 1")
    sspin(a, "L_pf", [f"s_load_dwordx8 s[16:23], s[{P_WS}:{P_WS+1}], s55 glc"], cond, cfg.fsleep)
    a("s_setprio 2")
    ts(7)
    for n in range(cfg.a0): aload(n)
    nxt = [cfg.a0]
    ts(8)
    def lds_spin(name, vaddr, off, val):
        a("s_mov_b32 s73, 0")
        a.label(name)
        a("s_waitcnt lgkmcnt(0)")
        a("v_readfirstlane_b32 s11, v8")
        a(f"s_cmp_ge_u32 s11, {val}")
        a(f"s_cbranch_scc1 {name}ok")
        a("s_add_u32 s73, s73, 1")
        a(f"s_cmp_ge_u32 s73, {SPIN_MAX}")
        a(f"s_cbranch_scc1 {name}ok")
        a("s_sleep 1")
        a(f"ds_read_b32 v8, v{vaddr} offset:{off}")
        a(f"s_branch {name}")
        a.label(name + "ok")
        del lq[:]
    for p in range(28):
        f = BR + 8 * (p % NB)
        pn = p + cfg.bd
        for lr in range(2):
            n = 2 * p + lr
            w = ds_wait(p) if lr == 0 else None
            vm.wait(('a', n), w or "")
            if n == 0: ts(9)
            if n in (0, 7, 17, 25, 35): ts.x(6, {0: 7, 7: 8, 17: 9, 25: 10, 35: 11}[n])
            if lr == 0 and pn in (12, 16, 22): ds_issue('r', f"ds_read_b32 v8, v{vRd}")
            d = AR[n % NA]
            for lc in range(2):
                acc = AF + 32 * lr + 16 * lc
                c = "0" if p == 0 else f"v[{acc}:{acc+15}]"
                a(f"v_mfma_f32_32x32x16_bf16 v[{acc}:{acc+15}], v[{d}:{d+3}], v[{f+4*lc}:{f+4*lc+3}], {c}")
            for _ in range(2):
                if nxt[0] < 56 and nxt[0] <= n + NA:
                    aload(nxt[0]); nxt[0] += 1
        if pn in (12, 16, 22): lds_spin(f"L_c_r{pn}", vRd, 0, {12: 1, 16: 2, 22: 3}[pn])
        if p == cfg.ksig:
            assert pn > 15
            w = ds_wait(15)
            if w: a(f"s_waitcnt {w}")
            a("s_mov_b64 exec, 1")
            ds_issue('c', f"ds_add_u32 v{vCn}, v{vOne} offset:4")
            a("s_mov_b64 exec, -1")
        if NB <= pn < 28:
            for t in breads(pn): ds_issue(pn, t)
        if p == 24:
            STT = BR + 32
            for k in range(8): ds_issue('st', f"ds_read_b128 v[{STT+4*k}:{STT+4*k+3}], v{vSo} offset:{16*k}")
        if p == 26:
            for x in range(1, 4):
                a(f"s_xor_b32 s11, s{S_W4}, {x}")
                a(f"s_mul_i32 s11, s11, {Q}")
                a(f"s_add_u32 s11, s11, {FXA + (x-1)*4096}")
                a(f"v_add_u32 v{x}, s11, v{vL16}")
            a(f"v_add_u32 v4, {GA}, v{vPQ}")
            a(f"v_add_u32 v5, {FXA}, v{vPQ}")
        if p % 4 == 3: ts.x(4, 1 + p // 4)
    ts(11)
    ts.x(7, 1)
    for x in (2, 1, 3):
        src = AF + 32 * (x & 1) + 16 * (x >> 1)
        for k in range(4):
            a(f"ds_write_b128 v5, v[{src+4*k}:{src+4*k+3}] offset:{(x-1)*4096 + 1024*k}")
    a("s_waitcnt lgkmcnt(12)")
    for r in range(16): a(f"v_mul_f32 v{STT+2*r}, v{STT+2*r+1}, v{STT+2*r+1}")
    a(f"s_mov_b32 s13, {LOG2E ^ 0x80000000:#x}")
    ts.x(7, 2)
    a("s_waitcnt lgkmcnt(0)")
    ts.x(7, 3)
    a("s_mov_b64 exec, 1")
    a(f"ds_add_u32 v{vCn}, v{vOne}")
    a("s_mov_b64 exec, -1")
    a(f"ds_read_b32 v8, v{vCn}")
    lds_spin("L_c_cnt", vCn, 0, 4)
    ts.x(7, 4)
    O, RX, EX = AF, 24, 72
    for k in range(4):
        for x in range(1, 4):
            a(f"ds_read_b128 v[{RX+16*(x-1)+4*k}:{RX+16*(x-1)+4*k+3}], v{x} offset:{1024*k}")
    for k in range(4):
        rr = range(4 * k, 4 * k + 4)
        a(f"s_waitcnt lgkmcnt({9 - 3*k})")
        for r in rr: a(f"v_add_f32 v{O+r}, v{O+r}, v{RX+r}")
        for r in rr: a(f"v_add_f32 v{RX+16+r}, v{RX+16+r}, v{RX+32+r}")
        for r in rr: a(f"v_add_f32 v{O+r}, v{O+r}, v{RX+16+r}")
        for r in rr: a(f"v_mul_f32 v{O+r}, v{O+r}, v{STT+2*r}")
        for r in rr: a(f"v_mul_f32 v{EX+r}, s13, v{O+r}")
        for r in rr: a(f"v_exp_f32 v{EX+r}, v{EX+r}")
    ts.x(7, 5)
    for k in range(4):
        rr = range(4 * k, 4 * k + 4)
        for r in rr: a(f"v_add_f32 v{EX+r}, 1.0, v{EX+r}")
        for r in rr: a(f"v_rcp_f32 v{EX+r}, v{EX+r}")
        for r in rr: a(f"v_mul_f32 v{O+r}, v{O+r}, v{EX+r}")
        a(f"ds_write_b128 v4, v[{O+4*k}:{O+4*k+3}] offset:{1024*k}")
    a("s_waitcnt lgkmcnt(0)")
    ts(12)
    a("s_barrier")
    ts.dump(24, 25, 0)
    a("s_endpgm")

HEADER = """; Fused S5-SSM + ReGLU block, one launch: 224 main workgroups (4 MFMA waves + 4 loader waves) + 32 helper workgroups.
; @launch grid=(256,1,1) block=(512,1,1) lds=163840
.amdgcn_target "amdgcn-amd-amdhsa--gfx950"
.text
.globl {k}
.p2align {al}
.type {k},@function
{k}:
"""
FOOTER = """.section .rodata,"a"
.p2align 6
.amdhsa_kernel {k}
  .amdhsa_next_free_vgpr 256
  .amdhsa_next_free_sgpr 102
  .amdhsa_accum_offset 256
  .amdhsa_group_segment_fixed_size 0
  .amdhsa_kernarg_size 128
  .amdhsa_user_sgpr_count 2
  .amdhsa_user_sgpr_kernarg_segment_ptr 1
  .amdhsa_system_sgpr_workgroup_id_x 1
  .amdhsa_float_denorm_mode_32 3
.end_amdhsa_kernel
"""

def generate(cfg):
    WSOFF[0] = cfg.wsoff << 20
    a = Asm()
    ts = TS(a, cfg)
    gen_entry(a, cfg, ts)
    gen_loader(a, cfg, ts)
    gen_consumer(a, cfg, ts)
    gen_helper(a, cfg, ts)
    a.label("L_exit")
    a("s_endpgm")
    return HEADER.format(k=KNAME, al=12 if cfg.al else 8) + f"; wsoff={cfg.wsoff}\n" + a.text() + FOOTER.format(k=KNAME)

if __name__ == "__main__":
    cfg = Cfg()
    out = sys.argv[1]
    for kv in sys.argv[2:]:
        k, v = kv.split("=")
        setattr(cfg, k, int(v))
    open(out, "w").write(generate(cfg))
```

```python
import sys, os
sys.path.insert(0, os.path.dirname(os.path.abspath(__file__)))
from asmlib import Asm, VM

KNAME = "recurrent_scan__ssm_conv_s5__glu_gated_reglu__prompt_kernel"

R = [0, 53248, 106496]
MISC = 159744
OFF_WG, OFF_WU, OFF_BB = 32768, 40960, 49152
CP_L = R[1] + 49152
STATS_L = MISC
C_L = MISC + 2048
CNT_L = MISC + 2688
ST2_L = MISC + 2720
AGG_L = MISC + 3232
Q = 12288

RT_BYTES = 172032
HALF_BYTES = 86016
WS_STATS = 0xB00000
WS_AGG = WS_STATS + 0x4000
WS_FLAG = WS_AGG + 0x8000
INIT_N = 32
WS_CP = 0xB20000
WS_TS = 0xC00000
WS_SIZE = 0x1000000
SPIN_MAX = 1 << 20

S_WAVE, S_XCD, S_SLOT, S_MT, S_NS, S_M64, S_NT, S_W4 = 3, 4, 5, 6, 7, 8, 9, 10
P_X, P_LRE, P_LIM, P_BRE, P_BIM, P_CRE, P_CIM, P_LDT, P_DSK, P_BX, P_WG, P_WU, P_WD, P_OUT, P_DBG, P_WS = [16 + 2 * i for i in range(16)]
SRD_X, SRD_A, SRD_B, SRD_C, SRD_WS, SRD_E = 48, 52, 56, 60, 64, 68
TS0 = 76

LOG2E = 0x3fb8aa3b
LOG2E_LO = 0x32a57060
LN2 = 0x3f317218
INV2PI = 0x3e22f983

class Cfg:
    ts = 0
    tsset = 0
    pd = 16
    perm = 4
    rot = 2
    ssm_early = 0
    schedn = 0
    polx = 0
    apol = 1
    noa = 0
    nob = 0
    rdstart = 1
    polw = 0
    winn = 3
    loc = 1
    f0pos = 2
    x1late = 0
    al = 1
    cpw = 1
    s0a = 8
    zpeel = 1
    ws = 0
    crot = 0
    ipos = 0
    gate = 2
    c0n = 8
    agpos = 0
    c0early = 0
    hord = 1
    clate = 2
    wl = 1
    fper = 6
    c2u = 2
    probe = 0
    pwho = 0
    ponly = -1
    pmask = 0xffff
    wsoff = 0
    kwin = 2
    wprio = 0
    hdelay = 0
    eprio = 0
    c2late = 0
    cpf = 2
    padto = 0
    nocs = 0
    r2pre = 1
    tlb = 0
    bd = 4
    pollw = 24
    c1 = 12
    c2 = 16
    f2b = 1
    wfirst = 1
    @property
    def win(self):
        W = lambda a, b: [f"w{p}" for p in range(a, b)]
        if self.ws:
            m, n1, n2, n3, n4, n5, n6, cp, cs, ep = [int(c) for c in str(self.ws)[1:]]
            assert n1 + n2 + n3 + n4 + n5 + n6 == 10
            pos = [12]
            def take(n):
                r = W(pos[0], pos[0] + n); pos[0] += n; return r
            w = {}
            if m == 2: w[-1] = ["m", "s1:0-3"]; w[0] = ["cs0", "s1:3-13", "k", "s2:0-10"]; w[1] = ["cs1", "s2:10-13", "s3"]
            else: w[-1] = ["s1:0-6"]; w[0] = ["cs0", "s1:6-13", "k", "s2"] + (["m"] if m == 1 else []); w[1] = ["cs1"] + (["m"] if m == 3 else []) + ["s3"]
            w[1] += take(n1)
            w[2] = ["cs2", "s4"] + take(n2)
            w[3] = (["cs3", "s5:0-7", "cs4", "s5:7-13"] if cs == 1 else ["cs3", "s5"]) + take(n3)
            w[4] = {0: ["cs4", "init", "s6:0-7", "cs5", "s6:7-13"], 1: ["init", "s6:0-4", "cs5", "s6:4-13"], 2: ["cs4", "init", "s6"]}[cs] + take(n4)
            w[5] = (["cs5"] if cs == 2 else []) + ["fetch"] + W(0, 4) + ["cs6"] + W(4, 6) + take(n5) + {0: ["c3"], 1: [], 2: ["c3", "c1"], 3: ["c1"]}[cp] + ["put"]
            w[6] = W(6, 12) + take(n6) + {0: ["c1"], 1: ["c3", "c1"], 2: [], 3: ["c3"]}[cp]
            w[ep].append("e")
            if self.ipos:
                w[4].remove("init"); w[4].append("init")
                w[5].remove("fetch"); w[5].remove("put")
                w[5].insert(w[5].index("cs6") + 1, "fetch")
                w[6].insert(2, "put")
            return w
        return [
            {-1: ["s1:0-6"], 0: ["cs0", "s1:6-13", "k", "s2:0-9"], 1: ["cs1", "s2:9-13", "s3", "e"], 2: ["cs2", "s4"] + W(12, 14), 3: ["cs3", "s5"] + W(14, 17),
             4: ["cs4", "init", "s6:0-7", "cs5", "s6:7-13", "w17"], 5: ["fetch"] + W(0, 4) + ["cs6"] + W(4, 6) + W(18, 20) + ["put"], 6: W(6, 12) + W(20, 22)},
            {-1: ["s1:0-6"], 0: ["cs0", "s1:6-13", "k", "s2:0-9"], 1: ["cs1", "s2:9-13", "s3", "e"], 2: ["cs2", "s4"] + W(12, 15), 3: ["cs3", "s5"] + W(15, 18),
             4: ["cs4", "init", "s6"] + W(18, 20), 5: ["cs5", "fetch"] + W(0, 3) + ["cs6"] + W(3, 6) + ["put"], 6: W(6, 12) + W(20, 22)},
            {-1: ["s1:0-6"], 0: ["cs0", "s1:6-13", "k", "s2:0-9"], 1: ["cs1", "s2:9-13", "s3", "e"], 2: ["cs2", "s4"] + W(12, 15), 3: ["cs3", "s5:0-7", "cs4", "s5:7-13", "w15"],
             4: ["init", "s6:0-4", "cs5", "s6:4-13"] + W(16, 19), 5: ["fetch"] + W(0, 4) + ["cs6"] + W(4, 6) + W(19, 22) + ["put"], 6: W(6, 12)},
            {-1: ["s1:0-6"], 0: ["cs0", "s1:6-13", "k", "s2:0-9"], 1: ["cs1", "s2:9-13", "s3", "e"], 2: ["cs2", "s4"] + W(12, 15), 3: ["cs3", "s5"] + W(15, 18),
             4: ["cs4", "init", "s6:0-7", "cs5", "s6:7-13", "w18", "w19"], 5: ["fetch"] + W(0, 4) + ["cs6"] + W(4, 6) + W(20, 22) + ["c3", "put"], 6: W(6, 12) + ["c1"]},
            {-1: ["s1:0-6"], 0: ["cs0", "s1:6-13", "k", "s2:0-9"], 1: ["cs1", "s2:9-13", "s3", "e"], 2: ["cs2", "s4"] + W(12, 14), 3: ["cs3", "s5"] + W(14, 17),
             4: ["cs4", "init", "s6:0-7", "cs5", "s6:7-13", "w17"], 5: ["fetch"] + W(0, 4) + ["cs6"] + W(4, 6) + W(18, 20) + ["put"], 6: W(6, 12) + W(20, 22) + ["c3"]},
            {-1: ["s1:0-6"], 0: ["cs0", "s1:6-13", "k", "s2:0-9"], 1: ["cs1", "s2:9-13", "s3", "e"], 2: ["cs2", "s4"] + W(12, 15), 3: ["cs3", "s5"] + W(15, 19),
             4: ["cs4", "init", "s6:0-7", "cs5", "s6:7-13"] + W(19, 22), 5: ["fetch"] + W(0, 4) + ["cs6"] + W(4, 6) + ["c1", "put"], 6: W(6, 12) + ["c3"]},
            {-1: ["s1:0-6"], 0: ["cs0", "s1:6-13", "k", "s2"], 1: ["cs1", "s3", "e"] + W(12, 14), 2: ["cs2", "s4"] + W(14, 17), 3: ["cs3", "s5"] + W(17, 20),
             4: ["cs4", "init", "s6:0-7", "cs5", "s6:7-13"] + W(20, 22), 5: ["fetch"] + W(0, 4) + ["cs6"] + W(4, 6) + ["c1", "put"], 6: W(6, 12) + ["c3"]},
            {-1: ["s1:0-6"], 0: ["cs0", "s1:6-13", "k", "s2:0-9"], 1: ["cs1", "s2:9-13", "s3", "e"], 2: ["cs2", "s4"] + W(12, 15), 3: ["cs3", "s5:0-7", "cs4", "s5:7-13"] + W(15, 18),
             4: ["init", "s6:0-4", "cs5", "s6:4-13"] + W(18, 22), 5: ["fetch"] + W(0, 4) + ["cs6"] + W(4, 6) + ["c1", "put"], 6: W(6, 12) + ["c3"]},
            {-1: ["s1:0-6"], 0: ["cs0", "s1:6-13", "k", "s2:0-9"], 1: ["cs1", "s2:9-13", "s3", "e"], 2: ["cs2", "s4"], 3: ["cs3", "s5"] + W(12, 16),
             4: ["cs4", "init", "s6:0-7", "cs5", "s6:7-13"] + W(16, 19), 5: ["fetch"] + W(0, 4) + ["cs6"] + W(4, 6) + W(19, 22) + ["c3", "put"], 6: W(6, 12) + ["c1"]},
            {-1: ["s1:0-6"], 0: ["cs0", "s1:6-13", "k", "s2"], 1: ["cs1", "s3", "e"], 2: ["cs2", "s4"] + W(12, 14), 3: ["cs3", "s5"] + W(14, 18),
             4: ["cs4", "init", "s6:0-7", "cs5", "s6:7-13", "w18", "w19"], 5: ["fetch"] + W(0, 4) + ["cs6"] + W(4, 6) + W(20, 22) + ["c3", "put"], 6: W(6, 12) + ["c1"]},
            {-1: ["s1:0-3"], 0: ["cs0", "s1:3-13", "k", "s2:0-8"], 1: ["cs1", "s2:8-13", "s3"], 2: ["cs2", "s4", "e"] + W(12, 14), 3: ["cs3", "s5"] + W(14, 18),
             4: ["cs4", "init", "s6:0-7", "cs5", "s6:7-13", "w18", "w19"], 5: ["fetch"] + W(0, 4) + ["cs6"] + W(4, 6) + W(20, 22) + ["c3", "put"], 6: W(6, 12) + ["c1"]},
            {-1: ["s1:0-6"], 0: ["cs0", "s1:6-13", "k", "s2:0-9"], 1: ["cs1", "s2:9-13", "s3", "e"], 2: ["cs2", "s4"] + W(12, 15), 3: ["cs3", "init", "s5"] + W(15, 18),
             4: ["cs4", "fetch", "s6:0-7", "cs5", "s6:7-13", "w18", "w19"], 5: ["put"] + W(0, 4) + ["cs6"] + W(4, 6) + W(20, 22) + ["c3"], 6: W(6, 12) + ["c1"]},
            {-1: ["m", "s1:0-3"], 0: ["cs0", "s1:3-13", "k", "s2:0-8"], 1: ["cs1", "s2:8-13", "s3", "e"], 2: ["cs2", "s4"] + W(12, 15), 3: ["cs3", "s5"] + W(15, 18),
             4: ["cs4", "init", "s6:0-7", "cs5", "s6:7-13", "w18", "w19"], 5: ["fetch"] + W(0, 4) + ["cs6"] + W(4, 6) + W(20, 22) + ["c3", "put"], 6: W(6, 12) + ["c1"]},
            {-1: ["s1:0-6"], 0: ["cs0", "s1:6-13", "m", "k", "s2:0-9"], 1: ["cs1", "s2:9-13", "s3", "e"], 2: ["cs2", "s4"] + W(12, 15), 3: ["cs3", "s5"] + W(15, 18),
             4: ["cs4", "init", "s6:0-7", "cs5", "s6:7-13", "w18", "w19"], 5: ["fetch"] + W(0, 4) + ["cs6"] + W(4, 6) + W(20, 22) + ["c3", "put"], 6: W(6, 12) + ["c1"]},
            {-1: ["m"], 0: ["cs0", "s1", "k", "s2:0-6"], 1: ["cs1", "s2:6-13", "s3"], 2: ["cs2", "s4", "e"] + W(12, 14), 3: ["cs3", "s5"] + W(14, 18),
             4: ["cs4", "init", "s6:0-7", "cs5", "s6:7-13", "w18", "w19"], 5: ["fetch"] + W(0, 4) + ["cs6"] + W(4, 6) + W(20, 22) + ["c3", "put"], 6: W(6, 12) + ["c1"]},
            {-1: ["s1:0-6"], 0: ["cs0", "s1:6-13", "k", "s2"], 1: ["cs1", "s3"], 2: ["cs2", "s4", "e"], 3: ["cs3", "s5"] + W(12, 16),
             4: ["cs4", "init", "s6:0-7", "cs5", "s6:7-13"] + W(16, 19), 5: ["fetch"] + W(0, 4) + ["cs6"] + W(4, 6) + W(19, 22) + ["c3", "put"], 6: W(6, 12) + ["c1"]},
            {-1: ["s1:0-6"], 0: ["cs0", "s1:6-13", "k", "s2", "m"], 1: ["cs1", "s3"], 2: ["cs2", "s4", "e"], 3: ["cs3", "s5"] + W(12, 16),
             4: ["cs4", "init", "s6:0-7", "cs5", "s6:7-13"] + W(16, 19), 5: ["fetch"] + W(0, 4) + ["cs6"] + W(4, 6) + W(19, 22) + ["c3", "put"], 6: W(6, 12) + ["c1"]},
            {-1: ["m", "s1:0-3"], 0: ["cs0", "s1:3-13", "k", "s2:0-10"], 1: ["cs1", "s2:10-13", "s3"], 2: ["cs2", "s4", "e"], 3: ["cs3", "s5"] + W(12, 16),
             4: ["cs4", "init", "s6:0-7", "cs5", "s6:7-13"] + W(16, 19), 5: ["fetch"] + W(0, 4) + ["cs6"] + W(4, 6) + W(19, 22) + ["c3", "put"], 6: W(6, 12) + ["c1"]},
            {-1: ["s1:0-6"], 0: ["cs0", "s1:6-13", "k", "s2"], 1: ["cs1", "s3"], 2: ["cs2", "s4:0-6"], 3: ["cs3", "s4:6-13", "s5", "e"],
             4: ["cs4", "init", "s6"] + W(12, 16), 5: ["cs5", "fetch"] + W(16, 20) + ["cs6"] + W(0, 6) + ["put"], 6: W(6, 12) + W(20, 22) + ["c3", "c1"]},
            {-1: ["s1"], 0: ["cs0", "k", "s2", "e"], 1: ["cs1", "s3"], 2: ["cs2", "s4", "w12"], 3: ["cs3", "s5"] + W(13, 16),
             4: ["cs4", "init", "s6:0-7", "cs5", "s6:7-13"] + W(16, 19), 5: ["fetch"] + W(0, 4) + ["cs6"] + W(4, 6) + W(19, 22) + ["c3", "put"], 6: W(6, 12) + ["c1"]},
        ][self.winn]
    nw1 = 6
    flagr = -1
    xs = 1
    psleep = 2
    fsleep = 2
    ttper = 2
    f2n = 9
    fpre = 1
    a0 = 18
    sprio = 0
    ksig = 12
    opol = 1
    lprio = 3
    w12early = 0
    slab = 0
    spol = 1
    fpol = 1
    pollr = 4
    nw2 = 16
    thr = 15
    hpf = 2
    ky = 2
    @property
    def perms(self):
        return {
            0: [[0, 1, 2, 3, 4, 5, 6]],
            1: [[0, 1, 2, 3, 4, 5, 6], [1, 2, 0, 4, 5, 3, 6], [2, 0, 1, 5, 3, 4, 6]],
            2: [[0, 1, 2, 3, 4, 5, 6], [1, 0, 3, 2, 5, 4, 6]],
            3: [[0, 1, 2, 3, 4, 5, 6], [1, 0, 4, 5, 6, 2, 3], [0, 1, 6, 2, 3, 4, 5]],
            4: [[0, 1, 2, 3, 4, 5, 6], [1, 2, 0, 4, 6, 3, 5], [2, 0, 1, 5, 6, 3, 4]],
            6: [[0, 1, 2, 3, 4, 5, 6], [1, 2, 0, 3, 4, 5, 6], [2, 0, 1, 3, 4, 5, 6]],
            5: [[0, 1, 2, 3, 4, 5, 6], [1, 2, 3, 0, 5, 6, 4], [2, 3, 0, 1, 6, 4, 5], [3, 0, 1, 2, 4, 5, 6]],
        }[self.perm]

WSOFF = [0]
def srd(a, d, ptr, nbytes):
    if ptr == P_WS and WSOFF[0]:
        a(f"s_add_u32 s{ptr}, s{ptr}, {WSOFF[0]:#x}")
        a(f"s_addc_u32 s{ptr+1}, s{ptr+1}, 0")
    a(f"s_mov_b32 s{d}, s{ptr}")
    a(f"s_and_b32 s{d+1}, s{ptr+1}, 0xffff")
    a(f"s_mov_b32 s{d+2}, {nbytes:#x}")
    a(f"s_mov_b32 s{d+3}, 0x20000")

def srd_sel(a, d, ptr1, ptr0, nbytes):
    a(f"s_cselect_b32 s{d}, s{ptr1}, s{ptr0}")
    a(f"s_cselect_b32 s{d+1}, s{ptr1+1}, s{ptr0+1}")
    a(f"s_and_b32 s{d+1}, s{d+1}, 0xffff")
    a(f"s_mov_b32 s{d+2}, {nbytes:#x}")
    a(f"s_mov_b32 s{d+3}, 0x20000")

class TS:
    def __init__(self, a, cfg):
        self.a, self.on, self.n, self.set = a, cfg.ts, 0, cfg.tsset
        self.cfg = cfg
    def x(self, setno, i):
        if self.on and self.set == setno: self.emit(i)
    def __call__(self, i):
        if self.on and (self.set == 0 or i in (0, 12)): self.emit(i)
    def emit(self, i):
        if self.on == 5 and i not in (0, self.cfg.probe): return
        if self.on:
            assert i < 13
            self.a(f"{'s_memrealtime' if self.on != 2 else 's_memtime'} s[{TS0+2*i}:{TS0+2*i+1}]")
    def init(self):
        if self.on:
            for i in range(1, 13): self.a(f"s_mov_b32 s{TS0+2*i}, 0")
    def dump(self, vt, vt2, who=2):
        if not self.on: return
        a = self.a
        if self.on == 5:
            if who != self.cfg.pwho: return
            lab = a.newlabel("L_probe")
            if self.cfg.ponly >= 0:
                a(f"s_and_b32 s11, s2, {self.cfg.pmask}")
                a(f"s_cmp_lg_u32 s11, {self.cfg.ponly}")
                a(f"s_cbranch_scc1 {lab}_x")
            p = TS0 + 2 * self.cfg.probe
            a("s_waitcnt lgkmcnt(0)")
            a(f"s_sub_u32 s11, s{p}, s{TS0}")
            a(f"s_cmp_eq_u32 s{p}, 0")
            a("s_cselect_b32 s11, 0, s11")
            a("s_lshl_b32 s11, s11, 2")
            a("s_add_u32 s11, s11, 3000")
            a.label(lab)
            a("s_memrealtime s[12:13]")
            a("s_waitcnt lgkmcnt(0)")
            a(f"s_sub_u32 s12, s12, s{TS0}")
            a("s_cmp_lt_u32 s12, s11")
            a(f"s_cbranch_scc1 {lab}")
            a.label(lab + "_x")
            return
        if self.on == 3:
            a("s_waitcnt vmcnt(0) lgkmcnt(0)")
            lab = a.newlabel("L_nod")
            a(f"s_cmp_eq_u32 s{TS0+24}, 0")
            a(f"s_cbranch_scc1 {lab}")
            a(f"s_cmp_lg_u32 s{S_WAVE}, 0")
            a(f"s_cbranch_scc1 {lab}")
            a("s_mov_b64 exec, 1")
            a(f"v_mov_b32 v{vt2}, 0")
            a(f"s_not_b32 s11, s{TS0}")
            a(f"v_mov_b32 v{vt}, s11")
            a(f"global_atomic_umax v{vt2}, v{vt}, s[{P_DBG}:{P_DBG+1}] offset:4 sc1")
            for n, i in enumerate([0, 1, 2, 3, 4, 5, 6, 7, 8, 9, 10, 11, 12]):
                a("s_waitcnt vmcnt(0)")
                a(f"v_mov_b32 v{vt}, s{TS0+2*i}")
                a(f"global_atomic_umax v{vt2}, v{vt}, s[{P_DBG}:{P_DBG+1}] offset:{8+4*n} sc1")
            a("s_waitcnt vmcnt(0)")
            a.label(lab)
            return
        a("s_waitcnt vmcnt(0) lgkmcnt(0)")
        a(f"s_lshl_b32 s11, s2, 9")
        a(f"s_lshl_b32 s12, s{S_WAVE}, 6")
        a("s_add_u32 s11, s11, s12")
        a(f"s_add_u32 s11, s11, {WS_TS:#x}")
        a(f"v_mov_b32 v{vt2}, s11")
        for i in range(13):
            a(f"v_mov_b32 v{vt}, s{TS0+2*i}")
            a(f"buffer_store_dword v{vt}, v{vt2}, s[{SRD_WS}:{SRD_WS+3}], 0 offen offset:{4*i}")
        a("s_waitcnt vmcnt(0)")

def round_bf16(a, dst, src):
    a(f"v_cvt_pk_bf16_f32 v{dst}, v{src}, v{src}")
    a(f"v_lshlrev_b32 v{dst}, 16, v{dst}")

def exp_acc(a, dst, x, t0, t1):
    a(f"s_mov_b32 s36, {LOG2E:#x}")
    a(f"s_mov_b32 s37, {LOG2E_LO:#x}")
    a(f"v_mul_f32 v{t0}, s36, v{x}")
    a(f"v_fma_f32 v{t1}, v{x}, s36, -v{t0}")
    a(f"v_fma_f32 v{t1}, v{x}, s37, v{t1}")
    a(f"v_mul_f32 v{t1}, {LN2:#x}, v{t1}")
    a(f"v_exp_f32 v{dst}, v{t0}")
    a(f"v_fma_f32 v{dst}, v{dst}, v{t1}, v{dst}")

def csq(a, dr, di, sr, si, t):
    a(f"v_mul_f32 v{t}, v{si}, v{si}")
    a(f"v_add_f32 v{di}, v{si}, v{si}")
    a(f"v_mul_f32 v{di}, v{di}, v{sr}")
    a(f"v_fma_f32 v{dr}, v{sr}, v{sr}, -v{t}")

def cmul(a, dr, di, ar, ai, br, bi):
    a(f"v_mul_f32 v{dr}, v{ar}, v{br}")
    a(f"v_mul_f32 v{di}, v{ar}, v{bi}")
    a(f"v_fma_f32 v{dr}, -v{ai}, v{bi}, v{dr}")
    a(f"v_fma_f32 v{di}, v{ai}, v{br}, v{di}")

def ssm_const_load(a, vm, t):
    a(f"v_and_b32 v{t+3}, 15, v0")
    a(f"s_lshl_b32 s11, s{S_NS}, 4")
    a(f"v_add_lshl_u32 v{t+3}, v{t+3}, s11, 1")
    vm.issue('sc', f"global_load_ushort v{t}, v{t+3}, s[{P_LRE}:{P_LRE+1}]")
    vm.issue('sc', f"global_load_ushort v{t+1}, v{t+3}, s[{P_LIM}:{P_LIM+1}]")
    vm.issue('sc', f"global_load_ushort v{t+2}, v{t+3}, s[{P_LDT}:{P_LDT+1}]")

def ssm_const_calc(a, t, lr, li, cr=None, ci=None):
    for k in range(3): a(f"v_lshlrev_b32 v{t+k}, 16, v{t+k}")
    exp_acc(a, t + 3, t + 2, t + 4, t + 5)
    round_bf16(a, t + 2, t + 3)
    a(f"v_mul_f32 v{t+3}, v{t+2}, v{t}")
    a(f"v_mul_f32 v{t+6}, v{t+2}, v{t+1}")
    exp_acc(a, t + 7, t + 3, t + 4, t + 5)
    a(f"v_mul_f32 v{t+6}, {INV2PI:#x}, v{t+6}")
    a(f"v_rndne_f32 v{t+4}, v{t+6}")
    a(f"v_sub_f32 v{t+6}, v{t+6}, v{t+4}")
    a(f"v_cos_f32 v{t+4}, v{t+6}")
    a(f"v_sin_f32 v{t+5}, v{t+6}")
    a(f"v_mul_f32 v{lr}, v{t+7}, v{t+4}")
    a(f"v_mul_f32 v{li}, v{t+7}, v{t+5}")
    if cr is not None:
        a(f"v_add_f32 v{t+3}, -1.0, v{lr}")
        a(f"v_mul_f32 v{t+4}, v{t}, v{t}")
        a(f"v_fma_f32 v{t+4}, v{t+1}, v{t+1}, v{t+4}")
        a(f"v_rcp_f32 v{t+4}, v{t+4}")
        a(f"v_mul_f32 v{cr}, v{t+3}, v{t}")
        a(f"v_fma_f32 v{cr}, v{li}, v{t+1}, v{cr}")
        a(f"v_mul_f32 v{ci}, v{li}, v{t}")
        a(f"v_fma_f32 v{ci}, -v{t+3}, v{t+1}, v{ci}")
        a(f"v_add_f32 v{t+4}, v{t+4}, v{t+4}")
        a(f"v_mul_f32 v{cr}, v{cr}, v{t+4}")
        a(f"v_mul_f32 v{ci}, v{ci}, v{t+4}")

def gen_entry(a, cfg, ts):
    a("s_cmp_ge_u32 s2, 256")
    a("s_cbranch_scc1 L_exit")
    if cfg.padto: a("s_memrealtime s[100:101]")
    ts(0)
    a("s_load_dwordx16 s[16:31], s[0:1], 0")
    a("s_load_dwordx16 s[32:47], s[0:1], 64")
    a("v_lshrrev_b32 v1, 6, v0")
    a("v_and_b32 v0, 63, v0")
    a(f"v_readfirstlane_b32 s{S_WAVE}, v1")
    a(f"s_and_b32 s{S_XCD}, s2, 7")
    a(f"s_lshr_b32 s{S_SLOT}, s2, 3")
    if cfg.cpf == 2:
        a(f"s_cmp_gt_u32 s{S_WAVE}, {cfg.cpw - 1}")
        a("s_cbranch_scc1 L_nocpf")
        a("s_getpc_b64 s[12:13]")
        a.label("L_pc0")
        a(f"s_sub_u32 s12, s12, L_pc0-{KNAME}")
        a("s_subb_u32 s13, s13, 0")
        a(f"s_lshl_b32 s11, s{S_WAVE}, 5")
        a(f"s_add_u32 s11, s11, s{S_SLOT}")
        a("s_lshl_b32 s11, s11, 10")
        a("v_lshl_add_u32 v38, v0, 4, s11")
        a(f"v_min_u32 v38, L_exit-{KNAME}, v38")
        a("global_load_dword v39, v38, s[12:13]")
        a.label("L_nocpf")
    a(f"s_and_b32 s11, s{S_SLOT}, 3")
    a(f"s_lshr_b32 s{S_NT}, s{S_SLOT}, 2")
    a(f"s_and_b32 s12, s{S_XCD}, 1")
    a(f"s_lshl_b32 s12, s12, 2")
    a(f"s_add_u32 s{S_MT}, s12, s11")
    a(f"s_lshr_b32 s12, s{S_XCD}, 1")
    a(f"s_mul_i32 s12, s12, 7")
    a(f"s_add_u32 s{S_NS}, s12, s{S_NT}")
    if cfg.slab:
        a(f"s_mov_b32 s{S_MT}, s{S_XCD}")
        a(f"s_mov_b32 s{S_NS}, s{S_SLOT}")
    if cfg.loc:
        a(f"s_and_b32 s12, s{S_XCD}, 1")
        a("s_lshl_b32 s12, s12, 2")
        a(f"s_lshr_b32 s13, s{S_XCD}, 1")
        a("s_add_u32 s12, s12, s13")
        a("s_lshl_b32 s12, s12, 2")
    else:
        a(f"s_lshl_b32 s12, s{S_XCD}, 2")
    a(f"s_add_u32 s{S_M64}, s12, s11")
    a(f"s_and_b32 s{S_W4}, s{S_WAVE}, 3")
    ts.init()
    a(f"s_cmp_ge_u32 s{S_SLOT}, 28")
    a("s_cbranch_scc1 L_helper")
    a(f"s_cmp_lt_u32 s{S_WAVE}, 4")
    a("s_cbranch_scc1 L_consumer")

def gen_helper(a, cfg, ts):
    if cfg.al >= 3: a.raw(".p2align 12")
    a.label("L_helper")
    vm = VM(a)
    a(f"s_sub_u32 s73, s{S_SLOT}, 28")
    a(f"s_lshl_b32 s11, s73, 3")
    a(f"s_add_u32 s72, s11, s{S_XCD}")
    if cfg.loc: a(f"s_mov_b32 s72, s{S_M64}")
    HC = 65536
    a(f"v_mov_b32 v200, {HC}")
    a("v_mov_b32 v201, 0")
    a("ds_write_b32 v200, v201")
    def h_open():
        a("s_waitcnt lgkmcnt(0)")
        a("s_barrier")
    def h_signal(tag):
        a("v_mov_b32 v202, 1")
        a("s_mov_b64 exec, 1")
        a("ds_add_rtn_u32 v203, v200, v202")
        a("s_waitcnt lgkmcnt(0)")
        a("v_readfirstlane_b32 s11, v203")
        a("s_cmp_lg_u32 s11, 7")
        a(f"s_cbranch_scc1 L_h_ns{tag}")
        a(f"global_atomic_add v201, v202, s[{P_DBG}:{P_DBG+1}] sc1")
        a.label(f"L_h_ns{tag}")
        a("s_mov_b64 exec, -1")
    a(f"s_cmp_ge_u32 s{S_WAVE}, 4")
    a("s_cbranch_scc1 L_h_pf")
    a(f"s_lshl_b32 s11, s72, 6")
    a(f"s_lshl_b32 s12, s{S_WAVE}, 4")
    a(f"s_add_u32 s11, s11, s12")
    a("v_lshrrev_b32 v2, 3, v0")
    a("v_add_u32 v2, s11, v2")
    a("v_mul_u32_u24 v3, 896, v2")
    a("v_and_b32 v4, 7, v0")
    a("v_lshl_add_u32 v3, v4, 4, v3")
    a("s_waitcnt lgkmcnt(0)")
    srd(a, SRD_X, P_X, 2048 * 896)
    srd(a, SRD_WS, P_WS, WS_SIZE)
    a(f"s_mov_b32 s11, {8*896}")
    for ps in range(2):
        for j in range(7):
            so = "0" if ps == 0 else "s11"
            vm.issue(('x', ps), f"buffer_load_dwordx4 v[{112+28*ps+4*j}:{115+28*ps+4*j}], v3, s[{SRD_X}:{SRD_X+3}], {so} offen offset:{128*j}")
    a(f"s_cmp_gt_u32 s{S_WAVE}, 1")
    a("s_cbranch_scc1 L_h_noreset")
    a(f"s_cmp_eq_u32 s{S_WAVE}, 0")
    a("s_cselect_b32 s11, -1, 0")
    a("s_mov_b32 s12, 1024")
    a("s_cmov_b32 s12, 896")
    a(f"s_mov_b32 s13, {WS_FLAG:#x}")
    a(f"s_cmov_b32 s13, {WS_AGG:#x}")
    a("s_mul_i32 s14, s12, s72")
    a("s_add_u32 s13, s13, s14")
    for k in range(4): a(f"v_mov_b32 v{8+k}, s11")
    a("v_lshlrev_b32 v12, 4, v0")
    a("v_cmp_gt_u32 vcc, s12, v12")
    a("s_and_saveexec_b64 s[14:15], vcc")
    a(f"buffer_store_dwordx4 v[8:11], v12, s[{SRD_WS}:{SRD_WS+3}], s13 offen sc1")
    a("s_mov_b64 exec, s[14:15]")
    a.label("L_h_noreset")
    h_open()
    a("v_lshlrev_b32 v2, 3, v2")
    a("s_mov_b32 s12, 0xffff0000")
    def fin(dst):
        a("v_add_f32 v8, v8, v9")
        a("v_add_f32 v10, v10, v11")
        a(f"v_add_f32 v{dst}, v8, v10")
        a(f"v_add_f32_dpp v{dst}, v{dst}, v{dst} quad_perm:[1,0,3,2] row_mask:0xf bank_mask:0xf")
        a(f"v_add_f32_dpp v{dst}, v{dst}, v{dst} quad_perm:[2,3,0,1] row_mask:0xf bank_mask:0xf")
        a(f"v_add_f32_dpp v{dst}, v{dst}, v{dst} row_half_mirror row_mask:0xf bank_mask:0xf")
        a(f"v_mul_f32 v{dst}, 0x3b124925, v{dst}")
    for ps in range(2):
        vm.wait(('x', ps))
        if cfg.hdelay == 2 + ps: a("s_barrier")
        src = 112 + 28 * ps
        for k in range(28):
            a(f"v_lshlrev_b32 v{48+2*k}, 16, v{src+k}")
            a(f"v_and_b32 v{49+2*k}, s12, v{src+k}")
        a("v_pk_add_f32 v[8:9], v[48:49], v[52:53]")
        a("v_pk_add_f32 v[10:11], v[50:51], v[54:55]")
        for k in range(4, 28): a(f"v_pk_add_f32 v[{8+2*(k%2)}:{9+2*(k%2)}], v[{8+2*(k%2)}:{9+2*(k%2)}], v[{48+2*k}:{49+2*k}]")
        fin(12)
        for k in range(28): a(f"v_pk_add_f32 v[{48+2*k}:{49+2*k}], v[{48+2*k}:{49+2*k}], v[12:13] op_sel_hi:[1,0] neg_lo:[0,1] neg_hi:[0,1]")
        for k in range(2): a(f"v_pk_mul_f32 v[{8+2*k}:{9+2*k}], v[{48+2*k}:{49+2*k}], v[{48+2*k}:{49+2*k}]")
        for k in range(2, 28): a(f"v_pk_fma_f32 v[{8+2*(k%2)}:{9+2*(k%2)}], v[{48+2*k}:{49+2*k}], v[{48+2*k}:{49+2*k}], v[{8+2*(k%2)}:{9+2*(k%2)}]")
        fin(13)
        o = 14 + 2 * ps
        round_bf16(a, o, 12)
        round_bf16(a, 13, 13)
        a("v_add_f32 v13, 0x3727c5ac, v13")
        round_bf16(a, 13, 13)
        a("v_sqrt_f32 v13, v13")
        round_bf16(a, 13, 13)
        a(f"v_rcp_f32 v{o+1}, v13")
        a("v_cmp_eq_u32 vcc, 0, v4")
        a("s_and_saveexec_b64 s[14:15], vcc")
        a(f"s_mov_b32 s11, {WS_STATS:#x}")
        vm.issue('st', f"buffer_store_dwordx2 v[{o}:{o+1}], v2, s[{SRD_WS}:{SRD_WS+3}], s11 offen offset:{64*ps} sc1")
        a("s_mov_b64 exec, s[14:15]")
    a("s_waitcnt vmcnt(0)")
    h_signal("a")
    ts(1)
    ts.x(3, 1)
    ts.dump(8, 9)
    a("s_endpgm")
    a.label("L_h_pf")
    a("v_lshlrev_b32 v2, 4, v0")
    a(f"s_lshl_b32 s11, s{S_W4}, 10")
    a("v_add_u32 v2, s11, v2")
    if cfg.cpf == 1:
        a("s_getpc_b64 s[60:61]")
        a.label("L_pc")
        a(f"s_sub_u32 s60, s60, L_pc-{KNAME}")
        a("s_subb_u32 s61, s61, 0")
        a("s_lshl_b32 s11, s73, 12")
        a("v_add_u32 v3, s11, v2")
        for k in range(2):
            a(f"v_min_u32 v4, L_exit-{KNAME}-12, v3")
            a(f"global_load_dwordx4 v[24:27], v4, s[60:61]")
            a(f"v_add_u32 v3, 16384, v3")
    a("s_waitcnt lgkmcnt(0)")
    if cfg.hdelay == 1: a("s_waitcnt vmcnt(0)")
    if cfg.hdelay >= 2: a("s_barrier")
    srd(a, SRD_WS, P_WS, WS_SIZE)
    a("s_lshl_b32 s60, s72, 2")
    a(f"s_add_u32 s60, s60, s{S_W4}")
    a("s_cmp_ge_u32 s60, 98")
    a("s_cbranch_scc1 L_h_nopack1")
    a("s_mul_i32 s61, s60, 37")
    a("s_lshr_b32 s61, s61, 8")
    a("s_mul_i32 s62, s61, 7")
    a("s_sub_u32 s62, s60, s62")
    a("s_cmp_lt_i32 s62, 0")
    a("s_cselect_b32 s11, 1, 0")
    a("s_sub_u32 s61, s61, s11")
    a("s_mul_i32 s62, s61, 7")
    a("s_sub_u32 s62, s60, s62")
    a("s_bitcmp1_b32 s61, 0")
    srd_sel(a, 68, P_CIM, P_CRE, 448 * 896)
    a("v_lshrrev_b32 v3, 3, v0")
    a("v_and_b32 v4, 7, v0")
    a("v_lshrrev_b32 v5, 1, v3")
    a("v_xor_b32 v4, v4, v5")
    a("s_lshr_b32 s11, s61, 1")
    a("s_lshl_b32 s11, s11, 6")
    a("v_add_u32 v3, s11, v3")
    a("v_mul_u32_u24 v3, 896, v3")
    a("v_lshl_add_u32 v3, v4, 4, v3")
    a("v_xor_b32 v4, 64, v3")
    a(f"s_lshl_b32 s63, s{S_W4}, 13")
    a("s_lshl_b32 s12, s62, 7")
    for n in range(8):
        a(f"s_add_u32 m0, s63, {n*1024}")
        a(f"s_add_u32 s11, s12, {8*n*896}")
        a(f"buffer_load_dwordx4 v{3 + (n & 1)}, s[68:71], s11 offen lds")
    a.label("L_h_nopack1")
    h_open()
    def h_sweep():
        if cfg.hpf:
            for (ptr, nbytes, srdn) in ((P_WD, 1792 * 896, 56),):
                srd(a, srdn, ptr, nbytes)
            def sweep(name, srds, qbytes, first, count):
                n8 = -(-qbytes // (8 * 4096))
                n = 8 * n8
                a(f"s_mul_i32 s12, s73, {qbytes}")
                a(f"s_add_u32 s13, s{S_XCD}, {first}")
                a("s_and_b32 s13, s13, 7")
                a(f"s_mul_i32 s13, s13, {n8}")
                a("s_mov_b32 s14, 0")
                a.label(name)
                a("s_lshl_b32 s11, s13, 12")
                a("s_add_u32 s11, s11, s12")
                for k, sr in enumerate(srds):
                    a(f"buffer_load_dwordx4 v[{16+4*k}:{19+4*k}], v2, s[{sr}:{sr+3}], s11 offen")
                a("s_add_u32 s13, s13, 1")
                a(f"s_cmp_eq_u32 s13, {n}")
                a("s_cselect_b32 s13, 0, s13")
                a("s_add_u32 s14, s14, 1")
                a(f"s_cmp_lt_u32 s14, {n8 * count}")
                a(f"s_cbranch_scc1 {name}")
            sweep("L_h_p2", [56], 1792 * 896 // 4, 0, 1)
            ts(2)
    def h_pack():
        a("s_cmp_ge_u32 s60, 98")
        a("s_cbranch_scc1 L_h_nopack2")
        a("v_and_b32 v5, 31, v0")
        a("v_lshrrev_b32 v6, 5, v0")
        a("v_bfe_u32 v7, v0, 1, 3")
        a("v_xor_b32 v7, v7, v6")
        a("v_lshlrev_b32 v7, 4, v7")
        a("v_lshl_add_u32 v5, v5, 7, v7")
        a("v_add_u32 v5, s63, v5")
        a("v_lshlrev_b32 v6, 4, v0")
        a("s_mul_i32 s12, s61, 28")
        a("s_lshl_b32 s11, s62, 2")
        a("s_add_u32 s12, s12, s11")
        a("s_lshl_b32 s12, s12, 11")
        a(f"s_add_u32 s12, s12, {WS_CP:#x}")
        a(f"s_waitcnt vmcnt({13 if (cfg.hpf and not cfg.hord) else 0})")
        for ks in range(4):
            a(f"v_xor_b32 v7, {32*ks}, v5")
            for ct in range(2):
                d = 32 + 8 * ks + 4 * ct
                a(f"ds_read_b128 v[{d}:{d+3}], v7 offset:{4096*ct}")
        for ks in range(4):
            a(f"s_waitcnt lgkmcnt({6 - 2*ks})")
            a(f"s_add_u32 s11, s12, {2048*ks}")
            for ct in range(2):
                d = 32 + 8 * ks + 4 * ct
                a(f"buffer_store_dwordx4 v[{d}:{d+3}], v6, s[{SRD_WS}:{SRD_WS+3}], s11 offen offset:{1024*ct} sc1")
        a("s_waitcnt vmcnt(0)")
        a.label("L_h_nopack2")
        h_signal("b")
        ts(3)
        ts.x(3, 1)
    if cfg.hord: h_pack(); h_sweep()
    else: h_sweep(); h_pack()
    ts.dump(8, 9)
    a("s_endpgm")

def spin_check(a, name, load_text_list, cond_fn, sleep=1):
    lo, done = a.newlabel(name + "_spin"), a.newlabel(name + "_ok")
    a(f"s_mov_b32 s73, 0")
    a.label(lo)
    cond_fn()
    a(f"s_cbranch_scc1 {done}")
    a("s_add_u32 s73, s73, 1")
    a(f"s_cmp_ge_u32 s73, {SPIN_MAX}")
    a(f"s_cbranch_scc1 {done}")
    a(f"s_sleep {sleep}")
    for t in load_text_list: a(t)
    a("s_waitcnt vmcnt(0)")
    a(f"s_branch {lo}")
    a.label(done)
    a("s_nop 4")

def sspin(a, name, loads, cond_fn, sleep=1):
    lo, done = a.newlabel(name + "_spin"), a.newlabel(name + "_ok")
    a("s_mov_b32 s73, 0")
    a.label(lo)
    for t in loads: a(t)
    a("s_waitcnt lgkmcnt(0)")
    cond_fn()
    a(f"s_cbranch_scc1 {done}")
    a("s_add_u32 s73, s73, 1")
    a(f"s_cmp_lt_u32 s73, {SPIN_MAX}")
    if sleep: a(f"s_sleep {sleep}")
    a(f"s_cbranch_scc1 {lo}")
    a.label(done)

def flag_index(a, d, t, grp):
    a(f"s_mul_i32 s{t}, s{S_NS}, 37")
    a(f"s_lshr_b32 s{t}, s{t}, {8 if grp == 7 else 9}")
    a(f"s_mul_i32 s{t}, s{t}, {32 - grp}")
    a(f"s_add_u32 s{d}, s{t}, s{S_NS}")
    a(f"s_lshl_b32 s{d}, s{d}, 2")

def interleave(a, prim, fill, per):
    fill = list(fill)
    for p in prim:
        p()
        for _ in range(per):
            if fill: a(fill.pop(0))
    for f in fill: a(f)

def p2_rot(a, cfg, d_ffn, d_blk, d_flip):
    if not cfg.rot:
        for d in (d_ffn, d_blk, d_flip): a(f"s_mov_b32 s{d}, 0")
        return
    tab = {2: [0] * 7, 1: list(range(7)), 3: [0, 3, 0, 3, 0, 3, 0], 4: [0, 2, 5, 0, 2, 5, 0], 5: [0, 4, 2, 5, 0, 4, 2], 6: [0, 1, 0, 1, 0, 1, 0], 7: [0, 2, 0, 2, 0, 2, 0]}[cfg.rot]
    word = sum(v << (4 * k) for k, v in enumerate(tab))
    a(f"s_lshl_b32 s11, s{S_NT}, 2")
    a(f"s_lshr_b32 s13, {word:#x}, s11")
    a("s_and_b32 s13, s13, 15")
    a(f"s_and_b32 s11, s{S_SLOT}, 3")
    a("s_lshl_b32 s11, s11, 1")
    a("s_add_u32 s11, s11, s13")
    a("s_cmp_ge_u32 s11, 7")
    a("s_cselect_b32 s13, 7, 0")
    a(f"s_sub_u32 s{d_ffn}, s11, s13")
    for d in (d_blk, d_flip): a(f"s_mov_b32 s{d}, 0")

def slot(reg, n): return R[reg] + 2048 * n
SA = [slot(1, n) for n in range(6)]; SB = [slot(2, n) for n in range(6)]; SC = [slot(0, n) for n in range(6)]
WSLOT = {}
for n in range(6): WSLOT[n] = SA[n]; WSLOT[6 + n] = SB[n]
for n in range(4): WSLOT[12 + n] = SC[n]; WSLOT[16 + n] = SA[n]; WSLOT[20 + n] = SB[n]
WSLOT.update({24: SA[4], 25: SA[5], 26: SB[4], 27: SB[5]})
HTS = SC[4]
PH1, PH2, GA, FXA, SD = SC[0], SC[4], SB[0], SA[0], SC[0]

def kpos(p):
    return (p % 14) // 2, 2 * (p // 14) + p % 2

class Rec:
    def __init__(self): self.L = []
    def __call__(self, t): self.L.append(t)

def ssm_park(kc, K, KP, sQ):
    LR, LI, CR, CI, L16R, L16I, PWR, PWI, L64R, L64I, LWR, LWI, W0R = [KP + k for k in range(13)]
    vTW, vTR, vCB = KP + 16, KP + 17, KP + 18
    ssm_const_calc(kc, K, LR, LI, CR, CI)
    csq(kc, L16R, L16I, LR, LI, K)
    for _ in range(3): csq(kc, L16R, L16I, L16R, L16I, K)
    def powsel(dr, di, br, bi, bit, src):
        cmul(kc, K + 1, K + 2, dr, di, br, bi)
        kc(f"v_and_b32 v{K}, {bit}, v{src}")
        kc(f"v_cmp_ne_u32 vcc, 0, v{K}")
        kc(f"v_cndmask_b32 v{dr}, v{dr}, v{K+1}, vcc")
        kc(f"v_cndmask_b32 v{di}, v{di}, v{K+2}, vcc")
    kc(f"v_mov_b32 v{PWR}, v{CR}"); kc(f"v_mov_b32 v{PWI}, v{CI}")
    powsel(PWR, PWI, L16R, L16I, 32, 0)
    csq(kc, K + 14, K + 15, L16R, L16I, K)
    powsel(PWR, PWI, K + 14, K + 15, 16, 0)
    csq(kc, L64R, L64I, K + 14, K + 15, K)
    kc(f"v_mov_b32 v{K+10}, s{S_W4}")
    kc(f"v_mov_b32 v{LWR}, 1.0"); kc(f"v_mov_b32 v{LWI}, 0")
    powsel(LWR, LWI, L64R, L64I, 1, K + 10)
    csq(kc, K + 14, K + 15, L64R, L64I, K)
    powsel(LWR, LWI, K + 14, K + 15, 2, K + 10)
    csq(kc, K + 14, K + 15, K + 14, K + 15, K)
    kc(f"v_lshrrev_b32 v{K+10}, 4, v0")
    kc(f"v_sub_u32 v{K+10}, s{S_MT}, v{K+10}")
    kc(f"v_add_u32 v{K+11}, -5, v{K+10}")
    kc(f"v_add_u32 v{K+10}, -1, v{K+10}")
    kc(f"v_mov_b32 v{W0R}, 1.0"); kc(f"v_mov_b32 v{W0R+1}, 0")
    kc(f"v_mov_b32 v{W0R+2}, 1.0"); kc(f"v_mov_b32 v{W0R+3}, 0")
    for b in range(3):
        powsel(W0R, W0R + 1, K + 14, K + 15, 1 << b, K + 10)
        if b < 2: powsel(W0R + 2, W0R + 3, K + 14, K + 15, 1 << b, K + 11)
        if b < 2: csq(kc, K + 14, K + 15, K + 14, K + 15, K)
    kc(f"s_add_u32 s36, s{sQ}, {HTS}")
    kc(f"v_bfe_u32 v{K}, v0, 4, 1")
    kc(f"v_lshrrev_b32 v{K+1}, 5, v0")
    kc(f"v_lshl_add_u32 v{K+2}, v{K}, 1, v{K+1}")
    kc(f"v_and_b32 v{K+3}, 15, v0")
    kc(f"v_and_b32 v{vTW}, 6, v{K+3}")
    kc(f"v_lshlrev_b32 v{vTW}, 4, v{vTW}")
    kc(f"v_lshlrev_b32 v{K+4}, 5, v{K+2}")
    kc(f"v_xor_b32 v{vTW}, v{vTW}, v{K+4}")
    kc(f"v_lshl_add_u32 v{vTW}, v{K+3}, 7, v{vTW}")
    kc(f"v_add_u32 v{vTW}, s36, v{vTW}")
    kc(f"v_lshlrev_b32 v{vCB}, 2, v{K+3}")
    kc(f"v_add_u32 v{vCB}, {C_L + 512}, v{vCB}")
    kc(f"v_bfe_u32 v{K+4}, v0, 2, 2")
    kc(f"v_lshl_add_u32 v{K+5}, v{K+1}, 3, v{K+4}")
    kc(f"v_lshlrev_b32 v{vTR}, 7, v{K+5}")
    kc(f"v_lshrrev_b32 v{K+4}, 1, v{K+4}")
    kc(f"v_xor_b32 v{K+4}, v{K+4}, v0")
    kc(f"v_and_b32 v{K+4}, 1, v{K+4}")
    kc(f"v_lshl_add_u32 v{vTR}, v{K+4}, 5, v{vTR}")
    kc(f"v_lshl_add_u32 v{vTR}, v{K}, 4, v{vTR}")
    kc(f"v_bfe_u32 v{K+4}, v0, 1, 1")
    kc(f"v_lshl_add_u32 v{vTR}, v{K+4}, 3, v{vTR}")
    kc(f"v_add_u32 v{vTR}, s36, v{vTR}")
    kc(f"s_lshl_b32 s36, s{S_W4}, 9")
    kc(f"s_add_u32 s36, s36, {STATS_L}")
    kc(f"v_lshl_add_u32 v{KP+19}, v{K+2}, 7, s36")
    vStS = KP + 19
    vAg, vPr, vF = KP + 20, KP + 21, KP + 22
    kc(f"v_lshlrev_b32 v{vAg}, 3, v{K+3}")
    kc(f"v_lshrrev_b32 v{vPr}, 4, v0")
    kc(f"v_mul_u32_u24 v{vPr}, 3584, v{vPr}")
    kc(f"s_lshl_b32 s36, s{S_NS}, 7")
    kc(f"v_add3_u32 v{vPr}, v{vPr}, v{vAg}, s36")
    kc(f"v_add_u32 v{vAg}, {AGG_L}, v{vAg}")
    kc(f"s_lshl_b32 s36, s{S_MT}, 2")
    kc(f"s_add_u32 s36, s36, s{S_W4}")
    kc("s_lshl_b32 s36, s36, 10")
    flag_index(kc, 37, 38, 14)
    kc("s_add_u32 s36, s36, s37")
    kc(f"s_add_u32 s36, s36, {WS_FLAG + 512:#x}")
    kc(f"v_mov_b32 v{vF}, s36")

def gen_loader(a, cfg, ts):
    a.label("L_loader")
    a("s_setprio 3")
    vm = VM(a)
    vXe, vXo, vW, vB = 1, 2, 3, 4
    vFv, vP, vO, vPQ = 5, 6, 7, 8
    vWd, vCe, vCo, vCh = 9, 10, 11, 12
    vRf, vRh = 13, 14
    vA, vC = 24, 25
    vT = 15
    ACC, CA, RD = 27, 28, 44
    STG = 64
    CF = 144
    SACC = 80
    XRAW = CF + 64
    KP = XRAW + 8
    sGrp = [28, 29, 30, 31, 36, 37, 21]
    SP = ['', ' sc1'][cfg.spol]
    sMX, sMW, sMB, sMP = 72, 74, 75, 70
    sPerm, sSX, sSW = 68, 69, 15
    sRF = 14
    AP = ['', ' sc1', ' sc1 nt', ' sc0 sc1', ' sc0', ' nt'][cfg.apol]
    OP = ['', ' sc1', ' nt', ' sc1 nt'][cfg.opol]
    polx = " nt" if cfg.polx else ""
    polw = " nt" if cfg.polw else ""
    a(f"v_lshrrev_b32 v{vA}, 3, v0")
    a(f"v_and_b32 v{vC}, 7, v0")
    a(f"v_lshrrev_b32 v{vT+2}, 1, v{vA}")
    a(f"s_lshl_b32 s11, s{S_W4}, 4")
    a(f"v_add_u32 v{vT}, s11, v{vA}")
    a(f"v_mul_u32_u24 v{vW}, 3584, v{vT}")
    a(f"v_and_b32 v{vT+4}, 1, v{vT+2}")
    a(f"v_lshlrev_b32 v{vT+4}, 2, v{vT+4}")
    a(f"v_xor_b32 v{vT+4}, v{vC}, v{vT+4}")
    a(f"v_lshl_add_u32 v{vW}, v{vT+4}, 4, v{vW}")
    a(f"s_lshl_b32 s11, s{S_NS}, 7")
    a(f"v_add_u32 v{vW}, s11, v{vW}")
    a(f"s_lshl_b32 s11, s{S_MT}, 8")
    a(f"s_lshl_b32 s12, s{S_W4}, 6")
    a("s_add_u32 s11, s11, s12")
    a(f"v_lshrrev_b32 v{vT}, 2, v{vA}")
    a(f"v_and_b32 v{vT+1}, 3, v{vA}")
    a(f"v_lshl_add_u32 v{vT}, v{vT}, 4, v{vT+1}")
    a(f"v_add_u32 v{vT}, s11, v{vT}")
    a(f"v_mul_u32_u24 v{vXe}, 896, v{vT}")
    a(f"v_xor_b32 v{vT+3}, v{vC}, v{vT+2}")
    a(f"v_lshl_add_u32 v{vXe}, v{vT+3}, 4, v{vXe}")
    a(f"v_xor_b32 v{vXo}, 64, v{vXe}")
    a(f"s_and_b32 s12, s{S_W4}, 1")
    a(f"s_lshl_b32 s11, s{S_NS}, 4")
    a(f"s_lshl_b32 s13, s12, 3")
    a("s_add_u32 s11, s11, s13")
    a(f"v_add_u32 v{vT}, s11, v{vA}")
    a(f"v_mul_u32_u24 v{vB}, 896, v{vT}")
    a(f"v_lshl_add_u32 v{vB}, v{vT+3}, 4, v{vB}")
    a("s_lshl_b32 s13, s12, 6")
    a(f"v_xor_b32 v{vB}, s13, v{vB}")
    a(f"s_lshl_b32 s{sMX}, s{S_W4}, 13")
    a(f"s_lshl_b32 s{sMW}, s{S_W4}, 11")
    a(f"s_lshl_b32 s{sMB}, s{S_W4}, 10")
    a(f"s_mul_i32 s{sMP}, s{S_W4}, {Q}")
    perms = cfg.perms
    words = [sum(p[k] << (4 * k) for k in range(7)) for p in perms]
    ng = len(words)
    a(f"s_mov_b32 s{sPerm}, {words[0]:#x}")
    if ng > 1:
        if cfg.slab:
            a(f"s_add_u32 s11, s{S_SLOT}, s{S_XCD}")
        else:
            a(f"s_and_b32 s11, s{S_SLOT}, 3")
            a(f"s_add_u32 s11, s11, s{S_NT}")
        if ng == 3:
            a("s_mul_i32 s13, s11, 43")
            a("s_lshr_b32 s13, s13, 7")
            a("s_mul_i32 s13, s13, 3")
            a("s_sub_u32 s11, s11, s13")
        else:
            a(f"s_and_b32 s11, s11, {ng-1}")
        for g in range(1, ng):
            a(f"s_cmp_eq_u32 s11, {g}")
            a(f"s_cmov_b32 s{sPerm}, {words[g]:#x}")
    ts.x(1, 1)
    a("s_waitcnt lgkmcnt(0)")
    ts.x(1, 2)
    if cfg.tlb:
        a(f"v_mov_b32 v40, s{P_X}")
        a(f"v_mov_b32 v41, s{P_X+1}")
        for ln, p in enumerate([P_WG, P_WU, P_BRE, P_BIM, P_WD, P_CRE, P_CIM, P_WS][:cfg.tlb], 1):
            a(f"v_writelane_b32 v40, s{p}, {ln}")
            a(f"v_writelane_b32 v41, s{p+1}, {ln}")
        a(f"s_mov_b64 exec, {(1 << (cfg.tlb + 1)) - 1:#x}")
        a("global_load_dword v62, v[40:41], off")
        a("s_mov_b64 exec, -1")
    srd(a, SRD_A, P_WG, 448 * 3584)
    srd(a, SRD_X, P_X, 2048 * 896)
    srd(a, SRD_B, P_WU, 448 * 3584)
    a(f"s_cmp_ge_u32 s{S_W4}, 2")
    srd_sel(a, SRD_C, P_BIM, P_BRE, 448 * 896)

    thr = [None]
    def dma(vm, tag, voff, srdn, sbase, soff, m0base, m0off, pol=""):
        a(f"s_add_u32 m0, s{m0base}, {m0off}")
        a(f"s_add_u32 s11, s{sbase}, {soff}")
        if thr[0] is not None and len(vm.q) > thr[0]:
            a(f"s_waitcnt vmcnt({thr[0]})")
            vm.q = vm.q[-thr[0]:]
        vm.issue(tag, f"buffer_load_dwordx4 v{voff}, s[{srdn}:{srdn+3}], s11 offen{pol} lds")
    def issue_ops(s):
        r = R[s % 3]
        ops = []
        def pre():
            a(f"s_bfe_u32 s{sSX}, s{sPerm}, {(4 << 16) | (4 * s):#x}")
            a(f"s_mul_i32 s{sSW}, s{sSX}, {64*3584}")
            a(f"s_lshl_b32 s{sSX}, s{sSX}, 7")
        def mk(*args): return lambda: dma(vm, ('st', s), *args)
        L = []
        for i in range(2): L.append(mk(vW, SRD_A, sSW, i * 8 * 3584, sMW, r + OFF_WG + i * 1024, polw))
        for j in range(4): L.append(mk(vXo if j & 1 else vXe, SRD_X, sSX, (32 * (j >> 2) + 4 * (j & 3)) * 896, sMX, r + j * 1024, polx))
        for i in range(2): L.append(mk(vW, SRD_B, sSW, i * 8 * 3584, sMW, r + OFF_WU + i * 1024, polw))
        for j in range(4, 8): L.append(mk(vXo if j & 1 else vXe, SRD_X, sSX, (32 * (j >> 2) + 4 * (j & 3)) * 896, sMX, r + j * 1024, polx))
        L.append(mk(vB, SRD_C, sSX, 0, sMB, r + OFF_BB, polw))
        first = L[0]
        L[0] = lambda: (pre(), first())
        return L
    SRD_WD, SRD_CC, sBlk, sFlip, P_DSK2 = 32, 24, 16, 17, 38
    def w_ops(ps):
        L = []
        for p in ps:
            for n in range(2):
                def op(p=p, n=n):
                    if 12 <= p < 22:
                        d = STG + (p - 12) * 8 + 4 * n
                        a(f"s_add_u32 s11, s{sGrp[kpos(p)[0]]}, {(kpos(p)[1] * 16 + 8 * n) * 896}")
                        vm.issue(('w', p), f"buffer_load_dwordx4 v[{d}:{d+3}], v{vWd}, s[{SRD_WD}:{SRD_WD+3}], s11 offen")
                    else:
                        dma(vm, ('w', p), vWd, SRD_WD, sGrp[kpos(p)[0]], (kpos(p)[1] * 16 + 8 * n) * 896, sMP, WSLOT[p] + n * 1024)
                L.append(op)
        return L
    sCB = [68, 69, 15]
    sCF, sCH = 16, 17
    def cfrag(p, lc): return CF + 8 * p + 4 * lc
    def c_ops(b):
        L = []
        for p in (range(4 * b, 4 * b + 4) if b < 3 else (12, 13)):
            for lc in range(2):
                def op(p=p, lc=lc):
                    d = cfrag(p, lc)
                    sb, so = (sCF, 2048 * p) if p < 12 else (sCH, 2048 * (p - 12))
                    if cfg.crot and p < 12: sb, so = sCB[p // 4], 2048 * (p % 4)
                    a(f"s_add_u32 s11, s{sb}, {so}")
                    vm.issue(('c', b), f"buffer_load_dwordx4 v[{d}:{d+3}], v{(vCe, vCo)[lc]}, s[{SRD_WS}:{SRD_WS+3}], s11 offen sc1")
                L.append(op)
        return L
    def w_write(ps):
        vm.wait(('w', ps[-1]))
        base = WSLOT[ps[0]]
        a(f"v_add_u32 v{vT+4}, {base}, v{vPQ}")
        for p in ps:
            for n in range(2):
                d = STG + (p - 12) * 8 + 4 * n
                a(f"ds_write_b128 v{vT+4}, v[{d}:{d+3}] offset:{WSLOT[p] - base + 1024*n}")
    def colsum_reads(s):
        r = R[s % 3]
        a(f"s_add_u32 s11, s{sMW}, {r + OFF_WG}")
        a(f"v_add_u32 v{vT}, s11, v{vP}")
        a(f"s_add_u32 s11, s{sMB}, {r + OFF_BB}")
        a(f"v_add_u32 v{vT+1}, s11, v{vP}")
        a(f"ds_read_b128 v[{RD}:{RD+3}], v{vT}")
        a(f"ds_read_b128 v[{RD+4}:{RD+7}], v{vT} offset:1024")
        a(f"ds_read_b128 v[{RD+8}:{RD+11}], v{vT} offset:8192")
        a(f"ds_read_b128 v[{RD+12}:{RD+15}], v{vT} offset:9216")
        a(f"ds_read_b128 v[{RD+16}:{RD+19}], v{vT+1}")
    def colsum_ops():
        L = ["s_waitcnt lgkmcnt(0)"]
        for n in range(4):
            for d in range(4):
                w = RD + 4 * n + d
                ac = CA + (n >> 1) * 8 + 2 * d
                L.append(f"v_lshlrev_b32 v{vT+2}, 16, v{w}")
                L.append(f"v_and_b32 v{vT+3}, s71, v{w}")
                L.append(f"v_add_f32 v{ac}, v{ac}, v{vT+2}")
                L.append(f"v_add_f32 v{ac+1}, v{ac+1}, v{vT+3}")
        for d in range(4):
            w = RD + 16 + d
            L.append(f"v_lshlrev_b32 v{vT+2}, 16, v{w}")
            L.append(f"v_and_b32 v{vT+3}, s71, v{w}")
            L.append(f"v_add_f32 v{vT+2}, v{vT+2}, v{vT+3}")
            L.append(f"v_add_f32 v{ACC}, v{ACC}, v{vT+2}")
        return L

    stage_ops = {}
    cdone = set()
    def tok_ops(toks):
        L = []
        for t in toks:
            if t[0] == 's':
                st = int(t[1])
                if st not in stage_ops: stage_ops[st] = issue_ops(st)
                lo, hi = (0, 13) if ':' not in t else map(int, t.split(':')[1].split('-'))
                L += stage_ops[st][lo:hi]
            elif t[0] == 'w': L += w_ops([int(t[1:])])
            elif t[0] == 'c':
                lo, hi = (0, 8) if ':' not in t else map(int, t.split(':')[1].split('-'))
                L += c_ops(int(t[1]))[lo:hi]
                cdone.add(int(t[1]))
            else: L.append(lambda t=t: special(t))
        return L
    def run_tokens(toks):
        for o in tok_ops(toks): o()
    def special(t):
        if True:
            if t == 'put':
                vm.wait('stats')
                a(f"s_lshl_b32 s11, s{S_W4}, 9")
                a(f"s_add_u32 s11, s11, {STATS_L}")
                a(f"v_lshl_add_u32 v{vT+4}, v0, 3, s11")
                a(f"ds_write_b64 v{vT+4}, v[20:21]")
                a(f"v_lshlrev_b32 v{vT+4}, 3, v0")
                a(f"v_add_u32 v{vT+4}, {ST2_L}, v{vT+4}")
                a(f"ds_write_b64 v{vT+4}, v[22:23]")
            elif t == 'e':
                a(f"s_add_u32 s12, s41, {16*896}")
                vm.issue('e', f"buffer_load_dwordx4 v[{XRAW}:{XRAW+3}], v20, s[{SRD_X}:{SRD_X+3}], s41 offen")
                vm.issue('e', f"buffer_load_dwordx4 v[{XRAW+4}:{XRAW+7}], v20, s[{SRD_X}:{SRD_X+3}], s12 offen")
                vm.issue('e', f"global_load_ushort v{KP+23}, v21, s[{P_DSK2}:{P_DSK2+1}]")
            elif t == 'm':
                a(f"v_lshlrev_b32 v{vP}, 4, v0")
                a("s_lshl_b32 s12, s2, 2")
                a(f"s_add_u32 s12, s12, s{S_W4}")
                a("s_lshl_b32 s12, s12, 10")
                a(f"s_add_u32 s12, s12, {192*3584}")
                vm.issue('m', f"buffer_load_dwordx4 v[140:143], v{vP}, s[{SRD_A}:{SRD_A+3}], s12 offen")
                vm.issue('m', f"buffer_load_dwordx4 v[140:143], v{vP}, s[{SRD_B}:{SRD_B+3}], s12 offen")
                a(f"s_and_b32 s12, s{S_W4}, 1")
                a("s_lshl_b32 s11, s2, 1")
                a("s_add_u32 s12, s12, s11")
                a("s_lshl_b32 s12, s12, 10")
                vm.issue('m', f"buffer_load_dwordx4 v[140:143], v{vP}, s[{SRD_C}:{SRD_C+3}], s12 offen")
            elif t == 'k':
                a("s_waitcnt lgkmcnt(0)")
            elif t == 'init':
                a(f"v_mov_b32 v26, 0")
                vm.issue('init', f"global_load_dword v5, v26, s[{P_DBG}:{P_DBG+1}] sc1")
            elif t == 'fetch':
                vm.wait('init')
                def cond():
                    a(f"v_readfirstlane_b32 s11, v5")
                    a(f"s_cmp_ge_u32 s11, {INIT_N}")
                spin_check(a, "L_init", [f"global_load_dword v5, v26, s[{P_DBG}:{P_DBG+1}] sc1"], cond, 8)
                if cfg.ts == 1 and cfg.tsset == 3: a(f"s_add_u32 s{TS0+18}, s73, 1")
                if cfg.crot:
                    a(f"s_and_b32 s11, s{S_SLOT}, 3")
                    a("s_lshl_b32 s11, s11, 1")
                    a("s_lshr_b32 s12, 0x924, s11")
                    for b in range(3):
                        a(f"s_bfe_u32 s11, s12, {(2 << 16) | (2 * b):#x}")
                        a("s_lshl_b32 s11, s11, 13")
                        a(f"s_add_u32 s{sCB[b]}, s11, s{sCF}")
                a(f"s_lshl_b32 s11, s{S_MT}, 8")
                a(f"s_lshl_b32 s12, s{S_W4}, 6")
                a("s_add_u32 s11, s11, s12")
                a(f"v_add_lshl_u32 v5, v0, s11, 3")
                a(f"s_lshl_b32 s12, s{S_M64}, 6")
                a(f"v_add_lshl_u32 v26, v0, s12, 3")
                a(f"s_mov_b32 s11, {WS_STATS:#x}")
                vm.issue('stats', f"buffer_load_dwordx2 v[20:21], v5, s[{SRD_WS}:{SRD_WS+3}], s11 offen sc1")
                vm.issue('stats', f"buffer_load_dwordx2 v[22:23], v26, s[{SRD_WS}:{SRD_WS+3}], s11 offen sc1")
            else: raise ValueError(t)
    win = cfg.win
    run_tokens([f"s0:0-{cfg.s0a}"])
    if cfg.s0a == 13:
        ts(1)
        ts.x(1, 6)
        run_tokens(win.get(-1, []))
        a("s_setprio 0")
    a(f"s_and_b32 s12, s{S_W4}, 1")
    a(f"v_lshlrev_b32 v{vP}, 4, v0")
    a(f"v_add_u32 v{vPQ}, s{sMP}, v{vP}")
    a(f"s_mul_i32 s14, s{S_W4}, 448")
    a(f"v_add_u32 v{vT}, s14, v{vA}")
    a(f"v_mul_u32_u24 v{vWd}, 896, v{vT}")
    a(f"v_lshl_add_u32 v{vWd}, v{vT+4}, 4, v{vWd}")
    a(f"s_lshl_b32 s14, s{S_NT}, 7")
    a(f"v_add_u32 v{vWd}, s14, v{vWd}")
    a(f"v_and_b32 v{vT+1}, 3, v0")
    a("s_mov_b32 s71, 0xffff0000")
    for k in range(17): a(f"v_mov_b32 v{ACC+k}, 0")
    srd(a, SRD_WS, P_WS, WS_SIZE)
    a(f"s_mov_b64 s[{P_DSK2}:{P_DSK2+1}], s[{P_DSK}:{P_DSK+1}]")
    srd(a, SRD_WD, P_WD, 1792 * 896)
    p2_rot(a, cfg, sRF, sBlk, sFlip)
    a(f"s_lshl_b32 s11, s{S_M64}, 1")
    a("s_add_u32 s40, s11, s12")
    a("s_lshl_b32 s12, s40, 5")
    a(f"v_lshrrev_b32 v{vT}, 2, v0")
    a(f"v_add_u32 v{vT}, s12, v{vT}")
    a(f"v_mul_u32_u24 v{vT}, 896, v{vT}")
    a(f"v_lshl_add_u32 v20, v{vT+1}, 4, v{vT}")
    a(f"v_lshrrev_b32 v{vT+2}, 5, v0")
    a(f"v_lshl_add_u32 v{vT}, v{vT+2}, 4, s12")
    a(f"s_lshr_b32 s13, s{S_W4}, 1")
    a("s_lshl_b32 s12, s13, 5")
    a(f"s_lshl_b32 s11, s{S_NT}, 6")
    a("s_add_u32 s11, s11, s12")
    a("s_lshl_b32 s41, s11, 1")
    a(f"v_and_b32 v{vT+3}, 31, v0")
    a(f"v_add_u32 v{vT+1}, s11, v{vT+3}")
    a(f"v_mul_u32_u24 v{vT}, 448, v{vT}")
    a(f"v_add_lshl_u32 v{vO}, v{vT}, v{vT+1}, 2")
    a(f"v_lshlrev_b32 v21, 1, v{vT+1}")
    a("s_lshl_b32 s12, s13, 10")
    a(f"v_add_u32 v{vCe}, s12, v{vP}")
    a(f"v_xor_b32 v{vCo}, 1024, v{vCe}")
    a(f"s_lshl_b32 s11, s{S_NT}, 1")
    a("s_add_u32 s11, s11, s13")
    a(f"s_mul_i32 s11, s11, {28*2048}")
    a(f"s_add_u32 s11, s11, {WS_CP:#x}")
    a(f"s_and_b32 s12, s{S_W4}, 1")
    a(f"s_lshl_b32 s{sCF}, s12, 15")
    a(f"s_add_u32 s{sCF}, s{sCF}, s11")
    a(f"s_lshl_b32 s{sCH}, s12, 12")
    a(f"s_add_u32 s{sCH}, s{sCH}, s11")
    a(f"s_add_u32 s{sCH}, s{sCH}, {12*2048}")
    a(f"v_bfe_u32 v{vT}, v0, 4, 1")
    a(f"v_lshlrev_b32 v{vT+1}, 2, v{vT}")
    a(f"v_xor_b32 v{vC}, v{vC}, v{vT+1}")
    a(f"v_lshlrev_b32 v{vC}, 5, v{vC}")
    a(f"v_lshl_add_u32 v{vC}, v{vT}, 9, v{vC}")
    a(f"v_lshl_add_u32 v{vC}, v{vT+2}, 8, v{vC}")
    a(f"s_add_u32 s11, s{sMB}, {CP_L}")
    a(f"v_add_u32 v{vC}, s11, v{vC}")
    a(f"s_lshl_b32 s11, s{S_W4}, 5")
    a(f"s_add_u32 s11, s11, {C_L + 512}")
    a(f"v_lshl_add_u32 v{vA}, v{vA}, 2, s11")
    ts.x(1, 8)
    LR, LI, CR, CI, L16R, L16I, PWR, PWI, L64R, L64I, LWR, LWI, W0R = [KP + k for k in range(13)]
    vTW, vTR, vCB, vStS, vAg, vPr, vF = [KP + k for k in range(16, 23)]
    a(f"s_lshl_b32 s21, s{S_NS}, 7")
    a(f"s_mul_i32 s22, s{S_MT}, 3584")
    a("s_add_u32 s22, s22, s21")
    a(f"s_add_u32 s22, s22, {WS_AGG - AGG_L:#x}")
    a(f"s_mov_b32 s23, {WS_AGG:#x}")
    a(f"s_mov_b32 s20, {WS_AGG + 4*3584:#x}")
    a(f"s_lshl_b32 s18, s{S_M64}, 10")
    a(f"s_and_b32 s11, s{S_W4}, 1")
    a("s_lshl_b32 s11, s11, 7")
    a("s_add_u32 s18, s18, s11")
    a(f"s_add_u32 s18, s18, {WS_FLAG + 512:#x}")
    a(f"s_lshl_b32 s11, s{S_MT}, 2")
    a(f"s_add_u32 s11, s11, s{S_W4}")
    a(f"s_mul_i32 s19, s11, {2*RT_BYTES}")
    a(f"s_lshl_b32 s11, s{S_NS}, 10")
    a("s_add_u32 s19, s19, s11")
    a(f"s_add_u32 s19, s19, {56*1024}")
    for g in range(7):
        a(f"s_add_u32 s12, s{sRF}, {g}")
        a("s_cmp_ge_u32 s12, 7")
        a("s_cselect_b32 s13, 7, 0")
        a("s_sub_u32 s12, s12, s13")
        a(f"s_mul_i32 s{sGrp[g]}, s12, {64*896}")
    a(f"s_add_u32 s11, s{sMX}, {R[2]}")
    a(f"v_add_u32 v{vT+4}, s11, v{vP}")
    kparts = {}
    if cfg.s0a < 13:
        run_tokens([f"s0:{cfg.s0a}-13"])
        ts(1)
        ts.x(1, 6)
        run_tokens(win.get(-1, []))
    a(f"s_setprio {cfg.wprio}")
    for s in range(7):
        vm.wait(('st', s))
        ts.x(2, 1 + s)
        a("s_barrier")
        ts.x(3, 1 + s)
        if s == 0: ts(2)
        if s == 0:
            for k in range(6): a(f"ds_read_b128 v[{KP+4*k}:{KP+4*k+3}], v{vT+4} offset:{1024*k}")
        if s == 6:
            QQ = 28
            for p in range(8): a(f"ds_read_b32 v{QQ+p}, v{vT+1} offset:{512*p}")
            a("s_waitcnt lgkmcnt(0)")
            for p in range(4): a(f"v_add_f32 v{QQ+p}, v{QQ+p}, v{QQ+4+p}")
            a(f"v_add_f32 v{QQ}, v{QQ}, v{QQ+2}")
            a(f"v_add_f32 v{QQ+1}, v{QQ+1}, v{QQ+3}")
            a(f"v_add_f32 v{QQ}, v{QQ}, v{QQ+1}")
            a(f"ds_write_b32 v{vT}, v{QQ}")
            npre = win[6].index("put") + 1 if "put" in win[6] else 2
            pre = tok_ops(win[6][:npre])
            for o in pre: o()
            a("s_waitcnt lgkmcnt(0)")
            a("s_barrier")
            a("s_setprio 0")
            run_tokens(win[6][npre:])
            continue
        segs = [[None, []]]
        for t in win.get(s, []):
            if t.startswith("cs"): segs.append([int(t[2:]), []])
            else: segs[-1][1].append(t)
        for cs, toks in segs:
            fl = []
            if cs is not None:
                vm.wait(('st', cs))
                colsum_reads(cs)
                fl = colsum_ops()
            if cs == 6:
                b = ACC
                for k in range(8): fl.append(f"v_permlane32_swap_b32 v{CA+k}, v{CA+8+k}")
                fl.append(f"v_add_f32_dpp v{b}, v{b}, v{b} quad_perm:[1,0,3,2] row_mask:0xf bank_mask:0xf")
                for k in range(8): fl.append(f"v_add_f32 v{CA+k}, v{CA+k}, v{CA+8+k}")
                fl.append(f"v_add_f32_dpp v{b}, v{b}, v{b} quad_perm:[2,3,0,1] row_mask:0xf bank_mask:0xf")
                for k in range(8): fl.append(f"v_add_f32_dpp v{CA+k}, v{CA+k}, v{CA+k} row_ror:8 row_mask:0xf bank_mask:0xf")
                fl.append(f"v_add_f32_dpp v{b}, v{b}, v{b} row_half_mirror row_mask:0xf bank_mask:0xf")
                fl.append(f"ds_write_b128 v{vC}, v[{CA}:{CA+3}]")
                fl.append(f"ds_write_b128 v{vC}, v[{CA+4}:{CA+7}] offset:16")
                fl.append(f"ds_write_b32 v{vA}, v{b}")
            ops = tok_ops(toks)
            per = max(1, -(-len(fl) // max(1, len(ops))))
            interleave(a, ops, fl, per)
        if s == 5:
            a(f"s_and_b32 s12, s{S_W4}, 1")
            a("s_lshl_b32 s12, s12, 8")
            a(f"v_lshl_add_u32 v{vT}, v0, 2, s12")
            a(f"v_add_u32 v{vT+1}, {CP_L}, v{vT}")
            a(f"v_add_u32 v{vT}, {C_L}, v{vT}")
            a("s_waitcnt lgkmcnt(0)")
            a("s_setprio 3")
    ts.x(2, 8)
    a("s_barrier")
    ts(3)
    ts.x(3, 8)
    a(f"v_add_u32 v{vT+2}, {SD}, v{vPQ}")
    vm.wait(('w', 11), "lgkmcnt(0)")
    a("s_barrier")
    X, Y, ST = 32, 48, CF
    HR, HI, T1, T2, CBR, CBI, G0, G1, QR, QI = 20, 21, 22, 23, 24, 25, 26, 28, 30, 31
    for k in range(8): a(f"ds_read_b128 v[{X+4*k}:{X+4*k+3}], v{vT+2} offset:{1024*k}")
    a(f"ds_read_b32 v{CBR}, v{vCB}")
    a(f"ds_read_b32 v{CBI}, v{vCB} offset:64")
    for k in range(8): a(f"ds_read_b128 v[{ST+4*k}:{ST+4*k+3}], v{vStS} offset:{16*k}")
    a(f"s_setprio {cfg.eprio}")
    a(f"v_lshrrev_b32 v1, 4, v0")
    a(f"v_sub_u32 v1, s{S_MT}, v1")
    a(f"v_cmp_le_i32 s[56:57], 1, v1")
    a(f"v_cmp_le_i32 s[58:59], 5, v1")
    a(f"v_lshlrev_b32 v5, 16, v{KP+23}")
    a(f"v_mov_b32 v3, v{vF}")
    vF = 3
    a("s_waitcnt lgkmcnt(10)")
    for r in range(16): a(f"v_permlane16_swap_b32 v{X+r}, v{Y+r}")
    a("s_waitcnt lgkmcnt(0)")
    side = {}
    for r in range(16):
        if r in side: side[r]()
        m, rs = ST + 2 * r, ST + 2 * r + 1
        a(f"v_fma_f32 v{X+r}, -v{m}, v{CBR}, v{X+r}")
        a(f"v_fma_f32 v{Y+r}, -v{m}, v{CBI}, v{Y+r}")
        a(f"v_mul_f32 v{X+r}, v{X+r}, v{rs}")
        a(f"v_mul_f32 v{Y+r}, v{Y+r}, v{rs}")
        if r >= 1:
            pr, pi = (X, Y) if r == 1 else (HR, HI)
            a(f"v_fma_f32 v{T1}, -v{LI}, v{pi}, v{X+r}")
            a(f"v_fma_f32 v{T2}, v{LI}, v{pr}, v{Y+r}")
            a(f"v_fma_f32 v{HR}, v{LR}, v{pr}, v{T1}")
            a(f"v_fma_f32 v{HI}, v{LR}, v{pi}, v{T2}")
    z = CF
    a(f"v_mov_b32 v{z}, v{HR}"); a(f"v_mov_b32 v{z+1}, v{HI}")
    csq(a, z + 8, z + 9, L16R, L16I, z + 10)
    a(f"v_permlane32_swap_b32 v{HR}, v{z}")
    a(f"v_permlane32_swap_b32 v{HI}, v{z+1}")
    a(f"v_fma_f32 v{z}, -v{L16I}, v{HI}, v{z}")
    a(f"v_fma_f32 v{z+1}, v{L16I}, v{HR}, v{z+1}")
    a(f"v_fmac_f32 v{z}, v{L16R}, v{HR}")
    a(f"v_fmac_f32 v{z+1}, v{L16R}, v{HI}")
    a(f"v_mov_b32 v{z+2}, v{z}"); a(f"v_mov_b32 v{z+3}, v{z+1}")
    a(f"s_lshl_b32 s11, s{S_W4}, 7")
    a(f"v_add_u32 v{z+5}, s11, v{vAg}")
    a(f"v_permlane16_swap_b32 v{z}, v{z+2}")
    a(f"v_permlane16_swap_b32 v{z+1}, v{z+3}")
    a(f"v_fma_f32 v{z+2}, -v{z+9}, v{z+1}, v{z+2}")
    a(f"v_fma_f32 v{z+3}, v{z+9}, v{z}, v{z+3}")
    a(f"v_fmac_f32 v{z+2}, v{z+8}, v{z}")
    a(f"v_fmac_f32 v{z+3}, v{z+8}, v{z+1}")
    a(f"ds_write_b64 v{z+5}, v[{z+2}:{z+3}]")
    a("s_waitcnt lgkmcnt(0)")
    ts.x(2, 9)
    a(f"s_setprio {cfg.lprio}")
    a("s_barrier")
    ts(4)
    E = CF + 16
    for i in range(4): a(f"ds_read_b64 v[{E+2+2*i}:{E+3+2*i}], v{vAg} offset:{128*i}")
    a(f"v_mov_b32 v{E}, 0")
    a(f"v_mov_b32 v{E+1}, 0")
    a(f"v_and_b32 v{z+4}, 16, v0")
    a(f"v_cmp_ne_u32 s[12:13], 0, v{z+4}")
    for i in range(1, 4):
        e, p = E + 2 + 2 * i, E + 2 * i
        a(f"s_waitcnt lgkmcnt({3 - i})")
        a(f"v_fma_f32 v{e}, -v{L64I}, v{p+1}, v{e}")
        a(f"v_fma_f32 v{e+1}, v{L64I}, v{p}, v{e+1}")
        a(f"v_fmac_f32 v{e}, v{L64R}, v{p}")
        a(f"v_fmac_f32 v{e+1}, v{L64R}, v{p+1}")
    a(f"s_cmp_lg_u32 s{S_W4}, 0")
    a("s_cbranch_scc1 L_l_nopub")
    e = E + 8
    a(f"v_cmp_eq_u32 vcc, -1, v{e}")
    a(f"v_mov_b32 v{T1}, 0x7fc00000")
    a(f"v_cndmask_b32 v{e}, v{e}, v{T1}, vcc")
    a("s_mov_b64 exec, 0xffff")
    a(f"buffer_store_dwordx2 v[{e}:{e+1}], v{vAg}, s[{SRD_WS}:{SRD_WS+3}], s22 offen sc1")
    a("s_mov_b64 exec, -1")
    ts(5)
    a.label("L_l_nopub")
    a(f"v_cmp_lt_u32 vcc, 31, v0")
    a(f"v_cndmask_b32 v{z}, 0, v{z}, s[12:13]")
    a(f"v_cndmask_b32 v{z+1}, 0, v{z+1}, s[12:13]")
    a(f"v_fma_f32 v{HR}, -v{L16I}, v{z+1}, v{HR}")
    a(f"v_fma_f32 v{HI}, v{L16I}, v{z}, v{HI}")
    a(f"v_fmac_f32 v{HR}, v{L16R}, v{z}")
    a(f"v_fmac_f32 v{HI}, v{L16R}, v{z+1}")
    a(f"v_cndmask_b32 v{z}, v{z}, v{HR}, vcc")
    a(f"v_cndmask_b32 v{z+1}, v{z+1}, v{HI}, vcc")
    cmul(a, HR, HI, z, z + 1, CR, CI)
    a(f"s_bitcmp1_b32 s{S_W4}, 0")
    a("s_cselect_b64 vcc, -1, 0")
    a(f"v_cndmask_b32 v{QR}, v{E}, v{E+2}, vcc")
    a(f"v_cndmask_b32 v{QI}, v{E+1}, v{E+3}, vcc")
    a(f"v_cndmask_b32 v{T1}, v{E+4}, v{E+6}, vcc")
    a(f"v_cndmask_b32 v{T2}, v{E+5}, v{E+7}, vcc")
    a(f"s_bitcmp1_b32 s{S_W4}, 1")
    a("s_cselect_b64 vcc, -1, 0")
    a(f"v_cndmask_b32 v{QR}, v{QR}, v{T1}, vcc")
    a(f"v_cndmask_b32 v{QI}, v{QI}, v{T2}, vcc")
    ts.x(2, 10)
    thr[0] = cfg.thr
    lds = [f"buffer_load_dwordx2 v[{G0}:{G0+1}], v{vPr}, s[{SRD_WS}:{SRD_WS+3}], s23 offen sc1",
           f"buffer_load_dwordx2 v[{G1}:{G1+1}], v{vPr}, s[{SRD_WS}:{SRD_WS+3}], s20 offen sc1"]
    up = Rec()
    for r in range(16):
        up(f"v_mul_f32 v{T1}, v{CI}, v{Y+r}")
        up(f"v_mul_f32 v{T2}, v{CI}, v{X+r}")
        up(f"v_fma_f32 v{X+r}, v{CR}, v{X+r}, -v{T1}")
        up(f"v_fma_f32 v{Y+r}, v{CR}, v{Y+r}, v{T2}")
    vRd, vOne = 4, 2
    a(f"s_lshl_b32 s11, s{S_W4}, 2")
    a(f"s_add_u32 s11, s11, {CNT_L + 16}")
    a(f"v_mov_b32 v{vRd}, s11")
    a(f"v_mov_b32 v{vOne}, 1")
    thr[0] = None
    co = w_ops(range(22, 28)) + (c_ops(0) if cfg.c0early else [])
    interleave(a, co[:cfg.c1], up.L, 4)
    if cfg.agpos == 0:
        for t in lds: vm.issue('ag', t)
    w_write([12, 13, 14, 15])
    a(f"ds_write_b32 v{vRd}, v{vOne}")
    XV, STT, DS = 64, 80, 5
    TT = SACC + 32
    vHW = 1
    a(f"v_add_u32 v{vHW}, {HTS}, v{vPQ}")
    a(f"ds_write_b128 v{vHW}, v[{XRAW}:{XRAW+3}]")
    a(f"ds_write_b128 v{vHW}, v[{XRAW+4}:{XRAW+7}] offset:1024")
    a(f"v_lshrrev_b32 v{vT+3}, 5, v0")
    a(f"v_lshlrev_b32 v{vT+2}, 10, v{vT+3}")
    a(f"v_and_b32 v{vT}, 31, v0")
    a(f"v_lshl_add_u32 v{vT+2}, v{vT}, 1, v{vT+2}")
    a(f"s_add_u32 s11, s{sMP}, {HTS}")
    a(f"v_add_u32 v{vT+2}, s11, v{vT+2}")
    for r in range(16): a(f"ds_read_u16 v{XV+r}, v{vT+2} offset:{64*r}")
    if cfg.agpos == 1:
        for t in lds: vm.issue('ag', t)
    w_write([16, 17])
    def wrest():
        w_write([18, 19])
        w_write([20, 21])
        a(f"v_mov_b32 v{T1}, 2")
        a(f"ds_write_b32 v{vRd}, v{T1}")
    if not cfg.wl: wrest()
    co = co[cfg.c1:]
    ts(8)
    vm.wait('ag')
    def cond():
        a(f"v_cmp_eq_u32 vcc, -1, v{G0}")
        a("s_and_b64 s[48:49], vcc, s[56:57]")
        a(f"v_cmp_eq_u32 vcc, -1, v{G1}")
        a("s_and_b64 s[50:51], vcc, s[58:59]")
        a("s_or_b64 s[48:49], s[48:49], s[50:51]")
        a("s_cmp_eq_u64 s[48:49], 0")
    spin_check(a, "L_agg", lds, cond, 2)
    ts(6)
    SR, SI = CBR, CBI
    cmul(a, SR, SI, G0, G0 + 1, W0R, W0R + 1)
    cmul(a, T1, T2, G1, G1 + 1, W0R + 2, W0R + 3)
    a(f"v_cndmask_b32 v{SR}, 0, v{SR}, s[56:57]")
    a(f"v_cndmask_b32 v{SI}, 0, v{SI}, s[56:57]")
    a(f"v_cndmask_b32 v{T1}, 0, v{T1}, s[58:59]")
    a(f"v_cndmask_b32 v{T2}, 0, v{T2}, s[58:59]")
    a(f"v_add_f32 v{SR}, v{SR}, v{T1}")
    a(f"v_add_f32 v{SI}, v{SI}, v{T2}")
    for sw in ("v_permlane32_swap_b32", "v_permlane16_swap_b32"):
        a(f"v_mov_b32 v{T1}, v{SR}")
        a(f"v_mov_b32 v{T2}, v{SI}")
        a(f"{sw} v{SR}, v{T1}")
        a(f"{sw} v{SI}, v{T2}")
        a(f"v_add_f32 v{SR}, v{SR}, v{T1}")
        a(f"v_add_f32 v{SI}, v{SI}, v{T2}")
    a(f"v_fmac_f32 v{QR}, v{LWR}, v{SR}")
    a(f"v_fmac_f32 v{QI}, v{LWR}, v{SI}")
    a(f"v_fma_f32 v{QR}, -v{LWI}, v{SI}, v{QR}")
    a(f"v_fmac_f32 v{QI}, v{LWI}, v{SR}")
    a(f"v_fmac_f32 v{HR}, v{PWR}, v{QR}")
    a(f"v_fmac_f32 v{HI}, v{PWR}, v{QI}")
    a(f"v_fma_f32 v{HR}, -v{PWI}, v{QI}, v{HR}")
    a(f"v_fmac_f32 v{HI}, v{PWI}, v{QR}")
    pr, pi = HR, HI
    PK, HF = 96, 80
    rest = co[:cfg.c2]
    for r in range(16):
        if rest: rest.pop(0)()
        a(f"v_fma_f32 v{X+r}, -v{LI}, v{pi}, v{X+r}")
        a(f"v_fma_f32 v{Y+r}, v{LI}, v{pr}, v{Y+r}")
        a(f"v_fmac_f32 v{X+r}, v{LR}, v{pr}")
        a(f"v_fmac_f32 v{Y+r}, v{LR}, v{pi}")
        pr, pi = X + r, Y + r
    for k in range(8):
        a(f"v_cvt_pk_bf16_f32 v{PK+k}, v{X+2*k}, v{X+2*k+1}")
    a(f"ds_write_b128 v{vTW}, v[{PK}:{PK+3}]")
    a(f"ds_write_b128 v{vTW}, v[{PK+4}:{PK+7}] offset:16")
    for k in range(8):
        a(f"v_cvt_pk_bf16_f32 v{PK+8+k}, -v{Y+2*k}, -v{Y+2*k+1}")
    a(f"ds_write_b128 v{vTW}, v[{PK+8}:{PK+11}] offset:2048")
    a(f"ds_write_b128 v{vTW}, v[{PK+12}:{PK+15}] offset:2064")
    for q in range(2):
        for part in range(2):
            for j in range(2):
                d = HF + 8 * q + 4 * part + 2 * j
                a(f"ds_read_b64_tr_b16 v[{d}:{d+1}], v{vTR} offset:{(part*16 + 4*j)*128 + 64*(q ^ j)}")
    assert not rest
    a("s_waitcnt lgkmcnt(0)")
    for q in range(2):
        for part in range(2):
            d = HF + 8 * q + 4 * part
            a(f"s_add_u32 s11, s19, {q*RT_BYTES + part*HALF_BYTES}")
            vm.issue('hs', f"buffer_store_dwordx4 v[{d}:{d+3}], v{vP}, s[{SRD_WS}:{SRD_WS+3}], s11 offen{SP}")
    if cfg.wl: wrest()
    def flag2():
        vm.wait('hs')
        a("s_mov_b64 exec, 1")
        vm.issue('f', f"buffer_store_dword v{vOne}, v{vF}, s[{SRD_WS}:{SRD_WS+3}], 0 offen sc1")
        a("s_mov_b64 exec, -1")
        ts(7)
    if cfg.f2b == 0: flag2()
    for o in co[cfg.c2:] + (c_ops(2) if not cfg.clate else []): o()
    if cfg.f2b == 1: flag2()
    a(f"s_and_b32 s11, s{S_W4}, 1")
    a("s_lshl_b32 s11, s11, 8")
    a(f"s_add_u32 s11, s11, {ST2_L}")
    a(f"v_lshl_add_u32 v{vT+3}, v{vT+3}, 7, s11")
    STT = 32
    for k in range(8): a(f"ds_read_b128 v[{STT+4*k}:{STT+4*k+3}], v{vT+3} offset:{16*k}")
    for r in range(16): a(f"v_lshlrev_b32 v{XV+r}, 16, v{XV+r}")
    a("s_waitcnt lgkmcnt(0)")
    a("s_setprio 0")
    def rnd_pair(r0, r1):
        a(f"v_cvt_pk_bf16_f32 v{r1}, v{r0}, v{r1}"); a(f"v_lshlrev_b32 v{r0}, 16, v{r1}"); a(f"v_and_b32 v{r1}, s71, v{r1}")
    for r in range(16): a(f"v_sub_f32 v{TT+r}, v{XV+r}, v{STT+2*r}")
    for k in range(8): rnd_pair(TT + 2 * k, TT + 2 * k + 1)
    a(f"v_mov_b32 v{T2}, 3")
    vm.wait(('w', 27))
    a(f"ds_write_b32 v{vRd}, v{T2}")
    for r in range(16): a(f"v_mul_f32 v{TT+r}, v{TT+r}, v{STT+2*r+1}")
    for k in range(8): rnd_pair(TT + 2 * k, TT + 2 * k + 1)
    for r in range(16): a(f"v_mul_f32 v{TT+r}, v{TT+r}, v{DS}")
    for k in range(8): rnd_pair(TT + 2 * k, TT + 2 * k + 1)
    def poll(name, off):
        sspin(a, name, [f"s_load_dwordx16 s[20:35], s[{P_WS}:{P_WS+1}], s18 glc"], pcond, cfg.psleep)
    if True:
        def pcond():
            for k in range(0, 12, 4): a(f"s_and_b64 s[{20+k}:{21+k}], s[{20+k}:{21+k}], s[{22+k}:{23+k}]")
            a("s_and_b64 s[20:21], s[20:21], s[24:25]")
            a("s_and_b64 s[28:29], s[28:29], s[32:33]")
            a("s_and_b64 s[20:21], s[20:21], s[28:29]")
            a("s_and_b32 s20, s20, s21")
            a("s_cmp_eq_u32 s20, 1")
    a(f"s_mul_i32 s57, s40, {RT_BYTES}")
    a("s_xor_b32 s11, s40, 1")
    a(f"s_mul_i32 s56, s11, {RT_BYTES}")
    a(f"s_lshr_b32 s11, s{S_W4}, 1")
    a(f"s_mul_i32 s11, s11, {HALF_BYTES}")
    a(f"s_add_u32 s11, s11, {56*1024}")
    a("s_add_u32 s56, s56, s11")
    a("s_add_u32 s57, s57, s11")
    a(f"s_and_b32 s12, s{S_W4}, 1")
    a("s_lshl_b32 s13, s12, 14")
    for b in range(3):
        if cfg.crot:
            a(f"s_sub_u32 s11, s{sCB[b]}, s{sCF}")
            a("s_lshr_b32 s11, s11, 1")
            a(f"s_add_u32 s{52+b}, s13, s11")
        else: a(f"s_add_u32 s{52+b}, s13, {b*4096}")
    a("s_lshl_b32 s12, s12, 11")
    a(f"s_add_u32 s55, s12, {12*1024}")
    srd(a, 60, P_OUT, 2048 * 1792)
    vW1, vW2, vCn, vCv = 1, 2, 9, 4
    vR = [3, 12, 13, 14]
    a(f"v_add_u32 v{vW1}, {PH1}, v{vPQ}")
    a(f"v_add_u32 v{vW2}, {PH2}, v{vPQ}")
    a(f"v_mov_b32 v{vCn}, {CNT_L}")
    for (reg, xr, base) in ((vR[0], 1, PH1), (vR[1], 3, PH1 + 4096), (vR[2], 2, PH2)):
        a(f"s_xor_b32 s11, s{S_W4}, {xr}")
        a(f"s_mul_i32 s11, s11, {Q}")
        a(f"s_add_u32 s11, s11, {base}")
        a(f"v_add_u32 v{reg}, s11, v{vP}")
    a(f"v_add_u32 v{vR[3]}, {GA}, v{vPQ}")
    ts.x(2, 11)
    ts.x(7, 11)
    AR = list(range(16, 64, 4))
    NA = len(AR)
    PO = [4, 5, 6, 7, 12, 13, 0, 1, 2, 3, 8, 9, 10, 11]
    def aload(n):
        lr, p = n // 14, PO[n % 14]
        if p % 4 == 0: a(f"s_add_u32 s58, s{56+lr}, s{52 + p//4}")
        d = AR[n % NA]
        vm.issue(('a', n), f"buffer_load_dwordx4 v[{d}:{d+3}], v{vP}, s[{SRD_WS}:{SRD_WS+3}], s58 offen offset:{(p%4)*1024}{AP}")
    def cnt_wait(name, off):
        a("s_mov_b32 s73, 0")
        a.label(name)
        a("s_waitcnt lgkmcnt(0)")
        a(f"v_readfirstlane_b32 s11, v{vCv}")
        a("s_cmp_ge_u32 s11, 4")
        a(f"s_cbranch_scc1 {name}ok")
        a("s_add_u32 s73, s73, 1")
        a(f"s_cmp_ge_u32 s73, {SPIN_MAX}")
        a(f"s_cbranch_scc1 {name}ok")
        a("s_sleep 1")
        a(f"ds_read_b32 v{vCv}, v{vCn} offset:{off}")
        a(f"s_branch {name}")
        a.label(name + "ok")
        a("s_nop 7")
    assert cfg.clate == 2 and cdone == {1, 3}
    if cfg.gate == 0: poll("L_ps", 128)
    if cfg.gate < 2:
        a(f"ds_read_b32 v{vCv}, v{vCn} offset:4")
        cnt_wait("L_l_c0", 4)
    if cfg.sprio: a(f"s_setprio {cfg.sprio}")
    cc = c_ops(0) + c_ops(2)
    for o in cc[:cfg.c0n]: o()
    if cfg.gate != 0: poll("L_ps", 128)
    ts(9)
    ts.x(7, 1)
    for n in range(6): aload(n)
    for o in cc[cfg.c0n:8]: o()
    for n in range(6, 10): aload(n)
    for o in cc[max(8, cfg.c0n):]: o()
    for n in range(10, NA): aload(n)
    a("s_setprio 0")
    ts.x(7, 2)
    for n in range(28):
        lr, p = n // 14, PO[n % 14]
        vm.wait(('a', n))
        assert ('c', min(p // 4, 3)) not in vm.q
        if n in (0, 7, 14, 21): ts.x(7, 3 + n // 7)
        d = AR[n % NA]
        for lc in (1, 0):
            acc = SACC + 32 * lr + 16 * lc
            c = "0" if (n % 14 == 0 and not (lr == 1 and lc == 0)) else f"v[{acc}:{acc+15}]"
            f = cfrag(p, lc)
            a(f"v_mfma_f32_32x32x16_bf16 v[{acc}:{acc+15}], v[{d}:{d+3}], v[{f}:{f+3}], {c}")
        if n + NA < 28: aload(n + NA)
        if cfg.gate == 2 and n == 14: a(f"ds_read_b32 v{vCv}, v{vCn} offset:4")
        if cfg.gate == 2 and n == 15: cnt_wait("L_l_c0", 4)
        if 16 <= n < 24:
            k = n - 16
            a(f"ds_write_b128 v{vW1}, v[{SACC+4*k}:{SACC+4*k+3}] offset:{1024*k}")
    ts(10)
    ts.x(7, 7)
    ts.x(7, 8)
    for k in range(4):
        a(f"ds_write_b128 v{vW2}, v[{SACC+48+4*k}:{SACC+48+4*k+3}] offset:{1024*k}")
    a("s_waitcnt lgkmcnt(0)")
    ts.x(7, 9)
    a("s_barrier")
    ts(11)
    ts.x(7, 10)
    RX = CF
    for k in range(4):
        for w in range(4):
            a(f"ds_read_b128 v[{RX+16*w+4*k}:{RX+16*w+4*k+3}], v{vR[w]} offset:{1024*k}")
    for k in range(4):
        a(f"s_waitcnt lgkmcnt({12 - 4*k})")
        for r in range(4 * k, 4 * k + 4):
            a(f"v_add_f32 v{TT+r}, v{TT+r}, v{RX+r}")
            a(f"v_add_f32 v{RX+16+r}, v{RX+16+r}, v{RX+32+r}")
        for r in range(4 * k, 4 * k + 4):
            a(f"v_add_f32 v{TT+r}, v{TT+r}, v{RX+16+r}")
        for r in range(4 * k, 4 * k + 4):
            a(f"v_fma_f32 v{XV+r}, v{TT+r}, v{RX+48+r}, v{XV+r}")
            if r % 2 == 0: a(f"s_mov_b32 s11, {r*1792}")
            a(f"buffer_store_dword v{XV+r}, v{vO}, s[60:63], s11 offen offset:{(r%2)*1792}{OP}")
    if cfg.ts:
        a("s_waitcnt vmcnt(0)")
        ts(12)
    if cfg.padto:
        a.label("L_pad")
        a("s_memrealtime s[98:99]")
        a("s_waitcnt lgkmcnt(0)")
        a("s_sub_u32 s98, s98, s100")
        a(f"s_cmp_lt_u32 s98, {cfg.padto}")
        a("s_cbranch_scc1 L_pad")
    ts.dump(16, 17, 1)
    a("s_endpgm")

def gen_consumer(a, cfg, ts):
    if cfg.al >= 2: a.raw(".p2align 12")
    a.label("L_consumer")
    SP = ["", " sc1"][cfg.spol]
    AP = ['', ' sc1', ' sc1 nt', ' sc0 sc1', ' sc0', ' nt'][cfg.apol]
    vm = VM(a)
    XA = [1, 2, 3, 4]; BA = [5, 6, 7, 8]; WA = [9, 10]
    vL16, vStF, vCL, vF, vFl, vSo, vCn, vRd, vWB, vPQ, vOne, MM = 11, 12, 13, 14, 15, 16, 17, 18, 19, 20, 21, 22
    FS = [40, 68]
    ACC = 96
    def G(ft, q): return ACC + 16 * (2 * ft + q)
    def U(ft, q): return ACC + 64 + 16 * (2 * ft + q)
    def S(q): return ACC + 128 + 16 * q
    vI, vH, t0, t1, t2 = 24, 25, 26, 27, 28
    a(f"v_and_b32 v{vI}, 31, v0")
    a(f"v_lshrrev_b32 v{vH}, 5, v0")
    a(f"v_bfe_u32 v{t0}, v0, 1, 3")
    a(f"v_xor_b32 v{t0}, v{t0}, v{vH}")
    a(f"v_lshlrev_b32 v{t0}, 4, v{t0}")
    a(f"v_lshl_add_u32 v{t0}, v{vI}, 7, v{t0}")
    a(f"s_lshl_b32 s11, s{S_W4}, 13")
    for ks in range(4):
        a(f"v_xor_b32 v{t1}, {32*ks}, v{t0}")
        a(f"v_add_u32 v{XA[ks]}, s11, v{t1}")
        a(f"v_add_u32 v{BA[ks]}, {OFF_BB}, v{t1}")
    a(f"v_bfe_u32 v{t0}, v0, 2, 2")
    a(f"v_lshlrev_b32 v{t1}, 7, v{t0}")
    a(f"v_lshrrev_b32 v{t0}, 1, v{t0}")
    a(f"v_lshl_add_u32 v{t1}, v{t0}, 6, v{t1}")
    a(f"v_bfe_u32 v{t0}, v0, 4, 1")
    a(f"v_lshl_add_u32 v{t1}, v{t0}, 5, v{t1}")
    a(f"v_and_b32 v{t2}, 3, v0")
    a(f"v_lshl_add_u32 v{t1}, v{t2}, 3, v{t1}")
    a(f"v_lshl_add_u32 v{WA[0]}, v{vH}, 10, v{t1}")
    a(f"v_add_u32 v{WA[0]}, {OFF_WG}, v{WA[0]}")
    a(f"v_xor_b32 v{WA[1]}, 64, v{WA[0]}")
    a(f"s_mul_i32 s62, s{S_W4}, {Q}")
    a(f"s_lshr_b32 s59, s{S_W4}, 1")
    a(f"s_and_b32 s63, s{S_W4}, 1")
    a("s_lshl_b32 s11, s59, 6")
    a(f"v_lshl_add_u32 v{vWB}, v{vH}, 9, v{t1}")
    a(f"v_xor_b32 v{vWB}, s11, v{vWB}")
    a(f"v_add_u32 v{vWB}, s62, v{vWB}")
    a("s_waitcnt lgkmcnt(0)")
    a(f"s_lshl_b32 s11, s{S_NS}, 5")
    a(f"s_load_dwordx8 s[32:39], s[{P_LRE}:{P_LRE+1}], s11")
    a(f"s_load_dwordx8 s[64:71], s[{P_LDT}:{P_LDT+1}], s11")
    a(f"s_load_dwordx8 s[24:31], s[{P_LIM}:{P_LIM+1}], s11")
    for k in range(4 if cfg.zpeel else 160): a(f"v_mov_b32 v{ACC+k}, 0")
    a(f"v_mov_b32 v{vCn}, {CNT_L}")
    a(f"ds_write_b128 v{vCn}, v[{ACC}:{ACC+3}]")
    a(f"ds_write_b128 v{vCn}, v[{ACC}:{ACC+3}] offset:16")
    a(f"v_bfe_u32 v{t0}, v0, 2, 1")
    a(f"v_lshl_add_u32 v{t0}, v{t0}, 4, v{t2}")
    a(f"v_bfe_u32 v{t1}, v0, 3, 2")
    a(f"v_lshl_add_u32 v{t0}, v{t1}, 2, v{t0}")
    a(f"s_lshl_b32 s11, s{S_W4}, 9")
    a(f"s_add_u32 s11, s11, {STATS_L}")
    a(f"v_lshl_add_u32 v{vStF}, v{t0}, 3, s11")
    a(f"v_lshlrev_b32 v{vL16}, 4, v0")
    a(f"v_add_u32 v{vPQ}, s62, v{vL16}")
    a(f"v_lshlrev_b32 v{vCL}, 4, v{vH}")
    a(f"v_add_u32 v{vCL}, {C_L}, v{vCL}")
    a(f"v_mov_b32 v{vOne}, 1")
    a(f"s_lshl_b32 s11, s{S_W4}, 2")
    a(f"s_add_u32 s11, s11, {CNT_L + 16}")
    a(f"v_mov_b32 v{vRd}, s11")
    a("s_lshl_b32 s11, s63, 8")
    a(f"s_add_u32 s11, s11, {ST2_L}")
    a(f"v_lshl_add_u32 v{vSo}, v{vH}, 7, s11")
    a(f"s_lshl_b32 s13, s{S_MT}, 2")
    a(f"s_add_u32 s13, s13, s{S_W4}")
    a(f"s_mul_i32 s56, s13, {2*RT_BYTES}")
    a(f"s_cmp_ge_u32 s{S_NS}, 14")
    a(f"s_cselect_b32 s11, {HALF_BYTES - 56*1024}, 0")
    a(f"s_lshl_b32 s12, s{S_NS}, 12")
    a("s_add_u32 s11, s11, s12")
    a("s_add_u32 s56, s56, s11")
    a(f"s_add_u32 s57, s56, {RT_BYTES}")
    a("s_lshl_b32 s11, s13, 10")
    flag_index(a, 12, 14, 7)
    a("s_add_u32 s11, s11, s12")
    a(f"s_add_u32 s11, s11, {WS_FLAG:#x}")
    a(f"v_mov_b32 v{vF}, s11")
    a(f"s_lshl_b32 s55, s{S_M64}, 10")
    a(f"s_add_u32 s55, s55, {WS_FLAG:#x}")
    a(f"s_lshl_b32 s11, s{S_W4}, 7")
    a("s_add_u32 s55, s55, s11")
    a(f"s_mul_i32 s12, s59, {HALF_BYTES}")
    a(f"s_mul_i32 s13, s63, {28*1024}")
    a("s_add_u32 s12, s12, s13")
    a(f"s_lshl_b32 s11, s{S_M64}, 1")
    a("s_add_u32 s11, s11, s63")
    a(f"s_mul_i32 s52, s11, {RT_BYTES}")
    a("s_add_u32 s52, s52, s12")
    a("s_xor_b32 s11, s11, 1")
    a(f"s_mul_i32 s51, s11, {RT_BYTES}")
    a("s_add_u32 s51, s51, s12")
    p2_rot(a, cfg, 60, 61, 58)
    a("s_mov_b32 s12, 0x00030003")
    a("s_mov_b32 s13, 0x00030003")
    a("s_waitcnt lgkmcnt(0)")
    K, KP = 40, 64
    for k in range(8):
        a(f"s_lshl_b64 exec, s[12:13], {2*k}")
        for m, sb in enumerate((32, 24, 64)): a(f"v_mov_b32 v{K+m}, s{sb+k}")
    a("s_mov_b64 exec, -1")
    a(f"v_and_b32 v{K+3}, 1, v0")
    a(f"v_lshlrev_b32 v{K+3}, 4, v{K+3}")
    for m in range(3): a(f"v_lshrrev_b32 v{K+m}, v{K+3}, v{K+m}")
    srd(a, SRD_WS, P_WS, WS_SIZE)
    ssm_park(a, K, KP, 62)
    a(f"v_mov_b32 v{KP+23}, 0")
    a(f"s_lshl_b32 s11, s{S_W4}, 13")
    a(f"s_add_u32 s11, s11, {R[2]}")
    a(f"v_add_u32 v{K}, s11, v{vL16}")
    for k in range(6): a(f"ds_write_b128 v{K}, v[{KP+4*k}:{KP+4*k+3}] offset:{1024*k}")
    a("s_waitcnt lgkmcnt(0)")
    ts(1)

    def reads(fs, ks):
        f = FS[fs]
        L = []
        L.append(f"ds_read_b128 v[{f}:{f+3}], v{XA[ks]}")
        L.append(f"ds_read_b128 v[{f+24}:{f+27}], v{BA[ks]}")
        L.append(f"ds_read_b128 v[{f+4}:{f+7}], v{XA[ks]} offset:4096")
        for gu in range(2):
            for ft in range(2):
                for j in range(2):
                    d = f + 8 + 8 * gu + 4 * ft + 2 * j
                    L.append(f"ds_read_b64_tr_b16 v[{d}:{d+1}], v{WA[ft]} offset:{gu*8192 + ks*2048 + j*512}")
        return L
    def mfmas(fs):
        f = FS[fs]
        X = [f, f + 4]; Bf = f + 24
        L = []
        for q in range(2):
            L.append(f"v_mfma_f32_32x32x16_bf16 v[{S(q)}:{S(q)+15}], v[{X[q]}:{X[q]+3}], v[{Bf}:{Bf+3}], v[{S(q)}:{S(q)+15}]")
        for gu in range(2):
            for ft in range(2):
                w = f + 8 + 8 * gu + 4 * ft
                for q in range(2):
                    d = (G, U)[gu](ft, q)
                    L.append(f"v_mfma_f32_32x32x16_bf16 v[{d}:{d+15}], v[{w}:{w+3}], v[{X[q]}:{X[q]+3}], v[{d}:{d+15}]")
        return L
    a("s_setprio 2")
    a("s_mov_b32 s72, 0")
    a("s_mov_b32 s74, 0")
    a("s_barrier")
    ts(2)
    for t in reads(0, 0): a(t)
    need = {0: 9, 1: 8, 2: 6, 4: 4, 6: 2, 8: 0}
    if cfg.zpeel:
        Rd = reads(1, 1)
        issued = 0
        for i, m in enumerate(mfmas(0)):
            if i in need: a(f"s_waitcnt lgkmcnt({min(15, need[i] + issued)})")
            a(m[:m.rindex(", v[")] + ", 0")
            for _ in range(2 if i >= cfg.rdstart else 0):
                if Rd: a(Rd.pop(0)); issued += 1
        a("s_branch L_c_k1")
    a.label("L_c_loop")
    for ks in range(4):
        if ks == 1: a.label("L_c_k1")
        fs = ks & 1
        M = mfmas(fs)
        if ks < 3:
            Rd = reads(1 - fs, ks + 1)
            issued = 0
            for i, m in enumerate(M):
                if i in need: a(f"s_waitcnt lgkmcnt({min(15, need[i] + issued)})")
                a(m)
                for _ in range(2 if i >= cfg.rdstart else 0):
                    if Rd: a(Rd.pop(0)); issued += 1
        else:
            Rd = reads(1 - fs, 0)
            a("s_waitcnt lgkmcnt(9)")
            a(M[0])
            a("s_add_u32 s74, s74, 1")
            a("s_cmp_eq_u32 s74, 3")
            a("s_mov_b32 s75, 53248")
            a(f"s_cmov_b32 s75, {(-106496) & 0xffffffff:#x}")
            a("s_cselect_b32 s74, 0, s74")
            for v in XA + BA[:1]: a(f"v_add_u32 v{v}, s75, v{v}")
            a("s_waitcnt lgkmcnt(8)")
            a(M[1])
            for v in BA[1:] + WA: a(f"v_add_u32 v{v}, s75, v{v}")
            a("s_add_u32 s72, s72, 1")
            a("s_cmp_eq_u32 s72, 6")
            a("s_waitcnt lgkmcnt(0)")
            a(M[2])
            a("s_barrier")
            hist = list(a.hist)
            a("s_cbranch_scc1 L_c_last")
            for m in M[3:]:
                for _ in range(2):
                    if Rd: a(Rd.pop(0))
                a(m)
            a("s_branch L_c_loop")
            a.label("L_c_last")
            a.hist = hist
            Mtail = M[3:]
    lq = []
    def ds_issue(tag, t):
        a(t)
        if t.startswith("ds_"): lq.append(tag)
    def ds_wait(tag):
        idx = max((i for i, t in enumerate(lq) if t == tag), default=None)
        if idx is None: return None
        n = len(lq) - 1 - idx
        del lq[:idx + 1]
        return f"lgkmcnt({min(n, 15)})"
    def dwait(tag):
        w = ds_wait(tag)
        if w: a(f"s_waitcnt {w}")
    UB = [24, 40, 56]
    def ureads(u):
        b, ks = UB[u % 3], u % 4
        L = [f"ds_read_b128 v[{b}:{b+3}], v{XA[ks]}"]
        if u < 8:
            ft = u // 4
            for gu in range(2):
                for j in range(2):
                    d = b + 8 + 4 * gu + 2 * j
                    L.append(f"ds_read_b64_tr_b16 v[{d}:{d+1}], v{WA[ft]} offset:{gu*8192 + ks*2048 + j*512}")
        else:
            L.append(f"ds_read_b128 v[{b+8}:{b+11}], v{BA[ks]}")
        L.append(f"ds_read_b128 v[{b+4}:{b+7}], v{XA[ks]} offset:4096")
        return [(u, t) for t in L]
    def umfma(u):
        b = UB[u % 3]
        L = []
        for q in range(2):
            x = b + 4 * q
            if u < 8:
                for gu in range(2):
                    d = (G, U)[gu](u // 4, q); w = b + 8 + 4 * gu
                    L.append(f"v_mfma_f32_32x32x16_bf16 v[{d}:{d+15}], v[{w}:{w+3}], v[{x}:{x+3}], v[{d}:{d+15}]")
            else:
                L.append(f"v_mfma_f32_32x32x16_bf16 v[{S(q)}:{S(q)+15}], v[{x}:{x+3}], v[{b+8}:{b+11}], v[{S(q)}:{S(q)+15}]")
        return L
    Rd = ureads(0) + ureads(1)
    for m in Mtail:
        for _ in range(2):
            if Rd: ds_issue(*Rd.pop(0))
        a(m)
    CH = 72
    def chalf(p):
        for gu in range(2):
            for k in range(2):
                ds_issue(('c', p), f"ds_read_b128 v[{CH+8*gu+4*k}:{CH+8*gu+4*k+3}], v{vCL} offset:{256*gu + 32*(2*p+k)}")
    def hstore(ft, q, p):
        g = G(ft, q)
        vm.issue(('h', ft), f"buffer_store_dwordx4 v[{g+4*p}:{g+4*p+3}], v{vL16}, s[{SRD_WS}:{SRD_WS+3}], s{56+q} offen offset:{(2*ft+p)*1024}{SP}")
    ep = [lambda: dwait(('c', 0)), f"v_xor_b32 v{MM}, 0x80000000, v{MM}", f"v_xor_b32 v{MM+1}, 0x80000000, v{MM+1}"]
    for p in range(2):
        if p: ep.append(lambda: dwait(('c', 1)))
        for q in range(2):
            g, u = G(0, q) + 8 * p, U(0, q) + 8 * p
            for k in range(8): ep.append(f"v_fmac_f32 v{g+k}, v{MM+q}, v{CH+k}")
            for k in range(8): ep.append(f"v_fmac_f32 v{u+k}, v{MM+q}, v{CH+8+k}")
            if q == 1 and p == 0: ep.append(lambda: chalf(1))
            for k in range(8): ep.append(f"v_max_f32 v{g+k}, 0, v{g+k}")
            for k in range(8): ep.append(f"v_mul_f32 v{u+k}, v{u+k}, v{g+k}")
            for k in range(4): ep.append(f"v_cvt_pk_bf16_f32 v{G(0,q)+4*p+k}, v{u+2*k}, v{u+2*k+1}")
            ep.append(lambda q=q, p=p: hstore(0, q, p))
    def fill(n):
        while n > 0 and ep:
            t = ep.pop(0)
            if callable(t): t()
            else: a(t)
            n -= 1
    def cread(tag, dst, off):
        for k in range(4): ds_issue(tag, f"ds_read_b128 v[{dst+4*k}:{dst+4*k+3}], v{vCL} offset:{off + 32*k}")
    for u in range(12):
        dwait(u)
        if u == 11:
            a("s_barrier")
        Rd = ureads(u + 2) if u + 2 < 12 else []
        for i, m in enumerate(umfma(u)):
            a(m)
            for _ in range(2):
                if Rd: ds_issue(*Rd.pop(0))
            if u > 4 or (u == 4 and i >= 1): fill(cfg.fper - 1 if u < 10 else cfg.fper)
        if u == cfg.c2u:
            a("s_barrier")
            ds_issue(('c', 0), f"ds_read_b32 v{MM}, v{vStF}")
            ds_issue(('c', 0), f"ds_read_b32 v{MM+1}, v{vStF} offset:256")
            chalf(0)
        if u == 9: cread('cg', UB[0], 128)
        if u == 10: cread('cu', UB[1], 384)
    ts(3)
    fill(1000)
    dump = [f"ds_write_b128 v{vPQ}, v[{S(0)+4*k}:{S(0)+4*k+3}] offset:{SD + 1024*k}" for k in range(8)]
    WB = {0: [1, 2], 1: [3, 4], 2: [5, 6]}
    for rg in range(3):
        a(f"v_add_u32 v{WB[rg][0]}, {R[rg]}, v{vWB}")
        a(f"v_xor_b32 v{WB[rg][1]}, 64, v{WB[rg][0]}")
    dwait('cu')
    cg, cu = UB[0], UB[1]
    for q in range(2):
        g, u = G(1, q), U(1, q)
        sel = f"op_sel:[{q},0,0] op_sel_hi:[{q},1,1]"
        for p in range(2):
            kr = range(4 * p, 4 * p + 4)
            for k in kr:
                a(f"v_pk_fma_f32 v[{g+2*k}:{g+2*k+1}], v[{MM}:{MM+1}], v[{cg+2*k}:{cg+2*k+1}], v[{g+2*k}:{g+2*k+1}] {sel}")
                if dump: a(dump.pop(0))
            for k in kr:
                a(f"v_pk_fma_f32 v[{u+2*k}:{u+2*k+1}], v[{MM}:{MM+1}], v[{cu+2*k}:{cu+2*k+1}], v[{u+2*k}:{u+2*k+1}] {sel}")
                a(f"v_max_f32 v{g+2*k}, 0, v{g+2*k}")
                a(f"v_max_f32 v{g+2*k+1}, 0, v{g+2*k+1}")
            for k in kr:
                a(f"v_pk_mul_f32 v[{u+2*k}:{u+2*k+1}], v[{u+2*k}:{u+2*k+1}], v[{g+2*k}:{g+2*k+1}]")
            for k in kr:
                a(f"v_cvt_pk_bf16_f32 v{g+k}, v{u+2*k}, v{u+2*k+1}")
            if q == 0 and p == 1:
                a("s_waitcnt lgkmcnt(0)")
                a("s_barrier")
            if 2 * q + p == cfg.f0pos:
                vm.wait(('h', 0))
                a("s_mov_b64 exec, 1")
                vm.issue('f', f"buffer_store_dword v{vOne}, v{vF}, s[{SRD_WS}:{SRD_WS+3}], 0 offen sc1")
                a("s_mov_b64 exec, -1")
            hstore(1, q, p)
    del lq[:]
    ts(4)
    BR, NB = 160, 12
    def breads(p):
        sl = WSLOT[p]
        rg = max(k for k in range(3) if R[k] <= sl)
        L = []
        for lc in range(2):
            for jj in range(2):
                d = BR + 8 * (p % NB) + 4 * lc + 2 * jj
                L.append(f"ds_read_b64_tr_b16 v[{d}:{d+1}], v{WB[rg][lc]} offset:{sl - R[rg] + jj*1024}")
        return L
    for p in range(NB):
        for t in breads(p): a(t)
    pld = f"s_load_dwordx8 s[16:23], s[{P_WS}:{P_WS+1}], s55 glc"
    def fcond(bit):
        def cond():
            a("s_and_b64 s[16:17], s[16:17], s[18:19]")
            a("s_and_b64 s[16:17], s[16:17], s[20:21]")
            a("s_and_b32 s16, s16, s17")
            a("s_and_b32 s16, s16, s22")
            a(f"s_bitcmp1_b32 s16, {bit}")
        return cond
    a(pld)
    a("v_mov_b32 v7, 3")
    vm.wait(('h', 1))
    a("s_setprio 3")
    a("s_mov_b64 exec, 1")
    vm.issue('f', f"buffer_store_dword v7, v{vF}, s[{SRD_WS}:{SRD_WS+3}], 0 offen sc1")
    a("s_mov_b64 exec, -1")
    ts(6)
    a("s_waitcnt lgkmcnt(0)")
    if not cfg.x1late:
        a("s_barrier")
        ts(5)
    AF = 96
    AR = list(range(24, 96, 4))
    NA = len(AR)
    def aload(n):
        p, lr = n // 2, n % 2
        if n % 4 == 0:
            a(f"s_lshl_b32 s11, s60, 12")
            a(f"s_add_u32 s54, s11, s52")
            a(f"s_add_u32 s53, s11, s51")
            a(f"s_add_u32 s60, s60, 1")
            a(f"s_cmp_eq_u32 s60, 7")
            a(f"s_cselect_b32 s60, 0, s60")
        d = AR[n % NA]
        vm.issue(('a', n), f"buffer_load_dwordx4 v[{d}:{d+3}], v{vL16}, s[{SRD_WS}:{SRD_WS+3}], s{54 - lr} offen offset:{kpos(p)[1]*1024}{AP}")
    fcond(0)()
    a("s_cbranch_scc1 L_pf1")
    sspin(a, "L_pf", [pld], fcond(0), cfg.fsleep)
    a.label("L_pf1")
    a("s_setprio 2")
    ts(7)
    for n in range(cfg.a0): aload(n)
    nxt = [cfg.a0]
    if cfg.x1late:
        a("s_barrier")
        ts(5)
    ts(8)
    def lds_spin(name, vaddr, off, val):
        a("s_mov_b32 s73, 0")
        a.label(name)
        a("s_waitcnt lgkmcnt(0)")
        a("v_readfirstlane_b32 s11, v8")
        a(f"s_cmp_ge_u32 s11, {val}")
        a(f"s_cbranch_scc1 {name}ok")
        a("s_add_u32 s73, s73, 1")
        a(f"s_cmp_ge_u32 s73, {SPIN_MAX}")
        a(f"s_cbranch_scc1 {name}ok")
        a("s_sleep 1")
        a(f"ds_read_b32 v8, v{vaddr} offset:{off}")
        a(f"s_branch {name}")
        a.label(name + "ok")
        del lq[:]
    for p in range(28):
        f = BR + 8 * (p % NB)
        pn = p + cfg.bd
        for lr in range(2):
            n = 2 * p + lr
            w = ds_wait(p) if lr == 0 else None
            vm.wait(('a', n), w or "")
            if n == 0: ts(9)
            if n in (0, 7, 17, 25, 35): ts.x(6, {0: 7, 7: 8, 17: 9, 25: 10, 35: 11}[n])
            if lr == 0 and pn in (12, 16, 22): ds_issue('r', f"ds_read_b32 v8, v{vRd}")
            d = AR[n % NA]
            for lc in range(2):
                acc = AF + 32 * lr + 16 * lc
                c = "0" if p == 0 else f"v[{acc}:{acc+15}]"
                a(f"v_mfma_f32_32x32x16_bf16 v[{acc}:{acc+15}], v[{d}:{d+3}], v[{f+4*lc}:{f+4*lc+3}], {c}")
            if n == 4: a(pld)
            for _ in range(2):
                if nxt[0] < 56 and nxt[0] <= n + NA:
                    if nxt[0] == 28:
                        assert n > 4 and not lq
                        a("s_waitcnt lgkmcnt(0)")
                        fcond(1)()
                        a("s_cbranch_scc1 L_pf2")
                        sspin(a, "L_pg", [pld], fcond(1), cfg.fsleep)
                        a.label("L_pf2")
                    aload(nxt[0]); nxt[0] += 1
        if pn in (12, 16, 22): lds_spin(f"L_c_r{pn}", vRd, 0, {12: 1, 16: 2, 22: 3}[pn])
        if p == cfg.ksig:
            assert pn > 15
            w = ds_wait(15)
            if w: a(f"s_waitcnt {w}")
            a("s_mov_b64 exec, 1")
            ds_issue('c', f"ds_add_u32 v{vCn}, v{vOne} offset:4")
            a("s_mov_b64 exec, -1")
        if NB <= pn < 28:
            for t in breads(pn): ds_issue(pn, t)
        if p == 24:
            STT = BR + 32
            for k in range(8): ds_issue('st', f"ds_read_b128 v[{STT+4*k}:{STT+4*k+3}], v{vSo} offset:{16*k}")
        if p == 26:
            for x in range(1, 4):
                a(f"s_xor_b32 s11, s{S_W4}, {x}")
                a(f"s_mul_i32 s11, s11, {Q}")
                a(f"s_add_u32 s11, s11, {FXA + (x-1)*4096}")
                a(f"v_add_u32 v{x}, s11, v{vL16}")
            a(f"v_add_u32 v4, {GA}, v{vPQ}")
            a(f"v_add_u32 v5, {FXA}, v{vPQ}")
        if p % 4 == 3: ts.x(4, 1 + p // 4)
    ts(11)
    ts.x(7, 1)
    for x in (2, 1, 3):
        src = AF + 32 * (x & 1) + 16 * (x >> 1)
        for k in range(4):
            a(f"ds_write_b128 v5, v[{src+4*k}:{src+4*k+3}] offset:{(x-1)*4096 + 1024*k}")
    a("s_waitcnt lgkmcnt(12)")
    for r in range(16): a(f"v_mul_f32 v{STT+2*r}, v{STT+2*r+1}, v{STT+2*r+1}")
    a(f"s_mov_b32 s13, {LOG2E ^ 0x80000000:#x}")
    ts.x(7, 2)
    a("s_waitcnt lgkmcnt(0)")
    ts.x(7, 3)
    a("s_mov_b64 exec, 1")
    a(f"ds_add_u32 v{vCn}, v{vOne}")
    a("s_mov_b64 exec, -1")
    a(f"ds_read_b32 v8, v{vCn}")
    lds_spin("L_c_cnt", vCn, 0, 4)
    ts.x(7, 4)
    O, RX, EX = AF, 24, 72
    for k in range(4):
        for x in range(1, 4):
            a(f"ds_read_b128 v[{RX+16*(x-1)+4*k}:{RX+16*(x-1)+4*k+3}], v{x} offset:{1024*k}")
    for k in range(4):
        rr = range(4 * k, 4 * k + 4)
        a(f"s_waitcnt lgkmcnt({9 - 3*k})")
        for r in rr: a(f"v_add_f32 v{O+r}, v{O+r}, v{RX+r}")
        for r in rr: a(f"v_add_f32 v{RX+16+r}, v{RX+16+r}, v{RX+32+r}")
        for r in rr: a(f"v_add_f32 v{O+r}, v{O+r}, v{RX+16+r}")
        for r in rr: a(f"v_mul_f32 v{O+r}, v{O+r}, v{STT+2*r}")
        for r in rr: a(f"v_mul_f32 v{EX+r}, s13, v{O+r}")
        for r in rr: a(f"v_exp_f32 v{EX+r}, v{EX+r}")
    ts.x(7, 5)
    for k in range(4):
        rr = range(4 * k, 4 * k + 4)
        for r in rr: a(f"v_add_f32 v{EX+r}, 1.0, v{EX+r}")
        for r in rr: a(f"v_rcp_f32 v{EX+r}, v{EX+r}")
        for r in rr: a(f"v_mul_f32 v{O+r}, v{O+r}, v{EX+r}")
        a(f"ds_write_b128 v4, v[{O+4*k}:{O+4*k+3}] offset:{1024*k}")
    a("s_waitcnt lgkmcnt(0)")
    ts(12)
    a("s_barrier")
    ts.dump(24, 25, 0)
    a("s_endpgm")

HEADER = """; Fused S5-SSM + ReGLU block, one launch: 224 main workgroups (4 MFMA waves + 4 loader waves) + 32 helper workgroups.
; @launch grid=(256,1,1) block=(512,1,1) lds=163840
.amdgcn_target "amdgcn-amd-amdhsa--gfx950"
.text
.globl {k}
.p2align {al}
.type {k},@function
{k}:
"""
FOOTER = """.section .rodata,"a"
.p2align 6
.amdhsa_kernel {k}
  .amdhsa_next_free_vgpr 256
  .amdhsa_next_free_sgpr 102
  .amdhsa_accum_offset 256
  .amdhsa_group_segment_fixed_size 0
  .amdhsa_kernarg_size 128
  .amdhsa_user_sgpr_count 2
  .amdhsa_user_sgpr_kernarg_segment_ptr 1
  .amdhsa_system_sgpr_workgroup_id_x 1
  .amdhsa_float_denorm_mode_32 3
.end_amdhsa_kernel
"""

def generate(cfg):
    WSOFF[0] = cfg.wsoff << 20
    a = Asm()
    ts = TS(a, cfg)
    gen_entry(a, cfg, ts)
    gen_loader(a, cfg, ts)
    gen_consumer(a, cfg, ts)
    gen_helper(a, cfg, ts)
    a.label("L_exit")
    a("s_endpgm")
    return HEADER.format(k=KNAME, al=12 if cfg.al else 8) + f"; wsoff={cfg.wsoff}\n" + a.text() + FOOTER.format(k=KNAME)

if __name__ == "__main__":
    cfg = Cfg()
    out = sys.argv[1]
    for kv in sys.argv[2:]:
        k, v = kv.split("=")
        setattr(cfg, k, int(v))
    open(out, "w").write(generate(cfg))
```

```python
import sys, os
sys.path.insert(0, os.path.dirname(os.path.abspath(__file__)))
from asmlib import Asm, VM

KNAME = "recurrent_scan__ssm_conv_s5__glu_gated_reglu__prompt_kernel"

R = [0, 53248, 106496]
MISC = 159744
OFF_WG, OFF_WU, OFF_BB = 32768, 40960, 49152
CP_L = R[1] + 49152
STATS_L = MISC
C_L = MISC + 2048
CNT_L = MISC + 2688
ST2_L = MISC + 2720
AGG_L = MISC + 3232
Q = 12288

RT_BYTES = 172032
HALF_BYTES = 86016
WS_STATS = 0xB00000
WS_AGG = WS_STATS + 0x4000
WS_FLAG = WS_AGG + 0x8000
INIT_N = 32
WS_CP = 0xB20000
WS_TS = 0xC00000
WS_SIZE = 0x1000000
SPIN_MAX = 1 << 20

S_WAVE, S_XCD, S_SLOT, S_MT, S_NS, S_M64, S_NT, S_W4 = 3, 4, 5, 6, 7, 8, 9, 10
P_X, P_LRE, P_LIM, P_BRE, P_BIM, P_CRE, P_CIM, P_LDT, P_DSK, P_BX, P_WG, P_WU, P_WD, P_OUT, P_DBG, P_WS = [16 + 2 * i for i in range(16)]
SRD_X, SRD_A, SRD_B, SRD_C, SRD_WS, SRD_E = 48, 52, 56, 60, 64, 68
TS0 = 76

LOG2E = 0x3fb8aa3b
LOG2E_LO = 0x32a57060
LN2 = 0x3f317218
INV2PI = 0x3e22f983

class Cfg:
    ts = 0
    tsset = 0
    pd = 16
    perm = 4
    rot = 2
    ssm_early = 0
    schedn = 0
    polx = 0
    apol = 1
    noa = 0
    nob = 0
    rdstart = 1
    polw = 0
    winn = 3
    loc = 1
    al = 1
    cpw = 1
    s0a = 8
    zpeel = 1
    ws = 0
    crot = 0
    ipos = 0
    gate = 2
    c0n = 8
    agpos = 0
    c0early = 0
    hord = 1
    clate = 2
    wl = 1
    fper = 6
    c2u = 2
    probe = 0
    pwho = 0
    ponly = -1
    pmask = 0xffff
    wsoff = 0
    kwin = 2
    wprio = 0
    hdelay = 0
    eprio = 0
    c2late = 0
    cpf = 2
    padto = 0
    nocs = 0
    r2pre = 1
    tlb = 0
    bd = 4
    pollw = 24
    c1 = 12
    c2 = 16
    f2b = 1
    wfirst = 1
    @property
    def win(self):
        W = lambda a, b: [f"w{p}" for p in range(a, b)]
        if self.ws:
            m, n1, n2, n3, n4, n5, n6, cp, cs, ep = [int(c) for c in str(self.ws)[1:]]
            assert n1 + n2 + n3 + n4 + n5 + n6 == 10
            pos = [12]
            def take(n):
                r = W(pos[0], pos[0] + n); pos[0] += n; return r
            w = {}
            if m == 2: w[-1] = ["m", "s1:0-3"]; w[0] = ["cs0", "s1:3-13", "k", "s2:0-10"]; w[1] = ["cs1", "s2:10-13", "s3"]
            else: w[-1] = ["s1:0-6"]; w[0] = ["cs0", "s1:6-13", "k", "s2"] + (["m"] if m == 1 else []); w[1] = ["cs1"] + (["m"] if m == 3 else []) + ["s3"]
            w[1] += take(n1)
            w[2] = ["cs2", "s4"] + take(n2)
            w[3] = (["cs3", "s5:0-7", "cs4", "s5:7-13"] if cs == 1 else ["cs3", "s5"]) + take(n3)
            w[4] = {0: ["cs4", "init", "s6:0-7", "cs5", "s6:7-13"], 1: ["init", "s6:0-4", "cs5", "s6:4-13"], 2: ["cs4", "init", "s6"]}[cs] + take(n4)
            w[5] = (["cs5"] if cs == 2 else []) + ["fetch"] + W(0, 4) + ["cs6"] + W(4, 6) + take(n5) + {0: ["c3"], 1: [], 2: ["c3", "c1"], 3: ["c1"]}[cp] + ["put"]
            w[6] = W(6, 12) + take(n6) + {0: ["c1"], 1: ["c3", "c1"], 2: [], 3: ["c3"]}[cp]
            w[ep].append("e")
            if self.ipos:
                w[4].remove("init"); w[4].append("init")
                w[5].remove("fetch"); w[5].remove("put")
                w[5].insert(w[5].index("cs6") + 1, "fetch")
                w[6].insert(2, "put")
            return w
        return [
            {-1: ["s1:0-6"], 0: ["cs0", "s1:6-13", "k", "s2:0-9"], 1: ["cs1", "s2:9-13", "s3", "e"], 2: ["cs2", "s4"] + W(12, 14), 3: ["cs3", "s5"] + W(14, 17),
             4: ["cs4", "init", "s6:0-7", "cs5", "s6:7-13", "w17"], 5: ["fetch"] + W(0, 4) + ["cs6"] + W(4, 6) + W(18, 20) + ["put"], 6: W(6, 12) + W(20, 22)},
            {-1: ["s1:0-6"], 0: ["cs0", "s1:6-13", "k", "s2:0-9"], 1: ["cs1", "s2:9-13", "s3", "e"], 2: ["cs2", "s4"] + W(12, 15), 3: ["cs3", "s5"] + W(15, 18),
             4: ["cs4", "init", "s6"] + W(18, 20), 5: ["cs5", "fetch"] + W(0, 3) + ["cs6"] + W(3, 6) + ["put"], 6: W(6, 12) + W(20, 22)},
            {-1: ["s1:0-6"], 0: ["cs0", "s1:6-13", "k", "s2:0-9"], 1: ["cs1", "s2:9-13", "s3", "e"], 2: ["cs2", "s4"] + W(12, 15), 3: ["cs3", "s5:0-7", "cs4", "s5:7-13", "w15"],
             4: ["init", "s6:0-4", "cs5", "s6:4-13"] + W(16, 19), 5: ["fetch"] + W(0, 4) + ["cs6"] + W(4, 6) + W(19, 22) + ["put"], 6: W(6, 12)},
            {-1: ["s1:0-6"], 0: ["cs0", "s1:6-13", "k", "s2:0-9"], 1: ["cs1", "s2:9-13", "s3", "e"], 2: ["cs2", "s4"] + W(12, 15), 3: ["cs3", "s5"] + W(15, 18),
             4: ["cs4", "init", "s6:0-7", "cs5", "s6:7-13", "w18", "w19"], 5: ["fetch"] + W(0, 4) + ["cs6"] + W(4, 6) + W(20, 22) + ["c3", "put"], 6: W(6, 12) + ["c1"]},
            {-1: ["s1:0-6"], 0: ["cs0", "s1:6-13", "k", "s2:0-9"], 1: ["cs1", "s2:9-13", "s3", "e"], 2: ["cs2", "s4"] + W(12, 14), 3: ["cs3", "s5"] + W(14, 17),
             4: ["cs4", "init", "s6:0-7", "cs5", "s6:7-13", "w17"], 5: ["fetch"] + W(0, 4) + ["cs6"] + W(4, 6) + W(18, 20) + ["put"], 6: W(6, 12) + W(20, 22) + ["c3"]},
            {-1: ["s1:0-6"], 0: ["cs0", "s1:6-13", "k", "s2:0-9"], 1: ["cs1", "s2:9-13", "s3", "e"], 2: ["cs2", "s4"] + W(12, 15), 3: ["cs3", "s5"] + W(15, 19),
             4: ["cs4", "init", "s6:0-7", "cs5", "s6:7-13"] + W(19, 22), 5: ["fetch"] + W(0, 4) + ["cs6"] + W(4, 6) + ["c1", "put"], 6: W(6, 12) + ["c3"]},
            {-1: ["s1:0-6"], 0: ["cs0", "s1:6-13", "k", "s2"], 1: ["cs1", "s3", "e"] + W(12, 14), 2: ["cs2", "s4"] + W(14, 17), 3: ["cs3", "s5"] + W(17, 20),
             4: ["cs4", "init", "s6:0-7", "cs5", "s6:7-13"] + W(20, 22), 5: ["fetch"] + W(0, 4) + ["cs6"] + W(4, 6) + ["c1", "put"], 6: W(6, 12) + ["c3"]},
            {-1: ["s1:0-6"], 0: ["cs0", "s1:6-13", "k", "s2:0-9"], 1: ["cs1", "s2:9-13", "s3", "e"], 2: ["cs2", "s4"] + W(12, 15), 3: ["cs3", "s5:0-7", "cs4", "s5:7-13"] + W(15, 18),
             4: ["init", "s6:0-4", "cs5", "s6:4-13"] + W(18, 22), 5: ["fetch"] + W(0, 4) + ["cs6"] + W(4, 6) + ["c1", "put"], 6: W(6, 12) + ["c3"]},
            {-1: ["s1:0-6"], 0: ["cs0", "s1:6-13", "k", "s2:0-9"], 1: ["cs1", "s2:9-13", "s3", "e"], 2: ["cs2", "s4"], 3: ["cs3", "s5"] + W(12, 16),
             4: ["cs4", "init", "s6:0-7", "cs5", "s6:7-13"] + W(16, 19), 5: ["fetch"] + W(0, 4) + ["cs6"] + W(4, 6) + W(19, 22) + ["c3", "put"], 6: W(6, 12) + ["c1"]},
            {-1: ["s1:0-6"], 0: ["cs0", "s1:6-13", "k", "s2"], 1: ["cs1", "s3", "e"], 2: ["cs2", "s4"] + W(12, 14), 3: ["cs3", "s5"] + W(14, 18),
             4: ["cs4", "init", "s6:0-7", "cs5", "s6:7-13", "w18", "w19"], 5: ["fetch"] + W(0, 4) + ["cs6"] + W(4, 6) + W(20, 22) + ["c3", "put"], 6: W(6, 12) + ["c1"]},
            {-1: ["s1:0-3"], 0: ["cs0", "s1:3-13", "k", "s2:0-8"], 1: ["cs1", "s2:8-13", "s3"], 2: ["cs2", "s4", "e"] + W(12, 14), 3: ["cs3", "s5"] + W(14, 18),
             4: ["cs4", "init", "s6:0-7", "cs5", "s6:7-13", "w18", "w19"], 5: ["fetch"] + W(0, 4) + ["cs6"] + W(4, 6) + W(20, 22) + ["c3", "put"], 6: W(6, 12) + ["c1"]},
            {-1: ["s1:0-6"], 0: ["cs0", "s1:6-13", "k", "s2:0-9"], 1: ["cs1", "s2:9-13", "s3", "e"], 2: ["cs2", "s4"] + W(12, 15), 3: ["cs3", "init", "s5"] + W(15, 18),
             4: ["cs4", "fetch", "s6:0-7", "cs5", "s6:7-13", "w18", "w19"], 5: ["put"] + W(0, 4) + ["cs6"] + W(4, 6) + W(20, 22) + ["c3"], 6: W(6, 12) + ["c1"]},
            {-1: ["m", "s1:0-3"], 0: ["cs0", "s1:3-13", "k", "s2:0-8"], 1: ["cs1", "s2:8-13", "s3", "e"], 2: ["cs2", "s4"] + W(12, 15), 3: ["cs3", "s5"] + W(15, 18),
             4: ["cs4", "init", "s6:0-7", "cs5", "s6:7-13", "w18", "w19"], 5: ["fetch"] + W(0, 4) + ["cs6"] + W(4, 6) + W(20, 22) + ["c3", "put"], 6: W(6, 12) + ["c1"]},
            {-1: ["s1:0-6"], 0: ["cs0", "s1:6-13", "m", "k", "s2:0-9"], 1: ["cs1", "s2:9-13", "s3", "e"], 2: ["cs2", "s4"] + W(12, 15), 3: ["cs3", "s5"] + W(15, 18),
             4: ["cs4", "init", "s6:0-7", "cs5", "s6:7-13", "w18", "w19"], 5: ["fetch"] + W(0, 4) + ["cs6"] + W(4, 6) + W(20, 22) + ["c3", "put"], 6: W(6, 12) + ["c1"]},
            {-1: ["m"], 0: ["cs0", "s1", "k", "s2:0-6"], 1: ["cs1", "s2:6-13", "s3"], 2: ["cs2", "s4", "e"] + W(12, 14), 3: ["cs3", "s5"] + W(14, 18),
             4: ["cs4", "init", "s6:0-7", "cs5", "s6:7-13", "w18", "w19"], 5: ["fetch"] + W(0, 4) + ["cs6"] + W(4, 6) + W(20, 22) + ["c3", "put"], 6: W(6, 12) + ["c1"]},
            {-1: ["s1:0-6"], 0: ["cs0", "s1:6-13", "k", "s2"], 1: ["cs1", "s3"], 2: ["cs2", "s4", "e"], 3: ["cs3", "s5"] + W(12, 16),
             4: ["cs4", "init", "s6:0-7", "cs5", "s6:7-13"] + W(16, 19), 5: ["fetch"] + W(0, 4) + ["cs6"] + W(4, 6) + W(19, 22) + ["c3", "put"], 6: W(6, 12) + ["c1"]},
            {-1: ["s1:0-6"], 0: ["cs0", "s1:6-13", "k", "s2", "m"], 1: ["cs1", "s3"], 2: ["cs2", "s4", "e"], 3: ["cs3", "s5"] + W(12, 16),
             4: ["cs4", "init", "s6:0-7", "cs5", "s6:7-13"] + W(16, 19), 5: ["fetch"] + W(0, 4) + ["cs6"] + W(4, 6) + W(19, 22) + ["c3", "put"], 6: W(6, 12) + ["c1"]},
            {-1: ["m", "s1:0-3"], 0: ["cs0", "s1:3-13", "k", "s2:0-10"], 1: ["cs1", "s2:10-13", "s3"], 2: ["cs2", "s4", "e"], 3: ["cs3", "s5"] + W(12, 16),
             4: ["cs4", "init", "s6:0-7", "cs5", "s6:7-13"] + W(16, 19), 5: ["fetch"] + W(0, 4) + ["cs6"] + W(4, 6) + W(19, 22) + ["c3", "put"], 6: W(6, 12) + ["c1"]},
            {-1: ["s1:0-6"], 0: ["cs0", "s1:6-13", "k", "s2"], 1: ["cs1", "s3"], 2: ["cs2", "s4:0-6"], 3: ["cs3", "s4:6-13", "s5", "e"],
             4: ["cs4", "init", "s6"] + W(12, 16), 5: ["cs5", "fetch"] + W(16, 20) + ["cs6"] + W(0, 6) + ["put"], 6: W(6, 12) + W(20, 22) + ["c3", "c1"]},
            {-1: ["s1"], 0: ["cs0", "k", "s2", "e"], 1: ["cs1", "s3"], 2: ["cs2", "s4", "w12"], 3: ["cs3", "s5"] + W(13, 16),
             4: ["cs4", "init", "s6:0-7", "cs5", "s6:7-13"] + W(16, 19), 5: ["fetch"] + W(0, 4) + ["cs6"] + W(4, 6) + W(19, 22) + ["c3", "put"], 6: W(6, 12) + ["c1"]},
        ][self.winn]
    nw1 = 6
    flagr = -1
    xs = 1
    psleep = 2
    fsleep = 2
    ttper = 2
    f2n = 9
    fpre = 1
    a0 = 18
    sprio = 0
    ksig = 12
    opol = 1
    lprio = 3
    w12early = 0
    slab = 0
    spol = 1
    fpol = 1
    pollr = 4
    nw2 = 16
    thr = 15
    hpf = 2
    ky = 2
    @property
    def perms(self):
        return {
            0: [[0, 1, 2, 3, 4, 5, 6]],
            1: [[0, 1, 2, 3, 4, 5, 6], [1, 2, 0, 4, 5, 3, 6], [2, 0, 1, 5, 3, 4, 6]],
            2: [[0, 1, 2, 3, 4, 5, 6], [1, 0, 3, 2, 5, 4, 6]],
            3: [[0, 1, 2, 3, 4, 5, 6], [1, 0, 4, 5, 6, 2, 3], [0, 1, 6, 2, 3, 4, 5]],
            4: [[0, 1, 2, 3, 4, 5, 6], [1, 2, 0, 4, 6, 3, 5], [2, 0, 1, 5, 6, 3, 4]],
            6: [[0, 1, 2, 3, 4, 5, 6], [1, 2, 0, 3, 4, 5, 6], [2, 0, 1, 3, 4, 5, 6]],
            5: [[0, 1, 2, 3, 4, 5, 6], [1, 2, 3, 0, 5, 6, 4], [2, 3, 0, 1, 6, 4, 5], [3, 0, 1, 2, 4, 5, 6]],
        }[self.perm]

WSOFF = [0]
def srd(a, d, ptr, nbytes):
    if ptr == P_WS and WSOFF[0]:
        a(f"s_add_u32 s{ptr}, s{ptr}, {WSOFF[0]:#x}")
        a(f"s_addc_u32 s{ptr+1}, s{ptr+1}, 0")
    a(f"s_mov_b32 s{d}, s{ptr}")
    a(f"s_and_b32 s{d+1}, s{ptr+1}, 0xffff")
    a(f"s_mov_b32 s{d+2}, {nbytes:#x}")
    a(f"s_mov_b32 s{d+3}, 0x20000")

def srd_sel(a, d, ptr1, ptr0, nbytes):
    a(f"s_cselect_b32 s{d}, s{ptr1}, s{ptr0}")
    a(f"s_cselect_b32 s{d+1}, s{ptr1+1}, s{ptr0+1}")
    a(f"s_and_b32 s{d+1}, s{d+1}, 0xffff")
    a(f"s_mov_b32 s{d+2}, {nbytes:#x}")
    a(f"s_mov_b32 s{d+3}, 0x20000")

class TS:
    def __init__(self, a, cfg):
        self.a, self.on, self.n, self.set = a, cfg.ts, 0, cfg.tsset
        self.cfg = cfg
    def x(self, setno, i):
        if self.on and self.set == setno: self.emit(i)
    def __call__(self, i):
        if self.on and (self.set == 0 or i in (0, 12)): self.emit(i)
    def emit(self, i):
        if self.on == 5 and i not in (0, self.cfg.probe): return
        if self.on:
            assert i < 13
            self.a(f"{'s_memrealtime' if self.on != 2 else 's_memtime'} s[{TS0+2*i}:{TS0+2*i+1}]")
    def init(self):
        if self.on:
            for i in range(1, 13): self.a(f"s_mov_b32 s{TS0+2*i}, 0")
    def dump(self, vt, vt2, who=2):
        if not self.on: return
        a = self.a
        if self.on == 5:
            if who != self.cfg.pwho: return
            lab = a.newlabel("L_probe")
            if self.cfg.ponly >= 0:
                a(f"s_and_b32 s11, s2, {self.cfg.pmask}")
                a(f"s_cmp_lg_u32 s11, {self.cfg.ponly}")
                a(f"s_cbranch_scc1 {lab}_x")
            p = TS0 + 2 * self.cfg.probe
            a("s_waitcnt lgkmcnt(0)")
            a(f"s_sub_u32 s11, s{p}, s{TS0}")
            a(f"s_cmp_eq_u32 s{p}, 0")
            a("s_cselect_b32 s11, 0, s11")
            a("s_lshl_b32 s11, s11, 2")
            a("s_add_u32 s11, s11, 3000")
            a.label(lab)
            a("s_memrealtime s[12:13]")
            a("s_waitcnt lgkmcnt(0)")
            a(f"s_sub_u32 s12, s12, s{TS0}")
            a("s_cmp_lt_u32 s12, s11")
            a(f"s_cbranch_scc1 {lab}")
            a.label(lab + "_x")
            return
        if self.on == 3:
            a("s_waitcnt vmcnt(0) lgkmcnt(0)")
            lab = a.newlabel("L_nod")
            a(f"s_cmp_eq_u32 s{TS0+24}, 0")
            a(f"s_cbranch_scc1 {lab}")
            a(f"s_cmp_lg_u32 s{S_WAVE}, 0")
            a(f"s_cbranch_scc1 {lab}")
            a("s_mov_b64 exec, 1")
            a(f"v_mov_b32 v{vt2}, 0")
            a(f"s_not_b32 s11, s{TS0}")
            a(f"v_mov_b32 v{vt}, s11")
            a(f"global_atomic_umax v{vt2}, v{vt}, s[{P_DBG}:{P_DBG+1}] offset:4 sc1")
            for n, i in enumerate([0, 1, 2, 3, 4, 5, 6, 7, 8, 9, 10, 11, 12]):
                a("s_waitcnt vmcnt(0)")
                a(f"v_mov_b32 v{vt}, s{TS0+2*i}")
                a(f"global_atomic_umax v{vt2}, v{vt}, s[{P_DBG}:{P_DBG+1}] offset:{8+4*n} sc1")
            a("s_waitcnt vmcnt(0)")
            a.label(lab)
            return
        a("s_waitcnt vmcnt(0) lgkmcnt(0)")
        a(f"s_lshl_b32 s11, s2, 9")
        a(f"s_lshl_b32 s12, s{S_WAVE}, 6")
        a("s_add_u32 s11, s11, s12")
        a(f"s_add_u32 s11, s11, {WS_TS:#x}")
        a(f"v_mov_b32 v{vt2}, s11")
        for i in range(13):
            a(f"v_mov_b32 v{vt}, s{TS0+2*i}")
            a(f"buffer_store_dword v{vt}, v{vt2}, s[{SRD_WS}:{SRD_WS+3}], 0 offen offset:{4*i}")
        a("s_waitcnt vmcnt(0)")

def round_bf16(a, dst, src):
    a(f"v_cvt_pk_bf16_f32 v{dst}, v{src}, v{src}")
    a(f"v_lshlrev_b32 v{dst}, 16, v{dst}")

def exp_acc(a, dst, x, t0, t1):
    a(f"s_mov_b32 s36, {LOG2E:#x}")
    a(f"s_mov_b32 s37, {LOG2E_LO:#x}")
    a(f"v_mul_f32 v{t0}, s36, v{x}")
    a(f"v_fma_f32 v{t1}, v{x}, s36, -v{t0}")
    a(f"v_fma_f32 v{t1}, v{x}, s37, v{t1}")
    a(f"v_mul_f32 v{t1}, {LN2:#x}, v{t1}")
    a(f"v_exp_f32 v{dst}, v{t0}")
    a(f"v_fma_f32 v{dst}, v{dst}, v{t1}, v{dst}")

def csq(a, dr, di, sr, si, t):
    a(f"v_mul_f32 v{t}, v{si}, v{si}")
    a(f"v_add_f32 v{di}, v{si}, v{si}")
    a(f"v_mul_f32 v{di}, v{di}, v{sr}")
    a(f"v_fma_f32 v{dr}, v{sr}, v{sr}, -v{t}")

def cmul(a, dr, di, ar, ai, br, bi):
    a(f"v_mul_f32 v{dr}, v{ar}, v{br}")
    a(f"v_mul_f32 v{di}, v{ar}, v{bi}")
    a(f"v_fma_f32 v{dr}, -v{ai}, v{bi}, v{dr}")
    a(f"v_fma_f32 v{di}, v{ai}, v{br}, v{di}")

def ssm_const_load(a, vm, t):
    a(f"v_and_b32 v{t+3}, 15, v0")
    a(f"s_lshl_b32 s11, s{S_NS}, 4")
    a(f"v_add_lshl_u32 v{t+3}, v{t+3}, s11, 1")
    vm.issue('sc', f"global_load_ushort v{t}, v{t+3}, s[{P_LRE}:{P_LRE+1}]")
    vm.issue('sc', f"global_load_ushort v{t+1}, v{t+3}, s[{P_LIM}:{P_LIM+1}]")
    vm.issue('sc', f"global_load_ushort v{t+2}, v{t+3}, s[{P_LDT}:{P_LDT+1}]")

def ssm_const_calc(a, t, lr, li, cr=None, ci=None):
    for k in range(3): a(f"v_lshlrev_b32 v{t+k}, 16, v{t+k}")
    exp_acc(a, t + 3, t + 2, t + 4, t + 5)
    round_bf16(a, t + 2, t + 3)
    a(f"v_mul_f32 v{t+3}, v{t+2}, v{t}")
    a(f"v_mul_f32 v{t+6}, v{t+2}, v{t+1}")
    exp_acc(a, t + 7, t + 3, t + 4, t + 5)
    a(f"v_mul_f32 v{t+6}, {INV2PI:#x}, v{t+6}")
    a(f"v_rndne_f32 v{t+4}, v{t+6}")
    a(f"v_sub_f32 v{t+6}, v{t+6}, v{t+4}")
    a(f"v_cos_f32 v{t+4}, v{t+6}")
    a(f"v_sin_f32 v{t+5}, v{t+6}")
    a(f"v_mul_f32 v{lr}, v{t+7}, v{t+4}")
    a(f"v_mul_f32 v{li}, v{t+7}, v{t+5}")
    if cr is not None:
        a(f"v_add_f32 v{t+3}, -1.0, v{lr}")
        a(f"v_mul_f32 v{t+4}, v{t}, v{t}")
        a(f"v_fma_f32 v{t+4}, v{t+1}, v{t+1}, v{t+4}")
        a(f"v_rcp_f32 v{t+4}, v{t+4}")
        a(f"v_mul_f32 v{cr}, v{t+3}, v{t}")
        a(f"v_fma_f32 v{cr}, v{li}, v{t+1}, v{cr}")
        a(f"v_mul_f32 v{ci}, v{li}, v{t}")
        a(f"v_fma_f32 v{ci}, -v{t+3}, v{t+1}, v{ci}")
        a(f"v_add_f32 v{t+4}, v{t+4}, v{t+4}")
        a(f"v_mul_f32 v{cr}, v{cr}, v{t+4}")
        a(f"v_mul_f32 v{ci}, v{ci}, v{t+4}")

def gen_entry(a, cfg, ts):
    a("s_cmp_ge_u32 s2, 256")
    a("s_cbranch_scc1 L_exit")
    if cfg.padto: a("s_memrealtime s[100:101]")
    ts(0)
    a("s_load_dwordx16 s[16:31], s[0:1], 0")
    a("s_load_dwordx16 s[32:47], s[0:1], 64")
    a("v_lshrrev_b32 v1, 6, v0")
    a("v_and_b32 v0, 63, v0")
    a(f"v_readfirstlane_b32 s{S_WAVE}, v1")
    a(f"s_and_b32 s{S_XCD}, s2, 7")
    a(f"s_lshr_b32 s{S_SLOT}, s2, 3")
    if cfg.cpf == 2:
        a(f"s_cmp_gt_u32 s{S_WAVE}, {cfg.cpw - 1}")
        a("s_cbranch_scc1 L_nocpf")
        a("s_getpc_b64 s[12:13]")
        a.label("L_pc0")
        a(f"s_sub_u32 s12, s12, L_pc0-{KNAME}")
        a("s_subb_u32 s13, s13, 0")
        a(f"s_lshl_b32 s11, s{S_WAVE}, 5")
        a(f"s_add_u32 s11, s11, s{S_SLOT}")
        a("s_lshl_b32 s11, s11, 10")
        a("v_lshl_add_u32 v38, v0, 4, s11")
        a(f"v_min_u32 v38, L_exit-{KNAME}, v38")
        a("global_load_dword v39, v38, s[12:13]")
        a.label("L_nocpf")
    a(f"s_and_b32 s11, s{S_SLOT}, 3")
    a(f"s_lshr_b32 s{S_NT}, s{S_SLOT}, 2")
    a(f"s_and_b32 s12, s{S_XCD}, 1")
    a(f"s_lshl_b32 s12, s12, 2")
    a(f"s_add_u32 s{S_MT}, s12, s11")
    a(f"s_lshr_b32 s12, s{S_XCD}, 1")
    a(f"s_mul_i32 s12, s12, 7")
    a(f"s_add_u32 s{S_NS}, s12, s{S_NT}")
    if cfg.slab:
        a(f"s_mov_b32 s{S_MT}, s{S_XCD}")
        a(f"s_mov_b32 s{S_NS}, s{S_SLOT}")
    if cfg.loc:
        a(f"s_and_b32 s12, s{S_XCD}, 1")
        a("s_lshl_b32 s12, s12, 2")
        a(f"s_lshr_b32 s13, s{S_XCD}, 1")
        a("s_add_u32 s12, s12, s13")
        a("s_lshl_b32 s12, s12, 2")
    else:
        a(f"s_lshl_b32 s12, s{S_XCD}, 2")
    a(f"s_add_u32 s{S_M64}, s12, s11")
    a(f"s_and_b32 s{S_W4}, s{S_WAVE}, 3")
    ts.init()
    a(f"s_cmp_ge_u32 s{S_SLOT}, 28")
    a("s_cbranch_scc1 L_helper")
    a(f"s_cmp_lt_u32 s{S_WAVE}, 4")
    a("s_cbranch_scc1 L_consumer")

def gen_helper(a, cfg, ts):
    if cfg.al >= 3: a.raw(".p2align 12")
    a.label("L_helper")
    vm = VM(a)
    a(f"s_sub_u32 s73, s{S_SLOT}, 28")
    a(f"s_lshl_b32 s11, s73, 3")
    a(f"s_add_u32 s72, s11, s{S_XCD}")
    if cfg.loc: a(f"s_mov_b32 s72, s{S_M64}")
    HC = 65536
    a(f"v_mov_b32 v200, {HC}")
    a("v_mov_b32 v201, 0")
    a("ds_write_b32 v200, v201")
    def h_open():
        a("s_waitcnt lgkmcnt(0)")
        a("s_barrier")
    def h_signal(tag):
        a("v_mov_b32 v202, 1")
        a("s_mov_b64 exec, 1")
        a("ds_add_rtn_u32 v203, v200, v202")
        a("s_waitcnt lgkmcnt(0)")
        a("v_readfirstlane_b32 s11, v203")
        a("s_cmp_lg_u32 s11, 7")
        a(f"s_cbranch_scc1 L_h_ns{tag}")
        a(f"global_atomic_add v201, v202, s[{P_DBG}:{P_DBG+1}] sc1")
        a.label(f"L_h_ns{tag}")
        a("s_mov_b64 exec, -1")
    a(f"s_cmp_ge_u32 s{S_WAVE}, 4")
    a("s_cbranch_scc1 L_h_pf")
    a(f"s_lshl_b32 s11, s72, 6")
    a(f"s_lshl_b32 s12, s{S_WAVE}, 4")
    a(f"s_add_u32 s11, s11, s12")
    a("v_lshrrev_b32 v2, 3, v0")
    a("v_add_u32 v2, s11, v2")
    a("v_mul_u32_u24 v3, 896, v2")
    a("v_and_b32 v4, 7, v0")
    a("v_lshl_add_u32 v3, v4, 4, v3")
    a("s_waitcnt lgkmcnt(0)")
    srd(a, SRD_X, P_X, 2048 * 896)
    srd(a, SRD_WS, P_WS, WS_SIZE)
    a(f"s_mov_b32 s11, {8*896}")
    for ps in range(2):
        for j in range(7):
            so = "0" if ps == 0 else "s11"
            vm.issue(('x', ps), f"buffer_load_dwordx4 v[{112+28*ps+4*j}:{115+28*ps+4*j}], v3, s[{SRD_X}:{SRD_X+3}], {so} offen offset:{128*j}")
    a(f"s_cmp_gt_u32 s{S_WAVE}, 1")
    a("s_cbranch_scc1 L_h_noreset")
    a(f"s_cmp_eq_u32 s{S_WAVE}, 0")
    a("s_cselect_b32 s11, -1, 0")
    a("s_mov_b32 s12, 1024")
    a("s_cmov_b32 s12, 896")
    a(f"s_mov_b32 s13, {WS_FLAG:#x}")
    a(f"s_cmov_b32 s13, {WS_AGG:#x}")
    a("s_mul_i32 s14, s12, s72")
    a("s_add_u32 s13, s13, s14")
    for k in range(4): a(f"v_mov_b32 v{8+k}, s11")
    a("v_lshlrev_b32 v12, 4, v0")
    a("v_cmp_gt_u32 vcc, s12, v12")
    a("s_and_saveexec_b64 s[14:15], vcc")
    a(f"buffer_store_dwordx4 v[8:11], v12, s[{SRD_WS}:{SRD_WS+3}], s13 offen sc1")
    a("s_mov_b64 exec, s[14:15]")
    a.label("L_h_noreset")
    h_open()
    a("v_lshlrev_b32 v2, 3, v2")
    a("s_mov_b32 s12, 0xffff0000")
    def fin(dst):
        a("v_add_f32 v8, v8, v9")
        a("v_add_f32 v10, v10, v11")
        a(f"v_add_f32 v{dst}, v8, v10")
        a(f"v_add_f32_dpp v{dst}, v{dst}, v{dst} quad_perm:[1,0,3,2] row_mask:0xf bank_mask:0xf")
        a(f"v_add_f32_dpp v{dst}, v{dst}, v{dst} quad_perm:[2,3,0,1] row_mask:0xf bank_mask:0xf")
        a(f"v_add_f32_dpp v{dst}, v{dst}, v{dst} row_half_mirror row_mask:0xf bank_mask:0xf")
        a(f"v_mul_f32 v{dst}, 0x3b124925, v{dst}")
    for ps in range(2):
        vm.wait(('x', ps))
        if cfg.hdelay == 2 + ps: a("s_barrier")
        src = 112 + 28 * ps
        for k in range(28):
            a(f"v_lshlrev_b32 v{48+2*k}, 16, v{src+k}")
            a(f"v_and_b32 v{49+2*k}, s12, v{src+k}")
        a("v_pk_add_f32 v[8:9], v[48:49], v[52:53]")
        a("v_pk_add_f32 v[10:11], v[50:51], v[54:55]")
        for k in range(4, 28): a(f"v_pk_add_f32 v[{8+2*(k%2)}:{9+2*(k%2)}], v[{8+2*(k%2)}:{9+2*(k%2)}], v[{48+2*k}:{49+2*k}]")
        fin(12)
        for k in range(28): a(f"v_pk_add_f32 v[{48+2*k}:{49+2*k}], v[{48+2*k}:{49+2*k}], v[12:13] op_sel_hi:[1,0] neg_lo:[0,1] neg_hi:[0,1]")
        for k in range(2): a(f"v_pk_mul_f32 v[{8+2*k}:{9+2*k}], v[{48+2*k}:{49+2*k}], v[{48+2*k}:{49+2*k}]")
        for k in range(2, 28): a(f"v_pk_fma_f32 v[{8+2*(k%2)}:{9+2*(k%2)}], v[{48+2*k}:{49+2*k}], v[{48+2*k}:{49+2*k}], v[{8+2*(k%2)}:{9+2*(k%2)}]")
        fin(13)
        o = 14 + 2 * ps
        round_bf16(a, o, 12)
        round_bf16(a, 13, 13)
        a("v_add_f32 v13, 0x3727c5ac, v13")
        round_bf16(a, 13, 13)
        a("v_sqrt_f32 v13, v13")
        round_bf16(a, 13, 13)
        a(f"v_rcp_f32 v{o+1}, v13")
        a("v_cmp_eq_u32 vcc, 0, v4")
        a("s_and_saveexec_b64 s[14:15], vcc")
        a(f"s_mov_b32 s11, {WS_STATS:#x}")
        vm.issue('st', f"buffer_store_dwordx2 v[{o}:{o+1}], v2, s[{SRD_WS}:{SRD_WS+3}], s11 offen offset:{64*ps} sc1")
        a("s_mov_b64 exec, s[14:15]")
    a("s_waitcnt vmcnt(0)")
    h_signal("a")
    ts(1)
    ts.x(3, 1)
    ts.dump(8, 9)
    a("s_endpgm")
    a.label("L_h_pf")
    a("v_lshlrev_b32 v2, 4, v0")
    a(f"s_lshl_b32 s11, s{S_W4}, 10")
    a("v_add_u32 v2, s11, v2")
    if cfg.cpf == 1:
        a("s_getpc_b64 s[60:61]")
        a.label("L_pc")
        a(f"s_sub_u32 s60, s60, L_pc-{KNAME}")
        a("s_subb_u32 s61, s61, 0")
        a("s_lshl_b32 s11, s73, 12")
        a("v_add_u32 v3, s11, v2")
        for k in range(2):
            a(f"v_min_u32 v4, L_exit-{KNAME}-12, v3")
            a(f"global_load_dwordx4 v[24:27], v4, s[60:61]")
            a(f"v_add_u32 v3, 16384, v3")
    a("s_waitcnt lgkmcnt(0)")
    if cfg.hdelay == 1: a("s_waitcnt vmcnt(0)")
    if cfg.hdelay >= 2: a("s_barrier")
    srd(a, SRD_WS, P_WS, WS_SIZE)
    a("s_lshl_b32 s60, s72, 2")
    a(f"s_add_u32 s60, s60, s{S_W4}")
    a("s_cmp_ge_u32 s60, 98")
    a("s_cbranch_scc1 L_h_nopack1")
    a("s_mul_i32 s61, s60, 37")
    a("s_lshr_b32 s61, s61, 8")
    a("s_mul_i32 s62, s61, 7")
    a("s_sub_u32 s62, s60, s62")
    a("s_cmp_lt_i32 s62, 0")
    a("s_cselect_b32 s11, 1, 0")
    a("s_sub_u32 s61, s61, s11")
    a("s_mul_i32 s62, s61, 7")
    a("s_sub_u32 s62, s60, s62")
    a("s_bitcmp1_b32 s61, 0")
    srd_sel(a, 68, P_CIM, P_CRE, 448 * 896)
    a("v_lshrrev_b32 v3, 3, v0")
    a("v_and_b32 v4, 7, v0")
    a("v_lshrrev_b32 v5, 1, v3")
    a("v_xor_b32 v4, v4, v5")
    a("s_lshr_b32 s11, s61, 1")
    a("s_lshl_b32 s11, s11, 6")
    a("v_add_u32 v3, s11, v3")
    a("v_mul_u32_u24 v3, 896, v3")
    a("v_lshl_add_u32 v3, v4, 4, v3")
    a("v_xor_b32 v4, 64, v3")
    a(f"s_lshl_b32 s63, s{S_W4}, 13")
    a("s_lshl_b32 s12, s62, 7")
    for n in range(8):
        a(f"s_add_u32 m0, s63, {n*1024}")
        a(f"s_add_u32 s11, s12, {8*n*896}")
        a(f"buffer_load_dwordx4 v{3 + (n & 1)}, s[68:71], s11 offen lds")
    a.label("L_h_nopack1")
    h_open()
    def h_sweep():
        if cfg.hpf:
            for (ptr, nbytes, srdn) in ((P_WD, 1792 * 896, 56),):
                srd(a, srdn, ptr, nbytes)
            def sweep(name, srds, qbytes, first, count):
                n8 = -(-qbytes // (8 * 4096))
                n = 8 * n8
                a(f"s_mul_i32 s12, s73, {qbytes}")
                a(f"s_add_u32 s13, s{S_XCD}, {first}")
                a("s_and_b32 s13, s13, 7")
                a(f"s_mul_i32 s13, s13, {n8}")
                a("s_mov_b32 s14, 0")
                a.label(name)
                a("s_lshl_b32 s11, s13, 12")
                a("s_add_u32 s11, s11, s12")
                for k, sr in enumerate(srds):
                    a(f"buffer_load_dwordx4 v[{16+4*k}:{19+4*k}], v2, s[{sr}:{sr+3}], s11 offen")
                a("s_add_u32 s13, s13, 1")
                a(f"s_cmp_eq_u32 s13, {n}")
                a("s_cselect_b32 s13, 0, s13")
                a("s_add_u32 s14, s14, 1")
                a(f"s_cmp_lt_u32 s14, {n8 * count}")
                a(f"s_cbranch_scc1 {name}")
            sweep("L_h_p2", [56], 1792 * 896 // 4, 0, 1)
            ts(2)
    def h_pack():
        a("s_cmp_ge_u32 s60, 98")
        a("s_cbranch_scc1 L_h_nopack2")
        a("v_and_b32 v5, 31, v0")
        a("v_lshrrev_b32 v6, 5, v0")
        a("v_bfe_u32 v7, v0, 1, 3")
        a("v_xor_b32 v7, v7, v6")
        a("v_lshlrev_b32 v7, 4, v7")
        a("v_lshl_add_u32 v5, v5, 7, v7")
        a("v_add_u32 v5, s63, v5")
        a("v_lshlrev_b32 v6, 4, v0")
        a("s_mul_i32 s12, s61, 28")
        a("s_lshl_b32 s11, s62, 2")
        a("s_add_u32 s12, s12, s11")
        a("s_lshl_b32 s12, s12, 11")
        a(f"s_add_u32 s12, s12, {WS_CP:#x}")
        a(f"s_waitcnt vmcnt({13 if (cfg.hpf and not cfg.hord) else 0})")
        for ks in range(4):
            a(f"v_xor_b32 v7, {32*ks}, v5")
            for ct in range(2):
                d = 32 + 8 * ks + 4 * ct
                a(f"ds_read_b128 v[{d}:{d+3}], v7 offset:{4096*ct}")
        for ks in range(4):
            a(f"s_waitcnt lgkmcnt({6 - 2*ks})")
            a(f"s_add_u32 s11, s12, {2048*ks}")
            for ct in range(2):
                d = 32 + 8 * ks + 4 * ct
                a(f"buffer_store_dwordx4 v[{d}:{d+3}], v6, s[{SRD_WS}:{SRD_WS+3}], s11 offen offset:{1024*ct} sc1")
        a("s_waitcnt vmcnt(0)")
        a.label("L_h_nopack2")
        h_signal("b")
        ts(3)
        ts.x(3, 1)
    if cfg.hord: h_pack(); h_sweep()
    else: h_sweep(); h_pack()
    ts.dump(8, 9)
    a("s_endpgm")

def spin_check(a, name, load_text_list, cond_fn, sleep=1):
    lo, done = a.newlabel(name + "_spin"), a.newlabel(name + "_ok")
    a(f"s_mov_b32 s73, 0")
    a.label(lo)
    cond_fn()
    a(f"s_cbranch_scc1 {done}")
    a("s_add_u32 s73, s73, 1")
    a(f"s_cmp_ge_u32 s73, {SPIN_MAX}")
    a(f"s_cbranch_scc1 {done}")
    a(f"s_sleep {sleep}")
    for t in load_text_list: a(t)
    a("s_waitcnt vmcnt(0)")
    a(f"s_branch {lo}")
    a.label(done)
    a("s_nop 4")

def sspin(a, name, loads, cond_fn, sleep=1):
    lo, done = a.newlabel(name + "_spin"), a.newlabel(name + "_ok")
    a("s_mov_b32 s73, 0")
    a.label(lo)
    for t in loads: a(t)
    a("s_waitcnt lgkmcnt(0)")
    cond_fn()
    a(f"s_cbranch_scc1 {done}")
    a("s_add_u32 s73, s73, 1")
    a(f"s_cmp_lt_u32 s73, {SPIN_MAX}")
    if sleep: a(f"s_sleep {sleep}")
    a(f"s_cbranch_scc1 {lo}")
    a.label(done)

def flag_index(a, d, t, grp):
    a(f"s_mul_i32 s{t}, s{S_NS}, 37")
    a(f"s_lshr_b32 s{t}, s{t}, {8 if grp == 7 else 9}")
    a(f"s_mul_i32 s{t}, s{t}, {32 - grp}")
    a(f"s_add_u32 s{d}, s{t}, s{S_NS}")
    a(f"s_lshl_b32 s{d}, s{d}, 2")

def interleave(a, prim, fill, per):
    fill = list(fill)
    for p in prim:
        p()
        for _ in range(per):
            if fill: a(fill.pop(0))
    for f in fill: a(f)

def p2_rot(a, cfg, d_ffn, d_blk, d_flip):
    if not cfg.rot:
        for d in (d_ffn, d_blk, d_flip): a(f"s_mov_b32 s{d}, 0")
        return
    tab = {2: [0] * 7, 1: list(range(7)), 3: [0, 3, 0, 3, 0, 3, 0], 4: [0, 2, 5, 0, 2, 5, 0], 5: [0, 4, 2, 5, 0, 4, 2], 6: [0, 1, 0, 1, 0, 1, 0], 7: [0, 2, 0, 2, 0, 2, 0]}[cfg.rot]
    word = sum(v << (4 * k) for k, v in enumerate(tab))
    a(f"s_lshl_b32 s11, s{S_NT}, 2")
    a(f"s_lshr_b32 s13, {word:#x}, s11")
    a("s_and_b32 s13, s13, 15")
    a(f"s_and_b32 s11, s{S_SLOT}, 3")
    a("s_lshl_b32 s11, s11, 1")
    a("s_add_u32 s11, s11, s13")
    a("s_cmp_ge_u32 s11, 7")
    a("s_cselect_b32 s13, 7, 0")
    a(f"s_sub_u32 s{d_ffn}, s11, s13")
    for d in (d_blk, d_flip): a(f"s_mov_b32 s{d}, 0")

def slot(reg, n): return R[reg] + 2048 * n
SA = [slot(1, n) for n in range(6)]; SB = [slot(2, n) for n in range(6)]; SC = [slot(0, n) for n in range(6)]
WSLOT = {}
for n in range(6): WSLOT[n] = SA[n]; WSLOT[6 + n] = SB[n]
for n in range(4): WSLOT[12 + n] = SC[n]; WSLOT[16 + n] = SA[n]; WSLOT[20 + n] = SB[n]
WSLOT.update({24: SA[4], 25: SA[5], 26: SB[4], 27: SB[5]})
HTS = SC[4]
PH1, PH2, GA, FXA, SD = SC[0], SC[4], SB[0], SA[0], SC[0]

class Rec:
    def __init__(self): self.L = []
    def __call__(self, t): self.L.append(t)

def ssm_park(kc, K, KP, sQ):
    LR, LI, CR, CI, L16R, L16I, PWR, PWI, L64R, L64I, LWR, LWI, W0R = [KP + k for k in range(13)]
    vTW, vTR, vCB = KP + 16, KP + 17, KP + 18
    ssm_const_calc(kc, K, LR, LI, CR, CI)
    csq(kc, L16R, L16I, LR, LI, K)
    for _ in range(3): csq(kc, L16R, L16I, L16R, L16I, K)
    def powsel(dr, di, br, bi, bit, src):
        cmul(kc, K + 1, K + 2, dr, di, br, bi)
        kc(f"v_and_b32 v{K}, {bit}, v{src}")
        kc(f"v_cmp_ne_u32 vcc, 0, v{K}")
        kc(f"v_cndmask_b32 v{dr}, v{dr}, v{K+1}, vcc")
        kc(f"v_cndmask_b32 v{di}, v{di}, v{K+2}, vcc")
    kc(f"v_mov_b32 v{PWR}, v{CR}"); kc(f"v_mov_b32 v{PWI}, v{CI}")
    powsel(PWR, PWI, L16R, L16I, 32, 0)
    csq(kc, K + 14, K + 15, L16R, L16I, K)
    powsel(PWR, PWI, K + 14, K + 15, 16, 0)
    csq(kc, L64R, L64I, K + 14, K + 15, K)
    kc(f"v_mov_b32 v{K+10}, s{S_W4}")
    kc(f"v_mov_b32 v{LWR}, 1.0"); kc(f"v_mov_b32 v{LWI}, 0")
    powsel(LWR, LWI, L64R, L64I, 1, K + 10)
    csq(kc, K + 14, K + 15, L64R, L64I, K)
    powsel(LWR, LWI, K + 14, K + 15, 2, K + 10)
    csq(kc, K + 14, K + 15, K + 14, K + 15, K)
    kc(f"v_lshrrev_b32 v{K+10}, 4, v0")
    kc(f"v_sub_u32 v{K+10}, s{S_MT}, v{K+10}")
    kc(f"v_add_u32 v{K+11}, -5, v{K+10}")
    kc(f"v_add_u32 v{K+10}, -1, v{K+10}")
    kc(f"v_mov_b32 v{W0R}, 1.0"); kc(f"v_mov_b32 v{W0R+1}, 0")
    kc(f"v_mov_b32 v{W0R+2}, 1.0"); kc(f"v_mov_b32 v{W0R+3}, 0")
    for b in range(3):
        powsel(W0R, W0R + 1, K + 14, K + 15, 1 << b, K + 10)
        if b < 2: powsel(W0R + 2, W0R + 3, K + 14, K + 15, 1 << b, K + 11)
        if b < 2: csq(kc, K + 14, K + 15, K + 14, K + 15, K)
    kc(f"s_add_u32 s36, s{sQ}, {HTS}")
    kc(f"v_bfe_u32 v{K}, v0, 4, 1")
    kc(f"v_lshrrev_b32 v{K+1}, 5, v0")
    kc(f"v_lshl_add_u32 v{K+2}, v{K}, 1, v{K+1}")
    kc(f"v_and_b32 v{K+3}, 15, v0")
    kc(f"v_and_b32 v{vTW}, 6, v{K+3}")
    kc(f"v_lshlrev_b32 v{vTW}, 4, v{vTW}")
    kc(f"v_lshlrev_b32 v{K+4}, 5, v{K+2}")
    kc(f"v_xor_b32 v{vTW}, v{vTW}, v{K+4}")
    kc(f"v_lshl_add_u32 v{vTW}, v{K+3}, 7, v{vTW}")
    kc(f"v_add_u32 v{vTW}, s36, v{vTW}")
    kc(f"v_lshlrev_b32 v{vCB}, 2, v{K+3}")
    kc(f"v_add_u32 v{vCB}, {C_L + 512}, v{vCB}")
    kc(f"v_bfe_u32 v{K+4}, v0, 2, 2")
    kc(f"v_lshl_add_u32 v{K+5}, v{K+1}, 3, v{K+4}")
    kc(f"v_lshlrev_b32 v{vTR}, 7, v{K+5}")
    kc(f"v_lshrrev_b32 v{K+4}, 1, v{K+4}")
    kc(f"v_xor_b32 v{K+4}, v{K+4}, v0")
    kc(f"v_and_b32 v{K+4}, 1, v{K+4}")
    kc(f"v_lshl_add_u32 v{vTR}, v{K+4}, 5, v{vTR}")
    kc(f"v_lshl_add_u32 v{vTR}, v{K}, 4, v{vTR}")
    kc(f"v_bfe_u32 v{K+4}, v0, 1, 1")
    kc(f"v_lshl_add_u32 v{vTR}, v{K+4}, 3, v{vTR}")
    kc(f"v_add_u32 v{vTR}, s36, v{vTR}")
    kc(f"s_lshl_b32 s36, s{S_W4}, 9")
    kc(f"s_add_u32 s36, s36, {STATS_L}")
    kc(f"v_lshl_add_u32 v{KP+19}, v{K+2}, 7, s36")
    vStS = KP + 19
    vAg, vPr, vF = KP + 20, KP + 21, KP + 22
    kc(f"v_lshlrev_b32 v{vAg}, 3, v{K+3}")
    kc(f"v_lshrrev_b32 v{vPr}, 4, v0")
    kc(f"v_mul_u32_u24 v{vPr}, 3584, v{vPr}")
    kc(f"s_lshl_b32 s36, s{S_NS}, 7")
    kc(f"v_add3_u32 v{vPr}, v{vPr}, v{vAg}, s36")
    kc(f"v_add_u32 v{vAg}, {AGG_L}, v{vAg}")
    kc(f"s_lshl_b32 s36, s{S_MT}, 2")
    kc(f"s_add_u32 s36, s36, s{S_W4}")
    kc("s_lshl_b32 s36, s36, 10")
    flag_index(kc, 37, 38, 14)
    kc("s_add_u32 s36, s36, s37")
    kc(f"s_add_u32 s36, s36, {WS_FLAG + 512:#x}")
    kc(f"v_mov_b32 v{vF}, s36")

def gen_loader(a, cfg, ts):
    a.label("L_loader")
    a("s_setprio 3")
    vm = VM(a)
    vXe, vXo, vW, vB = 1, 2, 3, 4
    vFv, vP, vO, vPQ = 5, 6, 7, 8
    vWd, vCe, vCo, vCh = 9, 10, 11, 12
    vRf, vRh = 13, 14
    vA, vC = 24, 25
    vT = 15
    ACC, CA, RD = 27, 28, 44
    STG = 64
    CF = 144
    SACC = 80
    XRAW = CF + 64
    KP = XRAW + 8
    sGrp = [28, 29, 30, 31, 36, 37, 21]
    SP = ['', ' sc1'][cfg.spol]
    sMX, sMW, sMB, sMP = 72, 74, 75, 70
    sPerm, sSX, sSW = 68, 69, 15
    sRF = 14
    AP = ['', ' sc1', ' sc1 nt', ' sc0 sc1', ' sc0', ' nt'][cfg.apol]
    OP = ['', ' sc1', ' nt', ' sc1 nt'][cfg.opol]
    polx = " nt" if cfg.polx else ""
    polw = " nt" if cfg.polw else ""
    a(f"v_lshrrev_b32 v{vA}, 3, v0")
    a(f"v_and_b32 v{vC}, 7, v0")
    a(f"v_lshrrev_b32 v{vT+2}, 1, v{vA}")
    a(f"s_lshl_b32 s11, s{S_W4}, 4")
    a(f"v_add_u32 v{vT}, s11, v{vA}")
    a(f"v_mul_u32_u24 v{vW}, 3584, v{vT}")
    a(f"v_and_b32 v{vT+4}, 1, v{vT+2}")
    a(f"v_lshlrev_b32 v{vT+4}, 2, v{vT+4}")
    a(f"v_xor_b32 v{vT+4}, v{vC}, v{vT+4}")
    a(f"v_lshl_add_u32 v{vW}, v{vT+4}, 4, v{vW}")
    a(f"s_lshl_b32 s11, s{S_NS}, 7")
    a(f"v_add_u32 v{vW}, s11, v{vW}")
    a(f"s_lshl_b32 s11, s{S_MT}, 8")
    a(f"s_lshl_b32 s12, s{S_W4}, 6")
    a("s_add_u32 s11, s11, s12")
    a(f"v_lshrrev_b32 v{vT}, 2, v{vA}")
    a(f"v_and_b32 v{vT+1}, 3, v{vA}")
    a(f"v_lshl_add_u32 v{vT}, v{vT}, 4, v{vT+1}")
    a(f"v_add_u32 v{vT}, s11, v{vT}")
    a(f"v_mul_u32_u24 v{vXe}, 896, v{vT}")
    a(f"v_xor_b32 v{vT+3}, v{vC}, v{vT+2}")
    a(f"v_lshl_add_u32 v{vXe}, v{vT+3}, 4, v{vXe}")
    a(f"v_xor_b32 v{vXo}, 64, v{vXe}")
    a(f"s_and_b32 s12, s{S_W4}, 1")
    a(f"s_lshl_b32 s11, s{S_NS}, 4")
    a(f"s_lshl_b32 s13, s12, 3")
    a("s_add_u32 s11, s11, s13")
    a(f"v_add_u32 v{vT}, s11, v{vA}")
    a(f"v_mul_u32_u24 v{vB}, 896, v{vT}")
    a(f"v_lshl_add_u32 v{vB}, v{vT+3}, 4, v{vB}")
    a("s_lshl_b32 s13, s12, 6")
    a(f"v_xor_b32 v{vB}, s13, v{vB}")
    a(f"s_lshl_b32 s{sMX}, s{S_W4}, 13")
    a(f"s_lshl_b32 s{sMW}, s{S_W4}, 11")
    a(f"s_lshl_b32 s{sMB}, s{S_W4}, 10")
    a(f"s_mul_i32 s{sMP}, s{S_W4}, {Q}")
    perms = cfg.perms
    words = [sum(p[k] << (4 * k) for k in range(7)) for p in perms]
    ng = len(words)
    a(f"s_mov_b32 s{sPerm}, {words[0]:#x}")
    if ng > 1:
        if cfg.slab:
            a(f"s_add_u32 s11, s{S_SLOT}, s{S_XCD}")
        else:
            a(f"s_and_b32 s11, s{S_SLOT}, 3")
            a(f"s_add_u32 s11, s11, s{S_NT}")
        if ng == 3:
            a("s_mul_i32 s13, s11, 43")
            a("s_lshr_b32 s13, s13, 7")
            a("s_mul_i32 s13, s13, 3")
            a("s_sub_u32 s11, s11, s13")
        else:
            a(f"s_and_b32 s11, s11, {ng-1}")
        for g in range(1, ng):
            a(f"s_cmp_eq_u32 s11, {g}")
            a(f"s_cmov_b32 s{sPerm}, {words[g]:#x}")
    ts.x(1, 1)
    a("s_waitcnt lgkmcnt(0)")
    ts.x(1, 2)
    if cfg.tlb:
        a(f"v_mov_b32 v40, s{P_X}")
        a(f"v_mov_b32 v41, s{P_X+1}")
        for ln, p in enumerate([P_WG, P_WU, P_BRE, P_BIM, P_WD, P_CRE, P_CIM, P_WS][:cfg.tlb], 1):
            a(f"v_writelane_b32 v40, s{p}, {ln}")
            a(f"v_writelane_b32 v41, s{p+1}, {ln}")
        a(f"s_mov_b64 exec, {(1 << (cfg.tlb + 1)) - 1:#x}")
        a("global_load_dword v62, v[40:41], off")
        a("s_mov_b64 exec, -1")
    srd(a, SRD_A, P_WG, 448 * 3584)
    srd(a, SRD_X, P_X, 2048 * 896)
    srd(a, SRD_B, P_WU, 448 * 3584)
    a(f"s_cmp_ge_u32 s{S_W4}, 2")
    srd_sel(a, SRD_C, P_BIM, P_BRE, 448 * 896)

    thr = [None]
    def dma(vm, tag, voff, srdn, sbase, soff, m0base, m0off, pol=""):
        a(f"s_add_u32 m0, s{m0base}, {m0off}")
        a(f"s_add_u32 s11, s{sbase}, {soff}")
        if thr[0] is not None and len(vm.q) > thr[0]:
            a(f"s_waitcnt vmcnt({thr[0]})")
            vm.q = vm.q[-thr[0]:]
        vm.issue(tag, f"buffer_load_dwordx4 v{voff}, s[{srdn}:{srdn+3}], s11 offen{pol} lds")
    def issue_ops(s):
        r = R[s % 3]
        ops = []
        def pre():
            a(f"s_bfe_u32 s{sSX}, s{sPerm}, {(4 << 16) | (4 * s):#x}")
            a(f"s_mul_i32 s{sSW}, s{sSX}, {64*3584}")
            a(f"s_lshl_b32 s{sSX}, s{sSX}, 7")
        def mk(*args): return lambda: dma(vm, ('st', s), *args)
        L = []
        for i in range(2): L.append(mk(vW, SRD_A, sSW, i * 8 * 3584, sMW, r + OFF_WG + i * 1024, polw))
        for j in range(4): L.append(mk(vXo if j & 1 else vXe, SRD_X, sSX, (32 * (j >> 2) + 4 * (j & 3)) * 896, sMX, r + j * 1024, polx))
        for i in range(2): L.append(mk(vW, SRD_B, sSW, i * 8 * 3584, sMW, r + OFF_WU + i * 1024, polw))
        for j in range(4, 8): L.append(mk(vXo if j & 1 else vXe, SRD_X, sSX, (32 * (j >> 2) + 4 * (j & 3)) * 896, sMX, r + j * 1024, polx))
        L.append(mk(vB, SRD_C, sSX, 0, sMB, r + OFF_BB, polw))
        first = L[0]
        L[0] = lambda: (pre(), first())
        return L
    SRD_WD, SRD_CC, sBlk, sFlip, P_DSK2 = 32, 24, 16, 17, 38
    def w_ops(ps):
        L = []
        for p in ps:
            for n in range(2):
                def op(p=p, n=n):
                    if 12 <= p < 22:
                        d = STG + (p - 12) * 8 + 4 * n
                        a(f"s_add_u32 s11, s{sGrp[p//4]}, {((p % 4) * 16 + 8 * n) * 896}")
                        vm.issue(('w', p), f"buffer_load_dwordx4 v[{d}:{d+3}], v{vWd}, s[{SRD_WD}:{SRD_WD+3}], s11 offen")
                    else:
                        dma(vm, ('w', p), vWd, SRD_WD, sGrp[p//4], ((p % 4) * 16 + 8 * n) * 896, sMP, WSLOT[p] + n * 1024)
                L.append(op)
        return L
    sCB = [68, 69, 15]
    sCF, sCH = 16, 17
    def cfrag(p, lc): return CF + 8 * p + 4 * lc
    def c_ops(b):
        L = []
        for p in (range(4 * b, 4 * b + 4) if b < 3 else (12, 13)):
            for lc in range(2):
                def op(p=p, lc=lc):
                    d = cfrag(p, lc)
                    sb, so = (sCF, 2048 * p) if p < 12 else (sCH, 2048 * (p - 12))
                    if cfg.crot and p < 12: sb, so = sCB[p // 4], 2048 * (p % 4)
                    a(f"s_add_u32 s11, s{sb}, {so}")
                    vm.issue(('c', b), f"buffer_load_dwordx4 v[{d}:{d+3}], v{(vCe, vCo)[lc]}, s[{SRD_WS}:{SRD_WS+3}], s11 offen sc1")
                L.append(op)
        return L
    def w_write(ps):
        vm.wait(('w', ps[-1]))
        base = WSLOT[ps[0]]
        a(f"v_add_u32 v{vT+4}, {base}, v{vPQ}")
        for p in ps:
            for n in range(2):
                d = STG + (p - 12) * 8 + 4 * n
                a(f"ds_write_b128 v{vT+4}, v[{d}:{d+3}] offset:{WSLOT[p] - base + 1024*n}")
    def colsum_reads(s):
        r = R[s % 3]
        a(f"s_add_u32 s11, s{sMW}, {r + OFF_WG}")
        a(f"v_add_u32 v{vT}, s11, v{vP}")
        a(f"s_add_u32 s11, s{sMB}, {r + OFF_BB}")
        a(f"v_add_u32 v{vT+1}, s11, v{vP}")
        a(f"ds_read_b128 v[{RD}:{RD+3}], v{vT}")
        a(f"ds_read_b128 v[{RD+4}:{RD+7}], v{vT} offset:1024")
        a(f"ds_read_b128 v[{RD+8}:{RD+11}], v{vT} offset:8192")
        a(f"ds_read_b128 v[{RD+12}:{RD+15}], v{vT} offset:9216")
        a(f"ds_read_b128 v[{RD+16}:{RD+19}], v{vT+1}")
    def colsum_ops():
        L = ["s_waitcnt lgkmcnt(0)"]
        for n in range(4):
            for d in range(4):
                w = RD + 4 * n + d
                ac = CA + (n >> 1) * 8 + 2 * d
                L.append(f"v_lshlrev_b32 v{vT+2}, 16, v{w}")
                L.append(f"v_and_b32 v{vT+3}, s71, v{w}")
                L.append(f"v_add_f32 v{ac}, v{ac}, v{vT+2}")
                L.append(f"v_add_f32 v{ac+1}, v{ac+1}, v{vT+3}")
        for d in range(4):
            w = RD + 16 + d
            L.append(f"v_lshlrev_b32 v{vT+2}, 16, v{w}")
            L.append(f"v_and_b32 v{vT+3}, s71, v{w}")
            L.append(f"v_add_f32 v{vT+2}, v{vT+2}, v{vT+3}")
            L.append(f"v_add_f32 v{ACC}, v{ACC}, v{vT+2}")
        return L

    stage_ops = {}
    cdone = set()
    def tok_ops(toks):
        L = []
        for t in toks:
            if t[0] == 's':
                st = int(t[1])
                if st not in stage_ops: stage_ops[st] = issue_ops(st)
                lo, hi = (0, 13) if ':' not in t else map(int, t.split(':')[1].split('-'))
                L += stage_ops[st][lo:hi]
            elif t[0] == 'w': L += w_ops([int(t[1:])])
            elif t[0] == 'c':
                lo, hi = (0, 8) if ':' not in t else map(int, t.split(':')[1].split('-'))
                L += c_ops(int(t[1]))[lo:hi]
                cdone.add(int(t[1]))
            else: L.append(lambda t=t: special(t))
        return L
    def run_tokens(toks):
        for o in tok_ops(toks): o()
    def special(t):
        if True:
            if t == 'put':
                vm.wait('stats')
                a(f"s_lshl_b32 s11, s{S_W4}, 9")
                a(f"s_add_u32 s11, s11, {STATS_L}")
                a(f"v_lshl_add_u32 v{vT+4}, v0, 3, s11")
                a(f"ds_write_b64 v{vT+4}, v[20:21]")
                a(f"v_lshlrev_b32 v{vT+4}, 3, v0")
                a(f"v_add_u32 v{vT+4}, {ST2_L}, v{vT+4}")
                a(f"ds_write_b64 v{vT+4}, v[22:23]")
            elif t == 'e':
                a(f"s_add_u32 s12, s41, {16*896}")
                vm.issue('e', f"buffer_load_dwordx4 v[{XRAW}:{XRAW+3}], v20, s[{SRD_X}:{SRD_X+3}], s41 offen")
                vm.issue('e', f"buffer_load_dwordx4 v[{XRAW+4}:{XRAW+7}], v20, s[{SRD_X}:{SRD_X+3}], s12 offen")
                vm.issue('e', f"global_load_ushort v{KP+23}, v21, s[{P_DSK2}:{P_DSK2+1}]")
            elif t == 'm':
                a(f"v_lshlrev_b32 v{vP}, 4, v0")
                a("s_lshl_b32 s12, s2, 2")
                a(f"s_add_u32 s12, s12, s{S_W4}")
                a("s_lshl_b32 s12, s12, 10")
                a(f"s_add_u32 s12, s12, {192*3584}")
                vm.issue('m', f"buffer_load_dwordx4 v[140:143], v{vP}, s[{SRD_A}:{SRD_A+3}], s12 offen")
                vm.issue('m', f"buffer_load_dwordx4 v[140:143], v{vP}, s[{SRD_B}:{SRD_B+3}], s12 offen")
                a(f"s_and_b32 s12, s{S_W4}, 1")
                a("s_lshl_b32 s11, s2, 1")
                a("s_add_u32 s12, s12, s11")
                a("s_lshl_b32 s12, s12, 10")
                vm.issue('m', f"buffer_load_dwordx4 v[140:143], v{vP}, s[{SRD_C}:{SRD_C+3}], s12 offen")
            elif t == 'k':
                a("s_waitcnt lgkmcnt(0)")
            elif t == 'init':
                a(f"v_mov_b32 v26, 0")
                vm.issue('init', f"global_load_dword v5, v26, s[{P_DBG}:{P_DBG+1}] sc1")
            elif t == 'fetch':
                vm.wait('init')
                def cond():
                    a(f"v_readfirstlane_b32 s11, v5")
                    a(f"s_cmp_ge_u32 s11, {INIT_N}")
                spin_check(a, "L_init", [f"global_load_dword v5, v26, s[{P_DBG}:{P_DBG+1}] sc1"], cond, 8)
                if cfg.ts == 1 and cfg.tsset == 3: a(f"s_add_u32 s{TS0+18}, s73, 1")
                if cfg.crot:
                    a(f"s_and_b32 s11, s{S_SLOT}, 3")
                    a("s_lshl_b32 s11, s11, 1")
                    a("s_lshr_b32 s12, 0x924, s11")
                    for b in range(3):
                        a(f"s_bfe_u32 s11, s12, {(2 << 16) | (2 * b):#x}")
                        a("s_lshl_b32 s11, s11, 13")
                        a(f"s_add_u32 s{sCB[b]}, s11, s{sCF}")
                a(f"s_lshl_b32 s11, s{S_MT}, 8")
                a(f"s_lshl_b32 s12, s{S_W4}, 6")
                a("s_add_u32 s11, s11, s12")
                a(f"v_add_lshl_u32 v5, v0, s11, 3")
                a(f"s_lshl_b32 s12, s{S_M64}, 6")
                a(f"v_add_lshl_u32 v26, v0, s12, 3")
                a(f"s_mov_b32 s11, {WS_STATS:#x}")
                vm.issue('stats', f"buffer_load_dwordx2 v[20:21], v5, s[{SRD_WS}:{SRD_WS+3}], s11 offen sc1")
                vm.issue('stats', f"buffer_load_dwordx2 v[22:23], v26, s[{SRD_WS}:{SRD_WS+3}], s11 offen sc1")
            else: raise ValueError(t)
    win = cfg.win
    run_tokens([f"s0:0-{cfg.s0a}"])
    if cfg.s0a == 13:
        ts(1)
        ts.x(1, 6)
        run_tokens(win.get(-1, []))
        a("s_setprio 0")
    a(f"s_and_b32 s12, s{S_W4}, 1")
    a(f"v_lshlrev_b32 v{vP}, 4, v0")
    a(f"v_add_u32 v{vPQ}, s{sMP}, v{vP}")
    a(f"s_mul_i32 s14, s{S_W4}, 448")
    a(f"v_add_u32 v{vT}, s14, v{vA}")
    a(f"v_mul_u32_u24 v{vWd}, 896, v{vT}")
    a(f"v_lshl_add_u32 v{vWd}, v{vT+4}, 4, v{vWd}")
    a(f"s_lshl_b32 s14, s{S_NT}, 7")
    a(f"v_add_u32 v{vWd}, s14, v{vWd}")
    a(f"v_and_b32 v{vT+1}, 3, v0")
    a("s_mov_b32 s71, 0xffff0000")
    for k in range(17): a(f"v_mov_b32 v{ACC+k}, 0")
    srd(a, SRD_WS, P_WS, WS_SIZE)
    a(f"s_mov_b64 s[{P_DSK2}:{P_DSK2+1}], s[{P_DSK}:{P_DSK+1}]")
    srd(a, SRD_WD, P_WD, 1792 * 896)
    p2_rot(a, cfg, sRF, sBlk, sFlip)
    a(f"s_lshl_b32 s11, s{S_M64}, 1")
    a("s_add_u32 s40, s11, s12")
    a("s_lshl_b32 s12, s40, 5")
    a(f"v_lshrrev_b32 v{vT}, 2, v0")
    a(f"v_add_u32 v{vT}, s12, v{vT}")
    a(f"v_mul_u32_u24 v{vT}, 896, v{vT}")
    a(f"v_lshl_add_u32 v20, v{vT+1}, 4, v{vT}")
    a(f"v_lshrrev_b32 v{vT+2}, 5, v0")
    a(f"v_lshl_add_u32 v{vT}, v{vT+2}, 4, s12")
    a(f"s_lshr_b32 s13, s{S_W4}, 1")
    a("s_lshl_b32 s12, s13, 5")
    a(f"s_lshl_b32 s11, s{S_NT}, 6")
    a("s_add_u32 s11, s11, s12")
    a("s_lshl_b32 s41, s11, 1")
    a(f"v_and_b32 v{vT+3}, 31, v0")
    a(f"v_add_u32 v{vT+1}, s11, v{vT+3}")
    a(f"v_mul_u32_u24 v{vT}, 448, v{vT}")
    a(f"v_add_lshl_u32 v{vO}, v{vT}, v{vT+1}, 2")
    a(f"v_lshlrev_b32 v21, 1, v{vT+1}")
    a("s_lshl_b32 s12, s13, 10")
    a(f"v_add_u32 v{vCe}, s12, v{vP}")
    a(f"v_xor_b32 v{vCo}, 1024, v{vCe}")
    a(f"s_lshl_b32 s11, s{S_NT}, 1")
    a("s_add_u32 s11, s11, s13")
    a(f"s_mul_i32 s11, s11, {28*2048}")
    a(f"s_add_u32 s11, s11, {WS_CP:#x}")
    a(f"s_and_b32 s12, s{S_W4}, 1")
    a(f"s_lshl_b32 s{sCF}, s12, 15")
    a(f"s_add_u32 s{sCF}, s{sCF}, s11")
    a(f"s_lshl_b32 s{sCH}, s12, 12")
    a(f"s_add_u32 s{sCH}, s{sCH}, s11")
    a(f"s_add_u32 s{sCH}, s{sCH}, {12*2048}")
    a(f"v_bfe_u32 v{vT}, v0, 4, 1")
    a(f"v_lshlrev_b32 v{vT+1}, 2, v{vT}")
    a(f"v_xor_b32 v{vC}, v{vC}, v{vT+1}")
    a(f"v_lshlrev_b32 v{vC}, 5, v{vC}")
    a(f"v_lshl_add_u32 v{vC}, v{vT}, 9, v{vC}")
    a(f"v_lshl_add_u32 v{vC}, v{vT+2}, 8, v{vC}")
    a(f"s_add_u32 s11, s{sMB}, {CP_L}")
    a(f"v_add_u32 v{vC}, s11, v{vC}")
    a(f"s_lshl_b32 s11, s{S_W4}, 5")
    a(f"s_add_u32 s11, s11, {C_L + 512}")
    a(f"v_lshl_add_u32 v{vA}, v{vA}, 2, s11")
    ts.x(1, 8)
    LR, LI, CR, CI, L16R, L16I, PWR, PWI, L64R, L64I, LWR, LWI, W0R = [KP + k for k in range(13)]
    vTW, vTR, vCB, vStS, vAg, vPr, vF = [KP + k for k in range(16, 23)]
    a(f"s_lshl_b32 s21, s{S_NS}, 7")
    a(f"s_mul_i32 s22, s{S_MT}, 3584")
    a("s_add_u32 s22, s22, s21")
    a(f"s_add_u32 s22, s22, {WS_AGG - AGG_L:#x}")
    a(f"s_mov_b32 s23, {WS_AGG:#x}")
    a(f"s_mov_b32 s20, {WS_AGG + 4*3584:#x}")
    a(f"s_lshl_b32 s18, s{S_M64}, 10")
    a(f"s_and_b32 s11, s{S_W4}, 1")
    a("s_lshl_b32 s11, s11, 7")
    a("s_add_u32 s18, s18, s11")
    a(f"s_add_u32 s18, s18, {WS_FLAG + 512:#x}")
    a(f"s_lshl_b32 s11, s{S_MT}, 2")
    a(f"s_add_u32 s11, s11, s{S_W4}")
    a(f"s_mul_i32 s19, s11, {2*RT_BYTES}")
    a(f"s_lshl_b32 s11, s{S_NS}, 10")
    a("s_add_u32 s19, s19, s11")
    a(f"s_add_u32 s19, s19, {56*1024}")
    for g in range(7):
        a(f"s_add_u32 s12, s{sRF}, {g}")
        a("s_cmp_ge_u32 s12, 7")
        a("s_cselect_b32 s13, 7, 0")
        a("s_sub_u32 s12, s12, s13")
        a(f"s_mul_i32 s{sGrp[g]}, s12, {64*896}")
    a(f"s_add_u32 s11, s{sMX}, {R[2]}")
    a(f"v_add_u32 v{vT+4}, s11, v{vP}")
    kparts = {}
    if cfg.s0a < 13:
        run_tokens([f"s0:{cfg.s0a}-13"])
        ts(1)
        ts.x(1, 6)
        run_tokens(win.get(-1, []))
    a(f"s_setprio {cfg.wprio}")
    for s in range(7):
        vm.wait(('st', s))
        ts.x(2, 1 + s)
        a("s_barrier")
        ts.x(3, 1 + s)
        if s == 0: ts(2)
        if s == 0:
            for k in range(6): a(f"ds_read_b128 v[{KP+4*k}:{KP+4*k+3}], v{vT+4} offset:{1024*k}")
        if s == 6:
            QQ = 28
            for p in range(8): a(f"ds_read_b32 v{QQ+p}, v{vT+1} offset:{512*p}")
            a("s_waitcnt lgkmcnt(0)")
            for p in range(4): a(f"v_add_f32 v{QQ+p}, v{QQ+p}, v{QQ+4+p}")
            a(f"v_add_f32 v{QQ}, v{QQ}, v{QQ+2}")
            a(f"v_add_f32 v{QQ+1}, v{QQ+1}, v{QQ+3}")
            a(f"v_add_f32 v{QQ}, v{QQ}, v{QQ+1}")
            a(f"ds_write_b32 v{vT}, v{QQ}")
            npre = win[6].index("put") + 1 if "put" in win[6] else 2
            pre = tok_ops(win[6][:npre])
            for o in pre: o()
            a("s_waitcnt lgkmcnt(0)")
            a("s_barrier")
            a("s_setprio 0")
            run_tokens(win[6][npre:])
            continue
        segs = [[None, []]]
        for t in win.get(s, []):
            if t.startswith("cs"): segs.append([int(t[2:]), []])
            else: segs[-1][1].append(t)
        for cs, toks in segs:
            fl = []
            if cs is not None:
                vm.wait(('st', cs))
                colsum_reads(cs)
                fl = colsum_ops()
            if cs == 6:
                b = ACC
                for k in range(8): fl.append(f"v_permlane32_swap_b32 v{CA+k}, v{CA+8+k}")
                fl.append(f"v_add_f32_dpp v{b}, v{b}, v{b} quad_perm:[1,0,3,2] row_mask:0xf bank_mask:0xf")
                for k in range(8): fl.append(f"v_add_f32 v{CA+k}, v{CA+k}, v{CA+8+k}")
                fl.append(f"v_add_f32_dpp v{b}, v{b}, v{b} quad_perm:[2,3,0,1] row_mask:0xf bank_mask:0xf")
                for k in range(8): fl.append(f"v_add_f32_dpp v{CA+k}, v{CA+k}, v{CA+k} row_ror:8 row_mask:0xf bank_mask:0xf")
                fl.append(f"v_add_f32_dpp v{b}, v{b}, v{b} row_half_mirror row_mask:0xf bank_mask:0xf")
                fl.append(f"ds_write_b128 v{vC}, v[{CA}:{CA+3}]")
                fl.append(f"ds_write_b128 v{vC}, v[{CA+4}:{CA+7}] offset:16")
                fl.append(f"ds_write_b32 v{vA}, v{b}")
            ops = tok_ops(toks)
            per = max(1, -(-len(fl) // max(1, len(ops))))
            interleave(a, ops, fl, per)
        if s == 5:
            a(f"s_and_b32 s12, s{S_W4}, 1")
            a("s_lshl_b32 s12, s12, 8")
            a(f"v_lshl_add_u32 v{vT}, v0, 2, s12")
            a(f"v_add_u32 v{vT+1}, {CP_L}, v{vT}")
            a(f"v_add_u32 v{vT}, {C_L}, v{vT}")
            a("s_waitcnt lgkmcnt(0)")
            a("s_setprio 3")
    ts.x(2, 8)
    a("s_barrier")
    ts(3)
    ts.x(3, 8)
    a(f"v_add_u32 v{vT+2}, {SD}, v{vPQ}")
    vm.wait(('w', 11), "lgkmcnt(0)")
    a("s_barrier")
    X, Y, ST = 32, 48, CF
    HR, HI, T1, T2, CBR, CBI, G0, G1, QR, QI = 20, 21, 22, 23, 24, 25, 26, 28, 30, 31
    for k in range(8): a(f"ds_read_b128 v[{X+4*k}:{X+4*k+3}], v{vT+2} offset:{1024*k}")
    a(f"ds_read_b32 v{CBR}, v{vCB}")
    a(f"ds_read_b32 v{CBI}, v{vCB} offset:64")
    for k in range(8): a(f"ds_read_b128 v[{ST+4*k}:{ST+4*k+3}], v{vStS} offset:{16*k}")
    a(f"s_setprio {cfg.eprio}")
    a(f"v_lshrrev_b32 v1, 4, v0")
    a(f"v_sub_u32 v1, s{S_MT}, v1")
    a(f"v_cmp_le_i32 s[56:57], 1, v1")
    a(f"v_cmp_le_i32 s[58:59], 5, v1")
    a(f"v_lshlrev_b32 v5, 16, v{KP+23}")
    a(f"v_mov_b32 v3, v{vF}")
    vF = 3
    a("s_waitcnt lgkmcnt(10)")
    for r in range(16): a(f"v_permlane16_swap_b32 v{X+r}, v{Y+r}")
    a("s_waitcnt lgkmcnt(0)")
    side = {}
    for r in range(16):
        if r in side: side[r]()
        m, rs = ST + 2 * r, ST + 2 * r + 1
        a(f"v_fma_f32 v{X+r}, -v{m}, v{CBR}, v{X+r}")
        a(f"v_fma_f32 v{Y+r}, -v{m}, v{CBI}, v{Y+r}")
        a(f"v_mul_f32 v{X+r}, v{X+r}, v{rs}")
        a(f"v_mul_f32 v{Y+r}, v{Y+r}, v{rs}")
        if r >= 1:
            pr, pi = (X, Y) if r == 1 else (HR, HI)
            a(f"v_fma_f32 v{T1}, -v{LI}, v{pi}, v{X+r}")
            a(f"v_fma_f32 v{T2}, v{LI}, v{pr}, v{Y+r}")
            a(f"v_fma_f32 v{HR}, v{LR}, v{pr}, v{T1}")
            a(f"v_fma_f32 v{HI}, v{LR}, v{pi}, v{T2}")
    z = CF
    a(f"v_mov_b32 v{z}, v{HR}"); a(f"v_mov_b32 v{z+1}, v{HI}")
    csq(a, z + 8, z + 9, L16R, L16I, z + 10)
    a(f"v_permlane32_swap_b32 v{HR}, v{z}")
    a(f"v_permlane32_swap_b32 v{HI}, v{z+1}")
    a(f"v_fma_f32 v{z}, -v{L16I}, v{HI}, v{z}")
    a(f"v_fma_f32 v{z+1}, v{L16I}, v{HR}, v{z+1}")
    a(f"v_fmac_f32 v{z}, v{L16R}, v{HR}")
    a(f"v_fmac_f32 v{z+1}, v{L16R}, v{HI}")
    a(f"v_mov_b32 v{z+2}, v{z}"); a(f"v_mov_b32 v{z+3}, v{z+1}")
    a(f"s_lshl_b32 s11, s{S_W4}, 7")
    a(f"v_add_u32 v{z+5}, s11, v{vAg}")
    a(f"v_permlane16_swap_b32 v{z}, v{z+2}")
    a(f"v_permlane16_swap_b32 v{z+1}, v{z+3}")
    a(f"v_fma_f32 v{z+2}, -v{z+9}, v{z+1}, v{z+2}")
    a(f"v_fma_f32 v{z+3}, v{z+9}, v{z}, v{z+3}")
    a(f"v_fmac_f32 v{z+2}, v{z+8}, v{z}")
    a(f"v_fmac_f32 v{z+3}, v{z+8}, v{z+1}")
    a(f"ds_write_b64 v{z+5}, v[{z+2}:{z+3}]")
    a("s_waitcnt lgkmcnt(0)")
    ts.x(2, 9)
    a(f"s_setprio {cfg.lprio}")
    a("s_barrier")
    ts(4)
    E = CF + 16
    for i in range(4): a(f"ds_read_b64 v[{E+2+2*i}:{E+3+2*i}], v{vAg} offset:{128*i}")
    a(f"v_mov_b32 v{E}, 0")
    a(f"v_mov_b32 v{E+1}, 0")
    a(f"v_and_b32 v{z+4}, 16, v0")
    a(f"v_cmp_ne_u32 s[12:13], 0, v{z+4}")
    for i in range(1, 4):
        e, p = E + 2 + 2 * i, E + 2 * i
        a(f"s_waitcnt lgkmcnt({3 - i})")
        a(f"v_fma_f32 v{e}, -v{L64I}, v{p+1}, v{e}")
        a(f"v_fma_f32 v{e+1}, v{L64I}, v{p}, v{e+1}")
        a(f"v_fmac_f32 v{e}, v{L64R}, v{p}")
        a(f"v_fmac_f32 v{e+1}, v{L64R}, v{p+1}")
    a(f"s_cmp_lg_u32 s{S_W4}, 0")
    a("s_cbranch_scc1 L_l_nopub")
    e = E + 8
    a(f"v_cmp_eq_u32 vcc, -1, v{e}")
    a(f"v_mov_b32 v{T1}, 0x7fc00000")
    a(f"v_cndmask_b32 v{e}, v{e}, v{T1}, vcc")
    a("s_mov_b64 exec, 0xffff")
    a(f"buffer_store_dwordx2 v[{e}:{e+1}], v{vAg}, s[{SRD_WS}:{SRD_WS+3}], s22 offen sc1")
    a("s_mov_b64 exec, -1")
    ts(5)
    a.label("L_l_nopub")
    a(f"v_cmp_lt_u32 vcc, 31, v0")
    a(f"v_cndmask_b32 v{z}, 0, v{z}, s[12:13]")
    a(f"v_cndmask_b32 v{z+1}, 0, v{z+1}, s[12:13]")
    a(f"v_fma_f32 v{HR}, -v{L16I}, v{z+1}, v{HR}")
    a(f"v_fma_f32 v{HI}, v{L16I}, v{z}, v{HI}")
    a(f"v_fmac_f32 v{HR}, v{L16R}, v{z}")
    a(f"v_fmac_f32 v{HI}, v{L16R}, v{z+1}")
    a(f"v_cndmask_b32 v{z}, v{z}, v{HR}, vcc")
    a(f"v_cndmask_b32 v{z+1}, v{z+1}, v{HI}, vcc")
    cmul(a, HR, HI, z, z + 1, CR, CI)
    a(f"s_bitcmp1_b32 s{S_W4}, 0")
    a("s_cselect_b64 vcc, -1, 0")
    a(f"v_cndmask_b32 v{QR}, v{E}, v{E+2}, vcc")
    a(f"v_cndmask_b32 v{QI}, v{E+1}, v{E+3}, vcc")
    a(f"v_cndmask_b32 v{T1}, v{E+4}, v{E+6}, vcc")
    a(f"v_cndmask_b32 v{T2}, v{E+5}, v{E+7}, vcc")
    a(f"s_bitcmp1_b32 s{S_W4}, 1")
    a("s_cselect_b64 vcc, -1, 0")
    a(f"v_cndmask_b32 v{QR}, v{QR}, v{T1}, vcc")
    a(f"v_cndmask_b32 v{QI}, v{QI}, v{T2}, vcc")
    ts.x(2, 10)
    thr[0] = cfg.thr
    lds = [f"buffer_load_dwordx2 v[{G0}:{G0+1}], v{vPr}, s[{SRD_WS}:{SRD_WS+3}], s23 offen sc1",
           f"buffer_load_dwordx2 v[{G1}:{G1+1}], v{vPr}, s[{SRD_WS}:{SRD_WS+3}], s20 offen sc1"]
    up = Rec()
    for r in range(16):
        up(f"v_mul_f32 v{T1}, v{CI}, v{Y+r}")
        up(f"v_mul_f32 v{T2}, v{CI}, v{X+r}")
        up(f"v_fma_f32 v{X+r}, v{CR}, v{X+r}, -v{T1}")
        up(f"v_fma_f32 v{Y+r}, v{CR}, v{Y+r}, v{T2}")
    vRd, vOne = 4, 2
    a(f"s_lshl_b32 s11, s{S_W4}, 2")
    a(f"s_add_u32 s11, s11, {CNT_L + 16}")
    a(f"v_mov_b32 v{vRd}, s11")
    a(f"v_mov_b32 v{vOne}, 1")
    thr[0] = None
    co = w_ops(range(22, 28)) + (c_ops(0) if cfg.c0early else [])
    interleave(a, co[:cfg.c1], up.L, 4)
    if cfg.agpos == 0:
        for t in lds: vm.issue('ag', t)
    w_write([12, 13, 14, 15])
    a(f"ds_write_b32 v{vRd}, v{vOne}")
    XV, STT, DS = 64, 80, 5
    TT = SACC + 32
    vHW = 1
    a(f"v_add_u32 v{vHW}, {HTS}, v{vPQ}")
    a(f"ds_write_b128 v{vHW}, v[{XRAW}:{XRAW+3}]")
    a(f"ds_write_b128 v{vHW}, v[{XRAW+4}:{XRAW+7}] offset:1024")
    a(f"v_lshrrev_b32 v{vT+3}, 5, v0")
    a(f"v_lshlrev_b32 v{vT+2}, 10, v{vT+3}")
    a(f"v_and_b32 v{vT}, 31, v0")
    a(f"v_lshl_add_u32 v{vT+2}, v{vT}, 1, v{vT+2}")
    a(f"s_add_u32 s11, s{sMP}, {HTS}")
    a(f"v_add_u32 v{vT+2}, s11, v{vT+2}")
    for r in range(16): a(f"ds_read_u16 v{XV+r}, v{vT+2} offset:{64*r}")
    if cfg.agpos == 1:
        for t in lds: vm.issue('ag', t)
    w_write([16, 17])
    def wrest():
        w_write([18, 19])
        w_write([20, 21])
        a(f"v_mov_b32 v{T1}, 2")
        a(f"ds_write_b32 v{vRd}, v{T1}")
    if not cfg.wl: wrest()
    co = co[cfg.c1:]
    ts(8)
    vm.wait('ag')
    def cond():
        a(f"v_cmp_eq_u32 vcc, -1, v{G0}")
        a("s_and_b64 s[48:49], vcc, s[56:57]")
        a(f"v_cmp_eq_u32 vcc, -1, v{G1}")
        a("s_and_b64 s[50:51], vcc, s[58:59]")
        a("s_or_b64 s[48:49], s[48:49], s[50:51]")
        a("s_cmp_eq_u64 s[48:49], 0")
    spin_check(a, "L_agg", lds, cond, 2)
    ts(6)
    SR, SI = CBR, CBI
    cmul(a, SR, SI, G0, G0 + 1, W0R, W0R + 1)
    cmul(a, T1, T2, G1, G1 + 1, W0R + 2, W0R + 3)
    a(f"v_cndmask_b32 v{SR}, 0, v{SR}, s[56:57]")
    a(f"v_cndmask_b32 v{SI}, 0, v{SI}, s[56:57]")
    a(f"v_cndmask_b32 v{T1}, 0, v{T1}, s[58:59]")
    a(f"v_cndmask_b32 v{T2}, 0, v{T2}, s[58:59]")
    a(f"v_add_f32 v{SR}, v{SR}, v{T1}")
    a(f"v_add_f32 v{SI}, v{SI}, v{T2}")
    for sw in ("v_permlane32_swap_b32", "v_permlane16_swap_b32"):
        a(f"v_mov_b32 v{T1}, v{SR}")
        a(f"v_mov_b32 v{T2}, v{SI}")
        a(f"{sw} v{SR}, v{T1}")
        a(f"{sw} v{SI}, v{T2}")
        a(f"v_add_f32 v{SR}, v{SR}, v{T1}")
        a(f"v_add_f32 v{SI}, v{SI}, v{T2}")
    a(f"v_fmac_f32 v{QR}, v{LWR}, v{SR}")
    a(f"v_fmac_f32 v{QI}, v{LWR}, v{SI}")
    a(f"v_fma_f32 v{QR}, -v{LWI}, v{SI}, v{QR}")
    a(f"v_fmac_f32 v{QI}, v{LWI}, v{SR}")
    a(f"v_fmac_f32 v{HR}, v{PWR}, v{QR}")
    a(f"v_fmac_f32 v{HI}, v{PWR}, v{QI}")
    a(f"v_fma_f32 v{HR}, -v{PWI}, v{QI}, v{HR}")
    a(f"v_fmac_f32 v{HI}, v{PWI}, v{QR}")
    pr, pi = HR, HI
    PK, HF = 96, 80
    rest = co[:cfg.c2]
    for r in range(16):
        if rest: rest.pop(0)()
        a(f"v_fma_f32 v{X+r}, -v{LI}, v{pi}, v{X+r}")
        a(f"v_fma_f32 v{Y+r}, v{LI}, v{pr}, v{Y+r}")
        a(f"v_fmac_f32 v{X+r}, v{LR}, v{pr}")
        a(f"v_fmac_f32 v{Y+r}, v{LR}, v{pi}")
        pr, pi = X + r, Y + r
    for k in range(8):
        a(f"v_cvt_pk_bf16_f32 v{PK+k}, v{X+2*k}, v{X+2*k+1}")
    a(f"ds_write_b128 v{vTW}, v[{PK}:{PK+3}]")
    a(f"ds_write_b128 v{vTW}, v[{PK+4}:{PK+7}] offset:16")
    for k in range(8):
        a(f"v_cvt_pk_bf16_f32 v{PK+8+k}, -v{Y+2*k}, -v{Y+2*k+1}")
    a(f"ds_write_b128 v{vTW}, v[{PK+8}:{PK+11}] offset:2048")
    a(f"ds_write_b128 v{vTW}, v[{PK+12}:{PK+15}] offset:2064")
    for q in range(2):
        for part in range(2):
            for j in range(2):
                d = HF + 8 * q + 4 * part + 2 * j
                a(f"ds_read_b64_tr_b16 v[{d}:{d+1}], v{vTR} offset:{(part*16 + 4*j)*128 + 64*(q ^ j)}")
    assert not rest
    a("s_waitcnt lgkmcnt(0)")
    for q in range(2):
        for part in range(2):
            d = HF + 8 * q + 4 * part
            a(f"s_add_u32 s11, s19, {q*RT_BYTES + part*HALF_BYTES}")
            vm.issue('hs', f"buffer_store_dwordx4 v[{d}:{d+3}], v{vP}, s[{SRD_WS}:{SRD_WS+3}], s11 offen{SP}")
    if cfg.wl: wrest()
    def flag2():
        vm.wait('hs')
        a("s_mov_b64 exec, 1")
        vm.issue('f', f"buffer_store_dword v{vOne}, v{vF}, s[{SRD_WS}:{SRD_WS+3}], 0 offen sc1")
        a("s_mov_b64 exec, -1")
        ts(7)
    if cfg.f2b == 0: flag2()
    for o in co[cfg.c2:] + (c_ops(2) if not cfg.clate else []): o()
    if cfg.f2b == 1: flag2()
    a(f"s_and_b32 s11, s{S_W4}, 1")
    a("s_lshl_b32 s11, s11, 8")
    a(f"s_add_u32 s11, s11, {ST2_L}")
    a(f"v_lshl_add_u32 v{vT+3}, v{vT+3}, 7, s11")
    STT = 32
    for k in range(8): a(f"ds_read_b128 v[{STT+4*k}:{STT+4*k+3}], v{vT+3} offset:{16*k}")
    for r in range(16): a(f"v_lshlrev_b32 v{XV+r}, 16, v{XV+r}")
    a("s_waitcnt lgkmcnt(0)")
    a("s_setprio 0")
    def rnd_pair(r0, r1):
        a(f"v_cvt_pk_bf16_f32 v{r1}, v{r0}, v{r1}"); a(f"v_lshlrev_b32 v{r0}, 16, v{r1}"); a(f"v_and_b32 v{r1}, s71, v{r1}")
    for r in range(16): a(f"v_sub_f32 v{TT+r}, v{XV+r}, v{STT+2*r}")
    for k in range(8): rnd_pair(TT + 2 * k, TT + 2 * k + 1)
    a(f"v_mov_b32 v{T2}, 3")
    vm.wait(('w', 27))
    a(f"ds_write_b32 v{vRd}, v{T2}")
    for r in range(16): a(f"v_mul_f32 v{TT+r}, v{TT+r}, v{STT+2*r+1}")
    for k in range(8): rnd_pair(TT + 2 * k, TT + 2 * k + 1)
    for r in range(16): a(f"v_mul_f32 v{TT+r}, v{TT+r}, v{DS}")
    for k in range(8): rnd_pair(TT + 2 * k, TT + 2 * k + 1)
    def poll(name, off):
        sspin(a, name, [f"s_load_dwordx16 s[20:35], s[{P_WS}:{P_WS+1}], s18 glc"], pcond, cfg.psleep)
    if True:
        def pcond():
            for k in range(0, 12, 4): a(f"s_and_b64 s[{20+k}:{21+k}], s[{20+k}:{21+k}], s[{22+k}:{23+k}]")
            a("s_and_b64 s[20:21], s[20:21], s[24:25]")
            a("s_and_b64 s[28:29], s[28:29], s[32:33]")
            a("s_and_b64 s[20:21], s[20:21], s[28:29]")
            a("s_and_b32 s20, s20, s21")
            a("s_cmp_eq_u32 s20, 1")
    a(f"s_mul_i32 s57, s40, {RT_BYTES}")
    a("s_xor_b32 s11, s40, 1")
    a(f"s_mul_i32 s56, s11, {RT_BYTES}")
    a(f"s_lshr_b32 s11, s{S_W4}, 1")
    a(f"s_mul_i32 s11, s11, {HALF_BYTES}")
    a(f"s_add_u32 s11, s11, {56*1024}")
    a("s_add_u32 s56, s56, s11")
    a("s_add_u32 s57, s57, s11")
    a(f"s_and_b32 s12, s{S_W4}, 1")
    a("s_lshl_b32 s13, s12, 14")
    for b in range(3):
        if cfg.crot:
            a(f"s_sub_u32 s11, s{sCB[b]}, s{sCF}")
            a("s_lshr_b32 s11, s11, 1")
            a(f"s_add_u32 s{52+b}, s13, s11")
        else: a(f"s_add_u32 s{52+b}, s13, {b*4096}")
    a("s_lshl_b32 s12, s12, 11")
    a(f"s_add_u32 s55, s12, {12*1024}")
    srd(a, 60, P_OUT, 2048 * 1792)
    vW1, vW2, vCn, vCv = 1, 2, 9, 4
    vR = [3, 12, 13, 14]
    a(f"v_add_u32 v{vW1}, {PH1}, v{vPQ}")
    a(f"v_add_u32 v{vW2}, {PH2}, v{vPQ}")
    a(f"v_mov_b32 v{vCn}, {CNT_L}")
    for (reg, xr, base) in ((vR[0], 1, PH1), (vR[1], 3, PH1 + 4096), (vR[2], 2, PH2)):
        a(f"s_xor_b32 s11, s{S_W4}, {xr}")
        a(f"s_mul_i32 s11, s11, {Q}")
        a(f"s_add_u32 s11, s11, {base}")
        a(f"v_add_u32 v{reg}, s11, v{vP}")
    a(f"v_add_u32 v{vR[3]}, {GA}, v{vPQ}")
    ts.x(2, 11)
    ts.x(7, 11)
    AR = list(range(16, 64, 4))
    NA = len(AR)
    PO = [4, 5, 6, 7, 12, 13, 0, 1, 2, 3, 8, 9, 10, 11]
    def aload(n):
        lr, p = n // 14, PO[n % 14]
        if p % 4 == 0: a(f"s_add_u32 s58, s{56+lr}, s{52 + p//4}")
        d = AR[n % NA]
        vm.issue(('a', n), f"buffer_load_dwordx4 v[{d}:{d+3}], v{vP}, s[{SRD_WS}:{SRD_WS+3}], s58 offen offset:{(p%4)*1024}{AP}")
    def cnt_wait(name, off):
        a("s_mov_b32 s73, 0")
        a.label(name)
        a("s_waitcnt lgkmcnt(0)")
        a(f"v_readfirstlane_b32 s11, v{vCv}")
        a("s_cmp_ge_u32 s11, 4")
        a(f"s_cbranch_scc1 {name}ok")
        a("s_add_u32 s73, s73, 1")
        a(f"s_cmp_ge_u32 s73, {SPIN_MAX}")
        a(f"s_cbranch_scc1 {name}ok")
        a("s_sleep 1")
        a(f"ds_read_b32 v{vCv}, v{vCn} offset:{off}")
        a(f"s_branch {name}")
        a.label(name + "ok")
        a("s_nop 7")
    assert cfg.clate == 2 and cdone == {1, 3}
    if cfg.gate == 0: poll("L_ps", 128)
    if cfg.gate < 2:
        a(f"ds_read_b32 v{vCv}, v{vCn} offset:4")
        cnt_wait("L_l_c0", 4)
    if cfg.sprio: a(f"s_setprio {cfg.sprio}")
    cc = c_ops(0) + c_ops(2)
    for o in cc[:cfg.c0n]: o()
    if cfg.gate != 0: poll("L_ps", 128)
    ts(9)
    ts.x(7, 1)
    for n in range(6): aload(n)
    for o in cc[cfg.c0n:8]: o()
    for n in range(6, 10): aload(n)
    for o in cc[max(8, cfg.c0n):]: o()
    for n in range(10, NA): aload(n)
    a("s_setprio 0")
    ts.x(7, 2)
    for n in range(28):
        lr, p = n // 14, PO[n % 14]
        vm.wait(('a', n))
        assert ('c', min(p // 4, 3)) not in vm.q
        if n in (0, 7, 14, 21): ts.x(7, 3 + n // 7)
        d = AR[n % NA]
        for lc in (1, 0):
            acc = SACC + 32 * lr + 16 * lc
            c = "0" if (n % 14 == 0 and not (lr == 1 and lc == 0)) else f"v[{acc}:{acc+15}]"
            f = cfrag(p, lc)
            a(f"v_mfma_f32_32x32x16_bf16 v[{acc}:{acc+15}], v[{d}:{d+3}], v[{f}:{f+3}], {c}")
        if n + NA < 28: aload(n + NA)
        if cfg.gate == 2 and n == 14: a(f"ds_read_b32 v{vCv}, v{vCn} offset:4")
        if cfg.gate == 2 and n == 15: cnt_wait("L_l_c0", 4)
        if 16 <= n < 24:
            k = n - 16
            a(f"ds_write_b128 v{vW1}, v[{SACC+4*k}:{SACC+4*k+3}] offset:{1024*k}")
    ts(10)
    ts.x(7, 7)
    ts.x(7, 8)
    for k in range(4):
        a(f"ds_write_b128 v{vW2}, v[{SACC+48+4*k}:{SACC+48+4*k+3}] offset:{1024*k}")
    a("s_waitcnt lgkmcnt(0)")
    ts.x(7, 9)
    a("s_barrier")
    ts(11)
    ts.x(7, 10)
    RX = CF
    for k in range(4):
        for w in range(4):
            a(f"ds_read_b128 v[{RX+16*w+4*k}:{RX+16*w+4*k+3}], v{vR[w]} offset:{1024*k}")
    for k in range(4):
        a(f"s_waitcnt lgkmcnt({12 - 4*k})")
        for r in range(4 * k, 4 * k + 4):
            a(f"v_add_f32 v{TT+r}, v{TT+r}, v{RX+r}")
            a(f"v_add_f32 v{RX+16+r}, v{RX+16+r}, v{RX+32+r}")
        for r in range(4 * k, 4 * k + 4):
            a(f"v_add_f32 v{TT+r}, v{TT+r}, v{RX+16+r}")
        for r in range(4 * k, 4 * k + 4):
            a(f"v_fma_f32 v{XV+r}, v{TT+r}, v{RX+48+r}, v{XV+r}")
            if r % 2 == 0: a(f"s_mov_b32 s11, {r*1792}")
            a(f"buffer_store_dword v{XV+r}, v{vO}, s[60:63], s11 offen offset:{(r%2)*1792}{OP}")
    if cfg.ts:
        a("s_waitcnt vmcnt(0)")
        ts(12)
    if cfg.padto:
        a.label("L_pad")
        a("s_memrealtime s[98:99]")
        a("s_waitcnt lgkmcnt(0)")
        a("s_sub_u32 s98, s98, s100")
        a(f"s_cmp_lt_u32 s98, {cfg.padto}")
        a("s_cbranch_scc1 L_pad")
    ts.dump(16, 17, 1)
    a("s_endpgm")

def gen_consumer(a, cfg, ts):
    if cfg.al >= 2: a.raw(".p2align 12")
    a.label("L_consumer")
    SP = ["", " sc1"][cfg.spol]
    AP = ['', ' sc1', ' sc1 nt', ' sc0 sc1', ' sc0', ' nt'][cfg.apol]
    vm = VM(a)
    XA = [1, 2, 3, 4]; BA = [5, 6, 7, 8]; WA = [9, 10]
    vL16, vStF, vCL, vF, vFl, vSo, vCn, vRd, vWB, vPQ, vOne, MM = 11, 12, 13, 14, 15, 16, 17, 18, 19, 20, 21, 22
    FS = [40, 68]
    ACC = 96
    def G(ft, q): return ACC + 16 * (2 * ft + q)
    def U(ft, q): return ACC + 64 + 16 * (2 * ft + q)
    def S(q): return ACC + 128 + 16 * q
    vI, vH, t0, t1, t2 = 24, 25, 26, 27, 28
    a(f"v_and_b32 v{vI}, 31, v0")
    a(f"v_lshrrev_b32 v{vH}, 5, v0")
    a(f"v_bfe_u32 v{t0}, v0, 1, 3")
    a(f"v_xor_b32 v{t0}, v{t0}, v{vH}")
    a(f"v_lshlrev_b32 v{t0}, 4, v{t0}")
    a(f"v_lshl_add_u32 v{t0}, v{vI}, 7, v{t0}")
    a(f"s_lshl_b32 s11, s{S_W4}, 13")
    for ks in range(4):
        a(f"v_xor_b32 v{t1}, {32*ks}, v{t0}")
        a(f"v_add_u32 v{XA[ks]}, s11, v{t1}")
        a(f"v_add_u32 v{BA[ks]}, {OFF_BB}, v{t1}")
    a(f"v_bfe_u32 v{t0}, v0, 2, 2")
    a(f"v_lshlrev_b32 v{t1}, 7, v{t0}")
    a(f"v_lshrrev_b32 v{t0}, 1, v{t0}")
    a(f"v_lshl_add_u32 v{t1}, v{t0}, 6, v{t1}")
    a(f"v_bfe_u32 v{t0}, v0, 4, 1")
    a(f"v_lshl_add_u32 v{t1}, v{t0}, 5, v{t1}")
    a(f"v_and_b32 v{t2}, 3, v0")
    a(f"v_lshl_add_u32 v{t1}, v{t2}, 3, v{t1}")
    a(f"v_lshl_add_u32 v{WA[0]}, v{vH}, 10, v{t1}")
    a(f"v_add_u32 v{WA[0]}, {OFF_WG}, v{WA[0]}")
    a(f"v_xor_b32 v{WA[1]}, 64, v{WA[0]}")
    a(f"s_mul_i32 s62, s{S_W4}, {Q}")
    a(f"s_lshr_b32 s59, s{S_W4}, 1")
    a(f"s_and_b32 s63, s{S_W4}, 1")
    a("s_lshl_b32 s11, s59, 6")
    a(f"v_lshl_add_u32 v{vWB}, v{vH}, 9, v{t1}")
    a(f"v_xor_b32 v{vWB}, s11, v{vWB}")
    a(f"v_add_u32 v{vWB}, s62, v{vWB}")
    a("s_waitcnt lgkmcnt(0)")
    a(f"s_lshl_b32 s11, s{S_NS}, 5")
    a(f"s_load_dwordx8 s[32:39], s[{P_LRE}:{P_LRE+1}], s11")
    a(f"s_load_dwordx8 s[64:71], s[{P_LDT}:{P_LDT+1}], s11")
    a(f"s_load_dwordx8 s[24:31], s[{P_LIM}:{P_LIM+1}], s11")
    for k in range(4 if cfg.zpeel else 160): a(f"v_mov_b32 v{ACC+k}, 0")
    a(f"v_mov_b32 v{vCn}, {CNT_L}")
    a(f"ds_write_b128 v{vCn}, v[{ACC}:{ACC+3}]")
    a(f"ds_write_b128 v{vCn}, v[{ACC}:{ACC+3}] offset:16")
    a(f"v_bfe_u32 v{t0}, v0, 2, 1")
    a(f"v_lshl_add_u32 v{t0}, v{t0}, 4, v{t2}")
    a(f"v_bfe_u32 v{t1}, v0, 3, 2")
    a(f"v_lshl_add_u32 v{t0}, v{t1}, 2, v{t0}")
    a(f"s_lshl_b32 s11, s{S_W4}, 9")
    a(f"s_add_u32 s11, s11, {STATS_L}")
    a(f"v_lshl_add_u32 v{vStF}, v{t0}, 3, s11")
    a(f"v_lshlrev_b32 v{vL16}, 4, v0")
    a(f"v_add_u32 v{vPQ}, s62, v{vL16}")
    a(f"v_lshlrev_b32 v{vCL}, 4, v{vH}")
    a(f"v_add_u32 v{vCL}, {C_L}, v{vCL}")
    a(f"v_mov_b32 v{vOne}, 1")
    a(f"s_lshl_b32 s11, s{S_W4}, 2")
    a(f"s_add_u32 s11, s11, {CNT_L + 16}")
    a(f"v_mov_b32 v{vRd}, s11")
    a("s_lshl_b32 s11, s63, 8")
    a(f"s_add_u32 s11, s11, {ST2_L}")
    a(f"v_lshl_add_u32 v{vSo}, v{vH}, 7, s11")
    a(f"s_lshl_b32 s13, s{S_MT}, 2")
    a(f"s_add_u32 s13, s13, s{S_W4}")
    a(f"s_mul_i32 s56, s13, {2*RT_BYTES}")
    a(f"s_cmp_ge_u32 s{S_NS}, 14")
    a(f"s_cselect_b32 s11, {HALF_BYTES - 56*1024}, 0")
    a(f"s_lshl_b32 s12, s{S_NS}, 12")
    a("s_add_u32 s11, s11, s12")
    a("s_add_u32 s56, s56, s11")
    a(f"s_add_u32 s57, s56, {RT_BYTES}")
    a("s_lshl_b32 s11, s13, 10")
    flag_index(a, 12, 14, 7)
    a("s_add_u32 s11, s11, s12")
    a(f"s_add_u32 s11, s11, {WS_FLAG:#x}")
    a(f"v_mov_b32 v{vF}, s11")
    a(f"s_lshl_b32 s55, s{S_M64}, 10")
    a(f"s_add_u32 s55, s55, {WS_FLAG:#x}")
    a(f"s_lshl_b32 s11, s{S_W4}, 7")
    a("s_add_u32 s55, s55, s11")
    a(f"s_mul_i32 s12, s59, {HALF_BYTES}")
    a(f"s_mul_i32 s13, s63, {28*1024}")
    a("s_add_u32 s12, s12, s13")
    a(f"s_lshl_b32 s11, s{S_M64}, 1")
    a("s_add_u32 s11, s11, s63")
    a(f"s_mul_i32 s52, s11, {RT_BYTES}")
    a("s_add_u32 s52, s52, s12")
    a("s_xor_b32 s11, s11, 1")
    a(f"s_mul_i32 s51, s11, {RT_BYTES}")
    a("s_add_u32 s51, s51, s12")
    p2_rot(a, cfg, 60, 61, 58)
    a("s_mov_b32 s12, 0x00030003")
    a("s_mov_b32 s13, 0x00030003")
    a("s_waitcnt lgkmcnt(0)")
    K, KP = 40, 64
    for k in range(8):
        a(f"s_lshl_b64 exec, s[12:13], {2*k}")
        for m, sb in enumerate((32, 24, 64)): a(f"v_mov_b32 v{K+m}, s{sb+k}")
    a("s_mov_b64 exec, -1")
    a(f"v_and_b32 v{K+3}, 1, v0")
    a(f"v_lshlrev_b32 v{K+3}, 4, v{K+3}")
    for m in range(3): a(f"v_lshrrev_b32 v{K+m}, v{K+3}, v{K+m}")
    srd(a, SRD_WS, P_WS, WS_SIZE)
    ssm_park(a, K, KP, 62)
    a(f"v_mov_b32 v{KP+23}, 0")
    a(f"s_lshl_b32 s11, s{S_W4}, 13")
    a(f"s_add_u32 s11, s11, {R[2]}")
    a(f"v_add_u32 v{K}, s11, v{vL16}")
    for k in range(6): a(f"ds_write_b128 v{K}, v[{KP+4*k}:{KP+4*k+3}] offset:{1024*k}")
    a("s_waitcnt lgkmcnt(0)")
    ts(1)

    def reads(fs, ks):
        f = FS[fs]
        L = []
        L.append(f"ds_read_b128 v[{f}:{f+3}], v{XA[ks]}")
        L.append(f"ds_read_b128 v[{f+24}:{f+27}], v{BA[ks]}")
        L.append(f"ds_read_b128 v[{f+4}:{f+7}], v{XA[ks]} offset:4096")
        for gu in range(2):
            for ft in range(2):
                for j in range(2):
                    d = f + 8 + 8 * gu + 4 * ft + 2 * j
                    L.append(f"ds_read_b64_tr_b16 v[{d}:{d+1}], v{WA[ft]} offset:{gu*8192 + ks*2048 + j*512}")
        return L
    def mfmas(fs):
        f = FS[fs]
        X = [f, f + 4]; Bf = f + 24
        L = []
        for q in range(2):
            L.append(f"v_mfma_f32_32x32x16_bf16 v[{S(q)}:{S(q)+15}], v[{X[q]}:{X[q]+3}], v[{Bf}:{Bf+3}], v[{S(q)}:{S(q)+15}]")
        for gu in range(2):
            for ft in range(2):
                w = f + 8 + 8 * gu + 4 * ft
                for q in range(2):
                    d = (G, U)[gu](ft, q)
                    L.append(f"v_mfma_f32_32x32x16_bf16 v[{d}:{d+15}], v[{w}:{w+3}], v[{X[q]}:{X[q]+3}], v[{d}:{d+15}]")
        return L
    a("s_setprio 2")
    a("s_mov_b32 s72, 0")
    a("s_mov_b32 s74, 0")
    a("s_barrier")
    ts(2)
    for t in reads(0, 0): a(t)
    need = {0: 9, 1: 8, 2: 6, 4: 4, 6: 2, 8: 0}
    if cfg.zpeel:
        Rd = reads(1, 1)
        issued = 0
        for i, m in enumerate(mfmas(0)):
            if i in need: a(f"s_waitcnt lgkmcnt({min(15, need[i] + issued)})")
            a(m[:m.rindex(", v[")] + ", 0")
            for _ in range(2 if i >= cfg.rdstart else 0):
                if Rd: a(Rd.pop(0)); issued += 1
        a("s_branch L_c_k1")
    a.label("L_c_loop")
    for ks in range(4):
        if ks == 1: a.label("L_c_k1")
        fs = ks & 1
        M = mfmas(fs)
        if ks < 3:
            Rd = reads(1 - fs, ks + 1)
            issued = 0
            for i, m in enumerate(M):
                if i in need: a(f"s_waitcnt lgkmcnt({min(15, need[i] + issued)})")
                a(m)
                for _ in range(2 if i >= cfg.rdstart else 0):
                    if Rd: a(Rd.pop(0)); issued += 1
        else:
            Rd = reads(1 - fs, 0)
            a("s_waitcnt lgkmcnt(9)")
            a(M[0])
            a("s_add_u32 s74, s74, 1")
            a("s_cmp_eq_u32 s74, 3")
            a("s_mov_b32 s75, 53248")
            a(f"s_cmov_b32 s75, {(-106496) & 0xffffffff:#x}")
            a("s_cselect_b32 s74, 0, s74")
            for v in XA + BA[:1]: a(f"v_add_u32 v{v}, s75, v{v}")
            a("s_waitcnt lgkmcnt(8)")
            a(M[1])
            for v in BA[1:] + WA: a(f"v_add_u32 v{v}, s75, v{v}")
            a("s_add_u32 s72, s72, 1")
            a("s_cmp_eq_u32 s72, 6")
            a("s_waitcnt lgkmcnt(0)")
            a(M[2])
            a("s_barrier")
            hist = list(a.hist)
            a("s_cbranch_scc1 L_c_last")
            for m in M[3:]:
                for _ in range(2):
                    if Rd: a(Rd.pop(0))
                a(m)
            a("s_branch L_c_loop")
            a.label("L_c_last")
            a.hist = hist
            Mtail = M[3:]
    lq = []
    def ds_issue(tag, t):
        a(t)
        if t.startswith("ds_"): lq.append(tag)
    def ds_wait(tag):
        idx = max((i for i, t in enumerate(lq) if t == tag), default=None)
        if idx is None: return None
        n = len(lq) - 1 - idx
        del lq[:idx + 1]
        return f"lgkmcnt({min(n, 15)})"
    def dwait(tag):
        w = ds_wait(tag)
        if w: a(f"s_waitcnt {w}")
    UB = [24, 40, 56]
    def ureads(u):
        b, ks = UB[u % 3], u % 4
        L = [f"ds_read_b128 v[{b}:{b+3}], v{XA[ks]}"]
        if u < 8:
            ft = u // 4
            for gu in range(2):
                for j in range(2):
                    d = b + 8 + 4 * gu + 2 * j
                    L.append(f"ds_read_b64_tr_b16 v[{d}:{d+1}], v{WA[ft]} offset:{gu*8192 + ks*2048 + j*512}")
        else:
            L.append(f"ds_read_b128 v[{b+8}:{b+11}], v{BA[ks]}")
        L.append(f"ds_read_b128 v[{b+4}:{b+7}], v{XA[ks]} offset:4096")
        return [(u, t) for t in L]
    def umfma(u):
        b = UB[u % 3]
        L = []
        for q in range(2):
            x = b + 4 * q
            if u < 8:
                for gu in range(2):
                    d = (G, U)[gu](u // 4, q); w = b + 8 + 4 * gu
                    L.append(f"v_mfma_f32_32x32x16_bf16 v[{d}:{d+15}], v[{w}:{w+3}], v[{x}:{x+3}], v[{d}:{d+15}]")
            else:
                L.append(f"v_mfma_f32_32x32x16_bf16 v[{S(q)}:{S(q)+15}], v[{x}:{x+3}], v[{b+8}:{b+11}], v[{S(q)}:{S(q)+15}]")
        return L
    Rd = ureads(0) + ureads(1)
    for m in Mtail:
        for _ in range(2):
            if Rd: ds_issue(*Rd.pop(0))
        a(m)
    CH = 72
    def chalf(p):
        for gu in range(2):
            for k in range(2):
                ds_issue(('c', p), f"ds_read_b128 v[{CH+8*gu+4*k}:{CH+8*gu+4*k+3}], v{vCL} offset:{256*gu + 32*(2*p+k)}")
    def hstore(ft, q, p):
        g = G(ft, q)
        vm.issue('h', f"buffer_store_dwordx4 v[{g+4*p}:{g+4*p+3}], v{vL16}, s[{SRD_WS}:{SRD_WS+3}], s{56+q} offen offset:{(2*ft+p)*1024}{SP}")
    ep = [lambda: dwait(('c', 0)), f"v_xor_b32 v{MM}, 0x80000000, v{MM}", f"v_xor_b32 v{MM+1}, 0x80000000, v{MM+1}"]
    for p in range(2):
        if p: ep.append(lambda: dwait(('c', 1)))
        for q in range(2):
            g, u = G(0, q) + 8 * p, U(0, q) + 8 * p
            for k in range(8): ep.append(f"v_fmac_f32 v{g+k}, v{MM+q}, v{CH+k}")
            for k in range(8): ep.append(f"v_fmac_f32 v{u+k}, v{MM+q}, v{CH+8+k}")
            if q == 1 and p == 0: ep.append(lambda: chalf(1))
            for k in range(8): ep.append(f"v_max_f32 v{g+k}, 0, v{g+k}")
            for k in range(8): ep.append(f"v_mul_f32 v{u+k}, v{u+k}, v{g+k}")
            for k in range(4): ep.append(f"v_cvt_pk_bf16_f32 v{G(0,q)+4*p+k}, v{u+2*k}, v{u+2*k+1}")
            ep.append(lambda q=q, p=p: hstore(0, q, p))
    def fill(n):
        while n > 0 and ep:
            t = ep.pop(0)
            if callable(t): t()
            else: a(t)
            n -= 1
    def cread(tag, dst, off):
        for k in range(4): ds_issue(tag, f"ds_read_b128 v[{dst+4*k}:{dst+4*k+3}], v{vCL} offset:{off + 32*k}")
    for u in range(12):
        dwait(u)
        if u == 11:
            a("s_barrier")
        Rd = ureads(u + 2) if u + 2 < 12 else []
        for i, m in enumerate(umfma(u)):
            a(m)
            for _ in range(2):
                if Rd: ds_issue(*Rd.pop(0))
            if u > 4 or (u == 4 and i >= 1): fill(cfg.fper - 1 if u < 10 else cfg.fper)
        if u == cfg.c2u:
            a("s_barrier")
            ds_issue(('c', 0), f"ds_read_b32 v{MM}, v{vStF}")
            ds_issue(('c', 0), f"ds_read_b32 v{MM+1}, v{vStF} offset:256")
            chalf(0)
        if u == 9: cread('cg', UB[0], 128)
        if u == 10: cread('cu', UB[1], 384)
    ts(3)
    fill(1000)
    dump = [f"ds_write_b128 v{vPQ}, v[{S(0)+4*k}:{S(0)+4*k+3}] offset:{SD + 1024*k}" for k in range(8)]
    WB = {0: [1, 2], 1: [3, 4], 2: [5, 6]}
    for rg in range(3):
        a(f"v_add_u32 v{WB[rg][0]}, {R[rg]}, v{vWB}")
        a(f"v_xor_b32 v{WB[rg][1]}, 64, v{WB[rg][0]}")
    dwait('cu')
    cg, cu = UB[0], UB[1]
    for q in range(2):
        g, u = G(1, q), U(1, q)
        sel = f"op_sel:[{q},0,0] op_sel_hi:[{q},1,1]"
        for p in range(2):
            kr = range(4 * p, 4 * p + 4)
            for k in kr:
                a(f"v_pk_fma_f32 v[{g+2*k}:{g+2*k+1}], v[{MM}:{MM+1}], v[{cg+2*k}:{cg+2*k+1}], v[{g+2*k}:{g+2*k+1}] {sel}")
                if dump: a(dump.pop(0))
            for k in kr:
                a(f"v_pk_fma_f32 v[{u+2*k}:{u+2*k+1}], v[{MM}:{MM+1}], v[{cu+2*k}:{cu+2*k+1}], v[{u+2*k}:{u+2*k+1}] {sel}")
                a(f"v_max_f32 v{g+2*k}, 0, v{g+2*k}")
                a(f"v_max_f32 v{g+2*k+1}, 0, v{g+2*k+1}")
            for k in kr:
                a(f"v_pk_mul_f32 v[{u+2*k}:{u+2*k+1}], v[{u+2*k}:{u+2*k+1}], v[{g+2*k}:{g+2*k+1}]")
            for k in kr:
                a(f"v_cvt_pk_bf16_f32 v{g+k}, v{u+2*k}, v{u+2*k+1}")
            if q == 0 and p == 1:
                a("s_waitcnt lgkmcnt(0)")
                a("s_barrier")
            hstore(1, q, p)
    del lq[:]
    ts(4)
    BR, NB = 160, 12
    def breads(p):
        sl = WSLOT[p]
        rg = max(k for k in range(3) if R[k] <= sl)
        L = []
        for lc in range(2):
            for jj in range(2):
                d = BR + 8 * (p % NB) + 4 * lc + 2 * jj
                L.append(f"ds_read_b64_tr_b16 v[{d}:{d+1}], v{WB[rg][lc]} offset:{sl - R[rg] + jj*1024}")
        return L
    for p in range(NB):
        for t in breads(p): a(t)
    def flag1():
        vm.wait('h')
        a("s_setprio 3")
        a("s_mov_b64 exec, 1")
        vm.issue('f', f"buffer_store_dword v{vOne}, v{vF}, s[{SRD_WS}:{SRD_WS+3}], 0 offen sc1")
        a("s_mov_b64 exec, -1")
        ts(6)
    if cfg.fpre: flag1()
    a("s_waitcnt lgkmcnt(0)")
    a("s_barrier")
    ts(5)
    if not cfg.fpre: flag1()
    AF = 96
    AR = list(range(24, 96, 4))
    NA = len(AR)
    def aload(n):
        p, lr = n // 2, n % 2
        if n % 8 == 0:
            a(f"s_lshl_b32 s11, s60, 12")
            a(f"s_add_u32 s54, s11, s52")
            a(f"s_add_u32 s53, s11, s51")
            a(f"s_add_u32 s60, s60, 1")
            a(f"s_cmp_eq_u32 s60, 7")
            a(f"s_cselect_b32 s60, 0, s60")
        d = AR[n % NA]
        vm.issue(('a', n), f"buffer_load_dwordx4 v[{d}:{d+3}], v{vL16}, s[{SRD_WS}:{SRD_WS+3}], s{54 - lr} offen offset:{(p%4)*1024}{AP}")
    def cond():
        a("s_and_b64 s[16:17], s[16:17], s[18:19]")
        a("s_and_b64 s[16:17], s[16:17], s[20:21]")
        a("s_and_b32 s16, s16, s17")
        a("s_and_b32 s16, s16, s22")
        a("s_cmp_eq_u32 s16, 1")
    sspin(a, "L_pf", [f"s_load_dwordx8 s[16:23], s[{P_WS}:{P_WS+1}], s55 glc"], cond, cfg.fsleep)
    a("s_setprio 2")
    ts(7)
    for n in range(cfg.a0): aload(n)
    nxt = [cfg.a0]
    ts(8)
    def lds_spin(name, vaddr, off, val):
        a("s_mov_b32 s73, 0")
        a.label(name)
        a("s_waitcnt lgkmcnt(0)")
        a("v_readfirstlane_b32 s11, v8")
        a(f"s_cmp_ge_u32 s11, {val}")
        a(f"s_cbranch_scc1 {name}ok")
        a("s_add_u32 s73, s73, 1")
        a(f"s_cmp_ge_u32 s73, {SPIN_MAX}")
        a(f"s_cbranch_scc1 {name}ok")
        a("s_sleep 1")
        a(f"ds_read_b32 v8, v{vaddr} offset:{off}")
        a(f"s_branch {name}")
        a.label(name + "ok")
        del lq[:]
    for p in range(28):
        f = BR + 8 * (p % NB)
        pn = p + cfg.bd
        for lr in range(2):
            n = 2 * p + lr
            w = ds_wait(p) if lr == 0 else None
            vm.wait(('a', n), w or "")
            if n == 0: ts(9)
            if n in (0, 7, 17, 25, 35): ts.x(6, {0: 7, 7: 8, 17: 9, 25: 10, 35: 11}[n])
            if lr == 0 and pn in (12, 16, 22): ds_issue('r', f"ds_read_b32 v8, v{vRd}")
            d = AR[n % NA]
            for lc in range(2):
                acc = AF + 32 * lr + 16 * lc
                c = "0" if p == 0 else f"v[{acc}:{acc+15}]"
                a(f"v_mfma_f32_32x32x16_bf16 v[{acc}:{acc+15}], v[{d}:{d+3}], v[{f+4*lc}:{f+4*lc+3}], {c}")
            for _ in range(2):
                if nxt[0] < 56 and nxt[0] <= n + NA:
                    aload(nxt[0]); nxt[0] += 1
        if pn in (12, 16, 22): lds_spin(f"L_c_r{pn}", vRd, 0, {12: 1, 16: 2, 22: 3}[pn])
        if p == cfg.ksig:
            assert pn > 15
            w = ds_wait(15)
            if w: a(f"s_waitcnt {w}")
            a("s_mov_b64 exec, 1")
            ds_issue('c', f"ds_add_u32 v{vCn}, v{vOne} offset:4")
            a("s_mov_b64 exec, -1")
        if NB <= pn < 28:
            for t in breads(pn): ds_issue(pn, t)
        if p == 24:
            STT = BR + 32
            for k in range(8): ds_issue('st', f"ds_read_b128 v[{STT+4*k}:{STT+4*k+3}], v{vSo} offset:{16*k}")
        if p == 26:
            for x in range(1, 4):
                a(f"s_xor_b32 s11, s{S_W4}, {x}")
                a(f"s_mul_i32 s11, s11, {Q}")
                a(f"s_add_u32 s11, s11, {FXA + (x-1)*4096}")
                a(f"v_add_u32 v{x}, s11, v{vL16}")
            a(f"v_add_u32 v4, {GA}, v{vPQ}")
            a(f"v_add_u32 v5, {FXA}, v{vPQ}")
        if p % 4 == 3: ts.x(4, 1 + p // 4)
    ts(11)
    ts.x(7, 1)
    for x in (2, 1, 3):
        src = AF + 32 * (x & 1) + 16 * (x >> 1)
        for k in range(4):
            a(f"ds_write_b128 v5, v[{src+4*k}:{src+4*k+3}] offset:{(x-1)*4096 + 1024*k}")
    a("s_waitcnt lgkmcnt(12)")
    for r in range(16): a(f"v_mul_f32 v{STT+2*r}, v{STT+2*r+1}, v{STT+2*r+1}")
    a(f"s_mov_b32 s13, {LOG2E ^ 0x80000000:#x}")
    ts.x(7, 2)
    a("s_waitcnt lgkmcnt(0)")
    ts.x(7, 3)
    a("s_mov_b64 exec, 1")
    a(f"ds_add_u32 v{vCn}, v{vOne}")
    a("s_mov_b64 exec, -1")
    a(f"ds_read_b32 v8, v{vCn}")
    lds_spin("L_c_cnt", vCn, 0, 4)
    ts.x(7, 4)
    O, RX, EX = AF, 24, 72
    for k in range(4):
        for x in range(1, 4):
            a(f"ds_read_b128 v[{RX+16*(x-1)+4*k}:{RX+16*(x-1)+4*k+3}], v{x} offset:{1024*k}")
    for k in range(4):
        rr = range(4 * k, 4 * k + 4)
        a(f"s_waitcnt lgkmcnt({9 - 3*k})")
        for r in rr: a(f"v_add_f32 v{O+r}, v{O+r}, v{RX+r}")
        for r in rr: a(f"v_add_f32 v{RX+16+r}, v{RX+16+r}, v{RX+32+r}")
        for r in rr: a(f"v_add_f32 v{O+r}, v{O+r}, v{RX+16+r}")
        for r in rr: a(f"v_mul_f32 v{O+r}, v{O+r}, v{STT+2*r}")
        for r in rr: a(f"v_mul_f32 v{EX+r}, s13, v{O+r}")
        for r in rr: a(f"v_exp_f32 v{EX+r}, v{EX+r}")
    ts.x(7, 5)
    for k in range(4):
        rr = range(4 * k, 4 * k + 4)
        for r in rr: a(f"v_add_f32 v{EX+r}, 1.0, v{EX+r}")
        for r in rr: a(f"v_rcp_f32 v{EX+r}, v{EX+r}")
        for r in rr: a(f"v_mul_f32 v{O+r}, v{O+r}, v{EX+r}")
        a(f"ds_write_b128 v4, v[{O+4*k}:{O+4*k+3}] offset:{1024*k}")
    a("s_waitcnt lgkmcnt(0)")
    ts(12)
    a("s_barrier")
    ts.dump(24, 25, 0)
    a("s_endpgm")

HEADER = """; Fused LayerNorm + S5-SSM scan + ReGLU gate, one launch.
;   224 main workgroups (4 MFMA waves + 4 loader/scan waves) + 32 helper workgroups (row statistics, hand-off reset, C repack).
;   Kernarg: 13 inputs, d_out (+104), d_debug (+112), d_ws (+120).  Produced by a hand-written generator script.
; @launch grid=(256,1,1) block=(512,1,1) lds=163840
.amdgcn_target "amdgcn-amd-amdhsa--gfx950"
.text
.globl {k}
.p2align {al}
.p2align 8
.type {k},@function
{k}:
"""
FOOTER = """.section .rodata,"a"
.p2align 6
.amdhsa_kernel {k}
  .amdhsa_next_free_vgpr 256
  .amdhsa_next_free_sgpr 102
  .amdhsa_accum_offset 256
  .amdhsa_group_segment_fixed_size 0
  .amdhsa_kernarg_size 128
  .amdhsa_user_sgpr_count 2
  .amdhsa_user_sgpr_kernarg_segment_ptr 1
  .amdhsa_system_sgpr_workgroup_id_x 1
  .amdhsa_float_denorm_mode_32 3
.end_amdhsa_kernel
"""

def generate(cfg):
    WSOFF[0] = cfg.wsoff << 20
    a = Asm()
    ts = TS(a, cfg)
    gen_entry(a, cfg, ts)
    gen_loader(a, cfg, ts)
    gen_consumer(a, cfg, ts)
    gen_helper(a, cfg, ts)
    a.label("L_exit")
    a("s_endpgm")
    return HEADER.format(k=KNAME, al=12 if cfg.al else 8) + (f"; wsoff={cfg.wsoff}\n" if cfg.wsoff else "") + a.text() + FOOTER.format(k=KNAME)

if __name__ == "__main__":
    cfg = Cfg()
    out = sys.argv[1]
    for kv in sys.argv[2:]:
        k, v = kv.split("=")
        setattr(cfg, k, int(v))
    open(out, "w").write(generate(cfg))
```

```python
import sys, os
sys.path.insert(0, os.path.dirname(os.path.abspath(__file__)))
from asmlib import Asm, VM

KNAME = "recurrent_scan__ssm_conv_s5__glu_gated_reglu__prompt_kernel"

R = [0, 53248, 106496]
MISC = 159744
OFF_WG, OFF_WU, OFF_BB = 32768, 40960, 49152
CP_L = R[1] + 49152
STATS_L = MISC
C_L = MISC + 2048
CNT_L = MISC + 2688
ST2_L = MISC + 2720
AGG_L = MISC + 3232
Q = 12288

RT_BYTES = 172032
HALF_BYTES = 86016
WS_STATS = 0xB00000
WS_AGG = WS_STATS + 0x4000
WS_FLAG = WS_AGG + 0x8000
INIT_N = 32
WS_CP = 0xB20000
WS_TS = 0xC00000
WS_SIZE = 0x1000000
SPIN_MAX = 1 << 20

S_WAVE, S_XCD, S_SLOT, S_MT, S_NS, S_M64, S_NT, S_W4 = 3, 4, 5, 6, 7, 8, 9, 10
P_X, P_LRE, P_LIM, P_BRE, P_BIM, P_CRE, P_CIM, P_LDT, P_DSK, P_BX, P_WG, P_WU, P_WD, P_OUT, P_DBG, P_WS = [16 + 2 * i for i in range(16)]
SRD_X, SRD_A, SRD_B, SRD_C, SRD_WS, SRD_E = 48, 52, 56, 60, 64, 68
TS0 = 76

LOG2E = 0x3fb8aa3b
LOG2E_LO = 0x32a57060
LN2 = 0x3f317218
INV2PI = 0x3e22f983

class Cfg:
    ts = 0
    tsset = 0
    pd = 16
    perm = 4
    rot = 2
    ssm_early = 0
    schedn = 0
    polx = 0
    apol = 1
    noa = 0
    nob = 0
    rdstart = 1
    polw = 0
    winn = 3
    loc = 1
    ttpos = 1
    pprio = 2
    al = 1
    cpw = 1
    s0a = 8
    zpeel = 1
    ws = 0
    crot = 0
    ipos = 0
    gate = 2
    c0n = 8
    agpos = 0
    c0early = 0
    hord = 1
    clate = 2
    wl = 1
    fper = 6
    c2u = 2
    probe = 0
    pwho = 0
    ponly = -1
    pmask = 0xffff
    wsoff = 0
    kwin = 2
    wprio = 0
    hdelay = 0
    eprio = 0
    c2late = 0
    cpf = 2
    padto = 0
    nocs = 0
    r2pre = 1
    tlb = 0
    bd = 4
    pollw = 24
    c1 = 12
    c2 = 16
    f2b = 1
    wfirst = 1
    @property
    def win(self):
        W = lambda a, b: [f"w{p}" for p in range(a, b)]
        if self.ws:
            m, n1, n2, n3, n4, n5, n6, cp, cs, ep = [int(c) for c in str(self.ws)[1:]]
            assert n1 + n2 + n3 + n4 + n5 + n6 == 10
            pos = [12]
            def take(n):
                r = W(pos[0], pos[0] + n); pos[0] += n; return r
            w = {}
            if m == 2: w[-1] = ["m", "s1:0-3"]; w[0] = ["cs0", "s1:3-13", "k", "s2:0-10"]; w[1] = ["cs1", "s2:10-13", "s3"]
            else: w[-1] = ["s1:0-6"]; w[0] = ["cs0", "s1:6-13", "k", "s2"] + (["m"] if m == 1 else []); w[1] = ["cs1"] + (["m"] if m == 3 else []) + ["s3"]
            w[1] += take(n1)
            w[2] = ["cs2", "s4"] + take(n2)
            w[3] = (["cs3", "s5:0-7", "cs4", "s5:7-13"] if cs == 1 else ["cs3", "s5"]) + take(n3)
            w[4] = {0: ["cs4", "init", "s6:0-7", "cs5", "s6:7-13"], 1: ["init", "s6:0-4", "cs5", "s6:4-13"], 2: ["cs4", "init", "s6"]}[cs] + take(n4)
            w[5] = (["cs5"] if cs == 2 else []) + ["fetch"] + W(0, 4) + ["cs6"] + W(4, 6) + take(n5) + {0: ["c3"], 1: [], 2: ["c3", "c1"], 3: ["c1"]}[cp] + ["put"]
            w[6] = W(6, 12) + take(n6) + {0: ["c1"], 1: ["c3", "c1"], 2: [], 3: ["c3"]}[cp]
            w[ep].append("e")
            if self.ipos:
                w[4].remove("init"); w[4].append("init")
                w[5].remove("fetch"); w[5].remove("put")
                w[5].insert(w[5].index("cs6") + 1, "fetch")
                w[6].insert(2, "put")
            return w
        return [
            {-1: ["s1:0-6"], 0: ["cs0", "s1:6-13", "k", "s2:0-9"], 1: ["cs1", "s2:9-13", "s3", "e"], 2: ["cs2", "s4"] + W(12, 14), 3: ["cs3", "s5"] + W(14, 17),
             4: ["cs4", "init", "s6:0-7", "cs5", "s6:7-13", "w17"], 5: ["fetch"] + W(0, 4) + ["cs6"] + W(4, 6) + W(18, 20) + ["put"], 6: W(6, 12) + W(20, 22)},
            {-1: ["s1:0-6"], 0: ["cs0", "s1:6-13", "k", "s2:0-9"], 1: ["cs1", "s2:9-13", "s3", "e"], 2: ["cs2", "s4"] + W(12, 15), 3: ["cs3", "s5"] + W(15, 18),
             4: ["cs4", "init", "s6"] + W(18, 20), 5: ["cs5", "fetch"] + W(0, 3) + ["cs6"] + W(3, 6) + ["put"], 6: W(6, 12) + W(20, 22)},
            {-1: ["s1:0-6"], 0: ["cs0", "s1:6-13", "k", "s2:0-9"], 1: ["cs1", "s2:9-13", "s3", "e"], 2: ["cs2", "s4"] + W(12, 15), 3: ["cs3", "s5:0-7", "cs4", "s5:7-13", "w15"],
             4: ["init", "s6:0-4", "cs5", "s6:4-13"] + W(16, 19), 5: ["fetch"] + W(0, 4) + ["cs6"] + W(4, 6) + W(19, 22) + ["put"], 6: W(6, 12)},
            {-1: ["s1:0-6"], 0: ["cs0", "s1:6-13", "k", "s2:0-9"], 1: ["cs1", "s2:9-13", "s3", "e"], 2: ["cs2", "s4"] + W(12, 15), 3: ["cs3", "s5"] + W(15, 18),
             4: ["cs4", "init", "s6:0-7", "cs5", "s6:7-13", "w18", "w19"], 5: ["fetch"] + W(0, 4) + ["cs6"] + W(4, 6) + W(20, 22) + ["c3", "put"], 6: W(6, 12) + ["c1"]},
            {-1: ["s1:0-6"], 0: ["cs0", "s1:6-13", "k", "s2:0-9"], 1: ["cs1", "s2:9-13", "s3", "e"], 2: ["cs2", "s4"] + W(12, 14), 3: ["cs3", "s5"] + W(14, 17),
             4: ["cs4", "init", "s6:0-7", "cs5", "s6:7-13", "w17"], 5: ["fetch"] + W(0, 4) + ["cs6"] + W(4, 6) + W(18, 20) + ["put"], 6: W(6, 12) + W(20, 22) + ["c3"]},
            {-1: ["s1:0-6"], 0: ["cs0", "s1:6-13", "k", "s2:0-9"], 1: ["cs1", "s2:9-13", "s3", "e"], 2: ["cs2", "s4"] + W(12, 15), 3: ["cs3", "s5"] + W(15, 19),
             4: ["cs4", "init", "s6:0-7", "cs5", "s6:7-13"] + W(19, 22), 5: ["fetch"] + W(0, 4) + ["cs6"] + W(4, 6) + ["c1", "put"], 6: W(6, 12) + ["c3"]},
            {-1: ["s1:0-6"], 0: ["cs0", "s1:6-13", "k", "s2"], 1: ["cs1", "s3", "e"] + W(12, 14), 2: ["cs2", "s4"] + W(14, 17), 3: ["cs3", "s5"] + W(17, 20),
             4: ["cs4", "init", "s6:0-7", "cs5", "s6:7-13"] + W(20, 22), 5: ["fetch"] + W(0, 4) + ["cs6"] + W(4, 6) + ["c1", "put"], 6: W(6, 12) + ["c3"]},
            {-1: ["s1:0-6"], 0: ["cs0", "s1:6-13", "k", "s2:0-9"], 1: ["cs1", "s2:9-13", "s3", "e"], 2: ["cs2", "s4"] + W(12, 15), 3: ["cs3", "s5:0-7", "cs4", "s5:7-13"] + W(15, 18),
             4: ["init", "s6:0-4", "cs5", "s6:4-13"] + W(18, 22), 5: ["fetch"] + W(0, 4) + ["cs6"] + W(4, 6) + ["c1", "put"], 6: W(6, 12) + ["c3"]},
            {-1: ["s1:0-6"], 0: ["cs0", "s1:6-13", "k", "s2:0-9"], 1: ["cs1", "s2:9-13", "s3", "e"], 2: ["cs2", "s4"], 3: ["cs3", "s5"] + W(12, 16),
             4: ["cs4", "init", "s6:0-7", "cs5", "s6:7-13"] + W(16, 19), 5: ["fetch"] + W(0, 4) + ["cs6"] + W(4, 6) + W(19, 22) + ["c3", "put"], 6: W(6, 12) + ["c1"]},
            {-1: ["s1:0-6"], 0: ["cs0", "s1:6-13", "k", "s2"], 1: ["cs1", "s3", "e"], 2: ["cs2", "s4"] + W(12, 14), 3: ["cs3", "s5"] + W(14, 18),
             4: ["cs4", "init", "s6:0-7", "cs5", "s6:7-13", "w18", "w19"], 5: ["fetch"] + W(0, 4) + ["cs6"] + W(4, 6) + W(20, 22) + ["c3", "put"], 6: W(6, 12) + ["c1"]},
            {-1: ["s1:0-3"], 0: ["cs0", "s1:3-13", "k", "s2:0-8"], 1: ["cs1", "s2:8-13", "s3"], 2: ["cs2", "s4", "e"] + W(12, 14), 3: ["cs3", "s5"] + W(14, 18),
             4: ["cs4", "init", "s6:0-7", "cs5", "s6:7-13", "w18", "w19"], 5: ["fetch"] + W(0, 4) + ["cs6"] + W(4, 6) + W(20, 22) + ["c3", "put"], 6: W(6, 12) + ["c1"]},
            {-1: ["s1:0-6"], 0: ["cs0", "s1:6-13", "k", "s2:0-9"], 1: ["cs1", "s2:9-13", "s3", "e"], 2: ["cs2", "s4"] + W(12, 15), 3: ["cs3", "init", "s5"] + W(15, 18),
             4: ["cs4", "fetch", "s6:0-7", "cs5", "s6:7-13", "w18", "w19"], 5: ["put"] + W(0, 4) + ["cs6"] + W(4, 6) + W(20, 22) + ["c3"], 6: W(6, 12) + ["c1"]},
            {-1: ["m", "s1:0-3"], 0: ["cs0", "s1:3-13", "k", "s2:0-8"], 1: ["cs1", "s2:8-13", "s3", "e"], 2: ["cs2", "s4"] + W(12, 15), 3: ["cs3", "s5"] + W(15, 18),
             4: ["cs4", "init", "s6:0-7", "cs5", "s6:7-13", "w18", "w19"], 5: ["fetch"] + W(0, 4) + ["cs6"] + W(4, 6) + W(20, 22) + ["c3", "put"], 6: W(6, 12) + ["c1"]},
            {-1: ["s1:0-6"], 0: ["cs0", "s1:6-13", "m", "k", "s2:0-9"], 1: ["cs1", "s2:9-13", "s3", "e"], 2: ["cs2", "s4"] + W(12, 15), 3: ["cs3", "s5"] + W(15, 18),
             4: ["cs4", "init", "s6:0-7", "cs5", "s6:7-13", "w18", "w19"], 5: ["fetch"] + W(0, 4) + ["cs6"] + W(4, 6) + W(20, 22) + ["c3", "put"], 6: W(6, 12) + ["c1"]},
            {-1: ["m"], 0: ["cs0", "s1", "k", "s2:0-6"], 1: ["cs1", "s2:6-13", "s3"], 2: ["cs2", "s4", "e"] + W(12, 14), 3: ["cs3", "s5"] + W(14, 18),
             4: ["cs4", "init", "s6:0-7", "cs5", "s6:7-13", "w18", "w19"], 5: ["fetch"] + W(0, 4) + ["cs6"] + W(4, 6) + W(20, 22) + ["c3", "put"], 6: W(6, 12) + ["c1"]},
            {-1: ["s1:0-6"], 0: ["cs0", "s1:6-13", "k", "s2"], 1: ["cs1", "s3"], 2: ["cs2", "s4", "e"], 3: ["cs3", "s5"] + W(12, 16),
             4: ["cs4", "init", "s6:0-7", "cs5", "s6:7-13"] + W(16, 19), 5: ["fetch"] + W(0, 4) + ["cs6"] + W(4, 6) + W(19, 22) + ["c3", "put"], 6: W(6, 12) + ["c1"]},
            {-1: ["s1:0-6"], 0: ["cs0", "s1:6-13", "k", "s2", "m"], 1: ["cs1", "s3"], 2: ["cs2", "s4", "e"], 3: ["cs3", "s5"] + W(12, 16),
             4: ["cs4", "init", "s6:0-7", "cs5", "s6:7-13"] + W(16, 19), 5: ["fetch"] + W(0, 4) + ["cs6"] + W(4, 6) + W(19, 22) + ["c3", "put"], 6: W(6, 12) + ["c1"]},
            {-1: ["m", "s1:0-3"], 0: ["cs0", "s1:3-13", "k", "s2:0-10"], 1: ["cs1", "s2:10-13", "s3"], 2: ["cs2", "s4", "e"], 3: ["cs3", "s5"] + W(12, 16),
             4: ["cs4", "init", "s6:0-7", "cs5", "s6:7-13"] + W(16, 19), 5: ["fetch"] + W(0, 4) + ["cs6"] + W(4, 6) + W(19, 22) + ["c3", "put"], 6: W(6, 12) + ["c1"]},
            {-1: ["s1:0-6"], 0: ["cs0", "s1:6-13", "k", "s2"], 1: ["cs1", "s3"], 2: ["cs2", "s4:0-6"], 3: ["cs3", "s4:6-13", "s5", "e"],
             4: ["cs4", "init", "s6"] + W(12, 16), 5: ["cs5", "fetch"] + W(16, 20) + ["cs6"] + W(0, 6) + ["put"], 6: W(6, 12) + W(20, 22) + ["c3", "c1"]},
            {-1: ["s1"], 0: ["cs0", "k", "s2", "e"], 1: ["cs1", "s3"], 2: ["cs2", "s4", "w12"], 3: ["cs3", "s5"] + W(13, 16),
             4: ["cs4", "init", "s6:0-7", "cs5", "s6:7-13"] + W(16, 19), 5: ["fetch"] + W(0, 4) + ["cs6"] + W(4, 6) + W(19, 22) + ["c3", "put"], 6: W(6, 12) + ["c1"]},
        ][self.winn]
    nw1 = 6
    flagr = -1
    xs = 1
    psleep = 2
    fsleep = 2
    ttper = 2
    f2n = 9
    fpre = 1
    a0 = 18
    sprio = 0
    ksig = 12
    opol = 1
    lprio = 3
    w12early = 0
    slab = 0
    spol = 1
    fpol = 1
    pollr = 4
    nw2 = 16
    thr = 15
    hpf = 2
    ky = 2
    @property
    def perms(self):
        return {
            0: [[0, 1, 2, 3, 4, 5, 6]],
            1: [[0, 1, 2, 3, 4, 5, 6], [1, 2, 0, 4, 5, 3, 6], [2, 0, 1, 5, 3, 4, 6]],
            2: [[0, 1, 2, 3, 4, 5, 6], [1, 0, 3, 2, 5, 4, 6]],
            3: [[0, 1, 2, 3, 4, 5, 6], [1, 0, 4, 5, 6, 2, 3], [0, 1, 6, 2, 3, 4, 5]],
            4: [[0, 1, 2, 3, 4, 5, 6], [1, 2, 0, 4, 6, 3, 5], [2, 0, 1, 5, 6, 3, 4]],
            6: [[0, 1, 2, 3, 4, 5, 6], [1, 2, 0, 3, 4, 5, 6], [2, 0, 1, 3, 4, 5, 6]],
            5: [[0, 1, 2, 3, 4, 5, 6], [1, 2, 3, 0, 5, 6, 4], [2, 3, 0, 1, 6, 4, 5], [3, 0, 1, 2, 4, 5, 6]],
        }[self.perm]

WSOFF = [0]
def srd(a, d, ptr, nbytes):
    if ptr == P_WS and WSOFF[0]:
        a(f"s_add_u32 s{ptr}, s{ptr}, {WSOFF[0]:#x}")
        a(f"s_addc_u32 s{ptr+1}, s{ptr+1}, 0")
    a(f"s_mov_b32 s{d}, s{ptr}")
    a(f"s_and_b32 s{d+1}, s{ptr+1}, 0xffff")
    a(f"s_mov_b32 s{d+2}, {nbytes:#x}")
    a(f"s_mov_b32 s{d+3}, 0x20000")

def srd_sel(a, d, ptr1, ptr0, nbytes):
    a(f"s_cselect_b32 s{d}, s{ptr1}, s{ptr0}")
    a(f"s_cselect_b32 s{d+1}, s{ptr1+1}, s{ptr0+1}")
    a(f"s_and_b32 s{d+1}, s{d+1}, 0xffff")
    a(f"s_mov_b32 s{d+2}, {nbytes:#x}")
    a(f"s_mov_b32 s{d+3}, 0x20000")

class TS:
    def __init__(self, a, cfg):
        self.a, self.on, self.n, self.set = a, cfg.ts, 0, cfg.tsset
        self.cfg = cfg
    def x(self, setno, i):
        if self.on and self.set == setno: self.emit(i)
    def __call__(self, i):
        if self.on and (self.set == 0 or i in (0, 12)): self.emit(i)
    def emit(self, i):
        if self.on == 5 and i not in (0, self.cfg.probe): return
        if self.on:
            assert i < 13
            self.a(f"{'s_memrealtime' if self.on != 2 else 's_memtime'} s[{TS0+2*i}:{TS0+2*i+1}]")
    def init(self):
        if self.on:
            for i in range(1, 13): self.a(f"s_mov_b32 s{TS0+2*i}, 0")
    def dump(self, vt, vt2, who=2):
        if not self.on: return
        a = self.a
        if self.on == 5:
            if who != self.cfg.pwho: return
            lab = a.newlabel("L_probe")
            if self.cfg.ponly >= 0:
                a(f"s_and_b32 s11, s2, {self.cfg.pmask}")
                a(f"s_cmp_lg_u32 s11, {self.cfg.ponly}")
                a(f"s_cbranch_scc1 {lab}_x")
            p = TS0 + 2 * self.cfg.probe
            a("s_waitcnt lgkmcnt(0)")
            a(f"s_sub_u32 s11, s{p}, s{TS0}")
            a(f"s_cmp_eq_u32 s{p}, 0")
            a("s_cselect_b32 s11, 0, s11")
            a("s_lshl_b32 s11, s11, 2")
            a("s_add_u32 s11, s11, 3000")
            a.label(lab)
            a("s_memrealtime s[12:13]")
            a("s_waitcnt lgkmcnt(0)")
            a(f"s_sub_u32 s12, s12, s{TS0}")
            a("s_cmp_lt_u32 s12, s11")
            a(f"s_cbranch_scc1 {lab}")
            a.label(lab + "_x")
            return
        if self.on == 3:
            a("s_waitcnt vmcnt(0) lgkmcnt(0)")
            lab = a.newlabel("L_nod")
            a(f"s_cmp_eq_u32 s{TS0+24}, 0")
            a(f"s_cbranch_scc1 {lab}")
            a(f"s_cmp_lg_u32 s{S_WAVE}, 0")
            a(f"s_cbranch_scc1 {lab}")
            a("s_mov_b64 exec, 1")
            a(f"v_mov_b32 v{vt2}, 0")
            a(f"s_not_b32 s11, s{TS0}")
            a(f"v_mov_b32 v{vt}, s11")
            a(f"global_atomic_umax v{vt2}, v{vt}, s[{P_DBG}:{P_DBG+1}] offset:4 sc1")
            for n, i in enumerate([0, 1, 2, 3, 4, 5, 6, 7, 8, 9, 10, 11, 12]):
                a("s_waitcnt vmcnt(0)")
                a(f"v_mov_b32 v{vt}, s{TS0+2*i}")
                a(f"global_atomic_umax v{vt2}, v{vt}, s[{P_DBG}:{P_DBG+1}] offset:{8+4*n} sc1")
            a("s_waitcnt vmcnt(0)")
            a.label(lab)
            return
        a("s_waitcnt vmcnt(0) lgkmcnt(0)")
        a(f"s_lshl_b32 s11, s2, 9")
        a(f"s_lshl_b32 s12, s{S_WAVE}, 6")
        a("s_add_u32 s11, s11, s12")
        a(f"s_add_u32 s11, s11, {WS_TS:#x}")
        a(f"v_mov_b32 v{vt2}, s11")
        for i in range(13):
            a(f"v_mov_b32 v{vt}, s{TS0+2*i}")
            a(f"buffer_store_dword v{vt}, v{vt2}, s[{SRD_WS}:{SRD_WS+3}], 0 offen offset:{4*i}")
        a("s_waitcnt vmcnt(0)")

def round_bf16(a, dst, src):
    a(f"v_cvt_pk_bf16_f32 v{dst}, v{src}, v{src}")
    a(f"v_lshlrev_b32 v{dst}, 16, v{dst}")

def exp_acc(a, dst, x, t0, t1):
    a(f"s_mov_b32 s36, {LOG2E:#x}")
    a(f"s_mov_b32 s37, {LOG2E_LO:#x}")
    a(f"v_mul_f32 v{t0}, s36, v{x}")
    a(f"v_fma_f32 v{t1}, v{x}, s36, -v{t0}")
    a(f"v_fma_f32 v{t1}, v{x}, s37, v{t1}")
    a(f"v_mul_f32 v{t1}, {LN2:#x}, v{t1}")
    a(f"v_exp_f32 v{dst}, v{t0}")
    a(f"v_fma_f32 v{dst}, v{dst}, v{t1}, v{dst}")

def csq(a, dr, di, sr, si, t):
    a(f"v_mul_f32 v{t}, v{si}, v{si}")
    a(f"v_add_f32 v{di}, v{si}, v{si}")
    a(f"v_mul_f32 v{di}, v{di}, v{sr}")
    a(f"v_fma_f32 v{dr}, v{sr}, v{sr}, -v{t}")

def cmul(a, dr, di, ar, ai, br, bi):
    a(f"v_mul_f32 v{dr}, v{ar}, v{br}")
    a(f"v_mul_f32 v{di}, v{ar}, v{bi}")
    a(f"v_fma_f32 v{dr}, -v{ai}, v{bi}, v{dr}")
    a(f"v_fma_f32 v{di}, v{ai}, v{br}, v{di}")

def ssm_const_load(a, vm, t):
    a(f"v_and_b32 v{t+3}, 15, v0")
    a(f"s_lshl_b32 s11, s{S_NS}, 4")
    a(f"v_add_lshl_u32 v{t+3}, v{t+3}, s11, 1")
    vm.issue('sc', f"global_load_ushort v{t}, v{t+3}, s[{P_LRE}:{P_LRE+1}]")
    vm.issue('sc', f"global_load_ushort v{t+1}, v{t+3}, s[{P_LIM}:{P_LIM+1}]")
    vm.issue('sc', f"global_load_ushort v{t+2}, v{t+3}, s[{P_LDT}:{P_LDT+1}]")

def ssm_const_calc(a, t, lr, li, cr=None, ci=None):
    for k in range(3): a(f"v_lshlrev_b32 v{t+k}, 16, v{t+k}")
    exp_acc(a, t + 3, t + 2, t + 4, t + 5)
    round_bf16(a, t + 2, t + 3)
    a(f"v_mul_f32 v{t+3}, v{t+2}, v{t}")
    a(f"v_mul_f32 v{t+6}, v{t+2}, v{t+1}")
    exp_acc(a, t + 7, t + 3, t + 4, t + 5)
    a(f"v_mul_f32 v{t+6}, {INV2PI:#x}, v{t+6}")
    a(f"v_rndne_f32 v{t+4}, v{t+6}")
    a(f"v_sub_f32 v{t+6}, v{t+6}, v{t+4}")
    a(f"v_cos_f32 v{t+4}, v{t+6}")
    a(f"v_sin_f32 v{t+5}, v{t+6}")
    a(f"v_mul_f32 v{lr}, v{t+7}, v{t+4}")
    a(f"v_mul_f32 v{li}, v{t+7}, v{t+5}")
    if cr is not None:
        a(f"v_add_f32 v{t+3}, -1.0, v{lr}")
        a(f"v_mul_f32 v{t+4}, v{t}, v{t}")
        a(f"v_fma_f32 v{t+4}, v{t+1}, v{t+1}, v{t+4}")
        a(f"v_rcp_f32 v{t+4}, v{t+4}")
        a(f"v_mul_f32 v{cr}, v{t+3}, v{t}")
        a(f"v_fma_f32 v{cr}, v{li}, v{t+1}, v{cr}")
        a(f"v_mul_f32 v{ci}, v{li}, v{t}")
        a(f"v_fma_f32 v{ci}, -v{t+3}, v{t+1}, v{ci}")
        a(f"v_add_f32 v{t+4}, v{t+4}, v{t+4}")
        a(f"v_mul_f32 v{cr}, v{cr}, v{t+4}")
        a(f"v_mul_f32 v{ci}, v{ci}, v{t+4}")

def gen_entry(a, cfg, ts):
    a("s_cmp_ge_u32 s2, 256")
    a("s_cbranch_scc1 L_exit")
    if cfg.padto: a("s_memrealtime s[100:101]")
    ts(0)
    a("s_load_dwordx16 s[16:31], s[0:1], 0")
    a("s_load_dwordx16 s[32:47], s[0:1], 64")
    a("v_lshrrev_b32 v1, 6, v0")
    a("v_and_b32 v0, 63, v0")
    a(f"v_readfirstlane_b32 s{S_WAVE}, v1")
    a(f"s_and_b32 s{S_XCD}, s2, 7")
    a(f"s_lshr_b32 s{S_SLOT}, s2, 3")
    if cfg.cpf == 2:
        a(f"s_cmp_gt_u32 s{S_WAVE}, {cfg.cpw - 1}")
        a("s_cbranch_scc1 L_nocpf")
        a("s_getpc_b64 s[12:13]")
        a.label("L_pc0")
        a(f"s_sub_u32 s12, s12, L_pc0-{KNAME}")
        a("s_subb_u32 s13, s13, 0")
        a(f"s_lshl_b32 s11, s{S_WAVE}, 5")
        a(f"s_add_u32 s11, s11, s{S_SLOT}")
        a("s_lshl_b32 s11, s11, 10")
        a("v_lshl_add_u32 v38, v0, 4, s11")
        a(f"v_min_u32 v38, L_exit-{KNAME}, v38")
        a("global_load_dword v39, v38, s[12:13]")
        a.label("L_nocpf")
    a(f"s_and_b32 s11, s{S_SLOT}, 3")
    a(f"s_lshr_b32 s{S_NT}, s{S_SLOT}, 2")
    a(f"s_and_b32 s12, s{S_XCD}, 1")
    a(f"s_lshl_b32 s12, s12, 2")
    a(f"s_add_u32 s{S_MT}, s12, s11")
    a(f"s_lshr_b32 s12, s{S_XCD}, 1")
    a(f"s_mul_i32 s12, s12, 7")
    a(f"s_add_u32 s{S_NS}, s12, s{S_NT}")
    if cfg.slab:
        a(f"s_mov_b32 s{S_MT}, s{S_XCD}")
        a(f"s_mov_b32 s{S_NS}, s{S_SLOT}")
    if cfg.loc:
        a(f"s_and_b32 s12, s{S_XCD}, 1")
        a("s_lshl_b32 s12, s12, 2")
        a(f"s_lshr_b32 s13, s{S_XCD}, 1")
        a("s_add_u32 s12, s12, s13")
        a("s_lshl_b32 s12, s12, 2")
    else:
        a(f"s_lshl_b32 s12, s{S_XCD}, 2")
    a(f"s_add_u32 s{S_M64}, s12, s11")
    a(f"s_and_b32 s{S_W4}, s{S_WAVE}, 3")
    ts.init()
    a(f"s_cmp_ge_u32 s{S_SLOT}, 28")
    a("s_cbranch_scc1 L_helper")
    a(f"s_cmp_lt_u32 s{S_WAVE}, 4")
    a("s_cbranch_scc1 L_consumer")

def gen_helper(a, cfg, ts):
    if cfg.al >= 3: a.raw(".p2align 12")
    a.label("L_helper")
    vm = VM(a)
    a(f"s_sub_u32 s73, s{S_SLOT}, 28")
    a(f"s_lshl_b32 s11, s73, 3")
    a(f"s_add_u32 s72, s11, s{S_XCD}")
    if cfg.loc: a(f"s_mov_b32 s72, s{S_M64}")
    HC = 65536
    a(f"v_mov_b32 v200, {HC}")
    a("v_mov_b32 v201, 0")
    a("ds_write_b32 v200, v201")
    def h_open():
        a("s_waitcnt lgkmcnt(0)")
        a("s_barrier")
    def h_signal(tag):
        a("v_mov_b32 v202, 1")
        a("s_mov_b64 exec, 1")
        a("ds_add_rtn_u32 v203, v200, v202")
        a("s_waitcnt lgkmcnt(0)")
        a("v_readfirstlane_b32 s11, v203")
        a("s_cmp_lg_u32 s11, 7")
        a(f"s_cbranch_scc1 L_h_ns{tag}")
        a(f"global_atomic_add v201, v202, s[{P_DBG}:{P_DBG+1}] sc1")
        a.label(f"L_h_ns{tag}")
        a("s_mov_b64 exec, -1")
    a(f"s_cmp_ge_u32 s{S_WAVE}, 4")
    a("s_cbranch_scc1 L_h_pf")
    a(f"s_lshl_b32 s11, s72, 6")
    a(f"s_lshl_b32 s12, s{S_WAVE}, 4")
    a(f"s_add_u32 s11, s11, s12")
    a("v_lshrrev_b32 v2, 3, v0")
    a("v_add_u32 v2, s11, v2")
    a("v_mul_u32_u24 v3, 896, v2")
    a("v_and_b32 v4, 7, v0")
    a("v_lshl_add_u32 v3, v4, 4, v3")
    a("s_waitcnt lgkmcnt(0)")
    srd(a, SRD_X, P_X, 2048 * 896)
    srd(a, SRD_WS, P_WS, WS_SIZE)
    a(f"s_mov_b32 s11, {8*896}")
    for ps in range(2):
        for j in range(7):
            so = "0" if ps == 0 else "s11"
            vm.issue(('x', ps), f"buffer_load_dwordx4 v[{112+28*ps+4*j}:{115+28*ps+4*j}], v3, s[{SRD_X}:{SRD_X+3}], {so} offen offset:{128*j}")
    a(f"s_cmp_gt_u32 s{S_WAVE}, 1")
    a("s_cbranch_scc1 L_h_noreset")
    a(f"s_cmp_eq_u32 s{S_WAVE}, 0")
    a("s_cselect_b32 s11, -1, 0")
    a("s_mov_b32 s12, 1024")
    a("s_cmov_b32 s12, 896")
    a(f"s_mov_b32 s13, {WS_FLAG:#x}")
    a(f"s_cmov_b32 s13, {WS_AGG:#x}")
    a("s_mul_i32 s14, s12, s72")
    a("s_add_u32 s13, s13, s14")
    for k in range(4): a(f"v_mov_b32 v{8+k}, s11")
    a("v_lshlrev_b32 v12, 4, v0")
    a("v_cmp_gt_u32 vcc, s12, v12")
    a("s_and_saveexec_b64 s[14:15], vcc")
    a(f"buffer_store_dwordx4 v[8:11], v12, s[{SRD_WS}:{SRD_WS+3}], s13 offen sc1")
    a("s_mov_b64 exec, s[14:15]")
    a.label("L_h_noreset")
    h_open()
    a("v_lshlrev_b32 v2, 3, v2")
    a("s_mov_b32 s12, 0xffff0000")
    def fin(dst):
        a("v_add_f32 v8, v8, v9")
        a("v_add_f32 v10, v10, v11")
        a(f"v_add_f32 v{dst}, v8, v10")
        a(f"v_add_f32_dpp v{dst}, v{dst}, v{dst} quad_perm:[1,0,3,2] row_mask:0xf bank_mask:0xf")
        a(f"v_add_f32_dpp v{dst}, v{dst}, v{dst} quad_perm:[2,3,0,1] row_mask:0xf bank_mask:0xf")
        a(f"v_add_f32_dpp v{dst}, v{dst}, v{dst} row_half_mirror row_mask:0xf bank_mask:0xf")
        a(f"v_mul_f32 v{dst}, 0x3b124925, v{dst}")
    for ps in range(2):
        vm.wait(('x', ps))
        if cfg.hdelay == 2 + ps: a("s_barrier")
        src = 112 + 28 * ps
        for k in range(28):
            a(f"v_lshlrev_b32 v{48+2*k}, 16, v{src+k}")
            a(f"v_and_b32 v{49+2*k}, s12, v{src+k}")
        a("v_pk_add_f32 v[8:9], v[48:49], v[52:53]")
        a("v_pk_add_f32 v[10:11], v[50:51], v[54:55]")
        for k in range(4, 28): a(f"v_pk_add_f32 v[{8+2*(k%2)}:{9+2*(k%2)}], v[{8+2*(k%2)}:{9+2*(k%2)}], v[{48+2*k}:{49+2*k}]")
        fin(12)
        for k in range(28): a(f"v_pk_add_f32 v[{48+2*k}:{49+2*k}], v[{48+2*k}:{49+2*k}], v[12:13] op_sel_hi:[1,0] neg_lo:[0,1] neg_hi:[0,1]")
        for k in range(2): a(f"v_pk_mul_f32 v[{8+2*k}:{9+2*k}], v[{48+2*k}:{49+2*k}], v[{48+2*k}:{49+2*k}]")
        for k in range(2, 28): a(f"v_pk_fma_f32 v[{8+2*(k%2)}:{9+2*(k%2)}], v[{48+2*k}:{49+2*k}], v[{48+2*k}:{49+2*k}], v[{8+2*(k%2)}:{9+2*(k%2)}]")
        fin(13)
        o = 14 + 2 * ps
        round_bf16(a, o, 12)
        round_bf16(a, 13, 13)
        a("v_add_f32 v13, 0x3727c5ac, v13")
        round_bf16(a, 13, 13)
        a("v_sqrt_f32 v13, v13")
        round_bf16(a, 13, 13)
        a(f"v_rcp_f32 v{o+1}, v13")
        a("v_cmp_eq_u32 vcc, 0, v4")
        a("s_and_saveexec_b64 s[14:15], vcc")
        a(f"s_mov_b32 s11, {WS_STATS:#x}")
        vm.issue('st', f"buffer_store_dwordx2 v[{o}:{o+1}], v2, s[{SRD_WS}:{SRD_WS+3}], s11 offen offset:{64*ps} sc1")
        a("s_mov_b64 exec, s[14:15]")
    a("s_waitcnt vmcnt(0)")
    h_signal("a")
    ts(1)
    ts.x(3, 1)
    ts.dump(8, 9)
    a("s_endpgm")
    a.label("L_h_pf")
    a("v_lshlrev_b32 v2, 4, v0")
    a(f"s_lshl_b32 s11, s{S_W4}, 10")
    a("v_add_u32 v2, s11, v2")
    if cfg.cpf == 1:
        a("s_getpc_b64 s[60:61]")
        a.label("L_pc")
        a(f"s_sub_u32 s60, s60, L_pc-{KNAME}")
        a("s_subb_u32 s61, s61, 0")
        a("s_lshl_b32 s11, s73, 12")
        a("v_add_u32 v3, s11, v2")
        for k in range(2):
            a(f"v_min_u32 v4, L_exit-{KNAME}-12, v3")
            a(f"global_load_dwordx4 v[24:27], v4, s[60:61]")
            a(f"v_add_u32 v3, 16384, v3")
    a("s_waitcnt lgkmcnt(0)")
    if cfg.hdelay == 1: a("s_waitcnt vmcnt(0)")
    if cfg.hdelay >= 2: a("s_barrier")
    srd(a, SRD_WS, P_WS, WS_SIZE)
    a("s_lshl_b32 s60, s72, 2")
    a(f"s_add_u32 s60, s60, s{S_W4}")
    a("s_cmp_ge_u32 s60, 98")
    a("s_cbranch_scc1 L_h_nopack1")
    a("s_mul_i32 s61, s60, 37")
    a("s_lshr_b32 s61, s61, 8")
    a("s_mul_i32 s62, s61, 7")
    a("s_sub_u32 s62, s60, s62")
    a("s_cmp_lt_i32 s62, 0")
    a("s_cselect_b32 s11, 1, 0")
    a("s_sub_u32 s61, s61, s11")
    a("s_mul_i32 s62, s61, 7")
    a("s_sub_u32 s62, s60, s62")
    a("s_bitcmp1_b32 s61, 0")
    srd_sel(a, 68, P_CIM, P_CRE, 448 * 896)
    a("v_lshrrev_b32 v3, 3, v0")
    a("v_and_b32 v4, 7, v0")
    a("v_lshrrev_b32 v5, 1, v3")
    a("v_xor_b32 v4, v4, v5")
    a("s_lshr_b32 s11, s61, 1")
    a("s_lshl_b32 s11, s11, 6")
    a("v_add_u32 v3, s11, v3")
    a("v_mul_u32_u24 v3, 896, v3")
    a("v_lshl_add_u32 v3, v4, 4, v3")
    a("v_xor_b32 v4, 64, v3")
    a(f"s_lshl_b32 s63, s{S_W4}, 13")
    a("s_lshl_b32 s12, s62, 7")
    for n in range(8):
        a(f"s_add_u32 m0, s63, {n*1024}")
        a(f"s_add_u32 s11, s12, {8*n*896}")
        a(f"buffer_load_dwordx4 v{3 + (n & 1)}, s[68:71], s11 offen lds")
    a.label("L_h_nopack1")
    h_open()
    def h_sweep():
        if cfg.hpf:
            for (ptr, nbytes, srdn) in ((P_WD, 1792 * 896, 56),):
                srd(a, srdn, ptr, nbytes)
            def sweep(name, srds, qbytes, first, count):
                n8 = -(-qbytes // (8 * 4096))
                n = 8 * n8
                a(f"s_mul_i32 s12, s73, {qbytes}")
                a(f"s_add_u32 s13, s{S_XCD}, {first}")
                a("s_and_b32 s13, s13, 7")
                a(f"s_mul_i32 s13, s13, {n8}")
                a("s_mov_b32 s14, 0")
                a.label(name)
                a("s_lshl_b32 s11, s13, 12")
                a("s_add_u32 s11, s11, s12")
                for k, sr in enumerate(srds):
                    a(f"buffer_load_dwordx4 v[{16+4*k}:{19+4*k}], v2, s[{sr}:{sr+3}], s11 offen")
                a("s_add_u32 s13, s13, 1")
                a(f"s_cmp_eq_u32 s13, {n}")
                a("s_cselect_b32 s13, 0, s13")
                a("s_add_u32 s14, s14, 1")
                a(f"s_cmp_lt_u32 s14, {n8 * count}")
                a(f"s_cbranch_scc1 {name}")
            sweep("L_h_p2", [56], 1792 * 896 // 4, 0, 1)
            ts(2)
    def h_pack():
        a("s_cmp_ge_u32 s60, 98")
        a("s_cbranch_scc1 L_h_nopack2")
        a("v_and_b32 v5, 31, v0")
        a("v_lshrrev_b32 v6, 5, v0")
        a("v_bfe_u32 v7, v0, 1, 3")
        a("v_xor_b32 v7, v7, v6")
        a("v_lshlrev_b32 v7, 4, v7")
        a("v_lshl_add_u32 v5, v5, 7, v7")
        a("v_add_u32 v5, s63, v5")
        a("v_lshlrev_b32 v6, 4, v0")
        a("s_mul_i32 s12, s61, 28")
        a("s_lshl_b32 s11, s62, 2")
        a("s_add_u32 s12, s12, s11")
        a("s_lshl_b32 s12, s12, 11")
        a(f"s_add_u32 s12, s12, {WS_CP:#x}")
        a(f"s_waitcnt vmcnt({13 if (cfg.hpf and not cfg.hord) else 0})")
        for ks in range(4):
            a(f"v_xor_b32 v7, {32*ks}, v5")
            for ct in range(2):
                d = 32 + 8 * ks + 4 * ct
                a(f"ds_read_b128 v[{d}:{d+3}], v7 offset:{4096*ct}")
        for ks in range(4):
            a(f"s_waitcnt lgkmcnt({6 - 2*ks})")
            a(f"s_add_u32 s11, s12, {2048*ks}")
            for ct in range(2):
                d = 32 + 8 * ks + 4 * ct
                a(f"buffer_store_dwordx4 v[{d}:{d+3}], v6, s[{SRD_WS}:{SRD_WS+3}], s11 offen offset:{1024*ct} sc1")
        a("s_waitcnt vmcnt(0)")
        a.label("L_h_nopack2")
        h_signal("b")
        ts(3)
        ts.x(3, 1)
    if cfg.hord: h_pack(); h_sweep()
    else: h_sweep(); h_pack()
    ts.dump(8, 9)
    a("s_endpgm")

def spin_check(a, name, load_text_list, cond_fn, sleep=1):
    lo, done = a.newlabel(name + "_spin"), a.newlabel(name + "_ok")
    a(f"s_mov_b32 s73, 0")
    a.label(lo)
    cond_fn()
    a(f"s_cbranch_scc1 {done}")
    a("s_add_u32 s73, s73, 1")
    a(f"s_cmp_ge_u32 s73, {SPIN_MAX}")
    a(f"s_cbranch_scc1 {done}")
    a(f"s_sleep {sleep}")
    for t in load_text_list: a(t)
    a("s_waitcnt vmcnt(0)")
    a(f"s_branch {lo}")
    a.label(done)
    a("s_nop 4")

def sspin(a, name, loads, cond_fn, sleep=1):
    lo, done = a.newlabel(name + "_spin"), a.newlabel(name + "_ok")
    a("s_mov_b32 s73, 0")
    a.label(lo)
    for t in loads: a(t)
    a("s_waitcnt lgkmcnt(0)")
    cond_fn()
    a(f"s_cbranch_scc1 {done}")
    a("s_add_u32 s73, s73, 1")
    a(f"s_cmp_lt_u32 s73, {SPIN_MAX}")
    if sleep: a(f"s_sleep {sleep}")
    a(f"s_cbranch_scc1 {lo}")
    a.label(done)

def flag_index(a, d, t, grp):
    a(f"s_mul_i32 s{t}, s{S_NS}, 37")
    a(f"s_lshr_b32 s{t}, s{t}, {8 if grp == 7 else 9}")
    a(f"s_mul_i32 s{t}, s{t}, {32 - grp}")
    a(f"s_add_u32 s{d}, s{t}, s{S_NS}")
    a(f"s_lshl_b32 s{d}, s{d}, 2")

def interleave(a, prim, fill, per):
    fill = list(fill)
    for p in prim:
        p()
        for _ in range(per):
            if fill: a(fill.pop(0))
    for f in fill: a(f)

def p2_rot(a, cfg, d_ffn, d_blk, d_flip):
    if not cfg.rot:
        for d in (d_ffn, d_blk, d_flip): a(f"s_mov_b32 s{d}, 0")
        return
    tab = {2: [0] * 7, 1: list(range(7)), 3: [0, 3, 0, 3, 0, 3, 0], 4: [0, 2, 5, 0, 2, 5, 0], 5: [0, 4, 2, 5, 0, 4, 2], 6: [0, 1, 0, 1, 0, 1, 0], 7: [0, 2, 0, 2, 0, 2, 0]}[cfg.rot]
    word = sum(v << (4 * k) for k, v in enumerate(tab))
    a(f"s_lshl_b32 s11, s{S_NT}, 2")
    a(f"s_lshr_b32 s13, {word:#x}, s11")
    a("s_and_b32 s13, s13, 15")
    a(f"s_and_b32 s11, s{S_SLOT}, 3")
    a("s_lshl_b32 s11, s11, 1")
    a("s_add_u32 s11, s11, s13")
    a("s_cmp_ge_u32 s11, 7")
    a("s_cselect_b32 s13, 7, 0")
    a(f"s_sub_u32 s{d_ffn}, s11, s13")
    for d in (d_blk, d_flip): a(f"s_mov_b32 s{d}, 0")

def slot(reg, n): return R[reg] + 2048 * n
SA = [slot(1, n) for n in range(6)]; SB = [slot(2, n) for n in range(6)]; SC = [slot(0, n) for n in range(6)]
WSLOT = {}
for n in range(6): WSLOT[n] = SA[n]; WSLOT[6 + n] = SB[n]
for n in range(4): WSLOT[12 + n] = SC[n]; WSLOT[16 + n] = SA[n]; WSLOT[20 + n] = SB[n]
WSLOT.update({24: SA[4], 25: SA[5], 26: SB[4], 27: SB[5]})
HTS = SC[4]
PH1, PH2, GA, FXA, SD = SC[0], SC[4], SB[0], SA[0], SC[0]

class Rec:
    def __init__(self): self.L = []
    def __call__(self, t): self.L.append(t)

def ssm_park(kc, K, KP, sQ):
    LR, LI, CR, CI, L16R, L16I, PWR, PWI, L64R, L64I, LWR, LWI, W0R = [KP + k for k in range(13)]
    vTW, vTR, vCB = KP + 16, KP + 17, KP + 18
    ssm_const_calc(kc, K, LR, LI, CR, CI)
    csq(kc, L16R, L16I, LR, LI, K)
    for _ in range(3): csq(kc, L16R, L16I, L16R, L16I, K)
    def powsel(dr, di, br, bi, bit, src):
        cmul(kc, K + 1, K + 2, dr, di, br, bi)
        kc(f"v_and_b32 v{K}, {bit}, v{src}")
        kc(f"v_cmp_ne_u32 vcc, 0, v{K}")
        kc(f"v_cndmask_b32 v{dr}, v{dr}, v{K+1}, vcc")
        kc(f"v_cndmask_b32 v{di}, v{di}, v{K+2}, vcc")
    kc(f"v_mov_b32 v{PWR}, v{CR}"); kc(f"v_mov_b32 v{PWI}, v{CI}")
    powsel(PWR, PWI, L16R, L16I, 32, 0)
    csq(kc, K + 14, K + 15, L16R, L16I, K)
    powsel(PWR, PWI, K + 14, K + 15, 16, 0)
    csq(kc, L64R, L64I, K + 14, K + 15, K)
    kc(f"v_mov_b32 v{K+10}, s{S_W4}")
    kc(f"v_mov_b32 v{LWR}, 1.0"); kc(f"v_mov_b32 v{LWI}, 0")
    powsel(LWR, LWI, L64R, L64I, 1, K + 10)
    csq(kc, K + 14, K + 15, L64R, L64I, K)
    powsel(LWR, LWI, K + 14, K + 15, 2, K + 10)
    csq(kc, K + 14, K + 15, K + 14, K + 15, K)
    kc(f"v_lshrrev_b32 v{K+10}, 4, v0")
    kc(f"v_sub_u32 v{K+10}, s{S_MT}, v{K+10}")
    kc(f"v_add_u32 v{K+11}, -5, v{K+10}")
    kc(f"v_add_u32 v{K+10}, -1, v{K+10}")
    kc(f"v_mov_b32 v{W0R}, 1.0"); kc(f"v_mov_b32 v{W0R+1}, 0")
    kc(f"v_mov_b32 v{W0R+2}, 1.0"); kc(f"v_mov_b32 v{W0R+3}, 0")
    for b in range(3):
        powsel(W0R, W0R + 1, K + 14, K + 15, 1 << b, K + 10)
        if b < 2: powsel(W0R + 2, W0R + 3, K + 14, K + 15, 1 << b, K + 11)
        if b < 2: csq(kc, K + 14, K + 15, K + 14, K + 15, K)
    kc(f"s_add_u32 s36, s{sQ}, {HTS}")
    kc(f"v_bfe_u32 v{K}, v0, 4, 1")
    kc(f"v_lshrrev_b32 v{K+1}, 5, v0")
    kc(f"v_lshl_add_u32 v{K+2}, v{K}, 1, v{K+1}")
    kc(f"v_and_b32 v{K+3}, 15, v0")
    kc(f"v_and_b32 v{vTW}, 6, v{K+3}")
    kc(f"v_lshlrev_b32 v{vTW}, 4, v{vTW}")
    kc(f"v_lshlrev_b32 v{K+4}, 5, v{K+2}")
    kc(f"v_xor_b32 v{vTW}, v{vTW}, v{K+4}")
    kc(f"v_lshl_add_u32 v{vTW}, v{K+3}, 7, v{vTW}")
    kc(f"v_add_u32 v{vTW}, s36, v{vTW}")
    kc(f"v_lshlrev_b32 v{vCB}, 2, v{K+3}")
    kc(f"v_add_u32 v{vCB}, {C_L + 512}, v{vCB}")
    kc(f"v_bfe_u32 v{K+4}, v0, 2, 2")
    kc(f"v_lshl_add_u32 v{K+5}, v{K+1}, 3, v{K+4}")
    kc(f"v_lshlrev_b32 v{vTR}, 7, v{K+5}")
    kc(f"v_lshrrev_b32 v{K+4}, 1, v{K+4}")
    kc(f"v_xor_b32 v{K+4}, v{K+4}, v0")
    kc(f"v_and_b32 v{K+4}, 1, v{K+4}")
    kc(f"v_lshl_add_u32 v{vTR}, v{K+4}, 5, v{vTR}")
    kc(f"v_lshl_add_u32 v{vTR}, v{K}, 4, v{vTR}")
    kc(f"v_bfe_u32 v{K+4}, v0, 1, 1")
    kc(f"v_lshl_add_u32 v{vTR}, v{K+4}, 3, v{vTR}")
    kc(f"v_add_u32 v{vTR}, s36, v{vTR}")
    kc(f"s_lshl_b32 s36, s{S_W4}, 9")
    kc(f"s_add_u32 s36, s36, {STATS_L}")
    kc(f"v_lshl_add_u32 v{KP+19}, v{K+2}, 7, s36")
    vStS = KP + 19
    vAg, vPr, vF = KP + 20, KP + 21, KP + 22
    kc(f"v_lshlrev_b32 v{vAg}, 3, v{K+3}")
    kc(f"v_lshrrev_b32 v{vPr}, 4, v0")
    kc(f"v_mul_u32_u24 v{vPr}, 3584, v{vPr}")
    kc(f"s_lshl_b32 s36, s{S_NS}, 7")
    kc(f"v_add3_u32 v{vPr}, v{vPr}, v{vAg}, s36")
    kc(f"v_add_u32 v{vAg}, {AGG_L}, v{vAg}")
    kc(f"s_lshl_b32 s36, s{S_MT}, 2")
    kc(f"s_add_u32 s36, s36, s{S_W4}")
    kc("s_lshl_b32 s36, s36, 10")
    flag_index(kc, 37, 38, 14)
    kc("s_add_u32 s36, s36, s37")
    kc(f"s_add_u32 s36, s36, {WS_FLAG + 512:#x}")
    kc(f"v_mov_b32 v{vF}, s36")

def gen_loader(a, cfg, ts):
    a.label("L_loader")
    a("s_setprio 3")
    vm = VM(a)
    vXe, vXo, vW, vB = 1, 2, 3, 4
    vFv, vP, vO, vPQ = 5, 6, 7, 8
    vWd, vCe, vCo, vCh = 9, 10, 11, 12
    vRf, vRh = 13, 14
    vA, vC = 24, 25
    vT = 15
    ACC, CA, RD = 27, 28, 44
    STG = 64
    CF = 144
    SACC = 80
    XRAW = CF + 64
    KP = XRAW + 8
    sGrp = [28, 29, 30, 31, 36, 37, 21]
    SP = ['', ' sc1'][cfg.spol]
    sMX, sMW, sMB, sMP = 72, 74, 75, 70
    sPerm, sSX, sSW = 68, 69, 15
    sRF = 14
    AP = ['', ' sc1', ' sc1 nt', ' sc0 sc1', ' sc0', ' nt'][cfg.apol]
    OP = ['', ' sc1', ' nt', ' sc1 nt'][cfg.opol]
    polx = " nt" if cfg.polx else ""
    polw = " nt" if cfg.polw else ""
    a(f"v_lshrrev_b32 v{vA}, 3, v0")
    a(f"v_and_b32 v{vC}, 7, v0")
    a(f"v_lshrrev_b32 v{vT+2}, 1, v{vA}")
    a(f"s_lshl_b32 s11, s{S_W4}, 4")
    a(f"v_add_u32 v{vT}, s11, v{vA}")
    a(f"v_mul_u32_u24 v{vW}, 3584, v{vT}")
    a(f"v_and_b32 v{vT+4}, 1, v{vT+2}")
    a(f"v_lshlrev_b32 v{vT+4}, 2, v{vT+4}")
    a(f"v_xor_b32 v{vT+4}, v{vC}, v{vT+4}")
    a(f"v_lshl_add_u32 v{vW}, v{vT+4}, 4, v{vW}")
    a(f"s_lshl_b32 s11, s{S_NS}, 7")
    a(f"v_add_u32 v{vW}, s11, v{vW}")
    a(f"s_lshl_b32 s11, s{S_MT}, 8")
    a(f"s_lshl_b32 s12, s{S_W4}, 6")
    a("s_add_u32 s11, s11, s12")
    a(f"v_lshrrev_b32 v{vT}, 2, v{vA}")
    a(f"v_and_b32 v{vT+1}, 3, v{vA}")
    a(f"v_lshl_add_u32 v{vT}, v{vT}, 4, v{vT+1}")
    a(f"v_add_u32 v{vT}, s11, v{vT}")
    a(f"v_mul_u32_u24 v{vXe}, 896, v{vT}")
    a(f"v_xor_b32 v{vT+3}, v{vC}, v{vT+2}")
    a(f"v_lshl_add_u32 v{vXe}, v{vT+3}, 4, v{vXe}")
    a(f"v_xor_b32 v{vXo}, 64, v{vXe}")
    a(f"s_and_b32 s12, s{S_W4}, 1")
    a(f"s_lshl_b32 s11, s{S_NS}, 4")
    a(f"s_lshl_b32 s13, s12, 3")
    a("s_add_u32 s11, s11, s13")
    a(f"v_add_u32 v{vT}, s11, v{vA}")
    a(f"v_mul_u32_u24 v{vB}, 896, v{vT}")
    a(f"v_lshl_add_u32 v{vB}, v{vT+3}, 4, v{vB}")
    a("s_lshl_b32 s13, s12, 6")
    a(f"v_xor_b32 v{vB}, s13, v{vB}")
    a(f"s_lshl_b32 s{sMX}, s{S_W4}, 13")
    a(f"s_lshl_b32 s{sMW}, s{S_W4}, 11")
    a(f"s_lshl_b32 s{sMB}, s{S_W4}, 10")
    a(f"s_mul_i32 s{sMP}, s{S_W4}, {Q}")
    perms = cfg.perms
    words = [sum(p[k] << (4 * k) for k in range(7)) for p in perms]
    ng = len(words)
    a(f"s_mov_b32 s{sPerm}, {words[0]:#x}")
    if ng > 1:
        if cfg.slab:
            a(f"s_add_u32 s11, s{S_SLOT}, s{S_XCD}")
        else:
            a(f"s_and_b32 s11, s{S_SLOT}, 3")
            a(f"s_add_u32 s11, s11, s{S_NT}")
        if ng == 3:
            a("s_mul_i32 s13, s11, 43")
            a("s_lshr_b32 s13, s13, 7")
            a("s_mul_i32 s13, s13, 3")
            a("s_sub_u32 s11, s11, s13")
        else:
            a(f"s_and_b32 s11, s11, {ng-1}")
        for g in range(1, ng):
            a(f"s_cmp_eq_u32 s11, {g}")
            a(f"s_cmov_b32 s{sPerm}, {words[g]:#x}")
    ts.x(1, 1)
    a("s_waitcnt lgkmcnt(0)")
    ts.x(1, 2)
    if cfg.tlb:
        a(f"v_mov_b32 v40, s{P_X}")
        a(f"v_mov_b32 v41, s{P_X+1}")
        for ln, p in enumerate([P_WG, P_WU, P_BRE, P_BIM, P_WD, P_CRE, P_CIM, P_WS][:cfg.tlb], 1):
            a(f"v_writelane_b32 v40, s{p}, {ln}")
            a(f"v_writelane_b32 v41, s{p+1}, {ln}")
        a(f"s_mov_b64 exec, {(1 << (cfg.tlb + 1)) - 1:#x}")
        a("global_load_dword v62, v[40:41], off")
        a("s_mov_b64 exec, -1")
    srd(a, SRD_A, P_WG, 448 * 3584)
    srd(a, SRD_X, P_X, 2048 * 896)
    srd(a, SRD_B, P_WU, 448 * 3584)
    a(f"s_cmp_ge_u32 s{S_W4}, 2")
    srd_sel(a, SRD_C, P_BIM, P_BRE, 448 * 896)

    thr = [None]
    def dma(vm, tag, voff, srdn, sbase, soff, m0base, m0off, pol=""):
        a(f"s_add_u32 m0, s{m0base}, {m0off}")
        a(f"s_add_u32 s11, s{sbase}, {soff}")
        if thr[0] is not None and len(vm.q) > thr[0]:
            a(f"s_waitcnt vmcnt({thr[0]})")
            vm.q = vm.q[-thr[0]:]
        vm.issue(tag, f"buffer_load_dwordx4 v{voff}, s[{srdn}:{srdn+3}], s11 offen{pol} lds")
    def issue_ops(s):
        r = R[s % 3]
        ops = []
        def pre():
            a(f"s_bfe_u32 s{sSX}, s{sPerm}, {(4 << 16) | (4 * s):#x}")
            a(f"s_mul_i32 s{sSW}, s{sSX}, {64*3584}")
            a(f"s_lshl_b32 s{sSX}, s{sSX}, 7")
        def mk(*args): return lambda: dma(vm, ('st', s), *args)
        L = []
        for i in range(2): L.append(mk(vW, SRD_A, sSW, i * 8 * 3584, sMW, r + OFF_WG + i * 1024, polw))
        for j in range(4): L.append(mk(vXo if j & 1 else vXe, SRD_X, sSX, (32 * (j >> 2) + 4 * (j & 3)) * 896, sMX, r + j * 1024, polx))
        for i in range(2): L.append(mk(vW, SRD_B, sSW, i * 8 * 3584, sMW, r + OFF_WU + i * 1024, polw))
        for j in range(4, 8): L.append(mk(vXo if j & 1 else vXe, SRD_X, sSX, (32 * (j >> 2) + 4 * (j & 3)) * 896, sMX, r + j * 1024, polx))
        L.append(mk(vB, SRD_C, sSX, 0, sMB, r + OFF_BB, polw))
        first = L[0]
        L[0] = lambda: (pre(), first())
        return L
    SRD_WD, SRD_CC, sBlk, sFlip, P_DSK2 = 32, 24, 16, 17, 38
    def w_ops(ps):
        L = []
        for p in ps:
            for n in range(2):
                def op(p=p, n=n):
                    if 12 <= p < 22:
                        d = STG + (p - 12) * 8 + 4 * n
                        a(f"s_add_u32 s11, s{sGrp[p//4]}, {((p % 4) * 16 + 8 * n) * 896}")
                        vm.issue(('w', p), f"buffer_load_dwordx4 v[{d}:{d+3}], v{vWd}, s[{SRD_WD}:{SRD_WD+3}], s11 offen")
                    else:
                        dma(vm, ('w', p), vWd, SRD_WD, sGrp[p//4], ((p % 4) * 16 + 8 * n) * 896, sMP, WSLOT[p] + n * 1024)
                L.append(op)
        return L
    sCB = [68, 69, 15]
    sCF, sCH = 16, 17
    def cfrag(p, lc): return CF + 8 * p + 4 * lc
    def c_ops(b):
        L = []
        for p in (range(4 * b, 4 * b + 4) if b < 3 else (12, 13)):
            for lc in range(2):
                def op(p=p, lc=lc):
                    d = cfrag(p, lc)
                    sb, so = (sCF, 2048 * p) if p < 12 else (sCH, 2048 * (p - 12))
                    if cfg.crot and p < 12: sb, so = sCB[p // 4], 2048 * (p % 4)
                    a(f"s_add_u32 s11, s{sb}, {so}")
                    vm.issue(('c', b), f"buffer_load_dwordx4 v[{d}:{d+3}], v{(vCe, vCo)[lc]}, s[{SRD_WS}:{SRD_WS+3}], s11 offen sc1")
                L.append(op)
        return L
    def w_write(ps):
        vm.wait(('w', ps[-1]))
        base = WSLOT[ps[0]]
        a(f"v_add_u32 v{vT+4}, {base}, v{vPQ}")
        for p in ps:
            for n in range(2):
                d = STG + (p - 12) * 8 + 4 * n
                a(f"ds_write_b128 v{vT+4}, v[{d}:{d+3}] offset:{WSLOT[p] - base + 1024*n}")
    def colsum_reads(s):
        r = R[s % 3]
        a(f"s_add_u32 s11, s{sMW}, {r + OFF_WG}")
        a(f"v_add_u32 v{vT}, s11, v{vP}")
        a(f"s_add_u32 s11, s{sMB}, {r + OFF_BB}")
        a(f"v_add_u32 v{vT+1}, s11, v{vP}")
        a(f"ds_read_b128 v[{RD}:{RD+3}], v{vT}")
        a(f"ds_read_b128 v[{RD+4}:{RD+7}], v{vT} offset:1024")
        a(f"ds_read_b128 v[{RD+8}:{RD+11}], v{vT} offset:8192")
        a(f"ds_read_b128 v[{RD+12}:{RD+15}], v{vT} offset:9216")
        a(f"ds_read_b128 v[{RD+16}:{RD+19}], v{vT+1}")
    def colsum_ops():
        L = ["s_waitcnt lgkmcnt(0)"]
        for n in range(4):
            for d in range(4):
                w = RD + 4 * n + d
                ac = CA + (n >> 1) * 8 + 2 * d
                L.append(f"v_lshlrev_b32 v{vT+2}, 16, v{w}")
                L.append(f"v_and_b32 v{vT+3}, s71, v{w}")
                L.append(f"v_add_f32 v{ac}, v{ac}, v{vT+2}")
                L.append(f"v_add_f32 v{ac+1}, v{ac+1}, v{vT+3}")
        for d in range(4):
            w = RD + 16 + d
            L.append(f"v_lshlrev_b32 v{vT+2}, 16, v{w}")
            L.append(f"v_and_b32 v{vT+3}, s71, v{w}")
            L.append(f"v_add_f32 v{vT+2}, v{vT+2}, v{vT+3}")
            L.append(f"v_add_f32 v{ACC}, v{ACC}, v{vT+2}")
        return L

    stage_ops = {}
    cdone = set()
    def tok_ops(toks):
        L = []
        for t in toks:
            if t[0] == 's':
                st = int(t[1])
                if st not in stage_ops: stage_ops[st] = issue_ops(st)
                lo, hi = (0, 13) if ':' not in t else map(int, t.split(':')[1].split('-'))
                L += stage_ops[st][lo:hi]
            elif t[0] == 'w': L += w_ops([int(t[1:])])
            elif t[0] == 'c':
                lo, hi = (0, 8) if ':' not in t else map(int, t.split(':')[1].split('-'))
                L += c_ops(int(t[1]))[lo:hi]
                cdone.add(int(t[1]))
            else: L.append(lambda t=t: special(t))
        return L
    def run_tokens(toks):
        for o in tok_ops(toks): o()
    def special(t):
        if True:
            if t == 'put':
                vm.wait('stats')
                a(f"s_lshl_b32 s11, s{S_W4}, 9")
                a(f"s_add_u32 s11, s11, {STATS_L}")
                a(f"v_lshl_add_u32 v{vT+4}, v0, 3, s11")
                a(f"ds_write_b64 v{vT+4}, v[20:21]")
                a(f"v_lshlrev_b32 v{vT+4}, 3, v0")
                a(f"v_add_u32 v{vT+4}, {ST2_L}, v{vT+4}")
                a(f"ds_write_b64 v{vT+4}, v[22:23]")
            elif t == 'e':
                a(f"s_add_u32 s12, s41, {16*896}")
                vm.issue('e', f"buffer_load_dwordx4 v[{XRAW}:{XRAW+3}], v20, s[{SRD_X}:{SRD_X+3}], s41 offen")
                vm.issue('e', f"buffer_load_dwordx4 v[{XRAW+4}:{XRAW+7}], v20, s[{SRD_X}:{SRD_X+3}], s12 offen")
                vm.issue('e', f"global_load_ushort v{KP+23}, v21, s[{P_DSK2}:{P_DSK2+1}]")
            elif t == 'm':
                a(f"v_lshlrev_b32 v{vP}, 4, v0")
                a("s_lshl_b32 s12, s2, 2")
                a(f"s_add_u32 s12, s12, s{S_W4}")
                a("s_lshl_b32 s12, s12, 10")
                a(f"s_add_u32 s12, s12, {192*3584}")
                vm.issue('m', f"buffer_load_dwordx4 v[140:143], v{vP}, s[{SRD_A}:{SRD_A+3}], s12 offen")
                vm.issue('m', f"buffer_load_dwordx4 v[140:143], v{vP}, s[{SRD_B}:{SRD_B+3}], s12 offen")
                a(f"s_and_b32 s12, s{S_W4}, 1")
                a("s_lshl_b32 s11, s2, 1")
                a("s_add_u32 s12, s12, s11")
                a("s_lshl_b32 s12, s12, 10")
                vm.issue('m', f"buffer_load_dwordx4 v[140:143], v{vP}, s[{SRD_C}:{SRD_C+3}], s12 offen")
            elif t == 'k':
                a("s_waitcnt lgkmcnt(0)")
            elif t == 'init':
                a(f"v_mov_b32 v26, 0")
                vm.issue('init', f"global_load_dword v5, v26, s[{P_DBG}:{P_DBG+1}] sc1")
            elif t == 'fetch':
                vm.wait('init')
                def cond():
                    a(f"v_readfirstlane_b32 s11, v5")
                    a(f"s_cmp_ge_u32 s11, {INIT_N}")
                spin_check(a, "L_init", [f"global_load_dword v5, v26, s[{P_DBG}:{P_DBG+1}] sc1"], cond, 8)
                if cfg.ts == 1 and cfg.tsset == 3: a(f"s_add_u32 s{TS0+18}, s73, 1")
                if cfg.crot:
                    a(f"s_and_b32 s11, s{S_SLOT}, 3")
                    a("s_lshl_b32 s11, s11, 1")
                    a("s_lshr_b32 s12, 0x924, s11")
                    for b in range(3):
                        a(f"s_bfe_u32 s11, s12, {(2 << 16) | (2 * b):#x}")
                        a("s_lshl_b32 s11, s11, 13")
                        a(f"s_add_u32 s{sCB[b]}, s11, s{sCF}")
                a(f"s_lshl_b32 s11, s{S_MT}, 8")
                a(f"s_lshl_b32 s12, s{S_W4}, 6")
                a("s_add_u32 s11, s11, s12")
                a(f"v_add_lshl_u32 v5, v0, s11, 3")
                a(f"s_lshl_b32 s12, s{S_M64}, 6")
                a(f"v_add_lshl_u32 v26, v0, s12, 3")
                a(f"s_mov_b32 s11, {WS_STATS:#x}")
                vm.issue('stats', f"buffer_load_dwordx2 v[20:21], v5, s[{SRD_WS}:{SRD_WS+3}], s11 offen sc1")
                vm.issue('stats', f"buffer_load_dwordx2 v[22:23], v26, s[{SRD_WS}:{SRD_WS+3}], s11 offen sc1")
            else: raise ValueError(t)
    win = cfg.win
    run_tokens([f"s0:0-{cfg.s0a}"])
    if cfg.s0a == 13:
        ts(1)
        ts.x(1, 6)
        run_tokens(win.get(-1, []))
        a("s_setprio 0")
    a(f"s_and_b32 s12, s{S_W4}, 1")
    a(f"v_lshlrev_b32 v{vP}, 4, v0")
    a(f"v_add_u32 v{vPQ}, s{sMP}, v{vP}")
    a(f"s_mul_i32 s14, s{S_W4}, 448")
    a(f"v_add_u32 v{vT}, s14, v{vA}")
    a(f"v_mul_u32_u24 v{vWd}, 896, v{vT}")
    a(f"v_lshl_add_u32 v{vWd}, v{vT+4}, 4, v{vWd}")
    a(f"s_lshl_b32 s14, s{S_NT}, 7")
    a(f"v_add_u32 v{vWd}, s14, v{vWd}")
    a(f"v_and_b32 v{vT+1}, 3, v0")
    a("s_mov_b32 s71, 0xffff0000")
    for k in range(17): a(f"v_mov_b32 v{ACC+k}, 0")
    srd(a, SRD_WS, P_WS, WS_SIZE)
    a(f"s_mov_b64 s[{P_DSK2}:{P_DSK2+1}], s[{P_DSK}:{P_DSK+1}]")
    srd(a, SRD_WD, P_WD, 1792 * 896)
    p2_rot(a, cfg, sRF, sBlk, sFlip)
    a(f"s_lshl_b32 s11, s{S_M64}, 1")
    a("s_add_u32 s40, s11, s12")
    a("s_lshl_b32 s12, s40, 5")
    a(f"v_lshrrev_b32 v{vT}, 2, v0")
    a(f"v_add_u32 v{vT}, s12, v{vT}")
    a(f"v_mul_u32_u24 v{vT}, 896, v{vT}")
    a(f"v_lshl_add_u32 v20, v{vT+1}, 4, v{vT}")
    a(f"v_lshrrev_b32 v{vT+2}, 5, v0")
    a(f"v_lshl_add_u32 v{vT}, v{vT+2}, 4, s12")
    a(f"s_lshr_b32 s13, s{S_W4}, 1")
    a("s_lshl_b32 s12, s13, 5")
    a(f"s_lshl_b32 s11, s{S_NT}, 6")
    a("s_add_u32 s11, s11, s12")
    a("s_lshl_b32 s41, s11, 1")
    a(f"v_and_b32 v{vT+3}, 31, v0")
    a(f"v_add_u32 v{vT+1}, s11, v{vT+3}")
    a(f"v_mul_u32_u24 v{vT}, 448, v{vT}")
    a(f"v_add_lshl_u32 v{vO}, v{vT}, v{vT+1}, 2")
    a(f"v_lshlrev_b32 v21, 1, v{vT+1}")
    a("s_lshl_b32 s12, s13, 10")
    a(f"v_add_u32 v{vCe}, s12, v{vP}")
    a(f"v_xor_b32 v{vCo}, 1024, v{vCe}")
    a(f"s_lshl_b32 s11, s{S_NT}, 1")
    a("s_add_u32 s11, s11, s13")
    a(f"s_mul_i32 s11, s11, {28*2048}")
    a(f"s_add_u32 s11, s11, {WS_CP:#x}")
    a(f"s_and_b32 s12, s{S_W4}, 1")
    a(f"s_lshl_b32 s{sCF}, s12, 15")
    a(f"s_add_u32 s{sCF}, s{sCF}, s11")
    a(f"s_lshl_b32 s{sCH}, s12, 12")
    a(f"s_add_u32 s{sCH}, s{sCH}, s11")
    a(f"s_add_u32 s{sCH}, s{sCH}, {12*2048}")
    a(f"v_bfe_u32 v{vT}, v0, 4, 1")
    a(f"v_lshlrev_b32 v{vT+1}, 2, v{vT}")
    a(f"v_xor_b32 v{vC}, v{vC}, v{vT+1}")
    a(f"v_lshlrev_b32 v{vC}, 5, v{vC}")
    a(f"v_lshl_add_u32 v{vC}, v{vT}, 9, v{vC}")
    a(f"v_lshl_add_u32 v{vC}, v{vT+2}, 8, v{vC}")
    a(f"s_add_u32 s11, s{sMB}, {CP_L}")
    a(f"v_add_u32 v{vC}, s11, v{vC}")
    a(f"s_lshl_b32 s11, s{S_W4}, 5")
    a(f"s_add_u32 s11, s11, {C_L + 512}")
    a(f"v_lshl_add_u32 v{vA}, v{vA}, 2, s11")
    ts.x(1, 8)
    LR, LI, CR, CI, L16R, L16I, PWR, PWI, L64R, L64I, LWR, LWI, W0R = [KP + k for k in range(13)]
    vTW, vTR, vCB, vStS, vAg, vPr, vF = [KP + k for k in range(16, 23)]
    a(f"s_lshl_b32 s21, s{S_NS}, 7")
    a(f"s_mul_i32 s22, s{S_MT}, 3584")
    a("s_add_u32 s22, s22, s21")
    a(f"s_add_u32 s22, s22, {WS_AGG - AGG_L:#x}")
    a(f"s_mov_b32 s23, {WS_AGG:#x}")
    a(f"s_mov_b32 s20, {WS_AGG + 4*3584:#x}")
    a(f"s_lshl_b32 s18, s{S_M64}, 10")
    a(f"s_and_b32 s11, s{S_W4}, 1")
    a("s_lshl_b32 s11, s11, 7")
    a("s_add_u32 s18, s18, s11")
    a(f"s_add_u32 s18, s18, {WS_FLAG + 512:#x}")
    a(f"s_lshl_b32 s11, s{S_MT}, 2")
    a(f"s_add_u32 s11, s11, s{S_W4}")
    a(f"s_mul_i32 s19, s11, {2*RT_BYTES}")
    a(f"s_lshl_b32 s11, s{S_NS}, 10")
    a("s_add_u32 s19, s19, s11")
    a(f"s_add_u32 s19, s19, {56*1024}")
    for g in range(7):
        a(f"s_add_u32 s12, s{sRF}, {g}")
        a("s_cmp_ge_u32 s12, 7")
        a("s_cselect_b32 s13, 7, 0")
        a("s_sub_u32 s12, s12, s13")
        a(f"s_mul_i32 s{sGrp[g]}, s12, {64*896}")
    a(f"s_add_u32 s11, s{sMX}, {R[2]}")
    a(f"v_add_u32 v{vT+4}, s11, v{vP}")
    kparts = {}
    if cfg.s0a < 13:
        run_tokens([f"s0:{cfg.s0a}-13"])
        ts(1)
        ts.x(1, 6)
        run_tokens(win.get(-1, []))
    a(f"s_setprio {cfg.wprio}")
    for s in range(7):
        vm.wait(('st', s))
        ts.x(2, 1 + s)
        a("s_barrier")
        ts.x(3, 1 + s)
        if s == 0: ts(2)
        if s == 0:
            for k in range(6): a(f"ds_read_b128 v[{KP+4*k}:{KP+4*k+3}], v{vT+4} offset:{1024*k}")
        if s == 6:
            QQ = 28
            for p in range(8): a(f"ds_read_b32 v{QQ+p}, v{vT+1} offset:{512*p}")
            a("s_waitcnt lgkmcnt(0)")
            for p in range(4): a(f"v_add_f32 v{QQ+p}, v{QQ+p}, v{QQ+4+p}")
            a(f"v_add_f32 v{QQ}, v{QQ}, v{QQ+2}")
            a(f"v_add_f32 v{QQ+1}, v{QQ+1}, v{QQ+3}")
            a(f"v_add_f32 v{QQ}, v{QQ}, v{QQ+1}")
            a(f"ds_write_b32 v{vT}, v{QQ}")
            npre = win[6].index("put") + 1 if "put" in win[6] else 2
            pre = tok_ops(win[6][:npre])
            for o in pre: o()
            a("s_waitcnt lgkmcnt(0)")
            a("s_barrier")
            a("s_setprio 0")
            run_tokens(win[6][npre:])
            continue
        segs = [[None, []]]
        for t in win.get(s, []):
            if t.startswith("cs"): segs.append([int(t[2:]), []])
            else: segs[-1][1].append(t)
        for cs, toks in segs:
            fl = []
            if cs is not None:
                vm.wait(('st', cs))
                colsum_reads(cs)
                fl = colsum_ops()
            if cs == 6:
                b = ACC
                for k in range(8): fl.append(f"v_permlane32_swap_b32 v{CA+k}, v{CA+8+k}")
                fl.append(f"v_add_f32_dpp v{b}, v{b}, v{b} quad_perm:[1,0,3,2] row_mask:0xf bank_mask:0xf")
                for k in range(8): fl.append(f"v_add_f32 v{CA+k}, v{CA+k}, v{CA+8+k}")
                fl.append(f"v_add_f32_dpp v{b}, v{b}, v{b} quad_perm:[2,3,0,1] row_mask:0xf bank_mask:0xf")
                for k in range(8): fl.append(f"v_add_f32_dpp v{CA+k}, v{CA+k}, v{CA+k} row_ror:8 row_mask:0xf bank_mask:0xf")
                fl.append(f"v_add_f32_dpp v{b}, v{b}, v{b} row_half_mirror row_mask:0xf bank_mask:0xf")
                fl.append(f"ds_write_b128 v{vC}, v[{CA}:{CA+3}]")
                fl.append(f"ds_write_b128 v{vC}, v[{CA+4}:{CA+7}] offset:16")
                fl.append(f"ds_write_b32 v{vA}, v{b}")
            ops = tok_ops(toks)
            per = max(1, -(-len(fl) // max(1, len(ops))))
            interleave(a, ops, fl, per)
        if s == 5:
            a(f"s_and_b32 s12, s{S_W4}, 1")
            a("s_lshl_b32 s12, s12, 8")
            a(f"v_lshl_add_u32 v{vT}, v0, 2, s12")
            a(f"v_add_u32 v{vT+1}, {CP_L}, v{vT}")
            a(f"v_add_u32 v{vT}, {C_L}, v{vT}")
            a("s_waitcnt lgkmcnt(0)")
            a("s_setprio 3")
    ts.x(2, 8)
    a("s_barrier")
    ts(3)
    ts.x(3, 8)
    a(f"v_add_u32 v{vT+2}, {SD}, v{vPQ}")
    vm.wait(('w', 11), "lgkmcnt(0)")
    a("s_barrier")
    X, Y, ST = 32, 48, CF
    HR, HI, T1, T2, CBR, CBI, G0, G1, QR, QI = 20, 21, 22, 23, 24, 25, 26, 28, 30, 31
    for k in range(8): a(f"ds_read_b128 v[{X+4*k}:{X+4*k+3}], v{vT+2} offset:{1024*k}")
    a(f"ds_read_b32 v{CBR}, v{vCB}")
    a(f"ds_read_b32 v{CBI}, v{vCB} offset:64")
    for k in range(8): a(f"ds_read_b128 v[{ST+4*k}:{ST+4*k+3}], v{vStS} offset:{16*k}")
    a(f"s_setprio {cfg.eprio}")
    a(f"v_lshrrev_b32 v1, 4, v0")
    a(f"v_sub_u32 v1, s{S_MT}, v1")
    a(f"v_cmp_le_i32 s[56:57], 1, v1")
    a(f"v_cmp_le_i32 s[58:59], 5, v1")
    a(f"v_lshlrev_b32 v5, 16, v{KP+23}")
    a(f"v_mov_b32 v3, v{vF}")
    vF = 3
    a("s_waitcnt lgkmcnt(10)")
    for r in range(16): a(f"v_permlane16_swap_b32 v{X+r}, v{Y+r}")
    a("s_waitcnt lgkmcnt(0)")
    side = {}
    for r in range(16):
        if r in side: side[r]()
        m, rs = ST + 2 * r, ST + 2 * r + 1
        a(f"v_fma_f32 v{X+r}, -v{m}, v{CBR}, v{X+r}")
        a(f"v_fma_f32 v{Y+r}, -v{m}, v{CBI}, v{Y+r}")
        a(f"v_mul_f32 v{X+r}, v{X+r}, v{rs}")
        a(f"v_mul_f32 v{Y+r}, v{Y+r}, v{rs}")
        if r >= 1:
            pr, pi = (X, Y) if r == 1 else (HR, HI)
            a(f"v_fma_f32 v{T1}, -v{LI}, v{pi}, v{X+r}")
            a(f"v_fma_f32 v{T2}, v{LI}, v{pr}, v{Y+r}")
            a(f"v_fma_f32 v{HR}, v{LR}, v{pr}, v{T1}")
            a(f"v_fma_f32 v{HI}, v{LR}, v{pi}, v{T2}")
    z = CF
    a(f"v_mov_b32 v{z}, v{HR}"); a(f"v_mov_b32 v{z+1}, v{HI}")
    csq(a, z + 8, z + 9, L16R, L16I, z + 10)
    a(f"v_permlane32_swap_b32 v{HR}, v{z}")
    a(f"v_permlane32_swap_b32 v{HI}, v{z+1}")
    a(f"v_fma_f32 v{z}, -v{L16I}, v{HI}, v{z}")
    a(f"v_fma_f32 v{z+1}, v{L16I}, v{HR}, v{z+1}")
    a(f"v_fmac_f32 v{z}, v{L16R}, v{HR}")
    a(f"v_fmac_f32 v{z+1}, v{L16R}, v{HI}")
    a(f"v_mov_b32 v{z+2}, v{z}"); a(f"v_mov_b32 v{z+3}, v{z+1}")
    a(f"s_lshl_b32 s11, s{S_W4}, 7")
    a(f"v_add_u32 v{z+5}, s11, v{vAg}")
    a(f"v_permlane16_swap_b32 v{z}, v{z+2}")
    a(f"v_permlane16_swap_b32 v{z+1}, v{z+3}")
    a(f"v_fma_f32 v{z+2}, -v{z+9}, v{z+1}, v{z+2}")
    a(f"v_fma_f32 v{z+3}, v{z+9}, v{z}, v{z+3}")
    a(f"v_fmac_f32 v{z+2}, v{z+8}, v{z}")
    a(f"v_fmac_f32 v{z+3}, v{z+8}, v{z+1}")
    a(f"ds_write_b64 v{z+5}, v[{z+2}:{z+3}]")
    a("s_waitcnt lgkmcnt(0)")
    ts.x(2, 9)
    a(f"s_setprio {cfg.lprio}")
    a("s_barrier")
    ts(4)
    E = CF + 16
    for i in range(4): a(f"ds_read_b64 v[{E+2+2*i}:{E+3+2*i}], v{vAg} offset:{128*i}")
    a(f"v_mov_b32 v{E}, 0")
    a(f"v_mov_b32 v{E+1}, 0")
    a(f"v_and_b32 v{z+4}, 16, v0")
    a(f"v_cmp_ne_u32 s[12:13], 0, v{z+4}")
    for i in range(1, 4):
        e, p = E + 2 + 2 * i, E + 2 * i
        a(f"s_waitcnt lgkmcnt({3 - i})")
        a(f"v_fma_f32 v{e}, -v{L64I}, v{p+1}, v{e}")
        a(f"v_fma_f32 v{e+1}, v{L64I}, v{p}, v{e+1}")
        a(f"v_fmac_f32 v{e}, v{L64R}, v{p}")
        a(f"v_fmac_f32 v{e+1}, v{L64R}, v{p+1}")
    a(f"s_cmp_lg_u32 s{S_W4}, 0")
    a("s_cbranch_scc1 L_l_nopub")
    e = E + 8
    a(f"v_cmp_eq_u32 vcc, -1, v{e}")
    a(f"v_mov_b32 v{T1}, 0x7fc00000")
    a(f"v_cndmask_b32 v{e}, v{e}, v{T1}, vcc")
    a("s_mov_b64 exec, 0xffff")
    a(f"buffer_store_dwordx2 v[{e}:{e+1}], v{vAg}, s[{SRD_WS}:{SRD_WS+3}], s22 offen sc1")
    a("s_mov_b64 exec, -1")
    ts(5)
    a.label("L_l_nopub")
    a(f"v_cmp_lt_u32 vcc, 31, v0")
    a(f"v_cndmask_b32 v{z}, 0, v{z}, s[12:13]")
    a(f"v_cndmask_b32 v{z+1}, 0, v{z+1}, s[12:13]")
    a(f"v_fma_f32 v{HR}, -v{L16I}, v{z+1}, v{HR}")
    a(f"v_fma_f32 v{HI}, v{L16I}, v{z}, v{HI}")
    a(f"v_fmac_f32 v{HR}, v{L16R}, v{z}")
    a(f"v_fmac_f32 v{HI}, v{L16R}, v{z+1}")
    a(f"v_cndmask_b32 v{z}, v{z}, v{HR}, vcc")
    a(f"v_cndmask_b32 v{z+1}, v{z+1}, v{HI}, vcc")
    cmul(a, HR, HI, z, z + 1, CR, CI)
    a(f"s_bitcmp1_b32 s{S_W4}, 0")
    a("s_cselect_b64 vcc, -1, 0")
    a(f"v_cndmask_b32 v{QR}, v{E}, v{E+2}, vcc")
    a(f"v_cndmask_b32 v{QI}, v{E+1}, v{E+3}, vcc")
    a(f"v_cndmask_b32 v{T1}, v{E+4}, v{E+6}, vcc")
    a(f"v_cndmask_b32 v{T2}, v{E+5}, v{E+7}, vcc")
    a(f"s_bitcmp1_b32 s{S_W4}, 1")
    a("s_cselect_b64 vcc, -1, 0")
    a(f"v_cndmask_b32 v{QR}, v{QR}, v{T1}, vcc")
    a(f"v_cndmask_b32 v{QI}, v{QI}, v{T2}, vcc")
    ts.x(2, 10)
    thr[0] = cfg.thr
    lds = [f"buffer_load_dwordx2 v[{G0}:{G0+1}], v{vPr}, s[{SRD_WS}:{SRD_WS+3}], s23 offen sc1",
           f"buffer_load_dwordx2 v[{G1}:{G1+1}], v{vPr}, s[{SRD_WS}:{SRD_WS+3}], s20 offen sc1"]
    up = Rec()
    for r in range(16):
        up(f"v_mul_f32 v{T1}, v{CI}, v{Y+r}")
        up(f"v_mul_f32 v{T2}, v{CI}, v{X+r}")
        up(f"v_fma_f32 v{X+r}, v{CR}, v{X+r}, -v{T1}")
        up(f"v_fma_f32 v{Y+r}, v{CR}, v{Y+r}, v{T2}")
    vRd, vOne = 4, 2
    a(f"s_lshl_b32 s11, s{S_W4}, 2")
    a(f"s_add_u32 s11, s11, {CNT_L + 16}")
    a(f"v_mov_b32 v{vRd}, s11")
    a(f"v_mov_b32 v{vOne}, 1")
    thr[0] = None
    co = w_ops(range(22, 28)) + (c_ops(0) if cfg.c0early else [])
    interleave(a, co[:cfg.c1], up.L, 4)
    if cfg.agpos == 0:
        for t in lds: vm.issue('ag', t)
    w_write([12, 13, 14, 15])
    a(f"ds_write_b32 v{vRd}, v{vOne}")
    XV, STT, DS = 64, 80, 5
    TT = SACC + 32
    vHW = 1
    a(f"v_add_u32 v{vHW}, {HTS}, v{vPQ}")
    a(f"ds_write_b128 v{vHW}, v[{XRAW}:{XRAW+3}]")
    a(f"ds_write_b128 v{vHW}, v[{XRAW+4}:{XRAW+7}] offset:1024")
    a(f"v_lshrrev_b32 v{vT+3}, 5, v0")
    a(f"v_lshlrev_b32 v{vT+2}, 10, v{vT+3}")
    a(f"v_and_b32 v{vT}, 31, v0")
    a(f"v_lshl_add_u32 v{vT+2}, v{vT}, 1, v{vT+2}")
    a(f"s_add_u32 s11, s{sMP}, {HTS}")
    a(f"v_add_u32 v{vT+2}, s11, v{vT+2}")
    for r in range(16): a(f"ds_read_u16 v{XV+r}, v{vT+2} offset:{64*r}")
    if cfg.agpos == 1:
        for t in lds: vm.issue('ag', t)
    w_write([16, 17])
    def wrest():
        w_write([18, 19])
        w_write([20, 21])
        a(f"v_mov_b32 v{T1}, 2")
        a(f"ds_write_b32 v{vRd}, v{T1}")
    if not cfg.wl: wrest()
    co = co[cfg.c1:]
    ts(8)
    vm.wait('ag')
    def cond():
        a(f"v_cmp_eq_u32 vcc, -1, v{G0}")
        a("s_and_b64 s[48:49], vcc, s[56:57]")
        a(f"v_cmp_eq_u32 vcc, -1, v{G1}")
        a("s_and_b64 s[50:51], vcc, s[58:59]")
        a("s_or_b64 s[48:49], s[48:49], s[50:51]")
        a("s_cmp_eq_u64 s[48:49], 0")
    spin_check(a, "L_agg", lds, cond, 2)
    ts(6)
    SR, SI = CBR, CBI
    cmul(a, SR, SI, G0, G0 + 1, W0R, W0R + 1)
    cmul(a, T1, T2, G1, G1 + 1, W0R + 2, W0R + 3)
    a(f"v_cndmask_b32 v{SR}, 0, v{SR}, s[56:57]")
    a(f"v_cndmask_b32 v{SI}, 0, v{SI}, s[56:57]")
    a(f"v_cndmask_b32 v{T1}, 0, v{T1}, s[58:59]")
    a(f"v_cndmask_b32 v{T2}, 0, v{T2}, s[58:59]")
    a(f"v_add_f32 v{SR}, v{SR}, v{T1}")
    a(f"v_add_f32 v{SI}, v{SI}, v{T2}")
    for sw in ("v_permlane32_swap_b32", "v_permlane16_swap_b32"):
        a(f"v_mov_b32 v{T1}, v{SR}")
        a(f"v_mov_b32 v{T2}, v{SI}")
        a(f"{sw} v{SR}, v{T1}")
        a(f"{sw} v{SI}, v{T2}")
        a(f"v_add_f32 v{SR}, v{SR}, v{T1}")
        a(f"v_add_f32 v{SI}, v{SI}, v{T2}")
    a(f"v_fmac_f32 v{QR}, v{LWR}, v{SR}")
    a(f"v_fmac_f32 v{QI}, v{LWR}, v{SI}")
    a(f"v_fma_f32 v{QR}, -v{LWI}, v{SI}, v{QR}")
    a(f"v_fmac_f32 v{QI}, v{LWI}, v{SR}")
    a(f"v_fmac_f32 v{HR}, v{PWR}, v{QR}")
    a(f"v_fmac_f32 v{HI}, v{PWR}, v{QI}")
    a(f"v_fma_f32 v{HR}, -v{PWI}, v{QI}, v{HR}")
    a(f"v_fmac_f32 v{HI}, v{PWI}, v{QR}")
    pr, pi = HR, HI
    PK, HF = 96, 80
    rest = co[:cfg.c2]
    for r in range(16):
        if rest: rest.pop(0)()
        a(f"v_fma_f32 v{X+r}, -v{LI}, v{pi}, v{X+r}")
        a(f"v_fma_f32 v{Y+r}, v{LI}, v{pr}, v{Y+r}")
        a(f"v_fmac_f32 v{X+r}, v{LR}, v{pr}")
        a(f"v_fmac_f32 v{Y+r}, v{LR}, v{pi}")
        pr, pi = X + r, Y + r
    for k in range(8):
        a(f"v_cvt_pk_bf16_f32 v{PK+k}, v{X+2*k}, v{X+2*k+1}")
    a(f"ds_write_b128 v{vTW}, v[{PK}:{PK+3}]")
    a(f"ds_write_b128 v{vTW}, v[{PK+4}:{PK+7}] offset:16")
    for k in range(8):
        a(f"v_cvt_pk_bf16_f32 v{PK+8+k}, -v{Y+2*k}, -v{Y+2*k+1}")
    a(f"ds_write_b128 v{vTW}, v[{PK+8}:{PK+11}] offset:2048")
    a(f"ds_write_b128 v{vTW}, v[{PK+12}:{PK+15}] offset:2064")
    for q in range(2):
        for part in range(2):
            for j in range(2):
                d = HF + 8 * q + 4 * part + 2 * j
                a(f"ds_read_b64_tr_b16 v[{d}:{d+1}], v{vTR} offset:{(part*16 + 4*j)*128 + 64*(q ^ j)}")
    assert not rest
    a("s_waitcnt lgkmcnt(0)")
    for q in range(2):
        for part in range(2):
            d = HF + 8 * q + 4 * part
            a(f"s_add_u32 s11, s19, {q*RT_BYTES + part*HALF_BYTES}")
            vm.issue('hs', f"buffer_store_dwordx4 v[{d}:{d+3}], v{vP}, s[{SRD_WS}:{SRD_WS+3}], s11 offen{SP}")
    if cfg.wl: wrest()
    def flag2():
        vm.wait('hs')
        a("s_mov_b64 exec, 1")
        vm.issue('f', f"buffer_store_dword v{vOne}, v{vF}, s[{SRD_WS}:{SRD_WS+3}], 0 offen sc1")
        a("s_mov_b64 exec, -1")
        ts(7)
    if cfg.f2b == 0: flag2()
    for o in co[cfg.c2:] + (c_ops(2) if not cfg.clate else []): o()
    if cfg.f2b == 1: flag2()
    a(f"s_and_b32 s11, s{S_W4}, 1")
    a("s_lshl_b32 s11, s11, 8")
    a(f"s_add_u32 s11, s11, {ST2_L}")
    a(f"v_lshl_add_u32 v{vT+3}, v{vT+3}, 7, s11")
    a(f"v_mov_b32 v15, v{vT+3}")
    a(f"v_mov_b32 v{T2}, 3")
    vm.wait(('w', 27))
    a(f"ds_write_b32 v{vRd}, v{T2}")
    a("s_setprio 0")
    def rnd_pair(r0, r1):
        a(f"v_cvt_pk_bf16_f32 v{r1}, v{r0}, v{r1}"); a(f"v_lshlrev_b32 v{r0}, 16, v{r1}"); a(f"v_and_b32 v{r1}, s71, v{r1}")
    STA, STB = SACC + 48, SACC
    def tt_reads():
        for k in range(4): a(f"ds_read_b128 v[{STA+4*k}:{STA+4*k+3}], v15 offset:{16*k}")
        for k in range(4): a(f"ds_read_b128 v[{STB+4*k}:{STB+4*k+3}], v15 offset:{64 + 16*k}")
    def tt_calc():
        st = lambda r: (STA + 2 * r if r < 8 else STB + 2 * (r - 8))
        a("s_waitcnt lgkmcnt(0)")
        for r in range(16): a(f"v_lshlrev_b32 v{XV+r}, 16, v{XV+r}")
        for r in range(16): a(f"v_sub_f32 v{TT+r}, v{XV+r}, v{st(r)}")
        for k in range(8): rnd_pair(TT + 2 * k, TT + 2 * k + 1)
        for r in range(16): a(f"v_mul_f32 v{TT+r}, v{TT+r}, v{st(r)+1}")
    def tt_fin():
        L = Rec()
        for k in range(8):
            for t in (f"v_cvt_pk_bf16_f32 v{TT+2*k+1}, v{TT+2*k}, v{TT+2*k+1}", f"v_lshlrev_b32 v{TT+2*k}, 16, v{TT+2*k+1}", f"v_and_b32 v{TT+2*k+1}, s71, v{TT+2*k+1}"): L(t)
        for r in range(16): L(f"v_mul_f32 v{TT+r}, v{TT+r}, v{DS}")
        for k in range(8):
            for t in (f"v_cvt_pk_bf16_f32 v{TT+2*k+1}, v{TT+2*k}, v{TT+2*k+1}", f"v_lshlrev_b32 v{TT+2*k}, 16, v{TT+2*k+1}", f"v_and_b32 v{TT+2*k+1}, s71, v{TT+2*k+1}"): L(t)
        return L.L
    tt_reads()
    if cfg.ttpos == 0: tt_calc()
    def poll(name, off):
        sspin(a, name, [f"s_load_dwordx16 s[20:35], s[{P_WS}:{P_WS+1}], s18 glc"], pcond, cfg.psleep)
    if True:
        def pcond():
            for k in range(0, 12, 4): a(f"s_and_b64 s[{20+k}:{21+k}], s[{20+k}:{21+k}], s[{22+k}:{23+k}]")
            a("s_and_b64 s[20:21], s[20:21], s[24:25]")
            a("s_and_b64 s[28:29], s[28:29], s[32:33]")
            a("s_and_b64 s[20:21], s[20:21], s[28:29]")
            a("s_and_b32 s20, s20, s21")
            a("s_cmp_eq_u32 s20, 1")
    a(f"s_mul_i32 s57, s40, {RT_BYTES}")
    a("s_xor_b32 s11, s40, 1")
    a(f"s_mul_i32 s56, s11, {RT_BYTES}")
    a(f"s_lshr_b32 s11, s{S_W4}, 1")
    a(f"s_mul_i32 s11, s11, {HALF_BYTES}")
    a(f"s_add_u32 s11, s11, {56*1024}")
    a("s_add_u32 s56, s56, s11")
    a("s_add_u32 s57, s57, s11")
    a(f"s_and_b32 s12, s{S_W4}, 1")
    a("s_lshl_b32 s13, s12, 14")
    for b in range(3):
        if cfg.crot:
            a(f"s_sub_u32 s11, s{sCB[b]}, s{sCF}")
            a("s_lshr_b32 s11, s11, 1")
            a(f"s_add_u32 s{52+b}, s13, s11")
        else: a(f"s_add_u32 s{52+b}, s13, {b*4096}")
    a("s_lshl_b32 s12, s12, 11")
    a(f"s_add_u32 s55, s12, {12*1024}")
    srd(a, 60, P_OUT, 2048 * 1792)
    vW1, vW2, vCn, vCv = 1, 2, 9, 4
    vR = [3, 12, 13, 14]
    a(f"v_add_u32 v{vW1}, {PH1}, v{vPQ}")
    a(f"v_add_u32 v{vW2}, {PH2}, v{vPQ}")
    a(f"v_mov_b32 v{vCn}, {CNT_L}")
    for (reg, xr, base) in ((vR[0], 1, PH1), (vR[1], 3, PH1 + 4096), (vR[2], 2, PH2)):
        a(f"s_xor_b32 s11, s{S_W4}, {xr}")
        a(f"s_mul_i32 s11, s11, {Q}")
        a(f"s_add_u32 s11, s11, {base}")
        a(f"v_add_u32 v{reg}, s11, v{vP}")
    a(f"v_add_u32 v{vR[3]}, {GA}, v{vPQ}")
    ts.x(2, 11)
    ts.x(7, 11)
    AR = list(range(16, 64, 4))
    NA = len(AR)
    PO = [4, 5, 6, 7, 12, 13, 0, 1, 2, 3, 8, 9, 10, 11]
    def aload(n):
        lr, p = n // 14, PO[n % 14]
        if p % 4 == 0: a(f"s_add_u32 s58, s{56+lr}, s{52 + p//4}")
        d = AR[n % NA]
        vm.issue(('a', n), f"buffer_load_dwordx4 v[{d}:{d+3}], v{vP}, s[{SRD_WS}:{SRD_WS+3}], s58 offen offset:{(p%4)*1024}{AP}")
    def cnt_wait(name, off):
        a("s_mov_b32 s73, 0")
        a.label(name)
        a("s_waitcnt lgkmcnt(0)")
        a(f"v_readfirstlane_b32 s11, v{vCv}")
        a("s_cmp_ge_u32 s11, 4")
        a(f"s_cbranch_scc1 {name}ok")
        a("s_add_u32 s73, s73, 1")
        a(f"s_cmp_ge_u32 s73, {SPIN_MAX}")
        a(f"s_cbranch_scc1 {name}ok")
        a("s_sleep 1")
        a(f"ds_read_b32 v{vCv}, v{vCn} offset:{off}")
        a(f"s_branch {name}")
        a.label(name + "ok")
        a("s_nop 7")
    assert cfg.clate == 2 and cdone == {1, 3}
    if cfg.gate == 0: poll("L_ps", 128)
    if cfg.gate < 2:
        a(f"ds_read_b32 v{vCv}, v{vCn} offset:4")
        cnt_wait("L_l_c0", 4)
    if cfg.sprio: a(f"s_setprio {cfg.sprio}")
    cc = c_ops(0) + c_ops(2)
    for o in cc[:cfg.c0n]: o()
    if cfg.gate != 0: poll("L_ps", 128)
    ts(9)
    ts.x(7, 1)
    for n in range(6): aload(n)
    for o in cc[cfg.c0n:8]: o()
    for n in range(6, 10): aload(n)
    for o in cc[max(8, cfg.c0n):]: o()
    for n in range(10, NA): aload(n)
    a("s_setprio 0")
    if cfg.ttpos == 1: tt_calc()
    tf = tt_fin()
    ts.x(7, 2)
    for n in range(28):
        lr, p = n // 14, PO[n % 14]
        vm.wait(('a', n))
        assert ('c', min(p // 4, 3)) not in vm.q
        if n in (0, 7, 14, 21): ts.x(7, 3 + n // 7)
        d = AR[n % NA]
        for lc in (1, 0):
            acc = SACC + 32 * lr + 16 * lc
            c = "0" if (n % 14 == 0 and not (lr == 1 and lc == 0)) else f"v[{acc}:{acc+15}]"
            f = cfrag(p, lc)
            a(f"v_mfma_f32_32x32x16_bf16 v[{acc}:{acc+15}], v[{d}:{d+3}], v[{f}:{f+3}], {c}")
        if n + NA < 28: aload(n + NA)
        for _ in range(5):
            if tf: a(tf.pop(0))
        if n == 13: assert not tf
        if cfg.gate == 2 and n == 14: a(f"ds_read_b32 v{vCv}, v{vCn} offset:4")
        if cfg.gate == 2 and n == 15: cnt_wait("L_l_c0", 4)
        if 16 <= n < 24:
            k = n - 16
            a(f"ds_write_b128 v{vW1}, v[{SACC+4*k}:{SACC+4*k+3}] offset:{1024*k}")
    ts(10)
    ts.x(7, 7)
    ts.x(7, 8)
    for k in range(4):
        a(f"ds_write_b128 v{vW2}, v[{SACC+48+4*k}:{SACC+48+4*k+3}] offset:{1024*k}")
    a("s_waitcnt lgkmcnt(0)")
    ts.x(7, 9)
    a("s_barrier")
    ts(11)
    ts.x(7, 10)
    RX = CF
    for k in range(4):
        for w in range(4):
            a(f"ds_read_b128 v[{RX+16*w+4*k}:{RX+16*w+4*k+3}], v{vR[w]} offset:{1024*k}")
    for k in range(4):
        a(f"s_waitcnt lgkmcnt({12 - 4*k})")
        for r in range(4 * k, 4 * k + 4):
            a(f"v_add_f32 v{TT+r}, v{TT+r}, v{RX+r}")
            a(f"v_add_f32 v{RX+16+r}, v{RX+16+r}, v{RX+32+r}")
        for r in range(4 * k, 4 * k + 4):
            a(f"v_add_f32 v{TT+r}, v{TT+r}, v{RX+16+r}")
        for r in range(4 * k, 4 * k + 4):
            a(f"v_fma_f32 v{XV+r}, v{TT+r}, v{RX+48+r}, v{XV+r}")
            if r % 2 == 0: a(f"s_mov_b32 s11, {r*1792}")
            a(f"buffer_store_dword v{XV+r}, v{vO}, s[60:63], s11 offen offset:{(r%2)*1792}{OP}")
    if cfg.ts:
        a("s_waitcnt vmcnt(0)")
        ts(12)
    if cfg.padto:
        a.label("L_pad")
        a("s_memrealtime s[98:99]")
        a("s_waitcnt lgkmcnt(0)")
        a("s_sub_u32 s98, s98, s100")
        a(f"s_cmp_lt_u32 s98, {cfg.padto}")
        a("s_cbranch_scc1 L_pad")
    ts.dump(16, 17, 1)
    a("s_endpgm")

def gen_consumer(a, cfg, ts):
    if cfg.al >= 2: a.raw(".p2align 12")
    a.label("L_consumer")
    SP = ["", " sc1"][cfg.spol]
    AP = ['', ' sc1', ' sc1 nt', ' sc0 sc1', ' sc0', ' nt'][cfg.apol]
    vm = VM(a)
    XA = [1, 2, 3, 4]; BA = [5, 6, 7, 8]; WA = [9, 10]
    vL16, vStF, vCL, vF, vFl, vSo, vCn, vRd, vWB, vPQ, vOne, MM = 11, 12, 13, 14, 15, 16, 17, 18, 19, 20, 21, 22
    FS = [40, 68]
    ACC = 96
    def G(ft, q): return ACC + 16 * (2 * ft + q)
    def U(ft, q): return ACC + 64 + 16 * (2 * ft + q)
    def S(q): return ACC + 128 + 16 * q
    vI, vH, t0, t1, t2 = 24, 25, 26, 27, 28
    a(f"v_and_b32 v{vI}, 31, v0")
    a(f"v_lshrrev_b32 v{vH}, 5, v0")
    a(f"v_bfe_u32 v{t0}, v0, 1, 3")
    a(f"v_xor_b32 v{t0}, v{t0}, v{vH}")
    a(f"v_lshlrev_b32 v{t0}, 4, v{t0}")
    a(f"v_lshl_add_u32 v{t0}, v{vI}, 7, v{t0}")
    a(f"s_lshl_b32 s11, s{S_W4}, 13")
    for ks in range(4):
        a(f"v_xor_b32 v{t1}, {32*ks}, v{t0}")
        a(f"v_add_u32 v{XA[ks]}, s11, v{t1}")
        a(f"v_add_u32 v{BA[ks]}, {OFF_BB}, v{t1}")
    a(f"v_bfe_u32 v{t0}, v0, 2, 2")
    a(f"v_lshlrev_b32 v{t1}, 7, v{t0}")
    a(f"v_lshrrev_b32 v{t0}, 1, v{t0}")
    a(f"v_lshl_add_u32 v{t1}, v{t0}, 6, v{t1}")
    a(f"v_bfe_u32 v{t0}, v0, 4, 1")
    a(f"v_lshl_add_u32 v{t1}, v{t0}, 5, v{t1}")
    a(f"v_and_b32 v{t2}, 3, v0")
    a(f"v_lshl_add_u32 v{t1}, v{t2}, 3, v{t1}")
    a(f"v_lshl_add_u32 v{WA[0]}, v{vH}, 10, v{t1}")
    a(f"v_add_u32 v{WA[0]}, {OFF_WG}, v{WA[0]}")
    a(f"v_xor_b32 v{WA[1]}, 64, v{WA[0]}")
    a(f"s_mul_i32 s62, s{S_W4}, {Q}")
    a(f"s_lshr_b32 s59, s{S_W4}, 1")
    a(f"s_and_b32 s63, s{S_W4}, 1")
    a("s_lshl_b32 s11, s59, 6")
    a(f"v_lshl_add_u32 v{vWB}, v{vH}, 9, v{t1}")
    a(f"v_xor_b32 v{vWB}, s11, v{vWB}")
    a(f"v_add_u32 v{vWB}, s62, v{vWB}")
    a("s_waitcnt lgkmcnt(0)")
    a(f"s_lshl_b32 s11, s{S_NS}, 5")
    a(f"s_load_dwordx8 s[32:39], s[{P_LRE}:{P_LRE+1}], s11")
    a(f"s_load_dwordx8 s[64:71], s[{P_LDT}:{P_LDT+1}], s11")
    a(f"s_load_dwordx8 s[24:31], s[{P_LIM}:{P_LIM+1}], s11")
    for k in range(4 if cfg.zpeel else 160): a(f"v_mov_b32 v{ACC+k}, 0")
    a(f"v_mov_b32 v{vCn}, {CNT_L}")
    a(f"ds_write_b128 v{vCn}, v[{ACC}:{ACC+3}]")
    a(f"ds_write_b128 v{vCn}, v[{ACC}:{ACC+3}] offset:16")
    a(f"v_bfe_u32 v{t0}, v0, 2, 1")
    a(f"v_lshl_add_u32 v{t0}, v{t0}, 4, v{t2}")
    a(f"v_bfe_u32 v{t1}, v0, 3, 2")
    a(f"v_lshl_add_u32 v{t0}, v{t1}, 2, v{t0}")
    a(f"s_lshl_b32 s11, s{S_W4}, 9")
    a(f"s_add_u32 s11, s11, {STATS_L}")
    a(f"v_lshl_add_u32 v{vStF}, v{t0}, 3, s11")
    a(f"v_lshlrev_b32 v{vL16}, 4, v0")
    a(f"v_add_u32 v{vPQ}, s62, v{vL16}")
    a(f"v_lshlrev_b32 v{vCL}, 4, v{vH}")
    a(f"v_add_u32 v{vCL}, {C_L}, v{vCL}")
    a(f"v_mov_b32 v{vOne}, 1")
    a(f"s_lshl_b32 s11, s{S_W4}, 2")
    a(f"s_add_u32 s11, s11, {CNT_L + 16}")
    a(f"v_mov_b32 v{vRd}, s11")
    a("s_lshl_b32 s11, s63, 8")
    a(f"s_add_u32 s11, s11, {ST2_L}")
    a(f"v_lshl_add_u32 v{vSo}, v{vH}, 7, s11")
    a(f"s_lshl_b32 s13, s{S_MT}, 2")
    a(f"s_add_u32 s13, s13, s{S_W4}")
    a(f"s_mul_i32 s56, s13, {2*RT_BYTES}")
    a(f"s_cmp_ge_u32 s{S_NS}, 14")
    a(f"s_cselect_b32 s11, {HALF_BYTES - 56*1024}, 0")
    a(f"s_lshl_b32 s12, s{S_NS}, 12")
    a("s_add_u32 s11, s11, s12")
    a("s_add_u32 s56, s56, s11")
    a(f"s_add_u32 s57, s56, {RT_BYTES}")
    a("s_lshl_b32 s11, s13, 10")
    flag_index(a, 12, 14, 7)
    a("s_add_u32 s11, s11, s12")
    a(f"s_add_u32 s11, s11, {WS_FLAG:#x}")
    a(f"v_mov_b32 v{vF}, s11")
    a(f"s_lshl_b32 s55, s{S_M64}, 10")
    a(f"s_add_u32 s55, s55, {WS_FLAG:#x}")
    a(f"s_lshl_b32 s11, s{S_W4}, 7")
    a("s_add_u32 s55, s55, s11")
    a(f"s_mul_i32 s12, s59, {HALF_BYTES}")
    a(f"s_mul_i32 s13, s63, {28*1024}")
    a("s_add_u32 s12, s12, s13")
    a(f"s_lshl_b32 s11, s{S_M64}, 1")
    a("s_add_u32 s11, s11, s63")
    a(f"s_mul_i32 s52, s11, {RT_BYTES}")
    a("s_add_u32 s52, s52, s12")
    a("s_xor_b32 s11, s11, 1")
    a(f"s_mul_i32 s51, s11, {RT_BYTES}")
    a("s_add_u32 s51, s51, s12")
    p2_rot(a, cfg, 60, 61, 58)
    a("s_mov_b32 s12, 0x00030003")
    a("s_mov_b32 s13, 0x00030003")
    a("s_waitcnt lgkmcnt(0)")
    K, KP = 40, 64
    for k in range(8):
        a(f"s_lshl_b64 exec, s[12:13], {2*k}")
        for m, sb in enumerate((32, 24, 64)): a(f"v_mov_b32 v{K+m}, s{sb+k}")
    a("s_mov_b64 exec, -1")
    a(f"v_and_b32 v{K+3}, 1, v0")
    a(f"v_lshlrev_b32 v{K+3}, 4, v{K+3}")
    for m in range(3): a(f"v_lshrrev_b32 v{K+m}, v{K+3}, v{K+m}")
    srd(a, SRD_WS, P_WS, WS_SIZE)
    ssm_park(a, K, KP, 62)
    a(f"v_mov_b32 v{KP+23}, 0")
    a(f"s_lshl_b32 s11, s{S_W4}, 13")
    a(f"s_add_u32 s11, s11, {R[2]}")
    a(f"v_add_u32 v{K}, s11, v{vL16}")
    for k in range(6): a(f"ds_write_b128 v{K}, v[{KP+4*k}:{KP+4*k+3}] offset:{1024*k}")
    a("s_waitcnt lgkmcnt(0)")
    ts(1)

    def reads(fs, ks):
        f = FS[fs]
        L = []
        L.append(f"ds_read_b128 v[{f}:{f+3}], v{XA[ks]}")
        L.append(f"ds_read_b128 v[{f+24}:{f+27}], v{BA[ks]}")
        L.append(f"ds_read_b128 v[{f+4}:{f+7}], v{XA[ks]} offset:4096")
        for gu in range(2):
            for ft in range(2):
                for j in range(2):
                    d = f + 8 + 8 * gu + 4 * ft + 2 * j
                    L.append(f"ds_read_b64_tr_b16 v[{d}:{d+1}], v{WA[ft]} offset:{gu*8192 + ks*2048 + j*512}")
        return L
    def mfmas(fs):
        f = FS[fs]
        X = [f, f + 4]; Bf = f + 24
        L = []
        for q in range(2):
            L.append(f"v_mfma_f32_32x32x16_bf16 v[{S(q)}:{S(q)+15}], v[{X[q]}:{X[q]+3}], v[{Bf}:{Bf+3}], v[{S(q)}:{S(q)+15}]")
        for gu in range(2):
            for ft in range(2):
                w = f + 8 + 8 * gu + 4 * ft
                for q in range(2):
                    d = (G, U)[gu](ft, q)
                    L.append(f"v_mfma_f32_32x32x16_bf16 v[{d}:{d+15}], v[{w}:{w+3}], v[{X[q]}:{X[q]+3}], v[{d}:{d+15}]")
        return L
    a("s_setprio 2")
    a("s_mov_b32 s72, 0")
    a("s_mov_b32 s74, 0")
    a("s_barrier")
    ts(2)
    for t in reads(0, 0): a(t)
    need = {0: 9, 1: 8, 2: 6, 4: 4, 6: 2, 8: 0}
    if cfg.zpeel:
        Rd = reads(1, 1)
        issued = 0
        for i, m in enumerate(mfmas(0)):
            if i in need: a(f"s_waitcnt lgkmcnt({min(15, need[i] + issued)})")
            a(m[:m.rindex(", v[")] + ", 0")
            for _ in range(2 if i >= cfg.rdstart else 0):
                if Rd: a(Rd.pop(0)); issued += 1
        a("s_branch L_c_k1")
    a.label("L_c_loop")
    for ks in range(4):
        if ks == 1: a.label("L_c_k1")
        fs = ks & 1
        M = mfmas(fs)
        if ks < 3:
            Rd = reads(1 - fs, ks + 1)
            issued = 0
            for i, m in enumerate(M):
                if i in need: a(f"s_waitcnt lgkmcnt({min(15, need[i] + issued)})")
                a(m)
                for _ in range(2 if i >= cfg.rdstart else 0):
                    if Rd: a(Rd.pop(0)); issued += 1
        else:
            Rd = reads(1 - fs, 0)
            a("s_waitcnt lgkmcnt(9)")
            a(M[0])
            a("s_add_u32 s74, s74, 1")
            a("s_cmp_eq_u32 s74, 3")
            a("s_mov_b32 s75, 53248")
            a(f"s_cmov_b32 s75, {(-106496) & 0xffffffff:#x}")
            a("s_cselect_b32 s74, 0, s74")
            for v in XA + BA[:1]: a(f"v_add_u32 v{v}, s75, v{v}")
            a("s_waitcnt lgkmcnt(8)")
            a(M[1])
            for v in BA[1:] + WA: a(f"v_add_u32 v{v}, s75, v{v}")
            a("s_add_u32 s72, s72, 1")
            a("s_cmp_eq_u32 s72, 6")
            a("s_waitcnt lgkmcnt(0)")
            a(M[2])
            a("s_barrier")
            hist = list(a.hist)
            a("s_cbranch_scc1 L_c_last")
            for m in M[3:]:
                for _ in range(2):
                    if Rd: a(Rd.pop(0))
                a(m)
            a("s_branch L_c_loop")
            a.label("L_c_last")
            a.hist = hist
            Mtail = M[3:]
    lq = []
    def ds_issue(tag, t):
        a(t)
        if t.startswith("ds_"): lq.append(tag)
    def ds_wait(tag):
        idx = max((i for i, t in enumerate(lq) if t == tag), default=None)
        if idx is None: return None
        n = len(lq) - 1 - idx
        del lq[:idx + 1]
        return f"lgkmcnt({min(n, 15)})"
    def dwait(tag):
        w = ds_wait(tag)
        if w: a(f"s_waitcnt {w}")
    UB = [24, 40, 56]
    def ureads(u):
        b, ks = UB[u % 3], u % 4
        L = [f"ds_read_b128 v[{b}:{b+3}], v{XA[ks]}"]
        if u < 8:
            ft = u // 4
            for gu in range(2):
                for j in range(2):
                    d = b + 8 + 4 * gu + 2 * j
                    L.append(f"ds_read_b64_tr_b16 v[{d}:{d+1}], v{WA[ft]} offset:{gu*8192 + ks*2048 + j*512}")
        else:
            L.append(f"ds_read_b128 v[{b+8}:{b+11}], v{BA[ks]}")
        L.append(f"ds_read_b128 v[{b+4}:{b+7}], v{XA[ks]} offset:4096")
        return [(u, t) for t in L]
    def umfma(u):
        b = UB[u % 3]
        L = []
        for q in range(2):
            x = b + 4 * q
            if u < 8:
                for gu in range(2):
                    d = (G, U)[gu](u // 4, q); w = b + 8 + 4 * gu
                    L.append(f"v_mfma_f32_32x32x16_bf16 v[{d}:{d+15}], v[{w}:{w+3}], v[{x}:{x+3}], v[{d}:{d+15}]")
            else:
                L.append(f"v_mfma_f32_32x32x16_bf16 v[{S(q)}:{S(q)+15}], v[{x}:{x+3}], v[{b+8}:{b+11}], v[{S(q)}:{S(q)+15}]")
        return L
    Rd = ureads(0) + ureads(1)
    for m in Mtail:
        for _ in range(2):
            if Rd: ds_issue(*Rd.pop(0))
        a(m)
    CH = 72
    def chalf(p):
        for gu in range(2):
            for k in range(2):
                ds_issue(('c', p), f"ds_read_b128 v[{CH+8*gu+4*k}:{CH+8*gu+4*k+3}], v{vCL} offset:{256*gu + 32*(2*p+k)}")
    def hstore(ft, q, p):
        g = G(ft, q)
        vm.issue('h', f"buffer_store_dwordx4 v[{g+4*p}:{g+4*p+3}], v{vL16}, s[{SRD_WS}:{SRD_WS+3}], s{56+q} offen offset:{(2*ft+p)*1024}{SP}")
    ep = [lambda: dwait(('c', 0)), f"v_xor_b32 v{MM}, 0x80000000, v{MM}", f"v_xor_b32 v{MM+1}, 0x80000000, v{MM+1}"]
    for p in range(2):
        if p: ep.append(lambda: dwait(('c', 1)))
        for q in range(2):
            g, u = G(0, q) + 8 * p, U(0, q) + 8 * p
            for k in range(8): ep.append(f"v_fmac_f32 v{g+k}, v{MM+q}, v{CH+k}")
            for k in range(8): ep.append(f"v_fmac_f32 v{u+k}, v{MM+q}, v{CH+8+k}")
            if q == 1 and p == 0: ep.append(lambda: chalf(1))
            for k in range(8): ep.append(f"v_max_f32 v{g+k}, 0, v{g+k}")
            for k in range(8): ep.append(f"v_mul_f32 v{u+k}, v{u+k}, v{g+k}")
            for k in range(4): ep.append(f"v_cvt_pk_bf16_f32 v{G(0,q)+4*p+k}, v{u+2*k}, v{u+2*k+1}")
            ep.append(lambda q=q, p=p: hstore(0, q, p))
    def fill(n):
        while n > 0 and ep:
            t = ep.pop(0)
            if callable(t): t()
            else: a(t)
            n -= 1
    def cread(tag, dst, off):
        for k in range(4): ds_issue(tag, f"ds_read_b128 v[{dst+4*k}:{dst+4*k+3}], v{vCL} offset:{off + 32*k}")
    for u in range(12):
        dwait(u)
        if u == 11:
            a("s_barrier")
        Rd = ureads(u + 2) if u + 2 < 12 else []
        for i, m in enumerate(umfma(u)):
            a(m)
            for _ in range(2):
                if Rd: ds_issue(*Rd.pop(0))
            if u > 4 or (u == 4 and i >= 1): fill(cfg.fper - 1 if u < 10 else cfg.fper)
        if u == cfg.c2u:
            a("s_barrier")
            ds_issue(('c', 0), f"ds_read_b32 v{MM}, v{vStF}")
            ds_issue(('c', 0), f"ds_read_b32 v{MM+1}, v{vStF} offset:256")
            chalf(0)
        if u == 9: cread('cg', UB[0], 128)
        if u == 10: cread('cu', UB[1], 384)
    ts(3)
    fill(1000)
    dump = [f"ds_write_b128 v{vPQ}, v[{S(0)+4*k}:{S(0)+4*k+3}] offset:{SD + 1024*k}" for k in range(8)]
    WB = {0: [1, 2], 1: [3, 4], 2: [5, 6]}
    for rg in range(3):
        a(f"v_add_u32 v{WB[rg][0]}, {R[rg]}, v{vWB}")
        a(f"v_xor_b32 v{WB[rg][1]}, 64, v{WB[rg][0]}")
    dwait('cu')
    cg, cu = UB[0], UB[1]
    for q in range(2):
        g, u = G(1, q), U(1, q)
        sel = f"op_sel:[{q},0,0] op_sel_hi:[{q},1,1]"
        for p in range(2):
            kr = range(4 * p, 4 * p + 4)
            for k in kr:
                a(f"v_pk_fma_f32 v[{g+2*k}:{g+2*k+1}], v[{MM}:{MM+1}], v[{cg+2*k}:{cg+2*k+1}], v[{g+2*k}:{g+2*k+1}] {sel}")
                if dump: a(dump.pop(0))
            for k in kr:
                a(f"v_pk_fma_f32 v[{u+2*k}:{u+2*k+1}], v[{MM}:{MM+1}], v[{cu+2*k}:{cu+2*k+1}], v[{u+2*k}:{u+2*k+1}] {sel}")
                a(f"v_max_f32 v{g+2*k}, 0, v{g+2*k}")
                a(f"v_max_f32 v{g+2*k+1}, 0, v{g+2*k+1}")
            for k in kr:
                a(f"v_pk_mul_f32 v[{u+2*k}:{u+2*k+1}], v[{u+2*k}:{u+2*k+1}], v[{g+2*k}:{g+2*k+1}]")
            for k in kr:
                a(f"v_cvt_pk_bf16_f32 v{g+k}, v{u+2*k}, v{u+2*k+1}")
            if q == 0 and p == 1:
                a("s_waitcnt lgkmcnt(0)")
                a("s_barrier")
            hstore(1, q, p)
    del lq[:]
    ts(4)
    BR, NB = 160, 12
    def breads(p):
        sl = WSLOT[p]
        rg = max(k for k in range(3) if R[k] <= sl)
        L = []
        for lc in range(2):
            for jj in range(2):
                d = BR + 8 * (p % NB) + 4 * lc + 2 * jj
                L.append(f"ds_read_b64_tr_b16 v[{d}:{d+1}], v{WB[rg][lc]} offset:{sl - R[rg] + jj*1024}")
        return L
    for p in range(NB):
        for t in breads(p): a(t)
    def flag1():
        vm.wait('h')
        a("s_setprio 3")
        a("s_mov_b64 exec, 1")
        vm.issue('f', f"buffer_store_dword v{vOne}, v{vF}, s[{SRD_WS}:{SRD_WS+3}], 0 offen sc1")
        a("s_mov_b64 exec, -1")
        ts(6)
    if cfg.fpre: flag1()
    a("s_waitcnt lgkmcnt(0)")
    a("s_barrier")
    ts(5)
    if not cfg.fpre: flag1()
    AF = 96
    AR = list(range(24, 96, 4))
    NA = len(AR)
    def aload(n):
        p, lr = n // 2, n % 2
        if n % 8 == 0:
            a(f"s_lshl_b32 s11, s60, 12")
            a(f"s_add_u32 s54, s11, s52")
            a(f"s_add_u32 s53, s11, s51")
            a(f"s_add_u32 s60, s60, 1")
            a(f"s_cmp_eq_u32 s60, 7")
            a(f"s_cselect_b32 s60, 0, s60")
        d = AR[n % NA]
        vm.issue(('a', n), f"buffer_load_dwordx4 v[{d}:{d+3}], v{vL16}, s[{SRD_WS}:{SRD_WS+3}], s{54 - lr} offen offset:{(p%4)*1024}{AP}")
    def cond():
        a("s_and_b64 s[16:17], s[16:17], s[18:19]")
        a("s_and_b64 s[16:17], s[16:17], s[20:21]")
        a("s_and_b32 s16, s16, s17")
        a("s_and_b32 s16, s16, s22")
        a("s_cmp_eq_u32 s16, 1")
    sspin(a, "L_pf", [f"s_load_dwordx8 s[16:23], s[{P_WS}:{P_WS+1}], s55 glc"], cond, cfg.fsleep)
    a("s_setprio 2")
    ts(7)
    for n in range(cfg.a0): aload(n)
    nxt = [cfg.a0]
    ts(8)
    def lds_spin(name, vaddr, off, val):
        a("s_mov_b32 s73, 0")
        a.label(name)
        a("s_waitcnt lgkmcnt(0)")
        a("v_readfirstlane_b32 s11, v8")
        a(f"s_cmp_ge_u32 s11, {val}")
        a(f"s_cbranch_scc1 {name}ok")
        a("s_add_u32 s73, s73, 1")
        a(f"s_cmp_ge_u32 s73, {SPIN_MAX}")
        a(f"s_cbranch_scc1 {name}ok")
        a("s_sleep 1")
        a(f"ds_read_b32 v8, v{vaddr} offset:{off}")
        a(f"s_branch {name}")
        a.label(name + "ok")
        del lq[:]
    for p in range(28):
        f = BR + 8 * (p % NB)
        pn = p + cfg.bd
        for lr in range(2):
            n = 2 * p + lr
            w = ds_wait(p) if lr == 0 else None
            vm.wait(('a', n), w or "")
            if n == 0: ts(9)
            if n in (0, 7, 17, 25, 35): ts.x(6, {0: 7, 7: 8, 17: 9, 25: 10, 35: 11}[n])
            if lr == 0 and pn in (12, 16, 22): ds_issue('r', f"ds_read_b32 v8, v{vRd}")
            d = AR[n % NA]
            for lc in range(2):
                acc = AF + 32 * lr + 16 * lc
                c = "0" if p == 0 else f"v[{acc}:{acc+15}]"
                a(f"v_mfma_f32_32x32x16_bf16 v[{acc}:{acc+15}], v[{d}:{d+3}], v[{f+4*lc}:{f+4*lc+3}], {c}")
            for _ in range(2):
                if nxt[0] < 56 and nxt[0] <= n + NA:
                    aload(nxt[0]); nxt[0] += 1
        if pn in (12, 16, 22): lds_spin(f"L_c_r{pn}", vRd, 0, {12: 1, 16: 2, 22: 3}[pn])
        if p == cfg.ksig:
            assert pn > 15
            w = ds_wait(15)
            if w: a(f"s_waitcnt {w}")
            a("s_mov_b64 exec, 1")
            ds_issue('c', f"ds_add_u32 v{vCn}, v{vOne} offset:4")
            a("s_mov_b64 exec, -1")
        if NB <= pn < 28:
            for t in breads(pn): ds_issue(pn, t)
        if p == 24:
            STT = BR + 32
            for k in range(8): ds_issue('st', f"ds_read_b128 v[{STT+4*k}:{STT+4*k+3}], v{vSo} offset:{16*k}")
        if p == 26:
            for x in range(1, 4):
                a(f"s_xor_b32 s11, s{S_W4}, {x}")
                a(f"s_mul_i32 s11, s11, {Q}")
                a(f"s_add_u32 s11, s11, {FXA + (x-1)*4096}")
                a(f"v_add_u32 v{x}, s11, v{vL16}")
            a(f"v_add_u32 v4, {GA}, v{vPQ}")
            a(f"v_add_u32 v5, {FXA}, v{vPQ}")
        if p % 4 == 3: ts.x(4, 1 + p // 4)
    ts(11)
    ts.x(7, 1)
    if cfg.pprio != 2: a(f"s_setprio {cfg.pprio}")
    for x in (2, 1, 3):
        src = AF + 32 * (x & 1) + 16 * (x >> 1)
        for k in range(4):
            a(f"ds_write_b128 v5, v[{src+4*k}:{src+4*k+3}] offset:{(x-1)*4096 + 1024*k}")
    a("s_waitcnt lgkmcnt(12)")
    for r in range(16): a(f"v_mul_f32 v{STT+2*r}, v{STT+2*r+1}, v{STT+2*r+1}")
    a(f"s_mov_b32 s13, {LOG2E ^ 0x80000000:#x}")
    ts.x(7, 2)
    a("s_waitcnt lgkmcnt(0)")
    ts.x(7, 3)
    a("s_mov_b64 exec, 1")
    a(f"ds_add_u32 v{vCn}, v{vOne}")
    a("s_mov_b64 exec, -1")
    a(f"ds_read_b32 v8, v{vCn}")
    lds_spin("L_c_cnt", vCn, 0, 4)
    ts.x(7, 4)
    O, RX, EX = AF, 24, 72
    for k in range(4):
        for x in range(1, 4):
            a(f"ds_read_b128 v[{RX+16*(x-1)+4*k}:{RX+16*(x-1)+4*k+3}], v{x} offset:{1024*k}")
    for k in range(4):
        rr = range(4 * k, 4 * k + 4)
        a(f"s_waitcnt lgkmcnt({9 - 3*k})")
        for r in rr: a(f"v_add_f32 v{O+r}, v{O+r}, v{RX+r}")
        for r in rr: a(f"v_add_f32 v{RX+16+r}, v{RX+16+r}, v{RX+32+r}")
        for r in rr: a(f"v_add_f32 v{O+r}, v{O+r}, v{RX+16+r}")
        for r in rr: a(f"v_mul_f32 v{O+r}, v{O+r}, v{STT+2*r}")
        for r in rr: a(f"v_mul_f32 v{EX+r}, s13, v{O+r}")
        for r in rr: a(f"v_exp_f32 v{EX+r}, v{EX+r}")
    ts.x(7, 5)
    for k in range(4):
        rr = range(4 * k, 4 * k + 4)
        for r in rr: a(f"v_add_f32 v{EX+r}, 1.0, v{EX+r}")
        for r in rr: a(f"v_rcp_f32 v{EX+r}, v{EX+r}")
        for r in rr: a(f"v_mul_f32 v{O+r}, v{O+r}, v{EX+r}")
        a(f"ds_write_b128 v4, v[{O+4*k}:{O+4*k+3}] offset:{1024*k}")
    a("s_waitcnt lgkmcnt(0)")
    ts(12)
    a("s_barrier")
    ts.dump(24, 25, 0)
    a("s_endpgm")

HEADER = """; Fused LayerNorm + S5-SSM scan + ReGLU gate, one launch.
;   224 main workgroups (4 MFMA waves + 4 loader/scan waves) + 32 helper workgroups (row statistics, hand-off reset, C repack).
;   Kernarg: 13 inputs, d_out (+104), d_debug (+112), d_ws (+120).  Produced by a hand-written generator script.
; @launch grid=(256,1,1) block=(512,1,1) lds=163840
.amdgcn_target "amdgcn-amd-amdhsa--gfx950"
.text
.globl {k}
.p2align {al}
.p2align 8
.type {k},@function
{k}:
"""
FOOTER = """.section .rodata,"a"
.p2align 6
.amdhsa_kernel {k}
  .amdhsa_next_free_vgpr 256
  .amdhsa_next_free_sgpr 102
  .amdhsa_accum_offset 256
  .amdhsa_group_segment_fixed_size 0
  .amdhsa_kernarg_size 128
  .amdhsa_user_sgpr_count 2
  .amdhsa_user_sgpr_kernarg_segment_ptr 1
  .amdhsa_system_sgpr_workgroup_id_x 1
  .amdhsa_float_denorm_mode_32 3
.end_amdhsa_kernel
"""

def generate(cfg):
    WSOFF[0] = cfg.wsoff << 20
    a = Asm()
    ts = TS(a, cfg)
    gen_entry(a, cfg, ts)
    gen_loader(a, cfg, ts)
    gen_consumer(a, cfg, ts)
    gen_helper(a, cfg, ts)
    a.label("L_exit")
    a("s_endpgm")
    return HEADER.format(k=KNAME, al=12 if cfg.al else 8) + (f"; wsoff={cfg.wsoff}\n" if cfg.wsoff else "") + a.text() + FOOTER.format(k=KNAME)

if __name__ == "__main__":
    cfg = Cfg()
    out = sys.argv[1]
    for kv in sys.argv[2:]:
        k, v = kv.split("=")
        setattr(cfg, k, int(v))
    open(out, "w").write(generate(cfg))
```

```python
import sys, os
sys.path.insert(0, os.path.dirname(os.path.abspath(__file__)))
from asmlib import Asm, VM

KNAME = "recurrent_scan__ssm_conv_s5__glu_gated_reglu__prompt_kernel"

R = [0, 53248, 106496]
MISC = 159744
OFF_WG, OFF_WU, OFF_BB = 32768, 40960, 49152
CP_L = R[1] + 49152
STATS_L = MISC
C_L = MISC + 2048
CNT_L = MISC + 2688
ST2_L = MISC + 2720
AGG_L = MISC + 3232
Q = 12288

RT_BYTES = 172032
HALF_BYTES = 86016
WS_STATS = 0xB00000
WS_AGG = WS_STATS + 0x4000
WS_FLAG = WS_AGG + 0x8000
INIT_N = 32
WS_CP = 0xB20000
WS_TS = 0xC00000
WS_SIZE = 0x1000000
SPIN_MAX = 1 << 20

S_WAVE, S_XCD, S_SLOT, S_MT, S_NS, S_M64, S_NT, S_W4 = 3, 4, 5, 6, 7, 8, 9, 10
P_X, P_LRE, P_LIM, P_BRE, P_BIM, P_CRE, P_CIM, P_LDT, P_DSK, P_BX, P_WG, P_WU, P_WD, P_OUT, P_DBG, P_WS = [16 + 2 * i for i in range(16)]
SRD_X, SRD_A, SRD_B, SRD_C, SRD_WS, SRD_E = 48, 52, 56, 60, 64, 68
TS0 = 76

LOG2E = 0x3fb8aa3b
LOG2E_LO = 0x32a57060
LN2 = 0x3f317218
INV2PI = 0x3e22f983

class Cfg:
    ts = 0
    tsset = 0
    pd = 16
    perm = 4
    rot = 2
    ssm_early = 0
    schedn = 0
    polx = 0
    apol = 1
    noa = 0
    nob = 0
    rdstart = 1
    polw = 0
    winn = 3
    loc = 1
    pt = 0
    al = 1
    cpw = 1
    s0a = 8
    zpeel = 1
    ws = 0
    crot = 0
    ipos = 0
    gate = 2
    c0n = 8
    agpos = 0
    c0early = 0
    hord = 1
    clate = 2
    wl = 1
    fper = 6
    c2u = 2
    probe = 0
    pwho = 0
    ponly = -1
    pmask = 0xffff
    wsoff = 0
    kwin = 2
    wprio = 0
    hdelay = 0
    eprio = 0
    c2late = 0
    cpf = 2
    padto = 0
    nocs = 0
    r2pre = 1
    tlb = 0
    bd = 4
    pollw = 24
    c1 = 12
    c2 = 16
    f2b = 1
    wfirst = 1
    @property
    def win(self):
        W = lambda a, b: [f"w{p}" for p in range(a, b)]
        if self.ws:
            m, n1, n2, n3, n4, n5, n6, cp, cs, ep = [int(c) for c in str(self.ws)[1:]]
            assert n1 + n2 + n3 + n4 + n5 + n6 == 10
            pos = [12]
            def take(n):
                r = W(pos[0], pos[0] + n); pos[0] += n; return r
            w = {}
            if m == 2: w[-1] = ["m", "s1:0-3"]; w[0] = ["cs0", "s1:3-13", "k", "s2:0-10"]; w[1] = ["cs1", "s2:10-13", "s3"]
            else: w[-1] = ["s1:0-6"]; w[0] = ["cs0", "s1:6-13", "k", "s2"] + (["m"] if m == 1 else []); w[1] = ["cs1"] + (["m"] if m == 3 else []) + ["s3"]
            w[1] += take(n1)
            w[2] = ["cs2", "s4"] + take(n2)
            w[3] = (["cs3", "s5:0-7", "cs4", "s5:7-13"] if cs == 1 else ["cs3", "s5"]) + take(n3)
            w[4] = {0: ["cs4", "init", "s6:0-7", "cs5", "s6:7-13"], 1: ["init", "s6:0-4", "cs5", "s6:4-13"], 2: ["cs4", "init", "s6"]}[cs] + take(n4)
            w[5] = (["cs5"] if cs == 2 else []) + ["fetch"] + W(0, 4) + ["cs6"] + W(4, 6) + take(n5) + {0: ["c3"], 1: [], 2: ["c3", "c1"], 3: ["c1"]}[cp] + ["put"]
            w[6] = W(6, 12) + take(n6) + {0: ["c1"], 1: ["c3", "c1"], 2: [], 3: ["c3"]}[cp]
            w[ep].append("e")
            if self.ipos:
                w[4].remove("init"); w[4].append("init")
                w[5].remove("fetch"); w[5].remove("put")
                w[5].insert(w[5].index("cs6") + 1, "fetch")
                w[6].insert(2, "put")
            return w
        return [
            {-1: ["s1:0-6"], 0: ["cs0", "s1:6-13", "k", "s2:0-9"], 1: ["cs1", "s2:9-13", "s3", "e"], 2: ["cs2", "s4"] + W(12, 14), 3: ["cs3", "s5"] + W(14, 17),
             4: ["cs4", "init", "s6:0-7", "cs5", "s6:7-13", "w17"], 5: ["fetch"] + W(0, 4) + ["cs6"] + W(4, 6) + W(18, 20) + ["put"], 6: W(6, 12) + W(20, 22)},
            {-1: ["s1:0-6"], 0: ["cs0", "s1:6-13", "k", "s2:0-9"], 1: ["cs1", "s2:9-13", "s3", "e"], 2: ["cs2", "s4"] + W(12, 15), 3: ["cs3", "s5"] + W(15, 18),
             4: ["cs4", "init", "s6"] + W(18, 20), 5: ["cs5", "fetch"] + W(0, 3) + ["cs6"] + W(3, 6) + ["put"], 6: W(6, 12) + W(20, 22)},
            {-1: ["s1:0-6"], 0: ["cs0", "s1:6-13", "k", "s2:0-9"], 1: ["cs1", "s2:9-13", "s3", "e"], 2: ["cs2", "s4"] + W(12, 15), 3: ["cs3", "s5:0-7", "cs4", "s5:7-13", "w15"],
             4: ["init", "s6:0-4", "cs5", "s6:4-13"] + W(16, 19), 5: ["fetch"] + W(0, 4) + ["cs6"] + W(4, 6) + W(19, 22) + ["put"], 6: W(6, 12)},
            {-1: ["s1:0-6"], 0: ["cs0", "s1:6-13", "k", "s2:0-9"], 1: ["cs1", "s2:9-13", "s3", "e"], 2: ["cs2", "s4"] + W(12, 15), 3: ["cs3", "s5"] + W(15, 18),
             4: ["cs4", "init", "s6:0-7", "cs5", "s6:7-13", "w18", "w19"], 5: ["fetch"] + W(0, 4) + ["cs6"] + W(4, 6) + W(20, 22) + ["c3", "put"], 6: W(6, 12) + ["c1"]},
            {-1: ["s1:0-6"], 0: ["cs0", "s1:6-13", "k", "s2:0-9"], 1: ["cs1", "s2:9-13", "s3", "e"], 2: ["cs2", "s4"] + W(12, 14), 3: ["cs3", "s5"] + W(14, 17),
             4: ["cs4", "init", "s6:0-7", "cs5", "s6:7-13", "w17"], 5: ["fetch"] + W(0, 4) + ["cs6"] + W(4, 6) + W(18, 20) + ["put"], 6: W(6, 12) + W(20, 22) + ["c3"]},
            {-1: ["s1:0-6"], 0: ["cs0", "s1:6-13", "k", "s2:0-9"], 1: ["cs1", "s2:9-13", "s3", "e"], 2: ["cs2", "s4"] + W(12, 15), 3: ["cs3", "s5"] + W(15, 19),
             4: ["cs4", "init", "s6:0-7", "cs5", "s6:7-13"] + W(19, 22), 5: ["fetch"] + W(0, 4) + ["cs6"] + W(4, 6) + ["c1", "put"], 6: W(6, 12) + ["c3"]},
            {-1: ["s1:0-6"], 0: ["cs0", "s1:6-13", "k", "s2"], 1: ["cs1", "s3", "e"] + W(12, 14), 2: ["cs2", "s4"] + W(14, 17), 3: ["cs3", "s5"] + W(17, 20),
             4: ["cs4", "init", "s6:0-7", "cs5", "s6:7-13"] + W(20, 22), 5: ["fetch"] + W(0, 4) + ["cs6"] + W(4, 6) + ["c1", "put"], 6: W(6, 12) + ["c3"]},
            {-1: ["s1:0-6"], 0: ["cs0", "s1:6-13", "k", "s2:0-9"], 1: ["cs1", "s2:9-13", "s3", "e"], 2: ["cs2", "s4"] + W(12, 15), 3: ["cs3", "s5:0-7", "cs4", "s5:7-13"] + W(15, 18),
             4: ["init", "s6:0-4", "cs5", "s6:4-13"] + W(18, 22), 5: ["fetch"] + W(0, 4) + ["cs6"] + W(4, 6) + ["c1", "put"], 6: W(6, 12) + ["c3"]},
            {-1: ["s1:0-6"], 0: ["cs0", "s1:6-13", "k", "s2:0-9"], 1: ["cs1", "s2:9-13", "s3", "e"], 2: ["cs2", "s4"], 3: ["cs3", "s5"] + W(12, 16),
             4: ["cs4", "init", "s6:0-7", "cs5", "s6:7-13"] + W(16, 19), 5: ["fetch"] + W(0, 4) + ["cs6"] + W(4, 6) + W(19, 22) + ["c3", "put"], 6: W(6, 12) + ["c1"]},
            {-1: ["s1:0-6"], 0: ["cs0", "s1:6-13", "k", "s2"], 1: ["cs1", "s3", "e"], 2: ["cs2", "s4"] + W(12, 14), 3: ["cs3", "s5"] + W(14, 18),
             4: ["cs4", "init", "s6:0-7", "cs5", "s6:7-13", "w18", "w19"], 5: ["fetch"] + W(0, 4) + ["cs6"] + W(4, 6) + W(20, 22) + ["c3", "put"], 6: W(6, 12) + ["c1"]},
            {-1: ["s1:0-3"], 0: ["cs0", "s1:3-13", "k", "s2:0-8"], 1: ["cs1", "s2:8-13", "s3"], 2: ["cs2", "s4", "e"] + W(12, 14), 3: ["cs3", "s5"] + W(14, 18),
             4: ["cs4", "init", "s6:0-7", "cs5", "s6:7-13", "w18", "w19"], 5: ["fetch"] + W(0, 4) + ["cs6"] + W(4, 6) + W(20, 22) + ["c3", "put"], 6: W(6, 12) + ["c1"]},
            {-1: ["s1:0-6"], 0: ["cs0", "s1:6-13", "k", "s2:0-9"], 1: ["cs1", "s2:9-13", "s3", "e"], 2: ["cs2", "s4"] + W(12, 15), 3: ["cs3", "init", "s5"] + W(15, 18),
             4: ["cs4", "fetch", "s6:0-7", "cs5", "s6:7-13", "w18", "w19"], 5: ["put"] + W(0, 4) + ["cs6"] + W(4, 6) + W(20, 22) + ["c3"], 6: W(6, 12) + ["c1"]},
            {-1: ["m", "s1:0-3"], 0: ["cs0", "s1:3-13", "k", "s2:0-8"], 1: ["cs1", "s2:8-13", "s3", "e"], 2: ["cs2", "s4"] + W(12, 15), 3: ["cs3", "s5"] + W(15, 18),
             4: ["cs4", "init", "s6:0-7", "cs5", "s6:7-13", "w18", "w19"], 5: ["fetch"] + W(0, 4) + ["cs6"] + W(4, 6) + W(20, 22) + ["c3", "put"], 6: W(6, 12) + ["c1"]},
            {-1: ["s1:0-6"], 0: ["cs0", "s1:6-13", "m", "k", "s2:0-9"], 1: ["cs1", "s2:9-13", "s3", "e"], 2: ["cs2", "s4"] + W(12, 15), 3: ["cs3", "s5"] + W(15, 18),
             4: ["cs4", "init", "s6:0-7", "cs5", "s6:7-13", "w18", "w19"], 5: ["fetch"] + W(0, 4) + ["cs6"] + W(4, 6) + W(20, 22) + ["c3", "put"], 6: W(6, 12) + ["c1"]},
            {-1: ["m"], 0: ["cs0", "s1", "k", "s2:0-6"], 1: ["cs1", "s2:6-13", "s3"], 2: ["cs2", "s4", "e"] + W(12, 14), 3: ["cs3", "s5"] + W(14, 18),
             4: ["cs4", "init", "s6:0-7", "cs5", "s6:7-13", "w18", "w19"], 5: ["fetch"] + W(0, 4) + ["cs6"] + W(4, 6) + W(20, 22) + ["c3", "put"], 6: W(6, 12) + ["c1"]},
            {-1: ["s1:0-6"], 0: ["cs0", "s1:6-13", "k", "s2"], 1: ["cs1", "s3"], 2: ["cs2", "s4", "e"], 3: ["cs3", "s5"] + W(12, 16),
             4: ["cs4", "init", "s6:0-7", "cs5", "s6:7-13"] + W(16, 19), 5: ["fetch"] + W(0, 4) + ["cs6"] + W(4, 6) + W(19, 22) + ["c3", "put"], 6: W(6, 12) + ["c1"]},
            {-1: ["s1:0-6"], 0: ["cs0", "s1:6-13", "k", "s2", "m"], 1: ["cs1", "s3"], 2: ["cs2", "s4", "e"], 3: ["cs3", "s5"] + W(12, 16),
             4: ["cs4", "init", "s6:0-7", "cs5", "s6:7-13"] + W(16, 19), 5: ["fetch"] + W(0, 4) + ["cs6"] + W(4, 6) + W(19, 22) + ["c3", "put"], 6: W(6, 12) + ["c1"]},
            {-1: ["m", "s1:0-3"], 0: ["cs0", "s1:3-13", "k", "s2:0-10"], 1: ["cs1", "s2:10-13", "s3"], 2: ["cs2", "s4", "e"], 3: ["cs3", "s5"] + W(12, 16),
             4: ["cs4", "init", "s6:0-7", "cs5", "s6:7-13"] + W(16, 19), 5: ["fetch"] + W(0, 4) + ["cs6"] + W(4, 6) + W(19, 22) + ["c3", "put"], 6: W(6, 12) + ["c1"]},
            {-1: ["s1:0-6"], 0: ["cs0", "s1:6-13", "k", "s2"], 1: ["cs1", "s3"], 2: ["cs2", "s4:0-6"], 3: ["cs3", "s4:6-13", "s5", "e"],
             4: ["cs4", "init", "s6"] + W(12, 16), 5: ["cs5", "fetch"] + W(16, 20) + ["cs6"] + W(0, 6) + ["put"], 6: W(6, 12) + W(20, 22) + ["c3", "c1"]},
            {-1: ["s1"], 0: ["cs0", "k", "s2", "e"], 1: ["cs1", "s3"], 2: ["cs2", "s4", "w12"], 3: ["cs3", "s5"] + W(13, 16),
             4: ["cs4", "init", "s6:0-7", "cs5", "s6:7-13"] + W(16, 19), 5: ["fetch"] + W(0, 4) + ["cs6"] + W(4, 6) + W(19, 22) + ["c3", "put"], 6: W(6, 12) + ["c1"]},
        ][self.winn]
    nw1 = 6
    flagr = -1
    xs = 1
    psleep = 6
    fsleep = 2
    ttper = 2
    f2n = 9
    fpre = 1
    a0 = 18
    sprio = 0
    ksig = 12
    opol = 1
    lprio = 3
    w12early = 0
    slab = 0
    spol = 1
    fpol = 1
    pollr = 4
    nw2 = 16
    thr = 15
    hpf = 2
    ky = 2
    @property
    def perms(self):
        return {
            0: [[0, 1, 2, 3, 4, 5, 6]],
            1: [[0, 1, 2, 3, 4, 5, 6], [1, 2, 0, 4, 5, 3, 6], [2, 0, 1, 5, 3, 4, 6]],
            2: [[0, 1, 2, 3, 4, 5, 6], [1, 0, 3, 2, 5, 4, 6]],
            3: [[0, 1, 2, 3, 4, 5, 6], [1, 0, 4, 5, 6, 2, 3], [0, 1, 6, 2, 3, 4, 5]],
            4: [[0, 1, 2, 3, 4, 5, 6], [1, 2, 0, 4, 6, 3, 5], [2, 0, 1, 5, 6, 3, 4]],
            6: [[0, 1, 2, 3, 4, 5, 6], [1, 2, 0, 3, 4, 5, 6], [2, 0, 1, 3, 4, 5, 6]],
            5: [[0, 1, 2, 3, 4, 5, 6], [1, 2, 3, 0, 5, 6, 4], [2, 3, 0, 1, 6, 4, 5], [3, 0, 1, 2, 4, 5, 6]],
        }[self.perm]

WSOFF = [0]
def srd(a, d, ptr, nbytes):
    if ptr == P_WS and WSOFF[0]:
        a(f"s_add_u32 s{ptr}, s{ptr}, {WSOFF[0]:#x}")
        a(f"s_addc_u32 s{ptr+1}, s{ptr+1}, 0")
    a(f"s_mov_b32 s{d}, s{ptr}")
    a(f"s_and_b32 s{d+1}, s{ptr+1}, 0xffff")
    a(f"s_mov_b32 s{d+2}, {nbytes:#x}")
    a(f"s_mov_b32 s{d+3}, 0x20000")

def srd_sel(a, d, ptr1, ptr0, nbytes):
    a(f"s_cselect_b32 s{d}, s{ptr1}, s{ptr0}")
    a(f"s_cselect_b32 s{d+1}, s{ptr1+1}, s{ptr0+1}")
    a(f"s_and_b32 s{d+1}, s{d+1}, 0xffff")
    a(f"s_mov_b32 s{d+2}, {nbytes:#x}")
    a(f"s_mov_b32 s{d+3}, 0x20000")

class TS:
    def __init__(self, a, cfg):
        self.a, self.on, self.n, self.set = a, cfg.ts, 0, cfg.tsset
        self.cfg = cfg
    def x(self, setno, i):
        if self.on and self.set == setno: self.emit(i)
    def __call__(self, i):
        if self.on and (self.set == 0 or i in (0, 12)): self.emit(i)
    def emit(self, i):
        if self.on == 5 and i not in (0, self.cfg.probe): return
        if self.on:
            assert i < 13
            self.a(f"{'s_memrealtime' if self.on != 2 else 's_memtime'} s[{TS0+2*i}:{TS0+2*i+1}]")
    def init(self):
        if self.on:
            for i in range(1, 13): self.a(f"s_mov_b32 s{TS0+2*i}, 0")
    def dump(self, vt, vt2, who=2):
        if not self.on: return
        a = self.a
        if self.on == 5:
            if who != self.cfg.pwho: return
            lab = a.newlabel("L_probe")
            if self.cfg.ponly >= 0:
                a(f"s_and_b32 s11, s2, {self.cfg.pmask}")
                a(f"s_cmp_lg_u32 s11, {self.cfg.ponly}")
                a(f"s_cbranch_scc1 {lab}_x")
            p = TS0 + 2 * self.cfg.probe
            a("s_waitcnt lgkmcnt(0)")
            a(f"s_sub_u32 s11, s{p}, s{TS0}")
            a(f"s_cmp_eq_u32 s{p}, 0")
            a("s_cselect_b32 s11, 0, s11")
            a("s_lshl_b32 s11, s11, 2")
            a("s_add_u32 s11, s11, 3000")
            a.label(lab)
            a("s_memrealtime s[12:13]")
            a("s_waitcnt lgkmcnt(0)")
            a(f"s_sub_u32 s12, s12, s{TS0}")
            a("s_cmp_lt_u32 s12, s11")
            a(f"s_cbranch_scc1 {lab}")
            a.label(lab + "_x")
            return
        if self.on == 3:
            a("s_waitcnt vmcnt(0) lgkmcnt(0)")
            lab = a.newlabel("L_nod")
            a(f"s_cmp_eq_u32 s{TS0+24}, 0")
            a(f"s_cbranch_scc1 {lab}")
            a(f"s_cmp_lg_u32 s{S_WAVE}, 0")
            a(f"s_cbranch_scc1 {lab}")
            a("s_mov_b64 exec, 1")
            a(f"v_mov_b32 v{vt2}, 0")
            a(f"s_not_b32 s11, s{TS0}")
            a(f"v_mov_b32 v{vt}, s11")
            a(f"global_atomic_umax v{vt2}, v{vt}, s[{P_DBG}:{P_DBG+1}] offset:4 sc1")
            for n, i in enumerate([0, 1, 2, 3, 4, 5, 6, 7, 8, 9, 10, 11, 12]):
                a("s_waitcnt vmcnt(0)")
                a(f"v_mov_b32 v{vt}, s{TS0+2*i}")
                a(f"global_atomic_umax v{vt2}, v{vt}, s[{P_DBG}:{P_DBG+1}] offset:{8+4*n} sc1")
            a("s_waitcnt vmcnt(0)")
            a.label(lab)
            return
        a("s_waitcnt vmcnt(0) lgkmcnt(0)")
        a(f"s_lshl_b32 s11, s2, 9")
        a(f"s_lshl_b32 s12, s{S_WAVE}, 6")
        a("s_add_u32 s11, s11, s12")
        a(f"s_add_u32 s11, s11, {WS_TS:#x}")
        a(f"v_mov_b32 v{vt2}, s11")
        for i in range(13):
            a(f"v_mov_b32 v{vt}, s{TS0+2*i}")
            a(f"buffer_store_dword v{vt}, v{vt2}, s[{SRD_WS}:{SRD_WS+3}], 0 offen offset:{4*i}")
        a("s_waitcnt vmcnt(0)")

def round_bf16(a, dst, src):
    a(f"v_cvt_pk_bf16_f32 v{dst}, v{src}, v{src}")
    a(f"v_lshlrev_b32 v{dst}, 16, v{dst}")

def exp_acc(a, dst, x, t0, t1):
    a(f"s_mov_b32 s36, {LOG2E:#x}")
    a(f"s_mov_b32 s37, {LOG2E_LO:#x}")
    a(f"v_mul_f32 v{t0}, s36, v{x}")
    a(f"v_fma_f32 v{t1}, v{x}, s36, -v{t0}")
    a(f"v_fma_f32 v{t1}, v{x}, s37, v{t1}")
    a(f"v_mul_f32 v{t1}, {LN2:#x}, v{t1}")
    a(f"v_exp_f32 v{dst}, v{t0}")
    a(f"v_fma_f32 v{dst}, v{dst}, v{t1}, v{dst}")

def csq(a, dr, di, sr, si, t):
    a(f"v_mul_f32 v{t}, v{si}, v{si}")
    a(f"v_add_f32 v{di}, v{si}, v{si}")
    a(f"v_mul_f32 v{di}, v{di}, v{sr}")
    a(f"v_fma_f32 v{dr}, v{sr}, v{sr}, -v{t}")

def cmul(a, dr, di, ar, ai, br, bi):
    a(f"v_mul_f32 v{dr}, v{ar}, v{br}")
    a(f"v_mul_f32 v{di}, v{ar}, v{bi}")
    a(f"v_fma_f32 v{dr}, -v{ai}, v{bi}, v{dr}")
    a(f"v_fma_f32 v{di}, v{ai}, v{br}, v{di}")

def ssm_const_load(a, vm, t):
    a(f"v_and_b32 v{t+3}, 15, v0")
    a(f"s_lshl_b32 s11, s{S_NS}, 4")
    a(f"v_add_lshl_u32 v{t+3}, v{t+3}, s11, 1")
    vm.issue('sc', f"global_load_ushort v{t}, v{t+3}, s[{P_LRE}:{P_LRE+1}]")
    vm.issue('sc', f"global_load_ushort v{t+1}, v{t+3}, s[{P_LIM}:{P_LIM+1}]")
    vm.issue('sc', f"global_load_ushort v{t+2}, v{t+3}, s[{P_LDT}:{P_LDT+1}]")

def ssm_const_calc(a, t, lr, li, cr=None, ci=None):
    for k in range(3): a(f"v_lshlrev_b32 v{t+k}, 16, v{t+k}")
    exp_acc(a, t + 3, t + 2, t + 4, t + 5)
    round_bf16(a, t + 2, t + 3)
    a(f"v_mul_f32 v{t+3}, v{t+2}, v{t}")
    a(f"v_mul_f32 v{t+6}, v{t+2}, v{t+1}")
    exp_acc(a, t + 7, t + 3, t + 4, t + 5)
    a(f"v_mul_f32 v{t+6}, {INV2PI:#x}, v{t+6}")
    a(f"v_rndne_f32 v{t+4}, v{t+6}")
    a(f"v_sub_f32 v{t+6}, v{t+6}, v{t+4}")
    a(f"v_cos_f32 v{t+4}, v{t+6}")
    a(f"v_sin_f32 v{t+5}, v{t+6}")
    a(f"v_mul_f32 v{lr}, v{t+7}, v{t+4}")
    a(f"v_mul_f32 v{li}, v{t+7}, v{t+5}")
    if cr is not None:
        a(f"v_add_f32 v{t+3}, -1.0, v{lr}")
        a(f"v_mul_f32 v{t+4}, v{t}, v{t}")
        a(f"v_fma_f32 v{t+4}, v{t+1}, v{t+1}, v{t+4}")
        a(f"v_rcp_f32 v{t+4}, v{t+4}")
        a(f"v_mul_f32 v{cr}, v{t+3}, v{t}")
        a(f"v_fma_f32 v{cr}, v{li}, v{t+1}, v{cr}")
        a(f"v_mul_f32 v{ci}, v{li}, v{t}")
        a(f"v_fma_f32 v{ci}, -v{t+3}, v{t+1}, v{ci}")
        a(f"v_add_f32 v{t+4}, v{t+4}, v{t+4}")
        a(f"v_mul_f32 v{cr}, v{cr}, v{t+4}")
        a(f"v_mul_f32 v{ci}, v{ci}, v{t+4}")

def gen_entry(a, cfg, ts):
    a("s_cmp_ge_u32 s2, 256")
    a("s_cbranch_scc1 L_exit")
    if cfg.padto: a("s_memrealtime s[100:101]")
    ts(0)
    a("s_load_dwordx16 s[16:31], s[0:1], 0")
    a("s_load_dwordx16 s[32:47], s[0:1], 64")
    a("v_lshrrev_b32 v1, 6, v0")
    a("v_and_b32 v0, 63, v0")
    a(f"v_readfirstlane_b32 s{S_WAVE}, v1")
    a(f"s_and_b32 s{S_XCD}, s2, 7")
    a(f"s_lshr_b32 s{S_SLOT}, s2, 3")
    if cfg.cpf == 2:
        a(f"s_cmp_gt_u32 s{S_WAVE}, {cfg.cpw - 1}")
        a("s_cbranch_scc1 L_nocpf")
        a("s_getpc_b64 s[12:13]")
        a.label("L_pc0")
        a(f"s_sub_u32 s12, s12, L_pc0-{KNAME}")
        a("s_subb_u32 s13, s13, 0")
        a(f"s_lshl_b32 s11, s{S_WAVE}, 5")
        a(f"s_add_u32 s11, s11, s{S_SLOT}")
        a("s_lshl_b32 s11, s11, 10")
        a("v_lshl_add_u32 v38, v0, 4, s11")
        a(f"v_min_u32 v38, L_exit-{KNAME}, v38")
        a("global_load_dword v39, v38, s[12:13]")
        a.label("L_nocpf")
    a(f"s_and_b32 s11, s{S_SLOT}, 3")
    a(f"s_lshr_b32 s{S_NT}, s{S_SLOT}, 2")
    a(f"s_and_b32 s12, s{S_XCD}, 1")
    a(f"s_lshl_b32 s12, s12, 2")
    a(f"s_add_u32 s{S_MT}, s12, s11")
    a(f"s_lshr_b32 s12, s{S_XCD}, 1")
    a(f"s_mul_i32 s12, s12, 7")
    a(f"s_add_u32 s{S_NS}, s12, s{S_NT}")
    if cfg.slab:
        a(f"s_mov_b32 s{S_MT}, s{S_XCD}")
        a(f"s_mov_b32 s{S_NS}, s{S_SLOT}")
    if cfg.loc:
        a(f"s_and_b32 s12, s{S_XCD}, 1")
        a("s_lshl_b32 s12, s12, 2")
        a(f"s_lshr_b32 s13, s{S_XCD}, 1")
        a("s_add_u32 s12, s12, s13")
        a("s_lshl_b32 s12, s12, 2")
    else:
        a(f"s_lshl_b32 s12, s{S_XCD}, 2")
    a(f"s_add_u32 s{S_M64}, s12, s11")
    a(f"s_and_b32 s{S_W4}, s{S_WAVE}, 3")
    ts.init()
    a(f"s_cmp_ge_u32 s{S_SLOT}, 28")
    a("s_cbranch_scc1 L_helper")
    a(f"s_cmp_lt_u32 s{S_WAVE}, 4")
    a("s_cbranch_scc1 L_consumer")

def gen_helper(a, cfg, ts):
    if cfg.al >= 3: a.raw(".p2align 12")
    a.label("L_helper")
    vm = VM(a)
    a(f"s_sub_u32 s73, s{S_SLOT}, 28")
    a(f"s_lshl_b32 s11, s73, 3")
    a(f"s_add_u32 s72, s11, s{S_XCD}")
    if cfg.loc: a(f"s_mov_b32 s72, s{S_M64}")
    HC = 65536
    a(f"v_mov_b32 v200, {HC}")
    a("v_mov_b32 v201, 0")
    a("ds_write_b32 v200, v201")
    def h_open():
        a("s_waitcnt lgkmcnt(0)")
        a("s_barrier")
    def h_signal(tag):
        a("v_mov_b32 v202, 1")
        a("s_mov_b64 exec, 1")
        a("ds_add_rtn_u32 v203, v200, v202")
        a("s_waitcnt lgkmcnt(0)")
        a("v_readfirstlane_b32 s11, v203")
        a("s_cmp_lg_u32 s11, 7")
        a(f"s_cbranch_scc1 L_h_ns{tag}")
        a(f"global_atomic_add v201, v202, s[{P_DBG}:{P_DBG+1}] sc1")
        a.label(f"L_h_ns{tag}")
        a("s_mov_b64 exec, -1")
    a(f"s_cmp_ge_u32 s{S_WAVE}, 4")
    a("s_cbranch_scc1 L_h_pf")
    a(f"s_lshl_b32 s11, s72, 6")
    a(f"s_lshl_b32 s12, s{S_WAVE}, 4")
    a(f"s_add_u32 s11, s11, s12")
    a("v_lshrrev_b32 v2, 3, v0")
    a("v_add_u32 v2, s11, v2")
    a("v_mul_u32_u24 v3, 896, v2")
    a("v_and_b32 v4, 7, v0")
    a("v_lshl_add_u32 v3, v4, 4, v3")
    a("s_waitcnt lgkmcnt(0)")
    srd(a, SRD_X, P_X, 2048 * 896)
    srd(a, SRD_WS, P_WS, WS_SIZE)
    a(f"s_mov_b32 s11, {8*896}")
    for ps in range(2):
        for j in range(7):
            so = "0" if ps == 0 else "s11"
            vm.issue(('x', ps), f"buffer_load_dwordx4 v[{112+28*ps+4*j}:{115+28*ps+4*j}], v3, s[{SRD_X}:{SRD_X+3}], {so} offen offset:{128*j}")
    a(f"s_cmp_gt_u32 s{S_WAVE}, 1")
    a("s_cbranch_scc1 L_h_noreset")
    a(f"s_cmp_eq_u32 s{S_WAVE}, 0")
    a("s_cselect_b32 s11, -1, 0")
    a("s_mov_b32 s12, 1024")
    a("s_cmov_b32 s12, 896")
    a(f"s_mov_b32 s13, {WS_FLAG:#x}")
    a(f"s_cmov_b32 s13, {WS_AGG:#x}")
    a("s_mul_i32 s14, s12, s72")
    a("s_add_u32 s13, s13, s14")
    for k in range(4): a(f"v_mov_b32 v{8+k}, s11")
    a("v_lshlrev_b32 v12, 4, v0")
    a("v_cmp_gt_u32 vcc, s12, v12")
    a("s_and_saveexec_b64 s[14:15], vcc")
    a(f"buffer_store_dwordx4 v[8:11], v12, s[{SRD_WS}:{SRD_WS+3}], s13 offen sc1")
    a("s_mov_b64 exec, s[14:15]")
    a.label("L_h_noreset")
    h_open()
    a("v_lshlrev_b32 v2, 3, v2")
    a("s_mov_b32 s12, 0xffff0000")
    def fin(dst):
        a("v_add_f32 v8, v8, v9")
        a("v_add_f32 v10, v10, v11")
        a(f"v_add_f32 v{dst}, v8, v10")
        a(f"v_add_f32_dpp v{dst}, v{dst}, v{dst} quad_perm:[1,0,3,2] row_mask:0xf bank_mask:0xf")
        a(f"v_add_f32_dpp v{dst}, v{dst}, v{dst} quad_perm:[2,3,0,1] row_mask:0xf bank_mask:0xf")
        a(f"v_add_f32_dpp v{dst}, v{dst}, v{dst} row_half_mirror row_mask:0xf bank_mask:0xf")
        a(f"v_mul_f32 v{dst}, 0x3b124925, v{dst}")
    for ps in range(2):
        vm.wait(('x', ps))
        if cfg.hdelay == 2 + ps: a("s_barrier")
        src = 112 + 28 * ps
        for k in range(28):
            a(f"v_lshlrev_b32 v{48+2*k}, 16, v{src+k}")
            a(f"v_and_b32 v{49+2*k}, s12, v{src+k}")
        a("v_pk_add_f32 v[8:9], v[48:49], v[52:53]")
        a("v_pk_add_f32 v[10:11], v[50:51], v[54:55]")
        for k in range(4, 28): a(f"v_pk_add_f32 v[{8+2*(k%2)}:{9+2*(k%2)}], v[{8+2*(k%2)}:{9+2*(k%2)}], v[{48+2*k}:{49+2*k}]")
        fin(12)
        for k in range(28): a(f"v_pk_add_f32 v[{48+2*k}:{49+2*k}], v[{48+2*k}:{49+2*k}], v[12:13] op_sel_hi:[1,0] neg_lo:[0,1] neg_hi:[0,1]")
        for k in range(2): a(f"v_pk_mul_f32 v[{8+2*k}:{9+2*k}], v[{48+2*k}:{49+2*k}], v[{48+2*k}:{49+2*k}]")
        for k in range(2, 28): a(f"v_pk_fma_f32 v[{8+2*(k%2)}:{9+2*(k%2)}], v[{48+2*k}:{49+2*k}], v[{48+2*k}:{49+2*k}], v[{8+2*(k%2)}:{9+2*(k%2)}]")
        fin(13)
        o = 14 + 2 * ps
        round_bf16(a, o, 12)
        round_bf16(a, 13, 13)
        a("v_add_f32 v13, 0x3727c5ac, v13")
        round_bf16(a, 13, 13)
        a("v_sqrt_f32 v13, v13")
        round_bf16(a, 13, 13)
        a(f"v_rcp_f32 v{o+1}, v13")
        a("v_cmp_eq_u32 vcc, 0, v4")
        a("s_and_saveexec_b64 s[14:15], vcc")
        a(f"s_mov_b32 s11, {WS_STATS:#x}")
        vm.issue('st', f"buffer_store_dwordx2 v[{o}:{o+1}], v2, s[{SRD_WS}:{SRD_WS+3}], s11 offen offset:{64*ps} sc1")
        a("s_mov_b64 exec, s[14:15]")
    a("s_waitcnt vmcnt(0)")
    h_signal("a")
    ts(1)
    ts.x(3, 1)
    ts.dump(8, 9)
    a("s_endpgm")
    a.label("L_h_pf")
    a("v_lshlrev_b32 v2, 4, v0")
    a(f"s_lshl_b32 s11, s{S_W4}, 10")
    a("v_add_u32 v2, s11, v2")
    if cfg.cpf == 1:
        a("s_getpc_b64 s[60:61]")
        a.label("L_pc")
        a(f"s_sub_u32 s60, s60, L_pc-{KNAME}")
        a("s_subb_u32 s61, s61, 0")
        a("s_lshl_b32 s11, s73, 12")
        a("v_add_u32 v3, s11, v2")
        for k in range(2):
            a(f"v_min_u32 v4, L_exit-{KNAME}-12, v3")
            a(f"global_load_dwordx4 v[24:27], v4, s[60:61]")
            a(f"v_add_u32 v3, 16384, v3")
    a("s_waitcnt lgkmcnt(0)")
    if cfg.hdelay == 1: a("s_waitcnt vmcnt(0)")
    if cfg.hdelay >= 2: a("s_barrier")
    srd(a, SRD_WS, P_WS, WS_SIZE)
    a("s_lshl_b32 s60, s72, 2")
    a(f"s_add_u32 s60, s60, s{S_W4}")
    a("s_cmp_ge_u32 s60, 98")
    a("s_cbranch_scc1 L_h_nopack1")
    a("s_mul_i32 s61, s60, 37")
    a("s_lshr_b32 s61, s61, 8")
    a("s_mul_i32 s62, s61, 7")
    a("s_sub_u32 s62, s60, s62")
    a("s_cmp_lt_i32 s62, 0")
    a("s_cselect_b32 s11, 1, 0")
    a("s_sub_u32 s61, s61, s11")
    a("s_mul_i32 s62, s61, 7")
    a("s_sub_u32 s62, s60, s62")
    a("s_bitcmp1_b32 s61, 0")
    srd_sel(a, 68, P_CIM, P_CRE, 448 * 896)
    a("v_lshrrev_b32 v3, 3, v0")
    a("v_and_b32 v4, 7, v0")
    a("v_lshrrev_b32 v5, 1, v3")
    a("v_xor_b32 v4, v4, v5")
    a("s_lshr_b32 s11, s61, 1")
    a("s_lshl_b32 s11, s11, 6")
    a("v_add_u32 v3, s11, v3")
    a("v_mul_u32_u24 v3, 896, v3")
    a("v_lshl_add_u32 v3, v4, 4, v3")
    a("v_xor_b32 v4, 64, v3")
    a(f"s_lshl_b32 s63, s{S_W4}, 13")
    a("s_lshl_b32 s12, s62, 7")
    for n in range(8):
        a(f"s_add_u32 m0, s63, {n*1024}")
        a(f"s_add_u32 s11, s12, {8*n*896}")
        a(f"buffer_load_dwordx4 v{3 + (n & 1)}, s[68:71], s11 offen lds")
    a.label("L_h_nopack1")
    h_open()
    def h_sweep():
        if cfg.hpf:
            for (ptr, nbytes, srdn) in ((P_WD, 1792 * 896, 56),):
                srd(a, srdn, ptr, nbytes)
            def sweep(name, srds, qbytes, first, count):
                n8 = -(-qbytes // (8 * 4096))
                n = 8 * n8
                a(f"s_mul_i32 s12, s73, {qbytes}")
                a(f"s_add_u32 s13, s{S_XCD}, {first}")
                a("s_and_b32 s13, s13, 7")
                a(f"s_mul_i32 s13, s13, {n8}")
                a("s_mov_b32 s14, 0")
                a.label(name)
                a("s_lshl_b32 s11, s13, 12")
                a("s_add_u32 s11, s11, s12")
                for k, sr in enumerate(srds):
                    a(f"buffer_load_dwordx4 v[{16+4*k}:{19+4*k}], v2, s[{sr}:{sr+3}], s11 offen")
                a("s_add_u32 s13, s13, 1")
                a(f"s_cmp_eq_u32 s13, {n}")
                a("s_cselect_b32 s13, 0, s13")
                a("s_add_u32 s14, s14, 1")
                a(f"s_cmp_lt_u32 s14, {n8 * count}")
                a(f"s_cbranch_scc1 {name}")
            sweep("L_h_p2", [56], 1792 * 896 // 4, 0, 1)
            ts(2)
    def h_pack():
        a("s_cmp_ge_u32 s60, 98")
        a("s_cbranch_scc1 L_h_nopack2")
        a("v_and_b32 v5, 31, v0")
        a("v_lshrrev_b32 v6, 5, v0")
        a("v_bfe_u32 v7, v0, 1, 3")
        a("v_xor_b32 v7, v7, v6")
        a("v_lshlrev_b32 v7, 4, v7")
        a("v_lshl_add_u32 v5, v5, 7, v7")
        a("v_add_u32 v5, s63, v5")
        a("v_lshlrev_b32 v6, 4, v0")
        a("s_mul_i32 s12, s61, 28")
        a("s_lshl_b32 s11, s62, 2")
        a("s_add_u32 s12, s12, s11")
        a("s_lshl_b32 s12, s12, 11")
        a(f"s_add_u32 s12, s12, {WS_CP:#x}")
        a(f"s_waitcnt vmcnt({13 if (cfg.hpf and not cfg.hord) else 0})")
        for ks in range(4):
            a(f"v_xor_b32 v7, {32*ks}, v5")
            for ct in range(2):
                d = 32 + 8 * ks + 4 * ct
                a(f"ds_read_b128 v[{d}:{d+3}], v7 offset:{4096*ct}")
        for ks in range(4):
            a(f"s_waitcnt lgkmcnt({6 - 2*ks})")
            a(f"s_add_u32 s11, s12, {2048*ks}")
            for ct in range(2):
                d = 32 + 8 * ks + 4 * ct
                a(f"buffer_store_dwordx4 v[{d}:{d+3}], v6, s[{SRD_WS}:{SRD_WS+3}], s11 offen offset:{1024*ct} sc1")
        a("s_waitcnt vmcnt(0)")
        a.label("L_h_nopack2")
        h_signal("b")
        ts(3)
        ts.x(3, 1)
    if cfg.hord: h_pack(); h_sweep()
    else: h_sweep(); h_pack()
    ts.dump(8, 9)
    a("s_endpgm")

def spin_check(a, name, load_text_list, cond_fn, sleep=1):
    lo, done = a.newlabel(name + "_spin"), a.newlabel(name + "_ok")
    a(f"s_mov_b32 s73, 0")
    a.label(lo)
    cond_fn()
    a(f"s_cbranch_scc1 {done}")
    a("s_add_u32 s73, s73, 1")
    a(f"s_cmp_ge_u32 s73, {SPIN_MAX}")
    a(f"s_cbranch_scc1 {done}")
    a(f"s_sleep {sleep}")
    for t in load_text_list: a(t)
    a("s_waitcnt vmcnt(0)")
    a(f"s_branch {lo}")
    a.label(done)
    a("s_nop 4")

def sspin(a, name, loads, cond_fn, sleep=1):
    lo, done = a.newlabel(name + "_spin"), a.newlabel(name + "_ok")
    a("s_mov_b32 s73, 0")
    a.label(lo)
    for t in loads: a(t)
    a("s_waitcnt lgkmcnt(0)")
    cond_fn()
    a(f"s_cbranch_scc1 {done}")
    a("s_add_u32 s73, s73, 1")
    a(f"s_cmp_lt_u32 s73, {SPIN_MAX}")
    if sleep: a(f"s_sleep {sleep}")
    a(f"s_cbranch_scc1 {lo}")
    a.label(done)

def flag_index(a, d, t, grp):
    a(f"s_mul_i32 s{t}, s{S_NS}, 37")
    a(f"s_lshr_b32 s{t}, s{t}, {8 if grp == 7 else 9}")
    a(f"s_mul_i32 s{t}, s{t}, {32 - grp}")
    a(f"s_add_u32 s{d}, s{t}, s{S_NS}")
    a(f"s_lshl_b32 s{d}, s{d}, 2")

def interleave(a, prim, fill, per):
    fill = list(fill)
    for p in prim:
        p()
        for _ in range(per):
            if fill: a(fill.pop(0))
    for f in fill: a(f)

def p2_rot(a, cfg, d_ffn, d_blk, d_flip):
    if not cfg.rot:
        for d in (d_ffn, d_blk, d_flip): a(f"s_mov_b32 s{d}, 0")
        return
    tab = {2: [0] * 7, 1: list(range(7)), 3: [0, 3, 0, 3, 0, 3, 0], 4: [0, 2, 5, 0, 2, 5, 0], 5: [0, 4, 2, 5, 0, 4, 2], 6: [0, 1, 0, 1, 0, 1, 0], 7: [0, 2, 0, 2, 0, 2, 0]}[cfg.rot]
    word = sum(v << (4 * k) for k, v in enumerate(tab))
    a(f"s_lshl_b32 s11, s{S_NT}, 2")
    a(f"s_lshr_b32 s13, {word:#x}, s11")
    a("s_and_b32 s13, s13, 15")
    a(f"s_and_b32 s11, s{S_SLOT}, 3")
    a("s_lshl_b32 s11, s11, 1")
    a("s_add_u32 s11, s11, s13")
    a("s_cmp_ge_u32 s11, 7")
    a("s_cselect_b32 s13, 7, 0")
    a(f"s_sub_u32 s{d_ffn}, s11, s13")
    for d in (d_blk, d_flip): a(f"s_mov_b32 s{d}, 0")

def slot(reg, n): return R[reg] + 2048 * n
SA = [slot(1, n) for n in range(6)]; SB = [slot(2, n) for n in range(6)]; SC = [slot(0, n) for n in range(6)]
WSLOT = {}
for n in range(6): WSLOT[n] = SA[n]; WSLOT[6 + n] = SB[n]
for n in range(4): WSLOT[12 + n] = SC[n]; WSLOT[16 + n] = SA[n]; WSLOT[20 + n] = SB[n]
WSLOT.update({24: SA[4], 25: SA[5], 26: SB[4], 27: SB[5]})
HTS = SC[4]
PH1, PH2, GA, FXA, SD = SC[0], SC[4], SB[0], SA[0], SC[0]

class Rec:
    def __init__(self): self.L = []
    def __call__(self, t): self.L.append(t)

def ssm_park(kc, K, KP, sQ):
    LR, LI, CR, CI, L16R, L16I, PWR, PWI, L64R, L64I, LWR, LWI, W0R = [KP + k for k in range(13)]
    vTW, vTR, vCB = KP + 16, KP + 17, KP + 18
    ssm_const_calc(kc, K, LR, LI, CR, CI)
    csq(kc, L16R, L16I, LR, LI, K)
    for _ in range(3): csq(kc, L16R, L16I, L16R, L16I, K)
    def powsel(dr, di, br, bi, bit, src):
        cmul(kc, K + 1, K + 2, dr, di, br, bi)
        kc(f"v_and_b32 v{K}, {bit}, v{src}")
        kc(f"v_cmp_ne_u32 vcc, 0, v{K}")
        kc(f"v_cndmask_b32 v{dr}, v{dr}, v{K+1}, vcc")
        kc(f"v_cndmask_b32 v{di}, v{di}, v{K+2}, vcc")
    kc(f"v_mov_b32 v{PWR}, v{CR}"); kc(f"v_mov_b32 v{PWI}, v{CI}")
    powsel(PWR, PWI, L16R, L16I, 32, 0)
    csq(kc, K + 14, K + 15, L16R, L16I, K)
    powsel(PWR, PWI, K + 14, K + 15, 16, 0)
    csq(kc, L64R, L64I, K + 14, K + 15, K)
    kc(f"v_mov_b32 v{K+10}, s{S_W4}")
    kc(f"v_mov_b32 v{LWR}, 1.0"); kc(f"v_mov_b32 v{LWI}, 0")
    powsel(LWR, LWI, L64R, L64I, 1, K + 10)
    csq(kc, K + 14, K + 15, L64R, L64I, K)
    powsel(LWR, LWI, K + 14, K + 15, 2, K + 10)
    csq(kc, K + 14, K + 15, K + 14, K + 15, K)
    kc(f"v_lshrrev_b32 v{K+10}, 4, v0")
    kc(f"v_sub_u32 v{K+10}, s{S_MT}, v{K+10}")
    kc(f"v_add_u32 v{K+11}, -5, v{K+10}")
    kc(f"v_add_u32 v{K+10}, -1, v{K+10}")
    kc(f"v_mov_b32 v{W0R}, 1.0"); kc(f"v_mov_b32 v{W0R+1}, 0")
    kc(f"v_mov_b32 v{W0R+2}, 1.0"); kc(f"v_mov_b32 v{W0R+3}, 0")
    for b in range(3):
        powsel(W0R, W0R + 1, K + 14, K + 15, 1 << b, K + 10)
        if b < 2: powsel(W0R + 2, W0R + 3, K + 14, K + 15, 1 << b, K + 11)
        if b < 2: csq(kc, K + 14, K + 15, K + 14, K + 15, K)
    kc(f"s_add_u32 s36, s{sQ}, {HTS}")
    kc(f"v_bfe_u32 v{K}, v0, 4, 1")
    kc(f"v_lshrrev_b32 v{K+1}, 5, v0")
    kc(f"v_lshl_add_u32 v{K+2}, v{K}, 1, v{K+1}")
    kc(f"v_and_b32 v{K+3}, 15, v0")
    kc(f"v_and_b32 v{vTW}, 6, v{K+3}")
    kc(f"v_lshlrev_b32 v{vTW}, 4, v{vTW}")
    kc(f"v_lshlrev_b32 v{K+4}, 5, v{K+2}")
    kc(f"v_xor_b32 v{vTW}, v{vTW}, v{K+4}")
    kc(f"v_lshl_add_u32 v{vTW}, v{K+3}, 7, v{vTW}")
    kc(f"v_add_u32 v{vTW}, s36, v{vTW}")
    kc(f"v_lshlrev_b32 v{vCB}, 2, v{K+3}")
    kc(f"v_add_u32 v{vCB}, {C_L + 512}, v{vCB}")
    kc(f"v_bfe_u32 v{K+4}, v0, 2, 2")
    kc(f"v_lshl_add_u32 v{K+5}, v{K+1}, 3, v{K+4}")
    kc(f"v_lshlrev_b32 v{vTR}, 7, v{K+5}")
    kc(f"v_lshrrev_b32 v{K+4}, 1, v{K+4}")
    kc(f"v_xor_b32 v{K+4}, v{K+4}, v0")
    kc(f"v_and_b32 v{K+4}, 1, v{K+4}")
    kc(f"v_lshl_add_u32 v{vTR}, v{K+4}, 5, v{vTR}")
    kc(f"v_lshl_add_u32 v{vTR}, v{K}, 4, v{vTR}")
    kc(f"v_bfe_u32 v{K+4}, v0, 1, 1")
    kc(f"v_lshl_add_u32 v{vTR}, v{K+4}, 3, v{vTR}")
    kc(f"v_add_u32 v{vTR}, s36, v{vTR}")
    kc(f"s_lshl_b32 s36, s{S_W4}, 9")
    kc(f"s_add_u32 s36, s36, {STATS_L}")
    kc(f"v_lshl_add_u32 v{KP+19}, v{K+2}, 7, s36")
    vStS = KP + 19
    vAg, vPr, vF = KP + 20, KP + 21, KP + 22
    kc(f"v_lshlrev_b32 v{vAg}, 3, v{K+3}")
    kc(f"v_lshrrev_b32 v{vPr}, 4, v0")
    kc(f"v_mul_u32_u24 v{vPr}, 3584, v{vPr}")
    kc(f"s_lshl_b32 s36, s{S_NS}, 7")
    kc(f"v_add3_u32 v{vPr}, v{vPr}, v{vAg}, s36")
    kc(f"v_add_u32 v{vAg}, {AGG_L}, v{vAg}")
    kc(f"s_lshl_b32 s36, s{S_MT}, 2")
    kc(f"s_add_u32 s36, s36, s{S_W4}")
    kc("s_lshl_b32 s36, s36, 10")
    flag_index(kc, 37, 38, 14)
    kc("s_add_u32 s36, s36, s37")
    kc(f"s_add_u32 s36, s36, {WS_FLAG + 512:#x}")
    kc(f"v_mov_b32 v{vF}, s36")

def gen_loader(a, cfg, ts):
    a.label("L_loader")
    a("s_setprio 3")
    vm = VM(a)
    vXe, vXo, vW, vB = 1, 2, 3, 4
    vFv, vP, vO, vPQ = 5, 6, 7, 8
    vWd, vCe, vCo, vCh = 9, 10, 11, 12
    vRf, vRh = 13, 14
    vA, vC = 24, 25
    vT = 15
    ACC, CA, RD = 27, 28, 44
    STG = 64
    CF = 144
    SACC = 80
    XRAW = CF + 64
    KP = XRAW + 8
    sGrp = [28, 29, 30, 31, 36, 37, 21]
    SP = ['', ' sc1'][cfg.spol]
    sMX, sMW, sMB, sMP = 72, 74, 75, 70
    sPerm, sSX, sSW = 68, 69, 15
    sRF = 14
    AP = ['', ' sc1', ' sc1 nt', ' sc0 sc1', ' sc0', ' nt'][cfg.apol]
    OP = ['', ' sc1', ' nt', ' sc1 nt'][cfg.opol]
    polx = " nt" if cfg.polx else ""
    polw = " nt" if cfg.polw else ""
    a(f"v_lshrrev_b32 v{vA}, 3, v0")
    a(f"v_and_b32 v{vC}, 7, v0")
    a(f"v_lshrrev_b32 v{vT+2}, 1, v{vA}")
    a(f"s_lshl_b32 s11, s{S_W4}, 4")
    a(f"v_add_u32 v{vT}, s11, v{vA}")
    a(f"v_mul_u32_u24 v{vW}, 3584, v{vT}")
    a(f"v_and_b32 v{vT+4}, 1, v{vT+2}")
    a(f"v_lshlrev_b32 v{vT+4}, 2, v{vT+4}")
    a(f"v_xor_b32 v{vT+4}, v{vC}, v{vT+4}")
    a(f"v_lshl_add_u32 v{vW}, v{vT+4}, 4, v{vW}")
    a(f"s_lshl_b32 s11, s{S_NS}, 7")
    a(f"v_add_u32 v{vW}, s11, v{vW}")
    a(f"s_lshl_b32 s11, s{S_MT}, 8")
    a(f"s_lshl_b32 s12, s{S_W4}, 6")
    a("s_add_u32 s11, s11, s12")
    a(f"v_lshrrev_b32 v{vT}, 2, v{vA}")
    a(f"v_and_b32 v{vT+1}, 3, v{vA}")
    a(f"v_lshl_add_u32 v{vT}, v{vT}, 4, v{vT+1}")
    a(f"v_add_u32 v{vT}, s11, v{vT}")
    a(f"v_mul_u32_u24 v{vXe}, 896, v{vT}")
    a(f"v_xor_b32 v{vT+3}, v{vC}, v{vT+2}")
    a(f"v_lshl_add_u32 v{vXe}, v{vT+3}, 4, v{vXe}")
    a(f"v_xor_b32 v{vXo}, 64, v{vXe}")
    a(f"s_and_b32 s12, s{S_W4}, 1")
    a(f"s_lshl_b32 s11, s{S_NS}, 4")
    a(f"s_lshl_b32 s13, s12, 3")
    a("s_add_u32 s11, s11, s13")
    a(f"v_add_u32 v{vT}, s11, v{vA}")
    a(f"v_mul_u32_u24 v{vB}, 896, v{vT}")
    a(f"v_lshl_add_u32 v{vB}, v{vT+3}, 4, v{vB}")
    a("s_lshl_b32 s13, s12, 6")
    a(f"v_xor_b32 v{vB}, s13, v{vB}")
    a(f"s_lshl_b32 s{sMX}, s{S_W4}, 13")
    a(f"s_lshl_b32 s{sMW}, s{S_W4}, 11")
    a(f"s_lshl_b32 s{sMB}, s{S_W4}, 10")
    a(f"s_mul_i32 s{sMP}, s{S_W4}, {Q}")
    perms = cfg.perms
    words = [sum(p[k] << (4 * k) for k in range(7)) for p in perms]
    ng = len(words)
    a(f"s_mov_b32 s{sPerm}, {words[0]:#x}")
    if ng > 1:
        if cfg.slab:
            a(f"s_add_u32 s11, s{S_SLOT}, s{S_XCD}")
        else:
            a(f"s_and_b32 s11, s{S_SLOT}, 3")
            a(f"s_add_u32 s11, s11, s{S_NT}")
        if ng == 3:
            a("s_mul_i32 s13, s11, 43")
            a("s_lshr_b32 s13, s13, 7")
            a("s_mul_i32 s13, s13, 3")
            a("s_sub_u32 s11, s11, s13")
        else:
            a(f"s_and_b32 s11, s11, {ng-1}")
        for g in range(1, ng):
            a(f"s_cmp_eq_u32 s11, {g}")
            a(f"s_cmov_b32 s{sPerm}, {words[g]:#x}")
    ts.x(1, 1)
    a("s_waitcnt lgkmcnt(0)")
    ts.x(1, 2)
    if cfg.tlb:
        a(f"v_mov_b32 v40, s{P_X}")
        a(f"v_mov_b32 v41, s{P_X+1}")
        for ln, p in enumerate([P_WG, P_WU, P_BRE, P_BIM, P_WD, P_CRE, P_CIM, P_WS][:cfg.tlb], 1):
            a(f"v_writelane_b32 v40, s{p}, {ln}")
            a(f"v_writelane_b32 v41, s{p+1}, {ln}")
        a(f"s_mov_b64 exec, {(1 << (cfg.tlb + 1)) - 1:#x}")
        a("global_load_dword v62, v[40:41], off")
        a("s_mov_b64 exec, -1")
    srd(a, SRD_A, P_WG, 448 * 3584)
    srd(a, SRD_X, P_X, 2048 * 896)
    srd(a, SRD_B, P_WU, 448 * 3584)
    a(f"s_cmp_ge_u32 s{S_W4}, 2")
    srd_sel(a, SRD_C, P_BIM, P_BRE, 448 * 896)

    thr = [None]
    def dma(vm, tag, voff, srdn, sbase, soff, m0base, m0off, pol=""):
        a(f"s_add_u32 m0, s{m0base}, {m0off}")
        a(f"s_add_u32 s11, s{sbase}, {soff}")
        if thr[0] is not None and len(vm.q) > thr[0]:
            a(f"s_waitcnt vmcnt({thr[0]})")
            vm.q = vm.q[-thr[0]:]
        vm.issue(tag, f"buffer_load_dwordx4 v{voff}, s[{srdn}:{srdn+3}], s11 offen{pol} lds")
    def issue_ops(s):
        r = R[s % 3]
        ops = []
        def pre():
            a(f"s_bfe_u32 s{sSX}, s{sPerm}, {(4 << 16) | (4 * s):#x}")
            a(f"s_mul_i32 s{sSW}, s{sSX}, {64*3584}")
            a(f"s_lshl_b32 s{sSX}, s{sSX}, 7")
        def mk(*args): return lambda: dma(vm, ('st', s), *args)
        L = []
        for i in range(2): L.append(mk(vW, SRD_A, sSW, i * 8 * 3584, sMW, r + OFF_WG + i * 1024, polw))
        for j in range(4): L.append(mk(vXo if j & 1 else vXe, SRD_X, sSX, (32 * (j >> 2) + 4 * (j & 3)) * 896, sMX, r + j * 1024, polx))
        for i in range(2): L.append(mk(vW, SRD_B, sSW, i * 8 * 3584, sMW, r + OFF_WU + i * 1024, polw))
        for j in range(4, 8): L.append(mk(vXo if j & 1 else vXe, SRD_X, sSX, (32 * (j >> 2) + 4 * (j & 3)) * 896, sMX, r + j * 1024, polx))
        L.append(mk(vB, SRD_C, sSX, 0, sMB, r + OFF_BB, polw))
        first = L[0]
        L[0] = lambda: (pre(), first())
        return L
    SRD_WD, SRD_CC, sBlk, sFlip, P_DSK2 = 32, 24, 16, 17, 38
    def w_ops(ps):
        L = []
        for p in ps:
            for n in range(2):
                def op(p=p, n=n):
                    if 12 <= p < 22:
                        d = STG + (p - 12) * 8 + 4 * n
                        a(f"s_add_u32 s11, s{sGrp[p//4]}, {((p % 4) * 16 + 8 * n) * 896}")
                        vm.issue(('w', p), f"buffer_load_dwordx4 v[{d}:{d+3}], v{vWd}, s[{SRD_WD}:{SRD_WD+3}], s11 offen")
                    else:
                        dma(vm, ('w', p), vWd, SRD_WD, sGrp[p//4], ((p % 4) * 16 + 8 * n) * 896, sMP, WSLOT[p] + n * 1024)
                L.append(op)
        return L
    sCB = [68, 69, 15]
    sCF, sCH = 16, 17
    def cfrag(p, lc): return CF + 8 * p + 4 * lc
    def c_ops(b):
        L = []
        for p in (range(4 * b, 4 * b + 4) if b < 3 else (12, 13)):
            for lc in range(2):
                def op(p=p, lc=lc):
                    d = cfrag(p, lc)
                    sb, so = (sCF, 2048 * p) if p < 12 else (sCH, 2048 * (p - 12))
                    if cfg.crot and p < 12: sb, so = sCB[p // 4], 2048 * (p % 4)
                    a(f"s_add_u32 s11, s{sb}, {so}")
                    vm.issue(('c', b), f"buffer_load_dwordx4 v[{d}:{d+3}], v{(vCe, vCo)[lc]}, s[{SRD_WS}:{SRD_WS+3}], s11 offen sc1")
                L.append(op)
        return L
    def w_write(ps):
        vm.wait(('w', ps[-1]))
        base = WSLOT[ps[0]]
        a(f"v_add_u32 v{vT+4}, {base}, v{vPQ}")
        for p in ps:
            for n in range(2):
                d = STG + (p - 12) * 8 + 4 * n
                a(f"ds_write_b128 v{vT+4}, v[{d}:{d+3}] offset:{WSLOT[p] - base + 1024*n}")
    def colsum_reads(s):
        r = R[s % 3]
        a(f"s_add_u32 s11, s{sMW}, {r + OFF_WG}")
        a(f"v_add_u32 v{vT}, s11, v{vP}")
        a(f"s_add_u32 s11, s{sMB}, {r + OFF_BB}")
        a(f"v_add_u32 v{vT+1}, s11, v{vP}")
        a(f"ds_read_b128 v[{RD}:{RD+3}], v{vT}")
        a(f"ds_read_b128 v[{RD+4}:{RD+7}], v{vT} offset:1024")
        a(f"ds_read_b128 v[{RD+8}:{RD+11}], v{vT} offset:8192")
        a(f"ds_read_b128 v[{RD+12}:{RD+15}], v{vT} offset:9216")
        a(f"ds_read_b128 v[{RD+16}:{RD+19}], v{vT+1}")
    def colsum_ops():
        L = ["s_waitcnt lgkmcnt(0)"]
        for n in range(4):
            for d in range(4):
                w = RD + 4 * n + d
                ac = CA + (n >> 1) * 8 + 2 * d
                L.append(f"v_lshlrev_b32 v{vT+2}, 16, v{w}")
                L.append(f"v_and_b32 v{vT+3}, s71, v{w}")
                L.append(f"v_add_f32 v{ac}, v{ac}, v{vT+2}")
                L.append(f"v_add_f32 v{ac+1}, v{ac+1}, v{vT+3}")
        for d in range(4):
            w = RD + 16 + d
            L.append(f"v_lshlrev_b32 v{vT+2}, 16, v{w}")
            L.append(f"v_and_b32 v{vT+3}, s71, v{w}")
            L.append(f"v_add_f32 v{vT+2}, v{vT+2}, v{vT+3}")
            L.append(f"v_add_f32 v{ACC}, v{ACC}, v{vT+2}")
        return L

    stage_ops = {}
    cdone = set()
    def tok_ops(toks):
        L = []
        for t in toks:
            if t[0] == 's':
                st = int(t[1])
                if st not in stage_ops: stage_ops[st] = issue_ops(st)
                lo, hi = (0, 13) if ':' not in t else map(int, t.split(':')[1].split('-'))
                L += stage_ops[st][lo:hi]
            elif t[0] == 'w': L += w_ops([int(t[1:])])
            elif t[0] == 'c':
                lo, hi = (0, 8) if ':' not in t else map(int, t.split(':')[1].split('-'))
                L += c_ops(int(t[1]))[lo:hi]
                cdone.add(int(t[1]))
            else: L.append(lambda t=t: special(t))
        return L
    def run_tokens(toks):
        for o in tok_ops(toks): o()
    def special(t):
        if True:
            if t == 'put':
                vm.wait('stats')
                a(f"s_lshl_b32 s11, s{S_W4}, 9")
                a(f"s_add_u32 s11, s11, {STATS_L}")
                a(f"v_lshl_add_u32 v{vT+4}, v0, 3, s11")
                a(f"ds_write_b64 v{vT+4}, v[20:21]")
                a(f"v_lshlrev_b32 v{vT+4}, 3, v0")
                a(f"v_add_u32 v{vT+4}, {ST2_L}, v{vT+4}")
                a(f"ds_write_b64 v{vT+4}, v[22:23]")
            elif t == 'e':
                a(f"s_add_u32 s12, s41, {16*896}")
                vm.issue('e', f"buffer_load_dwordx4 v[{XRAW}:{XRAW+3}], v20, s[{SRD_X}:{SRD_X+3}], s41 offen")
                vm.issue('e', f"buffer_load_dwordx4 v[{XRAW+4}:{XRAW+7}], v20, s[{SRD_X}:{SRD_X+3}], s12 offen")
                vm.issue('e', f"global_load_ushort v{KP+23}, v21, s[{P_DSK2}:{P_DSK2+1}]")
            elif t == 'm':
                a(f"v_lshlrev_b32 v{vP}, 4, v0")
                a("s_lshl_b32 s12, s2, 2")
                a(f"s_add_u32 s12, s12, s{S_W4}")
                a("s_lshl_b32 s12, s12, 10")
                a(f"s_add_u32 s12, s12, {192*3584}")
                vm.issue('m', f"buffer_load_dwordx4 v[140:143], v{vP}, s[{SRD_A}:{SRD_A+3}], s12 offen")
                vm.issue('m', f"buffer_load_dwordx4 v[140:143], v{vP}, s[{SRD_B}:{SRD_B+3}], s12 offen")
                a(f"s_and_b32 s12, s{S_W4}, 1")
                a("s_lshl_b32 s11, s2, 1")
                a("s_add_u32 s12, s12, s11")
                a("s_lshl_b32 s12, s12, 10")
                vm.issue('m', f"buffer_load_dwordx4 v[140:143], v{vP}, s[{SRD_C}:{SRD_C+3}], s12 offen")
            elif t == 'k':
                a("s_waitcnt lgkmcnt(0)")
            elif t == 'init':
                a(f"v_mov_b32 v26, 0")
                vm.issue('init', f"global_load_dword v5, v26, s[{P_DBG}:{P_DBG+1}] sc1")
            elif t == 'fetch':
                vm.wait('init')
                def cond():
                    a(f"v_readfirstlane_b32 s11, v5")
                    a(f"s_cmp_ge_u32 s11, {INIT_N}")
                spin_check(a, "L_init", [f"global_load_dword v5, v26, s[{P_DBG}:{P_DBG+1}] sc1"], cond, 8)
                if cfg.ts == 1 and cfg.tsset == 3: a(f"s_add_u32 s{TS0+18}, s73, 1")
                if cfg.crot:
                    a(f"s_and_b32 s11, s{S_SLOT}, 3")
                    a("s_lshl_b32 s11, s11, 1")
                    a("s_lshr_b32 s12, 0x924, s11")
                    for b in range(3):
                        a(f"s_bfe_u32 s11, s12, {(2 << 16) | (2 * b):#x}")
                        a("s_lshl_b32 s11, s11, 13")
                        a(f"s_add_u32 s{sCB[b]}, s11, s{sCF}")
                a(f"s_lshl_b32 s11, s{S_MT}, 8")
                a(f"s_lshl_b32 s12, s{S_W4}, 6")
                a("s_add_u32 s11, s11, s12")
                a(f"v_add_lshl_u32 v5, v0, s11, 3")
                a(f"s_lshl_b32 s12, s{S_M64}, 6")
                a(f"v_add_lshl_u32 v26, v0, s12, 3")
                a(f"s_mov_b32 s11, {WS_STATS:#x}")
                vm.issue('stats', f"buffer_load_dwordx2 v[20:21], v5, s[{SRD_WS}:{SRD_WS+3}], s11 offen sc1")
                vm.issue('stats', f"buffer_load_dwordx2 v[22:23], v26, s[{SRD_WS}:{SRD_WS+3}], s11 offen sc1")
                if cfg.pt >= 2:
                    a("s_mov_b64 exec, 1")
                    vm.issue('pt', f"global_load_dword v14, v{vO}, s[{P_OUT}:{P_OUT+1}]")
                    if cfg.pt == 3:
                        vm.issue('pt', f"buffer_load_dword v14, v{vP}, s[{SRD_WS}:{SRD_WS+3}], s19 offen sc1")
                        a(f"s_mul_i32 s11, s40, {RT_BYTES}")
                        a("s_and_b32 s11, s11, 0xffe00000")
                        vm.issue('pt', f"buffer_load_dword v14, v{vP}, s[{SRD_WS}:{SRD_WS+3}], s11 offen sc1")
                    a("s_mov_b64 exec, -1")
            else: raise ValueError(t)
    win = cfg.win
    run_tokens([f"s0:0-{cfg.s0a}"])
    if cfg.s0a == 13:
        ts(1)
        ts.x(1, 6)
        run_tokens(win.get(-1, []))
        a("s_setprio 0")
    a(f"s_and_b32 s12, s{S_W4}, 1")
    a(f"v_lshlrev_b32 v{vP}, 4, v0")
    a(f"v_add_u32 v{vPQ}, s{sMP}, v{vP}")
    a(f"s_mul_i32 s14, s{S_W4}, 448")
    a(f"v_add_u32 v{vT}, s14, v{vA}")
    a(f"v_mul_u32_u24 v{vWd}, 896, v{vT}")
    a(f"v_lshl_add_u32 v{vWd}, v{vT+4}, 4, v{vWd}")
    a(f"s_lshl_b32 s14, s{S_NT}, 7")
    a(f"v_add_u32 v{vWd}, s14, v{vWd}")
    a(f"v_and_b32 v{vT+1}, 3, v0")
    a("s_mov_b32 s71, 0xffff0000")
    for k in range(17): a(f"v_mov_b32 v{ACC+k}, 0")
    srd(a, SRD_WS, P_WS, WS_SIZE)
    a(f"s_mov_b64 s[{P_DSK2}:{P_DSK2+1}], s[{P_DSK}:{P_DSK+1}]")
    srd(a, SRD_WD, P_WD, 1792 * 896)
    p2_rot(a, cfg, sRF, sBlk, sFlip)
    a(f"s_lshl_b32 s11, s{S_M64}, 1")
    a("s_add_u32 s40, s11, s12")
    a("s_lshl_b32 s12, s40, 5")
    a(f"v_lshrrev_b32 v{vT}, 2, v0")
    a(f"v_add_u32 v{vT}, s12, v{vT}")
    a(f"v_mul_u32_u24 v{vT}, 896, v{vT}")
    a(f"v_lshl_add_u32 v20, v{vT+1}, 4, v{vT}")
    a(f"v_lshrrev_b32 v{vT+2}, 5, v0")
    a(f"v_lshl_add_u32 v{vT}, v{vT+2}, 4, s12")
    a(f"s_lshr_b32 s13, s{S_W4}, 1")
    a("s_lshl_b32 s12, s13, 5")
    a(f"s_lshl_b32 s11, s{S_NT}, 6")
    a("s_add_u32 s11, s11, s12")
    a("s_lshl_b32 s41, s11, 1")
    a(f"v_and_b32 v{vT+3}, 31, v0")
    a(f"v_add_u32 v{vT+1}, s11, v{vT+3}")
    a(f"v_mul_u32_u24 v{vT}, 448, v{vT}")
    a(f"v_add_lshl_u32 v{vO}, v{vT}, v{vT+1}, 2")
    a(f"v_lshlrev_b32 v21, 1, v{vT+1}")
    a("s_lshl_b32 s12, s13, 10")
    a(f"v_add_u32 v{vCe}, s12, v{vP}")
    a(f"v_xor_b32 v{vCo}, 1024, v{vCe}")
    a(f"s_lshl_b32 s11, s{S_NT}, 1")
    a("s_add_u32 s11, s11, s13")
    a(f"s_mul_i32 s11, s11, {28*2048}")
    a(f"s_add_u32 s11, s11, {WS_CP:#x}")
    a(f"s_and_b32 s12, s{S_W4}, 1")
    a(f"s_lshl_b32 s{sCF}, s12, 15")
    a(f"s_add_u32 s{sCF}, s{sCF}, s11")
    a(f"s_lshl_b32 s{sCH}, s12, 12")
    a(f"s_add_u32 s{sCH}, s{sCH}, s11")
    a(f"s_add_u32 s{sCH}, s{sCH}, {12*2048}")
    a(f"v_bfe_u32 v{vT}, v0, 4, 1")
    a(f"v_lshlrev_b32 v{vT+1}, 2, v{vT}")
    a(f"v_xor_b32 v{vC}, v{vC}, v{vT+1}")
    a(f"v_lshlrev_b32 v{vC}, 5, v{vC}")
    a(f"v_lshl_add_u32 v{vC}, v{vT}, 9, v{vC}")
    a(f"v_lshl_add_u32 v{vC}, v{vT+2}, 8, v{vC}")
    a(f"s_add_u32 s11, s{sMB}, {CP_L}")
    a(f"v_add_u32 v{vC}, s11, v{vC}")
    a(f"s_lshl_b32 s11, s{S_W4}, 5")
    a(f"s_add_u32 s11, s11, {C_L + 512}")
    a(f"v_lshl_add_u32 v{vA}, v{vA}, 2, s11")
    ts.x(1, 8)
    LR, LI, CR, CI, L16R, L16I, PWR, PWI, L64R, L64I, LWR, LWI, W0R = [KP + k for k in range(13)]
    vTW, vTR, vCB, vStS, vAg, vPr, vF = [KP + k for k in range(16, 23)]
    a(f"s_lshl_b32 s21, s{S_NS}, 7")
    a(f"s_mul_i32 s22, s{S_MT}, 3584")
    a("s_add_u32 s22, s22, s21")
    a(f"s_add_u32 s22, s22, {WS_AGG - AGG_L:#x}")
    a(f"s_mov_b32 s23, {WS_AGG:#x}")
    a(f"s_mov_b32 s20, {WS_AGG + 4*3584:#x}")
    a(f"s_lshl_b32 s18, s{S_M64}, 10")
    a(f"s_and_b32 s11, s{S_W4}, 1")
    a("s_lshl_b32 s11, s11, 7")
    a("s_add_u32 s18, s18, s11")
    a(f"s_add_u32 s18, s18, {WS_FLAG + 512:#x}")
    a(f"s_lshl_b32 s11, s{S_MT}, 2")
    a(f"s_add_u32 s11, s11, s{S_W4}")
    a(f"s_mul_i32 s19, s11, {2*RT_BYTES}")
    a(f"s_lshl_b32 s11, s{S_NS}, 10")
    a("s_add_u32 s19, s19, s11")
    a(f"s_add_u32 s19, s19, {56*1024}")
    for g in range(7):
        a(f"s_add_u32 s12, s{sRF}, {g}")
        a("s_cmp_ge_u32 s12, 7")
        a("s_cselect_b32 s13, 7, 0")
        a("s_sub_u32 s12, s12, s13")
        a(f"s_mul_i32 s{sGrp[g]}, s12, {64*896}")
    a(f"s_add_u32 s11, s{sMX}, {R[2]}")
    a(f"v_add_u32 v{vT+4}, s11, v{vP}")
    kparts = {}
    if cfg.s0a < 13:
        run_tokens([f"s0:{cfg.s0a}-13"])
        ts(1)
        ts.x(1, 6)
        run_tokens(win.get(-1, []))
    a(f"s_setprio {cfg.wprio}")
    for s in range(7):
        vm.wait(('st', s))
        ts.x(2, 1 + s)
        a("s_barrier")
        ts.x(3, 1 + s)
        if s == 0: ts(2)
        if s == 0:
            for k in range(6): a(f"ds_read_b128 v[{KP+4*k}:{KP+4*k+3}], v{vT+4} offset:{1024*k}")
        if s == 6:
            QQ = 28
            for p in range(8): a(f"ds_read_b32 v{QQ+p}, v{vT+1} offset:{512*p}")
            a("s_waitcnt lgkmcnt(0)")
            for p in range(4): a(f"v_add_f32 v{QQ+p}, v{QQ+p}, v{QQ+4+p}")
            a(f"v_add_f32 v{QQ}, v{QQ}, v{QQ+2}")
            a(f"v_add_f32 v{QQ+1}, v{QQ+1}, v{QQ+3}")
            a(f"v_add_f32 v{QQ}, v{QQ}, v{QQ+1}")
            a(f"ds_write_b32 v{vT}, v{QQ}")
            npre = win[6].index("put") + 1 if "put" in win[6] else 2
            pre = tok_ops(win[6][:npre])
            for o in pre: o()
            a("s_waitcnt lgkmcnt(0)")
            a("s_barrier")
            a("s_setprio 0")
            run_tokens(win[6][npre:])
            continue
        segs = [[None, []]]
        for t in win.get(s, []):
            if t.startswith("cs"): segs.append([int(t[2:]), []])
            else: segs[-1][1].append(t)
        for cs, toks in segs:
            fl = []
            if cs is not None:
                vm.wait(('st', cs))
                colsum_reads(cs)
                fl = colsum_ops()
            if cs == 6:
                b = ACC
                for k in range(8): fl.append(f"v_permlane32_swap_b32 v{CA+k}, v{CA+8+k}")
                fl.append(f"v_add_f32_dpp v{b}, v{b}, v{b} quad_perm:[1,0,3,2] row_mask:0xf bank_mask:0xf")
                for k in range(8): fl.append(f"v_add_f32 v{CA+k}, v{CA+k}, v{CA+8+k}")
                fl.append(f"v_add_f32_dpp v{b}, v{b}, v{b} quad_perm:[2,3,0,1] row_mask:0xf bank_mask:0xf")
                for k in range(8): fl.append(f"v_add_f32_dpp v{CA+k}, v{CA+k}, v{CA+k} row_ror:8 row_mask:0xf bank_mask:0xf")
                fl.append(f"v_add_f32_dpp v{b}, v{b}, v{b} row_half_mirror row_mask:0xf bank_mask:0xf")
                fl.append(f"ds_write_b128 v{vC}, v[{CA}:{CA+3}]")
                fl.append(f"ds_write_b128 v{vC}, v[{CA+4}:{CA+7}] offset:16")
                fl.append(f"ds_write_b32 v{vA}, v{b}")
            ops = tok_ops(toks)
            per = max(1, -(-len(fl) // max(1, len(ops))))
            interleave(a, ops, fl, per)
        if s == 5:
            a(f"s_and_b32 s12, s{S_W4}, 1")
            a("s_lshl_b32 s12, s12, 8")
            a(f"v_lshl_add_u32 v{vT}, v0, 2, s12")
            a(f"v_add_u32 v{vT+1}, {CP_L}, v{vT}")
            a(f"v_add_u32 v{vT}, {C_L}, v{vT}")
            a("s_waitcnt lgkmcnt(0)")
            a("s_setprio 3")
    ts.x(2, 8)
    a("s_barrier")
    ts(3)
    ts.x(3, 8)
    a(f"v_add_u32 v{vT+2}, {SD}, v{vPQ}")
    vm.wait(('w', 11), "lgkmcnt(0)")
    a("s_barrier")
    X, Y, ST = 32, 48, CF
    HR, HI, T1, T2, CBR, CBI, G0, G1, QR, QI = 20, 21, 22, 23, 24, 25, 26, 28, 30, 31
    for k in range(8): a(f"ds_read_b128 v[{X+4*k}:{X+4*k+3}], v{vT+2} offset:{1024*k}")
    a(f"ds_read_b32 v{CBR}, v{vCB}")
    a(f"ds_read_b32 v{CBI}, v{vCB} offset:64")
    for k in range(8): a(f"ds_read_b128 v[{ST+4*k}:{ST+4*k+3}], v{vStS} offset:{16*k}")
    a(f"s_setprio {cfg.eprio}")
    a(f"v_lshrrev_b32 v1, 4, v0")
    a(f"v_sub_u32 v1, s{S_MT}, v1")
    a(f"v_cmp_le_i32 s[56:57], 1, v1")
    a(f"v_cmp_le_i32 s[58:59], 5, v1")
    a(f"v_lshlrev_b32 v5, 16, v{KP+23}")
    a(f"v_mov_b32 v3, v{vF}")
    vF = 3
    a("s_waitcnt lgkmcnt(10)")
    for r in range(16): a(f"v_permlane16_swap_b32 v{X+r}, v{Y+r}")
    a("s_waitcnt lgkmcnt(0)")
    side = {}
    for r in range(16):
        if r in side: side[r]()
        m, rs = ST + 2 * r, ST + 2 * r + 1
        a(f"v_fma_f32 v{X+r}, -v{m}, v{CBR}, v{X+r}")
        a(f"v_fma_f32 v{Y+r}, -v{m}, v{CBI}, v{Y+r}")
        a(f"v_mul_f32 v{X+r}, v{X+r}, v{rs}")
        a(f"v_mul_f32 v{Y+r}, v{Y+r}, v{rs}")
        if r >= 1:
            pr, pi = (X, Y) if r == 1 else (HR, HI)
            a(f"v_fma_f32 v{T1}, -v{LI}, v{pi}, v{X+r}")
            a(f"v_fma_f32 v{T2}, v{LI}, v{pr}, v{Y+r}")
            a(f"v_fma_f32 v{HR}, v{LR}, v{pr}, v{T1}")
            a(f"v_fma_f32 v{HI}, v{LR}, v{pi}, v{T2}")
    z = CF
    a(f"v_mov_b32 v{z}, v{HR}"); a(f"v_mov_b32 v{z+1}, v{HI}")
    csq(a, z + 8, z + 9, L16R, L16I, z + 10)
    a(f"v_permlane32_swap_b32 v{HR}, v{z}")
    a(f"v_permlane32_swap_b32 v{HI}, v{z+1}")
    a(f"v_fma_f32 v{z}, -v{L16I}, v{HI}, v{z}")
    a(f"v_fma_f32 v{z+1}, v{L16I}, v{HR}, v{z+1}")
    a(f"v_fmac_f32 v{z}, v{L16R}, v{HR}")
    a(f"v_fmac_f32 v{z+1}, v{L16R}, v{HI}")
    a(f"v_mov_b32 v{z+2}, v{z}"); a(f"v_mov_b32 v{z+3}, v{z+1}")
    a(f"s_lshl_b32 s11, s{S_W4}, 7")
    a(f"v_add_u32 v{z+5}, s11, v{vAg}")
    a(f"v_permlane16_swap_b32 v{z}, v{z+2}")
    a(f"v_permlane16_swap_b32 v{z+1}, v{z+3}")
    a(f"v_fma_f32 v{z+2}, -v{z+9}, v{z+1}, v{z+2}")
    a(f"v_fma_f32 v{z+3}, v{z+9}, v{z}, v{z+3}")
    a(f"v_fmac_f32 v{z+2}, v{z+8}, v{z}")
    a(f"v_fmac_f32 v{z+3}, v{z+8}, v{z+1}")
    a(f"ds_write_b64 v{z+5}, v[{z+2}:{z+3}]")
    a("s_waitcnt lgkmcnt(0)")
    ts.x(2, 9)
    a(f"s_setprio {cfg.lprio}")
    a("s_barrier")
    ts(4)
    E = CF + 16
    for i in range(4): a(f"ds_read_b64 v[{E+2+2*i}:{E+3+2*i}], v{vAg} offset:{128*i}")
    a(f"v_mov_b32 v{E}, 0")
    a(f"v_mov_b32 v{E+1}, 0")
    a(f"v_and_b32 v{z+4}, 16, v0")
    a(f"v_cmp_ne_u32 s[12:13], 0, v{z+4}")
    for i in range(1, 4):
        e, p = E + 2 + 2 * i, E + 2 * i
        a(f"s_waitcnt lgkmcnt({3 - i})")
        a(f"v_fma_f32 v{e}, -v{L64I}, v{p+1}, v{e}")
        a(f"v_fma_f32 v{e+1}, v{L64I}, v{p}, v{e+1}")
        a(f"v_fmac_f32 v{e}, v{L64R}, v{p}")
        a(f"v_fmac_f32 v{e+1}, v{L64R}, v{p+1}")
    a(f"s_cmp_lg_u32 s{S_W4}, 0")
    a("s_cbranch_scc1 L_l_nopub")
    e = E + 8
    a(f"v_cmp_eq_u32 vcc, -1, v{e}")
    a(f"v_mov_b32 v{T1}, 0x7fc00000")
    a(f"v_cndmask_b32 v{e}, v{e}, v{T1}, vcc")
    a("s_mov_b64 exec, 0xffff")
    a(f"buffer_store_dwordx2 v[{e}:{e+1}], v{vAg}, s[{SRD_WS}:{SRD_WS+3}], s22 offen sc1")
    a("s_mov_b64 exec, -1")
    ts(5)
    a.label("L_l_nopub")
    a(f"v_cmp_lt_u32 vcc, 31, v0")
    a(f"v_cndmask_b32 v{z}, 0, v{z}, s[12:13]")
    a(f"v_cndmask_b32 v{z+1}, 0, v{z+1}, s[12:13]")
    a(f"v_fma_f32 v{HR}, -v{L16I}, v{z+1}, v{HR}")
    a(f"v_fma_f32 v{HI}, v{L16I}, v{z}, v{HI}")
    a(f"v_fmac_f32 v{HR}, v{L16R}, v{z}")
    a(f"v_fmac_f32 v{HI}, v{L16R}, v{z+1}")
    a(f"v_cndmask_b32 v{z}, v{z}, v{HR}, vcc")
    a(f"v_cndmask_b32 v{z+1}, v{z+1}, v{HI}, vcc")
    cmul(a, HR, HI, z, z + 1, CR, CI)
    a(f"s_bitcmp1_b32 s{S_W4}, 0")
    a("s_cselect_b64 vcc, -1, 0")
    a(f"v_cndmask_b32 v{QR}, v{E}, v{E+2}, vcc")
    a(f"v_cndmask_b32 v{QI}, v{E+1}, v{E+3}, vcc")
    a(f"v_cndmask_b32 v{T1}, v{E+4}, v{E+6}, vcc")
    a(f"v_cndmask_b32 v{T2}, v{E+5}, v{E+7}, vcc")
    a(f"s_bitcmp1_b32 s{S_W4}, 1")
    a("s_cselect_b64 vcc, -1, 0")
    a(f"v_cndmask_b32 v{QR}, v{QR}, v{T1}, vcc")
    a(f"v_cndmask_b32 v{QI}, v{QI}, v{T2}, vcc")
    ts.x(2, 10)
    thr[0] = cfg.thr
    lds = [f"buffer_load_dwordx2 v[{G0}:{G0+1}], v{vPr}, s[{SRD_WS}:{SRD_WS+3}], s23 offen sc1",
           f"buffer_load_dwordx2 v[{G1}:{G1+1}], v{vPr}, s[{SRD_WS}:{SRD_WS+3}], s20 offen sc1"]
    up = Rec()
    for r in range(16):
        up(f"v_mul_f32 v{T1}, v{CI}, v{Y+r}")
        up(f"v_mul_f32 v{T2}, v{CI}, v{X+r}")
        up(f"v_fma_f32 v{X+r}, v{CR}, v{X+r}, -v{T1}")
        up(f"v_fma_f32 v{Y+r}, v{CR}, v{Y+r}, v{T2}")
    vRd, vOne = 4, 2
    a(f"s_lshl_b32 s11, s{S_W4}, 2")
    a(f"s_add_u32 s11, s11, {CNT_L + 16}")
    a(f"v_mov_b32 v{vRd}, s11")
    a(f"v_mov_b32 v{vOne}, 1")
    thr[0] = None
    co = w_ops(range(22, 28)) + (c_ops(0) if cfg.c0early else [])
    interleave(a, co[:cfg.c1], up.L, 4)
    if cfg.agpos == 0:
        for t in lds: vm.issue('ag', t)
    w_write([12, 13, 14, 15])
    a(f"ds_write_b32 v{vRd}, v{vOne}")
    XV, STT, DS = 64, 80, 5
    TT = SACC + 32
    vHW = 1
    a(f"v_add_u32 v{vHW}, {HTS}, v{vPQ}")
    a(f"ds_write_b128 v{vHW}, v[{XRAW}:{XRAW+3}]")
    a(f"ds_write_b128 v{vHW}, v[{XRAW+4}:{XRAW+7}] offset:1024")
    a(f"v_lshrrev_b32 v{vT+3}, 5, v0")
    a(f"v_lshlrev_b32 v{vT+2}, 10, v{vT+3}")
    a(f"v_and_b32 v{vT}, 31, v0")
    a(f"v_lshl_add_u32 v{vT+2}, v{vT}, 1, v{vT+2}")
    a(f"s_add_u32 s11, s{sMP}, {HTS}")
    a(f"v_add_u32 v{vT+2}, s11, v{vT+2}")
    for r in range(16): a(f"ds_read_u16 v{XV+r}, v{vT+2} offset:{64*r}")
    if cfg.agpos == 1:
        for t in lds: vm.issue('ag', t)
    w_write([16, 17])
    def wrest():
        w_write([18, 19])
        w_write([20, 21])
        a(f"v_mov_b32 v{T1}, 2")
        a(f"ds_write_b32 v{vRd}, v{T1}")
    if not cfg.wl: wrest()
    co = co[cfg.c1:]
    ts(8)
    vm.wait('ag')
    def cond():
        a(f"v_cmp_eq_u32 vcc, -1, v{G0}")
        a("s_and_b64 s[48:49], vcc, s[56:57]")
        a(f"v_cmp_eq_u32 vcc, -1, v{G1}")
        a("s_and_b64 s[50:51], vcc, s[58:59]")
        a("s_or_b64 s[48:49], s[48:49], s[50:51]")
        a("s_cmp_eq_u64 s[48:49], 0")
    spin_check(a, "L_agg", lds, cond, 2)
    ts(6)
    SR, SI = CBR, CBI
    cmul(a, SR, SI, G0, G0 + 1, W0R, W0R + 1)
    cmul(a, T1, T2, G1, G1 + 1, W0R + 2, W0R + 3)
    a(f"v_cndmask_b32 v{SR}, 0, v{SR}, s[56:57]")
    a(f"v_cndmask_b32 v{SI}, 0, v{SI}, s[56:57]")
    a(f"v_cndmask_b32 v{T1}, 0, v{T1}, s[58:59]")
    a(f"v_cndmask_b32 v{T2}, 0, v{T2}, s[58:59]")
    a(f"v_add_f32 v{SR}, v{SR}, v{T1}")
    a(f"v_add_f32 v{SI}, v{SI}, v{T2}")
    for sw in ("v_permlane32_swap_b32", "v_permlane16_swap_b32"):
        a(f"v_mov_b32 v{T1}, v{SR}")
        a(f"v_mov_b32 v{T2}, v{SI}")
        a(f"{sw} v{SR}, v{T1}")
        a(f"{sw} v{SI}, v{T2}")
        a(f"v_add_f32 v{SR}, v{SR}, v{T1}")
        a(f"v_add_f32 v{SI}, v{SI}, v{T2}")
    a(f"v_fmac_f32 v{QR}, v{LWR}, v{SR}")
    a(f"v_fmac_f32 v{QI}, v{LWR}, v{SI}")
    a(f"v_fma_f32 v{QR}, -v{LWI}, v{SI}, v{QR}")
    a(f"v_fmac_f32 v{QI}, v{LWI}, v{SR}")
    a(f"v_fmac_f32 v{HR}, v{PWR}, v{QR}")
    a(f"v_fmac_f32 v{HI}, v{PWR}, v{QI}")
    a(f"v_fma_f32 v{HR}, -v{PWI}, v{QI}, v{HR}")
    a(f"v_fmac_f32 v{HI}, v{PWI}, v{QR}")
    pr, pi = HR, HI
    PK, HF = 96, 80
    rest = co[:cfg.c2]
    for r in range(16):
        if rest: rest.pop(0)()
        a(f"v_fma_f32 v{X+r}, -v{LI}, v{pi}, v{X+r}")
        a(f"v_fma_f32 v{Y+r}, v{LI}, v{pr}, v{Y+r}")
        a(f"v_fmac_f32 v{X+r}, v{LR}, v{pr}")
        a(f"v_fmac_f32 v{Y+r}, v{LR}, v{pi}")
        pr, pi = X + r, Y + r
    for k in range(8):
        a(f"v_cvt_pk_bf16_f32 v{PK+k}, v{X+2*k}, v{X+2*k+1}")
    a(f"ds_write_b128 v{vTW}, v[{PK}:{PK+3}]")
    a(f"ds_write_b128 v{vTW}, v[{PK+4}:{PK+7}] offset:16")
    for k in range(8):
        a(f"v_cvt_pk_bf16_f32 v{PK+8+k}, -v{Y+2*k}, -v{Y+2*k+1}")
    a(f"ds_write_b128 v{vTW}, v[{PK+8}:{PK+11}] offset:2048")
    a(f"ds_write_b128 v{vTW}, v[{PK+12}:{PK+15}] offset:2064")
    for q in range(2):
        for part in range(2):
            for j in range(2):
                d = HF + 8 * q + 4 * part + 2 * j
                a(f"ds_read_b64_tr_b16 v[{d}:{d+1}], v{vTR} offset:{(part*16 + 4*j)*128 + 64*(q ^ j)}")
    assert not rest
    a("s_waitcnt lgkmcnt(0)")
    for q in range(2):
        for part in range(2):
            d = HF + 8 * q + 4 * part
            a(f"s_add_u32 s11, s19, {q*RT_BYTES + part*HALF_BYTES}")
            vm.issue('hs', f"buffer_store_dwordx4 v[{d}:{d+3}], v{vP}, s[{SRD_WS}:{SRD_WS+3}], s11 offen{SP}")
    if cfg.wl: wrest()
    def flag2():
        vm.wait('hs')
        a("s_mov_b64 exec, 1")
        vm.issue('f', f"buffer_store_dword v{vOne}, v{vF}, s[{SRD_WS}:{SRD_WS+3}], 0 offen sc1")
        a("s_mov_b64 exec, -1")
        ts(7)
    if cfg.f2b == 0: flag2()
    for o in co[cfg.c2:] + (c_ops(2) if not cfg.clate else []): o()
    if cfg.f2b == 1: flag2()
    a(f"s_and_b32 s11, s{S_W4}, 1")
    a("s_lshl_b32 s11, s11, 8")
    a(f"s_add_u32 s11, s11, {ST2_L}")
    a(f"v_lshl_add_u32 v{vT+3}, v{vT+3}, 7, s11")
    STT = 32
    for k in range(8): a(f"ds_read_b128 v[{STT+4*k}:{STT+4*k+3}], v{vT+3} offset:{16*k}")
    for r in range(16): a(f"v_lshlrev_b32 v{XV+r}, 16, v{XV+r}")
    a("s_waitcnt lgkmcnt(0)")
    a("s_setprio 0")
    def rnd_pair(r0, r1):
        a(f"v_cvt_pk_bf16_f32 v{r1}, v{r0}, v{r1}"); a(f"v_lshlrev_b32 v{r0}, 16, v{r1}"); a(f"v_and_b32 v{r1}, s71, v{r1}")
    for r in range(16): a(f"v_sub_f32 v{TT+r}, v{XV+r}, v{STT+2*r}")
    for k in range(8): rnd_pair(TT + 2 * k, TT + 2 * k + 1)
    a(f"v_mov_b32 v{T2}, 3")
    vm.wait(('w', 27))
    a(f"ds_write_b32 v{vRd}, v{T2}")
    for r in range(16): a(f"v_mul_f32 v{TT+r}, v{TT+r}, v{STT+2*r+1}")
    for k in range(8): rnd_pair(TT + 2 * k, TT + 2 * k + 1)
    for r in range(16): a(f"v_mul_f32 v{TT+r}, v{TT+r}, v{DS}")
    for k in range(8): rnd_pair(TT + 2 * k, TT + 2 * k + 1)
    def poll(name, off):
        sspin(a, name, [f"s_load_dwordx16 s[20:35], s[{P_WS}:{P_WS+1}], s18 glc"], pcond, cfg.psleep)
    if True:
        def pcond():
            for k in range(0, 12, 4): a(f"s_and_b64 s[{20+k}:{21+k}], s[{20+k}:{21+k}], s[{22+k}:{23+k}]")
            a("s_and_b64 s[20:21], s[20:21], s[24:25]")
            a("s_and_b64 s[28:29], s[28:29], s[32:33]")
            a("s_and_b64 s[20:21], s[20:21], s[28:29]")
            a("s_and_b32 s20, s20, s21")
            a("s_cmp_eq_u32 s20, 1")
    a(f"s_mul_i32 s57, s40, {RT_BYTES}")
    a("s_xor_b32 s11, s40, 1")
    a(f"s_mul_i32 s56, s11, {RT_BYTES}")
    a(f"s_lshr_b32 s11, s{S_W4}, 1")
    a(f"s_mul_i32 s11, s11, {HALF_BYTES}")
    a(f"s_add_u32 s11, s11, {56*1024}")
    a("s_add_u32 s56, s56, s11")
    a("s_add_u32 s57, s57, s11")
    a(f"s_and_b32 s12, s{S_W4}, 1")
    a("s_lshl_b32 s13, s12, 14")
    for b in range(3):
        if cfg.crot:
            a(f"s_sub_u32 s11, s{sCB[b]}, s{sCF}")
            a("s_lshr_b32 s11, s11, 1")
            a(f"s_add_u32 s{52+b}, s13, s11")
        else: a(f"s_add_u32 s{52+b}, s13, {b*4096}")
    a("s_lshl_b32 s12, s12, 11")
    a(f"s_add_u32 s55, s12, {12*1024}")
    srd(a, 60, P_OUT, 2048 * 1792)
    vW1, vW2, vCn, vCv = 1, 2, 9, 4
    vR = [3, 12, 13, 14]
    a(f"v_add_u32 v{vW1}, {PH1}, v{vPQ}")
    a(f"v_add_u32 v{vW2}, {PH2}, v{vPQ}")
    a(f"v_mov_b32 v{vCn}, {CNT_L}")
    for (reg, xr, base) in ((vR[0], 1, PH1), (vR[1], 3, PH1 + 4096), (vR[2], 2, PH2)):
        a(f"s_xor_b32 s11, s{S_W4}, {xr}")
        a(f"s_mul_i32 s11, s11, {Q}")
        a(f"s_add_u32 s11, s11, {base}")
        a(f"v_add_u32 v{reg}, s11, v{vP}")
    a(f"v_add_u32 v{vR[3]}, {GA}, v{vPQ}")
    ts.x(2, 11)
    ts.x(7, 11)
    AR = list(range(16, 64, 4))
    NA = len(AR)
    PO = [4, 5, 6, 7, 12, 13, 0, 1, 2, 3, 8, 9, 10, 11]
    def aload(n):
        lr, p = n // 14, PO[n % 14]
        if p % 4 == 0: a(f"s_add_u32 s58, s{56+lr}, s{52 + p//4}")
        d = AR[n % NA]
        vm.issue(('a', n), f"buffer_load_dwordx4 v[{d}:{d+3}], v{vP}, s[{SRD_WS}:{SRD_WS+3}], s58 offen offset:{(p%4)*1024}{AP}")
    def cnt_wait(name, off):
        a("s_mov_b32 s73, 0")
        a.label(name)
        a("s_waitcnt lgkmcnt(0)")
        a(f"v_readfirstlane_b32 s11, v{vCv}")
        a("s_cmp_ge_u32 s11, 4")
        a(f"s_cbranch_scc1 {name}ok")
        a("s_add_u32 s73, s73, 1")
        a(f"s_cmp_ge_u32 s73, {SPIN_MAX}")
        a(f"s_cbranch_scc1 {name}ok")
        a("s_sleep 1")
        a(f"ds_read_b32 v{vCv}, v{vCn} offset:{off}")
        a(f"s_branch {name}")
        a.label(name + "ok")
        a("s_nop 7")
    assert cfg.clate == 2 and cdone == {1, 3}
    if cfg.gate == 0: poll("L_ps", 128)
    if cfg.gate < 2:
        a(f"ds_read_b32 v{vCv}, v{vCn} offset:4")
        cnt_wait("L_l_c0", 4)
    if cfg.sprio: a(f"s_setprio {cfg.sprio}")
    if cfg.pt == 1:
        a("s_mov_b64 exec, 1")
        vm.issue('pt', f"buffer_load_dword v15, v{vO}, s[60:63], 0 offen")
        a("s_mov_b64 exec, -1")
    cc = c_ops(0) + c_ops(2)
    for o in cc[:cfg.c0n]: o()
    if cfg.gate != 0: poll("L_ps", 128)
    ts(9)
    ts.x(7, 1)
    for n in range(6): aload(n)
    for o in cc[cfg.c0n:8]: o()
    for n in range(6, 10): aload(n)
    for o in cc[max(8, cfg.c0n):]: o()
    for n in range(10, NA): aload(n)
    a("s_setprio 0")
    ts.x(7, 2)
    for n in range(28):
        lr, p = n // 14, PO[n % 14]
        vm.wait(('a', n))
        assert ('c', min(p // 4, 3)) not in vm.q
        if n in (0, 7, 14, 21): ts.x(7, 3 + n // 7)
        d = AR[n % NA]
        for lc in (1, 0):
            acc = SACC + 32 * lr + 16 * lc
            c = "0" if (n % 14 == 0 and not (lr == 1 and lc == 0)) else f"v[{acc}:{acc+15}]"
            f = cfrag(p, lc)
            a(f"v_mfma_f32_32x32x16_bf16 v[{acc}:{acc+15}], v[{d}:{d+3}], v[{f}:{f+3}], {c}")
        if n + NA < 28: aload(n + NA)
        if cfg.gate == 2 and n == 14: a(f"ds_read_b32 v{vCv}, v{vCn} offset:4")
        if cfg.gate == 2 and n == 15: cnt_wait("L_l_c0", 4)
        if 16 <= n < 24:
            k = n - 16
            a(f"ds_write_b128 v{vW1}, v[{SACC+4*k}:{SACC+4*k+3}] offset:{1024*k}")
    ts(10)
    ts.x(7, 7)
    ts.x(7, 8)
    for k in range(4):
        a(f"ds_write_b128 v{vW2}, v[{SACC+48+4*k}:{SACC+48+4*k+3}] offset:{1024*k}")
    a("s_waitcnt lgkmcnt(0)")
    ts.x(7, 9)
    a("s_barrier")
    ts(11)
    ts.x(7, 10)
    RX = CF
    for k in range(4):
        for w in range(4):
            a(f"ds_read_b128 v[{RX+16*w+4*k}:{RX+16*w+4*k+3}], v{vR[w]} offset:{1024*k}")
    for k in range(4):
        a(f"s_waitcnt lgkmcnt({12 - 4*k})")
        for r in range(4 * k, 4 * k + 4):
            a(f"v_add_f32 v{TT+r}, v{TT+r}, v{RX+r}")
            a(f"v_add_f32 v{RX+16+r}, v{RX+16+r}, v{RX+32+r}")
        for r in range(4 * k, 4 * k + 4):
            a(f"v_add_f32 v{TT+r}, v{TT+r}, v{RX+16+r}")
        for r in range(4 * k, 4 * k + 4):
            a(f"v_fma_f32 v{XV+r}, v{TT+r}, v{RX+48+r}, v{XV+r}")
            if r % 2 == 0: a(f"s_mov_b32 s11, {r*1792}")
            a(f"buffer_store_dword v{XV+r}, v{vO}, s[60:63], s11 offen offset:{(r%2)*1792}{OP}")
    if cfg.ts:
        a("s_waitcnt vmcnt(0)")
        ts(12)
    if cfg.padto:
        a.label("L_pad")
        a("s_memrealtime s[98:99]")
        a("s_waitcnt lgkmcnt(0)")
        a("s_sub_u32 s98, s98, s100")
        a(f"s_cmp_lt_u32 s98, {cfg.padto}")
        a("s_cbranch_scc1 L_pad")
    ts.dump(16, 17, 1)
    a("s_endpgm")

def gen_consumer(a, cfg, ts):
    if cfg.al >= 2: a.raw(".p2align 12")
    a.label("L_consumer")
    SP = ["", " sc1"][cfg.spol]
    AP = ['', ' sc1', ' sc1 nt', ' sc0 sc1', ' sc0', ' nt'][cfg.apol]
    vm = VM(a)
    XA = [1, 2, 3, 4]; BA = [5, 6, 7, 8]; WA = [9, 10]
    vL16, vStF, vCL, vF, vFl, vSo, vCn, vRd, vWB, vPQ, vOne, MM = 11, 12, 13, 14, 15, 16, 17, 18, 19, 20, 21, 22
    FS = [40, 68]
    ACC = 96
    def G(ft, q): return ACC + 16 * (2 * ft + q)
    def U(ft, q): return ACC + 64 + 16 * (2 * ft + q)
    def S(q): return ACC + 128 + 16 * q
    vI, vH, t0, t1, t2 = 24, 25, 26, 27, 28
    a(f"v_and_b32 v{vI}, 31, v0")
    a(f"v_lshrrev_b32 v{vH}, 5, v0")
    a(f"v_bfe_u32 v{t0}, v0, 1, 3")
    a(f"v_xor_b32 v{t0}, v{t0}, v{vH}")
    a(f"v_lshlrev_b32 v{t0}, 4, v{t0}")
    a(f"v_lshl_add_u32 v{t0}, v{vI}, 7, v{t0}")
    a(f"s_lshl_b32 s11, s{S_W4}, 13")
    for ks in range(4):
        a(f"v_xor_b32 v{t1}, {32*ks}, v{t0}")
        a(f"v_add_u32 v{XA[ks]}, s11, v{t1}")
        a(f"v_add_u32 v{BA[ks]}, {OFF_BB}, v{t1}")
    a(f"v_bfe_u32 v{t0}, v0, 2, 2")
    a(f"v_lshlrev_b32 v{t1}, 7, v{t0}")
    a(f"v_lshrrev_b32 v{t0}, 1, v{t0}")
    a(f"v_lshl_add_u32 v{t1}, v{t0}, 6, v{t1}")
    a(f"v_bfe_u32 v{t0}, v0, 4, 1")
    a(f"v_lshl_add_u32 v{t1}, v{t0}, 5, v{t1}")
    a(f"v_and_b32 v{t2}, 3, v0")
    a(f"v_lshl_add_u32 v{t1}, v{t2}, 3, v{t1}")
    a(f"v_lshl_add_u32 v{WA[0]}, v{vH}, 10, v{t1}")
    a(f"v_add_u32 v{WA[0]}, {OFF_WG}, v{WA[0]}")
    a(f"v_xor_b32 v{WA[1]}, 64, v{WA[0]}")
    a(f"s_mul_i32 s62, s{S_W4}, {Q}")
    a(f"s_lshr_b32 s59, s{S_W4}, 1")
    a(f"s_and_b32 s63, s{S_W4}, 1")
    a("s_lshl_b32 s11, s59, 6")
    a(f"v_lshl_add_u32 v{vWB}, v{vH}, 9, v{t1}")
    a(f"v_xor_b32 v{vWB}, s11, v{vWB}")
    a(f"v_add_u32 v{vWB}, s62, v{vWB}")
    a("s_waitcnt lgkmcnt(0)")
    a(f"s_lshl_b32 s11, s{S_NS}, 5")
    a(f"s_load_dwordx8 s[32:39], s[{P_LRE}:{P_LRE+1}], s11")
    a(f"s_load_dwordx8 s[64:71], s[{P_LDT}:{P_LDT+1}], s11")
    a(f"s_load_dwordx8 s[24:31], s[{P_LIM}:{P_LIM+1}], s11")
    for k in range(4 if cfg.zpeel else 160): a(f"v_mov_b32 v{ACC+k}, 0")
    a(f"v_mov_b32 v{vCn}, {CNT_L}")
    a(f"ds_write_b128 v{vCn}, v[{ACC}:{ACC+3}]")
    a(f"ds_write_b128 v{vCn}, v[{ACC}:{ACC+3}] offset:16")
    a(f"v_bfe_u32 v{t0}, v0, 2, 1")
    a(f"v_lshl_add_u32 v{t0}, v{t0}, 4, v{t2}")
    a(f"v_bfe_u32 v{t1}, v0, 3, 2")
    a(f"v_lshl_add_u32 v{t0}, v{t1}, 2, v{t0}")
    a(f"s_lshl_b32 s11, s{S_W4}, 9")
    a(f"s_add_u32 s11, s11, {STATS_L}")
    a(f"v_lshl_add_u32 v{vStF}, v{t0}, 3, s11")
    a(f"v_lshlrev_b32 v{vL16}, 4, v0")
    a(f"v_add_u32 v{vPQ}, s62, v{vL16}")
    a(f"v_lshlrev_b32 v{vCL}, 4, v{vH}")
    a(f"v_add_u32 v{vCL}, {C_L}, v{vCL}")
    a(f"v_mov_b32 v{vOne}, 1")
    a(f"s_lshl_b32 s11, s{S_W4}, 2")
    a(f"s_add_u32 s11, s11, {CNT_L + 16}")
    a(f"v_mov_b32 v{vRd}, s11")
    a("s_lshl_b32 s11, s63, 8")
    a(f"s_add_u32 s11, s11, {ST2_L}")
    a(f"v_lshl_add_u32 v{vSo}, v{vH}, 7, s11")
    a(f"s_lshl_b32 s13, s{S_MT}, 2")
    a(f"s_add_u32 s13, s13, s{S_W4}")
    a(f"s_mul_i32 s56, s13, {2*RT_BYTES}")
    a(f"s_cmp_ge_u32 s{S_NS}, 14")
    a(f"s_cselect_b32 s11, {HALF_BYTES - 56*1024}, 0")
    a(f"s_lshl_b32 s12, s{S_NS}, 12")
    a("s_add_u32 s11, s11, s12")
    a("s_add_u32 s56, s56, s11")
    a(f"s_add_u32 s57, s56, {RT_BYTES}")
    a("s_lshl_b32 s11, s13, 10")
    flag_index(a, 12, 14, 7)
    a("s_add_u32 s11, s11, s12")
    a(f"s_add_u32 s11, s11, {WS_FLAG:#x}")
    a(f"v_mov_b32 v{vF}, s11")
    a(f"s_lshl_b32 s55, s{S_M64}, 10")
    a(f"s_add_u32 s55, s55, {WS_FLAG:#x}")
    a(f"s_lshl_b32 s11, s{S_W4}, 7")
    a("s_add_u32 s55, s55, s11")
    a(f"s_mul_i32 s12, s59, {HALF_BYTES}")
    a(f"s_mul_i32 s13, s63, {28*1024}")
    a("s_add_u32 s12, s12, s13")
    a(f"s_lshl_b32 s11, s{S_M64}, 1")
    a("s_add_u32 s11, s11, s63")
    a(f"s_mul_i32 s52, s11, {RT_BYTES}")
    a("s_add_u32 s52, s52, s12")
    a("s_xor_b32 s11, s11, 1")
    a(f"s_mul_i32 s51, s11, {RT_BYTES}")
    a("s_add_u32 s51, s51, s12")
    p2_rot(a, cfg, 60, 61, 58)
    a("s_mov_b32 s12, 0x00030003")
    a("s_mov_b32 s13, 0x00030003")
    a("s_waitcnt lgkmcnt(0)")
    K, KP = 40, 64
    for k in range(8):
        a(f"s_lshl_b64 exec, s[12:13], {2*k}")
        for m, sb in enumerate((32, 24, 64)): a(f"v_mov_b32 v{K+m}, s{sb+k}")
    a("s_mov_b64 exec, -1")
    a(f"v_and_b32 v{K+3}, 1, v0")
    a(f"v_lshlrev_b32 v{K+3}, 4, v{K+3}")
    for m in range(3): a(f"v_lshrrev_b32 v{K+m}, v{K+3}, v{K+m}")
    srd(a, SRD_WS, P_WS, WS_SIZE)
    ssm_park(a, K, KP, 62)
    a(f"v_mov_b32 v{KP+23}, 0")
    a(f"s_lshl_b32 s11, s{S_W4}, 13")
    a(f"s_add_u32 s11, s11, {R[2]}")
    a(f"v_add_u32 v{K}, s11, v{vL16}")
    for k in range(6): a(f"ds_write_b128 v{K}, v[{KP+4*k}:{KP+4*k+3}] offset:{1024*k}")
    a("s_waitcnt lgkmcnt(0)")
    ts(1)

    def reads(fs, ks):
        f = FS[fs]
        L = []
        L.append(f"ds_read_b128 v[{f}:{f+3}], v{XA[ks]}")
        L.append(f"ds_read_b128 v[{f+24}:{f+27}], v{BA[ks]}")
        L.append(f"ds_read_b128 v[{f+4}:{f+7}], v{XA[ks]} offset:4096")
        for gu in range(2):
            for ft in range(2):
                for j in range(2):
                    d = f + 8 + 8 * gu + 4 * ft + 2 * j
                    L.append(f"ds_read_b64_tr_b16 v[{d}:{d+1}], v{WA[ft]} offset:{gu*8192 + ks*2048 + j*512}")
        return L
    def mfmas(fs):
        f = FS[fs]
        X = [f, f + 4]; Bf = f + 24
        L = []
        for q in range(2):
            L.append(f"v_mfma_f32_32x32x16_bf16 v[{S(q)}:{S(q)+15}], v[{X[q]}:{X[q]+3}], v[{Bf}:{Bf+3}], v[{S(q)}:{S(q)+15}]")
        for gu in range(2):
            for ft in range(2):
                w = f + 8 + 8 * gu + 4 * ft
                for q in range(2):
                    d = (G, U)[gu](ft, q)
                    L.append(f"v_mfma_f32_32x32x16_bf16 v[{d}:{d+15}], v[{w}:{w+3}], v[{X[q]}:{X[q]+3}], v[{d}:{d+15}]")
        return L
    a("s_setprio 2")
    a("s_mov_b32 s72, 0")
    a("s_mov_b32 s74, 0")
    a("s_barrier")
    ts(2)
    for t in reads(0, 0): a(t)
    need = {0: 9, 1: 8, 2: 6, 4: 4, 6: 2, 8: 0}
    if cfg.zpeel:
        Rd = reads(1, 1)
        issued = 0
        for i, m in enumerate(mfmas(0)):
            if i in need: a(f"s_waitcnt lgkmcnt({min(15, need[i] + issued)})")
            a(m[:m.rindex(", v[")] + ", 0")
            for _ in range(2 if i >= cfg.rdstart else 0):
                if Rd: a(Rd.pop(0)); issued += 1
        a("s_branch L_c_k1")
    a.label("L_c_loop")
    for ks in range(4):
        if ks == 1: a.label("L_c_k1")
        fs = ks & 1
        M = mfmas(fs)
        if ks < 3:
            Rd = reads(1 - fs, ks + 1)
            issued = 0
            for i, m in enumerate(M):
                if i in need: a(f"s_waitcnt lgkmcnt({min(15, need[i] + issued)})")
                a(m)
                for _ in range(2 if i >= cfg.rdstart else 0):
                    if Rd: a(Rd.pop(0)); issued += 1
        else:
            Rd = reads(1 - fs, 0)
            a("s_waitcnt lgkmcnt(9)")
            a(M[0])
            a("s_add_u32 s74, s74, 1")
            a("s_cmp_eq_u32 s74, 3")
            a("s_mov_b32 s75, 53248")
            a(f"s_cmov_b32 s75, {(-106496) & 0xffffffff:#x}")
            a("s_cselect_b32 s74, 0, s74")
            for v in XA + BA[:1]: a(f"v_add_u32 v{v}, s75, v{v}")
            a("s_waitcnt lgkmcnt(8)")
            a(M[1])
            for v in BA[1:] + WA: a(f"v_add_u32 v{v}, s75, v{v}")
            a("s_add_u32 s72, s72, 1")
            a("s_cmp_eq_u32 s72, 6")
            a("s_waitcnt lgkmcnt(0)")
            a(M[2])
            a("s_barrier")
            hist = list(a.hist)
            a("s_cbranch_scc1 L_c_last")
            for m in M[3:]:
                for _ in range(2):
                    if Rd: a(Rd.pop(0))
                a(m)
            a("s_branch L_c_loop")
            a.label("L_c_last")
            a.hist = hist
            Mtail = M[3:]
    lq = []
    def ds_issue(tag, t):
        a(t)
        if t.startswith("ds_"): lq.append(tag)
    def ds_wait(tag):
        idx = max((i for i, t in enumerate(lq) if t == tag), default=None)
        if idx is None: return None
        n = len(lq) - 1 - idx
        del lq[:idx + 1]
        return f"lgkmcnt({min(n, 15)})"
    def dwait(tag):
        w = ds_wait(tag)
        if w: a(f"s_waitcnt {w}")
    UB = [24, 40, 56]
    def ureads(u):
        b, ks = UB[u % 3], u % 4
        L = [f"ds_read_b128 v[{b}:{b+3}], v{XA[ks]}"]
        if u < 8:
            ft = u // 4
            for gu in range(2):
                for j in range(2):
                    d = b + 8 + 4 * gu + 2 * j
                    L.append(f"ds_read_b64_tr_b16 v[{d}:{d+1}], v{WA[ft]} offset:{gu*8192 + ks*2048 + j*512}")
        else:
            L.append(f"ds_read_b128 v[{b+8}:{b+11}], v{BA[ks]}")
        L.append(f"ds_read_b128 v[{b+4}:{b+7}], v{XA[ks]} offset:4096")
        return [(u, t) for t in L]
    def umfma(u):
        b = UB[u % 3]
        L = []
        for q in range(2):
            x = b + 4 * q
            if u < 8:
                for gu in range(2):
                    d = (G, U)[gu](u // 4, q); w = b + 8 + 4 * gu
                    L.append(f"v_mfma_f32_32x32x16_bf16 v[{d}:{d+15}], v[{w}:{w+3}], v[{x}:{x+3}], v[{d}:{d+15}]")
            else:
                L.append(f"v_mfma_f32_32x32x16_bf16 v[{S(q)}:{S(q)+15}], v[{x}:{x+3}], v[{b+8}:{b+11}], v[{S(q)}:{S(q)+15}]")
        return L
    Rd = ureads(0) + ureads(1)
    for m in Mtail:
        for _ in range(2):
            if Rd: ds_issue(*Rd.pop(0))
        a(m)
    CH = 72
    def chalf(p):
        for gu in range(2):
            for k in range(2):
                ds_issue(('c', p), f"ds_read_b128 v[{CH+8*gu+4*k}:{CH+8*gu+4*k+3}], v{vCL} offset:{256*gu + 32*(2*p+k)}")
    def hstore(ft, q, p):
        g = G(ft, q)
        vm.issue('h', f"buffer_store_dwordx4 v[{g+4*p}:{g+4*p+3}], v{vL16}, s[{SRD_WS}:{SRD_WS+3}], s{56+q} offen offset:{(2*ft+p)*1024}{SP}")
    ep = [lambda: dwait(('c', 0)), f"v_xor_b32 v{MM}, 0x80000000, v{MM}", f"v_xor_b32 v{MM+1}, 0x80000000, v{MM+1}"]
    for p in range(2):
        if p: ep.append(lambda: dwait(('c', 1)))
        for q in range(2):
            g, u = G(0, q) + 8 * p, U(0, q) + 8 * p
            for k in range(8): ep.append(f"v_fmac_f32 v{g+k}, v{MM+q}, v{CH+k}")
            for k in range(8): ep.append(f"v_fmac_f32 v{u+k}, v{MM+q}, v{CH+8+k}")
            if q == 1 and p == 0: ep.append(lambda: chalf(1))
            for k in range(8): ep.append(f"v_max_f32 v{g+k}, 0, v{g+k}")
            for k in range(8): ep.append(f"v_mul_f32 v{u+k}, v{u+k}, v{g+k}")
            for k in range(4): ep.append(f"v_cvt_pk_bf16_f32 v{G(0,q)+4*p+k}, v{u+2*k}, v{u+2*k+1}")
            ep.append(lambda q=q, p=p: hstore(0, q, p))
    def fill(n):
        while n > 0 and ep:
            t = ep.pop(0)
            if callable(t): t()
            else: a(t)
            n -= 1
    def cread(tag, dst, off):
        for k in range(4): ds_issue(tag, f"ds_read_b128 v[{dst+4*k}:{dst+4*k+3}], v{vCL} offset:{off + 32*k}")
    for u in range(12):
        dwait(u)
        if u == 11:
            a("s_barrier")
        Rd = ureads(u + 2) if u + 2 < 12 else []
        for i, m in enumerate(umfma(u)):
            a(m)
            for _ in range(2):
                if Rd: ds_issue(*Rd.pop(0))
            if u > 4 or (u == 4 and i >= 1): fill(cfg.fper - 1 if u < 10 else cfg.fper)
        if u == cfg.c2u:
            a("s_barrier")
            ds_issue(('c', 0), f"ds_read_b32 v{MM}, v{vStF}")
            ds_issue(('c', 0), f"ds_read_b32 v{MM+1}, v{vStF} offset:256")
            chalf(0)
        if u == 9: cread('cg', UB[0], 128)
        if u == 10: cread('cu', UB[1], 384)
    ts(3)
    fill(1000)
    dump = [f"ds_write_b128 v{vPQ}, v[{S(0)+4*k}:{S(0)+4*k+3}] offset:{SD + 1024*k}" for k in range(8)]
    WB = {0: [1, 2], 1: [3, 4], 2: [5, 6]}
    for rg in range(3):
        a(f"v_add_u32 v{WB[rg][0]}, {R[rg]}, v{vWB}")
        a(f"v_xor_b32 v{WB[rg][1]}, 64, v{WB[rg][0]}")
    dwait('cu')
    cg, cu = UB[0], UB[1]
    for q in range(2):
        g, u = G(1, q), U(1, q)
        sel = f"op_sel:[{q},0,0] op_sel_hi:[{q},1,1]"
        for p in range(2):
            kr = range(4 * p, 4 * p + 4)
            for k in kr:
                a(f"v_pk_fma_f32 v[{g+2*k}:{g+2*k+1}], v[{MM}:{MM+1}], v[{cg+2*k}:{cg+2*k+1}], v[{g+2*k}:{g+2*k+1}] {sel}")
                if dump: a(dump.pop(0))
            for k in kr:
                a(f"v_pk_fma_f32 v[{u+2*k}:{u+2*k+1}], v[{MM}:{MM+1}], v[{cu+2*k}:{cu+2*k+1}], v[{u+2*k}:{u+2*k+1}] {sel}")
                a(f"v_max_f32 v{g+2*k}, 0, v{g+2*k}")
                a(f"v_max_f32 v{g+2*k+1}, 0, v{g+2*k+1}")
            for k in kr:
                a(f"v_pk_mul_f32 v[{u+2*k}:{u+2*k+1}], v[{u+2*k}:{u+2*k+1}], v[{g+2*k}:{g+2*k+1}]")
            for k in kr:
                a(f"v_cvt_pk_bf16_f32 v{g+k}, v{u+2*k}, v{u+2*k+1}")
            if q == 0 and p == 1:
                a("s_waitcnt lgkmcnt(0)")
                a("s_barrier")
            hstore(1, q, p)
    del lq[:]
    ts(4)
    BR, NB = 160, 12
    def breads(p):
        sl = WSLOT[p]
        rg = max(k for k in range(3) if R[k] <= sl)
        L = []
        for lc in range(2):
            for jj in range(2):
                d = BR + 8 * (p % NB) + 4 * lc + 2 * jj
                L.append(f"ds_read_b64_tr_b16 v[{d}:{d+1}], v{WB[rg][lc]} offset:{sl - R[rg] + jj*1024}")
        return L
    for p in range(NB):
        for t in breads(p): a(t)
    def flag1():
        vm.wait('h')
        a("s_setprio 3")
        a("s_mov_b64 exec, 1")
        vm.issue('f', f"buffer_store_dword v{vOne}, v{vF}, s[{SRD_WS}:{SRD_WS+3}], 0 offen sc1")
        a("s_mov_b64 exec, -1")
        ts(6)
    if cfg.fpre: flag1()
    a("s_waitcnt lgkmcnt(0)")
    a("s_barrier")
    ts(5)
    if not cfg.fpre: flag1()
    AF = 96
    AR = list(range(24, 96, 4))
    NA = len(AR)
    def aload(n):
        p, lr = n // 2, n % 2
        if n % 8 == 0:
            a(f"s_lshl_b32 s11, s60, 12")
            a(f"s_add_u32 s54, s11, s52")
            a(f"s_add_u32 s53, s11, s51")
            a(f"s_add_u32 s60, s60, 1")
            a(f"s_cmp_eq_u32 s60, 7")
            a(f"s_cselect_b32 s60, 0, s60")
        d = AR[n % NA]
        vm.issue(('a', n), f"buffer_load_dwordx4 v[{d}:{d+3}], v{vL16}, s[{SRD_WS}:{SRD_WS+3}], s{54 - lr} offen offset:{(p%4)*1024}{AP}")
    def cond():
        a("s_and_b64 s[16:17], s[16:17], s[18:19]")
        a("s_and_b64 s[16:17], s[16:17], s[20:21]")
        a("s_and_b32 s16, s16, s17")
        a("s_and_b32 s16, s16, s22")
        a("s_cmp_eq_u32 s16, 1")
    sspin(a, "L_pf", [f"s_load_dwordx8 s[16:23], s[{P_WS}:{P_WS+1}], s55 glc"], cond, cfg.fsleep)
    a("s_setprio 2")
    ts(7)
    for n in range(cfg.a0): aload(n)
    nxt = [cfg.a0]
    ts(8)
    def lds_spin(name, vaddr, off, val):
        a("s_mov_b32 s73, 0")
        a.label(name)
        a("s_waitcnt lgkmcnt(0)")
        a("v_readfirstlane_b32 s11, v8")
        a(f"s_cmp_ge_u32 s11, {val}")
        a(f"s_cbranch_scc1 {name}ok")
        a("s_add_u32 s73, s73, 1")
        a(f"s_cmp_ge_u32 s73, {SPIN_MAX}")
        a(f"s_cbranch_scc1 {name}ok")
        a("s_sleep 1")
        a(f"ds_read_b32 v8, v{vaddr} offset:{off}")
        a(f"s_branch {name}")
        a.label(name + "ok")
        del lq[:]
    for p in range(28):
        f = BR + 8 * (p % NB)
        pn = p + cfg.bd
        for lr in range(2):
            n = 2 * p + lr
            w = ds_wait(p) if lr == 0 else None
            vm.wait(('a', n), w or "")
            if n == 0: ts(9)
            if n in (0, 7, 17, 25, 35): ts.x(6, {0: 7, 7: 8, 17: 9, 25: 10, 35: 11}[n])
            if lr == 0 and pn in (12, 16, 22): ds_issue('r', f"ds_read_b32 v8, v{vRd}")
            d = AR[n % NA]
            for lc in range(2):
                acc = AF + 32 * lr + 16 * lc
                c = "0" if p == 0 else f"v[{acc}:{acc+15}]"
                a(f"v_mfma_f32_32x32x16_bf16 v[{acc}:{acc+15}], v[{d}:{d+3}], v[{f+4*lc}:{f+4*lc+3}], {c}")
            for _ in range(2):
                if nxt[0] < 56 and nxt[0] <= n + NA:
                    aload(nxt[0]); nxt[0] += 1
        if pn in (12, 16, 22): lds_spin(f"L_c_r{pn}", vRd, 0, {12: 1, 16: 2, 22: 3}[pn])
        if p == cfg.ksig:
            assert pn > 15
            w = ds_wait(15)
            if w: a(f"s_waitcnt {w}")
            a("s_mov_b64 exec, 1")
            ds_issue('c', f"ds_add_u32 v{vCn}, v{vOne} offset:4")
            a("s_mov_b64 exec, -1")
        if NB <= pn < 28:
            for t in breads(pn): ds_issue(pn, t)
        if p == 24:
            STT = BR + 32
            for k in range(8): ds_issue('st', f"ds_read_b128 v[{STT+4*k}:{STT+4*k+3}], v{vSo} offset:{16*k}")
        if p == 26:
            for x in range(1, 4):
                a(f"s_xor_b32 s11, s{S_W4}, {x}")
                a(f"s_mul_i32 s11, s11, {Q}")
                a(f"s_add_u32 s11, s11, {FXA + (x-1)*4096}")
                a(f"v_add_u32 v{x}, s11, v{vL16}")
            a(f"v_add_u32 v4, {GA}, v{vPQ}")
            a(f"v_add_u32 v5, {FXA}, v{vPQ}")
        if p % 4 == 3: ts.x(4, 1 + p // 4)
    ts(11)
    ts.x(7, 1)
    for x in (2, 1, 3):
        src = AF + 32 * (x & 1) + 16 * (x >> 1)
        for k in range(4):
            a(f"ds_write_b128 v5, v[{src+4*k}:{src+4*k+3}] offset:{(x-1)*4096 + 1024*k}")
    a("s_waitcnt lgkmcnt(12)")
    for r in range(16): a(f"v_mul_f32 v{STT+2*r}, v{STT+2*r+1}, v{STT+2*r+1}")
    a(f"s_mov_b32 s13, {LOG2E ^ 0x80000000:#x}")
    ts.x(7, 2)
    a("s_waitcnt lgkmcnt(0)")
    ts.x(7, 3)
    a("s_mov_b64 exec, 1")
    a(f"ds_add_u32 v{vCn}, v{vOne}")
    a("s_mov_b64 exec, -1")
    a(f"ds_read_b32 v8, v{vCn}")
    lds_spin("L_c_cnt", vCn, 0, 4)
    ts.x(7, 4)
    O, RX, EX = AF, 24, 72
    for k in range(4):
        for x in range(1, 4):
            a(f"ds_read_b128 v[{RX+16*(x-1)+4*k}:{RX+16*(x-1)+4*k+3}], v{x} offset:{1024*k}")
    for k in range(4):
        rr = range(4 * k, 4 * k + 4)
        a(f"s_waitcnt lgkmcnt({9 - 3*k})")
        for r in rr: a(f"v_add_f32 v{O+r}, v{O+r}, v{RX+r}")
        for r in rr: a(f"v_add_f32 v{RX+16+r}, v{RX+16+r}, v{RX+32+r}")
        for r in rr: a(f"v_add_f32 v{O+r}, v{O+r}, v{RX+16+r}")
        for r in rr: a(f"v_mul_f32 v{O+r}, v{O+r}, v{STT+2*r}")
        for r in rr: a(f"v_mul_f32 v{EX+r}, s13, v{O+r}")
        for r in rr: a(f"v_exp_f32 v{EX+r}, v{EX+r}")
    ts.x(7, 5)
    for k in range(4):
        rr = range(4 * k, 4 * k + 4)
        for r in rr: a(f"v_add_f32 v{EX+r}, 1.0, v{EX+r}")
        for r in rr: a(f"v_rcp_f32 v{EX+r}, v{EX+r}")
        for r in rr: a(f"v_mul_f32 v{O+r}, v{O+r}, v{EX+r}")
        a(f"ds_write_b128 v4, v[{O+4*k}:{O+4*k+3}] offset:{1024*k}")
    a("s_waitcnt lgkmcnt(0)")
    ts(12)
    a("s_barrier")
    ts.dump(24, 25, 0)
    a("s_endpgm")

HEADER = """; Fused LayerNorm + S5-SSM scan + ReGLU gate, one launch.
;   224 main workgroups (4 MFMA waves + 4 loader/scan waves) + 32 helper workgroups (row statistics, hand-off reset, C repack).
;   Kernarg: 13 inputs, d_out (+104), d_debug (+112), d_ws (+120).  Produced by a hand-written generator script.
; @launch grid=(256,1,1) block=(512,1,1) lds=163840
.amdgcn_target "amdgcn-amd-amdhsa--gfx950"
.text
.globl {k}
.p2align {al}
.p2align 8
.type {k},@function
{k}:
"""
FOOTER = """.section .rodata,"a"
.p2align 6
.amdhsa_kernel {k}
  .amdhsa_next_free_vgpr 256
  .amdhsa_next_free_sgpr 102
  .amdhsa_accum_offset 256
  .amdhsa_group_segment_fixed_size 0
  .amdhsa_kernarg_size 128
  .amdhsa_user_sgpr_count 2
  .amdhsa_user_sgpr_kernarg_segment_ptr 1
  .amdhsa_system_sgpr_workgroup_id_x 1
  .amdhsa_float_denorm_mode_32 3
.end_amdhsa_kernel
"""

def generate(cfg):
    WSOFF[0] = cfg.wsoff << 20
    a = Asm()
    ts = TS(a, cfg)
    gen_entry(a, cfg, ts)
    gen_loader(a, cfg, ts)
    gen_consumer(a, cfg, ts)
    gen_helper(a, cfg, ts)
    a.label("L_exit")
    a("s_endpgm")
    return HEADER.format(k=KNAME, al=12 if cfg.al else 8) + (f"; wsoff={cfg.wsoff}\n" if cfg.wsoff else "") + a.text() + FOOTER.format(k=KNAME)

if __name__ == "__main__":
    cfg = Cfg()
    out = sys.argv[1]
    for kv in sys.argv[2:]:
        k, v = kv.split("=")
        setattr(cfg, k, int(v))
    open(out, "w").write(generate(cfg))
```

```python
import sys, os
sys.path.insert(0, os.path.dirname(os.path.abspath(__file__)))
from asmlib import Asm, VM

KNAME = "recurrent_scan__ssm_conv_s5__glu_gated_reglu__prompt_kernel"

R = [0, 53248, 106496]
MISC = 159744
OFF_WG, OFF_WU, OFF_BB = 32768, 40960, 49152
CP_L = R[1] + 49152
STATS_L = MISC
C_L = MISC + 2048
CNT_L = MISC + 2688
ST2_L = MISC + 2720
AGG_L = MISC + 3232
Q = 12288

RT_BYTES = 172032
HALF_BYTES = 86016
WS_STATS = 0xB00000
WS_AGG = WS_STATS + 0x4000
WS_FLAG = WS_AGG + 0x8000
INIT_N = 32
WS_CP = 0xB20000
WS_TS = 0xC00000
WS_SIZE = 0x1000000
SPIN_MAX = 1 << 20

S_WAVE, S_XCD, S_SLOT, S_MT, S_NS, S_M64, S_NT, S_W4 = 3, 4, 5, 6, 7, 8, 9, 10
P_X, P_LRE, P_LIM, P_BRE, P_BIM, P_CRE, P_CIM, P_LDT, P_DSK, P_BX, P_WG, P_WU, P_WD, P_OUT, P_DBG, P_WS = [16 + 2 * i for i in range(16)]
SRD_X, SRD_A, SRD_B, SRD_C, SRD_WS, SRD_E = 48, 52, 56, 60, 64, 68
TS0 = 76

LOG2E = 0x3fb8aa3b
LOG2E_LO = 0x32a57060
LN2 = 0x3f317218
INV2PI = 0x3e22f983

class Cfg:
    ts = 0
    tsset = 0
    pd = 16
    perm = 1
    rot = 2
    ssm_early = 0
    schedn = 0
    polx = 0
    apol = 1
    noa = 0
    nob = 0
    rdstart = 1
    polw = 0
    winn = 3
    loc = 1
    nbar = 3
    nfill = 2
    fper16 = 2
    cprio = 2
    n6 = -1
    ramp = 6
    dfr = 12
    dfc = 8
    dfb = 7
    al = 1
    cpw = 1
    s0a = 8
    zpeel = 1
    ws = 0
    crot = 0
    ipos = 0
    gate = 2
    c0n = 16
    agpos = 0
    c0early = 0
    hord = 1
    clate = 2
    wl = 1
    fper = 6
    c2u = 4
    probe = 0
    pwho = 0
    ponly = -1
    pmask = 0xffff
    wsoff = 0
    kwin = 2
    wprio = 0
    hdelay = 0
    eprio = 0
    c2late = 0
    cpf = 2
    padto = 0
    nocs = 0
    r2pre = 1
    tlb = 0
    bd = 4
    pollw = 24
    c1 = 12
    c2 = 16
    f2b = 1
    wfirst = 1
    @property
    def win(self):
        W = lambda a, b: [f"w{p}" for p in range(a, b)]
        if self.ws:
            m, n1, n2, n3, n4, n5, n6, cp, cs, ep = [int(c) for c in str(self.ws)[1:]]
            assert n1 + n2 + n3 + n4 + n5 + n6 == 10
            pos = [12]
            def take(n):
                r = W(pos[0], pos[0] + n); pos[0] += n; return r
            w = {}
            if m == 2: w[-1] = ["m", "s1:0-3"]; w[0] = ["cs0", "s1:3-13", "k", "s2:0-10"]; w[1] = ["cs1", "s2:10-13", "s3"]
            else: w[-1] = ["s1:0-6"]; w[0] = ["cs0", "s1:6-13", "k", "s2"] + (["m"] if m == 1 else []); w[1] = ["cs1"] + (["m"] if m == 3 else []) + ["s3"]
            w[1] += take(n1)
            w[2] = ["cs2", "s4"] + take(n2)
            w[3] = (["cs3", "s5:0-7", "cs4", "s5:7-13"] if cs == 1 else ["cs3", "s5"]) + take(n3)
            w[4] = {0: ["cs4", "init", "s6:0-7", "cs5", "s6:7-13"], 1: ["init", "s6:0-4", "cs5", "s6:4-13"], 2: ["cs4", "init", "s6"]}[cs] + take(n4)
            w[5] = (["cs5"] if cs == 2 else []) + ["fetch"] + W(0, 4) + ["cs6"] + W(4, 6) + take(n5) + {0: ["c3"], 1: [], 2: ["c3", "c1"], 3: ["c1"]}[cp] + ["put"]
            w[6] = W(6, 12) + take(n6) + {0: ["c1"], 1: ["c3", "c1"], 2: [], 3: ["c3"]}[cp]
            w[ep].append("e")
            if self.ipos:
                w[4].remove("init"); w[4].append("init")
                w[5].remove("fetch"); w[5].remove("put")
                w[5].insert(w[5].index("cs6") + 1, "fetch")
                w[6].insert(2, "put")
            return w
        return [
            {-1: ["s1:0-6"], 0: ["cs0", "s1:6-13", "k", "s2:0-9"], 1: ["cs1", "s2:9-13", "s3", "e"], 2: ["cs2", "s4"] + W(12, 14), 3: ["cs3", "s5"] + W(14, 17),
             4: ["cs4", "init", "s6:0-7", "cs5", "s6:7-13", "w17"], 5: ["fetch"] + W(0, 4) + ["cs6"] + W(4, 6) + W(18, 20) + ["put"], 6: W(6, 12) + W(20, 22)},
            {-1: ["s1:0-6"], 0: ["cs0", "s1:6-13", "k", "s2:0-9"], 1: ["cs1", "s2:9-13", "s3", "e"], 2: ["cs2", "s4"] + W(12, 15), 3: ["cs3", "s5"] + W(15, 18),
             4: ["cs4", "init", "s6"] + W(18, 20), 5: ["cs5", "fetch"] + W(0, 3) + ["cs6"] + W(3, 6) + ["put"], 6: W(6, 12) + W(20, 22)},
            {-1: ["s1:0-6"], 0: ["cs0", "s1:6-13", "k", "s2:0-9"], 1: ["cs1", "s2:9-13", "s3", "e"], 2: ["cs2", "s4"] + W(12, 15), 3: ["cs3", "s5:0-7", "cs4", "s5:7-13", "w15"],
             4: ["init", "s6:0-4", "cs5", "s6:4-13"] + W(16, 19), 5: ["fetch"] + W(0, 4) + ["cs6"] + W(4, 6) + W(19, 22) + ["put"], 6: W(6, 12)},
            {-1: ["s1:0-6"], 0: ["cs0", "s1:6-13", "k", "s2:0-9"], 1: ["cs1", "s2:9-13", "s3", "e"], 2: ["cs2", "s4"] + W(12, 15), 3: ["cs3", "s5"] + W(15, 18),
             4: ["cs4", "init", "s6:0-7", "cs5", "s6:7-13", "w18", "w19"], 5: ["fetch"] + W(0, 4) + ["cs6"] + W(4, 6) + W(20, 22) + ["c3", "put"], 6: W(6, 12) + ["c1"]},
            {-1: ["s1:0-6"], 0: ["cs0", "s1:6-13", "k", "s2:0-9"], 1: ["cs1", "s2:9-13", "s3", "e"], 2: ["cs2", "s4"] + W(12, 14), 3: ["cs3", "s5"] + W(14, 17),
             4: ["cs4", "init", "s6:0-7", "cs5", "s6:7-13", "w17"], 5: ["fetch"] + W(0, 4) + ["cs6"] + W(4, 6) + W(18, 20) + ["put"], 6: W(6, 12) + W(20, 22) + ["c3"]},
            {-1: ["s1:0-6"], 0: ["cs0", "s1:6-13", "k", "s2:0-9"], 1: ["cs1", "s2:9-13", "s3", "e"], 2: ["cs2", "s4"] + W(12, 15), 3: ["cs3", "s5"] + W(15, 19),
             4: ["cs4", "init", "s6:0-7", "cs5", "s6:7-13"] + W(19, 22), 5: ["fetch"] + W(0, 4) + ["cs6"] + W(4, 6) + ["c1", "put"], 6: W(6, 12) + ["c3"]},
            {-1: ["s1:0-6"], 0: ["cs0", "s1:6-13", "k", "s2"], 1: ["cs1", "s3", "e"] + W(12, 14), 2: ["cs2", "s4"] + W(14, 17), 3: ["cs3", "s5"] + W(17, 20),
             4: ["cs4", "init", "s6:0-7", "cs5", "s6:7-13"] + W(20, 22), 5: ["fetch"] + W(0, 4) + ["cs6"] + W(4, 6) + ["c1", "put"], 6: W(6, 12) + ["c3"]},
            {-1: ["s1:0-6"], 0: ["cs0", "s1:6-13", "k", "s2:0-9"], 1: ["cs1", "s2:9-13", "s3", "e"], 2: ["cs2", "s4"] + W(12, 15), 3: ["cs3", "s5:0-7", "cs4", "s5:7-13"] + W(15, 18),
             4: ["init", "s6:0-4", "cs5", "s6:4-13"] + W(18, 22), 5: ["fetch"] + W(0, 4) + ["cs6"] + W(4, 6) + ["c1", "put"], 6: W(6, 12) + ["c3"]},
            {-1: ["s1:0-6"], 0: ["cs0", "s1:6-13", "k", "s2:0-9"], 1: ["cs1", "s2:9-13", "s3", "e"], 2: ["cs2", "s4"], 3: ["cs3", "s5"] + W(12, 16),
             4: ["cs4", "init", "s6:0-7", "cs5", "s6:7-13"] + W(16, 19), 5: ["fetch"] + W(0, 4) + ["cs6"] + W(4, 6) + W(19, 22) + ["c3", "put"], 6: W(6, 12) + ["c1"]},
            {-1: ["s1:0-6"], 0: ["cs0", "s1:6-13", "k", "s2"], 1: ["cs1", "s3", "e"], 2: ["cs2", "s4"] + W(12, 14), 3: ["cs3", "s5"] + W(14, 18),
             4: ["cs4", "init", "s6:0-7", "cs5", "s6:7-13", "w18", "w19"], 5: ["fetch"] + W(0, 4) + ["cs6"] + W(4, 6) + W(20, 22) + ["c3", "put"], 6: W(6, 12) + ["c1"]},
            {-1: ["s1:0-3"], 0: ["cs0", "s1:3-13", "k", "s2:0-8"], 1: ["cs1", "s2:8-13", "s3"], 2: ["cs2", "s4", "e"] + W(12, 14), 3: ["cs3", "s5"] + W(14, 18),
             4: ["cs4", "init", "s6:0-7", "cs5", "s6:7-13", "w18", "w19"], 5: ["fetch"] + W(0, 4) + ["cs6"] + W(4, 6) + W(20, 22) + ["c3", "put"], 6: W(6, 12) + ["c1"]},
            {-1: ["s1:0-6"], 0: ["cs0", "s1:6-13", "k", "s2:0-9"], 1: ["cs1", "s2:9-13", "s3", "e"], 2: ["cs2", "s4"] + W(12, 15), 3: ["cs3", "init", "s5"] + W(15, 18),
             4: ["cs4", "fetch", "s6:0-7", "cs5", "s6:7-13", "w18", "w19"], 5: ["put"] + W(0, 4) + ["cs6"] + W(4, 6) + W(20, 22) + ["c3"], 6: W(6, 12) + ["c1"]},
            {-1: ["m", "s1:0-3"], 0: ["cs0", "s1:3-13", "k", "s2:0-8"], 1: ["cs1", "s2:8-13", "s3", "e"], 2: ["cs2", "s4"] + W(12, 15), 3: ["cs3", "s5"] + W(15, 18),
             4: ["cs4", "init", "s6:0-7", "cs5", "s6:7-13", "w18", "w19"], 5: ["fetch"] + W(0, 4) + ["cs6"] + W(4, 6) + W(20, 22) + ["c3", "put"], 6: W(6, 12) + ["c1"]},
            {-1: ["s1:0-6"], 0: ["cs0", "s1:6-13", "m", "k", "s2:0-9"], 1: ["cs1", "s2:9-13", "s3", "e"], 2: ["cs2", "s4"] + W(12, 15), 3: ["cs3", "s5"] + W(15, 18),
             4: ["cs4", "init", "s6:0-7", "cs5", "s6:7-13", "w18", "w19"], 5: ["fetch"] + W(0, 4) + ["cs6"] + W(4, 6) + W(20, 22) + ["c3", "put"], 6: W(6, 12) + ["c1"]},
            {-1: ["m"], 0: ["cs0", "s1", "k", "s2:0-6"], 1: ["cs1", "s2:6-13", "s3"], 2: ["cs2", "s4", "e"] + W(12, 14), 3: ["cs3", "s5"] + W(14, 18),
             4: ["cs4", "init", "s6:0-7", "cs5", "s6:7-13", "w18", "w19"], 5: ["fetch"] + W(0, 4) + ["cs6"] + W(4, 6) + W(20, 22) + ["c3", "put"], 6: W(6, 12) + ["c1"]},
            {-1: ["s1:0-6"], 0: ["cs0", "s1:6-13", "k", "s2"], 1: ["cs1", "s3"], 2: ["cs2", "s4", "e"], 3: ["cs3", "s5"] + W(12, 16),
             4: ["cs4", "init", "s6:0-7", "cs5", "s6:7-13"] + W(16, 19), 5: ["fetch"] + W(0, 4) + ["cs6"] + W(4, 6) + W(19, 22) + ["c3", "put"], 6: W(6, 12) + ["c1"]},
            {-1: ["s1:0-6"], 0: ["cs0", "s1:6-13", "k", "s2", "m"], 1: ["cs1", "s3"], 2: ["cs2", "s4", "e"], 3: ["cs3", "s5"] + W(12, 16),
             4: ["cs4", "init", "s6:0-7", "cs5", "s6:7-13"] + W(16, 19), 5: ["fetch"] + W(0, 4) + ["cs6"] + W(4, 6) + W(19, 22) + ["c3", "put"], 6: W(6, 12) + ["c1"]},
            {-1: ["m", "s1:0-3"], 0: ["cs0", "s1:3-13", "k", "s2:0-10"], 1: ["cs1", "s2:10-13", "s3"], 2: ["cs2", "s4", "e"], 3: ["cs3", "s5"] + W(12, 16),
             4: ["cs4", "init", "s6:0-7", "cs5", "s6:7-13"] + W(16, 19), 5: ["fetch"] + W(0, 4) + ["cs6"] + W(4, 6) + W(19, 22) + ["c3", "put"], 6: W(6, 12) + ["c1"]},
            {-1: ["s1:0-6"], 0: ["cs0", "s1:6-13", "k", "s2"], 1: ["cs1", "s3"], 2: ["cs2", "s4:0-6"], 3: ["cs3", "s4:6-13", "s5", "e"],
             4: ["cs4", "init", "s6"] + W(12, 16), 5: ["cs5", "fetch"] + W(16, 20) + ["cs6"] + W(0, 6) + ["put"], 6: W(6, 12) + W(20, 22) + ["c3", "c1"]},
            {-1: ["s1"], 0: ["cs0", "k", "s2", "e"], 1: ["cs1", "s3"], 2: ["cs2", "s4", "w12"], 3: ["cs3", "s5"] + W(13, 16),
             4: ["cs4", "init", "s6:0-7", "cs5", "s6:7-13"] + W(16, 19), 5: ["fetch"] + W(0, 4) + ["cs6"] + W(4, 6) + W(19, 22) + ["c3", "put"], 6: W(6, 12) + ["c1"]},
        ][self.winn]
    nw1 = 6
    flagr = -1
    xs = 1
    psleep = 6
    fsleep = 2
    ttper = 2
    f2n = 9
    fpre = 1
    a0 = 18
    sprio = 0
    ksig = 12
    opol = 1
    lprio = 3
    w12early = 0
    slab = 0
    spol = 1
    fpol = 1
    pollr = 4
    nw2 = 16
    thr = 15
    hpf = 2
    ky = 2
    @property
    def perms(self):
        return {
            0: [[0, 1, 2, 3, 4, 5, 6]],
            1: [[0, 1, 2, 3, 4, 5, 6], [1, 2, 0, 4, 5, 3, 6], [2, 0, 1, 5, 3, 4, 6]],
            2: [[0, 1, 2, 3, 4, 5, 6], [1, 0, 3, 2, 5, 4, 6]],
            3: [[0, 1, 2, 3, 4, 5, 6], [1, 0, 4, 5, 6, 2, 3], [0, 1, 6, 2, 3, 4, 5]],
            4: [[0, 1, 2, 3, 4, 5, 6], [1, 2, 0, 4, 6, 3, 5], [2, 0, 1, 5, 6, 3, 4]],
            6: [[0, 1, 2, 3, 4, 5, 6], [1, 2, 0, 3, 4, 5, 6], [2, 0, 1, 3, 4, 5, 6]],
            5: [[0, 1, 2, 3, 4, 5, 6], [1, 2, 3, 0, 5, 6, 4], [2, 3, 0, 1, 6, 4, 5], [3, 0, 1, 2, 4, 5, 6]],
        }[self.perm]

WSOFF = [0]
def srd(a, d, ptr, nbytes):
    if ptr == P_WS and WSOFF[0]:
        a(f"s_add_u32 s{ptr}, s{ptr}, {WSOFF[0]:#x}")
        a(f"s_addc_u32 s{ptr+1}, s{ptr+1}, 0")
    a(f"s_mov_b32 s{d}, s{ptr}")
    a(f"s_and_b32 s{d+1}, s{ptr+1}, 0xffff")
    a(f"s_mov_b32 s{d+2}, {nbytes:#x}")
    a(f"s_mov_b32 s{d+3}, 0x20000")

def srd_sel(a, d, ptr1, ptr0, nbytes):
    a(f"s_cselect_b32 s{d}, s{ptr1}, s{ptr0}")
    a(f"s_cselect_b32 s{d+1}, s{ptr1+1}, s{ptr0+1}")
    a(f"s_and_b32 s{d+1}, s{d+1}, 0xffff")
    a(f"s_mov_b32 s{d+2}, {nbytes:#x}")
    a(f"s_mov_b32 s{d+3}, 0x20000")

class TS:
    def __init__(self, a, cfg):
        self.a, self.on, self.n, self.set = a, cfg.ts, 0, cfg.tsset
        self.cfg = cfg
    def x(self, setno, i):
        if self.on and self.set == setno: self.emit(i)
    def __call__(self, i):
        if self.on and (self.set == 0 or i in (0, 12)): self.emit(i)
    def emit(self, i):
        if self.on == 5 and i not in (0, self.cfg.probe): return
        if self.on:
            assert i < 13
            self.a(f"{'s_memrealtime' if self.on != 2 else 's_memtime'} s[{TS0+2*i}:{TS0+2*i+1}]")
    def init(self):
        if self.on:
            for i in range(1, 13): self.a(f"s_mov_b32 s{TS0+2*i}, 0")
    def dump(self, vt, vt2, who=2):
        if not self.on: return
        a = self.a
        if self.on == 5:
            if who != self.cfg.pwho: return
            lab = a.newlabel("L_probe")
            if self.cfg.ponly >= 0:
                a(f"s_and_b32 s11, s2, {self.cfg.pmask}")
                a(f"s_cmp_lg_u32 s11, {self.cfg.ponly}")
                a(f"s_cbranch_scc1 {lab}_x")
            p = TS0 + 2 * self.cfg.probe
            a("s_waitcnt lgkmcnt(0)")
            a(f"s_sub_u32 s11, s{p}, s{TS0}")
            a(f"s_cmp_eq_u32 s{p}, 0")
            a("s_cselect_b32 s11, 0, s11")
            a("s_lshl_b32 s11, s11, 2")
            a("s_add_u32 s11, s11, 3000")
            a.label(lab)
            a("s_memrealtime s[12:13]")
            a("s_waitcnt lgkmcnt(0)")
            a(f"s_sub_u32 s12, s12, s{TS0}")
            a("s_cmp_lt_u32 s12, s11")
            a(f"s_cbranch_scc1 {lab}")
            a.label(lab + "_x")
            return
        if self.on == 3:
            a("s_waitcnt vmcnt(0) lgkmcnt(0)")
            lab = a.newlabel("L_nod")
            a(f"s_cmp_eq_u32 s{TS0+24}, 0")
            a(f"s_cbranch_scc1 {lab}")
            a(f"s_cmp_lg_u32 s{S_WAVE}, 0")
            a(f"s_cbranch_scc1 {lab}")
            a("s_mov_b64 exec, 1")
            a(f"v_mov_b32 v{vt2}, 0")
            a(f"s_not_b32 s11, s{TS0}")
            a(f"v_mov_b32 v{vt}, s11")
            a(f"global_atomic_umax v{vt2}, v{vt}, s[{P_DBG}:{P_DBG+1}] offset:4 sc1")
            for n, i in enumerate([0, 1, 2, 3, 4, 5, 6, 7, 8, 9, 10, 11, 12]):
                a("s_waitcnt vmcnt(0)")
                a(f"v_mov_b32 v{vt}, s{TS0+2*i}")
                a(f"global_atomic_umax v{vt2}, v{vt}, s[{P_DBG}:{P_DBG+1}] offset:{8+4*n} sc1")
            a("s_waitcnt vmcnt(0)")
            a.label(lab)
            return
        a("s_waitcnt vmcnt(0) lgkmcnt(0)")
        a(f"s_lshl_b32 s11, s2, 9")
        a(f"s_lshl_b32 s12, s{S_WAVE}, 6")
        a("s_add_u32 s11, s11, s12")
        a(f"s_add_u32 s11, s11, {WS_TS:#x}")
        a(f"v_mov_b32 v{vt2}, s11")
        for i in range(13):
            a(f"v_mov_b32 v{vt}, s{TS0+2*i}")
            a(f"buffer_store_dword v{vt}, v{vt2}, s[{SRD_WS}:{SRD_WS+3}], 0 offen offset:{4*i}")
        a("s_waitcnt vmcnt(0)")

def round_bf16(a, dst, src):
    a(f"v_cvt_pk_bf16_f32 v{dst}, v{src}, v{src}")
    a(f"v_lshlrev_b32 v{dst}, 16, v{dst}")

def exp_acc(a, dst, x, t0, t1):
    a(f"s_mov_b32 s36, {LOG2E:#x}")
    a(f"s_mov_b32 s37, {LOG2E_LO:#x}")
    a(f"v_mul_f32 v{t0}, s36, v{x}")
    a(f"v_fma_f32 v{t1}, v{x}, s36, -v{t0}")
    a(f"v_fma_f32 v{t1}, v{x}, s37, v{t1}")
    a(f"v_mul_f32 v{t1}, {LN2:#x}, v{t1}")
    a(f"v_exp_f32 v{dst}, v{t0}")
    a(f"v_fma_f32 v{dst}, v{dst}, v{t1}, v{dst}")

def csq(a, dr, di, sr, si, t):
    a(f"v_mul_f32 v{t}, v{si}, v{si}")
    a(f"v_add_f32 v{di}, v{si}, v{si}")
    a(f"v_mul_f32 v{di}, v{di}, v{sr}")
    a(f"v_fma_f32 v{dr}, v{sr}, v{sr}, -v{t}")

def cmul(a, dr, di, ar, ai, br, bi):
    a(f"v_mul_f32 v{dr}, v{ar}, v{br}")
    a(f"v_mul_f32 v{di}, v{ar}, v{bi}")
    a(f"v_fma_f32 v{dr}, -v{ai}, v{bi}, v{dr}")
    a(f"v_fma_f32 v{di}, v{ai}, v{br}, v{di}")

def ssm_const_load(a, vm, t):
    a(f"v_and_b32 v{t+3}, 15, v0")
    a(f"s_lshl_b32 s11, s{S_NS}, 4")
    a(f"v_add_lshl_u32 v{t+3}, v{t+3}, s11, 1")
    vm.issue('sc', f"global_load_ushort v{t}, v{t+3}, s[{P_LRE}:{P_LRE+1}]")
    vm.issue('sc', f"global_load_ushort v{t+1}, v{t+3}, s[{P_LIM}:{P_LIM+1}]")
    vm.issue('sc', f"global_load_ushort v{t+2}, v{t+3}, s[{P_LDT}:{P_LDT+1}]")

def ssm_const_calc(a, t, lr, li, cr=None, ci=None):
    for k in range(3): a(f"v_lshlrev_b32 v{t+k}, 16, v{t+k}")
    exp_acc(a, t + 3, t + 2, t + 4, t + 5)
    round_bf16(a, t + 2, t + 3)
    a(f"v_mul_f32 v{t+3}, v{t+2}, v{t}")
    a(f"v_mul_f32 v{t+6}, v{t+2}, v{t+1}")
    exp_acc(a, t + 7, t + 3, t + 4, t + 5)
    a(f"v_mul_f32 v{t+6}, {INV2PI:#x}, v{t+6}")
    a(f"v_rndne_f32 v{t+4}, v{t+6}")
    a(f"v_sub_f32 v{t+6}, v{t+6}, v{t+4}")
    a(f"v_cos_f32 v{t+4}, v{t+6}")
    a(f"v_sin_f32 v{t+5}, v{t+6}")
    a(f"v_mul_f32 v{lr}, v{t+7}, v{t+4}")
    a(f"v_mul_f32 v{li}, v{t+7}, v{t+5}")
    if cr is not None:
        a(f"v_add_f32 v{t+3}, -1.0, v{lr}")
        a(f"v_mul_f32 v{t+4}, v{t}, v{t}")
        a(f"v_fma_f32 v{t+4}, v{t+1}, v{t+1}, v{t+4}")
        a(f"v_rcp_f32 v{t+4}, v{t+4}")
        a(f"v_mul_f32 v{cr}, v{t+3}, v{t}")
        a(f"v_fma_f32 v{cr}, v{li}, v{t+1}, v{cr}")
        a(f"v_mul_f32 v{ci}, v{li}, v{t}")
        a(f"v_fma_f32 v{ci}, -v{t+3}, v{t+1}, v{ci}")
        a(f"v_add_f32 v{t+4}, v{t+4}, v{t+4}")
        a(f"v_mul_f32 v{cr}, v{cr}, v{t+4}")
        a(f"v_mul_f32 v{ci}, v{ci}, v{t+4}")

def gen_entry(a, cfg, ts):
    a("s_cmp_ge_u32 s2, 256")
    a("s_cbranch_scc1 L_exit")
    if cfg.padto: a("s_memrealtime s[100:101]")
    ts(0)
    a("s_load_dwordx16 s[16:31], s[0:1], 0")
    a("s_load_dwordx16 s[32:47], s[0:1], 64")
    a("v_lshrrev_b32 v1, 6, v0")
    a("v_and_b32 v0, 63, v0")
    a(f"v_readfirstlane_b32 s{S_WAVE}, v1")
    a(f"s_and_b32 s{S_XCD}, s2, 7")
    a(f"s_lshr_b32 s{S_SLOT}, s2, 3")
    if cfg.cpf == 2:
        a(f"s_cmp_gt_u32 s{S_WAVE}, {cfg.cpw - 1}")
        a("s_cbranch_scc1 L_nocpf")
        a("s_getpc_b64 s[12:13]")
        a.label("L_pc0")
        a(f"s_sub_u32 s12, s12, L_pc0-{KNAME}")
        a("s_subb_u32 s13, s13, 0")
        a(f"s_lshl_b32 s11, s{S_WAVE}, 5")
        a(f"s_add_u32 s11, s11, s{S_SLOT}")
        a("s_lshl_b32 s11, s11, 10")
        a("v_lshl_add_u32 v38, v0, 4, s11")
        a(f"v_min_u32 v38, L_exit-{KNAME}, v38")
        a("global_load_dword v23, v38, s[12:13]")
        a.label("L_nocpf")
    a(f"s_and_b32 s11, s{S_SLOT}, 3")
    a(f"s_lshr_b32 s{S_NT}, s{S_SLOT}, 2")
    a(f"s_and_b32 s12, s{S_XCD}, 1")
    a(f"s_lshl_b32 s12, s12, 2")
    a(f"s_add_u32 s{S_MT}, s12, s11")
    a(f"s_lshr_b32 s12, s{S_XCD}, 1")
    a(f"s_mul_i32 s12, s12, 7")
    a(f"s_add_u32 s{S_NS}, s12, s{S_NT}")
    if cfg.slab:
        a(f"s_mov_b32 s{S_MT}, s{S_XCD}")
        a(f"s_mov_b32 s{S_NS}, s{S_SLOT}")
    if cfg.loc:
        a(f"s_and_b32 s12, s{S_XCD}, 1")
        a("s_lshl_b32 s12, s12, 2")
        a(f"s_lshr_b32 s13, s{S_XCD}, 1")
        a("s_add_u32 s12, s12, s13")
        a("s_lshl_b32 s12, s12, 2")
    else:
        a(f"s_lshl_b32 s12, s{S_XCD}, 2")
    a(f"s_add_u32 s{S_M64}, s12, s11")
    a(f"s_and_b32 s{S_W4}, s{S_WAVE}, 3")
    ts.init()
    a(f"s_cmp_ge_u32 s{S_SLOT}, 28")
    a("s_cbranch_scc1 L_helper")
    a(f"s_cmp_lt_u32 s{S_WAVE}, 4")
    a("s_cbranch_scc1 L_consumer")

def gen_helper(a, cfg, ts):
    if cfg.al >= 3: a.raw(".p2align 12")
    a.label("L_helper")
    vm = VM(a)
    a(f"s_sub_u32 s73, s{S_SLOT}, 28")
    a(f"s_lshl_b32 s11, s73, 3")
    a(f"s_add_u32 s72, s11, s{S_XCD}")
    if cfg.loc: a(f"s_mov_b32 s72, s{S_M64}")
    HC = 65536
    a(f"v_mov_b32 v200, {HC}")
    a("v_mov_b32 v201, 0")
    a("ds_write_b32 v200, v201")
    def h_open():
        a("s_waitcnt lgkmcnt(0)")
        a("s_barrier")
    def h_signal(tag):
        a("v_mov_b32 v202, 1")
        a("s_mov_b64 exec, 1")
        a("ds_add_rtn_u32 v203, v200, v202")
        a("s_waitcnt lgkmcnt(0)")
        a("v_readfirstlane_b32 s11, v203")
        a("s_cmp_lg_u32 s11, 7")
        a(f"s_cbranch_scc1 L_h_ns{tag}")
        a(f"global_atomic_add v201, v202, s[{P_DBG}:{P_DBG+1}] sc1")
        a.label(f"L_h_ns{tag}")
        a("s_mov_b64 exec, -1")
    a(f"s_cmp_ge_u32 s{S_WAVE}, 4")
    a("s_cbranch_scc1 L_h_pf")
    a(f"s_lshl_b32 s11, s72, 6")
    a(f"s_lshl_b32 s12, s{S_WAVE}, 4")
    a(f"s_add_u32 s11, s11, s12")
    a("v_lshrrev_b32 v2, 3, v0")
    a("v_add_u32 v2, s11, v2")
    a("v_mul_u32_u24 v3, 896, v2")
    a("v_and_b32 v4, 7, v0")
    a("v_lshl_add_u32 v3, v4, 4, v3")
    a("s_waitcnt lgkmcnt(0)")
    srd(a, SRD_X, P_X, 2048 * 896)
    srd(a, SRD_WS, P_WS, WS_SIZE)
    a(f"s_mov_b32 s11, {8*896}")
    for ps in range(2):
        for j in range(7):
            so = "0" if ps == 0 else "s11"
            vm.issue(('x', ps), f"buffer_load_dwordx4 v[{112+28*ps+4*j}:{115+28*ps+4*j}], v3, s[{SRD_X}:{SRD_X+3}], {so} offen offset:{128*j}")
    a(f"s_cmp_gt_u32 s{S_WAVE}, 1")
    a("s_cbranch_scc1 L_h_noreset")
    a(f"s_cmp_eq_u32 s{S_WAVE}, 0")
    a("s_cselect_b32 s11, -1, 0")
    a("s_mov_b32 s12, 1024")
    a("s_cmov_b32 s12, 896")
    a(f"s_mov_b32 s13, {WS_FLAG:#x}")
    a(f"s_cmov_b32 s13, {WS_AGG:#x}")
    a("s_mul_i32 s14, s12, s72")
    a("s_add_u32 s13, s13, s14")
    for k in range(4): a(f"v_mov_b32 v{8+k}, s11")
    a("v_lshlrev_b32 v12, 4, v0")
    a("v_cmp_gt_u32 vcc, s12, v12")
    a("s_and_saveexec_b64 s[14:15], vcc")
    a(f"buffer_store_dwordx4 v[8:11], v12, s[{SRD_WS}:{SRD_WS+3}], s13 offen sc1")
    a("s_mov_b64 exec, s[14:15]")
    a.label("L_h_noreset")
    h_open()
    a("v_lshlrev_b32 v2, 3, v2")
    a("s_mov_b32 s12, 0xffff0000")
    def fin(dst):
        a("v_add_f32 v8, v8, v9")
        a("v_add_f32 v10, v10, v11")
        a(f"v_add_f32 v{dst}, v8, v10")
        a(f"v_add_f32_dpp v{dst}, v{dst}, v{dst} quad_perm:[1,0,3,2] row_mask:0xf bank_mask:0xf")
        a(f"v_add_f32_dpp v{dst}, v{dst}, v{dst} quad_perm:[2,3,0,1] row_mask:0xf bank_mask:0xf")
        a(f"v_add_f32_dpp v{dst}, v{dst}, v{dst} row_half_mirror row_mask:0xf bank_mask:0xf")
        a(f"v_mul_f32 v{dst}, 0x3b124925, v{dst}")
    for ps in range(2):
        vm.wait(('x', ps))
        if cfg.hdelay == 2 + ps: a("s_barrier")
        src = 112 + 28 * ps
        for k in range(28):
            a(f"v_lshlrev_b32 v{48+2*k}, 16, v{src+k}")
            a(f"v_and_b32 v{49+2*k}, s12, v{src+k}")
        a("v_pk_add_f32 v[8:9], v[48:49], v[52:53]")
        a("v_pk_add_f32 v[10:11], v[50:51], v[54:55]")
        for k in range(4, 28): a(f"v_pk_add_f32 v[{8+2*(k%2)}:{9+2*(k%2)}], v[{8+2*(k%2)}:{9+2*(k%2)}], v[{48+2*k}:{49+2*k}]")
        fin(12)
        for k in range(28): a(f"v_pk_add_f32 v[{48+2*k}:{49+2*k}], v[{48+2*k}:{49+2*k}], v[12:13] op_sel_hi:[1,0] neg_lo:[0,1] neg_hi:[0,1]")
        for k in range(2): a(f"v_pk_mul_f32 v[{8+2*k}:{9+2*k}], v[{48+2*k}:{49+2*k}], v[{48+2*k}:{49+2*k}]")
        for k in range(2, 28): a(f"v_pk_fma_f32 v[{8+2*(k%2)}:{9+2*(k%2)}], v[{48+2*k}:{49+2*k}], v[{48+2*k}:{49+2*k}], v[{8+2*(k%2)}:{9+2*(k%2)}]")
        fin(13)
        o = 14 + 2 * ps
        round_bf16(a, o, 12)
        round_bf16(a, 13, 13)
        a("v_add_f32 v13, 0x3727c5ac, v13")
        round_bf16(a, 13, 13)
        a("v_sqrt_f32 v13, v13")
        round_bf16(a, 13, 13)
        a(f"v_rcp_f32 v{o+1}, v13")
        a("v_cmp_eq_u32 vcc, 0, v4")
        a("s_and_saveexec_b64 s[14:15], vcc")
        a(f"s_mov_b32 s11, {WS_STATS:#x}")
        vm.issue('st', f"buffer_store_dwordx2 v[{o}:{o+1}], v2, s[{SRD_WS}:{SRD_WS+3}], s11 offen offset:{64*ps} sc1")
        a("s_mov_b64 exec, s[14:15]")
    a("s_waitcnt vmcnt(0)")
    h_signal("a")
    ts(1)
    ts.x(3, 1)
    ts.dump(8, 9)
    a("s_endpgm")
    a.label("L_h_pf")
    a("v_lshlrev_b32 v2, 4, v0")
    a(f"s_lshl_b32 s11, s{S_W4}, 10")
    a("v_add_u32 v2, s11, v2")
    if cfg.cpf == 1:
        a("s_getpc_b64 s[60:61]")
        a.label("L_pc")
        a(f"s_sub_u32 s60, s60, L_pc-{KNAME}")
        a("s_subb_u32 s61, s61, 0")
        a("s_lshl_b32 s11, s73, 12")
        a("v_add_u32 v3, s11, v2")
        for k in range(2):
            a(f"v_min_u32 v4, L_exit-{KNAME}-12, v3")
            a(f"global_load_dwordx4 v[24:27], v4, s[60:61]")
            a(f"v_add_u32 v3, 16384, v3")
    a("s_waitcnt lgkmcnt(0)")
    if cfg.hdelay == 1: a("s_waitcnt vmcnt(0)")
    if cfg.hdelay >= 2: a("s_barrier")
    srd(a, SRD_WS, P_WS, WS_SIZE)
    a("s_lshl_b32 s60, s72, 2")
    a(f"s_add_u32 s60, s60, s{S_W4}")
    a("s_cmp_ge_u32 s60, 98")
    a("s_cbranch_scc1 L_h_nopack1")
    a("s_mul_i32 s61, s60, 37")
    a("s_lshr_b32 s61, s61, 8")
    a("s_mul_i32 s62, s61, 7")
    a("s_sub_u32 s62, s60, s62")
    a("s_cmp_lt_i32 s62, 0")
    a("s_cselect_b32 s11, 1, 0")
    a("s_sub_u32 s61, s61, s11")
    a("s_mul_i32 s62, s61, 7")
    a("s_sub_u32 s62, s60, s62")
    a("s_bitcmp1_b32 s61, 0")
    srd_sel(a, 68, P_CIM, P_CRE, 448 * 896)
    a("v_lshrrev_b32 v3, 3, v0")
    a("v_and_b32 v4, 7, v0")
    a("v_lshrrev_b32 v5, 1, v3")
    a("v_xor_b32 v4, v4, v5")
    a("s_lshr_b32 s11, s61, 1")
    a("s_lshl_b32 s11, s11, 6")
    a("v_add_u32 v3, s11, v3")
    a("v_mul_u32_u24 v3, 896, v3")
    a("v_lshl_add_u32 v3, v4, 4, v3")
    a("v_xor_b32 v4, 64, v3")
    a(f"s_lshl_b32 s63, s{S_W4}, 13")
    a("s_lshl_b32 s12, s62, 7")
    for n in range(8):
        a(f"s_add_u32 m0, s63, {n*1024}")
        a(f"s_add_u32 s11, s12, {8*n*896}")
        a(f"buffer_load_dwordx4 v{3 + (n & 1)}, s[68:71], s11 offen lds")
    a.label("L_h_nopack1")
    h_open()
    def h_sweep():
        if cfg.hpf:
            for (ptr, nbytes, srdn) in ((P_WD, 1792 * 896, 56),):
                srd(a, srdn, ptr, nbytes)
            def sweep(name, srds, qbytes, first, count):
                n8 = -(-qbytes // (8 * 4096))
                n = 8 * n8
                a(f"s_mul_i32 s12, s73, {qbytes}")
                a(f"s_add_u32 s13, s{S_XCD}, {first}")
                a("s_and_b32 s13, s13, 7")
                a(f"s_mul_i32 s13, s13, {n8}")
                a("s_mov_b32 s14, 0")
                a.label(name)
                a("s_lshl_b32 s11, s13, 12")
                a("s_add_u32 s11, s11, s12")
                for k, sr in enumerate(srds):
                    a(f"buffer_load_dwordx4 v[{16+4*k}:{19+4*k}], v2, s[{sr}:{sr+3}], s11 offen")
                a("s_add_u32 s13, s13, 1")
                a(f"s_cmp_eq_u32 s13, {n}")
                a("s_cselect_b32 s13, 0, s13")
                a("s_add_u32 s14, s14, 1")
                a(f"s_cmp_lt_u32 s14, {n8 * count}")
                a(f"s_cbranch_scc1 {name}")
            sweep("L_h_p2", [56], 1792 * 896 // 4, 0, 1)
            ts(2)
    def h_pack():
        a("s_cmp_ge_u32 s60, 98")
        a("s_cbranch_scc1 L_h_nopack2")
        a("v_and_b32 v5, 31, v0")
        a("v_lshrrev_b32 v6, 5, v0")
        a("v_bfe_u32 v7, v0, 1, 3")
        a("v_xor_b32 v7, v7, v6")
        a("v_lshlrev_b32 v7, 4, v7")
        a("v_lshl_add_u32 v5, v5, 7, v7")
        a("v_add_u32 v5, s63, v5")
        a("v_lshlrev_b32 v6, 4, v0")
        a("s_mul_i32 s12, s61, 28")
        a("s_lshl_b32 s11, s62, 2")
        a("s_add_u32 s12, s12, s11")
        a("s_lshl_b32 s12, s12, 11")
        a(f"s_add_u32 s12, s12, {WS_CP:#x}")
        a(f"s_waitcnt vmcnt({13 if (cfg.hpf and not cfg.hord) else 0})")
        for ks in range(4):
            a(f"v_xor_b32 v7, {32*ks}, v5")
            for ct in range(2):
                d = 32 + 8 * ks + 4 * ct
                a(f"ds_read_b128 v[{d}:{d+3}], v7 offset:{4096*ct}")
        for ks in range(4):
            a(f"s_waitcnt lgkmcnt({6 - 2*ks})")
            a(f"s_add_u32 s11, s12, {2048*ks}")
            for ct in range(2):
                d = 32 + 8 * ks + 4 * ct
                a(f"buffer_store_dwordx4 v[{d}:{d+3}], v6, s[{SRD_WS}:{SRD_WS+3}], s11 offen offset:{1024*ct} sc1")
        a("s_waitcnt vmcnt(0)")
        a.label("L_h_nopack2")
        h_signal("b")
        ts(3)
        ts.x(3, 1)
    if cfg.hord: h_pack(); h_sweep()
    else: h_sweep(); h_pack()
    ts.dump(8, 9)
    a("s_endpgm")

def spin_check(a, name, load_text_list, cond_fn, sleep=1):
    lo, done = a.newlabel(name + "_spin"), a.newlabel(name + "_ok")
    a(f"s_mov_b32 s73, 0")
    a.label(lo)
    cond_fn()
    a(f"s_cbranch_scc1 {done}")
    a("s_add_u32 s73, s73, 1")
    a(f"s_cmp_ge_u32 s73, {SPIN_MAX}")
    a(f"s_cbranch_scc1 {done}")
    a(f"s_sleep {sleep}")
    for t in load_text_list: a(t)
    a("s_waitcnt vmcnt(0)")
    a(f"s_branch {lo}")
    a.label(done)
    a("s_nop 4")

def sspin(a, name, loads, cond_fn, sleep=1):
    lo, done = a.newlabel(name + "_spin"), a.newlabel(name + "_ok")
    a("s_mov_b32 s73, 0")
    a.label(lo)
    for t in loads: a(t)
    a("s_waitcnt lgkmcnt(0)")
    cond_fn()
    a(f"s_cbranch_scc1 {done}")
    a("s_add_u32 s73, s73, 1")
    a(f"s_cmp_lt_u32 s73, {SPIN_MAX}")
    if sleep: a(f"s_sleep {sleep}")
    a(f"s_cbranch_scc1 {lo}")
    a.label(done)

def flag_index(a, d, t, grp):
    a(f"s_mul_i32 s{t}, s{S_NS}, 37")
    a(f"s_lshr_b32 s{t}, s{t}, {8 if grp == 7 else 9}")
    a(f"s_mul_i32 s{t}, s{t}, {32 - grp}")
    a(f"s_add_u32 s{d}, s{t}, s{S_NS}")
    a(f"s_lshl_b32 s{d}, s{d}, 2")

def interleave(a, prim, fill, per):
    fill = list(fill)
    for p in prim:
        p()
        for _ in range(per):
            if fill: a(fill.pop(0))
    for f in fill: a(f)

def p2_rot(a, cfg, d_ffn, d_blk, d_flip):
    if not cfg.rot:
        for d in (d_ffn, d_blk, d_flip): a(f"s_mov_b32 s{d}, 0")
        return
    tab = {2: [0] * 7, 1: list(range(7)), 3: [0, 3, 0, 3, 0, 3, 0], 4: [0, 2, 5, 0, 2, 5, 0], 5: [0, 4, 2, 5, 0, 4, 2], 6: [0, 1, 0, 1, 0, 1, 0], 7: [0, 2, 0, 2, 0, 2, 0]}[cfg.rot]
    word = sum(v << (4 * k) for k, v in enumerate(tab))
    a(f"s_lshl_b32 s11, s{S_NT}, 2")
    a(f"s_lshr_b32 s13, {word:#x}, s11")
    a("s_and_b32 s13, s13, 15")
    a(f"s_and_b32 s11, s{S_SLOT}, 3")
    a("s_lshl_b32 s11, s11, 1")
    a("s_add_u32 s11, s11, s13")
    a("s_cmp_ge_u32 s11, 7")
    a("s_cselect_b32 s13, 7, 0")
    a(f"s_sub_u32 s{d_ffn}, s11, s13")
    for d in (d_blk, d_flip): a(f"s_mov_b32 s{d}, 0")

def slot(reg, n): return R[reg] + 2048 * n
SA = [slot(1, n) for n in range(6)]; SB = [slot(2, n) for n in range(6)]; SC = [slot(0, n) for n in range(6)]
WSLOT = {}
for n in range(6): WSLOT[n] = SA[n]; WSLOT[6 + n] = SB[n]
for n in range(4): WSLOT[12 + n] = SC[n]; WSLOT[16 + n] = SA[n]; WSLOT[20 + n] = SB[n]
WSLOT.update({24: SA[4], 25: SA[5], 26: SB[4], 27: SB[5]})
HTS = SC[4]
PH1, PH2, GA, FXA, SD = SC[0], SC[4], SB[0], SA[0], SC[0]

class Rec:
    def __init__(self): self.L = []
    def __call__(self, t): self.L.append(t)

def ssm_park(kc, K, KP, sQ):
    LR, LI, CR, CI, L16R, L16I, PWR, PWI, L64R, L64I, LWR, LWI, W0R = [KP + k for k in range(13)]
    vTW, vTR, vCB = KP + 16, KP + 17, KP + 18
    ssm_const_calc(kc, K, LR, LI, CR, CI)
    csq(kc, L16R, L16I, LR, LI, K)
    for _ in range(3): csq(kc, L16R, L16I, L16R, L16I, K)
    def powsel(dr, di, br, bi, bit, src):
        cmul(kc, K + 1, K + 2, dr, di, br, bi)
        kc(f"v_and_b32 v{K}, {bit}, v{src}")
        kc(f"v_cmp_ne_u32 vcc, 0, v{K}")
        kc(f"v_cndmask_b32 v{dr}, v{dr}, v{K+1}, vcc")
        kc(f"v_cndmask_b32 v{di}, v{di}, v{K+2}, vcc")
    kc(f"v_mov_b32 v{PWR}, v{CR}"); kc(f"v_mov_b32 v{PWI}, v{CI}")
    powsel(PWR, PWI, L16R, L16I, 32, 0)
    csq(kc, K + 14, K + 15, L16R, L16I, K)
    powsel(PWR, PWI, K + 14, K + 15, 16, 0)
    csq(kc, L64R, L64I, K + 14, K + 15, K)
    kc(f"v_mov_b32 v{K+10}, s{S_W4}")
    kc(f"v_mov_b32 v{LWR}, 1.0"); kc(f"v_mov_b32 v{LWI}, 0")
    powsel(LWR, LWI, L64R, L64I, 1, K + 10)
    csq(kc, K + 14, K + 15, L64R, L64I, K)
    powsel(LWR, LWI, K + 14, K + 15, 2, K + 10)
    csq(kc, K + 14, K + 15, K + 14, K + 15, K)
    kc(f"v_lshrrev_b32 v{K+10}, 4, v0")
    kc(f"v_sub_u32 v{K+10}, s{S_MT}, v{K+10}")
    kc(f"v_add_u32 v{K+11}, -5, v{K+10}")
    kc(f"v_add_u32 v{K+10}, -1, v{K+10}")
    kc(f"v_mov_b32 v{W0R}, 1.0"); kc(f"v_mov_b32 v{W0R+1}, 0")
    kc(f"v_mov_b32 v{W0R+2}, 1.0"); kc(f"v_mov_b32 v{W0R+3}, 0")
    for b in range(3):
        powsel(W0R, W0R + 1, K + 14, K + 15, 1 << b, K + 10)
        if b < 2: powsel(W0R + 2, W0R + 3, K + 14, K + 15, 1 << b, K + 11)
        if b < 2: csq(kc, K + 14, K + 15, K + 14, K + 15, K)
    kc(f"s_add_u32 s36, s{sQ}, {HTS}")
    kc(f"v_bfe_u32 v{K}, v0, 4, 1")
    kc(f"v_lshrrev_b32 v{K+1}, 5, v0")
    kc(f"v_lshl_add_u32 v{K+2}, v{K}, 1, v{K+1}")
    kc(f"v_and_b32 v{K+3}, 15, v0")
    kc(f"v_and_b32 v{vTW}, 6, v{K+3}")
    kc(f"v_lshlrev_b32 v{vTW}, 4, v{vTW}")
    kc(f"v_lshlrev_b32 v{K+4}, 5, v{K+2}")
    kc(f"v_xor_b32 v{vTW}, v{vTW}, v{K+4}")
    kc(f"v_lshl_add_u32 v{vTW}, v{K+3}, 7, v{vTW}")
    kc(f"v_add_u32 v{vTW}, s36, v{vTW}")
    kc(f"v_lshlrev_b32 v{vCB}, 2, v{K+3}")
    kc(f"v_add_u32 v{vCB}, {C_L + 512}, v{vCB}")
    kc(f"v_bfe_u32 v{K+4}, v0, 2, 2")
    kc(f"v_lshl_add_u32 v{K+5}, v{K+1}, 3, v{K+4}")
    kc(f"v_lshlrev_b32 v{vTR}, 7, v{K+5}")
    kc(f"v_lshrrev_b32 v{K+4}, 1, v{K+4}")
    kc(f"v_xor_b32 v{K+4}, v{K+4}, v0")
    kc(f"v_and_b32 v{K+4}, 1, v{K+4}")
    kc(f"v_lshl_add_u32 v{vTR}, v{K+4}, 5, v{vTR}")
    kc(f"v_lshl_add_u32 v{vTR}, v{K}, 4, v{vTR}")
    kc(f"v_bfe_u32 v{K+4}, v0, 1, 1")
    kc(f"v_lshl_add_u32 v{vTR}, v{K+4}, 3, v{vTR}")
    kc(f"v_add_u32 v{vTR}, s36, v{vTR}")
    kc(f"s_lshl_b32 s36, s{S_W4}, 9")
    kc(f"s_add_u32 s36, s36, {STATS_L}")
    kc(f"v_lshl_add_u32 v{KP+19}, v{K+2}, 7, s36")
    vStS = KP + 19
    vAg, vPr, vF = KP + 20, KP + 21, KP + 22
    kc(f"v_lshlrev_b32 v{vAg}, 3, v{K+3}")
    kc(f"v_lshrrev_b32 v{vPr}, 4, v0")
    kc(f"v_mul_u32_u24 v{vPr}, 3584, v{vPr}")
    kc(f"s_lshl_b32 s36, s{S_NS}, 7")
    kc(f"v_add3_u32 v{vPr}, v{vPr}, v{vAg}, s36")
    kc(f"v_add_u32 v{vAg}, {AGG_L}, v{vAg}")
    kc(f"s_lshl_b32 s36, s{S_MT}, 2")
    kc(f"s_add_u32 s36, s36, s{S_W4}")
    kc("s_lshl_b32 s36, s36, 10")
    flag_index(kc, 37, 38, 14)
    kc("s_add_u32 s36, s36, s37")
    kc(f"s_add_u32 s36, s36, {WS_FLAG + 512:#x}")
    kc(f"v_mov_b32 v{vF}, s36")

def gen_loader(a, cfg, ts):
    a.label("L_loader")
    a("s_setprio 3")
    vm = VM(a)
    vXe, vXo, vW, vB = 1, 2, 3, 4
    vFv, vP, vO, vPQ = 5, 6, 7, 8
    vWd, vCe, vCo, vCh = 9, 10, 11, 12
    vRf, vRh = 13, 14
    vA, vC = 24, 25
    vT = 15
    ACC, CA, RD = 27, 28, 44
    STG = 64
    CF = 144
    SACC = 80
    XRAW = CF + 64
    KP = XRAW + 8
    sGrp = [28, 29, 30, 31, 36, 37, 21]
    SP = ['', ' sc1'][cfg.spol]
    sMX, sMW, sMB, sMP = 72, 74, 75, 70
    sPerm, sSX, sSW = 68, 69, 15
    sRF = 14
    AP = ['', ' sc1', ' sc1 nt', ' sc0 sc1', ' sc0', ' nt'][cfg.apol]
    OP = ['', ' sc1', ' nt', ' sc1 nt'][cfg.opol]
    polx = " nt" if cfg.polx else ""
    polw = " nt" if cfg.polw else ""
    a(f"v_lshrrev_b32 v{vA}, 3, v0")
    a(f"v_and_b32 v{vC}, 7, v0")
    a(f"v_lshrrev_b32 v{vT+2}, 1, v{vA}")
    a(f"s_lshl_b32 s11, s{S_W4}, 4")
    a(f"v_add_u32 v{vT}, s11, v{vA}")
    a(f"v_mul_u32_u24 v{vW}, 3584, v{vT}")
    a(f"v_and_b32 v{vT+4}, 1, v{vT+2}")
    a(f"v_lshlrev_b32 v{vT+4}, 2, v{vT+4}")
    a(f"v_xor_b32 v{vT+4}, v{vC}, v{vT+4}")
    a(f"v_lshl_add_u32 v{vW}, v{vT+4}, 4, v{vW}")
    a(f"s_lshl_b32 s11, s{S_NS}, 7")
    a(f"v_add_u32 v{vW}, s11, v{vW}")
    vW1 = 12
    a(f"v_xor_b32 v{vW1}, 32, v{vW}")
    a(f"s_lshl_b32 s11, s{S_MT}, 8")
    a(f"s_lshl_b32 s12, s{S_W4}, 6")
    a("s_add_u32 s11, s11, s12")
    a(f"v_lshrrev_b32 v{vT}, 2, v{vA}")
    a(f"v_and_b32 v{vT+1}, 3, v{vA}")
    a(f"v_lshl_add_u32 v{vT}, v{vT}, 4, v{vT+1}")
    a(f"v_add_u32 v{vT}, s11, v{vT}")
    a(f"v_mul_u32_u24 v{vXe}, 896, v{vT}")
    a(f"v_xor_b32 v{vT+3}, v{vC}, v{vT+2}")
    a(f"v_lshl_add_u32 v{vXe}, v{vT+3}, 4, v{vXe}")
    a(f"v_xor_b32 v{vXo}, 64, v{vXe}")
    a(f"s_and_b32 s12, s{S_W4}, 1")
    a(f"s_lshl_b32 s11, s{S_NS}, 4")
    a(f"s_lshl_b32 s13, s12, 3")
    a("s_add_u32 s11, s11, s13")
    a(f"v_add_u32 v{vT}, s11, v{vA}")
    a(f"v_mul_u32_u24 v{vB}, 896, v{vT}")
    a(f"v_lshl_add_u32 v{vB}, v{vT+3}, 4, v{vB}")
    a("s_lshl_b32 s13, s12, 6")
    a(f"v_xor_b32 v{vB}, s13, v{vB}")
    a(f"s_lshl_b32 s{sMX}, s{S_W4}, 13")
    a(f"s_lshl_b32 s{sMW}, s{S_W4}, 11")
    a(f"s_lshl_b32 s{sMB}, s{S_W4}, 10")
    a(f"s_mul_i32 s{sMP}, s{S_W4}, {Q}")
    perms = cfg.perms
    words = [sum(p[k] << (4 * k) for k in range(7)) for p in perms]
    ng = len(words)
    a(f"s_mov_b32 s{sPerm}, {words[0]:#x}")
    if ng > 1:
        if cfg.slab:
            a(f"s_add_u32 s11, s{S_SLOT}, s{S_XCD}")
        else:
            a(f"s_and_b32 s11, s{S_SLOT}, 3")
            a(f"s_add_u32 s11, s11, s{S_NT}")
        if ng == 3:
            a("s_mul_i32 s13, s11, 43")
            a("s_lshr_b32 s13, s13, 7")
            a("s_mul_i32 s13, s13, 3")
            a("s_sub_u32 s11, s11, s13")
        else:
            a(f"s_and_b32 s11, s11, {ng-1}")
        for g in range(1, ng):
            a(f"s_cmp_eq_u32 s11, {g}")
            a(f"s_cmov_b32 s{sPerm}, {words[g]:#x}")
    ts.x(1, 1)
    a("s_waitcnt lgkmcnt(0)")
    ts.x(1, 2)
    if cfg.tlb:
        a(f"v_mov_b32 v40, s{P_X}")
        a(f"v_mov_b32 v41, s{P_X+1}")
        for ln, p in enumerate([P_WG, P_WU, P_BRE, P_BIM, P_WD, P_CRE, P_CIM, P_WS][:cfg.tlb], 1):
            a(f"v_writelane_b32 v40, s{p}, {ln}")
            a(f"v_writelane_b32 v41, s{p+1}, {ln}")
        a(f"s_mov_b64 exec, {(1 << (cfg.tlb + 1)) - 1:#x}")
        a("global_load_dword v62, v[40:41], off")
        a("s_mov_b64 exec, -1")
    srd(a, SRD_A, P_WG, 448 * 3584)
    srd(a, SRD_X, P_X, 2048 * 896)
    srd(a, SRD_B, P_WU, 448 * 3584)
    a(f"s_cmp_ge_u32 s{S_W4}, 2")
    srd_sel(a, SRD_C, P_BIM, P_BRE, 448 * 896)

    thr = [None]
    def dma(vm, tag, voff, srdn, sbase, soff, m0base, m0off, pol=""):
        a(f"s_add_u32 m0, s{m0base}, {m0off}")
        a(f"s_add_u32 s11, s{sbase}, {soff}")
        if thr[0] is not None and len(vm.q) > thr[0]:
            a(f"s_waitcnt vmcnt({thr[0]})")
            vm.q = vm.q[-thr[0]:]
        vm.issue(tag, f"buffer_load_dwordx4 v{voff}, s[{srdn}:{srdn+3}], s11 offen{pol} lds")
    def issue_ops(s):
        r = R[s % 3]
        ops = []
        def pre():
            a(f"s_bfe_u32 s{sSX}, s{sPerm}, {(4 << 16) | (4 * s):#x}")
            a(f"s_mul_i32 s{sSW}, s{sSX}, {64*3584}")
            a(f"s_lshl_b32 s{sSX}, s{sSX}, 7")
        def mk(*args): return lambda: dma(vm, ('st', s), *args)
        L = []
        for i in range(2): L.append(mk((vW, vW1)[i], SRD_A, sSW, i * 8 * 3584, sMW, r + OFF_WG + i * 1024, polw))
        for j in range(4): L.append(mk(vXo if j & 1 else vXe, SRD_X, sSX, (32 * (j >> 2) + 4 * (j & 3)) * 896, sMX, r + j * 1024, polx))
        for i in range(2): L.append(mk((vW, vW1)[i], SRD_B, sSW, i * 8 * 3584, sMW, r + OFF_WU + i * 1024, polw))
        for j in range(4, 8): L.append(mk(vXo if j & 1 else vXe, SRD_X, sSX, (32 * (j >> 2) + 4 * (j & 3)) * 896, sMX, r + j * 1024, polx))
        L.append(mk(vB, SRD_C, sSX, 0, sMB, r + OFF_BB, polw))
        first = L[0]
        L[0] = lambda: (pre(), first())
        return L
    SRD_WD, SRD_CC, sBlk, sFlip, P_DSK2 = 32, 24, 16, 17, 38
    def w_ops(ps):
        L = []
        for p in ps:
            for n in range(2):
                def op(p=p, n=n):
                    if 12 <= p < 22:
                        d = STG + (p - 12) * 8 + 4 * n
                        a(f"s_add_u32 s11, s{sGrp[p//4]}, {(32 * ((p % 4) >> 1) + 16 * n + 8 * (p & 1)) * 896}")
                        vm.issue(('w', p), f"buffer_load_dwordx4 v[{d}:{d+3}], v{vWd}, s[{SRD_WD}:{SRD_WD+3}], s11 offen")
                    else:
                        dma(vm, ('w', p), vWd, SRD_WD, sGrp[p//4], (32 * ((p % 4) >> 1) + 16 * n + 8 * (p & 1)) * 896, sMP, WSLOT[p] + n * 1024)
                L.append(op)
        return L
    sCB = [68, 69, 15]
    sCF, sCH = 16, 17
    def cfrag(p, lc): return CF + 8 * p + 4 * lc
    def c_ops(b):
        L = []
        for p in (range(4 * b, 4 * b + 4) if b < 3 else (12, 13)):
            for lc in range(2):
                def op(p=p, lc=lc):
                    d = cfrag(p, lc)
                    sb, so = (sCF, 2048 * p) if p < 12 else (sCH, 2048 * (p - 12))
                    if cfg.crot and p < 12: sb, so = sCB[p // 4], 2048 * (p % 4)
                    a(f"s_add_u32 s11, s{sb}, {so}")
                    vm.issue(('c', b), f"buffer_load_dwordx4 v[{d}:{d+3}], v{(vCe, vCo)[lc]}, s[{SRD_WS}:{SRD_WS+3}], s11 offen sc1")
                L.append(op)
        return L
    def w_write(ps):
        vm.wait(('w', ps[-1]))
        base = WSLOT[ps[0]]
        a(f"v_add_u32 v{vT+4}, {base}, v{vPQ}")
        for p in ps:
            for n in range(2):
                d = STG + (p - 12) * 8 + 4 * n
                a(f"ds_write_b128 v{vT+4}, v[{d}:{d+3}] offset:{WSLOT[p] - base + 1024*n}")
    def colsum_reads(s):
        r = R[s % 3]
        a(f"s_add_u32 s11, s{sMW}, {r + OFF_WG}")
        a(f"v_add_u32 v{vT}, s11, v{vP}")
        a(f"s_add_u32 s11, s{sMB}, {r + OFF_BB}")
        a(f"v_add_u32 v{vT+1}, s11, v{vP}")
        a(f"v_xor_b32 v{vT+2}, 32, v{vT}")
        a(f"ds_read_b128 v[{RD}:{RD+3}], v{vT}")
        a(f"ds_read_b128 v[{RD+4}:{RD+7}], v{vT+2} offset:1024")
        a(f"ds_read_b128 v[{RD+8}:{RD+11}], v{vT} offset:8192")
        a(f"ds_read_b128 v[{RD+12}:{RD+15}], v{vT+2} offset:9216")
        a(f"ds_read_b128 v[{RD+16}:{RD+19}], v{vT+1}")
    def colsum_ops():
        L = ["s_waitcnt lgkmcnt(0)"]
        for n in range(4):
            for d in range(4):
                w = RD + 4 * n + d
                ac = CA + (n >> 1) * 8 + 2 * d
                L.append(f"v_lshlrev_b32 v{vT+2}, 16, v{w}")
                L.append(f"v_and_b32 v{vT+3}, s71, v{w}")
                L.append(f"v_add_f32 v{ac}, v{ac}, v{vT+2}")
                L.append(f"v_add_f32 v{ac+1}, v{ac+1}, v{vT+3}")
        for d in range(4):
            w = RD + 16 + d
            L.append(f"v_lshlrev_b32 v{vT+2}, 16, v{w}")
            L.append(f"v_and_b32 v{vT+3}, s71, v{w}")
            L.append(f"v_add_f32 v{vT+2}, v{vT+2}, v{vT+3}")
            L.append(f"v_add_f32 v{ACC}, v{ACC}, v{vT+2}")
        return L

    stage_ops = {}
    cdone = set()
    def tok_ops(toks):
        L = []
        for t in toks:
            if t[0] == 's':
                st = int(t[1])
                if st not in stage_ops: stage_ops[st] = issue_ops(st)
                lo, hi = (0, 13) if ':' not in t else map(int, t.split(':')[1].split('-'))
                L += stage_ops[st][lo:hi]
            elif t[0] == 'w': L += w_ops([int(t[1:])])
            elif t[0] == 'c':
                lo, hi = (0, 8) if ':' not in t else map(int, t.split(':')[1].split('-'))
                L += c_ops(int(t[1]))[lo:hi]
                cdone.add(int(t[1]))
            else: L.append(lambda t=t: special(t))
        return L
    def run_tokens(toks):
        for o in tok_ops(toks): o()
    def special(t):
        if True:
            if t == 'put':
                vm.wait('stats')
                a(f"s_lshl_b32 s11, s{S_W4}, 9")
                a(f"s_add_u32 s11, s11, {STATS_L}")
                a(f"v_lshl_add_u32 v{vT+4}, v0, 3, s11")
                a(f"ds_write_b64 v{vT+4}, v[20:21]")
                a(f"v_lshlrev_b32 v{vT+4}, 3, v0")
                a(f"v_add_u32 v{vT+4}, {ST2_L}, v{vT+4}")
                a(f"ds_write_b64 v{vT+4}, v[22:23]")
            elif t == 'e':
                a(f"s_add_u32 s12, s41, {16*896}")
                vm.issue('e', f"buffer_load_dwordx4 v[{XRAW}:{XRAW+3}], v20, s[{SRD_X}:{SRD_X+3}], s41 offen")
                vm.issue('e', f"buffer_load_dwordx4 v[{XRAW+4}:{XRAW+7}], v20, s[{SRD_X}:{SRD_X+3}], s12 offen")
                vm.issue('e', f"global_load_ushort v{KP+23}, v21, s[{P_DSK2}:{P_DSK2+1}]")
            elif t == 'm':
                a(f"v_lshlrev_b32 v{vP}, 4, v0")
                a("s_lshl_b32 s12, s2, 2")
                a(f"s_add_u32 s12, s12, s{S_W4}")
                a("s_lshl_b32 s12, s12, 10")
                a(f"s_add_u32 s12, s12, {192*3584}")
                vm.issue('m', f"buffer_load_dwordx4 v[140:143], v{vP}, s[{SRD_A}:{SRD_A+3}], s12 offen")
                vm.issue('m', f"buffer_load_dwordx4 v[140:143], v{vP}, s[{SRD_B}:{SRD_B+3}], s12 offen")
                a(f"s_and_b32 s12, s{S_W4}, 1")
                a("s_lshl_b32 s11, s2, 1")
                a("s_add_u32 s12, s12, s11")
                a("s_lshl_b32 s12, s12, 10")
                vm.issue('m', f"buffer_load_dwordx4 v[140:143], v{vP}, s[{SRD_C}:{SRD_C+3}], s12 offen")
            elif t == 'n':
                a("s_lshl_b32 s12, s2, 2")
                a(f"s_add_u32 s12, s12, s{S_W4}")
                a("s_lshl_b32 s12, s12, 8")
                a(f"s_add_u32 s12, s12, {384*3584}")
                a("s_mov_b64 exec, 0xffff")
                vm.issue('m', f"buffer_load_dwordx4 v[140:143], v{vP}, s[{SRD_A}:{SRD_A+3}], s12 offen")
                vm.issue('m', f"buffer_load_dwordx4 v[140:143], v{vP}, s[{SRD_B}:{SRD_B+3}], s12 offen")
                a("s_mov_b64 exec, -1")
            elif t == 'k':
                a("s_waitcnt lgkmcnt(0)")
            elif t == 'init':
                a(f"v_mov_b32 v26, 0")
                vm.issue('init', f"global_load_dword v5, v26, s[{P_DBG}:{P_DBG+1}] sc1")
            elif t == 'fetch':
                vm.wait('init')
                def cond():
                    a(f"v_readfirstlane_b32 s11, v5")
                    a(f"s_cmp_ge_u32 s11, {INIT_N}")
                spin_check(a, "L_init", [f"global_load_dword v5, v26, s[{P_DBG}:{P_DBG+1}] sc1"], cond, 8)
                if cfg.ts == 1 and cfg.tsset == 3: a(f"s_add_u32 s{TS0+18}, s73, 1")
                if cfg.crot:
                    a(f"s_and_b32 s11, s{S_SLOT}, 3")
                    a("s_lshl_b32 s11, s11, 1")
                    a("s_lshr_b32 s12, 0x924, s11")
                    for b in range(3):
                        a(f"s_bfe_u32 s11, s12, {(2 << 16) | (2 * b):#x}")
                        a("s_lshl_b32 s11, s11, 13")
                        a(f"s_add_u32 s{sCB[b]}, s11, s{sCF}")
                a(f"s_lshl_b32 s11, s{S_MT}, 8")
                a(f"s_lshl_b32 s12, s{S_W4}, 6")
                a("s_add_u32 s11, s11, s12")
                a(f"v_add_lshl_u32 v5, v0, s11, 3")
                a(f"s_lshl_b32 s12, s{S_M64}, 6")
                a(f"v_add_lshl_u32 v26, v0, s12, 3")
                a(f"s_mov_b32 s11, {WS_STATS:#x}")
                vm.issue('stats', f"buffer_load_dwordx2 v[20:21], v5, s[{SRD_WS}:{SRD_WS+3}], s11 offen sc1")
                vm.issue('stats', f"buffer_load_dwordx2 v[22:23], v26, s[{SRD_WS}:{SRD_WS+3}], s11 offen sc1")
            else: raise ValueError(t)
    win = cfg.win
    if cfg.n6 >= 0: win[cfg.n6] = win[cfg.n6] + ["n"]
    run_tokens([f"s0:0-{cfg.s0a}"])
    if cfg.s0a == 13:
        ts(1)
        ts.x(1, 6)
        run_tokens(win.get(-1, []))
        a("s_setprio 0")
    a(f"s_and_b32 s12, s{S_W4}, 1")
    a(f"v_lshlrev_b32 v{vP}, 4, v0")
    a(f"v_add_u32 v{vPQ}, s{sMP}, v{vP}")
    a(f"s_mul_i32 s14, s{S_W4}, 448")
    a(f"v_add_u32 v{vT}, s14, v{vA}")
    a(f"v_mul_u32_u24 v{vWd}, 896, v{vT}")
    a(f"v_lshl_add_u32 v{vWd}, v{vT+4}, 4, v{vWd}")
    a(f"s_lshl_b32 s14, s{S_NT}, 7")
    a(f"v_add_u32 v{vWd}, s14, v{vWd}")
    a(f"v_and_b32 v{vT+1}, 3, v0")
    a("s_mov_b32 s71, 0xffff0000")
    for k in range(17): a(f"v_mov_b32 v{ACC+k}, 0")
    srd(a, SRD_WS, P_WS, WS_SIZE)
    a(f"s_mov_b64 s[{P_DSK2}:{P_DSK2+1}], s[{P_DSK}:{P_DSK+1}]")
    srd(a, SRD_WD, P_WD, 1792 * 896)
    p2_rot(a, cfg, sRF, sBlk, sFlip)
    a(f"s_lshl_b32 s11, s{S_M64}, 1")
    a("s_add_u32 s40, s11, s12")
    a("s_lshl_b32 s12, s40, 5")
    a(f"v_lshrrev_b32 v{vT}, 2, v0")
    a(f"v_add_u32 v{vT}, s12, v{vT}")
    a(f"v_mul_u32_u24 v{vT}, 896, v{vT}")
    a(f"v_lshl_add_u32 v20, v{vT+1}, 4, v{vT}")
    a(f"v_lshrrev_b32 v{vT+2}, 5, v0")
    a(f"v_lshl_add_u32 v{vT}, v{vT+2}, 4, s12")
    a(f"s_lshr_b32 s13, s{S_W4}, 1")
    a("s_lshl_b32 s12, s13, 5")
    a(f"s_lshl_b32 s11, s{S_NT}, 6")
    a("s_add_u32 s11, s11, s12")
    a("s_lshl_b32 s41, s11, 1")
    a(f"v_and_b32 v{vT+3}, 31, v0")
    a(f"v_add_u32 v{vT+1}, s11, v{vT+3}")
    a(f"v_mul_u32_u24 v{vT}, 448, v{vT}")
    a(f"v_add_lshl_u32 v{vO}, v{vT}, v{vT+1}, 2")
    a(f"v_lshlrev_b32 v21, 1, v{vT+1}")
    a("s_lshl_b32 s12, s13, 10")
    a(f"v_add_u32 v{vCe}, s12, v{vP}")
    a(f"v_xor_b32 v{vCo}, 1024, v{vCe}")
    a(f"s_lshl_b32 s11, s{S_NT}, 1")
    a("s_add_u32 s11, s11, s13")
    a(f"s_mul_i32 s11, s11, {28*2048}")
    a(f"s_add_u32 s11, s11, {WS_CP:#x}")
    a(f"s_and_b32 s12, s{S_W4}, 1")
    a(f"s_lshl_b32 s{sCF}, s12, 15")
    a(f"s_add_u32 s{sCF}, s{sCF}, s11")
    a(f"s_lshl_b32 s{sCH}, s12, 12")
    a(f"s_add_u32 s{sCH}, s{sCH}, s11")
    a(f"s_add_u32 s{sCH}, s{sCH}, {12*2048}")
    a(f"v_bfe_u32 v{vT}, v0, 4, 1")
    a(f"v_lshlrev_b32 v{vT+1}, 2, v{vT}")
    a(f"v_xor_b32 v{vC}, v{vC}, v{vT+1}")
    a(f"v_lshlrev_b32 v{vC}, 5, v{vC}")
    a(f"v_lshl_add_u32 v{vC}, v{vT}, 9, v{vC}")
    a(f"v_lshl_add_u32 v{vC}, v{vT+2}, 8, v{vC}")
    a(f"s_add_u32 s11, s{sMB}, {CP_L}")
    a(f"v_add_u32 v{vC}, s11, v{vC}")
    a(f"s_lshl_b32 s11, s{S_W4}, 5")
    a(f"s_add_u32 s11, s11, {C_L + 512}")
    a(f"v_lshl_add_u32 v{vA}, v{vA}, 2, s11")
    ts.x(1, 8)
    LR, LI, CR, CI, L16R, L16I, PWR, PWI, L64R, L64I, LWR, LWI, W0R = [KP + k for k in range(13)]
    vTW, vTR, vCB, vStS, vAg, vPr, vF = [KP + k for k in range(16, 23)]
    a(f"s_lshl_b32 s21, s{S_NS}, 7")
    a(f"s_mul_i32 s22, s{S_MT}, 3584")
    a("s_add_u32 s22, s22, s21")
    a(f"s_add_u32 s22, s22, {WS_AGG - AGG_L:#x}")
    a(f"s_mov_b32 s23, {WS_AGG:#x}")
    a(f"s_mov_b32 s20, {WS_AGG + 4*3584:#x}")
    a(f"s_lshl_b32 s18, s{S_M64}, 10")
    a(f"s_and_b32 s11, s{S_W4}, 1")
    a("s_lshl_b32 s11, s11, 7")
    a("s_add_u32 s18, s18, s11")
    a(f"s_add_u32 s18, s18, {WS_FLAG + 512:#x}")
    a(f"s_lshl_b32 s11, s{S_MT}, 2")
    a(f"s_add_u32 s11, s11, s{S_W4}")
    a(f"s_mul_i32 s19, s11, {2*RT_BYTES}")
    a(f"s_lshl_b32 s11, s{S_NS}, 10")
    a("s_add_u32 s19, s19, s11")
    a(f"s_add_u32 s19, s19, {56*1024}")
    for g in range(7):
        a(f"s_add_u32 s12, s{sRF}, {g}")
        a("s_cmp_ge_u32 s12, 7")
        a("s_cselect_b32 s13, 7, 0")
        a("s_sub_u32 s12, s12, s13")
        a(f"s_mul_i32 s{sGrp[g]}, s12, {64*896}")
    a(f"s_add_u32 s11, s{sMX}, {R[2]}")
    a(f"v_add_u32 v{vT+4}, s11, v{vP}")
    kparts = {}
    if cfg.s0a < 13:
        run_tokens([f"s0:{cfg.s0a}-13"])
        ts(1)
        ts.x(1, 6)
        run_tokens(win.get(-1, []))
    a(f"s_setprio {cfg.wprio}")
    for s in range(7):
        vm.wait(('st', s))
        ts.x(2, 1 + s)
        a("s_barrier")
        ts.x(3, 1 + s)
        if s == 0: ts(2)
        if s == 0:
            for k in range(6): a(f"ds_read_b128 v[{KP+4*k}:{KP+4*k+3}], v{vT+4} offset:{1024*k}")
        if s == 6:
            QQ = 28
            for p in range(8): a(f"ds_read_b32 v{QQ+p}, v{vT+1} offset:{512*p}")
            a("s_waitcnt lgkmcnt(0)")
            for p in range(4): a(f"v_add_f32 v{QQ+p}, v{QQ+p}, v{QQ+4+p}")
            a(f"v_add_f32 v{QQ}, v{QQ}, v{QQ+2}")
            a(f"v_add_f32 v{QQ+1}, v{QQ+1}, v{QQ+3}")
            a(f"v_add_f32 v{QQ}, v{QQ}, v{QQ+1}")
            a(f"ds_write_b32 v{vT}, v{QQ}")
            npre = win[6].index("put") + 1 if "put" in win[6] else 2
            pre = tok_ops(win[6][:npre])
            for o in pre: o()
            a("s_waitcnt lgkmcnt(0)")
            a("s_barrier")
            a("s_setprio 0")
            run_tokens(win[6][npre:])
            continue
        segs = [[None, []]]
        for t in win.get(s, []):
            if t.startswith("cs"): segs.append([int(t[2:]), []])
            else: segs[-1][1].append(t)
        for cs, toks in segs:
            fl = []
            if cs is not None:
                vm.wait(('st', cs))
                colsum_reads(cs)
                fl = colsum_ops()
            if cs == 6:
                b = ACC
                for k in range(8): fl.append(f"v_permlane32_swap_b32 v{CA+k}, v{CA+8+k}")
                fl.append(f"v_add_f32_dpp v{b}, v{b}, v{b} quad_perm:[1,0,3,2] row_mask:0xf bank_mask:0xf")
                for k in range(8): fl.append(f"v_add_f32 v{CA+k}, v{CA+k}, v{CA+8+k}")
                fl.append(f"v_add_f32_dpp v{b}, v{b}, v{b} quad_perm:[2,3,0,1] row_mask:0xf bank_mask:0xf")
                for k in range(8): fl.append(f"v_add_f32_dpp v{CA+k}, v{CA+k}, v{CA+k} row_ror:8 row_mask:0xf bank_mask:0xf")
                fl.append(f"v_add_f32_dpp v{b}, v{b}, v{b} row_half_mirror row_mask:0xf bank_mask:0xf")
                fl.append(f"ds_write_b128 v{vC}, v[{CA}:{CA+3}]")
                fl.append(f"ds_write_b128 v{vC}, v[{CA+4}:{CA+7}] offset:16")
                fl.append(f"ds_write_b32 v{vA}, v{b}")
            ops = tok_ops(toks)
            per = max(1, -(-len(fl) // max(1, len(ops))))
            interleave(a, ops, fl, per)
        if s == 5:
            a(f"s_and_b32 s12, s{S_W4}, 1")
            a("s_lshl_b32 s12, s12, 8")
            a(f"v_lshl_add_u32 v{vT}, v0, 2, s12")
            a(f"v_add_u32 v{vT+1}, {CP_L}, v{vT}")
            a(f"v_add_u32 v{vT}, {C_L}, v{vT}")
            a("s_waitcnt lgkmcnt(0)")
            a("s_setprio 3")
    ts.x(2, 8)
    a("s_barrier")
    ts(3)
    ts.x(3, 8)
    a(f"v_bfe_u32 v{vT}, v0, 4, 1")
    a(f"v_lshlrev_b32 v{vT+2}, 11, v{vT}")
    a(f"v_lshrrev_b32 v{vT}, 5, v0")
    a(f"v_lshl_add_u32 v{vT+2}, v{vT}, 8, v{vT+2}")
    a(f"v_and_b32 v{vT}, 15, v0")
    a(f"v_lshl_add_u32 v{vT+2}, v{vT}, 4, v{vT+2}")
    a(f"s_add_u32 s11, s{sMP}, {SD}")
    a(f"v_add_u32 v{vT+2}, s11, v{vT+2}")
    vm.wait(('w', 11), "lgkmcnt(0)")
    a("s_barrier")
    X, Y, ST = 32, 48, CF
    HR, HI, T1, T2, CBR, CBI, G0, G1, QR, QI = 20, 21, 22, 23, 24, 25, 26, 28, 30, 31
    for k in range(8): a(f"ds_read_b128 v[{X+4*k}:{X+4*k+3}], v{vT+2} offset:{(k>>2)*4096 + (k&3)*512}")
    a(f"ds_read_b32 v{CBR}, v{vCB}")
    a(f"ds_read_b32 v{CBI}, v{vCB} offset:64")
    for k in range(8): a(f"ds_read_b128 v[{ST+4*k}:{ST+4*k+3}], v{vStS} offset:{16*k}")
    a(f"s_setprio {cfg.eprio}")
    a(f"v_lshrrev_b32 v1, 4, v0")
    a(f"v_sub_u32 v1, s{S_MT}, v1")
    a(f"v_cmp_le_i32 s[56:57], 1, v1")
    a(f"v_cmp_le_i32 s[58:59], 5, v1")
    a(f"v_lshlrev_b32 v5, 16, v{KP+23}")
    a(f"v_mov_b32 v3, v{vF}")
    vF = 3
    a("s_waitcnt lgkmcnt(0)")
    side = {}
    for r in range(16):
        if r in side: side[r]()
        m, rs = ST + 2 * r, ST + 2 * r + 1
        a(f"v_fma_f32 v{X+r}, -v{m}, v{CBR}, v{X+r}")
        a(f"v_fma_f32 v{Y+r}, -v{m}, v{CBI}, v{Y+r}")
        a(f"v_mul_f32 v{X+r}, v{X+r}, v{rs}")
        a(f"v_mul_f32 v{Y+r}, v{Y+r}, v{rs}")
        if r >= 1:
            pr, pi = (X, Y) if r == 1 else (HR, HI)
            a(f"v_fma_f32 v{T1}, -v{LI}, v{pi}, v{X+r}")
            a(f"v_fma_f32 v{T2}, v{LI}, v{pr}, v{Y+r}")
            a(f"v_fma_f32 v{HR}, v{LR}, v{pr}, v{T1}")
            a(f"v_fma_f32 v{HI}, v{LR}, v{pi}, v{T2}")
    z = CF
    a(f"v_mov_b32 v{z}, v{HR}"); a(f"v_mov_b32 v{z+1}, v{HI}")
    csq(a, z + 8, z + 9, L16R, L16I, z + 10)
    a(f"v_permlane32_swap_b32 v{HR}, v{z}")
    a(f"v_permlane32_swap_b32 v{HI}, v{z+1}")
    a(f"v_fma_f32 v{z}, -v{L16I}, v{HI}, v{z}")
    a(f"v_fma_f32 v{z+1}, v{L16I}, v{HR}, v{z+1}")
    a(f"v_fmac_f32 v{z}, v{L16R}, v{HR}")
    a(f"v_fmac_f32 v{z+1}, v{L16R}, v{HI}")
    a(f"v_mov_b32 v{z+2}, v{z}"); a(f"v_mov_b32 v{z+3}, v{z+1}")
    a(f"s_lshl_b32 s11, s{S_W4}, 7")
    a(f"v_add_u32 v{z+5}, s11, v{vAg}")
    a(f"v_permlane16_swap_b32 v{z}, v{z+2}")
    a(f"v_permlane16_swap_b32 v{z+1}, v{z+3}")
    a(f"v_fma_f32 v{z+2}, -v{z+9}, v{z+1}, v{z+2}")
    a(f"v_fma_f32 v{z+3}, v{z+9}, v{z}, v{z+3}")
    a(f"v_fmac_f32 v{z+2}, v{z+8}, v{z}")
    a(f"v_fmac_f32 v{z+3}, v{z+8}, v{z+1}")
    a(f"ds_write_b64 v{z+5}, v[{z+2}:{z+3}]")
    a("s_waitcnt lgkmcnt(0)")
    ts.x(2, 9)
    a(f"s_setprio {cfg.lprio}")
    a("s_barrier")
    ts(4)
    E = CF + 16
    for i in range(4): a(f"ds_read_b64 v[{E+2+2*i}:{E+3+2*i}], v{vAg} offset:{128*i}")
    a(f"v_mov_b32 v{E}, 0")
    a(f"v_mov_b32 v{E+1}, 0")
    a(f"v_and_b32 v{z+4}, 16, v0")
    a(f"v_cmp_ne_u32 s[12:13], 0, v{z+4}")
    for i in range(1, 4):
        e, p = E + 2 + 2 * i, E + 2 * i
        a(f"s_waitcnt lgkmcnt({3 - i})")
        a(f"v_fma_f32 v{e}, -v{L64I}, v{p+1}, v{e}")
        a(f"v_fma_f32 v{e+1}, v{L64I}, v{p}, v{e+1}")
        a(f"v_fmac_f32 v{e}, v{L64R}, v{p}")
        a(f"v_fmac_f32 v{e+1}, v{L64R}, v{p+1}")
    a(f"s_cmp_lg_u32 s{S_W4}, 0")
    a("s_cbranch_scc1 L_l_nopub")
    e = E + 8
    a(f"v_cmp_eq_u32 vcc, -1, v{e}")
    a(f"v_mov_b32 v{T1}, 0x7fc00000")
    a(f"v_cndmask_b32 v{e}, v{e}, v{T1}, vcc")
    a("s_mov_b64 exec, 0xffff")
    a(f"buffer_store_dwordx2 v[{e}:{e+1}], v{vAg}, s[{SRD_WS}:{SRD_WS+3}], s22 offen sc1")
    a("s_mov_b64 exec, -1")
    ts(5)
    a.label("L_l_nopub")
    a(f"v_cmp_lt_u32 vcc, 31, v0")
    a(f"v_cndmask_b32 v{z}, 0, v{z}, s[12:13]")
    a(f"v_cndmask_b32 v{z+1}, 0, v{z+1}, s[12:13]")
    a(f"v_fma_f32 v{HR}, -v{L16I}, v{z+1}, v{HR}")
    a(f"v_fma_f32 v{HI}, v{L16I}, v{z}, v{HI}")
    a(f"v_fmac_f32 v{HR}, v{L16R}, v{z}")
    a(f"v_fmac_f32 v{HI}, v{L16R}, v{z+1}")
    a(f"v_cndmask_b32 v{z}, v{z}, v{HR}, vcc")
    a(f"v_cndmask_b32 v{z+1}, v{z+1}, v{HI}, vcc")
    cmul(a, HR, HI, z, z + 1, CR, CI)
    a(f"s_bitcmp1_b32 s{S_W4}, 0")
    a("s_cselect_b64 vcc, -1, 0")
    a(f"v_cndmask_b32 v{QR}, v{E}, v{E+2}, vcc")
    a(f"v_cndmask_b32 v{QI}, v{E+1}, v{E+3}, vcc")
    a(f"v_cndmask_b32 v{T1}, v{E+4}, v{E+6}, vcc")
    a(f"v_cndmask_b32 v{T2}, v{E+5}, v{E+7}, vcc")
    a(f"s_bitcmp1_b32 s{S_W4}, 1")
    a("s_cselect_b64 vcc, -1, 0")
    a(f"v_cndmask_b32 v{QR}, v{QR}, v{T1}, vcc")
    a(f"v_cndmask_b32 v{QI}, v{QI}, v{T2}, vcc")
    ts.x(2, 10)
    thr[0] = cfg.thr
    lds = [f"buffer_load_dwordx2 v[{G0}:{G0+1}], v{vPr}, s[{SRD_WS}:{SRD_WS+3}], s23 offen sc1",
           f"buffer_load_dwordx2 v[{G1}:{G1+1}], v{vPr}, s[{SRD_WS}:{SRD_WS+3}], s20 offen sc1"]
    up = Rec()
    for r in range(16):
        up(f"v_mul_f32 v{T1}, v{CI}, v{Y+r}")
        up(f"v_mul_f32 v{T2}, v{CI}, v{X+r}")
        up(f"v_fma_f32 v{X+r}, v{CR}, v{X+r}, -v{T1}")
        up(f"v_fma_f32 v{Y+r}, v{CR}, v{Y+r}, v{T2}")
    vRd, vOne = 4, 2
    a(f"s_lshl_b32 s11, s{S_W4}, 2")
    a(f"s_add_u32 s11, s11, {CNT_L + 16}")
    a(f"v_mov_b32 v{vRd}, s11")
    a(f"v_mov_b32 v{vOne}, 1")
    thr[0] = None
    co = w_ops(range(22, 28)) + (c_ops(0) if cfg.c0early else [])
    interleave(a, co[:cfg.c1], up.L, 4)
    if cfg.agpos == 0:
        for t in lds: vm.issue('ag', t)
    w_write([12, 13, 14, 15])
    a(f"ds_write_b32 v{vRd}, v{vOne}")
    XV, STT, DS = 64, 80, 5
    TT = SACC + 32
    vHW = 1
    a(f"v_add_u32 v{vHW}, {HTS}, v{vPQ}")
    a(f"ds_write_b128 v{vHW}, v[{XRAW}:{XRAW+3}]")
    a(f"ds_write_b128 v{vHW}, v[{XRAW+4}:{XRAW+7}] offset:1024")
    a(f"v_lshrrev_b32 v{vT+3}, 5, v0")
    a(f"v_lshlrev_b32 v{vT+2}, 10, v{vT+3}")
    a(f"v_and_b32 v{vT}, 31, v0")
    a(f"v_lshl_add_u32 v{vT+2}, v{vT}, 1, v{vT+2}")
    a(f"s_add_u32 s11, s{sMP}, {HTS}")
    a(f"v_add_u32 v{vT+2}, s11, v{vT+2}")
    for r in range(16): a(f"ds_read_u16 v{XV+r}, v{vT+2} offset:{64*r}")
    if cfg.agpos == 1:
        for t in lds: vm.issue('ag', t)
    w_write([16, 17])
    def wrest():
        w_write([18, 19])
        w_write([20, 21])
        a(f"v_mov_b32 v{T1}, 2")
        a(f"ds_write_b32 v{vRd}, v{T1}")
    if not cfg.wl: wrest()
    co = co[cfg.c1:]
    ts(8)
    vm.wait('ag')
    def cond():
        a(f"v_cmp_eq_u32 vcc, -1, v{G0}")
        a("s_and_b64 s[48:49], vcc, s[56:57]")
        a(f"v_cmp_eq_u32 vcc, -1, v{G1}")
        a("s_and_b64 s[50:51], vcc, s[58:59]")
        a("s_or_b64 s[48:49], s[48:49], s[50:51]")
        a("s_cmp_eq_u64 s[48:49], 0")
    spin_check(a, "L_agg", lds, cond, 2)
    ts(6)
    SR, SI = CBR, CBI
    cmul(a, SR, SI, G0, G0 + 1, W0R, W0R + 1)
    cmul(a, T1, T2, G1, G1 + 1, W0R + 2, W0R + 3)
    a(f"v_cndmask_b32 v{SR}, 0, v{SR}, s[56:57]")
    a(f"v_cndmask_b32 v{SI}, 0, v{SI}, s[56:57]")
    a(f"v_cndmask_b32 v{T1}, 0, v{T1}, s[58:59]")
    a(f"v_cndmask_b32 v{T2}, 0, v{T2}, s[58:59]")
    a(f"v_add_f32 v{SR}, v{SR}, v{T1}")
    a(f"v_add_f32 v{SI}, v{SI}, v{T2}")
    for sw in ("v_permlane32_swap_b32", "v_permlane16_swap_b32"):
        a(f"v_mov_b32 v{T1}, v{SR}")
        a(f"v_mov_b32 v{T2}, v{SI}")
        a(f"{sw} v{SR}, v{T1}")
        a(f"{sw} v{SI}, v{T2}")
        a(f"v_add_f32 v{SR}, v{SR}, v{T1}")
        a(f"v_add_f32 v{SI}, v{SI}, v{T2}")
    a(f"v_fmac_f32 v{QR}, v{LWR}, v{SR}")
    a(f"v_fmac_f32 v{QI}, v{LWR}, v{SI}")
    a(f"v_fma_f32 v{QR}, -v{LWI}, v{SI}, v{QR}")
    a(f"v_fmac_f32 v{QI}, v{LWI}, v{SR}")
    a(f"v_fmac_f32 v{HR}, v{PWR}, v{QR}")
    a(f"v_fmac_f32 v{HI}, v{PWR}, v{QI}")
    a(f"v_fma_f32 v{HR}, -v{PWI}, v{QI}, v{HR}")
    a(f"v_fmac_f32 v{HI}, v{PWI}, v{QR}")
    pr, pi = HR, HI
    PK, HF = 96, 80
    rest = co[:cfg.c2]
    for r in range(16):
        if rest: rest.pop(0)()
        a(f"v_fma_f32 v{X+r}, -v{LI}, v{pi}, v{X+r}")
        a(f"v_fma_f32 v{Y+r}, v{LI}, v{pr}, v{Y+r}")
        a(f"v_fmac_f32 v{X+r}, v{LR}, v{pr}")
        a(f"v_fmac_f32 v{Y+r}, v{LR}, v{pi}")
        pr, pi = X + r, Y + r
    for k in range(8):
        a(f"v_cvt_pk_bf16_f32 v{PK+k}, v{X+2*k}, v{X+2*k+1}")
    a(f"ds_write_b128 v{vTW}, v[{PK}:{PK+3}]")
    a(f"ds_write_b128 v{vTW}, v[{PK+4}:{PK+7}] offset:16")
    for k in range(8):
        a(f"v_cvt_pk_bf16_f32 v{PK+8+k}, -v{Y+2*k}, -v{Y+2*k+1}")
    a(f"ds_write_b128 v{vTW}, v[{PK+8}:{PK+11}] offset:2048")
    a(f"ds_write_b128 v{vTW}, v[{PK+12}:{PK+15}] offset:2064")
    for q in range(2):
        for part in range(2):
            for j in range(2):
                d = HF + 8 * q + 4 * part + 2 * j
                a(f"ds_read_b64_tr_b16 v[{d}:{d+1}], v{vTR} offset:{(part*16 + 4*j)*128 + 64*(q ^ j)}")
    assert not rest
    a("s_waitcnt lgkmcnt(0)")
    for q in range(2):
        for part in range(2):
            d = HF + 8 * q + 4 * part
            a(f"s_add_u32 s11, s19, {q*RT_BYTES + part*HALF_BYTES}")
            vm.issue('hs', f"buffer_store_dwordx4 v[{d}:{d+3}], v{vP}, s[{SRD_WS}:{SRD_WS+3}], s11 offen{SP}")
    if cfg.wl: wrest()
    def flag2():
        vm.wait('hs')
        a("s_mov_b64 exec, 1")
        vm.issue('f', f"buffer_store_dword v{vOne}, v{vF}, s[{SRD_WS}:{SRD_WS+3}], 0 offen sc1")
        a("s_mov_b64 exec, -1")
        ts(7)
    if cfg.f2b == 0: flag2()
    for o in co[cfg.c2:] + (c_ops(2) if not cfg.clate else []): o()
    if cfg.f2b == 1: flag2()
    a(f"s_and_b32 s11, s{S_W4}, 1")
    a("s_lshl_b32 s11, s11, 8")
    a(f"s_add_u32 s11, s11, {ST2_L}")
    a(f"v_lshl_add_u32 v{vT+3}, v{vT+3}, 7, s11")
    STT = 32
    for k in range(8): a(f"ds_read_b128 v[{STT+4*k}:{STT+4*k+3}], v{vT+3} offset:{16*k}")
    for r in range(16): a(f"v_lshlrev_b32 v{XV+r}, 16, v{XV+r}")
    a("s_waitcnt lgkmcnt(0)")
    a("s_setprio 0")
    def rnd_pair(r0, r1):
        a(f"v_cvt_pk_bf16_f32 v{r1}, v{r0}, v{r1}"); a(f"v_lshlrev_b32 v{r0}, 16, v{r1}"); a(f"v_and_b32 v{r1}, s71, v{r1}")
    for r in range(16): a(f"v_sub_f32 v{TT+r}, v{XV+r}, v{STT+2*r}")
    for k in range(8): rnd_pair(TT + 2 * k, TT + 2 * k + 1)
    a(f"v_mov_b32 v{T2}, 3")
    vm.wait(('w', 27))
    a(f"ds_write_b32 v{vRd}, v{T2}")
    for r in range(16): a(f"v_mul_f32 v{TT+r}, v{TT+r}, v{STT+2*r+1}")
    for k in range(8): rnd_pair(TT + 2 * k, TT + 2 * k + 1)
    for r in range(16): a(f"v_mul_f32 v{TT+r}, v{TT+r}, v{DS}")
    for k in range(8): rnd_pair(TT + 2 * k, TT + 2 * k + 1)
    def poll(name, off):
        sspin(a, name, [f"s_load_dwordx16 s[20:35], s[{P_WS}:{P_WS+1}], s18 glc"], pcond, cfg.psleep)
    if True:
        def pcond():
            for k in range(0, 12, 4): a(f"s_and_b64 s[{20+k}:{21+k}], s[{20+k}:{21+k}], s[{22+k}:{23+k}]")
            a("s_and_b64 s[20:21], s[20:21], s[24:25]")
            a("s_and_b64 s[28:29], s[28:29], s[32:33]")
            a("s_and_b64 s[20:21], s[20:21], s[28:29]")
            a("s_and_b32 s20, s20, s21")
            a("s_cmp_eq_u32 s20, 1")
    a(f"s_mul_i32 s57, s40, {RT_BYTES}")
    a("s_xor_b32 s11, s40, 1")
    a(f"s_mul_i32 s56, s11, {RT_BYTES}")
    a(f"s_lshr_b32 s11, s{S_W4}, 1")
    a(f"s_mul_i32 s11, s11, {HALF_BYTES}")
    a(f"s_add_u32 s11, s11, {56*1024}")
    a("s_add_u32 s56, s56, s11")
    a("s_add_u32 s57, s57, s11")
    a(f"s_and_b32 s12, s{S_W4}, 1")
    a("s_lshl_b32 s13, s12, 14")
    for b in range(3):
        if cfg.crot:
            a(f"s_sub_u32 s11, s{sCB[b]}, s{sCF}")
            a("s_lshr_b32 s11, s11, 1")
            a(f"s_add_u32 s{52+b}, s13, s11")
        else: a(f"s_add_u32 s{52+b}, s13, {b*4096}")
    a("s_lshl_b32 s12, s12, 11")
    a(f"s_add_u32 s55, s12, {12*1024}")
    srd(a, 60, P_OUT, 2048 * 1792)
    vW1, vW2, vCn, vCv = 1, 2, 9, 4
    vR = [3, 12, 13, 14]
    a(f"v_add_u32 v{vW1}, {PH1}, v{vPQ}")
    a(f"v_add_u32 v{vW2}, {PH2}, v{vPQ}")
    a(f"v_mov_b32 v{vCn}, {CNT_L}")
    for (reg, xr, base) in ((vR[0], 1, PH1), (vR[1], 3, PH1 + 4096), (vR[2], 2, PH2)):
        a(f"s_xor_b32 s11, s{S_W4}, {xr}")
        a(f"s_mul_i32 s11, s11, {Q}")
        a(f"s_add_u32 s11, s11, {base}")
        a(f"v_add_u32 v{reg}, s11, v{vP}")
    a(f"v_add_u32 v{vR[3]}, {GA}, v{vPQ}")
    ts.x(2, 11)
    ts.x(7, 11)
    AR = list(range(16, 64, 4))
    NA = len(AR)
    PO = [4, 5, 6, 7, 12, 13, 0, 1, 2, 3, 8, 9, 10, 11]
    def aload(n):
        lr, p = n // 14, PO[n % 14]
        if p % 4 == 0: a(f"s_add_u32 s58, s{56+lr}, s{52 + p//4}")
        d = AR[n % NA]
        vm.issue(('a', n), f"buffer_load_dwordx4 v[{d}:{d+3}], v{vP}, s[{SRD_WS}:{SRD_WS+3}], s58 offen offset:{(p%4)*1024}{AP}")
    def cnt_wait(name, off):
        a("s_mov_b32 s73, 0")
        a.label(name)
        a("s_waitcnt lgkmcnt(0)")
        a(f"v_readfirstlane_b32 s11, v{vCv}")
        a("s_cmp_ge_u32 s11, 4")
        a(f"s_cbranch_scc1 {name}ok")
        a("s_add_u32 s73, s73, 1")
        a(f"s_cmp_ge_u32 s73, {SPIN_MAX}")
        a(f"s_cbranch_scc1 {name}ok")
        a("s_sleep 1")
        a(f"ds_read_b32 v{vCv}, v{vCn} offset:{off}")
        a(f"s_branch {name}")
        a.label(name + "ok")
        a("s_nop 7")
    assert cfg.clate == 2 and cdone == {1, 3}
    if cfg.gate == 0: poll("L_ps", 128)
    if cfg.gate < 2:
        a(f"ds_read_b32 v{vCv}, v{vCn} offset:4")
        cnt_wait("L_l_c0", 4)
    if cfg.sprio: a(f"s_setprio {cfg.sprio}")
    cc = c_ops(0) + c_ops(2)
    for o in cc[:cfg.c0n]: o()
    if cfg.gate != 0: poll("L_ps", 128)
    ts(9)
    ts.x(7, 1)
    seq = [(lambda n=n: aload(n)) for n in range(6)] + cc[cfg.c0n:8] + [(lambda n=n: aload(n)) for n in range(6, 10)] + cc[max(8, cfg.c0n):] + [(lambda n=n: aload(n)) for n in range(10, NA)]
    npre = cfg.ramp if cfg.ramp else len(seq)
    for o in seq[:npre]: o()
    seq = seq[npre:]
    a("s_setprio 0")
    ts.x(7, 2)
    own = []
    assert cfg.dfr <= NA
    for n in range(28):
        lr, p = n // 14, PO[n % 14]
        assert ('a', n) in vm.q
        vm.wait(('a', n))
        assert ('c', min(p // 4, 3)) not in vm.q
        if n in (0, 7, 14, 21): ts.x(7, 3 + n // 7)
        d = AR[n % NA]
        for lc in (1, 0):
            acc = SACC + 32 * lr + 16 * lc
            c = "0" if (n % 14 == 0 and not (lr == 1 and lc == 0)) else f"v[{acc}:{acc+15}]"
            f = cfrag(p, lc)
            m = f"v_mfma_f32_32x32x16_bf16 v[{acc}:{acc+15}], v[{d}:{d+3}], v[{f}:{f+3}], {c}"
            if lc == 0 and n >= 28 - cfg.dfr: own.append(m)
            else: a(m)
        if n + NA < 28: seq.append(lambda n=n: aload(n + NA))
        for _ in range(3):
            if seq: seq.pop(0)()
        if cfg.gate == 2 and n == 14: a(f"ds_read_b32 v{vCv}, v{vCn} offset:4")
        if cfg.gate == 2 and n == 15: cnt_wait("L_l_c0", 4)
        if 16 <= n < 24:
            k = n - 16
            a(f"ds_write_b128 v{vW1}, v[{SACC+4*k}:{SACC+4*k+3}] offset:{1024*k}")
    ts.x(7, 7)
    def ownm(n=1):
        for _ in range(n):
            if own: a(own.pop(0))
    ownm(1)
    for k in range(4):
        if k < cfg.dfb - 1: ownm(1)
        a(f"ds_write_b128 v{vW2}, v[{SACC+48+4*k}:{SACC+48+4*k+3}] offset:{1024*k}")
    ownm(max(0, cfg.dfb - 5))
    a("s_waitcnt lgkmcnt(0)")
    ts.x(7, 9)
    a("s_barrier")
    ts(11)
    ts.x(7, 10)
    def rx(w, r):
        return (SACC + r, SACC + 16 + r, SACC + 48 + r, cfrag(r // 4, 1) + r % 4)[w]
    for k in range(4):
        for w in range(4):
            a(f"ds_read_b128 v[{rx(w,4*k)}:{rx(w,4*k)+3}], v{vR[w]} offset:{1024*k}")
        ownm(1)
    for k in range(4):
        a(f"s_waitcnt lgkmcnt({12 - 4*k})")
        rr = range(4 * k, 4 * k + 4)
        for r in rr: a(f"v_add_f32 v{rx(0,r)}, v{rx(0,r)}, v{rx(1,r)}")
        ownm(1)
        for r in rr: a(f"v_add_f32 v{rx(0,r)}, v{rx(0,r)}, v{rx(2,r)}")
        ownm(1)
        for r in rr: a(f"v_fmac_f32 v{XV+r}, v{rx(0,r)}, v{rx(3,r)}")
    ownm(100)
    ts(10)
    for r in range(16):
        a(f"v_fmac_f32 v{XV+r}, v{TT+r}, v{rx(3,r)}")
        if r % 2 == 0: a(f"s_mov_b32 s11, {r*1792}")
        a(f"buffer_store_dword v{XV+r}, v{vO}, s[60:63], s11 offen offset:{(r%2)*1792}{OP}")
    if cfg.ts:
        a("s_waitcnt vmcnt(0)")
        ts(12)
    if cfg.padto:
        a.label("L_pad")
        a("s_memrealtime s[98:99]")
        a("s_waitcnt lgkmcnt(0)")
        a("s_sub_u32 s98, s98, s100")
        a(f"s_cmp_lt_u32 s98, {cfg.padto}")
        a("s_cbranch_scc1 L_pad")
    ts.dump(16, 17, 1)
    a("s_endpgm")

def gen_consumer(a, cfg, ts):
    if cfg.al >= 2: a.raw(".p2align 12")
    a.label("L_consumer")
    SP = ["", " sc1"][cfg.spol]
    AP = ['', ' sc1', ' sc1 nt', ' sc0 sc1', ' sc0', ' nt'][cfg.apol]
    vm = VM(a)
    XA = [1, 2]; BA = [3, 4]; WA = [5, 6, 7, 8]
    vHS, vOne, vL16, vStF, vCL, vF, vPQ, vSo, vCn, vRd, vWB, MM = 9, 10, 11, 12, 13, 14, 15, 16, 17, 18, 19, 20
    XF = [24, 40]
    def RS(j): return 56 + 4 * j
    ACC = 96
    def G(ft, ro): return ACC + 32 * ft + 8 * ro
    def U(ft, ro): return G(ft, ro) + 64
    def S(part, ro): return ACC + 128 + 16 * part + 4 * ro
    vI, vH, t0, t1, t2, vG = 24, 25, 26, 27, 28, 29
    a(f"v_and_b32 v{vI}, 15, v0")
    a(f"v_lshrrev_b32 v{vH}, 5, v0")
    a(f"v_lshrrev_b32 v{vG}, 4, v0")
    a(f"v_bfe_u32 v{t0}, v0, 1, 3")
    a(f"v_xor_b32 v{t0}, v{t0}, v{vG}")
    a(f"v_lshlrev_b32 v{t0}, 4, v{t0}")
    a(f"v_lshl_add_u32 v{t0}, v{vI}, 7, v{t0}")
    a(f"s_lshl_b32 s11, s{S_W4}, 13")
    for ks in range(2):
        a(f"v_xor_b32 v{t1}, {64*ks}, v{t0}")
        a(f"v_add_u32 v{XA[ks]}, s11, v{t1}")
        a(f"v_add_u32 v{BA[ks]}, {OFF_BB}, v{t1}")
    a(f"v_lshlrev_b32 v{vHS}, 4, v{vI}")
    a(f"v_lshl_add_u32 v{vHS}, v{vG}, 9, v{vHS}")
    a(f"v_bfe_u32 v{t0}, v0, 2, 2")
    a(f"v_lshlrev_b32 v{t1}, 7, v{t0}")
    a(f"v_lshrrev_b32 v{t0}, 1, v{t0}")
    a(f"v_lshl_add_u32 v{t1}, v{t0}, 6, v{t1}")
    a(f"v_bfe_u32 v{t0}, v0, 4, 1")
    a(f"v_lshl_add_u32 v{t1}, v{t0}, 5, v{t1}")
    a(f"v_and_b32 v{t2}, 3, v0")
    a(f"v_lshl_add_u32 v{t1}, v{t2}, 3, v{t1}")
    a(f"v_lshl_add_u32 v{WA[0]}, v{vG}, 10, v{t1}")
    a(f"v_add_u32 v{WA[0]}, {OFF_WG}, v{WA[0]}")
    for f in range(1, 4): a(f"v_xor_b32 v{WA[f]}, {32*f}, v{WA[0]}")
    a(f"s_mul_i32 s62, s{S_W4}, {Q}")
    a(f"s_lshr_b32 s59, s{S_W4}, 1")
    a(f"s_and_b32 s63, s{S_W4}, 1")
    a("s_lshl_b32 s11, s59, 6")
    a(f"v_lshl_add_u32 v{vWB}, v{vH}, 9, v{t1}")
    a(f"v_xor_b32 v{vWB}, s11, v{vWB}")
    a(f"v_add_u32 v{vWB}, s62, v{vWB}")
    a("s_waitcnt lgkmcnt(0)")
    a(f"s_lshl_b32 s11, s{S_NS}, 5")
    a(f"s_load_dwordx8 s[32:39], s[{P_LRE}:{P_LRE+1}], s11")
    a(f"s_load_dwordx8 s[64:71], s[{P_LDT}:{P_LDT+1}], s11")
    a(f"s_load_dwordx8 s[24:31], s[{P_LIM}:{P_LIM+1}], s11")
    for k in range(4 if cfg.zpeel else 160): a(f"v_mov_b32 v{ACC+k}, 0")
    a(f"v_mov_b32 v{vCn}, {CNT_L}")
    a(f"ds_write_b128 v{vCn}, v[{ACC}:{ACC+3}]")
    a(f"ds_write_b128 v{vCn}, v[{ACC}:{ACC+3}] offset:16")
    a(f"v_bfe_u32 v{t0}, v0, 2, 1")
    a(f"v_lshl_add_u32 v{t0}, v{t0}, 4, v{t2}")
    a(f"v_bfe_u32 v{t1}, v0, 3, 1")
    a(f"v_lshl_add_u32 v{t0}, v{t1}, 2, v{t0}")
    a(f"s_lshl_b32 s11, s{S_W4}, 9")
    a(f"s_add_u32 s11, s11, {STATS_L}")
    a(f"v_lshl_add_u32 v{vStF}, v{t0}, 3, s11")
    a(f"v_lshlrev_b32 v{vL16}, 4, v0")
    a(f"v_add_u32 v{vPQ}, s62, v{vL16}")
    a(f"v_lshlrev_b32 v{vCL}, 4, v{vG}")
    a(f"v_add_u32 v{vCL}, {C_L}, v{vCL}")
    a(f"v_mov_b32 v{vOne}, 1")
    a(f"s_lshl_b32 s11, s{S_W4}, 2")
    a(f"s_add_u32 s11, s11, {CNT_L + 16}")
    a(f"v_mov_b32 v{vRd}, s11")
    a("s_lshl_b32 s11, s63, 8")
    a(f"s_add_u32 s11, s11, {ST2_L}")
    a(f"v_lshl_add_u32 v{vSo}, v{vH}, 7, s11")
    a(f"s_lshl_b32 s13, s{S_MT}, 2")
    a(f"s_add_u32 s13, s13, s{S_W4}")
    a(f"s_mul_i32 s56, s13, {2*RT_BYTES}")
    a(f"s_cmp_ge_u32 s{S_NS}, 14")
    a(f"s_cselect_b32 s11, {HALF_BYTES - 56*1024}, 0")
    a(f"s_lshl_b32 s12, s{S_NS}, 12")
    a("s_add_u32 s11, s11, s12")
    a("s_add_u32 s56, s56, s11")
    a(f"s_add_u32 s57, s56, {RT_BYTES}")
    a("s_lshl_b32 s11, s13, 10")
    flag_index(a, 12, 14, 7)
    a("s_add_u32 s11, s11, s12")
    a(f"s_add_u32 s11, s11, {WS_FLAG:#x}")
    a(f"v_mov_b32 v{vF}, s11")
    a(f"s_lshl_b32 s55, s{S_M64}, 10")
    a(f"s_add_u32 s55, s55, {WS_FLAG:#x}")
    a(f"s_lshl_b32 s11, s{S_W4}, 7")
    a("s_add_u32 s55, s55, s11")
    a(f"s_mul_i32 s12, s59, {HALF_BYTES}")
    a(f"s_mul_i32 s13, s63, {28*1024}")
    a("s_add_u32 s12, s12, s13")
    a(f"s_lshl_b32 s11, s{S_M64}, 1")
    a("s_add_u32 s11, s11, s63")
    a(f"s_mul_i32 s52, s11, {RT_BYTES}")
    a("s_add_u32 s52, s52, s12")
    a("s_xor_b32 s11, s11, 1")
    a(f"s_mul_i32 s51, s11, {RT_BYTES}")
    a("s_add_u32 s51, s51, s12")
    p2_rot(a, cfg, 60, 61, 58)
    a("s_mov_b32 s12, 0x00030003")
    a("s_mov_b32 s13, 0x00030003")
    a("s_waitcnt lgkmcnt(0)")
    K, KP = 40, 64
    for k in range(8):
        a(f"s_lshl_b64 exec, s[12:13], {2*k}")
        for m, sb in enumerate((32, 24, 64)): a(f"v_mov_b32 v{K+m}, s{sb+k}")
    a("s_mov_b64 exec, -1")
    a(f"v_and_b32 v{K+3}, 1, v0")
    a(f"v_lshlrev_b32 v{K+3}, 4, v{K+3}")
    for m in range(3): a(f"v_lshrrev_b32 v{K+m}, v{K+3}, v{K+m}")
    srd(a, SRD_WS, P_WS, WS_SIZE)
    ssm_park(a, K, KP, 62)
    a(f"v_mov_b32 v{KP+23}, 0")
    a(f"s_lshl_b32 s11, s{S_W4}, 13")
    a(f"s_add_u32 s11, s11, {R[2]}")
    a(f"v_add_u32 v{K}, s11, v{vL16}")
    for k in range(6): a(f"ds_write_b128 v{K}, v[{KP+4*k}:{KP+4*k+3}] offset:{1024*k}")
    a("s_waitcnt lgkmcnt(0)")
    ts(1)

    lq = []
    def ds_issue(tag, t):
        a(t)
        if t.startswith("ds_"): lq.append(tag)
    def ds_wait(tag):
        idx = max((i for i, t in enumerate(lq) if t == tag), default=None)
        if idx is None: return None
        n = len(lq) - 1 - idx
        del lq[:idx + 1]
        if n > 12:
            del lq[:len(lq) - 12]
            n = 12
        return f"lgkmcnt({n})"
    def dwait(tag):
        w = ds_wait(tag)
        if w: a(f"s_waitcnt {w}")
    COLS = [('s', 0), ('s', 1)] + [(gu, f) for f in range(4) for gu in range(2)]
    def xreads(k):
        return [(('x', k), f"ds_read_b128 v[{XF[k]+4*ro}:{XF[k]+4*ro+3}], v{XA[k]} offset:{2048*ro}") for ro in range(4)]
    def creads(col, k, sl):
        d = RS(sl)
        if col[0] == 's': return [(('c', sl), f"ds_read_b128 v[{d}:{d+3}], v{BA[k]} offset:{2048*col[1]}")]
        return [(('c', sl), f"ds_read_b64_tr_b16 v[{d+2*jj}:{d+2*jj+1}], v{WA[col[1]]} offset:{col[0]*8192 + k*4096 + jj*512}") for jj in range(2)]
    def group(col, k, sl, zero=False):
        w = RS(sl)
        L = []
        for ro in range(4):
            x = XF[k] + 4 * ro
            if col[0] == 's': d, A_, B_ = S(col[1], ro), x, w
            else: d, A_, B_ = (G, U)[col[0]](col[1] >> 1, ro) + 4 * (col[1] & 1), w, x
            c = "0" if zero else f"v[{d}:{d+3}]"
            L.append(f"v_mfma_f32_16x16x32_bf16 v[{d}:{d+3}], v[{A_}:{A_+3}], v[{B_}:{B_+3}], {c}")
        return L
    def kstep(k, first, last, nxt, zero=False):
        for j in range(first, last):
            if j == 0: dwait(('x', k))
            dwait(('c', j))
            for i, m in enumerate(group(COLS[j], k, j, zero)):
                a(m)
                done = j if i == 3 else j - 1
                for _r in range(2 if (k == 1 and cfg.nbar > 4) else 1):
                    if nxt and nxt[0][0] <= done:
                        _, tag, t = nxt.pop(0); ds_issue(tag, t)
    def nreads(k):
        L = [(-1, tg, t) for tg, t in xreads(k)]
        for j in range(10): L += [(j, tg, t) for tg, t in creads(COLS[j], k, j)]
        return L
    def flush(nxt):
        for _, tag, t in nxt: ds_issue(tag, t)
    NBAR = cfg.nbar
    a(f"s_setprio {cfg.cprio}")
    a("s_mov_b32 s72, 0")
    a("s_mov_b32 s74, 0")
    a("s_barrier")
    ts(2)
    flush(nreads(0))
    lq0 = list(lq)
    nx = nreads(1)
    kstep(0, 0, 10, nx, zero=True); flush(nx)
    lq1 = list(lq)
    a("s_branch L_c_k1")
    a.label("L_c_loop")
    lq[:] = lq0
    nx = nreads(1)
    kstep(0, 0, 10, nx); flush(nx)
    assert lq == lq1
    a.label("L_c_k1")
    kstep(1, 0, 1, [])
    a("s_add_u32 s74, s74, 1")
    a("s_cmp_eq_u32 s74, 3")
    a("s_mov_b32 s75, 53248")
    a(f"s_cmov_b32 s75, {(-106496) & 0xffffffff:#x}")
    a("s_cselect_b32 s74, 0, s74")
    adds = [(9, None, None)]
    upd = [f"v_add_u32 v{v}, s75, v{v}" for v in XA + BA + WA]
    for j in range(1, NBAR):
        dwait(('c', j))
        for m in group(COLS[j], 1, j):
            a(m)
            if upd: a(upd.pop(0))
    for t in upd: a(t)
    a("s_add_u32 s72, s72, 1")
    a("s_cmp_eq_u32 s72, 6")
    a("s_waitcnt lgkmcnt(0)")
    del lq[:]
    a("s_barrier")
    hist = list(a.hist)
    a("s_cbranch_scc1 L_c_last")
    nx = nreads(0)
    kstep(1, NBAR, 10, nx); flush(nx)
    assert lq == lq0
    a("s_branch L_c_loop")
    a.label("L_c_last")
    a.hist = hist
    if cfg.cprio != 2: a("s_setprio 2")
    del lq[:]
    SEQ = [((gu, 2 * ft + h), k) for ft in range(2) for k in range(2) for h in range(2) for gu in range(2)] + [(('s', pt), k) for k in range(2) for pt in range(2)]
    NR = 6
    nx = [(-1, tg, t) for tg, t in xreads(0)]
    for n in range(NR): nx += [(n, tg, t) for tg, t in creads(SEQ[n][0], SEQ[n][1], n)]
    kstep(1, NBAR, 10, nx); flush(nx)
    CH = RS(6)
    def cread(tag, dst, ft):
        for gu in range(2):
            for h in range(2):
                d = dst + 8 * gu + 4 * h
                ds_issue(tag, f"ds_read_b128 v[{d}:{d+3}], v{vCL} offset:{256*gu + 64*(2*ft+h)}")
    def hstore(ft, ro):
        g = G(ft, ro)
        vm.issue('h', f"buffer_store_dwordx4 v[{g}:{g+3}], v{vHS}, s[{SRD_WS}:{SRD_WS+3}], s{56 + (ro >> 1)} offen offset:{2048*ft + 256*(ro & 1)}{SP}")
    def unit_plain(ft, ro, ch):
        g, u = G(ft, ro), U(ft, ro)
        L = []
        for k in range(8): L.append(f"v_fmac_f32 v{g+k}, v{MM+ro}, v{ch+k}")
        for k in range(8): L.append(f"v_fmac_f32 v{u+k}, v{MM+ro}, v{ch+8+k}")
        for k in range(8): L.append(f"v_max_f32 v{g+k}, 0, v{g+k}")
        for k in range(8): L.append(f"v_mul_f32 v{u+k}, v{u+k}, v{g+k}")
        for k in range(4): L.append(f"v_cvt_pk_bf16_f32 v{g+k}, v{u+2*k}, v{u+2*k+1}")
        L.append(lambda: hstore(ft, ro))
        return L
    def unit_pk(ft, ro, ch, side):
        g, u = G(ft, ro), U(ft, ro)
        mp = MM + (ro & 2)
        sel = f"op_sel:[{ro & 1},0,0] op_sel_hi:[{ro & 1},1,1]"
        for k in range(4):
            a(f"v_pk_fma_f32 v[{g+2*k}:{g+2*k+1}], v[{mp}:{mp+1}], v[{ch+2*k}:{ch+2*k+1}], v[{g+2*k}:{g+2*k+1}] {sel}")
            if side: a(side.pop(0))
        for k in range(4):
            a(f"v_pk_fma_f32 v[{u+2*k}:{u+2*k+1}], v[{mp}:{mp+1}], v[{ch+8+2*k}:{ch+8+2*k+1}], v[{u+2*k}:{u+2*k+1}] {sel}")
            a(f"v_max_f32 v{g+2*k}, 0, v{g+2*k}")
            a(f"v_max_f32 v{g+2*k+1}, 0, v{g+2*k+1}")
        for k in range(4): a(f"v_pk_mul_f32 v[{u+2*k}:{u+2*k+1}], v[{u+2*k}:{u+2*k+1}], v[{g+2*k}:{g+2*k+1}]")
        for k in range(4): a(f"v_cvt_pk_bf16_f32 v{g+k}, v{u+2*k}, v{u+2*k+1}")
    ep = [lambda: dwait('c0')] + [f"v_xor_b32 v{MM+k}, 0x80000000, v{MM+k}" for k in range(4)]
    for ro in range(cfg.nfill): ep += unit_plain(0, ro, CH)
    def fill(n):
        while n > 0 and ep:
            t = ep.pop(0)
            if callable(t): t()
            else: a(t)
            n -= 1
    pend = list(xreads(1))
    for n in range(20):
        col, k = SEQ[n]
        if n in (0, 4): dwait(('x', k))
        dwait(('c', n % NR))
        if n == 19:
            assert not pend
            a("s_barrier")
        for i, m in enumerate(group(col, k, n % NR)):
            a(m)
            if i == 3 and n + NR < 20: pend += creads(SEQ[n + NR][0], SEQ[n + NR][1], n % NR)
            got = 0
            if pend: ds_issue(*pend.pop(0)); got = 1
            if n > 8 or (n == 8 and i >= 2): fill(cfg.fper16 - got)
        if n == cfg.c2u:
            a("s_barrier")
            for ro in range(4): ds_issue('c0', f"ds_read_b32 v{MM+ro}, v{vStF} offset:{(ro >> 1)*256 + (ro & 1)*64}")
            cread('c0', CH, 0)
        if n == 17: cread('c1', XF[0], 1)
    ts(3)
    fill(1000)
    dump = [f"ds_write_b128 v{vPQ}, v[{S(0,0)+4*k}:{S(0,0)+4*k+3}] offset:{SD + 1024*k}" for k in range(8)]
    WB = {0: [1, 2], 1: [3, 4], 2: [5, 6]}
    for rg in range(3):
        a(f"v_add_u32 v{WB[rg][0]}, {R[rg]}, v{vWB}")
        a(f"v_xor_b32 v{WB[rg][1]}, 64, v{WB[rg][0]}")
    dwait('c1')
    units = [(0, ro, CH) for ro in range(cfg.nfill, 4)] + [(1, ro, XF[0]) for ro in range(4)]
    for n, (ft, ro, ch) in enumerate(units):
        unit_pk(ft, ro, ch, dump)
        if n == 1:
            a("s_waitcnt lgkmcnt(0)")
            a("s_barrier")
        hstore(ft, ro)
    del lq[:]
    ts(4)
    BR, NB = 160, 12
    def breads(p):
        sl = WSLOT[p]
        rg = max(k for k in range(3) if R[k] <= sl)
        L = []
        for lc in range(2):
            for jj in range(2):
                d = BR + 8 * (p % NB) + 4 * lc + 2 * jj
                L.append(f"ds_read_b64_tr_b16 v[{d}:{d+1}], v{WB[rg][lc]} offset:{sl - R[rg] + jj*1024}")
        return L
    for p in range(NB):
        for t in breads(p): a(t)
    def flag1():
        vm.wait('h')
        a("s_setprio 3")
        a("s_mov_b64 exec, 1")
        vm.issue('f', f"buffer_store_dword v{vOne}, v{vF}, s[{SRD_WS}:{SRD_WS+3}], 0 offen sc1")
        a("s_mov_b64 exec, -1")
        ts(6)
    if cfg.fpre: flag1()
    a("s_waitcnt lgkmcnt(0)")
    a("s_barrier")
    ts(5)
    if not cfg.fpre: flag1()
    AF = 96
    AR = list(range(24, 96, 4))
    NA = len(AR)
    def aload(n):
        p, lr = n // 2, n % 2
        if n % 8 == 0:
            a(f"s_lshl_b32 s11, s60, 12")
            a(f"s_add_u32 s54, s11, s52")
            a(f"s_add_u32 s53, s11, s51")
            a(f"s_add_u32 s60, s60, 1")
            a(f"s_cmp_eq_u32 s60, 7")
            a(f"s_cselect_b32 s60, 0, s60")
        d = AR[n % NA]
        vm.issue(('a', n), f"buffer_load_dwordx4 v[{d}:{d+3}], v{vL16}, s[{SRD_WS}:{SRD_WS+3}], s{54 - lr} offen offset:{(p%4)*1024}{AP}")
    def cond():
        a("s_and_b64 s[16:17], s[16:17], s[18:19]")
        a("s_and_b64 s[16:17], s[16:17], s[20:21]")
        a("s_and_b32 s16, s16, s17")
        a("s_and_b32 s16, s16, s22")
        a("s_cmp_eq_u32 s16, 1")
    sspin(a, "L_pf", [f"s_load_dwordx8 s[16:23], s[{P_WS}:{P_WS+1}], s55 glc"], cond, cfg.fsleep)
    a("s_setprio 2")
    ts(7)
    for n in range(cfg.a0): aload(n)
    nxt = [cfg.a0]
    ts(8)
    def lds_spin(name, vaddr, off, val):
        a("s_mov_b32 s73, 0")
        a.label(name)
        a("s_waitcnt lgkmcnt(0)")
        a("v_readfirstlane_b32 s11, v8")
        a(f"s_cmp_ge_u32 s11, {val}")
        a(f"s_cbranch_scc1 {name}ok")
        a("s_add_u32 s73, s73, 1")
        a(f"s_cmp_ge_u32 s73, {SPIN_MAX}")
        a(f"s_cbranch_scc1 {name}ok")
        a("s_sleep 1")
        a(f"ds_read_b32 v8, v{vaddr} offset:{off}")
        a(f"s_branch {name}")
        a.label(name + "ok")
        del lq[:]
    ownc = []
    assert cfg.dfc <= 8
    for p in range(28):
        f = BR + 8 * (p % NB)
        pn = p + cfg.bd
        for lr in range(2):
            n = 2 * p + lr
            w = ds_wait(p) if lr == 0 else None
            vm.wait(('a', n), w or "")
            if n == 0: ts(9)
            if n in (0, 7, 17, 25, 35): ts.x(6, {0: 7, 7: 8, 17: 9, 25: 10, 35: 11}[n])
            if lr == 0 and pn in (12, 16, 22): ds_issue('r', f"ds_read_b32 v8, v{vRd}")
            d = AR[n % NA]
            for lc in range(2):
                acc = AF + 32 * lr + 16 * lc
                c = "0" if p == 0 else f"v[{acc}:{acc+15}]"
                m = f"v_mfma_f32_32x32x16_bf16 v[{acc}:{acc+15}], v[{d}:{d+3}], v[{f+4*lc}:{f+4*lc+3}], {c}"
                if lr == 0 and lc == 0 and p >= 28 - cfg.dfc: ownc.append(m)
                else: a(m)
            for _ in range(2):
                if nxt[0] < 56 and nxt[0] <= n + NA:
                    aload(nxt[0]); nxt[0] += 1
        if pn in (12, 16, 22): lds_spin(f"L_c_r{pn}", vRd, 0, {12: 1, 16: 2, 22: 3}[pn])
        if p == cfg.ksig:
            assert pn > 15
            w = ds_wait(15)
            if w: a(f"s_waitcnt {w}")
            a("s_mov_b64 exec, 1")
            ds_issue('c', f"ds_add_u32 v{vCn}, v{vOne} offset:4")
            a("s_mov_b64 exec, -1")
        if NB <= pn < 28:
            for t in breads(pn): ds_issue(pn, t)
        if p == 24:
            STT = BR + 32
            for k in range(8): ds_issue('st', f"ds_read_b128 v[{STT+4*k}:{STT+4*k+3}], v{vSo} offset:{16*k}")
        if p == 26:
            for x in range(1, 4):
                a(f"s_xor_b32 s11, s{S_W4}, {x}")
                a(f"s_mul_i32 s11, s11, {Q}")
                a(f"s_add_u32 s11, s11, {FXA + (x-1)*4096}")
                a(f"v_add_u32 v{x}, s11, v{vL16}")
            a(f"v_add_u32 v4, {GA}, v{vPQ}")
            a(f"v_add_u32 v5, {FXA}, v{vPQ}")
        if p % 4 == 3: ts.x(4, 1 + p // 4)
    ts(11)
    ts.x(7, 1)
    for x in (2, 1, 3):
        src = AF + 32 * (x & 1) + 16 * (x >> 1)
        for k in range(4):
            if ownc: a(ownc.pop(0))
            a(f"ds_write_b128 v5, v[{src+4*k}:{src+4*k+3}] offset:{(x-1)*4096 + 1024*k}")
    a("s_waitcnt lgkmcnt(12)")
    for r in range(16): a(f"v_mul_f32 v{STT+2*r}, v{STT+2*r+1}, v{STT+2*r+1}")
    a(f"s_mov_b32 s13, {LOG2E ^ 0x80000000:#x}")
    ts.x(7, 2)
    a("s_waitcnt lgkmcnt(0)")
    ts.x(7, 3)
    a("s_mov_b64 exec, 1")
    a(f"ds_add_u32 v{vCn}, v{vOne}")
    a("s_mov_b64 exec, -1")
    a(f"ds_read_b32 v8, v{vCn}")
    lds_spin("L_c_cnt", vCn, 0, 4)
    ts.x(7, 4)
    O, RX, EX = AF, 24, 72
    for k in range(4):
        for x in range(1, 4):
            a(f"ds_read_b128 v[{RX+16*(x-1)+4*k}:{RX+16*(x-1)+4*k+3}], v{x} offset:{1024*k}")
    for k in range(4):
        rr = range(4 * k, 4 * k + 4)
        a(f"s_waitcnt lgkmcnt({9 - 3*k})")
        for r in rr: a(f"v_add_f32 v{O+r}, v{O+r}, v{RX+r}")
        for r in rr: a(f"v_add_f32 v{RX+16+r}, v{RX+16+r}, v{RX+32+r}")
        for r in rr: a(f"v_add_f32 v{O+r}, v{O+r}, v{RX+16+r}")
        for r in rr: a(f"v_mul_f32 v{O+r}, v{O+r}, v{STT+2*r}")
        for r in rr: a(f"v_mul_f32 v{EX+r}, s13, v{O+r}")
        for r in rr: a(f"v_exp_f32 v{EX+r}, v{EX+r}")
    ts.x(7, 5)
    for k in range(4):
        rr = range(4 * k, 4 * k + 4)
        for r in rr: a(f"v_add_f32 v{EX+r}, 1.0, v{EX+r}")
        for r in rr: a(f"v_rcp_f32 v{EX+r}, v{EX+r}")
        for r in rr: a(f"v_mul_f32 v{O+r}, v{O+r}, v{EX+r}")
        a(f"ds_write_b128 v4, v[{O+4*k}:{O+4*k+3}] offset:{1024*k}")
    a("s_waitcnt lgkmcnt(0)")
    ts(12)
    a("s_barrier")
    ts.dump(24, 25, 0)
    a("s_endpgm")

HEADER = """; Fused LayerNorm + S5-SSM scan + ReGLU gate, one launch.
;   224 main workgroups (4 MFMA waves + 4 loader/scan waves) + 32 helper workgroups (row statistics, hand-off reset, C repack).
;   Kernarg: 13 inputs, d_out (+104), d_debug (+112), d_ws (+120).  Produced by a hand-written generator script.
; @launch grid=(256,1,1) block=(512,1,1) lds=163840
.amdgcn_target "amdgcn-amd-amdhsa--gfx950"
.text
.globl {k}
.p2align {al}
.p2align 8
.type {k},@function
{k}:
"""
FOOTER = """.section .rodata,"a"
.p2align 6
.amdhsa_kernel {k}
  .amdhsa_next_free_vgpr 256
  .amdhsa_next_free_sgpr 102
  .amdhsa_accum_offset 256
  .amdhsa_group_segment_fixed_size 0
  .amdhsa_kernarg_size 128
  .amdhsa_user_sgpr_count 2
  .amdhsa_user_sgpr_kernarg_segment_ptr 1
  .amdhsa_system_sgpr_workgroup_id_x 1
  .amdhsa_float_denorm_mode_32 3
.end_amdhsa_kernel
"""

def generate(cfg):
    WSOFF[0] = cfg.wsoff << 20
    a = Asm()
    ts = TS(a, cfg)
    gen_entry(a, cfg, ts)
    gen_loader(a, cfg, ts)
    gen_consumer(a, cfg, ts)
    gen_helper(a, cfg, ts)
    a.label("L_exit")
    a("s_endpgm")
    return HEADER.format(k=KNAME, al=12 if cfg.al else 8) + (f"; wsoff={cfg.wsoff}\n" if cfg.wsoff else "") + a.text() + FOOTER.format(k=KNAME)

if __name__ == "__main__":
    cfg = Cfg()
    out = sys.argv[1]
    for kv in sys.argv[2:]:
        k, v = kv.split("=")
        setattr(cfg, k, int(v))
    open(out, "w").write(generate(cfg))
```

```python
import sys, os
sys.path.insert(0, os.path.dirname(os.path.abspath(__file__)))
from asmlib import Asm, VM

KNAME = "recurrent_scan__ssm_conv_s5__glu_gated_reglu__prompt_kernel"

R = [0, 53248, 106496]
MISC = 159744
OFF_WG, OFF_WU, OFF_BB = 32768, 40960, 49152
CP_L = R[1] + 49152
STATS_L = MISC
C_L = MISC + 2048
CNT_L = MISC + 2688
ST2_L = MISC + 2720
AGG_L = MISC + 3232
Q = 12288

RT_BYTES = 172032
HALF_BYTES = 86016
WS_STATS = 0xB00000
WS_AGG = WS_STATS + 0x4000
WS_FLAG = WS_AGG + 0x8000
INIT_N = 32
WS_CP = 0xB20000
WS_TS = 0xC00000
WS_SIZE = 0x1000000
SPIN_MAX = 1 << 20

S_WAVE, S_XCD, S_SLOT, S_MT, S_NS, S_M64, S_NT, S_W4 = 3, 4, 5, 6, 7, 8, 9, 10
P_X, P_LRE, P_LIM, P_BRE, P_BIM, P_CRE, P_CIM, P_LDT, P_DSK, P_BX, P_WG, P_WU, P_WD, P_OUT, P_DBG, P_WS = [16 + 2 * i for i in range(16)]
SRD_X, SRD_A, SRD_B, SRD_C, SRD_WS, SRD_E = 48, 52, 56, 60, 64, 68
TS0 = 76

LOG2E = 0x3fb8aa3b
LOG2E_LO = 0x32a57060
LN2 = 0x3f317218
INV2PI = 0x3e22f983

class Cfg:
    ts = 0
    tsset = 0
    pd = 16
    perm = 1
    rot = 2
    ssm_early = 0
    schedn = 0
    polx = 0
    apol = 1
    noa = 0
    nob = 0
    rdstart = 1
    polw = 0
    winn = 3
    loc = 1
    rpg = 1
    w6pre = 3
    nbar = 3
    nfill = 2
    fper16 = 2
    cprio = 2
    n6 = -1
    ramp = 6
    dfr = 12
    dfc = 8
    dfb = 7
    al = 1
    cpw = 1
    s0a = 8
    zpeel = 1
    ws = 0
    crot = 0
    ipos = 0
    gate = 2
    c0n = 16
    agpos = 0
    c0early = 0
    hord = 1
    clate = 2
    wl = 1
    fper = 6
    c2u = 4
    probe = 0
    pwho = 0
    ponly = -1
    pmask = 0xffff
    wsoff = 0
    kwin = 2
    wprio = 3
    hdelay = 0
    eprio = 0
    c2late = 0
    cpf = 2
    padto = 0
    nocs = 0
    r2pre = 1
    tlb = 0
    bd = 4
    pollw = 24
    c1 = 12
    c2 = 16
    f2b = 1
    wfirst = 1
    @property
    def win(self):
        W = lambda a, b: [f"w{p}" for p in range(a, b)]
        if self.ws:
            m, n1, n2, n3, n4, n5, n6, cp, cs, ep = [int(c) for c in str(self.ws)[1:]]
            assert n1 + n2 + n3 + n4 + n5 + n6 == 10
            pos = [12]
            def take(n):
                r = W(pos[0], pos[0] + n); pos[0] += n; return r
            w = {}
            if m == 2: w[-1] = ["m", "s1:0-3"]; w[0] = ["cs0", "s1:3-13", "k", "s2:0-10"]; w[1] = ["cs1", "s2:10-13", "s3"]
            else: w[-1] = ["s1:0-6"]; w[0] = ["cs0", "s1:6-13", "k", "s2"] + (["m"] if m == 1 else []); w[1] = ["cs1"] + (["m"] if m == 3 else []) + ["s3"]
            w[1] += take(n1)
            w[2] = ["cs2", "s4"] + take(n2)
            w[3] = (["cs3", "s5:0-7", "cs4", "s5:7-13"] if cs == 1 else ["cs3", "s5"]) + take(n3)
            w[4] = {0: ["cs4", "init", "s6:0-7", "cs5", "s6:7-13"], 1: ["init", "s6:0-4", "cs5", "s6:4-13"], 2: ["cs4", "init", "s6"]}[cs] + take(n4)
            w[5] = (["cs5"] if cs == 2 else []) + ["fetch"] + W(0, 4) + ["cs6"] + W(4, 6) + take(n5) + {0: ["c3"], 1: [], 2: ["c3", "c1"], 3: ["c1"]}[cp] + ["put"]
            w[6] = W(6, 12) + take(n6) + {0: ["c1"], 1: ["c3", "c1"], 2: [], 3: ["c3"]}[cp]
            w[ep].append("e")
            if self.ipos:
                w[4].remove("init"); w[4].append("init")
                w[5].remove("fetch"); w[5].remove("put")
                w[5].insert(w[5].index("cs6") + 1, "fetch")
                w[6].insert(2, "put")
            return w
        return [
            {-1: ["s1:0-6"], 0: ["cs0", "s1:6-13", "k", "s2:0-9"], 1: ["cs1", "s2:9-13", "s3", "e"], 2: ["cs2", "s4"] + W(12, 14), 3: ["cs3", "s5"] + W(14, 17),
             4: ["cs4", "init", "s6:0-7", "cs5", "s6:7-13", "w17"], 5: ["fetch"] + W(0, 4) + ["cs6"] + W(4, 6) + W(18, 20) + ["put"], 6: W(6, 12) + W(20, 22)},
            {-1: ["s1:0-6"], 0: ["cs0", "s1:6-13", "k", "s2:0-9"], 1: ["cs1", "s2:9-13", "s3", "e"], 2: ["cs2", "s4"] + W(12, 15), 3: ["cs3", "s5"] + W(15, 18),
             4: ["cs4", "init", "s6"] + W(18, 20), 5: ["cs5", "fetch"] + W(0, 3) + ["cs6"] + W(3, 6) + ["put"], 6: W(6, 12) + W(20, 22)},
            {-1: ["s1:0-6"], 0: ["cs0", "s1:6-13", "k", "s2:0-9"], 1: ["cs1", "s2:9-13", "s3", "e"], 2: ["cs2", "s4"] + W(12, 15), 3: ["cs3", "s5:0-7", "cs4", "s5:7-13", "w15"],
             4: ["init", "s6:0-4", "cs5", "s6:4-13"] + W(16, 19), 5: ["fetch"] + W(0, 4) + ["cs6"] + W(4, 6) + W(19, 22) + ["put"], 6: W(6, 12)},
            {-1: ["s1:0-6"], 0: ["cs0", "s1:6-13", "k", "s2:0-9"], 1: ["cs1", "s2:9-13", "s3", "e"], 2: ["cs2", "s4"] + W(12, 15), 3: ["cs3", "s5"] + W(15, 18),
             4: ["cs4", "init", "s6:0-7", "cs5", "s6:7-13", "w18", "w19"], 5: ["fetch"] + W(0, 4) + ["cs6"] + W(4, 6) + W(20, 22) + ["c3", "put"], 6: W(6, 12) + ["c1"]},
            {-1: ["s1:0-6"], 0: ["cs0", "s1:6-13", "k", "s2:0-9"], 1: ["cs1", "s2:9-13", "s3", "e"], 2: ["cs2", "s4"] + W(12, 14), 3: ["cs3", "s5"] + W(14, 17),
             4: ["cs4", "init", "s6:0-7", "cs5", "s6:7-13", "w17"], 5: ["fetch"] + W(0, 4) + ["cs6"] + W(4, 6) + W(18, 20) + ["put"], 6: W(6, 12) + W(20, 22) + ["c3"]},
            {-1: ["s1:0-6"], 0: ["cs0", "s1:6-13", "k", "s2:0-9"], 1: ["cs1", "s2:9-13", "s3", "e"], 2: ["cs2", "s4"] + W(12, 15), 3: ["cs3", "s5"] + W(15, 19),
             4: ["cs4", "init", "s6:0-7", "cs5", "s6:7-13"] + W(19, 22), 5: ["fetch"] + W(0, 4) + ["cs6"] + W(4, 6) + ["c1", "put"], 6: W(6, 12) + ["c3"]},
            {-1: ["s1:0-6"], 0: ["cs0", "s1:6-13", "k", "s2"], 1: ["cs1", "s3", "e"] + W(12, 14), 2: ["cs2", "s4"] + W(14, 17), 3: ["cs3", "s5"] + W(17, 20),
             4: ["cs4", "init", "s6:0-7", "cs5", "s6:7-13"] + W(20, 22), 5: ["fetch"] + W(0, 4) + ["cs6"] + W(4, 6) + ["c1", "put"], 6: W(6, 12) + ["c3"]},
            {-1: ["s1:0-6"], 0: ["cs0", "s1:6-13", "k", "s2:0-9"], 1: ["cs1", "s2:9-13", "s3", "e"], 2: ["cs2", "s4"] + W(12, 15), 3: ["cs3", "s5:0-7", "cs4", "s5:7-13"] + W(15, 18),
             4: ["init", "s6:0-4", "cs5", "s6:4-13"] + W(18, 22), 5: ["fetch"] + W(0, 4) + ["cs6"] + W(4, 6) + ["c1", "put"], 6: W(6, 12) + ["c3"]},
            {-1: ["s1:0-6"], 0: ["cs0", "s1:6-13", "k", "s2:0-9"], 1: ["cs1", "s2:9-13", "s3", "e"], 2: ["cs2", "s4"], 3: ["cs3", "s5"] + W(12, 16),
             4: ["cs4", "init", "s6:0-7", "cs5", "s6:7-13"] + W(16, 19), 5: ["fetch"] + W(0, 4) + ["cs6"] + W(4, 6) + W(19, 22) + ["c3", "put"], 6: W(6, 12) + ["c1"]},
            {-1: ["s1:0-6"], 0: ["cs0", "s1:6-13", "k", "s2"], 1: ["cs1", "s3", "e"], 2: ["cs2", "s4"] + W(12, 14), 3: ["cs3", "s5"] + W(14, 18),
             4: ["cs4", "init", "s6:0-7", "cs5", "s6:7-13", "w18", "w19"], 5: ["fetch"] + W(0, 4) + ["cs6"] + W(4, 6) + W(20, 22) + ["c3", "put"], 6: W(6, 12) + ["c1"]},
            {-1: ["s1:0-3"], 0: ["cs0", "s1:3-13", "k", "s2:0-8"], 1: ["cs1", "s2:8-13", "s3"], 2: ["cs2", "s4", "e"] + W(12, 14), 3: ["cs3", "s5"] + W(14, 18),
             4: ["cs4", "init", "s6:0-7", "cs5", "s6:7-13", "w18", "w19"], 5: ["fetch"] + W(0, 4) + ["cs6"] + W(4, 6) + W(20, 22) + ["c3", "put"], 6: W(6, 12) + ["c1"]},
            {-1: ["s1:0-6"], 0: ["cs0", "s1:6-13", "k", "s2:0-9"], 1: ["cs1", "s2:9-13", "s3", "e"], 2: ["cs2", "s4"] + W(12, 15), 3: ["cs3", "init", "s5"] + W(15, 18),
             4: ["cs4", "fetch", "s6:0-7", "cs5", "s6:7-13", "w18", "w19"], 5: ["put"] + W(0, 4) + ["cs6"] + W(4, 6) + W(20, 22) + ["c3"], 6: W(6, 12) + ["c1"]},
            {-1: ["m", "s1:0-3"], 0: ["cs0", "s1:3-13", "k", "s2:0-8"], 1: ["cs1", "s2:8-13", "s3", "e"], 2: ["cs2", "s4"] + W(12, 15), 3: ["cs3", "s5"] + W(15, 18),
             4: ["cs4", "init", "s6:0-7", "cs5", "s6:7-13", "w18", "w19"], 5: ["fetch"] + W(0, 4) + ["cs6"] + W(4, 6) + W(20, 22) + ["c3", "put"], 6: W(6, 12) + ["c1"]},
            {-1: ["s1:0-6"], 0: ["cs0", "s1:6-13", "m", "k", "s2:0-9"], 1: ["cs1", "s2:9-13", "s3", "e"], 2: ["cs2", "s4"] + W(12, 15), 3: ["cs3", "s5"] + W(15, 18),
             4: ["cs4", "init", "s6:0-7", "cs5", "s6:7-13", "w18", "w19"], 5: ["fetch"] + W(0, 4) + ["cs6"] + W(4, 6) + W(20, 22) + ["c3", "put"], 6: W(6, 12) + ["c1"]},
            {-1: ["m"], 0: ["cs0", "s1", "k", "s2:0-6"], 1: ["cs1", "s2:6-13", "s3"], 2: ["cs2", "s4", "e"] + W(12, 14), 3: ["cs3", "s5"] + W(14, 18),
             4: ["cs4", "init", "s6:0-7", "cs5", "s6:7-13", "w18", "w19"], 5: ["fetch"] + W(0, 4) + ["cs6"] + W(4, 6) + W(20, 22) + ["c3", "put"], 6: W(6, 12) + ["c1"]},
            {-1: ["s1:0-6"], 0: ["cs0", "s1:6-13", "k", "s2"], 1: ["cs1", "s3"], 2: ["cs2", "s4", "e"], 3: ["cs3", "s5"] + W(12, 16),
             4: ["cs4", "init", "s6:0-7", "cs5", "s6:7-13"] + W(16, 19), 5: ["fetch"] + W(0, 4) + ["cs6"] + W(4, 6) + W(19, 22) + ["c3", "put"], 6: W(6, 12) + ["c1"]},
            {-1: ["s1:0-6"], 0: ["cs0", "s1:6-13", "k", "s2", "m"], 1: ["cs1", "s3"], 2: ["cs2", "s4", "e"], 3: ["cs3", "s5"] + W(12, 16),
             4: ["cs4", "init", "s6:0-7", "cs5", "s6:7-13"] + W(16, 19), 5: ["fetch"] + W(0, 4) + ["cs6"] + W(4, 6) + W(19, 22) + ["c3", "put"], 6: W(6, 12) + ["c1"]},
            {-1: ["m", "s1:0-3"], 0: ["cs0", "s1:3-13", "k", "s2:0-10"], 1: ["cs1", "s2:10-13", "s3"], 2: ["cs2", "s4", "e"], 3: ["cs3", "s5"] + W(12, 16),
             4: ["cs4", "init", "s6:0-7", "cs5", "s6:7-13"] + W(16, 19), 5: ["fetch"] + W(0, 4) + ["cs6"] + W(4, 6) + W(19, 22) + ["c3", "put"], 6: W(6, 12) + ["c1"]},
            {-1: ["s1:0-6"], 0: ["cs0", "s1:6-13", "k", "s2"], 1: ["cs1", "s3"], 2: ["cs2", "s4:0-6"], 3: ["cs3", "s4:6-13", "s5", "e"],
             4: ["cs4", "init", "s6"] + W(12, 16), 5: ["cs5", "fetch"] + W(16, 20) + ["cs6"] + W(0, 6) + ["put"], 6: W(6, 12) + W(20, 22) + ["c3", "c1"]},
            {-1: ["s1"], 0: ["cs0", "k", "s2", "e"], 1: ["cs1", "s3"], 2: ["cs2", "s4", "w12"], 3: ["cs3", "s5"] + W(13, 16),
             4: ["cs4", "init", "s6:0-7", "cs5", "s6:7-13"] + W(16, 19), 5: ["fetch"] + W(0, 4) + ["cs6"] + W(4, 6) + W(19, 22) + ["c3", "put"], 6: W(6, 12) + ["c1"]},
        ][self.winn]
    nw1 = 6
    flagr = -1
    xs = 1
    psleep = 6
    fsleep = 2
    ttper = 2
    f2n = 9
    fpre = 1
    a0 = 18
    sprio = 0
    ksig = 12
    opol = 1
    lprio = 3
    w12early = 0
    slab = 0
    spol = 1
    fpol = 1
    pollr = 4
    nw2 = 16
    thr = 15
    hpf = 2
    ky = 2
    @property
    def perms(self):
        return {
            0: [[0, 1, 2, 3, 4, 5, 6]],
            1: [[0, 1, 2, 3, 4, 5, 6], [1, 2, 0, 4, 5, 3, 6], [2, 0, 1, 5, 3, 4, 6]],
            2: [[0, 1, 2, 3, 4, 5, 6], [1, 0, 3, 2, 5, 4, 6]],
            3: [[0, 1, 2, 3, 4, 5, 6], [1, 0, 4, 5, 6, 2, 3], [0, 1, 6, 2, 3, 4, 5]],
            4: [[0, 1, 2, 3, 4, 5, 6], [1, 2, 0, 4, 6, 3, 5], [2, 0, 1, 5, 6, 3, 4]],
            6: [[0, 1, 2, 3, 4, 5, 6], [1, 2, 0, 3, 4, 5, 6], [2, 0, 1, 3, 4, 5, 6]],
            5: [[0, 1, 2, 3, 4, 5, 6], [1, 2, 3, 0, 5, 6, 4], [2, 3, 0, 1, 6, 4, 5], [3, 0, 1, 2, 4, 5, 6]],
        }[self.perm]

WSOFF = [0]
def srd(a, d, ptr, nbytes):
    if ptr == P_WS and WSOFF[0]:
        a(f"s_add_u32 s{ptr}, s{ptr}, {WSOFF[0]:#x}")
        a(f"s_addc_u32 s{ptr+1}, s{ptr+1}, 0")
    a(f"s_mov_b32 s{d}, s{ptr}")
    a(f"s_and_b32 s{d+1}, s{ptr+1}, 0xffff")
    a(f"s_mov_b32 s{d+2}, {nbytes:#x}")
    a(f"s_mov_b32 s{d+3}, 0x20000")

def srd_sel(a, d, ptr1, ptr0, nbytes):
    a(f"s_cselect_b32 s{d}, s{ptr1}, s{ptr0}")
    a(f"s_cselect_b32 s{d+1}, s{ptr1+1}, s{ptr0+1}")
    a(f"s_and_b32 s{d+1}, s{d+1}, 0xffff")
    a(f"s_mov_b32 s{d+2}, {nbytes:#x}")
    a(f"s_mov_b32 s{d+3}, 0x20000")

class TS:
    def __init__(self, a, cfg):
        self.a, self.on, self.n, self.set = a, cfg.ts, 0, cfg.tsset
        self.cfg = cfg
    def x(self, setno, i):
        if self.on and self.set == setno: self.emit(i)
    def __call__(self, i):
        if self.on and (self.set == 0 or i in (0, 12)): self.emit(i)
    def emit(self, i):
        if self.on == 5 and i not in (0, self.cfg.probe): return
        if self.on:
            assert i < 13
            self.a(f"{'s_memrealtime' if self.on != 2 else 's_memtime'} s[{TS0+2*i}:{TS0+2*i+1}]")
    def init(self):
        if self.on:
            for i in range(1, 13): self.a(f"s_mov_b32 s{TS0+2*i}, 0")
    def dump(self, vt, vt2, who=2):
        if not self.on: return
        a = self.a
        if self.on == 5:
            if who != self.cfg.pwho: return
            lab = a.newlabel("L_probe")
            if self.cfg.ponly >= 0:
                a(f"s_and_b32 s11, s2, {self.cfg.pmask}")
                a(f"s_cmp_lg_u32 s11, {self.cfg.ponly}")
                a(f"s_cbranch_scc1 {lab}_x")
            p = TS0 + 2 * self.cfg.probe
            a("s_waitcnt lgkmcnt(0)")
            a(f"s_sub_u32 s11, s{p}, s{TS0}")
            a(f"s_cmp_eq_u32 s{p}, 0")
            a("s_cselect_b32 s11, 0, s11")
            a("s_lshl_b32 s11, s11, 2")
            a("s_add_u32 s11, s11, 3000")
            a.label(lab)
            a("s_memrealtime s[12:13]")
            a("s_waitcnt lgkmcnt(0)")
            a(f"s_sub_u32 s12, s12, s{TS0}")
            a("s_cmp_lt_u32 s12, s11")
            a(f"s_cbranch_scc1 {lab}")
            a.label(lab + "_x")
            return
        if self.on == 3:
            a("s_waitcnt vmcnt(0) lgkmcnt(0)")
            lab = a.newlabel("L_nod")
            a(f"s_cmp_eq_u32 s{TS0+24}, 0")
            a(f"s_cbranch_scc1 {lab}")
            a(f"s_cmp_lg_u32 s{S_WAVE}, 0")
            a(f"s_cbranch_scc1 {lab}")
            a("s_mov_b64 exec, 1")
            a(f"v_mov_b32 v{vt2}, 0")
            a(f"s_not_b32 s11, s{TS0}")
            a(f"v_mov_b32 v{vt}, s11")
            a(f"global_atomic_umax v{vt2}, v{vt}, s[{P_DBG}:{P_DBG+1}] offset:4 sc1")
            for n, i in enumerate([0, 1, 2, 3, 4, 5, 6, 7, 8, 9, 10, 11, 12]):
                a("s_waitcnt vmcnt(0)")
                a(f"v_mov_b32 v{vt}, s{TS0+2*i}")
                a(f"global_atomic_umax v{vt2}, v{vt}, s[{P_DBG}:{P_DBG+1}] offset:{8+4*n} sc1")
            a("s_waitcnt vmcnt(0)")
            a.label(lab)
            return
        a("s_waitcnt vmcnt(0) lgkmcnt(0)")
        a(f"s_lshl_b32 s11, s2, 9")
        a(f"s_lshl_b32 s12, s{S_WAVE}, 6")
        a("s_add_u32 s11, s11, s12")
        a(f"s_add_u32 s11, s11, {WS_TS:#x}")
        a(f"v_mov_b32 v{vt2}, s11")
        for i in range(13):
            a(f"v_mov_b32 v{vt}, s{TS0+2*i}")
            a(f"buffer_store_dword v{vt}, v{vt2}, s[{SRD_WS}:{SRD_WS+3}], 0 offen offset:{4*i}")
        a("s_waitcnt vmcnt(0)")

def round_bf16(a, dst, src):
    a(f"v_cvt_pk_bf16_f32 v{dst}, v{src}, v{src}")
    a(f"v_lshlrev_b32 v{dst}, 16, v{dst}")

def exp_acc(a, dst, x, t0, t1):
    a(f"s_mov_b32 s36, {LOG2E:#x}")
    a(f"s_mov_b32 s37, {LOG2E_LO:#x}")
    a(f"v_mul_f32 v{t0}, s36, v{x}")
    a(f"v_fma_f32 v{t1}, v{x}, s36, -v{t0}")
    a(f"v_fma_f32 v{t1}, v{x}, s37, v{t1}")
    a(f"v_mul_f32 v{t1}, {LN2:#x}, v{t1}")
    a(f"v_exp_f32 v{dst}, v{t0}")
    a(f"v_fma_f32 v{dst}, v{dst}, v{t1}, v{dst}")

def csq(a, dr, di, sr, si, t):
    a(f"v_mul_f32 v{t}, v{si}, v{si}")
    a(f"v_add_f32 v{di}, v{si}, v{si}")
    a(f"v_mul_f32 v{di}, v{di}, v{sr}")
    a(f"v_fma_f32 v{dr}, v{sr}, v{sr}, -v{t}")

def cmul(a, dr, di, ar, ai, br, bi):
    a(f"v_mul_f32 v{dr}, v{ar}, v{br}")
    a(f"v_mul_f32 v{di}, v{ar}, v{bi}")
    a(f"v_fma_f32 v{dr}, -v{ai}, v{bi}, v{dr}")
    a(f"v_fma_f32 v{di}, v{ai}, v{br}, v{di}")

def ssm_const_load(a, vm, t):
    a(f"v_and_b32 v{t+3}, 15, v0")
    a(f"s_lshl_b32 s11, s{S_NS}, 4")
    a(f"v_add_lshl_u32 v{t+3}, v{t+3}, s11, 1")
    vm.issue('sc', f"global_load_ushort v{t}, v{t+3}, s[{P_LRE}:{P_LRE+1}]")
    vm.issue('sc', f"global_load_ushort v{t+1}, v{t+3}, s[{P_LIM}:{P_LIM+1}]")
    vm.issue('sc', f"global_load_ushort v{t+2}, v{t+3}, s[{P_LDT}:{P_LDT+1}]")

def ssm_const_calc(a, t, lr, li, cr=None, ci=None):
    for k in range(3): a(f"v_lshlrev_b32 v{t+k}, 16, v{t+k}")
    exp_acc(a, t + 3, t + 2, t + 4, t + 5)
    round_bf16(a, t + 2, t + 3)
    a(f"v_mul_f32 v{t+3}, v{t+2}, v{t}")
    a(f"v_mul_f32 v{t+6}, v{t+2}, v{t+1}")
    exp_acc(a, t + 7, t + 3, t + 4, t + 5)
    a(f"v_mul_f32 v{t+6}, {INV2PI:#x}, v{t+6}")
    a(f"v_rndne_f32 v{t+4}, v{t+6}")
    a(f"v_sub_f32 v{t+6}, v{t+6}, v{t+4}")
    a(f"v_cos_f32 v{t+4}, v{t+6}")
    a(f"v_sin_f32 v{t+5}, v{t+6}")
    a(f"v_mul_f32 v{lr}, v{t+7}, v{t+4}")
    a(f"v_mul_f32 v{li}, v{t+7}, v{t+5}")
    if cr is not None:
        a(f"v_add_f32 v{t+3}, -1.0, v{lr}")
        a(f"v_mul_f32 v{t+4}, v{t}, v{t}")
        a(f"v_fma_f32 v{t+4}, v{t+1}, v{t+1}, v{t+4}")
        a(f"v_rcp_f32 v{t+4}, v{t+4}")
        a(f"v_mul_f32 v{cr}, v{t+3}, v{t}")
        a(f"v_fma_f32 v{cr}, v{li}, v{t+1}, v{cr}")
        a(f"v_mul_f32 v{ci}, v{li}, v{t}")
        a(f"v_fma_f32 v{ci}, -v{t+3}, v{t+1}, v{ci}")
        a(f"v_add_f32 v{t+4}, v{t+4}, v{t+4}")
        a(f"v_mul_f32 v{cr}, v{cr}, v{t+4}")
        a(f"v_mul_f32 v{ci}, v{ci}, v{t+4}")

def gen_entry(a, cfg, ts):
    a("s_cmp_ge_u32 s2, 256")
    a("s_cbranch_scc1 L_exit")
    if cfg.padto: a("s_memrealtime s[100:101]")
    ts(0)
    a("s_load_dwordx16 s[16:31], s[0:1], 0")
    a("s_load_dwordx16 s[32:47], s[0:1], 64")
    a("v_lshrrev_b32 v1, 6, v0")
    a("v_and_b32 v0, 63, v0")
    a(f"v_readfirstlane_b32 s{S_WAVE}, v1")
    a(f"s_and_b32 s{S_XCD}, s2, 7")
    a(f"s_lshr_b32 s{S_SLOT}, s2, 3")
    if cfg.cpf == 2:
        a(f"s_cmp_gt_u32 s{S_WAVE}, {cfg.cpw - 1}")
        a("s_cbranch_scc1 L_nocpf")
        a("s_getpc_b64 s[12:13]")
        a.label("L_pc0")
        a(f"s_sub_u32 s12, s12, L_pc0-{KNAME}")
        a("s_subb_u32 s13, s13, 0")
        a(f"s_lshl_b32 s11, s{S_WAVE}, 5")
        a(f"s_add_u32 s11, s11, s{S_SLOT}")
        a("s_lshl_b32 s11, s11, 10")
        a("v_lshl_add_u32 v38, v0, 4, s11")
        a(f"v_min_u32 v38, L_exit-{KNAME}, v38")
        a("global_load_dword v23, v38, s[12:13]")
        a.label("L_nocpf")
    a(f"s_and_b32 s11, s{S_SLOT}, 3")
    a(f"s_lshr_b32 s{S_NT}, s{S_SLOT}, 2")
    a(f"s_and_b32 s12, s{S_XCD}, 1")
    a(f"s_lshl_b32 s12, s12, 2")
    a(f"s_add_u32 s{S_MT}, s12, s11")
    a(f"s_lshr_b32 s12, s{S_XCD}, 1")
    a(f"s_mul_i32 s12, s12, 7")
    a(f"s_add_u32 s{S_NS}, s12, s{S_NT}")
    if cfg.slab:
        a(f"s_mov_b32 s{S_MT}, s{S_XCD}")
        a(f"s_mov_b32 s{S_NS}, s{S_SLOT}")
    if cfg.loc:
        a(f"s_and_b32 s12, s{S_XCD}, 1")
        a("s_lshl_b32 s12, s12, 2")
        a(f"s_lshr_b32 s13, s{S_XCD}, 1")
        a("s_add_u32 s12, s12, s13")
        a("s_lshl_b32 s12, s12, 2")
    else:
        a(f"s_lshl_b32 s12, s{S_XCD}, 2")
    a(f"s_add_u32 s{S_M64}, s12, s11")
    a(f"s_and_b32 s{S_W4}, s{S_WAVE}, 3")
    ts.init()
    a(f"s_cmp_ge_u32 s{S_SLOT}, 28")
    a("s_cbranch_scc1 L_helper")
    a(f"s_cmp_lt_u32 s{S_WAVE}, 4")
    a("s_cbranch_scc1 L_consumer")

def gen_helper(a, cfg, ts):
    if cfg.al >= 3: a.raw(".p2align 12")
    a.label("L_helper")
    vm = VM(a)
    a(f"s_sub_u32 s73, s{S_SLOT}, 28")
    a(f"s_lshl_b32 s11, s73, 3")
    a(f"s_add_u32 s72, s11, s{S_XCD}")
    if cfg.loc: a(f"s_mov_b32 s72, s{S_M64}")
    HC = 65536
    a(f"v_mov_b32 v200, {HC}")
    a("v_mov_b32 v201, 0")
    a("ds_write_b32 v200, v201")
    def h_open():
        a("s_waitcnt lgkmcnt(0)")
        a("s_barrier")
    def h_signal(tag):
        a("v_mov_b32 v202, 1")
        a("s_mov_b64 exec, 1")
        a("ds_add_rtn_u32 v203, v200, v202")
        a("s_waitcnt lgkmcnt(0)")
        a("v_readfirstlane_b32 s11, v203")
        a("s_cmp_lg_u32 s11, 7")
        a(f"s_cbranch_scc1 L_h_ns{tag}")
        a(f"global_atomic_add v201, v202, s[{P_DBG}:{P_DBG+1}] sc1")
        a.label(f"L_h_ns{tag}")
        a("s_mov_b64 exec, -1")
    a(f"s_cmp_ge_u32 s{S_WAVE}, 4")
    a("s_cbranch_scc1 L_h_pf")
    a(f"s_lshl_b32 s11, s72, 6")
    a(f"s_lshl_b32 s12, s{S_WAVE}, 4")
    a(f"s_add_u32 s11, s11, s12")
    a("v_lshrrev_b32 v2, 3, v0")
    a("v_add_u32 v2, s11, v2")
    a("v_mul_u32_u24 v3, 896, v2")
    a("v_and_b32 v4, 7, v0")
    a("v_lshl_add_u32 v3, v4, 4, v3")
    a("s_waitcnt lgkmcnt(0)")
    srd(a, SRD_X, P_X, 2048 * 896)
    srd(a, SRD_WS, P_WS, WS_SIZE)
    a(f"s_mov_b32 s11, {8*896}")
    for ps in range(2):
        for j in range(7):
            so = "0" if ps == 0 else "s11"
            vm.issue(('x', ps), f"buffer_load_dwordx4 v[{112+28*ps+4*j}:{115+28*ps+4*j}], v3, s[{SRD_X}:{SRD_X+3}], {so} offen offset:{128*j}")
    a(f"s_cmp_gt_u32 s{S_WAVE}, 1")
    a("s_cbranch_scc1 L_h_noreset")
    a(f"s_cmp_eq_u32 s{S_WAVE}, 0")
    a("s_cselect_b32 s11, -1, 0")
    a("s_mov_b32 s12, 1024")
    a("s_cmov_b32 s12, 896")
    a(f"s_mov_b32 s13, {WS_FLAG:#x}")
    a(f"s_cmov_b32 s13, {WS_AGG:#x}")
    a("s_mul_i32 s14, s12, s72")
    a("s_add_u32 s13, s13, s14")
    for k in range(4): a(f"v_mov_b32 v{8+k}, s11")
    a("v_lshlrev_b32 v12, 4, v0")
    a("v_cmp_gt_u32 vcc, s12, v12")
    a("s_and_saveexec_b64 s[14:15], vcc")
    a(f"buffer_store_dwordx4 v[8:11], v12, s[{SRD_WS}:{SRD_WS+3}], s13 offen sc1")
    a("s_mov_b64 exec, s[14:15]")
    a.label("L_h_noreset")
    h_open()
    a("v_lshlrev_b32 v2, 3, v2")
    a("s_mov_b32 s12, 0xffff0000")
    def fin(dst):
        a("v_add_f32 v8, v8, v9")
        a("v_add_f32 v10, v10, v11")
        a(f"v_add_f32 v{dst}, v8, v10")
        a(f"v_add_f32_dpp v{dst}, v{dst}, v{dst} quad_perm:[1,0,3,2] row_mask:0xf bank_mask:0xf")
        a(f"v_add_f32_dpp v{dst}, v{dst}, v{dst} quad_perm:[2,3,0,1] row_mask:0xf bank_mask:0xf")
        a(f"v_add_f32_dpp v{dst}, v{dst}, v{dst} row_half_mirror row_mask:0xf bank_mask:0xf")
        a(f"v_mul_f32 v{dst}, 0x3b124925, v{dst}")
    for ps in range(2):
        vm.wait(('x', ps))
        if cfg.hdelay == 2 + ps: a("s_barrier")
        src = 112 + 28 * ps
        for k in range(28):
            a(f"v_lshlrev_b32 v{48+2*k}, 16, v{src+k}")
            a(f"v_and_b32 v{49+2*k}, s12, v{src+k}")
        a("v_pk_add_f32 v[8:9], v[48:49], v[52:53]")
        a("v_pk_add_f32 v[10:11], v[50:51], v[54:55]")
        for k in range(4, 28): a(f"v_pk_add_f32 v[{8+2*(k%2)}:{9+2*(k%2)}], v[{8+2*(k%2)}:{9+2*(k%2)}], v[{48+2*k}:{49+2*k}]")
        fin(12)
        for k in range(28): a(f"v_pk_add_f32 v[{48+2*k}:{49+2*k}], v[{48+2*k}:{49+2*k}], v[12:13] op_sel_hi:[1,0] neg_lo:[0,1] neg_hi:[0,1]")
        for k in range(2): a(f"v_pk_mul_f32 v[{8+2*k}:{9+2*k}], v[{48+2*k}:{49+2*k}], v[{48+2*k}:{49+2*k}]")
        for k in range(2, 28): a(f"v_pk_fma_f32 v[{8+2*(k%2)}:{9+2*(k%2)}], v[{48+2*k}:{49+2*k}], v[{48+2*k}:{49+2*k}], v[{8+2*(k%2)}:{9+2*(k%2)}]")
        fin(13)
        o = 14 + 2 * ps
        round_bf16(a, o, 12)
        round_bf16(a, 13, 13)
        a("v_add_f32 v13, 0x3727c5ac, v13")
        round_bf16(a, 13, 13)
        a("v_sqrt_f32 v13, v13")
        round_bf16(a, 13, 13)
        a(f"v_rcp_f32 v{o+1}, v13")
        a("v_cmp_eq_u32 vcc, 0, v4")
        a("s_and_saveexec_b64 s[14:15], vcc")
        a(f"s_mov_b32 s11, {WS_STATS:#x}")
        vm.issue('st', f"buffer_store_dwordx2 v[{o}:{o+1}], v2, s[{SRD_WS}:{SRD_WS+3}], s11 offen offset:{64*ps} sc1")
        a("s_mov_b64 exec, s[14:15]")
    a("s_waitcnt vmcnt(0)")
    h_signal("a")
    ts(1)
    ts.x(3, 1)
    ts.dump(8, 9)
    a("s_endpgm")
    a.label("L_h_pf")
    a("v_lshlrev_b32 v2, 4, v0")
    a(f"s_lshl_b32 s11, s{S_W4}, 10")
    a("v_add_u32 v2, s11, v2")
    if cfg.cpf == 1:
        a("s_getpc_b64 s[60:61]")
        a.label("L_pc")
        a(f"s_sub_u32 s60, s60, L_pc-{KNAME}")
        a("s_subb_u32 s61, s61, 0")
        a("s_lshl_b32 s11, s73, 12")
        a("v_add_u32 v3, s11, v2")
        for k in range(2):
            a(f"v_min_u32 v4, L_exit-{KNAME}-12, v3")
            a(f"global_load_dwordx4 v[24:27], v4, s[60:61]")
            a(f"v_add_u32 v3, 16384, v3")
    a("s_waitcnt lgkmcnt(0)")
    if cfg.hdelay == 1: a("s_waitcnt vmcnt(0)")
    if cfg.hdelay >= 2: a("s_barrier")
    srd(a, SRD_WS, P_WS, WS_SIZE)
    a("s_lshl_b32 s60, s72, 2")
    a(f"s_add_u32 s60, s60, s{S_W4}")
    a("s_cmp_ge_u32 s60, 98")
    a("s_cbranch_scc1 L_h_nopack1")
    a("s_mul_i32 s61, s60, 37")
    a("s_lshr_b32 s61, s61, 8")
    a("s_mul_i32 s62, s61, 7")
    a("s_sub_u32 s62, s60, s62")
    a("s_cmp_lt_i32 s62, 0")
    a("s_cselect_b32 s11, 1, 0")
    a("s_sub_u32 s61, s61, s11")
    a("s_mul_i32 s62, s61, 7")
    a("s_sub_u32 s62, s60, s62")
    a("s_bitcmp1_b32 s61, 0")
    srd_sel(a, 68, P_CIM, P_CRE, 448 * 896)
    a("v_lshrrev_b32 v3, 3, v0")
    a("v_and_b32 v4, 7, v0")
    a("v_lshrrev_b32 v5, 1, v3")
    a("v_xor_b32 v4, v4, v5")
    a("s_lshr_b32 s11, s61, 1")
    a("s_lshl_b32 s11, s11, 6")
    a("v_add_u32 v3, s11, v3")
    a("v_mul_u32_u24 v3, 896, v3")
    a("v_lshl_add_u32 v3, v4, 4, v3")
    a("v_xor_b32 v4, 64, v3")
    a(f"s_lshl_b32 s63, s{S_W4}, 13")
    a("s_lshl_b32 s12, s62, 7")
    for n in range(8):
        a(f"s_add_u32 m0, s63, {n*1024}")
        a(f"s_add_u32 s11, s12, {8*n*896}")
        a(f"buffer_load_dwordx4 v{3 + (n & 1)}, s[68:71], s11 offen lds")
    a.label("L_h_nopack1")
    h_open()
    def h_sweep():
        if cfg.hpf:
            for (ptr, nbytes, srdn) in ((P_WD, 1792 * 896, 56),):
                srd(a, srdn, ptr, nbytes)
            def sweep(name, srds, qbytes, first, count):
                n8 = -(-qbytes // (8 * 4096))
                n = 8 * n8
                a(f"s_mul_i32 s12, s73, {qbytes}")
                a(f"s_add_u32 s13, s{S_XCD}, {first}")
                a("s_and_b32 s13, s13, 7")
                a(f"s_mul_i32 s13, s13, {n8}")
                a("s_mov_b32 s14, 0")
                a.label(name)
                a("s_lshl_b32 s11, s13, 12")
                a("s_add_u32 s11, s11, s12")
                for k, sr in enumerate(srds):
                    a(f"buffer_load_dwordx4 v[{16+4*k}:{19+4*k}], v2, s[{sr}:{sr+3}], s11 offen")
                a("s_add_u32 s13, s13, 1")
                a(f"s_cmp_eq_u32 s13, {n}")
                a("s_cselect_b32 s13, 0, s13")
                a("s_add_u32 s14, s14, 1")
                a(f"s_cmp_lt_u32 s14, {n8 * count}")
                a(f"s_cbranch_scc1 {name}")
            sweep("L_h_p2", [56], 1792 * 896 // 4, 0, 1)
            ts(2)
    def h_pack():
        a("s_cmp_ge_u32 s60, 98")
        a("s_cbranch_scc1 L_h_nopack2")
        a("v_and_b32 v5, 31, v0")
        a("v_lshrrev_b32 v6, 5, v0")
        a("v_bfe_u32 v7, v0, 1, 3")
        a("v_xor_b32 v7, v7, v6")
        a("v_lshlrev_b32 v7, 4, v7")
        a("v_lshl_add_u32 v5, v5, 7, v7")
        a("v_add_u32 v5, s63, v5")
        a("v_lshlrev_b32 v6, 4, v0")
        a("s_mul_i32 s12, s61, 28")
        a("s_lshl_b32 s11, s62, 2")
        a("s_add_u32 s12, s12, s11")
        a("s_lshl_b32 s12, s12, 11")
        a(f"s_add_u32 s12, s12, {WS_CP:#x}")
        a(f"s_waitcnt vmcnt({13 if (cfg.hpf and not cfg.hord) else 0})")
        for ks in range(4):
            a(f"v_xor_b32 v7, {32*ks}, v5")
            for ct in range(2):
                d = 32 + 8 * ks + 4 * ct
                a(f"ds_read_b128 v[{d}:{d+3}], v7 offset:{4096*ct}")
        for ks in range(4):
            a(f"s_waitcnt lgkmcnt({6 - 2*ks})")
            a(f"s_add_u32 s11, s12, {2048*ks}")
            for ct in range(2):
                d = 32 + 8 * ks + 4 * ct
                a(f"buffer_store_dwordx4 v[{d}:{d+3}], v6, s[{SRD_WS}:{SRD_WS+3}], s11 offen offset:{1024*ct} sc1")
        a("s_waitcnt vmcnt(0)")
        a.label("L_h_nopack2")
        h_signal("b")
        ts(3)
        ts.x(3, 1)
    if cfg.hord: h_pack(); h_sweep()
    else: h_sweep(); h_pack()
    ts.dump(8, 9)
    a("s_endpgm")

def spin_check(a, name, load_text_list, cond_fn, sleep=1):
    lo, done = a.newlabel(name + "_spin"), a.newlabel(name + "_ok")
    a(f"s_mov_b32 s73, 0")
    a.label(lo)
    cond_fn()
    a(f"s_cbranch_scc1 {done}")
    a("s_add_u32 s73, s73, 1")
    a(f"s_cmp_ge_u32 s73, {SPIN_MAX}")
    a(f"s_cbranch_scc1 {done}")
    a(f"s_sleep {sleep}")
    for t in load_text_list: a(t)
    a("s_waitcnt vmcnt(0)")
    a(f"s_branch {lo}")
    a.label(done)
    a("s_nop 4")

def sspin(a, name, loads, cond_fn, sleep=1):
    lo, done = a.newlabel(name + "_spin"), a.newlabel(name + "_ok")
    a("s_mov_b32 s73, 0")
    a.label(lo)
    for t in loads: a(t)
    a("s_waitcnt lgkmcnt(0)")
    cond_fn()
    a(f"s_cbranch_scc1 {done}")
    a("s_add_u32 s73, s73, 1")
    a(f"s_cmp_lt_u32 s73, {SPIN_MAX}")
    if sleep: a(f"s_sleep {sleep}")
    a(f"s_cbranch_scc1 {lo}")
    a.label(done)

def flag_index(a, d, t, grp):
    a(f"s_mul_i32 s{t}, s{S_NS}, 37")
    a(f"s_lshr_b32 s{t}, s{t}, {8 if grp == 7 else 9}")
    a(f"s_mul_i32 s{t}, s{t}, {32 - grp}")
    a(f"s_add_u32 s{d}, s{t}, s{S_NS}")
    a(f"s_lshl_b32 s{d}, s{d}, 2")

def interleave(a, prim, fill, per):
    fill = list(fill)
    for p in prim:
        p()
        for _ in range(per):
            if fill: a(fill.pop(0))
    for f in fill: a(f)

def p2_rot(a, cfg, d_ffn, d_blk, d_flip):
    if not cfg.rot:
        for d in (d_ffn, d_blk, d_flip): a(f"s_mov_b32 s{d}, 0")
        return
    tab = {2: [0] * 7, 1: list(range(7)), 3: [0, 3, 0, 3, 0, 3, 0], 4: [0, 2, 5, 0, 2, 5, 0], 5: [0, 4, 2, 5, 0, 4, 2], 6: [0, 1, 0, 1, 0, 1, 0], 7: [0, 2, 0, 2, 0, 2, 0]}[cfg.rot]
    word = sum(v << (4 * k) for k, v in enumerate(tab))
    a(f"s_lshl_b32 s11, s{S_NT}, 2")
    a(f"s_lshr_b32 s13, {word:#x}, s11")
    a("s_and_b32 s13, s13, 15")
    a(f"s_and_b32 s11, s{S_SLOT}, 3")
    a("s_lshl_b32 s11, s11, 1")
    a("s_add_u32 s11, s11, s13")
    a("s_cmp_ge_u32 s11, 7")
    a("s_cselect_b32 s13, 7, 0")
    a(f"s_sub_u32 s{d_ffn}, s11, s13")
    for d in (d_blk, d_flip): a(f"s_mov_b32 s{d}, 0")

def slot(reg, n): return R[reg] + 2048 * n
SA = [slot(1, n) for n in range(6)]; SB = [slot(2, n) for n in range(6)]; SC = [slot(0, n) for n in range(6)]
WSLOT = {}
for n in range(6): WSLOT[n] = SA[n]; WSLOT[6 + n] = SB[n]
for n in range(4): WSLOT[12 + n] = SC[n]; WSLOT[16 + n] = SA[n]; WSLOT[20 + n] = SB[n]
WSLOT.update({24: SA[4], 25: SA[5], 26: SB[4], 27: SB[5]})
HTS = SC[4]
PH1, PH2, GA, FXA, SD = SC[0], SC[4], SB[0], SA[0], SC[0]

class Rec:
    def __init__(self): self.L = []
    def __call__(self, t): self.L.append(t)

def ssm_park(kc, K, KP, sQ):
    LR, LI, CR, CI, L16R, L16I, PWR, PWI, L64R, L64I, LWR, LWI, W0R = [KP + k for k in range(13)]
    vTW, vTR, vCB = KP + 16, KP + 17, KP + 18
    ssm_const_calc(kc, K, LR, LI, CR, CI)
    csq(kc, L16R, L16I, LR, LI, K)
    for _ in range(3): csq(kc, L16R, L16I, L16R, L16I, K)
    def powsel(dr, di, br, bi, bit, src):
        cmul(kc, K + 1, K + 2, dr, di, br, bi)
        kc(f"v_and_b32 v{K}, {bit}, v{src}")
        kc(f"v_cmp_ne_u32 vcc, 0, v{K}")
        kc(f"v_cndmask_b32 v{dr}, v{dr}, v{K+1}, vcc")
        kc(f"v_cndmask_b32 v{di}, v{di}, v{K+2}, vcc")
    kc(f"v_mov_b32 v{PWR}, v{CR}"); kc(f"v_mov_b32 v{PWI}, v{CI}")
    powsel(PWR, PWI, L16R, L16I, 32, 0)
    csq(kc, K + 14, K + 15, L16R, L16I, K)
    powsel(PWR, PWI, K + 14, K + 15, 16, 0)
    csq(kc, L64R, L64I, K + 14, K + 15, K)
    kc(f"v_mov_b32 v{K+10}, s{S_W4}")
    kc(f"v_mov_b32 v{LWR}, 1.0"); kc(f"v_mov_b32 v{LWI}, 0")
    powsel(LWR, LWI, L64R, L64I, 1, K + 10)
    csq(kc, K + 14, K + 15, L64R, L64I, K)
    powsel(LWR, LWI, K + 14, K + 15, 2, K + 10)
    csq(kc, K + 14, K + 15, K + 14, K + 15, K)
    kc(f"v_lshrrev_b32 v{K+10}, 4, v0")
    kc(f"v_sub_u32 v{K+10}, s{S_MT}, v{K+10}")
    kc(f"v_add_u32 v{K+11}, -5, v{K+10}")
    kc(f"v_add_u32 v{K+10}, -1, v{K+10}")
    kc(f"v_mov_b32 v{W0R}, 1.0"); kc(f"v_mov_b32 v{W0R+1}, 0")
    kc(f"v_mov_b32 v{W0R+2}, 1.0"); kc(f"v_mov_b32 v{W0R+3}, 0")
    for b in range(3):
        powsel(W0R, W0R + 1, K + 14, K + 15, 1 << b, K + 10)
        if b < 2: powsel(W0R + 2, W0R + 3, K + 14, K + 15, 1 << b, K + 11)
        if b < 2: csq(kc, K + 14, K + 15, K + 14, K + 15, K)
    kc(f"s_add_u32 s36, s{sQ}, {HTS}")
    kc(f"v_bfe_u32 v{K}, v0, 4, 1")
    kc(f"v_lshrrev_b32 v{K+1}, 5, v0")
    kc(f"v_lshl_add_u32 v{K+2}, v{K}, 1, v{K+1}")
    kc(f"v_and_b32 v{K+3}, 15, v0")
    kc(f"v_and_b32 v{vTW}, 6, v{K+3}")
    kc(f"v_lshlrev_b32 v{vTW}, 4, v{vTW}")
    kc(f"v_lshlrev_b32 v{K+4}, 5, v{K+2}")
    kc(f"v_xor_b32 v{vTW}, v{vTW}, v{K+4}")
    kc(f"v_lshl_add_u32 v{vTW}, v{K+3}, 7, v{vTW}")
    kc(f"v_add_u32 v{vTW}, s36, v{vTW}")
    kc(f"v_lshlrev_b32 v{vCB}, 2, v{K+3}")
    kc(f"v_add_u32 v{vCB}, {C_L + 512}, v{vCB}")
    kc(f"v_bfe_u32 v{K+4}, v0, 2, 2")
    kc(f"v_lshl_add_u32 v{K+5}, v{K+1}, 3, v{K+4}")
    kc(f"v_lshlrev_b32 v{vTR}, 7, v{K+5}")
    kc(f"v_lshrrev_b32 v{K+4}, 1, v{K+4}")
    kc(f"v_xor_b32 v{K+4}, v{K+4}, v0")
    kc(f"v_and_b32 v{K+4}, 1, v{K+4}")
    kc(f"v_lshl_add_u32 v{vTR}, v{K+4}, 5, v{vTR}")
    kc(f"v_lshl_add_u32 v{vTR}, v{K}, 4, v{vTR}")
    kc(f"v_bfe_u32 v{K+4}, v0, 1, 1")
    kc(f"v_lshl_add_u32 v{vTR}, v{K+4}, 3, v{vTR}")
    kc(f"v_add_u32 v{vTR}, s36, v{vTR}")
    kc(f"s_lshl_b32 s36, s{S_W4}, 9")
    kc(f"s_add_u32 s36, s36, {STATS_L}")
    kc(f"v_lshl_add_u32 v{KP+19}, v{K+2}, 7, s36")
    vStS = KP + 19
    vAg, vPr, vF = KP + 20, KP + 21, KP + 22
    kc(f"v_lshlrev_b32 v{vAg}, 3, v{K+3}")
    kc(f"v_lshrrev_b32 v{vPr}, 4, v0")
    kc(f"v_mul_u32_u24 v{vPr}, 3584, v{vPr}")
    kc(f"s_lshl_b32 s36, s{S_NS}, 7")
    kc(f"v_add3_u32 v{vPr}, v{vPr}, v{vAg}, s36")
    kc(f"v_add_u32 v{vAg}, {AGG_L}, v{vAg}")
    kc(f"s_lshl_b32 s36, s{S_MT}, 2")
    kc(f"s_add_u32 s36, s36, s{S_W4}")
    kc("s_lshl_b32 s36, s36, 10")
    flag_index(kc, 37, 38, 14)
    kc("s_add_u32 s36, s36, s37")
    kc(f"s_add_u32 s36, s36, {WS_FLAG + 512:#x}")
    kc(f"v_mov_b32 v{vF}, s36")

def gen_loader(a, cfg, ts):
    a.label("L_loader")
    a("s_setprio 3")
    vm = VM(a)
    vXe, vXo, vW, vB = 1, 2, 3, 4
    vFv, vP, vO, vPQ = 5, 6, 7, 8
    vWd, vCe, vCo, vCh = 9, 10, 11, 12
    vRf, vRh = 13, 14
    vA, vC = 24, 25
    vT = 15
    ACC, CA, RD = 27, 28, 44
    STG = 64
    CF = 144
    SACC = 80
    XRAW = CF + 64
    KP = XRAW + 8
    sGrp = [28, 29, 30, 31, 36, 37, 21]
    SP = ['', ' sc1'][cfg.spol]
    sMX, sMW, sMB, sMP = 72, 74, 75, 70
    sPerm, sSX, sSW = 68, 69, 15
    sRF = 14
    AP = ['', ' sc1', ' sc1 nt', ' sc0 sc1', ' sc0', ' nt'][cfg.apol]
    OP = ['', ' sc1', ' nt', ' sc1 nt'][cfg.opol]
    polx = " nt" if cfg.polx else ""
    polw = " nt" if cfg.polw else ""
    a(f"v_lshrrev_b32 v{vA}, 3, v0")
    a(f"v_and_b32 v{vC}, 7, v0")
    a(f"v_lshrrev_b32 v{vT+2}, 1, v{vA}")
    a(f"s_lshl_b32 s11, s{S_W4}, 4")
    a(f"v_add_u32 v{vT}, s11, v{vA}")
    a(f"v_mul_u32_u24 v{vW}, 3584, v{vT}")
    a(f"v_and_b32 v{vT+4}, 1, v{vT+2}")
    a(f"v_lshlrev_b32 v{vT+4}, 2, v{vT+4}")
    a(f"v_xor_b32 v{vT+4}, v{vC}, v{vT+4}")
    a(f"v_lshl_add_u32 v{vW}, v{vT+4}, 4, v{vW}")
    a(f"s_lshl_b32 s11, s{S_NS}, 7")
    a(f"v_add_u32 v{vW}, s11, v{vW}")
    vW1 = 12
    a(f"v_xor_b32 v{vW1}, 32, v{vW}")
    a(f"s_lshl_b32 s11, s{S_MT}, 8")
    a(f"s_lshl_b32 s12, s{S_W4}, 6")
    a("s_add_u32 s11, s11, s12")
    a(f"v_lshrrev_b32 v{vT}, 2, v{vA}")
    a(f"v_and_b32 v{vT+1}, 3, v{vA}")
    a(f"v_lshl_add_u32 v{vT}, v{vT}, 4, v{vT+1}")
    a(f"v_add_u32 v{vT}, s11, v{vT}")
    a(f"v_mul_u32_u24 v{vXe}, 896, v{vT}")
    a(f"v_xor_b32 v{vT+3}, v{vC}, v{vT+2}")
    a(f"v_lshl_add_u32 v{vXe}, v{vT+3}, 4, v{vXe}")
    a(f"v_xor_b32 v{vXo}, 64, v{vXe}")
    a(f"s_and_b32 s12, s{S_W4}, 1")
    a(f"s_lshl_b32 s11, s{S_NS}, 4")
    a(f"s_lshl_b32 s13, s12, 3")
    a("s_add_u32 s11, s11, s13")
    a(f"v_add_u32 v{vT}, s11, v{vA}")
    a(f"v_mul_u32_u24 v{vB}, 896, v{vT}")
    a(f"v_lshl_add_u32 v{vB}, v{vT+3}, 4, v{vB}")
    a("s_lshl_b32 s13, s12, 6")
    a(f"v_xor_b32 v{vB}, s13, v{vB}")
    a(f"s_lshl_b32 s{sMX}, s{S_W4}, 13")
    a(f"s_lshl_b32 s{sMW}, s{S_W4}, 11")
    a(f"s_lshl_b32 s{sMB}, s{S_W4}, 10")
    a(f"s_mul_i32 s{sMP}, s{S_W4}, {Q}")
    perms = cfg.perms
    words = [sum(p[k] << (4 * k) for k in range(7)) for p in perms]
    ng = len(words)
    a(f"s_mov_b32 s{sPerm}, {words[0]:#x}")
    if ng > 1:
        if cfg.slab:
            a(f"s_add_u32 s11, s{S_SLOT}, s{S_XCD}")
        else:
            a(f"s_and_b32 s11, s{S_SLOT}, 3")
            a(f"s_add_u32 s11, s11, s{S_NT}")
        if ng == 3:
            a("s_mul_i32 s13, s11, 43")
            a("s_lshr_b32 s13, s13, 7")
            a("s_mul_i32 s13, s13, 3")
            a("s_sub_u32 s11, s11, s13")
        else:
            a(f"s_and_b32 s11, s11, {ng-1}")
        for g in range(1, ng):
            a(f"s_cmp_eq_u32 s11, {g}")
            a(f"s_cmov_b32 s{sPerm}, {words[g]:#x}")
    ts.x(1, 1)
    a("s_waitcnt lgkmcnt(0)")
    ts.x(1, 2)
    if cfg.tlb:
        a(f"v_mov_b32 v40, s{P_X}")
        a(f"v_mov_b32 v41, s{P_X+1}")
        for ln, p in enumerate([P_WG, P_WU, P_BRE, P_BIM, P_WD, P_CRE, P_CIM, P_WS][:cfg.tlb], 1):
            a(f"v_writelane_b32 v40, s{p}, {ln}")
            a(f"v_writelane_b32 v41, s{p+1}, {ln}")
        a(f"s_mov_b64 exec, {(1 << (cfg.tlb + 1)) - 1:#x}")
        a("global_load_dword v62, v[40:41], off")
        a("s_mov_b64 exec, -1")
    srd(a, SRD_A, P_WG, 448 * 3584)
    srd(a, SRD_X, P_X, 2048 * 896)
    srd(a, SRD_B, P_WU, 448 * 3584)
    a(f"s_cmp_ge_u32 s{S_W4}, 2")
    srd_sel(a, SRD_C, P_BIM, P_BRE, 448 * 896)

    thr = [None]
    def dma(vm, tag, voff, srdn, sbase, soff, m0base, m0off, pol=""):
        a(f"s_add_u32 m0, s{m0base}, {m0off}")
        a(f"s_add_u32 s11, s{sbase}, {soff}")
        if thr[0] is not None and len(vm.q) > thr[0]:
            a(f"s_waitcnt vmcnt({thr[0]})")
            vm.q = vm.q[-thr[0]:]
        vm.issue(tag, f"buffer_load_dwordx4 v{voff}, s[{srdn}:{srdn+3}], s11 offen{pol} lds")
    def issue_ops(s):
        r = R[s % 3]
        ops = []
        def pre():
            a(f"s_bfe_u32 s{sSX}, s{sPerm}, {(4 << 16) | (4 * s):#x}")
            a(f"s_mul_i32 s{sSW}, s{sSX}, {64*3584}")
            a(f"s_lshl_b32 s{sSX}, s{sSX}, 7")
        def mk(*args): return lambda: dma(vm, ('st', s), *args)
        L = []
        for i in range(2): L.append(mk((vW, vW1)[i], SRD_A, sSW, i * 8 * 3584, sMW, r + OFF_WG + i * 1024, polw))
        for j in range(4): L.append(mk(vXo if j & 1 else vXe, SRD_X, sSX, (32 * (j >> 2) + 4 * (j & 3)) * 896, sMX, r + j * 1024, polx))
        for i in range(2): L.append(mk((vW, vW1)[i], SRD_B, sSW, i * 8 * 3584, sMW, r + OFF_WU + i * 1024, polw))
        for j in range(4, 8): L.append(mk(vXo if j & 1 else vXe, SRD_X, sSX, (32 * (j >> 2) + 4 * (j & 3)) * 896, sMX, r + j * 1024, polx))
        L.append(mk(vB, SRD_C, sSX, 0, sMB, r + OFF_BB, polw))
        first = L[0]
        L[0] = lambda: (pre(), first())
        return L
    SRD_WD, SRD_CC, sBlk, sFlip, P_DSK2 = 32, 24, 16, 17, 38
    def w_ops(ps):
        L = []
        for p in ps:
            for n in range(2):
                def op(p=p, n=n):
                    if 12 <= p < 22:
                        d = STG + (p - 12) * 8 + 4 * n
                        a(f"s_add_u32 s11, s{sGrp[p//4]}, {(32 * ((p % 4) >> 1) + 16 * n + 8 * (p & 1)) * 896}")
                        vm.issue(('w', p), f"buffer_load_dwordx4 v[{d}:{d+3}], v{vWd}, s[{SRD_WD}:{SRD_WD+3}], s11 offen")
                    else:
                        dma(vm, ('w', p), vWd, SRD_WD, sGrp[p//4], (32 * ((p % 4) >> 1) + 16 * n + 8 * (p & 1)) * 896, sMP, WSLOT[p] + n * 1024)
                L.append(op)
        return L
    sCB = [68, 69, 15]
    sCF, sCH = 16, 17
    def cfrag(p, lc): return CF + 8 * p + 4 * lc
    def c_ops(b):
        L = []
        for p in (range(4 * b, 4 * b + 4) if b < 3 else (12, 13)):
            for lc in range(2):
                def op(p=p, lc=lc):
                    d = cfrag(p, lc)
                    sb, so = (sCF, 2048 * p) if p < 12 else (sCH, 2048 * (p - 12))
                    if cfg.crot and p < 12: sb, so = sCB[p // 4], 2048 * (p % 4)
                    a(f"s_add_u32 s11, s{sb}, {so}")
                    vm.issue(('c', b), f"buffer_load_dwordx4 v[{d}:{d+3}], v{(vCe, vCo)[lc]}, s[{SRD_WS}:{SRD_WS+3}], s11 offen sc1")
                L.append(op)
        return L
    def w_write(ps):
        vm.wait(('w', ps[-1]))
        base = WSLOT[ps[0]]
        a(f"v_add_u32 v{vT+4}, {base}, v{vPQ}")
        for p in ps:
            for n in range(2):
                d = STG + (p - 12) * 8 + 4 * n
                a(f"ds_write_b128 v{vT+4}, v[{d}:{d+3}] offset:{WSLOT[p] - base + 1024*n}")
    def colsum_reads(s):
        r = R[s % 3]
        a(f"s_add_u32 s11, s{sMW}, {r + OFF_WG}")
        a(f"v_add_u32 v{vT}, s11, v{vP}")
        a(f"s_add_u32 s11, s{sMB}, {r + OFF_BB}")
        a(f"v_add_u32 v{vT+1}, s11, v{vP}")
        a(f"v_xor_b32 v{vT+2}, 32, v{vT}")
        a(f"ds_read_b128 v[{RD}:{RD+3}], v{vT}")
        a(f"ds_read_b128 v[{RD+4}:{RD+7}], v{vT+2} offset:1024")
        a(f"ds_read_b128 v[{RD+8}:{RD+11}], v{vT} offset:8192")
        a(f"ds_read_b128 v[{RD+12}:{RD+15}], v{vT+2} offset:9216")
        a(f"ds_read_b128 v[{RD+16}:{RD+19}], v{vT+1}")
    def colsum_ops():
        L = ["s_waitcnt lgkmcnt(0)"]
        for n in range(4):
            for d in range(4):
                w = RD + 4 * n + d
                ac = CA + (n >> 1) * 8 + 2 * d
                L.append(f"v_lshlrev_b32 v{vT+2}, 16, v{w}")
                L.append(f"v_and_b32 v{vT+3}, s71, v{w}")
                L.append(f"v_add_f32 v{ac}, v{ac}, v{vT+2}")
                L.append(f"v_add_f32 v{ac+1}, v{ac+1}, v{vT+3}")
        for d in range(4):
            w = RD + 16 + d
            L.append(f"v_lshlrev_b32 v{vT+2}, 16, v{w}")
            L.append(f"v_and_b32 v{vT+3}, s71, v{w}")
            L.append(f"v_add_f32 v{vT+2}, v{vT+2}, v{vT+3}")
            L.append(f"v_add_f32 v{ACC}, v{ACC}, v{vT+2}")
        return L

    stage_ops = {}
    cdone = set()
    def tok_ops(toks):
        L = []
        for t in toks:
            if t[0] == 's':
                st = int(t[1])
                if st not in stage_ops: stage_ops[st] = issue_ops(st)
                lo, hi = (0, 13) if ':' not in t else map(int, t.split(':')[1].split('-'))
                L += stage_ops[st][lo:hi]
            elif t[0] == 'w': L += w_ops([int(t[1:])])
            elif t[0] == 'c':
                lo, hi = (0, 8) if ':' not in t else map(int, t.split(':')[1].split('-'))
                L += c_ops(int(t[1]))[lo:hi]
                cdone.add(int(t[1]))
            else: L.append(lambda t=t: special(t))
        return L
    def run_tokens(toks):
        for o in tok_ops(toks): o()
    def special(t):
        if True:
            if t == 'put':
                vm.wait('stats')
                a(f"s_lshl_b32 s11, s{S_W4}, 9")
                a(f"s_add_u32 s11, s11, {STATS_L}")
                a(f"v_lshl_add_u32 v{vT+4}, v0, 3, s11")
                a(f"ds_write_b64 v{vT+4}, v[20:21]")
                a(f"v_lshlrev_b32 v{vT+4}, 3, v0")
                a(f"v_add_u32 v{vT+4}, {ST2_L}, v{vT+4}")
                a(f"ds_write_b64 v{vT+4}, v[22:23]")
            elif t == 'e':
                a(f"s_add_u32 s12, s41, {16*896}")
                vm.issue('e', f"buffer_load_dwordx4 v[{XRAW}:{XRAW+3}], v20, s[{SRD_X}:{SRD_X+3}], s41 offen")
                vm.issue('e', f"buffer_load_dwordx4 v[{XRAW+4}:{XRAW+7}], v20, s[{SRD_X}:{SRD_X+3}], s12 offen")
                vm.issue('e', f"global_load_ushort v{KP+23}, v21, s[{P_DSK2}:{P_DSK2+1}]")
            elif t == 'm':
                a(f"v_lshlrev_b32 v{vP}, 4, v0")
                a("s_lshl_b32 s12, s2, 2")
                a(f"s_add_u32 s12, s12, s{S_W4}")
                a("s_lshl_b32 s12, s12, 10")
                a(f"s_add_u32 s12, s12, {192*3584}")
                vm.issue('m', f"buffer_load_dwordx4 v[140:143], v{vP}, s[{SRD_A}:{SRD_A+3}], s12 offen")
                vm.issue('m', f"buffer_load_dwordx4 v[140:143], v{vP}, s[{SRD_B}:{SRD_B+3}], s12 offen")
                a(f"s_and_b32 s12, s{S_W4}, 1")
                a("s_lshl_b32 s11, s2, 1")
                a("s_add_u32 s12, s12, s11")
                a("s_lshl_b32 s12, s12, 10")
                vm.issue('m', f"buffer_load_dwordx4 v[140:143], v{vP}, s[{SRD_C}:{SRD_C+3}], s12 offen")
            elif t == 'n':
                a("s_lshl_b32 s12, s2, 2")
                a(f"s_add_u32 s12, s12, s{S_W4}")
                a("s_lshl_b32 s12, s12, 8")
                a(f"s_add_u32 s12, s12, {384*3584}")
                a("s_mov_b64 exec, 0xffff")
                vm.issue('m', f"buffer_load_dwordx4 v[140:143], v{vP}, s[{SRD_A}:{SRD_A+3}], s12 offen")
                vm.issue('m', f"buffer_load_dwordx4 v[140:143], v{vP}, s[{SRD_B}:{SRD_B+3}], s12 offen")
                a("s_mov_b64 exec, -1")
            elif t == 'k':
                a("s_waitcnt lgkmcnt(0)")
            elif t == 'init':
                a(f"v_mov_b32 v26, 0")
                vm.issue('init', f"global_load_dword v5, v26, s[{P_DBG}:{P_DBG+1}] sc1")
            elif t == 'fetch':
                vm.wait('init')
                def cond():
                    a(f"v_readfirstlane_b32 s11, v5")
                    a(f"s_cmp_ge_u32 s11, {INIT_N}")
                spin_check(a, "L_init", [f"global_load_dword v5, v26, s[{P_DBG}:{P_DBG+1}] sc1"], cond, 8)
                if cfg.ts == 1 and cfg.tsset == 3: a(f"s_add_u32 s{TS0+18}, s73, 1")
                if cfg.crot:
                    a(f"s_and_b32 s11, s{S_SLOT}, 3")
                    a("s_lshl_b32 s11, s11, 1")
                    a("s_lshr_b32 s12, 0x924, s11")
                    for b in range(3):
                        a(f"s_bfe_u32 s11, s12, {(2 << 16) | (2 * b):#x}")
                        a("s_lshl_b32 s11, s11, 13")
                        a(f"s_add_u32 s{sCB[b]}, s11, s{sCF}")
                a(f"s_lshl_b32 s11, s{S_MT}, 8")
                a(f"s_lshl_b32 s12, s{S_W4}, 6")
                a("s_add_u32 s11, s11, s12")
                a(f"v_add_lshl_u32 v5, v0, s11, 3")
                a(f"s_lshl_b32 s12, s{S_M64}, 6")
                a(f"v_add_lshl_u32 v26, v0, s12, 3")
                a(f"s_mov_b32 s11, {WS_STATS:#x}")
                vm.issue('stats', f"buffer_load_dwordx2 v[20:21], v5, s[{SRD_WS}:{SRD_WS+3}], s11 offen sc1")
                vm.issue('stats', f"buffer_load_dwordx2 v[22:23], v26, s[{SRD_WS}:{SRD_WS+3}], s11 offen sc1")
            else: raise ValueError(t)
    win = cfg.win
    if cfg.n6 >= 0: win[cfg.n6] = win[cfg.n6] + ["n"]
    run_tokens([f"s0:0-{cfg.s0a}"])
    if cfg.s0a == 13:
        ts(1)
        ts.x(1, 6)
        run_tokens(win.get(-1, []))
        a("s_setprio 0")
    a(f"s_and_b32 s12, s{S_W4}, 1")
    a(f"v_lshlrev_b32 v{vP}, 4, v0")
    a(f"v_add_u32 v{vPQ}, s{sMP}, v{vP}")
    a(f"s_mul_i32 s14, s{S_W4}, 448")
    a(f"v_add_u32 v{vT}, s14, v{vA}")
    a(f"v_mul_u32_u24 v{vWd}, 896, v{vT}")
    a(f"v_lshl_add_u32 v{vWd}, v{vT+4}, 4, v{vWd}")
    a(f"s_lshl_b32 s14, s{S_NT}, 7")
    a(f"v_add_u32 v{vWd}, s14, v{vWd}")
    a(f"v_and_b32 v{vT+1}, 3, v0")
    a("s_mov_b32 s71, 0xffff0000")
    srd(a, SRD_WS, P_WS, WS_SIZE)
    a(f"s_mov_b64 s[{P_DSK2}:{P_DSK2+1}], s[{P_DSK}:{P_DSK+1}]")
    srd(a, SRD_WD, P_WD, 1792 * 896)
    p2_rot(a, cfg, sRF, sBlk, sFlip)
    a(f"s_lshl_b32 s11, s{S_M64}, 1")
    a("s_add_u32 s40, s11, s12")
    a("s_lshl_b32 s12, s40, 5")
    a(f"v_lshrrev_b32 v{vT}, 2, v0")
    a(f"v_add_u32 v{vT}, s12, v{vT}")
    a(f"v_mul_u32_u24 v{vT}, 896, v{vT}")
    a(f"v_lshl_add_u32 v20, v{vT+1}, 4, v{vT}")
    a(f"v_lshrrev_b32 v{vT+2}, 5, v0")
    a(f"v_lshl_add_u32 v{vT}, v{vT+2}, 4, s12")
    a(f"s_lshr_b32 s13, s{S_W4}, 1")
    a("s_lshl_b32 s12, s13, 5")
    a(f"s_lshl_b32 s11, s{S_NT}, 6")
    a("s_add_u32 s11, s11, s12")
    a("s_lshl_b32 s41, s11, 1")
    a(f"v_and_b32 v{vT+3}, 31, v0")
    a(f"v_add_u32 v{vT+1}, s11, v{vT+3}")
    a(f"v_mul_u32_u24 v{vT}, 448, v{vT}")
    a(f"v_add_lshl_u32 v{vO}, v{vT}, v{vT+1}, 2")
    a(f"v_lshlrev_b32 v21, 1, v{vT+1}")
    a("s_lshl_b32 s12, s13, 10")
    a(f"v_add_u32 v{vCe}, s12, v{vP}")
    a(f"v_xor_b32 v{vCo}, 1024, v{vCe}")
    a(f"s_lshl_b32 s11, s{S_NT}, 1")
    a("s_add_u32 s11, s11, s13")
    a(f"s_mul_i32 s11, s11, {28*2048}")
    a(f"s_add_u32 s11, s11, {WS_CP:#x}")
    a(f"s_and_b32 s12, s{S_W4}, 1")
    a(f"s_lshl_b32 s{sCF}, s12, 15")
    a(f"s_add_u32 s{sCF}, s{sCF}, s11")
    a(f"s_lshl_b32 s{sCH}, s12, 12")
    a(f"s_add_u32 s{sCH}, s{sCH}, s11")
    a(f"s_add_u32 s{sCH}, s{sCH}, {12*2048}")
    ts.x(1, 8)
    LR, LI, CR, CI, L16R, L16I, PWR, PWI, L64R, L64I, LWR, LWI, W0R = [KP + k for k in range(13)]
    vTW, vTR, vCB, vStS, vAg, vPr, vF = [KP + k for k in range(16, 23)]
    a(f"s_lshl_b32 s21, s{S_NS}, 7")
    a(f"s_mul_i32 s22, s{S_MT}, 3584")
    a("s_add_u32 s22, s22, s21")
    a(f"s_add_u32 s22, s22, {WS_AGG - AGG_L:#x}")
    a(f"s_mov_b32 s23, {WS_AGG:#x}")
    a(f"s_mov_b32 s20, {WS_AGG + 4*3584:#x}")
    a(f"s_lshl_b32 s18, s{S_M64}, 10")
    a(f"s_and_b32 s11, s{S_W4}, 1")
    a("s_lshl_b32 s11, s11, 7")
    a("s_add_u32 s18, s18, s11")
    a(f"s_add_u32 s18, s18, {WS_FLAG + 512:#x}")
    a(f"s_lshl_b32 s11, s{S_MT}, 2")
    a(f"s_add_u32 s11, s11, s{S_W4}")
    a(f"s_mul_i32 s19, s11, {2*RT_BYTES}")
    a(f"s_lshl_b32 s11, s{S_NS}, 10")
    a("s_add_u32 s19, s19, s11")
    a(f"s_add_u32 s19, s19, {56*1024}")
    for g in range(7):
        a(f"s_add_u32 s12, s{sRF}, {g}")
        a("s_cmp_ge_u32 s12, 7")
        a("s_cselect_b32 s13, 7, 0")
        a("s_sub_u32 s12, s12, s13")
        a(f"s_mul_i32 s{sGrp[g]}, s12, {64*896}")
    a(f"s_add_u32 s11, s{sMX}, {R[2]}")
    a(f"v_add_u32 v{vT+4}, s11, v{vP}")
    kparts = {}
    if cfg.s0a < 13:
        run_tokens([f"s0:{cfg.s0a}-13"])
        ts(1)
        ts.x(1, 6)
        run_tokens(win.get(-1, []))
    a(f"s_setprio {cfg.wprio}")
    for s in range(7):
        vm.wait(('st', s))
        ts.x(2, 1 + s)
        a("s_barrier")
        ts.x(3, 1 + s)
        if s == 0: ts(2)
        if s == 0:
            for k in range(6): a(f"ds_read_b128 v[{KP+4*k}:{KP+4*k+3}], v{vT+4} offset:{1024*k}")
        toks = [t for t in win.get(s, []) if not t.startswith("cs")]
        if s == 6:
            run_tokens(toks[:cfg.w6pre])
            a("s_waitcnt lgkmcnt(0)")
            a("s_barrier")
            a("s_setprio 0")
            run_tokens(toks[cfg.w6pre:])
        else:
            run_tokens(toks)
            if s == 5: a("s_waitcnt lgkmcnt(0)")
    ts.x(2, 8)
    a("s_barrier")
    ts(3)
    ts.x(3, 8)
    a(f"v_bfe_u32 v{vT}, v0, 4, 1")
    a(f"v_lshlrev_b32 v{vT+2}, 11, v{vT}")
    a(f"v_lshrrev_b32 v{vT}, 5, v0")
    a(f"v_lshl_add_u32 v{vT+2}, v{vT}, 8, v{vT+2}")
    a(f"v_and_b32 v{vT}, 15, v0")
    a(f"v_lshl_add_u32 v{vT+2}, v{vT}, 4, v{vT+2}")
    a(f"s_add_u32 s11, s{sMP}, {SD}")
    a(f"v_add_u32 v{vT+2}, s11, v{vT+2}")
    vm.wait(('w', 11), "lgkmcnt(0)")
    a("s_barrier")
    X, Y, ST = 32, 48, CF
    HR, HI, T1, T2, CBR, CBI, G0, G1, QR, QI = 20, 21, 22, 23, 24, 25, 26, 28, 30, 31
    for k in range(8): a(f"ds_read_b128 v[{X+4*k}:{X+4*k+3}], v{vT+2} offset:{(k>>2)*4096 + (k&3)*512}")
    a(f"ds_read_b32 v{CBR}, v{vCB}")
    a(f"ds_read_b32 v{CBI}, v{vCB} offset:64")
    for k in range(8): a(f"ds_read_b128 v[{ST+4*k}:{ST+4*k+3}], v{vStS} offset:{16*k}")
    a(f"s_setprio {cfg.eprio}")
    a(f"v_lshrrev_b32 v1, 4, v0")
    a(f"v_sub_u32 v1, s{S_MT}, v1")
    a(f"v_cmp_le_i32 s[56:57], 1, v1")
    a(f"v_cmp_le_i32 s[58:59], 5, v1")
    a(f"v_lshlrev_b32 v5, 16, v{KP+23}")
    a(f"v_mov_b32 v3, v{vF}")
    vF = 3
    a("s_waitcnt lgkmcnt(0)")
    side = {}
    for r in range(16):
        if r in side: side[r]()
        m, rs = ST + 2 * r, ST + 2 * r + 1
        a(f"v_fma_f32 v{X+r}, -v{m}, v{CBR}, v{X+r}")
        a(f"v_fma_f32 v{Y+r}, -v{m}, v{CBI}, v{Y+r}")
        a(f"v_mul_f32 v{X+r}, v{X+r}, v{rs}")
        a(f"v_mul_f32 v{Y+r}, v{Y+r}, v{rs}")
        if r >= 1:
            pr, pi = (X, Y) if r == 1 else (HR, HI)
            a(f"v_fma_f32 v{T1}, -v{LI}, v{pi}, v{X+r}")
            a(f"v_fma_f32 v{T2}, v{LI}, v{pr}, v{Y+r}")
            a(f"v_fma_f32 v{HR}, v{LR}, v{pr}, v{T1}")
            a(f"v_fma_f32 v{HI}, v{LR}, v{pi}, v{T2}")
    z = CF
    a(f"v_mov_b32 v{z}, v{HR}"); a(f"v_mov_b32 v{z+1}, v{HI}")
    csq(a, z + 8, z + 9, L16R, L16I, z + 10)
    a(f"v_permlane32_swap_b32 v{HR}, v{z}")
    a(f"v_permlane32_swap_b32 v{HI}, v{z+1}")
    a(f"v_fma_f32 v{z}, -v{L16I}, v{HI}, v{z}")
    a(f"v_fma_f32 v{z+1}, v{L16I}, v{HR}, v{z+1}")
    a(f"v_fmac_f32 v{z}, v{L16R}, v{HR}")
    a(f"v_fmac_f32 v{z+1}, v{L16R}, v{HI}")
    a(f"v_mov_b32 v{z+2}, v{z}"); a(f"v_mov_b32 v{z+3}, v{z+1}")
    a(f"s_lshl_b32 s11, s{S_W4}, 7")
    a(f"v_add_u32 v{z+5}, s11, v{vAg}")
    a(f"v_permlane16_swap_b32 v{z}, v{z+2}")
    a(f"v_permlane16_swap_b32 v{z+1}, v{z+3}")
    a(f"v_fma_f32 v{z+2}, -v{z+9}, v{z+1}, v{z+2}")
    a(f"v_fma_f32 v{z+3}, v{z+9}, v{z}, v{z+3}")
    a(f"v_fmac_f32 v{z+2}, v{z+8}, v{z}")
    a(f"v_fmac_f32 v{z+3}, v{z+8}, v{z+1}")
    a(f"ds_write_b64 v{z+5}, v[{z+2}:{z+3}]")
    a("s_waitcnt lgkmcnt(0)")
    ts.x(2, 9)
    a(f"s_setprio {cfg.lprio}")
    a("s_barrier")
    ts(4)
    E = CF + 16
    for i in range(4): a(f"ds_read_b64 v[{E+2+2*i}:{E+3+2*i}], v{vAg} offset:{128*i}")
    a(f"v_mov_b32 v{E}, 0")
    a(f"v_mov_b32 v{E+1}, 0")
    a(f"v_and_b32 v{z+4}, 16, v0")
    a(f"v_cmp_ne_u32 s[12:13], 0, v{z+4}")
    for i in range(1, 4):
        e, p = E + 2 + 2 * i, E + 2 * i
        a(f"s_waitcnt lgkmcnt({3 - i})")
        a(f"v_fma_f32 v{e}, -v{L64I}, v{p+1}, v{e}")
        a(f"v_fma_f32 v{e+1}, v{L64I}, v{p}, v{e+1}")
        a(f"v_fmac_f32 v{e}, v{L64R}, v{p}")
        a(f"v_fmac_f32 v{e+1}, v{L64R}, v{p+1}")
    a(f"s_cmp_lg_u32 s{S_W4}, 0")
    a("s_cbranch_scc1 L_l_nopub")
    e = E + 8
    a(f"v_cmp_eq_u32 vcc, -1, v{e}")
    a(f"v_mov_b32 v{T1}, 0x7fc00000")
    a(f"v_cndmask_b32 v{e}, v{e}, v{T1}, vcc")
    a("s_mov_b64 exec, 0xffff")
    a(f"buffer_store_dwordx2 v[{e}:{e+1}], v{vAg}, s[{SRD_WS}:{SRD_WS+3}], s22 offen sc1")
    a("s_mov_b64 exec, -1")
    ts(5)
    a.label("L_l_nopub")
    a(f"v_cmp_lt_u32 vcc, 31, v0")
    a(f"v_cndmask_b32 v{z}, 0, v{z}, s[12:13]")
    a(f"v_cndmask_b32 v{z+1}, 0, v{z+1}, s[12:13]")
    a(f"v_fma_f32 v{HR}, -v{L16I}, v{z+1}, v{HR}")
    a(f"v_fma_f32 v{HI}, v{L16I}, v{z}, v{HI}")
    a(f"v_fmac_f32 v{HR}, v{L16R}, v{z}")
    a(f"v_fmac_f32 v{HI}, v{L16R}, v{z+1}")
    a(f"v_cndmask_b32 v{z}, v{z}, v{HR}, vcc")
    a(f"v_cndmask_b32 v{z+1}, v{z+1}, v{HI}, vcc")
    cmul(a, HR, HI, z, z + 1, CR, CI)
    a(f"s_bitcmp1_b32 s{S_W4}, 0")
    a("s_cselect_b64 vcc, -1, 0")
    a(f"v_cndmask_b32 v{QR}, v{E}, v{E+2}, vcc")
    a(f"v_cndmask_b32 v{QI}, v{E+1}, v{E+3}, vcc")
    a(f"v_cndmask_b32 v{T1}, v{E+4}, v{E+6}, vcc")
    a(f"v_cndmask_b32 v{T2}, v{E+5}, v{E+7}, vcc")
    a(f"s_bitcmp1_b32 s{S_W4}, 1")
    a("s_cselect_b64 vcc, -1, 0")
    a(f"v_cndmask_b32 v{QR}, v{QR}, v{T1}, vcc")
    a(f"v_cndmask_b32 v{QI}, v{QI}, v{T2}, vcc")
    ts.x(2, 10)
    thr[0] = cfg.thr
    lds = [f"buffer_load_dwordx2 v[{G0}:{G0+1}], v{vPr}, s[{SRD_WS}:{SRD_WS+3}], s23 offen sc1",
           f"buffer_load_dwordx2 v[{G1}:{G1+1}], v{vPr}, s[{SRD_WS}:{SRD_WS+3}], s20 offen sc1"]
    up = Rec()
    for r in range(16):
        up(f"v_mul_f32 v{T1}, v{CI}, v{Y+r}")
        up(f"v_mul_f32 v{T2}, v{CI}, v{X+r}")
        up(f"v_fma_f32 v{X+r}, v{CR}, v{X+r}, -v{T1}")
        up(f"v_fma_f32 v{Y+r}, v{CR}, v{Y+r}, v{T2}")
    vRd, vOne = 4, 2
    a(f"s_lshl_b32 s11, s{S_W4}, 2")
    a(f"s_add_u32 s11, s11, {CNT_L + 16}")
    a(f"v_mov_b32 v{vRd}, s11")
    a(f"v_mov_b32 v{vOne}, 1")
    thr[0] = None
    co = w_ops(range(22, 28)) + (c_ops(0) if cfg.c0early else [])
    interleave(a, co[:cfg.c1], up.L, 4)
    if cfg.agpos == 0:
        for t in lds: vm.issue('ag', t)
    w_write([12, 13, 14, 15])
    a(f"ds_write_b32 v{vRd}, v{vOne}")
    XV, STT, DS = 64, 80, 5
    TT = SACC + 32
    vHW = 1
    a(f"v_add_u32 v{vHW}, {HTS}, v{vPQ}")
    a(f"ds_write_b128 v{vHW}, v[{XRAW}:{XRAW+3}]")
    a(f"ds_write_b128 v{vHW}, v[{XRAW+4}:{XRAW+7}] offset:1024")
    a(f"v_lshrrev_b32 v{vT+3}, 5, v0")
    a(f"v_lshlrev_b32 v{vT+2}, 10, v{vT+3}")
    a(f"v_and_b32 v{vT}, 31, v0")
    a(f"v_lshl_add_u32 v{vT+2}, v{vT}, 1, v{vT+2}")
    a(f"s_add_u32 s11, s{sMP}, {HTS}")
    a(f"v_add_u32 v{vT+2}, s11, v{vT+2}")
    for r in range(16): a(f"ds_read_u16 v{XV+r}, v{vT+2} offset:{64*r}")
    if cfg.agpos == 1:
        for t in lds: vm.issue('ag', t)
    w_write([16, 17])
    def wrest():
        w_write([18, 19])
        w_write([20, 21])
        a(f"v_mov_b32 v{T1}, 2")
        a(f"ds_write_b32 v{vRd}, v{T1}")
    if not cfg.wl: wrest()
    co = co[cfg.c1:]
    ts(8)
    vm.wait('ag')
    def cond():
        a(f"v_cmp_eq_u32 vcc, -1, v{G0}")
        a("s_and_b64 s[48:49], vcc, s[56:57]")
        a(f"v_cmp_eq_u32 vcc, -1, v{G1}")
        a("s_and_b64 s[50:51], vcc, s[58:59]")
        a("s_or_b64 s[48:49], s[48:49], s[50:51]")
        a("s_cmp_eq_u64 s[48:49], 0")
    spin_check(a, "L_agg", lds, cond, 2)
    ts(6)
    SR, SI = CBR, CBI
    cmul(a, SR, SI, G0, G0 + 1, W0R, W0R + 1)
    cmul(a, T1, T2, G1, G1 + 1, W0R + 2, W0R + 3)
    a(f"v_cndmask_b32 v{SR}, 0, v{SR}, s[56:57]")
    a(f"v_cndmask_b32 v{SI}, 0, v{SI}, s[56:57]")
    a(f"v_cndmask_b32 v{T1}, 0, v{T1}, s[58:59]")
    a(f"v_cndmask_b32 v{T2}, 0, v{T2}, s[58:59]")
    a(f"v_add_f32 v{SR}, v{SR}, v{T1}")
    a(f"v_add_f32 v{SI}, v{SI}, v{T2}")
    for sw in ("v_permlane32_swap_b32", "v_permlane16_swap_b32"):
        a(f"v_mov_b32 v{T1}, v{SR}")
        a(f"v_mov_b32 v{T2}, v{SI}")
        a(f"{sw} v{SR}, v{T1}")
        a(f"{sw} v{SI}, v{T2}")
        a(f"v_add_f32 v{SR}, v{SR}, v{T1}")
        a(f"v_add_f32 v{SI}, v{SI}, v{T2}")
    a(f"v_fmac_f32 v{QR}, v{LWR}, v{SR}")
    a(f"v_fmac_f32 v{QI}, v{LWR}, v{SI}")
    a(f"v_fma_f32 v{QR}, -v{LWI}, v{SI}, v{QR}")
    a(f"v_fmac_f32 v{QI}, v{LWI}, v{SR}")
    a(f"v_fmac_f32 v{HR}, v{PWR}, v{QR}")
    a(f"v_fmac_f32 v{HI}, v{PWR}, v{QI}")
    a(f"v_fma_f32 v{HR}, -v{PWI}, v{QI}, v{HR}")
    a(f"v_fmac_f32 v{HI}, v{PWI}, v{QR}")
    pr, pi = HR, HI
    PK, HF = 96, 80
    rest = co[:cfg.c2]
    for r in range(16):
        if rest: rest.pop(0)()
        a(f"v_fma_f32 v{X+r}, -v{LI}, v{pi}, v{X+r}")
        a(f"v_fma_f32 v{Y+r}, v{LI}, v{pr}, v{Y+r}")
        a(f"v_fmac_f32 v{X+r}, v{LR}, v{pr}")
        a(f"v_fmac_f32 v{Y+r}, v{LR}, v{pi}")
        pr, pi = X + r, Y + r
    for k in range(8):
        a(f"v_cvt_pk_bf16_f32 v{PK+k}, v{X+2*k}, v{X+2*k+1}")
    a(f"ds_write_b128 v{vTW}, v[{PK}:{PK+3}]")
    a(f"ds_write_b128 v{vTW}, v[{PK+4}:{PK+7}] offset:16")
    for k in range(8):
        a(f"v_cvt_pk_bf16_f32 v{PK+8+k}, -v{Y+2*k}, -v{Y+2*k+1}")
    a(f"ds_write_b128 v{vTW}, v[{PK+8}:{PK+11}] offset:2048")
    a(f"ds_write_b128 v{vTW}, v[{PK+12}:{PK+15}] offset:2064")
    for q in range(2):
        for part in range(2):
            for j in range(2):
                d = HF + 8 * q + 4 * part + 2 * j
                a(f"ds_read_b64_tr_b16 v[{d}:{d+1}], v{vTR} offset:{(part*16 + 4*j)*128 + 64*(q ^ j)}")
    assert not rest
    a("s_waitcnt lgkmcnt(0)")
    for q in range(2):
        for part in range(2):
            d = HF + 8 * q + 4 * part
            a(f"s_add_u32 s11, s19, {q*RT_BYTES + part*HALF_BYTES}")
            vm.issue('hs', f"buffer_store_dwordx4 v[{d}:{d+3}], v{vP}, s[{SRD_WS}:{SRD_WS+3}], s11 offen{SP}")
    if cfg.wl: wrest()
    def flag2():
        vm.wait('hs')
        a("s_mov_b64 exec, 1")
        vm.issue('f', f"buffer_store_dword v{vOne}, v{vF}, s[{SRD_WS}:{SRD_WS+3}], 0 offen sc1")
        a("s_mov_b64 exec, -1")
        ts(7)
    if cfg.f2b == 0: flag2()
    for o in co[cfg.c2:] + (c_ops(2) if not cfg.clate else []): o()
    if cfg.f2b == 1: flag2()
    a(f"s_and_b32 s11, s{S_W4}, 1")
    a("s_lshl_b32 s11, s11, 8")
    a(f"s_add_u32 s11, s11, {ST2_L}")
    a(f"v_lshl_add_u32 v{vT+3}, v{vT+3}, 7, s11")
    STT = 32
    for k in range(8): a(f"ds_read_b128 v[{STT+4*k}:{STT+4*k+3}], v{vT+3} offset:{16*k}")
    for r in range(16): a(f"v_lshlrev_b32 v{XV+r}, 16, v{XV+r}")
    a("s_waitcnt lgkmcnt(0)")
    a("s_setprio 0")
    def rnd_pair(r0, r1):
        a(f"v_cvt_pk_bf16_f32 v{r1}, v{r0}, v{r1}"); a(f"v_lshlrev_b32 v{r0}, 16, v{r1}"); a(f"v_and_b32 v{r1}, s71, v{r1}")
    for r in range(16): a(f"v_sub_f32 v{TT+r}, v{XV+r}, v{STT+2*r}")
    for k in range(8): rnd_pair(TT + 2 * k, TT + 2 * k + 1)
    a(f"v_mov_b32 v{T2}, 3")
    vm.wait(('w', 27))
    a(f"ds_write_b32 v{vRd}, v{T2}")
    for r in range(16): a(f"v_mul_f32 v{TT+r}, v{TT+r}, v{STT+2*r+1}")
    for k in range(8): rnd_pair(TT + 2 * k, TT + 2 * k + 1)
    for r in range(16): a(f"v_mul_f32 v{TT+r}, v{TT+r}, v{DS}")
    for k in range(8): rnd_pair(TT + 2 * k, TT + 2 * k + 1)
    def poll(name, off):
        sspin(a, name, [f"s_load_dwordx16 s[20:35], s[{P_WS}:{P_WS+1}], s18 glc"], pcond, cfg.psleep)
    if True:
        def pcond():
            for k in range(0, 12, 4): a(f"s_and_b64 s[{20+k}:{21+k}], s[{20+k}:{21+k}], s[{22+k}:{23+k}]")
            a("s_and_b64 s[20:21], s[20:21], s[24:25]")
            a("s_and_b64 s[28:29], s[28:29], s[32:33]")
            a("s_and_b64 s[20:21], s[20:21], s[28:29]")
            a("s_and_b32 s20, s20, s21")
            a("s_cmp_eq_u32 s20, 1")
    a(f"s_mul_i32 s57, s40, {RT_BYTES}")
    a("s_xor_b32 s11, s40, 1")
    a(f"s_mul_i32 s56, s11, {RT_BYTES}")
    a(f"s_lshr_b32 s11, s{S_W4}, 1")
    a(f"s_mul_i32 s11, s11, {HALF_BYTES}")
    a(f"s_add_u32 s11, s11, {56*1024}")
    a("s_add_u32 s56, s56, s11")
    a("s_add_u32 s57, s57, s11")
    a(f"s_and_b32 s12, s{S_W4}, 1")
    a("s_lshl_b32 s13, s12, 14")
    for b in range(3):
        if cfg.crot:
            a(f"s_sub_u32 s11, s{sCB[b]}, s{sCF}")
            a("s_lshr_b32 s11, s11, 1")
            a(f"s_add_u32 s{52+b}, s13, s11")
        else: a(f"s_add_u32 s{52+b}, s13, {b*4096}")
    a("s_lshl_b32 s12, s12, 11")
    a(f"s_add_u32 s55, s12, {12*1024}")
    srd(a, 60, P_OUT, 2048 * 1792)
    vW1, vW2, vCn, vCv = 1, 2, 9, 4
    vR = [3, 12, 13, 14]
    a(f"v_add_u32 v{vW1}, {PH1}, v{vPQ}")
    a(f"v_add_u32 v{vW2}, {PH2}, v{vPQ}")
    a(f"v_mov_b32 v{vCn}, {CNT_L}")
    for (reg, xr, base) in ((vR[0], 1, PH1), (vR[1], 3, PH1 + 4096), (vR[2], 2, PH2)):
        a(f"s_xor_b32 s11, s{S_W4}, {xr}")
        a(f"s_mul_i32 s11, s11, {Q}")
        a(f"s_add_u32 s11, s11, {base}")
        a(f"v_add_u32 v{reg}, s11, v{vP}")
    a(f"v_add_u32 v{vR[3]}, {GA}, v{vPQ}")
    ts.x(2, 11)
    ts.x(7, 11)
    AR = list(range(16, 64, 4))
    NA = len(AR)
    PO = [4, 5, 6, 7, 12, 13, 0, 1, 2, 3, 8, 9, 10, 11]
    def aload(n):
        lr, p = n // 14, PO[n % 14]
        if p % 4 == 0: a(f"s_add_u32 s58, s{56+lr}, s{52 + p//4}")
        d = AR[n % NA]
        vm.issue(('a', n), f"buffer_load_dwordx4 v[{d}:{d+3}], v{vP}, s[{SRD_WS}:{SRD_WS+3}], s58 offen offset:{(p%4)*1024}{AP}")
    def cnt_wait(name, off):
        a("s_mov_b32 s73, 0")
        a.label(name)
        a("s_waitcnt lgkmcnt(0)")
        a(f"v_readfirstlane_b32 s11, v{vCv}")
        a("s_cmp_ge_u32 s11, 4")
        a(f"s_cbranch_scc1 {name}ok")
        a("s_add_u32 s73, s73, 1")
        a(f"s_cmp_ge_u32 s73, {SPIN_MAX}")
        a(f"s_cbranch_scc1 {name}ok")
        a("s_sleep 1")
        a(f"ds_read_b32 v{vCv}, v{vCn} offset:{off}")
        a(f"s_branch {name}")
        a.label(name + "ok")
        a("s_nop 7")
    assert cfg.clate == 2 and cdone == {1, 3}
    if cfg.gate == 0: poll("L_ps", 128)
    if cfg.gate < 2:
        a(f"ds_read_b32 v{vCv}, v{vCn} offset:4")
        cnt_wait("L_l_c0", 4)
    if cfg.sprio: a(f"s_setprio {cfg.sprio}")
    cc = c_ops(0) + c_ops(2)
    for o in cc[:cfg.c0n]: o()
    if cfg.gate != 0: poll("L_ps", 128)
    ts(9)
    ts.x(7, 1)
    seq = [(lambda n=n: aload(n)) for n in range(6)] + cc[cfg.c0n:8] + [(lambda n=n: aload(n)) for n in range(6, 10)] + cc[max(8, cfg.c0n):] + [(lambda n=n: aload(n)) for n in range(10, NA)]
    npre = cfg.ramp if cfg.ramp else len(seq)
    for o in seq[:npre]: o()
    seq = seq[npre:]
    a("s_setprio 0")
    ts.x(7, 2)
    own = []
    assert cfg.dfr <= NA
    for n in range(28):
        lr, p = n // 14, PO[n % 14]
        assert ('a', n) in vm.q
        vm.wait(('a', n))
        assert ('c', min(p // 4, 3)) not in vm.q
        if n in (0, 7, 14, 21): ts.x(7, 3 + n // 7)
        d = AR[n % NA]
        for lc in (1, 0):
            acc = SACC + 32 * lr + 16 * lc
            c = "0" if (n % 14 == 0 and not (lr == 1 and lc == 0)) else f"v[{acc}:{acc+15}]"
            f = cfrag(p, lc)
            m = f"v_mfma_f32_32x32x16_bf16 v[{acc}:{acc+15}], v[{d}:{d+3}], v[{f}:{f+3}], {c}"
            if lc == 0 and n >= 28 - cfg.dfr: own.append(m)
            else: a(m)
        if n + NA < 28: seq.append(lambda n=n: aload(n + NA))
        for _ in range(3):
            if seq: seq.pop(0)()
        if cfg.gate == 2 and n == 14: a(f"ds_read_b32 v{vCv}, v{vCn} offset:4")
        if cfg.gate == 2 and n == 15: cnt_wait("L_l_c0", 4)
        if 16 <= n < 24:
            k = n - 16
            a(f"ds_write_b128 v{vW1}, v[{SACC+4*k}:{SACC+4*k+3}] offset:{1024*k}")
    ts.x(7, 7)
    def ownm(n=1):
        for _ in range(n):
            if own: a(own.pop(0))
    ownm(1)
    for k in range(4):
        if k < cfg.dfb - 1: ownm(1)
        a(f"ds_write_b128 v{vW2}, v[{SACC+48+4*k}:{SACC+48+4*k+3}] offset:{1024*k}")
    ownm(max(0, cfg.dfb - 5))
    a("s_waitcnt lgkmcnt(0)")
    ts.x(7, 9)
    a("s_barrier")
    ts(11)
    ts.x(7, 10)
    def rx(w, r):
        return (SACC + r, SACC + 16 + r, SACC + 48 + r, cfrag(r // 4, 1) + r % 4)[w]
    for k in range(4):
        for w in range(4):
            a(f"ds_read_b128 v[{rx(w,4*k)}:{rx(w,4*k)+3}], v{vR[w]} offset:{1024*k}")
        ownm(1)
    for k in range(4):
        a(f"s_waitcnt lgkmcnt({12 - 4*k})")
        rr = range(4 * k, 4 * k + 4)
        for r in rr: a(f"v_add_f32 v{rx(0,r)}, v{rx(0,r)}, v{rx(1,r)}")
        ownm(1)
        for r in rr: a(f"v_add_f32 v{rx(0,r)}, v{rx(0,r)}, v{rx(2,r)}")
        ownm(1)
        for r in rr: a(f"v_fmac_f32 v{XV+r}, v{rx(0,r)}, v{rx(3,r)}")
    ownm(100)
    ts(10)
    for r in range(16):
        a(f"v_fmac_f32 v{XV+r}, v{TT+r}, v{rx(3,r)}")
        if r % 2 == 0: a(f"s_mov_b32 s11, {r*1792}")
        a(f"buffer_store_dword v{XV+r}, v{vO}, s[60:63], s11 offen offset:{(r%2)*1792}{OP}")
    if cfg.ts:
        a("s_waitcnt vmcnt(0)")
        ts(12)
    if cfg.padto:
        a.label("L_pad")
        a("s_memrealtime s[98:99]")
        a("s_waitcnt lgkmcnt(0)")
        a("s_sub_u32 s98, s98, s100")
        a(f"s_cmp_lt_u32 s98, {cfg.padto}")
        a("s_cbranch_scc1 L_pad")
    ts.dump(16, 17, 1)
    a("s_endpgm")

def gen_consumer(a, cfg, ts):
    if cfg.al >= 2: a.raw(".p2align 12")
    a.label("L_consumer")
    SP = ["", " sc1"][cfg.spol]
    AP = ['', ' sc1', ' sc1 nt', ' sc0 sc1', ' sc0', ' nt'][cfg.apol]
    vm = VM(a)
    XA = [1, 2]; BA = [3, 4]; WA = [5, 6, 7, 8]
    vHS, vOne, vL16, vStF, vCL, vF, vPQ, vSo, vCn, vRd, vWB, MM = 9, 10, 11, 12, 13, 14, 15, 16, 17, 18, 19, 20
    XF = [24, 40]
    def RS(j): return 56 + 4 * j
    ONES, CA = 80, 84
    WE, BE = 22, [20, 21]
    ACC = 96
    def G(ft, ro): return ACC + 32 * ft + 8 * ro
    def U(ft, ro): return G(ft, ro) + 64
    def S(part, ro): return ACC + 128 + 16 * part + 4 * ro
    vI, vH, t0, t1, t2, vG = 24, 25, 26, 27, 28, 29
    a(f"v_and_b32 v{vI}, 15, v0")
    a(f"v_lshrrev_b32 v{vH}, 5, v0")
    a(f"v_lshrrev_b32 v{vG}, 4, v0")
    a(f"v_bfe_u32 v{t0}, v0, 1, 3")
    a(f"v_xor_b32 v{t0}, v{t0}, v{vG}")
    a(f"v_lshlrev_b32 v{t0}, 4, v{t0}")
    a(f"v_lshl_add_u32 v{t0}, v{vI}, 7, v{t0}")
    a(f"s_lshl_b32 s11, s{S_W4}, 13")
    for ks in range(2):
        a(f"v_xor_b32 v{t1}, {64*ks}, v{t0}")
        a(f"v_add_u32 v{XA[ks]}, s11, v{t1}")
        a(f"v_add_u32 v{BA[ks]}, {OFF_BB}, v{t1}")
    a(f"v_lshlrev_b32 v{vHS}, 4, v{vI}")
    a(f"v_lshl_add_u32 v{vHS}, v{vG}, 9, v{vHS}")
    a(f"v_bfe_u32 v{t0}, v0, 2, 2")
    a(f"v_lshlrev_b32 v{t1}, 7, v{t0}")
    a(f"v_lshrrev_b32 v{t0}, 1, v{t0}")
    a(f"v_lshl_add_u32 v{t1}, v{t0}, 6, v{t1}")
    a(f"v_bfe_u32 v{t0}, v0, 4, 1")
    a(f"v_lshl_add_u32 v{t1}, v{t0}, 5, v{t1}")
    a(f"v_and_b32 v{t2}, 3, v0")
    a(f"v_lshl_add_u32 v{t1}, v{t2}, 3, v{t1}")
    a(f"v_lshl_add_u32 v{WA[0]}, v{vG}, 10, v{t1}")
    a(f"v_add_u32 v{WA[0]}, {OFF_WG}, v{WA[0]}")
    for f in range(1, 4): a(f"v_xor_b32 v{WA[f]}, {32*f}, v{WA[0]}")
    a(f"s_lshl_b32 s11, s{S_W4}, 5")
    a(f"v_xor_b32 v{WE}, s11, v{WA[0]}")
    a(f"s_and_b32 s11, s{S_W4}, 1")
    a("s_lshl_b32 s11, s11, 11")
    for k in range(2): a(f"v_add_u32 v{BE[k]}, s11, v{BA[k]}")
    a(f"s_mul_i32 s62, s{S_W4}, {Q}")
    a(f"s_lshr_b32 s59, s{S_W4}, 1")
    a(f"s_and_b32 s63, s{S_W4}, 1")
    a("s_lshl_b32 s11, s59, 6")
    a(f"v_lshl_add_u32 v{vWB}, v{vH}, 9, v{t1}")
    a(f"v_xor_b32 v{vWB}, s11, v{vWB}")
    a(f"v_add_u32 v{vWB}, s62, v{vWB}")
    a("s_waitcnt lgkmcnt(0)")
    a(f"s_lshl_b32 s11, s{S_NS}, 5")
    a(f"s_load_dwordx8 s[32:39], s[{P_LRE}:{P_LRE+1}], s11")
    a(f"s_load_dwordx8 s[64:71], s[{P_LDT}:{P_LDT+1}], s11")
    a(f"s_load_dwordx8 s[24:31], s[{P_LIM}:{P_LIM+1}], s11")
    for k in range(4 if cfg.zpeel else 160): a(f"v_mov_b32 v{ACC+k}, 0")
    a(f"v_mov_b32 v{vCn}, {CNT_L}")
    a(f"ds_write_b128 v{vCn}, v[{ACC}:{ACC+3}]")
    a(f"ds_write_b128 v{vCn}, v[{ACC}:{ACC+3}] offset:16")
    a(f"v_bfe_u32 v{t0}, v0, 2, 1")
    a(f"v_lshl_add_u32 v{t0}, v{t0}, 4, v{t2}")
    a(f"v_bfe_u32 v{t1}, v0, 3, 1")
    a(f"v_lshl_add_u32 v{t0}, v{t1}, 2, v{t0}")
    a(f"s_lshl_b32 s11, s{S_W4}, 9")
    a(f"s_add_u32 s11, s11, {STATS_L}")
    a(f"v_lshl_add_u32 v{vStF}, v{t0}, 3, s11")
    a(f"v_lshlrev_b32 v{vL16}, 4, v0")
    a(f"v_add_u32 v{vPQ}, s62, v{vL16}")
    a(f"v_lshlrev_b32 v{vCL}, 4, v{vG}")
    a(f"v_add_u32 v{vCL}, {C_L}, v{vCL}")
    a(f"v_mov_b32 v{vOne}, 1")
    a(f"s_lshl_b32 s11, s{S_W4}, 2")
    a(f"s_add_u32 s11, s11, {CNT_L + 16}")
    a(f"v_mov_b32 v{vRd}, s11")
    a("s_lshl_b32 s11, s63, 8")
    a(f"s_add_u32 s11, s11, {ST2_L}")
    a(f"v_lshl_add_u32 v{vSo}, v{vH}, 7, s11")
    a(f"s_lshl_b32 s13, s{S_MT}, 2")
    a(f"s_add_u32 s13, s13, s{S_W4}")
    a(f"s_mul_i32 s56, s13, {2*RT_BYTES}")
    a(f"s_cmp_ge_u32 s{S_NS}, 14")
    a(f"s_cselect_b32 s11, {HALF_BYTES - 56*1024}, 0")
    a(f"s_lshl_b32 s12, s{S_NS}, 12")
    a("s_add_u32 s11, s11, s12")
    a("s_add_u32 s56, s56, s11")
    a(f"s_add_u32 s57, s56, {RT_BYTES}")
    a("s_lshl_b32 s11, s13, 10")
    flag_index(a, 12, 14, 7)
    a("s_add_u32 s11, s11, s12")
    a(f"s_add_u32 s11, s11, {WS_FLAG:#x}")
    a(f"v_mov_b32 v{vF}, s11")
    a(f"s_lshl_b32 s55, s{S_M64}, 10")
    a(f"s_add_u32 s55, s55, {WS_FLAG:#x}")
    a(f"s_lshl_b32 s11, s{S_W4}, 7")
    a("s_add_u32 s55, s55, s11")
    a(f"s_mul_i32 s12, s59, {HALF_BYTES}")
    a(f"s_mul_i32 s13, s63, {28*1024}")
    a("s_add_u32 s12, s12, s13")
    a(f"s_lshl_b32 s11, s{S_M64}, 1")
    a("s_add_u32 s11, s11, s63")
    a(f"s_mul_i32 s52, s11, {RT_BYTES}")
    a("s_add_u32 s52, s52, s12")
    a("s_xor_b32 s11, s11, 1")
    a(f"s_mul_i32 s51, s11, {RT_BYTES}")
    a("s_add_u32 s51, s51, s12")
    p2_rot(a, cfg, 60, 61, 58)
    a("s_mov_b32 s12, 0x00030003")
    a("s_mov_b32 s13, 0x00030003")
    a("s_waitcnt lgkmcnt(0)")
    K, KP = 40, 64
    for k in range(8):
        a(f"s_lshl_b64 exec, s[12:13], {2*k}")
        for m, sb in enumerate((32, 24, 64)): a(f"v_mov_b32 v{K+m}, s{sb+k}")
    a("s_mov_b64 exec, -1")
    a(f"v_and_b32 v{K+3}, 1, v0")
    a(f"v_lshlrev_b32 v{K+3}, 4, v{K+3}")
    for m in range(3): a(f"v_lshrrev_b32 v{K+m}, v{K+3}, v{K+m}")
    srd(a, SRD_WS, P_WS, WS_SIZE)
    ssm_park(a, K, KP, 62)
    a(f"v_mov_b32 v{KP+23}, 0")
    a(f"s_lshl_b32 s11, s{S_W4}, 13")
    a(f"s_add_u32 s11, s11, {R[2]}")
    a(f"v_add_u32 v{K}, s11, v{vL16}")
    for k in range(6): a(f"ds_write_b128 v{K}, v[{KP+4*k}:{KP+4*k+3}] offset:{1024*k}")
    a("s_waitcnt lgkmcnt(0)")
    for k in range(4): a(f"v_mov_b32 v{ONES+k}, 0x3f803f80")
    ts(1)

    lq = []
    def ds_issue(tag, t):
        a(t)
        if t.startswith("ds_"): lq.append(tag)
    def ds_wait(tag):
        idx = max((i for i, t in enumerate(lq) if t == tag), default=None)
        if idx is None: return None
        n = len(lq) - 1 - idx
        del lq[:idx + 1]
        if n > 12:
            del lq[:len(lq) - 12]
            n = 12
        return f"lgkmcnt({n})"
    def dwait(tag):
        w = ds_wait(tag)
        if w: a(f"s_waitcnt {w}")
    COLS = [('s', 0), ('s', 1)] + [(gu, f) for f in range(4) for gu in range(2)]
    def xreads(k):
        return [(('x', k), f"ds_read_b128 v[{XF[k]+4*ro}:{XF[k]+4*ro+3}], v{XA[k]} offset:{2048*ro}") for ro in range(4)]
    def creads(col, k, sl):
        d = RS(sl)
        if col[0] == 's': return [(('c', sl), f"ds_read_b128 v[{d}:{d+3}], v{BA[k]} offset:{2048*col[1]}")]
        return [(('c', sl), f"ds_read_b64_tr_b16 v[{d+2*jj}:{d+2*jj+1}], v{WA[col[1]]} offset:{col[0]*8192 + k*4096 + jj*512}") for jj in range(2)]
    def group(col, k, sl, zero=False):
        w = RS(sl)
        L = []
        for ro in range(4):
            x = XF[k] + 4 * ro
            if col[0] == 's': d, A_, B_ = S(col[1], ro), x, w
            else: d, A_, B_ = (G, U)[col[0]](col[1] >> 1, ro) + 4 * (col[1] & 1), w, x
            c = "0" if zero else f"v[{d}:{d+3}]"
            L.append(f"v_mfma_f32_16x16x32_bf16 v[{d}:{d+3}], v[{A_}:{A_+3}], v[{B_}:{B_+3}], {c}")
        return L
    NR = 5
    def ereads(e, k, sl=5):
        d = RS(sl)
        if e == 2: return [(('c', sl), f"ds_read_b128 v[{d}:{d+3}], v{BE[k]}")]
        return [(('c', sl), f"ds_read_b64_tr_b16 v[{d+2*jj}:{d+2*jj+1}], v{WE} offset:{e*8192 + k*4096 + jj*512}") for jj in range(2)]
    def emfma(e, zero=False, sl=5):
        d, w = CA + 4 * e, RS(sl)
        c = "0" if zero else f"v[{d}:{d+3}]"
        A_, B_ = (w, ONES) if e < 2 else (ONES, w)
        return f"v_mfma_f32_16x16x32_bf16 v[{d}:{d+3}], v[{A_}:{A_+3}], v[{B_}:{B_+3}], {c}"
    pend = []
    def gap(n=1):
        for _ in range(n):
            if pend: ds_issue(*pend.pop(0))
    EPOS = {1: 0, 3: 1, 5: 2}
    def kstep(k, first, last, after, zero=False, side=None):
        for j in range(first, last):
            if j == 0: dwait(('x', k))
            dwait(('c', j % NR))
            for i, m in enumerate(group(COLS[j], k, j % NR, zero)):
                a(m)
                if i == 3: pend.extend(after(j))
                gap(cfg.rpg)
                if side: a(side.pop(0))
            if j in EPOS:
                while any(tg == ('c', 5) for tg, _ in pend): gap()
                dwait(('c', 5))
                a(emfma(EPOS[j], zero))
                if EPOS[j] < 2: pend[:0] = ereads(EPOS[j] + 1, k)
    def after0(j):
        L = creads(COLS[j + NR], 0, j % NR) if j + NR < 10 else creads(COLS[j + NR - 10], 1, j % NR)
        if j == 5: L = L + xreads(1)
        if j == 8: L = L + ereads(0, 1)
        return L
    NBAR = 6
    def after1a(j): return creads(COLS[j + NR], 1, j % NR) if j + NR < 10 else []
    def head0():
        return xreads(0) + creads(COLS[0], 0, 0) + ereads(0, 0)
    def after1b(j): return creads(COLS[j + NR - 10], 0, j % NR)
    a(f"s_setprio {cfg.cprio}")
    a("s_mov_b32 s72, 0")
    a("s_mov_b32 s74, 0")
    a("s_barrier")
    ts(2)
    for t in head0() + sum([after1b(j) for j in range(NBAR, 10)], []): ds_issue(*t)
    lq0 = list(lq)
    kstep(0, 0, 10, after0, zero=True); gap(99)
    lq1 = list(lq)
    a("s_branch L_c_k1")
    a.label("L_c_loop")
    lq[:] = lq0
    kstep(0, 0, 10, after0); gap(99)
    assert lq == lq1
    a.label("L_c_k1")
    sc = ["s_add_u32 s74, s74, 1", "s_cmp_eq_u32 s74, 3", "s_mov_b32 s75, 53248", f"s_cmov_b32 s75, {(-106496) & 0xffffffff:#x}",
          "s_cselect_b32 s74, 0, s74", "s_add_u32 s72, s72, 1", "s_cmp_eq_u32 s72, 6"]
    sc += [f"v_add_u32 v{v}, s75, v{v}" for v in XA + BA + [BE[0], WA[0]]]
    kstep(1, 0, 5, after1a, side=sc); gap(99)
    assert not sc
    sc = [f"v_add_u32 v{v}, s75, v{v}" for v in WA[1:] + [WE]]
    kstep(1, 5, NBAR, after1a, side=sc)
    a(f"v_add_u32 v{BE[1]}, s75, v{BE[1]}")
    assert not pend and not sc
    a("s_waitcnt lgkmcnt(0)")
    del lq[:]
    a("s_barrier")
    hist = list(a.hist)
    a("s_cbranch_scc1 L_c_last")
    pend.extend(head0())
    kstep(1, NBAR, 10, after1b); gap(99)
    assert lq == lq0, (lq, lq0)
    a("s_branch L_c_loop")
    a.label("L_c_last")
    a.hist = hist
    if cfg.cprio != 2: a("s_setprio 2")
    del lq[:]
    SEQ = [(('e', e), k) for k in range(2) for e in range(3)]
    SEQ += [((gu, 2 * ft + h), k) for ft in range(2) for k in range(2) for h in range(2) for gu in range(2)] + [(('s', pt), k) for k in range(2) for pt in range(2)]
    SL = [5, 0, 1, 2, 3, 4]
    def sreads(n):
        col, k = SEQ[n]
        return ereads(col[1], k, SL[n % 6]) if col[0] == 'e' else creads(col, k, SL[n % 6])
    pend.extend(sreads(0) + sreads(1) + xreads(0))
    kstep(1, NBAR, 10, lambda j: sreads(j - NBAR + 2)); gap(99)
    CH = ONES
    def cread(tag, dst, ft):
        for gu in range(2):
            for h in range(2):
                d = dst + 8 * gu + 4 * h
                ds_issue(tag, f"ds_read_b128 v[{d}:{d+3}], v{vCL} offset:{256*gu + 64*(2*ft+h)}")
    def hstore(ft, ro):
        g = G(ft, ro)
        vm.issue('h', f"buffer_store_dwordx4 v[{g}:{g+3}], v{vHS}, s[{SRD_WS}:{SRD_WS+3}], s{56 + (ro >> 1)} offen offset:{2048*ft + 256*(ro & 1)}{SP}")
    def unit_plain(ft, ro, ch):
        g, u = G(ft, ro), U(ft, ro)
        L = []
        for k in range(8): L.append(f"v_fmac_f32 v{g+k}, v{MM+ro}, v{ch+k}")
        for k in range(8): L.append(f"v_fmac_f32 v{u+k}, v{MM+ro}, v{ch+8+k}")
        for k in range(8): L.append(f"v_max_f32 v{g+k}, 0, v{g+k}")
        for k in range(8): L.append(f"v_mul_f32 v{u+k}, v{u+k}, v{g+k}")
        for k in range(4): L.append(f"v_cvt_pk_bf16_f32 v{g+k}, v{u+2*k}, v{u+2*k+1}")
        L.append(lambda: hstore(ft, ro))
        return L
    def unit_pk(ft, ro, ch, side):
        g, u = G(ft, ro), U(ft, ro)
        mp = MM + (ro & 2)
        sel = f"op_sel:[{ro & 1},0,0] op_sel_hi:[{ro & 1},1,1]"
        for k in range(4):
            a(f"v_pk_fma_f32 v[{g+2*k}:{g+2*k+1}], v[{mp}:{mp+1}], v[{ch+2*k}:{ch+2*k+1}], v[{g+2*k}:{g+2*k+1}] {sel}")
            if side: a(side.pop(0))
        for k in range(4):
            a(f"v_pk_fma_f32 v[{u+2*k}:{u+2*k+1}], v[{mp}:{mp+1}], v[{ch+8+2*k}:{ch+8+2*k+1}], v[{u+2*k}:{u+2*k+1}] {sel}")
            a(f"v_max_f32 v{g+2*k}, 0, v{g+2*k}")
            a(f"v_max_f32 v{g+2*k+1}, 0, v{g+2*k+1}")
        for k in range(4): a(f"v_pk_mul_f32 v[{u+2*k}:{u+2*k+1}], v[{u+2*k}:{u+2*k+1}], v[{g+2*k}:{g+2*k+1}]")
        for k in range(4): a(f"v_cvt_pk_bf16_f32 v{g+k}, v{u+2*k}, v{u+2*k+1}")
    ep = [lambda: dwait('c0')] + [f"v_xor_b32 v{MM+k}, 0x80000000, v{MM+k}" for k in range(4)]
    for ro in range(cfg.nfill): ep += unit_plain(0, ro, CH)
    def fill(n):
        while n > 0 and ep:
            t = ep.pop(0)
            if callable(t): t()
            else: a(t)
            n -= 1
    pend.extend(xreads(1))
    NS = len(SEQ)
    for n in range(NS):
        col, k = SEQ[n]
        sl = SL[n % 6]
        while any(tg == ('c', sl) for tg, _ in pend): gap()
        if n in (6, 10):
            while any(tg == ('x', k) for tg, _ in pend): gap()
            dwait(('x', k))
        dwait(('c', sl))
        if n == NS - 1:
            assert not pend
            a("s_barrier")
        ms = [emfma(col[1], False, sl)] if col[0] == 'e' else group(col, k, sl)
        for i, m in enumerate(ms):
            a(m)
            if i == len(ms) - 1 and n + 6 < NS: pend.extend(sreads(n + 6))
            got = 1 if pend else 0
            gap(2 if n < 8 else 1)
            if n > 14 or (n == 14 and i >= 2): fill(cfg.fper16 - got)
        if n == 7:
            a(f"s_lshl_b32 s11, s{S_W4}, 6")
            a(f"v_add_u32 v{WE}, s11, v{vCL}")
            a(f"v_subrev_u32 v{BE[0]}, v{BA[0]}, v{BE[0]}")
            a(f"v_lshrrev_b32 v{BE[0]}, 5, v{BE[0]}")
            a(f"v_and_b32 v{BE[1]}, 15, v0")
            a(f"v_lshl_add_u32 v{BE[0]}, v{BE[1]}, 2, v{BE[0]}")
            a(f"v_add_u32 v{BE[0]}, {C_L + 512}, v{BE[0]}")
            ds_issue('w', f"ds_write_b128 v{WE}, v[{CA}:{CA+3}]")
            ds_issue('w', f"ds_write_b128 v{WE}, v[{CA+4}:{CA+7}] offset:256")
            ds_issue('w', f"ds_write_b32 v{BE[0]}, v{CA+8}")
        if n == 6 + cfg.c2u:
            dwait('w')
            a("s_barrier")
            for ro in range(4): ds_issue('c0', f"ds_read_b32 v{MM+ro}, v{vStF} offset:{(ro >> 1)*256 + (ro & 1)*64}")
            cread('c0', CH, 0)
        if n == NS - 3: cread('c1', XF[0], 1)
    ts(3)
    fill(1000)
    dump = [f"ds_write_b128 v{vPQ}, v[{S(0,0)+4*k}:{S(0,0)+4*k+3}] offset:{SD + 1024*k}" for k in range(8)]
    WB = {0: [1, 2], 1: [3, 4], 2: [5, 6]}
    for rg in range(3):
        a(f"v_add_u32 v{WB[rg][0]}, {R[rg]}, v{vWB}")
        a(f"v_xor_b32 v{WB[rg][1]}, 64, v{WB[rg][0]}")
    dwait('c1')
    units = [(0, ro, CH) for ro in range(cfg.nfill, 4)] + [(1, ro, XF[0]) for ro in range(4)]
    for n, (ft, ro, ch) in enumerate(units):
        unit_pk(ft, ro, ch, dump)
        if n == 1:
            a("s_waitcnt lgkmcnt(0)")
            a("s_barrier")
        hstore(ft, ro)
    del lq[:]
    ts(4)
    BR, NB = 160, 12
    def breads(p):
        sl = WSLOT[p]
        rg = max(k for k in range(3) if R[k] <= sl)
        L = []
        for lc in range(2):
            for jj in range(2):
                d = BR + 8 * (p % NB) + 4 * lc + 2 * jj
                L.append(f"ds_read_b64_tr_b16 v[{d}:{d+1}], v{WB[rg][lc]} offset:{sl - R[rg] + jj*1024}")
        return L
    for p in range(NB):
        for t in breads(p): a(t)
    def flag1():
        vm.wait('h')
        a("s_setprio 3")
        a("s_mov_b64 exec, 1")
        vm.issue('f', f"buffer_store_dword v{vOne}, v{vF}, s[{SRD_WS}:{SRD_WS+3}], 0 offen sc1")
        a("s_mov_b64 exec, -1")
        ts(6)
    if cfg.fpre: flag1()
    a("s_waitcnt lgkmcnt(0)")
    a("s_barrier")
    ts(5)
    if not cfg.fpre: flag1()
    AF = 96
    AR = list(range(24, 96, 4))
    NA = len(AR)
    def aload(n):
        p, lr = n // 2, n % 2
        if n % 8 == 0:
            a(f"s_lshl_b32 s11, s60, 12")
            a(f"s_add_u32 s54, s11, s52")
            a(f"s_add_u32 s53, s11, s51")
            a(f"s_add_u32 s60, s60, 1")
            a(f"s_cmp_eq_u32 s60, 7")
            a(f"s_cselect_b32 s60, 0, s60")
        d = AR[n % NA]
        vm.issue(('a', n), f"buffer_load_dwordx4 v[{d}:{d+3}], v{vL16}, s[{SRD_WS}:{SRD_WS+3}], s{54 - lr} offen offset:{(p%4)*1024}{AP}")
    def cond():
        a("s_and_b64 s[16:17], s[16:17], s[18:19]")
        a("s_and_b64 s[16:17], s[16:17], s[20:21]")
        a("s_and_b32 s16, s16, s17")
        a("s_and_b32 s16, s16, s22")
        a("s_cmp_eq_u32 s16, 1")
    sspin(a, "L_pf", [f"s_load_dwordx8 s[16:23], s[{P_WS}:{P_WS+1}], s55 glc"], cond, cfg.fsleep)
    a("s_setprio 2")
    ts(7)
    for n in range(cfg.a0): aload(n)
    nxt = [cfg.a0]
    ts(8)
    def lds_spin(name, vaddr, off, val):
        a("s_mov_b32 s73, 0")
        a.label(name)
        a("s_waitcnt lgkmcnt(0)")
        a("v_readfirstlane_b32 s11, v8")
        a(f"s_cmp_ge_u32 s11, {val}")
        a(f"s_cbranch_scc1 {name}ok")
        a("s_add_u32 s73, s73, 1")
        a(f"s_cmp_ge_u32 s73, {SPIN_MAX}")
        a(f"s_cbranch_scc1 {name}ok")
        a("s_sleep 1")
        a(f"ds_read_b32 v8, v{vaddr} offset:{off}")
        a(f"s_branch {name}")
        a.label(name + "ok")
        del lq[:]
    ownc = []
    assert cfg.dfc <= 8
    for p in range(28):
        f = BR + 8 * (p % NB)
        pn = p + cfg.bd
        for lr in range(2):
            n = 2 * p + lr
            w = ds_wait(p) if lr == 0 else None
            vm.wait(('a', n), w or "")
            if n == 0: ts(9)
            if n in (0, 7, 17, 25, 35): ts.x(6, {0: 7, 7: 8, 17: 9, 25: 10, 35: 11}[n])
            if lr == 0 and pn in (12, 16, 22): ds_issue('r', f"ds_read_b32 v8, v{vRd}")
            d = AR[n % NA]
            for lc in range(2):
                acc = AF + 32 * lr + 16 * lc
                c = "0" if p == 0 else f"v[{acc}:{acc+15}]"
                m = f"v_mfma_f32_32x32x16_bf16 v[{acc}:{acc+15}], v[{d}:{d+3}], v[{f+4*lc}:{f+4*lc+3}], {c}"
                if lr == 0 and lc == 0 and p >= 28 - cfg.dfc: ownc.append(m)
                else: a(m)
            for _ in range(2):
                if nxt[0] < 56 and nxt[0] <= n + NA:
                    aload(nxt[0]); nxt[0] += 1
        if pn in (12, 16, 22): lds_spin(f"L_c_r{pn}", vRd, 0, {12: 1, 16: 2, 22: 3}[pn])
        if p == cfg.ksig:
            assert pn > 15
            w = ds_wait(15)
            if w: a(f"s_waitcnt {w}")
            a("s_mov_b64 exec, 1")
            ds_issue('c', f"ds_add_u32 v{vCn}, v{vOne} offset:4")
            a("s_mov_b64 exec, -1")
        if NB <= pn < 28:
            for t in breads(pn): ds_issue(pn, t)
        if p == 24:
            STT = BR + 32
            for k in range(8): ds_issue('st', f"ds_read_b128 v[{STT+4*k}:{STT+4*k+3}], v{vSo} offset:{16*k}")
        if p == 26:
            for x in range(1, 4):
                a(f"s_xor_b32 s11, s{S_W4}, {x}")
                a(f"s_mul_i32 s11, s11, {Q}")
                a(f"s_add_u32 s11, s11, {FXA + (x-1)*4096}")
                a(f"v_add_u32 v{x}, s11, v{vL16}")
            a(f"v_add_u32 v4, {GA}, v{vPQ}")
            a(f"v_add_u32 v5, {FXA}, v{vPQ}")
        if p % 4 == 3: ts.x(4, 1 + p // 4)
    ts(11)
    ts.x(7, 1)
    for x in (2, 1, 3):
        src = AF + 32 * (x & 1) + 16 * (x >> 1)
        for k in range(4):
            if ownc: a(ownc.pop(0))
            a(f"ds_write_b128 v5, v[{src+4*k}:{src+4*k+3}] offset:{(x-1)*4096 + 1024*k}")
    a("s_waitcnt lgkmcnt(12)")
    for r in range(16): a(f"v_mul_f32 v{STT+2*r}, v{STT+2*r+1}, v{STT+2*r+1}")
    a(f"s_mov_b32 s13, {LOG2E ^ 0x80000000:#x}")
    ts.x(7, 2)
    a("s_waitcnt lgkmcnt(0)")
    ts.x(7, 3)
    a("s_mov_b64 exec, 1")
    a(f"ds_add_u32 v{vCn}, v{vOne}")
    a("s_mov_b64 exec, -1")
    a(f"ds_read_b32 v8, v{vCn}")
    lds_spin("L_c_cnt", vCn, 0, 4)
    ts.x(7, 4)
    O, RX, EX = AF, 24, 72
    for k in range(4):
        for x in range(1, 4):
            a(f"ds_read_b128 v[{RX+16*(x-1)+4*k}:{RX+16*(x-1)+4*k+3}], v{x} offset:{1024*k}")
    for k in range(4):
        rr = range(4 * k, 4 * k + 4)
        a(f"s_waitcnt lgkmcnt({9 - 3*k})")
        for r in rr: a(f"v_add_f32 v{O+r}, v{O+r}, v{RX+r}")
        for r in rr: a(f"v_add_f32 v{RX+16+r}, v{RX+16+r}, v{RX+32+r}")
        for r in rr: a(f"v_add_f32 v{O+r}, v{O+r}, v{RX+16+r}")
        for r in rr: a(f"v_mul_f32 v{O+r}, v{O+r}, v{STT+2*r}")
        for r in rr: a(f"v_mul_f32 v{EX+r}, s13, v{O+r}")
        for r in rr: a(f"v_exp_f32 v{EX+r}, v{EX+r}")
    ts.x(7, 5)
    for k in range(4):
        rr = range(4 * k, 4 * k + 4)
        for r in rr: a(f"v_add_f32 v{EX+r}, 1.0, v{EX+r}")
        for r in rr: a(f"v_rcp_f32 v{EX+r}, v{EX+r}")
        for r in rr: a(f"v_mul_f32 v{O+r}, v{O+r}, v{EX+r}")
        a(f"ds_write_b128 v4, v[{O+4*k}:{O+4*k+3}] offset:{1024*k}")
    a("s_waitcnt lgkmcnt(0)")
    ts(12)
    a("s_barrier")
    ts.dump(24, 25, 0)
    a("s_endpgm")

HEADER = """; Fused LayerNorm + S5-SSM scan + ReGLU gate, one launch.
;   224 main workgroups (4 MFMA waves + 4 loader/scan waves) + 32 helper workgroups (row statistics, hand-off reset, C repack).
;   Kernarg: 13 inputs, d_out (+104), d_debug (+112), d_ws (+120).  Produced by a hand-written generator script.
; @launch grid=(256,1,1) block=(512,1,1) lds=163840
.amdgcn_target "amdgcn-amd-amdhsa--gfx950"
.text
.globl {k}
.p2align {al}
.p2align 8
.type {k},@function
{k}:
"""
FOOTER = """.section .rodata,"a"
.p2align 6
.amdhsa_kernel {k}
  .amdhsa_next_free_vgpr 256
  .amdhsa_next_free_sgpr 102
  .amdhsa_accum_offset 256
  .amdhsa_group_segment_fixed_size 0
  .amdhsa_kernarg_size 128
  .amdhsa_user_sgpr_count 2
  .amdhsa_user_sgpr_kernarg_segment_ptr 1
  .amdhsa_system_sgpr_workgroup_id_x 1
  .amdhsa_float_denorm_mode_32 3
.end_amdhsa_kernel
"""

def generate(cfg):
    WSOFF[0] = cfg.wsoff << 20
    a = Asm()
    ts = TS(a, cfg)
    gen_entry(a, cfg, ts)
    gen_loader(a, cfg, ts)
    gen_consumer(a, cfg, ts)
    gen_helper(a, cfg, ts)
    a.label("L_exit")
    a("s_endpgm")
    return HEADER.format(k=KNAME, al=12 if cfg.al else 8) + (f"; wsoff={cfg.wsoff}\n" if cfg.wsoff else "") + a.text() + FOOTER.format(k=KNAME)

if __name__ == "__main__":
    cfg = Cfg()
    out = sys.argv[1]
    for kv in sys.argv[2:]:
        k, v = kv.split("=")
        setattr(cfg, k, int(v))
    open(out, "w").write(generate(cfg))
```

```python
import sys, os
sys.path.insert(0, os.path.dirname(os.path.abspath(__file__)))
from asmlib import Asm, VM

KNAME = "recurrent_scan__ssm_conv_s5__glu_gated_reglu__prompt_kernel"

R = [0, 53248, 106496]
MISC = 159744
OFF_WG, OFF_WU, OFF_BB = 32768, 40960, 49152
CP_L = R[1] + 49152
STATS_L = MISC
C_L = MISC + 2048
CNT_L = MISC + 2688
ST2_L = MISC + 2720
AGG_L = MISC + 3232
Q = 12288

RT_BYTES = 172032
HALF_BYTES = 86016
WS_STATS = 0xB00000
WS_AGG = WS_STATS + 0x4000
WS_FLAG = WS_AGG + 0x8000
INIT_N = 32
WS_CP = 0xB20000
WS_TS = 0xC00000
WS_SIZE = 0x1000000
SPIN_MAX = 1 << 20

S_WAVE, S_XCD, S_SLOT, S_MT, S_NS, S_M64, S_NT, S_W4 = 3, 4, 5, 6, 7, 8, 9, 10
P_X, P_LRE, P_LIM, P_BRE, P_BIM, P_CRE, P_CIM, P_LDT, P_DSK, P_BX, P_WG, P_WU, P_WD, P_OUT, P_DBG, P_WS = [16 + 2 * i for i in range(16)]
SRD_X, SRD_A, SRD_B, SRD_C, SRD_WS, SRD_E = 48, 52, 56, 60, 64, 68
TS0 = 76

LOG2E = 0x3fb8aa3b
LOG2E_LO = 0x32a57060
LN2 = 0x3f317218
INV2PI = 0x3e22f983

class Cfg:
    ts = 0
    tsset = 0
    pd = 16
    perm = 1
    rot = 2
    ssm_early = 0
    schedn = 0
    polx = 0
    apol = 1
    noa = 0
    nob = 0
    rdstart = 1
    polw = 0
    winn = 3
    loc = 1
    n6 = -1
    ramp = 6
    dfr = 12
    dfc = 8
    dfb = 7
    al = 1
    cpw = 1
    s0a = 8
    zpeel = 1
    ws = 0
    crot = 0
    ipos = 0
    gate = 2
    c0n = 16
    agpos = 0
    c0early = 0
    hord = 1
    clate = 2
    wl = 1
    fper = 6
    c2u = 2
    probe = 0
    pwho = 0
    ponly = -1
    pmask = 0xffff
    wsoff = 0
    kwin = 2
    wprio = 0
    hdelay = 0
    eprio = 0
    c2late = 0
    cpf = 2
    padto = 0
    nocs = 0
    r2pre = 1
    tlb = 0
    bd = 4
    pollw = 24
    c1 = 12
    c2 = 16
    f2b = 1
    wfirst = 1
    @property
    def win(self):
        W = lambda a, b: [f"w{p}" for p in range(a, b)]
        if self.ws:
            m, n1, n2, n3, n4, n5, n6, cp, cs, ep = [int(c) for c in str(self.ws)[1:]]
            assert n1 + n2 + n3 + n4 + n5 + n6 == 10
            pos = [12]
            def take(n):
                r = W(pos[0], pos[0] + n); pos[0] += n; return r
            w = {}
            if m == 2: w[-1] = ["m", "s1:0-3"]; w[0] = ["cs0", "s1:3-13", "k", "s2:0-10"]; w[1] = ["cs1", "s2:10-13", "s3"]
            else: w[-1] = ["s1:0-6"]; w[0] = ["cs0", "s1:6-13", "k", "s2"] + (["m"] if m == 1 else []); w[1] = ["cs1"] + (["m"] if m == 3 else []) + ["s3"]
            w[1] += take(n1)
            w[2] = ["cs2", "s4"] + take(n2)
            w[3] = (["cs3", "s5:0-7", "cs4", "s5:7-13"] if cs == 1 else ["cs3", "s5"]) + take(n3)
            w[4] = {0: ["cs4", "init", "s6:0-7", "cs5", "s6:7-13"], 1: ["init", "s6:0-4", "cs5", "s6:4-13"], 2: ["cs4", "init", "s6"]}[cs] + take(n4)
            w[5] = (["cs5"] if cs == 2 else []) + ["fetch"] + W(0, 4) + ["cs6"] + W(4, 6) + take(n5) + {0: ["c3"], 1: [], 2: ["c3", "c1"], 3: ["c1"]}[cp] + ["put"]
            w[6] = W(6, 12) + take(n6) + {0: ["c1"], 1: ["c3", "c1"], 2: [], 3: ["c3"]}[cp]
            w[ep].append("e")
            if self.ipos:
                w[4].remove("init"); w[4].append("init")
                w[5].remove("fetch"); w[5].remove("put")
                w[5].insert(w[5].index("cs6") + 1, "fetch")
                w[6].insert(2, "put")
            return w
        return [
            {-1: ["s1:0-6"], 0: ["cs0", "s1:6-13", "k", "s2:0-9"], 1: ["cs1", "s2:9-13", "s3", "e"], 2: ["cs2", "s4"] + W(12, 14), 3: ["cs3", "s5"] + W(14, 17),
             4: ["cs4", "init", "s6:0-7", "cs5", "s6:7-13", "w17"], 5: ["fetch"] + W(0, 4) + ["cs6"] + W(4, 6) + W(18, 20) + ["put"], 6: W(6, 12) + W(20, 22)},
            {-1: ["s1:0-6"], 0: ["cs0", "s1:6-13", "k", "s2:0-9"], 1: ["cs1", "s2:9-13", "s3", "e"], 2: ["cs2", "s4"] + W(12, 15), 3: ["cs3", "s5"] + W(15, 18),
             4: ["cs4", "init", "s6"] + W(18, 20), 5: ["cs5", "fetch"] + W(0, 3) + ["cs6"] + W(3, 6) + ["put"], 6: W(6, 12) + W(20, 22)},
            {-1: ["s1:0-6"], 0: ["cs0", "s1:6-13", "k", "s2:0-9"], 1: ["cs1", "s2:9-13", "s3", "e"], 2: ["cs2", "s4"] + W(12, 15), 3: ["cs3", "s5:0-7", "cs4", "s5:7-13", "w15"],
             4: ["init", "s6:0-4", "cs5", "s6:4-13"] + W(16, 19), 5: ["fetch"] + W(0, 4) + ["cs6"] + W(4, 6) + W(19, 22) + ["put"], 6: W(6, 12)},
            {-1: ["s1:0-6"], 0: ["cs0", "s1:6-13", "k", "s2:0-9"], 1: ["cs1", "s2:9-13", "s3", "e"], 2: ["cs2", "s4"] + W(12, 15), 3: ["cs3", "s5"] + W(15, 18),
             4: ["cs4", "init", "s6:0-7", "cs5", "s6:7-13", "w18", "w19"], 5: ["fetch"] + W(0, 4) + ["cs6"] + W(4, 6) + W(20, 22) + ["c3", "put"], 6: W(6, 12) + ["c1"]},
            {-1: ["s1:0-6"], 0: ["cs0", "s1:6-13", "k", "s2:0-9"], 1: ["cs1", "s2:9-13", "s3", "e"], 2: ["cs2", "s4"] + W(12, 14), 3: ["cs3", "s5"] + W(14, 17),
             4: ["cs4", "init", "s6:0-7", "cs5", "s6:7-13", "w17"], 5: ["fetch"] + W(0, 4) + ["cs6"] + W(4, 6) + W(18, 20) + ["put"], 6: W(6, 12) + W(20, 22) + ["c3"]},
            {-1: ["s1:0-6"], 0: ["cs0", "s1:6-13", "k", "s2:0-9"], 1: ["cs1", "s2:9-13", "s3", "e"], 2: ["cs2", "s4"] + W(12, 15), 3: ["cs3", "s5"] + W(15, 19),
             4: ["cs4", "init", "s6:0-7", "cs5", "s6:7-13"] + W(19, 22), 5: ["fetch"] + W(0, 4) + ["cs6"] + W(4, 6) + ["c1", "put"], 6: W(6, 12) + ["c3"]},
            {-1: ["s1:0-6"], 0: ["cs0", "s1:6-13", "k", "s2"], 1: ["cs1", "s3", "e"] + W(12, 14), 2: ["cs2", "s4"] + W(14, 17), 3: ["cs3", "s5"] + W(17, 20),
             4: ["cs4", "init", "s6:0-7", "cs5", "s6:7-13"] + W(20, 22), 5: ["fetch"] + W(0, 4) + ["cs6"] + W(4, 6) + ["c1", "put"], 6: W(6, 12) + ["c3"]},
            {-1: ["s1:0-6"], 0: ["cs0", "s1:6-13", "k", "s2:0-9"], 1: ["cs1", "s2:9-13", "s3", "e"], 2: ["cs2", "s4"] + W(12, 15), 3: ["cs3", "s5:0-7", "cs4", "s5:7-13"] + W(15, 18),
             4: ["init", "s6:0-4", "cs5", "s6:4-13"] + W(18, 22), 5: ["fetch"] + W(0, 4) + ["cs6"] + W(4, 6) + ["c1", "put"], 6: W(6, 12) + ["c3"]},
            {-1: ["s1:0-6"], 0: ["cs0", "s1:6-13", "k", "s2:0-9"], 1: ["cs1", "s2:9-13", "s3", "e"], 2: ["cs2", "s4"], 3: ["cs3", "s5"] + W(12, 16),
             4: ["cs4", "init", "s6:0-7", "cs5", "s6:7-13"] + W(16, 19), 5: ["fetch"] + W(0, 4) + ["cs6"] + W(4, 6) + W(19, 22) + ["c3", "put"], 6: W(6, 12) + ["c1"]},
            {-1: ["s1:0-6"], 0: ["cs0", "s1:6-13", "k", "s2"], 1: ["cs1", "s3", "e"], 2: ["cs2", "s4"] + W(12, 14), 3: ["cs3", "s5"] + W(14, 18),
             4: ["cs4", "init", "s6:0-7", "cs5", "s6:7-13", "w18", "w19"], 5: ["fetch"] + W(0, 4) + ["cs6"] + W(4, 6) + W(20, 22) + ["c3", "put"], 6: W(6, 12) + ["c1"]},
            {-1: ["s1:0-3"], 0: ["cs0", "s1:3-13", "k", "s2:0-8"], 1: ["cs1", "s2:8-13", "s3"], 2: ["cs2", "s4", "e"] + W(12, 14), 3: ["cs3", "s5"] + W(14, 18),
             4: ["cs4", "init", "s6:0-7", "cs5", "s6:7-13", "w18", "w19"], 5: ["fetch"] + W(0, 4) + ["cs6"] + W(4, 6) + W(20, 22) + ["c3", "put"], 6: W(6, 12) + ["c1"]},
            {-1: ["s1:0-6"], 0: ["cs0", "s1:6-13", "k", "s2:0-9"], 1: ["cs1", "s2:9-13", "s3", "e"], 2: ["cs2", "s4"] + W(12, 15), 3: ["cs3", "init", "s5"] + W(15, 18),
             4: ["cs4", "fetch", "s6:0-7", "cs5", "s6:7-13", "w18", "w19"], 5: ["put"] + W(0, 4) + ["cs6"] + W(4, 6) + W(20, 22) + ["c3"], 6: W(6, 12) + ["c1"]},
            {-1: ["m", "s1:0-3"], 0: ["cs0", "s1:3-13", "k", "s2:0-8"], 1: ["cs1", "s2:8-13", "s3", "e"], 2: ["cs2", "s4"] + W(12, 15), 3: ["cs3", "s5"] + W(15, 18),
             4: ["cs4", "init", "s6:0-7", "cs5", "s6:7-13", "w18", "w19"], 5: ["fetch"] + W(0, 4) + ["cs6"] + W(4, 6) + W(20, 22) + ["c3", "put"], 6: W(6, 12) + ["c1"]},
            {-1: ["s1:0-6"], 0: ["cs0", "s1:6-13", "m", "k", "s2:0-9"], 1: ["cs1", "s2:9-13", "s3", "e"], 2: ["cs2", "s4"] + W(12, 15), 3: ["cs3", "s5"] + W(15, 18),
             4: ["cs4", "init", "s6:0-7", "cs5", "s6:7-13", "w18", "w19"], 5: ["fetch"] + W(0, 4) + ["cs6"] + W(4, 6) + W(20, 22) + ["c3", "put"], 6: W(6, 12) + ["c1"]},
            {-1: ["m"], 0: ["cs0", "s1", "k", "s2:0-6"], 1: ["cs1", "s2:6-13", "s3"], 2: ["cs2", "s4", "e"] + W(12, 14), 3: ["cs3", "s5"] + W(14, 18),
             4: ["cs4", "init", "s6:0-7", "cs5", "s6:7-13", "w18", "w19"], 5: ["fetch"] + W(0, 4) + ["cs6"] + W(4, 6) + W(20, 22) + ["c3", "put"], 6: W(6, 12) + ["c1"]},
            {-1: ["s1:0-6"], 0: ["cs0", "s1:6-13", "k", "s2"], 1: ["cs1", "s3"], 2: ["cs2", "s4", "e"], 3: ["cs3", "s5"] + W(12, 16),
             4: ["cs4", "init", "s6:0-7", "cs5", "s6:7-13"] + W(16, 19), 5: ["fetch"] + W(0, 4) + ["cs6"] + W(4, 6) + W(19, 22) + ["c3", "put"], 6: W(6, 12) + ["c1"]},
            {-1: ["s1:0-6"], 0: ["cs0", "s1:6-13", "k", "s2", "m"], 1: ["cs1", "s3"], 2: ["cs2", "s4", "e"], 3: ["cs3", "s5"] + W(12, 16),
             4: ["cs4", "init", "s6:0-7", "cs5", "s6:7-13"] + W(16, 19), 5: ["fetch"] + W(0, 4) + ["cs6"] + W(4, 6) + W(19, 22) + ["c3", "put"], 6: W(6, 12) + ["c1"]},
            {-1: ["m", "s1:0-3"], 0: ["cs0", "s1:3-13", "k", "s2:0-10"], 1: ["cs1", "s2:10-13", "s3"], 2: ["cs2", "s4", "e"], 3: ["cs3", "s5"] + W(12, 16),
             4: ["cs4", "init", "s6:0-7", "cs5", "s6:7-13"] + W(16, 19), 5: ["fetch"] + W(0, 4) + ["cs6"] + W(4, 6) + W(19, 22) + ["c3", "put"], 6: W(6, 12) + ["c1"]},
            {-1: ["s1:0-6"], 0: ["cs0", "s1:6-13", "k", "s2"], 1: ["cs1", "s3"], 2: ["cs2", "s4:0-6"], 3: ["cs3", "s4:6-13", "s5", "e"],
             4: ["cs4", "init", "s6"] + W(12, 16), 5: ["cs5", "fetch"] + W(16, 20) + ["cs6"] + W(0, 6) + ["put"], 6: W(6, 12) + W(20, 22) + ["c3", "c1"]},
            {-1: ["s1"], 0: ["cs0", "k", "s2", "e"], 1: ["cs1", "s3"], 2: ["cs2", "s4", "w12"], 3: ["cs3", "s5"] + W(13, 16),
             4: ["cs4", "init", "s6:0-7", "cs5", "s6:7-13"] + W(16, 19), 5: ["fetch"] + W(0, 4) + ["cs6"] + W(4, 6) + W(19, 22) + ["c3", "put"], 6: W(6, 12) + ["c1"]},
        ][self.winn]
    nw1 = 6
    flagr = -1
    xs = 1
    psleep = 6
    fsleep = 2
    ttper = 2
    f2n = 9
    fpre = 1
    a0 = 18
    sprio = 0
    ksig = 12
    opol = 1
    lprio = 3
    w12early = 0
    slab = 0
    spol = 1
    fpol = 1
    pollr = 4
    nw2 = 16
    thr = 15
    hpf = 2
    ky = 2
    @property
    def perms(self):
        return {
            0: [[0, 1, 2, 3, 4, 5, 6]],
            1: [[0, 1, 2, 3, 4, 5, 6], [1, 2, 0, 4, 5, 3, 6], [2, 0, 1, 5, 3, 4, 6]],
            2: [[0, 1, 2, 3, 4, 5, 6], [1, 0, 3, 2, 5, 4, 6]],
            3: [[0, 1, 2, 3, 4, 5, 6], [1, 0, 4, 5, 6, 2, 3], [0, 1, 6, 2, 3, 4, 5]],
            4: [[0, 1, 2, 3, 4, 5, 6], [1, 2, 0, 4, 6, 3, 5], [2, 0, 1, 5, 6, 3, 4]],
            6: [[0, 1, 2, 3, 4, 5, 6], [1, 2, 0, 3, 4, 5, 6], [2, 0, 1, 3, 4, 5, 6]],
            5: [[0, 1, 2, 3, 4, 5, 6], [1, 2, 3, 0, 5, 6, 4], [2, 3, 0, 1, 6, 4, 5], [3, 0, 1, 2, 4, 5, 6]],
        }[self.perm]

WSOFF = [0]
def srd(a, d, ptr, nbytes):
    if ptr == P_WS and WSOFF[0]:
        a(f"s_add_u32 s{ptr}, s{ptr}, {WSOFF[0]:#x}")
        a(f"s_addc_u32 s{ptr+1}, s{ptr+1}, 0")
    a(f"s_mov_b32 s{d}, s{ptr}")
    a(f"s_and_b32 s{d+1}, s{ptr+1}, 0xffff")
    a(f"s_mov_b32 s{d+2}, {nbytes:#x}")
    a(f"s_mov_b32 s{d+3}, 0x20000")

def srd_sel(a, d, ptr1, ptr0, nbytes):
    a(f"s_cselect_b32 s{d}, s{ptr1}, s{ptr0}")
    a(f"s_cselect_b32 s{d+1}, s{ptr1+1}, s{ptr0+1}")
    a(f"s_and_b32 s{d+1}, s{d+1}, 0xffff")
    a(f"s_mov_b32 s{d+2}, {nbytes:#x}")
    a(f"s_mov_b32 s{d+3}, 0x20000")

class TS:
    def __init__(self, a, cfg):
        self.a, self.on, self.n, self.set = a, cfg.ts, 0, cfg.tsset
        self.cfg = cfg
    def x(self, setno, i):
        if self.on and self.set == setno: self.emit(i)
    def __call__(self, i):
        if self.on and (self.set == 0 or i in (0, 12)): self.emit(i)
    def emit(self, i):
        if self.on == 5 and i not in (0, self.cfg.probe): return
        if self.on:
            assert i < 13
            self.a(f"{'s_memrealtime' if self.on != 2 else 's_memtime'} s[{TS0+2*i}:{TS0+2*i+1}]")
    def init(self):
        if self.on:
            for i in range(1, 13): self.a(f"s_mov_b32 s{TS0+2*i}, 0")
    def dump(self, vt, vt2, who=2):
        if not self.on: return
        a = self.a
        if self.on == 5:
            if who != self.cfg.pwho: return
            lab = a.newlabel("L_probe")
            if self.cfg.ponly >= 0:
                a(f"s_and_b32 s11, s2, {self.cfg.pmask}")
                a(f"s_cmp_lg_u32 s11, {self.cfg.ponly}")
                a(f"s_cbranch_scc1 {lab}_x")
            p = TS0 + 2 * self.cfg.probe
            a("s_waitcnt lgkmcnt(0)")
            a(f"s_sub_u32 s11, s{p}, s{TS0}")
            a(f"s_cmp_eq_u32 s{p}, 0")
            a("s_cselect_b32 s11, 0, s11")
            a("s_lshl_b32 s11, s11, 2")
            a("s_add_u32 s11, s11, 3000")
            a.label(lab)
            a("s_memrealtime s[12:13]")
            a("s_waitcnt lgkmcnt(0)")
            a(f"s_sub_u32 s12, s12, s{TS0}")
            a("s_cmp_lt_u32 s12, s11")
            a(f"s_cbranch_scc1 {lab}")
            a.label(lab + "_x")
            return
        if self.on == 3:
            a("s_waitcnt vmcnt(0) lgkmcnt(0)")
            lab = a.newlabel("L_nod")
            a(f"s_cmp_eq_u32 s{TS0+24}, 0")
            a(f"s_cbranch_scc1 {lab}")
            a(f"s_cmp_lg_u32 s{S_WAVE}, 0")
            a(f"s_cbranch_scc1 {lab}")
            a("s_mov_b64 exec, 1")
            a(f"v_mov_b32 v{vt2}, 0")
            a(f"s_not_b32 s11, s{TS0}")
            a(f"v_mov_b32 v{vt}, s11")
            a(f"global_atomic_umax v{vt2}, v{vt}, s[{P_DBG}:{P_DBG+1}] offset:4 sc1")
            for n, i in enumerate([0, 1, 2, 3, 4, 5, 6, 7, 8, 9, 10, 11, 12]):
                a("s_waitcnt vmcnt(0)")
                a(f"v_mov_b32 v{vt}, s{TS0+2*i}")
                a(f"global_atomic_umax v{vt2}, v{vt}, s[{P_DBG}:{P_DBG+1}] offset:{8+4*n} sc1")
            a("s_waitcnt vmcnt(0)")
            a.label(lab)
            return
        a("s_waitcnt vmcnt(0) lgkmcnt(0)")
        a(f"s_lshl_b32 s11, s2, 9")
        a(f"s_lshl_b32 s12, s{S_WAVE}, 6")
        a("s_add_u32 s11, s11, s12")
        a(f"s_add_u32 s11, s11, {WS_TS:#x}")
        a(f"v_mov_b32 v{vt2}, s11")
        for i in range(13):
            a(f"v_mov_b32 v{vt}, s{TS0+2*i}")
            a(f"buffer_store_dword v{vt}, v{vt2}, s[{SRD_WS}:{SRD_WS+3}], 0 offen offset:{4*i}")
        a("s_waitcnt vmcnt(0)")

def round_bf16(a, dst, src):
    a(f"v_cvt_pk_bf16_f32 v{dst}, v{src}, v{src}")
    a(f"v_lshlrev_b32 v{dst}, 16, v{dst}")

def exp_acc(a, dst, x, t0, t1):
    a(f"s_mov_b32 s36, {LOG2E:#x}")
    a(f"s_mov_b32 s37, {LOG2E_LO:#x}")
    a(f"v_mul_f32 v{t0}, s36, v{x}")
    a(f"v_fma_f32 v{t1}, v{x}, s36, -v{t0}")
    a(f"v_fma_f32 v{t1}, v{x}, s37, v{t1}")
    a(f"v_mul_f32 v{t1}, {LN2:#x}, v{t1}")
    a(f"v_exp_f32 v{dst}, v{t0}")
    a(f"v_fma_f32 v{dst}, v{dst}, v{t1}, v{dst}")

def csq(a, dr, di, sr, si, t):
    a(f"v_mul_f32 v{t}, v{si}, v{si}")
    a(f"v_add_f32 v{di}, v{si}, v{si}")
    a(f"v_mul_f32 v{di}, v{di}, v{sr}")
    a(f"v_fma_f32 v{dr}, v{sr}, v{sr}, -v{t}")

def cmul(a, dr, di, ar, ai, br, bi):
    a(f"v_mul_f32 v{dr}, v{ar}, v{br}")
    a(f"v_mul_f32 v{di}, v{ar}, v{bi}")
    a(f"v_fma_f32 v{dr}, -v{ai}, v{bi}, v{dr}")
    a(f"v_fma_f32 v{di}, v{ai}, v{br}, v{di}")

def ssm_const_load(a, vm, t):
    a(f"v_and_b32 v{t+3}, 15, v0")
    a(f"s_lshl_b32 s11, s{S_NS}, 4")
    a(f"v_add_lshl_u32 v{t+3}, v{t+3}, s11, 1")
    vm.issue('sc', f"global_load_ushort v{t}, v{t+3}, s[{P_LRE}:{P_LRE+1}]")
    vm.issue('sc', f"global_load_ushort v{t+1}, v{t+3}, s[{P_LIM}:{P_LIM+1}]")
    vm.issue('sc', f"global_load_ushort v{t+2}, v{t+3}, s[{P_LDT}:{P_LDT+1}]")

def ssm_const_calc(a, t, lr, li, cr=None, ci=None):
    for k in range(3): a(f"v_lshlrev_b32 v{t+k}, 16, v{t+k}")
    exp_acc(a, t + 3, t + 2, t + 4, t + 5)
    round_bf16(a, t + 2, t + 3)
    a(f"v_mul_f32 v{t+3}, v{t+2}, v{t}")
    a(f"v_mul_f32 v{t+6}, v{t+2}, v{t+1}")
    exp_acc(a, t + 7, t + 3, t + 4, t + 5)
    a(f"v_mul_f32 v{t+6}, {INV2PI:#x}, v{t+6}")
    a(f"v_rndne_f32 v{t+4}, v{t+6}")
    a(f"v_sub_f32 v{t+6}, v{t+6}, v{t+4}")
    a(f"v_cos_f32 v{t+4}, v{t+6}")
    a(f"v_sin_f32 v{t+5}, v{t+6}")
    a(f"v_mul_f32 v{lr}, v{t+7}, v{t+4}")
    a(f"v_mul_f32 v{li}, v{t+7}, v{t+5}")
    if cr is not None:
        a(f"v_add_f32 v{t+3}, -1.0, v{lr}")
        a(f"v_mul_f32 v{t+4}, v{t}, v{t}")
        a(f"v_fma_f32 v{t+4}, v{t+1}, v{t+1}, v{t+4}")
        a(f"v_rcp_f32 v{t+4}, v{t+4}")
        a(f"v_mul_f32 v{cr}, v{t+3}, v{t}")
        a(f"v_fma_f32 v{cr}, v{li}, v{t+1}, v{cr}")
        a(f"v_mul_f32 v{ci}, v{li}, v{t}")
        a(f"v_fma_f32 v{ci}, -v{t+3}, v{t+1}, v{ci}")
        a(f"v_add_f32 v{t+4}, v{t+4}, v{t+4}")
        a(f"v_mul_f32 v{cr}, v{cr}, v{t+4}")
        a(f"v_mul_f32 v{ci}, v{ci}, v{t+4}")

def gen_entry(a, cfg, ts):
    a("s_cmp_ge_u32 s2, 256")
    a("s_cbranch_scc1 L_exit")
    if cfg.padto: a("s_memrealtime s[100:101]")
    ts(0)
    a("s_load_dwordx16 s[16:31], s[0:1], 0")
    a("s_load_dwordx16 s[32:47], s[0:1], 64")
    a("v_lshrrev_b32 v1, 6, v0")
    a("v_and_b32 v0, 63, v0")
    a(f"v_readfirstlane_b32 s{S_WAVE}, v1")
    a(f"s_and_b32 s{S_XCD}, s2, 7")
    a(f"s_lshr_b32 s{S_SLOT}, s2, 3")
    if cfg.cpf == 2:
        a(f"s_cmp_gt_u32 s{S_WAVE}, {cfg.cpw - 1}")
        a("s_cbranch_scc1 L_nocpf")
        a("s_getpc_b64 s[12:13]")
        a.label("L_pc0")
        a(f"s_sub_u32 s12, s12, L_pc0-{KNAME}")
        a("s_subb_u32 s13, s13, 0")
        a(f"s_lshl_b32 s11, s{S_WAVE}, 5")
        a(f"s_add_u32 s11, s11, s{S_SLOT}")
        a("s_lshl_b32 s11, s11, 10")
        a("v_lshl_add_u32 v38, v0, 4, s11")
        a(f"v_min_u32 v38, L_exit-{KNAME}, v38")
        a("global_load_dword v39, v38, s[12:13]")
        a.label("L_nocpf")
    a(f"s_and_b32 s11, s{S_SLOT}, 3")
    a(f"s_lshr_b32 s{S_NT}, s{S_SLOT}, 2")
    a(f"s_and_b32 s12, s{S_XCD}, 1")
    a(f"s_lshl_b32 s12, s12, 2")
    a(f"s_add_u32 s{S_MT}, s12, s11")
    a(f"s_lshr_b32 s12, s{S_XCD}, 1")
    a(f"s_mul_i32 s12, s12, 7")
    a(f"s_add_u32 s{S_NS}, s12, s{S_NT}")
    if cfg.slab:
        a(f"s_mov_b32 s{S_MT}, s{S_XCD}")
        a(f"s_mov_b32 s{S_NS}, s{S_SLOT}")
    if cfg.loc:
        a(f"s_and_b32 s12, s{S_XCD}, 1")
        a("s_lshl_b32 s12, s12, 2")
        a(f"s_lshr_b32 s13, s{S_XCD}, 1")
        a("s_add_u32 s12, s12, s13")
        a("s_lshl_b32 s12, s12, 2")
    else:
        a(f"s_lshl_b32 s12, s{S_XCD}, 2")
    a(f"s_add_u32 s{S_M64}, s12, s11")
    a(f"s_and_b32 s{S_W4}, s{S_WAVE}, 3")
    ts.init()
    a(f"s_cmp_ge_u32 s{S_SLOT}, 28")
    a("s_cbranch_scc1 L_helper")
    a(f"s_cmp_lt_u32 s{S_WAVE}, 4")
    a("s_cbranch_scc1 L_consumer")

def gen_helper(a, cfg, ts):
    if cfg.al >= 3: a.raw(".p2align 12")
    a.label("L_helper")
    vm = VM(a)
    a(f"s_sub_u32 s73, s{S_SLOT}, 28")
    a(f"s_lshl_b32 s11, s73, 3")
    a(f"s_add_u32 s72, s11, s{S_XCD}")
    if cfg.loc: a(f"s_mov_b32 s72, s{S_M64}")
    HC = 65536
    a(f"v_mov_b32 v200, {HC}")
    a("v_mov_b32 v201, 0")
    a("ds_write_b32 v200, v201")
    def h_open():
        a("s_waitcnt lgkmcnt(0)")
        a("s_barrier")
    def h_signal(tag):
        a("v_mov_b32 v202, 1")
        a("s_mov_b64 exec, 1")
        a("ds_add_rtn_u32 v203, v200, v202")
        a("s_waitcnt lgkmcnt(0)")
        a("v_readfirstlane_b32 s11, v203")
        a("s_cmp_lg_u32 s11, 7")
        a(f"s_cbranch_scc1 L_h_ns{tag}")
        a(f"global_atomic_add v201, v202, s[{P_DBG}:{P_DBG+1}] sc1")
        a.label(f"L_h_ns{tag}")
        a("s_mov_b64 exec, -1")
    a(f"s_cmp_ge_u32 s{S_WAVE}, 4")
    a("s_cbranch_scc1 L_h_pf")
    a(f"s_lshl_b32 s11, s72, 6")
    a(f"s_lshl_b32 s12, s{S_WAVE}, 4")
    a(f"s_add_u32 s11, s11, s12")
    a("v_lshrrev_b32 v2, 3, v0")
    a("v_add_u32 v2, s11, v2")
    a("v_mul_u32_u24 v3, 896, v2")
    a("v_and_b32 v4, 7, v0")
    a("v_lshl_add_u32 v3, v4, 4, v3")
    a("s_waitcnt lgkmcnt(0)")
    srd(a, SRD_X, P_X, 2048 * 896)
    srd(a, SRD_WS, P_WS, WS_SIZE)
    a(f"s_mov_b32 s11, {8*896}")
    for ps in range(2):
        for j in range(7):
            so = "0" if ps == 0 else "s11"
            vm.issue(('x', ps), f"buffer_load_dwordx4 v[{112+28*ps+4*j}:{115+28*ps+4*j}], v3, s[{SRD_X}:{SRD_X+3}], {so} offen offset:{128*j}")
    a(f"s_cmp_gt_u32 s{S_WAVE}, 1")
    a("s_cbranch_scc1 L_h_noreset")
    a(f"s_cmp_eq_u32 s{S_WAVE}, 0")
    a("s_cselect_b32 s11, -1, 0")
    a("s_mov_b32 s12, 1024")
    a("s_cmov_b32 s12, 896")
    a(f"s_mov_b32 s13, {WS_FLAG:#x}")
    a(f"s_cmov_b32 s13, {WS_AGG:#x}")
    a("s_mul_i32 s14, s12, s72")
    a("s_add_u32 s13, s13, s14")
    for k in range(4): a(f"v_mov_b32 v{8+k}, s11")
    a("v_lshlrev_b32 v12, 4, v0")
    a("v_cmp_gt_u32 vcc, s12, v12")
    a("s_and_saveexec_b64 s[14:15], vcc")
    a(f"buffer_store_dwordx4 v[8:11], v12, s[{SRD_WS}:{SRD_WS+3}], s13 offen sc1")
    a("s_mov_b64 exec, s[14:15]")
    a.label("L_h_noreset")
    h_open()
    a("v_lshlrev_b32 v2, 3, v2")
    a("s_mov_b32 s12, 0xffff0000")
    def fin(dst):
        a("v_add_f32 v8, v8, v9")
        a("v_add_f32 v10, v10, v11")
        a(f"v_add_f32 v{dst}, v8, v10")
        a(f"v_add_f32_dpp v{dst}, v{dst}, v{dst} quad_perm:[1,0,3,2] row_mask:0xf bank_mask:0xf")
        a(f"v_add_f32_dpp v{dst}, v{dst}, v{dst} quad_perm:[2,3,0,1] row_mask:0xf bank_mask:0xf")
        a(f"v_add_f32_dpp v{dst}, v{dst}, v{dst} row_half_mirror row_mask:0xf bank_mask:0xf")
        a(f"v_mul_f32 v{dst}, 0x3b124925, v{dst}")
    for ps in range(2):
        vm.wait(('x', ps))
        if cfg.hdelay == 2 + ps: a("s_barrier")
        src = 112 + 28 * ps
        for k in range(28):
            a(f"v_lshlrev_b32 v{48+2*k}, 16, v{src+k}")
            a(f"v_and_b32 v{49+2*k}, s12, v{src+k}")
        a("v_pk_add_f32 v[8:9], v[48:49], v[52:53]")
        a("v_pk_add_f32 v[10:11], v[50:51], v[54:55]")
        for k in range(4, 28): a(f"v_pk_add_f32 v[{8+2*(k%2)}:{9+2*(k%2)}], v[{8+2*(k%2)}:{9+2*(k%2)}], v[{48+2*k}:{49+2*k}]")
        fin(12)
        for k in range(28): a(f"v_pk_add_f32 v[{48+2*k}:{49+2*k}], v[{48+2*k}:{49+2*k}], v[12:13] op_sel_hi:[1,0] neg_lo:[0,1] neg_hi:[0,1]")
        for k in range(2): a(f"v_pk_mul_f32 v[{8+2*k}:{9+2*k}], v[{48+2*k}:{49+2*k}], v[{48+2*k}:{49+2*k}]")
        for k in range(2, 28): a(f"v_pk_fma_f32 v[{8+2*(k%2)}:{9+2*(k%2)}], v[{48+2*k}:{49+2*k}], v[{48+2*k}:{49+2*k}], v[{8+2*(k%2)}:{9+2*(k%2)}]")
        fin(13)
        o = 14 + 2 * ps
        round_bf16(a, o, 12)
        round_bf16(a, 13, 13)
        a("v_add_f32 v13, 0x3727c5ac, v13")
        round_bf16(a, 13, 13)
        a("v_sqrt_f32 v13, v13")
        round_bf16(a, 13, 13)
        a(f"v_rcp_f32 v{o+1}, v13")
        a("v_cmp_eq_u32 vcc, 0, v4")
        a("s_and_saveexec_b64 s[14:15], vcc")
        a(f"s_mov_b32 s11, {WS_STATS:#x}")
        vm.issue('st', f"buffer_store_dwordx2 v[{o}:{o+1}], v2, s[{SRD_WS}:{SRD_WS+3}], s11 offen offset:{64*ps} sc1")
        a("s_mov_b64 exec, s[14:15]")
    a("s_waitcnt vmcnt(0)")
    h_signal("a")
    ts(1)
    ts.x(3, 1)
    ts.dump(8, 9)
    a("s_endpgm")
    a.label("L_h_pf")
    a("v_lshlrev_b32 v2, 4, v0")
    a(f"s_lshl_b32 s11, s{S_W4}, 10")
    a("v_add_u32 v2, s11, v2")
    if cfg.cpf == 1:
        a("s_getpc_b64 s[60:61]")
        a.label("L_pc")
        a(f"s_sub_u32 s60, s60, L_pc-{KNAME}")
        a("s_subb_u32 s61, s61, 0")
        a("s_lshl_b32 s11, s73, 12")
        a("v_add_u32 v3, s11, v2")
        for k in range(2):
            a(f"v_min_u32 v4, L_exit-{KNAME}-12, v3")
            a(f"global_load_dwordx4 v[24:27], v4, s[60:61]")
            a(f"v_add_u32 v3, 16384, v3")
    a("s_waitcnt lgkmcnt(0)")
    if cfg.hdelay == 1: a("s_waitcnt vmcnt(0)")
    if cfg.hdelay >= 2: a("s_barrier")
    srd(a, SRD_WS, P_WS, WS_SIZE)
    a("s_lshl_b32 s60, s72, 2")
    a(f"s_add_u32 s60, s60, s{S_W4}")
    a("s_cmp_ge_u32 s60, 98")
    a("s_cbranch_scc1 L_h_nopack1")
    a("s_mul_i32 s61, s60, 37")
    a("s_lshr_b32 s61, s61, 8")
    a("s_mul_i32 s62, s61, 7")
    a("s_sub_u32 s62, s60, s62")
    a("s_cmp_lt_i32 s62, 0")
    a("s_cselect_b32 s11, 1, 0")
    a("s_sub_u32 s61, s61, s11")
    a("s_mul_i32 s62, s61, 7")
    a("s_sub_u32 s62, s60, s62")
    a("s_bitcmp1_b32 s61, 0")
    srd_sel(a, 68, P_CIM, P_CRE, 448 * 896)
    a("v_lshrrev_b32 v3, 3, v0")
    a("v_and_b32 v4, 7, v0")
    a("v_lshrrev_b32 v5, 1, v3")
    a("v_xor_b32 v4, v4, v5")
    a("s_lshr_b32 s11, s61, 1")
    a("s_lshl_b32 s11, s11, 6")
    a("v_add_u32 v3, s11, v3")
    a("v_mul_u32_u24 v3, 896, v3")
    a("v_lshl_add_u32 v3, v4, 4, v3")
    a("v_xor_b32 v4, 64, v3")
    a(f"s_lshl_b32 s63, s{S_W4}, 13")
    a("s_lshl_b32 s12, s62, 7")
    for n in range(8):
        a(f"s_add_u32 m0, s63, {n*1024}")
        a(f"s_add_u32 s11, s12, {8*n*896}")
        a(f"buffer_load_dwordx4 v{3 + (n & 1)}, s[68:71], s11 offen lds")
    a.label("L_h_nopack1")
    h_open()
    def h_sweep():
        if cfg.hpf:
            for (ptr, nbytes, srdn) in ((P_WD, 1792 * 896, 56),):
                srd(a, srdn, ptr, nbytes)
            def sweep(name, srds, qbytes, first, count):
                n8 = -(-qbytes // (8 * 4096))
                n = 8 * n8
                a(f"s_mul_i32 s12, s73, {qbytes}")
                a(f"s_add_u32 s13, s{S_XCD}, {first}")
                a("s_and_b32 s13, s13, 7")
                a(f"s_mul_i32 s13, s13, {n8}")
                a("s_mov_b32 s14, 0")
                a.label(name)
                a("s_lshl_b32 s11, s13, 12")
                a("s_add_u32 s11, s11, s12")
                for k, sr in enumerate(srds):
                    a(f"buffer_load_dwordx4 v[{16+4*k}:{19+4*k}], v2, s[{sr}:{sr+3}], s11 offen")
                a("s_add_u32 s13, s13, 1")
                a(f"s_cmp_eq_u32 s13, {n}")
                a("s_cselect_b32 s13, 0, s13")
                a("s_add_u32 s14, s14, 1")
                a(f"s_cmp_lt_u32 s14, {n8 * count}")
                a(f"s_cbranch_scc1 {name}")
            sweep("L_h_p2", [56], 1792 * 896 // 4, 0, 1)
            ts(2)
    def h_pack():
        a("s_cmp_ge_u32 s60, 98")
        a("s_cbranch_scc1 L_h_nopack2")
        a("v_and_b32 v5, 31, v0")
        a("v_lshrrev_b32 v6, 5, v0")
        a("v_bfe_u32 v7, v0, 1, 3")
        a("v_xor_b32 v7, v7, v6")
        a("v_lshlrev_b32 v7, 4, v7")
        a("v_lshl_add_u32 v5, v5, 7, v7")
        a("v_add_u32 v5, s63, v5")
        a("v_lshlrev_b32 v6, 4, v0")
        a("s_mul_i32 s12, s61, 28")
        a("s_lshl_b32 s11, s62, 2")
        a("s_add_u32 s12, s12, s11")
        a("s_lshl_b32 s12, s12, 11")
        a(f"s_add_u32 s12, s12, {WS_CP:#x}")
        a(f"s_waitcnt vmcnt({13 if (cfg.hpf and not cfg.hord) else 0})")
        for ks in range(4):
            a(f"v_xor_b32 v7, {32*ks}, v5")
            for ct in range(2):
                d = 32 + 8 * ks + 4 * ct
                a(f"ds_read_b128 v[{d}:{d+3}], v7 offset:{4096*ct}")
        for ks in range(4):
            a(f"s_waitcnt lgkmcnt({6 - 2*ks})")
            a(f"s_add_u32 s11, s12, {2048*ks}")
            for ct in range(2):
                d = 32 + 8 * ks + 4 * ct
                a(f"buffer_store_dwordx4 v[{d}:{d+3}], v6, s[{SRD_WS}:{SRD_WS+3}], s11 offen offset:{1024*ct} sc1")
        a("s_waitcnt vmcnt(0)")
        a.label("L_h_nopack2")
        h_signal("b")
        ts(3)
        ts.x(3, 1)
    if cfg.hord: h_pack(); h_sweep()
    else: h_sweep(); h_pack()
    ts.dump(8, 9)
    a("s_endpgm")

def spin_check(a, name, load_text_list, cond_fn, sleep=1):
    lo, done = a.newlabel(name + "_spin"), a.newlabel(name + "_ok")
    a(f"s_mov_b32 s73, 0")
    a.label(lo)
    cond_fn()
    a(f"s_cbranch_scc1 {done}")
    a("s_add_u32 s73, s73, 1")
    a(f"s_cmp_ge_u32 s73, {SPIN_MAX}")
    a(f"s_cbranch_scc1 {done}")
    a(f"s_sleep {sleep}")
    for t in load_text_list: a(t)
    a("s_waitcnt vmcnt(0)")
    a(f"s_branch {lo}")
    a.label(done)
    a("s_nop 4")

def sspin(a, name, loads, cond_fn, sleep=1):
    lo, done = a.newlabel(name + "_spin"), a.newlabel(name + "_ok")
    a("s_mov_b32 s73, 0")
    a.label(lo)
    for t in loads: a(t)
    a("s_waitcnt lgkmcnt(0)")
    cond_fn()
    a(f"s_cbranch_scc1 {done}")
    a("s_add_u32 s73, s73, 1")
    a(f"s_cmp_lt_u32 s73, {SPIN_MAX}")
    if sleep: a(f"s_sleep {sleep}")
    a(f"s_cbranch_scc1 {lo}")
    a.label(done)

def flag_index(a, d, t, grp):
    a(f"s_mul_i32 s{t}, s{S_NS}, 37")
    a(f"s_lshr_b32 s{t}, s{t}, {8 if grp == 7 else 9}")
    a(f"s_mul_i32 s{t}, s{t}, {32 - grp}")
    a(f"s_add_u32 s{d}, s{t}, s{S_NS}")
    a(f"s_lshl_b32 s{d}, s{d}, 2")

def interleave(a, prim, fill, per):
    fill = list(fill)
    for p in prim:
        p()
        for _ in range(per):
            if fill: a(fill.pop(0))
    for f in fill: a(f)

def p2_rot(a, cfg, d_ffn, d_blk, d_flip):
    if not cfg.rot:
        for d in (d_ffn, d_blk, d_flip): a(f"s_mov_b32 s{d}, 0")
        return
    tab = {2: [0] * 7, 1: list(range(7)), 3: [0, 3, 0, 3, 0, 3, 0], 4: [0, 2, 5, 0, 2, 5, 0], 5: [0, 4, 2, 5, 0, 4, 2], 6: [0, 1, 0, 1, 0, 1, 0], 7: [0, 2, 0, 2, 0, 2, 0]}[cfg.rot]
    word = sum(v << (4 * k) for k, v in enumerate(tab))
    a(f"s_lshl_b32 s11, s{S_NT}, 2")
    a(f"s_lshr_b32 s13, {word:#x}, s11")
    a("s_and_b32 s13, s13, 15")
    a(f"s_and_b32 s11, s{S_SLOT}, 3")
    a("s_lshl_b32 s11, s11, 1")
    a("s_add_u32 s11, s11, s13")
    a("s_cmp_ge_u32 s11, 7")
    a("s_cselect_b32 s13, 7, 0")
    a(f"s_sub_u32 s{d_ffn}, s11, s13")
    for d in (d_blk, d_flip): a(f"s_mov_b32 s{d}, 0")

def slot(reg, n): return R[reg] + 2048 * n
SA = [slot(1, n) for n in range(6)]; SB = [slot(2, n) for n in range(6)]; SC = [slot(0, n) for n in range(6)]
WSLOT = {}
for n in range(6): WSLOT[n] = SA[n]; WSLOT[6 + n] = SB[n]
for n in range(4): WSLOT[12 + n] = SC[n]; WSLOT[16 + n] = SA[n]; WSLOT[20 + n] = SB[n]
WSLOT.update({24: SA[4], 25: SA[5], 26: SB[4], 27: SB[5]})
HTS = SC[4]
PH1, PH2, GA, FXA, SD = SC[0], SC[4], SB[0], SA[0], SC[0]

class Rec:
    def __init__(self): self.L = []
    def __call__(self, t): self.L.append(t)

def ssm_park(kc, K, KP, sQ):
    LR, LI, CR, CI, L16R, L16I, PWR, PWI, L64R, L64I, LWR, LWI, W0R = [KP + k for k in range(13)]
    vTW, vTR, vCB = KP + 16, KP + 17, KP + 18
    ssm_const_calc(kc, K, LR, LI, CR, CI)
    csq(kc, L16R, L16I, LR, LI, K)
    for _ in range(3): csq(kc, L16R, L16I, L16R, L16I, K)
    def powsel(dr, di, br, bi, bit, src):
        cmul(kc, K + 1, K + 2, dr, di, br, bi)
        kc(f"v_and_b32 v{K}, {bit}, v{src}")
        kc(f"v_cmp_ne_u32 vcc, 0, v{K}")
        kc(f"v_cndmask_b32 v{dr}, v{dr}, v{K+1}, vcc")
        kc(f"v_cndmask_b32 v{di}, v{di}, v{K+2}, vcc")
    kc(f"v_mov_b32 v{PWR}, v{CR}"); kc(f"v_mov_b32 v{PWI}, v{CI}")
    powsel(PWR, PWI, L16R, L16I, 32, 0)
    csq(kc, K + 14, K + 15, L16R, L16I, K)
    powsel(PWR, PWI, K + 14, K + 15, 16, 0)
    csq(kc, L64R, L64I, K + 14, K + 15, K)
    kc(f"v_mov_b32 v{K+10}, s{S_W4}")
    kc(f"v_mov_b32 v{LWR}, 1.0"); kc(f"v_mov_b32 v{LWI}, 0")
    powsel(LWR, LWI, L64R, L64I, 1, K + 10)
    csq(kc, K + 14, K + 15, L64R, L64I, K)
    powsel(LWR, LWI, K + 14, K + 15, 2, K + 10)
    csq(kc, K + 14, K + 15, K + 14, K + 15, K)
    kc(f"v_lshrrev_b32 v{K+10}, 4, v0")
    kc(f"v_sub_u32 v{K+10}, s{S_MT}, v{K+10}")
    kc(f"v_add_u32 v{K+11}, -5, v{K+10}")
    kc(f"v_add_u32 v{K+10}, -1, v{K+10}")
    kc(f"v_mov_b32 v{W0R}, 1.0"); kc(f"v_mov_b32 v{W0R+1}, 0")
    kc(f"v_mov_b32 v{W0R+2}, 1.0"); kc(f"v_mov_b32 v{W0R+3}, 0")
    for b in range(3):
        powsel(W0R, W0R + 1, K + 14, K + 15, 1 << b, K + 10)
        if b < 2: powsel(W0R + 2, W0R + 3, K + 14, K + 15, 1 << b, K + 11)
        if b < 2: csq(kc, K + 14, K + 15, K + 14, K + 15, K)
    kc(f"s_add_u32 s36, s{sQ}, {HTS}")
    kc(f"v_bfe_u32 v{K}, v0, 4, 1")
    kc(f"v_lshrrev_b32 v{K+1}, 5, v0")
    kc(f"v_lshl_add_u32 v{K+2}, v{K}, 1, v{K+1}")
    kc(f"v_and_b32 v{K+3}, 15, v0")
    kc(f"v_and_b32 v{vTW}, 6, v{K+3}")
    kc(f"v_lshlrev_b32 v{vTW}, 4, v{vTW}")
    kc(f"v_lshlrev_b32 v{K+4}, 5, v{K+2}")
    kc(f"v_xor_b32 v{vTW}, v{vTW}, v{K+4}")
    kc(f"v_lshl_add_u32 v{vTW}, v{K+3}, 7, v{vTW}")
    kc(f"v_add_u32 v{vTW}, s36, v{vTW}")
    kc(f"v_lshlrev_b32 v{vCB}, 2, v{K+3}")
    kc(f"v_add_u32 v{vCB}, {C_L + 512}, v{vCB}")
    kc(f"v_bfe_u32 v{K+4}, v0, 2, 2")
    kc(f"v_lshl_add_u32 v{K+5}, v{K+1}, 3, v{K+4}")
    kc(f"v_lshlrev_b32 v{vTR}, 7, v{K+5}")
    kc(f"v_lshrrev_b32 v{K+4}, 1, v{K+4}")
    kc(f"v_xor_b32 v{K+4}, v{K+4}, v0")
    kc(f"v_and_b32 v{K+4}, 1, v{K+4}")
    kc(f"v_lshl_add_u32 v{vTR}, v{K+4}, 5, v{vTR}")
    kc(f"v_lshl_add_u32 v{vTR}, v{K}, 4, v{vTR}")
    kc(f"v_bfe_u32 v{K+4}, v0, 1, 1")
    kc(f"v_lshl_add_u32 v{vTR}, v{K+4}, 3, v{vTR}")
    kc(f"v_add_u32 v{vTR}, s36, v{vTR}")
    kc(f"s_lshl_b32 s36, s{S_W4}, 9")
    kc(f"s_add_u32 s36, s36, {STATS_L}")
    kc(f"v_lshl_add_u32 v{KP+19}, v{K+2}, 7, s36")
    vStS = KP + 19
    vAg, vPr, vF = KP + 20, KP + 21, KP + 22
    kc(f"v_lshlrev_b32 v{vAg}, 3, v{K+3}")
    kc(f"v_lshrrev_b32 v{vPr}, 4, v0")
    kc(f"v_mul_u32_u24 v{vPr}, 3584, v{vPr}")
    kc(f"s_lshl_b32 s36, s{S_NS}, 7")
    kc(f"v_add3_u32 v{vPr}, v{vPr}, v{vAg}, s36")
    kc(f"v_add_u32 v{vAg}, {AGG_L}, v{vAg}")
    kc(f"s_lshl_b32 s36, s{S_MT}, 2")
    kc(f"s_add_u32 s36, s36, s{S_W4}")
    kc("s_lshl_b32 s36, s36, 10")
    flag_index(kc, 37, 38, 14)
    kc("s_add_u32 s36, s36, s37")
    kc(f"s_add_u32 s36, s36, {WS_FLAG + 512:#x}")
    kc(f"v_mov_b32 v{vF}, s36")

def gen_loader(a, cfg, ts):
    a.label("L_loader")
    a("s_setprio 3")
    vm = VM(a)
    vXe, vXo, vW, vB = 1, 2, 3, 4
    vFv, vP, vO, vPQ = 5, 6, 7, 8
    vWd, vCe, vCo, vCh = 9, 10, 11, 12
    vRf, vRh = 13, 14
    vA, vC = 24, 25
    vT = 15
    ACC, CA, RD = 27, 28, 44
    STG = 64
    CF = 144
    SACC = 80
    XRAW = CF + 64
    KP = XRAW + 8
    sGrp = [28, 29, 30, 31, 36, 37, 21]
    SP = ['', ' sc1'][cfg.spol]
    sMX, sMW, sMB, sMP = 72, 74, 75, 70
    sPerm, sSX, sSW = 68, 69, 15
    sRF = 14
    AP = ['', ' sc1', ' sc1 nt', ' sc0 sc1', ' sc0', ' nt'][cfg.apol]
    OP = ['', ' sc1', ' nt', ' sc1 nt'][cfg.opol]
    polx = " nt" if cfg.polx else ""
    polw = " nt" if cfg.polw else ""
    a(f"v_lshrrev_b32 v{vA}, 3, v0")
    a(f"v_and_b32 v{vC}, 7, v0")
    a(f"v_lshrrev_b32 v{vT+2}, 1, v{vA}")
    a(f"s_lshl_b32 s11, s{S_W4}, 4")
    a(f"v_add_u32 v{vT}, s11, v{vA}")
    a(f"v_mul_u32_u24 v{vW}, 3584, v{vT}")
    a(f"v_and_b32 v{vT+4}, 1, v{vT+2}")
    a(f"v_lshlrev_b32 v{vT+4}, 2, v{vT+4}")
    a(f"v_xor_b32 v{vT+4}, v{vC}, v{vT+4}")
    a(f"v_lshl_add_u32 v{vW}, v{vT+4}, 4, v{vW}")
    a(f"s_lshl_b32 s11, s{S_NS}, 7")
    a(f"v_add_u32 v{vW}, s11, v{vW}")
    a(f"s_lshl_b32 s11, s{S_MT}, 8")
    a(f"s_lshl_b32 s12, s{S_W4}, 6")
    a("s_add_u32 s11, s11, s12")
    a(f"v_lshrrev_b32 v{vT}, 2, v{vA}")
    a(f"v_and_b32 v{vT+1}, 3, v{vA}")
    a(f"v_lshl_add_u32 v{vT}, v{vT}, 4, v{vT+1}")
    a(f"v_add_u32 v{vT}, s11, v{vT}")
    a(f"v_mul_u32_u24 v{vXe}, 896, v{vT}")
    a(f"v_xor_b32 v{vT+3}, v{vC}, v{vT+2}")
    a(f"v_lshl_add_u32 v{vXe}, v{vT+3}, 4, v{vXe}")
    a(f"v_xor_b32 v{vXo}, 64, v{vXe}")
    a(f"s_and_b32 s12, s{S_W4}, 1")
    a(f"s_lshl_b32 s11, s{S_NS}, 4")
    a(f"s_lshl_b32 s13, s12, 3")
    a("s_add_u32 s11, s11, s13")
    a(f"v_add_u32 v{vT}, s11, v{vA}")
    a(f"v_mul_u32_u24 v{vB}, 896, v{vT}")
    a(f"v_lshl_add_u32 v{vB}, v{vT+3}, 4, v{vB}")
    a("s_lshl_b32 s13, s12, 6")
    a(f"v_xor_b32 v{vB}, s13, v{vB}")
    a(f"s_lshl_b32 s{sMX}, s{S_W4}, 13")
    a(f"s_lshl_b32 s{sMW}, s{S_W4}, 11")
    a(f"s_lshl_b32 s{sMB}, s{S_W4}, 10")
    a(f"s_mul_i32 s{sMP}, s{S_W4}, {Q}")
    perms = cfg.perms
    words = [sum(p[k] << (4 * k) for k in range(7)) for p in perms]
    ng = len(words)
    a(f"s_mov_b32 s{sPerm}, {words[0]:#x}")
    if ng > 1:
        if cfg.slab:
            a(f"s_add_u32 s11, s{S_SLOT}, s{S_XCD}")
        else:
            a(f"s_and_b32 s11, s{S_SLOT}, 3")
            a(f"s_add_u32 s11, s11, s{S_NT}")
        if ng == 3:
            a("s_mul_i32 s13, s11, 43")
            a("s_lshr_b32 s13, s13, 7")
            a("s_mul_i32 s13, s13, 3")
            a("s_sub_u32 s11, s11, s13")
        else:
            a(f"s_and_b32 s11, s11, {ng-1}")
        for g in range(1, ng):
            a(f"s_cmp_eq_u32 s11, {g}")
            a(f"s_cmov_b32 s{sPerm}, {words[g]:#x}")
    ts.x(1, 1)
    a("s_waitcnt lgkmcnt(0)")
    ts.x(1, 2)
    if cfg.tlb:
        a(f"v_mov_b32 v40, s{P_X}")
        a(f"v_mov_b32 v41, s{P_X+1}")
        for ln, p in enumerate([P_WG, P_WU, P_BRE, P_BIM, P_WD, P_CRE, P_CIM, P_WS][:cfg.tlb], 1):
            a(f"v_writelane_b32 v40, s{p}, {ln}")
            a(f"v_writelane_b32 v41, s{p+1}, {ln}")
        a(f"s_mov_b64 exec, {(1 << (cfg.tlb + 1)) - 1:#x}")
        a("global_load_dword v62, v[40:41], off")
        a("s_mov_b64 exec, -1")
    srd(a, SRD_A, P_WG, 448 * 3584)
    srd(a, SRD_X, P_X, 2048 * 896)
    srd(a, SRD_B, P_WU, 448 * 3584)
    a(f"s_cmp_ge_u32 s{S_W4}, 2")
    srd_sel(a, SRD_C, P_BIM, P_BRE, 448 * 896)

    thr = [None]
    def dma(vm, tag, voff, srdn, sbase, soff, m0base, m0off, pol=""):
        a(f"s_add_u32 m0, s{m0base}, {m0off}")
        a(f"s_add_u32 s11, s{sbase}, {soff}")
        if thr[0] is not None and len(vm.q) > thr[0]:
            a(f"s_waitcnt vmcnt({thr[0]})")
            vm.q = vm.q[-thr[0]:]
        vm.issue(tag, f"buffer_load_dwordx4 v{voff}, s[{srdn}:{srdn+3}], s11 offen{pol} lds")
    def issue_ops(s):
        r = R[s % 3]
        ops = []
        def pre():
            a(f"s_bfe_u32 s{sSX}, s{sPerm}, {(4 << 16) | (4 * s):#x}")
            a(f"s_mul_i32 s{sSW}, s{sSX}, {64*3584}")
            a(f"s_lshl_b32 s{sSX}, s{sSX}, 7")
        def mk(*args): return lambda: dma(vm, ('st', s), *args)
        L = []
        for i in range(2): L.append(mk(vW, SRD_A, sSW, i * 8 * 3584, sMW, r + OFF_WG + i * 1024, polw))
        for j in range(4): L.append(mk(vXo if j & 1 else vXe, SRD_X, sSX, (32 * (j >> 2) + 4 * (j & 3)) * 896, sMX, r + j * 1024, polx))
        for i in range(2): L.append(mk(vW, SRD_B, sSW, i * 8 * 3584, sMW, r + OFF_WU + i * 1024, polw))
        for j in range(4, 8): L.append(mk(vXo if j & 1 else vXe, SRD_X, sSX, (32 * (j >> 2) + 4 * (j & 3)) * 896, sMX, r + j * 1024, polx))
        L.append(mk(vB, SRD_C, sSX, 0, sMB, r + OFF_BB, polw))
        first = L[0]
        L[0] = lambda: (pre(), first())
        return L
    SRD_WD, SRD_CC, sBlk, sFlip, P_DSK2 = 32, 24, 16, 17, 38
    def w_ops(ps):
        L = []
        for p in ps:
            for n in range(2):
                def op(p=p, n=n):
                    if 12 <= p < 22:
                        d = STG + (p - 12) * 8 + 4 * n
                        a(f"s_add_u32 s11, s{sGrp[p//4]}, {((p % 4) * 16 + 8 * n) * 896}")
                        vm.issue(('w', p), f"buffer_load_dwordx4 v[{d}:{d+3}], v{vWd}, s[{SRD_WD}:{SRD_WD+3}], s11 offen")
                    else:
                        dma(vm, ('w', p), vWd, SRD_WD, sGrp[p//4], ((p % 4) * 16 + 8 * n) * 896, sMP, WSLOT[p] + n * 1024)
                L.append(op)
        return L
    sCB = [68, 69, 15]
    sCF, sCH = 16, 17
    def cfrag(p, lc): return CF + 8 * p + 4 * lc
    def c_ops(b):
        L = []
        for p in (range(4 * b, 4 * b + 4) if b < 3 else (12, 13)):
            for lc in range(2):
                def op(p=p, lc=lc):
                    d = cfrag(p, lc)
                    sb, so = (sCF, 2048 * p) if p < 12 else (sCH, 2048 * (p - 12))
                    if cfg.crot and p < 12: sb, so = sCB[p // 4], 2048 * (p % 4)
                    a(f"s_add_u32 s11, s{sb}, {so}")
                    vm.issue(('c', b), f"buffer_load_dwordx4 v[{d}:{d+3}], v{(vCe, vCo)[lc]}, s[{SRD_WS}:{SRD_WS+3}], s11 offen sc1")
                L.append(op)
        return L
    def w_write(ps):
        vm.wait(('w', ps[-1]))
        base = WSLOT[ps[0]]
        a(f"v_add_u32 v{vT+4}, {base}, v{vPQ}")
        for p in ps:
            for n in range(2):
                d = STG + (p - 12) * 8 + 4 * n
                a(f"ds_write_b128 v{vT+4}, v[{d}:{d+3}] offset:{WSLOT[p] - base + 1024*n}")
    def colsum_reads(s):
        r = R[s % 3]
        a(f"s_add_u32 s11, s{sMW}, {r + OFF_WG}")
        a(f"v_add_u32 v{vT}, s11, v{vP}")
        a(f"s_add_u32 s11, s{sMB}, {r + OFF_BB}")
        a(f"v_add_u32 v{vT+1}, s11, v{vP}")
        a(f"ds_read_b128 v[{RD}:{RD+3}], v{vT}")
        a(f"ds_read_b128 v[{RD+4}:{RD+7}], v{vT} offset:1024")
        a(f"ds_read_b128 v[{RD+8}:{RD+11}], v{vT} offset:8192")
        a(f"ds_read_b128 v[{RD+12}:{RD+15}], v{vT} offset:9216")
        a(f"ds_read_b128 v[{RD+16}:{RD+19}], v{vT+1}")
    def colsum_ops():
        L = ["s_waitcnt lgkmcnt(0)"]
        for n in range(4):
            for d in range(4):
                w = RD + 4 * n + d
                ac = CA + (n >> 1) * 8 + 2 * d
                L.append(f"v_lshlrev_b32 v{vT+2}, 16, v{w}")
                L.append(f"v_and_b32 v{vT+3}, s71, v{w}")
                L.append(f"v_add_f32 v{ac}, v{ac}, v{vT+2}")
                L.append(f"v_add_f32 v{ac+1}, v{ac+1}, v{vT+3}")
        for d in range(4):
            w = RD + 16 + d
            L.append(f"v_lshlrev_b32 v{vT+2}, 16, v{w}")
            L.append(f"v_and_b32 v{vT+3}, s71, v{w}")
            L.append(f"v_add_f32 v{vT+2}, v{vT+2}, v{vT+3}")
            L.append(f"v_add_f32 v{ACC}, v{ACC}, v{vT+2}")
        return L

    stage_ops = {}
    cdone = set()
    def tok_ops(toks):
        L = []
        for t in toks:
            if t[0] == 's':
                st = int(t[1])
                if st not in stage_ops: stage_ops[st] = issue_ops(st)
                lo, hi = (0, 13) if ':' not in t else map(int, t.split(':')[1].split('-'))
                L += stage_ops[st][lo:hi]
            elif t[0] == 'w': L += w_ops([int(t[1:])])
            elif t[0] == 'c':
                lo, hi = (0, 8) if ':' not in t else map(int, t.split(':')[1].split('-'))
                L += c_ops(int(t[1]))[lo:hi]
                cdone.add(int(t[1]))
            else: L.append(lambda t=t: special(t))
        return L
    def run_tokens(toks):
        for o in tok_ops(toks): o()
    def special(t):
        if True:
            if t == 'put':
                vm.wait('stats')
                a(f"s_lshl_b32 s11, s{S_W4}, 9")
                a(f"s_add_u32 s11, s11, {STATS_L}")
                a(f"v_lshl_add_u32 v{vT+4}, v0, 3, s11")
                a(f"ds_write_b64 v{vT+4}, v[20:21]")
                a(f"v_lshlrev_b32 v{vT+4}, 3, v0")
                a(f"v_add_u32 v{vT+4}, {ST2_L}, v{vT+4}")
                a(f"ds_write_b64 v{vT+4}, v[22:23]")
            elif t == 'e':
                a(f"s_add_u32 s12, s41, {16*896}")
                vm.issue('e', f"buffer_load_dwordx4 v[{XRAW}:{XRAW+3}], v20, s[{SRD_X}:{SRD_X+3}], s41 offen")
                vm.issue('e', f"buffer_load_dwordx4 v[{XRAW+4}:{XRAW+7}], v20, s[{SRD_X}:{SRD_X+3}], s12 offen")
                vm.issue('e', f"global_load_ushort v{KP+23}, v21, s[{P_DSK2}:{P_DSK2+1}]")
            elif t == 'm':
                a(f"v_lshlrev_b32 v{vP}, 4, v0")
                a("s_lshl_b32 s12, s2, 2")
                a(f"s_add_u32 s12, s12, s{S_W4}")
                a("s_lshl_b32 s12, s12, 10")
                a(f"s_add_u32 s12, s12, {192*3584}")
                vm.issue('m', f"buffer_load_dwordx4 v[140:143], v{vP}, s[{SRD_A}:{SRD_A+3}], s12 offen")
                vm.issue('m', f"buffer_load_dwordx4 v[140:143], v{vP}, s[{SRD_B}:{SRD_B+3}], s12 offen")
                a(f"s_and_b32 s12, s{S_W4}, 1")
                a("s_lshl_b32 s11, s2, 1")
                a("s_add_u32 s12, s12, s11")
                a("s_lshl_b32 s12, s12, 10")
                vm.issue('m', f"buffer_load_dwordx4 v[140:143], v{vP}, s[{SRD_C}:{SRD_C+3}], s12 offen")
            elif t == 'n':
                a("s_lshl_b32 s12, s2, 2")
                a(f"s_add_u32 s12, s12, s{S_W4}")
                a("s_lshl_b32 s12, s12, 8")
                a(f"s_add_u32 s12, s12, {384*3584}")
                a("s_mov_b64 exec, 0xffff")
                vm.issue('m', f"buffer_load_dwordx4 v[140:143], v{vP}, s[{SRD_A}:{SRD_A+3}], s12 offen")
                vm.issue('m', f"buffer_load_dwordx4 v[140:143], v{vP}, s[{SRD_B}:{SRD_B+3}], s12 offen")
                a("s_mov_b64 exec, -1")
            elif t == 'k':
                a("s_waitcnt lgkmcnt(0)")
            elif t == 'init':
                a(f"v_mov_b32 v26, 0")
                vm.issue('init', f"global_load_dword v5, v26, s[{P_DBG}:{P_DBG+1}] sc1")
            elif t == 'fetch':
                vm.wait('init')
                def cond():
                    a(f"v_readfirstlane_b32 s11, v5")
                    a(f"s_cmp_ge_u32 s11, {INIT_N}")
                spin_check(a, "L_init", [f"global_load_dword v5, v26, s[{P_DBG}:{P_DBG+1}] sc1"], cond, 8)
                if cfg.ts == 1 and cfg.tsset == 3: a(f"s_add_u32 s{TS0+18}, s73, 1")
                if cfg.crot:
                    a(f"s_and_b32 s11, s{S_SLOT}, 3")
                    a("s_lshl_b32 s11, s11, 1")
                    a("s_lshr_b32 s12, 0x924, s11")
                    for b in range(3):
                        a(f"s_bfe_u32 s11, s12, {(2 << 16) | (2 * b):#x}")
                        a("s_lshl_b32 s11, s11, 13")
                        a(f"s_add_u32 s{sCB[b]}, s11, s{sCF}")
                a(f"s_lshl_b32 s11, s{S_MT}, 8")
                a(f"s_lshl_b32 s12, s{S_W4}, 6")
                a("s_add_u32 s11, s11, s12")
                a(f"v_add_lshl_u32 v5, v0, s11, 3")
                a(f"s_lshl_b32 s12, s{S_M64}, 6")
                a(f"v_add_lshl_u32 v26, v0, s12, 3")
                a(f"s_mov_b32 s11, {WS_STATS:#x}")
                vm.issue('stats', f"buffer_load_dwordx2 v[20:21], v5, s[{SRD_WS}:{SRD_WS+3}], s11 offen sc1")
                vm.issue('stats', f"buffer_load_dwordx2 v[22:23], v26, s[{SRD_WS}:{SRD_WS+3}], s11 offen sc1")
            else: raise ValueError(t)
    win = cfg.win
    if cfg.n6 >= 0: win[cfg.n6] = win[cfg.n6] + ["n"]
    run_tokens([f"s0:0-{cfg.s0a}"])
    if cfg.s0a == 13:
        ts(1)
        ts.x(1, 6)
        run_tokens(win.get(-1, []))
        a("s_setprio 0")
    a(f"s_and_b32 s12, s{S_W4}, 1")
    a(f"v_lshlrev_b32 v{vP}, 4, v0")
    a(f"v_add_u32 v{vPQ}, s{sMP}, v{vP}")
    a(f"s_mul_i32 s14, s{S_W4}, 448")
    a(f"v_add_u32 v{vT}, s14, v{vA}")
    a(f"v_mul_u32_u24 v{vWd}, 896, v{vT}")
    a(f"v_lshl_add_u32 v{vWd}, v{vT+4}, 4, v{vWd}")
    a(f"s_lshl_b32 s14, s{S_NT}, 7")
    a(f"v_add_u32 v{vWd}, s14, v{vWd}")
    a(f"v_and_b32 v{vT+1}, 3, v0")
    a("s_mov_b32 s71, 0xffff0000")
    for k in range(17): a(f"v_mov_b32 v{ACC+k}, 0")
    srd(a, SRD_WS, P_WS, WS_SIZE)
    a(f"s_mov_b64 s[{P_DSK2}:{P_DSK2+1}], s[{P_DSK}:{P_DSK+1}]")
    srd(a, SRD_WD, P_WD, 1792 * 896)
    p2_rot(a, cfg, sRF, sBlk, sFlip)
    a(f"s_lshl_b32 s11, s{S_M64}, 1")
    a("s_add_u32 s40, s11, s12")
    a("s_lshl_b32 s12, s40, 5")
    a(f"v_lshrrev_b32 v{vT}, 2, v0")
    a(f"v_add_u32 v{vT}, s12, v{vT}")
    a(f"v_mul_u32_u24 v{vT}, 896, v{vT}")
    a(f"v_lshl_add_u32 v20, v{vT+1}, 4, v{vT}")
    a(f"v_lshrrev_b32 v{vT+2}, 5, v0")
    a(f"v_lshl_add_u32 v{vT}, v{vT+2}, 4, s12")
    a(f"s_lshr_b32 s13, s{S_W4}, 1")
    a("s_lshl_b32 s12, s13, 5")
    a(f"s_lshl_b32 s11, s{S_NT}, 6")
    a("s_add_u32 s11, s11, s12")
    a("s_lshl_b32 s41, s11, 1")
    a(f"v_and_b32 v{vT+3}, 31, v0")
    a(f"v_add_u32 v{vT+1}, s11, v{vT+3}")
    a(f"v_mul_u32_u24 v{vT}, 448, v{vT}")
    a(f"v_add_lshl_u32 v{vO}, v{vT}, v{vT+1}, 2")
    a(f"v_lshlrev_b32 v21, 1, v{vT+1}")
    a("s_lshl_b32 s12, s13, 10")
    a(f"v_add_u32 v{vCe}, s12, v{vP}")
    a(f"v_xor_b32 v{vCo}, 1024, v{vCe}")
    a(f"s_lshl_b32 s11, s{S_NT}, 1")
    a("s_add_u32 s11, s11, s13")
    a(f"s_mul_i32 s11, s11, {28*2048}")
    a(f"s_add_u32 s11, s11, {WS_CP:#x}")
    a(f"s_and_b32 s12, s{S_W4}, 1")
    a(f"s_lshl_b32 s{sCF}, s12, 15")
    a(f"s_add_u32 s{sCF}, s{sCF}, s11")
    a(f"s_lshl_b32 s{sCH}, s12, 12")
    a(f"s_add_u32 s{sCH}, s{sCH}, s11")
    a(f"s_add_u32 s{sCH}, s{sCH}, {12*2048}")
    a(f"v_bfe_u32 v{vT}, v0, 4, 1")
    a(f"v_lshlrev_b32 v{vT+1}, 2, v{vT}")
    a(f"v_xor_b32 v{vC}, v{vC}, v{vT+1}")
    a(f"v_lshlrev_b32 v{vC}, 5, v{vC}")
    a(f"v_lshl_add_u32 v{vC}, v{vT}, 9, v{vC}")
    a(f"v_lshl_add_u32 v{vC}, v{vT+2}, 8, v{vC}")
    a(f"s_add_u32 s11, s{sMB}, {CP_L}")
    a(f"v_add_u32 v{vC}, s11, v{vC}")
    a(f"s_lshl_b32 s11, s{S_W4}, 5")
    a(f"s_add_u32 s11, s11, {C_L + 512}")
    a(f"v_lshl_add_u32 v{vA}, v{vA}, 2, s11")
    ts.x(1, 8)
    LR, LI, CR, CI, L16R, L16I, PWR, PWI, L64R, L64I, LWR, LWI, W0R = [KP + k for k in range(13)]
    vTW, vTR, vCB, vStS, vAg, vPr, vF = [KP + k for k in range(16, 23)]
    a(f"s_lshl_b32 s21, s{S_NS}, 7")
    a(f"s_mul_i32 s22, s{S_MT}, 3584")
    a("s_add_u32 s22, s22, s21")
    a(f"s_add_u32 s22, s22, {WS_AGG - AGG_L:#x}")
    a(f"s_mov_b32 s23, {WS_AGG:#x}")
    a(f"s_mov_b32 s20, {WS_AGG + 4*3584:#x}")
    a(f"s_lshl_b32 s18, s{S_M64}, 10")
    a(f"s_and_b32 s11, s{S_W4}, 1")
    a("s_lshl_b32 s11, s11, 7")
    a("s_add_u32 s18, s18, s11")
    a(f"s_add_u32 s18, s18, {WS_FLAG + 512:#x}")
    a(f"s_lshl_b32 s11, s{S_MT}, 2")
    a(f"s_add_u32 s11, s11, s{S_W4}")
    a(f"s_mul_i32 s19, s11, {2*RT_BYTES}")
    a(f"s_lshl_b32 s11, s{S_NS}, 10")
    a("s_add_u32 s19, s19, s11")
    a(f"s_add_u32 s19, s19, {56*1024}")
    for g in range(7):
        a(f"s_add_u32 s12, s{sRF}, {g}")
        a("s_cmp_ge_u32 s12, 7")
        a("s_cselect_b32 s13, 7, 0")
        a("s_sub_u32 s12, s12, s13")
        a(f"s_mul_i32 s{sGrp[g]}, s12, {64*896}")
    a(f"s_add_u32 s11, s{sMX}, {R[2]}")
    a(f"v_add_u32 v{vT+4}, s11, v{vP}")
    kparts = {}
    if cfg.s0a < 13:
        run_tokens([f"s0:{cfg.s0a}-13"])
        ts(1)
        ts.x(1, 6)
        run_tokens(win.get(-1, []))
    a(f"s_setprio {cfg.wprio}")
    for s in range(7):
        vm.wait(('st', s))
        ts.x(2, 1 + s)
        a("s_barrier")
        ts.x(3, 1 + s)
        if s == 0: ts(2)
        if s == 0:
            for k in range(6): a(f"ds_read_b128 v[{KP+4*k}:{KP+4*k+3}], v{vT+4} offset:{1024*k}")
        if s == 6:
            QQ = 28
            for p in range(8): a(f"ds_read_b32 v{QQ+p}, v{vT+1} offset:{512*p}")
            a("s_waitcnt lgkmcnt(0)")
            for p in range(4): a(f"v_add_f32 v{QQ+p}, v{QQ+p}, v{QQ+4+p}")
            a(f"v_add_f32 v{QQ}, v{QQ}, v{QQ+2}")
            a(f"v_add_f32 v{QQ+1}, v{QQ+1}, v{QQ+3}")
            a(f"v_add_f32 v{QQ}, v{QQ}, v{QQ+1}")
            a(f"ds_write_b32 v{vT}, v{QQ}")
            npre = win[6].index("put") + 1 if "put" in win[6] else 2
            pre = tok_ops(win[6][:npre])
            for o in pre: o()
            a("s_waitcnt lgkmcnt(0)")
            a("s_barrier")
            a("s_setprio 0")
            run_tokens(win[6][npre:])
            continue
        segs = [[None, []]]
        for t in win.get(s, []):
            if t.startswith("cs"): segs.append([int(t[2:]), []])
            else: segs[-1][1].append(t)
        for cs, toks in segs:
            fl = []
            if cs is not None:
                vm.wait(('st', cs))
                colsum_reads(cs)
                fl = colsum_ops()
            if cs == 6:
                b = ACC
                for k in range(8): fl.append(f"v_permlane32_swap_b32 v{CA+k}, v{CA+8+k}")
                fl.append(f"v_add_f32_dpp v{b}, v{b}, v{b} quad_perm:[1,0,3,2] row_mask:0xf bank_mask:0xf")
                for k in range(8): fl.append(f"v_add_f32 v{CA+k}, v{CA+k}, v{CA+8+k}")
                fl.append(f"v_add_f32_dpp v{b}, v{b}, v{b} quad_perm:[2,3,0,1] row_mask:0xf bank_mask:0xf")
                for k in range(8): fl.append(f"v_add_f32_dpp v{CA+k}, v{CA+k}, v{CA+k} row_ror:8 row_mask:0xf bank_mask:0xf")
                fl.append(f"v_add_f32_dpp v{b}, v{b}, v{b} row_half_mirror row_mask:0xf bank_mask:0xf")
                fl.append(f"ds_write_b128 v{vC}, v[{CA}:{CA+3}]")
                fl.append(f"ds_write_b128 v{vC}, v[{CA+4}:{CA+7}] offset:16")
                fl.append(f"ds_write_b32 v{vA}, v{b}")
            ops = tok_ops(toks)
            per = max(1, -(-len(fl) // max(1, len(ops))))
            interleave(a, ops, fl, per)
        if s == 5:
            a(f"s_and_b32 s12, s{S_W4}, 1")
            a("s_lshl_b32 s12, s12, 8")
            a(f"v_lshl_add_u32 v{vT}, v0, 2, s12")
            a(f"v_add_u32 v{vT+1}, {CP_L}, v{vT}")
            a(f"v_add_u32 v{vT}, {C_L}, v{vT}")
            a("s_waitcnt lgkmcnt(0)")
            a("s_setprio 3")
    ts.x(2, 8)
    a("s_barrier")
    ts(3)
    ts.x(3, 8)
    a(f"v_add_u32 v{vT+2}, {SD}, v{vPQ}")
    vm.wait(('w', 11), "lgkmcnt(0)")
    a("s_barrier")
    X, Y, ST = 32, 48, CF
    HR, HI, T1, T2, CBR, CBI, G0, G1, QR, QI = 20, 21, 22, 23, 24, 25, 26, 28, 30, 31
    for k in range(8): a(f"ds_read_b128 v[{X+4*k}:{X+4*k+3}], v{vT+2} offset:{1024*k}")
    a(f"ds_read_b32 v{CBR}, v{vCB}")
    a(f"ds_read_b32 v{CBI}, v{vCB} offset:64")
    for k in range(8): a(f"ds_read_b128 v[{ST+4*k}:{ST+4*k+3}], v{vStS} offset:{16*k}")
    a(f"s_setprio {cfg.eprio}")
    a(f"v_lshrrev_b32 v1, 4, v0")
    a(f"v_sub_u32 v1, s{S_MT}, v1")
    a(f"v_cmp_le_i32 s[56:57], 1, v1")
    a(f"v_cmp_le_i32 s[58:59], 5, v1")
    a(f"v_lshlrev_b32 v5, 16, v{KP+23}")
    a(f"v_mov_b32 v3, v{vF}")
    vF = 3
    a("s_waitcnt lgkmcnt(10)")
    for r in range(16): a(f"v_permlane16_swap_b32 v{X+r}, v{Y+r}")
    a("s_waitcnt lgkmcnt(0)")
    side = {}
    for r in range(16):
        if r in side: side[r]()
        m, rs = ST + 2 * r, ST + 2 * r + 1
        a(f"v_fma_f32 v{X+r}, -v{m}, v{CBR}, v{X+r}")
        a(f"v_fma_f32 v{Y+r}, -v{m}, v{CBI}, v{Y+r}")
        a(f"v_mul_f32 v{X+r}, v{X+r}, v{rs}")
        a(f"v_mul_f32 v{Y+r}, v{Y+r}, v{rs}")
        if r >= 1:
            pr, pi = (X, Y) if r == 1 else (HR, HI)
            a(f"v_fma_f32 v{T1}, -v{LI}, v{pi}, v{X+r}")
            a(f"v_fma_f32 v{T2}, v{LI}, v{pr}, v{Y+r}")
            a(f"v_fma_f32 v{HR}, v{LR}, v{pr}, v{T1}")
            a(f"v_fma_f32 v{HI}, v{LR}, v{pi}, v{T2}")
    z = CF
    a(f"v_mov_b32 v{z}, v{HR}"); a(f"v_mov_b32 v{z+1}, v{HI}")
    csq(a, z + 8, z + 9, L16R, L16I, z + 10)
    a(f"v_permlane32_swap_b32 v{HR}, v{z}")
    a(f"v_permlane32_swap_b32 v{HI}, v{z+1}")
    a(f"v_fma_f32 v{z}, -v{L16I}, v{HI}, v{z}")
    a(f"v_fma_f32 v{z+1}, v{L16I}, v{HR}, v{z+1}")
    a(f"v_fmac_f32 v{z}, v{L16R}, v{HR}")
    a(f"v_fmac_f32 v{z+1}, v{L16R}, v{HI}")
    a(f"v_mov_b32 v{z+2}, v{z}"); a(f"v_mov_b32 v{z+3}, v{z+1}")
    a(f"s_lshl_b32 s11, s{S_W4}, 7")
    a(f"v_add_u32 v{z+5}, s11, v{vAg}")
    a(f"v_permlane16_swap_b32 v{z}, v{z+2}")
    a(f"v_permlane16_swap_b32 v{z+1}, v{z+3}")
    a(f"v_fma_f32 v{z+2}, -v{z+9}, v{z+1}, v{z+2}")
    a(f"v_fma_f32 v{z+3}, v{z+9}, v{z}, v{z+3}")
    a(f"v_fmac_f32 v{z+2}, v{z+8}, v{z}")
    a(f"v_fmac_f32 v{z+3}, v{z+8}, v{z+1}")
    a(f"ds_write_b64 v{z+5}, v[{z+2}:{z+3}]")
    a("s_waitcnt lgkmcnt(0)")
    ts.x(2, 9)
    a(f"s_setprio {cfg.lprio}")
    a("s_barrier")
    ts(4)
    E = CF + 16
    for i in range(4): a(f"ds_read_b64 v[{E+2+2*i}:{E+3+2*i}], v{vAg} offset:{128*i}")
    a(f"v_mov_b32 v{E}, 0")
    a(f"v_mov_b32 v{E+1}, 0")
    a(f"v_and_b32 v{z+4}, 16, v0")
    a(f"v_cmp_ne_u32 s[12:13], 0, v{z+4}")
    for i in range(1, 4):
        e, p = E + 2 + 2 * i, E + 2 * i
        a(f"s_waitcnt lgkmcnt({3 - i})")
        a(f"v_fma_f32 v{e}, -v{L64I}, v{p+1}, v{e}")
        a(f"v_fma_f32 v{e+1}, v{L64I}, v{p}, v{e+1}")
        a(f"v_fmac_f32 v{e}, v{L64R}, v{p}")
        a(f"v_fmac_f32 v{e+1}, v{L64R}, v{p+1}")
    a(f"s_cmp_lg_u32 s{S_W4}, 0")
    a("s_cbranch_scc1 L_l_nopub")
    e = E + 8
    a(f"v_cmp_eq_u32 vcc, -1, v{e}")
    a(f"v_mov_b32 v{T1}, 0x7fc00000")
    a(f"v_cndmask_b32 v{e}, v{e}, v{T1}, vcc")
    a("s_mov_b64 exec, 0xffff")
    a(f"buffer_store_dwordx2 v[{e}:{e+1}], v{vAg}, s[{SRD_WS}:{SRD_WS+3}], s22 offen sc1")
    a("s_mov_b64 exec, -1")
    ts(5)
    a.label("L_l_nopub")
    a(f"v_cmp_lt_u32 vcc, 31, v0")
    a(f"v_cndmask_b32 v{z}, 0, v{z}, s[12:13]")
    a(f"v_cndmask_b32 v{z+1}, 0, v{z+1}, s[12:13]")
    a(f"v_fma_f32 v{HR}, -v{L16I}, v{z+1}, v{HR}")
    a(f"v_fma_f32 v{HI}, v{L16I}, v{z}, v{HI}")
    a(f"v_fmac_f32 v{HR}, v{L16R}, v{z}")
    a(f"v_fmac_f32 v{HI}, v{L16R}, v{z+1}")
    a(f"v_cndmask_b32 v{z}, v{z}, v{HR}, vcc")
    a(f"v_cndmask_b32 v{z+1}, v{z+1}, v{HI}, vcc")
    cmul(a, HR, HI, z, z + 1, CR, CI)
    a(f"s_bitcmp1_b32 s{S_W4}, 0")
    a("s_cselect_b64 vcc, -1, 0")
    a(f"v_cndmask_b32 v{QR}, v{E}, v{E+2}, vcc")
    a(f"v_cndmask_b32 v{QI}, v{E+1}, v{E+3}, vcc")
    a(f"v_cndmask_b32 v{T1}, v{E+4}, v{E+6}, vcc")
    a(f"v_cndmask_b32 v{T2}, v{E+5}, v{E+7}, vcc")
    a(f"s_bitcmp1_b32 s{S_W4}, 1")
    a("s_cselect_b64 vcc, -1, 0")
    a(f"v_cndmask_b32 v{QR}, v{QR}, v{T1}, vcc")
    a(f"v_cndmask_b32 v{QI}, v{QI}, v{T2}, vcc")
    ts.x(2, 10)
    thr[0] = cfg.thr
    lds = [f"buffer_load_dwordx2 v[{G0}:{G0+1}], v{vPr}, s[{SRD_WS}:{SRD_WS+3}], s23 offen sc1",
           f"buffer_load_dwordx2 v[{G1}:{G1+1}], v{vPr}, s[{SRD_WS}:{SRD_WS+3}], s20 offen sc1"]
    up = Rec()
    for r in range(16):
        up(f"v_mul_f32 v{T1}, v{CI}, v{Y+r}")
        up(f"v_mul_f32 v{T2}, v{CI}, v{X+r}")
        up(f"v_fma_f32 v{X+r}, v{CR}, v{X+r}, -v{T1}")
        up(f"v_fma_f32 v{Y+r}, v{CR}, v{Y+r}, v{T2}")
    vRd, vOne = 4, 2
    a(f"s_lshl_b32 s11, s{S_W4}, 2")
    a(f"s_add_u32 s11, s11, {CNT_L + 16}")
    a(f"v_mov_b32 v{vRd}, s11")
    a(f"v_mov_b32 v{vOne}, 1")
    thr[0] = None
    co = w_ops(range(22, 28)) + (c_ops(0) if cfg.c0early else [])
    interleave(a, co[:cfg.c1], up.L, 4)
    if cfg.agpos == 0:
        for t in lds: vm.issue('ag', t)
    w_write([12, 13, 14, 15])
    a(f"ds_write_b32 v{vRd}, v{vOne}")
    XV, STT, DS = 64, 80, 5
    TT = SACC + 32
    vHW = 1
    a(f"v_add_u32 v{vHW}, {HTS}, v{vPQ}")
    a(f"ds_write_b128 v{vHW}, v[{XRAW}:{XRAW+3}]")
    a(f"ds_write_b128 v{vHW}, v[{XRAW+4}:{XRAW+7}] offset:1024")
    a(f"v_lshrrev_b32 v{vT+3}, 5, v0")
    a(f"v_lshlrev_b32 v{vT+2}, 10, v{vT+3}")
    a(f"v_and_b32 v{vT}, 31, v0")
    a(f"v_lshl_add_u32 v{vT+2}, v{vT}, 1, v{vT+2}")
    a(f"s_add_u32 s11, s{sMP}, {HTS}")
    a(f"v_add_u32 v{vT+2}, s11, v{vT+2}")
    for r in range(16): a(f"ds_read_u16 v{XV+r}, v{vT+2} offset:{64*r}")
    if cfg.agpos == 1:
        for t in lds: vm.issue('ag', t)
    w_write([16, 17])
    def wrest():
        w_write([18, 19])
        w_write([20, 21])
        a(f"v_mov_b32 v{T1}, 2")
        a(f"ds_write_b32 v{vRd}, v{T1}")
    if not cfg.wl: wrest()
    co = co[cfg.c1:]
    ts(8)
    vm.wait('ag')
    def cond():
        a(f"v_cmp_eq_u32 vcc, -1, v{G0}")
        a("s_and_b64 s[48:49], vcc, s[56:57]")
        a(f"v_cmp_eq_u32 vcc, -1, v{G1}")
        a("s_and_b64 s[50:51], vcc, s[58:59]")
        a("s_or_b64 s[48:49], s[48:49], s[50:51]")
        a("s_cmp_eq_u64 s[48:49], 0")
    spin_check(a, "L_agg", lds, cond, 2)
    ts(6)
    SR, SI = CBR, CBI
    cmul(a, SR, SI, G0, G0 + 1, W0R, W0R + 1)
    cmul(a, T1, T2, G1, G1 + 1, W0R + 2, W0R + 3)
    a(f"v_cndmask_b32 v{SR}, 0, v{SR}, s[56:57]")
    a(f"v_cndmask_b32 v{SI}, 0, v{SI}, s[56:57]")
    a(f"v_cndmask_b32 v{T1}, 0, v{T1}, s[58:59]")
    a(f"v_cndmask_b32 v{T2}, 0, v{T2}, s[58:59]")
    a(f"v_add_f32 v{SR}, v{SR}, v{T1}")
    a(f"v_add_f32 v{SI}, v{SI}, v{T2}")
    for sw in ("v_permlane32_swap_b32", "v_permlane16_swap_b32"):
        a(f"v_mov_b32 v{T1}, v{SR}")
        a(f"v_mov_b32 v{T2}, v{SI}")
        a(f"{sw} v{SR}, v{T1}")
        a(f"{sw} v{SI}, v{T2}")
        a(f"v_add_f32 v{SR}, v{SR}, v{T1}")
        a(f"v_add_f32 v{SI}, v{SI}, v{T2}")
    a(f"v_fmac_f32 v{QR}, v{LWR}, v{SR}")
    a(f"v_fmac_f32 v{QI}, v{LWR}, v{SI}")
    a(f"v_fma_f32 v{QR}, -v{LWI}, v{SI}, v{QR}")
    a(f"v_fmac_f32 v{QI}, v{LWI}, v{SR}")
    a(f"v_fmac_f32 v{HR}, v{PWR}, v{QR}")
    a(f"v_fmac_f32 v{HI}, v{PWR}, v{QI}")
    a(f"v_fma_f32 v{HR}, -v{PWI}, v{QI}, v{HR}")
    a(f"v_fmac_f32 v{HI}, v{PWI}, v{QR}")
    pr, pi = HR, HI
    PK, HF = 96, 80
    rest = co[:cfg.c2]
    for r in range(16):
        if rest: rest.pop(0)()
        a(f"v_fma_f32 v{X+r}, -v{LI}, v{pi}, v{X+r}")
        a(f"v_fma_f32 v{Y+r}, v{LI}, v{pr}, v{Y+r}")
        a(f"v_fmac_f32 v{X+r}, v{LR}, v{pr}")
        a(f"v_fmac_f32 v{Y+r}, v{LR}, v{pi}")
        pr, pi = X + r, Y + r
    for k in range(8):
        a(f"v_cvt_pk_bf16_f32 v{PK+k}, v{X+2*k}, v{X+2*k+1}")
    a(f"ds_write_b128 v{vTW}, v[{PK}:{PK+3}]")
    a(f"ds_write_b128 v{vTW}, v[{PK+4}:{PK+7}] offset:16")
    for k in range(8):
        a(f"v_cvt_pk_bf16_f32 v{PK+8+k}, -v{Y+2*k}, -v{Y+2*k+1}")
    a(f"ds_write_b128 v{vTW}, v[{PK+8}:{PK+11}] offset:2048")
    a(f"ds_write_b128 v{vTW}, v[{PK+12}:{PK+15}] offset:2064")
    for q in range(2):
        for part in range(2):
            for j in range(2):
                d = HF + 8 * q + 4 * part + 2 * j
                a(f"ds_read_b64_tr_b16 v[{d}:{d+1}], v{vTR} offset:{(part*16 + 4*j)*128 + 64*(q ^ j)}")
    assert not rest
    a("s_waitcnt lgkmcnt(0)")
    for q in range(2):
        for part in range(2):
            d = HF + 8 * q + 4 * part
            a(f"s_add_u32 s11, s19, {q*RT_BYTES + part*HALF_BYTES}")
            vm.issue('hs', f"buffer_store_dwordx4 v[{d}:{d+3}], v{vP}, s[{SRD_WS}:{SRD_WS+3}], s11 offen{SP}")
    if cfg.wl: wrest()
    def flag2():
        vm.wait('hs')
        a("s_mov_b64 exec, 1")
        vm.issue('f', f"buffer_store_dword v{vOne}, v{vF}, s[{SRD_WS}:{SRD_WS+3}], 0 offen sc1")
        a("s_mov_b64 exec, -1")
        ts(7)
    if cfg.f2b == 0: flag2()
    for o in co[cfg.c2:] + (c_ops(2) if not cfg.clate else []): o()
    if cfg.f2b == 1: flag2()
    a(f"s_and_b32 s11, s{S_W4}, 1")
    a("s_lshl_b32 s11, s11, 8")
    a(f"s_add_u32 s11, s11, {ST2_L}")
    a(f"v_lshl_add_u32 v{vT+3}, v{vT+3}, 7, s11")
    STT = 32
    for k in range(8): a(f"ds_read_b128 v[{STT+4*k}:{STT+4*k+3}], v{vT+3} offset:{16*k}")
    for r in range(16): a(f"v_lshlrev_b32 v{XV+r}, 16, v{XV+r}")
    a("s_waitcnt lgkmcnt(0)")
    a("s_setprio 0")
    def rnd_pair(r0, r1):
        a(f"v_cvt_pk_bf16_f32 v{r1}, v{r0}, v{r1}"); a(f"v_lshlrev_b32 v{r0}, 16, v{r1}"); a(f"v_and_b32 v{r1}, s71, v{r1}")
    for r in range(16): a(f"v_sub_f32 v{TT+r}, v{XV+r}, v{STT+2*r}")
    for k in range(8): rnd_pair(TT + 2 * k, TT + 2 * k + 1)
    a(f"v_mov_b32 v{T2}, 3")
    vm.wait(('w', 27))
    a(f"ds_write_b32 v{vRd}, v{T2}")
    for r in range(16): a(f"v_mul_f32 v{TT+r}, v{TT+r}, v{STT+2*r+1}")
    for k in range(8): rnd_pair(TT + 2 * k, TT + 2 * k + 1)
    for r in range(16): a(f"v_mul_f32 v{TT+r}, v{TT+r}, v{DS}")
    for k in range(8): rnd_pair(TT + 2 * k, TT + 2 * k + 1)
    def poll(name, off):
        sspin(a, name, [f"s_load_dwordx16 s[20:35], s[{P_WS}:{P_WS+1}], s18 glc"], pcond, cfg.psleep)
    if True:
        def pcond():
            for k in range(0, 12, 4): a(f"s_and_b64 s[{20+k}:{21+k}], s[{20+k}:{21+k}], s[{22+k}:{23+k}]")
            a("s_and_b64 s[20:21], s[20:21], s[24:25]")
            a("s_and_b64 s[28:29], s[28:29], s[32:33]")
            a("s_and_b64 s[20:21], s[20:21], s[28:29]")
            a("s_and_b32 s20, s20, s21")
            a("s_cmp_eq_u32 s20, 1")
    a(f"s_mul_i32 s57, s40, {RT_BYTES}")
    a("s_xor_b32 s11, s40, 1")
    a(f"s_mul_i32 s56, s11, {RT_BYTES}")
    a(f"s_lshr_b32 s11, s{S_W4}, 1")
    a(f"s_mul_i32 s11, s11, {HALF_BYTES}")
    a(f"s_add_u32 s11, s11, {56*1024}")
    a("s_add_u32 s56, s56, s11")
    a("s_add_u32 s57, s57, s11")
    a(f"s_and_b32 s12, s{S_W4}, 1")
    a("s_lshl_b32 s13, s12, 14")
    for b in range(3):
        if cfg.crot:
            a(f"s_sub_u32 s11, s{sCB[b]}, s{sCF}")
            a("s_lshr_b32 s11, s11, 1")
            a(f"s_add_u32 s{52+b}, s13, s11")
        else: a(f"s_add_u32 s{52+b}, s13, {b*4096}")
    a("s_lshl_b32 s12, s12, 11")
    a(f"s_add_u32 s55, s12, {12*1024}")
    srd(a, 60, P_OUT, 2048 * 1792)
    vW1, vW2, vCn, vCv = 1, 2, 9, 4
    vR = [3, 12, 13, 14]
    a(f"v_add_u32 v{vW1}, {PH1}, v{vPQ}")
    a(f"v_add_u32 v{vW2}, {PH2}, v{vPQ}")
    a(f"v_mov_b32 v{vCn}, {CNT_L}")
    for (reg, xr, base) in ((vR[0], 1, PH1), (vR[1], 3, PH1 + 4096), (vR[2], 2, PH2)):
        a(f"s_xor_b32 s11, s{S_W4}, {xr}")
        a(f"s_mul_i32 s11, s11, {Q}")
        a(f"s_add_u32 s11, s11, {base}")
        a(f"v_add_u32 v{reg}, s11, v{vP}")
    a(f"v_add_u32 v{vR[3]}, {GA}, v{vPQ}")
    ts.x(2, 11)
    ts.x(7, 11)
    AR = list(range(16, 64, 4))
    NA = len(AR)
    PO = [4, 5, 6, 7, 12, 13, 0, 1, 2, 3, 8, 9, 10, 11]
    def aload(n):
        lr, p = n // 14, PO[n % 14]
        if p % 4 == 0: a(f"s_add_u32 s58, s{56+lr}, s{52 + p//4}")
        d = AR[n % NA]
        vm.issue(('a', n), f"buffer_load_dwordx4 v[{d}:{d+3}], v{vP}, s[{SRD_WS}:{SRD_WS+3}], s58 offen offset:{(p%4)*1024}{AP}")
    def cnt_wait(name, off):
        a("s_mov_b32 s73, 0")
        a.label(name)
        a("s_waitcnt lgkmcnt(0)")
        a(f"v_readfirstlane_b32 s11, v{vCv}")
        a("s_cmp_ge_u32 s11, 4")
        a(f"s_cbranch_scc1 {name}ok")
        a("s_add_u32 s73, s73, 1")
        a(f"s_cmp_ge_u32 s73, {SPIN_MAX}")
        a(f"s_cbranch_scc1 {name}ok")
        a("s_sleep 1")
        a(f"ds_read_b32 v{vCv}, v{vCn} offset:{off}")
        a(f"s_branch {name}")
        a.label(name + "ok")
        a("s_nop 7")
    assert cfg.clate == 2 and cdone == {1, 3}
    if cfg.gate == 0: poll("L_ps", 128)
    if cfg.gate < 2:
        a(f"ds_read_b32 v{vCv}, v{vCn} offset:4")
        cnt_wait("L_l_c0", 4)
    if cfg.sprio: a(f"s_setprio {cfg.sprio}")
    cc = c_ops(0) + c_ops(2)
    for o in cc[:cfg.c0n]: o()
    if cfg.gate != 0: poll("L_ps", 128)
    ts(9)
    ts.x(7, 1)
    seq = [(lambda n=n: aload(n)) for n in range(6)] + cc[cfg.c0n:8] + [(lambda n=n: aload(n)) for n in range(6, 10)] + cc[max(8, cfg.c0n):] + [(lambda n=n: aload(n)) for n in range(10, NA)]
    npre = cfg.ramp if cfg.ramp else len(seq)
    for o in seq[:npre]: o()
    seq = seq[npre:]
    a("s_setprio 0")
    ts.x(7, 2)
    own = []
    assert cfg.dfr <= NA
    for n in range(28):
        lr, p = n // 14, PO[n % 14]
        assert ('a', n) in vm.q
        vm.wait(('a', n))
        assert ('c', min(p // 4, 3)) not in vm.q
        if n in (0, 7, 14, 21): ts.x(7, 3 + n // 7)
        d = AR[n % NA]
        for lc in (1, 0):
            acc = SACC + 32 * lr + 16 * lc
            c = "0" if (n % 14 == 0 and not (lr == 1 and lc == 0)) else f"v[{acc}:{acc+15}]"
            f = cfrag(p, lc)
            m = f"v_mfma_f32_32x32x16_bf16 v[{acc}:{acc+15}], v[{d}:{d+3}], v[{f}:{f+3}], {c}"
            if lc == 0 and n >= 28 - cfg.dfr: own.append(m)
            else: a(m)
        if n + NA < 28: seq.append(lambda n=n: aload(n + NA))
        for _ in range(3):
            if seq: seq.pop(0)()
        if cfg.gate == 2 and n == 14: a(f"ds_read_b32 v{vCv}, v{vCn} offset:4")
        if cfg.gate == 2 and n == 15: cnt_wait("L_l_c0", 4)
        if 16 <= n < 24:
            k = n - 16
            a(f"ds_write_b128 v{vW1}, v[{SACC+4*k}:{SACC+4*k+3}] offset:{1024*k}")
    ts.x(7, 7)
    def ownm(n=1):
        for _ in range(n):
            if own: a(own.pop(0))
    ownm(1)
    for k in range(4):
        if k < cfg.dfb - 1: ownm(1)
        a(f"ds_write_b128 v{vW2}, v[{SACC+48+4*k}:{SACC+48+4*k+3}] offset:{1024*k}")
    ownm(max(0, cfg.dfb - 5))
    a("s_waitcnt lgkmcnt(0)")
    ts.x(7, 9)
    a("s_barrier")
    ts(11)
    ts.x(7, 10)
    def rx(w, r):
        return (SACC + r, SACC + 16 + r, SACC + 48 + r, cfrag(r // 4, 1) + r % 4)[w]
    for k in range(4):
        for w in range(4):
            a(f"ds_read_b128 v[{rx(w,4*k)}:{rx(w,4*k)+3}], v{vR[w]} offset:{1024*k}")
        ownm(1)
    for k in range(4):
        a(f"s_waitcnt lgkmcnt({12 - 4*k})")
        rr = range(4 * k, 4 * k + 4)
        for r in rr: a(f"v_add_f32 v{rx(0,r)}, v{rx(0,r)}, v{rx(1,r)}")
        ownm(1)
        for r in rr: a(f"v_add_f32 v{rx(0,r)}, v{rx(0,r)}, v{rx(2,r)}")
        ownm(1)
        for r in rr: a(f"v_fmac_f32 v{XV+r}, v{rx(0,r)}, v{rx(3,r)}")
    ownm(100)
    ts(10)
    for r in range(16):
        a(f"v_fmac_f32 v{XV+r}, v{TT+r}, v{rx(3,r)}")
        if r % 2 == 0: a(f"s_mov_b32 s11, {r*1792}")
        a(f"buffer_store_dword v{XV+r}, v{vO}, s[60:63], s11 offen offset:{(r%2)*1792}{OP}")
    if cfg.ts:
        a("s_waitcnt vmcnt(0)")
        ts(12)
    if cfg.padto:
        a.label("L_pad")
        a("s_memrealtime s[98:99]")
        a("s_waitcnt lgkmcnt(0)")
        a("s_sub_u32 s98, s98, s100")
        a(f"s_cmp_lt_u32 s98, {cfg.padto}")
        a("s_cbranch_scc1 L_pad")
    ts.dump(16, 17, 1)
    a("s_endpgm")

def gen_consumer(a, cfg, ts):
    if cfg.al >= 2: a.raw(".p2align 12")
    a.label("L_consumer")
    SP = ["", " sc1"][cfg.spol]
    AP = ['', ' sc1', ' sc1 nt', ' sc0 sc1', ' sc0', ' nt'][cfg.apol]
    vm = VM(a)
    XA = [1, 2, 3, 4]; BA = [5, 6, 7, 8]; WA = [9, 10]
    vL16, vStF, vCL, vF, vFl, vSo, vCn, vRd, vWB, vPQ, vOne, MM = 11, 12, 13, 14, 15, 16, 17, 18, 19, 20, 21, 22
    FS = [40, 68]
    ACC = 96
    def G(ft, q): return ACC + 16 * (2 * ft + q)
    def U(ft, q): return ACC + 64 + 16 * (2 * ft + q)
    def S(q): return ACC + 128 + 16 * q
    vI, vH, t0, t1, t2 = 24, 25, 26, 27, 28
    a(f"v_and_b32 v{vI}, 31, v0")
    a(f"v_lshrrev_b32 v{vH}, 5, v0")
    a(f"v_bfe_u32 v{t0}, v0, 1, 3")
    a(f"v_xor_b32 v{t0}, v{t0}, v{vH}")
    a(f"v_lshlrev_b32 v{t0}, 4, v{t0}")
    a(f"v_lshl_add_u32 v{t0}, v{vI}, 7, v{t0}")
    a(f"s_lshl_b32 s11, s{S_W4}, 13")
    for ks in range(4):
        a(f"v_xor_b32 v{t1}, {32*ks}, v{t0}")
        a(f"v_add_u32 v{XA[ks]}, s11, v{t1}")
        a(f"v_add_u32 v{BA[ks]}, {OFF_BB}, v{t1}")
    a(f"v_bfe_u32 v{t0}, v0, 2, 2")
    a(f"v_lshlrev_b32 v{t1}, 7, v{t0}")
    a(f"v_lshrrev_b32 v{t0}, 1, v{t0}")
    a(f"v_lshl_add_u32 v{t1}, v{t0}, 6, v{t1}")
    a(f"v_bfe_u32 v{t0}, v0, 4, 1")
    a(f"v_lshl_add_u32 v{t1}, v{t0}, 5, v{t1}")
    a(f"v_and_b32 v{t2}, 3, v0")
    a(f"v_lshl_add_u32 v{t1}, v{t2}, 3, v{t1}")
    a(f"v_lshl_add_u32 v{WA[0]}, v{vH}, 10, v{t1}")
    a(f"v_add_u32 v{WA[0]}, {OFF_WG}, v{WA[0]}")
    a(f"v_xor_b32 v{WA[1]}, 64, v{WA[0]}")
    a(f"s_mul_i32 s62, s{S_W4}, {Q}")
    a(f"s_lshr_b32 s59, s{S_W4}, 1")
    a(f"s_and_b32 s63, s{S_W4}, 1")
    a("s_lshl_b32 s11, s59, 6")
    a(f"v_lshl_add_u32 v{vWB}, v{vH}, 9, v{t1}")
    a(f"v_xor_b32 v{vWB}, s11, v{vWB}")
    a(f"v_add_u32 v{vWB}, s62, v{vWB}")
    a("s_waitcnt lgkmcnt(0)")
    a(f"s_lshl_b32 s11, s{S_NS}, 5")
    a(f"s_load_dwordx8 s[32:39], s[{P_LRE}:{P_LRE+1}], s11")
    a(f"s_load_dwordx8 s[64:71], s[{P_LDT}:{P_LDT+1}], s11")
    a(f"s_load_dwordx8 s[24:31], s[{P_LIM}:{P_LIM+1}], s11")
    for k in range(4 if cfg.zpeel else 160): a(f"v_mov_b32 v{ACC+k}, 0")
    a(f"v_mov_b32 v{vCn}, {CNT_L}")
    a(f"ds_write_b128 v{vCn}, v[{ACC}:{ACC+3}]")
    a(f"ds_write_b128 v{vCn}, v[{ACC}:{ACC+3}] offset:16")
    a(f"v_bfe_u32 v{t0}, v0, 2, 1")
    a(f"v_lshl_add_u32 v{t0}, v{t0}, 4, v{t2}")
    a(f"v_bfe_u32 v{t1}, v0, 3, 2")
    a(f"v_lshl_add_u32 v{t0}, v{t1}, 2, v{t0}")
    a(f"s_lshl_b32 s11, s{S_W4}, 9")
    a(f"s_add_u32 s11, s11, {STATS_L}")
    a(f"v_lshl_add_u32 v{vStF}, v{t0}, 3, s11")
    a(f"v_lshlrev_b32 v{vL16}, 4, v0")
    a(f"v_add_u32 v{vPQ}, s62, v{vL16}")
    a(f"v_lshlrev_b32 v{vCL}, 4, v{vH}")
    a(f"v_add_u32 v{vCL}, {C_L}, v{vCL}")
    a(f"v_mov_b32 v{vOne}, 1")
    a(f"s_lshl_b32 s11, s{S_W4}, 2")
    a(f"s_add_u32 s11, s11, {CNT_L + 16}")
    a(f"v_mov_b32 v{vRd}, s11")
    a("s_lshl_b32 s11, s63, 8")
    a(f"s_add_u32 s11, s11, {ST2_L}")
    a(f"v_lshl_add_u32 v{vSo}, v{vH}, 7, s11")
    a(f"s_lshl_b32 s13, s{S_MT}, 2")
    a(f"s_add_u32 s13, s13, s{S_W4}")
    a(f"s_mul_i32 s56, s13, {2*RT_BYTES}")
    a(f"s_cmp_ge_u32 s{S_NS}, 14")
    a(f"s_cselect_b32 s11, {HALF_BYTES - 56*1024}, 0")
    a(f"s_lshl_b32 s12, s{S_NS}, 12")
    a("s_add_u32 s11, s11, s12")
    a("s_add_u32 s56, s56, s11")
    a(f"s_add_u32 s57, s56, {RT_BYTES}")
    a("s_lshl_b32 s11, s13, 10")
    flag_index(a, 12, 14, 7)
    a("s_add_u32 s11, s11, s12")
    a(f"s_add_u32 s11, s11, {WS_FLAG:#x}")
    a(f"v_mov_b32 v{vF}, s11")
    a(f"s_lshl_b32 s55, s{S_M64}, 10")
    a(f"s_add_u32 s55, s55, {WS_FLAG:#x}")
    a(f"s_lshl_b32 s11, s{S_W4}, 7")
    a("s_add_u32 s55, s55, s11")
    a(f"s_mul_i32 s12, s59, {HALF_BYTES}")
    a(f"s_mul_i32 s13, s63, {28*1024}")
    a("s_add_u32 s12, s12, s13")
    a(f"s_lshl_b32 s11, s{S_M64}, 1")
    a("s_add_u32 s11, s11, s63")
    a(f"s_mul_i32 s52, s11, {RT_BYTES}")
    a("s_add_u32 s52, s52, s12")
    a("s_xor_b32 s11, s11, 1")
    a(f"s_mul_i32 s51, s11, {RT_BYTES}")
    a("s_add_u32 s51, s51, s12")
    p2_rot(a, cfg, 60, 61, 58)
    a("s_mov_b32 s12, 0x00030003")
    a("s_mov_b32 s13, 0x00030003")
    a("s_waitcnt lgkmcnt(0)")
    K, KP = 40, 64
    for k in range(8):
        a(f"s_lshl_b64 exec, s[12:13], {2*k}")
        for m, sb in enumerate((32, 24, 64)): a(f"v_mov_b32 v{K+m}, s{sb+k}")
    a("s_mov_b64 exec, -1")
    a(f"v_and_b32 v{K+3}, 1, v0")
    a(f"v_lshlrev_b32 v{K+3}, 4, v{K+3}")
    for m in range(3): a(f"v_lshrrev_b32 v{K+m}, v{K+3}, v{K+m}")
    srd(a, SRD_WS, P_WS, WS_SIZE)
    ssm_park(a, K, KP, 62)
    a(f"v_mov_b32 v{KP+23}, 0")
    a(f"s_lshl_b32 s11, s{S_W4}, 13")
    a(f"s_add_u32 s11, s11, {R[2]}")
    a(f"v_add_u32 v{K}, s11, v{vL16}")
    for k in range(6): a(f"ds_write_b128 v{K}, v[{KP+4*k}:{KP+4*k+3}] offset:{1024*k}")
    a("s_waitcnt lgkmcnt(0)")
    ts(1)

    def reads(fs, ks):
        f = FS[fs]
        L = []
        L.append(f"ds_read_b128 v[{f}:{f+3}], v{XA[ks]}")
        L.append(f"ds_read_b128 v[{f+24}:{f+27}], v{BA[ks]}")
        L.append(f"ds_read_b128 v[{f+4}:{f+7}], v{XA[ks]} offset:4096")
        for gu in range(2):
            for ft in range(2):
                for j in range(2):
                    d = f + 8 + 8 * gu + 4 * ft + 2 * j
                    L.append(f"ds_read_b64_tr_b16 v[{d}:{d+1}], v{WA[ft]} offset:{gu*8192 + ks*2048 + j*512}")
        return L
    def mfmas(fs):
        f = FS[fs]
        X = [f, f + 4]; Bf = f + 24
        L = []
        for q in range(2):
            L.append(f"v_mfma_f32_32x32x16_bf16 v[{S(q)}:{S(q)+15}], v[{X[q]}:{X[q]+3}], v[{Bf}:{Bf+3}], v[{S(q)}:{S(q)+15}]")
        for gu in range(2):
            for ft in range(2):
                w = f + 8 + 8 * gu + 4 * ft
                for q in range(2):
                    d = (G, U)[gu](ft, q)
                    L.append(f"v_mfma_f32_32x32x16_bf16 v[{d}:{d+15}], v[{w}:{w+3}], v[{X[q]}:{X[q]+3}], v[{d}:{d+15}]")
        return L
    a("s_setprio 2")
    a("s_mov_b32 s72, 0")
    a("s_mov_b32 s74, 0")
    a("s_barrier")
    ts(2)
    for t in reads(0, 0): a(t)
    need = {0: 9, 1: 8, 2: 6, 4: 4, 6: 2, 8: 0}
    if cfg.zpeel:
        Rd = reads(1, 1)
        issued = 0
        for i, m in enumerate(mfmas(0)):
            if i in need: a(f"s_waitcnt lgkmcnt({min(15, need[i] + issued)})")
            a(m[:m.rindex(", v[")] + ", 0")
            for _ in range(2 if i >= cfg.rdstart else 0):
                if Rd: a(Rd.pop(0)); issued += 1
        a("s_branch L_c_k1")
    a.label("L_c_loop")
    for ks in range(4):
        if ks == 1: a.label("L_c_k1")
        fs = ks & 1
        M = mfmas(fs)
        if ks < 3:
            Rd = reads(1 - fs, ks + 1)
            issued = 0
            for i, m in enumerate(M):
                if i in need: a(f"s_waitcnt lgkmcnt({min(15, need[i] + issued)})")
                a(m)
                for _ in range(2 if i >= cfg.rdstart else 0):
                    if Rd: a(Rd.pop(0)); issued += 1
        else:
            Rd = reads(1 - fs, 0)
            a("s_waitcnt lgkmcnt(9)")
            a(M[0])
            a("s_add_u32 s74, s74, 1")
            a("s_cmp_eq_u32 s74, 3")
            a("s_mov_b32 s75, 53248")
            a(f"s_cmov_b32 s75, {(-106496) & 0xffffffff:#x}")
            a("s_cselect_b32 s74, 0, s74")
            for v in XA + BA[:1]: a(f"v_add_u32 v{v}, s75, v{v}")
            a("s_waitcnt lgkmcnt(8)")
            a(M[1])
            for v in BA[1:] + WA: a(f"v_add_u32 v{v}, s75, v{v}")
            a("s_add_u32 s72, s72, 1")
            a("s_cmp_eq_u32 s72, 6")
            a("s_waitcnt lgkmcnt(0)")
            a(M[2])
            a("s_barrier")
            hist = list(a.hist)
            a("s_cbranch_scc1 L_c_last")
            for m in M[3:]:
                for _ in range(2):
                    if Rd: a(Rd.pop(0))
                a(m)
            a("s_branch L_c_loop")
            a.label("L_c_last")
            a.hist = hist
            Mtail = M[3:]
    lq = []
    def ds_issue(tag, t):
        a(t)
        if t.startswith("ds_"): lq.append(tag)
    def ds_wait(tag):
        idx = max((i for i, t in enumerate(lq) if t == tag), default=None)
        if idx is None: return None
        n = len(lq) - 1 - idx
        del lq[:idx + 1]
        return f"lgkmcnt({min(n, 15)})"
    def dwait(tag):
        w = ds_wait(tag)
        if w: a(f"s_waitcnt {w}")
    UB = [24, 40, 56]
    def ureads(u):
        b, ks = UB[u % 3], u % 4
        L = [f"ds_read_b128 v[{b}:{b+3}], v{XA[ks]}"]
        if u < 8:
            ft = u // 4
            for gu in range(2):
                for j in range(2):
                    d = b + 8 + 4 * gu + 2 * j
                    L.append(f"ds_read_b64_tr_b16 v[{d}:{d+1}], v{WA[ft]} offset:{gu*8192 + ks*2048 + j*512}")
        else:
            L.append(f"ds_read_b128 v[{b+8}:{b+11}], v{BA[ks]}")
        L.append(f"ds_read_b128 v[{b+4}:{b+7}], v{XA[ks]} offset:4096")
        return [(u, t) for t in L]
    def umfma(u):
        b = UB[u % 3]
        L = []
        for q in range(2):
            x = b + 4 * q
            if u < 8:
                for gu in range(2):
                    d = (G, U)[gu](u // 4, q); w = b + 8 + 4 * gu
                    L.append(f"v_mfma_f32_32x32x16_bf16 v[{d}:{d+15}], v[{w}:{w+3}], v[{x}:{x+3}], v[{d}:{d+15}]")
            else:
                L.append(f"v_mfma_f32_32x32x16_bf16 v[{S(q)}:{S(q)+15}], v[{x}:{x+3}], v[{b+8}:{b+11}], v[{S(q)}:{S(q)+15}]")
        return L
    Rd = ureads(0) + ureads(1)
    for m in Mtail:
        for _ in range(2):
            if Rd: ds_issue(*Rd.pop(0))
        a(m)
    CH = 72
    def chalf(p):
        for gu in range(2):
            for k in range(2):
                ds_issue(('c', p), f"ds_read_b128 v[{CH+8*gu+4*k}:{CH+8*gu+4*k+3}], v{vCL} offset:{256*gu + 32*(2*p+k)}")
    def hstore(ft, q, p):
        g = G(ft, q)
        vm.issue('h', f"buffer_store_dwordx4 v[{g+4*p}:{g+4*p+3}], v{vL16}, s[{SRD_WS}:{SRD_WS+3}], s{56+q} offen offset:{(2*ft+p)*1024}{SP}")
    ep = [lambda: dwait(('c', 0)), f"v_xor_b32 v{MM}, 0x80000000, v{MM}", f"v_xor_b32 v{MM+1}, 0x80000000, v{MM+1}"]
    for p in range(2):
        if p: ep.append(lambda: dwait(('c', 1)))
        for q in range(2):
            g, u = G(0, q) + 8 * p, U(0, q) + 8 * p
            for k in range(8): ep.append(f"v_fmac_f32 v{g+k}, v{MM+q}, v{CH+k}")
            for k in range(8): ep.append(f"v_fmac_f32 v{u+k}, v{MM+q}, v{CH+8+k}")
            if q == 1 and p == 0: ep.append(lambda: chalf(1))
            for k in range(8): ep.append(f"v_max_f32 v{g+k}, 0, v{g+k}")
            for k in range(8): ep.append(f"v_mul_f32 v{u+k}, v{u+k}, v{g+k}")
            for k in range(4): ep.append(f"v_cvt_pk_bf16_f32 v{G(0,q)+4*p+k}, v{u+2*k}, v{u+2*k+1}")
            ep.append(lambda q=q, p=p: hstore(0, q, p))
    def fill(n):
        while n > 0 and ep:
            t = ep.pop(0)
            if callable(t): t()
            else: a(t)
            n -= 1
    def cread(tag, dst, off):
        for k in range(4): ds_issue(tag, f"ds_read_b128 v[{dst+4*k}:{dst+4*k+3}], v{vCL} offset:{off + 32*k}")
    for u in range(12):
        dwait(u)
        if u == 11:
            a("s_barrier")
        Rd = ureads(u + 2) if u + 2 < 12 else []
        for i, m in enumerate(umfma(u)):
            a(m)
            for _ in range(2):
                if Rd: ds_issue(*Rd.pop(0))
            if u > 4 or (u == 4 and i >= 1): fill(cfg.fper - 1 if u < 10 else cfg.fper)
        if u == cfg.c2u:
            a("s_barrier")
            ds_issue(('c', 0), f"ds_read_b32 v{MM}, v{vStF}")
            ds_issue(('c', 0), f"ds_read_b32 v{MM+1}, v{vStF} offset:256")
            chalf(0)
        if u == 9: cread('cg', UB[0], 128)
        if u == 10: cread('cu', UB[1], 384)
    ts(3)
    fill(1000)
    dump = [f"ds_write_b128 v{vPQ}, v[{S(0)+4*k}:{S(0)+4*k+3}] offset:{SD + 1024*k}" for k in range(8)]
    WB = {0: [1, 2], 1: [3, 4], 2: [5, 6]}
    for rg in range(3):
        a(f"v_add_u32 v{WB[rg][0]}, {R[rg]}, v{vWB}")
        a(f"v_xor_b32 v{WB[rg][1]}, 64, v{WB[rg][0]}")
    dwait('cu')
    cg, cu = UB[0], UB[1]
    for q in range(2):
        g, u = G(1, q), U(1, q)
        sel = f"op_sel:[{q},0,0] op_sel_hi:[{q},1,1]"
        for p in range(2):
            kr = range(4 * p, 4 * p + 4)
            for k in kr:
                a(f"v_pk_fma_f32 v[{g+2*k}:{g+2*k+1}], v[{MM}:{MM+1}], v[{cg+2*k}:{cg+2*k+1}], v[{g+2*k}:{g+2*k+1}] {sel}")
                if dump: a(dump.pop(0))
            for k in kr:
                a(f"v_pk_fma_f32 v[{u+2*k}:{u+2*k+1}], v[{MM}:{MM+1}], v[{cu+2*k}:{cu+2*k+1}], v[{u+2*k}:{u+2*k+1}] {sel}")
                a(f"v_max_f32 v{g+2*k}, 0, v{g+2*k}")
                a(f"v_max_f32 v{g+2*k+1}, 0, v{g+2*k+1}")
            for k in kr:
                a(f"v_pk_mul_f32 v[{u+2*k}:{u+2*k+1}], v[{u+2*k}:{u+2*k+1}], v[{g+2*k}:{g+2*k+1}]")
            for k in kr:
                a(f"v_cvt_pk_bf16_f32 v{g+k}, v{u+2*k}, v{u+2*k+1}")
            if q == 0 and p == 1:
                a("s_waitcnt lgkmcnt(0)")
                a("s_barrier")
            hstore(1, q, p)
    del lq[:]
    ts(4)
    BR, NB = 160, 12
    def breads(p):
        sl = WSLOT[p]
        rg = max(k for k in range(3) if R[k] <= sl)
        L = []
        for lc in range(2):
            for jj in range(2):
                d = BR + 8 * (p % NB) + 4 * lc + 2 * jj
                L.append(f"ds_read_b64_tr_b16 v[{d}:{d+1}], v{WB[rg][lc]} offset:{sl - R[rg] + jj*1024}")
        return L
    for p in range(NB):
        for t in breads(p): a(t)
    def flag1():
        vm.wait('h')
        a("s_setprio 3")
        a("s_mov_b64 exec, 1")
        vm.issue('f', f"buffer_store_dword v{vOne}, v{vF}, s[{SRD_WS}:{SRD_WS+3}], 0 offen sc1")
        a("s_mov_b64 exec, -1")
        ts(6)
    if cfg.fpre: flag1()
    a("s_waitcnt lgkmcnt(0)")
    a("s_barrier")
    ts(5)
    if not cfg.fpre: flag1()
    AF = 96
    AR = list(range(24, 96, 4))
    NA = len(AR)
    def aload(n):
        p, lr = n // 2, n % 2
        if n % 8 == 0:
            a(f"s_lshl_b32 s11, s60, 12")
            a(f"s_add_u32 s54, s11, s52")
            a(f"s_add_u32 s53, s11, s51")
            a(f"s_add_u32 s60, s60, 1")
            a(f"s_cmp_eq_u32 s60, 7")
            a(f"s_cselect_b32 s60, 0, s60")
        d = AR[n % NA]
        vm.issue(('a', n), f"buffer_load_dwordx4 v[{d}:{d+3}], v{vL16}, s[{SRD_WS}:{SRD_WS+3}], s{54 - lr} offen offset:{(p%4)*1024}{AP}")
    def cond():
        a("s_and_b64 s[16:17], s[16:17], s[18:19]")
        a("s_and_b64 s[16:17], s[16:17], s[20:21]")
        a("s_and_b32 s16, s16, s17")
        a("s_and_b32 s16, s16, s22")
        a("s_cmp_eq_u32 s16, 1")
    sspin(a, "L_pf", [f"s_load_dwordx8 s[16:23], s[{P_WS}:{P_WS+1}], s55 glc"], cond, cfg.fsleep)
    a("s_setprio 2")
    ts(7)
    for n in range(cfg.a0): aload(n)
    nxt = [cfg.a0]
    ts(8)
    def lds_spin(name, vaddr, off, val):
        a("s_mov_b32 s73, 0")
        a.label(name)
        a("s_waitcnt lgkmcnt(0)")
        a("v_readfirstlane_b32 s11, v8")
        a(f"s_cmp_ge_u32 s11, {val}")
        a(f"s_cbranch_scc1 {name}ok")
        a("s_add_u32 s73, s73, 1")
        a(f"s_cmp_ge_u32 s73, {SPIN_MAX}")
        a(f"s_cbranch_scc1 {name}ok")
        a("s_sleep 1")
        a(f"ds_read_b32 v8, v{vaddr} offset:{off}")
        a(f"s_branch {name}")
        a.label(name + "ok")
        del lq[:]
    ownc = []
    assert cfg.dfc <= 8
    for p in range(28):
        f = BR + 8 * (p % NB)
        pn = p + cfg.bd
        for lr in range(2):
            n = 2 * p + lr
            w = ds_wait(p) if lr == 0 else None
            vm.wait(('a', n), w or "")
            if n == 0: ts(9)
            if n in (0, 7, 17, 25, 35): ts.x(6, {0: 7, 7: 8, 17: 9, 25: 10, 35: 11}[n])
            if lr == 0 and pn in (12, 16, 22): ds_issue('r', f"ds_read_b32 v8, v{vRd}")
            d = AR[n % NA]
            for lc in range(2):
                acc = AF + 32 * lr + 16 * lc
                c = "0" if p == 0 else f"v[{acc}:{acc+15}]"
                m = f"v_mfma_f32_32x32x16_bf16 v[{acc}:{acc+15}], v[{d}:{d+3}], v[{f+4*lc}:{f+4*lc+3}], {c}"
                if lr == 0 and lc == 0 and p >= 28 - cfg.dfc: ownc.append(m)
                else: a(m)
            for _ in range(2):
                if nxt[0] < 56 and nxt[0] <= n + NA:
                    aload(nxt[0]); nxt[0] += 1
        if pn in (12, 16, 22): lds_spin(f"L_c_r{pn}", vRd, 0, {12: 1, 16: 2, 22: 3}[pn])
        if p == cfg.ksig:
            assert pn > 15
            w = ds_wait(15)
            if w: a(f"s_waitcnt {w}")
            a("s_mov_b64 exec, 1")
            ds_issue('c', f"ds_add_u32 v{vCn}, v{vOne} offset:4")
            a("s_mov_b64 exec, -1")
        if NB <= pn < 28:
            for t in breads(pn): ds_issue(pn, t)
        if p == 24:
            STT = BR + 32
            for k in range(8): ds_issue('st', f"ds_read_b128 v[{STT+4*k}:{STT+4*k+3}], v{vSo} offset:{16*k}")
        if p == 26:
            for x in range(1, 4):
                a(f"s_xor_b32 s11, s{S_W4}, {x}")
                a(f"s_mul_i32 s11, s11, {Q}")
                a(f"s_add_u32 s11, s11, {FXA + (x-1)*4096}")
                a(f"v_add_u32 v{x}, s11, v{vL16}")
            a(f"v_add_u32 v4, {GA}, v{vPQ}")
            a(f"v_add_u32 v5, {FXA}, v{vPQ}")
        if p % 4 == 3: ts.x(4, 1 + p // 4)
    ts(11)
    ts.x(7, 1)
    for x in (2, 1, 3):
        src = AF + 32 * (x & 1) + 16 * (x >> 1)
        for k in range(4):
            if ownc: a(ownc.pop(0))
            a(f"ds_write_b128 v5, v[{src+4*k}:{src+4*k+3}] offset:{(x-1)*4096 + 1024*k}")
    a("s_waitcnt lgkmcnt(12)")
    for r in range(16): a(f"v_mul_f32 v{STT+2*r}, v{STT+2*r+1}, v{STT+2*r+1}")
    a(f"s_mov_b32 s13, {LOG2E ^ 0x80000000:#x}")
    ts.x(7, 2)
    a("s_waitcnt lgkmcnt(0)")
    ts.x(7, 3)
    a("s_mov_b64 exec, 1")
    a(f"ds_add_u32 v{vCn}, v{vOne}")
    a("s_mov_b64 exec, -1")
    a(f"ds_read_b32 v8, v{vCn}")
    lds_spin("L_c_cnt", vCn, 0, 4)
    ts.x(7, 4)
    O, RX, EX = AF, 24, 72
    for k in range(4):
        for x in range(1, 4):
            a(f"ds_read_b128 v[{RX+16*(x-1)+4*k}:{RX+16*(x-1)+4*k+3}], v{x} offset:{1024*k}")
    for k in range(4):
        rr = range(4 * k, 4 * k + 4)
        a(f"s_waitcnt lgkmcnt({9 - 3*k})")
        for r in rr: a(f"v_add_f32 v{O+r}, v{O+r}, v{RX+r}")
        for r in rr: a(f"v_add_f32 v{RX+16+r}, v{RX+16+r}, v{RX+32+r}")
        for r in rr: a(f"v_add_f32 v{O+r}, v{O+r}, v{RX+16+r}")
        for r in rr: a(f"v_mul_f32 v{O+r}, v{O+r}, v{STT+2*r}")
        for r in rr: a(f"v_mul_f32 v{EX+r}, s13, v{O+r}")
        for r in rr: a(f"v_exp_f32 v{EX+r}, v{EX+r}")
    ts.x(7, 5)
    for k in range(4):
        rr = range(4 * k, 4 * k + 4)
        for r in rr: a(f"v_add_f32 v{EX+r}, 1.0, v{EX+r}")
        for r in rr: a(f"v_rcp_f32 v{EX+r}, v{EX+r}")
        for r in rr: a(f"v_mul_f32 v{O+r}, v{O+r}, v{EX+r}")
        a(f"ds_write_b128 v4, v[{O+4*k}:{O+4*k+3}] offset:{1024*k}")
    a("s_waitcnt lgkmcnt(0)")
    ts(12)
    a("s_barrier")
    ts.dump(24, 25, 0)
    a("s_endpgm")

HEADER = """; Fused LayerNorm + S5-SSM scan + ReGLU gate, one launch.
;   224 main workgroups (4 MFMA waves + 4 loader/scan waves) + 32 helper workgroups (row statistics, hand-off reset, C repack).
;   Kernarg: 13 inputs, d_out (+104), d_debug (+112), d_ws (+120).  Produced by a hand-written generator script.
; @launch grid=(256,1,1) block=(512,1,1) lds=163840
.amdgcn_target "amdgcn-amd-amdhsa--gfx950"
.text
.globl {k}
.p2align {al}
.p2align 8
.type {k},@function
{k}:
"""
FOOTER = """.section .rodata,"a"
.p2align 6
.amdhsa_kernel {k}
  .amdhsa_next_free_vgpr 256
  .amdhsa_next_free_sgpr 102
  .amdhsa_accum_offset 256
  .amdhsa_group_segment_fixed_size 0
  .amdhsa_kernarg_size 128
  .amdhsa_user_sgpr_count 2
  .amdhsa_user_sgpr_kernarg_segment_ptr 1
  .amdhsa_system_sgpr_workgroup_id_x 1
  .amdhsa_float_denorm_mode_32 3
.end_amdhsa_kernel
"""

def generate(cfg):
    WSOFF[0] = cfg.wsoff << 20
    a = Asm()
    ts = TS(a, cfg)
    gen_entry(a, cfg, ts)
    gen_loader(a, cfg, ts)
    gen_consumer(a, cfg, ts)
    gen_helper(a, cfg, ts)
    a.label("L_exit")
    a("s_endpgm")
    return HEADER.format(k=KNAME, al=12 if cfg.al else 8) + (f"; wsoff={cfg.wsoff}\n" if cfg.wsoff else "") + a.text() + FOOTER.format(k=KNAME)

if __name__ == "__main__":
    cfg = Cfg()
    out = sys.argv[1]
    for kv in sys.argv[2:]:
        k, v = kv.split("=")
        setattr(cfg, k, int(v))
    open(out, "w").write(generate(cfg))
```

```python
import sys, os
sys.path.insert(0, os.path.dirname(os.path.abspath(__file__)))
from asmlib import Asm, VM

KNAME = "recurrent_scan__ssm_conv_s5__glu_gated_reglu__prompt_kernel"

R = [0, 53248, 106496]
MISC = 159744
OFF_WG, OFF_WU, OFF_BB = 32768, 40960, 49152
CP_L = R[1] + 49152
STATS_L = MISC
C_L = MISC + 2048
CNT_L = MISC + 2688
ST2_L = MISC + 2720
AGG_L = MISC + 3232
Q = 12288

RT_BYTES = 172032
HALF_BYTES = 86016
WS_STATS = 0xB00000
WS_AGG = WS_STATS + 0x4000
WS_FLAG = WS_AGG + 0x8000
INIT_N = 32
WS_CP = 0xB20000
WS_TS = 0xC00000
WS_SIZE = 0x1000000
SPIN_MAX = 1 << 20

S_WAVE, S_XCD, S_SLOT, S_MT, S_NS, S_M64, S_NT, S_W4 = 3, 4, 5, 6, 7, 8, 9, 10
P_X, P_LRE, P_LIM, P_BRE, P_BIM, P_CRE, P_CIM, P_LDT, P_DSK, P_BX, P_WG, P_WU, P_WD, P_OUT, P_DBG, P_WS = [16 + 2 * i for i in range(16)]
SRD_X, SRD_A, SRD_B, SRD_C, SRD_WS, SRD_E = 48, 52, 56, 60, 64, 68
TS0 = 76

LOG2E = 0x3fb8aa3b
LOG2E_LO = 0x32a57060
LN2 = 0x3f317218
INV2PI = 0x3e22f983

class Cfg:
    ts = 0
    tsset = 0
    pd = 16
    perm = 1
    rot = 2
    ssm_early = 0
    schedn = 0
    polx = 0
    apol = 1
    noa = 0
    nob = 0
    rdstart = 1
    polw = 0
    winn = 3
    loc = 1
    mw = 0
    snake = 1
    rpg = 1
    w6pre = 1
    cfirst = 0
    nbar = 3
    nfill = 2
    fper16 = 2
    cprio = 2
    n6 = -1
    ramp = 6
    dfr = 12
    dfc = 8
    dfb = 7
    al = 3
    cpw = 1
    s0a = 8
    zpeel = 1
    ws = 0
    crot = 0
    ipos = 0
    gate = 2
    c0n = 16
    agpos = 0
    c0early = 0
    hord = 1
    clate = 2
    wl = 1
    fper = 6
    c2u = 4
    probe = 0
    pwho = 0
    ponly = -1
    pmask = 0xffff
    wsoff = 0
    kwin = 2
    wprio = 3
    hdelay = 0
    eprio = 0
    c2late = 0
    cpf = 2
    padto = 0
    nocs = 0
    r2pre = 1
    tlb = 0
    bd = 4
    pollw = 24
    c1 = 12
    c2 = 16
    f2b = 1
    wfirst = 1
    @property
    def win(self):
        W = lambda a, b: [f"w{p}" for p in range(a, b)]
        if self.ws:
            m, n1, n2, n3, n4, n5, n6, cp, cs, ep = [int(c) for c in str(self.ws)[1:]]
            assert n1 + n2 + n3 + n4 + n5 + n6 == 10
            pos = [12]
            def take(n):
                r = W(pos[0], pos[0] + n); pos[0] += n; return r
            w = {}
            if m == 2: w[-1] = ["m", "s1:0-3"]; w[0] = ["cs0", "s1:3-13", "k", "s2:0-10"]; w[1] = ["cs1", "s2:10-13", "s3"]
            else: w[-1] = ["s1:0-6"]; w[0] = ["cs0", "s1:6-13", "k", "s2"] + (["m"] if m == 1 else []); w[1] = ["cs1"] + (["m"] if m == 3 else []) + ["s3"]
            w[1] += take(n1)
            w[2] = ["cs2", "s4"] + take(n2)
            w[3] = (["cs3", "s5:0-7", "cs4", "s5:7-13"] if cs == 1 else ["cs3", "s5"]) + take(n3)
            w[4] = {0: ["cs4", "init", "s6:0-7", "cs5", "s6:7-13"], 1: ["init", "s6:0-4", "cs5", "s6:4-13"], 2: ["cs4", "init", "s6"]}[cs] + take(n4)
            w[5] = (["cs5"] if cs == 2 else []) + ["fetch"] + W(0, 4) + ["cs6"] + W(4, 6) + take(n5) + {0: ["c3"], 1: [], 2: ["c3", "c1"], 3: ["c1"]}[cp] + ["put"]
            w[6] = W(6, 12) + take(n6) + {0: ["c1"], 1: ["c3", "c1"], 2: [], 3: ["c3"]}[cp]
            w[ep].append("e")
            if self.ipos:
                w[4].remove("init"); w[4].append("init")
                w[5].remove("fetch"); w[5].remove("put")
                w[5].insert(w[5].index("cs6") + 1, "fetch")
                w[6].insert(2, "put")
            return w
        return [
            {-1: ["s1:0-6"], 0: ["cs0", "s1:6-13", "k", "s2:0-9"], 1: ["cs1", "s2:9-13", "s3", "e"], 2: ["cs2", "s4"] + W(12, 14), 3: ["cs3", "s5"] + W(14, 17),
             4: ["cs4", "init", "s6:0-7", "cs5", "s6:7-13", "w17"], 5: ["fetch"] + W(0, 4) + ["cs6"] + W(4, 6) + W(18, 20) + ["put"], 6: W(6, 12) + W(20, 22)},
            {-1: ["s1:0-6"], 0: ["cs0", "s1:6-13", "k", "s2:0-9"], 1: ["cs1", "s2:9-13", "s3", "e"], 2: ["cs2", "s4"] + W(12, 15), 3: ["cs3", "s5"] + W(15, 18),
             4: ["cs4", "init", "s6"] + W(18, 20), 5: ["cs5", "fetch"] + W(0, 3) + ["cs6"] + W(3, 6) + ["put"], 6: W(6, 12) + W(20, 22)},
            {-1: ["s1:0-6"], 0: ["cs0", "s1:6-13", "k", "s2:0-9"], 1: ["cs1", "s2:9-13", "s3", "e"], 2: ["cs2", "s4"] + W(12, 15), 3: ["cs3", "s5:0-7", "cs4", "s5:7-13", "w15"],
             4: ["init", "s6:0-4", "cs5", "s6:4-13"] + W(16, 19), 5: ["fetch"] + W(0, 4) + ["cs6"] + W(4, 6) + W(19, 22) + ["put"], 6: W(6, 12)},
            {-1: ["s1:0-6"], 0: ["cs0", "s1:6-13", "k", "s2:0-9"], 1: ["cs1", "s2:9-13", "s3", "e"], 2: ["cs2", "s4"] + W(12, 15), 3: ["cs3", "s5"] + W(15, 18),
             4: ["cs4", "init", "s6:0-7", "cs5", "s6:7-13", "w18", "w19"], 5: ["fetch"] + W(0, 4) + ["cs6"] + W(4, 6) + W(20, 22) + ["c3", "put"], 6: W(6, 12) + ["c1"]},
            {-1: ["s1:0-6"], 0: ["cs0", "s1:6-13", "k", "s2:0-9"], 1: ["cs1", "s2:9-13", "s3", "e"], 2: ["cs2", "s4"] + W(12, 14), 3: ["cs3", "s5"] + W(14, 17),
             4: ["cs4", "init", "s6:0-7", "cs5", "s6:7-13", "w17"], 5: ["fetch"] + W(0, 4) + ["cs6"] + W(4, 6) + W(18, 20) + ["put"], 6: W(6, 12) + W(20, 22) + ["c3"]},
            {-1: ["s1:0-6"], 0: ["cs0", "s1:6-13", "k", "s2:0-9"], 1: ["cs1", "s2:9-13", "s3", "e"], 2: ["cs2", "s4"] + W(12, 15), 3: ["cs3", "s5"] + W(15, 19),
             4: ["cs4", "init", "s6:0-7", "cs5", "s6:7-13"] + W(19, 22), 5: ["fetch"] + W(0, 4) + ["cs6"] + W(4, 6) + ["c1", "put"], 6: W(6, 12) + ["c3"]},
            {-1: ["s1:0-6"], 0: ["cs0", "s1:6-13", "k", "s2"], 1: ["cs1", "s3", "e"] + W(12, 14), 2: ["cs2", "s4"] + W(14, 17), 3: ["cs3", "s5"] + W(17, 20),
             4: ["cs4", "init", "s6:0-7", "cs5", "s6:7-13"] + W(20, 22), 5: ["fetch"] + W(0, 4) + ["cs6"] + W(4, 6) + ["c1", "put"], 6: W(6, 12) + ["c3"]},
            {-1: ["s1:0-6"], 0: ["cs0", "s1:6-13", "k", "s2:0-9"], 1: ["cs1", "s2:9-13", "s3", "e"], 2: ["cs2", "s4"] + W(12, 15), 3: ["cs3", "s5:0-7", "cs4", "s5:7-13"] + W(15, 18),
             4: ["init", "s6:0-4", "cs5", "s6:4-13"] + W(18, 22), 5: ["fetch"] + W(0, 4) + ["cs6"] + W(4, 6) + ["c1", "put"], 6: W(6, 12) + ["c3"]},
            {-1: ["s1:0-6"], 0: ["cs0", "s1:6-13", "k", "s2:0-9"], 1: ["cs1", "s2:9-13", "s3", "e"], 2: ["cs2", "s4"], 3: ["cs3", "s5"] + W(12, 16),
             4: ["cs4", "init", "s6:0-7", "cs5", "s6:7-13"] + W(16, 19), 5: ["fetch"] + W(0, 4) + ["cs6"] + W(4, 6) + W(19, 22) + ["c3", "put"], 6: W(6, 12) + ["c1"]},
            {-1: ["s1:0-6"], 0: ["cs0", "s1:6-13", "k", "s2"], 1: ["cs1", "s3", "e"], 2: ["cs2", "s4"] + W(12, 14), 3: ["cs3", "s5"] + W(14, 18),
             4: ["cs4", "init", "s6:0-7", "cs5", "s6:7-13", "w18", "w19"], 5: ["fetch"] + W(0, 4) + ["cs6"] + W(4, 6) + W(20, 22) + ["c3", "put"], 6: W(6, 12) + ["c1"]},
            {-1: ["s1:0-3"], 0: ["cs0", "s1:3-13", "k", "s2:0-8"], 1: ["cs1", "s2:8-13", "s3"], 2: ["cs2", "s4", "e"] + W(12, 14), 3: ["cs3", "s5"] + W(14, 18),
             4: ["cs4", "init", "s6:0-7", "cs5", "s6:7-13", "w18", "w19"], 5: ["fetch"] + W(0, 4) + ["cs6"] + W(4, 6) + W(20, 22) + ["c3", "put"], 6: W(6, 12) + ["c1"]},
            {-1: ["s1:0-6"], 0: ["cs0", "s1:6-13", "k", "s2:0-9"], 1: ["cs1", "s2:9-13", "s3", "e"], 2: ["cs2", "s4"] + W(12, 15), 3: ["cs3", "init", "s5"] + W(15, 18),
             4: ["cs4", "fetch", "s6:0-7", "cs5", "s6:7-13", "w18", "w19"], 5: ["put"] + W(0, 4) + ["cs6"] + W(4, 6) + W(20, 22) + ["c3"], 6: W(6, 12) + ["c1"]},
            {-1: ["m", "s1:0-3"], 0: ["cs0", "s1:3-13", "k", "s2:0-8"], 1: ["cs1", "s2:8-13", "s3", "e"], 2: ["cs2", "s4"] + W(12, 15), 3: ["cs3", "s5"] + W(15, 18),
             4: ["cs4", "init", "s6:0-7", "cs5", "s6:7-13", "w18", "w19"], 5: ["fetch"] + W(0, 4) + ["cs6"] + W(4, 6) + W(20, 22) + ["c3", "put"], 6: W(6, 12) + ["c1"]},
            {-1: ["s1:0-6"], 0: ["cs0", "s1:6-13", "m", "k", "s2:0-9"], 1: ["cs1", "s2:9-13", "s3", "e"], 2: ["cs2", "s4"] + W(12, 15), 3: ["cs3", "s5"] + W(15, 18),
             4: ["cs4", "init", "s6:0-7", "cs5", "s6:7-13", "w18", "w19"], 5: ["fetch"] + W(0, 4) + ["cs6"] + W(4, 6) + W(20, 22) + ["c3", "put"], 6: W(6, 12) + ["c1"]},
            {-1: ["m"], 0: ["cs0", "s1", "k", "s2:0-6"], 1: ["cs1", "s2:6-13", "s3"], 2: ["cs2", "s4", "e"] + W(12, 14), 3: ["cs3", "s5"] + W(14, 18),
             4: ["cs4", "init", "s6:0-7", "cs5", "s6:7-13", "w18", "w19"], 5: ["fetch"] + W(0, 4) + ["cs6"] + W(4, 6) + W(20, 22) + ["c3", "put"], 6: W(6, 12) + ["c1"]},
            {-1: ["s1:0-6"], 0: ["cs0", "s1:6-13", "k", "s2"], 1: ["cs1", "s3"], 2: ["cs2", "s4", "e"], 3: ["cs3", "s5"] + W(12, 16),
             4: ["cs4", "init", "s6:0-7", "cs5", "s6:7-13"] + W(16, 19), 5: ["fetch"] + W(0, 4) + ["cs6"] + W(4, 6) + W(19, 22) + ["c3", "put"], 6: W(6, 12) + ["c1"]},
            {-1: ["s1:0-6"], 0: ["cs0", "s1:6-13", "k", "s2", "m"], 1: ["cs1", "s3"], 2: ["cs2", "s4", "e"], 3: ["cs3", "s5"] + W(12, 16),
             4: ["cs4", "init", "s6:0-7", "cs5", "s6:7-13"] + W(16, 19), 5: ["fetch"] + W(0, 4) + ["cs6"] + W(4, 6) + W(19, 22) + ["c3", "put"], 6: W(6, 12) + ["c1"]},
            {-1: ["m", "s1:0-3"], 0: ["cs0", "s1:3-13", "k", "s2:0-10"], 1: ["cs1", "s2:10-13", "s3"], 2: ["cs2", "s4", "e"], 3: ["cs3", "s5"] + W(12, 16),
             4: ["cs4", "init", "s6:0-7", "cs5", "s6:7-13"] + W(16, 19), 5: ["fetch"] + W(0, 4) + ["cs6"] + W(4, 6) + W(19, 22) + ["c3", "put"], 6: W(6, 12) + ["c1"]},
            {-1: ["s1:0-6"], 0: ["cs0", "s1:6-13", "k", "s2"], 1: ["cs1", "s3"], 2: ["cs2", "s4:0-6"], 3: ["cs3", "s4:6-13", "s5", "e"],
             4: ["cs4", "init", "s6"] + W(12, 16), 5: ["cs5", "fetch"] + W(16, 20) + ["cs6"] + W(0, 6) + ["put"], 6: W(6, 12) + W(20, 22) + ["c3", "c1"]},
            {-1: ["s1"], 0: ["cs0", "k", "s2", "e"], 1: ["cs1", "s3"], 2: ["cs2", "s4", "w12"], 3: ["cs3", "s5"] + W(13, 16),
             4: ["cs4", "init", "s6:0-7", "cs5", "s6:7-13"] + W(16, 19), 5: ["fetch"] + W(0, 4) + ["cs6"] + W(4, 6) + W(19, 22) + ["c3", "put"], 6: W(6, 12) + ["c1"]},
        ][self.winn]
    nw1 = 6
    flagr = -1
    xs = 1
    psleep = 6
    fsleep = 2
    ttper = 2
    f2n = 9
    fpre = 1
    a0 = 18
    sprio = 0
    ksig = 12
    opol = 1
    lprio = 3
    w12early = 0
    slab = 0
    spol = 1
    fpol = 1
    pollr = 4
    nw2 = 16
    thr = 15
    hpf = 2
    ky = 2
    @property
    def perms(self):
        return {
            0: [[0, 1, 2, 3, 4, 5, 6]],
            1: [[0, 1, 2, 3, 4, 5, 6], [1, 2, 0, 4, 5, 3, 6], [2, 0, 1, 5, 3, 4, 6]],
            2: [[0, 1, 2, 3, 4, 5, 6], [1, 0, 3, 2, 5, 4, 6]],
            3: [[0, 1, 2, 3, 4, 5, 6], [1, 0, 4, 5, 6, 2, 3], [0, 1, 6, 2, 3, 4, 5]],
            4: [[0, 1, 2, 3, 4, 5, 6], [1, 2, 0, 4, 6, 3, 5], [2, 0, 1, 5, 6, 3, 4]],
            6: [[0, 1, 2, 3, 4, 5, 6], [1, 2, 0, 3, 4, 5, 6], [2, 0, 1, 3, 4, 5, 6]],
            5: [[0, 1, 2, 3, 4, 5, 6], [1, 2, 3, 0, 5, 6, 4], [2, 3, 0, 1, 6, 4, 5], [3, 0, 1, 2, 4, 5, 6]],
        }[self.perm]

WSOFF = [0]
def srd(a, d, ptr, nbytes):
    if ptr == P_WS and WSOFF[0]:
        a(f"s_add_u32 s{ptr}, s{ptr}, {WSOFF[0]:#x}")
        a(f"s_addc_u32 s{ptr+1}, s{ptr+1}, 0")
    a(f"s_mov_b32 s{d}, s{ptr}")
    a(f"s_and_b32 s{d+1}, s{ptr+1}, 0xffff")
    a(f"s_mov_b32 s{d+2}, {nbytes:#x}")
    a(f"s_mov_b32 s{d+3}, 0x20000")

def srd_sel(a, d, ptr1, ptr0, nbytes):
    a(f"s_cselect_b32 s{d}, s{ptr1}, s{ptr0}")
    a(f"s_cselect_b32 s{d+1}, s{ptr1+1}, s{ptr0+1}")
    a(f"s_and_b32 s{d+1}, s{d+1}, 0xffff")
    a(f"s_mov_b32 s{d+2}, {nbytes:#x}")
    a(f"s_mov_b32 s{d+3}, 0x20000")

class TS:
    def __init__(self, a, cfg):
        self.a, self.on, self.n, self.set = a, cfg.ts, 0, cfg.tsset
        self.cfg = cfg
    def x(self, setno, i):
        if self.on and self.set == setno: self.emit(i)
    def __call__(self, i):
        if self.on and (self.set == 0 or i in (0, 12)): self.emit(i)
    def emit(self, i):
        if self.on == 5 and i not in (0, self.cfg.probe): return
        if self.on:
            assert i < 13
            self.a(f"{'s_memrealtime' if self.on != 2 else 's_memtime'} s[{TS0+2*i}:{TS0+2*i+1}]")
    def init(self):
        if self.on:
            for i in range(1, 13): self.a(f"s_mov_b32 s{TS0+2*i}, 0")
    def dump(self, vt, vt2, who=2):
        if not self.on: return
        a = self.a
        if self.on == 5:
            if who != self.cfg.pwho: return
            lab = a.newlabel("L_probe")
            if self.cfg.ponly >= 0:
                a(f"s_and_b32 s11, s2, {self.cfg.pmask}")
                a(f"s_cmp_lg_u32 s11, {self.cfg.ponly}")
                a(f"s_cbranch_scc1 {lab}_x")
            p = TS0 + 2 * self.cfg.probe
            a("s_waitcnt lgkmcnt(0)")
            a(f"s_sub_u32 s11, s{p}, s{TS0}")
            a(f"s_cmp_eq_u32 s{p}, 0")
            a("s_cselect_b32 s11, 0, s11")
            a("s_lshl_b32 s11, s11, 2")
            a("s_add_u32 s11, s11, 3000")
            a.label(lab)
            a("s_memrealtime s[12:13]")
            a("s_waitcnt lgkmcnt(0)")
            a(f"s_sub_u32 s12, s12, s{TS0}")
            a("s_cmp_lt_u32 s12, s11")
            a(f"s_cbranch_scc1 {lab}")
            a.label(lab + "_x")
            return
        if self.on == 3:
            a("s_waitcnt vmcnt(0) lgkmcnt(0)")
            lab = a.newlabel("L_nod")
            a(f"s_cmp_eq_u32 s{TS0+24}, 0")
            a(f"s_cbranch_scc1 {lab}")
            a(f"s_cmp_lg_u32 s{S_WAVE}, 0")
            a(f"s_cbranch_scc1 {lab}")
            a("s_mov_b64 exec, 1")
            a(f"v_mov_b32 v{vt2}, 0")
            a(f"s_not_b32 s11, s{TS0}")
            a(f"v_mov_b32 v{vt}, s11")
            a(f"global_atomic_umax v{vt2}, v{vt}, s[{P_DBG}:{P_DBG+1}] offset:4 sc1")
            for n, i in enumerate([0, 1, 2, 3, 4, 5, 6, 7, 8, 9, 10, 11, 12]):
                a("s_waitcnt vmcnt(0)")
                a(f"v_mov_b32 v{vt}, s{TS0+2*i}")
                a(f"global_atomic_umax v{vt2}, v{vt}, s[{P_DBG}:{P_DBG+1}] offset:{8+4*n} sc1")
            a("s_waitcnt vmcnt(0)")
            a.label(lab)
            return
        a("s_waitcnt vmcnt(0) lgkmcnt(0)")
        a(f"s_lshl_b32 s11, s2, 9")
        a(f"s_lshl_b32 s12, s{S_WAVE}, 6")
        a("s_add_u32 s11, s11, s12")
        a(f"s_add_u32 s11, s11, {WS_TS:#x}")
        a(f"v_mov_b32 v{vt2}, s11")
        for i in range(13):
            a(f"v_mov_b32 v{vt}, s{TS0+2*i}")
            a(f"buffer_store_dword v{vt}, v{vt2}, s[{SRD_WS}:{SRD_WS+3}], 0 offen offset:{4*i}")
        a("s_waitcnt vmcnt(0)")

def round_bf16(a, dst, src):
    a(f"v_cvt_pk_bf16_f32 v{dst}, v{src}, v{src}")
    a(f"v_lshlrev_b32 v{dst}, 16, v{dst}")

def exp_acc(a, dst, x, t0, t1):
    a(f"s_mov_b32 s36, {LOG2E:#x}")
    a(f"s_mov_b32 s37, {LOG2E_LO:#x}")
    a(f"v_mul_f32 v{t0}, s36, v{x}")
    a(f"v_fma_f32 v{t1}, v{x}, s36, -v{t0}")
    a(f"v_fma_f32 v{t1}, v{x}, s37, v{t1}")
    a(f"v_mul_f32 v{t1}, {LN2:#x}, v{t1}")
    a(f"v_exp_f32 v{dst}, v{t0}")
    a(f"v_fma_f32 v{dst}, v{dst}, v{t1}, v{dst}")

def csq(a, dr, di, sr, si, t):
    a(f"v_mul_f32 v{t}, v{si}, v{si}")
    a(f"v_add_f32 v{di}, v{si}, v{si}")
    a(f"v_mul_f32 v{di}, v{di}, v{sr}")
    a(f"v_fma_f32 v{dr}, v{sr}, v{sr}, -v{t}")

def cmul(a, dr, di, ar, ai, br, bi):
    a(f"v_mul_f32 v{dr}, v{ar}, v{br}")
    a(f"v_mul_f32 v{di}, v{ar}, v{bi}")
    a(f"v_fma_f32 v{dr}, -v{ai}, v{bi}, v{dr}")
    a(f"v_fma_f32 v{di}, v{ai}, v{br}, v{di}")

def ssm_const_load(a, vm, t):
    a(f"v_and_b32 v{t+3}, 15, v0")
    a(f"s_lshl_b32 s11, s{S_NS}, 4")
    a(f"v_add_lshl_u32 v{t+3}, v{t+3}, s11, 1")
    vm.issue('sc', f"global_load_ushort v{t}, v{t+3}, s[{P_LRE}:{P_LRE+1}]")
    vm.issue('sc', f"global_load_ushort v{t+1}, v{t+3}, s[{P_LIM}:{P_LIM+1}]")
    vm.issue('sc', f"global_load_ushort v{t+2}, v{t+3}, s[{P_LDT}:{P_LDT+1}]")

def ssm_const_calc(a, t, lr, li, cr=None, ci=None):
    for k in range(3): a(f"v_lshlrev_b32 v{t+k}, 16, v{t+k}")
    exp_acc(a, t + 3, t + 2, t + 4, t + 5)
    round_bf16(a, t + 2, t + 3)
    a(f"v_mul_f32 v{t+3}, v{t+2}, v{t}")
    a(f"v_mul_f32 v{t+6}, v{t+2}, v{t+1}")
    exp_acc(a, t + 7, t + 3, t + 4, t + 5)
    a(f"v_mul_f32 v{t+6}, {INV2PI:#x}, v{t+6}")
    a(f"v_rndne_f32 v{t+4}, v{t+6}")
    a(f"v_sub_f32 v{t+6}, v{t+6}, v{t+4}")
    a(f"v_cos_f32 v{t+4}, v{t+6}")
    a(f"v_sin_f32 v{t+5}, v{t+6}")
    a(f"v_mul_f32 v{lr}, v{t+7}, v{t+4}")
    a(f"v_mul_f32 v{li}, v{t+7}, v{t+5}")
    if cr is not None:
        a(f"v_add_f32 v{t+3}, -1.0, v{lr}")
        a(f"v_mul_f32 v{t+4}, v{t}, v{t}")
        a(f"v_fma_f32 v{t+4}, v{t+1}, v{t+1}, v{t+4}")
        a(f"v_rcp_f32 v{t+4}, v{t+4}")
        a(f"v_mul_f32 v{cr}, v{t+3}, v{t}")
        a(f"v_fma_f32 v{cr}, v{li}, v{t+1}, v{cr}")
        a(f"v_mul_f32 v{ci}, v{li}, v{t}")
        a(f"v_fma_f32 v{ci}, -v{t+3}, v{t+1}, v{ci}")
        a(f"v_add_f32 v{t+4}, v{t+4}, v{t+4}")
        a(f"v_mul_f32 v{cr}, v{cr}, v{t+4}")
        a(f"v_mul_f32 v{ci}, v{ci}, v{t+4}")

def gen_entry(a, cfg, ts):
    a("s_cmp_ge_u32 s2, 256")
    a("s_cbranch_scc1 L_exit")
    if cfg.padto: a("s_memrealtime s[100:101]")
    ts(0)
    a("s_load_dwordx16 s[16:31], s[0:1], 0")
    a("s_load_dwordx16 s[32:47], s[0:1], 64")
    a("v_lshrrev_b32 v1, 6, v0")
    a("v_and_b32 v0, 63, v0")
    a(f"v_readfirstlane_b32 s{S_WAVE}, v1")
    a(f"s_and_b32 s{S_XCD}, s2, 7")
    a(f"s_lshr_b32 s{S_SLOT}, s2, 3")
    if cfg.cpf == 2:
        a(f"s_cmp_gt_u32 s{S_WAVE}, {cfg.cpw - 1}")
        a("s_cbranch_scc1 L_nocpf")
        a("s_getpc_b64 s[12:13]")
        a.label("L_pc0")
        a(f"s_sub_u32 s12, s12, L_pc0-{KNAME}")
        a("s_subb_u32 s13, s13, 0")
        a(f"s_lshl_b32 s11, s{S_WAVE}, 5")
        a(f"s_add_u32 s11, s11, s{S_SLOT}")
        a("s_lshl_b32 s11, s11, 10")
        a("v_lshl_add_u32 v38, v0, 4, s11")
        a(f"v_min_u32 v38, L_exit-{KNAME}, v38")
        a("global_load_dword v23, v38, s[12:13]")
        a.label("L_nocpf")
    a(f"s_and_b32 s11, s{S_SLOT}, 3")
    a(f"s_lshr_b32 s{S_NT}, s{S_SLOT}, 2")
    a(f"s_and_b32 s12, s{S_XCD}, 1")
    a(f"s_lshl_b32 s12, s12, 2")
    a(f"s_add_u32 s{S_MT}, s12, s11")
    a(f"s_lshr_b32 s12, s{S_XCD}, 1")
    a(f"s_mul_i32 s12, s12, 7")
    a(f"s_add_u32 s{S_NS}, s12, s{S_NT}")
    if cfg.slab:
        a(f"s_mov_b32 s{S_MT}, s{S_XCD}")
        a(f"s_mov_b32 s{S_NS}, s{S_SLOT}")
    if cfg.loc:
        a(f"s_and_b32 s12, s{S_XCD}, 1")
        a("s_lshl_b32 s12, s12, 2")
        a(f"s_lshr_b32 s13, s{S_XCD}, 1")
        a("s_add_u32 s12, s12, s13")
        a("s_lshl_b32 s12, s12, 2")
    else:
        a(f"s_lshl_b32 s12, s{S_XCD}, 2")
    a(f"s_add_u32 s{S_M64}, s12, s11")
    a(f"s_and_b32 s{S_W4}, s{S_WAVE}, 3")
    ts.init()
    a(f"s_cmp_ge_u32 s{S_SLOT}, 28")
    a("s_cbranch_scc1 L_helper")
    a(f"s_cmp_lt_u32 s{S_WAVE}, 4")
    a("s_cbranch_scc1 L_consumer")

def gen_helper(a, cfg, ts):
    if cfg.al >= 3: a.raw(".p2align 12")
    a.label("L_helper")
    vm = VM(a)
    a(f"s_sub_u32 s73, s{S_SLOT}, 28")
    a(f"s_lshl_b32 s11, s73, 3")
    a(f"s_add_u32 s72, s11, s{S_XCD}")
    if cfg.loc: a(f"s_mov_b32 s72, s{S_M64}")
    HC = 65536
    a(f"v_mov_b32 v200, {HC}")
    a("v_mov_b32 v201, 0")
    a("ds_write_b32 v200, v201")
    def h_open():
        a("s_waitcnt lgkmcnt(0)")
        a("s_barrier")
    def h_signal(tag):
        a("v_mov_b32 v202, 1")
        a("s_mov_b64 exec, 1")
        a("ds_add_rtn_u32 v203, v200, v202")
        a("s_waitcnt lgkmcnt(0)")
        a("v_readfirstlane_b32 s11, v203")
        a("s_cmp_lg_u32 s11, 7")
        a(f"s_cbranch_scc1 L_h_ns{tag}")
        a(f"global_atomic_add v201, v202, s[{P_DBG}:{P_DBG+1}] sc1")
        a.label(f"L_h_ns{tag}")
        a("s_mov_b64 exec, -1")
    a(f"s_cmp_ge_u32 s{S_WAVE}, 4")
    a("s_cbranch_scc1 L_h_pf")
    a(f"s_lshl_b32 s11, s72, 6")
    a(f"s_lshl_b32 s12, s{S_WAVE}, 4")
    a(f"s_add_u32 s11, s11, s12")
    a("v_lshrrev_b32 v2, 3, v0")
    a("v_add_u32 v2, s11, v2")
    a("v_mul_u32_u24 v3, 896, v2")
    a("v_and_b32 v4, 7, v0")
    a("v_lshl_add_u32 v3, v4, 4, v3")
    a("s_waitcnt lgkmcnt(0)")
    srd(a, SRD_X, P_X, 2048 * 896)
    srd(a, SRD_WS, P_WS, WS_SIZE)
    a(f"s_mov_b32 s11, {8*896}")
    for ps in range(2):
        for j in range(7):
            so = "0" if ps == 0 else "s11"
            vm.issue(('x', ps), f"buffer_load_dwordx4 v[{112+28*ps+4*j}:{115+28*ps+4*j}], v3, s[{SRD_X}:{SRD_X+3}], {so} offen offset:{128*j}")
    a(f"s_cmp_gt_u32 s{S_WAVE}, 1")
    a("s_cbranch_scc1 L_h_noreset")
    a(f"s_cmp_eq_u32 s{S_WAVE}, 0")
    a("s_cselect_b32 s11, -1, 0")
    a("s_mov_b32 s12, 1024")
    a("s_cmov_b32 s12, 896")
    a(f"s_mov_b32 s13, {WS_FLAG:#x}")
    a(f"s_cmov_b32 s13, {WS_AGG:#x}")
    a("s_mul_i32 s14, s12, s72")
    a("s_add_u32 s13, s13, s14")
    for k in range(4): a(f"v_mov_b32 v{8+k}, s11")
    a("v_lshlrev_b32 v12, 4, v0")
    a("v_cmp_gt_u32 vcc, s12, v12")
    a("s_and_saveexec_b64 s[14:15], vcc")
    a(f"buffer_store_dwordx4 v[8:11], v12, s[{SRD_WS}:{SRD_WS+3}], s13 offen sc1")
    a("s_mov_b64 exec, s[14:15]")
    a.label("L_h_noreset")
    h_open()
    a("v_lshlrev_b32 v2, 3, v2")
    a("s_mov_b32 s12, 0xffff0000")
    def fin(dst):
        a("v_add_f32 v8, v8, v9")
        a("v_add_f32 v10, v10, v11")
        a(f"v_add_f32 v{dst}, v8, v10")
        a(f"v_add_f32_dpp v{dst}, v{dst}, v{dst} quad_perm:[1,0,3,2] row_mask:0xf bank_mask:0xf")
        a(f"v_add_f32_dpp v{dst}, v{dst}, v{dst} quad_perm:[2,3,0,1] row_mask:0xf bank_mask:0xf")
        a(f"v_add_f32_dpp v{dst}, v{dst}, v{dst} row_half_mirror row_mask:0xf bank_mask:0xf")
        a(f"v_mul_f32 v{dst}, 0x3b124925, v{dst}")
    for ps in range(2):
        vm.wait(('x', ps))
        if cfg.hdelay == 2 + ps: a("s_barrier")
        src = 112 + 28 * ps
        for k in range(28):
            a(f"v_lshlrev_b32 v{48+2*k}, 16, v{src+k}")
            a(f"v_and_b32 v{49+2*k}, s12, v{src+k}")
        a("v_pk_add_f32 v[8:9], v[48:49], v[52:53]")
        a("v_pk_add_f32 v[10:11], v[50:51], v[54:55]")
        for k in range(4, 28): a(f"v_pk_add_f32 v[{8+2*(k%2)}:{9+2*(k%2)}], v[{8+2*(k%2)}:{9+2*(k%2)}], v[{48+2*k}:{49+2*k}]")
        fin(12)
        for k in range(28): a(f"v_pk_add_f32 v[{48+2*k}:{49+2*k}], v[{48+2*k}:{49+2*k}], v[12:13] op_sel_hi:[1,0] neg_lo:[0,1] neg_hi:[0,1]")
        for k in range(2): a(f"v_pk_mul_f32 v[{8+2*k}:{9+2*k}], v[{48+2*k}:{49+2*k}], v[{48+2*k}:{49+2*k}]")
        for k in range(2, 28): a(f"v_pk_fma_f32 v[{8+2*(k%2)}:{9+2*(k%2)}], v[{48+2*k}:{49+2*k}], v[{48+2*k}:{49+2*k}], v[{8+2*(k%2)}:{9+2*(k%2)}]")
        fin(13)
        o = 14 + 2 * ps
        round_bf16(a, o, 12)
        round_bf16(a, 13, 13)
        a("v_add_f32 v13, 0x3727c5ac, v13")
        round_bf16(a, 13, 13)
        a("v_sqrt_f32 v13, v13")
        round_bf16(a, 13, 13)
        a(f"v_rcp_f32 v{o+1}, v13")
        a("v_cmp_eq_u32 vcc, 0, v4")
        a("s_and_saveexec_b64 s[14:15], vcc")
        a(f"s_mov_b32 s11, {WS_STATS:#x}")
        vm.issue('st', f"buffer_store_dwordx2 v[{o}:{o+1}], v2, s[{SRD_WS}:{SRD_WS+3}], s11 offen offset:{64*ps} sc1")
        a("s_mov_b64 exec, s[14:15]")
    a("s_waitcnt vmcnt(0)")
    h_signal("a")
    ts(1)
    ts.x(3, 1)
    ts.dump(8, 9)
    a("s_endpgm")
    a.label("L_h_pf")
    a("v_lshlrev_b32 v2, 4, v0")
    a(f"s_lshl_b32 s11, s{S_W4}, 10")
    a("v_add_u32 v2, s11, v2")
    if cfg.cpf == 1:
        a("s_getpc_b64 s[60:61]")
        a.label("L_pc")
        a(f"s_sub_u32 s60, s60, L_pc-{KNAME}")
        a("s_subb_u32 s61, s61, 0")
        a("s_lshl_b32 s11, s73, 12")
        a("v_add_u32 v3, s11, v2")
        for k in range(2):
            a(f"v_min_u32 v4, L_exit-{KNAME}-12, v3")
            a(f"global_load_dwordx4 v[24:27], v4, s[60:61]")
            a(f"v_add_u32 v3, 16384, v3")
    a("s_waitcnt lgkmcnt(0)")
    if cfg.hdelay == 1: a("s_waitcnt vmcnt(0)")
    if cfg.hdelay >= 2: a("s_barrier")
    srd(a, SRD_WS, P_WS, WS_SIZE)
    a("s_lshl_b32 s60, s72, 2")
    a(f"s_add_u32 s60, s60, s{S_W4}")
    a("s_cmp_ge_u32 s60, 98")
    a("s_cbranch_scc1 L_h_nopack1")
    a("s_mul_i32 s61, s60, 37")
    a("s_lshr_b32 s61, s61, 8")
    a("s_mul_i32 s62, s61, 7")
    a("s_sub_u32 s62, s60, s62")
    a("s_cmp_lt_i32 s62, 0")
    a("s_cselect_b32 s11, 1, 0")
    a("s_sub_u32 s61, s61, s11")
    a("s_mul_i32 s62, s61, 7")
    a("s_sub_u32 s62, s60, s62")
    a("s_bitcmp1_b32 s61, 0")
    srd_sel(a, 68, P_CIM, P_CRE, 448 * 896)
    a("v_lshrrev_b32 v3, 3, v0")
    a("v_and_b32 v4, 7, v0")
    a("v_lshrrev_b32 v5, 1, v3")
    a("v_xor_b32 v4, v4, v5")
    a("s_lshr_b32 s11, s61, 1")
    a("s_lshl_b32 s11, s11, 6")
    a("v_add_u32 v3, s11, v3")
    a("v_mul_u32_u24 v3, 896, v3")
    a("v_lshl_add_u32 v3, v4, 4, v3")
    a("v_xor_b32 v4, 64, v3")
    a(f"s_lshl_b32 s63, s{S_W4}, 13")
    a("s_lshl_b32 s12, s62, 7")
    for n in range(8):
        a(f"s_add_u32 m0, s63, {n*1024}")
        a(f"s_add_u32 s11, s12, {8*n*896}")
        a(f"buffer_load_dwordx4 v{3 + (n & 1)}, s[68:71], s11 offen lds")
    a.label("L_h_nopack1")
    h_open()
    def h_sweep():
        if cfg.hpf:
            for (ptr, nbytes, srdn) in ((P_WD, 1792 * 896, 56),):
                srd(a, srdn, ptr, nbytes)
            def sweep(name, srds, qbytes, first, count):
                n8 = -(-qbytes // (8 * 4096))
                n = 8 * n8
                a(f"s_mul_i32 s12, s73, {qbytes}")
                a(f"s_add_u32 s13, s{S_XCD}, {first}")
                a("s_and_b32 s13, s13, 7")
                a(f"s_mul_i32 s13, s13, {n8}")
                a("s_mov_b32 s14, 0")
                a.label(name)
                a("s_lshl_b32 s11, s13, 12")
                a("s_add_u32 s11, s11, s12")
                for k, sr in enumerate(srds):
                    a(f"buffer_load_dwordx4 v[{16+4*k}:{19+4*k}], v2, s[{sr}:{sr+3}], s11 offen")
                a("s_add_u32 s13, s13, 1")
                a(f"s_cmp_eq_u32 s13, {n}")
                a("s_cselect_b32 s13, 0, s13")
                a("s_add_u32 s14, s14, 1")
                a(f"s_cmp_lt_u32 s14, {n8 * count}")
                a(f"s_cbranch_scc1 {name}")
            sweep("L_h_p2", [56], 1792 * 896 // 4, 0, 1)
            ts(2)
    def h_pack():
        a("s_cmp_ge_u32 s60, 98")
        a("s_cbranch_scc1 L_h_nopack2")
        a("v_and_b32 v5, 31, v0")
        a("v_lshrrev_b32 v6, 5, v0")
        a("v_bfe_u32 v7, v0, 1, 3")
        a("v_xor_b32 v7, v7, v6")
        a("v_lshlrev_b32 v7, 4, v7")
        a("v_lshl_add_u32 v5, v5, 7, v7")
        a("v_add_u32 v5, s63, v5")
        a("v_lshlrev_b32 v6, 4, v0")
        a("s_mul_i32 s12, s61, 28")
        a("s_lshl_b32 s11, s62, 2")
        a("s_add_u32 s12, s12, s11")
        a("s_lshl_b32 s12, s12, 11")
        a(f"s_add_u32 s12, s12, {WS_CP:#x}")
        a(f"s_waitcnt vmcnt({13 if (cfg.hpf and not cfg.hord) else 0})")
        for ks in range(4):
            a(f"v_xor_b32 v7, {32*ks}, v5")
            for ct in range(2):
                d = 32 + 8 * ks + 4 * ct
                a(f"ds_read_b128 v[{d}:{d+3}], v7 offset:{4096*ct}")
        for ks in range(4):
            a(f"s_waitcnt lgkmcnt({6 - 2*ks})")
            a(f"s_add_u32 s11, s12, {2048*ks}")
            for ct in range(2):
                d = 32 + 8 * ks + 4 * ct
                a(f"buffer_store_dwordx4 v[{d}:{d+3}], v6, s[{SRD_WS}:{SRD_WS+3}], s11 offen offset:{1024*ct} sc1")
        a("s_waitcnt vmcnt(0)")
        a.label("L_h_nopack2")
        h_signal("b")
        ts(3)
        ts.x(3, 1)
    if cfg.hord: h_pack(); h_sweep()
    else: h_sweep(); h_pack()
    ts.dump(8, 9)
    a("s_endpgm")

def spin_check(a, name, load_text_list, cond_fn, sleep=1):
    lo, done = a.newlabel(name + "_spin"), a.newlabel(name + "_ok")
    a(f"s_mov_b32 s73, 0")
    a.label(lo)
    cond_fn()
    a(f"s_cbranch_scc1 {done}")
    a("s_add_u32 s73, s73, 1")
    a(f"s_cmp_ge_u32 s73, {SPIN_MAX}")
    a(f"s_cbranch_scc1 {done}")
    a(f"s_sleep {sleep}")
    for t in load_text_list: a(t)
    a("s_waitcnt vmcnt(0)")
    a(f"s_branch {lo}")
    a.label(done)
    a("s_nop 4")

def sspin(a, name, loads, cond_fn, sleep=1):
    lo, done = a.newlabel(name + "_spin"), a.newlabel(name + "_ok")
    a("s_mov_b32 s73, 0")
    a.label(lo)
    for t in loads: a(t)
    a("s_waitcnt lgkmcnt(0)")
    cond_fn()
    a(f"s_cbranch_scc1 {done}")
    a("s_add_u32 s73, s73, 1")
    a(f"s_cmp_lt_u32 s73, {SPIN_MAX}")
    if sleep: a(f"s_sleep {sleep}")
    a(f"s_cbranch_scc1 {lo}")
    a.label(done)

def flag_index(a, d, t, grp):
    a(f"s_mul_i32 s{t}, s{S_NS}, 37")
    a(f"s_lshr_b32 s{t}, s{t}, {8 if grp == 7 else 9}")
    a(f"s_mul_i32 s{t}, s{t}, {32 - grp}")
    a(f"s_add_u32 s{d}, s{t}, s{S_NS}")
    a(f"s_lshl_b32 s{d}, s{d}, 2")

def interleave(a, prim, fill, per):
    fill = list(fill)
    for p in prim:
        p()
        for _ in range(per):
            if fill: a(fill.pop(0))
    for f in fill: a(f)

def p2_rot(a, cfg, d_ffn, d_blk, d_flip):
    if not cfg.rot:
        for d in (d_ffn, d_blk, d_flip): a(f"s_mov_b32 s{d}, 0")
        return
    tab = {2: [0] * 7, 1: list(range(7)), 3: [0, 3, 0, 3, 0, 3, 0], 4: [0, 2, 5, 0, 2, 5, 0], 5: [0, 4, 2, 5, 0, 4, 2], 6: [0, 1, 0, 1, 0, 1, 0], 7: [0, 2, 0, 2, 0, 2, 0]}[cfg.rot]
    word = sum(v << (4 * k) for k, v in enumerate(tab))
    a(f"s_lshl_b32 s11, s{S_NT}, 2")
    a(f"s_lshr_b32 s13, {word:#x}, s11")
    a("s_and_b32 s13, s13, 15")
    a(f"s_and_b32 s11, s{S_SLOT}, 3")
    a("s_lshl_b32 s11, s11, 1")
    a("s_add_u32 s11, s11, s13")
    a("s_cmp_ge_u32 s11, 7")
    a("s_cselect_b32 s13, 7, 0")
    a(f"s_sub_u32 s{d_ffn}, s11, s13")
    for d in (d_blk, d_flip): a(f"s_mov_b32 s{d}, 0")

def slot(reg, n): return R[reg] + 2048 * n
SA = [slot(1, n) for n in range(6)]; SB = [slot(2, n) for n in range(6)]; SC = [slot(0, n) for n in range(6)]
WSLOT = {}
for n in range(6): WSLOT[n] = SA[n]; WSLOT[6 + n] = SB[n]
for n in range(4): WSLOT[12 + n] = SC[n]; WSLOT[16 + n] = SA[n]; WSLOT[20 + n] = SB[n]
WSLOT.update({24: SA[4], 25: SA[5], 26: SB[4], 27: SB[5]})
HTS = SC[4]
PH1, PH2, GA, FXA, SD = SC[0], SC[4], SB[0], SA[0], SC[0]

class Rec:
    def __init__(self): self.L = []
    def __call__(self, t): self.L.append(t)

def ssm_park(kc, K, KP, sQ):
    LR, LI, CR, CI, L16R, L16I, PWR, PWI, L64R, L64I, LWR, LWI, W0R = [KP + k for k in range(13)]
    vTW, vTR, vCB = KP + 16, KP + 17, KP + 18
    ssm_const_calc(kc, K, LR, LI, CR, CI)
    csq(kc, L16R, L16I, LR, LI, K)
    for _ in range(3): csq(kc, L16R, L16I, L16R, L16I, K)
    def powsel(dr, di, br, bi, bit, src):
        cmul(kc, K + 1, K + 2, dr, di, br, bi)
        kc(f"v_and_b32 v{K}, {bit}, v{src}")
        kc(f"v_cmp_ne_u32 vcc, 0, v{K}")
        kc(f"v_cndmask_b32 v{dr}, v{dr}, v{K+1}, vcc")
        kc(f"v_cndmask_b32 v{di}, v{di}, v{K+2}, vcc")
    kc(f"v_mov_b32 v{PWR}, v{CR}"); kc(f"v_mov_b32 v{PWI}, v{CI}")
    powsel(PWR, PWI, L16R, L16I, 32, 0)
    csq(kc, K + 14, K + 15, L16R, L16I, K)
    powsel(PWR, PWI, K + 14, K + 15, 16, 0)
    csq(kc, L64R, L64I, K + 14, K + 15, K)
    kc(f"v_mov_b32 v{K+10}, s{S_W4}")
    kc(f"v_mov_b32 v{LWR}, 1.0"); kc(f"v_mov_b32 v{LWI}, 0")
    powsel(LWR, LWI, L64R, L64I, 1, K + 10)
    csq(kc, K + 14, K + 15, L64R, L64I, K)
    powsel(LWR, LWI, K + 14, K + 15, 2, K + 10)
    csq(kc, K + 14, K + 15, K + 14, K + 15, K)
    kc(f"v_lshrrev_b32 v{K+10}, 4, v0")
    kc(f"v_sub_u32 v{K+10}, s{S_MT}, v{K+10}")
    kc(f"v_add_u32 v{K+11}, -5, v{K+10}")
    kc(f"v_add_u32 v{K+10}, -1, v{K+10}")
    kc(f"v_mov_b32 v{W0R}, 1.0"); kc(f"v_mov_b32 v{W0R+1}, 0")
    kc(f"v_mov_b32 v{W0R+2}, 1.0"); kc(f"v_mov_b32 v{W0R+3}, 0")
    for b in range(3):
        powsel(W0R, W0R + 1, K + 14, K + 15, 1 << b, K + 10)
        if b < 2: powsel(W0R + 2, W0R + 3, K + 14, K + 15, 1 << b, K + 11)
        if b < 2: csq(kc, K + 14, K + 15, K + 14, K + 15, K)
    kc(f"s_add_u32 s36, s{sQ}, {HTS}")
    kc(f"v_bfe_u32 v{K}, v0, 4, 1")
    kc(f"v_lshrrev_b32 v{K+1}, 5, v0")
    kc(f"v_lshl_add_u32 v{K+2}, v{K}, 1, v{K+1}")
    kc(f"v_and_b32 v{K+3}, 15, v0")
    kc(f"v_and_b32 v{vTW}, 6, v{K+3}")
    kc(f"v_lshlrev_b32 v{vTW}, 4, v{vTW}")
    kc(f"v_lshlrev_b32 v{K+4}, 5, v{K+2}")
    kc(f"v_xor_b32 v{vTW}, v{vTW}, v{K+4}")
    kc(f"v_lshl_add_u32 v{vTW}, v{K+3}, 7, v{vTW}")
    kc(f"v_add_u32 v{vTW}, s36, v{vTW}")
    kc(f"v_lshlrev_b32 v{vCB}, 2, v{K+3}")
    kc(f"v_add_u32 v{vCB}, {C_L + 512}, v{vCB}")
    kc(f"v_bfe_u32 v{K+4}, v0, 2, 2")
    kc(f"v_lshl_add_u32 v{K+5}, v{K+1}, 3, v{K+4}")
    kc(f"v_lshlrev_b32 v{vTR}, 7, v{K+5}")
    kc(f"v_lshrrev_b32 v{K+4}, 1, v{K+4}")
    kc(f"v_xor_b32 v{K+4}, v{K+4}, v0")
    kc(f"v_and_b32 v{K+4}, 1, v{K+4}")
    kc(f"v_lshl_add_u32 v{vTR}, v{K+4}, 5, v{vTR}")
    kc(f"v_lshl_add_u32 v{vTR}, v{K}, 4, v{vTR}")
    kc(f"v_bfe_u32 v{K+4}, v0, 1, 1")
    kc(f"v_lshl_add_u32 v{vTR}, v{K+4}, 3, v{vTR}")
    kc(f"v_add_u32 v{vTR}, s36, v{vTR}")
    kc(f"s_lshl_b32 s36, s{S_W4}, 9")
    kc(f"s_add_u32 s36, s36, {STATS_L}")
    kc(f"v_lshl_add_u32 v{KP+19}, v{K+2}, 7, s36")
    vStS = KP + 19
    vAg, vPr, vF = KP + 20, KP + 21, KP + 22
    kc(f"v_lshlrev_b32 v{vAg}, 3, v{K+3}")
    kc(f"v_lshrrev_b32 v{vPr}, 4, v0")
    kc(f"v_mul_u32_u24 v{vPr}, 3584, v{vPr}")
    kc(f"s_lshl_b32 s36, s{S_NS}, 7")
    kc(f"v_add3_u32 v{vPr}, v{vPr}, v{vAg}, s36")
    kc(f"v_add_u32 v{vAg}, {AGG_L}, v{vAg}")
    kc(f"s_lshl_b32 s36, s{S_MT}, 2")
    kc(f"s_add_u32 s36, s36, s{S_W4}")
    kc("s_lshl_b32 s36, s36, 10")
    flag_index(kc, 37, 38, 14)
    kc("s_add_u32 s36, s36, s37")
    kc(f"s_add_u32 s36, s36, {WS_FLAG + 512:#x}")
    kc(f"v_mov_b32 v{vF}, s36")

def gen_loader(a, cfg, ts):
    a.label("L_loader")
    a("s_setprio 3")
    vm = VM(a)
    vXe, vXo, vW, vB = 1, 2, 3, 4
    vFv, vP, vO, vPQ = 5, 6, 7, 8
    vWd, vCe, vCo, vCh = 9, 10, 11, 12
    vRf, vRh = 13, 14
    vA, vC = 24, 25
    vT = 15
    ACC, CA, RD = 27, 28, 44
    STG = 64
    CF = 144
    SACC = 80
    XRAW = CF + 64
    KP = XRAW + 8
    sGrp = [28, 29, 30, 31, 36, 37, 21]
    SP = ['', ' sc1'][cfg.spol]
    sMX, sMW, sMB, sMP = 72, 74, 75, 70
    sPerm, sSX, sSW = 68, 69, 15
    sRF = 14
    AP = ['', ' sc1', ' sc1 nt', ' sc0 sc1', ' sc0', ' nt'][cfg.apol]
    OP = ['', ' sc1', ' nt', ' sc1 nt'][cfg.opol]
    polx = " nt" if cfg.polx else ""
    polw = " nt" if cfg.polw else ""
    a(f"v_lshrrev_b32 v{vA}, 3, v0")
    a(f"v_and_b32 v{vC}, 7, v0")
    a(f"v_lshrrev_b32 v{vT+2}, 1, v{vA}")
    a(f"s_lshl_b32 s11, s{S_W4}, 4")
    a(f"v_add_u32 v{vT}, s11, v{vA}")
    a(f"v_mul_u32_u24 v{vW}, 3584, v{vT}")
    a(f"v_and_b32 v{vT+4}, 1, v{vT+2}")
    a(f"v_lshlrev_b32 v{vT+4}, 2, v{vT+4}")
    a(f"v_xor_b32 v{vT+4}, v{vC}, v{vT+4}")
    a(f"v_lshl_add_u32 v{vW}, v{vT+4}, 4, v{vW}")
    a(f"s_lshl_b32 s11, s{S_NS}, 7")
    a(f"v_add_u32 v{vW}, s11, v{vW}")
    vW1 = 12
    a(f"v_xor_b32 v{vW1}, 32, v{vW}")
    a(f"s_lshl_b32 s11, s{S_MT}, 8")
    a(f"s_lshl_b32 s12, s{S_W4}, 6")
    a("s_add_u32 s11, s11, s12")
    a(f"v_lshrrev_b32 v{vT}, 2, v{vA}")
    a(f"v_and_b32 v{vT+1}, 3, v{vA}")
    a(f"v_lshl_add_u32 v{vT}, v{vT}, 4, v{vT+1}")
    a(f"v_add_u32 v{vT}, s11, v{vT}")
    a(f"v_mul_u32_u24 v{vXe}, 896, v{vT}")
    a(f"v_xor_b32 v{vT+3}, v{vC}, v{vT+2}")
    a(f"v_lshl_add_u32 v{vXe}, v{vT+3}, 4, v{vXe}")
    a(f"v_xor_b32 v{vXo}, 64, v{vXe}")
    a(f"s_and_b32 s12, s{S_W4}, 1")
    a(f"s_lshl_b32 s11, s{S_NS}, 4")
    a(f"s_lshl_b32 s13, s12, 3")
    a("s_add_u32 s11, s11, s13")
    a(f"v_add_u32 v{vT}, s11, v{vA}")
    a(f"v_mul_u32_u24 v{vB}, 896, v{vT}")
    a(f"v_lshl_add_u32 v{vB}, v{vT+3}, 4, v{vB}")
    a("s_lshl_b32 s13, s12, 6")
    a(f"v_xor_b32 v{vB}, s13, v{vB}")
    a(f"s_lshl_b32 s{sMX}, s{S_W4}, 13")
    a(f"s_lshl_b32 s{sMW}, s{S_W4}, 11")
    a(f"s_lshl_b32 s{sMB}, s{S_W4}, 10")
    a(f"s_mul_i32 s{sMP}, s{S_W4}, {Q}")
    perms = cfg.perms
    words = [sum(p[k] << (4 * k) for k in range(7)) for p in perms]
    ng = len(words)
    a(f"s_mov_b32 s{sPerm}, {words[0]:#x}")
    if ng > 1:
        if cfg.slab:
            a(f"s_add_u32 s11, s{S_SLOT}, s{S_XCD}")
        else:
            a(f"s_and_b32 s11, s{S_SLOT}, 3")
            a(f"s_add_u32 s11, s11, s{S_NT}")
        if ng == 3:
            a("s_mul_i32 s13, s11, 43")
            a("s_lshr_b32 s13, s13, 7")
            a("s_mul_i32 s13, s13, 3")
            a("s_sub_u32 s11, s11, s13")
        else:
            a(f"s_and_b32 s11, s11, {ng-1}")
        for g in range(1, ng):
            a(f"s_cmp_eq_u32 s11, {g}")
            a(f"s_cmov_b32 s{sPerm}, {words[g]:#x}")
    ts.x(1, 1)
    a("s_waitcnt lgkmcnt(0)")
    ts.x(1, 2)
    if cfg.tlb:
        a(f"v_mov_b32 v40, s{P_X}")
        a(f"v_mov_b32 v41, s{P_X+1}")
        for ln, p in enumerate([P_WG, P_WU, P_BRE, P_BIM, P_WD, P_CRE, P_CIM, P_WS][:cfg.tlb], 1):
            a(f"v_writelane_b32 v40, s{p}, {ln}")
            a(f"v_writelane_b32 v41, s{p+1}, {ln}")
        a(f"s_mov_b64 exec, {(1 << (cfg.tlb + 1)) - 1:#x}")
        a("global_load_dword v62, v[40:41], off")
        a("s_mov_b64 exec, -1")
    srd(a, SRD_A, P_WG, 448 * 3584)
    srd(a, SRD_X, P_X, 2048 * 896)
    srd(a, SRD_B, P_WU, 448 * 3584)
    a(f"s_cmp_ge_u32 s{S_W4}, 2")
    srd_sel(a, SRD_C, P_BIM, P_BRE, 448 * 896)

    thr = [None]
    def dma(vm, tag, voff, srdn, sbase, soff, m0base, m0off, pol=""):
        a(f"s_add_u32 m0, s{m0base}, {m0off}")
        a(f"s_add_u32 s11, s{sbase}, {soff}")
        if thr[0] is not None and len(vm.q) > thr[0]:
            a(f"s_waitcnt vmcnt({thr[0]})")
            vm.q = vm.q[-thr[0]:]
        vm.issue(tag, f"buffer_load_dwordx4 v{voff}, s[{srdn}:{srdn+3}], s11 offen{pol} lds")
    def issue_ops(s):
        r = R[s % 3]
        ops = []
        def pre():
            a(f"s_bfe_u32 s{sSX}, s{sPerm}, {(4 << 16) | (4 * s):#x}")
            a(f"s_mul_i32 s{sSW}, s{sSX}, {64*3584}")
            a(f"s_lshl_b32 s{sSX}, s{sSX}, 7")
        def mk(*args): return lambda: dma(vm, ('st', s), *args)
        L = []
        for i in range(2): L.append(mk((vW, vW1)[i], SRD_A, sSW, i * 8 * 3584, sMW, r + OFF_WG + i * 1024, polw))
        for j in range(4): L.append(mk(vXo if j & 1 else vXe, SRD_X, sSX, (32 * (j >> 2) + 4 * (j & 3)) * 896, sMX, r + j * 1024, polx))
        for i in range(2): L.append(mk((vW, vW1)[i], SRD_B, sSW, i * 8 * 3584, sMW, r + OFF_WU + i * 1024, polw))
        for j in range(4, 8): L.append(mk(vXo if j & 1 else vXe, SRD_X, sSX, (32 * (j >> 2) + 4 * (j & 3)) * 896, sMX, r + j * 1024, polx))
        L.append(mk(vB, SRD_C, sSX, 0, sMB, r + OFF_BB, polw))
        first = L[0]
        L[0] = lambda: (pre(), first())
        return L
    SRD_WD, SRD_CC, sBlk, sFlip, P_DSK2 = 32, 24, 16, 17, 38
    def w_ops(ps):
        L = []
        for p in ps:
            for n in range(2):
                def op(p=p, n=n):
                    if 12 <= p < 22:
                        d = STG + (p - 12) * 8 + 4 * n
                        a(f"s_add_u32 s11, s{sGrp[p//4]}, {(32 * ((p % 4) >> 1) + 16 * n + 8 * (p & 1)) * 896}")
                        vm.issue(('w', p), f"buffer_load_dwordx4 v[{d}:{d+3}], v{vWd}, s[{SRD_WD}:{SRD_WD+3}], s11 offen")
                    else:
                        dma(vm, ('w', p), vWd, SRD_WD, sGrp[p//4], (32 * ((p % 4) >> 1) + 16 * n + 8 * (p & 1)) * 896, sMP, WSLOT[p] + n * 1024)
                L.append(op)
        return L
    sCB = [68, 69, 15]
    sCF, sCH = 16, 17
    def cfrag(p, lc): return CF + 8 * p + 4 * lc
    def c_ops(b):
        L = []
        for p in (range(4 * b, 4 * b + 4) if b < 3 else (12, 13)):
            for lc in range(2):
                def op(p=p, lc=lc):
                    d = cfrag(p, lc)
                    sb, so = (sCF, 2048 * p) if p < 12 else (sCH, 2048 * (p - 12))
                    if cfg.crot and p < 12: sb, so = sCB[p // 4], 2048 * (p % 4)
                    a(f"s_add_u32 s11, s{sb}, {so}")
                    vm.issue(('c', b), f"buffer_load_dwordx4 v[{d}:{d+3}], v{(vCe, vCo)[lc]}, s[{SRD_WS}:{SRD_WS+3}], s11 offen sc1")
                L.append(op)
        return L
    def w_write(ps):
        vm.wait(('w', ps[-1]))
        base = WSLOT[ps[0]]
        a(f"v_add_u32 v{vT+4}, {base}, v{vPQ}")
        for p in ps:
            for n in range(2):
                d = STG + (p - 12) * 8 + 4 * n
                a(f"ds_write_b128 v{vT+4}, v[{d}:{d+3}] offset:{WSLOT[p] - base + 1024*n}")
    def colsum_reads(s):
        r = R[s % 3]
        a(f"s_add_u32 s11, s{sMW}, {r + OFF_WG}")
        a(f"v_add_u32 v{vT}, s11, v{vP}")
        a(f"s_add_u32 s11, s{sMB}, {r + OFF_BB}")
        a(f"v_add_u32 v{vT+1}, s11, v{vP}")
        a(f"v_xor_b32 v{vT+2}, 32, v{vT}")
        a(f"ds_read_b128 v[{RD}:{RD+3}], v{vT}")
        a(f"ds_read_b128 v[{RD+4}:{RD+7}], v{vT+2} offset:1024")
        a(f"ds_read_b128 v[{RD+8}:{RD+11}], v{vT} offset:8192")
        a(f"ds_read_b128 v[{RD+12}:{RD+15}], v{vT+2} offset:9216")
        a(f"ds_read_b128 v[{RD+16}:{RD+19}], v{vT+1}")
    def colsum_ops():
        L = ["s_waitcnt lgkmcnt(0)"]
        for n in range(4):
            for d in range(4):
                w = RD + 4 * n + d
                ac = CA + (n >> 1) * 8 + 2 * d
                L.append(f"v_lshlrev_b32 v{vT+2}, 16, v{w}")
                L.append(f"v_and_b32 v{vT+3}, s71, v{w}")
                L.append(f"v_add_f32 v{ac}, v{ac}, v{vT+2}")
                L.append(f"v_add_f32 v{ac+1}, v{ac+1}, v{vT+3}")
        for d in range(4):
            w = RD + 16 + d
            L.append(f"v_lshlrev_b32 v{vT+2}, 16, v{w}")
            L.append(f"v_and_b32 v{vT+3}, s71, v{w}")
            L.append(f"v_add_f32 v{vT+2}, v{vT+2}, v{vT+3}")
            L.append(f"v_add_f32 v{ACC}, v{ACC}, v{vT+2}")
        return L

    stage_ops = {}
    cdone = set()
    def tok_ops(toks):
        L = []
        for t in toks:
            if t[0] == 's':
                st = int(t[1])
                if st not in stage_ops: stage_ops[st] = issue_ops(st)
                lo, hi = (0, 13) if ':' not in t else map(int, t.split(':')[1].split('-'))
                L += stage_ops[st][lo:hi]
            elif t[0] == 'w': L += w_ops([int(t[1:])])
            elif t[0] == 'c':
                lo, hi = (0, 8) if ':' not in t else map(int, t.split(':')[1].split('-'))
                L += c_ops(int(t[1]))[lo:hi]
                cdone.add(int(t[1]))
            else: L.append(lambda t=t: special(t))
        return L
    def run_tokens(toks):
        for o in tok_ops(toks): o()
    def special(t):
        if True:
            if t == 'put':
                vm.wait('stats')
                a(f"s_lshl_b32 s11, s{S_W4}, 9")
                a(f"s_add_u32 s11, s11, {STATS_L}")
                a(f"v_lshl_add_u32 v{vT+4}, v0, 3, s11")
                a(f"ds_write_b64 v{vT+4}, v[20:21]")
                a(f"v_lshlrev_b32 v{vT+4}, 3, v0")
                a(f"v_add_u32 v{vT+4}, {ST2_L}, v{vT+4}")
                a(f"ds_write_b64 v{vT+4}, v[22:23]")
            elif t == 'e':
                a(f"s_add_u32 s12, s41, {16*896}")
                vm.issue('e', f"buffer_load_dwordx4 v[{XRAW}:{XRAW+3}], v20, s[{SRD_X}:{SRD_X+3}], s41 offen")
                vm.issue('e', f"buffer_load_dwordx4 v[{XRAW+4}:{XRAW+7}], v20, s[{SRD_X}:{SRD_X+3}], s12 offen")
                vm.issue('e', f"global_load_ushort v{KP+23}, v21, s[{P_DSK2}:{P_DSK2+1}]")
            elif t == 'm':
                a(f"v_lshlrev_b32 v{vP}, 4, v0")
                a("s_lshl_b32 s12, s2, 2")
                a(f"s_add_u32 s12, s12, s{S_W4}")
                a("s_lshl_b32 s12, s12, 10")
                a(f"s_add_u32 s12, s12, {192*3584}")
                vm.issue('m', f"buffer_load_dwordx4 v[140:143], v{vP}, s[{SRD_A}:{SRD_A+3}], s12 offen")
                vm.issue('m', f"buffer_load_dwordx4 v[140:143], v{vP}, s[{SRD_B}:{SRD_B+3}], s12 offen")
                if cfg.mw:
                    a(f"s_sub_u32 s12, s12, {192*3584}")
                    a("s_lshl_b32 s12, s12, 1")
                    vm.issue('m', f"buffer_load_dwordx4 v[140:143], v{vP}, s[{SRD_WD}:{SRD_WD+3}], s12 offen")
                    vm.issue('m', f"buffer_load_dwordx4 v[140:143], v{vP}, s[{SRD_WD}:{SRD_WD+3}], s12 offen offset:1024")
                a(f"s_and_b32 s12, s{S_W4}, 1")
                a("s_lshl_b32 s11, s2, 1")
                a("s_add_u32 s12, s12, s11")
                a("s_lshl_b32 s12, s12, 10")
                vm.issue('m', f"buffer_load_dwordx4 v[140:143], v{vP}, s[{SRD_C}:{SRD_C+3}], s12 offen")
            elif t == 'n':
                a("s_lshl_b32 s12, s2, 2")
                a(f"s_add_u32 s12, s12, s{S_W4}")
                a("s_lshl_b32 s12, s12, 8")
                a(f"s_add_u32 s12, s12, {384*3584}")
                a("s_mov_b64 exec, 0xffff")
                vm.issue('m', f"buffer_load_dwordx4 v[140:143], v{vP}, s[{SRD_A}:{SRD_A+3}], s12 offen")
                vm.issue('m', f"buffer_load_dwordx4 v[140:143], v{vP}, s[{SRD_B}:{SRD_B+3}], s12 offen")
                a("s_mov_b64 exec, -1")
            elif t == 'k':
                a("s_waitcnt lgkmcnt(0)")
            elif t == 'init':
                a(f"v_mov_b32 v26, 0")
                vm.issue('init', f"global_load_dword v5, v26, s[{P_DBG}:{P_DBG+1}] sc1")
            elif t == 'fetch':
                vm.wait('init')
                def cond():
                    a(f"v_readfirstlane_b32 s11, v5")
                    a(f"s_cmp_ge_u32 s11, {INIT_N}")
                spin_check(a, "L_init", [f"global_load_dword v5, v26, s[{P_DBG}:{P_DBG+1}] sc1"], cond, 8)
                if cfg.ts == 1 and cfg.tsset == 3: a(f"s_add_u32 s{TS0+18}, s73, 1")
                if cfg.crot:
                    a(f"s_and_b32 s11, s{S_SLOT}, 3")
                    a("s_lshl_b32 s11, s11, 1")
                    a("s_lshr_b32 s12, 0x924, s11")
                    for b in range(3):
                        a(f"s_bfe_u32 s11, s12, {(2 << 16) | (2 * b):#x}")
                        a("s_lshl_b32 s11, s11, 13")
                        a(f"s_add_u32 s{sCB[b]}, s11, s{sCF}")
                a(f"s_lshl_b32 s11, s{S_MT}, 8")
                a(f"s_lshl_b32 s12, s{S_W4}, 6")
                a("s_add_u32 s11, s11, s12")
                a(f"v_add_lshl_u32 v5, v0, s11, 3")
                a(f"s_lshl_b32 s12, s{S_M64}, 6")
                a(f"v_add_lshl_u32 v26, v0, s12, 3")
                a(f"s_mov_b32 s11, {WS_STATS:#x}")
                vm.issue('stats', f"buffer_load_dwordx2 v[20:21], v5, s[{SRD_WS}:{SRD_WS+3}], s11 offen sc1")
                vm.issue('stats', f"buffer_load_dwordx2 v[22:23], v26, s[{SRD_WS}:{SRD_WS+3}], s11 offen sc1")
            else: raise ValueError(t)
    win = cfg.win
    if cfg.n6 >= 0: win[cfg.n6] = win[cfg.n6] + ["n"]
    run_tokens([f"s0:0-{cfg.s0a}"])
    if cfg.s0a == 13:
        ts(1)
        ts.x(1, 6)
        run_tokens(win.get(-1, []))
        a("s_setprio 0")
    a(f"s_and_b32 s12, s{S_W4}, 1")
    a(f"v_lshlrev_b32 v{vP}, 4, v0")
    a(f"v_add_u32 v{vPQ}, s{sMP}, v{vP}")
    a(f"s_mul_i32 s14, s{S_W4}, 448")
    a(f"v_add_u32 v{vT}, s14, v{vA}")
    a(f"v_mul_u32_u24 v{vWd}, 896, v{vT}")
    a(f"v_lshl_add_u32 v{vWd}, v{vT+4}, 4, v{vWd}")
    a(f"s_lshl_b32 s14, s{S_NT}, 7")
    a(f"v_add_u32 v{vWd}, s14, v{vWd}")
    a(f"v_and_b32 v{vT+1}, 3, v0")
    a("s_mov_b32 s71, 0xffff0000")
    srd(a, SRD_WS, P_WS, WS_SIZE)
    a(f"s_mov_b64 s[{P_DSK2}:{P_DSK2+1}], s[{P_DSK}:{P_DSK+1}]")
    srd(a, SRD_WD, P_WD, 1792 * 896)
    p2_rot(a, cfg, sRF, sBlk, sFlip)
    a(f"s_lshl_b32 s11, s{S_M64}, 1")
    a("s_add_u32 s40, s11, s12")
    a("s_lshl_b32 s12, s40, 5")
    a(f"v_lshrrev_b32 v{vT}, 2, v0")
    a(f"v_add_u32 v{vT}, s12, v{vT}")
    a(f"v_mul_u32_u24 v{vT}, 896, v{vT}")
    a(f"v_lshl_add_u32 v20, v{vT+1}, 4, v{vT}")
    a(f"v_lshrrev_b32 v{vT+2}, 5, v0")
    a(f"v_lshl_add_u32 v{vT}, v{vT+2}, 4, s12")
    a(f"s_lshr_b32 s13, s{S_W4}, 1")
    a("s_lshl_b32 s12, s13, 5")
    a(f"s_lshl_b32 s11, s{S_NT}, 6")
    a("s_add_u32 s11, s11, s12")
    a("s_lshl_b32 s41, s11, 1")
    a(f"v_and_b32 v{vT+3}, 31, v0")
    a(f"v_add_u32 v{vT+1}, s11, v{vT+3}")
    a(f"v_mul_u32_u24 v{vT}, 448, v{vT}")
    a(f"v_add_lshl_u32 v{vO}, v{vT}, v{vT+1}, 2")
    a(f"v_lshlrev_b32 v21, 1, v{vT+1}")
    a("s_lshl_b32 s12, s13, 10")
    a(f"v_add_u32 v{vCe}, s12, v{vP}")
    a(f"v_xor_b32 v{vCo}, 1024, v{vCe}")
    a(f"s_lshl_b32 s11, s{S_NT}, 1")
    a("s_add_u32 s11, s11, s13")
    a(f"s_mul_i32 s11, s11, {28*2048}")
    a(f"s_add_u32 s11, s11, {WS_CP:#x}")
    a(f"s_and_b32 s12, s{S_W4}, 1")
    a(f"s_lshl_b32 s{sCF}, s12, 15")
    a(f"s_add_u32 s{sCF}, s{sCF}, s11")
    a(f"s_lshl_b32 s{sCH}, s12, 12")
    a(f"s_add_u32 s{sCH}, s{sCH}, s11")
    a(f"s_add_u32 s{sCH}, s{sCH}, {12*2048}")
    ts.x(1, 8)
    LR, LI, CR, CI, L16R, L16I, PWR, PWI, L64R, L64I, LWR, LWI, W0R = [KP + k for k in range(13)]
    vTW, vTR, vCB, vStS, vAg, vPr, vF = [KP + k for k in range(16, 23)]
    a(f"s_lshl_b32 s21, s{S_NS}, 7")
    a(f"s_mul_i32 s22, s{S_MT}, 3584")
    a("s_add_u32 s22, s22, s21")
    a(f"s_add_u32 s22, s22, {WS_AGG - AGG_L:#x}")
    a(f"s_mov_b32 s23, {WS_AGG:#x}")
    a(f"s_mov_b32 s20, {WS_AGG + 4*3584:#x}")
    a(f"s_lshl_b32 s18, s{S_M64}, 10")
    a(f"s_and_b32 s11, s{S_W4}, 1")
    a("s_lshl_b32 s11, s11, 7")
    a("s_add_u32 s18, s18, s11")
    a(f"s_add_u32 s18, s18, {WS_FLAG + 512:#x}")
    a(f"s_lshl_b32 s11, s{S_MT}, 2")
    a(f"s_add_u32 s11, s11, s{S_W4}")
    a(f"s_mul_i32 s19, s11, {2*RT_BYTES}")
    a(f"s_lshl_b32 s11, s{S_NS}, 10")
    a("s_add_u32 s19, s19, s11")
    a(f"s_add_u32 s19, s19, {56*1024}")
    for g in range(7):
        a(f"s_add_u32 s12, s{sRF}, {g}")
        a("s_cmp_ge_u32 s12, 7")
        a("s_cselect_b32 s13, 7, 0")
        a("s_sub_u32 s12, s12, s13")
        a(f"s_mul_i32 s{sGrp[g]}, s12, {64*896}")
    a(f"s_add_u32 s11, s{sMX}, {R[2]}")
    a(f"v_add_u32 v{vT+4}, s11, v{vP}")
    kparts = {}
    if cfg.s0a < 13:
        run_tokens([f"s0:{cfg.s0a}-13"])
        ts(1)
        ts.x(1, 6)
        run_tokens(win.get(-1, []))
    a(f"s_setprio {cfg.wprio}")
    for s in range(7):
        vm.wait(('st', s))
        ts.x(2, 1 + s)
        a("s_barrier")
        ts.x(3, 1 + s)
        if s == 0: ts(2)
        if s == 0:
            for k in range(6): a(f"ds_read_b128 v[{KP+4*k}:{KP+4*k+3}], v{vT+4} offset:{1024*k}")
        toks = [t for t in win.get(s, []) if not t.startswith("cs")]
        if s == 6:
            if cfg.cfirst: toks = [t for t in toks if t[0] == 'c'] + [t for t in toks if t[0] != 'c']
            run_tokens(toks[:cfg.w6pre])
            a("s_waitcnt lgkmcnt(0)")
            a("s_barrier")
            a("s_setprio 0")
            run_tokens(toks[cfg.w6pre:])
        else:
            run_tokens(toks)
            if s == 5: a("s_waitcnt lgkmcnt(0)")
    ts.x(2, 8)
    a("s_barrier")
    ts(3)
    ts.x(3, 8)
    a(f"v_bfe_u32 v{vT}, v0, 4, 1")
    a(f"v_lshlrev_b32 v{vT+2}, 11, v{vT}")
    a(f"v_lshrrev_b32 v{vT}, 5, v0")
    a(f"v_lshl_add_u32 v{vT+2}, v{vT}, 8, v{vT+2}")
    a(f"v_and_b32 v{vT}, 15, v0")
    a(f"v_lshl_add_u32 v{vT+2}, v{vT}, 4, v{vT+2}")
    a(f"s_add_u32 s11, s{sMP}, {SD}")
    a(f"v_add_u32 v{vT+2}, s11, v{vT+2}")
    vm.wait(('w', 11), "lgkmcnt(0)")
    a("s_barrier")
    X, Y, ST = 32, 48, CF
    HR, HI, T1, T2, CBR, CBI, G0, G1, QR, QI = 20, 21, 22, 23, 24, 25, 26, 28, 30, 31
    for k in range(8): a(f"ds_read_b128 v[{X+4*k}:{X+4*k+3}], v{vT+2} offset:{(k>>2)*4096 + (k&3)*512}")
    a(f"ds_read_b32 v{CBR}, v{vCB}")
    a(f"ds_read_b32 v{CBI}, v{vCB} offset:64")
    for k in range(8): a(f"ds_read_b128 v[{ST+4*k}:{ST+4*k+3}], v{vStS} offset:{16*k}")
    a(f"s_setprio {cfg.eprio}")
    a(f"v_lshrrev_b32 v1, 4, v0")
    a(f"v_sub_u32 v1, s{S_MT}, v1")
    a(f"v_cmp_le_i32 s[56:57], 1, v1")
    a(f"v_cmp_le_i32 s[58:59], 5, v1")
    a(f"v_lshlrev_b32 v5, 16, v{KP+23}")
    a(f"v_mov_b32 v3, v{vF}")
    vF = 3
    a("s_waitcnt lgkmcnt(0)")
    side = {}
    for r in range(16):
        if r in side: side[r]()
        m, rs = ST + 2 * r, ST + 2 * r + 1
        a(f"v_fma_f32 v{X+r}, -v{m}, v{CBR}, v{X+r}")
        a(f"v_fma_f32 v{Y+r}, -v{m}, v{CBI}, v{Y+r}")
        a(f"v_mul_f32 v{X+r}, v{X+r}, v{rs}")
        a(f"v_mul_f32 v{Y+r}, v{Y+r}, v{rs}")
        if r >= 1:
            pr, pi = (X, Y) if r == 1 else (HR, HI)
            a(f"v_fma_f32 v{T1}, -v{LI}, v{pi}, v{X+r}")
            a(f"v_fma_f32 v{T2}, v{LI}, v{pr}, v{Y+r}")
            a(f"v_fma_f32 v{HR}, v{LR}, v{pr}, v{T1}")
            a(f"v_fma_f32 v{HI}, v{LR}, v{pi}, v{T2}")
    z = CF
    a(f"v_mov_b32 v{z}, v{HR}"); a(f"v_mov_b32 v{z+1}, v{HI}")
    csq(a, z + 8, z + 9, L16R, L16I, z + 10)
    a(f"v_permlane32_swap_b32 v{HR}, v{z}")
    a(f"v_permlane32_swap_b32 v{HI}, v{z+1}")
    a(f"v_fma_f32 v{z}, -v{L16I}, v{HI}, v{z}")
    a(f"v_fma_f32 v{z+1}, v{L16I}, v{HR}, v{z+1}")
    a(f"v_fmac_f32 v{z}, v{L16R}, v{HR}")
    a(f"v_fmac_f32 v{z+1}, v{L16R}, v{HI}")
    a(f"v_mov_b32 v{z+2}, v{z}"); a(f"v_mov_b32 v{z+3}, v{z+1}")
    a(f"s_lshl_b32 s11, s{S_W4}, 7")
    a(f"v_add_u32 v{z+5}, s11, v{vAg}")
    a(f"v_permlane16_swap_b32 v{z}, v{z+2}")
    a(f"v_permlane16_swap_b32 v{z+1}, v{z+3}")
    a(f"v_fma_f32 v{z+2}, -v{z+9}, v{z+1}, v{z+2}")
    a(f"v_fma_f32 v{z+3}, v{z+9}, v{z}, v{z+3}")
    a(f"v_fmac_f32 v{z+2}, v{z+8}, v{z}")
    a(f"v_fmac_f32 v{z+3}, v{z+8}, v{z+1}")
    a(f"ds_write_b64 v{z+5}, v[{z+2}:{z+3}]")
    a("s_waitcnt lgkmcnt(0)")
    ts.x(2, 9)
    a(f"s_setprio {cfg.lprio}")
    a("s_barrier")
    ts(4)
    E = CF + 16
    for i in range(4): a(f"ds_read_b64 v[{E+2+2*i}:{E+3+2*i}], v{vAg} offset:{128*i}")
    a(f"v_mov_b32 v{E}, 0")
    a(f"v_mov_b32 v{E+1}, 0")
    a(f"v_and_b32 v{z+4}, 16, v0")
    a(f"v_cmp_ne_u32 s[12:13], 0, v{z+4}")
    for i in range(1, 4):
        e, p = E + 2 + 2 * i, E + 2 * i
        a(f"s_waitcnt lgkmcnt({3 - i})")
        a(f"v_fma_f32 v{e}, -v{L64I}, v{p+1}, v{e}")
        a(f"v_fma_f32 v{e+1}, v{L64I}, v{p}, v{e+1}")
        a(f"v_fmac_f32 v{e}, v{L64R}, v{p}")
        a(f"v_fmac_f32 v{e+1}, v{L64R}, v{p+1}")
    a(f"s_cmp_lg_u32 s{S_W4}, 0")
    a("s_cbranch_scc1 L_l_nopub")
    e = E + 8
    a(f"v_cmp_eq_u32 vcc, -1, v{e}")
    a(f"v_mov_b32 v{T1}, 0x7fc00000")
    a(f"v_cndmask_b32 v{e}, v{e}, v{T1}, vcc")
    a("s_mov_b64 exec, 0xffff")
    a(f"buffer_store_dwordx2 v[{e}:{e+1}], v{vAg}, s[{SRD_WS}:{SRD_WS+3}], s22 offen sc1")
    a("s_mov_b64 exec, -1")
    ts(5)
    a.label("L_l_nopub")
    a(f"v_cmp_lt_u32 vcc, 31, v0")
    a(f"v_cndmask_b32 v{z}, 0, v{z}, s[12:13]")
    a(f"v_cndmask_b32 v{z+1}, 0, v{z+1}, s[12:13]")
    a(f"v_fma_f32 v{HR}, -v{L16I}, v{z+1}, v{HR}")
    a(f"v_fma_f32 v{HI}, v{L16I}, v{z}, v{HI}")
    a(f"v_fmac_f32 v{HR}, v{L16R}, v{z}")
    a(f"v_fmac_f32 v{HI}, v{L16R}, v{z+1}")
    a(f"v_cndmask_b32 v{z}, v{z}, v{HR}, vcc")
    a(f"v_cndmask_b32 v{z+1}, v{z+1}, v{HI}, vcc")
    cmul(a, HR, HI, z, z + 1, CR, CI)
    a(f"s_bitcmp1_b32 s{S_W4}, 0")
    a("s_cselect_b64 vcc, -1, 0")
    a(f"v_cndmask_b32 v{QR}, v{E}, v{E+2}, vcc")
    a(f"v_cndmask_b32 v{QI}, v{E+1}, v{E+3}, vcc")
    a(f"v_cndmask_b32 v{T1}, v{E+4}, v{E+6}, vcc")
    a(f"v_cndmask_b32 v{T2}, v{E+5}, v{E+7}, vcc")
    a(f"s_bitcmp1_b32 s{S_W4}, 1")
    a("s_cselect_b64 vcc, -1, 0")
    a(f"v_cndmask_b32 v{QR}, v{QR}, v{T1}, vcc")
    a(f"v_cndmask_b32 v{QI}, v{QI}, v{T2}, vcc")
    ts.x(2, 10)
    thr[0] = cfg.thr
    lds = [f"buffer_load_dwordx2 v[{G0}:{G0+1}], v{vPr}, s[{SRD_WS}:{SRD_WS+3}], s23 offen sc1",
           f"buffer_load_dwordx2 v[{G1}:{G1+1}], v{vPr}, s[{SRD_WS}:{SRD_WS+3}], s20 offen sc1"]
    up = Rec()
    for r in range(16):
        up(f"v_mul_f32 v{T1}, v{CI}, v{Y+r}")
        up(f"v_mul_f32 v{T2}, v{CI}, v{X+r}")
        up(f"v_fma_f32 v{X+r}, v{CR}, v{X+r}, -v{T1}")
        up(f"v_fma_f32 v{Y+r}, v{CR}, v{Y+r}, v{T2}")
    vRd, vOne = 4, 2
    a(f"s_lshl_b32 s11, s{S_W4}, 2")
    a(f"s_add_u32 s11, s11, {CNT_L + 16}")
    a(f"v_mov_b32 v{vRd}, s11")
    a(f"v_mov_b32 v{vOne}, 1")
    thr[0] = None
    co = w_ops(range(22, 28)) + (c_ops(0) if cfg.c0early else [])
    interleave(a, co[:cfg.c1], up.L, 4)
    if cfg.agpos == 0:
        for t in lds: vm.issue('ag', t)
    w_write([12, 13, 14, 15])
    a(f"ds_write_b32 v{vRd}, v{vOne}")
    XV, STT, DS = 64, 80, 5
    TT = SACC + 32
    vHW = 1
    a(f"v_add_u32 v{vHW}, {HTS}, v{vPQ}")
    a(f"ds_write_b128 v{vHW}, v[{XRAW}:{XRAW+3}]")
    a(f"ds_write_b128 v{vHW}, v[{XRAW+4}:{XRAW+7}] offset:1024")
    a(f"v_lshrrev_b32 v{vT+3}, 5, v0")
    a(f"v_lshlrev_b32 v{vT+2}, 10, v{vT+3}")
    a(f"v_and_b32 v{vT}, 31, v0")
    a(f"v_lshl_add_u32 v{vT+2}, v{vT}, 1, v{vT+2}")
    a(f"s_add_u32 s11, s{sMP}, {HTS}")
    a(f"v_add_u32 v{vT+2}, s11, v{vT+2}")
    for r in range(16): a(f"ds_read_u16 v{XV+r}, v{vT+2} offset:{64*r}")
    if cfg.agpos == 1:
        for t in lds: vm.issue('ag', t)
    w_write([16, 17])
    def wrest():
        w_write([18, 19])
        w_write([20, 21])
        a(f"v_mov_b32 v{T1}, 2")
        a(f"ds_write_b32 v{vRd}, v{T1}")
    if not cfg.wl: wrest()
    co = co[cfg.c1:]
    ts(8)
    vm.wait('ag')
    def cond():
        a(f"v_cmp_eq_u32 vcc, -1, v{G0}")
        a("s_and_b64 s[48:49], vcc, s[56:57]")
        a(f"v_cmp_eq_u32 vcc, -1, v{G1}")
        a("s_and_b64 s[50:51], vcc, s[58:59]")
        a("s_or_b64 s[48:49], s[48:49], s[50:51]")
        a("s_cmp_eq_u64 s[48:49], 0")
    spin_check(a, "L_agg", lds, cond, 2)
    ts(6)
    SR, SI = CBR, CBI
    cmul(a, SR, SI, G0, G0 + 1, W0R, W0R + 1)
    cmul(a, T1, T2, G1, G1 + 1, W0R + 2, W0R + 3)
    a(f"v_cndmask_b32 v{SR}, 0, v{SR}, s[56:57]")
    a(f"v_cndmask_b32 v{SI}, 0, v{SI}, s[56:57]")
    a(f"v_cndmask_b32 v{T1}, 0, v{T1}, s[58:59]")
    a(f"v_cndmask_b32 v{T2}, 0, v{T2}, s[58:59]")
    a(f"v_add_f32 v{SR}, v{SR}, v{T1}")
    a(f"v_add_f32 v{SI}, v{SI}, v{T2}")
    for sw in ("v_permlane32_swap_b32", "v_permlane16_swap_b32"):
        a(f"v_mov_b32 v{T1}, v{SR}")
        a(f"v_mov_b32 v{T2}, v{SI}")
        a(f"{sw} v{SR}, v{T1}")
        a(f"{sw} v{SI}, v{T2}")
        a(f"v_add_f32 v{SR}, v{SR}, v{T1}")
        a(f"v_add_f32 v{SI}, v{SI}, v{T2}")
    a(f"v_fmac_f32 v{QR}, v{LWR}, v{SR}")
    a(f"v_fmac_f32 v{QI}, v{LWR}, v{SI}")
    a(f"v_fma_f32 v{QR}, -v{LWI}, v{SI}, v{QR}")
    a(f"v_fmac_f32 v{QI}, v{LWI}, v{SR}")
    a(f"v_fmac_f32 v{HR}, v{PWR}, v{QR}")
    a(f"v_fmac_f32 v{HI}, v{PWR}, v{QI}")
    a(f"v_fma_f32 v{HR}, -v{PWI}, v{QI}, v{HR}")
    a(f"v_fmac_f32 v{HI}, v{PWI}, v{QR}")
    pr, pi = HR, HI
    PK, HF = 96, 80
    rest = co[:cfg.c2]
    for r in range(16):
        if rest: rest.pop(0)()
        a(f"v_fma_f32 v{X+r}, -v{LI}, v{pi}, v{X+r}")
        a(f"v_fma_f32 v{Y+r}, v{LI}, v{pr}, v{Y+r}")
        a(f"v_fmac_f32 v{X+r}, v{LR}, v{pr}")
        a(f"v_fmac_f32 v{Y+r}, v{LR}, v{pi}")
        pr, pi = X + r, Y + r
    for k in range(8):
        a(f"v_cvt_pk_bf16_f32 v{PK+k}, v{X+2*k}, v{X+2*k+1}")
    a(f"ds_write_b128 v{vTW}, v[{PK}:{PK+3}]")
    a(f"ds_write_b128 v{vTW}, v[{PK+4}:{PK+7}] offset:16")
    for k in range(8):
        a(f"v_cvt_pk_bf16_f32 v{PK+8+k}, -v{Y+2*k}, -v{Y+2*k+1}")
    a(f"ds_write_b128 v{vTW}, v[{PK+8}:{PK+11}] offset:2048")
    a(f"ds_write_b128 v{vTW}, v[{PK+12}:{PK+15}] offset:2064")
    for q in range(2):
        for part in range(2):
            for j in range(2):
                d = HF + 8 * q + 4 * part + 2 * j
                a(f"ds_read_b64_tr_b16 v[{d}:{d+1}], v{vTR} offset:{(part*16 + 4*j)*128 + 64*(q ^ j)}")
    assert not rest
    a("s_waitcnt lgkmcnt(0)")
    for q in range(2):
        for part in range(2):
            d = HF + 8 * q + 4 * part
            a(f"s_add_u32 s11, s19, {q*RT_BYTES + part*HALF_BYTES}")
            vm.issue('hs', f"buffer_store_dwordx4 v[{d}:{d+3}], v{vP}, s[{SRD_WS}:{SRD_WS+3}], s11 offen{SP}")
    if cfg.wl: wrest()
    def flag2():
        vm.wait('hs')
        a("s_mov_b64 exec, 1")
        vm.issue('f', f"buffer_store_dword v{vOne}, v{vF}, s[{SRD_WS}:{SRD_WS+3}], 0 offen sc1")
        a("s_mov_b64 exec, -1")
        ts(7)
    if cfg.f2b == 0: flag2()
    for o in co[cfg.c2:] + (c_ops(2) if not cfg.clate else []): o()
    if cfg.f2b == 1: flag2()
    a(f"s_and_b32 s11, s{S_W4}, 1")
    a("s_lshl_b32 s11, s11, 8")
    a(f"s_add_u32 s11, s11, {ST2_L}")
    a(f"v_lshl_add_u32 v{vT+3}, v{vT+3}, 7, s11")
    STT = 32
    for k in range(8): a(f"ds_read_b128 v[{STT+4*k}:{STT+4*k+3}], v{vT+3} offset:{16*k}")
    for r in range(16): a(f"v_lshlrev_b32 v{XV+r}, 16, v{XV+r}")
    a("s_waitcnt lgkmcnt(0)")
    a("s_setprio 0")
    def rnd_pair(r0, r1):
        a(f"v_cvt_pk_bf16_f32 v{r1}, v{r0}, v{r1}"); a(f"v_lshlrev_b32 v{r0}, 16, v{r1}"); a(f"v_and_b32 v{r1}, s71, v{r1}")
    for r in range(16): a(f"v_sub_f32 v{TT+r}, v{XV+r}, v{STT+2*r}")
    for k in range(8): rnd_pair(TT + 2 * k, TT + 2 * k + 1)
    a(f"v_mov_b32 v{T2}, 3")
    vm.wait(('w', 27))
    a(f"ds_write_b32 v{vRd}, v{T2}")
    for r in range(16): a(f"v_mul_f32 v{TT+r}, v{TT+r}, v{STT+2*r+1}")
    for k in range(8): rnd_pair(TT + 2 * k, TT + 2 * k + 1)
    for r in range(16): a(f"v_mul_f32 v{TT+r}, v{TT+r}, v{DS}")
    for k in range(8): rnd_pair(TT + 2 * k, TT + 2 * k + 1)
    def poll(name, off):
        sspin(a, name, [f"s_load_dwordx16 s[20:35], s[{P_WS}:{P_WS+1}], s18 glc"], pcond, cfg.psleep)
    if True:
        def pcond():
            for k in range(0, 12, 4): a(f"s_and_b64 s[{20+k}:{21+k}], s[{20+k}:{21+k}], s[{22+k}:{23+k}]")
            a("s_and_b64 s[20:21], s[20:21], s[24:25]")
            a("s_and_b64 s[28:29], s[28:29], s[32:33]")
            a("s_and_b64 s[20:21], s[20:21], s[28:29]")
            a("s_and_b32 s20, s20, s21")
            a("s_cmp_eq_u32 s20, 1")
    a(f"s_mul_i32 s57, s40, {RT_BYTES}")
    a("s_xor_b32 s11, s40, 1")
    a(f"s_mul_i32 s56, s11, {RT_BYTES}")
    a(f"s_lshr_b32 s11, s{S_W4}, 1")
    a(f"s_mul_i32 s11, s11, {HALF_BYTES}")
    a(f"s_add_u32 s11, s11, {56*1024}")
    a("s_add_u32 s56, s56, s11")
    a("s_add_u32 s57, s57, s11")
    a(f"s_and_b32 s12, s{S_W4}, 1")
    a("s_lshl_b32 s13, s12, 14")
    for b in range(3):
        if cfg.crot:
            a(f"s_sub_u32 s11, s{sCB[b]}, s{sCF}")
            a("s_lshr_b32 s11, s11, 1")
            a(f"s_add_u32 s{52+b}, s13, s11")
        else: a(f"s_add_u32 s{52+b}, s13, {b*4096}")
    a("s_lshl_b32 s12, s12, 11")
    a(f"s_add_u32 s55, s12, {12*1024}")
    srd(a, 60, P_OUT, 2048 * 1792)
    vW1, vW2, vCn, vCv = 1, 2, 9, 4
    vR = [3, 12, 13, 14]
    a(f"v_add_u32 v{vW1}, {PH1}, v{vPQ}")
    a(f"v_add_u32 v{vW2}, {PH2}, v{vPQ}")
    a(f"v_mov_b32 v{vCn}, {CNT_L}")
    for (reg, xr, base) in ((vR[0], 1, PH1), (vR[1], 3, PH1 + 4096), (vR[2], 2, PH2)):
        a(f"s_xor_b32 s11, s{S_W4}, {xr}")
        a(f"s_mul_i32 s11, s11, {Q}")
        a(f"s_add_u32 s11, s11, {base}")
        a(f"v_add_u32 v{reg}, s11, v{vP}")
    a(f"v_add_u32 v{vR[3]}, {GA}, v{vPQ}")
    ts.x(2, 11)
    ts.x(7, 11)
    AR = list(range(16, 64, 4))
    NA = len(AR)
    PO = [4, 5, 6, 7, 12, 13, 0, 1, 2, 3, 8, 9, 10, 11]
    def aload(n):
        lr, p = n // 14, PO[n % 14]
        if p % 4 == 0: a(f"s_add_u32 s58, s{56+lr}, s{52 + p//4}")
        d = AR[n % NA]
        vm.issue(('a', n), f"buffer_load_dwordx4 v[{d}:{d+3}], v{vP}, s[{SRD_WS}:{SRD_WS+3}], s58 offen offset:{(p%4)*1024}{AP}")
    def cnt_wait(name, off):
        a("s_mov_b32 s73, 0")
        a.label(name)
        a("s_waitcnt lgkmcnt(0)")
        a(f"v_readfirstlane_b32 s11, v{vCv}")
        a("s_cmp_ge_u32 s11, 4")
        a(f"s_cbranch_scc1 {name}ok")
        a("s_add_u32 s73, s73, 1")
        a(f"s_cmp_ge_u32 s73, {SPIN_MAX}")
        a(f"s_cbranch_scc1 {name}ok")
        a("s_sleep 1")
        a(f"ds_read_b32 v{vCv}, v{vCn} offset:{off}")
        a(f"s_branch {name}")
        a.label(name + "ok")
        a("s_nop 7")
    assert cfg.clate == 2 and cdone == {1, 3}
    if cfg.gate == 0: poll("L_ps", 128)
    if cfg.gate < 2:
        a(f"ds_read_b32 v{vCv}, v{vCn} offset:4")
        cnt_wait("L_l_c0", 4)
    if cfg.sprio: a(f"s_setprio {cfg.sprio}")
    cc = c_ops(0) + c_ops(2)
    for o in cc[:cfg.c0n]: o()
    if cfg.gate != 0: poll("L_ps", 128)
    ts(9)
    ts.x(7, 1)
    seq = [(lambda n=n: aload(n)) for n in range(6)] + cc[cfg.c0n:8] + [(lambda n=n: aload(n)) for n in range(6, 10)] + cc[max(8, cfg.c0n):] + [(lambda n=n: aload(n)) for n in range(10, NA)]
    npre = cfg.ramp if cfg.ramp else len(seq)
    for o in seq[:npre]: o()
    seq = seq[npre:]
    a("s_setprio 0")
    ts.x(7, 2)
    own = []
    assert cfg.dfr <= NA
    for n in range(28):
        lr, p = n // 14, PO[n % 14]
        assert ('a', n) in vm.q
        vm.wait(('a', n))
        assert ('c', min(p // 4, 3)) not in vm.q
        if n in (0, 7, 14, 21): ts.x(7, 3 + n // 7)
        d = AR[n % NA]
        for lc in (1, 0):
            acc = SACC + 32 * lr + 16 * lc
            c = "0" if (n % 14 == 0 and not (lr == 1 and lc == 0)) else f"v[{acc}:{acc+15}]"
            f = cfrag(p, lc)
            m = f"v_mfma_f32_32x32x16_bf16 v[{acc}:{acc+15}], v[{d}:{d+3}], v[{f}:{f+3}], {c}"
            if lc == 0 and n >= 28 - cfg.dfr: own.append(m)
            else: a(m)
        if n + NA < 28: seq.append(lambda n=n: aload(n + NA))
        for _ in range(3):
            if seq: seq.pop(0)()
        if cfg.gate == 2 and n == 14: a(f"ds_read_b32 v{vCv}, v{vCn} offset:4")
        if cfg.gate == 2 and n == 15: cnt_wait("L_l_c0", 4)
        if 16 <= n < 24:
            k = n - 16
            a(f"ds_write_b128 v{vW1}, v[{SACC+4*k}:{SACC+4*k+3}] offset:{1024*k}")
    ts.x(7, 7)
    def ownm(n=1):
        for _ in range(n):
            if own: a(own.pop(0))
    ownm(1)
    for k in range(4):
        if k < cfg.dfb - 1: ownm(1)
        a(f"ds_write_b128 v{vW2}, v[{SACC+48+4*k}:{SACC+48+4*k+3}] offset:{1024*k}")
    ownm(max(0, cfg.dfb - 5))
    a("s_waitcnt lgkmcnt(0)")
    ts.x(7, 9)
    a("s_barrier")
    ts(11)
    ts.x(7, 10)
    def rx(w, r):
        return (SACC + r, SACC + 16 + r, SACC + 48 + r, cfrag(r // 4, 1) + r % 4)[w]
    for k in range(4):
        for w in range(4):
            a(f"ds_read_b128 v[{rx(w,4*k)}:{rx(w,4*k)+3}], v{vR[w]} offset:{1024*k}")
        ownm(1)
    for k in range(4):
        a(f"s_waitcnt lgkmcnt({12 - 4*k})")
        rr = range(4 * k, 4 * k + 4)
        for r in rr: a(f"v_add_f32 v{rx(0,r)}, v{rx(0,r)}, v{rx(1,r)}")
        ownm(1)
        for r in rr: a(f"v_add_f32 v{rx(0,r)}, v{rx(0,r)}, v{rx(2,r)}")
        ownm(1)
        for r in rr: a(f"v_fmac_f32 v{XV+r}, v{rx(0,r)}, v{rx(3,r)}")
    ownm(100)
    ts(10)
    for r in range(16):
        a(f"v_fmac_f32 v{XV+r}, v{TT+r}, v{rx(3,r)}")
        if r % 2 == 0: a(f"s_mov_b32 s11, {r*1792}")
        a(f"buffer_store_dword v{XV+r}, v{vO}, s[60:63], s11 offen offset:{(r%2)*1792}{OP}")
    if cfg.ts:
        a("s_waitcnt vmcnt(0)")
        ts(12)
    if cfg.padto:
        a.label("L_pad")
        a("s_memrealtime s[98:99]")
        a("s_waitcnt lgkmcnt(0)")
        a("s_sub_u32 s98, s98, s100")
        a(f"s_cmp_lt_u32 s98, {cfg.padto}")
        a("s_cbranch_scc1 L_pad")
    ts.dump(16, 17, 1)
    a("s_endpgm")

def gen_consumer(a, cfg, ts):
    if cfg.al >= 2: a.raw(".p2align 12")
    a.label("L_consumer")
    SP = ["", " sc1"][cfg.spol]
    AP = ['', ' sc1', ' sc1 nt', ' sc0 sc1', ' sc0', ' nt'][cfg.apol]
    vm = VM(a)
    XA = [1, 2]; BA = [3, 4]; WA = [5, 6, 7, 8]
    vHS, vOne, vL16, vStF, vCL, vF, vPQ, vSo, vCn, vRd, vWB, MM = 9, 10, 11, 12, 13, 14, 15, 16, 17, 18, 19, 20
    XF = [24, 40]
    def RS(j): return 56 + 4 * j
    ONES, CA = 80, 84
    WE, BE = 22, [20, 21]
    ACC = 96
    def G(ft, ro): return ACC + 32 * ft + 8 * ro
    def U(ft, ro): return G(ft, ro) + 64
    def S(part, ro): return ACC + 128 + 16 * part + 4 * ro
    vI, vH, t0, t1, t2, vG = 24, 25, 26, 27, 28, 29
    a(f"v_and_b32 v{vI}, 15, v0")
    a(f"v_lshrrev_b32 v{vH}, 5, v0")
    a(f"v_lshrrev_b32 v{vG}, 4, v0")
    a(f"v_bfe_u32 v{t0}, v0, 1, 3")
    a(f"v_xor_b32 v{t0}, v{t0}, v{vG}")
    a(f"v_lshlrev_b32 v{t0}, 4, v{t0}")
    a(f"v_lshl_add_u32 v{t0}, v{vI}, 7, v{t0}")
    a(f"s_lshl_b32 s11, s{S_W4}, 13")
    for ks in range(2):
        a(f"v_xor_b32 v{t1}, {64*ks}, v{t0}")
        a(f"v_add_u32 v{XA[ks]}, s11, v{t1}")
        a(f"v_add_u32 v{BA[ks]}, {OFF_BB}, v{t1}")
    a(f"v_lshlrev_b32 v{vHS}, 4, v{vI}")
    a(f"v_lshl_add_u32 v{vHS}, v{vG}, 9, v{vHS}")
    a(f"v_bfe_u32 v{t0}, v0, 2, 2")
    a(f"v_lshlrev_b32 v{t1}, 7, v{t0}")
    a(f"v_lshrrev_b32 v{t0}, 1, v{t0}")
    a(f"v_lshl_add_u32 v{t1}, v{t0}, 6, v{t1}")
    a(f"v_bfe_u32 v{t0}, v0, 4, 1")
    a(f"v_lshl_add_u32 v{t1}, v{t0}, 5, v{t1}")
    a(f"v_and_b32 v{t2}, 3, v0")
    a(f"v_lshl_add_u32 v{t1}, v{t2}, 3, v{t1}")
    a(f"v_lshl_add_u32 v{WA[0]}, v{vG}, 10, v{t1}")
    a(f"v_add_u32 v{WA[0]}, {OFF_WG}, v{WA[0]}")
    for f in range(1, 4): a(f"v_xor_b32 v{WA[f]}, {32*f}, v{WA[0]}")
    a(f"s_lshl_b32 s11, s{S_W4}, 5")
    a(f"v_xor_b32 v{WE}, s11, v{WA[0]}")
    a(f"s_and_b32 s11, s{S_W4}, 1")
    a("s_lshl_b32 s11, s11, 11")
    for k in range(2): a(f"v_add_u32 v{BE[k]}, s11, v{BA[k]}")
    a(f"s_mul_i32 s62, s{S_W4}, {Q}")
    a(f"s_lshr_b32 s59, s{S_W4}, 1")
    a(f"s_and_b32 s63, s{S_W4}, 1")
    a("s_lshl_b32 s11, s59, 6")
    a(f"v_lshl_add_u32 v{vWB}, v{vH}, 9, v{t1}")
    a(f"v_xor_b32 v{vWB}, s11, v{vWB}")
    a(f"v_add_u32 v{vWB}, s62, v{vWB}")
    a("s_waitcnt lgkmcnt(0)")
    a(f"s_lshl_b32 s11, s{S_NS}, 5")
    a(f"s_load_dwordx8 s[32:39], s[{P_LRE}:{P_LRE+1}], s11")
    a(f"s_load_dwordx8 s[64:71], s[{P_LDT}:{P_LDT+1}], s11")
    a(f"s_load_dwordx8 s[24:31], s[{P_LIM}:{P_LIM+1}], s11")
    for k in range(4 if cfg.zpeel else 160): a(f"v_mov_b32 v{ACC+k}, 0")
    a(f"v_mov_b32 v{vCn}, {CNT_L}")
    a(f"ds_write_b128 v{vCn}, v[{ACC}:{ACC+3}]")
    a(f"ds_write_b128 v{vCn}, v[{ACC}:{ACC+3}] offset:16")
    a(f"v_bfe_u32 v{t0}, v0, 2, 1")
    a(f"v_lshl_add_u32 v{t0}, v{t0}, 4, v{t2}")
    a(f"v_bfe_u32 v{t1}, v0, 3, 1")
    a(f"v_lshl_add_u32 v{t0}, v{t1}, 2, v{t0}")
    a(f"s_lshl_b32 s11, s{S_W4}, 9")
    a(f"s_add_u32 s11, s11, {STATS_L}")
    a(f"v_lshl_add_u32 v{vStF}, v{t0}, 3, s11")
    a(f"v_lshlrev_b32 v{vL16}, 4, v0")
    a(f"v_add_u32 v{vPQ}, s62, v{vL16}")
    a(f"v_lshlrev_b32 v{vCL}, 4, v{vG}")
    a(f"v_add_u32 v{vCL}, {C_L}, v{vCL}")
    a(f"v_mov_b32 v{vOne}, 1")
    a(f"s_lshl_b32 s11, s{S_W4}, 2")
    a(f"s_add_u32 s11, s11, {CNT_L + 16}")
    a(f"v_mov_b32 v{vRd}, s11")
    a("s_lshl_b32 s11, s63, 8")
    a(f"s_add_u32 s11, s11, {ST2_L}")
    a(f"v_lshl_add_u32 v{vSo}, v{vH}, 7, s11")
    a(f"s_lshl_b32 s13, s{S_MT}, 2")
    a(f"s_add_u32 s13, s13, s{S_W4}")
    a(f"s_mul_i32 s56, s13, {2*RT_BYTES}")
    a(f"s_cmp_ge_u32 s{S_NS}, 14")
    a(f"s_cselect_b32 s11, {HALF_BYTES - 56*1024}, 0")
    a(f"s_lshl_b32 s12, s{S_NS}, 12")
    a("s_add_u32 s11, s11, s12")
    a("s_add_u32 s56, s56, s11")
    a(f"s_add_u32 s57, s56, {RT_BYTES}")
    a("s_lshl_b32 s11, s13, 10")
    flag_index(a, 12, 14, 7)
    a("s_add_u32 s11, s11, s12")
    a(f"s_add_u32 s11, s11, {WS_FLAG:#x}")
    a(f"v_mov_b32 v{vF}, s11")
    a(f"s_lshl_b32 s55, s{S_M64}, 10")
    a(f"s_add_u32 s55, s55, {WS_FLAG:#x}")
    a(f"s_lshl_b32 s11, s{S_W4}, 7")
    a("s_add_u32 s55, s55, s11")
    a(f"s_mul_i32 s12, s59, {HALF_BYTES}")
    a(f"s_mul_i32 s13, s63, {28*1024}")
    a("s_add_u32 s12, s12, s13")
    a(f"s_lshl_b32 s11, s{S_M64}, 1")
    a("s_add_u32 s11, s11, s63")
    a(f"s_mul_i32 s52, s11, {RT_BYTES}")
    a("s_add_u32 s52, s52, s12")
    a("s_xor_b32 s11, s11, 1")
    a(f"s_mul_i32 s51, s11, {RT_BYTES}")
    a("s_add_u32 s51, s51, s12")
    p2_rot(a, cfg, 60, 61, 58)
    a("s_mov_b32 s12, 0x00030003")
    a("s_mov_b32 s13, 0x00030003")
    a("s_waitcnt lgkmcnt(0)")
    K, KP = 40, 64
    for k in range(8):
        a(f"s_lshl_b64 exec, s[12:13], {2*k}")
        for m, sb in enumerate((32, 24, 64)): a(f"v_mov_b32 v{K+m}, s{sb+k}")
    a("s_mov_b64 exec, -1")
    a(f"v_and_b32 v{K+3}, 1, v0")
    a(f"v_lshlrev_b32 v{K+3}, 4, v{K+3}")
    for m in range(3): a(f"v_lshrrev_b32 v{K+m}, v{K+3}, v{K+m}")
    srd(a, SRD_WS, P_WS, WS_SIZE)
    ssm_park(a, K, KP, 62)
    a(f"v_mov_b32 v{KP+23}, 0")
    a(f"s_lshl_b32 s11, s{S_W4}, 13")
    a(f"s_add_u32 s11, s11, {R[2]}")
    a(f"v_add_u32 v{K}, s11, v{vL16}")
    for k in range(6): a(f"ds_write_b128 v{K}, v[{KP+4*k}:{KP+4*k+3}] offset:{1024*k}")
    a("s_waitcnt lgkmcnt(0)")
    for k in range(4): a(f"v_mov_b32 v{ONES+k}, 0x3f803f80")
    ts(1)

    lq = []
    def ds_issue(tag, t):
        a(t)
        if t.startswith("ds_"): lq.append(tag)
    def ds_wait(tag):
        idx = max((i for i, t in enumerate(lq) if t == tag), default=None)
        if idx is None: return None
        n = len(lq) - 1 - idx
        del lq[:idx + 1]
        if n > 12:
            del lq[:len(lq) - 12]
            n = 12
        return f"lgkmcnt({n})"
    def dwait(tag):
        w = ds_wait(tag)
        if w: a(f"s_waitcnt {w}")
    COLS = [('s', 0), ('s', 1)] + [(gu, f) for f in range(4) for gu in range(2)]
    def xreads(k):
        return [(('x', k), f"ds_read_b128 v[{XF[k]+4*ro}:{XF[k]+4*ro+3}], v{XA[k]} offset:{2048*ro}") for ro in range(4)]
    def creads(col, k, sl):
        d = RS(sl)
        if col[0] == 's': return [(('c', sl), f"ds_read_b128 v[{d}:{d+3}], v{BA[k]} offset:{2048*col[1]}")]
        return [(('c', sl), f"ds_read_b64_tr_b16 v[{d+2*jj}:{d+2*jj+1}], v{WA[col[1]]} offset:{col[0]*8192 + k*4096 + jj*512}") for jj in range(2)]
    def group(col, k, sl, zero=False):
        w = RS(sl)
        L = []
        rev = cfg.snake and (col[1] if col[0] == 's' else col[0]) == 1
        for ro in (range(3, -1, -1) if rev else range(4)):
            x = XF[k] + 4 * ro
            if col[0] == 's': d, A_, B_ = S(col[1], ro), x, w
            else: d, A_, B_ = (G, U)[col[0]](col[1] >> 1, ro) + 4 * (col[1] & 1), w, x
            c = "0" if zero else f"v[{d}:{d+3}]"
            L.append(f"v_mfma_f32_16x16x32_bf16 v[{d}:{d+3}], v[{A_}:{A_+3}], v[{B_}:{B_+3}], {c}")
        return L
    NR = 5
    def ereads(e, k, sl=5):
        d = RS(sl)
        if e == 2: return [(('c', sl), f"ds_read_b128 v[{d}:{d+3}], v{BE[k]}")]
        return [(('c', sl), f"ds_read_b64_tr_b16 v[{d+2*jj}:{d+2*jj+1}], v{WE} offset:{e*8192 + k*4096 + jj*512}") for jj in range(2)]
    def emfma(e, zero=False, sl=5):
        d, w = CA + 4 * e, RS(sl)
        c = "0" if zero else f"v[{d}:{d+3}]"
        A_, B_ = (w, ONES) if e < 2 else (ONES, w)
        return f"v_mfma_f32_16x16x32_bf16 v[{d}:{d+3}], v[{A_}:{A_+3}], v[{B_}:{B_+3}], {c}"
    pend = []
    def gap(n=1):
        for _ in range(n):
            if pend: ds_issue(*pend.pop(0))
    EPOS = {1: 0, 3: 1, 5: 2}
    def kstep(k, first, last, after, zero=False, side=None):
        for j in range(first, last):
            if j == 0: dwait(('x', k))
            dwait(('c', j % NR))
            for i, m in enumerate(group(COLS[j], k, j % NR, zero)):
                a(m)
                if i == 3: pend.extend(after(j))
                gap(cfg.rpg)
                if side: a(side.pop(0))
            if j in EPOS:
                while any(tg == ('c', 5) for tg, _ in pend): gap()
                dwait(('c', 5))
                a(emfma(EPOS[j], zero))
                if EPOS[j] < 2: pend[:0] = ereads(EPOS[j] + 1, k)
    def after0(j):
        L = creads(COLS[j + NR], 0, j % NR) if j + NR < 10 else creads(COLS[j + NR - 10], 1, j % NR)
        if j == 5: L = L + xreads(1)
        if j == 8: L = L + ereads(0, 1)
        return L
    NBAR = 6
    def after1a(j): return creads(COLS[j + NR], 1, j % NR) if j + NR < 10 else []
    def head0():
        return xreads(0) + creads(COLS[0], 0, 0) + ereads(0, 0)
    def after1b(j): return creads(COLS[j + NR - 10], 0, j % NR)
    a(f"s_setprio {cfg.cprio}")
    a("s_mov_b32 s72, 0")
    a("s_mov_b32 s74, 0")
    a("s_barrier")
    ts(2)
    for t in head0() + sum([after1b(j) for j in range(NBAR, 10)], []): ds_issue(*t)
    lq0 = list(lq)
    kstep(0, 0, 10, after0, zero=True); gap(99)
    lq1 = list(lq)
    a("s_branch L_c_k1")
    a.label("L_c_loop")
    lq[:] = lq0
    kstep(0, 0, 10, after0); gap(99)
    assert lq == lq1
    a.label("L_c_k1")
    sc = ["s_add_u32 s74, s74, 1", "s_cmp_eq_u32 s74, 3", "s_mov_b32 s75, 53248", f"s_cmov_b32 s75, {(-106496) & 0xffffffff:#x}",
          "s_cselect_b32 s74, 0, s74", "s_add_u32 s72, s72, 1", "s_cmp_eq_u32 s72, 6"]
    sc += [f"v_add_u32 v{v}, s75, v{v}" for v in XA + BA + [BE[0], WA[0]]]
    kstep(1, 0, 5, after1a, side=sc); gap(99)
    assert not sc
    sc = [f"v_add_u32 v{v}, s75, v{v}" for v in WA[1:] + [WE]]
    kstep(1, 5, NBAR, after1a, side=sc)
    a(f"v_add_u32 v{BE[1]}, s75, v{BE[1]}")
    assert not pend and not sc
    a("s_waitcnt lgkmcnt(0)")
    del lq[:]
    a("s_barrier")
    hist = list(a.hist)
    a("s_cbranch_scc1 L_c_last")
    pend.extend(head0())
    kstep(1, NBAR, 10, after1b); gap(99)
    assert lq == lq0, (lq, lq0)
    a("s_branch L_c_loop")
    a.label("L_c_last")
    a.hist = hist
    ts.x(5, 1)
    if cfg.cprio != 2: a("s_setprio 2")
    del lq[:]
    SEQ = [(('e', e), k) for k in range(2) for e in range(3)]
    SEQ += [((gu, 2 * ft + h), k) for ft in range(2) for k in range(2) for h in range(2) for gu in range(2)] + [(('s', pt), k) for k in range(2) for pt in range(2)]
    SL = [5, 0, 1, 2, 3, 4]
    def sreads(n):
        col, k = SEQ[n]
        return ereads(col[1], k, SL[n % 6]) if col[0] == 'e' else creads(col, k, SL[n % 6])
    pend.extend(sreads(0) + sreads(1) + xreads(0))
    kstep(1, NBAR, 10, lambda j: sreads(j - NBAR + 2)); gap(99)
    CH = ONES
    def cread(tag, dst, ft):
        for gu in range(2):
            for h in range(2):
                d = dst + 8 * gu + 4 * h
                ds_issue(tag, f"ds_read_b128 v[{d}:{d+3}], v{vCL} offset:{256*gu + 64*(2*ft+h)}")
    def hstore(ft, ro):
        g = G(ft, ro)
        vm.issue('h', f"buffer_store_dwordx4 v[{g}:{g+3}], v{vHS}, s[{SRD_WS}:{SRD_WS+3}], s{56 + (ro >> 1)} offen offset:{2048*ft + 256*(ro & 1)}{SP}")
    def unit_plain(ft, ro, ch):
        g, u = G(ft, ro), U(ft, ro)
        L = []
        for k in range(8): L.append(f"v_fmac_f32 v{g+k}, v{MM+ro}, v{ch+k}")
        for k in range(8): L.append(f"v_fmac_f32 v{u+k}, v{MM+ro}, v{ch+8+k}")
        for k in range(8): L.append(f"v_max_f32 v{g+k}, 0, v{g+k}")
        for k in range(8): L.append(f"v_mul_f32 v{u+k}, v{u+k}, v{g+k}")
        for k in range(4): L.append(f"v_cvt_pk_bf16_f32 v{g+k}, v{u+2*k}, v{u+2*k+1}")
        L.append(lambda: hstore(ft, ro))
        return L
    def unit_pk(ft, ro, ch, side):
        g, u = G(ft, ro), U(ft, ro)
        mp = MM + (ro & 2)
        sel = f"op_sel:[{ro & 1},0,0] op_sel_hi:[{ro & 1},1,1]"
        for k in range(4):
            a(f"v_pk_fma_f32 v[{g+2*k}:{g+2*k+1}], v[{mp}:{mp+1}], v[{ch+2*k}:{ch+2*k+1}], v[{g+2*k}:{g+2*k+1}] {sel}")
            if side: a(side.pop(0))
        for k in range(4):
            a(f"v_pk_fma_f32 v[{u+2*k}:{u+2*k+1}], v[{mp}:{mp+1}], v[{ch+8+2*k}:{ch+8+2*k+1}], v[{u+2*k}:{u+2*k+1}] {sel}")
            a(f"v_max_f32 v{g+2*k}, 0, v{g+2*k}")
            a(f"v_max_f32 v{g+2*k+1}, 0, v{g+2*k+1}")
        for k in range(4): a(f"v_pk_mul_f32 v[{u+2*k}:{u+2*k+1}], v[{u+2*k}:{u+2*k+1}], v[{g+2*k}:{g+2*k+1}]")
        for k in range(4): a(f"v_cvt_pk_bf16_f32 v{g+k}, v{u+2*k}, v{u+2*k+1}")
    ep = [lambda: dwait('c0')] + [f"v_xor_b32 v{MM+k}, 0x80000000, v{MM+k}" for k in range(4)]
    for ro in range(cfg.nfill): ep += unit_plain(0, ro, CH)
    def fill(n):
        while n > 0 and ep:
            t = ep.pop(0)
            if callable(t): t()
            else: a(t)
            n -= 1
    pend.extend(xreads(1))
    NS = len(SEQ)
    for n in range(NS):
        col, k = SEQ[n]
        sl = SL[n % 6]
        if n in (0, 6, 10, 14, 18, 22): ts.x(5, {0: 2, 6: 3, 10: 4, 14: 7, 18: 8, 22: 9}[n])
        while any(tg == ('c', sl) for tg, _ in pend): gap()
        if n in (6, 10):
            while any(tg == ('x', k) for tg, _ in pend): gap()
            dwait(('x', k))
        dwait(('c', sl))
        if n == NS - 1:
            assert not pend
            a("s_barrier")
        ms = [emfma(col[1], False, sl)] if col[0] == 'e' else group(col, k, sl)
        for i, m in enumerate(ms):
            a(m)
            if i == len(ms) - 1 and n + 6 < NS: pend.extend(sreads(n + 6))
            got = 1 if pend else 0
            gap(2 if n < 8 else 1)
            if n > 14 or (n == 14 and i >= 2): fill(cfg.fper16 - got)
        if n == 7:
            a(f"s_lshl_b32 s11, s{S_W4}, 6")
            a(f"v_add_u32 v{WE}, s11, v{vCL}")
            a(f"v_subrev_u32 v{BE[0]}, v{BA[0]}, v{BE[0]}")
            a(f"v_lshrrev_b32 v{BE[0]}, 5, v{BE[0]}")
            a(f"v_and_b32 v{BE[1]}, 15, v0")
            a(f"v_lshl_add_u32 v{BE[0]}, v{BE[1]}, 2, v{BE[0]}")
            a(f"v_add_u32 v{BE[0]}, {C_L + 512}, v{BE[0]}")
            a("s_mov_b32 exec_lo, 0x00010001")
            a("s_mov_b32 exec_hi, 0x00010001")
            ds_issue('w', f"ds_write_b128 v{WE}, v[{CA}:{CA+3}]")
            ds_issue('w', f"ds_write_b128 v{WE}, v[{CA+4}:{CA+7}] offset:256")
            a("s_mov_b64 exec, 0xffff")
            ds_issue('w', f"ds_write_b32 v{BE[0]}, v{CA+8}")
            a("s_mov_b64 exec, -1")
        if n == 6 + cfg.c2u:
            dwait('w')
            ts.x(5, 5)
            a("s_barrier")
            ts.x(5, 6)
            for ro in range(4): ds_issue('c0', f"ds_read_b32 v{MM+ro}, v{vStF} offset:{(ro >> 1)*256 + (ro & 1)*64}")
            cread('c0', CH, 0)
        if n == NS - 3: cread('c1', XF[0], 1)
    ts(3)
    ts.x(5, 10)
    fill(1000)
    dump = [f"ds_write_b128 v{vPQ}, v[{S(0,0)+4*k}:{S(0,0)+4*k+3}] offset:{SD + 1024*k}" for k in range(8)]
    WB = {0: [1, 2], 1: [3, 4], 2: [5, 6]}
    for rg in range(3):
        a(f"v_add_u32 v{WB[rg][0]}, {R[rg]}, v{vWB}")
        a(f"v_xor_b32 v{WB[rg][1]}, 64, v{WB[rg][0]}")
    dwait('c1')
    units = [(0, ro, CH) for ro in range(cfg.nfill, 4)] + [(1, ro, XF[0]) for ro in range(4)]
    for n, (ft, ro, ch) in enumerate(units):
        unit_pk(ft, ro, ch, dump)
        if n == 1:
            a("s_waitcnt lgkmcnt(0)")
            a("s_barrier")
        hstore(ft, ro)
    del lq[:]
    ts(4)
    ts.x(5, 11)
    BR, NB = 160, 12
    def breads(p):
        sl = WSLOT[p]
        rg = max(k for k in range(3) if R[k] <= sl)
        L = []
        for lc in range(2):
            for jj in range(2):
                d = BR + 8 * (p % NB) + 4 * lc + 2 * jj
                L.append(f"ds_read_b64_tr_b16 v[{d}:{d+1}], v{WB[rg][lc]} offset:{sl - R[rg] + jj*1024}")
        return L
    for p in range(NB):
        for t in breads(p): a(t)
    def flag1():
        vm.wait('h')
        a("s_setprio 3")
        a("s_mov_b64 exec, 1")
        vm.issue('f', f"buffer_store_dword v{vOne}, v{vF}, s[{SRD_WS}:{SRD_WS+3}], 0 offen sc1")
        a("s_mov_b64 exec, -1")
        ts(6)
    if cfg.fpre: flag1()
    a("s_waitcnt lgkmcnt(0)")
    a("s_barrier")
    ts(5)
    if not cfg.fpre: flag1()
    AF = 96
    AR = list(range(24, 96, 4))
    NA = len(AR)
    def aload(n):
        p, lr = n // 2, n % 2
        if n % 8 == 0:
            a(f"s_lshl_b32 s11, s60, 12")
            a(f"s_add_u32 s54, s11, s52")
            a(f"s_add_u32 s53, s11, s51")
            a(f"s_add_u32 s60, s60, 1")
            a(f"s_cmp_eq_u32 s60, 7")
            a(f"s_cselect_b32 s60, 0, s60")
        d = AR[n % NA]
        vm.issue(('a', n), f"buffer_load_dwordx4 v[{d}:{d+3}], v{vL16}, s[{SRD_WS}:{SRD_WS+3}], s{54 - lr} offen offset:{(p%4)*1024}{AP}")
    def cond():
        a("s_and_b64 s[16:17], s[16:17], s[18:19]")
        a("s_and_b64 s[16:17], s[16:17], s[20:21]")
        a("s_and_b32 s16, s16, s17")
        a("s_and_b32 s16, s16, s22")
        a("s_cmp_eq_u32 s16, 1")
    sspin(a, "L_pf", [f"s_load_dwordx8 s[16:23], s[{P_WS}:{P_WS+1}], s55 glc"], cond, cfg.fsleep)
    a("s_setprio 2")
    ts(7)
    for n in range(cfg.a0): aload(n)
    nxt = [cfg.a0]
    ts(8)
    def lds_spin(name, vaddr, off, val):
        a("s_mov_b32 s73, 0")
        a.label(name)
        a("s_waitcnt lgkmcnt(0)")
        a("v_readfirstlane_b32 s11, v8")
        a(f"s_cmp_ge_u32 s11, {val}")
        a(f"s_cbranch_scc1 {name}ok")
        a("s_add_u32 s73, s73, 1")
        a(f"s_cmp_ge_u32 s73, {SPIN_MAX}")
        a(f"s_cbranch_scc1 {name}ok")
        a("s_sleep 1")
        a(f"ds_read_b32 v8, v{vaddr} offset:{off}")
        a(f"s_branch {name}")
        a.label(name + "ok")
        del lq[:]
    ownc = []
    assert cfg.dfc <= 8
    for p in range(28):
        f = BR + 8 * (p % NB)
        pn = p + cfg.bd
        for lr in range(2):
            n = 2 * p + lr
            w = ds_wait(p) if lr == 0 else None
            vm.wait(('a', n), w or "")
            if n == 0: ts(9)
            if n in (0, 7, 17, 25, 35): ts.x(6, {0: 7, 7: 8, 17: 9, 25: 10, 35: 11}[n])
            if lr == 0 and pn in (12, 16, 22): ds_issue('r', f"ds_read_b32 v8, v{vRd}")
            d = AR[n % NA]
            for lc in range(2):
                acc = AF + 32 * lr + 16 * lc
                c = "0" if p == 0 else f"v[{acc}:{acc+15}]"
                m = f"v_mfma_f32_32x32x16_bf16 v[{acc}:{acc+15}], v[{d}:{d+3}], v[{f+4*lc}:{f+4*lc+3}], {c}"
                if lr == 0 and lc == 0 and p >= 28 - cfg.dfc: ownc.append(m)
                else: a(m)
            for _ in range(2):
                if nxt[0] < 56 and nxt[0] <= n + NA:
                    aload(nxt[0]); nxt[0] += 1
        if pn in (12, 16, 22): lds_spin(f"L_c_r{pn}", vRd, 0, {12: 1, 16: 2, 22: 3}[pn])
        if p == cfg.ksig:
            assert pn > 15
            w = ds_wait(15)
            if w: a(f"s_waitcnt {w}")
            a("s_mov_b64 exec, 1")
            ds_issue('c', f"ds_add_u32 v{vCn}, v{vOne} offset:4")
            a("s_mov_b64 exec, -1")
        if NB <= pn < 28:
            for t in breads(pn): ds_issue(pn, t)
        if p == 24:
            STT = BR + 32
            for k in range(8): ds_issue('st', f"ds_read_b128 v[{STT+4*k}:{STT+4*k+3}], v{vSo} offset:{16*k}")
        if p == 26:
            for x in range(1, 4):
                a(f"s_xor_b32 s11, s{S_W4}, {x}")
                a(f"s_mul_i32 s11, s11, {Q}")
                a(f"s_add_u32 s11, s11, {FXA + (x-1)*4096}")
                a(f"v_add_u32 v{x}, s11, v{vL16}")
            a(f"v_add_u32 v4, {GA}, v{vPQ}")
            a(f"v_add_u32 v5, {FXA}, v{vPQ}")
        if p % 4 == 3: ts.x(4, 1 + p // 4)
    ts(11)
    ts.x(7, 1)
    for x in (2, 1, 3):
        src = AF + 32 * (x & 1) + 16 * (x >> 1)
        for k in range(4):
            if ownc: a(ownc.pop(0))
            a(f"ds_write_b128 v5, v[{src+4*k}:{src+4*k+3}] offset:{(x-1)*4096 + 1024*k}")
    a("s_waitcnt lgkmcnt(12)")
    for r in range(16): a(f"v_mul_f32 v{STT+2*r}, v{STT+2*r+1}, v{STT+2*r+1}")
    a(f"s_mov_b32 s13, {LOG2E ^ 0x80000000:#x}")
    ts.x(7, 2)
    a("s_waitcnt lgkmcnt(0)")
    ts.x(7, 3)
    a("s_mov_b64 exec, 1")
    a(f"ds_add_u32 v{vCn}, v{vOne}")
    a("s_mov_b64 exec, -1")
    a(f"ds_read_b32 v8, v{vCn}")
    lds_spin("L_c_cnt", vCn, 0, 4)
    ts.x(7, 4)
    O, RX, EX = AF, 24, 72
    for k in range(4):
        for x in range(1, 4):
            a(f"ds_read_b128 v[{RX+16*(x-1)+4*k}:{RX+16*(x-1)+4*k+3}], v{x} offset:{1024*k}")
    for k in range(4):
        rr = range(4 * k, 4 * k + 4)
        a(f"s_waitcnt lgkmcnt({9 - 3*k})")
        for r in rr: a(f"v_add_f32 v{O+r}, v{O+r}, v{RX+r}")
        for r in rr: a(f"v_add_f32 v{RX+16+r}, v{RX+16+r}, v{RX+32+r}")
        for r in rr: a(f"v_add_f32 v{O+r}, v{O+r}, v{RX+16+r}")
        for r in rr: a(f"v_mul_f32 v{O+r}, v{O+r}, v{STT+2*r}")
        for r in rr: a(f"v_mul_f32 v{EX+r}, s13, v{O+r}")
        for r in rr: a(f"v_exp_f32 v{EX+r}, v{EX+r}")
    ts.x(7, 5)
    for k in range(4):
        rr = range(4 * k, 4 * k + 4)
        for r in rr: a(f"v_add_f32 v{EX+r}, 1.0, v{EX+r}")
        for r in rr: a(f"v_rcp_f32 v{EX+r}, v{EX+r}")
        for r in rr: a(f"v_mul_f32 v{O+r}, v{O+r}, v{EX+r}")
        a(f"ds_write_b128 v4, v[{O+4*k}:{O+4*k+3}] offset:{1024*k}")
    a("s_waitcnt lgkmcnt(0)")
    ts(12)
    a("s_barrier")
    ts.dump(24, 25, 0)
    a("s_endpgm")

HEADER = """; Fused LayerNorm + S5-SSM scan + ReGLU gate, one launch.
;   224 main workgroups (4 MFMA waves + 4 loader/scan waves) + 32 helper workgroups (row statistics, hand-off reset, C repack).
;   Kernarg: 13 inputs, d_out (+104), d_debug (+112), d_ws (+120).  Produced by a hand-written generator script.
; @launch grid=(256,1,1) block=(512,1,1) lds=163840
.amdgcn_target "amdgcn-amd-amdhsa--gfx950"
.text
.globl {k}
.p2align {al}
.p2align 8
.type {k},@function
{k}:
"""
FOOTER = """.section .rodata,"a"
.p2align 6
.amdhsa_kernel {k}
  .amdhsa_next_free_vgpr 256
  .amdhsa_next_free_sgpr 102
  .amdhsa_accum_offset 256
  .amdhsa_group_segment_fixed_size 0
  .amdhsa_kernarg_size 128
  .amdhsa_user_sgpr_count 2
  .amdhsa_user_sgpr_kernarg_segment_ptr 1
  .amdhsa_system_sgpr_workgroup_id_x 1
  .amdhsa_float_denorm_mode_32 3
.end_amdhsa_kernel
"""

def generate(cfg):
    WSOFF[0] = cfg.wsoff << 20
    a = Asm()
    ts = TS(a, cfg)
    gen_entry(a, cfg, ts)
    gen_loader(a, cfg, ts)
    gen_consumer(a, cfg, ts)
    gen_helper(a, cfg, ts)
    a.label("L_exit")
    a("s_endpgm")
    return HEADER.format(k=KNAME, al=12 if cfg.al else 8) + (f"; wsoff={cfg.wsoff}\n" if cfg.wsoff else "") + a.text() + FOOTER.format(k=KNAME)

if __name__ == "__main__":
    cfg = Cfg()
    out = sys.argv[1]
    for kv in sys.argv[2:]:
        k, v = kv.split("=")
        setattr(cfg, k, int(v))
    open(out, "w").write(generate(cfg))
```
